```python
import torch

def _softmax(x, axis=-1):
    return torch.softmax(x, dim=axis)

def _gelu(x):
    return torch.nn.functional.gelu(x, approximate='tanh')

def _silu(x):
    return torch.nn.functional.silu(x)

def _sigmoid(x):
    return torch.sigmoid(x)

def _layernorm(x, axis=-1, eps=1e-05):
    m = x.mean(dim=axis, keepdim=True)
    v = x.var(dim=axis, keepdim=True, unbiased=False)
    return (x - m) / torch.sqrt(v + eps)

def _scatter_add(tgt, idx, src, axis=0):
    return tgt.clone().index_add_(axis, idx, src)

def _segment_sum(src, seg, n):
    out = torch.zeros((n,) + src.shape[1:], dtype=src.dtype)
    return out.index_add_(0, seg, src)

def _pad(x, pw):
    flat = tuple((v for pair in reversed(pw) for v in pair))
    return torch.nn.functional.pad(x, flat)
kernel_name = 'recurrent_scan__ssm_conv_h3__mixer_gmlp__prompt'

def setup_inputs():

    _w = lambda a: (lambda t: t.to(torch.bfloat16) if t.is_floating_point() else t)(torch.as_tensor(a))

    def _A_setup():
        B, S, D = (1, 2048, 576)
        ks = 4
        return {'q': _w((lambda *s: torch.randn(*s, dtype=torch.bfloat16) * 0.05)(B, S, D)), 'k': _w((lambda *s: torch.randn(*s, dtype=torch.bfloat16) * 0.2)(B, S, D)), 'v': _w((lambda *s: torch.randn(*s, dtype=torch.bfloat16) * 0.2)(B, S, D)), 'shift_k': _w((lambda *s: torch.randn(*s, dtype=torch.bfloat16) * 0.2)(D, ks) * 0.5), 'ssm_k': _w((lambda *s: torch.randn(*s, dtype=torch.bfloat16) * 0.2)(D, S) * (1.0 / S ** 0.5)), 'ssm_D': _w((lambda *s: torch.randn(*s, dtype=torch.bfloat16) * 0.2)(D))}
    _A_in = _A_setup()

    def _B_setup():
        B, S, D, F = (1, 2048, 576, 4608)
        Fh = F // 2
        return {'x': _w((lambda *s: torch.randn(*s, dtype=torch.bfloat16) * 0.05)(B, S, D)), 'w_in': _w((lambda *s: torch.randn(*s, dtype=torch.bfloat16) * 0.4)(D, 2 * Fh)), 'w_sp': _w(0.01 * (lambda *s: torch.randn(*s, dtype=torch.bfloat16) * 0.4)(S, S)), 'b_sp': _w(1.0 + 0.01 * (lambda *s: torch.randn(*s, dtype=torch.bfloat16) * 0.1)(S)), 'w_out': _w((lambda *s: torch.randn(*s, dtype=torch.bfloat16) * 0.1)(Fh, D))}
    _B_in = _B_setup()
    return {'A_q': _A_in['q'], 'A_k': _A_in['k'], 'A_v': _A_in['v'], 'A_shift_k': _A_in['shift_k'], 'A_ssm_k': _A_in['ssm_k'], 'A_ssm_D': _A_in['ssm_D'], 'B_x': _B_in['x'], 'B_w_in': _B_in['w_in'], 'B_w_sp': _B_in['w_sp'], 'B_b_sp': _B_in['b_sp'], 'B_w_out': _B_in['w_out']}

def reference(A_q, A_k, A_v, A_shift_k, A_ssm_k, A_ssm_D, B_x, B_w_in, B_w_sp, B_b_sp, B_w_out):

    def _A_ref(q, k, v, shift_k, ssm_k, ssm_D):
        B, S, D = q.shape
        ks = shift_k.shape[-1]
        k_pad = _pad(k, ((0, 0), (ks - 1, 0), (0, 0)))
        k_shift = torch.zeros_like(k)
        for t in range(ks):
            k_shift = k_shift + k_pad[:, t:t + S, :] * shift_k[:, ks - 1 - t][None, None, :]
        kv = k_shift * v
        L = 2 * S
        kv_pad = _pad(kv, ((0, 0), (0, S), (0, 0)))
        kf_pad = _pad(ssm_k, ((0, 0), (0, S)))
        kv_f = (lambda x, axes=(-2, -1): torch.fft.rfft2(x.float(), dim=axes))(kv_pad[:, None, :, :], axes=(1, 2))
        kf_f = (lambda x, axes=(-2, -1): torch.fft.rfft2(x.float(), dim=axes))(kf_pad[:, None, :], axes=(1, 2))
        kf_f = (lambda x, *d: x.permute(*d))(kf_f, 1, 2, 0)
        y_f = kv_f * kf_f[None, :, :, :]
        y = (lambda x, s, axes=(-2, -1): torch.fft.irfft2(x, s=s, dim=axes).to(torch.bfloat16))(y_f, (1, L), axes=(1, 2))[:, 0, :S, :]
        y = y + kv * ssm_D[None, None, :]
        return q * y

    def _B_ref(x, w_in, w_sp, b_sp, w_out):
        B, S, D = x.shape
        F = w_in.shape[-1]
        Fh = F // 2
        z = _gelu(torch.einsum('bsd,df->bsf', x, w_in))
        z1 = z[..., :Fh].clone()
        z2 = _layernorm(z[..., Fh:], axis=-1)
        g = torch.einsum('ts,bsf->btf', w_sp, z2) + b_sp[None, :, None]
        return torch.einsum('bsf,fd->bsd', z1 * g, w_out)
    x = A_q
    xn = _layernorm(x, axis=-1)
    s = _A_ref(xn, A_k, A_v, A_shift_k, A_ssm_k, A_ssm_D)
    g = _silu(_B_ref(xn, B_w_in, B_w_sp, B_b_sp, B_w_out))
    return x + s * g
```

```python
class Asm:
    def __init__(self):
        self.lines = []
        self._lbl = 0
    def __call__(self, s):
        for l in s.strip("\n").split("\n"):
            self.lines.append("    " + l.strip())
    def label(self, name):
        self.lines.append(name + ":")
    def newlabel(self, base="L"):
        self._lbl += 1
        return "%s_%d" % (base, self._lbl)
    def comment(self, s):
        self.lines.append("    ; " + s)
    def text(self):
        return "\n".join(self.lines) + "\n"

HEADER = """; Kernarg layout (112 bytes): 0 A_q, 8 A_k, 16 A_v, 24 shift_k, 32 ssm_k, 40 ssm_D, 48 B_x, 56 w_in, 64 w_sp,
"""

def kernel_begin(a, name):
    a.lines.append(".globl %s" % name)
    a.lines.append(".p2align 8")
    a.lines.append(".type %s,@function" % name)
    a.label(name)

def kernel_desc(name, vgpr, accum, sgpr=102):
    return """.p2align 6
.amdhsa_kernel %s
  .amdhsa_next_free_vgpr %d
  .amdhsa_next_free_sgpr %d
  .amdhsa_accum_offset %d
  .amdhsa_group_segment_fixed_size 0
  .amdhsa_kernarg_size 112
  .amdhsa_user_sgpr_count 2
  .amdhsa_user_sgpr_kernarg_segment_ptr 1
  .amdhsa_system_sgpr_workgroup_id_x 1
.end_amdhsa_kernel
""" % (name, vgpr, sgpr, accum)

def srd(a, d, b, nbytes):
    a("s_mov_b32 s%d, s%d" % (d, b))
    a("s_and_b32 s%d, s%d, 0xffff" % (d + 1, b + 1))
    a("s_mov_b32 s%d, 0x%x" % (d + 2, nbytes))
    a("s_mov_b32 s%d, 0x00020000" % (d + 3))

def assemble_file(launches, body, descs):
    out = HEADER
    for (k, g, b, lds) in launches:
        out += "; @launch kernel=%s grid=(%d,1,1) block=(%d,1,1) lds=%d\n" % (k, g, b, lds)
    out += '.amdgcn_target "amdgcn-amd-amdhsa--gfx950"\n.text\n'
    out += body
    out += '.section .rodata,"a"\n'
    out += "".join(descs)
    return out
```

```python
import sys
from asmgen import *

ZIMG   = 0x0000000
Z1IMG  = 0x0A00000
PIMG   = 0x1400000
WOT    = 0x1E00000
KVT    = 0x2200000
YT     = 0x2600000
STATS2 = 0x2A00000
STATS1 = 0x2B00000
STAMPS = 0x2C00000
WS_BYTES = 0x10000000

DBG = set()

class LdsTracker:
    def __init__(self, a):
        self.a = a
        self.out = []
    def issue(self, regs):
        self.out.append(set(regs))
    def need(self, regs):
        regs = set(regs)
        last = -1
        for n, s in enumerate(self.out):
            if s & regs:
                last = n
        if last >= 0:
            remaining = len(self.out) - 1 - last
            self.a("s_waitcnt lgkmcnt(%d)" % min(remaining, 15))
            self.out = self.out[last + 1:]
    def drain(self):
        if self.out:
            self.a("s_waitcnt lgkmcnt(0)")
        self.out = []

def vr(b, n=4):
    return "v[%d:%d]" % (b, b + n - 1)

class Core:
    def __init__(self, a, acc, fb0, fb1, FS, TREG, vTa, vTb, vF, vFh):
        self.a = a; self.acc = acc; self.fb = [fb0, fb1]; self.FS = FS; self.TREG = TREG
        self.vTa = vTa; self.vTb = vTb; self.vF = vF; self.vFh = vFh
        self.trk = LdsTracker(a)
    def T(self, buf, tt): return self.fb[buf] + 4 * tt
    def F(self, buf, ft): return self.fb[buf] + 16 + 4 * ft
    def accr(self, ft, tt):
        return self.acc + 4 * (ft * 4 + tt if ft < 4 else 16 + tt)
    def reads(self, buf, h, toff=0, foff=0):
        L = []
        def rt(tt):
            v = (self.vTa if tt < 2 else self.vTb)[h]
            r = self.T(buf, tt)
            L.append(("ds_read_b128 %s, v%d offset:%d" % (vr(r), v, toff + (tt & 1) * 2048), range(r, r + 4)))
        def rf(ft):
            r = self.F(buf, ft)
            for half in range(2):
                off = foff + (32 * h + 16 * half) * self.FS + (32 * ft if ft < 4 else 0)
                v = self.vF if ft < 4 else self.vFh
                L.append(("ds_read_b64_tr_b16 %s, v%d offset:%d" % (vr(r + 2 * half, 2), v, off), range(r + 2 * half, r + 2 * half + 2)))
        rt(0); rf(0); rt(1); rt(2); rt(3); rf(1); rf(2); rf(3); rf(4)
        return L
    def mfmas(self, buf, first=False):
        L = []
        for ft in range(5):
            for tt in range(4 if ft < 4 else 2):
                c = self.accr(ft, tt)
                A = self.F(buf, ft); B = self.T(buf, tt)
                src = "0" if first else vr(c)
                L.append(("v_mfma_f32_16x16x32_bf16 %s, %s, %s, %s" % (vr(c), vr(A), vr(B), src),
                          list(range(A, A + 4)) + list(range(B, B + 4))))
        return L
    def phase(self, buf, reads, first=False, extra=None, pre=None):
        a = self.a
        ms = self.mfmas(buf, first)
        reads = list(reads); extra = list(extra or [])
        if pre:
            for p in pre: a(p)
        for n, (m, regs) in enumerate(ms):
            self.trk.need(regs)
            if "nomfma" not in DBG: a(m)
            if reads:
                t, r = reads.pop(0)
                if "nolds" not in DBG:
                    a(t); self.trk.issue(r)
            elif extra:
                a(extra.pop(0))
        for t, r in reads:
            if "nolds" not in DBG:
                a(t); self.trk.issue(r)
        for e in extra: a(e)
    def prime(self, buf, reads):
        for t, r in reads:
            if "nolds" not in DBG:
                self.a(t); self.trk.issue(r)

def stamp(a, idx):
    if "stamp" not in DBG: return
    a("s_memtime s[48:49]")
    a("s_waitcnt lgkmcnt(0)")
    a("v_mov_b32 v250, s48")
    a("v_mov_b32 v251, %d" % (idx * 4))
    a("v_add_u32 v251, s50, v251")
    a("buffer_store_dword v250, v251, s[44:47], 0 offen")

def stamp_setup(a, kidx=0):
    if "stamp" not in DBG: return
    a("s_load_dwordx2 s[42:43], s[0:1], 104")
    a("s_waitcnt lgkmcnt(0)")
    a("s_add_u32 s42, s42, 0x%x" % (STAMPS + 256 * kidx))
    a("s_addc_u32 s43, s43, 0")
    srd(a, 44, 42, 256)
    a("s_mov_b32 s50, 0x10000")
    a("s_cmp_eq_u32 s2, 0")
    a("s_cselect_b32 s51, 0, 0x10000")
    a("s_cmp_eq_u32 s2, 101")
    a("s_cselect_b32 s51, 128, s51")
    a("s_cmp_eq_u32 s3, 0")
    a("s_cselect_b32 s50, s51, s50")
    a("s_add_u32 s51, s51, 64")
    a("s_cmp_eq_u32 s3, 4")
    a("s_cselect_b32 s50, s51, s50")

def wave_setup(a, nthreads=512):
    a("v_lshrrev_b32 v1, 6, v0")
    a("v_and_b32 v2, 63, v0")
    a("v_readfirstlane_b32 s3, v1")

def gen_k2(name="k2_kernel", R=4, dbg=""):
    a = Asm()
    SLOT = 34816; TREG = 16384; FS = 288; NST = 32
    kernel_begin(a, name)
    a("s_cmp_ge_u32 s2, 256")
    a("s_cbranch_scc1 %s_end" % name)
    a("s_load_dwordx2 s[4:5], s[0:1], 64")
    a("s_load_dwordx2 s[6:7], s[0:1], 104")
    a("s_load_dwordx2 s[16:17], s[0:1], 72")
    wave_setup(a)
    a("s_and_b32 s20, s2, 7")
    a("s_lshr_b32 s21, s2, 3")
    a("s_and_b32 s22, s20, 1")
    a("s_lshl_b32 s22, s22, 3")
    a("s_and_b32 s23, s21, 7")
    a("s_add_u32 s22, s22, s23")
    a("s_lshr_b32 s23, s20, 1")
    a("s_lshl_b32 s23, s23, 2")
    a("s_lshr_b32 s24, s21, 3")
    a("s_add_u32 s23, s23, s24")
    a("s_waitcnt lgkmcnt(0)")
    srd(a, 8, 4, 2048 * 2048 * 2)
    srd(a, 12, 6, WS_BYTES)
    srd(a, 28, 16, 2048 * 2)
    stamp_setup(a, 2); stamp(a, 0)
    a("s_cmp_ge_u32 s3, 4")
    a("s_cbranch_scc1 %s_loader" % name)
    ACC = 128; FB0 = 16; FB1 = 52
    vTa = [4, 5]; vTb = [6, 7]; vF = 8; vFh = 9
    bTa = [88, 89]; bTb = [90, 91]; bF = 92; bFh = 93
    a("s_lshr_b32 s24, s3, 1")
    a("s_and_b32 s25, s3, 1")
    a("v_and_b32 v3, 15, v2")
    a("v_lshrrev_b32 v10, 4, v2")
    a("v_lshrrev_b32 v11, 1, v3")
    a("v_xor_b32 v10, v10, v11")
    a("v_lshlrev_b32 v10, 4, v10")
    a("v_lshl_add_u32 v10, v3, 7, v10")
    a("s_lshl_b32 s26, s24, 13")
    a("v_add_u32 v10, s26, v10")
    a("s_lshl_b32 s26, s25, 12")
    a("v_add_u32 v%d, s26, v10" % bTa[0])
    a("s_xor_b32 s26, s26, 4096")
    a("v_add_u32 v%d, s26, v10" % bTb[0])
    a("v_xor_b32 v%d, 64, v%d" % (bTa[1], bTa[0]))
    a("v_xor_b32 v%d, 64, v%d" % (bTb[1], bTb[0]))
    a("v_lshrrev_b32 v10, 2, v2")
    a("v_mul_u32_u24 v10, %d, v10" % FS)
    a("v_and_b32 v11, 3, v2")
    a("v_lshl_add_u32 v10, v11, 3, v10")
    a("v_add_u32 v10, %d, v10" % TREG)
    a("s_mul_i32 s26, s25, 160")
    a("v_add_u32 v%d, s26, v10" % bF)
    a("v_add_u32 v%d, 128, v10" % bFh)
    core = Core(a, ACC, FB0, FB1, FS, TREG, vTa, vTb, vF, vFh)
    for d, s in ((vTa[0], bTa[0]), (vTb[0], bTb[0]), (vTa[1], bTa[1]), (vTb[1], bTb[1]), (vF, bF), (vFh, bFh)):
        a("v_mov_b32 v%d, v%d" % (d, s))
    a("s_mov_b32 s27, 0")
    a("s_mov_b32 s33, 0")
    a("s_barrier")
    stamp(a, 1)
    core.prime(0, core.reads(0, 0))
    def iteration(first, last):
        a("s_barrier")
        a("s_add_u32 s34, s27, %d" % SLOT)
        a("s_cmp_eq_u32 s34, %d" % (R * SLOT))
        a("s_cselect_b32 s34, 0, s34")
        core.phase(0, core.reads(1, 1), first=first)
        if not last:
            pre = ["v_add_u32 v%d, s34, v%d" % (d, s) for d, s in ((vTa[0], bTa[0]), (vF, bF), (vTb[0], bTb[0]), (vFh, bFh))]
            post = ["v_add_u32 v%d, s34, v%d" % (d, s) for d, s in ((vTa[1], bTa[1]), (vTb[1], bTb[1]))]
            core.phase(1, core.reads(0, 0), pre=pre, extra=post)
        else:
            core.phase(1, [])
        a("s_mov_b32 s27, s34")
    iteration(True, False)
    a("s_mov_b32 s33, 1")
    a.label("%s_cloop" % name)
    saved = list(core.trk.out)
    iteration(False, False)
    assert [sorted(x) for x in saved] == [sorted(x) for x in core.trk.out], "loop tracker mismatch"
    a("s_add_u32 s33, s33, 1")
    a("s_cmp_lt_u32 s33, %d" % (NST - 1))
    a("s_cbranch_scc1 %s_cloop" % name)
    Z1R = 200; BI = 236
    a("s_lshl_b32 s35, s22, 4")
    a("s_add_u32 s35, s35, s23")
    a("s_lshl_b32 s35, s35, 2")
    a("s_add_u32 s35, s35, s3")
    a("s_mul_i32 s35, s35, 9216")
    a("s_add_u32 s35, s35, 0x%x" % Z1IMG)
    a("v_lshlrev_b32 v10, 4, v2")
    for q in range(9):
        if q == 4: a("s_add_u32 s35, s35, 4096")
        if q == 8: a("s_add_u32 s35, s35, 4096")
        a("buffer_load_dwordx4 %s, v10, s[12:15], s35 offen offset:%d" % (vr(Z1R + 4 * q), (q & 3) * 1024))
    a("s_lshl_b32 s36, s22, 7")
    a("s_lshl_b32 s37, s24, 6")
    a("s_add_u32 s36, s36, s37")
    a("v_lshlrev_b32 v11, 1, v3")
    a("s_lshl_b32 s37, s25, 6")
    a("s_lshl_b32 s38, s36, 1")
    a("s_add_u32 s39, s38, s37")
    a("s_xor_b32 s37, s37, 64")
    a("s_add_u32 s40, s38, s37")
    a("buffer_load_ushort v%d, v11, s[28:31], s39 offen" % (BI + 0))
    a("buffer_load_ushort v%d, v11, s[28:31], s39 offen offset:32" % (BI + 1))
    a("buffer_load_ushort v%d, v11, s[28:31], s40 offen" % (BI + 2))
    a("buffer_load_ushort v%d, v11, s[28:31], s40 offen offset:32" % (BI + 3))
    iteration(False, True)
    stamp(a, 2)
    a("s_waitcnt vmcnt(0)")
    stamp(a, 3)
    for tt in range(4):
        a("v_lshlrev_b32 v%d, 16, v%d" % (BI + tt, BI + tt))
    a("s_nop 7"); a("s_nop 7")
    xs = 16
    for ft in range(5):
        for tt in range(4 if ft < 4 else 2):
            n = ft * 4 + tt if ft < 4 else 16 + tt
            c = core.accr(ft, tt)
            z = Z1R + 2 * n
            a("v_cvt_pk_bf16_f32 v%d, v%d, v%d" % (xs, c, c + 1))
            a("v_cvt_pk_bf16_f32 v%d, v%d, v%d" % (xs + 1, c + 2, c + 3))
            a("v_lshlrev_b32 v%d, 16, v%d" % (c, xs))
            a("v_and_b32 v%d, 0xffff0000, v%d" % (c + 1, xs))
            a("v_lshlrev_b32 v%d, 16, v%d" % (c + 2, xs + 1))
            a("v_and_b32 v%d, 0xffff0000, v%d" % (c + 3, xs + 1))
            for r in range(4):
                a("v_add_f32 v%d, v%d, v%d" % (c + r, c + r, BI + tt))
            a("v_cvt_pk_bf16_f32 v%d, v%d, v%d" % (xs, c, c + 1))
            a("v_cvt_pk_bf16_f32 v%d, v%d, v%d" % (xs + 1, c + 2, c + 3))
            a("v_lshlrev_b32 v%d, 16, v%d" % (c, xs))
            a("v_and_b32 v%d, 0xffff0000, v%d" % (c + 1, xs))
            a("v_lshlrev_b32 v%d, 16, v%d" % (c + 2, xs + 1))
            a("v_and_b32 v%d, 0xffff0000, v%d" % (c + 3, xs + 1))
            a("v_lshlrev_b32 v%d, 16, v%d" % (xs + 2, z))
            a("v_and_b32 v%d, 0xffff0000, v%d" % (xs + 3, z))
            a("v_lshlrev_b32 v%d, 16, v%d" % (xs + 4, z + 1))
            a("v_and_b32 v%d, 0xffff0000, v%d" % (xs + 5, z + 1))
            for r in range(4):
                a("v_mul_f32 v%d, v%d, v%d" % (c + r, c + r, xs + 2 + r))
            a("v_cvt_pk_bf16_f32 v%d, v%d, v%d" % (z, c, c + 1))
            a("v_cvt_pk_bf16_f32 v%d, v%d, v%d" % (z + 1, c + 2, c + 3))
    stamp(a, 4)
    emit_p_store(a, Z1R, core)
    stamp(a, 5)
    a("s_waitcnt vmcnt(0)")
    stamp(a, 6)
    a("s_branch %s_end" % name)
    a.label("%s_loader" % name)
    a("s_sub_u32 s3, s3, 4")
    a("v_lshrrev_b32 v3, 3, v2")
    a("s_lshl_b32 s24, s3, 5")
    a("v_add_u32 v3, s24, v3")
    a("v_and_b32 v4, 7, v2")
    for n in range(4):
        a("v_add_u32 v5, %d, v3" % (8 * n))
        a("v_lshrrev_b32 v6, 1, v5")
        a("v_and_b32 v6, 7, v6")
        a("v_xor_b32 v6, v6, v4")
        a("v_lshlrev_b32 v6, 4, v6")
        a("v_lshl_add_u32 v%d, v5, 12, v6" % (10 + n))
        if n: a("v_subrev_u32 v%d, %d, v%d" % (10 + n, n * 1024, 10 + n))
    a("v_lshlrev_b32 v14, 4, v2")
    a("s_lshl_b32 s26, s22, 19")
    a("s_mul_i32 s27, s23, %d" % (32 * 18432))
    a("s_lshl_b32 s24, s3, 12")
    a("s_add_u32 s27, s27, s24")
    if ZIMG: a("s_add_u32 s27, s27, 0x%x" % ZIMG)
    a("s_lshl_b32 s25, s3, 9")
    a("s_sub_u32 s32, s25, s24")
    a("s_add_u32 s32, s32, 16384")
    a("s_mov_b32 s33, 0")
    a("s_mov_b32 s34, 0")
    def issue():
        if "nodma" in DBG: return
        a("s_add_u32 s35, s33, s24")
        a("s_mov_b32 m0, s35")
        a("s_add_u32 s36, s35, %d" % TREG)
        for n in range(4):
            a("buffer_load_dwordx4 v%d, s[8:11], s26 offen offset:%d lds" % (10 + n, n * 1024))
        a("s_mov_b32 m0, s36")
        a("s_add_u32 s37, s27, s32")
        for n in range(4):
            a("buffer_load_dwordx4 v14, s[12:15], s27 offen offset:%d lds" % (n * 1024))
        a("s_add_u32 s36, s36, s32")
        a("s_mov_b32 m0, s36")
        a("s_mov_b64 exec, 0xffffffff")
        a("buffer_load_dwordx4 v14, s[12:15], s37 offen lds")
        a("s_mov_b64 exec, -1")
        a("s_add_u32 s26, s26, 128")
        a("s_add_u32 s27, s27, 18432")
        a("s_add_u32 s33, s33, %d" % SLOT)
        a("s_cmp_eq_u32 s33, %d" % (R * SLOT))
        a("s_cselect_b32 s33, 0, s33")
    for s in range(R - 1):
        issue()
    a("s_waitcnt vmcnt(%d)" % (9 * (R - 2)))
    a("s_barrier")
    issue()
    a("s_waitcnt vmcnt(%d)" % (9 * (R - 2)))
    a("s_barrier")
    a("s_waitcnt vmcnt(%d)" % (9 * (R - 3)))
    a("s_barrier")
    a("s_mov_b32 s34, 1")
    a.label("%s_lloop" % name)
    issue()
    a("s_waitcnt vmcnt(%d)" % (9 * (R - 3)))
    a("s_barrier")
    a("s_add_u32 s34, s34, 1")
    a("s_cmp_lt_u32 s34, %d" % (NST - R + 1))
    a("s_cbranch_scc1 %s_lloop" % name)
    for k in range(NST - R + 1, NST - 1):
        left = max(0, (NST - 1) - (k + 2))
        a("s_waitcnt vmcnt(%d)" % (9 * left))
        a("s_barrier")
    a.label("%s_end" % name)
    a("s_endpgm")
    return a.text(), kernel_desc(name, 256, 256), (name, 256, 512, R * SLOT)

def emit_p_store(a, PR, core):
    a("v_lshrrev_b32 v10, 4, v2")
    a("v_and_b32 v11, 1, v10")
    a("v_lshrrev_b32 v12, 1, v10")
    a("v_lshl_add_u32 v12, v11, 1, v12")
    a("s_mul_i32 s35, s23, 18")
    a("s_mul_i32 s36, s25, 10")
    a("s_add_u32 s36, s36, s35")
    a("v_lshrrev_b32 v13, 1, v3")
    a("s_lshl_b32 s37, s22, 1")
    a("s_add_u32 s37, s37, s24")
    a("s_mul_i32 s37, s37, %d" % (36 * 8192))
    a("s_add_u32 s37, s37, 0x%x" % PIMG)
    a("s_lshl_b32 s38, s25, 12")
    a("s_add_u32 s39, s37, s38")
    a("s_xor_b32 s38, s38, 4096")
    a("s_add_u32 s40, s37, s38")
    def addr(dst, pv):
        a("v_lshrrev_b32 v14, 3, v%d" % pv)
        a("v_lshlrev_b32 v14, 13, v14")
        a("v_and_b32 v15, 7, v%d" % pv)
        a("v_xor_b32 v15, v15, v13")
        a("v_lshl_add_u32 v14, v15, 4, v14")
        a("v_lshl_add_u32 v%d, v3, 7, v14" % dst)
    for pr in range(2):
        a("v_add_u32 v16, s36, v12")
        if pr: a("v_add_u32 v16, 4, v16")
        addr(17, 16)
        for tt in range(4):
            nA = (2 * pr) * 4 + tt; nB = (2 * pr + 1) * 4 + tt
            A = PR + 2 * nA; B = PR + 2 * nB
            a("v_mov_b32 v20, v%d" % A); a("v_mov_b32 v21, v%d" % (A + 1))
            a("v_mov_b32 v22, v%d" % B); a("v_mov_b32 v23, v%d" % (B + 1))
            a("s_nop 1")
            a("v_permlane16_swap_b32 v20, v22")
            a("v_permlane16_swap_b32 v21, v23")
            a("s_nop 1")
            a("buffer_store_dwordx4 v[20:23], v17, s[12:15], s%d offen offset:%d" % (39 if tt < 2 else 40, (tt & 1) * 2048))
            a("s_nop 1")
    a("v_lshrrev_b32 v16, 1, v10")
    a("s_add_u32 s35, s35, 8")
    a("v_add_u32 v16, s35, v16")
    addr(17, 16)
    a("v_lshl_add_u32 v17, v11, 11, v17")
    A = PR + 32; B = PR + 34
    a("v_mov_b32 v20, v%d" % A); a("v_mov_b32 v21, v%d" % (A + 1))
    a("v_mov_b32 v22, v%d" % B); a("v_mov_b32 v23, v%d" % (B + 1))
    a("s_nop 1")
    a("v_permlane16_swap_b32 v20, v22")
    a("v_permlane16_swap_b32 v21, v23")
    a("s_nop 1")
    a("buffer_store_dwordx4 v[20:23], v17, s[12:15], s39 offen")

def rnd_pair(a, tmp, r0, r1):
    a("v_cvt_pk_bf16_f32 v%d, v%d, v%d" % (tmp, r0, r1))
    a("v_lshlrev_b32 v%d, 16, v%d" % (r0, tmp))
    a("v_and_b32 v%d, 0xffff0000, v%d" % (r1, tmp))

def gen_k3(name="k3_kernel", R=4):
    a = Asm()
    TREG = 16384; FS = 160; SLOT = TREG + 128 * FS; NST = 18
    YOFF = R * SLOT
    kernel_begin(a, name)
    a("s_cmp_ge_u32 s2, 256")
    a("s_cbranch_scc1 %s_end" % name)
    a("s_load_dwordx2 s[4:5], s[0:1], 0")
    a("s_load_dwordx2 s[6:7], s[0:1], 104")
    a("s_load_dwordx2 s[16:17], s[0:1], 88")
    wave_setup(a)
    a("s_and_b32 s20, s2, 7")
    a("s_lshr_b32 s21, s2, 3")
    a("s_and_b32 s22, s20, 3")
    a("s_lshl_b32 s22, s22, 3")
    a("s_and_b32 s23, s21, 7")
    a("s_add_u32 s22, s22, s23")
    a("s_lshr_b32 s23, s20, 2")
    a("s_lshl_b32 s23, s23, 2")
    a("s_lshr_b32 s24, s21, 3")
    a("s_add_u32 s23, s23, s24")
    a("s_lshr_b32 s24, s23, 1")
    a("s_and_b32 s25, s23, 1")
    a("s_waitcnt lgkmcnt(0)")
    srd(a, 8, 4, 2048 * 576 * 2)
    srd(a, 12, 6, WS_BYTES)
    srd(a, 28, 16, 2048 * 576 * 2)
    stamp_setup(a, 3); stamp(a, 0)
    a("s_cmp_ge_u32 s3, 4")
    a("s_cbranch_scc1 %s_loader" % name)
    ACC = 128; FB0 = 16; FB1 = 52
    vTa = [4, 4]; vTb = [6, 6]; vF = 8; vFh = 9
    bTa = 88; bTb = 90; bF = 92; bFh = 93
    XR = 200; ST = 210; YR = 212
    a("v_and_b32 v3, 15, v2")
    a("v_lshrrev_b32 v10, 4, v2")
    a("s_and_b32 s26, s3, 1")
    a("s_lshl_b32 s26, s26, 2")
    a("v_add_u32 v10, s26, v10")
    a("v_lshrrev_b32 v11, 1, v3")
    a("v_xor_b32 v10, v10, v11")
    a("v_lshlrev_b32 v10, 4, v10")
    a("v_lshl_add_u32 v10, v3, 7, v10")
    a("s_lshr_b32 s26, s3, 1")
    a("s_lshl_b32 s26, s26, 13")
    a("v_add_u32 v10, s26, v10")
    a("s_lshl_b32 s26, s25, 12")
    a("v_add_u32 v%d, s26, v10" % bTa)
    a("s_xor_b32 s26, s26, 4096")
    a("v_add_u32 v%d, s26, v10" % bTb)
    a("v_lshrrev_b32 v10, 2, v2")
    a("v_mul_u32_u24 v10, %d, v10" % FS)
    a("v_and_b32 v11, 3, v2")
    a("v_lshl_add_u32 v10, v11, 3, v10")
    a("s_mul_i32 s26, s3, %d" % (32 * FS))
    a("s_add_u32 s26, s26, %d" % TREG)
    a("v_add_u32 v%d, s26, v10" % bF)
    a("v_add_u32 v%d, 128, v%d" % (bFh, bF))
    a("s_lshl_b32 s26, s25, 1")
    a("s_add_u32 s26, s26, s3")
    a("s_and_b32 s26, s26, 3")
    a("s_lshl_b32 s27, s26, 4")
    a("s_lshl_b32 s33, s22, 6")
    a("s_add_u32 s27, s27, s33")
    a("v_add_u32 v12, s27, v3")
    a("v_mul_u32_u24 v13, 1152, v12")
    a("v_lshrrev_b32 v10, 4, v2")
    a("v_lshl_add_u32 v13, v10, 3, v13")
    a("s_mul_i32 s34, s24, 288")
    a("s_mul_i32 s35, s25, 160")
    a("s_add_u32 s35, s35, s34")
    a("s_add_u32 s36, s34, 128")
    for ft in range(4):
        a("buffer_load_dwordx2 %s, v13, s[8:11], s35 offen offset:%d" % (vr(XR + 2 * ft, 2), 32 * ft))
    a("buffer_load_dwordx2 %s, v13, s[8:11], s36 offen" % vr(XR + 8, 2))
    a("v_lshlrev_b32 v14, 3, v12")
    a("s_mov_b32 s37, 0x%x" % STATS1)
    a("buffer_load_dwordx2 %s, v14, s[12:15], s37 offen" % vr(ST, 2))
    core = Core(a, ACC, FB0, FB1, FS, TREG, vTa, vTb, vF, vFh)
    pairs = ((vTa[0], bTa), (vF, bF), (vTb[0], bTb), (vFh, bFh))
    for d, s_ in pairs:
        a("v_mov_b32 v%d, v%d" % (d, s_))
    a("s_mov_b32 s27, 0")
    a("s_barrier")
    stamp(a, 1)
    core.prime(0, core.reads(0, 0))
    def iteration(buf, first, last):
        core.trk.drain()
        a("s_barrier")
        if not last:
            a("s_add_u32 s27, s27, %d" % SLOT)
            a("s_cmp_eq_u32 s27, %d" % (R * SLOT))
            a("s_cselect_b32 s27, 0, s27")
            pre = ["v_add_u32 v%d, s27, v%d" % (d, s_) for d, s_ in pairs]
            core.phase(buf, core.reads(1 - buf, 0), first=first, pre=pre)
        else:
            core.phase(buf, [])
    iteration(0, True, False)
    iteration(1, False, False)
    a("s_mov_b32 s33, 1")
    a.label("%s_cloop" % name)
    iteration(0, False, False)
    iteration(1, False, False)
    a("s_add_u32 s33, s33, 1")
    a("s_cmp_lt_u32 s33, %d" % (NST // 2 - 1))
    a("s_cbranch_scc1 %s_cloop" % name)
    iteration(0, False, False)
    iteration(1, False, True)
    stamp(a, 2)
    a("s_mul_i32 s33, s3, %d" % (18 * 1024))
    a("v_lshlrev_b32 v10, 4, v2")
    a("v_add_u32 v11, s33, v10")
    a("s_nop 7")
    for w in range(4):
        a("s_cmp_eq_u32 s3, %d" % w)
        a("s_cbranch_scc1 %s_skipw%d" % (name, w))
        for ft in range(5):
            if ft == 4 and w >= 2: continue
            n = ft * 4 + w if ft < 4 else 16 + w
            a("ds_write_b128 v11, %s offset:%d" % (vr(core.accr(ft, w)), n * 1024))
        a.label("%s_skipw%d" % (name, w))
    a("s_waitcnt lgkmcnt(0)")
    a("s_barrier")
    O = 16; PT = 40
    for w in range(4):
        a("s_cmp_lg_u32 s3, %d" % w)
        a("s_cbranch_scc1 %s_own%d" % (name, w))
        for ft in range(5):
            for r in range(4):
                if ft == 4 and w >= 2:
                    a("v_mov_b32 v%d, 0" % (O + 4 * ft + r))
                else:
                    a("v_mov_b32 v%d, v%d" % (O + 4 * ft + r, core.accr(ft, w) + r))
        a.label("%s_own%d" % (name, w))
    a("s_lshl_b32 s34, s3, 10")
    for q in range(1, 4):
        a("s_add_u32 s33, s3, %d" % q)
        a("s_and_b32 s33, s33, 3")
        a("s_mul_i32 s33, s33, %d" % (18 * 1024))
        a("s_add_u32 s33, s33, s34")
        a("v_add_u32 v11, s33, v10")
        for ft in range(5):
            a("ds_read_b128 %s, v11 offset:%d" % (vr(PT + 20 * (q - 1) + 4 * ft), ft * 4096))
    a("v_lshrrev_b32 v11, 2, v2")
    a("v_lshlrev_b32 v11, 7, v11")
    a("v_and_b32 v12, 3, v2")
    a("v_lshl_add_u32 v11, v12, 3, v11")
    a("s_lshl_b32 s33, s26, 5")
    a("s_add_u32 s33, s33, %d" % YOFF)
    a("v_add_u32 v11, s33, v11")
    for ft in range(5):
        a("ds_read_b64_tr_b16 %s, v11 offset:%d" % (vr(YR + 2 * ft, 2), ft * 2048))
    a("s_waitcnt lgkmcnt(0) vmcnt(0)")
    stamp(a, 3)
    for ft in range(5):
        for r in range(4):
            o = O + 4 * ft + r
            a("v_add_f32 v%d, v%d, v%d" % (o, o, PT + 4 * ft + r))
            a("v_add_f32 v%d, v%d, v%d" % (PT + 20 + 4 * ft + r, PT + 20 + 4 * ft + r, PT + 40 + 4 * ft + r))
            a("v_add_f32 v%d, v%d, v%d" % (o, o, PT + 20 + 4 * ft + r))
    a("s_mov_b32 s33, 0xbfb8aa3b")
    T = 104
    for ft in range(5):
        if ft == 4:
            a("s_cmp_ge_u32 s3, 2")
            a("s_cbranch_scc1 %s_fin" % name)
        o = O + 4 * ft
        X = XR + 2 * ft; Y = YR + 2 * ft
        rnd_pair(a, T + 20, o, o + 1); rnd_pair(a, T + 20, o + 2, o + 3)
        for r in range(4): a("v_mul_f32 v%d, s33, v%d" % (T + r, o + r))
        for r in range(4): a("v_exp_f32 v%d, v%d" % (T + r, T + r))
        for r in range(4): a("v_add_f32 v%d, 1.0, v%d" % (T + r, T + r))
        for r in range(4): a("v_rcp_f32 v%d, v%d" % (T + r, T + r))
        a("v_lshlrev_b32 v%d, 16, v%d" % (T + 4, X)); a("v_and_b32 v%d, 0xffff0000, v%d" % (T + 5, X))
        a("v_lshlrev_b32 v%d, 16, v%d" % (T + 6, X + 1)); a("v_and_b32 v%d, 0xffff0000, v%d" % (T + 7, X + 1))
        a("v_lshlrev_b32 v%d, 16, v%d" % (T + 8, Y)); a("v_and_b32 v%d, 0xffff0000, v%d" % (T + 9, Y))
        a("v_lshlrev_b32 v%d, 16, v%d" % (T + 10, Y + 1)); a("v_and_b32 v%d, 0xffff0000, v%d" % (T + 11, Y + 1))
        for r in range(4): a("v_mul_f32 v%d, v%d, v%d" % (o + r, o + r, T + r))
        rnd_pair(a, T + 20, o, o + 1); rnd_pair(a, T + 20, o + 2, o + 3)
        for r in range(4): a("v_sub_f32 v%d, v%d, v%d" % (T + 12 + r, T + 4 + r, ST))
        rnd_pair(a, T + 20, T + 12, T + 13); rnd_pair(a, T + 20, T + 14, T + 15)
        for r in range(4): a("v_mul_f32 v%d, v%d, v%d" % (T + 12 + r, T + 12 + r, ST + 1))
        rnd_pair(a, T + 20, T + 12, T + 13); rnd_pair(a, T + 20, T + 14, T + 15)
        for r in range(4): a("v_mul_f32 v%d, v%d, v%d" % (T + 12 + r, T + 12 + r, T + 8 + r))
        rnd_pair(a, T + 20, T + 12, T + 13); rnd_pair(a, T + 20, T + 14, T + 15)
        for r in range(4): a("v_mul_f32 v%d, v%d, v%d" % (T + 12 + r, T + 12 + r, o + r))
        rnd_pair(a, T + 20, T + 12, T + 13); rnd_pair(a, T + 20, T + 14, T + 15)
        for r in range(4): a("v_add_f32 v%d, v%d, v%d" % (T + 12 + r, T + 12 + r, T + 4 + r))
        a("v_cvt_pk_bf16_f32 v%d, v%d, v%d" % (X, T + 12, T + 13))
        a("v_cvt_pk_bf16_f32 v%d, v%d, v%d" % (X + 1, T + 14, T + 15))
        if ft < 4:
            a("buffer_store_dwordx2 %s, v13, s[28:31], s35 offen offset:%d" % (vr(X, 2), 32 * ft))
        else:
            a("buffer_store_dwordx2 %s, v13, s[28:31], s36 offen" % vr(X, 2))
    a.label("%s_fin" % name)
    stamp(a, 4)
    a("s_waitcnt vmcnt(0)")
    stamp(a, 5)
    a("s_branch %s_end" % name)
    a.label("%s_loader" % name)
    a("s_sub_u32 s3, s3, 4")
    a("v_lshlrev_b32 v14, 4, v2")
    a("v_lshrrev_b32 v3, 3, v2")
    a("v_and_b32 v4, 7, v2")
    a("v_lshlrev_b32 v4, 4, v4")
    a("s_mul_i32 s33, s24, 144")
    a("s_mul_i32 s34, s25, 80")
    a("s_lshl_b32 s35, s22, 7")
    a("s_add_u32 s35, s35, 0x%x" % YT)
    for n in range(3):
        if n == 2:
            a("s_cmp_ge_u32 s3, 2")
            a("s_cbranch_scc1 %s_noy" % name)
        a("s_add_u32 s36, s3, %d" % (4 * n))
        a("s_lshl_b32 s37, s36, 3")
        a("s_add_u32 s38, s37, s33")
        if n < 2: a("s_add_u32 s38, s38, s34")
        a("v_add_u32 v5, s38, v3")
        a("v_lshl_add_u32 v5, v5, 12, v4")
        a("s_lshl_b32 s36, s36, 10")
        a("s_add_u32 s36, s36, %d" % YOFF)
        a("s_mov_b32 m0, s36")
        a("s_nop 0")
        a("buffer_load_dwordx4 v5, s[12:15], s35 offen lds")
    a.label("%s_noy" % name)
    a("s_mul_i32 s26, s22, %d" % (36 * 8192))
    a("s_lshl_b32 s24, s3, 12")
    a("s_add_u32 s26, s26, s24")
    a("s_add_u32 s26, s26, 0x%x" % PIMG)
    a("s_mul_i32 s27, s23, %d" % (18 * 20480))
    a("s_mul_i32 s25, s3, 5120")
    a("s_add_u32 s27, s27, s25")
    a("s_add_u32 s27, s27, 0x%x" % WOT)
    a("s_add_u32 s25, s25, %d" % TREG)
    a("s_mov_b32 s33, 0")
    def issue():
        if "nodma" in DBG: return
        a("s_add_u32 s35, s33, s24")
        a("s_mov_b32 m0, s35")
        a("s_add_u32 s36, s33, s25")
        for n in range(4):
            a("buffer_load_dwordx4 v14, s[12:15], s26 offen offset:%d lds" % (n * 1024))
        a("s_mov_b32 m0, s36")
        a("s_add_u32 s37, s27, 4096")
        for n in range(4):
            a("buffer_load_dwordx4 v14, s[12:15], s27 offen offset:%d lds" % (n * 1024))
        a("s_add_u32 s36, s36, 4096")
        a("s_mov_b32 m0, s36")
        a("s_add_u32 s26, s26, 16384")
        a("buffer_load_dwordx4 v14, s[12:15], s37 offen lds")
        a("s_add_u32 s27, s27, 20480")
        a("s_add_u32 s33, s33, %d" % SLOT)
        a("s_cmp_eq_u32 s33, %d" % (R * SLOT))
        a("s_cselect_b32 s33, 0, s33")
    for s_ in range(R):
        issue()
    a("s_waitcnt vmcnt(%d)" % (9 * (R - 1)))
    a("s_barrier")
    a("s_waitcnt vmcnt(%d)" % (9 * (R - 2)))
    a("s_barrier")
    a("s_mov_b32 s34, 0")
    a.label("%s_lloop" % name)
    issue()
    a("s_waitcnt vmcnt(%d)" % (9 * (R - 2)))
    a("s_barrier")
    a("s_add_u32 s34, s34, 1")
    a("s_cmp_lt_u32 s34, %d" % (NST - R))
    a("s_cbranch_scc1 %s_lloop" % name)
    for k in range(NST - R, NST - 1):
        left = max(0, (NST - 1) - (k + 2))
        a("s_waitcnt vmcnt(%d)" % (9 * left))
        a("s_barrier")
    a.label("%s_end" % name)
    a("s_endpgm")
    return a.text(), kernel_desc(name, 256, 256), (name, 256, 512, R * SLOT + 10240)

import struct, math
def f32(x): return "0x%08x" % struct.unpack("<I", struct.pack("<f", x))[0]
GC0 = -2.0 * math.sqrt(2.0 / math.pi) * math.log2(math.e)
GC1 = GC0 * 0.044715

def emit_gelu_tile(a, c, dst, T):
    for h in (0, 2):
        a("v_pk_mul_f32 %s, %s, %s" % (vr(T + h, 2), vr(c + h, 2), vr(c + h, 2)))
    for h in (0, 2):
        a("v_mov_b32 v%d, s52" % (T + 4)) if False else None
        a("v_pk_fma_f32 %s, %s, s[54:55], v[%d:%d]" % (vr(T + h, 2), vr(T + h, 2), T + 4, T + 5))
    for h in (0, 2):
        a("v_pk_mul_f32 %s, %s, %s" % (vr(T + h, 2), vr(T + h, 2), vr(c + h, 2)))
    for r in range(4): a("v_exp_f32 v%d, v%d" % (T + r, T + r))
    for h in (0, 2):
        a("v_pk_add_f32 %s, %s, s[56:57]" % (vr(T + h, 2), vr(T + h, 2)))
    a("s_nop 0")
    for r in range(4): a("v_rcp_f32 v%d, v%d" % (T + r, T + r))
    a("s_nop 0")
    for h in (0, 2):
        a("v_pk_mul_f32 %s, %s, %s" % (vr(T + h, 2), vr(T + h, 2), vr(c + h, 2)))
    a("v_cvt_pk_bf16_f32 v%d, v%d, v%d" % (dst, T, T + 1))
    a("v_cvt_pk_bf16_f32 v%d, v%d, v%d" % (dst + 1, T + 2, T + 3))

def emit_xg_reduce(a, regs, t):
    for n, r in enumerate(regs): a("v_mov_b32 v%d, v%d" % (t + n, r))
    a("s_nop 1")
    for n, r in enumerate(regs): a("v_permlane32_swap_b32 v%d, v%d" % (r, t + n))
    a("s_nop 1")
    for n, r in enumerate(regs): a("v_add_f32 v%d, v%d, v%d" % (r, r, t + n))
    for n, r in enumerate(regs): a("v_mov_b32 v%d, v%d" % (t + n, r))
    a("s_nop 1")
    for n, r in enumerate(regs): a("v_permlane16_swap_b32 v%d, v%d" % (r, t + n))
    a("s_nop 1")
    for n, r in enumerate(regs): a("v_add_f32 v%d, v%d, v%d" % (r, r, t + n))

def emit_ln_finish(a, S, Q, N, M, RI, t):
    a("v_mul_f32 v%d, %s, v%d" % (M, f32(1.0 / N), S))
    a("v_mul_f32 v%d, %s, v%d" % (RI, f32(1.0 / N), Q))
    a("v_fma_f32 v%d, -v%d, v%d, v%d" % (RI, M, M, RI))
    a("v_max_f32 v%d, 0, v%d" % (RI, RI))
    rnd_pair(a, t, M, RI)
    a("v_add_f32 v%d, %s, v%d" % (RI, f32(1e-5), RI))
    a("v_cvt_pk_bf16_f32 v%d, v%d, v%d" % (t, RI, RI))
    a("v_lshlrev_b32 v%d, 16, v%d" % (RI, t))
    a("v_sqrt_f32 v%d, v%d" % (RI, RI))
    a("s_nop 0")
    a("v_cvt_pk_bf16_f32 v%d, v%d, v%d" % (t, RI, RI))
    a("v_lshlrev_b32 v%d, 16, v%d" % (RI, t))
    a("v_rcp_f32 v%d, v%d" % (RI, RI))
    a("s_nop 0")

def gen_k1(name="k1_kernel", R=4):
    a = Asm()
    SLOT = 34816; TREG = 16384; FS = 288; NST = 18
    kernel_begin(a, name)
    a("s_cmp_ge_u32 s2, 256")
    a("s_cbranch_scc1 %s_end" % name)
    a("s_load_dwordx2 s[4:5], s[0:1], 56")
    a("s_load_dwordx2 s[6:7], s[0:1], 104")
    a("s_load_dwordx2 s[16:17], s[0:1], 0")
    a("s_load_dwordx2 s[18:19], s[0:1], 96")
    wave_setup(a)
    a("s_and_b32 s20, s2, 7")
    a("s_lshr_b32 s21, s2, 3")
    a("s_and_b32 s22, s20, 1")
    a("s_lshl_b32 s22, s22, 3")
    a("s_and_b32 s23, s21, 7")
    a("s_add_u32 s22, s22, s23")
    a("s_lshr_b32 s23, s20, 1")
    a("s_lshl_b32 s23, s23, 2")
    a("s_lshr_b32 s24, s21, 3")
    a("s_add_u32 s23, s23, s24")
    a("s_waitcnt lgkmcnt(0)")
    srd(a, 8, 4, 576 * 4608 * 2)
    srd(a, 12, 6, WS_BYTES)
    srd(a, 28, 16, 2048 * 576 * 2)
    srd(a, 60, 18, 256)
    stamp_setup(a, 1); stamp(a, 0)
    a("s_cmp_ge_u32 s3, 4")
    a("s_cbranch_scc1 %s_loader" % name)
    ACC = 128; FB0 = 16; FB1 = 52
    vTa = [4, 5]; vTb = [6, 7]; vF = 8; vFh = 9
    bTa = [88, 89]; bTb = [90, 91]; bF = 92; bFh = 93
    Z2P = 200; T = 96
    a("s_lshr_b32 s24, s3, 1")
    a("s_and_b32 s25, s3, 1")
    a("v_and_b32 v3, 15, v2")
    a("v_lshrrev_b32 v10, 4, v2")
    a("v_lshrrev_b32 v11, 1, v3")
    a("v_xor_b32 v10, v10, v11")
    a("v_lshlrev_b32 v10, 4, v10")
    a("v_lshl_add_u32 v10, v3, 7, v10")
    a("s_lshl_b32 s26, s24, 13")
    a("v_add_u32 v10, s26, v10")
    a("s_lshl_b32 s26, s25, 12")
    a("v_add_u32 v%d, s26, v10" % bTa[0])
    a("s_xor_b32 s26, s26, 4096")
    a("v_add_u32 v%d, s26, v10" % bTb[0])
    a("v_xor_b32 v%d, 64, v%d" % (bTa[1], bTa[0]))
    a("v_xor_b32 v%d, 64, v%d" % (bTb[1], bTb[0]))
    a("v_lshrrev_b32 v10, 2, v2")
    a("v_mul_u32_u24 v10, %d, v10" % FS)
    a("v_and_b32 v11, 3, v2")
    a("v_lshl_add_u32 v10, v11, 3, v10")
    a("v_add_u32 v10, %d, v10" % TREG)
    a("s_mul_i32 s26, s25, 160")
    a("v_add_u32 v%d, s26, v10" % bF)
    a("v_add_u32 v%d, 128, v10" % bFh)
    for r, c in ((52, GC0), (53, GC0), (54, GC1), (55, GC1), (56, 1.0), (57, 1.0)):
        a("s_mov_b32 s%d, %s" % (r, f32(c)))
    a("v_mov_b32 v%d, s52" % (T + 4)); a("v_mov_b32 v%d, s52" % (T + 5))
    a("v_mov_b32 v%d, 0x3f803f80" % (T + 6))
    core = Core(a, ACC, FB0, FB1, FS, TREG, vTa, vTb, vF, vFh)
    for d, s_ in ((vTa[0], bTa[0]), (vTb[0], bTb[0]), (vTa[1], bTa[1]), (vTb[1], bTb[1]), (vF, bF), (vFh, bFh)):
        a("v_mov_b32 v%d, v%d" % (d, s_))
    a("s_mov_b32 s27, 0")
    a("s_barrier")
    stamp(a, 1)
    core.prime(0, core.reads(0, 0))
    def iteration(first, last, after_barrier=None):
        a("s_barrier")
        if after_barrier: after_barrier()
        a("s_add_u32 s34, s27, %d" % SLOT)
        a("s_cmp_eq_u32 s34, %d" % (R * SLOT))
        a("s_cselect_b32 s34, 0, s34")
        core.phase(0, core.reads(1, 1), first=first)
        if not last:
            pre = ["v_add_u32 v%d, s34, v%d" % (d, s_) for d, s_ in ((vTa[0], bTa[0]), (vF, bF), (vTb[0], bTb[0]), (vFh, bFh))]
            post = ["v_add_u32 v%d, s34, v%d" % (d, s_) for d, s_ in ((vTa[1], bTa[1]), (vTb[1], bTb[1]))]
            core.phase(1, core.reads(0, 0), pre=pre, extra=post)
        else:
            core.phase(1, [])
        a("s_mov_b32 s27, s34")
    def gpass(p, after_barrier=None):
        iteration(True, False, after_barrier)
        a("s_mov_b32 s33, 1")
        a.label("%s_cloop%d" % (name, p))
        iteration(False, False)
        a("s_add_u32 s33, s33, 1")
        a("s_cmp_lt_u32 s33, 8")
        a("s_cbranch_scc1 %s_cloop%d" % (name, p))
        iteration(False, p == 1)
    gpass(0)
    stamp(a, 2)
    a("s_nop 7")
    S = [104, 106, 108, 110]; Q = [105, 107, 109, 111]
    for tt in range(4):
        a("v_mov_b32 v%d, 0" % S[tt]); a("v_mov_b32 v%d, 0" % Q[tt])
    tiles = [(ft, tt) for ft in range(5) for tt in range(4 if ft < 4 else 2)]
    for (ft, tt) in tiles:
        n = ft * 4 + tt if ft < 4 else 16 + tt
        emit_gelu_tile(a, core.accr(ft, tt), Z2P + 2 * n, T)
        for d in range(2):
            a("v_dot2_f32_bf16 v%d, v%d, v%d, v%d" % (S[tt], Z2P + 2 * n + d, T + 6, S[tt]))
            a("v_dot2_f32_bf16 v%d, v%d, v%d, v%d" % (Q[tt], Z2P + 2 * n + d, Z2P + 2 * n + d, Q[tt]))
    a("s_nop 3")
    emit_xg_reduce(a, S + Q, 112)
    a("v_lshrrev_b32 v10, 4, v2")
    for g in range(1, 4):
        a("v_cmp_eq_u32 vcc, %d, v10" % g)
        a("s_nop 1")
        a("v_cndmask_b32 v%d, v%d, v%d, vcc" % (S[0], S[0], S[g]))
        a("v_cndmask_b32 v%d, v%d, v%d, vcc" % (Q[0], Q[0], Q[g]))
    a("s_lshl_b32 s33, s25, 1")
    a("v_add_u32 v11, s33, v10")
    a("v_and_b32 v11, 3, v11")
    a("v_lshl_add_u32 v11, v11, 4, v3")
    a("v_lshlrev_b32 v11, 8, v11")
    a("s_lshl_b32 s35, s22, 7")
    a("s_lshl_b32 s36, s24, 6")
    a("s_add_u32 s35, s35, s36")
    a("s_lshl_b32 s35, s35, 8")
    a("s_add_u32 s35, s35, 0x%x" % STATS2)
    a("s_lshl_b32 s36, s23, 1")
    a("s_add_u32 s36, s36, s25")
    a("s_lshl_b32 s36, s36, 3")
    a("s_add_u32 s36, s36, s35")
    a("buffer_store_dwordx2 v[%d:%d], v11, s[12:15], s36 offen sc1" % (S[0], Q[0]))
    a("s_waitcnt vmcnt(0)")
    stamp(a, 3)
    def signal():
        a("s_cmp_lg_u32 s3, 0")
        a("s_cbranch_scc1 %s_nosig" % name)
        a("v_mov_b32 v10, 1")
        a("s_lshl_b32 s33, s22, 2")
        a("v_mov_b32 v11, s33")
        a("s_mov_b64 exec, 1")
        a("buffer_atomic_add v10, v11, s[60:63], 0 offen sc1")
        a("s_mov_b64 exec, -1")
        a.label("%s_nosig" % name)
    gpass(1, signal)
    stamp(a, 4)
    a("s_nop 7")
    Z1P = 16
    a("s_lshl_b32 s36, s22, 4")
    a("s_add_u32 s36, s36, s23")
    a("s_lshl_b32 s36, s36, 2")
    a("s_add_u32 s36, s36, s3")
    a("s_mul_i32 s36, s36, 9216")
    a("s_add_u32 s36, s36, 0x%x" % Z1IMG)
    a("v_lshlrev_b32 v10, 4, v2")
    for (ft, tt) in tiles:
        n = ft * 4 + tt if ft < 4 else 16 + tt
        emit_gelu_tile(a, core.accr(ft, tt), Z1P + 2 * n, T)
        if n & 1:
            q = n >> 1
            if q in (4, 8): a("s_add_u32 s36, s36, 4096")
            a("buffer_store_dwordx4 %s, v10, s[12:15], s36 offen offset:%d" % (vr(Z1P + 4 * q), (q & 3) * 1024))
    stamp(a, 5)
    a("s_cmp_lg_u32 s3, 0")
    a("s_cbranch_scc1 %s_nopoll" % name)
    a("s_lshl_b32 s33, s22, 2")
    a("v_mov_b32 v11, s33")
    a.label("%s_poll" % name)
    a("buffer_load_dword v12, v11, s[60:63], 0 offen sc1")
    a("s_waitcnt vmcnt(0)")
    a("v_readfirstlane_b32 s33, v12")
    a("s_cmp_ge_u32 s33, 16")
    a("s_cbranch_scc1 %s_nopoll" % name)
    a("s_sleep 2")
    a("s_branch %s_poll" % name)
    a.label("%s_nopoll" % name)
    a("s_barrier")
    stamp(a, 6)
    a("v_lshrrev_b32 v10, 4, v2")
    a("v_lshlrev_b32 v11, 8, v3")
    a("v_lshl_add_u32 v11, v10, 6, v11")
    a("s_lshl_b32 s33, s25, 13")
    a("s_add_u32 s36, s35, s33")
    a("s_xor_b32 s33, s33, 8192")
    a("s_add_u32 s37, s35, s33")
    a("s_add_u32 s38, s36, 4096")
    a("s_add_u32 s39, s37, 4096")
    PB = 128
    for tt in range(4):
        for q in range(4):
            a("buffer_load_dwordx4 %s, v11, s[12:15], s%d offen offset:%d sc1" % (vr(PB + 16 * tt + 4 * q), (36, 38, 37, 39)[tt], 16 * q))
    a("s_waitcnt vmcnt(0)")
    for tt in range(4):
        b = PB + 16 * tt
        for st in (8, 4, 2):
            for q in range(0, st, 2):
                a("v_pk_add_f32 %s, %s, %s" % (vr(b + q, 2), vr(b + q, 2), vr(b + q + st, 2)))
    emit_xg_reduce(a, [PB + 16 * tt + e for tt in range(4) for e in range(2)], 112)
    MR = [104, 106, 108, 110]
    for tt in range(4):
        b = PB + 16 * tt
        emit_ln_finish(a, b, b + 1, 2304, b + 2, MR[tt], b + 4)
        a("v_mul_f32 v%d, -v%d, v%d" % (MR[tt] + 1, b + 2, MR[tt]))
    for (ft, tt) in tiles:
        n = ft * 4 + tt if ft < 4 else 16 + tt
        for d in range(2):
            z = Z2P + 2 * n + d
            a("v_lshlrev_b32 v%d, 16, v%d" % (T + 2 * d, z))
            a("v_and_b32 v%d, 0xffff0000, v%d" % (T + 2 * d + 1, z))
        for d in range(2):
            a("v_pk_fma_f32 %s, %s, %s, %s op_sel:[0,0,1] op_sel_hi:[1,0,1]" % (vr(T + 2 * d, 2), vr(T + 2 * d, 2), vr(MR[tt], 2), vr(MR[tt], 2)))
        for d in range(2):
            a("v_cvt_pk_bf16_f32 v%d, v%d, v%d" % (Z2P + 2 * n + d, T + 2 * d, T + 2 * d + 1))
    a("v_lshrrev_b32 v11, 2, v2"); a("v_and_b32 v11, 1, v11"); a("v_lshlrev_b32 v11, 4, v11")
    a("v_lshrrev_b32 v12, 3, v2"); a("v_and_b32 v12, 1, v12"); a("v_lshl_add_u32 v11, v12, 2, v11")
    a("v_and_b32 v12, 3, v2"); a("v_add_u32 v11, v11, v12")
    a("v_mul_u32_u24 v11, 288, v11")
    a("v_lshrrev_b32 v12, 1, v10"); a("v_lshl_add_u32 v11, v12, 4, v11")
    a("v_and_b32 v12, 1, v10")
    a("v_lshl_add_u32 v13, v12, 5, v11")
    a("v_mul_u32_u24 v12, 2304, v12")
    a("v_add_u32 v14, v11, v12")
    a("s_lshl_b32 s33, s23, 5")
    a("s_lshl_b32 s36, s22, 1")
    a("s_add_u32 s33, s33, s36")
    a("s_add_u32 s33, s33, s24")
    a("s_mul_i32 s33, s33, 18432")
    if ZIMG: a("s_add_u32 s33, s33, 0x%x" % ZIMG)
    a("s_mul_i32 s36, s25, 9216")
    a("s_add_u32 s37, s33, s36")
    a("s_xor_b32 s36, s36, 9216")
    a("s_add_u32 s38, s33, s36")
    a("s_add_u32 s39, s37, 128")
    a("s_mul_i32 s36, s25, 160")
    a("s_add_u32 s37, s37, s36")
    a("s_add_u32 s38, s38, s36")
    for pr in range(2):
        for tt in range(4):
            A = Z2P + 2 * ((2 * pr) * 4 + tt); B = Z2P + 2 * ((2 * pr + 1) * 4 + tt)
            a("v_mov_b32 v20, v%d" % A); a("v_mov_b32 v21, v%d" % (A + 1))
            a("v_mov_b32 v22, v%d" % B); a("v_mov_b32 v23, v%d" % (B + 1))
            a("s_nop 1")
            a("v_permlane16_swap_b32 v20, v22")
            a("v_permlane16_swap_b32 v21, v23")
            a("s_nop 1")
            a("buffer_store_dwordx4 v[20:23], v13, s[12:15], s%d offen offset:%d" % (37 if tt < 2 else 38, (tt & 1) * 2304 + 64 * pr))
            a("s_nop 1")
    A = Z2P + 32; B = Z2P + 34
    a("v_mov_b32 v20, v%d" % A); a("v_mov_b32 v21, v%d" % (A + 1))
    a("v_mov_b32 v22, v%d" % B); a("v_mov_b32 v23, v%d" % (B + 1))
    a("s_nop 1")
    a("v_permlane16_swap_b32 v20, v22")
    a("v_permlane16_swap_b32 v21, v23")
    a("s_nop 1")
    a("buffer_store_dwordx4 v[20:23], v14, s[12:15], s39 offen")
    stamp(a, 7)
    a("s_waitcnt vmcnt(0)")
    stamp(a, 8)
    a("s_branch %s_end" % name)
    a.label("%s_loader" % name)
    a("s_sub_u32 s3, s3, 4")
    X = 100
    def xr(rg, st): return X + (rg * 9 + st) * 4
    a("v_lshrrev_b32 v3, 3, v2")
    a("v_and_b32 v4, 7, v2")
    a("v_mul_u32_u24 v5, 1152, v3")
    a("v_lshl_add_u32 v5, v4, 4, v5")
    a("s_lshl_b32 s24, s22, 7")
    a("s_lshl_b32 s25, s3, 5")
    a("s_add_u32 s24, s24, s25")
    a("s_mul_i32 s25, s24, 1152")
    for rg in range(4):
        for st in range(9):
            a("buffer_load_dwordx4 %s, v5, s[28:31], s25 offen offset:%d" % (vr(xr(rg, st)), st * 128))
        if rg < 3: a("s_add_u32 s25, s25, 9216")
    for n in range(5):
        if n < 4:
            a("s_lshl_b32 s25, s3, 8")
            a("s_add_u32 s25, s25, %d" % (64 * n))
        else:
            a("s_lshl_b32 s25, s3, 5")
            a("s_add_u32 s25, s25, 1024")
        a("v_add_u32 v6, s25, v2")
        a("v_mul_u32_u24 v7, 3641, v6")
        a("v_lshrrev_b32 v7, 16, v7")
        a("v_mul_u32_u24 v8, 18, v7")
        a("v_sub_u32 v8, v6, v8")
        a("v_and_b32 v9, 35, v7")
        a("v_bfe_u32 v6, v7, 2, 2")
        a("v_lshl_add_u32 v9, v6, 3, v9")
        a("v_bfe_u32 v6, v7, 4, 1")
        a("v_lshl_add_u32 v9, v6, 2, v9")
        a("v_mul_u32_u24 v9, 9216, v9")
        a("v_lshl_add_u32 v%d, v8, 4, v9" % (10 + n))
        if 0 < n < 4: a("v_subrev_u32 v%d, %d, v%d" % (10 + n, n * 1024, 10 + n))
    a("s_mul_i32 s26, s23, 288")
    a("s_add_u32 s27, s26, 4608")
    a("s_lshl_b32 s24, s3, 12")
    a("s_lshl_b32 s25, s3, 9")
    a("s_add_u32 s25, s25, %d" % (TREG + 16384))
    a("s_mov_b32 s33, 0")
    def issueB(g):
        if "nodma" not in DBG:
            a("s_add_u32 s35, s33, s24")
            a("s_add_u32 s35, s35, %d" % TREG)
            a("s_mov_b32 m0, s35")
            a("s_add_u32 s36, s33, s25")
            for n in range(4):
                a("buffer_load_dwordx4 v%d, s[8:11], s27 offen offset:%d lds" % (10 + n, n * 1024))
            a("s_mov_b32 m0, s36")
            a("s_mov_b64 exec, 0xffffffff")
            a("buffer_load_dwordx4 v14, s[8:11], s27 offen lds")
            a("s_mov_b64 exec, -1")
        if g == 8: a("s_mov_b32 s27, s26")
        else: a("s_add_u32 s27, s27, %d" % (64 * 9216))
        a("s_add_u32 s33, s33, %d" % SLOT)
        a("s_cmp_eq_u32 s33, %d" % (R * SLOT))
        a("s_cselect_b32 s33, 0, s33")
    for g in range(R - 1): issueB(g)
    a("v_lshrrev_b32 v6, 4, v2")
    a("v_xor_b32 v7, v4, v6")
    a("v_lshlrev_b32 v7, 4, v7")
    a("v_lshl_add_u32 v7, v3, 7, v7")
    a("v_add_u32 v16, s24, v7")
    a("v_xor_b32 v17, 64, v16")
    a("v_mov_b32 v18, 0x3f803f80")
    SS = [20, 22, 24, 26]
    for rg in range(4):
        a("v_mov_b32 v%d, 0" % SS[rg]); a("v_mov_b32 v%d, 0" % (SS[rg] + 1))
    a("s_waitcnt vmcnt(%d)" % (5 * (R - 1)))
    stamp(a, 1)
    for st in range(9):
        for d in range(4):
            for rg in range(4):
                r = xr(rg, st) + d
                a("v_dot2_f32_bf16 v%d, v%d, v18, v%d" % (SS[rg], r, SS[rg]))
                a("v_dot2_f32_bf16 v%d, v%d, v%d, v%d" % (SS[rg] + 1, r, r, SS[rg] + 1))
    a("s_nop 3")
    for ctl in ("quad_perm:[1,0,3,2]", "quad_perm:[2,3,0,1]", "row_half_mirror"):
        for rg in range(4):
            for e in range(2):
                a("v_add_f32_dpp v%d, v%d, v%d %s row_mask:0xf bank_mask:0xf" % (SS[rg] + e, SS[rg] + e, SS[rg] + e, ctl))
        a("s_nop 1")
    for rg in range(4):
        emit_ln_finish(a, SS[rg], SS[rg] + 1, 576, 28 + 2 * rg, 29 + 2 * rg, 36)
        a("v_mov_b32 v%d, v%d" % (SS[rg], 29 + 2 * rg))
        a("v_mul_f32 v%d, -v%d, v%d" % (SS[rg] + 1, 28 + 2 * rg, 29 + 2 * rg))
    a("s_cmp_lg_u32 s23, 0")
    a("s_cbranch_scc1 %s_nost1" % name)
    a("s_lshl_b32 s35, s22, 7")
    a("s_lshl_b32 s36, s3, 5")
    a("s_add_u32 s35, s35, s36")
    a("s_lshl_b32 s35, s35, 3")
    a("s_add_u32 s35, s35, 0x%x" % STATS1)
    a("v_lshlrev_b32 v6, 3, v3")
    a("v_cmp_eq_u32 vcc, 0, v4")
    a("v_mov_b32 v7, 0x7ffffff0")
    a("v_cndmask_b32 v6, v7, v6, vcc")
    for rg in range(4):
        a("buffer_store_dwordx2 %s, v6, s[12:15], s35 offen offset:%d" % (vr(28 + 2 * rg, 2), 64 * rg))
    a.label("%s_nost1" % name)
    NX = 4 if True else 0
    a("s_mov_b32 s34, 0")
    def writeA(g):
        st = g % 9
        if g < 9:
            for rg in range(4):
                for d in range(4):
                    r = xr(rg, st) + d
                    t = 40 + 2 * ((rg * 4 + d) % 4)
                    a("v_lshlrev_b32 v%d, 16, v%d" % (t, r))
                    a("v_and_b32 v%d, 0xffff0000, v%d" % (t + 1, r))
                    a("v_pk_fma_f32 %s, %s, %s, %s op_sel:[0,0,1] op_sel_hi:[1,0,1]" % (vr(t, 2), vr(t, 2), vr(SS[rg], 2), vr(SS[rg], 2)))
                    a("v_cvt_pk_bf16_f32 v%d, v%d, v%d" % (r, t, t + 1))
        a("v_add_u32 v48, s34, v16")
        a("v_add_u32 v49, s34, v17")
        for rg in range(4):
            a("ds_write_b128 v%d, %s offset:%d" % (48 + (rg & 1), vr(xr(rg, st)), 1024 * rg))
        a("s_add_u32 s34, s34, %d" % SLOT)
        a("s_cmp_eq_u32 s34, %d" % (R * SLOT))
        a("s_cselect_b32 s34, 0, s34")
    writeA(0)
    stamp(a, 2)
    a("s_waitcnt vmcnt(%d) lgkmcnt(0)" % (5 * (R - 2)))
    a("s_barrier")
    issueB(R - 1)
    writeA(1)
    a("s_waitcnt vmcnt(%d) lgkmcnt(0)" % (5 * (R - 2)))
    a("s_barrier")
    writeA(2)
    a("s_waitcnt vmcnt(%d) lgkmcnt(0)" % (5 * (R - 3)))
    a("s_barrier")
    for k in range(1, NST - 1):
        g = k - 1 + R
        if g < NST:
            issueB(g)
            left = R - 3
        else:
            left = max(0, (NST - 1) - (k + 2))
        if k + 2 < NST: writeA(k + 2)
        a("s_waitcnt vmcnt(%d) lgkmcnt(0)" % (5 * left))
        a("s_barrier")
    a.label("%s_end" % name)
    a("s_endpgm")
    return a.text(), kernel_desc(name, 256, 256), (name, 256, 512, R * SLOT)

def gen_k0(name="k0_kernel"):
    a = Asm()
    NKV = 288; NWO = 180
    kernel_begin(a, name)
    a("s_cmp_ge_u32 s2, %d" % (NKV + NWO))
    a("s_cbranch_scc1 %s_end" % name)
    a("s_load_dwordx4 s[4:7], s[0:1], 8")
    a("s_load_dwordx2 s[16:17], s[0:1], 24")
    a("s_load_dwordx2 s[18:19], s[0:1], 80")
    a("s_load_dwordx2 s[20:21], s[0:1], 104")
    a("s_waitcnt lgkmcnt(0)")
    srd(a, 8, 4, 2048 * 576 * 2)
    srd(a, 12, 6, 2048 * 576 * 2)
    srd(a, 24, 16, 576 * 4 * 2)
    srd(a, 28, 18, 2304 * 576 * 2)
    srd(a, 32, 20, WS_BYTES)
    a("s_cmp_ge_u32 s2, %d" % NKV)
    a("s_cbranch_scc1 %s_wot" % name)
    a("s_mul_hi_u32 s36, s2, 0x%x" % ((2**32 + 8) // 9))
    a("s_mul_i32 s37, s36, 9")
    a("s_sub_u32 s37, s2, s37")
    a("v_and_b32 v1, 31, v0")
    a("v_lshrrev_b32 v2, 5, v0")
    a("s_lshl_b32 s38, s36, 6")
    a("v_lshl_add_u32 v3, v2, 3, s38")
    a("s_lshl_b32 s39, s37, 7")
    a("v_lshl_add_u32 v4, v1, 2, s39")
    a("v_mul_u32_u24 v5, 1152, v3")
    a("v_add_u32 v5, v5, v4")
    a("v_subrev_u32 v6, %d, v5" % (3 * 1152))
    a("v_cmp_gt_u32 vcc, 3, v3")
    a("v_mov_b32 v7, 0x7ffffff0")
    a("v_cndmask_b32 v8, v6, v7, vcc")
    for n in range(3):
        a("buffer_load_dword v%d, v8, s[8:11], 0 offen offset:%d" % (16 + n, 1152 * n))
    a("v_add_u32 v9, %d, v5" % (3456))
    a("v_add_u32 v10, %d, v5" % (6912))
    for n in range(8):
        base, off = ((5, 1152 * n) if n < 3 else (9, 1152 * (n - 3)) if n < 6 else (10, 1152 * (n - 6)))
        a("buffer_load_dword v%d, v%d, s[8:11], 0 offen offset:%d" % (19 + n, base, off))
        a("buffer_load_dword v%d, v%d, s[12:15], 0 offen offset:%d" % (32 + n, base, off))
    a("v_lshlrev_b32 v11, 2, v4")
    a("buffer_load_dwordx4 v[44:47], v11, s[24:27], 0 offen")
    a("s_waitcnt vmcnt(0)")
    for ch in range(2):
        for q in range(2):
            a("v_lshlrev_b32 v%d, 16, v%d" % (48 + 4 * ch + 2 * q, 44 + 2 * ch + q))
            a("v_and_b32 v%d, 0xffff0000, v%d" % (49 + 4 * ch + 2 * q, 44 + 2 * ch + q))
    for n in range(11):
        a("v_lshlrev_b32 v%d, 16, v%d" % (60 + n, 16 + n))
        a("v_and_b32 v%d, 0xffff0000, v%d" % (72 + n, 16 + n))
    OUT = 100
    for e in range(8):
        A0, A1, P0, P1, TM = 90, 91, 92, 93, 94
        a("v_mul_f32 v%d, v%d, v%d" % (A0, 60 + e, 48 + 3)); a("v_mul_f32 v%d, v%d, v%d" % (A1, 72 + e, 52 + 3))
        rnd_pair(a, TM, A0, A1)
        for t in range(1, 4):
            a("v_mul_f32 v%d, v%d, v%d" % (P0, 60 + e + t, 48 + 3 - t)); a("v_mul_f32 v%d, v%d, v%d" % (P1, 72 + e + t, 52 + 3 - t))
            rnd_pair(a, TM, P0, P1)
            a("v_add_f32 v%d, v%d, v%d" % (A0, A0, P0)); a("v_add_f32 v%d, v%d, v%d" % (A1, A1, P1))
            rnd_pair(a, TM, A0, A1)
        a("v_lshlrev_b32 v%d, 16, v%d" % (P0, 32 + e)); a("v_and_b32 v%d, 0xffff0000, v%d" % (P1, 32 + e))
        a("v_mul_f32 v%d, v%d, v%d" % (OUT + e, A0, P0)); a("v_mul_f32 v%d, v%d, v%d" % (OUT + 8 + e, A1, P1))
    for ch in range(2):
        for q in range(4):
            a("v_cvt_pk_bf16_f32 v%d, v%d, v%d" % (120 + 4 * ch + q, OUT + 8 * ch + 7 - 2 * q, OUT + 8 * ch + 6 - 2 * q))
    a("v_lshlrev_b32 v12, 11, v4")
    a("v_sub_u32 v13, 2040, v3")
    a("v_lshl_add_u32 v12, v13, 1, v12")
    a("v_add_u32 v13, 4096, v12")
    a("s_mov_b32 s40, 0x%x" % KVT)
    a("buffer_store_dwordx4 v[120:123], v12, s[32:35], s40 offen")
    a("buffer_store_dwordx4 v[124:127], v13, s[32:35], s40 offen")
    a("s_branch %s_end" % name)
    a.label("%s_wot" % name)
    a("s_sub_u32 s36, s2, %d" % NKV)
    a("s_lshl_b32 s36, s36, 10")
    a("s_mov_b32 s37, 0x%x" % ((2**32 + 9) // 10))
    a("s_mov_b32 s38, 0x%x" % ((2**32 + 17) // 18))
    a("s_mov_b32 s40, 0x%x" % WOT)
    for n in range(4):
        a("v_add_u32 v1, s36, v0")
        if n: a("v_add_u32 v1, %d, v1" % (256 * n))
        a("v_mul_hi_u32 v2, v1, s37")
        a("v_mul_u32_u24 v3, 10, v2")
        a("v_sub_u32 v3, v1, v3")
        a("v_lshrrev_b32 v4, 7, v2")
        a("v_and_b32 v5, 127, v2")
        a("v_mul_hi_u32 v6, v4, s38")
        a("v_mul_u32_u24 v7, 18, v6")
        a("v_sub_u32 v7, v4, v7")
        a("v_and_b32 v8, 0x63, v5")
        a("v_bfe_u32 v9, v5, 2, 2")
        a("v_lshl_add_u32 v8, v9, 3, v8")
        a("v_bfe_u32 v9, v5, 4, 1")
        a("v_lshl_add_u32 v8, v9, 2, v8")
        a("v_lshl_add_u32 v8, v7, 7, v8")
        a("v_mul_u32_u24 v8, 1152, v8")
        a("v_lshrrev_b32 v9, 1, v6")
        a("v_mul_u32_u24 v9, 288, v9")
        a("v_add_u32 v8, v8, v9")
        a("v_lshl_add_u32 v8, v3, 4, v8")
        a("v_and_b32 v9, 1, v6")
        a("v_mul_u32_u24 v9, 160, v9")
        a("v_cmp_gt_u32 vcc, 8, v3")
        a("s_nop 1")
        a("v_cndmask_b32 v9, 0, v9, vcc")
        a("v_add_u32 v8, v8, v9")
        a("buffer_load_dwordx4 v[%d:%d], v8, s[28:31], 0 offen" % (16 + 4 * n, 19 + 4 * n))
        a("v_lshlrev_b32 v%d, 4, v1" % (10 + n))
    for n in range(4):
        a("s_waitcnt vmcnt(%d)" % (3 - n + n))
    a("s_waitcnt vmcnt(0)")
    for n in range(4):
        a("buffer_store_dwordx4 v[%d:%d], v%d, s[32:35], s40 offen" % (16 + 4 * n, 19 + 4 * n, 10 + n))
    a.label("%s_end" % name)
    a("s_endpgm")
    return a.text(), kernel_desc(name, 128, 128), (name, NKV + NWO, 256, 0)

def gen_kc(name="kc_kernel"):
    a = Asm()
    EB = 0; OB = 4160 + 64; UB = 8448
    LDSB = UB + 4096 + 512
    kernel_begin(a, name)
    a("s_cmp_ge_u32 s2, 576")
    a("s_cbranch_scc1 %s_end" % name)
    a("s_load_dwordx4 s[4:7], s[0:1], 32")
    a("s_load_dwordx2 s[20:21], s[0:1], 104")
    a("s_waitcnt lgkmcnt(0)")
    srd(a, 8, 4, 576 * 2048 * 2)
    srd(a, 12, 6, 576 * 2)
    srd(a, 32, 20, WS_BYTES)
    a("s_lshl_b32 s36, s2, 12")
    a("v_lshlrev_b32 v1, 4, v0")
    for n in range(4):
        a("buffer_load_dwordx4 v[%d:%d], v1, s[8:11], s36 offen offset:%d" % (16 + 5 * n + (n & 1) * 0, 19 + 5 * n + (n & 1) * 0, 1024 * n)) if False else None
    H = [16, 24, 32, 40]
    for n in range(4):
        a("buffer_load_dwordx4 v[%d:%d], v1, s[8:11], s36 offen offset:%d" % (H[n], H[n] + 3, 1024 * n))
    a("v_add_u32 v2, 16, v1")
    for n in range(4):
        a("buffer_load_dword v%d, v2, s[8:11], s36 offen offset:%d" % (H[n] + 4, 1024 * n))
    a("s_add_u32 s37, s36, 0x%x" % KVT)
    a("s_mov_b32 m0, %d" % UB)
    a("s_nop 0")
    for n in range(4):
        a("buffer_load_dwordx4 v1, s[32:35], s37 offen offset:%d lds" % (1024 * n))
    a("s_lshl_b32 s38, s2, 1")
    a("v_mov_b32 v3, s38")
    a("buffer_load_ushort v4, v3, s[12:15], 0 offen")
    a("v_mov_b32 v8, 0"); a("v_mov_b32 v9, 0"); a("v_mov_b32 v10, 0"); a("v_mov_b32 v11, 0")
    a("v_lshlrev_b32 v5, 3, v0")
    a("ds_write_b64 v5, v[8:9] offset:%d" % (UB + 4096))
    a("s_mov_b64 exec, 3")
    a("ds_write_b128 v1, v[8:11] offset:%d" % EB)
    a("ds_write_b128 v1, v[8:11] offset:%d" % OB)
    a("s_mov_b64 exec, -1")
    a("s_waitcnt vmcnt(0) lgkmcnt(0)")
    for n in range(4):
        a("ds_write_b128 v1, v[%d:%d] offset:%d" % (H[n], H[n] + 3, EB + 32 + 1024 * n))
        for q in range(4):
            a("v_alignbit_b32 v%d, v%d, v%d, 16" % (48 + q, H[n] + q + 1, H[n] + q))
        a("ds_write_b128 v1, v[48:51] offset:%d" % (OB + 32 + 1024 * n))
        a("s_nop 1")
    a("s_mov_b64 exec, 1")
    a("v_mov_b32 v5, 0")
    a("ds_write_b16 v5, v%d offset:%d" % (H[0], OB + 30))
    a("s_mov_b64 exec, -1")
    a("v_and_b32 v5, 15, v0")
    a("v_lshrrev_b32 v6, 4, v0")
    a("v_lshl_add_u32 v7, v6, 3, v5")
    a("v_and_b32 v8, 1, v5")
    a("v_add_u32 v7, v7, v8")
    a("v_lshlrev_b32 v7, 1, v7")
    a("v_cmp_eq_u32 vcc, 0, v8")
    a("v_mov_b32 v9, %d" % EB); a("v_mov_b32 v10, %d" % OB)
    a("v_cndmask_b32 v9, v9, v10, vcc")
    a("v_add_u32 v7, v7, v9")
    AA = 52
    for jj in range(8):
        a("v_add_u32 v%d, %d, v7" % (AA + jj, 512 * jj))
    a("v_lshlrev_b32 v9, 4, v6")
    a("v_lshlrev_b32 v10, 5, v5")
    a("v_sub_u32 v9, v9, v10")
    a("v_add_u32 v60, %d, v9" % (UB + 480))
    a("s_waitcnt lgkmcnt(0)")
    ACC = 64; AF = [96, 160]; BF = [128, 192]
    trk = LdsTracker(a)
    def reads(k0, buf):
        L = []
        for q in range(8):
            r = BF[buf] + 4 * q
            L.append(("ds_read_b128 %s, v60 offset:%d" % (vr(r), 3584 - 512 * q + 64 * k0), range(r, r + 4)))
            r = AF[buf] + 4 * q
            L.append(("ds_read2_b32 %s, v%d offset0:%d offset1:%d" % (vr(r, 2), AA + q, 16 * k0, 16 * k0 + 1), range(r, r + 2)))
            L.append(("ds_read2_b32 %s, v%d offset0:%d offset1:%d" % (vr(r + 2, 2), AA + q, 16 * k0 + 2, 16 * k0 + 3), range(r + 2, r + 4)))
        return L
    for t, r in reads(0, 0):
        a(t); trk.issue(r)
        if len(trk.out) >= 12: trk.drain()
    for k0 in range(8):
        buf = k0 & 1
        nxt = reads(k0 + 1, 1 - buf) if k0 < 7 else []
        ms = sorted([(max(jj, n - jj), n, jj) for n in range(8) for jj in range(n + 1)])
        for (_, n, jj) in ms:
            A = AF[buf] + 4 * jj; B = BF[buf] + 4 * (n - jj); c = ACC + 4 * n
            trk.need(list(range(A, A + 4)) + list(range(B, B + 4)))
            first = (k0 == 0 and jj == [m[2] for m in ms if m[1] == n][0])
            a("v_mfma_f32_16x16x32_bf16 %s, %s, %s, %s" % (vr(c), vr(A), vr(B), "0" if first else vr(c)))
            if nxt and len(trk.out) < 14:
                t, r = nxt.pop(0); a(t); trk.issue(r)
        for t, r in nxt:
            if len(trk.out) >= 14: trk.drain()
            a(t); trk.issue(r)
    a("v_lshlrev_b32 v9, 5, v5")
    a("v_lshl_add_u32 v9, v6, 3, v9")
    a("v_sub_u32 v10, %d, v9" % (UB + 4088 - 3584))
    for n in range(8):
        a("ds_read_b64 %s, v10 offset:%d" % (vr(96 + 2 * n, 2), 3584 - 512 * n))
    a("v_lshlrev_b32 v4, 16, v4")
    a("s_add_u32 s37, s36, 0x%x" % YT)
    a("s_waitcnt lgkmcnt(0)")
    a("s_nop 4")
    for n in range(8):
        c = ACC + 4 * n; U = 96 + 2 * n; T = 120
        a("v_and_b32 v%d, 0xffff0000, v%d" % (T + 0, U + 1)); a("v_lshlrev_b32 v%d, 16, v%d" % (T + 1, U + 1))
        a("v_and_b32 v%d, 0xffff0000, v%d" % (T + 2, U)); a("v_lshlrev_b32 v%d, 16, v%d" % (T + 3, U))
        for r in range(4): a("v_mul_f32 v%d, v%d, v4" % (T + r, T + r))
        rnd_pair(a, T + 4, T, T + 1); rnd_pair(a, T + 4, T + 2, T + 3)
        rnd_pair(a, T + 4, c, c + 1); rnd_pair(a, T + 4, c + 2, c + 3)
        for r in range(4): a("v_add_f32 v%d, v%d, v%d" % (c + r, c + r, T + r))
        a("v_cvt_pk_bf16_f32 v%d, v%d, v%d" % (U, c, c + 1))
        a("v_cvt_pk_bf16_f32 v%d, v%d, v%d" % (U + 1, c + 2, c + 3))
        a("buffer_store_dwordx2 %s, v9, s[32:35], s37 offen offset:%d" % (vr(U, 2), 512 * n))
    a.label("%s_end" % name)
    a("s_endpgm")
    return a.text(), kernel_desc(name, 224, 224), (name, 576, 64, LDSB)

if __name__ == "__main__":
    which = sys.argv[1]
    out = sys.argv[2]
    if len(sys.argv) > 3: DBG.update(sys.argv[3].split(","))
    ks = []
    for w in which.split(","):
        ks.append(globals()["gen_" + w]())
    open(out, "w").write(assemble_file([k[2] for k in ks], "".join(k[0] for k in ks), [k[1] for k in ks]))
```

```python
import sys
from asmgen import *

ZIMG   = 0x0000000
Z1IMG  = 0x0A00000
PIMG   = 0x1400000
WOT    = 0x1E00000
KVT    = 0x2200000
YT     = 0x2600000
STATS2 = 0x2A00000
STATS1 = 0x2B00000
STAMPS = 0x2C00000
WS_BYTES = 0x10000000

DBG = set()

class LdsTracker:
    def __init__(self, a):
        self.a = a
        self.out = []
    def issue(self, regs):
        self.out.append(set(regs))
    def need(self, regs):
        regs = set(regs)
        last = -1
        for n, s in enumerate(self.out):
            if s & regs:
                last = n
        if last >= 0:
            remaining = len(self.out) - 1 - last
            self.a("s_waitcnt lgkmcnt(%d)" % min(remaining, 15))
            self.out = self.out[last + 1:]
    def drain(self):
        if self.out:
            self.a("s_waitcnt lgkmcnt(0)")
        self.out = []

def vr(b, n=4):
    return "v[%d:%d]" % (b, b + n - 1)

class Core:
    def __init__(self, a, acc, fb0, fb1, FS, TREG, vTa, vTb, vF, vFh):
        self.a = a; self.acc = acc; self.fb = [fb0, fb1]; self.FS = FS; self.TREG = TREG
        self.vTa = vTa; self.vTb = vTb; self.vF = vF; self.vFh = vFh
        self.trk = LdsTracker(a)
    def T(self, buf, tt): return self.fb[buf] + 4 * tt
    def F(self, buf, ft): return self.fb[buf] + 16 + 4 * ft
    def accr(self, ft, tt):
        return self.acc + 4 * (ft * 4 + tt if ft < 4 else 16 + tt)
    def reads(self, buf, h, toff=0, foff=0):
        L = []
        def rt(tt):
            v = (self.vTa if tt < 2 else self.vTb)[h]
            r = self.T(buf, tt)
            L.append(("ds_read_b128 %s, v%d offset:%d" % (vr(r), v, toff + (tt & 1) * 2048), range(r, r + 4)))
        def rf(ft):
            r = self.F(buf, ft)
            for half in range(2):
                off = foff + (32 * h + 16 * half) * self.FS + (32 * ft if ft < 4 else 0)
                v = self.vF if ft < 4 else self.vFh
                L.append(("ds_read_b64_tr_b16 %s, v%d offset:%d" % (vr(r + 2 * half, 2), v, off), range(r + 2 * half, r + 2 * half + 2)))
        rt(0); rf(0); rt(1); rt(2); rt(3); rf(1); rf(2); rf(3); rf(4)
        return L
    def mfmas(self, buf, first=False):
        L = []
        for ft in range(5):
            for tt in range(4 if ft < 4 else 2):
                c = self.accr(ft, tt)
                A = self.F(buf, ft); B = self.T(buf, tt)
                src = "0" if first else vr(c)
                L.append(("v_mfma_f32_16x16x32_bf16 %s, %s, %s, %s" % (vr(c), vr(A), vr(B), src),
                          list(range(A, A + 4)) + list(range(B, B + 4))))
        return L
    def phase(self, buf, reads, first=False, extra=None, pre=None):
        a = self.a
        ms = self.mfmas(buf, first)
        reads = list(reads); extra = list(extra or [])
        if pre:
            for p in pre: a(p)
        for n, (m, regs) in enumerate(ms):
            self.trk.need(regs)
            if "nomfma" not in DBG: a(m)
            if reads:
                t, r = reads.pop(0)
                if "nolds" not in DBG:
                    a(t); self.trk.issue(r)
            elif extra:
                a(extra.pop(0))
        for t, r in reads:
            if "nolds" not in DBG:
                a(t); self.trk.issue(r)
        for e in extra: a(e)
    def prime(self, buf, reads):
        for t, r in reads:
            if "nolds" not in DBG:
                self.a(t); self.trk.issue(r)

def stamp(a, idx):
    if "stamp" not in DBG: return
    a("s_memtime s[48:49]")
    a("s_waitcnt lgkmcnt(0)")
    a("v_mov_b32 v1, s48")
    a("buffer_store_dword v1, off, s[44:47], s50 offset:%d" % (idx * 4))

def stamp_seq(a):
    if "fine" not in DBG: return
    a("s_memtime s[48:49]")
    a("s_waitcnt lgkmcnt(0)")
    a("v_mov_b32 v1, s48")
    a("buffer_store_dword v1, off, s[44:47], s51 offset:64")
    a("s_add_u32 s51, s51, 4")

def stamp_setup(a, kidx=0):
    if "stamp" not in DBG: return
    a("s_load_dwordx2 s[42:43], s[0:1], 104")
    a("s_waitcnt lgkmcnt(0)")
    a("s_add_u32 s42, s42, 0x%x" % (STAMPS + 1024 * kidx))
    a("s_addc_u32 s43, s43, 0")
    srd(a, 44, 42, 1024)
    a("s_mov_b32 s50, 0x10000")
    a("s_cmp_eq_u32 s2, 0")
    a("s_cselect_b32 s51, 0, 0x10000")
    a("s_cmp_eq_u32 s2, 200")
    a("s_cselect_b32 s51, 512, s51")
    a("s_cmp_eq_u32 s3, 0")
    a("s_cselect_b32 s50, s51, s50")
    a("s_add_u32 s51, s51, 256")
    a("s_cmp_eq_u32 s3, 4")
    a("s_cselect_b32 s50, s51, s50")
    a("s_mov_b32 s51, s50")

def wave_setup(a, nthreads=512):
    a("v_lshrrev_b32 v1, 6, v0")
    a("v_and_b32 v2, 63, v0")
    a("v_readfirstlane_b32 s3, v1")

def gen_k2(name="k2_kernel", R=4, dbg=""):
    a = Asm()
    SLOT = 34816; TREG = 16384; FS = 288; NST = 32
    kernel_begin(a, name)
    a("s_cmp_ge_u32 s2, 256")
    a("s_cbranch_scc1 %s_end" % name)
    a("s_load_dwordx2 s[4:5], s[0:1], 64")
    a("s_load_dwordx2 s[6:7], s[0:1], 104")
    a("s_load_dwordx2 s[16:17], s[0:1], 72")
    wave_setup(a)
    a("s_and_b32 s20, s2, 7")
    a("s_lshr_b32 s21, s2, 3")
    a("s_and_b32 s22, s20, 1")
    a("s_lshl_b32 s22, s22, 3")
    a("s_and_b32 s23, s21, 7")
    a("s_add_u32 s22, s22, s23")
    a("s_lshr_b32 s23, s20, 1")
    a("s_lshl_b32 s23, s23, 2")
    a("s_lshr_b32 s24, s21, 3")
    a("s_add_u32 s23, s23, s24")
    a("s_waitcnt lgkmcnt(0)")
    srd(a, 8, 4, 2048 * 2048 * 2)
    srd(a, 12, 6, WS_BYTES)
    srd(a, 28, 16, 2048 * 2)
    stamp_setup(a, 2); stamp(a, 0)
    a("s_cmp_ge_u32 s3, 4")
    a("s_cbranch_scc1 %s_loader" % name)
    ACC = 128; FB0 = 16; FB1 = 52
    vTa = [4, 5]; vTb = [6, 7]; vF = 8; vFh = 9
    bTa = [88, 89]; bTb = [90, 91]; bF = 92; bFh = 93
    a("s_lshr_b32 s24, s3, 1")
    a("s_and_b32 s25, s3, 1")
    a("v_and_b32 v3, 15, v2")
    a("v_lshrrev_b32 v10, 4, v2")
    a("v_lshrrev_b32 v11, 1, v3")
    a("v_xor_b32 v10, v10, v11")
    a("v_lshlrev_b32 v10, 4, v10")
    a("v_lshl_add_u32 v10, v3, 7, v10")
    a("s_lshl_b32 s26, s24, 13")
    a("v_add_u32 v10, s26, v10")
    a("s_lshl_b32 s26, s25, 12")
    a("v_add_u32 v%d, s26, v10" % bTa[0])
    a("s_xor_b32 s26, s26, 4096")
    a("v_add_u32 v%d, s26, v10" % bTb[0])
    a("v_xor_b32 v%d, 64, v%d" % (bTa[1], bTa[0]))
    a("v_xor_b32 v%d, 64, v%d" % (bTb[1], bTb[0]))
    a("v_lshrrev_b32 v10, 2, v2")
    a("v_mul_u32_u24 v10, %d, v10" % FS)
    a("v_and_b32 v11, 3, v2")
    a("v_lshl_add_u32 v10, v11, 3, v10")
    a("v_add_u32 v10, %d, v10" % TREG)
    a("s_mul_i32 s26, s25, 160")
    a("v_add_u32 v%d, s26, v10" % bF)
    a("v_add_u32 v%d, 128, v10" % bFh)
    core = Core(a, ACC, FB0, FB1, FS, TREG, vTa, vTb, vF, vFh)
    for d, s in ((vTa[0], bTa[0]), (vTb[0], bTb[0]), (vTa[1], bTa[1]), (vTb[1], bTb[1]), (vF, bF), (vFh, bFh)):
        a("v_mov_b32 v%d, v%d" % (d, s))
    a("s_mov_b32 s27, 0")
    a("s_mov_b32 s33, 0")
    a("s_barrier")
    stamp(a, 1)
    core.prime(0, core.reads(0, 0))
    def iteration(first, last):
        a("s_barrier")
        a("s_add_u32 s34, s27, %d" % SLOT)
        a("s_cmp_eq_u32 s34, %d" % (R * SLOT))
        a("s_cselect_b32 s34, 0, s34")
        core.phase(0, core.reads(1, 1), first=first)
        if not last:
            pre = ["v_add_u32 v%d, s34, v%d" % (d, s) for d, s in ((vTa[0], bTa[0]), (vF, bF), (vTb[0], bTb[0]), (vFh, bFh))]
            post = ["v_add_u32 v%d, s34, v%d" % (d, s) for d, s in ((vTa[1], bTa[1]), (vTb[1], bTb[1]))]
            core.phase(1, core.reads(0, 0), pre=pre, extra=post)
        else:
            core.phase(1, [])
        a("s_mov_b32 s27, s34")
    iteration(True, False)
    a("s_mov_b32 s33, 1")
    a.label("%s_cloop" % name)
    saved = list(core.trk.out)
    iteration(False, False)
    assert [sorted(x) for x in saved] == [sorted(x) for x in core.trk.out], "loop tracker mismatch"
    a("s_add_u32 s33, s33, 1")
    a("s_cmp_lt_u32 s33, %d" % (NST - 1))
    a("s_cbranch_scc1 %s_cloop" % name)
    Z1R = 200; BI = 236
    a("s_lshl_b32 s35, s22, 4")
    a("s_add_u32 s35, s35, s23")
    a("s_lshl_b32 s35, s35, 2")
    a("s_add_u32 s35, s35, s3")
    a("s_mul_i32 s35, s35, 9216")
    a("s_add_u32 s35, s35, 0x%x" % Z1IMG)
    a("v_lshlrev_b32 v10, 4, v2")
    for q in range(9):
        if q == 4: a("s_add_u32 s35, s35, 4096")
        if q == 8: a("s_add_u32 s35, s35, 4096")
        a("buffer_load_dwordx4 %s, v10, s[12:15], s35 offen offset:%d" % (vr(Z1R + 4 * q), (q & 3) * 1024))
    a("s_lshl_b32 s36, s22, 7")
    a("s_lshl_b32 s37, s24, 6")
    a("s_add_u32 s36, s36, s37")
    a("v_lshlrev_b32 v11, 1, v3")
    a("s_lshl_b32 s37, s25, 6")
    a("s_lshl_b32 s38, s36, 1")
    a("s_add_u32 s39, s38, s37")
    a("s_xor_b32 s37, s37, 64")
    a("s_add_u32 s40, s38, s37")
    a("buffer_load_ushort v%d, v11, s[28:31], s39 offen" % (BI + 0))
    a("buffer_load_ushort v%d, v11, s[28:31], s39 offen offset:32" % (BI + 1))
    a("buffer_load_ushort v%d, v11, s[28:31], s40 offen" % (BI + 2))
    a("buffer_load_ushort v%d, v11, s[28:31], s40 offen offset:32" % (BI + 3))
    iteration(False, True)
    stamp(a, 2)
    a("s_waitcnt vmcnt(0)")
    stamp(a, 3)
    for tt in range(4):
        a("v_lshlrev_b32 v%d, 16, v%d" % (BI + tt, BI + tt))
    a("s_nop 7"); a("s_nop 7")
    xs = 16
    for ft in range(5):
        for tt in range(4 if ft < 4 else 2):
            n = ft * 4 + tt if ft < 4 else 16 + tt
            c = core.accr(ft, tt)
            z = Z1R + 2 * n
            a("v_cvt_pk_bf16_f32 v%d, v%d, v%d" % (xs, c, c + 1))
            a("v_cvt_pk_bf16_f32 v%d, v%d, v%d" % (xs + 1, c + 2, c + 3))
            a("v_lshlrev_b32 v%d, 16, v%d" % (c, xs))
            a("v_and_b32 v%d, 0xffff0000, v%d" % (c + 1, xs))
            a("v_lshlrev_b32 v%d, 16, v%d" % (c + 2, xs + 1))
            a("v_and_b32 v%d, 0xffff0000, v%d" % (c + 3, xs + 1))
            for r in range(4):
                a("v_add_f32 v%d, v%d, v%d" % (c + r, c + r, BI + tt))
            a("v_cvt_pk_bf16_f32 v%d, v%d, v%d" % (xs, c, c + 1))
            a("v_cvt_pk_bf16_f32 v%d, v%d, v%d" % (xs + 1, c + 2, c + 3))
            a("v_lshlrev_b32 v%d, 16, v%d" % (c, xs))
            a("v_and_b32 v%d, 0xffff0000, v%d" % (c + 1, xs))
            a("v_lshlrev_b32 v%d, 16, v%d" % (c + 2, xs + 1))
            a("v_and_b32 v%d, 0xffff0000, v%d" % (c + 3, xs + 1))
            a("v_lshlrev_b32 v%d, 16, v%d" % (xs + 2, z))
            a("v_and_b32 v%d, 0xffff0000, v%d" % (xs + 3, z))
            a("v_lshlrev_b32 v%d, 16, v%d" % (xs + 4, z + 1))
            a("v_and_b32 v%d, 0xffff0000, v%d" % (xs + 5, z + 1))
            for r in range(4):
                a("v_mul_f32 v%d, v%d, v%d" % (c + r, c + r, xs + 2 + r))
            a("v_cvt_pk_bf16_f32 v%d, v%d, v%d" % (z, c, c + 1))
            a("v_cvt_pk_bf16_f32 v%d, v%d, v%d" % (z + 1, c + 2, c + 3))
    stamp(a, 4)
    emit_p_store(a, Z1R, core)
    stamp(a, 5)
    a("s_waitcnt vmcnt(0)")
    stamp(a, 6)
    a("s_branch %s_end" % name)
    a.label("%s_loader" % name)
    if "noprio" not in DBG: a("s_setprio 3")
    a("s_sub_u32 s3, s3, 4")
    a("v_lshrrev_b32 v3, 3, v2")
    a("s_lshl_b32 s24, s3, 5")
    a("v_add_u32 v3, s24, v3")
    a("v_and_b32 v4, 7, v2")
    for n in range(4):
        a("v_add_u32 v5, %d, v3" % (8 * n))
        a("v_lshrrev_b32 v6, 1, v5")
        a("v_and_b32 v6, 7, v6")
        a("v_xor_b32 v6, v6, v4")
        a("v_lshlrev_b32 v6, 4, v6")
        a("v_lshl_add_u32 v%d, v5, 12, v6" % (10 + n))
        if n: a("v_subrev_u32 v%d, %d, v%d" % (10 + n, n * 1024, 10 + n))
    a("v_lshlrev_b32 v14, 4, v2")
    a("s_lshl_b32 s26, s22, 19")
    a("s_mul_i32 s27, s23, %d" % (32 * 18432))
    a("s_lshl_b32 s24, s3, 12")
    a("s_add_u32 s27, s27, s24")
    if ZIMG: a("s_add_u32 s27, s27, 0x%x" % ZIMG)
    a("s_lshl_b32 s25, s3, 9")
    a("s_sub_u32 s32, s25, s24")
    a("s_add_u32 s32, s32, 16384")
    a("s_mov_b32 s33, 0")
    a("s_mov_b32 s34, 0")
    def issue():
        if "nodma" in DBG: return
        a("s_add_u32 s35, s33, s24")
        a("s_mov_b32 m0, s35")
        a("s_add_u32 s36, s35, %d" % TREG)
        for n in range(4):
            a("buffer_load_dwordx4 v%d, s[8:11], s26 offen offset:%d lds" % (10 + n, n * 1024))
        a("s_mov_b32 m0, s36")
        a("s_add_u32 s37, s27, s32")
        for n in range(4):
            a("buffer_load_dwordx4 v14, s[12:15], s27 offen offset:%d lds" % (n * 1024))
        a("s_add_u32 s36, s36, s32")
        a("s_mov_b32 m0, s36")
        a("s_mov_b64 exec, 0xffffffff")
        a("buffer_load_dwordx4 v14, s[12:15], s37 offen lds")
        a("s_mov_b64 exec, -1")
        a("s_add_u32 s26, s26, 128")
        a("s_add_u32 s27, s27, 18432")
        a("s_add_u32 s33, s33, %d" % SLOT)
        a("s_cmp_eq_u32 s33, %d" % (R * SLOT))
        a("s_cselect_b32 s33, 0, s33")
    for s in range(R - 1):
        issue()
    a("s_waitcnt vmcnt(%d)" % (9 * (R - 2)))
    a("s_barrier")
    issue()
    a("s_waitcnt vmcnt(%d)" % (9 * (R - 2)))
    a("s_barrier")
    a("s_waitcnt vmcnt(%d)" % (9 * (R - 3)))
    a("s_barrier")
    a("s_mov_b32 s34, 1")
    a.label("%s_lloop" % name)
    issue()
    a("s_waitcnt vmcnt(%d)" % (9 * (R - 3)))
    a("s_barrier")
    a("s_add_u32 s34, s34, 1")
    a("s_cmp_lt_u32 s34, %d" % (NST - R + 1))
    a("s_cbranch_scc1 %s_lloop" % name)
    for k in range(NST - R + 1, NST - 1):
        left = max(0, (NST - 1) - (k + 2))
        a("s_waitcnt vmcnt(%d)" % (9 * left))
        a("s_barrier")
    a.label("%s_end" % name)
    a("s_endpgm")
    return a.text(), kernel_desc(name, 256, 256), (name, 256, 512, R * SLOT)

def emit_p_store(a, PR, core):
    a("v_lshrrev_b32 v10, 4, v2")
    a("v_and_b32 v11, 1, v10")
    a("v_lshrrev_b32 v12, 1, v10")
    a("v_lshl_add_u32 v12, v11, 1, v12")
    a("s_mul_i32 s35, s23, 18")
    a("s_mul_i32 s36, s25, 10")
    a("s_add_u32 s36, s36, s35")
    a("v_lshrrev_b32 v13, 1, v3")
    a("s_lshl_b32 s37, s22, 1")
    a("s_add_u32 s37, s37, s24")
    a("s_mul_i32 s37, s37, %d" % (36 * 8192))
    a("s_add_u32 s37, s37, 0x%x" % PIMG)
    a("s_lshl_b32 s38, s25, 12")
    a("s_add_u32 s39, s37, s38")
    a("s_xor_b32 s38, s38, 4096")
    a("s_add_u32 s40, s37, s38")
    def addr(dst, pv):
        a("v_lshrrev_b32 v14, 3, v%d" % pv)
        a("v_lshlrev_b32 v14, 13, v14")
        a("v_and_b32 v15, 7, v%d" % pv)
        a("v_xor_b32 v15, v15, v13")
        a("v_lshl_add_u32 v14, v15, 4, v14")
        a("v_lshl_add_u32 v%d, v3, 7, v14" % dst)
    for pr in range(2):
        a("v_add_u32 v16, s36, v12")
        if pr: a("v_add_u32 v16, 4, v16")
        addr(17, 16)
        for tt in range(4):
            nA = (2 * pr) * 4 + tt; nB = (2 * pr + 1) * 4 + tt
            A = PR + 2 * nA; B = PR + 2 * nB
            a("v_mov_b32 v20, v%d" % A); a("v_mov_b32 v21, v%d" % (A + 1))
            a("v_mov_b32 v22, v%d" % B); a("v_mov_b32 v23, v%d" % (B + 1))
            a("s_nop 1")
            a("v_permlane16_swap_b32 v20, v22")
            a("v_permlane16_swap_b32 v21, v23")
            a("s_nop 1")
            a("buffer_store_dwordx4 v[20:23], v17, s[12:15], s%d offen offset:%d" % (39 if tt < 2 else 40, (tt & 1) * 2048))
            a("s_nop 1")
    a("v_lshrrev_b32 v16, 1, v10")
    a("s_add_u32 s35, s35, 8")
    a("v_add_u32 v16, s35, v16")
    addr(17, 16)
    a("v_lshl_add_u32 v17, v11, 11, v17")
    A = PR + 32; B = PR + 34
    a("v_mov_b32 v20, v%d" % A); a("v_mov_b32 v21, v%d" % (A + 1))
    a("v_mov_b32 v22, v%d" % B); a("v_mov_b32 v23, v%d" % (B + 1))
    a("s_nop 1")
    a("v_permlane16_swap_b32 v20, v22")
    a("v_permlane16_swap_b32 v21, v23")
    a("s_nop 1")
    a("buffer_store_dwordx4 v[20:23], v17, s[12:15], s39 offen")

def rnd_pair(a, tmp, r0, r1):
    a("v_cvt_pk_bf16_f32 v%d, v%d, v%d" % (tmp, r0, r1))
    a("v_lshlrev_b32 v%d, 16, v%d" % (r0, tmp))
    a("v_and_b32 v%d, 0xffff0000, v%d" % (r1, tmp))

def gen_k3(name="k3_kernel", R=4):
    a = Asm()
    TREG = 16384; FS = 160; SLOT = TREG + 128 * FS; NST = 18
    YOFF = R * SLOT
    kernel_begin(a, name)
    a("s_cmp_ge_u32 s2, 256")
    a("s_cbranch_scc1 %s_end" % name)
    a("s_load_dwordx2 s[4:5], s[0:1], 0")
    a("s_load_dwordx2 s[6:7], s[0:1], 104")
    a("s_load_dwordx2 s[16:17], s[0:1], 88")
    wave_setup(a)
    a("s_and_b32 s20, s2, 7")
    a("s_lshr_b32 s21, s2, 3")
    a("s_and_b32 s22, s20, 3")
    a("s_lshl_b32 s22, s22, 3")
    a("s_and_b32 s23, s21, 7")
    a("s_add_u32 s22, s22, s23")
    a("s_lshr_b32 s23, s20, 2")
    a("s_lshl_b32 s23, s23, 2")
    a("s_lshr_b32 s24, s21, 3")
    a("s_add_u32 s23, s23, s24")
    a("s_lshr_b32 s24, s23, 1")
    a("s_and_b32 s25, s23, 1")
    a("s_waitcnt lgkmcnt(0)")
    srd(a, 8, 4, 2048 * 576 * 2)
    srd(a, 12, 6, WS_BYTES)
    srd(a, 28, 16, 2048 * 576 * 2)
    stamp_setup(a, 3); stamp(a, 0)
    a("s_cmp_ge_u32 s3, 4")
    a("s_cbranch_scc1 %s_loader" % name)
    ACC = 128; FB0 = 16; FB1 = 52
    vTa = [4, 4]; vTb = [6, 6]; vF = 8; vFh = 9
    bTa = 88; bTb = 90; bF = 92; bFh = 93
    XR = 200; ST = 210; YR = 212
    a("v_and_b32 v3, 15, v2")
    a("v_lshrrev_b32 v10, 4, v2")
    a("s_and_b32 s26, s3, 1")
    a("s_lshl_b32 s26, s26, 2")
    a("v_add_u32 v10, s26, v10")
    a("v_lshrrev_b32 v11, 1, v3")
    a("v_xor_b32 v10, v10, v11")
    a("v_lshlrev_b32 v10, 4, v10")
    a("v_lshl_add_u32 v10, v3, 7, v10")
    a("s_lshr_b32 s26, s3, 1")
    a("s_lshl_b32 s26, s26, 13")
    a("v_add_u32 v10, s26, v10")
    a("s_lshl_b32 s26, s25, 12")
    a("v_add_u32 v%d, s26, v10" % bTa)
    a("s_xor_b32 s26, s26, 4096")
    a("v_add_u32 v%d, s26, v10" % bTb)
    a("v_lshrrev_b32 v10, 2, v2")
    a("v_mul_u32_u24 v10, %d, v10" % FS)
    a("v_and_b32 v11, 3, v2")
    a("v_lshl_add_u32 v10, v11, 3, v10")
    a("s_mul_i32 s26, s3, %d" % (32 * FS))
    a("s_add_u32 s26, s26, %d" % TREG)
    a("v_add_u32 v%d, s26, v10" % bF)
    a("v_add_u32 v%d, 128, v%d" % (bFh, bF))
    a("s_lshl_b32 s26, s25, 1")
    a("s_add_u32 s26, s26, s3")
    a("s_and_b32 s26, s26, 3")
    a("s_lshl_b32 s27, s26, 4")
    a("s_lshl_b32 s33, s22, 6")
    a("s_add_u32 s27, s27, s33")
    a("v_add_u32 v12, s27, v3")
    a("v_mul_u32_u24 v13, 1152, v12")
    a("v_lshrrev_b32 v10, 4, v2")
    a("v_lshl_add_u32 v13, v10, 3, v13")
    a("s_mul_i32 s34, s24, 288")
    a("s_mul_i32 s35, s25, 160")
    a("s_add_u32 s35, s35, s34")
    a("s_add_u32 s36, s34, 128")
    for ft in range(4):
        a("buffer_load_dwordx2 %s, v13, s[8:11], s35 offen offset:%d" % (vr(XR + 2 * ft, 2), 32 * ft))
    a("buffer_load_dwordx2 %s, v13, s[8:11], s36 offen" % vr(XR + 8, 2))
    a("v_lshlrev_b32 v14, 3, v12")
    a("s_mov_b32 s37, 0x%x" % STATS1)
    a("buffer_load_dwordx2 %s, v14, s[12:15], s37 offen" % vr(ST, 2))
    core = Core(a, ACC, FB0, FB1, FS, TREG, vTa, vTb, vF, vFh)
    pairs = ((vTa[0], bTa), (vF, bF), (vTb[0], bTb), (vFh, bFh))
    for d, s_ in pairs:
        a("v_mov_b32 v%d, v%d" % (d, s_))
    a("s_mov_b32 s27, 0")
    a("s_barrier")
    stamp(a, 1)
    core.prime(0, core.reads(0, 0))
    def iteration(buf, first, last):
        core.trk.drain()
        a("s_barrier")
        if not last:
            a("s_add_u32 s27, s27, %d" % SLOT)
            a("s_cmp_eq_u32 s27, %d" % (R * SLOT))
            a("s_cselect_b32 s27, 0, s27")
            pre = ["v_add_u32 v%d, s27, v%d" % (d, s_) for d, s_ in pairs]
            core.phase(buf, core.reads(1 - buf, 0), first=first, pre=pre)
        else:
            core.phase(buf, [])
    iteration(0, True, False)
    iteration(1, False, False)
    a("s_mov_b32 s33, 1")
    a.label("%s_cloop" % name)
    iteration(0, False, False)
    iteration(1, False, False)
    a("s_add_u32 s33, s33, 1")
    a("s_cmp_lt_u32 s33, %d" % (NST // 2 - 1))
    a("s_cbranch_scc1 %s_cloop" % name)
    iteration(0, False, False)
    iteration(1, False, True)
    stamp(a, 2)
    a("s_mul_i32 s33, s3, %d" % (18 * 1024))
    a("v_lshlrev_b32 v10, 4, v2")
    a("v_add_u32 v11, s33, v10")
    a("s_nop 7")
    for w in range(4):
        a("s_cmp_eq_u32 s3, %d" % w)
        a("s_cbranch_scc1 %s_skipw%d" % (name, w))
        for ft in range(5):
            if ft == 4 and w >= 2: continue
            n = ft * 4 + w if ft < 4 else 16 + w
            a("ds_write_b128 v11, %s offset:%d" % (vr(core.accr(ft, w)), n * 1024))
        a.label("%s_skipw%d" % (name, w))
    a("s_waitcnt lgkmcnt(0)")
    a("s_barrier")
    O = 16; PT = 40
    for w in range(4):
        a("s_cmp_lg_u32 s3, %d" % w)
        a("s_cbranch_scc1 %s_own%d" % (name, w))
        for ft in range(5):
            for r in range(4):
                if ft == 4 and w >= 2:
                    a("v_mov_b32 v%d, 0" % (O + 4 * ft + r))
                else:
                    a("v_mov_b32 v%d, v%d" % (O + 4 * ft + r, core.accr(ft, w) + r))
        a.label("%s_own%d" % (name, w))
    a("s_lshl_b32 s34, s3, 10")
    for q in range(1, 4):
        a("s_add_u32 s33, s3, %d" % q)
        a("s_and_b32 s33, s33, 3")
        a("s_mul_i32 s33, s33, %d" % (18 * 1024))
        a("s_add_u32 s33, s33, s34")
        a("v_add_u32 v11, s33, v10")
        for ft in range(5):
            a("ds_read_b128 %s, v11 offset:%d" % (vr(PT + 20 * (q - 1) + 4 * ft), ft * 4096))
    a("v_lshrrev_b32 v11, 2, v2")
    a("v_lshlrev_b32 v11, 7, v11")
    a("v_and_b32 v12, 3, v2")
    a("v_lshl_add_u32 v11, v12, 3, v11")
    a("s_lshl_b32 s33, s26, 5")
    a("s_add_u32 s33, s33, %d" % YOFF)
    a("v_add_u32 v11, s33, v11")
    for ft in range(5):
        a("ds_read_b64_tr_b16 %s, v11 offset:%d" % (vr(YR + 2 * ft, 2), ft * 2048))
    a("s_waitcnt lgkmcnt(0) vmcnt(0)")
    stamp(a, 3)
    for ft in range(5):
        for r in range(4):
            o = O + 4 * ft + r
            a("v_add_f32 v%d, v%d, v%d" % (o, o, PT + 4 * ft + r))
            a("v_add_f32 v%d, v%d, v%d" % (PT + 20 + 4 * ft + r, PT + 20 + 4 * ft + r, PT + 40 + 4 * ft + r))
            a("v_add_f32 v%d, v%d, v%d" % (o, o, PT + 20 + 4 * ft + r))
    a("s_mov_b32 s33, 0xbfb8aa3b")
    T = 104
    for ft in range(5):
        if ft == 4:
            a("s_cmp_ge_u32 s3, 2")
            a("s_cbranch_scc1 %s_fin" % name)
        o = O + 4 * ft
        X = XR + 2 * ft; Y = YR + 2 * ft
        rnd_pair(a, T + 20, o, o + 1); rnd_pair(a, T + 20, o + 2, o + 3)
        for r in range(4): a("v_mul_f32 v%d, s33, v%d" % (T + r, o + r))
        for r in range(4): a("v_exp_f32 v%d, v%d" % (T + r, T + r))
        for r in range(4): a("v_add_f32 v%d, 1.0, v%d" % (T + r, T + r))
        for r in range(4): a("v_rcp_f32 v%d, v%d" % (T + r, T + r))
        a("v_lshlrev_b32 v%d, 16, v%d" % (T + 4, X)); a("v_and_b32 v%d, 0xffff0000, v%d" % (T + 5, X))
        a("v_lshlrev_b32 v%d, 16, v%d" % (T + 6, X + 1)); a("v_and_b32 v%d, 0xffff0000, v%d" % (T + 7, X + 1))
        a("v_lshlrev_b32 v%d, 16, v%d" % (T + 8, Y)); a("v_and_b32 v%d, 0xffff0000, v%d" % (T + 9, Y))
        a("v_lshlrev_b32 v%d, 16, v%d" % (T + 10, Y + 1)); a("v_and_b32 v%d, 0xffff0000, v%d" % (T + 11, Y + 1))
        for r in range(4): a("v_mul_f32 v%d, v%d, v%d" % (o + r, o + r, T + r))
        rnd_pair(a, T + 20, o, o + 1); rnd_pair(a, T + 20, o + 2, o + 3)
        for r in range(4): a("v_sub_f32 v%d, v%d, v%d" % (T + 12 + r, T + 4 + r, ST))
        rnd_pair(a, T + 20, T + 12, T + 13); rnd_pair(a, T + 20, T + 14, T + 15)
        for r in range(4): a("v_mul_f32 v%d, v%d, v%d" % (T + 12 + r, T + 12 + r, ST + 1))
        rnd_pair(a, T + 20, T + 12, T + 13); rnd_pair(a, T + 20, T + 14, T + 15)
        for r in range(4): a("v_mul_f32 v%d, v%d, v%d" % (T + 12 + r, T + 12 + r, T + 8 + r))
        rnd_pair(a, T + 20, T + 12, T + 13); rnd_pair(a, T + 20, T + 14, T + 15)
        for r in range(4): a("v_mul_f32 v%d, v%d, v%d" % (T + 12 + r, T + 12 + r, o + r))
        rnd_pair(a, T + 20, T + 12, T + 13); rnd_pair(a, T + 20, T + 14, T + 15)
        for r in range(4): a("v_add_f32 v%d, v%d, v%d" % (T + 12 + r, T + 12 + r, T + 4 + r))
        a("v_cvt_pk_bf16_f32 v%d, v%d, v%d" % (X, T + 12, T + 13))
        a("v_cvt_pk_bf16_f32 v%d, v%d, v%d" % (X + 1, T + 14, T + 15))
        if ft < 4:
            a("buffer_store_dwordx2 %s, v13, s[28:31], s35 offen offset:%d" % (vr(X, 2), 32 * ft))
        else:
            a("buffer_store_dwordx2 %s, v13, s[28:31], s36 offen" % vr(X, 2))
    a.label("%s_fin" % name)
    stamp(a, 4)
    a("s_waitcnt vmcnt(0)")
    stamp(a, 5)
    a("s_branch %s_end" % name)
    a.label("%s_loader" % name)
    if "noprio" not in DBG: a("s_setprio 3")
    a("s_sub_u32 s3, s3, 4")
    a("v_lshlrev_b32 v14, 4, v2")
    a("v_lshrrev_b32 v3, 3, v2")
    a("v_and_b32 v4, 7, v2")
    a("v_lshlrev_b32 v4, 4, v4")
    a("s_mul_i32 s33, s24, 144")
    a("s_mul_i32 s34, s25, 80")
    a("s_lshl_b32 s35, s22, 7")
    a("s_add_u32 s35, s35, 0x%x" % YT)
    for n in range(3):
        if n == 2:
            a("s_cmp_ge_u32 s3, 2")
            a("s_cbranch_scc1 %s_noy" % name)
        a("s_add_u32 s36, s3, %d" % (4 * n))
        a("s_lshl_b32 s37, s36, 3")
        a("s_add_u32 s38, s37, s33")
        if n < 2: a("s_add_u32 s38, s38, s34")
        a("v_add_u32 v5, s38, v3")
        a("v_lshl_add_u32 v5, v5, 12, v4")
        a("s_lshl_b32 s36, s36, 10")
        a("s_add_u32 s36, s36, %d" % YOFF)
        a("s_mov_b32 m0, s36")
        a("s_nop 0")
        a("buffer_load_dwordx4 v5, s[12:15], s35 offen lds")
    a.label("%s_noy" % name)
    a("s_mul_i32 s26, s22, %d" % (36 * 8192))
    a("s_lshl_b32 s24, s3, 12")
    a("s_add_u32 s26, s26, s24")
    a("s_add_u32 s26, s26, 0x%x" % PIMG)
    a("s_mul_i32 s27, s23, %d" % (18 * 20480))
    a("s_mul_i32 s25, s3, 5120")
    a("s_add_u32 s27, s27, s25")
    a("s_add_u32 s27, s27, 0x%x" % WOT)
    a("s_add_u32 s25, s25, %d" % TREG)
    a("s_mov_b32 s33, 0")
    def issue():
        if "nodma" in DBG: return
        a("s_add_u32 s35, s33, s24")
        a("s_mov_b32 m0, s35")
        a("s_add_u32 s36, s33, s25")
        for n in range(4):
            a("buffer_load_dwordx4 v14, s[12:15], s26 offen offset:%d lds" % (n * 1024))
        a("s_mov_b32 m0, s36")
        a("s_add_u32 s37, s27, 4096")
        for n in range(4):
            a("buffer_load_dwordx4 v14, s[12:15], s27 offen offset:%d lds" % (n * 1024))
        a("s_add_u32 s36, s36, 4096")
        a("s_mov_b32 m0, s36")
        a("s_add_u32 s26, s26, 16384")
        a("buffer_load_dwordx4 v14, s[12:15], s37 offen lds")
        a("s_add_u32 s27, s27, 20480")
        a("s_add_u32 s33, s33, %d" % SLOT)
        a("s_cmp_eq_u32 s33, %d" % (R * SLOT))
        a("s_cselect_b32 s33, 0, s33")
    for s_ in range(R):
        issue()
    a("s_waitcnt vmcnt(%d)" % (9 * (R - 1)))
    a("s_barrier")
    a("s_waitcnt vmcnt(%d)" % (9 * (R - 2)))
    a("s_barrier")
    a("s_mov_b32 s34, 0")
    a.label("%s_lloop" % name)
    issue()
    a("s_waitcnt vmcnt(%d)" % (9 * (R - 2)))
    a("s_barrier")
    a("s_add_u32 s34, s34, 1")
    a("s_cmp_lt_u32 s34, %d" % (NST - R))
    a("s_cbranch_scc1 %s_lloop" % name)
    for k in range(NST - R, NST - 1):
        left = max(0, (NST - 1) - (k + 2))
        a("s_waitcnt vmcnt(%d)" % (9 * left))
        a("s_barrier")
    a.label("%s_end" % name)
    a("s_endpgm")
    return a.text(), kernel_desc(name, 256, 256), (name, 256, 512, R * SLOT + 10240)

import struct, math
def f32(x): return "0x%08x" % struct.unpack("<I", struct.pack("<f", x))[0]
GC0 = -2.0 * math.sqrt(2.0 / math.pi) * math.log2(math.e)
GC1 = GC0 * 0.044715

def emit_gelu_tile(a, c, dst, T):
    for h in (0, 2):
        a("v_pk_mul_f32 %s, %s, %s" % (vr(T + h, 2), vr(c + h, 2), vr(c + h, 2)))
    for h in (0, 2):
        a("v_mov_b32 v%d, s52" % (T + 4)) if False else None
        a("v_pk_fma_f32 %s, %s, s[54:55], v[%d:%d]" % (vr(T + h, 2), vr(T + h, 2), T + 4, T + 5))
    for h in (0, 2):
        a("v_pk_mul_f32 %s, %s, %s" % (vr(T + h, 2), vr(T + h, 2), vr(c + h, 2)))
    for r in range(4): a("v_exp_f32 v%d, v%d" % (T + r, T + r))
    for h in (0, 2):
        a("v_pk_add_f32 %s, %s, s[56:57]" % (vr(T + h, 2), vr(T + h, 2)))
    a("s_nop 0")
    for r in range(4): a("v_rcp_f32 v%d, v%d" % (T + r, T + r))
    a("s_nop 0")
    for h in (0, 2):
        a("v_pk_mul_f32 %s, %s, %s" % (vr(T + h, 2), vr(T + h, 2), vr(c + h, 2)))
    a("v_cvt_pk_bf16_f32 v%d, v%d, v%d" % (dst, T, T + 1))
    a("v_cvt_pk_bf16_f32 v%d, v%d, v%d" % (dst + 1, T + 2, T + 3))

def emit_xg_reduce(a, regs, t):
    for n, r in enumerate(regs): a("v_mov_b32 v%d, v%d" % (t + n, r))
    a("s_nop 1")
    for n, r in enumerate(regs): a("v_permlane32_swap_b32 v%d, v%d" % (r, t + n))
    a("s_nop 1")
    for n, r in enumerate(regs): a("v_add_f32 v%d, v%d, v%d" % (r, r, t + n))
    for n, r in enumerate(regs): a("v_mov_b32 v%d, v%d" % (t + n, r))
    a("s_nop 1")
    for n, r in enumerate(regs): a("v_permlane16_swap_b32 v%d, v%d" % (r, t + n))
    a("s_nop 1")
    for n, r in enumerate(regs): a("v_add_f32 v%d, v%d, v%d" % (r, r, t + n))

def emit_ln_finish(a, S, Q, N, M, RI, t):
    a("v_mul_f32 v%d, %s, v%d" % (M, f32(1.0 / N), S))
    a("v_mul_f32 v%d, %s, v%d" % (RI, f32(1.0 / N), Q))
    a("v_fma_f32 v%d, -v%d, v%d, v%d" % (RI, M, M, RI))
    a("v_max_f32 v%d, 0, v%d" % (RI, RI))
    rnd_pair(a, t, M, RI)
    a("v_add_f32 v%d, %s, v%d" % (RI, f32(1e-5), RI))
    a("v_cvt_pk_bf16_f32 v%d, v%d, v%d" % (t, RI, RI))
    a("v_lshlrev_b32 v%d, 16, v%d" % (RI, t))
    a("v_sqrt_f32 v%d, v%d" % (RI, RI))
    a("s_nop 0")
    a("v_cvt_pk_bf16_f32 v%d, v%d, v%d" % (t, RI, RI))
    a("v_lshlrev_b32 v%d, 16, v%d" % (RI, t))
    a("v_rcp_f32 v%d, v%d" % (RI, RI))
    a("s_nop 0")

def gen_k1(name="k1_kernel", R=4):
    a = Asm()
    SLOT = 34816; TREG = 16384; FS = 288; NST = 18
    kernel_begin(a, name)
    a("s_cmp_ge_u32 s2, 256")
    a("s_cbranch_scc1 %s_end" % name)
    a("s_load_dwordx2 s[4:5], s[0:1], 56")
    a("s_load_dwordx2 s[6:7], s[0:1], 104")
    a("s_load_dwordx2 s[16:17], s[0:1], 0")
    a("s_load_dwordx2 s[18:19], s[0:1], 96")
    wave_setup(a)
    a("s_and_b32 s20, s2, 7")
    a("s_lshr_b32 s21, s2, 3")
    a("s_and_b32 s22, s20, 1")
    a("s_lshl_b32 s22, s22, 3")
    a("s_and_b32 s23, s21, 7")
    a("s_add_u32 s22, s22, s23")
    a("s_lshr_b32 s23, s20, 1")
    a("s_lshl_b32 s23, s23, 2")
    a("s_lshr_b32 s24, s21, 3")
    a("s_add_u32 s23, s23, s24")
    a("s_waitcnt lgkmcnt(0)")
    srd(a, 8, 4, 576 * 4608 * 2)
    srd(a, 12, 6, WS_BYTES)
    srd(a, 28, 16, 2048 * 576 * 2)
    srd(a, 60, 18, 256)
    stamp_setup(a, 1); stamp(a, 0)
    a("s_cmp_ge_u32 s3, 4")
    a("s_cbranch_scc1 %s_loader" % name)
    ACC = 128; FB0 = 16; FB1 = 52
    vTa = [4, 5]; vTb = [6, 7]; vF = 8; vFh = 9
    bTa = [88, 89]; bTb = [90, 91]; bF = 92; bFh = 93
    Z2P = 200; T = 96
    a("s_lshr_b32 s24, s3, 1")
    a("s_and_b32 s25, s3, 1")
    a("v_and_b32 v3, 15, v2")
    a("v_lshrrev_b32 v10, 4, v2")
    a("v_lshrrev_b32 v11, 1, v3")
    a("v_xor_b32 v10, v10, v11")
    a("v_lshlrev_b32 v10, 4, v10")
    a("v_lshl_add_u32 v10, v3, 7, v10")
    a("s_lshl_b32 s26, s24, 13")
    a("v_add_u32 v10, s26, v10")
    a("s_lshl_b32 s26, s25, 12")
    a("v_add_u32 v%d, s26, v10" % bTa[0])
    a("s_xor_b32 s26, s26, 4096")
    a("v_add_u32 v%d, s26, v10" % bTb[0])
    a("v_xor_b32 v%d, 64, v%d" % (bTa[1], bTa[0]))
    a("v_xor_b32 v%d, 64, v%d" % (bTb[1], bTb[0]))
    a("v_lshrrev_b32 v10, 2, v2")
    a("v_mul_u32_u24 v10, %d, v10" % FS)
    a("v_and_b32 v11, 3, v2")
    a("v_lshl_add_u32 v10, v11, 3, v10")
    a("v_add_u32 v10, %d, v10" % TREG)
    a("s_mul_i32 s26, s25, 160")
    a("v_add_u32 v%d, s26, v10" % bF)
    a("v_add_u32 v%d, 128, v10" % bFh)
    for r, c in ((52, GC0), (53, GC0), (54, GC1), (55, GC1), (56, 1.0), (57, 1.0)):
        a("s_mov_b32 s%d, %s" % (r, f32(c)))
    a("v_mov_b32 v%d, s52" % (T + 4)); a("v_mov_b32 v%d, s52" % (T + 5))
    a("v_mov_b32 v%d, 0x3f803f80" % (T + 6))
    core = Core(a, ACC, FB0, FB1, FS, TREG, vTa, vTb, vF, vFh)
    for d, s_ in ((vTa[0], bTa[0]), (vTb[0], bTb[0]), (vTa[1], bTa[1]), (vTb[1], bTb[1]), (vF, bF), (vFh, bFh)):
        a("v_mov_b32 v%d, v%d" % (d, s_))
    a("s_mov_b32 s27, 0")
    a("s_barrier")
    stamp(a, 1)
    core.prime(0, core.reads(0, 0))
    def iteration(first, last, after_barrier=None):
        a("s_barrier")
        if after_barrier: after_barrier()
        a("s_add_u32 s34, s27, %d" % SLOT)
        a("s_cmp_eq_u32 s34, %d" % (R * SLOT))
        a("s_cselect_b32 s34, 0, s34")
        core.phase(0, core.reads(1, 1), first=first)
        if not last:
            pre = ["v_add_u32 v%d, s34, v%d" % (d, s_) for d, s_ in ((vTa[0], bTa[0]), (vF, bF), (vTb[0], bTb[0]), (vFh, bFh))]
            post = ["v_add_u32 v%d, s34, v%d" % (d, s_) for d, s_ in ((vTa[1], bTa[1]), (vTb[1], bTb[1]))]
            core.phase(1, core.reads(0, 0), pre=pre, extra=post)
        else:
            core.phase(1, [])
        a("s_mov_b32 s27, s34")
    def gpass(p, after_barrier=None):
        iteration(True, False, after_barrier)
        a("s_mov_b32 s33, 1")
        a.label("%s_cloop%d" % (name, p))
        iteration(False, False)
        a("s_add_u32 s33, s33, 1")
        a("s_cmp_lt_u32 s33, 8")
        a("s_cbranch_scc1 %s_cloop%d" % (name, p))
        iteration(False, p == 1)
    gpass(0)
    stamp(a, 2)
    a("s_nop 7")
    S = [104, 106, 108, 110]; Q = [105, 107, 109, 111]
    for tt in range(4):
        a("v_mov_b32 v%d, 0" % S[tt]); a("v_mov_b32 v%d, 0" % Q[tt])
    tiles = [(ft, tt) for ft in range(5) for tt in range(4 if ft < 4 else 2)]
    for (ft, tt) in tiles:
        n = ft * 4 + tt if ft < 4 else 16 + tt
        emit_gelu_tile(a, core.accr(ft, tt), Z2P + 2 * n, T)
        for d in range(2):
            a("v_dot2_f32_bf16 v%d, v%d, v%d, v%d" % (S[tt], Z2P + 2 * n + d, T + 6, S[tt]))
            a("v_dot2_f32_bf16 v%d, v%d, v%d, v%d" % (Q[tt], Z2P + 2 * n + d, Z2P + 2 * n + d, Q[tt]))
    a("s_nop 3")
    emit_xg_reduce(a, S + Q, 112)
    a("v_lshrrev_b32 v10, 4, v2")
    for g in range(1, 4):
        a("v_cmp_eq_u32 vcc, %d, v10" % g)
        a("s_nop 1")
        a("v_cndmask_b32 v%d, v%d, v%d, vcc" % (S[0], S[0], S[g]))
        a("v_cndmask_b32 v%d, v%d, v%d, vcc" % (Q[0], Q[0], Q[g]))
    a("s_lshl_b32 s33, s25, 1")
    a("v_add_u32 v11, s33, v10")
    a("v_and_b32 v11, 3, v11")
    a("v_lshl_add_u32 v11, v11, 4, v3")
    a("v_lshlrev_b32 v11, 8, v11")
    a("s_lshl_b32 s35, s22, 7")
    a("s_lshl_b32 s36, s24, 6")
    a("s_add_u32 s35, s35, s36")
    a("s_lshl_b32 s35, s35, 8")
    a("s_add_u32 s35, s35, 0x%x" % STATS2)
    a("s_lshl_b32 s36, s23, 1")
    a("s_add_u32 s36, s36, s25")
    a("s_lshl_b32 s36, s36, 3")
    a("s_add_u32 s36, s36, s35")
    a("buffer_store_dwordx2 v[%d:%d], v11, s[12:15], s36 offen sc1" % (S[0], Q[0]))
    a("s_waitcnt vmcnt(0)")
    stamp(a, 3)
    def signal():
        a("s_cmp_lg_u32 s3, 0")
        a("s_cbranch_scc1 %s_nosig" % name)
        a("v_mov_b32 v10, 1")
        a("s_lshl_b32 s33, s22, 2")
        a("v_mov_b32 v11, s33")
        a("s_mov_b64 exec, 1")
        a("buffer_atomic_add v10, v11, s[60:63], 0 offen sc1")
        a("s_mov_b64 exec, -1")
        a.label("%s_nosig" % name)
    gpass(1, signal)
    stamp(a, 4)
    a("s_nop 7")
    Z1P = 16
    a("s_lshl_b32 s36, s22, 4")
    a("s_add_u32 s36, s36, s23")
    a("s_lshl_b32 s36, s36, 2")
    a("s_add_u32 s36, s36, s3")
    a("s_mul_i32 s36, s36, 9216")
    a("s_add_u32 s36, s36, 0x%x" % Z1IMG)
    a("v_lshlrev_b32 v10, 4, v2")
    for (ft, tt) in tiles:
        n = ft * 4 + tt if ft < 4 else 16 + tt
        emit_gelu_tile(a, core.accr(ft, tt), Z1P + 2 * n, T)
        if n & 1:
            q = n >> 1
            if q in (4, 8): a("s_add_u32 s36, s36, 4096")
            a("buffer_store_dwordx4 %s, v10, s[12:15], s36 offen offset:%d" % (vr(Z1P + 4 * q), (q & 3) * 1024))
    stamp(a, 5)
    a("s_cmp_lg_u32 s3, 0")
    a("s_cbranch_scc1 %s_nopoll" % name)
    a("s_lshl_b32 s33, s22, 2")
    a("v_mov_b32 v11, s33")
    a.label("%s_poll" % name)
    a("buffer_load_dword v12, v11, s[60:63], 0 offen sc1")
    a("s_waitcnt vmcnt(0)")
    a("v_readfirstlane_b32 s33, v12")
    a("s_cmp_ge_u32 s33, 16")
    a("s_cbranch_scc1 %s_nopoll" % name)
    a("s_sleep 2")
    a("s_branch %s_poll" % name)
    a.label("%s_nopoll" % name)
    a("s_barrier")
    stamp(a, 6)
    a("v_lshrrev_b32 v10, 4, v2")
    a("v_lshlrev_b32 v11, 8, v3")
    a("v_lshl_add_u32 v11, v10, 6, v11")
    a("s_lshl_b32 s33, s25, 13")
    a("s_add_u32 s36, s35, s33")
    a("s_xor_b32 s33, s33, 8192")
    a("s_add_u32 s37, s35, s33")
    a("s_add_u32 s38, s36, 4096")
    a("s_add_u32 s39, s37, 4096")
    PB = 128
    for tt in range(4):
        for q in range(4):
            a("buffer_load_dwordx4 %s, v11, s[12:15], s%d offen offset:%d sc1" % (vr(PB + 16 * tt + 4 * q), (36, 38, 37, 39)[tt], 16 * q))
    a("s_waitcnt vmcnt(0)")
    for tt in range(4):
        b = PB + 16 * tt
        for st in (8, 4, 2):
            for q in range(0, st, 2):
                a("v_pk_add_f32 %s, %s, %s" % (vr(b + q, 2), vr(b + q, 2), vr(b + q + st, 2)))
    emit_xg_reduce(a, [PB + 16 * tt + e for tt in range(4) for e in range(2)], 112)
    MR = [104, 106, 108, 110]
    for tt in range(4):
        b = PB + 16 * tt
        emit_ln_finish(a, b, b + 1, 2304, b + 2, MR[tt], b + 4)
        a("v_mul_f32 v%d, -v%d, v%d" % (MR[tt] + 1, b + 2, MR[tt]))
    for (ft, tt) in tiles:
        n = ft * 4 + tt if ft < 4 else 16 + tt
        for d in range(2):
            z = Z2P + 2 * n + d
            a("v_lshlrev_b32 v%d, 16, v%d" % (T + 2 * d, z))
            a("v_and_b32 v%d, 0xffff0000, v%d" % (T + 2 * d + 1, z))
        for d in range(2):
            a("v_pk_fma_f32 %s, %s, %s, %s op_sel:[0,0,1] op_sel_hi:[1,0,1]" % (vr(T + 2 * d, 2), vr(T + 2 * d, 2), vr(MR[tt], 2), vr(MR[tt], 2)))
        for d in range(2):
            a("v_cvt_pk_bf16_f32 v%d, v%d, v%d" % (Z2P + 2 * n + d, T + 2 * d, T + 2 * d + 1))
    a("v_lshrrev_b32 v11, 2, v2"); a("v_and_b32 v11, 1, v11"); a("v_lshlrev_b32 v11, 4, v11")
    a("v_lshrrev_b32 v12, 3, v2"); a("v_and_b32 v12, 1, v12"); a("v_lshl_add_u32 v11, v12, 2, v11")
    a("v_and_b32 v12, 3, v2"); a("v_add_u32 v11, v11, v12")
    a("v_mul_u32_u24 v11, 288, v11")
    a("v_lshrrev_b32 v12, 1, v10"); a("v_lshl_add_u32 v11, v12, 4, v11")
    a("v_and_b32 v12, 1, v10")
    a("v_lshl_add_u32 v13, v12, 5, v11")
    a("v_mul_u32_u24 v12, 2304, v12")
    a("v_add_u32 v14, v11, v12")
    a("s_lshl_b32 s33, s23, 5")
    a("s_lshl_b32 s36, s22, 1")
    a("s_add_u32 s33, s33, s36")
    a("s_add_u32 s33, s33, s24")
    a("s_mul_i32 s33, s33, 18432")
    if ZIMG: a("s_add_u32 s33, s33, 0x%x" % ZIMG)
    a("s_mul_i32 s36, s25, 9216")
    a("s_add_u32 s37, s33, s36")
    a("s_xor_b32 s36, s36, 9216")
    a("s_add_u32 s38, s33, s36")
    a("s_add_u32 s39, s37, 128")
    a("s_mul_i32 s36, s25, 160")
    a("s_add_u32 s37, s37, s36")
    a("s_add_u32 s38, s38, s36")
    for pr in range(2):
        for tt in range(4):
            A = Z2P + 2 * ((2 * pr) * 4 + tt); B = Z2P + 2 * ((2 * pr + 1) * 4 + tt)
            a("v_mov_b32 v20, v%d" % A); a("v_mov_b32 v21, v%d" % (A + 1))
            a("v_mov_b32 v22, v%d" % B); a("v_mov_b32 v23, v%d" % (B + 1))
            a("s_nop 1")
            a("v_permlane16_swap_b32 v20, v22")
            a("v_permlane16_swap_b32 v21, v23")
            a("s_nop 1")
            a("buffer_store_dwordx4 v[20:23], v13, s[12:15], s%d offen offset:%d" % (37 if tt < 2 else 38, (tt & 1) * 2304 + 64 * pr))
            a("s_nop 1")
    A = Z2P + 32; B = Z2P + 34
    a("v_mov_b32 v20, v%d" % A); a("v_mov_b32 v21, v%d" % (A + 1))
    a("v_mov_b32 v22, v%d" % B); a("v_mov_b32 v23, v%d" % (B + 1))
    a("s_nop 1")
    a("v_permlane16_swap_b32 v20, v22")
    a("v_permlane16_swap_b32 v21, v23")
    a("s_nop 1")
    a("buffer_store_dwordx4 v[20:23], v14, s[12:15], s39 offen")
    stamp(a, 7)
    a("s_waitcnt vmcnt(0)")
    stamp(a, 8)
    a("s_branch %s_end" % name)
    a.label("%s_loader" % name)
    a("s_sub_u32 s3, s3, 4")
    X = 100
    def xr(rg, st): return X + (rg * 9 + st) * 4
    a("v_lshrrev_b32 v3, 3, v2")
    a("v_and_b32 v4, 7, v2")
    a("v_mul_u32_u24 v5, 1152, v3")
    a("v_lshl_add_u32 v5, v4, 4, v5")
    a("s_lshl_b32 s24, s22, 7")
    a("s_lshl_b32 s25, s3, 5")
    a("s_add_u32 s24, s24, s25")
    a("s_mul_i32 s25, s24, 1152")
    for rg in range(4):
        for st in range(9):
            a("buffer_load_dwordx4 %s, v5, s[28:31], s25 offen offset:%d" % (vr(xr(rg, st)), st * 128))
        if rg < 3: a("s_add_u32 s25, s25, 9216")
    for n in range(5):
        if n < 4:
            a("s_lshl_b32 s25, s3, 8")
            a("s_add_u32 s25, s25, %d" % (64 * n))
        else:
            a("s_lshl_b32 s25, s3, 5")
            a("s_add_u32 s25, s25, 1024")
        a("v_add_u32 v6, s25, v2")
        a("v_mul_u32_u24 v7, 3641, v6")
        a("v_lshrrev_b32 v7, 16, v7")
        a("v_mul_u32_u24 v8, 18, v7")
        a("v_sub_u32 v8, v6, v8")
        a("v_and_b32 v9, 35, v7")
        a("v_bfe_u32 v6, v7, 2, 2")
        a("v_lshl_add_u32 v9, v6, 3, v9")
        a("v_bfe_u32 v6, v7, 4, 1")
        a("v_lshl_add_u32 v9, v6, 2, v9")
        a("v_mul_u32_u24 v9, 9216, v9")
        a("v_lshl_add_u32 v%d, v8, 4, v9" % (10 + n))
        if 0 < n < 4: a("v_subrev_u32 v%d, %d, v%d" % (10 + n, n * 1024, 10 + n))
    a("s_mul_i32 s26, s23, 288")
    a("s_add_u32 s27, s26, 4608")
    a("s_lshl_b32 s24, s3, 12")
    a("s_lshl_b32 s25, s3, 9")
    a("s_add_u32 s25, s25, %d" % (TREG + 16384))
    a("s_mov_b32 s33, 0")
    def issueB(g):
        if "nodma" not in DBG:
            a("s_add_u32 s35, s33, s24")
            a("s_add_u32 s35, s35, %d" % TREG)
            a("s_mov_b32 m0, s35")
            a("s_add_u32 s36, s33, s25")
            for n in range(4):
                a("buffer_load_dwordx4 v%d, s[8:11], s27 offen offset:%d lds" % (10 + n, n * 1024))
            a("s_mov_b32 m0, s36")
            a("s_mov_b64 exec, 0xffffffff")
            a("buffer_load_dwordx4 v14, s[8:11], s27 offen lds")
            a("s_mov_b64 exec, -1")
        if g == 8: a("s_mov_b32 s27, s26")
        else: a("s_add_u32 s27, s27, %d" % (64 * 9216))
        a("s_add_u32 s33, s33, %d" % SLOT)
        a("s_cmp_eq_u32 s33, %d" % (R * SLOT))
        a("s_cselect_b32 s33, 0, s33")
    for g in range(R - 1): issueB(g)
    a("v_lshrrev_b32 v6, 4, v2")
    a("v_xor_b32 v7, v4, v6")
    a("v_lshlrev_b32 v7, 4, v7")
    a("v_lshl_add_u32 v7, v3, 7, v7")
    a("v_add_u32 v16, s24, v7")
    a("v_xor_b32 v17, 64, v16")
    a("v_mov_b32 v18, 0x3f803f80")
    SS = [20, 22, 24, 26]
    for rg in range(4):
        a("v_mov_b32 v%d, 0" % SS[rg]); a("v_mov_b32 v%d, 0" % (SS[rg] + 1))
    a("s_waitcnt vmcnt(%d)" % (5 * (R - 1)))
    stamp(a, 1)
    for st in range(9):
        for d in range(4):
            for rg in range(4):
                r = xr(rg, st) + d
                a("v_dot2_f32_bf16 v%d, v%d, v18, v%d" % (SS[rg], r, SS[rg]))
                a("v_dot2_f32_bf16 v%d, v%d, v%d, v%d" % (SS[rg] + 1, r, r, SS[rg] + 1))
    a("s_nop 3")
    for ctl in ("quad_perm:[1,0,3,2]", "quad_perm:[2,3,0,1]", "row_half_mirror"):
        for rg in range(4):
            for e in range(2):
                a("v_add_f32_dpp v%d, v%d, v%d %s row_mask:0xf bank_mask:0xf" % (SS[rg] + e, SS[rg] + e, SS[rg] + e, ctl))
        a("s_nop 1")
    for rg in range(4):
        emit_ln_finish(a, SS[rg], SS[rg] + 1, 576, 28 + 2 * rg, 29 + 2 * rg, 36)
        a("v_mov_b32 v%d, v%d" % (SS[rg], 29 + 2 * rg))
        a("v_mul_f32 v%d, -v%d, v%d" % (SS[rg] + 1, 28 + 2 * rg, 29 + 2 * rg))
    a("s_cmp_lg_u32 s23, 0")
    a("s_cbranch_scc1 %s_nost1" % name)
    a("s_lshl_b32 s35, s22, 7")
    a("s_lshl_b32 s36, s3, 5")
    a("s_add_u32 s35, s35, s36")
    a("s_lshl_b32 s35, s35, 3")
    a("s_add_u32 s35, s35, 0x%x" % STATS1)
    a("v_lshlrev_b32 v6, 3, v3")
    a("v_cmp_eq_u32 vcc, 0, v4")
    a("v_mov_b32 v7, 0x7ffffff0")
    a("v_cndmask_b32 v6, v7, v6, vcc")
    for rg in range(4):
        a("buffer_store_dwordx2 %s, v6, s[12:15], s35 offen offset:%d" % (vr(28 + 2 * rg, 2), 64 * rg))
    a.label("%s_nost1" % name)
    NX = 4 if True else 0
    a("s_mov_b32 s34, 0")
    def writeA(g):
        st = g % 9
        if g < 9:
            for rg in range(4):
                for d in range(4):
                    r = xr(rg, st) + d
                    t = 40 + 2 * ((rg * 4 + d) % 4)
                    a("v_lshlrev_b32 v%d, 16, v%d" % (t, r))
                    a("v_and_b32 v%d, 0xffff0000, v%d" % (t + 1, r))
                    a("v_pk_fma_f32 %s, %s, %s, %s op_sel:[0,0,1] op_sel_hi:[1,0,1]" % (vr(t, 2), vr(t, 2), vr(SS[rg], 2), vr(SS[rg], 2)))
                    a("v_cvt_pk_bf16_f32 v%d, v%d, v%d" % (r, t, t + 1))
        a("v_add_u32 v48, s34, v16")
        a("v_add_u32 v49, s34, v17")
        for rg in range(4):
            a("ds_write_b128 v%d, %s offset:%d" % (48 + (rg & 1), vr(xr(rg, st)), 1024 * rg))
        a("s_add_u32 s34, s34, %d" % SLOT)
        a("s_cmp_eq_u32 s34, %d" % (R * SLOT))
        a("s_cselect_b32 s34, 0, s34")
    writeA(0)
    stamp(a, 2)
    a("s_waitcnt vmcnt(%d) lgkmcnt(0)" % (5 * (R - 2)))
    a("s_barrier")
    issueB(R - 1)
    writeA(1)
    a("s_waitcnt vmcnt(%d) lgkmcnt(0)" % (5 * (R - 2)))
    a("s_barrier")
    writeA(2)
    a("s_waitcnt vmcnt(%d) lgkmcnt(0)" % (5 * (R - 3)))
    a("s_barrier")
    for k in range(1, NST - 1):
        g = k - 1 + R
        if g < NST:
            issueB(g)
            left = R - 3
        else:
            left = max(0, (NST - 1) - (k + 2))
        if k + 2 < NST: writeA(k + 2)
        a("s_waitcnt vmcnt(%d) lgkmcnt(0)" % (5 * left))
        a("s_barrier")
    a.label("%s_end" % name)
    a("s_endpgm")
    return a.text(), kernel_desc(name, 256, 256), (name, 256, 512, R * SLOT)

def gen_k0(name="k0_kernel"):
    a = Asm()
    NKV = 288; NWO = 180
    kernel_begin(a, name)
    a("s_cmp_ge_u32 s2, %d" % (NKV + NWO))
    a("s_cbranch_scc1 %s_end" % name)
    a("s_load_dwordx4 s[4:7], s[0:1], 8")
    a("s_load_dwordx2 s[16:17], s[0:1], 24")
    a("s_load_dwordx2 s[18:19], s[0:1], 80")
    a("s_load_dwordx2 s[20:21], s[0:1], 104")
    a("s_waitcnt lgkmcnt(0)")
    srd(a, 8, 4, 2048 * 576 * 2)
    srd(a, 12, 6, 2048 * 576 * 2)
    srd(a, 24, 16, 576 * 4 * 2)
    srd(a, 28, 18, 2304 * 576 * 2)
    srd(a, 32, 20, WS_BYTES)
    a("s_cmp_ge_u32 s2, %d" % NKV)
    a("s_cbranch_scc1 %s_wot" % name)
    a("s_mul_hi_u32 s36, s2, 0x%x" % ((2**32 + 8) // 9))
    a("s_mul_i32 s37, s36, 9")
    a("s_sub_u32 s37, s2, s37")
    a("v_and_b32 v1, 31, v0")
    a("v_lshrrev_b32 v2, 5, v0")
    a("s_lshl_b32 s38, s36, 6")
    a("v_lshl_add_u32 v3, v2, 3, s38")
    a("s_lshl_b32 s39, s37, 7")
    a("v_lshl_add_u32 v4, v1, 2, s39")
    a("v_mul_u32_u24 v5, 1152, v3")
    a("v_add_u32 v5, v5, v4")
    a("v_subrev_u32 v6, %d, v5" % (3 * 1152))
    a("v_cmp_gt_u32 vcc, 3, v3")
    a("v_mov_b32 v7, 0x7ffffff0")
    a("v_cndmask_b32 v8, v6, v7, vcc")
    for n in range(3):
        a("buffer_load_dword v%d, v8, s[8:11], 0 offen offset:%d" % (16 + n, 1152 * n))
    a("v_add_u32 v9, %d, v5" % (3456))
    a("v_add_u32 v10, %d, v5" % (6912))
    for n in range(8):
        base, off = ((5, 1152 * n) if n < 3 else (9, 1152 * (n - 3)) if n < 6 else (10, 1152 * (n - 6)))
        a("buffer_load_dword v%d, v%d, s[8:11], 0 offen offset:%d" % (19 + n, base, off))
        a("buffer_load_dword v%d, v%d, s[12:15], 0 offen offset:%d" % (32 + n, base, off))
    a("v_lshlrev_b32 v11, 2, v4")
    a("buffer_load_dwordx4 v[44:47], v11, s[24:27], 0 offen")
    a("s_waitcnt vmcnt(0)")
    for ch in range(2):
        for q in range(2):
            a("v_lshlrev_b32 v%d, 16, v%d" % (48 + 4 * ch + 2 * q, 44 + 2 * ch + q))
            a("v_and_b32 v%d, 0xffff0000, v%d" % (49 + 4 * ch + 2 * q, 44 + 2 * ch + q))
    for n in range(11):
        a("v_lshlrev_b32 v%d, 16, v%d" % (60 + n, 16 + n))
        a("v_and_b32 v%d, 0xffff0000, v%d" % (72 + n, 16 + n))
    OUT = 100
    for e in range(8):
        A0, A1, P0, P1, TM = 90, 91, 92, 93, 94
        a("v_mul_f32 v%d, v%d, v%d" % (A0, 60 + e, 48 + 3)); a("v_mul_f32 v%d, v%d, v%d" % (A1, 72 + e, 52 + 3))
        rnd_pair(a, TM, A0, A1)
        for t in range(1, 4):
            a("v_mul_f32 v%d, v%d, v%d" % (P0, 60 + e + t, 48 + 3 - t)); a("v_mul_f32 v%d, v%d, v%d" % (P1, 72 + e + t, 52 + 3 - t))
            rnd_pair(a, TM, P0, P1)
            a("v_add_f32 v%d, v%d, v%d" % (A0, A0, P0)); a("v_add_f32 v%d, v%d, v%d" % (A1, A1, P1))
            rnd_pair(a, TM, A0, A1)
        a("v_lshlrev_b32 v%d, 16, v%d" % (P0, 32 + e)); a("v_and_b32 v%d, 0xffff0000, v%d" % (P1, 32 + e))
        a("v_mul_f32 v%d, v%d, v%d" % (OUT + e, A0, P0)); a("v_mul_f32 v%d, v%d, v%d" % (OUT + 8 + e, A1, P1))
    for ch in range(2):
        for q in range(4):
            a("v_cvt_pk_bf16_f32 v%d, v%d, v%d" % (120 + 4 * ch + q, OUT + 8 * ch + 7 - 2 * q, OUT + 8 * ch + 6 - 2 * q))
    a("v_lshlrev_b32 v12, 11, v4")
    a("v_sub_u32 v13, 2040, v3")
    a("v_lshl_add_u32 v12, v13, 1, v12")
    a("v_add_u32 v13, 4096, v12")
    a("s_mov_b32 s40, 0x%x" % KVT)
    a("buffer_store_dwordx4 v[120:123], v12, s[32:35], s40 offen")
    a("buffer_store_dwordx4 v[124:127], v13, s[32:35], s40 offen")
    a("s_branch %s_end" % name)
    a.label("%s_wot" % name)
    a("s_sub_u32 s36, s2, %d" % NKV)
    a("s_lshl_b32 s36, s36, 10")
    a("s_mov_b32 s37, 0x%x" % ((2**32 + 9) // 10))
    a("s_mov_b32 s38, 0x%x" % ((2**32 + 17) // 18))
    a("s_mov_b32 s40, 0x%x" % WOT)
    for n in range(4):
        a("v_add_u32 v1, s36, v0")
        if n: a("v_add_u32 v1, %d, v1" % (256 * n))
        a("v_mul_hi_u32 v2, v1, s37")
        a("v_mul_u32_u24 v3, 10, v2")
        a("v_sub_u32 v3, v1, v3")
        a("v_lshrrev_b32 v4, 7, v2")
        a("v_and_b32 v5, 127, v2")
        a("v_mul_hi_u32 v6, v4, s38")
        a("v_mul_u32_u24 v7, 18, v6")
        a("v_sub_u32 v7, v4, v7")
        a("v_and_b32 v8, 0x63, v5")
        a("v_bfe_u32 v9, v5, 2, 2")
        a("v_lshl_add_u32 v8, v9, 3, v8")
        a("v_bfe_u32 v9, v5, 4, 1")
        a("v_lshl_add_u32 v8, v9, 2, v8")
        a("v_lshl_add_u32 v8, v7, 7, v8")
        a("v_mul_u32_u24 v8, 1152, v8")
        a("v_lshrrev_b32 v9, 1, v6")
        a("v_mul_u32_u24 v9, 288, v9")
        a("v_add_u32 v8, v8, v9")
        a("v_lshl_add_u32 v8, v3, 4, v8")
        a("v_and_b32 v9, 1, v6")
        a("v_mul_u32_u24 v9, 160, v9")
        a("v_cmp_gt_u32 vcc, 8, v3")
        a("s_nop 1")
        a("v_cndmask_b32 v9, 0, v9, vcc")
        a("v_add_u32 v8, v8, v9")
        a("buffer_load_dwordx4 v[%d:%d], v8, s[28:31], 0 offen" % (16 + 4 * n, 19 + 4 * n))
        a("v_lshlrev_b32 v%d, 4, v1" % (10 + n))
    for n in range(4):
        a("s_waitcnt vmcnt(%d)" % (3 - n + n))
    a("s_waitcnt vmcnt(0)")
    for n in range(4):
        a("buffer_store_dwordx4 v[%d:%d], v%d, s[32:35], s40 offen" % (16 + 4 * n, 19 + 4 * n, 10 + n))
    a.label("%s_end" % name)
    a("s_endpgm")
    return a.text(), kernel_desc(name, 128, 128), (name, NKV + NWO, 256, 0)

def gen_kc(name="kc_kernel"):
    a = Asm()
    EB = 0; OB = 4160 + 64; UB = 8448
    LDSB = UB + 4096 + 512
    kernel_begin(a, name)
    a("s_cmp_ge_u32 s2, 576")
    a("s_cbranch_scc1 %s_end" % name)
    a("s_mov_b32 s60, 0")
    a("s_load_dwordx4 s[4:7], s[0:1], 32")
    a("s_load_dwordx2 s[20:21], s[0:1], 104")
    a("s_waitcnt lgkmcnt(0)")
    srd(a, 8, 4, 576 * 2048 * 2)
    srd(a, 12, 6, 576 * 2)
    srd(a, 32, 20, WS_BYTES)
    a("s_lshl_b32 s36, s2, 12")
    a("v_lshlrev_b32 v1, 4, v0")
    for n in range(4):
        a("buffer_load_dwordx4 v[%d:%d], v1, s[8:11], s36 offen offset:%d" % (16 + 5 * n + (n & 1) * 0, 19 + 5 * n + (n & 1) * 0, 1024 * n)) if False else None
    H = [16, 24, 32, 40]
    for n in range(4):
        a("buffer_load_dwordx4 v[%d:%d], v1, s[8:11], s36 offen offset:%d" % (H[n], H[n] + 3, 1024 * n))
    a("v_add_u32 v2, 16, v1")
    for n in range(4):
        a("buffer_load_dword v%d, v2, s[8:11], s36 offen offset:%d" % (H[n] + 4, 1024 * n))
    a("s_add_u32 s37, s36, 0x%x" % KVT)
    a("s_add_u32 s61, s60, %d" % UB)
    a("s_mov_b32 m0, s61")
    a("v_add_u32 v12, s60, v1")
    for n in range(4):
        a("buffer_load_dwordx4 v1, s[32:35], s37 offen offset:%d lds" % (1024 * n))
    a("s_lshl_b32 s38, s2, 1")
    a("v_mov_b32 v3, s38")
    a("buffer_load_ushort v4, v3, s[12:15], 0 offen")
    a("v_mov_b32 v8, 0"); a("v_mov_b32 v9, 0"); a("v_mov_b32 v10, 0"); a("v_mov_b32 v11, 0")
    a("v_lshlrev_b32 v5, 3, v0")
    a("v_add_u32 v5, s60, v5")
    a("ds_write_b64 v5, v[8:9] offset:%d" % (UB + 4096))
    a("s_mov_b64 exec, 3")
    a("ds_write_b128 v12, v[8:11] offset:%d" % EB)
    a("ds_write_b128 v12, v[8:11] offset:%d" % OB)
    a("s_mov_b64 exec, -1")
    a("s_waitcnt vmcnt(0) lgkmcnt(0)")
    for n in range(4):
        a("ds_write_b128 v12, v[%d:%d] offset:%d" % (H[n], H[n] + 3, EB + 32 + 1024 * n))
        for q in range(4):
            a("v_alignbit_b32 v%d, v%d, v%d, 16" % (48 + q, H[n] + q + 1, H[n] + q))
        a("ds_write_b128 v12, v[48:51] offset:%d" % (OB + 32 + 1024 * n))
        a("s_nop 1")
    a("s_mov_b64 exec, 1")
    a("v_mov_b32 v5, s60")
    a("ds_write_b16 v5, v%d offset:%d" % (H[0], OB + 30))
    a("s_mov_b64 exec, -1")
    a("v_and_b32 v5, 15, v0")
    a("v_lshrrev_b32 v6, 4, v0")
    a("v_lshl_add_u32 v7, v6, 3, v5")
    a("v_and_b32 v8, 1, v5")
    a("v_add_u32 v7, v7, v8")
    a("v_lshlrev_b32 v7, 1, v7")
    a("v_cmp_eq_u32 vcc, 0, v8")
    a("v_mov_b32 v9, %d" % EB); a("v_mov_b32 v10, %d" % OB)
    a("v_cndmask_b32 v9, v9, v10, vcc")
    a("v_add_u32 v7, v7, v9")
    a("v_add_u32 v7, s60, v7")
    AA = 52
    for jj in range(8):
        a("v_add_u32 v%d, %d, v7" % (AA + jj, 512 * jj))
    a("v_lshlrev_b32 v9, 4, v6")
    a("v_lshlrev_b32 v10, 5, v5")
    a("v_sub_u32 v9, v9, v10")
    a("v_add_u32 v60, %d, v9" % (UB + 480))
    a("v_add_u32 v60, s60, v60")
    a("s_waitcnt lgkmcnt(0)")
    ACC = 64; AF = [96, 160]; BF = [128, 192]
    trk = LdsTracker(a)
    def reads(k0, buf):
        L = []
        for q in range(8):
            r = BF[buf] + 4 * q
            L.append(("ds_read_b128 %s, v60 offset:%d" % (vr(r), 3584 - 512 * q + 64 * k0), range(r, r + 4)))
            r = AF[buf] + 4 * q
            L.append(("ds_read2_b32 %s, v%d offset0:%d offset1:%d" % (vr(r, 2), AA + q, 16 * k0, 16 * k0 + 1), range(r, r + 2)))
            L.append(("ds_read2_b32 %s, v%d offset0:%d offset1:%d" % (vr(r + 2, 2), AA + q, 16 * k0 + 2, 16 * k0 + 3), range(r + 2, r + 4)))
        return L
    for t, r in reads(0, 0):
        a(t); trk.issue(r)
        if len(trk.out) >= 12: trk.drain()
    for k0 in range(8):
        buf = k0 & 1
        nxt = reads(k0 + 1, 1 - buf) if k0 < 7 else []
        ms = sorted([(max(jj, n - jj), n, jj) for n in range(8) for jj in range(n + 1)])
        for (_, n, jj) in ms:
            A = AF[buf] + 4 * jj; B = BF[buf] + 4 * (n - jj); c = ACC + 4 * n
            trk.need(list(range(A, A + 4)) + list(range(B, B + 4)))
            first = (k0 == 0 and jj == [m[2] for m in ms if m[1] == n][0])
            a("v_mfma_f32_16x16x32_bf16 %s, %s, %s, %s" % (vr(c), vr(A), vr(B), "0" if first else vr(c)))
            if nxt and len(trk.out) < 14:
                t, r = nxt.pop(0); a(t); trk.issue(r)
        for t, r in nxt:
            if len(trk.out) >= 14: trk.drain()
            a(t); trk.issue(r)
    a("v_lshlrev_b32 v9, 5, v5")
    a("v_lshl_add_u32 v9, v6, 3, v9")
    a("v_sub_u32 v10, %d, v9" % (UB + 4088 - 3584))
    a("v_add_u32 v10, s60, v10")
    for n in range(8):
        a("ds_read_b64 %s, v10 offset:%d" % (vr(96 + 2 * n, 2), 3584 - 512 * n))
    a("v_lshlrev_b32 v4, 16, v4")
    a("s_add_u32 s37, s36, 0x%x" % YT)
    a("s_waitcnt lgkmcnt(0)")
    a("s_nop 4")
    for n in range(8):
        c = ACC + 4 * n; U = 96 + 2 * n; T = 120
        a("v_and_b32 v%d, 0xffff0000, v%d" % (T + 0, U + 1)); a("v_lshlrev_b32 v%d, 16, v%d" % (T + 1, U + 1))
        a("v_and_b32 v%d, 0xffff0000, v%d" % (T + 2, U)); a("v_lshlrev_b32 v%d, 16, v%d" % (T + 3, U))
        for r in range(4): a("v_mul_f32 v%d, v%d, v4" % (T + r, T + r))
        rnd_pair(a, T + 4, T, T + 1); rnd_pair(a, T + 4, T + 2, T + 3)
        rnd_pair(a, T + 4, c, c + 1); rnd_pair(a, T + 4, c + 2, c + 3)
        for r in range(4): a("v_add_f32 v%d, v%d, v%d" % (c + r, c + r, T + r))
        a("v_cvt_pk_bf16_f32 v%d, v%d, v%d" % (U, c, c + 1))
        a("v_cvt_pk_bf16_f32 v%d, v%d, v%d" % (U + 1, c + 2, c + 3))
        a("buffer_store_dwordx2 %s, v9, s[32:35], s37 offen offset:%d" % (vr(U, 2), 512 * n))
    a.label("%s_end" % name)
    a("s_endpgm")
    return a.text(), kernel_desc(name, 224, 224), (name, 576, 64, LDSB)

if __name__ == "__main__":
    which = sys.argv[1]
    out = sys.argv[2]
    if len(sys.argv) > 3: DBG.update(sys.argv[3].split(","))
    ks = []
    for w in which.split(","):
        ks.append(globals()["gen_" + w]())
    open(out, "w").write(assemble_file([k[2] for k in ks], "".join(k[0] for k in ks), [k[1] for k in ks]))
```

```python
import sys, struct, math
from asmgen import *
import gen as G
from gen import (ZIMG, Z1IMG, PIMG, WOT, KVT, YT, STATS2, STATS1, WS_BYTES, STAMPS, DBG, LdsTracker, vr, stamp, stamp_setup,
                 wave_setup, rnd_pair, f32, GC0, GC1, emit_xg_reduce, emit_ln_finish)

class VmTracker:
    def __init__(self, a):
        self.a = a; self.q = []
    def issue(self, name, n):
        self.q.append((name, n))
    def count_after(self, names):
        last = -1
        for i, (nm, _) in enumerate(self.q):
            if nm in names: last = i
        if last < 0: return None
        rem = sum(n for _, n in self.q[last + 1:])
        self.q = self.q[last + 1:]
        return rem
    def wait(self, names, extra=""):
        rem = self.count_after(names)
        if rem is None:
            if extra: self.a("s_waitcnt " + extra)
            return
        assert rem <= 63
        self.a(("s_waitcnt vmcnt(%d) " % rem) + extra)

def tile_ij(a):
    a("s_and_b32 s20, s2, 7")
    a("s_lshr_b32 s21, s2, 3")
    a("s_and_b32 s22, s20, 1")
    a("s_lshl_b32 s22, s22, 3")
    a("s_and_b32 s23, s21, 7")
    a("s_add_u32 s22, s22, s23")
    a("s_lshr_b32 s23, s20, 1")
    a("s_lshl_b32 s23, s23, 2")
    a("s_lshr_b32 s24, s21, 3")
    a("s_add_u32 s23, s23, s24")

TILES = [(ft, tt) for ft in range(5) for tt in range(4 if ft < 4 else 2)]
def tidx(ft, tt): return ft * 4 + tt if ft < 4 else 16 + tt

def emit_fold_gelu(a, items, T):
    n = len(items)
    def each(f):
        for q, it in enumerate(items): f(q, it)
    KP = G_KP
    def s1(q, it):
        c, cs, mr, dst = it
        for h in (0, 2):
            a("v_pk_fma_f32 %s, %s, %s, %s op_sel_hi:[1,0,1]" % (vr(c + h, 2), vr(cs + h, 2), vr(mr, 2), vr(c + h, 2)))
    def s2(q, it):
        c, cs, mr, dst = it
        for h in (0, 2):
            a("v_pk_mul_f32 %s, %s, %s op_sel:[0,1] op_sel_hi:[1,1]" % (vr(c + h, 2), vr(c + h, 2), vr(mr, 2)))
    def s3(q, it):
        c = it[0]; t = T + 4 * q
        for h in (0, 2): a("v_pk_mul_f32 %s, %s, %s" % (vr(t + h, 2), vr(c + h, 2), vr(c + h, 2)))
    def s4(q, it):
        t = T + 4 * q
        for h in (0, 2): a("v_pk_fma_f32 %s, %s, s[54:55], %s" % (vr(t + h, 2), vr(t + h, 2), vr(KP, 2)))
    def s5(q, it):
        c = it[0]; t = T + 4 * q
        for h in (0, 2): a("v_pk_mul_f32 %s, %s, %s" % (vr(t + h, 2), vr(t + h, 2), vr(c + h, 2)))
    def s6(q, it):
        t = T + 4 * q
        for r in range(4): a("v_exp_f32 v%d, v%d" % (t + r, t + r))
    def s7(q, it):
        t = T + 4 * q
        for h in (0, 2): a("v_pk_add_f32 %s, %s, s[56:57]" % (vr(t + h, 2), vr(t + h, 2)))
    def s8(q, it):
        t = T + 4 * q
        for r in range(4): a("v_rcp_f32 v%d, v%d" % (t + r, t + r))
    def s9(q, it):
        c = it[0]; t = T + 4 * q
        for h in (0, 2): a("v_pk_mul_f32 %s, %s, %s" % (vr(t + h, 2), vr(t + h, 2), vr(c + h, 2)))
    def s10(q, it):
        t = T + 4 * q; dst = it[3]
        a("v_cvt_pk_bf16_f32 v%d, v%d, v%d" % (dst, t, t + 1))
        a("v_cvt_pk_bf16_f32 v%d, v%d, v%d" % (dst + 1, t + 2, t + 3))
    for f in (s1, s2, s3, s4, s5, s6):
        each(f)
    if n == 1: a("s_nop 0")
    each(s7); each(s8)
    if n == 1: a("s_nop 0")
    each(s9); each(s10)

G_KP = 14

def gelu_consts(a):
    for r, c in ((54, GC1), (55, GC1), (56, 1.0), (57, 1.0)):
        a("s_mov_b32 s%d, %s" % (r, f32(c)))
    a("v_mov_b32 v%d, %s" % (G_KP, f32(GC0))); a("v_mov_b32 v%d, %s" % (G_KP + 1, f32(GC0)))

def seg_end(a, name):
    if "nowarm" in DBG: return
    a("s_cmp_eq_u32 s99, 1")
    a("s_cbranch_scc1 %s_warmret" % name)

def emit_prep(a, name):
    a("s_mul_i32 s36, s42, 720")
    a("s_mov_b32 s37, 0x%x" % ((2**32 + 9) // 10))
    a("s_mov_b32 s38, 0x%x" % ((2**32 + 17) // 18))
    a("s_mov_b32 s40, 0x%x" % WOT)
    WR = 128
    for n in range(3):
        a("v_add_u32 v16, s36, v0")
        if n: a("v_add_u32 v16, %d, v16" % (256 * n))
        a("v_mul_hi_u32 v17, v16, s37")
        a("v_mul_u32_u24 v18, 10, v17")
        a("v_sub_u32 v18, v16, v18")
        a("v_lshrrev_b32 v19, 7, v17")
        a("v_and_b32 v20, 127, v17")
        a("v_mul_hi_u32 v21, v19, s38")
        a("v_mul_u32_u24 v22, 18, v21")
        a("v_sub_u32 v22, v19, v22")
        a("v_and_b32 v23, 0x63, v20")
        a("v_bfe_u32 v24, v20, 2, 2")
        a("v_lshl_add_u32 v23, v24, 3, v23")
        a("v_bfe_u32 v24, v20, 4, 1")
        a("v_lshl_add_u32 v23, v24, 2, v23")
        a("v_lshl_add_u32 v23, v22, 7, v23")
        a("v_mul_u32_u24 v23, 1152, v23")
        a("v_lshrrev_b32 v24, 1, v21")
        a("v_mul_u32_u24 v24, 288, v24")
        a("v_add_u32 v23, v23, v24")
        a("v_lshl_add_u32 v23, v18, 4, v23")
        a("v_and_b32 v24, 1, v21")
        a("v_mul_u32_u24 v24, 160, v24")
        a("v_cmp_gt_u32 vcc, 8, v18")
        a("s_nop 1")
        a("v_cndmask_b32 v24, 0, v24, vcc")
        a("v_add_u32 v23, v23, v24")
        a("v_lshlrev_b32 v%d, 4, v16" % (WR + 12 + n))
        if n == 2:
            a("v_cmp_gt_u32 vcc, 208, v0")
            a("v_mov_b32 v24, 0x7ffffff0")
            a("s_nop 0")
            a("v_cndmask_b32 v23, v24, v23, vcc")
            a("v_cndmask_b32 v%d, v24, v%d, vcc" % (WR + 12 + n, WR + 12 + n))
        a("buffer_load_dwordx4 %s, v23, s[76:79], 0 offen" % vr(WR + 4 * n))
    a("s_mov_b32 s41, s42")
    a.label("%s_kvloop" % name)
    a("s_mul_hi_u32 s36, s41, 0x%x" % ((2**32 + 8) // 9))
    a("s_mul_i32 s37, s36, 9")
    a("s_sub_u32 s37, s41, s37")
    a("v_and_b32 v1, 31, v0")
    a("v_lshrrev_b32 v10, 5, v0")
    a("s_lshl_b32 s38, s36, 6")
    a("v_lshl_add_u32 v3, v10, 3, s38")
    a("s_lshl_b32 s39, s37, 7")
    a("v_lshl_add_u32 v4, v1, 2, s39")
    a("v_mul_u32_u24 v5, 1152, v3")
    a("v_add_u32 v5, v5, v4")
    a("v_subrev_u32 v6, %d, v5" % (3 * 1152))
    a("v_cmp_gt_u32 vcc, 3, v3")
    a("v_mov_b32 v7, 0x7ffffff0")
    a("s_nop 0")
    a("v_cndmask_b32 v8, v6, v7, vcc")
    for n in range(3):
        a("buffer_load_dword v%d, v8, s[64:67], 0 offen offset:%d" % (16 + n, 1152 * n))
    a("v_add_u32 v9, %d, v5" % 3456)
    a("v_add_u32 v10, %d, v5" % 6912)
    for n in range(8):
        base, off = ((5, 1152 * n) if n < 3 else (9, 1152 * (n - 3)) if n < 6 else (10, 1152 * (n - 6)))
        a("buffer_load_dword v%d, v%d, s[64:67], 0 offen offset:%d" % (19 + n, base, off))
        a("buffer_load_dword v%d, v%d, s[68:71], 0 offen offset:%d" % (32 + n, base, off))
    a("v_lshlrev_b32 v11, 2, v4")
    a("buffer_load_dwordx4 v[44:47], v11, s[72:75], 0 offen")
    a("s_waitcnt vmcnt(0)")
    a("s_cmp_lg_u32 s41, s42")
    a("s_cbranch_scc1 %s_nowot" % name)
    for n in range(3):
        a("buffer_store_dwordx4 %s, v%d, s[12:15], s40 offen %s" % (vr(WR + 4 * n), WR + 12 + n, WT))
    a.label("%s_nowot" % name)
    for ch in range(2):
        for q in range(2):
            a("v_lshlrev_b32 v%d, 16, v%d" % (48 + 4 * ch + 2 * q, 44 + 2 * ch + q))
            a("v_and_b32 v%d, 0xffff0000, v%d" % (49 + 4 * ch + 2 * q, 44 + 2 * ch + q))
    seg_end(a, name)
    a.label("%s_seg3p" % name)
    for n in range(11):
        a("v_lshlrev_b32 v%d, 16, v%d" % (60 + n, 16 + n))
        a("v_and_b32 v%d, 0xffff0000, v%d" % (72 + n, 16 + n))
    OUT = 100
    for e0 in range(0, 8, 2):
        es = (e0, e0 + 1)
        R_ = {e: (84 + 6 * (e & 1)) for e in es}
        for e in es:
            A0 = R_[e]
            a("v_mul_f32 v%d, v%d, v%d" % (A0, 60 + e, 51)); a("v_mul_f32 v%d, v%d, v%d" % (A0 + 1, 72 + e, 55))
        for e in es: rnd_pair(a, R_[e] + 4, R_[e], R_[e] + 1)
        for t in range(1, 4):
            for e in es:
                A0 = R_[e]
                a("v_mul_f32 v%d, v%d, v%d" % (A0 + 2, 60 + e + t, 51 - t)); a("v_mul_f32 v%d, v%d, v%d" % (A0 + 3, 72 + e + t, 55 - t))
            for e in es: rnd_pair(a, R_[e] + 4, R_[e] + 2, R_[e] + 3)
            for e in es:
                A0 = R_[e]
                a("v_add_f32 v%d, v%d, v%d" % (A0, A0, A0 + 2)); a("v_add_f32 v%d, v%d, v%d" % (A0 + 1, A0 + 1, A0 + 3))
            for e in es: rnd_pair(a, R_[e] + 4, R_[e], R_[e] + 1)
        for e in es:
            A0 = R_[e]
            a("v_lshlrev_b32 v%d, 16, v%d" % (A0 + 2, 32 + e)); a("v_and_b32 v%d, 0xffff0000, v%d" % (A0 + 3, 32 + e))
            a("v_mul_f32 v%d, v%d, v%d" % (OUT + e, A0, A0 + 2)); a("v_mul_f32 v%d, v%d, v%d" % (OUT + 8 + e, A0 + 1, A0 + 3))
    for ch in range(2):
        for q in range(4):
            a("v_cvt_pk_bf16_f32 v%d, v%d, v%d" % (120 + 4 * ch + q, OUT + 8 * ch + 7 - 2 * q, OUT + 8 * ch + 6 - 2 * q))
    a("v_lshlrev_b32 v12, 11, v4")
    a("v_sub_u32 v13, 2040, v3")
    a("v_lshl_add_u32 v12, v13, 1, v12")
    a("v_add_u32 v13, 4096, v12")
    a("s_mov_b32 s39, 0x%x" % KVT)
    a("buffer_store_dwordx4 v[120:123], v12, s[12:15], s39 offen %s" % WT)
    a("buffer_store_dwordx4 v[124:127], v13, s[12:15], s39 offen %s" % WT)
    seg_end(a, name)
    a("s_add_u32 s41, s41, 256")
    a("s_cmp_lt_u32 s41, 288")
    a("s_cbranch_scc1 %s_kvloop" % name)

SPIN_MAX = 20000
NFILL = 1
WT = ""

def gen_k1c(name="k1_kernel"):
    a = Asm()
    TS = 16384; NT = 3; TB0 = 4096; FB_ = TB0 + NT * TS; FSL = 18432; NF = 6; FS = 288; NK = 18
    LDSB = FB_ + NF * FSL; RST = 0; CSO = 1024
    kernel_begin(a, name)
    a("s_cmp_ge_u32 s2, 256")
    a("s_cbranch_scc1 %s_end" % name)
    a("s_load_dwordx2 s[4:5], s[0:1], 56")
    a("s_load_dwordx2 s[6:7], s[0:1], 104")
    a("s_load_dwordx8 s[80:87], s[0:1], 0")
    a("s_load_dwordx2 s[18:19], s[0:1], 96")
    a("s_load_dwordx2 s[88:89], s[0:1], 80")
    a("s_load_dwordx2 s[90:91], s[0:1], 64")
    wave_setup(a)
    a("s_and_b32 s20, s2, 7")
    a("s_lshr_b32 s21, s2, 3")
    a("s_and_b32 s22, s20, 1")
    a("s_lshl_b32 s22, s22, 3")
    a("s_and_b32 s23, s21, 7")
    a("s_add_u32 s22, s22, s23")
    a("s_lshr_b32 s21, s21, 3")
    a("s_lshr_b32 s23, s20, 1")
    a("s_lshl_b32 s23, s23, 1")
    a("s_and_b32 s24, s21, 1")
    a("s_add_u32 s23, s23, s24")
    a("s_lshl_b32 s23, s23, 1")
    a("s_lshr_b32 s21, s21, 1")
    a("s_waitcnt lgkmcnt(0)")
    srd(a, 8, 4, 576 * 4608 * 2)
    srd(a, 12, 6, WS_BYTES)
    srd(a, 28, 80, 2048 * 576 * 2)
    srd(a, 60, 18, 256)
    srd(a, 64, 82, 2048 * 576 * 2)
    srd(a, 68, 84, 2048 * 576 * 2)
    srd(a, 72, 86, 576 * 8)
    srd(a, 76, 88, 2304 * 576 * 2)
    srd(a, 92, 90, 2048 * 2048 * 2)
    stamp_setup(a, 1); stamp(a, 0)
    a("s_cmp_ge_u32 s3, 4")
    a("s_cbranch_scc1 %s_loader" % name)
    def gran_addr():
        a("v_lshrrev_b32 v10, 4, v2")
        a("s_lshl_b32 s33, s25, 1")
        a("v_add_u32 v11, s33, v10")
        a("v_and_b32 v11, 3, v11")
        a("v_lshl_add_u32 v11, v11, 4, v3")
        a("v_lshlrev_b32 v94, 8, v11")
        a("s_lshl_b32 s59, s22, 7")
        a("s_lshl_b32 s36, s24, 6")
        a("s_add_u32 s59, s59, s36")
        a("s_lshl_b32 s59, s59, 8")
        a("s_add_u32 s59, s59, 0x%x" % STATS2)
        a("s_lshl_b32 s36, s23, 1")
        a("s_add_u32 s36, s36, s25")
        a("s_lshl_b32 s36, s36, 3")
        a("s_add_u32 s58, s36, s59")
    a("s_lshr_b32 s24, s3, 1")
    a("s_and_b32 s25, s3, 1")
    a("v_and_b32 v3, 15, v2")
    a("s_cmp_lg_u32 s21, 0")
    a("s_cbranch_scc1 %s_noclr" % name)
    gran_addr()
    a("v_mov_b32 v12, 0"); a("v_mov_b32 v13, 0x80000000")
    a("buffer_store_dwordx2 v[12:13], v94, s[12:15], s58 offen sc1")
    a("buffer_store_dwordx2 v[12:13], v94, s[12:15], s58 offen offset:16 sc1")
    a.label("%s_noclr" % name)
    if "nowarm" not in DBG:
        a("s_mov_b32 s99, 1")
        a("s_mov_b32 s40, 0"); a("s_mov_b32 s42, 0"); a("s_mov_b32 s41, 0"); a("s_mov_b32 s58, 0"); a("s_mov_b32 s59, 0")
        for r_ in (36, 37, 38, 39): a("s_mov_b32 s%d, 0" % r_)
        for r_ in list(range(4, 14)) + [23, 94, 140, 141, 142]: a("v_mov_b32 v%d, 0" % r_)
        a("s_nop 1")
        a("s_mov_b64 exec, 0")
        a("s_cmp_eq_u32 s3, 0"); a("s_cbranch_scc1 %s_epi" % name)
        a("s_cmp_eq_u32 s3, 1"); a("s_cbranch_scc1 %s_seg1" % name)
        a("s_cmp_eq_u32 s3, 2"); a("s_cbranch_scc1 %s_seg2" % name)
        a("s_cmp_eq_u32 s21, 0"); a("s_cbranch_scc1 %s_seg3" % name)
        a("s_branch %s_seg3p" % name)
        a.label("%s_warmret" % name)
        a("s_mov_b64 exec, -1")
    a("s_mov_b32 s99, 0")
    ACC = 112; TB = [16, 32]; FR = 48
    vTa, vTb, vF, vFh = 4, 5, 6, 7
    bTa = [88, 89]; bTb = [90, 91]; bF = 92; bFh = 93
    PF = 96
    a("v_lshrrev_b32 v10, 4, v2")
    a("v_lshrrev_b32 v11, 1, v3")
    a("v_xor_b32 v10, v10, v11")
    a("v_lshlrev_b32 v10, 4, v10")
    a("v_lshl_add_u32 v10, v3, 7, v10")
    a("s_lshl_b32 s26, s24, 13")
    a("s_add_u32 s26, s26, %d" % TB0)
    a("v_add_u32 v10, s26, v10")
    a("s_lshl_b32 s26, s25, 12")
    a("v_add_u32 v%d, s26, v10" % bTa[0])
    a("s_xor_b32 s26, s26, 4096")
    a("v_add_u32 v%d, s26, v10" % bTb[0])
    a("v_xor_b32 v%d, 64, v%d" % (bTa[1], bTa[0]))
    a("v_xor_b32 v%d, 64, v%d" % (bTb[1], bTb[0]))
    a("v_lshrrev_b32 v10, 2, v2")
    a("v_mul_u32_u24 v10, %d, v10" % FS)
    a("v_and_b32 v11, 3, v2")
    a("v_lshl_add_u32 v10, v11, 3, v10")
    a("v_add_u32 v10, %d, v10" % FB_)
    a("s_mul_i32 s26, s25, 160")
    a("v_add_u32 v%d, s26, v10" % bF)
    a("v_add_u32 v%d, 128, v10" % bFh)
    a("v_lshrrev_b32 v10, 4, v2")
    a("v_lshlrev_b32 v10, 12, v10")
    a("v_lshl_add_u32 v95, v3, 4, v10")
    a("s_lshl_b32 s41, s22, 7")
    a("s_lshl_b32 s36, s3, 5")
    a("s_add_u32 s41, s41, s36")
    a("s_lshl_b32 s41, s41, 12")
    a("s_lshr_b32 s36, s23, 1")
    a("s_lshl_b32 s36, s36, 1")
    a("s_add_u32 s36, s36, s21")
    a("s_lshl_b32 s36, s36, 8")
    a("s_add_u32 s41, s41, s36")
    for r in range(ACC, ACC + 144): a("v_mov_b32 v%d, 0" % r)
    def accr(z, ft, tt): return ACC + 72 * z + 4 * tidx(ft, tt)
    def Fr(z, ft): return FR + 20 * z + 4 * ft
    trk = LdsTracker(a)
    def treads(buf):
        L = []
        for tt in range(4):
            r = TB[buf] + 4 * tt
            L.append(("ds_read_b128 %s, v%d offset:%d" % (vr(r), vTa if tt < 2 else vTb, (tt & 1) * 2048), range(r, r + 4)))
        return L
    def freads(z, ft):
        r = Fr(z, ft); L = []
        for half in range(2):
            off = 9216 * z + 16 * half * FS + (32 * ft if ft < 4 else 0)
            L.append(("ds_read_b64_tr_b16 %s, v%d offset:%d" % (vr(r + 2 * half, 2), vF if ft < 4 else vFh, off), range(r + 2 * half, r + 2 * half + 2)))
        return L
    def rd(t):
        a(t[0]); trk.issue(t[1])
    a("v_mov_b32 v%d, v%d" % (vTa, bTa[0])); a("v_mov_b32 v%d, v%d" % (vTb, bTb[0]))
    a("v_mov_b32 v%d, v%d" % (vF, bF)); a("v_mov_b32 v%d, v%d" % (vFh, bFh))
    a("s_mov_b32 s27, 0")
    a("s_mov_b32 s34, 0")
    a("s_mov_b32 s33, 0")
    a("s_barrier")
    stamp(a, 1)
    for t in treads(0): rd(t)
    for z in range(2):
        for ft in range(5):
            for t in freads(z, ft): rd(t)
            if len(trk.out) >= 12: trk.drain()
    trk.drain()
    def iteration(par):
        a("s_barrier")
        upd = []
        if par == 1:
            upd += ["s_add_u32 s27, s27, %d" % TS, "s_cmp_eq_u32 s27, %d" % (NT * TS), "s_cselect_b32 s27, 0, s27"]
        upd += ["s_add_u32 s34, s34, %d" % FSL, "s_cmp_eq_u32 s34, %d" % (NF * FSL), "s_cselect_b32 s34, 0, s34"]
        upd += ["v_add_u32 v%d, s27, v%d" % (vTa, bTa[1 - par]), "v_add_u32 v%d, s27, v%d" % (vTb, bTb[1 - par]),
                "v_add_u32 v%d, s34, v%d" % (vF, bF), "v_add_u32 v%d, s34, v%d" % (vFh, bFh)]
        pend = [("x", u) for u in upd] + [("r", t) for t in treads(1 - par)]
        if par == 0:
            pend.append(("x", "buffer_load_dwordx4 %s, v95, s[92:95], s41 offen" % vr(PF)))
            pend.append(("x", "s_add_u32 s41, s41, 16384"))
        else:
            pend.append(("x", "s_add_u32 s33, s33, 1"))
        for z in range(2):
            for ft in range(5):
                for tt in range(4 if ft < 4 else 2):
                    c = accr(z, ft, tt); A = Fr(z, ft); B = TB[par] + 4 * tt
                    trk.need(list(range(A, A + 4)) + list(range(B, B + 4)))
                    if "nomfma" not in DBG: a("v_mfma_f32_16x16x32_bf16 %s, %s, %s, %s" % (vr(c), vr(A), vr(B), vr(c)))
                    for _ in range(NFILL):
                        if pend:
                            k, t = pend.pop(0)
                            if k == "x": a(t)
                            else: rd(t)
                pend += [("r", t) for t in freads(z, ft)]
        for k, t in pend:
            if k == "x": a(t)
            else: rd(t)
        a("s_waitcnt lgkmcnt(15)")
        if len(trk.out) > 15: trk.out = trk.out[-15:]
    import copy
    a.label("%s_cloop" % name)
    trk.out = []
    lines_before = len(a.lines)
    iteration(0); iteration(1)
    state = copy.deepcopy(trk.out)
    del a.lines[lines_before:]
    trk.out = copy.deepcopy(state)
    iteration(0); iteration(1)
    assert [sorted(x) for x in trk.out] == [sorted(x) for x in state]
    a("s_cmp_lt_u32 s33, %d" % (NK // 2))
    a("s_cbranch_scc1 %s_cloop" % name)
    trk.drain()
    stamp(a, 2)
    a("s_waitcnt vmcnt(0)")
    a("s_barrier")
    a("s_or_b32 s36, s3, s21")
    a("s_cmp_lg_u32 s36, 0")
    a("s_cbranch_scc1 %s_nosig" % name)
    a("v_mov_b32 v10, 1")
    a("s_lshl_b32 s36, s22, 2")
    a("v_mov_b32 v11, s36")
    a("s_mov_b64 exec, 1")
    a("buffer_atomic_add v10, v11, s[60:63], 0 offen sc1")
    a("s_mov_b64 exec, -1")
    a.label("%s_nosig" % name)
    a("s_mul_i32 s36, s3, 18432")
    a("s_add_u32 s36, s36, %d" % TB0)
    a("v_lshlrev_b32 v10, 4, v2")
    a("v_add_u32 v11, s36, v10")
    for n, (ft, tt) in enumerate(TILES):
        a("ds_write_b128 v11, %s offset:%d" % (vr(accr(1, ft, tt)), 1024 * tidx(ft, tt)))
        if n in (7, 13): a("s_waitcnt lgkmcnt(4)")
    a("s_mov_b32 s40, 0")
    a("s_waitcnt lgkmcnt(0)")
    a("s_barrier")
    a("s_branch %s_epi" % name)
    a.label("%s_loader" % name)
    if "noprio" not in DBG: a("s_setprio 3")
    a("s_mov_b32 s99, 0")
    a("s_sub_u32 s3, s3, 4")
    a("v_lshrrev_b32 v3, 3, v2")
    a("v_and_b32 v4, 7, v2")
    VT = 16; VF = 20
    a("s_lshl_b32 s24, s3, 5")
    a("v_add_u32 v5, s24, v3")
    for n in range(4):
        a("v_add_u32 v6, %d, v5" % (8 * n))
        a("v_lshrrev_b32 v7, 1, v6")
        a("v_and_b32 v7, 7, v7")
        a("v_xor_b32 v7, v7, v4")
        a("v_mul_u32_u24 v6, 1152, v6")
        a("v_lshl_add_u32 v%d, v7, 4, v6" % (VT + n))
        if n: a("v_subrev_u32 v%d, %d, v%d" % (VT + n, 1024 * n, VT + n))
    a("s_mul_i32 s26, s22, %d" % (128 * 1152))
    a("s_lshl_b32 s24, s3, 12")
    a("s_add_u32 s24, s24, %d" % TB0)
    vm = VmTracker(a)
    a("s_mov_b32 s33, 0")
    def issueT(m):
        a("s_add_u32 s35, s33, s24")
        a("s_mov_b32 m0, s35")
        a("s_add_u32 s33, s33, %d" % TS)
        for n in range(4):
            if "nodma" not in DBG: a("buffer_load_dwordx4 v%d, s[28:31], s26 offen offset:%d lds" % (VT + n, 1024 * n))
        a("s_add_u32 s26, s26, 128")
        a("s_cmp_eq_u32 s33, %d" % (NT * TS))
        a("s_cselect_b32 s33, 0, s33")
        vm.issue("T%d" % m, 4)
    issueT(0)
    a("s_and_b32 s36, s3, 1")
    a("s_mul_i32 s36, s36, 288")
    for n in range(5):
        a("v_add_u32 v6, s36, v2")
        if n: a("v_add_u32 v6, %d, v6" % (64 * n))
        a("v_mul_u32_u24 v7, 3641, v6")
        a("v_lshrrev_b32 v7, 16, v7")
        a("v_mul_u32_u24 v8, 18, v7")
        a("v_sub_u32 v8, v6, v8")
        a("v_and_b32 v9, 3, v7")
        a("v_bfe_u32 v6, v7, 2, 2")
        a("v_lshl_add_u32 v9, v6, 3, v9")
        a("v_bfe_u32 v6, v7, 4, 1")
        a("v_lshl_add_u32 v9, v6, 2, v9")
        a("v_mul_u32_u24 v9, 9216, v9")
        a("v_lshl_add_u32 v%d, v8, 4, v9" % (VF + n))
        if 0 < n < 4: a("v_subrev_u32 v%d, %d, v%d" % (VF + n, 1024 * n, VF + n))
    a("s_lshr_b32 s36, s3, 1")
    a("s_add_u32 s27, s23, s36")
    a("s_mul_i32 s27, s27, 288")
    a("s_cmp_eq_u32 s21, 0")
    a("s_cselect_b32 s36, 4608, 0")
    a("s_add_u32 s27, s27, s36")
    a("s_mul_i32 s25, s3, 4608")
    a("s_add_u32 s25, s25, %d" % FB_)
    a("s_mov_b32 s34, 0")
    def issueF(k):
        a("s_add_u32 s35, s34, s25")
        a("s_mov_b32 m0, s35")
        a("s_add_u32 s36, s35, 4096")
        for n in range(4):
            if "nodma" not in DBG: a("buffer_load_dwordx4 v%d, s[8:11], s27 offen offset:%d lds" % (VF + n, 1024 * n))
        a("s_mov_b32 m0, s36")
        a("s_mov_b64 exec, 0xffffffff")
        if "nodma" not in DBG: a("buffer_load_dwordx4 v%d, s[8:11], s27 offen lds" % (VF + 4))
        a("s_mov_b64 exec, -1")
        a("s_add_u32 s27, s27, %d" % (32 * 9216))
        a("s_add_u32 s34, s34, %d" % FSL)
        a("s_cmp_eq_u32 s34, %d" % (NF * FSL))
        a("s_cselect_b32 s34, 0, s34")
        vm.issue("F%d" % k, 5)
    issueF(0); issueF(1); issueT(1); issueF(2); issueF(3); issueT(2); issueF(4); issueF(5)
    SS = [28, 30, 32, 34]; ONE = 36
    for r in range(28, 36): a("v_mov_b32 v%d, 0" % r)
    for r in range(ONE, ONE + 4): a("v_mov_b32 v%d, 0x3f803f80" % r)
    CA = 40
    for r in range(CA, CA + 20): a("v_mov_b32 v%d, 0" % r)
    XB = 64; CF = 80
    a("v_lshlrev_b32 v10, 4, v2")
    a("v_add_u32 v10, s24, v10")
    a("v_lshrrev_b32 v11, 2, v2")
    a("v_mul_u32_u24 v11, %d, v11" % FS)
    a("v_and_b32 v12, 3, v2")
    a("v_lshl_add_u32 v11, v12, 3, v11")
    a("s_lshr_b32 s36, s3, 1")
    a("s_mul_i32 s36, s36, 9216")
    a("s_and_b32 s37, s3, 1")
    a("s_mul_i32 s37, s37, 128")
    a("s_add_u32 s36, s36, s37")
    a("s_add_u32 s36, s36, %d" % FB_)
    a("v_add_u32 v11, s36, v11")
    def rowstats_rd(m):
        if "nors" in DBG: return
        a("v_add_u32 v12, %d, v10" % ((m % NT) * TS))
        for n in range(4):
            a("ds_read_b128 %s, v12 offset:%d" % (vr(XB + 4 * n), 1024 * n))
    def rowstats_do():
        if "nors" in DBG: return
        for d in range(4):
            for n in range(4):
                r = XB + 4 * n + d
                a("v_dot2_f32_bf16 v%d, v%d, v%d, v%d" % (SS[n], r, ONE, SS[n]))
                a("v_dot2_f32_bf16 v%d, v%d, v%d, v%d" % (SS[n] + 1, r, r, SS[n] + 1))
    def colsum_rd(k):
        if "nocs" in DBG: return
        a("v_add_u32 v13, %d, v11" % ((k % NF) * FSL))
        for q in range(5):
            for half in range(2):
                a("ds_read_b64_tr_b16 %s, v13 offset:%d" % (vr(CF + 4 * q + 2 * half, 2), 16 * half * FS + 32 * q))
    def colsum_do():
        if "nocs" in DBG: return
        for q in range(5):
            a("v_mfma_f32_16x16x32_bf16 %s, %s, %s, %s" % (vr(CA + 4 * q), vr(CF + 4 * q), vr(ONE), vr(CA + 4 * q)))
    vm.wait(["T0", "F0"])
    a("s_barrier")
    stamp(a, 1)
    rowstats_rd(0); colsum_rd(0)
    a("s_waitcnt lgkmcnt(0)")
    colsum_do(); rowstats_do()
    vm.wait(["F1", "T0"])
    a("s_barrier")
    for k in range(NK):
        rs = (k % 2 == 1 and (k + 1) // 2 < 9)
        if k + 1 < NK: colsum_rd(k + 1)
        if rs: rowstats_rd((k + 1) // 2)
        if k >= 1 and k + 5 < NK: issueF(k + 5)
        if k % 2 == 1 and (k - 1) // 2 + 3 < 9: issueT((k - 1) // 2 + 3)
        a("s_waitcnt lgkmcnt(0)")
        if k + 1 < NK: colsum_do()
        if rs: rowstats_do()
        if k + 1 < NK:
            vm.wait(["F%d" % (k + 2), "T%d" % ((k + 2) // 2)])
            a("s_barrier")
    a("s_nop 3")
    for ctl in ("quad_perm:[1,0,3,2]", "quad_perm:[2,3,0,1]", "row_half_mirror"):
        for rg in range(4):
            for e in range(2):
                a("v_add_f32_dpp v%d, v%d, v%d %s row_mask:0xf bank_mask:0xf" % (SS[rg] + e, SS[rg] + e, SS[rg] + e, ctl))
        a("s_nop 1")
    ML = 64
    for rg in range(4):
        emit_ln_finish(a, SS[rg], SS[rg] + 1, 576, ML + 2 * rg, ML + 2 * rg + 1, 76)
        a("v_mov_b32 v%d, v%d" % (SS[rg] + 1, ML + 2 * rg + 1))
        a("v_sub_f32 v%d, 0, v%d" % (SS[rg], ML + 2 * rg))
    a("s_lshl_b32 s35, s3, 8")
    a("v_lshlrev_b32 v6, 3, v3")
    a("v_add_u32 v12, s35, v6")
    a("v_cmp_eq_u32 vcc, 0, v4")
    a("s_and_saveexec_b64 s[36:37], vcc")
    for rg in range(4):
        a("ds_write_b64 v12, %s offset:%d" % (vr(SS[rg], 2), RST + 64 * rg))
    a("s_mov_b64 exec, s[36:37]")
    a("s_lshl_b32 s36, s21, 8")
    a("s_or_b32 s36, s36, s23")
    a("s_cmp_lg_u32 s36, 256")
    a("s_cbranch_scc1 %s_nost1" % name)
    a("s_lshl_b32 s35, s22, 7")
    a("s_lshl_b32 s36, s3, 5")
    a("s_add_u32 s35, s35, s36")
    a("s_lshl_b32 s35, s35, 3")
    a("s_add_u32 s35, s35, 0x%x" % STATS1)
    a("v_mov_b32 v7, 0x7ffffff0")
    a("v_cndmask_b32 v6, v7, v6, vcc")
    for rg in range(4):
        a("buffer_store_dwordx2 %s, v6, s[12:15], s35 offen offset:%d %s" % (vr(ML + 2 * rg, 2), 64 * rg, WT))
    a.label("%s_nost1" % name)
    a("v_lshrrev_b32 v12, 4, v2")
    a("v_lshlrev_b32 v12, 4, v12")
    a("s_lshr_b32 s36, s3, 1")
    a("s_mul_i32 s36, s36, 576")
    a("s_and_b32 s37, s3, 1")
    a("s_lshl_b32 s37, s37, 8")
    a("s_add_u32 s36, s36, s37")
    a("v_add_u32 v12, s36, v12")
    a("v_and_b32 v13, 15, v2")
    a("v_cmp_eq_u32 vcc, 0, v13")
    a("s_and_saveexec_b64 s[36:37], vcc")
    for q in range(5):
        a("ds_write_b128 v12, %s offset:%d" % (vr(CA + 4 * q), CSO + 64 * q))
    a("s_mov_b64 exec, s[36:37]")
    a("s_waitcnt lgkmcnt(0)")
    a("s_barrier")
    a("s_setprio 0")
    a("s_lshr_b32 s24, s3, 1")
    a("s_and_b32 s25, s3, 1")
    a("v_and_b32 v3, 15, v2")
    a("s_add_u32 s23, s23, 1")
    a("s_mov_b32 s40, 576")
    a("s_mul_i32 s36, s3, 18432")
    a("s_add_u32 s36, s36, %d" % TB0)
    a("v_lshlrev_b32 v10, 4, v2")
    a("v_add_u32 v11, s36, v10")
    a("s_barrier")
    for n in range(18):
        a("ds_read_b128 %s, v11 offset:%d" % (vr(ACC + 4 * n), 1024 * n))
        if n in (7, 13): a("s_waitcnt lgkmcnt(4)")
    a.label("%s_epi" % name)
    MR = 100; CS = 52; ZP = 16; T = 72
    gelu_consts(a)
    a("s_lshl_b32 s36, s24, 9")
    a("s_lshl_b32 s37, s25, 8")
    a("s_add_u32 s38, s36, s37")
    a("s_xor_b32 s37, s37, 256")
    a("s_add_u32 s39, s36, s37")
    a("v_lshlrev_b32 v10, 3, v3")
    a("v_add_u32 v11, s38, v10")
    a("ds_read_b64 %s, v11 offset:%d" % (vr(MR, 2), RST))
    a("ds_read_b64 %s, v11 offset:%d" % (vr(MR + 2, 2), RST + 128))
    a("v_add_u32 v11, s39, v10")
    a("ds_read_b64 %s, v11 offset:%d" % (vr(MR + 4, 2), RST))
    a("ds_read_b64 %s, v11 offset:%d" % (vr(MR + 6, 2), RST + 128))
    a("v_lshrrev_b32 v10, 4, v2")
    a("v_lshlrev_b32 v10, 4, v10")
    a("v_add_u32 v10, s40, v10")
    a("s_mul_i32 s36, s25, 320")
    a("v_add_u32 v11, s36, v10")
    a("s_waitcnt lgkmcnt(6)")
    for ft in range(4):
        a("ds_read_b128 %s, v11 offset:%d" % (vr(CS + 4 * ft), CSO + 64 * ft))
    a("ds_read_b128 %s, v10 offset:%d" % (vr(CS + 16), CSO + 256))
    S = [108, 110, 8, 12]; Q = [109, 111, 9, 13]
    for tt in range(4):
        a("v_mov_b32 v%d, 0" % S[tt]); a("v_mov_b32 v%d, 0" % Q[tt])
    a("v_mov_b32 v88, 0x3f803f80")
    a("s_waitcnt lgkmcnt(0)")
    for ft in range(5):
        if ft == 2:
            seg_end(a, name)
            a.label("%s_seg1" % name)
        tts = range(4 if ft < 4 else 2)
        items = [(ACC + 4 * tidx(ft, tt), CS + 4 * ft, MR + 2 * tt, ZP + 2 * tidx(ft, tt)) for tt in tts]
        emit_fold_gelu(a, items, T)
        for d in range(2):
            for tt in tts:
                p = ZP + 2 * tidx(ft, tt) + d
                a("v_dot2_f32_bf16 v%d, v%d, v88, v%d" % (S[tt], p, S[tt]))
                a("v_dot2_f32_bf16 v%d, v%d, v%d, v%d" % (Q[tt], p, p, Q[tt]))
    seg_end(a, name)
    a.label("%s_seg2" % name)
    a("s_cmp_eq_u32 s21, 0")
    a("s_cbranch_scc1 %s_z2" % name)
    a("s_lshl_b32 s36, s22, 4")
    a("s_add_u32 s36, s36, s23")
    a("s_lshl_b32 s36, s36, 2")
    a("s_add_u32 s36, s36, s3")
    a("s_mul_i32 s36, s36, 9216")
    a("s_add_u32 s36, s36, 0x%x" % Z1IMG)
    a("v_lshlrev_b32 v10, 4, v2")
    for q in range(9):
        if q in (4, 8): a("s_add_u32 s36, s36, 4096")
        a("buffer_store_dwordx4 %s, v10, s[12:15], s36 offen offset:%d %s" % (vr(ZP + 4 * q), (q & 3) * 1024, WT))
    stamp(a, 3)
    a("s_lshl_b32 s42, s22, 4")
    a("s_add_u32 s42, s42, s23")
    a("v_and_b32 v0, 255, v0")
    emit_prep(a, name)
    seg_end(a, name)
    stamp(a, 4)
    a("s_branch %s_end" % name)
    a.label("%s_z2" % name)
    a("s_nop 1")
    emit_xg_reduce(a, S + Q, 72)
    gran_addr()
    for g in range(1, 4):
        a("v_cmp_eq_u32 vcc, %d, v10" % g)
        a("s_nop 1")
        a("v_cndmask_b32 v%d, v%d, v%d, vcc" % (S[0], S[0], S[g]))
        a("v_cndmask_b32 v%d, v%d, v%d, vcc" % (Q[0], Q[0], Q[g]))
    a("v_and_b32 v%d, 0x7fffffff, v%d" % (Q[0], Q[0]))
    a("buffer_store_dwordx2 v[%d:%d], v94, s[12:15], s58 offen sc1" % (S[0], Q[0]))
    stamp(a, 3)
    seg_end(a, name)
    a("s_lshl_b32 s33, s22, 2")
    a("v_mov_b32 v9, s33")
    a("s_mov_b32 s40, 0")
    a("v_lshlrev_b32 v11, 4, v3")
    a.label("%s_poll2" % name)
    a("buffer_load_dword v12, v9, s[60:63], 0 offen sc1")
    a("buffer_load_dwordx4 v[112:115], v11, s[12:15], s59 offen sc1")
    a("s_add_u32 s40, s40, 1")
    a("s_waitcnt vmcnt(0)")
    a("v_subrev_u32 v12, 8, v12")
    a("v_or3_b32 v12, v12, v113, v115")
    a("v_cmp_gt_i32 vcc, 0, v12")
    a("s_cmp_gt_u32 s40, %d" % SPIN_MAX)
    a("s_cbranch_scc1 %s_poll2x" % name)
    a("s_cbranch_vccz %s_poll2x" % name)
    a("s_sleep 2")
    a("s_branch %s_poll2" % name)
    a.label("%s_poll2x" % name)
    a("v_lshlrev_b32 v11, 8, v3")
    a("v_lshl_add_u32 v11, v10, 6, v11")
    a("s_lshl_b32 s33, s25, 13")
    a("s_add_u32 s36, s59, s33")
    a("s_xor_b32 s33, s33, 8192")
    a("s_add_u32 s37, s59, s33")
    a("s_add_u32 s38, s36, 4096")
    a("s_add_u32 s39, s37, 4096")
    PB = 112
    a.label("%s_poll1" % name)
    for tt in range(4):
        for q in range(4):
            a("buffer_load_dwordx4 %s, v11, s[12:15], s%d offen offset:%d sc1" % (vr(PB + 16 * tt + 4 * q), (36, 38, 37, 39)[tt], 16 * q))
    a("s_waitcnt vmcnt(0)")
    a("v_mov_b32 v12, 0")
    for r in range(PB + 1, PB + 64, 4):
        a("v_or3_b32 v12, v12, v%d, v%d" % (r, r + 2))
    a("v_cmp_gt_i32 vcc, 0, v12")
    a("s_add_u32 s40, s40, 1")
    a("s_cmp_gt_u32 s40, %d" % SPIN_MAX)
    a("s_cbranch_scc1 %s_poll1x" % name)
    a("s_cbranch_vccnz %s_poll1" % name)
    a.label("%s_poll1x" % name)
    stamp(a, 4)
    a.label("%s_seg3" % name)
    for tt in range(4):
        b = PB + 16 * tt
        for st in (8, 4, 2):
            for q in range(0, st, 2):
                a("v_pk_add_f32 %s, %s, %s" % (vr(b + q, 2), vr(b + q, 2), vr(b + q + st, 2)))
    emit_xg_reduce(a, [PB + 16 * tt + e for tt in range(4) for e in range(2)], 72)
    for tt in range(4):
        b = PB + 16 * tt
        emit_ln_finish(a, b, b + 1, 2304, b + 2, MR + 2 * tt, b + 4)
        a("v_mul_f32 v%d, -v%d, v%d" % (MR + 2 * tt + 1, b + 2, MR + 2 * tt))
    a("v_lshrrev_b32 v11, 2, v2"); a("v_and_b32 v11, 1, v11"); a("v_lshlrev_b32 v11, 4, v11")
    a("v_lshrrev_b32 v12, 3, v2"); a("v_and_b32 v12, 1, v12"); a("v_lshl_add_u32 v11, v12, 2, v11")
    a("v_and_b32 v12, 3, v2"); a("v_add_u32 v11, v11, v12")
    a("v_mul_u32_u24 v11, 288, v11")
    a("v_lshrrev_b32 v12, 1, v10"); a("v_lshl_add_u32 v11, v12, 4, v11")
    a("v_and_b32 v12, 1, v10")
    a("v_lshl_add_u32 v13, v12, 5, v11")
    a("v_mul_u32_u24 v12, 2304, v12")
    a("v_add_u32 v9, v11, v12")
    a("s_lshl_b32 s33, s23, 5")
    a("s_lshl_b32 s36, s22, 1")
    a("s_add_u32 s33, s33, s36")
    a("s_add_u32 s33, s33, s24")
    a("s_mul_i32 s33, s33, 18432")
    if ZIMG: a("s_add_u32 s33, s33, 0x%x" % ZIMG)
    a("s_mul_i32 s36, s25, 9216")
    a("s_add_u32 s37, s33, s36")
    a("s_xor_b32 s36, s36, 9216")
    a("s_add_u32 s38, s33, s36")
    a("s_add_u32 s39, s37, 128")
    a("s_mul_i32 s36, s25, 160")
    a("s_add_u32 s37, s37, s36")
    a("s_add_u32 s38, s38, s36")
    def norm_pair(nA, ttA, nB, ttB, O):
        for q, (n, tt) in enumerate(((nA, ttA), (nB, ttB))):
            for d in range(2):
                z = ZP + 2 * n + d; t = T + 4 * q + 2 * d
                a("v_lshlrev_b32 v%d, 16, v%d" % (t, z))
                a("v_and_b32 v%d, 0xffff0000, v%d" % (t + 1, z))
        for q, (n, tt) in enumerate(((nA, ttA), (nB, ttB))):
            for d in range(2):
                t = T + 4 * q + 2 * d
                a("v_pk_fma_f32 %s, %s, %s, %s op_sel:[0,0,1] op_sel_hi:[1,0,1]" % (vr(t, 2), vr(t, 2), vr(MR + 2 * tt, 2), vr(MR + 2 * tt, 2)))
        for q in range(2):
            for d in range(2):
                t = T + 4 * q + 2 * d
                a("v_cvt_pk_bf16_f32 v%d, v%d, v%d" % (O + 2 * q + d, t, t + 1))
        a("s_nop 1")
        a("v_permlane16_swap_b32 v%d, v%d" % (O, O + 2))
        a("v_permlane16_swap_b32 v%d, v%d" % (O + 1, O + 3))
    cnt = 0
    for pr in range(2):
        for tt in range(4):
            O = 112 + 4 * cnt; cnt += 1
            norm_pair(tidx(2 * pr, tt), tt, tidx(2 * pr + 1, tt), tt, O)
            a("s_nop 0")
            a("buffer_store_dwordx4 %s, v13, s[12:15], s%d offen offset:%d %s" % (vr(O), 37 if tt < 2 else 38, (tt & 1) * 2304 + 64 * pr, WT))
    O = 112 + 4 * cnt
    norm_pair(16, 0, 17, 1, O)
    a("s_nop 0")
    a("buffer_store_dwordx4 %s, v9, s[12:15], s39 offen %s" % (vr(O), WT))
    seg_end(a, name)
    stamp(a, 5)
    a("s_waitcnt vmcnt(0)")
    stamp(a, 6)
    a.label("%s_end" % name)
    a("s_endpgm")
    return a.text(), kernel_desc(name, 256, 256), (name, 256, 512, LDSB)

def emit_prep2(a, name):
    a("s_mul_i32 s36, s42, 360")
    a("s_mov_b32 s37, 0x%x" % ((2**32 + 9) // 10))
    a("s_mov_b32 s38, 0x%x" % ((2**32 + 17) // 18))
    a("s_mov_b32 s40, 0x%x" % WOT)
    WR = 128
    for n in range(2):
        a("v_add_u32 v16, s36, v0")
        if n: a("v_add_u32 v16, %d, v16" % (256 * n))
        a("v_mul_hi_u32 v17, v16, s37")
        a("v_mul_u32_u24 v18, 10, v17")
        a("v_sub_u32 v18, v16, v18")
        a("v_lshrrev_b32 v19, 7, v17")
        a("v_and_b32 v20, 127, v17")
        a("v_mul_hi_u32 v21, v19, s38")
        a("v_mul_u32_u24 v22, 18, v21")
        a("v_sub_u32 v22, v19, v22")
        a("v_and_b32 v23, 0x63, v20")
        a("v_bfe_u32 v24, v20, 2, 2")
        a("v_lshl_add_u32 v23, v24, 3, v23")
        a("v_bfe_u32 v24, v20, 4, 1")
        a("v_lshl_add_u32 v23, v24, 2, v23")
        a("v_lshl_add_u32 v23, v22, 7, v23")
        a("v_mul_u32_u24 v23, 1152, v23")
        a("v_lshrrev_b32 v24, 1, v21")
        a("v_mul_u32_u24 v24, 288, v24")
        a("v_add_u32 v23, v23, v24")
        a("v_lshl_add_u32 v23, v18, 4, v23")
        a("v_and_b32 v24, 1, v21")
        a("v_mul_u32_u24 v24, 160, v24")
        a("v_cmp_gt_u32 vcc, 8, v18")
        a("s_nop 1")
        a("v_cndmask_b32 v24, 0, v24, vcc")
        a("v_add_u32 v23, v23, v24")
        a("v_lshlrev_b32 v%d, 4, v16" % (WR + 12 + n))
        if n == 1:
            a("v_cmp_gt_u32 vcc, 104, v0")
            a("v_mov_b32 v24, 0x7ffffff0")
            a("s_nop 0")
            a("v_cndmask_b32 v23, v24, v23, vcc")
            a("v_cndmask_b32 v%d, v24, v%d, vcc" % (WR + 12 + n, WR + 12 + n))
        a("buffer_load_dwordx4 %s, v23, s[76:79], 0 offen" % vr(WR + 4 * n))
    a("s_mov_b32 s41, s42")
    a("s_cmp_lt_u32 s41, 288")
    a("s_cbranch_scc1 %s_kvgo" % name)
    a("s_waitcnt vmcnt(0)")
    for n in range(2):
        a("buffer_store_dwordx4 %s, v%d, s[12:15], s40 offen %s" % (vr(WR + 4 * n), WR + 12 + n, WT))
    a("s_branch %s_kvdone" % name)
    a.label("%s_kvgo" % name)
    a("s_mul_hi_u32 s36, s41, 0x%x" % ((2**32 + 8) // 9))
    a("s_mul_i32 s37, s36, 9")
    a("s_sub_u32 s37, s41, s37")
    a("v_and_b32 v1, 31, v0")
    a("v_lshrrev_b32 v10, 5, v0")
    a("s_lshl_b32 s38, s36, 6")
    a("v_lshl_add_u32 v3, v10, 3, s38")
    a("s_lshl_b32 s39, s37, 7")
    a("v_lshl_add_u32 v4, v1, 2, s39")
    a("v_mul_u32_u24 v5, 1152, v3")
    a("v_add_u32 v5, v5, v4")
    a("v_subrev_u32 v6, %d, v5" % (3 * 1152))
    a("v_cmp_gt_u32 vcc, 3, v3")
    a("v_mov_b32 v7, 0x7ffffff0")
    a("s_nop 0")
    a("v_cndmask_b32 v8, v6, v7, vcc")
    for n in range(3):
        a("buffer_load_dword v%d, v8, s[64:67], 0 offen offset:%d" % (16 + n, 1152 * n))
    a("v_add_u32 v9, %d, v5" % 3456)
    a("v_add_u32 v10, %d, v5" % 6912)
    for n in range(8):
        base, off = ((5, 1152 * n) if n < 3 else (9, 1152 * (n - 3)) if n < 6 else (10, 1152 * (n - 6)))
        a("buffer_load_dword v%d, v%d, s[64:67], 0 offen offset:%d" % (19 + n, base, off))
        a("buffer_load_dword v%d, v%d, s[68:71], 0 offen offset:%d" % (32 + n, base, off))
    a("v_lshlrev_b32 v11, 2, v4")
    a("buffer_load_dwordx4 v[44:47], v11, s[72:75], 0 offen")
    a("s_waitcnt vmcnt(0)")
    for n in range(2):
        a("buffer_store_dwordx4 %s, v%d, s[12:15], s40 offen %s" % (vr(WR + 4 * n), WR + 12 + n, WT))
    for ch in range(2):
        for q in range(2):
            a("v_lshlrev_b32 v%d, 16, v%d" % (48 + 4 * ch + 2 * q, 44 + 2 * ch + q))
            a("v_and_b32 v%d, 0xffff0000, v%d" % (49 + 4 * ch + 2 * q, 44 + 2 * ch + q))
    for n in range(11):
        a("v_lshlrev_b32 v%d, 16, v%d" % (60 + n, 16 + n))
        a("v_and_b32 v%d, 0xffff0000, v%d" % (72 + n, 16 + n))
    OUT = 100
    for e0 in range(0, 8, 2):
        es = (e0, e0 + 1)
        R_ = {e: (84 + 6 * (e & 1)) for e in es}
        for e in es:
            A0 = R_[e]
            a("v_mul_f32 v%d, v%d, v%d" % (A0, 60 + e, 51)); a("v_mul_f32 v%d, v%d, v%d" % (A0 + 1, 72 + e, 55))
        for e in es: rnd_pair(a, R_[e] + 4, R_[e], R_[e] + 1)
        for t in range(1, 4):
            for e in es:
                A0 = R_[e]
                a("v_mul_f32 v%d, v%d, v%d" % (A0 + 2, 60 + e + t, 51 - t)); a("v_mul_f32 v%d, v%d, v%d" % (A0 + 3, 72 + e + t, 55 - t))
            for e in es: rnd_pair(a, R_[e] + 4, R_[e] + 2, R_[e] + 3)
            for e in es:
                A0 = R_[e]
                a("v_add_f32 v%d, v%d, v%d" % (A0, A0, A0 + 2)); a("v_add_f32 v%d, v%d, v%d" % (A0 + 1, A0 + 1, A0 + 3))
            for e in es: rnd_pair(a, R_[e] + 4, R_[e], R_[e] + 1)
        for e in es:
            A0 = R_[e]
            a("v_lshlrev_b32 v%d, 16, v%d" % (A0 + 2, 32 + e)); a("v_and_b32 v%d, 0xffff0000, v%d" % (A0 + 3, 32 + e))
            a("v_mul_f32 v%d, v%d, v%d" % (OUT + e, A0, A0 + 2)); a("v_mul_f32 v%d, v%d, v%d" % (OUT + 8 + e, A0 + 1, A0 + 3))
    for ch in range(2):
        for q in range(4):
            a("v_cvt_pk_bf16_f32 v%d, v%d, v%d" % (120 + 4 * ch + q, OUT + 8 * ch + 7 - 2 * q, OUT + 8 * ch + 6 - 2 * q))
    a("v_lshlrev_b32 v12, 11, v4")
    a("v_sub_u32 v13, 2040, v3")
    a("v_lshl_add_u32 v12, v13, 1, v12")
    a("v_add_u32 v13, 4096, v12")
    a("s_mov_b32 s39, 0x%x" % KVT)
    a("buffer_store_dwordx4 v[120:123], v12, s[12:15], s39 offen %s" % WT)
    a("buffer_store_dwordx4 v[124:127], v13, s[12:15], s39 offen %s" % WT)
    a.label("%s_kvdone" % name)
    seg_end(a, name)


def gen_k1d(name="k1_kernel"):
    a = Asm()
    TS = 16384; NT = 3; TB0 = 4096; FB_ = TB0 + NT * TS; FSL = 18432; NF = 6; FS = 288; NK = 18
    LDSB = FB_ + NF * FSL; RST = 0; CSO = 1024
    kernel_begin(a, name)
    a("s_cmp_ge_u32 s2, 256")
    a("s_cbranch_scc1 %s_end" % name)
    a("s_load_dwordx2 s[4:5], s[0:1], 56")
    a("s_load_dwordx2 s[6:7], s[0:1], 104")
    a("s_load_dwordx8 s[80:87], s[0:1], 0")
    a("s_load_dwordx2 s[18:19], s[0:1], 96")
    a("s_load_dwordx2 s[88:89], s[0:1], 80")
    a("s_load_dwordx2 s[90:91], s[0:1], 64")
    wave_setup(a)
    a("s_and_b32 s20, s2, 7")
    a("s_lshr_b32 s21, s2, 3")
    a("s_and_b32 s22, s20, 1")
    a("s_lshl_b32 s22, s22, 3")
    a("s_and_b32 s23, s21, 7")
    a("s_add_u32 s22, s22, s23")
    a("s_lshr_b32 s21, s21, 3")
    a("s_lshr_b32 s23, s20, 1")
    a("s_lshl_b32 s23, s23, 1")
    a("s_and_b32 s24, s21, 1")
    a("s_add_u32 s23, s23, s24")
    a("s_lshl_b32 s23, s23, 1")
    a("s_lshr_b32 s21, s21, 1")
    a("s_waitcnt lgkmcnt(0)")
    srd(a, 8, 4, 576 * 4608 * 2)
    srd(a, 12, 6, WS_BYTES)
    srd(a, 28, 80, 2048 * 576 * 2)
    srd(a, 60, 18, 256)
    srd(a, 64, 82, 2048 * 576 * 2)
    srd(a, 68, 84, 2048 * 576 * 2)
    srd(a, 72, 86, 576 * 8)
    srd(a, 76, 88, 2304 * 576 * 2)
    srd(a, 92, 90, 2048 * 2048 * 2)
    stamp_setup(a, 1); stamp(a, 0)
    a("s_cmp_ge_u32 s3, 4")
    a("s_cbranch_scc1 %s_loader" % name)
    def gran_addr():
        a("v_lshrrev_b32 v10, 4, v2")
        a("s_lshl_b32 s33, s25, 1")
        a("v_add_u32 v11, s33, v10")
        a("v_and_b32 v11, 3, v11")
        a("v_lshl_add_u32 v11, v11, 4, v3")
        a("v_lshlrev_b32 v94, 8, v11")
        a("s_lshl_b32 s59, s22, 7")
        a("s_lshl_b32 s36, s24, 6")
        a("s_add_u32 s59, s59, s36")
        a("s_lshl_b32 s59, s59, 8")
        a("s_add_u32 s59, s59, 0x%x" % STATS2)
        a("s_lshl_b32 s36, s23, 1")
        a("s_add_u32 s36, s36, s25")
        a("s_lshl_b32 s36, s36, 3")
        a("s_add_u32 s58, s36, s59")
    a("s_lshr_b32 s24, s3, 1")
    a("s_and_b32 s25, s3, 1")
    a("v_and_b32 v3, 15, v2")
    if "nowarm" not in DBG:
        a("s_mov_b32 s99, 1")
        a("s_mov_b32 s40, 0"); a("s_mov_b32 s42, 0"); a("s_mov_b32 s41, 0"); a("s_mov_b32 s58, 0"); a("s_mov_b32 s59, 0")
        for r_ in (36, 37, 38, 39): a("s_mov_b32 s%d, 0" % r_)
        for r_ in list(range(4, 14)) + [23, 94, 140, 141, 142]: a("v_mov_b32 v%d, 0" % r_)
        a("s_nop 1")
        a("s_mov_b64 exec, 0")
        a("s_cmp_eq_u32 s3, 0"); a("s_cbranch_scc1 %s_epi" % name)
        a("s_cmp_eq_u32 s3, 1"); a("s_cbranch_scc1 %s_seg1" % name)
        a("s_cmp_eq_u32 s3, 2"); a("s_cbranch_scc1 %s_seg2" % name)
        a("s_branch %s_seg3" % name)
        a.label("%s_warmret" % name)
        a("s_mov_b64 exec, -1")
    a("s_mov_b32 s99, 0")
    ACC = 112; TB = [16, 32]; FR = 48
    vTa, vTb, vF, vFh = 4, 5, 6, 7
    bTa = [88, 89]; bTb = [90, 91]; bF = 92; bFh = 93
    PF = 96
    a("v_lshrrev_b32 v10, 4, v2")
    a("v_lshrrev_b32 v11, 1, v3")
    a("v_xor_b32 v10, v10, v11")
    a("v_lshlrev_b32 v10, 4, v10")
    a("v_lshl_add_u32 v10, v3, 7, v10")
    a("s_lshl_b32 s26, s24, 13")
    a("s_add_u32 s26, s26, %d" % TB0)
    a("v_add_u32 v10, s26, v10")
    a("s_lshl_b32 s26, s25, 12")
    a("v_add_u32 v%d, s26, v10" % bTa[0])
    a("s_xor_b32 s26, s26, 4096")
    a("v_add_u32 v%d, s26, v10" % bTb[0])
    a("v_xor_b32 v%d, 64, v%d" % (bTa[1], bTa[0]))
    a("v_xor_b32 v%d, 64, v%d" % (bTb[1], bTb[0]))
    a("v_lshrrev_b32 v10, 2, v2")
    a("v_mul_u32_u24 v10, %d, v10" % FS)
    a("v_and_b32 v11, 3, v2")
    a("v_lshl_add_u32 v10, v11, 3, v10")
    a("v_add_u32 v10, %d, v10" % FB_)
    a("s_mul_i32 s26, s25, 160")
    a("v_add_u32 v%d, s26, v10" % bF)
    a("v_add_u32 v%d, 128, v10" % bFh)
    a("v_lshrrev_b32 v10, 4, v2")
    a("v_lshlrev_b32 v10, 12, v10")
    a("v_lshl_add_u32 v95, v3, 4, v10")
    a("s_lshl_b32 s41, s22, 7")
    a("s_lshl_b32 s36, s3, 5")
    a("s_add_u32 s41, s41, s36")
    a("s_lshl_b32 s41, s41, 12")
    a("s_lshr_b32 s36, s23, 1")
    a("s_lshl_b32 s36, s36, 1")
    a("s_add_u32 s36, s36, s21")
    a("s_lshl_b32 s36, s36, 8")
    a("s_add_u32 s41, s41, s36")
    for r in range(ACC, ACC + 144): a("v_mov_b32 v%d, 0" % r)
    def accr(z, ft, tt): return ACC + 72 * z + 4 * tidx(ft, tt)
    def Fr(z, ft): return FR + 20 * z + 4 * ft
    trk = LdsTracker(a)
    def treads(buf):
        L = []
        for tt in range(4):
            r = TB[buf] + 4 * tt
            L.append(("ds_read_b128 %s, v%d offset:%d" % (vr(r), vTa if tt < 2 else vTb, (tt & 1) * 2048), range(r, r + 4)))
        return L
    def freads(z, ft):
        r = Fr(z, ft); L = []
        for half in range(2):
            off = 9216 * z + 16 * half * FS + (32 * ft if ft < 4 else 0)
            L.append(("ds_read_b64_tr_b16 %s, v%d offset:%d" % (vr(r + 2 * half, 2), vF if ft < 4 else vFh, off), range(r + 2 * half, r + 2 * half + 2)))
        return L
    def rd(t):
        a(t[0]); trk.issue(t[1])
    a("v_mov_b32 v%d, v%d" % (vTa, bTa[0])); a("v_mov_b32 v%d, v%d" % (vTb, bTb[0]))
    a("v_mov_b32 v%d, v%d" % (vF, bF)); a("v_mov_b32 v%d, v%d" % (vFh, bFh))
    a("s_mov_b32 s27, 0")
    a("s_mov_b32 s34, 0")
    a("s_mov_b32 s33, 0")
    a("s_barrier")
    stamp(a, 1)
    for t in treads(0): rd(t)
    for z in range(2):
        for ft in range(5):
            for t in freads(z, ft): rd(t)
            if len(trk.out) >= 12: trk.drain()
    trk.drain()
    def iteration(par):
        a("s_barrier")
        upd = []
        if par == 1:
            upd += ["s_add_u32 s27, s27, %d" % TS, "s_cmp_eq_u32 s27, %d" % (NT * TS), "s_cselect_b32 s27, 0, s27"]
        upd += ["s_add_u32 s34, s34, %d" % FSL, "s_cmp_eq_u32 s34, %d" % (NF * FSL), "s_cselect_b32 s34, 0, s34"]
        upd += ["v_add_u32 v%d, s27, v%d" % (vTa, bTa[1 - par]), "v_add_u32 v%d, s27, v%d" % (vTb, bTb[1 - par]),
                "v_add_u32 v%d, s34, v%d" % (vF, bF), "v_add_u32 v%d, s34, v%d" % (vFh, bFh)]
        pend = [("x", u) for u in upd] + [("r", t) for t in treads(1 - par)]
        if par == 0:
            pend.append(("x", "buffer_load_dwordx4 %s, v95, s[92:95], s41 offen" % vr(PF)))
            pend.append(("x", "s_add_u32 s41, s41, 16384"))
        else:
            pend.append(("x", "s_add_u32 s33, s33, 1"))
        for z in range(2):
            for ft in range(5):
                for tt in range(4 if ft < 4 else 2):
                    c = accr(z, ft, tt); A = Fr(z, ft); B = TB[par] + 4 * tt
                    trk.need(list(range(A, A + 4)) + list(range(B, B + 4)))
                    if "nomfma" not in DBG: a("v_mfma_f32_16x16x32_bf16 %s, %s, %s, %s" % (vr(c), vr(A), vr(B), vr(c)))
                    for _ in range(NFILL):
                        if pend:
                            k, t = pend.pop(0)
                            if k == "x": a(t)
                            else: rd(t)
                pend += [("r", t) for t in freads(z, ft)]
        for k, t in pend:
            if k == "x": a(t)
            else: rd(t)
        a("s_waitcnt lgkmcnt(15)")
        if len(trk.out) > 15: trk.out = trk.out[-15:]
    import copy
    a.label("%s_cloop" % name)
    trk.out = []
    lines_before = len(a.lines)
    iteration(0); iteration(1)
    state = copy.deepcopy(trk.out)
    del a.lines[lines_before:]
    trk.out = copy.deepcopy(state)
    iteration(0); iteration(1)
    assert [sorted(x) for x in trk.out] == [sorted(x) for x in state]
    a("s_cmp_lt_u32 s33, %d" % (NK // 2))
    a("s_cbranch_scc1 %s_cloop" % name)
    trk.drain()
    stamp(a, 2)
    a("s_barrier")
    a("s_mul_i32 s36, s3, 18432")
    a("s_add_u32 s36, s36, %d" % TB0)
    a("v_lshlrev_b32 v10, 4, v2")
    a("v_add_u32 v11, s36, v10")
    for n, (ft, tt) in enumerate(TILES):
        a("ds_write_b128 v11, %s offset:%d" % (vr(accr(1, ft, tt)), 1024 * tidx(ft, tt)))
        if n in (7, 13): a("s_waitcnt lgkmcnt(4)")
    a("s_mov_b32 s40, 0")
    a("s_waitcnt lgkmcnt(0)")
    a("s_barrier")
    a("s_branch %s_epi" % name)
    a.label("%s_loader" % name)
    if "noprio" not in DBG: a("s_setprio 3")
    a("s_mov_b32 s99, 0")
    a("s_sub_u32 s3, s3, 4")
    a("v_lshrrev_b32 v3, 3, v2")
    a("v_and_b32 v4, 7, v2")
    VT = 16; VF = 20
    a("s_lshl_b32 s24, s3, 5")
    a("v_add_u32 v5, s24, v3")
    for n in range(4):
        a("v_add_u32 v6, %d, v5" % (8 * n))
        a("v_lshrrev_b32 v7, 1, v6")
        a("v_and_b32 v7, 7, v7")
        a("v_xor_b32 v7, v7, v4")
        a("v_mul_u32_u24 v6, 1152, v6")
        a("v_lshl_add_u32 v%d, v7, 4, v6" % (VT + n))
        if n: a("v_subrev_u32 v%d, %d, v%d" % (VT + n, 1024 * n, VT + n))
    a("s_mul_i32 s26, s22, %d" % (128 * 1152))
    a("s_lshl_b32 s24, s3, 12")
    a("s_add_u32 s24, s24, %d" % TB0)
    vm = VmTracker(a)
    a("s_mov_b32 s33, 0")
    def issueT(m):
        a("s_add_u32 s35, s33, s24")
        a("s_mov_b32 m0, s35")
        a("s_add_u32 s33, s33, %d" % TS)
        for n in range(4):
            if "nodma" not in DBG: a("buffer_load_dwordx4 v%d, s[28:31], s26 offen offset:%d lds" % (VT + n, 1024 * n))
        a("s_add_u32 s26, s26, 128")
        a("s_cmp_eq_u32 s33, %d" % (NT * TS))
        a("s_cselect_b32 s33, 0, s33")
        vm.issue("T%d" % m, 4)
    issueT(0)
    a("s_and_b32 s36, s3, 1")
    a("s_mul_i32 s36, s36, 288")
    for n in range(5):
        a("v_add_u32 v6, s36, v2")
        if n: a("v_add_u32 v6, %d, v6" % (64 * n))
        a("v_mul_u32_u24 v7, 3641, v6")
        a("v_lshrrev_b32 v7, 16, v7")
        a("v_mul_u32_u24 v8, 18, v7")
        a("v_sub_u32 v8, v6, v8")
        a("v_and_b32 v9, 3, v7")
        a("v_bfe_u32 v6, v7, 2, 2")
        a("v_lshl_add_u32 v9, v6, 3, v9")
        a("v_bfe_u32 v6, v7, 4, 1")
        a("v_lshl_add_u32 v9, v6, 2, v9")
        a("v_mul_u32_u24 v9, 9216, v9")
        a("v_lshl_add_u32 v%d, v8, 4, v9" % (VF + n))
        if 0 < n < 4: a("v_subrev_u32 v%d, %d, v%d" % (VF + n, 1024 * n, VF + n))
    a("s_lshr_b32 s36, s3, 1")
    a("s_add_u32 s27, s23, s36")
    a("s_mul_i32 s27, s27, 288")
    a("s_cmp_eq_u32 s21, 0")
    a("s_cselect_b32 s36, 4608, 0")
    a("s_add_u32 s27, s27, s36")
    a("s_mul_i32 s25, s3, 4608")
    a("s_add_u32 s25, s25, %d" % FB_)
    a("s_mov_b32 s34, 0")
    def issueF(k):
        a("s_add_u32 s35, s34, s25")
        a("s_mov_b32 m0, s35")
        a("s_add_u32 s36, s35, 4096")
        for n in range(4):
            if "nodma" not in DBG: a("buffer_load_dwordx4 v%d, s[8:11], s27 offen offset:%d lds" % (VF + n, 1024 * n))
        a("s_mov_b32 m0, s36")
        a("s_mov_b64 exec, 0xffffffff")
        if "nodma" not in DBG: a("buffer_load_dwordx4 v%d, s[8:11], s27 offen lds" % (VF + 4))
        a("s_mov_b64 exec, -1")
        a("s_add_u32 s27, s27, %d" % (32 * 9216))
        a("s_add_u32 s34, s34, %d" % FSL)
        a("s_cmp_eq_u32 s34, %d" % (NF * FSL))
        a("s_cselect_b32 s34, 0, s34")
        vm.issue("F%d" % k, 5)
    issueF(0); issueF(1); issueT(1); issueF(2); issueF(3); issueT(2); issueF(4); issueF(5)
    SS = [28, 30, 32, 34]; ONE = 36
    for r in range(28, 36): a("v_mov_b32 v%d, 0" % r)
    for r in range(ONE, ONE + 4): a("v_mov_b32 v%d, 0x3f803f80" % r)
    CA = 40
    for r in range(CA, CA + 20): a("v_mov_b32 v%d, 0" % r)
    XB = 64; CF = 80
    a("v_lshlrev_b32 v10, 4, v2")
    a("v_add_u32 v10, s24, v10")
    a("v_lshrrev_b32 v11, 2, v2")
    a("v_mul_u32_u24 v11, %d, v11" % FS)
    a("v_and_b32 v12, 3, v2")
    a("v_lshl_add_u32 v11, v12, 3, v11")
    a("s_lshr_b32 s36, s3, 1")
    a("s_mul_i32 s36, s36, 9216")
    a("s_and_b32 s37, s3, 1")
    a("s_mul_i32 s37, s37, 128")
    a("s_add_u32 s36, s36, s37")
    a("s_add_u32 s36, s36, %d" % FB_)
    a("v_add_u32 v11, s36, v11")
    def rowstats_rd(m):
        if "nors" in DBG: return
        a("v_add_u32 v12, %d, v10" % ((m % NT) * TS))
        for n in range(4):
            a("ds_read_b128 %s, v12 offset:%d" % (vr(XB + 4 * n), 1024 * n))
    def rowstats_do():
        if "nors" in DBG: return
        for d in range(4):
            for n in range(4):
                r = XB + 4 * n + d
                a("v_dot2_f32_bf16 v%d, v%d, v%d, v%d" % (SS[n], r, ONE, SS[n]))
                a("v_dot2_f32_bf16 v%d, v%d, v%d, v%d" % (SS[n] + 1, r, r, SS[n] + 1))
    def colsum_rd(k):
        if "nocs" in DBG: return
        a("v_add_u32 v13, %d, v11" % ((k % NF) * FSL))
        for q in range(5):
            for half in range(2):
                a("ds_read_b64_tr_b16 %s, v13 offset:%d" % (vr(CF + 4 * q + 2 * half, 2), 16 * half * FS + 32 * q))
    def colsum_do():
        if "nocs" in DBG: return
        for q in range(5):
            a("v_mfma_f32_16x16x32_bf16 %s, %s, %s, %s" % (vr(CA + 4 * q), vr(CF + 4 * q), vr(ONE), vr(CA + 4 * q)))
    vm.wait(["T0", "F0"])
    a("s_barrier")
    stamp(a, 1)
    rowstats_rd(0); colsum_rd(0)
    a("s_waitcnt lgkmcnt(0)")
    colsum_do(); rowstats_do()
    vm.wait(["F1", "T0"])
    a("s_barrier")
    for k in range(NK):
        rs = (k % 2 == 1 and (k + 1) // 2 < 9)
        if k + 1 < NK: colsum_rd(k + 1)
        if rs: rowstats_rd((k + 1) // 2)
        if k >= 1 and k + 5 < NK: issueF(k + 5)
        if k % 2 == 1 and (k - 1) // 2 + 3 < 9: issueT((k - 1) // 2 + 3)
        a("s_waitcnt lgkmcnt(0)")
        if k + 1 < NK: colsum_do()
        if rs: rowstats_do()
        if k + 1 < NK:
            vm.wait(["F%d" % (k + 2), "T%d" % ((k + 2) // 2)])
            a("s_barrier")
    a("s_nop 3")
    for ctl in ("quad_perm:[1,0,3,2]", "quad_perm:[2,3,0,1]", "row_half_mirror"):
        for rg in range(4):
            for e in range(2):
                a("v_add_f32_dpp v%d, v%d, v%d %s row_mask:0xf bank_mask:0xf" % (SS[rg] + e, SS[rg] + e, SS[rg] + e, ctl))
        a("s_nop 1")
    ML = 64
    for rg in range(4):
        emit_ln_finish(a, SS[rg], SS[rg] + 1, 576, ML + 2 * rg, ML + 2 * rg + 1, 76)
        a("v_mov_b32 v%d, v%d" % (SS[rg] + 1, ML + 2 * rg + 1))
        a("v_sub_f32 v%d, 0, v%d" % (SS[rg], ML + 2 * rg))
    a("s_lshl_b32 s35, s3, 8")
    a("v_lshlrev_b32 v6, 3, v3")
    a("v_add_u32 v12, s35, v6")
    a("v_cmp_eq_u32 vcc, 0, v4")
    a("s_and_saveexec_b64 s[36:37], vcc")
    for rg in range(4):
        a("ds_write_b64 v12, %s offset:%d" % (vr(SS[rg], 2), RST + 64 * rg))
    a("s_mov_b64 exec, s[36:37]")
    a("s_lshl_b32 s36, s21, 8")
    a("s_or_b32 s36, s36, s23")
    a("s_cmp_lg_u32 s36, 256")
    a("s_cbranch_scc1 %s_nost1" % name)
    a("s_lshl_b32 s35, s22, 7")
    a("s_lshl_b32 s36, s3, 5")
    a("s_add_u32 s35, s35, s36")
    a("s_lshl_b32 s35, s35, 3")
    a("s_add_u32 s35, s35, 0x%x" % STATS1)
    a("v_mov_b32 v7, 0x7ffffff0")
    a("v_cndmask_b32 v6, v7, v6, vcc")
    for rg in range(4):
        a("buffer_store_dwordx2 %s, v6, s[12:15], s35 offen offset:%d %s" % (vr(ML + 2 * rg, 2), 64 * rg, WT))
    a.label("%s_nost1" % name)
    a("v_lshrrev_b32 v12, 4, v2")
    a("v_lshlrev_b32 v12, 4, v12")
    a("s_lshr_b32 s36, s3, 1")
    a("s_mul_i32 s36, s36, 576")
    a("s_and_b32 s37, s3, 1")
    a("s_lshl_b32 s37, s37, 8")
    a("s_add_u32 s36, s36, s37")
    a("v_add_u32 v12, s36, v12")
    a("v_and_b32 v13, 15, v2")
    a("v_cmp_eq_u32 vcc, 0, v13")
    a("s_and_saveexec_b64 s[36:37], vcc")
    for q in range(5):
        a("ds_write_b128 v12, %s offset:%d" % (vr(CA + 4 * q), CSO + 64 * q))
    a("s_mov_b64 exec, s[36:37]")
    a("s_waitcnt lgkmcnt(0)")
    a("s_barrier")
    a("s_setprio 0")
    a("s_lshr_b32 s24, s3, 1")
    a("s_and_b32 s25, s3, 1")
    a("v_and_b32 v3, 15, v2")
    a("s_add_u32 s23, s23, 1")
    a("s_mov_b32 s40, 576")
    a("s_mul_i32 s36, s3, 18432")
    a("s_add_u32 s36, s36, %d" % TB0)
    a("v_lshlrev_b32 v10, 4, v2")
    a("v_add_u32 v11, s36, v10")
    a("s_barrier")
    for n in range(18):
        a("ds_read_b128 %s, v11 offset:%d" % (vr(ACC + 4 * n), 1024 * n))
        if n in (7, 13): a("s_waitcnt lgkmcnt(4)")
    a.label("%s_epi" % name)
    MR = 100; CS = 52; ZP = 16; T = 72
    gelu_consts(a)
    a("s_lshl_b32 s36, s24, 9")
    a("s_lshl_b32 s37, s25, 8")
    a("s_add_u32 s38, s36, s37")
    a("s_xor_b32 s37, s37, 256")
    a("s_add_u32 s39, s36, s37")
    a("v_lshlrev_b32 v10, 3, v3")
    a("v_add_u32 v11, s38, v10")
    a("ds_read_b64 %s, v11 offset:%d" % (vr(MR, 2), RST))
    a("ds_read_b64 %s, v11 offset:%d" % (vr(MR + 2, 2), RST + 128))
    a("v_add_u32 v11, s39, v10")
    a("ds_read_b64 %s, v11 offset:%d" % (vr(MR + 4, 2), RST))
    a("ds_read_b64 %s, v11 offset:%d" % (vr(MR + 6, 2), RST + 128))
    a("v_lshrrev_b32 v10, 4, v2")
    a("v_lshlrev_b32 v10, 4, v10")
    a("v_add_u32 v10, s40, v10")
    a("s_mul_i32 s36, s25, 320")
    a("v_add_u32 v11, s36, v10")
    a("s_waitcnt lgkmcnt(6)")
    for ft in range(4):
        a("ds_read_b128 %s, v11 offset:%d" % (vr(CS + 4 * ft), CSO + 64 * ft))
    a("ds_read_b128 %s, v10 offset:%d" % (vr(CS + 16), CSO + 256))
    S = [108, 110, 8, 12]; Q = [109, 111, 9, 13]
    for tt in range(4):
        a("v_mov_b32 v%d, 0" % S[tt]); a("v_mov_b32 v%d, 0" % Q[tt])
    a("v_mov_b32 v88, 0x3f803f80")
    a("s_waitcnt lgkmcnt(0)")
    for ft in range(5):
        if ft == 2:
            seg_end(a, name)
            a.label("%s_seg1" % name)
        tts = range(4 if ft < 4 else 2)
        items = [(ACC + 4 * tidx(ft, tt), CS + 4 * ft, MR + 2 * tt, ZP + 2 * tidx(ft, tt)) for tt in tts]
        emit_fold_gelu(a, items, T)
        for d in range(2):
            for tt in tts:
                p = ZP + 2 * tidx(ft, tt) + d
                a("v_dot2_f32_bf16 v%d, v%d, v88, v%d" % (S[tt], p, S[tt]))
                a("v_dot2_f32_bf16 v%d, v%d, v%d, v%d" % (Q[tt], p, p, Q[tt]))
    seg_end(a, name)
    a.label("%s_seg2" % name)
    a("s_cmp_eq_u32 s21, 0")
    a("s_cbranch_scc1 %s_z2" % name)
    a("s_lshl_b32 s36, s22, 4")
    a("s_add_u32 s36, s36, s23")
    a("s_lshl_b32 s36, s36, 2")
    a("s_add_u32 s36, s36, s3")
    a("s_mul_i32 s36, s36, 9216")
    a("s_add_u32 s36, s36, 0x%x" % Z1IMG)
    a("v_lshlrev_b32 v10, 4, v2")
    for q in range(9):
        if q in (4, 8): a("s_add_u32 s36, s36, 4096")
        a("buffer_store_dwordx4 %s, v10, s[12:15], s36 offen offset:%d %s" % (vr(ZP + 4 * q), (q & 3) * 1024, WT))
    a("s_branch %s_prep" % name)
    a.label("%s_z2" % name)
    a("s_nop 1")
    emit_xg_reduce(a, S + Q, 72)
    gran_addr()
    for g in range(1, 4):
        a("v_cmp_eq_u32 vcc, %d, v10" % g)
        a("s_nop 1")
        a("v_cndmask_b32 v%d, v%d, v%d, vcc" % (S[0], S[0], S[g]))
        a("v_cndmask_b32 v%d, v%d, v%d, vcc" % (Q[0], Q[0], Q[g]))
    a("buffer_store_dwordx2 v[%d:%d], v94, s[12:15], s58 offen" % (S[0], Q[0]))
    a("v_lshrrev_b32 v11, 2, v2"); a("v_and_b32 v11, 1, v11"); a("v_lshlrev_b32 v11, 4, v11")
    a("v_lshrrev_b32 v12, 3, v2"); a("v_and_b32 v12, 1, v12"); a("v_lshl_add_u32 v11, v12, 2, v11")
    a("v_and_b32 v12, 3, v2"); a("v_add_u32 v11, v11, v12")
    a("v_mul_u32_u24 v11, 288, v11")
    a("v_lshrrev_b32 v12, 1, v10"); a("v_lshl_add_u32 v11, v12, 4, v11")
    a("v_and_b32 v12, 1, v10")
    a("v_lshl_add_u32 v13, v12, 5, v11")
    a("v_mul_u32_u24 v12, 2304, v12")
    a("v_add_u32 v9, v11, v12")
    a("s_lshl_b32 s33, s23, 5")
    a("s_lshl_b32 s36, s22, 1")
    a("s_add_u32 s33, s33, s36")
    a("s_add_u32 s33, s33, s24")
    a("s_mul_i32 s33, s33, 18432")
    if ZIMG: a("s_add_u32 s33, s33, 0x%x" % ZIMG)
    a("s_mul_i32 s36, s25, 9216")
    a("s_add_u32 s37, s33, s36")
    a("s_xor_b32 s36, s36, 9216")
    a("s_add_u32 s38, s33, s36")
    a("s_add_u32 s39, s37, 128")
    a("s_mul_i32 s36, s25, 160")
    a("s_add_u32 s37, s37, s36")
    a("s_add_u32 s38, s38, s36")
    def norm_pair(nA, ttA, nB, ttB, O):
        for q, n in enumerate((nA, nB)):
            for d in range(2):
                a("v_mov_b32 v%d, v%d" % (O + 2 * q + d, ZP + 2 * n + d))
        a("s_nop 1")
        a("v_permlane16_swap_b32 v%d, v%d" % (O, O + 2))
        a("v_permlane16_swap_b32 v%d, v%d" % (O + 1, O + 3))
    cnt = 0
    for pr in range(2):
        for tt in range(4):
            O = 112 + 4 * cnt; cnt += 1
            norm_pair(tidx(2 * pr, tt), tt, tidx(2 * pr + 1, tt), tt, O)
            a("s_nop 0")
            a("buffer_store_dwordx4 %s, v13, s[12:15], s%d offen offset:%d %s" % (vr(O), 37 if tt < 2 else 38, (tt & 1) * 2304 + 64 * pr, WT))
    O = 112 + 4 * cnt
    norm_pair(16, 0, 17, 1, O)
    a("s_nop 0")
    a("buffer_store_dwordx4 %s, v9, s[12:15], s39 offen %s" % (vr(O), WT))
    a.label("%s_prep" % name)
    seg_end(a, name)
    a.label("%s_seg3" % name)
    stamp(a, 3)
    a("s_lshl_b32 s42, s22, 4")
    a("s_add_u32 s42, s42, s23")
    a("s_lshl_b32 s36, s21, 8")
    a("s_add_u32 s42, s42, s36")
    a("v_and_b32 v0, 255, v0")
    emit_prep2(a, name)
    stamp(a, 4)
    a("s_waitcnt vmcnt(0)")
    stamp(a, 5)
    a.label("%s_end" % name)
    a("s_endpgm")
    return a.text(), kernel_desc(name, 256, 256), (name, 256, 512, LDSB)


def gen_kmid(name="kmid_kernel"):
    a = Asm()
    NCV = 144
    kernel_begin(a, name)
    a("s_cmp_ge_u32 s2, %d" % (NCV + 256))
    a("s_cbranch_scc1 %s_end" % name)
    a("s_cmp_ge_u32 s2, %d" % NCV)
    a("s_cbranch_scc1 %s_norm" % name)
    txt, _, _ = G.gen_kc("kcx")
    body = txt.split("\n")
    i0 = [n for n, l in enumerate(body) if "s_load_dwordx4 s[4:7], s[0:1], 32" in l][0]
    i1 = [n for n, l in enumerate(body) if l.startswith("kcx_end:")][0]
    a("v_lshrrev_b32 v1, 6, v0")
    a("v_and_b32 v0, 63, v0")
    a("v_readfirstlane_b32 s3, v1")
    a("s_lshl_b32 s2, s2, 2")
    a("s_add_u32 s2, s2, s3")
    a("s_mul_i32 s60, s3, 13056")
    import re
    for l in body[i0:i1]:
        t = l.strip()
        a.lines.append(l)
    a("s_branch %s_end" % name)
    a.label("%s_norm" % name)
    a("s_load_dwordx2 s[6:7], s[0:1], 104")
    a("s_sub_u32 s2, s2, %d" % NCV)
    a("s_waitcnt lgkmcnt(0)")
    srd(a, 12, 6, WS_BYTES)
    a("s_lshr_b32 s20, s2, 3")
    a("s_and_b32 s21, s2, 7")
    a("v_lshlrev_b32 v1, 6, v0")
    a("s_lshl_b32 s22, s20, 14")
    a("s_add_u32 s22, s22, 0x%x" % STATS2)
    for q in range(4):
        a("buffer_load_dwordx4 %s, v1, s[12:15], s22 offen offset:%d" % (vr(8 + 4 * q), 16 * q))
    a("s_lshl_b32 s23, s21, 6")
    a("s_add_u32 s23, s23, s20")
    a("s_mul_i32 s23, s23, 18432")
    if ZIMG: a("s_add_u32 s23, s23, 0x%x" % ZIMG)
    a("s_add_u32 s24, s23, %d" % (32 * 18432 - 18432))
    D = 32
    a("v_lshlrev_b32 v2, 4, v0")
    for n in range(9):
        a("v_add_u32 v%d, %d, v2" % (70 + n, 4096 * n))
        if n == 4:
            a("v_cmp_le_u32 vcc, 128, v0")
            a("v_mov_b32 v3, %d" % (32 * 18432 - 18432))
            a("s_nop 0")
            a("v_cndmask_b32 v3, 0, v3, vcc")
            a("v_add_u32 v%d, v%d, v3" % (70 + n, 70 + n))
        a("buffer_load_dwordx4 %s, v%d, s[12:15], s%d offen" % (vr(D + 4 * n), 70 + n, 23 if n <= 4 else 24))
    a("s_waitcnt vmcnt(9)")
    for st in (8, 4, 2):
        for q in range(0, st, 2):
            a("v_pk_add_f32 %s, %s, %s" % (vr(8 + q, 2), vr(8 + q, 2), vr(8 + q + st, 2)))
    a("s_nop 1")
    for ctl in ("quad_perm:[1,0,3,2]", "quad_perm:[2,3,0,1]"):
        for e in range(2):
            a("v_add_f32_dpp v%d, v%d, v%d %s row_mask:0xf bank_mask:0xf" % (8 + e, 8 + e, 8 + e, ctl))
        a("s_nop 1")
    emit_ln_finish(a, 8, 9, 2304, 10, 12, 14)
    a("v_mul_f32 v13, -v10, v12")
    a("v_lshrrev_b32 v4, 2, v0")
    a("v_and_b32 v5, 35, v4")
    a("v_bfe_u32 v6, v4, 3, 2")
    a("v_lshl_add_u32 v5, v6, 2, v5")
    a("v_bfe_u32 v6, v4, 2, 1")
    a("v_lshl_add_u32 v5, v6, 4, v5")
    a("v_lshlrev_b32 v5, 3, v5")
    a("ds_write_b64 v5, v[12:13]")
    a("s_waitcnt lgkmcnt(0)")
    a("s_barrier")
    for n in range(9):
        a("v_add_u32 v4, %d, v0" % (256 * n - (1152 if n > 4 else 0)))
        if n == 4:
            a("v_subrev_u32 v5, 1152, v4")
            a("v_min_u32 v4, v4, v5")
        a("v_mul_u32_u24 v4, 3641, v4")
        a("v_lshrrev_b32 v4, 16, v4")
        a("v_lshlrev_b32 v4, 3, v4")
        a("ds_read_b64 %s, v4" % vr(80 + 2 * n, 2))
    a("s_waitcnt vmcnt(0) lgkmcnt(0)")
    for n in range(9):
        for d in range(4):
            z = D + 4 * n + d; t = 8 + 2 * d
            a("v_lshlrev_b32 v%d, 16, v%d" % (t, z))
            a("v_and_b32 v%d, 0xffff0000, v%d" % (t + 1, z))
        for d in range(4):
            t = 8 + 2 * d
            a("v_pk_fma_f32 %s, %s, %s, %s op_sel:[0,0,1] op_sel_hi:[1,0,1]" % (vr(t, 2), vr(t, 2), vr(80 + 2 * n, 2), vr(80 + 2 * n, 2)))
        for d in range(4):
            a("v_cvt_pk_bf16_f32 v%d, v%d, v%d" % (D + 4 * n + d, 8 + 2 * d, 9 + 2 * d))
        a("buffer_store_dwordx4 %s, v%d, s[12:15], s%d offen" % (vr(D + 4 * n), 70 + n, 23 if n <= 4 else 24))
    a.label("%s_end" % name)
    a("s_endpgm")
    return a.text(), kernel_desc(name, 224, 224), (name, NCV + 256, 256, 4 * 13056)

gen_k2 = G.gen_k2; gen_k3 = G.gen_k3; gen_kc = G.gen_kc; gen_k0 = G.gen_k0; gen_k1 = G.gen_k1

if __name__ == "__main__":
    which = sys.argv[1]; out = sys.argv[2]
    if len(sys.argv) > 3: DBG.update(sys.argv[3].split(","))
    ks = [globals()["gen_" + w]() for w in which.split(",")]
    open(out, "w").write(assemble_file([k[2] for k in ks], "".join(k[0] for k in ks), [k[1] for k in ks]))
```

```python
import sys, copy
from asmgen import *
import gen as G
import gen2 as G2
from gen import (ZIMG, Z1IMG, PIMG, WOT, KVT, YT, STATS2, STATS1, WS_BYTES, DBG, LdsTracker, vr, stamp, stamp_setup,
                 rnd_pair, f32, emit_xg_reduce, emit_ln_finish)
from gen2 import VmTracker, TILES, tidx, emit_fold_gelu, gelu_consts, seg_end, SPIN_MAX

def emit_kv_loads(a, KD=16, VD=32, SD=44, K56=56, K57=57):
    a("s_mul_hi_u32 s36, s41, 0x%x" % ((2**32 + 8) // 9))
    a("s_mul_i32 s37, s36, 9")
    a("s_sub_u32 s37, s41, s37")
    a("v_and_b32 v1, 31, v0")
    a("v_lshrrev_b32 v10, 5, v0")
    a("s_lshl_b32 s38, s36, 6")
    a("v_lshl_add_u32 v%d, v10, 3, s38" % K56)
    a("s_lshl_b32 s39, s37, 7")
    a("v_lshl_add_u32 v%d, v1, 2, s39" % K57)
    a("v_mul_u32_u24 v5, 1152, v%d" % K56)
    a("v_add_u32 v5, v5, v%d" % K57)
    a("v_subrev_u32 v6, %d, v5" % (3 * 1152))
    a("v_cmp_gt_u32 vcc, 3, v%d" % K56)
    a("v_mov_b32 v7, 0x7ffffff0")
    a("v_add_u32 v9, %d, v5" % 3456)
    a("v_cndmask_b32 v8, v6, v7, vcc")
    a("v_add_u32 v10, %d, v5" % 6912)
    for n in range(3):
        a("buffer_load_dword v%d, v8, s[64:67], 0 offen offset:%d" % (KD + n, 1152 * n))
    for n in range(8):
        base, off = ((5, 1152 * n) if n < 3 else (9, 1152 * (n - 3)) if n < 6 else (10, 1152 * (n - 6)))
        a("buffer_load_dword v%d, v%d, s[64:67], 0 offen offset:%d" % (KD + 3 + n, base, off))
        a("buffer_load_dword v%d, v%d, s[68:71], 0 offen offset:%d" % (VD + n, base, off))
    a("v_lshlrev_b32 v11, 2, v%d" % K57)
    a("buffer_load_dwordx4 %s, v11, s[72:75], 0 offen" % vr(SD))

def emit_kv_compute(a, wait=True, store=True):
    if wait: a("s_waitcnt vmcnt(0)")
    for ch in range(2):
        for q in range(2):
            a("v_lshlrev_b32 v%d, 16, v%d" % (48 + 4 * ch + 2 * q, 44 + 2 * ch + q))
            a("v_and_b32 v%d, 0xffff0000, v%d" % (49 + 4 * ch + 2 * q, 44 + 2 * ch + q))
    for n in range(11):
        a("v_lshlrev_b32 v%d, 16, v%d" % (60 + n, 16 + n))
        a("v_and_b32 v%d, 0xffff0000, v%d" % (72 + n, 16 + n))
    OUT = 100
    for e0 in range(0, 8, 2):
        es = (e0, e0 + 1)
        R_ = {e: (84 + 6 * (e & 1)) for e in es}
        for e in es:
            A0 = R_[e]
            a("v_mul_f32 v%d, v%d, v%d" % (A0, 60 + e, 51)); a("v_mul_f32 v%d, v%d, v%d" % (A0 + 1, 72 + e, 55))
        for e in es: rnd_pair(a, R_[e] + 4, R_[e], R_[e] + 1)
        for t in range(1, 4):
            for e in es:
                A0 = R_[e]
                a("v_mul_f32 v%d, v%d, v%d" % (A0 + 2, 60 + e + t, 51 - t)); a("v_mul_f32 v%d, v%d, v%d" % (A0 + 3, 72 + e + t, 55 - t))
            for e in es: rnd_pair(a, R_[e] + 4, R_[e] + 2, R_[e] + 3)
            for e in es:
                A0 = R_[e]
                a("v_add_f32 v%d, v%d, v%d" % (A0, A0, A0 + 2)); a("v_add_f32 v%d, v%d, v%d" % (A0 + 1, A0 + 1, A0 + 3))
            for e in es: rnd_pair(a, R_[e] + 4, R_[e], R_[e] + 1)
        for e in es:
            A0 = R_[e]
            a("v_lshlrev_b32 v%d, 16, v%d" % (A0 + 2, 32 + e)); a("v_and_b32 v%d, 0xffff0000, v%d" % (A0 + 3, 32 + e))
            a("v_mul_f32 v%d, v%d, v%d" % (OUT + e, A0, A0 + 2)); a("v_mul_f32 v%d, v%d, v%d" % (OUT + 8 + e, A0 + 1, A0 + 3))
    for ch in range(2):
        for q in range(4):
            a("v_cvt_pk_bf16_f32 v%d, v%d, v%d" % (120 + 4 * ch + q, OUT + 8 * ch + 7 - 2 * q, OUT + 8 * ch + 6 - 2 * q))
    a("v_lshlrev_b32 v12, 11, v57")
    a("v_sub_u32 v13, 2040, v56")
    a("v_lshl_add_u32 v12, v13, 1, v12")
    a("v_add_u32 v13, 4096, v12")
    if not store: return
    a("s_mov_b32 s39, 0x%x" % KVT)
    a("buffer_store_dwordx4 v[120:123], v12, s[12:15], s39 offen")
    a("buffer_store_dwordx4 v[124:127], v13, s[12:15], s39 offen")

def emit_wot_loads(a, WD=128, WO=140):
    a("s_mul_i32 s36, s42, 360")
    a("s_mov_b32 s37, 0x%x" % ((2**32 + 9) // 10))
    a("s_mov_b32 s38, 0x%x" % ((2**32 + 17) // 18))
    a("s_mov_b32 s40, 0x%x" % WOT)
    for n in range(2):
        a("v_add_u32 v16, s36, v0")
        if n: a("v_add_u32 v16, 256, v16")
        a("v_mul_hi_u32 v17, v16, s37")
        a("v_mul_u32_u24 v18, 10, v17")
        a("v_sub_u32 v18, v16, v18")
        a("v_lshrrev_b32 v19, 7, v17")
        a("v_and_b32 v20, 127, v17")
        a("v_mul_hi_u32 v21, v19, s38")
        a("v_mul_u32_u24 v22, 18, v21")
        a("v_sub_u32 v22, v19, v22")
        a("v_and_b32 v23, 0x63, v20")
        a("v_bfe_u32 v24, v20, 2, 2")
        a("v_lshl_add_u32 v23, v24, 3, v23")
        a("v_bfe_u32 v24, v20, 4, 1")
        a("v_lshl_add_u32 v23, v24, 2, v23")
        a("v_lshl_add_u32 v23, v22, 7, v23")
        a("v_mul_u32_u24 v23, 1152, v23")
        a("v_lshrrev_b32 v24, 1, v21")
        a("v_mul_u32_u24 v24, 288, v24")
        a("v_add_u32 v23, v23, v24")
        a("v_lshl_add_u32 v23, v18, 4, v23")
        a("v_and_b32 v24, 1, v21")
        a("v_cmp_gt_u32 vcc, 8, v18")
        a("v_mul_u32_u24 v24, 160, v24")
        a("v_lshlrev_b32 v%d, 4, v16" % (WO + n))
        a("v_cndmask_b32 v24, 0, v24, vcc")
        a("v_add_u32 v23, v23, v24")
        if n == 1:
            a("v_cmp_gt_u32 vcc, 104, v0")
            a("v_mov_b32 v24, 0x7ffffff0")
            a("s_nop 0")
            a("v_cndmask_b32 v23, v24, v23, vcc")
            a("v_cndmask_b32 v%d, v24, v%d, vcc" % (WO + 1, WO + 1))
        a("buffer_load_dwordx4 %s, v23, s[76:79], 0 offen" % vr(WD + 4 * n))

CJ_EB = 0; CJ_OB = 4224; CJ_UB = 8448; CJ_SIZE = 13056
def emit_conv_job(a, name):
    EB, OB, UB = CJ_EB, CJ_OB, CJ_UB
    a("s_lshl_b32 s36, s43, 12")
    a("v_lshlrev_b32 v4, 4, v2")
    H = [56, 64, 72, 80]
    for n in range(4):
        a("buffer_load_dwordx4 %s, v4, s[16:19], s36 offen offset:%d" % (vr(H[n]), 1024 * n))
    a("v_add_u32 v5, 16, v4")
    for n in range(4):
        a("buffer_load_dword v%d, v5, s[16:19], s36 offen offset:%d" % (H[n] + 4, 1024 * n))
    a("s_add_u32 s37, s36, 0x%x" % KVT)
    a("s_add_u32 s38, s27, %d" % UB)
    a("s_mov_b32 m0, s38")
    a("v_add_u32 v12, s27, v4")
    for n in range(4):
        a("buffer_load_dwordx4 v4, s[12:15], s37 offen offset:%d sc1 lds" % (1024 * n))
    a("s_lshl_b32 s38, s43, 1")
    a("v_mov_b32 v6, s38")
    a("buffer_load_ushort v13, v6, s[84:87], 0 offen")
    for r in range(8, 12): a("v_mov_b32 v%d, 0" % r)
    a("v_lshlrev_b32 v5, 3, v2")
    a("v_add_u32 v5, s27, v5")
    a("ds_write_b64 v5, v[8:9] offset:%d" % (UB + 4096))
    a("s_and_b64 exec, exec, 3")
    a("ds_write_b128 v12, v[8:11] offset:%d" % EB)
    a("ds_write_b128 v12, v[8:11] offset:%d" % OB)
    a("s_mov_b64 exec, s[96:97]")
    a("v_and_b32 v5, 15, v2")
    a("v_lshrrev_b32 v6, 4, v2")
    a("v_lshl_add_u32 v7, v6, 3, v5")
    a("v_and_b32 v8, 1, v5")
    a("v_add_u32 v7, v7, v8")
    a("v_lshlrev_b32 v7, 1, v7")
    a("v_cmp_eq_u32 vcc, 0, v8")
    a("v_mov_b32 v9, %d" % EB); a("v_mov_b32 v10, %d" % OB)
    a("v_cndmask_b32 v9, v9, v10, vcc")
    a("v_add3_u32 v7, v7, v9, s27")
    AA = 52
    for q in range(4):
        a("v_add_u32 v%d, %d, v7" % (AA + q, 1024 * q))
    a("v_lshlrev_b32 v9, 4, v6")
    a("v_lshlrev_b32 v10, 5, v5")
    a("v_sub_u32 v9, v9, v10")
    a("s_add_u32 s38, s27, %d" % (UB + 480))
    a("v_add_u32 v11, s38, v9")
    a("v_lshlrev_b32 v9, 5, v5")
    a("v_lshl_add_u32 v9, v6, 3, v9")
    a("s_add_u32 s38, s27, %d" % (UB + 4088 - 3584))
    a("v_sub_u32 v10, s38, v9")
    a("s_waitcnt vmcnt(0) lgkmcnt(0)")
    for n in range(4):
        a("ds_write_b128 v12, %s offset:%d" % (vr(H[n]), EB + 32 + 1024 * n))
        for q in range(4):
            a("v_alignbit_b32 v%d, v%d, v%d, 16" % (88 + 4 * (n & 1) + q, H[n] + q + 1, H[n] + q))
        a("ds_write_b128 v12, %s offset:%d" % (vr(88 + 4 * (n & 1)), OB + 32 + 1024 * n))
    a("s_and_b64 exec, exec, 1")
    a("v_mov_b32 v5, s27")
    a("ds_write_b16 v5, v%d offset:%d" % (H[0], OB + 30))
    a("s_mov_b64 exec, s[96:97]")
    ACC = 96; AF = [112, 176]; BF = [144, 208]
    for r in range(ACC, ACC + 16): a("v_mov_b32 v%d, 0" % r)
    a("v_lshlrev_b32 v13, 16, v13")
    a("s_add_u32 s37, s36, 0x%x" % YT)
    a("s_lshl_b32 s33, s99, 2")
    a("s_waitcnt lgkmcnt(0)")
    a("s_cmp_eq_u32 s26, 1")
    a("s_cbranch_scc1 %s_cj1" % name)
    for hv, tiles in enumerate(([7, 6, 1, 0], [5, 4, 3, 2])):
        if hv: a.label("%s_cj1" % name)
        nq = max(tiles) + 1
        trk = LdsTracker(a)
        def reads(kk, buf):
            L = []
            for q in range(nq):
                r = BF[buf] + 4 * q
                L.append(("ds_read_b128 %s, v11 offset:%d" % (vr(r), 3584 - 512 * q + 64 * kk), range(r, r + 4)))
                r = AF[buf] + 4 * q
                o = 128 * (q & 1) + 16 * kk
                L.append(("ds_read2_b32 %s, v%d offset0:%d offset1:%d" % (vr(r, 2), AA + (q >> 1), o, o + 1), range(r, r + 2)))
                L.append(("ds_read2_b32 %s, v%d offset0:%d offset1:%d" % (vr(r + 2, 2), AA + (q >> 1), o + 2, o + 3), range(r + 2, r + 4)))
            return L
        for t, r in reads(0, 0):
            a(t); trk.issue(r)
            if len(trk.out) >= 12: trk.drain()
        trk.drain()
        ms = sorted([(max(jj, n - jj), ti, n, jj) for ti, n in enumerate(tiles) for jj in range(n + 1)])
        def step(buf, kk_next, upd):
            nxt = [("x", u) for u in upd] + [("r", x) for x in reads(kk_next, 1 - buf)]
            for (_, ti, n, jj) in ms:
                A = AF[buf] + 4 * jj; B = BF[buf] + 4 * (n - jj); c = ACC + 4 * ti
                trk.need(list(range(A, A + 4)) + list(range(B, B + 4)))
                a("v_mfma_f32_16x16x32_bf16 %s, %s, %s, %s" % (vr(c), vr(A), vr(B), vr(c)))
                for _ in range(2):
                    if nxt and len(trk.out) < 13:
                        k, t = nxt.pop(0)
                        if k == "x": a(t)
                        else: a(t[0]); trk.issue(t[1])
            for k, t in nxt:
                if k == "x": a(t)
                else:
                    if len(trk.out) >= 13: trk.drain()
                    a(t[0]); trk.issue(t[1])
        upd = ["v_add_u32 v11, 128, v11"] + ["v_add_u32 v%d, 128, v%d" % (AA + q, AA + q) for q in range((nq + 1) // 2)] + ["s_add_u32 s33, s33, 1"]
        a.label("%s_cjl%d" % (name, hv))
        lb = len(a.lines)
        step(0, 1, []); step(1, 0, upd)
        st = copy.deepcopy(trk.out); del a.lines[lb:]; trk.out = copy.deepcopy(st)
        step(0, 1, []); step(1, 0, upd)
        assert [sorted(x) for x in trk.out] == [sorted(x) for x in st]
        a("s_cmp_lt_u32 s33, 4")
        a("s_cbranch_scc1 %s_cjl%d" % (name, hv))
        trk.drain()
        for ti, n in enumerate(tiles):
            a("ds_read_b64 %s, v10 offset:%d" % (vr(112 + 2 * ti, 2), 3584 - 512 * n))
        a("s_waitcnt lgkmcnt(0)")
        for ti, n in enumerate(tiles):
            c = ACC + 4 * ti; U = 112 + 2 * ti; T = 120
            a("v_and_b32 v%d, 0xffff0000, v%d" % (T + 0, U + 1)); a("v_lshlrev_b32 v%d, 16, v%d" % (T + 1, U + 1))
            a("v_and_b32 v%d, 0xffff0000, v%d" % (T + 2, U)); a("v_lshlrev_b32 v%d, 16, v%d" % (T + 3, U))
            for r in range(4): a("v_mul_f32 v%d, v%d, v13" % (T + r, T + r))
            rnd_pair(a, T + 4, T, T + 1); rnd_pair(a, T + 4, T + 2, T + 3)
            rnd_pair(a, T + 4, c, c + 1); rnd_pair(a, T + 4, c + 2, c + 3)
            for r in range(4): a("v_add_f32 v%d, v%d, v%d" % (c + r, c + r, T + r))
            a("v_cvt_pk_bf16_f32 v%d, v%d, v%d" % (U, c, c + 1))
            a("v_cvt_pk_bf16_f32 v%d, v%d, v%d" % (U + 1, c + 2, c + 3))
            a("buffer_store_dwordx2 %s, v9, s[12:15], s37 offen offset:%d" % (vr(U, 2), 512 * n))
        if hv == 0:
            a("s_cmp_eq_u32 s99, 0")
            a("s_cbranch_scc1 %s_cjdone" % name)
    a.label("%s_cjdone" % name)

def gen_k1e(name="k1_kernel"):
    a = Asm()
    TS = 16384; NT = 3; TB0 = 4096; FB_ = TB0 + NT * TS; FSL = 18432; NF = 6; FS = 576; NK = 18
    LDSB = FB_ + NF * FSL; RST = 0; CSO = 1024; CJB = TB0 + 4 * 18432
    kernel_begin(a, name)
    a("s_load_dwordx2 s[80:81], s[0:1], 0")
    a("s_load_dwordx2 s[4:5], s[0:1], 56")
    a("s_cmp_ge_u32 s2, 256")
    a("s_cbranch_scc1 %s_end" % name)
    a("v_lshrrev_b32 v1, 6, v0")
    a("v_and_b32 v2, 63, v0")
    a("v_readfirstlane_b32 s3, v1")
    a("s_and_b32 s20, s2, 7")
    a("s_lshr_b32 s21, s2, 3")
    a("s_and_b32 s22, s20, 1")
    a("s_lshl_b32 s22, s22, 3")
    a("s_and_b32 s23, s21, 7")
    a("s_add_u32 s22, s22, s23")
    a("s_lshr_b32 s21, s21, 3")
    a("s_and_b32 s23, s20, 6")
    a("s_and_b32 s24, s21, 1")
    a("s_add_u32 s23, s23, s24")
    a("s_lshr_b32 s21, s21, 1")
    a("s_mov_b32 s99, 0")
    a("s_mov_b64 s[96:97], -1")
    a("s_cmp_lt_u32 s3, 4")
    a("s_cbranch_scc1 %s_consumer" % name)
    a("s_setprio 3")
    a("s_sub_u32 s3, s3, 4")
    a("v_lshrrev_b32 v3, 3, v2")
    a("v_and_b32 v4, 7, v2")
    VT = 16; VF = 20
    a("s_lshl_b32 s24, s3, 5")
    a("v_add_u32 v5, s24, v3")
    a("v_lshrrev_b32 v7, 4, v2")
    a("v_xor_b32 v7, v7, v4")
    a("v_mul_u32_u24 v6, 1152, v5")
    a("v_lshl_add_u32 v%d, v7, 4, v6" % VT)
    a("v_xor_b32 v%d, 64, v%d" % (VT + 1, VT))
    a("v_add_u32 v%d, %d, v%d" % (VT + 1, 9216 - 1024, VT + 1))
    a("v_add_u32 v%d, %d, v%d" % (VT + 2, 2 * (9216 - 1024), VT))
    a("v_add_u32 v%d, %d, v%d" % (VT + 3, 2 * (9216 - 1024), VT + 1))
    a("s_mul_i32 s26, s22, %d" % (128 * 1152))
    a("s_lshl_b32 s24, s3, 12")
    a("s_add_u32 s24, s24, %d" % TB0)
    a("s_mov_b32 s33, 0")
    a("s_waitcnt lgkmcnt(0)")
    srd(a, 28, 80, 2048 * 576 * 2)
    vm = VmTracker(a)
    def issueT(m):
        a("s_add_u32 s35, s33, s24")
        a("s_mov_b32 m0, s35")
        a("s_add_u32 s33, s33, %d" % TS)
        for n in range(4):
            if "nodma" not in DBG: a("buffer_load_dwordx4 v%d, s[28:31], s26 offen offset:%d lds" % (VT + n, 1024 * n))
        a("s_add_u32 s26, s26, 128")
        a("s_cmp_eq_u32 s33, %d" % (NT * TS))
        a("s_cselect_b32 s33, 0, s33")
        vm.issue("T%d" % m, 4)
    issueT(0)
    srd(a, 8, 4, 576 * 4608 * 2)
    for n in range(5):
        if n: a("v_add_u32 v6, %d, v2" % (64 * n))
        src = "v6" if n else "v2"
        a("v_mul_u32_u24 v7, 1821, %s" % src)
        a("v_lshrrev_b32 v7, 16, v7")
        a("v_mul_u32_u24 v8, 36, v7")
        a("v_sub_u32 v8, %s, v8" % src)
        a("v_bfe_u32 v9, v7, 2, 1")
        a("v_lshlrev_b32 v6, 1, v9")
        a("v_xor_b32 v8, v8, v6")
        a("v_and_b32 v7, 3, v7")
        a("v_lshl_add_u32 v7, v9, 3, v7")
        a("v_mul_u32_u24 v7, 9216, v7")
        a("v_lshl_add_u32 v%d, v8, 4, v7" % (VF + n))
        if 0 < n < 4: a("v_subrev_u32 v%d, %d, v%d" % (VF + n, 1024 * n, VF + n))
    a("s_and_b32 s36, s3, 1")
    a("s_lshl_b32 s36, s36, 4")
    a("s_lshr_b32 s37, s3, 1")
    a("s_lshl_b32 s37, s37, 2")
    a("s_add_u32 s36, s36, s37")
    a("s_mul_i32 s27, s36, 9216")
    a("s_mul_i32 s36, s23, 576")
    a("s_add_u32 s27, s27, s36")
    a("s_cmp_eq_u32 s21, 0")
    a("s_cselect_b32 s36, 4608, 0")
    a("s_add_u32 s27, s27, s36")
    a("s_mul_i32 s25, s3, 4608")
    a("s_add_u32 s25, s25, %d" % FB_)
    a("s_mov_b32 s34, 0")
    def issueF(k):
        a("s_add_u32 s35, s34, s25")
        a("s_mov_b32 m0, s35")
        a("s_add_u32 s36, s35, 4096")
        for n in range(4):
            if "nodma" not in DBG: a("buffer_load_dwordx4 v%d, s[8:11], s27 offen offset:%d lds" % (VF + n, 1024 * n))
        a("s_mov_b32 m0, s36")
        a("s_mov_b64 exec, 0xffffffff")
        if "nodma" not in DBG: a("buffer_load_dwordx4 v%d, s[8:11], s27 offen lds" % (VF + 4))
        a("s_mov_b64 exec, -1")
        a("s_add_u32 s27, s27, %d" % (32 * 9216))
        a("s_add_u32 s34, s34, %d" % FSL)
        a("s_cmp_eq_u32 s34, %d" % (NF * FSL))
        a("s_cselect_b32 s34, 0, s34")
        vm.issue("F%d" % k, 5)
    issueF(0); issueF(1)
    def other_setup():
        a("s_load_dwordx2 s[6:7], s[0:1], 104")
        a("s_load_dwordx2 s[18:19], s[0:1], 96")
        a("s_load_dwordx4 s[88:91], s[0:1], 32")
        a("s_waitcnt lgkmcnt(0)")
        srd(a, 12, 6, WS_BYTES)
        srd(a, 60, 18, 256)
        srd(a, 16, 88, 576 * 2048 * 2)
        srd(a, 84, 90, 576 * 2)
    other_setup()
    a("s_add_u32 s3, s3, 4"); stamp_setup(a, 1); stamp(a, 0); a("s_sub_u32 s3, s3, 4")
    SS = [28, 30, 32, 34]; ONE = 36
    for r in range(28, 36): a("v_mov_b32 v%d, 0" % r)
    for r in range(ONE, ONE + 4): a("v_mov_b32 v%d, 0x3f803f80" % r)
    CA = 40
    for r in range(CA, CA + 20): a("v_mov_b32 v%d, 0" % r)
    XB = 64; CF = 80
    a("v_lshlrev_b32 v10, 4, v2")
    a("v_add_u32 v10, s24, v10")
    a("v_lshrrev_b32 v11, 2, v2")
    a("v_mul_u32_u24 v11, %d, v11" % FS)
    a("v_and_b32 v12, 3, v2")
    a("v_lshl_add_u32 v11, v12, 3, v11")
    a("v_bfe_u32 v13, v2, 4, 1")
    a("v_lshlrev_b32 v13, 5, v13")
    a("s_lshr_b32 s36, s3, 1")
    a("s_mul_i32 s37, s36, 9")
    a("s_and_b32 s38, s3, 1")
    a("s_lshl_b32 s38, s38, 2")
    a("s_add_u32 s37, s37, s38")
    a("s_lshl_b32 s40, s37, 6")
    a("s_lshl_b32 s37, s37, 5")
    a("s_add_u32 s37, s37, %d" % FB_)
    a("v_add_u32 v11, s37, v11")
    a("v_add_u32 v5, v11, v13")
    a("v_sub_u32 v6, v11, v13")
    a("s_cmp_eq_u32 s36, 0")
    a("s_cselect_b64 vcc, -1, 0")
    a("v_cndmask_b32 v11, v6, v5, vcc")
    a("v_cndmask_b32 v12, v5, v6, vcc")
    def rowstats_rd(m):
        if "nors" in DBG: return
        a("v_add_u32 v5, %d, v10" % ((m % NT) * TS))
        for n in range(4):
            a("ds_read_b128 %s, v5 offset:%d" % (vr(XB + 4 * n), 1024 * n))
    def rowstats_do():
        if "nors" in DBG: return
        for d in range(4):
            for n in range(4):
                r = XB + 4 * n + d
                a("v_dot2_f32_bf16 v%d, v%d, v%d, v%d" % (SS[n], r, ONE, SS[n]))
                a("v_dot2_f32_bf16 v%d, v%d, v%d, v%d" % (SS[n] + 1, r, r, SS[n] + 1))
    def colsum_rd(k):
        if "nocs" in DBG: return
        a("v_add_u32 v6, %d, v11" % ((k % NF) * FSL))
        a("v_add_u32 v7, %d, v12" % ((k % NF) * FSL))
        for q in range(5):
            for half in range(2):
                a("ds_read_b64_tr_b16 %s, v%d offset:%d" % (vr(CF + 4 * q + 2 * half, 2), 6 + (q & 1), 16 * half * FS + 32 * q))
    def colsum_do():
        if "nocs" in DBG: return
        for q in range(5):
            a("v_mfma_f32_16x16x32_bf16 %s, %s, %s, %s" % (vr(CA + 4 * q), vr(CF + 4 * q), vr(ONE), vr(CA + 4 * q)))
    vm.wait(["T0", "F0"])
    a("s_barrier")
    stamp(a, 1)
    colsum_rd(0); rowstats_rd(0)
    issueT(1); issueF(2); issueF(3)
    a("s_waitcnt lgkmcnt(0)")
    colsum_do(); rowstats_do()
    vm.wait(["F1"])
    a("s_barrier")
    for k in range(NK):
        rs = (k % 2 == 1 and (k + 1) // 2 < 9)
        if k + 1 < NK: colsum_rd(k + 1)
        if rs: rowstats_rd((k + 1) // 2)
        if k == 0:
            issueF(4); issueT(2); issueF(5)
        if k >= 1 and k + 5 < NK: issueF(k + 5)
        if k % 2 == 1 and (k - 1) // 2 + 3 < 9: issueT((k - 1) // 2 + 3)
        a("s_waitcnt lgkmcnt(0)")
        if k + 1 < NK: colsum_do()
        if rs: rowstats_do()
        if k + 1 < NK:
            vm.wait(["F%d" % (k + 2), "T%d" % ((k + 2) // 2)])
            a("s_barrier")
    a("s_nop 3")
    for ctl in ("quad_perm:[1,0,3,2]", "quad_perm:[2,3,0,1]", "row_half_mirror"):
        for rg in range(4):
            for e in range(2):
                a("v_add_f32_dpp v%d, v%d, v%d %s row_mask:0xf bank_mask:0xf" % (SS[rg] + e, SS[rg] + e, SS[rg] + e, ctl))
        a("s_nop 1")
    ML = 64
    for rg in range(4):
        emit_ln_finish(a, SS[rg], SS[rg] + 1, 576, ML + 2 * rg, ML + 2 * rg + 1, 76)
        a("v_mov_b32 v%d, v%d" % (SS[rg] + 1, ML + 2 * rg + 1))
        a("v_sub_f32 v%d, 0, v%d" % (SS[rg], ML + 2 * rg))
    a("s_lshl_b32 s35, s3, 8")
    a("v_lshlrev_b32 v6, 3, v3")
    a("v_add_u32 v12, s35, v6")
    a("v_cmp_eq_u32 vcc, 0, v4")
    a("s_and_saveexec_b64 s[36:37], vcc")
    for rg in range(4):
        a("ds_write_b64 v12, %s offset:%d" % (vr(SS[rg], 2), RST + 64 * rg))
    a("s_mov_b64 exec, s[36:37]")
    a("s_lshl_b32 s36, s21, 8")
    a("s_or_b32 s36, s36, s23")
    a("s_cmp_lg_u32 s36, 256")
    a("s_cbranch_scc1 %s_nost1" % name)
    a("s_lshl_b32 s35, s22, 7")
    a("s_lshl_b32 s36, s3, 5")
    a("s_add_u32 s35, s35, s36")
    a("s_lshl_b32 s35, s35, 3")
    a("s_add_u32 s35, s35, 0x%x" % STATS1)
    a("v_mov_b32 v7, 0x7ffffff0")
    a("v_cndmask_b32 v6, v7, v6, vcc")
    for rg in range(4):
        a("buffer_store_dwordx2 %s, v6, s[12:15], s35 offen offset:%d" % (vr(ML + 2 * rg, 2), 64 * rg))
    a.label("%s_nost1" % name)
    a("v_lshrrev_b32 v12, 4, v2")
    a("v_lshlrev_b32 v12, 4, v12")
    a("v_add_u32 v12, s40, v12")
    a("v_and_b32 v13, 15, v2")
    a("v_cmp_eq_u32 vcc, 0, v13")
    a("s_and_saveexec_b64 s[36:37], vcc")
    for q in range(5):
        a("ds_write_b128 v12, %s offset:%d" % (vr(CA + 4 * q), CSO + 64 * q))
    a("s_mov_b64 exec, s[36:37]")
    a("s_waitcnt lgkmcnt(0)")
    a("s_barrier")
    a("s_setprio 0")
    ACC = 112
    a("s_lshr_b32 s24, s3, 1")
    a("s_and_b32 s25, s3, 1")
    a("v_and_b32 v3, 15, v2")
    a("s_lshl_b32 s23, s23, 1")
    a("s_add_u32 s23, s23, 1")
    a("s_mov_b32 s40, 576")
    a("s_mov_b32 s98, 1")
    a("s_mul_i32 s36, s3, 18432")
    a("s_add_u32 s36, s36, %d" % TB0)
    a("v_lshlrev_b32 v10, 4, v2")
    a("v_add_u32 v11, s36, v10")
    a("s_barrier")
    for n in range(18):
        a("ds_read_b128 %s, v11 offset:%d" % (vr(ACC + 4 * n), 1024 * n))
        if n in (7, 13): a("s_waitcnt lgkmcnt(4)")
    a("s_branch %s_epi" % name)

    def gran_addr():
        a("v_lshrrev_b32 v10, 4, v2")
        a("s_lshl_b32 s33, s25, 1")
        a("v_add_u32 v11, s33, v10")
        a("v_and_b32 v11, 3, v11")
        a("v_lshl_add_u32 v11, v11, 4, v3")
        a("v_lshlrev_b32 v94, 8, v11")
        a("s_lshl_b32 s59, s22, 7")
        a("s_lshl_b32 s36, s24, 6")
        a("s_add_u32 s59, s59, s36")
        a("s_lshl_b32 s59, s59, 8")
        a("s_add_u32 s59, s59, 0x%x" % STATS2)
        a("s_lshl_b32 s36, s23, 1")
        a("s_add_u32 s36, s36, s25")
        a("s_lshl_b32 s36, s36, 3")
        a("s_add_u32 s58, s36, s59")
    a.label("%s_consumer" % name)
    a("s_load_dwordx4 s[64:67], s[0:1], 8")
    a("s_load_dwordx2 s[76:77], s[0:1], 24")
    a("s_load_dwordx2 s[78:79], s[0:1], 64")
    other_setup()
    srd(a, 68, 66, 2048 * 576 * 2)
    a("s_mov_b32 s100, s64"); a("s_mov_b32 s101, s65")
    srd(a, 64, 100, 2048 * 576 * 2)
    srd(a, 72, 76, 576 * 8)
    srd(a, 92, 78, 2048 * 2048 * 2)
    stamp_setup(a, 1); stamp(a, 0)
    a("s_lshr_b32 s24, s3, 1")
    a("s_and_b32 s25, s3, 1")
    a("v_and_b32 v3, 15, v2")
    a("s_lshl_b32 s23, s23, 1")
    a("s_mov_b32 s98, 0")
    a("s_mov_b32 s41, s2")
    a.label("%s_kv" % name)
    emit_kv_loads(a)
    a("s_cmp_lg_u32 s41, s2")
    a("s_cbranch_scc1 %s_kv2" % name)
    a("s_cmp_lg_u32 s21, 0")
    a("s_cbranch_scc1 %s_noclr" % name)
    gran_addr()
    a("v_mov_b32 v12, 0"); a("v_mov_b32 v13, 0x80000000")
    a("buffer_store_dwordx2 v[12:13], v94, s[12:15], s58 offen sc1")
    a("buffer_store_dwordx2 v[12:13], v94, s[12:15], s58 offen offset:16 sc1")
    a.label("%s_noclr" % name)
    if "nowarm" not in DBG:
        a("s_mov_b32 s99, 1")
        for r_ in (26, 27, 33, 36, 37, 38, 39, 40, 43, 58, 59): a("s_mov_b32 s%d, 0" % r_)
        for r_ in (4, 12, 13, 94): a("v_mov_b32 v%d, 0" % r_)
        a("s_mov_b64 s[96:97], 0")
        a("s_mov_b64 exec, 0")
        a("s_cmp_eq_u32 s3, 0"); a("s_cbranch_scc1 %s_epi" % name)
        a("s_cmp_eq_u32 s3, 1"); a("s_cbranch_scc1 %s_seg1" % name)
        a("s_cmp_eq_u32 s3, 2"); a("s_cbranch_scc1 %s_seg2" % name)
        a("s_branch %s_seg3" % name)
        a.label("%s_warmret" % name)
        a("s_mov_b64 s[96:97], -1")
        a("s_mov_b64 exec, -1")
        a("s_mov_b32 s99, 0")
    a.label("%s_kv2" % name)
    emit_kv_compute(a)
    a("s_add_u32 s41, s41, 32")
    a("s_cmp_lt_u32 s41, 256")
    a("s_cbranch_scc1 %s_kvd" % name)
    a("s_cmp_lt_u32 s41, 288")
    a("s_cbranch_scc1 %s_kv" % name)
    a.label("%s_kvd" % name)
    TB = [16, 32]; FR = 48
    vTa, vTb, vP = 4, 5, [6, 7]; vH = [8, 9]
    bTa = [88, 89]; bTb = [90, 91]; bP = [92, 93]; bH = [100, 101]
    PF = 96
    a("v_lshrrev_b32 v10, 4, v2")
    a("v_lshrrev_b32 v11, 1, v3")
    a("v_xor_b32 v10, v10, v11")
    a("v_lshlrev_b32 v10, 4, v10")
    a("v_lshl_add_u32 v10, v3, 7, v10")
    a("s_lshl_b32 s26, s24, 13")
    a("s_add_u32 s26, s26, %d" % TB0)
    a("v_add_u32 v10, s26, v10")
    a("s_lshl_b32 s26, s25, 12")
    a("v_add_u32 v%d, s26, v10" % bTa[0])
    a("s_xor_b32 s26, s26, 4096")
    a("v_add_u32 v%d, s26, v10" % bTb[0])
    a("v_xor_b32 v%d, 64, v%d" % (bTa[1], bTa[0]))
    a("v_xor_b32 v%d, 64, v%d" % (bTb[1], bTb[0]))
    a("v_lshrrev_b32 v10, 2, v2")
    a("v_mul_u32_u24 v10, %d, v10" % FS)
    a("v_and_b32 v11, 3, v2")
    a("v_lshl_add_u32 v10, v11, 3, v10")
    a("v_add_u32 v10, %d, v10" % FB_)
    a("v_bfe_u32 v13, v2, 4, 1")
    a("v_lshlrev_b32 v13, 5, v13")
    a("v_add_u32 v%d, v10, v13" % bH[0])
    a("v_sub_u32 v%d, v10, v13" % bH[1])
    a("s_mul_i32 s26, s25, 160")
    a("s_cmp_eq_u32 s25, 0")
    a("s_cselect_b64 vcc, -1, 0")
    a("v_cndmask_b32 v11, v%d, v%d, vcc" % (bH[1], bH[0]))
    a("v_cndmask_b32 v12, v%d, v%d, vcc" % (bH[0], bH[1]))
    a("v_add_u32 v%d, s26, v11" % bP[0])
    a("v_add_u32 v%d, s26, v12" % bP[1])
    a("v_lshrrev_b32 v10, 4, v2")
    a("v_lshlrev_b32 v10, 12, v10")
    a("v_lshl_add_u32 v95, v3, 4, v10")
    a("s_lshl_b32 s41, s22, 7")
    a("s_lshl_b32 s36, s3, 5")
    a("s_add_u32 s41, s41, s36")
    a("s_lshl_b32 s41, s41, 12")
    a("s_add_u32 s36, s23, s21")
    a("s_lshl_b32 s36, s36, 8")
    a("s_add_u32 s41, s41, s36")
    for r in range(ACC, ACC + 144): a("v_mov_b32 v%d, 0" % r)
    def accr(z, ft, tt): return ACC + 72 * z + 4 * tidx(ft, tt)
    def Fr(z, ft): return FR + 20 * z + 4 * ft
    trk = LdsTracker(a)
    def treads(buf):
        L = []
        for tt in range(4):
            r = TB[buf] + 4 * tt
            L.append(("ds_read_b128 %s, v%d offset:%d" % (vr(r), vTa if tt < 2 else vTb, (tt & 1) * 2048), range(r, r + 4)))
        return L
    def freads(z, ft):
        r = Fr(z, ft); L = []
        for half in range(2):
            off = 16 * half * FS + 32 * (9 * z + ft)
            v = vP[(z + ft) & 1] if ft < 4 else vH[z]
            L.append(("ds_read_b64_tr_b16 %s, v%d offset:%d" % (vr(r + 2 * half, 2), v, off), range(r + 2 * half, r + 2 * half + 2)))
        return L
    def rd(t):
        a(t[0]); trk.issue(t[1])
    fpairs = ((vP[0], bP[0]), (vP[1], bP[1]), (vH[0], bH[0]), (vH[1], bH[1]))
    a("v_mov_b32 v%d, v%d" % (vTa, bTa[0])); a("v_mov_b32 v%d, v%d" % (vTb, bTb[0]))
    for d, s_ in fpairs: a("v_mov_b32 v%d, v%d" % (d, s_))
    a("s_mov_b32 s27, 0")
    a("s_mov_b32 s34, 0")
    a("s_mov_b32 s33, 0")
    stamp(a, 1)
    a("s_barrier")
    stamp(a, 2)
    for t in treads(0): rd(t)
    for z in range(2):
        for ft in range(5):
            for t in freads(z, ft): rd(t)
            if len(trk.out) >= 12: trk.drain()
    trk.drain()
    def iteration(par):
        a("s_barrier")
        upd = []
        if par == 1:
            upd += ["s_add_u32 s27, s27, %d" % TS, "s_cmp_eq_u32 s27, %d" % (NT * TS), "s_cselect_b32 s27, 0, s27"]
        upd += ["v_add_u32 v%d, s27, v%d" % (vTa, bTa[1 - par]), "v_add_u32 v%d, s27, v%d" % (vTb, bTb[1 - par])]
        upd += ["s_add_u32 s34, s34, %d" % FSL, "s_cmp_eq_u32 s34, %d" % (NF * FSL), "s_cselect_b32 s34, 0, s34"]
        upd += ["v_add_u32 v%d, s34, v%d" % (d, s_) for d, s_ in fpairs]
        pend = [("x", u) for u in upd] + [("r", t) for t in treads(1 - par)]
        if par == 0:
            pend.append(("x", "buffer_load_dwordx4 %s, v95, s[92:95], s41 offen" % vr(PF)))
            pend.append(("x", "s_add_u32 s41, s41, 16384"))
        else:
            pend.append(("x", "s_add_u32 s33, s33, 1"))
        nm = 0
        for z in range(2):
            for ft in range(5):
                for tt in range(4 if ft < 4 else 2):
                    c = accr(z, ft, tt); A = Fr(z, ft); B = TB[par] + 4 * tt
                    trk.need(list(range(A, A + 4)) + list(range(B, B + 4)))
                    if "nomfma" not in DBG: a("v_mfma_f32_16x16x32_bf16 %s, %s, %s, %s" % (vr(c), vr(A), vr(B), vr(c)))
                    nfill = 1
                    while pend and nfill:
                        k, t = pend.pop(0)
                        if k == "x":
                            a(t)
                            if t.startswith("s_") and nm < 8: continue
                        else: rd(t)
                        nfill -= 1
                    nm += 1
                pend += [("r", t) for t in freads(z, ft)]
        for k, t in pend:
            if k == "x": a(t)
            else: rd(t)
        a("s_waitcnt lgkmcnt(15)")
        if len(trk.out) > 15: trk.out = trk.out[-15:]
    a.label("%s_cloop" % name)
    trk.out = []
    lb = len(a.lines)
    iteration(0); iteration(1)
    state = copy.deepcopy(trk.out)
    del a.lines[lb:]
    trk.out = copy.deepcopy(state)
    iteration(0); iteration(1)
    assert [sorted(x) for x in trk.out] == [sorted(x) for x in state]
    a("s_cmp_lt_u32 s33, %d" % (NK // 2))
    a("s_cbranch_scc1 %s_cloop" % name)
    trk.drain()
    stamp(a, 3)
    a("s_waitcnt vmcnt(0)")
    a("s_barrier")
    a("s_cmp_lg_u32 s3, 0")
    a("s_cbranch_scc1 %s_nosig" % name)
    a("v_mov_b32 v10, 1")
    a("s_lshl_b32 s36, s22, 2")
    a("v_mov_b32 v11, s36")
    a("s_mov_b64 exec, 1")
    a("buffer_atomic_add v10, v11, s[60:63], 0 offen sc1")
    a("s_mov_b64 exec, -1")
    a.label("%s_nosig" % name)
    a("s_mul_i32 s36, s3, 18432")
    a("s_add_u32 s36, s36, %d" % TB0)
    a("v_lshlrev_b32 v10, 4, v2")
    a("v_add_u32 v11, s36, v10")
    for n, (ft, tt) in enumerate(TILES):
        a("ds_write_b128 v11, %s offset:%d" % (vr(accr(1, ft, tt)), 1024 * tidx(ft, tt)))
        if n in (7, 13): a("s_waitcnt lgkmcnt(4)")
    a("s_mov_b32 s40, 0")
    a("s_waitcnt lgkmcnt(0)")
    a("s_barrier")
    a.label("%s_epi" % name)
    MR = 100; CS = 52; ZP = 16; T = 72
    gelu_consts(a)
    a("s_lshl_b32 s36, s24, 9")
    a("s_lshl_b32 s37, s25, 8")
    a("s_add_u32 s38, s36, s37")
    a("s_xor_b32 s37, s37, 256")
    a("s_add_u32 s39, s36, s37")
    a("v_lshlrev_b32 v10, 3, v3")
    a("v_add_u32 v11, s38, v10")
    a("ds_read_b64 %s, v11 offset:%d" % (vr(MR, 2), RST))
    a("ds_read_b64 %s, v11 offset:%d" % (vr(MR + 2, 2), RST + 128))
    a("v_add_u32 v11, s39, v10")
    a("ds_read_b64 %s, v11 offset:%d" % (vr(MR + 4, 2), RST))
    a("ds_read_b64 %s, v11 offset:%d" % (vr(MR + 6, 2), RST + 128))
    a("v_lshrrev_b32 v10, 4, v2")
    a("v_lshlrev_b32 v10, 4, v10")
    a("v_add_u32 v10, s40, v10")
    a("s_mul_i32 s36, s25, 320")
    a("v_add_u32 v11, s36, v10")
    a("s_waitcnt lgkmcnt(6)")
    for ft in range(4):
        a("ds_read_b128 %s, v11 offset:%d" % (vr(CS + 4 * ft), CSO + 64 * ft))
    a("ds_read_b128 %s, v10 offset:%d" % (vr(CS + 16), CSO + 256))
    S = [108, 110, 8, 12]; Q = [109, 111, 9, 13]
    for tt in range(4):
        a("v_mov_b32 v%d, 0" % S[tt]); a("v_mov_b32 v%d, 0" % Q[tt])
    a("v_mov_b32 v88, 0x3f803f80")
    a("s_waitcnt lgkmcnt(0)")
    for ft in range(5):
        if ft == 3:
            seg_end(a, name)
            a.label("%s_seg1" % name)
        tts = range(4 if ft < 4 else 2)
        items = [(ACC + 4 * tidx(ft, tt), CS + 4 * ft, MR + 2 * tt, ZP + 2 * tidx(ft, tt)) for tt in tts]
        emit_fold_gelu(a, items, T)
        for d in range(2):
            for tt in tts:
                p = ZP + 2 * tidx(ft, tt) + d
                a("v_dot2_f32_bf16 v%d, v%d, v88, v%d" % (S[tt], p, S[tt]))
                a("v_dot2_f32_bf16 v%d, v%d, v%d, v%d" % (Q[tt], p, p, Q[tt]))
    a("s_cmp_eq_u32 s21, 0")
    a("s_cbranch_scc1 %s_z2" % name)
    a("s_lshl_b32 s36, s22, 4")
    a("s_add_u32 s36, s36, s23")
    a("s_lshl_b32 s36, s36, 2")
    a("s_add_u32 s36, s36, s3")
    a("s_mul_i32 s36, s36, 9216")
    a("s_add_u32 s36, s36, 0x%x" % Z1IMG)
    a("v_lshlrev_b32 v10, 4, v2")
    for q in range(9):
        if q in (4, 8): a("s_add_u32 s36, s36, 4096")
        a("buffer_store_dwordx4 %s, v10, s[12:15], s36 offen offset:%d" % (vr(ZP + 4 * q), (q & 3) * 1024))
    a("s_branch %s_conv" % name)
    a.label("%s_z2" % name)
    a("s_nop 1")
    emit_xg_reduce(a, S + Q, 72)
    gran_addr()
    for g in range(1, 4):
        a("v_cmp_eq_u32 vcc, %d, v10" % g)
        a("s_nop 1")
        a("v_cndmask_b32 v%d, v%d, v%d, vcc" % (S[0], S[0], S[g]))
        a("v_cndmask_b32 v%d, v%d, v%d, vcc" % (Q[0], Q[0], Q[g]))
    a("v_and_b32 v%d, 0x7fffffff, v%d" % (Q[0], Q[0]))
    a("buffer_store_dwordx2 v[%d:%d], v94, s[12:15], s58 offen sc1" % (S[0], Q[0]))
    a.label("%s_conv" % name)
    seg_end(a, name)
    stamp(a, 4)
    a("v_lshlrev_b32 v4, 2, v3")
    a("s_mov_b32 s40, 0")
    a.label("%s_pollp" % name)
    a("buffer_load_dword v5, v4, s[60:63], 0 offen sc1")
    a("s_add_u32 s40, s40, 1")
    a("s_waitcnt vmcnt(0)")
    a("v_cmp_gt_u32 vcc, 16, v5")
    a("s_cmp_gt_u32 s40, %d" % SPIN_MAX)
    a("s_cbranch_scc1 %s_pollpx" % name)
    a("s_cbranch_vccz %s_pollpx" % name)
    a("s_sleep 2")
    a("s_branch %s_pollp" % name)
    a.label("%s_pollpx" % name)
    a("s_lshl_b32 s43, s2, 2")
    a("s_add_u32 s43, s43, s3")
    a("s_mov_b32 s27, s3")
    a("s_cmp_eq_u32 s98, 0")
    a("s_cbranch_scc1 %s_cjgo" % name)
    a("s_cmp_eq_u32 s21, 0")
    a("s_cbranch_scc1 %s_cjdone" % name)
    a("s_cmp_lg_u32 s3, 0")
    a("s_cbranch_scc1 %s_cjdone" % name)
    a("s_add_u32 s43, s2, %d" % (1024 - 128))
    a("s_mov_b32 s27, 4")
    a.label("%s_cjgo" % name)
    a("s_mul_i32 s27, s27, %d" % CJ_SIZE)
    a("s_add_u32 s27, s27, %d" % CJB)
    a("s_and_b32 s26, s43, 1")
    a("s_lshr_b32 s43, s43, 1")
    a.label("%s_seg2" % name)
    emit_conv_job(a, name)
    seg_end(a, name)
    stamp(a, 5)
    a("s_cmp_lg_u32 s21, 0")
    a("s_cbranch_scc1 %s_fin" % name)
    a("v_lshrrev_b32 v10, 4, v2")
    a("v_lshlrev_b32 v11, 8, v3")
    a("v_lshl_add_u32 v11, v10, 6, v11")
    a("s_lshl_b32 s33, s25, 13")
    a("s_add_u32 s36, s59, s33")
    a("s_xor_b32 s33, s33, 8192")
    a("s_add_u32 s37, s59, s33")
    a("s_add_u32 s38, s36, 4096")
    a("s_add_u32 s39, s37, 4096")
    PB = 112
    a.label("%s_poll1" % name)
    for tt in range(4):
        for q in range(4):
            a("buffer_load_dwordx4 %s, v11, s[12:15], s%d offen offset:%d sc1" % (vr(PB + 16 * tt + 4 * q), (36, 38, 37, 39)[tt], 16 * q))
    a("s_waitcnt vmcnt(0)")
    a("v_mov_b32 v12, 0")
    for r in range(PB + 1, PB + 64, 4):
        a("v_or3_b32 v12, v12, v%d, v%d" % (r, r + 2))
    a("v_cmp_gt_i32 vcc, 0, v12")
    a("s_add_u32 s40, s40, 1")
    a("s_cmp_gt_u32 s40, %d" % SPIN_MAX)
    a("s_cbranch_scc1 %s_poll1x" % name)
    a("s_cbranch_vccz %s_poll1x" % name)
    a("s_sleep 8")
    a("s_branch %s_poll1" % name)
    a.label("%s_poll1x" % name)
    stamp(a, 6)
    a.label("%s_seg3" % name)
    for tt in range(4):
        b = PB + 16 * tt
        for st in (8, 4, 2):
            for q in range(0, st, 2):
                a("v_pk_add_f32 %s, %s, %s" % (vr(b + q, 2), vr(b + q, 2), vr(b + q + st, 2)))
    emit_xg_reduce(a, [PB + 16 * tt + e for tt in range(4) for e in range(2)], 72)
    for tt in range(4):
        b = PB + 16 * tt
        emit_ln_finish(a, b, b + 1, 2304, b + 2, MR + 2 * tt, b + 4)
        a("v_mul_f32 v%d, -v%d, v%d" % (MR + 2 * tt + 1, b + 2, MR + 2 * tt))
    a("v_lshrrev_b32 v11, 2, v2"); a("v_and_b32 v11, 1, v11"); a("v_lshlrev_b32 v11, 4, v11")
    a("v_lshrrev_b32 v12, 3, v2"); a("v_and_b32 v12, 1, v12"); a("v_lshl_add_u32 v11, v12, 2, v11")
    a("v_and_b32 v12, 3, v2"); a("v_add_u32 v11, v11, v12")
    a("v_mul_u32_u24 v11, 288, v11")
    a("v_lshrrev_b32 v12, 1, v10"); a("v_lshl_add_u32 v11, v12, 4, v11")
    a("v_and_b32 v12, 1, v10")
    a("v_lshl_add_u32 v13, v12, 5, v11")
    a("v_mul_u32_u24 v12, 2304, v12")
    a("v_add_u32 v9, v11, v12")
    a("s_lshl_b32 s33, s23, 5")
    a("s_lshl_b32 s36, s22, 1")
    a("s_add_u32 s33, s33, s36")
    a("s_add_u32 s33, s33, s24")
    a("s_mul_i32 s33, s33, 18432")
    if ZIMG: a("s_add_u32 s33, s33, 0x%x" % ZIMG)
    a("s_mul_i32 s36, s25, 9216")
    a("s_add_u32 s37, s33, s36")
    a("s_xor_b32 s36, s36, 9216")
    a("s_add_u32 s38, s33, s36")
    a("s_add_u32 s39, s37, 128")
    a("s_mul_i32 s36, s25, 160")
    a("s_add_u32 s37, s37, s36")
    a("s_add_u32 s38, s38, s36")
    def norm_pair(nA, ttA, nB, ttB, O):
        for q, (n, tt) in enumerate(((nA, ttA), (nB, ttB))):
            for d in range(2):
                z = ZP + 2 * n + d; t = T + 4 * q + 2 * d
                a("v_lshlrev_b32 v%d, 16, v%d" % (t, z))
                a("v_and_b32 v%d, 0xffff0000, v%d" % (t + 1, z))
        for q, (n, tt) in enumerate(((nA, ttA), (nB, ttB))):
            for d in range(2):
                t = T + 4 * q + 2 * d
                a("v_pk_fma_f32 %s, %s, %s, %s op_sel:[0,0,1] op_sel_hi:[1,0,1]" % (vr(t, 2), vr(t, 2), vr(MR + 2 * tt, 2), vr(MR + 2 * tt, 2)))
        for q in range(2):
            for d in range(2):
                t = T + 4 * q + 2 * d
                a("v_cvt_pk_bf16_f32 v%d, v%d, v%d" % (O + 2 * q + d, t, t + 1))
        a("s_nop 1")
        a("v_permlane16_swap_b32 v%d, v%d" % (O, O + 2))
        a("v_permlane16_swap_b32 v%d, v%d" % (O + 1, O + 3))
    cnt = 0
    for pr in range(2):
        for tt in range(4):
            O = 112 + 4 * cnt; cnt += 1
            norm_pair(tidx(2 * pr, tt), tt, tidx(2 * pr + 1, tt), tt, O)
            a("s_nop 0")
            a("buffer_store_dwordx4 %s, v13, s[12:15], s%d offen offset:%d" % (vr(O), 37 if tt < 2 else 38, (tt & 1) * 2304 + 64 * pr))
    O = 112 + 4 * cnt
    norm_pair(16, 0, 17, 1, O)
    a("s_nop 0")
    a("buffer_store_dwordx4 %s, v9, s[12:15], s39 offen" % vr(O))
    seg_end(a, name)
    a.label("%s_fin" % name)
    stamp(a, 7)
    a("s_waitcnt vmcnt(0)")
    stamp(a, 8)
    a.label("%s_end" % name)
    a("s_endpgm")
    return a.text(), kernel_desc(name, 256, 256), (name, 256, 512, LDSB)

def gen_k1f(name="k1_kernel"):
    a = Asm()
    TS = 16384; NT = 3; TB0 = 4096; FB_ = TB0 + NT * TS; FSL = 18432; NF = 6; FS = 576; NK = 18
    LDSB = FB_ + NF * FSL; RST = 0; CSO = 1024; CJB = TB0 + 4 * 18432
    kernel_begin(a, name)
    a("s_load_dwordx2 s[80:81], s[0:1], 0")
    a("s_load_dwordx2 s[4:5], s[0:1], 56")
    a("s_cmp_ge_u32 s2, 256")
    a("s_cbranch_scc1 %s_end" % name)
    a("v_lshrrev_b32 v1, 6, v0")
    a("v_and_b32 v2, 63, v0")
    a("v_readfirstlane_b32 s3, v1")
    a("s_and_b32 s20, s2, 7")
    a("s_lshr_b32 s21, s2, 3")
    a("s_and_b32 s22, s20, 1")
    a("s_lshl_b32 s22, s22, 3")
    a("s_and_b32 s23, s21, 7")
    a("s_add_u32 s22, s22, s23")
    a("s_lshr_b32 s21, s21, 3")
    a("s_and_b32 s23, s20, 6")
    a("s_and_b32 s24, s21, 1")
    a("s_add_u32 s23, s23, s24")
    a("s_lshr_b32 s21, s21, 1")
    a("s_mov_b32 s99, 0")
    a("s_mov_b64 s[96:97], -1")
    a("s_cmp_lt_u32 s3, 4")
    a("s_cbranch_scc1 %s_consumer" % name)
    a("s_setprio 3")
    a("s_sub_u32 s3, s3, 4")
    a("v_lshrrev_b32 v3, 3, v2")
    a("v_and_b32 v4, 7, v2")
    VT = 16; VF = 20
    a("s_lshl_b32 s24, s3, 5")
    a("v_add_u32 v5, s24, v3")
    a("v_lshrrev_b32 v7, 4, v2")
    a("v_xor_b32 v7, v7, v4")
    a("v_mul_u32_u24 v6, 1152, v5")
    a("v_lshl_add_u32 v%d, v7, 4, v6" % VT)
    a("v_xor_b32 v%d, 64, v%d" % (VT + 1, VT))
    a("v_add_u32 v%d, %d, v%d" % (VT + 1, 9216 - 1024, VT + 1))
    a("v_add_u32 v%d, %d, v%d" % (VT + 2, 2 * (9216 - 1024), VT))
    a("v_add_u32 v%d, %d, v%d" % (VT + 3, 2 * (9216 - 1024), VT + 1))
    a("s_mul_i32 s26, s22, %d" % (128 * 1152))
    a("s_lshl_b32 s24, s3, 12")
    a("s_add_u32 s24, s24, %d" % TB0)
    a("s_mov_b32 s33, 0")
    a("s_waitcnt lgkmcnt(0)")
    srd(a, 28, 80, 2048 * 576 * 2)
    vm = VmTracker(a)
    def issueT(m):
        a("s_add_u32 s35, s33, s24")
        a("s_mov_b32 m0, s35")
        a("s_add_u32 s33, s33, %d" % TS)
        for n in range(4):
            if "nodma" not in DBG: a("buffer_load_dwordx4 v%d, s[28:31], s26 offen offset:%d lds" % (VT + n, 1024 * n))
        a("s_add_u32 s26, s26, 128")
        a("s_cmp_eq_u32 s33, %d" % (NT * TS))
        a("s_cselect_b32 s33, 0, s33")
        vm.issue("T%d" % m, 4)
    issueT(0)
    srd(a, 8, 4, 576 * 4608 * 2)
    for n in range(5):
        if n: a("v_add_u32 v6, %d, v2" % (64 * n))
        src = "v6" if n else "v2"
        a("v_mul_u32_u24 v7, 1821, %s" % src)
        a("v_lshrrev_b32 v7, 16, v7")
        a("v_mul_u32_u24 v8, 36, v7")
        a("v_sub_u32 v8, %s, v8" % src)
        a("v_bfe_u32 v9, v7, 2, 1")
        a("v_lshlrev_b32 v6, 1, v9")
        a("v_xor_b32 v8, v8, v6")
        a("v_and_b32 v7, 3, v7")
        a("v_lshl_add_u32 v7, v9, 3, v7")
        a("v_mul_u32_u24 v7, 9216, v7")
        a("v_lshl_add_u32 v%d, v8, 4, v7" % (VF + n))
        if 0 < n < 4: a("v_subrev_u32 v%d, %d, v%d" % (VF + n, 1024 * n, VF + n))
    a("s_and_b32 s36, s3, 1")
    a("s_lshl_b32 s36, s36, 4")
    a("s_lshr_b32 s37, s3, 1")
    a("s_lshl_b32 s37, s37, 2")
    a("s_add_u32 s36, s36, s37")
    a("s_mul_i32 s27, s36, 9216")
    a("s_mul_i32 s36, s23, 576")
    a("s_add_u32 s27, s27, s36")
    a("s_cmp_eq_u32 s21, 0")
    a("s_cselect_b32 s36, 4608, 0")
    a("s_add_u32 s27, s27, s36")
    a("s_mul_i32 s25, s3, 4608")
    a("s_add_u32 s25, s25, %d" % FB_)
    a("s_mov_b32 s34, 0")
    def issueF(k):
        a("s_add_u32 s35, s34, s25")
        a("s_mov_b32 m0, s35")
        a("s_add_u32 s36, s35, 4096")
        for n in range(4):
            if "nodma" not in DBG: a("buffer_load_dwordx4 v%d, s[8:11], s27 offen offset:%d lds" % (VF + n, 1024 * n))
        a("s_mov_b32 m0, s36")
        a("s_mov_b64 exec, 0xffffffff")
        if "nodma" not in DBG: a("buffer_load_dwordx4 v%d, s[8:11], s27 offen lds" % (VF + 4))
        a("s_mov_b64 exec, -1")
        a("s_add_u32 s27, s27, %d" % (32 * 9216))
        a("s_add_u32 s34, s34, %d" % FSL)
        a("s_cmp_eq_u32 s34, %d" % (NF * FSL))
        a("s_cselect_b32 s34, 0, s34")
        vm.issue("F%d" % k, 5)
    issueF(0); issueF(1)
    def other_setup():
        a("s_load_dwordx2 s[6:7], s[0:1], 104")
        a("s_load_dwordx2 s[18:19], s[0:1], 96")
        a("s_waitcnt lgkmcnt(0)")
        srd(a, 12, 6, WS_BYTES)
        srd(a, 60, 18, 256)
    def prep_srds():
        srd(a, 68, 66, 2048 * 576 * 2)
        a("s_mov_b32 s88, s64"); a("s_mov_b32 s89, s65")
        srd(a, 64, 88, 2048 * 576 * 2)
        srd(a, 72, 76, 576 * 8)
        srd(a, 76, 100, 2304 * 576 * 2)
    other_setup()
    a("s_add_u32 s3, s3, 4"); stamp_setup(a, 1); stamp(a, 0); a("s_sub_u32 s3, s3, 4")
    a("s_load_dwordx4 s[64:67], s[0:1], 8")
    a("s_load_dwordx2 s[76:77], s[0:1], 24")
    a("s_load_dwordx2 s[100:101], s[0:1], 80")
    a("s_waitcnt lgkmcnt(0)")
    prep_srds()
    if "nowarm" not in DBG:
        a("s_mov_b32 s99, 1")
        a("s_mov_b32 s52, s24"); a("s_mov_b32 s53, s25")
        a("s_mov_b32 s82, s33"); a("s_mov_b32 s83, s34")
        for r_ in (36, 37, 38, 39, 40, 41, 42, 58, 59): a("s_mov_b32 s%d, 0" % r_)
        for r_ in (5, 8, 9, 10, 11, 12, 13, 94, 140, 141): a("v_mov_b32 v%d, 0" % r_)
        a("s_mov_b64 exec, 0")
        a("s_cmp_eq_u32 s3, 0"); a("s_cbranch_scc1 %s_epi" % name)
        a("s_cmp_eq_u32 s3, 1"); a("s_cbranch_scc1 %s_seg1" % name)
        a("s_cmp_eq_u32 s3, 2"); a("s_cbranch_scc1 %s_seg2" % name)
        a("s_branch %s_seg3" % name)
        a.label("%s_warmret" % name)
        a("s_mov_b64 exec, -1")
        a("s_mov_b32 s99, 0")
        a("s_mov_b32 s24, s52"); a("s_mov_b32 s25, s53")
        a("s_mov_b32 s33, s82"); a("s_mov_b32 s34, s83")
    SS = [28, 30, 32, 34]; ONE = 36
    for r in range(28, 36): a("v_mov_b32 v%d, 0" % r)
    for r in range(ONE, ONE + 4): a("v_mov_b32 v%d, 0x3f803f80" % r)
    CA = 40
    for r in range(CA, CA + 20): a("v_mov_b32 v%d, 0" % r)
    XB = 64; CF = 80
    a("v_lshlrev_b32 v10, 4, v2")
    a("v_add_u32 v10, s24, v10")
    a("v_lshrrev_b32 v11, 2, v2")
    a("v_mul_u32_u24 v11, %d, v11" % FS)
    a("v_and_b32 v12, 3, v2")
    a("v_lshl_add_u32 v11, v12, 3, v11")
    a("v_bfe_u32 v13, v2, 4, 1")
    a("v_lshlrev_b32 v13, 5, v13")
    a("s_lshr_b32 s36, s3, 1")
    a("s_mul_i32 s37, s36, 9")
    a("s_and_b32 s38, s3, 1")
    a("s_lshl_b32 s38, s38, 2")
    a("s_add_u32 s37, s37, s38")
    a("s_lshl_b32 s40, s37, 6")
    a("s_lshl_b32 s37, s37, 5")
    a("s_add_u32 s37, s37, %d" % FB_)
    a("v_add_u32 v11, s37, v11")
    a("v_add_u32 v5, v11, v13")
    a("v_sub_u32 v6, v11, v13")
    a("s_cmp_eq_u32 s36, 0")
    a("s_cselect_b64 vcc, -1, 0")
    a("v_cndmask_b32 v11, v6, v5, vcc")
    a("v_cndmask_b32 v12, v5, v6, vcc")
    def rowstats_rd(m):
        if "nors" in DBG: return
        a("v_add_u32 v5, %d, v10" % ((m % NT) * TS))
        for n in range(4):
            a("ds_read_b128 %s, v5 offset:%d" % (vr(XB + 4 * n), 1024 * n))
    def rowstats_do():
        if "nors" in DBG: return
        for d in range(4):
            for n in range(4):
                r = XB + 4 * n + d
                a("v_dot2_f32_bf16 v%d, v%d, v%d, v%d" % (SS[n], r, ONE, SS[n]))
                a("v_dot2_f32_bf16 v%d, v%d, v%d, v%d" % (SS[n] + 1, r, r, SS[n] + 1))
    def colsum_rd(k):
        if "nocs" in DBG: return
        a("v_add_u32 v6, %d, v11" % ((k % NF) * FSL))
        a("v_add_u32 v7, %d, v12" % ((k % NF) * FSL))
        for q in range(5):
            for half in range(2):
                a("ds_read_b64_tr_b16 %s, v%d offset:%d" % (vr(CF + 4 * q + 2 * half, 2), 6 + (q & 1), 16 * half * FS + 32 * q))
    def colsum_do():
        if "nocs" in DBG: return
        for q in range(5):
            a("v_mfma_f32_16x16x32_bf16 %s, %s, %s, %s" % (vr(CA + 4 * q), vr(CF + 4 * q), vr(ONE), vr(CA + 4 * q)))
    vm.wait(["T0", "F0"])
    a("s_barrier")
    stamp(a, 1)
    colsum_rd(0); rowstats_rd(0)
    issueT(1); issueF(2); issueF(3)
    a("s_waitcnt lgkmcnt(0)")
    colsum_do(); rowstats_do()
    vm.wait(["F1"])
    a("s_barrier")
    for k in range(NK):
        rs = (k % 2 == 1 and (k + 1) // 2 < 9)
        if k + 1 < NK: colsum_rd(k + 1)
        if rs: rowstats_rd((k + 1) // 2)
        if k == 0:
            issueF(4); issueT(2); issueF(5)
        if k >= 1 and k + 5 < NK: issueF(k + 5)
        if k % 2 == 1 and (k - 1) // 2 + 3 < 9: issueT((k - 1) // 2 + 3)
        a("s_waitcnt lgkmcnt(0)")
        if k + 1 < NK: colsum_do()
        if rs: rowstats_do()
        if k + 1 < NK:
            vm.wait(["F%d" % (k + 2), "T%d" % ((k + 2) // 2)])
            a("s_barrier")
    a("s_nop 3")
    for ctl in ("quad_perm:[1,0,3,2]", "quad_perm:[2,3,0,1]", "row_half_mirror"):
        for rg in range(4):
            for e in range(2):
                a("v_add_f32_dpp v%d, v%d, v%d %s row_mask:0xf bank_mask:0xf" % (SS[rg] + e, SS[rg] + e, SS[rg] + e, ctl))
        a("s_nop 1")
    ML = 64
    for rg in range(4):
        emit_ln_finish(a, SS[rg], SS[rg] + 1, 576, ML + 2 * rg, ML + 2 * rg + 1, 76)
        a("v_mov_b32 v%d, v%d" % (SS[rg] + 1, ML + 2 * rg + 1))
        a("v_sub_f32 v%d, 0, v%d" % (SS[rg], ML + 2 * rg))
    a("s_lshl_b32 s35, s3, 8")
    a("v_lshlrev_b32 v6, 3, v3")
    a("v_add_u32 v12, s35, v6")
    a("v_cmp_eq_u32 vcc, 0, v4")
    a("s_and_saveexec_b64 s[36:37], vcc")
    for rg in range(4):
        a("ds_write_b64 v12, %s offset:%d" % (vr(SS[rg], 2), RST + 64 * rg))
    a("s_mov_b64 exec, s[36:37]")
    a("s_lshl_b32 s36, s21, 8")
    a("s_or_b32 s36, s36, s23")
    a("s_cmp_lg_u32 s36, 256")
    a("s_cbranch_scc1 %s_nost1" % name)
    a("s_lshl_b32 s35, s22, 7")
    a("s_lshl_b32 s36, s3, 5")
    a("s_add_u32 s35, s35, s36")
    a("s_lshl_b32 s35, s35, 3")
    a("s_add_u32 s35, s35, 0x%x" % STATS1)
    a("v_mov_b32 v7, 0x7ffffff0")
    a("v_cndmask_b32 v6, v7, v6, vcc")
    for rg in range(4):
        a("buffer_store_dwordx2 %s, v6, s[12:15], s35 offen offset:%d" % (vr(ML + 2 * rg, 2), 64 * rg))
    a.label("%s_nost1" % name)
    a("v_lshrrev_b32 v12, 4, v2")
    a("v_lshlrev_b32 v12, 4, v12")
    a("v_add_u32 v12, s40, v12")
    a("v_and_b32 v13, 15, v2")
    a("v_cmp_eq_u32 vcc, 0, v13")
    a("s_and_saveexec_b64 s[36:37], vcc")
    for q in range(5):
        a("ds_write_b128 v12, %s offset:%d" % (vr(CA + 4 * q), CSO + 64 * q))
    a("s_mov_b64 exec, s[36:37]")
    a("s_waitcnt lgkmcnt(0)")
    a("s_barrier")
    a("s_setprio 0")
    ACC = 112
    a("s_lshr_b32 s24, s3, 1")
    a("s_and_b32 s25, s3, 1")
    a("v_and_b32 v3, 15, v2")
    a("s_lshl_b32 s23, s23, 1")
    a("s_add_u32 s23, s23, 1")
    a("s_mov_b32 s40, 576")
    a("s_mul_i32 s36, s3, 18432")
    a("s_add_u32 s36, s36, %d" % TB0)
    a("v_lshlrev_b32 v10, 4, v2")
    a("v_add_u32 v11, s36, v10")
    a("s_barrier")
    for n in range(18):
        a("ds_read_b128 %s, v11 offset:%d" % (vr(ACC + 4 * n), 1024 * n))
        if n in (7, 13): a("s_waitcnt lgkmcnt(4)")
    a("s_branch %s_epi" % name)

    def gran_addr():
        a("v_lshrrev_b32 v10, 4, v2")
        a("s_lshl_b32 s33, s25, 1")
        a("v_add_u32 v11, s33, v10")
        a("v_and_b32 v11, 3, v11")
        a("v_lshl_add_u32 v11, v11, 4, v3")
        a("v_lshlrev_b32 v94, 8, v11")
        a("s_lshl_b32 s59, s22, 7")
        a("s_lshl_b32 s36, s24, 6")
        a("s_add_u32 s59, s59, s36")
        a("s_lshl_b32 s59, s59, 8")
        a("s_add_u32 s59, s59, 0x%x" % STATS2)
        a("s_lshl_b32 s36, s23, 1")
        a("s_add_u32 s36, s36, s25")
        a("s_lshl_b32 s36, s36, 3")
        a("s_add_u32 s58, s36, s59")
    a.label("%s_consumer" % name)
    a("s_load_dwordx4 s[64:67], s[0:1], 8")
    a("s_load_dwordx2 s[76:77], s[0:1], 24")
    a("s_load_dwordx2 s[100:101], s[0:1], 80")
    a("s_load_dwordx2 s[90:91], s[0:1], 64")
    a("s_lshr_b32 s24, s3, 1")
    a("s_and_b32 s25, s3, 1")
    a("v_and_b32 v3, 15, v2")
    other_setup()
    srd(a, 28, 80, 2048 * 576 * 2)
    srd(a, 8, 4, 576 * 4608 * 2)
    if "nopf" not in DBG:
        a("s_and_b32 s36, s22, 7")
        a("s_mul_i32 s36, s36, 72")
        a("s_mul_i32 s37, s3, 18")
        a("s_add_u32 s36, s36, s37")
        a("s_mul_i32 s36, s36, 9216")
        a("s_mul_i32 s37, s23, 576")
        a("s_add_u32 s36, s36, s37")
        a("s_cmp_eq_u32 s21, 0")
        a("s_cselect_b32 s37, 4608, 0")
        a("s_add_u32 s36, s36, s37")
        a("s_and_b32 s36, s36, 0xffffff80")
        for n in range(2):
            a("v_add_u32 v10, %d, v2" % (64 * n))
            a("v_mul_u32_u24 v11, 13108, v10")
            a("v_lshrrev_b32 v11, 16, v11")
            a("v_mul_u32_u24 v12, 5, v11")
            a("v_sub_u32 v12, v10, v12")
            a("v_mul_u32_u24 v11, 9216, v11")
            a("v_lshl_add_u32 v11, v12, 7, v11")
            if n:
                a("v_cmp_gt_u32 vcc, 90, v10")
                a("v_mov_b32 v12, 0x7ffffff0")
                a("s_nop 0")
                a("v_cndmask_b32 v11, v12, v11, vcc")
            a("buffer_load_dword v96, v11, s[8:11], s36 offen")
        a("s_lshr_b32 s36, s2, 6")
        a("s_lshl_b32 s36, s36, 5")
        a("s_lshl_b32 s37, s22, 7")
        a("s_add_u32 s36, s36, s37")
        a("s_mul_i32 s36, s36, 1152")
        a("s_mul_i32 s37, s3, 9216")
        a("s_add_u32 s36, s36, s37")
        a("v_lshlrev_b32 v11, 7, v2")
        a("buffer_load_dword v96, v11, s[28:31], s36 offen")
        a("v_and_b32 v11, 7, v2")
        a("v_lshlrev_b32 v11, 7, v11")
        a("s_add_u32 s36, s36, 8192")
        a("buffer_load_dword v96, v11, s[28:31], s36 offen")
    prep_srds()
    srd(a, 92, 90, 2048 * 2048 * 2)
    stamp_setup(a, 1); stamp(a, 0)
    a("s_lshl_b32 s23, s23, 1")
    a("s_cmp_lg_u32 s21, 0")
    a("s_cbranch_scc1 %s_noclr" % name)
    gran_addr()
    a("v_mov_b32 v12, 0"); a("v_mov_b32 v13, 0x80000000")
    a("buffer_store_dwordx2 v[12:13], v94, s[12:15], s58 offen sc1")
    a("buffer_store_dwordx2 v[12:13], v94, s[12:15], s58 offen offset:16 sc1")
    a.label("%s_noclr" % name)
    TB = [16, 32]; FR = 48
    vTa, vTb, vP = 4, 5, [6, 7]; vH = [8, 9]
    bTa = [88, 89]; bTb = [90, 91]; bP = [92, 93]; bH = [100, 101]
    PF = 96
    a("v_lshrrev_b32 v10, 4, v2")
    a("v_lshrrev_b32 v11, 1, v3")
    a("v_xor_b32 v10, v10, v11")
    a("v_lshlrev_b32 v10, 4, v10")
    a("v_lshl_add_u32 v10, v3, 7, v10")
    a("s_lshl_b32 s26, s24, 13")
    a("s_add_u32 s26, s26, %d" % TB0)
    a("v_add_u32 v10, s26, v10")
    a("s_lshl_b32 s26, s25, 12")
    a("v_add_u32 v%d, s26, v10" % bTa[0])
    a("s_xor_b32 s26, s26, 4096")
    a("v_add_u32 v%d, s26, v10" % bTb[0])
    a("v_xor_b32 v%d, 64, v%d" % (bTa[1], bTa[0]))
    a("v_xor_b32 v%d, 64, v%d" % (bTb[1], bTb[0]))
    a("v_lshrrev_b32 v10, 2, v2")
    a("v_mul_u32_u24 v10, %d, v10" % FS)
    a("v_and_b32 v11, 3, v2")
    a("v_lshl_add_u32 v10, v11, 3, v10")
    a("v_add_u32 v10, %d, v10" % FB_)
    a("v_bfe_u32 v13, v2, 4, 1")
    a("v_lshlrev_b32 v13, 5, v13")
    a("v_add_u32 v%d, v10, v13" % bH[0])
    a("v_sub_u32 v%d, v10, v13" % bH[1])
    a("s_mul_i32 s26, s25, 160")
    a("s_cmp_eq_u32 s25, 0")
    a("s_cselect_b64 vcc, -1, 0")
    a("v_cndmask_b32 v11, v%d, v%d, vcc" % (bH[1], bH[0]))
    a("v_cndmask_b32 v12, v%d, v%d, vcc" % (bH[0], bH[1]))
    a("v_add_u32 v%d, s26, v11" % bP[0])
    a("v_add_u32 v%d, s26, v12" % bP[1])
    a("v_lshrrev_b32 v10, 4, v2")
    a("v_lshlrev_b32 v10, 12, v10")
    a("v_lshl_add_u32 v95, v3, 4, v10")
    a("s_lshl_b32 s41, s22, 7")
    a("s_lshl_b32 s36, s3, 5")
    a("s_add_u32 s41, s41, s36")
    a("s_lshl_b32 s41, s41, 12")
    a("s_add_u32 s36, s23, s21")
    a("s_lshl_b32 s36, s36, 8")
    a("s_add_u32 s41, s41, s36")
    for r in range(ACC, ACC + 144): a("v_mov_b32 v%d, 0" % r)
    def accr(z, ft, tt): return ACC + 72 * z + 4 * tidx(ft, tt)
    def Fr(z, ft): return FR + 20 * z + 4 * ft
    trk = LdsTracker(a)
    def treads(buf):
        L = []
        for tt in range(4):
            r = TB[buf] + 4 * tt
            L.append(("ds_read_b128 %s, v%d offset:%d" % (vr(r), vTa if tt < 2 else vTb, (tt & 1) * 2048), range(r, r + 4)))
        return L
    def freads(z, ft):
        r = Fr(z, ft); L = []
        for half in range(2):
            off = 16 * half * FS + 32 * (9 * z + ft)
            v = vP[(z + ft) & 1] if ft < 4 else vH[z]
            L.append(("ds_read_b64_tr_b16 %s, v%d offset:%d" % (vr(r + 2 * half, 2), v, off), range(r + 2 * half, r + 2 * half + 2)))
        return L
    def rd(t):
        a(t[0]); trk.issue(t[1])
    fpairs = ((vP[0], bP[0]), (vP[1], bP[1]), (vH[0], bH[0]), (vH[1], bH[1]))
    a("v_mov_b32 v%d, v%d" % (vTa, bTa[0])); a("v_mov_b32 v%d, v%d" % (vTb, bTb[0]))
    for d, s_ in fpairs: a("v_mov_b32 v%d, v%d" % (d, s_))
    a("s_mov_b32 s27, 0")
    a("s_mov_b32 s34, 0")
    a("s_mov_b32 s33, 0")
    stamp(a, 1)
    a("s_barrier")
    stamp(a, 2)
    for t in treads(0): rd(t)
    for z in range(2):
        for ft in range(5):
            for t in freads(z, ft): rd(t)
            if len(trk.out) >= 12: trk.drain()
    trk.drain()
    def iteration(par):
        a("s_barrier")
        upd = []
        if par == 1:
            upd += ["s_add_u32 s27, s27, %d" % TS, "s_cmp_eq_u32 s27, %d" % (NT * TS), "s_cselect_b32 s27, 0, s27"]
        upd += ["v_add_u32 v%d, s27, v%d" % (vTa, bTa[1 - par]), "v_add_u32 v%d, s27, v%d" % (vTb, bTb[1 - par])]
        upd += ["s_add_u32 s34, s34, %d" % FSL, "s_cmp_eq_u32 s34, %d" % (NF * FSL), "s_cselect_b32 s34, 0, s34"]
        upd += ["v_add_u32 v%d, s34, v%d" % (d, s_) for d, s_ in fpairs]
        pend = [("x", u) for u in upd] + [("r", t) for t in treads(1 - par)]
        if par == 0:
            pend.append(("x", "buffer_load_dwordx4 %s, v95, s[92:95], s41 offen" % vr(PF)))
            pend.append(("x", "s_add_u32 s41, s41, 16384"))
        else:
            pend.append(("x", "s_add_u32 s33, s33, 1"))
        nm = 0
        for z in range(2):
            for ft in range(5):
                for tt in range(4 if ft < 4 else 2):
                    c = accr(z, ft, tt); A = Fr(z, ft); B = TB[par] + 4 * tt
                    trk.need(list(range(A, A + 4)) + list(range(B, B + 4)))
                    if "nomfma" not in DBG: a("v_mfma_f32_16x16x32_bf16 %s, %s, %s, %s" % (vr(c), vr(A), vr(B), vr(c)))
                    nfill = 1
                    while pend and nfill:
                        k, t = pend.pop(0)
                        if k == "x":
                            a(t)
                            if t.startswith("s_") and nm < 8: continue
                        else: rd(t)
                        nfill -= 1
                    nm += 1
                pend += [("r", t) for t in freads(z, ft)]
        for k, t in pend:
            if k == "x": a(t)
            else: rd(t)
        a("s_waitcnt lgkmcnt(15)")
        if len(trk.out) > 15: trk.out = trk.out[-15:]
    a.label("%s_cloop" % name)
    trk.out = []
    lb = len(a.lines)
    iteration(0); iteration(1)
    state = copy.deepcopy(trk.out)
    del a.lines[lb:]
    trk.out = copy.deepcopy(state)
    iteration(0); iteration(1)
    assert [sorted(x) for x in trk.out] == [sorted(x) for x in state]
    a("s_cmp_lt_u32 s33, %d" % (NK // 2))
    a("s_cbranch_scc1 %s_cloop" % name)
    trk.drain()
    stamp(a, 3)
    a("s_waitcnt vmcnt(0)")
    a("s_barrier")
    a("s_or_b32 s36, s3, s21")
    a("s_cmp_lg_u32 s36, 0")
    a("s_cbranch_scc1 %s_nosig" % name)
    a("v_mov_b32 v10, 1")
    a("s_lshl_b32 s36, s22, 2")
    a("v_mov_b32 v11, s36")
    a("s_mov_b64 exec, 1")
    a("buffer_atomic_add v10, v11, s[60:63], 0 offen sc1")
    a("s_mov_b64 exec, -1")
    a.label("%s_nosig" % name)
    a("s_mul_i32 s36, s3, 18432")
    a("s_add_u32 s36, s36, %d" % TB0)
    a("v_lshlrev_b32 v10, 4, v2")
    a("v_add_u32 v11, s36, v10")
    for n, (ft, tt) in enumerate(TILES):
        a("ds_write_b128 v11, %s offset:%d" % (vr(accr(1, ft, tt)), 1024 * tidx(ft, tt)))
        if n in (7, 13): a("s_waitcnt lgkmcnt(4)")
    a("s_mov_b32 s40, 0")
    a("s_waitcnt lgkmcnt(0)")
    a("s_barrier")
    a.label("%s_epi" % name)
    MR = 100; CS = 52; ZP = 16; T = 72
    gelu_consts(a)
    a("s_lshl_b32 s36, s24, 9")
    a("s_lshl_b32 s37, s25, 8")
    a("s_add_u32 s38, s36, s37")
    a("s_xor_b32 s37, s37, 256")
    a("s_add_u32 s39, s36, s37")
    a("v_lshlrev_b32 v10, 3, v3")
    a("v_add_u32 v11, s38, v10")
    a("ds_read_b64 %s, v11 offset:%d" % (vr(MR, 2), RST))
    a("ds_read_b64 %s, v11 offset:%d" % (vr(MR + 2, 2), RST + 128))
    a("v_add_u32 v11, s39, v10")
    a("ds_read_b64 %s, v11 offset:%d" % (vr(MR + 4, 2), RST))
    a("ds_read_b64 %s, v11 offset:%d" % (vr(MR + 6, 2), RST + 128))
    a("v_lshrrev_b32 v10, 4, v2")
    a("v_lshlrev_b32 v10, 4, v10")
    a("v_add_u32 v10, s40, v10")
    a("s_mul_i32 s36, s25, 320")
    a("v_add_u32 v11, s36, v10")
    a("s_waitcnt lgkmcnt(6)")
    for ft in range(4):
        a("ds_read_b128 %s, v11 offset:%d" % (vr(CS + 4 * ft), CSO + 64 * ft))
    a("ds_read_b128 %s, v10 offset:%d" % (vr(CS + 16), CSO + 256))
    S = [108, 110, 8, 12]; Q = [109, 111, 9, 13]
    for tt in range(4):
        a("v_mov_b32 v%d, 0" % S[tt]); a("v_mov_b32 v%d, 0" % Q[tt])
    a("v_mov_b32 v88, 0x3f803f80")
    a("s_waitcnt lgkmcnt(0)")
    for ft in range(5):
        if ft == 3:
            seg_end(a, name)
            a.label("%s_seg1" % name)
        tts = range(4 if ft < 4 else 2)
        items = [(ACC + 4 * tidx(ft, tt), CS + 4 * ft, MR + 2 * tt, ZP + 2 * tidx(ft, tt)) for tt in tts]
        emit_fold_gelu(a, items, T)
        for d in range(2):
            for tt in tts:
                p = ZP + 2 * tidx(ft, tt) + d
                a("v_dot2_f32_bf16 v%d, v%d, v88, v%d" % (S[tt], p, S[tt]))
                a("v_dot2_f32_bf16 v%d, v%d, v%d, v%d" % (Q[tt], p, p, Q[tt]))
    a("s_cmp_eq_u32 s21, 0")
    a("s_cbranch_scc1 %s_z2" % name)
    a("s_lshl_b32 s36, s22, 4")
    a("s_add_u32 s36, s36, s23")
    a("s_lshl_b32 s36, s36, 2")
    a("s_add_u32 s36, s36, s3")
    a("s_mul_i32 s36, s36, 9216")
    a("s_add_u32 s36, s36, 0x%x" % Z1IMG)
    a("v_lshlrev_b32 v10, 4, v2")
    for q in range(9):
        if q in (4, 8): a("s_add_u32 s36, s36, 4096")
        a("buffer_store_dwordx4 %s, v10, s[12:15], s36 offen offset:%d" % (vr(ZP + 4 * q), (q & 3) * 1024))
    a("s_branch %s_conv" % name)
    a.label("%s_z2" % name)
    a("s_nop 1")
    emit_xg_reduce(a, S + Q, 72)
    gran_addr()
    for g in range(1, 4):
        a("v_cmp_eq_u32 vcc, %d, v10" % g)
        a("s_nop 1")
        a("v_cndmask_b32 v%d, v%d, v%d, vcc" % (S[0], S[0], S[g]))
        a("v_cndmask_b32 v%d, v%d, v%d, vcc" % (Q[0], Q[0], Q[g]))
    a("v_and_b32 v%d, 0x7fffffff, v%d" % (Q[0], Q[0]))
    a("buffer_store_dwordx2 v[%d:%d], v94, s[12:15], s58 offen sc1" % (S[0], Q[0]))
    a.label("%s_conv" % name)
    seg_end(a, name)
    a.label("%s_seg2" % name)
    stamp(a, 4)
    for r_ in range(36):
        a("v_mov_b32 v%d, v%d" % (200 + r_, ZP + r_))
    a("s_lshl_b32 s42, s22, 4")
    a("s_add_u32 s42, s42, s23")
    a("s_lshl_b32 s36, s21, 8")
    a("s_add_u32 s42, s42, s36")
    a("v_and_b32 v0, 255, v0")
    G2.emit_prep2(a, name)
    stamp(a, 5)
    a("s_cmp_lg_u32 s21, 0")
    a("s_cbranch_scc1 %s_fin" % name)
    a("v_and_b32 v3, 15, v2")
    ZP = 200
    a("s_lshl_b32 s33, s22, 2")
    a("v_mov_b32 v9, s33")
    a("s_mov_b32 s40, 0")
    a("v_lshlrev_b32 v11, 4, v3")
    a.label("%s_poll2" % name)
    a("buffer_load_dword v12, v9, s[60:63], 0 offen sc1")
    a("s_waitcnt vmcnt(0)")
    a("buffer_load_dwordx4 v[112:115], v11, s[12:15], s59 offen sc1")
    a("s_add_u32 s40, s40, 1")
    a("v_subrev_u32 v12, 8, v12")
    a("s_waitcnt vmcnt(0)")
    a("v_or3_b32 v12, v12, v113, v115")
    a("v_cmp_gt_i32 vcc, 0, v12")
    a("s_cmp_gt_u32 s40, %d" % SPIN_MAX)
    a("s_cbranch_scc1 %s_poll2x" % name)
    a("s_cbranch_vccz %s_poll2x" % name)
    a("s_sleep 10")
    a("s_branch %s_poll2" % name)
    a.label("%s_poll2x" % name)
    a("v_lshrrev_b32 v10, 4, v2")
    a("v_lshlrev_b32 v11, 8, v3")
    a("v_lshl_add_u32 v11, v10, 6, v11")
    a("s_lshl_b32 s33, s25, 13")
    a("s_add_u32 s36, s59, s33")
    a("s_xor_b32 s33, s33, 8192")
    a("s_add_u32 s37, s59, s33")
    a("s_add_u32 s38, s36, 4096")
    a("s_add_u32 s39, s37, 4096")
    PB = 112
    a.label("%s_poll1" % name)
    if "inv" in DBG: a("buffer_inv sc1")
    POL = "sc0 sc1" if "sc01" in DBG else "sc1"
    for tt in range(4):
        for q in range(4):
            a("buffer_load_dwordx4 %s, v11, s[12:15], s%d offen offset:%d %s" % (vr(PB + 16 * tt + 4 * q), (36, 38, 37, 39)[tt], 16 * q, POL))
    a("s_waitcnt vmcnt(0)")
    a("v_mov_b32 v12, 0")
    for r in range(PB + 1, PB + 64, 4):
        a("v_or3_b32 v12, v12, v%d, v%d" % (r, r + 2))
    a("v_cmp_gt_i32 vcc, 0, v12")
    a("s_add_u32 s40, s40, 1")
    a("s_cmp_gt_u32 s40, %d" % SPIN_MAX)
    a("s_cbranch_scc1 %s_poll1x" % name)
    a("s_cbranch_vccz %s_poll1x" % name)
    a("s_sleep 20")
    a("s_branch %s_poll1" % name)
    a.label("%s_poll1x" % name)
    stamp(a, 6)
    a.label("%s_seg3" % name)
    for tt in range(4):
        b = PB + 16 * tt
        for st in (8, 4, 2):
            for q in range(0, st, 2):
                a("v_pk_add_f32 %s, %s, %s" % (vr(b + q, 2), vr(b + q, 2), vr(b + q + st, 2)))
    emit_xg_reduce(a, [PB + 16 * tt + e for tt in range(4) for e in range(2)], 72)
    for tt in range(4):
        b = PB + 16 * tt
        emit_ln_finish(a, b, b + 1, 2304, b + 2, MR + 2 * tt, b + 4)
        a("v_mul_f32 v%d, -v%d, v%d" % (MR + 2 * tt + 1, b + 2, MR + 2 * tt))
    a("v_lshrrev_b32 v11, 2, v2"); a("v_and_b32 v11, 1, v11"); a("v_lshlrev_b32 v11, 4, v11")
    a("v_lshrrev_b32 v12, 3, v2"); a("v_and_b32 v12, 1, v12"); a("v_lshl_add_u32 v11, v12, 2, v11")
    a("v_and_b32 v12, 3, v2"); a("v_add_u32 v11, v11, v12")
    a("v_mul_u32_u24 v11, 288, v11")
    a("v_lshrrev_b32 v12, 1, v10"); a("v_lshl_add_u32 v11, v12, 4, v11")
    a("v_and_b32 v12, 1, v10")
    a("v_lshl_add_u32 v13, v12, 5, v11")
    a("v_mul_u32_u24 v12, 2304, v12")
    a("v_add_u32 v9, v11, v12")
    a("s_lshl_b32 s33, s23, 5")
    a("s_lshl_b32 s36, s22, 1")
    a("s_add_u32 s33, s33, s36")
    a("s_add_u32 s33, s33, s24")
    a("s_mul_i32 s33, s33, 18432")
    if ZIMG: a("s_add_u32 s33, s33, 0x%x" % ZIMG)
    a("s_mul_i32 s36, s25, 9216")
    a("s_add_u32 s37, s33, s36")
    a("s_xor_b32 s36, s36, 9216")
    a("s_add_u32 s38, s33, s36")
    a("s_add_u32 s39, s37, 128")
    a("s_mul_i32 s36, s25, 160")
    a("s_add_u32 s37, s37, s36")
    a("s_add_u32 s38, s38, s36")
    def norm_pair(nA, ttA, nB, ttB, O):
        for q, (n, tt) in enumerate(((nA, ttA), (nB, ttB))):
            for d in range(2):
                z = ZP + 2 * n + d; t = T + 4 * q + 2 * d
                a("v_lshlrev_b32 v%d, 16, v%d" % (t, z))
                a("v_and_b32 v%d, 0xffff0000, v%d" % (t + 1, z))
        for q, (n, tt) in enumerate(((nA, ttA), (nB, ttB))):
            for d in range(2):
                t = T + 4 * q + 2 * d
                a("v_pk_fma_f32 %s, %s, %s, %s op_sel:[0,0,1] op_sel_hi:[1,0,1]" % (vr(t, 2), vr(t, 2), vr(MR + 2 * tt, 2), vr(MR + 2 * tt, 2)))
        for q in range(2):
            for d in range(2):
                t = T + 4 * q + 2 * d
                a("v_cvt_pk_bf16_f32 v%d, v%d, v%d" % (O + 2 * q + d, t, t + 1))
        a("s_nop 1")
        a("v_permlane16_swap_b32 v%d, v%d" % (O, O + 2))
        a("v_permlane16_swap_b32 v%d, v%d" % (O + 1, O + 3))
    cnt = 0
    for pr in range(2):
        for tt in range(4):
            O = 112 + 4 * cnt; cnt += 1
            norm_pair(tidx(2 * pr, tt), tt, tidx(2 * pr + 1, tt), tt, O)
            a("s_nop 0")
            a("buffer_store_dwordx4 %s, v13, s[12:15], s%d offen offset:%d" % (vr(O), 37 if tt < 2 else 38, (tt & 1) * 2304 + 64 * pr))
    O = 112 + 4 * cnt
    norm_pair(16, 0, 17, 1, O)
    a("s_nop 0")
    a("buffer_store_dwordx4 %s, v9, s[12:15], s39 offen" % vr(O))
    seg_end(a, name)
    a.label("%s_fin" % name)
    stamp(a, 7)
    a("s_waitcnt vmcnt(0)")
    stamp(a, 8)
    a.label("%s_end" % name)
    a("s_endpgm")
    return a.text(), kernel_desc(name, 256, 256), (name, 256, 512, LDSB)

def gen_k1g(name="k1_kernel"):
    a = Asm()
    DBG.add('nowarm')
    TS = 16384; NT = 3; TB0 = 4096; FB_ = TB0 + NT * TS; FSL = 18432; NF = 6; FS = 576; NK = 18
    LDSB = FB_ + NF * FSL; RST = 0; CSO = 1024; CJB = TB0 + 4 * 18432
    kernel_begin(a, name)
    a("s_load_dwordx2 s[80:81], s[0:1], 0")
    a("s_load_dwordx2 s[4:5], s[0:1], 56")
    a("s_cmp_ge_u32 s2, 256")
    a("s_cbranch_scc1 %s_end" % name)
    a("v_lshrrev_b32 v1, 6, v0")
    a("v_and_b32 v2, 63, v0")
    a("v_readfirstlane_b32 s3, v1")
    a("s_and_b32 s20, s2, 7")
    a("s_lshr_b32 s21, s2, 3")
    a("s_and_b32 s22, s20, 1")
    a("s_lshl_b32 s22, s22, 3")
    a("s_and_b32 s23, s21, 7")
    a("s_add_u32 s22, s22, s23")
    a("s_lshr_b32 s21, s21, 3")
    a("s_lshr_b32 s23, s20, 1")
    a("s_lshl_b32 s23, s23, 2")
    a("s_add_u32 s23, s23, s21")
    a("s_mov_b32 s99, 0")
    a("s_mov_b64 s[96:97], -1")
    a("s_cmp_lt_u32 s3, 4")
    a("s_cbranch_scc1 %s_consumer" % name)
    a("s_setprio 3")
    a("s_sub_u32 s3, s3, 4")
    a("v_lshrrev_b32 v3, 3, v2")
    a("v_and_b32 v4, 7, v2")
    VT = 16; VF = 20
    a("s_lshl_b32 s24, s3, 5")
    a("v_add_u32 v5, s24, v3")
    a("v_lshrrev_b32 v7, 4, v2")
    a("v_xor_b32 v7, v7, v4")
    a("v_mul_u32_u24 v6, 1152, v5")
    a("v_lshl_add_u32 v%d, v7, 4, v6" % VT)
    a("v_xor_b32 v%d, 64, v%d" % (VT + 1, VT))
    a("v_add_u32 v%d, %d, v%d" % (VT + 1, 9216 - 1024, VT + 1))
    a("v_add_u32 v%d, %d, v%d" % (VT + 2, 2 * (9216 - 1024), VT))
    a("v_add_u32 v%d, %d, v%d" % (VT + 3, 2 * (9216 - 1024), VT + 1))
    a("s_mul_i32 s26, s22, %d" % (128 * 1152))
    a("s_lshl_b32 s24, s3, 12")
    a("s_add_u32 s24, s24, %d" % TB0)
    a("s_mov_b32 s33, 0")
    a("s_waitcnt lgkmcnt(0)")
    srd(a, 28, 80, 2048 * 576 * 2)
    vm = VmTracker(a)
    def capture(f, *args):
        lb = len(a.lines); f(*args); out = a.lines[lb:]; del a.lines[lb:]; return out
    def issueT(m, part=None):
        a("s_add_u32 s35, s33, s24")
        a("s_mov_b32 m0, s35")
        if part != 0: a("s_add_u32 s33, s33, %d" % TS)
        else: a("s_nop 0")
        ns = range(4) if part is None else range(2 * part, 2 * part + 2)
        for n in ns:
            if "nodma" not in DBG: a("buffer_load_dwordx4 v%d, s[28:31], s26 offen offset:%d lds" % (VT + n, 1024 * n))
        if part != 0:
            a("s_add_u32 s26, s26, 128")
            a("s_cmp_eq_u32 s33, %d" % (NT * TS))
            a("s_cselect_b32 s33, 0, s33")
        vm.issue("T%d" % m if part != 0 else "Ta%d" % m, len(ns))
    issueT(0)
    srd(a, 8, 4, 576 * 4608 * 2)
    for n in range(5):
        if n: a("v_add_u32 v6, %d, v2" % (64 * n))
        src = "v6" if n else "v2"
        a("v_mul_u32_u24 v7, 1821, %s" % src)
        a("v_lshrrev_b32 v7, 16, v7")
        a("v_mul_u32_u24 v8, 36, v7")
        a("v_sub_u32 v8, %s, v8" % src)
        a("v_bfe_u32 v9, v7, 2, 1")
        a("v_lshlrev_b32 v6, 1, v9")
        a("v_xor_b32 v8, v8, v6")
        a("v_and_b32 v7, 3, v7")
        a("v_lshl_add_u32 v7, v9, 3, v7")
        a("v_mul_u32_u24 v7, 9216, v7")
        a("v_cmp_gt_u32 vcc, 18, v8")
        a("v_lshl_add_u32 v7, v8, 4, v7")
        a("v_mov_b32 v9, 4608")
        a("v_cndmask_b32 v9, -288, v9, vcc") if False else None
        a("v_mov_b32 v6, 0xfffffee0")
        a("v_cndmask_b32 v9, v6, v9, vcc")
        a("v_add_u32 v%d, v7, v9" % (VF + n))
        if 0 < n < 4: a("v_subrev_u32 v%d, %d, v%d" % (VF + n, 1024 * n, VF + n))
    a("s_and_b32 s36, s3, 1")
    a("s_lshl_b32 s36, s36, 4")
    a("s_lshr_b32 s37, s3, 1")
    a("s_lshl_b32 s37, s37, 2")
    a("s_add_u32 s36, s36, s37")
    a("s_mul_i32 s27, s36, 9216")
    a("s_mul_i32 s36, s23, 288")
    a("s_add_u32 s27, s27, s36")
    a("s_mul_i32 s25, s3, 4608")
    a("s_add_u32 s25, s25, %d" % FB_)
    a("s_mov_b32 s34, 0")
    def issueF(k):
        a("s_add_u32 s35, s34, s25")
        a("s_mov_b32 m0, s35")
        a("s_add_u32 s36, s35, 4096")
        for n in range(4):
            if "nodma" not in DBG: a("buffer_load_dwordx4 v%d, s[8:11], s27 offen offset:%d lds" % (VF + n, 1024 * n))
        a("s_mov_b32 m0, s36")
        a("s_mov_b64 exec, 0xffffffff")
        if "nodma" not in DBG: a("buffer_load_dwordx4 v%d, s[8:11], s27 offen lds" % (VF + 4))
        a("s_mov_b64 exec, -1")
        a("s_add_u32 s27, s27, %d" % (32 * 9216))
        a("s_add_u32 s34, s34, %d" % FSL)
        a("s_cmp_eq_u32 s34, %d" % (NF * FSL))
        a("s_cselect_b32 s34, 0, s34")
        vm.issue("F%d" % k, 5)
    issueF(0); issueF(1)
    def other_setup():
        a("s_load_dwordx2 s[6:7], s[0:1], 104")
        a("s_load_dwordx2 s[18:19], s[0:1], 96")
        a("s_waitcnt lgkmcnt(0)")
        srd(a, 12, 6, WS_BYTES)
        srd(a, 60, 18, 256)
    def prep_srds():
        srd(a, 68, 66, 2048 * 576 * 2)
        a("s_mov_b32 s88, s64"); a("s_mov_b32 s89, s65")
        srd(a, 64, 88, 2048 * 576 * 2)
        srd(a, 72, 76, 576 * 8)
        srd(a, 76, 100, 2304 * 576 * 2)
    other_setup()
    a("s_add_u32 s3, s3, 4"); stamp_setup(a, 1); stamp(a, 0); a("s_sub_u32 s3, s3, 4")
    a("s_load_dwordx4 s[64:67], s[0:1], 8")
    a("s_load_dwordx2 s[76:77], s[0:1], 24")
    a("s_load_dwordx2 s[100:101], s[0:1], 80")
    a("s_waitcnt lgkmcnt(0)")
    prep_srds()
    SS = [28, 30, 32, 34]; ONE = 36
    for r in range(28, 36): a("v_mov_b32 v%d, 0" % r)
    for r in range(ONE, ONE + 4): a("v_mov_b32 v%d, 0x3f803f80" % r)
    CA = 40
    for r in range(CA, CA + 20): a("v_mov_b32 v%d, 0" % r)
    XB = 64; CF = 80
    a("v_and_b32 v5, 15, v2")
    a("v_lshrrev_b32 v6, 4, v2")
    a("v_lshrrev_b32 v7, 1, v5")
    a("v_xor_b32 v6, v6, v7")
    a("v_lshlrev_b32 v6, 4, v6")
    a("v_lshl_add_u32 v6, v5, 7, v6")
    a("v_add_u32 v10, s24, v6")
    a("v_xor_b32 v26, 64, v10")
    RA = 112
    for r in range(RA, RA + 16): a("v_mov_b32 v%d, 0" % r)
    a("v_lshrrev_b32 v11, 2, v2")
    a("v_mul_u32_u24 v11, %d, v11" % FS)
    a("v_and_b32 v12, 3, v2")
    a("v_lshl_add_u32 v11, v12, 3, v11")
    a("v_bfe_u32 v13, v2, 4, 1")
    a("v_lshlrev_b32 v13, 5, v13")
    a("s_lshr_b32 s36, s3, 1")
    a("s_mul_i32 s37, s36, 9")
    a("s_and_b32 s38, s3, 1")
    a("s_lshl_b32 s38, s38, 2")
    a("s_add_u32 s37, s37, s38")
    a("s_lshl_b32 s40, s37, 6")
    a("s_lshl_b32 s37, s37, 5")
    a("s_add_u32 s37, s37, %d" % FB_)
    a("v_add_u32 v11, s37, v11")
    a("v_add_u32 v5, v11, v13")
    a("v_sub_u32 v6, v11, v13")
    a("s_cmp_eq_u32 s36, 0")
    a("s_cselect_b64 vcc, -1, 0")
    a("v_cndmask_b32 v11, v6, v5, vcc")
    a("v_cndmask_b32 v12, v5, v6, vcc")
    def rowstats_rd(ks):
        a("v_add_u32 v5, %d, v%d" % (((ks // 2) % NT) * TS, 26 if ks & 1 else 10))
        for n in range(2):
            a("ds_read_b128 %s, v5 offset:%d" % (vr(XB + 4 * n), 2048 * n))
    def rowstats_do():
        for n in range(2):
            a("v_mfma_f32_16x16x32_bf16 %s, %s, %s, %s" % (vr(RA + 4 * n), vr(ONE), vr(XB + 4 * n), vr(RA + 4 * n)))
            a("v_mfma_f32_16x16x32_bf16 %s, %s, %s, %s" % (vr(RA + 8 + 4 * n), vr(XB + 4 * n), vr(XB + 4 * n), vr(RA + 8 + 4 * n)))
    def colsum_rd(k):
        if "nocs" in DBG: return
        a("v_add_u32 v6, %d, v11" % ((k % NF) * FSL))
        a("v_add_u32 v7, %d, v12" % ((k % NF) * FSL))
        for q in range(5):
            for half in range(2):
                a("ds_read_b64_tr_b16 %s, v%d offset:%d" % (vr(CF + 4 * q + 2 * half, 2), 6 + (q & 1), 16 * half * FS + 32 * q))
    def colsum_do():
        if "nocs" in DBG: return
        for q in range(5):
            a("v_mfma_f32_16x16x32_bf16 %s, %s, %s, %s" % (vr(CA + 4 * q), vr(CF + 4 * q), vr(ONE), vr(CA + 4 * q)))
    vm.wait(["T0", "F0"])
    a("s_barrier")
    stamp(a, 1)
    colsum_rd(0); rowstats_rd(0)
    issueT(1); issueF(2); issueF(3)
    vm.wait(["F1"])
    a("s_barrier")
    for k in range(NK):
        dma = []
        if k == 0:
            dma += capture(issueF, 4) + capture(issueT, 2) + capture(issueF, 5)
        if k >= 1 and k + 5 < NK: dma += capture(issueF, k + 5)
        if k % 2 == 1 and (k - 1) // 2 + 3 < 9: dma += capture(issueT, (k - 1) // 2 + 3, 0)
        if k % 2 == 0 and k >= 2 and (k - 2) // 2 + 3 < 9: dma += capture(issueT, (k - 2) // 2 + 3, 1)
        comp = capture(colsum_do) + capture(rowstats_do)
        groups = []; cur = []
        for l in dma:
            cur.append(l)
            if "buffer_load" in l and "exec" not in "".join(cur[-2:-1]):
                groups.append(cur); cur = []
        if cur: groups.append(cur)
        nslots = max(1, len(groups) - 1)
        per = (len(comp) + nslots - 1) // nslots if comp else 0
        waited = False
        for gi, g in enumerate(groups):
            a.lines.extend(g)
            if comp and not any("exec, 0xffffffff" in x for x in g[-2:]):
                if not waited:
                    a("s_waitcnt lgkmcnt(0)"); waited = True
                a.lines.extend(comp[:per]); comp = comp[per:]
        if not waited: a("s_waitcnt lgkmcnt(0)")
        a.lines.extend(comp)
        if k + 1 < NK:
            colsum_rd(k + 1); rowstats_rd(k + 1)
            if "fine" in DBG:
                G.stamp_seq(a); vm.issue("st", 1)
            vm.wait(["F%d" % (k + 2), "T%d" % ((k + 2) // 2)])
            if "fine" in DBG:
                G.stamp_seq(a); vm.issue("st", 1)
            a("s_barrier")
    a("s_nop 7")
    a("v_and_b32 v5, 15, v2")
    a("v_lshrrev_b32 v6, 4, v2")
    a("v_lshrrev_b32 v7, 2, v5")
    a("v_and_b32 v8, 3, v5")
    for n in range(2):
        G_ = RA + 8 + 4 * n
        for r in range(1, 4):
            a("v_cmp_eq_u32 vcc, %d, v8" % r)
            a("s_nop 1")
            a("v_cndmask_b32 v%d, v%d, v%d, vcc" % (G_, G_, G_ + r))
    ML = 64
    for n in range(2):
        emit_ln_finish(a, RA + 4 * n, RA + 8 + 4 * n, 576, ML + 2 * n, ML + 2 * n + 1, 76)
        a("v_mov_b32 v%d, v%d" % (29 + 2 * n, ML + 2 * n + 1))
        a("v_sub_f32 v%d, 0, v%d" % (28 + 2 * n, ML + 2 * n))
    a("s_lshl_b32 s35, s3, 8")
    a("v_lshlrev_b32 v9, 3, v5")
    a("v_add_u32 v12, s35, v9")
    a("v_cmp_eq_u32 vcc, v6, v7")
    a("s_and_saveexec_b64 s[36:37], vcc")
    for n in range(2):
        a("ds_write_b64 v12, %s offset:%d" % (vr(28 + 2 * n, 2), RST + 128 * n))
    a("s_mov_b64 exec, s[36:37]")
    a("s_cmp_lg_u32 s23, 0")
    a("s_cbranch_scc1 %s_nost1" % name)
    a("s_lshl_b32 s35, s22, 7")
    a("s_lshl_b32 s36, s3, 5")
    a("s_add_u32 s35, s35, s36")
    a("s_lshl_b32 s35, s35, 3")
    a("s_add_u32 s35, s35, 0x%x" % STATS1)
    a("v_mov_b32 v7, 0x7ffffff0")
    a("v_cndmask_b32 v9, v7, v9, vcc")
    for n in range(2):
        a("buffer_store_dwordx2 %s, v9, s[12:15], s35 offen offset:%d" % (vr(ML + 2 * n, 2), 128 * n))
    a.label("%s_nost1" % name)
    a("v_lshrrev_b32 v12, 4, v2")
    a("v_lshlrev_b32 v12, 4, v12")
    a("v_add_u32 v12, s40, v12")
    a("v_and_b32 v13, 15, v2")
    a("v_cmp_eq_u32 vcc, 0, v13")
    a("s_and_saveexec_b64 s[36:37], vcc")
    for q in range(5):
        a("ds_write_b128 v12, %s offset:%d" % (vr(CA + 4 * q), CSO + 64 * q))
    a("s_mov_b64 exec, s[36:37]")
    a("s_waitcnt lgkmcnt(0)")
    a("s_barrier")
    ACC = 112
    a("s_lshr_b32 s24, s3, 1")
    a("s_and_b32 s25, s3, 1")
    a("v_and_b32 v3, 15, v2")
    a("s_mov_b32 s98, 1")
    a("s_lshl_b32 s36, s3, 14")
    a("s_add_u32 s36, s36, %d" % TB0)
    a("v_lshlrev_b32 v10, 4, v2")
    a("v_add_u32 v11, s36, v10")
    a("s_barrier")
    n_ = 0
    for z in range(2):
        for ft in range(4):
            for tt in range(2):
                a("ds_read_b128 %s, v11 offset:%d" % (vr(ACC + 72 * z + 4 * tidx(ft, tt)), 1024 * n_))
                n_ += 1
                if n_ in (8, 13): a("s_waitcnt lgkmcnt(4)")
    a("s_branch %s_epi" % name)

    def gran_addr():
        a("v_lshrrev_b32 v10, 4, v2")
        a("s_lshl_b32 s33, s25, 1")
        a("v_add_u32 v11, s33, v10")
        a("v_and_b32 v11, 3, v11")
        a("v_lshl_add_u32 v11, v11, 4, v3")
        a("v_lshlrev_b32 v94, 8, v11")
        a("s_lshl_b32 s59, s22, 7")
        a("s_lshl_b32 s36, s24, 6")
        a("s_add_u32 s59, s59, s36")
        a("s_lshl_b32 s59, s59, 8")
        a("s_add_u32 s59, s59, 0x%x" % STATS2)
        a("s_lshl_b32 s36, s23, 1")
        a("s_add_u32 s36, s36, s25")
        a("s_lshl_b32 s36, s36, 3")
        a("s_add_u32 s58, s36, s59")
    a.label("%s_consumer" % name)
    a("s_load_dwordx4 s[64:67], s[0:1], 8")
    a("s_load_dwordx2 s[76:77], s[0:1], 24")
    a("s_load_dwordx2 s[100:101], s[0:1], 80")
    a("s_lshr_b32 s24, s3, 1")
    a("s_and_b32 s25, s3, 1")
    a("v_and_b32 v3, 15, v2")
    other_setup()
    srd(a, 28, 80, 2048 * 576 * 2)
    srd(a, 8, 4, 576 * 4608 * 2)
    if "nopf" not in DBG:
        a("s_and_b32 s36, s22, 7")
        a("s_mul_i32 s36, s36, 72")
        a("s_mul_i32 s37, s3, 18")
        a("s_add_u32 s36, s36, s37")
        a("s_mul_i32 s36, s36, 9216")
        a("s_mul_i32 s37, s23, 288")
        a("s_add_u32 s36, s36, s37")
        a("s_and_b32 s36, s36, 0xffffff80")
        a("v_lshrrev_b32 v10, 2, v2")
        a("v_mul_u32_u24 v10, 9216, v10")
        a("v_and_b32 v11, 3, v2")
        a("v_lshl_add_u32 v10, v11, 7, v10")
        a("v_and_b32 v12, 7, v2")
        a("v_lshrrev_b32 v12, 2, v12")
        a("v_mul_u32_u24 v12, 9216, v12")
        a("v_lshl_add_u32 v12, v11, 7, v12")
        a("s_add_u32 s37, s36, 4608")
        a("s_add_u32 s38, s36, %d" % (16 * 9216))
        a("s_add_u32 s39, s37, %d" % (16 * 9216))
        a("buffer_load_dword v96, v10, s[8:11], s37 offen")
        a("buffer_load_dword v96, v10, s[8:11], s36 offen")
        a("buffer_load_dword v96, v12, s[8:11], s39 offen")
        a("buffer_load_dword v96, v12, s[8:11], s38 offen")
        a("s_lshr_b32 s36, s2, 6")
        a("s_lshl_b32 s36, s36, 5")
        a("s_lshl_b32 s37, s22, 7")
        a("s_add_u32 s36, s36, s37")
        a("s_mul_i32 s36, s36, 1152")
        a("s_mul_i32 s37, s3, 9216")
        a("s_add_u32 s36, s36, s37")
        a("v_lshlrev_b32 v11, 7, v2")
        a("buffer_load_dword v96, v11, s[28:31], s36 offen")
        a("v_and_b32 v11, 7, v2")
        a("v_lshlrev_b32 v11, 7, v11")
        a("s_add_u32 s36, s36, 8192")
        a("buffer_load_dword v96, v11, s[28:31], s36 offen")
    prep_srds()
    if "nopf2" not in DBG:
        a("s_lshl_b32 s41, s2, 1")
        a("s_add_u32 s41, s41, s24")
        a("s_cmp_ge_u32 s41, 288")
        a("s_cbranch_scc1 %s_nopf2" % name)
        a("s_mul_hi_u32 s36, s41, 0x%x" % ((2**32 + 8) // 9))
        a("s_mul_i32 s37, s36, 9")
        a("s_sub_u32 s37, s41, s37")
        a("s_mul_i32 s36, s36, %d" % (64 * 1152))
        a("s_lshl_b32 s37, s37, 7")
        a("s_add_u32 s36, s36, s37")
        a("v_mul_u32_u24 v10, 1152, v2")
        a("s_cmp_eq_u32 s25, 0")
        a("s_cbranch_scc1 %s_pfk" % name)
        a("buffer_load_dword v96, v10, s[68:71], s36 offen")
        a("s_branch %s_nopf2" % name)
        a.label("%s_pfk" % name)
        a("buffer_load_dword v96, v10, s[64:67], s36 offen")
        a.label("%s_nopf2" % name)
        a("s_mul_i32 s36, s2, 10368")
        a("s_mul_i32 s37, s3, 2688")
        a("s_add_u32 s36, s36, s37")
        a("v_min_u32 v10, 20, v2")
        a("v_lshlrev_b32 v10, 7, v10")
        a("buffer_load_dword v96, v10, s[76:79], s36 offen")
    stamp_setup(a, 1); stamp(a, 0)
    a("s_mov_b32 s98, 0")
    gran_addr()
    a("v_mov_b32 v12, 0"); a("v_mov_b32 v13, 0x80000000")
    a("buffer_store_dwordx2 v[12:13], v94, s[12:15], s58 offen sc1")
    TB = [16, 32]; FR = 48
    vTa, vTb, vP = 4, 5, [6, 7]; vH = [8, 9]
    bTa = [88, 89]; bTb = [90, 91]; bP = [92, 93]; bH = [100, 101]
    PF = 96
    a("v_lshrrev_b32 v10, 4, v2")
    a("v_lshrrev_b32 v11, 1, v3")
    a("v_xor_b32 v10, v10, v11")
    a("v_lshlrev_b32 v10, 4, v10")
    a("v_lshl_add_u32 v10, v3, 7, v10")
    a("s_lshl_b32 s26, s24, 13")
    a("s_add_u32 s26, s26, %d" % TB0)
    a("v_add_u32 v10, s26, v10")
    a("s_lshl_b32 s26, s25, 12")
    a("v_add_u32 v%d, s26, v10" % bTa[0])
    a("s_xor_b32 s26, s26, 4096")
    a("v_add_u32 v%d, s26, v10" % bTb[0])
    a("v_xor_b32 v%d, 64, v%d" % (bTa[1], bTa[0]))
    a("v_xor_b32 v%d, 64, v%d" % (bTb[1], bTb[0]))
    a("v_lshrrev_b32 v10, 2, v2")
    a("v_mul_u32_u24 v10, %d, v10" % FS)
    a("v_and_b32 v11, 3, v2")
    a("v_lshl_add_u32 v10, v11, 3, v10")
    a("v_add_u32 v10, %d, v10" % FB_)
    a("v_bfe_u32 v13, v2, 4, 1")
    a("v_lshlrev_b32 v13, 5, v13")
    a("v_add_u32 v%d, v10, v13" % bH[0])
    a("v_sub_u32 v%d, v10, v13" % bH[1])
    a("s_mul_i32 s26, s25, 160")
    a("s_cmp_eq_u32 s25, 0")
    a("s_cselect_b64 vcc, -1, 0")
    a("v_cndmask_b32 v11, v%d, v%d, vcc" % (bH[1], bH[0]))
    a("v_cndmask_b32 v12, v%d, v%d, vcc" % (bH[0], bH[1]))
    a("v_add_u32 v%d, s26, v11" % bP[0])
    a("v_add_u32 v%d, s26, v12" % bP[1])
    a("v_lshrrev_b32 v10, 4, v2")
    a("v_lshlrev_b32 v10, 12, v10")
    a("v_lshl_add_u32 v95, v3, 4, v10")
    a("s_lshl_b32 s41, s22, 7")
    a("s_lshl_b32 s36, s3, 5")
    a("s_add_u32 s41, s41, s36")
    a("s_lshl_b32 s41, s41, 12")
    a("s_lshl_b32 s36, s23, 8")
    a("s_add_u32 s41, s41, s36")
    for r in range(ACC, ACC + 144): a("v_mov_b32 v%d, 0" % r)
    def accr(z, ft, tt): return ACC + 72 * z + 4 * tidx(ft, tt)
    def Fr(z, ft): return FR + 20 * z + 4 * ft
    trk = LdsTracker(a)
    def treads(buf):
        L = []
        for tt in range(4):
            r = TB[buf] + 4 * tt
            L.append(("ds_read_b128 %s, v%d offset:%d" % (vr(r), vTa if tt < 2 else vTb, (tt & 1) * 2048), range(r, r + 4)))
        return L
    def freads(z, ft):
        r = Fr(z, ft); L = []
        for half in range(2):
            off = 16 * half * FS + 32 * (9 * z + ft)
            v = vP[(z + ft) & 1] if ft < 4 else vH[z]
            L.append(("ds_read_b64_tr_b16 %s, v%d offset:%d" % (vr(r + 2 * half, 2), v, off), range(r + 2 * half, r + 2 * half + 2)))
        return L
    def rd(t):
        a(t[0]); trk.issue(t[1])
    fpairs = ((vP[0], bP[0]), (vP[1], bP[1]), (vH[0], bH[0]), (vH[1], bH[1]))
    a("v_mov_b32 v%d, v%d" % (vTa, bTa[0])); a("v_mov_b32 v%d, v%d" % (vTb, bTb[0]))
    for d, s_ in fpairs: a("v_mov_b32 v%d, v%d" % (d, s_))
    a("s_mov_b32 s27, 0")
    a("s_mov_b32 s34, 0")
    a("s_mov_b32 s33, 0")
    stamp(a, 1)
    a("s_barrier")
    stamp(a, 2)
    for t in treads(0): rd(t)
    for z in range(2):
        for ft in range(5):
            for t in freads(z, ft): rd(t)
            if len(trk.out) >= 12: trk.drain()
    trk.drain()
    def iteration(par):
        G.stamp_seq(a)
        if "fine" in DBG: trk.out = []
        a("s_barrier")
        upd = []
        if par == 1:
            upd += ["s_add_u32 s27, s27, %d" % TS, "s_cmp_eq_u32 s27, %d" % (NT * TS), "s_cselect_b32 s27, 0, s27"]
        upd += ["v_add_u32 v%d, s27, v%d" % (vTa, bTa[1 - par]), "v_add_u32 v%d, s27, v%d" % (vTb, bTb[1 - par])]
        upd += ["s_add_u32 s34, s34, %d" % FSL, "s_cmp_eq_u32 s34, %d" % (NF * FSL), "s_cselect_b32 s34, 0, s34"]
        upd += ["v_add_u32 v%d, s34, v%d" % (d, s_) for d, s_ in fpairs]
        pend = [("x", u) for u in upd] + [("r", t) for t in treads(1 - par)]
        if par == 0:
            pass
        else:
            pend.append(("x", "s_add_u32 s33, s33, 1"))
        nm = 0
        for z in range(2):
            for ft in range(5):
                for tt in range(4 if ft < 4 else 2):
                    c = accr(z, ft, tt); A = Fr(z, ft); B = TB[par] + 4 * tt
                    trk.need(list(range(A, A + 4)) + list(range(B, B + 4)))
                    if "nomfma" not in DBG: a("v_mfma_f32_16x16x32_bf16 %s, %s, %s, %s" % (vr(c), vr(A), vr(B), vr(c)))
                    nfill = 1
                    while pend and nfill:
                        k, t = pend.pop(0)
                        if k == "x":
                            a(t)
                            if t.startswith("s_") and nm < 8: continue
                        else: rd(t)
                        nfill -= 1
                    nm += 1
                pend += [("r", t) for t in freads(z, ft)]
        for k, t in pend:
            if k == "x": a(t)
            else: rd(t)
        a("s_waitcnt lgkmcnt(15)")
        if len(trk.out) > 15: trk.out = trk.out[-15:]
    a.label("%s_cloop" % name)
    trk.out = []
    lb = len(a.lines)
    iteration(0); iteration(1)
    state = copy.deepcopy(trk.out)
    del a.lines[lb:]
    trk.out = copy.deepcopy(state)
    iteration(0); iteration(1)
    assert [sorted(x) for x in trk.out] == [sorted(x) for x in state]
    a("s_cmp_lt_u32 s33, %d" % (NK // 2))
    a("s_cbranch_scc1 %s_cloop" % name)
    trk.drain()
    stamp(a, 3)
    a("s_waitcnt vmcnt(0)")
    a("s_barrier")
    a("s_cmp_lg_u32 s3, 0")
    a("s_cbranch_scc1 %s_nosig" % name)
    a("v_mov_b32 v10, 1")
    a("s_lshl_b32 s36, s22, 2")
    a("v_mov_b32 v11, s36")
    a("s_mov_b64 exec, 1")
    a("buffer_atomic_add v10, v11, s[60:63], 0 offen sc1")
    a("s_mov_b64 exec, -1")
    a.label("%s_nosig" % name)
    a("s_lshl_b32 s36, s3, 14")
    a("s_add_u32 s36, s36, %d" % TB0)
    a("v_lshlrev_b32 v10, 4, v2")
    a("v_add_u32 v11, s36, v10")
    n_ = 0
    for z in range(2):
        for ft in range(4):
            for tt in range(2):
                a("ds_write_b128 v11, %s offset:%d" % (vr(accr(z, ft, tt + 2)), 1024 * n_))
                n_ += 1
                if n_ in (8, 13): a("s_waitcnt lgkmcnt(4)")
    a("s_waitcnt lgkmcnt(0)")
    a("s_barrier")
    a.label("%s_epi" % name)
    MR = 100; CS = 52; T = 72; ZP1 = 16
    ZP2 = lambda n: 192 + 16 * (n >> 2) + 2 * (n & 3)
    ZP1f = lambda n: 184 + 16 * (n >> 1) + 2 * (n & 1)
    gelu_consts(a)
    a("s_xor_b32 s52, s98, s25")
    a("s_lshl_b32 s36, s24, 9")
    a("s_lshl_b32 s37, s52, 8")
    a("s_add_u32 s38, s36, s37")
    a("v_lshlrev_b32 v10, 3, v3")
    a("v_add_u32 v11, s38, v10")
    a("ds_read_b64 %s, v11 offset:%d" % (vr(MR, 2), RST))
    a("ds_read_b64 %s, v11 offset:%d" % (vr(MR + 2, 2), RST + 128))
    a("v_lshrrev_b32 v10, 4, v2")
    a("v_lshlrev_b32 v4, 4, v10")
    a("s_mul_i32 s36, s25, 320")
    a("v_add_u32 v5, s36, v4")
    def cs_loads(z):
        for ft in range(4):
            a("ds_read_b128 %s, v5 offset:%d" % (vr(CS + 4 * ft), CSO + 576 * z + 64 * ft))
        a("ds_read_b128 %s, v4 offset:%d" % (vr(CS + 16), CSO + 576 * z + 256))
    a("s_waitcnt lgkmcnt(6)")
    cs_loads(0)
    S = [108, 110]; Q = [109, 111]
    for r_ in range(108, 112): a("v_mov_b32 v%d, 0" % r_)
    a("v_mov_b32 v88, 0x3f803f80")
    a("s_waitcnt lgkmcnt(0)")
    def gelu_z(z, ZP, stats):
        def dots(lst):
            if not stats: return
            for d in range(2):
                for (ft, tt) in lst:
                    p = ZP(2 * ft + tt) + d
                    a("v_dot2_f32_bf16 v%d, v%d, v88, v%d" % (S[tt], p, S[tt]))
                    a("v_dot2_f32_bf16 v%d, v%d, v%d, v%d" % (Q[tt], p, p, Q[tt]))
        for f0 in (0, 2):
            lst = [(ft, tt) for ft in (f0, f0 + 1) for tt in range(2)]
            emit_fold_gelu(a, [(ACC + 72 * z + 4 * tidx(ft, tt), CS + 4 * ft, MR + 2 * tt, ZP(2 * ft + tt)) for ft, tt in lst], T)
            dots(lst)
        a("s_cmp_lg_u32 s98, 0")
        a("s_cbranch_scc1 %s_nohalf%d" % (name, z))
        lst = [(4, 0), (4, 1)]
        emit_fold_gelu(a, [(ACC + 72 * z + 4 * tidx(ft, tt), CS + 4 * ft, MR + 2 * tt, ZP(2 * ft + tt)) for ft, tt in lst], T)
        dots(lst)
        a.label("%s_nohalf%d" % (name, z))
    gelu_z(0, ZP2, True)
    cs_loads(1)
    a("s_nop 1")
    emit_xg_reduce(a, S + Q, 72)
    a("s_lshl_b32 s59, s22, 7")
    a("s_lshl_b32 s36, s24, 6")
    a("s_add_u32 s59, s59, s36")
    a("s_lshl_b32 s36, s52, 5")
    a("s_add_u32 s59, s59, s36")
    a("s_lshl_b32 s59, s59, 8")
    a("s_add_u32 s59, s59, 0x%x" % STATS2)
    a("s_lshl_b32 s36, s23, 1")
    a("s_add_u32 s36, s36, s25")
    a("s_lshl_b32 s36, s36, 3")
    a("s_add_u32 s58, s36, s59")
    a("v_lshlrev_b32 v11, 8, v2")
    a("v_cmp_gt_u32 vcc, 32, v2")
    a("v_mov_b32 v12, 0x7ffffff0")
    a("v_cmp_eq_u32 s[36:37], 1, v10")
    a("v_cndmask_b32 v11, v12, v11, vcc")
    a("s_nop 0")
    a("v_cndmask_b32 v108, v108, v110, s[36:37]")
    a("v_cndmask_b32 v109, v109, v111, s[36:37]")
    a("v_and_b32 v109, 0x7fffffff, v109")
    a("buffer_store_dwordx2 v[108:109], v11, s[12:15], s58 offen sc1")
    a("s_setprio 0")
    stamp(a, 4)
    a("s_lshl_b32 s42, s2, 1")
    a("s_add_u32 s42, s42, s98")
    a("v_and_b32 v0, 255, v0")
    emit_wot_loads(a, 136, 144)
    a("s_mov_b32 s41, s42")
    a("s_cmp_ge_u32 s41, 288")
    a("s_cbranch_scc1 %s_nokv1" % name)
    emit_kv_loads(a, 112, 124, 132, 146, 147)
    a.label("%s_nokv1" % name)
    PB = 148
    a("v_lshrrev_b32 v182, 4, v2")
    a("v_lshlrev_b32 v181, 8, v3")
    a("v_lshl_add_u32 v181, v182, 6, v181")
    a("s_lshl_b32 s33, s22, 2")
    a("v_mov_b32 v182, s33")
    a("s_add_u32 s53, s59, 4096")
    a("buffer_load_dword v180, v182, s[60:63], 0 offen sc1")
    a("s_waitcnt lgkmcnt(0)")
    gelu_z(1, ZP1f, False)
    stamp(a, 5)
    a("s_waitcnt vmcnt(0)")
    def gather():
        for tt in range(2):
            for q in range(4):
                a("buffer_load_dwordx4 %s, v181, s[12:15], s%d offen offset:%d sc1" % (vr(PB + 16 * tt + 4 * q), (59, 53)[tt], 16 * q))
    gather()
    a("s_cmp_ge_u32 s41, 288")
    a("s_cbranch_scc1 %s_nokv2" % name)
    for n in range(11): a("v_mov_b32 v%d, v%d" % (16 + n, 112 + n))
    for n in range(8): a("v_mov_b32 v%d, v%d" % (32 + n, 124 + n))
    for n in range(4): a("v_mov_b32 v%d, v%d" % (44 + n, 132 + n))
    a("v_mov_b32 v56, v146"); a("v_mov_b32 v57, v147")
    emit_kv_compute(a, wait=False, store=False)
    a.label("%s_nokv2" % name)
    stamp(a, 6)
    a("s_mov_b32 s43, 0")
    a("v_lshrrev_b32 v10, 4, v2")
    a("s_waitcnt vmcnt(0)")
    a.label("%s_chk" % name)
    a("v_subrev_u32 v11, 16, v180")
    for r in range(PB + 1, PB + 32, 4):
        a("v_or3_b32 v11, v11, v%d, v%d" % (r, r + 2))
    a("v_cmp_gt_i32 vcc, 0, v11")
    a("s_add_u32 s43, s43, 1")
    a("s_cmp_gt_u32 s43, %d" % SPIN_MAX)
    a("s_cbranch_scc1 %s_poll1x" % name)
    a("s_cbranch_vccz %s_poll1x" % name)
    a("s_sleep 24")
    a("buffer_load_dword v180, v182, s[60:63], 0 offen sc1")
    a("s_waitcnt vmcnt(0)")
    gather()
    a("s_waitcnt vmcnt(0)")
    a("s_branch %s_chk" % name)
    a.label("%s_poll1x" % name)
    stamp(a, 7)
    for n in range(2):
        a("buffer_store_dwordx4 %s, v%d, s[12:15], s40 offen" % (vr(136 + 4 * n), 144 + n))
    a("s_cmp_ge_u32 s41, 288")
    a("s_cbranch_scc1 %s_nokv3" % name)
    a("s_mov_b32 s39, 0x%x" % KVT)
    a("buffer_store_dwordx4 v[120:123], v12, s[12:15], s39 offen")
    a("buffer_store_dwordx4 v[124:127], v13, s[12:15], s39 offen")
    a.label("%s_nokv3" % name)
    a("s_lshl_b32 s36, s22, 4")
    a("s_add_u32 s36, s36, s23")
    a("s_lshl_b32 s36, s36, 2")
    a("s_add_u32 s36, s36, s3")
    a("s_mul_i32 s36, s36, 9216")
    a("s_lshl_b32 s37, s98, 10")
    a("s_add_u32 s36, s36, s37")
    a("s_add_u32 s36, s36, 0x%x" % Z1IMG)
    a("s_add_u32 s37, s36, 4096")
    a("s_add_u32 s38, s36, 8192")
    a("v_lshlrev_b32 v11, 4, v2")
    for ft in range(4):
        a("buffer_store_dwordx4 %s, v11, s[12:15], s%d offen offset:%d" % (vr(184 + 16 * ft), 36 + (ft >> 1), (ft & 1) * 2048))
    a("s_cmp_lg_u32 s98, 0")
    a("s_cbranch_scc1 %s_noh1" % name)
    a("buffer_store_dwordx4 %s, v11, s[12:15], s38 offen" % vr(248))
    a.label("%s_noh1" % name)
    for tt in range(2):
        b = PB + 16 * tt
        for st in (8, 4, 2):
            for q in range(0, st, 2):
                a("v_pk_add_f32 %s, %s, %s" % (vr(b + q, 2), vr(b + q, 2), vr(b + q + st, 2)))
    emit_xg_reduce(a, [PB + 16 * tt + e for tt in range(2) for e in range(2)], 72)
    for tt in range(2):
        b = PB + 16 * tt
        emit_ln_finish(a, b, b + 1, 2304, b + 2, MR + 2 * tt, b + 4)
        a("v_mul_f32 v%d, -v%d, v%d" % (MR + 2 * tt + 1, b + 2, MR + 2 * tt))
    a("v_lshrrev_b32 v11, 2, v2"); a("v_and_b32 v11, 1, v11"); a("v_lshlrev_b32 v11, 4, v11")
    a("v_lshrrev_b32 v12, 3, v2"); a("v_and_b32 v12, 1, v12"); a("v_lshl_add_u32 v11, v12, 2, v11")
    a("v_and_b32 v12, 3, v2"); a("v_add_u32 v11, v11, v12")
    a("v_mul_u32_u24 v11, 288, v11")
    a("v_lshrrev_b32 v12, 1, v10"); a("v_lshl_add_u32 v11, v12, 4, v11")
    a("v_and_b32 v12, 1, v10")
    a("v_lshl_add_u32 v13, v12, 5, v11")
    a("v_mul_u32_u24 v12, 2304, v12")
    a("v_add_u32 v9, v11, v12")
    a("s_lshl_b32 s33, s23, 5")
    a("s_lshl_b32 s36, s22, 1")
    a("s_add_u32 s33, s33, s36")
    a("s_add_u32 s33, s33, s24")
    a("s_mul_i32 s33, s33, 18432")
    if ZIMG: a("s_add_u32 s33, s33, 0x%x" % ZIMG)
    a("s_mul_i32 s36, s52, 9216")
    a("s_add_u32 s37, s33, s36")
    a("s_add_u32 s39, s37, 128")
    a("s_mul_i32 s36, s25, 160")
    a("s_add_u32 s37, s37, s36")
    def norm_pair(nA, ttA, nB, ttB, O):
        for q, (n, tt) in enumerate(((nA, ttA), (nB, ttB))):
            for d in range(2):
                z = ZP2(n) + d; t = T + 4 * q + 2 * d
                a("v_lshlrev_b32 v%d, 16, v%d" % (t, z))
                a("v_and_b32 v%d, 0xffff0000, v%d" % (t + 1, z))
        for q, (n, tt) in enumerate(((nA, ttA), (nB, ttB))):
            for d in range(2):
                t = T + 4 * q + 2 * d
                a("v_pk_fma_f32 %s, %s, %s, %s op_sel:[0,0,1] op_sel_hi:[1,0,1]" % (vr(t, 2), vr(t, 2), vr(MR + 2 * tt, 2), vr(MR + 2 * tt, 2)))
        for q in range(2):
            for d in range(2):
                t = T + 4 * q + 2 * d
                a("v_cvt_pk_bf16_f32 v%d, v%d, v%d" % (O + 2 * q + d, t, t + 1))
        a("s_nop 1")
        a("v_permlane16_swap_b32 v%d, v%d" % (O, O + 2))
        a("v_permlane16_swap_b32 v%d, v%d" % (O + 1, O + 3))
    cnt = 0
    for pr in range(2):
        for tt in range(2):
            O = 16 + 4 * cnt; cnt += 1
            norm_pair(2 * (2 * pr) + tt, tt, 2 * (2 * pr + 1) + tt, tt, O)
            a("s_nop 0")
            a("buffer_store_dwordx4 %s, v13, s[12:15], s37 offen offset:%d" % (vr(O), tt * 2304 + 64 * pr))
    a("s_cmp_lg_u32 s98, 0")
    a("s_cbranch_scc1 %s_fin" % name)
    O = 16 + 4 * cnt
    norm_pair(8, 0, 9, 1, O)
    a("s_nop 0")
    a("buffer_store_dwordx4 %s, v9, s[12:15], s39 offen" % vr(O))
    a.label("%s_fin" % name)
    a("s_load_dwordx2 s[90:91], s[0:1], 64")
    a("v_lshrrev_b32 v10, 4, v2")
    a("v_lshlrev_b32 v10, 12, v10")
    a("v_lshl_add_u32 v10, v3, 4, v10")
    a("s_lshl_b32 s41, s22, 7")
    a("s_lshl_b32 s36, s3, 5")
    a("s_add_u32 s41, s41, s36")
    a("s_lshl_b32 s36, s98, 4")
    a("s_add_u32 s41, s41, s36")
    a("s_lshl_b32 s41, s41, 12")
    a("s_lshl_b32 s36, s23, 8")
    a("s_add_u32 s41, s41, s36")
    a("s_waitcnt lgkmcnt(0)")
    srd(a, 92, 90, 2048 * 2048 * 2)
    for n in range(4):
        a("buffer_load_dwordx4 v[96:99], v10, s[92:95], s41 offen")
        if n < 3: a("s_add_u32 s41, s41, 16384")
    stamp(a, 8)
    a.label("%s_end" % name)
    a("s_endpgm")
    return a.text(), kernel_desc(name, 256, 256), (name, 256, 512, LDSB)

def gen_kw(name="kw_kernel"):
    return G.gen_k0(name)

gen_k2 = G.gen_k2; gen_k3 = G.gen_k3; gen_kc = G.gen_kc

if __name__ == "__main__":
    which = sys.argv[1]; out = sys.argv[2]
    if len(sys.argv) > 3: DBG.update(sys.argv[3].split(","))
    ks = [globals()["gen_" + w]() for w in which.split(",")]
    open(out, "w").write(assemble_file([k[2] for k in ks], "".join(k[0] for k in ks), [k[1] for k in ks]))
```

```python
import sys
from asmgen import *

ZIMG   = 0x0000000
Z1IMG  = 0x0A00000
PIMG   = 0x1400000
WOT    = 0x1E00000
KVT    = 0x2200000
YT     = 0x2600000
STATS2 = 0x2A00000
STATS1 = 0x2B00000
STAMPS = 0x2C00000
WS_BYTES = 0x10000000

DBG = set()

class LdsTracker:
    def __init__(self, a):
        self.a = a
        self.out = []
    def issue(self, regs):
        self.out.append(set(regs))
    def need(self, regs):
        regs = set(regs)
        last = -1
        for n, s in enumerate(self.out):
            if s & regs:
                last = n
        if last >= 0:
            remaining = len(self.out) - 1 - last
            self.a("s_waitcnt lgkmcnt(%d)" % min(remaining, 15))
            self.out = self.out[last + 1:]
    def drain(self):
        if self.out:
            self.a("s_waitcnt lgkmcnt(0)")
        self.out = []

def vr(b, n=4):
    return "v[%d:%d]" % (b, b + n - 1)

class Core:
    def __init__(self, a, acc, fb0, fb1, FS, TREG, vTa, vTb, vF, vFh):
        self.a = a; self.acc = acc; self.fb = [fb0, fb1]; self.FS = FS; self.TREG = TREG
        self.vTa = vTa; self.vTb = vTb; self.vF = vF; self.vFh = vFh
        self.trk = LdsTracker(a)
    def T(self, buf, tt): return self.fb[buf] + 4 * tt
    def F(self, buf, ft): return self.fb[buf] + 16 + 4 * ft
    def accr(self, ft, tt):
        return self.acc + 4 * (ft * 4 + tt if ft < 4 else 16 + tt)
    def reads(self, buf, h, toff=0, foff=0):
        L = []
        def rt(tt):
            v = (self.vTa if tt < 2 else self.vTb)[h]
            r = self.T(buf, tt)
            L.append(("ds_read_b128 %s, v%d offset:%d" % (vr(r), v, toff + (tt & 1) * 2048), range(r, r + 4)))
        def rf(ft):
            r = self.F(buf, ft)
            for half in range(2):
                off = foff + (32 * h + 16 * half) * self.FS + (32 * ft if ft < 4 else 0)
                v = self.vF if ft < 4 else self.vFh
                L.append(("ds_read_b64_tr_b16 %s, v%d offset:%d" % (vr(r + 2 * half, 2), v, off), range(r + 2 * half, r + 2 * half + 2)))
        rt(0); rf(0); rt(1); rt(2); rt(3); rf(1); rf(2); rf(3); rf(4)
        return L
    def mfmas(self, buf, first=False):
        L = []
        for ft in range(5):
            for tt in range(4 if ft < 4 else 2):
                c = self.accr(ft, tt)
                A = self.F(buf, ft); B = self.T(buf, tt)
                src = "0" if first else vr(c)
                L.append(("v_mfma_f32_16x16x32_bf16 %s, %s, %s, %s" % (vr(c), vr(A), vr(B), src),
                          list(range(A, A + 4)) + list(range(B, B + 4))))
        return L
    def phase(self, buf, reads, first=False, extra=None, pre=None):
        a = self.a
        ms = self.mfmas(buf, first)
        reads = list(reads); extra = list(extra or [])
        if pre:
            for p in pre: a(p)
        for n, (m, regs) in enumerate(ms):
            self.trk.need(regs)
            if "nomfma" not in DBG: a(m)
            if reads:
                t, r = reads.pop(0)
                if "nolds" not in DBG:
                    a(t); self.trk.issue(r)
            elif extra:
                a(extra.pop(0))
        for t, r in reads:
            if "nolds" not in DBG:
                a(t); self.trk.issue(r)
        for e in extra: a(e)
    def prime(self, buf, reads):
        for t, r in reads:
            if "nolds" not in DBG:
                self.a(t); self.trk.issue(r)

def stamp(a, idx):
    if "stamp" not in DBG: return
    a("s_memtime s[48:49]")
    a("s_waitcnt lgkmcnt(0)")
    a("v_mov_b32 v1, s48")
    a("buffer_store_dword v1, off, s[44:47], s50 offset:%d" % (idx * 4))

def stamp_rt(a, idx):
    if "stamp" not in DBG: return
    a("s_memrealtime s[48:49]")
    a("s_waitcnt lgkmcnt(0)")
    a("v_mov_b32 v1, s48")
    a("buffer_store_dword v1, off, s[44:47], s50 offset:%d" % ((56 + idx) * 4))

def stamp_seq(a):
    if "fine" not in DBG: return
    a("s_memtime s[48:49]")
    a("s_waitcnt lgkmcnt(0)")
    a("v_mov_b32 v1, s48")
    a("buffer_store_dword v1, off, s[44:47], s51 offset:64")
    a("s_add_u32 s51, s51, 4")

def stamp_setup(a, kidx=0):
    if "stamp" not in DBG: return
    a("s_load_dwordx2 s[100:101], s[0:1], 104")
    a("s_waitcnt lgkmcnt(0)")
    a("s_add_u32 s100, s100, 0x%x" % (STAMPS + 1024 * kidx))
    a("s_addc_u32 s101, s101, 0")
    srd(a, 44, 100, 1024)
    a("s_mov_b32 s50, 0x10000")
    a("s_cmp_eq_u32 s2, 0")
    a("s_cselect_b32 s51, 0, 0x10000")
    a("s_cmp_eq_u32 s2, 240")
    a("s_cselect_b32 s51, 512, s51")
    a("s_cmp_eq_u32 s3, 0")
    a("s_cselect_b32 s50, s51, s50")
    a("s_add_u32 s51, s51, 256")
    a("s_cmp_eq_u32 s3, 4")
    a("s_cselect_b32 s50, s51, s50")
    a("s_mov_b32 s51, s50")
    stamp_rt(a, 0)

def wave_setup(a, nthreads=512):
    a("v_lshrrev_b32 v1, 6, v0")
    a("v_and_b32 v2, 63, v0")
    a("v_readfirstlane_b32 s3, v1")

def gen_k2(name="k2_kernel", R=4, dbg=""):
    a = Asm()
    SLOT = 34816; TREG = 16384; FS = 288; NST = 32
    kernel_begin(a, name)
    a("s_cmp_ge_u32 s2, 256")
    a("s_cbranch_scc1 %s_end" % name)
    a("s_load_dwordx2 s[4:5], s[0:1], 64")
    a("s_load_dwordx2 s[6:7], s[0:1], 104")
    a("s_load_dwordx2 s[16:17], s[0:1], 72")
    wave_setup(a)
    a("s_and_b32 s20, s2, 7")
    a("s_lshr_b32 s21, s2, 3")
    a("s_and_b32 s22, s20, 1")
    a("s_lshl_b32 s22, s22, 3")
    a("s_and_b32 s23, s21, 7")
    a("s_add_u32 s22, s22, s23")
    a("s_lshr_b32 s23, s20, 1")
    a("s_lshl_b32 s23, s23, 2")
    a("s_lshr_b32 s24, s21, 3")
    a("s_add_u32 s23, s23, s24")
    a("s_waitcnt lgkmcnt(0)")
    srd(a, 8, 4, 2048 * 2048 * 2)
    srd(a, 12, 6, WS_BYTES)
    srd(a, 28, 16, 2048 * 2)
    stamp_setup(a, 2); stamp(a, 0)
    a("s_cmp_ge_u32 s3, 4")
    a("s_cbranch_scc1 %s_loader" % name)
    ACC = 128; FB0 = 16; FB1 = 52
    vTa = [4, 5]; vTb = [6, 7]; vF = 8; vFh = 9
    bTa = [88, 89]; bTb = [90, 91]; bF = 92; bFh = 93
    a("s_lshr_b32 s24, s3, 1")
    a("s_and_b32 s25, s3, 1")
    a("v_and_b32 v3, 15, v2")
    a("v_lshrrev_b32 v10, 4, v2")
    a("v_lshrrev_b32 v11, 1, v3")
    a("v_xor_b32 v10, v10, v11")
    a("v_lshlrev_b32 v10, 4, v10")
    a("v_lshl_add_u32 v10, v3, 7, v10")
    a("s_lshl_b32 s26, s24, 13")
    a("v_add_u32 v10, s26, v10")
    a("s_lshl_b32 s26, s25, 12")
    a("v_add_u32 v%d, s26, v10" % bTa[0])
    a("s_xor_b32 s26, s26, 4096")
    a("v_add_u32 v%d, s26, v10" % bTb[0])
    a("v_xor_b32 v%d, 64, v%d" % (bTa[1], bTa[0]))
    a("v_xor_b32 v%d, 64, v%d" % (bTb[1], bTb[0]))
    a("v_lshrrev_b32 v10, 2, v2")
    a("v_mul_u32_u24 v10, %d, v10" % FS)
    a("v_and_b32 v11, 3, v2")
    a("v_lshl_add_u32 v10, v11, 3, v10")
    a("v_add_u32 v10, %d, v10" % TREG)
    a("s_mul_i32 s26, s25, 160")
    a("v_add_u32 v%d, s26, v10" % bF)
    a("v_add_u32 v%d, 128, v10" % bFh)
    core = Core(a, ACC, FB0, FB1, FS, TREG, vTa, vTb, vF, vFh)
    for d, s in ((vTa[0], bTa[0]), (vTb[0], bTb[0]), (vTa[1], bTa[1]), (vTb[1], bTb[1]), (vF, bF), (vFh, bFh)):
        a("v_mov_b32 v%d, v%d" % (d, s))
    a("s_mov_b32 s27, 0")
    a("s_mov_b32 s33, 0")
    a("s_barrier")
    stamp(a, 1)
    core.prime(0, core.reads(0, 0))
    def iteration(first, last):
        a("s_barrier")
        a("s_add_u32 s34, s27, %d" % SLOT)
        a("s_cmp_eq_u32 s34, %d" % (R * SLOT))
        a("s_cselect_b32 s34, 0, s34")
        core.phase(0, core.reads(1, 1), first=first)
        if not last:
            pre = ["v_add_u32 v%d, s34, v%d" % (d, s) for d, s in ((vTa[0], bTa[0]), (vF, bF), (vTb[0], bTb[0]), (vFh, bFh))]
            post = ["v_add_u32 v%d, s34, v%d" % (d, s) for d, s in ((vTa[1], bTa[1]), (vTb[1], bTb[1]))]
            core.phase(1, core.reads(0, 0), pre=pre, extra=post)
        else:
            core.phase(1, [])
        a("s_mov_b32 s27, s34")
    iteration(True, False)
    a("s_mov_b32 s33, 1")
    a.label("%s_cloop" % name)
    saved = list(core.trk.out)
    iteration(False, False)
    assert [sorted(x) for x in saved] == [sorted(x) for x in core.trk.out], "loop tracker mismatch"
    a("s_add_u32 s33, s33, 1")
    a("s_cmp_lt_u32 s33, %d" % (NST - 1))
    a("s_cbranch_scc1 %s_cloop" % name)
    Z1R = 200; BI = 236
    a("s_lshl_b32 s35, s22, 4")
    a("s_add_u32 s35, s35, s23")
    a("s_lshl_b32 s35, s35, 2")
    a("s_add_u32 s35, s35, s3")
    a("s_mul_i32 s35, s35, 9216")
    a("s_add_u32 s35, s35, 0x%x" % Z1IMG)
    a("v_lshlrev_b32 v10, 4, v2")
    for q in range(9):
        if q == 4: a("s_add_u32 s35, s35, 4096")
        if q == 8: a("s_add_u32 s35, s35, 4096")
        a("buffer_load_dwordx4 %s, v10, s[12:15], s35 offen offset:%d" % (vr(Z1R + 4 * q), (q & 3) * 1024))
    a("s_lshl_b32 s36, s22, 7")
    a("s_lshl_b32 s37, s24, 6")
    a("s_add_u32 s36, s36, s37")
    a("v_lshlrev_b32 v11, 1, v3")
    a("s_lshl_b32 s37, s25, 6")
    a("s_lshl_b32 s38, s36, 1")
    a("s_add_u32 s39, s38, s37")
    a("s_xor_b32 s37, s37, 64")
    a("s_add_u32 s40, s38, s37")
    a("buffer_load_ushort v%d, v11, s[28:31], s39 offen" % (BI + 0))
    a("buffer_load_ushort v%d, v11, s[28:31], s39 offen offset:32" % (BI + 1))
    a("buffer_load_ushort v%d, v11, s[28:31], s40 offen" % (BI + 2))
    a("buffer_load_ushort v%d, v11, s[28:31], s40 offen offset:32" % (BI + 3))
    iteration(False, True)
    stamp(a, 2)
    a("s_waitcnt vmcnt(0)")
    stamp(a, 3)
    for tt in range(4):
        a("v_lshlrev_b32 v%d, 16, v%d" % (BI + tt, BI + tt))
    a("s_nop 7"); a("s_nop 7")
    xs = 16
    for ft in range(5):
        for tt in range(4 if ft < 4 else 2):
            n = ft * 4 + tt if ft < 4 else 16 + tt
            c = core.accr(ft, tt)
            z = Z1R + 2 * n
            a("v_cvt_pk_bf16_f32 v%d, v%d, v%d" % (xs, c, c + 1))
            a("v_cvt_pk_bf16_f32 v%d, v%d, v%d" % (xs + 1, c + 2, c + 3))
            a("v_lshlrev_b32 v%d, 16, v%d" % (c, xs))
            a("v_and_b32 v%d, 0xffff0000, v%d" % (c + 1, xs))
            a("v_lshlrev_b32 v%d, 16, v%d" % (c + 2, xs + 1))
            a("v_and_b32 v%d, 0xffff0000, v%d" % (c + 3, xs + 1))
            for r in range(4):
                a("v_add_f32 v%d, v%d, v%d" % (c + r, c + r, BI + tt))
            a("v_cvt_pk_bf16_f32 v%d, v%d, v%d" % (xs, c, c + 1))
            a("v_cvt_pk_bf16_f32 v%d, v%d, v%d" % (xs + 1, c + 2, c + 3))
            a("v_lshlrev_b32 v%d, 16, v%d" % (c, xs))
            a("v_and_b32 v%d, 0xffff0000, v%d" % (c + 1, xs))
            a("v_lshlrev_b32 v%d, 16, v%d" % (c + 2, xs + 1))
            a("v_and_b32 v%d, 0xffff0000, v%d" % (c + 3, xs + 1))
            a("v_lshlrev_b32 v%d, 16, v%d" % (xs + 2, z))
            a("v_and_b32 v%d, 0xffff0000, v%d" % (xs + 3, z))
            a("v_lshlrev_b32 v%d, 16, v%d" % (xs + 4, z + 1))
            a("v_and_b32 v%d, 0xffff0000, v%d" % (xs + 5, z + 1))
            for r in range(4):
                a("v_mul_f32 v%d, v%d, v%d" % (c + r, c + r, xs + 2 + r))
            a("v_cvt_pk_bf16_f32 v%d, v%d, v%d" % (z, c, c + 1))
            a("v_cvt_pk_bf16_f32 v%d, v%d, v%d" % (z + 1, c + 2, c + 3))
    stamp(a, 4)
    emit_p_store(a, Z1R, core)
    stamp(a, 5)
    a("s_waitcnt vmcnt(0)")
    stamp(a, 6)
    stamp_rt(a, 1)
    a("s_branch %s_end" % name)
    a.label("%s_loader" % name)
    if "noprio" not in DBG: a("s_setprio 3")
    a("s_sub_u32 s3, s3, 4")
    a("v_lshrrev_b32 v3, 3, v2")
    a("s_lshl_b32 s24, s3, 5")
    a("v_add_u32 v3, s24, v3")
    a("v_and_b32 v4, 7, v2")
    for n in range(4):
        a("v_add_u32 v5, %d, v3" % (8 * n))
        a("v_lshrrev_b32 v6, 1, v5")
        a("v_and_b32 v6, 7, v6")
        a("v_xor_b32 v6, v6, v4")
        a("v_lshlrev_b32 v6, 4, v6")
        a("v_lshl_add_u32 v%d, v5, 12, v6" % (10 + n))
        if n: a("v_subrev_u32 v%d, %d, v%d" % (10 + n, n * 1024, 10 + n))
    a("v_lshlrev_b32 v14, 4, v2")
    a("s_lshl_b32 s26, s22, 19")
    a("s_mul_i32 s27, s23, %d" % (32 * 18432))
    a("s_lshl_b32 s24, s3, 12")
    a("s_add_u32 s27, s27, s24")
    if ZIMG: a("s_add_u32 s27, s27, 0x%x" % ZIMG)
    a("s_lshl_b32 s25, s3, 9")
    a("s_sub_u32 s32, s25, s24")
    a("s_add_u32 s32, s32, 16384")
    a("s_mov_b32 s33, 0")
    a("s_mov_b32 s34, 0")
    def issue():
        if "nodma" in DBG: return
        a("s_add_u32 s35, s33, s24")
        a("s_mov_b32 m0, s35")
        a("s_add_u32 s36, s35, %d" % TREG)
        for n in range(4):
            a("buffer_load_dwordx4 v%d, s[8:11], s26 offen offset:%d lds" % (10 + n, n * 1024))
        a("s_mov_b32 m0, s36")
        a("s_add_u32 s37, s27, s32")
        for n in range(4):
            a("buffer_load_dwordx4 v14, s[12:15], s27 offen offset:%d lds" % (n * 1024))
        a("s_add_u32 s36, s36, s32")
        a("s_mov_b32 m0, s36")
        a("s_mov_b64 exec, 0xffffffff")
        a("buffer_load_dwordx4 v14, s[12:15], s37 offen lds")
        a("s_mov_b64 exec, -1")
        a("s_add_u32 s26, s26, 128")
        a("s_add_u32 s27, s27, 18432")
        a("s_add_u32 s33, s33, %d" % SLOT)
        a("s_cmp_eq_u32 s33, %d" % (R * SLOT))
        a("s_cselect_b32 s33, 0, s33")
    for s in range(R - 1):
        issue()
    a("s_waitcnt vmcnt(%d)" % (9 * (R - 2)))
    a("s_barrier")
    issue()
    a("s_waitcnt vmcnt(%d)" % (9 * (R - 2)))
    a("s_barrier")
    a("s_waitcnt vmcnt(%d)" % (9 * (R - 3)))
    a("s_barrier")
    a("s_mov_b32 s34, 1")
    a.label("%s_lloop" % name)
    issue()
    a("s_waitcnt vmcnt(%d)" % (9 * (R - 3)))
    a("s_barrier")
    a("s_add_u32 s34, s34, 1")
    a("s_cmp_lt_u32 s34, %d" % (NST - R + 1))
    a("s_cbranch_scc1 %s_lloop" % name)
    for k in range(NST - R + 1, NST - 1):
        left = max(0, (NST - 1) - (k + 2))
        a("s_waitcnt vmcnt(%d)" % (9 * left))
        a("s_barrier")
    a.label("%s_end" % name)
    a("s_endpgm")
    return a.text(), kernel_desc(name, 256, 256), (name, 256, 512, R * SLOT)

def emit_p_store(a, PR, core):
    a("v_lshrrev_b32 v10, 4, v2")
    a("v_and_b32 v11, 1, v10")
    a("v_lshrrev_b32 v12, 1, v10")
    a("v_lshl_add_u32 v12, v11, 1, v12")
    a("s_mul_i32 s35, s23, 18")
    a("s_mul_i32 s36, s25, 10")
    a("s_add_u32 s36, s36, s35")
    a("v_lshrrev_b32 v13, 1, v3")
    a("s_lshl_b32 s37, s22, 1")
    a("s_add_u32 s37, s37, s24")
    a("s_mul_i32 s37, s37, %d" % (36 * 8192))
    a("s_add_u32 s37, s37, 0x%x" % PIMG)
    a("s_lshl_b32 s38, s25, 12")
    a("s_add_u32 s39, s37, s38")
    a("s_xor_b32 s38, s38, 4096")
    a("s_add_u32 s40, s37, s38")
    def addr(dst, pv):
        a("v_lshrrev_b32 v14, 3, v%d" % pv)
        a("v_lshlrev_b32 v14, 13, v14")
        a("v_and_b32 v15, 7, v%d" % pv)
        a("v_xor_b32 v15, v15, v13")
        a("v_lshl_add_u32 v14, v15, 4, v14")
        a("v_lshl_add_u32 v%d, v3, 7, v14" % dst)
    for pr in range(2):
        a("v_add_u32 v16, s36, v12")
        if pr: a("v_add_u32 v16, 4, v16")
        addr(17, 16)
        for tt in range(4):
            nA = (2 * pr) * 4 + tt; nB = (2 * pr + 1) * 4 + tt
            A = PR + 2 * nA; B = PR + 2 * nB
            a("v_mov_b32 v20, v%d" % A); a("v_mov_b32 v21, v%d" % (A + 1))
            a("v_mov_b32 v22, v%d" % B); a("v_mov_b32 v23, v%d" % (B + 1))
            a("s_nop 1")
            a("v_permlane16_swap_b32 v20, v22")
            a("v_permlane16_swap_b32 v21, v23")
            a("s_nop 1")
            a("buffer_store_dwordx4 v[20:23], v17, s[12:15], s%d offen offset:%d" % (39 if tt < 2 else 40, (tt & 1) * 2048))
            a("s_nop 1")
    a("v_lshrrev_b32 v16, 1, v10")
    a("s_add_u32 s35, s35, 8")
    a("v_add_u32 v16, s35, v16")
    addr(17, 16)
    a("v_lshl_add_u32 v17, v11, 11, v17")
    A = PR + 32; B = PR + 34
    a("v_mov_b32 v20, v%d" % A); a("v_mov_b32 v21, v%d" % (A + 1))
    a("v_mov_b32 v22, v%d" % B); a("v_mov_b32 v23, v%d" % (B + 1))
    a("s_nop 1")
    a("v_permlane16_swap_b32 v20, v22")
    a("v_permlane16_swap_b32 v21, v23")
    a("s_nop 1")
    a("buffer_store_dwordx4 v[20:23], v17, s[12:15], s39 offen")

def rnd_pair(a, tmp, r0, r1):
    a("v_cvt_pk_bf16_f32 v%d, v%d, v%d" % (tmp, r0, r1))
    a("v_lshlrev_b32 v%d, 16, v%d" % (r0, tmp))
    a("v_and_b32 v%d, 0xffff0000, v%d" % (r1, tmp))

def gen_k3(name="k3_kernel", R=4):
    a = Asm()
    TREG = 16384; FS = 160; SLOT = TREG + 128 * FS; NST = 18
    YOFF = R * SLOT
    kernel_begin(a, name)
    a("s_cmp_ge_u32 s2, 256")
    a("s_cbranch_scc1 %s_end" % name)
    a("s_load_dwordx2 s[4:5], s[0:1], 0")
    a("s_load_dwordx2 s[6:7], s[0:1], 104")
    a("s_load_dwordx2 s[16:17], s[0:1], 88")
    wave_setup(a)
    a("s_and_b32 s20, s2, 7")
    a("s_lshr_b32 s21, s2, 3")
    a("s_and_b32 s22, s20, 3")
    a("s_lshl_b32 s22, s22, 3")
    a("s_and_b32 s23, s21, 7")
    a("s_add_u32 s22, s22, s23")
    a("s_lshr_b32 s23, s20, 2")
    a("s_lshl_b32 s23, s23, 2")
    a("s_lshr_b32 s24, s21, 3")
    a("s_add_u32 s23, s23, s24")
    a("s_lshr_b32 s24, s23, 1")
    a("s_and_b32 s25, s23, 1")
    a("s_waitcnt lgkmcnt(0)")
    srd(a, 8, 4, 2048 * 576 * 2)
    srd(a, 12, 6, WS_BYTES)
    srd(a, 28, 16, 2048 * 576 * 2)
    stamp_setup(a, 3); stamp(a, 0)
    a("s_cmp_ge_u32 s3, 4")
    a("s_cbranch_scc1 %s_loader" % name)
    ACC = 128; FB0 = 16; FB1 = 52
    vTa = [4, 4]; vTb = [6, 6]; vF = 8; vFh = 9
    bTa = 88; bTb = 90; bF = 92; bFh = 93
    XR = 200; ST = 210; YR = 212
    a("v_and_b32 v3, 15, v2")
    a("v_lshrrev_b32 v10, 4, v2")
    a("s_and_b32 s26, s3, 1")
    a("s_lshl_b32 s26, s26, 2")
    a("v_add_u32 v10, s26, v10")
    a("v_lshrrev_b32 v11, 1, v3")
    a("v_xor_b32 v10, v10, v11")
    a("v_lshlrev_b32 v10, 4, v10")
    a("v_lshl_add_u32 v10, v3, 7, v10")
    a("s_lshr_b32 s26, s3, 1")
    a("s_lshl_b32 s26, s26, 13")
    a("v_add_u32 v10, s26, v10")
    a("s_lshl_b32 s26, s25, 12")
    a("v_add_u32 v%d, s26, v10" % bTa)
    a("s_xor_b32 s26, s26, 4096")
    a("v_add_u32 v%d, s26, v10" % bTb)
    a("v_lshrrev_b32 v10, 2, v2")
    a("v_mul_u32_u24 v10, %d, v10" % FS)
    a("v_and_b32 v11, 3, v2")
    a("v_lshl_add_u32 v10, v11, 3, v10")
    a("s_mul_i32 s26, s3, %d" % (32 * FS))
    a("s_add_u32 s26, s26, %d" % TREG)
    a("v_add_u32 v%d, s26, v10" % bF)
    a("v_add_u32 v%d, 128, v%d" % (bFh, bF))
    a("s_lshl_b32 s26, s25, 1")
    a("s_add_u32 s26, s26, s3")
    a("s_and_b32 s26, s26, 3")
    a("s_lshl_b32 s27, s26, 4")
    a("s_lshl_b32 s33, s22, 6")
    a("s_add_u32 s27, s27, s33")
    a("v_add_u32 v12, s27, v3")
    a("v_mul_u32_u24 v13, 1152, v12")
    a("v_lshrrev_b32 v10, 4, v2")
    a("v_lshl_add_u32 v13, v10, 3, v13")
    a("s_mul_i32 s34, s24, 288")
    a("s_mul_i32 s35, s25, 160")
    a("s_add_u32 s35, s35, s34")
    a("s_add_u32 s36, s34, 128")
    for ft in range(4):
        a("buffer_load_dwordx2 %s, v13, s[8:11], s35 offen offset:%d" % (vr(XR + 2 * ft, 2), 32 * ft))
    a("buffer_load_dwordx2 %s, v13, s[8:11], s36 offen" % vr(XR + 8, 2))
    a("v_lshlrev_b32 v14, 3, v12")
    a("s_mov_b32 s37, 0x%x" % STATS1)
    a("buffer_load_dwordx2 %s, v14, s[12:15], s37 offen" % vr(ST, 2))
    core = Core(a, ACC, FB0, FB1, FS, TREG, vTa, vTb, vF, vFh)
    pairs = ((vTa[0], bTa), (vF, bF), (vTb[0], bTb), (vFh, bFh))
    for d, s_ in pairs:
        a("v_mov_b32 v%d, v%d" % (d, s_))
    a("s_mov_b32 s27, 0")
    a("s_barrier")
    stamp(a, 1)
    core.prime(0, core.reads(0, 0))
    def iteration(buf, first, last):
        core.trk.drain()
        a("s_barrier")
        if not last:
            a("s_add_u32 s27, s27, %d" % SLOT)
            a("s_cmp_eq_u32 s27, %d" % (R * SLOT))
            a("s_cselect_b32 s27, 0, s27")
            pre = ["v_add_u32 v%d, s27, v%d" % (d, s_) for d, s_ in pairs]
            core.phase(buf, core.reads(1 - buf, 0), first=first, pre=pre)
        else:
            core.phase(buf, [])
    iteration(0, True, False)
    iteration(1, False, False)
    a("s_mov_b32 s33, 1")
    a.label("%s_cloop" % name)
    iteration(0, False, False)
    iteration(1, False, False)
    a("s_add_u32 s33, s33, 1")
    a("s_cmp_lt_u32 s33, %d" % (NST // 2 - 1))
    a("s_cbranch_scc1 %s_cloop" % name)
    iteration(0, False, False)
    iteration(1, False, True)
    stamp(a, 2)
    a("s_mul_i32 s33, s3, %d" % (18 * 1024))
    a("v_lshlrev_b32 v10, 4, v2")
    a("v_add_u32 v11, s33, v10")
    a("s_nop 7")
    for w in range(4):
        a("s_cmp_eq_u32 s3, %d" % w)
        a("s_cbranch_scc1 %s_skipw%d" % (name, w))
        for ft in range(5):
            if ft == 4 and w >= 2: continue
            n = ft * 4 + w if ft < 4 else 16 + w
            a("ds_write_b128 v11, %s offset:%d" % (vr(core.accr(ft, w)), n * 1024))
        a.label("%s_skipw%d" % (name, w))
    a("s_waitcnt lgkmcnt(0)")
    a("s_barrier")
    O = 16; PT = 40
    for w in range(4):
        a("s_cmp_lg_u32 s3, %d" % w)
        a("s_cbranch_scc1 %s_own%d" % (name, w))
        for ft in range(5):
            for r in range(4):
                if ft == 4 and w >= 2:
                    a("v_mov_b32 v%d, 0" % (O + 4 * ft + r))
                else:
                    a("v_mov_b32 v%d, v%d" % (O + 4 * ft + r, core.accr(ft, w) + r))
        a.label("%s_own%d" % (name, w))
    a("s_lshl_b32 s34, s3, 10")
    for q in range(1, 4):
        a("s_add_u32 s33, s3, %d" % q)
        a("s_and_b32 s33, s33, 3")
        a("s_mul_i32 s33, s33, %d" % (18 * 1024))
        a("s_add_u32 s33, s33, s34")
        a("v_add_u32 v11, s33, v10")
        for ft in range(5):
            a("ds_read_b128 %s, v11 offset:%d" % (vr(PT + 20 * (q - 1) + 4 * ft), ft * 4096))
    a("v_lshrrev_b32 v11, 2, v2")
    a("v_lshlrev_b32 v11, 7, v11")
    a("v_and_b32 v12, 3, v2")
    a("v_lshl_add_u32 v11, v12, 3, v11")
    a("s_lshl_b32 s33, s26, 5")
    a("s_add_u32 s33, s33, %d" % YOFF)
    a("v_add_u32 v11, s33, v11")
    for ft in range(5):
        a("ds_read_b64_tr_b16 %s, v11 offset:%d" % (vr(YR + 2 * ft, 2), ft * 2048))
    a("s_waitcnt lgkmcnt(0) vmcnt(0)")
    stamp(a, 3)
    for ft in range(5):
        for r in range(4):
            o = O + 4 * ft + r
            a("v_add_f32 v%d, v%d, v%d" % (o, o, PT + 4 * ft + r))
            a("v_add_f32 v%d, v%d, v%d" % (PT + 20 + 4 * ft + r, PT + 20 + 4 * ft + r, PT + 40 + 4 * ft + r))
            a("v_add_f32 v%d, v%d, v%d" % (o, o, PT + 20 + 4 * ft + r))
    a("s_mov_b32 s33, 0xbfb8aa3b")
    T = 104
    for ft in range(5):
        if ft == 4:
            a("s_cmp_ge_u32 s3, 2")
            a("s_cbranch_scc1 %s_fin" % name)
        o = O + 4 * ft
        X = XR + 2 * ft; Y = YR + 2 * ft
        rnd_pair(a, T + 20, o, o + 1); rnd_pair(a, T + 20, o + 2, o + 3)
        for r in range(4): a("v_mul_f32 v%d, s33, v%d" % (T + r, o + r))
        for r in range(4): a("v_exp_f32 v%d, v%d" % (T + r, T + r))
        for r in range(4): a("v_add_f32 v%d, 1.0, v%d" % (T + r, T + r))
        for r in range(4): a("v_rcp_f32 v%d, v%d" % (T + r, T + r))
        a("v_lshlrev_b32 v%d, 16, v%d" % (T + 4, X)); a("v_and_b32 v%d, 0xffff0000, v%d" % (T + 5, X))
        a("v_lshlrev_b32 v%d, 16, v%d" % (T + 6, X + 1)); a("v_and_b32 v%d, 0xffff0000, v%d" % (T + 7, X + 1))
        a("v_lshlrev_b32 v%d, 16, v%d" % (T + 8, Y)); a("v_and_b32 v%d, 0xffff0000, v%d" % (T + 9, Y))
        a("v_lshlrev_b32 v%d, 16, v%d" % (T + 10, Y + 1)); a("v_and_b32 v%d, 0xffff0000, v%d" % (T + 11, Y + 1))
        for r in range(4): a("v_mul_f32 v%d, v%d, v%d" % (o + r, o + r, T + r))
        rnd_pair(a, T + 20, o, o + 1); rnd_pair(a, T + 20, o + 2, o + 3)
        for r in range(4): a("v_sub_f32 v%d, v%d, v%d" % (T + 12 + r, T + 4 + r, ST))
        rnd_pair(a, T + 20, T + 12, T + 13); rnd_pair(a, T + 20, T + 14, T + 15)
        for r in range(4): a("v_mul_f32 v%d, v%d, v%d" % (T + 12 + r, T + 12 + r, ST + 1))
        rnd_pair(a, T + 20, T + 12, T + 13); rnd_pair(a, T + 20, T + 14, T + 15)
        for r in range(4): a("v_mul_f32 v%d, v%d, v%d" % (T + 12 + r, T + 12 + r, T + 8 + r))
        rnd_pair(a, T + 20, T + 12, T + 13); rnd_pair(a, T + 20, T + 14, T + 15)
        for r in range(4): a("v_mul_f32 v%d, v%d, v%d" % (T + 12 + r, T + 12 + r, o + r))
        rnd_pair(a, T + 20, T + 12, T + 13); rnd_pair(a, T + 20, T + 14, T + 15)
        for r in range(4): a("v_add_f32 v%d, v%d, v%d" % (T + 12 + r, T + 12 + r, T + 4 + r))
        a("v_cvt_pk_bf16_f32 v%d, v%d, v%d" % (X, T + 12, T + 13))
        a("v_cvt_pk_bf16_f32 v%d, v%d, v%d" % (X + 1, T + 14, T + 15))
        if ft < 4:
            a("buffer_store_dwordx2 %s, v13, s[28:31], s35 offen offset:%d" % (vr(X, 2), 32 * ft))
        else:
            a("buffer_store_dwordx2 %s, v13, s[28:31], s36 offen" % vr(X, 2))
    a.label("%s_fin" % name)
    stamp(a, 4)
    a("s_waitcnt vmcnt(0)")
    stamp(a, 5)
    stamp_rt(a, 1)
    a("s_branch %s_end" % name)
    a.label("%s_loader" % name)
    if "noprio" not in DBG: a("s_setprio 3")
    a("s_sub_u32 s3, s3, 4")
    a("v_lshlrev_b32 v14, 4, v2")
    a("v_lshrrev_b32 v3, 3, v2")
    a("v_and_b32 v4, 7, v2")
    a("v_lshlrev_b32 v4, 4, v4")
    a("s_mul_i32 s33, s24, 144")
    a("s_mul_i32 s34, s25, 80")
    a("s_lshl_b32 s35, s22, 7")
    a("s_add_u32 s35, s35, 0x%x" % YT)
    for n in range(3):
        if n == 2:
            a("s_cmp_ge_u32 s3, 2")
            a("s_cbranch_scc1 %s_noy" % name)
        a("s_add_u32 s36, s3, %d" % (4 * n))
        a("s_lshl_b32 s37, s36, 3")
        a("s_add_u32 s38, s37, s33")
        if n < 2: a("s_add_u32 s38, s38, s34")
        a("v_add_u32 v5, s38, v3")
        a("v_lshl_add_u32 v5, v5, 12, v4")
        a("s_lshl_b32 s36, s36, 10")
        a("s_add_u32 s36, s36, %d" % YOFF)
        a("s_mov_b32 m0, s36")
        a("s_nop 0")
        a("buffer_load_dwordx4 v5, s[12:15], s35 offen lds")
    a.label("%s_noy" % name)
    a("s_mul_i32 s26, s22, %d" % (36 * 8192))
    a("s_lshl_b32 s24, s3, 12")
    a("s_add_u32 s26, s26, s24")
    a("s_add_u32 s26, s26, 0x%x" % PIMG)
    a("s_mul_i32 s27, s23, %d" % (18 * 20480))
    a("s_mul_i32 s25, s3, 5120")
    a("s_add_u32 s27, s27, s25")
    a("s_add_u32 s27, s27, 0x%x" % WOT)
    a("s_add_u32 s25, s25, %d" % TREG)
    a("s_mov_b32 s33, 0")
    def issue():
        if "nodma" in DBG: return
        a("s_add_u32 s35, s33, s24")
        a("s_mov_b32 m0, s35")
        a("s_add_u32 s36, s33, s25")
        for n in range(4):
            a("buffer_load_dwordx4 v14, s[12:15], s26 offen offset:%d lds" % (n * 1024))
        a("s_mov_b32 m0, s36")
        a("s_add_u32 s37, s27, 4096")
        for n in range(4):
            a("buffer_load_dwordx4 v14, s[12:15], s27 offen offset:%d lds" % (n * 1024))
        a("s_add_u32 s36, s36, 4096")
        a("s_mov_b32 m0, s36")
        a("s_add_u32 s26, s26, 16384")
        a("buffer_load_dwordx4 v14, s[12:15], s37 offen lds")
        a("s_add_u32 s27, s27, 20480")
        a("s_add_u32 s33, s33, %d" % SLOT)
        a("s_cmp_eq_u32 s33, %d" % (R * SLOT))
        a("s_cselect_b32 s33, 0, s33")
    for s_ in range(R):
        issue()
    a("s_waitcnt vmcnt(%d)" % (9 * (R - 1)))
    a("s_barrier")
    a("s_waitcnt vmcnt(%d)" % (9 * (R - 2)))
    a("s_barrier")
    a("s_mov_b32 s34, 0")
    a.label("%s_lloop" % name)
    issue()
    a("s_waitcnt vmcnt(%d)" % (9 * (R - 2)))
    a("s_barrier")
    a("s_add_u32 s34, s34, 1")
    a("s_cmp_lt_u32 s34, %d" % (NST - R))
    a("s_cbranch_scc1 %s_lloop" % name)
    for k in range(NST - R, NST - 1):
        left = max(0, (NST - 1) - (k + 2))
        a("s_waitcnt vmcnt(%d)" % (9 * left))
        a("s_barrier")
    a.label("%s_end" % name)
    a("s_endpgm")
    return a.text(), kernel_desc(name, 256, 256), (name, 256, 512, R * SLOT + 10240)

import struct, math
def f32(x): return "0x%08x" % struct.unpack("<I", struct.pack("<f", x))[0]
GC0 = -2.0 * math.sqrt(2.0 / math.pi) * math.log2(math.e)
GC1 = GC0 * 0.044715

def emit_gelu_tile(a, c, dst, T):
    for h in (0, 2):
        a("v_pk_mul_f32 %s, %s, %s" % (vr(T + h, 2), vr(c + h, 2), vr(c + h, 2)))
    for h in (0, 2):
        a("v_mov_b32 v%d, s52" % (T + 4)) if False else None
        a("v_pk_fma_f32 %s, %s, s[54:55], v[%d:%d]" % (vr(T + h, 2), vr(T + h, 2), T + 4, T + 5))
    for h in (0, 2):
        a("v_pk_mul_f32 %s, %s, %s" % (vr(T + h, 2), vr(T + h, 2), vr(c + h, 2)))
    for r in range(4): a("v_exp_f32 v%d, v%d" % (T + r, T + r))
    for h in (0, 2):
        a("v_pk_add_f32 %s, %s, s[56:57]" % (vr(T + h, 2), vr(T + h, 2)))
    a("s_nop 0")
    for r in range(4): a("v_rcp_f32 v%d, v%d" % (T + r, T + r))
    a("s_nop 0")
    for h in (0, 2):
        a("v_pk_mul_f32 %s, %s, %s" % (vr(T + h, 2), vr(T + h, 2), vr(c + h, 2)))
    a("v_cvt_pk_bf16_f32 v%d, v%d, v%d" % (dst, T, T + 1))
    a("v_cvt_pk_bf16_f32 v%d, v%d, v%d" % (dst + 1, T + 2, T + 3))

def emit_xg_reduce(a, regs, t):
    for n, r in enumerate(regs): a("v_mov_b32 v%d, v%d" % (t + n, r))
    a("s_nop 1")
    for n, r in enumerate(regs): a("v_permlane32_swap_b32 v%d, v%d" % (r, t + n))
    a("s_nop 1")
    for n, r in enumerate(regs): a("v_add_f32 v%d, v%d, v%d" % (r, r, t + n))
    for n, r in enumerate(regs): a("v_mov_b32 v%d, v%d" % (t + n, r))
    a("s_nop 1")
    for n, r in enumerate(regs): a("v_permlane16_swap_b32 v%d, v%d" % (r, t + n))
    a("s_nop 1")
    for n, r in enumerate(regs): a("v_add_f32 v%d, v%d, v%d" % (r, r, t + n))

def emit_ln_finish(a, S, Q, N, M, RI, t):
    a("v_mul_f32 v%d, %s, v%d" % (M, f32(1.0 / N), S))
    a("v_mul_f32 v%d, %s, v%d" % (RI, f32(1.0 / N), Q))
    a("v_fma_f32 v%d, -v%d, v%d, v%d" % (RI, M, M, RI))
    a("v_max_f32 v%d, 0, v%d" % (RI, RI))
    rnd_pair(a, t, M, RI)
    a("v_add_f32 v%d, %s, v%d" % (RI, f32(1e-5), RI))
    a("v_cvt_pk_bf16_f32 v%d, v%d, v%d" % (t, RI, RI))
    a("v_lshlrev_b32 v%d, 16, v%d" % (RI, t))
    a("v_sqrt_f32 v%d, v%d" % (RI, RI))
    a("s_nop 0")
    a("v_cvt_pk_bf16_f32 v%d, v%d, v%d" % (t, RI, RI))
    a("v_lshlrev_b32 v%d, 16, v%d" % (RI, t))
    a("v_rcp_f32 v%d, v%d" % (RI, RI))
    a("s_nop 0")

def gen_k1(name="k1_kernel", R=4):
    a = Asm()
    SLOT = 34816; TREG = 16384; FS = 288; NST = 18
    kernel_begin(a, name)
    a("s_cmp_ge_u32 s2, 256")
    a("s_cbranch_scc1 %s_end" % name)
    a("s_load_dwordx2 s[4:5], s[0:1], 56")
    a("s_load_dwordx2 s[6:7], s[0:1], 104")
    a("s_load_dwordx2 s[16:17], s[0:1], 0")
    a("s_load_dwordx2 s[18:19], s[0:1], 96")
    wave_setup(a)
    a("s_and_b32 s20, s2, 7")
    a("s_lshr_b32 s21, s2, 3")
    a("s_and_b32 s22, s20, 1")
    a("s_lshl_b32 s22, s22, 3")
    a("s_and_b32 s23, s21, 7")
    a("s_add_u32 s22, s22, s23")
    a("s_lshr_b32 s23, s20, 1")
    a("s_lshl_b32 s23, s23, 2")
    a("s_lshr_b32 s24, s21, 3")
    a("s_add_u32 s23, s23, s24")
    a("s_waitcnt lgkmcnt(0)")
    srd(a, 8, 4, 576 * 4608 * 2)
    srd(a, 12, 6, WS_BYTES)
    srd(a, 28, 16, 2048 * 576 * 2)
    srd(a, 60, 18, 256)
    stamp_setup(a, 1); stamp(a, 0)
    a("s_cmp_ge_u32 s3, 4")
    a("s_cbranch_scc1 %s_loader" % name)
    ACC = 128; FB0 = 16; FB1 = 52
    vTa = [4, 5]; vTb = [6, 7]; vF = 8; vFh = 9
    bTa = [88, 89]; bTb = [90, 91]; bF = 92; bFh = 93
    Z2P = 200; T = 96
    a("s_lshr_b32 s24, s3, 1")
    a("s_and_b32 s25, s3, 1")
    a("v_and_b32 v3, 15, v2")
    a("v_lshrrev_b32 v10, 4, v2")
    a("v_lshrrev_b32 v11, 1, v3")
    a("v_xor_b32 v10, v10, v11")
    a("v_lshlrev_b32 v10, 4, v10")
    a("v_lshl_add_u32 v10, v3, 7, v10")
    a("s_lshl_b32 s26, s24, 13")
    a("v_add_u32 v10, s26, v10")
    a("s_lshl_b32 s26, s25, 12")
    a("v_add_u32 v%d, s26, v10" % bTa[0])
    a("s_xor_b32 s26, s26, 4096")
    a("v_add_u32 v%d, s26, v10" % bTb[0])
    a("v_xor_b32 v%d, 64, v%d" % (bTa[1], bTa[0]))
    a("v_xor_b32 v%d, 64, v%d" % (bTb[1], bTb[0]))
    a("v_lshrrev_b32 v10, 2, v2")
    a("v_mul_u32_u24 v10, %d, v10" % FS)
    a("v_and_b32 v11, 3, v2")
    a("v_lshl_add_u32 v10, v11, 3, v10")
    a("v_add_u32 v10, %d, v10" % TREG)
    a("s_mul_i32 s26, s25, 160")
    a("v_add_u32 v%d, s26, v10" % bF)
    a("v_add_u32 v%d, 128, v10" % bFh)
    for r, c in ((52, GC0), (53, GC0), (54, GC1), (55, GC1), (56, 1.0), (57, 1.0)):
        a("s_mov_b32 s%d, %s" % (r, f32(c)))
    a("v_mov_b32 v%d, s52" % (T + 4)); a("v_mov_b32 v%d, s52" % (T + 5))
    a("v_mov_b32 v%d, 0x3f803f80" % (T + 6))
    core = Core(a, ACC, FB0, FB1, FS, TREG, vTa, vTb, vF, vFh)
    for d, s_ in ((vTa[0], bTa[0]), (vTb[0], bTb[0]), (vTa[1], bTa[1]), (vTb[1], bTb[1]), (vF, bF), (vFh, bFh)):
        a("v_mov_b32 v%d, v%d" % (d, s_))
    a("s_mov_b32 s27, 0")
    a("s_barrier")
    stamp(a, 1)
    core.prime(0, core.reads(0, 0))
    def iteration(first, last, after_barrier=None):
        a("s_barrier")
        if after_barrier: after_barrier()
        a("s_add_u32 s34, s27, %d" % SLOT)
        a("s_cmp_eq_u32 s34, %d" % (R * SLOT))
        a("s_cselect_b32 s34, 0, s34")
        core.phase(0, core.reads(1, 1), first=first)
        if not last:
            pre = ["v_add_u32 v%d, s34, v%d" % (d, s_) for d, s_ in ((vTa[0], bTa[0]), (vF, bF), (vTb[0], bTb[0]), (vFh, bFh))]
            post = ["v_add_u32 v%d, s34, v%d" % (d, s_) for d, s_ in ((vTa[1], bTa[1]), (vTb[1], bTb[1]))]
            core.phase(1, core.reads(0, 0), pre=pre, extra=post)
        else:
            core.phase(1, [])
        a("s_mov_b32 s27, s34")
    def gpass(p, after_barrier=None):
        iteration(True, False, after_barrier)
        a("s_mov_b32 s33, 1")
        a.label("%s_cloop%d" % (name, p))
        iteration(False, False)
        a("s_add_u32 s33, s33, 1")
        a("s_cmp_lt_u32 s33, 8")
        a("s_cbranch_scc1 %s_cloop%d" % (name, p))
        iteration(False, p == 1)
    gpass(0)
    stamp(a, 2)
    a("s_nop 7")
    S = [104, 106, 108, 110]; Q = [105, 107, 109, 111]
    for tt in range(4):
        a("v_mov_b32 v%d, 0" % S[tt]); a("v_mov_b32 v%d, 0" % Q[tt])
    tiles = [(ft, tt) for ft in range(5) for tt in range(4 if ft < 4 else 2)]
    for (ft, tt) in tiles:
        n = ft * 4 + tt if ft < 4 else 16 + tt
        emit_gelu_tile(a, core.accr(ft, tt), Z2P + 2 * n, T)
        for d in range(2):
            a("v_dot2_f32_bf16 v%d, v%d, v%d, v%d" % (S[tt], Z2P + 2 * n + d, T + 6, S[tt]))
            a("v_dot2_f32_bf16 v%d, v%d, v%d, v%d" % (Q[tt], Z2P + 2 * n + d, Z2P + 2 * n + d, Q[tt]))
    a("s_nop 3")
    emit_xg_reduce(a, S + Q, 112)
    a("v_lshrrev_b32 v10, 4, v2")
    for g in range(1, 4):
        a("v_cmp_eq_u32 vcc, %d, v10" % g)
        a("s_nop 1")
        a("v_cndmask_b32 v%d, v%d, v%d, vcc" % (S[0], S[0], S[g]))
        a("v_cndmask_b32 v%d, v%d, v%d, vcc" % (Q[0], Q[0], Q[g]))
    a("s_lshl_b32 s33, s25, 1")
    a("v_add_u32 v11, s33, v10")
    a("v_and_b32 v11, 3, v11")
    a("v_lshl_add_u32 v11, v11, 4, v3")
    a("v_lshlrev_b32 v11, 8, v11")
    a("s_lshl_b32 s35, s22, 7")
    a("s_lshl_b32 s36, s24, 6")
    a("s_add_u32 s35, s35, s36")
    a("s_lshl_b32 s35, s35, 8")
    a("s_add_u32 s35, s35, 0x%x" % STATS2)
    a("s_lshl_b32 s36, s23, 1")
    a("s_add_u32 s36, s36, s25")
    a("s_lshl_b32 s36, s36, 3")
    a("s_add_u32 s36, s36, s35")
    a("buffer_store_dwordx2 v[%d:%d], v11, s[12:15], s36 offen sc1" % (S[0], Q[0]))
    a("s_waitcnt vmcnt(0)")
    stamp(a, 3)
    def signal():
        a("s_cmp_lg_u32 s3, 0")
        a("s_cbranch_scc1 %s_nosig" % name)
        a("v_mov_b32 v10, 1")
        a("s_lshl_b32 s33, s22, 2")
        a("v_mov_b32 v11, s33")
        a("s_mov_b64 exec, 1")
        a("buffer_atomic_add v10, v11, s[60:63], 0 offen sc1")
        a("s_mov_b64 exec, -1")
        a.label("%s_nosig" % name)
    gpass(1, signal)
    stamp(a, 4)
    a("s_nop 7")
    Z1P = 16
    a("s_lshl_b32 s36, s22, 4")
    a("s_add_u32 s36, s36, s23")
    a("s_lshl_b32 s36, s36, 2")
    a("s_add_u32 s36, s36, s3")
    a("s_mul_i32 s36, s36, 9216")
    a("s_add_u32 s36, s36, 0x%x" % Z1IMG)
    a("v_lshlrev_b32 v10, 4, v2")
    for (ft, tt) in tiles:
        n = ft * 4 + tt if ft < 4 else 16 + tt
        emit_gelu_tile(a, core.accr(ft, tt), Z1P + 2 * n, T)
        if n & 1:
            q = n >> 1
            if q in (4, 8): a("s_add_u32 s36, s36, 4096")
            a("buffer_store_dwordx4 %s, v10, s[12:15], s36 offen offset:%d" % (vr(Z1P + 4 * q), (q & 3) * 1024))
    stamp(a, 5)
    a("s_cmp_lg_u32 s3, 0")
    a("s_cbranch_scc1 %s_nopoll" % name)
    a("s_lshl_b32 s33, s22, 2")
    a("v_mov_b32 v11, s33")
    a.label("%s_poll" % name)
    a("buffer_load_dword v12, v11, s[60:63], 0 offen sc1")
    a("s_waitcnt vmcnt(0)")
    a("v_readfirstlane_b32 s33, v12")
    a("s_cmp_ge_u32 s33, 16")
    a("s_cbranch_scc1 %s_nopoll" % name)
    a("s_sleep 2")
    a("s_branch %s_poll" % name)
    a.label("%s_nopoll" % name)
    a("s_barrier")
    stamp(a, 6)
    a("v_lshrrev_b32 v10, 4, v2")
    a("v_lshlrev_b32 v11, 8, v3")
    a("v_lshl_add_u32 v11, v10, 6, v11")
    a("s_lshl_b32 s33, s25, 13")
    a("s_add_u32 s36, s35, s33")
    a("s_xor_b32 s33, s33, 8192")
    a("s_add_u32 s37, s35, s33")
    a("s_add_u32 s38, s36, 4096")
    a("s_add_u32 s39, s37, 4096")
    PB = 128
    for tt in range(4):
        for q in range(4):
            a("buffer_load_dwordx4 %s, v11, s[12:15], s%d offen offset:%d sc1" % (vr(PB + 16 * tt + 4 * q), (36, 38, 37, 39)[tt], 16 * q))
    a("s_waitcnt vmcnt(0)")
    for tt in range(4):
        b = PB + 16 * tt
        for st in (8, 4, 2):
            for q in range(0, st, 2):
                a("v_pk_add_f32 %s, %s, %s" % (vr(b + q, 2), vr(b + q, 2), vr(b + q + st, 2)))
    emit_xg_reduce(a, [PB + 16 * tt + e for tt in range(4) for e in range(2)], 112)
    MR = [104, 106, 108, 110]
    for tt in range(4):
        b = PB + 16 * tt
        emit_ln_finish(a, b, b + 1, 2304, b + 2, MR[tt], b + 4)
        a("v_mul_f32 v%d, -v%d, v%d" % (MR[tt] + 1, b + 2, MR[tt]))
    for (ft, tt) in tiles:
        n = ft * 4 + tt if ft < 4 else 16 + tt
        for d in range(2):
            z = Z2P + 2 * n + d
            a("v_lshlrev_b32 v%d, 16, v%d" % (T + 2 * d, z))
            a("v_and_b32 v%d, 0xffff0000, v%d" % (T + 2 * d + 1, z))
        for d in range(2):
            a("v_pk_fma_f32 %s, %s, %s, %s op_sel:[0,0,1] op_sel_hi:[1,0,1]" % (vr(T + 2 * d, 2), vr(T + 2 * d, 2), vr(MR[tt], 2), vr(MR[tt], 2)))
        for d in range(2):
            a("v_cvt_pk_bf16_f32 v%d, v%d, v%d" % (Z2P + 2 * n + d, T + 2 * d, T + 2 * d + 1))
    a("v_lshrrev_b32 v11, 2, v2"); a("v_and_b32 v11, 1, v11"); a("v_lshlrev_b32 v11, 4, v11")
    a("v_lshrrev_b32 v12, 3, v2"); a("v_and_b32 v12, 1, v12"); a("v_lshl_add_u32 v11, v12, 2, v11")
    a("v_and_b32 v12, 3, v2"); a("v_add_u32 v11, v11, v12")
    a("v_mul_u32_u24 v11, 288, v11")
    a("v_lshrrev_b32 v12, 1, v10"); a("v_lshl_add_u32 v11, v12, 4, v11")
    a("v_and_b32 v12, 1, v10")
    a("v_lshl_add_u32 v13, v12, 5, v11")
    a("v_mul_u32_u24 v12, 2304, v12")
    a("v_add_u32 v14, v11, v12")
    a("s_lshl_b32 s33, s23, 5")
    a("s_lshl_b32 s36, s22, 1")
    a("s_add_u32 s33, s33, s36")
    a("s_add_u32 s33, s33, s24")
    a("s_mul_i32 s33, s33, 18432")
    if ZIMG: a("s_add_u32 s33, s33, 0x%x" % ZIMG)
    a("s_mul_i32 s36, s25, 9216")
    a("s_add_u32 s37, s33, s36")
    a("s_xor_b32 s36, s36, 9216")
    a("s_add_u32 s38, s33, s36")
    a("s_add_u32 s39, s37, 128")
    a("s_mul_i32 s36, s25, 160")
    a("s_add_u32 s37, s37, s36")
    a("s_add_u32 s38, s38, s36")
    for pr in range(2):
        for tt in range(4):
            A = Z2P + 2 * ((2 * pr) * 4 + tt); B = Z2P + 2 * ((2 * pr + 1) * 4 + tt)
            a("v_mov_b32 v20, v%d" % A); a("v_mov_b32 v21, v%d" % (A + 1))
            a("v_mov_b32 v22, v%d" % B); a("v_mov_b32 v23, v%d" % (B + 1))
            a("s_nop 1")
            a("v_permlane16_swap_b32 v20, v22")
            a("v_permlane16_swap_b32 v21, v23")
            a("s_nop 1")
            a("buffer_store_dwordx4 v[20:23], v13, s[12:15], s%d offen offset:%d" % (37 if tt < 2 else 38, (tt & 1) * 2304 + 64 * pr))
            a("s_nop 1")
    A = Z2P + 32; B = Z2P + 34
    a("v_mov_b32 v20, v%d" % A); a("v_mov_b32 v21, v%d" % (A + 1))
    a("v_mov_b32 v22, v%d" % B); a("v_mov_b32 v23, v%d" % (B + 1))
    a("s_nop 1")
    a("v_permlane16_swap_b32 v20, v22")
    a("v_permlane16_swap_b32 v21, v23")
    a("s_nop 1")
    a("buffer_store_dwordx4 v[20:23], v14, s[12:15], s39 offen")
    stamp(a, 7)
    a("s_waitcnt vmcnt(0)")
    stamp(a, 8)
    a("s_branch %s_end" % name)
    a.label("%s_loader" % name)
    a("s_sub_u32 s3, s3, 4")
    X = 100
    def xr(rg, st): return X + (rg * 9 + st) * 4
    a("v_lshrrev_b32 v3, 3, v2")
    a("v_and_b32 v4, 7, v2")
    a("v_mul_u32_u24 v5, 1152, v3")
    a("v_lshl_add_u32 v5, v4, 4, v5")
    a("s_lshl_b32 s24, s22, 7")
    a("s_lshl_b32 s25, s3, 5")
    a("s_add_u32 s24, s24, s25")
    a("s_mul_i32 s25, s24, 1152")
    for rg in range(4):
        for st in range(9):
            a("buffer_load_dwordx4 %s, v5, s[28:31], s25 offen offset:%d" % (vr(xr(rg, st)), st * 128))
        if rg < 3: a("s_add_u32 s25, s25, 9216")
    for n in range(5):
        if n < 4:
            a("s_lshl_b32 s25, s3, 8")
            a("s_add_u32 s25, s25, %d" % (64 * n))
        else:
            a("s_lshl_b32 s25, s3, 5")
            a("s_add_u32 s25, s25, 1024")
        a("v_add_u32 v6, s25, v2")
        a("v_mul_u32_u24 v7, 3641, v6")
        a("v_lshrrev_b32 v7, 16, v7")
        a("v_mul_u32_u24 v8, 18, v7")
        a("v_sub_u32 v8, v6, v8")
        a("v_and_b32 v9, 35, v7")
        a("v_bfe_u32 v6, v7, 2, 2")
        a("v_lshl_add_u32 v9, v6, 3, v9")
        a("v_bfe_u32 v6, v7, 4, 1")
        a("v_lshl_add_u32 v9, v6, 2, v9")
        a("v_mul_u32_u24 v9, 9216, v9")
        a("v_lshl_add_u32 v%d, v8, 4, v9" % (10 + n))
        if 0 < n < 4: a("v_subrev_u32 v%d, %d, v%d" % (10 + n, n * 1024, 10 + n))
    a("s_mul_i32 s26, s23, 288")
    a("s_add_u32 s27, s26, 4608")
    a("s_lshl_b32 s24, s3, 12")
    a("s_lshl_b32 s25, s3, 9")
    a("s_add_u32 s25, s25, %d" % (TREG + 16384))
    a("s_mov_b32 s33, 0")
    def issueB(g):
        if "nodma" not in DBG:
            a("s_add_u32 s35, s33, s24")
            a("s_add_u32 s35, s35, %d" % TREG)
            a("s_mov_b32 m0, s35")
            a("s_add_u32 s36, s33, s25")
            for n in range(4):
                a("buffer_load_dwordx4 v%d, s[8:11], s27 offen offset:%d lds" % (10 + n, n * 1024))
            a("s_mov_b32 m0, s36")
            a("s_mov_b64 exec, 0xffffffff")
            a("buffer_load_dwordx4 v14, s[8:11], s27 offen lds")
            a("s_mov_b64 exec, -1")
        if g == 8: a("s_mov_b32 s27, s26")
        else: a("s_add_u32 s27, s27, %d" % (64 * 9216))
        a("s_add_u32 s33, s33, %d" % SLOT)
        a("s_cmp_eq_u32 s33, %d" % (R * SLOT))
        a("s_cselect_b32 s33, 0, s33")
    for g in range(R - 1): issueB(g)
    a("v_lshrrev_b32 v6, 4, v2")
    a("v_xor_b32 v7, v4, v6")
    a("v_lshlrev_b32 v7, 4, v7")
    a("v_lshl_add_u32 v7, v3, 7, v7")
    a("v_add_u32 v16, s24, v7")
    a("v_xor_b32 v17, 64, v16")
    a("v_mov_b32 v18, 0x3f803f80")
    SS = [20, 22, 24, 26]
    for rg in range(4):
        a("v_mov_b32 v%d, 0" % SS[rg]); a("v_mov_b32 v%d, 0" % (SS[rg] + 1))
    a("s_waitcnt vmcnt(%d)" % (5 * (R - 1)))
    stamp(a, 1)
    for st in range(9):
        for d in range(4):
            for rg in range(4):
                r = xr(rg, st) + d
                a("v_dot2_f32_bf16 v%d, v%d, v18, v%d" % (SS[rg], r, SS[rg]))
                a("v_dot2_f32_bf16 v%d, v%d, v%d, v%d" % (SS[rg] + 1, r, r, SS[rg] + 1))
    a("s_nop 3")
    for ctl in ("quad_perm:[1,0,3,2]", "quad_perm:[2,3,0,1]", "row_half_mirror"):
        for rg in range(4):
            for e in range(2):
                a("v_add_f32_dpp v%d, v%d, v%d %s row_mask:0xf bank_mask:0xf" % (SS[rg] + e, SS[rg] + e, SS[rg] + e, ctl))
        a("s_nop 1")
    for rg in range(4):
        emit_ln_finish(a, SS[rg], SS[rg] + 1, 576, 28 + 2 * rg, 29 + 2 * rg, 36)
        a("v_mov_b32 v%d, v%d" % (SS[rg], 29 + 2 * rg))
        a("v_mul_f32 v%d, -v%d, v%d" % (SS[rg] + 1, 28 + 2 * rg, 29 + 2 * rg))
    a("s_cmp_lg_u32 s23, 0")
    a("s_cbranch_scc1 %s_nost1" % name)
    a("s_lshl_b32 s35, s22, 7")
    a("s_lshl_b32 s36, s3, 5")
    a("s_add_u32 s35, s35, s36")
    a("s_lshl_b32 s35, s35, 3")
    a("s_add_u32 s35, s35, 0x%x" % STATS1)
    a("v_lshlrev_b32 v6, 3, v3")
    a("v_cmp_eq_u32 vcc, 0, v4")
    a("v_mov_b32 v7, 0x7ffffff0")
    a("v_cndmask_b32 v6, v7, v6, vcc")
    for rg in range(4):
        a("buffer_store_dwordx2 %s, v6, s[12:15], s35 offen offset:%d" % (vr(28 + 2 * rg, 2), 64 * rg))
    a.label("%s_nost1" % name)
    NX = 4 if True else 0
    a("s_mov_b32 s34, 0")
    def writeA(g):
        st = g % 9
        if g < 9:
            for rg in range(4):
                for d in range(4):
                    r = xr(rg, st) + d
                    t = 40 + 2 * ((rg * 4 + d) % 4)
                    a("v_lshlrev_b32 v%d, 16, v%d" % (t, r))
                    a("v_and_b32 v%d, 0xffff0000, v%d" % (t + 1, r))
                    a("v_pk_fma_f32 %s, %s, %s, %s op_sel:[0,0,1] op_sel_hi:[1,0,1]" % (vr(t, 2), vr(t, 2), vr(SS[rg], 2), vr(SS[rg], 2)))
                    a("v_cvt_pk_bf16_f32 v%d, v%d, v%d" % (r, t, t + 1))
        a("v_add_u32 v48, s34, v16")
        a("v_add_u32 v49, s34, v17")
        for rg in range(4):
            a("ds_write_b128 v%d, %s offset:%d" % (48 + (rg & 1), vr(xr(rg, st)), 1024 * rg))
        a("s_add_u32 s34, s34, %d" % SLOT)
        a("s_cmp_eq_u32 s34, %d" % (R * SLOT))
        a("s_cselect_b32 s34, 0, s34")
    writeA(0)
    stamp(a, 2)
    a("s_waitcnt vmcnt(%d) lgkmcnt(0)" % (5 * (R - 2)))
    a("s_barrier")
    issueB(R - 1)
    writeA(1)
    a("s_waitcnt vmcnt(%d) lgkmcnt(0)" % (5 * (R - 2)))
    a("s_barrier")
    writeA(2)
    a("s_waitcnt vmcnt(%d) lgkmcnt(0)" % (5 * (R - 3)))
    a("s_barrier")
    for k in range(1, NST - 1):
        g = k - 1 + R
        if g < NST:
            issueB(g)
            left = R - 3
        else:
            left = max(0, (NST - 1) - (k + 2))
        if k + 2 < NST: writeA(k + 2)
        a("s_waitcnt vmcnt(%d) lgkmcnt(0)" % (5 * left))
        a("s_barrier")
    a.label("%s_end" % name)
    a("s_endpgm")
    return a.text(), kernel_desc(name, 256, 256), (name, 256, 512, R * SLOT)

def gen_k0(name="k0_kernel"):
    a = Asm()
    NKV = 288; NWO = 180
    kernel_begin(a, name)
    a("s_cmp_ge_u32 s2, %d" % (NKV + NWO))
    a("s_cbranch_scc1 %s_end" % name)
    a("s_load_dwordx4 s[4:7], s[0:1], 8")
    a("s_load_dwordx2 s[16:17], s[0:1], 24")
    a("s_load_dwordx2 s[18:19], s[0:1], 80")
    a("s_load_dwordx2 s[20:21], s[0:1], 104")
    a("s_waitcnt lgkmcnt(0)")
    srd(a, 8, 4, 2048 * 576 * 2)
    srd(a, 12, 6, 2048 * 576 * 2)
    srd(a, 24, 16, 576 * 4 * 2)
    srd(a, 28, 18, 2304 * 576 * 2)
    srd(a, 32, 20, WS_BYTES)
    a("s_cmp_ge_u32 s2, %d" % NKV)
    a("s_cbranch_scc1 %s_wot" % name)
    a("s_mul_hi_u32 s36, s2, 0x%x" % ((2**32 + 8) // 9))
    a("s_mul_i32 s37, s36, 9")
    a("s_sub_u32 s37, s2, s37")
    a("v_and_b32 v1, 31, v0")
    a("v_lshrrev_b32 v2, 5, v0")
    a("s_lshl_b32 s38, s36, 6")
    a("v_lshl_add_u32 v3, v2, 3, s38")
    a("s_lshl_b32 s39, s37, 7")
    a("v_lshl_add_u32 v4, v1, 2, s39")
    a("v_mul_u32_u24 v5, 1152, v3")
    a("v_add_u32 v5, v5, v4")
    a("v_subrev_u32 v6, %d, v5" % (3 * 1152))
    a("v_cmp_gt_u32 vcc, 3, v3")
    a("v_mov_b32 v7, 0x7ffffff0")
    a("v_cndmask_b32 v8, v6, v7, vcc")
    for n in range(3):
        a("buffer_load_dword v%d, v8, s[8:11], 0 offen offset:%d" % (16 + n, 1152 * n))
    a("v_add_u32 v9, %d, v5" % (3456))
    a("v_add_u32 v10, %d, v5" % (6912))
    for n in range(8):
        base, off = ((5, 1152 * n) if n < 3 else (9, 1152 * (n - 3)) if n < 6 else (10, 1152 * (n - 6)))
        a("buffer_load_dword v%d, v%d, s[8:11], 0 offen offset:%d" % (19 + n, base, off))
        a("buffer_load_dword v%d, v%d, s[12:15], 0 offen offset:%d" % (32 + n, base, off))
    a("v_lshlrev_b32 v11, 2, v4")
    a("buffer_load_dwordx4 v[44:47], v11, s[24:27], 0 offen")
    a("s_waitcnt vmcnt(0)")
    for ch in range(2):
        for q in range(2):
            a("v_lshlrev_b32 v%d, 16, v%d" % (48 + 4 * ch + 2 * q, 44 + 2 * ch + q))
            a("v_and_b32 v%d, 0xffff0000, v%d" % (49 + 4 * ch + 2 * q, 44 + 2 * ch + q))
    for n in range(11):
        a("v_lshlrev_b32 v%d, 16, v%d" % (60 + n, 16 + n))
        a("v_and_b32 v%d, 0xffff0000, v%d" % (72 + n, 16 + n))
    OUT = 100
    for e in range(8):
        A0, A1, P0, P1, TM = 90, 91, 92, 93, 94
        a("v_mul_f32 v%d, v%d, v%d" % (A0, 60 + e, 48 + 3)); a("v_mul_f32 v%d, v%d, v%d" % (A1, 72 + e, 52 + 3))
        rnd_pair(a, TM, A0, A1)
        for t in range(1, 4):
            a("v_mul_f32 v%d, v%d, v%d" % (P0, 60 + e + t, 48 + 3 - t)); a("v_mul_f32 v%d, v%d, v%d" % (P1, 72 + e + t, 52 + 3 - t))
            rnd_pair(a, TM, P0, P1)
            a("v_add_f32 v%d, v%d, v%d" % (A0, A0, P0)); a("v_add_f32 v%d, v%d, v%d" % (A1, A1, P1))
            rnd_pair(a, TM, A0, A1)
        a("v_lshlrev_b32 v%d, 16, v%d" % (P0, 32 + e)); a("v_and_b32 v%d, 0xffff0000, v%d" % (P1, 32 + e))
        a("v_mul_f32 v%d, v%d, v%d" % (OUT + e, A0, P0)); a("v_mul_f32 v%d, v%d, v%d" % (OUT + 8 + e, A1, P1))
    for ch in range(2):
        for q in range(4):
            a("v_cvt_pk_bf16_f32 v%d, v%d, v%d" % (120 + 4 * ch + q, OUT + 8 * ch + 7 - 2 * q, OUT + 8 * ch + 6 - 2 * q))
    a("v_lshlrev_b32 v12, 11, v4")
    a("v_sub_u32 v13, 2040, v3")
    a("v_lshl_add_u32 v12, v13, 1, v12")
    a("v_add_u32 v13, 4096, v12")
    a("s_mov_b32 s40, 0x%x" % KVT)
    a("buffer_store_dwordx4 v[120:123], v12, s[32:35], s40 offen")
    a("buffer_store_dwordx4 v[124:127], v13, s[32:35], s40 offen")
    a("s_branch %s_end" % name)
    a.label("%s_wot" % name)
    a("s_sub_u32 s36, s2, %d" % NKV)
    a("s_lshl_b32 s36, s36, 10")
    a("s_mov_b32 s37, 0x%x" % ((2**32 + 9) // 10))
    a("s_mov_b32 s38, 0x%x" % ((2**32 + 17) // 18))
    a("s_mov_b32 s40, 0x%x" % WOT)
    for n in range(4):
        a("v_add_u32 v1, s36, v0")
        if n: a("v_add_u32 v1, %d, v1" % (256 * n))
        a("v_mul_hi_u32 v2, v1, s37")
        a("v_mul_u32_u24 v3, 10, v2")
        a("v_sub_u32 v3, v1, v3")
        a("v_lshrrev_b32 v4, 7, v2")
        a("v_and_b32 v5, 127, v2")
        a("v_mul_hi_u32 v6, v4, s38")
        a("v_mul_u32_u24 v7, 18, v6")
        a("v_sub_u32 v7, v4, v7")
        a("v_and_b32 v8, 0x63, v5")
        a("v_bfe_u32 v9, v5, 2, 2")
        a("v_lshl_add_u32 v8, v9, 3, v8")
        a("v_bfe_u32 v9, v5, 4, 1")
        a("v_lshl_add_u32 v8, v9, 2, v8")
        a("v_lshl_add_u32 v8, v7, 7, v8")
        a("v_mul_u32_u24 v8, 1152, v8")
        a("v_lshrrev_b32 v9, 1, v6")
        a("v_mul_u32_u24 v9, 288, v9")
        a("v_add_u32 v8, v8, v9")
        a("v_lshl_add_u32 v8, v3, 4, v8")
        a("v_and_b32 v9, 1, v6")
        a("v_mul_u32_u24 v9, 160, v9")
        a("v_cmp_gt_u32 vcc, 8, v3")
        a("s_nop 1")
        a("v_cndmask_b32 v9, 0, v9, vcc")
        a("v_add_u32 v8, v8, v9")
        a("buffer_load_dwordx4 v[%d:%d], v8, s[28:31], 0 offen" % (16 + 4 * n, 19 + 4 * n))
        a("v_lshlrev_b32 v%d, 4, v1" % (10 + n))
    for n in range(4):
        a("s_waitcnt vmcnt(%d)" % (3 - n + n))
    a("s_waitcnt vmcnt(0)")
    for n in range(4):
        a("buffer_store_dwordx4 v[%d:%d], v%d, s[32:35], s40 offen" % (16 + 4 * n, 19 + 4 * n, 10 + n))
    a.label("%s_end" % name)
    a("s_endpgm")
    return a.text(), kernel_desc(name, 128, 128), (name, NKV + NWO, 256, 0)

def gen_kc(name="kc_kernel"):
    a = Asm()
    EB = 0; OB = 4160 + 64; UB = 8448
    LDSB = UB + 4096 + 512
    kernel_begin(a, name)
    a("s_cmp_ge_u32 s2, 576")
    a("s_cbranch_scc1 %s_end" % name)
    a("s_mov_b32 s60, 0")
    a("s_load_dwordx4 s[4:7], s[0:1], 32")
    a("s_load_dwordx2 s[20:21], s[0:1], 104")
    a("s_waitcnt lgkmcnt(0)")
    srd(a, 8, 4, 576 * 2048 * 2)
    srd(a, 12, 6, 576 * 2)
    srd(a, 32, 20, WS_BYTES)
    a("s_lshl_b32 s36, s2, 12")
    a("v_lshlrev_b32 v1, 4, v0")
    for n in range(4):
        a("buffer_load_dwordx4 v[%d:%d], v1, s[8:11], s36 offen offset:%d" % (16 + 5 * n + (n & 1) * 0, 19 + 5 * n + (n & 1) * 0, 1024 * n)) if False else None
    H = [16, 24, 32, 40]
    for n in range(4):
        a("buffer_load_dwordx4 v[%d:%d], v1, s[8:11], s36 offen offset:%d" % (H[n], H[n] + 3, 1024 * n))
    a("v_add_u32 v2, 16, v1")
    for n in range(4):
        a("buffer_load_dword v%d, v2, s[8:11], s36 offen offset:%d" % (H[n] + 4, 1024 * n))
    a("s_add_u32 s37, s36, 0x%x" % KVT)
    a("s_add_u32 s61, s60, %d" % UB)
    a("s_mov_b32 m0, s61")
    a("v_add_u32 v12, s60, v1")
    for n in range(4):
        a("buffer_load_dwordx4 v1, s[32:35], s37 offen offset:%d lds" % (1024 * n))
    a("s_lshl_b32 s38, s2, 1")
    a("v_mov_b32 v3, s38")
    a("buffer_load_ushort v4, v3, s[12:15], 0 offen")
    a("v_mov_b32 v8, 0"); a("v_mov_b32 v9, 0"); a("v_mov_b32 v10, 0"); a("v_mov_b32 v11, 0")
    a("v_lshlrev_b32 v5, 3, v0")
    a("v_add_u32 v5, s60, v5")
    a("ds_write_b64 v5, v[8:9] offset:%d" % (UB + 4096))
    a("s_mov_b64 exec, 3")
    a("ds_write_b128 v12, v[8:11] offset:%d" % EB)
    a("ds_write_b128 v12, v[8:11] offset:%d" % OB)
    a("s_mov_b64 exec, -1")
    a("s_waitcnt vmcnt(0) lgkmcnt(0)")
    for n in range(4):
        a("ds_write_b128 v12, v[%d:%d] offset:%d" % (H[n], H[n] + 3, EB + 32 + 1024 * n))
        for q in range(4):
            a("v_alignbit_b32 v%d, v%d, v%d, 16" % (48 + q, H[n] + q + 1, H[n] + q))
        a("ds_write_b128 v12, v[48:51] offset:%d" % (OB + 32 + 1024 * n))
        a("s_nop 1")
    a("s_mov_b64 exec, 1")
    a("v_mov_b32 v5, s60")
    a("ds_write_b16 v5, v%d offset:%d" % (H[0], OB + 30))
    a("s_mov_b64 exec, -1")
    a("v_and_b32 v5, 15, v0")
    a("v_lshrrev_b32 v6, 4, v0")
    a("v_lshl_add_u32 v7, v6, 3, v5")
    a("v_and_b32 v8, 1, v5")
    a("v_add_u32 v7, v7, v8")
    a("v_lshlrev_b32 v7, 1, v7")
    a("v_cmp_eq_u32 vcc, 0, v8")
    a("v_mov_b32 v9, %d" % EB); a("v_mov_b32 v10, %d" % OB)
    a("v_cndmask_b32 v9, v9, v10, vcc")
    a("v_add_u32 v7, v7, v9")
    a("v_add_u32 v7, s60, v7")
    AA = 52
    for jj in range(8):
        a("v_add_u32 v%d, %d, v7" % (AA + jj, 512 * jj))
    a("v_lshlrev_b32 v9, 4, v6")
    a("v_lshlrev_b32 v10, 5, v5")
    a("v_sub_u32 v9, v9, v10")
    a("v_add_u32 v60, %d, v9" % (UB + 480))
    a("v_add_u32 v60, s60, v60")
    a("s_waitcnt lgkmcnt(0)")
    ACC = 64; AF = [96, 160]; BF = [128, 192]
    trk = LdsTracker(a)
    def reads(k0, buf):
        L = []
        for q in range(8):
            r = BF[buf] + 4 * q
            L.append(("ds_read_b128 %s, v60 offset:%d" % (vr(r), 3584 - 512 * q + 64 * k0), range(r, r + 4)))
            r = AF[buf] + 4 * q
            L.append(("ds_read2_b32 %s, v%d offset0:%d offset1:%d" % (vr(r, 2), AA + q, 16 * k0, 16 * k0 + 1), range(r, r + 2)))
            L.append(("ds_read2_b32 %s, v%d offset0:%d offset1:%d" % (vr(r + 2, 2), AA + q, 16 * k0 + 2, 16 * k0 + 3), range(r + 2, r + 4)))
        return L
    for t, r in reads(0, 0):
        a(t); trk.issue(r)
        if len(trk.out) >= 12: trk.drain()
    for k0 in range(8):
        buf = k0 & 1
        nxt = reads(k0 + 1, 1 - buf) if k0 < 7 else []
        ms = sorted([(max(jj, n - jj), n, jj) for n in range(8) for jj in range(n + 1)])
        for (_, n, jj) in ms:
            A = AF[buf] + 4 * jj; B = BF[buf] + 4 * (n - jj); c = ACC + 4 * n
            trk.need(list(range(A, A + 4)) + list(range(B, B + 4)))
            first = (k0 == 0 and jj == [m[2] for m in ms if m[1] == n][0])
            a("v_mfma_f32_16x16x32_bf16 %s, %s, %s, %s" % (vr(c), vr(A), vr(B), "0" if first else vr(c)))
            if nxt and len(trk.out) < 14:
                t, r = nxt.pop(0); a(t); trk.issue(r)
        for t, r in nxt:
            if len(trk.out) >= 14: trk.drain()
            a(t); trk.issue(r)
    a("v_lshlrev_b32 v9, 5, v5")
    a("v_lshl_add_u32 v9, v6, 3, v9")
    a("v_sub_u32 v10, %d, v9" % (UB + 4088 - 3584))
    a("v_add_u32 v10, s60, v10")
    for n in range(8):
        a("ds_read_b64 %s, v10 offset:%d" % (vr(96 + 2 * n, 2), 3584 - 512 * n))
    a("v_lshlrev_b32 v4, 16, v4")
    a("s_add_u32 s37, s36, 0x%x" % YT)
    a("s_waitcnt lgkmcnt(0)")
    a("s_nop 4")
    for n in range(8):
        c = ACC + 4 * n; U = 96 + 2 * n; T = 120
        a("v_and_b32 v%d, 0xffff0000, v%d" % (T + 0, U + 1)); a("v_lshlrev_b32 v%d, 16, v%d" % (T + 1, U + 1))
        a("v_and_b32 v%d, 0xffff0000, v%d" % (T + 2, U)); a("v_lshlrev_b32 v%d, 16, v%d" % (T + 3, U))
        for r in range(4): a("v_mul_f32 v%d, v%d, v4" % (T + r, T + r))
        rnd_pair(a, T + 4, T, T + 1); rnd_pair(a, T + 4, T + 2, T + 3)
        rnd_pair(a, T + 4, c, c + 1); rnd_pair(a, T + 4, c + 2, c + 3)
        for r in range(4): a("v_add_f32 v%d, v%d, v%d" % (c + r, c + r, T + r))
        a("v_cvt_pk_bf16_f32 v%d, v%d, v%d" % (U, c, c + 1))
        a("v_cvt_pk_bf16_f32 v%d, v%d, v%d" % (U + 1, c + 2, c + 3))
        a("buffer_store_dwordx2 %s, v9, s[32:35], s37 offen offset:%d" % (vr(U, 2), 512 * n))
    a.label("%s_end" % name)
    a("s_endpgm")
    return a.text(), kernel_desc(name, 224, 224), (name, 576, 64, LDSB)

if __name__ == "__main__":
    which = sys.argv[1]
    out = sys.argv[2]
    if len(sys.argv) > 3: DBG.update(sys.argv[3].split(","))
    ks = []
    for w in which.split(","):
        ks.append(globals()["gen_" + w]())
    open(out, "w").write(assemble_file([k[2] for k in ks], "".join(k[0] for k in ks), [k[1] for k in ks]))
```

```python
import sys, copy
from asmgen import *
import gen as G
import gen2 as G2
from gen import (ZIMG, Z1IMG, PIMG, WOT, KVT, YT, STATS2, STATS1, WS_BYTES, DBG, LdsTracker, vr, stamp, stamp_setup,
                 rnd_pair, f32, emit_xg_reduce, emit_ln_finish)
from gen2 import VmTracker, TILES, tidx, emit_fold_gelu, gelu_consts, seg_end, SPIN_MAX

def emit_kv_loads(a, KD=16, VD=32, SD=44, K56=56, K57=57):
    a("s_mul_hi_u32 s36, s41, 0x%x" % ((2**32 + 8) // 9))
    a("s_mul_i32 s37, s36, 9")
    a("s_sub_u32 s37, s41, s37")
    a("v_and_b32 v1, 31, v0")
    a("v_lshrrev_b32 v10, 5, v0")
    a("s_lshl_b32 s38, s36, 6")
    a("v_lshl_add_u32 v%d, v10, 3, s38" % K56)
    a("s_lshl_b32 s39, s37, 7")
    a("v_lshl_add_u32 v%d, v1, 2, s39" % K57)
    a("v_mul_u32_u24 v5, 1152, v%d" % K56)
    a("v_add_u32 v5, v5, v%d" % K57)
    a("v_subrev_u32 v6, %d, v5" % (3 * 1152))
    a("v_cmp_gt_u32 vcc, 3, v%d" % K56)
    a("v_mov_b32 v7, 0x7ffffff0")
    a("v_add_u32 v9, %d, v5" % 3456)
    a("v_cndmask_b32 v8, v6, v7, vcc")
    a("v_add_u32 v10, %d, v5" % 6912)
    for n in range(3):
        a("buffer_load_dword v%d, v8, s[64:67], 0 offen offset:%d" % (KD + n, 1152 * n))
    for n in range(8):
        base, off = ((5, 1152 * n) if n < 3 else (9, 1152 * (n - 3)) if n < 6 else (10, 1152 * (n - 6)))
        a("buffer_load_dword v%d, v%d, s[64:67], 0 offen offset:%d" % (KD + 3 + n, base, off))
        a("buffer_load_dword v%d, v%d, s[68:71], 0 offen offset:%d" % (VD + n, base, off))
    a("v_lshlrev_b32 v11, 2, v%d" % K57)
    a("buffer_load_dwordx4 %s, v11, s[72:75], 0 offen" % vr(SD))

def emit_kv_compute(a, wait=True, store=True):
    if wait: a("s_waitcnt vmcnt(0)")
    for ch in range(2):
        for q in range(2):
            a("v_lshlrev_b32 v%d, 16, v%d" % (48 + 4 * ch + 2 * q, 44 + 2 * ch + q))
            a("v_and_b32 v%d, 0xffff0000, v%d" % (49 + 4 * ch + 2 * q, 44 + 2 * ch + q))
    for n in range(11):
        a("v_lshlrev_b32 v%d, 16, v%d" % (60 + n, 16 + n))
        a("v_and_b32 v%d, 0xffff0000, v%d" % (72 + n, 16 + n))
    OUT = 100
    for e0 in range(0, 8, 2):
        es = (e0, e0 + 1)
        R_ = {e: (84 + 6 * (e & 1)) for e in es}
        for e in es:
            A0 = R_[e]
            a("v_mul_f32 v%d, v%d, v%d" % (A0, 60 + e, 51)); a("v_mul_f32 v%d, v%d, v%d" % (A0 + 1, 72 + e, 55))
        for e in es: rnd_pair(a, R_[e] + 4, R_[e], R_[e] + 1)
        for t in range(1, 4):
            for e in es:
                A0 = R_[e]
                a("v_mul_f32 v%d, v%d, v%d" % (A0 + 2, 60 + e + t, 51 - t)); a("v_mul_f32 v%d, v%d, v%d" % (A0 + 3, 72 + e + t, 55 - t))
            for e in es: rnd_pair(a, R_[e] + 4, R_[e] + 2, R_[e] + 3)
            for e in es:
                A0 = R_[e]
                a("v_add_f32 v%d, v%d, v%d" % (A0, A0, A0 + 2)); a("v_add_f32 v%d, v%d, v%d" % (A0 + 1, A0 + 1, A0 + 3))
            for e in es: rnd_pair(a, R_[e] + 4, R_[e], R_[e] + 1)
        for e in es:
            A0 = R_[e]
            a("v_lshlrev_b32 v%d, 16, v%d" % (A0 + 2, 32 + e)); a("v_and_b32 v%d, 0xffff0000, v%d" % (A0 + 3, 32 + e))
            a("v_mul_f32 v%d, v%d, v%d" % (OUT + e, A0, A0 + 2)); a("v_mul_f32 v%d, v%d, v%d" % (OUT + 8 + e, A0 + 1, A0 + 3))
    for ch in range(2):
        for q in range(4):
            a("v_cvt_pk_bf16_f32 v%d, v%d, v%d" % (120 + 4 * ch + q, OUT + 8 * ch + 7 - 2 * q, OUT + 8 * ch + 6 - 2 * q))
    a("v_lshlrev_b32 v12, 11, v57")
    a("v_sub_u32 v13, 2040, v56")
    a("v_lshl_add_u32 v12, v13, 1, v12")
    a("v_add_u32 v13, 4096, v12")
    if not store: return
    a("s_mov_b32 s39, 0x%x" % KVT)
    a("buffer_store_dwordx4 v[120:123], v12, s[12:15], s39 offen")
    a("buffer_store_dwordx4 v[124:127], v13, s[12:15], s39 offen")

def emit_wot_loads(a, WD=128, WO=140):
    a("s_mul_i32 s36, s42, 360")
    a("s_mov_b32 s37, 0x%x" % ((2**32 + 9) // 10))
    a("s_mov_b32 s38, 0x%x" % ((2**32 + 17) // 18))
    a("s_mov_b32 s40, 0x%x" % WOT)
    for n in range(2):
        a("v_add_u32 v16, s36, v0")
        if n: a("v_add_u32 v16, 256, v16")
        a("v_mul_hi_u32 v17, v16, s37")
        a("v_mul_u32_u24 v18, 10, v17")
        a("v_sub_u32 v18, v16, v18")
        a("v_lshrrev_b32 v19, 7, v17")
        a("v_and_b32 v20, 127, v17")
        a("v_mul_hi_u32 v21, v19, s38")
        a("v_mul_u32_u24 v22, 18, v21")
        a("v_sub_u32 v22, v19, v22")
        a("v_and_b32 v23, 0x63, v20")
        a("v_bfe_u32 v24, v20, 2, 2")
        a("v_lshl_add_u32 v23, v24, 3, v23")
        a("v_bfe_u32 v24, v20, 4, 1")
        a("v_lshl_add_u32 v23, v24, 2, v23")
        a("v_lshl_add_u32 v23, v22, 7, v23")
        a("v_mul_u32_u24 v23, 1152, v23")
        a("v_lshrrev_b32 v24, 1, v21")
        a("v_mul_u32_u24 v24, 288, v24")
        a("v_add_u32 v23, v23, v24")
        a("v_lshl_add_u32 v23, v18, 4, v23")
        a("v_and_b32 v24, 1, v21")
        a("v_cmp_gt_u32 vcc, 8, v18")
        a("v_mul_u32_u24 v24, 160, v24")
        a("v_lshlrev_b32 v%d, 4, v16" % (WO + n))
        a("v_cndmask_b32 v24, 0, v24, vcc")
        a("v_add_u32 v23, v23, v24")
        if n == 1:
            a("v_cmp_gt_u32 vcc, 104, v0")
            a("v_mov_b32 v24, 0x7ffffff0")
            a("s_nop 0")
            a("v_cndmask_b32 v23, v24, v23, vcc")
            a("v_cndmask_b32 v%d, v24, v%d, vcc" % (WO + 1, WO + 1))
        a("buffer_load_dwordx4 %s, v23, s[76:79], 0 offen" % vr(WD + 4 * n))

CJ_EB = 0; CJ_OB = 4160; CJ_UB = 8320; CJ_SIZE = 12928
def seg_end2(a, name):
    return

CJ_H = [56, 64, 72, 80]; CJ_U = 224
def emit_conv_loads(a):
    a("s_lshl_b32 s36, s43, 12")
    a("v_lshlrev_b32 v4, 4, v2")
    for n in range(4):
        a("buffer_load_dwordx4 %s, v4, s[16:19], s36 offen offset:%d" % (vr(CJ_H[n]), 1024 * n))
    a("v_add_u32 v5, 16, v4")
    for n in range(4):
        a("buffer_load_dword v%d, v5, s[16:19], s36 offen offset:%d" % (CJ_H[n] + 4, 1024 * n))
    a("s_add_u32 s37, s36, 0x%x" % KVT)
    for n in range(4):
        a("buffer_load_dwordx4 %s, v4, s[12:15], s37 offen offset:%d" % (vr(CJ_U + 4 * n), 1024 * n))
    a("s_lshl_b32 s37, s43, 1")
    a("v_mov_b32 v6, s37")
    a("buffer_load_ushort v240, v6, s[84:87], 0 offen")
    return 13

def emit_conv_job(a, name, mid=None):
    EB, OB, UB = CJ_EB, CJ_OB, CJ_UB
    H = CJ_H
    a("v_lshlrev_b32 v4, 4, v2")
    a("v_add_u32 v12, s27, v4")
    for r in range(8, 12): a("v_mov_b32 v%d, 0" % r)
    a("v_lshlrev_b32 v5, 3, v2")
    a("v_add_u32 v5, s27, v5")
    a("ds_write_b64 v5, v[8:9] offset:%d" % (UB + 4096))
    a("s_mov_b64 exec, 3")
    a("ds_write_b128 v12, v[8:11] offset:%d" % EB)
    a("ds_write_b128 v12, v[8:11] offset:%d" % OB)
    a("s_mov_b64 exec, -1")
    for n in range(4):
        a("ds_write_b128 v12, %s offset:%d" % (vr(CJ_U + 4 * n), UB + 1024 * n))
    a("s_waitcnt lgkmcnt(3)")
    for n in range(4):
        a("ds_write_b128 v12, %s offset:%d" % (vr(H[n]), EB + 32 + 1024 * n))
        for q in range(4):
            a("v_alignbit_b32 v%d, v%d, v%d, 16" % (88 + 4 * (n & 1) + q, H[n] + q + 1, H[n] + q))
        a("ds_write_b128 v12, %s offset:%d" % (vr(88 + 4 * (n & 1)), OB + 32 + 1024 * n))
    a("s_mov_b64 exec, 1")
    a("v_mov_b32 v5, s27")
    a("ds_write_b16 v5, v%d offset:%d" % (H[0], OB + 30))
    a("s_mov_b64 exec, -1")
    if mid: mid()
    a("v_and_b32 v5, 15, v2")
    a("v_lshrrev_b32 v6, 4, v2")
    a("v_lshl_add_u32 v7, v6, 3, v5")
    a("v_and_b32 v8, 1, v5")
    a("v_add_u32 v7, v7, v8")
    a("v_lshlrev_b32 v7, 1, v7")
    a("v_cmp_eq_u32 vcc, 0, v8")
    a("v_mov_b32 v9, %d" % EB); a("v_mov_b32 v10, %d" % OB)
    a("v_cndmask_b32 v9, v9, v10, vcc")
    a("v_add3_u32 v7, v7, v9, s27")
    AA = 52
    for q in range(4):
        a("v_add_u32 v%d, %d, v7" % (AA + q, 1024 * q))
    a("v_lshlrev_b32 v9, 4, v6")
    a("v_lshlrev_b32 v10, 5, v5")
    a("v_sub_u32 v9, v9, v10")
    a("s_add_u32 s38, s27, %d" % (UB + 480))
    a("v_add_u32 v11, s38, v9")
    a("v_lshlrev_b32 v9, 5, v5")
    a("v_lshl_add_u32 v9, v6, 3, v9")
    a("s_add_u32 s38, s27, %d" % (UB + 4088 - 3584))
    a("v_sub_u32 v10, s38, v9")
    ACC = 96; AF = [112, 176]; BF = [144, 208]
    for r in range(ACC, ACC + 16): a("v_mov_b32 v%d, 0" % r)
    a("v_lshlrev_b32 v13, 16, v240")
    a("s_lshl_b32 s36, s43, 12")
    a("s_add_u32 s37, s36, 0x%x" % YT)
    a("s_mov_b32 s33, 0")
    a("s_waitcnt lgkmcnt(0)")
    stamp(a, 3)
    a("s_cmp_eq_u32 s26, 1")
    a("s_cbranch_scc1 %s_cj1" % name)
    for hv, tiles in enumerate(([7, 6, 1, 0], [5, 4, 3, 2])):
        if hv: a.label("%s_cj1" % name)
        nq = max(tiles) + 1
        trk = LdsTracker(a)
        def room():
            if len(trk.out) >= 13:
                a("s_waitcnt lgkmcnt(8)"); trk.out = trk.out[-8:]
        def reads(kk, buf):
            L = []
            for q in range(nq):
                r = BF[buf] + 4 * q
                L.append(("ds_read_b128 %s, v11 offset:%d" % (vr(r), 3584 - 512 * q + 64 * kk), range(r, r + 4)))
                r = AF[buf] + 4 * q
                o = 128 * (q & 1) + 16 * kk
                L.append(("ds_read2_b32 %s, v%d offset0:%d offset1:%d" % (vr(r, 2), AA + (q >> 1), o, o + 1), range(r, r + 2)))
                L.append(("ds_read2_b32 %s, v%d offset0:%d offset1:%d" % (vr(r + 2, 2), AA + (q >> 1), o + 2, o + 3), range(r + 2, r + 4)))
            return L
        for t, r in reads(0, 0):
            room(); a(t); trk.issue(r)
        trk.drain()
        ms = sorted([(max(jj, n - jj), ti, n, jj) for ti, n in enumerate(tiles) for jj in range(n + 1)])
        def step(buf, kk_next, upd):
            nxt = [("x", u) for u in upd] + [("r", x) for x in reads(kk_next, 1 - buf)]
            tot = len(nxt); done = 0
            for mi, (_, ti, n, jj) in enumerate(ms):
                A = AF[buf] + 4 * jj; B = BF[buf] + 4 * (n - jj); c = ACC + 4 * ti
                trk.need(list(range(A, A + 4)) + list(range(B, B + 4)))
                a("v_mfma_f32_16x16x32_bf16 %s, %s, %s, %s" % (vr(c), vr(A), vr(B), vr(c)))
                want = (tot * (mi + 1) + 15) // 16
                while nxt and done < want:
                    k, t = nxt.pop(0); done += 1
                    if k == "x": a(t)
                    else:
                        room(); a(t[0]); trk.issue(t[1])
        upd = ["v_add_u32 v11, 128, v11"] + ["v_add_u32 v%d, 128, v%d" % (AA + q, AA + q) for q in range((nq + 1) // 2)] + ["s_add_u32 s33, s33, 1"]
        a.label("%s_cjl%d" % (name, hv))
        lb = len(a.lines)
        for it_ in range(8):
            st = copy.deepcopy(trk.out)
            step(0, 1, list([])); step(1, 0, list(upd))
            a("s_waitcnt lgkmcnt(6)"); trk.out = trk.out[-6:]
            if [sorted(x) for x in trk.out] == [sorted(x) for x in st]: break
            del a.lines[lb:]
        else:
            assert False, "no fixed point"
        a("s_cmp_lt_u32 s33, 4")
        a("s_cbranch_scc1 %s_cjl%d" % (name, hv))
        trk.drain()
        stamp(a, 4 + 2 * hv)
        for ti, n in enumerate(tiles):
            a("ds_read_b64 %s, v10 offset:%d" % (vr(112 + 2 * ti, 2), 3584 - 512 * n))
        a("s_waitcnt lgkmcnt(0)")
        for ti, n in enumerate(tiles):
            c = ACC + 4 * ti; U = 112 + 2 * ti; T = 120
            a("v_and_b32 v%d, 0xffff0000, v%d" % (T + 0, U + 1)); a("v_lshlrev_b32 v%d, 16, v%d" % (T + 1, U + 1))
            a("v_and_b32 v%d, 0xffff0000, v%d" % (T + 2, U)); a("v_lshlrev_b32 v%d, 16, v%d" % (T + 3, U))
            for r in range(4): a("v_mul_f32 v%d, v%d, v13" % (T + r, T + r))
            rnd_pair(a, T + 4, T, T + 1); rnd_pair(a, T + 4, T + 2, T + 3)
            rnd_pair(a, T + 4, c, c + 1); rnd_pair(a, T + 4, c + 2, c + 3)
            for r in range(4): a("v_add_f32 v%d, v%d, v%d" % (c + r, c + r, T + r))
            a("v_cvt_pk_bf16_f32 v%d, v%d, v%d" % (U, c, c + 1))
            a("v_cvt_pk_bf16_f32 v%d, v%d, v%d" % (U + 1, c + 2, c + 3))
            a("buffer_store_dwordx2 %s, v9, s[12:15], s37 offen offset:%d" % (vr(U, 2), 512 * n))
        stamp(a, 5 + 2 * hv)
        if hv == 0:
            a("s_cmp_eq_u32 s26, 0")
            a("s_cbranch_scc1 %s_cjdone" % name)
            a("v_subrev_u32 v11, 512, v11")
            for q in range(4): a("v_subrev_u32 v%d, 512, v%d" % (AA + q, AA + q))
            for r in range(ACC, ACC + 16): a("v_mov_b32 v%d, 0" % r)
            a("s_mov_b32 s33, 0")
    a.label("%s_cjdone" % name)

def gen_k1e(name="k1_kernel"):
    a = Asm()
    TS = 16384; NT = 3; TB0 = 4096; FB_ = TB0 + NT * TS; FSL = 18432; NF = 6; FS = 576; NK = 18
    LDSB = FB_ + NF * FSL; RST = 0; CSO = 1024; CJB = TB0 + 4 * 18432
    kernel_begin(a, name)
    a("s_load_dwordx2 s[80:81], s[0:1], 0")
    a("s_load_dwordx2 s[4:5], s[0:1], 56")
    a("s_cmp_ge_u32 s2, 256")
    a("s_cbranch_scc1 %s_end" % name)
    a("v_lshrrev_b32 v1, 6, v0")
    a("v_and_b32 v2, 63, v0")
    a("v_readfirstlane_b32 s3, v1")
    a("s_and_b32 s20, s2, 7")
    a("s_lshr_b32 s21, s2, 3")
    a("s_and_b32 s22, s20, 1")
    a("s_lshl_b32 s22, s22, 3")
    a("s_and_b32 s23, s21, 7")
    a("s_add_u32 s22, s22, s23")
    a("s_lshr_b32 s21, s21, 3")
    a("s_and_b32 s23, s20, 6")
    a("s_and_b32 s24, s21, 1")
    a("s_add_u32 s23, s23, s24")
    a("s_lshr_b32 s21, s21, 1")
    a("s_mov_b32 s99, 0")
    a("s_mov_b64 s[96:97], -1")
    a("s_cmp_lt_u32 s3, 4")
    a("s_cbranch_scc1 %s_consumer" % name)
    a("s_setprio 3")
    a("s_sub_u32 s3, s3, 4")
    a("v_lshrrev_b32 v3, 3, v2")
    a("v_and_b32 v4, 7, v2")
    VT = 16; VF = 20
    a("s_lshl_b32 s24, s3, 5")
    a("v_add_u32 v5, s24, v3")
    a("v_lshrrev_b32 v7, 4, v2")
    a("v_xor_b32 v7, v7, v4")
    a("v_mul_u32_u24 v6, 1152, v5")
    a("v_lshl_add_u32 v%d, v7, 4, v6" % VT)
    a("v_xor_b32 v%d, 64, v%d" % (VT + 1, VT))
    a("v_add_u32 v%d, %d, v%d" % (VT + 1, 9216 - 1024, VT + 1))
    a("v_add_u32 v%d, %d, v%d" % (VT + 2, 2 * (9216 - 1024), VT))
    a("v_add_u32 v%d, %d, v%d" % (VT + 3, 2 * (9216 - 1024), VT + 1))
    a("s_mul_i32 s26, s22, %d" % (128 * 1152))
    a("s_lshl_b32 s24, s3, 12")
    a("s_add_u32 s24, s24, %d" % TB0)
    a("s_mov_b32 s33, 0")
    a("s_waitcnt lgkmcnt(0)")
    srd(a, 28, 80, 2048 * 576 * 2)
    vm = VmTracker(a)
    def issueT(m):
        a("s_add_u32 s35, s33, s24")
        a("s_mov_b32 m0, s35")
        a("s_add_u32 s33, s33, %d" % TS)
        for n in range(4):
            if "nodma" not in DBG: a("buffer_load_dwordx4 v%d, s[28:31], s26 offen offset:%d lds" % (VT + n, 1024 * n))
        a("s_add_u32 s26, s26, 128")
        a("s_cmp_eq_u32 s33, %d" % (NT * TS))
        a("s_cselect_b32 s33, 0, s33")
        vm.issue("T%d" % m, 4)
    issueT(0)
    srd(a, 8, 4, 576 * 4608 * 2)
    for n in range(5):
        if n: a("v_add_u32 v6, %d, v2" % (64 * n))
        src = "v6" if n else "v2"
        a("v_mul_u32_u24 v7, 1821, %s" % src)
        a("v_lshrrev_b32 v7, 16, v7")
        a("v_mul_u32_u24 v8, 36, v7")
        a("v_sub_u32 v8, %s, v8" % src)
        a("v_bfe_u32 v9, v7, 2, 1")
        a("v_lshlrev_b32 v6, 1, v9")
        a("v_xor_b32 v8, v8, v6")
        a("v_and_b32 v7, 3, v7")
        a("v_lshl_add_u32 v7, v9, 3, v7")
        a("v_mul_u32_u24 v7, 9216, v7")
        a("v_lshl_add_u32 v%d, v8, 4, v7" % (VF + n))
        if 0 < n < 4: a("v_subrev_u32 v%d, %d, v%d" % (VF + n, 1024 * n, VF + n))
    a("s_and_b32 s36, s3, 1")
    a("s_lshl_b32 s36, s36, 4")
    a("s_lshr_b32 s37, s3, 1")
    a("s_lshl_b32 s37, s37, 2")
    a("s_add_u32 s36, s36, s37")
    a("s_mul_i32 s27, s36, 9216")
    a("s_mul_i32 s36, s23, 576")
    a("s_add_u32 s27, s27, s36")
    a("s_cmp_eq_u32 s21, 0")
    a("s_cselect_b32 s36, 4608, 0")
    a("s_add_u32 s27, s27, s36")
    a("s_mul_i32 s25, s3, 4608")
    a("s_add_u32 s25, s25, %d" % FB_)
    a("s_mov_b32 s34, 0")
    def issueF(k):
        a("s_add_u32 s35, s34, s25")
        a("s_mov_b32 m0, s35")
        a("s_add_u32 s36, s35, 4096")
        for n in range(4):
            if "nodma" not in DBG: a("buffer_load_dwordx4 v%d, s[8:11], s27 offen offset:%d lds" % (VF + n, 1024 * n))
        a("s_mov_b32 m0, s36")
        a("s_mov_b64 exec, 0xffffffff")
        if "nodma" not in DBG: a("buffer_load_dwordx4 v%d, s[8:11], s27 offen lds" % (VF + 4))
        a("s_mov_b64 exec, -1")
        a("s_add_u32 s27, s27, %d" % (32 * 9216))
        a("s_add_u32 s34, s34, %d" % FSL)
        a("s_cmp_eq_u32 s34, %d" % (NF * FSL))
        a("s_cselect_b32 s34, 0, s34")
        vm.issue("F%d" % k, 5)
    issueF(0); issueF(1)
    def other_setup():
        a("s_load_dwordx2 s[6:7], s[0:1], 104")
        a("s_load_dwordx2 s[18:19], s[0:1], 96")
        a("s_load_dwordx4 s[88:91], s[0:1], 32")
        a("s_waitcnt lgkmcnt(0)")
        srd(a, 12, 6, WS_BYTES)
        srd(a, 60, 18, 256)
        srd(a, 16, 88, 576 * 2048 * 2)
        srd(a, 84, 90, 576 * 2)
    other_setup()
    a("s_add_u32 s3, s3, 4"); stamp_setup(a, 1); stamp(a, 0); a("s_sub_u32 s3, s3, 4")
    SS = [28, 30, 32, 34]; ONE = 36
    for r in range(28, 36): a("v_mov_b32 v%d, 0" % r)
    for r in range(ONE, ONE + 4): a("v_mov_b32 v%d, 0x3f803f80" % r)
    CA = 40
    for r in range(CA, CA + 20): a("v_mov_b32 v%d, 0" % r)
    XB = 64; CF = 80
    a("v_lshlrev_b32 v10, 4, v2")
    a("v_add_u32 v10, s24, v10")
    a("v_lshrrev_b32 v11, 2, v2")
    a("v_mul_u32_u24 v11, %d, v11" % FS)
    a("v_and_b32 v12, 3, v2")
    a("v_lshl_add_u32 v11, v12, 3, v11")
    a("v_bfe_u32 v13, v2, 4, 1")
    a("v_lshlrev_b32 v13, 5, v13")
    a("s_lshr_b32 s36, s3, 1")
    a("s_mul_i32 s37, s36, 9")
    a("s_and_b32 s38, s3, 1")
    a("s_lshl_b32 s38, s38, 2")
    a("s_add_u32 s37, s37, s38")
    a("s_lshl_b32 s40, s37, 6")
    a("s_lshl_b32 s37, s37, 5")
    a("s_add_u32 s37, s37, %d" % FB_)
    a("v_add_u32 v11, s37, v11")
    a("v_add_u32 v5, v11, v13")
    a("v_sub_u32 v6, v11, v13")
    a("s_cmp_eq_u32 s36, 0")
    a("s_cselect_b64 vcc, -1, 0")
    a("v_cndmask_b32 v11, v6, v5, vcc")
    a("v_cndmask_b32 v12, v5, v6, vcc")
    def rowstats_rd(m):
        if "nors" in DBG: return
        a("v_add_u32 v5, %d, v10" % ((m % NT) * TS))
        for n in range(4):
            a("ds_read_b128 %s, v5 offset:%d" % (vr(XB + 4 * n), 1024 * n))
    def rowstats_do():
        if "nors" in DBG: return
        for d in range(4):
            for n in range(4):
                r = XB + 4 * n + d
                a("v_dot2_f32_bf16 v%d, v%d, v%d, v%d" % (SS[n], r, ONE, SS[n]))
                a("v_dot2_f32_bf16 v%d, v%d, v%d, v%d" % (SS[n] + 1, r, r, SS[n] + 1))
    def colsum_rd(k):
        if "nocs" in DBG: return
        a("v_add_u32 v6, %d, v11" % ((k % NF) * FSL))
        a("v_add_u32 v7, %d, v12" % ((k % NF) * FSL))
        for q in range(5):
            for half in range(2):
                a("ds_read_b64_tr_b16 %s, v%d offset:%d" % (vr(CF + 4 * q + 2 * half, 2), 6 + (q & 1), 16 * half * FS + 32 * q))
    def colsum_do():
        if "nocs" in DBG: return
        for q in range(5):
            a("v_mfma_f32_16x16x32_bf16 %s, %s, %s, %s" % (vr(CA + 4 * q), vr(CF + 4 * q), vr(ONE), vr(CA + 4 * q)))
    vm.wait(["T0", "F0"])
    a("s_barrier")
    stamp(a, 1)
    colsum_rd(0); rowstats_rd(0)
    issueT(1); issueF(2); issueF(3)
    a("s_waitcnt lgkmcnt(0)")
    colsum_do(); rowstats_do()
    vm.wait(["F1"])
    a("s_barrier")
    for k in range(NK):
        rs = (k % 2 == 1 and (k + 1) // 2 < 9)
        if k + 1 < NK: colsum_rd(k + 1)
        if rs: rowstats_rd((k + 1) // 2)
        if k == 0:
            issueF(4); issueT(2); issueF(5)
        if k >= 1 and k + 5 < NK: issueF(k + 5)
        if k % 2 == 1 and (k - 1) // 2 + 3 < 9: issueT((k - 1) // 2 + 3)
        a("s_waitcnt lgkmcnt(0)")
        if k + 1 < NK: colsum_do()
        if rs: rowstats_do()
        if k + 1 < NK:
            vm.wait(["F%d" % (k + 2), "T%d" % ((k + 2) // 2)])
            a("s_barrier")
    a("s_nop 3")
    for ctl in ("quad_perm:[1,0,3,2]", "quad_perm:[2,3,0,1]", "row_half_mirror"):
        for rg in range(4):
            for e in range(2):
                a("v_add_f32_dpp v%d, v%d, v%d %s row_mask:0xf bank_mask:0xf" % (SS[rg] + e, SS[rg] + e, SS[rg] + e, ctl))
        a("s_nop 1")
    ML = 64
    for rg in range(4):
        emit_ln_finish(a, SS[rg], SS[rg] + 1, 576, ML + 2 * rg, ML + 2 * rg + 1, 76)
        a("v_mov_b32 v%d, v%d" % (SS[rg] + 1, ML + 2 * rg + 1))
        a("v_sub_f32 v%d, 0, v%d" % (SS[rg], ML + 2 * rg))
    a("s_lshl_b32 s35, s3, 8")
    a("v_lshlrev_b32 v6, 3, v3")
    a("v_add_u32 v12, s35, v6")
    a("v_cmp_eq_u32 vcc, 0, v4")
    a("s_and_saveexec_b64 s[36:37], vcc")
    for rg in range(4):
        a("ds_write_b64 v12, %s offset:%d" % (vr(SS[rg], 2), RST + 64 * rg))
    a("s_mov_b64 exec, s[36:37]")
    a("s_lshl_b32 s36, s21, 8")
    a("s_or_b32 s36, s36, s23")
    a("s_cmp_lg_u32 s36, 256")
    a("s_cbranch_scc1 %s_nost1" % name)
    a("s_lshl_b32 s35, s22, 7")
    a("s_lshl_b32 s36, s3, 5")
    a("s_add_u32 s35, s35, s36")
    a("s_lshl_b32 s35, s35, 3")
    a("s_add_u32 s35, s35, 0x%x" % STATS1)
    a("v_mov_b32 v7, 0x7ffffff0")
    a("v_cndmask_b32 v6, v7, v6, vcc")
    for rg in range(4):
        a("buffer_store_dwordx2 %s, v6, s[12:15], s35 offen offset:%d" % (vr(ML + 2 * rg, 2), 64 * rg))
    a.label("%s_nost1" % name)
    a("v_lshrrev_b32 v12, 4, v2")
    a("v_lshlrev_b32 v12, 4, v12")
    a("v_add_u32 v12, s40, v12")
    a("v_and_b32 v13, 15, v2")
    a("v_cmp_eq_u32 vcc, 0, v13")
    a("s_and_saveexec_b64 s[36:37], vcc")
    for q in range(5):
        a("ds_write_b128 v12, %s offset:%d" % (vr(CA + 4 * q), CSO + 64 * q))
    a("s_mov_b64 exec, s[36:37]")
    a("s_waitcnt lgkmcnt(0)")
    a("s_barrier")
    a("s_setprio 0")
    ACC = 112
    a("s_lshr_b32 s24, s3, 1")
    a("s_and_b32 s25, s3, 1")
    a("v_and_b32 v3, 15, v2")
    a("s_lshl_b32 s23, s23, 1")
    a("s_add_u32 s23, s23, 1")
    a("s_mov_b32 s40, 576")
    a("s_mov_b32 s98, 1")
    a("s_mul_i32 s36, s3, 18432")
    a("s_add_u32 s36, s36, %d" % TB0)
    a("v_lshlrev_b32 v10, 4, v2")
    a("v_add_u32 v11, s36, v10")
    a("s_barrier")
    for n in range(18):
        a("ds_read_b128 %s, v11 offset:%d" % (vr(ACC + 4 * n), 1024 * n))
        if n in (7, 13): a("s_waitcnt lgkmcnt(4)")
    a("s_branch %s_epi" % name)

    def gran_addr():
        a("v_lshrrev_b32 v10, 4, v2")
        a("s_lshl_b32 s33, s25, 1")
        a("v_add_u32 v11, s33, v10")
        a("v_and_b32 v11, 3, v11")
        a("v_lshl_add_u32 v11, v11, 4, v3")
        a("v_lshlrev_b32 v94, 8, v11")
        a("s_lshl_b32 s59, s22, 7")
        a("s_lshl_b32 s36, s24, 6")
        a("s_add_u32 s59, s59, s36")
        a("s_lshl_b32 s59, s59, 8")
        a("s_add_u32 s59, s59, 0x%x" % STATS2)
        a("s_lshl_b32 s36, s23, 1")
        a("s_add_u32 s36, s36, s25")
        a("s_lshl_b32 s36, s36, 3")
        a("s_add_u32 s58, s36, s59")
    a.label("%s_consumer" % name)
    a("s_load_dwordx4 s[64:67], s[0:1], 8")
    a("s_load_dwordx2 s[76:77], s[0:1], 24")
    a("s_load_dwordx2 s[78:79], s[0:1], 64")
    other_setup()
    srd(a, 68, 66, 2048 * 576 * 2)
    a("s_mov_b32 s100, s64"); a("s_mov_b32 s101, s65")
    srd(a, 64, 100, 2048 * 576 * 2)
    srd(a, 72, 76, 576 * 8)
    srd(a, 92, 78, 2048 * 2048 * 2)
    stamp_setup(a, 1); stamp(a, 0)
    a("s_lshr_b32 s24, s3, 1")
    a("s_and_b32 s25, s3, 1")
    a("v_and_b32 v3, 15, v2")
    a("s_lshl_b32 s23, s23, 1")
    a("s_mov_b32 s98, 0")
    a("s_mov_b32 s41, s2")
    a.label("%s_kv" % name)
    emit_kv_loads(a)
    a("s_cmp_lg_u32 s41, s2")
    a("s_cbranch_scc1 %s_kv2" % name)
    a("s_cmp_lg_u32 s21, 0")
    a("s_cbranch_scc1 %s_noclr" % name)
    gran_addr()
    a("v_mov_b32 v12, 0"); a("v_mov_b32 v13, 0x80000000")
    a("buffer_store_dwordx2 v[12:13], v94, s[12:15], s58 offen sc1")
    a("buffer_store_dwordx2 v[12:13], v94, s[12:15], s58 offen offset:16 sc1")
    a.label("%s_noclr" % name)
    if "nowarm" not in DBG:
        a("s_mov_b32 s99, 1")
        for r_ in (26, 27, 33, 36, 37, 38, 39, 40, 43, 58, 59): a("s_mov_b32 s%d, 0" % r_)
        for r_ in (4, 12, 13, 94): a("v_mov_b32 v%d, 0" % r_)
        a("s_mov_b64 s[96:97], 0")
        a("s_mov_b64 exec, 0")
        a("s_cmp_eq_u32 s3, 0"); a("s_cbranch_scc1 %s_epi" % name)
        a("s_cmp_eq_u32 s3, 1"); a("s_cbranch_scc1 %s_seg1" % name)
        a("s_cmp_eq_u32 s3, 2"); a("s_cbranch_scc1 %s_seg2" % name)
        a("s_branch %s_seg3" % name)
        a.label("%s_warmret" % name)
        a("s_mov_b64 s[96:97], -1")
        a("s_mov_b64 exec, -1")
        a("s_mov_b32 s99, 0")
    a.label("%s_kv2" % name)
    emit_kv_compute(a)
    a("s_add_u32 s41, s41, 32")
    a("s_cmp_lt_u32 s41, 256")
    a("s_cbranch_scc1 %s_kvd" % name)
    a("s_cmp_lt_u32 s41, 288")
    a("s_cbranch_scc1 %s_kv" % name)
    a.label("%s_kvd" % name)
    TB = [16, 32]; FR = 48
    vTa, vTb, vP = 4, 5, [6, 7]; vH = [8, 9]
    bTa = [88, 89]; bTb = [90, 91]; bP = [92, 93]; bH = [100, 101]
    PF = 96
    a("v_lshrrev_b32 v10, 4, v2")
    a("v_lshrrev_b32 v11, 1, v3")
    a("v_xor_b32 v10, v10, v11")
    a("v_lshlrev_b32 v10, 4, v10")
    a("v_lshl_add_u32 v10, v3, 7, v10")
    a("s_lshl_b32 s26, s24, 13")
    a("s_add_u32 s26, s26, %d" % TB0)
    a("v_add_u32 v10, s26, v10")
    a("s_lshl_b32 s26, s25, 12")
    a("v_add_u32 v%d, s26, v10" % bTa[0])
    a("s_xor_b32 s26, s26, 4096")
    a("v_add_u32 v%d, s26, v10" % bTb[0])
    a("v_xor_b32 v%d, 64, v%d" % (bTa[1], bTa[0]))
    a("v_xor_b32 v%d, 64, v%d" % (bTb[1], bTb[0]))
    a("v_lshrrev_b32 v10, 2, v2")
    a("v_mul_u32_u24 v10, %d, v10" % FS)
    a("v_and_b32 v11, 3, v2")
    a("v_lshl_add_u32 v10, v11, 3, v10")
    a("v_add_u32 v10, %d, v10" % FB_)
    a("v_bfe_u32 v13, v2, 4, 1")
    a("v_lshlrev_b32 v13, 5, v13")
    a("v_add_u32 v%d, v10, v13" % bH[0])
    a("v_sub_u32 v%d, v10, v13" % bH[1])
    a("s_mul_i32 s26, s25, 160")
    a("s_cmp_eq_u32 s25, 0")
    a("s_cselect_b64 vcc, -1, 0")
    a("v_cndmask_b32 v11, v%d, v%d, vcc" % (bH[1], bH[0]))
    a("v_cndmask_b32 v12, v%d, v%d, vcc" % (bH[0], bH[1]))
    a("v_add_u32 v%d, s26, v11" % bP[0])
    a("v_add_u32 v%d, s26, v12" % bP[1])
    a("v_lshrrev_b32 v10, 4, v2")
    a("v_lshlrev_b32 v10, 12, v10")
    a("v_lshl_add_u32 v95, v3, 4, v10")
    a("s_lshl_b32 s41, s22, 7")
    a("s_lshl_b32 s36, s3, 5")
    a("s_add_u32 s41, s41, s36")
    a("s_lshl_b32 s41, s41, 12")
    a("s_add_u32 s36, s23, s21")
    a("s_lshl_b32 s36, s36, 8")
    a("s_add_u32 s41, s41, s36")
    for r in range(ACC, ACC + 144): a("v_mov_b32 v%d, 0" % r)
    def accr(z, ft, tt): return ACC + 72 * z + 4 * tidx(ft, tt)
    def Fr(z, ft): return FR + 20 * z + 4 * ft
    trk = LdsTracker(a)
    def treads(buf):
        L = []
        for tt in range(4):
            r = TB[buf] + 4 * tt
            L.append(("ds_read_b128 %s, v%d offset:%d" % (vr(r), vTa if tt < 2 else vTb, (tt & 1) * 2048), range(r, r + 4)))
        return L
    def freads(z, ft):
        r = Fr(z, ft); L = []
        for half in range(2):
            off = 16 * half * FS + 32 * (9 * z + ft)
            v = vP[(z + ft) & 1] if ft < 4 else vH[z]
            L.append(("ds_read_b64_tr_b16 %s, v%d offset:%d" % (vr(r + 2 * half, 2), v, off), range(r + 2 * half, r + 2 * half + 2)))
        return L
    def rd(t):
        a(t[0]); trk.issue(t[1])
    fpairs = ((vP[0], bP[0]), (vP[1], bP[1]), (vH[0], bH[0]), (vH[1], bH[1]))
    a("v_mov_b32 v%d, v%d" % (vTa, bTa[0])); a("v_mov_b32 v%d, v%d" % (vTb, bTb[0]))
    for d, s_ in fpairs: a("v_mov_b32 v%d, v%d" % (d, s_))
    a("s_mov_b32 s27, 0")
    a("s_mov_b32 s34, 0")
    a("s_mov_b32 s33, 0")
    stamp(a, 1)
    a("s_barrier")
    stamp(a, 2)
    for t in treads(0): rd(t)
    for z in range(2):
        for ft in range(5):
            for t in freads(z, ft): rd(t)
            if len(trk.out) >= 12: trk.drain()
    trk.drain()
    def iteration(par):
        a("s_barrier")
        upd = []
        if par == 1:
            upd += ["s_add_u32 s27, s27, %d" % TS, "s_cmp_eq_u32 s27, %d" % (NT * TS), "s_cselect_b32 s27, 0, s27"]
        upd += ["v_add_u32 v%d, s27, v%d" % (vTa, bTa[1 - par]), "v_add_u32 v%d, s27, v%d" % (vTb, bTb[1 - par])]
        upd += ["s_add_u32 s34, s34, %d" % FSL, "s_cmp_eq_u32 s34, %d" % (NF * FSL), "s_cselect_b32 s34, 0, s34"]
        upd += ["v_add_u32 v%d, s34, v%d" % (d, s_) for d, s_ in fpairs]
        pend = [("x", u) for u in upd] + [("r", t) for t in treads(1 - par)]
        if par == 0:
            pend.append(("x", "buffer_load_dwordx4 %s, v95, s[92:95], s41 offen" % vr(PF)))
            pend.append(("x", "s_add_u32 s41, s41, 16384"))
        else:
            pend.append(("x", "s_add_u32 s33, s33, 1"))
        nm = 0
        for z in range(2):
            for ft in range(5):
                for tt in range(4 if ft < 4 else 2):
                    c = accr(z, ft, tt); A = Fr(z, ft); B = TB[par] + 4 * tt
                    trk.need(list(range(A, A + 4)) + list(range(B, B + 4)))
                    if "nomfma" not in DBG: a("v_mfma_f32_16x16x32_bf16 %s, %s, %s, %s" % (vr(c), vr(A), vr(B), vr(c)))
                    nfill = 1
                    while pend and nfill:
                        k, t = pend.pop(0)
                        if k == "x":
                            a(t)
                            if t.startswith("s_") and nm < 8: continue
                        else: rd(t)
                        nfill -= 1
                    nm += 1
                pend += [("r", t) for t in freads(z, ft)]
        for k, t in pend:
            if k == "x": a(t)
            else: rd(t)
        a("s_waitcnt lgkmcnt(15)")
        if len(trk.out) > 15: trk.out = trk.out[-15:]
    a.label("%s_cloop" % name)
    trk.out = []
    lb = len(a.lines)
    iteration(0); iteration(1)
    state = copy.deepcopy(trk.out)
    del a.lines[lb:]
    trk.out = copy.deepcopy(state)
    iteration(0); iteration(1)
    assert [sorted(x) for x in trk.out] == [sorted(x) for x in state]
    a("s_cmp_lt_u32 s33, %d" % (NK // 2))
    a("s_cbranch_scc1 %s_cloop" % name)
    trk.drain()
    stamp(a, 3)
    a("s_waitcnt vmcnt(0)")
    a("s_barrier")
    a("s_cmp_lg_u32 s3, 0")
    a("s_cbranch_scc1 %s_nosig" % name)
    a("v_mov_b32 v10, 1")
    a("s_lshl_b32 s36, s22, 2")
    a("v_mov_b32 v11, s36")
    a("s_mov_b64 exec, 1")
    a("buffer_atomic_add v10, v11, s[60:63], 0 offen sc1")
    a("s_mov_b64 exec, -1")
    a.label("%s_nosig" % name)
    a("s_mul_i32 s36, s3, 18432")
    a("s_add_u32 s36, s36, %d" % TB0)
    a("v_lshlrev_b32 v10, 4, v2")
    a("v_add_u32 v11, s36, v10")
    for n, (ft, tt) in enumerate(TILES):
        a("ds_write_b128 v11, %s offset:%d" % (vr(accr(1, ft, tt)), 1024 * tidx(ft, tt)))
        if n in (7, 13): a("s_waitcnt lgkmcnt(4)")
    a("s_mov_b32 s40, 0")
    a("s_waitcnt lgkmcnt(0)")
    a("s_barrier")
    a.label("%s_epi" % name)
    MR = 100; CS = 52; ZP = 16; T = 72
    gelu_consts(a)
    a("s_lshl_b32 s36, s24, 9")
    a("s_lshl_b32 s37, s25, 8")
    a("s_add_u32 s38, s36, s37")
    a("s_xor_b32 s37, s37, 256")
    a("s_add_u32 s39, s36, s37")
    a("v_lshlrev_b32 v10, 3, v3")
    a("v_add_u32 v11, s38, v10")
    a("ds_read_b64 %s, v11 offset:%d" % (vr(MR, 2), RST))
    a("ds_read_b64 %s, v11 offset:%d" % (vr(MR + 2, 2), RST + 128))
    a("v_add_u32 v11, s39, v10")
    a("ds_read_b64 %s, v11 offset:%d" % (vr(MR + 4, 2), RST))
    a("ds_read_b64 %s, v11 offset:%d" % (vr(MR + 6, 2), RST + 128))
    a("v_lshrrev_b32 v10, 4, v2")
    a("v_lshlrev_b32 v10, 4, v10")
    a("v_add_u32 v10, s40, v10")
    a("s_mul_i32 s36, s25, 320")
    a("v_add_u32 v11, s36, v10")
    a("s_waitcnt lgkmcnt(6)")
    for ft in range(4):
        a("ds_read_b128 %s, v11 offset:%d" % (vr(CS + 4 * ft), CSO + 64 * ft))
    a("ds_read_b128 %s, v10 offset:%d" % (vr(CS + 16), CSO + 256))
    S = [108, 110, 8, 12]; Q = [109, 111, 9, 13]
    for tt in range(4):
        a("v_mov_b32 v%d, 0" % S[tt]); a("v_mov_b32 v%d, 0" % Q[tt])
    a("v_mov_b32 v88, 0x3f803f80")
    a("s_waitcnt lgkmcnt(0)")
    for ft in range(5):
        if ft == 3:
            seg_end(a, name)
            a.label("%s_seg1" % name)
        tts = range(4 if ft < 4 else 2)
        items = [(ACC + 4 * tidx(ft, tt), CS + 4 * ft, MR + 2 * tt, ZP + 2 * tidx(ft, tt)) for tt in tts]
        emit_fold_gelu(a, items, T)
        for d in range(2):
            for tt in tts:
                p = ZP + 2 * tidx(ft, tt) + d
                a("v_dot2_f32_bf16 v%d, v%d, v88, v%d" % (S[tt], p, S[tt]))
                a("v_dot2_f32_bf16 v%d, v%d, v%d, v%d" % (Q[tt], p, p, Q[tt]))
    a("s_cmp_eq_u32 s21, 0")
    a("s_cbranch_scc1 %s_z2" % name)
    a("s_lshl_b32 s36, s22, 4")
    a("s_add_u32 s36, s36, s23")
    a("s_lshl_b32 s36, s36, 2")
    a("s_add_u32 s36, s36, s3")
    a("s_mul_i32 s36, s36, 9216")
    a("s_add_u32 s36, s36, 0x%x" % Z1IMG)
    a("v_lshlrev_b32 v10, 4, v2")
    for q in range(9):
        if q in (4, 8): a("s_add_u32 s36, s36, 4096")
        a("buffer_store_dwordx4 %s, v10, s[12:15], s36 offen offset:%d" % (vr(ZP + 4 * q), (q & 3) * 1024))
    a("s_branch %s_conv" % name)
    a.label("%s_z2" % name)
    a("s_nop 1")
    emit_xg_reduce(a, S + Q, 72)
    gran_addr()
    for g in range(1, 4):
        a("v_cmp_eq_u32 vcc, %d, v10" % g)
        a("s_nop 1")
        a("v_cndmask_b32 v%d, v%d, v%d, vcc" % (S[0], S[0], S[g]))
        a("v_cndmask_b32 v%d, v%d, v%d, vcc" % (Q[0], Q[0], Q[g]))
    a("v_and_b32 v%d, 0x7fffffff, v%d" % (Q[0], Q[0]))
    a("buffer_store_dwordx2 v[%d:%d], v94, s[12:15], s58 offen sc1" % (S[0], Q[0]))
    a.label("%s_conv" % name)
    seg_end(a, name)
    stamp(a, 4)
    a("v_lshlrev_b32 v4, 2, v3")
    a("s_mov_b32 s40, 0")
    a.label("%s_pollp" % name)
    a("buffer_load_dword v5, v4, s[60:63], 0 offen sc1")
    a("s_add_u32 s40, s40, 1")
    a("s_waitcnt vmcnt(0)")
    a("v_cmp_gt_u32 vcc, 16, v5")
    a("s_cmp_gt_u32 s40, %d" % SPIN_MAX)
    a("s_cbranch_scc1 %s_pollpx" % name)
    a("s_cbranch_vccz %s_pollpx" % name)
    a("s_sleep 2")
    a("s_branch %s_pollp" % name)
    a.label("%s_pollpx" % name)
    a("s_lshl_b32 s43, s2, 2")
    a("s_add_u32 s43, s43, s3")
    a("s_mov_b32 s27, s3")
    a("s_cmp_eq_u32 s98, 0")
    a("s_cbranch_scc1 %s_cjgo" % name)
    a("s_cmp_eq_u32 s21, 0")
    a("s_cbranch_scc1 %s_cjdone" % name)
    a("s_cmp_lg_u32 s3, 0")
    a("s_cbranch_scc1 %s_cjdone" % name)
    a("s_add_u32 s43, s2, %d" % (1024 - 128))
    a("s_mov_b32 s27, 4")
    a.label("%s_cjgo" % name)
    a("s_mul_i32 s27, s27, %d" % CJ_SIZE)
    a("s_add_u32 s27, s27, %d" % CJB)
    a("s_and_b32 s26, s43, 1")
    a("s_lshr_b32 s43, s43, 1")
    a.label("%s_seg2" % name)
    emit_conv_job(a, name)
    seg_end(a, name)
    stamp(a, 5)
    a("s_cmp_lg_u32 s21, 0")
    a("s_cbranch_scc1 %s_fin" % name)
    a("v_lshrrev_b32 v10, 4, v2")
    a("v_lshlrev_b32 v11, 8, v3")
    a("v_lshl_add_u32 v11, v10, 6, v11")
    a("s_lshl_b32 s33, s25, 13")
    a("s_add_u32 s36, s59, s33")
    a("s_xor_b32 s33, s33, 8192")
    a("s_add_u32 s37, s59, s33")
    a("s_add_u32 s38, s36, 4096")
    a("s_add_u32 s39, s37, 4096")
    PB = 112
    a.label("%s_poll1" % name)
    for tt in range(4):
        for q in range(4):
            a("buffer_load_dwordx4 %s, v11, s[12:15], s%d offen offset:%d sc1" % (vr(PB + 16 * tt + 4 * q), (36, 38, 37, 39)[tt], 16 * q))
    a("s_waitcnt vmcnt(0)")
    a("v_mov_b32 v12, 0")
    for r in range(PB + 1, PB + 64, 4):
        a("v_or3_b32 v12, v12, v%d, v%d" % (r, r + 2))
    a("v_cmp_gt_i32 vcc, 0, v12")
    a("s_add_u32 s40, s40, 1")
    a("s_cmp_gt_u32 s40, %d" % SPIN_MAX)
    a("s_cbranch_scc1 %s_poll1x" % name)
    a("s_cbranch_vccz %s_poll1x" % name)
    a("s_sleep 8")
    a("s_branch %s_poll1" % name)
    a.label("%s_poll1x" % name)
    stamp(a, 6)
    a.label("%s_seg3" % name)
    for tt in range(4):
        b = PB + 16 * tt
        for st in (8, 4, 2):
            for q in range(0, st, 2):
                a("v_pk_add_f32 %s, %s, %s" % (vr(b + q, 2), vr(b + q, 2), vr(b + q + st, 2)))
    emit_xg_reduce(a, [PB + 16 * tt + e for tt in range(4) for e in range(2)], 72)
    for tt in range(4):
        b = PB + 16 * tt
        emit_ln_finish(a, b, b + 1, 2304, b + 2, MR + 2 * tt, b + 4)
        a("v_mul_f32 v%d, -v%d, v%d" % (MR + 2 * tt + 1, b + 2, MR + 2 * tt))
    a("v_lshrrev_b32 v11, 2, v2"); a("v_and_b32 v11, 1, v11"); a("v_lshlrev_b32 v11, 4, v11")
    a("v_lshrrev_b32 v12, 3, v2"); a("v_and_b32 v12, 1, v12"); a("v_lshl_add_u32 v11, v12, 2, v11")
    a("v_and_b32 v12, 3, v2"); a("v_add_u32 v11, v11, v12")
    a("v_mul_u32_u24 v11, 288, v11")
    a("v_lshrrev_b32 v12, 1, v10"); a("v_lshl_add_u32 v11, v12, 4, v11")
    a("v_and_b32 v12, 1, v10")
    a("v_lshl_add_u32 v13, v12, 5, v11")
    a("v_mul_u32_u24 v12, 2304, v12")
    a("v_add_u32 v9, v11, v12")
    a("s_lshl_b32 s33, s23, 5")
    a("s_lshl_b32 s36, s22, 1")
    a("s_add_u32 s33, s33, s36")
    a("s_add_u32 s33, s33, s24")
    a("s_mul_i32 s33, s33, 18432")
    if ZIMG: a("s_add_u32 s33, s33, 0x%x" % ZIMG)
    a("s_mul_i32 s36, s25, 9216")
    a("s_add_u32 s37, s33, s36")
    a("s_xor_b32 s36, s36, 9216")
    a("s_add_u32 s38, s33, s36")
    a("s_add_u32 s39, s37, 128")
    a("s_mul_i32 s36, s25, 160")
    a("s_add_u32 s37, s37, s36")
    a("s_add_u32 s38, s38, s36")
    def norm_pair(nA, ttA, nB, ttB, O):
        for q, (n, tt) in enumerate(((nA, ttA), (nB, ttB))):
            for d in range(2):
                z = ZP + 2 * n + d; t = T + 4 * q + 2 * d
                a("v_lshlrev_b32 v%d, 16, v%d" % (t, z))
                a("v_and_b32 v%d, 0xffff0000, v%d" % (t + 1, z))
        for q, (n, tt) in enumerate(((nA, ttA), (nB, ttB))):
            for d in range(2):
                t = T + 4 * q + 2 * d
                a("v_pk_fma_f32 %s, %s, %s, %s op_sel:[0,0,1] op_sel_hi:[1,0,1]" % (vr(t, 2), vr(t, 2), vr(MR + 2 * tt, 2), vr(MR + 2 * tt, 2)))
        for q in range(2):
            for d in range(2):
                t = T + 4 * q + 2 * d
                a("v_cvt_pk_bf16_f32 v%d, v%d, v%d" % (O + 2 * q + d, t, t + 1))
        a("s_nop 1")
        a("v_permlane16_swap_b32 v%d, v%d" % (O, O + 2))
        a("v_permlane16_swap_b32 v%d, v%d" % (O + 1, O + 3))
    cnt = 0
    for pr in range(2):
        for tt in range(4):
            O = 112 + 4 * cnt; cnt += 1
            norm_pair(tidx(2 * pr, tt), tt, tidx(2 * pr + 1, tt), tt, O)
            a("s_nop 0")
            a("buffer_store_dwordx4 %s, v13, s[12:15], s%d offen offset:%d" % (vr(O), 37 if tt < 2 else 38, (tt & 1) * 2304 + 64 * pr))
    O = 112 + 4 * cnt
    norm_pair(16, 0, 17, 1, O)
    a("s_nop 0")
    a("buffer_store_dwordx4 %s, v9, s[12:15], s39 offen" % vr(O))
    seg_end(a, name)
    a.label("%s_fin" % name)
    stamp(a, 7)
    a("s_waitcnt vmcnt(0)")
    stamp(a, 8)
    a.label("%s_end" % name)
    a("s_endpgm")
    return a.text(), kernel_desc(name, 256, 256), (name, 256, 512, LDSB)

def gen_k1f(name="k1_kernel"):
    a = Asm()
    TS = 16384; NT = 3; TB0 = 4096; FB_ = TB0 + NT * TS; FSL = 18432; NF = 6; FS = 576; NK = 18
    LDSB = FB_ + NF * FSL; RST = 0; CSO = 1024; CJB = TB0 + 4 * 18432
    kernel_begin(a, name)
    a("s_load_dwordx2 s[80:81], s[0:1], 0")
    a("s_load_dwordx2 s[4:5], s[0:1], 56")
    a("s_cmp_ge_u32 s2, 256")
    a("s_cbranch_scc1 %s_end" % name)
    a("v_lshrrev_b32 v1, 6, v0")
    a("v_and_b32 v2, 63, v0")
    a("v_readfirstlane_b32 s3, v1")
    a("s_and_b32 s20, s2, 7")
    a("s_lshr_b32 s21, s2, 3")
    a("s_and_b32 s22, s20, 1")
    a("s_lshl_b32 s22, s22, 3")
    a("s_and_b32 s23, s21, 7")
    a("s_add_u32 s22, s22, s23")
    a("s_lshr_b32 s21, s21, 3")
    a("s_and_b32 s23, s20, 6")
    a("s_and_b32 s24, s21, 1")
    a("s_add_u32 s23, s23, s24")
    a("s_lshr_b32 s21, s21, 1")
    a("s_mov_b32 s99, 0")
    a("s_mov_b64 s[96:97], -1")
    a("s_cmp_lt_u32 s3, 4")
    a("s_cbranch_scc1 %s_consumer" % name)
    a("s_setprio 3")
    a("s_sub_u32 s3, s3, 4")
    a("v_lshrrev_b32 v3, 3, v2")
    a("v_and_b32 v4, 7, v2")
    VT = 16; VF = 20
    a("s_lshl_b32 s24, s3, 5")
    a("v_add_u32 v5, s24, v3")
    a("v_lshrrev_b32 v7, 4, v2")
    a("v_xor_b32 v7, v7, v4")
    a("v_mul_u32_u24 v6, 1152, v5")
    a("v_lshl_add_u32 v%d, v7, 4, v6" % VT)
    a("v_xor_b32 v%d, 64, v%d" % (VT + 1, VT))
    a("v_add_u32 v%d, %d, v%d" % (VT + 1, 9216 - 1024, VT + 1))
    a("v_add_u32 v%d, %d, v%d" % (VT + 2, 2 * (9216 - 1024), VT))
    a("v_add_u32 v%d, %d, v%d" % (VT + 3, 2 * (9216 - 1024), VT + 1))
    a("s_mul_i32 s26, s22, %d" % (128 * 1152))
    a("s_lshl_b32 s24, s3, 12")
    a("s_add_u32 s24, s24, %d" % TB0)
    a("s_mov_b32 s33, 0")
    a("s_waitcnt lgkmcnt(0)")
    srd(a, 28, 80, 2048 * 576 * 2)
    vm = VmTracker(a)
    def issueT(m):
        a("s_add_u32 s35, s33, s24")
        a("s_mov_b32 m0, s35")
        a("s_add_u32 s33, s33, %d" % TS)
        for n in range(4):
            if "nodma" not in DBG: a("buffer_load_dwordx4 v%d, s[28:31], s26 offen offset:%d lds" % (VT + n, 1024 * n))
        a("s_add_u32 s26, s26, 128")
        a("s_cmp_eq_u32 s33, %d" % (NT * TS))
        a("s_cselect_b32 s33, 0, s33")
        vm.issue("T%d" % m, 4)
    issueT(0)
    srd(a, 8, 4, 576 * 4608 * 2)
    for n in range(5):
        if n: a("v_add_u32 v6, %d, v2" % (64 * n))
        src = "v6" if n else "v2"
        a("v_mul_u32_u24 v7, 1821, %s" % src)
        a("v_lshrrev_b32 v7, 16, v7")
        a("v_mul_u32_u24 v8, 36, v7")
        a("v_sub_u32 v8, %s, v8" % src)
        a("v_bfe_u32 v9, v7, 2, 1")
        a("v_lshlrev_b32 v6, 1, v9")
        a("v_xor_b32 v8, v8, v6")
        a("v_and_b32 v7, 3, v7")
        a("v_lshl_add_u32 v7, v9, 3, v7")
        a("v_mul_u32_u24 v7, 9216, v7")
        a("v_lshl_add_u32 v%d, v8, 4, v7" % (VF + n))
        if 0 < n < 4: a("v_subrev_u32 v%d, %d, v%d" % (VF + n, 1024 * n, VF + n))
    a("s_and_b32 s36, s3, 1")
    a("s_lshl_b32 s36, s36, 4")
    a("s_lshr_b32 s37, s3, 1")
    a("s_lshl_b32 s37, s37, 2")
    a("s_add_u32 s36, s36, s37")
    a("s_mul_i32 s27, s36, 9216")
    a("s_mul_i32 s36, s23, 576")
    a("s_add_u32 s27, s27, s36")
    a("s_cmp_eq_u32 s21, 0")
    a("s_cselect_b32 s36, 4608, 0")
    a("s_add_u32 s27, s27, s36")
    a("s_mul_i32 s25, s3, 4608")
    a("s_add_u32 s25, s25, %d" % FB_)
    a("s_mov_b32 s34, 0")
    def issueF(k):
        a("s_add_u32 s35, s34, s25")
        a("s_mov_b32 m0, s35")
        a("s_add_u32 s36, s35, 4096")
        for n in range(4):
            if "nodma" not in DBG: a("buffer_load_dwordx4 v%d, s[8:11], s27 offen offset:%d lds" % (VF + n, 1024 * n))
        a("s_mov_b32 m0, s36")
        a("s_mov_b64 exec, 0xffffffff")
        if "nodma" not in DBG: a("buffer_load_dwordx4 v%d, s[8:11], s27 offen lds" % (VF + 4))
        a("s_mov_b64 exec, -1")
        a("s_add_u32 s27, s27, %d" % (32 * 9216))
        a("s_add_u32 s34, s34, %d" % FSL)
        a("s_cmp_eq_u32 s34, %d" % (NF * FSL))
        a("s_cselect_b32 s34, 0, s34")
        vm.issue("F%d" % k, 5)
    issueF(0); issueF(1)
    def other_setup():
        a("s_load_dwordx2 s[6:7], s[0:1], 104")
        a("s_load_dwordx2 s[18:19], s[0:1], 96")
        a("s_waitcnt lgkmcnt(0)")
        srd(a, 12, 6, WS_BYTES)
        srd(a, 60, 18, 256)
    def prep_srds():
        srd(a, 68, 66, 2048 * 576 * 2)
        a("s_mov_b32 s88, s64"); a("s_mov_b32 s89, s65")
        srd(a, 64, 88, 2048 * 576 * 2)
        srd(a, 72, 76, 576 * 8)
        srd(a, 76, 100, 2304 * 576 * 2)
    other_setup()
    a("s_add_u32 s3, s3, 4"); stamp_setup(a, 1); stamp(a, 0); a("s_sub_u32 s3, s3, 4")
    a("s_load_dwordx4 s[64:67], s[0:1], 8")
    a("s_load_dwordx2 s[76:77], s[0:1], 24")
    a("s_load_dwordx2 s[100:101], s[0:1], 80")
    a("s_waitcnt lgkmcnt(0)")
    prep_srds()
    if "nowarm" not in DBG:
        a("s_mov_b32 s99, 1")
        a("s_mov_b32 s52, s24"); a("s_mov_b32 s53, s25")
        a("s_mov_b32 s82, s33"); a("s_mov_b32 s83, s34")
        for r_ in (36, 37, 38, 39, 40, 41, 42, 58, 59): a("s_mov_b32 s%d, 0" % r_)
        for r_ in (5, 8, 9, 10, 11, 12, 13, 94, 140, 141): a("v_mov_b32 v%d, 0" % r_)
        a("s_mov_b64 exec, 0")
        a("s_cmp_eq_u32 s3, 0"); a("s_cbranch_scc1 %s_epi" % name)
        a("s_cmp_eq_u32 s3, 1"); a("s_cbranch_scc1 %s_seg1" % name)
        a("s_cmp_eq_u32 s3, 2"); a("s_cbranch_scc1 %s_seg2" % name)
        a("s_branch %s_seg3" % name)
        a.label("%s_warmret" % name)
        a("s_mov_b64 exec, -1")
        a("s_mov_b32 s99, 0")
        a("s_mov_b32 s24, s52"); a("s_mov_b32 s25, s53")
        a("s_mov_b32 s33, s82"); a("s_mov_b32 s34, s83")
    SS = [28, 30, 32, 34]; ONE = 36
    for r in range(28, 36): a("v_mov_b32 v%d, 0" % r)
    for r in range(ONE, ONE + 4): a("v_mov_b32 v%d, 0x3f803f80" % r)
    CA = 40
    for r in range(CA, CA + 20): a("v_mov_b32 v%d, 0" % r)
    XB = 64; CF = 80
    a("v_lshlrev_b32 v10, 4, v2")
    a("v_add_u32 v10, s24, v10")
    a("v_lshrrev_b32 v11, 2, v2")
    a("v_mul_u32_u24 v11, %d, v11" % FS)
    a("v_and_b32 v12, 3, v2")
    a("v_lshl_add_u32 v11, v12, 3, v11")
    a("v_bfe_u32 v13, v2, 4, 1")
    a("v_lshlrev_b32 v13, 5, v13")
    a("s_lshr_b32 s36, s3, 1")
    a("s_mul_i32 s37, s36, 9")
    a("s_and_b32 s38, s3, 1")
    a("s_lshl_b32 s38, s38, 2")
    a("s_add_u32 s37, s37, s38")
    a("s_lshl_b32 s40, s37, 6")
    a("s_lshl_b32 s37, s37, 5")
    a("s_add_u32 s37, s37, %d" % FB_)
    a("v_add_u32 v11, s37, v11")
    a("v_add_u32 v5, v11, v13")
    a("v_sub_u32 v6, v11, v13")
    a("s_cmp_eq_u32 s36, 0")
    a("s_cselect_b64 vcc, -1, 0")
    a("v_cndmask_b32 v11, v6, v5, vcc")
    a("v_cndmask_b32 v12, v5, v6, vcc")
    def rowstats_rd(m):
        if "nors" in DBG: return
        a("v_add_u32 v5, %d, v10" % ((m % NT) * TS))
        for n in range(4):
            a("ds_read_b128 %s, v5 offset:%d" % (vr(XB + 4 * n), 1024 * n))
    def rowstats_do():
        if "nors" in DBG: return
        for d in range(4):
            for n in range(4):
                r = XB + 4 * n + d
                a("v_dot2_f32_bf16 v%d, v%d, v%d, v%d" % (SS[n], r, ONE, SS[n]))
                a("v_dot2_f32_bf16 v%d, v%d, v%d, v%d" % (SS[n] + 1, r, r, SS[n] + 1))
    def colsum_rd(k):
        if "nocs" in DBG: return
        a("v_add_u32 v6, %d, v11" % ((k % NF) * FSL))
        a("v_add_u32 v7, %d, v12" % ((k % NF) * FSL))
        for q in range(5):
            for half in range(2):
                a("ds_read_b64_tr_b16 %s, v%d offset:%d" % (vr(CF + 4 * q + 2 * half, 2), 6 + (q & 1), 16 * half * FS + 32 * q))
    def colsum_do():
        if "nocs" in DBG: return
        for q in range(5):
            a("v_mfma_f32_16x16x32_bf16 %s, %s, %s, %s" % (vr(CA + 4 * q), vr(CF + 4 * q), vr(ONE), vr(CA + 4 * q)))
    vm.wait(["T0", "F0"])
    a("s_barrier")
    stamp(a, 1)
    colsum_rd(0); rowstats_rd(0)
    issueT(1); issueF(2); issueF(3)
    a("s_waitcnt lgkmcnt(0)")
    colsum_do(); rowstats_do()
    vm.wait(["F1"])
    a("s_barrier")
    for k in range(NK):
        rs = (k % 2 == 1 and (k + 1) // 2 < 9)
        if k + 1 < NK: colsum_rd(k + 1)
        if rs: rowstats_rd((k + 1) // 2)
        if k == 0:
            issueF(4); issueT(2); issueF(5)
        if k >= 1 and k + 5 < NK: issueF(k + 5)
        if k % 2 == 1 and (k - 1) // 2 + 3 < 9: issueT((k - 1) // 2 + 3)
        a("s_waitcnt lgkmcnt(0)")
        if k + 1 < NK: colsum_do()
        if rs: rowstats_do()
        if k + 1 < NK:
            vm.wait(["F%d" % (k + 2), "T%d" % ((k + 2) // 2)])
            a("s_barrier")
    a("s_nop 3")
    for ctl in ("quad_perm:[1,0,3,2]", "quad_perm:[2,3,0,1]", "row_half_mirror"):
        for rg in range(4):
            for e in range(2):
                a("v_add_f32_dpp v%d, v%d, v%d %s row_mask:0xf bank_mask:0xf" % (SS[rg] + e, SS[rg] + e, SS[rg] + e, ctl))
        a("s_nop 1")
    ML = 64
    for rg in range(4):
        emit_ln_finish(a, SS[rg], SS[rg] + 1, 576, ML + 2 * rg, ML + 2 * rg + 1, 76)
        a("v_mov_b32 v%d, v%d" % (SS[rg] + 1, ML + 2 * rg + 1))
        a("v_sub_f32 v%d, 0, v%d" % (SS[rg], ML + 2 * rg))
    a("s_lshl_b32 s35, s3, 8")
    a("v_lshlrev_b32 v6, 3, v3")
    a("v_add_u32 v12, s35, v6")
    a("v_cmp_eq_u32 vcc, 0, v4")
    a("s_and_saveexec_b64 s[36:37], vcc")
    for rg in range(4):
        a("ds_write_b64 v12, %s offset:%d" % (vr(SS[rg], 2), RST + 64 * rg))
    a("s_mov_b64 exec, s[36:37]")
    a("s_lshl_b32 s36, s21, 8")
    a("s_or_b32 s36, s36, s23")
    a("s_cmp_lg_u32 s36, 256")
    a("s_cbranch_scc1 %s_nost1" % name)
    a("s_lshl_b32 s35, s22, 7")
    a("s_lshl_b32 s36, s3, 5")
    a("s_add_u32 s35, s35, s36")
    a("s_lshl_b32 s35, s35, 3")
    a("s_add_u32 s35, s35, 0x%x" % STATS1)
    a("v_mov_b32 v7, 0x7ffffff0")
    a("v_cndmask_b32 v6, v7, v6, vcc")
    for rg in range(4):
        a("buffer_store_dwordx2 %s, v6, s[12:15], s35 offen offset:%d" % (vr(ML + 2 * rg, 2), 64 * rg))
    a.label("%s_nost1" % name)
    a("v_lshrrev_b32 v12, 4, v2")
    a("v_lshlrev_b32 v12, 4, v12")
    a("v_add_u32 v12, s40, v12")
    a("v_and_b32 v13, 15, v2")
    a("v_cmp_eq_u32 vcc, 0, v13")
    a("s_and_saveexec_b64 s[36:37], vcc")
    for q in range(5):
        a("ds_write_b128 v12, %s offset:%d" % (vr(CA + 4 * q), CSO + 64 * q))
    a("s_mov_b64 exec, s[36:37]")
    a("s_waitcnt lgkmcnt(0)")
    a("s_barrier")
    a("s_setprio 0")
    ACC = 112
    a("s_lshr_b32 s24, s3, 1")
    a("s_and_b32 s25, s3, 1")
    a("v_and_b32 v3, 15, v2")
    a("s_lshl_b32 s23, s23, 1")
    a("s_add_u32 s23, s23, 1")
    a("s_mov_b32 s40, 576")
    a("s_mul_i32 s36, s3, 18432")
    a("s_add_u32 s36, s36, %d" % TB0)
    a("v_lshlrev_b32 v10, 4, v2")
    a("v_add_u32 v11, s36, v10")
    a("s_barrier")
    for n in range(18):
        a("ds_read_b128 %s, v11 offset:%d" % (vr(ACC + 4 * n), 1024 * n))
        if n in (7, 13): a("s_waitcnt lgkmcnt(4)")
    a("s_branch %s_epi" % name)

    def gran_addr():
        a("v_lshrrev_b32 v10, 4, v2")
        a("s_lshl_b32 s33, s25, 1")
        a("v_add_u32 v11, s33, v10")
        a("v_and_b32 v11, 3, v11")
        a("v_lshl_add_u32 v11, v11, 4, v3")
        a("v_lshlrev_b32 v94, 8, v11")
        a("s_lshl_b32 s59, s22, 7")
        a("s_lshl_b32 s36, s24, 6")
        a("s_add_u32 s59, s59, s36")
        a("s_lshl_b32 s59, s59, 8")
        a("s_add_u32 s59, s59, 0x%x" % STATS2)
        a("s_lshl_b32 s36, s23, 1")
        a("s_add_u32 s36, s36, s25")
        a("s_lshl_b32 s36, s36, 3")
        a("s_add_u32 s58, s36, s59")
    a.label("%s_consumer" % name)
    a("s_load_dwordx4 s[64:67], s[0:1], 8")
    a("s_load_dwordx2 s[76:77], s[0:1], 24")
    a("s_load_dwordx2 s[100:101], s[0:1], 80")
    a("s_load_dwordx2 s[90:91], s[0:1], 64")
    a("s_lshr_b32 s24, s3, 1")
    a("s_and_b32 s25, s3, 1")
    a("v_and_b32 v3, 15, v2")
    other_setup()
    srd(a, 28, 80, 2048 * 576 * 2)
    srd(a, 8, 4, 576 * 4608 * 2)
    if "nopf" not in DBG:
        a("s_and_b32 s36, s22, 7")
        a("s_mul_i32 s36, s36, 72")
        a("s_mul_i32 s37, s3, 18")
        a("s_add_u32 s36, s36, s37")
        a("s_mul_i32 s36, s36, 9216")
        a("s_mul_i32 s37, s23, 576")
        a("s_add_u32 s36, s36, s37")
        a("s_cmp_eq_u32 s21, 0")
        a("s_cselect_b32 s37, 4608, 0")
        a("s_add_u32 s36, s36, s37")
        a("s_and_b32 s36, s36, 0xffffff80")
        for n in range(2):
            a("v_add_u32 v10, %d, v2" % (64 * n))
            a("v_mul_u32_u24 v11, 13108, v10")
            a("v_lshrrev_b32 v11, 16, v11")
            a("v_mul_u32_u24 v12, 5, v11")
            a("v_sub_u32 v12, v10, v12")
            a("v_mul_u32_u24 v11, 9216, v11")
            a("v_lshl_add_u32 v11, v12, 7, v11")
            if n:
                a("v_cmp_gt_u32 vcc, 90, v10")
                a("v_mov_b32 v12, 0x7ffffff0")
                a("s_nop 0")
                a("v_cndmask_b32 v11, v12, v11, vcc")
            a("buffer_load_dword v96, v11, s[8:11], s36 offen")
        a("s_lshr_b32 s36, s2, 6")
        a("s_lshl_b32 s36, s36, 5")
        a("s_lshl_b32 s37, s22, 7")
        a("s_add_u32 s36, s36, s37")
        a("s_mul_i32 s36, s36, 1152")
        a("s_mul_i32 s37, s3, 9216")
        a("s_add_u32 s36, s36, s37")
        a("v_lshlrev_b32 v11, 7, v2")
        a("buffer_load_dword v96, v11, s[28:31], s36 offen")
        a("v_and_b32 v11, 7, v2")
        a("v_lshlrev_b32 v11, 7, v11")
        a("s_add_u32 s36, s36, 8192")
        a("buffer_load_dword v96, v11, s[28:31], s36 offen")
    prep_srds()
    srd(a, 92, 90, 2048 * 2048 * 2)
    stamp_setup(a, 1); stamp(a, 0)
    a("s_lshl_b32 s23, s23, 1")
    a("s_cmp_lg_u32 s21, 0")
    a("s_cbranch_scc1 %s_noclr" % name)
    gran_addr()
    a("v_mov_b32 v12, 0"); a("v_mov_b32 v13, 0x80000000")
    a("buffer_store_dwordx2 v[12:13], v94, s[12:15], s58 offen sc1")
    a("buffer_store_dwordx2 v[12:13], v94, s[12:15], s58 offen offset:16 sc1")
    a.label("%s_noclr" % name)
    TB = [16, 32]; FR = 48
    vTa, vTb, vP = 4, 5, [6, 7]; vH = [8, 9]
    bTa = [88, 89]; bTb = [90, 91]; bP = [92, 93]; bH = [100, 101]
    PF = 96
    a("v_lshrrev_b32 v10, 4, v2")
    a("v_lshrrev_b32 v11, 1, v3")
    a("v_xor_b32 v10, v10, v11")
    a("v_lshlrev_b32 v10, 4, v10")
    a("v_lshl_add_u32 v10, v3, 7, v10")
    a("s_lshl_b32 s26, s24, 13")
    a("s_add_u32 s26, s26, %d" % TB0)
    a("v_add_u32 v10, s26, v10")
    a("s_lshl_b32 s26, s25, 12")
    a("v_add_u32 v%d, s26, v10" % bTa[0])
    a("s_xor_b32 s26, s26, 4096")
    a("v_add_u32 v%d, s26, v10" % bTb[0])
    a("v_xor_b32 v%d, 64, v%d" % (bTa[1], bTa[0]))
    a("v_xor_b32 v%d, 64, v%d" % (bTb[1], bTb[0]))
    a("v_lshrrev_b32 v10, 2, v2")
    a("v_mul_u32_u24 v10, %d, v10" % FS)
    a("v_and_b32 v11, 3, v2")
    a("v_lshl_add_u32 v10, v11, 3, v10")
    a("v_add_u32 v10, %d, v10" % FB_)
    a("v_bfe_u32 v13, v2, 4, 1")
    a("v_lshlrev_b32 v13, 5, v13")
    a("v_add_u32 v%d, v10, v13" % bH[0])
    a("v_sub_u32 v%d, v10, v13" % bH[1])
    a("s_mul_i32 s26, s25, 160")
    a("s_cmp_eq_u32 s25, 0")
    a("s_cselect_b64 vcc, -1, 0")
    a("v_cndmask_b32 v11, v%d, v%d, vcc" % (bH[1], bH[0]))
    a("v_cndmask_b32 v12, v%d, v%d, vcc" % (bH[0], bH[1]))
    a("v_add_u32 v%d, s26, v11" % bP[0])
    a("v_add_u32 v%d, s26, v12" % bP[1])
    a("v_lshrrev_b32 v10, 4, v2")
    a("v_lshlrev_b32 v10, 12, v10")
    a("v_lshl_add_u32 v95, v3, 4, v10")
    a("s_lshl_b32 s41, s22, 7")
    a("s_lshl_b32 s36, s3, 5")
    a("s_add_u32 s41, s41, s36")
    a("s_lshl_b32 s41, s41, 12")
    a("s_add_u32 s36, s23, s21")
    a("s_lshl_b32 s36, s36, 8")
    a("s_add_u32 s41, s41, s36")
    for r in range(ACC, ACC + 144): a("v_mov_b32 v%d, 0" % r)
    def accr(z, ft, tt): return ACC + 72 * z + 4 * tidx(ft, tt)
    def Fr(z, ft): return FR + 20 * z + 4 * ft
    trk = LdsTracker(a)
    def treads(buf):
        L = []
        for tt in range(4):
            r = TB[buf] + 4 * tt
            L.append(("ds_read_b128 %s, v%d offset:%d" % (vr(r), vTa if tt < 2 else vTb, (tt & 1) * 2048), range(r, r + 4)))
        return L
    def freads(z, ft):
        r = Fr(z, ft); L = []
        for half in range(2):
            off = 16 * half * FS + 32 * (9 * z + ft)
            v = vP[(z + ft) & 1] if ft < 4 else vH[z]
            L.append(("ds_read_b64_tr_b16 %s, v%d offset:%d" % (vr(r + 2 * half, 2), v, off), range(r + 2 * half, r + 2 * half + 2)))
        return L
    def rd(t):
        a(t[0]); trk.issue(t[1])
    fpairs = ((vP[0], bP[0]), (vP[1], bP[1]), (vH[0], bH[0]), (vH[1], bH[1]))
    a("v_mov_b32 v%d, v%d" % (vTa, bTa[0])); a("v_mov_b32 v%d, v%d" % (vTb, bTb[0]))
    for d, s_ in fpairs: a("v_mov_b32 v%d, v%d" % (d, s_))
    a("s_mov_b32 s27, 0")
    a("s_mov_b32 s34, 0")
    a("s_mov_b32 s33, 0")
    stamp(a, 1)
    a("s_barrier")
    stamp(a, 2)
    for t in treads(0): rd(t)
    for z in range(2):
        for ft in range(5):
            for t in freads(z, ft): rd(t)
            if len(trk.out) >= 12: trk.drain()
    trk.drain()
    def iteration(par):
        a("s_barrier")
        upd = []
        if par == 1:
            upd += ["s_add_u32 s27, s27, %d" % TS, "s_cmp_eq_u32 s27, %d" % (NT * TS), "s_cselect_b32 s27, 0, s27"]
        upd += ["v_add_u32 v%d, s27, v%d" % (vTa, bTa[1 - par]), "v_add_u32 v%d, s27, v%d" % (vTb, bTb[1 - par])]
        upd += ["s_add_u32 s34, s34, %d" % FSL, "s_cmp_eq_u32 s34, %d" % (NF * FSL), "s_cselect_b32 s34, 0, s34"]
        upd += ["v_add_u32 v%d, s34, v%d" % (d, s_) for d, s_ in fpairs]
        pend = [("x", u) for u in upd] + [("r", t) for t in treads(1 - par)]
        if par == 0:
            pend.append(("x", "buffer_load_dwordx4 %s, v95, s[92:95], s41 offen" % vr(PF)))
            pend.append(("x", "s_add_u32 s41, s41, 16384"))
        else:
            pend.append(("x", "s_add_u32 s33, s33, 1"))
        nm = 0
        for z in range(2):
            for ft in range(5):
                for tt in range(4 if ft < 4 else 2):
                    c = accr(z, ft, tt); A = Fr(z, ft); B = TB[par] + 4 * tt
                    trk.need(list(range(A, A + 4)) + list(range(B, B + 4)))
                    if "nomfma" not in DBG: a("v_mfma_f32_16x16x32_bf16 %s, %s, %s, %s" % (vr(c), vr(A), vr(B), vr(c)))
                    nfill = 1
                    while pend and nfill:
                        k, t = pend.pop(0)
                        if k == "x":
                            a(t)
                            if t.startswith("s_") and nm < 8: continue
                        else: rd(t)
                        nfill -= 1
                    nm += 1
                pend += [("r", t) for t in freads(z, ft)]
        for k, t in pend:
            if k == "x": a(t)
            else: rd(t)
        a("s_waitcnt lgkmcnt(15)")
        if len(trk.out) > 15: trk.out = trk.out[-15:]
    a.label("%s_cloop" % name)
    trk.out = []
    lb = len(a.lines)
    iteration(0); iteration(1)
    state = copy.deepcopy(trk.out)
    del a.lines[lb:]
    trk.out = copy.deepcopy(state)
    iteration(0); iteration(1)
    assert [sorted(x) for x in trk.out] == [sorted(x) for x in state]
    a("s_cmp_lt_u32 s33, %d" % (NK // 2))
    a("s_cbranch_scc1 %s_cloop" % name)
    trk.drain()
    stamp(a, 3)
    a("s_waitcnt vmcnt(0)")
    a("s_barrier")
    a("s_or_b32 s36, s3, s21")
    a("s_cmp_lg_u32 s36, 0")
    a("s_cbranch_scc1 %s_nosig" % name)
    a("v_mov_b32 v10, 1")
    a("s_lshl_b32 s36, s22, 2")
    a("v_mov_b32 v11, s36")
    a("s_mov_b64 exec, 1")
    a("buffer_atomic_add v10, v11, s[60:63], 0 offen sc1")
    a("s_mov_b64 exec, -1")
    a.label("%s_nosig" % name)
    a("s_mul_i32 s36, s3, 18432")
    a("s_add_u32 s36, s36, %d" % TB0)
    a("v_lshlrev_b32 v10, 4, v2")
    a("v_add_u32 v11, s36, v10")
    for n, (ft, tt) in enumerate(TILES):
        a("ds_write_b128 v11, %s offset:%d" % (vr(accr(1, ft, tt)), 1024 * tidx(ft, tt)))
        if n in (7, 13): a("s_waitcnt lgkmcnt(4)")
    a("s_mov_b32 s40, 0")
    a("s_waitcnt lgkmcnt(0)")
    a("s_barrier")
    a.label("%s_epi" % name)
    MR = 100; CS = 52; ZP = 16; T = 72
    gelu_consts(a)
    a("s_lshl_b32 s36, s24, 9")
    a("s_lshl_b32 s37, s25, 8")
    a("s_add_u32 s38, s36, s37")
    a("s_xor_b32 s37, s37, 256")
    a("s_add_u32 s39, s36, s37")
    a("v_lshlrev_b32 v10, 3, v3")
    a("v_add_u32 v11, s38, v10")
    a("ds_read_b64 %s, v11 offset:%d" % (vr(MR, 2), RST))
    a("ds_read_b64 %s, v11 offset:%d" % (vr(MR + 2, 2), RST + 128))
    a("v_add_u32 v11, s39, v10")
    a("ds_read_b64 %s, v11 offset:%d" % (vr(MR + 4, 2), RST))
    a("ds_read_b64 %s, v11 offset:%d" % (vr(MR + 6, 2), RST + 128))
    a("v_lshrrev_b32 v10, 4, v2")
    a("v_lshlrev_b32 v10, 4, v10")
    a("v_add_u32 v10, s40, v10")
    a("s_mul_i32 s36, s25, 320")
    a("v_add_u32 v11, s36, v10")
    a("s_waitcnt lgkmcnt(6)")
    for ft in range(4):
        a("ds_read_b128 %s, v11 offset:%d" % (vr(CS + 4 * ft), CSO + 64 * ft))
    a("ds_read_b128 %s, v10 offset:%d" % (vr(CS + 16), CSO + 256))
    S = [108, 110, 8, 12]; Q = [109, 111, 9, 13]
    for tt in range(4):
        a("v_mov_b32 v%d, 0" % S[tt]); a("v_mov_b32 v%d, 0" % Q[tt])
    a("v_mov_b32 v88, 0x3f803f80")
    a("s_waitcnt lgkmcnt(0)")
    for ft in range(5):
        if ft == 3:
            seg_end(a, name)
            a.label("%s_seg1" % name)
        tts = range(4 if ft < 4 else 2)
        items = [(ACC + 4 * tidx(ft, tt), CS + 4 * ft, MR + 2 * tt, ZP + 2 * tidx(ft, tt)) for tt in tts]
        emit_fold_gelu(a, items, T)
        for d in range(2):
            for tt in tts:
                p = ZP + 2 * tidx(ft, tt) + d
                a("v_dot2_f32_bf16 v%d, v%d, v88, v%d" % (S[tt], p, S[tt]))
                a("v_dot2_f32_bf16 v%d, v%d, v%d, v%d" % (Q[tt], p, p, Q[tt]))
    a("s_cmp_eq_u32 s21, 0")
    a("s_cbranch_scc1 %s_z2" % name)
    a("s_lshl_b32 s36, s22, 4")
    a("s_add_u32 s36, s36, s23")
    a("s_lshl_b32 s36, s36, 2")
    a("s_add_u32 s36, s36, s3")
    a("s_mul_i32 s36, s36, 9216")
    a("s_add_u32 s36, s36, 0x%x" % Z1IMG)
    a("v_lshlrev_b32 v10, 4, v2")
    for q in range(9):
        if q in (4, 8): a("s_add_u32 s36, s36, 4096")
        a("buffer_store_dwordx4 %s, v10, s[12:15], s36 offen offset:%d" % (vr(ZP + 4 * q), (q & 3) * 1024))
    a("s_branch %s_conv" % name)
    a.label("%s_z2" % name)
    a("s_nop 1")
    emit_xg_reduce(a, S + Q, 72)
    gran_addr()
    for g in range(1, 4):
        a("v_cmp_eq_u32 vcc, %d, v10" % g)
        a("s_nop 1")
        a("v_cndmask_b32 v%d, v%d, v%d, vcc" % (S[0], S[0], S[g]))
        a("v_cndmask_b32 v%d, v%d, v%d, vcc" % (Q[0], Q[0], Q[g]))
    a("v_and_b32 v%d, 0x7fffffff, v%d" % (Q[0], Q[0]))
    a("buffer_store_dwordx2 v[%d:%d], v94, s[12:15], s58 offen sc1" % (S[0], Q[0]))
    a.label("%s_conv" % name)
    seg_end(a, name)
    a.label("%s_seg2" % name)
    stamp(a, 4)
    for r_ in range(36):
        a("v_mov_b32 v%d, v%d" % (200 + r_, ZP + r_))
    a("s_lshl_b32 s42, s22, 4")
    a("s_add_u32 s42, s42, s23")
    a("s_lshl_b32 s36, s21, 8")
    a("s_add_u32 s42, s42, s36")
    a("v_and_b32 v0, 255, v0")
    G2.emit_prep2(a, name)
    stamp(a, 5)
    a("s_cmp_lg_u32 s21, 0")
    a("s_cbranch_scc1 %s_fin" % name)
    a("v_and_b32 v3, 15, v2")
    ZP = 200
    a("s_lshl_b32 s33, s22, 2")
    a("v_mov_b32 v9, s33")
    a("s_mov_b32 s40, 0")
    a("v_lshlrev_b32 v11, 4, v3")
    a.label("%s_poll2" % name)
    a("buffer_load_dword v12, v9, s[60:63], 0 offen sc1")
    a("s_waitcnt vmcnt(0)")
    a("buffer_load_dwordx4 v[112:115], v11, s[12:15], s59 offen sc1")
    a("s_add_u32 s40, s40, 1")
    a("v_subrev_u32 v12, 8, v12")
    a("s_waitcnt vmcnt(0)")
    a("v_or3_b32 v12, v12, v113, v115")
    a("v_cmp_gt_i32 vcc, 0, v12")
    a("s_cmp_gt_u32 s40, %d" % SPIN_MAX)
    a("s_cbranch_scc1 %s_poll2x" % name)
    a("s_cbranch_vccz %s_poll2x" % name)
    a("s_sleep 10")
    a("s_branch %s_poll2" % name)
    a.label("%s_poll2x" % name)
    a("v_lshrrev_b32 v10, 4, v2")
    a("v_lshlrev_b32 v11, 8, v3")
    a("v_lshl_add_u32 v11, v10, 6, v11")
    a("s_lshl_b32 s33, s25, 13")
    a("s_add_u32 s36, s59, s33")
    a("s_xor_b32 s33, s33, 8192")
    a("s_add_u32 s37, s59, s33")
    a("s_add_u32 s38, s36, 4096")
    a("s_add_u32 s39, s37, 4096")
    PB = 112
    a.label("%s_poll1" % name)
    if "inv" in DBG: a("buffer_inv sc1")
    POL = "sc0 sc1" if "sc01" in DBG else "sc1"
    for tt in range(4):
        for q in range(4):
            a("buffer_load_dwordx4 %s, v11, s[12:15], s%d offen offset:%d %s" % (vr(PB + 16 * tt + 4 * q), (36, 38, 37, 39)[tt], 16 * q, POL))
    a("s_waitcnt vmcnt(0)")
    a("v_mov_b32 v12, 0")
    for r in range(PB + 1, PB + 64, 4):
        a("v_or3_b32 v12, v12, v%d, v%d" % (r, r + 2))
    a("v_cmp_gt_i32 vcc, 0, v12")
    a("s_add_u32 s40, s40, 1")
    a("s_cmp_gt_u32 s40, %d" % SPIN_MAX)
    a("s_cbranch_scc1 %s_poll1x" % name)
    a("s_cbranch_vccz %s_poll1x" % name)
    a("s_sleep 20")
    a("s_branch %s_poll1" % name)
    a.label("%s_poll1x" % name)
    stamp(a, 6)
    a.label("%s_seg3" % name)
    for tt in range(4):
        b = PB + 16 * tt
        for st in (8, 4, 2):
            for q in range(0, st, 2):
                a("v_pk_add_f32 %s, %s, %s" % (vr(b + q, 2), vr(b + q, 2), vr(b + q + st, 2)))
    emit_xg_reduce(a, [PB + 16 * tt + e for tt in range(4) for e in range(2)], 72)
    for tt in range(4):
        b = PB + 16 * tt
        emit_ln_finish(a, b, b + 1, 2304, b + 2, MR + 2 * tt, b + 4)
        a("v_mul_f32 v%d, -v%d, v%d" % (MR + 2 * tt + 1, b + 2, MR + 2 * tt))
    a("v_lshrrev_b32 v11, 2, v2"); a("v_and_b32 v11, 1, v11"); a("v_lshlrev_b32 v11, 4, v11")
    a("v_lshrrev_b32 v12, 3, v2"); a("v_and_b32 v12, 1, v12"); a("v_lshl_add_u32 v11, v12, 2, v11")
    a("v_and_b32 v12, 3, v2"); a("v_add_u32 v11, v11, v12")
    a("v_mul_u32_u24 v11, 288, v11")
    a("v_lshrrev_b32 v12, 1, v10"); a("v_lshl_add_u32 v11, v12, 4, v11")
    a("v_and_b32 v12, 1, v10")
    a("v_lshl_add_u32 v13, v12, 5, v11")
    a("v_mul_u32_u24 v12, 2304, v12")
    a("v_add_u32 v9, v11, v12")
    a("s_lshl_b32 s33, s23, 5")
    a("s_lshl_b32 s36, s22, 1")
    a("s_add_u32 s33, s33, s36")
    a("s_add_u32 s33, s33, s24")
    a("s_mul_i32 s33, s33, 18432")
    if ZIMG: a("s_add_u32 s33, s33, 0x%x" % ZIMG)
    a("s_mul_i32 s36, s25, 9216")
    a("s_add_u32 s37, s33, s36")
    a("s_xor_b32 s36, s36, 9216")
    a("s_add_u32 s38, s33, s36")
    a("s_add_u32 s39, s37, 128")
    a("s_mul_i32 s36, s25, 160")
    a("s_add_u32 s37, s37, s36")
    a("s_add_u32 s38, s38, s36")
    def norm_pair(nA, ttA, nB, ttB, O):
        for q, (n, tt) in enumerate(((nA, ttA), (nB, ttB))):
            for d in range(2):
                z = ZP + 2 * n + d; t = T + 4 * q + 2 * d
                a("v_lshlrev_b32 v%d, 16, v%d" % (t, z))
                a("v_and_b32 v%d, 0xffff0000, v%d" % (t + 1, z))
        for q, (n, tt) in enumerate(((nA, ttA), (nB, ttB))):
            for d in range(2):
                t = T + 4 * q + 2 * d
                a("v_pk_fma_f32 %s, %s, %s, %s op_sel:[0,0,1] op_sel_hi:[1,0,1]" % (vr(t, 2), vr(t, 2), vr(MR + 2 * tt, 2), vr(MR + 2 * tt, 2)))
        for q in range(2):
            for d in range(2):
                t = T + 4 * q + 2 * d
                a("v_cvt_pk_bf16_f32 v%d, v%d, v%d" % (O + 2 * q + d, t, t + 1))
        a("s_nop 1")
        a("v_permlane16_swap_b32 v%d, v%d" % (O, O + 2))
        a("v_permlane16_swap_b32 v%d, v%d" % (O + 1, O + 3))
    cnt = 0
    for pr in range(2):
        for tt in range(4):
            O = 112 + 4 * cnt; cnt += 1
            norm_pair(tidx(2 * pr, tt), tt, tidx(2 * pr + 1, tt), tt, O)
            a("s_nop 0")
            a("buffer_store_dwordx4 %s, v13, s[12:15], s%d offen offset:%d" % (vr(O), 37 if tt < 2 else 38, (tt & 1) * 2304 + 64 * pr))
    O = 112 + 4 * cnt
    norm_pair(16, 0, 17, 1, O)
    a("s_nop 0")
    a("buffer_store_dwordx4 %s, v9, s[12:15], s39 offen" % vr(O))
    seg_end(a, name)
    a.label("%s_fin" % name)
    stamp(a, 7)
    a("s_waitcnt vmcnt(0)")
    stamp(a, 8)
    a.label("%s_end" % name)
    a("s_endpgm")
    return a.text(), kernel_desc(name, 256, 256), (name, 256, 512, LDSB)

def gen_k1g(name="k1_kernel"):
    a = Asm()
    DBG.add('nowarm')
    TS = 16384; NT = 3; TB0 = 4096; FB_ = TB0 + NT * TS; FSL = 18432; NF = 6; FS = 576; NK = 18
    LDSB = FB_ + NF * FSL; RST = 0; CSO = 1024; CJB = TB0 + 4 * 18432
    kernel_begin(a, name)
    a("s_load_dwordx2 s[80:81], s[0:1], 0")
    a("s_load_dwordx2 s[4:5], s[0:1], 56")
    a("s_cmp_ge_u32 s2, 256")
    a("s_cbranch_scc1 %s_end" % name)
    a("v_lshrrev_b32 v1, 6, v0")
    a("v_and_b32 v2, 63, v0")
    a("v_readfirstlane_b32 s3, v1")
    a("s_and_b32 s20, s2, 7")
    a("s_lshr_b32 s21, s2, 3")
    a("s_and_b32 s22, s20, 1")
    a("s_lshl_b32 s22, s22, 3")
    a("s_and_b32 s23, s21, 7")
    a("s_add_u32 s22, s22, s23")
    a("s_lshr_b32 s21, s21, 3")
    a("s_lshr_b32 s23, s20, 1")
    a("s_lshl_b32 s23, s23, 2")
    a("s_add_u32 s23, s23, s21")
    a("s_mov_b32 s99, 0")
    a("s_mov_b64 s[96:97], -1")
    a("s_cmp_lt_u32 s3, 4")
    a("s_cbranch_scc1 %s_consumer" % name)
    a("s_setprio 3")
    a("s_sub_u32 s3, s3, 4")
    a("v_lshrrev_b32 v3, 3, v2")
    a("v_and_b32 v4, 7, v2")
    VT = 16; VF = 20
    a("s_lshl_b32 s24, s3, 5")
    a("v_add_u32 v5, s24, v3")
    a("v_lshrrev_b32 v7, 4, v2")
    a("v_xor_b32 v7, v7, v4")
    a("v_mul_u32_u24 v6, 1152, v5")
    a("v_lshl_add_u32 v%d, v7, 4, v6" % VT)
    a("v_xor_b32 v%d, 64, v%d" % (VT + 1, VT))
    a("v_add_u32 v%d, %d, v%d" % (VT + 1, 9216 - 1024, VT + 1))
    a("v_add_u32 v%d, %d, v%d" % (VT + 2, 2 * (9216 - 1024), VT))
    a("v_add_u32 v%d, %d, v%d" % (VT + 3, 2 * (9216 - 1024), VT + 1))
    a("s_mul_i32 s26, s22, %d" % (128 * 1152))
    a("s_lshl_b32 s24, s3, 12")
    a("s_add_u32 s24, s24, %d" % TB0)
    a("s_mov_b32 s33, 0")
    a("s_waitcnt lgkmcnt(0)")
    srd(a, 28, 80, 2048 * 576 * 2)
    vm = VmTracker(a)
    def capture(f, *args):
        lb = len(a.lines); f(*args); out = a.lines[lb:]; del a.lines[lb:]; return out
    def issueT(m, part=None):
        a("s_add_u32 s35, s33, s24")
        a("s_mov_b32 m0, s35")
        if part != 0: a("s_add_u32 s33, s33, %d" % TS)
        else: a("s_nop 0")
        ns = range(4) if part is None else range(2 * part, 2 * part + 2)
        for n in ns:
            if "nodma" not in DBG: a("buffer_load_dwordx4 v%d, s[28:31], s26 offen offset:%d lds" % (VT + n, 1024 * n))
        if part != 0:
            a("s_add_u32 s26, s26, 128")
            a("s_cmp_eq_u32 s33, %d" % (NT * TS))
            a("s_cselect_b32 s33, 0, s33")
        vm.issue("T%d" % m if part != 0 else "Ta%d" % m, len(ns))
    issueT(0)
    srd(a, 8, 4, 576 * 4608 * 2)
    for n in range(5):
        if n: a("v_add_u32 v6, %d, v2" % (64 * n))
        src = "v6" if n else "v2"
        a("v_mul_u32_u24 v7, 1821, %s" % src)
        a("v_lshrrev_b32 v7, 16, v7")
        a("v_mul_u32_u24 v8, 36, v7")
        a("v_sub_u32 v8, %s, v8" % src)
        a("v_bfe_u32 v9, v7, 2, 1")
        a("v_lshlrev_b32 v6, 1, v9")
        a("v_xor_b32 v8, v8, v6")
        a("v_and_b32 v7, 3, v7")
        a("v_lshl_add_u32 v7, v9, 3, v7")
        a("v_mul_u32_u24 v7, 9216, v7")
        a("v_cmp_gt_u32 vcc, 18, v8")
        a("v_lshl_add_u32 v7, v8, 4, v7")
        a("v_mov_b32 v9, 4608")
        a("v_cndmask_b32 v9, -288, v9, vcc") if False else None
        a("v_mov_b32 v6, 0xfffffee0")
        a("v_cndmask_b32 v9, v6, v9, vcc")
        a("v_add_u32 v%d, v7, v9" % (VF + n))
        if 0 < n < 4: a("v_subrev_u32 v%d, %d, v%d" % (VF + n, 1024 * n, VF + n))
    a("s_and_b32 s36, s3, 1")
    a("s_lshl_b32 s36, s36, 4")
    a("s_lshr_b32 s37, s3, 1")
    a("s_lshl_b32 s37, s37, 2")
    a("s_add_u32 s36, s36, s37")
    a("s_mul_i32 s27, s36, 9216")
    a("s_mul_i32 s36, s23, 288")
    a("s_add_u32 s27, s27, s36")
    a("s_mul_i32 s25, s3, 4608")
    a("s_add_u32 s25, s25, %d" % FB_)
    a("s_mov_b32 s34, 0")
    def issueF(k):
        a("s_add_u32 s35, s34, s25")
        a("s_mov_b32 m0, s35")
        a("s_add_u32 s36, s35, 4096")
        for n in range(4):
            if "nodma" not in DBG: a("buffer_load_dwordx4 v%d, s[8:11], s27 offen offset:%d lds" % (VF + n, 1024 * n))
        a("s_mov_b32 m0, s36")
        a("s_mov_b64 exec, 0xffffffff")
        if "nodma" not in DBG: a("buffer_load_dwordx4 v%d, s[8:11], s27 offen lds" % (VF + 4))
        a("s_mov_b64 exec, -1")
        a("s_add_u32 s27, s27, %d" % (32 * 9216))
        a("s_add_u32 s34, s34, %d" % FSL)
        a("s_cmp_eq_u32 s34, %d" % (NF * FSL))
        a("s_cselect_b32 s34, 0, s34")
        vm.issue("F%d" % k, 5)
    issueF(0); issueF(1)
    def other_setup():
        a("s_load_dwordx2 s[6:7], s[0:1], 104")
        a("s_load_dwordx2 s[18:19], s[0:1], 96")
        a("s_waitcnt lgkmcnt(0)")
        srd(a, 12, 6, WS_BYTES)
        srd(a, 60, 18, 256)
    def prep_srds():
        srd(a, 68, 66, 2048 * 576 * 2)
        a("s_mov_b32 s88, s64"); a("s_mov_b32 s89, s65")
        srd(a, 64, 88, 2048 * 576 * 2)
        srd(a, 72, 76, 576 * 8)
        srd(a, 76, 100, 2304 * 576 * 2)
    other_setup()
    a("s_add_u32 s3, s3, 4"); stamp_setup(a, 1); stamp(a, 0); a("s_sub_u32 s3, s3, 4")
    a("s_load_dwordx4 s[64:67], s[0:1], 8")
    a("s_load_dwordx2 s[76:77], s[0:1], 24")
    a("s_load_dwordx2 s[100:101], s[0:1], 80")
    a("s_waitcnt lgkmcnt(0)")
    prep_srds()
    SS = [28, 30, 32, 34]; ONE = 36
    for r in range(28, 36): a("v_mov_b32 v%d, 0" % r)
    for r in range(ONE, ONE + 4): a("v_mov_b32 v%d, 0x3f803f80" % r)
    CA = 40
    for r in range(CA, CA + 20): a("v_mov_b32 v%d, 0" % r)
    XB = 64; CF = 80
    a("v_and_b32 v5, 15, v2")
    a("v_lshrrev_b32 v6, 4, v2")
    a("v_lshrrev_b32 v7, 1, v5")
    a("v_xor_b32 v6, v6, v7")
    a("v_lshlrev_b32 v6, 4, v6")
    a("v_lshl_add_u32 v6, v5, 7, v6")
    a("v_add_u32 v10, s24, v6")
    a("v_xor_b32 v26, 64, v10")
    RA = 112
    for r in range(RA, RA + 16): a("v_mov_b32 v%d, 0" % r)
    a("v_lshrrev_b32 v11, 2, v2")
    a("v_mul_u32_u24 v11, %d, v11" % FS)
    a("v_and_b32 v12, 3, v2")
    a("v_lshl_add_u32 v11, v12, 3, v11")
    a("v_bfe_u32 v13, v2, 4, 1")
    a("v_lshlrev_b32 v13, 5, v13")
    a("s_lshr_b32 s36, s3, 1")
    a("s_mul_i32 s37, s36, 9")
    a("s_and_b32 s38, s3, 1")
    a("s_lshl_b32 s38, s38, 2")
    a("s_add_u32 s37, s37, s38")
    a("s_lshl_b32 s40, s37, 6")
    a("s_lshl_b32 s37, s37, 5")
    a("s_add_u32 s37, s37, %d" % FB_)
    a("v_add_u32 v11, s37, v11")
    a("v_add_u32 v5, v11, v13")
    a("v_sub_u32 v6, v11, v13")
    a("s_cmp_eq_u32 s36, 0")
    a("s_cselect_b64 vcc, -1, 0")
    a("v_cndmask_b32 v11, v6, v5, vcc")
    a("v_cndmask_b32 v12, v5, v6, vcc")
    def rowstats_rd(ks):
        a("v_add_u32 v5, %d, v%d" % (((ks // 2) % NT) * TS, 26 if ks & 1 else 10))
        for n in range(2):
            a("ds_read_b128 %s, v5 offset:%d" % (vr(XB + 4 * n), 2048 * n))
    def rowstats_do():
        for n in range(2):
            a("v_mfma_f32_16x16x32_bf16 %s, %s, %s, %s" % (vr(RA + 4 * n), vr(ONE), vr(XB + 4 * n), vr(RA + 4 * n)))
            a("v_mfma_f32_16x16x32_bf16 %s, %s, %s, %s" % (vr(RA + 8 + 4 * n), vr(XB + 4 * n), vr(XB + 4 * n), vr(RA + 8 + 4 * n)))
    def colsum_rd(k):
        if "nocs" in DBG: return
        a("v_add_u32 v6, %d, v11" % ((k % NF) * FSL))
        a("v_add_u32 v7, %d, v12" % ((k % NF) * FSL))
        for q in range(5):
            for half in range(2):
                a("ds_read_b64_tr_b16 %s, v%d offset:%d" % (vr(CF + 4 * q + 2 * half, 2), 6 + (q & 1), 16 * half * FS + 32 * q))
    def colsum_do():
        if "nocs" in DBG: return
        for q in range(5):
            a("v_mfma_f32_16x16x32_bf16 %s, %s, %s, %s" % (vr(CA + 4 * q), vr(CF + 4 * q), vr(ONE), vr(CA + 4 * q)))
    vm.wait(["T0", "F0"])
    a("s_barrier")
    stamp(a, 1)
    colsum_rd(0); rowstats_rd(0)
    issueT(1); issueF(2); issueF(3)
    vm.wait(["F1"])
    a("s_barrier")
    for k in range(NK):
        dma = []
        if k == 0:
            dma += capture(issueF, 4) + capture(issueT, 2) + capture(issueF, 5)
        if k >= 1 and k + 5 < NK: dma += capture(issueF, k + 5)
        if k % 2 == 1 and (k - 1) // 2 + 3 < 9: dma += capture(issueT, (k - 1) // 2 + 3, 0)
        if k % 2 == 0 and k >= 2 and (k - 2) // 2 + 3 < 9: dma += capture(issueT, (k - 2) // 2 + 3, 1)
        comp = capture(colsum_do) + capture(rowstats_do)
        groups = []; cur = []
        for l in dma:
            cur.append(l)
            if "buffer_load" in l and "exec" not in "".join(cur[-2:-1]):
                groups.append(cur); cur = []
        if cur: groups.append(cur)
        nslots = max(1, len(groups) - 1)
        per = (len(comp) + nslots - 1) // nslots if comp else 0
        waited = False
        for gi, g in enumerate(groups):
            a.lines.extend(g)
            if comp and not any("exec, 0xffffffff" in x for x in g[-2:]):
                if not waited:
                    a("s_waitcnt lgkmcnt(0)"); waited = True
                a.lines.extend(comp[:per]); comp = comp[per:]
        if not waited: a("s_waitcnt lgkmcnt(0)")
        a.lines.extend(comp)
        if k + 1 < NK:
            colsum_rd(k + 1); rowstats_rd(k + 1)
            if "fine" in DBG:
                G.stamp_seq(a); vm.issue("st", 1)
            vm.wait(["F%d" % (k + 2), "T%d" % ((k + 2) // 2)])
            if "fine" in DBG:
                G.stamp_seq(a); vm.issue("st", 1)
            a("s_barrier")
    a("s_nop 7")
    a("v_and_b32 v5, 15, v2")
    a("v_lshrrev_b32 v6, 4, v2")
    a("v_lshrrev_b32 v7, 2, v5")
    a("v_and_b32 v8, 3, v5")
    for n in range(2):
        G_ = RA + 8 + 4 * n
        for r in range(1, 4):
            a("v_cmp_eq_u32 vcc, %d, v8" % r)
            a("s_nop 1")
            a("v_cndmask_b32 v%d, v%d, v%d, vcc" % (G_, G_, G_ + r))
    ML = 64
    for n in range(2):
        emit_ln_finish(a, RA + 4 * n, RA + 8 + 4 * n, 576, ML + 2 * n, ML + 2 * n + 1, 76)
        a("v_mov_b32 v%d, v%d" % (29 + 2 * n, ML + 2 * n + 1))
        a("v_sub_f32 v%d, 0, v%d" % (28 + 2 * n, ML + 2 * n))
    a("s_lshl_b32 s35, s3, 8")
    a("v_lshlrev_b32 v9, 3, v5")
    a("v_add_u32 v12, s35, v9")
    a("v_cmp_eq_u32 vcc, v6, v7")
    a("s_and_saveexec_b64 s[36:37], vcc")
    for n in range(2):
        a("ds_write_b64 v12, %s offset:%d" % (vr(28 + 2 * n, 2), RST + 128 * n))
    a("s_mov_b64 exec, s[36:37]")
    a("s_cmp_lg_u32 s23, 0")
    a("s_cbranch_scc1 %s_nost1" % name)
    a("s_lshl_b32 s35, s22, 7")
    a("s_lshl_b32 s36, s3, 5")
    a("s_add_u32 s35, s35, s36")
    a("s_lshl_b32 s35, s35, 3")
    a("s_add_u32 s35, s35, 0x%x" % STATS1)
    a("v_mov_b32 v7, 0x7ffffff0")
    a("v_cndmask_b32 v9, v7, v9, vcc")
    for n in range(2):
        a("buffer_store_dwordx2 %s, v9, s[12:15], s35 offen offset:%d" % (vr(ML + 2 * n, 2), 128 * n))
    a.label("%s_nost1" % name)
    a("v_lshrrev_b32 v12, 4, v2")
    a("v_lshlrev_b32 v12, 4, v12")
    a("v_add_u32 v12, s40, v12")
    a("v_and_b32 v13, 15, v2")
    a("v_cmp_eq_u32 vcc, 0, v13")
    a("s_and_saveexec_b64 s[36:37], vcc")
    for q in range(5):
        a("ds_write_b128 v12, %s offset:%d" % (vr(CA + 4 * q), CSO + 64 * q))
    a("s_mov_b64 exec, s[36:37]")
    a("s_waitcnt lgkmcnt(0)")
    a("s_barrier")
    ACC = 112
    a("s_lshr_b32 s24, s3, 1")
    a("s_and_b32 s25, s3, 1")
    a("v_and_b32 v3, 15, v2")
    a("s_mov_b32 s98, 1")
    a("s_lshl_b32 s36, s3, 14")
    a("s_add_u32 s36, s36, %d" % TB0)
    a("v_lshlrev_b32 v10, 4, v2")
    a("v_add_u32 v11, s36, v10")
    a("s_barrier")
    n_ = 0
    for z in range(2):
        for ft in range(4):
            for tt in range(2):
                a("ds_read_b128 %s, v11 offset:%d" % (vr(ACC + 72 * z + 4 * tidx(ft, tt)), 1024 * n_))
                n_ += 1
                if n_ in (8, 13): a("s_waitcnt lgkmcnt(4)")
    a("s_branch %s_epi" % name)

    def gran_addr():
        a("v_lshrrev_b32 v10, 4, v2")
        a("s_lshl_b32 s33, s25, 1")
        a("v_add_u32 v11, s33, v10")
        a("v_and_b32 v11, 3, v11")
        a("v_lshl_add_u32 v11, v11, 4, v3")
        a("v_lshlrev_b32 v94, 8, v11")
        a("s_lshl_b32 s59, s22, 7")
        a("s_lshl_b32 s36, s24, 6")
        a("s_add_u32 s59, s59, s36")
        a("s_lshl_b32 s59, s59, 8")
        a("s_add_u32 s59, s59, 0x%x" % STATS2)
        a("s_lshl_b32 s36, s23, 1")
        a("s_add_u32 s36, s36, s25")
        a("s_lshl_b32 s36, s36, 3")
        a("s_add_u32 s58, s36, s59")
    a.label("%s_consumer" % name)
    a("s_load_dwordx4 s[64:67], s[0:1], 8")
    a("s_load_dwordx2 s[76:77], s[0:1], 24")
    a("s_load_dwordx2 s[100:101], s[0:1], 80")
    a("s_lshr_b32 s24, s3, 1")
    a("s_and_b32 s25, s3, 1")
    a("v_and_b32 v3, 15, v2")
    other_setup()
    srd(a, 28, 80, 2048 * 576 * 2)
    srd(a, 8, 4, 576 * 4608 * 2)
    if "nopf" not in DBG:
        a("s_and_b32 s36, s22, 7")
        a("s_mul_i32 s36, s36, 72")
        a("s_mul_i32 s37, s3, 18")
        a("s_add_u32 s36, s36, s37")
        a("s_mul_i32 s36, s36, 9216")
        a("s_mul_i32 s37, s23, 288")
        a("s_add_u32 s36, s36, s37")
        a("s_and_b32 s36, s36, 0xffffff80")
        a("v_lshrrev_b32 v10, 2, v2")
        a("v_mul_u32_u24 v10, 9216, v10")
        a("v_and_b32 v11, 3, v2")
        a("v_lshl_add_u32 v10, v11, 7, v10")
        a("v_and_b32 v12, 7, v2")
        a("v_lshrrev_b32 v12, 2, v12")
        a("v_mul_u32_u24 v12, 9216, v12")
        a("v_lshl_add_u32 v12, v11, 7, v12")
        a("s_add_u32 s37, s36, 4608")
        a("s_add_u32 s38, s36, %d" % (16 * 9216))
        a("s_add_u32 s39, s37, %d" % (16 * 9216))
        a("buffer_load_dword v96, v10, s[8:11], s37 offen")
        a("buffer_load_dword v96, v10, s[8:11], s36 offen")
        a("buffer_load_dword v96, v12, s[8:11], s39 offen")
        a("buffer_load_dword v96, v12, s[8:11], s38 offen")
        a("s_lshr_b32 s36, s2, 6")
        a("s_lshl_b32 s36, s36, 5")
        a("s_lshl_b32 s37, s22, 7")
        a("s_add_u32 s36, s36, s37")
        a("s_mul_i32 s36, s36, 1152")
        a("s_mul_i32 s37, s3, 9216")
        a("s_add_u32 s36, s36, s37")
        a("v_lshlrev_b32 v11, 7, v2")
        a("buffer_load_dword v96, v11, s[28:31], s36 offen")
        a("v_and_b32 v11, 7, v2")
        a("v_lshlrev_b32 v11, 7, v11")
        a("s_add_u32 s36, s36, 8192")
        a("buffer_load_dword v96, v11, s[28:31], s36 offen")
    prep_srds()
    if "nopf2" not in DBG:
        a("s_lshl_b32 s41, s2, 1")
        a("s_add_u32 s41, s41, s24")
        a("s_cmp_ge_u32 s41, 288")
        a("s_cbranch_scc1 %s_nopf2" % name)
        a("s_mul_hi_u32 s36, s41, 0x%x" % ((2**32 + 8) // 9))
        a("s_mul_i32 s37, s36, 9")
        a("s_sub_u32 s37, s41, s37")
        a("s_mul_i32 s36, s36, %d" % (64 * 1152))
        a("s_lshl_b32 s37, s37, 7")
        a("s_add_u32 s36, s36, s37")
        a("v_mul_u32_u24 v10, 1152, v2")
        a("s_cmp_eq_u32 s25, 0")
        a("s_cbranch_scc1 %s_pfk" % name)
        a("buffer_load_dword v96, v10, s[68:71], s36 offen")
        a("s_branch %s_nopf2" % name)
        a.label("%s_pfk" % name)
        a("buffer_load_dword v96, v10, s[64:67], s36 offen")
        a.label("%s_nopf2" % name)
        a("s_mul_i32 s36, s2, 10368")
        a("s_mul_i32 s37, s3, 2688")
        a("s_add_u32 s36, s36, s37")
        a("v_min_u32 v10, 20, v2")
        a("v_lshlrev_b32 v10, 7, v10")
        a("buffer_load_dword v96, v10, s[76:79], s36 offen")
    stamp_setup(a, 1); stamp(a, 0)
    a("s_mov_b32 s98, 0")
    gran_addr()
    a("v_mov_b32 v12, 0"); a("v_mov_b32 v13, 0x80000000")
    a("buffer_store_dwordx2 v[12:13], v94, s[12:15], s58 offen sc1")
    TB = [16, 32]; FR = 48
    vTa, vTb, vP = 4, 5, [6, 7]; vH = [8, 9]
    bTa = [88, 89]; bTb = [90, 91]; bP = [92, 93]; bH = [100, 101]
    PF = 96
    a("v_lshrrev_b32 v10, 4, v2")
    a("v_lshrrev_b32 v11, 1, v3")
    a("v_xor_b32 v10, v10, v11")
    a("v_lshlrev_b32 v10, 4, v10")
    a("v_lshl_add_u32 v10, v3, 7, v10")
    a("s_lshl_b32 s26, s24, 13")
    a("s_add_u32 s26, s26, %d" % TB0)
    a("v_add_u32 v10, s26, v10")
    a("s_lshl_b32 s26, s25, 12")
    a("v_add_u32 v%d, s26, v10" % bTa[0])
    a("s_xor_b32 s26, s26, 4096")
    a("v_add_u32 v%d, s26, v10" % bTb[0])
    a("v_xor_b32 v%d, 64, v%d" % (bTa[1], bTa[0]))
    a("v_xor_b32 v%d, 64, v%d" % (bTb[1], bTb[0]))
    a("v_lshrrev_b32 v10, 2, v2")
    a("v_mul_u32_u24 v10, %d, v10" % FS)
    a("v_and_b32 v11, 3, v2")
    a("v_lshl_add_u32 v10, v11, 3, v10")
    a("v_add_u32 v10, %d, v10" % FB_)
    a("v_bfe_u32 v13, v2, 4, 1")
    a("v_lshlrev_b32 v13, 5, v13")
    a("v_add_u32 v%d, v10, v13" % bH[0])
    a("v_sub_u32 v%d, v10, v13" % bH[1])
    a("s_mul_i32 s26, s25, 160")
    a("s_cmp_eq_u32 s25, 0")
    a("s_cselect_b64 vcc, -1, 0")
    a("v_cndmask_b32 v11, v%d, v%d, vcc" % (bH[1], bH[0]))
    a("v_cndmask_b32 v12, v%d, v%d, vcc" % (bH[0], bH[1]))
    a("v_add_u32 v%d, s26, v11" % bP[0])
    a("v_add_u32 v%d, s26, v12" % bP[1])
    a("v_lshrrev_b32 v10, 4, v2")
    a("v_lshlrev_b32 v10, 12, v10")
    a("v_lshl_add_u32 v95, v3, 4, v10")
    a("s_lshl_b32 s41, s22, 7")
    a("s_lshl_b32 s36, s3, 5")
    a("s_add_u32 s41, s41, s36")
    a("s_lshl_b32 s41, s41, 12")
    a("s_lshl_b32 s36, s23, 8")
    a("s_add_u32 s41, s41, s36")
    for r in range(ACC, ACC + 144): a("v_mov_b32 v%d, 0" % r)
    def accr(z, ft, tt): return ACC + 72 * z + 4 * tidx(ft, tt)
    def Fr(z, ft): return FR + 20 * z + 4 * ft
    trk = LdsTracker(a)
    def treads(buf):
        L = []
        for tt in range(4):
            r = TB[buf] + 4 * tt
            L.append(("ds_read_b128 %s, v%d offset:%d" % (vr(r), vTa if tt < 2 else vTb, (tt & 1) * 2048), range(r, r + 4)))
        return L
    def freads(z, ft):
        r = Fr(z, ft); L = []
        for half in range(2):
            off = 16 * half * FS + 32 * (9 * z + ft)
            v = vP[(z + ft) & 1] if ft < 4 else vH[z]
            L.append(("ds_read_b64_tr_b16 %s, v%d offset:%d" % (vr(r + 2 * half, 2), v, off), range(r + 2 * half, r + 2 * half + 2)))
        return L
    def rd(t):
        a(t[0]); trk.issue(t[1])
    fpairs = ((vP[0], bP[0]), (vP[1], bP[1]), (vH[0], bH[0]), (vH[1], bH[1]))
    a("v_mov_b32 v%d, v%d" % (vTa, bTa[0])); a("v_mov_b32 v%d, v%d" % (vTb, bTb[0]))
    for d, s_ in fpairs: a("v_mov_b32 v%d, v%d" % (d, s_))
    a("s_mov_b32 s27, 0")
    a("s_mov_b32 s34, 0")
    a("s_mov_b32 s33, 0")
    stamp(a, 1)
    a("s_barrier")
    stamp(a, 2)
    for t in treads(0): rd(t)
    for z in range(2):
        for ft in range(5):
            for t in freads(z, ft): rd(t)
            if len(trk.out) >= 12: trk.drain()
    trk.drain()
    def iteration(par):
        G.stamp_seq(a)
        if "fine" in DBG: trk.out = []
        a("s_barrier")
        upd = []
        if par == 1:
            upd += ["s_add_u32 s27, s27, %d" % TS, "s_cmp_eq_u32 s27, %d" % (NT * TS), "s_cselect_b32 s27, 0, s27"]
        upd += ["v_add_u32 v%d, s27, v%d" % (vTa, bTa[1 - par]), "v_add_u32 v%d, s27, v%d" % (vTb, bTb[1 - par])]
        upd += ["s_add_u32 s34, s34, %d" % FSL, "s_cmp_eq_u32 s34, %d" % (NF * FSL), "s_cselect_b32 s34, 0, s34"]
        upd += ["v_add_u32 v%d, s34, v%d" % (d, s_) for d, s_ in fpairs]
        pend = [("x", u) for u in upd] + [("r", t) for t in treads(1 - par)]
        if par == 0:
            pass
        else:
            pend.append(("x", "s_add_u32 s33, s33, 1"))
        nm = 0
        for z in range(2):
            for ft in range(5):
                for tt in range(4 if ft < 4 else 2):
                    c = accr(z, ft, tt); A = Fr(z, ft); B = TB[par] + 4 * tt
                    trk.need(list(range(A, A + 4)) + list(range(B, B + 4)))
                    if "nomfma" not in DBG: a("v_mfma_f32_16x16x32_bf16 %s, %s, %s, %s" % (vr(c), vr(A), vr(B), vr(c)))
                    nfill = 1
                    while pend and nfill:
                        k, t = pend.pop(0)
                        if k == "x":
                            a(t)
                            if t.startswith("s_") and nm < 8: continue
                        else: rd(t)
                        nfill -= 1
                    nm += 1
                pend += [("r", t) for t in freads(z, ft)]
        for k, t in pend:
            if k == "x": a(t)
            else: rd(t)
        a("s_waitcnt lgkmcnt(15)")
        if len(trk.out) > 15: trk.out = trk.out[-15:]
    a.label("%s_cloop" % name)
    trk.out = []
    lb = len(a.lines)
    iteration(0); iteration(1)
    state = copy.deepcopy(trk.out)
    del a.lines[lb:]
    trk.out = copy.deepcopy(state)
    iteration(0); iteration(1)
    assert [sorted(x) for x in trk.out] == [sorted(x) for x in state]
    a("s_cmp_lt_u32 s33, %d" % (NK // 2))
    a("s_cbranch_scc1 %s_cloop" % name)
    trk.drain()
    stamp(a, 3)
    a("s_waitcnt vmcnt(0)")
    a("s_barrier")
    a("s_cmp_lg_u32 s3, 0")
    a("s_cbranch_scc1 %s_nosig" % name)
    a("v_mov_b32 v10, 1")
    a("s_lshl_b32 s36, s22, 2")
    a("v_mov_b32 v11, s36")
    a("s_mov_b64 exec, 1")
    a("buffer_atomic_add v10, v11, s[60:63], 0 offen sc1")
    a("s_mov_b64 exec, -1")
    a.label("%s_nosig" % name)
    a("s_lshl_b32 s36, s3, 14")
    a("s_add_u32 s36, s36, %d" % TB0)
    a("v_lshlrev_b32 v10, 4, v2")
    a("v_add_u32 v11, s36, v10")
    n_ = 0
    for z in range(2):
        for ft in range(4):
            for tt in range(2):
                a("ds_write_b128 v11, %s offset:%d" % (vr(accr(z, ft, tt + 2)), 1024 * n_))
                n_ += 1
                if n_ in (8, 13): a("s_waitcnt lgkmcnt(4)")
    a("s_waitcnt lgkmcnt(0)")
    a("s_barrier")
    a.label("%s_epi" % name)
    MR = 100; CS = 52; T = 72; ZP1 = 16
    ZP2 = lambda n: 192 + 16 * (n >> 2) + 2 * (n & 3)
    ZP1f = lambda n: 184 + 16 * (n >> 1) + 2 * (n & 1)
    gelu_consts(a)
    a("s_xor_b32 s52, s98, s25")
    a("s_lshl_b32 s36, s24, 9")
    a("s_lshl_b32 s37, s52, 8")
    a("s_add_u32 s38, s36, s37")
    a("v_lshlrev_b32 v10, 3, v3")
    a("v_add_u32 v11, s38, v10")
    a("ds_read_b64 %s, v11 offset:%d" % (vr(MR, 2), RST))
    a("ds_read_b64 %s, v11 offset:%d" % (vr(MR + 2, 2), RST + 128))
    a("v_lshrrev_b32 v10, 4, v2")
    a("v_lshlrev_b32 v4, 4, v10")
    a("s_mul_i32 s36, s25, 320")
    a("v_add_u32 v5, s36, v4")
    def cs_loads(z):
        for ft in range(4):
            a("ds_read_b128 %s, v5 offset:%d" % (vr(CS + 4 * ft), CSO + 576 * z + 64 * ft))
        a("ds_read_b128 %s, v4 offset:%d" % (vr(CS + 16), CSO + 576 * z + 256))
    a("s_waitcnt lgkmcnt(6)")
    cs_loads(0)
    S = [108, 110]; Q = [109, 111]
    for r_ in range(108, 112): a("v_mov_b32 v%d, 0" % r_)
    a("v_mov_b32 v88, 0x3f803f80")
    a("s_waitcnt lgkmcnt(0)")
    def gelu_z(z, ZP, stats):
        def dots(lst):
            if not stats: return
            for d in range(2):
                for (ft, tt) in lst:
                    p = ZP(2 * ft + tt) + d
                    a("v_dot2_f32_bf16 v%d, v%d, v88, v%d" % (S[tt], p, S[tt]))
                    a("v_dot2_f32_bf16 v%d, v%d, v%d, v%d" % (Q[tt], p, p, Q[tt]))
        for f0 in (0, 2):
            lst = [(ft, tt) for ft in (f0, f0 + 1) for tt in range(2)]
            emit_fold_gelu(a, [(ACC + 72 * z + 4 * tidx(ft, tt), CS + 4 * ft, MR + 2 * tt, ZP(2 * ft + tt)) for ft, tt in lst], T)
            dots(lst)
        a("s_cmp_lg_u32 s98, 0")
        a("s_cbranch_scc1 %s_nohalf%d" % (name, z))
        lst = [(4, 0), (4, 1)]
        emit_fold_gelu(a, [(ACC + 72 * z + 4 * tidx(ft, tt), CS + 4 * ft, MR + 2 * tt, ZP(2 * ft + tt)) for ft, tt in lst], T)
        dots(lst)
        a.label("%s_nohalf%d" % (name, z))
    gelu_z(0, ZP2, True)
    cs_loads(1)
    a("s_nop 1")
    emit_xg_reduce(a, S + Q, 72)
    a("s_lshl_b32 s59, s22, 7")
    a("s_lshl_b32 s36, s24, 6")
    a("s_add_u32 s59, s59, s36")
    a("s_lshl_b32 s36, s52, 5")
    a("s_add_u32 s59, s59, s36")
    a("s_lshl_b32 s59, s59, 8")
    a("s_add_u32 s59, s59, 0x%x" % STATS2)
    a("s_lshl_b32 s36, s23, 1")
    a("s_add_u32 s36, s36, s25")
    a("s_lshl_b32 s36, s36, 3")
    a("s_add_u32 s58, s36, s59")
    a("v_lshlrev_b32 v11, 8, v2")
    a("v_cmp_gt_u32 vcc, 32, v2")
    a("v_mov_b32 v12, 0x7ffffff0")
    a("v_cmp_eq_u32 s[36:37], 1, v10")
    a("v_cndmask_b32 v11, v12, v11, vcc")
    a("s_nop 0")
    a("v_cndmask_b32 v108, v108, v110, s[36:37]")
    a("v_cndmask_b32 v109, v109, v111, s[36:37]")
    a("v_and_b32 v109, 0x7fffffff, v109")
    a("buffer_store_dwordx2 v[108:109], v11, s[12:15], s58 offen sc1")
    a("s_setprio 0")
    stamp(a, 4)
    a("s_lshl_b32 s42, s2, 1")
    a("s_add_u32 s42, s42, s98")
    a("v_and_b32 v0, 255, v0")
    emit_wot_loads(a, 136, 144)
    a("s_mov_b32 s41, s42")
    a("s_cmp_ge_u32 s41, 288")
    a("s_cbranch_scc1 %s_nokv1" % name)
    emit_kv_loads(a, 112, 124, 132, 146, 147)
    a.label("%s_nokv1" % name)
    PB = 148
    a("v_lshrrev_b32 v182, 4, v2")
    a("v_lshlrev_b32 v181, 8, v3")
    a("v_lshl_add_u32 v181, v182, 6, v181")
    a("s_lshl_b32 s33, s22, 2")
    a("v_mov_b32 v182, s33")
    a("s_add_u32 s53, s59, 4096")
    a("buffer_load_dword v180, v182, s[60:63], 0 offen sc1")
    a("s_load_dwordx2 s[90:91], s[0:1], 64")
    a("v_lshrrev_b32 v183, 4, v2")
    a("v_lshlrev_b32 v183, 12, v183")
    a("v_lshl_add_u32 v183, v3, 4, v183")
    a("s_lshl_b32 s82, s22, 7")
    a("s_lshl_b32 s36, s3, 5")
    a("s_add_u32 s82, s82, s36")
    a("s_lshl_b32 s36, s98, 4")
    a("s_add_u32 s82, s82, s36")
    a("s_lshl_b32 s82, s82, 12")
    a("s_lshl_b32 s36, s23, 8")
    a("s_add_u32 s82, s82, s36")
    a("s_waitcnt lgkmcnt(0)")
    srd(a, 92, 90, 2048 * 2048 * 2)
    for n in range(4):
        a("buffer_load_dwordx4 v[92:95], v183, s[92:95], s82 offen")
        if n < 3: a("s_add_u32 s82, s82, 16384")
    a("s_waitcnt lgkmcnt(0)")
    gelu_z(1, ZP1f, False)
    stamp(a, 5)
    a("s_waitcnt vmcnt(0)")
    def gather():
        for tt in range(2):
            for q in range(4):
                a("buffer_load_dwordx4 %s, v181, s[12:15], s%d offen offset:%d sc1" % (vr(PB + 16 * tt + 4 * q), (59, 53)[tt], 16 * q))
    gather()
    a("s_cmp_ge_u32 s41, 288")
    a("s_cbranch_scc1 %s_nokv2" % name)
    for n in range(11): a("v_mov_b32 v%d, v%d" % (16 + n, 112 + n))
    for n in range(8): a("v_mov_b32 v%d, v%d" % (32 + n, 124 + n))
    for n in range(4): a("v_mov_b32 v%d, v%d" % (44 + n, 132 + n))
    a("v_mov_b32 v56, v146"); a("v_mov_b32 v57, v147")
    emit_kv_compute(a, wait=False, store=False)
    a.label("%s_nokv2" % name)
    stamp(a, 6)
    a("s_mov_b32 s43, 0")
    a("v_lshrrev_b32 v10, 4, v2")
    a("s_waitcnt vmcnt(0)")
    a.label("%s_chk" % name)
    a("v_subrev_u32 v11, 16, v180")
    for r in range(PB + 1, PB + 32, 4):
        a("v_or3_b32 v11, v11, v%d, v%d" % (r, r + 2))
    a("v_cmp_gt_i32 vcc, 0, v11")
    a("s_add_u32 s43, s43, 1")
    a("s_cmp_gt_u32 s43, %d" % SPIN_MAX)
    a("s_cbranch_scc1 %s_poll1x" % name)
    a("s_cbranch_vccz %s_poll1x" % name)
    a("s_sleep 24")
    a("buffer_load_dword v180, v182, s[60:63], 0 offen sc1")
    a("s_waitcnt vmcnt(0)")
    gather()
    a("s_waitcnt vmcnt(0)")
    a("s_branch %s_chk" % name)
    a.label("%s_poll1x" % name)
    stamp(a, 7)
    for n in range(2):
        a("buffer_store_dwordx4 %s, v%d, s[12:15], s40 offen" % (vr(136 + 4 * n), 144 + n))
    a("s_cmp_ge_u32 s41, 288")
    a("s_cbranch_scc1 %s_nokv3" % name)
    a("s_mov_b32 s39, 0x%x" % KVT)
    a("buffer_store_dwordx4 v[120:123], v12, s[12:15], s39 offen")
    a("buffer_store_dwordx4 v[124:127], v13, s[12:15], s39 offen")
    a.label("%s_nokv3" % name)
    a("s_lshl_b32 s36, s22, 4")
    a("s_add_u32 s36, s36, s23")
    a("s_lshl_b32 s36, s36, 2")
    a("s_add_u32 s36, s36, s3")
    a("s_mul_i32 s36, s36, 9216")
    a("s_lshl_b32 s37, s98, 10")
    a("s_add_u32 s36, s36, s37")
    a("s_add_u32 s36, s36, 0x%x" % Z1IMG)
    a("s_add_u32 s37, s36, 4096")
    a("s_add_u32 s38, s36, 8192")
    a("v_lshlrev_b32 v11, 4, v2")
    for ft in range(4):
        a("buffer_store_dwordx4 %s, v11, s[12:15], s%d offen offset:%d" % (vr(184 + 16 * ft), 36 + (ft >> 1), (ft & 1) * 2048))
    a("s_cmp_lg_u32 s98, 0")
    a("s_cbranch_scc1 %s_noh1" % name)
    a("buffer_store_dwordx4 %s, v11, s[12:15], s38 offen" % vr(248))
    a.label("%s_noh1" % name)
    for tt in range(2):
        b = PB + 16 * tt
        for st in (8, 4, 2):
            for q in range(0, st, 2):
                a("v_pk_add_f32 %s, %s, %s" % (vr(b + q, 2), vr(b + q, 2), vr(b + q + st, 2)))
    emit_xg_reduce(a, [PB + 16 * tt + e for tt in range(2) for e in range(2)], 72)
    for tt in range(2):
        b = PB + 16 * tt
        emit_ln_finish(a, b, b + 1, 2304, b + 2, MR + 2 * tt, b + 4)
        a("v_mul_f32 v%d, -v%d, v%d" % (MR + 2 * tt + 1, b + 2, MR + 2 * tt))
    a("v_lshrrev_b32 v11, 2, v2"); a("v_and_b32 v11, 1, v11"); a("v_lshlrev_b32 v11, 4, v11")
    a("v_lshrrev_b32 v12, 3, v2"); a("v_and_b32 v12, 1, v12"); a("v_lshl_add_u32 v11, v12, 2, v11")
    a("v_and_b32 v12, 3, v2"); a("v_add_u32 v11, v11, v12")
    a("v_mul_u32_u24 v11, 288, v11")
    a("v_lshrrev_b32 v12, 1, v10"); a("v_lshl_add_u32 v11, v12, 4, v11")
    a("v_and_b32 v12, 1, v10")
    a("v_lshl_add_u32 v13, v12, 5, v11")
    a("v_mul_u32_u24 v12, 2304, v12")
    a("v_add_u32 v9, v11, v12")
    a("s_lshl_b32 s33, s23, 5")
    a("s_lshl_b32 s36, s22, 1")
    a("s_add_u32 s33, s33, s36")
    a("s_add_u32 s33, s33, s24")
    a("s_mul_i32 s33, s33, 18432")
    if ZIMG: a("s_add_u32 s33, s33, 0x%x" % ZIMG)
    a("s_mul_i32 s36, s52, 9216")
    a("s_add_u32 s37, s33, s36")
    a("s_add_u32 s39, s37, 128")
    a("s_mul_i32 s36, s25, 160")
    a("s_add_u32 s37, s37, s36")
    def norm_pair(nA, ttA, nB, ttB, O):
        for q, (n, tt) in enumerate(((nA, ttA), (nB, ttB))):
            for d in range(2):
                z = ZP2(n) + d; t = T + 4 * q + 2 * d
                a("v_lshlrev_b32 v%d, 16, v%d" % (t, z))
                a("v_and_b32 v%d, 0xffff0000, v%d" % (t + 1, z))
        for q, (n, tt) in enumerate(((nA, ttA), (nB, ttB))):
            for d in range(2):
                t = T + 4 * q + 2 * d
                a("v_pk_fma_f32 %s, %s, %s, %s op_sel:[0,0,1] op_sel_hi:[1,0,1]" % (vr(t, 2), vr(t, 2), vr(MR + 2 * tt, 2), vr(MR + 2 * tt, 2)))
        for q in range(2):
            for d in range(2):
                t = T + 4 * q + 2 * d
                a("v_cvt_pk_bf16_f32 v%d, v%d, v%d" % (O + 2 * q + d, t, t + 1))
        a("s_nop 1")
        a("v_permlane16_swap_b32 v%d, v%d" % (O, O + 2))
        a("v_permlane16_swap_b32 v%d, v%d" % (O + 1, O + 3))
    cnt = 0
    for pr in range(2):
        for tt in range(2):
            O = 16 + 4 * cnt; cnt += 1
            norm_pair(2 * (2 * pr) + tt, tt, 2 * (2 * pr + 1) + tt, tt, O)
            a("s_nop 0")
            a("buffer_store_dwordx4 %s, v13, s[12:15], s37 offen offset:%d" % (vr(O), tt * 2304 + 64 * pr))
    a("s_cmp_lg_u32 s98, 0")
    a("s_cbranch_scc1 %s_fin" % name)
    O = 16 + 4 * cnt
    norm_pair(8, 0, 9, 1, O)
    a("s_nop 0")
    a("buffer_store_dwordx4 %s, v9, s[12:15], s39 offen" % vr(O))
    a.label("%s_fin" % name)
    stamp(a, 8)
    G.stamp_rt(a, 1)
    a.label("%s_end" % name)
    a("s_endpgm")
    return a.text(), kernel_desc(name, 256, 256), (name, 256, 512, LDSB)


def gen_k2b(name="k2_kernel", R=4):
    a = Asm()
    SLOT = 34816; TREG = 16384; FS = 288; NST = 32
    kernel_begin(a, name)
    a("s_load_dwordx2 s[4:5], s[0:1], 64")
    a("s_load_dwordx2 s[6:7], s[0:1], 104")
    a("s_load_dwordx4 s[88:91], s[0:1], 32")
    a("s_cmp_ge_u32 s2, 256")
    a("s_cbranch_scc1 %s_end" % name)
    a("v_lshrrev_b32 v1, 6, v0")
    a("v_and_b32 v2, 63, v0")
    a("v_readfirstlane_b32 s3, v1")
    G2.tile_ij(a)
    a("s_cmp_lt_u32 s3, 4")
    a("s_cbranch_scc1 %s_consumer" % name)
    if "noprio" not in DBG: a("s_setprio 3")
    a("s_sub_u32 s3, s3, 4")
    a("v_lshrrev_b32 v3, 3, v2")
    a("s_lshl_b32 s24, s3, 5")
    a("v_add_u32 v3, s24, v3")
    a("v_and_b32 v4, 7, v2")
    a("v_lshrrev_b32 v6, 4, v2")
    a("v_xor_b32 v6, v6, v4")
    a("v_lshlrev_b32 v6, 4, v6")
    a("v_lshl_add_u32 v10, v3, 12, v6")
    a("v_xor_b32 v11, 64, v10")
    a("v_add_u32 v11, %d, v11" % (32768 - 1024))
    a("v_add_u32 v12, %d, v10" % (2 * (32768 - 1024)))
    a("v_add_u32 v13, %d, v11" % (2 * (32768 - 1024)))
    a("v_lshlrev_b32 v14, 4, v2")
    a("s_lshl_b32 s26, s22, 19")
    a("s_mul_i32 s27, s23, %d" % (32 * 18432))
    a("s_lshl_b32 s24, s3, 12")
    a("s_add_u32 s27, s27, s24")
    if ZIMG: a("s_add_u32 s27, s27, 0x%x" % ZIMG)
    a("s_lshl_b32 s25, s3, 9")
    a("s_sub_u32 s32, s25, s24")
    a("s_add_u32 s32, s32, 16384")
    a("s_mov_b32 s33, 0")
    a("s_waitcnt lgkmcnt(0)")
    srd(a, 8, 4, 2048 * 2048 * 2)
    srd(a, 12, 6, WS_BYTES)
    def issue():
        a("s_add_u32 s35, s33, s24")
        a("s_mov_b32 m0, s35")
        a("s_add_u32 s36, s35, %d" % TREG)
        for n in range(4):
            a("buffer_load_dwordx4 v%d, s[8:11], s26 offen offset:%d lds" % (10 + n, n * 1024))
        a("s_mov_b32 m0, s36")
        a("s_add_u32 s37, s27, s32")
        for n in range(4):
            a("buffer_load_dwordx4 v14, s[12:15], s27 offen offset:%d lds" % (n * 1024))
        a("s_add_u32 s36, s36, s32")
        a("s_mov_b32 m0, s36")
        a("s_mov_b64 exec, 0xffffffff")
        a("buffer_load_dwordx4 v14, s[12:15], s37 offen lds")
        a("s_mov_b64 exec, -1")
        a("s_add_u32 s26, s26, 128")
        a("s_add_u32 s27, s27, 18432")
        a("s_add_u32 s33, s33, %d" % SLOT)
        a("s_cmp_eq_u32 s33, %d" % (R * SLOT))
        a("s_cselect_b32 s33, 0, s33")
    srd(a, 16, 88, 576 * 2048 * 2)
    srd(a, 84, 90, 576 * 2)
    a("s_lshl_b32 s43, s2, 2")
    a("s_add_u32 s43, s43, s3")
    a("s_and_b32 s53, s43, 1")
    a("s_sub_u32 s36, s43, 448")
    a("s_lshr_b32 s37, s43, 1")
    a("s_cmp_ge_u32 s43, 896")
    a("s_cselect_b32 s43, s36, s37")
    a("s_cselect_b32 s53, 2, s53")
    if "rampB" in DBG:
        issue(); issue()
        nconv = emit_conv_loads(a)
        a("s_waitcnt vmcnt(%d)" % (9 + nconv))
        a("s_barrier")
        issue(); issue()
        a("s_waitcnt vmcnt(%d)" % (18 + nconv))
        a("s_barrier")
    else:
        issue()
        nconv = emit_conv_loads(a)
        issue(); issue(); issue()
        a("s_waitcnt vmcnt(%d)" % (27 + nconv))
        a("s_barrier")
        a("s_waitcnt vmcnt(18)")
        a("s_barrier")
    a("s_add_u32 s3, s3, 4"); stamp_setup(a, 2); stamp(a, 0); a("s_sub_u32 s3, s3, 4")
    a("s_waitcnt vmcnt(9)")
    a("s_barrier")
    a("s_mov_b32 s34, 1")
    a.label("%s_lloop" % name)
    issue()
    a("s_waitcnt vmcnt(9)")
    a("s_barrier")
    a("s_add_u32 s34, s34, 1")
    a("s_cmp_lt_u32 s34, %d" % (NST - R + 1))
    a("s_cbranch_scc1 %s_lloop" % name)
    a("s_waitcnt vmcnt(0) lgkmcnt(0)")
    a("s_barrier")
    stamp(a, 1)
    a("s_mov_b32 s26, s53")
    a("s_and_b32 s27, s3, 1")
    a("s_mul_i32 s27, s27, %d" % CJ_SIZE)
    a("s_lshr_b32 s36, s3, 1")
    a("s_mul_i32 s36, s36, %d" % SLOT)
    a("s_add_u32 s27, s27, s36")
    def mid():
        if "warm2" in DBG:
            a("s_cmp_eq_u32 s99, 1")
            a("s_cbranch_scc1 %s_midskip" % name)
        a("s_barrier")
        a("s_setprio 0")
        a.label("%s_midskip" % name)
    a.label("%s_cjstart" % name)
    if "noconv" in DBG:
        mid()
    else:
        emit_conv_job(a, name, mid)
        G.stamp_rt(a, 1)
    a("s_branch %s_end" % name)
    a.label("%s_consumer" % name)
    a("s_load_dwordx2 s[92:93], s[0:1], 72")
    ACC = 128; FB = [16, 52]
    vTa = [4, 5]; vTb = [6, 7]; vF = 8; vFh = 9
    bTa = [88, 89]; bTb = [90, 91]; bF = 92; bFh = 93
    Z1R = 200; BI = 236
    a("s_lshr_b32 s24, s3, 1")
    a("s_and_b32 s25, s3, 1")
    a("v_and_b32 v3, 15, v2")
    a("v_lshrrev_b32 v10, 4, v2")
    a("v_lshrrev_b32 v11, 1, v3")
    a("v_xor_b32 v10, v10, v11")
    a("v_lshlrev_b32 v10, 4, v10")
    a("v_lshl_add_u32 v10, v3, 7, v10")
    a("s_lshl_b32 s26, s24, 13")
    a("v_add_u32 v10, s26, v10")
    a("s_lshl_b32 s26, s25, 12")
    a("v_add_u32 v%d, s26, v10" % bTa[0])
    a("s_xor_b32 s26, s26, 4096")
    a("v_add_u32 v%d, s26, v10" % bTb[0])
    a("v_xor_b32 v%d, 64, v%d" % (bTa[1], bTa[0]))
    a("v_xor_b32 v%d, 64, v%d" % (bTb[1], bTb[0]))
    a("v_lshrrev_b32 v10, 2, v2")
    a("v_mul_u32_u24 v10, %d, v10" % FS)
    a("v_and_b32 v11, 3, v2")
    a("v_lshl_add_u32 v10, v11, 3, v10")
    a("v_add_u32 v10, %d, v10" % TREG)
    a("s_mul_i32 s26, s25, 160")
    a("v_add_u32 v%d, s26, v10" % bF)
    a("v_add_u32 v%d, 128, v10" % bFh)
    for d, s_ in ((vTa[0], bTa[0]), (vTb[0], bTb[0]), (vTa[1], bTa[1]), (vTb[1], bTb[1]), (vF, bF), (vFh, bFh)):
        a("v_mov_b32 v%d, v%d" % (d, s_))
    a("s_waitcnt lgkmcnt(0)")
    srd(a, 12, 6, WS_BYTES)
    srd(a, 28, 92, 2048 * 2)
    stamp_setup(a, 2); stamp(a, 0)
    a("s_mov_b32 s99, 0")
    for r in range(ACC, ACC + 72): a("v_mov_b32 v%d, 0" % r)
    a("s_mov_b32 s27, 0")
    a("s_mov_b32 s33, 0")
    core = G.Core(a, ACC, FB[0], FB[1], FS, TREG, vTa, vTb, vF, vFh)
    trk = core.trk
    a("s_barrier")
    stamp(a, 1)
    core.prime(0, core.reads(0, 0))
    def phase(buf, pend):
        for (m, regs) in core.mfmas(buf):
            trk.need(regs)
            a(m)
            while pend:
                k, t = pend.pop(0)
                if k == "x":
                    a(t)
                    if t.startswith("s_"): continue
                else:
                    a(t[0]); trk.issue(t[1])
                break
        for k, t in pend:
            if k == "x": a(t)
            else: a(t[0]); trk.issue(t[1])
    def iteration(extra=None):
        a("s_barrier")
        rd = [("r", t) for t in core.reads(1, 1)]
        upd = ["s_add_u32 s27, s27, %d" % SLOT, "s_cmp_eq_u32 s27, %d" % (R * SLOT), "s_cselect_b32 s27, 0, s27"]
        tail = ["v_add_u32 v%d, s27, v%d" % (d, s_) for d, s_ in ((vTa[0], bTa[0]), (vF, bF), (vTb[0], bTb[0]), (vFh, bFh))]
        phase(0, rd[:1] + [("x", u) for u in upd] + rd[1:] + [("x", u) for u in tail])
        rd = [("r", t) for t in core.reads(0, 0)]
        tail = ["v_add_u32 v%d, s27, v%d" % (d, s_) for d, s_ in ((vTa[1], bTa[1]), (vTb[1], bTb[1]))] + ["s_add_u32 s33, s33, 1"]
        phase(1, rd + [("x", u) for u in tail])
    a.label("%s_cloop" % name)
    lb = len(a.lines); iteration(); st = copy.deepcopy(trk.out); del a.lines[lb:]; trk.out = copy.deepcopy(st)
    iteration()
    assert [sorted(x) for x in trk.out] == [sorted(x) for x in st]
    a("s_cmp_lg_u32 s33, 24")
    a("s_cbranch_scc1 %s_noz" % name)
    a("s_lshl_b32 s35, s22, 4")
    a("s_add_u32 s35, s35, s23")
    a("s_lshl_b32 s35, s35, 2")
    a("s_add_u32 s35, s35, s3")
    a("s_mul_i32 s35, s35, 9216")
    a("s_add_u32 s35, s35, 0x%x" % Z1IMG)
    a("v_lshlrev_b32 v10, 4, v2")
    for q in range(9):
        if q in (4, 8): a("s_add_u32 s35, s35, 4096")
        a("buffer_load_dwordx4 %s, v10, s[12:15], s35 offen offset:%d" % (vr(Z1R + 4 * q), (q & 3) * 1024))
    a("s_lshl_b32 s36, s22, 7")
    a("s_lshl_b32 s37, s24, 6")
    a("s_add_u32 s36, s36, s37")
    a("v_lshlrev_b32 v11, 1, v3")
    a("s_lshl_b32 s37, s25, 6")
    a("s_lshl_b32 s38, s36, 1")
    a("s_add_u32 s39, s38, s37")
    a("s_xor_b32 s37, s37, 64")
    a("s_add_u32 s40, s38, s37")
    a("buffer_load_ushort v%d, v11, s[28:31], s39 offen" % (BI + 0))
    a("buffer_load_ushort v%d, v11, s[28:31], s39 offen offset:32" % (BI + 2))
    a("buffer_load_ushort v%d, v11, s[28:31], s40 offen" % (BI + 4))
    a("buffer_load_ushort v%d, v11, s[28:31], s40 offen offset:32" % (BI + 6))
    a.label("%s_noz" % name)
    a("s_cmp_lt_u32 s33, %d" % NST)
    a("s_cbranch_scc1 %s_cloop" % name)
    trk.drain()
    stamp(a, 2)
    a.label("%s_epi" % name)
    a("v_lshrrev_b32 v10, 4, v2")
    a("v_and_b32 v11, 1, v10")
    a("v_lshrrev_b32 v12, 1, v10")
    a("v_lshl_add_u32 v12, v11, 1, v12")
    a("s_mul_i32 s35, s23, 18")
    a("s_mul_i32 s36, s25, 10")
    a("s_add_u32 s36, s36, s35")
    a("v_lshrrev_b32 v13, 1, v3")
    a("s_lshl_b32 s37, s22, 1")
    a("s_add_u32 s37, s37, s24")
    a("s_mul_i32 s37, s37, %d" % (36 * 8192))
    a("s_add_u32 s37, s37, 0x%x" % PIMG)
    a("s_lshl_b32 s38, s25, 12")
    a("s_add_u32 s39, s37, s38")
    a("s_xor_b32 s38, s38, 4096")
    a("s_add_u32 s40, s37, s38")
    def addr(dst, pv):
        a("v_lshrrev_b32 v14, 3, v%d" % pv)
        a("v_lshlrev_b32 v14, 13, v14")
        a("v_and_b32 v15, 7, v%d" % pv)
        a("v_xor_b32 v15, v15, v13")
        a("v_lshl_add_u32 v14, v15, 4, v14")
        a("v_lshl_add_u32 v%d, v3, 7, v14" % dst)
    a("v_add_u32 v16, s36, v12"); addr(4, 16)
    a("v_add_u32 v16, 4, v16"); addr(5, 16)
    a("v_lshrrev_b32 v16, 1, v10")
    a("s_add_u32 s35, s35, 8")
    a("v_add_u32 v16, s35, v16"); addr(6, 16)
    a("v_lshl_add_u32 v6, v11, 11, v6")
    a("s_waitcnt vmcnt(0)")
    for tt in range(4):
        a("v_lshlrev_b32 v%d, 16, v%d" % (BI + 2 * tt, BI + 2 * tt))
    stamp(a, 3)
    def ptiles(lst, O):
        T = 24
        for q, (ft, tt) in enumerate(lst):
            c = core.accr(ft, tt)
            for h in (0, 2):
                a("v_pk_add_f32 %s, %s, %s op_sel_hi:[1,0]" % (vr(c + h, 2), vr(c + h, 2), vr(BI + 2 * tt, 2)))
        for q, (ft, tt) in enumerate(lst):
            c = core.accr(ft, tt)
            a("v_cvt_pk_bf16_f32 v%d, v%d, v%d" % (T + 2 * q, c, c + 1))
            a("v_cvt_pk_bf16_f32 v%d, v%d, v%d" % (T + 2 * q + 1, c + 2, c + 3))
        for q, (ft, tt) in enumerate(lst):
            c = core.accr(ft, tt); z = Z1R + 2 * tidx(ft, tt)
            for d in range(2):
                a("v_lshlrev_b32 v%d, 16, v%d" % (c + 2 * d, T + 2 * q + d))
                a("v_and_b32 v%d, 0xffff0000, v%d" % (c + 2 * d + 1, T + 2 * q + d))
                a("v_lshlrev_b32 v%d, 16, v%d" % (T + 4 + 4 * q + 2 * d, z + d))
                a("v_and_b32 v%d, 0xffff0000, v%d" % (T + 5 + 4 * q + 2 * d, z + d))
        for q, (ft, tt) in enumerate(lst):
            c = core.accr(ft, tt)
            for h in (0, 2):
                a("v_pk_mul_f32 %s, %s, %s" % (vr(c + h, 2), vr(c + h, 2), vr(T + 4 + 4 * q + h, 2)))
        for q, (ft, tt) in enumerate(lst):
            c = core.accr(ft, tt)
            a("v_cvt_pk_bf16_f32 v%d, v%d, v%d" % (O + 2 * q, c, c + 1))
            a("v_cvt_pk_bf16_f32 v%d, v%d, v%d" % (O + 2 * q + 1, c + 2, c + 3))
        a("s_nop 1")
        a("v_permlane16_swap_b32 v%d, v%d" % (O, O + 2))
        a("v_permlane16_swap_b32 v%d, v%d" % (O + 1, O + 3))
        a("s_nop 0")
    cnt = 0
    for pr in range(2):
        for tt in range(4):
            O = 40 + 4 * cnt; cnt += 1
            ptiles([(2 * pr, tt), (2 * pr + 1, tt)], O)
            a("buffer_store_dwordx4 %s, v%d, s[12:15], s%d offen offset:%d" % (vr(O), 4 + pr, 39 if tt < 2 else 40, (tt & 1) * 2048))
    O = 40 + 4 * cnt
    ptiles([(4, 0), (4, 1)], O)
    a("buffer_store_dwordx4 %s, v6, s[12:15], s39 offen" % vr(O))
    seg_end2(a, name)
    stamp(a, 4)
    G.stamp_rt(a, 1)
    a.label("%s_end" % name)
    a("s_endpgm")
    return a.text(), kernel_desc(name, 256, 256), (name, 256, 512, R * SLOT)


def gen_k3b(name="k3_kernel", R=4):
    a = Asm()
    TREG = 16384; FS = 160; SLOT = TREG + 128 * FS; NST = 18
    YOFF = R * SLOT
    kernel_begin(a, name)
    a("s_load_dwordx2 s[6:7], s[0:1], 104")
    a("s_load_dwordx2 s[4:5], s[0:1], 0")
    a("s_load_dwordx2 s[16:17], s[0:1], 88")
    a("s_cmp_ge_u32 s2, 256")
    a("s_cbranch_scc1 %s_end" % name)
    a("v_lshrrev_b32 v1, 6, v0")
    a("v_and_b32 v2, 63, v0")
    a("v_readfirstlane_b32 s3, v1")
    a("s_and_b32 s20, s2, 7")
    a("s_lshr_b32 s21, s2, 3")
    a("s_and_b32 s22, s20, 3")
    a("s_lshl_b32 s22, s22, 3")
    a("s_and_b32 s23, s21, 7")
    a("s_add_u32 s22, s22, s23")
    a("s_lshr_b32 s23, s20, 2")
    a("s_lshl_b32 s23, s23, 2")
    a("s_lshr_b32 s24, s21, 3")
    a("s_add_u32 s23, s23, s24")
    a("s_lshr_b32 s52, s23, 1")
    a("s_and_b32 s53, s23, 1")
    XR = 200; ST = 208
    def fin_loads():
        a("v_and_b32 v3, 15, v2")
        a("v_lshrrev_b32 v10, 4, v2")
        a("v_mul_u32_u24 v13, 1152, v3")
        a("v_lshl_add_u32 v13, v10, 3, v13")
        a("v_lshlrev_b32 v12, 3, v3")
        for s_ in range(3):
            if s_ == 2:
                a("s_cmp_ge_u32 s54, 2")
                a("s_cbranch_scc1 %s_fl%d" % (name, fin_loads.cnt))
            b = 64 + 4 * s_
            if s_ < 2:
                a("s_add_u32 s36, s54, %d" % (8 * s_))
                a("s_lshr_b32 s37, s36, 2")
                a("s_and_b32 s38, s36, 3")
                a("s_mul_i32 s39, s53, 160")
                a("s_lshl_b32 s40, s37, 5")
                a("s_add_u32 s39, s39, s40")
            else:
                a("s_add_u32 s36, s54, 16")
                a("s_mov_b32 s37, 4")
                a("s_mov_b32 s38, s54")
                a("s_mov_b32 s39, 128")
            a("s_lshl_b32 s40, s53, 1")
            a("s_add_u32 s38, s38, s40")
            a("s_and_b32 s38, s38, 3")
            a("s_lshl_b32 s40, s22, 2")
            a("s_add_u32 s40, s40, s38")
            a("s_lshl_b32 s40, s40, 4")
            a("s_mul_i32 s%d, s40, 1152" % b)
            a("s_add_u32 s%d, s%d, s39" % (b, b))
            a("s_mul_i32 s39, s52, 288")
            a("s_add_u32 s%d, s%d, s39" % (b, b))
            a("s_lshl_b32 s%d, s37, 11" % (b + 1))
            a("s_lshl_b32 s39, s38, 5")
            a("s_add_u32 s%d, s%d, s39" % (b + 1, b + 1))
            a("s_add_u32 s%d, s%d, %d" % (b + 1, b + 1, YOFF))
            a("s_lshl_b32 s%d, s36, 10" % (b + 2))
            a("s_lshl_b32 s40, s40, 3")
            a("s_add_u32 s40, s40, 0x%x" % STATS1)
            a("buffer_load_dwordx2 %s, v13, s[8:11], s%d offen" % (vr(XR + 2 * s_, 2), b))
            a("buffer_load_dwordx2 %s, v12, s[12:15], s40 offen" % vr(ST + 2 * s_, 2))
        a.label("%s_fl%d" % (name, fin_loads.cnt))
        fin_loads.cnt += 1
    fin_loads.cnt = 0
    a("s_mov_b32 s54, s3")
    a("s_cmp_lt_u32 s3, 4")
    a("s_cbranch_scc1 %s_consumer" % name)
    a("s_setprio 3")
    a("s_sub_u32 s3, s3, 4")
    a("v_lshlrev_b32 v14, 4, v2")
    a("s_mul_i32 s26, s22, %d" % (36 * 8192))
    a("s_lshl_b32 s24, s3, 12")
    a("s_add_u32 s26, s26, s24")
    a("s_add_u32 s26, s26, 0x%x" % PIMG)
    a("s_mul_i32 s27, s23, %d" % (18 * 20480))
    a("s_mul_i32 s25, s3, 5120")
    a("s_add_u32 s27, s27, s25")
    a("s_add_u32 s27, s27, 0x%x" % WOT)
    a("s_add_u32 s25, s25, %d" % TREG)
    a("s_mov_b32 s33, 0")
    a("s_waitcnt lgkmcnt(0)")
    srd(a, 12, 6, WS_BYTES)
    def issue():
        a("s_add_u32 s35, s33, s24")
        a("s_mov_b32 m0, s35")
        a("s_add_u32 s36, s33, s25")
        for n in range(4):
            a("buffer_load_dwordx4 v14, s[12:15], s26 offen offset:%d lds" % (n * 1024))
        a("s_mov_b32 m0, s36")
        a("s_add_u32 s37, s27, 4096")
        for n in range(4):
            a("buffer_load_dwordx4 v14, s[12:15], s27 offen offset:%d lds" % (n * 1024))
        a("s_add_u32 s36, s36, 4096")
        a("s_mov_b32 m0, s36")
        a("s_add_u32 s26, s26, 16384")
        a("buffer_load_dwordx4 v14, s[12:15], s37 offen lds")
        a("s_add_u32 s27, s27, 20480")
        a("s_add_u32 s33, s33, %d" % SLOT)
        a("s_cmp_eq_u32 s33, %d" % (R * SLOT))
        a("s_cselect_b32 s33, 0, s33")
    issue(); issue()
    a("s_add_u32 s3, s3, 4"); stamp_setup(a, 3); stamp(a, 0); a("s_sub_u32 s3, s3, 4")
    srd(a, 8, 4, 2048 * 576 * 2)
    srd(a, 28, 16, 2048 * 576 * 2)
    a("s_waitcnt vmcnt(9)")
    a("s_barrier")
    issue(); issue()
    a("s_waitcnt vmcnt(18)")
    a("s_barrier")
    a("s_mov_b32 s34, 0")
    a.label("%s_lloop" % name)
    issue()
    a("s_waitcnt vmcnt(18)")
    a("s_barrier")
    a("s_add_u32 s34, s34, 1")
    a("s_cmp_lt_u32 s34, %d" % (NST - R))
    a("s_cbranch_scc1 %s_lloop" % name)
    a("v_lshrrev_b32 v3, 3, v2")
    a("v_and_b32 v4, 7, v2")
    a("v_lshlrev_b32 v4, 4, v4")
    a("s_mul_i32 s33, s52, 144")
    a("s_mul_i32 s34, s53, 80")
    a("s_lshl_b32 s35, s22, 7")
    a("s_add_u32 s35, s35, 0x%x" % YT)
    for n in range(3):
        a("s_add_u32 s36, s3, %d" % (4 * n))
        if n == 2:
            a("s_min_u32 s36, s36, 9")
        a("s_lshl_b32 s37, s36, 3")
        a("s_add_u32 s38, s37, s33")
        if n < 2: a("s_add_u32 s38, s38, s34")
        a("v_add_u32 v5, s38, v3")
        a("v_lshl_add_u32 v5, v5, 12, v4")
        a("s_lshl_b32 s36, s36, 10")
        a("s_add_u32 s36, s36, %d" % YOFF)
        a("s_mov_b32 m0, s36")
        a("s_nop 0")
        a("buffer_load_dwordx4 v5, s[12:15], s35 offen lds")
    fin_loads()
    a("s_waitcnt vmcnt(%d)" % (9 + 7))
    a("s_barrier")
    a("s_waitcnt vmcnt(7)")
    a("s_barrier")
    a("s_barrier")
    a("s_setprio 0")
    a("s_waitcnt vmcnt(0)")
    a("s_branch %s_fin" % name)
    a.label("%s_consumer" % name)
    ACC = 128; FB0 = 16; FB1 = 52
    vTa = [4, 4]; vTb = [6, 6]; vF = 8; vFh = 9
    bTa = 88; bTb = 90; bF = 92; bFh = 93
    a("v_and_b32 v3, 15, v2")
    a("v_lshrrev_b32 v10, 4, v2")
    a("s_and_b32 s26, s3, 1")
    a("s_lshl_b32 s26, s26, 2")
    a("v_add_u32 v10, s26, v10")
    a("v_lshrrev_b32 v11, 1, v3")
    a("v_xor_b32 v10, v10, v11")
    a("v_lshlrev_b32 v10, 4, v10")
    a("v_lshl_add_u32 v10, v3, 7, v10")
    a("s_lshr_b32 s26, s3, 1")
    a("s_lshl_b32 s26, s26, 13")
    a("v_add_u32 v10, s26, v10")
    a("s_lshl_b32 s26, s53, 12")
    a("v_add_u32 v%d, s26, v10" % bTa)
    a("s_xor_b32 s26, s26, 4096")
    a("v_add_u32 v%d, s26, v10" % bTb)
    a("v_lshrrev_b32 v10, 2, v2")
    a("v_mul_u32_u24 v10, %d, v10" % FS)
    a("v_and_b32 v11, 3, v2")
    a("v_lshl_add_u32 v10, v11, 3, v10")
    a("s_mul_i32 s26, s3, %d" % (32 * FS))
    a("s_add_u32 s26, s26, %d" % TREG)
    a("v_add_u32 v%d, s26, v10" % bF)
    a("v_add_u32 v%d, 128, v%d" % (bFh, bF))
    a("s_waitcnt lgkmcnt(0)")
    srd(a, 12, 6, WS_BYTES)
    srd(a, 8, 4, 2048 * 576 * 2)
    srd(a, 28, 16, 2048 * 576 * 2)
    stamp_setup(a, 3); stamp(a, 0)
    fin_loads()
    core = G.Core(a, ACC, FB0, FB1, FS, TREG, vTa, vTb, vF, vFh)
    trk = core.trk
    pairs = ((vTa[0], bTa), (vF, bF), (vTb[0], bTb), (vFh, bFh))
    for d, s_ in pairs: a("v_mov_b32 v%d, v%d" % (d, s_))
    for r in range(ACC, ACC + 72): a("v_mov_b32 v%d, 0" % r)
    a("s_mov_b32 s27, 0")
    a("s_mov_b32 s33, 0")
    a("s_barrier")
    stamp(a, 1)
    core.prime(0, core.reads(0, 0))
    def iteration(buf):
        trk.drain()
        a("s_barrier")
        a("s_add_u32 s27, s27, %d" % SLOT)
        a("s_cmp_eq_u32 s27, %d" % (R * SLOT))
        a("s_cselect_b32 s27, 0, s27")
        pre = ["v_add_u32 v%d, s27, v%d" % (d, s_) for d, s_ in pairs]
        core.phase(buf, core.reads(1 - buf, 0), pre=pre)
    a.label("%s_cloop" % name)
    iteration(0); iteration(1)
    a("s_add_u32 s33, s33, 1")
    a("s_cmp_lt_u32 s33, %d" % (NST // 2))
    a("s_cbranch_scc1 %s_cloop" % name)
    trk.drain()
    stamp(a, 2)
    a("s_mul_i32 s33, s3, %d" % (18 * 1024))
    a("v_lshlrev_b32 v10, 4, v2")
    a("v_add_u32 v11, s33, v10")
    a("s_nop 4")
    for n, (ft, tt) in enumerate(TILES):
        a("ds_write_b128 v11, %s offset:%d" % (vr(core.accr(ft, tt)), 1024 * tidx(ft, tt)))
        if n in (7, 13): a("s_waitcnt lgkmcnt(4)")
    a("s_waitcnt lgkmcnt(0) vmcnt(0)")
    a.label("%s_fin" % name)
    a("s_barrier")
    stamp(a, 3)
    a("v_lshlrev_b32 v10, 4, v2")
    a("v_lshrrev_b32 v11, 2, v2")
    a("v_lshlrev_b32 v11, 7, v11")
    a("v_and_b32 v12, 3, v2")
    a("v_lshl_add_u32 v11, v12, 3, v11")
    a("s_mov_b32 s33, 0xbfb8aa3b")
    PT = 16; YR = 64
    for s_ in range(3):
        b = 64 + 4 * s_
        if s_ == 2:
            a("s_cmp_ge_u32 s54, 2")
            a("s_cbranch_scc1 %s_rd" % name)
        a("v_add_u32 v4, s%d, v10" % (b + 2))
        a("v_add_u32 v5, s%d, v11" % (b + 1))
        for q in range(4):
            a("ds_read_b128 %s, v4 offset:%d" % (vr(PT + 16 * s_ + 4 * q), 18432 * q))
        a("ds_read_b64_tr_b16 %s, v5" % vr(YR + 2 * s_, 2))
    a.label("%s_rd" % name)
    T = 104
    for s_ in range(3):
        b = 64 + 4 * s_
        if s_ == 0: a("s_waitcnt lgkmcnt(5)")
        if s_ == 1: a("s_waitcnt lgkmcnt(0)")
        if s_ == 2:
            a("s_cmp_ge_u32 s54, 2")
            a("s_cbranch_scc1 %s_done" % name)
        o = PT + 16 * s_; X = XR + 2 * s_; Y = YR + 2 * s_; S_ = ST + 2 * s_
        for h in (0, 2):
            a("v_pk_add_f32 %s, %s, %s" % (vr(o + h, 2), vr(o + h, 2), vr(o + 4 + h, 2)))
            a("v_pk_add_f32 %s, %s, %s" % (vr(o + 8 + h, 2), vr(o + 8 + h, 2), vr(o + 12 + h, 2)))
        for h in (0, 2):
            a("v_pk_add_f32 %s, %s, %s" % (vr(o + h, 2), vr(o + h, 2), vr(o + 8 + h, 2)))
        rnd_pair(a, T + 20, o, o + 1); rnd_pair(a, T + 21, o + 2, o + 3)
        for r in range(4): a("v_mul_f32 v%d, s33, v%d" % (T + r, o + r))
        for r in range(4): a("v_exp_f32 v%d, v%d" % (T + r, T + r))
        a("v_lshlrev_b32 v%d, 16, v%d" % (T + 4, X)); a("v_and_b32 v%d, 0xffff0000, v%d" % (T + 5, X))
        a("v_lshlrev_b32 v%d, 16, v%d" % (T + 6, X + 1)); a("v_and_b32 v%d, 0xffff0000, v%d" % (T + 7, X + 1))
        for r in range(4): a("v_add_f32 v%d, 1.0, v%d" % (T + r, T + r))
        for r in range(4): a("v_rcp_f32 v%d, v%d" % (T + r, T + r))
        for r in range(4): a("v_sub_f32 v%d, v%d, v%d" % (T + 12 + r, T + 4 + r, S_))
        a("v_lshlrev_b32 v%d, 16, v%d" % (T + 8, Y)); a("v_and_b32 v%d, 0xffff0000, v%d" % (T + 9, Y))
        a("v_lshlrev_b32 v%d, 16, v%d" % (T + 10, Y + 1)); a("v_and_b32 v%d, 0xffff0000, v%d" % (T + 11, Y + 1))
        for r in range(4): a("v_mul_f32 v%d, v%d, v%d" % (o + r, o + r, T + r))
        rnd_pair(a, T + 20, T + 12, T + 13); rnd_pair(a, T + 21, T + 14, T + 15)
        rnd_pair(a, T + 22, o, o + 1); rnd_pair(a, T + 23, o + 2, o + 3)
        for r in range(4): a("v_mul_f32 v%d, v%d, v%d" % (T + 12 + r, T + 12 + r, S_ + 1))
        rnd_pair(a, T + 20, T + 12, T + 13); rnd_pair(a, T + 21, T + 14, T + 15)
        for r in range(4): a("v_mul_f32 v%d, v%d, v%d" % (T + 12 + r, T + 12 + r, T + 8 + r))
        rnd_pair(a, T + 20, T + 12, T + 13); rnd_pair(a, T + 21, T + 14, T + 15)
        for r in range(4): a("v_mul_f32 v%d, v%d, v%d" % (T + 12 + r, T + 12 + r, o + r))
        rnd_pair(a, T + 20, T + 12, T + 13); rnd_pair(a, T + 21, T + 14, T + 15)
        for r in range(4): a("v_add_f32 v%d, v%d, v%d" % (T + 12 + r, T + 12 + r, T + 4 + r))
        a("v_cvt_pk_bf16_f32 v%d, v%d, v%d" % (X, T + 12, T + 13))
        a("v_cvt_pk_bf16_f32 v%d, v%d, v%d" % (X + 1, T + 14, T + 15))
        a("buffer_store_dwordx2 %s, v13, s[28:31], s%d offen" % (vr(X, 2), b))
    a.label("%s_done" % name)
    stamp(a, 4)
    G.stamp_rt(a, 1)
    a.label("%s_end" % name)
    a("s_endpgm")
    return a.text(), kernel_desc(name, 256, 256), (name, 256, 512, R * SLOT + 10240)

def gen_kw(name="kw_kernel"):
    return G.gen_k0(name)

gen_k2 = G.gen_k2; gen_k3 = G.gen_k3; gen_kc = G.gen_kc

if __name__ == "__main__":
    which = sys.argv[1]; out = sys.argv[2]
    if len(sys.argv) > 3: DBG.update(sys.argv[3].split(","))
    ks = [globals()["gen_" + w]() for w in which.split(",")]
    if "wt" in DBG:
        import re
        ks = [(re.sub(r"(buffer_store_dwordx[24] [^\n]*s\[12:15\][^\n]*?)( sc1)?\n", lambda m: m.group(1) + " sc1\n", k[0]),) + k[1:] for k in ks]
    if "nts" in DBG:
        import re
        ks = [(re.sub(r"(buffer_store_dwordx4 [^\n]*s\[12:15\][^\n]*?)\n", lambda m: m.group(1) + (" nt\n" if "sc1" not in m.group(1) else "\n"), k[0]),) + k[1:] for k in ks]
    open(out, "w").write(assemble_file([k[2] for k in ks], "".join(k[0] for k in ks), [k[1] for k in ks]))
```

```python
import sys, copy
from asmgen import *
import gen as G
import gen2 as G2
from gen import (ZIMG, Z1IMG, PIMG, WOT, KVT, YT, STATS2, STATS1, WS_BYTES, DBG, LdsTracker, vr, stamp, stamp_setup,
                 rnd_pair, f32, emit_xg_reduce, emit_ln_finish)
from gen2 import VmTracker, TILES, tidx, emit_fold_gelu, gelu_consts, seg_end, SPIN_MAX

def emit_kv_loads(a, KD=16, VD=32, SD=44, K56=56, K57=57):
    a("s_mul_hi_u32 s36, s41, 0x%x" % ((2**32 + 8) // 9))
    a("s_mul_i32 s37, s36, 9")
    a("s_sub_u32 s37, s41, s37")
    a("v_and_b32 v1, 31, v0")
    a("v_lshrrev_b32 v10, 5, v0")
    a("s_lshl_b32 s38, s36, 6")
    a("v_lshl_add_u32 v%d, v10, 3, s38" % K56)
    a("s_lshl_b32 s39, s37, 7")
    a("v_lshl_add_u32 v%d, v1, 2, s39" % K57)
    a("v_mul_u32_u24 v5, 1152, v%d" % K56)
    a("v_add_u32 v5, v5, v%d" % K57)
    a("v_subrev_u32 v6, %d, v5" % (3 * 1152))
    a("v_cmp_gt_u32 vcc, 3, v%d" % K56)
    a("v_mov_b32 v7, 0x7ffffff0")
    a("v_add_u32 v9, %d, v5" % 3456)
    a("v_cndmask_b32 v8, v6, v7, vcc")
    a("v_add_u32 v10, %d, v5" % 6912)
    for n in range(3):
        a("buffer_load_dword v%d, v8, s[64:67], 0 offen offset:%d" % (KD + n, 1152 * n))
    for n in range(8):
        base, off = ((5, 1152 * n) if n < 3 else (9, 1152 * (n - 3)) if n < 6 else (10, 1152 * (n - 6)))
        a("buffer_load_dword v%d, v%d, s[64:67], 0 offen offset:%d" % (KD + 3 + n, base, off))
        a("buffer_load_dword v%d, v%d, s[68:71], 0 offen offset:%d" % (VD + n, base, off))
    a("v_lshlrev_b32 v11, 2, v%d" % K57)
    a("buffer_load_dwordx4 %s, v11, s[72:75], 0 offen" % vr(SD))

def emit_kv_compute(a, wait=True, store=True):
    if wait: a("s_waitcnt vmcnt(0)")
    for ch in range(2):
        for q in range(2):
            a("v_lshlrev_b32 v%d, 16, v%d" % (48 + 4 * ch + 2 * q, 44 + 2 * ch + q))
            a("v_and_b32 v%d, 0xffff0000, v%d" % (49 + 4 * ch + 2 * q, 44 + 2 * ch + q))
    for n in range(11):
        a("v_lshlrev_b32 v%d, 16, v%d" % (60 + n, 16 + n))
        a("v_and_b32 v%d, 0xffff0000, v%d" % (72 + n, 16 + n))
    OUT = 100
    for e0 in range(0, 8, 2):
        es = (e0, e0 + 1)
        R_ = {e: (84 + 6 * (e & 1)) for e in es}
        for e in es:
            A0 = R_[e]
            a("v_mul_f32 v%d, v%d, v%d" % (A0, 60 + e, 51)); a("v_mul_f32 v%d, v%d, v%d" % (A0 + 1, 72 + e, 55))
        for e in es: rnd_pair(a, R_[e] + 4, R_[e], R_[e] + 1)
        for t in range(1, 4):
            for e in es:
                A0 = R_[e]
                a("v_mul_f32 v%d, v%d, v%d" % (A0 + 2, 60 + e + t, 51 - t)); a("v_mul_f32 v%d, v%d, v%d" % (A0 + 3, 72 + e + t, 55 - t))
            for e in es: rnd_pair(a, R_[e] + 4, R_[e] + 2, R_[e] + 3)
            for e in es:
                A0 = R_[e]
                a("v_add_f32 v%d, v%d, v%d" % (A0, A0, A0 + 2)); a("v_add_f32 v%d, v%d, v%d" % (A0 + 1, A0 + 1, A0 + 3))
            for e in es: rnd_pair(a, R_[e] + 4, R_[e], R_[e] + 1)
        for e in es:
            A0 = R_[e]
            a("v_lshlrev_b32 v%d, 16, v%d" % (A0 + 2, 32 + e)); a("v_and_b32 v%d, 0xffff0000, v%d" % (A0 + 3, 32 + e))
            a("v_mul_f32 v%d, v%d, v%d" % (OUT + e, A0, A0 + 2)); a("v_mul_f32 v%d, v%d, v%d" % (OUT + 8 + e, A0 + 1, A0 + 3))
    for ch in range(2):
        for q in range(4):
            a("v_cvt_pk_bf16_f32 v%d, v%d, v%d" % (120 + 4 * ch + q, OUT + 8 * ch + 7 - 2 * q, OUT + 8 * ch + 6 - 2 * q))
    a("v_lshlrev_b32 v12, 11, v57")
    a("v_sub_u32 v13, 2040, v56")
    a("v_lshl_add_u32 v12, v13, 1, v12")
    a("v_add_u32 v13, 4096, v12")
    if not store: return
    a("s_mov_b32 s39, 0x%x" % KVT)
    a("buffer_store_dwordx4 v[120:123], v12, s[12:15], s39 offen")
    a("buffer_store_dwordx4 v[124:127], v13, s[12:15], s39 offen")

def emit_wot_loads(a, WD=128, WO=140, PER=360, NL=2):
    a("s_mul_i32 s36, s42, %d" % PER)
    a("s_mov_b32 s37, 0x%x" % ((2**32 + 9) // 10))
    a("s_mov_b32 s38, 0x%x" % ((2**32 + 17) // 18))
    a("s_mov_b32 s40, 0x%x" % WOT)
    for n in range(NL):
        a("v_add_u32 v16, s36, v0")
        if n: a("v_add_u32 v16, %d, v16" % (256 * n))
        a("v_mul_hi_u32 v17, v16, s37")
        a("v_mul_u32_u24 v18, 10, v17")
        a("v_sub_u32 v18, v16, v18")
        a("v_lshrrev_b32 v19, 7, v17")
        a("v_and_b32 v20, 127, v17")
        a("v_mul_hi_u32 v21, v19, s38")
        a("v_mul_u32_u24 v22, 18, v21")
        a("v_sub_u32 v22, v19, v22")
        a("v_and_b32 v23, 0x63, v20")
        a("v_bfe_u32 v24, v20, 2, 2")
        a("v_lshl_add_u32 v23, v24, 3, v23")
        a("v_bfe_u32 v24, v20, 4, 1")
        a("v_lshl_add_u32 v23, v24, 2, v23")
        a("v_lshl_add_u32 v23, v22, 7, v23")
        a("v_mul_u32_u24 v23, 1152, v23")
        a("v_lshrrev_b32 v24, 1, v21")
        a("v_mul_u32_u24 v24, 288, v24")
        a("v_add_u32 v23, v23, v24")
        a("v_lshl_add_u32 v23, v18, 4, v23")
        a("v_and_b32 v24, 1, v21")
        a("v_cmp_gt_u32 vcc, 8, v18")
        a("v_mul_u32_u24 v24, 160, v24")
        a("v_lshlrev_b32 v%d, 4, v16" % (WO + n))
        a("v_cndmask_b32 v24, 0, v24, vcc")
        a("v_add_u32 v23, v23, v24")
        if n == NL - 1:
            a("v_cmp_gt_u32 vcc, %d, v0" % (PER - 256 * (NL - 1)))
            a("v_mov_b32 v24, 0x7ffffff0")
            a("s_nop 0")
            a("v_cndmask_b32 v23, v24, v23, vcc")
            a("v_cndmask_b32 v%d, v24, v%d, vcc" % (WO + n, WO + n))
        a("buffer_load_dwordx4 %s, v23, s[76:79], 0 offen" % vr(WD + 4 * n))

CJ_EB = 0; CJ_OB = 4160; CJ_UB = 8320; CJ_SIZE = 12928
def seg_end2(a, name):
    return

CJ_H = [56, 64, 72, 80]; CJ_U = 224
def emit_conv_loads(a):
    a("s_lshl_b32 s36, s43, 12")
    a("v_lshlrev_b32 v4, 4, v2")
    for n in range(4):
        a("buffer_load_dwordx4 %s, v4, s[16:19], s36 offen offset:%d" % (vr(CJ_H[n]), 1024 * n))
    a("v_add_u32 v5, 16, v4")
    for n in range(4):
        a("buffer_load_dword v%d, v5, s[16:19], s36 offen offset:%d" % (CJ_H[n] + 4, 1024 * n))
    a("s_add_u32 s37, s36, 0x%x" % KVT)
    for n in range(4):
        a("buffer_load_dwordx4 %s, v4, s[12:15], s37 offen offset:%d" % (vr(CJ_U + 4 * n), 1024 * n))
    a("s_lshl_b32 s37, s43, 1")
    a("v_mov_b32 v6, s37")
    a("buffer_load_ushort v240, v6, s[84:87], 0 offen")
    return 13

def emit_conv_job(a, name, mid=None):
    EB, OB, UB = CJ_EB, CJ_OB, CJ_UB
    H = CJ_H
    a("v_lshlrev_b32 v4, 4, v2")
    a("v_add_u32 v12, s27, v4")
    for r in range(8, 12): a("v_mov_b32 v%d, 0" % r)
    a("v_lshlrev_b32 v5, 3, v2")
    a("v_add_u32 v5, s27, v5")
    a("ds_write_b64 v5, v[8:9] offset:%d" % (UB + 4096))
    a("s_mov_b64 exec, 3")
    a("ds_write_b128 v12, v[8:11] offset:%d" % EB)
    a("ds_write_b128 v12, v[8:11] offset:%d" % OB)
    a("s_mov_b64 exec, -1")
    for n in range(4):
        a("ds_write_b128 v12, %s offset:%d" % (vr(CJ_U + 4 * n), UB + 1024 * n))
    a("s_waitcnt lgkmcnt(3)")
    for n in range(4):
        a("ds_write_b128 v12, %s offset:%d" % (vr(H[n]), EB + 32 + 1024 * n))
        for q in range(4):
            a("v_alignbit_b32 v%d, v%d, v%d, 16" % (88 + 4 * (n & 1) + q, H[n] + q + 1, H[n] + q))
        a("ds_write_b128 v12, %s offset:%d" % (vr(88 + 4 * (n & 1)), OB + 32 + 1024 * n))
    a("s_mov_b64 exec, 1")
    a("v_mov_b32 v5, s27")
    a("ds_write_b16 v5, v%d offset:%d" % (H[0], OB + 30))
    a("s_mov_b64 exec, -1")
    if mid: mid()
    a("v_and_b32 v5, 15, v2")
    a("v_lshrrev_b32 v6, 4, v2")
    a("v_lshl_add_u32 v7, v6, 3, v5")
    a("v_and_b32 v8, 1, v5")
    a("v_add_u32 v7, v7, v8")
    a("v_lshlrev_b32 v7, 1, v7")
    a("v_cmp_eq_u32 vcc, 0, v8")
    a("v_mov_b32 v9, %d" % EB); a("v_mov_b32 v10, %d" % OB)
    a("v_cndmask_b32 v9, v9, v10, vcc")
    a("v_add3_u32 v7, v7, v9, s27")
    AA = 52
    for q in range(4):
        a("v_add_u32 v%d, %d, v7" % (AA + q, 1024 * q))
    a("v_lshlrev_b32 v9, 4, v6")
    a("v_lshlrev_b32 v10, 5, v5")
    a("v_sub_u32 v9, v9, v10")
    a("s_add_u32 s38, s27, %d" % (UB + 480))
    a("v_add_u32 v11, s38, v9")
    a("v_lshlrev_b32 v9, 5, v5")
    a("v_lshl_add_u32 v9, v6, 3, v9")
    a("s_add_u32 s38, s27, %d" % (UB + 4088 - 3584))
    a("v_sub_u32 v10, s38, v9")
    ACC = 96; AF = [112, 176]; BF = [144, 208]
    for r in range(ACC, ACC + 16): a("v_mov_b32 v%d, 0" % r)
    a("v_lshlrev_b32 v13, 16, v240")
    a("s_lshl_b32 s36, s43, 12")
    a("s_add_u32 s37, s36, 0x%x" % YT)
    a("s_mov_b32 s33, 0")
    a("s_waitcnt lgkmcnt(0)")
    stamp(a, 3)
    a("s_cmp_eq_u32 s26, 1")
    a("s_cbranch_scc1 %s_cj1" % name)
    for hv, tiles in enumerate(([7, 6, 1, 0], [5, 4, 3, 2])):
        if hv: a.label("%s_cj1" % name)
        nq = max(tiles) + 1
        trk = LdsTracker(a)
        def room():
            if len(trk.out) >= 13:
                a("s_waitcnt lgkmcnt(8)"); trk.out = trk.out[-8:]
        def reads(kk, buf):
            L = []
            for q in range(nq):
                r = BF[buf] + 4 * q
                L.append(("ds_read_b128 %s, v11 offset:%d" % (vr(r), 3584 - 512 * q + 64 * kk), range(r, r + 4)))
                r = AF[buf] + 4 * q
                o = 128 * (q & 1) + 16 * kk
                L.append(("ds_read2_b32 %s, v%d offset0:%d offset1:%d" % (vr(r, 2), AA + (q >> 1), o, o + 1), range(r, r + 2)))
                L.append(("ds_read2_b32 %s, v%d offset0:%d offset1:%d" % (vr(r + 2, 2), AA + (q >> 1), o + 2, o + 3), range(r + 2, r + 4)))
            return L
        for t, r in reads(0, 0):
            room(); a(t); trk.issue(r)
        trk.drain()
        ms = sorted([(max(jj, n - jj), ti, n, jj) for ti, n in enumerate(tiles) for jj in range(n + 1)])
        def step(buf, kk_next, upd):
            nxt = [("x", u) for u in upd] + [("r", x) for x in reads(kk_next, 1 - buf)]
            tot = len(nxt); done = 0
            for mi, (_, ti, n, jj) in enumerate(ms):
                A = AF[buf] + 4 * jj; B = BF[buf] + 4 * (n - jj); c = ACC + 4 * ti
                trk.need(list(range(A, A + 4)) + list(range(B, B + 4)))
                a("v_mfma_f32_16x16x32_bf16 %s, %s, %s, %s" % (vr(c), vr(A), vr(B), vr(c)))
                want = (tot * (mi + 1) + 15) // 16
                while nxt and done < want:
                    k, t = nxt.pop(0); done += 1
                    if k == "x": a(t)
                    else:
                        room(); a(t[0]); trk.issue(t[1])
        upd = ["v_add_u32 v11, 128, v11"] + ["v_add_u32 v%d, 128, v%d" % (AA + q, AA + q) for q in range((nq + 1) // 2)] + ["s_add_u32 s33, s33, 1"]
        a.label("%s_cjl%d" % (name, hv))
        lb = len(a.lines)
        for it_ in range(8):
            st = copy.deepcopy(trk.out)
            step(0, 1, list([])); step(1, 0, list(upd))
            a("s_waitcnt lgkmcnt(6)"); trk.out = trk.out[-6:]
            if [sorted(x) for x in trk.out] == [sorted(x) for x in st]: break
            del a.lines[lb:]
        else:
            assert False, "no fixed point"
        a("s_cmp_lt_u32 s33, 4")
        a("s_cbranch_scc1 %s_cjl%d" % (name, hv))
        trk.drain()
        stamp(a, 4 + 2 * hv)
        for ti, n in enumerate(tiles):
            a("ds_read_b64 %s, v10 offset:%d" % (vr(112 + 2 * ti, 2), 3584 - 512 * n))
        a("s_waitcnt lgkmcnt(0)")
        for ti, n in enumerate(tiles):
            c = ACC + 4 * ti; U = 112 + 2 * ti; T = 120
            a("v_and_b32 v%d, 0xffff0000, v%d" % (T + 0, U + 1)); a("v_lshlrev_b32 v%d, 16, v%d" % (T + 1, U + 1))
            a("v_and_b32 v%d, 0xffff0000, v%d" % (T + 2, U)); a("v_lshlrev_b32 v%d, 16, v%d" % (T + 3, U))
            for r in range(4): a("v_mul_f32 v%d, v%d, v13" % (T + r, T + r))
            rnd_pair(a, T + 4, T, T + 1); rnd_pair(a, T + 4, T + 2, T + 3)
            rnd_pair(a, T + 4, c, c + 1); rnd_pair(a, T + 4, c + 2, c + 3)
            for r in range(4): a("v_add_f32 v%d, v%d, v%d" % (c + r, c + r, T + r))
            a("v_cvt_pk_bf16_f32 v%d, v%d, v%d" % (U, c, c + 1))
            a("v_cvt_pk_bf16_f32 v%d, v%d, v%d" % (U + 1, c + 2, c + 3))
            a("buffer_store_dwordx2 %s, v9, s[12:15], s37 offen offset:%d" % (vr(U, 2), 512 * n))
        stamp(a, 5 + 2 * hv)
        if hv == 0:
            a("s_cmp_eq_u32 s26, 0")
            a("s_cbranch_scc1 %s_cjdone" % name)
            a("v_subrev_u32 v11, 512, v11")
            for q in range(4): a("v_subrev_u32 v%d, 512, v%d" % (AA + q, AA + q))
            for r in range(ACC, ACC + 16): a("v_mov_b32 v%d, 0" % r)
            a("s_mov_b32 s33, 0")
    a.label("%s_cjdone" % name)

def gen_k1e(name="k1_kernel"):
    a = Asm()
    TS = 16384; NT = 3; TB0 = 4096; FB_ = TB0 + NT * TS; FSL = 18432; NF = 6; FS = 576; NK = 18
    LDSB = FB_ + NF * FSL; RST = 0; CSO = 1024; CJB = TB0 + 4 * 18432
    kernel_begin(a, name)
    a("s_load_dwordx2 s[80:81], s[0:1], 0")
    a("s_load_dwordx2 s[4:5], s[0:1], 56")
    a("s_cmp_ge_u32 s2, 256")
    a("s_cbranch_scc1 %s_end" % name)
    a("v_lshrrev_b32 v1, 6, v0")
    a("v_and_b32 v2, 63, v0")
    a("v_readfirstlane_b32 s3, v1")
    a("s_and_b32 s20, s2, 7")
    a("s_lshr_b32 s21, s2, 3")
    a("s_and_b32 s22, s20, 1")
    a("s_lshl_b32 s22, s22, 3")
    a("s_and_b32 s23, s21, 7")
    a("s_add_u32 s22, s22, s23")
    a("s_lshr_b32 s21, s21, 3")
    a("s_and_b32 s23, s20, 6")
    a("s_and_b32 s24, s21, 1")
    a("s_add_u32 s23, s23, s24")
    a("s_lshr_b32 s21, s21, 1")
    a("s_mov_b32 s99, 0")
    a("s_mov_b64 s[96:97], -1")
    a("s_cmp_lt_u32 s3, 4")
    a("s_cbranch_scc1 %s_consumer" % name)
    a("s_setprio 3")
    a("s_sub_u32 s3, s3, 4")
    a("v_lshrrev_b32 v3, 3, v2")
    a("v_and_b32 v4, 7, v2")
    VT = 16; VF = 20
    a("s_lshl_b32 s24, s3, 5")
    a("v_add_u32 v5, s24, v3")
    a("v_lshrrev_b32 v7, 4, v2")
    a("v_xor_b32 v7, v7, v4")
    a("v_mul_u32_u24 v6, 1152, v5")
    a("v_lshl_add_u32 v%d, v7, 4, v6" % VT)
    a("v_xor_b32 v%d, 64, v%d" % (VT + 1, VT))
    a("v_add_u32 v%d, %d, v%d" % (VT + 1, 9216 - 1024, VT + 1))
    a("v_add_u32 v%d, %d, v%d" % (VT + 2, 2 * (9216 - 1024), VT))
    a("v_add_u32 v%d, %d, v%d" % (VT + 3, 2 * (9216 - 1024), VT + 1))
    a("s_mul_i32 s26, s22, %d" % (128 * 1152))
    a("s_lshl_b32 s24, s3, 12")
    a("s_add_u32 s24, s24, %d" % TB0)
    a("s_mov_b32 s33, 0")
    a("s_waitcnt lgkmcnt(0)")
    srd(a, 28, 80, 2048 * 576 * 2)
    vm = VmTracker(a)
    def issueT(m):
        a("s_add_u32 s35, s33, s24")
        a("s_mov_b32 m0, s35")
        a("s_add_u32 s33, s33, %d" % TS)
        for n in range(4):
            if "nodma" not in DBG: a("buffer_load_dwordx4 v%d, s[28:31], s26 offen offset:%d lds" % (VT + n, 1024 * n))
        a("s_add_u32 s26, s26, 128")
        a("s_cmp_eq_u32 s33, %d" % (NT * TS))
        a("s_cselect_b32 s33, 0, s33")
        vm.issue("T%d" % m, 4)
    issueT(0)
    srd(a, 8, 4, 576 * 4608 * 2)
    for n in range(5):
        if n: a("v_add_u32 v6, %d, v2" % (64 * n))
        src = "v6" if n else "v2"
        a("v_mul_u32_u24 v7, 1821, %s" % src)
        a("v_lshrrev_b32 v7, 16, v7")
        a("v_mul_u32_u24 v8, 36, v7")
        a("v_sub_u32 v8, %s, v8" % src)
        a("v_bfe_u32 v9, v7, 2, 1")
        a("v_lshlrev_b32 v6, 1, v9")
        a("v_xor_b32 v8, v8, v6")
        a("v_and_b32 v7, 3, v7")
        a("v_lshl_add_u32 v7, v9, 3, v7")
        a("v_mul_u32_u24 v7, 9216, v7")
        a("v_lshl_add_u32 v%d, v8, 4, v7" % (VF + n))
        if 0 < n < 4: a("v_subrev_u32 v%d, %d, v%d" % (VF + n, 1024 * n, VF + n))
    a("s_and_b32 s36, s3, 1")
    a("s_lshl_b32 s36, s36, 4")
    a("s_lshr_b32 s37, s3, 1")
    a("s_lshl_b32 s37, s37, 2")
    a("s_add_u32 s36, s36, s37")
    a("s_mul_i32 s27, s36, 9216")
    a("s_mul_i32 s36, s23, 576")
    a("s_add_u32 s27, s27, s36")
    a("s_cmp_eq_u32 s21, 0")
    a("s_cselect_b32 s36, 4608, 0")
    a("s_add_u32 s27, s27, s36")
    a("s_mul_i32 s25, s3, 4608")
    a("s_add_u32 s25, s25, %d" % FB_)
    a("s_mov_b32 s34, 0")
    def issueF(k):
        a("s_add_u32 s35, s34, s25")
        a("s_mov_b32 m0, s35")
        a("s_add_u32 s36, s35, 4096")
        for n in range(4):
            if "nodma" not in DBG: a("buffer_load_dwordx4 v%d, s[8:11], s27 offen offset:%d lds" % (VF + n, 1024 * n))
        a("s_mov_b32 m0, s36")
        a("s_mov_b64 exec, 0xffffffff")
        if "nodma" not in DBG: a("buffer_load_dwordx4 v%d, s[8:11], s27 offen lds" % (VF + 4))
        a("s_mov_b64 exec, -1")
        a("s_add_u32 s27, s27, %d" % (32 * 9216))
        a("s_add_u32 s34, s34, %d" % FSL)
        a("s_cmp_eq_u32 s34, %d" % (NF * FSL))
        a("s_cselect_b32 s34, 0, s34")
        vm.issue("F%d" % k, 5)
    issueF(0); issueF(1)
    def other_setup():
        a("s_load_dwordx2 s[6:7], s[0:1], 104")
        a("s_load_dwordx2 s[18:19], s[0:1], 96")
        a("s_load_dwordx4 s[88:91], s[0:1], 32")
        a("s_waitcnt lgkmcnt(0)")
        srd(a, 12, 6, WS_BYTES)
        srd(a, 60, 18, 256)
        srd(a, 16, 88, 576 * 2048 * 2)
        srd(a, 84, 90, 576 * 2)
    other_setup()
    a("s_add_u32 s3, s3, 4"); stamp_setup(a, 1); stamp(a, 0); a("s_sub_u32 s3, s3, 4")
    SS = [28, 30, 32, 34]; ONE = 36
    for r in range(28, 36): a("v_mov_b32 v%d, 0" % r)
    for r in range(ONE, ONE + 4): a("v_mov_b32 v%d, 0x3f803f80" % r)
    CA = 40
    for r in range(CA, CA + 20): a("v_mov_b32 v%d, 0" % r)
    XB = 64; CF = 80
    a("v_lshlrev_b32 v10, 4, v2")
    a("v_add_u32 v10, s24, v10")
    a("v_lshrrev_b32 v11, 2, v2")
    a("v_mul_u32_u24 v11, %d, v11" % FS)
    a("v_and_b32 v12, 3, v2")
    a("v_lshl_add_u32 v11, v12, 3, v11")
    a("v_bfe_u32 v13, v2, 4, 1")
    a("v_lshlrev_b32 v13, 5, v13")
    a("s_lshr_b32 s36, s3, 1")
    a("s_mul_i32 s37, s36, 9")
    a("s_and_b32 s38, s3, 1")
    a("s_lshl_b32 s38, s38, 2")
    a("s_add_u32 s37, s37, s38")
    a("s_lshl_b32 s40, s37, 6")
    a("s_lshl_b32 s37, s37, 5")
    a("s_add_u32 s37, s37, %d" % FB_)
    a("v_add_u32 v11, s37, v11")
    a("v_add_u32 v5, v11, v13")
    a("v_sub_u32 v6, v11, v13")
    a("s_cmp_eq_u32 s36, 0")
    a("s_cselect_b64 vcc, -1, 0")
    a("v_cndmask_b32 v11, v6, v5, vcc")
    a("v_cndmask_b32 v12, v5, v6, vcc")
    def rowstats_rd(m):
        if "nors" in DBG: return
        a("v_add_u32 v5, %d, v10" % ((m % NT) * TS))
        for n in range(4):
            a("ds_read_b128 %s, v5 offset:%d" % (vr(XB + 4 * n), 1024 * n))
    def rowstats_do():
        if "nors" in DBG: return
        for d in range(4):
            for n in range(4):
                r = XB + 4 * n + d
                a("v_dot2_f32_bf16 v%d, v%d, v%d, v%d" % (SS[n], r, ONE, SS[n]))
                a("v_dot2_f32_bf16 v%d, v%d, v%d, v%d" % (SS[n] + 1, r, r, SS[n] + 1))
    def colsum_rd(k):
        if "nocs" in DBG: return
        a("v_add_u32 v6, %d, v11" % ((k % NF) * FSL))
        a("v_add_u32 v7, %d, v12" % ((k % NF) * FSL))
        for q in range(5):
            for half in range(2):
                a("ds_read_b64_tr_b16 %s, v%d offset:%d" % (vr(CF + 4 * q + 2 * half, 2), 6 + (q & 1), 16 * half * FS + 32 * q))
    def colsum_do():
        if "nocs" in DBG: return
        for q in range(5):
            a("v_mfma_f32_16x16x32_bf16 %s, %s, %s, %s" % (vr(CA + 4 * q), vr(CF + 4 * q), vr(ONE), vr(CA + 4 * q)))
    vm.wait(["T0", "F0"])
    a("s_barrier")
    stamp(a, 1)
    colsum_rd(0); rowstats_rd(0)
    issueT(1); issueF(2); issueF(3)
    a("s_waitcnt lgkmcnt(0)")
    colsum_do(); rowstats_do()
    vm.wait(["F1"])
    a("s_barrier")
    for k in range(NK):
        rs = (k % 2 == 1 and (k + 1) // 2 < 9)
        if k + 1 < NK: colsum_rd(k + 1)
        if rs: rowstats_rd((k + 1) // 2)
        if k == 0:
            issueF(4); issueT(2); issueF(5)
        if k >= 1 and k + 5 < NK: issueF(k + 5)
        if k % 2 == 1 and (k - 1) // 2 + 3 < 9: issueT((k - 1) // 2 + 3)
        a("s_waitcnt lgkmcnt(0)")
        if k + 1 < NK: colsum_do()
        if rs: rowstats_do()
        if k + 1 < NK:
            vm.wait(["F%d" % (k + 2), "T%d" % ((k + 2) // 2)])
            a("s_barrier")
    a("s_nop 3")
    for ctl in ("quad_perm:[1,0,3,2]", "quad_perm:[2,3,0,1]", "row_half_mirror"):
        for rg in range(4):
            for e in range(2):
                a("v_add_f32_dpp v%d, v%d, v%d %s row_mask:0xf bank_mask:0xf" % (SS[rg] + e, SS[rg] + e, SS[rg] + e, ctl))
        a("s_nop 1")
    ML = 64
    for rg in range(4):
        emit_ln_finish(a, SS[rg], SS[rg] + 1, 576, ML + 2 * rg, ML + 2 * rg + 1, 76)
        a("v_mov_b32 v%d, v%d" % (SS[rg] + 1, ML + 2 * rg + 1))
        a("v_sub_f32 v%d, 0, v%d" % (SS[rg], ML + 2 * rg))
    a("s_lshl_b32 s35, s3, 8")
    a("v_lshlrev_b32 v6, 3, v3")
    a("v_add_u32 v12, s35, v6")
    a("v_cmp_eq_u32 vcc, 0, v4")
    a("s_and_saveexec_b64 s[36:37], vcc")
    for rg in range(4):
        a("ds_write_b64 v12, %s offset:%d" % (vr(SS[rg], 2), RST + 64 * rg))
    a("s_mov_b64 exec, s[36:37]")
    a("s_lshl_b32 s36, s21, 8")
    a("s_or_b32 s36, s36, s23")
    a("s_cmp_lg_u32 s36, 256")
    a("s_cbranch_scc1 %s_nost1" % name)
    a("s_lshl_b32 s35, s22, 7")
    a("s_lshl_b32 s36, s3, 5")
    a("s_add_u32 s35, s35, s36")
    a("s_lshl_b32 s35, s35, 3")
    a("s_add_u32 s35, s35, 0x%x" % STATS1)
    a("v_mov_b32 v7, 0x7ffffff0")
    a("v_cndmask_b32 v6, v7, v6, vcc")
    for rg in range(4):
        a("buffer_store_dwordx2 %s, v6, s[12:15], s35 offen offset:%d" % (vr(ML + 2 * rg, 2), 64 * rg))
    a.label("%s_nost1" % name)
    a("v_lshrrev_b32 v12, 4, v2")
    a("v_lshlrev_b32 v12, 4, v12")
    a("v_add_u32 v12, s40, v12")
    a("v_and_b32 v13, 15, v2")
    a("v_cmp_eq_u32 vcc, 0, v13")
    a("s_and_saveexec_b64 s[36:37], vcc")
    for q in range(5):
        a("ds_write_b128 v12, %s offset:%d" % (vr(CA + 4 * q), CSO + 64 * q))
    a("s_mov_b64 exec, s[36:37]")
    a("s_waitcnt lgkmcnt(0)")
    a("s_barrier")
    a("s_setprio 0")
    ACC = 112
    a("s_lshr_b32 s24, s3, 1")
    a("s_and_b32 s25, s3, 1")
    a("v_and_b32 v3, 15, v2")
    a("s_lshl_b32 s23, s23, 1")
    a("s_add_u32 s23, s23, 1")
    a("s_mov_b32 s40, 576")
    a("s_mov_b32 s98, 1")
    a("s_mul_i32 s36, s3, 18432")
    a("s_add_u32 s36, s36, %d" % TB0)
    a("v_lshlrev_b32 v10, 4, v2")
    a("v_add_u32 v11, s36, v10")
    a("s_barrier")
    for n in range(18):
        a("ds_read_b128 %s, v11 offset:%d" % (vr(ACC + 4 * n), 1024 * n))
        if n in (7, 13): a("s_waitcnt lgkmcnt(4)")
    a("s_branch %s_epi" % name)

    def gran_addr():
        a("v_lshrrev_b32 v10, 4, v2")
        a("s_lshl_b32 s33, s25, 1")
        a("v_add_u32 v11, s33, v10")
        a("v_and_b32 v11, 3, v11")
        a("v_lshl_add_u32 v11, v11, 4, v3")
        a("v_lshlrev_b32 v94, 8, v11")
        a("s_lshl_b32 s59, s22, 7")
        a("s_lshl_b32 s36, s24, 6")
        a("s_add_u32 s59, s59, s36")
        a("s_lshl_b32 s59, s59, 8")
        a("s_add_u32 s59, s59, 0x%x" % STATS2)
        a("s_lshl_b32 s36, s23, 1")
        a("s_add_u32 s36, s36, s25")
        a("s_lshl_b32 s36, s36, 3")
        a("s_add_u32 s58, s36, s59")
    a.label("%s_consumer" % name)
    a("s_load_dwordx4 s[64:67], s[0:1], 8")
    a("s_load_dwordx2 s[76:77], s[0:1], 24")
    a("s_load_dwordx2 s[78:79], s[0:1], 64")
    other_setup()
    srd(a, 68, 66, 2048 * 576 * 2)
    a("s_mov_b32 s100, s64"); a("s_mov_b32 s101, s65")
    srd(a, 64, 100, 2048 * 576 * 2)
    srd(a, 72, 76, 576 * 8)
    srd(a, 92, 78, 2048 * 2048 * 2)
    stamp_setup(a, 1); stamp(a, 0)
    a("s_lshr_b32 s24, s3, 1")
    a("s_and_b32 s25, s3, 1")
    a("v_and_b32 v3, 15, v2")
    a("s_lshl_b32 s23, s23, 1")
    a("s_mov_b32 s98, 0")
    a("s_mov_b32 s41, s2")
    a.label("%s_kv" % name)
    emit_kv_loads(a)
    a("s_cmp_lg_u32 s41, s2")
    a("s_cbranch_scc1 %s_kv2" % name)
    a("s_cmp_lg_u32 s21, 0")
    a("s_cbranch_scc1 %s_noclr" % name)
    gran_addr()
    a("v_mov_b32 v12, 0"); a("v_mov_b32 v13, 0x80000000")
    a("buffer_store_dwordx2 v[12:13], v94, s[12:15], s58 offen sc1")
    a("buffer_store_dwordx2 v[12:13], v94, s[12:15], s58 offen offset:16 sc1")
    a.label("%s_noclr" % name)
    if "nowarm" not in DBG:
        a("s_mov_b32 s99, 1")
        for r_ in (26, 27, 33, 36, 37, 38, 39, 40, 43, 58, 59): a("s_mov_b32 s%d, 0" % r_)
        for r_ in (4, 12, 13, 94): a("v_mov_b32 v%d, 0" % r_)
        a("s_mov_b64 s[96:97], 0")
        a("s_mov_b64 exec, 0")
        a("s_cmp_eq_u32 s3, 0"); a("s_cbranch_scc1 %s_epi" % name)
        a("s_cmp_eq_u32 s3, 1"); a("s_cbranch_scc1 %s_seg1" % name)
        a("s_cmp_eq_u32 s3, 2"); a("s_cbranch_scc1 %s_seg2" % name)
        a("s_branch %s_seg3" % name)
        a.label("%s_warmret" % name)
        a("s_mov_b64 s[96:97], -1")
        a("s_mov_b64 exec, -1")
        a("s_mov_b32 s99, 0")
    a.label("%s_kv2" % name)
    emit_kv_compute(a)
    a("s_add_u32 s41, s41, 32")
    a("s_cmp_lt_u32 s41, 256")
    a("s_cbranch_scc1 %s_kvd" % name)
    a("s_cmp_lt_u32 s41, 288")
    a("s_cbranch_scc1 %s_kv" % name)
    a.label("%s_kvd" % name)
    TB = [16, 32]; FR = 48
    vTa, vTb, vP = 4, 5, [6, 7]; vH = [8, 9]
    bTa = [88, 89]; bTb = [90, 91]; bP = [92, 93]; bH = [100, 101]
    PF = 96
    a("v_lshrrev_b32 v10, 4, v2")
    a("v_lshrrev_b32 v11, 1, v3")
    a("v_xor_b32 v10, v10, v11")
    a("v_lshlrev_b32 v10, 4, v10")
    a("v_lshl_add_u32 v10, v3, 7, v10")
    a("s_lshl_b32 s26, s24, 13")
    a("s_add_u32 s26, s26, %d" % TB0)
    a("v_add_u32 v10, s26, v10")
    a("s_lshl_b32 s26, s25, 12")
    a("v_add_u32 v%d, s26, v10" % bTa[0])
    a("s_xor_b32 s26, s26, 4096")
    a("v_add_u32 v%d, s26, v10" % bTb[0])
    a("v_xor_b32 v%d, 64, v%d" % (bTa[1], bTa[0]))
    a("v_xor_b32 v%d, 64, v%d" % (bTb[1], bTb[0]))
    a("v_lshrrev_b32 v10, 2, v2")
    a("v_mul_u32_u24 v10, %d, v10" % FS)
    a("v_and_b32 v11, 3, v2")
    a("v_lshl_add_u32 v10, v11, 3, v10")
    a("v_add_u32 v10, %d, v10" % FB_)
    a("v_bfe_u32 v13, v2, 4, 1")
    a("v_lshlrev_b32 v13, 5, v13")
    a("v_add_u32 v%d, v10, v13" % bH[0])
    a("v_sub_u32 v%d, v10, v13" % bH[1])
    a("s_mul_i32 s26, s25, 160")
    a("s_cmp_eq_u32 s25, 0")
    a("s_cselect_b64 vcc, -1, 0")
    a("v_cndmask_b32 v11, v%d, v%d, vcc" % (bH[1], bH[0]))
    a("v_cndmask_b32 v12, v%d, v%d, vcc" % (bH[0], bH[1]))
    a("v_add_u32 v%d, s26, v11" % bP[0])
    a("v_add_u32 v%d, s26, v12" % bP[1])
    a("v_lshrrev_b32 v10, 4, v2")
    a("v_lshlrev_b32 v10, 12, v10")
    a("v_lshl_add_u32 v95, v3, 4, v10")
    a("s_lshl_b32 s41, s22, 7")
    a("s_lshl_b32 s36, s3, 5")
    a("s_add_u32 s41, s41, s36")
    a("s_lshl_b32 s41, s41, 12")
    a("s_add_u32 s36, s23, s21")
    a("s_lshl_b32 s36, s36, 8")
    a("s_add_u32 s41, s41, s36")
    for r in range(ACC, ACC + 144): a("v_mov_b32 v%d, 0" % r)
    def accr(z, ft, tt): return ACC + 72 * z + 4 * tidx(ft, tt)
    def Fr(z, ft): return FR + 20 * z + 4 * ft
    trk = LdsTracker(a)
    def treads(buf):
        L = []
        for tt in range(4):
            r = TB[buf] + 4 * tt
            L.append(("ds_read_b128 %s, v%d offset:%d" % (vr(r), vTa if tt < 2 else vTb, (tt & 1) * 2048), range(r, r + 4)))
        return L
    def freads(z, ft):
        r = Fr(z, ft); L = []
        for half in range(2):
            off = 16 * half * FS + 32 * (9 * z + ft)
            v = vP[(z + ft) & 1] if ft < 4 else vH[z]
            L.append(("ds_read_b64_tr_b16 %s, v%d offset:%d" % (vr(r + 2 * half, 2), v, off), range(r + 2 * half, r + 2 * half + 2)))
        return L
    def rd(t):
        a(t[0]); trk.issue(t[1])
    fpairs = ((vP[0], bP[0]), (vP[1], bP[1]), (vH[0], bH[0]), (vH[1], bH[1]))
    a("v_mov_b32 v%d, v%d" % (vTa, bTa[0])); a("v_mov_b32 v%d, v%d" % (vTb, bTb[0]))
    for d, s_ in fpairs: a("v_mov_b32 v%d, v%d" % (d, s_))
    a("s_mov_b32 s27, 0")
    a("s_mov_b32 s34, 0")
    a("s_mov_b32 s33, 0")
    stamp(a, 1)
    a("s_barrier")
    stamp(a, 2)
    for t in treads(0): rd(t)
    for z in range(2):
        for ft in range(5):
            for t in freads(z, ft): rd(t)
            if len(trk.out) >= 12: trk.drain()
    trk.drain()
    def iteration(par):
        a("s_barrier")
        upd = []
        if par == 1:
            upd += ["s_add_u32 s27, s27, %d" % TS, "s_cmp_eq_u32 s27, %d" % (NT * TS), "s_cselect_b32 s27, 0, s27"]
        upd += ["v_add_u32 v%d, s27, v%d" % (vTa, bTa[1 - par]), "v_add_u32 v%d, s27, v%d" % (vTb, bTb[1 - par])]
        upd += ["s_add_u32 s34, s34, %d" % FSL, "s_cmp_eq_u32 s34, %d" % (NF * FSL), "s_cselect_b32 s34, 0, s34"]
        upd += ["v_add_u32 v%d, s34, v%d" % (d, s_) for d, s_ in fpairs]
        pend = [("x", u) for u in upd] + [("r", t) for t in treads(1 - par)]
        if par == 0:
            pend.append(("x", "buffer_load_dwordx4 %s, v95, s[92:95], s41 offen" % vr(PF)))
            pend.append(("x", "s_add_u32 s41, s41, 16384"))
        else:
            pend.append(("x", "s_add_u32 s33, s33, 1"))
        nm = 0
        for z in range(2):
            for ft in range(5):
                for tt in range(4 if ft < 4 else 2):
                    c = accr(z, ft, tt); A = Fr(z, ft); B = TB[par] + 4 * tt
                    trk.need(list(range(A, A + 4)) + list(range(B, B + 4)))
                    if "nomfma" not in DBG: a("v_mfma_f32_16x16x32_bf16 %s, %s, %s, %s" % (vr(c), vr(A), vr(B), vr(c)))
                    nfill = 1
                    while pend and nfill:
                        k, t = pend.pop(0)
                        if k == "x":
                            a(t)
                            if t.startswith("s_") and nm < 8: continue
                        else: rd(t)
                        nfill -= 1
                    nm += 1
                pend += [("r", t) for t in freads(z, ft)]
        for k, t in pend:
            if k == "x": a(t)
            else: rd(t)
        a("s_waitcnt lgkmcnt(15)")
        if len(trk.out) > 15: trk.out = trk.out[-15:]
    a.label("%s_cloop" % name)
    trk.out = []
    lb = len(a.lines)
    iteration(0); iteration(1)
    state = copy.deepcopy(trk.out)
    del a.lines[lb:]
    trk.out = copy.deepcopy(state)
    iteration(0); iteration(1)
    assert [sorted(x) for x in trk.out] == [sorted(x) for x in state]
    a("s_cmp_lt_u32 s33, %d" % (NK // 2))
    a("s_cbranch_scc1 %s_cloop" % name)
    trk.drain()
    stamp(a, 3)
    a("s_waitcnt vmcnt(0)")
    a("s_barrier")
    a("s_cmp_lg_u32 s3, 0")
    a("s_cbranch_scc1 %s_nosig" % name)
    a("v_mov_b32 v10, 1")
    a("s_lshl_b32 s36, s22, 2")
    a("v_mov_b32 v11, s36")
    a("s_mov_b64 exec, 1")
    a("buffer_atomic_add v10, v11, s[60:63], 0 offen sc1")
    a("s_mov_b64 exec, -1")
    a.label("%s_nosig" % name)
    a("s_mul_i32 s36, s3, 18432")
    a("s_add_u32 s36, s36, %d" % TB0)
    a("v_lshlrev_b32 v10, 4, v2")
    a("v_add_u32 v11, s36, v10")
    for n, (ft, tt) in enumerate(TILES):
        a("ds_write_b128 v11, %s offset:%d" % (vr(accr(1, ft, tt)), 1024 * tidx(ft, tt)))
        if n in (7, 13): a("s_waitcnt lgkmcnt(4)")
    a("s_mov_b32 s40, 0")
    a("s_waitcnt lgkmcnt(0)")
    a("s_barrier")
    a.label("%s_epi" % name)
    MR = 100; CS = 52; ZP = 16; T = 72
    gelu_consts(a)
    a("s_lshl_b32 s36, s24, 9")
    a("s_lshl_b32 s37, s25, 8")
    a("s_add_u32 s38, s36, s37")
    a("s_xor_b32 s37, s37, 256")
    a("s_add_u32 s39, s36, s37")
    a("v_lshlrev_b32 v10, 3, v3")
    a("v_add_u32 v11, s38, v10")
    a("ds_read_b64 %s, v11 offset:%d" % (vr(MR, 2), RST))
    a("ds_read_b64 %s, v11 offset:%d" % (vr(MR + 2, 2), RST + 128))
    a("v_add_u32 v11, s39, v10")
    a("ds_read_b64 %s, v11 offset:%d" % (vr(MR + 4, 2), RST))
    a("ds_read_b64 %s, v11 offset:%d" % (vr(MR + 6, 2), RST + 128))
    a("v_lshrrev_b32 v10, 4, v2")
    a("v_lshlrev_b32 v10, 4, v10")
    a("v_add_u32 v10, s40, v10")
    a("s_mul_i32 s36, s25, 320")
    a("v_add_u32 v11, s36, v10")
    a("s_waitcnt lgkmcnt(6)")
    for ft in range(4):
        a("ds_read_b128 %s, v11 offset:%d" % (vr(CS + 4 * ft), CSO + 64 * ft))
    a("ds_read_b128 %s, v10 offset:%d" % (vr(CS + 16), CSO + 256))
    S = [108, 110, 8, 12]; Q = [109, 111, 9, 13]
    for tt in range(4):
        a("v_mov_b32 v%d, 0" % S[tt]); a("v_mov_b32 v%d, 0" % Q[tt])
    a("v_mov_b32 v88, 0x3f803f80")
    a("s_waitcnt lgkmcnt(0)")
    for ft in range(5):
        if ft == 3:
            seg_end(a, name)
            a.label("%s_seg1" % name)
        tts = range(4 if ft < 4 else 2)
        items = [(ACC + 4 * tidx(ft, tt), CS + 4 * ft, MR + 2 * tt, ZP + 2 * tidx(ft, tt)) for tt in tts]
        emit_fold_gelu(a, items, T)
        for d in range(2):
            for tt in tts:
                p = ZP + 2 * tidx(ft, tt) + d
                a("v_dot2_f32_bf16 v%d, v%d, v88, v%d" % (S[tt], p, S[tt]))
                a("v_dot2_f32_bf16 v%d, v%d, v%d, v%d" % (Q[tt], p, p, Q[tt]))
    a("s_cmp_eq_u32 s21, 0")
    a("s_cbranch_scc1 %s_z2" % name)
    a("s_lshl_b32 s36, s22, 4")
    a("s_add_u32 s36, s36, s23")
    a("s_lshl_b32 s36, s36, 2")
    a("s_add_u32 s36, s36, s3")
    a("s_mul_i32 s36, s36, 9216")
    a("s_add_u32 s36, s36, 0x%x" % Z1IMG)
    a("v_lshlrev_b32 v10, 4, v2")
    for q in range(9):
        if q in (4, 8): a("s_add_u32 s36, s36, 4096")
        a("buffer_store_dwordx4 %s, v10, s[12:15], s36 offen offset:%d" % (vr(ZP + 4 * q), (q & 3) * 1024))
    a("s_branch %s_conv" % name)
    a.label("%s_z2" % name)
    a("s_nop 1")
    emit_xg_reduce(a, S + Q, 72)
    gran_addr()
    for g in range(1, 4):
        a("v_cmp_eq_u32 vcc, %d, v10" % g)
        a("s_nop 1")
        a("v_cndmask_b32 v%d, v%d, v%d, vcc" % (S[0], S[0], S[g]))
        a("v_cndmask_b32 v%d, v%d, v%d, vcc" % (Q[0], Q[0], Q[g]))
    a("v_and_b32 v%d, 0x7fffffff, v%d" % (Q[0], Q[0]))
    a("buffer_store_dwordx2 v[%d:%d], v94, s[12:15], s58 offen sc1" % (S[0], Q[0]))
    a.label("%s_conv" % name)
    seg_end(a, name)
    stamp(a, 4)
    a("v_lshlrev_b32 v4, 2, v3")
    a("s_mov_b32 s40, 0")
    a.label("%s_pollp" % name)
    a("buffer_load_dword v5, v4, s[60:63], 0 offen sc1")
    a("s_add_u32 s40, s40, 1")
    a("s_waitcnt vmcnt(0)")
    a("v_cmp_gt_u32 vcc, 16, v5")
    a("s_cmp_gt_u32 s40, %d" % SPIN_MAX)
    a("s_cbranch_scc1 %s_pollpx" % name)
    a("s_cbranch_vccz %s_pollpx" % name)
    a("s_sleep 2")
    a("s_branch %s_pollp" % name)
    a.label("%s_pollpx" % name)
    a("s_lshl_b32 s43, s2, 2")
    a("s_add_u32 s43, s43, s3")
    a("s_mov_b32 s27, s3")
    a("s_cmp_eq_u32 s98, 0")
    a("s_cbranch_scc1 %s_cjgo" % name)
    a("s_cmp_eq_u32 s21, 0")
    a("s_cbranch_scc1 %s_cjdone" % name)
    a("s_cmp_lg_u32 s3, 0")
    a("s_cbranch_scc1 %s_cjdone" % name)
    a("s_add_u32 s43, s2, %d" % (1024 - 128))
    a("s_mov_b32 s27, 4")
    a.label("%s_cjgo" % name)
    a("s_mul_i32 s27, s27, %d" % CJ_SIZE)
    a("s_add_u32 s27, s27, %d" % CJB)
    a("s_and_b32 s26, s43, 1")
    a("s_lshr_b32 s43, s43, 1")
    a.label("%s_seg2" % name)
    emit_conv_job(a, name)
    seg_end(a, name)
    stamp(a, 5)
    a("s_cmp_lg_u32 s21, 0")
    a("s_cbranch_scc1 %s_fin" % name)
    a("v_lshrrev_b32 v10, 4, v2")
    a("v_lshlrev_b32 v11, 8, v3")
    a("v_lshl_add_u32 v11, v10, 6, v11")
    a("s_lshl_b32 s33, s25, 13")
    a("s_add_u32 s36, s59, s33")
    a("s_xor_b32 s33, s33, 8192")
    a("s_add_u32 s37, s59, s33")
    a("s_add_u32 s38, s36, 4096")
    a("s_add_u32 s39, s37, 4096")
    PB = 112
    a.label("%s_poll1" % name)
    for tt in range(4):
        for q in range(4):
            a("buffer_load_dwordx4 %s, v11, s[12:15], s%d offen offset:%d sc1" % (vr(PB + 16 * tt + 4 * q), (36, 38, 37, 39)[tt], 16 * q))
    a("s_waitcnt vmcnt(0)")
    a("v_mov_b32 v12, 0")
    for r in range(PB + 1, PB + 64, 4):
        a("v_or3_b32 v12, v12, v%d, v%d" % (r, r + 2))
    a("v_cmp_gt_i32 vcc, 0, v12")
    a("s_add_u32 s40, s40, 1")
    a("s_cmp_gt_u32 s40, %d" % SPIN_MAX)
    a("s_cbranch_scc1 %s_poll1x" % name)
    a("s_cbranch_vccz %s_poll1x" % name)
    a("s_sleep 8")
    a("s_branch %s_poll1" % name)
    a.label("%s_poll1x" % name)
    stamp(a, 6)
    a.label("%s_seg3" % name)
    for tt in range(4):
        b = PB + 16 * tt
        for st in (8, 4, 2):
            for q in range(0, st, 2):
                a("v_pk_add_f32 %s, %s, %s" % (vr(b + q, 2), vr(b + q, 2), vr(b + q + st, 2)))
    emit_xg_reduce(a, [PB + 16 * tt + e for tt in range(4) for e in range(2)], 72)
    for tt in range(4):
        b = PB + 16 * tt
        emit_ln_finish(a, b, b + 1, 2304, b + 2, MR + 2 * tt, b + 4)
        a("v_mul_f32 v%d, -v%d, v%d" % (MR + 2 * tt + 1, b + 2, MR + 2 * tt))
    a("v_lshrrev_b32 v11, 2, v2"); a("v_and_b32 v11, 1, v11"); a("v_lshlrev_b32 v11, 4, v11")
    a("v_lshrrev_b32 v12, 3, v2"); a("v_and_b32 v12, 1, v12"); a("v_lshl_add_u32 v11, v12, 2, v11")
    a("v_and_b32 v12, 3, v2"); a("v_add_u32 v11, v11, v12")
    a("v_mul_u32_u24 v11, 288, v11")
    a("v_lshrrev_b32 v12, 1, v10"); a("v_lshl_add_u32 v11, v12, 4, v11")
    a("v_and_b32 v12, 1, v10")
    a("v_lshl_add_u32 v13, v12, 5, v11")
    a("v_mul_u32_u24 v12, 2304, v12")
    a("v_add_u32 v9, v11, v12")
    a("s_lshl_b32 s33, s23, 5")
    a("s_lshl_b32 s36, s22, 1")
    a("s_add_u32 s33, s33, s36")
    a("s_add_u32 s33, s33, s24")
    a("s_mul_i32 s33, s33, 18432")
    if ZIMG: a("s_add_u32 s33, s33, 0x%x" % ZIMG)
    a("s_mul_i32 s36, s25, 9216")
    a("s_add_u32 s37, s33, s36")
    a("s_xor_b32 s36, s36, 9216")
    a("s_add_u32 s38, s33, s36")
    a("s_add_u32 s39, s37, 128")
    a("s_mul_i32 s36, s25, 160")
    a("s_add_u32 s37, s37, s36")
    a("s_add_u32 s38, s38, s36")
    def norm_pair(nA, ttA, nB, ttB, O):
        for q, (n, tt) in enumerate(((nA, ttA), (nB, ttB))):
            for d in range(2):
                z = ZP + 2 * n + d; t = T + 4 * q + 2 * d
                a("v_lshlrev_b32 v%d, 16, v%d" % (t, z))
                a("v_and_b32 v%d, 0xffff0000, v%d" % (t + 1, z))
        for q, (n, tt) in enumerate(((nA, ttA), (nB, ttB))):
            for d in range(2):
                t = T + 4 * q + 2 * d
                a("v_pk_fma_f32 %s, %s, %s, %s op_sel:[0,0,1] op_sel_hi:[1,0,1]" % (vr(t, 2), vr(t, 2), vr(MR + 2 * tt, 2), vr(MR + 2 * tt, 2)))
        for q in range(2):
            for d in range(2):
                t = T + 4 * q + 2 * d
                a("v_cvt_pk_bf16_f32 v%d, v%d, v%d" % (O + 2 * q + d, t, t + 1))
        a("s_nop 1")
        a("v_permlane16_swap_b32 v%d, v%d" % (O, O + 2))
        a("v_permlane16_swap_b32 v%d, v%d" % (O + 1, O + 3))
    cnt = 0
    for pr in range(2):
        for tt in range(4):
            O = 112 + 4 * cnt; cnt += 1
            norm_pair(tidx(2 * pr, tt), tt, tidx(2 * pr + 1, tt), tt, O)
            a("s_nop 0")
            a("buffer_store_dwordx4 %s, v13, s[12:15], s%d offen offset:%d" % (vr(O), 37 if tt < 2 else 38, (tt & 1) * 2304 + 64 * pr))
    O = 112 + 4 * cnt
    norm_pair(16, 0, 17, 1, O)
    a("s_nop 0")
    a("buffer_store_dwordx4 %s, v9, s[12:15], s39 offen" % vr(O))
    seg_end(a, name)
    a.label("%s_fin" % name)
    stamp(a, 7)
    a("s_waitcnt vmcnt(0)")
    stamp(a, 8)
    a.label("%s_end" % name)
    a("s_endpgm")
    return a.text(), kernel_desc(name, 256, 256), (name, 256, 512, LDSB)

def gen_k1f(name="k1_kernel"):
    a = Asm()
    TS = 16384; NT = 3; TB0 = 4096; FB_ = TB0 + NT * TS; FSL = 18432; NF = 6; FS = 576; NK = 18
    LDSB = FB_ + NF * FSL; RST = 0; CSO = 1024; CJB = TB0 + 4 * 18432
    kernel_begin(a, name)
    a("s_load_dwordx2 s[80:81], s[0:1], 0")
    a("s_load_dwordx2 s[4:5], s[0:1], 56")
    a("s_cmp_ge_u32 s2, 256")
    a("s_cbranch_scc1 %s_end" % name)
    a("v_lshrrev_b32 v1, 6, v0")
    a("v_and_b32 v2, 63, v0")
    a("v_readfirstlane_b32 s3, v1")
    a("s_and_b32 s20, s2, 7")
    a("s_lshr_b32 s21, s2, 3")
    a("s_and_b32 s22, s20, 1")
    a("s_lshl_b32 s22, s22, 3")
    a("s_and_b32 s23, s21, 7")
    a("s_add_u32 s22, s22, s23")
    a("s_lshr_b32 s21, s21, 3")
    a("s_and_b32 s23, s20, 6")
    a("s_and_b32 s24, s21, 1")
    a("s_add_u32 s23, s23, s24")
    a("s_lshr_b32 s21, s21, 1")
    a("s_mov_b32 s99, 0")
    a("s_mov_b64 s[96:97], -1")
    a("s_cmp_lt_u32 s3, 4")
    a("s_cbranch_scc1 %s_consumer" % name)
    a("s_setprio 3")
    a("s_sub_u32 s3, s3, 4")
    a("v_lshrrev_b32 v3, 3, v2")
    a("v_and_b32 v4, 7, v2")
    VT = 16; VF = 20
    a("s_lshl_b32 s24, s3, 5")
    a("v_add_u32 v5, s24, v3")
    a("v_lshrrev_b32 v7, 4, v2")
    a("v_xor_b32 v7, v7, v4")
    a("v_mul_u32_u24 v6, 1152, v5")
    a("v_lshl_add_u32 v%d, v7, 4, v6" % VT)
    a("v_xor_b32 v%d, 64, v%d" % (VT + 1, VT))
    a("v_add_u32 v%d, %d, v%d" % (VT + 1, 9216 - 1024, VT + 1))
    a("v_add_u32 v%d, %d, v%d" % (VT + 2, 2 * (9216 - 1024), VT))
    a("v_add_u32 v%d, %d, v%d" % (VT + 3, 2 * (9216 - 1024), VT + 1))
    a("s_mul_i32 s26, s22, %d" % (128 * 1152))
    a("s_lshl_b32 s24, s3, 12")
    a("s_add_u32 s24, s24, %d" % TB0)
    a("s_mov_b32 s33, 0")
    a("s_waitcnt lgkmcnt(0)")
    srd(a, 28, 80, 2048 * 576 * 2)
    vm = VmTracker(a)
    def issueT(m):
        a("s_add_u32 s35, s33, s24")
        a("s_mov_b32 m0, s35")
        a("s_add_u32 s33, s33, %d" % TS)
        for n in range(4):
            if "nodma" not in DBG: a("buffer_load_dwordx4 v%d, s[28:31], s26 offen offset:%d lds" % (VT + n, 1024 * n))
        a("s_add_u32 s26, s26, 128")
        a("s_cmp_eq_u32 s33, %d" % (NT * TS))
        a("s_cselect_b32 s33, 0, s33")
        vm.issue("T%d" % m, 4)
    issueT(0)
    srd(a, 8, 4, 576 * 4608 * 2)
    for n in range(5):
        if n: a("v_add_u32 v6, %d, v2" % (64 * n))
        src = "v6" if n else "v2"
        a("v_mul_u32_u24 v7, 1821, %s" % src)
        a("v_lshrrev_b32 v7, 16, v7")
        a("v_mul_u32_u24 v8, 36, v7")
        a("v_sub_u32 v8, %s, v8" % src)
        a("v_bfe_u32 v9, v7, 2, 1")
        a("v_lshlrev_b32 v6, 1, v9")
        a("v_xor_b32 v8, v8, v6")
        a("v_and_b32 v7, 3, v7")
        a("v_lshl_add_u32 v7, v9, 3, v7")
        a("v_mul_u32_u24 v7, 9216, v7")
        a("v_lshl_add_u32 v%d, v8, 4, v7" % (VF + n))
        if 0 < n < 4: a("v_subrev_u32 v%d, %d, v%d" % (VF + n, 1024 * n, VF + n))
    a("s_and_b32 s36, s3, 1")
    a("s_lshl_b32 s36, s36, 4")
    a("s_lshr_b32 s37, s3, 1")
    a("s_lshl_b32 s37, s37, 2")
    a("s_add_u32 s36, s36, s37")
    a("s_mul_i32 s27, s36, 9216")
    a("s_mul_i32 s36, s23, 576")
    a("s_add_u32 s27, s27, s36")
    a("s_cmp_eq_u32 s21, 0")
    a("s_cselect_b32 s36, 4608, 0")
    a("s_add_u32 s27, s27, s36")
    a("s_mul_i32 s25, s3, 4608")
    a("s_add_u32 s25, s25, %d" % FB_)
    a("s_mov_b32 s34, 0")
    def issueF(k):
        a("s_add_u32 s35, s34, s25")
        a("s_mov_b32 m0, s35")
        a("s_add_u32 s36, s35, 4096")
        for n in range(4):
            if "nodma" not in DBG: a("buffer_load_dwordx4 v%d, s[8:11], s27 offen offset:%d lds" % (VF + n, 1024 * n))
        a("s_mov_b32 m0, s36")
        a("s_mov_b64 exec, 0xffffffff")
        if "nodma" not in DBG: a("buffer_load_dwordx4 v%d, s[8:11], s27 offen lds" % (VF + 4))
        a("s_mov_b64 exec, -1")
        a("s_add_u32 s27, s27, %d" % (32 * 9216))
        a("s_add_u32 s34, s34, %d" % FSL)
        a("s_cmp_eq_u32 s34, %d" % (NF * FSL))
        a("s_cselect_b32 s34, 0, s34")
        vm.issue("F%d" % k, 5)
    issueF(0); issueF(1)
    def other_setup():
        a("s_load_dwordx2 s[6:7], s[0:1], 104")
        a("s_load_dwordx2 s[18:19], s[0:1], 96")
        a("s_waitcnt lgkmcnt(0)")
        srd(a, 12, 6, WS_BYTES)
        srd(a, 60, 18, 256)
    def prep_srds():
        srd(a, 68, 66, 2048 * 576 * 2)
        a("s_mov_b32 s88, s64"); a("s_mov_b32 s89, s65")
        srd(a, 64, 88, 2048 * 576 * 2)
        srd(a, 72, 76, 576 * 8)
        srd(a, 76, 100, 2304 * 576 * 2)
    other_setup()
    a("s_add_u32 s3, s3, 4"); stamp_setup(a, 1); stamp(a, 0); a("s_sub_u32 s3, s3, 4")
    a("s_load_dwordx4 s[64:67], s[0:1], 8")
    a("s_load_dwordx2 s[76:77], s[0:1], 24")
    a("s_load_dwordx2 s[100:101], s[0:1], 80")
    a("s_waitcnt lgkmcnt(0)")
    prep_srds()
    if "nowarm" not in DBG:
        a("s_mov_b32 s99, 1")
        a("s_mov_b32 s52, s24"); a("s_mov_b32 s53, s25")
        a("s_mov_b32 s82, s33"); a("s_mov_b32 s83, s34")
        for r_ in (36, 37, 38, 39, 40, 41, 42, 58, 59): a("s_mov_b32 s%d, 0" % r_)
        for r_ in (5, 8, 9, 10, 11, 12, 13, 94, 140, 141): a("v_mov_b32 v%d, 0" % r_)
        a("s_mov_b64 exec, 0")
        a("s_cmp_eq_u32 s3, 0"); a("s_cbranch_scc1 %s_epi" % name)
        a("s_cmp_eq_u32 s3, 1"); a("s_cbranch_scc1 %s_seg1" % name)
        a("s_cmp_eq_u32 s3, 2"); a("s_cbranch_scc1 %s_seg2" % name)
        a("s_branch %s_seg3" % name)
        a.label("%s_warmret" % name)
        a("s_mov_b64 exec, -1")
        a("s_mov_b32 s99, 0")
        a("s_mov_b32 s24, s52"); a("s_mov_b32 s25, s53")
        a("s_mov_b32 s33, s82"); a("s_mov_b32 s34, s83")
    SS = [28, 30, 32, 34]; ONE = 36
    for r in range(28, 36): a("v_mov_b32 v%d, 0" % r)
    for r in range(ONE, ONE + 4): a("v_mov_b32 v%d, 0x3f803f80" % r)
    CA = 40
    for r in range(CA, CA + 20): a("v_mov_b32 v%d, 0" % r)
    XB = 64; CF = 80
    a("v_lshlrev_b32 v10, 4, v2")
    a("v_add_u32 v10, s24, v10")
    a("v_lshrrev_b32 v11, 2, v2")
    a("v_mul_u32_u24 v11, %d, v11" % FS)
    a("v_and_b32 v12, 3, v2")
    a("v_lshl_add_u32 v11, v12, 3, v11")
    a("v_bfe_u32 v13, v2, 4, 1")
    a("v_lshlrev_b32 v13, 5, v13")
    a("s_lshr_b32 s36, s3, 1")
    a("s_mul_i32 s37, s36, 9")
    a("s_and_b32 s38, s3, 1")
    a("s_lshl_b32 s38, s38, 2")
    a("s_add_u32 s37, s37, s38")
    a("s_lshl_b32 s40, s37, 6")
    a("s_lshl_b32 s37, s37, 5")
    a("s_add_u32 s37, s37, %d" % FB_)
    a("v_add_u32 v11, s37, v11")
    a("v_add_u32 v5, v11, v13")
    a("v_sub_u32 v6, v11, v13")
    a("s_cmp_eq_u32 s36, 0")
    a("s_cselect_b64 vcc, -1, 0")
    a("v_cndmask_b32 v11, v6, v5, vcc")
    a("v_cndmask_b32 v12, v5, v6, vcc")
    def rowstats_rd(m):
        if "nors" in DBG: return
        a("v_add_u32 v5, %d, v10" % ((m % NT) * TS))
        for n in range(4):
            a("ds_read_b128 %s, v5 offset:%d" % (vr(XB + 4 * n), 1024 * n))
    def rowstats_do():
        if "nors" in DBG: return
        for d in range(4):
            for n in range(4):
                r = XB + 4 * n + d
                a("v_dot2_f32_bf16 v%d, v%d, v%d, v%d" % (SS[n], r, ONE, SS[n]))
                a("v_dot2_f32_bf16 v%d, v%d, v%d, v%d" % (SS[n] + 1, r, r, SS[n] + 1))
    def colsum_rd(k):
        if "nocs" in DBG: return
        a("v_add_u32 v6, %d, v11" % ((k % NF) * FSL))
        a("v_add_u32 v7, %d, v12" % ((k % NF) * FSL))
        for q in range(5):
            for half in range(2):
                a("ds_read_b64_tr_b16 %s, v%d offset:%d" % (vr(CF + 4 * q + 2 * half, 2), 6 + (q & 1), 16 * half * FS + 32 * q))
    def colsum_do():
        if "nocs" in DBG: return
        for q in range(5):
            a("v_mfma_f32_16x16x32_bf16 %s, %s, %s, %s" % (vr(CA + 4 * q), vr(CF + 4 * q), vr(ONE), vr(CA + 4 * q)))
    vm.wait(["T0", "F0"])
    a("s_barrier")
    stamp(a, 1)
    colsum_rd(0); rowstats_rd(0)
    issueT(1); issueF(2); issueF(3)
    a("s_waitcnt lgkmcnt(0)")
    colsum_do(); rowstats_do()
    vm.wait(["F1"])
    a("s_barrier")
    for k in range(NK):
        rs = (k % 2 == 1 and (k + 1) // 2 < 9)
        if k + 1 < NK: colsum_rd(k + 1)
        if rs: rowstats_rd((k + 1) // 2)
        if k == 0:
            issueF(4); issueT(2); issueF(5)
        if k >= 1 and k + 5 < NK: issueF(k + 5)
        if k % 2 == 1 and (k - 1) // 2 + 3 < 9: issueT((k - 1) // 2 + 3)
        a("s_waitcnt lgkmcnt(0)")
        if k + 1 < NK: colsum_do()
        if rs: rowstats_do()
        if k + 1 < NK:
            vm.wait(["F%d" % (k + 2), "T%d" % ((k + 2) // 2)])
            a("s_barrier")
    a("s_nop 3")
    for ctl in ("quad_perm:[1,0,3,2]", "quad_perm:[2,3,0,1]", "row_half_mirror"):
        for rg in range(4):
            for e in range(2):
                a("v_add_f32_dpp v%d, v%d, v%d %s row_mask:0xf bank_mask:0xf" % (SS[rg] + e, SS[rg] + e, SS[rg] + e, ctl))
        a("s_nop 1")
    ML = 64
    for rg in range(4):
        emit_ln_finish(a, SS[rg], SS[rg] + 1, 576, ML + 2 * rg, ML + 2 * rg + 1, 76)
        a("v_mov_b32 v%d, v%d" % (SS[rg] + 1, ML + 2 * rg + 1))
        a("v_sub_f32 v%d, 0, v%d" % (SS[rg], ML + 2 * rg))
    a("s_lshl_b32 s35, s3, 8")
    a("v_lshlrev_b32 v6, 3, v3")
    a("v_add_u32 v12, s35, v6")
    a("v_cmp_eq_u32 vcc, 0, v4")
    a("s_and_saveexec_b64 s[36:37], vcc")
    for rg in range(4):
        a("ds_write_b64 v12, %s offset:%d" % (vr(SS[rg], 2), RST + 64 * rg))
    a("s_mov_b64 exec, s[36:37]")
    a("s_lshl_b32 s36, s21, 8")
    a("s_or_b32 s36, s36, s23")
    a("s_cmp_lg_u32 s36, 256")
    a("s_cbranch_scc1 %s_nost1" % name)
    a("s_lshl_b32 s35, s22, 7")
    a("s_lshl_b32 s36, s3, 5")
    a("s_add_u32 s35, s35, s36")
    a("s_lshl_b32 s35, s35, 3")
    a("s_add_u32 s35, s35, 0x%x" % STATS1)
    a("v_mov_b32 v7, 0x7ffffff0")
    a("v_cndmask_b32 v6, v7, v6, vcc")
    for rg in range(4):
        a("buffer_store_dwordx2 %s, v6, s[12:15], s35 offen offset:%d" % (vr(ML + 2 * rg, 2), 64 * rg))
    a.label("%s_nost1" % name)
    a("v_lshrrev_b32 v12, 4, v2")
    a("v_lshlrev_b32 v12, 4, v12")
    a("v_add_u32 v12, s40, v12")
    a("v_and_b32 v13, 15, v2")
    a("v_cmp_eq_u32 vcc, 0, v13")
    a("s_and_saveexec_b64 s[36:37], vcc")
    for q in range(5):
        a("ds_write_b128 v12, %s offset:%d" % (vr(CA + 4 * q), CSO + 64 * q))
    a("s_mov_b64 exec, s[36:37]")
    a("s_waitcnt lgkmcnt(0)")
    a("s_barrier")
    a("s_setprio 0")
    ACC = 112
    a("s_lshr_b32 s24, s3, 1")
    a("s_and_b32 s25, s3, 1")
    a("v_and_b32 v3, 15, v2")
    a("s_lshl_b32 s23, s23, 1")
    a("s_add_u32 s23, s23, 1")
    a("s_mov_b32 s40, 576")
    a("s_mul_i32 s36, s3, 18432")
    a("s_add_u32 s36, s36, %d" % TB0)
    a("v_lshlrev_b32 v10, 4, v2")
    a("v_add_u32 v11, s36, v10")
    a("s_barrier")
    for n in range(18):
        a("ds_read_b128 %s, v11 offset:%d" % (vr(ACC + 4 * n), 1024 * n))
        if n in (7, 13): a("s_waitcnt lgkmcnt(4)")
    a("s_branch %s_epi" % name)

    def gran_addr():
        a("v_lshrrev_b32 v10, 4, v2")
        a("s_lshl_b32 s33, s25, 1")
        a("v_add_u32 v11, s33, v10")
        a("v_and_b32 v11, 3, v11")
        a("v_lshl_add_u32 v11, v11, 4, v3")
        a("v_lshlrev_b32 v94, 8, v11")
        a("s_lshl_b32 s59, s22, 7")
        a("s_lshl_b32 s36, s24, 6")
        a("s_add_u32 s59, s59, s36")
        a("s_lshl_b32 s59, s59, 8")
        a("s_add_u32 s59, s59, 0x%x" % STATS2)
        a("s_lshl_b32 s36, s23, 1")
        a("s_add_u32 s36, s36, s25")
        a("s_lshl_b32 s36, s36, 3")
        a("s_add_u32 s58, s36, s59")
    a.label("%s_consumer" % name)
    a("s_load_dwordx4 s[64:67], s[0:1], 8")
    a("s_load_dwordx2 s[76:77], s[0:1], 24")
    a("s_load_dwordx2 s[100:101], s[0:1], 80")
    a("s_load_dwordx2 s[90:91], s[0:1], 64")
    a("s_lshr_b32 s24, s3, 1")
    a("s_and_b32 s25, s3, 1")
    a("v_and_b32 v3, 15, v2")
    other_setup()
    srd(a, 28, 80, 2048 * 576 * 2)
    srd(a, 8, 4, 576 * 4608 * 2)
    if "nopf" not in DBG:
        a("s_and_b32 s36, s22, 7")
        a("s_mul_i32 s36, s36, 72")
        a("s_mul_i32 s37, s3, 18")
        a("s_add_u32 s36, s36, s37")
        a("s_mul_i32 s36, s36, 9216")
        a("s_mul_i32 s37, s23, 576")
        a("s_add_u32 s36, s36, s37")
        a("s_cmp_eq_u32 s21, 0")
        a("s_cselect_b32 s37, 4608, 0")
        a("s_add_u32 s36, s36, s37")
        a("s_and_b32 s36, s36, 0xffffff80")
        for n in range(2):
            a("v_add_u32 v10, %d, v2" % (64 * n))
            a("v_mul_u32_u24 v11, 13108, v10")
            a("v_lshrrev_b32 v11, 16, v11")
            a("v_mul_u32_u24 v12, 5, v11")
            a("v_sub_u32 v12, v10, v12")
            a("v_mul_u32_u24 v11, 9216, v11")
            a("v_lshl_add_u32 v11, v12, 7, v11")
            if n:
                a("v_cmp_gt_u32 vcc, 90, v10")
                a("v_mov_b32 v12, 0x7ffffff0")
                a("s_nop 0")
                a("v_cndmask_b32 v11, v12, v11, vcc")
            a("buffer_load_dword v96, v11, s[8:11], s36 offen")
        a("s_lshr_b32 s36, s2, 6")
        a("s_lshl_b32 s36, s36, 5")
        a("s_lshl_b32 s37, s22, 7")
        a("s_add_u32 s36, s36, s37")
        a("s_mul_i32 s36, s36, 1152")
        a("s_mul_i32 s37, s3, 9216")
        a("s_add_u32 s36, s36, s37")
        a("v_lshlrev_b32 v11, 7, v2")
        a("buffer_load_dword v96, v11, s[28:31], s36 offen")
        a("v_and_b32 v11, 7, v2")
        a("v_lshlrev_b32 v11, 7, v11")
        a("s_add_u32 s36, s36, 8192")
        a("buffer_load_dword v96, v11, s[28:31], s36 offen")
    prep_srds()
    srd(a, 92, 90, 2048 * 2048 * 2)
    stamp_setup(a, 1); stamp(a, 0)
    a("s_lshl_b32 s23, s23, 1")
    a("s_cmp_lg_u32 s21, 0")
    a("s_cbranch_scc1 %s_noclr" % name)
    gran_addr()
    a("v_mov_b32 v12, 0"); a("v_mov_b32 v13, 0x80000000")
    a("buffer_store_dwordx2 v[12:13], v94, s[12:15], s58 offen sc1")
    a("buffer_store_dwordx2 v[12:13], v94, s[12:15], s58 offen offset:16 sc1")
    a.label("%s_noclr" % name)
    TB = [16, 32]; FR = 48
    vTa, vTb, vP = 4, 5, [6, 7]; vH = [8, 9]
    bTa = [88, 89]; bTb = [90, 91]; bP = [92, 93]; bH = [100, 101]
    PF = 96
    a("v_lshrrev_b32 v10, 4, v2")
    a("v_lshrrev_b32 v11, 1, v3")
    a("v_xor_b32 v10, v10, v11")
    a("v_lshlrev_b32 v10, 4, v10")
    a("v_lshl_add_u32 v10, v3, 7, v10")
    a("s_lshl_b32 s26, s24, 13")
    a("s_add_u32 s26, s26, %d" % TB0)
    a("v_add_u32 v10, s26, v10")
    a("s_lshl_b32 s26, s25, 12")
    a("v_add_u32 v%d, s26, v10" % bTa[0])
    a("s_xor_b32 s26, s26, 4096")
    a("v_add_u32 v%d, s26, v10" % bTb[0])
    a("v_xor_b32 v%d, 64, v%d" % (bTa[1], bTa[0]))
    a("v_xor_b32 v%d, 64, v%d" % (bTb[1], bTb[0]))
    a("v_lshrrev_b32 v10, 2, v2")
    a("v_mul_u32_u24 v10, %d, v10" % FS)
    a("v_and_b32 v11, 3, v2")
    a("v_lshl_add_u32 v10, v11, 3, v10")
    a("v_add_u32 v10, %d, v10" % FB_)
    a("v_bfe_u32 v13, v2, 4, 1")
    a("v_lshlrev_b32 v13, 5, v13")
    a("v_add_u32 v%d, v10, v13" % bH[0])
    a("v_sub_u32 v%d, v10, v13" % bH[1])
    a("s_mul_i32 s26, s25, 160")
    a("s_cmp_eq_u32 s25, 0")
    a("s_cselect_b64 vcc, -1, 0")
    a("v_cndmask_b32 v11, v%d, v%d, vcc" % (bH[1], bH[0]))
    a("v_cndmask_b32 v12, v%d, v%d, vcc" % (bH[0], bH[1]))
    a("v_add_u32 v%d, s26, v11" % bP[0])
    a("v_add_u32 v%d, s26, v12" % bP[1])
    a("v_lshrrev_b32 v10, 4, v2")
    a("v_lshlrev_b32 v10, 12, v10")
    a("v_lshl_add_u32 v95, v3, 4, v10")
    a("s_lshl_b32 s41, s22, 7")
    a("s_lshl_b32 s36, s3, 5")
    a("s_add_u32 s41, s41, s36")
    a("s_lshl_b32 s41, s41, 12")
    a("s_add_u32 s36, s23, s21")
    a("s_lshl_b32 s36, s36, 8")
    a("s_add_u32 s41, s41, s36")
    for r in range(ACC, ACC + 144): a("v_mov_b32 v%d, 0" % r)
    def accr(z, ft, tt): return ACC + 72 * z + 4 * tidx(ft, tt)
    def Fr(z, ft): return FR + 20 * z + 4 * ft
    trk = LdsTracker(a)
    def treads(buf):
        L = []
        for tt in range(4):
            r = TB[buf] + 4 * tt
            L.append(("ds_read_b128 %s, v%d offset:%d" % (vr(r), vTa if tt < 2 else vTb, (tt & 1) * 2048), range(r, r + 4)))
        return L
    def freads(z, ft):
        r = Fr(z, ft); L = []
        for half in range(2):
            off = 16 * half * FS + 32 * (9 * z + ft)
            v = vP[(z + ft) & 1] if ft < 4 else vH[z]
            L.append(("ds_read_b64_tr_b16 %s, v%d offset:%d" % (vr(r + 2 * half, 2), v, off), range(r + 2 * half, r + 2 * half + 2)))
        return L
    def rd(t):
        a(t[0]); trk.issue(t[1])
    fpairs = ((vP[0], bP[0]), (vP[1], bP[1]), (vH[0], bH[0]), (vH[1], bH[1]))
    a("v_mov_b32 v%d, v%d" % (vTa, bTa[0])); a("v_mov_b32 v%d, v%d" % (vTb, bTb[0]))
    for d, s_ in fpairs: a("v_mov_b32 v%d, v%d" % (d, s_))
    a("s_mov_b32 s27, 0")
    a("s_mov_b32 s34, 0")
    a("s_mov_b32 s33, 0")
    stamp(a, 1)
    a("s_barrier")
    stamp(a, 2)
    for t in treads(0): rd(t)
    for z in range(2):
        for ft in range(5):
            for t in freads(z, ft): rd(t)
            if len(trk.out) >= 12: trk.drain()
    trk.drain()
    def iteration(par):
        a("s_barrier")
        upd = []
        if par == 1:
            upd += ["s_add_u32 s27, s27, %d" % TS, "s_cmp_eq_u32 s27, %d" % (NT * TS), "s_cselect_b32 s27, 0, s27"]
        upd += ["v_add_u32 v%d, s27, v%d" % (vTa, bTa[1 - par]), "v_add_u32 v%d, s27, v%d" % (vTb, bTb[1 - par])]
        upd += ["s_add_u32 s34, s34, %d" % FSL, "s_cmp_eq_u32 s34, %d" % (NF * FSL), "s_cselect_b32 s34, 0, s34"]
        upd += ["v_add_u32 v%d, s34, v%d" % (d, s_) for d, s_ in fpairs]
        pend = [("x", u) for u in upd] + [("r", t) for t in treads(1 - par)]
        if par == 0:
            pend.append(("x", "buffer_load_dwordx4 %s, v95, s[92:95], s41 offen" % vr(PF)))
            pend.append(("x", "s_add_u32 s41, s41, 16384"))
        else:
            pend.append(("x", "s_add_u32 s33, s33, 1"))
        nm = 0
        for z in range(2):
            for ft in range(5):
                for tt in range(4 if ft < 4 else 2):
                    c = accr(z, ft, tt); A = Fr(z, ft); B = TB[par] + 4 * tt
                    trk.need(list(range(A, A + 4)) + list(range(B, B + 4)))
                    if "nomfma" not in DBG: a("v_mfma_f32_16x16x32_bf16 %s, %s, %s, %s" % (vr(c), vr(A), vr(B), vr(c)))
                    nfill = 1
                    while pend and nfill:
                        k, t = pend.pop(0)
                        if k == "x":
                            a(t)
                            if t.startswith("s_") and nm < 8: continue
                        else: rd(t)
                        nfill -= 1
                    nm += 1
                pend += [("r", t) for t in freads(z, ft)]
        for k, t in pend:
            if k == "x": a(t)
            else: rd(t)
        a("s_waitcnt lgkmcnt(15)")
        if len(trk.out) > 15: trk.out = trk.out[-15:]
    a.label("%s_cloop" % name)
    trk.out = []
    lb = len(a.lines)
    iteration(0); iteration(1)
    state = copy.deepcopy(trk.out)
    del a.lines[lb:]
    trk.out = copy.deepcopy(state)
    iteration(0); iteration(1)
    assert [sorted(x) for x in trk.out] == [sorted(x) for x in state]
    a("s_cmp_lt_u32 s33, %d" % (NK // 2))
    a("s_cbranch_scc1 %s_cloop" % name)
    trk.drain()
    stamp(a, 3)
    a("s_waitcnt vmcnt(0)")
    a("s_barrier")
    a("s_or_b32 s36, s3, s21")
    a("s_cmp_lg_u32 s36, 0")
    a("s_cbranch_scc1 %s_nosig" % name)
    a("v_mov_b32 v10, 1")
    a("s_lshl_b32 s36, s22, 2")
    a("v_mov_b32 v11, s36")
    a("s_mov_b64 exec, 1")
    a("buffer_atomic_add v10, v11, s[60:63], 0 offen sc1")
    a("s_mov_b64 exec, -1")
    a.label("%s_nosig" % name)
    a("s_mul_i32 s36, s3, 18432")
    a("s_add_u32 s36, s36, %d" % TB0)
    a("v_lshlrev_b32 v10, 4, v2")
    a("v_add_u32 v11, s36, v10")
    for n, (ft, tt) in enumerate(TILES):
        a("ds_write_b128 v11, %s offset:%d" % (vr(accr(1, ft, tt)), 1024 * tidx(ft, tt)))
        if n in (7, 13): a("s_waitcnt lgkmcnt(4)")
    a("s_mov_b32 s40, 0")
    a("s_waitcnt lgkmcnt(0)")
    a("s_barrier")
    a.label("%s_epi" % name)
    MR = 100; CS = 52; ZP = 16; T = 72
    gelu_consts(a)
    a("s_lshl_b32 s36, s24, 9")
    a("s_lshl_b32 s37, s25, 8")
    a("s_add_u32 s38, s36, s37")
    a("s_xor_b32 s37, s37, 256")
    a("s_add_u32 s39, s36, s37")
    a("v_lshlrev_b32 v10, 3, v3")
    a("v_add_u32 v11, s38, v10")
    a("ds_read_b64 %s, v11 offset:%d" % (vr(MR, 2), RST))
    a("ds_read_b64 %s, v11 offset:%d" % (vr(MR + 2, 2), RST + 128))
    a("v_add_u32 v11, s39, v10")
    a("ds_read_b64 %s, v11 offset:%d" % (vr(MR + 4, 2), RST))
    a("ds_read_b64 %s, v11 offset:%d" % (vr(MR + 6, 2), RST + 128))
    a("v_lshrrev_b32 v10, 4, v2")
    a("v_lshlrev_b32 v10, 4, v10")
    a("v_add_u32 v10, s40, v10")
    a("s_mul_i32 s36, s25, 320")
    a("v_add_u32 v11, s36, v10")
    a("s_waitcnt lgkmcnt(6)")
    for ft in range(4):
        a("ds_read_b128 %s, v11 offset:%d" % (vr(CS + 4 * ft), CSO + 64 * ft))
    a("ds_read_b128 %s, v10 offset:%d" % (vr(CS + 16), CSO + 256))
    S = [108, 110, 8, 12]; Q = [109, 111, 9, 13]
    for tt in range(4):
        a("v_mov_b32 v%d, 0" % S[tt]); a("v_mov_b32 v%d, 0" % Q[tt])
    a("v_mov_b32 v88, 0x3f803f80")
    a("s_waitcnt lgkmcnt(0)")
    for ft in range(5):
        if ft == 3:
            seg_end(a, name)
            a.label("%s_seg1" % name)
        tts = range(4 if ft < 4 else 2)
        items = [(ACC + 4 * tidx(ft, tt), CS + 4 * ft, MR + 2 * tt, ZP + 2 * tidx(ft, tt)) for tt in tts]
        emit_fold_gelu(a, items, T)
        for d in range(2):
            for tt in tts:
                p = ZP + 2 * tidx(ft, tt) + d
                a("v_dot2_f32_bf16 v%d, v%d, v88, v%d" % (S[tt], p, S[tt]))
                a("v_dot2_f32_bf16 v%d, v%d, v%d, v%d" % (Q[tt], p, p, Q[tt]))
    a("s_cmp_eq_u32 s21, 0")
    a("s_cbranch_scc1 %s_z2" % name)
    a("s_lshl_b32 s36, s22, 4")
    a("s_add_u32 s36, s36, s23")
    a("s_lshl_b32 s36, s36, 2")
    a("s_add_u32 s36, s36, s3")
    a("s_mul_i32 s36, s36, 9216")
    a("s_add_u32 s36, s36, 0x%x" % Z1IMG)
    a("v_lshlrev_b32 v10, 4, v2")
    for q in range(9):
        if q in (4, 8): a("s_add_u32 s36, s36, 4096")
        a("buffer_store_dwordx4 %s, v10, s[12:15], s36 offen offset:%d" % (vr(ZP + 4 * q), (q & 3) * 1024))
    a("s_branch %s_conv" % name)
    a.label("%s_z2" % name)
    a("s_nop 1")
    emit_xg_reduce(a, S + Q, 72)
    gran_addr()
    for g in range(1, 4):
        a("v_cmp_eq_u32 vcc, %d, v10" % g)
        a("s_nop 1")
        a("v_cndmask_b32 v%d, v%d, v%d, vcc" % (S[0], S[0], S[g]))
        a("v_cndmask_b32 v%d, v%d, v%d, vcc" % (Q[0], Q[0], Q[g]))
    a("v_and_b32 v%d, 0x7fffffff, v%d" % (Q[0], Q[0]))
    a("buffer_store_dwordx2 v[%d:%d], v94, s[12:15], s58 offen sc1" % (S[0], Q[0]))
    a.label("%s_conv" % name)
    seg_end(a, name)
    a.label("%s_seg2" % name)
    stamp(a, 4)
    for r_ in range(36):
        a("v_mov_b32 v%d, v%d" % (200 + r_, ZP + r_))
    a("s_lshl_b32 s42, s22, 4")
    a("s_add_u32 s42, s42, s23")
    a("s_lshl_b32 s36, s21, 8")
    a("s_add_u32 s42, s42, s36")
    a("v_and_b32 v0, 255, v0")
    G2.emit_prep2(a, name)
    stamp(a, 5)
    a("s_cmp_lg_u32 s21, 0")
    a("s_cbranch_scc1 %s_fin" % name)
    a("v_and_b32 v3, 15, v2")
    ZP = 200
    a("s_lshl_b32 s33, s22, 2")
    a("v_mov_b32 v9, s33")
    a("s_mov_b32 s40, 0")
    a("v_lshlrev_b32 v11, 4, v3")
    a.label("%s_poll2" % name)
    a("buffer_load_dword v12, v9, s[60:63], 0 offen sc1")
    a("s_waitcnt vmcnt(0)")
    a("buffer_load_dwordx4 v[112:115], v11, s[12:15], s59 offen sc1")
    a("s_add_u32 s40, s40, 1")
    a("v_subrev_u32 v12, 8, v12")
    a("s_waitcnt vmcnt(0)")
    a("v_or3_b32 v12, v12, v113, v115")
    a("v_cmp_gt_i32 vcc, 0, v12")
    a("s_cmp_gt_u32 s40, %d" % SPIN_MAX)
    a("s_cbranch_scc1 %s_poll2x" % name)
    a("s_cbranch_vccz %s_poll2x" % name)
    a("s_sleep 10")
    a("s_branch %s_poll2" % name)
    a.label("%s_poll2x" % name)
    a("v_lshrrev_b32 v10, 4, v2")
    a("v_lshlrev_b32 v11, 8, v3")
    a("v_lshl_add_u32 v11, v10, 6, v11")
    a("s_lshl_b32 s33, s25, 13")
    a("s_add_u32 s36, s59, s33")
    a("s_xor_b32 s33, s33, 8192")
    a("s_add_u32 s37, s59, s33")
    a("s_add_u32 s38, s36, 4096")
    a("s_add_u32 s39, s37, 4096")
    PB = 112
    a.label("%s_poll1" % name)
    if "inv" in DBG: a("buffer_inv sc1")
    POL = "sc0 sc1" if "sc01" in DBG else "sc1"
    for tt in range(4):
        for q in range(4):
            a("buffer_load_dwordx4 %s, v11, s[12:15], s%d offen offset:%d %s" % (vr(PB + 16 * tt + 4 * q), (36, 38, 37, 39)[tt], 16 * q, POL))
    a("s_waitcnt vmcnt(0)")
    a("v_mov_b32 v12, 0")
    for r in range(PB + 1, PB + 64, 4):
        a("v_or3_b32 v12, v12, v%d, v%d" % (r, r + 2))
    a("v_cmp_gt_i32 vcc, 0, v12")
    a("s_add_u32 s40, s40, 1")
    a("s_cmp_gt_u32 s40, %d" % SPIN_MAX)
    a("s_cbranch_scc1 %s_poll1x" % name)
    a("s_cbranch_vccz %s_poll1x" % name)
    a("s_sleep 20")
    a("s_branch %s_poll1" % name)
    a.label("%s_poll1x" % name)
    stamp(a, 6)
    a.label("%s_seg3" % name)
    for tt in range(4):
        b = PB + 16 * tt
        for st in (8, 4, 2):
            for q in range(0, st, 2):
                a("v_pk_add_f32 %s, %s, %s" % (vr(b + q, 2), vr(b + q, 2), vr(b + q + st, 2)))
    emit_xg_reduce(a, [PB + 16 * tt + e for tt in range(4) for e in range(2)], 72)
    for tt in range(4):
        b = PB + 16 * tt
        emit_ln_finish(a, b, b + 1, 2304, b + 2, MR + 2 * tt, b + 4)
        a("v_mul_f32 v%d, -v%d, v%d" % (MR + 2 * tt + 1, b + 2, MR + 2 * tt))
    a("v_lshrrev_b32 v11, 2, v2"); a("v_and_b32 v11, 1, v11"); a("v_lshlrev_b32 v11, 4, v11")
    a("v_lshrrev_b32 v12, 3, v2"); a("v_and_b32 v12, 1, v12"); a("v_lshl_add_u32 v11, v12, 2, v11")
    a("v_and_b32 v12, 3, v2"); a("v_add_u32 v11, v11, v12")
    a("v_mul_u32_u24 v11, 288, v11")
    a("v_lshrrev_b32 v12, 1, v10"); a("v_lshl_add_u32 v11, v12, 4, v11")
    a("v_and_b32 v12, 1, v10")
    a("v_lshl_add_u32 v13, v12, 5, v11")
    a("v_mul_u32_u24 v12, 2304, v12")
    a("v_add_u32 v9, v11, v12")
    a("s_lshl_b32 s33, s23, 5")
    a("s_lshl_b32 s36, s22, 1")
    a("s_add_u32 s33, s33, s36")
    a("s_add_u32 s33, s33, s24")
    a("s_mul_i32 s33, s33, 18432")
    if ZIMG: a("s_add_u32 s33, s33, 0x%x" % ZIMG)
    a("s_mul_i32 s36, s25, 9216")
    a("s_add_u32 s37, s33, s36")
    a("s_xor_b32 s36, s36, 9216")
    a("s_add_u32 s38, s33, s36")
    a("s_add_u32 s39, s37, 128")
    a("s_mul_i32 s36, s25, 160")
    a("s_add_u32 s37, s37, s36")
    a("s_add_u32 s38, s38, s36")
    def norm_pair(nA, ttA, nB, ttB, O):
        for q, (n, tt) in enumerate(((nA, ttA), (nB, ttB))):
            for d in range(2):
                z = ZP + 2 * n + d; t = T + 4 * q + 2 * d
                a("v_lshlrev_b32 v%d, 16, v%d" % (t, z))
                a("v_and_b32 v%d, 0xffff0000, v%d" % (t + 1, z))
        for q, (n, tt) in enumerate(((nA, ttA), (nB, ttB))):
            for d in range(2):
                t = T + 4 * q + 2 * d
                a("v_pk_fma_f32 %s, %s, %s, %s op_sel:[0,0,1] op_sel_hi:[1,0,1]" % (vr(t, 2), vr(t, 2), vr(MR + 2 * tt, 2), vr(MR + 2 * tt, 2)))
        for q in range(2):
            for d in range(2):
                t = T + 4 * q + 2 * d
                a("v_cvt_pk_bf16_f32 v%d, v%d, v%d" % (O + 2 * q + d, t, t + 1))
        a("s_nop 1")
        a("v_permlane16_swap_b32 v%d, v%d" % (O, O + 2))
        a("v_permlane16_swap_b32 v%d, v%d" % (O + 1, O + 3))
    cnt = 0
    for pr in range(2):
        for tt in range(4):
            O = 112 + 4 * cnt; cnt += 1
            norm_pair(tidx(2 * pr, tt), tt, tidx(2 * pr + 1, tt), tt, O)
            a("s_nop 0")
            a("buffer_store_dwordx4 %s, v13, s[12:15], s%d offen offset:%d" % (vr(O), 37 if tt < 2 else 38, (tt & 1) * 2304 + 64 * pr))
    O = 112 + 4 * cnt
    norm_pair(16, 0, 17, 1, O)
    a("s_nop 0")
    a("buffer_store_dwordx4 %s, v9, s[12:15], s39 offen" % vr(O))
    seg_end(a, name)
    a.label("%s_fin" % name)
    stamp(a, 7)
    a("s_waitcnt vmcnt(0)")
    stamp(a, 8)
    a.label("%s_end" % name)
    a("s_endpgm")
    return a.text(), kernel_desc(name, 256, 256), (name, 256, 512, LDSB)

def gen_k1g(name="k1_kernel"):
    a = Asm()
    DBG.add('nowarm')
    TS = 16384; NT = 3; TB0 = 4096; FB_ = TB0 + NT * TS; FSL = 18432; NF = 6; FS = 576; NK = 18
    LDSB = FB_ + NF * FSL; RST = 0; CSO = 1024; CJB = TB0 + 4 * 18432
    kernel_begin(a, name)
    a("s_load_dwordx2 s[80:81], s[0:1], 0")
    a("s_load_dwordx2 s[4:5], s[0:1], 56")
    a("s_cmp_ge_u32 s2, 256")
    a("s_cbranch_scc1 %s_end" % name)
    a("v_lshrrev_b32 v1, 6, v0")
    a("v_and_b32 v2, 63, v0")
    a("v_readfirstlane_b32 s3, v1")
    a("s_and_b32 s20, s2, 7")
    a("s_lshr_b32 s21, s2, 3")
    a("s_and_b32 s22, s20, 1")
    a("s_lshl_b32 s22, s22, 3")
    a("s_and_b32 s23, s21, 7")
    a("s_add_u32 s22, s22, s23")
    a("s_lshr_b32 s21, s21, 3")
    a("s_lshr_b32 s23, s20, 1")
    a("s_lshl_b32 s23, s23, 2")
    a("s_add_u32 s23, s23, s21")
    a("s_mov_b32 s99, 0")
    a("s_mov_b64 s[96:97], -1")
    a("s_cmp_lt_u32 s3, 4")
    a("s_cbranch_scc1 %s_consumer" % name)
    a("s_setprio 3")
    a("s_sub_u32 s3, s3, 4")
    a("v_lshrrev_b32 v3, 3, v2")
    a("v_and_b32 v4, 7, v2")
    VT = 16; VF = 20
    a("s_lshl_b32 s24, s3, 5")
    a("v_add_u32 v5, s24, v3")
    a("v_lshrrev_b32 v7, 4, v2")
    a("v_xor_b32 v7, v7, v4")
    a("v_mul_u32_u24 v6, 1152, v5")
    a("v_lshl_add_u32 v%d, v7, 4, v6" % VT)
    a("v_xor_b32 v%d, 64, v%d" % (VT + 1, VT))
    a("v_add_u32 v%d, %d, v%d" % (VT + 1, 9216 - 1024, VT + 1))
    a("v_add_u32 v%d, %d, v%d" % (VT + 2, 2 * (9216 - 1024), VT))
    a("v_add_u32 v%d, %d, v%d" % (VT + 3, 2 * (9216 - 1024), VT + 1))
    a("s_mul_i32 s26, s22, %d" % (128 * 1152))
    a("s_lshl_b32 s24, s3, 12")
    a("s_add_u32 s24, s24, %d" % TB0)
    a("s_mov_b32 s33, 0")
    a("s_waitcnt lgkmcnt(0)")
    srd(a, 28, 80, 2048 * 576 * 2)
    vm = VmTracker(a)
    def capture(f, *args):
        lb = len(a.lines); f(*args); out = a.lines[lb:]; del a.lines[lb:]; return out
    def issueT(m, part=None):
        a("s_add_u32 s35, s33, s24")
        a("s_mov_b32 m0, s35")
        if part != 0: a("s_add_u32 s33, s33, %d" % TS)
        else: a("s_nop 0")
        ns = range(4) if part is None else range(2 * part, 2 * part + 2)
        for n in ns:
            if "nodma" not in DBG: a("buffer_load_dwordx4 v%d, s[28:31], s26 offen offset:%d lds" % (VT + n, 1024 * n))
        if part != 0:
            a("s_add_u32 s26, s26, 128")
            a("s_cmp_eq_u32 s33, %d" % (NT * TS))
            a("s_cselect_b32 s33, 0, s33")
        vm.issue("T%d" % m if part != 0 else "Ta%d" % m, len(ns))
    issueT(0)
    srd(a, 8, 4, 576 * 4608 * 2)
    for n in range(5):
        if n: a("v_add_u32 v6, %d, v2" % (64 * n))
        src = "v6" if n else "v2"
        a("v_mul_u32_u24 v7, 1821, %s" % src)
        a("v_lshrrev_b32 v7, 16, v7")
        a("v_mul_u32_u24 v8, 36, v7")
        a("v_sub_u32 v8, %s, v8" % src)
        a("v_bfe_u32 v9, v7, 2, 1")
        a("v_lshlrev_b32 v6, 1, v9")
        a("v_xor_b32 v8, v8, v6")
        a("v_and_b32 v7, 3, v7")
        a("v_lshl_add_u32 v7, v9, 3, v7")
        a("v_mul_u32_u24 v7, 9216, v7")
        a("v_cmp_gt_u32 vcc, 18, v8")
        a("v_lshl_add_u32 v7, v8, 4, v7")
        a("v_mov_b32 v9, 4608")
        a("v_cndmask_b32 v9, -288, v9, vcc") if False else None
        a("v_mov_b32 v6, 0xfffffee0")
        a("v_cndmask_b32 v9, v6, v9, vcc")
        a("v_add_u32 v%d, v7, v9" % (VF + n))
        if 0 < n < 4: a("v_subrev_u32 v%d, %d, v%d" % (VF + n, 1024 * n, VF + n))
    a("s_and_b32 s36, s3, 1")
    a("s_lshl_b32 s36, s36, 4")
    a("s_lshr_b32 s37, s3, 1")
    a("s_lshl_b32 s37, s37, 2")
    a("s_add_u32 s36, s36, s37")
    a("s_mul_i32 s27, s36, 9216")
    a("s_mul_i32 s36, s23, 288")
    a("s_add_u32 s27, s27, s36")
    a("s_mul_i32 s25, s3, 4608")
    a("s_add_u32 s25, s25, %d" % FB_)
    a("s_mov_b32 s34, 0")
    def issueF(k):
        a("s_add_u32 s35, s34, s25")
        a("s_mov_b32 m0, s35")
        a("s_add_u32 s36, s35, 4096")
        for n in range(4):
            if "nodma" not in DBG: a("buffer_load_dwordx4 v%d, s[8:11], s27 offen offset:%d lds" % (VF + n, 1024 * n))
        a("s_mov_b32 m0, s36")
        a("s_mov_b64 exec, 0xffffffff")
        if "nodma" not in DBG: a("buffer_load_dwordx4 v%d, s[8:11], s27 offen lds" % (VF + 4))
        a("s_mov_b64 exec, -1")
        a("s_add_u32 s27, s27, %d" % (32 * 9216))
        a("s_add_u32 s34, s34, %d" % FSL)
        a("s_cmp_eq_u32 s34, %d" % (NF * FSL))
        a("s_cselect_b32 s34, 0, s34")
        vm.issue("F%d" % k, 5)
    issueF(0); issueF(1)
    def other_setup():
        a("s_load_dwordx2 s[6:7], s[0:1], 104")
        a("s_load_dwordx2 s[18:19], s[0:1], 96")
        a("s_waitcnt lgkmcnt(0)")
        srd(a, 12, 6, WS_BYTES)
        srd(a, 60, 18, 256)
    def prep_srds():
        srd(a, 68, 66, 2048 * 576 * 2)
        a("s_mov_b32 s88, s64"); a("s_mov_b32 s89, s65")
        srd(a, 64, 88, 2048 * 576 * 2)
        srd(a, 72, 76, 576 * 8)
        srd(a, 76, 100, 2304 * 576 * 2)
    other_setup()
    a("s_add_u32 s3, s3, 4"); stamp_setup(a, 1); stamp(a, 0); a("s_sub_u32 s3, s3, 4")
    a("s_load_dwordx4 s[64:67], s[0:1], 8")
    a("s_load_dwordx2 s[76:77], s[0:1], 24")
    a("s_load_dwordx2 s[100:101], s[0:1], 80")
    a("s_waitcnt lgkmcnt(0)")
    prep_srds()
    SS = [28, 30, 32, 34]; ONE = 36
    for r in range(28, 36): a("v_mov_b32 v%d, 0" % r)
    for r in range(ONE, ONE + 4): a("v_mov_b32 v%d, 0x3f803f80" % r)
    CA = 40
    for r in range(CA, CA + 20): a("v_mov_b32 v%d, 0" % r)
    XB = 64; CF = 80
    a("v_and_b32 v5, 15, v2")
    a("v_lshrrev_b32 v6, 4, v2")
    a("v_lshrrev_b32 v7, 1, v5")
    a("v_xor_b32 v6, v6, v7")
    a("v_lshlrev_b32 v6, 4, v6")
    a("v_lshl_add_u32 v6, v5, 7, v6")
    a("v_add_u32 v10, s24, v6")
    a("v_xor_b32 v26, 64, v10")
    RA = 112
    for r in range(RA, RA + 16): a("v_mov_b32 v%d, 0" % r)
    a("v_lshrrev_b32 v11, 2, v2")
    a("v_mul_u32_u24 v11, %d, v11" % FS)
    a("v_and_b32 v12, 3, v2")
    a("v_lshl_add_u32 v11, v12, 3, v11")
    a("v_bfe_u32 v13, v2, 4, 1")
    a("v_lshlrev_b32 v13, 5, v13")
    a("s_lshr_b32 s36, s3, 1")
    a("s_mul_i32 s37, s36, 9")
    a("s_and_b32 s38, s3, 1")
    a("s_lshl_b32 s38, s38, 2")
    a("s_add_u32 s37, s37, s38")
    a("s_lshl_b32 s40, s37, 6")
    a("s_lshl_b32 s37, s37, 5")
    a("s_add_u32 s37, s37, %d" % FB_)
    a("v_add_u32 v11, s37, v11")
    a("v_add_u32 v5, v11, v13")
    a("v_sub_u32 v6, v11, v13")
    a("s_cmp_eq_u32 s36, 0")
    a("s_cselect_b64 vcc, -1, 0")
    a("v_cndmask_b32 v11, v6, v5, vcc")
    a("v_cndmask_b32 v12, v5, v6, vcc")
    def rowstats_rd(ks):
        a("v_add_u32 v5, %d, v%d" % (((ks // 2) % NT) * TS, 26 if ks & 1 else 10))
        for n in range(2):
            a("ds_read_b128 %s, v5 offset:%d" % (vr(XB + 4 * n), 2048 * n))
    def rowstats_do():
        for n in range(2):
            a("v_mfma_f32_16x16x32_bf16 %s, %s, %s, %s" % (vr(RA + 4 * n), vr(ONE), vr(XB + 4 * n), vr(RA + 4 * n)))
            a("v_mfma_f32_16x16x32_bf16 %s, %s, %s, %s" % (vr(RA + 8 + 4 * n), vr(XB + 4 * n), vr(XB + 4 * n), vr(RA + 8 + 4 * n)))
    def colsum_rd(k):
        if "nocs" in DBG: return
        a("v_add_u32 v6, %d, v11" % ((k % NF) * FSL))
        a("v_add_u32 v7, %d, v12" % ((k % NF) * FSL))
        for q in range(5):
            for half in range(2):
                a("ds_read_b64_tr_b16 %s, v%d offset:%d" % (vr(CF + 4 * q + 2 * half, 2), 6 + (q & 1), 16 * half * FS + 32 * q))
    def colsum_do():
        if "nocs" in DBG: return
        for q in range(5):
            a("v_mfma_f32_16x16x32_bf16 %s, %s, %s, %s" % (vr(CA + 4 * q), vr(CF + 4 * q), vr(ONE), vr(CA + 4 * q)))
    vm.wait(["T0", "F0"])
    a("s_barrier")
    stamp(a, 1)
    colsum_rd(0); rowstats_rd(0)
    issueT(1); issueF(2); issueF(3)
    vm.wait(["F1"])
    a("s_barrier")
    for k in range(NK):
        dma = []
        if k == 0:
            dma += capture(issueF, 4) + capture(issueT, 2) + capture(issueF, 5)
        if k >= 1 and k + 5 < NK: dma += capture(issueF, k + 5)
        if k % 2 == 1 and (k - 1) // 2 + 3 < 9: dma += capture(issueT, (k - 1) // 2 + 3, 0)
        if k % 2 == 0 and k >= 2 and (k - 2) // 2 + 3 < 9: dma += capture(issueT, (k - 2) // 2 + 3, 1)
        comp = capture(colsum_do) + capture(rowstats_do)
        groups = []; cur = []
        for l in dma:
            cur.append(l)
            if "buffer_load" in l and "exec" not in "".join(cur[-2:-1]):
                groups.append(cur); cur = []
        if cur: groups.append(cur)
        nslots = max(1, len(groups) - 1)
        per = (len(comp) + nslots - 1) // nslots if comp else 0
        waited = False
        for gi, g in enumerate(groups):
            a.lines.extend(g)
            if comp and not any("exec, 0xffffffff" in x for x in g[-2:]):
                if not waited:
                    a("s_waitcnt lgkmcnt(0)"); waited = True
                a.lines.extend(comp[:per]); comp = comp[per:]
        if not waited: a("s_waitcnt lgkmcnt(0)")
        a.lines.extend(comp)
        if k + 1 < NK:
            colsum_rd(k + 1); rowstats_rd(k + 1)
            if "fine" in DBG:
                G.stamp_seq(a); vm.issue("st", 1)
            vm.wait(["F%d" % (k + 2), "T%d" % ((k + 2) // 2)])
            if "fine" in DBG:
                G.stamp_seq(a); vm.issue("st", 1)
            a("s_barrier")
    a("s_nop 7")
    a("v_and_b32 v5, 15, v2")
    a("v_lshrrev_b32 v6, 4, v2")
    a("v_lshrrev_b32 v7, 2, v5")
    a("v_and_b32 v8, 3, v5")
    for n in range(2):
        G_ = RA + 8 + 4 * n
        for r in range(1, 4):
            a("v_cmp_eq_u32 vcc, %d, v8" % r)
            a("s_nop 1")
            a("v_cndmask_b32 v%d, v%d, v%d, vcc" % (G_, G_, G_ + r))
    ML = 64
    for n in range(2):
        emit_ln_finish(a, RA + 4 * n, RA + 8 + 4 * n, 576, ML + 2 * n, ML + 2 * n + 1, 76)
        a("v_mov_b32 v%d, v%d" % (29 + 2 * n, ML + 2 * n + 1))
        a("v_sub_f32 v%d, 0, v%d" % (28 + 2 * n, ML + 2 * n))
    a("s_lshl_b32 s35, s3, 8")
    a("v_lshlrev_b32 v9, 3, v5")
    a("v_add_u32 v12, s35, v9")
    a("v_cmp_eq_u32 vcc, v6, v7")
    a("s_and_saveexec_b64 s[36:37], vcc")
    for n in range(2):
        a("ds_write_b64 v12, %s offset:%d" % (vr(28 + 2 * n, 2), RST + 128 * n))
    a("s_mov_b64 exec, s[36:37]")
    a("s_cmp_lg_u32 s23, 0")
    a("s_cbranch_scc1 %s_nost1" % name)
    a("s_lshl_b32 s35, s22, 7")
    a("s_lshl_b32 s36, s3, 5")
    a("s_add_u32 s35, s35, s36")
    a("s_lshl_b32 s35, s35, 3")
    a("s_add_u32 s35, s35, 0x%x" % STATS1)
    a("v_mov_b32 v7, 0x7ffffff0")
    a("v_cndmask_b32 v9, v7, v9, vcc")
    for n in range(2):
        a("buffer_store_dwordx2 %s, v9, s[12:15], s35 offen offset:%d" % (vr(ML + 2 * n, 2), 128 * n))
    a.label("%s_nost1" % name)
    a("v_lshrrev_b32 v12, 4, v2")
    a("v_lshlrev_b32 v12, 4, v12")
    a("v_add_u32 v12, s40, v12")
    a("v_and_b32 v13, 15, v2")
    a("v_cmp_eq_u32 vcc, 0, v13")
    a("s_and_saveexec_b64 s[36:37], vcc")
    for q in range(5):
        a("ds_write_b128 v12, %s offset:%d" % (vr(CA + 4 * q), CSO + 64 * q))
    a("s_mov_b64 exec, s[36:37]")
    a("s_waitcnt lgkmcnt(0)")
    a("s_barrier")
    ACC = 112
    a("s_lshr_b32 s24, s3, 1")
    a("s_and_b32 s25, s3, 1")
    a("v_and_b32 v3, 15, v2")
    a("s_mov_b32 s98, 1")
    a("s_lshl_b32 s36, s3, 14")
    a("s_add_u32 s36, s36, %d" % TB0)
    a("v_lshlrev_b32 v10, 4, v2")
    a("v_add_u32 v11, s36, v10")
    a("s_barrier")
    n_ = 0
    for z in range(2):
        for ft in range(4):
            for tt in range(2):
                a("ds_read_b128 %s, v11 offset:%d" % (vr(ACC + 72 * z + 4 * tidx(ft, tt)), 1024 * n_))
                n_ += 1
                if n_ in (8, 13): a("s_waitcnt lgkmcnt(4)")
    a("s_branch %s_epi" % name)

    def gran_addr():
        a("v_lshrrev_b32 v10, 4, v2")
        a("s_lshl_b32 s33, s25, 1")
        a("v_add_u32 v11, s33, v10")
        a("v_and_b32 v11, 3, v11")
        a("v_lshl_add_u32 v11, v11, 4, v3")
        a("v_lshlrev_b32 v94, 8, v11")
        a("s_lshl_b32 s59, s22, 7")
        a("s_lshl_b32 s36, s24, 6")
        a("s_add_u32 s59, s59, s36")
        a("s_lshl_b32 s59, s59, 8")
        a("s_add_u32 s59, s59, 0x%x" % STATS2)
        a("s_lshl_b32 s36, s23, 1")
        a("s_add_u32 s36, s36, s25")
        a("s_lshl_b32 s36, s36, 3")
        a("s_add_u32 s58, s36, s59")
    a.label("%s_consumer" % name)
    a("s_load_dwordx4 s[64:67], s[0:1], 8")
    a("s_load_dwordx2 s[76:77], s[0:1], 24")
    a("s_load_dwordx2 s[100:101], s[0:1], 80")
    a("s_lshr_b32 s24, s3, 1")
    a("s_and_b32 s25, s3, 1")
    a("v_and_b32 v3, 15, v2")
    other_setup()
    srd(a, 28, 80, 2048 * 576 * 2)
    srd(a, 8, 4, 576 * 4608 * 2)
    if "nopf" not in DBG:
        a("s_and_b32 s36, s22, 7")
        a("s_mul_i32 s36, s36, 72")
        a("s_mul_i32 s37, s3, 18")
        a("s_add_u32 s36, s36, s37")
        a("s_mul_i32 s36, s36, 9216")
        a("s_mul_i32 s37, s23, 288")
        a("s_add_u32 s36, s36, s37")
        a("s_and_b32 s36, s36, 0xffffff80")
        a("v_lshrrev_b32 v10, 2, v2")
        a("v_mul_u32_u24 v10, 9216, v10")
        a("v_and_b32 v11, 3, v2")
        a("v_lshl_add_u32 v10, v11, 7, v10")
        a("v_and_b32 v12, 7, v2")
        a("v_lshrrev_b32 v12, 2, v12")
        a("v_mul_u32_u24 v12, 9216, v12")
        a("v_lshl_add_u32 v12, v11, 7, v12")
        a("s_add_u32 s37, s36, 4608")
        a("s_add_u32 s38, s36, %d" % (16 * 9216))
        a("s_add_u32 s39, s37, %d" % (16 * 9216))
        a("buffer_load_dword v96, v10, s[8:11], s37 offen")
        a("buffer_load_dword v96, v10, s[8:11], s36 offen")
        a("buffer_load_dword v96, v12, s[8:11], s39 offen")
        a("buffer_load_dword v96, v12, s[8:11], s38 offen")
        a("s_lshr_b32 s36, s2, 6")
        a("s_lshl_b32 s36, s36, 5")
        a("s_lshl_b32 s37, s22, 7")
        a("s_add_u32 s36, s36, s37")
        a("s_mul_i32 s36, s36, 1152")
        a("s_mul_i32 s37, s3, 9216")
        a("s_add_u32 s36, s36, s37")
        a("v_lshlrev_b32 v11, 7, v2")
        a("buffer_load_dword v96, v11, s[28:31], s36 offen")
        a("v_and_b32 v11, 7, v2")
        a("v_lshlrev_b32 v11, 7, v11")
        a("s_add_u32 s36, s36, 8192")
        a("buffer_load_dword v96, v11, s[28:31], s36 offen")
    prep_srds()
    if "nopf2" not in DBG:
        a("s_lshl_b32 s41, s2, 1")
        a("s_add_u32 s41, s41, s24")
        a("s_cmp_ge_u32 s41, 288")
        a("s_cbranch_scc1 %s_nopf2" % name)
        a("s_mul_hi_u32 s36, s41, 0x%x" % ((2**32 + 8) // 9))
        a("s_mul_i32 s37, s36, 9")
        a("s_sub_u32 s37, s41, s37")
        a("s_mul_i32 s36, s36, %d" % (64 * 1152))
        a("s_lshl_b32 s37, s37, 7")
        a("s_add_u32 s36, s36, s37")
        a("v_mul_u32_u24 v10, 1152, v2")
        a("s_cmp_eq_u32 s25, 0")
        a("s_cbranch_scc1 %s_pfk" % name)
        a("buffer_load_dword v96, v10, s[68:71], s36 offen")
        a("s_branch %s_nopf2" % name)
        a.label("%s_pfk" % name)
        a("buffer_load_dword v96, v10, s[64:67], s36 offen")
        a.label("%s_nopf2" % name)
        a("s_mul_i32 s36, s2, 10368")
        a("s_mul_i32 s37, s3, 2688")
        a("s_add_u32 s36, s36, s37")
        a("v_min_u32 v10, 20, v2")
        a("v_lshlrev_b32 v10, 7, v10")
        a("buffer_load_dword v96, v10, s[76:79], s36 offen")
    stamp_setup(a, 1); stamp(a, 0)
    a("s_mov_b32 s98, 0")
    gran_addr()
    a("v_mov_b32 v12, 0"); a("v_mov_b32 v13, 0x80000000")
    a("buffer_store_dwordx2 v[12:13], v94, s[12:15], s58 offen sc1")
    TB = [16, 32]; FR = 48
    vTa, vTb, vP = 4, 5, [6, 7]; vH = [8, 9]
    bTa = [88, 89]; bTb = [90, 91]; bP = [92, 93]; bH = [100, 101]
    PF = 96
    a("v_lshrrev_b32 v10, 4, v2")
    a("v_lshrrev_b32 v11, 1, v3")
    a("v_xor_b32 v10, v10, v11")
    a("v_lshlrev_b32 v10, 4, v10")
    a("v_lshl_add_u32 v10, v3, 7, v10")
    a("s_lshl_b32 s26, s24, 13")
    a("s_add_u32 s26, s26, %d" % TB0)
    a("v_add_u32 v10, s26, v10")
    a("s_lshl_b32 s26, s25, 12")
    a("v_add_u32 v%d, s26, v10" % bTa[0])
    a("s_xor_b32 s26, s26, 4096")
    a("v_add_u32 v%d, s26, v10" % bTb[0])
    a("v_xor_b32 v%d, 64, v%d" % (bTa[1], bTa[0]))
    a("v_xor_b32 v%d, 64, v%d" % (bTb[1], bTb[0]))
    a("v_lshrrev_b32 v10, 2, v2")
    a("v_mul_u32_u24 v10, %d, v10" % FS)
    a("v_and_b32 v11, 3, v2")
    a("v_lshl_add_u32 v10, v11, 3, v10")
    a("v_add_u32 v10, %d, v10" % FB_)
    a("v_bfe_u32 v13, v2, 4, 1")
    a("v_lshlrev_b32 v13, 5, v13")
    a("v_add_u32 v%d, v10, v13" % bH[0])
    a("v_sub_u32 v%d, v10, v13" % bH[1])
    a("s_mul_i32 s26, s25, 160")
    a("s_cmp_eq_u32 s25, 0")
    a("s_cselect_b64 vcc, -1, 0")
    a("v_cndmask_b32 v11, v%d, v%d, vcc" % (bH[1], bH[0]))
    a("v_cndmask_b32 v12, v%d, v%d, vcc" % (bH[0], bH[1]))
    a("v_add_u32 v%d, s26, v11" % bP[0])
    a("v_add_u32 v%d, s26, v12" % bP[1])
    a("v_lshrrev_b32 v10, 4, v2")
    a("v_lshlrev_b32 v10, 12, v10")
    a("v_lshl_add_u32 v95, v3, 4, v10")
    a("s_lshl_b32 s41, s22, 7")
    a("s_lshl_b32 s36, s3, 5")
    a("s_add_u32 s41, s41, s36")
    a("s_lshl_b32 s41, s41, 12")
    a("s_lshl_b32 s36, s23, 8")
    a("s_add_u32 s41, s41, s36")
    for r in range(ACC, ACC + 144): a("v_mov_b32 v%d, 0" % r)
    def accr(z, ft, tt): return ACC + 72 * z + 4 * tidx(ft, tt)
    def Fr(z, ft): return FR + 20 * z + 4 * ft
    trk = LdsTracker(a)
    def treads(buf):
        L = []
        for tt in range(4):
            r = TB[buf] + 4 * tt
            L.append(("ds_read_b128 %s, v%d offset:%d" % (vr(r), vTa if tt < 2 else vTb, (tt & 1) * 2048), range(r, r + 4)))
        return L
    def freads(z, ft):
        r = Fr(z, ft); L = []
        for half in range(2):
            off = 16 * half * FS + 32 * (9 * z + ft)
            v = vP[(z + ft) & 1] if ft < 4 else vH[z]
            L.append(("ds_read_b64_tr_b16 %s, v%d offset:%d" % (vr(r + 2 * half, 2), v, off), range(r + 2 * half, r + 2 * half + 2)))
        return L
    def rd(t):
        a(t[0]); trk.issue(t[1])
    fpairs = ((vP[0], bP[0]), (vP[1], bP[1]), (vH[0], bH[0]), (vH[1], bH[1]))
    a("v_mov_b32 v%d, v%d" % (vTa, bTa[0])); a("v_mov_b32 v%d, v%d" % (vTb, bTb[0]))
    for d, s_ in fpairs: a("v_mov_b32 v%d, v%d" % (d, s_))
    a("s_mov_b32 s27, 0")
    a("s_mov_b32 s34, 0")
    a("s_mov_b32 s33, 0")
    stamp(a, 1)
    a("s_barrier")
    stamp(a, 2)
    for t in treads(0): rd(t)
    for z in range(2):
        for ft in range(5):
            for t in freads(z, ft): rd(t)
            if len(trk.out) >= 12: trk.drain()
    trk.drain()
    def iteration(par):
        G.stamp_seq(a)
        if "fine" in DBG: trk.out = []
        a("s_barrier")
        upd = []
        if par == 1:
            upd += ["s_add_u32 s27, s27, %d" % TS, "s_cmp_eq_u32 s27, %d" % (NT * TS), "s_cselect_b32 s27, 0, s27"]
        upd += ["v_add_u32 v%d, s27, v%d" % (vTa, bTa[1 - par]), "v_add_u32 v%d, s27, v%d" % (vTb, bTb[1 - par])]
        upd += ["s_add_u32 s34, s34, %d" % FSL, "s_cmp_eq_u32 s34, %d" % (NF * FSL), "s_cselect_b32 s34, 0, s34"]
        upd += ["v_add_u32 v%d, s34, v%d" % (d, s_) for d, s_ in fpairs]
        pend = [("x", u) for u in upd] + [("r", t) for t in treads(1 - par)]
        if par == 0:
            pass
        else:
            pend.append(("x", "s_add_u32 s33, s33, 1"))
        nm = 0
        for z in range(2):
            for ft in range(5):
                for tt in range(4 if ft < 4 else 2):
                    c = accr(z, ft, tt); A = Fr(z, ft); B = TB[par] + 4 * tt
                    trk.need(list(range(A, A + 4)) + list(range(B, B + 4)))
                    if "nomfma" not in DBG: a("v_mfma_f32_16x16x32_bf16 %s, %s, %s, %s" % (vr(c), vr(A), vr(B), vr(c)))
                    nfill = 1
                    while pend and nfill:
                        k, t = pend.pop(0)
                        if k == "x":
                            a(t)
                            if t.startswith("s_") and nm < 8: continue
                        else: rd(t)
                        nfill -= 1
                    nm += 1
                pend += [("r", t) for t in freads(z, ft)]
        for k, t in pend:
            if k == "x": a(t)
            else: rd(t)
        a("s_waitcnt lgkmcnt(15)")
        if len(trk.out) > 15: trk.out = trk.out[-15:]
    a.label("%s_cloop" % name)
    trk.out = []
    lb = len(a.lines)
    iteration(0); iteration(1)
    state = copy.deepcopy(trk.out)
    del a.lines[lb:]
    trk.out = copy.deepcopy(state)
    iteration(0); iteration(1)
    assert [sorted(x) for x in trk.out] == [sorted(x) for x in state]
    a("s_cmp_lt_u32 s33, %d" % (NK // 2))
    a("s_cbranch_scc1 %s_cloop" % name)
    trk.drain()
    stamp(a, 3)
    a("s_waitcnt vmcnt(0)")
    a("s_barrier")
    a("s_cmp_lg_u32 s3, 0")
    a("s_cbranch_scc1 %s_nosig" % name)
    a("v_mov_b32 v10, 1")
    a("s_lshl_b32 s36, s22, 2")
    a("v_mov_b32 v11, s36")
    a("s_mov_b64 exec, 1")
    a("buffer_atomic_add v10, v11, s[60:63], 0 offen sc1")
    a("s_mov_b64 exec, -1")
    a.label("%s_nosig" % name)
    a("s_lshl_b32 s36, s3, 14")
    a("s_add_u32 s36, s36, %d" % TB0)
    a("v_lshlrev_b32 v10, 4, v2")
    a("v_add_u32 v11, s36, v10")
    n_ = 0
    for z in range(2):
        for ft in range(4):
            for tt in range(2):
                a("ds_write_b128 v11, %s offset:%d" % (vr(accr(z, ft, tt + 2)), 1024 * n_))
                n_ += 1
                if n_ in (8, 13): a("s_waitcnt lgkmcnt(4)")
    a("s_waitcnt lgkmcnt(0)")
    a("s_barrier")
    a.label("%s_epi" % name)
    MR = 100; CS = 52; T = 72; ZP1 = 16
    ZP2 = lambda n: 192 + 16 * (n >> 2) + 2 * (n & 3)
    ZP1f = lambda n: 184 + 16 * (n >> 1) + 2 * (n & 1)
    gelu_consts(a)
    a("s_xor_b32 s52, s98, s25")
    a("s_lshl_b32 s36, s24, 9")
    a("s_lshl_b32 s37, s52, 8")
    a("s_add_u32 s38, s36, s37")
    a("v_lshlrev_b32 v10, 3, v3")
    a("v_add_u32 v11, s38, v10")
    a("ds_read_b64 %s, v11 offset:%d" % (vr(MR, 2), RST))
    a("ds_read_b64 %s, v11 offset:%d" % (vr(MR + 2, 2), RST + 128))
    a("v_lshrrev_b32 v10, 4, v2")
    a("v_lshlrev_b32 v4, 4, v10")
    a("s_mul_i32 s36, s25, 320")
    a("v_add_u32 v5, s36, v4")
    def cs_loads(z):
        for ft in range(4):
            a("ds_read_b128 %s, v5 offset:%d" % (vr(CS + 4 * ft), CSO + 576 * z + 64 * ft))
        a("ds_read_b128 %s, v4 offset:%d" % (vr(CS + 16), CSO + 576 * z + 256))
    a("s_waitcnt lgkmcnt(6)")
    cs_loads(0)
    S = [108, 110]; Q = [109, 111]
    for r_ in range(108, 112): a("v_mov_b32 v%d, 0" % r_)
    a("v_mov_b32 v88, 0x3f803f80")
    a("s_waitcnt lgkmcnt(0)")
    def gelu_z(z, ZP, stats):
        def dots(lst):
            if not stats: return
            for d in range(2):
                for (ft, tt) in lst:
                    p = ZP(2 * ft + tt) + d
                    a("v_dot2_f32_bf16 v%d, v%d, v88, v%d" % (S[tt], p, S[tt]))
                    a("v_dot2_f32_bf16 v%d, v%d, v%d, v%d" % (Q[tt], p, p, Q[tt]))
        for f0 in (0, 2):
            lst = [(ft, tt) for ft in (f0, f0 + 1) for tt in range(2)]
            emit_fold_gelu(a, [(ACC + 72 * z + 4 * tidx(ft, tt), CS + 4 * ft, MR + 2 * tt, ZP(2 * ft + tt)) for ft, tt in lst], T)
            dots(lst)
        a("s_cmp_lg_u32 s98, 0")
        a("s_cbranch_scc1 %s_nohalf%d" % (name, z))
        lst = [(4, 0), (4, 1)]
        emit_fold_gelu(a, [(ACC + 72 * z + 4 * tidx(ft, tt), CS + 4 * ft, MR + 2 * tt, ZP(2 * ft + tt)) for ft, tt in lst], T)
        dots(lst)
        a.label("%s_nohalf%d" % (name, z))
    gelu_z(0, ZP2, True)
    cs_loads(1)
    a("s_nop 1")
    emit_xg_reduce(a, S + Q, 72)
    a("s_lshl_b32 s59, s22, 7")
    a("s_lshl_b32 s36, s24, 6")
    a("s_add_u32 s59, s59, s36")
    a("s_lshl_b32 s36, s52, 5")
    a("s_add_u32 s59, s59, s36")
    a("s_lshl_b32 s59, s59, 8")
    a("s_add_u32 s59, s59, 0x%x" % STATS2)
    a("s_lshl_b32 s36, s23, 1")
    a("s_add_u32 s36, s36, s25")
    a("s_lshl_b32 s36, s36, 3")
    a("s_add_u32 s58, s36, s59")
    a("v_lshlrev_b32 v11, 8, v2")
    a("v_cmp_gt_u32 vcc, 32, v2")
    a("v_mov_b32 v12, 0x7ffffff0")
    a("v_cmp_eq_u32 s[36:37], 1, v10")
    a("v_cndmask_b32 v11, v12, v11, vcc")
    a("s_nop 0")
    a("v_cndmask_b32 v108, v108, v110, s[36:37]")
    a("v_cndmask_b32 v109, v109, v111, s[36:37]")
    a("v_and_b32 v109, 0x7fffffff, v109")
    a("buffer_store_dwordx2 v[108:109], v11, s[12:15], s58 offen sc1")
    a("s_setprio 0")
    stamp(a, 4)
    a("s_lshl_b32 s42, s2, 1")
    a("s_add_u32 s42, s42, s98")
    a("v_and_b32 v0, 255, v0")
    emit_wot_loads(a, 136, 144)
    a("s_mov_b32 s41, s42")
    a("s_cmp_ge_u32 s41, 288")
    a("s_cbranch_scc1 %s_nokv1" % name)
    emit_kv_loads(a, 112, 124, 132, 146, 147)
    a.label("%s_nokv1" % name)
    PB = 148
    a("v_lshrrev_b32 v182, 4, v2")
    a("v_lshlrev_b32 v181, 8, v3")
    a("v_lshl_add_u32 v181, v182, 6, v181")
    a("s_lshl_b32 s33, s22, 2")
    a("v_mov_b32 v182, s33")
    a("s_add_u32 s53, s59, 4096")
    a("buffer_load_dword v180, v182, s[60:63], 0 offen sc1")
    a("s_load_dwordx2 s[90:91], s[0:1], 64")
    a("v_lshrrev_b32 v183, 4, v2")
    a("v_lshlrev_b32 v183, 12, v183")
    a("v_lshl_add_u32 v183, v3, 4, v183")
    a("s_lshl_b32 s82, s22, 7")
    a("s_lshl_b32 s36, s3, 5")
    a("s_add_u32 s82, s82, s36")
    a("s_lshl_b32 s36, s98, 4")
    a("s_add_u32 s82, s82, s36")
    a("s_lshl_b32 s82, s82, 12")
    a("s_lshl_b32 s36, s23, 8")
    a("s_add_u32 s82, s82, s36")
    a("s_waitcnt lgkmcnt(0)")
    srd(a, 92, 90, 2048 * 2048 * 2)
    for n in range(4):
        a("buffer_load_dwordx4 v[92:95], v183, s[92:95], s82 offen")
        if n < 3: a("s_add_u32 s82, s82, 16384")
    a("s_waitcnt lgkmcnt(0)")
    gelu_z(1, ZP1f, False)
    stamp(a, 5)
    a("s_waitcnt vmcnt(0)")
    def gather():
        for tt in range(2):
            for q in range(4):
                a("buffer_load_dwordx4 %s, v181, s[12:15], s%d offen offset:%d sc1" % (vr(PB + 16 * tt + 4 * q), (59, 53)[tt], 16 * q))
    gather()
    a("s_cmp_ge_u32 s41, 288")
    a("s_cbranch_scc1 %s_nokv2" % name)
    for n in range(11): a("v_mov_b32 v%d, v%d" % (16 + n, 112 + n))
    for n in range(8): a("v_mov_b32 v%d, v%d" % (32 + n, 124 + n))
    for n in range(4): a("v_mov_b32 v%d, v%d" % (44 + n, 132 + n))
    a("v_mov_b32 v56, v146"); a("v_mov_b32 v57, v147")
    emit_kv_compute(a, wait=False, store=False)
    a.label("%s_nokv2" % name)
    stamp(a, 6)
    a("s_mov_b32 s43, 0")
    a("v_lshrrev_b32 v10, 4, v2")
    a("s_waitcnt vmcnt(0)")
    a.label("%s_chk" % name)
    a("v_subrev_u32 v11, 16, v180")
    for r in range(PB + 1, PB + 32, 4):
        a("v_or3_b32 v11, v11, v%d, v%d" % (r, r + 2))
    a("v_cmp_gt_i32 vcc, 0, v11")
    a("s_add_u32 s43, s43, 1")
    a("s_cmp_gt_u32 s43, %d" % SPIN_MAX)
    a("s_cbranch_scc1 %s_poll1x" % name)
    a("s_cbranch_vccz %s_poll1x" % name)
    a("s_sleep 24")
    a("buffer_load_dword v180, v182, s[60:63], 0 offen sc1")
    a("s_waitcnt vmcnt(0)")
    gather()
    a("s_waitcnt vmcnt(0)")
    a("s_branch %s_chk" % name)
    a.label("%s_poll1x" % name)
    stamp(a, 7)
    for n in range(2):
        a("buffer_store_dwordx4 %s, v%d, s[12:15], s40 offen" % (vr(136 + 4 * n), 144 + n))
    a("s_cmp_ge_u32 s41, 288")
    a("s_cbranch_scc1 %s_nokv3" % name)
    a("s_mov_b32 s39, 0x%x" % KVT)
    a("buffer_store_dwordx4 v[120:123], v12, s[12:15], s39 offen")
    a("buffer_store_dwordx4 v[124:127], v13, s[12:15], s39 offen")
    a.label("%s_nokv3" % name)
    a("s_lshl_b32 s36, s22, 4")
    a("s_add_u32 s36, s36, s23")
    a("s_lshl_b32 s36, s36, 2")
    a("s_add_u32 s36, s36, s3")
    a("s_mul_i32 s36, s36, 9216")
    a("s_lshl_b32 s37, s98, 10")
    a("s_add_u32 s36, s36, s37")
    a("s_add_u32 s36, s36, 0x%x" % Z1IMG)
    a("s_add_u32 s37, s36, 4096")
    a("s_add_u32 s38, s36, 8192")
    a("v_lshlrev_b32 v11, 4, v2")
    for ft in range(4):
        a("buffer_store_dwordx4 %s, v11, s[12:15], s%d offen offset:%d" % (vr(184 + 16 * ft), 36 + (ft >> 1), (ft & 1) * 2048))
    a("s_cmp_lg_u32 s98, 0")
    a("s_cbranch_scc1 %s_noh1" % name)
    a("buffer_store_dwordx4 %s, v11, s[12:15], s38 offen" % vr(248))
    a.label("%s_noh1" % name)
    for tt in range(2):
        b = PB + 16 * tt
        for st in (8, 4, 2):
            for q in range(0, st, 2):
                a("v_pk_add_f32 %s, %s, %s" % (vr(b + q, 2), vr(b + q, 2), vr(b + q + st, 2)))
    emit_xg_reduce(a, [PB + 16 * tt + e for tt in range(2) for e in range(2)], 72)
    for tt in range(2):
        b = PB + 16 * tt
        emit_ln_finish(a, b, b + 1, 2304, b + 2, MR + 2 * tt, b + 4)
        a("v_mul_f32 v%d, -v%d, v%d" % (MR + 2 * tt + 1, b + 2, MR + 2 * tt))
    a("v_lshrrev_b32 v11, 2, v2"); a("v_and_b32 v11, 1, v11"); a("v_lshlrev_b32 v11, 4, v11")
    a("v_lshrrev_b32 v12, 3, v2"); a("v_and_b32 v12, 1, v12"); a("v_lshl_add_u32 v11, v12, 2, v11")
    a("v_and_b32 v12, 3, v2"); a("v_add_u32 v11, v11, v12")
    a("v_mul_u32_u24 v11, 288, v11")
    a("v_lshrrev_b32 v12, 1, v10"); a("v_lshl_add_u32 v11, v12, 4, v11")
    a("v_and_b32 v12, 1, v10")
    a("v_lshl_add_u32 v13, v12, 5, v11")
    a("v_mul_u32_u24 v12, 2304, v12")
    a("v_add_u32 v9, v11, v12")
    a("s_lshl_b32 s33, s23, 5")
    a("s_lshl_b32 s36, s22, 1")
    a("s_add_u32 s33, s33, s36")
    a("s_add_u32 s33, s33, s24")
    a("s_mul_i32 s33, s33, 18432")
    if ZIMG: a("s_add_u32 s33, s33, 0x%x" % ZIMG)
    a("s_mul_i32 s36, s52, 9216")
    a("s_add_u32 s37, s33, s36")
    a("s_add_u32 s39, s37, 128")
    a("s_mul_i32 s36, s25, 160")
    a("s_add_u32 s37, s37, s36")
    def norm_pair(nA, ttA, nB, ttB, O):
        for q, (n, tt) in enumerate(((nA, ttA), (nB, ttB))):
            for d in range(2):
                z = ZP2(n) + d; t = T + 4 * q + 2 * d
                a("v_lshlrev_b32 v%d, 16, v%d" % (t, z))
                a("v_and_b32 v%d, 0xffff0000, v%d" % (t + 1, z))
        for q, (n, tt) in enumerate(((nA, ttA), (nB, ttB))):
            for d in range(2):
                t = T + 4 * q + 2 * d
                a("v_pk_fma_f32 %s, %s, %s, %s op_sel:[0,0,1] op_sel_hi:[1,0,1]" % (vr(t, 2), vr(t, 2), vr(MR + 2 * tt, 2), vr(MR + 2 * tt, 2)))
        for q in range(2):
            for d in range(2):
                t = T + 4 * q + 2 * d
                a("v_cvt_pk_bf16_f32 v%d, v%d, v%d" % (O + 2 * q + d, t, t + 1))
        a("s_nop 1")
        a("v_permlane16_swap_b32 v%d, v%d" % (O, O + 2))
        a("v_permlane16_swap_b32 v%d, v%d" % (O + 1, O + 3))
    cnt = 0
    for pr in range(2):
        for tt in range(2):
            O = 16 + 4 * cnt; cnt += 1
            norm_pair(2 * (2 * pr) + tt, tt, 2 * (2 * pr + 1) + tt, tt, O)
            a("s_nop 0")
            a("buffer_store_dwordx4 %s, v13, s[12:15], s37 offen offset:%d" % (vr(O), tt * 2304 + 64 * pr))
    a("s_cmp_lg_u32 s98, 0")
    a("s_cbranch_scc1 %s_fin" % name)
    O = 16 + 4 * cnt
    norm_pair(8, 0, 9, 1, O)
    a("s_nop 0")
    a("buffer_store_dwordx4 %s, v9, s[12:15], s39 offen" % vr(O))
    a.label("%s_fin" % name)
    stamp(a, 8)
    G.stamp_rt(a, 1)
    a.label("%s_end" % name)
    a("s_endpgm")
    return a.text(), kernel_desc(name, 256, 256), (name, 256, 512, LDSB)


def gen_k2b(name="k2_kernel", R=4):
    a = Asm()
    SLOT = 34816; TREG = 16384; FS = 288; NST = 32
    kernel_begin(a, name)
    a("s_load_dwordx2 s[4:5], s[0:1], 64")
    a("s_load_dwordx2 s[6:7], s[0:1], 104")
    a("s_load_dwordx4 s[88:91], s[0:1], 32")
    a("s_cmp_ge_u32 s2, 256")
    a("s_cbranch_scc1 %s_end" % name)
    a("v_lshrrev_b32 v1, 6, v0")
    a("v_and_b32 v2, 63, v0")
    a("v_readfirstlane_b32 s3, v1")
    G2.tile_ij(a)
    a("s_cmp_lt_u32 s3, 4")
    a("s_cbranch_scc1 %s_consumer" % name)
    if "noprio" not in DBG: a("s_setprio 3")
    a("s_sub_u32 s3, s3, 4")
    a("v_lshrrev_b32 v3, 3, v2")
    a("s_lshl_b32 s24, s3, 5")
    a("v_add_u32 v3, s24, v3")
    a("v_and_b32 v4, 7, v2")
    a("v_lshrrev_b32 v6, 4, v2")
    a("v_xor_b32 v6, v6, v4")
    a("v_lshlrev_b32 v6, 4, v6")
    a("v_lshl_add_u32 v10, v3, 12, v6")
    a("v_xor_b32 v11, 64, v10")
    a("v_add_u32 v11, %d, v11" % (32768 - 1024))
    a("v_add_u32 v12, %d, v10" % (2 * (32768 - 1024)))
    a("v_add_u32 v13, %d, v11" % (2 * (32768 - 1024)))
    a("v_lshlrev_b32 v14, 4, v2")
    a("s_lshl_b32 s26, s22, 19")
    a("s_mul_i32 s27, s23, %d" % (32 * 18432))
    a("s_lshl_b32 s24, s3, 12")
    a("s_add_u32 s27, s27, s24")
    if ZIMG: a("s_add_u32 s27, s27, 0x%x" % ZIMG)
    a("s_lshl_b32 s25, s3, 9")
    a("s_sub_u32 s32, s25, s24")
    a("s_add_u32 s32, s32, 16384")
    a("s_mov_b32 s33, 0")
    a("s_waitcnt lgkmcnt(0)")
    srd(a, 8, 4, 2048 * 2048 * 2)
    srd(a, 12, 6, WS_BYTES)
    def issue():
        a("s_add_u32 s35, s33, s24")
        a("s_mov_b32 m0, s35")
        a("s_add_u32 s36, s35, %d" % TREG)
        for n in range(4):
            a("buffer_load_dwordx4 v%d, s[8:11], s26 offen offset:%d lds" % (10 + n, n * 1024))
        a("s_mov_b32 m0, s36")
        a("s_add_u32 s37, s27, s32")
        for n in range(4):
            a("buffer_load_dwordx4 v14, s[12:15], s27 offen offset:%d lds" % (n * 1024))
        a("s_add_u32 s36, s36, s32")
        a("s_mov_b32 m0, s36")
        a("s_mov_b64 exec, 0xffffffff")
        a("buffer_load_dwordx4 v14, s[12:15], s37 offen lds")
        a("s_mov_b64 exec, -1")
        a("s_add_u32 s26, s26, 128")
        a("s_add_u32 s27, s27, 18432")
        a("s_add_u32 s33, s33, %d" % SLOT)
        a("s_cmp_eq_u32 s33, %d" % (R * SLOT))
        a("s_cselect_b32 s33, 0, s33")
    srd(a, 16, 88, 576 * 2048 * 2)
    srd(a, 84, 90, 576 * 2)
    a("s_lshl_b32 s43, s2, 2")
    a("s_add_u32 s43, s43, s3")
    a("s_and_b32 s53, s43, 1")
    a("s_sub_u32 s36, s43, 448")
    a("s_lshr_b32 s37, s43, 1")
    a("s_cmp_ge_u32 s43, 896")
    a("s_cselect_b32 s43, s36, s37")
    a("s_cselect_b32 s53, 2, s53")
    if "rampB" in DBG:
        issue(); issue()
        nconv = emit_conv_loads(a)
        a("s_waitcnt vmcnt(%d)" % (9 + nconv))
        a("s_barrier")
        issue(); issue()
        a("s_waitcnt vmcnt(%d)" % (18 + nconv))
        a("s_barrier")
    else:
        issue()
        nconv = emit_conv_loads(a)
        issue(); issue(); issue()
        a("s_waitcnt vmcnt(%d)" % (27 + nconv))
        a("s_barrier")
        a("s_waitcnt vmcnt(18)")
        a("s_barrier")
    a("s_add_u32 s3, s3, 4"); stamp_setup(a, 2); stamp(a, 0); a("s_sub_u32 s3, s3, 4")
    a("s_waitcnt vmcnt(9)")
    a("s_barrier")
    a("s_mov_b32 s34, 1")
    a.label("%s_lloop" % name)
    issue()
    a("s_waitcnt vmcnt(9)")
    a("s_barrier")
    a("s_add_u32 s34, s34, 1")
    a("s_cmp_lt_u32 s34, %d" % (NST - R + 1))
    a("s_cbranch_scc1 %s_lloop" % name)
    a("s_waitcnt vmcnt(0) lgkmcnt(0)")
    a("s_barrier")
    stamp(a, 1)
    a("s_mov_b32 s26, s53")
    a("s_and_b32 s27, s3, 1")
    a("s_mul_i32 s27, s27, %d" % CJ_SIZE)
    a("s_lshr_b32 s36, s3, 1")
    a("s_mul_i32 s36, s36, %d" % SLOT)
    a("s_add_u32 s27, s27, s36")
    def mid():
        if "warm2" in DBG:
            a("s_cmp_eq_u32 s99, 1")
            a("s_cbranch_scc1 %s_midskip" % name)
        a("s_barrier")
        a("s_setprio 0")
        a.label("%s_midskip" % name)
    a.label("%s_cjstart" % name)
    if "noconv" in DBG:
        mid()
    else:
        emit_conv_job(a, name, mid)
        G.stamp_rt(a, 1)
    a("s_branch %s_end" % name)
    a.label("%s_consumer" % name)
    a("s_load_dwordx2 s[92:93], s[0:1], 72")
    a("s_load_dwordx2 s[94:95], s[0:1], 80")
    ACC = 128; FB = [16, 52]
    vTa = [4, 5]; vTb = [6, 7]; vF = 8; vFh = 9
    bTa = [88, 89]; bTb = [90, 91]; bF = 92; bFh = 93
    Z1R = 200; BI = 236
    a("s_lshr_b32 s24, s3, 1")
    a("s_and_b32 s25, s3, 1")
    a("v_and_b32 v3, 15, v2")
    a("v_lshrrev_b32 v10, 4, v2")
    a("v_lshrrev_b32 v11, 1, v3")
    a("v_xor_b32 v10, v10, v11")
    a("v_lshlrev_b32 v10, 4, v10")
    a("v_lshl_add_u32 v10, v3, 7, v10")
    a("s_lshl_b32 s26, s24, 13")
    a("v_add_u32 v10, s26, v10")
    a("s_lshl_b32 s26, s25, 12")
    a("v_add_u32 v%d, s26, v10" % bTa[0])
    a("s_xor_b32 s26, s26, 4096")
    a("v_add_u32 v%d, s26, v10" % bTb[0])
    a("v_xor_b32 v%d, 64, v%d" % (bTa[1], bTa[0]))
    a("v_xor_b32 v%d, 64, v%d" % (bTb[1], bTb[0]))
    a("v_lshrrev_b32 v10, 2, v2")
    a("v_mul_u32_u24 v10, %d, v10" % FS)
    a("v_and_b32 v11, 3, v2")
    a("v_lshl_add_u32 v10, v11, 3, v10")
    a("v_add_u32 v10, %d, v10" % TREG)
    a("s_mul_i32 s26, s25, 160")
    a("v_add_u32 v%d, s26, v10" % bF)
    a("v_add_u32 v%d, 128, v10" % bFh)
    for d, s_ in ((vTa[0], bTa[0]), (vTb[0], bTb[0]), (vTa[1], bTa[1]), (vTb[1], bTb[1]), (vF, bF), (vFh, bFh)):
        a("v_mov_b32 v%d, v%d" % (d, s_))
    a("s_waitcnt lgkmcnt(0)")
    srd(a, 12, 6, WS_BYTES)
    srd(a, 28, 92, 2048 * 2)
    if "wot2" in DBG:
        srd(a, 76, 94, 2304 * 576 * 2)
        a("s_mov_b32 s42, s2")
        emit_wot_loads(a, 96, 108, 720, 3)
    stamp_setup(a, 2); stamp(a, 0)
    a("s_mov_b32 s99, 0")
    for r in range(ACC, ACC + 72): a("v_mov_b32 v%d, 0" % r)
    a("s_mov_b32 s27, 0")
    a("s_mov_b32 s33, 0")
    core = G.Core(a, ACC, FB[0], FB[1], FS, TREG, vTa, vTb, vF, vFh)
    trk = core.trk
    a("s_barrier")
    stamp(a, 1)
    core.prime(0, core.reads(0, 0))
    def phase(buf, pend):
        for (m, regs) in core.mfmas(buf):
            trk.need(regs)
            a(m)
            while pend:
                k, t = pend.pop(0)
                if k == "x":
                    a(t)
                    if t.startswith("s_"): continue
                else:
                    a(t[0]); trk.issue(t[1])
                break
        for k, t in pend:
            if k == "x": a(t)
            else: a(t[0]); trk.issue(t[1])
    def iteration(extra=None):
        a("s_barrier")
        rd = [("r", t) for t in core.reads(1, 1)]
        upd = ["s_add_u32 s27, s27, %d" % SLOT, "s_cmp_eq_u32 s27, %d" % (R * SLOT), "s_cselect_b32 s27, 0, s27"]
        tail = ["v_add_u32 v%d, s27, v%d" % (d, s_) for d, s_ in ((vTa[0], bTa[0]), (vF, bF), (vTb[0], bTb[0]), (vFh, bFh))]
        phase(0, rd[:1] + [("x", u) for u in upd] + rd[1:] + [("x", u) for u in tail])
        rd = [("r", t) for t in core.reads(0, 0)]
        tail = ["v_add_u32 v%d, s27, v%d" % (d, s_) for d, s_ in ((vTa[1], bTa[1]), (vTb[1], bTb[1]))] + ["s_add_u32 s33, s33, 1"]
        phase(1, rd + [("x", u) for u in tail])
    a.label("%s_cloop" % name)
    lb = len(a.lines); iteration(); st = copy.deepcopy(trk.out); del a.lines[lb:]; trk.out = copy.deepcopy(st)
    iteration()
    assert [sorted(x) for x in trk.out] == [sorted(x) for x in st]
    a("s_cmp_lg_u32 s33, 24")
    a("s_cbranch_scc1 %s_noz" % name)
    if "wot2" in DBG:
        a("s_mov_b32 s35, 0x%x" % WOT)
        a("s_waitcnt vmcnt(0)")
        for n in range(3):
            a("buffer_store_dwordx4 %s, v%d, s[12:15], s35 offen" % (vr(96 + 4 * n), 108 + n))
    a("s_lshl_b32 s35, s22, 4")
    a("s_add_u32 s35, s35, s23")
    a("s_lshl_b32 s35, s35, 2")
    a("s_add_u32 s35, s35, s3")
    a("s_mul_i32 s35, s35, 9216")
    a("s_add_u32 s35, s35, 0x%x" % Z1IMG)
    a("v_lshlrev_b32 v10, 4, v2")
    for q in range(9):
        if q in (4, 8): a("s_add_u32 s35, s35, 4096")
        a("buffer_load_dwordx4 %s, v10, s[12:15], s35 offen offset:%d" % (vr(Z1R + 4 * q), (q & 3) * 1024))
    a("s_lshl_b32 s36, s22, 7")
    a("s_lshl_b32 s37, s24, 6")
    a("s_add_u32 s36, s36, s37")
    a("v_lshlrev_b32 v11, 1, v3")
    a("s_lshl_b32 s37, s25, 6")
    a("s_lshl_b32 s38, s36, 1")
    a("s_add_u32 s39, s38, s37")
    a("s_xor_b32 s37, s37, 64")
    a("s_add_u32 s40, s38, s37")
    a("buffer_load_ushort v%d, v11, s[28:31], s39 offen" % (BI + 0))
    a("buffer_load_ushort v%d, v11, s[28:31], s39 offen offset:32" % (BI + 2))
    a("buffer_load_ushort v%d, v11, s[28:31], s40 offen" % (BI + 4))
    a("buffer_load_ushort v%d, v11, s[28:31], s40 offen offset:32" % (BI + 6))
    a.label("%s_noz" % name)
    a("s_cmp_lt_u32 s33, %d" % NST)
    a("s_cbranch_scc1 %s_cloop" % name)
    trk.drain()
    stamp(a, 2)
    a.label("%s_epi" % name)
    a("v_lshrrev_b32 v10, 4, v2")
    a("v_and_b32 v11, 1, v10")
    a("v_lshrrev_b32 v12, 1, v10")
    a("v_lshl_add_u32 v12, v11, 1, v12")
    a("s_mul_i32 s35, s23, 18")
    a("s_mul_i32 s36, s25, 10")
    a("s_add_u32 s36, s36, s35")
    a("v_lshrrev_b32 v13, 1, v3")
    a("s_lshl_b32 s37, s22, 1")
    a("s_add_u32 s37, s37, s24")
    a("s_mul_i32 s37, s37, %d" % (36 * 8192))
    a("s_add_u32 s37, s37, 0x%x" % PIMG)
    a("s_lshl_b32 s38, s25, 12")
    a("s_add_u32 s39, s37, s38")
    a("s_xor_b32 s38, s38, 4096")
    a("s_add_u32 s40, s37, s38")
    def addr(dst, pv):
        a("v_lshrrev_b32 v14, 3, v%d" % pv)
        a("v_lshlrev_b32 v14, 13, v14")
        a("v_and_b32 v15, 7, v%d" % pv)
        a("v_xor_b32 v15, v15, v13")
        a("v_lshl_add_u32 v14, v15, 4, v14")
        a("v_lshl_add_u32 v%d, v3, 7, v14" % dst)
    a("v_add_u32 v16, s36, v12"); addr(4, 16)
    a("v_add_u32 v16, 4, v16"); addr(5, 16)
    a("v_lshrrev_b32 v16, 1, v10")
    a("s_add_u32 s35, s35, 8")
    a("v_add_u32 v16, s35, v16"); addr(6, 16)
    a("v_lshl_add_u32 v6, v11, 11, v6")
    a("s_waitcnt vmcnt(0)")
    for tt in range(4):
        a("v_lshlrev_b32 v%d, 16, v%d" % (BI + 2 * tt, BI + 2 * tt))
    stamp(a, 3)
    def ptiles(lst, O):
        T = 24
        for q, (ft, tt) in enumerate(lst):
            c = core.accr(ft, tt)
            for h in (0, 2):
                a("v_pk_add_f32 %s, %s, %s op_sel_hi:[1,0]" % (vr(c + h, 2), vr(c + h, 2), vr(BI + 2 * tt, 2)))
        for q, (ft, tt) in enumerate(lst):
            c = core.accr(ft, tt)
            a("v_cvt_pk_bf16_f32 v%d, v%d, v%d" % (T + 2 * q, c, c + 1))
            a("v_cvt_pk_bf16_f32 v%d, v%d, v%d" % (T + 2 * q + 1, c + 2, c + 3))
        for q, (ft, tt) in enumerate(lst):
            c = core.accr(ft, tt); z = Z1R + 2 * tidx(ft, tt)
            for d in range(2):
                a("v_lshlrev_b32 v%d, 16, v%d" % (c + 2 * d, T + 2 * q + d))
                a("v_and_b32 v%d, 0xffff0000, v%d" % (c + 2 * d + 1, T + 2 * q + d))
                a("v_lshlrev_b32 v%d, 16, v%d" % (T + 4 + 4 * q + 2 * d, z + d))
                a("v_and_b32 v%d, 0xffff0000, v%d" % (T + 5 + 4 * q + 2 * d, z + d))
        for q, (ft, tt) in enumerate(lst):
            c = core.accr(ft, tt)
            for h in (0, 2):
                a("v_pk_mul_f32 %s, %s, %s" % (vr(c + h, 2), vr(c + h, 2), vr(T + 4 + 4 * q + h, 2)))
        for q, (ft, tt) in enumerate(lst):
            c = core.accr(ft, tt)
            a("v_cvt_pk_bf16_f32 v%d, v%d, v%d" % (O + 2 * q, c, c + 1))
            a("v_cvt_pk_bf16_f32 v%d, v%d, v%d" % (O + 2 * q + 1, c + 2, c + 3))
        a("s_nop 1")
        a("v_permlane16_swap_b32 v%d, v%d" % (O, O + 2))
        a("v_permlane16_swap_b32 v%d, v%d" % (O + 1, O + 3))
        a("s_nop 0")
    cnt = 0
    for pr in range(2):
        for tt in range(4):
            O = 40 + 4 * cnt; cnt += 1
            ptiles([(2 * pr, tt), (2 * pr + 1, tt)], O)
            a("buffer_store_dwordx4 %s, v%d, s[12:15], s%d offen offset:%d" % (vr(O), 4 + pr, 39 if tt < 2 else 40, (tt & 1) * 2048))
    O = 40 + 4 * cnt
    ptiles([(4, 0), (4, 1)], O)
    a("buffer_store_dwordx4 %s, v6, s[12:15], s39 offen" % vr(O))
    seg_end2(a, name)
    stamp(a, 4)
    G.stamp_rt(a, 1)
    a.label("%s_end" % name)
    a("s_endpgm")
    return a.text(), kernel_desc(name, 256, 256), (name, 256, 512, R * SLOT)


def gen_k3b(name="k3_kernel", R=4):
    a = Asm()
    TREG = 16384; FS = 160; SLOT = TREG + 128 * FS; NST = 18
    YOFF = R * SLOT
    kernel_begin(a, name)
    a("s_load_dwordx2 s[6:7], s[0:1], 104")
    a("s_load_dwordx2 s[4:5], s[0:1], 0")
    a("s_load_dwordx2 s[16:17], s[0:1], 88")
    a("s_cmp_ge_u32 s2, 256")
    a("s_cbranch_scc1 %s_end" % name)
    a("v_lshrrev_b32 v1, 6, v0")
    a("v_and_b32 v2, 63, v0")
    a("v_readfirstlane_b32 s3, v1")
    a("s_and_b32 s20, s2, 7")
    a("s_lshr_b32 s21, s2, 3")
    a("s_and_b32 s22, s20, 3")
    a("s_lshl_b32 s22, s22, 3")
    a("s_and_b32 s23, s21, 7")
    a("s_add_u32 s22, s22, s23")
    a("s_lshr_b32 s23, s20, 2")
    a("s_lshl_b32 s23, s23, 2")
    a("s_lshr_b32 s24, s21, 3")
    a("s_add_u32 s23, s23, s24")
    a("s_lshr_b32 s52, s23, 1")
    a("s_and_b32 s53, s23, 1")
    XR = 200; ST = 208
    def fin_loads():
        a("v_and_b32 v3, 15, v2")
        a("v_lshrrev_b32 v10, 4, v2")
        a("v_mul_u32_u24 v13, 1152, v3")
        a("v_lshl_add_u32 v13, v10, 3, v13")
        a("v_lshlrev_b32 v12, 3, v3")
        for s_ in range(3):
            if s_ == 2:
                a("s_cmp_ge_u32 s54, 2")
                a("s_cbranch_scc1 %s_fl%d" % (name, fin_loads.cnt))
            b = 64 + 4 * s_
            if s_ < 2:
                a("s_add_u32 s36, s54, %d" % (8 * s_))
                a("s_lshr_b32 s37, s36, 2")
                a("s_and_b32 s38, s36, 3")
                a("s_mul_i32 s39, s53, 160")
                a("s_lshl_b32 s40, s37, 5")
                a("s_add_u32 s39, s39, s40")
            else:
                a("s_add_u32 s36, s54, 16")
                a("s_mov_b32 s37, 4")
                a("s_mov_b32 s38, s54")
                a("s_mov_b32 s39, 128")
            a("s_lshl_b32 s40, s53, 1")
            a("s_add_u32 s38, s38, s40")
            a("s_and_b32 s38, s38, 3")
            a("s_lshl_b32 s40, s22, 2")
            a("s_add_u32 s40, s40, s38")
            a("s_lshl_b32 s40, s40, 4")
            a("s_mul_i32 s%d, s40, 1152" % b)
            a("s_add_u32 s%d, s%d, s39" % (b, b))
            a("s_mul_i32 s39, s52, 288")
            a("s_add_u32 s%d, s%d, s39" % (b, b))
            a("s_lshl_b32 s%d, s37, 11" % (b + 1))
            a("s_lshl_b32 s39, s38, 5")
            a("s_add_u32 s%d, s%d, s39" % (b + 1, b + 1))
            a("s_add_u32 s%d, s%d, %d" % (b + 1, b + 1, YOFF))
            a("s_lshl_b32 s%d, s36, 10" % (b + 2))
            a("s_lshl_b32 s40, s40, 3")
            a("s_add_u32 s40, s40, 0x%x" % STATS1)
            a("buffer_load_dwordx2 %s, v13, s[8:11], s%d offen" % (vr(XR + 2 * s_, 2), b))
            a("buffer_load_dwordx2 %s, v12, s[12:15], s40 offen" % vr(ST + 2 * s_, 2))
        a.label("%s_fl%d" % (name, fin_loads.cnt))
        fin_loads.cnt += 1
    fin_loads.cnt = 0
    a("s_mov_b32 s54, s3")
    a("s_cmp_lt_u32 s3, 4")
    a("s_cbranch_scc1 %s_consumer" % name)
    a("s_setprio 3")
    a("s_sub_u32 s3, s3, 4")
    a("v_lshlrev_b32 v14, 4, v2")
    a("s_mul_i32 s26, s22, %d" % (36 * 8192))
    a("s_lshl_b32 s24, s3, 12")
    a("s_add_u32 s26, s26, s24")
    a("s_add_u32 s26, s26, 0x%x" % PIMG)
    a("s_mul_i32 s27, s23, %d" % (18 * 20480))
    a("s_mul_i32 s25, s3, 5120")
    a("s_add_u32 s27, s27, s25")
    a("s_add_u32 s27, s27, 0x%x" % WOT)
    a("s_add_u32 s25, s25, %d" % TREG)
    a("s_mov_b32 s33, 0")
    a("s_waitcnt lgkmcnt(0)")
    srd(a, 12, 6, WS_BYTES)
    def issue():
        a("s_add_u32 s35, s33, s24")
        a("s_mov_b32 m0, s35")
        a("s_add_u32 s36, s33, s25")
        for n in range(4):
            a("buffer_load_dwordx4 v14, s[12:15], s26 offen offset:%d lds" % (n * 1024))
        a("s_mov_b32 m0, s36")
        a("s_add_u32 s37, s27, 4096")
        for n in range(4):
            a("buffer_load_dwordx4 v14, s[12:15], s27 offen offset:%d lds" % (n * 1024))
        a("s_add_u32 s36, s36, 4096")
        a("s_mov_b32 m0, s36")
        a("s_add_u32 s26, s26, 16384")
        a("buffer_load_dwordx4 v14, s[12:15], s37 offen lds")
        a("s_add_u32 s27, s27, 20480")
        a("s_add_u32 s33, s33, %d" % SLOT)
        a("s_cmp_eq_u32 s33, %d" % (R * SLOT))
        a("s_cselect_b32 s33, 0, s33")
    issue(); issue()
    a("s_add_u32 s3, s3, 4"); stamp_setup(a, 3); stamp(a, 0); a("s_sub_u32 s3, s3, 4")
    srd(a, 8, 4, 2048 * 576 * 2)
    srd(a, 28, 16, 2048 * 576 * 2)
    a("s_waitcnt vmcnt(9)")
    a("s_barrier")
    issue(); issue()
    a("s_waitcnt vmcnt(18)")
    a("s_barrier")
    a("s_mov_b32 s34, 0")
    a.label("%s_lloop" % name)
    issue()
    a("s_waitcnt vmcnt(18)")
    a("s_barrier")
    a("s_add_u32 s34, s34, 1")
    a("s_cmp_lt_u32 s34, %d" % (NST - R))
    a("s_cbranch_scc1 %s_lloop" % name)
    a("v_lshrrev_b32 v3, 3, v2")
    a("v_and_b32 v4, 7, v2")
    a("v_lshlrev_b32 v4, 4, v4")
    a("s_mul_i32 s33, s52, 144")
    a("s_mul_i32 s34, s53, 80")
    a("s_lshl_b32 s35, s22, 7")
    a("s_add_u32 s35, s35, 0x%x" % YT)
    for n in range(3):
        a("s_add_u32 s36, s3, %d" % (4 * n))
        if n == 2:
            a("s_min_u32 s36, s36, 9")
        a("s_lshl_b32 s37, s36, 3")
        a("s_add_u32 s38, s37, s33")
        if n < 2: a("s_add_u32 s38, s38, s34")
        a("v_add_u32 v5, s38, v3")
        a("v_lshl_add_u32 v5, v5, 12, v4")
        a("s_lshl_b32 s36, s36, 10")
        a("s_add_u32 s36, s36, %d" % YOFF)
        a("s_mov_b32 m0, s36")
        a("s_nop 0")
        a("buffer_load_dwordx4 v5, s[12:15], s35 offen lds")
    fin_loads()
    a("s_waitcnt vmcnt(%d)" % (9 + 7))
    a("s_barrier")
    a("s_waitcnt vmcnt(7)")
    a("s_barrier")
    a("s_barrier")
    a("s_setprio 0")
    a("s_waitcnt vmcnt(0)")
    a("s_branch %s_fin" % name)
    a.label("%s_consumer" % name)
    ACC = 128; FB0 = 16; FB1 = 52
    vTa = [4, 4]; vTb = [6, 6]; vF = 8; vFh = 9
    bTa = 88; bTb = 90; bF = 92; bFh = 93
    a("v_and_b32 v3, 15, v2")
    a("v_lshrrev_b32 v10, 4, v2")
    a("s_and_b32 s26, s3, 1")
    a("s_lshl_b32 s26, s26, 2")
    a("v_add_u32 v10, s26, v10")
    a("v_lshrrev_b32 v11, 1, v3")
    a("v_xor_b32 v10, v10, v11")
    a("v_lshlrev_b32 v10, 4, v10")
    a("v_lshl_add_u32 v10, v3, 7, v10")
    a("s_lshr_b32 s26, s3, 1")
    a("s_lshl_b32 s26, s26, 13")
    a("v_add_u32 v10, s26, v10")
    a("s_lshl_b32 s26, s53, 12")
    a("v_add_u32 v%d, s26, v10" % bTa)
    a("s_xor_b32 s26, s26, 4096")
    a("v_add_u32 v%d, s26, v10" % bTb)
    a("v_lshrrev_b32 v10, 2, v2")
    a("v_mul_u32_u24 v10, %d, v10" % FS)
    a("v_and_b32 v11, 3, v2")
    a("v_lshl_add_u32 v10, v11, 3, v10")
    a("s_mul_i32 s26, s3, %d" % (32 * FS))
    a("s_add_u32 s26, s26, %d" % TREG)
    a("v_add_u32 v%d, s26, v10" % bF)
    a("v_add_u32 v%d, 128, v%d" % (bFh, bF))
    a("s_waitcnt lgkmcnt(0)")
    srd(a, 12, 6, WS_BYTES)
    srd(a, 8, 4, 2048 * 576 * 2)
    srd(a, 28, 16, 2048 * 576 * 2)
    stamp_setup(a, 3); stamp(a, 0)
    fin_loads()
    core = G.Core(a, ACC, FB0, FB1, FS, TREG, vTa, vTb, vF, vFh)
    trk = core.trk
    pairs = ((vTa[0], bTa), (vF, bF), (vTb[0], bTb), (vFh, bFh))
    for d, s_ in pairs: a("v_mov_b32 v%d, v%d" % (d, s_))
    for r in range(ACC, ACC + 72): a("v_mov_b32 v%d, 0" % r)
    a("s_mov_b32 s27, 0")
    a("s_mov_b32 s33, 0")
    a("s_barrier")
    stamp(a, 1)
    core.prime(0, core.reads(0, 0))
    def iteration(buf):
        trk.drain()
        a("s_barrier")
        a("s_add_u32 s27, s27, %d" % SLOT)
        a("s_cmp_eq_u32 s27, %d" % (R * SLOT))
        a("s_cselect_b32 s27, 0, s27")
        pre = ["v_add_u32 v%d, s27, v%d" % (d, s_) for d, s_ in pairs]
        core.phase(buf, core.reads(1 - buf, 0), pre=pre)
    a.label("%s_cloop" % name)
    iteration(0); iteration(1)
    a("s_add_u32 s33, s33, 1")
    a("s_cmp_lt_u32 s33, %d" % (NST // 2))
    a("s_cbranch_scc1 %s_cloop" % name)
    trk.drain()
    stamp(a, 2)
    a("s_mul_i32 s33, s3, %d" % (18 * 1024))
    a("v_lshlrev_b32 v10, 4, v2")
    a("v_add_u32 v11, s33, v10")
    a("s_nop 4")
    for n, (ft, tt) in enumerate(TILES):
        a("ds_write_b128 v11, %s offset:%d" % (vr(core.accr(ft, tt)), 1024 * tidx(ft, tt)))
        if n in (7, 13): a("s_waitcnt lgkmcnt(4)")
    a("s_waitcnt lgkmcnt(0) vmcnt(0)")
    a.label("%s_fin" % name)
    a("s_barrier")
    stamp(a, 3)
    a("v_lshlrev_b32 v10, 4, v2")
    a("v_lshrrev_b32 v11, 2, v2")
    a("v_lshlrev_b32 v11, 7, v11")
    a("v_and_b32 v12, 3, v2")
    a("v_lshl_add_u32 v11, v12, 3, v11")
    a("s_mov_b32 s33, 0xbfb8aa3b")
    PT = 16; YR = 64
    for s_ in range(3):
        b = 64 + 4 * s_
        if s_ == 2:
            a("s_cmp_ge_u32 s54, 2")
            a("s_cbranch_scc1 %s_rd" % name)
        a("v_add_u32 v4, s%d, v10" % (b + 2))
        a("v_add_u32 v5, s%d, v11" % (b + 1))
        for q in range(4):
            a("ds_read_b128 %s, v4 offset:%d" % (vr(PT + 16 * s_ + 4 * q), 18432 * q))
        a("ds_read_b64_tr_b16 %s, v5" % vr(YR + 2 * s_, 2))
    a.label("%s_rd" % name)
    T = 104
    for s_ in range(3):
        b = 64 + 4 * s_
        if s_ == 0: a("s_waitcnt lgkmcnt(5)")
        if s_ == 1: a("s_waitcnt lgkmcnt(0)")
        if s_ == 2:
            a("s_cmp_ge_u32 s54, 2")
            a("s_cbranch_scc1 %s_done" % name)
        o = PT + 16 * s_; X = XR + 2 * s_; Y = YR + 2 * s_; S_ = ST + 2 * s_
        for h in (0, 2):
            a("v_pk_add_f32 %s, %s, %s" % (vr(o + h, 2), vr(o + h, 2), vr(o + 4 + h, 2)))
            a("v_pk_add_f32 %s, %s, %s" % (vr(o + 8 + h, 2), vr(o + 8 + h, 2), vr(o + 12 + h, 2)))
        for h in (0, 2):
            a("v_pk_add_f32 %s, %s, %s" % (vr(o + h, 2), vr(o + h, 2), vr(o + 8 + h, 2)))
        rnd_pair(a, T + 20, o, o + 1); rnd_pair(a, T + 21, o + 2, o + 3)
        for r in range(4): a("v_mul_f32 v%d, s33, v%d" % (T + r, o + r))
        for r in range(4): a("v_exp_f32 v%d, v%d" % (T + r, T + r))
        a("v_lshlrev_b32 v%d, 16, v%d" % (T + 4, X)); a("v_and_b32 v%d, 0xffff0000, v%d" % (T + 5, X))
        a("v_lshlrev_b32 v%d, 16, v%d" % (T + 6, X + 1)); a("v_and_b32 v%d, 0xffff0000, v%d" % (T + 7, X + 1))
        for r in range(4): a("v_add_f32 v%d, 1.0, v%d" % (T + r, T + r))
        for r in range(4): a("v_rcp_f32 v%d, v%d" % (T + r, T + r))
        for r in range(4): a("v_sub_f32 v%d, v%d, v%d" % (T + 12 + r, T + 4 + r, S_))
        a("v_lshlrev_b32 v%d, 16, v%d" % (T + 8, Y)); a("v_and_b32 v%d, 0xffff0000, v%d" % (T + 9, Y))
        a("v_lshlrev_b32 v%d, 16, v%d" % (T + 10, Y + 1)); a("v_and_b32 v%d, 0xffff0000, v%d" % (T + 11, Y + 1))
        for r in range(4): a("v_mul_f32 v%d, v%d, v%d" % (o + r, o + r, T + r))
        rnd_pair(a, T + 20, T + 12, T + 13); rnd_pair(a, T + 21, T + 14, T + 15)
        rnd_pair(a, T + 22, o, o + 1); rnd_pair(a, T + 23, o + 2, o + 3)
        for r in range(4): a("v_mul_f32 v%d, v%d, v%d" % (T + 12 + r, T + 12 + r, S_ + 1))
        rnd_pair(a, T + 20, T + 12, T + 13); rnd_pair(a, T + 21, T + 14, T + 15)
        for r in range(4): a("v_mul_f32 v%d, v%d, v%d" % (T + 12 + r, T + 12 + r, T + 8 + r))
        rnd_pair(a, T + 20, T + 12, T + 13); rnd_pair(a, T + 21, T + 14, T + 15)
        for r in range(4): a("v_mul_f32 v%d, v%d, v%d" % (T + 12 + r, T + 12 + r, o + r))
        rnd_pair(a, T + 20, T + 12, T + 13); rnd_pair(a, T + 21, T + 14, T + 15)
        for r in range(4): a("v_add_f32 v%d, v%d, v%d" % (T + 12 + r, T + 12 + r, T + 4 + r))
        a("v_cvt_pk_bf16_f32 v%d, v%d, v%d" % (X, T + 12, T + 13))
        a("v_cvt_pk_bf16_f32 v%d, v%d, v%d" % (X + 1, T + 14, T + 15))
        a("buffer_store_dwordx2 %s, v13, s[28:31], s%d offen" % (vr(X, 2), b))
    a.label("%s_done" % name)
    stamp(a, 4)
    G.stamp_rt(a, 1)
    a.label("%s_end" % name)
    a("s_endpgm")
    return a.text(), kernel_desc(name, 256, 256), (name, 256, 512, R * SLOT + 10240)

def gen_kw(name="kw_kernel"):
    return G.gen_k0(name)

gen_k2 = G.gen_k2; gen_k3 = G.gen_k3; gen_kc = G.gen_kc

if __name__ == "__main__":
    which = sys.argv[1]; out = sys.argv[2]
    if len(sys.argv) > 3: DBG.update(sys.argv[3].split(","))
    ks = [globals()["gen_" + w]() for w in which.split(",")]
    if "wt" in DBG:
        import re
        ks = [(re.sub(r"(buffer_store_dwordx[24] [^\n]*s\[12:15\][^\n]*?)( sc1)?\n", lambda m: m.group(1) + " sc1\n", k[0]),) + k[1:] for k in ks]
    if "nts" in DBG:
        import re
        ks = [(re.sub(r"(buffer_store_dwordx4 [^\n]*s\[12:15\][^\n]*?)\n", lambda m: m.group(1) + (" nt\n" if "sc1" not in m.group(1) else "\n"), k[0]),) + k[1:] for k in ks]
    open(out, "w").write(assemble_file([k[2] for k in ks], "".join(k[0] for k in ks), [k[1] for k in ks]))
```

```python
import sys, copy
from asmgen import *
import gen as G
import gen2 as G2
from gen import (ZIMG, Z1IMG, PIMG, WOT, KVT, YT, STATS2, STATS1, WS_BYTES, DBG, LdsTracker, vr, stamp, stamp_setup,
                 rnd_pair, f32, emit_xg_reduce, emit_ln_finish)
from gen2 import VmTracker, TILES, tidx, emit_fold_gelu, gelu_consts, seg_end, SPIN_MAX

def emit_kv_loads(a, KD=16, VD=32, SD=44, K56=56, K57=57):
    a("s_mul_hi_u32 s36, s41, 0x%x" % ((2**32 + 8) // 9))
    a("s_mul_i32 s37, s36, 9")
    a("s_sub_u32 s37, s41, s37")
    a("v_and_b32 v1, 31, v0")
    a("v_lshrrev_b32 v10, 5, v0")
    a("s_lshl_b32 s38, s36, 6")
    a("v_lshl_add_u32 v%d, v10, 3, s38" % K56)
    a("s_lshl_b32 s39, s37, 7")
    a("v_lshl_add_u32 v%d, v1, 2, s39" % K57)
    a("v_mul_u32_u24 v5, 1152, v%d" % K56)
    a("v_add_u32 v5, v5, v%d" % K57)
    a("v_subrev_u32 v6, %d, v5" % (3 * 1152))
    a("v_cmp_gt_u32 vcc, 3, v%d" % K56)
    a("v_mov_b32 v7, 0x7ffffff0")
    a("v_add_u32 v9, %d, v5" % 3456)
    a("v_cndmask_b32 v8, v6, v7, vcc")
    a("v_add_u32 v10, %d, v5" % 6912)
    for n in range(3):
        a("buffer_load_dword v%d, v8, s[64:67], 0 offen offset:%d" % (KD + n, 1152 * n))
    for n in range(8):
        base, off = ((5, 1152 * n) if n < 3 else (9, 1152 * (n - 3)) if n < 6 else (10, 1152 * (n - 6)))
        a("buffer_load_dword v%d, v%d, s[64:67], 0 offen offset:%d" % (KD + 3 + n, base, off))
        a("buffer_load_dword v%d, v%d, s[68:71], 0 offen offset:%d" % (VD + n, base, off))
    a("v_lshlrev_b32 v11, 2, v%d" % K57)
    a("buffer_load_dwordx4 %s, v11, s[72:75], 0 offen" % vr(SD))

def emit_kv_compute(a, wait=True, store=True):
    if wait: a("s_waitcnt vmcnt(0)")
    for ch in range(2):
        for q in range(2):
            a("v_lshlrev_b32 v%d, 16, v%d" % (48 + 4 * ch + 2 * q, 44 + 2 * ch + q))
            a("v_and_b32 v%d, 0xffff0000, v%d" % (49 + 4 * ch + 2 * q, 44 + 2 * ch + q))
    for n in range(11):
        a("v_lshlrev_b32 v%d, 16, v%d" % (60 + n, 16 + n))
        a("v_and_b32 v%d, 0xffff0000, v%d" % (72 + n, 16 + n))
    OUT = 100
    for e0 in range(0, 8, 2):
        es = (e0, e0 + 1)
        R_ = {e: (84 + 6 * (e & 1)) for e in es}
        for e in es:
            A0 = R_[e]
            a("v_mul_f32 v%d, v%d, v%d" % (A0, 60 + e, 51)); a("v_mul_f32 v%d, v%d, v%d" % (A0 + 1, 72 + e, 55))
        for e in es: rnd_pair(a, R_[e] + 4, R_[e], R_[e] + 1)
        for t in range(1, 4):
            for e in es:
                A0 = R_[e]
                a("v_mul_f32 v%d, v%d, v%d" % (A0 + 2, 60 + e + t, 51 - t)); a("v_mul_f32 v%d, v%d, v%d" % (A0 + 3, 72 + e + t, 55 - t))
            for e in es: rnd_pair(a, R_[e] + 4, R_[e] + 2, R_[e] + 3)
            for e in es:
                A0 = R_[e]
                a("v_add_f32 v%d, v%d, v%d" % (A0, A0, A0 + 2)); a("v_add_f32 v%d, v%d, v%d" % (A0 + 1, A0 + 1, A0 + 3))
            for e in es: rnd_pair(a, R_[e] + 4, R_[e], R_[e] + 1)
        for e in es:
            A0 = R_[e]
            a("v_lshlrev_b32 v%d, 16, v%d" % (A0 + 2, 32 + e)); a("v_and_b32 v%d, 0xffff0000, v%d" % (A0 + 3, 32 + e))
            a("v_mul_f32 v%d, v%d, v%d" % (OUT + e, A0, A0 + 2)); a("v_mul_f32 v%d, v%d, v%d" % (OUT + 8 + e, A0 + 1, A0 + 3))
    for ch in range(2):
        for q in range(4):
            a("v_cvt_pk_bf16_f32 v%d, v%d, v%d" % (120 + 4 * ch + q, OUT + 8 * ch + 7 - 2 * q, OUT + 8 * ch + 6 - 2 * q))
    a("v_lshlrev_b32 v12, 11, v57")
    a("v_sub_u32 v13, 2040, v56")
    a("v_lshl_add_u32 v12, v13, 1, v12")
    a("v_add_u32 v13, 4096, v12")
    if not store: return
    a("s_mov_b32 s39, 0x%x" % KVT)
    a("buffer_store_dwordx4 v[120:123], v12, s[12:15], s39 offen")
    a("buffer_store_dwordx4 v[124:127], v13, s[12:15], s39 offen")

def emit_wot_loads(a, WD=128, WO=140, PER=360, NL=2):
    a("s_mul_i32 s36, s42, %d" % PER)
    a("s_mov_b32 s37, 0x%x" % ((2**32 + 9) // 10))
    a("s_mov_b32 s38, 0x%x" % ((2**32 + 17) // 18))
    a("s_mov_b32 s40, 0x%x" % WOT)
    for n in range(NL):
        a("v_add_u32 v16, s36, v0")
        if n: a("v_add_u32 v16, %d, v16" % (256 * n))
        a("v_mul_hi_u32 v17, v16, s37")
        a("v_mul_u32_u24 v18, 10, v17")
        a("v_sub_u32 v18, v16, v18")
        a("v_lshrrev_b32 v19, 7, v17")
        a("v_and_b32 v20, 127, v17")
        a("v_mul_hi_u32 v21, v19, s38")
        a("v_mul_u32_u24 v22, 18, v21")
        a("v_sub_u32 v22, v19, v22")
        a("v_and_b32 v23, 0x63, v20")
        a("v_bfe_u32 v24, v20, 2, 2")
        a("v_lshl_add_u32 v23, v24, 3, v23")
        a("v_bfe_u32 v24, v20, 4, 1")
        a("v_lshl_add_u32 v23, v24, 2, v23")
        a("v_lshl_add_u32 v23, v22, 7, v23")
        a("v_mul_u32_u24 v23, 1152, v23")
        a("v_lshrrev_b32 v24, 1, v21")
        a("v_mul_u32_u24 v24, 288, v24")
        a("v_add_u32 v23, v23, v24")
        a("v_lshl_add_u32 v23, v18, 4, v23")
        a("v_and_b32 v24, 1, v21")
        a("v_cmp_gt_u32 vcc, 8, v18")
        a("v_mul_u32_u24 v24, 160, v24")
        a("v_lshlrev_b32 v%d, 4, v16" % (WO + n))
        a("v_cndmask_b32 v24, 0, v24, vcc")
        a("v_add_u32 v23, v23, v24")
        if n == NL - 1:
            a("v_cmp_gt_u32 vcc, %d, v0" % (PER - 256 * (NL - 1)))
            a("v_mov_b32 v24, 0x7ffffff0")
            a("s_nop 0")
            a("v_cndmask_b32 v23, v24, v23, vcc")
            a("v_cndmask_b32 v%d, v24, v%d, vcc" % (WO + n, WO + n))
        a("buffer_load_dwordx4 %s, v23, s[76:79], 0 offen" % vr(WD + 4 * n))

CJ_EB = 0; CJ_OB = 4160; CJ_UB = 8320; CJ_SIZE = 12928
def seg_end2(a, name):
    return

CJ_H = [56, 64, 72, 80]; CJ_U = 224
def emit_conv_loads(a):
    a("s_lshl_b32 s36, s43, 12")
    a("v_lshlrev_b32 v4, 4, v2")
    for n in range(4):
        a("buffer_load_dwordx4 %s, v4, s[16:19], s36 offen offset:%d" % (vr(CJ_H[n]), 1024 * n))
    a("v_add_u32 v5, 16, v4")
    for n in range(4):
        a("buffer_load_dword v%d, v5, s[16:19], s36 offen offset:%d" % (CJ_H[n] + 4, 1024 * n))
    a("s_add_u32 s37, s36, 0x%x" % KVT)
    for n in range(4):
        a("buffer_load_dwordx4 %s, v4, s[12:15], s37 offen offset:%d" % (vr(CJ_U + 4 * n), 1024 * n))
    a("s_lshl_b32 s37, s43, 1")
    a("v_mov_b32 v6, s37")
    a("buffer_load_ushort v240, v6, s[84:87], 0 offen")
    return 13

def emit_conv_job(a, name, mid=None):
    EB, OB, UB = CJ_EB, CJ_OB, CJ_UB
    H = CJ_H
    a("v_lshlrev_b32 v4, 4, v2")
    a("v_add_u32 v12, s27, v4")
    for r in range(8, 12): a("v_mov_b32 v%d, 0" % r)
    a("v_lshlrev_b32 v5, 3, v2")
    a("v_add_u32 v5, s27, v5")
    a("ds_write_b64 v5, v[8:9] offset:%d" % (UB + 4096))
    a("s_mov_b64 exec, 3")
    a("ds_write_b128 v12, v[8:11] offset:%d" % EB)
    a("ds_write_b128 v12, v[8:11] offset:%d" % OB)
    a("s_mov_b64 exec, -1")
    for n in range(4):
        a("ds_write_b128 v12, %s offset:%d" % (vr(CJ_U + 4 * n), UB + 1024 * n))
    a("s_waitcnt lgkmcnt(3)")
    for n in range(4):
        a("ds_write_b128 v12, %s offset:%d" % (vr(H[n]), EB + 32 + 1024 * n))
        for q in range(4):
            a("v_alignbit_b32 v%d, v%d, v%d, 16" % (88 + 4 * (n & 1) + q, H[n] + q + 1, H[n] + q))
        a("ds_write_b128 v12, %s offset:%d" % (vr(88 + 4 * (n & 1)), OB + 32 + 1024 * n))
    a("s_mov_b64 exec, 1")
    a("v_mov_b32 v5, s27")
    a("ds_write_b16 v5, v%d offset:%d" % (H[0], OB + 30))
    a("s_mov_b64 exec, -1")
    if mid: mid()
    a("v_and_b32 v5, 15, v2")
    a("v_lshrrev_b32 v6, 4, v2")
    a("v_lshl_add_u32 v7, v6, 3, v5")
    a("v_and_b32 v8, 1, v5")
    a("v_add_u32 v7, v7, v8")
    a("v_lshlrev_b32 v7, 1, v7")
    a("v_cmp_eq_u32 vcc, 0, v8")
    a("v_mov_b32 v9, %d" % EB); a("v_mov_b32 v10, %d" % OB)
    a("v_cndmask_b32 v9, v9, v10, vcc")
    a("v_add3_u32 v7, v7, v9, s27")
    AA = 52
    for q in range(4):
        a("v_add_u32 v%d, %d, v7" % (AA + q, 1024 * q))
    a("v_lshlrev_b32 v9, 4, v6")
    a("v_lshlrev_b32 v10, 5, v5")
    a("v_sub_u32 v9, v9, v10")
    a("s_add_u32 s38, s27, %d" % (UB + 480))
    a("v_add_u32 v11, s38, v9")
    a("v_lshlrev_b32 v9, 5, v5")
    a("v_lshl_add_u32 v9, v6, 3, v9")
    a("s_add_u32 s38, s27, %d" % (UB + 4088 - 3584))
    a("v_sub_u32 v10, s38, v9")
    ACC = 96; AF = [112, 176]; BF = [144, 208]
    for r in range(ACC, ACC + 16): a("v_mov_b32 v%d, 0" % r)
    a("v_lshlrev_b32 v13, 16, v240")
    a("s_lshl_b32 s36, s43, 12")
    a("s_add_u32 s37, s36, 0x%x" % YT)
    a("s_mov_b32 s33, 0")
    a("s_waitcnt lgkmcnt(0)")
    stamp(a, 3)
    a("s_cmp_eq_u32 s26, 1")
    a("s_cbranch_scc1 %s_cj1" % name)
    for hv, tiles in enumerate(([7, 6, 1, 0], [5, 4, 3, 2])):
        if hv: a.label("%s_cj1" % name)
        nq = max(tiles) + 1
        trk = LdsTracker(a)
        def room():
            if len(trk.out) >= 13:
                a("s_waitcnt lgkmcnt(8)"); trk.out = trk.out[-8:]
        def reads(kk, buf):
            L = []
            for q in range(nq):
                r = BF[buf] + 4 * q
                L.append(("ds_read_b128 %s, v11 offset:%d" % (vr(r), 3584 - 512 * q + 64 * kk), range(r, r + 4)))
                r = AF[buf] + 4 * q
                o = 128 * (q & 1) + 16 * kk
                L.append(("ds_read2_b32 %s, v%d offset0:%d offset1:%d" % (vr(r, 2), AA + (q >> 1), o, o + 1), range(r, r + 2)))
                L.append(("ds_read2_b32 %s, v%d offset0:%d offset1:%d" % (vr(r + 2, 2), AA + (q >> 1), o + 2, o + 3), range(r + 2, r + 4)))
            return L
        for t, r in reads(0, 0):
            room(); a(t); trk.issue(r)
        trk.drain()
        ms = sorted([(max(jj, n - jj), ti, n, jj) for ti, n in enumerate(tiles) for jj in range(n + 1)])
        def step(buf, kk_next, upd):
            nxt = [("x", u) for u in upd] + [("r", x) for x in reads(kk_next, 1 - buf)]
            tot = len(nxt); done = 0
            for mi, (_, ti, n, jj) in enumerate(ms):
                A = AF[buf] + 4 * jj; B = BF[buf] + 4 * (n - jj); c = ACC + 4 * ti
                trk.need(list(range(A, A + 4)) + list(range(B, B + 4)))
                a("v_mfma_f32_16x16x32_bf16 %s, %s, %s, %s" % (vr(c), vr(A), vr(B), vr(c)))
                want = (tot * (mi + 1) + 15) // 16
                while nxt and done < want:
                    k, t = nxt.pop(0); done += 1
                    if k == "x": a(t)
                    else:
                        room(); a(t[0]); trk.issue(t[1])
        upd = ["v_add_u32 v11, 128, v11"] + ["v_add_u32 v%d, 128, v%d" % (AA + q, AA + q) for q in range((nq + 1) // 2)] + ["s_add_u32 s33, s33, 1"]
        a.label("%s_cjl%d" % (name, hv))
        lb = len(a.lines)
        for it_ in range(8):
            st = copy.deepcopy(trk.out)
            step(0, 1, list([])); step(1, 0, list(upd))
            a("s_waitcnt lgkmcnt(6)"); trk.out = trk.out[-6:]
            if [sorted(x) for x in trk.out] == [sorted(x) for x in st]: break
            del a.lines[lb:]
        else:
            assert False, "no fixed point"
        a("s_cmp_lt_u32 s33, 4")
        a("s_cbranch_scc1 %s_cjl%d" % (name, hv))
        trk.drain()
        stamp(a, 4 + 2 * hv)
        for ti, n in enumerate(tiles):
            a("ds_read_b64 %s, v10 offset:%d" % (vr(112 + 2 * ti, 2), 3584 - 512 * n))
        a("s_waitcnt lgkmcnt(0)")
        for ti, n in enumerate(tiles):
            c = ACC + 4 * ti; U = 112 + 2 * ti; T = 120
            a("v_and_b32 v%d, 0xffff0000, v%d" % (T + 0, U + 1)); a("v_lshlrev_b32 v%d, 16, v%d" % (T + 1, U + 1))
            a("v_and_b32 v%d, 0xffff0000, v%d" % (T + 2, U)); a("v_lshlrev_b32 v%d, 16, v%d" % (T + 3, U))
            for r in range(4): a("v_mul_f32 v%d, v%d, v13" % (T + r, T + r))
            rnd_pair(a, T + 4, T, T + 1); rnd_pair(a, T + 4, T + 2, T + 3)
            rnd_pair(a, T + 4, c, c + 1); rnd_pair(a, T + 4, c + 2, c + 3)
            for r in range(4): a("v_add_f32 v%d, v%d, v%d" % (c + r, c + r, T + r))
            a("v_cvt_pk_bf16_f32 v%d, v%d, v%d" % (U, c, c + 1))
            a("v_cvt_pk_bf16_f32 v%d, v%d, v%d" % (U + 1, c + 2, c + 3))
            a("buffer_store_dwordx2 %s, v9, s[12:15], s37 offen offset:%d" % (vr(U, 2), 512 * n))
        stamp(a, 5 + 2 * hv)
        if hv == 0:
            a("s_cmp_eq_u32 s26, 0")
            a("s_cbranch_scc1 %s_cjdone" % name)
            a("v_subrev_u32 v11, 512, v11")
            for q in range(4): a("v_subrev_u32 v%d, 512, v%d" % (AA + q, AA + q))
            for r in range(ACC, ACC + 16): a("v_mov_b32 v%d, 0" % r)
            a("s_mov_b32 s33, 0")
    a.label("%s_cjdone" % name)

def gen_k1e(name="k1_kernel"):
    a = Asm()
    TS = 16384; NT = 3; TB0 = 4096; FB_ = TB0 + NT * TS; FSL = 18432; NF = 6; FS = 576; NK = 18
    LDSB = FB_ + NF * FSL; RST = 0; CSO = 1024; CJB = TB0 + 4 * 18432
    kernel_begin(a, name)
    a("s_load_dwordx2 s[80:81], s[0:1], 0")
    a("s_load_dwordx2 s[4:5], s[0:1], 56")
    a("s_cmp_ge_u32 s2, 256")
    a("s_cbranch_scc1 %s_end" % name)
    a("v_lshrrev_b32 v1, 6, v0")
    a("v_and_b32 v2, 63, v0")
    a("v_readfirstlane_b32 s3, v1")
    a("s_and_b32 s20, s2, 7")
    a("s_lshr_b32 s21, s2, 3")
    a("s_and_b32 s22, s20, 1")
    a("s_lshl_b32 s22, s22, 3")
    a("s_and_b32 s23, s21, 7")
    a("s_add_u32 s22, s22, s23")
    a("s_lshr_b32 s21, s21, 3")
    a("s_and_b32 s23, s20, 6")
    a("s_and_b32 s24, s21, 1")
    a("s_add_u32 s23, s23, s24")
    a("s_lshr_b32 s21, s21, 1")
    a("s_mov_b32 s99, 0")
    a("s_mov_b64 s[96:97], -1")
    a("s_cmp_lt_u32 s3, 4")
    a("s_cbranch_scc1 %s_consumer" % name)
    a("s_setprio 3")
    a("s_sub_u32 s3, s3, 4")
    a("v_lshrrev_b32 v3, 3, v2")
    a("v_and_b32 v4, 7, v2")
    VT = 16; VF = 20
    a("s_lshl_b32 s24, s3, 5")
    a("v_add_u32 v5, s24, v3")
    a("v_lshrrev_b32 v7, 4, v2")
    a("v_xor_b32 v7, v7, v4")
    a("v_mul_u32_u24 v6, 1152, v5")
    a("v_lshl_add_u32 v%d, v7, 4, v6" % VT)
    a("v_xor_b32 v%d, 64, v%d" % (VT + 1, VT))
    a("v_add_u32 v%d, %d, v%d" % (VT + 1, 9216 - 1024, VT + 1))
    a("v_add_u32 v%d, %d, v%d" % (VT + 2, 2 * (9216 - 1024), VT))
    a("v_add_u32 v%d, %d, v%d" % (VT + 3, 2 * (9216 - 1024), VT + 1))
    a("s_mul_i32 s26, s22, %d" % (128 * 1152))
    a("s_lshl_b32 s24, s3, 12")
    a("s_add_u32 s24, s24, %d" % TB0)
    a("s_mov_b32 s33, 0")
    a("s_waitcnt lgkmcnt(0)")
    srd(a, 28, 80, 2048 * 576 * 2)
    vm = VmTracker(a)
    def issueT(m):
        a("s_add_u32 s35, s33, s24")
        a("s_mov_b32 m0, s35")
        a("s_add_u32 s33, s33, %d" % TS)
        for n in range(4):
            if "nodma" not in DBG: a("buffer_load_dwordx4 v%d, s[28:31], s26 offen offset:%d lds" % (VT + n, 1024 * n))
        a("s_add_u32 s26, s26, 128")
        a("s_cmp_eq_u32 s33, %d" % (NT * TS))
        a("s_cselect_b32 s33, 0, s33")
        vm.issue("T%d" % m, 4)
    issueT(0)
    srd(a, 8, 4, 576 * 4608 * 2)
    for n in range(5):
        if n: a("v_add_u32 v6, %d, v2" % (64 * n))
        src = "v6" if n else "v2"
        a("v_mul_u32_u24 v7, 1821, %s" % src)
        a("v_lshrrev_b32 v7, 16, v7")
        a("v_mul_u32_u24 v8, 36, v7")
        a("v_sub_u32 v8, %s, v8" % src)
        a("v_bfe_u32 v9, v7, 2, 1")
        a("v_lshlrev_b32 v6, 1, v9")
        a("v_xor_b32 v8, v8, v6")
        a("v_and_b32 v7, 3, v7")
        a("v_lshl_add_u32 v7, v9, 3, v7")
        a("v_mul_u32_u24 v7, 9216, v7")
        a("v_lshl_add_u32 v%d, v8, 4, v7" % (VF + n))
        if 0 < n < 4: a("v_subrev_u32 v%d, %d, v%d" % (VF + n, 1024 * n, VF + n))
    a("s_and_b32 s36, s3, 1")
    a("s_lshl_b32 s36, s36, 4")
    a("s_lshr_b32 s37, s3, 1")
    a("s_lshl_b32 s37, s37, 2")
    a("s_add_u32 s36, s36, s37")
    a("s_mul_i32 s27, s36, 9216")
    a("s_mul_i32 s36, s23, 576")
    a("s_add_u32 s27, s27, s36")
    a("s_cmp_eq_u32 s21, 0")
    a("s_cselect_b32 s36, 4608, 0")
    a("s_add_u32 s27, s27, s36")
    a("s_mul_i32 s25, s3, 4608")
    a("s_add_u32 s25, s25, %d" % FB_)
    a("s_mov_b32 s34, 0")
    def issueF(k):
        a("s_add_u32 s35, s34, s25")
        a("s_mov_b32 m0, s35")
        a("s_add_u32 s36, s35, 4096")
        for n in range(4):
            if "nodma" not in DBG: a("buffer_load_dwordx4 v%d, s[8:11], s27 offen offset:%d lds" % (VF + n, 1024 * n))
        a("s_mov_b32 m0, s36")
        a("s_mov_b64 exec, 0xffffffff")
        if "nodma" not in DBG: a("buffer_load_dwordx4 v%d, s[8:11], s27 offen lds" % (VF + 4))
        a("s_mov_b64 exec, -1")
        a("s_add_u32 s27, s27, %d" % (32 * 9216))
        a("s_add_u32 s34, s34, %d" % FSL)
        a("s_cmp_eq_u32 s34, %d" % (NF * FSL))
        a("s_cselect_b32 s34, 0, s34")
        vm.issue("F%d" % k, 5)
    issueF(0); issueF(1)
    def other_setup():
        a("s_load_dwordx2 s[6:7], s[0:1], 104")
        a("s_load_dwordx2 s[18:19], s[0:1], 96")
        a("s_load_dwordx4 s[88:91], s[0:1], 32")
        a("s_waitcnt lgkmcnt(0)")
        srd(a, 12, 6, WS_BYTES)
        srd(a, 60, 18, 256)
        srd(a, 16, 88, 576 * 2048 * 2)
        srd(a, 84, 90, 576 * 2)
    other_setup()
    a("s_add_u32 s3, s3, 4"); stamp_setup(a, 1); stamp(a, 0); a("s_sub_u32 s3, s3, 4")
    SS = [28, 30, 32, 34]; ONE = 36
    for r in range(28, 36): a("v_mov_b32 v%d, 0" % r)
    for r in range(ONE, ONE + 4): a("v_mov_b32 v%d, 0x3f803f80" % r)
    CA = 40
    for r in range(CA, CA + 20): a("v_mov_b32 v%d, 0" % r)
    XB = 64; CF = 80
    a("v_lshlrev_b32 v10, 4, v2")
    a("v_add_u32 v10, s24, v10")
    a("v_lshrrev_b32 v11, 2, v2")
    a("v_mul_u32_u24 v11, %d, v11" % FS)
    a("v_and_b32 v12, 3, v2")
    a("v_lshl_add_u32 v11, v12, 3, v11")
    a("v_bfe_u32 v13, v2, 4, 1")
    a("v_lshlrev_b32 v13, 5, v13")
    a("s_lshr_b32 s36, s3, 1")
    a("s_mul_i32 s37, s36, 9")
    a("s_and_b32 s38, s3, 1")
    a("s_lshl_b32 s38, s38, 2")
    a("s_add_u32 s37, s37, s38")
    a("s_lshl_b32 s40, s37, 6")
    a("s_lshl_b32 s37, s37, 5")
    a("s_add_u32 s37, s37, %d" % FB_)
    a("v_add_u32 v11, s37, v11")
    a("v_add_u32 v5, v11, v13")
    a("v_sub_u32 v6, v11, v13")
    a("s_cmp_eq_u32 s36, 0")
    a("s_cselect_b64 vcc, -1, 0")
    a("v_cndmask_b32 v11, v6, v5, vcc")
    a("v_cndmask_b32 v12, v5, v6, vcc")
    def rowstats_rd(m):
        if "nors" in DBG: return
        a("v_add_u32 v5, %d, v10" % ((m % NT) * TS))
        for n in range(4):
            a("ds_read_b128 %s, v5 offset:%d" % (vr(XB + 4 * n), 1024 * n))
    def rowstats_do():
        if "nors" in DBG: return
        for d in range(4):
            for n in range(4):
                r = XB + 4 * n + d
                a("v_dot2_f32_bf16 v%d, v%d, v%d, v%d" % (SS[n], r, ONE, SS[n]))
                a("v_dot2_f32_bf16 v%d, v%d, v%d, v%d" % (SS[n] + 1, r, r, SS[n] + 1))
    def colsum_rd(k):
        if "nocs" in DBG: return
        a("v_add_u32 v6, %d, v11" % ((k % NF) * FSL))
        a("v_add_u32 v7, %d, v12" % ((k % NF) * FSL))
        for q in range(5):
            for half in range(2):
                a("ds_read_b64_tr_b16 %s, v%d offset:%d" % (vr(CF + 4 * q + 2 * half, 2), 6 + (q & 1), 16 * half * FS + 32 * q))
    def colsum_do():
        if "nocs" in DBG: return
        for q in range(5):
            a("v_mfma_f32_16x16x32_bf16 %s, %s, %s, %s" % (vr(CA + 4 * q), vr(CF + 4 * q), vr(ONE), vr(CA + 4 * q)))
    vm.wait(["T0", "F0"])
    a("s_barrier")
    stamp(a, 1)
    colsum_rd(0); rowstats_rd(0)
    issueT(1); issueF(2); issueF(3)
    a("s_waitcnt lgkmcnt(0)")
    colsum_do(); rowstats_do()
    vm.wait(["F1"])
    a("s_barrier")
    for k in range(NK):
        rs = (k % 2 == 1 and (k + 1) // 2 < 9)
        if k + 1 < NK: colsum_rd(k + 1)
        if rs: rowstats_rd((k + 1) // 2)
        if k == 0:
            issueF(4); issueT(2); issueF(5)
        if k >= 1 and k + 5 < NK: issueF(k + 5)
        if k % 2 == 1 and (k - 1) // 2 + 3 < 9: issueT((k - 1) // 2 + 3)
        a("s_waitcnt lgkmcnt(0)")
        if k + 1 < NK: colsum_do()
        if rs: rowstats_do()
        if k + 1 < NK:
            vm.wait(["F%d" % (k + 2), "T%d" % ((k + 2) // 2)])
            a("s_barrier")
    a("s_nop 3")
    for ctl in ("quad_perm:[1,0,3,2]", "quad_perm:[2,3,0,1]", "row_half_mirror"):
        for rg in range(4):
            for e in range(2):
                a("v_add_f32_dpp v%d, v%d, v%d %s row_mask:0xf bank_mask:0xf" % (SS[rg] + e, SS[rg] + e, SS[rg] + e, ctl))
        a("s_nop 1")
    ML = 64
    for rg in range(4):
        emit_ln_finish(a, SS[rg], SS[rg] + 1, 576, ML + 2 * rg, ML + 2 * rg + 1, 76)
        a("v_mov_b32 v%d, v%d" % (SS[rg] + 1, ML + 2 * rg + 1))
        a("v_sub_f32 v%d, 0, v%d" % (SS[rg], ML + 2 * rg))
    a("s_lshl_b32 s35, s3, 8")
    a("v_lshlrev_b32 v6, 3, v3")
    a("v_add_u32 v12, s35, v6")
    a("v_cmp_eq_u32 vcc, 0, v4")
    a("s_and_saveexec_b64 s[36:37], vcc")
    for rg in range(4):
        a("ds_write_b64 v12, %s offset:%d" % (vr(SS[rg], 2), RST + 64 * rg))
    a("s_mov_b64 exec, s[36:37]")
    a("s_lshl_b32 s36, s21, 8")
    a("s_or_b32 s36, s36, s23")
    a("s_cmp_lg_u32 s36, 256")
    a("s_cbranch_scc1 %s_nost1" % name)
    a("s_lshl_b32 s35, s22, 7")
    a("s_lshl_b32 s36, s3, 5")
    a("s_add_u32 s35, s35, s36")
    a("s_lshl_b32 s35, s35, 3")
    a("s_add_u32 s35, s35, 0x%x" % STATS1)
    a("v_mov_b32 v7, 0x7ffffff0")
    a("v_cndmask_b32 v6, v7, v6, vcc")
    for rg in range(4):
        a("buffer_store_dwordx2 %s, v6, s[12:15], s35 offen offset:%d" % (vr(ML + 2 * rg, 2), 64 * rg))
    a.label("%s_nost1" % name)
    a("v_lshrrev_b32 v12, 4, v2")
    a("v_lshlrev_b32 v12, 4, v12")
    a("v_add_u32 v12, s40, v12")
    a("v_and_b32 v13, 15, v2")
    a("v_cmp_eq_u32 vcc, 0, v13")
    a("s_and_saveexec_b64 s[36:37], vcc")
    for q in range(5):
        a("ds_write_b128 v12, %s offset:%d" % (vr(CA + 4 * q), CSO + 64 * q))
    a("s_mov_b64 exec, s[36:37]")
    a("s_waitcnt lgkmcnt(0)")
    a("s_barrier")
    a("s_setprio 0")
    ACC = 112
    a("s_lshr_b32 s24, s3, 1")
    a("s_and_b32 s25, s3, 1")
    a("v_and_b32 v3, 15, v2")
    a("s_lshl_b32 s23, s23, 1")
    a("s_add_u32 s23, s23, 1")
    a("s_mov_b32 s40, 576")
    a("s_mov_b32 s98, 1")
    a("s_mul_i32 s36, s3, 18432")
    a("s_add_u32 s36, s36, %d" % TB0)
    a("v_lshlrev_b32 v10, 4, v2")
    a("v_add_u32 v11, s36, v10")
    a("s_barrier")
    for n in range(18):
        a("ds_read_b128 %s, v11 offset:%d" % (vr(ACC + 4 * n), 1024 * n))
        if n in (7, 13): a("s_waitcnt lgkmcnt(4)")
    a("s_branch %s_epi" % name)

    def gran_addr():
        a("v_lshrrev_b32 v10, 4, v2")
        a("s_lshl_b32 s33, s25, 1")
        a("v_add_u32 v11, s33, v10")
        a("v_and_b32 v11, 3, v11")
        a("v_lshl_add_u32 v11, v11, 4, v3")
        a("v_lshlrev_b32 v94, 8, v11")
        a("s_lshl_b32 s59, s22, 7")
        a("s_lshl_b32 s36, s24, 6")
        a("s_add_u32 s59, s59, s36")
        a("s_lshl_b32 s59, s59, 8")
        a("s_add_u32 s59, s59, 0x%x" % STATS2)
        a("s_lshl_b32 s36, s23, 1")
        a("s_add_u32 s36, s36, s25")
        a("s_lshl_b32 s36, s36, 3")
        a("s_add_u32 s58, s36, s59")
    a.label("%s_consumer" % name)
    a("s_load_dwordx4 s[64:67], s[0:1], 8")
    a("s_load_dwordx2 s[76:77], s[0:1], 24")
    a("s_load_dwordx2 s[78:79], s[0:1], 64")
    other_setup()
    srd(a, 68, 66, 2048 * 576 * 2)
    a("s_mov_b32 s100, s64"); a("s_mov_b32 s101, s65")
    srd(a, 64, 100, 2048 * 576 * 2)
    srd(a, 72, 76, 576 * 8)
    srd(a, 92, 78, 2048 * 2048 * 2)
    stamp_setup(a, 1); stamp(a, 0)
    a("s_lshr_b32 s24, s3, 1")
    a("s_and_b32 s25, s3, 1")
    a("v_and_b32 v3, 15, v2")
    a("s_lshl_b32 s23, s23, 1")
    a("s_mov_b32 s98, 0")
    a("s_mov_b32 s41, s2")
    a.label("%s_kv" % name)
    emit_kv_loads(a)
    a("s_cmp_lg_u32 s41, s2")
    a("s_cbranch_scc1 %s_kv2" % name)
    a("s_cmp_lg_u32 s21, 0")
    a("s_cbranch_scc1 %s_noclr" % name)
    gran_addr()
    a("v_mov_b32 v12, 0"); a("v_mov_b32 v13, 0x80000000")
    a("buffer_store_dwordx2 v[12:13], v94, s[12:15], s58 offen sc1")
    a("buffer_store_dwordx2 v[12:13], v94, s[12:15], s58 offen offset:16 sc1")
    a.label("%s_noclr" % name)
    if "nowarm" not in DBG:
        a("s_mov_b32 s99, 1")
        for r_ in (26, 27, 33, 36, 37, 38, 39, 40, 43, 58, 59): a("s_mov_b32 s%d, 0" % r_)
        for r_ in (4, 12, 13, 94): a("v_mov_b32 v%d, 0" % r_)
        a("s_mov_b64 s[96:97], 0")
        a("s_mov_b64 exec, 0")
        a("s_cmp_eq_u32 s3, 0"); a("s_cbranch_scc1 %s_epi" % name)
        a("s_cmp_eq_u32 s3, 1"); a("s_cbranch_scc1 %s_seg1" % name)
        a("s_cmp_eq_u32 s3, 2"); a("s_cbranch_scc1 %s_seg2" % name)
        a("s_branch %s_seg3" % name)
        a.label("%s_warmret" % name)
        a("s_mov_b64 s[96:97], -1")
        a("s_mov_b64 exec, -1")
        a("s_mov_b32 s99, 0")
    a.label("%s_kv2" % name)
    emit_kv_compute(a)
    a("s_add_u32 s41, s41, 32")
    a("s_cmp_lt_u32 s41, 256")
    a("s_cbranch_scc1 %s_kvd" % name)
    a("s_cmp_lt_u32 s41, 288")
    a("s_cbranch_scc1 %s_kv" % name)
    a.label("%s_kvd" % name)
    TB = [16, 32]; FR = 48
    vTa, vTb, vP = 4, 5, [6, 7]; vH = [8, 9]
    bTa = [88, 89]; bTb = [90, 91]; bP = [92, 93]; bH = [100, 101]
    PF = 96
    a("v_lshrrev_b32 v10, 4, v2")
    a("v_lshrrev_b32 v11, 1, v3")
    a("v_xor_b32 v10, v10, v11")
    a("v_lshlrev_b32 v10, 4, v10")
    a("v_lshl_add_u32 v10, v3, 7, v10")
    a("s_lshl_b32 s26, s24, 13")
    a("s_add_u32 s26, s26, %d" % TB0)
    a("v_add_u32 v10, s26, v10")
    a("s_lshl_b32 s26, s25, 12")
    a("v_add_u32 v%d, s26, v10" % bTa[0])
    a("s_xor_b32 s26, s26, 4096")
    a("v_add_u32 v%d, s26, v10" % bTb[0])
    a("v_xor_b32 v%d, 64, v%d" % (bTa[1], bTa[0]))
    a("v_xor_b32 v%d, 64, v%d" % (bTb[1], bTb[0]))
    a("v_lshrrev_b32 v10, 2, v2")
    a("v_mul_u32_u24 v10, %d, v10" % FS)
    a("v_and_b32 v11, 3, v2")
    a("v_lshl_add_u32 v10, v11, 3, v10")
    a("v_add_u32 v10, %d, v10" % FB_)
    a("v_bfe_u32 v13, v2, 4, 1")
    a("v_lshlrev_b32 v13, 5, v13")
    a("v_add_u32 v%d, v10, v13" % bH[0])
    a("v_sub_u32 v%d, v10, v13" % bH[1])
    a("s_mul_i32 s26, s25, 160")
    a("s_cmp_eq_u32 s25, 0")
    a("s_cselect_b64 vcc, -1, 0")
    a("v_cndmask_b32 v11, v%d, v%d, vcc" % (bH[1], bH[0]))
    a("v_cndmask_b32 v12, v%d, v%d, vcc" % (bH[0], bH[1]))
    a("v_add_u32 v%d, s26, v11" % bP[0])
    a("v_add_u32 v%d, s26, v12" % bP[1])
    a("v_lshrrev_b32 v10, 4, v2")
    a("v_lshlrev_b32 v10, 12, v10")
    a("v_lshl_add_u32 v95, v3, 4, v10")
    a("s_lshl_b32 s41, s22, 7")
    a("s_lshl_b32 s36, s3, 5")
    a("s_add_u32 s41, s41, s36")
    a("s_lshl_b32 s41, s41, 12")
    a("s_add_u32 s36, s23, s21")
    a("s_lshl_b32 s36, s36, 8")
    a("s_add_u32 s41, s41, s36")
    for r in range(ACC, ACC + 144): a("v_mov_b32 v%d, 0" % r)
    def accr(z, ft, tt): return ACC + 72 * z + 4 * tidx(ft, tt)
    def Fr(z, ft): return FR + 20 * z + 4 * ft
    trk = LdsTracker(a)
    def treads(buf):
        L = []
        for tt in range(4):
            r = TB[buf] + 4 * tt
            L.append(("ds_read_b128 %s, v%d offset:%d" % (vr(r), vTa if tt < 2 else vTb, (tt & 1) * 2048), range(r, r + 4)))
        return L
    def freads(z, ft):
        r = Fr(z, ft); L = []
        for half in range(2):
            off = 16 * half * FS + 32 * (9 * z + ft)
            v = vP[(z + ft) & 1] if ft < 4 else vH[z]
            L.append(("ds_read_b64_tr_b16 %s, v%d offset:%d" % (vr(r + 2 * half, 2), v, off), range(r + 2 * half, r + 2 * half + 2)))
        return L
    def rd(t):
        a(t[0]); trk.issue(t[1])
    fpairs = ((vP[0], bP[0]), (vP[1], bP[1]), (vH[0], bH[0]), (vH[1], bH[1]))
    a("v_mov_b32 v%d, v%d" % (vTa, bTa[0])); a("v_mov_b32 v%d, v%d" % (vTb, bTb[0]))
    for d, s_ in fpairs: a("v_mov_b32 v%d, v%d" % (d, s_))
    a("s_mov_b32 s27, 0")
    a("s_mov_b32 s34, 0")
    a("s_mov_b32 s33, 0")
    stamp(a, 1)
    a("s_barrier")
    stamp(a, 2)
    for t in treads(0): rd(t)
    for z in range(2):
        for ft in range(5):
            for t in freads(z, ft): rd(t)
            if len(trk.out) >= 12: trk.drain()
    trk.drain()
    def iteration(par):
        a("s_barrier")
        upd = []
        if par == 1:
            upd += ["s_add_u32 s27, s27, %d" % TS, "s_cmp_eq_u32 s27, %d" % (NT * TS), "s_cselect_b32 s27, 0, s27"]
        upd += ["v_add_u32 v%d, s27, v%d" % (vTa, bTa[1 - par]), "v_add_u32 v%d, s27, v%d" % (vTb, bTb[1 - par])]
        upd += ["s_add_u32 s34, s34, %d" % FSL, "s_cmp_eq_u32 s34, %d" % (NF * FSL), "s_cselect_b32 s34, 0, s34"]
        upd += ["v_add_u32 v%d, s34, v%d" % (d, s_) for d, s_ in fpairs]
        pend = [("x", u) for u in upd] + [("r", t) for t in treads(1 - par)]
        if par == 0:
            pend.append(("x", "buffer_load_dwordx4 %s, v95, s[92:95], s41 offen" % vr(PF)))
            pend.append(("x", "s_add_u32 s41, s41, 16384"))
        else:
            pend.append(("x", "s_add_u32 s33, s33, 1"))
        nm = 0
        for z in range(2):
            for ft in range(5):
                for tt in range(4 if ft < 4 else 2):
                    c = accr(z, ft, tt); A = Fr(z, ft); B = TB[par] + 4 * tt
                    trk.need(list(range(A, A + 4)) + list(range(B, B + 4)))
                    if "nomfma" not in DBG: a("v_mfma_f32_16x16x32_bf16 %s, %s, %s, %s" % (vr(c), vr(A), vr(B), vr(c)))
                    nfill = 1
                    while pend and nfill:
                        k, t = pend.pop(0)
                        if k == "x":
                            a(t)
                            if t.startswith("s_") and nm < 8: continue
                        else: rd(t)
                        nfill -= 1
                    nm += 1
                pend += [("r", t) for t in freads(z, ft)]
        for k, t in pend:
            if k == "x": a(t)
            else: rd(t)
        a("s_waitcnt lgkmcnt(15)")
        if len(trk.out) > 15: trk.out = trk.out[-15:]
    a.label("%s_cloop" % name)
    trk.out = []
    lb = len(a.lines)
    iteration(0); iteration(1)
    state = copy.deepcopy(trk.out)
    del a.lines[lb:]
    trk.out = copy.deepcopy(state)
    iteration(0); iteration(1)
    assert [sorted(x) for x in trk.out] == [sorted(x) for x in state]
    a("s_cmp_lt_u32 s33, %d" % (NK // 2))
    a("s_cbranch_scc1 %s_cloop" % name)
    trk.drain()
    stamp(a, 3)
    a("s_waitcnt vmcnt(0)")
    a("s_barrier")
    a("s_cmp_lg_u32 s3, 0")
    a("s_cbranch_scc1 %s_nosig" % name)
    a("v_mov_b32 v10, 1")
    a("s_lshl_b32 s36, s22, 2")
    a("v_mov_b32 v11, s36")
    a("s_mov_b64 exec, 1")
    a("buffer_atomic_add v10, v11, s[60:63], 0 offen sc1")
    a("s_mov_b64 exec, -1")
    a.label("%s_nosig" % name)
    a("s_mul_i32 s36, s3, 18432")
    a("s_add_u32 s36, s36, %d" % TB0)
    a("v_lshlrev_b32 v10, 4, v2")
    a("v_add_u32 v11, s36, v10")
    for n, (ft, tt) in enumerate(TILES):
        a("ds_write_b128 v11, %s offset:%d" % (vr(accr(1, ft, tt)), 1024 * tidx(ft, tt)))
        if n in (7, 13): a("s_waitcnt lgkmcnt(4)")
    a("s_mov_b32 s40, 0")
    a("s_waitcnt lgkmcnt(0)")
    a("s_barrier")
    a.label("%s_epi" % name)
    MR = 100; CS = 52; ZP = 16; T = 72
    gelu_consts(a)
    a("s_lshl_b32 s36, s24, 9")
    a("s_lshl_b32 s37, s25, 8")
    a("s_add_u32 s38, s36, s37")
    a("s_xor_b32 s37, s37, 256")
    a("s_add_u32 s39, s36, s37")
    a("v_lshlrev_b32 v10, 3, v3")
    a("v_add_u32 v11, s38, v10")
    a("ds_read_b64 %s, v11 offset:%d" % (vr(MR, 2), RST))
    a("ds_read_b64 %s, v11 offset:%d" % (vr(MR + 2, 2), RST + 128))
    a("v_add_u32 v11, s39, v10")
    a("ds_read_b64 %s, v11 offset:%d" % (vr(MR + 4, 2), RST))
    a("ds_read_b64 %s, v11 offset:%d" % (vr(MR + 6, 2), RST + 128))
    a("v_lshrrev_b32 v10, 4, v2")
    a("v_lshlrev_b32 v10, 4, v10")
    a("v_add_u32 v10, s40, v10")
    a("s_mul_i32 s36, s25, 320")
    a("v_add_u32 v11, s36, v10")
    a("s_waitcnt lgkmcnt(6)")
    for ft in range(4):
        a("ds_read_b128 %s, v11 offset:%d" % (vr(CS + 4 * ft), CSO + 64 * ft))
    a("ds_read_b128 %s, v10 offset:%d" % (vr(CS + 16), CSO + 256))
    S = [108, 110, 8, 12]; Q = [109, 111, 9, 13]
    for tt in range(4):
        a("v_mov_b32 v%d, 0" % S[tt]); a("v_mov_b32 v%d, 0" % Q[tt])
    a("v_mov_b32 v88, 0x3f803f80")
    a("s_waitcnt lgkmcnt(0)")
    for ft in range(5):
        if ft == 3:
            seg_end(a, name)
            a.label("%s_seg1" % name)
        tts = range(4 if ft < 4 else 2)
        items = [(ACC + 4 * tidx(ft, tt), CS + 4 * ft, MR + 2 * tt, ZP + 2 * tidx(ft, tt)) for tt in tts]
        emit_fold_gelu(a, items, T)
        for d in range(2):
            for tt in tts:
                p = ZP + 2 * tidx(ft, tt) + d
                a("v_dot2_f32_bf16 v%d, v%d, v88, v%d" % (S[tt], p, S[tt]))
                a("v_dot2_f32_bf16 v%d, v%d, v%d, v%d" % (Q[tt], p, p, Q[tt]))
    a("s_cmp_eq_u32 s21, 0")
    a("s_cbranch_scc1 %s_z2" % name)
    a("s_lshl_b32 s36, s22, 4")
    a("s_add_u32 s36, s36, s23")
    a("s_lshl_b32 s36, s36, 2")
    a("s_add_u32 s36, s36, s3")
    a("s_mul_i32 s36, s36, 9216")
    a("s_add_u32 s36, s36, 0x%x" % Z1IMG)
    a("v_lshlrev_b32 v10, 4, v2")
    for q in range(9):
        if q in (4, 8): a("s_add_u32 s36, s36, 4096")
        a("buffer_store_dwordx4 %s, v10, s[12:15], s36 offen offset:%d" % (vr(ZP + 4 * q), (q & 3) * 1024))
    a("s_branch %s_conv" % name)
    a.label("%s_z2" % name)
    a("s_nop 1")
    emit_xg_reduce(a, S + Q, 72)
    gran_addr()
    for g in range(1, 4):
        a("v_cmp_eq_u32 vcc, %d, v10" % g)
        a("s_nop 1")
        a("v_cndmask_b32 v%d, v%d, v%d, vcc" % (S[0], S[0], S[g]))
        a("v_cndmask_b32 v%d, v%d, v%d, vcc" % (Q[0], Q[0], Q[g]))
    a("v_and_b32 v%d, 0x7fffffff, v%d" % (Q[0], Q[0]))
    a("buffer_store_dwordx2 v[%d:%d], v94, s[12:15], s58 offen sc1" % (S[0], Q[0]))
    a.label("%s_conv" % name)
    seg_end(a, name)
    stamp(a, 4)
    a("v_lshlrev_b32 v4, 2, v3")
    a("s_mov_b32 s40, 0")
    a.label("%s_pollp" % name)
    a("buffer_load_dword v5, v4, s[60:63], 0 offen sc1")
    a("s_add_u32 s40, s40, 1")
    a("s_waitcnt vmcnt(0)")
    a("v_cmp_gt_u32 vcc, 16, v5")
    a("s_cmp_gt_u32 s40, %d" % SPIN_MAX)
    a("s_cbranch_scc1 %s_pollpx" % name)
    a("s_cbranch_vccz %s_pollpx" % name)
    a("s_sleep 2")
    a("s_branch %s_pollp" % name)
    a.label("%s_pollpx" % name)
    a("s_lshl_b32 s43, s2, 2")
    a("s_add_u32 s43, s43, s3")
    a("s_mov_b32 s27, s3")
    a("s_cmp_eq_u32 s98, 0")
    a("s_cbranch_scc1 %s_cjgo" % name)
    a("s_cmp_eq_u32 s21, 0")
    a("s_cbranch_scc1 %s_cjdone" % name)
    a("s_cmp_lg_u32 s3, 0")
    a("s_cbranch_scc1 %s_cjdone" % name)
    a("s_add_u32 s43, s2, %d" % (1024 - 128))
    a("s_mov_b32 s27, 4")
    a.label("%s_cjgo" % name)
    a("s_mul_i32 s27, s27, %d" % CJ_SIZE)
    a("s_add_u32 s27, s27, %d" % CJB)
    a("s_and_b32 s26, s43, 1")
    a("s_lshr_b32 s43, s43, 1")
    a.label("%s_seg2" % name)
    emit_conv_job(a, name)
    seg_end(a, name)
    stamp(a, 5)
    a("s_cmp_lg_u32 s21, 0")
    a("s_cbranch_scc1 %s_fin" % name)
    a("v_lshrrev_b32 v10, 4, v2")
    a("v_lshlrev_b32 v11, 8, v3")
    a("v_lshl_add_u32 v11, v10, 6, v11")
    a("s_lshl_b32 s33, s25, 13")
    a("s_add_u32 s36, s59, s33")
    a("s_xor_b32 s33, s33, 8192")
    a("s_add_u32 s37, s59, s33")
    a("s_add_u32 s38, s36, 4096")
    a("s_add_u32 s39, s37, 4096")
    PB = 112
    a.label("%s_poll1" % name)
    for tt in range(4):
        for q in range(4):
            a("buffer_load_dwordx4 %s, v11, s[12:15], s%d offen offset:%d sc1" % (vr(PB + 16 * tt + 4 * q), (36, 38, 37, 39)[tt], 16 * q))
    a("s_waitcnt vmcnt(0)")
    a("v_mov_b32 v12, 0")
    for r in range(PB + 1, PB + 64, 4):
        a("v_or3_b32 v12, v12, v%d, v%d" % (r, r + 2))
    a("v_cmp_gt_i32 vcc, 0, v12")
    a("s_add_u32 s40, s40, 1")
    a("s_cmp_gt_u32 s40, %d" % SPIN_MAX)
    a("s_cbranch_scc1 %s_poll1x" % name)
    a("s_cbranch_vccz %s_poll1x" % name)
    a("s_sleep 8")
    a("s_branch %s_poll1" % name)
    a.label("%s_poll1x" % name)
    stamp(a, 6)
    a.label("%s_seg3" % name)
    for tt in range(4):
        b = PB + 16 * tt
        for st in (8, 4, 2):
            for q in range(0, st, 2):
                a("v_pk_add_f32 %s, %s, %s" % (vr(b + q, 2), vr(b + q, 2), vr(b + q + st, 2)))
    emit_xg_reduce(a, [PB + 16 * tt + e for tt in range(4) for e in range(2)], 72)
    for tt in range(4):
        b = PB + 16 * tt
        emit_ln_finish(a, b, b + 1, 2304, b + 2, MR + 2 * tt, b + 4)
        a("v_mul_f32 v%d, -v%d, v%d" % (MR + 2 * tt + 1, b + 2, MR + 2 * tt))
    a("v_lshrrev_b32 v11, 2, v2"); a("v_and_b32 v11, 1, v11"); a("v_lshlrev_b32 v11, 4, v11")
    a("v_lshrrev_b32 v12, 3, v2"); a("v_and_b32 v12, 1, v12"); a("v_lshl_add_u32 v11, v12, 2, v11")
    a("v_and_b32 v12, 3, v2"); a("v_add_u32 v11, v11, v12")
    a("v_mul_u32_u24 v11, 288, v11")
    a("v_lshrrev_b32 v12, 1, v10"); a("v_lshl_add_u32 v11, v12, 4, v11")
    a("v_and_b32 v12, 1, v10")
    a("v_lshl_add_u32 v13, v12, 5, v11")
    a("v_mul_u32_u24 v12, 2304, v12")
    a("v_add_u32 v9, v11, v12")
    a("s_lshl_b32 s33, s23, 5")
    a("s_lshl_b32 s36, s22, 1")
    a("s_add_u32 s33, s33, s36")
    a("s_add_u32 s33, s33, s24")
    a("s_mul_i32 s33, s33, 18432")
    if ZIMG: a("s_add_u32 s33, s33, 0x%x" % ZIMG)
    a("s_mul_i32 s36, s25, 9216")
    a("s_add_u32 s37, s33, s36")
    a("s_xor_b32 s36, s36, 9216")
    a("s_add_u32 s38, s33, s36")
    a("s_add_u32 s39, s37, 128")
    a("s_mul_i32 s36, s25, 160")
    a("s_add_u32 s37, s37, s36")
    a("s_add_u32 s38, s38, s36")
    def norm_pair(nA, ttA, nB, ttB, O):
        for q, (n, tt) in enumerate(((nA, ttA), (nB, ttB))):
            for d in range(2):
                z = ZP + 2 * n + d; t = T + 4 * q + 2 * d
                a("v_lshlrev_b32 v%d, 16, v%d" % (t, z))
                a("v_and_b32 v%d, 0xffff0000, v%d" % (t + 1, z))
        for q, (n, tt) in enumerate(((nA, ttA), (nB, ttB))):
            for d in range(2):
                t = T + 4 * q + 2 * d
                a("v_pk_fma_f32 %s, %s, %s, %s op_sel:[0,0,1] op_sel_hi:[1,0,1]" % (vr(t, 2), vr(t, 2), vr(MR + 2 * tt, 2), vr(MR + 2 * tt, 2)))
        for q in range(2):
            for d in range(2):
                t = T + 4 * q + 2 * d
                a("v_cvt_pk_bf16_f32 v%d, v%d, v%d" % (O + 2 * q + d, t, t + 1))
        a("s_nop 1")
        a("v_permlane16_swap_b32 v%d, v%d" % (O, O + 2))
        a("v_permlane16_swap_b32 v%d, v%d" % (O + 1, O + 3))
    cnt = 0
    for pr in range(2):
        for tt in range(4):
            O = 112 + 4 * cnt; cnt += 1
            norm_pair(tidx(2 * pr, tt), tt, tidx(2 * pr + 1, tt), tt, O)
            a("s_nop 0")
            a("buffer_store_dwordx4 %s, v13, s[12:15], s%d offen offset:%d" % (vr(O), 37 if tt < 2 else 38, (tt & 1) * 2304 + 64 * pr))
    O = 112 + 4 * cnt
    norm_pair(16, 0, 17, 1, O)
    a("s_nop 0")
    a("buffer_store_dwordx4 %s, v9, s[12:15], s39 offen" % vr(O))
    seg_end(a, name)
    a.label("%s_fin" % name)
    stamp(a, 7)
    a("s_waitcnt vmcnt(0)")
    stamp(a, 8)
    a.label("%s_end" % name)
    a("s_endpgm")
    return a.text(), kernel_desc(name, 256, 256), (name, 256, 512, LDSB)

def gen_k1f(name="k1_kernel"):
    a = Asm()
    TS = 16384; NT = 3; TB0 = 4096; FB_ = TB0 + NT * TS; FSL = 18432; NF = 6; FS = 576; NK = 18
    LDSB = FB_ + NF * FSL; RST = 0; CSO = 1024; CJB = TB0 + 4 * 18432
    kernel_begin(a, name)
    a("s_load_dwordx2 s[80:81], s[0:1], 0")
    a("s_load_dwordx2 s[4:5], s[0:1], 56")
    a("s_cmp_ge_u32 s2, 256")
    a("s_cbranch_scc1 %s_end" % name)
    a("v_lshrrev_b32 v1, 6, v0")
    a("v_and_b32 v2, 63, v0")
    a("v_readfirstlane_b32 s3, v1")
    a("s_and_b32 s20, s2, 7")
    a("s_lshr_b32 s21, s2, 3")
    a("s_and_b32 s22, s20, 1")
    a("s_lshl_b32 s22, s22, 3")
    a("s_and_b32 s23, s21, 7")
    a("s_add_u32 s22, s22, s23")
    a("s_lshr_b32 s21, s21, 3")
    a("s_and_b32 s23, s20, 6")
    a("s_and_b32 s24, s21, 1")
    a("s_add_u32 s23, s23, s24")
    a("s_lshr_b32 s21, s21, 1")
    a("s_mov_b32 s99, 0")
    a("s_mov_b64 s[96:97], -1")
    a("s_cmp_lt_u32 s3, 4")
    a("s_cbranch_scc1 %s_consumer" % name)
    a("s_setprio 3")
    a("s_sub_u32 s3, s3, 4")
    a("v_lshrrev_b32 v3, 3, v2")
    a("v_and_b32 v4, 7, v2")
    VT = 16; VF = 20
    a("s_lshl_b32 s24, s3, 5")
    a("v_add_u32 v5, s24, v3")
    a("v_lshrrev_b32 v7, 4, v2")
    a("v_xor_b32 v7, v7, v4")
    a("v_mul_u32_u24 v6, 1152, v5")
    a("v_lshl_add_u32 v%d, v7, 4, v6" % VT)
    a("v_xor_b32 v%d, 64, v%d" % (VT + 1, VT))
    a("v_add_u32 v%d, %d, v%d" % (VT + 1, 9216 - 1024, VT + 1))
    a("v_add_u32 v%d, %d, v%d" % (VT + 2, 2 * (9216 - 1024), VT))
    a("v_add_u32 v%d, %d, v%d" % (VT + 3, 2 * (9216 - 1024), VT + 1))
    a("s_mul_i32 s26, s22, %d" % (128 * 1152))
    a("s_lshl_b32 s24, s3, 12")
    a("s_add_u32 s24, s24, %d" % TB0)
    a("s_mov_b32 s33, 0")
    a("s_waitcnt lgkmcnt(0)")
    srd(a, 28, 80, 2048 * 576 * 2)
    vm = VmTracker(a)
    def issueT(m):
        a("s_add_u32 s35, s33, s24")
        a("s_mov_b32 m0, s35")
        a("s_add_u32 s33, s33, %d" % TS)
        for n in range(4):
            if "nodma" not in DBG: a("buffer_load_dwordx4 v%d, s[28:31], s26 offen offset:%d lds" % (VT + n, 1024 * n))
        a("s_add_u32 s26, s26, 128")
        a("s_cmp_eq_u32 s33, %d" % (NT * TS))
        a("s_cselect_b32 s33, 0, s33")
        vm.issue("T%d" % m, 4)
    issueT(0)
    srd(a, 8, 4, 576 * 4608 * 2)
    for n in range(5):
        if n: a("v_add_u32 v6, %d, v2" % (64 * n))
        src = "v6" if n else "v2"
        a("v_mul_u32_u24 v7, 1821, %s" % src)
        a("v_lshrrev_b32 v7, 16, v7")
        a("v_mul_u32_u24 v8, 36, v7")
        a("v_sub_u32 v8, %s, v8" % src)
        a("v_bfe_u32 v9, v7, 2, 1")
        a("v_lshlrev_b32 v6, 1, v9")
        a("v_xor_b32 v8, v8, v6")
        a("v_and_b32 v7, 3, v7")
        a("v_lshl_add_u32 v7, v9, 3, v7")
        a("v_mul_u32_u24 v7, 9216, v7")
        a("v_lshl_add_u32 v%d, v8, 4, v7" % (VF + n))
        if 0 < n < 4: a("v_subrev_u32 v%d, %d, v%d" % (VF + n, 1024 * n, VF + n))
    a("s_and_b32 s36, s3, 1")
    a("s_lshl_b32 s36, s36, 4")
    a("s_lshr_b32 s37, s3, 1")
    a("s_lshl_b32 s37, s37, 2")
    a("s_add_u32 s36, s36, s37")
    a("s_mul_i32 s27, s36, 9216")
    a("s_mul_i32 s36, s23, 576")
    a("s_add_u32 s27, s27, s36")
    a("s_cmp_eq_u32 s21, 0")
    a("s_cselect_b32 s36, 4608, 0")
    a("s_add_u32 s27, s27, s36")
    a("s_mul_i32 s25, s3, 4608")
    a("s_add_u32 s25, s25, %d" % FB_)
    a("s_mov_b32 s34, 0")
    def issueF(k):
        a("s_add_u32 s35, s34, s25")
        a("s_mov_b32 m0, s35")
        a("s_add_u32 s36, s35, 4096")
        for n in range(4):
            if "nodma" not in DBG: a("buffer_load_dwordx4 v%d, s[8:11], s27 offen offset:%d lds" % (VF + n, 1024 * n))
        a("s_mov_b32 m0, s36")
        a("s_mov_b64 exec, 0xffffffff")
        if "nodma" not in DBG: a("buffer_load_dwordx4 v%d, s[8:11], s27 offen lds" % (VF + 4))
        a("s_mov_b64 exec, -1")
        a("s_add_u32 s27, s27, %d" % (32 * 9216))
        a("s_add_u32 s34, s34, %d" % FSL)
        a("s_cmp_eq_u32 s34, %d" % (NF * FSL))
        a("s_cselect_b32 s34, 0, s34")
        vm.issue("F%d" % k, 5)
    issueF(0); issueF(1)
    def other_setup():
        a("s_load_dwordx2 s[6:7], s[0:1], 104")
        a("s_load_dwordx2 s[18:19], s[0:1], 96")
        a("s_waitcnt lgkmcnt(0)")
        srd(a, 12, 6, WS_BYTES)
        srd(a, 60, 18, 256)
    def prep_srds():
        srd(a, 68, 66, 2048 * 576 * 2)
        a("s_mov_b32 s88, s64"); a("s_mov_b32 s89, s65")
        srd(a, 64, 88, 2048 * 576 * 2)
        srd(a, 72, 76, 576 * 8)
        srd(a, 76, 100, 2304 * 576 * 2)
    other_setup()
    a("s_add_u32 s3, s3, 4"); stamp_setup(a, 1); stamp(a, 0); a("s_sub_u32 s3, s3, 4")
    a("s_load_dwordx4 s[64:67], s[0:1], 8")
    a("s_load_dwordx2 s[76:77], s[0:1], 24")
    a("s_load_dwordx2 s[100:101], s[0:1], 80")
    a("s_waitcnt lgkmcnt(0)")
    prep_srds()
    if "nowarm" not in DBG:
        a("s_mov_b32 s99, 1")
        a("s_mov_b32 s52, s24"); a("s_mov_b32 s53, s25")
        a("s_mov_b32 s82, s33"); a("s_mov_b32 s83, s34")
        for r_ in (36, 37, 38, 39, 40, 41, 42, 58, 59): a("s_mov_b32 s%d, 0" % r_)
        for r_ in (5, 8, 9, 10, 11, 12, 13, 94, 140, 141): a("v_mov_b32 v%d, 0" % r_)
        a("s_mov_b64 exec, 0")
        a("s_cmp_eq_u32 s3, 0"); a("s_cbranch_scc1 %s_epi" % name)
        a("s_cmp_eq_u32 s3, 1"); a("s_cbranch_scc1 %s_seg1" % name)
        a("s_cmp_eq_u32 s3, 2"); a("s_cbranch_scc1 %s_seg2" % name)
        a("s_branch %s_seg3" % name)
        a.label("%s_warmret" % name)
        a("s_mov_b64 exec, -1")
        a("s_mov_b32 s99, 0")
        a("s_mov_b32 s24, s52"); a("s_mov_b32 s25, s53")
        a("s_mov_b32 s33, s82"); a("s_mov_b32 s34, s83")
    SS = [28, 30, 32, 34]; ONE = 36
    for r in range(28, 36): a("v_mov_b32 v%d, 0" % r)
    for r in range(ONE, ONE + 4): a("v_mov_b32 v%d, 0x3f803f80" % r)
    CA = 40
    for r in range(CA, CA + 20): a("v_mov_b32 v%d, 0" % r)
    XB = 64; CF = 80
    a("v_lshlrev_b32 v10, 4, v2")
    a("v_add_u32 v10, s24, v10")
    a("v_lshrrev_b32 v11, 2, v2")
    a("v_mul_u32_u24 v11, %d, v11" % FS)
    a("v_and_b32 v12, 3, v2")
    a("v_lshl_add_u32 v11, v12, 3, v11")
    a("v_bfe_u32 v13, v2, 4, 1")
    a("v_lshlrev_b32 v13, 5, v13")
    a("s_lshr_b32 s36, s3, 1")
    a("s_mul_i32 s37, s36, 9")
    a("s_and_b32 s38, s3, 1")
    a("s_lshl_b32 s38, s38, 2")
    a("s_add_u32 s37, s37, s38")
    a("s_lshl_b32 s40, s37, 6")
    a("s_lshl_b32 s37, s37, 5")
    a("s_add_u32 s37, s37, %d" % FB_)
    a("v_add_u32 v11, s37, v11")
    a("v_add_u32 v5, v11, v13")
    a("v_sub_u32 v6, v11, v13")
    a("s_cmp_eq_u32 s36, 0")
    a("s_cselect_b64 vcc, -1, 0")
    a("v_cndmask_b32 v11, v6, v5, vcc")
    a("v_cndmask_b32 v12, v5, v6, vcc")
    def rowstats_rd(m):
        if "nors" in DBG: return
        a("v_add_u32 v5, %d, v10" % ((m % NT) * TS))
        for n in range(4):
            a("ds_read_b128 %s, v5 offset:%d" % (vr(XB + 4 * n), 1024 * n))
    def rowstats_do():
        if "nors" in DBG: return
        for d in range(4):
            for n in range(4):
                r = XB + 4 * n + d
                a("v_dot2_f32_bf16 v%d, v%d, v%d, v%d" % (SS[n], r, ONE, SS[n]))
                a("v_dot2_f32_bf16 v%d, v%d, v%d, v%d" % (SS[n] + 1, r, r, SS[n] + 1))
    def colsum_rd(k):
        if "nocs" in DBG: return
        a("v_add_u32 v6, %d, v11" % ((k % NF) * FSL))
        a("v_add_u32 v7, %d, v12" % ((k % NF) * FSL))
        for q in range(5):
            for half in range(2):
                a("ds_read_b64_tr_b16 %s, v%d offset:%d" % (vr(CF + 4 * q + 2 * half, 2), 6 + (q & 1), 16 * half * FS + 32 * q))
    def colsum_do():
        if "nocs" in DBG: return
        for q in range(5):
            a("v_mfma_f32_16x16x32_bf16 %s, %s, %s, %s" % (vr(CA + 4 * q), vr(CF + 4 * q), vr(ONE), vr(CA + 4 * q)))
    vm.wait(["T0", "F0"])
    a("s_barrier")
    stamp(a, 1)
    colsum_rd(0); rowstats_rd(0)
    issueT(1); issueF(2); issueF(3)
    a("s_waitcnt lgkmcnt(0)")
    colsum_do(); rowstats_do()
    vm.wait(["F1"])
    a("s_barrier")
    for k in range(NK):
        rs = (k % 2 == 1 and (k + 1) // 2 < 9)
        if k + 1 < NK: colsum_rd(k + 1)
        if rs: rowstats_rd((k + 1) // 2)
        if k == 0:
            issueF(4); issueT(2); issueF(5)
        if k >= 1 and k + 5 < NK: issueF(k + 5)
        if k % 2 == 1 and (k - 1) // 2 + 3 < 9: issueT((k - 1) // 2 + 3)
        a("s_waitcnt lgkmcnt(0)")
        if k + 1 < NK: colsum_do()
        if rs: rowstats_do()
        if k + 1 < NK:
            vm.wait(["F%d" % (k + 2), "T%d" % ((k + 2) // 2)])
            a("s_barrier")
    a("s_nop 3")
    for ctl in ("quad_perm:[1,0,3,2]", "quad_perm:[2,3,0,1]", "row_half_mirror"):
        for rg in range(4):
            for e in range(2):
                a("v_add_f32_dpp v%d, v%d, v%d %s row_mask:0xf bank_mask:0xf" % (SS[rg] + e, SS[rg] + e, SS[rg] + e, ctl))
        a("s_nop 1")
    ML = 64
    for rg in range(4):
        emit_ln_finish(a, SS[rg], SS[rg] + 1, 576, ML + 2 * rg, ML + 2 * rg + 1, 76)
        a("v_mov_b32 v%d, v%d" % (SS[rg] + 1, ML + 2 * rg + 1))
        a("v_sub_f32 v%d, 0, v%d" % (SS[rg], ML + 2 * rg))
    a("s_lshl_b32 s35, s3, 8")
    a("v_lshlrev_b32 v6, 3, v3")
    a("v_add_u32 v12, s35, v6")
    a("v_cmp_eq_u32 vcc, 0, v4")
    a("s_and_saveexec_b64 s[36:37], vcc")
    for rg in range(4):
        a("ds_write_b64 v12, %s offset:%d" % (vr(SS[rg], 2), RST + 64 * rg))
    a("s_mov_b64 exec, s[36:37]")
    a("s_lshl_b32 s36, s21, 8")
    a("s_or_b32 s36, s36, s23")
    a("s_cmp_lg_u32 s36, 256")
    a("s_cbranch_scc1 %s_nost1" % name)
    a("s_lshl_b32 s35, s22, 7")
    a("s_lshl_b32 s36, s3, 5")
    a("s_add_u32 s35, s35, s36")
    a("s_lshl_b32 s35, s35, 3")
    a("s_add_u32 s35, s35, 0x%x" % STATS1)
    a("v_mov_b32 v7, 0x7ffffff0")
    a("v_cndmask_b32 v6, v7, v6, vcc")
    for rg in range(4):
        a("buffer_store_dwordx2 %s, v6, s[12:15], s35 offen offset:%d" % (vr(ML + 2 * rg, 2), 64 * rg))
    a.label("%s_nost1" % name)
    a("v_lshrrev_b32 v12, 4, v2")
    a("v_lshlrev_b32 v12, 4, v12")
    a("v_add_u32 v12, s40, v12")
    a("v_and_b32 v13, 15, v2")
    a("v_cmp_eq_u32 vcc, 0, v13")
    a("s_and_saveexec_b64 s[36:37], vcc")
    for q in range(5):
        a("ds_write_b128 v12, %s offset:%d" % (vr(CA + 4 * q), CSO + 64 * q))
    a("s_mov_b64 exec, s[36:37]")
    a("s_waitcnt lgkmcnt(0)")
    a("s_barrier")
    a("s_setprio 0")
    ACC = 112
    a("s_lshr_b32 s24, s3, 1")
    a("s_and_b32 s25, s3, 1")
    a("v_and_b32 v3, 15, v2")
    a("s_lshl_b32 s23, s23, 1")
    a("s_add_u32 s23, s23, 1")
    a("s_mov_b32 s40, 576")
    a("s_mul_i32 s36, s3, 18432")
    a("s_add_u32 s36, s36, %d" % TB0)
    a("v_lshlrev_b32 v10, 4, v2")
    a("v_add_u32 v11, s36, v10")
    a("s_barrier")
    for n in range(18):
        a("ds_read_b128 %s, v11 offset:%d" % (vr(ACC + 4 * n), 1024 * n))
        if n in (7, 13): a("s_waitcnt lgkmcnt(4)")
    a("s_branch %s_epi" % name)

    def gran_addr():
        a("v_lshrrev_b32 v10, 4, v2")
        a("s_lshl_b32 s33, s25, 1")
        a("v_add_u32 v11, s33, v10")
        a("v_and_b32 v11, 3, v11")
        a("v_lshl_add_u32 v11, v11, 4, v3")
        a("v_lshlrev_b32 v94, 8, v11")
        a("s_lshl_b32 s59, s22, 7")
        a("s_lshl_b32 s36, s24, 6")
        a("s_add_u32 s59, s59, s36")
        a("s_lshl_b32 s59, s59, 8")
        a("s_add_u32 s59, s59, 0x%x" % STATS2)
        a("s_lshl_b32 s36, s23, 1")
        a("s_add_u32 s36, s36, s25")
        a("s_lshl_b32 s36, s36, 3")
        a("s_add_u32 s58, s36, s59")
    a.label("%s_consumer" % name)
    a("s_load_dwordx4 s[64:67], s[0:1], 8")
    a("s_load_dwordx2 s[76:77], s[0:1], 24")
    a("s_load_dwordx2 s[100:101], s[0:1], 80")
    a("s_load_dwordx2 s[90:91], s[0:1], 64")
    a("s_lshr_b32 s24, s3, 1")
    a("s_and_b32 s25, s3, 1")
    a("v_and_b32 v3, 15, v2")
    other_setup()
    srd(a, 28, 80, 2048 * 576 * 2)
    srd(a, 8, 4, 576 * 4608 * 2)
    if "nopf" not in DBG:
        a("s_and_b32 s36, s22, 7")
        a("s_mul_i32 s36, s36, 72")
        a("s_mul_i32 s37, s3, 18")
        a("s_add_u32 s36, s36, s37")
        a("s_mul_i32 s36, s36, 9216")
        a("s_mul_i32 s37, s23, 576")
        a("s_add_u32 s36, s36, s37")
        a("s_cmp_eq_u32 s21, 0")
        a("s_cselect_b32 s37, 4608, 0")
        a("s_add_u32 s36, s36, s37")
        a("s_and_b32 s36, s36, 0xffffff80")
        for n in range(2):
            a("v_add_u32 v10, %d, v2" % (64 * n))
            a("v_mul_u32_u24 v11, 13108, v10")
            a("v_lshrrev_b32 v11, 16, v11")
            a("v_mul_u32_u24 v12, 5, v11")
            a("v_sub_u32 v12, v10, v12")
            a("v_mul_u32_u24 v11, 9216, v11")
            a("v_lshl_add_u32 v11, v12, 7, v11")
            if n:
                a("v_cmp_gt_u32 vcc, 90, v10")
                a("v_mov_b32 v12, 0x7ffffff0")
                a("s_nop 0")
                a("v_cndmask_b32 v11, v12, v11, vcc")
            a("buffer_load_dword v96, v11, s[8:11], s36 offen")
        a("s_lshr_b32 s36, s2, 6")
        a("s_lshl_b32 s36, s36, 5")
        a("s_lshl_b32 s37, s22, 7")
        a("s_add_u32 s36, s36, s37")
        a("s_mul_i32 s36, s36, 1152")
        a("s_mul_i32 s37, s3, 9216")
        a("s_add_u32 s36, s36, s37")
        a("v_lshlrev_b32 v11, 7, v2")
        a("buffer_load_dword v96, v11, s[28:31], s36 offen")
        a("v_and_b32 v11, 7, v2")
        a("v_lshlrev_b32 v11, 7, v11")
        a("s_add_u32 s36, s36, 8192")
        a("buffer_load_dword v96, v11, s[28:31], s36 offen")
    prep_srds()
    srd(a, 92, 90, 2048 * 2048 * 2)
    stamp_setup(a, 1); stamp(a, 0)
    a("s_lshl_b32 s23, s23, 1")
    a("s_cmp_lg_u32 s21, 0")
    a("s_cbranch_scc1 %s_noclr" % name)
    gran_addr()
    a("v_mov_b32 v12, 0"); a("v_mov_b32 v13, 0x80000000")
    a("buffer_store_dwordx2 v[12:13], v94, s[12:15], s58 offen sc1")
    a("buffer_store_dwordx2 v[12:13], v94, s[12:15], s58 offen offset:16 sc1")
    a.label("%s_noclr" % name)
    TB = [16, 32]; FR = 48
    vTa, vTb, vP = 4, 5, [6, 7]; vH = [8, 9]
    bTa = [88, 89]; bTb = [90, 91]; bP = [92, 93]; bH = [100, 101]
    PF = 96
    a("v_lshrrev_b32 v10, 4, v2")
    a("v_lshrrev_b32 v11, 1, v3")
    a("v_xor_b32 v10, v10, v11")
    a("v_lshlrev_b32 v10, 4, v10")
    a("v_lshl_add_u32 v10, v3, 7, v10")
    a("s_lshl_b32 s26, s24, 13")
    a("s_add_u32 s26, s26, %d" % TB0)
    a("v_add_u32 v10, s26, v10")
    a("s_lshl_b32 s26, s25, 12")
    a("v_add_u32 v%d, s26, v10" % bTa[0])
    a("s_xor_b32 s26, s26, 4096")
    a("v_add_u32 v%d, s26, v10" % bTb[0])
    a("v_xor_b32 v%d, 64, v%d" % (bTa[1], bTa[0]))
    a("v_xor_b32 v%d, 64, v%d" % (bTb[1], bTb[0]))
    a("v_lshrrev_b32 v10, 2, v2")
    a("v_mul_u32_u24 v10, %d, v10" % FS)
    a("v_and_b32 v11, 3, v2")
    a("v_lshl_add_u32 v10, v11, 3, v10")
    a("v_add_u32 v10, %d, v10" % FB_)
    a("v_bfe_u32 v13, v2, 4, 1")
    a("v_lshlrev_b32 v13, 5, v13")
    a("v_add_u32 v%d, v10, v13" % bH[0])
    a("v_sub_u32 v%d, v10, v13" % bH[1])
    a("s_mul_i32 s26, s25, 160")
    a("s_cmp_eq_u32 s25, 0")
    a("s_cselect_b64 vcc, -1, 0")
    a("v_cndmask_b32 v11, v%d, v%d, vcc" % (bH[1], bH[0]))
    a("v_cndmask_b32 v12, v%d, v%d, vcc" % (bH[0], bH[1]))
    a("v_add_u32 v%d, s26, v11" % bP[0])
    a("v_add_u32 v%d, s26, v12" % bP[1])
    a("v_lshrrev_b32 v10, 4, v2")
    a("v_lshlrev_b32 v10, 12, v10")
    a("v_lshl_add_u32 v95, v3, 4, v10")
    a("s_lshl_b32 s41, s22, 7")
    a("s_lshl_b32 s36, s3, 5")
    a("s_add_u32 s41, s41, s36")
    a("s_lshl_b32 s41, s41, 12")
    a("s_add_u32 s36, s23, s21")
    a("s_lshl_b32 s36, s36, 8")
    a("s_add_u32 s41, s41, s36")
    for r in range(ACC, ACC + 144): a("v_mov_b32 v%d, 0" % r)
    def accr(z, ft, tt): return ACC + 72 * z + 4 * tidx(ft, tt)
    def Fr(z, ft): return FR + 20 * z + 4 * ft
    trk = LdsTracker(a)
    def treads(buf):
        L = []
        for tt in range(4):
            r = TB[buf] + 4 * tt
            L.append(("ds_read_b128 %s, v%d offset:%d" % (vr(r), vTa if tt < 2 else vTb, (tt & 1) * 2048), range(r, r + 4)))
        return L
    def freads(z, ft):
        r = Fr(z, ft); L = []
        for half in range(2):
            off = 16 * half * FS + 32 * (9 * z + ft)
            v = vP[(z + ft) & 1] if ft < 4 else vH[z]
            L.append(("ds_read_b64_tr_b16 %s, v%d offset:%d" % (vr(r + 2 * half, 2), v, off), range(r + 2 * half, r + 2 * half + 2)))
        return L
    def rd(t):
        a(t[0]); trk.issue(t[1])
    fpairs = ((vP[0], bP[0]), (vP[1], bP[1]), (vH[0], bH[0]), (vH[1], bH[1]))
    a("v_mov_b32 v%d, v%d" % (vTa, bTa[0])); a("v_mov_b32 v%d, v%d" % (vTb, bTb[0]))
    for d, s_ in fpairs: a("v_mov_b32 v%d, v%d" % (d, s_))
    a("s_mov_b32 s27, 0")
    a("s_mov_b32 s34, 0")
    a("s_mov_b32 s33, 0")
    stamp(a, 1)
    a("s_barrier")
    stamp(a, 2)
    for t in treads(0): rd(t)
    for z in range(2):
        for ft in range(5):
            for t in freads(z, ft): rd(t)
            if len(trk.out) >= 12: trk.drain()
    trk.drain()
    def iteration(par):
        a("s_barrier")
        upd = []
        if par == 1:
            upd += ["s_add_u32 s27, s27, %d" % TS, "s_cmp_eq_u32 s27, %d" % (NT * TS), "s_cselect_b32 s27, 0, s27"]
        upd += ["v_add_u32 v%d, s27, v%d" % (vTa, bTa[1 - par]), "v_add_u32 v%d, s27, v%d" % (vTb, bTb[1 - par])]
        upd += ["s_add_u32 s34, s34, %d" % FSL, "s_cmp_eq_u32 s34, %d" % (NF * FSL), "s_cselect_b32 s34, 0, s34"]
        upd += ["v_add_u32 v%d, s34, v%d" % (d, s_) for d, s_ in fpairs]
        pend = [("x", u) for u in upd] + [("r", t) for t in treads(1 - par)]
        if par == 0:
            pend.append(("x", "buffer_load_dwordx4 %s, v95, s[92:95], s41 offen" % vr(PF)))
            pend.append(("x", "s_add_u32 s41, s41, 16384"))
        else:
            pend.append(("x", "s_add_u32 s33, s33, 1"))
        nm = 0
        for z in range(2):
            for ft in range(5):
                for tt in range(4 if ft < 4 else 2):
                    c = accr(z, ft, tt); A = Fr(z, ft); B = TB[par] + 4 * tt
                    trk.need(list(range(A, A + 4)) + list(range(B, B + 4)))
                    if "nomfma" not in DBG: a("v_mfma_f32_16x16x32_bf16 %s, %s, %s, %s" % (vr(c), vr(A), vr(B), vr(c)))
                    nfill = 1
                    while pend and nfill:
                        k, t = pend.pop(0)
                        if k == "x":
                            a(t)
                            if t.startswith("s_") and nm < 8: continue
                        else: rd(t)
                        nfill -= 1
                    nm += 1
                pend += [("r", t) for t in freads(z, ft)]
        for k, t in pend:
            if k == "x": a(t)
            else: rd(t)
        a("s_waitcnt lgkmcnt(15)")
        if len(trk.out) > 15: trk.out = trk.out[-15:]
    a.label("%s_cloop" % name)
    trk.out = []
    lb = len(a.lines)
    iteration(0); iteration(1)
    state = copy.deepcopy(trk.out)
    del a.lines[lb:]
    trk.out = copy.deepcopy(state)
    iteration(0); iteration(1)
    assert [sorted(x) for x in trk.out] == [sorted(x) for x in state]
    a("s_cmp_lt_u32 s33, %d" % (NK // 2))
    a("s_cbranch_scc1 %s_cloop" % name)
    trk.drain()
    stamp(a, 3)
    a("s_waitcnt vmcnt(0)")
    a("s_barrier")
    a("s_or_b32 s36, s3, s21")
    a("s_cmp_lg_u32 s36, 0")
    a("s_cbranch_scc1 %s_nosig" % name)
    a("v_mov_b32 v10, 1")
    a("s_lshl_b32 s36, s22, 2")
    a("v_mov_b32 v11, s36")
    a("s_mov_b64 exec, 1")
    a("buffer_atomic_add v10, v11, s[60:63], 0 offen sc1")
    a("s_mov_b64 exec, -1")
    a.label("%s_nosig" % name)
    a("s_mul_i32 s36, s3, 18432")
    a("s_add_u32 s36, s36, %d" % TB0)
    a("v_lshlrev_b32 v10, 4, v2")
    a("v_add_u32 v11, s36, v10")
    for n, (ft, tt) in enumerate(TILES):
        a("ds_write_b128 v11, %s offset:%d" % (vr(accr(1, ft, tt)), 1024 * tidx(ft, tt)))
        if n in (7, 13): a("s_waitcnt lgkmcnt(4)")
    a("s_mov_b32 s40, 0")
    a("s_waitcnt lgkmcnt(0)")
    a("s_barrier")
    a.label("%s_epi" % name)
    MR = 100; CS = 52; ZP = 16; T = 72
    gelu_consts(a)
    a("s_lshl_b32 s36, s24, 9")
    a("s_lshl_b32 s37, s25, 8")
    a("s_add_u32 s38, s36, s37")
    a("s_xor_b32 s37, s37, 256")
    a("s_add_u32 s39, s36, s37")
    a("v_lshlrev_b32 v10, 3, v3")
    a("v_add_u32 v11, s38, v10")
    a("ds_read_b64 %s, v11 offset:%d" % (vr(MR, 2), RST))
    a("ds_read_b64 %s, v11 offset:%d" % (vr(MR + 2, 2), RST + 128))
    a("v_add_u32 v11, s39, v10")
    a("ds_read_b64 %s, v11 offset:%d" % (vr(MR + 4, 2), RST))
    a("ds_read_b64 %s, v11 offset:%d" % (vr(MR + 6, 2), RST + 128))
    a("v_lshrrev_b32 v10, 4, v2")
    a("v_lshlrev_b32 v10, 4, v10")
    a("v_add_u32 v10, s40, v10")
    a("s_mul_i32 s36, s25, 320")
    a("v_add_u32 v11, s36, v10")
    a("s_waitcnt lgkmcnt(6)")
    for ft in range(4):
        a("ds_read_b128 %s, v11 offset:%d" % (vr(CS + 4 * ft), CSO + 64 * ft))
    a("ds_read_b128 %s, v10 offset:%d" % (vr(CS + 16), CSO + 256))
    S = [108, 110, 8, 12]; Q = [109, 111, 9, 13]
    for tt in range(4):
        a("v_mov_b32 v%d, 0" % S[tt]); a("v_mov_b32 v%d, 0" % Q[tt])
    a("v_mov_b32 v88, 0x3f803f80")
    a("s_waitcnt lgkmcnt(0)")
    for ft in range(5):
        if ft == 3:
            seg_end(a, name)
            a.label("%s_seg1" % name)
        tts = range(4 if ft < 4 else 2)
        items = [(ACC + 4 * tidx(ft, tt), CS + 4 * ft, MR + 2 * tt, ZP + 2 * tidx(ft, tt)) for tt in tts]
        emit_fold_gelu(a, items, T)
        for d in range(2):
            for tt in tts:
                p = ZP + 2 * tidx(ft, tt) + d
                a("v_dot2_f32_bf16 v%d, v%d, v88, v%d" % (S[tt], p, S[tt]))
                a("v_dot2_f32_bf16 v%d, v%d, v%d, v%d" % (Q[tt], p, p, Q[tt]))
    a("s_cmp_eq_u32 s21, 0")
    a("s_cbranch_scc1 %s_z2" % name)
    a("s_lshl_b32 s36, s22, 4")
    a("s_add_u32 s36, s36, s23")
    a("s_lshl_b32 s36, s36, 2")
    a("s_add_u32 s36, s36, s3")
    a("s_mul_i32 s36, s36, 9216")
    a("s_add_u32 s36, s36, 0x%x" % Z1IMG)
    a("v_lshlrev_b32 v10, 4, v2")
    for q in range(9):
        if q in (4, 8): a("s_add_u32 s36, s36, 4096")
        a("buffer_store_dwordx4 %s, v10, s[12:15], s36 offen offset:%d" % (vr(ZP + 4 * q), (q & 3) * 1024))
    a("s_branch %s_conv" % name)
    a.label("%s_z2" % name)
    a("s_nop 1")
    emit_xg_reduce(a, S + Q, 72)
    gran_addr()
    for g in range(1, 4):
        a("v_cmp_eq_u32 vcc, %d, v10" % g)
        a("s_nop 1")
        a("v_cndmask_b32 v%d, v%d, v%d, vcc" % (S[0], S[0], S[g]))
        a("v_cndmask_b32 v%d, v%d, v%d, vcc" % (Q[0], Q[0], Q[g]))
    a("v_and_b32 v%d, 0x7fffffff, v%d" % (Q[0], Q[0]))
    a("buffer_store_dwordx2 v[%d:%d], v94, s[12:15], s58 offen sc1" % (S[0], Q[0]))
    a.label("%s_conv" % name)
    seg_end(a, name)
    a.label("%s_seg2" % name)
    stamp(a, 4)
    for r_ in range(36):
        a("v_mov_b32 v%d, v%d" % (200 + r_, ZP + r_))
    a("s_lshl_b32 s42, s22, 4")
    a("s_add_u32 s42, s42, s23")
    a("s_lshl_b32 s36, s21, 8")
    a("s_add_u32 s42, s42, s36")
    a("v_and_b32 v0, 255, v0")
    G2.emit_prep2(a, name)
    stamp(a, 5)
    a("s_cmp_lg_u32 s21, 0")
    a("s_cbranch_scc1 %s_fin" % name)
    a("v_and_b32 v3, 15, v2")
    ZP = 200
    a("s_lshl_b32 s33, s22, 2")
    a("v_mov_b32 v9, s33")
    a("s_mov_b32 s40, 0")
    a("v_lshlrev_b32 v11, 4, v3")
    a.label("%s_poll2" % name)
    a("buffer_load_dword v12, v9, s[60:63], 0 offen sc1")
    a("s_waitcnt vmcnt(0)")
    a("buffer_load_dwordx4 v[112:115], v11, s[12:15], s59 offen sc1")
    a("s_add_u32 s40, s40, 1")
    a("v_subrev_u32 v12, 8, v12")
    a("s_waitcnt vmcnt(0)")
    a("v_or3_b32 v12, v12, v113, v115")
    a("v_cmp_gt_i32 vcc, 0, v12")
    a("s_cmp_gt_u32 s40, %d" % SPIN_MAX)
    a("s_cbranch_scc1 %s_poll2x" % name)
    a("s_cbranch_vccz %s_poll2x" % name)
    a("s_sleep 10")
    a("s_branch %s_poll2" % name)
    a.label("%s_poll2x" % name)
    a("v_lshrrev_b32 v10, 4, v2")
    a("v_lshlrev_b32 v11, 8, v3")
    a("v_lshl_add_u32 v11, v10, 6, v11")
    a("s_lshl_b32 s33, s25, 13")
    a("s_add_u32 s36, s59, s33")
    a("s_xor_b32 s33, s33, 8192")
    a("s_add_u32 s37, s59, s33")
    a("s_add_u32 s38, s36, 4096")
    a("s_add_u32 s39, s37, 4096")
    PB = 112
    a.label("%s_poll1" % name)
    if "inv" in DBG: a("buffer_inv sc1")
    POL = "sc0 sc1" if "sc01" in DBG else "sc1"
    for tt in range(4):
        for q in range(4):
            a("buffer_load_dwordx4 %s, v11, s[12:15], s%d offen offset:%d %s" % (vr(PB + 16 * tt + 4 * q), (36, 38, 37, 39)[tt], 16 * q, POL))
    a("s_waitcnt vmcnt(0)")
    a("v_mov_b32 v12, 0")
    for r in range(PB + 1, PB + 64, 4):
        a("v_or3_b32 v12, v12, v%d, v%d" % (r, r + 2))
    a("v_cmp_gt_i32 vcc, 0, v12")
    a("s_add_u32 s40, s40, 1")
    a("s_cmp_gt_u32 s40, %d" % SPIN_MAX)
    a("s_cbranch_scc1 %s_poll1x" % name)
    a("s_cbranch_vccz %s_poll1x" % name)
    a("s_sleep 20")
    a("s_branch %s_poll1" % name)
    a.label("%s_poll1x" % name)
    stamp(a, 6)
    a.label("%s_seg3" % name)
    for tt in range(4):
        b = PB + 16 * tt
        for st in (8, 4, 2):
            for q in range(0, st, 2):
                a("v_pk_add_f32 %s, %s, %s" % (vr(b + q, 2), vr(b + q, 2), vr(b + q + st, 2)))
    emit_xg_reduce(a, [PB + 16 * tt + e for tt in range(4) for e in range(2)], 72)
    for tt in range(4):
        b = PB + 16 * tt
        emit_ln_finish(a, b, b + 1, 2304, b + 2, MR + 2 * tt, b + 4)
        a("v_mul_f32 v%d, -v%d, v%d" % (MR + 2 * tt + 1, b + 2, MR + 2 * tt))
    a("v_lshrrev_b32 v11, 2, v2"); a("v_and_b32 v11, 1, v11"); a("v_lshlrev_b32 v11, 4, v11")
    a("v_lshrrev_b32 v12, 3, v2"); a("v_and_b32 v12, 1, v12"); a("v_lshl_add_u32 v11, v12, 2, v11")
    a("v_and_b32 v12, 3, v2"); a("v_add_u32 v11, v11, v12")
    a("v_mul_u32_u24 v11, 288, v11")
    a("v_lshrrev_b32 v12, 1, v10"); a("v_lshl_add_u32 v11, v12, 4, v11")
    a("v_and_b32 v12, 1, v10")
    a("v_lshl_add_u32 v13, v12, 5, v11")
    a("v_mul_u32_u24 v12, 2304, v12")
    a("v_add_u32 v9, v11, v12")
    a("s_lshl_b32 s33, s23, 5")
    a("s_lshl_b32 s36, s22, 1")
    a("s_add_u32 s33, s33, s36")
    a("s_add_u32 s33, s33, s24")
    a("s_mul_i32 s33, s33, 18432")
    if ZIMG: a("s_add_u32 s33, s33, 0x%x" % ZIMG)
    a("s_mul_i32 s36, s25, 9216")
    a("s_add_u32 s37, s33, s36")
    a("s_xor_b32 s36, s36, 9216")
    a("s_add_u32 s38, s33, s36")
    a("s_add_u32 s39, s37, 128")
    a("s_mul_i32 s36, s25, 160")
    a("s_add_u32 s37, s37, s36")
    a("s_add_u32 s38, s38, s36")
    def norm_pair(nA, ttA, nB, ttB, O):
        for q, (n, tt) in enumerate(((nA, ttA), (nB, ttB))):
            for d in range(2):
                z = ZP + 2 * n + d; t = T + 4 * q + 2 * d
                a("v_lshlrev_b32 v%d, 16, v%d" % (t, z))
                a("v_and_b32 v%d, 0xffff0000, v%d" % (t + 1, z))
        for q, (n, tt) in enumerate(((nA, ttA), (nB, ttB))):
            for d in range(2):
                t = T + 4 * q + 2 * d
                a("v_pk_fma_f32 %s, %s, %s, %s op_sel:[0,0,1] op_sel_hi:[1,0,1]" % (vr(t, 2), vr(t, 2), vr(MR + 2 * tt, 2), vr(MR + 2 * tt, 2)))
        for q in range(2):
            for d in range(2):
                t = T + 4 * q + 2 * d
                a("v_cvt_pk_bf16_f32 v%d, v%d, v%d" % (O + 2 * q + d, t, t + 1))
        a("s_nop 1")
        a("v_permlane16_swap_b32 v%d, v%d" % (O, O + 2))
        a("v_permlane16_swap_b32 v%d, v%d" % (O + 1, O + 3))
    cnt = 0
    for pr in range(2):
        for tt in range(4):
            O = 112 + 4 * cnt; cnt += 1
            norm_pair(tidx(2 * pr, tt), tt, tidx(2 * pr + 1, tt), tt, O)
            a("s_nop 0")
            a("buffer_store_dwordx4 %s, v13, s[12:15], s%d offen offset:%d" % (vr(O), 37 if tt < 2 else 38, (tt & 1) * 2304 + 64 * pr))
    O = 112 + 4 * cnt
    norm_pair(16, 0, 17, 1, O)
    a("s_nop 0")
    a("buffer_store_dwordx4 %s, v9, s[12:15], s39 offen" % vr(O))
    seg_end(a, name)
    a.label("%s_fin" % name)
    stamp(a, 7)
    a("s_waitcnt vmcnt(0)")
    stamp(a, 8)
    a.label("%s_end" % name)
    a("s_endpgm")
    return a.text(), kernel_desc(name, 256, 256), (name, 256, 512, LDSB)

def gen_k1g(name="k1_kernel"):
    a = Asm()
    DBG.add('nowarm')
    TS = 16384; NT = 3; TB0 = 4096; FB_ = TB0 + NT * TS; FSL = 18432; NF = 6; FS = 576; NK = 18
    LDSB = FB_ + NF * FSL; RST = 0; CSO = 1024; CJB = TB0 + 4 * 18432
    kernel_begin(a, name)
    a("s_load_dwordx2 s[80:81], s[0:1], 0")
    a("s_load_dwordx2 s[4:5], s[0:1], 56")
    a("s_cmp_ge_u32 s2, 256")
    a("s_cbranch_scc1 %s_end" % name)
    a("v_lshrrev_b32 v1, 6, v0")
    a("v_and_b32 v2, 63, v0")
    a("v_readfirstlane_b32 s3, v1")
    a("s_and_b32 s20, s2, 7")
    a("s_lshr_b32 s21, s2, 3")
    a("s_and_b32 s22, s20, 1")
    a("s_lshl_b32 s22, s22, 3")
    a("s_and_b32 s23, s21, 7")
    a("s_add_u32 s22, s22, s23")
    a("s_lshr_b32 s21, s21, 3")
    a("s_lshr_b32 s23, s20, 1")
    a("s_lshl_b32 s23, s23, 2")
    a("s_add_u32 s23, s23, s21")
    a("s_mov_b32 s99, 0")
    a("s_mov_b64 s[96:97], -1")
    a("s_cmp_lt_u32 s3, 4")
    a("s_cbranch_scc1 %s_consumer" % name)
    a("s_setprio 3")
    a("s_sub_u32 s3, s3, 4")
    a("v_lshrrev_b32 v3, 3, v2")
    a("v_and_b32 v4, 7, v2")
    VT = 16; VF = 20
    a("s_lshl_b32 s24, s3, 5")
    a("v_add_u32 v5, s24, v3")
    a("v_lshrrev_b32 v7, 4, v2")
    a("v_xor_b32 v7, v7, v4")
    a("v_mul_u32_u24 v6, 1152, v5")
    a("v_lshl_add_u32 v%d, v7, 4, v6" % VT)
    a("v_xor_b32 v%d, 64, v%d" % (VT + 1, VT))
    a("v_add_u32 v%d, %d, v%d" % (VT + 1, 9216 - 1024, VT + 1))
    a("v_add_u32 v%d, %d, v%d" % (VT + 2, 2 * (9216 - 1024), VT))
    a("v_add_u32 v%d, %d, v%d" % (VT + 3, 2 * (9216 - 1024), VT + 1))
    a("s_mul_i32 s26, s22, %d" % (128 * 1152))
    a("s_lshl_b32 s24, s3, 12")
    a("s_add_u32 s24, s24, %d" % TB0)
    a("s_mov_b32 s33, 0")
    a("s_waitcnt lgkmcnt(0)")
    srd(a, 28, 80, 2048 * 576 * 2)
    vm = VmTracker(a)
    def capture(f, *args):
        lb = len(a.lines); f(*args); out = a.lines[lb:]; del a.lines[lb:]; return out
    def issueT(m, part=None):
        a("s_add_u32 s35, s33, s24")
        a("s_mov_b32 m0, s35")
        if part != 0: a("s_add_u32 s33, s33, %d" % TS)
        else: a("s_nop 0")
        ns = range(4) if part is None else range(2 * part, 2 * part + 2)
        for n in ns:
            if "nodma" not in DBG: a("buffer_load_dwordx4 v%d, s[28:31], s26 offen offset:%d lds" % (VT + n, 1024 * n))
        if part != 0:
            a("s_add_u32 s26, s26, 128")
            a("s_cmp_eq_u32 s33, %d" % (NT * TS))
            a("s_cselect_b32 s33, 0, s33")
        vm.issue("T%d" % m if part != 0 else "Ta%d" % m, len(ns))
    issueT(0)
    srd(a, 8, 4, 576 * 4608 * 2)
    for n in range(5):
        if n: a("v_add_u32 v6, %d, v2" % (64 * n))
        src = "v6" if n else "v2"
        a("v_mul_u32_u24 v7, 1821, %s" % src)
        a("v_lshrrev_b32 v7, 16, v7")
        a("v_mul_u32_u24 v8, 36, v7")
        a("v_sub_u32 v8, %s, v8" % src)
        a("v_bfe_u32 v9, v7, 2, 1")
        a("v_lshlrev_b32 v6, 1, v9")
        a("v_xor_b32 v8, v8, v6")
        a("v_and_b32 v7, 3, v7")
        a("v_lshl_add_u32 v7, v9, 3, v7")
        a("v_mul_u32_u24 v7, 9216, v7")
        a("v_cmp_gt_u32 vcc, 18, v8")
        a("v_lshl_add_u32 v7, v8, 4, v7")
        a("v_mov_b32 v9, 4608")
        a("v_cndmask_b32 v9, -288, v9, vcc") if False else None
        a("v_mov_b32 v6, 0xfffffee0")
        a("v_cndmask_b32 v9, v6, v9, vcc")
        a("v_add_u32 v%d, v7, v9" % (VF + n))
        if 0 < n < 4: a("v_subrev_u32 v%d, %d, v%d" % (VF + n, 1024 * n, VF + n))
    a("s_and_b32 s36, s3, 1")
    a("s_lshl_b32 s36, s36, 4")
    a("s_lshr_b32 s37, s3, 1")
    a("s_lshl_b32 s37, s37, 2")
    a("s_add_u32 s36, s36, s37")
    a("s_mul_i32 s27, s36, 9216")
    a("s_mul_i32 s36, s23, 288")
    a("s_add_u32 s27, s27, s36")
    a("s_mul_i32 s25, s3, 4608")
    a("s_add_u32 s25, s25, %d" % FB_)
    a("s_mov_b32 s34, 0")
    def issueF(k):
        a("s_add_u32 s35, s34, s25")
        a("s_mov_b32 m0, s35")
        a("s_add_u32 s36, s35, 4096")
        for n in range(4):
            if "nodma" not in DBG: a("buffer_load_dwordx4 v%d, s[8:11], s27 offen offset:%d lds" % (VF + n, 1024 * n))
        a("s_mov_b32 m0, s36")
        a("s_mov_b64 exec, 0xffffffff")
        if "nodma" not in DBG: a("buffer_load_dwordx4 v%d, s[8:11], s27 offen lds" % (VF + 4))
        a("s_mov_b64 exec, -1")
        a("s_add_u32 s27, s27, %d" % (32 * 9216))
        a("s_add_u32 s34, s34, %d" % FSL)
        a("s_cmp_eq_u32 s34, %d" % (NF * FSL))
        a("s_cselect_b32 s34, 0, s34")
        vm.issue("F%d" % k, 5)
    issueF(0); issueF(1)
    def other_setup():
        a("s_load_dwordx2 s[6:7], s[0:1], 104")
        a("s_load_dwordx2 s[18:19], s[0:1], 96")
        a("s_waitcnt lgkmcnt(0)")
        srd(a, 12, 6, WS_BYTES)
        srd(a, 60, 18, 256)
    def prep_srds():
        srd(a, 68, 66, 2048 * 576 * 2)
        a("s_mov_b32 s88, s64"); a("s_mov_b32 s89, s65")
        srd(a, 64, 88, 2048 * 576 * 2)
        srd(a, 72, 76, 576 * 8)
        srd(a, 76, 100, 2304 * 576 * 2)
    other_setup()
    a("s_add_u32 s3, s3, 4"); stamp_setup(a, 1); stamp(a, 0); a("s_sub_u32 s3, s3, 4")
    a("s_load_dwordx4 s[64:67], s[0:1], 8")
    a("s_load_dwordx2 s[76:77], s[0:1], 24")
    a("s_load_dwordx2 s[100:101], s[0:1], 80")
    a("s_waitcnt lgkmcnt(0)")
    prep_srds()
    SS = [28, 30, 32, 34]; ONE = 36
    for r in range(28, 36): a("v_mov_b32 v%d, 0" % r)
    for r in range(ONE, ONE + 4): a("v_mov_b32 v%d, 0x3f803f80" % r)
    CA = 40
    for r in range(CA, CA + 20): a("v_mov_b32 v%d, 0" % r)
    XB = 64; CF = 80
    a("v_and_b32 v5, 15, v2")
    a("v_lshrrev_b32 v6, 4, v2")
    a("v_lshrrev_b32 v7, 1, v5")
    a("v_xor_b32 v6, v6, v7")
    a("v_lshlrev_b32 v6, 4, v6")
    a("v_lshl_add_u32 v6, v5, 7, v6")
    a("v_add_u32 v10, s24, v6")
    a("v_xor_b32 v26, 64, v10")
    RA = 112
    for r in range(RA, RA + 16): a("v_mov_b32 v%d, 0" % r)
    a("v_lshrrev_b32 v11, 2, v2")
    a("v_mul_u32_u24 v11, %d, v11" % FS)
    a("v_and_b32 v12, 3, v2")
    a("v_lshl_add_u32 v11, v12, 3, v11")
    a("v_bfe_u32 v13, v2, 4, 1")
    a("v_lshlrev_b32 v13, 5, v13")
    a("s_lshr_b32 s36, s3, 1")
    a("s_mul_i32 s37, s36, 9")
    a("s_and_b32 s38, s3, 1")
    a("s_lshl_b32 s38, s38, 2")
    a("s_add_u32 s37, s37, s38")
    a("s_lshl_b32 s40, s37, 6")
    a("s_lshl_b32 s37, s37, 5")
    a("s_add_u32 s37, s37, %d" % FB_)
    a("v_add_u32 v11, s37, v11")
    a("v_add_u32 v5, v11, v13")
    a("v_sub_u32 v6, v11, v13")
    a("s_cmp_eq_u32 s36, 0")
    a("s_cselect_b64 vcc, -1, 0")
    a("v_cndmask_b32 v11, v6, v5, vcc")
    a("v_cndmask_b32 v12, v5, v6, vcc")
    def rowstats_rd(ks):
        a("v_add_u32 v5, %d, v%d" % (((ks // 2) % NT) * TS, 26 if ks & 1 else 10))
        for n in range(2):
            a("ds_read_b128 %s, v5 offset:%d" % (vr(XB + 4 * n), 2048 * n))
    def rowstats_do():
        for n in range(2):
            a("v_mfma_f32_16x16x32_bf16 %s, %s, %s, %s" % (vr(RA + 4 * n), vr(ONE), vr(XB + 4 * n), vr(RA + 4 * n)))
            a("v_mfma_f32_16x16x32_bf16 %s, %s, %s, %s" % (vr(RA + 8 + 4 * n), vr(XB + 4 * n), vr(XB + 4 * n), vr(RA + 8 + 4 * n)))
    def colsum_rd(k):
        if "nocs" in DBG: return
        a("v_add_u32 v6, %d, v11" % ((k % NF) * FSL))
        a("v_add_u32 v7, %d, v12" % ((k % NF) * FSL))
        for q in range(5):
            for half in range(2):
                a("ds_read_b64_tr_b16 %s, v%d offset:%d" % (vr(CF + 4 * q + 2 * half, 2), 6 + (q & 1), 16 * half * FS + 32 * q))
    def colsum_do():
        if "nocs" in DBG: return
        for q in range(5):
            a("v_mfma_f32_16x16x32_bf16 %s, %s, %s, %s" % (vr(CA + 4 * q), vr(CF + 4 * q), vr(ONE), vr(CA + 4 * q)))
    vm.wait(["T0", "F0"])
    a("s_barrier")
    stamp(a, 1)
    colsum_rd(0); rowstats_rd(0)
    issueT(1); issueF(2); issueF(3)
    vm.wait(["F1"])
    a("s_barrier")
    for k in range(NK):
        dma = []
        if k == 0:
            dma += capture(issueF, 4) + capture(issueT, 2) + capture(issueF, 5)
        if k >= 1 and k + 5 < NK: dma += capture(issueF, k + 5)
        if k % 2 == 1 and (k - 1) // 2 + 3 < 9: dma += capture(issueT, (k - 1) // 2 + 3, 0)
        if k % 2 == 0 and k >= 2 and (k - 2) // 2 + 3 < 9: dma += capture(issueT, (k - 2) // 2 + 3, 1)
        comp = capture(colsum_do) + capture(rowstats_do)
        groups = []; cur = []
        for l in dma:
            cur.append(l)
            if "buffer_load" in l and "exec" not in "".join(cur[-2:-1]):
                groups.append(cur); cur = []
        if cur: groups.append(cur)
        nslots = max(1, len(groups) - 1)
        per = (len(comp) + nslots - 1) // nslots if comp else 0
        waited = False
        for gi, g in enumerate(groups):
            a.lines.extend(g)
            if comp and not any("exec, 0xffffffff" in x for x in g[-2:]):
                if not waited:
                    a("s_waitcnt lgkmcnt(0)"); waited = True
                a.lines.extend(comp[:per]); comp = comp[per:]
        if not waited: a("s_waitcnt lgkmcnt(0)")
        a.lines.extend(comp)
        if k + 1 < NK:
            colsum_rd(k + 1); rowstats_rd(k + 1)
            if "fine" in DBG:
                G.stamp_seq(a); vm.issue("st", 1)
            vm.wait(["F%d" % (k + 2), "T%d" % ((k + 2) // 2)])
            if "fine" in DBG:
                G.stamp_seq(a); vm.issue("st", 1)
            a("s_barrier")
    a("s_nop 7")
    a("v_and_b32 v5, 15, v2")
    a("v_lshrrev_b32 v6, 4, v2")
    a("v_lshrrev_b32 v7, 2, v5")
    a("v_and_b32 v8, 3, v5")
    for n in range(2):
        G_ = RA + 8 + 4 * n
        for r in range(1, 4):
            a("v_cmp_eq_u32 vcc, %d, v8" % r)
            a("s_nop 1")
            a("v_cndmask_b32 v%d, v%d, v%d, vcc" % (G_, G_, G_ + r))
    ML = 64
    for n in range(2):
        emit_ln_finish(a, RA + 4 * n, RA + 8 + 4 * n, 576, ML + 2 * n, ML + 2 * n + 1, 76)
        a("v_mov_b32 v%d, v%d" % (29 + 2 * n, ML + 2 * n + 1))
        a("v_sub_f32 v%d, 0, v%d" % (28 + 2 * n, ML + 2 * n))
    a("s_lshl_b32 s35, s3, 8")
    a("v_lshlrev_b32 v9, 3, v5")
    a("v_add_u32 v12, s35, v9")
    a("v_cmp_eq_u32 vcc, v6, v7")
    a("s_and_saveexec_b64 s[36:37], vcc")
    for n in range(2):
        a("ds_write_b64 v12, %s offset:%d" % (vr(28 + 2 * n, 2), RST + 128 * n))
    a("s_mov_b64 exec, s[36:37]")
    a("s_cmp_lg_u32 s23, 0")
    a("s_cbranch_scc1 %s_nost1" % name)
    a("s_lshl_b32 s35, s22, 7")
    a("s_lshl_b32 s36, s3, 5")
    a("s_add_u32 s35, s35, s36")
    a("s_lshl_b32 s35, s35, 3")
    a("s_add_u32 s35, s35, 0x%x" % STATS1)
    a("v_mov_b32 v7, 0x7ffffff0")
    a("v_cndmask_b32 v9, v7, v9, vcc")
    for n in range(2):
        a("buffer_store_dwordx2 %s, v9, s[12:15], s35 offen offset:%d" % (vr(ML + 2 * n, 2), 128 * n))
    a.label("%s_nost1" % name)
    a("v_lshrrev_b32 v12, 4, v2")
    a("v_lshlrev_b32 v12, 4, v12")
    a("v_add_u32 v12, s40, v12")
    a("v_and_b32 v13, 15, v2")
    a("v_cmp_eq_u32 vcc, 0, v13")
    a("s_and_saveexec_b64 s[36:37], vcc")
    for q in range(5):
        a("ds_write_b128 v12, %s offset:%d" % (vr(CA + 4 * q), CSO + 64 * q))
    a("s_mov_b64 exec, s[36:37]")
    a("s_waitcnt lgkmcnt(0)")
    a("s_barrier")
    ACC = 112
    a("s_lshr_b32 s24, s3, 1")
    a("s_and_b32 s25, s3, 1")
    a("v_and_b32 v3, 15, v2")
    a("s_mov_b32 s98, 1")
    a("s_lshl_b32 s36, s3, 14")
    a("s_add_u32 s36, s36, %d" % TB0)
    a("v_lshlrev_b32 v10, 4, v2")
    a("v_add_u32 v11, s36, v10")
    a("s_barrier")
    n_ = 0
    for z in range(2):
        for ft in range(4):
            for tt in range(2):
                a("ds_read_b128 %s, v11 offset:%d" % (vr(ACC + 72 * z + 4 * tidx(ft, tt)), 1024 * n_))
                n_ += 1
                if n_ in (8, 13): a("s_waitcnt lgkmcnt(4)")
    a("s_branch %s_epi" % name)

    def gran_addr():
        a("v_lshrrev_b32 v10, 4, v2")
        a("s_lshl_b32 s33, s25, 1")
        a("v_add_u32 v11, s33, v10")
        a("v_and_b32 v11, 3, v11")
        a("v_lshl_add_u32 v11, v11, 4, v3")
        a("v_lshlrev_b32 v94, 8, v11")
        a("s_lshl_b32 s59, s22, 7")
        a("s_lshl_b32 s36, s24, 6")
        a("s_add_u32 s59, s59, s36")
        a("s_lshl_b32 s59, s59, 8")
        a("s_add_u32 s59, s59, 0x%x" % STATS2)
        a("s_lshl_b32 s36, s23, 1")
        a("s_add_u32 s36, s36, s25")
        a("s_lshl_b32 s36, s36, 3")
        a("s_add_u32 s58, s36, s59")
    a.label("%s_consumer" % name)
    a("s_load_dwordx4 s[64:67], s[0:1], 8")
    a("s_load_dwordx2 s[76:77], s[0:1], 24")
    a("s_load_dwordx2 s[100:101], s[0:1], 80")
    a("s_lshr_b32 s24, s3, 1")
    a("s_and_b32 s25, s3, 1")
    a("v_and_b32 v3, 15, v2")
    other_setup()
    srd(a, 28, 80, 2048 * 576 * 2)
    srd(a, 8, 4, 576 * 4608 * 2)
    if "nopf" not in DBG:
        a("s_and_b32 s36, s22, 7")
        a("s_mul_i32 s36, s36, 72")
        a("s_mul_i32 s37, s3, 18")
        a("s_add_u32 s36, s36, s37")
        a("s_mul_i32 s36, s36, 9216")
        a("s_mul_i32 s37, s23, 288")
        a("s_add_u32 s36, s36, s37")
        a("s_and_b32 s36, s36, 0xffffff80")
        a("v_lshrrev_b32 v10, 2, v2")
        a("v_mul_u32_u24 v10, 9216, v10")
        a("v_and_b32 v11, 3, v2")
        a("v_lshl_add_u32 v10, v11, 7, v10")
        a("v_and_b32 v12, 7, v2")
        a("v_lshrrev_b32 v12, 2, v12")
        a("v_mul_u32_u24 v12, 9216, v12")
        a("v_lshl_add_u32 v12, v11, 7, v12")
        a("s_add_u32 s37, s36, 4608")
        a("s_add_u32 s38, s36, %d" % (16 * 9216))
        a("s_add_u32 s39, s37, %d" % (16 * 9216))
        a("buffer_load_dword v96, v10, s[8:11], s37 offen")
        a("buffer_load_dword v96, v10, s[8:11], s36 offen")
        a("buffer_load_dword v96, v12, s[8:11], s39 offen")
        a("buffer_load_dword v96, v12, s[8:11], s38 offen")
        a("s_lshr_b32 s36, s2, 6")
        a("s_lshl_b32 s36, s36, 5")
        a("s_lshl_b32 s37, s22, 7")
        a("s_add_u32 s36, s36, s37")
        a("s_mul_i32 s36, s36, 1152")
        a("s_mul_i32 s37, s3, 9216")
        a("s_add_u32 s36, s36, s37")
        a("v_lshlrev_b32 v11, 7, v2")
        a("buffer_load_dword v96, v11, s[28:31], s36 offen")
        a("v_and_b32 v11, 7, v2")
        a("v_lshlrev_b32 v11, 7, v11")
        a("s_add_u32 s36, s36, 8192")
        a("buffer_load_dword v96, v11, s[28:31], s36 offen")
    prep_srds()
    if "nopf2" not in DBG:
        a("s_lshl_b32 s41, s2, 1")
        a("s_add_u32 s41, s41, s24")
        a("s_cmp_ge_u32 s41, 288")
        a("s_cbranch_scc1 %s_nopf2" % name)
        a("s_mul_hi_u32 s36, s41, 0x%x" % ((2**32 + 8) // 9))
        a("s_mul_i32 s37, s36, 9")
        a("s_sub_u32 s37, s41, s37")
        a("s_mul_i32 s36, s36, %d" % (64 * 1152))
        a("s_lshl_b32 s37, s37, 7")
        a("s_add_u32 s36, s36, s37")
        a("v_mul_u32_u24 v10, 1152, v2")
        a("s_cmp_eq_u32 s25, 0")
        a("s_cbranch_scc1 %s_pfk" % name)
        a("buffer_load_dword v96, v10, s[68:71], s36 offen")
        a("s_branch %s_nopf2" % name)
        a.label("%s_pfk" % name)
        a("buffer_load_dword v96, v10, s[64:67], s36 offen")
        a.label("%s_nopf2" % name)
        a("s_mul_i32 s36, s2, 10368")
        a("s_mul_i32 s37, s3, 2688")
        a("s_add_u32 s36, s36, s37")
        a("v_min_u32 v10, 20, v2")
        a("v_lshlrev_b32 v10, 7, v10")
        a("buffer_load_dword v96, v10, s[76:79], s36 offen")
    stamp_setup(a, 1); stamp(a, 0)
    a("s_mov_b32 s98, 0")
    gran_addr()
    a("v_mov_b32 v12, 0"); a("v_mov_b32 v13, 0x80000000")
    a("buffer_store_dwordx2 v[12:13], v94, s[12:15], s58 offen sc1")
    TB = [16, 32]; FR = 48
    vTa, vTb, vP = 4, 5, [6, 7]; vH = [8, 9]
    bTa = [88, 89]; bTb = [90, 91]; bP = [92, 93]; bH = [100, 101]
    PF = 96
    a("v_lshrrev_b32 v10, 4, v2")
    a("v_lshrrev_b32 v11, 1, v3")
    a("v_xor_b32 v10, v10, v11")
    a("v_lshlrev_b32 v10, 4, v10")
    a("v_lshl_add_u32 v10, v3, 7, v10")
    a("s_lshl_b32 s26, s24, 13")
    a("s_add_u32 s26, s26, %d" % TB0)
    a("v_add_u32 v10, s26, v10")
    a("s_lshl_b32 s26, s25, 12")
    a("v_add_u32 v%d, s26, v10" % bTa[0])
    a("s_xor_b32 s26, s26, 4096")
    a("v_add_u32 v%d, s26, v10" % bTb[0])
    a("v_xor_b32 v%d, 64, v%d" % (bTa[1], bTa[0]))
    a("v_xor_b32 v%d, 64, v%d" % (bTb[1], bTb[0]))
    a("v_lshrrev_b32 v10, 2, v2")
    a("v_mul_u32_u24 v10, %d, v10" % FS)
    a("v_and_b32 v11, 3, v2")
    a("v_lshl_add_u32 v10, v11, 3, v10")
    a("v_add_u32 v10, %d, v10" % FB_)
    a("v_bfe_u32 v13, v2, 4, 1")
    a("v_lshlrev_b32 v13, 5, v13")
    a("v_add_u32 v%d, v10, v13" % bH[0])
    a("v_sub_u32 v%d, v10, v13" % bH[1])
    a("s_mul_i32 s26, s25, 160")
    a("s_cmp_eq_u32 s25, 0")
    a("s_cselect_b64 vcc, -1, 0")
    a("v_cndmask_b32 v11, v%d, v%d, vcc" % (bH[1], bH[0]))
    a("v_cndmask_b32 v12, v%d, v%d, vcc" % (bH[0], bH[1]))
    a("v_add_u32 v%d, s26, v11" % bP[0])
    a("v_add_u32 v%d, s26, v12" % bP[1])
    a("v_lshrrev_b32 v10, 4, v2")
    a("v_lshlrev_b32 v10, 12, v10")
    a("v_lshl_add_u32 v95, v3, 4, v10")
    a("s_lshl_b32 s41, s22, 7")
    a("s_lshl_b32 s36, s3, 5")
    a("s_add_u32 s41, s41, s36")
    a("s_lshl_b32 s41, s41, 12")
    a("s_lshl_b32 s36, s23, 8")
    a("s_add_u32 s41, s41, s36")
    for r in range(ACC, ACC + 144): a("v_mov_b32 v%d, 0" % r)
    def accr(z, ft, tt): return ACC + 72 * z + 4 * tidx(ft, tt)
    def Fr(z, ft): return FR + 20 * z + 4 * ft
    trk = LdsTracker(a)
    def treads(buf):
        L = []
        for tt in range(4):
            r = TB[buf] + 4 * tt
            L.append(("ds_read_b128 %s, v%d offset:%d" % (vr(r), vTa if tt < 2 else vTb, (tt & 1) * 2048), range(r, r + 4)))
        return L
    def freads(z, ft):
        r = Fr(z, ft); L = []
        for half in range(2):
            off = 16 * half * FS + 32 * (9 * z + ft)
            v = vP[(z + ft) & 1] if ft < 4 else vH[z]
            L.append(("ds_read_b64_tr_b16 %s, v%d offset:%d" % (vr(r + 2 * half, 2), v, off), range(r + 2 * half, r + 2 * half + 2)))
        return L
    def rd(t):
        a(t[0]); trk.issue(t[1])
    fpairs = ((vP[0], bP[0]), (vP[1], bP[1]), (vH[0], bH[0]), (vH[1], bH[1]))
    a("v_mov_b32 v%d, v%d" % (vTa, bTa[0])); a("v_mov_b32 v%d, v%d" % (vTb, bTb[0]))
    for d, s_ in fpairs: a("v_mov_b32 v%d, v%d" % (d, s_))
    a("s_mov_b32 s27, 0")
    a("s_mov_b32 s34, 0")
    a("s_mov_b32 s33, 0")
    stamp(a, 1)
    a("s_barrier")
    stamp(a, 2)
    for t in treads(0): rd(t)
    for z in range(2):
        for ft in range(5):
            for t in freads(z, ft): rd(t)
            if len(trk.out) >= 12: trk.drain()
    trk.drain()
    def iteration(par):
        G.stamp_seq(a)
        if "fine" in DBG: trk.out = []
        a("s_barrier")
        upd = []
        if par == 1:
            upd += ["s_add_u32 s27, s27, %d" % TS, "s_cmp_eq_u32 s27, %d" % (NT * TS), "s_cselect_b32 s27, 0, s27"]
        upd += ["v_add_u32 v%d, s27, v%d" % (vTa, bTa[1 - par]), "v_add_u32 v%d, s27, v%d" % (vTb, bTb[1 - par])]
        upd += ["s_add_u32 s34, s34, %d" % FSL, "s_cmp_eq_u32 s34, %d" % (NF * FSL), "s_cselect_b32 s34, 0, s34"]
        upd += ["v_add_u32 v%d, s34, v%d" % (d, s_) for d, s_ in fpairs]
        pend = [("x", u) for u in upd] + [("r", t) for t in treads(1 - par)]
        if par == 0:
            pass
        else:
            pend.append(("x", "s_add_u32 s33, s33, 1"))
        nm = 0
        for z in range(2):
            for ft in range(5):
                for tt in range(4 if ft < 4 else 2):
                    c = accr(z, ft, tt); A = Fr(z, ft); B = TB[par] + 4 * tt
                    trk.need(list(range(A, A + 4)) + list(range(B, B + 4)))
                    if "nomfma" not in DBG: a("v_mfma_f32_16x16x32_bf16 %s, %s, %s, %s" % (vr(c), vr(A), vr(B), vr(c)))
                    nfill = 1
                    while pend and nfill:
                        k, t = pend.pop(0)
                        if k == "x":
                            a(t)
                            if t.startswith("s_") and nm < 8: continue
                        else: rd(t)
                        nfill -= 1
                    nm += 1
                pend += [("r", t) for t in freads(z, ft)]
        for k, t in pend:
            if k == "x": a(t)
            else: rd(t)
        a("s_waitcnt lgkmcnt(15)")
        if len(trk.out) > 15: trk.out = trk.out[-15:]
    a.label("%s_cloop" % name)
    trk.out = []
    lb = len(a.lines)
    iteration(0); iteration(1)
    state = copy.deepcopy(trk.out)
    del a.lines[lb:]
    trk.out = copy.deepcopy(state)
    iteration(0); iteration(1)
    assert [sorted(x) for x in trk.out] == [sorted(x) for x in state]
    a("s_cmp_lt_u32 s33, %d" % (NK // 2))
    a("s_cbranch_scc1 %s_cloop" % name)
    trk.drain()
    stamp(a, 3)
    a("s_waitcnt vmcnt(0)")
    a("s_barrier")
    a("s_cmp_lg_u32 s3, 0")
    a("s_cbranch_scc1 %s_nosig" % name)
    a("v_mov_b32 v10, 1")
    a("s_lshl_b32 s36, s22, 2")
    a("v_mov_b32 v11, s36")
    a("s_mov_b64 exec, 1")
    a("buffer_atomic_add v10, v11, s[60:63], 0 offen sc1")
    a("s_mov_b64 exec, -1")
    a.label("%s_nosig" % name)
    a("s_lshl_b32 s36, s3, 14")
    a("s_add_u32 s36, s36, %d" % TB0)
    a("v_lshlrev_b32 v10, 4, v2")
    a("v_add_u32 v11, s36, v10")
    n_ = 0
    for z in range(2):
        for ft in range(4):
            for tt in range(2):
                a("ds_write_b128 v11, %s offset:%d" % (vr(accr(z, ft, tt + 2)), 1024 * n_))
                n_ += 1
                if n_ in (8, 13): a("s_waitcnt lgkmcnt(4)")
    a("s_waitcnt lgkmcnt(0)")
    a("s_barrier")
    a.label("%s_epi" % name)
    MR = 100; CS = 52; T = 72; ZP1 = 16
    ZP2 = lambda n: 192 + 16 * (n >> 2) + 2 * (n & 3)
    ZP1f = lambda n: 184 + 16 * (n >> 1) + 2 * (n & 1)
    gelu_consts(a)
    a("s_xor_b32 s52, s98, s25")
    a("s_lshl_b32 s36, s24, 9")
    a("s_lshl_b32 s37, s52, 8")
    a("s_add_u32 s38, s36, s37")
    a("v_lshlrev_b32 v10, 3, v3")
    a("v_add_u32 v11, s38, v10")
    a("ds_read_b64 %s, v11 offset:%d" % (vr(MR, 2), RST))
    a("ds_read_b64 %s, v11 offset:%d" % (vr(MR + 2, 2), RST + 128))
    a("v_lshrrev_b32 v10, 4, v2")
    a("v_lshlrev_b32 v4, 4, v10")
    a("s_mul_i32 s36, s25, 320")
    a("v_add_u32 v5, s36, v4")
    def cs_loads(z):
        for ft in range(4):
            a("ds_read_b128 %s, v5 offset:%d" % (vr(CS + 4 * ft), CSO + 576 * z + 64 * ft))
        a("ds_read_b128 %s, v4 offset:%d" % (vr(CS + 16), CSO + 576 * z + 256))
    a("s_waitcnt lgkmcnt(6)")
    cs_loads(0)
    S = [108, 110]; Q = [109, 111]
    for r_ in range(108, 112): a("v_mov_b32 v%d, 0" % r_)
    a("v_mov_b32 v88, 0x3f803f80")
    a("s_waitcnt lgkmcnt(0)")
    def gelu_z(z, ZP, stats):
        def dots(lst):
            if not stats: return
            for d in range(2):
                for (ft, tt) in lst:
                    p = ZP(2 * ft + tt) + d
                    a("v_dot2_f32_bf16 v%d, v%d, v88, v%d" % (S[tt], p, S[tt]))
                    a("v_dot2_f32_bf16 v%d, v%d, v%d, v%d" % (Q[tt], p, p, Q[tt]))
        for f0 in (0, 2):
            lst = [(ft, tt) for ft in (f0, f0 + 1) for tt in range(2)]
            emit_fold_gelu(a, [(ACC + 72 * z + 4 * tidx(ft, tt), CS + 4 * ft, MR + 2 * tt, ZP(2 * ft + tt)) for ft, tt in lst], T)
            dots(lst)
        a("s_cmp_lg_u32 s98, 0")
        a("s_cbranch_scc1 %s_nohalf%d" % (name, z))
        lst = [(4, 0), (4, 1)]
        emit_fold_gelu(a, [(ACC + 72 * z + 4 * tidx(ft, tt), CS + 4 * ft, MR + 2 * tt, ZP(2 * ft + tt)) for ft, tt in lst], T)
        dots(lst)
        a.label("%s_nohalf%d" % (name, z))
    gelu_z(0, ZP2, True)
    cs_loads(1)
    a("s_nop 1")
    emit_xg_reduce(a, S + Q, 72)
    a("s_lshl_b32 s59, s22, 7")
    a("s_lshl_b32 s36, s24, 6")
    a("s_add_u32 s59, s59, s36")
    a("s_lshl_b32 s36, s52, 5")
    a("s_add_u32 s59, s59, s36")
    a("s_lshl_b32 s59, s59, 8")
    a("s_add_u32 s59, s59, 0x%x" % STATS2)
    a("s_lshl_b32 s36, s23, 1")
    a("s_add_u32 s36, s36, s25")
    a("s_lshl_b32 s36, s36, 3")
    a("s_add_u32 s58, s36, s59")
    a("v_lshlrev_b32 v11, 8, v2")
    a("v_cmp_gt_u32 vcc, 32, v2")
    a("v_mov_b32 v12, 0x7ffffff0")
    a("v_cmp_eq_u32 s[36:37], 1, v10")
    a("v_cndmask_b32 v11, v12, v11, vcc")
    a("s_nop 0")
    a("v_cndmask_b32 v108, v108, v110, s[36:37]")
    a("v_cndmask_b32 v109, v109, v111, s[36:37]")
    a("v_and_b32 v109, 0x7fffffff, v109")
    a("buffer_store_dwordx2 v[108:109], v11, s[12:15], s58 offen sc1")
    a("s_setprio 0")
    stamp(a, 4)
    a("s_lshl_b32 s42, s2, 1")
    a("s_add_u32 s42, s42, s98")
    a("v_and_b32 v0, 255, v0")
    emit_wot_loads(a, 136, 144)
    a("s_mov_b32 s41, s42")
    a("s_cmp_ge_u32 s41, 288")
    a("s_cbranch_scc1 %s_nokv1" % name)
    emit_kv_loads(a, 112, 124, 132, 146, 147)
    a.label("%s_nokv1" % name)
    PB = 148
    a("v_lshrrev_b32 v182, 4, v2")
    a("v_lshlrev_b32 v181, 8, v3")
    a("v_lshl_add_u32 v181, v182, 6, v181")
    a("s_lshl_b32 s33, s22, 2")
    a("v_mov_b32 v182, s33")
    a("s_add_u32 s53, s59, 4096")
    a("buffer_load_dword v180, v182, s[60:63], 0 offen sc1")
    a("s_load_dwordx2 s[90:91], s[0:1], 64")
    a("v_lshrrev_b32 v183, 4, v2")
    a("v_lshlrev_b32 v183, 12, v183")
    a("v_lshl_add_u32 v183, v3, 4, v183")
    a("s_lshl_b32 s82, s22, 7")
    a("s_lshl_b32 s36, s3, 5")
    a("s_add_u32 s82, s82, s36")
    a("s_lshl_b32 s36, s98, 4")
    a("s_add_u32 s82, s82, s36")
    a("s_lshl_b32 s82, s82, 12")
    a("s_lshl_b32 s36, s23, 8")
    a("s_add_u32 s82, s82, s36")
    a("s_waitcnt lgkmcnt(0)")
    srd(a, 92, 90, 2048 * 2048 * 2)
    for n in range(4):
        a("buffer_load_dwordx4 v[92:95], v183, s[92:95], s82 offen")
        if n < 3: a("s_add_u32 s82, s82, 16384")
    a("s_waitcnt lgkmcnt(0)")
    gelu_z(1, ZP1f, False)
    stamp(a, 5)
    a("s_waitcnt vmcnt(0)")
    def gather():
        for tt in range(2):
            for q in range(4):
                a("buffer_load_dwordx4 %s, v181, s[12:15], s%d offen offset:%d sc1" % (vr(PB + 16 * tt + 4 * q), (59, 53)[tt], 16 * q))
    gather()
    a("s_cmp_ge_u32 s41, 288")
    a("s_cbranch_scc1 %s_nokv2" % name)
    for n in range(11): a("v_mov_b32 v%d, v%d" % (16 + n, 112 + n))
    for n in range(8): a("v_mov_b32 v%d, v%d" % (32 + n, 124 + n))
    for n in range(4): a("v_mov_b32 v%d, v%d" % (44 + n, 132 + n))
    a("v_mov_b32 v56, v146"); a("v_mov_b32 v57, v147")
    emit_kv_compute(a, wait=False, store=False)
    a.label("%s_nokv2" % name)
    stamp(a, 6)
    a("s_mov_b32 s43, 0")
    a("v_lshrrev_b32 v10, 4, v2")
    a("s_waitcnt vmcnt(0)")
    a.label("%s_chk" % name)
    a("v_subrev_u32 v11, 16, v180")
    for r in range(PB + 1, PB + 32, 4):
        a("v_or3_b32 v11, v11, v%d, v%d" % (r, r + 2))
    a("v_cmp_gt_i32 vcc, 0, v11")
    a("s_add_u32 s43, s43, 1")
    a("s_cmp_gt_u32 s43, %d" % SPIN_MAX)
    a("s_cbranch_scc1 %s_poll1x" % name)
    a("s_cbranch_vccz %s_poll1x" % name)
    a("s_sleep 24")
    a("buffer_load_dword v180, v182, s[60:63], 0 offen sc1")
    a("s_waitcnt vmcnt(0)")
    gather()
    a("s_waitcnt vmcnt(0)")
    a("s_branch %s_chk" % name)
    a.label("%s_poll1x" % name)
    stamp(a, 7)
    for n in range(2):
        a("buffer_store_dwordx4 %s, v%d, s[12:15], s40 offen" % (vr(136 + 4 * n), 144 + n))
    a("s_cmp_ge_u32 s41, 288")
    a("s_cbranch_scc1 %s_nokv3" % name)
    a("s_mov_b32 s39, 0x%x" % KVT)
    a("buffer_store_dwordx4 v[120:123], v12, s[12:15], s39 offen")
    a("buffer_store_dwordx4 v[124:127], v13, s[12:15], s39 offen")
    a.label("%s_nokv3" % name)
    a("s_lshl_b32 s36, s22, 4")
    a("s_add_u32 s36, s36, s23")
    a("s_lshl_b32 s36, s36, 2")
    a("s_add_u32 s36, s36, s3")
    a("s_mul_i32 s36, s36, 9216")
    a("s_lshl_b32 s37, s98, 10")
    a("s_add_u32 s36, s36, s37")
    a("s_add_u32 s36, s36, 0x%x" % Z1IMG)
    a("s_add_u32 s37, s36, 4096")
    a("s_add_u32 s38, s36, 8192")
    a("v_lshlrev_b32 v11, 4, v2")
    for ft in range(4):
        a("buffer_store_dwordx4 %s, v11, s[12:15], s%d offen offset:%d" % (vr(184 + 16 * ft), 36 + (ft >> 1), (ft & 1) * 2048))
    a("s_cmp_lg_u32 s98, 0")
    a("s_cbranch_scc1 %s_noh1" % name)
    a("buffer_store_dwordx4 %s, v11, s[12:15], s38 offen" % vr(248))
    a.label("%s_noh1" % name)
    for tt in range(2):
        b = PB + 16 * tt
        for st in (8, 4, 2):
            for q in range(0, st, 2):
                a("v_pk_add_f32 %s, %s, %s" % (vr(b + q, 2), vr(b + q, 2), vr(b + q + st, 2)))
    emit_xg_reduce(a, [PB + 16 * tt + e for tt in range(2) for e in range(2)], 72)
    for tt in range(2):
        b = PB + 16 * tt
        emit_ln_finish(a, b, b + 1, 2304, b + 2, MR + 2 * tt, b + 4)
        a("v_mul_f32 v%d, -v%d, v%d" % (MR + 2 * tt + 1, b + 2, MR + 2 * tt))
    a("v_lshrrev_b32 v11, 2, v2"); a("v_and_b32 v11, 1, v11"); a("v_lshlrev_b32 v11, 4, v11")
    a("v_lshrrev_b32 v12, 3, v2"); a("v_and_b32 v12, 1, v12"); a("v_lshl_add_u32 v11, v12, 2, v11")
    a("v_and_b32 v12, 3, v2"); a("v_add_u32 v11, v11, v12")
    a("v_mul_u32_u24 v11, 288, v11")
    a("v_lshrrev_b32 v12, 1, v10"); a("v_lshl_add_u32 v11, v12, 4, v11")
    a("v_and_b32 v12, 1, v10")
    a("v_lshl_add_u32 v13, v12, 5, v11")
    a("v_mul_u32_u24 v12, 2304, v12")
    a("v_add_u32 v9, v11, v12")
    a("s_lshl_b32 s33, s23, 5")
    a("s_lshl_b32 s36, s22, 1")
    a("s_add_u32 s33, s33, s36")
    a("s_add_u32 s33, s33, s24")
    a("s_mul_i32 s33, s33, 18432")
    if ZIMG: a("s_add_u32 s33, s33, 0x%x" % ZIMG)
    a("s_mul_i32 s36, s52, 9216")
    a("s_add_u32 s37, s33, s36")
    a("s_add_u32 s39, s37, 128")
    a("s_mul_i32 s36, s25, 160")
    a("s_add_u32 s37, s37, s36")
    def norm_pair(nA, ttA, nB, ttB, O):
        for q, (n, tt) in enumerate(((nA, ttA), (nB, ttB))):
            for d in range(2):
                z = ZP2(n) + d; t = T + 4 * q + 2 * d
                a("v_lshlrev_b32 v%d, 16, v%d" % (t, z))
                a("v_and_b32 v%d, 0xffff0000, v%d" % (t + 1, z))
        for q, (n, tt) in enumerate(((nA, ttA), (nB, ttB))):
            for d in range(2):
                t = T + 4 * q + 2 * d
                a("v_pk_fma_f32 %s, %s, %s, %s op_sel:[0,0,1] op_sel_hi:[1,0,1]" % (vr(t, 2), vr(t, 2), vr(MR + 2 * tt, 2), vr(MR + 2 * tt, 2)))
        for q in range(2):
            for d in range(2):
                t = T + 4 * q + 2 * d
                a("v_cvt_pk_bf16_f32 v%d, v%d, v%d" % (O + 2 * q + d, t, t + 1))
        a("s_nop 1")
        a("v_permlane16_swap_b32 v%d, v%d" % (O, O + 2))
        a("v_permlane16_swap_b32 v%d, v%d" % (O + 1, O + 3))
    cnt = 0
    for pr in range(2):
        for tt in range(2):
            O = 16 + 4 * cnt; cnt += 1
            norm_pair(2 * (2 * pr) + tt, tt, 2 * (2 * pr + 1) + tt, tt, O)
            a("s_nop 0")
            a("buffer_store_dwordx4 %s, v13, s[12:15], s37 offen offset:%d" % (vr(O), tt * 2304 + 64 * pr))
    a("s_cmp_lg_u32 s98, 0")
    a("s_cbranch_scc1 %s_fin" % name)
    O = 16 + 4 * cnt
    norm_pair(8, 0, 9, 1, O)
    a("s_nop 0")
    a("buffer_store_dwordx4 %s, v9, s[12:15], s39 offen" % vr(O))
    a.label("%s_fin" % name)
    stamp(a, 8)
    G.stamp_rt(a, 1)
    a.label("%s_end" % name)
    a("s_endpgm")
    return a.text(), kernel_desc(name, 256, 256), (name, 256, 512, LDSB)


def gen_k2b(name="k2_kernel", R=4):
    a = Asm()
    SLOT = 34816; TREG = 16384; FS = 288; NST = 32
    kernel_begin(a, name)
    a("s_load_dwordx2 s[4:5], s[0:1], 64")
    a("s_load_dwordx2 s[6:7], s[0:1], 104")
    a("s_load_dwordx4 s[88:91], s[0:1], 32")
    a("s_cmp_ge_u32 s2, 256")
    a("s_cbranch_scc1 %s_end" % name)
    a("v_lshrrev_b32 v1, 6, v0")
    a("v_and_b32 v2, 63, v0")
    a("v_readfirstlane_b32 s3, v1")
    G2.tile_ij(a)
    a("s_cmp_lt_u32 s3, 4")
    a("s_cbranch_scc1 %s_consumer" % name)
    if "noprio" not in DBG: a("s_setprio 3")
    a("s_sub_u32 s3, s3, 4")
    a("v_lshrrev_b32 v3, 3, v2")
    a("s_lshl_b32 s24, s3, 5")
    a("v_add_u32 v3, s24, v3")
    a("v_and_b32 v4, 7, v2")
    a("v_lshrrev_b32 v6, 4, v2")
    a("v_xor_b32 v6, v6, v4")
    a("v_lshlrev_b32 v6, 4, v6")
    a("v_lshl_add_u32 v10, v3, 12, v6")
    a("v_xor_b32 v11, 64, v10")
    a("v_add_u32 v11, %d, v11" % (32768 - 1024))
    a("v_add_u32 v12, %d, v10" % (2 * (32768 - 1024)))
    a("v_add_u32 v13, %d, v11" % (2 * (32768 - 1024)))
    a("v_lshlrev_b32 v14, 4, v2")
    a("s_lshl_b32 s26, s22, 19")
    a("s_mul_i32 s27, s23, %d" % (32 * 18432))
    a("s_lshl_b32 s24, s3, 12")
    a("s_add_u32 s27, s27, s24")
    if ZIMG: a("s_add_u32 s27, s27, 0x%x" % ZIMG)
    a("s_lshl_b32 s25, s3, 9")
    a("s_sub_u32 s32, s25, s24")
    a("s_add_u32 s32, s32, 16384")
    a("s_mov_b32 s33, 0")
    a("s_waitcnt lgkmcnt(0)")
    srd(a, 8, 4, 2048 * 2048 * 2)
    srd(a, 12, 6, WS_BYTES)
    def issue():
        a("s_add_u32 s35, s33, s24")
        a("s_mov_b32 m0, s35")
        a("s_add_u32 s36, s35, %d" % TREG)
        for n in range(4):
            a("buffer_load_dwordx4 v%d, s[8:11], s26 offen offset:%d lds" % (10 + n, n * 1024))
        a("s_mov_b32 m0, s36")
        a("s_add_u32 s37, s27, s32")
        for n in range(4):
            a("buffer_load_dwordx4 v14, s[12:15], s27 offen offset:%d lds" % (n * 1024))
        a("s_add_u32 s36, s36, s32")
        a("s_mov_b32 m0, s36")
        a("s_mov_b64 exec, 0xffffffff")
        a("buffer_load_dwordx4 v14, s[12:15], s37 offen lds")
        a("s_mov_b64 exec, -1")
        a("s_add_u32 s26, s26, 128")
        a("s_add_u32 s27, s27, 18432")
        a("s_add_u32 s33, s33, %d" % SLOT)
        a("s_cmp_eq_u32 s33, %d" % (R * SLOT))
        a("s_cselect_b32 s33, 0, s33")
    srd(a, 16, 88, 576 * 2048 * 2)
    srd(a, 84, 90, 576 * 2)
    a("s_lshl_b32 s43, s2, 2")
    a("s_add_u32 s43, s43, s3")
    a("s_and_b32 s53, s43, 1")
    a("s_sub_u32 s36, s43, 448")
    a("s_lshr_b32 s37, s43, 1")
    a("s_cmp_ge_u32 s43, 896")
    a("s_cselect_b32 s43, s36, s37")
    a("s_cselect_b32 s53, 2, s53")
    if "rampB" in DBG:
        issue(); issue()
        nconv = emit_conv_loads(a)
        a("s_waitcnt vmcnt(%d)" % (9 + nconv))
        a("s_barrier")
        issue(); issue()
        a("s_waitcnt vmcnt(%d)" % (18 + nconv))
        a("s_barrier")
    else:
        issue()
        nconv = emit_conv_loads(a)
        issue(); issue(); issue()
        a("s_waitcnt vmcnt(%d)" % (27 + nconv))
        a("s_barrier")
        a("s_waitcnt vmcnt(18)")
        a("s_barrier")
    a("s_add_u32 s3, s3, 4"); stamp_setup(a, 2); stamp(a, 0); a("s_sub_u32 s3, s3, 4")
    a("s_waitcnt vmcnt(9)")
    a("s_barrier")
    a("s_mov_b32 s34, 1")
    a.label("%s_lloop" % name)
    issue()
    a("s_waitcnt vmcnt(9)")
    a("s_barrier")
    a("s_add_u32 s34, s34, 1")
    a("s_cmp_lt_u32 s34, %d" % (NST - R + 1))
    a("s_cbranch_scc1 %s_lloop" % name)
    a("s_waitcnt vmcnt(0) lgkmcnt(0)")
    a("s_barrier")
    stamp(a, 1)
    a("s_mov_b32 s26, s53")
    a("s_and_b32 s27, s3, 1")
    a("s_mul_i32 s27, s27, %d" % CJ_SIZE)
    a("s_lshr_b32 s36, s3, 1")
    a("s_mul_i32 s36, s36, %d" % SLOT)
    a("s_add_u32 s27, s27, s36")
    def mid():
        if "warm2" in DBG:
            a("s_cmp_eq_u32 s99, 1")
            a("s_cbranch_scc1 %s_midskip" % name)
        a("s_barrier")
        a("s_setprio 0")
        a.label("%s_midskip" % name)
    a.label("%s_cjstart" % name)
    if "noconv" in DBG:
        mid()
    else:
        emit_conv_job(a, name, mid)
        G.stamp_rt(a, 1)
    a("s_branch %s_end" % name)
    a.label("%s_consumer" % name)
    a("s_load_dwordx2 s[92:93], s[0:1], 72")
    a("s_load_dwordx2 s[94:95], s[0:1], 80")
    ACC = 128; FB = [16, 52]
    vTa = [4, 5]; vTb = [6, 7]; vF = 8; vFh = 9
    bTa = [88, 89]; bTb = [90, 91]; bF = 92; bFh = 93
    Z1R = 200; BI = 236
    a("s_lshr_b32 s24, s3, 1")
    a("s_and_b32 s25, s3, 1")
    a("v_and_b32 v3, 15, v2")
    a("v_lshrrev_b32 v10, 4, v2")
    a("v_lshrrev_b32 v11, 1, v3")
    a("v_xor_b32 v10, v10, v11")
    a("v_lshlrev_b32 v10, 4, v10")
    a("v_lshl_add_u32 v10, v3, 7, v10")
    a("s_lshl_b32 s26, s24, 13")
    a("v_add_u32 v10, s26, v10")
    a("s_lshl_b32 s26, s25, 12")
    a("v_add_u32 v%d, s26, v10" % bTa[0])
    a("s_xor_b32 s26, s26, 4096")
    a("v_add_u32 v%d, s26, v10" % bTb[0])
    a("v_xor_b32 v%d, 64, v%d" % (bTa[1], bTa[0]))
    a("v_xor_b32 v%d, 64, v%d" % (bTb[1], bTb[0]))
    a("v_lshrrev_b32 v10, 2, v2")
    a("v_mul_u32_u24 v10, %d, v10" % FS)
    a("v_and_b32 v11, 3, v2")
    a("v_lshl_add_u32 v10, v11, 3, v10")
    a("v_add_u32 v10, %d, v10" % TREG)
    a("s_mul_i32 s26, s25, 160")
    a("v_add_u32 v%d, s26, v10" % bF)
    a("v_add_u32 v%d, 128, v10" % bFh)
    for d, s_ in ((vTa[0], bTa[0]), (vTb[0], bTb[0]), (vTa[1], bTa[1]), (vTb[1], bTb[1]), (vF, bF), (vFh, bFh)):
        a("v_mov_b32 v%d, v%d" % (d, s_))
    a("s_waitcnt lgkmcnt(0)")
    srd(a, 12, 6, WS_BYTES)
    srd(a, 28, 92, 2048 * 2)
    if "wot2" in DBG:
        srd(a, 76, 94, 2304 * 576 * 2)
        a("s_mov_b32 s42, s2")
        emit_wot_loads(a, 96, 108, 720, 3)
    stamp_setup(a, 2); stamp(a, 0)
    a("s_mov_b32 s99, 0")
    for r in range(ACC, ACC + 72): a("v_mov_b32 v%d, 0" % r)
    a("s_mov_b32 s27, 0")
    a("s_mov_b32 s33, 0")
    core = G.Core(a, ACC, FB[0], FB[1], FS, TREG, vTa, vTb, vF, vFh)
    trk = core.trk
    a("s_barrier")
    stamp(a, 1)
    core.prime(0, core.reads(0, 0))
    def phase(buf, pend):
        for (m, regs) in core.mfmas(buf):
            trk.need(regs)
            a(m)
            while pend:
                k, t = pend.pop(0)
                if k == "x":
                    a(t)
                    if t.startswith("s_"): continue
                else:
                    a(t[0]); trk.issue(t[1])
                break
        for k, t in pend:
            if k == "x": a(t)
            else: a(t[0]); trk.issue(t[1])
    def iteration(extra=None):
        a("s_barrier")
        rd = [("r", t) for t in core.reads(1, 1)]
        upd = ["s_add_u32 s27, s27, %d" % SLOT, "s_cmp_eq_u32 s27, %d" % (R * SLOT), "s_cselect_b32 s27, 0, s27"]
        tail = ["v_add_u32 v%d, s27, v%d" % (d, s_) for d, s_ in ((vTa[0], bTa[0]), (vF, bF), (vTb[0], bTb[0]), (vFh, bFh))]
        phase(0, rd[:1] + [("x", u) for u in upd] + rd[1:] + [("x", u) for u in tail])
        rd = [("r", t) for t in core.reads(0, 0)]
        tail = ["v_add_u32 v%d, s27, v%d" % (d, s_) for d, s_ in ((vTa[1], bTa[1]), (vTb[1], bTb[1]))] + ["s_add_u32 s33, s33, 1"]
        phase(1, rd + [("x", u) for u in tail])
    a.label("%s_cloop" % name)
    lb = len(a.lines); iteration(); st = copy.deepcopy(trk.out); del a.lines[lb:]; trk.out = copy.deepcopy(st)
    iteration()
    assert [sorted(x) for x in trk.out] == [sorted(x) for x in st]
    a("s_cmp_lg_u32 s33, 24")
    a("s_cbranch_scc1 %s_noz" % name)
    if "wot2" in DBG:
        a("s_mov_b32 s35, 0x%x" % WOT)
        a("s_waitcnt vmcnt(0)")
        for n in range(3):
            a("buffer_store_dwordx4 %s, v%d, s[12:15], s35 offen" % (vr(96 + 4 * n), 108 + n))
    a("s_lshl_b32 s35, s22, 4")
    a("s_add_u32 s35, s35, s23")
    a("s_lshl_b32 s35, s35, 2")
    a("s_add_u32 s35, s35, s3")
    a("s_mul_i32 s35, s35, 9216")
    a("s_add_u32 s35, s35, 0x%x" % Z1IMG)
    a("v_lshlrev_b32 v10, 4, v2")
    for q in range(9):
        if q in (4, 8): a("s_add_u32 s35, s35, 4096")
        a("buffer_load_dwordx4 %s, v10, s[12:15], s35 offen offset:%d" % (vr(Z1R + 4 * q), (q & 3) * 1024))
    a("s_lshl_b32 s36, s22, 7")
    a("s_lshl_b32 s37, s24, 6")
    a("s_add_u32 s36, s36, s37")
    a("v_lshlrev_b32 v11, 1, v3")
    a("s_lshl_b32 s37, s25, 6")
    a("s_lshl_b32 s38, s36, 1")
    a("s_add_u32 s39, s38, s37")
    a("s_xor_b32 s37, s37, 64")
    a("s_add_u32 s40, s38, s37")
    a("buffer_load_ushort v%d, v11, s[28:31], s39 offen" % (BI + 0))
    a("buffer_load_ushort v%d, v11, s[28:31], s39 offen offset:32" % (BI + 2))
    a("buffer_load_ushort v%d, v11, s[28:31], s40 offen" % (BI + 4))
    a("buffer_load_ushort v%d, v11, s[28:31], s40 offen offset:32" % (BI + 6))
    a.label("%s_noz" % name)
    a("s_cmp_lt_u32 s33, %d" % NST)
    a("s_cbranch_scc1 %s_cloop" % name)
    trk.drain()
    stamp(a, 2)
    a.label("%s_epi" % name)
    a("v_lshrrev_b32 v10, 4, v2")
    a("v_and_b32 v11, 1, v10")
    a("v_lshrrev_b32 v12, 1, v10")
    a("v_lshl_add_u32 v12, v11, 1, v12")
    a("s_mul_i32 s35, s23, 18")
    a("s_mul_i32 s36, s25, 10")
    a("s_add_u32 s36, s36, s35")
    a("v_lshrrev_b32 v13, 1, v3")
    a("s_lshl_b32 s37, s22, 1")
    a("s_add_u32 s37, s37, s24")
    a("s_mul_i32 s37, s37, %d" % (36 * 8192))
    a("s_add_u32 s37, s37, 0x%x" % PIMG)
    a("s_lshl_b32 s38, s25, 12")
    a("s_add_u32 s39, s37, s38")
    a("s_xor_b32 s38, s38, 4096")
    a("s_add_u32 s40, s37, s38")
    def addr(dst, pv):
        a("v_lshrrev_b32 v14, 3, v%d" % pv)
        a("v_lshlrev_b32 v14, 13, v14")
        a("v_and_b32 v15, 7, v%d" % pv)
        a("v_xor_b32 v15, v15, v13")
        a("v_lshl_add_u32 v14, v15, 4, v14")
        a("v_lshl_add_u32 v%d, v3, 7, v14" % dst)
    a("v_add_u32 v16, s36, v12"); addr(4, 16)
    a("v_add_u32 v16, 4, v16"); addr(5, 16)
    a("v_lshrrev_b32 v16, 1, v10")
    a("s_add_u32 s35, s35, 8")
    a("v_add_u32 v16, s35, v16"); addr(6, 16)
    a("v_lshl_add_u32 v6, v11, 11, v6")
    a("s_waitcnt vmcnt(0)")
    for tt in range(4):
        a("v_lshlrev_b32 v%d, 16, v%d" % (BI + 2 * tt, BI + 2 * tt))
    stamp(a, 3)
    def ptiles(lst, O):
        T = 24
        for q, (ft, tt) in enumerate(lst):
            c = core.accr(ft, tt)
            for h in (0, 2):
                a("v_pk_add_f32 %s, %s, %s op_sel_hi:[1,0]" % (vr(c + h, 2), vr(c + h, 2), vr(BI + 2 * tt, 2)))
        for q, (ft, tt) in enumerate(lst):
            c = core.accr(ft, tt)
            a("v_cvt_pk_bf16_f32 v%d, v%d, v%d" % (T + 2 * q, c, c + 1))
            a("v_cvt_pk_bf16_f32 v%d, v%d, v%d" % (T + 2 * q + 1, c + 2, c + 3))
        for q, (ft, tt) in enumerate(lst):
            c = core.accr(ft, tt); z = Z1R + 2 * tidx(ft, tt)
            for d in range(2):
                a("v_lshlrev_b32 v%d, 16, v%d" % (c + 2 * d, T + 2 * q + d))
                a("v_and_b32 v%d, 0xffff0000, v%d" % (c + 2 * d + 1, T + 2 * q + d))
                a("v_lshlrev_b32 v%d, 16, v%d" % (T + 4 + 4 * q + 2 * d, z + d))
                a("v_and_b32 v%d, 0xffff0000, v%d" % (T + 5 + 4 * q + 2 * d, z + d))
        for q, (ft, tt) in enumerate(lst):
            c = core.accr(ft, tt)
            for h in (0, 2):
                a("v_pk_mul_f32 %s, %s, %s" % (vr(c + h, 2), vr(c + h, 2), vr(T + 4 + 4 * q + h, 2)))
        for q, (ft, tt) in enumerate(lst):
            c = core.accr(ft, tt)
            a("v_cvt_pk_bf16_f32 v%d, v%d, v%d" % (O + 2 * q, c, c + 1))
            a("v_cvt_pk_bf16_f32 v%d, v%d, v%d" % (O + 2 * q + 1, c + 2, c + 3))
        a("s_nop 1")
        a("v_permlane16_swap_b32 v%d, v%d" % (O, O + 2))
        a("v_permlane16_swap_b32 v%d, v%d" % (O + 1, O + 3))
        a("s_nop 0")
    cnt = 0
    for pr in range(2):
        for tt in range(4):
            O = 40 + 4 * cnt; cnt += 1
            ptiles([(2 * pr, tt), (2 * pr + 1, tt)], O)
            a("buffer_store_dwordx4 %s, v%d, s[12:15], s%d offen offset:%d" % (vr(O), 4 + pr, 39 if tt < 2 else 40, (tt & 1) * 2048))
    O = 40 + 4 * cnt
    ptiles([(4, 0), (4, 1)], O)
    a("buffer_store_dwordx4 %s, v6, s[12:15], s39 offen" % vr(O))
    seg_end2(a, name)
    stamp(a, 4)
    G.stamp_rt(a, 1)
    a.label("%s_end" % name)
    a("s_endpgm")
    return a.text(), kernel_desc(name, 256, 256), (name, 256, 512, R * SLOT)


def gen_k2c(name="k2_kernel", R=4):
    a = Asm()
    SLOT = 34816; TREG = 16384; FS = 288; NST = 32
    kernel_begin(a, name)
    a("s_load_dwordx2 s[4:5], s[0:1], 64")
    a("s_load_dwordx2 s[6:7], s[0:1], 104")
    a("s_load_dwordx4 s[88:91], s[0:1], 32")
    a("s_load_dwordx2 s[80:81], s[0:1], 0")
    a("s_load_dwordx2 s[82:83], s[0:1], 56")
    a("s_cmp_ge_u32 s2, 256")
    a("s_cbranch_scc1 %s_end" % name)
    a("v_lshrrev_b32 v1, 6, v0")
    a("v_and_b32 v2, 63, v0")
    a("v_readfirstlane_b32 s3, v1")
    G2.tile_ij(a)
    a("s_cmp_lt_u32 s3, 4")
    a("s_cbranch_scc1 %s_consumer" % name)
    if "noprio" not in DBG: a("s_setprio 3")
    a("s_sub_u32 s3, s3, 4")
    a("v_lshrrev_b32 v3, 3, v2")
    a("s_lshl_b32 s24, s3, 5")
    a("v_add_u32 v3, s24, v3")
    a("v_and_b32 v4, 7, v2")
    a("v_lshrrev_b32 v6, 4, v2")
    a("v_xor_b32 v6, v6, v4")
    a("v_lshlrev_b32 v6, 4, v6")
    a("v_lshl_add_u32 v10, v3, 12, v6")
    a("v_xor_b32 v11, 64, v10")
    a("v_add_u32 v11, %d, v11" % (32768 - 1024))
    a("v_add_u32 v12, %d, v10" % (2 * (32768 - 1024)))
    a("v_add_u32 v13, %d, v11" % (2 * (32768 - 1024)))
    a("v_lshlrev_b32 v14, 4, v2")
    a("s_lshl_b32 s26, s22, 19")
    a("s_mul_i32 s27, s23, %d" % (32 * 18432))
    a("s_lshl_b32 s24, s3, 12")
    a("s_add_u32 s27, s27, s24")
    if ZIMG: a("s_add_u32 s27, s27, 0x%x" % ZIMG)
    a("s_lshl_b32 s25, s3, 9")
    a("s_sub_u32 s32, s25, s24")
    a("s_add_u32 s32, s32, 16384")
    a("s_mov_b32 s33, 0")
    a("s_waitcnt lgkmcnt(0)")
    srd(a, 8, 4, 2048 * 2048 * 2)
    srd(a, 12, 6, WS_BYTES)
    def issue():
        a("s_add_u32 s35, s33, s24")
        a("s_mov_b32 m0, s35")
        a("s_add_u32 s36, s35, %d" % TREG)
        for n in range(4):
            a("buffer_load_dwordx4 v%d, s[8:11], s26 offen offset:%d lds" % (10 + n, n * 1024))
        a("s_mov_b32 m0, s36")
        a("s_add_u32 s37, s27, s32")
        for n in range(4):
            a("buffer_load_dwordx4 v14, s[12:15], s27 offen offset:%d lds" % (n * 1024))
        a("s_add_u32 s36, s36, s32")
        a("s_mov_b32 m0, s36")
        a("s_mov_b64 exec, 0xffffffff")
        a("buffer_load_dwordx4 v14, s[12:15], s37 offen lds")
        a("s_mov_b64 exec, -1")
        a("s_add_u32 s26, s26, 128")
        a("s_add_u32 s27, s27, 18432")
        a("s_add_u32 s33, s33, %d" % SLOT)
        a("s_cmp_eq_u32 s33, %d" % (R * SLOT))
        a("s_cselect_b32 s33, 0, s33")
    srd(a, 16, 88, 576 * 2048 * 2)
    srd(a, 84, 90, 576 * 2)
    a("s_lshl_b32 s43, s2, 2")
    a("s_add_u32 s43, s43, s3")
    a("s_and_b32 s53, s43, 1")
    a("s_sub_u32 s36, s43, 448")
    a("s_lshr_b32 s37, s43, 1")
    a("s_cmp_ge_u32 s43, 896")
    a("s_cselect_b32 s43, s36, s37")
    a("s_cselect_b32 s53, 2, s53")
    VT = 16; VF = 20
    srd(a, 64, 80, 2048 * 576 * 2)
    srd(a, 68, 82, 576 * 4608 * 2)
    a("v_mul_u32_u24 v5, 1152, v3")
    a("v_add_u32 v%d, v5, v6" % VT)
    a("v_xor_b32 v%d, 64, v%d" % (VT + 1, VT))
    a("v_add_u32 v%d, %d, v%d" % (VT + 1, 9216 - 1024, VT + 1))
    a("v_add_u32 v%d, %d, v%d" % (VT + 2, 2 * (9216 - 1024), VT))
    a("v_add_u32 v%d, %d, v%d" % (VT + 3, 2 * (9216 - 1024), VT + 1))
    a("s_mul_i32 s72, s22, %d" % (128 * 1152))
    a("s_mul_i32 s73, s23, 288")
    a("s_add_u32 s74, s25, %d" % (TREG + 16384))
    def issueT1(g):
        a("s_add_u32 s35, s24, %d" % ((g % R) * SLOT))
        a("s_mov_b32 m0, s35")
        a("s_add_u32 s36, s72, %d" % (128 * g))
        for n in range(4):
            a("buffer_load_dwordx4 v%d, s[64:67], s36 offen offset:%d lds" % (VT + n, 1024 * n))
    def issueF1(g):
        a("s_add_u32 s35, s24, %d" % ((g % R) * SLOT + TREG))
        a("s_mov_b32 m0, s35")
        a("s_add_u32 s36, s73, %d" % (64 * 9216 * g))
        for n in range(4):
            a("buffer_load_dwordx4 v%d, s[68:71], s36 offen offset:%d lds" % (VF + n, 1024 * n))
        a("s_add_u32 s35, s74, %d" % ((g % R) * SLOT))
        a("s_mov_b32 m0, s35")
        a("s_mov_b64 exec, 0xffffffff")
        a("buffer_load_dwordx4 v%d, s[68:71], s36 offen lds" % (VF + 4))
        a("s_mov_b64 exec, -1")
    issueT1(0)
    for n in range(5):
        if n < 4:
            a("s_lshl_b32 s36, s3, 8")
            a("s_add_u32 s36, s36, %d" % (64 * n))
        else:
            a("s_lshl_b32 s36, s3, 5")
            a("s_add_u32 s36, s36, 1024")
        a("v_add_u32 v6, s36, v2")
        a("v_mul_u32_u24 v7, 3641, v6")
        a("v_lshrrev_b32 v7, 16, v7")
        a("v_mul_u32_u24 v8, 18, v7")
        a("v_sub_u32 v8, v6, v8")
        a("v_and_b32 v9, 35, v7")
        a("v_bfe_u32 v6, v7, 2, 2")
        a("v_lshl_add_u32 v9, v6, 3, v9")
        a("v_bfe_u32 v6, v7, 4, 1")
        a("v_lshl_add_u32 v9, v6, 2, v9")
        a("v_mul_u32_u24 v9, 9216, v9")
        a("v_lshl_add_u32 v%d, v8, 4, v9" % (VF + n))
        if 0 < n < 4: a("v_subrev_u32 v%d, %d, v%d" % (VF + n, 1024 * n, VF + n))
    issueF1(0)
    for g in (1, 2, 3): issueT1(g); issueF1(g)
    nconv = emit_conv_loads(a)
    a("s_waitcnt vmcnt(%d)" % (27 + nconv))
    a("s_barrier")
    a("s_waitcnt vmcnt(%d)" % (18 + nconv))
    a("s_barrier")
    a("s_add_u32 s3, s3, 4"); stamp_setup(a, 2); stamp(a, 0); a("s_sub_u32 s3, s3, 4")
    a("s_waitcnt vmcnt(%d)" % (9 + nconv))
    a("s_barrier")
    for kk in range(1, 6):
        issueT1(kk + 3); issueF1(kk + 3)
        a("s_waitcnt vmcnt(%d)" % (9 + (nconv if kk == 1 else 0)))
        a("s_barrier")
    a("s_mov_b32 s33, %d" % ((9 % R) * SLOT))
    a("s_mov_b32 s34, 0")
    a.label("%s_lloop" % name)
    issue()
    a("s_waitcnt vmcnt(9)")
    a("s_barrier")
    a("s_add_u32 s34, s34, 1")
    a("s_cmp_lt_u32 s34, 32")
    a("s_cbranch_scc1 %s_lloop" % name)
    a("s_waitcnt vmcnt(0) lgkmcnt(0)")
    a("s_barrier")
    stamp(a, 1)
    a("s_mov_b32 s26, s53")
    a("s_and_b32 s27, s3, 1")
    a("s_mul_i32 s27, s27, %d" % CJ_SIZE)
    a("s_lshr_b32 s36, s3, 1")
    a("s_add_u32 s36, s36, 1")
    a("s_mul_i32 s36, s36, %d" % SLOT)
    a("s_add_u32 s27, s27, s36")
    def mid():
        if "warm2" in DBG:
            a("s_cmp_eq_u32 s99, 1")
            a("s_cbranch_scc1 %s_midskip" % name)
        a("s_barrier")
        a("s_setprio 0")
        a.label("%s_midskip" % name)
    a.label("%s_cjstart" % name)
    if "noconv" in DBG:
        mid()
    else:
        emit_conv_job(a, name, mid)
        G.stamp_rt(a, 1)
    a("s_branch %s_end" % name)
    a.label("%s_consumer" % name)
    a("s_load_dwordx2 s[92:93], s[0:1], 72")
    a("s_load_dwordx2 s[94:95], s[0:1], 80")
    ACC = 128; FB = [16, 52]
    vTa = [4, 5]; vTb = [6, 7]; vF = 8; vFh = 9
    bTa = [88, 89]; bTb = [90, 91]; bF = 92; bFh = 93
    Z1R = 200; BI = 236
    a("s_lshr_b32 s24, s3, 1")
    a("s_and_b32 s25, s3, 1")
    a("v_and_b32 v3, 15, v2")
    a("v_lshrrev_b32 v10, 4, v2")
    a("v_lshrrev_b32 v11, 1, v3")
    a("v_xor_b32 v10, v10, v11")
    a("v_lshlrev_b32 v10, 4, v10")
    a("v_lshl_add_u32 v10, v3, 7, v10")
    a("s_lshl_b32 s26, s24, 13")
    a("v_add_u32 v10, s26, v10")
    a("s_lshl_b32 s26, s25, 12")
    a("v_add_u32 v%d, s26, v10" % bTa[0])
    a("s_xor_b32 s26, s26, 4096")
    a("v_add_u32 v%d, s26, v10" % bTb[0])
    a("v_xor_b32 v%d, 64, v%d" % (bTa[1], bTa[0]))
    a("v_xor_b32 v%d, 64, v%d" % (bTb[1], bTb[0]))
    a("v_lshrrev_b32 v10, 2, v2")
    a("v_mul_u32_u24 v10, %d, v10" % FS)
    a("v_and_b32 v11, 3, v2")
    a("v_lshl_add_u32 v10, v11, 3, v10")
    a("v_add_u32 v10, %d, v10" % TREG)
    a("s_mul_i32 s26, s25, 160")
    a("v_add_u32 v%d, s26, v10" % bF)
    a("v_add_u32 v%d, 128, v10" % bFh)
    for d, s_ in ((vTa[0], bTa[0]), (vTb[0], bTb[0]), (vTa[1], bTa[1]), (vTb[1], bTb[1]), (vF, bF), (vFh, bFh)):
        a("v_mov_b32 v%d, v%d" % (d, s_))
    a("s_waitcnt lgkmcnt(0)")
    srd(a, 12, 6, WS_BYTES)
    srd(a, 28, 92, 2048 * 2)
    srd(a, 76, 94, 2304 * 576 * 2)
    a("s_mov_b32 s42, s2")
    emit_wot_loads(a, 240, 252, 720, 3)
    MR = 100; CS = 108; ONE = 96
    a("s_lshl_b32 s36, s22, 7")
    a("s_lshl_b32 s37, s24, 6")
    a("s_add_u32 s36, s36, s37")
    a("s_lshl_b32 s36, s36, 3")
    a("s_add_u32 s36, s36, 0x%x" % STATS1)
    a("s_lshl_b32 s37, s25, 8")
    a("s_add_u32 s38, s36, s37")
    a("s_xor_b32 s37, s37, 256")
    a("s_add_u32 s39, s36, s37")
    a("v_lshlrev_b32 v10, 3, v3")
    a("buffer_load_dwordx2 %s, v10, s[12:15], s38 offen" % vr(MR, 2))
    a("buffer_load_dwordx2 %s, v10, s[12:15], s38 offen offset:128" % vr(MR + 2, 2))
    a("buffer_load_dwordx2 %s, v10, s[12:15], s39 offen" % vr(MR + 4, 2))
    a("buffer_load_dwordx2 %s, v10, s[12:15], s39 offen offset:128" % vr(MR + 6, 2))
    for r in range(CS, CS + 20): a("v_mov_b32 v%d, 0" % r)
    for r in range(ONE, ONE + 4): a("v_mov_b32 v%d, 0x3f803f80" % r)
    stamp_setup(a, 2); stamp(a, 0)
    a("s_mov_b32 s99, 0")
    for r in range(ACC, ACC + 72): a("v_mov_b32 v%d, 0" % r)
    a("s_mov_b32 s27, 0")
    a("s_mov_b32 s33, 0")
    core = G.Core(a, ACC, FB[0], FB[1], FS, TREG, vTa, vTb, vF, vFh)
    trk = core.trk
    a("s_barrier")
    stamp(a, 1)
    core.prime(0, core.reads(0, 0))
    withcs = [True]
    def mfmas(buf):
        L = []
        for ft in range(5):
            A = core.F(buf, ft)
            for tt in range(4 if ft < 4 else 2):
                c = core.accr(ft, tt); B = core.T(buf, tt)
                L.append(("v_mfma_f32_16x16x32_bf16 %s, %s, %s, %s" % (vr(c), vr(A), vr(B), vr(c)), list(range(A, A + 4)) + list(range(B, B + 4))))
            if withcs[0]:
                L.append(("v_mfma_f32_16x16x32_bf16 %s, %s, %s, %s" % (vr(CS + 4 * ft), vr(A), vr(ONE), vr(CS + 4 * ft)), list(range(A, A + 4))))
        return L
    def phase(buf, pend):
        for (m, regs) in mfmas(buf):
            trk.need(regs)
            a(m)
            while pend:
                k, t = pend.pop(0)
                if k == "x":
                    a(t)
                    if t.startswith("s_"): continue
                else:
                    a(t[0]); trk.issue(t[1])
                break
        for k, t in pend:
            if k == "x": a(t)
            else: a(t[0]); trk.issue(t[1])
    def iteration(extra=None):
        a("s_barrier")
        rd = [("r", t) for t in core.reads(1, 1)]
        upd = ["s_add_u32 s27, s27, %d" % SLOT, "s_cmp_eq_u32 s27, %d" % (R * SLOT), "s_cselect_b32 s27, 0, s27"]
        tail = ["v_add_u32 v%d, s27, v%d" % (d, s_) for d, s_ in ((vTa[0], bTa[0]), (vF, bF), (vTb[0], bTb[0]), (vFh, bFh))]
        phase(0, rd[:1] + [("x", u) for u in upd] + rd[1:] + [("x", u) for u in tail])
        rd = [("r", t) for t in core.reads(0, 0)]
        tail = ["v_add_u32 v%d, s27, v%d" % (d, s_) for d, s_ in ((vTa[1], bTa[1]), (vTb[1], bTb[1]))] + ["s_add_u32 s33, s33, 1"]
        phase(1, rd + [("x", u) for u in tail])
    trk.drain()
    a.label("%s_zloop" % name)
    lb = len(a.lines); iteration(); st = copy.deepcopy(trk.out); del a.lines[lb:]; trk.out = copy.deepcopy(st)
    iteration()
    assert [sorted(x) for x in trk.out] == [sorted(x) for x in st]
    a("s_cmp_lt_u32 s33, 9")
    a("s_cbranch_scc1 %s_zloop" % name)
    trk.drain()
    stamp(a, 5)
    gelu_consts(a)
    a("s_waitcnt vmcnt(0)")
    for tt in range(4): a("v_sub_f32 v%d, 0, v%d" % (MR + 2 * tt, MR + 2 * tt))
    a("s_mov_b32 s35, 0x%x" % WOT)
    for n in range(3):
        a("buffer_store_dwordx4 %s, v%d, s[12:15], s35 offen" % (vr(240 + 4 * n), 252 + n))
    for ft in range(5):
        tts = range(4 if ft < 4 else 2)
        emit_fold_gelu(a, [(core.accr(ft, tt), CS + 4 * ft, MR + 2 * tt, Z1R + 2 * tidx(ft, tt)) for tt in tts], 56)
    for r in range(ACC, ACC + 72): a("v_mov_b32 v%d, 0" % r)
    a("s_mov_b32 s33, 0")
    stamp(a, 6)
    withcs[0] = False
    a.label("%s_cloop" % name)
    lb = len(a.lines); iteration(); st = copy.deepcopy(trk.out); del a.lines[lb:]; trk.out = copy.deepcopy(st)
    iteration()
    assert [sorted(x) for x in trk.out] == [sorted(x) for x in st]
    a("s_cmp_lg_u32 s33, 24")
    a("s_cbranch_scc1 %s_noz" % name)
    a("s_lshl_b32 s36, s22, 7")
    a("s_lshl_b32 s37, s24, 6")
    a("s_add_u32 s36, s36, s37")
    a("v_lshlrev_b32 v11, 1, v3")
    a("s_lshl_b32 s37, s25, 6")
    a("s_lshl_b32 s38, s36, 1")
    a("s_add_u32 s39, s38, s37")
    a("s_xor_b32 s37, s37, 64")
    a("s_add_u32 s40, s38, s37")
    a("buffer_load_ushort v%d, v11, s[28:31], s39 offen" % (BI + 0))
    a("buffer_load_ushort v%d, v11, s[28:31], s39 offen offset:32" % (BI + 2))
    a("buffer_load_ushort v%d, v11, s[28:31], s40 offen" % (BI + 4))
    a("buffer_load_ushort v%d, v11, s[28:31], s40 offen offset:32" % (BI + 6))
    a.label("%s_noz" % name)
    a("s_cmp_lt_u32 s33, %d" % NST)
    a("s_cbranch_scc1 %s_cloop" % name)
    trk.drain()
    stamp(a, 2)
    a.label("%s_epi" % name)
    a("v_lshrrev_b32 v10, 4, v2")
    a("v_and_b32 v11, 1, v10")
    a("v_lshrrev_b32 v12, 1, v10")
    a("v_lshl_add_u32 v12, v11, 1, v12")
    a("s_mul_i32 s35, s23, 18")
    a("s_mul_i32 s36, s25, 10")
    a("s_add_u32 s36, s36, s35")
    a("v_lshrrev_b32 v13, 1, v3")
    a("s_lshl_b32 s37, s22, 1")
    a("s_add_u32 s37, s37, s24")
    a("s_mul_i32 s37, s37, %d" % (36 * 8192))
    a("s_add_u32 s37, s37, 0x%x" % PIMG)
    a("s_lshl_b32 s38, s25, 12")
    a("s_add_u32 s39, s37, s38")
    a("s_xor_b32 s38, s38, 4096")
    a("s_add_u32 s40, s37, s38")
    def addr(dst, pv):
        a("v_lshrrev_b32 v14, 3, v%d" % pv)
        a("v_lshlrev_b32 v14, 13, v14")
        a("v_and_b32 v15, 7, v%d" % pv)
        a("v_xor_b32 v15, v15, v13")
        a("v_lshl_add_u32 v14, v15, 4, v14")
        a("v_lshl_add_u32 v%d, v3, 7, v14" % dst)
    a("v_add_u32 v16, s36, v12"); addr(4, 16)
    a("v_add_u32 v16, 4, v16"); addr(5, 16)
    a("v_lshrrev_b32 v16, 1, v10")
    a("s_add_u32 s35, s35, 8")
    a("v_add_u32 v16, s35, v16"); addr(6, 16)
    a("v_lshl_add_u32 v6, v11, 11, v6")
    a("s_waitcnt vmcnt(0)")
    for tt in range(4):
        a("v_lshlrev_b32 v%d, 16, v%d" % (BI + 2 * tt, BI + 2 * tt))
    stamp(a, 3)
    def ptiles(lst, O):
        T = 24
        for q, (ft, tt) in enumerate(lst):
            c = core.accr(ft, tt)
            for h in (0, 2):
                a("v_pk_add_f32 %s, %s, %s op_sel_hi:[1,0]" % (vr(c + h, 2), vr(c + h, 2), vr(BI + 2 * tt, 2)))
        for q, (ft, tt) in enumerate(lst):
            c = core.accr(ft, tt)
            a("v_cvt_pk_bf16_f32 v%d, v%d, v%d" % (T + 2 * q, c, c + 1))
            a("v_cvt_pk_bf16_f32 v%d, v%d, v%d" % (T + 2 * q + 1, c + 2, c + 3))
        for q, (ft, tt) in enumerate(lst):
            c = core.accr(ft, tt); z = Z1R + 2 * tidx(ft, tt)
            for d in range(2):
                a("v_lshlrev_b32 v%d, 16, v%d" % (c + 2 * d, T + 2 * q + d))
                a("v_and_b32 v%d, 0xffff0000, v%d" % (c + 2 * d + 1, T + 2 * q + d))
                a("v_lshlrev_b32 v%d, 16, v%d" % (T + 4 + 4 * q + 2 * d, z + d))
                a("v_and_b32 v%d, 0xffff0000, v%d" % (T + 5 + 4 * q + 2 * d, z + d))
        for q, (ft, tt) in enumerate(lst):
            c = core.accr(ft, tt)
            for h in (0, 2):
                a("v_pk_mul_f32 %s, %s, %s" % (vr(c + h, 2), vr(c + h, 2), vr(T + 4 + 4 * q + h, 2)))
        for q, (ft, tt) in enumerate(lst):
            c = core.accr(ft, tt)
            a("v_cvt_pk_bf16_f32 v%d, v%d, v%d" % (O + 2 * q, c, c + 1))
            a("v_cvt_pk_bf16_f32 v%d, v%d, v%d" % (O + 2 * q + 1, c + 2, c + 3))
        a("s_nop 1")
        a("v_permlane16_swap_b32 v%d, v%d" % (O, O + 2))
        a("v_permlane16_swap_b32 v%d, v%d" % (O + 1, O + 3))
        a("s_nop 0")
    cnt = 0
    for pr in range(2):
        for tt in range(4):
            O = 40 + 4 * cnt; cnt += 1
            ptiles([(2 * pr, tt), (2 * pr + 1, tt)], O)
            a("buffer_store_dwordx4 %s, v%d, s[12:15], s%d offen offset:%d" % (vr(O), 4 + pr, 39 if tt < 2 else 40, (tt & 1) * 2048))
    O = 40 + 4 * cnt
    ptiles([(4, 0), (4, 1)], O)
    a("buffer_store_dwordx4 %s, v6, s[12:15], s39 offen" % vr(O))
    seg_end2(a, name)
    stamp(a, 4)
    G.stamp_rt(a, 1)
    a.label("%s_end" % name)
    a("s_endpgm")
    return a.text(), kernel_desc(name, 256, 256), (name, 256, 512, R * SLOT)


def gen_k2d(name="k2_kernel", R=4):
    a = Asm()
    SLOT = 34816; TREG = 16384; FS = 288; NST = 32
    kernel_begin(a, name)
    a("s_load_dwordx2 s[4:5], s[0:1], 64")
    a("s_load_dwordx2 s[6:7], s[0:1], 104")
    a("s_load_dwordx4 s[88:91], s[0:1], 32")
    a("s_load_dwordx2 s[80:81], s[0:1], 0")
    a("s_load_dwordx2 s[82:83], s[0:1], 56")
    a("s_load_dwordx2 s[56:57], s[0:1], 96")
    a("s_cmp_ge_u32 s2, 256")
    a("s_cbranch_scc1 %s_end" % name)
    a("v_lshrrev_b32 v1, 6, v0")
    a("v_and_b32 v2, 63, v0")
    a("v_readfirstlane_b32 s3, v1")
    G2.tile_ij(a)
    a("s_cmp_lt_u32 s3, 4")
    a("s_cbranch_scc1 %s_consumer" % name)
    if "noprio" not in DBG: a("s_setprio 3")
    a("s_sub_u32 s3, s3, 4")
    a("v_lshrrev_b32 v3, 3, v2")
    a("s_lshl_b32 s24, s3, 5")
    a("v_add_u32 v3, s24, v3")
    a("v_and_b32 v4, 7, v2")
    a("v_lshrrev_b32 v6, 4, v2")
    a("v_xor_b32 v6, v6, v4")
    a("v_lshlrev_b32 v6, 4, v6")
    a("v_lshl_add_u32 v10, v3, 12, v6")
    a("v_xor_b32 v11, 64, v10")
    a("v_add_u32 v11, %d, v11" % (32768 - 1024))
    a("v_add_u32 v12, %d, v10" % (2 * (32768 - 1024)))
    a("v_add_u32 v13, %d, v11" % (2 * (32768 - 1024)))
    a("v_lshlrev_b32 v14, 4, v2")
    a("s_lshl_b32 s26, s22, 19")
    a("s_mul_i32 s27, s23, %d" % (32 * 18432))
    a("s_lshl_b32 s24, s3, 12")
    a("s_add_u32 s27, s27, s24")
    if ZIMG: a("s_add_u32 s27, s27, 0x%x" % ZIMG)
    a("s_lshl_b32 s25, s3, 9")
    a("s_sub_u32 s32, s25, s24")
    a("s_add_u32 s32, s32, 16384")
    a("s_mov_b32 s33, 0")
    a("s_waitcnt lgkmcnt(0)")
    srd(a, 8, 4, 2048 * 2048 * 2)
    srd(a, 12, 6, WS_BYTES)
    def issue():
        a("s_add_u32 s35, s33, s24")
        a("s_mov_b32 m0, s35")
        a("s_add_u32 s36, s35, %d" % TREG)
        for n in range(4):
            a("buffer_load_dwordx4 v%d, s[8:11], s26 offen offset:%d lds" % (10 + n, n * 1024))
        a("s_mov_b32 m0, s36")
        a("s_add_u32 s37, s27, s32")
        for n in range(4):
            a("buffer_load_dwordx4 v14, s[12:15], s27 offen offset:%d sc1 lds" % (n * 1024))
        a("s_add_u32 s36, s36, s32")
        a("s_mov_b32 m0, s36")
        a("s_mov_b64 exec, 0xffffffff")
        a("buffer_load_dwordx4 v14, s[12:15], s37 offen sc1 lds")
        a("s_mov_b64 exec, -1")
        a("s_add_u32 s26, s26, 128")
        a("s_add_u32 s27, s27, 18432")
        a("s_add_u32 s33, s33, %d" % SLOT)
        a("s_cmp_eq_u32 s33, %d" % (R * SLOT))
        a("s_cselect_b32 s33, 0, s33")
    srd(a, 16, 88, 576 * 2048 * 2)
    srd(a, 84, 90, 576 * 2)
    a("s_lshl_b32 s43, s2, 2")
    a("s_add_u32 s43, s43, s3")
    a("s_and_b32 s53, s43, 1")
    a("s_sub_u32 s36, s43, 448")
    a("s_lshr_b32 s37, s43, 1")
    a("s_cmp_ge_u32 s43, 896")
    a("s_cselect_b32 s43, s36, s37")
    a("s_cselect_b32 s53, 2, s53")
    VT = 16; VF = 20
    srd(a, 64, 80, 2048 * 576 * 2)
    srd(a, 68, 82, 576 * 4608 * 2)
    a("v_mul_u32_u24 v5, 1152, v3")
    a("v_add_u32 v%d, v5, v6" % VT)
    a("v_xor_b32 v%d, 64, v%d" % (VT + 1, VT))
    a("v_add_u32 v%d, %d, v%d" % (VT + 1, 9216 - 1024, VT + 1))
    a("v_add_u32 v%d, %d, v%d" % (VT + 2, 2 * (9216 - 1024), VT))
    a("v_add_u32 v%d, %d, v%d" % (VT + 3, 2 * (9216 - 1024), VT + 1))
    a("s_mul_i32 s72, s22, %d" % (128 * 1152))
    a("s_mul_i32 s73, s23, 288")
    a("s_add_u32 s74, s25, %d" % (TREG + 16384))
    def issueT1(g):
        a("s_add_u32 s35, s24, %d" % ((g % R) * SLOT))
        a("s_mov_b32 m0, s35")
        a("s_add_u32 s36, s72, %d" % (128 * g))
        for n in range(4):
            a("buffer_load_dwordx4 v%d, s[64:67], s36 offen offset:%d lds" % (VT + n, 1024 * n))
    def issueF1(g):
        a("s_add_u32 s35, s24, %d" % ((g % R) * SLOT + TREG))
        a("s_mov_b32 m0, s35")
        a("s_add_u32 s36, s73, %d" % (64 * 9216 * g))
        for n in range(4):
            a("buffer_load_dwordx4 v%d, s[68:71], s36 offen offset:%d lds" % (VF + n, 1024 * n))
        a("s_add_u32 s35, s74, %d" % ((g % R) * SLOT))
        a("s_mov_b32 m0, s35")
        a("s_mov_b64 exec, 0xffffffff")
        a("buffer_load_dwordx4 v%d, s[68:71], s36 offen lds" % (VF + 4))
        a("s_mov_b64 exec, -1")
    issueT1(0)
    for n in range(5):
        if n < 4:
            a("s_lshl_b32 s36, s3, 8")
            a("s_add_u32 s36, s36, %d" % (64 * n))
        else:
            a("s_lshl_b32 s36, s3, 5")
            a("s_add_u32 s36, s36, 1024")
        a("v_add_u32 v6, s36, v2")
        a("v_mul_u32_u24 v7, 3641, v6")
        a("v_lshrrev_b32 v7, 16, v7")
        a("v_mul_u32_u24 v8, 18, v7")
        a("v_sub_u32 v8, v6, v8")
        a("v_and_b32 v9, 35, v7")
        a("v_bfe_u32 v6, v7, 2, 2")
        a("v_lshl_add_u32 v9, v6, 3, v9")
        a("v_bfe_u32 v6, v7, 4, 1")
        a("v_lshl_add_u32 v9, v6, 2, v9")
        a("v_mul_u32_u24 v9, 9216, v9")
        a("v_lshl_add_u32 v%d, v8, 4, v9" % (VF + n))
        if 0 < n < 4: a("v_subrev_u32 v%d, %d, v%d" % (VF + n, 1024 * n, VF + n))
    issueF1(0)
    for g in (1, 2, 3): issueT1(g); issueF1(g)
    nconv = emit_conv_loads(a)
    a("s_waitcnt vmcnt(%d)" % (27 + nconv))
    a("s_barrier")
    a("s_waitcnt vmcnt(%d)" % (18 + nconv))
    a("s_barrier")
    a("s_add_u32 s3, s3, 4"); stamp_setup(a, 2); stamp(a, 0); a("s_sub_u32 s3, s3, 4")
    a("s_waitcnt vmcnt(%d)" % (9 + nconv))
    a("s_barrier")
    for kk in range(1, 6):
        issueT1(kk + 3); issueF1(kk + 3)
        a("s_waitcnt vmcnt(%d)" % (9 + (nconv if kk == 1 else 0)))
        a("s_barrier")
    srd(a, 60, 56, 256)
    a("s_lshl_b32 s36, s23, 2")
    a("v_mov_b32 v26, s36")
    a("s_mov_b32 s34, 0")
    a.label("%s_pz" % name)
    a("buffer_load_dword v27, v26, s[60:63], 0 offen sc1")
    a("s_add_u32 s34, s34, 1")
    a("s_waitcnt vmcnt(0)")
    a("v_readfirstlane_b32 s36, v27")
    a("s_cmp_gt_u32 s34, %d" % SPIN_MAX)
    a("s_cbranch_scc1 %s_pzx" % name)
    a("s_cmp_ge_u32 s36, 16")
    a("s_cbranch_scc1 %s_pzx" % name)
    a("s_sleep 8")
    a("s_branch %s_pz" % name)
    a.label("%s_pzx" % name)
    a("s_mov_b32 s33, %d" % ((9 % R) * SLOT))
    a("s_mov_b32 s34, 0")
    a.label("%s_lloop" % name)
    issue()
    a("s_waitcnt vmcnt(9)")
    a("s_barrier")
    a("s_add_u32 s34, s34, 1")
    a("s_cmp_lt_u32 s34, 32")
    a("s_cbranch_scc1 %s_lloop" % name)
    a("s_waitcnt vmcnt(0) lgkmcnt(0)")
    a("s_barrier")
    stamp(a, 1)
    a("s_mov_b32 s26, s53")
    a("s_and_b32 s27, s3, 1")
    a("s_mul_i32 s27, s27, %d" % CJ_SIZE)
    a("s_lshr_b32 s36, s3, 1")
    a("s_add_u32 s36, s36, 1")
    a("s_mul_i32 s36, s36, %d" % SLOT)
    a("s_add_u32 s27, s27, s36")
    def mid():
        if "warm2" in DBG:
            a("s_cmp_eq_u32 s99, 1")
            a("s_cbranch_scc1 %s_midskip" % name)
        a("s_barrier")
        a("s_setprio 0")
        a.label("%s_midskip" % name)
    a.label("%s_cjstart" % name)
    if "noconv" in DBG:
        mid()
    else:
        emit_conv_job(a, name, mid)
        G.stamp_rt(a, 1)
    a("s_branch %s_end" % name)
    a.label("%s_consumer" % name)
    a("s_load_dwordx2 s[92:93], s[0:1], 72")
    a("s_load_dwordx2 s[94:95], s[0:1], 80")
    ACC = 128; FB = [16, 52]
    vTa = [4, 5]; vTb = [6, 7]; vF = 8; vFh = 9
    bTa = [88, 89]; bTb = [90, 91]; bF = 92; bFh = 93
    Z1R = 200; BI = 236
    a("s_lshr_b32 s24, s3, 1")
    a("s_and_b32 s25, s3, 1")
    a("v_and_b32 v3, 15, v2")
    a("v_lshrrev_b32 v10, 4, v2")
    a("v_lshrrev_b32 v11, 1, v3")
    a("v_xor_b32 v10, v10, v11")
    a("v_lshlrev_b32 v10, 4, v10")
    a("v_lshl_add_u32 v10, v3, 7, v10")
    a("s_lshl_b32 s26, s24, 13")
    a("v_add_u32 v10, s26, v10")
    a("s_lshl_b32 s26, s25, 12")
    a("v_add_u32 v%d, s26, v10" % bTa[0])
    a("s_xor_b32 s26, s26, 4096")
    a("v_add_u32 v%d, s26, v10" % bTb[0])
    a("v_xor_b32 v%d, 64, v%d" % (bTa[1], bTa[0]))
    a("v_xor_b32 v%d, 64, v%d" % (bTb[1], bTb[0]))
    a("v_lshrrev_b32 v10, 2, v2")
    a("v_mul_u32_u24 v10, %d, v10" % FS)
    a("v_and_b32 v11, 3, v2")
    a("v_lshl_add_u32 v10, v11, 3, v10")
    a("v_add_u32 v10, %d, v10" % TREG)
    a("s_mul_i32 s26, s25, 160")
    a("v_add_u32 v%d, s26, v10" % bF)
    a("v_add_u32 v%d, 128, v10" % bFh)
    for d, s_ in ((vTa[0], bTa[0]), (vTb[0], bTb[0]), (vTa[1], bTa[1]), (vTb[1], bTb[1]), (vF, bF), (vFh, bFh)):
        a("v_mov_b32 v%d, v%d" % (d, s_))
    a("s_waitcnt lgkmcnt(0)")
    srd(a, 12, 6, WS_BYTES)
    srd(a, 28, 92, 2048 * 2)
    srd(a, 60, 56, 256)
    NTB = R * SLOT
    ND = 128
    a("s_lshl_b32 s36, s22, 7")
    a("s_lshl_b32 s37, s3, 5")
    a("s_add_u32 s36, s36, s37")
    a("s_lshl_b32 s36, s36, 8")
    a("s_add_u32 s36, s36, 0x%x" % STATS2)
    a("v_lshlrev_b32 v10, 7, v2")
    for q in range(8):
        a("buffer_load_dwordx4 %s, v10, s[12:15], s36 offen offset:%d" % (vr(16 + 4 * q), 16 * q))
    a("s_lshl_b32 s52, s23, 5")
    a("s_lshl_b32 s37, s22, 1")
    a("s_add_u32 s52, s52, s37")
    a("s_mul_i32 s52, s52, 18432")
    a("s_mul_i32 s37, s3, 9216")
    a("s_add_u32 s52, s52, s37")
    if ZIMG: a("s_add_u32 s52, s52, 0x%x" % ZIMG)
    a("s_add_u32 s53, s52, 4096")
    a("s_add_u32 s55, s52, 8192")
    a("v_lshlrev_b32 v12, 4, v2")
    for n in range(9):
        a("buffer_load_dwordx4 %s, v12, s[12:15], s%d offen offset:%d sc1" % (vr(ND + 4 * n), (52, 53, 55)[n >> 2], (n & 3) * 1024))
    a("s_waitcnt vmcnt(9)")
    for st_ in (16, 8, 4, 2):
        for q in range(0, st_, 2):
            a("v_pk_add_f32 %s, %s, %s" % (vr(16 + q, 2), vr(16 + q, 2), vr(16 + q + st_, 2)))
    a("s_nop 1")
    for e in range(2):
        a("v_add_f32_dpp v%d, v%d, v%d quad_perm:[1,0,3,2] row_mask:0xf bank_mask:0xf" % (16 + e, 16 + e, 16 + e))
    emit_ln_finish(a, 16, 17, 2304, 18, 20, 22)
    a("v_mul_f32 v21, -v18, v20")
    a("v_lshrrev_b32 v10, 1, v2")
    a("v_and_b32 v11, 3, v10")
    a("v_bfe_u32 v13, v10, 3, 2")
    a("v_lshl_add_u32 v11, v13, 2, v11")
    a("v_bfe_u32 v13, v10, 2, 1")
    a("v_lshl_add_u32 v11, v13, 4, v11")
    a("s_lshl_b32 s36, s3, 8")
    a("s_add_u32 s36, s36, %d" % NTB)
    a("v_lshl_add_u32 v11, v11, 3, s36")
    a("ds_write_b64 v11, v[20:21]")
    for n in range(9):
        a("v_add_u32 v10, %d, v2" % (64 * n))
        a("v_mul_u32_u24 v10, 3641, v10")
        a("v_lshrrev_b32 v10, 16, v10")
        a("v_lshl_add_u32 v%d, v10, 3, s36" % (24 + n))
    a("s_waitcnt lgkmcnt(0)")
    for n in range(9):
        a("ds_read_b64 %s, v%d" % (vr(52 + 2 * n, 2), 24 + n))
    a("s_waitcnt vmcnt(0) lgkmcnt(0)")
    for n in range(9):
        for d in range(4):
            z = ND + 4 * n + d; t_ = 72 + 2 * d
            a("v_lshlrev_b32 v%d, 16, v%d" % (t_, z))
            a("v_and_b32 v%d, 0xffff0000, v%d" % (t_ + 1, z))
        for d in range(4):
            t_ = 72 + 2 * d
            a("v_pk_fma_f32 %s, %s, %s, %s op_sel:[0,0,1] op_sel_hi:[1,0,1]" % (vr(t_, 2), vr(t_, 2), vr(52 + 2 * n, 2), vr(52 + 2 * n, 2)))
        for d in range(4):
            a("v_cvt_pk_bf16_f32 v%d, v%d, v%d" % (200 + 4 * n + d, 72 + 2 * d, 73 + 2 * d))
        a("buffer_store_dwordx4 %s, v12, s[12:15], s%d offen offset:%d sc1" % (vr(200 + 4 * n), (52, 53, 55)[n >> 2], (n & 3) * 1024))
    srd(a, 76, 94, 2304 * 576 * 2)
    a("s_mov_b32 s42, s2")
    emit_wot_loads(a, 240, 252, 720, 3)
    MR = 100; CS = 108; ONE = 96
    a("s_lshl_b32 s36, s22, 7")
    a("s_lshl_b32 s37, s24, 6")
    a("s_add_u32 s36, s36, s37")
    a("s_lshl_b32 s36, s36, 3")
    a("s_add_u32 s36, s36, 0x%x" % STATS1)
    a("s_lshl_b32 s37, s25, 8")
    a("s_add_u32 s38, s36, s37")
    a("s_xor_b32 s37, s37, 256")
    a("s_add_u32 s39, s36, s37")
    a("v_lshlrev_b32 v10, 3, v3")
    a("buffer_load_dwordx2 %s, v10, s[12:15], s38 offen" % vr(MR, 2))
    a("buffer_load_dwordx2 %s, v10, s[12:15], s38 offen offset:128" % vr(MR + 2, 2))
    a("buffer_load_dwordx2 %s, v10, s[12:15], s39 offen" % vr(MR + 4, 2))
    a("buffer_load_dwordx2 %s, v10, s[12:15], s39 offen offset:128" % vr(MR + 6, 2))
    for r in range(CS, CS + 20): a("v_mov_b32 v%d, 0" % r)
    for r in range(ONE, ONE + 4): a("v_mov_b32 v%d, 0x3f803f80" % r)
    stamp_setup(a, 2); stamp(a, 0)
    a("s_mov_b32 s99, 0")
    for r in range(ACC, ACC + 72): a("v_mov_b32 v%d, 0" % r)
    a("s_mov_b32 s27, 0")
    a("s_mov_b32 s33, 0")
    core = G.Core(a, ACC, FB[0], FB[1], FS, TREG, vTa, vTb, vF, vFh)
    trk = core.trk
    a("s_barrier")
    stamp(a, 1)
    core.prime(0, core.reads(0, 0))
    withcs = [True]
    def mfmas(buf):
        L = []
        for ft in range(5):
            A = core.F(buf, ft)
            for tt in range(4 if ft < 4 else 2):
                c = core.accr(ft, tt); B = core.T(buf, tt)
                L.append(("v_mfma_f32_16x16x32_bf16 %s, %s, %s, %s" % (vr(c), vr(A), vr(B), vr(c)), list(range(A, A + 4)) + list(range(B, B + 4))))
            if withcs[0]:
                L.append(("v_mfma_f32_16x16x32_bf16 %s, %s, %s, %s" % (vr(CS + 4 * ft), vr(A), vr(ONE), vr(CS + 4 * ft)), list(range(A, A + 4))))
        return L
    def phase(buf, pend):
        for (m, regs) in mfmas(buf):
            trk.need(regs)
            a(m)
            while pend:
                k, t = pend.pop(0)
                if k == "x":
                    a(t)
                    if t.startswith("s_"): continue
                else:
                    a(t[0]); trk.issue(t[1])
                break
        for k, t in pend:
            if k == "x": a(t)
            else: a(t[0]); trk.issue(t[1])
    def iteration(extra=None):
        a("s_barrier")
        rd = [("r", t) for t in core.reads(1, 1)]
        upd = ["s_add_u32 s27, s27, %d" % SLOT, "s_cmp_eq_u32 s27, %d" % (R * SLOT), "s_cselect_b32 s27, 0, s27"]
        tail = ["v_add_u32 v%d, s27, v%d" % (d, s_) for d, s_ in ((vTa[0], bTa[0]), (vF, bF), (vTb[0], bTb[0]), (vFh, bFh))]
        phase(0, rd[:1] + [("x", u) for u in upd] + rd[1:] + [("x", u) for u in tail])
        rd = [("r", t) for t in core.reads(0, 0)]
        tail = ["v_add_u32 v%d, s27, v%d" % (d, s_) for d, s_ in ((vTa[1], bTa[1]), (vTb[1], bTb[1]))] + ["s_add_u32 s33, s33, 1"]
        phase(1, rd + [("x", u) for u in tail])
    trk.drain()
    a.label("%s_zloop" % name)
    lb = len(a.lines); iteration(); st = copy.deepcopy(trk.out); del a.lines[lb:]; trk.out = copy.deepcopy(st)
    iteration()
    assert [sorted(x) for x in trk.out] == [sorted(x) for x in st]
    a("s_cmp_lg_u32 s33, 2")
    a("s_cbranch_scc1 %s_zs1" % name)
    a("s_waitcnt vmcnt(0)")
    a.label("%s_zs1" % name)
    a("s_lshl_b32 s36, s3, 8")
    a("s_add_u32 s36, s36, s33")
    a("s_cmp_lg_u32 s36, 3")
    a("s_cbranch_scc1 %s_zs2" % name)
    a("v_mov_b32 v10, 1")
    a("s_lshl_b32 s36, s23, 2")
    a("v_mov_b32 v11, s36")
    a("s_mov_b64 exec, 1")
    a("buffer_atomic_add v10, v11, s[60:63], 0 offen sc1")
    a("s_mov_b64 exec, -1")
    a.label("%s_zs2" % name)
    a("s_cmp_lt_u32 s33, 9")
    a("s_cbranch_scc1 %s_zloop" % name)
    trk.drain()
    stamp(a, 5)
    gelu_consts(a)
    a("s_waitcnt vmcnt(0)")
    for tt in range(4): a("v_sub_f32 v%d, 0, v%d" % (MR + 2 * tt, MR + 2 * tt))
    a("s_mov_b32 s35, 0x%x" % WOT)
    for n in range(3):
        a("buffer_store_dwordx4 %s, v%d, s[12:15], s35 offen" % (vr(240 + 4 * n), 252 + n))
    for ft in range(5):
        tts = range(4 if ft < 4 else 2)
        emit_fold_gelu(a, [(core.accr(ft, tt), CS + 4 * ft, MR + 2 * tt, Z1R + 2 * tidx(ft, tt)) for tt in tts], 56)
    for r in range(ACC, ACC + 72): a("v_mov_b32 v%d, 0" % r)
    a("s_mov_b32 s33, 0")
    stamp(a, 6)
    withcs[0] = False
    a.label("%s_cloop" % name)
    lb = len(a.lines); iteration(); st = copy.deepcopy(trk.out); del a.lines[lb:]; trk.out = copy.deepcopy(st)
    iteration()
    assert [sorted(x) for x in trk.out] == [sorted(x) for x in st]
    a("s_cmp_lg_u32 s33, 24")
    a("s_cbranch_scc1 %s_noz" % name)
    a("s_lshl_b32 s36, s22, 7")
    a("s_lshl_b32 s37, s24, 6")
    a("s_add_u32 s36, s36, s37")
    a("v_lshlrev_b32 v11, 1, v3")
    a("s_lshl_b32 s37, s25, 6")
    a("s_lshl_b32 s38, s36, 1")
    a("s_add_u32 s39, s38, s37")
    a("s_xor_b32 s37, s37, 64")
    a("s_add_u32 s40, s38, s37")
    a("buffer_load_ushort v%d, v11, s[28:31], s39 offen" % (BI + 0))
    a("buffer_load_ushort v%d, v11, s[28:31], s39 offen offset:32" % (BI + 2))
    a("buffer_load_ushort v%d, v11, s[28:31], s40 offen" % (BI + 4))
    a("buffer_load_ushort v%d, v11, s[28:31], s40 offen offset:32" % (BI + 6))
    a.label("%s_noz" % name)
    a("s_cmp_lt_u32 s33, %d" % NST)
    a("s_cbranch_scc1 %s_cloop" % name)
    trk.drain()
    stamp(a, 2)
    a.label("%s_epi" % name)
    a("v_lshrrev_b32 v10, 4, v2")
    a("v_and_b32 v11, 1, v10")
    a("v_lshrrev_b32 v12, 1, v10")
    a("v_lshl_add_u32 v12, v11, 1, v12")
    a("s_mul_i32 s35, s23, 18")
    a("s_mul_i32 s36, s25, 10")
    a("s_add_u32 s36, s36, s35")
    a("v_lshrrev_b32 v13, 1, v3")
    a("s_lshl_b32 s37, s22, 1")
    a("s_add_u32 s37, s37, s24")
    a("s_mul_i32 s37, s37, %d" % (36 * 8192))
    a("s_add_u32 s37, s37, 0x%x" % PIMG)
    a("s_lshl_b32 s38, s25, 12")
    a("s_add_u32 s39, s37, s38")
    a("s_xor_b32 s38, s38, 4096")
    a("s_add_u32 s40, s37, s38")
    def addr(dst, pv):
        a("v_lshrrev_b32 v14, 3, v%d" % pv)
        a("v_lshlrev_b32 v14, 13, v14")
        a("v_and_b32 v15, 7, v%d" % pv)
        a("v_xor_b32 v15, v15, v13")
        a("v_lshl_add_u32 v14, v15, 4, v14")
        a("v_lshl_add_u32 v%d, v3, 7, v14" % dst)
    a("v_add_u32 v16, s36, v12"); addr(4, 16)
    a("v_add_u32 v16, 4, v16"); addr(5, 16)
    a("v_lshrrev_b32 v16, 1, v10")
    a("s_add_u32 s35, s35, 8")
    a("v_add_u32 v16, s35, v16"); addr(6, 16)
    a("v_lshl_add_u32 v6, v11, 11, v6")
    a("s_waitcnt vmcnt(0)")
    for tt in range(4):
        a("v_lshlrev_b32 v%d, 16, v%d" % (BI + 2 * tt, BI + 2 * tt))
    stamp(a, 3)
    def ptiles(lst, O):
        T = 24
        for q, (ft, tt) in enumerate(lst):
            c = core.accr(ft, tt)
            for h in (0, 2):
                a("v_pk_add_f32 %s, %s, %s op_sel_hi:[1,0]" % (vr(c + h, 2), vr(c + h, 2), vr(BI + 2 * tt, 2)))
        for q, (ft, tt) in enumerate(lst):
            c = core.accr(ft, tt)
            a("v_cvt_pk_bf16_f32 v%d, v%d, v%d" % (T + 2 * q, c, c + 1))
            a("v_cvt_pk_bf16_f32 v%d, v%d, v%d" % (T + 2 * q + 1, c + 2, c + 3))
        for q, (ft, tt) in enumerate(lst):
            c = core.accr(ft, tt); z = Z1R + 2 * tidx(ft, tt)
            for d in range(2):
                a("v_lshlrev_b32 v%d, 16, v%d" % (c + 2 * d, T + 2 * q + d))
                a("v_and_b32 v%d, 0xffff0000, v%d" % (c + 2 * d + 1, T + 2 * q + d))
                a("v_lshlrev_b32 v%d, 16, v%d" % (T + 4 + 4 * q + 2 * d, z + d))
                a("v_and_b32 v%d, 0xffff0000, v%d" % (T + 5 + 4 * q + 2 * d, z + d))
        for q, (ft, tt) in enumerate(lst):
            c = core.accr(ft, tt)
            for h in (0, 2):
                a("v_pk_mul_f32 %s, %s, %s" % (vr(c + h, 2), vr(c + h, 2), vr(T + 4 + 4 * q + h, 2)))
        for q, (ft, tt) in enumerate(lst):
            c = core.accr(ft, tt)
            a("v_cvt_pk_bf16_f32 v%d, v%d, v%d" % (O + 2 * q, c, c + 1))
            a("v_cvt_pk_bf16_f32 v%d, v%d, v%d" % (O + 2 * q + 1, c + 2, c + 3))
        a("s_nop 1")
        a("v_permlane16_swap_b32 v%d, v%d" % (O, O + 2))
        a("v_permlane16_swap_b32 v%d, v%d" % (O + 1, O + 3))
        a("s_nop 0")
    cnt = 0
    for pr in range(2):
        for tt in range(4):
            O = 40 + 4 * cnt; cnt += 1
            ptiles([(2 * pr, tt), (2 * pr + 1, tt)], O)
            a("buffer_store_dwordx4 %s, v%d, s[12:15], s%d offen offset:%d" % (vr(O), 4 + pr, 39 if tt < 2 else 40, (tt & 1) * 2048))
    O = 40 + 4 * cnt
    ptiles([(4, 0), (4, 1)], O)
    a("buffer_store_dwordx4 %s, v6, s[12:15], s39 offen" % vr(O))
    seg_end2(a, name)
    stamp(a, 4)
    G.stamp_rt(a, 1)
    a.label("%s_end" % name)
    a("s_endpgm")
    return a.text(), kernel_desc(name, 256, 256), (name, 256, 512, R * SLOT + 1024)


def gen_k3b(name="k3_kernel", R=4):
    a = Asm()
    TREG = 16384; FS = 160; SLOT = TREG + 128 * FS; NST = 18
    YOFF = R * SLOT
    kernel_begin(a, name)
    a("s_load_dwordx2 s[6:7], s[0:1], 104")
    a("s_load_dwordx2 s[4:5], s[0:1], 0")
    a("s_load_dwordx2 s[16:17], s[0:1], 88")
    a("s_cmp_ge_u32 s2, 256")
    a("s_cbranch_scc1 %s_end" % name)
    a("v_lshrrev_b32 v1, 6, v0")
    a("v_and_b32 v2, 63, v0")
    a("v_readfirstlane_b32 s3, v1")
    a("s_and_b32 s20, s2, 7")
    a("s_lshr_b32 s21, s2, 3")
    a("s_and_b32 s22, s20, 3")
    a("s_lshl_b32 s22, s22, 3")
    a("s_and_b32 s23, s21, 7")
    a("s_add_u32 s22, s22, s23")
    a("s_lshr_b32 s23, s20, 2")
    a("s_lshl_b32 s23, s23, 2")
    a("s_lshr_b32 s24, s21, 3")
    a("s_add_u32 s23, s23, s24")
    a("s_lshr_b32 s52, s23, 1")
    a("s_and_b32 s53, s23, 1")
    XR = 200; ST = 208
    def fin_loads():
        a("v_and_b32 v3, 15, v2")
        a("v_lshrrev_b32 v10, 4, v2")
        a("v_mul_u32_u24 v13, 1152, v3")
        a("v_lshl_add_u32 v13, v10, 3, v13")
        a("v_lshlrev_b32 v12, 3, v3")
        for s_ in range(3):
            if s_ == 2:
                a("s_cmp_ge_u32 s54, 2")
                a("s_cbranch_scc1 %s_fl%d" % (name, fin_loads.cnt))
            b = 64 + 4 * s_
            if s_ < 2:
                a("s_add_u32 s36, s54, %d" % (8 * s_))
                a("s_lshr_b32 s37, s36, 2")
                a("s_and_b32 s38, s36, 3")
                a("s_mul_i32 s39, s53, 160")
                a("s_lshl_b32 s40, s37, 5")
                a("s_add_u32 s39, s39, s40")
            else:
                a("s_add_u32 s36, s54, 16")
                a("s_mov_b32 s37, 4")
                a("s_mov_b32 s38, s54")
                a("s_mov_b32 s39, 128")
            a("s_lshl_b32 s40, s53, 1")
            a("s_add_u32 s38, s38, s40")
            a("s_and_b32 s38, s38, 3")
            a("s_lshl_b32 s40, s22, 2")
            a("s_add_u32 s40, s40, s38")
            a("s_lshl_b32 s40, s40, 4")
            a("s_mul_i32 s%d, s40, 1152" % b)
            a("s_add_u32 s%d, s%d, s39" % (b, b))
            a("s_mul_i32 s39, s52, 288")
            a("s_add_u32 s%d, s%d, s39" % (b, b))
            a("s_lshl_b32 s%d, s37, 11" % (b + 1))
            a("s_lshl_b32 s39, s38, 5")
            a("s_add_u32 s%d, s%d, s39" % (b + 1, b + 1))
            a("s_add_u32 s%d, s%d, %d" % (b + 1, b + 1, YOFF))
            a("s_lshl_b32 s%d, s36, 10" % (b + 2))
            a("s_lshl_b32 s40, s40, 3")
            a("s_add_u32 s40, s40, 0x%x" % STATS1)
            a("buffer_load_dwordx2 %s, v13, s[8:11], s%d offen" % (vr(XR + 2 * s_, 2), b))
            a("buffer_load_dwordx2 %s, v12, s[12:15], s40 offen" % vr(ST + 2 * s_, 2))
        a.label("%s_fl%d" % (name, fin_loads.cnt))
        fin_loads.cnt += 1
    fin_loads.cnt = 0
    a("s_mov_b32 s54, s3")
    a("s_cmp_lt_u32 s3, 4")
    a("s_cbranch_scc1 %s_consumer" % name)
    a("s_setprio 3")
    a("s_sub_u32 s3, s3, 4")
    a("v_lshlrev_b32 v14, 4, v2")
    a("s_mul_i32 s26, s22, %d" % (36 * 8192))
    a("s_lshl_b32 s24, s3, 12")
    a("s_add_u32 s26, s26, s24")
    a("s_add_u32 s26, s26, 0x%x" % PIMG)
    a("s_mul_i32 s27, s23, %d" % (18 * 20480))
    a("s_mul_i32 s25, s3, 5120")
    a("s_add_u32 s27, s27, s25")
    a("s_add_u32 s27, s27, 0x%x" % WOT)
    a("s_add_u32 s25, s25, %d" % TREG)
    a("s_mov_b32 s33, 0")
    a("s_waitcnt lgkmcnt(0)")
    srd(a, 12, 6, WS_BYTES)
    def issue():
        a("s_add_u32 s35, s33, s24")
        a("s_mov_b32 m0, s35")
        a("s_add_u32 s36, s33, s25")
        for n in range(4):
            a("buffer_load_dwordx4 v14, s[12:15], s26 offen offset:%d lds" % (n * 1024))
        a("s_mov_b32 m0, s36")
        a("s_add_u32 s37, s27, 4096")
        for n in range(4):
            a("buffer_load_dwordx4 v14, s[12:15], s27 offen offset:%d lds" % (n * 1024))
        a("s_add_u32 s36, s36, 4096")
        a("s_mov_b32 m0, s36")
        a("s_add_u32 s26, s26, 16384")
        a("buffer_load_dwordx4 v14, s[12:15], s37 offen lds")
        a("s_add_u32 s27, s27, 20480")
        a("s_add_u32 s33, s33, %d" % SLOT)
        a("s_cmp_eq_u32 s33, %d" % (R * SLOT))
        a("s_cselect_b32 s33, 0, s33")
    issue(); issue()
    a("s_add_u32 s3, s3, 4"); stamp_setup(a, 3); stamp(a, 0); a("s_sub_u32 s3, s3, 4")
    srd(a, 8, 4, 2048 * 576 * 2)
    srd(a, 28, 16, 2048 * 576 * 2)
    a("s_waitcnt vmcnt(9)")
    a("s_barrier")
    issue(); issue()
    a("s_waitcnt vmcnt(18)")
    a("s_barrier")
    a("s_mov_b32 s34, 0")
    a.label("%s_lloop" % name)
    issue()
    a("s_waitcnt vmcnt(18)")
    a("s_barrier")
    a("s_add_u32 s34, s34, 1")
    a("s_cmp_lt_u32 s34, %d" % (NST - R))
    a("s_cbranch_scc1 %s_lloop" % name)
    a("v_lshrrev_b32 v3, 3, v2")
    a("v_and_b32 v4, 7, v2")
    a("v_lshlrev_b32 v4, 4, v4")
    a("s_mul_i32 s33, s52, 144")
    a("s_mul_i32 s34, s53, 80")
    a("s_lshl_b32 s35, s22, 7")
    a("s_add_u32 s35, s35, 0x%x" % YT)
    for n in range(3):
        a("s_add_u32 s36, s3, %d" % (4 * n))
        if n == 2:
            a("s_min_u32 s36, s36, 9")
        a("s_lshl_b32 s37, s36, 3")
        a("s_add_u32 s38, s37, s33")
        if n < 2: a("s_add_u32 s38, s38, s34")
        a("v_add_u32 v5, s38, v3")
        a("v_lshl_add_u32 v5, v5, 12, v4")
        a("s_lshl_b32 s36, s36, 10")
        a("s_add_u32 s36, s36, %d" % YOFF)
        a("s_mov_b32 m0, s36")
        a("s_nop 0")
        a("buffer_load_dwordx4 v5, s[12:15], s35 offen lds")
    fin_loads()
    a("s_waitcnt vmcnt(%d)" % (9 + 7))
    a("s_barrier")
    a("s_waitcnt vmcnt(7)")
    a("s_barrier")
    a("s_barrier")
    a("s_setprio 0")
    a("s_waitcnt vmcnt(0)")
    a("s_branch %s_fin" % name)
    a.label("%s_consumer" % name)
    ACC = 128; FB0 = 16; FB1 = 52
    vTa = [4, 4]; vTb = [6, 6]; vF = 8; vFh = 9
    bTa = 88; bTb = 90; bF = 92; bFh = 93
    a("v_and_b32 v3, 15, v2")
    a("v_lshrrev_b32 v10, 4, v2")
    a("s_and_b32 s26, s3, 1")
    a("s_lshl_b32 s26, s26, 2")
    a("v_add_u32 v10, s26, v10")
    a("v_lshrrev_b32 v11, 1, v3")
    a("v_xor_b32 v10, v10, v11")
    a("v_lshlrev_b32 v10, 4, v10")
    a("v_lshl_add_u32 v10, v3, 7, v10")
    a("s_lshr_b32 s26, s3, 1")
    a("s_lshl_b32 s26, s26, 13")
    a("v_add_u32 v10, s26, v10")
    a("s_lshl_b32 s26, s53, 12")
    a("v_add_u32 v%d, s26, v10" % bTa)
    a("s_xor_b32 s26, s26, 4096")
    a("v_add_u32 v%d, s26, v10" % bTb)
    a("v_lshrrev_b32 v10, 2, v2")
    a("v_mul_u32_u24 v10, %d, v10" % FS)
    a("v_and_b32 v11, 3, v2")
    a("v_lshl_add_u32 v10, v11, 3, v10")
    a("s_mul_i32 s26, s3, %d" % (32 * FS))
    a("s_add_u32 s26, s26, %d" % TREG)
    a("v_add_u32 v%d, s26, v10" % bF)
    a("v_add_u32 v%d, 128, v%d" % (bFh, bF))
    a("s_waitcnt lgkmcnt(0)")
    srd(a, 12, 6, WS_BYTES)
    srd(a, 8, 4, 2048 * 576 * 2)
    srd(a, 28, 16, 2048 * 576 * 2)
    stamp_setup(a, 3); stamp(a, 0)
    fin_loads()
    core = G.Core(a, ACC, FB0, FB1, FS, TREG, vTa, vTb, vF, vFh)
    trk = core.trk
    pairs = ((vTa[0], bTa), (vF, bF), (vTb[0], bTb), (vFh, bFh))
    for d, s_ in pairs: a("v_mov_b32 v%d, v%d" % (d, s_))
    for r in range(ACC, ACC + 72): a("v_mov_b32 v%d, 0" % r)
    a("s_mov_b32 s27, 0")
    a("s_mov_b32 s33, 0")
    a("s_barrier")
    stamp(a, 1)
    core.prime(0, core.reads(0, 0))
    def iteration(buf):
        trk.drain()
        a("s_barrier")
        a("s_add_u32 s27, s27, %d" % SLOT)
        a("s_cmp_eq_u32 s27, %d" % (R * SLOT))
        a("s_cselect_b32 s27, 0, s27")
        pre = ["v_add_u32 v%d, s27, v%d" % (d, s_) for d, s_ in pairs]
        core.phase(buf, core.reads(1 - buf, 0), pre=pre)
    a.label("%s_cloop" % name)
    iteration(0); iteration(1)
    a("s_add_u32 s33, s33, 1")
    a("s_cmp_lt_u32 s33, %d" % (NST // 2))
    a("s_cbranch_scc1 %s_cloop" % name)
    trk.drain()
    stamp(a, 2)
    a("s_mul_i32 s33, s3, %d" % (18 * 1024))
    a("v_lshlrev_b32 v10, 4, v2")
    a("v_add_u32 v11, s33, v10")
    a("s_nop 4")
    for n, (ft, tt) in enumerate(TILES):
        a("ds_write_b128 v11, %s offset:%d" % (vr(core.accr(ft, tt)), 1024 * tidx(ft, tt)))
        if n in (7, 13): a("s_waitcnt lgkmcnt(4)")
    a("s_waitcnt lgkmcnt(0) vmcnt(0)")
    a.label("%s_fin" % name)
    a("s_barrier")
    stamp(a, 3)
    a("v_lshlrev_b32 v10, 4, v2")
    a("v_lshrrev_b32 v11, 2, v2")
    a("v_lshlrev_b32 v11, 7, v11")
    a("v_and_b32 v12, 3, v2")
    a("v_lshl_add_u32 v11, v12, 3, v11")
    a("s_mov_b32 s33, 0xbfb8aa3b")
    PT = 16; YR = 64
    for s_ in range(3):
        b = 64 + 4 * s_
        if s_ == 2:
            a("s_cmp_ge_u32 s54, 2")
            a("s_cbranch_scc1 %s_rd" % name)
        a("v_add_u32 v4, s%d, v10" % (b + 2))
        a("v_add_u32 v5, s%d, v11" % (b + 1))
        for q in range(4):
            a("ds_read_b128 %s, v4 offset:%d" % (vr(PT + 16 * s_ + 4 * q), 18432 * q))
        a("ds_read_b64_tr_b16 %s, v5" % vr(YR + 2 * s_, 2))
    a.label("%s_rd" % name)
    T = 104
    for s_ in range(3):
        b = 64 + 4 * s_
        if s_ == 0: a("s_waitcnt lgkmcnt(5)")
        if s_ == 1: a("s_waitcnt lgkmcnt(0)")
        if s_ == 2:
            a("s_cmp_ge_u32 s54, 2")
            a("s_cbranch_scc1 %s_done" % name)
        o = PT + 16 * s_; X = XR + 2 * s_; Y = YR + 2 * s_; S_ = ST + 2 * s_
        for h in (0, 2):
            a("v_pk_add_f32 %s, %s, %s" % (vr(o + h, 2), vr(o + h, 2), vr(o + 4 + h, 2)))
            a("v_pk_add_f32 %s, %s, %s" % (vr(o + 8 + h, 2), vr(o + 8 + h, 2), vr(o + 12 + h, 2)))
        for h in (0, 2):
            a("v_pk_add_f32 %s, %s, %s" % (vr(o + h, 2), vr(o + h, 2), vr(o + 8 + h, 2)))
        rnd_pair(a, T + 20, o, o + 1); rnd_pair(a, T + 21, o + 2, o + 3)
        for r in range(4): a("v_mul_f32 v%d, s33, v%d" % (T + r, o + r))
        for r in range(4): a("v_exp_f32 v%d, v%d" % (T + r, T + r))
        a("v_lshlrev_b32 v%d, 16, v%d" % (T + 4, X)); a("v_and_b32 v%d, 0xffff0000, v%d" % (T + 5, X))
        a("v_lshlrev_b32 v%d, 16, v%d" % (T + 6, X + 1)); a("v_and_b32 v%d, 0xffff0000, v%d" % (T + 7, X + 1))
        for r in range(4): a("v_add_f32 v%d, 1.0, v%d" % (T + r, T + r))
        for r in range(4): a("v_rcp_f32 v%d, v%d" % (T + r, T + r))
        for r in range(4): a("v_sub_f32 v%d, v%d, v%d" % (T + 12 + r, T + 4 + r, S_))
        a("v_lshlrev_b32 v%d, 16, v%d" % (T + 8, Y)); a("v_and_b32 v%d, 0xffff0000, v%d" % (T + 9, Y))
        a("v_lshlrev_b32 v%d, 16, v%d" % (T + 10, Y + 1)); a("v_and_b32 v%d, 0xffff0000, v%d" % (T + 11, Y + 1))
        for r in range(4): a("v_mul_f32 v%d, v%d, v%d" % (o + r, o + r, T + r))
        rnd_pair(a, T + 20, T + 12, T + 13); rnd_pair(a, T + 21, T + 14, T + 15)
        rnd_pair(a, T + 22, o, o + 1); rnd_pair(a, T + 23, o + 2, o + 3)
        for r in range(4): a("v_mul_f32 v%d, v%d, v%d" % (T + 12 + r, T + 12 + r, S_ + 1))
        rnd_pair(a, T + 20, T + 12, T + 13); rnd_pair(a, T + 21, T + 14, T + 15)
        for r in range(4): a("v_mul_f32 v%d, v%d, v%d" % (T + 12 + r, T + 12 + r, T + 8 + r))
        rnd_pair(a, T + 20, T + 12, T + 13); rnd_pair(a, T + 21, T + 14, T + 15)
        for r in range(4): a("v_mul_f32 v%d, v%d, v%d" % (T + 12 + r, T + 12 + r, o + r))
        rnd_pair(a, T + 20, T + 12, T + 13); rnd_pair(a, T + 21, T + 14, T + 15)
        for r in range(4): a("v_add_f32 v%d, v%d, v%d" % (T + 12 + r, T + 12 + r, T + 4 + r))
        a("v_cvt_pk_bf16_f32 v%d, v%d, v%d" % (X, T + 12, T + 13))
        a("v_cvt_pk_bf16_f32 v%d, v%d, v%d" % (X + 1, T + 14, T + 15))
        a("buffer_store_dwordx2 %s, v13, s[28:31], s%d offen" % (vr(X, 2), b))
    a.label("%s_done" % name)
    stamp(a, 4)
    G.stamp_rt(a, 1)
    a.label("%s_end" % name)
    a("s_endpgm")
    return a.text(), kernel_desc(name, 256, 256), (name, 256, 512, R * SLOT + 10240)

def gen_kw(name="kw_kernel"):
    return G.gen_k0(name)

gen_k2 = G.gen_k2; gen_k3 = G.gen_k3; gen_kc = G.gen_kc

if __name__ == "__main__":
    which = sys.argv[1]; out = sys.argv[2]
    if len(sys.argv) > 3: DBG.update(sys.argv[3].split(","))
    ks = [globals()["gen_" + w]() for w in which.split(",")]
    if "wt" in DBG:
        import re
        ks = [(re.sub(r"(buffer_store_dwordx[24] [^\n]*s\[12:15\][^\n]*?)( sc1)?\n", lambda m: m.group(1) + " sc1\n", k[0]),) + k[1:] for k in ks]
    if "nts" in DBG:
        import re
        ks = [(re.sub(r"(buffer_store_dwordx4 [^\n]*s\[12:15\][^\n]*?)\n", lambda m: m.group(1) + (" nt\n" if "sc1" not in m.group(1) else "\n"), k[0]),) + k[1:] for k in ks]
    open(out, "w").write(assemble_file([k[2] for k in ks], "".join(k[0] for k in ks), [k[1] for k in ks]))
```

```python
import sys, copy
from asmgen import *
import gen as G
import gen2 as G2
import gen3 as G3
from gen import (ZIMG, Z1IMG, PIMG, WOT, KVT, YT, STATS2, STATS1, WS_BYTES, DBG, LdsTracker, vr, stamp, stamp_setup,
                 rnd_pair, f32, emit_xg_reduce, emit_ln_finish)
from gen2 import VmTracker, TILES, tidx, emit_fold_gelu, gelu_consts, SPIN_MAX
from gen3 import emit_kv_loads, emit_kv_compute, emit_wot_loads

def emit_code_prefetch(a, name, nload=3):
    if "cpf" not in DBG: return
    a("s_getpc_b64 s[40:41]")
    a.label("%s_pc" % name)
    a("s_sub_u32 s40, s40, %s_pc-%s" % (name, name))
    a("s_subb_u32 s41, s41, 0")
    a("s_and_b32 s41, s41, 0xffff")
    a("s_mov_b32 s42, code_end_lbl-%s" % name)
    a("s_mov_b32 s43, 0x00020000")
    a("v_lshlrev_b32 v10, 7, v2")
    a("s_mul_i32 s36, s3, %d" % (nload * 8192))
    for n in range(nload):
        a("buffer_load_dword v200, v10, s[40:43], s36 offen")
        if n < nload - 1: a("s_add_u32 s36, s36, 8192")

def gen_k1h(name="k1_kernel", R=4):
    a = Asm()
    RB = 4096; SLOT = 34816; TREG = 16384; FS = 288; RST = 0
    LDSB = RB + R * SLOT
    def capture(f, *args):
        lb = len(a.lines); f(*args); out = a.lines[lb:]; del a.lines[lb:]; return out
    kernel_begin(a, name)
    a("s_load_dwordx2 s[80:81], s[0:1], 0")
    a("s_load_dwordx2 s[4:5], s[0:1], 56")
    a("s_load_dwordx2 s[6:7], s[0:1], 104")
    a("s_load_dwordx2 s[18:19], s[0:1], 96")
    a("s_cmp_ge_u32 s2, 256")
    a("s_cbranch_scc1 %s_end" % name)
    a("v_lshrrev_b32 v1, 6, v0")
    a("v_and_b32 v2, 63, v0")
    a("v_readfirstlane_b32 s3, v1")
    G2.tile_ij(a)
    a("s_lshr_b32 s98, s3, 2")
    a("s_mov_b32 s54x, 0".replace("s54x", "s99"))
    a("s_and_b32 s3, s3, 3")
    a("s_lshr_b32 s24, s3, 1")
    a("s_and_b32 s25, s3, 1")
    a("v_and_b32 v3, 15, v2")
    VT = 204; VF = 208
    def loader_setup():
        a("v_lshrrev_b32 v5, 3, v2")
        a("v_and_b32 v4, 7, v2")
        a("s_lshl_b32 s36, s3, 5")
        a("v_add_u32 v5, s36, v5")
        a("v_lshrrev_b32 v7, 4, v2")
        a("v_xor_b32 v7, v7, v4")
        a("v_mul_u32_u24 v6, 1152, v5")
        a("v_lshl_add_u32 v%d, v7, 4, v6" % VT)
        a("v_xor_b32 v%d, 64, v%d" % (VT + 1, VT))
        a("v_add_u32 v%d, %d, v%d" % (VT + 1, 9216 - 1024, VT + 1))
        a("v_add_u32 v%d, %d, v%d" % (VT + 2, 2 * (9216 - 1024), VT))
        a("v_add_u32 v%d, %d, v%d" % (VT + 3, 2 * (9216 - 1024), VT + 1))
        a("s_lshl_b32 s84, s3, 12")
        a("s_add_u32 s84, s84, %d" % RB)
        a("s_lshl_b32 s85, s3, 9")
        a("s_add_u32 s85, s85, %d" % (RB + TREG + 16384))
    def loader_setup2():
        for n in range(5):
            if n < 4:
                a("s_lshl_b32 s36, s3, 8")
                a("s_add_u32 s36, s36, %d" % (64 * n))
            else:
                a("s_lshl_b32 s36, s3, 5")
                a("s_add_u32 s36, s36, 1024")
            a("v_add_u32 v6, s36, v2")
            a("v_mul_u32_u24 v7, 3641, v6")
            a("v_lshrrev_b32 v7, 16, v7")
            a("v_mul_u32_u24 v8, 18, v7")
            a("v_sub_u32 v8, v6, v8")
            a("v_and_b32 v9, 35, v7")
            a("v_bfe_u32 v6, v7, 2, 2")
            a("v_lshl_add_u32 v9, v6, 3, v9")
            a("v_bfe_u32 v6, v7, 4, 1")
            a("v_lshl_add_u32 v9, v6, 2, v9")
            a("v_mul_u32_u24 v9, 9216, v9")
            a("v_lshl_add_u32 v%d, v8, 4, v9" % (VF + n))
            if 0 < n < 4: a("v_subrev_u32 v%d, %d, v%d" % (VF + n, 1024 * n, VF + n))
    def issueT(g):
        st = g % 9
        a("s_add_u32 s86, s84, %d" % ((g % R) * SLOT))
        a("s_mov_b32 m0, s86")
        a("s_add_u32 s87, s82, %d" % (128 * st))
        for n in range(4):
            a("buffer_load_dwordx4 v%d, s[28:31], s87 offen offset:%d lds" % (VT + n, 1024 * n))
    def issueF(g):
        st = g % 9
        a("s_add_u32 s86, s84, %d" % ((g % R) * SLOT + TREG))
        a("s_mov_b32 m0, s86")
        a("s_add_u32 s87, s83, %d" % (64 * 9216 * st + (4608 if g < 9 else 0)))
        for n in range(4):
            a("buffer_load_dwordx4 v%d, s[8:11], s87 offen offset:%d lds" % (VF + n, 1024 * n))
        a("s_add_u32 s86, s85, %d" % ((g % R) * SLOT))
        a("s_mov_b32 m0, s86")
        a("s_mov_b64 exec, 0xffffffff")
        a("buffer_load_dwordx4 v%d, s[8:11], s87 offen lds" % (VF + 4))
        a("s_mov_b64 exec, -1")
    def srds_main():
        srd(a, 28, 80, 2048 * 576 * 2)
        srd(a, 8, 4, 576 * 4608 * 2)
        srd(a, 12, 6, WS_BYTES)
        srd(a, 60, 18, 256)
        a("s_mul_i32 s82, s22, %d" % (128 * 1152))
        a("s_mul_i32 s83, s23, 288")
    ACC = 128; FB = [16, 52]; CS = 216; ONE = 236
    vTa = [4, 5]; vTb = [6, 7]; vF = 8; vFh = 9
    bTa = [88, 89]; bTb = [90, 91]; bF = 92; bFh = 93
    def mma_setup():
        a("v_lshrrev_b32 v10, 4, v2")
        a("v_lshrrev_b32 v11, 1, v3")
        a("v_xor_b32 v10, v10, v11")
        a("v_lshlrev_b32 v10, 4, v10")
        a("v_lshl_add_u32 v10, v3, 7, v10")
        a("s_lshl_b32 s26, s24, 13")
        a("s_add_u32 s26, s26, %d" % RB)
        a("v_add_u32 v10, s26, v10")
        a("s_lshl_b32 s26, s25, 12")
        a("v_add_u32 v%d, s26, v10" % bTa[0])
        a("s_xor_b32 s26, s26, 4096")
        a("v_add_u32 v%d, s26, v10" % bTb[0])
        a("v_xor_b32 v%d, 64, v%d" % (bTa[1], bTa[0]))
        a("v_xor_b32 v%d, 64, v%d" % (bTb[1], bTb[0]))
        a("v_lshrrev_b32 v10, 2, v2")
        a("v_mul_u32_u24 v10, %d, v10" % FS)
        a("v_and_b32 v11, 3, v2")
        a("v_lshl_add_u32 v10, v11, 3, v10")
        a("v_add_u32 v10, %d, v10" % (RB + TREG))
        a("s_mul_i32 s26, s25, 160")
        a("v_add_u32 v%d, s26, v10" % bF)
        a("v_add_u32 v%d, 128, v10" % bFh)
        for r in range(ACC, ACC + 72): a("v_mov_b32 v%d, 0" % r)
        for r in range(CS, CS + 20): a("v_mov_b32 v%d, 0" % r)
        for r in range(ONE, ONE + 4): a("v_mov_b32 v%d, 0x3f803f80" % r)
    def mma_addr(slot):
        a("s_mov_b32 s27, %d" % (slot * SLOT))
        for d, s_ in ((vTa[0], bTa[0]), (vTb[0], bTb[0]), (vTa[1], bTa[1]), (vTb[1], bTb[1]), (vF, bF), (vFh, bFh)):
            a("v_add_u32 v%d, s27, v%d" % (d, s_))
    core = G.Core(a, ACC, FB[0], FB[1], FS, TREG, vTa, vTb, vF, vFh)
    trk = core.trk
    a("s_cmp_eq_u32 s98, 0")
    a("s_cbranch_scc1 %s_A0" % name)
    a("s_setprio 3")
    loader_setup()
    a("s_waitcnt lgkmcnt(0)")
    srds_main()
    vm = VmTracker(a)
    def issue(g, vmx):
        issueT(g); issueF(g); vmx.issue("S%d" % g, 9)
    issueT(0)
    loader_setup2()
    issueF(0); vm.issue("S0", 9)
    issue(1, vm); issue(2, vm); issue(3, vm)
    a("s_add_u32 s3, s3, 4"); stamp_setup(a, 1); stamp(a, 0); a("s_sub_u32 s3, s3, 4")
    mma_setup()
    RA = 96; XB = 112
    for r in range(RA, RA + 16): a("v_mov_b32 v%d, 0" % r)
    a("v_lshrrev_b32 v10, 4, v2")
    a("v_lshrrev_b32 v11, 1, v3")
    a("v_xor_b32 v10, v10, v11")
    a("v_lshlrev_b32 v10, 4, v10")
    a("v_lshl_add_u32 v10, v3, 7, v10")
    a("v_add_u32 v12, s84, v10")
    a("v_xor_b32 v13, 64, v12")
    def rs_rd(g):
        a("v_add_u32 v10, %d, v12" % ((g % R) * SLOT))
        a("v_add_u32 v11, %d, v13" % ((g % R) * SLOT))
        for h in range(2):
            for n in range(2):
                a("ds_read_b128 %s, v%d offset:%d" % (vr(XB + 8 * h + 4 * n), 10 + h, 2048 * n))
    def rs_do():
        for h in range(2):
            for n in range(2):
                x = XB + 8 * h + 4 * n
                a("v_mfma_f32_16x16x32_bf16 %s, %s, %s, %s" % (vr(RA + 4 * n), vr(ONE), vr(x), vr(RA + 4 * n)))
                a("v_mfma_f32_16x16x32_bf16 %s, %s, %s, %s" % (vr(RA + 8 + 4 * n), vr(x), vr(x), vr(RA + 8 + 4 * n)))
    def interleave(dma, comp, vmx=None):
        groups = []; cur = []
        for l in dma:
            cur.append(l)
            if "buffer_load" in l and not any("exec, 0xffffffff" in x for x in cur[-2:]):
                groups.append(cur); cur = []
            elif "exec, -1" in l:
                groups.append(cur); cur = []
        if cur: groups.append(cur)
        ns = max(1, len(groups))
        per = (len(comp) + ns - 1) // ns
        for g in groups:
            a.lines.extend(g)
            a.lines.extend(comp[:per]); comp = comp[per:]
        a.lines.extend(comp)
    vm.wait(["S0"])
    a("s_barrier")
    stamp(a, 1)
    rs_rd(0)
    vm.wait(["S1"])
    a("s_barrier")
    for k in range(9):
        a("s_waitcnt lgkmcnt(0)")
        dma = capture(lambda: (issueT(k + 3), issueF(k + 3))) if k >= 1 else []
        interleave(dma, capture(rs_do))
        if k >= 1: vm.issue("S%d" % (k + 3), 9)
        if k < 8:
            rs_rd(k + 1)
        else:
            a("s_nop 7")
            a("v_lshrrev_b32 v10, 4, v2")
            a("v_lshrrev_b32 v11, 2, v3")
            a("v_and_b32 v12, 3, v3")
            for n in range(2):
                G_ = RA + 8 + 4 * n
                for r in range(1, 4):
                    a("v_cmp_eq_u32 vcc, %d, v12" % r)
                    a("s_nop 1")
                    a("v_cndmask_b32 v%d, v%d, v%d, vcc" % (G_, G_, G_ + r))
            ML = 112
            for n in range(2):
                emit_ln_finish(a, RA + 4 * n, RA + 8 + 4 * n, 576, ML + 2 * n, ML + 2 * n + 1, 120)
                a("v_mov_b32 v%d, v%d" % (117 + 2 * n, ML + 2 * n + 1))
                a("v_sub_f32 v%d, 0, v%d" % (116 + 2 * n, ML + 2 * n))
            a("s_lshl_b32 s35, s3, 8")
            a("v_lshlrev_b32 v13, 3, v3")
            a("v_add_u32 v12, s35, v13")
            a("v_cmp_eq_u32 vcc, v10, v11")
            a("s_and_saveexec_b64 s[36:37], vcc")
            for n in range(2):
                a("ds_write_b64 v12, %s offset:%d" % (vr(116 + 2 * n, 2), RST + 128 * n))
            a("s_mov_b64 exec, s[36:37]")
            a("s_cmp_lg_u32 s23, 0")
            a("s_cbranch_scc1 %s_nost1" % name)
            a("s_lshl_b32 s35, s22, 7")
            a("s_lshl_b32 s36, s3, 5")
            a("s_add_u32 s35, s35, s36")
            a("s_lshl_b32 s35, s35, 3")
            a("s_add_u32 s35, s35, 0x%x" % STATS1)
            a("v_mov_b32 v11, 0x7ffffff0")
            a("v_cndmask_b32 v13, v11, v13, vcc")
            for n in range(2):
                a("buffer_store_dwordx2 %s, v13, s[12:15], s35 offen offset:%d" % (vr(ML + 2 * n, 2), 128 * n))
            a.label("%s_nost1" % name)
            mma_addr(9 % R)
            a("s_mov_b32 s33, 0")
            a("s_setprio 0")
        vm.wait(["S%d" % (k + 2)], "lgkmcnt(0)" if k == 8 else "")
        if k < 8: a("s_barrier")
    a("s_branch %s_mma" % name)
    a.label("%s_A0" % name)
    emit_code_prefetch(a, name)
    a("s_load_dwordx4 s[64:67], s[0:1], 8")
    a("s_load_dwordx2 s[76:77], s[0:1], 24")
    a("s_load_dwordx2 s[90:91], s[0:1], 64")
    mma_setup()
    loader_setup(); loader_setup2()
    a("s_waitcnt lgkmcnt(0)")
    srds_main()
    srd(a, 68, 66, 2048 * 576 * 2)
    a("s_mov_b32 s88, s64"); a("s_mov_b32 s89, s65")
    srd(a, 64, 88, 2048 * 576 * 2)
    srd(a, 72, 76, 576 * 8)
    srd(a, 92, 90, 2048 * 2048 * 2)
    stamp_setup(a, 1); stamp(a, 0)
    def gran_addr():
        a("v_lshrrev_b32 v10, 4, v2")
        a("s_lshl_b32 s36, s25, 1")
        a("v_add_u32 v11, s36, v10")
        a("v_and_b32 v11, 3, v11")
        a("v_lshl_add_u32 v11, v11, 4, v3")
        a("v_lshlrev_b32 v94, 8, v11")
        a("s_lshl_b32 s59, s22, 7")
        a("s_lshl_b32 s36, s24, 6")
        a("s_add_u32 s59, s59, s36")
        a("s_lshl_b32 s59, s59, 8")
        a("s_add_u32 s59, s59, 0x%x" % STATS2)
        a("s_lshl_b32 s36, s23, 1")
        a("s_add_u32 s36, s36, s25")
        a("s_lshl_b32 s36, s36, 3")
        a("s_add_u32 s58, s36, s59")
    gran_addr()
    a("v_mov_b32 v12, 0"); a("v_mov_b32 v13, 0x80000000")
    a("buffer_store_dwordx2 v[12:13], v94, s[12:15], s58 offen sc1")
    mma_addr(0)
    a("s_mov_b32 s33, 0")
    a("s_barrier")
    stamp(a, 1)
    a.label("%s_mma" % name)
    core.prime(0, core.reads(0, 0))
    trk.drain()
    def mfmas(buf):
        L = []
        for ft in range(5):
            A = core.F(buf, ft)
            for tt in range(4 if ft < 4 else 2):
                c = core.accr(ft, tt); B = core.T(buf, tt)
                L.append(("v_mfma_f32_16x16x32_bf16 %s, %s, %s, %s" % (vr(c), vr(A), vr(B), vr(c)), list(range(A, A + 4)) + list(range(B, B + 4))))
            L.append(("v_mfma_f32_16x16x32_bf16 %s, %s, %s, %s" % (vr(CS + 4 * ft), vr(A), vr(ONE), vr(CS + 4 * ft)), list(range(A, A + 4))))
        return L
    def phase(buf, pend):
        for (m, regs) in mfmas(buf):
            trk.need(regs)
            a(m)
            while pend:
                k, t = pend.pop(0)
                if k == "x":
                    a(t)
                    if t.startswith("s_"): continue
                else:
                    a(t[0]); trk.issue(t[1])
                break
        for k, t in pend:
            if k == "x": a(t)
            else: a(t[0]); trk.issue(t[1])
    def iteration():
        a("s_waitcnt vmcnt(0)")
        a("s_barrier")
        rd = [("r", t) for t in core.reads(1, 1)]
        upd = ["s_add_u32 s27, s27, %d" % SLOT, "s_cmp_eq_u32 s27, %d" % (R * SLOT), "s_cselect_b32 s27, 0, s27"]
        tail = ["v_add_u32 v%d, s27, v%d" % (d, s_) for d, s_ in ((vTa[0], bTa[0]), (vF, bF), (vTb[0], bTb[0]), (vFh, bFh))]
        phase(0, rd[:1] + [("x", u) for u in upd] + rd[1:] + [("x", u) for u in tail])
        rd = [("r", t) for t in core.reads(0, 0)]
        tail = ["v_add_u32 v%d, s27, v%d" % (d, s_) for d, s_ in ((vTa[1], bTa[1]), (vTb[1], bTb[1]))] + ["s_add_u32 s33, s33, 1"]
        phase(1, rd + [("x", u) for u in tail])
    a.label("%s_cloop" % name)
    lb = len(a.lines); iteration(); st = copy.deepcopy(trk.out); del a.lines[lb:]; trk.out = copy.deepcopy(st)
    iteration()
    assert [sorted(x) for x in trk.out] == [sorted(x) for x in st]
    a("s_cmp_lt_u32 s33, 9")
    a("s_cbranch_scc1 %s_cloop" % name)
    trk.drain()
    stamp(a, 2)
    MR = 100; T = 72; ZP = 16
    def epi_in():
        gelu_consts(a)
        a("s_lshl_b32 s36, s24, 9")
        a("s_lshl_b32 s37, s25, 8")
        a("s_add_u32 s38, s36, s37")
        a("s_xor_b32 s37, s37, 256")
        a("s_add_u32 s39, s36, s37")
        a("v_lshlrev_b32 v10, 3, v3")
        a("v_add_u32 v11, s38, v10")
        a("ds_read_b64 %s, v11 offset:%d" % (vr(MR, 2), RST))
        a("ds_read_b64 %s, v11 offset:%d" % (vr(MR + 2, 2), RST + 128))
        a("v_add_u32 v11, s39, v10")
        a("ds_read_b64 %s, v11 offset:%d" % (vr(MR + 4, 2), RST))
        a("ds_read_b64 %s, v11 offset:%d" % (vr(MR + 6, 2), RST + 128))
        a("s_waitcnt lgkmcnt(0)")
    S = [108, 110, 52, 54]; Q = [109, 111, 53, 55]
    def gelu_ft(ft, stats):
        tts = range(4 if ft < 4 else 2)
        emit_fold_gelu(a, [(core.accr(ft, tt), CS + 4 * ft, MR + 2 * tt, ZP + 2 * tidx(ft, tt)) for tt in tts], T)
        if stats:
            for d in range(2):
                for tt in tts:
                    p = ZP + 2 * tidx(ft, tt) + d
                    a("v_dot2_f32_bf16 v%d, v%d, v%d, v%d" % (S[tt], p, ONE, S[tt]))
                    a("v_dot2_f32_bf16 v%d, v%d, v%d, v%d" % (Q[tt], p, p, Q[tt]))
    a("s_cmp_eq_u32 s98, 0")
    a("s_cbranch_scc1 %s_A1" % name)
    epi_in()
    a("s_lshl_b32 s36, s22, 4")
    a("s_add_u32 s36, s36, s23")
    a("s_lshl_b32 s36, s36, 2")
    a("s_add_u32 s36, s36, s3")
    a("s_mul_i32 s36, s36, 9216")
    a("s_add_u32 s36, s36, 0x%x" % Z1IMG)
    a("v_lshlrev_b32 v4, 4, v2")
    for ft in range(5):
        gelu_ft(ft, False)
        for q in ((2 * ft, 2 * ft + 1) if ft < 4 else (8,)):
            if q in (4, 8): a("s_add_u32 s36, s36, 4096")
            a("buffer_store_dwordx4 %s, v4, s[12:15], s36 offen offset:%d" % (vr(ZP + 4 * q), (q & 3) * 1024))
    stamp(a, 3)
    G.stamp_rt(a, 1)
    a("s_branch %s_end" % name)
    a.label("%s_A1" % name)
    a("s_setprio 2")
    vmA = VmTracker(a)
    PB = 132
    def aux_head():
        epi_in()
        for tt in range(4):
            a("v_mov_b32 v%d, 0" % S[tt]); a("v_mov_b32 v%d, 0" % Q[tt])
    def aux_pub():
        a("s_nop 2")
        emit_xg_reduce(a, S + Q, 72)
        a("v_lshrrev_b32 v10, 4, v2")
        for g in range(1, 4):
            a("v_cmp_eq_u32 vcc, %d, v10" % g)
            a("s_nop 1")
            a("v_cndmask_b32 v%d, v%d, v%d, vcc" % (S[0], S[0], S[g]))
            a("v_cndmask_b32 v%d, v%d, v%d, vcc" % (Q[0], Q[0], Q[g]))
        a("v_and_b32 v%d, 0x7fffffff, v%d" % (Q[0], Q[0]))
        a("buffer_store_dwordx2 v[%d:%d], v94, s[12:15], s58 offen sc1" % (S[0], Q[0]))
    chunks = [capture(aux_head) + capture(gelu_ft, 0, True), capture(gelu_ft, 1, True), capture(gelu_ft, 2, True),
              capture(gelu_ft, 3, True), capture(gelu_ft, 4, True) + capture(aux_pub)]
    KD = 172
    for k in range(9, 18):
        a("s_barrier")
        if k == 9:
            a("s_cmp_lg_u32 s3, 0")
            a("s_cbranch_scc1 %s_nosig" % name)
            a("v_mov_b32 v10, 1")
            a("s_lshl_b32 s36, s22, 2")
            a("v_mov_b32 v11, s36")
            a("s_mov_b64 exec, 1")
            a("buffer_atomic_add v10, v11, s[60:63], 0 offen sc1")
            a("s_mov_b64 exec, -1")
            a.label("%s_nosig" % name)
        g = k + 3
        dma = capture(lambda: (issueT(g), issueF(g))) if g < 18 else []
        comp = chunks[k - 9] if k - 9 < len(chunks) else []
        interleave(dma, comp)
        if k == 13: vmA.issue("pub", 1)
        if g < 18: vmA.issue("S%d" % g, 9)
        if k == 14:
            a("s_mov_b32 s41, s2")
            emit_kv_loads(a, KD, KD + 12, KD + 20, KD + 24, KD + 25); vmA.issue("kv", 20)
            a("s_lshl_b32 s36, s22, 2")
            a("v_mov_b32 v199, s36")
            a("buffer_load_dword v198, v199, s[60:63], 0 offen sc1"); vmA.issue("cnt", 1)
        if k + 2 < 18 and k + 2 >= 12:
            vmA.wait(["S%d" % (k + 2)])
    stamp(a, 3)
    a("s_setprio 0")
    a("v_lshrrev_b32 v10, 4, v2")
    a("v_lshlrev_b32 v95, 8, v3")
    a("v_lshl_add_u32 v95, v10, 6, v95")
    a("s_lshl_b32 s33, s25, 13")
    a("s_add_u32 s52, s59, s33")
    a("s_xor_b32 s33, s33, 8192")
    a("s_add_u32 s53, s59, s33")
    a("s_add_u32 s42, s52, 4096")
    a("s_add_u32 s43, s53, 4096")
    for r_ in range(36): a("v_mov_b32 v%d, v%d" % (216 + r_, ZP + r_))
    Z2 = 216
    a("s_waitcnt vmcnt(0)")
    GB = [128, 144, 160, 176]
    for n in range(11): a("v_mov_b32 v%d, v%d" % (16 + n, KD + n))
    for n in range(8): a("v_mov_b32 v%d, v%d" % (32 + n, KD + 12 + n))
    for n in range(4): a("v_mov_b32 v%d, v%d" % (44 + n, KD + 20 + n))
    a("v_mov_b32 v56, v%d" % (KD + 24)); a("v_mov_b32 v57, v%d" % (KD + 25))
    a("v_mov_b32 v4, v95")
    def gather():
        for tt in range(4):
            for q in range(4):
                a("buffer_load_dwordx4 %s, v4, s[12:15], s%d offen offset:%d sc1" % (vr(GB[tt] + 4 * q), (52, 42, 53, 43)[tt], 16 * q))
    gather()
    emit_kv_compute(a, wait=False, store=False)
    stamp(a, 4)
    a("s_mov_b32 s40, 0")
    a("s_waitcnt vmcnt(0)")
    a.label("%s_chk" % name)
    a("v_subrev_u32 v11, 16, v198")
    for tt in range(4):
        for r in range(GB[tt] + 1, GB[tt] + 16, 4):
            a("v_or3_b32 v11, v11, v%d, v%d" % (r, r + 2))
    a("v_cmp_gt_i32 vcc, 0, v11")
    a("s_add_u32 s40, s40, 1")
    a("s_cmp_gt_u32 s40, %d" % SPIN_MAX)
    a("s_cbranch_scc1 %s_ok" % name)
    a("s_cbranch_vccz %s_ok" % name)
    a("s_sleep 32")
    a("buffer_load_dword v198, v199, s[60:63], 0 offen sc1")
    a("s_waitcnt vmcnt(0)")
    gather()
    a("s_waitcnt vmcnt(0)")
    a("s_branch %s_chk" % name)
    a.label("%s_ok" % name)
    stamp(a, 5)
    a("v_lshrrev_b32 v5, 4, v2")
    a("v_lshlrev_b32 v5, 12, v5")
    a("v_lshl_add_u32 v5, v3, 4, v5")
    a("s_lshl_b32 s33, s22, 7")
    a("s_lshl_b32 s36, s3, 5")
    a("s_add_u32 s33, s33, s36")
    a("s_lshl_b32 s33, s33, 12")
    a("s_lshl_b32 s36, s23, 8")
    a("s_add_u32 s33, s33, s36")
    for n in range(8):
        a("buffer_load_dwordx4 v[200:203], v5, s[92:95], s33 offen")
        if n < 7: a("s_add_u32 s33, s33, 16384")
    a("s_mov_b32 s39, 0x%x" % KVT)
    a("buffer_store_dwordx4 v[120:123], v12, s[12:15], s39 offen")
    a("buffer_store_dwordx4 v[124:127], v13, s[12:15], s39 offen")
    for tt in range(4):
        b = GB[tt]
        for st_ in (8, 4, 2):
            for q in range(0, st_, 2):
                a("v_pk_add_f32 %s, %s, %s" % (vr(b + q, 2), vr(b + q, 2), vr(b + q + st_, 2)))
    emit_xg_reduce(a, [GB[tt] + e for tt in range(4) for e in range(2)], 72)
    for tt in range(4):
        b = GB[tt]
        emit_ln_finish(a, b, b + 1, 2304, b + 2, MR + 2 * tt, b + 4)
        a("v_mul_f32 v%d, -v%d, v%d" % (MR + 2 * tt + 1, b + 2, MR + 2 * tt))
    a("v_lshrrev_b32 v10, 4, v2")
    a("v_lshrrev_b32 v11, 2, v2"); a("v_and_b32 v11, 1, v11"); a("v_lshlrev_b32 v11, 4, v11")
    a("v_lshrrev_b32 v5, 3, v2"); a("v_and_b32 v5, 1, v5"); a("v_lshl_add_u32 v11, v5, 2, v11")
    a("v_and_b32 v5, 3, v2"); a("v_add_u32 v11, v11, v5")
    a("v_mul_u32_u24 v11, 288, v11")
    a("v_lshrrev_b32 v5, 1, v10"); a("v_lshl_add_u32 v11, v5, 4, v11")
    a("v_and_b32 v5, 1, v10")
    a("v_lshl_add_u32 v6, v5, 5, v11")
    a("v_mul_u32_u24 v5, 2304, v5")
    a("v_add_u32 v9, v11, v5")
    a("s_lshl_b32 s33, s23, 5")
    a("s_lshl_b32 s36, s22, 1")
    a("s_add_u32 s33, s33, s36")
    a("s_add_u32 s33, s33, s24")
    a("s_mul_i32 s33, s33, 18432")
    if ZIMG: a("s_add_u32 s33, s33, 0x%x" % ZIMG)
    a("s_mul_i32 s36, s25, 9216")
    a("s_add_u32 s37, s33, s36")
    a("s_xor_b32 s36, s36, 9216")
    a("s_add_u32 s38, s33, s36")
    a("s_add_u32 s39, s37, 128")
    a("s_mul_i32 s36, s25, 160")
    a("s_add_u32 s37, s37, s36")
    a("s_add_u32 s38, s38, s36")
    def norm_pair(nA, ttA, nB, ttB, O):
        for q, (n, tt) in enumerate(((nA, ttA), (nB, ttB))):
            for d in range(2):
                z = Z2 + 2 * n + d; t = T + 4 * q + 2 * d
                a("v_lshlrev_b32 v%d, 16, v%d" % (t, z))
                a("v_and_b32 v%d, 0xffff0000, v%d" % (t + 1, z))
        for q, (n, tt) in enumerate(((nA, ttA), (nB, ttB))):
            for d in range(2):
                t = T + 4 * q + 2 * d
                a("v_pk_fma_f32 %s, %s, %s, %s op_sel:[0,0,1] op_sel_hi:[1,0,1]" % (vr(t, 2), vr(t, 2), vr(MR + 2 * tt, 2), vr(MR + 2 * tt, 2)))
        for q in range(2):
            for d in range(2):
                t = T + 4 * q + 2 * d
                a("v_cvt_pk_bf16_f32 v%d, v%d, v%d" % (O + 2 * q + d, t, t + 1))
        a("s_nop 1")
        a("v_permlane16_swap_b32 v%d, v%d" % (O, O + 2))
        a("v_permlane16_swap_b32 v%d, v%d" % (O + 1, O + 3))
    cnt = 0
    for pr in range(2):
        for tt in range(4):
            O = 16 + 4 * cnt; cnt += 1
            norm_pair(tidx(2 * pr, tt), tt, tidx(2 * pr + 1, tt), tt, O)
            a("s_nop 0")
            a("buffer_store_dwordx4 %s, v6, s[12:15], s%d offen offset:%d" % (vr(O), 37 if tt < 2 else 38, (tt & 1) * 2304 + 64 * pr))
    O = 16 + 4 * cnt
    norm_pair(16, 0, 17, 1, O)
    a("s_nop 0")
    a("buffer_store_dwordx4 %s, v9, s[12:15], s39 offen" % vr(O))
    stamp(a, 6)
    a("s_cmp_ge_u32 s2, 32")
    a("s_cbranch_scc1 %s_fin" % name)
    a("s_add_u32 s41, s2, 256")
    emit_kv_loads(a)
    emit_kv_compute(a)
    a.label("%s_fin" % name)
    stamp(a, 7)
    G.stamp_rt(a, 1)
    a.label("%s_end" % name)
    a("s_endpgm")
    return a.text(), kernel_desc(name, 256, 256), (name, 256, 512, LDSB)

def gen_k1i(name="k1_kernel", R=4):
    a = Asm()
    RB = 4096; SLOT = 34816; TREG = 16384; FS = 288; RST = 0
    LDSB = RB + R * SLOT
    def capture(f, *args):
        lb = len(a.lines); f(*args); out = a.lines[lb:]; del a.lines[lb:]; return out
    kernel_begin(a, name)
    a("s_load_dwordx2 s[80:81], s[0:1], 0")
    a("s_load_dwordx2 s[4:5], s[0:1], 56")
    a("s_load_dwordx2 s[6:7], s[0:1], 104")
    a("s_load_dwordx2 s[18:19], s[0:1], 96")
    a("s_cmp_ge_u32 s2, 256")
    a("s_cbranch_scc1 %s_end" % name)
    a("v_lshrrev_b32 v1, 6, v0")
    a("v_and_b32 v2, 63, v0")
    a("v_readfirstlane_b32 s3, v1")
    G2.tile_ij(a)
    a("s_lshr_b32 s98, s3, 2")
    a("s_mov_b32 s54x, 0".replace("s54x", "s99"))
    a("s_and_b32 s3, s3, 3")
    a("s_lshr_b32 s24, s3, 1")
    a("s_and_b32 s25, s3, 1")
    a("v_and_b32 v3, 15, v2")
    VT = 204; VF = 208
    def loader_setup():
        a("v_lshrrev_b32 v5, 3, v2")
        a("v_and_b32 v4, 7, v2")
        a("s_lshl_b32 s36, s3, 5")
        a("v_add_u32 v5, s36, v5")
        a("v_lshrrev_b32 v7, 4, v2")
        a("v_xor_b32 v7, v7, v4")
        a("v_mul_u32_u24 v6, 1152, v5")
        a("v_lshl_add_u32 v%d, v7, 4, v6" % VT)
        a("v_xor_b32 v%d, 64, v%d" % (VT + 1, VT))
        a("v_add_u32 v%d, %d, v%d" % (VT + 1, 9216 - 1024, VT + 1))
        a("v_add_u32 v%d, %d, v%d" % (VT + 2, 2 * (9216 - 1024), VT))
        a("v_add_u32 v%d, %d, v%d" % (VT + 3, 2 * (9216 - 1024), VT + 1))
        a("s_lshl_b32 s84, s3, 12")
        a("s_add_u32 s84, s84, %d" % RB)
        a("s_lshl_b32 s85, s3, 9")
        a("s_add_u32 s85, s85, %d" % (RB + TREG + 16384))
    def loader_setup2():
        for n in range(5):
            if n < 4:
                a("s_lshl_b32 s36, s3, 8")
                a("s_add_u32 s36, s36, %d" % (64 * n))
            else:
                a("s_lshl_b32 s36, s3, 5")
                a("s_add_u32 s36, s36, 1024")
            a("v_add_u32 v6, s36, v2")
            a("v_mul_u32_u24 v7, 3641, v6")
            a("v_lshrrev_b32 v7, 16, v7")
            a("v_mul_u32_u24 v8, 18, v7")
            a("v_sub_u32 v8, v6, v8")
            a("v_and_b32 v9, 35, v7")
            a("v_bfe_u32 v6, v7, 2, 2")
            a("v_lshl_add_u32 v9, v6, 3, v9")
            a("v_bfe_u32 v6, v7, 4, 1")
            a("v_lshl_add_u32 v9, v6, 2, v9")
            a("v_mul_u32_u24 v9, 9216, v9")
            a("v_lshl_add_u32 v%d, v8, 4, v9" % (VF + n))
            if 0 < n < 4: a("v_subrev_u32 v%d, %d, v%d" % (VF + n, 1024 * n, VF + n))
    def issueT(g):
        st = g % 9
        a("s_add_u32 s86, s84, %d" % ((g % R) * SLOT))
        a("s_mov_b32 m0, s86")
        a("s_add_u32 s87, s82, %d" % (128 * st))
        for n in range(4):
            a("buffer_load_dwordx4 v%d, s[28:31], s87 offen offset:%d lds" % (VT + n, 1024 * n))
    def issueF(g):
        st = g % 9
        a("s_add_u32 s86, s84, %d" % ((g % R) * SLOT + TREG))
        a("s_mov_b32 m0, s86")
        a("s_add_u32 s87, s83, %d" % (64 * 9216 * st + (4608 if g < 9 else 0)))
        for n in range(4):
            a("buffer_load_dwordx4 v%d, s[8:11], s87 offen offset:%d lds" % (VF + n, 1024 * n))
        a("s_add_u32 s86, s85, %d" % ((g % R) * SLOT))
        a("s_mov_b32 m0, s86")
        a("s_mov_b64 exec, 0xffffffff")
        a("buffer_load_dwordx4 v%d, s[8:11], s87 offen lds" % (VF + 4))
        a("s_mov_b64 exec, -1")
    def srds_main():
        srd(a, 28, 80, 2048 * 576 * 2)
        srd(a, 8, 4, 576 * 4608 * 2)
        srd(a, 12, 6, WS_BYTES)
        srd(a, 60, 18, 256)
        a("s_mul_i32 s82, s22, %d" % (128 * 1152))
        a("s_mul_i32 s83, s23, 288")
    ACC = 128; FB = [16, 52]; CS = 216; ONE = 236
    vTa = [4, 5]; vTb = [6, 7]; vF = 8; vFh = 9
    bTa = [88, 89]; bTb = [90, 91]; bF = 92; bFh = 93
    def mma_setup():
        a("v_lshrrev_b32 v10, 4, v2")
        a("v_lshrrev_b32 v11, 1, v3")
        a("v_xor_b32 v10, v10, v11")
        a("v_lshlrev_b32 v10, 4, v10")
        a("v_lshl_add_u32 v10, v3, 7, v10")
        a("s_lshl_b32 s26, s24, 13")
        a("s_add_u32 s26, s26, %d" % RB)
        a("v_add_u32 v10, s26, v10")
        a("s_lshl_b32 s26, s25, 12")
        a("v_add_u32 v%d, s26, v10" % bTa[0])
        a("s_xor_b32 s26, s26, 4096")
        a("v_add_u32 v%d, s26, v10" % bTb[0])
        a("v_xor_b32 v%d, 64, v%d" % (bTa[1], bTa[0]))
        a("v_xor_b32 v%d, 64, v%d" % (bTb[1], bTb[0]))
        a("v_lshrrev_b32 v10, 2, v2")
        a("v_mul_u32_u24 v10, %d, v10" % FS)
        a("v_and_b32 v11, 3, v2")
        a("v_lshl_add_u32 v10, v11, 3, v10")
        a("v_add_u32 v10, %d, v10" % (RB + TREG))
        a("s_mul_i32 s26, s25, 160")
        a("v_add_u32 v%d, s26, v10" % bF)
        a("v_add_u32 v%d, 128, v10" % bFh)
        for r in range(ACC, ACC + 72): a("v_mov_b32 v%d, 0" % r)
        for r in range(CS, CS + 20): a("v_mov_b32 v%d, 0" % r)
        for r in range(ONE, ONE + 4): a("v_mov_b32 v%d, 0x3f803f80" % r)
    def mma_addr(slot):
        a("s_mov_b32 s27, %d" % (slot * SLOT))
        for d, s_ in ((vTa[0], bTa[0]), (vTb[0], bTb[0]), (vTa[1], bTa[1]), (vTb[1], bTb[1]), (vF, bF), (vFh, bFh)):
            a("v_add_u32 v%d, s27, v%d" % (d, s_))
    core = G.Core(a, ACC, FB[0], FB[1], FS, TREG, vTa, vTb, vF, vFh)
    trk = core.trk
    a("s_cmp_eq_u32 s98, 0")
    a("s_cbranch_scc1 %s_A0" % name)
    a("s_setprio 3")
    loader_setup()
    a("s_waitcnt lgkmcnt(0)")
    srds_main()
    vm = VmTracker(a)
    def issue(g, vmx):
        issueT(g); issueF(g); vmx.issue("S%d" % g, 9)
    issueT(0)
    loader_setup2()
    issueF(0); vm.issue("S0", 9)
    issue(1, vm); issue(2, vm); issue(3, vm)
    a("s_add_u32 s3, s3, 4"); stamp_setup(a, 1); stamp(a, 0); a("s_sub_u32 s3, s3, 4")
    for r in range(ONE, ONE + 4): a("v_mov_b32 v%d, 0x3f803f80" % r)
    RA = 96; XB = 112
    for r in range(RA, RA + 16): a("v_mov_b32 v%d, 0" % r)
    a("v_lshrrev_b32 v10, 4, v2")
    a("v_lshrrev_b32 v11, 1, v3")
    a("v_xor_b32 v10, v10, v11")
    a("v_lshlrev_b32 v10, 4, v10")
    a("v_lshl_add_u32 v10, v3, 7, v10")
    a("v_add_u32 v12, s84, v10")
    a("v_xor_b32 v13, 64, v12")
    def rs_rd(g):
        a("v_add_u32 v10, %d, v12" % ((g % R) * SLOT))
        a("v_add_u32 v11, %d, v13" % ((g % R) * SLOT))
        for h in range(2):
            for n in range(2):
                a("ds_read_b128 %s, v%d offset:%d" % (vr(XB + 8 * h + 4 * n), 10 + h, 2048 * n))
    def rs_do():
        for h in range(2):
            for n in range(2):
                x = XB + 8 * h + 4 * n
                a("v_mfma_f32_16x16x32_bf16 %s, %s, %s, %s" % (vr(RA + 4 * n), vr(ONE), vr(x), vr(RA + 4 * n)))
                a("v_mfma_f32_16x16x32_bf16 %s, %s, %s, %s" % (vr(RA + 8 + 4 * n), vr(x), vr(x), vr(RA + 8 + 4 * n)))
    def interleave(dma, comp, vmx=None):
        groups = []; cur = []
        for l in dma:
            cur.append(l)
            if "buffer_load" in l and not any("exec, 0xffffffff" in x for x in cur[-2:]):
                groups.append(cur); cur = []
            elif "exec, -1" in l:
                groups.append(cur); cur = []
        if cur: groups.append(cur)
        ns = max(1, len(groups))
        per = (len(comp) + ns - 1) // ns
        for g in groups:
            a.lines.extend(g)
            a.lines.extend(comp[:per]); comp = comp[per:]
        a.lines.extend(comp)
    vm.wait(["S0"])
    a("s_barrier")
    stamp(a, 1)
    rs_rd(0)
    vm.wait(["S1"])
    a("s_barrier")
    for k in range(9):
        a("s_waitcnt lgkmcnt(0)")
        dma = capture(lambda: (issueT(k + 3), issueF(k + 3))) if (k >= 1 and k + 3 < 9) else []
        interleave(dma, capture(rs_do))
        if k >= 1 and k + 3 < 9: vm.issue("S%d" % (k + 3), 9)
        if k < 8:
            rs_rd(k + 1)
        else:
            a("s_nop 7")
            a("v_lshrrev_b32 v10, 4, v2")
            a("v_lshrrev_b32 v11, 2, v3")
            a("v_and_b32 v12, 3, v3")
            for n in range(2):
                G_ = RA + 8 + 4 * n
                for r in range(1, 4):
                    a("v_cmp_eq_u32 vcc, %d, v12" % r)
                    a("s_nop 1")
                    a("v_cndmask_b32 v%d, v%d, v%d, vcc" % (G_, G_, G_ + r))
            ML = 112
            for n in range(2):
                emit_ln_finish(a, RA + 4 * n, RA + 8 + 4 * n, 576, ML + 2 * n, ML + 2 * n + 1, 120)
                a("v_mov_b32 v%d, v%d" % (117 + 2 * n, ML + 2 * n + 1))
                a("v_sub_f32 v%d, 0, v%d" % (116 + 2 * n, ML + 2 * n))
            a("s_lshl_b32 s35, s3, 8")
            a("v_lshlrev_b32 v13, 3, v3")
            a("v_add_u32 v12, s35, v13")
            a("v_cmp_eq_u32 vcc, v10, v11")
            a("s_and_saveexec_b64 s[36:37], vcc")
            for n in range(2):
                a("ds_write_b64 v12, %s offset:%d" % (vr(116 + 2 * n, 2), RST + 128 * n))
            a("s_mov_b64 exec, s[36:37]")
            a("s_cmp_lg_u32 s23, 0")
            a("s_cbranch_scc1 %s_nost1" % name)
            a("s_lshl_b32 s35, s22, 7")
            a("s_lshl_b32 s36, s3, 5")
            a("s_add_u32 s35, s35, s36")
            a("s_lshl_b32 s35, s35, 3")
            a("s_add_u32 s35, s35, 0x%x" % STATS1)
            a("v_mov_b32 v11, 0x7ffffff0")
            a("v_cndmask_b32 v13, v11, v13, vcc")
            for n in range(2):
                a("buffer_store_dwordx2 %s, v13, s[12:15], s35 offen offset:%d" % (vr(ML + 2 * n, 2), 128 * n))
            a.label("%s_nost1" % name)
        if k < 8:
            vm.wait(["S%d" % (k + 2)])
            a("s_barrier")
    a("s_waitcnt lgkmcnt(0)")
    a("s_barrier")
    a("s_load_dwordx4 s[64:67], s[0:1], 8")
    a("s_load_dwordx2 s[76:77], s[0:1], 24")
    a("s_load_dwordx2 s[90:91], s[0:1], 64")
    a("s_mul_i32 s36, s3, 13312")
    a("s_add_u32 s36, s36, %d" % RB)
    a("v_lshlrev_b32 v10, 4, v2")
    a("v_add_u32 v11, s36, v10")
    a("s_waitcnt lgkmcnt(0)")
    srd(a, 68, 66, 2048 * 576 * 2)
    a("s_mov_b32 s88, s64"); a("s_mov_b32 s89, s65")
    srd(a, 64, 88, 2048 * 576 * 2)
    srd(a, 72, 76, 576 * 8)
    srd(a, 92, 90, 2048 * 2048 * 2)
    a("s_barrier")
    n_ = 0
    for ft in range(4):
        for tt in range(2):
            a("ds_read_b128 %s, v11 offset:%d" % (vr(core.accr(ft, tt)), 1024 * n_)); n_ += 1
    for ft in range(4):
        a("ds_read_b128 %s, v11 offset:%d" % (vr(CS + 4 * ft), 1024 * n_)); n_ += 1
    a("s_branch %s_epi" % name)
    a.label("%s_A0" % name)
    emit_code_prefetch(a, name)
    a("s_load_dwordx4 s[64:67], s[0:1], 8")
    a("s_load_dwordx2 s[76:77], s[0:1], 24")
    a("s_load_dwordx2 s[90:91], s[0:1], 64")
    mma_setup()
    a("s_waitcnt lgkmcnt(0)")
    srds_main()
    srd(a, 68, 66, 2048 * 576 * 2)
    a("s_mov_b32 s88, s64"); a("s_mov_b32 s89, s65")
    srd(a, 64, 88, 2048 * 576 * 2)
    srd(a, 72, 76, 576 * 8)
    srd(a, 92, 90, 2048 * 2048 * 2)
    stamp_setup(a, 1); stamp(a, 0)
    def gran_addr():
        a("v_lshrrev_b32 v10, 4, v2")
        a("s_lshl_b32 s36, s25, 1")
        a("v_add_u32 v11, s36, v10")
        a("v_and_b32 v11, 3, v11")
        a("v_lshl_add_u32 v11, v11, 4, v3")
        a("v_lshlrev_b32 v94, 8, v11")
        a("s_lshl_b32 s59, s22, 7")
        a("s_lshl_b32 s36, s24, 6")
        a("s_add_u32 s59, s59, s36")
        a("s_lshl_b32 s59, s59, 8")
        a("s_add_u32 s59, s59, 0x%x" % STATS2)
        a("s_lshl_b32 s36, s23, 1")
        a("s_add_u32 s36, s36, s25")
        a("s_lshl_b32 s36, s36, 3")
        a("s_add_u32 s58, s36, s59")
    gran_addr()
    a("v_mov_b32 v12, 0"); a("v_mov_b32 v13, 0x80000000")
    a("buffer_store_dwordx2 v[12:13], v94, s[12:15], s58 offen sc1")
    mma_addr(0)
    a("s_mov_b32 s33, 0")
    a("s_barrier")
    stamp(a, 1)
    a.label("%s_mma" % name)
    core.prime(0, core.reads(0, 0))
    trk.drain()
    def mfmas(buf):
        L = []
        for ft in range(5):
            A = core.F(buf, ft)
            for tt in range(4 if ft < 4 else 2):
                c = core.accr(ft, tt); B = core.T(buf, tt)
                L.append(("v_mfma_f32_16x16x32_bf16 %s, %s, %s, %s" % (vr(c), vr(A), vr(B), vr(c)), list(range(A, A + 4)) + list(range(B, B + 4))))
            L.append(("v_mfma_f32_16x16x32_bf16 %s, %s, %s, %s" % (vr(CS + 4 * ft), vr(A), vr(ONE), vr(CS + 4 * ft)), list(range(A, A + 4))))
        return L
    def phase(buf, pend):
        for (m, regs) in mfmas(buf):
            trk.need(regs)
            a(m)
            while pend:
                k, t = pend.pop(0)
                if k == "x":
                    a(t)
                    if t.startswith("s_"): continue
                else:
                    a(t[0]); trk.issue(t[1])
                break
        for k, t in pend:
            if k == "x": a(t)
            else: a(t[0]); trk.issue(t[1])
    def iteration():
        a("s_waitcnt vmcnt(0)")
        a("s_barrier")
        rd = [("r", t) for t in core.reads(1, 1)]
        upd = ["s_add_u32 s27, s27, %d" % SLOT, "s_cmp_eq_u32 s27, %d" % (R * SLOT), "s_cselect_b32 s27, 0, s27"]
        tail = ["v_add_u32 v%d, s27, v%d" % (d, s_) for d, s_ in ((vTa[0], bTa[0]), (vF, bF), (vTb[0], bTb[0]), (vFh, bFh))]
        phase(0, rd[:1] + [("x", u) for u in upd] + rd[1:] + [("x", u) for u in tail])
        rd = [("r", t) for t in core.reads(0, 0)]
        tail = ["v_add_u32 v%d, s27, v%d" % (d, s_) for d, s_ in ((vTa[1], bTa[1]), (vTb[1], bTb[1]))] + ["s_add_u32 s33, s33, 1"]
        phase(1, rd + [("x", u) for u in tail])
    a.label("%s_cloop" % name)
    lb = len(a.lines); iteration(); st = copy.deepcopy(trk.out); del a.lines[lb:]; trk.out = copy.deepcopy(st)
    iteration()
    assert [sorted(x) for x in trk.out] == [sorted(x) for x in st]
    a("s_cmp_lt_u32 s33, 9")
    a("s_cbranch_scc1 %s_cloop" % name)
    trk.drain()
    stamp(a, 2)
    a("s_waitcnt vmcnt(0)")
    a("s_barrier")
    a("s_cmp_lg_u32 s3, 0")
    a("s_cbranch_scc1 %s_nosig" % name)
    a("v_mov_b32 v10, 1")
    a("s_lshl_b32 s36, s22, 2")
    a("v_mov_b32 v11, s36")
    a("s_mov_b64 exec, 1")
    a("buffer_atomic_add v10, v11, s[60:63], 0 offen sc1")
    a("s_mov_b64 exec, -1")
    a.label("%s_nosig" % name)
    a("s_mul_i32 s36, s3, 13312")
    a("s_add_u32 s36, s36, %d" % RB)
    a("v_lshlrev_b32 v10, 4, v2")
    a("v_add_u32 v11, s36, v10")
    n_ = 0
    for ft in range(4):
        for tt in range(2):
            a("ds_write_b128 v11, %s offset:%d" % (vr(core.accr(ft, tt + 2)), 1024 * n_)); n_ += 1
    for ft in range(4):
        a("ds_write_b128 v11, %s offset:%d" % (vr(CS + 4 * ft), 1024 * n_)); n_ += 1
    a("s_waitcnt lgkmcnt(0)")
    a("s_barrier")
    a.label("%s_epi" % name)
    MR = 100; T = 72; ZP = 200
    gelu_consts(a)
    a("s_xor_b32 s52, s98, s25")
    a("s_lshl_b32 s36, s24, 9")
    a("s_lshl_b32 s37, s52, 8")
    a("s_add_u32 s38, s36, s37")
    a("v_lshlrev_b32 v10, 3, v3")
    a("v_add_u32 v11, s38, v10")
    a("ds_read_b64 %s, v11 offset:%d" % (vr(MR, 2), RST))
    a("ds_read_b64 %s, v11 offset:%d" % (vr(MR + 2, 2), RST + 128))
    a("s_lshl_b32 s41, s2, 1")
    a("s_add_u32 s41, s41, s98")
    a("v_and_b32 v0, 255, v0")
    a("s_cmp_ge_u32 s41, 288")
    a("s_cbranch_scc1 %s_nokv1" % name)
    emit_kv_loads(a)
    a.label("%s_nokv1" % name)
    S = [108, 110]; Q = [109, 111]
    for r_ in range(108, 112): a("v_mov_b32 v%d, 0" % r_)
    a("s_waitcnt lgkmcnt(0)")
    ZPf = lambda n: (240 + 2 * n) if n < 8 else (196 + 2 * (n - 8))
    def dots(lst):
        for d in range(2):
            for (ft, tt) in lst:
                p = ZPf(2 * ft + tt) + d
                a("v_dot2_f32_bf16 v%d, v%d, v%d, v%d" % (S[tt], p, ONE, S[tt]))
                a("v_dot2_f32_bf16 v%d, v%d, v%d, v%d" % (Q[tt], p, p, Q[tt]))
    a("s_cmp_lg_u32 s98, 0")
    a("s_cbranch_scc1 %s_nohalf" % name)
    lst = [(4, 0), (4, 1)]
    emit_fold_gelu(a, [(core.accr(ft, tt), CS + 4 * ft, MR + 2 * tt, ZPf(2 * ft + tt)) for ft, tt in lst], T)
    dots(lst)
    a.label("%s_nohalf" % name)
    for f0 in (0, 2):
        lst = [(ft, tt) for ft in (f0, f0 + 1) for tt in range(2)]
        emit_fold_gelu(a, [(core.accr(ft, tt), CS + 4 * ft, MR + 2 * tt, ZPf(2 * ft + tt)) for ft, tt in lst], T)
        dots(lst)
    a("s_nop 2")
    emit_xg_reduce(a, S + Q, 72)
    a("s_lshl_b32 s59, s22, 7")
    a("s_lshl_b32 s36, s24, 6")
    a("s_add_u32 s59, s59, s36")
    a("s_lshl_b32 s36, s52, 5")
    a("s_add_u32 s59, s59, s36")
    a("s_lshl_b32 s59, s59, 8")
    a("s_add_u32 s59, s59, 0x%x" % STATS2)
    a("s_lshl_b32 s36, s23, 1")
    a("s_add_u32 s36, s36, s25")
    a("s_lshl_b32 s36, s36, 3")
    a("s_add_u32 s58, s36, s59")
    a("v_lshrrev_b32 v10, 4, v2")
    a("v_lshlrev_b32 v11, 8, v2")
    a("v_cmp_gt_u32 vcc, 32, v2")
    a("v_mov_b32 v12, 0x7ffffff0")
    a("v_cmp_eq_u32 s[36:37], 1, v10")
    a("v_cndmask_b32 v11, v12, v11, vcc")
    a("s_nop 0")
    a("v_cndmask_b32 v108, v108, v110, s[36:37]")
    a("v_cndmask_b32 v109, v109, v111, s[36:37]")
    a("v_and_b32 v109, 0x7fffffff, v109")
    a("buffer_store_dwordx2 v[108:109], v11, s[12:15], s58 offen sc1")
    a("s_setprio 0")
    stamp(a, 3)
    a("s_lshl_b32 s33, s22, 2")
    a("v_mov_b32 v165, s33")
    a("buffer_load_dword v164, v165, s[60:63], 0 offen sc1")
    PB = 128
    a("v_lshlrev_b32 v4, 8, v3")
    a("v_lshl_add_u32 v4, v10, 6, v4")
    a("s_add_u32 s53, s59, 4096")
    a("s_cmp_ge_u32 s41, 288")
    a("s_cbranch_scc1 %s_nokv2" % name)
    a("s_waitcnt vmcnt(2)")
    emit_kv_compute(a, wait=False, store=False)
    a.label("%s_nokv2" % name)
    stamp(a, 4)
    a("s_mov_b32 s40, 0")
    a.label("%s_chk" % name)
    a("s_waitcnt vmcnt(0)")
    for tt in range(2):
        for q in range(4):
            a("buffer_load_dwordx4 %s, v4, s[12:15], s%d offen offset:%d sc1" % (vr(PB + 16 * tt + 4 * q), (59, 53)[tt], 16 * q))
    a("v_subrev_u32 v11, 16, v164")
    a("s_waitcnt vmcnt(0)")
    for r in range(PB + 1, PB + 32, 4):
        a("v_or3_b32 v11, v11, v%d, v%d" % (r, r + 2))
    a("v_cmp_gt_i32 vcc, 0, v11")
    a("s_add_u32 s40, s40, 1")
    a("s_cmp_gt_u32 s40, %d" % SPIN_MAX)
    a("s_cbranch_scc1 %s_ok" % name)
    a("s_cbranch_vccz %s_ok" % name)
    a("s_sleep 24")
    a("buffer_load_dword v164, v165, s[60:63], 0 offen sc1")
    a("s_branch %s_chk" % name)
    a.label("%s_ok" % name)
    stamp(a, 5)
    a("v_lshrrev_b32 v10, 4, v2")
    a("v_lshlrev_b32 v5, 12, v10")
    a("v_lshl_add_u32 v5, v3, 4, v5")
    a("s_lshl_b32 s33, s22, 7")
    a("s_lshl_b32 s36, s3, 5")
    a("s_add_u32 s33, s33, s36")
    a("s_lshl_b32 s36, s98, 4")
    a("s_add_u32 s33, s33, s36")
    a("s_lshl_b32 s33, s33, 12")
    a("s_lshl_b32 s36, s23, 8")
    a("s_add_u32 s33, s33, s36")
    for n in range(4):
        a("buffer_load_dwordx4 v[168:171], v5, s[92:95], s33 offen")
        if n < 3: a("s_add_u32 s33, s33, 16384")
    a("s_cmp_ge_u32 s41, 288")
    a("s_cbranch_scc1 %s_nokv3" % name)
    a("s_mov_b32 s39, 0x%x" % KVT)
    a("buffer_store_dwordx4 v[120:123], v12, s[12:15], s39 offen")
    a("buffer_store_dwordx4 v[124:127], v13, s[12:15], s39 offen")
    a.label("%s_nokv3" % name)
    for tt in range(2):
        b = PB + 16 * tt
        for st_ in (8, 4, 2):
            for q in range(0, st_, 2):
                a("v_pk_add_f32 %s, %s, %s" % (vr(b + q, 2), vr(b + q, 2), vr(b + q + st_, 2)))
    emit_xg_reduce(a, [PB + 16 * tt + e for tt in range(2) for e in range(2)], 72)
    for tt in range(2):
        b = PB + 16 * tt
        emit_ln_finish(a, b, b + 1, 2304, b + 2, MR + 2 * tt, b + 4)
        a("v_mul_f32 v%d, -v%d, v%d" % (MR + 2 * tt + 1, b + 2, MR + 2 * tt))
    a("v_lshrrev_b32 v11, 2, v2"); a("v_and_b32 v11, 1, v11"); a("v_lshlrev_b32 v11, 4, v11")
    a("v_lshrrev_b32 v5, 3, v2"); a("v_and_b32 v5, 1, v5"); a("v_lshl_add_u32 v11, v5, 2, v11")
    a("v_and_b32 v5, 3, v2"); a("v_add_u32 v11, v11, v5")
    a("v_mul_u32_u24 v11, 288, v11")
    a("v_lshrrev_b32 v5, 1, v10"); a("v_lshl_add_u32 v11, v5, 4, v11")
    a("v_and_b32 v5, 1, v10")
    a("v_lshl_add_u32 v6, v5, 5, v11")
    a("v_mul_u32_u24 v5, 2304, v5")
    a("v_add_u32 v9, v11, v5")
    a("s_lshl_b32 s33, s23, 5")
    a("s_lshl_b32 s36, s22, 1")
    a("s_add_u32 s33, s33, s36")
    a("s_add_u32 s33, s33, s24")
    a("s_mul_i32 s33, s33, 18432")
    if ZIMG: a("s_add_u32 s33, s33, 0x%x" % ZIMG)
    a("s_mul_i32 s36, s52, 9216")
    a("s_add_u32 s37, s33, s36")
    a("s_add_u32 s39, s37, 128")
    a("s_mul_i32 s36, s25, 160")
    a("s_add_u32 s37, s37, s36")
    def norm_pair(nA, ttA, nB, ttB, O):
        for q, (n, tt) in enumerate(((nA, ttA), (nB, ttB))):
            for d in range(2):
                z = ZPf(n) + d; t = T + 4 * q + 2 * d
                a("v_lshlrev_b32 v%d, 16, v%d" % (t, z))
                a("v_and_b32 v%d, 0xffff0000, v%d" % (t + 1, z))
        for q, (n, tt) in enumerate(((nA, ttA), (nB, ttB))):
            for d in range(2):
                t = T + 4 * q + 2 * d
                a("v_pk_fma_f32 %s, %s, %s, %s op_sel:[0,0,1] op_sel_hi:[1,0,1]" % (vr(t, 2), vr(t, 2), vr(MR + 2 * tt, 2), vr(MR + 2 * tt, 2)))
        for q in range(2):
            for d in range(2):
                t = T + 4 * q + 2 * d
                a("v_cvt_pk_bf16_f32 v%d, v%d, v%d" % (O + 2 * q + d, t, t + 1))
        a("s_nop 1")
        a("v_permlane16_swap_b32 v%d, v%d" % (O, O + 2))
        a("v_permlane16_swap_b32 v%d, v%d" % (O + 1, O + 3))
    cnt = 0
    for pr in range(2):
        for tt in range(2):
            O = 16 + 4 * cnt; cnt += 1
            norm_pair(2 * (2 * pr) + tt, tt, 2 * (2 * pr + 1) + tt, tt, O)
            a("s_nop 0")
            a("buffer_store_dwordx4 %s, v6, s[12:15], s37 offen offset:%d" % (vr(O), tt * 2304 + 64 * pr))
    a("s_cmp_lg_u32 s98, 0")
    a("s_cbranch_scc1 %s_fin" % name)
    O = 16 + 4 * cnt
    norm_pair(8, 0, 9, 1, O)
    a("s_nop 0")
    a("buffer_store_dwordx4 %s, v9, s[12:15], s39 offen" % vr(O))
    a.label("%s_fin" % name)
    stamp(a, 6)
    G.stamp_rt(a, 1)
    a.label("%s_end" % name)
    a("s_endpgm")
    return a.text(), kernel_desc(name, 256, 256), (name, 256, 512, LDSB)

def gen_k1j(name="k1_kernel", R=4):
    a = Asm()
    RB = 4096; SLOT = 34816; TREG = 16384; FS = 288; RST = 0
    LDSB = RB + R * SLOT
    def capture(f, *args):
        lb = len(a.lines); f(*args); out = a.lines[lb:]; del a.lines[lb:]; return out
    kernel_begin(a, name)
    a("s_load_dwordx2 s[80:81], s[0:1], 0")
    a("s_load_dwordx2 s[4:5], s[0:1], 56")
    a("s_load_dwordx2 s[6:7], s[0:1], 104")
    a("s_load_dwordx2 s[18:19], s[0:1], 96")
    a("s_cmp_ge_u32 s2, 256")
    a("s_cbranch_scc1 %s_end" % name)
    a("v_lshrrev_b32 v1, 6, v0")
    a("v_and_b32 v2, 63, v0")
    a("v_readfirstlane_b32 s3, v1")
    G2.tile_ij(a)
    a("s_lshr_b32 s98, s3, 2")
    a("s_mov_b32 s54x, 0".replace("s54x", "s99"))
    a("s_and_b32 s3, s3, 3")
    a("s_lshr_b32 s24, s3, 1")
    a("s_and_b32 s25, s3, 1")
    a("v_and_b32 v3, 15, v2")
    VT = 204; VF = 208
    def loader_setup():
        a("v_lshrrev_b32 v5, 3, v2")
        a("v_and_b32 v4, 7, v2")
        a("s_lshl_b32 s36, s3, 5")
        a("v_add_u32 v5, s36, v5")
        a("v_lshrrev_b32 v7, 4, v2")
        a("v_xor_b32 v7, v7, v4")
        a("v_mul_u32_u24 v6, 1152, v5")
        a("v_lshl_add_u32 v%d, v7, 4, v6" % VT)
        a("v_xor_b32 v%d, 64, v%d" % (VT + 1, VT))
        a("v_add_u32 v%d, %d, v%d" % (VT + 1, 9216 - 1024, VT + 1))
        a("v_add_u32 v%d, %d, v%d" % (VT + 2, 2 * (9216 - 1024), VT))
        a("v_add_u32 v%d, %d, v%d" % (VT + 3, 2 * (9216 - 1024), VT + 1))
        a("s_lshl_b32 s84, s3, 12")
        a("s_add_u32 s84, s84, %d" % RB)
        a("s_lshl_b32 s85, s3, 9")
        a("s_add_u32 s85, s85, %d" % (RB + TREG + 16384))
    def loader_setup2():
        for n in range(5):
            if n < 4:
                a("s_lshl_b32 s36, s3, 8")
                a("s_add_u32 s36, s36, %d" % (64 * n))
            else:
                a("s_lshl_b32 s36, s3, 5")
                a("s_add_u32 s36, s36, 1024")
            a("v_add_u32 v6, s36, v2")
            a("v_mul_u32_u24 v7, 3641, v6")
            a("v_lshrrev_b32 v7, 16, v7")
            a("v_mul_u32_u24 v8, 18, v7")
            a("v_sub_u32 v8, v6, v8")
            a("v_and_b32 v9, 35, v7")
            a("v_bfe_u32 v6, v7, 2, 2")
            a("v_lshl_add_u32 v9, v6, 3, v9")
            a("v_bfe_u32 v6, v7, 4, 1")
            a("v_lshl_add_u32 v9, v6, 2, v9")
            a("v_mul_u32_u24 v9, 9216, v9")
            a("v_lshl_add_u32 v%d, v8, 4, v9" % (VF + n))
            if 0 < n < 4: a("v_subrev_u32 v%d, %d, v%d" % (VF + n, 1024 * n, VF + n))
    def issueT(g):
        st = g % 9
        a("s_add_u32 s86, s84, %d" % ((g % R) * SLOT))
        a("s_mov_b32 m0, s86")
        a("s_add_u32 s87, s82, %d" % (128 * st))
        for n in range(4):
            a("buffer_load_dwordx4 v%d, s[28:31], s87 offen offset:%d lds" % (VT + n, 1024 * n))
    def issueF(g):
        st = g % 9
        a("s_add_u32 s86, s84, %d" % ((g % R) * SLOT + TREG))
        a("s_mov_b32 m0, s86")
        a("s_add_u32 s87, s83, %d" % (64 * 9216 * st + (4608 if g < 9 else 0)))
        for n in range(4):
            a("buffer_load_dwordx4 v%d, s[8:11], s87 offen offset:%d lds" % (VF + n, 1024 * n))
        a("s_add_u32 s86, s85, %d" % ((g % R) * SLOT))
        a("s_mov_b32 m0, s86")
        a("s_mov_b64 exec, 0xffffffff")
        a("buffer_load_dwordx4 v%d, s[8:11], s87 offen lds" % (VF + 4))
        a("s_mov_b64 exec, -1")
    def srds_main():
        srd(a, 28, 80, 2048 * 576 * 2)
        srd(a, 8, 4, 576 * 4608 * 2)
        srd(a, 12, 6, WS_BYTES)
        srd(a, 60, 18, 256)
        a("s_mul_i32 s82, s22, %d" % (128 * 1152))
        a("s_mul_i32 s83, s23, 288")
    ACC = 128; FB = [16, 52]; CS = 216; ONE = 236
    vTa = [4, 5]; vTb = [6, 7]; vF = 8; vFh = 9
    bTa = [88, 89]; bTb = [90, 91]; bF = 92; bFh = 93
    def mma_setup():
        a("v_lshrrev_b32 v10, 4, v2")
        a("v_lshrrev_b32 v11, 1, v3")
        a("v_xor_b32 v10, v10, v11")
        a("v_lshlrev_b32 v10, 4, v10")
        a("v_lshl_add_u32 v10, v3, 7, v10")
        a("s_lshl_b32 s26, s24, 13")
        a("s_add_u32 s26, s26, %d" % RB)
        a("v_add_u32 v10, s26, v10")
        a("s_lshl_b32 s26, s25, 12")
        a("v_add_u32 v%d, s26, v10" % bTa[0])
        a("s_xor_b32 s26, s26, 4096")
        a("v_add_u32 v%d, s26, v10" % bTb[0])
        a("v_xor_b32 v%d, 64, v%d" % (bTa[1], bTa[0]))
        a("v_xor_b32 v%d, 64, v%d" % (bTb[1], bTb[0]))
        a("v_lshrrev_b32 v10, 2, v2")
        a("v_mul_u32_u24 v10, %d, v10" % FS)
        a("v_and_b32 v11, 3, v2")
        a("v_lshl_add_u32 v10, v11, 3, v10")
        a("v_add_u32 v10, %d, v10" % (RB + TREG))
        a("s_mul_i32 s26, s25, 160")
        a("v_add_u32 v%d, s26, v10" % bF)
        a("v_add_u32 v%d, 128, v10" % bFh)
        for r in range(ACC, ACC + 72): a("v_mov_b32 v%d, 0" % r)
        for r in range(CS, CS + 20): a("v_mov_b32 v%d, 0" % r)
        for r in range(ONE, ONE + 4): a("v_mov_b32 v%d, 0x3f803f80" % r)
    def mma_addr(slot):
        a("s_mov_b32 s27, %d" % (slot * SLOT))
        for d, s_ in ((vTa[0], bTa[0]), (vTb[0], bTb[0]), (vTa[1], bTa[1]), (vTb[1], bTb[1]), (vF, bF), (vFh, bFh)):
            a("v_add_u32 v%d, s27, v%d" % (d, s_))
    core = G.Core(a, ACC, FB[0], FB[1], FS, TREG, vTa, vTb, vF, vFh)
    trk = core.trk
    a("s_cmp_eq_u32 s98, 0")
    a("s_cbranch_scc1 %s_A0" % name)
    a("s_setprio 3")
    loader_setup()
    a("s_waitcnt lgkmcnt(0)")
    srds_main()
    vm = VmTracker(a)
    def issue(g, vmx):
        issueT(g); issueF(g); vmx.issue("S%d" % g, 9)
    issueT(0)
    loader_setup2()
    issueF(0); vm.issue("S0", 9)
    issue(1, vm); issue(2, vm); issue(3, vm)
    a("s_add_u32 s3, s3, 4"); stamp_setup(a, 1); stamp(a, 0); a("s_sub_u32 s3, s3, 4")
    for r in range(ONE, ONE + 4): a("v_mov_b32 v%d, 0x3f803f80" % r)
    RA = 96; XB = 112
    for r in range(RA, RA + 16): a("v_mov_b32 v%d, 0" % r)
    a("v_lshrrev_b32 v10, 4, v2")
    a("v_lshrrev_b32 v11, 1, v3")
    a("v_xor_b32 v10, v10, v11")
    a("v_lshlrev_b32 v10, 4, v10")
    a("v_lshl_add_u32 v10, v3, 7, v10")
    a("v_add_u32 v12, s84, v10")
    a("v_xor_b32 v13, 64, v12")
    def rs_rd(g):
        a("v_add_u32 v10, %d, v12" % ((g % R) * SLOT))
        a("v_add_u32 v11, %d, v13" % ((g % R) * SLOT))
        for h in range(2):
            for n in range(2):
                a("ds_read_b128 %s, v%d offset:%d" % (vr(XB + 8 * h + 4 * n), 10 + h, 2048 * n))
    def rs_do():
        for h in range(2):
            for n in range(2):
                x = XB + 8 * h + 4 * n
                a("v_mfma_f32_16x16x32_bf16 %s, %s, %s, %s" % (vr(RA + 4 * n), vr(ONE), vr(x), vr(RA + 4 * n)))
                a("v_mfma_f32_16x16x32_bf16 %s, %s, %s, %s" % (vr(RA + 8 + 4 * n), vr(x), vr(x), vr(RA + 8 + 4 * n)))
    def interleave(dma, comp, vmx=None):
        groups = []; cur = []
        for l in dma:
            cur.append(l)
            if "buffer_load" in l and not any("exec, 0xffffffff" in x for x in cur[-2:]):
                groups.append(cur); cur = []
            elif "exec, -1" in l:
                groups.append(cur); cur = []
        if cur: groups.append(cur)
        ns = max(1, len(groups))
        per = (len(comp) + ns - 1) // ns
        for g in groups:
            a.lines.extend(g)
            a.lines.extend(comp[:per]); comp = comp[per:]
        a.lines.extend(comp)
    vm.wait(["S0"])
    a("s_barrier")
    stamp(a, 1)
    rs_rd(0)
    vm.wait(["S1"])
    a("s_barrier")
    for k in range(9):
        a("s_waitcnt lgkmcnt(0)")
        dma = capture(lambda: (issueT(k + 3), issueF(k + 3))) if (k >= 1 and k + 3 < 9) else []
        interleave(dma, capture(rs_do))
        if k >= 1 and k + 3 < 9: vm.issue("S%d" % (k + 3), 9)
        if k < 8:
            rs_rd(k + 1)
        else:
            a("s_nop 7")
            a("v_lshrrev_b32 v10, 4, v2")
            a("v_lshrrev_b32 v11, 2, v3")
            a("v_and_b32 v12, 3, v3")
            for n in range(2):
                G_ = RA + 8 + 4 * n
                for r in range(1, 4):
                    a("v_cmp_eq_u32 vcc, %d, v12" % r)
                    a("s_nop 1")
                    a("v_cndmask_b32 v%d, v%d, v%d, vcc" % (G_, G_, G_ + r))
            ML = 112
            for n in range(2):
                emit_ln_finish(a, RA + 4 * n, RA + 8 + 4 * n, 576, ML + 2 * n, ML + 2 * n + 1, 120)
                a("v_mov_b32 v%d, v%d" % (117 + 2 * n, ML + 2 * n + 1))
                a("v_sub_f32 v%d, 0, v%d" % (116 + 2 * n, ML + 2 * n))
            a("s_lshl_b32 s35, s3, 8")
            a("v_lshlrev_b32 v13, 3, v3")
            a("v_add_u32 v12, s35, v13")
            a("v_cmp_eq_u32 vcc, v10, v11")
            a("s_and_saveexec_b64 s[36:37], vcc")
            for n in range(2):
                a("ds_write_b64 v12, %s offset:%d" % (vr(116 + 2 * n, 2), RST + 128 * n))
            a("s_mov_b64 exec, s[36:37]")
            a("s_cmp_lg_u32 s23, 0")
            a("s_cbranch_scc1 %s_nost1" % name)
            a("s_lshl_b32 s35, s22, 7")
            a("s_lshl_b32 s36, s3, 5")
            a("s_add_u32 s35, s35, s36")
            a("s_lshl_b32 s35, s35, 3")
            a("s_add_u32 s35, s35, 0x%x" % STATS1)
            a("v_mov_b32 v11, 0x7ffffff0")
            a("v_cndmask_b32 v13, v11, v13, vcc")
            for n in range(2):
                a("buffer_store_dwordx2 %s, v13, s[12:15], s35 offen offset:%d" % (vr(ML + 2 * n, 2), 128 * n))
            a.label("%s_nost1" % name)
        if k < 8:
            vm.wait(["S%d" % (k + 2)])
            a("s_barrier")
    a("s_waitcnt lgkmcnt(0)")
    a("s_barrier")
    a("s_load_dwordx4 s[64:67], s[0:1], 8")
    a("s_load_dwordx2 s[76:77], s[0:1], 24")
    a("s_load_dwordx2 s[90:91], s[0:1], 64")
    a("s_mul_i32 s36, s3, 13312")
    a("s_add_u32 s36, s36, %d" % RB)
    a("v_lshlrev_b32 v10, 4, v2")
    a("v_add_u32 v11, s36, v10")
    a("s_waitcnt lgkmcnt(0)")
    srd(a, 68, 66, 2048 * 576 * 2)
    a("s_mov_b32 s88, s64"); a("s_mov_b32 s89, s65")
    srd(a, 64, 88, 2048 * 576 * 2)
    srd(a, 72, 76, 576 * 8)
    srd(a, 92, 90, 2048 * 2048 * 2)
    a("s_barrier")
    n_ = 0
    for ft in range(4):
        for tt in range(2):
            a("ds_read_b128 %s, v11 offset:%d" % (vr(core.accr(ft, tt)), 1024 * n_)); n_ += 1
    for ft in range(4):
        a("ds_read_b128 %s, v11 offset:%d" % (vr(CS + 4 * ft), 1024 * n_)); n_ += 1
    a("s_branch %s_epi" % name)
    a.label("%s_A0" % name)
    emit_code_prefetch(a, name)
    a("s_load_dwordx4 s[64:67], s[0:1], 8")
    a("s_load_dwordx2 s[76:77], s[0:1], 24")
    a("s_load_dwordx2 s[90:91], s[0:1], 64")
    mma_setup()
    a("s_waitcnt lgkmcnt(0)")
    srds_main()
    srd(a, 68, 66, 2048 * 576 * 2)
    a("s_mov_b32 s88, s64"); a("s_mov_b32 s89, s65")
    srd(a, 64, 88, 2048 * 576 * 2)
    srd(a, 72, 76, 576 * 8)
    srd(a, 92, 90, 2048 * 2048 * 2)
    stamp_setup(a, 1); stamp(a, 0)
    def gran_addr():
        a("v_lshrrev_b32 v10, 4, v2")
        a("s_lshl_b32 s36, s25, 1")
        a("v_add_u32 v11, s36, v10")
        a("v_and_b32 v11, 3, v11")
        a("v_lshl_add_u32 v11, v11, 4, v3")
        a("v_lshlrev_b32 v94, 8, v11")
        a("s_lshl_b32 s59, s22, 7")
        a("s_lshl_b32 s36, s24, 6")
        a("s_add_u32 s59, s59, s36")
        a("s_lshl_b32 s59, s59, 8")
        a("s_add_u32 s59, s59, 0x%x" % STATS2)
        a("s_lshl_b32 s36, s23, 1")
        a("s_add_u32 s36, s36, s25")
        a("s_lshl_b32 s36, s36, 3")
        a("s_add_u32 s58, s36, s59")
    mma_addr(0)
    a("s_mov_b32 s33, 0")
    a("s_barrier")
    stamp(a, 1)
    a.label("%s_mma" % name)
    core.prime(0, core.reads(0, 0))
    trk.drain()
    def mfmas(buf):
        L = []
        for ft in range(5):
            A = core.F(buf, ft)
            for tt in range(4 if ft < 4 else 2):
                c = core.accr(ft, tt); B = core.T(buf, tt)
                L.append(("v_mfma_f32_16x16x32_bf16 %s, %s, %s, %s" % (vr(c), vr(A), vr(B), vr(c)), list(range(A, A + 4)) + list(range(B, B + 4))))
            L.append(("v_mfma_f32_16x16x32_bf16 %s, %s, %s, %s" % (vr(CS + 4 * ft), vr(A), vr(ONE), vr(CS + 4 * ft)), list(range(A, A + 4))))
        return L
    def phase(buf, pend):
        for (m, regs) in mfmas(buf):
            trk.need(regs)
            a(m)
            while pend:
                k, t = pend.pop(0)
                if k == "x":
                    a(t)
                    if t.startswith("s_"): continue
                else:
                    a(t[0]); trk.issue(t[1])
                break
        for k, t in pend:
            if k == "x": a(t)
            else: a(t[0]); trk.issue(t[1])
    def iteration():
        a("s_waitcnt vmcnt(0)")
        a("s_barrier")
        rd = [("r", t) for t in core.reads(1, 1)]
        upd = ["s_add_u32 s27, s27, %d" % SLOT, "s_cmp_eq_u32 s27, %d" % (R * SLOT), "s_cselect_b32 s27, 0, s27"]
        tail = ["v_add_u32 v%d, s27, v%d" % (d, s_) for d, s_ in ((vTa[0], bTa[0]), (vF, bF), (vTb[0], bTb[0]), (vFh, bFh))]
        phase(0, rd[:1] + [("x", u) for u in upd] + rd[1:] + [("x", u) for u in tail])
        rd = [("r", t) for t in core.reads(0, 0)]
        tail = ["v_add_u32 v%d, s27, v%d" % (d, s_) for d, s_ in ((vTa[1], bTa[1]), (vTb[1], bTb[1]))] + ["s_add_u32 s33, s33, 1"]
        phase(1, rd + [("x", u) for u in tail])
    a.label("%s_cloop" % name)
    lb = len(a.lines); iteration(); st = copy.deepcopy(trk.out); del a.lines[lb:]; trk.out = copy.deepcopy(st)
    iteration()
    assert [sorted(x) for x in trk.out] == [sorted(x) for x in st]
    a("s_cmp_lt_u32 s33, 9")
    a("s_cbranch_scc1 %s_cloop" % name)
    trk.drain()
    stamp(a, 2)
    a("s_waitcnt vmcnt(0)")
    a("s_barrier")
    a("s_mul_i32 s36, s3, 13312")
    a("s_add_u32 s36, s36, %d" % RB)
    a("v_lshlrev_b32 v10, 4, v2")
    a("v_add_u32 v11, s36, v10")
    n_ = 0
    for ft in range(4):
        for tt in range(2):
            a("ds_write_b128 v11, %s offset:%d" % (vr(core.accr(ft, tt + 2)), 1024 * n_)); n_ += 1
    for ft in range(4):
        a("ds_write_b128 v11, %s offset:%d" % (vr(CS + 4 * ft), 1024 * n_)); n_ += 1
    a("s_waitcnt lgkmcnt(0)")
    a("s_barrier")
    a.label("%s_epi" % name)
    MR = 100; T = 72; ZP = 200
    gelu_consts(a)
    a("s_xor_b32 s52, s98, s25")
    a("s_lshl_b32 s36, s24, 9")
    a("s_lshl_b32 s37, s52, 8")
    a("s_add_u32 s38, s36, s37")
    a("v_lshlrev_b32 v10, 3, v3")
    a("v_add_u32 v11, s38, v10")
    a("ds_read_b64 %s, v11 offset:%d" % (vr(MR, 2), RST))
    a("ds_read_b64 %s, v11 offset:%d" % (vr(MR + 2, 2), RST + 128))
    a("s_lshl_b32 s41, s2, 1")
    a("s_add_u32 s41, s41, s98")
    a("v_and_b32 v0, 255, v0")
    a("s_cmp_ge_u32 s41, 288")
    a("s_cbranch_scc1 %s_nokv1" % name)
    emit_kv_loads(a)
    a.label("%s_nokv1" % name)
    S = [108, 110]; Q = [109, 111]
    for r_ in range(108, 112): a("v_mov_b32 v%d, 0" % r_)
    a("s_waitcnt lgkmcnt(0)")
    ZPf = lambda n: (240 + 2 * n) if n < 8 else (196 + 2 * (n - 8))
    def dots(lst):
        for d in range(2):
            for (ft, tt) in lst:
                p = ZPf(2 * ft + tt) + d
                a("v_dot2_f32_bf16 v%d, v%d, v%d, v%d" % (S[tt], p, ONE, S[tt]))
                a("v_dot2_f32_bf16 v%d, v%d, v%d, v%d" % (Q[tt], p, p, Q[tt]))
    a("s_cmp_lg_u32 s98, 0")
    a("s_cbranch_scc1 %s_nohalf" % name)
    lst = [(4, 0), (4, 1)]
    emit_fold_gelu(a, [(core.accr(ft, tt), CS + 4 * ft, MR + 2 * tt, ZPf(2 * ft + tt)) for ft, tt in lst], T)
    dots(lst)
    a.label("%s_nohalf" % name)
    for f0 in (0, 2):
        lst = [(ft, tt) for ft in (f0, f0 + 1) for tt in range(2)]
        emit_fold_gelu(a, [(core.accr(ft, tt), CS + 4 * ft, MR + 2 * tt, ZPf(2 * ft + tt)) for ft, tt in lst], T)
        dots(lst)
    a("s_nop 2")
    emit_xg_reduce(a, S + Q, 72)
    a("s_lshl_b32 s59, s22, 7")
    a("s_lshl_b32 s36, s24, 6")
    a("s_add_u32 s59, s59, s36")
    a("s_lshl_b32 s36, s52, 5")
    a("s_add_u32 s59, s59, s36")
    a("s_lshl_b32 s59, s59, 8")
    a("s_add_u32 s59, s59, 0x%x" % STATS2)
    a("s_lshl_b32 s36, s23, 1")
    a("s_add_u32 s36, s36, s25")
    a("s_lshl_b32 s36, s36, 3")
    a("s_add_u32 s58, s36, s59")
    a("v_lshrrev_b32 v10, 4, v2")
    a("v_lshlrev_b32 v11, 8, v2")
    a("v_cmp_gt_u32 vcc, 32, v2")
    a("v_mov_b32 v12, 0x7ffffff0")
    a("v_cmp_eq_u32 s[36:37], 1, v10")
    a("v_cndmask_b32 v11, v12, v11, vcc")
    a("s_nop 0")
    a("v_cndmask_b32 v108, v108, v110, s[36:37]")
    a("v_cndmask_b32 v109, v109, v111, s[36:37]")
    a("buffer_store_dwordx2 v[108:109], v11, s[12:15], s58 offen")
    a("s_setprio 0")
    stamp(a, 3)
    a("v_lshrrev_b32 v10, 4, v2")
    a("v_lshlrev_b32 v5, 12, v10")
    a("v_lshl_add_u32 v5, v3, 4, v5")
    a("s_lshl_b32 s33, s22, 7")
    a("s_lshl_b32 s36, s3, 5")
    a("s_add_u32 s33, s33, s36")
    a("s_lshl_b32 s36, s98, 4")
    a("s_add_u32 s33, s33, s36")
    a("s_lshl_b32 s33, s33, 12")
    a("s_lshl_b32 s36, s23, 8")
    a("s_add_u32 s33, s33, s36")
    for n in range(4):
        a("buffer_load_dwordx4 v[168:171], v5, s[92:95], s33 offen")
        if n < 3: a("s_add_u32 s33, s33, 16384")
    a("v_lshrrev_b32 v11, 2, v2"); a("v_and_b32 v11, 1, v11"); a("v_lshlrev_b32 v11, 4, v11")
    a("v_lshrrev_b32 v5, 3, v2"); a("v_and_b32 v5, 1, v5"); a("v_lshl_add_u32 v11, v5, 2, v11")
    a("v_and_b32 v5, 3, v2"); a("v_add_u32 v11, v11, v5")
    a("v_mul_u32_u24 v11, 288, v11")
    a("v_lshrrev_b32 v5, 1, v10"); a("v_lshl_add_u32 v11, v5, 4, v11")
    a("v_and_b32 v5, 1, v10")
    a("v_lshl_add_u32 v6, v5, 5, v11")
    a("v_mul_u32_u24 v5, 2304, v5")
    a("v_add_u32 v9, v11, v5")
    a("s_lshl_b32 s33, s23, 5")
    a("s_lshl_b32 s36, s22, 1")
    a("s_add_u32 s33, s33, s36")
    a("s_add_u32 s33, s33, s24")
    a("s_mul_i32 s33, s33, 18432")
    if ZIMG: a("s_add_u32 s33, s33, 0x%x" % ZIMG)
    a("s_mul_i32 s36, s52, 9216")
    a("s_add_u32 s37, s33, s36")
    a("s_add_u32 s39, s37, 128")
    a("s_mul_i32 s36, s25, 160")
    a("s_add_u32 s37, s37, s36")
    def norm_pair(nA, ttA, nB, ttB, O):
        for q, n in enumerate((nA, nB)):
            for d in range(2):
                a("v_mov_b32 v%d, v%d" % (O + 2 * q + d, ZPf(n) + d))
        a("s_nop 1")
        a("v_permlane16_swap_b32 v%d, v%d" % (O, O + 2))
        a("v_permlane16_swap_b32 v%d, v%d" % (O + 1, O + 3))
    cnt = 0
    for pr in range(2):
        for tt in range(2):
            O = 128 + 4 * cnt; cnt += 1
            norm_pair(2 * (2 * pr) + tt, tt, 2 * (2 * pr + 1) + tt, tt, O)
            a("s_nop 0")
            a("buffer_store_dwordx4 %s, v6, s[12:15], s37 offen offset:%d" % (vr(O), tt * 2304 + 64 * pr))
    a("s_cmp_lg_u32 s98, 0")
    a("s_cbranch_scc1 %s_fin" % name)
    O = 128 + 4 * cnt
    norm_pair(8, 0, 9, 1, O)
    a("s_nop 0")
    a("buffer_store_dwordx4 %s, v9, s[12:15], s39 offen" % vr(O))
    a.label("%s_fin" % name)
    stamp(a, 4)
    a("s_cmp_ge_u32 s41, 288")
    a("s_cbranch_scc1 %s_fin2" % name)
    a("s_waitcnt vmcnt(9)")
    emit_kv_compute(a, wait=False)
    a.label("%s_fin2" % name)
    stamp(a, 6)
    G.stamp_rt(a, 1)
    a.label("%s_end" % name)
    a("s_endpgm")
    return a.text(), kernel_desc(name, 256, 256), (name, 256, 512, LDSB)

gen_k2b = G3.gen_k2b; gen_k2c = G3.gen_k2c; gen_k2d = G3.gen_k2d; gen_k3b = G3.gen_k3b; gen_kw = G3.gen_kw; gen_k1g = G3.gen_k1g

if __name__ == "__main__":
    which = sys.argv[1]; out = sys.argv[2]
    if len(sys.argv) > 3: DBG.update(sys.argv[3].split(","))
    ks = [globals()["gen_" + w]() for w in which.split(",")]
    open(out, "w").write(assemble_file([k[2] for k in ks], "".join(k[0] for k in ks) + "code_end_lbl:\n", [k[1] for k in ks]))
```

```python
import sys, copy
from asmgen import *
import gen as G
import gen2 as G2
from gen import (ZIMG, Z1IMG, PIMG, WOT, KVT, YT, STATS2, STATS1, WS_BYTES, DBG, LdsTracker, vr, stamp, stamp_setup,
                 rnd_pair, f32, emit_xg_reduce, emit_ln_finish)
from gen2 import VmTracker, TILES, tidx, emit_fold_gelu, gelu_consts, seg_end, SPIN_MAX

def emit_kv_loads(a, KD=16, VD=32, SD=44, K56=56, K57=57):
    a("s_mul_hi_u32 s36, s41, 0x%x" % ((2**32 + 8) // 9))
    a("s_mul_i32 s37, s36, 9")
    a("s_sub_u32 s37, s41, s37")
    a("v_and_b32 v1, 31, v0")
    a("v_lshrrev_b32 v10, 5, v0")
    a("s_lshl_b32 s38, s36, 6")
    a("v_lshl_add_u32 v%d, v10, 3, s38" % K56)
    a("s_lshl_b32 s39, s37, 7")
    a("v_lshl_add_u32 v%d, v1, 2, s39" % K57)
    a("v_mul_u32_u24 v5, 1152, v%d" % K56)
    a("v_add_u32 v5, v5, v%d" % K57)
    a("v_subrev_u32 v6, %d, v5" % (3 * 1152))
    a("v_cmp_gt_u32 vcc, 3, v%d" % K56)
    a("v_mov_b32 v7, 0x7ffffff0")
    a("v_add_u32 v9, %d, v5" % 3456)
    a("v_cndmask_b32 v8, v6, v7, vcc")
    a("v_add_u32 v10, %d, v5" % 6912)
    for n in range(3):
        a("buffer_load_dword v%d, v8, s[64:67], 0 offen offset:%d" % (KD + n, 1152 * n))
    for n in range(8):
        base, off = ((5, 1152 * n) if n < 3 else (9, 1152 * (n - 3)) if n < 6 else (10, 1152 * (n - 6)))
        a("buffer_load_dword v%d, v%d, s[64:67], 0 offen offset:%d" % (KD + 3 + n, base, off))
        a("buffer_load_dword v%d, v%d, s[68:71], 0 offen offset:%d" % (VD + n, base, off))
    a("v_lshlrev_b32 v11, 2, v%d" % K57)
    a("buffer_load_dwordx4 %s, v11, s[72:75], 0 offen" % vr(SD))

def emit_kv_compute(a, wait=True, store=True):
    if wait: a("s_waitcnt vmcnt(0)")
    for ch in range(2):
        for q in range(2):
            a("v_lshlrev_b32 v%d, 16, v%d" % (48 + 4 * ch + 2 * q, 44 + 2 * ch + q))
            a("v_and_b32 v%d, 0xffff0000, v%d" % (49 + 4 * ch + 2 * q, 44 + 2 * ch + q))
    for n in range(11):
        a("v_lshlrev_b32 v%d, 16, v%d" % (60 + n, 16 + n))
        a("v_and_b32 v%d, 0xffff0000, v%d" % (72 + n, 16 + n))
    OUT = 100
    for e0 in range(0, 8, 2):
        es = (e0, e0 + 1)
        R_ = {e: (84 + 6 * (e & 1)) for e in es}
        for e in es:
            A0 = R_[e]
            a("v_mul_f32 v%d, v%d, v%d" % (A0, 60 + e, 51)); a("v_mul_f32 v%d, v%d, v%d" % (A0 + 1, 72 + e, 55))
        for e in es: rnd_pair(a, R_[e] + 4, R_[e], R_[e] + 1)
        for t in range(1, 4):
            for e in es:
                A0 = R_[e]
                a("v_mul_f32 v%d, v%d, v%d" % (A0 + 2, 60 + e + t, 51 - t)); a("v_mul_f32 v%d, v%d, v%d" % (A0 + 3, 72 + e + t, 55 - t))
            for e in es: rnd_pair(a, R_[e] + 4, R_[e] + 2, R_[e] + 3)
            for e in es:
                A0 = R_[e]
                a("v_add_f32 v%d, v%d, v%d" % (A0, A0, A0 + 2)); a("v_add_f32 v%d, v%d, v%d" % (A0 + 1, A0 + 1, A0 + 3))
            for e in es: rnd_pair(a, R_[e] + 4, R_[e], R_[e] + 1)
        for e in es:
            A0 = R_[e]
            a("v_lshlrev_b32 v%d, 16, v%d" % (A0 + 2, 32 + e)); a("v_and_b32 v%d, 0xffff0000, v%d" % (A0 + 3, 32 + e))
            a("v_mul_f32 v%d, v%d, v%d" % (OUT + e, A0, A0 + 2)); a("v_mul_f32 v%d, v%d, v%d" % (OUT + 8 + e, A0 + 1, A0 + 3))
    for ch in range(2):
        for q in range(4):
            a("v_cvt_pk_bf16_f32 v%d, v%d, v%d" % (120 + 4 * ch + q, OUT + 8 * ch + 7 - 2 * q, OUT + 8 * ch + 6 - 2 * q))
    a("v_lshlrev_b32 v12, 11, v57")
    a("v_sub_u32 v13, 2040, v56")
    a("v_lshl_add_u32 v12, v13, 1, v12")
    a("v_add_u32 v13, 4096, v12")
    if not store: return
    a("s_mov_b32 s39, 0x%x" % KVT)
    a("buffer_store_dwordx4 v[120:123], v12, s[12:15], s39 offen")
    a("buffer_store_dwordx4 v[124:127], v13, s[12:15], s39 offen")

def emit_wot_loads(a, WD=128, WO=140, PER=360, NL=2):
    a("s_mul_i32 s36, s42, %d" % PER)
    a("s_mov_b32 s37, 0x%x" % ((2**32 + 9) // 10))
    a("s_mov_b32 s38, 0x%x" % ((2**32 + 17) // 18))
    a("s_mov_b32 s40, 0x%x" % WOT)
    for n in range(NL):
        a("v_add_u32 v16, s36, v0")
        if n: a("v_add_u32 v16, %d, v16" % (256 * n))
        a("v_mul_hi_u32 v17, v16, s37")
        a("v_mul_u32_u24 v18, 10, v17")
        a("v_sub_u32 v18, v16, v18")
        a("v_lshrrev_b32 v19, 7, v17")
        a("v_and_b32 v20, 127, v17")
        a("v_mul_hi_u32 v21, v19, s38")
        a("v_mul_u32_u24 v22, 18, v21")
        a("v_sub_u32 v22, v19, v22")
        a("v_and_b32 v23, 0x63, v20")
        a("v_bfe_u32 v24, v20, 2, 2")
        a("v_lshl_add_u32 v23, v24, 3, v23")
        a("v_bfe_u32 v24, v20, 4, 1")
        a("v_lshl_add_u32 v23, v24, 2, v23")
        a("v_lshl_add_u32 v23, v22, 7, v23")
        a("v_mul_u32_u24 v23, 1152, v23")
        a("v_lshrrev_b32 v24, 1, v21")
        a("v_mul_u32_u24 v24, 288, v24")
        a("v_add_u32 v23, v23, v24")
        a("v_lshl_add_u32 v23, v18, 4, v23")
        a("v_and_b32 v24, 1, v21")
        a("v_cmp_gt_u32 vcc, 8, v18")
        a("v_mul_u32_u24 v24, 160, v24")
        a("v_lshlrev_b32 v%d, 4, v16" % (WO + n))
        a("v_cndmask_b32 v24, 0, v24, vcc")
        a("v_add_u32 v23, v23, v24")
        if n == NL - 1:
            a("v_cmp_gt_u32 vcc, %d, v0" % (PER - 256 * (NL - 1)))
            a("v_mov_b32 v24, 0x7ffffff0")
            a("s_nop 0")
            a("v_cndmask_b32 v23, v24, v23, vcc")
            a("v_cndmask_b32 v%d, v24, v%d, vcc" % (WO + n, WO + n))
        a("buffer_load_dwordx4 %s, v23, s[76:79], 0 offen" % vr(WD + 4 * n))

CJ_EB = 0; CJ_OB = 4160; CJ_UB = 8320; CJ_SIZE = 12928
def seg_end2(a, name):
    return

CJ_H = [56, 64, 72, 80]; CJ_U = 224
def emit_conv_loads(a, kvpol=""):
    a("s_lshl_b32 s36, s43, 12")
    a("v_lshlrev_b32 v4, 4, v2")
    for n in range(4):
        a("buffer_load_dwordx4 %s, v4, s[16:19], s36 offen offset:%d" % (vr(CJ_H[n]), 1024 * n))
    a("v_add_u32 v5, 16, v4")
    for n in range(4):
        a("buffer_load_dword v%d, v5, s[16:19], s36 offen offset:%d" % (CJ_H[n] + 4, 1024 * n))
    a("s_add_u32 s37, s36, 0x%x" % KVT)
    for n in range(4):
        a("buffer_load_dwordx4 %s, v4, s[12:15], s37 offen offset:%d%s" % (vr(CJ_U + 4 * n), 1024 * n, kvpol))
    a("s_lshl_b32 s37, s43, 1")
    a("v_mov_b32 v6, s37")
    a("buffer_load_ushort v240, v6, s[84:87], 0 offen")
    return 13

def emit_conv_job(a, name, mid=None):
    EB, OB, UB = CJ_EB, CJ_OB, CJ_UB
    H = CJ_H
    a("v_lshlrev_b32 v4, 4, v2")
    a("v_add_u32 v12, s27, v4")
    for r in range(8, 12): a("v_mov_b32 v%d, 0" % r)
    a("v_lshlrev_b32 v5, 3, v2")
    a("v_add_u32 v5, s27, v5")
    a("ds_write_b64 v5, v[8:9] offset:%d" % (UB + 4096))
    a("s_mov_b64 exec, 3")
    a("ds_write_b128 v12, v[8:11] offset:%d" % EB)
    a("ds_write_b128 v12, v[8:11] offset:%d" % OB)
    a("s_mov_b64 exec, -1")
    for n in range(4):
        a("ds_write_b128 v12, %s offset:%d" % (vr(CJ_U + 4 * n), UB + 1024 * n))
    a("s_waitcnt lgkmcnt(3)")
    for n in range(4):
        a("ds_write_b128 v12, %s offset:%d" % (vr(H[n]), EB + 32 + 1024 * n))
        for q in range(4):
            a("v_alignbit_b32 v%d, v%d, v%d, 16" % (88 + 4 * (n & 1) + q, H[n] + q + 1, H[n] + q))
        a("ds_write_b128 v12, %s offset:%d" % (vr(88 + 4 * (n & 1)), OB + 32 + 1024 * n))
    a("s_mov_b64 exec, 1")
    a("v_mov_b32 v5, s27")
    a("ds_write_b16 v5, v%d offset:%d" % (H[0], OB + 30))
    a("s_mov_b64 exec, -1")
    if mid: mid()
    a("v_and_b32 v5, 15, v2")
    a("v_lshrrev_b32 v6, 4, v2")
    a("v_lshl_add_u32 v7, v6, 3, v5")
    a("v_and_b32 v8, 1, v5")
    a("v_add_u32 v7, v7, v8")
    a("v_lshlrev_b32 v7, 1, v7")
    a("v_cmp_eq_u32 vcc, 0, v8")
    a("v_mov_b32 v9, %d" % EB); a("v_mov_b32 v10, %d" % OB)
    a("v_cndmask_b32 v9, v9, v10, vcc")
    a("v_add3_u32 v7, v7, v9, s27")
    AA = 52
    for q in range(4):
        a("v_add_u32 v%d, %d, v7" % (AA + q, 1024 * q))
    a("v_lshlrev_b32 v9, 4, v6")
    a("v_lshlrev_b32 v10, 5, v5")
    a("v_sub_u32 v9, v9, v10")
    a("s_add_u32 s38, s27, %d" % (UB + 480))
    a("v_add_u32 v11, s38, v9")
    a("v_lshlrev_b32 v9, 5, v5")
    a("v_lshl_add_u32 v9, v6, 3, v9")
    a("s_add_u32 s38, s27, %d" % (UB + 4088 - 3584))
    a("v_sub_u32 v10, s38, v9")
    ACC = 96; AF = [112, 176]; BF = [144, 208]
    for r in range(ACC, ACC + 16): a("v_mov_b32 v%d, 0" % r)
    a("v_lshlrev_b32 v13, 16, v240")
    a("s_lshl_b32 s36, s43, 12")
    a("s_add_u32 s37, s36, 0x%x" % YT)
    a("s_mov_b32 s33, 0")
    a("s_waitcnt lgkmcnt(0)")
    stamp(a, 3)
    a("s_cmp_eq_u32 s26, 1")
    a("s_cbranch_scc1 %s_cj1" % name)
    for hv, tiles in enumerate(([7, 6, 1, 0], [5, 4, 3, 2])):
        if hv: a.label("%s_cj1" % name)
        nq = max(tiles) + 1
        trk = LdsTracker(a)
        def room():
            if len(trk.out) >= 13:
                a("s_waitcnt lgkmcnt(8)"); trk.out = trk.out[-8:]
        def reads(kk, buf):
            L = []
            for q in range(nq):
                r = BF[buf] + 4 * q
                L.append(("ds_read_b128 %s, v11 offset:%d" % (vr(r), 3584 - 512 * q + 64 * kk), range(r, r + 4)))
                r = AF[buf] + 4 * q
                o = 128 * (q & 1) + 16 * kk
                L.append(("ds_read2_b32 %s, v%d offset0:%d offset1:%d" % (vr(r, 2), AA + (q >> 1), o, o + 1), range(r, r + 2)))
                L.append(("ds_read2_b32 %s, v%d offset0:%d offset1:%d" % (vr(r + 2, 2), AA + (q >> 1), o + 2, o + 3), range(r + 2, r + 4)))
            return L
        for t, r in reads(0, 0):
            room(); a(t); trk.issue(r)
        trk.drain()
        ms = sorted([(max(jj, n - jj), ti, n, jj) for ti, n in enumerate(tiles) for jj in range(n + 1)])
        def step(buf, kk_next, upd):
            nxt = [("x", u) for u in upd] + [("r", x) for x in reads(kk_next, 1 - buf)]
            tot = len(nxt); done = 0
            for mi, (_, ti, n, jj) in enumerate(ms):
                A = AF[buf] + 4 * jj; B = BF[buf] + 4 * (n - jj); c = ACC + 4 * ti
                trk.need(list(range(A, A + 4)) + list(range(B, B + 4)))
                a("v_mfma_f32_16x16x32_bf16 %s, %s, %s, %s" % (vr(c), vr(A), vr(B), vr(c)))
                want = (tot * (mi + 1) + 15) // 16
                while nxt and done < want:
                    k, t = nxt.pop(0); done += 1
                    if k == "x": a(t)
                    else:
                        room(); a(t[0]); trk.issue(t[1])
        upd = ["v_add_u32 v11, 128, v11"] + ["v_add_u32 v%d, 128, v%d" % (AA + q, AA + q) for q in range((nq + 1) // 2)] + ["s_add_u32 s33, s33, 1"]
        a.label("%s_cjl%d" % (name, hv))
        lb = len(a.lines)
        for it_ in range(8):
            st = copy.deepcopy(trk.out)
            step(0, 1, list([])); step(1, 0, list(upd))
            a("s_waitcnt lgkmcnt(6)"); trk.out = trk.out[-6:]
            if [sorted(x) for x in trk.out] == [sorted(x) for x in st]: break
            del a.lines[lb:]
        else:
            assert False, "no fixed point"
        a("s_cmp_lt_u32 s33, 4")
        a("s_cbranch_scc1 %s_cjl%d" % (name, hv))
        trk.drain()
        stamp(a, 4 + 2 * hv)
        for ti, n in enumerate(tiles):
            a("ds_read_b64 %s, v10 offset:%d" % (vr(112 + 2 * ti, 2), 3584 - 512 * n))
        a("s_waitcnt lgkmcnt(0)")
        for ti, n in enumerate(tiles):
            c = ACC + 4 * ti; U = 112 + 2 * ti; T = 120
            a("v_and_b32 v%d, 0xffff0000, v%d" % (T + 0, U + 1)); a("v_lshlrev_b32 v%d, 16, v%d" % (T + 1, U + 1))
            a("v_and_b32 v%d, 0xffff0000, v%d" % (T + 2, U)); a("v_lshlrev_b32 v%d, 16, v%d" % (T + 3, U))
            for r in range(4): a("v_mul_f32 v%d, v%d, v13" % (T + r, T + r))
            rnd_pair(a, T + 4, T, T + 1); rnd_pair(a, T + 4, T + 2, T + 3)
            rnd_pair(a, T + 4, c, c + 1); rnd_pair(a, T + 4, c + 2, c + 3)
            for r in range(4): a("v_add_f32 v%d, v%d, v%d" % (c + r, c + r, T + r))
            a("v_cvt_pk_bf16_f32 v%d, v%d, v%d" % (U, c, c + 1))
            a("v_cvt_pk_bf16_f32 v%d, v%d, v%d" % (U + 1, c + 2, c + 3))
            a("buffer_store_dwordx2 %s, v9, s[12:15], s37 offen offset:%d" % (vr(U, 2), 512 * n))
        stamp(a, 5 + 2 * hv)
        if hv == 0:
            a("s_cmp_eq_u32 s26, 0")
            a("s_cbranch_scc1 %s_cjdone" % name)
            a("v_subrev_u32 v11, 512, v11")
            for q in range(4): a("v_subrev_u32 v%d, 512, v%d" % (AA + q, AA + q))
            for r in range(ACC, ACC + 16): a("v_mov_b32 v%d, 0" % r)
            a("s_mov_b32 s33, 0")
    a.label("%s_cjdone" % name)

def gen_k1e(name="k1_kernel"):
    a = Asm()
    TS = 16384; NT = 3; TB0 = 4096; FB_ = TB0 + NT * TS; FSL = 18432; NF = 6; FS = 576; NK = 18
    LDSB = FB_ + NF * FSL; RST = 0; CSO = 1024; CJB = TB0 + 4 * 18432
    kernel_begin(a, name)
    a("s_load_dwordx2 s[80:81], s[0:1], 0")
    a("s_load_dwordx2 s[4:5], s[0:1], 56")
    a("s_cmp_ge_u32 s2, 256")
    a("s_cbranch_scc1 %s_end" % name)
    a("v_lshrrev_b32 v1, 6, v0")
    a("v_and_b32 v2, 63, v0")
    a("v_readfirstlane_b32 s3, v1")
    a("s_and_b32 s20, s2, 7")
    a("s_lshr_b32 s21, s2, 3")
    a("s_and_b32 s22, s20, 1")
    a("s_lshl_b32 s22, s22, 3")
    a("s_and_b32 s23, s21, 7")
    a("s_add_u32 s22, s22, s23")
    a("s_lshr_b32 s21, s21, 3")
    a("s_and_b32 s23, s20, 6")
    a("s_and_b32 s24, s21, 1")
    a("s_add_u32 s23, s23, s24")
    a("s_lshr_b32 s21, s21, 1")
    a("s_mov_b32 s99, 0")
    a("s_mov_b64 s[96:97], -1")
    a("s_cmp_lt_u32 s3, 4")
    a("s_cbranch_scc1 %s_consumer" % name)
    a("s_setprio 3")
    a("s_sub_u32 s3, s3, 4")
    a("v_lshrrev_b32 v3, 3, v2")
    a("v_and_b32 v4, 7, v2")
    VT = 16; VF = 20
    a("s_lshl_b32 s24, s3, 5")
    a("v_add_u32 v5, s24, v3")
    a("v_lshrrev_b32 v7, 4, v2")
    a("v_xor_b32 v7, v7, v4")
    a("v_mul_u32_u24 v6, 1152, v5")
    a("v_lshl_add_u32 v%d, v7, 4, v6" % VT)
    a("v_xor_b32 v%d, 64, v%d" % (VT + 1, VT))
    a("v_add_u32 v%d, %d, v%d" % (VT + 1, 9216 - 1024, VT + 1))
    a("v_add_u32 v%d, %d, v%d" % (VT + 2, 2 * (9216 - 1024), VT))
    a("v_add_u32 v%d, %d, v%d" % (VT + 3, 2 * (9216 - 1024), VT + 1))
    a("s_mul_i32 s26, s22, %d" % (128 * 1152))
    a("s_lshl_b32 s24, s3, 12")
    a("s_add_u32 s24, s24, %d" % TB0)
    a("s_mov_b32 s33, 0")
    a("s_waitcnt lgkmcnt(0)")
    srd(a, 28, 80, 2048 * 576 * 2)
    vm = VmTracker(a)
    def issueT(m):
        a("s_add_u32 s35, s33, s24")
        a("s_mov_b32 m0, s35")
        a("s_add_u32 s33, s33, %d" % TS)
        for n in range(4):
            if "nodma" not in DBG: a("buffer_load_dwordx4 v%d, s[28:31], s26 offen offset:%d lds" % (VT + n, 1024 * n))
        a("s_add_u32 s26, s26, 128")
        a("s_cmp_eq_u32 s33, %d" % (NT * TS))
        a("s_cselect_b32 s33, 0, s33")
        vm.issue("T%d" % m, 4)
    issueT(0)
    srd(a, 8, 4, 576 * 4608 * 2)
    for n in range(5):
        if n: a("v_add_u32 v6, %d, v2" % (64 * n))
        src = "v6" if n else "v2"
        a("v_mul_u32_u24 v7, 1821, %s" % src)
        a("v_lshrrev_b32 v7, 16, v7")
        a("v_mul_u32_u24 v8, 36, v7")
        a("v_sub_u32 v8, %s, v8" % src)
        a("v_bfe_u32 v9, v7, 2, 1")
        a("v_lshlrev_b32 v6, 1, v9")
        a("v_xor_b32 v8, v8, v6")
        a("v_and_b32 v7, 3, v7")
        a("v_lshl_add_u32 v7, v9, 3, v7")
        a("v_mul_u32_u24 v7, 9216, v7")
        a("v_lshl_add_u32 v%d, v8, 4, v7" % (VF + n))
        if 0 < n < 4: a("v_subrev_u32 v%d, %d, v%d" % (VF + n, 1024 * n, VF + n))
    a("s_and_b32 s36, s3, 1")
    a("s_lshl_b32 s36, s36, 4")
    a("s_lshr_b32 s37, s3, 1")
    a("s_lshl_b32 s37, s37, 2")
    a("s_add_u32 s36, s36, s37")
    a("s_mul_i32 s27, s36, 9216")
    a("s_mul_i32 s36, s23, 576")
    a("s_add_u32 s27, s27, s36")
    a("s_cmp_eq_u32 s21, 0")
    a("s_cselect_b32 s36, 4608, 0")
    a("s_add_u32 s27, s27, s36")
    a("s_mul_i32 s25, s3, 4608")
    a("s_add_u32 s25, s25, %d" % FB_)
    a("s_mov_b32 s34, 0")
    def issueF(k):
        a("s_add_u32 s35, s34, s25")
        a("s_mov_b32 m0, s35")
        a("s_add_u32 s36, s35, 4096")
        for n in range(4):
            if "nodma" not in DBG: a("buffer_load_dwordx4 v%d, s[8:11], s27 offen offset:%d lds" % (VF + n, 1024 * n))
        a("s_mov_b32 m0, s36")
        a("s_mov_b64 exec, 0xffffffff")
        if "nodma" not in DBG: a("buffer_load_dwordx4 v%d, s[8:11], s27 offen lds" % (VF + 4))
        a("s_mov_b64 exec, -1")
        a("s_add_u32 s27, s27, %d" % (32 * 9216))
        a("s_add_u32 s34, s34, %d" % FSL)
        a("s_cmp_eq_u32 s34, %d" % (NF * FSL))
        a("s_cselect_b32 s34, 0, s34")
        vm.issue("F%d" % k, 5)
    issueF(0); issueF(1)
    def other_setup():
        a("s_load_dwordx2 s[6:7], s[0:1], 104")
        a("s_load_dwordx2 s[18:19], s[0:1], 96")
        a("s_load_dwordx4 s[88:91], s[0:1], 32")
        a("s_waitcnt lgkmcnt(0)")
        srd(a, 12, 6, WS_BYTES)
        srd(a, 60, 18, 256)
        srd(a, 16, 88, 576 * 2048 * 2)
        srd(a, 84, 90, 576 * 2)
    other_setup()
    a("s_add_u32 s3, s3, 4"); stamp_setup(a, 1); stamp(a, 0); a("s_sub_u32 s3, s3, 4")
    SS = [28, 30, 32, 34]; ONE = 36
    for r in range(28, 36): a("v_mov_b32 v%d, 0" % r)
    for r in range(ONE, ONE + 4): a("v_mov_b32 v%d, 0x3f803f80" % r)
    CA = 40
    for r in range(CA, CA + 20): a("v_mov_b32 v%d, 0" % r)
    XB = 64; CF = 80
    a("v_lshlrev_b32 v10, 4, v2")
    a("v_add_u32 v10, s24, v10")
    a("v_lshrrev_b32 v11, 2, v2")
    a("v_mul_u32_u24 v11, %d, v11" % FS)
    a("v_and_b32 v12, 3, v2")
    a("v_lshl_add_u32 v11, v12, 3, v11")
    a("v_bfe_u32 v13, v2, 4, 1")
    a("v_lshlrev_b32 v13, 5, v13")
    a("s_lshr_b32 s36, s3, 1")
    a("s_mul_i32 s37, s36, 9")
    a("s_and_b32 s38, s3, 1")
    a("s_lshl_b32 s38, s38, 2")
    a("s_add_u32 s37, s37, s38")
    a("s_lshl_b32 s40, s37, 6")
    a("s_lshl_b32 s37, s37, 5")
    a("s_add_u32 s37, s37, %d" % FB_)
    a("v_add_u32 v11, s37, v11")
    a("v_add_u32 v5, v11, v13")
    a("v_sub_u32 v6, v11, v13")
    a("s_cmp_eq_u32 s36, 0")
    a("s_cselect_b64 vcc, -1, 0")
    a("v_cndmask_b32 v11, v6, v5, vcc")
    a("v_cndmask_b32 v12, v5, v6, vcc")
    def rowstats_rd(m):
        if "nors" in DBG: return
        a("v_add_u32 v5, %d, v10" % ((m % NT) * TS))
        for n in range(4):
            a("ds_read_b128 %s, v5 offset:%d" % (vr(XB + 4 * n), 1024 * n))
    def rowstats_do():
        if "nors" in DBG: return
        for d in range(4):
            for n in range(4):
                r = XB + 4 * n + d
                a("v_dot2_f32_bf16 v%d, v%d, v%d, v%d" % (SS[n], r, ONE, SS[n]))
                a("v_dot2_f32_bf16 v%d, v%d, v%d, v%d" % (SS[n] + 1, r, r, SS[n] + 1))
    def colsum_rd(k):
        if "nocs" in DBG: return
        a("v_add_u32 v6, %d, v11" % ((k % NF) * FSL))
        a("v_add_u32 v7, %d, v12" % ((k % NF) * FSL))
        for q in range(5):
            for half in range(2):
                a("ds_read_b64_tr_b16 %s, v%d offset:%d" % (vr(CF + 4 * q + 2 * half, 2), 6 + (q & 1), 16 * half * FS + 32 * q))
    def colsum_do():
        if "nocs" in DBG: return
        for q in range(5):
            a("v_mfma_f32_16x16x32_bf16 %s, %s, %s, %s" % (vr(CA + 4 * q), vr(CF + 4 * q), vr(ONE), vr(CA + 4 * q)))
    vm.wait(["T0", "F0"])
    a("s_barrier")
    stamp(a, 1)
    colsum_rd(0); rowstats_rd(0)
    issueT(1); issueF(2); issueF(3)
    a("s_waitcnt lgkmcnt(0)")
    colsum_do(); rowstats_do()
    vm.wait(["F1"])
    a("s_barrier")
    for k in range(NK):
        rs = (k % 2 == 1 and (k + 1) // 2 < 9)
        if k + 1 < NK: colsum_rd(k + 1)
        if rs: rowstats_rd((k + 1) // 2)
        if k == 0:
            issueF(4); issueT(2); issueF(5)
        if k >= 1 and k + 5 < NK: issueF(k + 5)
        if k % 2 == 1 and (k - 1) // 2 + 3 < 9: issueT((k - 1) // 2 + 3)
        a("s_waitcnt lgkmcnt(0)")
        if k + 1 < NK: colsum_do()
        if rs: rowstats_do()
        if k + 1 < NK:
            vm.wait(["F%d" % (k + 2), "T%d" % ((k + 2) // 2)])
            a("s_barrier")
    a("s_nop 3")
    for ctl in ("quad_perm:[1,0,3,2]", "quad_perm:[2,3,0,1]", "row_half_mirror"):
        for rg in range(4):
            for e in range(2):
                a("v_add_f32_dpp v%d, v%d, v%d %s row_mask:0xf bank_mask:0xf" % (SS[rg] + e, SS[rg] + e, SS[rg] + e, ctl))
        a("s_nop 1")
    ML = 64
    for rg in range(4):
        emit_ln_finish(a, SS[rg], SS[rg] + 1, 576, ML + 2 * rg, ML + 2 * rg + 1, 76)
        a("v_mov_b32 v%d, v%d" % (SS[rg] + 1, ML + 2 * rg + 1))
        a("v_sub_f32 v%d, 0, v%d" % (SS[rg], ML + 2 * rg))
    a("s_lshl_b32 s35, s3, 8")
    a("v_lshlrev_b32 v6, 3, v3")
    a("v_add_u32 v12, s35, v6")
    a("v_cmp_eq_u32 vcc, 0, v4")
    a("s_and_saveexec_b64 s[36:37], vcc")
    for rg in range(4):
        a("ds_write_b64 v12, %s offset:%d" % (vr(SS[rg], 2), RST + 64 * rg))
    a("s_mov_b64 exec, s[36:37]")
    a("s_lshl_b32 s36, s21, 8")
    a("s_or_b32 s36, s36, s23")
    a("s_cmp_lg_u32 s36, 256")
    a("s_cbranch_scc1 %s_nost1" % name)
    a("s_lshl_b32 s35, s22, 7")
    a("s_lshl_b32 s36, s3, 5")
    a("s_add_u32 s35, s35, s36")
    a("s_lshl_b32 s35, s35, 3")
    a("s_add_u32 s35, s35, 0x%x" % STATS1)
    a("v_mov_b32 v7, 0x7ffffff0")
    a("v_cndmask_b32 v6, v7, v6, vcc")
    for rg in range(4):
        a("buffer_store_dwordx2 %s, v6, s[12:15], s35 offen offset:%d" % (vr(ML + 2 * rg, 2), 64 * rg))
    a.label("%s_nost1" % name)
    a("v_lshrrev_b32 v12, 4, v2")
    a("v_lshlrev_b32 v12, 4, v12")
    a("v_add_u32 v12, s40, v12")
    a("v_and_b32 v13, 15, v2")
    a("v_cmp_eq_u32 vcc, 0, v13")
    a("s_and_saveexec_b64 s[36:37], vcc")
    for q in range(5):
        a("ds_write_b128 v12, %s offset:%d" % (vr(CA + 4 * q), CSO + 64 * q))
    a("s_mov_b64 exec, s[36:37]")
    a("s_waitcnt lgkmcnt(0)")
    a("s_barrier")
    a("s_setprio 0")
    ACC = 112
    a("s_lshr_b32 s24, s3, 1")
    a("s_and_b32 s25, s3, 1")
    a("v_and_b32 v3, 15, v2")
    a("s_lshl_b32 s23, s23, 1")
    a("s_add_u32 s23, s23, 1")
    a("s_mov_b32 s40, 576")
    a("s_mov_b32 s98, 1")
    a("s_mul_i32 s36, s3, 18432")
    a("s_add_u32 s36, s36, %d" % TB0)
    a("v_lshlrev_b32 v10, 4, v2")
    a("v_add_u32 v11, s36, v10")
    a("s_barrier")
    for n in range(18):
        a("ds_read_b128 %s, v11 offset:%d" % (vr(ACC + 4 * n), 1024 * n))
        if n in (7, 13): a("s_waitcnt lgkmcnt(4)")
    a("s_branch %s_epi" % name)

    def gran_addr():
        a("v_lshrrev_b32 v10, 4, v2")
        a("s_lshl_b32 s33, s25, 1")
        a("v_add_u32 v11, s33, v10")
        a("v_and_b32 v11, 3, v11")
        a("v_lshl_add_u32 v11, v11, 4, v3")
        a("v_lshlrev_b32 v94, 8, v11")
        a("s_lshl_b32 s59, s22, 7")
        a("s_lshl_b32 s36, s24, 6")
        a("s_add_u32 s59, s59, s36")
        a("s_lshl_b32 s59, s59, 8")
        a("s_add_u32 s59, s59, 0x%x" % STATS2)
        a("s_lshl_b32 s36, s23, 1")
        a("s_add_u32 s36, s36, s25")
        a("s_lshl_b32 s36, s36, 3")
        a("s_add_u32 s58, s36, s59")
    a.label("%s_consumer" % name)
    a("s_load_dwordx4 s[64:67], s[0:1], 8")
    a("s_load_dwordx2 s[76:77], s[0:1], 24")
    a("s_load_dwordx2 s[78:79], s[0:1], 64")
    other_setup()
    srd(a, 68, 66, 2048 * 576 * 2)
    a("s_mov_b32 s100, s64"); a("s_mov_b32 s101, s65")
    srd(a, 64, 100, 2048 * 576 * 2)
    srd(a, 72, 76, 576 * 8)
    srd(a, 92, 78, 2048 * 2048 * 2)
    stamp_setup(a, 1); stamp(a, 0)
    a("s_lshr_b32 s24, s3, 1")
    a("s_and_b32 s25, s3, 1")
    a("v_and_b32 v3, 15, v2")
    a("s_lshl_b32 s23, s23, 1")
    a("s_mov_b32 s98, 0")
    a("s_mov_b32 s41, s2")
    a.label("%s_kv" % name)
    emit_kv_loads(a)
    a("s_cmp_lg_u32 s41, s2")
    a("s_cbranch_scc1 %s_kv2" % name)
    a("s_cmp_lg_u32 s21, 0")
    a("s_cbranch_scc1 %s_noclr" % name)
    gran_addr()
    a("v_mov_b32 v12, 0"); a("v_mov_b32 v13, 0x80000000")
    a("buffer_store_dwordx2 v[12:13], v94, s[12:15], s58 offen sc1")
    a("buffer_store_dwordx2 v[12:13], v94, s[12:15], s58 offen offset:16 sc1")
    a.label("%s_noclr" % name)
    if "nowarm" not in DBG:
        a("s_mov_b32 s99, 1")
        for r_ in (26, 27, 33, 36, 37, 38, 39, 40, 43, 58, 59): a("s_mov_b32 s%d, 0" % r_)
        for r_ in (4, 12, 13, 94): a("v_mov_b32 v%d, 0" % r_)
        a("s_mov_b64 s[96:97], 0")
        a("s_mov_b64 exec, 0")
        a("s_cmp_eq_u32 s3, 0"); a("s_cbranch_scc1 %s_epi" % name)
        a("s_cmp_eq_u32 s3, 1"); a("s_cbranch_scc1 %s_seg1" % name)
        a("s_cmp_eq_u32 s3, 2"); a("s_cbranch_scc1 %s_seg2" % name)
        a("s_branch %s_seg3" % name)
        a.label("%s_warmret" % name)
        a("s_mov_b64 s[96:97], -1")
        a("s_mov_b64 exec, -1")
        a("s_mov_b32 s99, 0")
    a.label("%s_kv2" % name)
    emit_kv_compute(a)
    a("s_add_u32 s41, s41, 32")
    a("s_cmp_lt_u32 s41, 256")
    a("s_cbranch_scc1 %s_kvd" % name)
    a("s_cmp_lt_u32 s41, 288")
    a("s_cbranch_scc1 %s_kv" % name)
    a.label("%s_kvd" % name)
    TB = [16, 32]; FR = 48
    vTa, vTb, vP = 4, 5, [6, 7]; vH = [8, 9]
    bTa = [88, 89]; bTb = [90, 91]; bP = [92, 93]; bH = [100, 101]
    PF = 96
    a("v_lshrrev_b32 v10, 4, v2")
    a("v_lshrrev_b32 v11, 1, v3")
    a("v_xor_b32 v10, v10, v11")
    a("v_lshlrev_b32 v10, 4, v10")
    a("v_lshl_add_u32 v10, v3, 7, v10")
    a("s_lshl_b32 s26, s24, 13")
    a("s_add_u32 s26, s26, %d" % TB0)
    a("v_add_u32 v10, s26, v10")
    a("s_lshl_b32 s26, s25, 12")
    a("v_add_u32 v%d, s26, v10" % bTa[0])
    a("s_xor_b32 s26, s26, 4096")
    a("v_add_u32 v%d, s26, v10" % bTb[0])
    a("v_xor_b32 v%d, 64, v%d" % (bTa[1], bTa[0]))
    a("v_xor_b32 v%d, 64, v%d" % (bTb[1], bTb[0]))
    a("v_lshrrev_b32 v10, 2, v2")
    a("v_mul_u32_u24 v10, %d, v10" % FS)
    a("v_and_b32 v11, 3, v2")
    a("v_lshl_add_u32 v10, v11, 3, v10")
    a("v_add_u32 v10, %d, v10" % FB_)
    a("v_bfe_u32 v13, v2, 4, 1")
    a("v_lshlrev_b32 v13, 5, v13")
    a("v_add_u32 v%d, v10, v13" % bH[0])
    a("v_sub_u32 v%d, v10, v13" % bH[1])
    a("s_mul_i32 s26, s25, 160")
    a("s_cmp_eq_u32 s25, 0")
    a("s_cselect_b64 vcc, -1, 0")
    a("v_cndmask_b32 v11, v%d, v%d, vcc" % (bH[1], bH[0]))
    a("v_cndmask_b32 v12, v%d, v%d, vcc" % (bH[0], bH[1]))
    a("v_add_u32 v%d, s26, v11" % bP[0])
    a("v_add_u32 v%d, s26, v12" % bP[1])
    a("v_lshrrev_b32 v10, 4, v2")
    a("v_lshlrev_b32 v10, 12, v10")
    a("v_lshl_add_u32 v95, v3, 4, v10")
    a("s_lshl_b32 s41, s22, 7")
    a("s_lshl_b32 s36, s3, 5")
    a("s_add_u32 s41, s41, s36")
    a("s_lshl_b32 s41, s41, 12")
    a("s_add_u32 s36, s23, s21")
    a("s_lshl_b32 s36, s36, 8")
    a("s_add_u32 s41, s41, s36")
    for r in range(ACC, ACC + 144): a("v_mov_b32 v%d, 0" % r)
    def accr(z, ft, tt): return ACC + 72 * z + 4 * tidx(ft, tt)
    def Fr(z, ft): return FR + 20 * z + 4 * ft
    trk = LdsTracker(a)
    def treads(buf):
        L = []
        for tt in range(4):
            r = TB[buf] + 4 * tt
            L.append(("ds_read_b128 %s, v%d offset:%d" % (vr(r), vTa if tt < 2 else vTb, (tt & 1) * 2048), range(r, r + 4)))
        return L
    def freads(z, ft):
        r = Fr(z, ft); L = []
        for half in range(2):
            off = 16 * half * FS + 32 * (9 * z + ft)
            v = vP[(z + ft) & 1] if ft < 4 else vH[z]
            L.append(("ds_read_b64_tr_b16 %s, v%d offset:%d" % (vr(r + 2 * half, 2), v, off), range(r + 2 * half, r + 2 * half + 2)))
        return L
    def rd(t):
        a(t[0]); trk.issue(t[1])
    fpairs = ((vP[0], bP[0]), (vP[1], bP[1]), (vH[0], bH[0]), (vH[1], bH[1]))
    a("v_mov_b32 v%d, v%d" % (vTa, bTa[0])); a("v_mov_b32 v%d, v%d" % (vTb, bTb[0]))
    for d, s_ in fpairs: a("v_mov_b32 v%d, v%d" % (d, s_))
    a("s_mov_b32 s27, 0")
    a("s_mov_b32 s34, 0")
    a("s_mov_b32 s33, 0")
    stamp(a, 1)
    a("s_barrier")
    stamp(a, 2)
    for t in treads(0): rd(t)
    for z in range(2):
        for ft in range(5):
            for t in freads(z, ft): rd(t)
            if len(trk.out) >= 12: trk.drain()
    trk.drain()
    def iteration(par):
        a("s_barrier")
        upd = []
        if par == 1:
            upd += ["s_add_u32 s27, s27, %d" % TS, "s_cmp_eq_u32 s27, %d" % (NT * TS), "s_cselect_b32 s27, 0, s27"]
        upd += ["v_add_u32 v%d, s27, v%d" % (vTa, bTa[1 - par]), "v_add_u32 v%d, s27, v%d" % (vTb, bTb[1 - par])]
        upd += ["s_add_u32 s34, s34, %d" % FSL, "s_cmp_eq_u32 s34, %d" % (NF * FSL), "s_cselect_b32 s34, 0, s34"]
        upd += ["v_add_u32 v%d, s34, v%d" % (d, s_) for d, s_ in fpairs]
        pend = [("x", u) for u in upd] + [("r", t) for t in treads(1 - par)]
        if par == 0:
            pend.append(("x", "buffer_load_dwordx4 %s, v95, s[92:95], s41 offen" % vr(PF)))
            pend.append(("x", "s_add_u32 s41, s41, 16384"))
        else:
            pend.append(("x", "s_add_u32 s33, s33, 1"))
        nm = 0
        for z in range(2):
            for ft in range(5):
                for tt in range(4 if ft < 4 else 2):
                    c = accr(z, ft, tt); A = Fr(z, ft); B = TB[par] + 4 * tt
                    trk.need(list(range(A, A + 4)) + list(range(B, B + 4)))
                    if "nomfma" not in DBG: a("v_mfma_f32_16x16x32_bf16 %s, %s, %s, %s" % (vr(c), vr(A), vr(B), vr(c)))
                    nfill = 1
                    while pend and nfill:
                        k, t = pend.pop(0)
                        if k == "x":
                            a(t)
                            if t.startswith("s_") and nm < 8: continue
                        else: rd(t)
                        nfill -= 1
                    nm += 1
                pend += [("r", t) for t in freads(z, ft)]
        for k, t in pend:
            if k == "x": a(t)
            else: rd(t)
        a("s_waitcnt lgkmcnt(15)")
        if len(trk.out) > 15: trk.out = trk.out[-15:]
    a.label("%s_cloop" % name)
    trk.out = []
    lb = len(a.lines)
    iteration(0); iteration(1)
    state = copy.deepcopy(trk.out)
    del a.lines[lb:]
    trk.out = copy.deepcopy(state)
    iteration(0); iteration(1)
    assert [sorted(x) for x in trk.out] == [sorted(x) for x in state]
    a("s_cmp_lt_u32 s33, %d" % (NK // 2))
    a("s_cbranch_scc1 %s_cloop" % name)
    trk.drain()
    stamp(a, 3)
    a("s_waitcnt vmcnt(0)")
    a("s_barrier")
    a("s_cmp_lg_u32 s3, 0")
    a("s_cbranch_scc1 %s_nosig" % name)
    a("v_mov_b32 v10, 1")
    a("s_lshl_b32 s36, s22, 2")
    a("v_mov_b32 v11, s36")
    a("s_mov_b64 exec, 1")
    a("buffer_atomic_add v10, v11, s[60:63], 0 offen sc1")
    a("s_mov_b64 exec, -1")
    a.label("%s_nosig" % name)
    a("s_mul_i32 s36, s3, 18432")
    a("s_add_u32 s36, s36, %d" % TB0)
    a("v_lshlrev_b32 v10, 4, v2")
    a("v_add_u32 v11, s36, v10")
    for n, (ft, tt) in enumerate(TILES):
        a("ds_write_b128 v11, %s offset:%d" % (vr(accr(1, ft, tt)), 1024 * tidx(ft, tt)))
        if n in (7, 13): a("s_waitcnt lgkmcnt(4)")
    a("s_mov_b32 s40, 0")
    a("s_waitcnt lgkmcnt(0)")
    a("s_barrier")
    a.label("%s_epi" % name)
    MR = 100; CS = 52; ZP = 16; T = 72
    gelu_consts(a)
    a("s_lshl_b32 s36, s24, 9")
    a("s_lshl_b32 s37, s25, 8")
    a("s_add_u32 s38, s36, s37")
    a("s_xor_b32 s37, s37, 256")
    a("s_add_u32 s39, s36, s37")
    a("v_lshlrev_b32 v10, 3, v3")
    a("v_add_u32 v11, s38, v10")
    a("ds_read_b64 %s, v11 offset:%d" % (vr(MR, 2), RST))
    a("ds_read_b64 %s, v11 offset:%d" % (vr(MR + 2, 2), RST + 128))
    a("v_add_u32 v11, s39, v10")
    a("ds_read_b64 %s, v11 offset:%d" % (vr(MR + 4, 2), RST))
    a("ds_read_b64 %s, v11 offset:%d" % (vr(MR + 6, 2), RST + 128))
    a("v_lshrrev_b32 v10, 4, v2")
    a("v_lshlrev_b32 v10, 4, v10")
    a("v_add_u32 v10, s40, v10")
    a("s_mul_i32 s36, s25, 320")
    a("v_add_u32 v11, s36, v10")
    a("s_waitcnt lgkmcnt(6)")
    for ft in range(4):
        a("ds_read_b128 %s, v11 offset:%d" % (vr(CS + 4 * ft), CSO + 64 * ft))
    a("ds_read_b128 %s, v10 offset:%d" % (vr(CS + 16), CSO + 256))
    S = [108, 110, 8, 12]; Q = [109, 111, 9, 13]
    for tt in range(4):
        a("v_mov_b32 v%d, 0" % S[tt]); a("v_mov_b32 v%d, 0" % Q[tt])
    a("v_mov_b32 v88, 0x3f803f80")
    a("s_waitcnt lgkmcnt(0)")
    for ft in range(5):
        if ft == 3:
            seg_end(a, name)
            a.label("%s_seg1" % name)
        tts = range(4 if ft < 4 else 2)
        items = [(ACC + 4 * tidx(ft, tt), CS + 4 * ft, MR + 2 * tt, ZP + 2 * tidx(ft, tt)) for tt in tts]
        emit_fold_gelu(a, items, T)
        for d in range(2):
            for tt in tts:
                p = ZP + 2 * tidx(ft, tt) + d
                a("v_dot2_f32_bf16 v%d, v%d, v88, v%d" % (S[tt], p, S[tt]))
                a("v_dot2_f32_bf16 v%d, v%d, v%d, v%d" % (Q[tt], p, p, Q[tt]))
    a("s_cmp_eq_u32 s21, 0")
    a("s_cbranch_scc1 %s_z2" % name)
    a("s_lshl_b32 s36, s22, 4")
    a("s_add_u32 s36, s36, s23")
    a("s_lshl_b32 s36, s36, 2")
    a("s_add_u32 s36, s36, s3")
    a("s_mul_i32 s36, s36, 9216")
    a("s_add_u32 s36, s36, 0x%x" % Z1IMG)
    a("v_lshlrev_b32 v10, 4, v2")
    for q in range(9):
        if q in (4, 8): a("s_add_u32 s36, s36, 4096")
        a("buffer_store_dwordx4 %s, v10, s[12:15], s36 offen offset:%d" % (vr(ZP + 4 * q), (q & 3) * 1024))
    a("s_branch %s_conv" % name)
    a.label("%s_z2" % name)
    a("s_nop 1")
    emit_xg_reduce(a, S + Q, 72)
    gran_addr()
    for g in range(1, 4):
        a("v_cmp_eq_u32 vcc, %d, v10" % g)
        a("s_nop 1")
        a("v_cndmask_b32 v%d, v%d, v%d, vcc" % (S[0], S[0], S[g]))
        a("v_cndmask_b32 v%d, v%d, v%d, vcc" % (Q[0], Q[0], Q[g]))
    a("v_and_b32 v%d, 0x7fffffff, v%d" % (Q[0], Q[0]))
    a("buffer_store_dwordx2 v[%d:%d], v94, s[12:15], s58 offen sc1" % (S[0], Q[0]))
    a.label("%s_conv" % name)
    seg_end(a, name)
    stamp(a, 4)
    a("v_lshlrev_b32 v4, 2, v3")
    a("s_mov_b32 s40, 0")
    a.label("%s_pollp" % name)
    a("buffer_load_dword v5, v4, s[60:63], 0 offen sc1")
    a("s_add_u32 s40, s40, 1")
    a("s_waitcnt vmcnt(0)")
    a("v_cmp_gt_u32 vcc, 16, v5")
    a("s_cmp_gt_u32 s40, %d" % SPIN_MAX)
    a("s_cbranch_scc1 %s_pollpx" % name)
    a("s_cbranch_vccz %s_pollpx" % name)
    a("s_sleep 2")
    a("s_branch %s_pollp" % name)
    a.label("%s_pollpx" % name)
    a("s_lshl_b32 s43, s2, 2")
    a("s_add_u32 s43, s43, s3")
    a("s_mov_b32 s27, s3")
    a("s_cmp_eq_u32 s98, 0")
    a("s_cbranch_scc1 %s_cjgo" % name)
    a("s_cmp_eq_u32 s21, 0")
    a("s_cbranch_scc1 %s_cjdone" % name)
    a("s_cmp_lg_u32 s3, 0")
    a("s_cbranch_scc1 %s_cjdone" % name)
    a("s_add_u32 s43, s2, %d" % (1024 - 128))
    a("s_mov_b32 s27, 4")
    a.label("%s_cjgo" % name)
    a("s_mul_i32 s27, s27, %d" % CJ_SIZE)
    a("s_add_u32 s27, s27, %d" % CJB)
    a("s_and_b32 s26, s43, 1")
    a("s_lshr_b32 s43, s43, 1")
    a.label("%s_seg2" % name)
    emit_conv_job(a, name)
    seg_end(a, name)
    stamp(a, 5)
    a("s_cmp_lg_u32 s21, 0")
    a("s_cbranch_scc1 %s_fin" % name)
    a("v_lshrrev_b32 v10, 4, v2")
    a("v_lshlrev_b32 v11, 8, v3")
    a("v_lshl_add_u32 v11, v10, 6, v11")
    a("s_lshl_b32 s33, s25, 13")
    a("s_add_u32 s36, s59, s33")
    a("s_xor_b32 s33, s33, 8192")
    a("s_add_u32 s37, s59, s33")
    a("s_add_u32 s38, s36, 4096")
    a("s_add_u32 s39, s37, 4096")
    PB = 112
    a.label("%s_poll1" % name)
    for tt in range(4):
        for q in range(4):
            a("buffer_load_dwordx4 %s, v11, s[12:15], s%d offen offset:%d sc1" % (vr(PB + 16 * tt + 4 * q), (36, 38, 37, 39)[tt], 16 * q))
    a("s_waitcnt vmcnt(0)")
    a("v_mov_b32 v12, 0")
    for r in range(PB + 1, PB + 64, 4):
        a("v_or3_b32 v12, v12, v%d, v%d" % (r, r + 2))
    a("v_cmp_gt_i32 vcc, 0, v12")
    a("s_add_u32 s40, s40, 1")
    a("s_cmp_gt_u32 s40, %d" % SPIN_MAX)
    a("s_cbranch_scc1 %s_poll1x" % name)
    a("s_cbranch_vccz %s_poll1x" % name)
    a("s_sleep 8")
    a("s_branch %s_poll1" % name)
    a.label("%s_poll1x" % name)
    stamp(a, 6)
    a.label("%s_seg3" % name)
    for tt in range(4):
        b = PB + 16 * tt
        for st in (8, 4, 2):
            for q in range(0, st, 2):
                a("v_pk_add_f32 %s, %s, %s" % (vr(b + q, 2), vr(b + q, 2), vr(b + q + st, 2)))
    emit_xg_reduce(a, [PB + 16 * tt + e for tt in range(4) for e in range(2)], 72)
    for tt in range(4):
        b = PB + 16 * tt
        emit_ln_finish(a, b, b + 1, 2304, b + 2, MR + 2 * tt, b + 4)
        a("v_mul_f32 v%d, -v%d, v%d" % (MR + 2 * tt + 1, b + 2, MR + 2 * tt))
    a("v_lshrrev_b32 v11, 2, v2"); a("v_and_b32 v11, 1, v11"); a("v_lshlrev_b32 v11, 4, v11")
    a("v_lshrrev_b32 v12, 3, v2"); a("v_and_b32 v12, 1, v12"); a("v_lshl_add_u32 v11, v12, 2, v11")
    a("v_and_b32 v12, 3, v2"); a("v_add_u32 v11, v11, v12")
    a("v_mul_u32_u24 v11, 288, v11")
    a("v_lshrrev_b32 v12, 1, v10"); a("v_lshl_add_u32 v11, v12, 4, v11")
    a("v_and_b32 v12, 1, v10")
    a("v_lshl_add_u32 v13, v12, 5, v11")
    a("v_mul_u32_u24 v12, 2304, v12")
    a("v_add_u32 v9, v11, v12")
    a("s_lshl_b32 s33, s23, 5")
    a("s_lshl_b32 s36, s22, 1")
    a("s_add_u32 s33, s33, s36")
    a("s_add_u32 s33, s33, s24")
    a("s_mul_i32 s33, s33, 18432")
    if ZIMG: a("s_add_u32 s33, s33, 0x%x" % ZIMG)
    a("s_mul_i32 s36, s25, 9216")
    a("s_add_u32 s37, s33, s36")
    a("s_xor_b32 s36, s36, 9216")
    a("s_add_u32 s38, s33, s36")
    a("s_add_u32 s39, s37, 128")
    a("s_mul_i32 s36, s25, 160")
    a("s_add_u32 s37, s37, s36")
    a("s_add_u32 s38, s38, s36")
    def norm_pair(nA, ttA, nB, ttB, O):
        for q, (n, tt) in enumerate(((nA, ttA), (nB, ttB))):
            for d in range(2):
                z = ZP + 2 * n + d; t = T + 4 * q + 2 * d
                a("v_lshlrev_b32 v%d, 16, v%d" % (t, z))
                a("v_and_b32 v%d, 0xffff0000, v%d" % (t + 1, z))
        for q, (n, tt) in enumerate(((nA, ttA), (nB, ttB))):
            for d in range(2):
                t = T + 4 * q + 2 * d
                a("v_pk_fma_f32 %s, %s, %s, %s op_sel:[0,0,1] op_sel_hi:[1,0,1]" % (vr(t, 2), vr(t, 2), vr(MR + 2 * tt, 2), vr(MR + 2 * tt, 2)))
        for q in range(2):
            for d in range(2):
                t = T + 4 * q + 2 * d
                a("v_cvt_pk_bf16_f32 v%d, v%d, v%d" % (O + 2 * q + d, t, t + 1))
        a("s_nop 1")
        a("v_permlane16_swap_b32 v%d, v%d" % (O, O + 2))
        a("v_permlane16_swap_b32 v%d, v%d" % (O + 1, O + 3))
    cnt = 0
    for pr in range(2):
        for tt in range(4):
            O = 112 + 4 * cnt; cnt += 1
            norm_pair(tidx(2 * pr, tt), tt, tidx(2 * pr + 1, tt), tt, O)
            a("s_nop 0")
            a("buffer_store_dwordx4 %s, v13, s[12:15], s%d offen offset:%d" % (vr(O), 37 if tt < 2 else 38, (tt & 1) * 2304 + 64 * pr))
    O = 112 + 4 * cnt
    norm_pair(16, 0, 17, 1, O)
    a("s_nop 0")
    a("buffer_store_dwordx4 %s, v9, s[12:15], s39 offen" % vr(O))
    seg_end(a, name)
    a.label("%s_fin" % name)
    stamp(a, 7)
    a("s_waitcnt vmcnt(0)")
    stamp(a, 8)
    a.label("%s_end" % name)
    a("s_endpgm")
    return a.text(), kernel_desc(name, 256, 256), (name, 256, 512, LDSB)

def gen_k1f(name="k1_kernel"):
    a = Asm()
    TS = 16384; NT = 3; TB0 = 4096; FB_ = TB0 + NT * TS; FSL = 18432; NF = 6; FS = 576; NK = 18
    LDSB = FB_ + NF * FSL; RST = 0; CSO = 1024; CJB = TB0 + 4 * 18432
    kernel_begin(a, name)
    a("s_load_dwordx2 s[80:81], s[0:1], 0")
    a("s_load_dwordx2 s[4:5], s[0:1], 56")
    a("s_cmp_ge_u32 s2, 256")
    a("s_cbranch_scc1 %s_end" % name)
    a("v_lshrrev_b32 v1, 6, v0")
    a("v_and_b32 v2, 63, v0")
    a("v_readfirstlane_b32 s3, v1")
    a("s_and_b32 s20, s2, 7")
    a("s_lshr_b32 s21, s2, 3")
    a("s_and_b32 s22, s20, 1")
    a("s_lshl_b32 s22, s22, 3")
    a("s_and_b32 s23, s21, 7")
    a("s_add_u32 s22, s22, s23")
    a("s_lshr_b32 s21, s21, 3")
    a("s_and_b32 s23, s20, 6")
    a("s_and_b32 s24, s21, 1")
    a("s_add_u32 s23, s23, s24")
    a("s_lshr_b32 s21, s21, 1")
    a("s_mov_b32 s99, 0")
    a("s_mov_b64 s[96:97], -1")
    a("s_cmp_lt_u32 s3, 4")
    a("s_cbranch_scc1 %s_consumer" % name)
    a("s_setprio 3")
    a("s_sub_u32 s3, s3, 4")
    a("v_lshrrev_b32 v3, 3, v2")
    a("v_and_b32 v4, 7, v2")
    VT = 16; VF = 20
    a("s_lshl_b32 s24, s3, 5")
    a("v_add_u32 v5, s24, v3")
    a("v_lshrrev_b32 v7, 4, v2")
    a("v_xor_b32 v7, v7, v4")
    a("v_mul_u32_u24 v6, 1152, v5")
    a("v_lshl_add_u32 v%d, v7, 4, v6" % VT)
    a("v_xor_b32 v%d, 64, v%d" % (VT + 1, VT))
    a("v_add_u32 v%d, %d, v%d" % (VT + 1, 9216 - 1024, VT + 1))
    a("v_add_u32 v%d, %d, v%d" % (VT + 2, 2 * (9216 - 1024), VT))
    a("v_add_u32 v%d, %d, v%d" % (VT + 3, 2 * (9216 - 1024), VT + 1))
    a("s_mul_i32 s26, s22, %d" % (128 * 1152))
    a("s_lshl_b32 s24, s3, 12")
    a("s_add_u32 s24, s24, %d" % TB0)
    a("s_mov_b32 s33, 0")
    a("s_waitcnt lgkmcnt(0)")
    srd(a, 28, 80, 2048 * 576 * 2)
    vm = VmTracker(a)
    def issueT(m):
        a("s_add_u32 s35, s33, s24")
        a("s_mov_b32 m0, s35")
        a("s_add_u32 s33, s33, %d" % TS)
        for n in range(4):
            if "nodma" not in DBG: a("buffer_load_dwordx4 v%d, s[28:31], s26 offen offset:%d lds" % (VT + n, 1024 * n))
        a("s_add_u32 s26, s26, 128")
        a("s_cmp_eq_u32 s33, %d" % (NT * TS))
        a("s_cselect_b32 s33, 0, s33")
        vm.issue("T%d" % m, 4)
    issueT(0)
    srd(a, 8, 4, 576 * 4608 * 2)
    for n in range(5):
        if n: a("v_add_u32 v6, %d, v2" % (64 * n))
        src = "v6" if n else "v2"
        a("v_mul_u32_u24 v7, 1821, %s" % src)
        a("v_lshrrev_b32 v7, 16, v7")
        a("v_mul_u32_u24 v8, 36, v7")
        a("v_sub_u32 v8, %s, v8" % src)
        a("v_bfe_u32 v9, v7, 2, 1")
        a("v_lshlrev_b32 v6, 1, v9")
        a("v_xor_b32 v8, v8, v6")
        a("v_and_b32 v7, 3, v7")
        a("v_lshl_add_u32 v7, v9, 3, v7")
        a("v_mul_u32_u24 v7, 9216, v7")
        a("v_lshl_add_u32 v%d, v8, 4, v7" % (VF + n))
        if 0 < n < 4: a("v_subrev_u32 v%d, %d, v%d" % (VF + n, 1024 * n, VF + n))
    a("s_and_b32 s36, s3, 1")
    a("s_lshl_b32 s36, s36, 4")
    a("s_lshr_b32 s37, s3, 1")
    a("s_lshl_b32 s37, s37, 2")
    a("s_add_u32 s36, s36, s37")
    a("s_mul_i32 s27, s36, 9216")
    a("s_mul_i32 s36, s23, 576")
    a("s_add_u32 s27, s27, s36")
    a("s_cmp_eq_u32 s21, 0")
    a("s_cselect_b32 s36, 4608, 0")
    a("s_add_u32 s27, s27, s36")
    a("s_mul_i32 s25, s3, 4608")
    a("s_add_u32 s25, s25, %d" % FB_)
    a("s_mov_b32 s34, 0")
    def issueF(k):
        a("s_add_u32 s35, s34, s25")
        a("s_mov_b32 m0, s35")
        a("s_add_u32 s36, s35, 4096")
        for n in range(4):
            if "nodma" not in DBG: a("buffer_load_dwordx4 v%d, s[8:11], s27 offen offset:%d lds" % (VF + n, 1024 * n))
        a("s_mov_b32 m0, s36")
        a("s_mov_b64 exec, 0xffffffff")
        if "nodma" not in DBG: a("buffer_load_dwordx4 v%d, s[8:11], s27 offen lds" % (VF + 4))
        a("s_mov_b64 exec, -1")
        a("s_add_u32 s27, s27, %d" % (32 * 9216))
        a("s_add_u32 s34, s34, %d" % FSL)
        a("s_cmp_eq_u32 s34, %d" % (NF * FSL))
        a("s_cselect_b32 s34, 0, s34")
        vm.issue("F%d" % k, 5)
    issueF(0); issueF(1)
    def other_setup():
        a("s_load_dwordx2 s[6:7], s[0:1], 104")
        a("s_load_dwordx2 s[18:19], s[0:1], 96")
        a("s_waitcnt lgkmcnt(0)")
        srd(a, 12, 6, WS_BYTES)
        srd(a, 60, 18, 256)
    def prep_srds():
        srd(a, 68, 66, 2048 * 576 * 2)
        a("s_mov_b32 s88, s64"); a("s_mov_b32 s89, s65")
        srd(a, 64, 88, 2048 * 576 * 2)
        srd(a, 72, 76, 576 * 8)
        srd(a, 76, 100, 2304 * 576 * 2)
    other_setup()
    a("s_add_u32 s3, s3, 4"); stamp_setup(a, 1); stamp(a, 0); a("s_sub_u32 s3, s3, 4")
    a("s_load_dwordx4 s[64:67], s[0:1], 8")
    a("s_load_dwordx2 s[76:77], s[0:1], 24")
    a("s_load_dwordx2 s[100:101], s[0:1], 80")
    a("s_waitcnt lgkmcnt(0)")
    prep_srds()
    if "nowarm" not in DBG:
        a("s_mov_b32 s99, 1")
        a("s_mov_b32 s52, s24"); a("s_mov_b32 s53, s25")
        a("s_mov_b32 s82, s33"); a("s_mov_b32 s83, s34")
        for r_ in (36, 37, 38, 39, 40, 41, 42, 58, 59): a("s_mov_b32 s%d, 0" % r_)
        for r_ in (5, 8, 9, 10, 11, 12, 13, 94, 140, 141): a("v_mov_b32 v%d, 0" % r_)
        a("s_mov_b64 exec, 0")
        a("s_cmp_eq_u32 s3, 0"); a("s_cbranch_scc1 %s_epi" % name)
        a("s_cmp_eq_u32 s3, 1"); a("s_cbranch_scc1 %s_seg1" % name)
        a("s_cmp_eq_u32 s3, 2"); a("s_cbranch_scc1 %s_seg2" % name)
        a("s_branch %s_seg3" % name)
        a.label("%s_warmret" % name)
        a("s_mov_b64 exec, -1")
        a("s_mov_b32 s99, 0")
        a("s_mov_b32 s24, s52"); a("s_mov_b32 s25, s53")
        a("s_mov_b32 s33, s82"); a("s_mov_b32 s34, s83")
    SS = [28, 30, 32, 34]; ONE = 36
    for r in range(28, 36): a("v_mov_b32 v%d, 0" % r)
    for r in range(ONE, ONE + 4): a("v_mov_b32 v%d, 0x3f803f80" % r)
    CA = 40
    for r in range(CA, CA + 20): a("v_mov_b32 v%d, 0" % r)
    XB = 64; CF = 80
    a("v_lshlrev_b32 v10, 4, v2")
    a("v_add_u32 v10, s24, v10")
    a("v_lshrrev_b32 v11, 2, v2")
    a("v_mul_u32_u24 v11, %d, v11" % FS)
    a("v_and_b32 v12, 3, v2")
    a("v_lshl_add_u32 v11, v12, 3, v11")
    a("v_bfe_u32 v13, v2, 4, 1")
    a("v_lshlrev_b32 v13, 5, v13")
    a("s_lshr_b32 s36, s3, 1")
    a("s_mul_i32 s37, s36, 9")
    a("s_and_b32 s38, s3, 1")
    a("s_lshl_b32 s38, s38, 2")
    a("s_add_u32 s37, s37, s38")
    a("s_lshl_b32 s40, s37, 6")
    a("s_lshl_b32 s37, s37, 5")
    a("s_add_u32 s37, s37, %d" % FB_)
    a("v_add_u32 v11, s37, v11")
    a("v_add_u32 v5, v11, v13")
    a("v_sub_u32 v6, v11, v13")
    a("s_cmp_eq_u32 s36, 0")
    a("s_cselect_b64 vcc, -1, 0")
    a("v_cndmask_b32 v11, v6, v5, vcc")
    a("v_cndmask_b32 v12, v5, v6, vcc")
    def rowstats_rd(m):
        if "nors" in DBG: return
        a("v_add_u32 v5, %d, v10" % ((m % NT) * TS))
        for n in range(4):
            a("ds_read_b128 %s, v5 offset:%d" % (vr(XB + 4 * n), 1024 * n))
    def rowstats_do():
        if "nors" in DBG: return
        for d in range(4):
            for n in range(4):
                r = XB + 4 * n + d
                a("v_dot2_f32_bf16 v%d, v%d, v%d, v%d" % (SS[n], r, ONE, SS[n]))
                a("v_dot2_f32_bf16 v%d, v%d, v%d, v%d" % (SS[n] + 1, r, r, SS[n] + 1))
    def colsum_rd(k):
        if "nocs" in DBG: return
        a("v_add_u32 v6, %d, v11" % ((k % NF) * FSL))
        a("v_add_u32 v7, %d, v12" % ((k % NF) * FSL))
        for q in range(5):
            for half in range(2):
                a("ds_read_b64_tr_b16 %s, v%d offset:%d" % (vr(CF + 4 * q + 2 * half, 2), 6 + (q & 1), 16 * half * FS + 32 * q))
    def colsum_do():
        if "nocs" in DBG: return
        for q in range(5):
            a("v_mfma_f32_16x16x32_bf16 %s, %s, %s, %s" % (vr(CA + 4 * q), vr(CF + 4 * q), vr(ONE), vr(CA + 4 * q)))
    vm.wait(["T0", "F0"])
    a("s_barrier")
    stamp(a, 1)
    colsum_rd(0); rowstats_rd(0)
    issueT(1); issueF(2); issueF(3)
    a("s_waitcnt lgkmcnt(0)")
    colsum_do(); rowstats_do()
    vm.wait(["F1"])
    a("s_barrier")
    for k in range(NK):
        rs = (k % 2 == 1 and (k + 1) // 2 < 9)
        if k + 1 < NK: colsum_rd(k + 1)
        if rs: rowstats_rd((k + 1) // 2)
        if k == 0:
            issueF(4); issueT(2); issueF(5)
        if k >= 1 and k + 5 < NK: issueF(k + 5)
        if k % 2 == 1 and (k - 1) // 2 + 3 < 9: issueT((k - 1) // 2 + 3)
        a("s_waitcnt lgkmcnt(0)")
        if k + 1 < NK: colsum_do()
        if rs: rowstats_do()
        if k + 1 < NK:
            vm.wait(["F%d" % (k + 2), "T%d" % ((k + 2) // 2)])
            a("s_barrier")
    a("s_nop 3")
    for ctl in ("quad_perm:[1,0,3,2]", "quad_perm:[2,3,0,1]", "row_half_mirror"):
        for rg in range(4):
            for e in range(2):
                a("v_add_f32_dpp v%d, v%d, v%d %s row_mask:0xf bank_mask:0xf" % (SS[rg] + e, SS[rg] + e, SS[rg] + e, ctl))
        a("s_nop 1")
    ML = 64
    for rg in range(4):
        emit_ln_finish(a, SS[rg], SS[rg] + 1, 576, ML + 2 * rg, ML + 2 * rg + 1, 76)
        a("v_mov_b32 v%d, v%d" % (SS[rg] + 1, ML + 2 * rg + 1))
        a("v_sub_f32 v%d, 0, v%d" % (SS[rg], ML + 2 * rg))
    a("s_lshl_b32 s35, s3, 8")
    a("v_lshlrev_b32 v6, 3, v3")
    a("v_add_u32 v12, s35, v6")
    a("v_cmp_eq_u32 vcc, 0, v4")
    a("s_and_saveexec_b64 s[36:37], vcc")
    for rg in range(4):
        a("ds_write_b64 v12, %s offset:%d" % (vr(SS[rg], 2), RST + 64 * rg))
    a("s_mov_b64 exec, s[36:37]")
    a("s_lshl_b32 s36, s21, 8")
    a("s_or_b32 s36, s36, s23")
    a("s_cmp_lg_u32 s36, 256")
    a("s_cbranch_scc1 %s_nost1" % name)
    a("s_lshl_b32 s35, s22, 7")
    a("s_lshl_b32 s36, s3, 5")
    a("s_add_u32 s35, s35, s36")
    a("s_lshl_b32 s35, s35, 3")
    a("s_add_u32 s35, s35, 0x%x" % STATS1)
    a("v_mov_b32 v7, 0x7ffffff0")
    a("v_cndmask_b32 v6, v7, v6, vcc")
    for rg in range(4):
        a("buffer_store_dwordx2 %s, v6, s[12:15], s35 offen offset:%d" % (vr(ML + 2 * rg, 2), 64 * rg))
    a.label("%s_nost1" % name)
    a("v_lshrrev_b32 v12, 4, v2")
    a("v_lshlrev_b32 v12, 4, v12")
    a("v_add_u32 v12, s40, v12")
    a("v_and_b32 v13, 15, v2")
    a("v_cmp_eq_u32 vcc, 0, v13")
    a("s_and_saveexec_b64 s[36:37], vcc")
    for q in range(5):
        a("ds_write_b128 v12, %s offset:%d" % (vr(CA + 4 * q), CSO + 64 * q))
    a("s_mov_b64 exec, s[36:37]")
    a("s_waitcnt lgkmcnt(0)")
    a("s_barrier")
    a("s_setprio 0")
    ACC = 112
    a("s_lshr_b32 s24, s3, 1")
    a("s_and_b32 s25, s3, 1")
    a("v_and_b32 v3, 15, v2")
    a("s_lshl_b32 s23, s23, 1")
    a("s_add_u32 s23, s23, 1")
    a("s_mov_b32 s40, 576")
    a("s_mul_i32 s36, s3, 18432")
    a("s_add_u32 s36, s36, %d" % TB0)
    a("v_lshlrev_b32 v10, 4, v2")
    a("v_add_u32 v11, s36, v10")
    a("s_barrier")
    for n in range(18):
        a("ds_read_b128 %s, v11 offset:%d" % (vr(ACC + 4 * n), 1024 * n))
        if n in (7, 13): a("s_waitcnt lgkmcnt(4)")
    a("s_branch %s_epi" % name)

    def gran_addr():
        a("v_lshrrev_b32 v10, 4, v2")
        a("s_lshl_b32 s33, s25, 1")
        a("v_add_u32 v11, s33, v10")
        a("v_and_b32 v11, 3, v11")
        a("v_lshl_add_u32 v11, v11, 4, v3")
        a("v_lshlrev_b32 v94, 8, v11")
        a("s_lshl_b32 s59, s22, 7")
        a("s_lshl_b32 s36, s24, 6")
        a("s_add_u32 s59, s59, s36")
        a("s_lshl_b32 s59, s59, 8")
        a("s_add_u32 s59, s59, 0x%x" % STATS2)
        a("s_lshl_b32 s36, s23, 1")
        a("s_add_u32 s36, s36, s25")
        a("s_lshl_b32 s36, s36, 3")
        a("s_add_u32 s58, s36, s59")
    a.label("%s_consumer" % name)
    a("s_load_dwordx4 s[64:67], s[0:1], 8")
    a("s_load_dwordx2 s[76:77], s[0:1], 24")
    a("s_load_dwordx2 s[100:101], s[0:1], 80")
    a("s_load_dwordx2 s[90:91], s[0:1], 64")
    a("s_lshr_b32 s24, s3, 1")
    a("s_and_b32 s25, s3, 1")
    a("v_and_b32 v3, 15, v2")
    other_setup()
    srd(a, 28, 80, 2048 * 576 * 2)
    srd(a, 8, 4, 576 * 4608 * 2)
    if "nopf" not in DBG:
        a("s_and_b32 s36, s22, 7")
        a("s_mul_i32 s36, s36, 72")
        a("s_mul_i32 s37, s3, 18")
        a("s_add_u32 s36, s36, s37")
        a("s_mul_i32 s36, s36, 9216")
        a("s_mul_i32 s37, s23, 576")
        a("s_add_u32 s36, s36, s37")
        a("s_cmp_eq_u32 s21, 0")
        a("s_cselect_b32 s37, 4608, 0")
        a("s_add_u32 s36, s36, s37")
        a("s_and_b32 s36, s36, 0xffffff80")
        for n in range(2):
            a("v_add_u32 v10, %d, v2" % (64 * n))
            a("v_mul_u32_u24 v11, 13108, v10")
            a("v_lshrrev_b32 v11, 16, v11")
            a("v_mul_u32_u24 v12, 5, v11")
            a("v_sub_u32 v12, v10, v12")
            a("v_mul_u32_u24 v11, 9216, v11")
            a("v_lshl_add_u32 v11, v12, 7, v11")
            if n:
                a("v_cmp_gt_u32 vcc, 90, v10")
                a("v_mov_b32 v12, 0x7ffffff0")
                a("s_nop 0")
                a("v_cndmask_b32 v11, v12, v11, vcc")
            a("buffer_load_dword v96, v11, s[8:11], s36 offen")
        a("s_lshr_b32 s36, s2, 6")
        a("s_lshl_b32 s36, s36, 5")
        a("s_lshl_b32 s37, s22, 7")
        a("s_add_u32 s36, s36, s37")
        a("s_mul_i32 s36, s36, 1152")
        a("s_mul_i32 s37, s3, 9216")
        a("s_add_u32 s36, s36, s37")
        a("v_lshlrev_b32 v11, 7, v2")
        a("buffer_load_dword v96, v11, s[28:31], s36 offen")
        a("v_and_b32 v11, 7, v2")
        a("v_lshlrev_b32 v11, 7, v11")
        a("s_add_u32 s36, s36, 8192")
        a("buffer_load_dword v96, v11, s[28:31], s36 offen")
    prep_srds()
    srd(a, 92, 90, 2048 * 2048 * 2)
    stamp_setup(a, 1); stamp(a, 0)
    a("s_lshl_b32 s23, s23, 1")
    a("s_cmp_lg_u32 s21, 0")
    a("s_cbranch_scc1 %s_noclr" % name)
    gran_addr()
    a("v_mov_b32 v12, 0"); a("v_mov_b32 v13, 0x80000000")
    a("buffer_store_dwordx2 v[12:13], v94, s[12:15], s58 offen sc1")
    a("buffer_store_dwordx2 v[12:13], v94, s[12:15], s58 offen offset:16 sc1")
    a.label("%s_noclr" % name)
    TB = [16, 32]; FR = 48
    vTa, vTb, vP = 4, 5, [6, 7]; vH = [8, 9]
    bTa = [88, 89]; bTb = [90, 91]; bP = [92, 93]; bH = [100, 101]
    PF = 96
    a("v_lshrrev_b32 v10, 4, v2")
    a("v_lshrrev_b32 v11, 1, v3")
    a("v_xor_b32 v10, v10, v11")
    a("v_lshlrev_b32 v10, 4, v10")
    a("v_lshl_add_u32 v10, v3, 7, v10")
    a("s_lshl_b32 s26, s24, 13")
    a("s_add_u32 s26, s26, %d" % TB0)
    a("v_add_u32 v10, s26, v10")
    a("s_lshl_b32 s26, s25, 12")
    a("v_add_u32 v%d, s26, v10" % bTa[0])
    a("s_xor_b32 s26, s26, 4096")
    a("v_add_u32 v%d, s26, v10" % bTb[0])
    a("v_xor_b32 v%d, 64, v%d" % (bTa[1], bTa[0]))
    a("v_xor_b32 v%d, 64, v%d" % (bTb[1], bTb[0]))
    a("v_lshrrev_b32 v10, 2, v2")
    a("v_mul_u32_u24 v10, %d, v10" % FS)
    a("v_and_b32 v11, 3, v2")
    a("v_lshl_add_u32 v10, v11, 3, v10")
    a("v_add_u32 v10, %d, v10" % FB_)
    a("v_bfe_u32 v13, v2, 4, 1")
    a("v_lshlrev_b32 v13, 5, v13")
    a("v_add_u32 v%d, v10, v13" % bH[0])
    a("v_sub_u32 v%d, v10, v13" % bH[1])
    a("s_mul_i32 s26, s25, 160")
    a("s_cmp_eq_u32 s25, 0")
    a("s_cselect_b64 vcc, -1, 0")
    a("v_cndmask_b32 v11, v%d, v%d, vcc" % (bH[1], bH[0]))
    a("v_cndmask_b32 v12, v%d, v%d, vcc" % (bH[0], bH[1]))
    a("v_add_u32 v%d, s26, v11" % bP[0])
    a("v_add_u32 v%d, s26, v12" % bP[1])
    a("v_lshrrev_b32 v10, 4, v2")
    a("v_lshlrev_b32 v10, 12, v10")
    a("v_lshl_add_u32 v95, v3, 4, v10")
    a("s_lshl_b32 s41, s22, 7")
    a("s_lshl_b32 s36, s3, 5")
    a("s_add_u32 s41, s41, s36")
    a("s_lshl_b32 s41, s41, 12")
    a("s_add_u32 s36, s23, s21")
    a("s_lshl_b32 s36, s36, 8")
    a("s_add_u32 s41, s41, s36")
    for r in range(ACC, ACC + 144): a("v_mov_b32 v%d, 0" % r)
    def accr(z, ft, tt): return ACC + 72 * z + 4 * tidx(ft, tt)
    def Fr(z, ft): return FR + 20 * z + 4 * ft
    trk = LdsTracker(a)
    def treads(buf):
        L = []
        for tt in range(4):
            r = TB[buf] + 4 * tt
            L.append(("ds_read_b128 %s, v%d offset:%d" % (vr(r), vTa if tt < 2 else vTb, (tt & 1) * 2048), range(r, r + 4)))
        return L
    def freads(z, ft):
        r = Fr(z, ft); L = []
        for half in range(2):
            off = 16 * half * FS + 32 * (9 * z + ft)
            v = vP[(z + ft) & 1] if ft < 4 else vH[z]
            L.append(("ds_read_b64_tr_b16 %s, v%d offset:%d" % (vr(r + 2 * half, 2), v, off), range(r + 2 * half, r + 2 * half + 2)))
        return L
    def rd(t):
        a(t[0]); trk.issue(t[1])
    fpairs = ((vP[0], bP[0]), (vP[1], bP[1]), (vH[0], bH[0]), (vH[1], bH[1]))
    a("v_mov_b32 v%d, v%d" % (vTa, bTa[0])); a("v_mov_b32 v%d, v%d" % (vTb, bTb[0]))
    for d, s_ in fpairs: a("v_mov_b32 v%d, v%d" % (d, s_))
    a("s_mov_b32 s27, 0")
    a("s_mov_b32 s34, 0")
    a("s_mov_b32 s33, 0")
    stamp(a, 1)
    a("s_barrier")
    stamp(a, 2)
    for t in treads(0): rd(t)
    for z in range(2):
        for ft in range(5):
            for t in freads(z, ft): rd(t)
            if len(trk.out) >= 12: trk.drain()
    trk.drain()
    def iteration(par):
        a("s_barrier")
        upd = []
        if par == 1:
            upd += ["s_add_u32 s27, s27, %d" % TS, "s_cmp_eq_u32 s27, %d" % (NT * TS), "s_cselect_b32 s27, 0, s27"]
        upd += ["v_add_u32 v%d, s27, v%d" % (vTa, bTa[1 - par]), "v_add_u32 v%d, s27, v%d" % (vTb, bTb[1 - par])]
        upd += ["s_add_u32 s34, s34, %d" % FSL, "s_cmp_eq_u32 s34, %d" % (NF * FSL), "s_cselect_b32 s34, 0, s34"]
        upd += ["v_add_u32 v%d, s34, v%d" % (d, s_) for d, s_ in fpairs]
        pend = [("x", u) for u in upd] + [("r", t) for t in treads(1 - par)]
        if par == 0:
            pend.append(("x", "buffer_load_dwordx4 %s, v95, s[92:95], s41 offen" % vr(PF)))
            pend.append(("x", "s_add_u32 s41, s41, 16384"))
        else:
            pend.append(("x", "s_add_u32 s33, s33, 1"))
        nm = 0
        for z in range(2):
            for ft in range(5):
                for tt in range(4 if ft < 4 else 2):
                    c = accr(z, ft, tt); A = Fr(z, ft); B = TB[par] + 4 * tt
                    trk.need(list(range(A, A + 4)) + list(range(B, B + 4)))
                    if "nomfma" not in DBG: a("v_mfma_f32_16x16x32_bf16 %s, %s, %s, %s" % (vr(c), vr(A), vr(B), vr(c)))
                    nfill = 1
                    while pend and nfill:
                        k, t = pend.pop(0)
                        if k == "x":
                            a(t)
                            if t.startswith("s_") and nm < 8: continue
                        else: rd(t)
                        nfill -= 1
                    nm += 1
                pend += [("r", t) for t in freads(z, ft)]
        for k, t in pend:
            if k == "x": a(t)
            else: rd(t)
        a("s_waitcnt lgkmcnt(15)")
        if len(trk.out) > 15: trk.out = trk.out[-15:]
    a.label("%s_cloop" % name)
    trk.out = []
    lb = len(a.lines)
    iteration(0); iteration(1)
    state = copy.deepcopy(trk.out)
    del a.lines[lb:]
    trk.out = copy.deepcopy(state)
    iteration(0); iteration(1)
    assert [sorted(x) for x in trk.out] == [sorted(x) for x in state]
    a("s_cmp_lt_u32 s33, %d" % (NK // 2))
    a("s_cbranch_scc1 %s_cloop" % name)
    trk.drain()
    stamp(a, 3)
    a("s_waitcnt vmcnt(0)")
    a("s_barrier")
    a("s_or_b32 s36, s3, s21")
    a("s_cmp_lg_u32 s36, 0")
    a("s_cbranch_scc1 %s_nosig" % name)
    a("v_mov_b32 v10, 1")
    a("s_lshl_b32 s36, s22, 2")
    a("v_mov_b32 v11, s36")
    a("s_mov_b64 exec, 1")
    a("buffer_atomic_add v10, v11, s[60:63], 0 offen sc1")
    a("s_mov_b64 exec, -1")
    a.label("%s_nosig" % name)
    a("s_mul_i32 s36, s3, 18432")
    a("s_add_u32 s36, s36, %d" % TB0)
    a("v_lshlrev_b32 v10, 4, v2")
    a("v_add_u32 v11, s36, v10")
    for n, (ft, tt) in enumerate(TILES):
        a("ds_write_b128 v11, %s offset:%d" % (vr(accr(1, ft, tt)), 1024 * tidx(ft, tt)))
        if n in (7, 13): a("s_waitcnt lgkmcnt(4)")
    a("s_mov_b32 s40, 0")
    a("s_waitcnt lgkmcnt(0)")
    a("s_barrier")
    a.label("%s_epi" % name)
    MR = 100; CS = 52; ZP = 16; T = 72
    gelu_consts(a)
    a("s_lshl_b32 s36, s24, 9")
    a("s_lshl_b32 s37, s25, 8")
    a("s_add_u32 s38, s36, s37")
    a("s_xor_b32 s37, s37, 256")
    a("s_add_u32 s39, s36, s37")
    a("v_lshlrev_b32 v10, 3, v3")
    a("v_add_u32 v11, s38, v10")
    a("ds_read_b64 %s, v11 offset:%d" % (vr(MR, 2), RST))
    a("ds_read_b64 %s, v11 offset:%d" % (vr(MR + 2, 2), RST + 128))
    a("v_add_u32 v11, s39, v10")
    a("ds_read_b64 %s, v11 offset:%d" % (vr(MR + 4, 2), RST))
    a("ds_read_b64 %s, v11 offset:%d" % (vr(MR + 6, 2), RST + 128))
    a("v_lshrrev_b32 v10, 4, v2")
    a("v_lshlrev_b32 v10, 4, v10")
    a("v_add_u32 v10, s40, v10")
    a("s_mul_i32 s36, s25, 320")
    a("v_add_u32 v11, s36, v10")
    a("s_waitcnt lgkmcnt(6)")
    for ft in range(4):
        a("ds_read_b128 %s, v11 offset:%d" % (vr(CS + 4 * ft), CSO + 64 * ft))
    a("ds_read_b128 %s, v10 offset:%d" % (vr(CS + 16), CSO + 256))
    S = [108, 110, 8, 12]; Q = [109, 111, 9, 13]
    for tt in range(4):
        a("v_mov_b32 v%d, 0" % S[tt]); a("v_mov_b32 v%d, 0" % Q[tt])
    a("v_mov_b32 v88, 0x3f803f80")
    a("s_waitcnt lgkmcnt(0)")
    for ft in range(5):
        if ft == 3:
            seg_end(a, name)
            a.label("%s_seg1" % name)
        tts = range(4 if ft < 4 else 2)
        items = [(ACC + 4 * tidx(ft, tt), CS + 4 * ft, MR + 2 * tt, ZP + 2 * tidx(ft, tt)) for tt in tts]
        emit_fold_gelu(a, items, T)
        for d in range(2):
            for tt in tts:
                p = ZP + 2 * tidx(ft, tt) + d
                a("v_dot2_f32_bf16 v%d, v%d, v88, v%d" % (S[tt], p, S[tt]))
                a("v_dot2_f32_bf16 v%d, v%d, v%d, v%d" % (Q[tt], p, p, Q[tt]))
    a("s_cmp_eq_u32 s21, 0")
    a("s_cbranch_scc1 %s_z2" % name)
    a("s_lshl_b32 s36, s22, 4")
    a("s_add_u32 s36, s36, s23")
    a("s_lshl_b32 s36, s36, 2")
    a("s_add_u32 s36, s36, s3")
    a("s_mul_i32 s36, s36, 9216")
    a("s_add_u32 s36, s36, 0x%x" % Z1IMG)
    a("v_lshlrev_b32 v10, 4, v2")
    for q in range(9):
        if q in (4, 8): a("s_add_u32 s36, s36, 4096")
        a("buffer_store_dwordx4 %s, v10, s[12:15], s36 offen offset:%d" % (vr(ZP + 4 * q), (q & 3) * 1024))
    a("s_branch %s_conv" % name)
    a.label("%s_z2" % name)
    a("s_nop 1")
    emit_xg_reduce(a, S + Q, 72)
    gran_addr()
    for g in range(1, 4):
        a("v_cmp_eq_u32 vcc, %d, v10" % g)
        a("s_nop 1")
        a("v_cndmask_b32 v%d, v%d, v%d, vcc" % (S[0], S[0], S[g]))
        a("v_cndmask_b32 v%d, v%d, v%d, vcc" % (Q[0], Q[0], Q[g]))
    a("v_and_b32 v%d, 0x7fffffff, v%d" % (Q[0], Q[0]))
    a("buffer_store_dwordx2 v[%d:%d], v94, s[12:15], s58 offen sc1" % (S[0], Q[0]))
    a.label("%s_conv" % name)
    seg_end(a, name)
    a.label("%s_seg2" % name)
    stamp(a, 4)
    for r_ in range(36):
        a("v_mov_b32 v%d, v%d" % (200 + r_, ZP + r_))
    a("s_lshl_b32 s42, s22, 4")
    a("s_add_u32 s42, s42, s23")
    a("s_lshl_b32 s36, s21, 8")
    a("s_add_u32 s42, s42, s36")
    a("v_and_b32 v0, 255, v0")
    G2.emit_prep2(a, name)
    stamp(a, 5)
    a("s_cmp_lg_u32 s21, 0")
    a("s_cbranch_scc1 %s_fin" % name)
    a("v_and_b32 v3, 15, v2")
    ZP = 200
    a("s_lshl_b32 s33, s22, 2")
    a("v_mov_b32 v9, s33")
    a("s_mov_b32 s40, 0")
    a("v_lshlrev_b32 v11, 4, v3")
    a.label("%s_poll2" % name)
    a("buffer_load_dword v12, v9, s[60:63], 0 offen sc1")
    a("s_waitcnt vmcnt(0)")
    a("buffer_load_dwordx4 v[112:115], v11, s[12:15], s59 offen sc1")
    a("s_add_u32 s40, s40, 1")
    a("v_subrev_u32 v12, 8, v12")
    a("s_waitcnt vmcnt(0)")
    a("v_or3_b32 v12, v12, v113, v115")
    a("v_cmp_gt_i32 vcc, 0, v12")
    a("s_cmp_gt_u32 s40, %d" % SPIN_MAX)
    a("s_cbranch_scc1 %s_poll2x" % name)
    a("s_cbranch_vccz %s_poll2x" % name)
    a("s_sleep 10")
    a("s_branch %s_poll2" % name)
    a.label("%s_poll2x" % name)
    a("v_lshrrev_b32 v10, 4, v2")
    a("v_lshlrev_b32 v11, 8, v3")
    a("v_lshl_add_u32 v11, v10, 6, v11")
    a("s_lshl_b32 s33, s25, 13")
    a("s_add_u32 s36, s59, s33")
    a("s_xor_b32 s33, s33, 8192")
    a("s_add_u32 s37, s59, s33")
    a("s_add_u32 s38, s36, 4096")
    a("s_add_u32 s39, s37, 4096")
    PB = 112
    a.label("%s_poll1" % name)
    if "inv" in DBG: a("buffer_inv sc1")
    POL = "sc0 sc1" if "sc01" in DBG else "sc1"
    for tt in range(4):
        for q in range(4):
            a("buffer_load_dwordx4 %s, v11, s[12:15], s%d offen offset:%d %s" % (vr(PB + 16 * tt + 4 * q), (36, 38, 37, 39)[tt], 16 * q, POL))
    a("s_waitcnt vmcnt(0)")
    a("v_mov_b32 v12, 0")
    for r in range(PB + 1, PB + 64, 4):
        a("v_or3_b32 v12, v12, v%d, v%d" % (r, r + 2))
    a("v_cmp_gt_i32 vcc, 0, v12")
    a("s_add_u32 s40, s40, 1")
    a("s_cmp_gt_u32 s40, %d" % SPIN_MAX)
    a("s_cbranch_scc1 %s_poll1x" % name)
    a("s_cbranch_vccz %s_poll1x" % name)
    a("s_sleep 20")
    a("s_branch %s_poll1" % name)
    a.label("%s_poll1x" % name)
    stamp(a, 6)
    a.label("%s_seg3" % name)
    for tt in range(4):
        b = PB + 16 * tt
        for st in (8, 4, 2):
            for q in range(0, st, 2):
                a("v_pk_add_f32 %s, %s, %s" % (vr(b + q, 2), vr(b + q, 2), vr(b + q + st, 2)))
    emit_xg_reduce(a, [PB + 16 * tt + e for tt in range(4) for e in range(2)], 72)
    for tt in range(4):
        b = PB + 16 * tt
        emit_ln_finish(a, b, b + 1, 2304, b + 2, MR + 2 * tt, b + 4)
        a("v_mul_f32 v%d, -v%d, v%d" % (MR + 2 * tt + 1, b + 2, MR + 2 * tt))
    a("v_lshrrev_b32 v11, 2, v2"); a("v_and_b32 v11, 1, v11"); a("v_lshlrev_b32 v11, 4, v11")
    a("v_lshrrev_b32 v12, 3, v2"); a("v_and_b32 v12, 1, v12"); a("v_lshl_add_u32 v11, v12, 2, v11")
    a("v_and_b32 v12, 3, v2"); a("v_add_u32 v11, v11, v12")
    a("v_mul_u32_u24 v11, 288, v11")
    a("v_lshrrev_b32 v12, 1, v10"); a("v_lshl_add_u32 v11, v12, 4, v11")
    a("v_and_b32 v12, 1, v10")
    a("v_lshl_add_u32 v13, v12, 5, v11")
    a("v_mul_u32_u24 v12, 2304, v12")
    a("v_add_u32 v9, v11, v12")
    a("s_lshl_b32 s33, s23, 5")
    a("s_lshl_b32 s36, s22, 1")
    a("s_add_u32 s33, s33, s36")
    a("s_add_u32 s33, s33, s24")
    a("s_mul_i32 s33, s33, 18432")
    if ZIMG: a("s_add_u32 s33, s33, 0x%x" % ZIMG)
    a("s_mul_i32 s36, s25, 9216")
    a("s_add_u32 s37, s33, s36")
    a("s_xor_b32 s36, s36, 9216")
    a("s_add_u32 s38, s33, s36")
    a("s_add_u32 s39, s37, 128")
    a("s_mul_i32 s36, s25, 160")
    a("s_add_u32 s37, s37, s36")
    a("s_add_u32 s38, s38, s36")
    def norm_pair(nA, ttA, nB, ttB, O):
        for q, (n, tt) in enumerate(((nA, ttA), (nB, ttB))):
            for d in range(2):
                z = ZP + 2 * n + d; t = T + 4 * q + 2 * d
                a("v_lshlrev_b32 v%d, 16, v%d" % (t, z))
                a("v_and_b32 v%d, 0xffff0000, v%d" % (t + 1, z))
        for q, (n, tt) in enumerate(((nA, ttA), (nB, ttB))):
            for d in range(2):
                t = T + 4 * q + 2 * d
                a("v_pk_fma_f32 %s, %s, %s, %s op_sel:[0,0,1] op_sel_hi:[1,0,1]" % (vr(t, 2), vr(t, 2), vr(MR + 2 * tt, 2), vr(MR + 2 * tt, 2)))
        for q in range(2):
            for d in range(2):
                t = T + 4 * q + 2 * d
                a("v_cvt_pk_bf16_f32 v%d, v%d, v%d" % (O + 2 * q + d, t, t + 1))
        a("s_nop 1")
        a("v_permlane16_swap_b32 v%d, v%d" % (O, O + 2))
        a("v_permlane16_swap_b32 v%d, v%d" % (O + 1, O + 3))
    cnt = 0
    for pr in range(2):
        for tt in range(4):
            O = 112 + 4 * cnt; cnt += 1
            norm_pair(tidx(2 * pr, tt), tt, tidx(2 * pr + 1, tt), tt, O)
            a("s_nop 0")
            a("buffer_store_dwordx4 %s, v13, s[12:15], s%d offen offset:%d" % (vr(O), 37 if tt < 2 else 38, (tt & 1) * 2304 + 64 * pr))
    O = 112 + 4 * cnt
    norm_pair(16, 0, 17, 1, O)
    a("s_nop 0")
    a("buffer_store_dwordx4 %s, v9, s[12:15], s39 offen" % vr(O))
    seg_end(a, name)
    a.label("%s_fin" % name)
    stamp(a, 7)
    a("s_waitcnt vmcnt(0)")
    stamp(a, 8)
    a.label("%s_end" % name)
    a("s_endpgm")
    return a.text(), kernel_desc(name, 256, 256), (name, 256, 512, LDSB)

def gen_k1g(name="k1_kernel"):
    a = Asm()
    DBG.add('nowarm')
    TS = 16384; NT = 3; TB0 = 4096; FB_ = TB0 + NT * TS; FSL = 18432; NF = 6; FS = 576; NK = 18
    LDSB = FB_ + NF * FSL; RST = 0; CSO = 1024; CJB = TB0 + 4 * 18432
    kernel_begin(a, name)
    a("s_load_dwordx2 s[80:81], s[0:1], 0")
    a("s_load_dwordx2 s[4:5], s[0:1], 56")
    a("s_cmp_ge_u32 s2, 256")
    a("s_cbranch_scc1 %s_end" % name)
    a("v_lshrrev_b32 v1, 6, v0")
    a("v_and_b32 v2, 63, v0")
    a("v_readfirstlane_b32 s3, v1")
    a("s_and_b32 s20, s2, 7")
    a("s_lshr_b32 s21, s2, 3")
    a("s_and_b32 s22, s20, 1")
    a("s_lshl_b32 s22, s22, 3")
    a("s_and_b32 s23, s21, 7")
    a("s_add_u32 s22, s22, s23")
    a("s_lshr_b32 s21, s21, 3")
    a("s_lshr_b32 s23, s20, 1")
    a("s_lshl_b32 s23, s23, 2")
    a("s_add_u32 s23, s23, s21")
    a("s_mov_b32 s99, 0")
    a("s_mov_b64 s[96:97], -1")
    a("s_cmp_lt_u32 s3, 4")
    a("s_cbranch_scc1 %s_consumer" % name)
    a("s_setprio 3")
    a("s_sub_u32 s3, s3, 4")
    a("v_lshrrev_b32 v3, 3, v2")
    a("v_and_b32 v4, 7, v2")
    VT = 16; VF = 20
    a("s_lshl_b32 s24, s3, 5")
    a("v_add_u32 v5, s24, v3")
    a("v_lshrrev_b32 v7, 4, v2")
    a("v_xor_b32 v7, v7, v4")
    a("v_mul_u32_u24 v6, 1152, v5")
    a("v_lshl_add_u32 v%d, v7, 4, v6" % VT)
    a("v_xor_b32 v%d, 64, v%d" % (VT + 1, VT))
    a("v_add_u32 v%d, %d, v%d" % (VT + 1, 9216 - 1024, VT + 1))
    a("v_add_u32 v%d, %d, v%d" % (VT + 2, 2 * (9216 - 1024), VT))
    a("v_add_u32 v%d, %d, v%d" % (VT + 3, 2 * (9216 - 1024), VT + 1))
    a("s_mul_i32 s26, s22, %d" % (128 * 1152))
    a("s_lshl_b32 s24, s3, 12")
    a("s_add_u32 s24, s24, %d" % TB0)
    a("s_mov_b32 s33, 0")
    a("s_waitcnt lgkmcnt(0)")
    srd(a, 28, 80, 2048 * 576 * 2)
    vm = VmTracker(a)
    def capture(f, *args):
        lb = len(a.lines); f(*args); out = a.lines[lb:]; del a.lines[lb:]; return out
    def issueT(m, part=None):
        a("s_add_u32 s35, s33, s24")
        a("s_mov_b32 m0, s35")
        if part != 0: a("s_add_u32 s33, s33, %d" % TS)
        else: a("s_nop 0")
        ns = range(4) if part is None else range(2 * part, 2 * part + 2)
        for n in ns:
            if "nodma" not in DBG: a("buffer_load_dwordx4 v%d, s[28:31], s26 offen offset:%d lds" % (VT + n, 1024 * n))
        if part != 0:
            a("s_add_u32 s26, s26, 128")
            a("s_cmp_eq_u32 s33, %d" % (NT * TS))
            a("s_cselect_b32 s33, 0, s33")
        vm.issue("T%d" % m if part != 0 else "Ta%d" % m, len(ns))
    issueT(0)
    srd(a, 8, 4, 576 * 4608 * 2)
    for n in range(5):
        if n: a("v_add_u32 v6, %d, v2" % (64 * n))
        src = "v6" if n else "v2"
        a("v_mul_u32_u24 v7, 1821, %s" % src)
        a("v_lshrrev_b32 v7, 16, v7")
        a("v_mul_u32_u24 v8, 36, v7")
        a("v_sub_u32 v8, %s, v8" % src)
        a("v_bfe_u32 v9, v7, 2, 1")
        a("v_lshlrev_b32 v6, 1, v9")
        a("v_xor_b32 v8, v8, v6")
        a("v_and_b32 v7, 3, v7")
        a("v_lshl_add_u32 v7, v9, 3, v7")
        a("v_mul_u32_u24 v7, 9216, v7")
        a("v_cmp_gt_u32 vcc, 18, v8")
        a("v_lshl_add_u32 v7, v8, 4, v7")
        a("v_mov_b32 v9, 4608")
        a("v_cndmask_b32 v9, -288, v9, vcc") if False else None
        a("v_mov_b32 v6, 0xfffffee0")
        a("v_cndmask_b32 v9, v6, v9, vcc")
        a("v_add_u32 v%d, v7, v9" % (VF + n))
        if 0 < n < 4: a("v_subrev_u32 v%d, %d, v%d" % (VF + n, 1024 * n, VF + n))
    a("s_and_b32 s36, s3, 1")
    a("s_lshl_b32 s36, s36, 4")
    a("s_lshr_b32 s37, s3, 1")
    a("s_lshl_b32 s37, s37, 2")
    a("s_add_u32 s36, s36, s37")
    a("s_mul_i32 s27, s36, 9216")
    a("s_mul_i32 s36, s23, 288")
    a("s_add_u32 s27, s27, s36")
    a("s_mul_i32 s25, s3, 4608")
    a("s_add_u32 s25, s25, %d" % FB_)
    a("s_mov_b32 s34, 0")
    def issueF(k):
        a("s_add_u32 s35, s34, s25")
        a("s_mov_b32 m0, s35")
        a("s_add_u32 s36, s35, 4096")
        for n in range(4):
            if "nodma" not in DBG: a("buffer_load_dwordx4 v%d, s[8:11], s27 offen offset:%d lds" % (VF + n, 1024 * n))
        a("s_mov_b32 m0, s36")
        a("s_mov_b64 exec, 0xffffffff")
        if "nodma" not in DBG: a("buffer_load_dwordx4 v%d, s[8:11], s27 offen lds" % (VF + 4))
        a("s_mov_b64 exec, -1")
        a("s_add_u32 s27, s27, %d" % (32 * 9216))
        a("s_add_u32 s34, s34, %d" % FSL)
        a("s_cmp_eq_u32 s34, %d" % (NF * FSL))
        a("s_cselect_b32 s34, 0, s34")
        vm.issue("F%d" % k, 5)
    issueF(0); issueF(1)
    def other_setup():
        a("s_load_dwordx2 s[6:7], s[0:1], 104")
        a("s_load_dwordx2 s[18:19], s[0:1], 96")
        a("s_waitcnt lgkmcnt(0)")
        srd(a, 12, 6, WS_BYTES)
        srd(a, 60, 18, 256)
    def prep_srds():
        srd(a, 68, 66, 2048 * 576 * 2)
        a("s_mov_b32 s88, s64"); a("s_mov_b32 s89, s65")
        srd(a, 64, 88, 2048 * 576 * 2)
        srd(a, 72, 76, 576 * 8)
        srd(a, 76, 100, 2304 * 576 * 2)
    other_setup()
    a("s_add_u32 s3, s3, 4"); stamp_setup(a, 1); stamp(a, 0); a("s_sub_u32 s3, s3, 4")
    a("s_load_dwordx4 s[64:67], s[0:1], 8")
    a("s_load_dwordx2 s[76:77], s[0:1], 24")
    a("s_load_dwordx2 s[100:101], s[0:1], 80")
    a("s_waitcnt lgkmcnt(0)")
    prep_srds()
    SS = [28, 30, 32, 34]; ONE = 36
    for r in range(28, 36): a("v_mov_b32 v%d, 0" % r)
    for r in range(ONE, ONE + 4): a("v_mov_b32 v%d, 0x3f803f80" % r)
    CA = 40
    for r in range(CA, CA + 20): a("v_mov_b32 v%d, 0" % r)
    XB = 64; CF = 80
    a("v_and_b32 v5, 15, v2")
    a("v_lshrrev_b32 v6, 4, v2")
    a("v_lshrrev_b32 v7, 1, v5")
    a("v_xor_b32 v6, v6, v7")
    a("v_lshlrev_b32 v6, 4, v6")
    a("v_lshl_add_u32 v6, v5, 7, v6")
    a("v_add_u32 v10, s24, v6")
    a("v_xor_b32 v26, 64, v10")
    RA = 112
    for r in range(RA, RA + 16): a("v_mov_b32 v%d, 0" % r)
    a("v_lshrrev_b32 v11, 2, v2")
    a("v_mul_u32_u24 v11, %d, v11" % FS)
    a("v_and_b32 v12, 3, v2")
    a("v_lshl_add_u32 v11, v12, 3, v11")
    a("v_bfe_u32 v13, v2, 4, 1")
    a("v_lshlrev_b32 v13, 5, v13")
    a("s_lshr_b32 s36, s3, 1")
    a("s_mul_i32 s37, s36, 9")
    a("s_and_b32 s38, s3, 1")
    a("s_lshl_b32 s38, s38, 2")
    a("s_add_u32 s37, s37, s38")
    a("s_lshl_b32 s40, s37, 6")
    a("s_lshl_b32 s37, s37, 5")
    a("s_add_u32 s37, s37, %d" % FB_)
    a("v_add_u32 v11, s37, v11")
    a("v_add_u32 v5, v11, v13")
    a("v_sub_u32 v6, v11, v13")
    a("s_cmp_eq_u32 s36, 0")
    a("s_cselect_b64 vcc, -1, 0")
    a("v_cndmask_b32 v11, v6, v5, vcc")
    a("v_cndmask_b32 v12, v5, v6, vcc")
    def rowstats_rd(ks):
        a("v_add_u32 v5, %d, v%d" % (((ks // 2) % NT) * TS, 26 if ks & 1 else 10))
        for n in range(2):
            a("ds_read_b128 %s, v5 offset:%d" % (vr(XB + 4 * n), 2048 * n))
    def rowstats_do():
        for n in range(2):
            a("v_mfma_f32_16x16x32_bf16 %s, %s, %s, %s" % (vr(RA + 4 * n), vr(ONE), vr(XB + 4 * n), vr(RA + 4 * n)))
            a("v_mfma_f32_16x16x32_bf16 %s, %s, %s, %s" % (vr(RA + 8 + 4 * n), vr(XB + 4 * n), vr(XB + 4 * n), vr(RA + 8 + 4 * n)))
    def colsum_rd(k):
        if "nocs" in DBG: return
        a("v_add_u32 v6, %d, v11" % ((k % NF) * FSL))
        a("v_add_u32 v7, %d, v12" % ((k % NF) * FSL))
        for q in range(5):
            for half in range(2):
                a("ds_read_b64_tr_b16 %s, v%d offset:%d" % (vr(CF + 4 * q + 2 * half, 2), 6 + (q & 1), 16 * half * FS + 32 * q))
    def colsum_do():
        if "nocs" in DBG: return
        for q in range(5):
            a("v_mfma_f32_16x16x32_bf16 %s, %s, %s, %s" % (vr(CA + 4 * q), vr(CF + 4 * q), vr(ONE), vr(CA + 4 * q)))
    vm.wait(["T0", "F0"])
    a("s_barrier")
    stamp(a, 1)
    colsum_rd(0); rowstats_rd(0)
    issueT(1); issueF(2); issueF(3)
    vm.wait(["F1"])
    a("s_barrier")
    for k in range(NK):
        dma = []
        if k == 0:
            dma += capture(issueF, 4) + capture(issueT, 2) + capture(issueF, 5)
        if k >= 1 and k + 5 < NK: dma += capture(issueF, k + 5)
        if k % 2 == 1 and (k - 1) // 2 + 3 < 9: dma += capture(issueT, (k - 1) // 2 + 3, 0)
        if k % 2 == 0 and k >= 2 and (k - 2) // 2 + 3 < 9: dma += capture(issueT, (k - 2) // 2 + 3, 1)
        comp = capture(colsum_do) + capture(rowstats_do)
        groups = []; cur = []
        for l in dma:
            cur.append(l)
            if "buffer_load" in l and "exec" not in "".join(cur[-2:-1]):
                groups.append(cur); cur = []
        if cur: groups.append(cur)
        nslots = max(1, len(groups) - 1)
        per = (len(comp) + nslots - 1) // nslots if comp else 0
        waited = False
        for gi, g in enumerate(groups):
            a.lines.extend(g)
            if comp and not any("exec, 0xffffffff" in x for x in g[-2:]):
                if not waited:
                    a("s_waitcnt lgkmcnt(0)"); waited = True
                a.lines.extend(comp[:per]); comp = comp[per:]
        if not waited: a("s_waitcnt lgkmcnt(0)")
        a.lines.extend(comp)
        if k + 1 < NK:
            colsum_rd(k + 1); rowstats_rd(k + 1)
            if "fine" in DBG:
                G.stamp_seq(a); vm.issue("st", 1)
            vm.wait(["F%d" % (k + 2), "T%d" % ((k + 2) // 2)])
            if "fine" in DBG:
                G.stamp_seq(a); vm.issue("st", 1)
            a("s_barrier")
    a("s_nop 7")
    a("v_and_b32 v5, 15, v2")
    a("v_lshrrev_b32 v6, 4, v2")
    a("v_lshrrev_b32 v7, 2, v5")
    a("v_and_b32 v8, 3, v5")
    for n in range(2):
        G_ = RA + 8 + 4 * n
        for r in range(1, 4):
            a("v_cmp_eq_u32 vcc, %d, v8" % r)
            a("s_nop 1")
            a("v_cndmask_b32 v%d, v%d, v%d, vcc" % (G_, G_, G_ + r))
    ML = 64
    for n in range(2):
        emit_ln_finish(a, RA + 4 * n, RA + 8 + 4 * n, 576, ML + 2 * n, ML + 2 * n + 1, 76)
        a("v_mov_b32 v%d, v%d" % (29 + 2 * n, ML + 2 * n + 1))
        a("v_sub_f32 v%d, 0, v%d" % (28 + 2 * n, ML + 2 * n))
    a("s_lshl_b32 s35, s3, 8")
    a("v_lshlrev_b32 v9, 3, v5")
    a("v_add_u32 v12, s35, v9")
    a("v_cmp_eq_u32 vcc, v6, v7")
    a("s_and_saveexec_b64 s[36:37], vcc")
    for n in range(2):
        a("ds_write_b64 v12, %s offset:%d" % (vr(28 + 2 * n, 2), RST + 128 * n))
    a("s_mov_b64 exec, s[36:37]")
    a("s_cmp_lg_u32 s23, 0")
    a("s_cbranch_scc1 %s_nost1" % name)
    a("s_lshl_b32 s35, s22, 7")
    a("s_lshl_b32 s36, s3, 5")
    a("s_add_u32 s35, s35, s36")
    a("s_lshl_b32 s35, s35, 3")
    a("s_add_u32 s35, s35, 0x%x" % STATS1)
    a("v_mov_b32 v7, 0x7ffffff0")
    a("v_cndmask_b32 v9, v7, v9, vcc")
    for n in range(2):
        a("buffer_store_dwordx2 %s, v9, s[12:15], s35 offen offset:%d" % (vr(ML + 2 * n, 2), 128 * n))
    a.label("%s_nost1" % name)
    a("v_lshrrev_b32 v12, 4, v2")
    a("v_lshlrev_b32 v12, 4, v12")
    a("v_add_u32 v12, s40, v12")
    a("v_and_b32 v13, 15, v2")
    a("v_cmp_eq_u32 vcc, 0, v13")
    a("s_and_saveexec_b64 s[36:37], vcc")
    for q in range(5):
        a("ds_write_b128 v12, %s offset:%d" % (vr(CA + 4 * q), CSO + 64 * q))
    a("s_mov_b64 exec, s[36:37]")
    a("s_waitcnt lgkmcnt(0)")
    a("s_barrier")
    ACC = 112
    a("s_lshr_b32 s24, s3, 1")
    a("s_and_b32 s25, s3, 1")
    a("v_and_b32 v3, 15, v2")
    a("s_mov_b32 s98, 1")
    a("s_lshl_b32 s36, s3, 14")
    a("s_add_u32 s36, s36, %d" % TB0)
    a("v_lshlrev_b32 v10, 4, v2")
    a("v_add_u32 v11, s36, v10")
    a("s_barrier")
    n_ = 0
    for z in range(2):
        for ft in range(4):
            for tt in range(2):
                a("ds_read_b128 %s, v11 offset:%d" % (vr(ACC + 72 * z + 4 * tidx(ft, tt)), 1024 * n_))
                n_ += 1
                if n_ in (8, 13): a("s_waitcnt lgkmcnt(4)")
    a("s_branch %s_epi" % name)

    def gran_addr():
        a("v_lshrrev_b32 v10, 4, v2")
        a("s_lshl_b32 s33, s25, 1")
        a("v_add_u32 v11, s33, v10")
        a("v_and_b32 v11, 3, v11")
        a("v_lshl_add_u32 v11, v11, 4, v3")
        a("v_lshlrev_b32 v94, 8, v11")
        a("s_lshl_b32 s59, s22, 7")
        a("s_lshl_b32 s36, s24, 6")
        a("s_add_u32 s59, s59, s36")
        a("s_lshl_b32 s59, s59, 8")
        a("s_add_u32 s59, s59, 0x%x" % STATS2)
        a("s_lshl_b32 s36, s23, 1")
        a("s_add_u32 s36, s36, s25")
        a("s_lshl_b32 s36, s36, 3")
        a("s_add_u32 s58, s36, s59")
    a.label("%s_consumer" % name)
    a("s_load_dwordx4 s[64:67], s[0:1], 8")
    a("s_load_dwordx2 s[76:77], s[0:1], 24")
    a("s_load_dwordx2 s[100:101], s[0:1], 80")
    a("s_lshr_b32 s24, s3, 1")
    a("s_and_b32 s25, s3, 1")
    a("v_and_b32 v3, 15, v2")
    other_setup()
    srd(a, 28, 80, 2048 * 576 * 2)
    srd(a, 8, 4, 576 * 4608 * 2)
    if "nopf" not in DBG:
        a("s_and_b32 s36, s22, 7")
        a("s_mul_i32 s36, s36, 72")
        a("s_mul_i32 s37, s3, 18")
        a("s_add_u32 s36, s36, s37")
        a("s_mul_i32 s36, s36, 9216")
        a("s_mul_i32 s37, s23, 288")
        a("s_add_u32 s36, s36, s37")
        a("s_and_b32 s36, s36, 0xffffff80")
        a("v_lshrrev_b32 v10, 2, v2")
        a("v_mul_u32_u24 v10, 9216, v10")
        a("v_and_b32 v11, 3, v2")
        a("v_lshl_add_u32 v10, v11, 7, v10")
        a("v_and_b32 v12, 7, v2")
        a("v_lshrrev_b32 v12, 2, v12")
        a("v_mul_u32_u24 v12, 9216, v12")
        a("v_lshl_add_u32 v12, v11, 7, v12")
        a("s_add_u32 s37, s36, 4608")
        a("s_add_u32 s38, s36, %d" % (16 * 9216))
        a("s_add_u32 s39, s37, %d" % (16 * 9216))
        a("buffer_load_dword v96, v10, s[8:11], s37 offen")
        a("buffer_load_dword v96, v10, s[8:11], s36 offen")
        a("buffer_load_dword v96, v12, s[8:11], s39 offen")
        a("buffer_load_dword v96, v12, s[8:11], s38 offen")
        a("s_lshr_b32 s36, s2, 6")
        a("s_lshl_b32 s36, s36, 5")
        a("s_lshl_b32 s37, s22, 7")
        a("s_add_u32 s36, s36, s37")
        a("s_mul_i32 s36, s36, 1152")
        a("s_mul_i32 s37, s3, 9216")
        a("s_add_u32 s36, s36, s37")
        a("v_lshlrev_b32 v11, 7, v2")
        a("buffer_load_dword v96, v11, s[28:31], s36 offen")
        a("v_and_b32 v11, 7, v2")
        a("v_lshlrev_b32 v11, 7, v11")
        a("s_add_u32 s36, s36, 8192")
        a("buffer_load_dword v96, v11, s[28:31], s36 offen")
    prep_srds()
    if "nopf2" not in DBG:
        a("s_lshl_b32 s41, s2, 1")
        a("s_add_u32 s41, s41, s24")
        a("s_cmp_ge_u32 s41, 288")
        a("s_cbranch_scc1 %s_nopf2" % name)
        a("s_mul_hi_u32 s36, s41, 0x%x" % ((2**32 + 8) // 9))
        a("s_mul_i32 s37, s36, 9")
        a("s_sub_u32 s37, s41, s37")
        a("s_mul_i32 s36, s36, %d" % (64 * 1152))
        a("s_lshl_b32 s37, s37, 7")
        a("s_add_u32 s36, s36, s37")
        a("v_mul_u32_u24 v10, 1152, v2")
        a("s_cmp_eq_u32 s25, 0")
        a("s_cbranch_scc1 %s_pfk" % name)
        a("buffer_load_dword v96, v10, s[68:71], s36 offen")
        a("s_branch %s_nopf2" % name)
        a.label("%s_pfk" % name)
        a("buffer_load_dword v96, v10, s[64:67], s36 offen")
        a.label("%s_nopf2" % name)
        a("s_mul_i32 s36, s2, 10368")
        a("s_mul_i32 s37, s3, 2688")
        a("s_add_u32 s36, s36, s37")
        a("v_min_u32 v10, 20, v2")
        a("v_lshlrev_b32 v10, 7, v10")
        a("buffer_load_dword v96, v10, s[76:79], s36 offen")
    stamp_setup(a, 1); stamp(a, 0)
    a("s_mov_b32 s98, 0")
    gran_addr()
    a("v_mov_b32 v12, 0"); a("v_mov_b32 v13, 0x80000000")
    a("buffer_store_dwordx2 v[12:13], v94, s[12:15], s58 offen sc1")
    TB = [16, 32]; FR = 48
    vTa, vTb, vP = 4, 5, [6, 7]; vH = [8, 9]
    bTa = [88, 89]; bTb = [90, 91]; bP = [92, 93]; bH = [100, 101]
    PF = 96
    a("v_lshrrev_b32 v10, 4, v2")
    a("v_lshrrev_b32 v11, 1, v3")
    a("v_xor_b32 v10, v10, v11")
    a("v_lshlrev_b32 v10, 4, v10")
    a("v_lshl_add_u32 v10, v3, 7, v10")
    a("s_lshl_b32 s26, s24, 13")
    a("s_add_u32 s26, s26, %d" % TB0)
    a("v_add_u32 v10, s26, v10")
    a("s_lshl_b32 s26, s25, 12")
    a("v_add_u32 v%d, s26, v10" % bTa[0])
    a("s_xor_b32 s26, s26, 4096")
    a("v_add_u32 v%d, s26, v10" % bTb[0])
    a("v_xor_b32 v%d, 64, v%d" % (bTa[1], bTa[0]))
    a("v_xor_b32 v%d, 64, v%d" % (bTb[1], bTb[0]))
    a("v_lshrrev_b32 v10, 2, v2")
    a("v_mul_u32_u24 v10, %d, v10" % FS)
    a("v_and_b32 v11, 3, v2")
    a("v_lshl_add_u32 v10, v11, 3, v10")
    a("v_add_u32 v10, %d, v10" % FB_)
    a("v_bfe_u32 v13, v2, 4, 1")
    a("v_lshlrev_b32 v13, 5, v13")
    a("v_add_u32 v%d, v10, v13" % bH[0])
    a("v_sub_u32 v%d, v10, v13" % bH[1])
    a("s_mul_i32 s26, s25, 160")
    a("s_cmp_eq_u32 s25, 0")
    a("s_cselect_b64 vcc, -1, 0")
    a("v_cndmask_b32 v11, v%d, v%d, vcc" % (bH[1], bH[0]))
    a("v_cndmask_b32 v12, v%d, v%d, vcc" % (bH[0], bH[1]))
    a("v_add_u32 v%d, s26, v11" % bP[0])
    a("v_add_u32 v%d, s26, v12" % bP[1])
    a("v_lshrrev_b32 v10, 4, v2")
    a("v_lshlrev_b32 v10, 12, v10")
    a("v_lshl_add_u32 v95, v3, 4, v10")
    a("s_lshl_b32 s41, s22, 7")
    a("s_lshl_b32 s36, s3, 5")
    a("s_add_u32 s41, s41, s36")
    a("s_lshl_b32 s41, s41, 12")
    a("s_lshl_b32 s36, s23, 8")
    a("s_add_u32 s41, s41, s36")
    for r in range(ACC, ACC + 144): a("v_mov_b32 v%d, 0" % r)
    def accr(z, ft, tt): return ACC + 72 * z + 4 * tidx(ft, tt)
    def Fr(z, ft): return FR + 20 * z + 4 * ft
    trk = LdsTracker(a)
    def treads(buf):
        L = []
        for tt in range(4):
            r = TB[buf] + 4 * tt
            L.append(("ds_read_b128 %s, v%d offset:%d" % (vr(r), vTa if tt < 2 else vTb, (tt & 1) * 2048), range(r, r + 4)))
        return L
    def freads(z, ft):
        r = Fr(z, ft); L = []
        for half in range(2):
            off = 16 * half * FS + 32 * (9 * z + ft)
            v = vP[(z + ft) & 1] if ft < 4 else vH[z]
            L.append(("ds_read_b64_tr_b16 %s, v%d offset:%d" % (vr(r + 2 * half, 2), v, off), range(r + 2 * half, r + 2 * half + 2)))
        return L
    def rd(t):
        a(t[0]); trk.issue(t[1])
    fpairs = ((vP[0], bP[0]), (vP[1], bP[1]), (vH[0], bH[0]), (vH[1], bH[1]))
    a("v_mov_b32 v%d, v%d" % (vTa, bTa[0])); a("v_mov_b32 v%d, v%d" % (vTb, bTb[0]))
    for d, s_ in fpairs: a("v_mov_b32 v%d, v%d" % (d, s_))
    a("s_mov_b32 s27, 0")
    a("s_mov_b32 s34, 0")
    a("s_mov_b32 s33, 0")
    stamp(a, 1)
    a("s_barrier")
    stamp(a, 2)
    for t in treads(0): rd(t)
    for z in range(2):
        for ft in range(5):
            for t in freads(z, ft): rd(t)
            if len(trk.out) >= 12: trk.drain()
    trk.drain()
    def iteration(par):
        G.stamp_seq(a)
        if "fine" in DBG: trk.out = []
        a("s_barrier")
        upd = []
        if par == 1:
            upd += ["s_add_u32 s27, s27, %d" % TS, "s_cmp_eq_u32 s27, %d" % (NT * TS), "s_cselect_b32 s27, 0, s27"]
        upd += ["v_add_u32 v%d, s27, v%d" % (vTa, bTa[1 - par]), "v_add_u32 v%d, s27, v%d" % (vTb, bTb[1 - par])]
        upd += ["s_add_u32 s34, s34, %d" % FSL, "s_cmp_eq_u32 s34, %d" % (NF * FSL), "s_cselect_b32 s34, 0, s34"]
        upd += ["v_add_u32 v%d, s34, v%d" % (d, s_) for d, s_ in fpairs]
        pend = [("x", u) for u in upd] + [("r", t) for t in treads(1 - par)]
        if par == 0:
            pass
        else:
            pend.append(("x", "s_add_u32 s33, s33, 1"))
        nm = 0
        for z in range(2):
            for ft in range(5):
                for tt in range(4 if ft < 4 else 2):
                    c = accr(z, ft, tt); A = Fr(z, ft); B = TB[par] + 4 * tt
                    trk.need(list(range(A, A + 4)) + list(range(B, B + 4)))
                    if "nomfma" not in DBG: a("v_mfma_f32_16x16x32_bf16 %s, %s, %s, %s" % (vr(c), vr(A), vr(B), vr(c)))
                    nfill = 1
                    while pend and nfill:
                        k, t = pend.pop(0)
                        if k == "x":
                            a(t)
                            if t.startswith("s_") and nm < 8: continue
                        else: rd(t)
                        nfill -= 1
                    nm += 1
                pend += [("r", t) for t in freads(z, ft)]
        for k, t in pend:
            if k == "x": a(t)
            else: rd(t)
        a("s_waitcnt lgkmcnt(15)")
        if len(trk.out) > 15: trk.out = trk.out[-15:]
    a.label("%s_cloop" % name)
    trk.out = []
    lb = len(a.lines)
    iteration(0); iteration(1)
    state = copy.deepcopy(trk.out)
    del a.lines[lb:]
    trk.out = copy.deepcopy(state)
    iteration(0); iteration(1)
    assert [sorted(x) for x in trk.out] == [sorted(x) for x in state]
    a("s_cmp_lt_u32 s33, %d" % (NK // 2))
    a("s_cbranch_scc1 %s_cloop" % name)
    trk.drain()
    stamp(a, 3)
    a("s_waitcnt vmcnt(0)")
    a("s_barrier")
    a("s_cmp_lg_u32 s3, 0")
    a("s_cbranch_scc1 %s_nosig" % name)
    a("v_mov_b32 v10, 1")
    a("s_lshl_b32 s36, s22, 2")
    a("v_mov_b32 v11, s36")
    a("s_mov_b64 exec, 1")
    a("buffer_atomic_add v10, v11, s[60:63], 0 offen sc1")
    a("s_mov_b64 exec, -1")
    a.label("%s_nosig" % name)
    a("s_lshl_b32 s36, s3, 14")
    a("s_add_u32 s36, s36, %d" % TB0)
    a("v_lshlrev_b32 v10, 4, v2")
    a("v_add_u32 v11, s36, v10")
    n_ = 0
    for z in range(2):
        for ft in range(4):
            for tt in range(2):
                a("ds_write_b128 v11, %s offset:%d" % (vr(accr(z, ft, tt + 2)), 1024 * n_))
                n_ += 1
                if n_ in (8, 13): a("s_waitcnt lgkmcnt(4)")
    a("s_waitcnt lgkmcnt(0)")
    a("s_barrier")
    a.label("%s_epi" % name)
    MR = 100; CS = 52; T = 72; ZP1 = 16
    ZP2 = lambda n: 192 + 16 * (n >> 2) + 2 * (n & 3)
    ZP1f = lambda n: 184 + 16 * (n >> 1) + 2 * (n & 1)
    gelu_consts(a)
    a("s_xor_b32 s52, s98, s25")
    a("s_lshl_b32 s36, s24, 9")
    a("s_lshl_b32 s37, s52, 8")
    a("s_add_u32 s38, s36, s37")
    a("v_lshlrev_b32 v10, 3, v3")
    a("v_add_u32 v11, s38, v10")
    a("ds_read_b64 %s, v11 offset:%d" % (vr(MR, 2), RST))
    a("ds_read_b64 %s, v11 offset:%d" % (vr(MR + 2, 2), RST + 128))
    a("v_lshrrev_b32 v10, 4, v2")
    a("v_lshlrev_b32 v4, 4, v10")
    a("s_mul_i32 s36, s25, 320")
    a("v_add_u32 v5, s36, v4")
    def cs_loads(z):
        for ft in range(4):
            a("ds_read_b128 %s, v5 offset:%d" % (vr(CS + 4 * ft), CSO + 576 * z + 64 * ft))
        a("ds_read_b128 %s, v4 offset:%d" % (vr(CS + 16), CSO + 576 * z + 256))
    a("s_waitcnt lgkmcnt(6)")
    cs_loads(0)
    S = [108, 110]; Q = [109, 111]
    for r_ in range(108, 112): a("v_mov_b32 v%d, 0" % r_)
    a("v_mov_b32 v88, 0x3f803f80")
    a("s_waitcnt lgkmcnt(0)")
    def gelu_z(z, ZP, stats):
        def dots(lst):
            if not stats: return
            for d in range(2):
                for (ft, tt) in lst:
                    p = ZP(2 * ft + tt) + d
                    a("v_dot2_f32_bf16 v%d, v%d, v88, v%d" % (S[tt], p, S[tt]))
                    a("v_dot2_f32_bf16 v%d, v%d, v%d, v%d" % (Q[tt], p, p, Q[tt]))
        for f0 in (0, 2):
            lst = [(ft, tt) for ft in (f0, f0 + 1) for tt in range(2)]
            emit_fold_gelu(a, [(ACC + 72 * z + 4 * tidx(ft, tt), CS + 4 * ft, MR + 2 * tt, ZP(2 * ft + tt)) for ft, tt in lst], T)
            dots(lst)
        a("s_cmp_lg_u32 s98, 0")
        a("s_cbranch_scc1 %s_nohalf%d" % (name, z))
        lst = [(4, 0), (4, 1)]
        emit_fold_gelu(a, [(ACC + 72 * z + 4 * tidx(ft, tt), CS + 4 * ft, MR + 2 * tt, ZP(2 * ft + tt)) for ft, tt in lst], T)
        dots(lst)
        a.label("%s_nohalf%d" % (name, z))
    gelu_z(0, ZP2, True)
    cs_loads(1)
    a("s_nop 1")
    emit_xg_reduce(a, S + Q, 72)
    a("s_lshl_b32 s59, s22, 7")
    a("s_lshl_b32 s36, s24, 6")
    a("s_add_u32 s59, s59, s36")
    a("s_lshl_b32 s36, s52, 5")
    a("s_add_u32 s59, s59, s36")
    a("s_lshl_b32 s59, s59, 8")
    a("s_add_u32 s59, s59, 0x%x" % STATS2)
    a("s_lshl_b32 s36, s23, 1")
    a("s_add_u32 s36, s36, s25")
    a("s_lshl_b32 s36, s36, 3")
    a("s_add_u32 s58, s36, s59")
    a("v_lshlrev_b32 v11, 8, v2")
    a("v_cmp_gt_u32 vcc, 32, v2")
    a("v_mov_b32 v12, 0x7ffffff0")
    a("v_cmp_eq_u32 s[36:37], 1, v10")
    a("v_cndmask_b32 v11, v12, v11, vcc")
    a("s_nop 0")
    a("v_cndmask_b32 v108, v108, v110, s[36:37]")
    a("v_cndmask_b32 v109, v109, v111, s[36:37]")
    a("v_and_b32 v109, 0x7fffffff, v109")
    a("buffer_store_dwordx2 v[108:109], v11, s[12:15], s58 offen sc1")
    a("s_setprio 0")
    stamp(a, 4)
    a("s_lshl_b32 s42, s2, 1")
    a("s_add_u32 s42, s42, s98")
    a("v_and_b32 v0, 255, v0")
    emit_wot_loads(a, 136, 144)
    a("s_mov_b32 s41, s42")
    a("s_cmp_ge_u32 s41, 288")
    a("s_cbranch_scc1 %s_nokv1" % name)
    emit_kv_loads(a, 112, 124, 132, 146, 147)
    a.label("%s_nokv1" % name)
    PB = 148
    a("v_lshrrev_b32 v182, 4, v2")
    a("v_lshlrev_b32 v181, 8, v3")
    a("v_lshl_add_u32 v181, v182, 6, v181")
    a("s_lshl_b32 s33, s22, 2")
    a("v_mov_b32 v182, s33")
    a("s_add_u32 s53, s59, 4096")
    a("buffer_load_dword v180, v182, s[60:63], 0 offen sc1")
    a("s_load_dwordx2 s[90:91], s[0:1], 64")
    a("v_lshrrev_b32 v183, 4, v2")
    a("v_lshlrev_b32 v183, 12, v183")
    a("v_lshl_add_u32 v183, v3, 4, v183")
    a("s_lshl_b32 s82, s22, 7")
    a("s_lshl_b32 s36, s3, 5")
    a("s_add_u32 s82, s82, s36")
    a("s_lshl_b32 s36, s98, 4")
    a("s_add_u32 s82, s82, s36")
    a("s_lshl_b32 s82, s82, 12")
    a("s_lshl_b32 s36, s23, 8")
    a("s_add_u32 s82, s82, s36")
    a("s_waitcnt lgkmcnt(0)")
    srd(a, 92, 90, 2048 * 2048 * 2)
    for n in range(4):
        a("buffer_load_dwordx4 v[92:95], v183, s[92:95], s82 offen")
        if n < 3: a("s_add_u32 s82, s82, 16384")
    a("s_waitcnt lgkmcnt(0)")
    gelu_z(1, ZP1f, False)
    stamp(a, 5)
    a("s_waitcnt vmcnt(0)")
    def gather():
        for tt in range(2):
            for q in range(4):
                a("buffer_load_dwordx4 %s, v181, s[12:15], s%d offen offset:%d sc1" % (vr(PB + 16 * tt + 4 * q), (59, 53)[tt], 16 * q))
    gather()
    a("s_cmp_ge_u32 s41, 288")
    a("s_cbranch_scc1 %s_nokv2" % name)
    for n in range(11): a("v_mov_b32 v%d, v%d" % (16 + n, 112 + n))
    for n in range(8): a("v_mov_b32 v%d, v%d" % (32 + n, 124 + n))
    for n in range(4): a("v_mov_b32 v%d, v%d" % (44 + n, 132 + n))
    a("v_mov_b32 v56, v146"); a("v_mov_b32 v57, v147")
    emit_kv_compute(a, wait=False, store=False)
    a.label("%s_nokv2" % name)
    stamp(a, 6)
    a("s_mov_b32 s43, 0")
    a("v_lshrrev_b32 v10, 4, v2")
    a("s_waitcnt vmcnt(0)")
    a.label("%s_chk" % name)
    a("v_subrev_u32 v11, 16, v180")
    for r in range(PB + 1, PB + 32, 4):
        a("v_or3_b32 v11, v11, v%d, v%d" % (r, r + 2))
    a("v_cmp_gt_i32 vcc, 0, v11")
    a("s_add_u32 s43, s43, 1")
    a("s_cmp_gt_u32 s43, %d" % SPIN_MAX)
    a("s_cbranch_scc1 %s_poll1x" % name)
    a("s_cbranch_vccz %s_poll1x" % name)
    a("s_sleep 24")
    a("buffer_load_dword v180, v182, s[60:63], 0 offen sc1")
    a("s_waitcnt vmcnt(0)")
    gather()
    a("s_waitcnt vmcnt(0)")
    a("s_branch %s_chk" % name)
    a.label("%s_poll1x" % name)
    stamp(a, 7)
    for n in range(2):
        a("buffer_store_dwordx4 %s, v%d, s[12:15], s40 offen" % (vr(136 + 4 * n), 144 + n))
    a("s_cmp_ge_u32 s41, 288")
    a("s_cbranch_scc1 %s_nokv3" % name)
    a("s_mov_b32 s39, 0x%x" % KVT)
    a("buffer_store_dwordx4 v[120:123], v12, s[12:15], s39 offen")
    a("buffer_store_dwordx4 v[124:127], v13, s[12:15], s39 offen")
    a.label("%s_nokv3" % name)
    a("s_lshl_b32 s36, s22, 4")
    a("s_add_u32 s36, s36, s23")
    a("s_lshl_b32 s36, s36, 2")
    a("s_add_u32 s36, s36, s3")
    a("s_mul_i32 s36, s36, 9216")
    a("s_lshl_b32 s37, s98, 10")
    a("s_add_u32 s36, s36, s37")
    a("s_add_u32 s36, s36, 0x%x" % Z1IMG)
    a("s_add_u32 s37, s36, 4096")
    a("s_add_u32 s38, s36, 8192")
    a("v_lshlrev_b32 v11, 4, v2")
    for ft in range(4):
        a("buffer_store_dwordx4 %s, v11, s[12:15], s%d offen offset:%d" % (vr(184 + 16 * ft), 36 + (ft >> 1), (ft & 1) * 2048))
    a("s_cmp_lg_u32 s98, 0")
    a("s_cbranch_scc1 %s_noh1" % name)
    a("buffer_store_dwordx4 %s, v11, s[12:15], s38 offen" % vr(248))
    a.label("%s_noh1" % name)
    for tt in range(2):
        b = PB + 16 * tt
        for st in (8, 4, 2):
            for q in range(0, st, 2):
                a("v_pk_add_f32 %s, %s, %s" % (vr(b + q, 2), vr(b + q, 2), vr(b + q + st, 2)))
    emit_xg_reduce(a, [PB + 16 * tt + e for tt in range(2) for e in range(2)], 72)
    for tt in range(2):
        b = PB + 16 * tt
        emit_ln_finish(a, b, b + 1, 2304, b + 2, MR + 2 * tt, b + 4)
        a("v_mul_f32 v%d, -v%d, v%d" % (MR + 2 * tt + 1, b + 2, MR + 2 * tt))
    a("v_lshrrev_b32 v11, 2, v2"); a("v_and_b32 v11, 1, v11"); a("v_lshlrev_b32 v11, 4, v11")
    a("v_lshrrev_b32 v12, 3, v2"); a("v_and_b32 v12, 1, v12"); a("v_lshl_add_u32 v11, v12, 2, v11")
    a("v_and_b32 v12, 3, v2"); a("v_add_u32 v11, v11, v12")
    a("v_mul_u32_u24 v11, 288, v11")
    a("v_lshrrev_b32 v12, 1, v10"); a("v_lshl_add_u32 v11, v12, 4, v11")
    a("v_and_b32 v12, 1, v10")
    a("v_lshl_add_u32 v13, v12, 5, v11")
    a("v_mul_u32_u24 v12, 2304, v12")
    a("v_add_u32 v9, v11, v12")
    a("s_lshl_b32 s33, s23, 5")
    a("s_lshl_b32 s36, s22, 1")
    a("s_add_u32 s33, s33, s36")
    a("s_add_u32 s33, s33, s24")
    a("s_mul_i32 s33, s33, 18432")
    if ZIMG: a("s_add_u32 s33, s33, 0x%x" % ZIMG)
    a("s_mul_i32 s36, s52, 9216")
    a("s_add_u32 s37, s33, s36")
    a("s_add_u32 s39, s37, 128")
    a("s_mul_i32 s36, s25, 160")
    a("s_add_u32 s37, s37, s36")
    def norm_pair(nA, ttA, nB, ttB, O):
        for q, (n, tt) in enumerate(((nA, ttA), (nB, ttB))):
            for d in range(2):
                z = ZP2(n) + d; t = T + 4 * q + 2 * d
                a("v_lshlrev_b32 v%d, 16, v%d" % (t, z))
                a("v_and_b32 v%d, 0xffff0000, v%d" % (t + 1, z))
        for q, (n, tt) in enumerate(((nA, ttA), (nB, ttB))):
            for d in range(2):
                t = T + 4 * q + 2 * d
                a("v_pk_fma_f32 %s, %s, %s, %s op_sel:[0,0,1] op_sel_hi:[1,0,1]" % (vr(t, 2), vr(t, 2), vr(MR + 2 * tt, 2), vr(MR + 2 * tt, 2)))
        for q in range(2):
            for d in range(2):
                t = T + 4 * q + 2 * d
                a("v_cvt_pk_bf16_f32 v%d, v%d, v%d" % (O + 2 * q + d, t, t + 1))
        a("s_nop 1")
        a("v_permlane16_swap_b32 v%d, v%d" % (O, O + 2))
        a("v_permlane16_swap_b32 v%d, v%d" % (O + 1, O + 3))
    cnt = 0
    for pr in range(2):
        for tt in range(2):
            O = 16 + 4 * cnt; cnt += 1
            norm_pair(2 * (2 * pr) + tt, tt, 2 * (2 * pr + 1) + tt, tt, O)
            a("s_nop 0")
            a("buffer_store_dwordx4 %s, v13, s[12:15], s37 offen offset:%d" % (vr(O), tt * 2304 + 64 * pr))
    a("s_cmp_lg_u32 s98, 0")
    a("s_cbranch_scc1 %s_fin" % name)
    O = 16 + 4 * cnt
    norm_pair(8, 0, 9, 1, O)
    a("s_nop 0")
    a("buffer_store_dwordx4 %s, v9, s[12:15], s39 offen" % vr(O))
    a.label("%s_fin" % name)
    stamp(a, 8)
    G.stamp_rt(a, 1)
    a.label("%s_end" % name)
    a("s_endpgm")
    return a.text(), kernel_desc(name, 256, 256), (name, 256, 512, LDSB)


def emit_k2_epilogue(a, core, Z1R, BI):
    a("v_lshrrev_b32 v10, 4, v2")
    a("v_and_b32 v11, 1, v10")
    a("v_lshrrev_b32 v12, 1, v10")
    a("v_lshl_add_u32 v12, v11, 1, v12")
    a("s_mul_i32 s35, s23, 18")
    a("s_mul_i32 s36, s25, 10")
    a("s_add_u32 s36, s36, s35")
    a("v_lshrrev_b32 v13, 1, v3")
    a("s_lshl_b32 s37, s22, 1")
    a("s_add_u32 s37, s37, s24")
    a("s_mul_i32 s37, s37, %d" % (36 * 8192))
    a("s_add_u32 s37, s37, 0x%x" % PIMG)
    a("s_lshl_b32 s38, s25, 12")
    a("s_add_u32 s39, s37, s38")
    a("s_xor_b32 s38, s38, 4096")
    a("s_add_u32 s40, s37, s38")
    def addr(dst, pv):
        a("v_lshrrev_b32 v14, 3, v%d" % pv)
        a("v_lshlrev_b32 v14, 13, v14")
        a("v_and_b32 v15, 7, v%d" % pv)
        a("v_xor_b32 v15, v15, v13")
        a("v_lshl_add_u32 v14, v15, 4, v14")
        a("v_lshl_add_u32 v%d, v3, 7, v14" % dst)
    a("v_add_u32 v16, s36, v12"); addr(4, 16)
    a("v_add_u32 v16, 4, v16"); addr(5, 16)
    a("v_lshrrev_b32 v16, 1, v10")
    a("s_add_u32 s35, s35, 8")
    a("v_add_u32 v16, s35, v16"); addr(6, 16)
    a("v_lshl_add_u32 v6, v11, 11, v6")
    def ptiles(lst, O):
        T = 24
        for q, (ft, tt) in enumerate(lst):
            c = core.accr(ft, tt)
            for h in (0, 2):
                a("v_pk_add_f32 %s, %s, %s op_sel_hi:[1,0]" % (vr(c + h, 2), vr(c + h, 2), vr(BI + 2 * tt, 2)))
        for q, (ft, tt) in enumerate(lst):
            c = core.accr(ft, tt)
            a("v_cvt_pk_bf16_f32 v%d, v%d, v%d" % (T + 2 * q, c, c + 1))
            a("v_cvt_pk_bf16_f32 v%d, v%d, v%d" % (T + 2 * q + 1, c + 2, c + 3))
        for q, (ft, tt) in enumerate(lst):
            c = core.accr(ft, tt); z = Z1R + 2 * tidx(ft, tt)
            for d in range(2):
                a("v_lshlrev_b32 v%d, 16, v%d" % (c + 2 * d, T + 2 * q + d))
                a("v_and_b32 v%d, 0xffff0000, v%d" % (c + 2 * d + 1, T + 2 * q + d))
                a("v_lshlrev_b32 v%d, 16, v%d" % (T + 4 + 4 * q + 2 * d, z + d))
                a("v_and_b32 v%d, 0xffff0000, v%d" % (T + 5 + 4 * q + 2 * d, z + d))
        for q, (ft, tt) in enumerate(lst):
            c = core.accr(ft, tt)
            for h in (0, 2):
                a("v_pk_mul_f32 %s, %s, %s" % (vr(c + h, 2), vr(c + h, 2), vr(T + 4 + 4 * q + h, 2)))
        for q, (ft, tt) in enumerate(lst):
            c = core.accr(ft, tt)
            a("v_cvt_pk_bf16_f32 v%d, v%d, v%d" % (O + 2 * q, c, c + 1))
            a("v_cvt_pk_bf16_f32 v%d, v%d, v%d" % (O + 2 * q + 1, c + 2, c + 3))
        a("s_nop 1")
        a("v_permlane16_swap_b32 v%d, v%d" % (O, O + 2))
        a("v_permlane16_swap_b32 v%d, v%d" % (O + 1, O + 3))
        a("s_nop 0")
    cnt = 0
    for pr in range(2):
        for tt in range(4):
            O = 40 + 4 * cnt; cnt += 1
            ptiles([(2 * pr, tt), (2 * pr + 1, tt)], O)
            a("buffer_store_dwordx4 %s, v%d, s[12:15], s%d offen offset:%d" % (vr(O), 4 + pr, 39 if tt < 2 else 40, (tt & 1) * 2048))
    O = 40 + 4 * cnt
    ptiles([(4, 0), (4, 1)], O)
    a("buffer_store_dwordx4 %s, v6, s[12:15], s39 offen" % vr(O))

def gen_k2b(name="k2_kernel", R=4):
    a = Asm()
    SLOT = 34816; TREG = 16384; FS = 288; NST = 32
    kernel_begin(a, name)
    a("s_load_dwordx2 s[4:5], s[0:1], 64")
    a("s_load_dwordx2 s[6:7], s[0:1], 104")
    a("s_load_dwordx4 s[88:91], s[0:1], 32")
    a("s_cmp_ge_u32 s2, 256")
    a("s_cbranch_scc1 %s_end" % name)
    a("v_lshrrev_b32 v1, 6, v0")
    a("v_and_b32 v2, 63, v0")
    a("v_readfirstlane_b32 s3, v1")
    G2.tile_ij(a)
    a("s_cmp_lt_u32 s3, 4")
    a("s_cbranch_scc1 %s_consumer" % name)
    if "noprio" not in DBG: a("s_setprio 3")
    a("s_sub_u32 s3, s3, 4")
    a("v_lshrrev_b32 v3, 3, v2")
    a("s_lshl_b32 s24, s3, 5")
    a("v_add_u32 v3, s24, v3")
    a("v_and_b32 v4, 7, v2")
    a("v_lshrrev_b32 v6, 4, v2")
    a("v_xor_b32 v6, v6, v4")
    a("v_lshlrev_b32 v6, 4, v6")
    a("v_lshl_add_u32 v10, v3, 12, v6")
    a("v_xor_b32 v11, 64, v10")
    a("v_add_u32 v11, %d, v11" % (32768 - 1024))
    a("v_add_u32 v12, %d, v10" % (2 * (32768 - 1024)))
    a("v_add_u32 v13, %d, v11" % (2 * (32768 - 1024)))
    a("v_lshlrev_b32 v14, 4, v2")
    a("s_lshl_b32 s26, s22, 19")
    a("s_mul_i32 s27, s23, %d" % (32 * 18432))
    a("s_lshl_b32 s24, s3, 12")
    a("s_add_u32 s27, s27, s24")
    if ZIMG: a("s_add_u32 s27, s27, 0x%x" % ZIMG)
    a("s_lshl_b32 s25, s3, 9")
    a("s_sub_u32 s32, s25, s24")
    a("s_add_u32 s32, s32, 16384")
    a("s_mov_b32 s33, 0")
    a("s_waitcnt lgkmcnt(0)")
    srd(a, 8, 4, 2048 * 2048 * 2)
    srd(a, 12, 6, WS_BYTES)
    def issue():
        a("s_add_u32 s35, s33, s24")
        a("s_mov_b32 m0, s35")
        a("s_add_u32 s36, s35, %d" % TREG)
        for n in range(4):
            a("buffer_load_dwordx4 v%d, s[8:11], s26 offen offset:%d lds" % (10 + n, n * 1024))
        a("s_mov_b32 m0, s36")
        a("s_add_u32 s37, s27, s32")
        for n in range(4):
            a("buffer_load_dwordx4 v14, s[12:15], s27 offen offset:%d lds" % (n * 1024))
        a("s_add_u32 s36, s36, s32")
        a("s_mov_b32 m0, s36")
        a("s_mov_b64 exec, 0xffffffff")
        a("buffer_load_dwordx4 v14, s[12:15], s37 offen lds")
        a("s_mov_b64 exec, -1")
        a("s_add_u32 s26, s26, 128")
        a("s_add_u32 s27, s27, 18432")
        a("s_add_u32 s33, s33, %d" % SLOT)
        a("s_cmp_eq_u32 s33, %d" % (R * SLOT))
        a("s_cselect_b32 s33, 0, s33")
    srd(a, 16, 88, 576 * 2048 * 2)
    srd(a, 84, 90, 576 * 2)
    a("s_lshl_b32 s43, s2, 2")
    a("s_add_u32 s43, s43, s3")
    a("s_and_b32 s53, s43, 1")
    a("s_sub_u32 s36, s43, 448")
    a("s_lshr_b32 s37, s43, 1")
    a("s_cmp_ge_u32 s43, 896")
    a("s_cselect_b32 s43, s36, s37")
    a("s_cselect_b32 s53, 2, s53")
    if "rampB" in DBG:
        issue(); issue()
        nconv = emit_conv_loads(a)
        a("s_waitcnt vmcnt(%d)" % (9 + nconv))
        a("s_barrier")
        issue(); issue()
        a("s_waitcnt vmcnt(%d)" % (18 + nconv))
        a("s_barrier")
    else:
        issue()
        nconv = emit_conv_loads(a)
        issue(); issue(); issue()
        a("s_waitcnt vmcnt(%d)" % (27 + nconv))
        a("s_barrier")
        a("s_waitcnt vmcnt(18)")
        a("s_barrier")
    a("s_add_u32 s3, s3, 4"); stamp_setup(a, 2); stamp(a, 0); a("s_sub_u32 s3, s3, 4")
    a("s_waitcnt vmcnt(9)")
    a("s_barrier")
    a("s_mov_b32 s34, 1")
    a.label("%s_lloop" % name)
    issue()
    a("s_waitcnt vmcnt(9)")
    a("s_barrier")
    a("s_add_u32 s34, s34, 1")
    a("s_cmp_lt_u32 s34, %d" % (NST - R + 1))
    a("s_cbranch_scc1 %s_lloop" % name)
    a("s_waitcnt vmcnt(0) lgkmcnt(0)")
    a("s_barrier")
    stamp(a, 1)
    a("s_mov_b32 s26, s53")
    a("s_and_b32 s27, s3, 1")
    a("s_mul_i32 s27, s27, %d" % CJ_SIZE)
    a("s_lshr_b32 s36, s3, 1")
    a("s_mul_i32 s36, s36, %d" % SLOT)
    a("s_add_u32 s27, s27, s36")
    def mid():
        if "warm2" in DBG:
            a("s_cmp_eq_u32 s99, 1")
            a("s_cbranch_scc1 %s_midskip" % name)
        a("s_barrier")
        a("s_setprio 0")
        a.label("%s_midskip" % name)
    a.label("%s_cjstart" % name)
    if "noconv" in DBG:
        mid()
    else:
        emit_conv_job(a, name, mid)
        G.stamp_rt(a, 1)
    a("s_branch %s_end" % name)
    a.label("%s_consumer" % name)
    a("s_load_dwordx2 s[92:93], s[0:1], 72")
    a("s_load_dwordx2 s[94:95], s[0:1], 80")
    ACC = 128; FB = [16, 52]
    vTa = [4, 5]; vTb = [6, 7]; vF = 8; vFh = 9
    bTa = [88, 89]; bTb = [90, 91]; bF = 92; bFh = 93
    Z1R = 200; BI = 236
    a("s_lshr_b32 s24, s3, 1")
    a("s_and_b32 s25, s3, 1")
    a("v_and_b32 v3, 15, v2")
    a("v_lshrrev_b32 v10, 4, v2")
    a("v_lshrrev_b32 v11, 1, v3")
    a("v_xor_b32 v10, v10, v11")
    a("v_lshlrev_b32 v10, 4, v10")
    a("v_lshl_add_u32 v10, v3, 7, v10")
    a("s_lshl_b32 s26, s24, 13")
    a("v_add_u32 v10, s26, v10")
    a("s_lshl_b32 s26, s25, 12")
    a("v_add_u32 v%d, s26, v10" % bTa[0])
    a("s_xor_b32 s26, s26, 4096")
    a("v_add_u32 v%d, s26, v10" % bTb[0])
    a("v_xor_b32 v%d, 64, v%d" % (bTa[1], bTa[0]))
    a("v_xor_b32 v%d, 64, v%d" % (bTb[1], bTb[0]))
    a("v_lshrrev_b32 v10, 2, v2")
    a("v_mul_u32_u24 v10, %d, v10" % FS)
    a("v_and_b32 v11, 3, v2")
    a("v_lshl_add_u32 v10, v11, 3, v10")
    a("v_add_u32 v10, %d, v10" % TREG)
    a("s_mul_i32 s26, s25, 160")
    a("v_add_u32 v%d, s26, v10" % bF)
    a("v_add_u32 v%d, 128, v10" % bFh)
    for d, s_ in ((vTa[0], bTa[0]), (vTb[0], bTb[0]), (vTa[1], bTa[1]), (vTb[1], bTb[1]), (vF, bF), (vFh, bFh)):
        a("v_mov_b32 v%d, v%d" % (d, s_))
    a("s_waitcnt lgkmcnt(0)")
    srd(a, 12, 6, WS_BYTES)
    srd(a, 28, 92, 2048 * 2)
    if "wot2" in DBG:
        srd(a, 76, 94, 2304 * 576 * 2)
        a("s_mov_b32 s42, s2")
        emit_wot_loads(a, 96, 108, 720, 3)
    stamp_setup(a, 2); stamp(a, 0)
    a("s_mov_b32 s99, 0")
    for r in range(ACC, ACC + 72): a("v_mov_b32 v%d, 0" % r)
    a("s_mov_b32 s27, 0")
    a("s_mov_b32 s33, 0")
    core = G.Core(a, ACC, FB[0], FB[1], FS, TREG, vTa, vTb, vF, vFh)
    trk = core.trk
    a("s_barrier")
    stamp(a, 1)
    core.prime(0, core.reads(0, 0))
    def phase(buf, pend):
        for (m, regs) in core.mfmas(buf):
            trk.need(regs)
            a(m)
            while pend:
                k, t = pend.pop(0)
                if k == "x":
                    a(t)
                    if t.startswith("s_"): continue
                else:
                    a(t[0]); trk.issue(t[1])
                break
        for k, t in pend:
            if k == "x": a(t)
            else: a(t[0]); trk.issue(t[1])
    def iteration(extra=None):
        a("s_barrier")
        rd = [("r", t) for t in core.reads(1, 1)]
        upd = ["s_add_u32 s27, s27, %d" % SLOT, "s_cmp_eq_u32 s27, %d" % (R * SLOT), "s_cselect_b32 s27, 0, s27"]
        tail = ["v_add_u32 v%d, s27, v%d" % (d, s_) for d, s_ in ((vTa[0], bTa[0]), (vF, bF), (vTb[0], bTb[0]), (vFh, bFh))]
        phase(0, rd[:1] + [("x", u) for u in upd] + rd[1:] + [("x", u) for u in tail])
        rd = [("r", t) for t in core.reads(0, 0)]
        tail = ["v_add_u32 v%d, s27, v%d" % (d, s_) for d, s_ in ((vTa[1], bTa[1]), (vTb[1], bTb[1]))] + ["s_add_u32 s33, s33, 1"]
        phase(1, rd + [("x", u) for u in tail])
    a.label("%s_cloop" % name)
    lb = len(a.lines); iteration(); st = copy.deepcopy(trk.out); del a.lines[lb:]; trk.out = copy.deepcopy(st)
    iteration()
    assert [sorted(x) for x in trk.out] == [sorted(x) for x in st]
    a("s_cmp_lg_u32 s33, 24")
    a("s_cbranch_scc1 %s_noz" % name)
    if "wot2" in DBG:
        a("s_mov_b32 s35, 0x%x" % WOT)
        a("s_waitcnt vmcnt(0)")
        for n in range(3):
            a("buffer_store_dwordx4 %s, v%d, s[12:15], s35 offen" % (vr(96 + 4 * n), 108 + n))
    a("s_lshl_b32 s35, s22, 4")
    a("s_add_u32 s35, s35, s23")
    a("s_lshl_b32 s35, s35, 2")
    a("s_add_u32 s35, s35, s3")
    a("s_mul_i32 s35, s35, 9216")
    a("s_add_u32 s35, s35, 0x%x" % Z1IMG)
    a("v_lshlrev_b32 v10, 4, v2")
    for q in range(9):
        if q in (4, 8): a("s_add_u32 s35, s35, 4096")
        a("buffer_load_dwordx4 %s, v10, s[12:15], s35 offen offset:%d" % (vr(Z1R + 4 * q), (q & 3) * 1024))
    a("s_lshl_b32 s36, s22, 7")
    a("s_lshl_b32 s37, s24, 6")
    a("s_add_u32 s36, s36, s37")
    a("v_lshlrev_b32 v11, 1, v3")
    a("s_lshl_b32 s37, s25, 6")
    a("s_lshl_b32 s38, s36, 1")
    a("s_add_u32 s39, s38, s37")
    a("s_xor_b32 s37, s37, 64")
    a("s_add_u32 s40, s38, s37")
    a("buffer_load_ushort v%d, v11, s[28:31], s39 offen" % (BI + 0))
    a("buffer_load_ushort v%d, v11, s[28:31], s39 offen offset:32" % (BI + 2))
    a("buffer_load_ushort v%d, v11, s[28:31], s40 offen" % (BI + 4))
    a("buffer_load_ushort v%d, v11, s[28:31], s40 offen offset:32" % (BI + 6))
    a.label("%s_noz" % name)
    a("s_cmp_lt_u32 s33, %d" % NST)
    a("s_cbranch_scc1 %s_cloop" % name)
    trk.drain()
    stamp(a, 2)
    a.label("%s_epi" % name)
    a("v_lshrrev_b32 v10, 4, v2")
    a("v_and_b32 v11, 1, v10")
    a("v_lshrrev_b32 v12, 1, v10")
    a("v_lshl_add_u32 v12, v11, 1, v12")
    a("s_mul_i32 s35, s23, 18")
    a("s_mul_i32 s36, s25, 10")
    a("s_add_u32 s36, s36, s35")
    a("v_lshrrev_b32 v13, 1, v3")
    a("s_lshl_b32 s37, s22, 1")
    a("s_add_u32 s37, s37, s24")
    a("s_mul_i32 s37, s37, %d" % (36 * 8192))
    a("s_add_u32 s37, s37, 0x%x" % PIMG)
    a("s_lshl_b32 s38, s25, 12")
    a("s_add_u32 s39, s37, s38")
    a("s_xor_b32 s38, s38, 4096")
    a("s_add_u32 s40, s37, s38")
    def addr(dst, pv):
        a("v_lshrrev_b32 v14, 3, v%d" % pv)
        a("v_lshlrev_b32 v14, 13, v14")
        a("v_and_b32 v15, 7, v%d" % pv)
        a("v_xor_b32 v15, v15, v13")
        a("v_lshl_add_u32 v14, v15, 4, v14")
        a("v_lshl_add_u32 v%d, v3, 7, v14" % dst)
    a("v_add_u32 v16, s36, v12"); addr(4, 16)
    a("v_add_u32 v16, 4, v16"); addr(5, 16)
    a("v_lshrrev_b32 v16, 1, v10")
    a("s_add_u32 s35, s35, 8")
    a("v_add_u32 v16, s35, v16"); addr(6, 16)
    a("v_lshl_add_u32 v6, v11, 11, v6")
    a("s_waitcnt vmcnt(0)")
    for tt in range(4):
        a("v_lshlrev_b32 v%d, 16, v%d" % (BI + 2 * tt, BI + 2 * tt))
    stamp(a, 3)
    def ptiles(lst, O):
        T = 24
        for q, (ft, tt) in enumerate(lst):
            c = core.accr(ft, tt)
            for h in (0, 2):
                a("v_pk_add_f32 %s, %s, %s op_sel_hi:[1,0]" % (vr(c + h, 2), vr(c + h, 2), vr(BI + 2 * tt, 2)))
        for q, (ft, tt) in enumerate(lst):
            c = core.accr(ft, tt)
            a("v_cvt_pk_bf16_f32 v%d, v%d, v%d" % (T + 2 * q, c, c + 1))
            a("v_cvt_pk_bf16_f32 v%d, v%d, v%d" % (T + 2 * q + 1, c + 2, c + 3))
        for q, (ft, tt) in enumerate(lst):
            c = core.accr(ft, tt); z = Z1R + 2 * tidx(ft, tt)
            for d in range(2):
                a("v_lshlrev_b32 v%d, 16, v%d" % (c + 2 * d, T + 2 * q + d))
                a("v_and_b32 v%d, 0xffff0000, v%d" % (c + 2 * d + 1, T + 2 * q + d))
                a("v_lshlrev_b32 v%d, 16, v%d" % (T + 4 + 4 * q + 2 * d, z + d))
                a("v_and_b32 v%d, 0xffff0000, v%d" % (T + 5 + 4 * q + 2 * d, z + d))
        for q, (ft, tt) in enumerate(lst):
            c = core.accr(ft, tt)
            for h in (0, 2):
                a("v_pk_mul_f32 %s, %s, %s" % (vr(c + h, 2), vr(c + h, 2), vr(T + 4 + 4 * q + h, 2)))
        for q, (ft, tt) in enumerate(lst):
            c = core.accr(ft, tt)
            a("v_cvt_pk_bf16_f32 v%d, v%d, v%d" % (O + 2 * q, c, c + 1))
            a("v_cvt_pk_bf16_f32 v%d, v%d, v%d" % (O + 2 * q + 1, c + 2, c + 3))
        a("s_nop 1")
        a("v_permlane16_swap_b32 v%d, v%d" % (O, O + 2))
        a("v_permlane16_swap_b32 v%d, v%d" % (O + 1, O + 3))
        a("s_nop 0")
    cnt = 0
    for pr in range(2):
        for tt in range(4):
            O = 40 + 4 * cnt; cnt += 1
            ptiles([(2 * pr, tt), (2 * pr + 1, tt)], O)
            a("buffer_store_dwordx4 %s, v%d, s[12:15], s%d offen offset:%d" % (vr(O), 4 + pr, 39 if tt < 2 else 40, (tt & 1) * 2048))
    O = 40 + 4 * cnt
    ptiles([(4, 0), (4, 1)], O)
    a("buffer_store_dwordx4 %s, v6, s[12:15], s39 offen" % vr(O))
    seg_end2(a, name)
    stamp(a, 4)
    G.stamp_rt(a, 1)
    a.label("%s_end" % name)
    a("s_endpgm")
    return a.text(), kernel_desc(name, 256, 256), (name, 256, 512, R * SLOT)


def gen_k2c(name="k2_kernel", R=4):
    a = Asm()
    SLOT = 34816; TREG = 16384; FS = 288; NST = 32
    kernel_begin(a, name)
    a("s_load_dwordx2 s[4:5], s[0:1], 64")
    a("s_load_dwordx2 s[6:7], s[0:1], 104")
    a("s_load_dwordx4 s[88:91], s[0:1], 32")
    a("s_load_dwordx2 s[80:81], s[0:1], 0")
    a("s_load_dwordx2 s[82:83], s[0:1], 56")
    a("s_cmp_ge_u32 s2, 256")
    a("s_cbranch_scc1 %s_end" % name)
    a("v_lshrrev_b32 v1, 6, v0")
    a("v_and_b32 v2, 63, v0")
    a("v_readfirstlane_b32 s3, v1")
    G2.tile_ij(a)
    a("s_cmp_lt_u32 s3, 4")
    a("s_cbranch_scc1 %s_consumer" % name)
    if "noprio" not in DBG: a("s_setprio 3")
    a("s_sub_u32 s3, s3, 4")
    a("v_lshrrev_b32 v3, 3, v2")
    a("s_lshl_b32 s24, s3, 5")
    a("v_add_u32 v3, s24, v3")
    a("v_and_b32 v4, 7, v2")
    a("v_lshrrev_b32 v6, 4, v2")
    a("v_xor_b32 v6, v6, v4")
    a("v_lshlrev_b32 v6, 4, v6")
    a("v_lshl_add_u32 v10, v3, 12, v6")
    a("v_xor_b32 v11, 64, v10")
    a("v_add_u32 v11, %d, v11" % (32768 - 1024))
    a("v_add_u32 v12, %d, v10" % (2 * (32768 - 1024)))
    a("v_add_u32 v13, %d, v11" % (2 * (32768 - 1024)))
    a("v_lshlrev_b32 v14, 4, v2")
    a("s_lshl_b32 s26, s22, 19")
    a("s_mul_i32 s27, s23, %d" % (32 * 18432))
    a("s_lshl_b32 s24, s3, 12")
    a("s_add_u32 s27, s27, s24")
    if ZIMG: a("s_add_u32 s27, s27, 0x%x" % ZIMG)
    a("s_lshl_b32 s25, s3, 9")
    a("s_sub_u32 s32, s25, s24")
    a("s_add_u32 s32, s32, 16384")
    a("s_mov_b32 s33, 0")
    a("s_waitcnt lgkmcnt(0)")
    srd(a, 8, 4, 2048 * 2048 * 2)
    srd(a, 12, 6, WS_BYTES)
    def issue():
        a("s_add_u32 s35, s33, s24")
        a("s_mov_b32 m0, s35")
        a("s_add_u32 s36, s35, %d" % TREG)
        for n in range(4):
            a("buffer_load_dwordx4 v%d, s[8:11], s26 offen offset:%d lds" % (10 + n, n * 1024))
        a("s_mov_b32 m0, s36")
        a("s_add_u32 s37, s27, s32")
        for n in range(4):
            a("buffer_load_dwordx4 v14, s[12:15], s27 offen offset:%d lds" % (n * 1024))
        a("s_add_u32 s36, s36, s32")
        a("s_mov_b32 m0, s36")
        a("s_mov_b64 exec, 0xffffffff")
        a("buffer_load_dwordx4 v14, s[12:15], s37 offen lds")
        a("s_mov_b64 exec, -1")
        a("s_add_u32 s26, s26, 128")
        a("s_add_u32 s27, s27, 18432")
        a("s_add_u32 s33, s33, %d" % SLOT)
        a("s_cmp_eq_u32 s33, %d" % (R * SLOT))
        a("s_cselect_b32 s33, 0, s33")
    srd(a, 16, 88, 576 * 2048 * 2)
    srd(a, 84, 90, 576 * 2)
    a("s_lshl_b32 s43, s2, 2")
    a("s_add_u32 s43, s43, s3")
    a("s_and_b32 s53, s43, 1")
    a("s_sub_u32 s36, s43, 448")
    a("s_lshr_b32 s37, s43, 1")
    a("s_cmp_ge_u32 s43, 896")
    a("s_cselect_b32 s43, s36, s37")
    a("s_cselect_b32 s53, 2, s53")
    VT = 16; VF = 20
    srd(a, 64, 80, 2048 * 576 * 2)
    srd(a, 68, 82, 576 * 4608 * 2)
    a("v_mul_u32_u24 v5, 1152, v3")
    a("v_add_u32 v%d, v5, v6" % VT)
    a("v_xor_b32 v%d, 64, v%d" % (VT + 1, VT))
    a("v_add_u32 v%d, %d, v%d" % (VT + 1, 9216 - 1024, VT + 1))
    a("v_add_u32 v%d, %d, v%d" % (VT + 2, 2 * (9216 - 1024), VT))
    a("v_add_u32 v%d, %d, v%d" % (VT + 3, 2 * (9216 - 1024), VT + 1))
    a("s_mul_i32 s72, s22, %d" % (128 * 1152))
    a("s_mul_i32 s73, s23, 288")
    a("s_add_u32 s74, s25, %d" % (TREG + 16384))
    def issueT1(g):
        a("s_add_u32 s35, s24, %d" % ((g % R) * SLOT))
        a("s_mov_b32 m0, s35")
        a("s_add_u32 s36, s72, %d" % (128 * g))
        for n in range(4):
            a("buffer_load_dwordx4 v%d, s[64:67], s36 offen offset:%d lds" % (VT + n, 1024 * n))
    def issueF1(g):
        a("s_add_u32 s35, s24, %d" % ((g % R) * SLOT + TREG))
        a("s_mov_b32 m0, s35")
        a("s_add_u32 s36, s73, %d" % (64 * 9216 * g))
        for n in range(4):
            a("buffer_load_dwordx4 v%d, s[68:71], s36 offen offset:%d lds" % (VF + n, 1024 * n))
        a("s_add_u32 s35, s74, %d" % ((g % R) * SLOT))
        a("s_mov_b32 m0, s35")
        a("s_mov_b64 exec, 0xffffffff")
        a("buffer_load_dwordx4 v%d, s[68:71], s36 offen lds" % (VF + 4))
        a("s_mov_b64 exec, -1")
    issueT1(0)
    for n in range(5):
        if n < 4:
            a("s_lshl_b32 s36, s3, 8")
            a("s_add_u32 s36, s36, %d" % (64 * n))
        else:
            a("s_lshl_b32 s36, s3, 5")
            a("s_add_u32 s36, s36, 1024")
        a("v_add_u32 v6, s36, v2")
        a("v_mul_u32_u24 v7, 3641, v6")
        a("v_lshrrev_b32 v7, 16, v7")
        a("v_mul_u32_u24 v8, 18, v7")
        a("v_sub_u32 v8, v6, v8")
        a("v_and_b32 v9, 35, v7")
        a("v_bfe_u32 v6, v7, 2, 2")
        a("v_lshl_add_u32 v9, v6, 3, v9")
        a("v_bfe_u32 v6, v7, 4, 1")
        a("v_lshl_add_u32 v9, v6, 2, v9")
        a("v_mul_u32_u24 v9, 9216, v9")
        a("v_lshl_add_u32 v%d, v8, 4, v9" % (VF + n))
        if 0 < n < 4: a("v_subrev_u32 v%d, %d, v%d" % (VF + n, 1024 * n, VF + n))
    issueF1(0)
    for g in (1, 2, 3): issueT1(g); issueF1(g)
    nconv = emit_conv_loads(a)
    a("s_waitcnt vmcnt(%d)" % (27 + nconv))
    a("s_barrier")
    a("s_waitcnt vmcnt(%d)" % (18 + nconv))
    a("s_barrier")
    a("s_add_u32 s3, s3, 4"); stamp_setup(a, 2); stamp(a, 0); a("s_sub_u32 s3, s3, 4")
    a("s_waitcnt vmcnt(%d)" % (9 + nconv))
    a("s_barrier")
    for kk in range(1, 6):
        issueT1(kk + 3); issueF1(kk + 3)
        a("s_waitcnt vmcnt(%d)" % (9 + (nconv if kk == 1 else 0)))
        a("s_barrier")
    a("s_mov_b32 s33, %d" % ((9 % R) * SLOT))
    a("s_mov_b32 s34, 0")
    a.label("%s_lloop" % name)
    issue()
    a("s_waitcnt vmcnt(9)")
    a("s_barrier")
    a("s_add_u32 s34, s34, 1")
    a("s_cmp_lt_u32 s34, 32")
    a("s_cbranch_scc1 %s_lloop" % name)
    a("s_waitcnt vmcnt(0) lgkmcnt(0)")
    a("s_barrier")
    stamp(a, 1)
    a("s_mov_b32 s26, s53")
    a("s_and_b32 s27, s3, 1")
    a("s_mul_i32 s27, s27, %d" % CJ_SIZE)
    a("s_lshr_b32 s36, s3, 1")
    a("s_add_u32 s36, s36, 1")
    a("s_mul_i32 s36, s36, %d" % SLOT)
    a("s_add_u32 s27, s27, s36")
    def mid():
        if "warm2" in DBG:
            a("s_cmp_eq_u32 s99, 1")
            a("s_cbranch_scc1 %s_midskip" % name)
        a("s_barrier")
        a("s_setprio 0")
        a.label("%s_midskip" % name)
    a.label("%s_cjstart" % name)
    if "noconv" in DBG:
        mid()
    else:
        emit_conv_job(a, name, mid)
        G.stamp_rt(a, 1)
    a("s_branch %s_end" % name)
    a.label("%s_consumer" % name)
    a("s_load_dwordx2 s[92:93], s[0:1], 72")
    a("s_load_dwordx2 s[94:95], s[0:1], 80")
    ACC = 128; FB = [16, 52]
    vTa = [4, 5]; vTb = [6, 7]; vF = 8; vFh = 9
    bTa = [88, 89]; bTb = [90, 91]; bF = 92; bFh = 93
    Z1R = 200; BI = 236
    a("s_lshr_b32 s24, s3, 1")
    a("s_and_b32 s25, s3, 1")
    a("v_and_b32 v3, 15, v2")
    a("v_lshrrev_b32 v10, 4, v2")
    a("v_lshrrev_b32 v11, 1, v3")
    a("v_xor_b32 v10, v10, v11")
    a("v_lshlrev_b32 v10, 4, v10")
    a("v_lshl_add_u32 v10, v3, 7, v10")
    a("s_lshl_b32 s26, s24, 13")
    a("v_add_u32 v10, s26, v10")
    a("s_lshl_b32 s26, s25, 12")
    a("v_add_u32 v%d, s26, v10" % bTa[0])
    a("s_xor_b32 s26, s26, 4096")
    a("v_add_u32 v%d, s26, v10" % bTb[0])
    a("v_xor_b32 v%d, 64, v%d" % (bTa[1], bTa[0]))
    a("v_xor_b32 v%d, 64, v%d" % (bTb[1], bTb[0]))
    a("v_lshrrev_b32 v10, 2, v2")
    a("v_mul_u32_u24 v10, %d, v10" % FS)
    a("v_and_b32 v11, 3, v2")
    a("v_lshl_add_u32 v10, v11, 3, v10")
    a("v_add_u32 v10, %d, v10" % TREG)
    a("s_mul_i32 s26, s25, 160")
    a("v_add_u32 v%d, s26, v10" % bF)
    a("v_add_u32 v%d, 128, v10" % bFh)
    for d, s_ in ((vTa[0], bTa[0]), (vTb[0], bTb[0]), (vTa[1], bTa[1]), (vTb[1], bTb[1]), (vF, bF), (vFh, bFh)):
        a("v_mov_b32 v%d, v%d" % (d, s_))
    a("s_waitcnt lgkmcnt(0)")
    srd(a, 12, 6, WS_BYTES)
    srd(a, 28, 92, 2048 * 2)
    srd(a, 76, 94, 2304 * 576 * 2)
    a("s_mov_b32 s42, s2")
    emit_wot_loads(a, 240, 252, 720, 3)
    MR = 100; CS = 108; ONE = 96
    a("s_lshl_b32 s36, s22, 7")
    a("s_lshl_b32 s37, s24, 6")
    a("s_add_u32 s36, s36, s37")
    a("s_lshl_b32 s36, s36, 3")
    a("s_add_u32 s36, s36, 0x%x" % STATS1)
    a("s_lshl_b32 s37, s25, 8")
    a("s_add_u32 s38, s36, s37")
    a("s_xor_b32 s37, s37, 256")
    a("s_add_u32 s39, s36, s37")
    a("v_lshlrev_b32 v10, 3, v3")
    a("buffer_load_dwordx2 %s, v10, s[12:15], s38 offen" % vr(MR, 2))
    a("buffer_load_dwordx2 %s, v10, s[12:15], s38 offen offset:128" % vr(MR + 2, 2))
    a("buffer_load_dwordx2 %s, v10, s[12:15], s39 offen" % vr(MR + 4, 2))
    a("buffer_load_dwordx2 %s, v10, s[12:15], s39 offen offset:128" % vr(MR + 6, 2))
    for r in range(CS, CS + 20): a("v_mov_b32 v%d, 0" % r)
    for r in range(ONE, ONE + 4): a("v_mov_b32 v%d, 0x3f803f80" % r)
    stamp_setup(a, 2); stamp(a, 0)
    a("s_mov_b32 s99, 0")
    for r in range(ACC, ACC + 72): a("v_mov_b32 v%d, 0" % r)
    a("s_mov_b32 s27, 0")
    a("s_mov_b32 s33, 0")
    core = G.Core(a, ACC, FB[0], FB[1], FS, TREG, vTa, vTb, vF, vFh)
    trk = core.trk
    a("s_barrier")
    stamp(a, 1)
    core.prime(0, core.reads(0, 0))
    withcs = [True]
    def mfmas(buf):
        L = []
        for ft in range(5):
            A = core.F(buf, ft)
            for tt in range(4 if ft < 4 else 2):
                c = core.accr(ft, tt); B = core.T(buf, tt)
                L.append(("v_mfma_f32_16x16x32_bf16 %s, %s, %s, %s" % (vr(c), vr(A), vr(B), vr(c)), list(range(A, A + 4)) + list(range(B, B + 4))))
            if withcs[0]:
                L.append(("v_mfma_f32_16x16x32_bf16 %s, %s, %s, %s" % (vr(CS + 4 * ft), vr(A), vr(ONE), vr(CS + 4 * ft)), list(range(A, A + 4))))
        return L
    def phase(buf, pend):
        for (m, regs) in mfmas(buf):
            trk.need(regs)
            a(m)
            while pend:
                k, t = pend.pop(0)
                if k == "x":
                    a(t)
                    if t.startswith("s_"): continue
                else:
                    a(t[0]); trk.issue(t[1])
                break
        for k, t in pend:
            if k == "x": a(t)
            else: a(t[0]); trk.issue(t[1])
    def iteration(extra=None):
        a("s_barrier")
        rd = [("r", t) for t in core.reads(1, 1)]
        upd = ["s_add_u32 s27, s27, %d" % SLOT, "s_cmp_eq_u32 s27, %d" % (R * SLOT), "s_cselect_b32 s27, 0, s27"]
        tail = ["v_add_u32 v%d, s27, v%d" % (d, s_) for d, s_ in ((vTa[0], bTa[0]), (vF, bF), (vTb[0], bTb[0]), (vFh, bFh))]
        phase(0, rd[:1] + [("x", u) for u in upd] + rd[1:] + [("x", u) for u in tail])
        rd = [("r", t) for t in core.reads(0, 0)]
        tail = ["v_add_u32 v%d, s27, v%d" % (d, s_) for d, s_ in ((vTa[1], bTa[1]), (vTb[1], bTb[1]))] + ["s_add_u32 s33, s33, 1"]
        phase(1, rd + [("x", u) for u in tail])
    trk.drain()
    a.label("%s_zloop" % name)
    lb = len(a.lines); iteration(); st = copy.deepcopy(trk.out); del a.lines[lb:]; trk.out = copy.deepcopy(st)
    iteration()
    assert [sorted(x) for x in trk.out] == [sorted(x) for x in st]
    a("s_cmp_lt_u32 s33, 9")
    a("s_cbranch_scc1 %s_zloop" % name)
    trk.drain()
    stamp(a, 5)
    gelu_consts(a)
    a("s_waitcnt vmcnt(0)")
    for tt in range(4): a("v_sub_f32 v%d, 0, v%d" % (MR + 2 * tt, MR + 2 * tt))
    a("s_mov_b32 s35, 0x%x" % WOT)
    for n in range(3):
        a("buffer_store_dwordx4 %s, v%d, s[12:15], s35 offen" % (vr(240 + 4 * n), 252 + n))
    for ft in range(5):
        tts = range(4 if ft < 4 else 2)
        emit_fold_gelu(a, [(core.accr(ft, tt), CS + 4 * ft, MR + 2 * tt, Z1R + 2 * tidx(ft, tt)) for tt in tts], 56)
    for r in range(ACC, ACC + 72): a("v_mov_b32 v%d, 0" % r)
    a("s_mov_b32 s33, 0")
    stamp(a, 6)
    withcs[0] = False
    a.label("%s_cloop" % name)
    lb = len(a.lines); iteration(); st = copy.deepcopy(trk.out); del a.lines[lb:]; trk.out = copy.deepcopy(st)
    iteration()
    assert [sorted(x) for x in trk.out] == [sorted(x) for x in st]
    a("s_cmp_lg_u32 s33, 24")
    a("s_cbranch_scc1 %s_noz" % name)
    a("s_lshl_b32 s36, s22, 7")
    a("s_lshl_b32 s37, s24, 6")
    a("s_add_u32 s36, s36, s37")
    a("v_lshlrev_b32 v11, 1, v3")
    a("s_lshl_b32 s37, s25, 6")
    a("s_lshl_b32 s38, s36, 1")
    a("s_add_u32 s39, s38, s37")
    a("s_xor_b32 s37, s37, 64")
    a("s_add_u32 s40, s38, s37")
    a("buffer_load_ushort v%d, v11, s[28:31], s39 offen" % (BI + 0))
    a("buffer_load_ushort v%d, v11, s[28:31], s39 offen offset:32" % (BI + 2))
    a("buffer_load_ushort v%d, v11, s[28:31], s40 offen" % (BI + 4))
    a("buffer_load_ushort v%d, v11, s[28:31], s40 offen offset:32" % (BI + 6))
    a.label("%s_noz" % name)
    a("s_cmp_lt_u32 s33, %d" % NST)
    a("s_cbranch_scc1 %s_cloop" % name)
    trk.drain()
    stamp(a, 2)
    a.label("%s_epi" % name)
    a("v_lshrrev_b32 v10, 4, v2")
    a("v_and_b32 v11, 1, v10")
    a("v_lshrrev_b32 v12, 1, v10")
    a("v_lshl_add_u32 v12, v11, 1, v12")
    a("s_mul_i32 s35, s23, 18")
    a("s_mul_i32 s36, s25, 10")
    a("s_add_u32 s36, s36, s35")
    a("v_lshrrev_b32 v13, 1, v3")
    a("s_lshl_b32 s37, s22, 1")
    a("s_add_u32 s37, s37, s24")
    a("s_mul_i32 s37, s37, %d" % (36 * 8192))
    a("s_add_u32 s37, s37, 0x%x" % PIMG)
    a("s_lshl_b32 s38, s25, 12")
    a("s_add_u32 s39, s37, s38")
    a("s_xor_b32 s38, s38, 4096")
    a("s_add_u32 s40, s37, s38")
    def addr(dst, pv):
        a("v_lshrrev_b32 v14, 3, v%d" % pv)
        a("v_lshlrev_b32 v14, 13, v14")
        a("v_and_b32 v15, 7, v%d" % pv)
        a("v_xor_b32 v15, v15, v13")
        a("v_lshl_add_u32 v14, v15, 4, v14")
        a("v_lshl_add_u32 v%d, v3, 7, v14" % dst)
    a("v_add_u32 v16, s36, v12"); addr(4, 16)
    a("v_add_u32 v16, 4, v16"); addr(5, 16)
    a("v_lshrrev_b32 v16, 1, v10")
    a("s_add_u32 s35, s35, 8")
    a("v_add_u32 v16, s35, v16"); addr(6, 16)
    a("v_lshl_add_u32 v6, v11, 11, v6")
    a("s_waitcnt vmcnt(0)")
    for tt in range(4):
        a("v_lshlrev_b32 v%d, 16, v%d" % (BI + 2 * tt, BI + 2 * tt))
    stamp(a, 3)
    def ptiles(lst, O):
        T = 24
        for q, (ft, tt) in enumerate(lst):
            c = core.accr(ft, tt)
            for h in (0, 2):
                a("v_pk_add_f32 %s, %s, %s op_sel_hi:[1,0]" % (vr(c + h, 2), vr(c + h, 2), vr(BI + 2 * tt, 2)))
        for q, (ft, tt) in enumerate(lst):
            c = core.accr(ft, tt)
            a("v_cvt_pk_bf16_f32 v%d, v%d, v%d" % (T + 2 * q, c, c + 1))
            a("v_cvt_pk_bf16_f32 v%d, v%d, v%d" % (T + 2 * q + 1, c + 2, c + 3))
        for q, (ft, tt) in enumerate(lst):
            c = core.accr(ft, tt); z = Z1R + 2 * tidx(ft, tt)
            for d in range(2):
                a("v_lshlrev_b32 v%d, 16, v%d" % (c + 2 * d, T + 2 * q + d))
                a("v_and_b32 v%d, 0xffff0000, v%d" % (c + 2 * d + 1, T + 2 * q + d))
                a("v_lshlrev_b32 v%d, 16, v%d" % (T + 4 + 4 * q + 2 * d, z + d))
                a("v_and_b32 v%d, 0xffff0000, v%d" % (T + 5 + 4 * q + 2 * d, z + d))
        for q, (ft, tt) in enumerate(lst):
            c = core.accr(ft, tt)
            for h in (0, 2):
                a("v_pk_mul_f32 %s, %s, %s" % (vr(c + h, 2), vr(c + h, 2), vr(T + 4 + 4 * q + h, 2)))
        for q, (ft, tt) in enumerate(lst):
            c = core.accr(ft, tt)
            a("v_cvt_pk_bf16_f32 v%d, v%d, v%d" % (O + 2 * q, c, c + 1))
            a("v_cvt_pk_bf16_f32 v%d, v%d, v%d" % (O + 2 * q + 1, c + 2, c + 3))
        a("s_nop 1")
        a("v_permlane16_swap_b32 v%d, v%d" % (O, O + 2))
        a("v_permlane16_swap_b32 v%d, v%d" % (O + 1, O + 3))
        a("s_nop 0")
    cnt = 0
    for pr in range(2):
        for tt in range(4):
            O = 40 + 4 * cnt; cnt += 1
            ptiles([(2 * pr, tt), (2 * pr + 1, tt)], O)
            a("buffer_store_dwordx4 %s, v%d, s[12:15], s%d offen offset:%d" % (vr(O), 4 + pr, 39 if tt < 2 else 40, (tt & 1) * 2048))
    O = 40 + 4 * cnt
    ptiles([(4, 0), (4, 1)], O)
    a("buffer_store_dwordx4 %s, v6, s[12:15], s39 offen" % vr(O))
    seg_end2(a, name)
    stamp(a, 4)
    G.stamp_rt(a, 1)
    a.label("%s_end" % name)
    a("s_endpgm")
    return a.text(), kernel_desc(name, 256, 256), (name, 256, 512, R * SLOT)


def gen_k2d(name="k2_kernel", R=4):
    a = Asm()
    SLOT = 34816; TREG = 16384; FS = 288; NST = 32
    kernel_begin(a, name)
    a("s_load_dwordx2 s[4:5], s[0:1], 64")
    a("s_load_dwordx2 s[6:7], s[0:1], 104")
    a("s_load_dwordx4 s[88:91], s[0:1], 32")
    a("s_load_dwordx2 s[80:81], s[0:1], 0")
    a("s_load_dwordx2 s[82:83], s[0:1], 56")
    a("s_load_dwordx2 s[56:57], s[0:1], 96")
    a("s_cmp_ge_u32 s2, 256")
    a("s_cbranch_scc1 %s_end" % name)
    a("v_lshrrev_b32 v1, 6, v0")
    a("v_and_b32 v2, 63, v0")
    a("v_readfirstlane_b32 s3, v1")
    G2.tile_ij(a)
    a("s_cmp_lt_u32 s3, 4")
    a("s_cbranch_scc1 %s_consumer" % name)
    if "noprio" not in DBG: a("s_setprio 3")
    a("s_sub_u32 s3, s3, 4")
    a("v_lshrrev_b32 v3, 3, v2")
    a("s_lshl_b32 s24, s3, 5")
    a("v_add_u32 v3, s24, v3")
    a("v_and_b32 v4, 7, v2")
    a("v_lshrrev_b32 v6, 4, v2")
    a("v_xor_b32 v6, v6, v4")
    a("v_lshlrev_b32 v6, 4, v6")
    a("v_lshl_add_u32 v10, v3, 12, v6")
    a("v_xor_b32 v11, 64, v10")
    a("v_add_u32 v11, %d, v11" % (32768 - 1024))
    a("v_add_u32 v12, %d, v10" % (2 * (32768 - 1024)))
    a("v_add_u32 v13, %d, v11" % (2 * (32768 - 1024)))
    a("v_lshlrev_b32 v14, 4, v2")
    a("s_lshl_b32 s26, s22, 19")
    a("s_mul_i32 s27, s23, %d" % (32 * 18432))
    a("s_lshl_b32 s24, s3, 12")
    a("s_add_u32 s27, s27, s24")
    if ZIMG: a("s_add_u32 s27, s27, 0x%x" % ZIMG)
    a("s_lshl_b32 s25, s3, 9")
    a("s_sub_u32 s32, s25, s24")
    a("s_add_u32 s32, s32, 16384")
    a("s_mov_b32 s33, 0")
    a("s_waitcnt lgkmcnt(0)")
    srd(a, 8, 4, 2048 * 2048 * 2)
    srd(a, 12, 6, WS_BYTES)
    def issue():
        a("s_add_u32 s35, s33, s24")
        a("s_mov_b32 m0, s35")
        a("s_add_u32 s36, s35, %d" % TREG)
        for n in range(4):
            a("buffer_load_dwordx4 v%d, s[8:11], s26 offen offset:%d lds" % (10 + n, n * 1024))
        a("s_mov_b32 m0, s36")
        a("s_add_u32 s37, s27, s32")
        for n in range(4):
            a("buffer_load_dwordx4 v14, s[12:15], s27 offen offset:%d sc1 lds" % (n * 1024))
        a("s_add_u32 s36, s36, s32")
        a("s_mov_b32 m0, s36")
        a("s_mov_b64 exec, 0xffffffff")
        a("buffer_load_dwordx4 v14, s[12:15], s37 offen sc1 lds")
        a("s_mov_b64 exec, -1")
        a("s_add_u32 s26, s26, 128")
        a("s_add_u32 s27, s27, 18432")
        a("s_add_u32 s33, s33, %d" % SLOT)
        a("s_cmp_eq_u32 s33, %d" % (R * SLOT))
        a("s_cselect_b32 s33, 0, s33")
    srd(a, 16, 88, 576 * 2048 * 2)
    srd(a, 84, 90, 576 * 2)
    a("s_lshl_b32 s43, s2, 2")
    a("s_add_u32 s43, s43, s3")
    a("s_and_b32 s53, s43, 1")
    a("s_sub_u32 s36, s43, 448")
    a("s_lshr_b32 s37, s43, 1")
    a("s_cmp_ge_u32 s43, 896")
    a("s_cselect_b32 s43, s36, s37")
    a("s_cselect_b32 s53, 2, s53")
    VT = 16; VF = 20
    srd(a, 64, 80, 2048 * 576 * 2)
    srd(a, 68, 82, 576 * 4608 * 2)
    a("v_mul_u32_u24 v5, 1152, v3")
    a("v_add_u32 v%d, v5, v6" % VT)
    a("v_xor_b32 v%d, 64, v%d" % (VT + 1, VT))
    a("v_add_u32 v%d, %d, v%d" % (VT + 1, 9216 - 1024, VT + 1))
    a("v_add_u32 v%d, %d, v%d" % (VT + 2, 2 * (9216 - 1024), VT))
    a("v_add_u32 v%d, %d, v%d" % (VT + 3, 2 * (9216 - 1024), VT + 1))
    a("s_mul_i32 s72, s22, %d" % (128 * 1152))
    a("s_mul_i32 s73, s23, 288")
    a("s_add_u32 s74, s25, %d" % (TREG + 16384))
    def issueT1(g):
        a("s_add_u32 s35, s24, %d" % ((g % R) * SLOT))
        a("s_mov_b32 m0, s35")
        a("s_add_u32 s36, s72, %d" % (128 * g))
        for n in range(4):
            a("buffer_load_dwordx4 v%d, s[64:67], s36 offen offset:%d lds" % (VT + n, 1024 * n))
    def issueF1(g):
        a("s_add_u32 s35, s24, %d" % ((g % R) * SLOT + TREG))
        a("s_mov_b32 m0, s35")
        a("s_add_u32 s36, s73, %d" % (64 * 9216 * g))
        for n in range(4):
            a("buffer_load_dwordx4 v%d, s[68:71], s36 offen offset:%d lds" % (VF + n, 1024 * n))
        a("s_add_u32 s35, s74, %d" % ((g % R) * SLOT))
        a("s_mov_b32 m0, s35")
        a("s_mov_b64 exec, 0xffffffff")
        a("buffer_load_dwordx4 v%d, s[68:71], s36 offen lds" % (VF + 4))
        a("s_mov_b64 exec, -1")
    issueT1(0)
    for n in range(5):
        if n < 4:
            a("s_lshl_b32 s36, s3, 8")
            a("s_add_u32 s36, s36, %d" % (64 * n))
        else:
            a("s_lshl_b32 s36, s3, 5")
            a("s_add_u32 s36, s36, 1024")
        a("v_add_u32 v6, s36, v2")
        a("v_mul_u32_u24 v7, 3641, v6")
        a("v_lshrrev_b32 v7, 16, v7")
        a("v_mul_u32_u24 v8, 18, v7")
        a("v_sub_u32 v8, v6, v8")
        a("v_and_b32 v9, 35, v7")
        a("v_bfe_u32 v6, v7, 2, 2")
        a("v_lshl_add_u32 v9, v6, 3, v9")
        a("v_bfe_u32 v6, v7, 4, 1")
        a("v_lshl_add_u32 v9, v6, 2, v9")
        a("v_mul_u32_u24 v9, 9216, v9")
        a("v_lshl_add_u32 v%d, v8, 4, v9" % (VF + n))
        if 0 < n < 4: a("v_subrev_u32 v%d, %d, v%d" % (VF + n, 1024 * n, VF + n))
    issueF1(0)
    for g in (1, 2, 3): issueT1(g); issueF1(g)
    nconv = emit_conv_loads(a)
    a("s_waitcnt vmcnt(%d)" % (27 + nconv))
    a("s_barrier")
    a("s_waitcnt vmcnt(%d)" % (18 + nconv))
    a("s_barrier")
    a("s_add_u32 s3, s3, 4"); stamp_setup(a, 2); stamp(a, 0); a("s_sub_u32 s3, s3, 4")
    a("s_waitcnt vmcnt(%d)" % (9 + nconv))
    a("s_barrier")
    for kk in range(1, 6):
        issueT1(kk + 3); issueF1(kk + 3)
        a("s_waitcnt vmcnt(%d)" % (9 + (nconv if kk == 1 else 0)))
        a("s_barrier")
    srd(a, 60, 56, 256)
    a("s_lshl_b32 s36, s23, 2")
    a("v_mov_b32 v26, s36")
    a("s_mov_b32 s34, 0")
    a.label("%s_pz" % name)
    a("buffer_load_dword v27, v26, s[60:63], 0 offen sc1")
    a("s_add_u32 s34, s34, 1")
    a("s_waitcnt vmcnt(0)")
    a("v_readfirstlane_b32 s36, v27")
    a("s_cmp_gt_u32 s34, %d" % SPIN_MAX)
    a("s_cbranch_scc1 %s_pzx" % name)
    a("s_cmp_ge_u32 s36, 16")
    a("s_cbranch_scc1 %s_pzx" % name)
    a("s_sleep 8")
    a("s_branch %s_pz" % name)
    a.label("%s_pzx" % name)
    a("s_mov_b32 s33, %d" % ((9 % R) * SLOT))
    a("s_mov_b32 s34, 0")
    a.label("%s_lloop" % name)
    issue()
    a("s_waitcnt vmcnt(9)")
    a("s_barrier")
    a("s_add_u32 s34, s34, 1")
    a("s_cmp_lt_u32 s34, 32")
    a("s_cbranch_scc1 %s_lloop" % name)
    a("s_waitcnt vmcnt(0) lgkmcnt(0)")
    a("s_barrier")
    stamp(a, 1)
    a("s_mov_b32 s26, s53")
    a("s_and_b32 s27, s3, 1")
    a("s_mul_i32 s27, s27, %d" % CJ_SIZE)
    a("s_lshr_b32 s36, s3, 1")
    a("s_add_u32 s36, s36, 1")
    a("s_mul_i32 s36, s36, %d" % SLOT)
    a("s_add_u32 s27, s27, s36")
    def mid():
        if "warm2" in DBG:
            a("s_cmp_eq_u32 s99, 1")
            a("s_cbranch_scc1 %s_midskip" % name)
        a("s_barrier")
        a("s_setprio 0")
        a.label("%s_midskip" % name)
    a.label("%s_cjstart" % name)
    if "noconv" in DBG:
        mid()
    else:
        emit_conv_job(a, name, mid)
        G.stamp_rt(a, 1)
    a("s_branch %s_end" % name)
    a.label("%s_consumer" % name)
    a("s_load_dwordx2 s[92:93], s[0:1], 72")
    a("s_load_dwordx2 s[94:95], s[0:1], 80")
    ACC = 128; FB = [16, 52]
    vTa = [4, 5]; vTb = [6, 7]; vF = 8; vFh = 9
    bTa = [88, 89]; bTb = [90, 91]; bF = 92; bFh = 93
    Z1R = 200; BI = 236
    a("s_lshr_b32 s24, s3, 1")
    a("s_and_b32 s25, s3, 1")
    a("v_and_b32 v3, 15, v2")
    a("v_lshrrev_b32 v10, 4, v2")
    a("v_lshrrev_b32 v11, 1, v3")
    a("v_xor_b32 v10, v10, v11")
    a("v_lshlrev_b32 v10, 4, v10")
    a("v_lshl_add_u32 v10, v3, 7, v10")
    a("s_lshl_b32 s26, s24, 13")
    a("v_add_u32 v10, s26, v10")
    a("s_lshl_b32 s26, s25, 12")
    a("v_add_u32 v%d, s26, v10" % bTa[0])
    a("s_xor_b32 s26, s26, 4096")
    a("v_add_u32 v%d, s26, v10" % bTb[0])
    a("v_xor_b32 v%d, 64, v%d" % (bTa[1], bTa[0]))
    a("v_xor_b32 v%d, 64, v%d" % (bTb[1], bTb[0]))
    a("v_lshrrev_b32 v10, 2, v2")
    a("v_mul_u32_u24 v10, %d, v10" % FS)
    a("v_and_b32 v11, 3, v2")
    a("v_lshl_add_u32 v10, v11, 3, v10")
    a("v_add_u32 v10, %d, v10" % TREG)
    a("s_mul_i32 s26, s25, 160")
    a("v_add_u32 v%d, s26, v10" % bF)
    a("v_add_u32 v%d, 128, v10" % bFh)
    for d, s_ in ((vTa[0], bTa[0]), (vTb[0], bTb[0]), (vTa[1], bTa[1]), (vTb[1], bTb[1]), (vF, bF), (vFh, bFh)):
        a("v_mov_b32 v%d, v%d" % (d, s_))
    a("s_waitcnt lgkmcnt(0)")
    srd(a, 12, 6, WS_BYTES)
    srd(a, 28, 92, 2048 * 2)
    srd(a, 60, 56, 256)
    stamp_setup(a, 2); stamp(a, 0)
    NTB = R * SLOT
    ND = 128
    a("s_lshl_b32 s36, s22, 7")
    a("s_lshl_b32 s37, s3, 5")
    a("s_add_u32 s36, s36, s37")
    a("s_lshl_b32 s36, s36, 8")
    a("s_add_u32 s36, s36, 0x%x" % STATS2)
    a("v_lshlrev_b32 v10, 7, v2")
    for q in range(8):
        a("buffer_load_dwordx4 %s, v10, s[12:15], s36 offen offset:%d" % (vr(16 + 4 * q), 16 * q))
    a("s_lshl_b32 s52, s23, 5")
    a("s_lshl_b32 s37, s22, 1")
    a("s_add_u32 s52, s52, s37")
    a("s_mul_i32 s52, s52, 18432")
    a("s_mul_i32 s37, s3, 9216")
    a("s_add_u32 s52, s52, s37")
    if ZIMG: a("s_add_u32 s52, s52, 0x%x" % ZIMG)
    a("s_add_u32 s53, s52, 4096")
    a("s_add_u32 s55, s52, 8192")
    a("v_lshlrev_b32 v12, 4, v2")
    for n in range(9):
        a("buffer_load_dwordx4 %s, v12, s[12:15], s%d offen offset:%d sc1" % (vr(ND + 4 * n), (52, 53, 55)[n >> 2], (n & 3) * 1024))
    a("s_waitcnt vmcnt(9)")
    stamp(a, 7)
    for st_ in (16, 8, 4, 2):
        for q in range(0, st_, 2):
            a("v_pk_add_f32 %s, %s, %s" % (vr(16 + q, 2), vr(16 + q, 2), vr(16 + q + st_, 2)))
    a("s_nop 1")
    for e in range(2):
        a("v_add_f32_dpp v%d, v%d, v%d quad_perm:[1,0,3,2] row_mask:0xf bank_mask:0xf" % (16 + e, 16 + e, 16 + e))
    emit_ln_finish(a, 16, 17, 2304, 18, 20, 22)
    a("v_mul_f32 v21, -v18, v20")
    a("v_lshrrev_b32 v10, 1, v2")
    a("v_and_b32 v11, 3, v10")
    a("v_bfe_u32 v13, v10, 3, 2")
    a("v_lshl_add_u32 v11, v13, 2, v11")
    a("v_bfe_u32 v13, v10, 2, 1")
    a("v_lshl_add_u32 v11, v13, 4, v11")
    a("s_lshl_b32 s36, s3, 8")
    a("s_add_u32 s36, s36, %d" % NTB)
    a("v_lshl_add_u32 v11, v11, 3, s36")
    a("ds_write_b64 v11, v[20:21]")
    for n in range(9):
        a("v_add_u32 v10, %d, v2" % (64 * n))
        a("v_mul_u32_u24 v10, 3641, v10")
        a("v_lshrrev_b32 v10, 16, v10")
        a("v_lshl_add_u32 v%d, v10, 3, s36" % (24 + n))
    a("s_waitcnt lgkmcnt(0)")
    for n in range(9):
        a("ds_read_b64 %s, v%d" % (vr(52 + 2 * n, 2), 24 + n))
    a("s_waitcnt vmcnt(0) lgkmcnt(0)")
    stamp(a, 8)
    for n in range(9):
        for d in range(4):
            z = ND + 4 * n + d; t_ = 72 + 2 * d
            a("v_lshlrev_b32 v%d, 16, v%d" % (t_, z))
            a("v_and_b32 v%d, 0xffff0000, v%d" % (t_ + 1, z))
        for d in range(4):
            t_ = 72 + 2 * d
            a("v_pk_fma_f32 %s, %s, %s, %s op_sel:[0,0,1] op_sel_hi:[1,0,1]" % (vr(t_, 2), vr(t_, 2), vr(52 + 2 * n, 2), vr(52 + 2 * n, 2)))
        for d in range(4):
            a("v_cvt_pk_bf16_f32 v%d, v%d, v%d" % (200 + 4 * n + d, 72 + 2 * d, 73 + 2 * d))
        a("buffer_store_dwordx4 %s, v12, s[12:15], s%d offen offset:%d sc1" % (vr(200 + 4 * n), (52, 53, 55)[n >> 2], (n & 3) * 1024))
    srd(a, 76, 94, 2304 * 576 * 2)
    a("s_mov_b32 s42, s2")
    emit_wot_loads(a, 240, 252, 720, 3)
    MR = 100; CS = 108; ONE = 96
    a("s_lshl_b32 s36, s22, 7")
    a("s_lshl_b32 s37, s24, 6")
    a("s_add_u32 s36, s36, s37")
    a("s_lshl_b32 s36, s36, 3")
    a("s_add_u32 s36, s36, 0x%x" % STATS1)
    a("s_lshl_b32 s37, s25, 8")
    a("s_add_u32 s38, s36, s37")
    a("s_xor_b32 s37, s37, 256")
    a("s_add_u32 s39, s36, s37")
    a("v_lshlrev_b32 v10, 3, v3")
    a("buffer_load_dwordx2 %s, v10, s[12:15], s38 offen" % vr(MR, 2))
    a("buffer_load_dwordx2 %s, v10, s[12:15], s38 offen offset:128" % vr(MR + 2, 2))
    a("buffer_load_dwordx2 %s, v10, s[12:15], s39 offen" % vr(MR + 4, 2))
    a("buffer_load_dwordx2 %s, v10, s[12:15], s39 offen offset:128" % vr(MR + 6, 2))
    for r in range(CS, CS + 20): a("v_mov_b32 v%d, 0" % r)
    for r in range(ONE, ONE + 4): a("v_mov_b32 v%d, 0x3f803f80" % r)
    stamp(a, 9)
    a("s_mov_b32 s99, 0")
    for r in range(ACC, ACC + 72): a("v_mov_b32 v%d, 0" % r)
    a("s_mov_b32 s27, 0")
    a("s_mov_b32 s33, 0")
    core = G.Core(a, ACC, FB[0], FB[1], FS, TREG, vTa, vTb, vF, vFh)
    trk = core.trk
    a("s_barrier")
    stamp(a, 1)
    core.prime(0, core.reads(0, 0))
    withcs = [True]
    def mfmas(buf):
        L = []
        for ft in range(5):
            A = core.F(buf, ft)
            for tt in range(4 if ft < 4 else 2):
                c = core.accr(ft, tt); B = core.T(buf, tt)
                L.append(("v_mfma_f32_16x16x32_bf16 %s, %s, %s, %s" % (vr(c), vr(A), vr(B), vr(c)), list(range(A, A + 4)) + list(range(B, B + 4))))
            if withcs[0]:
                L.append(("v_mfma_f32_16x16x32_bf16 %s, %s, %s, %s" % (vr(CS + 4 * ft), vr(A), vr(ONE), vr(CS + 4 * ft)), list(range(A, A + 4))))
        return L
    def phase(buf, pend):
        for (m, regs) in mfmas(buf):
            trk.need(regs)
            a(m)
            while pend:
                k, t = pend.pop(0)
                if k == "x":
                    a(t)
                    if t.startswith("s_"): continue
                else:
                    a(t[0]); trk.issue(t[1])
                break
        for k, t in pend:
            if k == "x": a(t)
            else: a(t[0]); trk.issue(t[1])
    def iteration(extra=None):
        a("s_barrier")
        rd = [("r", t) for t in core.reads(1, 1)]
        upd = ["s_add_u32 s27, s27, %d" % SLOT, "s_cmp_eq_u32 s27, %d" % (R * SLOT), "s_cselect_b32 s27, 0, s27"]
        tail = ["v_add_u32 v%d, s27, v%d" % (d, s_) for d, s_ in ((vTa[0], bTa[0]), (vF, bF), (vTb[0], bTb[0]), (vFh, bFh))]
        phase(0, rd[:1] + [("x", u) for u in upd] + rd[1:] + [("x", u) for u in tail])
        rd = [("r", t) for t in core.reads(0, 0)]
        tail = ["v_add_u32 v%d, s27, v%d" % (d, s_) for d, s_ in ((vTa[1], bTa[1]), (vTb[1], bTb[1]))] + ["s_add_u32 s33, s33, 1"]
        phase(1, rd + [("x", u) for u in tail])
    trk.drain()
    a.label("%s_zloop" % name)
    lb = len(a.lines); iteration(); st = copy.deepcopy(trk.out); del a.lines[lb:]; trk.out = copy.deepcopy(st)
    iteration()
    assert [sorted(x) for x in trk.out] == [sorted(x) for x in st]
    a("s_cmp_lg_u32 s33, 2")
    a("s_cbranch_scc1 %s_zs1" % name)
    a("s_waitcnt vmcnt(0)")
    a.label("%s_zs1" % name)
    a("s_lshl_b32 s36, s3, 8")
    a("s_add_u32 s36, s36, s33")
    a("s_cmp_lg_u32 s36, 3")
    a("s_cbranch_scc1 %s_zs2" % name)
    a("v_mov_b32 v10, 1")
    a("s_lshl_b32 s36, s23, 2")
    a("v_mov_b32 v11, s36")
    a("s_mov_b64 exec, 1")
    a("buffer_atomic_add v10, v11, s[60:63], 0 offen sc1")
    a("s_mov_b64 exec, -1")
    a.label("%s_zs2" % name)
    a("s_cmp_lt_u32 s33, 9")
    a("s_cbranch_scc1 %s_zloop" % name)
    trk.drain()
    stamp(a, 5)
    gelu_consts(a)
    a("s_waitcnt vmcnt(0)")
    for tt in range(4): a("v_sub_f32 v%d, 0, v%d" % (MR + 2 * tt, MR + 2 * tt))
    a("s_mov_b32 s35, 0x%x" % WOT)
    for n in range(3):
        a("buffer_store_dwordx4 %s, v%d, s[12:15], s35 offen" % (vr(240 + 4 * n), 252 + n))
    for ft in range(5):
        tts = range(4 if ft < 4 else 2)
        emit_fold_gelu(a, [(core.accr(ft, tt), CS + 4 * ft, MR + 2 * tt, Z1R + 2 * tidx(ft, tt)) for tt in tts], 56)
    for r in range(ACC, ACC + 72): a("v_mov_b32 v%d, 0" % r)
    a("s_mov_b32 s33, 0")
    stamp(a, 6)
    withcs[0] = False
    a.label("%s_cloop" % name)
    lb = len(a.lines); iteration(); st = copy.deepcopy(trk.out); del a.lines[lb:]; trk.out = copy.deepcopy(st)
    iteration()
    assert [sorted(x) for x in trk.out] == [sorted(x) for x in st]
    a("s_cmp_lg_u32 s33, 24")
    a("s_cbranch_scc1 %s_noz" % name)
    a("s_lshl_b32 s36, s22, 7")
    a("s_lshl_b32 s37, s24, 6")
    a("s_add_u32 s36, s36, s37")
    a("v_lshlrev_b32 v11, 1, v3")
    a("s_lshl_b32 s37, s25, 6")
    a("s_lshl_b32 s38, s36, 1")
    a("s_add_u32 s39, s38, s37")
    a("s_xor_b32 s37, s37, 64")
    a("s_add_u32 s40, s38, s37")
    a("buffer_load_ushort v%d, v11, s[28:31], s39 offen" % (BI + 0))
    a("buffer_load_ushort v%d, v11, s[28:31], s39 offen offset:32" % (BI + 2))
    a("buffer_load_ushort v%d, v11, s[28:31], s40 offen" % (BI + 4))
    a("buffer_load_ushort v%d, v11, s[28:31], s40 offen offset:32" % (BI + 6))
    a.label("%s_noz" % name)
    a("s_cmp_lt_u32 s33, %d" % NST)
    a("s_cbranch_scc1 %s_cloop" % name)
    trk.drain()
    stamp(a, 2)
    a.label("%s_epi" % name)
    a("v_lshrrev_b32 v10, 4, v2")
    a("v_and_b32 v11, 1, v10")
    a("v_lshrrev_b32 v12, 1, v10")
    a("v_lshl_add_u32 v12, v11, 1, v12")
    a("s_mul_i32 s35, s23, 18")
    a("s_mul_i32 s36, s25, 10")
    a("s_add_u32 s36, s36, s35")
    a("v_lshrrev_b32 v13, 1, v3")
    a("s_lshl_b32 s37, s22, 1")
    a("s_add_u32 s37, s37, s24")
    a("s_mul_i32 s37, s37, %d" % (36 * 8192))
    a("s_add_u32 s37, s37, 0x%x" % PIMG)
    a("s_lshl_b32 s38, s25, 12")
    a("s_add_u32 s39, s37, s38")
    a("s_xor_b32 s38, s38, 4096")
    a("s_add_u32 s40, s37, s38")
    def addr(dst, pv):
        a("v_lshrrev_b32 v14, 3, v%d" % pv)
        a("v_lshlrev_b32 v14, 13, v14")
        a("v_and_b32 v15, 7, v%d" % pv)
        a("v_xor_b32 v15, v15, v13")
        a("v_lshl_add_u32 v14, v15, 4, v14")
        a("v_lshl_add_u32 v%d, v3, 7, v14" % dst)
    a("v_add_u32 v16, s36, v12"); addr(4, 16)
    a("v_add_u32 v16, 4, v16"); addr(5, 16)
    a("v_lshrrev_b32 v16, 1, v10")
    a("s_add_u32 s35, s35, 8")
    a("v_add_u32 v16, s35, v16"); addr(6, 16)
    a("v_lshl_add_u32 v6, v11, 11, v6")
    a("s_waitcnt vmcnt(0)")
    for tt in range(4):
        a("v_lshlrev_b32 v%d, 16, v%d" % (BI + 2 * tt, BI + 2 * tt))
    stamp(a, 3)
    def ptiles(lst, O):
        T = 24
        for q, (ft, tt) in enumerate(lst):
            c = core.accr(ft, tt)
            for h in (0, 2):
                a("v_pk_add_f32 %s, %s, %s op_sel_hi:[1,0]" % (vr(c + h, 2), vr(c + h, 2), vr(BI + 2 * tt, 2)))
        for q, (ft, tt) in enumerate(lst):
            c = core.accr(ft, tt)
            a("v_cvt_pk_bf16_f32 v%d, v%d, v%d" % (T + 2 * q, c, c + 1))
            a("v_cvt_pk_bf16_f32 v%d, v%d, v%d" % (T + 2 * q + 1, c + 2, c + 3))
        for q, (ft, tt) in enumerate(lst):
            c = core.accr(ft, tt); z = Z1R + 2 * tidx(ft, tt)
            for d in range(2):
                a("v_lshlrev_b32 v%d, 16, v%d" % (c + 2 * d, T + 2 * q + d))
                a("v_and_b32 v%d, 0xffff0000, v%d" % (c + 2 * d + 1, T + 2 * q + d))
                a("v_lshlrev_b32 v%d, 16, v%d" % (T + 4 + 4 * q + 2 * d, z + d))
                a("v_and_b32 v%d, 0xffff0000, v%d" % (T + 5 + 4 * q + 2 * d, z + d))
        for q, (ft, tt) in enumerate(lst):
            c = core.accr(ft, tt)
            for h in (0, 2):
                a("v_pk_mul_f32 %s, %s, %s" % (vr(c + h, 2), vr(c + h, 2), vr(T + 4 + 4 * q + h, 2)))
        for q, (ft, tt) in enumerate(lst):
            c = core.accr(ft, tt)
            a("v_cvt_pk_bf16_f32 v%d, v%d, v%d" % (O + 2 * q, c, c + 1))
            a("v_cvt_pk_bf16_f32 v%d, v%d, v%d" % (O + 2 * q + 1, c + 2, c + 3))
        a("s_nop 1")
        a("v_permlane16_swap_b32 v%d, v%d" % (O, O + 2))
        a("v_permlane16_swap_b32 v%d, v%d" % (O + 1, O + 3))
        a("s_nop 0")
    cnt = 0
    for pr in range(2):
        for tt in range(4):
            O = 40 + 4 * cnt; cnt += 1
            ptiles([(2 * pr, tt), (2 * pr + 1, tt)], O)
            a("buffer_store_dwordx4 %s, v%d, s[12:15], s%d offen offset:%d" % (vr(O), 4 + pr, 39 if tt < 2 else 40, (tt & 1) * 2048))
    O = 40 + 4 * cnt
    ptiles([(4, 0), (4, 1)], O)
    a("buffer_store_dwordx4 %s, v6, s[12:15], s39 offen" % vr(O))
    seg_end2(a, name)
    stamp(a, 4)
    G.stamp_rt(a, 1)
    a.label("%s_end" % name)
    a("s_endpgm")
    return a.text(), kernel_desc(name, 256, 256), (name, 256, 512, R * SLOT + 1024)


def gen_k2g(name="k2_kernel", R=4):
    a = Asm()
    SLOT = 34816; TREG = 16384; FS = 288; NST = 32
    kernel_begin(a, name)
    a("s_load_dwordx2 s[4:5], s[0:1], 64")
    a("s_load_dwordx2 s[6:7], s[0:1], 104")
    a("s_load_dwordx4 s[88:91], s[0:1], 32")
    a("s_load_dwordx2 s[80:81], s[0:1], 0")
    a("s_load_dwordx2 s[82:83], s[0:1], 56")
    a("s_load_dwordx2 s[56:57], s[0:1], 96")
    a("s_cmp_ge_u32 s2, 256")
    a("s_cbranch_scc1 %s_end" % name)
    a("v_lshrrev_b32 v1, 6, v0")
    a("v_and_b32 v2, 63, v0")
    a("v_readfirstlane_b32 s3, v1")
    G2.tile_ij(a)
    a("s_cmp_lt_u32 s3, 4")
    a("s_cbranch_scc1 %s_consumer" % name)
    if "noprio" not in DBG: a("s_setprio 3")
    a("s_sub_u32 s3, s3, 4")
    a("v_lshrrev_b32 v3, 3, v2")
    a("s_lshl_b32 s24, s3, 5")
    a("v_add_u32 v3, s24, v3")
    a("v_and_b32 v4, 7, v2")
    a("v_lshrrev_b32 v6, 4, v2")
    a("v_xor_b32 v6, v6, v4")
    a("v_lshlrev_b32 v6, 4, v6")
    a("v_lshl_add_u32 v10, v3, 12, v6")
    a("v_xor_b32 v11, 64, v10")
    a("v_add_u32 v11, %d, v11" % (32768 - 1024))
    a("v_add_u32 v12, %d, v10" % (2 * (32768 - 1024)))
    a("v_add_u32 v13, %d, v11" % (2 * (32768 - 1024)))
    a("v_lshlrev_b32 v14, 4, v2")
    a("s_lshl_b32 s26, s22, 19")
    a("s_mul_i32 s27, s23, %d" % (32 * 18432))
    a("s_lshl_b32 s24, s3, 12")
    a("s_add_u32 s27, s27, s24")
    if ZIMG: a("s_add_u32 s27, s27, 0x%x" % ZIMG)
    a("s_lshl_b32 s25, s3, 9")
    a("s_sub_u32 s32, s25, s24")
    a("s_add_u32 s32, s32, 16384")
    a("s_mov_b32 s33, 0")
    a("s_waitcnt lgkmcnt(0)")
    srd(a, 8, 4, 2048 * 2048 * 2)
    srd(a, 12, 6, WS_BYTES)
    def issue():
        a("s_add_u32 s35, s33, s24")
        a("s_mov_b32 m0, s35")
        a("s_add_u32 s36, s35, %d" % TREG)
        for n in range(4):
            a("buffer_load_dwordx4 v%d, s[8:11], s26 offen offset:%d lds" % (10 + n, n * 1024))
        a("s_mov_b32 m0, s36")
        a("s_add_u32 s37, s27, s32")
        for n in range(4):
            a("buffer_load_dwordx4 v14, s[12:15], s27 offen offset:%d sc1 lds" % (n * 1024))
        a("s_add_u32 s36, s36, s32")
        a("s_mov_b32 m0, s36")
        a("s_mov_b64 exec, 0xffffffff")
        a("buffer_load_dwordx4 v14, s[12:15], s37 offen sc1 lds")
        a("s_mov_b64 exec, -1")
        a("s_add_u32 s26, s26, 128")
        a("s_add_u32 s27, s27, 18432")
        a("s_add_u32 s33, s33, %d" % SLOT)
        a("s_cmp_eq_u32 s33, %d" % (R * SLOT))
        a("s_cselect_b32 s33, 0, s33")
    srd(a, 16, 88, 576 * 2048 * 2)
    srd(a, 84, 90, 576 * 2)
    a("s_lshl_b32 s43, s2, 2")
    a("s_add_u32 s43, s43, s3")
    a("s_and_b32 s53, s43, 1")
    a("s_sub_u32 s36, s43, 448")
    a("s_lshr_b32 s37, s43, 1")
    a("s_cmp_ge_u32 s43, 896")
    a("s_cselect_b32 s43, s36, s37")
    a("s_cselect_b32 s53, 2, s53")
    VT = 16; VF = 20
    srd(a, 64, 80, 2048 * 576 * 2)
    srd(a, 68, 82, 576 * 4608 * 2)
    a("v_mul_u32_u24 v5, 1152, v3")
    a("v_add_u32 v%d, v5, v6" % VT)
    a("v_xor_b32 v%d, 64, v%d" % (VT + 1, VT))
    a("v_add_u32 v%d, %d, v%d" % (VT + 1, 9216 - 1024, VT + 1))
    a("v_add_u32 v%d, %d, v%d" % (VT + 2, 2 * (9216 - 1024), VT))
    a("v_add_u32 v%d, %d, v%d" % (VT + 3, 2 * (9216 - 1024), VT + 1))
    a("s_mul_i32 s72, s22, %d" % (128 * 1152))
    a("s_mul_i32 s73, s23, 288")
    a("s_add_u32 s74, s25, %d" % (TREG + 16384))
    def issueT1(g):
        a("s_add_u32 s35, s24, %d" % ((g % R) * SLOT))
        a("s_mov_b32 m0, s35")
        a("s_add_u32 s36, s72, %d" % (128 * g))
        for n in range(4):
            a("buffer_load_dwordx4 v%d, s[64:67], s36 offen offset:%d lds" % (VT + n, 1024 * n))
    def issueF1(g):
        a("s_add_u32 s35, s24, %d" % ((g % R) * SLOT + TREG))
        a("s_mov_b32 m0, s35")
        a("s_add_u32 s36, s73, %d" % (64 * 9216 * g))
        for n in range(4):
            a("buffer_load_dwordx4 v%d, s[68:71], s36 offen offset:%d lds" % (VF + n, 1024 * n))
        a("s_add_u32 s35, s74, %d" % ((g % R) * SLOT))
        a("s_mov_b32 m0, s35")
        a("s_mov_b64 exec, 0xffffffff")
        a("buffer_load_dwordx4 v%d, s[68:71], s36 offen lds" % (VF + 4))
        a("s_mov_b64 exec, -1")
    issueT1(0)
    for n in range(5):
        if n < 4:
            a("s_lshl_b32 s36, s3, 8")
            a("s_add_u32 s36, s36, %d" % (64 * n))
        else:
            a("s_lshl_b32 s36, s3, 5")
            a("s_add_u32 s36, s36, 1024")
        a("v_add_u32 v6, s36, v2")
        a("v_mul_u32_u24 v7, 3641, v6")
        a("v_lshrrev_b32 v7, 16, v7")
        a("v_mul_u32_u24 v8, 18, v7")
        a("v_sub_u32 v8, v6, v8")
        a("v_and_b32 v9, 35, v7")
        a("v_bfe_u32 v6, v7, 2, 2")
        a("v_lshl_add_u32 v9, v6, 3, v9")
        a("v_bfe_u32 v6, v7, 4, 1")
        a("v_lshl_add_u32 v9, v6, 2, v9")
        a("v_mul_u32_u24 v9, 9216, v9")
        a("v_lshl_add_u32 v%d, v8, 4, v9" % (VF + n))
        if 0 < n < 4: a("v_subrev_u32 v%d, %d, v%d" % (VF + n, 1024 * n, VF + n))
    issueF1(0)
    issueT1(1); issueF1(1)
    a("s_load_dwordx2 s[94:95], s[0:1], 80")
    a("s_waitcnt vmcnt(9) lgkmcnt(0)")
    a("s_barrier")
    issueT1(2); issueF1(2); issueT1(3); issueF1(3)
    a("s_waitcnt vmcnt(18)")
    a("s_barrier")
    a("s_add_u32 s3, s3, 4"); stamp_setup(a, 2); stamp(a, 0); a("s_sub_u32 s3, s3, 4")
    nconv = emit_conv_loads(a)
    for r_ in range(9): a("v_mov_b32 v%d, v%d" % (100 + r_, 16 + r_))
    srd(a, 76, 94, 2304 * 576 * 2)
    a("s_mov_b32 s42, s2")
    a("v_and_b32 v0, 255, v0")
    emit_wot_loads(a, 112, 124, 720, 3)
    for r_ in range(9): a("v_mov_b32 v%d, v%d" % (16 + r_, 100 + r_))
    nconv += 3
    a("s_waitcnt vmcnt(%d)" % (9 + nconv))
    a("s_barrier")
    for kk in range(1, 6):
        issueT1(kk + 3); issueF1(kk + 3)
        if kk == 3:
            for n in range(3):
                a("buffer_store_dwordx4 %s, v%d, s[12:15], s40 offen" % (vr(112 + 4 * n), 124 + n))
        a("s_waitcnt vmcnt(%d)" % (9 + (nconv if kk == 1 else 3 if kk == 3 else 0)))
        a("s_barrier")
    srd(a, 60, 56, 256)
    a("s_lshl_b32 s36, s23, 2")
    a("v_mov_b32 v26, s36")
    a("s_mov_b32 s34, 0")
    a.label("%s_pz" % name)
    a("buffer_load_dword v27, v26, s[60:63], 0 offen sc1")
    a("s_add_u32 s34, s34, 1")
    a("s_waitcnt vmcnt(0)")
    a("v_readfirstlane_b32 s36, v27")
    a("s_cmp_gt_u32 s34, %d" % SPIN_MAX)
    a("s_cbranch_scc1 %s_pzx" % name)
    a("s_cmp_ge_u32 s36, 16")
    a("s_cbranch_scc1 %s_pzx" % name)
    a("s_sleep 16")
    a("s_branch %s_pz" % name)
    a.label("%s_pzx" % name)
    a("s_mov_b32 s33, %d" % ((9 % R) * SLOT))
    a("s_mov_b32 s34, 0")
    a.label("%s_lloop" % name)
    issue()
    a("s_waitcnt vmcnt(9)")
    a("s_barrier")
    a("s_add_u32 s34, s34, 1")
    a("s_cmp_lt_u32 s34, 32")
    a("s_cbranch_scc1 %s_lloop" % name)
    a("s_waitcnt vmcnt(0) lgkmcnt(0)")
    a("s_barrier")
    stamp(a, 1)
    a("s_mov_b32 s26, s53")
    a("s_and_b32 s27, s3, 1")
    a("s_mul_i32 s27, s27, %d" % CJ_SIZE)
    a("s_lshr_b32 s36, s3, 1")
    a("s_add_u32 s36, s36, 1")
    a("s_mul_i32 s36, s36, %d" % SLOT)
    a("s_add_u32 s27, s27, s36")
    def mid():
        if "warm2" in DBG:
            a("s_cmp_eq_u32 s99, 1")
            a("s_cbranch_scc1 %s_midskip" % name)
        a("s_barrier")
        a("s_setprio 0")
        a.label("%s_midskip" % name)
    a.label("%s_cjstart" % name)
    if "noconv" in DBG:
        mid()
    else:
        emit_conv_job(a, name, mid)
        G.stamp_rt(a, 1)
    a("s_branch %s_end" % name)
    a.label("%s_consumer" % name)
    a("s_load_dwordx2 s[92:93], s[0:1], 72")
    a("s_load_dwordx2 s[94:95], s[0:1], 80")
    ACC = 128; FB = [16, 52]
    vTa = [4, 5]; vTb = [6, 7]; vF = 8; vFh = 9
    bTa = [88, 89]; bTb = [90, 91]; bF = 92; bFh = 93
    Z1R = 200; BI = 236
    a("s_lshr_b32 s24, s3, 1")
    a("s_and_b32 s25, s3, 1")
    a("v_and_b32 v3, 15, v2")
    a("v_lshrrev_b32 v10, 4, v2")
    a("v_lshrrev_b32 v11, 1, v3")
    a("v_xor_b32 v10, v10, v11")
    a("v_lshlrev_b32 v10, 4, v10")
    a("v_lshl_add_u32 v10, v3, 7, v10")
    a("s_lshl_b32 s26, s24, 13")
    a("v_add_u32 v10, s26, v10")
    a("s_lshl_b32 s26, s25, 12")
    a("v_add_u32 v%d, s26, v10" % bTa[0])
    a("s_xor_b32 s26, s26, 4096")
    a("v_add_u32 v%d, s26, v10" % bTb[0])
    a("v_xor_b32 v%d, 64, v%d" % (bTa[1], bTa[0]))
    a("v_xor_b32 v%d, 64, v%d" % (bTb[1], bTb[0]))
    a("v_lshrrev_b32 v10, 2, v2")
    a("v_mul_u32_u24 v10, %d, v10" % FS)
    a("v_and_b32 v11, 3, v2")
    a("v_lshl_add_u32 v10, v11, 3, v10")
    a("v_add_u32 v10, %d, v10" % TREG)
    a("s_mul_i32 s26, s25, 160")
    a("v_add_u32 v%d, s26, v10" % bF)
    a("v_add_u32 v%d, 128, v10" % bFh)
    for d, s_ in ((vTa[0], bTa[0]), (vTb[0], bTb[0]), (vTa[1], bTa[1]), (vTb[1], bTb[1]), (vF, bF), (vFh, bFh)):
        a("v_mov_b32 v%d, v%d" % (d, s_))
    a("s_waitcnt lgkmcnt(0)")
    srd(a, 12, 6, WS_BYTES)
    srd(a, 28, 92, 2048 * 2)
    srd(a, 60, 56, 256)
    stamp_setup(a, 2); stamp(a, 0)
    NTB = R * SLOT
    ND = 128
    a("s_lshl_b32 s36, s22, 7")
    a("s_lshl_b32 s37, s3, 5")
    a("s_add_u32 s36, s36, s37")
    a("s_lshl_b32 s36, s36, 8")
    a("s_add_u32 s36, s36, 0x%x" % STATS2)
    a("v_lshlrev_b32 v10, 7, v2")
    for q in range(8):
        a("buffer_load_dwordx4 %s, v10, s[12:15], s36 offen offset:%d" % (vr(16 + 4 * q), 16 * q))
    a("s_lshl_b32 s52, s23, 5")
    a("s_lshl_b32 s37, s22, 1")
    a("s_add_u32 s52, s52, s37")
    a("s_mul_i32 s52, s52, 18432")
    a("s_mul_i32 s37, s3, 9216")
    a("s_add_u32 s52, s52, s37")
    if ZIMG: a("s_add_u32 s52, s52, 0x%x" % ZIMG)
    a("s_add_u32 s53, s52, 4096")
    a("s_add_u32 s55, s52, 8192")
    a("v_lshlrev_b32 v12, 4, v2")
    for n in range(9):
        a("buffer_load_dwordx4 %s, v12, s[12:15], s%d offen offset:%d sc1" % (vr(ND + 4 * n), (52, 53, 55)[n >> 2], (n & 3) * 1024))
    a("s_waitcnt vmcnt(9)")
    stamp(a, 7)
    for st_ in (16, 8, 4, 2):
        for q in range(0, st_, 2):
            a("v_pk_add_f32 %s, %s, %s" % (vr(16 + q, 2), vr(16 + q, 2), vr(16 + q + st_, 2)))
    a("s_nop 1")
    for e in range(2):
        a("v_add_f32_dpp v%d, v%d, v%d quad_perm:[1,0,3,2] row_mask:0xf bank_mask:0xf" % (16 + e, 16 + e, 16 + e))
    emit_ln_finish(a, 16, 17, 2304, 18, 20, 22)
    a("v_mul_f32 v21, -v18, v20")
    a("v_lshrrev_b32 v10, 1, v2")
    a("v_and_b32 v11, 3, v10")
    a("v_bfe_u32 v13, v10, 3, 2")
    a("v_lshl_add_u32 v11, v13, 2, v11")
    a("v_bfe_u32 v13, v10, 2, 1")
    a("v_lshl_add_u32 v11, v13, 4, v11")
    a("s_lshl_b32 s36, s3, 8")
    a("s_add_u32 s36, s36, %d" % NTB)
    a("v_lshl_add_u32 v11, v11, 3, s36")
    a("ds_write_b64 v11, v[20:21]")
    for n in range(9):
        a("v_add_u32 v10, %d, v2" % (64 * n))
        a("v_mul_u32_u24 v10, 3641, v10")
        a("v_lshrrev_b32 v10, 16, v10")
        a("v_lshl_add_u32 v%d, v10, 3, s36" % (24 + n))
    a("s_waitcnt lgkmcnt(0)")
    for n in range(9):
        a("ds_read_b64 %s, v%d" % (vr(52 + 2 * n, 2), 24 + n))
    a("s_waitcnt vmcnt(0) lgkmcnt(0)")
    stamp(a, 8)
    for n in range(9):
        for d in range(4):
            z = ND + 4 * n + d; t_ = 72 + 2 * d
            a("v_lshlrev_b32 v%d, 16, v%d" % (t_, z))
            a("v_and_b32 v%d, 0xffff0000, v%d" % (t_ + 1, z))
        for d in range(4):
            t_ = 72 + 2 * d
            a("v_pk_fma_f32 %s, %s, %s, %s op_sel:[0,0,1] op_sel_hi:[1,0,1]" % (vr(t_, 2), vr(t_, 2), vr(52 + 2 * n, 2), vr(52 + 2 * n, 2)))
        for d in range(4):
            a("v_cvt_pk_bf16_f32 v%d, v%d, v%d" % (200 + 4 * n + d, 72 + 2 * d, 73 + 2 * d))
        a("buffer_store_dwordx4 %s, v12, s[12:15], s%d offen offset:%d sc1" % (vr(200 + 4 * n), (52, 53, 55)[n >> 2], (n & 3) * 1024))
    MR = 100; CS = 108; ONE = 96
    a("s_lshl_b32 s36, s22, 7")
    a("s_lshl_b32 s37, s24, 6")
    a("s_add_u32 s36, s36, s37")
    a("s_lshl_b32 s36, s36, 3")
    a("s_add_u32 s36, s36, 0x%x" % STATS1)
    a("s_lshl_b32 s37, s25, 8")
    a("s_add_u32 s38, s36, s37")
    a("s_xor_b32 s37, s37, 256")
    a("s_add_u32 s39, s36, s37")
    a("v_lshlrev_b32 v10, 3, v3")
    a("buffer_load_dwordx2 %s, v10, s[12:15], s38 offen" % vr(MR, 2))
    a("buffer_load_dwordx2 %s, v10, s[12:15], s38 offen offset:128" % vr(MR + 2, 2))
    a("buffer_load_dwordx2 %s, v10, s[12:15], s39 offen" % vr(MR + 4, 2))
    a("buffer_load_dwordx2 %s, v10, s[12:15], s39 offen offset:128" % vr(MR + 6, 2))
    for r in range(CS, CS + 20): a("v_mov_b32 v%d, 0" % r)
    for r in range(ONE, ONE + 4): a("v_mov_b32 v%d, 0x3f803f80" % r)
    stamp(a, 9)
    a("s_mov_b32 s99, 0")
    for r in range(ACC, ACC + 72): a("v_mov_b32 v%d, 0" % r)
    a("s_mov_b32 s27, 0")
    a("s_mov_b32 s33, 0")
    core = G.Core(a, ACC, FB[0], FB[1], FS, TREG, vTa, vTb, vF, vFh)
    trk = core.trk
    a("s_barrier")
    stamp(a, 1)
    core.prime(0, core.reads(0, 0))
    withcs = [True]
    def mfmas(buf):
        L = []
        for ft in range(5):
            A = core.F(buf, ft)
            for tt in range(4 if ft < 4 else 2):
                c = core.accr(ft, tt); B = core.T(buf, tt)
                L.append(("v_mfma_f32_16x16x32_bf16 %s, %s, %s, %s" % (vr(c), vr(A), vr(B), vr(c)), list(range(A, A + 4)) + list(range(B, B + 4))))
            if withcs[0]:
                L.append(("v_mfma_f32_16x16x32_bf16 %s, %s, %s, %s" % (vr(CS + 4 * ft), vr(A), vr(ONE), vr(CS + 4 * ft)), list(range(A, A + 4))))
        return L
    def phase(buf, pend):
        for (m, regs) in mfmas(buf):
            trk.need(regs)
            a(m)
            while pend:
                k, t = pend.pop(0)
                if k == "x":
                    a(t)
                    if t.startswith("s_"): continue
                else:
                    a(t[0]); trk.issue(t[1])
                break
        for k, t in pend:
            if k == "x": a(t)
            else: a(t[0]); trk.issue(t[1])
    def iteration(extra=None):
        a("s_barrier")
        rd = [("r", t) for t in core.reads(1, 1)]
        upd = ["s_add_u32 s27, s27, %d" % SLOT, "s_cmp_eq_u32 s27, %d" % (R * SLOT), "s_cselect_b32 s27, 0, s27"]
        tail = ["v_add_u32 v%d, s27, v%d" % (d, s_) for d, s_ in ((vTa[0], bTa[0]), (vF, bF), (vTb[0], bTb[0]), (vFh, bFh))]
        phase(0, rd[:1] + [("x", u) for u in upd] + rd[1:] + [("x", u) for u in tail])
        rd = [("r", t) for t in core.reads(0, 0)]
        tail = ["v_add_u32 v%d, s27, v%d" % (d, s_) for d, s_ in ((vTa[1], bTa[1]), (vTb[1], bTb[1]))] + ["s_add_u32 s33, s33, 1"]
        phase(1, rd + [("x", u) for u in tail])
    trk.drain()
    a.label("%s_zloop" % name)
    lb = len(a.lines); iteration(); st = copy.deepcopy(trk.out); del a.lines[lb:]; trk.out = copy.deepcopy(st)
    iteration()
    assert [sorted(x) for x in trk.out] == [sorted(x) for x in st]
    a("s_cmp_lg_u32 s33, 2")
    a("s_cbranch_scc1 %s_zs1" % name)
    a("s_waitcnt vmcnt(0)")
    a.label("%s_zs1" % name)
    a("s_lshl_b32 s36, s3, 8")
    a("s_add_u32 s36, s36, s33")
    a("s_cmp_lg_u32 s36, 3")
    a("s_cbranch_scc1 %s_zs2" % name)
    a("v_mov_b32 v10, 1")
    a("s_lshl_b32 s36, s23, 2")
    a("v_mov_b32 v11, s36")
    a("s_mov_b64 exec, 1")
    a("buffer_atomic_add v10, v11, s[60:63], 0 offen sc1")
    a("s_mov_b64 exec, -1")
    a.label("%s_zs2" % name)
    a("s_cmp_lt_u32 s33, 9")
    a("s_cbranch_scc1 %s_zloop" % name)
    trk.drain()
    stamp(a, 5)
    gelu_consts(a)
    a("s_waitcnt vmcnt(0)")
    for tt in range(4): a("v_sub_f32 v%d, 0, v%d" % (MR + 2 * tt, MR + 2 * tt))
    for ft in range(5):
        tts = range(4 if ft < 4 else 2)
        emit_fold_gelu(a, [(core.accr(ft, tt), CS + 4 * ft, MR + 2 * tt, Z1R + 2 * tidx(ft, tt)) for tt in tts], 56)
    for r in range(ACC, ACC + 72): a("v_mov_b32 v%d, 0" % r)
    a("s_mov_b32 s33, 0")
    stamp(a, 6)
    withcs[0] = False
    a.label("%s_cloop" % name)
    lb = len(a.lines); iteration(); st = copy.deepcopy(trk.out); del a.lines[lb:]; trk.out = copy.deepcopy(st)
    iteration()
    assert [sorted(x) for x in trk.out] == [sorted(x) for x in st]
    a("s_cmp_lg_u32 s33, 24")
    a("s_cbranch_scc1 %s_noz" % name)
    a("s_lshl_b32 s36, s22, 7")
    a("s_lshl_b32 s37, s24, 6")
    a("s_add_u32 s36, s36, s37")
    a("v_lshlrev_b32 v11, 1, v3")
    a("s_lshl_b32 s37, s25, 6")
    a("s_lshl_b32 s38, s36, 1")
    a("s_add_u32 s39, s38, s37")
    a("s_xor_b32 s37, s37, 64")
    a("s_add_u32 s40, s38, s37")
    a("buffer_load_ushort v%d, v11, s[28:31], s39 offen" % (BI + 0))
    a("buffer_load_ushort v%d, v11, s[28:31], s39 offen offset:32" % (BI + 2))
    a("buffer_load_ushort v%d, v11, s[28:31], s40 offen" % (BI + 4))
    a("buffer_load_ushort v%d, v11, s[28:31], s40 offen offset:32" % (BI + 6))
    a.label("%s_noz" % name)
    a("s_cmp_lt_u32 s33, %d" % NST)
    a("s_cbranch_scc1 %s_cloop" % name)
    trk.drain()
    stamp(a, 2)
    a.label("%s_epi" % name)
    a("v_lshrrev_b32 v10, 4, v2")
    a("v_and_b32 v11, 1, v10")
    a("v_lshrrev_b32 v12, 1, v10")
    a("v_lshl_add_u32 v12, v11, 1, v12")
    a("s_mul_i32 s35, s23, 18")
    a("s_mul_i32 s36, s25, 10")
    a("s_add_u32 s36, s36, s35")
    a("v_lshrrev_b32 v13, 1, v3")
    a("s_lshl_b32 s37, s22, 1")
    a("s_add_u32 s37, s37, s24")
    a("s_mul_i32 s37, s37, %d" % (36 * 8192))
    a("s_add_u32 s37, s37, 0x%x" % PIMG)
    a("s_lshl_b32 s38, s25, 12")
    a("s_add_u32 s39, s37, s38")
    a("s_xor_b32 s38, s38, 4096")
    a("s_add_u32 s40, s37, s38")
    def addr(dst, pv):
        a("v_lshrrev_b32 v14, 3, v%d" % pv)
        a("v_lshlrev_b32 v14, 13, v14")
        a("v_and_b32 v15, 7, v%d" % pv)
        a("v_xor_b32 v15, v15, v13")
        a("v_lshl_add_u32 v14, v15, 4, v14")
        a("v_lshl_add_u32 v%d, v3, 7, v14" % dst)
    a("v_add_u32 v16, s36, v12"); addr(4, 16)
    a("v_add_u32 v16, 4, v16"); addr(5, 16)
    a("v_lshrrev_b32 v16, 1, v10")
    a("s_add_u32 s35, s35, 8")
    a("v_add_u32 v16, s35, v16"); addr(6, 16)
    a("v_lshl_add_u32 v6, v11, 11, v6")
    a("s_waitcnt vmcnt(0)")
    for tt in range(4):
        a("v_lshlrev_b32 v%d, 16, v%d" % (BI + 2 * tt, BI + 2 * tt))
    stamp(a, 3)
    def ptiles(lst, O):
        T = 24
        for q, (ft, tt) in enumerate(lst):
            c = core.accr(ft, tt)
            for h in (0, 2):
                a("v_pk_add_f32 %s, %s, %s op_sel_hi:[1,0]" % (vr(c + h, 2), vr(c + h, 2), vr(BI + 2 * tt, 2)))
        for q, (ft, tt) in enumerate(lst):
            c = core.accr(ft, tt)
            a("v_cvt_pk_bf16_f32 v%d, v%d, v%d" % (T + 2 * q, c, c + 1))
            a("v_cvt_pk_bf16_f32 v%d, v%d, v%d" % (T + 2 * q + 1, c + 2, c + 3))
        for q, (ft, tt) in enumerate(lst):
            c = core.accr(ft, tt); z = Z1R + 2 * tidx(ft, tt)
            for d in range(2):
                a("v_lshlrev_b32 v%d, 16, v%d" % (c + 2 * d, T + 2 * q + d))
                a("v_and_b32 v%d, 0xffff0000, v%d" % (c + 2 * d + 1, T + 2 * q + d))
                a("v_lshlrev_b32 v%d, 16, v%d" % (T + 4 + 4 * q + 2 * d, z + d))
                a("v_and_b32 v%d, 0xffff0000, v%d" % (T + 5 + 4 * q + 2 * d, z + d))
        for q, (ft, tt) in enumerate(lst):
            c = core.accr(ft, tt)
            for h in (0, 2):
                a("v_pk_mul_f32 %s, %s, %s" % (vr(c + h, 2), vr(c + h, 2), vr(T + 4 + 4 * q + h, 2)))
        for q, (ft, tt) in enumerate(lst):
            c = core.accr(ft, tt)
            a("v_cvt_pk_bf16_f32 v%d, v%d, v%d" % (O + 2 * q, c, c + 1))
            a("v_cvt_pk_bf16_f32 v%d, v%d, v%d" % (O + 2 * q + 1, c + 2, c + 3))
        a("s_nop 1")
        a("v_permlane16_swap_b32 v%d, v%d" % (O, O + 2))
        a("v_permlane16_swap_b32 v%d, v%d" % (O + 1, O + 3))
        a("s_nop 0")
    cnt = 0
    for pr in range(2):
        for tt in range(4):
            O = 40 + 4 * cnt; cnt += 1
            ptiles([(2 * pr, tt), (2 * pr + 1, tt)], O)
            a("buffer_store_dwordx4 %s, v%d, s[12:15], s%d offen offset:%d" % (vr(O), 4 + pr, 39 if tt < 2 else 40, (tt & 1) * 2048))
    O = 40 + 4 * cnt
    ptiles([(4, 0), (4, 1)], O)
    a("buffer_store_dwordx4 %s, v6, s[12:15], s39 offen" % vr(O))
    seg_end2(a, name)
    stamp(a, 4)
    G.stamp_rt(a, 1)
    a.label("%s_end" % name)
    a("s_endpgm")
    return a.text(), kernel_desc(name, 256, 256), (name, 256, 512, R * SLOT + 1024)


def gen_k2e(name="k2_kernel", R=4):
    a = Asm()
    SLOT = 34816; TREG = 16384; FS = 288; NST = 32
    kernel_begin(a, name)
    a("s_load_dwordx2 s[4:5], s[0:1], 64")
    a("s_load_dwordx2 s[6:7], s[0:1], 104")
    a("s_load_dwordx4 s[88:91], s[0:1], 32")
    a("s_load_dwordx2 s[80:81], s[0:1], 0")
    a("s_load_dwordx2 s[82:83], s[0:1], 56")
    a("s_load_dwordx2 s[56:57], s[0:1], 96")
    a("s_cmp_ge_u32 s2, 256")
    a("s_cbranch_scc1 %s_end" % name)
    a("v_lshrrev_b32 v1, 6, v0")
    a("v_and_b32 v2, 63, v0")
    a("v_readfirstlane_b32 s3, v1")
    G2.tile_ij(a)
    a("s_cmp_lt_u32 s3, 4")
    a("s_cbranch_scc1 %s_consumer" % name)
    if "noprio" not in DBG: a("s_setprio 3")
    a("s_sub_u32 s3, s3, 4")
    a("v_lshrrev_b32 v3, 3, v2")
    a("s_lshl_b32 s24, s3, 5")
    a("v_add_u32 v3, s24, v3")
    a("v_and_b32 v4, 7, v2")
    a("v_lshrrev_b32 v6, 4, v2")
    a("v_xor_b32 v6, v6, v4")
    a("v_lshlrev_b32 v6, 4, v6")
    a("v_lshl_add_u32 v10, v3, 12, v6")
    a("v_xor_b32 v11, 64, v10")
    a("v_add_u32 v11, %d, v11" % (32768 - 1024))
    a("v_add_u32 v12, %d, v10" % (2 * (32768 - 1024)))
    a("v_add_u32 v13, %d, v11" % (2 * (32768 - 1024)))
    a("v_lshlrev_b32 v14, 4, v2")
    a("s_lshl_b32 s26, s22, 19")
    a("s_mul_i32 s27, s23, %d" % (32 * 18432))
    a("s_lshl_b32 s24, s3, 12")
    a("s_add_u32 s27, s27, s24")
    if ZIMG: a("s_add_u32 s27, s27, 0x%x" % ZIMG)
    a("s_lshl_b32 s25, s3, 9")
    a("s_sub_u32 s32, s25, s24")
    a("s_add_u32 s32, s32, 16384")
    a("s_mov_b32 s33, 0")
    a("s_waitcnt lgkmcnt(0)")
    srd(a, 8, 4, 2048 * 2048 * 2)
    srd(a, 12, 6, WS_BYTES)
    def issue():
        a("s_add_u32 s35, s33, s24")
        a("s_mov_b32 m0, s35")
        a("s_add_u32 s36, s35, %d" % TREG)
        for n in range(4):
            a("buffer_load_dwordx4 v%d, s[8:11], s26 offen offset:%d lds" % (10 + n, n * 1024))
        a("s_mov_b32 m0, s36")
        a("s_add_u32 s37, s27, s32")
        for n in range(4):
            a("buffer_load_dwordx4 v14, s[12:15], s27 offen offset:%d sc1 lds" % (n * 1024))
        a("s_add_u32 s36, s36, s32")
        a("s_mov_b32 m0, s36")
        a("s_mov_b64 exec, 0xffffffff")
        a("buffer_load_dwordx4 v14, s[12:15], s37 offen sc1 lds")
        a("s_mov_b64 exec, -1")
        a("s_add_u32 s26, s26, 128")
        a("s_add_u32 s27, s27, 18432")
        a("s_add_u32 s33, s33, %d" % SLOT)
        a("s_cmp_eq_u32 s33, %d" % (R * SLOT))
        a("s_cselect_b32 s33, 0, s33")
    srd(a, 16, 88, 576 * 2048 * 2)
    srd(a, 84, 90, 576 * 2)
    a("s_lshl_b32 s43, s2, 2")
    a("s_add_u32 s43, s43, s3")
    a("s_and_b32 s53, s43, 1")
    a("s_sub_u32 s36, s43, 448")
    a("s_lshr_b32 s37, s43, 1")
    a("s_cmp_ge_u32 s43, 896")
    a("s_cselect_b32 s43, s36, s37")
    a("s_cselect_b32 s53, 2, s53")
    VT = 16; VF = 20
    srd(a, 64, 80, 2048 * 576 * 2)
    srd(a, 68, 82, 576 * 4608 * 2)
    a("v_mul_u32_u24 v5, 1152, v3")
    a("v_add_u32 v%d, v5, v6" % VT)
    a("v_xor_b32 v%d, 64, v%d" % (VT + 1, VT))
    a("v_add_u32 v%d, %d, v%d" % (VT + 1, 9216 - 1024, VT + 1))
    a("v_add_u32 v%d, %d, v%d" % (VT + 2, 2 * (9216 - 1024), VT))
    a("v_add_u32 v%d, %d, v%d" % (VT + 3, 2 * (9216 - 1024), VT + 1))
    a("s_mul_i32 s72, s22, %d" % (128 * 1152))
    a("s_mul_i32 s73, s23, 288")
    a("s_add_u32 s74, s25, %d" % (TREG + 16384))
    def issueT1(g):
        a("s_add_u32 s35, s24, %d" % ((g % R) * SLOT))
        a("s_mov_b32 m0, s35")
        a("s_add_u32 s36, s72, %d" % (128 * g))
        for n in range(4):
            a("buffer_load_dwordx4 v%d, s[64:67], s36 offen offset:%d lds" % (VT + n, 1024 * n))
    def issueF1(g):
        a("s_add_u32 s35, s24, %d" % ((g % R) * SLOT + TREG))
        a("s_mov_b32 m0, s35")
        a("s_add_u32 s36, s73, %d" % (64 * 9216 * g))
        for n in range(4):
            a("buffer_load_dwordx4 v%d, s[68:71], s36 offen offset:%d lds" % (VF + n, 1024 * n))
        a("s_add_u32 s35, s74, %d" % ((g % R) * SLOT))
        a("s_mov_b32 m0, s35")
        a("s_mov_b64 exec, 0xffffffff")
        a("buffer_load_dwordx4 v%d, s[68:71], s36 offen lds" % (VF + 4))
        a("s_mov_b64 exec, -1")
    issueT1(0)
    for n in range(5):
        if n < 4:
            a("s_lshl_b32 s36, s3, 8")
            a("s_add_u32 s36, s36, %d" % (64 * n))
        else:
            a("s_lshl_b32 s36, s3, 5")
            a("s_add_u32 s36, s36, 1024")
        a("v_add_u32 v6, s36, v2")
        a("v_mul_u32_u24 v7, 3641, v6")
        a("v_lshrrev_b32 v7, 16, v7")
        a("v_mul_u32_u24 v8, 18, v7")
        a("v_sub_u32 v8, v6, v8")
        a("v_and_b32 v9, 35, v7")
        a("v_bfe_u32 v6, v7, 2, 2")
        a("v_lshl_add_u32 v9, v6, 3, v9")
        a("v_bfe_u32 v6, v7, 4, 1")
        a("v_lshl_add_u32 v9, v6, 2, v9")
        a("v_mul_u32_u24 v9, 9216, v9")
        a("v_lshl_add_u32 v%d, v8, 4, v9" % (VF + n))
        if 0 < n < 4: a("v_subrev_u32 v%d, %d, v%d" % (VF + n, 1024 * n, VF + n))
    issueF1(0)
    for g in (1, 2, 3): issueT1(g); issueF1(g)
    nconv = emit_conv_loads(a)
    NTB = R * SLOT; ND = 128; NP = 164; NT_ = 96; NA = 28; NV = 38
    a("s_lshl_b32 s36, s22, 7")
    a("s_lshl_b32 s37, s3, 5")
    a("s_add_u32 s36, s36, s37")
    a("s_lshl_b32 s36, s36, 8")
    a("s_add_u32 s36, s36, 0x%x" % STATS2)
    a("v_lshlrev_b32 v4, 7, v2")
    for q in range(8):
        a("buffer_load_dwordx4 %s, v4, s[12:15], s36 offen offset:%d" % (vr(NP + 4 * q), 16 * q))
    a("s_lshl_b32 s76, s23, 5")
    a("s_lshl_b32 s37, s22, 1")
    a("s_add_u32 s76, s76, s37")
    a("s_mul_i32 s76, s76, 18432")
    a("s_mul_i32 s37, s3, 9216")
    a("s_add_u32 s76, s76, s37")
    if ZIMG: a("s_add_u32 s76, s76, 0x%x" % ZIMG)
    a("s_add_u32 s77, s76, 4096")
    a("s_add_u32 s78, s76, 8192")
    for n in range(9):
        a("buffer_load_dwordx4 %s, v14, s[12:15], s%d offen offset:%d sc1" % (vr(ND + 4 * n), (76, 77, 78)[n >> 2], (n & 3) * 1024))
    nconv += 17
    def n_stats():
        for st_ in (16, 8, 4, 2):
            for q in range(0, st_, 2):
                a("v_pk_add_f32 %s, %s, %s" % (vr(NP + q, 2), vr(NP + q, 2), vr(NP + q + st_, 2)))
        a("s_nop 1")
        for e in range(2):
            a("v_add_f32_dpp v%d, v%d, v%d quad_perm:[1,0,3,2] row_mask:0xf bank_mask:0xf" % (NP + e, NP + e, NP + e))
        emit_ln_finish(a, NP, NP + 1, 2304, NP + 2, NP + 4, NP + 6)
        a("v_mul_f32 v%d, -v%d, v%d" % (NP + 5, NP + 2, NP + 4))
        a("v_lshrrev_b32 v4, 1, v2")
        a("v_and_b32 v5, 3, v4")
        a("v_bfe_u32 v6, v4, 3, 2")
        a("v_lshl_add_u32 v5, v6, 2, v5")
        a("v_bfe_u32 v6, v4, 2, 1")
        a("v_lshl_add_u32 v5, v6, 4, v5")
        a("s_lshl_b32 s79, s3, 8")
        a("s_add_u32 s79, s79, %d" % NTB)
        a("v_lshl_add_u32 v5, v5, 3, s79")
        a("ds_write_b64 v5, %s" % vr(NP + 4, 2))
        for n in range(9):
            a("v_add_u32 v4, %d, v2" % (64 * n))
            a("v_mul_u32_u24 v4, 3641, v4")
            a("v_lshrrev_b32 v4, 16, v4")
            a("v_lshl_add_u32 v%d, v4, 3, s79" % (NA + n))
        a("s_waitcnt lgkmcnt(0)")
        for n in range(9):
            a("ds_read_b64 %s, v%d" % (vr(NV + 2 * n, 2), NA + n))
    def n_piece(n):
        for d in range(4):
            z = ND + 4 * n + d; t_ = NT_ + 2 * d
            a("v_lshlrev_b32 v%d, 16, v%d" % (t_, z))
            a("v_and_b32 v%d, 0xffff0000, v%d" % (t_ + 1, z))
        for d in range(4):
            t_ = NT_ + 2 * d
            a("v_pk_fma_f32 %s, %s, %s, %s op_sel:[0,0,1] op_sel_hi:[1,0,1]" % (vr(t_, 2), vr(t_, 2), vr(NV + 2 * n, 2), vr(NV + 2 * n, 2)))
        for d in range(4):
            a("v_cvt_pk_bf16_f32 v%d, v%d, v%d" % (ND + 4 * n + d, NT_ + 2 * d, NT_ + 2 * d + 1))
        a("buffer_store_dwordx4 %s, v14, s[12:15], s%d offen offset:%d sc1" % (vr(ND + 4 * n), (76, 77, 78)[n >> 2], (n & 3) * 1024))
    a("s_waitcnt vmcnt(%d)" % (27 + nconv))
    a("s_barrier")
    a("s_waitcnt vmcnt(%d)" % (18 + nconv))
    a("s_barrier")
    a("s_add_u32 s3, s3, 4"); stamp_setup(a, 2); stamp(a, 0); a("s_sub_u32 s3, s3, 4")
    a("s_waitcnt vmcnt(%d)" % (9 + nconv))
    a("s_barrier")
    issueT1(4); issueF1(4)
    a("s_waitcnt vmcnt(9)")
    a("s_barrier")
    issueT1(5); issueF1(5)
    n_stats()
    a("s_waitcnt vmcnt(9)")
    a("s_barrier")
    issueT1(6); issueF1(6)
    a("s_waitcnt lgkmcnt(0)")
    for n in range(5): n_piece(n)
    a("s_waitcnt vmcnt(%d)" % (9 + 5))
    a("s_barrier")
    issueT1(7); issueF1(7)
    for n in range(5, 9): n_piece(n)
    a("s_waitcnt vmcnt(%d)" % (5 + 9 + 4))
    a("s_barrier")
    issueT1(8); issueF1(8)
    a("s_waitcnt vmcnt(9)")
    a("s_barrier")
    srd(a, 60, 56, 256)
    a("s_cmp_lg_u32 s3, 0")
    a("s_cbranch_scc1 %s_nosig" % name)
    a("v_mov_b32 v4, 1")
    a("s_lshl_b32 s36, s23, 2")
    a("v_mov_b32 v5, s36")
    a("s_mov_b64 exec, 1")
    a("buffer_atomic_add v4, v5, s[60:63], 0 offen sc1")
    a("s_mov_b64 exec, -1")
    a.label("%s_nosig" % name)
    a("s_waitcnt vmcnt(0)")
    a("s_barrier")
    a("s_barrier")
    a("s_cmp_lg_u32 s3, 0")
    a("s_cbranch_scc1 %s_pzx" % name)
    a("s_lshl_b32 s36, s23, 2")
    a("v_mov_b32 v26, s36")
    a("s_mov_b32 s34, 0")
    a.label("%s_pz" % name)
    a("buffer_load_dword v27, v26, s[60:63], 0 offen sc1")
    a("s_add_u32 s34, s34, 1")
    a("s_waitcnt vmcnt(0)")
    a("v_readfirstlane_b32 s36, v27")
    a("s_cmp_gt_u32 s34, %d" % SPIN_MAX)
    a("s_cbranch_scc1 %s_pzx" % name)
    a("s_cmp_ge_u32 s36, 16")
    a("s_cbranch_scc1 %s_pzx" % name)
    a("s_sleep 24")
    a("s_branch %s_pz" % name)
    a.label("%s_pzx" % name)
    a("s_barrier")
    a("s_mov_b32 s33, 0")
    issue(); issue(); issue(); issue()
    a("s_waitcnt vmcnt(27)")
    a("s_barrier")
    a("s_waitcnt vmcnt(18)")
    a("s_barrier")
    a("s_waitcnt vmcnt(9)")
    a("s_barrier")
    a("s_mov_b32 s34, 4")
    a.label("%s_lloop" % name)
    issue()
    a("s_waitcnt vmcnt(9)")
    a("s_barrier")
    a("s_add_u32 s34, s34, 1")
    a("s_cmp_lt_u32 s34, 32")
    a("s_cbranch_scc1 %s_lloop" % name)
    a("s_waitcnt vmcnt(0) lgkmcnt(0)")
    a("s_barrier")
    stamp(a, 1)
    a("s_mov_b32 s26, s53")
    a("s_and_b32 s27, s3, 1")
    a("s_mul_i32 s27, s27, %d" % CJ_SIZE)
    a("s_lshr_b32 s36, s3, 1")
    a("s_mul_i32 s36, s36, %d" % SLOT)
    a("s_add_u32 s27, s27, s36")
    def mid():
        if "warm2" in DBG:
            a("s_cmp_eq_u32 s99, 1")
            a("s_cbranch_scc1 %s_midskip" % name)
        a("s_barrier")
        a("s_setprio 0")
        a.label("%s_midskip" % name)
    a.label("%s_cjstart" % name)
    if "noconv" in DBG:
        mid()
    else:
        emit_conv_job(a, name, mid)
        G.stamp_rt(a, 1)
    a("s_branch %s_end" % name)
    a.label("%s_consumer" % name)
    a("s_load_dwordx2 s[92:93], s[0:1], 72")
    a("s_load_dwordx2 s[94:95], s[0:1], 80")
    ACC = 128; FB = [16, 52]
    vTa = [4, 5]; vTb = [6, 7]; vF = 8; vFh = 9
    bTa = [88, 89]; bTb = [90, 91]; bF = 92; bFh = 93
    Z1R = 200; BI = 236
    a("s_lshr_b32 s24, s3, 1")
    a("s_and_b32 s25, s3, 1")
    a("v_and_b32 v3, 15, v2")
    a("v_lshrrev_b32 v10, 4, v2")
    a("v_lshrrev_b32 v11, 1, v3")
    a("v_xor_b32 v10, v10, v11")
    a("v_lshlrev_b32 v10, 4, v10")
    a("v_lshl_add_u32 v10, v3, 7, v10")
    a("s_lshl_b32 s26, s24, 13")
    a("v_add_u32 v10, s26, v10")
    a("s_lshl_b32 s26, s25, 12")
    a("v_add_u32 v%d, s26, v10" % bTa[0])
    a("s_xor_b32 s26, s26, 4096")
    a("v_add_u32 v%d, s26, v10" % bTb[0])
    a("v_xor_b32 v%d, 64, v%d" % (bTa[1], bTa[0]))
    a("v_xor_b32 v%d, 64, v%d" % (bTb[1], bTb[0]))
    a("v_lshrrev_b32 v10, 2, v2")
    a("v_mul_u32_u24 v10, %d, v10" % FS)
    a("v_and_b32 v11, 3, v2")
    a("v_lshl_add_u32 v10, v11, 3, v10")
    a("v_add_u32 v10, %d, v10" % TREG)
    a("s_mul_i32 s26, s25, 160")
    a("v_add_u32 v%d, s26, v10" % bF)
    a("v_add_u32 v%d, 128, v10" % bFh)
    for d, s_ in ((vTa[0], bTa[0]), (vTb[0], bTb[0]), (vTa[1], bTa[1]), (vTb[1], bTb[1]), (vF, bF), (vFh, bFh)):
        a("v_mov_b32 v%d, v%d" % (d, s_))
    a("s_waitcnt lgkmcnt(0)")
    srd(a, 12, 6, WS_BYTES)
    srd(a, 28, 92, 2048 * 2)
    srd(a, 60, 56, 256)
    srd(a, 76, 94, 2304 * 576 * 2)
    a("s_mov_b32 s42, s2")
    emit_wot_loads(a, 240, 252, 720, 3)
    MR = 100; CS = 108; ONE = 96
    a("s_lshl_b32 s36, s22, 7")
    a("s_lshl_b32 s37, s24, 6")
    a("s_add_u32 s36, s36, s37")
    a("s_lshl_b32 s36, s36, 3")
    a("s_add_u32 s36, s36, 0x%x" % STATS1)
    a("s_lshl_b32 s37, s25, 8")
    a("s_add_u32 s38, s36, s37")
    a("s_xor_b32 s37, s37, 256")
    a("s_add_u32 s39, s36, s37")
    a("v_lshlrev_b32 v10, 3, v3")
    a("buffer_load_dwordx2 %s, v10, s[12:15], s38 offen" % vr(MR, 2))
    a("buffer_load_dwordx2 %s, v10, s[12:15], s38 offen offset:128" % vr(MR + 2, 2))
    a("buffer_load_dwordx2 %s, v10, s[12:15], s39 offen" % vr(MR + 4, 2))
    a("buffer_load_dwordx2 %s, v10, s[12:15], s39 offen offset:128" % vr(MR + 6, 2))
    for r in range(CS, CS + 20): a("v_mov_b32 v%d, 0" % r)
    for r in range(ONE, ONE + 4): a("v_mov_b32 v%d, 0x3f803f80" % r)
    stamp_setup(a, 2); stamp(a, 0)
    a("s_mov_b32 s99, 0")
    for r in range(ACC, ACC + 72): a("v_mov_b32 v%d, 0" % r)
    a("s_mov_b32 s27, 0")
    a("s_mov_b32 s33, 0")
    core = G.Core(a, ACC, FB[0], FB[1], FS, TREG, vTa, vTb, vF, vFh)
    trk = core.trk
    a("s_barrier")
    stamp(a, 1)
    core.prime(0, core.reads(0, 0))
    withcs = [True]
    def mfmas(buf):
        L = []
        for ft in range(5):
            A = core.F(buf, ft)
            for tt in range(4 if ft < 4 else 2):
                c = core.accr(ft, tt); B = core.T(buf, tt)
                L.append(("v_mfma_f32_16x16x32_bf16 %s, %s, %s, %s" % (vr(c), vr(A), vr(B), vr(c)), list(range(A, A + 4)) + list(range(B, B + 4))))
            if withcs[0]:
                L.append(("v_mfma_f32_16x16x32_bf16 %s, %s, %s, %s" % (vr(CS + 4 * ft), vr(A), vr(ONE), vr(CS + 4 * ft)), list(range(A, A + 4))))
        return L
    def phase(buf, pend):
        for (m, regs) in mfmas(buf):
            trk.need(regs)
            a(m)
            while pend:
                k, t = pend.pop(0)
                if k == "x":
                    a(t)
                    if t.startswith("s_"): continue
                else:
                    a(t[0]); trk.issue(t[1])
                break
        for k, t in pend:
            if k == "x": a(t)
            else: a(t[0]); trk.issue(t[1])
    def iteration(extra=None):
        a("s_barrier")
        rd = [("r", t) for t in core.reads(1, 1)]
        upd = ["s_add_u32 s27, s27, %d" % SLOT, "s_cmp_eq_u32 s27, %d" % (R * SLOT), "s_cselect_b32 s27, 0, s27"]
        tail = ["v_add_u32 v%d, s27, v%d" % (d, s_) for d, s_ in ((vTa[0], bTa[0]), (vF, bF), (vTb[0], bTb[0]), (vFh, bFh))]
        phase(0, rd[:1] + [("x", u) for u in upd] + rd[1:] + [("x", u) for u in tail])
        rd = [("r", t) for t in core.reads(0, 0)]
        tail = ["v_add_u32 v%d, s27, v%d" % (d, s_) for d, s_ in ((vTa[1], bTa[1]), (vTb[1], bTb[1]))] + ["s_add_u32 s33, s33, 1"]
        phase(1, rd + [("x", u) for u in tail])
    trk.drain()
    a.label("%s_zloop" % name)
    lb = len(a.lines); iteration(); st = copy.deepcopy(trk.out); del a.lines[lb:]; trk.out = copy.deepcopy(st)
    iteration()
    assert [sorted(x) for x in trk.out] == [sorted(x) for x in st]
    a("s_cmp_lt_u32 s33, 9")
    a("s_cbranch_scc1 %s_zloop" % name)
    trk.drain()
    a("s_barrier")
    stamp(a, 5)
    gelu_consts(a)
    a("s_waitcnt vmcnt(0)")
    for tt in range(4): a("v_sub_f32 v%d, 0, v%d" % (MR + 2 * tt, MR + 2 * tt))
    a("s_mov_b32 s35, 0x%x" % WOT)
    for n in range(3):
        a("buffer_store_dwordx4 %s, v%d, s[12:15], s35 offen" % (vr(240 + 4 * n), 252 + n))
    for ft in range(5):
        tts = range(4 if ft < 4 else 2)
        emit_fold_gelu(a, [(core.accr(ft, tt), CS + 4 * ft, MR + 2 * tt, Z1R + 2 * tidx(ft, tt)) for tt in tts], 56)
    for r in range(ACC, ACC + 72): a("v_mov_b32 v%d, 0" % r)
    a("s_mov_b32 s33, 0")
    a("s_mov_b32 s27, 0")
    for d, s_ in ((vTa[0], bTa[0]), (vTb[0], bTb[0]), (vTa[1], bTa[1]), (vTb[1], bTb[1]), (vF, bF), (vFh, bFh)):
        a("v_mov_b32 v%d, v%d" % (d, s_))
    stamp(a, 6)
    a("s_barrier")
    core.prime(0, core.reads(0, 0))
    trk.drain()
    withcs[0] = False
    a.label("%s_cloop" % name)
    lb = len(a.lines); iteration(); st = copy.deepcopy(trk.out); del a.lines[lb:]; trk.out = copy.deepcopy(st)
    iteration()
    assert [sorted(x) for x in trk.out] == [sorted(x) for x in st]
    a("s_cmp_lg_u32 s33, 24")
    a("s_cbranch_scc1 %s_noz" % name)
    a("s_lshl_b32 s36, s22, 7")
    a("s_lshl_b32 s37, s24, 6")
    a("s_add_u32 s36, s36, s37")
    a("v_lshlrev_b32 v11, 1, v3")
    a("s_lshl_b32 s37, s25, 6")
    a("s_lshl_b32 s38, s36, 1")
    a("s_add_u32 s39, s38, s37")
    a("s_xor_b32 s37, s37, 64")
    a("s_add_u32 s40, s38, s37")
    a("buffer_load_ushort v%d, v11, s[28:31], s39 offen" % (BI + 0))
    a("buffer_load_ushort v%d, v11, s[28:31], s39 offen offset:32" % (BI + 2))
    a("buffer_load_ushort v%d, v11, s[28:31], s40 offen" % (BI + 4))
    a("buffer_load_ushort v%d, v11, s[28:31], s40 offen offset:32" % (BI + 6))
    a.label("%s_noz" % name)
    a("s_cmp_lt_u32 s33, %d" % NST)
    a("s_cbranch_scc1 %s_cloop" % name)
    trk.drain()
    stamp(a, 2)
    a.label("%s_epi" % name)
    a("v_lshrrev_b32 v10, 4, v2")
    a("v_and_b32 v11, 1, v10")
    a("v_lshrrev_b32 v12, 1, v10")
    a("v_lshl_add_u32 v12, v11, 1, v12")
    a("s_mul_i32 s35, s23, 18")
    a("s_mul_i32 s36, s25, 10")
    a("s_add_u32 s36, s36, s35")
    a("v_lshrrev_b32 v13, 1, v3")
    a("s_lshl_b32 s37, s22, 1")
    a("s_add_u32 s37, s37, s24")
    a("s_mul_i32 s37, s37, %d" % (36 * 8192))
    a("s_add_u32 s37, s37, 0x%x" % PIMG)
    a("s_lshl_b32 s38, s25, 12")
    a("s_add_u32 s39, s37, s38")
    a("s_xor_b32 s38, s38, 4096")
    a("s_add_u32 s40, s37, s38")
    def addr(dst, pv):
        a("v_lshrrev_b32 v14, 3, v%d" % pv)
        a("v_lshlrev_b32 v14, 13, v14")
        a("v_and_b32 v15, 7, v%d" % pv)
        a("v_xor_b32 v15, v15, v13")
        a("v_lshl_add_u32 v14, v15, 4, v14")
        a("v_lshl_add_u32 v%d, v3, 7, v14" % dst)
    a("v_add_u32 v16, s36, v12"); addr(4, 16)
    a("v_add_u32 v16, 4, v16"); addr(5, 16)
    a("v_lshrrev_b32 v16, 1, v10")
    a("s_add_u32 s35, s35, 8")
    a("v_add_u32 v16, s35, v16"); addr(6, 16)
    a("v_lshl_add_u32 v6, v11, 11, v6")
    a("s_waitcnt vmcnt(0)")
    for tt in range(4):
        a("v_lshlrev_b32 v%d, 16, v%d" % (BI + 2 * tt, BI + 2 * tt))
    stamp(a, 3)
    def ptiles(lst, O):
        T = 24
        for q, (ft, tt) in enumerate(lst):
            c = core.accr(ft, tt)
            for h in (0, 2):
                a("v_pk_add_f32 %s, %s, %s op_sel_hi:[1,0]" % (vr(c + h, 2), vr(c + h, 2), vr(BI + 2 * tt, 2)))
        for q, (ft, tt) in enumerate(lst):
            c = core.accr(ft, tt)
            a("v_cvt_pk_bf16_f32 v%d, v%d, v%d" % (T + 2 * q, c, c + 1))
            a("v_cvt_pk_bf16_f32 v%d, v%d, v%d" % (T + 2 * q + 1, c + 2, c + 3))
        for q, (ft, tt) in enumerate(lst):
            c = core.accr(ft, tt); z = Z1R + 2 * tidx(ft, tt)
            for d in range(2):
                a("v_lshlrev_b32 v%d, 16, v%d" % (c + 2 * d, T + 2 * q + d))
                a("v_and_b32 v%d, 0xffff0000, v%d" % (c + 2 * d + 1, T + 2 * q + d))
                a("v_lshlrev_b32 v%d, 16, v%d" % (T + 4 + 4 * q + 2 * d, z + d))
                a("v_and_b32 v%d, 0xffff0000, v%d" % (T + 5 + 4 * q + 2 * d, z + d))
        for q, (ft, tt) in enumerate(lst):
            c = core.accr(ft, tt)
            for h in (0, 2):
                a("v_pk_mul_f32 %s, %s, %s" % (vr(c + h, 2), vr(c + h, 2), vr(T + 4 + 4 * q + h, 2)))
        for q, (ft, tt) in enumerate(lst):
            c = core.accr(ft, tt)
            a("v_cvt_pk_bf16_f32 v%d, v%d, v%d" % (O + 2 * q, c, c + 1))
            a("v_cvt_pk_bf16_f32 v%d, v%d, v%d" % (O + 2 * q + 1, c + 2, c + 3))
        a("s_nop 1")
        a("v_permlane16_swap_b32 v%d, v%d" % (O, O + 2))
        a("v_permlane16_swap_b32 v%d, v%d" % (O + 1, O + 3))
        a("s_nop 0")
    cnt = 0
    for pr in range(2):
        for tt in range(4):
            O = 40 + 4 * cnt; cnt += 1
            ptiles([(2 * pr, tt), (2 * pr + 1, tt)], O)
            a("buffer_store_dwordx4 %s, v%d, s[12:15], s%d offen offset:%d" % (vr(O), 4 + pr, 39 if tt < 2 else 40, (tt & 1) * 2048))
    O = 40 + 4 * cnt
    ptiles([(4, 0), (4, 1)], O)
    a("buffer_store_dwordx4 %s, v6, s[12:15], s39 offen" % vr(O))
    seg_end2(a, name)
    stamp(a, 4)
    G.stamp_rt(a, 1)
    a.label("%s_end" % name)
    a("s_endpgm")
    return a.text(), kernel_desc(name, 256, 256), (name, 256, 512, R * SLOT + 1024)


def gen_k2f(name="k2_kernel", R=4):
    a = Asm()
    SLOT = 34816; TREG = 16384; FS = 288; NST = 32
    kernel_begin(a, name)
    a("s_load_dwordx2 s[4:5], s[0:1], 64")
    a("s_load_dwordx2 s[6:7], s[0:1], 104")
    a("s_load_dwordx4 s[88:91], s[0:1], 32")
    a("s_load_dwordx2 s[80:81], s[0:1], 0")
    a("s_load_dwordx2 s[82:83], s[0:1], 56")
    a("s_load_dwordx2 s[56:57], s[0:1], 96")
    a("s_cmp_ge_u32 s2, 256")
    a("s_cbranch_scc1 %s_end" % name)
    a("v_lshrrev_b32 v1, 6, v0")
    a("v_and_b32 v2, 63, v0")
    a("v_readfirstlane_b32 s3, v1")
    G2.tile_ij(a)
    a("s_cmp_lt_u32 s3, 4")
    a("s_cbranch_scc1 %s_consumer" % name)
    if "noprio" not in DBG: a("s_setprio 3")
    a("s_sub_u32 s3, s3, 4")
    a("v_lshrrev_b32 v3, 3, v2")
    a("s_lshl_b32 s24, s3, 5")
    a("v_add_u32 v3, s24, v3")
    a("v_and_b32 v4, 7, v2")
    a("v_lshrrev_b32 v6, 4, v2")
    a("v_xor_b32 v6, v6, v4")
    a("v_lshlrev_b32 v6, 4, v6")
    a("v_lshl_add_u32 v10, v3, 12, v6")
    a("v_xor_b32 v11, 64, v10")
    a("v_add_u32 v11, %d, v11" % (32768 - 1024))
    a("v_add_u32 v12, %d, v10" % (2 * (32768 - 1024)))
    a("v_add_u32 v13, %d, v11" % (2 * (32768 - 1024)))
    a("v_lshlrev_b32 v14, 4, v2")
    a("s_lshl_b32 s26, s22, 19")
    a("s_mul_i32 s27, s23, %d" % (32 * 18432))
    a("s_lshl_b32 s24, s3, 12")
    a("s_add_u32 s27, s27, s24")
    if ZIMG: a("s_add_u32 s27, s27, 0x%x" % ZIMG)
    a("s_lshl_b32 s25, s3, 9")
    a("s_sub_u32 s32, s25, s24")
    a("s_add_u32 s32, s32, 16384")
    a("s_mov_b32 s33, 0")
    a("s_waitcnt lgkmcnt(0)")
    srd(a, 8, 4, 2048 * 2048 * 2)
    srd(a, 12, 6, WS_BYTES)
    def issue():
        a("s_add_u32 s35, s33, s24")
        a("s_mov_b32 m0, s35")
        a("s_add_u32 s36, s35, %d" % TREG)
        for n in range(4):
            a("buffer_load_dwordx4 v%d, s[8:11], s26 offen offset:%d lds" % (10 + n, n * 1024))
        a("s_mov_b32 m0, s36")
        a("s_add_u32 s37, s27, s32")
        for n in range(4):
            a("buffer_load_dwordx4 v14, s[12:15], s27 offen offset:%d sc1 lds" % (n * 1024))
        a("s_add_u32 s36, s36, s32")
        a("s_mov_b32 m0, s36")
        a("s_mov_b64 exec, 0xffffffff")
        a("buffer_load_dwordx4 v14, s[12:15], s37 offen sc1 lds")
        a("s_mov_b64 exec, -1")
        a("s_add_u32 s26, s26, 128")
        a("s_add_u32 s27, s27, 18432")
        a("s_add_u32 s33, s33, %d" % SLOT)
        a("s_cmp_eq_u32 s33, %d" % (R * SLOT))
        a("s_cselect_b32 s33, 0, s33")
    srd(a, 16, 88, 576 * 2048 * 2)
    srd(a, 84, 90, 576 * 2)
    a("s_lshl_b32 s43, s2, 2")
    a("s_add_u32 s43, s43, s3")
    a("s_and_b32 s53, s43, 1")
    a("s_sub_u32 s36, s43, 448")
    a("s_lshr_b32 s37, s43, 1")
    a("s_cmp_ge_u32 s43, 896")
    a("s_cselect_b32 s43, s36, s37")
    a("s_cselect_b32 s53, 2, s53")
    VT = 16; VF = 20
    srd(a, 64, 80, 2048 * 576 * 2)
    srd(a, 68, 82, 576 * 4608 * 2)
    a("v_mul_u32_u24 v5, 1152, v3")
    a("v_add_u32 v%d, v5, v6" % VT)
    a("v_xor_b32 v%d, 64, v%d" % (VT + 1, VT))
    a("v_add_u32 v%d, %d, v%d" % (VT + 1, 9216 - 1024, VT + 1))
    a("v_add_u32 v%d, %d, v%d" % (VT + 2, 2 * (9216 - 1024), VT))
    a("v_add_u32 v%d, %d, v%d" % (VT + 3, 2 * (9216 - 1024), VT + 1))
    a("s_mul_i32 s72, s22, %d" % (128 * 1152))
    a("s_mul_i32 s73, s23, 288")
    a("s_add_u32 s74, s25, %d" % (TREG + 16384))
    def issueT1(g):
        a("s_add_u32 s35, s24, %d" % ((g % R) * SLOT))
        a("s_mov_b32 m0, s35")
        a("s_add_u32 s36, s72, %d" % (128 * g))
        for n in range(4):
            a("buffer_load_dwordx4 v%d, s[64:67], s36 offen offset:%d lds" % (VT + n, 1024 * n))
    def issueF1(g):
        a("s_add_u32 s35, s24, %d" % ((g % R) * SLOT + TREG))
        a("s_mov_b32 m0, s35")
        a("s_add_u32 s36, s73, %d" % (64 * 9216 * g))
        for n in range(4):
            a("buffer_load_dwordx4 v%d, s[68:71], s36 offen offset:%d lds" % (VF + n, 1024 * n))
        a("s_add_u32 s35, s74, %d" % ((g % R) * SLOT))
        a("s_mov_b32 m0, s35")
        a("s_mov_b64 exec, 0xffffffff")
        a("buffer_load_dwordx4 v%d, s[68:71], s36 offen lds" % (VF + 4))
        a("s_mov_b64 exec, -1")
    issueT1(0)
    for n in range(5):
        if n < 4:
            a("s_lshl_b32 s36, s3, 8")
            a("s_add_u32 s36, s36, %d" % (64 * n))
        else:
            a("s_lshl_b32 s36, s3, 5")
            a("s_add_u32 s36, s36, 1024")
        a("v_add_u32 v6, s36, v2")
        a("v_mul_u32_u24 v7, 3641, v6")
        a("v_lshrrev_b32 v7, 16, v7")
        a("v_mul_u32_u24 v8, 18, v7")
        a("v_sub_u32 v8, v6, v8")
        a("v_and_b32 v9, 35, v7")
        a("v_bfe_u32 v6, v7, 2, 2")
        a("v_lshl_add_u32 v9, v6, 3, v9")
        a("v_bfe_u32 v6, v7, 4, 1")
        a("v_lshl_add_u32 v9, v6, 2, v9")
        a("v_mul_u32_u24 v9, 9216, v9")
        a("v_lshl_add_u32 v%d, v8, 4, v9" % (VF + n))
        if 0 < n < 4: a("v_subrev_u32 v%d, %d, v%d" % (VF + n, 1024 * n, VF + n))
    issueF1(0)
    for g in (1, 2, 3): issueT1(g); issueF1(g)
    nconv = emit_conv_loads(a)
    NTB = R * SLOT; LFLAG = NTB + 1024
    a("v_mov_b32 v26, %d" % LFLAG)
    a("v_mov_b32 v27, 0")
    a("ds_write_b32 v26, v27")
    a("s_waitcnt vmcnt(%d) lgkmcnt(0)" % (27 + nconv))
    a("s_barrier")
    a("s_waitcnt vmcnt(%d)" % (18 + nconv))
    a("s_barrier")
    a("s_add_u32 s3, s3, 4"); stamp_setup(a, 2); stamp(a, 0); a("s_sub_u32 s3, s3, 4")
    a("s_waitcnt vmcnt(%d)" % (9 + nconv))
    a("s_barrier")
    for kk in range(1, 8):
        if kk + 3 < 9:
            issueT1(kk + 3); issueF1(kk + 3)
            a("s_waitcnt vmcnt(%d)" % (9 + (nconv if kk == 1 else 0)))
        elif kk == 6:
            a("s_waitcnt vmcnt(0)")
        a("s_barrier")
    srd(a, 60, 56, 256)
    a("s_barrier")
    for g in range(4):
        a("s_add_u32 s35, s24, %d" % (g * SLOT))
        a("s_mov_b32 m0, s35")
        a("s_add_u32 s36, s26, %d" % (128 * g))
        for n in range(4):
            a("buffer_load_dwordx4 v%d, s[8:11], s36 offen offset:%d lds" % (10 + n, n * 1024))
    a("s_mov_b32 s34, 0")
    a("s_cmp_lg_u32 s3, 0")
    a("s_cbranch_scc1 %s_pl" % name)
    a("s_lshl_b32 s36, s23, 2")
    a("v_mov_b32 v28, s36")
    a.label("%s_pz" % name)
    a("buffer_load_dword v29, v28, s[60:63], 0 offen sc1")
    a("s_add_u32 s34, s34, 1")
    a("s_waitcnt vmcnt(0)")
    a("v_readfirstlane_b32 s36, v29")
    a("s_cmp_gt_u32 s34, %d" % SPIN_MAX)
    a("s_cbranch_scc1 %s_pzx" % name)
    a("s_cmp_ge_u32 s36, 16")
    a("s_cbranch_scc1 %s_pzx" % name)
    a("s_sleep 16")
    a("s_branch %s_pz" % name)
    a.label("%s_pzx" % name)
    a("v_mov_b32 v27, 1")
    a("ds_write_b32 v26, v27")
    a("s_branch %s_pgo" % name)
    a.label("%s_pl" % name)
    a("ds_read_b32 v27, v26")
    a("s_add_u32 s34, s34, 1")
    a("s_waitcnt lgkmcnt(0)")
    a("v_readfirstlane_b32 s36, v27")
    a("s_cmp_gt_u32 s34, %d" % (SPIN_MAX * 20))
    a("s_cbranch_scc1 %s_pgo" % name)
    a("s_cmp_lg_u32 s36, 0")
    a("s_cbranch_scc1 %s_pgo" % name)
    a("s_sleep 2")
    a("s_branch %s_pl" % name)
    a.label("%s_pgo" % name)
    stamp(a, 8)
    for g in range(4):
        a("s_add_u32 s35, s24, %d" % (g * SLOT + TREG))
        a("s_mov_b32 m0, s35")
        a("s_add_u32 s36, s27, %d" % (18432 * g))
        a("s_add_u32 s37, s36, s32")
        for n in range(4):
            a("buffer_load_dwordx4 v14, s[12:15], s36 offen offset:%d sc1 lds" % (n * 1024))
        a("s_add_u32 s35, s35, s32")
        a("s_mov_b32 m0, s35")
        a("s_mov_b64 exec, 0xffffffff")
        a("buffer_load_dwordx4 v14, s[12:15], s37 offen sc1 lds")
        a("s_mov_b64 exec, -1")
    a("s_add_u32 s26, s26, 512")
    a("s_add_u32 s27, s27, %d" % (4 * 18432))
    a("s_mov_b32 s33, 0")
    a("s_waitcnt vmcnt(15)")
    a("s_barrier")
    a("s_waitcnt vmcnt(10)")
    a("s_barrier")
    a("s_waitcnt vmcnt(5)")
    a("s_barrier")
    a("s_mov_b32 s34, 4")
    a.label("%s_lloop" % name)
    issue()
    a("s_waitcnt vmcnt(9)")
    a("s_barrier")
    a("s_add_u32 s34, s34, 1")
    a("s_cmp_lt_u32 s34, 32")
    a("s_cbranch_scc1 %s_lloop" % name)
    a("s_waitcnt vmcnt(0) lgkmcnt(0)")
    a("s_barrier")
    stamp(a, 1)
    a("s_mov_b32 s26, s53")
    a("s_and_b32 s27, s3, 1")
    a("s_mul_i32 s27, s27, %d" % CJ_SIZE)
    a("s_lshr_b32 s36, s3, 1")
    a("s_mul_i32 s36, s36, %d" % SLOT)
    a("s_add_u32 s27, s27, s36")
    def mid():
        if "warm2" in DBG:
            a("s_cmp_eq_u32 s99, 1")
            a("s_cbranch_scc1 %s_midskip" % name)
        a("s_barrier")
        a("s_setprio 0")
        a.label("%s_midskip" % name)
    a.label("%s_cjstart" % name)
    if "noconv" in DBG:
        mid()
    else:
        emit_conv_job(a, name, mid)
        G.stamp_rt(a, 1)
    a("s_branch %s_end" % name)
    a.label("%s_consumer" % name)
    a("s_load_dwordx2 s[92:93], s[0:1], 72")
    a("s_load_dwordx2 s[94:95], s[0:1], 80")
    ACC = 128; FB = [16, 52]
    vTa = [4, 5]; vTb = [6, 7]; vF = 8; vFh = 9
    bTa = [88, 89]; bTb = [90, 91]; bF = 92; bFh = 93
    Z1R = 200; BI = 236
    a("s_lshr_b32 s24, s3, 1")
    a("s_and_b32 s25, s3, 1")
    a("v_and_b32 v3, 15, v2")
    a("v_lshrrev_b32 v10, 4, v2")
    a("v_lshrrev_b32 v11, 1, v3")
    a("v_xor_b32 v10, v10, v11")
    a("v_lshlrev_b32 v10, 4, v10")
    a("v_lshl_add_u32 v10, v3, 7, v10")
    a("s_lshl_b32 s26, s24, 13")
    a("v_add_u32 v10, s26, v10")
    a("s_lshl_b32 s26, s25, 12")
    a("v_add_u32 v%d, s26, v10" % bTa[0])
    a("s_xor_b32 s26, s26, 4096")
    a("v_add_u32 v%d, s26, v10" % bTb[0])
    a("v_xor_b32 v%d, 64, v%d" % (bTa[1], bTa[0]))
    a("v_xor_b32 v%d, 64, v%d" % (bTb[1], bTb[0]))
    a("v_lshrrev_b32 v10, 2, v2")
    a("v_mul_u32_u24 v10, %d, v10" % FS)
    a("v_and_b32 v11, 3, v2")
    a("v_lshl_add_u32 v10, v11, 3, v10")
    a("v_add_u32 v10, %d, v10" % TREG)
    a("s_mul_i32 s26, s25, 160")
    a("v_add_u32 v%d, s26, v10" % bF)
    a("v_add_u32 v%d, 128, v10" % bFh)
    for d, s_ in ((vTa[0], bTa[0]), (vTb[0], bTb[0]), (vTa[1], bTa[1]), (vTb[1], bTb[1]), (vF, bF), (vFh, bFh)):
        a("v_mov_b32 v%d, v%d" % (d, s_))
    a("s_waitcnt lgkmcnt(0)")
    srd(a, 12, 6, WS_BYTES)
    srd(a, 28, 92, 2048 * 2)
    srd(a, 60, 56, 256)
    MR = 100; CS = 108; ONE = 96
    a("s_lshl_b32 s36, s22, 7")
    a("s_lshl_b32 s37, s24, 6")
    a("s_add_u32 s36, s36, s37")
    a("s_lshl_b32 s36, s36, 3")
    a("s_add_u32 s36, s36, 0x%x" % STATS1)
    a("s_lshl_b32 s37, s25, 8")
    a("s_add_u32 s38, s36, s37")
    a("s_xor_b32 s37, s37, 256")
    a("s_add_u32 s39, s36, s37")
    a("v_lshlrev_b32 v10, 3, v3")
    a("buffer_load_dwordx2 %s, v10, s[12:15], s38 offen" % vr(MR, 2))
    a("buffer_load_dwordx2 %s, v10, s[12:15], s38 offen offset:128" % vr(MR + 2, 2))
    a("buffer_load_dwordx2 %s, v10, s[12:15], s39 offen" % vr(MR + 4, 2))
    a("buffer_load_dwordx2 %s, v10, s[12:15], s39 offen offset:128" % vr(MR + 6, 2))
    NP = 240; ND = 200
    a("s_lshl_b32 s58, s22, 7")
    a("s_lshl_b32 s37, s3, 5")
    a("s_add_u32 s58, s58, s37")
    a("s_lshl_b32 s58, s58, 8")
    a("s_add_u32 s58, s58, 0x%x" % STATS2)
    a("v_lshlrev_b32 v12, 7, v2")
    for q in range(4):
        a("buffer_load_dwordx4 %s, v12, s[12:15], s58 offen offset:%d" % (vr(NP + 4 * q), 16 * q))
    a("s_lshl_b32 s52, s23, 5")
    a("s_lshl_b32 s37, s22, 1")
    a("s_add_u32 s52, s52, s37")
    a("s_mul_i32 s52, s52, 18432")
    a("s_mul_i32 s37, s3, 9216")
    a("s_add_u32 s52, s52, s37")
    if ZIMG: a("s_add_u32 s52, s52, 0x%x" % ZIMG)
    a("s_add_u32 s53, s52, 4096")
    a("s_add_u32 s59, s52, 8192")
    a("v_lshlrev_b32 v13, 4, v2")
    for n in range(9):
        a("buffer_load_dwordx4 %s, v13, s[12:15], s%d offen offset:%d sc1" % (vr(ND + 4 * n), (52, 53, 59)[n >> 2], (n & 3) * 1024))
    for r in range(CS, CS + 20): a("v_mov_b32 v%d, 0" % r)
    for r in range(ONE, ONE + 4): a("v_mov_b32 v%d, 0x3f803f80" % r)
    stamp_setup(a, 2); stamp(a, 0)
    a("s_mov_b32 s99, 0")
    for r in range(ACC, ACC + 72): a("v_mov_b32 v%d, 0" % r)
    a("s_mov_b32 s27, 0")
    a("s_mov_b32 s33, 0")
    core = G.Core(a, ACC, FB[0], FB[1], FS, TREG, vTa, vTb, vF, vFh)
    trk = core.trk
    a("s_barrier")
    stamp(a, 1)
    core.prime(0, core.reads(0, 0))
    withcs = [True]
    def mfmas(buf):
        L = []
        for ft in range(5):
            A = core.F(buf, ft)
            for tt in range(4 if ft < 4 else 2):
                c = core.accr(ft, tt); B = core.T(buf, tt)
                L.append(("v_mfma_f32_16x16x32_bf16 %s, %s, %s, %s" % (vr(c), vr(A), vr(B), vr(c)), list(range(A, A + 4)) + list(range(B, B + 4))))
            if withcs[0]:
                L.append(("v_mfma_f32_16x16x32_bf16 %s, %s, %s, %s" % (vr(CS + 4 * ft), vr(A), vr(ONE), vr(CS + 4 * ft)), list(range(A, A + 4))))
        return L
    def phase(buf, pend):
        for (m, regs) in mfmas(buf):
            trk.need(regs)
            a(m)
            while pend:
                k, t = pend.pop(0)
                if k == "x":
                    a(t)
                    if t.startswith("s_"): continue
                else:
                    a(t[0]); trk.issue(t[1])
                break
        for k, t in pend:
            if k == "x": a(t)
            else: a(t[0]); trk.issue(t[1])
    def iteration(extra=None):
        a("s_barrier")
        rd = [("r", t) for t in core.reads(1, 1)]
        upd = ["s_add_u32 s27, s27, %d" % SLOT, "s_cmp_eq_u32 s27, %d" % (R * SLOT), "s_cselect_b32 s27, 0, s27"]
        tail = ["v_add_u32 v%d, s27, v%d" % (d, s_) for d, s_ in ((vTa[0], bTa[0]), (vF, bF), (vTb[0], bTb[0]), (vFh, bFh))]
        phase(0, rd[:1] + [("x", u) for u in upd] + rd[1:] + [("x", u) for u in tail])
        rd = [("r", t) for t in core.reads(0, 0)]
        tail = ["v_add_u32 v%d, s27, v%d" % (d, s_) for d, s_ in ((vTa[1], bTa[1]), (vTb[1], bTb[1]))] + ["s_add_u32 s33, s33, 1"]
        phase(1, rd + [("x", u) for u in tail])
    trk.drain()
    a.label("%s_zloop" % name)
    lb = len(a.lines); iteration(); st = copy.deepcopy(trk.out); del a.lines[lb:]; trk.out = copy.deepcopy(st)
    iteration()
    assert [sorted(x) for x in trk.out] == [sorted(x) for x in st]
    a("s_cmp_lg_u32 s33, 2")
    a("s_cbranch_scc1 %s_h1" % name)
    a("s_waitcnt vmcnt(9)")
    for st_ in (8, 4, 2):
        for q in range(0, st_, 2):
            a("v_pk_add_f32 %s, %s, %s" % (vr(NP + q, 2), vr(NP + q, 2), vr(NP + q + st_, 2)))
    a("v_mov_b32 v94, v%d" % NP); a("v_mov_b32 v95, v%d" % (NP + 1))
    for q in range(4):
        a("buffer_load_dwordx4 %s, v12, s[12:15], s58 offen offset:%d" % (vr(NP + 4 * q), 64 + 16 * q))
    a.label("%s_h1" % name)
    a("s_cmp_lg_u32 s33, 4")
    a("s_cbranch_scc1 %s_h2" % name)
    a("s_waitcnt vmcnt(0)")
    for st_ in (8, 4, 2):
        for q in range(0, st_, 2):
            a("v_pk_add_f32 %s, %s, %s" % (vr(NP + q, 2), vr(NP + q, 2), vr(NP + q + st_, 2)))
    a("v_pk_add_f32 %s, %s, v[94:95]" % (vr(NP, 2), vr(NP, 2)))
    a("s_nop 1")
    for e in range(2):
        a("v_add_f32_dpp v%d, v%d, v%d quad_perm:[1,0,3,2] row_mask:0xf bank_mask:0xf" % (NP + e, NP + e, NP + e))
    emit_ln_finish(a, NP, NP + 1, 2304, NP + 2, NP + 4, NP + 6)
    a("v_mul_f32 v%d, -v%d, v%d" % (NP + 5, NP + 2, NP + 4))
    a("v_lshrrev_b32 v10, 1, v2")
    a("v_and_b32 v11, 3, v10")
    a("v_bfe_u32 v12, v10, 3, 2")
    a("v_lshl_add_u32 v11, v12, 2, v11")
    a("v_bfe_u32 v12, v10, 2, 1")
    a("v_lshl_add_u32 v11, v12, 4, v11")
    a("s_lshl_b32 s36, s3, 8")
    a("s_add_u32 s36, s36, %d" % NTB)
    a("v_lshl_add_u32 v11, v11, 3, s36")
    a("ds_write_b64 v11, %s" % vr(NP + 4, 2))
    a("s_waitcnt lgkmcnt(0)")
    for n0_ in (0, 3, 6):
        for n in range(n0_, n0_ + 3):
            a("v_add_u32 v10, %d, v2" % (64 * n))
            a("v_mul_u32_u24 v10, 3641, v10")
            a("v_lshrrev_b32 v10, 16, v10")
            a("v_lshl_add_u32 v10, v10, 3, s36")
            a("ds_read_b64 %s, v10" % vr(NP + 8 + 2 * (n - n0_), 2))
        a("s_waitcnt lgkmcnt(0)")
        for n in range(n0_, n0_ + 3):
            tb = NP + 8 + 2 * (n - n0_)
            for d in range(4):
                z = ND + 4 * n + d; t_ = NP + 2 * d
                a("v_lshlrev_b32 v%d, 16, v%d" % (t_, z))
                a("v_and_b32 v%d, 0xffff0000, v%d" % (t_ + 1, z))
            for d in range(4):
                t_ = NP + 2 * d
                a("v_pk_fma_f32 %s, %s, %s, %s op_sel:[0,0,1] op_sel_hi:[1,0,1]" % (vr(t_, 2), vr(t_, 2), vr(tb, 2), vr(tb, 2)))
            for d in range(4):
                a("v_cvt_pk_bf16_f32 v%d, v%d, v%d" % (ND + 4 * n + d, NP + 2 * d, NP + 2 * d + 1))
            a("buffer_store_dwordx4 %s, v13, s[12:15], s%d offen offset:%d sc1" % (vr(ND + 4 * n), (52, 53, 59)[n >> 2], (n & 3) * 1024))
    a.label("%s_h2" % name)
    a("s_cmp_lg_u32 s33, 7")
    a("s_cbranch_scc1 %s_h3" % name)
    a("s_waitcnt vmcnt(0)")
    a.label("%s_h3" % name)
    a("s_lshl_b32 s36, s3, 8")
    a("s_add_u32 s36, s36, s33")
    a("s_cmp_lg_u32 s36, 8")
    a("s_cbranch_scc1 %s_h4" % name)
    a("v_mov_b32 v10, 1")
    a("s_lshl_b32 s36, s23, 2")
    a("v_mov_b32 v11, s36")
    a("s_mov_b64 exec, 1")
    a("buffer_atomic_add v10, v11, s[60:63], 0 offen sc1")
    a("s_mov_b64 exec, -1")
    a.label("%s_h4" % name)
    a("s_cmp_lt_u32 s33, 9")
    a("s_cbranch_scc1 %s_zloop" % name)
    trk.drain()
    a("s_barrier")
    stamp(a, 5)
    gelu_consts(a)
    a("s_waitcnt vmcnt(0)")
    for tt in range(4): a("v_sub_f32 v%d, 0, v%d" % (MR + 2 * tt, MR + 2 * tt))
    for ft in range(5):
        tts = range(4 if ft < 4 else 2)
        emit_fold_gelu(a, [(core.accr(ft, tt), CS + 4 * ft, MR + 2 * tt, Z1R + 2 * tidx(ft, tt)) for tt in tts], 56)
    for r in range(ACC, ACC + 72): a("v_mov_b32 v%d, 0" % r)
    srd(a, 76, 94, 2304 * 576 * 2)
    a("s_mov_b32 s42, s2")
    emit_wot_loads(a, 240, 252, 720, 3)
    a("s_mov_b32 s33, 0")
    a("s_mov_b32 s27, 0")
    for d, s_ in ((vTa[0], bTa[0]), (vTb[0], bTb[0]), (vTa[1], bTa[1]), (vTb[1], bTb[1]), (vF, bF), (vFh, bFh)):
        a("v_mov_b32 v%d, v%d" % (d, s_))
    stamp(a, 6)
    a("s_barrier")
    core.prime(0, core.reads(0, 0))
    trk.drain()
    withcs[0] = False
    a.label("%s_cloop" % name)
    lb = len(a.lines); iteration(); st = copy.deepcopy(trk.out); del a.lines[lb:]; trk.out = copy.deepcopy(st)
    iteration()
    assert [sorted(x) for x in trk.out] == [sorted(x) for x in st]
    a("s_cmp_lg_u32 s33, 24")
    a("s_cbranch_scc1 %s_noz" % name)
    a("s_mov_b32 s35, 0x%x" % WOT)
    a("s_waitcnt vmcnt(0)")
    for n in range(3):
        a("buffer_store_dwordx4 %s, v%d, s[12:15], s35 offen" % (vr(240 + 4 * n), 252 + n))
    a("s_nop 1")
    a("s_lshl_b32 s36, s22, 7")
    a("s_lshl_b32 s37, s24, 6")
    a("s_add_u32 s36, s36, s37")
    a("v_lshlrev_b32 v11, 1, v3")
    a("s_lshl_b32 s37, s25, 6")
    a("s_lshl_b32 s38, s36, 1")
    a("s_add_u32 s39, s38, s37")
    a("s_xor_b32 s37, s37, 64")
    a("s_add_u32 s40, s38, s37")
    a("buffer_load_ushort v%d, v11, s[28:31], s39 offen" % (BI + 0))
    a("buffer_load_ushort v%d, v11, s[28:31], s39 offen offset:32" % (BI + 2))
    a("buffer_load_ushort v%d, v11, s[28:31], s40 offen" % (BI + 4))
    a("buffer_load_ushort v%d, v11, s[28:31], s40 offen offset:32" % (BI + 6))
    a.label("%s_noz" % name)
    a("s_cmp_lt_u32 s33, %d" % NST)
    a("s_cbranch_scc1 %s_cloop" % name)
    trk.drain()
    stamp(a, 2)
    a.label("%s_epi" % name)
    a("v_lshrrev_b32 v10, 4, v2")
    a("v_and_b32 v11, 1, v10")
    a("v_lshrrev_b32 v12, 1, v10")
    a("v_lshl_add_u32 v12, v11, 1, v12")
    a("s_mul_i32 s35, s23, 18")
    a("s_mul_i32 s36, s25, 10")
    a("s_add_u32 s36, s36, s35")
    a("v_lshrrev_b32 v13, 1, v3")
    a("s_lshl_b32 s37, s22, 1")
    a("s_add_u32 s37, s37, s24")
    a("s_mul_i32 s37, s37, %d" % (36 * 8192))
    a("s_add_u32 s37, s37, 0x%x" % PIMG)
    a("s_lshl_b32 s38, s25, 12")
    a("s_add_u32 s39, s37, s38")
    a("s_xor_b32 s38, s38, 4096")
    a("s_add_u32 s40, s37, s38")
    def addr(dst, pv):
        a("v_lshrrev_b32 v14, 3, v%d" % pv)
        a("v_lshlrev_b32 v14, 13, v14")
        a("v_and_b32 v15, 7, v%d" % pv)
        a("v_xor_b32 v15, v15, v13")
        a("v_lshl_add_u32 v14, v15, 4, v14")
        a("v_lshl_add_u32 v%d, v3, 7, v14" % dst)
    a("v_add_u32 v16, s36, v12"); addr(4, 16)
    a("v_add_u32 v16, 4, v16"); addr(5, 16)
    a("v_lshrrev_b32 v16, 1, v10")
    a("s_add_u32 s35, s35, 8")
    a("v_add_u32 v16, s35, v16"); addr(6, 16)
    a("v_lshl_add_u32 v6, v11, 11, v6")
    a("s_waitcnt vmcnt(0)")
    for tt in range(4):
        a("v_lshlrev_b32 v%d, 16, v%d" % (BI + 2 * tt, BI + 2 * tt))
    stamp(a, 3)
    def ptiles(lst, O):
        T = 24
        for q, (ft, tt) in enumerate(lst):
            c = core.accr(ft, tt)
            for h in (0, 2):
                a("v_pk_add_f32 %s, %s, %s op_sel_hi:[1,0]" % (vr(c + h, 2), vr(c + h, 2), vr(BI + 2 * tt, 2)))
        for q, (ft, tt) in enumerate(lst):
            c = core.accr(ft, tt)
            a("v_cvt_pk_bf16_f32 v%d, v%d, v%d" % (T + 2 * q, c, c + 1))
            a("v_cvt_pk_bf16_f32 v%d, v%d, v%d" % (T + 2 * q + 1, c + 2, c + 3))
        for q, (ft, tt) in enumerate(lst):
            c = core.accr(ft, tt); z = Z1R + 2 * tidx(ft, tt)
            for d in range(2):
                a("v_lshlrev_b32 v%d, 16, v%d" % (c + 2 * d, T + 2 * q + d))
                a("v_and_b32 v%d, 0xffff0000, v%d" % (c + 2 * d + 1, T + 2 * q + d))
                a("v_lshlrev_b32 v%d, 16, v%d" % (T + 4 + 4 * q + 2 * d, z + d))
                a("v_and_b32 v%d, 0xffff0000, v%d" % (T + 5 + 4 * q + 2 * d, z + d))
        for q, (ft, tt) in enumerate(lst):
            c = core.accr(ft, tt)
            for h in (0, 2):
                a("v_pk_mul_f32 %s, %s, %s" % (vr(c + h, 2), vr(c + h, 2), vr(T + 4 + 4 * q + h, 2)))
        for q, (ft, tt) in enumerate(lst):
            c = core.accr(ft, tt)
            a("v_cvt_pk_bf16_f32 v%d, v%d, v%d" % (O + 2 * q, c, c + 1))
            a("v_cvt_pk_bf16_f32 v%d, v%d, v%d" % (O + 2 * q + 1, c + 2, c + 3))
        a("s_nop 1")
        a("v_permlane16_swap_b32 v%d, v%d" % (O, O + 2))
        a("v_permlane16_swap_b32 v%d, v%d" % (O + 1, O + 3))
        a("s_nop 0")
    cnt = 0
    for pr in range(2):
        for tt in range(4):
            O = 40 + 4 * cnt; cnt += 1
            ptiles([(2 * pr, tt), (2 * pr + 1, tt)], O)
            a("buffer_store_dwordx4 %s, v%d, s[12:15], s%d offen offset:%d" % (vr(O), 4 + pr, 39 if tt < 2 else 40, (tt & 1) * 2048))
    O = 40 + 4 * cnt
    ptiles([(4, 0), (4, 1)], O)
    a("buffer_store_dwordx4 %s, v6, s[12:15], s39 offen" % vr(O))
    seg_end2(a, name)
    stamp(a, 4)
    G.stamp_rt(a, 1)
    a.label("%s_end" % name)
    a("s_endpgm")
    return a.text(), kernel_desc(name, 256, 256), (name, 256, 512, R * SLOT + 2048)


def gen_k3b(name="k3_kernel", R=4):
    a = Asm()
    TREG = 16384; FS = 160; SLOT = TREG + 128 * FS; NST = 18
    YOFF = R * SLOT
    kernel_begin(a, name)
    a("s_load_dwordx2 s[6:7], s[0:1], 104")
    a("s_load_dwordx2 s[4:5], s[0:1], 0")
    a("s_load_dwordx2 s[16:17], s[0:1], 88")
    a("s_cmp_ge_u32 s2, 256")
    a("s_cbranch_scc1 %s_end" % name)
    a("v_lshrrev_b32 v1, 6, v0")
    a("v_and_b32 v2, 63, v0")
    a("v_readfirstlane_b32 s3, v1")
    a("s_and_b32 s20, s2, 7")
    a("s_lshr_b32 s21, s2, 3")
    a("s_and_b32 s22, s20, 3")
    a("s_lshl_b32 s22, s22, 3")
    a("s_and_b32 s23, s21, 7")
    a("s_add_u32 s22, s22, s23")
    a("s_lshr_b32 s23, s20, 2")
    a("s_lshl_b32 s23, s23, 2")
    a("s_lshr_b32 s24, s21, 3")
    a("s_add_u32 s23, s23, s24")
    a("s_lshr_b32 s52, s23, 1")
    a("s_and_b32 s53, s23, 1")
    XR = 200; ST = 208
    def fin_loads():
        a("v_and_b32 v3, 15, v2")
        a("v_lshrrev_b32 v10, 4, v2")
        a("v_mul_u32_u24 v13, 1152, v3")
        a("v_lshl_add_u32 v13, v10, 3, v13")
        a("v_lshlrev_b32 v12, 3, v3")
        for s_ in range(3):
            if s_ == 2:
                a("s_cmp_ge_u32 s54, 2")
                a("s_cbranch_scc1 %s_fl%d" % (name, fin_loads.cnt))
            b = 64 + 4 * s_
            if s_ < 2:
                a("s_add_u32 s36, s54, %d" % (8 * s_))
                a("s_lshr_b32 s37, s36, 2")
                a("s_and_b32 s38, s36, 3")
                a("s_mul_i32 s39, s53, 160")
                a("s_lshl_b32 s40, s37, 5")
                a("s_add_u32 s39, s39, s40")
            else:
                a("s_add_u32 s36, s54, 16")
                a("s_mov_b32 s37, 4")
                a("s_mov_b32 s38, s54")
                a("s_mov_b32 s39, 128")
            a("s_lshl_b32 s40, s53, 1")
            a("s_add_u32 s38, s38, s40")
            a("s_and_b32 s38, s38, 3")
            a("s_lshl_b32 s40, s22, 2")
            a("s_add_u32 s40, s40, s38")
            a("s_lshl_b32 s40, s40, 4")
            a("s_mul_i32 s%d, s40, 1152" % b)
            a("s_add_u32 s%d, s%d, s39" % (b, b))
            a("s_mul_i32 s39, s52, 288")
            a("s_add_u32 s%d, s%d, s39" % (b, b))
            a("s_lshl_b32 s%d, s37, 11" % (b + 1))
            a("s_lshl_b32 s39, s38, 5")
            a("s_add_u32 s%d, s%d, s39" % (b + 1, b + 1))
            a("s_add_u32 s%d, s%d, %d" % (b + 1, b + 1, YOFF))
            a("s_lshl_b32 s%d, s36, 10" % (b + 2))
            a("s_lshl_b32 s40, s40, 3")
            a("s_add_u32 s40, s40, 0x%x" % STATS1)
            a("buffer_load_dwordx2 %s, v13, s[8:11], s%d offen" % (vr(XR + 2 * s_, 2), b))
            a("buffer_load_dwordx2 %s, v12, s[12:15], s40 offen" % vr(ST + 2 * s_, 2))
        a.label("%s_fl%d" % (name, fin_loads.cnt))
        fin_loads.cnt += 1
    fin_loads.cnt = 0
    a("s_mov_b32 s54, s3")
    a("s_cmp_lt_u32 s3, 4")
    a("s_cbranch_scc1 %s_consumer" % name)
    a("s_setprio 3")
    a("s_sub_u32 s3, s3, 4")
    a("v_lshlrev_b32 v14, 4, v2")
    a("s_mul_i32 s26, s22, %d" % (36 * 8192))
    a("s_lshl_b32 s24, s3, 12")
    a("s_add_u32 s26, s26, s24")
    a("s_add_u32 s26, s26, 0x%x" % PIMG)
    a("s_mul_i32 s27, s23, %d" % (18 * 20480))
    a("s_mul_i32 s25, s3, 5120")
    a("s_add_u32 s27, s27, s25")
    a("s_add_u32 s27, s27, 0x%x" % WOT)
    a("s_add_u32 s25, s25, %d" % TREG)
    a("s_mov_b32 s33, 0")
    a("s_waitcnt lgkmcnt(0)")
    srd(a, 12, 6, WS_BYTES)
    def issue():
        a("s_add_u32 s35, s33, s24")
        a("s_mov_b32 m0, s35")
        a("s_add_u32 s36, s33, s25")
        for n in range(4):
            a("buffer_load_dwordx4 v14, s[12:15], s26 offen offset:%d lds" % (n * 1024))
        a("s_mov_b32 m0, s36")
        a("s_add_u32 s37, s27, 4096")
        for n in range(4):
            a("buffer_load_dwordx4 v14, s[12:15], s27 offen offset:%d lds" % (n * 1024))
        a("s_add_u32 s36, s36, 4096")
        a("s_mov_b32 m0, s36")
        a("s_add_u32 s26, s26, 16384")
        a("buffer_load_dwordx4 v14, s[12:15], s37 offen lds")
        a("s_add_u32 s27, s27, 20480")
        a("s_add_u32 s33, s33, %d" % SLOT)
        a("s_cmp_eq_u32 s33, %d" % (R * SLOT))
        a("s_cselect_b32 s33, 0, s33")
    issue(); issue()
    a("s_add_u32 s3, s3, 4"); stamp_setup(a, 3); stamp(a, 0); a("s_sub_u32 s3, s3, 4")
    srd(a, 8, 4, 2048 * 576 * 2)
    srd(a, 28, 16, 2048 * 576 * 2)
    a("s_waitcnt vmcnt(9)")
    a("s_barrier")
    issue(); issue()
    a("s_waitcnt vmcnt(18)")
    a("s_barrier")
    a("s_mov_b32 s34, 0")
    a.label("%s_lloop" % name)
    issue()
    a("s_waitcnt vmcnt(18)")
    a("s_barrier")
    a("s_add_u32 s34, s34, 1")
    a("s_cmp_lt_u32 s34, %d" % (NST - R))
    a("s_cbranch_scc1 %s_lloop" % name)
    a("v_lshrrev_b32 v3, 3, v2")
    a("v_and_b32 v4, 7, v2")
    a("v_lshlrev_b32 v4, 4, v4")
    a("s_mul_i32 s33, s52, 144")
    a("s_mul_i32 s34, s53, 80")
    a("s_lshl_b32 s35, s22, 7")
    a("s_add_u32 s35, s35, 0x%x" % YT)
    for n in range(3):
        a("s_add_u32 s36, s3, %d" % (4 * n))
        if n == 2:
            a("s_min_u32 s36, s36, 9")
        a("s_lshl_b32 s37, s36, 3")
        a("s_add_u32 s38, s37, s33")
        if n < 2: a("s_add_u32 s38, s38, s34")
        a("v_add_u32 v5, s38, v3")
        a("v_lshl_add_u32 v5, v5, 12, v4")
        a("s_lshl_b32 s36, s36, 10")
        a("s_add_u32 s36, s36, %d" % YOFF)
        a("s_mov_b32 m0, s36")
        a("s_nop 0")
        a("buffer_load_dwordx4 v5, s[12:15], s35 offen lds")
    fin_loads()
    a("s_waitcnt vmcnt(%d)" % (9 + 7))
    a("s_barrier")
    a("s_waitcnt vmcnt(7)")
    a("s_barrier")
    a("s_barrier")
    a("s_setprio 0")
    a("s_waitcnt vmcnt(0)")
    a("s_branch %s_fin" % name)
    a.label("%s_consumer" % name)
    ACC = 128; FB0 = 16; FB1 = 52
    vTa = [4, 4]; vTb = [6, 6]; vF = 8; vFh = 9
    bTa = 88; bTb = 90; bF = 92; bFh = 93
    a("v_and_b32 v3, 15, v2")
    a("v_lshrrev_b32 v10, 4, v2")
    a("s_and_b32 s26, s3, 1")
    a("s_lshl_b32 s26, s26, 2")
    a("v_add_u32 v10, s26, v10")
    a("v_lshrrev_b32 v11, 1, v3")
    a("v_xor_b32 v10, v10, v11")
    a("v_lshlrev_b32 v10, 4, v10")
    a("v_lshl_add_u32 v10, v3, 7, v10")
    a("s_lshr_b32 s26, s3, 1")
    a("s_lshl_b32 s26, s26, 13")
    a("v_add_u32 v10, s26, v10")
    a("s_lshl_b32 s26, s53, 12")
    a("v_add_u32 v%d, s26, v10" % bTa)
    a("s_xor_b32 s26, s26, 4096")
    a("v_add_u32 v%d, s26, v10" % bTb)
    a("v_lshrrev_b32 v10, 2, v2")
    a("v_mul_u32_u24 v10, %d, v10" % FS)
    a("v_and_b32 v11, 3, v2")
    a("v_lshl_add_u32 v10, v11, 3, v10")
    a("s_mul_i32 s26, s3, %d" % (32 * FS))
    a("s_add_u32 s26, s26, %d" % TREG)
    a("v_add_u32 v%d, s26, v10" % bF)
    a("v_add_u32 v%d, 128, v%d" % (bFh, bF))
    a("s_waitcnt lgkmcnt(0)")
    srd(a, 12, 6, WS_BYTES)
    srd(a, 8, 4, 2048 * 576 * 2)
    srd(a, 28, 16, 2048 * 576 * 2)
    stamp_setup(a, 3); stamp(a, 0)
    fin_loads()
    core = G.Core(a, ACC, FB0, FB1, FS, TREG, vTa, vTb, vF, vFh)
    trk = core.trk
    pairs = ((vTa[0], bTa), (vF, bF), (vTb[0], bTb), (vFh, bFh))
    for d, s_ in pairs: a("v_mov_b32 v%d, v%d" % (d, s_))
    for r in range(ACC, ACC + 72): a("v_mov_b32 v%d, 0" % r)
    a("s_mov_b32 s27, 0")
    a("s_mov_b32 s33, 0")
    a("s_barrier")
    stamp(a, 1)
    core.prime(0, core.reads(0, 0))
    def iteration(buf):
        trk.drain()
        a("s_barrier")
        a("s_add_u32 s27, s27, %d" % SLOT)
        a("s_cmp_eq_u32 s27, %d" % (R * SLOT))
        a("s_cselect_b32 s27, 0, s27")
        pre = ["v_add_u32 v%d, s27, v%d" % (d, s_) for d, s_ in pairs]
        core.phase(buf, core.reads(1 - buf, 0), pre=pre)
    a.label("%s_cloop" % name)
    iteration(0); iteration(1)
    a("s_add_u32 s33, s33, 1")
    a("s_cmp_lt_u32 s33, %d" % (NST // 2))
    a("s_cbranch_scc1 %s_cloop" % name)
    trk.drain()
    stamp(a, 2)
    a("s_mul_i32 s33, s3, %d" % (18 * 1024))
    a("v_lshlrev_b32 v10, 4, v2")
    a("v_add_u32 v11, s33, v10")
    a("s_nop 4")
    for n, (ft, tt) in enumerate(TILES):
        a("ds_write_b128 v11, %s offset:%d" % (vr(core.accr(ft, tt)), 1024 * tidx(ft, tt)))
        if n in (7, 13): a("s_waitcnt lgkmcnt(4)")
    a("s_waitcnt lgkmcnt(0) vmcnt(0)")
    a.label("%s_fin" % name)
    a("s_barrier")
    stamp(a, 3)
    a("v_lshlrev_b32 v10, 4, v2")
    a("v_lshrrev_b32 v11, 2, v2")
    a("v_lshlrev_b32 v11, 7, v11")
    a("v_and_b32 v12, 3, v2")
    a("v_lshl_add_u32 v11, v12, 3, v11")
    a("s_mov_b32 s33, 0xbfb8aa3b")
    PT = 16; YR = 64
    for s_ in range(3):
        b = 64 + 4 * s_
        if s_ == 2:
            a("s_cmp_ge_u32 s54, 2")
            a("s_cbranch_scc1 %s_rd" % name)
        a("v_add_u32 v4, s%d, v10" % (b + 2))
        a("v_add_u32 v5, s%d, v11" % (b + 1))
        for q in range(4):
            a("ds_read_b128 %s, v4 offset:%d" % (vr(PT + 16 * s_ + 4 * q), 18432 * q))
        a("ds_read_b64_tr_b16 %s, v5" % vr(YR + 2 * s_, 2))
    a.label("%s_rd" % name)
    T = 104
    for s_ in range(3):
        b = 64 + 4 * s_
        if s_ == 0: a("s_waitcnt lgkmcnt(5)")
        if s_ == 1: a("s_waitcnt lgkmcnt(0)")
        if s_ == 2:
            a("s_cmp_ge_u32 s54, 2")
            a("s_cbranch_scc1 %s_done" % name)
        o = PT + 16 * s_; X = XR + 2 * s_; Y = YR + 2 * s_; S_ = ST + 2 * s_
        for h in (0, 2):
            a("v_pk_add_f32 %s, %s, %s" % (vr(o + h, 2), vr(o + h, 2), vr(o + 4 + h, 2)))
            a("v_pk_add_f32 %s, %s, %s" % (vr(o + 8 + h, 2), vr(o + 8 + h, 2), vr(o + 12 + h, 2)))
        for h in (0, 2):
            a("v_pk_add_f32 %s, %s, %s" % (vr(o + h, 2), vr(o + h, 2), vr(o + 8 + h, 2)))
        rnd_pair(a, T + 20, o, o + 1); rnd_pair(a, T + 21, o + 2, o + 3)
        for r in range(4): a("v_mul_f32 v%d, s33, v%d" % (T + r, o + r))
        for r in range(4): a("v_exp_f32 v%d, v%d" % (T + r, T + r))
        a("v_lshlrev_b32 v%d, 16, v%d" % (T + 4, X)); a("v_and_b32 v%d, 0xffff0000, v%d" % (T + 5, X))
        a("v_lshlrev_b32 v%d, 16, v%d" % (T + 6, X + 1)); a("v_and_b32 v%d, 0xffff0000, v%d" % (T + 7, X + 1))
        for r in range(4): a("v_add_f32 v%d, 1.0, v%d" % (T + r, T + r))
        for r in range(4): a("v_rcp_f32 v%d, v%d" % (T + r, T + r))
        for r in range(4): a("v_sub_f32 v%d, v%d, v%d" % (T + 12 + r, T + 4 + r, S_))
        a("v_lshlrev_b32 v%d, 16, v%d" % (T + 8, Y)); a("v_and_b32 v%d, 0xffff0000, v%d" % (T + 9, Y))
        a("v_lshlrev_b32 v%d, 16, v%d" % (T + 10, Y + 1)); a("v_and_b32 v%d, 0xffff0000, v%d" % (T + 11, Y + 1))
        for r in range(4): a("v_mul_f32 v%d, v%d, v%d" % (o + r, o + r, T + r))
        rnd_pair(a, T + 20, T + 12, T + 13); rnd_pair(a, T + 21, T + 14, T + 15)
        rnd_pair(a, T + 22, o, o + 1); rnd_pair(a, T + 23, o + 2, o + 3)
        for r in range(4): a("v_mul_f32 v%d, v%d, v%d" % (T + 12 + r, T + 12 + r, S_ + 1))
        rnd_pair(a, T + 20, T + 12, T + 13); rnd_pair(a, T + 21, T + 14, T + 15)
        for r in range(4): a("v_mul_f32 v%d, v%d, v%d" % (T + 12 + r, T + 12 + r, T + 8 + r))
        rnd_pair(a, T + 20, T + 12, T + 13); rnd_pair(a, T + 21, T + 14, T + 15)
        for r in range(4): a("v_mul_f32 v%d, v%d, v%d" % (T + 12 + r, T + 12 + r, o + r))
        rnd_pair(a, T + 20, T + 12, T + 13); rnd_pair(a, T + 21, T + 14, T + 15)
        for r in range(4): a("v_add_f32 v%d, v%d, v%d" % (T + 12 + r, T + 12 + r, T + 4 + r))
        a("v_cvt_pk_bf16_f32 v%d, v%d, v%d" % (X, T + 12, T + 13))
        a("v_cvt_pk_bf16_f32 v%d, v%d, v%d" % (X + 1, T + 14, T + 15))
        a("buffer_store_dwordx2 %s, v13, s[28:31], s%d offen" % (vr(X, 2), b))
    a.label("%s_done" % name)
    stamp(a, 4)
    G.stamp_rt(a, 1)
    a.label("%s_end" % name)
    a("s_endpgm")
    return a.text(), kernel_desc(name, 256, 256), (name, 256, 512, R * SLOT + 10240)

def gen_kw(name="kw_kernel"):
    return G.gen_k0(name)

gen_k2 = G.gen_k2; gen_k3 = G.gen_k3; gen_kc = G.gen_kc

if __name__ == "__main__":
    which = sys.argv[1]; out = sys.argv[2]
    if len(sys.argv) > 3: DBG.update(sys.argv[3].split(","))
    ks = [globals()["gen_" + w]() for w in which.split(",")]
    if "wt" in DBG:
        import re
        ks = [(re.sub(r"(buffer_store_dwordx[24] [^\n]*s\[12:15\][^\n]*?)( sc1)?\n", lambda m: m.group(1) + " sc1\n", k[0]),) + k[1:] for k in ks]
    if "nts" in DBG:
        import re
        ks = [(re.sub(r"(buffer_store_dwordx4 [^\n]*s\[12:15\][^\n]*?)\n", lambda m: m.group(1) + (" nt\n" if "sc1" not in m.group(1) else "\n"), k[0]),) + k[1:] for k in ks]
    open(out, "w").write(assemble_file([k[2] for k in ks], "".join(k[0] for k in ks), [k[1] for k in ks]))
```

```python
import sys, copy
from asmgen import *
import gen as G
import gen2 as G2
import gen3 as G3
from gen import (ZIMG, Z1IMG, PIMG, WOT, KVT, YT, STATS2, STATS1, WS_BYTES, DBG, LdsTracker, vr, stamp, stamp_setup,
                 rnd_pair, f32, emit_xg_reduce, emit_ln_finish)
from gen2 import VmTracker, TILES, tidx, emit_fold_gelu, gelu_consts, SPIN_MAX
from gen3 import emit_kv_loads, emit_kv_compute, emit_wot_loads

def emit_code_prefetch(a, name, nload=3):
    if "cpf" not in DBG: return
    a("s_getpc_b64 s[40:41]")
    a.label("%s_pc" % name)
    a("s_sub_u32 s40, s40, %s_pc-%s" % (name, name))
    a("s_subb_u32 s41, s41, 0")
    a("s_and_b32 s41, s41, 0xffff")
    a("s_mov_b32 s42, code_end_lbl-%s" % name)
    a("s_mov_b32 s43, 0x00020000")
    a("v_lshlrev_b32 v10, 7, v2")
    a("s_mul_i32 s36, s3, %d" % (nload * 8192))
    for n in range(nload):
        a("buffer_load_dword v200, v10, s[40:43], s36 offen")
        if n < nload - 1: a("s_add_u32 s36, s36, 8192")

def gen_k1h(name="k1_kernel", R=4):
    a = Asm()
    RB = 4096; SLOT = 34816; TREG = 16384; FS = 288; RST = 0
    LDSB = RB + R * SLOT
    def capture(f, *args):
        lb = len(a.lines); f(*args); out = a.lines[lb:]; del a.lines[lb:]; return out
    kernel_begin(a, name)
    a("s_load_dwordx2 s[80:81], s[0:1], 0")
    a("s_load_dwordx2 s[4:5], s[0:1], 56")
    a("s_load_dwordx2 s[6:7], s[0:1], 104")
    a("s_load_dwordx2 s[18:19], s[0:1], 96")
    a("s_cmp_ge_u32 s2, 256")
    a("s_cbranch_scc1 %s_end" % name)
    a("v_lshrrev_b32 v1, 6, v0")
    a("v_and_b32 v2, 63, v0")
    a("v_readfirstlane_b32 s3, v1")
    G2.tile_ij(a)
    a("s_lshr_b32 s98, s3, 2")
    a("s_mov_b32 s54x, 0".replace("s54x", "s99"))
    a("s_and_b32 s3, s3, 3")
    a("s_lshr_b32 s24, s3, 1")
    a("s_and_b32 s25, s3, 1")
    a("v_and_b32 v3, 15, v2")
    VT = 204; VF = 208
    def loader_setup():
        a("v_lshrrev_b32 v5, 3, v2")
        a("v_and_b32 v4, 7, v2")
        a("s_lshl_b32 s36, s3, 5")
        a("v_add_u32 v5, s36, v5")
        a("v_lshrrev_b32 v7, 4, v2")
        a("v_xor_b32 v7, v7, v4")
        a("v_mul_u32_u24 v6, 1152, v5")
        a("v_lshl_add_u32 v%d, v7, 4, v6" % VT)
        a("v_xor_b32 v%d, 64, v%d" % (VT + 1, VT))
        a("v_add_u32 v%d, %d, v%d" % (VT + 1, 9216 - 1024, VT + 1))
        a("v_add_u32 v%d, %d, v%d" % (VT + 2, 2 * (9216 - 1024), VT))
        a("v_add_u32 v%d, %d, v%d" % (VT + 3, 2 * (9216 - 1024), VT + 1))
        a("s_lshl_b32 s84, s3, 12")
        a("s_add_u32 s84, s84, %d" % RB)
        a("s_lshl_b32 s85, s3, 9")
        a("s_add_u32 s85, s85, %d" % (RB + TREG + 16384))
    def loader_setup2():
        for n in range(5):
            if n < 4:
                a("s_lshl_b32 s36, s3, 8")
                a("s_add_u32 s36, s36, %d" % (64 * n))
            else:
                a("s_lshl_b32 s36, s3, 5")
                a("s_add_u32 s36, s36, 1024")
            a("v_add_u32 v6, s36, v2")
            a("v_mul_u32_u24 v7, 3641, v6")
            a("v_lshrrev_b32 v7, 16, v7")
            a("v_mul_u32_u24 v8, 18, v7")
            a("v_sub_u32 v8, v6, v8")
            a("v_and_b32 v9, 35, v7")
            a("v_bfe_u32 v6, v7, 2, 2")
            a("v_lshl_add_u32 v9, v6, 3, v9")
            a("v_bfe_u32 v6, v7, 4, 1")
            a("v_lshl_add_u32 v9, v6, 2, v9")
            a("v_mul_u32_u24 v9, 9216, v9")
            a("v_lshl_add_u32 v%d, v8, 4, v9" % (VF + n))
            if 0 < n < 4: a("v_subrev_u32 v%d, %d, v%d" % (VF + n, 1024 * n, VF + n))
    def issueT(g):
        st = g % 9
        a("s_add_u32 s86, s84, %d" % ((g % R) * SLOT))
        a("s_mov_b32 m0, s86")
        a("s_add_u32 s87, s82, %d" % (128 * st))
        for n in range(4):
            a("buffer_load_dwordx4 v%d, s[28:31], s87 offen offset:%d lds" % (VT + n, 1024 * n))
    def issueF(g):
        st = g % 9
        a("s_add_u32 s86, s84, %d" % ((g % R) * SLOT + TREG))
        a("s_mov_b32 m0, s86")
        a("s_add_u32 s87, s83, %d" % (64 * 9216 * st + (4608 if g < 9 else 0)))
        for n in range(4):
            a("buffer_load_dwordx4 v%d, s[8:11], s87 offen offset:%d lds" % (VF + n, 1024 * n))
        a("s_add_u32 s86, s85, %d" % ((g % R) * SLOT))
        a("s_mov_b32 m0, s86")
        a("s_mov_b64 exec, 0xffffffff")
        a("buffer_load_dwordx4 v%d, s[8:11], s87 offen lds" % (VF + 4))
        a("s_mov_b64 exec, -1")
    def srds_main():
        srd(a, 28, 80, 2048 * 576 * 2)
        srd(a, 8, 4, 576 * 4608 * 2)
        srd(a, 12, 6, WS_BYTES)
        srd(a, 60, 18, 256)
        a("s_mul_i32 s82, s22, %d" % (128 * 1152))
        a("s_mul_i32 s83, s23, 288")
    ACC = 128; FB = [16, 52]; CS = 216; ONE = 236
    vTa = [4, 5]; vTb = [6, 7]; vF = 8; vFh = 9
    bTa = [88, 89]; bTb = [90, 91]; bF = 92; bFh = 93
    def mma_setup():
        a("v_lshrrev_b32 v10, 4, v2")
        a("v_lshrrev_b32 v11, 1, v3")
        a("v_xor_b32 v10, v10, v11")
        a("v_lshlrev_b32 v10, 4, v10")
        a("v_lshl_add_u32 v10, v3, 7, v10")
        a("s_lshl_b32 s26, s24, 13")
        a("s_add_u32 s26, s26, %d" % RB)
        a("v_add_u32 v10, s26, v10")
        a("s_lshl_b32 s26, s25, 12")
        a("v_add_u32 v%d, s26, v10" % bTa[0])
        a("s_xor_b32 s26, s26, 4096")
        a("v_add_u32 v%d, s26, v10" % bTb[0])
        a("v_xor_b32 v%d, 64, v%d" % (bTa[1], bTa[0]))
        a("v_xor_b32 v%d, 64, v%d" % (bTb[1], bTb[0]))
        a("v_lshrrev_b32 v10, 2, v2")
        a("v_mul_u32_u24 v10, %d, v10" % FS)
        a("v_and_b32 v11, 3, v2")
        a("v_lshl_add_u32 v10, v11, 3, v10")
        a("v_add_u32 v10, %d, v10" % (RB + TREG))
        a("s_mul_i32 s26, s25, 160")
        a("v_add_u32 v%d, s26, v10" % bF)
        a("v_add_u32 v%d, 128, v10" % bFh)
        for r in range(ACC, ACC + 72): a("v_mov_b32 v%d, 0" % r)
        for r in range(CS, CS + 20): a("v_mov_b32 v%d, 0" % r)
        for r in range(ONE, ONE + 4): a("v_mov_b32 v%d, 0x3f803f80" % r)
    def mma_addr(slot):
        a("s_mov_b32 s27, %d" % (slot * SLOT))
        for d, s_ in ((vTa[0], bTa[0]), (vTb[0], bTb[0]), (vTa[1], bTa[1]), (vTb[1], bTb[1]), (vF, bF), (vFh, bFh)):
            a("v_add_u32 v%d, s27, v%d" % (d, s_))
    core = G.Core(a, ACC, FB[0], FB[1], FS, TREG, vTa, vTb, vF, vFh)
    trk = core.trk
    a("s_cmp_eq_u32 s98, 0")
    a("s_cbranch_scc1 %s_A0" % name)
    a("s_setprio 3")
    loader_setup()
    a("s_waitcnt lgkmcnt(0)")
    srds_main()
    vm = VmTracker(a)
    def issue(g, vmx):
        issueT(g); issueF(g); vmx.issue("S%d" % g, 9)
    issueT(0)
    loader_setup2()
    issueF(0); vm.issue("S0", 9)
    issue(1, vm); issue(2, vm); issue(3, vm)
    a("s_add_u32 s3, s3, 4"); stamp_setup(a, 1); stamp(a, 0); a("s_sub_u32 s3, s3, 4")
    mma_setup()
    RA = 96; XB = 112
    for r in range(RA, RA + 16): a("v_mov_b32 v%d, 0" % r)
    a("v_lshrrev_b32 v10, 4, v2")
    a("v_lshrrev_b32 v11, 1, v3")
    a("v_xor_b32 v10, v10, v11")
    a("v_lshlrev_b32 v10, 4, v10")
    a("v_lshl_add_u32 v10, v3, 7, v10")
    a("v_add_u32 v12, s84, v10")
    a("v_xor_b32 v13, 64, v12")
    def rs_rd(g):
        a("v_add_u32 v10, %d, v12" % ((g % R) * SLOT))
        a("v_add_u32 v11, %d, v13" % ((g % R) * SLOT))
        for h in range(2):
            for n in range(2):
                a("ds_read_b128 %s, v%d offset:%d" % (vr(XB + 8 * h + 4 * n), 10 + h, 2048 * n))
    def rs_do():
        for h in range(2):
            for n in range(2):
                x = XB + 8 * h + 4 * n
                a("v_mfma_f32_16x16x32_bf16 %s, %s, %s, %s" % (vr(RA + 4 * n), vr(ONE), vr(x), vr(RA + 4 * n)))
                a("v_mfma_f32_16x16x32_bf16 %s, %s, %s, %s" % (vr(RA + 8 + 4 * n), vr(x), vr(x), vr(RA + 8 + 4 * n)))
    def interleave(dma, comp, vmx=None):
        groups = []; cur = []
        for l in dma:
            cur.append(l)
            if "buffer_load" in l and not any("exec, 0xffffffff" in x for x in cur[-2:]):
                groups.append(cur); cur = []
            elif "exec, -1" in l:
                groups.append(cur); cur = []
        if cur: groups.append(cur)
        ns = max(1, len(groups))
        per = (len(comp) + ns - 1) // ns
        for g in groups:
            a.lines.extend(g)
            a.lines.extend(comp[:per]); comp = comp[per:]
        a.lines.extend(comp)
    vm.wait(["S0"])
    a("s_barrier")
    stamp(a, 1)
    rs_rd(0)
    vm.wait(["S1"])
    a("s_barrier")
    for k in range(9):
        a("s_waitcnt lgkmcnt(0)")
        dma = capture(lambda: (issueT(k + 3), issueF(k + 3))) if k >= 1 else []
        interleave(dma, capture(rs_do))
        if k >= 1: vm.issue("S%d" % (k + 3), 9)
        if k < 8:
            rs_rd(k + 1)
        else:
            a("s_nop 7")
            a("v_lshrrev_b32 v10, 4, v2")
            a("v_lshrrev_b32 v11, 2, v3")
            a("v_and_b32 v12, 3, v3")
            for n in range(2):
                G_ = RA + 8 + 4 * n
                for r in range(1, 4):
                    a("v_cmp_eq_u32 vcc, %d, v12" % r)
                    a("s_nop 1")
                    a("v_cndmask_b32 v%d, v%d, v%d, vcc" % (G_, G_, G_ + r))
            ML = 112
            for n in range(2):
                emit_ln_finish(a, RA + 4 * n, RA + 8 + 4 * n, 576, ML + 2 * n, ML + 2 * n + 1, 120)
                a("v_mov_b32 v%d, v%d" % (117 + 2 * n, ML + 2 * n + 1))
                a("v_sub_f32 v%d, 0, v%d" % (116 + 2 * n, ML + 2 * n))
            a("s_lshl_b32 s35, s3, 8")
            a("v_lshlrev_b32 v13, 3, v3")
            a("v_add_u32 v12, s35, v13")
            a("v_cmp_eq_u32 vcc, v10, v11")
            a("s_and_saveexec_b64 s[36:37], vcc")
            for n in range(2):
                a("ds_write_b64 v12, %s offset:%d" % (vr(116 + 2 * n, 2), RST + 128 * n))
            a("s_mov_b64 exec, s[36:37]")
            a("s_cmp_lg_u32 s23, 0")
            a("s_cbranch_scc1 %s_nost1" % name)
            a("s_lshl_b32 s35, s22, 7")
            a("s_lshl_b32 s36, s3, 5")
            a("s_add_u32 s35, s35, s36")
            a("s_lshl_b32 s35, s35, 3")
            a("s_add_u32 s35, s35, 0x%x" % STATS1)
            a("v_mov_b32 v11, 0x7ffffff0")
            a("v_cndmask_b32 v13, v11, v13, vcc")
            for n in range(2):
                a("buffer_store_dwordx2 %s, v13, s[12:15], s35 offen offset:%d" % (vr(ML + 2 * n, 2), 128 * n))
            a.label("%s_nost1" % name)
            mma_addr(9 % R)
            a("s_mov_b32 s33, 0")
            a("s_setprio 0")
        vm.wait(["S%d" % (k + 2)], "lgkmcnt(0)" if k == 8 else "")
        if k < 8: a("s_barrier")
    a("s_branch %s_mma" % name)
    a.label("%s_A0" % name)
    emit_code_prefetch(a, name)
    a("s_load_dwordx4 s[64:67], s[0:1], 8")
    a("s_load_dwordx2 s[76:77], s[0:1], 24")
    a("s_load_dwordx2 s[90:91], s[0:1], 64")
    mma_setup()
    loader_setup(); loader_setup2()
    a("s_waitcnt lgkmcnt(0)")
    srds_main()
    srd(a, 68, 66, 2048 * 576 * 2)
    a("s_mov_b32 s88, s64"); a("s_mov_b32 s89, s65")
    srd(a, 64, 88, 2048 * 576 * 2)
    srd(a, 72, 76, 576 * 8)
    srd(a, 92, 90, 2048 * 2048 * 2)
    stamp_setup(a, 1); stamp(a, 0)
    def gran_addr():
        a("v_lshrrev_b32 v10, 4, v2")
        a("s_lshl_b32 s36, s25, 1")
        a("v_add_u32 v11, s36, v10")
        a("v_and_b32 v11, 3, v11")
        a("v_lshl_add_u32 v11, v11, 4, v3")
        a("v_lshlrev_b32 v94, 8, v11")
        a("s_lshl_b32 s59, s22, 7")
        a("s_lshl_b32 s36, s24, 6")
        a("s_add_u32 s59, s59, s36")
        a("s_lshl_b32 s59, s59, 8")
        a("s_add_u32 s59, s59, 0x%x" % STATS2)
        a("s_lshl_b32 s36, s23, 1")
        a("s_add_u32 s36, s36, s25")
        a("s_lshl_b32 s36, s36, 3")
        a("s_add_u32 s58, s36, s59")
    gran_addr()
    a("v_mov_b32 v12, 0"); a("v_mov_b32 v13, 0x80000000")
    a("buffer_store_dwordx2 v[12:13], v94, s[12:15], s58 offen sc1")
    mma_addr(0)
    a("s_mov_b32 s33, 0")
    a("s_barrier")
    stamp(a, 1)
    a.label("%s_mma" % name)
    core.prime(0, core.reads(0, 0))
    trk.drain()
    def mfmas(buf):
        L = []
        for ft in range(5):
            A = core.F(buf, ft)
            for tt in range(4 if ft < 4 else 2):
                c = core.accr(ft, tt); B = core.T(buf, tt)
                L.append(("v_mfma_f32_16x16x32_bf16 %s, %s, %s, %s" % (vr(c), vr(A), vr(B), vr(c)), list(range(A, A + 4)) + list(range(B, B + 4))))
            L.append(("v_mfma_f32_16x16x32_bf16 %s, %s, %s, %s" % (vr(CS + 4 * ft), vr(A), vr(ONE), vr(CS + 4 * ft)), list(range(A, A + 4))))
        return L
    def phase(buf, pend):
        for (m, regs) in mfmas(buf):
            trk.need(regs)
            a(m)
            while pend:
                k, t = pend.pop(0)
                if k == "x":
                    a(t)
                    if t.startswith("s_"): continue
                else:
                    a(t[0]); trk.issue(t[1])
                break
        for k, t in pend:
            if k == "x": a(t)
            else: a(t[0]); trk.issue(t[1])
    def iteration():
        a("s_waitcnt vmcnt(0)")
        a("s_barrier")
        rd = [("r", t) for t in core.reads(1, 1)]
        upd = ["s_add_u32 s27, s27, %d" % SLOT, "s_cmp_eq_u32 s27, %d" % (R * SLOT), "s_cselect_b32 s27, 0, s27"]
        tail = ["v_add_u32 v%d, s27, v%d" % (d, s_) for d, s_ in ((vTa[0], bTa[0]), (vF, bF), (vTb[0], bTb[0]), (vFh, bFh))]
        phase(0, rd[:1] + [("x", u) for u in upd] + rd[1:] + [("x", u) for u in tail])
        rd = [("r", t) for t in core.reads(0, 0)]
        tail = ["v_add_u32 v%d, s27, v%d" % (d, s_) for d, s_ in ((vTa[1], bTa[1]), (vTb[1], bTb[1]))] + ["s_add_u32 s33, s33, 1"]
        phase(1, rd + [("x", u) for u in tail])
    a.label("%s_cloop" % name)
    lb = len(a.lines); iteration(); st = copy.deepcopy(trk.out); del a.lines[lb:]; trk.out = copy.deepcopy(st)
    iteration()
    assert [sorted(x) for x in trk.out] == [sorted(x) for x in st]
    a("s_cmp_lt_u32 s33, 9")
    a("s_cbranch_scc1 %s_cloop" % name)
    trk.drain()
    stamp(a, 2)
    MR = 100; T = 72; ZP = 16
    def epi_in():
        gelu_consts(a)
        a("s_lshl_b32 s36, s24, 9")
        a("s_lshl_b32 s37, s25, 8")
        a("s_add_u32 s38, s36, s37")
        a("s_xor_b32 s37, s37, 256")
        a("s_add_u32 s39, s36, s37")
        a("v_lshlrev_b32 v10, 3, v3")
        a("v_add_u32 v11, s38, v10")
        a("ds_read_b64 %s, v11 offset:%d" % (vr(MR, 2), RST))
        a("ds_read_b64 %s, v11 offset:%d" % (vr(MR + 2, 2), RST + 128))
        a("v_add_u32 v11, s39, v10")
        a("ds_read_b64 %s, v11 offset:%d" % (vr(MR + 4, 2), RST))
        a("ds_read_b64 %s, v11 offset:%d" % (vr(MR + 6, 2), RST + 128))
        a("s_waitcnt lgkmcnt(0)")
    S = [108, 110, 52, 54]; Q = [109, 111, 53, 55]
    def gelu_ft(ft, stats):
        tts = range(4 if ft < 4 else 2)
        emit_fold_gelu(a, [(core.accr(ft, tt), CS + 4 * ft, MR + 2 * tt, ZP + 2 * tidx(ft, tt)) for tt in tts], T)
        if stats:
            for d in range(2):
                for tt in tts:
                    p = ZP + 2 * tidx(ft, tt) + d
                    a("v_dot2_f32_bf16 v%d, v%d, v%d, v%d" % (S[tt], p, ONE, S[tt]))
                    a("v_dot2_f32_bf16 v%d, v%d, v%d, v%d" % (Q[tt], p, p, Q[tt]))
    a("s_cmp_eq_u32 s98, 0")
    a("s_cbranch_scc1 %s_A1" % name)
    epi_in()
    a("s_lshl_b32 s36, s22, 4")
    a("s_add_u32 s36, s36, s23")
    a("s_lshl_b32 s36, s36, 2")
    a("s_add_u32 s36, s36, s3")
    a("s_mul_i32 s36, s36, 9216")
    a("s_add_u32 s36, s36, 0x%x" % Z1IMG)
    a("v_lshlrev_b32 v4, 4, v2")
    for ft in range(5):
        gelu_ft(ft, False)
        for q in ((2 * ft, 2 * ft + 1) if ft < 4 else (8,)):
            if q in (4, 8): a("s_add_u32 s36, s36, 4096")
            a("buffer_store_dwordx4 %s, v4, s[12:15], s36 offen offset:%d" % (vr(ZP + 4 * q), (q & 3) * 1024))
    stamp(a, 3)
    G.stamp_rt(a, 1)
    a("s_branch %s_end" % name)
    a.label("%s_A1" % name)
    a("s_setprio 2")
    vmA = VmTracker(a)
    PB = 132
    def aux_head():
        epi_in()
        for tt in range(4):
            a("v_mov_b32 v%d, 0" % S[tt]); a("v_mov_b32 v%d, 0" % Q[tt])
    def aux_pub():
        a("s_nop 2")
        emit_xg_reduce(a, S + Q, 72)
        a("v_lshrrev_b32 v10, 4, v2")
        for g in range(1, 4):
            a("v_cmp_eq_u32 vcc, %d, v10" % g)
            a("s_nop 1")
            a("v_cndmask_b32 v%d, v%d, v%d, vcc" % (S[0], S[0], S[g]))
            a("v_cndmask_b32 v%d, v%d, v%d, vcc" % (Q[0], Q[0], Q[g]))
        a("v_and_b32 v%d, 0x7fffffff, v%d" % (Q[0], Q[0]))
        a("buffer_store_dwordx2 v[%d:%d], v94, s[12:15], s58 offen sc1" % (S[0], Q[0]))
    chunks = [capture(aux_head) + capture(gelu_ft, 0, True), capture(gelu_ft, 1, True), capture(gelu_ft, 2, True),
              capture(gelu_ft, 3, True), capture(gelu_ft, 4, True) + capture(aux_pub)]
    KD = 172
    for k in range(9, 18):
        a("s_barrier")
        if k == 9:
            a("s_cmp_lg_u32 s3, 0")
            a("s_cbranch_scc1 %s_nosig" % name)
            a("v_mov_b32 v10, 1")
            a("s_lshl_b32 s36, s22, 2")
            a("v_mov_b32 v11, s36")
            a("s_mov_b64 exec, 1")
            a("buffer_atomic_add v10, v11, s[60:63], 0 offen sc1")
            a("s_mov_b64 exec, -1")
            a.label("%s_nosig" % name)
        g = k + 3
        dma = capture(lambda: (issueT(g), issueF(g))) if g < 18 else []
        comp = chunks[k - 9] if k - 9 < len(chunks) else []
        interleave(dma, comp)
        if k == 13: vmA.issue("pub", 1)
        if g < 18: vmA.issue("S%d" % g, 9)
        if k == 14:
            a("s_mov_b32 s41, s2")
            emit_kv_loads(a, KD, KD + 12, KD + 20, KD + 24, KD + 25); vmA.issue("kv", 20)
            a("s_lshl_b32 s36, s22, 2")
            a("v_mov_b32 v199, s36")
            a("buffer_load_dword v198, v199, s[60:63], 0 offen sc1"); vmA.issue("cnt", 1)
        if k + 2 < 18 and k + 2 >= 12:
            vmA.wait(["S%d" % (k + 2)])
    stamp(a, 3)
    a("s_setprio 0")
    a("v_lshrrev_b32 v10, 4, v2")
    a("v_lshlrev_b32 v95, 8, v3")
    a("v_lshl_add_u32 v95, v10, 6, v95")
    a("s_lshl_b32 s33, s25, 13")
    a("s_add_u32 s52, s59, s33")
    a("s_xor_b32 s33, s33, 8192")
    a("s_add_u32 s53, s59, s33")
    a("s_add_u32 s42, s52, 4096")
    a("s_add_u32 s43, s53, 4096")
    for r_ in range(36): a("v_mov_b32 v%d, v%d" % (216 + r_, ZP + r_))
    Z2 = 216
    a("s_waitcnt vmcnt(0)")
    GB = [128, 144, 160, 176]
    for n in range(11): a("v_mov_b32 v%d, v%d" % (16 + n, KD + n))
    for n in range(8): a("v_mov_b32 v%d, v%d" % (32 + n, KD + 12 + n))
    for n in range(4): a("v_mov_b32 v%d, v%d" % (44 + n, KD + 20 + n))
    a("v_mov_b32 v56, v%d" % (KD + 24)); a("v_mov_b32 v57, v%d" % (KD + 25))
    a("v_mov_b32 v4, v95")
    def gather():
        for tt in range(4):
            for q in range(4):
                a("buffer_load_dwordx4 %s, v4, s[12:15], s%d offen offset:%d sc1" % (vr(GB[tt] + 4 * q), (52, 42, 53, 43)[tt], 16 * q))
    gather()
    emit_kv_compute(a, wait=False, store=False)
    stamp(a, 4)
    a("s_mov_b32 s40, 0")
    a("s_waitcnt vmcnt(0)")
    a.label("%s_chk" % name)
    a("v_subrev_u32 v11, 16, v198")
    for tt in range(4):
        for r in range(GB[tt] + 1, GB[tt] + 16, 4):
            a("v_or3_b32 v11, v11, v%d, v%d" % (r, r + 2))
    a("v_cmp_gt_i32 vcc, 0, v11")
    a("s_add_u32 s40, s40, 1")
    a("s_cmp_gt_u32 s40, %d" % SPIN_MAX)
    a("s_cbranch_scc1 %s_ok" % name)
    a("s_cbranch_vccz %s_ok" % name)
    a("s_sleep 32")
    a("buffer_load_dword v198, v199, s[60:63], 0 offen sc1")
    a("s_waitcnt vmcnt(0)")
    gather()
    a("s_waitcnt vmcnt(0)")
    a("s_branch %s_chk" % name)
    a.label("%s_ok" % name)
    stamp(a, 5)
    a("v_lshrrev_b32 v5, 4, v2")
    a("v_lshlrev_b32 v5, 12, v5")
    a("v_lshl_add_u32 v5, v3, 4, v5")
    a("s_lshl_b32 s33, s22, 7")
    a("s_lshl_b32 s36, s3, 5")
    a("s_add_u32 s33, s33, s36")
    a("s_lshl_b32 s33, s33, 12")
    a("s_lshl_b32 s36, s23, 8")
    a("s_add_u32 s33, s33, s36")
    for n in range(8):
        a("buffer_load_dwordx4 v[200:203], v5, s[92:95], s33 offen")
        if n < 7: a("s_add_u32 s33, s33, 16384")
    a("s_mov_b32 s39, 0x%x" % KVT)
    a("buffer_store_dwordx4 v[120:123], v12, s[12:15], s39 offen")
    a("buffer_store_dwordx4 v[124:127], v13, s[12:15], s39 offen")
    for tt in range(4):
        b = GB[tt]
        for st_ in (8, 4, 2):
            for q in range(0, st_, 2):
                a("v_pk_add_f32 %s, %s, %s" % (vr(b + q, 2), vr(b + q, 2), vr(b + q + st_, 2)))
    emit_xg_reduce(a, [GB[tt] + e for tt in range(4) for e in range(2)], 72)
    for tt in range(4):
        b = GB[tt]
        emit_ln_finish(a, b, b + 1, 2304, b + 2, MR + 2 * tt, b + 4)
        a("v_mul_f32 v%d, -v%d, v%d" % (MR + 2 * tt + 1, b + 2, MR + 2 * tt))
    a("v_lshrrev_b32 v10, 4, v2")
    a("v_lshrrev_b32 v11, 2, v2"); a("v_and_b32 v11, 1, v11"); a("v_lshlrev_b32 v11, 4, v11")
    a("v_lshrrev_b32 v5, 3, v2"); a("v_and_b32 v5, 1, v5"); a("v_lshl_add_u32 v11, v5, 2, v11")
    a("v_and_b32 v5, 3, v2"); a("v_add_u32 v11, v11, v5")
    a("v_mul_u32_u24 v11, 288, v11")
    a("v_lshrrev_b32 v5, 1, v10"); a("v_lshl_add_u32 v11, v5, 4, v11")
    a("v_and_b32 v5, 1, v10")
    a("v_lshl_add_u32 v6, v5, 5, v11")
    a("v_mul_u32_u24 v5, 2304, v5")
    a("v_add_u32 v9, v11, v5")
    a("s_lshl_b32 s33, s23, 5")
    a("s_lshl_b32 s36, s22, 1")
    a("s_add_u32 s33, s33, s36")
    a("s_add_u32 s33, s33, s24")
    a("s_mul_i32 s33, s33, 18432")
    if ZIMG: a("s_add_u32 s33, s33, 0x%x" % ZIMG)
    a("s_mul_i32 s36, s25, 9216")
    a("s_add_u32 s37, s33, s36")
    a("s_xor_b32 s36, s36, 9216")
    a("s_add_u32 s38, s33, s36")
    a("s_add_u32 s39, s37, 128")
    a("s_mul_i32 s36, s25, 160")
    a("s_add_u32 s37, s37, s36")
    a("s_add_u32 s38, s38, s36")
    def norm_pair(nA, ttA, nB, ttB, O):
        for q, (n, tt) in enumerate(((nA, ttA), (nB, ttB))):
            for d in range(2):
                z = Z2 + 2 * n + d; t = T + 4 * q + 2 * d
                a("v_lshlrev_b32 v%d, 16, v%d" % (t, z))
                a("v_and_b32 v%d, 0xffff0000, v%d" % (t + 1, z))
        for q, (n, tt) in enumerate(((nA, ttA), (nB, ttB))):
            for d in range(2):
                t = T + 4 * q + 2 * d
                a("v_pk_fma_f32 %s, %s, %s, %s op_sel:[0,0,1] op_sel_hi:[1,0,1]" % (vr(t, 2), vr(t, 2), vr(MR + 2 * tt, 2), vr(MR + 2 * tt, 2)))
        for q in range(2):
            for d in range(2):
                t = T + 4 * q + 2 * d
                a("v_cvt_pk_bf16_f32 v%d, v%d, v%d" % (O + 2 * q + d, t, t + 1))
        a("s_nop 1")
        a("v_permlane16_swap_b32 v%d, v%d" % (O, O + 2))
        a("v_permlane16_swap_b32 v%d, v%d" % (O + 1, O + 3))
    cnt = 0
    for pr in range(2):
        for tt in range(4):
            O = 16 + 4 * cnt; cnt += 1
            norm_pair(tidx(2 * pr, tt), tt, tidx(2 * pr + 1, tt), tt, O)
            a("s_nop 0")
            a("buffer_store_dwordx4 %s, v6, s[12:15], s%d offen offset:%d" % (vr(O), 37 if tt < 2 else 38, (tt & 1) * 2304 + 64 * pr))
    O = 16 + 4 * cnt
    norm_pair(16, 0, 17, 1, O)
    a("s_nop 0")
    a("buffer_store_dwordx4 %s, v9, s[12:15], s39 offen" % vr(O))
    stamp(a, 6)
    a("s_cmp_ge_u32 s2, 32")
    a("s_cbranch_scc1 %s_fin" % name)
    a("s_add_u32 s41, s2, 256")
    emit_kv_loads(a)
    emit_kv_compute(a)
    a.label("%s_fin" % name)
    stamp(a, 7)
    G.stamp_rt(a, 1)
    a.label("%s_end" % name)
    a("s_endpgm")
    return a.text(), kernel_desc(name, 256, 256), (name, 256, 512, LDSB)

def gen_kf(name="k1_kernel", R=4):
    a = Asm()
    RB = 4096; SLOT = 34816; TREG = 16384; FS = 288; RST = 0
    LDSB = RB + R * SLOT
    LC = 2048
    ZFLG = 0x2D00000
    from gen3 import emit_conv_loads, emit_conv_job, CJ_SIZE
    def capture(f, *args):
        lb = len(a.lines); f(*args); out = a.lines[lb:]; del a.lines[lb:]; return out
    kernel_begin(a, name)
    a("s_load_dwordx2 s[80:81], s[0:1], 0")
    a("s_load_dwordx2 s[4:5], s[0:1], 56")
    a("s_load_dwordx2 s[6:7], s[0:1], 104")
    a("s_load_dwordx2 s[18:19], s[0:1], 96")
    a("s_cmp_ge_u32 s2, 256")
    a("s_cbranch_scc1 %s_end" % name)
    a("v_lshrrev_b32 v1, 6, v0")
    a("v_and_b32 v2, 63, v0")
    a("v_readfirstlane_b32 s3, v1")
    G2.tile_ij(a)
    a("s_lshr_b32 s98, s3, 2")
    a("s_mov_b32 s54x, 0".replace("s54x", "s99"))
    a("s_and_b32 s3, s3, 3")
    a("s_lshr_b32 s24, s3, 1")
    a("s_and_b32 s25, s3, 1")
    a("v_and_b32 v3, 15, v2")
    VT = 204; VF = 208
    def loader_setup():
        a("v_lshrrev_b32 v5, 3, v2")
        a("v_and_b32 v4, 7, v2")
        a("s_lshl_b32 s36, s3, 5")
        a("v_add_u32 v5, s36, v5")
        a("v_lshrrev_b32 v7, 4, v2")
        a("v_xor_b32 v7, v7, v4")
        a("v_mul_u32_u24 v6, 1152, v5")
        a("v_lshl_add_u32 v%d, v7, 4, v6" % VT)
        a("v_xor_b32 v%d, 64, v%d" % (VT + 1, VT))
        a("v_add_u32 v%d, %d, v%d" % (VT + 1, 9216 - 1024, VT + 1))
        a("v_add_u32 v%d, %d, v%d" % (VT + 2, 2 * (9216 - 1024), VT))
        a("v_add_u32 v%d, %d, v%d" % (VT + 3, 2 * (9216 - 1024), VT + 1))
        a("s_lshl_b32 s84, s3, 12")
        a("s_add_u32 s84, s84, %d" % RB)
        a("s_lshl_b32 s85, s3, 9")
        a("s_add_u32 s85, s85, %d" % (RB + TREG + 16384))
    def loader_setup2():
        for n in range(5):
            if n < 4:
                a("s_lshl_b32 s36, s3, 8")
                a("s_add_u32 s36, s36, %d" % (64 * n))
            else:
                a("s_lshl_b32 s36, s3, 5")
                a("s_add_u32 s36, s36, 1024")
            a("v_add_u32 v6, s36, v2")
            a("v_mul_u32_u24 v7, 3641, v6")
            a("v_lshrrev_b32 v7, 16, v7")
            a("v_mul_u32_u24 v8, 18, v7")
            a("v_sub_u32 v8, v6, v8")
            a("v_and_b32 v9, 35, v7")
            a("v_bfe_u32 v6, v7, 2, 2")
            a("v_lshl_add_u32 v9, v6, 3, v9")
            a("v_bfe_u32 v6, v7, 4, 1")
            a("v_lshl_add_u32 v9, v6, 2, v9")
            a("v_mul_u32_u24 v9, 9216, v9")
            a("v_lshl_add_u32 v%d, v8, 4, v9" % (VF + n))
            if 0 < n < 4: a("v_subrev_u32 v%d, %d, v%d" % (VF + n, 1024 * n, VF + n))
    def issueT(g):
        st = g % 9
        a("s_add_u32 s86, s84, %d" % ((g % R) * SLOT))
        a("s_mov_b32 m0, s86")
        a("s_add_u32 s87, s82, %d" % (128 * st))
        for n in range(4):
            a("buffer_load_dwordx4 v%d, s[28:31], s87 offen offset:%d lds" % (VT + n, 1024 * n))
    def issueF(g):
        st = g % 9
        a("s_add_u32 s86, s84, %d" % ((g % R) * SLOT + TREG))
        a("s_mov_b32 m0, s86")
        a("s_add_u32 s87, s83, %d" % (64 * 9216 * st + (4608 if g < 9 else 0)))
        for n in range(4):
            a("buffer_load_dwordx4 v%d, s[8:11], s87 offen offset:%d lds" % (VF + n, 1024 * n))
        a("s_add_u32 s86, s85, %d" % ((g % R) * SLOT))
        a("s_mov_b32 m0, s86")
        a("s_mov_b64 exec, 0xffffffff")
        a("buffer_load_dwordx4 v%d, s[8:11], s87 offen lds" % (VF + 4))
        a("s_mov_b64 exec, -1")
    def srds_main():
        srd(a, 28, 80, 2048 * 576 * 2)
        srd(a, 8, 4, 576 * 4608 * 2)
        srd(a, 12, 6, WS_BYTES)
        srd(a, 60, 18, 256)
        a("s_mul_i32 s82, s22, %d" % (128 * 1152))
        a("s_mul_i32 s83, s23, 288")
    ACC = 128; FB = [16, 52]; CS = 216; ONE = 236
    vTa = [4, 5]; vTb = [6, 7]; vF = 8; vFh = 9
    bTa = [88, 89]; bTb = [90, 91]; bF = 92; bFh = 93
    def mma_setup():
        a("v_lshrrev_b32 v10, 4, v2")
        a("v_lshrrev_b32 v11, 1, v3")
        a("v_xor_b32 v10, v10, v11")
        a("v_lshlrev_b32 v10, 4, v10")
        a("v_lshl_add_u32 v10, v3, 7, v10")
        a("s_lshl_b32 s26, s24, 13")
        a("s_add_u32 s26, s26, %d" % RB)
        a("v_add_u32 v10, s26, v10")
        a("s_lshl_b32 s26, s25, 12")
        a("v_add_u32 v%d, s26, v10" % bTa[0])
        a("s_xor_b32 s26, s26, 4096")
        a("v_add_u32 v%d, s26, v10" % bTb[0])
        a("v_xor_b32 v%d, 64, v%d" % (bTa[1], bTa[0]))
        a("v_xor_b32 v%d, 64, v%d" % (bTb[1], bTb[0]))
        a("v_lshrrev_b32 v10, 2, v2")
        a("v_mul_u32_u24 v10, %d, v10" % FS)
        a("v_and_b32 v11, 3, v2")
        a("v_lshl_add_u32 v10, v11, 3, v10")
        a("v_add_u32 v10, %d, v10" % (RB + TREG))
        a("s_mul_i32 s26, s25, 160")
        a("v_add_u32 v%d, s26, v10" % bF)
        a("v_add_u32 v%d, 128, v10" % bFh)
        for r in range(ACC, ACC + 72): a("v_mov_b32 v%d, 0" % r)
        for r in range(CS, CS + 20): a("v_mov_b32 v%d, 0" % r)
        for r in range(ONE, ONE + 4): a("v_mov_b32 v%d, 0x3f803f80" % r)
    def mma_addr(slot):
        a("s_mov_b32 s27, %d" % (slot * SLOT))
        for d, s_ in ((vTa[0], bTa[0]), (vTb[0], bTb[0]), (vTa[1], bTa[1]), (vTb[1], bTb[1]), (vF, bF), (vFh, bFh)):
            a("v_add_u32 v%d, s27, v%d" % (d, s_))
    core = G.Core(a, ACC, FB[0], FB[1], FS, TREG, vTa, vTb, vF, vFh)
    trk = core.trk
    a("s_cmp_eq_u32 s98, 0")
    a("s_cbranch_scc1 %s_A0" % name)
    a("s_setprio 3")
    loader_setup()
    a("s_waitcnt lgkmcnt(0)")
    srds_main()
    vm = VmTracker(a)
    def issue(g, vmx):
        issueT(g); issueF(g); vmx.issue("S%d" % g, 9)
    issueT(0)
    loader_setup2()
    issueF(0); vm.issue("S0", 9)
    issue(1, vm); issue(2, vm); issue(3, vm)
    a("s_add_u32 s3, s3, 4"); stamp_setup(a, 1); stamp(a, 0); a("s_sub_u32 s3, s3, 4")
    mma_setup()
    RA = 96; XB = 112
    for r in range(RA, RA + 16): a("v_mov_b32 v%d, 0" % r)
    a("v_lshrrev_b32 v10, 4, v2")
    a("v_lshrrev_b32 v11, 1, v3")
    a("v_xor_b32 v10, v10, v11")
    a("v_lshlrev_b32 v10, 4, v10")
    a("v_lshl_add_u32 v10, v3, 7, v10")
    a("v_add_u32 v12, s84, v10")
    a("v_xor_b32 v13, 64, v12")
    def rs_rd(g):
        a("v_add_u32 v10, %d, v12" % ((g % R) * SLOT))
        a("v_add_u32 v11, %d, v13" % ((g % R) * SLOT))
        for h in range(2):
            for n in range(2):
                a("ds_read_b128 %s, v%d offset:%d" % (vr(XB + 8 * h + 4 * n), 10 + h, 2048 * n))
    def rs_do():
        for h in range(2):
            for n in range(2):
                x = XB + 8 * h + 4 * n
                a("v_mfma_f32_16x16x32_bf16 %s, %s, %s, %s" % (vr(RA + 4 * n), vr(ONE), vr(x), vr(RA + 4 * n)))
                a("v_mfma_f32_16x16x32_bf16 %s, %s, %s, %s" % (vr(RA + 8 + 4 * n), vr(x), vr(x), vr(RA + 8 + 4 * n)))
    def interleave(dma, comp, vmx=None):
        groups = []; cur = []
        for l in dma:
            cur.append(l)
            if "buffer_load" in l and not any("exec, 0xffffffff" in x for x in cur[-2:]):
                groups.append(cur); cur = []
            elif "exec, -1" in l:
                groups.append(cur); cur = []
        if cur: groups.append(cur)
        ns = max(1, len(groups))
        per = (len(comp) + ns - 1) // ns
        for g in groups:
            a.lines.extend(g)
            a.lines.extend(comp[:per]); comp = comp[per:]
        a.lines.extend(comp)
    vm.wait(["S0"])
    a("s_barrier")
    stamp(a, 1)
    rs_rd(0)
    vm.wait(["S1"])
    a("s_barrier")
    for k in range(9):
        a("s_waitcnt lgkmcnt(0)")
        dma = capture(lambda: (issueT(k + 3), issueF(k + 3))) if k >= 1 else []
        interleave(dma, capture(rs_do))
        if k >= 1: vm.issue("S%d" % (k + 3), 9)
        if k < 8:
            rs_rd(k + 1)
        else:
            a("s_nop 7")
            a("v_lshrrev_b32 v10, 4, v2")
            a("v_lshrrev_b32 v11, 2, v3")
            a("v_and_b32 v12, 3, v3")
            for n in range(2):
                G_ = RA + 8 + 4 * n
                for r in range(1, 4):
                    a("v_cmp_eq_u32 vcc, %d, v12" % r)
                    a("s_nop 1")
                    a("v_cndmask_b32 v%d, v%d, v%d, vcc" % (G_, G_, G_ + r))
            ML = 112
            for n in range(2):
                emit_ln_finish(a, RA + 4 * n, RA + 8 + 4 * n, 576, ML + 2 * n, ML + 2 * n + 1, 120)
                a("v_mov_b32 v%d, v%d" % (117 + 2 * n, ML + 2 * n + 1))
                a("v_sub_f32 v%d, 0, v%d" % (116 + 2 * n, ML + 2 * n))
            a("s_lshl_b32 s35, s3, 8")
            a("v_lshlrev_b32 v13, 3, v3")
            a("v_add_u32 v12, s35, v13")
            a("v_cmp_eq_u32 vcc, v10, v11")
            a("s_and_saveexec_b64 s[36:37], vcc")
            for n in range(2):
                a("ds_write_b64 v12, %s offset:%d" % (vr(116 + 2 * n, 2), RST + 128 * n))
            a("s_mov_b64 exec, s[36:37]")
            a("s_cmp_lg_u32 s23, 0")
            a("s_cbranch_scc1 %s_nost1" % name)
            a("s_lshl_b32 s35, s22, 7")
            a("s_lshl_b32 s36, s3, 5")
            a("s_add_u32 s35, s35, s36")
            a("s_lshl_b32 s35, s35, 3")
            a("s_add_u32 s35, s35, 0x%x" % STATS1)
            a("v_mov_b32 v11, 0x7ffffff0")
            a("v_cndmask_b32 v13, v11, v13, vcc")
            for n in range(2):
                a("buffer_store_dwordx2 %s, v13, s[12:15], s35 offen offset:%d" % (vr(ML + 2 * n, 2), 128 * n))
            a.label("%s_nost1" % name)
            mma_addr(9 % R)
            a("s_mov_b32 s33, 0")
            a("s_setprio 0")
        vm.wait(["S%d" % (k + 2)], "lgkmcnt(0)" if k == 8 else "")
        if k < 8: a("s_barrier")
    a("s_branch %s_mma" % name)
    a.label("%s_A0" % name)
    emit_code_prefetch(a, name)
    a("s_load_dwordx4 s[64:67], s[0:1], 8")
    a("s_load_dwordx2 s[76:77], s[0:1], 24")
    a("s_load_dwordx2 s[78:79], s[0:1], 64")
    mma_setup()
    loader_setup(); loader_setup2()
    a("s_waitcnt lgkmcnt(0)")
    srds_main()
    srd(a, 68, 66, 2048 * 576 * 2)
    a("s_mov_b32 s88, s64"); a("s_mov_b32 s89, s65")
    srd(a, 64, 88, 2048 * 576 * 2)
    srd(a, 72, 76, 576 * 8)
    stamp_setup(a, 1); stamp(a, 0)
    def gran_addr():
        a("v_lshrrev_b32 v10, 4, v2")
        a("s_lshl_b32 s36, s25, 1")
        a("v_add_u32 v11, s36, v10")
        a("v_and_b32 v11, 3, v11")
        a("v_lshl_add_u32 v11, v11, 4, v3")
        a("v_lshlrev_b32 v94, 8, v11")
        a("s_lshl_b32 s59, s22, 7")
        a("s_lshl_b32 s36, s24, 6")
        a("s_add_u32 s59, s59, s36")
        a("s_lshl_b32 s59, s59, 8")
        a("s_add_u32 s59, s59, 0x%x" % STATS2)
        a("s_lshl_b32 s36, s23, 1")
        a("s_add_u32 s36, s36, s25")
        a("s_lshl_b32 s36, s36, 3")
        a("s_add_u32 s58, s36, s59")
    gran_addr()
    a("v_mov_b32 v12, 0"); a("v_mov_b32 v13, 0x80000000")
    a("buffer_store_dwordx2 v[12:13], v94, s[12:15], s58 offen sc1")
    a("s_lshl_b32 s36, s22, 4")
    a("s_add_u32 s36, s36, s23")
    a("s_lshl_b32 s36, s36, 8")
    a("s_add_u32 s97, s36, 0x%x" % ZFLG)
    a("v_mov_b32 v10, %d" % LC)
    a("v_mov_b32 v12, 0"); a("v_mov_b32 v13, 0")
    a("s_mov_b64 exec, 1")
    a("buffer_store_dword v12, v12, s[12:15], s97 offen sc1")
    a("s_mov_b64 exec, -1")
    a("ds_write_b64 v10, v[12:13]")
    a("ds_write_b64 v10, v[12:13] offset:8")
    mma_addr(0)
    a("s_mov_b32 s33, 0")
    a("s_waitcnt lgkmcnt(0)")
    a("s_barrier")
    stamp(a, 1)
    a.label("%s_mma" % name)
    core.prime(0, core.reads(0, 0))
    trk.drain()
    nocs = [False]
    def mfmas(buf):
        L = []
        for ft in range(5):
            A = core.F(buf, ft)
            for tt in range(4 if ft < 4 else 2):
                c = core.accr(ft, tt); B = core.T(buf, tt)
                L.append(("v_mfma_f32_16x16x32_bf16 %s, %s, %s, %s" % (vr(c), vr(A), vr(B), vr(c)), list(range(A, A + 4)) + list(range(B, B + 4))))
            if not nocs[0]: L.append(("v_mfma_f32_16x16x32_bf16 %s, %s, %s, %s" % (vr(CS + 4 * ft), vr(A), vr(ONE), vr(CS + 4 * ft)), list(range(A, A + 4))))
        return L
    def phase(buf, pend):
        for (m, regs) in mfmas(buf):
            trk.need(regs)
            a(m)
            while pend:
                k, t = pend.pop(0)
                if k == "x":
                    a(t)
                    if t.startswith("s_"): continue
                else:
                    a(t[0]); trk.issue(t[1])
                break
        for k, t in pend:
            if k == "x": a(t)
            else: a(t[0]); trk.issue(t[1])
    def iteration(vw=True):
        if vw: a("s_waitcnt vmcnt(0)")
        a("s_barrier")
        rd = [("r", t) for t in core.reads(1, 1)]
        upd = ["s_add_u32 s27, s27, %d" % SLOT, "s_cmp_eq_u32 s27, %d" % (R * SLOT), "s_cselect_b32 s27, 0, s27"]
        tail = ["v_add_u32 v%d, s27, v%d" % (d, s_) for d, s_ in ((vTa[0], bTa[0]), (vF, bF), (vTb[0], bTb[0]), (vFh, bFh))]
        phase(0, rd[:1] + [("x", u) for u in upd] + rd[1:] + [("x", u) for u in tail])
        rd = [("r", t) for t in core.reads(0, 0)]
        tail = ["v_add_u32 v%d, s27, v%d" % (d, s_) for d, s_ in ((vTa[1], bTa[1]), (vTb[1], bTb[1]))] + ["s_add_u32 s33, s33, 1"]
        phase(1, rd + [("x", u) for u in tail])
    a.label("%s_cloop" % name)
    lb = len(a.lines); iteration(); st = copy.deepcopy(trk.out); del a.lines[lb:]; trk.out = copy.deepcopy(st)
    iteration()
    assert [sorted(x) for x in trk.out] == [sorted(x) for x in st]
    a("s_cmp_lt_u32 s33, 9")
    a("s_cbranch_scc1 %s_cloop" % name)
    trk.drain()
    stamp(a, 2)
    MR = 100; T = 72; ZP = 16
    def epi_in():
        gelu_consts(a)
        a("s_lshl_b32 s36, s24, 9")
        a("s_lshl_b32 s37, s25, 8")
        a("s_add_u32 s38, s36, s37")
        a("s_xor_b32 s37, s37, 256")
        a("s_add_u32 s39, s36, s37")
        a("v_lshlrev_b32 v10, 3, v3")
        a("v_add_u32 v11, s38, v10")
        a("ds_read_b64 %s, v11 offset:%d" % (vr(MR, 2), RST))
        a("ds_read_b64 %s, v11 offset:%d" % (vr(MR + 2, 2), RST + 128))
        a("v_add_u32 v11, s39, v10")
        a("ds_read_b64 %s, v11 offset:%d" % (vr(MR + 4, 2), RST))
        a("ds_read_b64 %s, v11 offset:%d" % (vr(MR + 6, 2), RST + 128))
        a("s_waitcnt lgkmcnt(0)")
    S = [108, 110, 52, 54]; Q = [109, 111, 53, 55]
    def gelu_ft(ft, stats):
        tts = range(4 if ft < 4 else 2)
        emit_fold_gelu(a, [(core.accr(ft, tt), CS + 4 * ft, MR + 2 * tt, ZP + 2 * tidx(ft, tt)) for tt in tts], T)
        if stats:
            for d in range(2):
                for tt in tts:
                    p = ZP + 2 * tidx(ft, tt) + d
                    a("v_dot2_f32_bf16 v%d, v%d, v%d, v%d" % (S[tt], p, ONE, S[tt]))
                    a("v_dot2_f32_bf16 v%d, v%d, v%d, v%d" % (Q[tt], p, p, Q[tt]))
    a("s_cmp_eq_u32 s98, 0")
    a("s_cbranch_scc1 %s_A1" % name)
    a("s_barrier")
    a("s_load_dwordx4 s[64:67], s[0:1], 8")
    a("s_load_dwordx2 s[76:77], s[0:1], 24")
    a("s_load_dwordx2 s[94:95], s[0:1], 80")
    a("s_load_dwordx2 s[92:93], s[0:1], 72")
    epi_in()
    srd(a, 68, 66, 2048 * 576 * 2)
    a("s_mov_b32 s88, s64"); a("s_mov_b32 s89, s65")
    srd(a, 64, 88, 2048 * 576 * 2)
    srd(a, 72, 76, 576 * 8)
    srd(a, 76, 94, 2304 * 576 * 2)
    srd(a, 28, 92, 2048 * 2)
    a("v_and_b32 v0, 255, v0")
    a("s_mov_b32 s41, s2")
    KDB = 240
    emit_kv_loads(a, 112, 240, 248, 252, 253)
    for ft in range(5): gelu_ft(ft, False)
    Z1R = 200; BI = 236
    for r_ in range(36): a("v_mov_b32 v%d, v%d" % (Z1R + r_, ZP + r_))
    stamp(a, 3)
    a("s_waitcnt vmcnt(0)")
    for n in range(11): a("v_mov_b32 v%d, v%d" % (16 + n, 112 + n))
    for n in range(8): a("v_mov_b32 v%d, v%d" % (32 + n, 240 + n))
    for n in range(4): a("v_mov_b32 v%d, v%d" % (44 + n, 248 + n))
    a("v_mov_b32 v56, v252"); a("v_mov_b32 v57, v253")
    for r_ in range(6): a("v_mov_b32 v%d, v%d" % (240 + r_, 88 + r_))
    a.label("%s_kvb" % name)
    emit_kv_compute(a, wait=False, store=False)
    a("s_mov_b32 s39, 0x%x" % KVT)
    a("buffer_store_dwordx4 v[120:123], v12, s[12:15], s39 offen sc1")
    a("buffer_store_dwordx4 v[124:127], v13, s[12:15], s39 offen sc1")
    a("s_add_u32 s41, s41, 256")
    a("s_cmp_ge_u32 s41, 288")
    a("s_cbranch_scc1 %s_kvbd" % name)
    emit_kv_loads(a)
    a("s_waitcnt vmcnt(0)")
    a("s_branch %s_kvb" % name)
    a.label("%s_kvbd" % name)
    for r_ in range(6): a("v_mov_b32 v%d, v%d" % (88 + r_, 240 + r_))
    a("s_mov_b32 s42, s2")
    emit_wot_loads(a, 100, 112, 720, 3)
    a("s_lshl_b32 s36, s22, 7")
    a("s_lshl_b32 s37, s24, 6")
    a("s_add_u32 s36, s36, s37")
    a("v_lshlrev_b32 v11, 1, v3")
    a("s_lshl_b32 s37, s25, 6")
    a("s_lshl_b32 s38, s36, 1")
    a("s_add_u32 s39, s38, s37")
    a("s_xor_b32 s37, s37, 64")
    a("s_add_u32 s36, s38, s37")
    a("buffer_load_ushort v96, v11, s[28:31], s39 offen")
    a("buffer_load_ushort v97, v11, s[28:31], s39 offen offset:32")
    a("buffer_load_ushort v98, v11, s[28:31], s36 offen")
    a("buffer_load_ushort v99, v11, s[28:31], s36 offen offset:32")
    for r in range(ACC, ACC + 72): a("v_mov_b32 v%d, 0" % r)
    mma_addr(0)
    a("s_mov_b32 s33, 0")
    stamp(a, 4)
    a("s_barrier")
    stamp(a, 5)
    core.prime(0, core.reads(0, 0))
    trk.drain()
    nocs[0] = True
    a.label("%s_gloop" % name)
    lb = len(a.lines); iteration(False); st = copy.deepcopy(trk.out); del a.lines[lb:]; trk.out = copy.deepcopy(st)
    iteration(False)
    assert [sorted(x) for x in trk.out] == [sorted(x) for x in st]
    a("s_cmp_lg_u32 s33, 3")
    a("s_cbranch_scc1 %s_ghk" % name)
    a("s_waitcnt vmcnt(0)")
    for n in range(3):
        a("buffer_store_dwordx4 %s, v%d, s[12:15], s40 offen" % (vr(100 + 4 * n), 112 + n))
    for tt in range(4): a("v_lshlrev_b32 v%d, 16, v%d" % (BI + 2 * tt, 96 + tt))
    a("v_mov_b32 v10, %d" % (LC + 8))
    a("v_mov_b32 v11, 1")
    a("s_mov_b64 exec, 1")
    a("ds_add_rtn_u32 v12, v10, v11")
    a("s_waitcnt lgkmcnt(0)")
    a("v_readfirstlane_b32 s36, v12")
    a("s_cmp_lg_u32 s36, 3")
    a("s_cbranch_scc1 %s_nokvs" % name)
    a("s_and_b32 s36, s2, 15")
    a("s_lshl_b32 s36, s36, 2")
    a("s_add_u32 s36, s36, 128")
    a("v_mov_b32 v10, s36")
    a("buffer_atomic_add v11, v10, s[60:63], 0 offen sc1")
    a.label("%s_nokvs" % name)
    a("s_mov_b64 exec, -1")
    a.label("%s_ghk" % name)
    a("s_cmp_lt_u32 s33, 32")
    a("s_cbranch_scc1 %s_gloop" % name)
    trk.drain()
    stamp(a, 6)
    G3.emit_k2_epilogue(a, core, Z1R, BI)
    stamp(a, 7)
    G.stamp_rt(a, 1)
    a("s_branch %s_end" % name)
    a.label("%s_A1" % name)
    a("s_setprio 2")
    vmA = VmTracker(a)
    PB = 132
    def aux_head():
        epi_in()
        for tt in range(4):
            a("v_mov_b32 v%d, 0" % S[tt]); a("v_mov_b32 v%d, 0" % Q[tt])
    def aux_pub():
        a("s_nop 2")
        emit_xg_reduce(a, S + Q, 72)
        a("v_lshrrev_b32 v10, 4, v2")
        for g in range(1, 4):
            a("v_cmp_eq_u32 vcc, %d, v10" % g)
            a("s_nop 1")
            a("v_cndmask_b32 v%d, v%d, v%d, vcc" % (S[0], S[0], S[g]))
            a("v_cndmask_b32 v%d, v%d, v%d, vcc" % (Q[0], Q[0], Q[g]))
        a("v_and_b32 v%d, 0x7fffffff, v%d" % (Q[0], Q[0]))
        a("buffer_store_dwordx2 v[%d:%d], v94, s[12:15], s58 offen sc1" % (S[0], Q[0]))
    chunks = [capture(aux_head) + capture(gelu_ft, 0, True), capture(gelu_ft, 1, True), capture(gelu_ft, 2, True),
              capture(gelu_ft, 3, True), capture(gelu_ft, 4, True) + capture(aux_pub)]
    KD = 172
    for k in range(9, 18):
        a("s_barrier")
        if k == 9:
            a("s_cmp_lg_u32 s3, 0")
            a("s_cbranch_scc1 %s_nosig" % name)
            a("v_mov_b32 v10, 1")
            a("s_lshl_b32 s36, s22, 2")
            a("v_mov_b32 v11, s36")
            a("s_mov_b64 exec, 1")
            a("buffer_atomic_add v10, v11, s[60:63], 0 offen sc1")
            a("s_mov_b64 exec, -1")
            a.label("%s_nosig" % name)
        g = k + 3
        dma = capture(lambda: (issueT(g), issueF(g))) if g < 18 else []
        comp = chunks[k - 9] if k - 9 < len(chunks) else []
        interleave(dma, comp)
        if k == 13: vmA.issue("pub", 1)
        if g < 18: vmA.issue("S%d" % g, 9)
        if k == 14:
            srd(a, 92, 78, 2048 * 2048 * 2)
            a("v_lshrrev_b32 v10, 4, v2")
            a("v_lshlrev_b32 v10, 12, v10")
            a("v_lshl_add_u32 v10, v3, 4, v10")
            a("s_lshl_b32 s40, s22, 7")
            a("s_lshl_b32 s36, s3, 5")
            a("s_add_u32 s40, s40, s36")
            a("s_lshl_b32 s40, s40, 12")
            a("s_lshl_b32 s36, s23, 8")
            a("s_add_u32 s40, s40, s36")
            for n in range(8):
                a("buffer_load_dwordx4 v[200:203], v10, s[92:95], s40 offen")
                if n < 7: a("s_add_u32 s40, s40, 16384")
            vmA.issue("wp", 8)
            a("s_lshl_b32 s36, s22, 2")
            a("v_mov_b32 v199, s36")
            a("buffer_load_dword v198, v199, s[60:63], 0 offen sc1"); vmA.issue("cnt", 1)
        if k + 2 < 18 and k + 2 >= 12:
            vmA.wait(["S%d" % (k + 2)])
    a("s_barrier")
    stamp(a, 3)
    a("s_load_dwordx4 s[88:91], s[0:1], 32")
    a("v_lshrrev_b32 v10, 4, v2")
    a("v_lshlrev_b32 v95, 8, v3")
    a("v_lshl_add_u32 v95, v10, 6, v95")
    a("s_lshl_b32 s33, s25, 13")
    a("s_add_u32 s52, s59, s33")
    a("s_xor_b32 s33, s33, 8192")
    a("s_add_u32 s53, s59, s33")
    a("s_add_u32 s42, s52, 4096")
    a("s_add_u32 s43, s53, 4096")
    Z2 = ZP
    a("s_waitcnt vmcnt(0)")
    GB = [128, 144, 160, 176]
    a("v_mov_b32 v4, v95")
    def gather():
        for tt in range(4):
            for q in range(4):
                a("buffer_load_dwordx4 %s, v4, s[12:15], s%d offen offset:%d sc1" % (vr(GB[tt] + 4 * q), (52, 42, 53, 43)[tt], 16 * q))
    gather()
    a("s_mov_b32 s40, 0")
    a("s_waitcnt vmcnt(0)")
    a.label("%s_chk" % name)
    a("v_subrev_u32 v11, 16, v198")
    for tt in range(4):
        for r in range(GB[tt] + 1, GB[tt] + 16, 4):
            a("v_or3_b32 v11, v11, v%d, v%d" % (r, r + 2))
    a("v_cmp_gt_i32 vcc, 0, v11")
    a("s_add_u32 s40, s40, 1")
    a("s_cmp_gt_u32 s40, %d" % SPIN_MAX)
    a("s_cbranch_scc1 %s_ok" % name)
    a("s_cbranch_vccz %s_ok" % name)
    a("s_sleep 32")
    a("buffer_load_dword v198, v199, s[60:63], 0 offen sc1")
    a("s_waitcnt vmcnt(0)")
    gather()
    a("s_waitcnt vmcnt(0)")
    a("s_branch %s_chk" % name)
    a.label("%s_ok" % name)
    stamp(a, 5)
    for tt in range(4):
        b = GB[tt]
        for st_ in (8, 4, 2):
            for q in range(0, st_, 2):
                a("v_pk_add_f32 %s, %s, %s" % (vr(b + q, 2), vr(b + q, 2), vr(b + q + st_, 2)))
    emit_xg_reduce(a, [GB[tt] + e for tt in range(4) for e in range(2)], 72)
    for tt in range(4):
        b = GB[tt]
        emit_ln_finish(a, b, b + 1, 2304, b + 2, MR + 2 * tt, b + 4)
        a("v_mul_f32 v%d, -v%d, v%d" % (MR + 2 * tt + 1, b + 2, MR + 2 * tt))
    a("v_lshrrev_b32 v10, 4, v2")
    a("v_lshrrev_b32 v11, 2, v2"); a("v_and_b32 v11, 1, v11"); a("v_lshlrev_b32 v11, 4, v11")
    a("v_lshrrev_b32 v5, 3, v2"); a("v_and_b32 v5, 1, v5"); a("v_lshl_add_u32 v11, v5, 2, v11")
    a("v_and_b32 v5, 3, v2"); a("v_add_u32 v11, v11, v5")
    a("v_mul_u32_u24 v11, 288, v11")
    a("v_lshrrev_b32 v5, 1, v10"); a("v_lshl_add_u32 v11, v5, 4, v11")
    a("v_and_b32 v5, 1, v10")
    a("v_lshl_add_u32 v6, v5, 5, v11")
    a("v_mul_u32_u24 v5, 2304, v5")
    a("v_add_u32 v9, v11, v5")
    a("s_lshl_b32 s33, s23, 5")
    a("s_lshl_b32 s36, s22, 1")
    a("s_add_u32 s33, s33, s36")
    a("s_add_u32 s33, s33, s24")
    a("s_mul_i32 s33, s33, 18432")
    if ZIMG: a("s_add_u32 s33, s33, 0x%x" % ZIMG)
    a("s_mul_i32 s36, s25, 9216")
    a("s_add_u32 s37, s33, s36")
    a("s_xor_b32 s36, s36, 9216")
    a("s_add_u32 s38, s33, s36")
    a("s_add_u32 s39, s37, 128")
    a("s_mul_i32 s36, s25, 160")
    a("s_add_u32 s37, s37, s36")
    a("s_add_u32 s38, s38, s36")
    def norm_pair(nA, ttA, nB, ttB, O):
        for q, (n, tt) in enumerate(((nA, ttA), (nB, ttB))):
            for d in range(2):
                z = Z2 + 2 * n + d; t = T + 4 * q + 2 * d
                a("v_lshlrev_b32 v%d, 16, v%d" % (t, z))
                a("v_and_b32 v%d, 0xffff0000, v%d" % (t + 1, z))
        for q, (n, tt) in enumerate(((nA, ttA), (nB, ttB))):
            for d in range(2):
                t = T + 4 * q + 2 * d
                a("v_pk_fma_f32 %s, %s, %s, %s op_sel:[0,0,1] op_sel_hi:[1,0,1]" % (vr(t, 2), vr(t, 2), vr(MR + 2 * tt, 2), vr(MR + 2 * tt, 2)))
        for q in range(2):
            for d in range(2):
                t = T + 4 * q + 2 * d
                a("v_cvt_pk_bf16_f32 v%d, v%d, v%d" % (O + 2 * q + d, t, t + 1))
        a("s_nop 1")
        a("v_permlane16_swap_b32 v%d, v%d" % (O, O + 2))
        a("v_permlane16_swap_b32 v%d, v%d" % (O + 1, O + 3))
    cnt = 0
    for pr in range(2):
        for tt in range(4):
            O = 200 + 4 * cnt; cnt += 1
            norm_pair(tidx(2 * pr, tt), tt, tidx(2 * pr + 1, tt), tt, O)
            a("s_nop 0")
            a("buffer_store_dwordx4 %s, v6, s[12:15], s%d offen offset:%d" % (vr(O), 37 if tt < 2 else 38, (tt & 1) * 2304 + 64 * pr) + " sc1")
    O = 200 + 4 * cnt
    norm_pair(16, 0, 17, 1, O)
    a("s_nop 0")
    a("buffer_store_dwordx4 %s, v9, s[12:15], s39 offen sc1" % vr(O))
    stamp(a, 6)
    a("s_setprio 3")
    srd(a, 8, 78, 2048 * 2048 * 2)
    a("v_lshrrev_b32 v3, 3, v2")
    a("s_lshl_b32 s24, s3, 5")
    a("v_add_u32 v3, s24, v3")
    a("v_and_b32 v4, 7, v2")
    a("v_lshrrev_b32 v6, 4, v2")
    a("v_xor_b32 v6, v6, v4")
    a("v_lshlrev_b32 v6, 4, v6")
    a("v_lshl_add_u32 v10, v3, 12, v6")
    a("v_xor_b32 v11, 64, v10")
    a("v_add_u32 v11, %d, v11" % (32768 - 1024))
    a("v_add_u32 v12, %d, v10" % (2 * (32768 - 1024)))
    a("v_add_u32 v13, %d, v11" % (2 * (32768 - 1024)))
    a("v_lshlrev_b32 v14, 4, v2")
    a("s_lshl_b32 s26, s22, 19")
    a("s_mul_i32 s27, s23, %d" % (32 * 18432))
    a("s_lshl_b32 s24, s3, 12")
    a("s_add_u32 s27, s27, s24")
    if ZIMG: a("s_add_u32 s27, s27, 0x%x" % ZIMG)
    a("s_lshl_b32 s25, s3, 9")
    a("s_sub_u32 s32, s25, s24")
    a("s_add_u32 s32, s32, 16384")
    a("s_add_u32 s24, s24, %d" % RB)
    a("s_waitcnt vmcnt(0) lgkmcnt(0)")
    a("v_mov_b32 v26, %d" % LC)
    a("v_mov_b32 v27, 1")
    a("s_mov_b64 exec, 1")
    a("ds_add_rtn_u32 v28, v26, v27")
    a("s_waitcnt lgkmcnt(0)")
    a("v_readfirstlane_b32 s36, v28")
    a("s_cmp_lg_u32 s36, 3")
    a("s_cbranch_scc1 %s_nozs" % name)
    a("v_mov_b32 v28, 0")
    a("buffer_store_dword v27, v28, s[12:15], s97 offen sc1")
    a.label("%s_nozs" % name)
    a("s_mov_b64 exec, -1")
    stamp(a, 7)
    srd(a, 16, 88, 576 * 2048 * 2)
    srd(a, 84, 90, 576 * 2)
    for g in range(4):
        a("s_add_u32 s35, s24, %d" % (g * SLOT))
        a("s_mov_b32 m0, s35")
        a("s_add_u32 s36, s26, %d" % (128 * g))
        for n in range(4):
            a("buffer_load_dwordx4 v%d, s[8:11], s36 offen offset:%d lds" % (10 + n, n * 1024))
    a("s_mov_b32 s34, 0")
    a("s_cmp_lg_u32 s3, 0")
    a("s_cbranch_scc1 %s_pl" % name)
    a("v_and_b32 v28, 15, v2")
    a("v_lshlrev_b32 v30, 2, v28")
    a("v_lshlrev_b32 v28, 12, v28")
    a("s_lshl_b32 s52, s23, 8")
    a("s_add_u32 s52, s52, 0x%x" % ZFLG)
    a.label("%s_pz0" % name)
    a("buffer_load_dword v31, v30, s[60:63], 0 offen sc1")
    a("s_add_u32 s34, s34, 1")
    a("s_waitcnt vmcnt(0)")
    a("v_cmp_gt_u32 vcc, 16, v31")
    a("s_cmp_gt_u32 s34, %d" % SPIN_MAX)
    a("s_cbranch_scc1 %s_pz" % name)
    a("s_cbranch_vccz %s_pz" % name)
    a("s_sleep 32")
    a("s_branch %s_pz0" % name)
    a.label("%s_pz" % name)
    a("buffer_load_dword v29, v28, s[12:15], s52 offen sc1")
    a("s_add_u32 s34, s34, 1")
    a("s_waitcnt vmcnt(0)")
    a("v_cmp_ne_u32 vcc, 1, v29")
    a("s_cmp_gt_u32 s34, %d" % SPIN_MAX)
    a("s_cbranch_scc1 %s_pzx" % name)
    a("s_cbranch_vccz %s_pzx" % name)
    a("s_sleep 8")
    a("s_branch %s_pz" % name)
    a.label("%s_pzx" % name)
    a("v_mov_b32 v27, 1")
    a("ds_write_b32 v26, v27 offset:4")
    a("s_branch %s_pgo" % name)
    a.label("%s_pl" % name)
    a("ds_read_b32 v27, v26 offset:4")
    a("s_add_u32 s34, s34, 1")
    a("s_waitcnt lgkmcnt(0)")
    a("v_readfirstlane_b32 s36, v27")
    a("s_cmp_gt_u32 s34, %d" % (SPIN_MAX * 20))
    a("s_cbranch_scc1 %s_pgo" % name)
    a("s_cmp_lg_u32 s36, 0")
    a("s_cbranch_scc1 %s_pgo" % name)
    a("s_sleep 2")
    a("s_branch %s_pl" % name)
    a.label("%s_pgo" % name)
    stamp(a, 8)
    for g in range(4):
        a("s_add_u32 s35, s24, %d" % (g * SLOT + TREG))
        a("s_mov_b32 m0, s35")
        a("s_add_u32 s36, s27, %d" % (18432 * g))
        a("s_add_u32 s37, s36, s32")
        for n in range(4):
            a("buffer_load_dwordx4 v14, s[12:15], s36 offen offset:%d sc1 lds" % (n * 1024))
        a("s_add_u32 s35, s35, s32")
        a("s_mov_b32 m0, s35")
        a("s_mov_b64 exec, 0xffffffff")
        a("buffer_load_dwordx4 v14, s[12:15], s37 offen sc1 lds")
        a("s_mov_b64 exec, -1")
    a("s_add_u32 s26, s26, 512")
    a("s_add_u32 s27, s27, %d" % (4 * 18432))
    a("s_mov_b32 s33, 0")
    a("s_lshl_b32 s43, s2, 2")
    a("s_add_u32 s43, s43, s3")
    a("s_and_b32 s53, s43, 1")
    a("s_sub_u32 s36, s43, 448")
    a("s_lshr_b32 s37, s43, 1")
    a("s_cmp_ge_u32 s43, 896")
    a("s_cselect_b32 s43, s36, s37")
    a("s_cselect_b32 s53, 2, s53")
    a("s_waitcnt vmcnt(15)")
    a("s_barrier")
    a("s_waitcnt vmcnt(10)")
    a("s_barrier")
    a("s_waitcnt vmcnt(5)")
    a("s_barrier")
    a("s_mov_b32 s34, 4")
    def issue2():
        a("s_add_u32 s35, s33, s24")
        a("s_mov_b32 m0, s35")
        a("s_add_u32 s36, s35, %d" % TREG)
        for n in range(4):
            a("buffer_load_dwordx4 v%d, s[8:11], s26 offen offset:%d lds" % (10 + n, n * 1024))
        a("s_mov_b32 m0, s36")
        a("s_add_u32 s37, s27, s32")
        for n in range(4):
            a("buffer_load_dwordx4 v14, s[12:15], s27 offen offset:%d sc1 lds" % (n * 1024))
        a("s_add_u32 s36, s36, s32")
        a("s_mov_b32 m0, s36")
        a("s_mov_b64 exec, 0xffffffff")
        a("buffer_load_dwordx4 v14, s[12:15], s37 offen sc1 lds")
        a("s_mov_b64 exec, -1")
        a("s_add_u32 s26, s26, 128")
        a("s_add_u32 s27, s27, 18432")
        a("s_add_u32 s33, s33, %d" % SLOT)
        a("s_cmp_eq_u32 s33, %d" % (R * SLOT))
        a("s_cselect_b32 s33, 0, s33")
    a.label("%s_lloop" % name)
    issue2()
    a("s_cmp_eq_u32 s34, 18")
    a("s_cbranch_scc1 %s_hk1" % name)
    a("s_cmp_eq_u32 s34, 21")
    a("s_cbranch_scc1 %s_hk2" % name)
    a("s_waitcnt vmcnt(9)")
    a.label("%s_lcont" % name)
    a("s_barrier")
    a("s_add_u32 s34, s34, 1")
    a("s_cmp_lt_u32 s34, 32")
    a("s_cbranch_scc1 %s_lloop" % name)
    a("s_branch %s_ldone" % name)
    a.label("%s_hk1" % name)
    a("v_and_b32 v28, 15, v2")
    a("v_lshlrev_b32 v28, 2, v28")
    a("buffer_load_dword v29, v28, s[60:63], 0 offen offset:128 sc1")
    a("s_waitcnt vmcnt(10)")
    a("s_branch %s_lcont" % name)
    a.label("%s_hk2" % name)
    a("s_mov_b32 s52, 0")
    a.label("%s_hk2l" % name)
    a("v_cmp_gt_u32 vcc, 16, v29")
    a("s_add_u32 s52, s52, 1")
    a("s_cmp_gt_u32 s52, %d" % SPIN_MAX)
    a("s_cbranch_scc1 %s_hk2g" % name)
    a("s_cbranch_vccz %s_hk2g" % name)
    a("s_sleep 16")
    a("buffer_load_dword v29, v28, s[60:63], 0 offen offset:128 sc1")
    a("s_waitcnt vmcnt(0)")
    a("s_branch %s_hk2l" % name)
    a.label("%s_hk2g" % name)
    nconv = emit_conv_loads(a, " sc1")
    a("s_waitcnt vmcnt(%d)" % (9 + nconv))
    a("s_branch %s_lcont" % name)
    a.label("%s_ldone" % name)
    a("s_waitcnt vmcnt(0)")
    a("s_barrier")
    a("s_mov_b32 s26, s53")
    a("s_and_b32 s27, s3, 1")
    a("s_mul_i32 s27, s27, %d" % CJ_SIZE)
    a("s_lshr_b32 s36, s3, 1")
    a("s_mul_i32 s36, s36, %d" % SLOT)
    a("s_add_u32 s27, s27, s36")
    a("s_add_u32 s27, s27, %d" % RB)
    def mid():
        a("s_barrier")
        a("s_setprio 0")
    sv = set(DBG); DBG.discard("stamp")
    emit_conv_job(a, name, mid)
    DBG.update(sv)
    G.stamp_rt(a, 1)
    a.label("%s_end" % name)
    a("s_endpgm")
    return a.text(), kernel_desc(name, 256, 256), (name, 256, 512, LDSB)

def gen_k1i(name="k1_kernel", R=4):
    a = Asm()
    RB = 4096; SLOT = 34816; TREG = 16384; FS = 288; RST = 0
    LDSB = RB + R * SLOT
    def capture(f, *args):
        lb = len(a.lines); f(*args); out = a.lines[lb:]; del a.lines[lb:]; return out
    kernel_begin(a, name)
    a("s_load_dwordx2 s[80:81], s[0:1], 0")
    a("s_load_dwordx2 s[4:5], s[0:1], 56")
    a("s_load_dwordx2 s[6:7], s[0:1], 104")
    a("s_load_dwordx2 s[18:19], s[0:1], 96")
    a("s_cmp_ge_u32 s2, 256")
    a("s_cbranch_scc1 %s_end" % name)
    a("v_lshrrev_b32 v1, 6, v0")
    a("v_and_b32 v2, 63, v0")
    a("v_readfirstlane_b32 s3, v1")
    G2.tile_ij(a)
    a("s_lshr_b32 s98, s3, 2")
    a("s_mov_b32 s54x, 0".replace("s54x", "s99"))
    a("s_and_b32 s3, s3, 3")
    a("s_lshr_b32 s24, s3, 1")
    a("s_and_b32 s25, s3, 1")
    a("v_and_b32 v3, 15, v2")
    VT = 204; VF = 208
    def loader_setup():
        a("v_lshrrev_b32 v5, 3, v2")
        a("v_and_b32 v4, 7, v2")
        a("s_lshl_b32 s36, s3, 5")
        a("v_add_u32 v5, s36, v5")
        a("v_lshrrev_b32 v7, 4, v2")
        a("v_xor_b32 v7, v7, v4")
        a("v_mul_u32_u24 v6, 1152, v5")
        a("v_lshl_add_u32 v%d, v7, 4, v6" % VT)
        a("v_xor_b32 v%d, 64, v%d" % (VT + 1, VT))
        a("v_add_u32 v%d, %d, v%d" % (VT + 1, 9216 - 1024, VT + 1))
        a("v_add_u32 v%d, %d, v%d" % (VT + 2, 2 * (9216 - 1024), VT))
        a("v_add_u32 v%d, %d, v%d" % (VT + 3, 2 * (9216 - 1024), VT + 1))
        a("s_lshl_b32 s84, s3, 12")
        a("s_add_u32 s84, s84, %d" % RB)
        a("s_lshl_b32 s85, s3, 9")
        a("s_add_u32 s85, s85, %d" % (RB + TREG + 16384))
    def loader_setup2():
        for n in range(5):
            if n < 4:
                a("s_lshl_b32 s36, s3, 8")
                a("s_add_u32 s36, s36, %d" % (64 * n))
            else:
                a("s_lshl_b32 s36, s3, 5")
                a("s_add_u32 s36, s36, 1024")
            a("v_add_u32 v6, s36, v2")
            a("v_mul_u32_u24 v7, 3641, v6")
            a("v_lshrrev_b32 v7, 16, v7")
            a("v_mul_u32_u24 v8, 18, v7")
            a("v_sub_u32 v8, v6, v8")
            a("v_and_b32 v9, 35, v7")
            a("v_bfe_u32 v6, v7, 2, 2")
            a("v_lshl_add_u32 v9, v6, 3, v9")
            a("v_bfe_u32 v6, v7, 4, 1")
            a("v_lshl_add_u32 v9, v6, 2, v9")
            a("v_mul_u32_u24 v9, 9216, v9")
            a("v_lshl_add_u32 v%d, v8, 4, v9" % (VF + n))
            if 0 < n < 4: a("v_subrev_u32 v%d, %d, v%d" % (VF + n, 1024 * n, VF + n))
    def issueT(g):
        st = g % 9
        a("s_add_u32 s86, s84, %d" % ((g % R) * SLOT))
        a("s_mov_b32 m0, s86")
        a("s_add_u32 s87, s82, %d" % (128 * st))
        for n in range(4):
            a("buffer_load_dwordx4 v%d, s[28:31], s87 offen offset:%d lds" % (VT + n, 1024 * n))
    def issueF(g):
        st = g % 9
        a("s_add_u32 s86, s84, %d" % ((g % R) * SLOT + TREG))
        a("s_mov_b32 m0, s86")
        a("s_add_u32 s87, s83, %d" % (64 * 9216 * st + (4608 if g < 9 else 0)))
        for n in range(4):
            a("buffer_load_dwordx4 v%d, s[8:11], s87 offen offset:%d lds" % (VF + n, 1024 * n))
        a("s_add_u32 s86, s85, %d" % ((g % R) * SLOT))
        a("s_mov_b32 m0, s86")
        a("s_mov_b64 exec, 0xffffffff")
        a("buffer_load_dwordx4 v%d, s[8:11], s87 offen lds" % (VF + 4))
        a("s_mov_b64 exec, -1")
    def srds_main():
        srd(a, 28, 80, 2048 * 576 * 2)
        srd(a, 8, 4, 576 * 4608 * 2)
        srd(a, 12, 6, WS_BYTES)
        srd(a, 60, 18, 256)
        a("s_mul_i32 s82, s22, %d" % (128 * 1152))
        a("s_mul_i32 s83, s23, 288")
    ACC = 128; FB = [16, 52]; CS = 216; ONE = 236
    vTa = [4, 5]; vTb = [6, 7]; vF = 8; vFh = 9
    bTa = [88, 89]; bTb = [90, 91]; bF = 92; bFh = 93
    def mma_setup():
        a("v_lshrrev_b32 v10, 4, v2")
        a("v_lshrrev_b32 v11, 1, v3")
        a("v_xor_b32 v10, v10, v11")
        a("v_lshlrev_b32 v10, 4, v10")
        a("v_lshl_add_u32 v10, v3, 7, v10")
        a("s_lshl_b32 s26, s24, 13")
        a("s_add_u32 s26, s26, %d" % RB)
        a("v_add_u32 v10, s26, v10")
        a("s_lshl_b32 s26, s25, 12")
        a("v_add_u32 v%d, s26, v10" % bTa[0])
        a("s_xor_b32 s26, s26, 4096")
        a("v_add_u32 v%d, s26, v10" % bTb[0])
        a("v_xor_b32 v%d, 64, v%d" % (bTa[1], bTa[0]))
        a("v_xor_b32 v%d, 64, v%d" % (bTb[1], bTb[0]))
        a("v_lshrrev_b32 v10, 2, v2")
        a("v_mul_u32_u24 v10, %d, v10" % FS)
        a("v_and_b32 v11, 3, v2")
        a("v_lshl_add_u32 v10, v11, 3, v10")
        a("v_add_u32 v10, %d, v10" % (RB + TREG))
        a("s_mul_i32 s26, s25, 160")
        a("v_add_u32 v%d, s26, v10" % bF)
        a("v_add_u32 v%d, 128, v10" % bFh)
        for r in range(ACC, ACC + 72): a("v_mov_b32 v%d, 0" % r)
        for r in range(CS, CS + 20): a("v_mov_b32 v%d, 0" % r)
        for r in range(ONE, ONE + 4): a("v_mov_b32 v%d, 0x3f803f80" % r)
    def mma_addr(slot):
        a("s_mov_b32 s27, %d" % (slot * SLOT))
        for d, s_ in ((vTa[0], bTa[0]), (vTb[0], bTb[0]), (vTa[1], bTa[1]), (vTb[1], bTb[1]), (vF, bF), (vFh, bFh)):
            a("v_add_u32 v%d, s27, v%d" % (d, s_))
    core = G.Core(a, ACC, FB[0], FB[1], FS, TREG, vTa, vTb, vF, vFh)
    trk = core.trk
    a("s_cmp_eq_u32 s98, 0")
    a("s_cbranch_scc1 %s_A0" % name)
    a("s_setprio 3")
    loader_setup()
    a("s_waitcnt lgkmcnt(0)")
    srds_main()
    vm = VmTracker(a)
    def issue(g, vmx):
        issueT(g); issueF(g); vmx.issue("S%d" % g, 9)
    issueT(0)
    loader_setup2()
    issueF(0); vm.issue("S0", 9)
    issue(1, vm); issue(2, vm); issue(3, vm)
    a("s_add_u32 s3, s3, 4"); stamp_setup(a, 1); stamp(a, 0); a("s_sub_u32 s3, s3, 4")
    for r in range(ONE, ONE + 4): a("v_mov_b32 v%d, 0x3f803f80" % r)
    RA = 96; XB = 112
    for r in range(RA, RA + 16): a("v_mov_b32 v%d, 0" % r)
    a("v_lshrrev_b32 v10, 4, v2")
    a("v_lshrrev_b32 v11, 1, v3")
    a("v_xor_b32 v10, v10, v11")
    a("v_lshlrev_b32 v10, 4, v10")
    a("v_lshl_add_u32 v10, v3, 7, v10")
    a("v_add_u32 v12, s84, v10")
    a("v_xor_b32 v13, 64, v12")
    def rs_rd(g):
        a("v_add_u32 v10, %d, v12" % ((g % R) * SLOT))
        a("v_add_u32 v11, %d, v13" % ((g % R) * SLOT))
        for h in range(2):
            for n in range(2):
                a("ds_read_b128 %s, v%d offset:%d" % (vr(XB + 8 * h + 4 * n), 10 + h, 2048 * n))
    def rs_do():
        for h in range(2):
            for n in range(2):
                x = XB + 8 * h + 4 * n
                a("v_mfma_f32_16x16x32_bf16 %s, %s, %s, %s" % (vr(RA + 4 * n), vr(ONE), vr(x), vr(RA + 4 * n)))
                a("v_mfma_f32_16x16x32_bf16 %s, %s, %s, %s" % (vr(RA + 8 + 4 * n), vr(x), vr(x), vr(RA + 8 + 4 * n)))
    def interleave(dma, comp, vmx=None):
        groups = []; cur = []
        for l in dma:
            cur.append(l)
            if "buffer_load" in l and not any("exec, 0xffffffff" in x for x in cur[-2:]):
                groups.append(cur); cur = []
            elif "exec, -1" in l:
                groups.append(cur); cur = []
        if cur: groups.append(cur)
        ns = max(1, len(groups))
        per = (len(comp) + ns - 1) // ns
        for g in groups:
            a.lines.extend(g)
            a.lines.extend(comp[:per]); comp = comp[per:]
        a.lines.extend(comp)
    vm.wait(["S0"])
    a("s_barrier")
    stamp(a, 1)
    rs_rd(0)
    vm.wait(["S1"])
    a("s_barrier")
    for k in range(9):
        a("s_waitcnt lgkmcnt(0)")
        dma = capture(lambda: (issueT(k + 3), issueF(k + 3))) if (k >= 1 and k + 3 < 9) else []
        interleave(dma, capture(rs_do))
        if k >= 1 and k + 3 < 9: vm.issue("S%d" % (k + 3), 9)
        if k < 8:
            rs_rd(k + 1)
        else:
            a("s_nop 7")
            a("v_lshrrev_b32 v10, 4, v2")
            a("v_lshrrev_b32 v11, 2, v3")
            a("v_and_b32 v12, 3, v3")
            for n in range(2):
                G_ = RA + 8 + 4 * n
                for r in range(1, 4):
                    a("v_cmp_eq_u32 vcc, %d, v12" % r)
                    a("s_nop 1")
                    a("v_cndmask_b32 v%d, v%d, v%d, vcc" % (G_, G_, G_ + r))
            ML = 112
            for n in range(2):
                emit_ln_finish(a, RA + 4 * n, RA + 8 + 4 * n, 576, ML + 2 * n, ML + 2 * n + 1, 120)
                a("v_mov_b32 v%d, v%d" % (117 + 2 * n, ML + 2 * n + 1))
                a("v_sub_f32 v%d, 0, v%d" % (116 + 2 * n, ML + 2 * n))
            a("s_lshl_b32 s35, s3, 8")
            a("v_lshlrev_b32 v13, 3, v3")
            a("v_add_u32 v12, s35, v13")
            a("v_cmp_eq_u32 vcc, v10, v11")
            a("s_and_saveexec_b64 s[36:37], vcc")
            for n in range(2):
                a("ds_write_b64 v12, %s offset:%d" % (vr(116 + 2 * n, 2), RST + 128 * n))
            a("s_mov_b64 exec, s[36:37]")
            a("s_cmp_lg_u32 s23, 0")
            a("s_cbranch_scc1 %s_nost1" % name)
            a("s_lshl_b32 s35, s22, 7")
            a("s_lshl_b32 s36, s3, 5")
            a("s_add_u32 s35, s35, s36")
            a("s_lshl_b32 s35, s35, 3")
            a("s_add_u32 s35, s35, 0x%x" % STATS1)
            a("v_mov_b32 v11, 0x7ffffff0")
            a("v_cndmask_b32 v13, v11, v13, vcc")
            for n in range(2):
                a("buffer_store_dwordx2 %s, v13, s[12:15], s35 offen offset:%d" % (vr(ML + 2 * n, 2), 128 * n))
            a.label("%s_nost1" % name)
        if k < 8:
            vm.wait(["S%d" % (k + 2)])
            a("s_barrier")
    a("s_waitcnt lgkmcnt(0)")
    a("s_barrier")
    a("s_load_dwordx4 s[64:67], s[0:1], 8")
    a("s_load_dwordx2 s[76:77], s[0:1], 24")
    a("s_load_dwordx2 s[90:91], s[0:1], 64")
    a("s_mul_i32 s36, s3, 13312")
    a("s_add_u32 s36, s36, %d" % RB)
    a("v_lshlrev_b32 v10, 4, v2")
    a("v_add_u32 v11, s36, v10")
    a("s_waitcnt lgkmcnt(0)")
    srd(a, 68, 66, 2048 * 576 * 2)
    a("s_mov_b32 s88, s64"); a("s_mov_b32 s89, s65")
    srd(a, 64, 88, 2048 * 576 * 2)
    srd(a, 72, 76, 576 * 8)
    srd(a, 92, 90, 2048 * 2048 * 2)
    a("s_barrier")
    n_ = 0
    for ft in range(4):
        for tt in range(2):
            a("ds_read_b128 %s, v11 offset:%d" % (vr(core.accr(ft, tt)), 1024 * n_)); n_ += 1
    for ft in range(4):
        a("ds_read_b128 %s, v11 offset:%d" % (vr(CS + 4 * ft), 1024 * n_)); n_ += 1
    a("s_branch %s_epi" % name)
    a.label("%s_A0" % name)
    emit_code_prefetch(a, name)
    a("s_load_dwordx4 s[64:67], s[0:1], 8")
    a("s_load_dwordx2 s[76:77], s[0:1], 24")
    a("s_load_dwordx2 s[90:91], s[0:1], 64")
    mma_setup()
    a("s_waitcnt lgkmcnt(0)")
    srds_main()
    srd(a, 68, 66, 2048 * 576 * 2)
    a("s_mov_b32 s88, s64"); a("s_mov_b32 s89, s65")
    srd(a, 64, 88, 2048 * 576 * 2)
    srd(a, 72, 76, 576 * 8)
    srd(a, 92, 90, 2048 * 2048 * 2)
    stamp_setup(a, 1); stamp(a, 0)
    def gran_addr():
        a("v_lshrrev_b32 v10, 4, v2")
        a("s_lshl_b32 s36, s25, 1")
        a("v_add_u32 v11, s36, v10")
        a("v_and_b32 v11, 3, v11")
        a("v_lshl_add_u32 v11, v11, 4, v3")
        a("v_lshlrev_b32 v94, 8, v11")
        a("s_lshl_b32 s59, s22, 7")
        a("s_lshl_b32 s36, s24, 6")
        a("s_add_u32 s59, s59, s36")
        a("s_lshl_b32 s59, s59, 8")
        a("s_add_u32 s59, s59, 0x%x" % STATS2)
        a("s_lshl_b32 s36, s23, 1")
        a("s_add_u32 s36, s36, s25")
        a("s_lshl_b32 s36, s36, 3")
        a("s_add_u32 s58, s36, s59")
    gran_addr()
    a("v_mov_b32 v12, 0"); a("v_mov_b32 v13, 0x80000000")
    a("buffer_store_dwordx2 v[12:13], v94, s[12:15], s58 offen sc1")
    mma_addr(0)
    a("s_mov_b32 s33, 0")
    a("s_barrier")
    stamp(a, 1)
    a.label("%s_mma" % name)
    core.prime(0, core.reads(0, 0))
    trk.drain()
    def mfmas(buf):
        L = []
        for ft in range(5):
            A = core.F(buf, ft)
            for tt in range(4 if ft < 4 else 2):
                c = core.accr(ft, tt); B = core.T(buf, tt)
                L.append(("v_mfma_f32_16x16x32_bf16 %s, %s, %s, %s" % (vr(c), vr(A), vr(B), vr(c)), list(range(A, A + 4)) + list(range(B, B + 4))))
            L.append(("v_mfma_f32_16x16x32_bf16 %s, %s, %s, %s" % (vr(CS + 4 * ft), vr(A), vr(ONE), vr(CS + 4 * ft)), list(range(A, A + 4))))
        return L
    def phase(buf, pend):
        for (m, regs) in mfmas(buf):
            trk.need(regs)
            a(m)
            while pend:
                k, t = pend.pop(0)
                if k == "x":
                    a(t)
                    if t.startswith("s_"): continue
                else:
                    a(t[0]); trk.issue(t[1])
                break
        for k, t in pend:
            if k == "x": a(t)
            else: a(t[0]); trk.issue(t[1])
    def iteration():
        a("s_waitcnt vmcnt(0)")
        a("s_barrier")
        rd = [("r", t) for t in core.reads(1, 1)]
        upd = ["s_add_u32 s27, s27, %d" % SLOT, "s_cmp_eq_u32 s27, %d" % (R * SLOT), "s_cselect_b32 s27, 0, s27"]
        tail = ["v_add_u32 v%d, s27, v%d" % (d, s_) for d, s_ in ((vTa[0], bTa[0]), (vF, bF), (vTb[0], bTb[0]), (vFh, bFh))]
        phase(0, rd[:1] + [("x", u) for u in upd] + rd[1:] + [("x", u) for u in tail])
        rd = [("r", t) for t in core.reads(0, 0)]
        tail = ["v_add_u32 v%d, s27, v%d" % (d, s_) for d, s_ in ((vTa[1], bTa[1]), (vTb[1], bTb[1]))] + ["s_add_u32 s33, s33, 1"]
        phase(1, rd + [("x", u) for u in tail])
    a.label("%s_cloop" % name)
    lb = len(a.lines); iteration(); st = copy.deepcopy(trk.out); del a.lines[lb:]; trk.out = copy.deepcopy(st)
    iteration()
    assert [sorted(x) for x in trk.out] == [sorted(x) for x in st]
    a("s_cmp_lt_u32 s33, 9")
    a("s_cbranch_scc1 %s_cloop" % name)
    trk.drain()
    stamp(a, 2)
    a("s_waitcnt vmcnt(0)")
    a("s_barrier")
    a("s_cmp_lg_u32 s3, 0")
    a("s_cbranch_scc1 %s_nosig" % name)
    a("v_mov_b32 v10, 1")
    a("s_lshl_b32 s36, s22, 2")
    a("v_mov_b32 v11, s36")
    a("s_mov_b64 exec, 1")
    a("buffer_atomic_add v10, v11, s[60:63], 0 offen sc1")
    a("s_mov_b64 exec, -1")
    a.label("%s_nosig" % name)
    a("s_mul_i32 s36, s3, 13312")
    a("s_add_u32 s36, s36, %d" % RB)
    a("v_lshlrev_b32 v10, 4, v2")
    a("v_add_u32 v11, s36, v10")
    n_ = 0
    for ft in range(4):
        for tt in range(2):
            a("ds_write_b128 v11, %s offset:%d" % (vr(core.accr(ft, tt + 2)), 1024 * n_)); n_ += 1
    for ft in range(4):
        a("ds_write_b128 v11, %s offset:%d" % (vr(CS + 4 * ft), 1024 * n_)); n_ += 1
    a("s_waitcnt lgkmcnt(0)")
    a("s_barrier")
    a.label("%s_epi" % name)
    MR = 100; T = 72; ZP = 200
    gelu_consts(a)
    a("s_xor_b32 s52, s98, s25")
    a("s_lshl_b32 s36, s24, 9")
    a("s_lshl_b32 s37, s52, 8")
    a("s_add_u32 s38, s36, s37")
    a("v_lshlrev_b32 v10, 3, v3")
    a("v_add_u32 v11, s38, v10")
    a("ds_read_b64 %s, v11 offset:%d" % (vr(MR, 2), RST))
    a("ds_read_b64 %s, v11 offset:%d" % (vr(MR + 2, 2), RST + 128))
    a("s_lshl_b32 s41, s2, 1")
    a("s_add_u32 s41, s41, s98")
    a("v_and_b32 v0, 255, v0")
    a("s_cmp_ge_u32 s41, 288")
    a("s_cbranch_scc1 %s_nokv1" % name)
    emit_kv_loads(a)
    a.label("%s_nokv1" % name)
    S = [108, 110]; Q = [109, 111]
    for r_ in range(108, 112): a("v_mov_b32 v%d, 0" % r_)
    a("s_waitcnt lgkmcnt(0)")
    ZPf = lambda n: (240 + 2 * n) if n < 8 else (196 + 2 * (n - 8))
    def dots(lst):
        for d in range(2):
            for (ft, tt) in lst:
                p = ZPf(2 * ft + tt) + d
                a("v_dot2_f32_bf16 v%d, v%d, v%d, v%d" % (S[tt], p, ONE, S[tt]))
                a("v_dot2_f32_bf16 v%d, v%d, v%d, v%d" % (Q[tt], p, p, Q[tt]))
    a("s_cmp_lg_u32 s98, 0")
    a("s_cbranch_scc1 %s_nohalf" % name)
    lst = [(4, 0), (4, 1)]
    emit_fold_gelu(a, [(core.accr(ft, tt), CS + 4 * ft, MR + 2 * tt, ZPf(2 * ft + tt)) for ft, tt in lst], T)
    dots(lst)
    a.label("%s_nohalf" % name)
    for f0 in (0, 2):
        lst = [(ft, tt) for ft in (f0, f0 + 1) for tt in range(2)]
        emit_fold_gelu(a, [(core.accr(ft, tt), CS + 4 * ft, MR + 2 * tt, ZPf(2 * ft + tt)) for ft, tt in lst], T)
        dots(lst)
    a("s_nop 2")
    emit_xg_reduce(a, S + Q, 72)
    a("s_lshl_b32 s59, s22, 7")
    a("s_lshl_b32 s36, s24, 6")
    a("s_add_u32 s59, s59, s36")
    a("s_lshl_b32 s36, s52, 5")
    a("s_add_u32 s59, s59, s36")
    a("s_lshl_b32 s59, s59, 8")
    a("s_add_u32 s59, s59, 0x%x" % STATS2)
    a("s_lshl_b32 s36, s23, 1")
    a("s_add_u32 s36, s36, s25")
    a("s_lshl_b32 s36, s36, 3")
    a("s_add_u32 s58, s36, s59")
    a("v_lshrrev_b32 v10, 4, v2")
    a("v_lshlrev_b32 v11, 8, v2")
    a("v_cmp_gt_u32 vcc, 32, v2")
    a("v_mov_b32 v12, 0x7ffffff0")
    a("v_cmp_eq_u32 s[36:37], 1, v10")
    a("v_cndmask_b32 v11, v12, v11, vcc")
    a("s_nop 0")
    a("v_cndmask_b32 v108, v108, v110, s[36:37]")
    a("v_cndmask_b32 v109, v109, v111, s[36:37]")
    a("v_and_b32 v109, 0x7fffffff, v109")
    a("buffer_store_dwordx2 v[108:109], v11, s[12:15], s58 offen sc1")
    a("s_setprio 0")
    stamp(a, 3)
    a("s_lshl_b32 s33, s22, 2")
    a("v_mov_b32 v165, s33")
    a("buffer_load_dword v164, v165, s[60:63], 0 offen sc1")
    PB = 128
    a("v_lshlrev_b32 v4, 8, v3")
    a("v_lshl_add_u32 v4, v10, 6, v4")
    a("s_add_u32 s53, s59, 4096")
    a("s_cmp_ge_u32 s41, 288")
    a("s_cbranch_scc1 %s_nokv2" % name)
    a("s_waitcnt vmcnt(2)")
    emit_kv_compute(a, wait=False, store=False)
    a.label("%s_nokv2" % name)
    stamp(a, 4)
    a("s_mov_b32 s40, 0")
    a.label("%s_chk" % name)
    a("s_waitcnt vmcnt(0)")
    for tt in range(2):
        for q in range(4):
            a("buffer_load_dwordx4 %s, v4, s[12:15], s%d offen offset:%d sc1" % (vr(PB + 16 * tt + 4 * q), (59, 53)[tt], 16 * q))
    a("v_subrev_u32 v11, 16, v164")
    a("s_waitcnt vmcnt(0)")
    for r in range(PB + 1, PB + 32, 4):
        a("v_or3_b32 v11, v11, v%d, v%d" % (r, r + 2))
    a("v_cmp_gt_i32 vcc, 0, v11")
    a("s_add_u32 s40, s40, 1")
    a("s_cmp_gt_u32 s40, %d" % SPIN_MAX)
    a("s_cbranch_scc1 %s_ok" % name)
    a("s_cbranch_vccz %s_ok" % name)
    a("s_sleep 24")
    a("buffer_load_dword v164, v165, s[60:63], 0 offen sc1")
    a("s_branch %s_chk" % name)
    a.label("%s_ok" % name)
    stamp(a, 5)
    a("v_lshrrev_b32 v10, 4, v2")
    a("v_lshlrev_b32 v5, 12, v10")
    a("v_lshl_add_u32 v5, v3, 4, v5")
    a("s_lshl_b32 s33, s22, 7")
    a("s_lshl_b32 s36, s3, 5")
    a("s_add_u32 s33, s33, s36")
    a("s_lshl_b32 s36, s98, 4")
    a("s_add_u32 s33, s33, s36")
    a("s_lshl_b32 s33, s33, 12")
    a("s_lshl_b32 s36, s23, 8")
    a("s_add_u32 s33, s33, s36")
    for n in range(4):
        a("buffer_load_dwordx4 v[168:171], v5, s[92:95], s33 offen")
        if n < 3: a("s_add_u32 s33, s33, 16384")
    a("s_cmp_ge_u32 s41, 288")
    a("s_cbranch_scc1 %s_nokv3" % name)
    a("s_mov_b32 s39, 0x%x" % KVT)
    a("buffer_store_dwordx4 v[120:123], v12, s[12:15], s39 offen")
    a("buffer_store_dwordx4 v[124:127], v13, s[12:15], s39 offen")
    a.label("%s_nokv3" % name)
    for tt in range(2):
        b = PB + 16 * tt
        for st_ in (8, 4, 2):
            for q in range(0, st_, 2):
                a("v_pk_add_f32 %s, %s, %s" % (vr(b + q, 2), vr(b + q, 2), vr(b + q + st_, 2)))
    emit_xg_reduce(a, [PB + 16 * tt + e for tt in range(2) for e in range(2)], 72)
    for tt in range(2):
        b = PB + 16 * tt
        emit_ln_finish(a, b, b + 1, 2304, b + 2, MR + 2 * tt, b + 4)
        a("v_mul_f32 v%d, -v%d, v%d" % (MR + 2 * tt + 1, b + 2, MR + 2 * tt))
    a("v_lshrrev_b32 v11, 2, v2"); a("v_and_b32 v11, 1, v11"); a("v_lshlrev_b32 v11, 4, v11")
    a("v_lshrrev_b32 v5, 3, v2"); a("v_and_b32 v5, 1, v5"); a("v_lshl_add_u32 v11, v5, 2, v11")
    a("v_and_b32 v5, 3, v2"); a("v_add_u32 v11, v11, v5")
    a("v_mul_u32_u24 v11, 288, v11")
    a("v_lshrrev_b32 v5, 1, v10"); a("v_lshl_add_u32 v11, v5, 4, v11")
    a("v_and_b32 v5, 1, v10")
    a("v_lshl_add_u32 v6, v5, 5, v11")
    a("v_mul_u32_u24 v5, 2304, v5")
    a("v_add_u32 v9, v11, v5")
    a("s_lshl_b32 s33, s23, 5")
    a("s_lshl_b32 s36, s22, 1")
    a("s_add_u32 s33, s33, s36")
    a("s_add_u32 s33, s33, s24")
    a("s_mul_i32 s33, s33, 18432")
    if ZIMG: a("s_add_u32 s33, s33, 0x%x" % ZIMG)
    a("s_mul_i32 s36, s52, 9216")
    a("s_add_u32 s37, s33, s36")
    a("s_add_u32 s39, s37, 128")
    a("s_mul_i32 s36, s25, 160")
    a("s_add_u32 s37, s37, s36")
    def norm_pair(nA, ttA, nB, ttB, O):
        for q, (n, tt) in enumerate(((nA, ttA), (nB, ttB))):
            for d in range(2):
                z = ZPf(n) + d; t = T + 4 * q + 2 * d
                a("v_lshlrev_b32 v%d, 16, v%d" % (t, z))
                a("v_and_b32 v%d, 0xffff0000, v%d" % (t + 1, z))
        for q, (n, tt) in enumerate(((nA, ttA), (nB, ttB))):
            for d in range(2):
                t = T + 4 * q + 2 * d
                a("v_pk_fma_f32 %s, %s, %s, %s op_sel:[0,0,1] op_sel_hi:[1,0,1]" % (vr(t, 2), vr(t, 2), vr(MR + 2 * tt, 2), vr(MR + 2 * tt, 2)))
        for q in range(2):
            for d in range(2):
                t = T + 4 * q + 2 * d
                a("v_cvt_pk_bf16_f32 v%d, v%d, v%d" % (O + 2 * q + d, t, t + 1))
        a("s_nop 1")
        a("v_permlane16_swap_b32 v%d, v%d" % (O, O + 2))
        a("v_permlane16_swap_b32 v%d, v%d" % (O + 1, O + 3))
    cnt = 0
    for pr in range(2):
        for tt in range(2):
            O = 16 + 4 * cnt; cnt += 1
            norm_pair(2 * (2 * pr) + tt, tt, 2 * (2 * pr + 1) + tt, tt, O)
            a("s_nop 0")
            a("buffer_store_dwordx4 %s, v6, s[12:15], s37 offen offset:%d" % (vr(O), tt * 2304 + 64 * pr))
    a("s_cmp_lg_u32 s98, 0")
    a("s_cbranch_scc1 %s_fin" % name)
    O = 16 + 4 * cnt
    norm_pair(8, 0, 9, 1, O)
    a("s_nop 0")
    a("buffer_store_dwordx4 %s, v9, s[12:15], s39 offen" % vr(O))
    a.label("%s_fin" % name)
    stamp(a, 6)
    G.stamp_rt(a, 1)
    a.label("%s_end" % name)
    a("s_endpgm")
    return a.text(), kernel_desc(name, 256, 256), (name, 256, 512, LDSB)

def gen_k1j(name="k1_kernel", R=4):
    a = Asm()
    RB = 4096; SLOT = 34816; TREG = 16384; FS = 288; RST = 0
    LDSB = RB + R * SLOT
    def capture(f, *args):
        lb = len(a.lines); f(*args); out = a.lines[lb:]; del a.lines[lb:]; return out
    kernel_begin(a, name)
    a("s_load_dwordx2 s[80:81], s[0:1], 0")
    a("s_load_dwordx2 s[4:5], s[0:1], 56")
    a("s_load_dwordx2 s[6:7], s[0:1], 104")
    a("s_load_dwordx2 s[18:19], s[0:1], 96")
    a("s_cmp_ge_u32 s2, 256")
    a("s_cbranch_scc1 %s_end" % name)
    a("v_lshrrev_b32 v1, 6, v0")
    a("v_and_b32 v2, 63, v0")
    a("v_readfirstlane_b32 s3, v1")
    G2.tile_ij(a)
    a("s_lshr_b32 s98, s3, 2")
    a("s_mov_b32 s54x, 0".replace("s54x", "s99"))
    a("s_and_b32 s3, s3, 3")
    a("s_lshr_b32 s24, s3, 1")
    a("s_and_b32 s25, s3, 1")
    a("v_and_b32 v3, 15, v2")
    VT = 204; VF = 208
    def loader_setup():
        a("v_lshrrev_b32 v5, 3, v2")
        a("v_and_b32 v4, 7, v2")
        a("s_lshl_b32 s36, s3, 5")
        a("v_add_u32 v5, s36, v5")
        a("v_lshrrev_b32 v7, 4, v2")
        a("v_xor_b32 v7, v7, v4")
        a("v_mul_u32_u24 v6, 1152, v5")
        a("v_lshl_add_u32 v%d, v7, 4, v6" % VT)
        a("v_xor_b32 v%d, 64, v%d" % (VT + 1, VT))
        a("v_add_u32 v%d, %d, v%d" % (VT + 1, 9216 - 1024, VT + 1))
        a("v_add_u32 v%d, %d, v%d" % (VT + 2, 2 * (9216 - 1024), VT))
        a("v_add_u32 v%d, %d, v%d" % (VT + 3, 2 * (9216 - 1024), VT + 1))
        a("s_lshl_b32 s84, s3, 12")
        a("s_add_u32 s84, s84, %d" % RB)
        a("s_lshl_b32 s85, s3, 9")
        a("s_add_u32 s85, s85, %d" % (RB + TREG + 16384))
    def loader_setup2():
        for n in range(5):
            if n < 4:
                a("s_lshl_b32 s36, s3, 8")
                a("s_add_u32 s36, s36, %d" % (64 * n))
            else:
                a("s_lshl_b32 s36, s3, 5")
                a("s_add_u32 s36, s36, 1024")
            a("v_add_u32 v6, s36, v2")
            a("v_mul_u32_u24 v7, 3641, v6")
            a("v_lshrrev_b32 v7, 16, v7")
            a("v_mul_u32_u24 v8, 18, v7")
            a("v_sub_u32 v8, v6, v8")
            a("v_and_b32 v9, 35, v7")
            a("v_bfe_u32 v6, v7, 2, 2")
            a("v_lshl_add_u32 v9, v6, 3, v9")
            a("v_bfe_u32 v6, v7, 4, 1")
            a("v_lshl_add_u32 v9, v6, 2, v9")
            a("v_mul_u32_u24 v9, 9216, v9")
            a("v_lshl_add_u32 v%d, v8, 4, v9" % (VF + n))
            if 0 < n < 4: a("v_subrev_u32 v%d, %d, v%d" % (VF + n, 1024 * n, VF + n))
    def issueT(g):
        st = g % 9
        a("s_add_u32 s86, s84, %d" % ((g % R) * SLOT))
        a("s_mov_b32 m0, s86")
        a("s_add_u32 s87, s82, %d" % (128 * st))
        for n in range(4):
            a("buffer_load_dwordx4 v%d, s[28:31], s87 offen offset:%d lds" % (VT + n, 1024 * n))
    def issueF(g):
        st = g % 9
        a("s_add_u32 s86, s84, %d" % ((g % R) * SLOT + TREG))
        a("s_mov_b32 m0, s86")
        a("s_add_u32 s87, s83, %d" % (64 * 9216 * st + (4608 if g < 9 else 0)))
        for n in range(4):
            a("buffer_load_dwordx4 v%d, s[8:11], s87 offen offset:%d lds" % (VF + n, 1024 * n))
        a("s_add_u32 s86, s85, %d" % ((g % R) * SLOT))
        a("s_mov_b32 m0, s86")
        a("s_mov_b64 exec, 0xffffffff")
        a("buffer_load_dwordx4 v%d, s[8:11], s87 offen lds" % (VF + 4))
        a("s_mov_b64 exec, -1")
    def srds_main():
        srd(a, 28, 80, 2048 * 576 * 2)
        srd(a, 8, 4, 576 * 4608 * 2)
        srd(a, 12, 6, WS_BYTES)
        srd(a, 60, 18, 256)
        a("s_mul_i32 s82, s22, %d" % (128 * 1152))
        a("s_mul_i32 s83, s23, 288")
    ACC = 128; FB = [16, 52]; CS = 216; ONE = 236
    vTa = [4, 5]; vTb = [6, 7]; vF = 8; vFh = 9
    bTa = [88, 89]; bTb = [90, 91]; bF = 92; bFh = 93
    def mma_setup():
        a("v_lshrrev_b32 v10, 4, v2")
        a("v_lshrrev_b32 v11, 1, v3")
        a("v_xor_b32 v10, v10, v11")
        a("v_lshlrev_b32 v10, 4, v10")
        a("v_lshl_add_u32 v10, v3, 7, v10")
        a("s_lshl_b32 s26, s24, 13")
        a("s_add_u32 s26, s26, %d" % RB)
        a("v_add_u32 v10, s26, v10")
        a("s_lshl_b32 s26, s25, 12")
        a("v_add_u32 v%d, s26, v10" % bTa[0])
        a("s_xor_b32 s26, s26, 4096")
        a("v_add_u32 v%d, s26, v10" % bTb[0])
        a("v_xor_b32 v%d, 64, v%d" % (bTa[1], bTa[0]))
        a("v_xor_b32 v%d, 64, v%d" % (bTb[1], bTb[0]))
        a("v_lshrrev_b32 v10, 2, v2")
        a("v_mul_u32_u24 v10, %d, v10" % FS)
        a("v_and_b32 v11, 3, v2")
        a("v_lshl_add_u32 v10, v11, 3, v10")
        a("v_add_u32 v10, %d, v10" % (RB + TREG))
        a("s_mul_i32 s26, s25, 160")
        a("v_add_u32 v%d, s26, v10" % bF)
        a("v_add_u32 v%d, 128, v10" % bFh)
        for r in range(ACC, ACC + 72): a("v_mov_b32 v%d, 0" % r)
        for r in range(CS, CS + 20): a("v_mov_b32 v%d, 0" % r)
        for r in range(ONE, ONE + 4): a("v_mov_b32 v%d, 0x3f803f80" % r)
    def mma_addr(slot):
        a("s_mov_b32 s27, %d" % (slot * SLOT))
        for d, s_ in ((vTa[0], bTa[0]), (vTb[0], bTb[0]), (vTa[1], bTa[1]), (vTb[1], bTb[1]), (vF, bF), (vFh, bFh)):
            a("v_add_u32 v%d, s27, v%d" % (d, s_))
    core = G.Core(a, ACC, FB[0], FB[1], FS, TREG, vTa, vTb, vF, vFh)
    trk = core.trk
    a("s_cmp_eq_u32 s98, 0")
    a("s_cbranch_scc1 %s_A0" % name)
    a("s_setprio 3")
    loader_setup()
    a("s_waitcnt lgkmcnt(0)")
    srds_main()
    vm = VmTracker(a)
    def issue(g, vmx):
        issueT(g); issueF(g); vmx.issue("S%d" % g, 9)
    issueT(0)
    loader_setup2()
    issueF(0); vm.issue("S0", 9)
    issue(1, vm); issue(2, vm); issue(3, vm)
    a("s_add_u32 s3, s3, 4"); stamp_setup(a, 1); stamp(a, 0); a("s_sub_u32 s3, s3, 4")
    for r in range(ONE, ONE + 4): a("v_mov_b32 v%d, 0x3f803f80" % r)
    RA = 96; XB = 112
    for r in range(RA, RA + 16): a("v_mov_b32 v%d, 0" % r)
    a("v_lshrrev_b32 v10, 4, v2")
    a("v_lshrrev_b32 v11, 1, v3")
    a("v_xor_b32 v10, v10, v11")
    a("v_lshlrev_b32 v10, 4, v10")
    a("v_lshl_add_u32 v10, v3, 7, v10")
    a("v_add_u32 v12, s84, v10")
    a("v_xor_b32 v13, 64, v12")
    def rs_rd(g):
        a("v_add_u32 v10, %d, v12" % ((g % R) * SLOT))
        a("v_add_u32 v11, %d, v13" % ((g % R) * SLOT))
        for h in range(2):
            for n in range(2):
                a("ds_read_b128 %s, v%d offset:%d" % (vr(XB + 8 * h + 4 * n), 10 + h, 2048 * n))
    def rs_do():
        for h in range(2):
            for n in range(2):
                x = XB + 8 * h + 4 * n
                a("v_mfma_f32_16x16x32_bf16 %s, %s, %s, %s" % (vr(RA + 4 * n), vr(ONE), vr(x), vr(RA + 4 * n)))
                a("v_mfma_f32_16x16x32_bf16 %s, %s, %s, %s" % (vr(RA + 8 + 4 * n), vr(x), vr(x), vr(RA + 8 + 4 * n)))
    def interleave(dma, comp, vmx=None):
        groups = []; cur = []
        for l in dma:
            cur.append(l)
            if "buffer_load" in l and not any("exec, 0xffffffff" in x for x in cur[-2:]):
                groups.append(cur); cur = []
            elif "exec, -1" in l:
                groups.append(cur); cur = []
        if cur: groups.append(cur)
        ns = max(1, len(groups))
        per = (len(comp) + ns - 1) // ns
        for g in groups:
            a.lines.extend(g)
            a.lines.extend(comp[:per]); comp = comp[per:]
        a.lines.extend(comp)
    vm.wait(["S0"])
    a("s_barrier")
    stamp(a, 1)
    rs_rd(0)
    vm.wait(["S1"])
    a("s_barrier")
    for k in range(9):
        a("s_waitcnt lgkmcnt(0)")
        dma = capture(lambda: (issueT(k + 3), issueF(k + 3))) if (k >= 1 and k + 3 < 9) else []
        interleave(dma, capture(rs_do))
        if k >= 1 and k + 3 < 9: vm.issue("S%d" % (k + 3), 9)
        if k < 8:
            rs_rd(k + 1)
        else:
            a("s_nop 7")
            a("v_lshrrev_b32 v10, 4, v2")
            a("v_lshrrev_b32 v11, 2, v3")
            a("v_and_b32 v12, 3, v3")
            for n in range(2):
                G_ = RA + 8 + 4 * n
                for r in range(1, 4):
                    a("v_cmp_eq_u32 vcc, %d, v12" % r)
                    a("s_nop 1")
                    a("v_cndmask_b32 v%d, v%d, v%d, vcc" % (G_, G_, G_ + r))
            ML = 112
            for n in range(2):
                emit_ln_finish(a, RA + 4 * n, RA + 8 + 4 * n, 576, ML + 2 * n, ML + 2 * n + 1, 120)
                a("v_mov_b32 v%d, v%d" % (117 + 2 * n, ML + 2 * n + 1))
                a("v_sub_f32 v%d, 0, v%d" % (116 + 2 * n, ML + 2 * n))
            a("s_lshl_b32 s35, s3, 8")
            a("v_lshlrev_b32 v13, 3, v3")
            a("v_add_u32 v12, s35, v13")
            a("v_cmp_eq_u32 vcc, v10, v11")
            a("s_and_saveexec_b64 s[36:37], vcc")
            for n in range(2):
                a("ds_write_b64 v12, %s offset:%d" % (vr(116 + 2 * n, 2), RST + 128 * n))
            a("s_mov_b64 exec, s[36:37]")
            a("s_cmp_lg_u32 s23, 0")
            a("s_cbranch_scc1 %s_nost1" % name)
            a("s_lshl_b32 s35, s22, 7")
            a("s_lshl_b32 s36, s3, 5")
            a("s_add_u32 s35, s35, s36")
            a("s_lshl_b32 s35, s35, 3")
            a("s_add_u32 s35, s35, 0x%x" % STATS1)
            a("v_mov_b32 v11, 0x7ffffff0")
            a("v_cndmask_b32 v13, v11, v13, vcc")
            for n in range(2):
                a("buffer_store_dwordx2 %s, v13, s[12:15], s35 offen offset:%d" % (vr(ML + 2 * n, 2), 128 * n))
            a.label("%s_nost1" % name)
        if k < 8:
            vm.wait(["S%d" % (k + 2)])
            a("s_barrier")
    a("s_waitcnt lgkmcnt(0)")
    a("s_barrier")
    a("s_load_dwordx4 s[64:67], s[0:1], 8")
    a("s_load_dwordx2 s[76:77], s[0:1], 24")
    a("s_load_dwordx2 s[90:91], s[0:1], 64")
    a("s_mul_i32 s36, s3, 13312")
    a("s_add_u32 s36, s36, %d" % RB)
    a("v_lshlrev_b32 v10, 4, v2")
    a("v_add_u32 v11, s36, v10")
    a("s_waitcnt lgkmcnt(0)")
    srd(a, 68, 66, 2048 * 576 * 2)
    a("s_mov_b32 s88, s64"); a("s_mov_b32 s89, s65")
    srd(a, 64, 88, 2048 * 576 * 2)
    srd(a, 72, 76, 576 * 8)
    srd(a, 92, 90, 2048 * 2048 * 2)
    a("s_barrier")
    n_ = 0
    for ft in range(4):
        for tt in range(2):
            a("ds_read_b128 %s, v11 offset:%d" % (vr(core.accr(ft, tt)), 1024 * n_)); n_ += 1
    for ft in range(4):
        a("ds_read_b128 %s, v11 offset:%d" % (vr(CS + 4 * ft), 1024 * n_)); n_ += 1
    a("s_branch %s_epi" % name)
    a.label("%s_A0" % name)
    emit_code_prefetch(a, name)
    a("s_load_dwordx4 s[64:67], s[0:1], 8")
    a("s_load_dwordx2 s[76:77], s[0:1], 24")
    a("s_load_dwordx2 s[90:91], s[0:1], 64")
    mma_setup()
    a("s_waitcnt lgkmcnt(0)")
    srds_main()
    srd(a, 68, 66, 2048 * 576 * 2)
    a("s_mov_b32 s88, s64"); a("s_mov_b32 s89, s65")
    srd(a, 64, 88, 2048 * 576 * 2)
    srd(a, 72, 76, 576 * 8)
    srd(a, 92, 90, 2048 * 2048 * 2)
    stamp_setup(a, 1); stamp(a, 0)
    def gran_addr():
        a("v_lshrrev_b32 v10, 4, v2")
        a("s_lshl_b32 s36, s25, 1")
        a("v_add_u32 v11, s36, v10")
        a("v_and_b32 v11, 3, v11")
        a("v_lshl_add_u32 v11, v11, 4, v3")
        a("v_lshlrev_b32 v94, 8, v11")
        a("s_lshl_b32 s59, s22, 7")
        a("s_lshl_b32 s36, s24, 6")
        a("s_add_u32 s59, s59, s36")
        a("s_lshl_b32 s59, s59, 8")
        a("s_add_u32 s59, s59, 0x%x" % STATS2)
        a("s_lshl_b32 s36, s23, 1")
        a("s_add_u32 s36, s36, s25")
        a("s_lshl_b32 s36, s36, 3")
        a("s_add_u32 s58, s36, s59")
    mma_addr(0)
    a("s_mov_b32 s33, 0")
    a("s_barrier")
    stamp(a, 1)
    a.label("%s_mma" % name)
    core.prime(0, core.reads(0, 0))
    trk.drain()
    def mfmas(buf):
        L = []
        for ft in range(5):
            A = core.F(buf, ft)
            for tt in range(4 if ft < 4 else 2):
                c = core.accr(ft, tt); B = core.T(buf, tt)
                L.append(("v_mfma_f32_16x16x32_bf16 %s, %s, %s, %s" % (vr(c), vr(A), vr(B), vr(c)), list(range(A, A + 4)) + list(range(B, B + 4))))
            L.append(("v_mfma_f32_16x16x32_bf16 %s, %s, %s, %s" % (vr(CS + 4 * ft), vr(A), vr(ONE), vr(CS + 4 * ft)), list(range(A, A + 4))))
        return L
    def phase(buf, pend):
        for (m, regs) in mfmas(buf):
            trk.need(regs)
            a(m)
            while pend:
                k, t = pend.pop(0)
                if k == "x":
                    a(t)
                    if t.startswith("s_"): continue
                else:
                    a(t[0]); trk.issue(t[1])
                break
        for k, t in pend:
            if k == "x": a(t)
            else: a(t[0]); trk.issue(t[1])
    def iteration():
        a("s_waitcnt vmcnt(0)")
        a("s_barrier")
        rd = [("r", t) for t in core.reads(1, 1)]
        upd = ["s_add_u32 s27, s27, %d" % SLOT, "s_cmp_eq_u32 s27, %d" % (R * SLOT), "s_cselect_b32 s27, 0, s27"]
        tail = ["v_add_u32 v%d, s27, v%d" % (d, s_) for d, s_ in ((vTa[0], bTa[0]), (vF, bF), (vTb[0], bTb[0]), (vFh, bFh))]
        phase(0, rd[:1] + [("x", u) for u in upd] + rd[1:] + [("x", u) for u in tail])
        rd = [("r", t) for t in core.reads(0, 0)]
        tail = ["v_add_u32 v%d, s27, v%d" % (d, s_) for d, s_ in ((vTa[1], bTa[1]), (vTb[1], bTb[1]))] + ["s_add_u32 s33, s33, 1"]
        phase(1, rd + [("x", u) for u in tail])
    a.label("%s_cloop" % name)
    lb = len(a.lines); iteration(); st = copy.deepcopy(trk.out); del a.lines[lb:]; trk.out = copy.deepcopy(st)
    iteration()
    assert [sorted(x) for x in trk.out] == [sorted(x) for x in st]
    a("s_cmp_lt_u32 s33, 9")
    a("s_cbranch_scc1 %s_cloop" % name)
    trk.drain()
    stamp(a, 2)
    a("s_waitcnt vmcnt(0)")
    a("s_barrier")
    a("s_mul_i32 s36, s3, 13312")
    a("s_add_u32 s36, s36, %d" % RB)
    a("v_lshlrev_b32 v10, 4, v2")
    a("v_add_u32 v11, s36, v10")
    n_ = 0
    for ft in range(4):
        for tt in range(2):
            a("ds_write_b128 v11, %s offset:%d" % (vr(core.accr(ft, tt + 2)), 1024 * n_)); n_ += 1
    for ft in range(4):
        a("ds_write_b128 v11, %s offset:%d" % (vr(CS + 4 * ft), 1024 * n_)); n_ += 1
    a("s_waitcnt lgkmcnt(0)")
    a("s_barrier")
    a.label("%s_epi" % name)
    MR = 100; T = 72; ZP = 200
    gelu_consts(a)
    a("s_xor_b32 s52, s98, s25")
    a("s_lshl_b32 s36, s24, 9")
    a("s_lshl_b32 s37, s52, 8")
    a("s_add_u32 s38, s36, s37")
    a("v_lshlrev_b32 v10, 3, v3")
    a("v_add_u32 v11, s38, v10")
    a("ds_read_b64 %s, v11 offset:%d" % (vr(MR, 2), RST))
    a("ds_read_b64 %s, v11 offset:%d" % (vr(MR + 2, 2), RST + 128))
    a("s_lshl_b32 s41, s2, 1")
    a("s_add_u32 s41, s41, s98")
    a("v_and_b32 v0, 255, v0")
    a("s_cmp_ge_u32 s41, 288")
    a("s_cbranch_scc1 %s_nokv1" % name)
    emit_kv_loads(a)
    a.label("%s_nokv1" % name)
    S = [108, 110]; Q = [109, 111]
    for r_ in range(108, 112): a("v_mov_b32 v%d, 0" % r_)
    a("s_waitcnt lgkmcnt(0)")
    ZPf = lambda n: (240 + 2 * n) if n < 8 else (196 + 2 * (n - 8))
    def dots(lst):
        for d in range(2):
            for (ft, tt) in lst:
                p = ZPf(2 * ft + tt) + d
                a("v_dot2_f32_bf16 v%d, v%d, v%d, v%d" % (S[tt], p, ONE, S[tt]))
                a("v_dot2_f32_bf16 v%d, v%d, v%d, v%d" % (Q[tt], p, p, Q[tt]))
    a("s_cmp_lg_u32 s98, 0")
    a("s_cbranch_scc1 %s_nohalf" % name)
    lst = [(4, 0), (4, 1)]
    emit_fold_gelu(a, [(core.accr(ft, tt), CS + 4 * ft, MR + 2 * tt, ZPf(2 * ft + tt)) for ft, tt in lst], T)
    dots(lst)
    a.label("%s_nohalf" % name)
    for f0 in (0, 2):
        lst = [(ft, tt) for ft in (f0, f0 + 1) for tt in range(2)]
        emit_fold_gelu(a, [(core.accr(ft, tt), CS + 4 * ft, MR + 2 * tt, ZPf(2 * ft + tt)) for ft, tt in lst], T)
        dots(lst)
    a("s_nop 2")
    emit_xg_reduce(a, S + Q, 72)
    a("s_lshl_b32 s59, s22, 7")
    a("s_lshl_b32 s36, s24, 6")
    a("s_add_u32 s59, s59, s36")
    a("s_lshl_b32 s36, s52, 5")
    a("s_add_u32 s59, s59, s36")
    a("s_lshl_b32 s59, s59, 8")
    a("s_add_u32 s59, s59, 0x%x" % STATS2)
    a("s_lshl_b32 s36, s23, 1")
    a("s_add_u32 s36, s36, s25")
    a("s_lshl_b32 s36, s36, 3")
    a("s_add_u32 s58, s36, s59")
    a("v_lshrrev_b32 v10, 4, v2")
    a("v_lshlrev_b32 v11, 8, v2")
    a("v_cmp_gt_u32 vcc, 32, v2")
    a("v_mov_b32 v12, 0x7ffffff0")
    a("v_cmp_eq_u32 s[36:37], 1, v10")
    a("v_cndmask_b32 v11, v12, v11, vcc")
    a("s_nop 0")
    a("v_cndmask_b32 v108, v108, v110, s[36:37]")
    a("v_cndmask_b32 v109, v109, v111, s[36:37]")
    a("buffer_store_dwordx2 v[108:109], v11, s[12:15], s58 offen")
    a("s_setprio 0")
    stamp(a, 3)
    a("v_lshrrev_b32 v10, 4, v2")
    a("v_lshlrev_b32 v5, 12, v10")
    a("v_lshl_add_u32 v5, v3, 4, v5")
    a("s_lshl_b32 s33, s22, 7")
    a("s_lshl_b32 s36, s3, 5")
    a("s_add_u32 s33, s33, s36")
    a("s_lshl_b32 s36, s98, 4")
    a("s_add_u32 s33, s33, s36")
    a("s_lshl_b32 s33, s33, 12")
    a("s_lshl_b32 s36, s23, 8")
    a("s_add_u32 s33, s33, s36")
    for n in range(4):
        a("buffer_load_dwordx4 v[168:171], v5, s[92:95], s33 offen")
        if n < 3: a("s_add_u32 s33, s33, 16384")
    a("v_lshrrev_b32 v11, 2, v2"); a("v_and_b32 v11, 1, v11"); a("v_lshlrev_b32 v11, 4, v11")
    a("v_lshrrev_b32 v5, 3, v2"); a("v_and_b32 v5, 1, v5"); a("v_lshl_add_u32 v11, v5, 2, v11")
    a("v_and_b32 v5, 3, v2"); a("v_add_u32 v11, v11, v5")
    a("v_mul_u32_u24 v11, 288, v11")
    a("v_lshrrev_b32 v5, 1, v10"); a("v_lshl_add_u32 v11, v5, 4, v11")
    a("v_and_b32 v5, 1, v10")
    a("v_lshl_add_u32 v6, v5, 5, v11")
    a("v_mul_u32_u24 v5, 2304, v5")
    a("v_add_u32 v9, v11, v5")
    a("s_lshl_b32 s33, s23, 5")
    a("s_lshl_b32 s36, s22, 1")
    a("s_add_u32 s33, s33, s36")
    a("s_add_u32 s33, s33, s24")
    a("s_mul_i32 s33, s33, 18432")
    if ZIMG: a("s_add_u32 s33, s33, 0x%x" % ZIMG)
    a("s_mul_i32 s36, s52, 9216")
    a("s_add_u32 s37, s33, s36")
    a("s_add_u32 s39, s37, 128")
    a("s_mul_i32 s36, s25, 160")
    a("s_add_u32 s37, s37, s36")
    def norm_pair(nA, ttA, nB, ttB, O):
        for q, n in enumerate((nA, nB)):
            for d in range(2):
                a("v_mov_b32 v%d, v%d" % (O + 2 * q + d, ZPf(n) + d))
        a("s_nop 1")
        a("v_permlane16_swap_b32 v%d, v%d" % (O, O + 2))
        a("v_permlane16_swap_b32 v%d, v%d" % (O + 1, O + 3))
    cnt = 0
    for pr in range(2):
        for tt in range(2):
            O = 128 + 4 * cnt; cnt += 1
            norm_pair(2 * (2 * pr) + tt, tt, 2 * (2 * pr + 1) + tt, tt, O)
            a("s_nop 0")
            a("buffer_store_dwordx4 %s, v6, s[12:15], s37 offen offset:%d" % (vr(O), tt * 2304 + 64 * pr))
    a("s_cmp_lg_u32 s98, 0")
    a("s_cbranch_scc1 %s_fin" % name)
    O = 128 + 4 * cnt
    norm_pair(8, 0, 9, 1, O)
    a("s_nop 0")
    a("buffer_store_dwordx4 %s, v9, s[12:15], s39 offen" % vr(O))
    a.label("%s_fin" % name)
    stamp(a, 4)
    a("s_cmp_ge_u32 s41, 288")
    a("s_cbranch_scc1 %s_fin2" % name)
    a("s_waitcnt vmcnt(9)")
    emit_kv_compute(a, wait=False)
    a.label("%s_fin2" % name)
    stamp(a, 6)
    G.stamp_rt(a, 1)
    a.label("%s_end" % name)
    a("s_endpgm")
    return a.text(), kernel_desc(name, 256, 256), (name, 256, 512, LDSB)

def gen_k1k(name="k1_kernel", R=4):
    a = Asm()
    RB = 4096; SLOT = 34816; TREG = 16384; FS = 288; RST = 0
    LDSB = RB + R * SLOT
    def capture(f, *args):
        lb = len(a.lines); f(*args); out = a.lines[lb:]; del a.lines[lb:]; return out
    kernel_begin(a, name)
    a("s_load_dwordx2 s[80:81], s[0:1], 0")
    a("s_load_dwordx2 s[4:5], s[0:1], 56")
    a("s_load_dwordx2 s[6:7], s[0:1], 104")
    a("s_load_dwordx2 s[18:19], s[0:1], 96")
    a("s_cmp_ge_u32 s2, 256")
    a("s_cbranch_scc1 %s_end" % name)
    a("v_lshrrev_b32 v1, 6, v0")
    a("v_and_b32 v2, 63, v0")
    a("v_readfirstlane_b32 s3, v1")
    G2.tile_ij(a)
    a("s_lshr_b32 s98, s3, 2")
    a("s_mov_b32 s54x, 0".replace("s54x", "s99"))
    a("s_and_b32 s3, s3, 3")
    a("s_lshr_b32 s24, s3, 1")
    a("s_and_b32 s25, s3, 1")
    a("v_and_b32 v3, 15, v2")
    VT = 204; VF = 208
    def loader_setup():
        a("v_lshrrev_b32 v5, 3, v2")
        a("v_and_b32 v4, 7, v2")
        a("s_lshl_b32 s36, s3, 5")
        a("v_add_u32 v5, s36, v5")
        a("v_lshrrev_b32 v7, 4, v2")
        a("v_xor_b32 v7, v7, v4")
        a("v_mul_u32_u24 v6, 1152, v5")
        a("v_lshl_add_u32 v%d, v7, 4, v6" % VT)
        a("v_xor_b32 v%d, 64, v%d" % (VT + 1, VT))
        a("v_add_u32 v%d, %d, v%d" % (VT + 1, 9216 - 1024, VT + 1))
        a("v_add_u32 v%d, %d, v%d" % (VT + 2, 2 * (9216 - 1024), VT))
        a("v_add_u32 v%d, %d, v%d" % (VT + 3, 2 * (9216 - 1024), VT + 1))
        a("s_lshl_b32 s84, s3, 12")
        a("s_add_u32 s84, s84, %d" % RB)
        a("s_lshl_b32 s85, s3, 9")
        a("s_add_u32 s85, s85, %d" % (RB + TREG + 16384))
    def loader_setup2():
        for n in range(5):
            if n < 4:
                a("s_lshl_b32 s36, s3, 8")
                a("s_add_u32 s36, s36, %d" % (64 * n))
            else:
                a("s_lshl_b32 s36, s3, 5")
                a("s_add_u32 s36, s36, 1024")
            a("v_add_u32 v6, s36, v2")
            a("v_mul_u32_u24 v7, 3641, v6")
            a("v_lshrrev_b32 v7, 16, v7")
            a("v_mul_u32_u24 v8, 18, v7")
            a("v_sub_u32 v8, v6, v8")
            a("v_and_b32 v9, 35, v7")
            a("v_bfe_u32 v6, v7, 2, 2")
            a("v_lshl_add_u32 v9, v6, 3, v9")
            a("v_bfe_u32 v6, v7, 4, 1")
            a("v_lshl_add_u32 v9, v6, 2, v9")
            a("v_mul_u32_u24 v9, 9216, v9")
            a("v_lshl_add_u32 v%d, v8, 4, v9" % (VF + n))
            if 0 < n < 4: a("v_subrev_u32 v%d, %d, v%d" % (VF + n, 1024 * n, VF + n))
    def issueT(g):
        st = g % 9
        a("s_add_u32 s86, s84, %d" % ((g % R) * SLOT))
        a("s_mov_b32 m0, s86")
        a("s_add_u32 s87, s82, %d" % (128 * st))
        for n in range(4):
            a("buffer_load_dwordx4 v%d, s[28:31], s87 offen offset:%d lds" % (VT + n, 1024 * n))
    def issueF(g):
        st = g % 9
        a("s_add_u32 s86, s84, %d" % ((g % R) * SLOT + TREG))
        a("s_mov_b32 m0, s86")
        a("s_add_u32 s87, s83, %d" % (64 * 9216 * st + (4608 if g < 9 else 0)))
        for n in range(4):
            a("buffer_load_dwordx4 v%d, s[8:11], s87 offen offset:%d lds" % (VF + n, 1024 * n))
        a("s_add_u32 s86, s85, %d" % ((g % R) * SLOT))
        a("s_mov_b32 m0, s86")
        a("s_mov_b64 exec, 0xffffffff")
        a("buffer_load_dwordx4 v%d, s[8:11], s87 offen lds" % (VF + 4))
        a("s_mov_b64 exec, -1")
    def srds_main():
        srd(a, 28, 80, 2048 * 576 * 2)
        srd(a, 8, 4, 576 * 4608 * 2)
        srd(a, 12, 6, WS_BYTES)
        srd(a, 60, 18, 256)
        a("s_mul_i32 s82, s22, %d" % (128 * 1152))
        a("s_mul_i32 s83, s23, 288")
    ACC = 128; FB = [16, 52]; CS = 216; ONE = 236
    vTa = [4, 5]; vTb = [6, 7]; vF = 8; vFh = 9
    bTa = [88, 89]; bTb = [90, 91]; bF = 92; bFh = 93
    def mma_setup():
        a("v_lshrrev_b32 v10, 4, v2")
        a("v_lshrrev_b32 v11, 1, v3")
        a("v_xor_b32 v10, v10, v11")
        a("v_lshlrev_b32 v10, 4, v10")
        a("v_lshl_add_u32 v10, v3, 7, v10")
        a("s_lshl_b32 s26, s24, 13")
        a("s_add_u32 s26, s26, %d" % RB)
        a("v_add_u32 v10, s26, v10")
        a("s_lshl_b32 s26, s25, 12")
        a("v_add_u32 v%d, s26, v10" % bTa[0])
        a("s_xor_b32 s26, s26, 4096")
        a("v_add_u32 v%d, s26, v10" % bTb[0])
        a("v_xor_b32 v%d, 64, v%d" % (bTa[1], bTa[0]))
        a("v_xor_b32 v%d, 64, v%d" % (bTb[1], bTb[0]))
        a("v_lshrrev_b32 v10, 2, v2")
        a("v_mul_u32_u24 v10, %d, v10" % FS)
        a("v_and_b32 v11, 3, v2")
        a("v_lshl_add_u32 v10, v11, 3, v10")
        a("v_add_u32 v10, %d, v10" % (RB + TREG))
        a("s_mul_i32 s26, s25, 160")
        a("v_add_u32 v%d, s26, v10" % bF)
        a("v_add_u32 v%d, 128, v10" % bFh)
        for r in range(ACC, ACC + 72): a("v_mov_b32 v%d, 0" % r)
        for r in range(CS, CS + 20): a("v_mov_b32 v%d, 0" % r)
        for r in range(ONE, ONE + 4): a("v_mov_b32 v%d, 0x3f803f80" % r)
    def mma_addr(slot):
        a("s_mov_b32 s27, %d" % (slot * SLOT))
        for d, s_ in ((vTa[0], bTa[0]), (vTb[0], bTb[0]), (vTa[1], bTa[1]), (vTb[1], bTb[1]), (vF, bF), (vFh, bFh)):
            a("v_add_u32 v%d, s27, v%d" % (d, s_))
    core = G.Core(a, ACC, FB[0], FB[1], FS, TREG, vTa, vTb, vF, vFh)
    trk = core.trk
    a("s_cmp_eq_u32 s98, 0")
    a("s_cbranch_scc1 %s_A0" % name)
    a("s_setprio 3")
    loader_setup()
    a("s_waitcnt lgkmcnt(0)")
    srds_main()
    vm = VmTracker(a)
    def issue(g, vmx):
        issueT(g); issueF(g); vmx.issue("S%d" % g, 9)
    issueT(0)
    loader_setup2()
    issueF(0); vm.issue("S0", 9)
    issue(1, vm); issue(2, vm); issue(3, vm)
    a("s_add_u32 s3, s3, 4"); stamp_setup(a, 1); stamp(a, 0); a("s_sub_u32 s3, s3, 4")
    for r in range(ONE, ONE + 4): a("v_mov_b32 v%d, 0x3f803f80" % r)
    RA = 96; XB = 112
    for r in range(RA, RA + 16): a("v_mov_b32 v%d, 0" % r)
    a("v_lshrrev_b32 v10, 4, v2")
    a("v_lshrrev_b32 v11, 1, v3")
    a("v_xor_b32 v10, v10, v11")
    a("v_lshlrev_b32 v10, 4, v10")
    a("v_lshl_add_u32 v10, v3, 7, v10")
    a("v_add_u32 v12, s84, v10")
    a("v_xor_b32 v13, 64, v12")
    def rs_rd(g):
        a("v_add_u32 v10, %d, v12" % ((g % R) * SLOT))
        a("v_add_u32 v11, %d, v13" % ((g % R) * SLOT))
        for h in range(2):
            for n in range(2):
                a("ds_read_b128 %s, v%d offset:%d" % (vr(XB + 8 * h + 4 * n), 10 + h, 2048 * n))
    def rs_do():
        for h in range(2):
            for n in range(2):
                x = XB + 8 * h + 4 * n
                a("v_mfma_f32_16x16x32_bf16 %s, %s, %s, %s" % (vr(RA + 4 * n), vr(ONE), vr(x), vr(RA + 4 * n)))
                a("v_mfma_f32_16x16x32_bf16 %s, %s, %s, %s" % (vr(RA + 8 + 4 * n), vr(x), vr(x), vr(RA + 8 + 4 * n)))
    def interleave(dma, comp, vmx=None):
        groups = []; cur = []
        for l in dma:
            cur.append(l)
            if "buffer_load" in l and not any("exec, 0xffffffff" in x for x in cur[-2:]):
                groups.append(cur); cur = []
            elif "exec, -1" in l:
                groups.append(cur); cur = []
        if cur: groups.append(cur)
        ns = max(1, len(groups))
        per = (len(comp) + ns - 1) // ns
        for g in groups:
            a.lines.extend(g)
            a.lines.extend(comp[:per]); comp = comp[per:]
        a.lines.extend(comp)
    vm.wait(["S0"])
    a("s_barrier")
    stamp(a, 1)
    rs_rd(0)
    vm.wait(["S1"])
    a("s_barrier")
    for k in range(9):
        a("s_waitcnt lgkmcnt(0)")
        dma = capture(lambda: (issueT(k + 3), issueF(k + 3))) if (k >= 1 and k + 3 < 9) else []
        interleave(dma, capture(rs_do))
        if k >= 1 and k + 3 < 9: vm.issue("S%d" % (k + 3), 9)
        if k < 8:
            rs_rd(k + 1)
        else:
            a("s_nop 7")
            a("v_lshrrev_b32 v10, 4, v2")
            a("v_lshrrev_b32 v11, 2, v3")
            a("v_and_b32 v12, 3, v3")
            for n in range(2):
                G_ = RA + 8 + 4 * n
                for r in range(1, 4):
                    a("v_cmp_eq_u32 vcc, %d, v12" % r)
                    a("s_nop 1")
                    a("v_cndmask_b32 v%d, v%d, v%d, vcc" % (G_, G_, G_ + r))
            ML = 112
            for n in range(2):
                emit_ln_finish(a, RA + 4 * n, RA + 8 + 4 * n, 576, ML + 2 * n, ML + 2 * n + 1, 120)
                a("v_mov_b32 v%d, v%d" % (117 + 2 * n, ML + 2 * n + 1))
                a("v_sub_f32 v%d, 0, v%d" % (116 + 2 * n, ML + 2 * n))
            a("s_lshl_b32 s35, s3, 8")
            a("v_lshlrev_b32 v13, 3, v3")
            a("v_add_u32 v12, s35, v13")
            a("v_cmp_eq_u32 vcc, v10, v11")
            a("s_and_saveexec_b64 s[36:37], vcc")
            for n in range(2):
                a("ds_write_b64 v12, %s offset:%d" % (vr(116 + 2 * n, 2), RST + 128 * n))
            a("s_mov_b64 exec, s[36:37]")
            a("s_cmp_lg_u32 s23, 0")
            a("s_cbranch_scc1 %s_nost1" % name)
            a("s_lshl_b32 s35, s22, 7")
            a("s_lshl_b32 s36, s3, 5")
            a("s_add_u32 s35, s35, s36")
            a("s_lshl_b32 s35, s35, 3")
            a("s_add_u32 s35, s35, 0x%x" % STATS1)
            a("v_mov_b32 v11, 0x7ffffff0")
            a("v_cndmask_b32 v13, v11, v13, vcc")
            for n in range(2):
                a("buffer_store_dwordx2 %s, v13, s[12:15], s35 offen offset:%d" % (vr(ML + 2 * n, 2), 128 * n))
            a.label("%s_nost1" % name)
        if k < 8:
            vm.wait(["S%d" % (k + 2)])
            a("s_barrier")
    a("s_waitcnt lgkmcnt(0)")
    a("s_barrier")
    a("s_load_dwordx4 s[64:67], s[0:1], 8")
    a("s_load_dwordx2 s[76:77], s[0:1], 24")
    a("s_load_dwordx2 s[90:91], s[0:1], 64")
    a("s_mul_i32 s36, s3, 13312")
    a("s_add_u32 s36, s36, %d" % RB)
    a("v_lshlrev_b32 v10, 4, v2")
    a("v_add_u32 v11, s36, v10")
    a("s_waitcnt lgkmcnt(0)")
    srd(a, 68, 66, 2048 * 576 * 2)
    a("s_mov_b32 s88, s64"); a("s_mov_b32 s89, s65")
    srd(a, 64, 88, 2048 * 576 * 2)
    srd(a, 72, 76, 576 * 8)
    srd(a, 92, 90, 2048 * 2048 * 2)
    a("s_barrier")
    n_ = 0
    for ft in range(4):
        for tt in range(2):
            a("ds_read_b128 %s, v11 offset:%d" % (vr(core.accr(ft, tt)), 1024 * n_)); n_ += 1
    for ft in range(4):
        a("ds_read_b128 %s, v11 offset:%d" % (vr(CS + 4 * ft), 1024 * n_)); n_ += 1
    a("s_branch %s_epi" % name)
    a.label("%s_A0" % name)
    emit_code_prefetch(a, name)
    a("s_load_dwordx4 s[64:67], s[0:1], 8")
    a("s_load_dwordx2 s[76:77], s[0:1], 24")
    a("s_load_dwordx2 s[90:91], s[0:1], 64")
    mma_setup()
    a("s_waitcnt lgkmcnt(0)")
    srds_main()
    srd(a, 68, 66, 2048 * 576 * 2)
    a("s_mov_b32 s88, s64"); a("s_mov_b32 s89, s65")
    srd(a, 64, 88, 2048 * 576 * 2)
    srd(a, 72, 76, 576 * 8)
    srd(a, 92, 90, 2048 * 2048 * 2)
    stamp_setup(a, 1); stamp(a, 0)
    def gran_addr():
        a("v_lshrrev_b32 v10, 4, v2")
        a("s_lshl_b32 s36, s25, 1")
        a("v_add_u32 v11, s36, v10")
        a("v_and_b32 v11, 3, v11")
        a("v_lshl_add_u32 v11, v11, 4, v3")
        a("v_lshlrev_b32 v94, 8, v11")
        a("s_lshl_b32 s59, s22, 7")
        a("s_lshl_b32 s36, s24, 6")
        a("s_add_u32 s59, s59, s36")
        a("s_lshl_b32 s59, s59, 8")
        a("s_add_u32 s59, s59, 0x%x" % STATS2)
        a("s_lshl_b32 s36, s23, 1")
        a("s_add_u32 s36, s36, s25")
        a("s_lshl_b32 s36, s36, 3")
        a("s_add_u32 s58, s36, s59")
    mma_addr(0)
    a("s_mov_b32 s33, 0")
    a("s_barrier")
    stamp(a, 1)
    a.label("%s_mma" % name)
    core.prime(0, core.reads(0, 0))
    trk.drain()
    def mfmas(buf):
        L = []
        for ft in range(5):
            A = core.F(buf, ft)
            for tt in range(4 if ft < 4 else 2):
                c = core.accr(ft, tt); B = core.T(buf, tt)
                L.append(("v_mfma_f32_16x16x32_bf16 %s, %s, %s, %s" % (vr(c), vr(A), vr(B), vr(c)), list(range(A, A + 4)) + list(range(B, B + 4))))
            L.append(("v_mfma_f32_16x16x32_bf16 %s, %s, %s, %s" % (vr(CS + 4 * ft), vr(A), vr(ONE), vr(CS + 4 * ft)), list(range(A, A + 4))))
        return L
    def phase(buf, pend):
        for (m, regs) in mfmas(buf):
            trk.need(regs)
            a(m)
            while pend:
                k, t = pend.pop(0)
                if k == "x":
                    a(t)
                    if t.startswith("s_"): continue
                else:
                    a(t[0]); trk.issue(t[1])
                break
        for k, t in pend:
            if k == "x": a(t)
            else: a(t[0]); trk.issue(t[1])
    def iteration():
        a("s_waitcnt vmcnt(0)")
        a("s_barrier")
        rd = [("r", t) for t in core.reads(1, 1)]
        upd = ["s_add_u32 s27, s27, %d" % SLOT, "s_cmp_eq_u32 s27, %d" % (R * SLOT), "s_cselect_b32 s27, 0, s27"]
        tail = ["v_add_u32 v%d, s27, v%d" % (d, s_) for d, s_ in ((vTa[0], bTa[0]), (vF, bF), (vTb[0], bTb[0]), (vFh, bFh))]
        phase(0, rd[:1] + [("x", u) for u in upd] + rd[1:] + [("x", u) for u in tail])
        rd = [("r", t) for t in core.reads(0, 0)]
        tail = ["v_add_u32 v%d, s27, v%d" % (d, s_) for d, s_ in ((vTa[1], bTa[1]), (vTb[1], bTb[1]))] + ["s_add_u32 s33, s33, 1"]
        phase(1, rd + [("x", u) for u in tail])
    a.label("%s_cloop" % name)
    lb = len(a.lines); iteration(); st = copy.deepcopy(trk.out); del a.lines[lb:]; trk.out = copy.deepcopy(st)
    iteration()
    assert [sorted(x) for x in trk.out] == [sorted(x) for x in st]
    a("s_cmp_lt_u32 s33, 9")
    a("s_cbranch_scc1 %s_cloop" % name)
    trk.drain()
    stamp(a, 2)
    a("s_waitcnt vmcnt(0)")
    a("s_barrier")
    a("s_mul_i32 s36, s3, 13312")
    a("s_add_u32 s36, s36, %d" % RB)
    a("v_lshlrev_b32 v10, 4, v2")
    a("v_add_u32 v11, s36, v10")
    n_ = 0
    for ft in range(4):
        for tt in range(2):
            a("ds_write_b128 v11, %s offset:%d" % (vr(core.accr(ft, tt + 2)), 1024 * n_)); n_ += 1
    for ft in range(4):
        a("ds_write_b128 v11, %s offset:%d" % (vr(CS + 4 * ft), 1024 * n_)); n_ += 1
    a("s_waitcnt lgkmcnt(0)")
    a("s_barrier")
    a.label("%s_epi" % name)
    MR = 100; T = 72; ZP = 200
    gelu_consts(a)
    a("s_xor_b32 s52, s98, s25")
    a("s_lshl_b32 s36, s24, 9")
    a("s_lshl_b32 s37, s52, 8")
    a("s_add_u32 s38, s36, s37")
    a("v_lshlrev_b32 v10, 3, v3")
    a("v_add_u32 v11, s38, v10")
    a("ds_read_b64 %s, v11 offset:%d" % (vr(MR, 2), RST))
    a("ds_read_b64 %s, v11 offset:%d" % (vr(MR + 2, 2), RST + 128))
    a("s_lshl_b32 s41, s2, 1")
    a("s_add_u32 s41, s41, s98")
    a("v_and_b32 v0, 255, v0")
    a("s_cmp_ge_u32 s41, 288")
    a("s_cbranch_scc1 %s_nokv1" % name)
    emit_kv_loads(a)
    a.label("%s_nokv1" % name)
    S = [108, 110]; Q = [109, 111]
    for r_ in range(108, 112): a("v_mov_b32 v%d, 0" % r_)
    a("s_waitcnt lgkmcnt(0)")
    ZPf = lambda n: (240 + 2 * n) if n < 8 else (196 + 2 * (n - 8))
    def dots(lst):
        for d in range(2):
            for (ft, tt) in lst:
                p = ZPf(2 * ft + tt) + d
                a("v_dot2_f32_bf16 v%d, v%d, v%d, v%d" % (S[tt], p, ONE, S[tt]))
                a("v_dot2_f32_bf16 v%d, v%d, v%d, v%d" % (Q[tt], p, p, Q[tt]))
    a("v_lshrrev_b32 v10, 4, v2")
    a("v_lshlrev_b32 v5, 12, v10")
    a("v_lshl_add_u32 v5, v3, 4, v5")
    a("s_lshl_b32 s33, s22, 7")
    a("s_lshl_b32 s36, s3, 5")
    a("s_add_u32 s33, s33, s36")
    a("s_lshl_b32 s36, s98, 4")
    a("s_add_u32 s33, s33, s36")
    a("s_lshl_b32 s33, s33, 12")
    a("s_lshl_b32 s36, s23, 8")
    a("s_add_u32 s33, s33, s36")
    for n in range(4):
        a("buffer_load_dwordx4 v[160:163], v5, s[92:95], s33 offen")
        if n < 3: a("s_add_u32 s33, s33, 16384")
    a("v_lshrrev_b32 v60, 2, v2"); a("v_and_b32 v60, 1, v60"); a("v_lshlrev_b32 v60, 4, v60")
    a("v_lshrrev_b32 v61, 3, v2"); a("v_and_b32 v61, 1, v61"); a("v_lshl_add_u32 v60, v61, 2, v60")
    a("v_and_b32 v61, 3, v2"); a("v_add_u32 v60, v60, v61")
    a("v_mul_u32_u24 v60, 288, v60")
    a("v_lshrrev_b32 v61, 1, v10"); a("v_lshl_add_u32 v60, v61, 4, v60")
    a("v_and_b32 v61, 1, v10")
    a("v_lshl_add_u32 v62, v61, 5, v60")
    a("v_mul_u32_u24 v61, 2304, v61")
    a("v_add_u32 v63, v60, v61")
    a("s_lshl_b32 s84, s23, 5")
    a("s_lshl_b32 s36, s22, 1")
    a("s_add_u32 s84, s84, s36")
    a("s_add_u32 s84, s84, s24")
    a("s_mul_i32 s84, s84, 18432")
    if ZIMG: a("s_add_u32 s84, s84, 0x%x" % ZIMG)
    a("s_mul_i32 s36, s52, 9216")
    a("s_add_u32 s85, s84, s36")
    a("s_add_u32 s86, s85, 128")
    a("s_mul_i32 s36, s25, 160")
    a("s_add_u32 s85, s85, s36")
    def norm_pair(nA, ttA, nB, ttB, O):
        for q, n in enumerate((nA, nB)):
            for d in range(2):
                a("v_mov_b32 v%d, v%d" % (O + 2 * q + d, ZPf(n) + d))
        a("s_nop 1")
        a("v_permlane16_swap_b32 v%d, v%d" % (O, O + 2))
        a("v_permlane16_swap_b32 v%d, v%d" % (O + 1, O + 3))
    a("s_cmp_lg_u32 s98, 0")
    a("s_cbranch_scc1 %s_nohalf" % name)
    lst = [(4, 0), (4, 1)]
    emit_fold_gelu(a, [(core.accr(ft, tt), CS + 4 * ft, MR + 2 * tt, ZPf(2 * ft + tt)) for ft, tt in lst], T)
    dots(lst)
    norm_pair(8, 0, 9, 1, 112)
    a("s_nop 0")
    a("buffer_store_dwordx4 %s, v63, s[12:15], s86 offen" % vr(112))
    a.label("%s_nohalf" % name)
    for pr, f0 in enumerate((0, 2)):
        lst = [(ft, tt) for ft in (f0, f0 + 1) for tt in range(2)]
        emit_fold_gelu(a, [(core.accr(ft, tt), CS + 4 * ft, MR + 2 * tt, ZPf(2 * ft + tt)) for ft, tt in lst], T)
        dots(lst)
        for tt in range(2):
            O = 116 + 8 * pr + 4 * tt - 0
            O = (116, 120, 124, 88)[2 * pr + tt]
            norm_pair(2 * f0 + tt, tt, 2 * (f0 + 1) + tt, tt, O)
            a("s_nop 0")
            a("buffer_store_dwordx4 %s, v62, s[12:15], s85 offen offset:%d" % (vr(O), tt * 2304 + 64 * pr))
    a("s_nop 2")
    emit_xg_reduce(a, S + Q, 72)
    a("s_lshl_b32 s59, s22, 7")
    a("s_lshl_b32 s36, s24, 6")
    a("s_add_u32 s59, s59, s36")
    a("s_lshl_b32 s36, s52, 5")
    a("s_add_u32 s59, s59, s36")
    a("s_lshl_b32 s59, s59, 8")
    a("s_add_u32 s59, s59, 0x%x" % STATS2)
    a("s_lshl_b32 s36, s23, 1")
    a("s_add_u32 s36, s36, s25")
    a("s_lshl_b32 s36, s36, 3")
    a("s_add_u32 s58, s36, s59")
    a("v_lshrrev_b32 v10, 4, v2")
    a("v_lshlrev_b32 v11, 8, v2")
    a("v_cmp_gt_u32 vcc, 32, v2")
    a("v_mov_b32 v12, 0x7ffffff0")
    a("v_cmp_eq_u32 s[36:37], 1, v10")
    a("v_cndmask_b32 v11, v12, v11, vcc")
    a("s_nop 0")
    a("v_cndmask_b32 v108, v108, v110, s[36:37]")
    a("v_cndmask_b32 v109, v109, v111, s[36:37]")
    a("buffer_store_dwordx2 v[108:109], v11, s[12:15], s58 offen")
    a("s_setprio 0")
    stamp(a, 3)
    a.label("%s_fin" % name)
    stamp(a, 4)
    a("s_cmp_ge_u32 s41, 288")
    a("s_cbranch_scc1 %s_fin2" % name)
    a("s_waitcnt vmcnt(9)")
    a("s_nop 4")
    emit_kv_compute(a, wait=False)
    a.label("%s_fin2" % name)
    stamp(a, 6)
    G.stamp_rt(a, 1)
    a.label("%s_end" % name)
    a("s_endpgm")
    return a.text(), kernel_desc(name, 256, 256), (name, 256, 512, LDSB)

gen_k2b = G3.gen_k2b; gen_k2c = G3.gen_k2c; gen_k2d = G3.gen_k2d; gen_k2e = G3.gen_k2e; gen_k2g = G3.gen_k2g; gen_k2f = G3.gen_k2f; gen_k3b = G3.gen_k3b; gen_kw = G3.gen_kw; gen_k1g = G3.gen_k1g

if __name__ == "__main__":
    which = sys.argv[1]; out = sys.argv[2]
    if len(sys.argv) > 3: DBG.update(sys.argv[3].split(","))
    ks = [globals()["gen_" + w]() for w in which.split(",")]
    open(out, "w").write(assemble_file([k[2] for k in ks], "".join(k[0] for k in ks) + "code_end_lbl:\n", [k[1] for k in ks]))
```

```python
import sys, copy
from asmgen import *
import gen as G
import gen2 as G2
import gen3 as G3
from gen import (ZIMG, Z1IMG, PIMG, WOT, KVT, YT, STATS2, STATS1, WS_BYTES, DBG, LdsTracker, vr, stamp, stamp_setup,
                 rnd_pair, f32, emit_xg_reduce, emit_ln_finish)
from gen2 import VmTracker, TILES, tidx, emit_fold_gelu, gelu_consts, SPIN_MAX
from gen3 import emit_kv_loads, emit_kv_compute, emit_wot_loads

def emit_code_prefetch(a, name, nload=3):
    if "cpf" not in DBG: return
    a("s_getpc_b64 s[40:41]")
    a.label("%s_pc" % name)
    a("s_sub_u32 s40, s40, %s_pc-%s" % (name, name))
    a("s_subb_u32 s41, s41, 0")
    a("s_and_b32 s41, s41, 0xffff")
    a("s_mov_b32 s42, code_end_lbl-%s" % name)
    a("s_mov_b32 s43, 0x00020000")
    a("v_lshlrev_b32 v10, 7, v2")
    a("s_mul_i32 s36, s3, %d" % (nload * 8192))
    for n in range(nload):
        a("buffer_load_dword v200, v10, s[40:43], s36 offen")
        if n < nload - 1: a("s_add_u32 s36, s36, 8192")

def gen_k1h(name="k1_kernel", R=4):
    a = Asm()
    RB = 4096; SLOT = 34816; TREG = 16384; FS = 288; RST = 0
    LDSB = RB + R * SLOT
    def capture(f, *args):
        lb = len(a.lines); f(*args); out = a.lines[lb:]; del a.lines[lb:]; return out
    kernel_begin(a, name)
    a("s_load_dwordx2 s[80:81], s[0:1], 0")
    a("s_load_dwordx2 s[4:5], s[0:1], 56")
    a("s_load_dwordx2 s[6:7], s[0:1], 104")
    a("s_load_dwordx2 s[18:19], s[0:1], 96")
    a("s_cmp_ge_u32 s2, 256")
    a("s_cbranch_scc1 %s_end" % name)
    a("v_lshrrev_b32 v1, 6, v0")
    a("v_and_b32 v2, 63, v0")
    a("v_readfirstlane_b32 s3, v1")
    G2.tile_ij(a)
    a("s_lshr_b32 s98, s3, 2")
    a("s_mov_b32 s54x, 0".replace("s54x", "s99"))
    a("s_and_b32 s3, s3, 3")
    a("s_lshr_b32 s24, s3, 1")
    a("s_and_b32 s25, s3, 1")
    a("v_and_b32 v3, 15, v2")
    VT = 204; VF = 208
    def loader_setup():
        a("v_lshrrev_b32 v5, 3, v2")
        a("v_and_b32 v4, 7, v2")
        a("s_lshl_b32 s36, s3, 5")
        a("v_add_u32 v5, s36, v5")
        a("v_lshrrev_b32 v7, 4, v2")
        a("v_xor_b32 v7, v7, v4")
        a("v_mul_u32_u24 v6, 1152, v5")
        a("v_lshl_add_u32 v%d, v7, 4, v6" % VT)
        a("v_xor_b32 v%d, 64, v%d" % (VT + 1, VT))
        a("v_add_u32 v%d, %d, v%d" % (VT + 1, 9216 - 1024, VT + 1))
        a("v_add_u32 v%d, %d, v%d" % (VT + 2, 2 * (9216 - 1024), VT))
        a("v_add_u32 v%d, %d, v%d" % (VT + 3, 2 * (9216 - 1024), VT + 1))
        a("s_lshl_b32 s84, s3, 12")
        a("s_add_u32 s84, s84, %d" % RB)
        a("s_lshl_b32 s85, s3, 9")
        a("s_add_u32 s85, s85, %d" % (RB + TREG + 16384))
    def loader_setup2():
        for n in range(5):
            if n < 4:
                a("s_lshl_b32 s36, s3, 8")
                a("s_add_u32 s36, s36, %d" % (64 * n))
            else:
                a("s_lshl_b32 s36, s3, 5")
                a("s_add_u32 s36, s36, 1024")
            a("v_add_u32 v6, s36, v2")
            a("v_mul_u32_u24 v7, 3641, v6")
            a("v_lshrrev_b32 v7, 16, v7")
            a("v_mul_u32_u24 v8, 18, v7")
            a("v_sub_u32 v8, v6, v8")
            a("v_and_b32 v9, 35, v7")
            a("v_bfe_u32 v6, v7, 2, 2")
            a("v_lshl_add_u32 v9, v6, 3, v9")
            a("v_bfe_u32 v6, v7, 4, 1")
            a("v_lshl_add_u32 v9, v6, 2, v9")
            a("v_mul_u32_u24 v9, 9216, v9")
            a("v_lshl_add_u32 v%d, v8, 4, v9" % (VF + n))
            if 0 < n < 4: a("v_subrev_u32 v%d, %d, v%d" % (VF + n, 1024 * n, VF + n))
    def issueT(g):
        st = g % 9
        a("s_add_u32 s86, s84, %d" % ((g % R) * SLOT))
        a("s_mov_b32 m0, s86")
        a("s_add_u32 s87, s82, %d" % (128 * st))
        for n in range(4):
            a("buffer_load_dwordx4 v%d, s[28:31], s87 offen offset:%d lds" % (VT + n, 1024 * n))
    def issueF(g):
        st = g % 9
        a("s_add_u32 s86, s84, %d" % ((g % R) * SLOT + TREG))
        a("s_mov_b32 m0, s86")
        a("s_add_u32 s87, s83, %d" % (64 * 9216 * st + (4608 if g < 9 else 0)))
        for n in range(4):
            a("buffer_load_dwordx4 v%d, s[8:11], s87 offen offset:%d lds" % (VF + n, 1024 * n))
        a("s_add_u32 s86, s85, %d" % ((g % R) * SLOT))
        a("s_mov_b32 m0, s86")
        a("s_mov_b64 exec, 0xffffffff")
        a("buffer_load_dwordx4 v%d, s[8:11], s87 offen lds" % (VF + 4))
        a("s_mov_b64 exec, -1")
    def srds_main():
        srd(a, 28, 80, 2048 * 576 * 2)
        srd(a, 8, 4, 576 * 4608 * 2)
        srd(a, 12, 6, WS_BYTES)
        srd(a, 60, 18, 256)
        a("s_mul_i32 s82, s22, %d" % (128 * 1152))
        a("s_mul_i32 s83, s23, 288")
    ACC = 128; FB = [16, 52]; CS = 216; ONE = 236
    vTa = [4, 5]; vTb = [6, 7]; vF = 8; vFh = 9
    bTa = [88, 89]; bTb = [90, 91]; bF = 92; bFh = 93
    def mma_setup():
        a("v_lshrrev_b32 v10, 4, v2")
        a("v_lshrrev_b32 v11, 1, v3")
        a("v_xor_b32 v10, v10, v11")
        a("v_lshlrev_b32 v10, 4, v10")
        a("v_lshl_add_u32 v10, v3, 7, v10")
        a("s_lshl_b32 s26, s24, 13")
        a("s_add_u32 s26, s26, %d" % RB)
        a("v_add_u32 v10, s26, v10")
        a("s_lshl_b32 s26, s25, 12")
        a("v_add_u32 v%d, s26, v10" % bTa[0])
        a("s_xor_b32 s26, s26, 4096")
        a("v_add_u32 v%d, s26, v10" % bTb[0])
        a("v_xor_b32 v%d, 64, v%d" % (bTa[1], bTa[0]))
        a("v_xor_b32 v%d, 64, v%d" % (bTb[1], bTb[0]))
        a("v_lshrrev_b32 v10, 2, v2")
        a("v_mul_u32_u24 v10, %d, v10" % FS)
        a("v_and_b32 v11, 3, v2")
        a("v_lshl_add_u32 v10, v11, 3, v10")
        a("v_add_u32 v10, %d, v10" % (RB + TREG))
        a("s_mul_i32 s26, s25, 160")
        a("v_add_u32 v%d, s26, v10" % bF)
        a("v_add_u32 v%d, 128, v10" % bFh)
        for r in range(ACC, ACC + 72): a("v_mov_b32 v%d, 0" % r)
        for r in range(CS, CS + 20): a("v_mov_b32 v%d, 0" % r)
        for r in range(ONE, ONE + 4): a("v_mov_b32 v%d, 0x3f803f80" % r)
    def mma_addr(slot):
        a("s_mov_b32 s27, %d" % (slot * SLOT))
        for d, s_ in ((vTa[0], bTa[0]), (vTb[0], bTb[0]), (vTa[1], bTa[1]), (vTb[1], bTb[1]), (vF, bF), (vFh, bFh)):
            a("v_add_u32 v%d, s27, v%d" % (d, s_))
    core = G.Core(a, ACC, FB[0], FB[1], FS, TREG, vTa, vTb, vF, vFh)
    trk = core.trk
    a("s_cmp_eq_u32 s98, 0")
    a("s_cbranch_scc1 %s_A0" % name)
    a("s_setprio 3")
    loader_setup()
    a("s_waitcnt lgkmcnt(0)")
    srds_main()
    vm = VmTracker(a)
    def issue(g, vmx):
        issueT(g); issueF(g); vmx.issue("S%d" % g, 9)
    issueT(0)
    loader_setup2()
    issueF(0); vm.issue("S0", 9)
    issue(1, vm); issue(2, vm); issue(3, vm)
    a("s_add_u32 s3, s3, 4"); stamp_setup(a, 1); stamp(a, 0); a("s_sub_u32 s3, s3, 4")
    mma_setup()
    RA = 96; XB = 112
    for r in range(RA, RA + 16): a("v_mov_b32 v%d, 0" % r)
    a("v_lshrrev_b32 v10, 4, v2")
    a("v_lshrrev_b32 v11, 1, v3")
    a("v_xor_b32 v10, v10, v11")
    a("v_lshlrev_b32 v10, 4, v10")
    a("v_lshl_add_u32 v10, v3, 7, v10")
    a("v_add_u32 v12, s84, v10")
    a("v_xor_b32 v13, 64, v12")
    def rs_rd(g):
        a("v_add_u32 v10, %d, v12" % ((g % R) * SLOT))
        a("v_add_u32 v11, %d, v13" % ((g % R) * SLOT))
        for h in range(2):
            for n in range(2):
                a("ds_read_b128 %s, v%d offset:%d" % (vr(XB + 8 * h + 4 * n), 10 + h, 2048 * n))
    def rs_do():
        for h in range(2):
            for n in range(2):
                x = XB + 8 * h + 4 * n
                a("v_mfma_f32_16x16x32_bf16 %s, %s, %s, %s" % (vr(RA + 4 * n), vr(ONE), vr(x), vr(RA + 4 * n)))
                a("v_mfma_f32_16x16x32_bf16 %s, %s, %s, %s" % (vr(RA + 8 + 4 * n), vr(x), vr(x), vr(RA + 8 + 4 * n)))
    def interleave(dma, comp, vmx=None):
        groups = []; cur = []
        for l in dma:
            cur.append(l)
            if "buffer_load" in l and not any("exec, 0xffffffff" in x for x in cur[-2:]):
                groups.append(cur); cur = []
            elif "exec, -1" in l:
                groups.append(cur); cur = []
        if cur: groups.append(cur)
        ns = max(1, len(groups))
        per = (len(comp) + ns - 1) // ns
        for g in groups:
            a.lines.extend(g)
            a.lines.extend(comp[:per]); comp = comp[per:]
        a.lines.extend(comp)
    vm.wait(["S0"])
    a("s_barrier")
    stamp(a, 1)
    rs_rd(0)
    vm.wait(["S1"])
    a("s_barrier")
    for k in range(9):
        a("s_waitcnt lgkmcnt(0)")
        dma = capture(lambda: (issueT(k + 3), issueF(k + 3))) if k >= 1 else []
        interleave(dma, capture(rs_do))
        if k >= 1: vm.issue("S%d" % (k + 3), 9)
        if k < 8:
            rs_rd(k + 1)
        else:
            a("s_nop 7")
            a("v_lshrrev_b32 v10, 4, v2")
            a("v_lshrrev_b32 v11, 2, v3")
            a("v_and_b32 v12, 3, v3")
            for n in range(2):
                G_ = RA + 8 + 4 * n
                for r in range(1, 4):
                    a("v_cmp_eq_u32 vcc, %d, v12" % r)
                    a("s_nop 1")
                    a("v_cndmask_b32 v%d, v%d, v%d, vcc" % (G_, G_, G_ + r))
            ML = 112
            for n in range(2):
                emit_ln_finish(a, RA + 4 * n, RA + 8 + 4 * n, 576, ML + 2 * n, ML + 2 * n + 1, 120)
                a("v_mov_b32 v%d, v%d" % (117 + 2 * n, ML + 2 * n + 1))
                a("v_sub_f32 v%d, 0, v%d" % (116 + 2 * n, ML + 2 * n))
            a("s_lshl_b32 s35, s3, 8")
            a("v_lshlrev_b32 v13, 3, v3")
            a("v_add_u32 v12, s35, v13")
            a("v_cmp_eq_u32 vcc, v10, v11")
            a("s_and_saveexec_b64 s[36:37], vcc")
            for n in range(2):
                a("ds_write_b64 v12, %s offset:%d" % (vr(116 + 2 * n, 2), RST + 128 * n))
            a("s_mov_b64 exec, s[36:37]")
            a("s_cmp_lg_u32 s23, 0")
            a("s_cbranch_scc1 %s_nost1" % name)
            a("s_lshl_b32 s35, s22, 7")
            a("s_lshl_b32 s36, s3, 5")
            a("s_add_u32 s35, s35, s36")
            a("s_lshl_b32 s35, s35, 3")
            a("s_add_u32 s35, s35, 0x%x" % STATS1)
            a("v_mov_b32 v11, 0x7ffffff0")
            a("v_cndmask_b32 v13, v11, v13, vcc")
            for n in range(2):
                a("buffer_store_dwordx2 %s, v13, s[12:15], s35 offen offset:%d" % (vr(ML + 2 * n, 2), 128 * n))
            a.label("%s_nost1" % name)
            mma_addr(9 % R)
            a("s_mov_b32 s33, 0")
            a("s_setprio 0")
        vm.wait(["S%d" % (k + 2)], "lgkmcnt(0)" if k == 8 else "")
        if k < 8: a("s_barrier")
    a("s_branch %s_mma" % name)
    a.label("%s_A0" % name)
    emit_code_prefetch(a, name)
    a("s_load_dwordx4 s[64:67], s[0:1], 8")
    a("s_load_dwordx2 s[76:77], s[0:1], 24")
    a("s_load_dwordx2 s[90:91], s[0:1], 64")
    mma_setup()
    loader_setup(); loader_setup2()
    a("s_waitcnt lgkmcnt(0)")
    srds_main()
    srd(a, 68, 66, 2048 * 576 * 2)
    a("s_mov_b32 s88, s64"); a("s_mov_b32 s89, s65")
    srd(a, 64, 88, 2048 * 576 * 2)
    srd(a, 72, 76, 576 * 8)
    srd(a, 92, 90, 2048 * 2048 * 2)
    stamp_setup(a, 1); stamp(a, 0)
    def gran_addr():
        a("v_lshrrev_b32 v10, 4, v2")
        a("s_lshl_b32 s36, s25, 1")
        a("v_add_u32 v11, s36, v10")
        a("v_and_b32 v11, 3, v11")
        a("v_lshl_add_u32 v11, v11, 4, v3")
        a("v_lshlrev_b32 v94, 8, v11")
        a("s_lshl_b32 s59, s22, 7")
        a("s_lshl_b32 s36, s24, 6")
        a("s_add_u32 s59, s59, s36")
        a("s_lshl_b32 s59, s59, 8")
        a("s_add_u32 s59, s59, 0x%x" % STATS2)
        a("s_lshl_b32 s36, s23, 1")
        a("s_add_u32 s36, s36, s25")
        a("s_lshl_b32 s36, s36, 3")
        a("s_add_u32 s58, s36, s59")
    gran_addr()
    a("v_mov_b32 v12, 0"); a("v_mov_b32 v13, 0x80000000")
    a("buffer_store_dwordx2 v[12:13], v94, s[12:15], s58 offen sc1")
    mma_addr(0)
    a("s_mov_b32 s33, 0")
    a("s_barrier")
    stamp(a, 1)
    a.label("%s_mma" % name)
    core.prime(0, core.reads(0, 0))
    trk.drain()
    def mfmas(buf):
        L = []
        for ft in range(5):
            A = core.F(buf, ft)
            for tt in range(4 if ft < 4 else 2):
                c = core.accr(ft, tt); B = core.T(buf, tt)
                L.append(("v_mfma_f32_16x16x32_bf16 %s, %s, %s, %s" % (vr(c), vr(A), vr(B), vr(c)), list(range(A, A + 4)) + list(range(B, B + 4))))
            L.append(("v_mfma_f32_16x16x32_bf16 %s, %s, %s, %s" % (vr(CS + 4 * ft), vr(A), vr(ONE), vr(CS + 4 * ft)), list(range(A, A + 4))))
        return L
    def phase(buf, pend):
        for (m, regs) in mfmas(buf):
            trk.need(regs)
            a(m)
            while pend:
                k, t = pend.pop(0)
                if k == "x":
                    a(t)
                    if t.startswith("s_"): continue
                else:
                    a(t[0]); trk.issue(t[1])
                break
        for k, t in pend:
            if k == "x": a(t)
            else: a(t[0]); trk.issue(t[1])
    def iteration():
        a("s_waitcnt vmcnt(0)")
        a("s_barrier")
        rd = [("r", t) for t in core.reads(1, 1)]
        upd = ["s_add_u32 s27, s27, %d" % SLOT, "s_cmp_eq_u32 s27, %d" % (R * SLOT), "s_cselect_b32 s27, 0, s27"]
        tail = ["v_add_u32 v%d, s27, v%d" % (d, s_) for d, s_ in ((vTa[0], bTa[0]), (vF, bF), (vTb[0], bTb[0]), (vFh, bFh))]
        phase(0, rd[:1] + [("x", u) for u in upd] + rd[1:] + [("x", u) for u in tail])
        rd = [("r", t) for t in core.reads(0, 0)]
        tail = ["v_add_u32 v%d, s27, v%d" % (d, s_) for d, s_ in ((vTa[1], bTa[1]), (vTb[1], bTb[1]))] + ["s_add_u32 s33, s33, 1"]
        phase(1, rd + [("x", u) for u in tail])
    a.label("%s_cloop" % name)
    lb = len(a.lines); iteration(); st = copy.deepcopy(trk.out); del a.lines[lb:]; trk.out = copy.deepcopy(st)
    iteration()
    assert [sorted(x) for x in trk.out] == [sorted(x) for x in st]
    a("s_cmp_lt_u32 s33, 9")
    a("s_cbranch_scc1 %s_cloop" % name)
    trk.drain()
    stamp(a, 2)
    MR = 100; T = 72; ZP = 16
    def epi_in():
        gelu_consts(a)
        a("s_lshl_b32 s36, s24, 9")
        a("s_lshl_b32 s37, s25, 8")
        a("s_add_u32 s38, s36, s37")
        a("s_xor_b32 s37, s37, 256")
        a("s_add_u32 s39, s36, s37")
        a("v_lshlrev_b32 v10, 3, v3")
        a("v_add_u32 v11, s38, v10")
        a("ds_read_b64 %s, v11 offset:%d" % (vr(MR, 2), RST))
        a("ds_read_b64 %s, v11 offset:%d" % (vr(MR + 2, 2), RST + 128))
        a("v_add_u32 v11, s39, v10")
        a("ds_read_b64 %s, v11 offset:%d" % (vr(MR + 4, 2), RST))
        a("ds_read_b64 %s, v11 offset:%d" % (vr(MR + 6, 2), RST + 128))
        a("s_waitcnt lgkmcnt(0)")
    S = [108, 110, 52, 54]; Q = [109, 111, 53, 55]
    def gelu_ft(ft, stats):
        tts = range(4 if ft < 4 else 2)
        emit_fold_gelu(a, [(core.accr(ft, tt), CS + 4 * ft, MR + 2 * tt, ZP + 2 * tidx(ft, tt)) for tt in tts], T)
        if stats:
            for d in range(2):
                for tt in tts:
                    p = ZP + 2 * tidx(ft, tt) + d
                    a("v_dot2_f32_bf16 v%d, v%d, v%d, v%d" % (S[tt], p, ONE, S[tt]))
                    a("v_dot2_f32_bf16 v%d, v%d, v%d, v%d" % (Q[tt], p, p, Q[tt]))
    a("s_cmp_eq_u32 s98, 0")
    a("s_cbranch_scc1 %s_A1" % name)
    epi_in()
    a("s_lshl_b32 s36, s22, 4")
    a("s_add_u32 s36, s36, s23")
    a("s_lshl_b32 s36, s36, 2")
    a("s_add_u32 s36, s36, s3")
    a("s_mul_i32 s36, s36, 9216")
    a("s_add_u32 s36, s36, 0x%x" % Z1IMG)
    a("v_lshlrev_b32 v4, 4, v2")
    for ft in range(5):
        gelu_ft(ft, False)
        for q in ((2 * ft, 2 * ft + 1) if ft < 4 else (8,)):
            if q in (4, 8): a("s_add_u32 s36, s36, 4096")
            a("buffer_store_dwordx4 %s, v4, s[12:15], s36 offen offset:%d" % (vr(ZP + 4 * q), (q & 3) * 1024))
    stamp(a, 3)
    G.stamp_rt(a, 1)
    a("s_branch %s_end" % name)
    a.label("%s_A1" % name)
    a("s_setprio 2")
    vmA = VmTracker(a)
    PB = 132
    def aux_head():
        epi_in()
        for tt in range(4):
            a("v_mov_b32 v%d, 0" % S[tt]); a("v_mov_b32 v%d, 0" % Q[tt])
    def aux_pub():
        a("s_nop 2")
        emit_xg_reduce(a, S + Q, 72)
        a("v_lshrrev_b32 v10, 4, v2")
        for g in range(1, 4):
            a("v_cmp_eq_u32 vcc, %d, v10" % g)
            a("s_nop 1")
            a("v_cndmask_b32 v%d, v%d, v%d, vcc" % (S[0], S[0], S[g]))
            a("v_cndmask_b32 v%d, v%d, v%d, vcc" % (Q[0], Q[0], Q[g]))
        a("v_and_b32 v%d, 0x7fffffff, v%d" % (Q[0], Q[0]))
        a("buffer_store_dwordx2 v[%d:%d], v94, s[12:15], s58 offen sc1" % (S[0], Q[0]))
    chunks = [capture(aux_head) + capture(gelu_ft, 0, True), capture(gelu_ft, 1, True), capture(gelu_ft, 2, True),
              capture(gelu_ft, 3, True), capture(gelu_ft, 4, True) + capture(aux_pub)]
    KD = 172
    for k in range(9, 18):
        a("s_barrier")
        if k == 9:
            a("s_cmp_lg_u32 s3, 0")
            a("s_cbranch_scc1 %s_nosig" % name)
            a("v_mov_b32 v10, 1")
            a("s_lshl_b32 s36, s22, 2")
            a("v_mov_b32 v11, s36")
            a("s_mov_b64 exec, 1")
            a("buffer_atomic_add v10, v11, s[60:63], 0 offen sc1")
            a("s_mov_b64 exec, -1")
            a.label("%s_nosig" % name)
        g = k + 3
        dma = capture(lambda: (issueT(g), issueF(g))) if g < 18 else []
        comp = chunks[k - 9] if k - 9 < len(chunks) else []
        interleave(dma, comp)
        if k == 13: vmA.issue("pub", 1)
        if g < 18: vmA.issue("S%d" % g, 9)
        if k == 14:
            a("s_mov_b32 s41, s2")
            emit_kv_loads(a, KD, KD + 12, KD + 20, KD + 24, KD + 25); vmA.issue("kv", 20)
            a("s_lshl_b32 s36, s22, 2")
            a("v_mov_b32 v199, s36")
            a("buffer_load_dword v198, v199, s[60:63], 0 offen sc1"); vmA.issue("cnt", 1)
        if k + 2 < 18 and k + 2 >= 12:
            vmA.wait(["S%d" % (k + 2)])
    stamp(a, 3)
    a("s_setprio 0")
    a("v_lshrrev_b32 v10, 4, v2")
    a("v_lshlrev_b32 v95, 8, v3")
    a("v_lshl_add_u32 v95, v10, 6, v95")
    a("s_lshl_b32 s33, s25, 13")
    a("s_add_u32 s52, s59, s33")
    a("s_xor_b32 s33, s33, 8192")
    a("s_add_u32 s53, s59, s33")
    a("s_add_u32 s42, s52, 4096")
    a("s_add_u32 s43, s53, 4096")
    for r_ in range(36): a("v_mov_b32 v%d, v%d" % (216 + r_, ZP + r_))
    Z2 = 216
    a("s_waitcnt vmcnt(0)")
    GB = [128, 144, 160, 176]
    for n in range(11): a("v_mov_b32 v%d, v%d" % (16 + n, KD + n))
    for n in range(8): a("v_mov_b32 v%d, v%d" % (32 + n, KD + 12 + n))
    for n in range(4): a("v_mov_b32 v%d, v%d" % (44 + n, KD + 20 + n))
    a("v_mov_b32 v56, v%d" % (KD + 24)); a("v_mov_b32 v57, v%d" % (KD + 25))
    a("v_mov_b32 v4, v95")
    def gather():
        for tt in range(4):
            for q in range(4):
                a("buffer_load_dwordx4 %s, v4, s[12:15], s%d offen offset:%d sc1" % (vr(GB[tt] + 4 * q), (52, 42, 53, 43)[tt], 16 * q))
    gather()
    emit_kv_compute(a, wait=False, store=False)
    stamp(a, 4)
    a("s_mov_b32 s40, 0")
    a("s_waitcnt vmcnt(0)")
    a.label("%s_chk" % name)
    a("v_subrev_u32 v11, 16, v198")
    for tt in range(4):
        for r in range(GB[tt] + 1, GB[tt] + 16, 4):
            a("v_or3_b32 v11, v11, v%d, v%d" % (r, r + 2))
    a("v_cmp_gt_i32 vcc, 0, v11")
    a("s_add_u32 s40, s40, 1")
    a("s_cmp_gt_u32 s40, %d" % SPIN_MAX)
    a("s_cbranch_scc1 %s_ok" % name)
    a("s_cbranch_vccz %s_ok" % name)
    a("s_sleep 32")
    a("buffer_load_dword v198, v199, s[60:63], 0 offen sc1")
    a("s_waitcnt vmcnt(0)")
    gather()
    a("s_waitcnt vmcnt(0)")
    a("s_branch %s_chk" % name)
    a.label("%s_ok" % name)
    stamp(a, 5)
    a("v_lshrrev_b32 v5, 4, v2")
    a("v_lshlrev_b32 v5, 12, v5")
    a("v_lshl_add_u32 v5, v3, 4, v5")
    a("s_lshl_b32 s33, s22, 7")
    a("s_lshl_b32 s36, s3, 5")
    a("s_add_u32 s33, s33, s36")
    a("s_lshl_b32 s33, s33, 12")
    a("s_lshl_b32 s36, s23, 8")
    a("s_add_u32 s33, s33, s36")
    for n in range(8):
        a("buffer_load_dwordx4 v[200:203], v5, s[92:95], s33 offen")
        if n < 7: a("s_add_u32 s33, s33, 16384")
    a("s_mov_b32 s39, 0x%x" % KVT)
    a("buffer_store_dwordx4 v[120:123], v12, s[12:15], s39 offen")
    a("buffer_store_dwordx4 v[124:127], v13, s[12:15], s39 offen")
    for tt in range(4):
        b = GB[tt]
        for st_ in (8, 4, 2):
            for q in range(0, st_, 2):
                a("v_pk_add_f32 %s, %s, %s" % (vr(b + q, 2), vr(b + q, 2), vr(b + q + st_, 2)))
    emit_xg_reduce(a, [GB[tt] + e for tt in range(4) for e in range(2)], 72)
    for tt in range(4):
        b = GB[tt]
        emit_ln_finish(a, b, b + 1, 2304, b + 2, MR + 2 * tt, b + 4)
        a("v_mul_f32 v%d, -v%d, v%d" % (MR + 2 * tt + 1, b + 2, MR + 2 * tt))
    a("v_lshrrev_b32 v10, 4, v2")
    a("v_lshrrev_b32 v11, 2, v2"); a("v_and_b32 v11, 1, v11"); a("v_lshlrev_b32 v11, 4, v11")
    a("v_lshrrev_b32 v5, 3, v2"); a("v_and_b32 v5, 1, v5"); a("v_lshl_add_u32 v11, v5, 2, v11")
    a("v_and_b32 v5, 3, v2"); a("v_add_u32 v11, v11, v5")
    a("v_mul_u32_u24 v11, 288, v11")
    a("v_lshrrev_b32 v5, 1, v10"); a("v_lshl_add_u32 v11, v5, 4, v11")
    a("v_and_b32 v5, 1, v10")
    a("v_lshl_add_u32 v6, v5, 5, v11")
    a("v_mul_u32_u24 v5, 2304, v5")
    a("v_add_u32 v9, v11, v5")
    a("s_lshl_b32 s33, s23, 5")
    a("s_lshl_b32 s36, s22, 1")
    a("s_add_u32 s33, s33, s36")
    a("s_add_u32 s33, s33, s24")
    a("s_mul_i32 s33, s33, 18432")
    if ZIMG: a("s_add_u32 s33, s33, 0x%x" % ZIMG)
    a("s_mul_i32 s36, s25, 9216")
    a("s_add_u32 s37, s33, s36")
    a("s_xor_b32 s36, s36, 9216")
    a("s_add_u32 s38, s33, s36")
    a("s_add_u32 s39, s37, 128")
    a("s_mul_i32 s36, s25, 160")
    a("s_add_u32 s37, s37, s36")
    a("s_add_u32 s38, s38, s36")
    def norm_pair(nA, ttA, nB, ttB, O):
        for q, (n, tt) in enumerate(((nA, ttA), (nB, ttB))):
            for d in range(2):
                z = Z2 + 2 * n + d; t = T + 4 * q + 2 * d
                a("v_lshlrev_b32 v%d, 16, v%d" % (t, z))
                a("v_and_b32 v%d, 0xffff0000, v%d" % (t + 1, z))
        for q, (n, tt) in enumerate(((nA, ttA), (nB, ttB))):
            for d in range(2):
                t = T + 4 * q + 2 * d
                a("v_pk_fma_f32 %s, %s, %s, %s op_sel:[0,0,1] op_sel_hi:[1,0,1]" % (vr(t, 2), vr(t, 2), vr(MR + 2 * tt, 2), vr(MR + 2 * tt, 2)))
        for q in range(2):
            for d in range(2):
                t = T + 4 * q + 2 * d
                a("v_cvt_pk_bf16_f32 v%d, v%d, v%d" % (O + 2 * q + d, t, t + 1))
        a("s_nop 1")
        a("v_permlane16_swap_b32 v%d, v%d" % (O, O + 2))
        a("v_permlane16_swap_b32 v%d, v%d" % (O + 1, O + 3))
    cnt = 0
    for pr in range(2):
        for tt in range(4):
            O = 16 + 4 * cnt; cnt += 1
            norm_pair(tidx(2 * pr, tt), tt, tidx(2 * pr + 1, tt), tt, O)
            a("s_nop 0")
            a("buffer_store_dwordx4 %s, v6, s[12:15], s%d offen offset:%d" % (vr(O), 37 if tt < 2 else 38, (tt & 1) * 2304 + 64 * pr))
    O = 16 + 4 * cnt
    norm_pair(16, 0, 17, 1, O)
    a("s_nop 0")
    a("buffer_store_dwordx4 %s, v9, s[12:15], s39 offen" % vr(O))
    stamp(a, 6)
    a("s_cmp_ge_u32 s2, 32")
    a("s_cbranch_scc1 %s_fin" % name)
    a("s_add_u32 s41, s2, 256")
    emit_kv_loads(a)
    emit_kv_compute(a)
    a.label("%s_fin" % name)
    stamp(a, 7)
    G.stamp_rt(a, 1)
    a.label("%s_end" % name)
    a("s_endpgm")
    return a.text(), kernel_desc(name, 256, 256), (name, 256, 512, LDSB)

def gen_kf(name="k1_kernel", R=4):
    a = Asm()
    RB = 4096; SLOT = 34816; TREG = 16384; FS = 288; RST = 0
    LDSB = RB + R * SLOT
    LC = 2048
    ZFLG = 0x2D00000
    from gen3 import emit_conv_loads, emit_conv_job, CJ_SIZE
    def capture(f, *args):
        lb = len(a.lines); f(*args); out = a.lines[lb:]; del a.lines[lb:]; return out
    kernel_begin(a, name)
    a("s_load_dwordx2 s[80:81], s[0:1], 0")
    a("s_load_dwordx2 s[4:5], s[0:1], 56")
    a("s_load_dwordx2 s[6:7], s[0:1], 104")
    a("s_load_dwordx2 s[18:19], s[0:1], 96")
    a("s_cmp_ge_u32 s2, 256")
    a("s_cbranch_scc1 %s_end" % name)
    a("v_lshrrev_b32 v1, 6, v0")
    a("v_and_b32 v2, 63, v0")
    a("v_readfirstlane_b32 s3, v1")
    G2.tile_ij(a)
    a("s_lshr_b32 s98, s3, 2")
    a("s_mov_b32 s54x, 0".replace("s54x", "s99"))
    a("s_and_b32 s3, s3, 3")
    a("s_lshr_b32 s24, s3, 1")
    a("s_and_b32 s25, s3, 1")
    a("v_and_b32 v3, 15, v2")
    VT = 204; VF = 208
    def loader_setup():
        a("v_lshrrev_b32 v5, 3, v2")
        a("v_and_b32 v4, 7, v2")
        a("s_lshl_b32 s36, s3, 5")
        a("v_add_u32 v5, s36, v5")
        a("v_lshrrev_b32 v7, 4, v2")
        a("v_xor_b32 v7, v7, v4")
        a("v_mul_u32_u24 v6, 1152, v5")
        a("v_lshl_add_u32 v%d, v7, 4, v6" % VT)
        a("v_xor_b32 v%d, 64, v%d" % (VT + 1, VT))
        a("v_add_u32 v%d, %d, v%d" % (VT + 1, 9216 - 1024, VT + 1))
        a("v_add_u32 v%d, %d, v%d" % (VT + 2, 2 * (9216 - 1024), VT))
        a("v_add_u32 v%d, %d, v%d" % (VT + 3, 2 * (9216 - 1024), VT + 1))
        a("s_lshl_b32 s84, s3, 12")
        a("s_add_u32 s84, s84, %d" % RB)
        a("s_lshl_b32 s85, s3, 9")
        a("s_add_u32 s85, s85, %d" % (RB + TREG + 16384))
    def loader_setup2():
        for n in range(5):
            if n < 4:
                a("s_lshl_b32 s36, s3, 8")
                a("s_add_u32 s36, s36, %d" % (64 * n))
            else:
                a("s_lshl_b32 s36, s3, 5")
                a("s_add_u32 s36, s36, 1024")
            a("v_add_u32 v6, s36, v2")
            a("v_mul_u32_u24 v7, 3641, v6")
            a("v_lshrrev_b32 v7, 16, v7")
            a("v_mul_u32_u24 v8, 18, v7")
            a("v_sub_u32 v8, v6, v8")
            a("v_and_b32 v9, 35, v7")
            a("v_bfe_u32 v6, v7, 2, 2")
            a("v_lshl_add_u32 v9, v6, 3, v9")
            a("v_bfe_u32 v6, v7, 4, 1")
            a("v_lshl_add_u32 v9, v6, 2, v9")
            a("v_mul_u32_u24 v9, 9216, v9")
            a("v_lshl_add_u32 v%d, v8, 4, v9" % (VF + n))
            if 0 < n < 4: a("v_subrev_u32 v%d, %d, v%d" % (VF + n, 1024 * n, VF + n))
    def issueT(g):
        st = g % 9
        a("s_add_u32 s86, s84, %d" % ((g % R) * SLOT))
        a("s_mov_b32 m0, s86")
        a("s_add_u32 s87, s82, %d" % (128 * st))
        for n in range(4):
            a("buffer_load_dwordx4 v%d, s[28:31], s87 offen offset:%d lds" % (VT + n, 1024 * n))
    def issueF(g):
        st = g % 9
        a("s_add_u32 s86, s84, %d" % ((g % R) * SLOT + TREG))
        a("s_mov_b32 m0, s86")
        a("s_add_u32 s87, s83, %d" % (64 * 9216 * st + (4608 if g < 9 else 0)))
        for n in range(4):
            a("buffer_load_dwordx4 v%d, s[8:11], s87 offen offset:%d lds" % (VF + n, 1024 * n))
        a("s_add_u32 s86, s85, %d" % ((g % R) * SLOT))
        a("s_mov_b32 m0, s86")
        a("s_mov_b64 exec, 0xffffffff")
        a("buffer_load_dwordx4 v%d, s[8:11], s87 offen lds" % (VF + 4))
        a("s_mov_b64 exec, -1")
    def srds_main():
        srd(a, 28, 80, 2048 * 576 * 2)
        srd(a, 8, 4, 576 * 4608 * 2)
        srd(a, 12, 6, WS_BYTES)
        srd(a, 60, 18, 256)
        a("s_mul_i32 s82, s22, %d" % (128 * 1152))
        a("s_mul_i32 s83, s23, 288")
    ACC = 128; FB = [16, 52]; CS = 216; ONE = 236
    vTa = [4, 5]; vTb = [6, 7]; vF = 8; vFh = 9
    bTa = [88, 89]; bTb = [90, 91]; bF = 92; bFh = 93
    def mma_setup():
        a("v_lshrrev_b32 v10, 4, v2")
        a("v_lshrrev_b32 v11, 1, v3")
        a("v_xor_b32 v10, v10, v11")
        a("v_lshlrev_b32 v10, 4, v10")
        a("v_lshl_add_u32 v10, v3, 7, v10")
        a("s_lshl_b32 s26, s24, 13")
        a("s_add_u32 s26, s26, %d" % RB)
        a("v_add_u32 v10, s26, v10")
        a("s_lshl_b32 s26, s25, 12")
        a("v_add_u32 v%d, s26, v10" % bTa[0])
        a("s_xor_b32 s26, s26, 4096")
        a("v_add_u32 v%d, s26, v10" % bTb[0])
        a("v_xor_b32 v%d, 64, v%d" % (bTa[1], bTa[0]))
        a("v_xor_b32 v%d, 64, v%d" % (bTb[1], bTb[0]))
        a("v_lshrrev_b32 v10, 2, v2")
        a("v_mul_u32_u24 v10, %d, v10" % FS)
        a("v_and_b32 v11, 3, v2")
        a("v_lshl_add_u32 v10, v11, 3, v10")
        a("v_add_u32 v10, %d, v10" % (RB + TREG))
        a("s_mul_i32 s26, s25, 160")
        a("v_add_u32 v%d, s26, v10" % bF)
        a("v_add_u32 v%d, 128, v10" % bFh)
        for r in range(ACC, ACC + 72): a("v_mov_b32 v%d, 0" % r)
        for r in range(CS, CS + 20): a("v_mov_b32 v%d, 0" % r)
        for r in range(ONE, ONE + 4): a("v_mov_b32 v%d, 0x3f803f80" % r)
    def mma_addr(slot):
        a("s_mov_b32 s27, %d" % (slot * SLOT))
        for d, s_ in ((vTa[0], bTa[0]), (vTb[0], bTb[0]), (vTa[1], bTa[1]), (vTb[1], bTb[1]), (vF, bF), (vFh, bFh)):
            a("v_add_u32 v%d, s27, v%d" % (d, s_))
    core = G.Core(a, ACC, FB[0], FB[1], FS, TREG, vTa, vTb, vF, vFh)
    trk = core.trk
    a("s_cmp_eq_u32 s98, 0")
    a("s_cbranch_scc1 %s_A0" % name)
    a("s_setprio 3")
    loader_setup()
    a("s_waitcnt lgkmcnt(0)")
    srds_main()
    vm = VmTracker(a)
    def issue(g, vmx):
        issueT(g); issueF(g); vmx.issue("S%d" % g, 9)
    issueT(0)
    loader_setup2()
    issueF(0); vm.issue("S0", 9)
    issue(1, vm); issue(2, vm); issue(3, vm)
    a("s_add_u32 s3, s3, 4"); stamp_setup(a, 1); stamp(a, 0); a("s_sub_u32 s3, s3, 4")
    mma_setup()
    RA = 96; XB = 112
    for r in range(RA, RA + 16): a("v_mov_b32 v%d, 0" % r)
    a("v_lshrrev_b32 v10, 4, v2")
    a("v_lshrrev_b32 v11, 1, v3")
    a("v_xor_b32 v10, v10, v11")
    a("v_lshlrev_b32 v10, 4, v10")
    a("v_lshl_add_u32 v10, v3, 7, v10")
    a("v_add_u32 v12, s84, v10")
    a("v_xor_b32 v13, 64, v12")
    def rs_rd(g):
        a("v_add_u32 v10, %d, v12" % ((g % R) * SLOT))
        a("v_add_u32 v11, %d, v13" % ((g % R) * SLOT))
        for h in range(2):
            for n in range(2):
                a("ds_read_b128 %s, v%d offset:%d" % (vr(XB + 8 * h + 4 * n), 10 + h, 2048 * n))
    def rs_do():
        for h in range(2):
            for n in range(2):
                x = XB + 8 * h + 4 * n
                a("v_mfma_f32_16x16x32_bf16 %s, %s, %s, %s" % (vr(RA + 4 * n), vr(ONE), vr(x), vr(RA + 4 * n)))
                a("v_mfma_f32_16x16x32_bf16 %s, %s, %s, %s" % (vr(RA + 8 + 4 * n), vr(x), vr(x), vr(RA + 8 + 4 * n)))
    def interleave(dma, comp, vmx=None):
        groups = []; cur = []
        for l in dma:
            cur.append(l)
            if "buffer_load" in l and not any("exec, 0xffffffff" in x for x in cur[-2:]):
                groups.append(cur); cur = []
            elif "exec, -1" in l:
                groups.append(cur); cur = []
        if cur: groups.append(cur)
        ns = max(1, len(groups))
        per = (len(comp) + ns - 1) // ns
        for g in groups:
            a.lines.extend(g)
            a.lines.extend(comp[:per]); comp = comp[per:]
        a.lines.extend(comp)
    vm.wait(["S0"])
    a("s_barrier")
    stamp(a, 1)
    rs_rd(0)
    vm.wait(["S1"])
    a("s_barrier")
    for k in range(9):
        a("s_waitcnt lgkmcnt(0)")
        dma = capture(lambda: (issueT(k + 3), issueF(k + 3))) if k >= 1 else []
        interleave(dma, capture(rs_do))
        if k >= 1: vm.issue("S%d" % (k + 3), 9)
        if k < 8:
            rs_rd(k + 1)
        else:
            a("s_nop 7")
            a("v_lshrrev_b32 v10, 4, v2")
            a("v_lshrrev_b32 v11, 2, v3")
            a("v_and_b32 v12, 3, v3")
            for n in range(2):
                G_ = RA + 8 + 4 * n
                for r in range(1, 4):
                    a("v_cmp_eq_u32 vcc, %d, v12" % r)
                    a("s_nop 1")
                    a("v_cndmask_b32 v%d, v%d, v%d, vcc" % (G_, G_, G_ + r))
            ML = 112
            for n in range(2):
                emit_ln_finish(a, RA + 4 * n, RA + 8 + 4 * n, 576, ML + 2 * n, ML + 2 * n + 1, 120)
                a("v_mov_b32 v%d, v%d" % (117 + 2 * n, ML + 2 * n + 1))
                a("v_sub_f32 v%d, 0, v%d" % (116 + 2 * n, ML + 2 * n))
            a("s_lshl_b32 s35, s3, 8")
            a("v_lshlrev_b32 v13, 3, v3")
            a("v_add_u32 v12, s35, v13")
            a("v_cmp_eq_u32 vcc, v10, v11")
            a("s_and_saveexec_b64 s[36:37], vcc")
            for n in range(2):
                a("ds_write_b64 v12, %s offset:%d" % (vr(116 + 2 * n, 2), RST + 128 * n))
            a("s_mov_b64 exec, s[36:37]")
            a("s_cmp_lg_u32 s23, 0")
            a("s_cbranch_scc1 %s_nost1" % name)
            a("s_lshl_b32 s35, s22, 7")
            a("s_lshl_b32 s36, s3, 5")
            a("s_add_u32 s35, s35, s36")
            a("s_lshl_b32 s35, s35, 3")
            a("s_add_u32 s35, s35, 0x%x" % STATS1)
            a("v_mov_b32 v11, 0x7ffffff0")
            a("v_cndmask_b32 v13, v11, v13, vcc")
            for n in range(2):
                a("buffer_store_dwordx2 %s, v13, s[12:15], s35 offen offset:%d" % (vr(ML + 2 * n, 2), 128 * n))
            a.label("%s_nost1" % name)
            mma_addr(9 % R)
            a("s_mov_b32 s33, 0")
            a("s_setprio 0")
        vm.wait(["S%d" % (k + 2)], "lgkmcnt(0)" if k == 8 else "")
        if k < 8: a("s_barrier")
    a("s_branch %s_mma" % name)
    a.label("%s_A0" % name)
    emit_code_prefetch(a, name)
    a("s_load_dwordx4 s[64:67], s[0:1], 8")
    a("s_load_dwordx2 s[76:77], s[0:1], 24")
    a("s_load_dwordx2 s[78:79], s[0:1], 64")
    mma_setup()
    loader_setup(); loader_setup2()
    a("s_waitcnt lgkmcnt(0)")
    srds_main()
    srd(a, 68, 66, 2048 * 576 * 2)
    a("s_mov_b32 s88, s64"); a("s_mov_b32 s89, s65")
    srd(a, 64, 88, 2048 * 576 * 2)
    srd(a, 72, 76, 576 * 8)
    stamp_setup(a, 1); stamp(a, 0)
    def gran_addr():
        a("v_lshrrev_b32 v10, 4, v2")
        a("s_lshl_b32 s36, s25, 1")
        a("v_add_u32 v11, s36, v10")
        a("v_and_b32 v11, 3, v11")
        a("v_lshl_add_u32 v11, v11, 4, v3")
        a("v_lshlrev_b32 v94, 8, v11")
        a("s_lshl_b32 s59, s22, 7")
        a("s_lshl_b32 s36, s24, 6")
        a("s_add_u32 s59, s59, s36")
        a("s_lshl_b32 s59, s59, 8")
        a("s_add_u32 s59, s59, 0x%x" % STATS2)
        a("s_lshl_b32 s36, s23, 1")
        a("s_add_u32 s36, s36, s25")
        a("s_lshl_b32 s36, s36, 3")
        a("s_add_u32 s58, s36, s59")
    gran_addr()
    a("v_mov_b32 v12, 0"); a("v_mov_b32 v13, 0x80000000")
    a("buffer_store_dwordx2 v[12:13], v94, s[12:15], s58 offen sc1")
    a("s_lshl_b32 s36, s22, 4")
    a("s_add_u32 s36, s36, s23")
    a("s_lshl_b32 s36, s36, 8")
    a("s_add_u32 s97, s36, 0x%x" % ZFLG)
    a("v_mov_b32 v10, %d" % LC)
    a("v_mov_b32 v12, 0"); a("v_mov_b32 v13, 0")
    a("s_mov_b64 exec, 1")
    a("buffer_store_dword v12, v12, s[12:15], s97 offen sc1")
    a("s_mov_b64 exec, -1")
    a("ds_write_b64 v10, v[12:13]")
    a("ds_write_b64 v10, v[12:13] offset:8")
    mma_addr(0)
    a("s_mov_b32 s33, 0")
    a("s_waitcnt lgkmcnt(0)")
    a("s_barrier")
    stamp(a, 1)
    a.label("%s_mma" % name)
    core.prime(0, core.reads(0, 0))
    trk.drain()
    nocs = [False]
    def mfmas(buf):
        L = []
        for ft in range(5):
            A = core.F(buf, ft)
            for tt in range(4 if ft < 4 else 2):
                c = core.accr(ft, tt); B = core.T(buf, tt)
                L.append(("v_mfma_f32_16x16x32_bf16 %s, %s, %s, %s" % (vr(c), vr(A), vr(B), vr(c)), list(range(A, A + 4)) + list(range(B, B + 4))))
            if not nocs[0]: L.append(("v_mfma_f32_16x16x32_bf16 %s, %s, %s, %s" % (vr(CS + 4 * ft), vr(A), vr(ONE), vr(CS + 4 * ft)), list(range(A, A + 4))))
        return L
    def phase(buf, pend):
        for (m, regs) in mfmas(buf):
            trk.need(regs)
            a(m)
            while pend:
                k, t = pend.pop(0)
                if k == "x":
                    a(t)
                    if t.startswith("s_"): continue
                else:
                    a(t[0]); trk.issue(t[1])
                break
        for k, t in pend:
            if k == "x": a(t)
            else: a(t[0]); trk.issue(t[1])
    def iteration(vw=True):
        if vw: a("s_waitcnt vmcnt(0)")
        a("s_barrier")
        rd = [("r", t) for t in core.reads(1, 1)]
        upd = ["s_add_u32 s27, s27, %d" % SLOT, "s_cmp_eq_u32 s27, %d" % (R * SLOT), "s_cselect_b32 s27, 0, s27"]
        tail = ["v_add_u32 v%d, s27, v%d" % (d, s_) for d, s_ in ((vTa[0], bTa[0]), (vF, bF), (vTb[0], bTb[0]), (vFh, bFh))]
        phase(0, rd[:1] + [("x", u) for u in upd] + rd[1:] + [("x", u) for u in tail])
        rd = [("r", t) for t in core.reads(0, 0)]
        tail = ["v_add_u32 v%d, s27, v%d" % (d, s_) for d, s_ in ((vTa[1], bTa[1]), (vTb[1], bTb[1]))] + ["s_add_u32 s33, s33, 1"]
        phase(1, rd + [("x", u) for u in tail])
    a.label("%s_cloop" % name)
    lb = len(a.lines); iteration(); st = copy.deepcopy(trk.out); del a.lines[lb:]; trk.out = copy.deepcopy(st)
    iteration()
    assert [sorted(x) for x in trk.out] == [sorted(x) for x in st]
    a("s_cmp_lt_u32 s33, 9")
    a("s_cbranch_scc1 %s_cloop" % name)
    trk.drain()
    stamp(a, 2)
    MR = 100; T = 72; ZP = 16
    def epi_in():
        gelu_consts(a)
        a("s_lshl_b32 s36, s24, 9")
        a("s_lshl_b32 s37, s25, 8")
        a("s_add_u32 s38, s36, s37")
        a("s_xor_b32 s37, s37, 256")
        a("s_add_u32 s39, s36, s37")
        a("v_lshlrev_b32 v10, 3, v3")
        a("v_add_u32 v11, s38, v10")
        a("ds_read_b64 %s, v11 offset:%d" % (vr(MR, 2), RST))
        a("ds_read_b64 %s, v11 offset:%d" % (vr(MR + 2, 2), RST + 128))
        a("v_add_u32 v11, s39, v10")
        a("ds_read_b64 %s, v11 offset:%d" % (vr(MR + 4, 2), RST))
        a("ds_read_b64 %s, v11 offset:%d" % (vr(MR + 6, 2), RST + 128))
        a("s_waitcnt lgkmcnt(0)")
    S = [108, 110, 52, 54]; Q = [109, 111, 53, 55]
    def gelu_ft(ft, stats):
        tts = range(4 if ft < 4 else 2)
        emit_fold_gelu(a, [(core.accr(ft, tt), CS + 4 * ft, MR + 2 * tt, ZP + 2 * tidx(ft, tt)) for tt in tts], T)
        if stats:
            for d in range(2):
                for tt in tts:
                    p = ZP + 2 * tidx(ft, tt) + d
                    a("v_dot2_f32_bf16 v%d, v%d, v%d, v%d" % (S[tt], p, ONE, S[tt]))
                    a("v_dot2_f32_bf16 v%d, v%d, v%d, v%d" % (Q[tt], p, p, Q[tt]))
    a("s_cmp_eq_u32 s98, 0")
    a("s_cbranch_scc1 %s_A1" % name)
    a("s_barrier")
    a("s_load_dwordx4 s[64:67], s[0:1], 8")
    a("s_load_dwordx2 s[76:77], s[0:1], 24")
    a("s_load_dwordx2 s[94:95], s[0:1], 80")
    a("s_load_dwordx2 s[92:93], s[0:1], 72")
    epi_in()
    srd(a, 68, 66, 2048 * 576 * 2)
    a("s_mov_b32 s88, s64"); a("s_mov_b32 s89, s65")
    srd(a, 64, 88, 2048 * 576 * 2)
    srd(a, 72, 76, 576 * 8)
    srd(a, 76, 94, 2304 * 576 * 2)
    srd(a, 28, 92, 2048 * 2)
    a("v_and_b32 v0, 255, v0")
    a("s_mov_b32 s41, s2")
    KDB = 240
    emit_kv_loads(a, 112, 240, 248, 252, 253)
    for ft in range(5): gelu_ft(ft, False)
    Z1R = 200; BI = 236
    for r_ in range(36): a("v_mov_b32 v%d, v%d" % (Z1R + r_, ZP + r_))
    stamp(a, 3)
    a("s_waitcnt vmcnt(0)")
    for n in range(11): a("v_mov_b32 v%d, v%d" % (16 + n, 112 + n))
    for n in range(8): a("v_mov_b32 v%d, v%d" % (32 + n, 240 + n))
    for n in range(4): a("v_mov_b32 v%d, v%d" % (44 + n, 248 + n))
    a("v_mov_b32 v56, v252"); a("v_mov_b32 v57, v253")
    for r_ in range(6): a("v_mov_b32 v%d, v%d" % (240 + r_, 88 + r_))
    a.label("%s_kvb" % name)
    emit_kv_compute(a, wait=False, store=False)
    a("s_mov_b32 s39, 0x%x" % KVT)
    a("buffer_store_dwordx4 v[120:123], v12, s[12:15], s39 offen sc1")
    a("buffer_store_dwordx4 v[124:127], v13, s[12:15], s39 offen sc1")
    a("s_add_u32 s41, s41, 256")
    a("s_cmp_ge_u32 s41, 288")
    a("s_cbranch_scc1 %s_kvbd" % name)
    emit_kv_loads(a)
    a("s_waitcnt vmcnt(0)")
    a("s_branch %s_kvb" % name)
    a.label("%s_kvbd" % name)
    for r_ in range(6): a("v_mov_b32 v%d, v%d" % (88 + r_, 240 + r_))
    a("s_mov_b32 s42, s2")
    emit_wot_loads(a, 100, 112, 720, 3)
    a("s_lshl_b32 s36, s22, 7")
    a("s_lshl_b32 s37, s24, 6")
    a("s_add_u32 s36, s36, s37")
    a("v_lshlrev_b32 v11, 1, v3")
    a("s_lshl_b32 s37, s25, 6")
    a("s_lshl_b32 s38, s36, 1")
    a("s_add_u32 s39, s38, s37")
    a("s_xor_b32 s37, s37, 64")
    a("s_add_u32 s36, s38, s37")
    a("buffer_load_ushort v96, v11, s[28:31], s39 offen")
    a("buffer_load_ushort v97, v11, s[28:31], s39 offen offset:32")
    a("buffer_load_ushort v98, v11, s[28:31], s36 offen")
    a("buffer_load_ushort v99, v11, s[28:31], s36 offen offset:32")
    for r in range(ACC, ACC + 72): a("v_mov_b32 v%d, 0" % r)
    mma_addr(0)
    a("s_mov_b32 s33, 0")
    stamp(a, 4)
    a("s_barrier")
    stamp(a, 5)
    core.prime(0, core.reads(0, 0))
    trk.drain()
    nocs[0] = True
    a.label("%s_gloop" % name)
    lb = len(a.lines); iteration(False); st = copy.deepcopy(trk.out); del a.lines[lb:]; trk.out = copy.deepcopy(st)
    iteration(False)
    assert [sorted(x) for x in trk.out] == [sorted(x) for x in st]
    a("s_cmp_lg_u32 s33, 3")
    a("s_cbranch_scc1 %s_ghk" % name)
    a("s_waitcnt vmcnt(0)")
    for n in range(3):
        a("buffer_store_dwordx4 %s, v%d, s[12:15], s40 offen" % (vr(100 + 4 * n), 112 + n))
    for tt in range(4): a("v_lshlrev_b32 v%d, 16, v%d" % (BI + 2 * tt, 96 + tt))
    a("v_mov_b32 v10, %d" % (LC + 8))
    a("v_mov_b32 v11, 1")
    a("s_mov_b64 exec, 1")
    a("ds_add_rtn_u32 v12, v10, v11")
    a("s_waitcnt lgkmcnt(0)")
    a("v_readfirstlane_b32 s36, v12")
    a("s_cmp_lg_u32 s36, 3")
    a("s_cbranch_scc1 %s_nokvs" % name)
    a("s_and_b32 s36, s2, 15")
    a("s_lshl_b32 s36, s36, 2")
    a("s_add_u32 s36, s36, 128")
    a("v_mov_b32 v10, s36")
    a("buffer_atomic_add v11, v10, s[60:63], 0 offen sc1")
    a.label("%s_nokvs" % name)
    a("s_mov_b64 exec, -1")
    a.label("%s_ghk" % name)
    a("s_cmp_lt_u32 s33, 32")
    a("s_cbranch_scc1 %s_gloop" % name)
    trk.drain()
    stamp(a, 6)
    G3.emit_k2_epilogue(a, core, Z1R, BI)
    stamp(a, 7)
    G.stamp_rt(a, 1)
    a("s_branch %s_end" % name)
    a.label("%s_A1" % name)
    a("s_setprio 2")
    vmA = VmTracker(a)
    PB = 132
    def aux_head():
        epi_in()
        for tt in range(4):
            a("v_mov_b32 v%d, 0" % S[tt]); a("v_mov_b32 v%d, 0" % Q[tt])
    def aux_pub():
        a("s_nop 2")
        emit_xg_reduce(a, S + Q, 72)
        a("v_lshrrev_b32 v10, 4, v2")
        for g in range(1, 4):
            a("v_cmp_eq_u32 vcc, %d, v10" % g)
            a("s_nop 1")
            a("v_cndmask_b32 v%d, v%d, v%d, vcc" % (S[0], S[0], S[g]))
            a("v_cndmask_b32 v%d, v%d, v%d, vcc" % (Q[0], Q[0], Q[g]))
        a("v_and_b32 v%d, 0x7fffffff, v%d" % (Q[0], Q[0]))
        a("buffer_store_dwordx2 v[%d:%d], v94, s[12:15], s58 offen sc1" % (S[0], Q[0]))
    chunks = [capture(aux_head) + capture(gelu_ft, 0, True), capture(gelu_ft, 1, True), capture(gelu_ft, 2, True),
              capture(gelu_ft, 3, True), capture(gelu_ft, 4, True) + capture(aux_pub)]
    KD = 172
    for k in range(9, 18):
        a("s_barrier")
        if k == 9:
            a("s_cmp_lg_u32 s3, 0")
            a("s_cbranch_scc1 %s_nosig" % name)
            a("v_mov_b32 v10, 1")
            a("s_lshl_b32 s36, s22, 2")
            a("v_mov_b32 v11, s36")
            a("s_mov_b64 exec, 1")
            a("buffer_atomic_add v10, v11, s[60:63], 0 offen sc1")
            a("s_mov_b64 exec, -1")
            a.label("%s_nosig" % name)
        g = k + 3
        dma = capture(lambda: (issueT(g), issueF(g))) if g < 18 else []
        comp = chunks[k - 9] if k - 9 < len(chunks) else []
        interleave(dma, comp)
        if k == 13: vmA.issue("pub", 1)
        if g < 18: vmA.issue("S%d" % g, 9)
        if k == 14:
            srd(a, 92, 78, 2048 * 2048 * 2)
            a("v_lshrrev_b32 v10, 4, v2")
            a("v_lshlrev_b32 v10, 12, v10")
            a("v_lshl_add_u32 v10, v3, 4, v10")
            a("s_lshl_b32 s40, s22, 7")
            a("s_lshl_b32 s36, s3, 5")
            a("s_add_u32 s40, s40, s36")
            a("s_lshl_b32 s40, s40, 12")
            a("s_lshl_b32 s36, s23, 8")
            a("s_add_u32 s40, s40, s36")
            for n in range(8):
                a("buffer_load_dwordx4 v[200:203], v10, s[92:95], s40 offen")
                if n < 7: a("s_add_u32 s40, s40, 16384")
            vmA.issue("wp", 8)
            a("s_lshl_b32 s36, s22, 2")
            a("v_mov_b32 v199, s36")
            a("buffer_load_dword v198, v199, s[60:63], 0 offen sc1"); vmA.issue("cnt", 1)
        if k + 2 < 18 and k + 2 >= 12:
            vmA.wait(["S%d" % (k + 2)])
    a("s_barrier")
    stamp(a, 3)
    a("s_load_dwordx4 s[88:91], s[0:1], 32")
    a("v_lshrrev_b32 v10, 4, v2")
    a("v_lshlrev_b32 v95, 8, v3")
    a("v_lshl_add_u32 v95, v10, 6, v95")
    a("s_lshl_b32 s33, s25, 13")
    a("s_add_u32 s52, s59, s33")
    a("s_xor_b32 s33, s33, 8192")
    a("s_add_u32 s53, s59, s33")
    a("s_add_u32 s42, s52, 4096")
    a("s_add_u32 s43, s53, 4096")
    Z2 = ZP
    a("s_waitcnt vmcnt(0)")
    GB = [128, 144, 160, 176]
    a("v_mov_b32 v4, v95")
    def gather():
        for tt in range(4):
            for q in range(4):
                a("buffer_load_dwordx4 %s, v4, s[12:15], s%d offen offset:%d sc1" % (vr(GB[tt] + 4 * q), (52, 42, 53, 43)[tt], 16 * q))
    gather()
    a("s_mov_b32 s40, 0")
    a("s_waitcnt vmcnt(0)")
    a.label("%s_chk" % name)
    a("v_subrev_u32 v11, 16, v198")
    for tt in range(4):
        for r in range(GB[tt] + 1, GB[tt] + 16, 4):
            a("v_or3_b32 v11, v11, v%d, v%d" % (r, r + 2))
    a("v_cmp_gt_i32 vcc, 0, v11")
    a("s_add_u32 s40, s40, 1")
    a("s_cmp_gt_u32 s40, %d" % SPIN_MAX)
    a("s_cbranch_scc1 %s_ok" % name)
    a("s_cbranch_vccz %s_ok" % name)
    a("s_sleep 32")
    a("buffer_load_dword v198, v199, s[60:63], 0 offen sc1")
    a("s_waitcnt vmcnt(0)")
    gather()
    a("s_waitcnt vmcnt(0)")
    a("s_branch %s_chk" % name)
    a.label("%s_ok" % name)
    stamp(a, 5)
    for tt in range(4):
        b = GB[tt]
        for st_ in (8, 4, 2):
            for q in range(0, st_, 2):
                a("v_pk_add_f32 %s, %s, %s" % (vr(b + q, 2), vr(b + q, 2), vr(b + q + st_, 2)))
    emit_xg_reduce(a, [GB[tt] + e for tt in range(4) for e in range(2)], 72)
    for tt in range(4):
        b = GB[tt]
        emit_ln_finish(a, b, b + 1, 2304, b + 2, MR + 2 * tt, b + 4)
        a("v_mul_f32 v%d, -v%d, v%d" % (MR + 2 * tt + 1, b + 2, MR + 2 * tt))
    a("v_lshrrev_b32 v10, 4, v2")
    a("v_lshrrev_b32 v11, 2, v2"); a("v_and_b32 v11, 1, v11"); a("v_lshlrev_b32 v11, 4, v11")
    a("v_lshrrev_b32 v5, 3, v2"); a("v_and_b32 v5, 1, v5"); a("v_lshl_add_u32 v11, v5, 2, v11")
    a("v_and_b32 v5, 3, v2"); a("v_add_u32 v11, v11, v5")
    a("v_mul_u32_u24 v11, 288, v11")
    a("v_lshrrev_b32 v5, 1, v10"); a("v_lshl_add_u32 v11, v5, 4, v11")
    a("v_and_b32 v5, 1, v10")
    a("v_lshl_add_u32 v6, v5, 5, v11")
    a("v_mul_u32_u24 v5, 2304, v5")
    a("v_add_u32 v9, v11, v5")
    a("s_lshl_b32 s33, s23, 5")
    a("s_lshl_b32 s36, s22, 1")
    a("s_add_u32 s33, s33, s36")
    a("s_add_u32 s33, s33, s24")
    a("s_mul_i32 s33, s33, 18432")
    if ZIMG: a("s_add_u32 s33, s33, 0x%x" % ZIMG)
    a("s_mul_i32 s36, s25, 9216")
    a("s_add_u32 s37, s33, s36")
    a("s_xor_b32 s36, s36, 9216")
    a("s_add_u32 s38, s33, s36")
    a("s_add_u32 s39, s37, 128")
    a("s_mul_i32 s36, s25, 160")
    a("s_add_u32 s37, s37, s36")
    a("s_add_u32 s38, s38, s36")
    def norm_pair(nA, ttA, nB, ttB, O):
        for q, (n, tt) in enumerate(((nA, ttA), (nB, ttB))):
            for d in range(2):
                z = Z2 + 2 * n + d; t = T + 4 * q + 2 * d
                a("v_lshlrev_b32 v%d, 16, v%d" % (t, z))
                a("v_and_b32 v%d, 0xffff0000, v%d" % (t + 1, z))
        for q, (n, tt) in enumerate(((nA, ttA), (nB, ttB))):
            for d in range(2):
                t = T + 4 * q + 2 * d
                a("v_pk_fma_f32 %s, %s, %s, %s op_sel:[0,0,1] op_sel_hi:[1,0,1]" % (vr(t, 2), vr(t, 2), vr(MR + 2 * tt, 2), vr(MR + 2 * tt, 2)))
        for q in range(2):
            for d in range(2):
                t = T + 4 * q + 2 * d
                a("v_cvt_pk_bf16_f32 v%d, v%d, v%d" % (O + 2 * q + d, t, t + 1))
        a("s_nop 1")
        a("v_permlane16_swap_b32 v%d, v%d" % (O, O + 2))
        a("v_permlane16_swap_b32 v%d, v%d" % (O + 1, O + 3))
    cnt = 0
    for pr in range(2):
        for tt in range(4):
            O = 200 + 4 * cnt; cnt += 1
            norm_pair(tidx(2 * pr, tt), tt, tidx(2 * pr + 1, tt), tt, O)
            a("s_nop 0")
            a("buffer_store_dwordx4 %s, v6, s[12:15], s%d offen offset:%d" % (vr(O), 37 if tt < 2 else 38, (tt & 1) * 2304 + 64 * pr) + " sc1")
    O = 200 + 4 * cnt
    norm_pair(16, 0, 17, 1, O)
    a("s_nop 0")
    a("buffer_store_dwordx4 %s, v9, s[12:15], s39 offen sc1" % vr(O))
    stamp(a, 6)
    a("s_setprio 3")
    srd(a, 8, 78, 2048 * 2048 * 2)
    a("v_lshrrev_b32 v3, 3, v2")
    a("s_lshl_b32 s24, s3, 5")
    a("v_add_u32 v3, s24, v3")
    a("v_and_b32 v4, 7, v2")
    a("v_lshrrev_b32 v6, 4, v2")
    a("v_xor_b32 v6, v6, v4")
    a("v_lshlrev_b32 v6, 4, v6")
    a("v_lshl_add_u32 v10, v3, 12, v6")
    a("v_xor_b32 v11, 64, v10")
    a("v_add_u32 v11, %d, v11" % (32768 - 1024))
    a("v_add_u32 v12, %d, v10" % (2 * (32768 - 1024)))
    a("v_add_u32 v13, %d, v11" % (2 * (32768 - 1024)))
    a("v_lshlrev_b32 v14, 4, v2")
    a("s_lshl_b32 s26, s22, 19")
    a("s_mul_i32 s27, s23, %d" % (32 * 18432))
    a("s_lshl_b32 s24, s3, 12")
    a("s_add_u32 s27, s27, s24")
    if ZIMG: a("s_add_u32 s27, s27, 0x%x" % ZIMG)
    a("s_lshl_b32 s25, s3, 9")
    a("s_sub_u32 s32, s25, s24")
    a("s_add_u32 s32, s32, 16384")
    a("s_add_u32 s24, s24, %d" % RB)
    a("s_waitcnt vmcnt(0) lgkmcnt(0)")
    a("v_mov_b32 v26, %d" % LC)
    a("v_mov_b32 v27, 1")
    a("s_mov_b64 exec, 1")
    a("ds_add_rtn_u32 v28, v26, v27")
    a("s_waitcnt lgkmcnt(0)")
    a("v_readfirstlane_b32 s36, v28")
    a("s_cmp_lg_u32 s36, 3")
    a("s_cbranch_scc1 %s_nozs" % name)
    a("v_mov_b32 v28, 0")
    a("buffer_store_dword v27, v28, s[12:15], s97 offen sc1")
    a.label("%s_nozs" % name)
    a("s_mov_b64 exec, -1")
    stamp(a, 7)
    srd(a, 16, 88, 576 * 2048 * 2)
    srd(a, 84, 90, 576 * 2)
    for g in range(4):
        a("s_add_u32 s35, s24, %d" % (g * SLOT))
        a("s_mov_b32 m0, s35")
        a("s_add_u32 s36, s26, %d" % (128 * g))
        for n in range(4):
            a("buffer_load_dwordx4 v%d, s[8:11], s36 offen offset:%d lds" % (10 + n, n * 1024))
    a("s_mov_b32 s34, 0")
    a("s_cmp_lg_u32 s3, 0")
    a("s_cbranch_scc1 %s_pl" % name)
    a("v_and_b32 v28, 15, v2")
    a("v_lshlrev_b32 v30, 2, v28")
    a("v_lshlrev_b32 v28, 12, v28")
    a("s_lshl_b32 s52, s23, 8")
    a("s_add_u32 s52, s52, 0x%x" % ZFLG)
    a.label("%s_pz0" % name)
    a("buffer_load_dword v31, v30, s[60:63], 0 offen sc1")
    a("s_add_u32 s34, s34, 1")
    a("s_waitcnt vmcnt(0)")
    a("v_cmp_gt_u32 vcc, 16, v31")
    a("s_cmp_gt_u32 s34, %d" % SPIN_MAX)
    a("s_cbranch_scc1 %s_pz" % name)
    a("s_cbranch_vccz %s_pz" % name)
    a("s_sleep 32")
    a("s_branch %s_pz0" % name)
    a.label("%s_pz" % name)
    a("buffer_load_dword v29, v28, s[12:15], s52 offen sc1")
    a("s_add_u32 s34, s34, 1")
    a("s_waitcnt vmcnt(0)")
    a("v_cmp_ne_u32 vcc, 1, v29")
    a("s_cmp_gt_u32 s34, %d" % SPIN_MAX)
    a("s_cbranch_scc1 %s_pzx" % name)
    a("s_cbranch_vccz %s_pzx" % name)
    a("s_sleep 8")
    a("s_branch %s_pz" % name)
    a.label("%s_pzx" % name)
    a("v_mov_b32 v27, 1")
    a("ds_write_b32 v26, v27 offset:4")
    a("s_branch %s_pgo" % name)
    a.label("%s_pl" % name)
    a("ds_read_b32 v27, v26 offset:4")
    a("s_add_u32 s34, s34, 1")
    a("s_waitcnt lgkmcnt(0)")
    a("v_readfirstlane_b32 s36, v27")
    a("s_cmp_gt_u32 s34, %d" % (SPIN_MAX * 20))
    a("s_cbranch_scc1 %s_pgo" % name)
    a("s_cmp_lg_u32 s36, 0")
    a("s_cbranch_scc1 %s_pgo" % name)
    a("s_sleep 2")
    a("s_branch %s_pl" % name)
    a.label("%s_pgo" % name)
    stamp(a, 8)
    for g in range(4):
        a("s_add_u32 s35, s24, %d" % (g * SLOT + TREG))
        a("s_mov_b32 m0, s35")
        a("s_add_u32 s36, s27, %d" % (18432 * g))
        a("s_add_u32 s37, s36, s32")
        for n in range(4):
            a("buffer_load_dwordx4 v14, s[12:15], s36 offen offset:%d sc1 lds" % (n * 1024))
        a("s_add_u32 s35, s35, s32")
        a("s_mov_b32 m0, s35")
        a("s_mov_b64 exec, 0xffffffff")
        a("buffer_load_dwordx4 v14, s[12:15], s37 offen sc1 lds")
        a("s_mov_b64 exec, -1")
    a("s_add_u32 s26, s26, 512")
    a("s_add_u32 s27, s27, %d" % (4 * 18432))
    a("s_mov_b32 s33, 0")
    a("s_lshl_b32 s43, s2, 2")
    a("s_add_u32 s43, s43, s3")
    a("s_and_b32 s53, s43, 1")
    a("s_sub_u32 s36, s43, 448")
    a("s_lshr_b32 s37, s43, 1")
    a("s_cmp_ge_u32 s43, 896")
    a("s_cselect_b32 s43, s36, s37")
    a("s_cselect_b32 s53, 2, s53")
    a("s_waitcnt vmcnt(15)")
    a("s_barrier")
    a("s_waitcnt vmcnt(10)")
    a("s_barrier")
    a("s_waitcnt vmcnt(5)")
    a("s_barrier")
    a("s_mov_b32 s34, 4")
    def issue2():
        a("s_add_u32 s35, s33, s24")
        a("s_mov_b32 m0, s35")
        a("s_add_u32 s36, s35, %d" % TREG)
        for n in range(4):
            a("buffer_load_dwordx4 v%d, s[8:11], s26 offen offset:%d lds" % (10 + n, n * 1024))
        a("s_mov_b32 m0, s36")
        a("s_add_u32 s37, s27, s32")
        for n in range(4):
            a("buffer_load_dwordx4 v14, s[12:15], s27 offen offset:%d sc1 lds" % (n * 1024))
        a("s_add_u32 s36, s36, s32")
        a("s_mov_b32 m0, s36")
        a("s_mov_b64 exec, 0xffffffff")
        a("buffer_load_dwordx4 v14, s[12:15], s37 offen sc1 lds")
        a("s_mov_b64 exec, -1")
        a("s_add_u32 s26, s26, 128")
        a("s_add_u32 s27, s27, 18432")
        a("s_add_u32 s33, s33, %d" % SLOT)
        a("s_cmp_eq_u32 s33, %d" % (R * SLOT))
        a("s_cselect_b32 s33, 0, s33")
    a.label("%s_lloop" % name)
    issue2()
    a("s_cmp_eq_u32 s34, 18")
    a("s_cbranch_scc1 %s_hk1" % name)
    a("s_cmp_eq_u32 s34, 21")
    a("s_cbranch_scc1 %s_hk2" % name)
    a("s_waitcnt vmcnt(9)")
    a.label("%s_lcont" % name)
    a("s_barrier")
    a("s_add_u32 s34, s34, 1")
    a("s_cmp_lt_u32 s34, 32")
    a("s_cbranch_scc1 %s_lloop" % name)
    a("s_branch %s_ldone" % name)
    a.label("%s_hk1" % name)
    a("v_and_b32 v28, 15, v2")
    a("v_lshlrev_b32 v28, 2, v28")
    a("buffer_load_dword v29, v28, s[60:63], 0 offen offset:128 sc1")
    a("s_waitcnt vmcnt(10)")
    a("s_branch %s_lcont" % name)
    a.label("%s_hk2" % name)
    a("s_mov_b32 s52, 0")
    a.label("%s_hk2l" % name)
    a("v_cmp_gt_u32 vcc, 16, v29")
    a("s_add_u32 s52, s52, 1")
    a("s_cmp_gt_u32 s52, %d" % SPIN_MAX)
    a("s_cbranch_scc1 %s_hk2g" % name)
    a("s_cbranch_vccz %s_hk2g" % name)
    a("s_sleep 16")
    a("buffer_load_dword v29, v28, s[60:63], 0 offen offset:128 sc1")
    a("s_waitcnt vmcnt(0)")
    a("s_branch %s_hk2l" % name)
    a.label("%s_hk2g" % name)
    nconv = emit_conv_loads(a, " sc1")
    a("s_waitcnt vmcnt(%d)" % (9 + nconv))
    a("s_branch %s_lcont" % name)
    a.label("%s_ldone" % name)
    a("s_waitcnt vmcnt(0)")
    a("s_barrier")
    a("s_mov_b32 s26, s53")
    a("s_and_b32 s27, s3, 1")
    a("s_mul_i32 s27, s27, %d" % CJ_SIZE)
    a("s_lshr_b32 s36, s3, 1")
    a("s_mul_i32 s36, s36, %d" % SLOT)
    a("s_add_u32 s27, s27, s36")
    a("s_add_u32 s27, s27, %d" % RB)
    def mid():
        a("s_barrier")
        a("s_setprio 0")
    sv = set(DBG); DBG.discard("stamp")
    emit_conv_job(a, name, mid)
    DBG.update(sv)
    G.stamp_rt(a, 1)
    a.label("%s_end" % name)
    a("s_endpgm")
    return a.text(), kernel_desc(name, 256, 256), (name, 256, 512, LDSB)

def gen_kf3(name="k1_kernel", R=4):
    a = Asm()
    RB = 4096; SLOT = 34816; TREG = 16384; FS = 288; RST = 0
    LDSB = RB + R * SLOT
    LC = 2048
    ZFLG = 0x2D00000
    from gen3 import emit_conv_loads, emit_conv_job, CJ_SIZE
    def capture(f, *args):
        lb = len(a.lines); f(*args); out = a.lines[lb:]; del a.lines[lb:]; return out
    kernel_begin(a, name)
    a("s_load_dwordx2 s[80:81], s[0:1], 0")
    a("s_load_dwordx2 s[4:5], s[0:1], 56")
    a("s_load_dwordx2 s[6:7], s[0:1], 104")
    a("s_load_dwordx2 s[18:19], s[0:1], 96")
    a("s_cmp_ge_u32 s2, 256")
    a("s_cbranch_scc1 %s_end" % name)
    a("v_lshrrev_b32 v1, 6, v0")
    a("v_and_b32 v2, 63, v0")
    a("v_readfirstlane_b32 s3, v1")
    G2.tile_ij(a)
    a("s_lshr_b32 s98, s3, 2")
    a("s_mov_b32 s54x, 0".replace("s54x", "s99"))
    a("s_and_b32 s3, s3, 3")
    a("s_lshr_b32 s24, s3, 1")
    a("s_and_b32 s25, s3, 1")
    a("v_and_b32 v3, 15, v2")
    VT = 204; VF = 208
    def loader_setup():
        a("v_lshrrev_b32 v5, 3, v2")
        a("v_and_b32 v4, 7, v2")
        a("s_lshl_b32 s36, s3, 5")
        a("v_add_u32 v5, s36, v5")
        a("v_lshrrev_b32 v7, 4, v2")
        a("v_xor_b32 v7, v7, v4")
        a("v_mul_u32_u24 v6, 1152, v5")
        a("v_lshl_add_u32 v%d, v7, 4, v6" % VT)
        a("v_xor_b32 v%d, 64, v%d" % (VT + 1, VT))
        a("v_add_u32 v%d, %d, v%d" % (VT + 1, 9216 - 1024, VT + 1))
        a("v_add_u32 v%d, %d, v%d" % (VT + 2, 2 * (9216 - 1024), VT))
        a("v_add_u32 v%d, %d, v%d" % (VT + 3, 2 * (9216 - 1024), VT + 1))
        a("s_lshl_b32 s84, s3, 12")
        a("s_add_u32 s84, s84, %d" % RB)
        a("s_lshl_b32 s85, s3, 9")
        a("s_add_u32 s85, s85, %d" % (RB + TREG + 16384))
    def loader_setup2():
        for n in range(5):
            if n < 4:
                a("s_lshl_b32 s36, s3, 8")
                a("s_add_u32 s36, s36, %d" % (64 * n))
            else:
                a("s_lshl_b32 s36, s3, 5")
                a("s_add_u32 s36, s36, 1024")
            a("v_add_u32 v6, s36, v2")
            a("v_mul_u32_u24 v7, 3641, v6")
            a("v_lshrrev_b32 v7, 16, v7")
            a("v_mul_u32_u24 v8, 18, v7")
            a("v_sub_u32 v8, v6, v8")
            a("v_and_b32 v9, 35, v7")
            a("v_bfe_u32 v6, v7, 2, 2")
            a("v_lshl_add_u32 v9, v6, 3, v9")
            a("v_bfe_u32 v6, v7, 4, 1")
            a("v_lshl_add_u32 v9, v6, 2, v9")
            a("v_mul_u32_u24 v9, 9216, v9")
            a("v_lshl_add_u32 v%d, v8, 4, v9" % (VF + n))
            if 0 < n < 4: a("v_subrev_u32 v%d, %d, v%d" % (VF + n, 1024 * n, VF + n))
    def issueT(g):
        st = g % 9
        a("s_add_u32 s86, s84, %d" % ((g % R) * SLOT))
        a("s_mov_b32 m0, s86")
        a("s_add_u32 s87, s82, %d" % (128 * st))
        for n in range(4):
            a("buffer_load_dwordx4 v%d, s[28:31], s87 offen offset:%d lds" % (VT + n, 1024 * n))
    def issueF(g):
        st = g % 9
        a("s_add_u32 s86, s84, %d" % ((g % R) * SLOT + TREG))
        a("s_mov_b32 m0, s86")
        a("s_add_u32 s87, s83, %d" % (64 * 9216 * st + (4608 if g < 9 else 0)))
        for n in range(4):
            a("buffer_load_dwordx4 v%d, s[8:11], s87 offen offset:%d lds" % (VF + n, 1024 * n))
        a("s_add_u32 s86, s85, %d" % ((g % R) * SLOT))
        a("s_mov_b32 m0, s86")
        a("s_mov_b64 exec, 0xffffffff")
        a("buffer_load_dwordx4 v%d, s[8:11], s87 offen lds" % (VF + 4))
        a("s_mov_b64 exec, -1")
    def srds_main():
        srd(a, 28, 80, 2048 * 576 * 2)
        srd(a, 8, 4, 576 * 4608 * 2)
        srd(a, 12, 6, WS_BYTES)
        srd(a, 60, 18, 256)
        a("s_mul_i32 s82, s22, %d" % (128 * 1152))
        a("s_mul_i32 s83, s23, 288")
    ACC = 128; FB = [16, 52]; CS = 216; ONE = 236
    vTa = [4, 5]; vTb = [6, 7]; vF = 8; vFh = 9
    bTa = [88, 89]; bTb = [90, 91]; bF = 92; bFh = 93
    def mma_setup():
        a("v_lshrrev_b32 v10, 4, v2")
        a("v_lshrrev_b32 v11, 1, v3")
        a("v_xor_b32 v10, v10, v11")
        a("v_lshlrev_b32 v10, 4, v10")
        a("v_lshl_add_u32 v10, v3, 7, v10")
        a("s_lshl_b32 s26, s24, 13")
        a("s_add_u32 s26, s26, %d" % RB)
        a("v_add_u32 v10, s26, v10")
        a("s_lshl_b32 s26, s25, 12")
        a("v_add_u32 v%d, s26, v10" % bTa[0])
        a("s_xor_b32 s26, s26, 4096")
        a("v_add_u32 v%d, s26, v10" % bTb[0])
        a("v_xor_b32 v%d, 64, v%d" % (bTa[1], bTa[0]))
        a("v_xor_b32 v%d, 64, v%d" % (bTb[1], bTb[0]))
        a("v_lshrrev_b32 v10, 2, v2")
        a("v_mul_u32_u24 v10, %d, v10" % FS)
        a("v_and_b32 v11, 3, v2")
        a("v_lshl_add_u32 v10, v11, 3, v10")
        a("v_add_u32 v10, %d, v10" % (RB + TREG))
        a("s_mul_i32 s26, s25, 160")
        a("v_add_u32 v%d, s26, v10" % bF)
        a("v_add_u32 v%d, 128, v10" % bFh)
        for r in range(ACC, ACC + 72): a("v_mov_b32 v%d, 0" % r)
        for r in range(CS, CS + 20): a("v_mov_b32 v%d, 0" % r)
        for r in range(ONE, ONE + 4): a("v_mov_b32 v%d, 0x3f803f80" % r)
    def mma_addr(slot):
        a("s_mov_b32 s27, %d" % (slot * SLOT))
        for d, s_ in ((vTa[0], bTa[0]), (vTb[0], bTb[0]), (vTa[1], bTa[1]), (vTb[1], bTb[1]), (vF, bF), (vFh, bFh)):
            a("v_add_u32 v%d, s27, v%d" % (d, s_))
    core = G.Core(a, ACC, FB[0], FB[1], FS, TREG, vTa, vTb, vF, vFh)
    trk = core.trk
    a("s_cmp_eq_u32 s98, 0")
    a("s_cbranch_scc1 %s_A0" % name)
    a("s_setprio 3")
    loader_setup()
    a("s_waitcnt lgkmcnt(0)")
    srds_main()
    vm = VmTracker(a)
    def issue(g, vmx):
        issueT(g); issueF(g); vmx.issue("S%d" % g, 9)
    issueT(0)
    loader_setup2()
    issueF(0); vm.issue("S0", 9)
    issue(1, vm); issue(2, vm); issue(3, vm)
    a("s_add_u32 s3, s3, 4"); stamp_setup(a, 1); stamp(a, 0); a("s_sub_u32 s3, s3, 4")
    mma_setup()
    RA = 96; XB = 112
    for r in range(RA, RA + 16): a("v_mov_b32 v%d, 0" % r)
    a("v_lshrrev_b32 v10, 4, v2")
    a("v_lshrrev_b32 v11, 1, v3")
    a("v_xor_b32 v10, v10, v11")
    a("v_lshlrev_b32 v10, 4, v10")
    a("v_lshl_add_u32 v10, v3, 7, v10")
    a("v_add_u32 v12, s84, v10")
    a("v_xor_b32 v13, 64, v12")
    def rs_rd(g):
        a("v_add_u32 v10, %d, v12" % ((g % R) * SLOT))
        a("v_add_u32 v11, %d, v13" % ((g % R) * SLOT))
        for h in range(2):
            for n in range(2):
                a("ds_read_b128 %s, v%d offset:%d" % (vr(XB + 8 * h + 4 * n), 10 + h, 2048 * n))
    def rs_do():
        for h in range(2):
            for n in range(2):
                x = XB + 8 * h + 4 * n
                a("v_mfma_f32_16x16x32_bf16 %s, %s, %s, %s" % (vr(RA + 4 * n), vr(ONE), vr(x), vr(RA + 4 * n)))
                a("v_mfma_f32_16x16x32_bf16 %s, %s, %s, %s" % (vr(RA + 8 + 4 * n), vr(x), vr(x), vr(RA + 8 + 4 * n)))
    def interleave(dma, comp, vmx=None):
        groups = []; cur = []
        for l in dma:
            cur.append(l)
            if "buffer_load" in l and not any("exec, 0xffffffff" in x for x in cur[-2:]):
                groups.append(cur); cur = []
            elif "exec, -1" in l:
                groups.append(cur); cur = []
        if cur: groups.append(cur)
        ns = max(1, len(groups))
        per = (len(comp) + ns - 1) // ns
        for g in groups:
            a.lines.extend(g)
            a.lines.extend(comp[:per]); comp = comp[per:]
        a.lines.extend(comp)
    vm.wait(["S0"])
    a("s_barrier")
    stamp(a, 1)
    rs_rd(0)
    vm.wait(["S1"])
    a("s_barrier")
    for k in range(9):
        a("s_waitcnt lgkmcnt(0)")
        dma = capture(lambda: (issueT(k + 3), issueF(k + 3))) if k >= 1 else []
        interleave(dma, capture(rs_do))
        if k >= 1: vm.issue("S%d" % (k + 3), 9)
        if k < 8:
            rs_rd(k + 1)
        else:
            a("s_nop 7")
            a("v_lshrrev_b32 v10, 4, v2")
            a("v_lshrrev_b32 v11, 2, v3")
            a("v_and_b32 v12, 3, v3")
            for n in range(2):
                G_ = RA + 8 + 4 * n
                for r in range(1, 4):
                    a("v_cmp_eq_u32 vcc, %d, v12" % r)
                    a("s_nop 1")
                    a("v_cndmask_b32 v%d, v%d, v%d, vcc" % (G_, G_, G_ + r))
            ML = 112
            for n in range(2):
                emit_ln_finish(a, RA + 4 * n, RA + 8 + 4 * n, 576, ML + 2 * n, ML + 2 * n + 1, 120)
                a("v_mov_b32 v%d, v%d" % (117 + 2 * n, ML + 2 * n + 1))
                a("v_sub_f32 v%d, 0, v%d" % (116 + 2 * n, ML + 2 * n))
            a("s_lshl_b32 s35, s3, 8")
            a("v_lshlrev_b32 v13, 3, v3")
            a("v_add_u32 v12, s35, v13")
            a("v_cmp_eq_u32 vcc, v10, v11")
            a("s_and_saveexec_b64 s[36:37], vcc")
            for n in range(2):
                a("ds_write_b64 v12, %s offset:%d" % (vr(116 + 2 * n, 2), RST + 128 * n))
            a("s_mov_b64 exec, s[36:37]")
            a("s_cmp_lg_u32 s23, 0")
            a("s_cbranch_scc1 %s_nost1" % name)
            a("s_lshl_b32 s35, s22, 7")
            a("s_lshl_b32 s36, s3, 5")
            a("s_add_u32 s35, s35, s36")
            a("s_lshl_b32 s35, s35, 3")
            a("s_add_u32 s35, s35, 0x%x" % STATS1)
            a("v_mov_b32 v11, 0x7ffffff0")
            a("v_cndmask_b32 v13, v11, v13, vcc")
            for n in range(2):
                a("buffer_store_dwordx2 %s, v13, s[12:15], s35 offen offset:%d" % (vr(ML + 2 * n, 2), 128 * n))
            a.label("%s_nost1" % name)
            mma_addr(9 % R)
            a("s_mov_b32 s33, 0")
            a("s_setprio 0")
        vm.wait(["S%d" % (k + 2)], "lgkmcnt(0)" if k == 8 else "")
        if k < 8: a("s_barrier")
    a("s_branch %s_mma" % name)
    a.label("%s_A0" % name)
    emit_code_prefetch(a, name)
    a("s_load_dwordx4 s[64:67], s[0:1], 8")
    a("s_load_dwordx2 s[76:77], s[0:1], 24")
    a("s_load_dwordx2 s[78:79], s[0:1], 64")
    mma_setup()
    loader_setup(); loader_setup2()
    a("s_waitcnt lgkmcnt(0)")
    srds_main()
    srd(a, 68, 66, 2048 * 576 * 2)
    a("s_mov_b32 s88, s64"); a("s_mov_b32 s89, s65")
    srd(a, 64, 88, 2048 * 576 * 2)
    srd(a, 72, 76, 576 * 8)
    stamp_setup(a, 1); stamp(a, 0)
    def gran_addr():
        a("v_lshrrev_b32 v10, 4, v2")
        a("s_lshl_b32 s36, s25, 1")
        a("v_add_u32 v11, s36, v10")
        a("v_and_b32 v11, 3, v11")
        a("v_lshl_add_u32 v11, v11, 4, v3")
        a("v_lshlrev_b32 v94, 8, v11")
        a("s_lshl_b32 s59, s22, 7")
        a("s_lshl_b32 s36, s24, 6")
        a("s_add_u32 s59, s59, s36")
        a("s_lshl_b32 s59, s59, 8")
        a("s_add_u32 s59, s59, 0x%x" % STATS2)
        a("s_lshl_b32 s36, s23, 1")
        a("s_add_u32 s36, s36, s25")
        a("s_lshl_b32 s36, s36, 3")
        a("s_add_u32 s58, s36, s59")
    gran_addr()
    a("v_mov_b32 v12, 0"); a("v_mov_b32 v13, 0x80000000")
    a("buffer_store_dwordx2 v[12:13], v94, s[12:15], s58 offen sc1")
    a("s_lshl_b32 s36, s22, 4")
    a("s_add_u32 s36, s36, s23")
    a("s_lshl_b32 s36, s36, 8")
    a("s_add_u32 s97, s36, 0x%x" % ZFLG)
    a("v_mov_b32 v10, %d" % LC)
    a("v_mov_b32 v12, 0"); a("v_mov_b32 v13, 0")
    a("s_mov_b64 exec, 1")
    a("buffer_store_dword v12, v12, s[12:15], s97 offen sc1")
    a("s_mov_b64 exec, -1")
    a("ds_write_b64 v10, v[12:13]")
    a("ds_write_b64 v10, v[12:13] offset:8")
    mma_addr(0)
    a("s_mov_b32 s33, 0")
    a("s_waitcnt lgkmcnt(0)")
    a("s_barrier")
    stamp(a, 1)
    a.label("%s_mma" % name)
    core.prime(0, core.reads(0, 0))
    trk.drain()
    nocs = [False]
    def mfmas(buf):
        L = []
        for ft in range(5):
            A = core.F(buf, ft)
            for tt in range(4 if ft < 4 else 2):
                c = core.accr(ft, tt); B = core.T(buf, tt)
                L.append(("v_mfma_f32_16x16x32_bf16 %s, %s, %s, %s" % (vr(c), vr(A), vr(B), vr(c)), list(range(A, A + 4)) + list(range(B, B + 4))))
            if not nocs[0]: L.append(("v_mfma_f32_16x16x32_bf16 %s, %s, %s, %s" % (vr(CS + 4 * ft), vr(A), vr(ONE), vr(CS + 4 * ft)), list(range(A, A + 4))))
        return L
    def phase(buf, pend):
        for (m, regs) in mfmas(buf):
            trk.need(regs)
            a(m)
            while pend:
                k, t = pend.pop(0)
                if k == "x":
                    a(t)
                    if t.startswith("s_"): continue
                else:
                    a(t[0]); trk.issue(t[1])
                break
        for k, t in pend:
            if k == "x": a(t)
            else: a(t[0]); trk.issue(t[1])
    def iteration(vw=True):
        if vw: a("s_waitcnt vmcnt(0)")
        a("s_barrier")
        rd = [("r", t) for t in core.reads(1, 1)]
        upd = ["s_add_u32 s27, s27, %d" % SLOT, "s_cmp_eq_u32 s27, %d" % (R * SLOT), "s_cselect_b32 s27, 0, s27"]
        tail = ["v_add_u32 v%d, s27, v%d" % (d, s_) for d, s_ in ((vTa[0], bTa[0]), (vF, bF), (vTb[0], bTb[0]), (vFh, bFh))]
        phase(0, rd[:1] + [("x", u) for u in upd] + rd[1:] + [("x", u) for u in tail])
        rd = [("r", t) for t in core.reads(0, 0)]
        tail = ["v_add_u32 v%d, s27, v%d" % (d, s_) for d, s_ in ((vTa[1], bTa[1]), (vTb[1], bTb[1]))] + ["s_add_u32 s33, s33, 1"]
        phase(1, rd + [("x", u) for u in tail])
    a.label("%s_cloop" % name)
    lb = len(a.lines); iteration(); st = copy.deepcopy(trk.out); del a.lines[lb:]; trk.out = copy.deepcopy(st)
    iteration()
    assert [sorted(x) for x in trk.out] == [sorted(x) for x in st]
    a("s_cmp_lt_u32 s33, 9")
    a("s_cbranch_scc1 %s_cloop" % name)
    trk.drain()
    stamp(a, 2)
    MR = 100; T = 72; ZP = 16
    def epi_in():
        gelu_consts(a)
        a("s_lshl_b32 s36, s24, 9")
        a("s_lshl_b32 s37, s25, 8")
        a("s_add_u32 s38, s36, s37")
        a("s_xor_b32 s37, s37, 256")
        a("s_add_u32 s39, s36, s37")
        a("v_lshlrev_b32 v10, 3, v3")
        a("v_add_u32 v11, s38, v10")
        a("ds_read_b64 %s, v11 offset:%d" % (vr(MR, 2), RST))
        a("ds_read_b64 %s, v11 offset:%d" % (vr(MR + 2, 2), RST + 128))
        a("v_add_u32 v11, s39, v10")
        a("ds_read_b64 %s, v11 offset:%d" % (vr(MR + 4, 2), RST))
        a("ds_read_b64 %s, v11 offset:%d" % (vr(MR + 6, 2), RST + 128))
        a("s_waitcnt lgkmcnt(0)")
    S = [108, 110, 52, 54]; Q = [109, 111, 53, 55]
    def gelu_ft(ft, stats):
        tts = range(4 if ft < 4 else 2)
        emit_fold_gelu(a, [(core.accr(ft, tt), CS + 4 * ft, MR + 2 * tt, ZP + 2 * tidx(ft, tt)) for tt in tts], T)
        if stats:
            for d in range(2):
                for tt in tts:
                    p = ZP + 2 * tidx(ft, tt) + d
                    a("v_dot2_f32_bf16 v%d, v%d, v%d, v%d" % (S[tt], p, ONE, S[tt]))
                    a("v_dot2_f32_bf16 v%d, v%d, v%d, v%d" % (Q[tt], p, p, Q[tt]))
    a("s_cmp_eq_u32 s98, 0")
    a("s_cbranch_scc1 %s_A1" % name)
    a("v_mov_b32 v10, %d" % (LC + 12))
    a("v_mov_b32 v11, 1")
    a("s_mov_b64 exec, 1")
    a("ds_add_u32 v10, v11")
    a("s_mov_b64 exec, -1")
    a("s_load_dwordx4 s[64:67], s[0:1], 8")
    a("s_load_dwordx2 s[76:77], s[0:1], 24")
    a("s_load_dwordx2 s[94:95], s[0:1], 80")
    a("s_load_dwordx2 s[92:93], s[0:1], 72")
    epi_in()
    srd(a, 68, 66, 2048 * 576 * 2)
    a("s_mov_b32 s88, s64"); a("s_mov_b32 s89, s65")
    srd(a, 64, 88, 2048 * 576 * 2)
    srd(a, 72, 76, 576 * 8)
    srd(a, 76, 94, 2304 * 576 * 2)
    srd(a, 28, 92, 2048 * 2)
    a("v_and_b32 v0, 255, v0")
    a("s_mov_b32 s41, s2")
    KDB = 240
    emit_kv_loads(a, 112, 240, 248, 252, 253)
    a("s_cmp_ge_u32 s2, 32")
    a("s_cbranch_scc1 %s_kvp" % name)
    a("s_add_u32 s41, s2, 256")
    emit_kv_loads(a, 52, 63, 124, 71, 123)
    a.label("%s_kvp" % name)
    for ft in range(5): gelu_ft(ft, False)
    Z1R = 200; BI = 236
    for r_ in range(36): a("v_mov_b32 v%d, v%d" % (Z1R + r_, ZP + r_))
    stamp(a, 3)
    a("s_waitcnt vmcnt(0)")
    for n in range(11): a("v_mov_b32 v%d, v%d" % (16 + n, 112 + n))
    for n in range(8): a("v_mov_b32 v%d, v%d" % (32 + n, 240 + n))
    for n in range(4): a("v_mov_b32 v%d, v%d" % (44 + n, 248 + n))
    for r_ in range(6): a("v_mov_b32 v%d, v%d" % (240 + r_, 88 + r_))
    for r_ in range(20): a("v_mov_b32 v%d, v%d" % (128 + r_, 52 + r_))
    for r_ in range(5): a("v_mov_b32 v%d, v%d" % (148 + r_, 123 + r_))
    a("v_mov_b32 v56, v252"); a("v_mov_b32 v57, v253")
    a.label("%s_kvb" % name)
    emit_kv_compute(a, wait=False, store=False)
    a("s_mov_b32 s39, 0x%x" % KVT)
    a("buffer_store_dwordx4 v[120:123], v12, s[12:15], s39 offen sc1")
    a("buffer_store_dwordx4 v[124:127], v13, s[12:15], s39 offen sc1")
    a("s_cmp_lt_u32 s41, 256")
    a("s_cbranch_scc1 %s_kvbd" % name)
    a("s_mov_b32 s41, 0")
    for n in range(11): a("v_mov_b32 v%d, v%d" % (16 + n, 128 + n))
    for n in range(8): a("v_mov_b32 v%d, v%d" % (32 + n, 139 + n))
    for n in range(4): a("v_mov_b32 v%d, v%d" % (44 + n, 149 + n))
    a("v_mov_b32 v56, v147"); a("v_mov_b32 v57, v148")
    a("s_branch %s_kvb" % name)
    a.label("%s_kvbd" % name)
    for r_ in range(6): a("v_mov_b32 v%d, v%d" % (88 + r_, 240 + r_))
    a("s_mov_b32 s42, s2")
    emit_wot_loads(a, 100, 112, 720, 3)
    a("s_lshl_b32 s36, s22, 7")
    a("s_lshl_b32 s37, s24, 6")
    a("s_add_u32 s36, s36, s37")
    a("v_lshlrev_b32 v11, 1, v3")
    a("s_lshl_b32 s37, s25, 6")
    a("s_lshl_b32 s38, s36, 1")
    a("s_add_u32 s39, s38, s37")
    a("s_xor_b32 s37, s37, 64")
    a("s_add_u32 s36, s38, s37")
    a("buffer_load_ushort v96, v11, s[28:31], s39 offen")
    a("buffer_load_ushort v97, v11, s[28:31], s39 offen offset:32")
    a("buffer_load_ushort v98, v11, s[28:31], s36 offen")
    a("buffer_load_ushort v99, v11, s[28:31], s36 offen offset:32")
    for r in range(ACC, ACC + 72): a("v_mov_b32 v%d, 0" % r)
    mma_addr(0)
    a("s_mov_b32 s33, 0")
    stamp(a, 4)
    a("s_barrier")
    stamp(a, 5)
    core.prime(0, core.reads(0, 0))
    trk.drain()
    nocs[0] = True
    a.label("%s_gloop" % name)
    lb = len(a.lines); iteration(False); st = copy.deepcopy(trk.out); del a.lines[lb:]; trk.out = copy.deepcopy(st)
    iteration(False)
    assert [sorted(x) for x in trk.out] == [sorted(x) for x in st]
    a("s_cmp_lg_u32 s33, 3")
    a("s_cbranch_scc1 %s_ghk" % name)
    a("s_waitcnt vmcnt(0)")
    for n in range(3):
        a("buffer_store_dwordx4 %s, v%d, s[12:15], s40 offen" % (vr(100 + 4 * n), 112 + n))
    for tt in range(4): a("v_lshlrev_b32 v%d, 16, v%d" % (BI + 2 * tt, 96 + tt))
    a("v_mov_b32 v10, %d" % (LC + 8))
    a("v_mov_b32 v11, 1")
    a("s_mov_b64 exec, 1")
    a("ds_add_rtn_u32 v12, v10, v11")
    a("s_waitcnt lgkmcnt(0)")
    a("v_readfirstlane_b32 s36, v12")
    a("s_cmp_lg_u32 s36, 3")
    a("s_cbranch_scc1 %s_nokvs" % name)
    a("s_and_b32 s36, s2, 15")
    a("s_lshl_b32 s36, s36, 2")
    a("s_add_u32 s36, s36, 128")
    a("v_mov_b32 v10, s36")
    a("buffer_atomic_add v11, v10, s[60:63], 0 offen sc1")
    a.label("%s_nokvs" % name)
    a("s_mov_b64 exec, -1")
    a.label("%s_ghk" % name)
    a("s_cmp_lt_u32 s33, 32")
    a("s_cbranch_scc1 %s_gloop" % name)
    trk.drain()
    stamp(a, 6)
    G3.emit_k2_epilogue(a, core, Z1R, BI)
    stamp(a, 7)
    G.stamp_rt(a, 1)
    a("s_branch %s_end" % name)
    a.label("%s_A1" % name)
    a("s_setprio 2")
    vmA = VmTracker(a)
    PB = 132
    def aux_head():
        epi_in()
        for tt in range(4):
            a("v_mov_b32 v%d, 0" % S[tt]); a("v_mov_b32 v%d, 0" % Q[tt])
    def aux_pub():
        a("s_nop 2")
        emit_xg_reduce(a, S + Q, 72)
        a("v_lshrrev_b32 v10, 4, v2")
        for g in range(1, 4):
            a("v_cmp_eq_u32 vcc, %d, v10" % g)
            a("s_nop 1")
            a("v_cndmask_b32 v%d, v%d, v%d, vcc" % (S[0], S[0], S[g]))
            a("v_cndmask_b32 v%d, v%d, v%d, vcc" % (Q[0], Q[0], Q[g]))
        a("v_and_b32 v%d, 0x7fffffff, v%d" % (Q[0], Q[0]))
        a("buffer_store_dwordx2 v[%d:%d], v94, s[12:15], s58 offen sc1" % (S[0], Q[0]))
    chunks = [capture(aux_head) + capture(gelu_ft, 0, True), capture(gelu_ft, 1, True), capture(gelu_ft, 2, True),
              capture(gelu_ft, 3, True), capture(gelu_ft, 4, True) + capture(aux_pub)]
    GB = [128, 144, 160, 176]
    def gather():
        for tt in range(4):
            for q in range(4):
                a("buffer_load_dwordx4 %s, v4, s[12:15], s%d offen offset:%d sc1" % (vr(GB[tt] + 4 * q), (52, 42, 53, 43)[tt], 16 * q))
    KD = 172
    for k in range(9, 18):
        a("s_barrier")
        if k == 9:
            a("s_cmp_lg_u32 s3, 0")
            a("s_cbranch_scc1 %s_nosig" % name)
            a("v_mov_b32 v10, 1")
            a("s_lshl_b32 s36, s22, 2")
            a("v_mov_b32 v11, s36")
            a("s_mov_b64 exec, 1")
            a("buffer_atomic_add v10, v11, s[60:63], 0 offen sc1")
            a("s_mov_b64 exec, -1")
            a.label("%s_nosig" % name)
        g = k + 3
        dma = capture(lambda: (issueT(g), issueF(g))) if g < 18 else []
        comp = chunks[k - 9] if k - 9 < len(chunks) else []
        interleave(dma, comp)
        if k == 13: vmA.issue("pub", 1)
        if g < 18: vmA.issue("S%d" % g, 9)
        if k == 14:
            srd(a, 92, 78, 2048 * 2048 * 2)
            a("v_lshrrev_b32 v10, 4, v2")
            a("v_lshlrev_b32 v10, 12, v10")
            a("v_lshl_add_u32 v10, v3, 4, v10")
            a("s_lshl_b32 s40, s22, 7")
            a("s_lshl_b32 s36, s3, 5")
            a("s_add_u32 s40, s40, s36")
            a("s_lshl_b32 s40, s40, 12")
            a("s_lshl_b32 s36, s23, 8")
            a("s_add_u32 s40, s40, s36")
            for n in range(8):
                a("buffer_load_dwordx4 v[200:203], v10, s[92:95], s40 offen")
                if n < 7: a("s_add_u32 s40, s40, 16384")
            vmA.issue("wp", 8)
        if k == 13:
            a("s_lshl_b32 s36, s22, 2")
            a("v_mov_b32 v199, s36")
            a("buffer_load_dword v198, v199, s[60:63], 0 offen sc1"); vmA.issue("cnt", 1)
        if k == 15:
            a("v_lshrrev_b32 v10, 4, v2")
            a("v_lshlrev_b32 v95, 8, v3")
            a("v_lshl_add_u32 v95, v10, 6, v95")
            a("s_lshl_b32 s33, s25, 13")
            a("s_add_u32 s52, s59, s33")
            a("s_xor_b32 s33, s33, 8192")
            a("s_add_u32 s53, s59, s33")
            a("s_add_u32 s42, s52, 4096")
            a("s_add_u32 s43, s53, 4096")
            a("v_mov_b32 v4, v95")
            vmA.wait(["S17"])
            gather(); vmA.issue("g", 16)
        if k + 2 < 18 and k + 2 >= 12 and k != 15:
            vmA.wait(["S%d" % (k + 2)])
    stamp(a, 3)
    a("s_load_dwordx4 s[88:91], s[0:1], 32")
    Z2 = ZP
    a("s_mov_b32 s40, 0")
    a("s_waitcnt vmcnt(0)")
    a.label("%s_chk" % name)
    a("v_subrev_u32 v11, 16, v198")
    for tt in range(4):
        for r in range(GB[tt] + 1, GB[tt] + 16, 4):
            a("v_or3_b32 v11, v11, v%d, v%d" % (r, r + 2))
    a("v_cmp_gt_i32 vcc, 0, v11")
    a("s_add_u32 s40, s40, 1")
    a("s_cmp_gt_u32 s40, %d" % SPIN_MAX)
    a("s_cbranch_scc1 %s_ok" % name)
    a("s_cbranch_vccz %s_ok" % name)
    a("s_sleep 32")
    a("buffer_load_dword v198, v199, s[60:63], 0 offen sc1")
    a("s_waitcnt vmcnt(0)")
    gather()
    a("s_waitcnt vmcnt(0)")
    a("s_branch %s_chk" % name)
    a.label("%s_ok" % name)
    stamp(a, 5)
    for tt in range(4):
        b = GB[tt]
        for st_ in (8, 4, 2):
            for q in range(0, st_, 2):
                a("v_pk_add_f32 %s, %s, %s" % (vr(b + q, 2), vr(b + q, 2), vr(b + q + st_, 2)))
    emit_xg_reduce(a, [GB[tt] + e for tt in range(4) for e in range(2)], 72)
    for tt in range(4):
        b = GB[tt]
        emit_ln_finish(a, b, b + 1, 2304, b + 2, MR + 2 * tt, b + 4)
        a("v_mul_f32 v%d, -v%d, v%d" % (MR + 2 * tt + 1, b + 2, MR + 2 * tt))
    a("v_lshrrev_b32 v10, 4, v2")
    a("v_lshrrev_b32 v11, 2, v2"); a("v_and_b32 v11, 1, v11"); a("v_lshlrev_b32 v11, 4, v11")
    a("v_lshrrev_b32 v5, 3, v2"); a("v_and_b32 v5, 1, v5"); a("v_lshl_add_u32 v11, v5, 2, v11")
    a("v_and_b32 v5, 3, v2"); a("v_add_u32 v11, v11, v5")
    a("v_mul_u32_u24 v11, 288, v11")
    a("v_lshrrev_b32 v5, 1, v10"); a("v_lshl_add_u32 v11, v5, 4, v11")
    a("v_and_b32 v5, 1, v10")
    a("v_lshl_add_u32 v6, v5, 5, v11")
    a("v_mul_u32_u24 v5, 2304, v5")
    a("v_add_u32 v9, v11, v5")
    a("s_lshl_b32 s33, s23, 5")
    a("s_lshl_b32 s36, s22, 1")
    a("s_add_u32 s33, s33, s36")
    a("s_add_u32 s33, s33, s24")
    a("s_mul_i32 s33, s33, 18432")
    if ZIMG: a("s_add_u32 s33, s33, 0x%x" % ZIMG)
    a("s_mul_i32 s36, s25, 9216")
    a("s_add_u32 s37, s33, s36")
    a("s_xor_b32 s36, s36, 9216")
    a("s_add_u32 s38, s33, s36")
    a("s_add_u32 s39, s37, 128")
    a("s_mul_i32 s36, s25, 160")
    a("s_add_u32 s37, s37, s36")
    a("s_add_u32 s38, s38, s36")
    def norm_pair(nA, ttA, nB, ttB, O):
        for q, (n, tt) in enumerate(((nA, ttA), (nB, ttB))):
            for d in range(2):
                z = Z2 + 2 * n + d; t = T + 4 * q + 2 * d
                a("v_lshlrev_b32 v%d, 16, v%d" % (t, z))
                a("v_and_b32 v%d, 0xffff0000, v%d" % (t + 1, z))
        for q, (n, tt) in enumerate(((nA, ttA), (nB, ttB))):
            for d in range(2):
                t = T + 4 * q + 2 * d
                a("v_pk_fma_f32 %s, %s, %s, %s op_sel:[0,0,1] op_sel_hi:[1,0,1]" % (vr(t, 2), vr(t, 2), vr(MR + 2 * tt, 2), vr(MR + 2 * tt, 2)))
        for q in range(2):
            for d in range(2):
                t = T + 4 * q + 2 * d
                a("v_cvt_pk_bf16_f32 v%d, v%d, v%d" % (O + 2 * q + d, t, t + 1))
        a("s_nop 1")
        a("v_permlane16_swap_b32 v%d, v%d" % (O, O + 2))
        a("v_permlane16_swap_b32 v%d, v%d" % (O + 1, O + 3))
    cnt = 0
    for pr in range(2):
        for tt in range(4):
            O = 200 + 4 * cnt; cnt += 1
            norm_pair(tidx(2 * pr, tt), tt, tidx(2 * pr + 1, tt), tt, O)
            a("s_nop 0")
            a("buffer_store_dwordx4 %s, v6, s[12:15], s%d offen offset:%d" % (vr(O), 37 if tt < 2 else 38, (tt & 1) * 2304 + 64 * pr) + " sc1")
    O = 200 + 4 * cnt
    norm_pair(16, 0, 17, 1, O)
    a("s_nop 0")
    a("buffer_store_dwordx4 %s, v9, s[12:15], s39 offen sc1" % vr(O))
    stamp(a, 6)
    a("s_setprio 3")
    srd(a, 8, 78, 2048 * 2048 * 2)
    a("v_lshrrev_b32 v3, 3, v2")
    a("s_lshl_b32 s24, s3, 5")
    a("v_add_u32 v3, s24, v3")
    a("v_and_b32 v4, 7, v2")
    a("v_lshrrev_b32 v6, 4, v2")
    a("v_xor_b32 v6, v6, v4")
    a("v_lshlrev_b32 v6, 4, v6")
    a("v_lshl_add_u32 v10, v3, 12, v6")
    a("v_xor_b32 v11, 64, v10")
    a("v_add_u32 v11, %d, v11" % (32768 - 1024))
    a("v_add_u32 v12, %d, v10" % (2 * (32768 - 1024)))
    a("v_add_u32 v13, %d, v11" % (2 * (32768 - 1024)))
    a("v_lshlrev_b32 v14, 4, v2")
    a("s_lshl_b32 s26, s22, 19")
    a("s_mul_i32 s27, s23, %d" % (32 * 18432))
    a("s_lshl_b32 s24, s3, 12")
    a("s_add_u32 s27, s27, s24")
    if ZIMG: a("s_add_u32 s27, s27, 0x%x" % ZIMG)
    a("s_lshl_b32 s25, s3, 9")
    a("s_sub_u32 s32, s25, s24")
    a("s_add_u32 s32, s32, 16384")
    a("s_add_u32 s24, s24, %d" % RB)
    a("s_waitcnt vmcnt(0) lgkmcnt(0)")
    a("v_mov_b32 v26, %d" % LC)
    a("v_mov_b32 v27, 1")
    a("s_mov_b64 exec, 1")
    a("ds_add_rtn_u32 v28, v26, v27")
    a("s_waitcnt lgkmcnt(0)")
    a("v_readfirstlane_b32 s36, v28")
    a("s_cmp_lg_u32 s36, 3")
    a("s_cbranch_scc1 %s_nozs" % name)
    a("v_mov_b32 v28, 0")
    a("buffer_store_dword v27, v28, s[12:15], s97 offen sc1")
    a.label("%s_nozs" % name)
    a("s_mov_b64 exec, -1")
    stamp(a, 7)
    srd(a, 16, 88, 576 * 2048 * 2)
    srd(a, 84, 90, 576 * 2)
    a("s_mov_b32 s34, 0")
    a.label("%s_wb" % name)
    a("ds_read_b32 v27, v26 offset:12")
    a("s_add_u32 s34, s34, 1")
    a("s_waitcnt lgkmcnt(0)")
    a("v_readfirstlane_b32 s36, v27")
    a("s_cmp_gt_u32 s34, %d" % (SPIN_MAX * 20))
    a("s_cbranch_scc1 %s_wbx" % name)
    a("s_cmp_ge_u32 s36, 4")
    a("s_cbranch_scc1 %s_wbx" % name)
    a("s_sleep 2")
    a("s_branch %s_wb" % name)
    a.label("%s_wbx" % name)
    for g in range(4):
        a("s_add_u32 s35, s24, %d" % (g * SLOT))
        a("s_mov_b32 m0, s35")
        a("s_add_u32 s36, s26, %d" % (128 * g))
        for n in range(4):
            a("buffer_load_dwordx4 v%d, s[8:11], s36 offen offset:%d lds" % (10 + n, n * 1024))
    a("s_mov_b32 s34, 0")
    a("s_cmp_lg_u32 s3, 0")
    a("s_cbranch_scc1 %s_pl" % name)
    a("v_and_b32 v28, 15, v2")
    a("v_lshlrev_b32 v30, 2, v28")
    a("v_lshlrev_b32 v28, 12, v28")
    a("s_lshl_b32 s52, s23, 8")
    a("s_add_u32 s52, s52, 0x%x" % ZFLG)
    a.label("%s_pz0" % name)
    a("buffer_load_dword v31, v30, s[60:63], 0 offen sc1")
    a("s_add_u32 s34, s34, 1")
    a("s_waitcnt vmcnt(0)")
    a("v_cmp_gt_u32 vcc, 16, v31")
    a("s_cmp_gt_u32 s34, %d" % SPIN_MAX)
    a("s_cbranch_scc1 %s_pz" % name)
    a("s_cbranch_vccz %s_pz" % name)
    a("s_sleep 32")
    a("s_branch %s_pz0" % name)
    a.label("%s_pz" % name)
    a("buffer_load_dword v29, v28, s[12:15], s52 offen sc1")
    a("s_add_u32 s34, s34, 1")
    a("s_waitcnt vmcnt(0)")
    a("v_cmp_ne_u32 vcc, 1, v29")
    a("s_cmp_gt_u32 s34, %d" % SPIN_MAX)
    a("s_cbranch_scc1 %s_pzx" % name)
    a("s_cbranch_vccz %s_pzx" % name)
    a("s_sleep 8")
    a("s_branch %s_pz" % name)
    a.label("%s_pzx" % name)
    a("v_mov_b32 v27, 1")
    a("ds_write_b32 v26, v27 offset:4")
    a("s_branch %s_pgo" % name)
    a.label("%s_pl" % name)
    a("ds_read_b32 v27, v26 offset:4")
    a("s_add_u32 s34, s34, 1")
    a("s_waitcnt lgkmcnt(0)")
    a("v_readfirstlane_b32 s36, v27")
    a("s_cmp_gt_u32 s34, %d" % (SPIN_MAX * 20))
    a("s_cbranch_scc1 %s_pgo" % name)
    a("s_cmp_lg_u32 s36, 0")
    a("s_cbranch_scc1 %s_pgo" % name)
    a("s_sleep 2")
    a("s_branch %s_pl" % name)
    a.label("%s_pgo" % name)
    stamp(a, 8)
    for g in range(4):
        a("s_add_u32 s35, s24, %d" % (g * SLOT + TREG))
        a("s_mov_b32 m0, s35")
        a("s_add_u32 s36, s27, %d" % (18432 * g))
        a("s_add_u32 s37, s36, s32")
        for n in range(4):
            a("buffer_load_dwordx4 v14, s[12:15], s36 offen offset:%d sc1 lds" % (n * 1024))
        a("s_add_u32 s35, s35, s32")
        a("s_mov_b32 m0, s35")
        a("s_mov_b64 exec, 0xffffffff")
        a("buffer_load_dwordx4 v14, s[12:15], s37 offen sc1 lds")
        a("s_mov_b64 exec, -1")
    a("s_add_u32 s26, s26, 512")
    a("s_add_u32 s27, s27, %d" % (4 * 18432))
    a("s_mov_b32 s33, 0")
    a("s_lshl_b32 s43, s2, 2")
    a("s_add_u32 s43, s43, s3")
    a("s_and_b32 s53, s43, 1")
    a("s_sub_u32 s36, s43, 448")
    a("s_lshr_b32 s37, s43, 1")
    a("s_cmp_ge_u32 s43, 896")
    a("s_cselect_b32 s43, s36, s37")
    a("s_cselect_b32 s53, 2, s53")
    a("s_waitcnt vmcnt(15)")
    a("s_barrier")
    a("s_waitcnt vmcnt(10)")
    a("s_barrier")
    a("s_waitcnt vmcnt(5)")
    a("s_barrier")
    a("s_mov_b32 s34, 4")
    def issue2():
        a("s_add_u32 s35, s33, s24")
        a("s_mov_b32 m0, s35")
        a("s_add_u32 s36, s35, %d" % TREG)
        for n in range(4):
            a("buffer_load_dwordx4 v%d, s[8:11], s26 offen offset:%d lds" % (10 + n, n * 1024))
        a("s_mov_b32 m0, s36")
        a("s_add_u32 s37, s27, s32")
        for n in range(4):
            a("buffer_load_dwordx4 v14, s[12:15], s27 offen offset:%d sc1 lds" % (n * 1024))
        a("s_add_u32 s36, s36, s32")
        a("s_mov_b32 m0, s36")
        a("s_mov_b64 exec, 0xffffffff")
        a("buffer_load_dwordx4 v14, s[12:15], s37 offen sc1 lds")
        a("s_mov_b64 exec, -1")
        a("s_add_u32 s26, s26, 128")
        a("s_add_u32 s27, s27, 18432")
        a("s_add_u32 s33, s33, %d" % SLOT)
        a("s_cmp_eq_u32 s33, %d" % (R * SLOT))
        a("s_cselect_b32 s33, 0, s33")
    a.label("%s_lloop" % name)
    issue2()
    a("s_cmp_eq_u32 s34, 18")
    a("s_cbranch_scc1 %s_hk1" % name)
    a("s_cmp_eq_u32 s34, 21")
    a("s_cbranch_scc1 %s_hk2" % name)
    a("s_waitcnt vmcnt(9)")
    a.label("%s_lcont" % name)
    a("s_barrier")
    a("s_add_u32 s34, s34, 1")
    a("s_cmp_lt_u32 s34, 32")
    a("s_cbranch_scc1 %s_lloop" % name)
    a("s_branch %s_ldone" % name)
    a.label("%s_hk1" % name)
    a("v_and_b32 v28, 15, v2")
    a("v_lshlrev_b32 v28, 2, v28")
    a("buffer_load_dword v29, v28, s[60:63], 0 offen offset:128 sc1")
    a("s_waitcnt vmcnt(10)")
    a("s_branch %s_lcont" % name)
    a.label("%s_hk2" % name)
    a("s_mov_b32 s52, 0")
    a.label("%s_hk2l" % name)
    a("v_cmp_gt_u32 vcc, 16, v29")
    a("s_add_u32 s52, s52, 1")
    a("s_cmp_gt_u32 s52, %d" % SPIN_MAX)
    a("s_cbranch_scc1 %s_hk2g" % name)
    a("s_cbranch_vccz %s_hk2g" % name)
    a("s_sleep 16")
    a("buffer_load_dword v29, v28, s[60:63], 0 offen offset:128 sc1")
    a("s_waitcnt vmcnt(0)")
    a("s_branch %s_hk2l" % name)
    a.label("%s_hk2g" % name)
    nconv = emit_conv_loads(a, " sc1")
    a("s_waitcnt vmcnt(%d)" % (9 + nconv))
    a("s_branch %s_lcont" % name)
    a.label("%s_ldone" % name)
    a("s_waitcnt vmcnt(0)")
    a("s_barrier")
    a("s_mov_b32 s26, s53")
    a("s_and_b32 s27, s3, 1")
    a("s_mul_i32 s27, s27, %d" % CJ_SIZE)
    a("s_lshr_b32 s36, s3, 1")
    a("s_mul_i32 s36, s36, %d" % SLOT)
    a("s_add_u32 s27, s27, s36")
    a("s_add_u32 s27, s27, %d" % RB)
    def mid():
        a("s_barrier")
        a("s_setprio 0")
    sv = set(DBG); DBG.discard("stamp")
    emit_conv_job(a, name, mid)
    DBG.update(sv)
    G.stamp_rt(a, 1)
    a.label("%s_end" % name)
    a("s_endpgm")
    return a.text(), kernel_desc(name, 256, 256), (name, 256, 512, LDSB)

def gen_kf4(name="k1_kernel", R=4):
    a = Asm()
    RB = 4096; SLOT = 34816; TREG = 16384; FS = 288; RST = 0
    LDSB = RB + R * SLOT
    LC = 2048
    ZFLG = 0x2D00000
    from gen3 import emit_conv_loads, emit_conv_job, CJ_SIZE
    def capture(f, *args):
        lb = len(a.lines); f(*args); out = a.lines[lb:]; del a.lines[lb:]; return out
    kernel_begin(a, name)
    a("s_load_dwordx2 s[80:81], s[0:1], 0")
    a("s_load_dwordx2 s[4:5], s[0:1], 56")
    a("s_load_dwordx2 s[6:7], s[0:1], 104")
    a("s_load_dwordx2 s[18:19], s[0:1], 96")
    a("s_cmp_ge_u32 s2, 256")
    a("s_cbranch_scc1 %s_end" % name)
    a("v_lshrrev_b32 v1, 6, v0")
    a("v_and_b32 v2, 63, v0")
    a("v_readfirstlane_b32 s3, v1")
    G2.tile_ij(a)
    a("s_lshr_b32 s98, s3, 2")
    a("s_mov_b32 s54x, 0".replace("s54x", "s99"))
    a("s_and_b32 s3, s3, 3")
    a("s_lshr_b32 s24, s3, 1")
    a("s_and_b32 s25, s3, 1")
    a("v_and_b32 v3, 15, v2")
    VT = 204; VF = 208
    def loader_setup():
        a("v_lshrrev_b32 v5, 3, v2")
        a("v_and_b32 v4, 7, v2")
        a("s_lshl_b32 s36, s3, 5")
        a("v_add_u32 v5, s36, v5")
        a("v_lshrrev_b32 v7, 4, v2")
        a("v_xor_b32 v7, v7, v4")
        a("v_mul_u32_u24 v6, 1152, v5")
        a("v_lshl_add_u32 v%d, v7, 4, v6" % VT)
        a("v_xor_b32 v%d, 64, v%d" % (VT + 1, VT))
        a("v_add_u32 v%d, %d, v%d" % (VT + 1, 9216 - 1024, VT + 1))
        a("v_add_u32 v%d, %d, v%d" % (VT + 2, 2 * (9216 - 1024), VT))
        a("v_add_u32 v%d, %d, v%d" % (VT + 3, 2 * (9216 - 1024), VT + 1))
        a("s_lshl_b32 s84, s3, 12")
        a("s_add_u32 s84, s84, %d" % RB)
        a("s_lshl_b32 s85, s3, 9")
        a("s_add_u32 s85, s85, %d" % (RB + TREG + 16384))
    def loader_setup2():
        for n in range(5):
            if n < 4:
                a("s_lshl_b32 s36, s3, 8")
                a("s_add_u32 s36, s36, %d" % (64 * n))
            else:
                a("s_lshl_b32 s36, s3, 5")
                a("s_add_u32 s36, s36, 1024")
            a("v_add_u32 v6, s36, v2")
            a("v_mul_u32_u24 v7, 3641, v6")
            a("v_lshrrev_b32 v7, 16, v7")
            a("v_mul_u32_u24 v8, 18, v7")
            a("v_sub_u32 v8, v6, v8")
            a("v_and_b32 v9, 35, v7")
            a("v_bfe_u32 v6, v7, 2, 2")
            a("v_lshl_add_u32 v9, v6, 3, v9")
            a("v_bfe_u32 v6, v7, 4, 1")
            a("v_lshl_add_u32 v9, v6, 2, v9")
            a("v_mul_u32_u24 v9, 9216, v9")
            a("v_lshl_add_u32 v%d, v8, 4, v9" % (VF + n))
            if 0 < n < 4: a("v_subrev_u32 v%d, %d, v%d" % (VF + n, 1024 * n, VF + n))
    def issueT(g):
        st = g % 9
        a("s_add_u32 s86, s84, %d" % ((g % R) * SLOT))
        a("s_mov_b32 m0, s86")
        a("s_add_u32 s87, s82, %d" % (128 * st))
        for n in range(4):
            a("buffer_load_dwordx4 v%d, s[28:31], s87 offen offset:%d lds" % (VT + n, 1024 * n))
    def issueF(g):
        st = g % 9
        a("s_add_u32 s86, s84, %d" % ((g % R) * SLOT + TREG))
        a("s_mov_b32 m0, s86")
        a("s_add_u32 s87, s83, %d" % (64 * 9216 * st + (4608 if g < 9 else 0)))
        for n in range(4):
            a("buffer_load_dwordx4 v%d, s[8:11], s87 offen offset:%d lds" % (VF + n, 1024 * n))
        a("s_add_u32 s86, s85, %d" % ((g % R) * SLOT))
        a("s_mov_b32 m0, s86")
        a("s_mov_b64 exec, 0xffffffff")
        a("buffer_load_dwordx4 v%d, s[8:11], s87 offen lds" % (VF + 4))
        a("s_mov_b64 exec, -1")
    def srds_main():
        srd(a, 28, 80, 2048 * 576 * 2)
        srd(a, 8, 4, 576 * 4608 * 2)
        srd(a, 12, 6, WS_BYTES)
        srd(a, 60, 18, 256)
        a("s_mul_i32 s82, s22, %d" % (128 * 1152))
        a("s_mul_i32 s83, s23, 288")
    ACC = 128; FB = [16, 52]; CS = 216; ONE = 236
    vTa = [4, 5]; vTb = [6, 7]; vF = 8; vFh = 9
    bTa = [88, 89]; bTb = [90, 91]; bF = 92; bFh = 93
    def mma_setup():
        a("v_lshrrev_b32 v10, 4, v2")
        a("v_lshrrev_b32 v11, 1, v3")
        a("v_xor_b32 v10, v10, v11")
        a("v_lshlrev_b32 v10, 4, v10")
        a("v_lshl_add_u32 v10, v3, 7, v10")
        a("s_lshl_b32 s26, s24, 13")
        a("s_add_u32 s26, s26, %d" % RB)
        a("v_add_u32 v10, s26, v10")
        a("s_lshl_b32 s26, s25, 12")
        a("v_add_u32 v%d, s26, v10" % bTa[0])
        a("s_xor_b32 s26, s26, 4096")
        a("v_add_u32 v%d, s26, v10" % bTb[0])
        a("v_xor_b32 v%d, 64, v%d" % (bTa[1], bTa[0]))
        a("v_xor_b32 v%d, 64, v%d" % (bTb[1], bTb[0]))
        a("v_lshrrev_b32 v10, 2, v2")
        a("v_mul_u32_u24 v10, %d, v10" % FS)
        a("v_and_b32 v11, 3, v2")
        a("v_lshl_add_u32 v10, v11, 3, v10")
        a("v_add_u32 v10, %d, v10" % (RB + TREG))
        a("s_mul_i32 s26, s25, 160")
        a("v_add_u32 v%d, s26, v10" % bF)
        a("v_add_u32 v%d, 128, v10" % bFh)
        for r in range(ACC, ACC + 72): a("v_mov_b32 v%d, 0" % r)
        for r in range(CS, CS + 20): a("v_mov_b32 v%d, 0" % r)
        for r in range(ONE, ONE + 4): a("v_mov_b32 v%d, 0x3f803f80" % r)
    def mma_addr(slot):
        a("s_mov_b32 s27, %d" % (slot * SLOT))
        for d, s_ in ((vTa[0], bTa[0]), (vTb[0], bTb[0]), (vTa[1], bTa[1]), (vTb[1], bTb[1]), (vF, bF), (vFh, bFh)):
            a("v_add_u32 v%d, s27, v%d" % (d, s_))
    core = G.Core(a, ACC, FB[0], FB[1], FS, TREG, vTa, vTb, vF, vFh)
    trk = core.trk
    a("s_cmp_eq_u32 s98, 0")
    a("s_cbranch_scc1 %s_A0" % name)
    a("s_setprio 3")
    loader_setup()
    a("s_waitcnt lgkmcnt(0)")
    srds_main()
    vm = VmTracker(a)
    def issue(g, vmx):
        issueT(g); issueF(g); vmx.issue("S%d" % g, 9)
    issueT(0)
    loader_setup2()
    issueF(0); vm.issue("S0", 9)
    issue(1, vm); issue(2, vm); issue(3, vm)
    a("s_add_u32 s3, s3, 4"); stamp_setup(a, 1); stamp(a, 0); a("s_sub_u32 s3, s3, 4")
    mma_setup()
    RA = 96; XB = 112
    for r in range(RA, RA + 16): a("v_mov_b32 v%d, 0" % r)
    a("v_lshrrev_b32 v10, 4, v2")
    a("v_lshrrev_b32 v11, 1, v3")
    a("v_xor_b32 v10, v10, v11")
    a("v_lshlrev_b32 v10, 4, v10")
    a("v_lshl_add_u32 v10, v3, 7, v10")
    a("v_add_u32 v12, s84, v10")
    a("v_xor_b32 v13, 64, v12")
    def rs_rd(g):
        a("v_add_u32 v10, %d, v12" % ((g % R) * SLOT))
        a("v_add_u32 v11, %d, v13" % ((g % R) * SLOT))
        for h in range(2):
            for n in range(2):
                a("ds_read_b128 %s, v%d offset:%d" % (vr(XB + 8 * h + 4 * n), 10 + h, 2048 * n))
    def rs_do():
        for h in range(2):
            for n in range(2):
                x = XB + 8 * h + 4 * n
                a("v_mfma_f32_16x16x32_bf16 %s, %s, %s, %s" % (vr(RA + 4 * n), vr(ONE), vr(x), vr(RA + 4 * n)))
                a("v_mfma_f32_16x16x32_bf16 %s, %s, %s, %s" % (vr(RA + 8 + 4 * n), vr(x), vr(x), vr(RA + 8 + 4 * n)))
    def interleave(dma, comp, vmx=None):
        groups = []; cur = []
        for l in dma:
            cur.append(l)
            if "buffer_load" in l and not any("exec, 0xffffffff" in x for x in cur[-2:]):
                groups.append(cur); cur = []
            elif "exec, -1" in l:
                groups.append(cur); cur = []
        if cur: groups.append(cur)
        ns = max(1, len(groups))
        per = (len(comp) + ns - 1) // ns
        for g in groups:
            a.lines.extend(g)
            a.lines.extend(comp[:per]); comp = comp[per:]
        a.lines.extend(comp)
    vm.wait(["S0"])
    a("s_barrier")
    stamp(a, 1)
    rs_rd(0)
    vm.wait(["S1"])
    a("s_barrier")
    for k in range(9):
        a("s_waitcnt lgkmcnt(0)")
        dma = capture(lambda: (issueT(k + 3), issueF(k + 3))) if 1 <= k < 8 else []
        interleave(dma, capture(rs_do))
        if 1 <= k < 8: vm.issue("S%d" % (k + 3), 9)
        if k < 8:
            rs_rd(k + 1)
        else:
            a("s_nop 7")
            a("v_lshrrev_b32 v10, 4, v2")
            a("v_lshrrev_b32 v11, 2, v3")
            a("v_and_b32 v12, 3, v3")
            for n in range(2):
                G_ = RA + 8 + 4 * n
                for r in range(1, 4):
                    a("v_cmp_eq_u32 vcc, %d, v12" % r)
                    a("s_nop 1")
                    a("v_cndmask_b32 v%d, v%d, v%d, vcc" % (G_, G_, G_ + r))
            ML = 112
            for n in range(2):
                emit_ln_finish(a, RA + 4 * n, RA + 8 + 4 * n, 576, ML + 2 * n, ML + 2 * n + 1, 120)
                a("v_mov_b32 v%d, v%d" % (117 + 2 * n, ML + 2 * n + 1))
                a("v_sub_f32 v%d, 0, v%d" % (116 + 2 * n, ML + 2 * n))
            a("s_lshl_b32 s35, s3, 8")
            a("v_lshlrev_b32 v13, 3, v3")
            a("v_add_u32 v12, s35, v13")
            a("v_cmp_eq_u32 vcc, v10, v11")
            a("s_and_saveexec_b64 s[36:37], vcc")
            for n in range(2):
                a("ds_write_b64 v12, %s offset:%d" % (vr(116 + 2 * n, 2), RST + 128 * n))
            a("s_mov_b64 exec, s[36:37]")
            a("s_cmp_lg_u32 s23, 0")
            a("s_cbranch_scc1 %s_nost1" % name)
            a("s_lshl_b32 s35, s22, 7")
            a("s_lshl_b32 s36, s3, 5")
            a("s_add_u32 s35, s35, s36")
            a("s_lshl_b32 s35, s35, 3")
            a("s_add_u32 s35, s35, 0x%x" % STATS1)
            a("v_mov_b32 v11, 0x7ffffff0")
            a("v_cndmask_b32 v13, v11, v13, vcc")
            for n in range(2):
                a("buffer_store_dwordx2 %s, v13, s[12:15], s35 offen offset:%d" % (vr(ML + 2 * n, 2), 128 * n))
            a.label("%s_nost1" % name)
        if k < 8:
            vm.wait(["S%d" % (k + 2)])
            a("s_barrier")
    HO = lambda: None
    def ho_addr():
        a("s_lshr_b32 s36, s3, 1")
        a("s_mul_i32 s36, s36, %d" % (3 * SLOT))
        a("s_and_b32 s37, s3, 1")
        a("s_mul_i32 s37, s37, 12288")
        a("s_add_u32 s36, s36, s37")
        a("s_add_u32 s36, s36, %d" % RB)
        a("v_lshlrev_b32 v10, 4, v2")
        a("v_add_u32 v95, s36, v10")
    a("s_waitcnt lgkmcnt(0)")
    a("s_barrier")
    ho_addr()
    a("s_barrier")
    n_ = 0
    for ft in range(4):
        for tt in range(2):
            a("ds_read_b128 %s, v95 offset:%d" % (vr(core.accr(ft, tt)), 1024 * n_)); n_ += 1
    for ft in range(4):
        a("ds_read_b128 %s, v95 offset:%d" % (vr(CS + 4 * ft), 1024 * n_)); n_ += 1
    a("s_branch %s_g2" % name)
    a.label("%s_A0" % name)
    emit_code_prefetch(a, name)
    a("s_load_dwordx4 s[64:67], s[0:1], 8")
    a("s_load_dwordx2 s[76:77], s[0:1], 24")
    a("s_load_dwordx2 s[78:79], s[0:1], 64")
    mma_setup()
    loader_setup(); loader_setup2()
    a("s_waitcnt lgkmcnt(0)")
    srds_main()
    srd(a, 68, 66, 2048 * 576 * 2)
    a("s_mov_b32 s88, s64"); a("s_mov_b32 s89, s65")
    srd(a, 64, 88, 2048 * 576 * 2)
    srd(a, 72, 76, 576 * 8)
    stamp_setup(a, 1); stamp(a, 0)
    def gran_addr():
        a("v_lshrrev_b32 v10, 4, v2")
        a("s_lshl_b32 s36, s25, 1")
        a("v_add_u32 v11, s36, v10")
        a("v_and_b32 v11, 3, v11")
        a("v_lshl_add_u32 v11, v11, 4, v3")
        a("v_lshlrev_b32 v94, 8, v11")
        a("s_lshl_b32 s59, s22, 7")
        a("s_lshl_b32 s36, s24, 6")
        a("s_add_u32 s59, s59, s36")
        a("s_lshl_b32 s59, s59, 8")
        a("s_add_u32 s59, s59, 0x%x" % STATS2)
        a("s_lshl_b32 s36, s23, 1")
        a("s_add_u32 s36, s36, s25")
        a("s_lshl_b32 s36, s36, 3")
        a("s_add_u32 s58, s36, s59")
    gran_addr()
    a("v_mov_b32 v12, 0"); a("v_mov_b32 v13, 0x80000000")
    a("buffer_store_dwordx2 v[12:13], v94, s[12:15], s58 offen sc1")
    a("s_lshl_b32 s36, s22, 4")
    a("s_add_u32 s36, s36, s23")
    a("s_lshl_b32 s36, s36, 8")
    a("s_add_u32 s97, s36, 0x%x" % ZFLG)
    a("v_mov_b32 v10, %d" % LC)
    a("v_mov_b32 v12, 0"); a("v_mov_b32 v13, 0")
    a("s_mov_b64 exec, 1")
    a("buffer_store_dword v12, v12, s[12:15], s97 offen sc1")
    a("s_mov_b64 exec, -1")
    a("ds_write_b64 v10, v[12:13]")
    a("ds_write_b64 v10, v[12:13] offset:8")
    mma_addr(0)
    a("s_mov_b32 s33, 0")
    a("s_waitcnt lgkmcnt(0)")
    a("s_barrier")
    stamp(a, 1)
    a.label("%s_mma" % name)
    core.prime(0, core.reads(0, 0))
    trk.drain()
    nocs = [False]
    def mfmas(buf):
        L = []
        for ft in range(5):
            A = core.F(buf, ft)
            for tt in range(4 if ft < 4 else 2):
                c = core.accr(ft, tt); B = core.T(buf, tt)
                L.append(("v_mfma_f32_16x16x32_bf16 %s, %s, %s, %s" % (vr(c), vr(A), vr(B), vr(c)), list(range(A, A + 4)) + list(range(B, B + 4))))
            if not nocs[0]: L.append(("v_mfma_f32_16x16x32_bf16 %s, %s, %s, %s" % (vr(CS + 4 * ft), vr(A), vr(ONE), vr(CS + 4 * ft)), list(range(A, A + 4))))
        return L
    def phase(buf, pend):
        for (m, regs) in mfmas(buf):
            trk.need(regs)
            a(m)
            while pend:
                k, t = pend.pop(0)
                if k == "x":
                    a(t)
                    if t.startswith("s_"): continue
                else:
                    a(t[0]); trk.issue(t[1])
                break
        for k, t in pend:
            if k == "x": a(t)
            else: a(t[0]); trk.issue(t[1])
    def iteration(vw=True):
        if vw: a("s_waitcnt vmcnt(0)")
        a("s_barrier")
        rd = [("r", t) for t in core.reads(1, 1)]
        upd = ["s_add_u32 s27, s27, %d" % SLOT, "s_cmp_eq_u32 s27, %d" % (R * SLOT), "s_cselect_b32 s27, 0, s27"]
        tail = ["v_add_u32 v%d, s27, v%d" % (d, s_) for d, s_ in ((vTa[0], bTa[0]), (vF, bF), (vTb[0], bTb[0]), (vFh, bFh))]
        phase(0, rd[:1] + [("x", u) for u in upd] + rd[1:] + [("x", u) for u in tail])
        rd = [("r", t) for t in core.reads(0, 0)]
        tail = ["v_add_u32 v%d, s27, v%d" % (d, s_) for d, s_ in ((vTa[1], bTa[1]), (vTb[1], bTb[1]))] + ["s_add_u32 s33, s33, 1"]
        phase(1, rd + [("x", u) for u in tail])
    a.label("%s_cloop" % name)
    lb = len(a.lines); iteration(); st = copy.deepcopy(trk.out); del a.lines[lb:]; trk.out = copy.deepcopy(st)
    iteration()
    assert [sorted(x) for x in trk.out] == [sorted(x) for x in st]
    a("s_cmp_lt_u32 s33, 9")
    a("s_cbranch_scc1 %s_cloop" % name)
    trk.drain()
    stamp(a, 2)
    MR = 100; T = 72; ZP = 16
    a("s_cmp_eq_u32 s98, 1")
    a("s_cbranch_scc1 %s_Btail" % name)
    a("s_waitcnt vmcnt(0)")
    a("s_barrier")
    a("s_cmp_lg_u32 s3, 0")
    a("s_cbranch_scc1 %s_nosig" % name)
    a("v_mov_b32 v10, 1")
    a("s_lshl_b32 s36, s22, 2")
    a("v_mov_b32 v11, s36")
    a("s_mov_b64 exec, 1")
    a("buffer_atomic_add v10, v11, s[60:63], 0 offen sc1")
    a("s_mov_b64 exec, -1")
    a.label("%s_nosig" % name)
    ho_addr()
    n_ = 0
    for ft in range(4):
        for tt in range(2):
            a("ds_write_b128 v95, %s offset:%d" % (vr(core.accr(ft, tt + 2)), 1024 * n_)); n_ += 1
    for ft in range(4):
        a("ds_write_b128 v95, %s offset:%d" % (vr(CS + 4 * ft), 1024 * n_)); n_ += 1
    a("s_waitcnt lgkmcnt(0)")
    a("s_barrier")
    a.label("%s_g2" % name)
    gelu_consts(a)
    a("s_xor_b32 s52, s98, s25")
    a("s_lshl_b32 s36, s24, 9")
    a("s_lshl_b32 s37, s52, 8")
    a("s_add_u32 s38, s36, s37")
    a("v_lshlrev_b32 v10, 3, v3")
    a("v_add_u32 v11, s38, v10")
    a("ds_read_b64 %s, v11 offset:%d" % (vr(MR, 2), RST))
    a("ds_read_b64 %s, v11 offset:%d" % (vr(MR + 2, 2), RST + 128))
    for r_ in range(108, 112): a("v_mov_b32 v%d, 0" % r_)
    a("s_waitcnt lgkmcnt(0)")
    ZPo = lambda n: 16 + 2 * n
    def dots2(lst):
        for d in range(2):
            for (ft, tt) in lst:
                p = ZPo(2 * ft + tt) + d
                a("v_dot2_f32_bf16 v%d, v%d, v%d, v%d" % (108 + 2 * tt, p, ONE, 108 + 2 * tt))
                a("v_dot2_f32_bf16 v%d, v%d, v%d, v%d" % (109 + 2 * tt, p, p, 109 + 2 * tt))
    a("s_cmp_lg_u32 s98, 0")
    a("s_cbranch_scc1 %s_nohalf" % name)
    lst = [(4, 0), (4, 1)]
    emit_fold_gelu(a, [(core.accr(ft, tt), CS + 4 * ft, MR + 2 * tt, ZPo(2 * ft + tt)) for ft, tt in lst], T)
    dots2(lst)
    a.label("%s_nohalf" % name)
    for f0 in (0, 2):
        lst = [(ft, tt) for ft in (f0, f0 + 1) for tt in range(2)]
        emit_fold_gelu(a, [(core.accr(ft, tt), CS + 4 * ft, MR + 2 * tt, ZPo(2 * ft + tt)) for ft, tt in lst], T)
        dots2(lst)
    a("s_nop 2")
    emit_xg_reduce(a, [108, 110, 109, 111], 72)
    a("s_lshl_b32 s40, s22, 7")
    a("s_lshl_b32 s36, s24, 6")
    a("s_add_u32 s40, s40, s36")
    a("s_lshl_b32 s40, s40, 8")
    a("s_add_u32 s59, s40, 0x%x" % STATS2)
    a("s_lshl_b32 s36, s52, 13")
    a("s_add_u32 s40, s59, s36")
    a("s_lshl_b32 s36, s23, 1")
    a("s_add_u32 s36, s36, s25")
    a("s_lshl_b32 s36, s36, 3")
    a("s_add_u32 s40, s40, s36")
    a("v_lshrrev_b32 v10, 4, v2")
    a("v_lshlrev_b32 v11, 8, v2")
    a("v_cmp_gt_u32 vcc, 32, v2")
    a("v_mov_b32 v12, 0x7ffffff0")
    a("v_cmp_eq_u32 s[36:37], 1, v10")
    a("v_cndmask_b32 v11, v12, v11, vcc")
    a("s_nop 0")
    a("v_cndmask_b32 v108, v108, v110, s[36:37]")
    a("v_cndmask_b32 v109, v109, v111, s[36:37]")
    a("v_and_b32 v109, 0x7fffffff, v109")
    a("buffer_store_dwordx2 v[108:109], v11, s[12:15], s40 offen sc1")
    a("s_cmp_eq_u32 s98, 0")
    a("s_cbranch_scc1 %s_A1" % name)
    for q in range(4):
        a("ds_write_b128 v95, %s offset:%d" % (vr(16 + 4 * q), 1024 * q))
    for r in range(ACC, ACC + 72): a("v_mov_b32 v%d, 0" % r)
    for r in range(CS, CS + 20): a("v_mov_b32 v%d, 0" % r)
    mma_addr(9 % R)
    a("s_mov_b32 s33, 0")
    a("s_setprio 0")
    a("s_waitcnt lgkmcnt(0)")
    stamp(a, 9)
    a("s_barrier")
    a("s_branch %s_mma" % name)
    def epi_in():
        gelu_consts(a)
        a("s_lshl_b32 s36, s24, 9")
        a("s_lshl_b32 s37, s25, 8")
        a("s_add_u32 s38, s36, s37")
        a("s_xor_b32 s37, s37, 256")
        a("s_add_u32 s39, s36, s37")
        a("v_lshlrev_b32 v10, 3, v3")
        a("v_add_u32 v11, s38, v10")
        a("ds_read_b64 %s, v11 offset:%d" % (vr(MR, 2), RST))
        a("ds_read_b64 %s, v11 offset:%d" % (vr(MR + 2, 2), RST + 128))
        a("v_add_u32 v11, s39, v10")
        a("ds_read_b64 %s, v11 offset:%d" % (vr(MR + 4, 2), RST))
        a("ds_read_b64 %s, v11 offset:%d" % (vr(MR + 6, 2), RST + 128))
        a("s_waitcnt lgkmcnt(0)")
    S = [108, 110, 52, 54]; Q = [109, 111, 53, 55]
    def gelu_ft(ft, stats):
        tts = range(4 if ft < 4 else 2)
        emit_fold_gelu(a, [(core.accr(ft, tt), CS + 4 * ft, MR + 2 * tt, ZP + 2 * tidx(ft, tt)) for tt in tts], T)
        if stats:
            for d in range(2):
                for tt in tts:
                    p = ZP + 2 * tidx(ft, tt) + d
                    a("v_dot2_f32_bf16 v%d, v%d, v%d, v%d" % (S[tt], p, ONE, S[tt]))
                    a("v_dot2_f32_bf16 v%d, v%d, v%d, v%d" % (Q[tt], p, p, Q[tt]))
    a.label("%s_Btail" % name)
    a("v_mov_b32 v10, %d" % (LC + 12))
    a("v_mov_b32 v11, 1")
    a("s_mov_b64 exec, 1")
    a("ds_add_u32 v10, v11")
    a("s_mov_b64 exec, -1")
    a("s_load_dwordx2 s[94:95], s[0:1], 80")
    a("s_load_dwordx2 s[92:93], s[0:1], 72")
    epi_in()
    srd(a, 76, 94, 2304 * 576 * 2)
    srd(a, 28, 92, 2048 * 2)
    a("v_and_b32 v0, 255, v0")
    for ft in range(5): gelu_ft(ft, False)
    Z1R = 200; BI = 236
    for r_ in range(36): a("v_mov_b32 v%d, v%d" % (Z1R + r_, ZP + r_))
    stamp(a, 3)
    a("s_mov_b32 s42, s2")
    emit_wot_loads(a, 100, 112, 720, 3)
    a("s_lshl_b32 s36, s22, 7")
    a("s_lshl_b32 s37, s24, 6")
    a("s_add_u32 s36, s36, s37")
    a("v_lshlrev_b32 v11, 1, v3")
    a("s_lshl_b32 s37, s25, 6")
    a("s_lshl_b32 s38, s36, 1")
    a("s_add_u32 s39, s38, s37")
    a("s_xor_b32 s37, s37, 64")
    a("s_add_u32 s36, s38, s37")
    a("buffer_load_ushort v96, v11, s[28:31], s39 offen")
    a("buffer_load_ushort v97, v11, s[28:31], s39 offen offset:32")
    a("buffer_load_ushort v98, v11, s[28:31], s36 offen")
    a("buffer_load_ushort v99, v11, s[28:31], s36 offen offset:32")
    for r in range(ACC, ACC + 72): a("v_mov_b32 v%d, 0" % r)
    mma_addr(0)
    a("s_mov_b32 s33, 0")
    stamp(a, 4)
    a("s_barrier")
    stamp(a, 5)
    core.prime(0, core.reads(0, 0))
    trk.drain()
    nocs[0] = True
    a.label("%s_gloop" % name)
    lb = len(a.lines); iteration(False); st = copy.deepcopy(trk.out); del a.lines[lb:]; trk.out = copy.deepcopy(st)
    iteration(False)
    assert [sorted(x) for x in trk.out] == [sorted(x) for x in st]
    a("s_cmp_lg_u32 s33, 3")
    a("s_cbranch_scc1 %s_ghk" % name)
    a("s_waitcnt vmcnt(0)")
    for n in range(3):
        a("buffer_store_dwordx4 %s, v%d, s[12:15], s40 offen" % (vr(100 + 4 * n), 112 + n))
    for tt in range(4): a("v_lshlrev_b32 v%d, 16, v%d" % (BI + 2 * tt, 96 + tt))
    a.label("%s_ghk" % name)
    a("s_cmp_lt_u32 s33, 32")
    a("s_cbranch_scc1 %s_gloop" % name)
    trk.drain()
    stamp(a, 6)
    G3.emit_k2_epilogue(a, core, Z1R, BI)
    stamp(a, 7)
    G.stamp_rt(a, 1)
    a("s_branch %s_end" % name)
    a.label("%s_A1" % name)
    a("s_setprio 2")
    a("s_load_dwordx4 s[88:91], s[0:1], 32")
    vmA = VmTracker(a)
    stamp(a, 9)
    a("s_barrier")
    for q in range(4):
        a("ds_read_b128 %s, v95 offset:%d" % (vr(36 + 4 * q), 1024 * q))
    def zreg(ft, tt):
        return (16 + 2 * (2 * ft + tt)) if tt < 2 else (36 + 2 * (2 * ft + tt - 2))
    GB = [128, 144, 160, 176]
    def gather():
        for tt in range(4):
            for q in range(4):
                a("buffer_load_dwordx4 %s, v4, s[12:15], s%d offen offset:%d sc1" % (vr(GB[tt] + 4 * q), (52, 42, 53, 43)[tt], 16 * q))
    def st_finish():
        for tt in range(4):
            b = GB[tt]
            for st_ in (8, 4, 2):
                for q in range(0, st_, 2):
                    a("v_pk_add_f32 %s, %s, %s" % (vr(b + q, 2), vr(b + q, 2), vr(b + q + st_, 2)))
        emit_xg_reduce(a, [GB[tt] + e for tt in range(4) for e in range(2)], 72)
        for tt in range(4):
            b = GB[tt]
            emit_ln_finish(a, b, b + 1, 2304, b + 2, MR + 2 * tt, b + 4)
            a("v_mul_f32 v%d, -v%d, v%d" % (MR + 2 * tt + 1, b + 2, MR + 2 * tt))
    def z_addr():
        a("v_lshrrev_b32 v10, 4, v2")
        a("v_lshrrev_b32 v11, 2, v2"); a("v_and_b32 v11, 1, v11"); a("v_lshlrev_b32 v11, 4, v11")
        a("v_lshrrev_b32 v5, 3, v2"); a("v_and_b32 v5, 1, v5"); a("v_lshl_add_u32 v11, v5, 2, v11")
        a("v_and_b32 v5, 3, v2"); a("v_add_u32 v11, v11, v5")
        a("v_mul_u32_u24 v11, 288, v11")
        a("v_lshrrev_b32 v5, 1, v10"); a("v_lshl_add_u32 v11, v5, 4, v11")
        a("v_and_b32 v5, 1, v10")
        a("v_lshl_add_u32 v6, v5, 5, v11")
        a("v_mul_u32_u24 v5, 2304, v5")
        a("v_add_u32 v9, v11, v5")
        a("s_lshl_b32 s33, s23, 5")
        a("s_lshl_b32 s36, s22, 1")
        a("s_add_u32 s33, s33, s36")
        a("s_add_u32 s33, s33, s24")
        a("s_mul_i32 s33, s33, 18432")
        if ZIMG: a("s_add_u32 s33, s33, 0x%x" % ZIMG)
        a("s_mul_i32 s36, s25, 9216")
        a("s_add_u32 s37, s33, s36")
        a("s_xor_b32 s36, s36, 9216")
        a("s_add_u32 s38, s33, s36")
        a("s_add_u32 s39, s37, 128")
        a("s_mul_i32 s36, s25, 160")
        a("s_add_u32 s37, s37, s36")
        a("s_add_u32 s38, s38, s36")
    def norm_pair(tA, tB, O):
        for q, (ft, tt) in enumerate((tA, tB)):
            for d in range(2):
                z = zreg(ft, tt) + d; t_ = T + 4 * q + 2 * d
                a("v_lshlrev_b32 v%d, 16, v%d" % (t_, z))
                a("v_and_b32 v%d, 0xffff0000, v%d" % (t_ + 1, z))
        for q, (ft, tt) in enumerate((tA, tB)):
            for d in range(2):
                t_ = T + 4 * q + 2 * d
                a("v_pk_fma_f32 %s, %s, %s, %s op_sel:[0,0,1] op_sel_hi:[1,0,1]" % (vr(t_, 2), vr(t_, 2), vr(MR + 2 * tt, 2), vr(MR + 2 * tt, 2)))
        for q in range(2):
            for d in range(2):
                t_ = T + 4 * q + 2 * d
                a("v_cvt_pk_bf16_f32 v%d, v%d, v%d" % (O + 2 * q + d, t_, t_ + 1))
        a("s_nop 1")
        a("v_permlane16_swap_b32 v%d, v%d" % (O, O + 2))
        a("v_permlane16_swap_b32 v%d, v%d" % (O + 1, O + 3))
        a("s_nop 0")
    def zstore(idx):
        O = 216 + 4 * idx
        if idx < 8:
            pr, tt = idx >> 2, idx & 3
            norm_pair((2 * pr, tt), (2 * pr + 1, tt), O)
            a("buffer_store_dwordx4 %s, v6, s[12:15], s%d offen offset:%d sc1" % (vr(O), 37 if tt < 2 else 38, (tt & 1) * 2304 + 64 * pr))
        else:
            norm_pair((4, 0), (4, 1), O)
            a("buffer_store_dwordx4 %s, v9, s[12:15], s39 offen sc1" % vr(O))
    def dmas(gs):
        out = []
        for g in gs: out += capture(lambda: (issueT(g), issueF(g)))
        return out
    for k in range(9, 18):
        if k == 9: a("s_waitcnt lgkmcnt(0)")
        a("s_barrier")
        gs = [11, 12] if k == 9 else ([k + 3] if k + 3 < 18 else [])
        if k == 9:
            a.lines.extend(dmas(gs))
            for g in gs: vmA.issue("S%d" % g, 9)
            a("s_lshl_b32 s36, s22, 2")
            a("v_mov_b32 v199, s36")
            a("buffer_load_dword v198, v199, s[60:63], 0 offen sc1"); vmA.issue("cnt", 1)
            a("v_lshrrev_b32 v10, 4, v2")
            a("v_lshlrev_b32 v4, 8, v3")
            a("v_lshl_add_u32 v4, v10, 6, v4")
            a("s_lshl_b32 s33, s25, 13")
            a("s_add_u32 s52, s59, s33")
            a("s_xor_b32 s33, s33, 8192")
            a("s_add_u32 s53, s59, s33")
            a("s_add_u32 s42, s52, 4096")
            a("s_add_u32 s43, s53, 4096")
        elif k == 10:
            a.lines.extend(dmas(gs)); vmA.issue("S13", 9)
            z_addr()
        elif k == 11:
            vmA.wait(["cnt"])
            gather(); vmA.issue("g", 16)
            a.lines.extend(dmas(gs)); vmA.issue("S14", 9)
        elif k == 12:
            a.lines.extend(dmas(gs)); vmA.issue("S15", 9)
        elif k == 13:
            a.lines.extend(dmas(gs)); vmA.issue("S16", 9)
            vmA.wait(["g"])
            a("s_mov_b32 s40, 0")
            a.label("%s_chk" % name)
            a("v_subrev_u32 v11, 16, v198")
            for tt in range(4):
                for r in range(GB[tt] + 1, GB[tt] + 16, 4):
                    a("v_or3_b32 v11, v11, v%d, v%d" % (r, r + 2))
            a("v_cmp_gt_i32 vcc, 0, v11")
            a("s_add_u32 s40, s40, 1")
            a("s_cmp_gt_u32 s40, %d" % SPIN_MAX)
            a("s_cbranch_scc1 %s_ok" % name)
            a("s_cbranch_vccz %s_ok" % name)
            a("s_sleep 16")
            a("buffer_load_dword v198, v199, s[60:63], 0 offen sc1")
            a("s_waitcnt vmcnt(0)")
            gather()
            a("s_waitcnt vmcnt(0)")
            a("s_branch %s_chk" % name)
            a.label("%s_ok" % name)
            stamp(a, 4)
            st_finish()
        elif k == 14:
            for i_ in range(3): zstore(i_)
            vmA.issue("z", 3)
            a.lines.extend(dmas(gs)); vmA.issue("S17", 9)
        elif k == 15:
            for i_ in range(3, 6): zstore(i_)
            vmA.issue("z", 3)
        elif k == 16:
            for i_ in range(6, 9): zstore(i_)
            vmA.issue("z", 3)
            stamp(a, 5)
            a("s_mov_b32 s41, s2")
            emit_kv_loads(a, 128, 140, 148, 152, 153)
            a("s_cmp_ge_u32 s2, 32")
            a("s_cbranch_scc1 %s_kvp" % name)
            a("s_add_u32 s41, s2, 256")
            emit_kv_loads(a, 156, 168, 176, 180, 181)
            a.label("%s_kvp" % name)
        if k == 12:
            srd(a, 92, 78, 2048 * 2048 * 2)
            a("v_lshrrev_b32 v10, 4, v2")
            a("v_lshlrev_b32 v10, 12, v10")
            a("v_lshl_add_u32 v10, v3, 4, v10")
            a("s_lshl_b32 s40, s22, 7")
            a("s_lshl_b32 s36, s3, 5")
            a("s_add_u32 s40, s40, s36")
            a("s_lshl_b32 s40, s40, 12")
            a("s_lshl_b32 s36, s23, 8")
            a("s_add_u32 s40, s40, s36")
            for n in range(8):
                a("buffer_load_dwordx4 v[200:203], v10, s[92:95], s40 offen")
                if n < 7: a("s_add_u32 s40, s40, 16384")
            vmA.issue("wp", 8)
        if 11 <= k + 2 < 18 and k + 2 != 10:
            vmA.wait(["S%d" % (k + 2)])
    stamp(a, 3)
    a("s_setprio 3")
    srd(a, 8, 78, 2048 * 2048 * 2)
    a("v_lshrrev_b32 v3, 3, v2")
    a("s_lshl_b32 s24, s3, 5")
    a("v_add_u32 v3, s24, v3")
    a("v_and_b32 v4, 7, v2")
    a("v_lshrrev_b32 v6, 4, v2")
    a("v_xor_b32 v6, v6, v4")
    a("v_lshlrev_b32 v6, 4, v6")
    a("v_lshl_add_u32 v10, v3, 12, v6")
    a("v_xor_b32 v11, 64, v10")
    a("v_add_u32 v11, %d, v11" % (32768 - 1024))
    a("v_add_u32 v12, %d, v10" % (2 * (32768 - 1024)))
    a("v_add_u32 v13, %d, v11" % (2 * (32768 - 1024)))
    a("v_lshlrev_b32 v14, 4, v2")
    a("s_lshl_b32 s26, s22, 19")
    a("s_mul_i32 s27, s23, %d" % (32 * 18432))
    a("s_lshl_b32 s24, s3, 12")
    a("s_add_u32 s27, s27, s24")
    if ZIMG: a("s_add_u32 s27, s27, 0x%x" % ZIMG)
    a("s_lshl_b32 s25, s3, 9")
    a("s_sub_u32 s32, s25, s24")
    a("s_add_u32 s32, s32, 16384")
    a("s_add_u32 s24, s24, %d" % RB)
    a("s_waitcnt vmcnt(20) lgkmcnt(0)")
    a("v_mov_b32 v26, %d" % LC)
    a("v_mov_b32 v27, 1")
    a("s_mov_b64 exec, 1")
    a("ds_add_rtn_u32 v28, v26, v27")
    a("s_waitcnt lgkmcnt(0)")
    a("v_readfirstlane_b32 s36, v28")
    a("s_cmp_lg_u32 s36, 3")
    a("s_cbranch_scc1 %s_nozs" % name)
    a("v_mov_b32 v28, 0")
    a("buffer_store_dword v27, v28, s[12:15], s97 offen sc1")
    a.label("%s_nozs" % name)
    a("s_mov_b64 exec, -1")
    stamp(a, 7)
    srd(a, 16, 88, 576 * 2048 * 2)
    srd(a, 84, 90, 576 * 2)
    a("s_mov_b32 s34, 0")
    a.label("%s_wb" % name)
    a("ds_read_b32 v27, v26 offset:12")
    a("s_add_u32 s34, s34, 1")
    a("s_waitcnt lgkmcnt(0)")
    a("v_readfirstlane_b32 s36, v27")
    a("s_cmp_gt_u32 s34, %d" % (SPIN_MAX * 20))
    a("s_cbranch_scc1 %s_wbx" % name)
    a("s_cmp_ge_u32 s36, 4")
    a("s_cbranch_scc1 %s_wbx" % name)
    a("s_sleep 2")
    a("s_branch %s_wb" % name)
    a.label("%s_wbx" % name)
    for g in range(4):
        a("s_add_u32 s35, s24, %d" % (g * SLOT))
        a("s_mov_b32 m0, s35")
        a("s_add_u32 s36, s26, %d" % (128 * g))
        for n in range(4):
            a("buffer_load_dwordx4 v%d, s[8:11], s36 offen offset:%d lds" % (10 + n, n * 1024))
    a("v_mov_b32 v250, v12"); a("v_mov_b32 v251, v13"); a("v_mov_b32 v252, v26")
    a("s_mov_b32 s39, 0x%x" % KVT)
    a("s_waitcnt vmcnt(16)")
    for n in range(11): a("v_mov_b32 v%d, v%d" % (16 + n, 128 + n))
    for n in range(8): a("v_mov_b32 v%d, v%d" % (32 + n, 140 + n))
    for n in range(4): a("v_mov_b32 v%d, v%d" % (44 + n, 148 + n))
    a("v_mov_b32 v56, v152"); a("v_mov_b32 v57, v153")
    a.label("%s_kvb" % name)
    emit_kv_compute(a, wait=False, store=False)
    a("buffer_store_dwordx4 v[120:123], v12, s[12:15], s39 offen sc1")
    a("buffer_store_dwordx4 v[124:127], v13, s[12:15], s39 offen sc1")
    a("s_cmp_lt_u32 s41, 256")
    a("s_cbranch_scc1 %s_kvbd" % name)
    a("s_mov_b32 s41, 0")
    for n in range(11): a("v_mov_b32 v%d, v%d" % (16 + n, 156 + n))
    for n in range(8): a("v_mov_b32 v%d, v%d" % (32 + n, 168 + n))
    for n in range(4): a("v_mov_b32 v%d, v%d" % (44 + n, 176 + n))
    a("v_mov_b32 v56, v180"); a("v_mov_b32 v57, v181")
    a("s_branch %s_kvb" % name)
    a.label("%s_kvbd" % name)
    a("s_nop 1")
    a("v_mov_b32 v12, v250"); a("v_mov_b32 v13, v251"); a("v_mov_b32 v26, v252")
    a("s_mov_b32 s34, 0")
    a("s_cmp_lg_u32 s3, 0")
    a("s_cbranch_scc1 %s_pl" % name)
    a("v_and_b32 v28, 15, v2")
    a("v_lshlrev_b32 v30, 2, v28")
    a("v_lshlrev_b32 v28, 12, v28")
    a("s_lshl_b32 s52, s23, 8")
    a("s_add_u32 s52, s52, 0x%x" % ZFLG)
    a.label("%s_pz0" % name)
    a("buffer_load_dword v31, v30, s[60:63], 0 offen sc1")
    a("s_add_u32 s34, s34, 1")
    a("s_waitcnt vmcnt(0)")
    a("v_cmp_gt_u32 vcc, 16, v31")
    a("s_cmp_gt_u32 s34, %d" % SPIN_MAX)
    a("s_cbranch_scc1 %s_pz" % name)
    a("s_cbranch_vccz %s_pz" % name)
    a("s_sleep 32")
    a("s_branch %s_pz0" % name)
    a.label("%s_pz" % name)
    a("buffer_load_dword v29, v28, s[12:15], s52 offen sc1")
    a("s_add_u32 s34, s34, 1")
    a("s_waitcnt vmcnt(0)")
    a("v_cmp_ne_u32 vcc, 1, v29")
    a("s_cmp_gt_u32 s34, %d" % SPIN_MAX)
    a("s_cbranch_scc1 %s_pzx" % name)
    a("s_cbranch_vccz %s_pzx" % name)
    a("s_sleep 8")
    a("s_branch %s_pz" % name)
    a.label("%s_pzx" % name)
    a("v_mov_b32 v27, 1")
    a("ds_write_b32 v26, v27 offset:4")
    a("s_branch %s_pgo" % name)
    a.label("%s_pl" % name)
    a("ds_read_b32 v27, v26 offset:4")
    a("s_add_u32 s34, s34, 1")
    a("s_waitcnt lgkmcnt(0)")
    a("v_readfirstlane_b32 s36, v27")
    a("s_cmp_gt_u32 s34, %d" % (SPIN_MAX * 20))
    a("s_cbranch_scc1 %s_pgo" % name)
    a("s_cmp_lg_u32 s36, 0")
    a("s_cbranch_scc1 %s_pgo" % name)
    a("s_sleep 2")
    a("s_branch %s_pl" % name)
    a.label("%s_pgo" % name)
    stamp(a, 8)
    for g in range(4):
        a("s_add_u32 s35, s24, %d" % (g * SLOT + TREG))
        a("s_mov_b32 m0, s35")
        a("s_add_u32 s36, s27, %d" % (18432 * g))
        a("s_add_u32 s37, s36, s32")
        for n in range(4):
            a("buffer_load_dwordx4 v14, s[12:15], s36 offen offset:%d sc1 lds" % (n * 1024))
        a("s_add_u32 s35, s35, s32")
        a("s_mov_b32 m0, s35")
        a("s_mov_b64 exec, 0xffffffff")
        a("buffer_load_dwordx4 v14, s[12:15], s37 offen sc1 lds")
        a("s_mov_b64 exec, -1")
    a("s_add_u32 s26, s26, 512")
    a("s_add_u32 s27, s27, %d" % (4 * 18432))
    a("s_mov_b32 s33, 0")
    a("s_lshl_b32 s43, s2, 2")
    a("s_add_u32 s43, s43, s3")
    a("s_and_b32 s53, s43, 1")
    a("s_sub_u32 s36, s43, 448")
    a("s_lshr_b32 s37, s43, 1")
    a("s_cmp_ge_u32 s43, 896")
    a("s_cselect_b32 s43, s36, s37")
    a("s_cselect_b32 s53, 2, s53")
    a("s_waitcnt vmcnt(15)")
    a("s_barrier")
    a("s_waitcnt vmcnt(10)")
    a("s_barrier")
    a("s_waitcnt vmcnt(5)")
    a("s_barrier")
    a("s_mov_b32 s34, 4")
    def issue2():
        a("s_add_u32 s35, s33, s24")
        a("s_mov_b32 m0, s35")
        a("s_add_u32 s36, s35, %d" % TREG)
        for n in range(4):
            a("buffer_load_dwordx4 v%d, s[8:11], s26 offen offset:%d lds" % (10 + n, n * 1024))
        a("s_mov_b32 m0, s36")
        a("s_add_u32 s37, s27, s32")
        for n in range(4):
            a("buffer_load_dwordx4 v14, s[12:15], s27 offen offset:%d sc1 lds" % (n * 1024))
        a("s_add_u32 s36, s36, s32")
        a("s_mov_b32 m0, s36")
        a("s_mov_b64 exec, 0xffffffff")
        a("buffer_load_dwordx4 v14, s[12:15], s37 offen sc1 lds")
        a("s_mov_b64 exec, -1")
        a("s_add_u32 s26, s26, 128")
        a("s_add_u32 s27, s27, 18432")
        a("s_add_u32 s33, s33, %d" % SLOT)
        a("s_cmp_eq_u32 s33, %d" % (R * SLOT))
        a("s_cselect_b32 s33, 0, s33")
    a.label("%s_lloop" % name)
    issue2()
    a("s_cmp_eq_u32 s34, 8")
    a("s_cbranch_scc1 %s_hk0" % name)
    a("s_cmp_eq_u32 s34, 18")
    a("s_cbranch_scc1 %s_hk1" % name)
    a("s_cmp_eq_u32 s34, 21")
    a("s_cbranch_scc1 %s_hk2" % name)
    a("s_waitcnt vmcnt(9)")
    a.label("%s_lcont" % name)
    a("s_barrier")
    a("s_add_u32 s34, s34, 1")
    a("s_cmp_lt_u32 s34, 32")
    a("s_cbranch_scc1 %s_lloop" % name)
    a("s_branch %s_ldone" % name)
    a.label("%s_hk0" % name)
    a("v_mov_b32 v27, 1")
    a("s_mov_b64 exec, 1")
    a("ds_add_rtn_u32 v28, v26, v27 offset:8")
    a("s_waitcnt lgkmcnt(0)")
    a("v_readfirstlane_b32 s36, v28")
    a("s_cmp_lg_u32 s36, 3")
    a("s_cbranch_scc1 %s_hk0x" % name)
    a("s_and_b32 s36, s2, 15")
    a("s_lshl_b32 s36, s36, 2")
    a("s_add_u32 s36, s36, 128")
    a("v_mov_b32 v28, s36")
    a("buffer_atomic_add v27, v28, s[60:63], 0 offen sc1")
    a.label("%s_hk0x" % name)
    a("s_mov_b64 exec, -1")
    a("s_waitcnt vmcnt(9)")
    a("s_branch %s_lcont" % name)
    a.label("%s_hk1" % name)
    a("v_and_b32 v28, 15, v2")
    a("v_lshlrev_b32 v28, 2, v28")
    a("buffer_load_dword v29, v28, s[60:63], 0 offen offset:128 sc1")
    a("s_waitcnt vmcnt(10)")
    a("s_branch %s_lcont" % name)
    a.label("%s_hk2" % name)
    a("s_mov_b32 s52, 0")
    a.label("%s_hk2l" % name)
    a("v_cmp_gt_u32 vcc, 16, v29")
    a("s_add_u32 s52, s52, 1")
    a("s_cmp_gt_u32 s52, %d" % SPIN_MAX)
    a("s_cbranch_scc1 %s_hk2g" % name)
    a("s_cbranch_vccz %s_hk2g" % name)
    a("s_sleep 16")
    a("buffer_load_dword v29, v28, s[60:63], 0 offen offset:128 sc1")
    a("s_waitcnt vmcnt(0)")
    a("s_branch %s_hk2l" % name)
    a.label("%s_hk2g" % name)
    nconv = emit_conv_loads(a, " sc1")
    a("s_waitcnt vmcnt(%d)" % (9 + nconv))
    a("s_branch %s_lcont" % name)
    a.label("%s_ldone" % name)
    a("s_waitcnt vmcnt(0)")
    a("s_barrier")
    a("s_mov_b32 s26, s53")
    a("s_and_b32 s27, s3, 1")
    a("s_mul_i32 s27, s27, %d" % CJ_SIZE)
    a("s_lshr_b32 s36, s3, 1")
    a("s_mul_i32 s36, s36, %d" % SLOT)
    a("s_add_u32 s27, s27, s36")
    a("s_add_u32 s27, s27, %d" % RB)
    def mid():
        a("s_barrier")
        a("s_setprio 0")
    sv = set(DBG); DBG.discard("stamp")
    emit_conv_job(a, name, mid)
    DBG.update(sv)
    G.stamp_rt(a, 1)
    a.label("%s_end" % name)
    a("s_endpgm")
    return a.text(), kernel_desc(name, 256, 256), (name, 256, 512, LDSB)

def gen_kf5(name="k1_kernel", R=4):
    a = Asm()
    RB = 4096; SLOT = 34816; TREG = 16384; FS = 288; RST = 0
    LDSB = RB + R * SLOT
    LC = 2048
    ZFLG = 0x2D00000
    from gen3 import emit_conv_loads, emit_conv_job, CJ_SIZE
    def capture(f, *args):
        lb = len(a.lines); f(*args); out = a.lines[lb:]; del a.lines[lb:]; return out
    kernel_begin(a, name)
    a("s_load_dwordx2 s[80:81], s[0:1], 0")
    a("s_load_dwordx2 s[4:5], s[0:1], 56")
    a("s_load_dwordx2 s[6:7], s[0:1], 104")
    a("s_load_dwordx2 s[18:19], s[0:1], 96")
    a("s_cmp_ge_u32 s2, 256")
    a("s_cbranch_scc1 %s_end" % name)
    a("v_lshrrev_b32 v1, 6, v0")
    a("v_and_b32 v2, 63, v0")
    a("v_readfirstlane_b32 s3, v1")
    G2.tile_ij(a)
    a("s_lshr_b32 s98, s3, 2")
    a("s_mov_b32 s54x, 0".replace("s54x", "s99"))
    a("s_and_b32 s3, s3, 3")
    a("s_lshr_b32 s24, s3, 1")
    a("s_and_b32 s25, s3, 1")
    a("v_and_b32 v3, 15, v2")
    VT = 204; VF = 208
    def loader_setup():
        a("v_lshrrev_b32 v5, 3, v2")
        a("v_and_b32 v4, 7, v2")
        a("s_lshl_b32 s36, s3, 5")
        a("v_add_u32 v5, s36, v5")
        a("v_lshrrev_b32 v7, 4, v2")
        a("v_xor_b32 v7, v7, v4")
        a("v_mul_u32_u24 v6, 1152, v5")
        a("v_lshl_add_u32 v%d, v7, 4, v6" % VT)
        a("v_xor_b32 v%d, 64, v%d" % (VT + 1, VT))
        a("v_add_u32 v%d, %d, v%d" % (VT + 1, 9216 - 1024, VT + 1))
        a("v_add_u32 v%d, %d, v%d" % (VT + 2, 2 * (9216 - 1024), VT))
        a("v_add_u32 v%d, %d, v%d" % (VT + 3, 2 * (9216 - 1024), VT + 1))
        a("s_lshl_b32 s84, s3, 12")
        a("s_add_u32 s84, s84, %d" % RB)
        a("s_lshl_b32 s85, s3, 9")
        a("s_add_u32 s85, s85, %d" % (RB + TREG + 16384))
    def loader_setup2():
        for n in range(5):
            if n < 4:
                a("s_lshl_b32 s36, s3, 8")
                a("s_add_u32 s36, s36, %d" % (64 * n))
            else:
                a("s_lshl_b32 s36, s3, 5")
                a("s_add_u32 s36, s36, 1024")
            a("v_add_u32 v6, s36, v2")
            a("v_mul_u32_u24 v7, 3641, v6")
            a("v_lshrrev_b32 v7, 16, v7")
            a("v_mul_u32_u24 v8, 18, v7")
            a("v_sub_u32 v8, v6, v8")
            a("v_and_b32 v9, 35, v7")
            a("v_bfe_u32 v6, v7, 2, 2")
            a("v_lshl_add_u32 v9, v6, 3, v9")
            a("v_bfe_u32 v6, v7, 4, 1")
            a("v_lshl_add_u32 v9, v6, 2, v9")
            a("v_mul_u32_u24 v9, 9216, v9")
            a("v_lshl_add_u32 v%d, v8, 4, v9" % (VF + n))
            if 0 < n < 4: a("v_subrev_u32 v%d, %d, v%d" % (VF + n, 1024 * n, VF + n))
    def issueT(g):
        st = g % 9
        a("s_add_u32 s86, s84, %d" % ((g % R) * SLOT))
        a("s_mov_b32 m0, s86")
        a("s_add_u32 s87, s82, %d" % (128 * st))
        for n in range(4):
            a("buffer_load_dwordx4 v%d, s[28:31], s87 offen offset:%d lds" % (VT + n, 1024 * n))
    def issueF(g):
        st = g % 9
        a("s_add_u32 s86, s84, %d" % ((g % R) * SLOT + TREG))
        a("s_mov_b32 m0, s86")
        a("s_add_u32 s87, s83, %d" % (64 * 9216 * st + (4608 if g < 9 else 0)))
        for n in range(4):
            a("buffer_load_dwordx4 v%d, s[8:11], s87 offen offset:%d lds" % (VF + n, 1024 * n))
        a("s_add_u32 s86, s85, %d" % ((g % R) * SLOT))
        a("s_mov_b32 m0, s86")
        a("s_mov_b64 exec, 0xffffffff")
        a("buffer_load_dwordx4 v%d, s[8:11], s87 offen lds" % (VF + 4))
        a("s_mov_b64 exec, -1")
    def srds_main():
        srd(a, 28, 80, 2048 * 576 * 2)
        srd(a, 8, 4, 576 * 4608 * 2)
        srd(a, 12, 6, WS_BYTES)
        srd(a, 60, 18, 256)
        a("s_mul_i32 s82, s22, %d" % (128 * 1152))
        a("s_mul_i32 s83, s23, 288")
    ACC = 128; FB = [16, 52]; CS = 216; ONE = 236
    vTa = [4, 5]; vTb = [6, 7]; vF = 8; vFh = 9
    bTa = [88, 89]; bTb = [90, 91]; bF = 92; bFh = 93
    def mma_setup():
        a("v_lshrrev_b32 v10, 4, v2")
        a("v_lshrrev_b32 v11, 1, v3")
        a("v_xor_b32 v10, v10, v11")
        a("v_lshlrev_b32 v10, 4, v10")
        a("v_lshl_add_u32 v10, v3, 7, v10")
        a("s_lshl_b32 s26, s24, 13")
        a("s_add_u32 s26, s26, %d" % RB)
        a("v_add_u32 v10, s26, v10")
        a("s_lshl_b32 s26, s25, 12")
        a("v_add_u32 v%d, s26, v10" % bTa[0])
        a("s_xor_b32 s26, s26, 4096")
        a("v_add_u32 v%d, s26, v10" % bTb[0])
        a("v_xor_b32 v%d, 64, v%d" % (bTa[1], bTa[0]))
        a("v_xor_b32 v%d, 64, v%d" % (bTb[1], bTb[0]))
        a("v_lshrrev_b32 v10, 2, v2")
        a("v_mul_u32_u24 v10, %d, v10" % FS)
        a("v_and_b32 v11, 3, v2")
        a("v_lshl_add_u32 v10, v11, 3, v10")
        a("v_add_u32 v10, %d, v10" % (RB + TREG))
        a("s_mul_i32 s26, s25, 160")
        a("v_add_u32 v%d, s26, v10" % bF)
        a("v_add_u32 v%d, 128, v10" % bFh)
        for r in range(ACC, ACC + 72): a("v_mov_b32 v%d, 0" % r)
        for r in range(CS, CS + 20): a("v_mov_b32 v%d, 0" % r)
        for r in range(ONE, ONE + 4): a("v_mov_b32 v%d, 0x3f803f80" % r)
    def mma_addr(slot):
        a("s_mov_b32 s27, %d" % (slot * SLOT))
        for d, s_ in ((vTa[0], bTa[0]), (vTb[0], bTb[0]), (vTa[1], bTa[1]), (vTb[1], bTb[1]), (vF, bF), (vFh, bFh)):
            a("v_add_u32 v%d, s27, v%d" % (d, s_))
    core = G.Core(a, ACC, FB[0], FB[1], FS, TREG, vTa, vTb, vF, vFh)
    trk = core.trk
    a("s_cmp_eq_u32 s98, 0")
    a("s_cbranch_scc1 %s_A0" % name)
    a("s_setprio 3")
    loader_setup()
    a("s_waitcnt lgkmcnt(0)")
    srds_main()
    vm = VmTracker(a)
    def issue(g, vmx):
        issueT(g); issueF(g); vmx.issue("S%d" % g, 9)
    issueT(0)
    loader_setup2()
    issueF(0); vm.issue("S0", 9)
    issue(1, vm); issue(2, vm); issue(3, vm)
    a("s_add_u32 s3, s3, 4"); stamp_setup(a, 1); stamp(a, 0); a("s_sub_u32 s3, s3, 4")
    mma_setup()
    RA = 96; XB = 112
    for r in range(RA, RA + 16): a("v_mov_b32 v%d, 0" % r)
    a("v_lshrrev_b32 v10, 4, v2")
    a("v_lshrrev_b32 v11, 1, v3")
    a("v_xor_b32 v10, v10, v11")
    a("v_lshlrev_b32 v10, 4, v10")
    a("v_lshl_add_u32 v10, v3, 7, v10")
    a("v_add_u32 v12, s84, v10")
    a("v_xor_b32 v13, 64, v12")
    def rs_rd(g):
        a("v_add_u32 v10, %d, v12" % ((g % R) * SLOT))
        a("v_add_u32 v11, %d, v13" % ((g % R) * SLOT))
        for h in range(2):
            for n in range(2):
                a("ds_read_b128 %s, v%d offset:%d" % (vr(XB + 8 * h + 4 * n), 10 + h, 2048 * n))
    def rs_do():
        for h in range(2):
            for n in range(2):
                x = XB + 8 * h + 4 * n
                a("v_mfma_f32_16x16x32_bf16 %s, %s, %s, %s" % (vr(RA + 4 * n), vr(ONE), vr(x), vr(RA + 4 * n)))
                a("v_mfma_f32_16x16x32_bf16 %s, %s, %s, %s" % (vr(RA + 8 + 4 * n), vr(x), vr(x), vr(RA + 8 + 4 * n)))
    def interleave(dma, comp, vmx=None):
        groups = []; cur = []
        for l in dma:
            cur.append(l)
            if "buffer_load" in l and not any("exec, 0xffffffff" in x for x in cur[-2:]):
                groups.append(cur); cur = []
            elif "exec, -1" in l:
                groups.append(cur); cur = []
        if cur: groups.append(cur)
        ns = max(1, len(groups))
        per = (len(comp) + ns - 1) // ns
        for g in groups:
            a.lines.extend(g)
            a.lines.extend(comp[:per]); comp = comp[per:]
        a.lines.extend(comp)
    vm.wait(["S0"])
    a("s_barrier")
    stamp(a, 1)
    rs_rd(0)
    vm.wait(["S1"])
    a("s_barrier")
    for k in range(9):
        a("s_waitcnt lgkmcnt(0)")
        dma = capture(lambda: (issueT(k + 3), issueF(k + 3))) if 1 <= k < 8 else []
        interleave(dma, capture(rs_do))
        if 1 <= k < 8: vm.issue("S%d" % (k + 3), 9)
        if k < 8:
            rs_rd(k + 1)
        else:
            a("s_nop 7")
            a("v_lshrrev_b32 v10, 4, v2")
            a("v_lshrrev_b32 v11, 2, v3")
            a("v_and_b32 v12, 3, v3")
            for n in range(2):
                G_ = RA + 8 + 4 * n
                for r in range(1, 4):
                    a("v_cmp_eq_u32 vcc, %d, v12" % r)
                    a("s_nop 1")
                    a("v_cndmask_b32 v%d, v%d, v%d, vcc" % (G_, G_, G_ + r))
            ML = 112
            for n in range(2):
                emit_ln_finish(a, RA + 4 * n, RA + 8 + 4 * n, 576, ML + 2 * n, ML + 2 * n + 1, 120)
                a("v_mov_b32 v%d, v%d" % (117 + 2 * n, ML + 2 * n + 1))
                a("v_sub_f32 v%d, 0, v%d" % (116 + 2 * n, ML + 2 * n))
            a("s_lshl_b32 s35, s3, 8")
            a("v_lshlrev_b32 v13, 3, v3")
            a("v_add_u32 v12, s35, v13")
            a("v_cmp_eq_u32 vcc, v10, v11")
            a("s_and_saveexec_b64 s[36:37], vcc")
            for n in range(2):
                a("ds_write_b64 v12, %s offset:%d" % (vr(116 + 2 * n, 2), RST + 128 * n))
            a("s_mov_b64 exec, s[36:37]")
            a("s_cmp_lg_u32 s23, 0")
            a("s_cbranch_scc1 %s_nost1" % name)
            a("s_lshl_b32 s35, s22, 7")
            a("s_lshl_b32 s36, s3, 5")
            a("s_add_u32 s35, s35, s36")
            a("s_lshl_b32 s35, s35, 3")
            a("s_add_u32 s35, s35, 0x%x" % STATS1)
            a("v_mov_b32 v11, 0x7ffffff0")
            a("v_cndmask_b32 v13, v11, v13, vcc")
            for n in range(2):
                a("buffer_store_dwordx2 %s, v13, s[12:15], s35 offen offset:%d" % (vr(ML + 2 * n, 2), 128 * n))
            a.label("%s_nost1" % name)
        if k < 8:
            vm.wait(["S%d" % (k + 2)])
            a("s_barrier")
    HO = lambda: None
    def ho_addr():
        a("s_lshr_b32 s36, s3, 1")
        a("s_mul_i32 s36, s36, %d" % (3 * SLOT))
        a("s_and_b32 s37, s3, 1")
        a("s_mul_i32 s37, s37, 12288")
        a("s_add_u32 s36, s36, s37")
        a("s_add_u32 s36, s36, %d" % RB)
        a("v_lshlrev_b32 v10, 4, v2")
        a("v_add_u32 v95, s36, v10")
    a("s_waitcnt lgkmcnt(0)")
    a("s_barrier")
    ho_addr()
    a("s_barrier")
    n_ = 0
    for ft in range(4):
        for tt in range(2):
            a("ds_read_b128 %s, v95 offset:%d" % (vr(core.accr(ft, tt)), 1024 * n_)); n_ += 1
    for ft in range(4):
        a("ds_read_b128 %s, v95 offset:%d" % (vr(CS + 4 * ft), 1024 * n_)); n_ += 1
    a("s_branch %s_g2" % name)
    a.label("%s_A0" % name)
    emit_code_prefetch(a, name)
    a("s_load_dwordx4 s[64:67], s[0:1], 8")
    a("s_load_dwordx2 s[76:77], s[0:1], 24")
    a("s_load_dwordx2 s[78:79], s[0:1], 64")
    mma_setup()
    loader_setup(); loader_setup2()
    a("s_waitcnt lgkmcnt(0)")
    srds_main()
    srd(a, 68, 66, 2048 * 576 * 2)
    a("s_mov_b32 s88, s64"); a("s_mov_b32 s89, s65")
    srd(a, 64, 88, 2048 * 576 * 2)
    srd(a, 72, 76, 576 * 8)
    stamp_setup(a, 1); stamp(a, 0)
    def gran_addr():
        a("v_lshrrev_b32 v10, 4, v2")
        a("s_lshl_b32 s36, s25, 1")
        a("v_add_u32 v11, s36, v10")
        a("v_and_b32 v11, 3, v11")
        a("v_lshl_add_u32 v11, v11, 4, v3")
        a("v_lshlrev_b32 v94, 8, v11")
        a("s_lshl_b32 s59, s22, 7")
        a("s_lshl_b32 s36, s24, 6")
        a("s_add_u32 s59, s59, s36")
        a("s_lshl_b32 s59, s59, 8")
        a("s_add_u32 s59, s59, 0x%x" % STATS2)
        a("s_lshl_b32 s36, s23, 1")
        a("s_add_u32 s36, s36, s25")
        a("s_lshl_b32 s36, s36, 3")
        a("s_add_u32 s58, s36, s59")
    gran_addr()
    a("v_mov_b32 v12, 0"); a("v_mov_b32 v13, 0x80000000")
    a("buffer_store_dwordx2 v[12:13], v94, s[12:15], s58 offen sc1")
    a("s_lshl_b32 s36, s22, 4")
    a("s_add_u32 s36, s36, s23")
    a("s_lshl_b32 s36, s36, 8")
    a("s_add_u32 s97, s36, 0x%x" % ZFLG)
    a("v_mov_b32 v10, %d" % LC)
    a("v_mov_b32 v12, 0"); a("v_mov_b32 v13, 0")
    a("s_mov_b64 exec, 1")
    a("buffer_store_dword v12, v12, s[12:15], s97 offen sc1")
    a("s_mov_b64 exec, -1")
    a("ds_write_b64 v10, v[12:13]")
    a("ds_write_b64 v10, v[12:13] offset:8")
    mma_addr(0)
    a("s_mov_b32 s33, 0")
    a("s_waitcnt lgkmcnt(0)")
    a("s_barrier")
    stamp(a, 1)
    a.label("%s_mma" % name)
    core.prime(0, core.reads(0, 0))
    trk.drain()
    nocs = [False]
    def mfmas(buf):
        L = []
        for ft in range(5):
            A = core.F(buf, ft)
            for tt in range(4 if ft < 4 else 2):
                c = core.accr(ft, tt); B = core.T(buf, tt)
                L.append(("v_mfma_f32_16x16x32_bf16 %s, %s, %s, %s" % (vr(c), vr(A), vr(B), vr(c)), list(range(A, A + 4)) + list(range(B, B + 4))))
            if not nocs[0]: L.append(("v_mfma_f32_16x16x32_bf16 %s, %s, %s, %s" % (vr(CS + 4 * ft), vr(A), vr(ONE), vr(CS + 4 * ft)), list(range(A, A + 4))))
        return L
    def phase(buf, pend):
        for (m, regs) in mfmas(buf):
            trk.need(regs)
            a(m)
            while pend:
                k, t = pend.pop(0)
                if k == "x":
                    a(t)
                    if t.startswith("s_"): continue
                else:
                    a(t[0]); trk.issue(t[1])
                break
        for k, t in pend:
            if k == "x": a(t)
            else: a(t[0]); trk.issue(t[1])
    def iteration(vw=True):
        if vw: a("s_waitcnt vmcnt(0)")
        a("s_barrier")
        rd = [("r", t) for t in core.reads(1, 1)]
        upd = ["s_add_u32 s27, s27, %d" % SLOT, "s_cmp_eq_u32 s27, %d" % (R * SLOT), "s_cselect_b32 s27, 0, s27"]
        tail = ["v_add_u32 v%d, s27, v%d" % (d, s_) for d, s_ in ((vTa[0], bTa[0]), (vF, bF), (vTb[0], bTb[0]), (vFh, bFh))]
        phase(0, rd[:1] + [("x", u) for u in upd] + rd[1:] + [("x", u) for u in tail])
        rd = [("r", t) for t in core.reads(0, 0)]
        tail = ["v_add_u32 v%d, s27, v%d" % (d, s_) for d, s_ in ((vTa[1], bTa[1]), (vTb[1], bTb[1]))] + ["s_add_u32 s33, s33, 1"]
        phase(1, rd + [("x", u) for u in tail])
    a.label("%s_cloop" % name)
    lb = len(a.lines); iteration(); st = copy.deepcopy(trk.out); del a.lines[lb:]; trk.out = copy.deepcopy(st)
    iteration()
    assert [sorted(x) for x in trk.out] == [sorted(x) for x in st]
    a("s_cmp_lt_u32 s33, 9")
    a("s_cbranch_scc1 %s_cloop" % name)
    trk.drain()
    stamp(a, 2)
    MR = 100; T = 72; ZP = 16
    a("s_cmp_eq_u32 s98, 1")
    a("s_cbranch_scc1 %s_Btail" % name)
    a("s_waitcnt vmcnt(0)")
    a("s_barrier")
    a("s_cmp_lg_u32 s3, 0")
    a("s_cbranch_scc1 %s_nosig" % name)
    a("v_mov_b32 v10, 1")
    a("s_lshl_b32 s36, s22, 2")
    a("v_mov_b32 v11, s36")
    a("s_mov_b64 exec, 1")
    a("buffer_atomic_add v10, v11, s[60:63], 0 offen sc1")
    a("s_mov_b64 exec, -1")
    a.label("%s_nosig" % name)
    ho_addr()
    n_ = 0
    for ft in range(4):
        for tt in range(2):
            a("ds_write_b128 v95, %s offset:%d" % (vr(core.accr(ft, tt + 2)), 1024 * n_)); n_ += 1
    for ft in range(4):
        a("ds_write_b128 v95, %s offset:%d" % (vr(CS + 4 * ft), 1024 * n_)); n_ += 1
    a("s_waitcnt lgkmcnt(0)")
    a("s_barrier")
    a.label("%s_g2" % name)
    gelu_consts(a)
    a("s_xor_b32 s52, s98, s25")
    a("s_lshl_b32 s36, s24, 9")
    a("s_lshl_b32 s37, s52, 8")
    a("s_add_u32 s38, s36, s37")
    a("v_lshlrev_b32 v10, 3, v3")
    a("v_add_u32 v11, s38, v10")
    a("ds_read_b64 %s, v11 offset:%d" % (vr(MR, 2), RST))
    a("ds_read_b64 %s, v11 offset:%d" % (vr(MR + 2, 2), RST + 128))
    for r_ in range(108, 112): a("v_mov_b32 v%d, 0" % r_)
    a("s_waitcnt lgkmcnt(0)")
    ZPo = lambda n: 16 + 2 * n
    def dots2(lst):
        for d in range(2):
            for (ft, tt) in lst:
                p = ZPo(2 * ft + tt) + d
                a("v_dot2_f32_bf16 v%d, v%d, v%d, v%d" % (108 + 2 * tt, p, ONE, 108 + 2 * tt))
                a("v_dot2_f32_bf16 v%d, v%d, v%d, v%d" % (109 + 2 * tt, p, p, 109 + 2 * tt))
    a("s_cmp_lg_u32 s98, 0")
    a("s_cbranch_scc1 %s_nohalf" % name)
    lst = [(4, 0), (4, 1)]
    emit_fold_gelu(a, [(core.accr(ft, tt), CS + 4 * ft, MR + 2 * tt, ZPo(2 * ft + tt)) for ft, tt in lst], T)
    dots2(lst)
    a.label("%s_nohalf" % name)
    for f0 in (0, 2):
        lst = [(ft, tt) for ft in (f0, f0 + 1) for tt in range(2)]
        emit_fold_gelu(a, [(core.accr(ft, tt), CS + 4 * ft, MR + 2 * tt, ZPo(2 * ft + tt)) for ft, tt in lst], T)
        dots2(lst)
    a("s_nop 2")
    emit_xg_reduce(a, [108, 110, 109, 111], 72)
    a("s_lshl_b32 s40, s22, 7")
    a("s_lshl_b32 s36, s24, 6")
    a("s_add_u32 s40, s40, s36")
    a("s_lshl_b32 s40, s40, 8")
    a("s_add_u32 s59, s40, 0x%x" % STATS2)
    a("s_lshl_b32 s36, s52, 13")
    a("s_add_u32 s40, s59, s36")
    a("s_lshl_b32 s36, s23, 1")
    a("s_add_u32 s36, s36, s25")
    a("s_lshl_b32 s36, s36, 3")
    a("s_add_u32 s40, s40, s36")
    a("v_lshrrev_b32 v10, 4, v2")
    a("v_lshlrev_b32 v11, 8, v2")
    a("v_cmp_gt_u32 vcc, 32, v2")
    a("v_mov_b32 v12, 0x7ffffff0")
    a("v_cmp_eq_u32 s[36:37], 1, v10")
    a("v_cndmask_b32 v11, v12, v11, vcc")
    a("s_nop 0")
    a("v_cndmask_b32 v108, v108, v110, s[36:37]")
    a("v_cndmask_b32 v109, v109, v111, s[36:37]")
    a("v_and_b32 v109, 0x7fffffff, v109")
    a("buffer_store_dwordx2 v[108:109], v11, s[12:15], s40 offen sc1")
    a("s_cmp_eq_u32 s98, 0")
    a("s_cbranch_scc1 %s_A1" % name)
    for q in range(4):
        a("ds_write_b128 v95, %s offset:%d" % (vr(16 + 4 * q), 1024 * q))
    for r in range(ACC, ACC + 72): a("v_mov_b32 v%d, 0" % r)
    for r in range(CS, CS + 20): a("v_mov_b32 v%d, 0" % r)
    mma_addr(9 % R)
    a("s_mov_b32 s33, 0")
    a("s_setprio 0")
    a("s_waitcnt lgkmcnt(0)")
    stamp(a, 9)
    a("s_barrier")
    a("s_branch %s_mma" % name)
    def epi_in():
        gelu_consts(a)
        a("s_lshl_b32 s36, s24, 9")
        a("s_lshl_b32 s37, s25, 8")
        a("s_add_u32 s38, s36, s37")
        a("s_xor_b32 s37, s37, 256")
        a("s_add_u32 s39, s36, s37")
        a("v_lshlrev_b32 v10, 3, v3")
        a("v_add_u32 v11, s38, v10")
        a("ds_read_b64 %s, v11 offset:%d" % (vr(MR, 2), RST))
        a("ds_read_b64 %s, v11 offset:%d" % (vr(MR + 2, 2), RST + 128))
        a("v_add_u32 v11, s39, v10")
        a("ds_read_b64 %s, v11 offset:%d" % (vr(MR + 4, 2), RST))
        a("ds_read_b64 %s, v11 offset:%d" % (vr(MR + 6, 2), RST + 128))
        a("s_waitcnt lgkmcnt(0)")
    S = [108, 110, 52, 54]; Q = [109, 111, 53, 55]
    def gelu_ft(ft, stats):
        tts = range(4 if ft < 4 else 2)
        emit_fold_gelu(a, [(core.accr(ft, tt), CS + 4 * ft, MR + 2 * tt, ZP + 2 * tidx(ft, tt)) for tt in tts], T)
        if stats:
            for d in range(2):
                for tt in tts:
                    p = ZP + 2 * tidx(ft, tt) + d
                    a("v_dot2_f32_bf16 v%d, v%d, v%d, v%d" % (S[tt], p, ONE, S[tt]))
                    a("v_dot2_f32_bf16 v%d, v%d, v%d, v%d" % (Q[tt], p, p, Q[tt]))
    a.label("%s_Btail" % name)
    a("v_mov_b32 v10, %d" % (LC + 12))
    a("v_mov_b32 v11, 1")
    a("s_mov_b64 exec, 1")
    a("ds_add_u32 v10, v11")
    a("s_mov_b64 exec, -1")
    a("s_load_dwordx2 s[94:95], s[0:1], 80")
    a("s_load_dwordx2 s[92:93], s[0:1], 72")
    a("s_load_dwordx2 s[78:79], s[0:1], 64")
    epi_in()
    srd(a, 84, 78, 2048 * 2048 * 2)
    a("v_lshrrev_b32 v10, 4, v2")
    a("v_lshlrev_b32 v10, 12, v10")
    a("v_lshl_add_u32 v10, v3, 4, v10")
    a("s_lshl_b32 s40, s22, 7")
    a("s_lshl_b32 s36, s3, 5")
    a("s_add_u32 s40, s40, s36")
    a("s_lshl_b32 s40, s40, 12")
    a("s_lshl_b32 s36, s23, 8")
    a("s_add_u32 s40, s40, s36")
    for n in range(8):
        a("buffer_load_dwordx4 v[116:119], v10, s[84:87], s40 offen")
        if n < 7: a("s_add_u32 s40, s40, 16384")
    srd(a, 76, 94, 2304 * 576 * 2)
    srd(a, 28, 92, 2048 * 2)
    a("v_and_b32 v0, 255, v0")
    for ft in range(5): gelu_ft(ft, False)
    Z1R = 200; BI = 236
    for r_ in range(36): a("v_mov_b32 v%d, v%d" % (Z1R + r_, ZP + r_))
    stamp(a, 3)
    a("s_mov_b32 s42, s2")
    emit_wot_loads(a, 100, 112, 720, 3)
    a("s_lshl_b32 s36, s22, 7")
    a("s_lshl_b32 s37, s24, 6")
    a("s_add_u32 s36, s36, s37")
    a("v_lshlrev_b32 v11, 1, v3")
    a("s_lshl_b32 s37, s25, 6")
    a("s_lshl_b32 s38, s36, 1")
    a("s_add_u32 s39, s38, s37")
    a("s_xor_b32 s37, s37, 64")
    a("s_add_u32 s36, s38, s37")
    a("buffer_load_ushort v96, v11, s[28:31], s39 offen")
    a("buffer_load_ushort v97, v11, s[28:31], s39 offen offset:32")
    a("buffer_load_ushort v98, v11, s[28:31], s36 offen")
    a("buffer_load_ushort v99, v11, s[28:31], s36 offen offset:32")
    for r in range(ACC, ACC + 72): a("v_mov_b32 v%d, 0" % r)
    mma_addr(0)
    a("s_mov_b32 s33, 0")
    stamp(a, 4)
    a("s_barrier")
    stamp(a, 5)
    core.prime(0, core.reads(0, 0))
    trk.drain()
    nocs[0] = True
    a.label("%s_gloop" % name)
    lb = len(a.lines); iteration(False); st = copy.deepcopy(trk.out); del a.lines[lb:]; trk.out = copy.deepcopy(st)
    iteration(False)
    assert [sorted(x) for x in trk.out] == [sorted(x) for x in st]
    a("s_cmp_lg_u32 s33, 3")
    a("s_cbranch_scc1 %s_ghk" % name)
    a("s_waitcnt vmcnt(0)")
    for n in range(3):
        a("buffer_store_dwordx4 %s, v%d, s[12:15], s40 offen" % (vr(100 + 4 * n), 112 + n))
    for tt in range(4): a("v_lshlrev_b32 v%d, 16, v%d" % (BI + 2 * tt, 96 + tt))
    a.label("%s_ghk" % name)
    a("s_cmp_lt_u32 s33, 32")
    a("s_cbranch_scc1 %s_gloop" % name)
    trk.drain()
    stamp(a, 6)
    G3.emit_k2_epilogue(a, core, Z1R, BI)
    stamp(a, 7)
    G.stamp_rt(a, 1)
    a("s_branch %s_end" % name)
    a.label("%s_A1" % name)
    a("s_setprio 2")
    a("s_load_dwordx4 s[88:91], s[0:1], 32")
    vmA = VmTracker(a)
    stamp(a, 9)
    a("s_barrier")
    for q in range(4):
        a("ds_read_b128 %s, v95 offset:%d" % (vr(36 + 4 * q), 1024 * q))
    def zreg(ft, tt):
        return (16 + 2 * (2 * ft + tt)) if tt < 2 else (36 + 2 * (2 * ft + tt - 2))
    GB = [128, 144, 160, 176]
    def gather():
        for tt in range(4):
            for q in range(4):
                a("buffer_load_dwordx4 %s, v4, s[12:15], s%d offen offset:%d sc1" % (vr(GB[tt] + 4 * q), (52, 42, 53, 43)[tt], 16 * q))
    def st_finish():
        for tt in range(4):
            b = GB[tt]
            for st_ in (8, 4, 2):
                for q in range(0, st_, 2):
                    a("v_pk_add_f32 %s, %s, %s" % (vr(b + q, 2), vr(b + q, 2), vr(b + q + st_, 2)))
        emit_xg_reduce(a, [GB[tt] + e for tt in range(4) for e in range(2)], 72)
        for tt in range(4):
            b = GB[tt]
            emit_ln_finish(a, b, b + 1, 2304, b + 2, MR + 2 * tt, b + 4)
            a("v_mul_f32 v%d, -v%d, v%d" % (MR + 2 * tt + 1, b + 2, MR + 2 * tt))
    def z_addr():
        a("v_lshrrev_b32 v10, 4, v2")
        a("v_lshrrev_b32 v11, 2, v2"); a("v_and_b32 v11, 1, v11"); a("v_lshlrev_b32 v11, 4, v11")
        a("v_lshrrev_b32 v5, 3, v2"); a("v_and_b32 v5, 1, v5"); a("v_lshl_add_u32 v11, v5, 2, v11")
        a("v_and_b32 v5, 3, v2"); a("v_add_u32 v11, v11, v5")
        a("v_mul_u32_u24 v11, 288, v11")
        a("v_lshrrev_b32 v5, 1, v10"); a("v_lshl_add_u32 v11, v5, 4, v11")
        a("v_and_b32 v5, 1, v10")
        a("v_lshl_add_u32 v6, v5, 5, v11")
        a("v_mul_u32_u24 v5, 2304, v5")
        a("v_add_u32 v9, v11, v5")
        a("s_lshl_b32 s33, s23, 5")
        a("s_lshl_b32 s36, s22, 1")
        a("s_add_u32 s33, s33, s36")
        a("s_add_u32 s33, s33, s24")
        a("s_mul_i32 s33, s33, 18432")
        if ZIMG: a("s_add_u32 s33, s33, 0x%x" % ZIMG)
        a("s_mul_i32 s36, s25, 9216")
        a("s_add_u32 s37, s33, s36")
        a("s_xor_b32 s36, s36, 9216")
        a("s_add_u32 s38, s33, s36")
        a("s_add_u32 s39, s37, 128")
        a("s_mul_i32 s36, s25, 160")
        a("s_add_u32 s37, s37, s36")
        a("s_add_u32 s38, s38, s36")
    def norm_pair(tA, tB, O):
        for q, (ft, tt) in enumerate((tA, tB)):
            for d in range(2):
                z = zreg(ft, tt) + d; t_ = T + 4 * q + 2 * d
                a("v_lshlrev_b32 v%d, 16, v%d" % (t_, z))
                a("v_and_b32 v%d, 0xffff0000, v%d" % (t_ + 1, z))
        for q, (ft, tt) in enumerate((tA, tB)):
            for d in range(2):
                t_ = T + 4 * q + 2 * d
                a("v_pk_fma_f32 %s, %s, %s, %s op_sel:[0,0,1] op_sel_hi:[1,0,1]" % (vr(t_, 2), vr(t_, 2), vr(MR + 2 * tt, 2), vr(MR + 2 * tt, 2)))
        for q in range(2):
            for d in range(2):
                t_ = T + 4 * q + 2 * d
                a("v_cvt_pk_bf16_f32 v%d, v%d, v%d" % (O + 2 * q + d, t_, t_ + 1))
        a("s_nop 1")
        a("v_permlane16_swap_b32 v%d, v%d" % (O, O + 2))
        a("v_permlane16_swap_b32 v%d, v%d" % (O + 1, O + 3))
        a("s_nop 0")
    def zstore(idx):
        O = 216 + 4 * idx
        if idx < 8:
            pr, tt = idx >> 2, idx & 3
            norm_pair((2 * pr, tt), (2 * pr + 1, tt), O)
            a("buffer_store_dwordx4 %s, v6, s[12:15], s%d offen offset:%d sc1" % (vr(O), 37 if tt < 2 else 38, (tt & 1) * 2304 + 64 * pr))
        else:
            norm_pair((4, 0), (4, 1), O)
            a("buffer_store_dwordx4 %s, v9, s[12:15], s39 offen sc1" % vr(O))
    GK = 16
    def dmas(gs):
        out = []
        for g in gs: out += capture(lambda: (issueT(g), issueF(g)))
        return out
    for k in range(9, 18):
        if k == 9: a("s_waitcnt lgkmcnt(0)")
        a("s_barrier")
        gs = [11, 12] if k == 9 else ([k + 3] if k + 3 < 18 else [])
        if k == 9:
            a.lines.extend(dmas(gs))
            for g in gs: vmA.issue("S%d" % g, 9)
            a("s_lshl_b32 s36, s22, 2")
            a("v_mov_b32 v199, s36")
            a("buffer_load_dword v198, v199, s[60:63], 0 offen sc1"); vmA.issue("cnt", 1)
            a("v_lshrrev_b32 v10, 4, v2")
            a("v_lshlrev_b32 v4, 8, v3")
            a("v_lshl_add_u32 v4, v10, 6, v4")
            a("s_lshl_b32 s33, s25, 13")
            a("s_add_u32 s52, s59, s33")
            a("s_xor_b32 s33, s33, 8192")
            a("s_add_u32 s53, s59, s33")
            a("s_add_u32 s42, s52, 4096")
            a("s_add_u32 s43, s53, 4096")
        elif k == 10:
            a.lines.extend(dmas(gs)); vmA.issue("S13", 9)
            z_addr()
        elif k <= 14:
            a.lines.extend(dmas(gs)); vmA.issue("S%d" % gs[0], 9)
        elif k == GK:
            gather(); vmA.issue("g", 16)
        if k == 12:
            pass
        if 11 <= k + 2 < 18 and k + 2 != 10:
            vmA.wait(["S%d" % (k + 2)])
    stamp(a, 3)
    a("s_waitcnt vmcnt(0)")
    a("s_mov_b32 s40, 0")
    a.label("%s_chk" % name)
    a("v_subrev_u32 v11, 16, v198")
    for tt in range(4):
        for r in range(GB[tt] + 1, GB[tt] + 16, 4):
            a("v_or3_b32 v11, v11, v%d, v%d" % (r, r + 2))
    a("v_cmp_gt_i32 vcc, 0, v11")
    a("s_add_u32 s40, s40, 1")
    a("s_cmp_gt_u32 s40, %d" % SPIN_MAX)
    a("s_cbranch_scc1 %s_ok" % name)
    a("s_cbranch_vccz %s_ok" % name)
    a("s_sleep 16")
    a("buffer_load_dword v198, v199, s[60:63], 0 offen sc1")
    a("s_waitcnt vmcnt(0)")
    gather()
    a("s_waitcnt vmcnt(0)")
    a("s_branch %s_chk" % name)
    a.label("%s_ok" % name)
    stamp(a, 4)
    st_finish()
    for i_ in range(9): zstore(i_)
    stamp(a, 5)
    a("s_mov_b32 s41, s2")
    emit_kv_loads(a, 128, 140, 148, 152, 153)
    a("s_cmp_ge_u32 s2, 32")
    a("s_cbranch_scc1 %s_kvp" % name)
    a("s_add_u32 s41, s2, 256")
    emit_kv_loads(a, 156, 168, 176, 180, 181)
    a.label("%s_kvp" % name)
    a("s_setprio 3")
    srd(a, 8, 78, 2048 * 2048 * 2)
    a("v_lshrrev_b32 v3, 3, v2")
    a("s_lshl_b32 s24, s3, 5")
    a("v_add_u32 v3, s24, v3")
    a("v_and_b32 v4, 7, v2")
    a("v_lshrrev_b32 v6, 4, v2")
    a("v_xor_b32 v6, v6, v4")
    a("v_lshlrev_b32 v6, 4, v6")
    a("v_lshl_add_u32 v10, v3, 12, v6")
    a("v_xor_b32 v11, 64, v10")
    a("v_add_u32 v11, %d, v11" % (32768 - 1024))
    a("v_add_u32 v12, %d, v10" % (2 * (32768 - 1024)))
    a("v_add_u32 v13, %d, v11" % (2 * (32768 - 1024)))
    a("v_lshlrev_b32 v14, 4, v2")
    a("s_lshl_b32 s26, s22, 19")
    a("s_mul_i32 s27, s23, %d" % (32 * 18432))
    a("s_lshl_b32 s24, s3, 12")
    a("s_add_u32 s27, s27, s24")
    if ZIMG: a("s_add_u32 s27, s27, 0x%x" % ZIMG)
    a("s_lshl_b32 s25, s3, 9")
    a("s_sub_u32 s32, s25, s24")
    a("s_add_u32 s32, s32, 16384")
    a("s_add_u32 s24, s24, %d" % RB)
    a("s_waitcnt vmcnt(20) lgkmcnt(0)")
    a("v_mov_b32 v26, %d" % LC)
    a("v_mov_b32 v27, 1")
    a("s_mov_b64 exec, 1")
    a("ds_add_rtn_u32 v28, v26, v27")
    a("s_waitcnt lgkmcnt(0)")
    a("v_readfirstlane_b32 s36, v28")
    a("s_cmp_lg_u32 s36, 3")
    a("s_cbranch_scc1 %s_nozs" % name)
    a("v_mov_b32 v28, 0")
    a("buffer_store_dword v27, v28, s[12:15], s97 offen sc1")
    a.label("%s_nozs" % name)
    a("s_mov_b64 exec, -1")
    stamp(a, 7)
    srd(a, 16, 88, 576 * 2048 * 2)
    srd(a, 84, 90, 576 * 2)
    a("s_mov_b32 s34, 0")
    a.label("%s_wb" % name)
    a("ds_read_b32 v27, v26 offset:12")
    a("s_add_u32 s34, s34, 1")
    a("s_waitcnt lgkmcnt(0)")
    a("v_readfirstlane_b32 s36, v27")
    a("s_cmp_gt_u32 s34, %d" % (SPIN_MAX * 20))
    a("s_cbranch_scc1 %s_wbx" % name)
    a("s_cmp_ge_u32 s36, 4")
    a("s_cbranch_scc1 %s_wbx" % name)
    a("s_sleep 2")
    a("s_branch %s_wb" % name)
    a.label("%s_wbx" % name)
    for g in range(4):
        a("s_add_u32 s35, s24, %d" % (g * SLOT))
        a("s_mov_b32 m0, s35")
        a("s_add_u32 s36, s26, %d" % (128 * g))
        for n in range(4):
            a("buffer_load_dwordx4 v%d, s[8:11], s36 offen offset:%d lds" % (10 + n, n * 1024))
    a("v_mov_b32 v250, v12"); a("v_mov_b32 v251, v13"); a("v_mov_b32 v252, v26")
    a("s_mov_b32 s39, 0x%x" % KVT)
    a("s_waitcnt vmcnt(16)")
    for n in range(11): a("v_mov_b32 v%d, v%d" % (16 + n, 128 + n))
    for n in range(8): a("v_mov_b32 v%d, v%d" % (32 + n, 140 + n))
    for n in range(4): a("v_mov_b32 v%d, v%d" % (44 + n, 148 + n))
    a("v_mov_b32 v56, v152"); a("v_mov_b32 v57, v153")
    a.label("%s_kvb" % name)
    emit_kv_compute(a, wait=False, store=False)
    a("buffer_store_dwordx4 v[120:123], v12, s[12:15], s39 offen sc1")
    a("buffer_store_dwordx4 v[124:127], v13, s[12:15], s39 offen sc1")
    a("s_cmp_lt_u32 s41, 256")
    a("s_cbranch_scc1 %s_kvbd" % name)
    a("s_mov_b32 s41, 0")
    for n in range(11): a("v_mov_b32 v%d, v%d" % (16 + n, 156 + n))
    for n in range(8): a("v_mov_b32 v%d, v%d" % (32 + n, 168 + n))
    for n in range(4): a("v_mov_b32 v%d, v%d" % (44 + n, 176 + n))
    a("v_mov_b32 v56, v180"); a("v_mov_b32 v57, v181")
    a("s_branch %s_kvb" % name)
    a.label("%s_kvbd" % name)
    a("s_nop 1")
    a("v_mov_b32 v12, v250"); a("v_mov_b32 v13, v251"); a("v_mov_b32 v26, v252")
    a("s_mov_b32 s34, 0")
    a("s_cmp_lg_u32 s3, 0")
    a("s_cbranch_scc1 %s_pl" % name)
    a("v_and_b32 v28, 15, v2")
    a("v_lshlrev_b32 v30, 2, v28")
    a("v_lshlrev_b32 v28, 12, v28")
    a("s_lshl_b32 s52, s23, 8")
    a("s_add_u32 s52, s52, 0x%x" % ZFLG)
    a.label("%s_pz0" % name)
    a("buffer_load_dword v31, v30, s[60:63], 0 offen sc1")
    a("s_add_u32 s34, s34, 1")
    a("s_waitcnt vmcnt(0)")
    a("v_cmp_gt_u32 vcc, 16, v31")
    a("s_cmp_gt_u32 s34, %d" % SPIN_MAX)
    a("s_cbranch_scc1 %s_pz" % name)
    a("s_cbranch_vccz %s_pz" % name)
    a("s_sleep 32")
    a("s_branch %s_pz0" % name)
    a.label("%s_pz" % name)
    a("buffer_load_dword v29, v28, s[12:15], s52 offen sc1")
    a("s_add_u32 s34, s34, 1")
    a("s_waitcnt vmcnt(0)")
    a("v_cmp_ne_u32 vcc, 1, v29")
    a("s_cmp_gt_u32 s34, %d" % SPIN_MAX)
    a("s_cbranch_scc1 %s_pzx" % name)
    a("s_cbranch_vccz %s_pzx" % name)
    a("s_sleep 8")
    a("s_branch %s_pz" % name)
    a.label("%s_pzx" % name)
    a("v_mov_b32 v27, 1")
    a("ds_write_b32 v26, v27 offset:4")
    a("s_branch %s_pgo" % name)
    a.label("%s_pl" % name)
    a("ds_read_b32 v27, v26 offset:4")
    a("s_add_u32 s34, s34, 1")
    a("s_waitcnt lgkmcnt(0)")
    a("v_readfirstlane_b32 s36, v27")
    a("s_cmp_gt_u32 s34, %d" % (SPIN_MAX * 20))
    a("s_cbranch_scc1 %s_pgo" % name)
    a("s_cmp_lg_u32 s36, 0")
    a("s_cbranch_scc1 %s_pgo" % name)
    a("s_sleep 2")
    a("s_branch %s_pl" % name)
    a.label("%s_pgo" % name)
    stamp(a, 8)
    for g in range(4):
        a("s_add_u32 s35, s24, %d" % (g * SLOT + TREG))
        a("s_mov_b32 m0, s35")
        a("s_add_u32 s36, s27, %d" % (18432 * g))
        a("s_add_u32 s37, s36, s32")
        for n in range(4):
            a("buffer_load_dwordx4 v14, s[12:15], s36 offen offset:%d sc1 lds" % (n * 1024))
        a("s_add_u32 s35, s35, s32")
        a("s_mov_b32 m0, s35")
        a("s_mov_b64 exec, 0xffffffff")
        a("buffer_load_dwordx4 v14, s[12:15], s37 offen sc1 lds")
        a("s_mov_b64 exec, -1")
    a("s_add_u32 s26, s26, 512")
    a("s_add_u32 s27, s27, %d" % (4 * 18432))
    a("s_mov_b32 s33, 0")
    a("s_lshl_b32 s43, s2, 2")
    a("s_add_u32 s43, s43, s3")
    a("s_and_b32 s53, s43, 1")
    a("s_sub_u32 s36, s43, 448")
    a("s_lshr_b32 s37, s43, 1")
    a("s_cmp_ge_u32 s43, 896")
    a("s_cselect_b32 s43, s36, s37")
    a("s_cselect_b32 s53, 2, s53")
    a("s_waitcnt vmcnt(15)")
    a("s_barrier")
    a("s_waitcnt vmcnt(10)")
    a("s_barrier")
    a("s_waitcnt vmcnt(5)")
    a("s_barrier")
    a("s_mov_b32 s34, 4")
    def issue2():
        a("s_add_u32 s35, s33, s24")
        a("s_mov_b32 m0, s35")
        a("s_add_u32 s36, s35, %d" % TREG)
        for n in range(4):
            a("buffer_load_dwordx4 v%d, s[8:11], s26 offen offset:%d lds" % (10 + n, n * 1024))
        a("s_mov_b32 m0, s36")
        a("s_add_u32 s37, s27, s32")
        for n in range(4):
            a("buffer_load_dwordx4 v14, s[12:15], s27 offen offset:%d sc1 lds" % (n * 1024))
        a("s_add_u32 s36, s36, s32")
        a("s_mov_b32 m0, s36")
        a("s_mov_b64 exec, 0xffffffff")
        a("buffer_load_dwordx4 v14, s[12:15], s37 offen sc1 lds")
        a("s_mov_b64 exec, -1")
        a("s_add_u32 s26, s26, 128")
        a("s_add_u32 s27, s27, 18432")
        a("s_add_u32 s33, s33, %d" % SLOT)
        a("s_cmp_eq_u32 s33, %d" % (R * SLOT))
        a("s_cselect_b32 s33, 0, s33")
    a.label("%s_lloop" % name)
    issue2()
    a("s_cmp_eq_u32 s34, 8")
    a("s_cbranch_scc1 %s_hk0" % name)
    a("s_cmp_eq_u32 s34, 18")
    a("s_cbranch_scc1 %s_hk1" % name)
    a("s_cmp_eq_u32 s34, 21")
    a("s_cbranch_scc1 %s_hk2" % name)
    a("s_waitcnt vmcnt(9)")
    a.label("%s_lcont" % name)
    a("s_barrier")
    a("s_add_u32 s34, s34, 1")
    a("s_cmp_lt_u32 s34, 32")
    a("s_cbranch_scc1 %s_lloop" % name)
    a("s_branch %s_ldone" % name)
    a.label("%s_hk0" % name)
    a("v_mov_b32 v27, 1")
    a("s_mov_b64 exec, 1")
    a("ds_add_rtn_u32 v28, v26, v27 offset:8")
    a("s_waitcnt lgkmcnt(0)")
    a("v_readfirstlane_b32 s36, v28")
    a("s_cmp_lg_u32 s36, 3")
    a("s_cbranch_scc1 %s_hk0x" % name)
    a("s_and_b32 s36, s2, 15")
    a("s_lshl_b32 s36, s36, 2")
    a("s_add_u32 s36, s36, 128")
    a("v_mov_b32 v28, s36")
    a("buffer_atomic_add v27, v28, s[60:63], 0 offen sc1")
    a.label("%s_hk0x" % name)
    a("s_mov_b64 exec, -1")
    a("s_waitcnt vmcnt(9)")
    a("s_branch %s_lcont" % name)
    a.label("%s_hk1" % name)
    a("v_and_b32 v28, 15, v2")
    a("v_lshlrev_b32 v28, 2, v28")
    a("buffer_load_dword v29, v28, s[60:63], 0 offen offset:128 sc1")
    a("s_waitcnt vmcnt(10)")
    a("s_branch %s_lcont" % name)
    a.label("%s_hk2" % name)
    a("s_mov_b32 s52, 0")
    a.label("%s_hk2l" % name)
    a("v_cmp_gt_u32 vcc, 16, v29")
    a("s_add_u32 s52, s52, 1")
    a("s_cmp_gt_u32 s52, %d" % SPIN_MAX)
    a("s_cbranch_scc1 %s_hk2g" % name)
    a("s_cbranch_vccz %s_hk2g" % name)
    a("s_sleep 16")
    a("buffer_load_dword v29, v28, s[60:63], 0 offen offset:128 sc1")
    a("s_waitcnt vmcnt(0)")
    a("s_branch %s_hk2l" % name)
    a.label("%s_hk2g" % name)
    nconv = emit_conv_loads(a, " sc1")
    a("s_waitcnt vmcnt(%d)" % (9 + nconv))
    a("s_branch %s_lcont" % name)
    a.label("%s_ldone" % name)
    a("s_waitcnt vmcnt(0)")
    a("s_barrier")
    a("s_mov_b32 s26, s53")
    a("s_and_b32 s27, s3, 1")
    a("s_mul_i32 s27, s27, %d" % CJ_SIZE)
    a("s_lshr_b32 s36, s3, 1")
    a("s_mul_i32 s36, s36, %d" % SLOT)
    a("s_add_u32 s27, s27, s36")
    a("s_add_u32 s27, s27, %d" % RB)
    def mid():
        a("s_barrier")
        a("s_setprio 0")
    sv = set(DBG); DBG.discard("stamp")
    emit_conv_job(a, name, mid)
    DBG.update(sv)
    G.stamp_rt(a, 1)
    a.label("%s_end" % name)
    a("s_endpgm")
    return a.text(), kernel_desc(name, 256, 256), (name, 256, 512, LDSB)

def gen_kf2(name="k1_kernel", R=4):
    a = Asm()
    RB = 4096; SLOT = 34816; TREG = 16384; FS = 288; RST = 0
    LDSB = RB + R * SLOT
    LC = 2048
    ZFLG = 0x2D00000
    from gen3 import emit_conv_loads, emit_conv_job, CJ_SIZE
    def capture(f, *args):
        lb = len(a.lines); f(*args); out = a.lines[lb:]; del a.lines[lb:]; return out
    kernel_begin(a, name)
    a("s_load_dwordx2 s[80:81], s[0:1], 0")
    a("s_load_dwordx2 s[4:5], s[0:1], 56")
    a("s_load_dwordx2 s[6:7], s[0:1], 104")
    a("s_load_dwordx2 s[18:19], s[0:1], 96")
    a("s_cmp_ge_u32 s2, 256")
    a("s_cbranch_scc1 %s_end" % name)
    a("v_lshrrev_b32 v1, 6, v0")
    a("v_and_b32 v2, 63, v0")
    a("v_readfirstlane_b32 s3, v1")
    G2.tile_ij(a)
    a("s_lshr_b32 s98, s3, 2")
    a("s_mov_b32 s54x, 0".replace("s54x", "s99"))
    a("s_and_b32 s3, s3, 3")
    a("s_lshr_b32 s24, s3, 1")
    a("s_and_b32 s25, s3, 1")
    a("v_and_b32 v3, 15, v2")
    VT = 204; VF = 208
    def loader_setup():
        a("v_lshrrev_b32 v5, 3, v2")
        a("v_and_b32 v4, 7, v2")
        a("s_lshl_b32 s36, s3, 5")
        a("v_add_u32 v5, s36, v5")
        a("v_lshrrev_b32 v7, 4, v2")
        a("v_xor_b32 v7, v7, v4")
        a("v_mul_u32_u24 v6, 1152, v5")
        a("v_lshl_add_u32 v%d, v7, 4, v6" % VT)
        a("v_xor_b32 v%d, 64, v%d" % (VT + 1, VT))
        a("v_add_u32 v%d, %d, v%d" % (VT + 1, 9216 - 1024, VT + 1))
        a("v_add_u32 v%d, %d, v%d" % (VT + 2, 2 * (9216 - 1024), VT))
        a("v_add_u32 v%d, %d, v%d" % (VT + 3, 2 * (9216 - 1024), VT + 1))
        a("s_lshl_b32 s84, s3, 12")
        a("s_add_u32 s84, s84, %d" % RB)
        a("s_lshl_b32 s85, s3, 9")
        a("s_add_u32 s85, s85, %d" % (RB + TREG + 16384))
    def loader_setup2():
        for n in range(5):
            if n < 4:
                a("s_lshl_b32 s36, s3, 8")
                a("s_add_u32 s36, s36, %d" % (64 * n))
            else:
                a("s_lshl_b32 s36, s3, 5")
                a("s_add_u32 s36, s36, 1024")
            a("v_add_u32 v6, s36, v2")
            a("v_mul_u32_u24 v7, 3641, v6")
            a("v_lshrrev_b32 v7, 16, v7")
            a("v_mul_u32_u24 v8, 18, v7")
            a("v_sub_u32 v8, v6, v8")
            a("v_and_b32 v9, 35, v7")
            a("v_bfe_u32 v6, v7, 2, 2")
            a("v_lshl_add_u32 v9, v6, 3, v9")
            a("v_bfe_u32 v6, v7, 4, 1")
            a("v_lshl_add_u32 v9, v6, 2, v9")
            a("v_mul_u32_u24 v9, 9216, v9")
            a("v_lshl_add_u32 v%d, v8, 4, v9" % (VF + n))
            if 0 < n < 4: a("v_subrev_u32 v%d, %d, v%d" % (VF + n, 1024 * n, VF + n))
    def issueT(g):
        st = g % 9
        a("s_add_u32 s86, s84, %d" % ((g % R) * SLOT))
        a("s_mov_b32 m0, s86")
        a("s_add_u32 s87, s82, %d" % (128 * st))
        for n in range(4):
            a("buffer_load_dwordx4 v%d, s[28:31], s87 offen offset:%d lds" % (VT + n, 1024 * n))
    def issueF(g):
        st = g % 9
        a("s_add_u32 s86, s84, %d" % ((g % R) * SLOT + TREG))
        a("s_mov_b32 m0, s86")
        a("s_add_u32 s87, s83, %d" % (64 * 9216 * st + (4608 if g < 9 else 0)))
        for n in range(4):
            a("buffer_load_dwordx4 v%d, s[8:11], s87 offen offset:%d lds" % (VF + n, 1024 * n))
        a("s_add_u32 s86, s85, %d" % ((g % R) * SLOT))
        a("s_mov_b32 m0, s86")
        a("s_mov_b64 exec, 0xffffffff")
        a("buffer_load_dwordx4 v%d, s[8:11], s87 offen lds" % (VF + 4))
        a("s_mov_b64 exec, -1")
    def srds_main():
        srd(a, 28, 80, 2048 * 576 * 2)
        srd(a, 8, 4, 576 * 4608 * 2)
        srd(a, 12, 6, WS_BYTES)
        srd(a, 60, 18, 256)
        a("s_mul_i32 s82, s22, %d" % (128 * 1152))
        a("s_mul_i32 s83, s23, 288")
    ACC = 128; FB = [16, 52]; CS = 216; ONE = 236
    vTa = [4, 5]; vTb = [6, 7]; vF = 8; vFh = 9
    bTa = [88, 89]; bTb = [90, 91]; bF = 92; bFh = 93
    def mma_setup():
        a("v_lshrrev_b32 v10, 4, v2")
        a("v_lshrrev_b32 v11, 1, v3")
        a("v_xor_b32 v10, v10, v11")
        a("v_lshlrev_b32 v10, 4, v10")
        a("v_lshl_add_u32 v10, v3, 7, v10")
        a("s_lshl_b32 s26, s24, 13")
        a("s_add_u32 s26, s26, %d" % RB)
        a("v_add_u32 v10, s26, v10")
        a("s_lshl_b32 s26, s25, 12")
        a("v_add_u32 v%d, s26, v10" % bTa[0])
        a("s_xor_b32 s26, s26, 4096")
        a("v_add_u32 v%d, s26, v10" % bTb[0])
        a("v_xor_b32 v%d, 64, v%d" % (bTa[1], bTa[0]))
        a("v_xor_b32 v%d, 64, v%d" % (bTb[1], bTb[0]))
        a("v_lshrrev_b32 v10, 2, v2")
        a("v_mul_u32_u24 v10, %d, v10" % FS)
        a("v_and_b32 v11, 3, v2")
        a("v_lshl_add_u32 v10, v11, 3, v10")
        a("v_add_u32 v10, %d, v10" % (RB + TREG))
        a("s_mul_i32 s26, s25, 160")
        a("v_add_u32 v%d, s26, v10" % bF)
        a("v_add_u32 v%d, 128, v10" % bFh)
        for r in range(ACC, ACC + 72): a("v_mov_b32 v%d, 0" % r)
        for r in range(CS, CS + 20): a("v_mov_b32 v%d, 0" % r)
        for r in range(ONE, ONE + 4): a("v_mov_b32 v%d, 0x3f803f80" % r)
    def mma_addr(slot):
        a("s_mov_b32 s27, %d" % (slot * SLOT))
        for d, s_ in ((vTa[0], bTa[0]), (vTb[0], bTb[0]), (vTa[1], bTa[1]), (vTb[1], bTb[1]), (vF, bF), (vFh, bFh)):
            a("v_add_u32 v%d, s27, v%d" % (d, s_))
    core = G.Core(a, ACC, FB[0], FB[1], FS, TREG, vTa, vTb, vF, vFh)
    trk = core.trk
    a("s_cmp_eq_u32 s98, 0")
    a("s_cbranch_scc1 %s_A0" % name)
    a("s_setprio 3")
    loader_setup()
    a("s_waitcnt lgkmcnt(0)")
    srds_main()
    vm = VmTracker(a)
    def issue(g, vmx):
        issueT(g); issueF(g); vmx.issue("S%d" % g, 9)
    issueT(0)
    loader_setup2()
    issueF(0); vm.issue("S0", 9)
    issue(1, vm); issue(2, vm); issue(3, vm)
    a("s_add_u32 s3, s3, 4"); stamp_setup(a, 1); stamp(a, 0); a("s_sub_u32 s3, s3, 4")
    mma_setup()
    RA = 96; XB = 112
    for r in range(RA, RA + 16): a("v_mov_b32 v%d, 0" % r)
    a("v_lshrrev_b32 v10, 4, v2")
    a("v_lshrrev_b32 v11, 1, v3")
    a("v_xor_b32 v10, v10, v11")
    a("v_lshlrev_b32 v10, 4, v10")
    a("v_lshl_add_u32 v10, v3, 7, v10")
    a("v_add_u32 v12, s84, v10")
    a("v_xor_b32 v13, 64, v12")
    def rs_rd(g):
        a("v_add_u32 v10, %d, v12" % ((g % R) * SLOT))
        a("v_add_u32 v11, %d, v13" % ((g % R) * SLOT))
        for h in range(2):
            for n in range(2):
                a("ds_read_b128 %s, v%d offset:%d" % (vr(XB + 8 * h + 4 * n), 10 + h, 2048 * n))
    def rs_do():
        for h in range(2):
            for n in range(2):
                x = XB + 8 * h + 4 * n
                a("v_mfma_f32_16x16x32_bf16 %s, %s, %s, %s" % (vr(RA + 4 * n), vr(ONE), vr(x), vr(RA + 4 * n)))
                a("v_mfma_f32_16x16x32_bf16 %s, %s, %s, %s" % (vr(RA + 8 + 4 * n), vr(x), vr(x), vr(RA + 8 + 4 * n)))
    def interleave(dma, comp, vmx=None):
        groups = []; cur = []
        for l in dma:
            cur.append(l)
            if "buffer_load" in l and not any("exec, 0xffffffff" in x for x in cur[-2:]):
                groups.append(cur); cur = []
            elif "exec, -1" in l:
                groups.append(cur); cur = []
        if cur: groups.append(cur)
        ns = max(1, len(groups))
        per = (len(comp) + ns - 1) // ns
        for g in groups:
            a.lines.extend(g)
            a.lines.extend(comp[:per]); comp = comp[per:]
        a.lines.extend(comp)
    vm.wait(["S0"])
    a("s_barrier")
    stamp(a, 1)
    rs_rd(0)
    vm.wait(["S1"])
    a("s_barrier")
    for k in range(9):
        a("s_waitcnt lgkmcnt(0)")
        dma = capture(lambda: (issueT(k + 3), issueF(k + 3))) if k >= 1 else []
        interleave(dma, capture(rs_do))
        if k >= 1: vm.issue("S%d" % (k + 3), 9)
        if k < 8:
            rs_rd(k + 1)
        else:
            a("s_nop 7")
            a("v_lshrrev_b32 v10, 4, v2")
            a("v_lshrrev_b32 v11, 2, v3")
            a("v_and_b32 v12, 3, v3")
            for n in range(2):
                G_ = RA + 8 + 4 * n
                for r in range(1, 4):
                    a("v_cmp_eq_u32 vcc, %d, v12" % r)
                    a("s_nop 1")
                    a("v_cndmask_b32 v%d, v%d, v%d, vcc" % (G_, G_, G_ + r))
            ML = 112
            for n in range(2):
                emit_ln_finish(a, RA + 4 * n, RA + 8 + 4 * n, 576, ML + 2 * n, ML + 2 * n + 1, 120)
                a("v_mov_b32 v%d, v%d" % (117 + 2 * n, ML + 2 * n + 1))
                a("v_sub_f32 v%d, 0, v%d" % (116 + 2 * n, ML + 2 * n))
            a("s_lshl_b32 s35, s3, 8")
            a("v_lshlrev_b32 v13, 3, v3")
            a("v_add_u32 v12, s35, v13")
            a("v_cmp_eq_u32 vcc, v10, v11")
            a("s_and_saveexec_b64 s[36:37], vcc")
            for n in range(2):
                a("ds_write_b64 v12, %s offset:%d" % (vr(116 + 2 * n, 2), RST + 128 * n))
            a("s_mov_b64 exec, s[36:37]")
            a("s_cmp_lg_u32 s23, 0")
            a("s_cbranch_scc1 %s_nost1" % name)
            a("s_lshl_b32 s35, s22, 7")
            a("s_lshl_b32 s36, s3, 5")
            a("s_add_u32 s35, s35, s36")
            a("s_lshl_b32 s35, s35, 3")
            a("s_add_u32 s35, s35, 0x%x" % STATS1)
            a("v_mov_b32 v11, 0x7ffffff0")
            a("v_cndmask_b32 v13, v11, v13, vcc")
            for n in range(2):
                a("buffer_store_dwordx2 %s, v13, s[12:15], s35 offen offset:%d" % (vr(ML + 2 * n, 2), 128 * n))
            a.label("%s_nost1" % name)
            mma_addr(9 % R)
            a("s_mov_b32 s33, 0")
            a("s_setprio 0")
        vm.wait(["S%d" % (k + 2)], "lgkmcnt(0)" if k == 8 else "")
        if k < 8: a("s_barrier")
    a("s_branch %s_mma" % name)
    a.label("%s_A0" % name)
    emit_code_prefetch(a, name)
    a("s_load_dwordx4 s[64:67], s[0:1], 8")
    a("s_load_dwordx2 s[76:77], s[0:1], 24")
    a("s_load_dwordx2 s[78:79], s[0:1], 64")
    a("s_waitcnt lgkmcnt(0)")
    srds_main()
    srd(a, 68, 66, 2048 * 576 * 2)
    a("s_mov_b32 s88, s64"); a("s_mov_b32 s89, s65")
    srd(a, 64, 88, 2048 * 576 * 2)
    srd(a, 72, 76, 576 * 8)
    a("s_mov_b32 s41, s2")
    emit_kv_loads(a)
    a("s_cmp_ge_u32 s2, 32")
    a("s_cbranch_scc1 %s_kv1" % name)
    a("s_add_u32 s41, s2, 256")
    emit_kv_loads(a, 128, 140, 148, 152, 153)
    a.label("%s_kv1" % name)
    loader_setup(); loader_setup2()
    a("s_mov_b32 s39, 0x%x" % KVT)
    a("s_waitcnt vmcnt(0)")
    a.label("%s_kv2" % name)
    emit_kv_compute(a, wait=False, store=False)
    a("buffer_store_dwordx4 v[120:123], v12, s[12:15], s39 offen sc1")
    a("buffer_store_dwordx4 v[124:127], v13, s[12:15], s39 offen sc1")
    a("s_cmp_lt_u32 s41, 256")
    a("s_cbranch_scc1 %s_kv3" % name)
    a("s_mov_b32 s41, 0")
    for n in range(11): a("v_mov_b32 v%d, v%d" % (16 + n, 128 + n))
    for n in range(8): a("v_mov_b32 v%d, v%d" % (32 + n, 140 + n))
    for n in range(4): a("v_mov_b32 v%d, v%d" % (44 + n, 148 + n))
    a("v_mov_b32 v56, v152"); a("v_mov_b32 v57, v153")
    a("s_branch %s_kv2" % name)
    a.label("%s_kv3" % name)
    mma_setup()
    stamp_setup(a, 1); stamp(a, 0)
    def gran_addr():
        a("v_lshrrev_b32 v10, 4, v2")
        a("s_lshl_b32 s36, s25, 1")
        a("v_add_u32 v11, s36, v10")
        a("v_and_b32 v11, 3, v11")
        a("v_lshl_add_u32 v11, v11, 4, v3")
        a("v_lshlrev_b32 v94, 8, v11")
        a("s_lshl_b32 s59, s22, 7")
        a("s_lshl_b32 s36, s24, 6")
        a("s_add_u32 s59, s59, s36")
        a("s_lshl_b32 s59, s59, 8")
        a("s_add_u32 s59, s59, 0x%x" % STATS2)
        a("s_lshl_b32 s36, s23, 1")
        a("s_add_u32 s36, s36, s25")
        a("s_lshl_b32 s36, s36, 3")
        a("s_add_u32 s58, s36, s59")
    gran_addr()
    a("v_mov_b32 v12, 0"); a("v_mov_b32 v13, 0x80000000")
    a("buffer_store_dwordx2 v[12:13], v94, s[12:15], s58 offen sc1")
    a("s_lshl_b32 s36, s22, 4")
    a("s_add_u32 s36, s36, s23")
    a("s_lshl_b32 s36, s36, 8")
    a("s_add_u32 s97, s36, 0x%x" % ZFLG)
    a("v_mov_b32 v10, %d" % LC)
    a("v_mov_b32 v12, 0"); a("v_mov_b32 v13, 0")
    a("s_mov_b64 exec, 1")
    a("buffer_store_dword v12, v12, s[12:15], s97 offen sc1")
    a("s_mov_b64 exec, -1")
    a("ds_write_b64 v10, v[12:13]")
    a("ds_write_b64 v10, v[12:13] offset:8")
    mma_addr(0)
    a("s_mov_b32 s33, 0")
    a("s_waitcnt lgkmcnt(0)")
    a("s_barrier")
    stamp(a, 1)
    a.label("%s_mma" % name)
    core.prime(0, core.reads(0, 0))
    trk.drain()
    nocs = [False]
    def mfmas(buf):
        L = []
        for ft in range(5):
            A = core.F(buf, ft)
            for tt in range(4 if ft < 4 else 2):
                c = core.accr(ft, tt); B = core.T(buf, tt)
                L.append(("v_mfma_f32_16x16x32_bf16 %s, %s, %s, %s" % (vr(c), vr(A), vr(B), vr(c)), list(range(A, A + 4)) + list(range(B, B + 4))))
            if not nocs[0]: L.append(("v_mfma_f32_16x16x32_bf16 %s, %s, %s, %s" % (vr(CS + 4 * ft), vr(A), vr(ONE), vr(CS + 4 * ft)), list(range(A, A + 4))))
        return L
    def phase(buf, pend):
        for (m, regs) in mfmas(buf):
            trk.need(regs)
            a(m)
            while pend:
                k, t = pend.pop(0)
                if k == "x":
                    a(t)
                    if t.startswith("s_"): continue
                else:
                    a(t[0]); trk.issue(t[1])
                break
        for k, t in pend:
            if k == "x": a(t)
            else: a(t[0]); trk.issue(t[1])
    def iteration(vw=True):
        if vw: a("s_waitcnt vmcnt(0)")
        a("s_barrier")
        rd = [("r", t) for t in core.reads(1, 1)]
        upd = ["s_add_u32 s27, s27, %d" % SLOT, "s_cmp_eq_u32 s27, %d" % (R * SLOT), "s_cselect_b32 s27, 0, s27"]
        tail = ["v_add_u32 v%d, s27, v%d" % (d, s_) for d, s_ in ((vTa[0], bTa[0]), (vF, bF), (vTb[0], bTb[0]), (vFh, bFh))]
        phase(0, rd[:1] + [("x", u) for u in upd] + rd[1:] + [("x", u) for u in tail])
        rd = [("r", t) for t in core.reads(0, 0)]
        tail = ["v_add_u32 v%d, s27, v%d" % (d, s_) for d, s_ in ((vTa[1], bTa[1]), (vTb[1], bTb[1]))] + ["s_add_u32 s33, s33, 1"]
        phase(1, rd + [("x", u) for u in tail])
    a.label("%s_cloop" % name)
    lb = len(a.lines); iteration(); st = copy.deepcopy(trk.out); del a.lines[lb:]; trk.out = copy.deepcopy(st)
    iteration()
    assert [sorted(x) for x in trk.out] == [sorted(x) for x in st]
    a("s_cmp_lt_u32 s33, 9")
    a("s_cbranch_scc1 %s_cloop" % name)
    trk.drain()
    stamp(a, 2)
    MR = 100; T = 72; ZP = 16
    def epi_in():
        gelu_consts(a)
        a("s_lshl_b32 s36, s24, 9")
        a("s_lshl_b32 s37, s25, 8")
        a("s_add_u32 s38, s36, s37")
        a("s_xor_b32 s37, s37, 256")
        a("s_add_u32 s39, s36, s37")
        a("v_lshlrev_b32 v10, 3, v3")
        a("v_add_u32 v11, s38, v10")
        a("ds_read_b64 %s, v11 offset:%d" % (vr(MR, 2), RST))
        a("ds_read_b64 %s, v11 offset:%d" % (vr(MR + 2, 2), RST + 128))
        a("v_add_u32 v11, s39, v10")
        a("ds_read_b64 %s, v11 offset:%d" % (vr(MR + 4, 2), RST))
        a("ds_read_b64 %s, v11 offset:%d" % (vr(MR + 6, 2), RST + 128))
        a("s_waitcnt lgkmcnt(0)")
    S = [108, 110, 52, 54]; Q = [109, 111, 53, 55]
    def gelu_ft(ft, stats):
        tts = range(4 if ft < 4 else 2)
        emit_fold_gelu(a, [(core.accr(ft, tt), CS + 4 * ft, MR + 2 * tt, ZP + 2 * tidx(ft, tt)) for tt in tts], T)
        if stats:
            for d in range(2):
                for tt in tts:
                    p = ZP + 2 * tidx(ft, tt) + d
                    a("v_dot2_f32_bf16 v%d, v%d, v%d, v%d" % (S[tt], p, ONE, S[tt]))
                    a("v_dot2_f32_bf16 v%d, v%d, v%d, v%d" % (Q[tt], p, p, Q[tt]))
    a("s_cmp_eq_u32 s98, 0")
    a("s_cbranch_scc1 %s_A1" % name)
    a("s_barrier")
    a("s_load_dwordx2 s[94:95], s[0:1], 80")
    a("s_load_dwordx2 s[92:93], s[0:1], 72")
    epi_in()
    srd(a, 76, 94, 2304 * 576 * 2)
    srd(a, 28, 92, 2048 * 2)
    a("v_and_b32 v0, 255, v0")
    for ft in range(5): gelu_ft(ft, False)
    Z1R = 200; BI = 236
    for r_ in range(36): a("v_mov_b32 v%d, v%d" % (Z1R + r_, ZP + r_))
    stamp(a, 3)
    a("s_mov_b32 s42, s2")
    emit_wot_loads(a, 100, 112, 720, 3)
    a("s_lshl_b32 s36, s22, 7")
    a("s_lshl_b32 s37, s24, 6")
    a("s_add_u32 s36, s36, s37")
    a("v_lshlrev_b32 v11, 1, v3")
    a("s_lshl_b32 s37, s25, 6")
    a("s_lshl_b32 s38, s36, 1")
    a("s_add_u32 s39, s38, s37")
    a("s_xor_b32 s37, s37, 64")
    a("s_add_u32 s36, s38, s37")
    a("buffer_load_ushort v96, v11, s[28:31], s39 offen")
    a("buffer_load_ushort v97, v11, s[28:31], s39 offen offset:32")
    a("buffer_load_ushort v98, v11, s[28:31], s36 offen")
    a("buffer_load_ushort v99, v11, s[28:31], s36 offen offset:32")
    for r in range(ACC, ACC + 72): a("v_mov_b32 v%d, 0" % r)
    mma_addr(0)
    a("s_mov_b32 s33, 0")
    stamp(a, 4)
    a("s_barrier")
    stamp(a, 5)
    core.prime(0, core.reads(0, 0))
    trk.drain()
    nocs[0] = True
    a.label("%s_gloop" % name)
    lb = len(a.lines); iteration(False); st = copy.deepcopy(trk.out); del a.lines[lb:]; trk.out = copy.deepcopy(st)
    iteration(False)
    assert [sorted(x) for x in trk.out] == [sorted(x) for x in st]
    a("s_cmp_lg_u32 s33, 3")
    a("s_cbranch_scc1 %s_ghk" % name)
    a("s_waitcnt vmcnt(0)")
    for n in range(3):
        a("buffer_store_dwordx4 %s, v%d, s[12:15], s40 offen" % (vr(100 + 4 * n), 112 + n))
    for tt in range(4): a("v_lshlrev_b32 v%d, 16, v%d" % (BI + 2 * tt, 96 + tt))
    a.label("%s_ghk" % name)
    a("s_cmp_lt_u32 s33, 32")
    a("s_cbranch_scc1 %s_gloop" % name)
    trk.drain()
    stamp(a, 6)
    G3.emit_k2_epilogue(a, core, Z1R, BI)
    stamp(a, 7)
    G.stamp_rt(a, 1)
    a("s_branch %s_end" % name)
    a.label("%s_A1" % name)
    a("s_setprio 2")
    vmA = VmTracker(a)
    PB = 132
    def aux_head():
        epi_in()
        for tt in range(4):
            a("v_mov_b32 v%d, 0" % S[tt]); a("v_mov_b32 v%d, 0" % Q[tt])
    def aux_pub():
        a("s_nop 2")
        emit_xg_reduce(a, S + Q, 72)
        a("v_lshrrev_b32 v10, 4, v2")
        for g in range(1, 4):
            a("v_cmp_eq_u32 vcc, %d, v10" % g)
            a("s_nop 1")
            a("v_cndmask_b32 v%d, v%d, v%d, vcc" % (S[0], S[0], S[g]))
            a("v_cndmask_b32 v%d, v%d, v%d, vcc" % (Q[0], Q[0], Q[g]))
        a("v_and_b32 v%d, 0x7fffffff, v%d" % (Q[0], Q[0]))
        a("buffer_store_dwordx2 v[%d:%d], v94, s[12:15], s58 offen sc1" % (S[0], Q[0]))
    chunks = [capture(aux_head) + capture(gelu_ft, 0, True), capture(gelu_ft, 1, True), capture(gelu_ft, 2, True),
              capture(gelu_ft, 3, True), capture(gelu_ft, 4, True) + capture(aux_pub)]
    KD = 172
    for k in range(9, 18):
        a("s_barrier")
        if k == 9:
            a("s_cmp_lg_u32 s3, 0")
            a("s_cbranch_scc1 %s_nosig" % name)
            a("v_mov_b32 v10, 1")
            a("s_lshl_b32 s36, s22, 2")
            a("v_mov_b32 v11, s36")
            a("s_mov_b64 exec, 1")
            a("buffer_atomic_add v10, v11, s[60:63], 0 offen sc1")
            a("s_mov_b64 exec, -1")
            a.label("%s_nosig" % name)
        g = k + 3
        dma = capture(lambda: (issueT(g), issueF(g))) if g < 18 else []
        comp = chunks[k - 9] if k - 9 < len(chunks) else []
        interleave(dma, comp)
        if k == 13: vmA.issue("pub", 1)
        if g < 18: vmA.issue("S%d" % g, 9)
        if k == 14:
            srd(a, 92, 78, 2048 * 2048 * 2)
            a("v_lshrrev_b32 v10, 4, v2")
            a("v_lshlrev_b32 v10, 12, v10")
            a("v_lshl_add_u32 v10, v3, 4, v10")
            a("s_lshl_b32 s40, s22, 7")
            a("s_lshl_b32 s36, s3, 5")
            a("s_add_u32 s40, s40, s36")
            a("s_lshl_b32 s40, s40, 12")
            a("s_lshl_b32 s36, s23, 8")
            a("s_add_u32 s40, s40, s36")
            for n in range(8):
                a("buffer_load_dwordx4 v[200:203], v10, s[92:95], s40 offen")
                if n < 7: a("s_add_u32 s40, s40, 16384")
            vmA.issue("wp", 8)
            a("s_lshl_b32 s36, s22, 2")
            a("v_mov_b32 v199, s36")
            a("buffer_load_dword v198, v199, s[60:63], 0 offen sc1"); vmA.issue("cnt", 1)
        if k + 2 < 18 and k + 2 >= 12:
            vmA.wait(["S%d" % (k + 2)])
    a("s_barrier")
    stamp(a, 3)
    a("s_load_dwordx4 s[88:91], s[0:1], 32")
    a("v_lshrrev_b32 v10, 4, v2")
    a("v_lshlrev_b32 v95, 8, v3")
    a("v_lshl_add_u32 v95, v10, 6, v95")
    a("s_lshl_b32 s33, s25, 13")
    a("s_add_u32 s52, s59, s33")
    a("s_xor_b32 s33, s33, 8192")
    a("s_add_u32 s53, s59, s33")
    a("s_add_u32 s42, s52, 4096")
    a("s_add_u32 s43, s53, 4096")
    Z2 = ZP
    a("s_waitcnt vmcnt(0)")
    GB = [128, 144, 160, 176]
    a("v_mov_b32 v4, v95")
    def gather():
        for tt in range(4):
            for q in range(4):
                a("buffer_load_dwordx4 %s, v4, s[12:15], s%d offen offset:%d sc1" % (vr(GB[tt] + 4 * q), (52, 42, 53, 43)[tt], 16 * q))
    gather()
    a("s_mov_b32 s40, 0")
    a("s_waitcnt vmcnt(0)")
    a.label("%s_chk" % name)
    a("v_subrev_u32 v11, 16, v198")
    for tt in range(4):
        for r in range(GB[tt] + 1, GB[tt] + 16, 4):
            a("v_or3_b32 v11, v11, v%d, v%d" % (r, r + 2))
    a("v_cmp_gt_i32 vcc, 0, v11")
    a("s_add_u32 s40, s40, 1")
    a("s_cmp_gt_u32 s40, %d" % SPIN_MAX)
    a("s_cbranch_scc1 %s_ok" % name)
    a("s_cbranch_vccz %s_ok" % name)
    a("s_sleep 32")
    a("buffer_load_dword v198, v199, s[60:63], 0 offen sc1")
    a("s_waitcnt vmcnt(0)")
    gather()
    a("s_waitcnt vmcnt(0)")
    a("s_branch %s_chk" % name)
    a.label("%s_ok" % name)
    stamp(a, 5)
    for tt in range(4):
        b = GB[tt]
        for st_ in (8, 4, 2):
            for q in range(0, st_, 2):
                a("v_pk_add_f32 %s, %s, %s" % (vr(b + q, 2), vr(b + q, 2), vr(b + q + st_, 2)))
    emit_xg_reduce(a, [GB[tt] + e for tt in range(4) for e in range(2)], 72)
    for tt in range(4):
        b = GB[tt]
        emit_ln_finish(a, b, b + 1, 2304, b + 2, MR + 2 * tt, b + 4)
        a("v_mul_f32 v%d, -v%d, v%d" % (MR + 2 * tt + 1, b + 2, MR + 2 * tt))
    a("v_lshrrev_b32 v10, 4, v2")
    a("v_lshrrev_b32 v11, 2, v2"); a("v_and_b32 v11, 1, v11"); a("v_lshlrev_b32 v11, 4, v11")
    a("v_lshrrev_b32 v5, 3, v2"); a("v_and_b32 v5, 1, v5"); a("v_lshl_add_u32 v11, v5, 2, v11")
    a("v_and_b32 v5, 3, v2"); a("v_add_u32 v11, v11, v5")
    a("v_mul_u32_u24 v11, 288, v11")
    a("v_lshrrev_b32 v5, 1, v10"); a("v_lshl_add_u32 v11, v5, 4, v11")
    a("v_and_b32 v5, 1, v10")
    a("v_lshl_add_u32 v6, v5, 5, v11")
    a("v_mul_u32_u24 v5, 2304, v5")
    a("v_add_u32 v9, v11, v5")
    a("s_lshl_b32 s33, s23, 5")
    a("s_lshl_b32 s36, s22, 1")
    a("s_add_u32 s33, s33, s36")
    a("s_add_u32 s33, s33, s24")
    a("s_mul_i32 s33, s33, 18432")
    if ZIMG: a("s_add_u32 s33, s33, 0x%x" % ZIMG)
    a("s_mul_i32 s36, s25, 9216")
    a("s_add_u32 s37, s33, s36")
    a("s_xor_b32 s36, s36, 9216")
    a("s_add_u32 s38, s33, s36")
    a("s_add_u32 s39, s37, 128")
    a("s_mul_i32 s36, s25, 160")
    a("s_add_u32 s37, s37, s36")
    a("s_add_u32 s38, s38, s36")
    def norm_pair(nA, ttA, nB, ttB, O):
        for q, (n, tt) in enumerate(((nA, ttA), (nB, ttB))):
            for d in range(2):
                z = Z2 + 2 * n + d; t = T + 4 * q + 2 * d
                a("v_lshlrev_b32 v%d, 16, v%d" % (t, z))
                a("v_and_b32 v%d, 0xffff0000, v%d" % (t + 1, z))
        for q, (n, tt) in enumerate(((nA, ttA), (nB, ttB))):
            for d in range(2):
                t = T + 4 * q + 2 * d
                a("v_pk_fma_f32 %s, %s, %s, %s op_sel:[0,0,1] op_sel_hi:[1,0,1]" % (vr(t, 2), vr(t, 2), vr(MR + 2 * tt, 2), vr(MR + 2 * tt, 2)))
        for q in range(2):
            for d in range(2):
                t = T + 4 * q + 2 * d
                a("v_cvt_pk_bf16_f32 v%d, v%d, v%d" % (O + 2 * q + d, t, t + 1))
        a("s_nop 1")
        a("v_permlane16_swap_b32 v%d, v%d" % (O, O + 2))
        a("v_permlane16_swap_b32 v%d, v%d" % (O + 1, O + 3))
    cnt = 0
    for pr in range(2):
        for tt in range(4):
            O = 200 + 4 * cnt; cnt += 1
            norm_pair(tidx(2 * pr, tt), tt, tidx(2 * pr + 1, tt), tt, O)
            a("s_nop 0")
            a("buffer_store_dwordx4 %s, v6, s[12:15], s%d offen offset:%d" % (vr(O), 37 if tt < 2 else 38, (tt & 1) * 2304 + 64 * pr) + " sc1")
    O = 200 + 4 * cnt
    norm_pair(16, 0, 17, 1, O)
    a("s_nop 0")
    a("buffer_store_dwordx4 %s, v9, s[12:15], s39 offen sc1" % vr(O))
    stamp(a, 6)
    a("s_setprio 3")
    srd(a, 8, 78, 2048 * 2048 * 2)
    a("v_lshrrev_b32 v3, 3, v2")
    a("s_lshl_b32 s24, s3, 5")
    a("v_add_u32 v3, s24, v3")
    a("v_and_b32 v4, 7, v2")
    a("v_lshrrev_b32 v6, 4, v2")
    a("v_xor_b32 v6, v6, v4")
    a("v_lshlrev_b32 v6, 4, v6")
    a("v_lshl_add_u32 v10, v3, 12, v6")
    a("v_xor_b32 v11, 64, v10")
    a("v_add_u32 v11, %d, v11" % (32768 - 1024))
    a("v_add_u32 v12, %d, v10" % (2 * (32768 - 1024)))
    a("v_add_u32 v13, %d, v11" % (2 * (32768 - 1024)))
    a("v_lshlrev_b32 v14, 4, v2")
    a("s_lshl_b32 s26, s22, 19")
    a("s_mul_i32 s27, s23, %d" % (32 * 18432))
    a("s_lshl_b32 s24, s3, 12")
    a("s_add_u32 s27, s27, s24")
    if ZIMG: a("s_add_u32 s27, s27, 0x%x" % ZIMG)
    a("s_lshl_b32 s25, s3, 9")
    a("s_sub_u32 s32, s25, s24")
    a("s_add_u32 s32, s32, 16384")
    a("s_add_u32 s24, s24, %d" % RB)
    a("s_waitcnt vmcnt(0) lgkmcnt(0)")
    a("v_mov_b32 v26, %d" % LC)
    a("v_mov_b32 v27, 1")
    a("s_mov_b64 exec, 1")
    a("ds_add_rtn_u32 v28, v26, v27")
    a("s_waitcnt lgkmcnt(0)")
    a("v_readfirstlane_b32 s36, v28")
    a("s_cmp_lg_u32 s36, 3")
    a("s_cbranch_scc1 %s_nozs" % name)
    a("v_mov_b32 v28, 0")
    a("buffer_store_dword v27, v28, s[12:15], s97 offen sc1")
    a.label("%s_nozs" % name)
    a("s_mov_b64 exec, -1")
    stamp(a, 7)
    srd(a, 16, 88, 576 * 2048 * 2)
    srd(a, 84, 90, 576 * 2)
    for g in range(4):
        a("s_add_u32 s35, s24, %d" % (g * SLOT))
        a("s_mov_b32 m0, s35")
        a("s_add_u32 s36, s26, %d" % (128 * g))
        for n in range(4):
            a("buffer_load_dwordx4 v%d, s[8:11], s36 offen offset:%d lds" % (10 + n, n * 1024))
    a("s_mov_b32 s34, 0")
    a("s_cmp_lg_u32 s3, 0")
    a("s_cbranch_scc1 %s_pl" % name)
    a("v_and_b32 v28, 15, v2")
    a("v_lshlrev_b32 v30, 2, v28")
    a("v_lshlrev_b32 v28, 12, v28")
    a("s_lshl_b32 s52, s23, 8")
    a("s_add_u32 s52, s52, 0x%x" % ZFLG)
    a.label("%s_pz0" % name)
    a("buffer_load_dword v31, v30, s[60:63], 0 offen sc1")
    a("s_add_u32 s34, s34, 1")
    a("s_waitcnt vmcnt(0)")
    a("v_cmp_gt_u32 vcc, 16, v31")
    a("s_cmp_gt_u32 s34, %d" % SPIN_MAX)
    a("s_cbranch_scc1 %s_pz" % name)
    a("s_cbranch_vccz %s_pz" % name)
    a("s_sleep 32")
    a("s_branch %s_pz0" % name)
    a.label("%s_pz" % name)
    a("buffer_load_dword v29, v28, s[12:15], s52 offen sc1")
    a("s_add_u32 s34, s34, 1")
    a("s_waitcnt vmcnt(0)")
    a("v_cmp_ne_u32 vcc, 1, v29")
    a("s_cmp_gt_u32 s34, %d" % SPIN_MAX)
    a("s_cbranch_scc1 %s_pzx" % name)
    a("s_cbranch_vccz %s_pzx" % name)
    a("s_sleep 8")
    a("s_branch %s_pz" % name)
    a.label("%s_pzx" % name)
    a("v_mov_b32 v27, 1")
    a("ds_write_b32 v26, v27 offset:4")
    a("s_branch %s_pgo" % name)
    a.label("%s_pl" % name)
    a("ds_read_b32 v27, v26 offset:4")
    a("s_add_u32 s34, s34, 1")
    a("s_waitcnt lgkmcnt(0)")
    a("v_readfirstlane_b32 s36, v27")
    a("s_cmp_gt_u32 s34, %d" % (SPIN_MAX * 20))
    a("s_cbranch_scc1 %s_pgo" % name)
    a("s_cmp_lg_u32 s36, 0")
    a("s_cbranch_scc1 %s_pgo" % name)
    a("s_sleep 2")
    a("s_branch %s_pl" % name)
    a.label("%s_pgo" % name)
    stamp(a, 8)
    for g in range(4):
        a("s_add_u32 s35, s24, %d" % (g * SLOT + TREG))
        a("s_mov_b32 m0, s35")
        a("s_add_u32 s36, s27, %d" % (18432 * g))
        a("s_add_u32 s37, s36, s32")
        for n in range(4):
            a("buffer_load_dwordx4 v14, s[12:15], s36 offen offset:%d sc1 lds" % (n * 1024))
        a("s_add_u32 s35, s35, s32")
        a("s_mov_b32 m0, s35")
        a("s_mov_b64 exec, 0xffffffff")
        a("buffer_load_dwordx4 v14, s[12:15], s37 offen sc1 lds")
        a("s_mov_b64 exec, -1")
    a("s_add_u32 s26, s26, 512")
    a("s_add_u32 s27, s27, %d" % (4 * 18432))
    a("s_mov_b32 s33, 0")
    a("s_lshl_b32 s43, s2, 2")
    a("s_add_u32 s43, s43, s3")
    a("s_and_b32 s53, s43, 1")
    a("s_sub_u32 s36, s43, 448")
    a("s_lshr_b32 s37, s43, 1")
    a("s_cmp_ge_u32 s43, 896")
    a("s_cselect_b32 s43, s36, s37")
    a("s_cselect_b32 s53, 2, s53")
    a("s_waitcnt vmcnt(15)")
    a("s_barrier")
    a("s_waitcnt vmcnt(10)")
    a("s_barrier")
    a("s_waitcnt vmcnt(5)")
    a("s_barrier")
    a("s_mov_b32 s34, 4")
    def issue2():
        a("s_add_u32 s35, s33, s24")
        a("s_mov_b32 m0, s35")
        a("s_add_u32 s36, s35, %d" % TREG)
        for n in range(4):
            a("buffer_load_dwordx4 v%d, s[8:11], s26 offen offset:%d lds" % (10 + n, n * 1024))
        a("s_mov_b32 m0, s36")
        a("s_add_u32 s37, s27, s32")
        for n in range(4):
            a("buffer_load_dwordx4 v14, s[12:15], s27 offen offset:%d sc1 lds" % (n * 1024))
        a("s_add_u32 s36, s36, s32")
        a("s_mov_b32 m0, s36")
        a("s_mov_b64 exec, 0xffffffff")
        a("buffer_load_dwordx4 v14, s[12:15], s37 offen sc1 lds")
        a("s_mov_b64 exec, -1")
        a("s_add_u32 s26, s26, 128")
        a("s_add_u32 s27, s27, 18432")
        a("s_add_u32 s33, s33, %d" % SLOT)
        a("s_cmp_eq_u32 s33, %d" % (R * SLOT))
        a("s_cselect_b32 s33, 0, s33")
    a.label("%s_lloop" % name)
    issue2()
    a("s_cmp_eq_u32 s34, 18")
    a("s_cbranch_scc1 %s_hk1" % name)
    a("s_cmp_eq_u32 s34, 21")
    a("s_cbranch_scc1 %s_hk2" % name)
    a("s_waitcnt vmcnt(9)")
    a.label("%s_lcont" % name)
    a("s_barrier")
    a("s_add_u32 s34, s34, 1")
    a("s_cmp_lt_u32 s34, 32")
    a("s_cbranch_scc1 %s_lloop" % name)
    a("s_branch %s_ldone" % name)
    a.label("%s_hk1" % name)
    a("v_and_b32 v28, 15, v2")
    a("v_lshlrev_b32 v28, 2, v28")
    a("buffer_load_dword v29, v28, s[60:63], 0 offen sc1")
    a("s_waitcnt vmcnt(10)")
    a("s_branch %s_lcont" % name)
    a.label("%s_hk2" % name)
    a("s_mov_b32 s52, 0")
    a.label("%s_hk2l" % name)
    a("v_cmp_gt_u32 vcc, 16, v29")
    a("s_add_u32 s52, s52, 1")
    a("s_cmp_gt_u32 s52, %d" % SPIN_MAX)
    a("s_cbranch_scc1 %s_hk2g" % name)
    a("s_cbranch_vccz %s_hk2g" % name)
    a("s_sleep 16")
    a("buffer_load_dword v29, v28, s[60:63], 0 offen sc1")
    a("s_waitcnt vmcnt(0)")
    a("s_branch %s_hk2l" % name)
    a.label("%s_hk2g" % name)
    nconv = emit_conv_loads(a, " sc1")
    a("s_waitcnt vmcnt(%d)" % (9 + nconv))
    a("s_branch %s_lcont" % name)
    a.label("%s_ldone" % name)
    a("s_waitcnt vmcnt(0)")
    a("s_barrier")
    a("s_mov_b32 s26, s53")
    a("s_and_b32 s27, s3, 1")
    a("s_mul_i32 s27, s27, %d" % CJ_SIZE)
    a("s_lshr_b32 s36, s3, 1")
    a("s_mul_i32 s36, s36, %d" % SLOT)
    a("s_add_u32 s27, s27, s36")
    a("s_add_u32 s27, s27, %d" % RB)
    def mid():
        a("s_barrier")
        a("s_setprio 0")
    sv = set(DBG); DBG.discard("stamp")
    emit_conv_job(a, name, mid)
    DBG.update(sv)
    G.stamp_rt(a, 1)
    a.label("%s_end" % name)
    a("s_endpgm")
    return a.text(), kernel_desc(name, 256, 256), (name, 256, 512, LDSB)

def gen_k1i(name="k1_kernel", R=4):
    a = Asm()
    RB = 4096; SLOT = 34816; TREG = 16384; FS = 288; RST = 0
    LDSB = RB + R * SLOT
    def capture(f, *args):
        lb = len(a.lines); f(*args); out = a.lines[lb:]; del a.lines[lb:]; return out
    kernel_begin(a, name)
    a("s_load_dwordx2 s[80:81], s[0:1], 0")
    a("s_load_dwordx2 s[4:5], s[0:1], 56")
    a("s_load_dwordx2 s[6:7], s[0:1], 104")
    a("s_load_dwordx2 s[18:19], s[0:1], 96")
    a("s_cmp_ge_u32 s2, 256")
    a("s_cbranch_scc1 %s_end" % name)
    a("v_lshrrev_b32 v1, 6, v0")
    a("v_and_b32 v2, 63, v0")
    a("v_readfirstlane_b32 s3, v1")
    G2.tile_ij(a)
    a("s_lshr_b32 s98, s3, 2")
    a("s_mov_b32 s54x, 0".replace("s54x", "s99"))
    a("s_and_b32 s3, s3, 3")
    a("s_lshr_b32 s24, s3, 1")
    a("s_and_b32 s25, s3, 1")
    a("v_and_b32 v3, 15, v2")
    VT = 204; VF = 208
    def loader_setup():
        a("v_lshrrev_b32 v5, 3, v2")
        a("v_and_b32 v4, 7, v2")
        a("s_lshl_b32 s36, s3, 5")
        a("v_add_u32 v5, s36, v5")
        a("v_lshrrev_b32 v7, 4, v2")
        a("v_xor_b32 v7, v7, v4")
        a("v_mul_u32_u24 v6, 1152, v5")
        a("v_lshl_add_u32 v%d, v7, 4, v6" % VT)
        a("v_xor_b32 v%d, 64, v%d" % (VT + 1, VT))
        a("v_add_u32 v%d, %d, v%d" % (VT + 1, 9216 - 1024, VT + 1))
        a("v_add_u32 v%d, %d, v%d" % (VT + 2, 2 * (9216 - 1024), VT))
        a("v_add_u32 v%d, %d, v%d" % (VT + 3, 2 * (9216 - 1024), VT + 1))
        a("s_lshl_b32 s84, s3, 12")
        a("s_add_u32 s84, s84, %d" % RB)
        a("s_lshl_b32 s85, s3, 9")
        a("s_add_u32 s85, s85, %d" % (RB + TREG + 16384))
    def loader_setup2():
        for n in range(5):
            if n < 4:
                a("s_lshl_b32 s36, s3, 8")
                a("s_add_u32 s36, s36, %d" % (64 * n))
            else:
                a("s_lshl_b32 s36, s3, 5")
                a("s_add_u32 s36, s36, 1024")
            a("v_add_u32 v6, s36, v2")
            a("v_mul_u32_u24 v7, 3641, v6")
            a("v_lshrrev_b32 v7, 16, v7")
            a("v_mul_u32_u24 v8, 18, v7")
            a("v_sub_u32 v8, v6, v8")
            a("v_and_b32 v9, 35, v7")
            a("v_bfe_u32 v6, v7, 2, 2")
            a("v_lshl_add_u32 v9, v6, 3, v9")
            a("v_bfe_u32 v6, v7, 4, 1")
            a("v_lshl_add_u32 v9, v6, 2, v9")
            a("v_mul_u32_u24 v9, 9216, v9")
            a("v_lshl_add_u32 v%d, v8, 4, v9" % (VF + n))
            if 0 < n < 4: a("v_subrev_u32 v%d, %d, v%d" % (VF + n, 1024 * n, VF + n))
    def issueT(g):
        st = g % 9
        a("s_add_u32 s86, s84, %d" % ((g % R) * SLOT))
        a("s_mov_b32 m0, s86")
        a("s_add_u32 s87, s82, %d" % (128 * st))
        for n in range(4):
            a("buffer_load_dwordx4 v%d, s[28:31], s87 offen offset:%d lds" % (VT + n, 1024 * n))
    def issueF(g):
        st = g % 9
        a("s_add_u32 s86, s84, %d" % ((g % R) * SLOT + TREG))
        a("s_mov_b32 m0, s86")
        a("s_add_u32 s87, s83, %d" % (64 * 9216 * st + (4608 if g < 9 else 0)))
        for n in range(4):
            a("buffer_load_dwordx4 v%d, s[8:11], s87 offen offset:%d lds" % (VF + n, 1024 * n))
        a("s_add_u32 s86, s85, %d" % ((g % R) * SLOT))
        a("s_mov_b32 m0, s86")
        a("s_mov_b64 exec, 0xffffffff")
        a("buffer_load_dwordx4 v%d, s[8:11], s87 offen lds" % (VF + 4))
        a("s_mov_b64 exec, -1")
    def srds_main():
        srd(a, 28, 80, 2048 * 576 * 2)
        srd(a, 8, 4, 576 * 4608 * 2)
        srd(a, 12, 6, WS_BYTES)
        srd(a, 60, 18, 256)
        a("s_mul_i32 s82, s22, %d" % (128 * 1152))
        a("s_mul_i32 s83, s23, 288")
    ACC = 128; FB = [16, 52]; CS = 216; ONE = 236
    vTa = [4, 5]; vTb = [6, 7]; vF = 8; vFh = 9
    bTa = [88, 89]; bTb = [90, 91]; bF = 92; bFh = 93
    def mma_setup():
        a("v_lshrrev_b32 v10, 4, v2")
        a("v_lshrrev_b32 v11, 1, v3")
        a("v_xor_b32 v10, v10, v11")
        a("v_lshlrev_b32 v10, 4, v10")
        a("v_lshl_add_u32 v10, v3, 7, v10")
        a("s_lshl_b32 s26, s24, 13")
        a("s_add_u32 s26, s26, %d" % RB)
        a("v_add_u32 v10, s26, v10")
        a("s_lshl_b32 s26, s25, 12")
        a("v_add_u32 v%d, s26, v10" % bTa[0])
        a("s_xor_b32 s26, s26, 4096")
        a("v_add_u32 v%d, s26, v10" % bTb[0])
        a("v_xor_b32 v%d, 64, v%d" % (bTa[1], bTa[0]))
        a("v_xor_b32 v%d, 64, v%d" % (bTb[1], bTb[0]))
        a("v_lshrrev_b32 v10, 2, v2")
        a("v_mul_u32_u24 v10, %d, v10" % FS)
        a("v_and_b32 v11, 3, v2")
        a("v_lshl_add_u32 v10, v11, 3, v10")
        a("v_add_u32 v10, %d, v10" % (RB + TREG))
        a("s_mul_i32 s26, s25, 160")
        a("v_add_u32 v%d, s26, v10" % bF)
        a("v_add_u32 v%d, 128, v10" % bFh)
        for r in range(ACC, ACC + 72): a("v_mov_b32 v%d, 0" % r)
        for r in range(CS, CS + 20): a("v_mov_b32 v%d, 0" % r)
        for r in range(ONE, ONE + 4): a("v_mov_b32 v%d, 0x3f803f80" % r)
    def mma_addr(slot):
        a("s_mov_b32 s27, %d" % (slot * SLOT))
        for d, s_ in ((vTa[0], bTa[0]), (vTb[0], bTb[0]), (vTa[1], bTa[1]), (vTb[1], bTb[1]), (vF, bF), (vFh, bFh)):
            a("v_add_u32 v%d, s27, v%d" % (d, s_))
    core = G.Core(a, ACC, FB[0], FB[1], FS, TREG, vTa, vTb, vF, vFh)
    trk = core.trk
    a("s_cmp_eq_u32 s98, 0")
    a("s_cbranch_scc1 %s_A0" % name)
    a("s_setprio 3")
    loader_setup()
    a("s_waitcnt lgkmcnt(0)")
    srds_main()
    vm = VmTracker(a)
    def issue(g, vmx):
        issueT(g); issueF(g); vmx.issue("S%d" % g, 9)
    issueT(0)
    loader_setup2()
    issueF(0); vm.issue("S0", 9)
    issue(1, vm); issue(2, vm); issue(3, vm)
    a("s_add_u32 s3, s3, 4"); stamp_setup(a, 1); stamp(a, 0); a("s_sub_u32 s3, s3, 4")
    for r in range(ONE, ONE + 4): a("v_mov_b32 v%d, 0x3f803f80" % r)
    RA = 96; XB = 112
    for r in range(RA, RA + 16): a("v_mov_b32 v%d, 0" % r)
    a("v_lshrrev_b32 v10, 4, v2")
    a("v_lshrrev_b32 v11, 1, v3")
    a("v_xor_b32 v10, v10, v11")
    a("v_lshlrev_b32 v10, 4, v10")
    a("v_lshl_add_u32 v10, v3, 7, v10")
    a("v_add_u32 v12, s84, v10")
    a("v_xor_b32 v13, 64, v12")
    def rs_rd(g):
        a("v_add_u32 v10, %d, v12" % ((g % R) * SLOT))
        a("v_add_u32 v11, %d, v13" % ((g % R) * SLOT))
        for h in range(2):
            for n in range(2):
                a("ds_read_b128 %s, v%d offset:%d" % (vr(XB + 8 * h + 4 * n), 10 + h, 2048 * n))
    def rs_do():
        for h in range(2):
            for n in range(2):
                x = XB + 8 * h + 4 * n
                a("v_mfma_f32_16x16x32_bf16 %s, %s, %s, %s" % (vr(RA + 4 * n), vr(ONE), vr(x), vr(RA + 4 * n)))
                a("v_mfma_f32_16x16x32_bf16 %s, %s, %s, %s" % (vr(RA + 8 + 4 * n), vr(x), vr(x), vr(RA + 8 + 4 * n)))
    def interleave(dma, comp, vmx=None):
        groups = []; cur = []
        for l in dma:
            cur.append(l)
            if "buffer_load" in l and not any("exec, 0xffffffff" in x for x in cur[-2:]):
                groups.append(cur); cur = []
            elif "exec, -1" in l:
                groups.append(cur); cur = []
        if cur: groups.append(cur)
        ns = max(1, len(groups))
        per = (len(comp) + ns - 1) // ns
        for g in groups:
            a.lines.extend(g)
            a.lines.extend(comp[:per]); comp = comp[per:]
        a.lines.extend(comp)
    vm.wait(["S0"])
    a("s_barrier")
    stamp(a, 1)
    rs_rd(0)
    vm.wait(["S1"])
    a("s_barrier")
    for k in range(9):
        a("s_waitcnt lgkmcnt(0)")
        dma = capture(lambda: (issueT(k + 3), issueF(k + 3))) if (k >= 1 and k + 3 < 9) else []
        interleave(dma, capture(rs_do))
        if k >= 1 and k + 3 < 9: vm.issue("S%d" % (k + 3), 9)
        if k < 8:
            rs_rd(k + 1)
        else:
            a("s_nop 7")
            a("v_lshrrev_b32 v10, 4, v2")
            a("v_lshrrev_b32 v11, 2, v3")
            a("v_and_b32 v12, 3, v3")
            for n in range(2):
                G_ = RA + 8 + 4 * n
                for r in range(1, 4):
                    a("v_cmp_eq_u32 vcc, %d, v12" % r)
                    a("s_nop 1")
                    a("v_cndmask_b32 v%d, v%d, v%d, vcc" % (G_, G_, G_ + r))
            ML = 112
            for n in range(2):
                emit_ln_finish(a, RA + 4 * n, RA + 8 + 4 * n, 576, ML + 2 * n, ML + 2 * n + 1, 120)
                a("v_mov_b32 v%d, v%d" % (117 + 2 * n, ML + 2 * n + 1))
                a("v_sub_f32 v%d, 0, v%d" % (116 + 2 * n, ML + 2 * n))
            a("s_lshl_b32 s35, s3, 8")
            a("v_lshlrev_b32 v13, 3, v3")
            a("v_add_u32 v12, s35, v13")
            a("v_cmp_eq_u32 vcc, v10, v11")
            a("s_and_saveexec_b64 s[36:37], vcc")
            for n in range(2):
                a("ds_write_b64 v12, %s offset:%d" % (vr(116 + 2 * n, 2), RST + 128 * n))
            a("s_mov_b64 exec, s[36:37]")
            a("s_cmp_lg_u32 s23, 0")
            a("s_cbranch_scc1 %s_nost1" % name)
            a("s_lshl_b32 s35, s22, 7")
            a("s_lshl_b32 s36, s3, 5")
            a("s_add_u32 s35, s35, s36")
            a("s_lshl_b32 s35, s35, 3")
            a("s_add_u32 s35, s35, 0x%x" % STATS1)
            a("v_mov_b32 v11, 0x7ffffff0")
            a("v_cndmask_b32 v13, v11, v13, vcc")
            for n in range(2):
                a("buffer_store_dwordx2 %s, v13, s[12:15], s35 offen offset:%d" % (vr(ML + 2 * n, 2), 128 * n))
            a.label("%s_nost1" % name)
        if k < 8:
            vm.wait(["S%d" % (k + 2)])
            a("s_barrier")
    a("s_waitcnt lgkmcnt(0)")
    a("s_barrier")
    a("s_load_dwordx4 s[64:67], s[0:1], 8")
    a("s_load_dwordx2 s[76:77], s[0:1], 24")
    a("s_load_dwordx2 s[90:91], s[0:1], 64")
    a("s_mul_i32 s36, s3, 13312")
    a("s_add_u32 s36, s36, %d" % RB)
    a("v_lshlrev_b32 v10, 4, v2")
    a("v_add_u32 v11, s36, v10")
    a("s_waitcnt lgkmcnt(0)")
    srd(a, 68, 66, 2048 * 576 * 2)
    a("s_mov_b32 s88, s64"); a("s_mov_b32 s89, s65")
    srd(a, 64, 88, 2048 * 576 * 2)
    srd(a, 72, 76, 576 * 8)
    srd(a, 92, 90, 2048 * 2048 * 2)
    a("s_barrier")
    n_ = 0
    for ft in range(4):
        for tt in range(2):
            a("ds_read_b128 %s, v11 offset:%d" % (vr(core.accr(ft, tt)), 1024 * n_)); n_ += 1
    for ft in range(4):
        a("ds_read_b128 %s, v11 offset:%d" % (vr(CS + 4 * ft), 1024 * n_)); n_ += 1
    a("s_branch %s_epi" % name)
    a.label("%s_A0" % name)
    emit_code_prefetch(a, name)
    a("s_load_dwordx4 s[64:67], s[0:1], 8")
    a("s_load_dwordx2 s[76:77], s[0:1], 24")
    a("s_load_dwordx2 s[90:91], s[0:1], 64")
    mma_setup()
    a("s_waitcnt lgkmcnt(0)")
    srds_main()
    srd(a, 68, 66, 2048 * 576 * 2)
    a("s_mov_b32 s88, s64"); a("s_mov_b32 s89, s65")
    srd(a, 64, 88, 2048 * 576 * 2)
    srd(a, 72, 76, 576 * 8)
    srd(a, 92, 90, 2048 * 2048 * 2)
    stamp_setup(a, 1); stamp(a, 0)
    def gran_addr():
        a("v_lshrrev_b32 v10, 4, v2")
        a("s_lshl_b32 s36, s25, 1")
        a("v_add_u32 v11, s36, v10")
        a("v_and_b32 v11, 3, v11")
        a("v_lshl_add_u32 v11, v11, 4, v3")
        a("v_lshlrev_b32 v94, 8, v11")
        a("s_lshl_b32 s59, s22, 7")
        a("s_lshl_b32 s36, s24, 6")
        a("s_add_u32 s59, s59, s36")
        a("s_lshl_b32 s59, s59, 8")
        a("s_add_u32 s59, s59, 0x%x" % STATS2)
        a("s_lshl_b32 s36, s23, 1")
        a("s_add_u32 s36, s36, s25")
        a("s_lshl_b32 s36, s36, 3")
        a("s_add_u32 s58, s36, s59")
    gran_addr()
    a("v_mov_b32 v12, 0"); a("v_mov_b32 v13, 0x80000000")
    a("buffer_store_dwordx2 v[12:13], v94, s[12:15], s58 offen sc1")
    mma_addr(0)
    a("s_mov_b32 s33, 0")
    a("s_barrier")
    stamp(a, 1)
    a.label("%s_mma" % name)
    core.prime(0, core.reads(0, 0))
    trk.drain()
    def mfmas(buf):
        L = []
        for ft in range(5):
            A = core.F(buf, ft)
            for tt in range(4 if ft < 4 else 2):
                c = core.accr(ft, tt); B = core.T(buf, tt)
                L.append(("v_mfma_f32_16x16x32_bf16 %s, %s, %s, %s" % (vr(c), vr(A), vr(B), vr(c)), list(range(A, A + 4)) + list(range(B, B + 4))))
            L.append(("v_mfma_f32_16x16x32_bf16 %s, %s, %s, %s" % (vr(CS + 4 * ft), vr(A), vr(ONE), vr(CS + 4 * ft)), list(range(A, A + 4))))
        return L
    def phase(buf, pend):
        for (m, regs) in mfmas(buf):
            trk.need(regs)
            a(m)
            while pend:
                k, t = pend.pop(0)
                if k == "x":
                    a(t)
                    if t.startswith("s_"): continue
                else:
                    a(t[0]); trk.issue(t[1])
                break
        for k, t in pend:
            if k == "x": a(t)
            else: a(t[0]); trk.issue(t[1])
    def iteration():
        a("s_waitcnt vmcnt(0)")
        a("s_barrier")
        rd = [("r", t) for t in core.reads(1, 1)]
        upd = ["s_add_u32 s27, s27, %d" % SLOT, "s_cmp_eq_u32 s27, %d" % (R * SLOT), "s_cselect_b32 s27, 0, s27"]
        tail = ["v_add_u32 v%d, s27, v%d" % (d, s_) for d, s_ in ((vTa[0], bTa[0]), (vF, bF), (vTb[0], bTb[0]), (vFh, bFh))]
        phase(0, rd[:1] + [("x", u) for u in upd] + rd[1:] + [("x", u) for u in tail])
        rd = [("r", t) for t in core.reads(0, 0)]
        tail = ["v_add_u32 v%d, s27, v%d" % (d, s_) for d, s_ in ((vTa[1], bTa[1]), (vTb[1], bTb[1]))] + ["s_add_u32 s33, s33, 1"]
        phase(1, rd + [("x", u) for u in tail])
    a.label("%s_cloop" % name)
    lb = len(a.lines); iteration(); st = copy.deepcopy(trk.out); del a.lines[lb:]; trk.out = copy.deepcopy(st)
    iteration()
    assert [sorted(x) for x in trk.out] == [sorted(x) for x in st]
    a("s_cmp_lt_u32 s33, 9")
    a("s_cbranch_scc1 %s_cloop" % name)
    trk.drain()
    stamp(a, 2)
    a("s_waitcnt vmcnt(0)")
    a("s_barrier")
    a("s_cmp_lg_u32 s3, 0")
    a("s_cbranch_scc1 %s_nosig" % name)
    a("v_mov_b32 v10, 1")
    a("s_lshl_b32 s36, s22, 2")
    a("v_mov_b32 v11, s36")
    a("s_mov_b64 exec, 1")
    a("buffer_atomic_add v10, v11, s[60:63], 0 offen sc1")
    a("s_mov_b64 exec, -1")
    a.label("%s_nosig" % name)
    a("s_mul_i32 s36, s3, 13312")
    a("s_add_u32 s36, s36, %d" % RB)
    a("v_lshlrev_b32 v10, 4, v2")
    a("v_add_u32 v11, s36, v10")
    n_ = 0
    for ft in range(4):
        for tt in range(2):
            a("ds_write_b128 v11, %s offset:%d" % (vr(core.accr(ft, tt + 2)), 1024 * n_)); n_ += 1
    for ft in range(4):
        a("ds_write_b128 v11, %s offset:%d" % (vr(CS + 4 * ft), 1024 * n_)); n_ += 1
    a("s_waitcnt lgkmcnt(0)")
    a("s_barrier")
    a.label("%s_epi" % name)
    MR = 100; T = 72; ZP = 200
    gelu_consts(a)
    a("s_xor_b32 s52, s98, s25")
    a("s_lshl_b32 s36, s24, 9")
    a("s_lshl_b32 s37, s52, 8")
    a("s_add_u32 s38, s36, s37")
    a("v_lshlrev_b32 v10, 3, v3")
    a("v_add_u32 v11, s38, v10")
    a("ds_read_b64 %s, v11 offset:%d" % (vr(MR, 2), RST))
    a("ds_read_b64 %s, v11 offset:%d" % (vr(MR + 2, 2), RST + 128))
    a("s_lshl_b32 s41, s2, 1")
    a("s_add_u32 s41, s41, s98")
    a("v_and_b32 v0, 255, v0")
    a("s_cmp_ge_u32 s41, 288")
    a("s_cbranch_scc1 %s_nokv1" % name)
    emit_kv_loads(a)
    a.label("%s_nokv1" % name)
    S = [108, 110]; Q = [109, 111]
    for r_ in range(108, 112): a("v_mov_b32 v%d, 0" % r_)
    a("s_waitcnt lgkmcnt(0)")
    ZPf = lambda n: (240 + 2 * n) if n < 8 else (196 + 2 * (n - 8))
    def dots(lst):
        for d in range(2):
            for (ft, tt) in lst:
                p = ZPf(2 * ft + tt) + d
                a("v_dot2_f32_bf16 v%d, v%d, v%d, v%d" % (S[tt], p, ONE, S[tt]))
                a("v_dot2_f32_bf16 v%d, v%d, v%d, v%d" % (Q[tt], p, p, Q[tt]))
    a("s_cmp_lg_u32 s98, 0")
    a("s_cbranch_scc1 %s_nohalf" % name)
    lst = [(4, 0), (4, 1)]
    emit_fold_gelu(a, [(core.accr(ft, tt), CS + 4 * ft, MR + 2 * tt, ZPf(2 * ft + tt)) for ft, tt in lst], T)
    dots(lst)
    a.label("%s_nohalf" % name)
    for f0 in (0, 2):
        lst = [(ft, tt) for ft in (f0, f0 + 1) for tt in range(2)]
        emit_fold_gelu(a, [(core.accr(ft, tt), CS + 4 * ft, MR + 2 * tt, ZPf(2 * ft + tt)) for ft, tt in lst], T)
        dots(lst)
    a("s_nop 2")
    emit_xg_reduce(a, S + Q, 72)
    a("s_lshl_b32 s59, s22, 7")
    a("s_lshl_b32 s36, s24, 6")
    a("s_add_u32 s59, s59, s36")
    a("s_lshl_b32 s36, s52, 5")
    a("s_add_u32 s59, s59, s36")
    a("s_lshl_b32 s59, s59, 8")
    a("s_add_u32 s59, s59, 0x%x" % STATS2)
    a("s_lshl_b32 s36, s23, 1")
    a("s_add_u32 s36, s36, s25")
    a("s_lshl_b32 s36, s36, 3")
    a("s_add_u32 s58, s36, s59")
    a("v_lshrrev_b32 v10, 4, v2")
    a("v_lshlrev_b32 v11, 8, v2")
    a("v_cmp_gt_u32 vcc, 32, v2")
    a("v_mov_b32 v12, 0x7ffffff0")
    a("v_cmp_eq_u32 s[36:37], 1, v10")
    a("v_cndmask_b32 v11, v12, v11, vcc")
    a("s_nop 0")
    a("v_cndmask_b32 v108, v108, v110, s[36:37]")
    a("v_cndmask_b32 v109, v109, v111, s[36:37]")
    a("v_and_b32 v109, 0x7fffffff, v109")
    a("buffer_store_dwordx2 v[108:109], v11, s[12:15], s58 offen sc1")
    a("s_setprio 0")
    stamp(a, 3)
    a("s_lshl_b32 s33, s22, 2")
    a("v_mov_b32 v165, s33")
    a("buffer_load_dword v164, v165, s[60:63], 0 offen sc1")
    PB = 128
    a("v_lshlrev_b32 v4, 8, v3")
    a("v_lshl_add_u32 v4, v10, 6, v4")
    a("s_add_u32 s53, s59, 4096")
    a("s_cmp_ge_u32 s41, 288")
    a("s_cbranch_scc1 %s_nokv2" % name)
    a("s_waitcnt vmcnt(2)")
    emit_kv_compute(a, wait=False, store=False)
    a.label("%s_nokv2" % name)
    stamp(a, 4)
    a("s_mov_b32 s40, 0")
    a.label("%s_chk" % name)
    a("s_waitcnt vmcnt(0)")
    for tt in range(2):
        for q in range(4):
            a("buffer_load_dwordx4 %s, v4, s[12:15], s%d offen offset:%d sc1" % (vr(PB + 16 * tt + 4 * q), (59, 53)[tt], 16 * q))
    a("v_subrev_u32 v11, 16, v164")
    a("s_waitcnt vmcnt(0)")
    for r in range(PB + 1, PB + 32, 4):
        a("v_or3_b32 v11, v11, v%d, v%d" % (r, r + 2))
    a("v_cmp_gt_i32 vcc, 0, v11")
    a("s_add_u32 s40, s40, 1")
    a("s_cmp_gt_u32 s40, %d" % SPIN_MAX)
    a("s_cbranch_scc1 %s_ok" % name)
    a("s_cbranch_vccz %s_ok" % name)
    a("s_sleep 24")
    a("buffer_load_dword v164, v165, s[60:63], 0 offen sc1")
    a("s_branch %s_chk" % name)
    a.label("%s_ok" % name)
    stamp(a, 5)
    a("v_lshrrev_b32 v10, 4, v2")
    a("v_lshlrev_b32 v5, 12, v10")
    a("v_lshl_add_u32 v5, v3, 4, v5")
    a("s_lshl_b32 s33, s22, 7")
    a("s_lshl_b32 s36, s3, 5")
    a("s_add_u32 s33, s33, s36")
    a("s_lshl_b32 s36, s98, 4")
    a("s_add_u32 s33, s33, s36")
    a("s_lshl_b32 s33, s33, 12")
    a("s_lshl_b32 s36, s23, 8")
    a("s_add_u32 s33, s33, s36")
    for n in range(4):
        a("buffer_load_dwordx4 v[168:171], v5, s[92:95], s33 offen")
        if n < 3: a("s_add_u32 s33, s33, 16384")
    a("s_cmp_ge_u32 s41, 288")
    a("s_cbranch_scc1 %s_nokv3" % name)
    a("s_mov_b32 s39, 0x%x" % KVT)
    a("buffer_store_dwordx4 v[120:123], v12, s[12:15], s39 offen")
    a("buffer_store_dwordx4 v[124:127], v13, s[12:15], s39 offen")
    a.label("%s_nokv3" % name)
    for tt in range(2):
        b = PB + 16 * tt
        for st_ in (8, 4, 2):
            for q in range(0, st_, 2):
                a("v_pk_add_f32 %s, %s, %s" % (vr(b + q, 2), vr(b + q, 2), vr(b + q + st_, 2)))
    emit_xg_reduce(a, [PB + 16 * tt + e for tt in range(2) for e in range(2)], 72)
    for tt in range(2):
        b = PB + 16 * tt
        emit_ln_finish(a, b, b + 1, 2304, b + 2, MR + 2 * tt, b + 4)
        a("v_mul_f32 v%d, -v%d, v%d" % (MR + 2 * tt + 1, b + 2, MR + 2 * tt))
    a("v_lshrrev_b32 v11, 2, v2"); a("v_and_b32 v11, 1, v11"); a("v_lshlrev_b32 v11, 4, v11")
    a("v_lshrrev_b32 v5, 3, v2"); a("v_and_b32 v5, 1, v5"); a("v_lshl_add_u32 v11, v5, 2, v11")
    a("v_and_b32 v5, 3, v2"); a("v_add_u32 v11, v11, v5")
    a("v_mul_u32_u24 v11, 288, v11")
    a("v_lshrrev_b32 v5, 1, v10"); a("v_lshl_add_u32 v11, v5, 4, v11")
    a("v_and_b32 v5, 1, v10")
    a("v_lshl_add_u32 v6, v5, 5, v11")
    a("v_mul_u32_u24 v5, 2304, v5")
    a("v_add_u32 v9, v11, v5")
    a("s_lshl_b32 s33, s23, 5")
    a("s_lshl_b32 s36, s22, 1")
    a("s_add_u32 s33, s33, s36")
    a("s_add_u32 s33, s33, s24")
    a("s_mul_i32 s33, s33, 18432")
    if ZIMG: a("s_add_u32 s33, s33, 0x%x" % ZIMG)
    a("s_mul_i32 s36, s52, 9216")
    a("s_add_u32 s37, s33, s36")
    a("s_add_u32 s39, s37, 128")
    a("s_mul_i32 s36, s25, 160")
    a("s_add_u32 s37, s37, s36")
    def norm_pair(nA, ttA, nB, ttB, O):
        for q, (n, tt) in enumerate(((nA, ttA), (nB, ttB))):
            for d in range(2):
                z = ZPf(n) + d; t = T + 4 * q + 2 * d
                a("v_lshlrev_b32 v%d, 16, v%d" % (t, z))
                a("v_and_b32 v%d, 0xffff0000, v%d" % (t + 1, z))
        for q, (n, tt) in enumerate(((nA, ttA), (nB, ttB))):
            for d in range(2):
                t = T + 4 * q + 2 * d
                a("v_pk_fma_f32 %s, %s, %s, %s op_sel:[0,0,1] op_sel_hi:[1,0,1]" % (vr(t, 2), vr(t, 2), vr(MR + 2 * tt, 2), vr(MR + 2 * tt, 2)))
        for q in range(2):
            for d in range(2):
                t = T + 4 * q + 2 * d
                a("v_cvt_pk_bf16_f32 v%d, v%d, v%d" % (O + 2 * q + d, t, t + 1))
        a("s_nop 1")
        a("v_permlane16_swap_b32 v%d, v%d" % (O, O + 2))
        a("v_permlane16_swap_b32 v%d, v%d" % (O + 1, O + 3))
    cnt = 0
    for pr in range(2):
        for tt in range(2):
            O = 16 + 4 * cnt; cnt += 1
            norm_pair(2 * (2 * pr) + tt, tt, 2 * (2 * pr + 1) + tt, tt, O)
            a("s_nop 0")
            a("buffer_store_dwordx4 %s, v6, s[12:15], s37 offen offset:%d" % (vr(O), tt * 2304 + 64 * pr))
    a("s_cmp_lg_u32 s98, 0")
    a("s_cbranch_scc1 %s_fin" % name)
    O = 16 + 4 * cnt
    norm_pair(8, 0, 9, 1, O)
    a("s_nop 0")
    a("buffer_store_dwordx4 %s, v9, s[12:15], s39 offen" % vr(O))
    a.label("%s_fin" % name)
    stamp(a, 6)
    G.stamp_rt(a, 1)
    a.label("%s_end" % name)
    a("s_endpgm")
    return a.text(), kernel_desc(name, 256, 256), (name, 256, 512, LDSB)

def gen_k1j(name="k1_kernel", R=4):
    a = Asm()
    RB = 4096; SLOT = 34816; TREG = 16384; FS = 288; RST = 0
    LDSB = RB + R * SLOT
    def capture(f, *args):
        lb = len(a.lines); f(*args); out = a.lines[lb:]; del a.lines[lb:]; return out
    kernel_begin(a, name)
    a("s_load_dwordx2 s[80:81], s[0:1], 0")
    a("s_load_dwordx2 s[4:5], s[0:1], 56")
    a("s_load_dwordx2 s[6:7], s[0:1], 104")
    a("s_load_dwordx2 s[18:19], s[0:1], 96")
    a("s_cmp_ge_u32 s2, 256")
    a("s_cbranch_scc1 %s_end" % name)
    a("v_lshrrev_b32 v1, 6, v0")
    a("v_and_b32 v2, 63, v0")
    a("v_readfirstlane_b32 s3, v1")
    G2.tile_ij(a)
    a("s_lshr_b32 s98, s3, 2")
    a("s_mov_b32 s54x, 0".replace("s54x", "s99"))
    a("s_and_b32 s3, s3, 3")
    a("s_lshr_b32 s24, s3, 1")
    a("s_and_b32 s25, s3, 1")
    a("v_and_b32 v3, 15, v2")
    VT = 204; VF = 208
    def loader_setup():
        a("v_lshrrev_b32 v5, 3, v2")
        a("v_and_b32 v4, 7, v2")
        a("s_lshl_b32 s36, s3, 5")
        a("v_add_u32 v5, s36, v5")
        a("v_lshrrev_b32 v7, 4, v2")
        a("v_xor_b32 v7, v7, v4")
        a("v_mul_u32_u24 v6, 1152, v5")
        a("v_lshl_add_u32 v%d, v7, 4, v6" % VT)
        a("v_xor_b32 v%d, 64, v%d" % (VT + 1, VT))
        a("v_add_u32 v%d, %d, v%d" % (VT + 1, 9216 - 1024, VT + 1))
        a("v_add_u32 v%d, %d, v%d" % (VT + 2, 2 * (9216 - 1024), VT))
        a("v_add_u32 v%d, %d, v%d" % (VT + 3, 2 * (9216 - 1024), VT + 1))
        a("s_lshl_b32 s84, s3, 12")
        a("s_add_u32 s84, s84, %d" % RB)
        a("s_lshl_b32 s85, s3, 9")
        a("s_add_u32 s85, s85, %d" % (RB + TREG + 16384))
    def loader_setup2():
        for n in range(5):
            if n < 4:
                a("s_lshl_b32 s36, s3, 8")
                a("s_add_u32 s36, s36, %d" % (64 * n))
            else:
                a("s_lshl_b32 s36, s3, 5")
                a("s_add_u32 s36, s36, 1024")
            a("v_add_u32 v6, s36, v2")
            a("v_mul_u32_u24 v7, 3641, v6")
            a("v_lshrrev_b32 v7, 16, v7")
            a("v_mul_u32_u24 v8, 18, v7")
            a("v_sub_u32 v8, v6, v8")
            a("v_and_b32 v9, 35, v7")
            a("v_bfe_u32 v6, v7, 2, 2")
            a("v_lshl_add_u32 v9, v6, 3, v9")
            a("v_bfe_u32 v6, v7, 4, 1")
            a("v_lshl_add_u32 v9, v6, 2, v9")
            a("v_mul_u32_u24 v9, 9216, v9")
            a("v_lshl_add_u32 v%d, v8, 4, v9" % (VF + n))
            if 0 < n < 4: a("v_subrev_u32 v%d, %d, v%d" % (VF + n, 1024 * n, VF + n))
    def issueT(g):
        st = g % 9
        a("s_add_u32 s86, s84, %d" % ((g % R) * SLOT))
        a("s_mov_b32 m0, s86")
        a("s_add_u32 s87, s82, %d" % (128 * st))
        for n in range(4):
            a("buffer_load_dwordx4 v%d, s[28:31], s87 offen offset:%d lds" % (VT + n, 1024 * n))
    def issueF(g):
        st = g % 9
        a("s_add_u32 s86, s84, %d" % ((g % R) * SLOT + TREG))
        a("s_mov_b32 m0, s86")
        a("s_add_u32 s87, s83, %d" % (64 * 9216 * st + (4608 if g < 9 else 0)))
        for n in range(4):
            a("buffer_load_dwordx4 v%d, s[8:11], s87 offen offset:%d lds" % (VF + n, 1024 * n))
        a("s_add_u32 s86, s85, %d" % ((g % R) * SLOT))
        a("s_mov_b32 m0, s86")
        a("s_mov_b64 exec, 0xffffffff")
        a("buffer_load_dwordx4 v%d, s[8:11], s87 offen lds" % (VF + 4))
        a("s_mov_b64 exec, -1")
    def srds_main():
        srd(a, 28, 80, 2048 * 576 * 2)
        srd(a, 8, 4, 576 * 4608 * 2)
        srd(a, 12, 6, WS_BYTES)
        srd(a, 60, 18, 256)
        a("s_mul_i32 s82, s22, %d" % (128 * 1152))
        a("s_mul_i32 s83, s23, 288")
    ACC = 128; FB = [16, 52]; CS = 216; ONE = 236
    vTa = [4, 5]; vTb = [6, 7]; vF = 8; vFh = 9
    bTa = [88, 89]; bTb = [90, 91]; bF = 92; bFh = 93
    def mma_setup():
        a("v_lshrrev_b32 v10, 4, v2")
        a("v_lshrrev_b32 v11, 1, v3")
        a("v_xor_b32 v10, v10, v11")
        a("v_lshlrev_b32 v10, 4, v10")
        a("v_lshl_add_u32 v10, v3, 7, v10")
        a("s_lshl_b32 s26, s24, 13")
        a("s_add_u32 s26, s26, %d" % RB)
        a("v_add_u32 v10, s26, v10")
        a("s_lshl_b32 s26, s25, 12")
        a("v_add_u32 v%d, s26, v10" % bTa[0])
        a("s_xor_b32 s26, s26, 4096")
        a("v_add_u32 v%d, s26, v10" % bTb[0])
        a("v_xor_b32 v%d, 64, v%d" % (bTa[1], bTa[0]))
        a("v_xor_b32 v%d, 64, v%d" % (bTb[1], bTb[0]))
        a("v_lshrrev_b32 v10, 2, v2")
        a("v_mul_u32_u24 v10, %d, v10" % FS)
        a("v_and_b32 v11, 3, v2")
        a("v_lshl_add_u32 v10, v11, 3, v10")
        a("v_add_u32 v10, %d, v10" % (RB + TREG))
        a("s_mul_i32 s26, s25, 160")
        a("v_add_u32 v%d, s26, v10" % bF)
        a("v_add_u32 v%d, 128, v10" % bFh)
        for r in range(ACC, ACC + 72): a("v_mov_b32 v%d, 0" % r)
        for r in range(CS, CS + 20): a("v_mov_b32 v%d, 0" % r)
        for r in range(ONE, ONE + 4): a("v_mov_b32 v%d, 0x3f803f80" % r)
    def mma_addr(slot):
        a("s_mov_b32 s27, %d" % (slot * SLOT))
        for d, s_ in ((vTa[0], bTa[0]), (vTb[0], bTb[0]), (vTa[1], bTa[1]), (vTb[1], bTb[1]), (vF, bF), (vFh, bFh)):
            a("v_add_u32 v%d, s27, v%d" % (d, s_))
    core = G.Core(a, ACC, FB[0], FB[1], FS, TREG, vTa, vTb, vF, vFh)
    trk = core.trk
    a("s_cmp_eq_u32 s98, 0")
    a("s_cbranch_scc1 %s_A0" % name)
    a("s_setprio 3")
    loader_setup()
    a("s_waitcnt lgkmcnt(0)")
    srds_main()
    vm = VmTracker(a)
    def issue(g, vmx):
        issueT(g); issueF(g); vmx.issue("S%d" % g, 9)
    issueT(0)
    loader_setup2()
    issueF(0); vm.issue("S0", 9)
    issue(1, vm); issue(2, vm); issue(3, vm)
    a("s_add_u32 s3, s3, 4"); stamp_setup(a, 1); stamp(a, 0); a("s_sub_u32 s3, s3, 4")
    for r in range(ONE, ONE + 4): a("v_mov_b32 v%d, 0x3f803f80" % r)
    RA = 96; XB = 112
    for r in range(RA, RA + 16): a("v_mov_b32 v%d, 0" % r)
    a("v_lshrrev_b32 v10, 4, v2")
    a("v_lshrrev_b32 v11, 1, v3")
    a("v_xor_b32 v10, v10, v11")
    a("v_lshlrev_b32 v10, 4, v10")
    a("v_lshl_add_u32 v10, v3, 7, v10")
    a("v_add_u32 v12, s84, v10")
    a("v_xor_b32 v13, 64, v12")
    def rs_rd(g):
        a("v_add_u32 v10, %d, v12" % ((g % R) * SLOT))
        a("v_add_u32 v11, %d, v13" % ((g % R) * SLOT))
        for h in range(2):
            for n in range(2):
                a("ds_read_b128 %s, v%d offset:%d" % (vr(XB + 8 * h + 4 * n), 10 + h, 2048 * n))
    def rs_do():
        for h in range(2):
            for n in range(2):
                x = XB + 8 * h + 4 * n
                a("v_mfma_f32_16x16x32_bf16 %s, %s, %s, %s" % (vr(RA + 4 * n), vr(ONE), vr(x), vr(RA + 4 * n)))
                a("v_mfma_f32_16x16x32_bf16 %s, %s, %s, %s" % (vr(RA + 8 + 4 * n), vr(x), vr(x), vr(RA + 8 + 4 * n)))
    def interleave(dma, comp, vmx=None):
        groups = []; cur = []
        for l in dma:
            cur.append(l)
            if "buffer_load" in l and not any("exec, 0xffffffff" in x for x in cur[-2:]):
                groups.append(cur); cur = []
            elif "exec, -1" in l:
                groups.append(cur); cur = []
        if cur: groups.append(cur)
        ns = max(1, len(groups))
        per = (len(comp) + ns - 1) // ns
        for g in groups:
            a.lines.extend(g)
            a.lines.extend(comp[:per]); comp = comp[per:]
        a.lines.extend(comp)
    vm.wait(["S0"])
    a("s_barrier")
    stamp(a, 1)
    rs_rd(0)
    vm.wait(["S1"])
    a("s_barrier")
    for k in range(9):
        a("s_waitcnt lgkmcnt(0)")
        dma = capture(lambda: (issueT(k + 3), issueF(k + 3))) if (k >= 1 and k + 3 < 9) else []
        interleave(dma, capture(rs_do))
        if k >= 1 and k + 3 < 9: vm.issue("S%d" % (k + 3), 9)
        if k < 8:
            rs_rd(k + 1)
        else:
            a("s_nop 7")
            a("v_lshrrev_b32 v10, 4, v2")
            a("v_lshrrev_b32 v11, 2, v3")
            a("v_and_b32 v12, 3, v3")
            for n in range(2):
                G_ = RA + 8 + 4 * n
                for r in range(1, 4):
                    a("v_cmp_eq_u32 vcc, %d, v12" % r)
                    a("s_nop 1")
                    a("v_cndmask_b32 v%d, v%d, v%d, vcc" % (G_, G_, G_ + r))
            ML = 112
            for n in range(2):
                emit_ln_finish(a, RA + 4 * n, RA + 8 + 4 * n, 576, ML + 2 * n, ML + 2 * n + 1, 120)
                a("v_mov_b32 v%d, v%d" % (117 + 2 * n, ML + 2 * n + 1))
                a("v_sub_f32 v%d, 0, v%d" % (116 + 2 * n, ML + 2 * n))
            a("s_lshl_b32 s35, s3, 8")
            a("v_lshlrev_b32 v13, 3, v3")
            a("v_add_u32 v12, s35, v13")
            a("v_cmp_eq_u32 vcc, v10, v11")
            a("s_and_saveexec_b64 s[36:37], vcc")
            for n in range(2):
                a("ds_write_b64 v12, %s offset:%d" % (vr(116 + 2 * n, 2), RST + 128 * n))
            a("s_mov_b64 exec, s[36:37]")
            a("s_cmp_lg_u32 s23, 0")
            a("s_cbranch_scc1 %s_nost1" % name)
            a("s_lshl_b32 s35, s22, 7")
            a("s_lshl_b32 s36, s3, 5")
            a("s_add_u32 s35, s35, s36")
            a("s_lshl_b32 s35, s35, 3")
            a("s_add_u32 s35, s35, 0x%x" % STATS1)
            a("v_mov_b32 v11, 0x7ffffff0")
            a("v_cndmask_b32 v13, v11, v13, vcc")
            for n in range(2):
                a("buffer_store_dwordx2 %s, v13, s[12:15], s35 offen offset:%d" % (vr(ML + 2 * n, 2), 128 * n))
            a.label("%s_nost1" % name)
        if k < 8:
            vm.wait(["S%d" % (k + 2)])
            a("s_barrier")
    a("s_waitcnt lgkmcnt(0)")
    a("s_barrier")
    a("s_load_dwordx4 s[64:67], s[0:1], 8")
    a("s_load_dwordx2 s[76:77], s[0:1], 24")
    a("s_load_dwordx2 s[90:91], s[0:1], 64")
    a("s_mul_i32 s36, s3, 13312")
    a("s_add_u32 s36, s36, %d" % RB)
    a("v_lshlrev_b32 v10, 4, v2")
    a("v_add_u32 v11, s36, v10")
    a("s_waitcnt lgkmcnt(0)")
    srd(a, 68, 66, 2048 * 576 * 2)
    a("s_mov_b32 s88, s64"); a("s_mov_b32 s89, s65")
    srd(a, 64, 88, 2048 * 576 * 2)
    srd(a, 72, 76, 576 * 8)
    srd(a, 92, 90, 2048 * 2048 * 2)
    a("s_barrier")
    n_ = 0
    for ft in range(4):
        for tt in range(2):
            a("ds_read_b128 %s, v11 offset:%d" % (vr(core.accr(ft, tt)), 1024 * n_)); n_ += 1
    for ft in range(4):
        a("ds_read_b128 %s, v11 offset:%d" % (vr(CS + 4 * ft), 1024 * n_)); n_ += 1
    a("s_branch %s_epi" % name)
    a.label("%s_A0" % name)
    emit_code_prefetch(a, name)
    a("s_load_dwordx4 s[64:67], s[0:1], 8")
    a("s_load_dwordx2 s[76:77], s[0:1], 24")
    a("s_load_dwordx2 s[90:91], s[0:1], 64")
    mma_setup()
    a("s_waitcnt lgkmcnt(0)")
    srds_main()
    srd(a, 68, 66, 2048 * 576 * 2)
    a("s_mov_b32 s88, s64"); a("s_mov_b32 s89, s65")
    srd(a, 64, 88, 2048 * 576 * 2)
    srd(a, 72, 76, 576 * 8)
    srd(a, 92, 90, 2048 * 2048 * 2)
    stamp_setup(a, 1); stamp(a, 0)
    def gran_addr():
        a("v_lshrrev_b32 v10, 4, v2")
        a("s_lshl_b32 s36, s25, 1")
        a("v_add_u32 v11, s36, v10")
        a("v_and_b32 v11, 3, v11")
        a("v_lshl_add_u32 v11, v11, 4, v3")
        a("v_lshlrev_b32 v94, 8, v11")
        a("s_lshl_b32 s59, s22, 7")
        a("s_lshl_b32 s36, s24, 6")
        a("s_add_u32 s59, s59, s36")
        a("s_lshl_b32 s59, s59, 8")
        a("s_add_u32 s59, s59, 0x%x" % STATS2)
        a("s_lshl_b32 s36, s23, 1")
        a("s_add_u32 s36, s36, s25")
        a("s_lshl_b32 s36, s36, 3")
        a("s_add_u32 s58, s36, s59")
    mma_addr(0)
    a("s_mov_b32 s33, 0")
    a("s_barrier")
    stamp(a, 1)
    a.label("%s_mma" % name)
    core.prime(0, core.reads(0, 0))
    trk.drain()
    def mfmas(buf):
        L = []
        for ft in range(5):
            A = core.F(buf, ft)
            for tt in range(4 if ft < 4 else 2):
                c = core.accr(ft, tt); B = core.T(buf, tt)
                L.append(("v_mfma_f32_16x16x32_bf16 %s, %s, %s, %s" % (vr(c), vr(A), vr(B), vr(c)), list(range(A, A + 4)) + list(range(B, B + 4))))
            L.append(("v_mfma_f32_16x16x32_bf16 %s, %s, %s, %s" % (vr(CS + 4 * ft), vr(A), vr(ONE), vr(CS + 4 * ft)), list(range(A, A + 4))))
        return L
    def phase(buf, pend):
        for (m, regs) in mfmas(buf):
            trk.need(regs)
            a(m)
            while pend:
                k, t = pend.pop(0)
                if k == "x":
                    a(t)
                    if t.startswith("s_"): continue
                else:
                    a(t[0]); trk.issue(t[1])
                break
        for k, t in pend:
            if k == "x": a(t)
            else: a(t[0]); trk.issue(t[1])
    def iteration():
        a("s_waitcnt vmcnt(0)")
        a("s_barrier")
        rd = [("r", t) for t in core.reads(1, 1)]
        upd = ["s_add_u32 s27, s27, %d" % SLOT, "s_cmp_eq_u32 s27, %d" % (R * SLOT), "s_cselect_b32 s27, 0, s27"]
        tail = ["v_add_u32 v%d, s27, v%d" % (d, s_) for d, s_ in ((vTa[0], bTa[0]), (vF, bF), (vTb[0], bTb[0]), (vFh, bFh))]
        phase(0, rd[:1] + [("x", u) for u in upd] + rd[1:] + [("x", u) for u in tail])
        rd = [("r", t) for t in core.reads(0, 0)]
        tail = ["v_add_u32 v%d, s27, v%d" % (d, s_) for d, s_ in ((vTa[1], bTa[1]), (vTb[1], bTb[1]))] + ["s_add_u32 s33, s33, 1"]
        phase(1, rd + [("x", u) for u in tail])
    a.label("%s_cloop" % name)
    lb = len(a.lines); iteration(); st = copy.deepcopy(trk.out); del a.lines[lb:]; trk.out = copy.deepcopy(st)
    iteration()
    assert [sorted(x) for x in trk.out] == [sorted(x) for x in st]
    a("s_cmp_lt_u32 s33, 9")
    a("s_cbranch_scc1 %s_cloop" % name)
    trk.drain()
    stamp(a, 2)
    a("s_waitcnt vmcnt(0)")
    a("s_barrier")
    a("s_mul_i32 s36, s3, 13312")
    a("s_add_u32 s36, s36, %d" % RB)
    a("v_lshlrev_b32 v10, 4, v2")
    a("v_add_u32 v11, s36, v10")
    n_ = 0
    for ft in range(4):
        for tt in range(2):
            a("ds_write_b128 v11, %s offset:%d" % (vr(core.accr(ft, tt + 2)), 1024 * n_)); n_ += 1
    for ft in range(4):
        a("ds_write_b128 v11, %s offset:%d" % (vr(CS + 4 * ft), 1024 * n_)); n_ += 1
    a("s_waitcnt lgkmcnt(0)")
    a("s_barrier")
    a.label("%s_epi" % name)
    MR = 100; T = 72; ZP = 200
    gelu_consts(a)
    a("s_xor_b32 s52, s98, s25")
    a("s_lshl_b32 s36, s24, 9")
    a("s_lshl_b32 s37, s52, 8")
    a("s_add_u32 s38, s36, s37")
    a("v_lshlrev_b32 v10, 3, v3")
    a("v_add_u32 v11, s38, v10")
    a("ds_read_b64 %s, v11 offset:%d" % (vr(MR, 2), RST))
    a("ds_read_b64 %s, v11 offset:%d" % (vr(MR + 2, 2), RST + 128))
    a("s_lshl_b32 s41, s2, 1")
    a("s_add_u32 s41, s41, s98")
    a("v_and_b32 v0, 255, v0")
    a("s_cmp_ge_u32 s41, 288")
    a("s_cbranch_scc1 %s_nokv1" % name)
    emit_kv_loads(a)
    a.label("%s_nokv1" % name)
    S = [108, 110]; Q = [109, 111]
    for r_ in range(108, 112): a("v_mov_b32 v%d, 0" % r_)
    a("s_waitcnt lgkmcnt(0)")
    ZPf = lambda n: (240 + 2 * n) if n < 8 else (196 + 2 * (n - 8))
    def dots(lst):
        for d in range(2):
            for (ft, tt) in lst:
                p = ZPf(2 * ft + tt) + d
                a("v_dot2_f32_bf16 v%d, v%d, v%d, v%d" % (S[tt], p, ONE, S[tt]))
                a("v_dot2_f32_bf16 v%d, v%d, v%d, v%d" % (Q[tt], p, p, Q[tt]))
    a("s_cmp_lg_u32 s98, 0")
    a("s_cbranch_scc1 %s_nohalf" % name)
    lst = [(4, 0), (4, 1)]
    emit_fold_gelu(a, [(core.accr(ft, tt), CS + 4 * ft, MR + 2 * tt, ZPf(2 * ft + tt)) for ft, tt in lst], T)
    dots(lst)
    a.label("%s_nohalf" % name)
    for f0 in (0, 2):
        lst = [(ft, tt) for ft in (f0, f0 + 1) for tt in range(2)]
        emit_fold_gelu(a, [(core.accr(ft, tt), CS + 4 * ft, MR + 2 * tt, ZPf(2 * ft + tt)) for ft, tt in lst], T)
        dots(lst)
    a("s_nop 2")
    emit_xg_reduce(a, S + Q, 72)
    a("s_lshl_b32 s59, s22, 7")
    a("s_lshl_b32 s36, s24, 6")
    a("s_add_u32 s59, s59, s36")
    a("s_lshl_b32 s36, s52, 5")
    a("s_add_u32 s59, s59, s36")
    a("s_lshl_b32 s59, s59, 8")
    a("s_add_u32 s59, s59, 0x%x" % STATS2)
    a("s_lshl_b32 s36, s23, 1")
    a("s_add_u32 s36, s36, s25")
    a("s_lshl_b32 s36, s36, 3")
    a("s_add_u32 s58, s36, s59")
    a("v_lshrrev_b32 v10, 4, v2")
    a("v_lshlrev_b32 v11, 8, v2")
    a("v_cmp_gt_u32 vcc, 32, v2")
    a("v_mov_b32 v12, 0x7ffffff0")
    a("v_cmp_eq_u32 s[36:37], 1, v10")
    a("v_cndmask_b32 v11, v12, v11, vcc")
    a("s_nop 0")
    a("v_cndmask_b32 v108, v108, v110, s[36:37]")
    a("v_cndmask_b32 v109, v109, v111, s[36:37]")
    a("buffer_store_dwordx2 v[108:109], v11, s[12:15], s58 offen")
    a("s_setprio 0")
    stamp(a, 3)
    a("v_lshrrev_b32 v10, 4, v2")
    a("v_lshlrev_b32 v5, 12, v10")
    a("v_lshl_add_u32 v5, v3, 4, v5")
    a("s_lshl_b32 s33, s22, 7")
    a("s_lshl_b32 s36, s3, 5")
    a("s_add_u32 s33, s33, s36")
    a("s_lshl_b32 s36, s98, 4")
    a("s_add_u32 s33, s33, s36")
    a("s_lshl_b32 s33, s33, 12")
    a("s_lshl_b32 s36, s23, 8")
    a("s_add_u32 s33, s33, s36")
    for n in range(4):
        a("buffer_load_dwordx4 v[168:171], v5, s[92:95], s33 offen")
        if n < 3: a("s_add_u32 s33, s33, 16384")
    a("v_lshrrev_b32 v11, 2, v2"); a("v_and_b32 v11, 1, v11"); a("v_lshlrev_b32 v11, 4, v11")
    a("v_lshrrev_b32 v5, 3, v2"); a("v_and_b32 v5, 1, v5"); a("v_lshl_add_u32 v11, v5, 2, v11")
    a("v_and_b32 v5, 3, v2"); a("v_add_u32 v11, v11, v5")
    a("v_mul_u32_u24 v11, 288, v11")
    a("v_lshrrev_b32 v5, 1, v10"); a("v_lshl_add_u32 v11, v5, 4, v11")
    a("v_and_b32 v5, 1, v10")
    a("v_lshl_add_u32 v6, v5, 5, v11")
    a("v_mul_u32_u24 v5, 2304, v5")
    a("v_add_u32 v9, v11, v5")
    a("s_lshl_b32 s33, s23, 5")
    a("s_lshl_b32 s36, s22, 1")
    a("s_add_u32 s33, s33, s36")
    a("s_add_u32 s33, s33, s24")
    a("s_mul_i32 s33, s33, 18432")
    if ZIMG: a("s_add_u32 s33, s33, 0x%x" % ZIMG)
    a("s_mul_i32 s36, s52, 9216")
    a("s_add_u32 s37, s33, s36")
    a("s_add_u32 s39, s37, 128")
    a("s_mul_i32 s36, s25, 160")
    a("s_add_u32 s37, s37, s36")
    def norm_pair(nA, ttA, nB, ttB, O):
        for q, n in enumerate((nA, nB)):
            for d in range(2):
                a("v_mov_b32 v%d, v%d" % (O + 2 * q + d, ZPf(n) + d))
        a("s_nop 1")
        a("v_permlane16_swap_b32 v%d, v%d" % (O, O + 2))
        a("v_permlane16_swap_b32 v%d, v%d" % (O + 1, O + 3))
    cnt = 0
    for pr in range(2):
        for tt in range(2):
            O = 128 + 4 * cnt; cnt += 1
            norm_pair(2 * (2 * pr) + tt, tt, 2 * (2 * pr + 1) + tt, tt, O)
            a("s_nop 0")
            a("buffer_store_dwordx4 %s, v6, s[12:15], s37 offen offset:%d" % (vr(O), tt * 2304 + 64 * pr))
    a("s_cmp_lg_u32 s98, 0")
    a("s_cbranch_scc1 %s_fin" % name)
    O = 128 + 4 * cnt
    norm_pair(8, 0, 9, 1, O)
    a("s_nop 0")
    a("buffer_store_dwordx4 %s, v9, s[12:15], s39 offen" % vr(O))
    a.label("%s_fin" % name)
    stamp(a, 4)
    a("s_cmp_ge_u32 s41, 288")
    a("s_cbranch_scc1 %s_fin2" % name)
    a("s_waitcnt vmcnt(9)")
    emit_kv_compute(a, wait=False)
    a.label("%s_fin2" % name)
    stamp(a, 6)
    G.stamp_rt(a, 1)
    a.label("%s_end" % name)
    a("s_endpgm")
    return a.text(), kernel_desc(name, 256, 256), (name, 256, 512, LDSB)

def gen_k1k(name="k1_kernel", R=4):
    a = Asm()
    RB = 4096; SLOT = 34816; TREG = 16384; FS = 288; RST = 0
    LDSB = RB + R * SLOT
    def capture(f, *args):
        lb = len(a.lines); f(*args); out = a.lines[lb:]; del a.lines[lb:]; return out
    kernel_begin(a, name)
    a("s_load_dwordx2 s[80:81], s[0:1], 0")
    a("s_load_dwordx2 s[4:5], s[0:1], 56")
    a("s_load_dwordx2 s[6:7], s[0:1], 104")
    a("s_load_dwordx2 s[18:19], s[0:1], 96")
    a("s_cmp_ge_u32 s2, 256")
    a("s_cbranch_scc1 %s_end" % name)
    a("v_lshrrev_b32 v1, 6, v0")
    a("v_and_b32 v2, 63, v0")
    a("v_readfirstlane_b32 s3, v1")
    G2.tile_ij(a)
    a("s_lshr_b32 s98, s3, 2")
    a("s_mov_b32 s54x, 0".replace("s54x", "s99"))
    a("s_and_b32 s3, s3, 3")
    a("s_lshr_b32 s24, s3, 1")
    a("s_and_b32 s25, s3, 1")
    a("v_and_b32 v3, 15, v2")
    VT = 204; VF = 208
    def loader_setup():
        a("v_lshrrev_b32 v5, 3, v2")
        a("v_and_b32 v4, 7, v2")
        a("s_lshl_b32 s36, s3, 5")
        a("v_add_u32 v5, s36, v5")
        a("v_lshrrev_b32 v7, 4, v2")
        a("v_xor_b32 v7, v7, v4")
        a("v_mul_u32_u24 v6, 1152, v5")
        a("v_lshl_add_u32 v%d, v7, 4, v6" % VT)
        a("v_xor_b32 v%d, 64, v%d" % (VT + 1, VT))
        a("v_add_u32 v%d, %d, v%d" % (VT + 1, 9216 - 1024, VT + 1))
        a("v_add_u32 v%d, %d, v%d" % (VT + 2, 2 * (9216 - 1024), VT))
        a("v_add_u32 v%d, %d, v%d" % (VT + 3, 2 * (9216 - 1024), VT + 1))
        a("s_lshl_b32 s84, s3, 12")
        a("s_add_u32 s84, s84, %d" % RB)
        a("s_lshl_b32 s85, s3, 9")
        a("s_add_u32 s85, s85, %d" % (RB + TREG + 16384))
    def loader_setup2():
        for n in range(5):
            if n < 4:
                a("s_lshl_b32 s36, s3, 8")
                a("s_add_u32 s36, s36, %d" % (64 * n))
            else:
                a("s_lshl_b32 s36, s3, 5")
                a("s_add_u32 s36, s36, 1024")
            a("v_add_u32 v6, s36, v2")
            a("v_mul_u32_u24 v7, 3641, v6")
            a("v_lshrrev_b32 v7, 16, v7")
            a("v_mul_u32_u24 v8, 18, v7")
            a("v_sub_u32 v8, v6, v8")
            a("v_and_b32 v9, 35, v7")
            a("v_bfe_u32 v6, v7, 2, 2")
            a("v_lshl_add_u32 v9, v6, 3, v9")
            a("v_bfe_u32 v6, v7, 4, 1")
            a("v_lshl_add_u32 v9, v6, 2, v9")
            a("v_mul_u32_u24 v9, 9216, v9")
            a("v_lshl_add_u32 v%d, v8, 4, v9" % (VF + n))
            if 0 < n < 4: a("v_subrev_u32 v%d, %d, v%d" % (VF + n, 1024 * n, VF + n))
    def issueT(g):
        st = g % 9
        a("s_add_u32 s86, s84, %d" % ((g % R) * SLOT))
        a("s_mov_b32 m0, s86")
        a("s_add_u32 s87, s82, %d" % (128 * st))
        for n in range(4):
            a("buffer_load_dwordx4 v%d, s[28:31], s87 offen offset:%d lds" % (VT + n, 1024 * n))
    def issueF(g):
        st = g % 9
        a("s_add_u32 s86, s84, %d" % ((g % R) * SLOT + TREG))
        a("s_mov_b32 m0, s86")
        a("s_add_u32 s87, s83, %d" % (64 * 9216 * st + (4608 if g < 9 else 0)))
        for n in range(4):
            a("buffer_load_dwordx4 v%d, s[8:11], s87 offen offset:%d lds" % (VF + n, 1024 * n))
        a("s_add_u32 s86, s85, %d" % ((g % R) * SLOT))
        a("s_mov_b32 m0, s86")
        a("s_mov_b64 exec, 0xffffffff")
        a("buffer_load_dwordx4 v%d, s[8:11], s87 offen lds" % (VF + 4))
        a("s_mov_b64 exec, -1")
    def srds_main():
        srd(a, 28, 80, 2048 * 576 * 2)
        srd(a, 8, 4, 576 * 4608 * 2)
        srd(a, 12, 6, WS_BYTES)
        srd(a, 60, 18, 256)
        a("s_mul_i32 s82, s22, %d" % (128 * 1152))
        a("s_mul_i32 s83, s23, 288")
    ACC = 128; FB = [16, 52]; CS = 216; ONE = 236
    vTa = [4, 5]; vTb = [6, 7]; vF = 8; vFh = 9
    bTa = [88, 89]; bTb = [90, 91]; bF = 92; bFh = 93
    def mma_setup():
        a("v_lshrrev_b32 v10, 4, v2")
        a("v_lshrrev_b32 v11, 1, v3")
        a("v_xor_b32 v10, v10, v11")
        a("v_lshlrev_b32 v10, 4, v10")
        a("v_lshl_add_u32 v10, v3, 7, v10")
        a("s_lshl_b32 s26, s24, 13")
        a("s_add_u32 s26, s26, %d" % RB)
        a("v_add_u32 v10, s26, v10")
        a("s_lshl_b32 s26, s25, 12")
        a("v_add_u32 v%d, s26, v10" % bTa[0])
        a("s_xor_b32 s26, s26, 4096")
        a("v_add_u32 v%d, s26, v10" % bTb[0])
        a("v_xor_b32 v%d, 64, v%d" % (bTa[1], bTa[0]))
        a("v_xor_b32 v%d, 64, v%d" % (bTb[1], bTb[0]))
        a("v_lshrrev_b32 v10, 2, v2")
        a("v_mul_u32_u24 v10, %d, v10" % FS)
        a("v_and_b32 v11, 3, v2")
        a("v_lshl_add_u32 v10, v11, 3, v10")
        a("v_add_u32 v10, %d, v10" % (RB + TREG))
        a("s_mul_i32 s26, s25, 160")
        a("v_add_u32 v%d, s26, v10" % bF)
        a("v_add_u32 v%d, 128, v10" % bFh)
        for r in range(ACC, ACC + 72): a("v_mov_b32 v%d, 0" % r)
        for r in range(CS, CS + 20): a("v_mov_b32 v%d, 0" % r)
        for r in range(ONE, ONE + 4): a("v_mov_b32 v%d, 0x3f803f80" % r)
    def mma_addr(slot):
        a("s_mov_b32 s27, %d" % (slot * SLOT))
        for d, s_ in ((vTa[0], bTa[0]), (vTb[0], bTb[0]), (vTa[1], bTa[1]), (vTb[1], bTb[1]), (vF, bF), (vFh, bFh)):
            a("v_add_u32 v%d, s27, v%d" % (d, s_))
    core = G.Core(a, ACC, FB[0], FB[1], FS, TREG, vTa, vTb, vF, vFh)
    trk = core.trk
    a("s_cmp_eq_u32 s98, 0")
    a("s_cbranch_scc1 %s_A0" % name)
    a("s_setprio 3")
    loader_setup()
    a("s_waitcnt lgkmcnt(0)")
    srds_main()
    vm = VmTracker(a)
    def issue(g, vmx):
        issueT(g); issueF(g); vmx.issue("S%d" % g, 9)
    issueT(0)
    loader_setup2()
    issueF(0); vm.issue("S0", 9)
    issue(1, vm); issue(2, vm); issue(3, vm)
    a("s_add_u32 s3, s3, 4"); stamp_setup(a, 1); stamp(a, 0); a("s_sub_u32 s3, s3, 4")
    for r in range(ONE, ONE + 4): a("v_mov_b32 v%d, 0x3f803f80" % r)
    RA = 96; XB = 112
    for r in range(RA, RA + 16): a("v_mov_b32 v%d, 0" % r)
    a("v_lshrrev_b32 v10, 4, v2")
    a("v_lshrrev_b32 v11, 1, v3")
    a("v_xor_b32 v10, v10, v11")
    a("v_lshlrev_b32 v10, 4, v10")
    a("v_lshl_add_u32 v10, v3, 7, v10")
    a("v_add_u32 v12, s84, v10")
    a("v_xor_b32 v13, 64, v12")
    def rs_rd(g):
        a("v_add_u32 v10, %d, v12" % ((g % R) * SLOT))
        a("v_add_u32 v11, %d, v13" % ((g % R) * SLOT))
        for h in range(2):
            for n in range(2):
                a("ds_read_b128 %s, v%d offset:%d" % (vr(XB + 8 * h + 4 * n), 10 + h, 2048 * n))
    def rs_do():
        for h in range(2):
            for n in range(2):
                x = XB + 8 * h + 4 * n
                a("v_mfma_f32_16x16x32_bf16 %s, %s, %s, %s" % (vr(RA + 4 * n), vr(ONE), vr(x), vr(RA + 4 * n)))
                a("v_mfma_f32_16x16x32_bf16 %s, %s, %s, %s" % (vr(RA + 8 + 4 * n), vr(x), vr(x), vr(RA + 8 + 4 * n)))
    def interleave(dma, comp, vmx=None):
        groups = []; cur = []
        for l in dma:
            cur.append(l)
            if "buffer_load" in l and not any("exec, 0xffffffff" in x for x in cur[-2:]):
                groups.append(cur); cur = []
            elif "exec, -1" in l:
                groups.append(cur); cur = []
        if cur: groups.append(cur)
        ns = max(1, len(groups))
        per = (len(comp) + ns - 1) // ns
        for g in groups:
            a.lines.extend(g)
            a.lines.extend(comp[:per]); comp = comp[per:]
        a.lines.extend(comp)
    vm.wait(["S0"])
    a("s_barrier")
    stamp(a, 1)
    rs_rd(0)
    vm.wait(["S1"])
    a("s_barrier")
    for k in range(9):
        a("s_waitcnt lgkmcnt(0)")
        dma = capture(lambda: (issueT(k + 3), issueF(k + 3))) if (k >= 1 and k + 3 < 9) else []
        interleave(dma, capture(rs_do))
        if k >= 1 and k + 3 < 9: vm.issue("S%d" % (k + 3), 9)
        if k < 8:
            rs_rd(k + 1)
        else:
            a("s_nop 7")
            a("v_lshrrev_b32 v10, 4, v2")
            a("v_lshrrev_b32 v11, 2, v3")
            a("v_and_b32 v12, 3, v3")
            for n in range(2):
                G_ = RA + 8 + 4 * n
                for r in range(1, 4):
                    a("v_cmp_eq_u32 vcc, %d, v12" % r)
                    a("s_nop 1")
                    a("v_cndmask_b32 v%d, v%d, v%d, vcc" % (G_, G_, G_ + r))
            ML = 112
            for n in range(2):
                emit_ln_finish(a, RA + 4 * n, RA + 8 + 4 * n, 576, ML + 2 * n, ML + 2 * n + 1, 120)
                a("v_mov_b32 v%d, v%d" % (117 + 2 * n, ML + 2 * n + 1))
                a("v_sub_f32 v%d, 0, v%d" % (116 + 2 * n, ML + 2 * n))
            a("s_lshl_b32 s35, s3, 8")
            a("v_lshlrev_b32 v13, 3, v3")
            a("v_add_u32 v12, s35, v13")
            a("v_cmp_eq_u32 vcc, v10, v11")
            a("s_and_saveexec_b64 s[36:37], vcc")
            for n in range(2):
                a("ds_write_b64 v12, %s offset:%d" % (vr(116 + 2 * n, 2), RST + 128 * n))
            a("s_mov_b64 exec, s[36:37]")
            a("s_cmp_lg_u32 s23, 0")
            a("s_cbranch_scc1 %s_nost1" % name)
            a("s_lshl_b32 s35, s22, 7")
            a("s_lshl_b32 s36, s3, 5")
            a("s_add_u32 s35, s35, s36")
            a("s_lshl_b32 s35, s35, 3")
            a("s_add_u32 s35, s35, 0x%x" % STATS1)
            a("v_mov_b32 v11, 0x7ffffff0")
            a("v_cndmask_b32 v13, v11, v13, vcc")
            for n in range(2):
                a("buffer_store_dwordx2 %s, v13, s[12:15], s35 offen offset:%d" % (vr(ML + 2 * n, 2), 128 * n))
            a.label("%s_nost1" % name)
        if k < 8:
            vm.wait(["S%d" % (k + 2)])
            a("s_barrier")
    a("s_waitcnt lgkmcnt(0)")
    a("s_barrier")
    a("s_load_dwordx4 s[64:67], s[0:1], 8")
    a("s_load_dwordx2 s[76:77], s[0:1], 24")
    a("s_load_dwordx2 s[90:91], s[0:1], 64")
    a("s_mul_i32 s36, s3, 13312")
    a("s_add_u32 s36, s36, %d" % RB)
    a("v_lshlrev_b32 v10, 4, v2")
    a("v_add_u32 v11, s36, v10")
    a("s_waitcnt lgkmcnt(0)")
    srd(a, 68, 66, 2048 * 576 * 2)
    a("s_mov_b32 s88, s64"); a("s_mov_b32 s89, s65")
    srd(a, 64, 88, 2048 * 576 * 2)
    srd(a, 72, 76, 576 * 8)
    srd(a, 92, 90, 2048 * 2048 * 2)
    a("s_barrier")
    n_ = 0
    for ft in range(4):
        for tt in range(2):
            a("ds_read_b128 %s, v11 offset:%d" % (vr(core.accr(ft, tt)), 1024 * n_)); n_ += 1
    for ft in range(4):
        a("ds_read_b128 %s, v11 offset:%d" % (vr(CS + 4 * ft), 1024 * n_)); n_ += 1
    a("s_branch %s_epi" % name)
    a.label("%s_A0" % name)
    emit_code_prefetch(a, name)
    a("s_load_dwordx4 s[64:67], s[0:1], 8")
    a("s_load_dwordx2 s[76:77], s[0:1], 24")
    a("s_load_dwordx2 s[90:91], s[0:1], 64")
    mma_setup()
    a("s_waitcnt lgkmcnt(0)")
    srds_main()
    srd(a, 68, 66, 2048 * 576 * 2)
    a("s_mov_b32 s88, s64"); a("s_mov_b32 s89, s65")
    srd(a, 64, 88, 2048 * 576 * 2)
    srd(a, 72, 76, 576 * 8)
    srd(a, 92, 90, 2048 * 2048 * 2)
    stamp_setup(a, 1); stamp(a, 0)
    def gran_addr():
        a("v_lshrrev_b32 v10, 4, v2")
        a("s_lshl_b32 s36, s25, 1")
        a("v_add_u32 v11, s36, v10")
        a("v_and_b32 v11, 3, v11")
        a("v_lshl_add_u32 v11, v11, 4, v3")
        a("v_lshlrev_b32 v94, 8, v11")
        a("s_lshl_b32 s59, s22, 7")
        a("s_lshl_b32 s36, s24, 6")
        a("s_add_u32 s59, s59, s36")
        a("s_lshl_b32 s59, s59, 8")
        a("s_add_u32 s59, s59, 0x%x" % STATS2)
        a("s_lshl_b32 s36, s23, 1")
        a("s_add_u32 s36, s36, s25")
        a("s_lshl_b32 s36, s36, 3")
        a("s_add_u32 s58, s36, s59")
    mma_addr(0)
    a("s_mov_b32 s33, 0")
    a("s_barrier")
    stamp(a, 1)
    a.label("%s_mma" % name)
    core.prime(0, core.reads(0, 0))
    trk.drain()
    def mfmas(buf):
        L = []
        for ft in range(5):
            A = core.F(buf, ft)
            for tt in range(4 if ft < 4 else 2):
                c = core.accr(ft, tt); B = core.T(buf, tt)
                L.append(("v_mfma_f32_16x16x32_bf16 %s, %s, %s, %s" % (vr(c), vr(A), vr(B), vr(c)), list(range(A, A + 4)) + list(range(B, B + 4))))
            L.append(("v_mfma_f32_16x16x32_bf16 %s, %s, %s, %s" % (vr(CS + 4 * ft), vr(A), vr(ONE), vr(CS + 4 * ft)), list(range(A, A + 4))))
        return L
    def phase(buf, pend):
        for (m, regs) in mfmas(buf):
            trk.need(regs)
            a(m)
            while pend:
                k, t = pend.pop(0)
                if k == "x":
                    a(t)
                    if t.startswith("s_"): continue
                else:
                    a(t[0]); trk.issue(t[1])
                break
        for k, t in pend:
            if k == "x": a(t)
            else: a(t[0]); trk.issue(t[1])
    def iteration():
        a("s_waitcnt vmcnt(0)")
        a("s_barrier")
        rd = [("r", t) for t in core.reads(1, 1)]
        upd = ["s_add_u32 s27, s27, %d" % SLOT, "s_cmp_eq_u32 s27, %d" % (R * SLOT), "s_cselect_b32 s27, 0, s27"]
        tail = ["v_add_u32 v%d, s27, v%d" % (d, s_) for d, s_ in ((vTa[0], bTa[0]), (vF, bF), (vTb[0], bTb[0]), (vFh, bFh))]
        phase(0, rd[:1] + [("x", u) for u in upd] + rd[1:] + [("x", u) for u in tail])
        rd = [("r", t) for t in core.reads(0, 0)]
        tail = ["v_add_u32 v%d, s27, v%d" % (d, s_) for d, s_ in ((vTa[1], bTa[1]), (vTb[1], bTb[1]))] + ["s_add_u32 s33, s33, 1"]
        phase(1, rd + [("x", u) for u in tail])
    a.label("%s_cloop" % name)
    lb = len(a.lines); iteration(); st = copy.deepcopy(trk.out); del a.lines[lb:]; trk.out = copy.deepcopy(st)
    iteration()
    assert [sorted(x) for x in trk.out] == [sorted(x) for x in st]
    a("s_cmp_lt_u32 s33, 9")
    a("s_cbranch_scc1 %s_cloop" % name)
    trk.drain()
    stamp(a, 2)
    a("s_waitcnt vmcnt(0)")
    a("s_barrier")
    a("s_mul_i32 s36, s3, 13312")
    a("s_add_u32 s36, s36, %d" % RB)
    a("v_lshlrev_b32 v10, 4, v2")
    a("v_add_u32 v11, s36, v10")
    n_ = 0
    for ft in range(4):
        for tt in range(2):
            a("ds_write_b128 v11, %s offset:%d" % (vr(core.accr(ft, tt + 2)), 1024 * n_)); n_ += 1
    for ft in range(4):
        a("ds_write_b128 v11, %s offset:%d" % (vr(CS + 4 * ft), 1024 * n_)); n_ += 1
    a("s_waitcnt lgkmcnt(0)")
    a("s_barrier")
    a.label("%s_epi" % name)
    MR = 100; T = 72; ZP = 200
    gelu_consts(a)
    a("s_xor_b32 s52, s98, s25")
    a("s_lshl_b32 s36, s24, 9")
    a("s_lshl_b32 s37, s52, 8")
    a("s_add_u32 s38, s36, s37")
    a("v_lshlrev_b32 v10, 3, v3")
    a("v_add_u32 v11, s38, v10")
    a("ds_read_b64 %s, v11 offset:%d" % (vr(MR, 2), RST))
    a("ds_read_b64 %s, v11 offset:%d" % (vr(MR + 2, 2), RST + 128))
    a("s_lshl_b32 s41, s2, 1")
    a("s_add_u32 s41, s41, s98")
    a("v_and_b32 v0, 255, v0")
    a("s_cmp_ge_u32 s41, 288")
    a("s_cbranch_scc1 %s_nokv1" % name)
    emit_kv_loads(a)
    a.label("%s_nokv1" % name)
    S = [108, 110]; Q = [109, 111]
    for r_ in range(108, 112): a("v_mov_b32 v%d, 0" % r_)
    a("s_waitcnt lgkmcnt(0)")
    ZPf = lambda n: (240 + 2 * n) if n < 8 else (196 + 2 * (n - 8))
    def dots(lst):
        for d in range(2):
            for (ft, tt) in lst:
                p = ZPf(2 * ft + tt) + d
                a("v_dot2_f32_bf16 v%d, v%d, v%d, v%d" % (S[tt], p, ONE, S[tt]))
                a("v_dot2_f32_bf16 v%d, v%d, v%d, v%d" % (Q[tt], p, p, Q[tt]))
    a("v_lshrrev_b32 v10, 4, v2")
    a("v_lshlrev_b32 v5, 12, v10")
    a("v_lshl_add_u32 v5, v3, 4, v5")
    a("s_lshl_b32 s33, s22, 7")
    a("s_lshl_b32 s36, s3, 5")
    a("s_add_u32 s33, s33, s36")
    a("s_lshl_b32 s36, s98, 4")
    a("s_add_u32 s33, s33, s36")
    a("s_lshl_b32 s33, s33, 12")
    a("s_lshl_b32 s36, s23, 8")
    a("s_add_u32 s33, s33, s36")
    for n in range(4):
        a("buffer_load_dwordx4 v[160:163], v5, s[92:95], s33 offen")
        if n < 3: a("s_add_u32 s33, s33, 16384")
    a("v_lshrrev_b32 v60, 2, v2"); a("v_and_b32 v60, 1, v60"); a("v_lshlrev_b32 v60, 4, v60")
    a("v_lshrrev_b32 v61, 3, v2"); a("v_and_b32 v61, 1, v61"); a("v_lshl_add_u32 v60, v61, 2, v60")
    a("v_and_b32 v61, 3, v2"); a("v_add_u32 v60, v60, v61")
    a("v_mul_u32_u24 v60, 288, v60")
    a("v_lshrrev_b32 v61, 1, v10"); a("v_lshl_add_u32 v60, v61, 4, v60")
    a("v_and_b32 v61, 1, v10")
    a("v_lshl_add_u32 v62, v61, 5, v60")
    a("v_mul_u32_u24 v61, 2304, v61")
    a("v_add_u32 v63, v60, v61")
    a("s_lshl_b32 s84, s23, 5")
    a("s_lshl_b32 s36, s22, 1")
    a("s_add_u32 s84, s84, s36")
    a("s_add_u32 s84, s84, s24")
    a("s_mul_i32 s84, s84, 18432")
    if ZIMG: a("s_add_u32 s84, s84, 0x%x" % ZIMG)
    a("s_mul_i32 s36, s52, 9216")
    a("s_add_u32 s85, s84, s36")
    a("s_add_u32 s86, s85, 128")
    a("s_mul_i32 s36, s25, 160")
    a("s_add_u32 s85, s85, s36")
    def norm_pair(nA, ttA, nB, ttB, O):
        for q, n in enumerate((nA, nB)):
            for d in range(2):
                a("v_mov_b32 v%d, v%d" % (O + 2 * q + d, ZPf(n) + d))
        a("s_nop 1")
        a("v_permlane16_swap_b32 v%d, v%d" % (O, O + 2))
        a("v_permlane16_swap_b32 v%d, v%d" % (O + 1, O + 3))
    a("s_cmp_lg_u32 s98, 0")
    a("s_cbranch_scc1 %s_nohalf" % name)
    lst = [(4, 0), (4, 1)]
    emit_fold_gelu(a, [(core.accr(ft, tt), CS + 4 * ft, MR + 2 * tt, ZPf(2 * ft + tt)) for ft, tt in lst], T)
    dots(lst)
    norm_pair(8, 0, 9, 1, 112)
    a("s_nop 0")
    a("buffer_store_dwordx4 %s, v63, s[12:15], s86 offen" % vr(112))
    a.label("%s_nohalf" % name)
    for pr, f0 in enumerate((0, 2)):
        lst = [(ft, tt) for ft in (f0, f0 + 1) for tt in range(2)]
        emit_fold_gelu(a, [(core.accr(ft, tt), CS + 4 * ft, MR + 2 * tt, ZPf(2 * ft + tt)) for ft, tt in lst], T)
        dots(lst)
        for tt in range(2):
            O = 116 + 8 * pr + 4 * tt - 0
            O = (116, 120, 124, 88)[2 * pr + tt]
            norm_pair(2 * f0 + tt, tt, 2 * (f0 + 1) + tt, tt, O)
            a("s_nop 0")
            a("buffer_store_dwordx4 %s, v62, s[12:15], s85 offen offset:%d" % (vr(O), tt * 2304 + 64 * pr))
    a("s_nop 2")
    emit_xg_reduce(a, S + Q, 72)
    a("s_lshl_b32 s59, s22, 7")
    a("s_lshl_b32 s36, s24, 6")
    a("s_add_u32 s59, s59, s36")
    a("s_lshl_b32 s36, s52, 5")
    a("s_add_u32 s59, s59, s36")
    a("s_lshl_b32 s59, s59, 8")
    a("s_add_u32 s59, s59, 0x%x" % STATS2)
    a("s_lshl_b32 s36, s23, 1")
    a("s_add_u32 s36, s36, s25")
    a("s_lshl_b32 s36, s36, 3")
    a("s_add_u32 s58, s36, s59")
    a("v_lshrrev_b32 v10, 4, v2")
    a("v_lshlrev_b32 v11, 8, v2")
    a("v_cmp_gt_u32 vcc, 32, v2")
    a("v_mov_b32 v12, 0x7ffffff0")
    a("v_cmp_eq_u32 s[36:37], 1, v10")
    a("v_cndmask_b32 v11, v12, v11, vcc")
    a("s_nop 0")
    a("v_cndmask_b32 v108, v108, v110, s[36:37]")
    a("v_cndmask_b32 v109, v109, v111, s[36:37]")
    a("buffer_store_dwordx2 v[108:109], v11, s[12:15], s58 offen")
    a("s_setprio 0")
    stamp(a, 3)
    a.label("%s_fin" % name)
    stamp(a, 4)
    a("s_cmp_ge_u32 s41, 288")
    a("s_cbranch_scc1 %s_fin2" % name)
    a("s_waitcnt vmcnt(9)")
    a("s_nop 4")
    emit_kv_compute(a, wait=False)
    a.label("%s_fin2" % name)
    stamp(a, 6)
    G.stamp_rt(a, 1)
    a.label("%s_end" % name)
    a("s_endpgm")
    return a.text(), kernel_desc(name, 256, 256), (name, 256, 512, LDSB)

gen_k2b = G3.gen_k2b; gen_k2c = G3.gen_k2c; gen_k2d = G3.gen_k2d; gen_k2e = G3.gen_k2e; gen_k2g = G3.gen_k2g; gen_k2f = G3.gen_k2f; gen_k3b = G3.gen_k3b; gen_kw = G3.gen_kw; gen_k1g = G3.gen_k1g

if __name__ == "__main__":
    which = sys.argv[1]; out = sys.argv[2]
    if len(sys.argv) > 3: DBG.update(sys.argv[3].split(","))
    ks = [globals()["gen_" + w]() for w in which.split(",")]
    open(out, "w").write(assemble_file([k[2] for k in ks], "".join(k[0] for k in ks) + "code_end_lbl:\n", [k[1] for k in ks]))
```

```python
import sys
from asmgen import *

ZIMG   = 0x0000000
Z1IMG  = 0x0A00000
PIMG   = 0x1400000
WOT    = 0x1E00000
KVT    = 0x2200000
YT     = 0x2600000
STATS2 = 0x2A00000
STATS1 = 0x2B00000
STAMPS = 0x2C00000
WS_BYTES = 0x10000000

DBG = set()

class LdsTracker:
    def __init__(self, a):
        self.a = a
        self.out = []
    def issue(self, regs):
        self.out.append(set(regs))
    def need(self, regs):
        regs = set(regs)
        last = -1
        for n, s in enumerate(self.out):
            if s & regs:
                last = n
        if last >= 0:
            remaining = len(self.out) - 1 - last
            self.a("s_waitcnt lgkmcnt(%d)" % min(remaining, 15))
            self.out = self.out[last + 1:]
    def drain(self):
        if self.out:
            self.a("s_waitcnt lgkmcnt(0)")
        self.out = []

def vr(b, n=4):
    return "v[%d:%d]" % (b, b + n - 1)

class Core:
    def __init__(self, a, acc, fb0, fb1, FS, TREG, vTa, vTb, vF, vFh, FT=32, TT=2048):
        self.FT = FT; self.TT = TT
        self.a = a; self.acc = acc; self.fb = [fb0, fb1]; self.FS = FS; self.TREG = TREG
        self.vTa = vTa; self.vTb = vTb; self.vF = vF; self.vFh = vFh
        self.trk = LdsTracker(a)
    def T(self, buf, tt): return self.fb[buf] + 4 * tt
    def F(self, buf, ft): return self.fb[buf] + 16 + 4 * ft
    def accr(self, ft, tt):
        return self.acc + 4 * (ft * 4 + tt if ft < 4 else 16 + tt)
    def reads(self, buf, h, toff=0, foff=0):
        L = []
        def rt(tt):
            v = (self.vTa if tt < 2 else self.vTb)[h]
            r = self.T(buf, tt)
            L.append(("ds_read_b128 %s, v%d offset:%d" % (vr(r), v, toff + (tt & 1) * self.TT), range(r, r + 4)))
        def rf(ft):
            r = self.F(buf, ft)
            for half in range(2):
                off = foff + (32 * h + 16 * half) * self.FS + (self.FT * ft if ft < 4 else 0)
                v = self.vF if ft < 4 else self.vFh
                L.append(("ds_read_b64_tr_b16 %s, v%d offset:%d" % (vr(r + 2 * half, 2), v, off), range(r + 2 * half, r + 2 * half + 2)))
        rt(0); rf(0); rt(1); rt(2); rt(3); rf(1); rf(2); rf(3); rf(4)
        return L
    def mfmas(self, buf, first=False):
        L = []
        for ft in range(5):
            for tt in range(4 if ft < 4 else 2):
                c = self.accr(ft, tt)
                A = self.F(buf, ft); B = self.T(buf, tt)
                src = "0" if first else vr(c)
                L.append(("v_mfma_f32_16x16x32_bf16 %s, %s, %s, %s" % (vr(c), vr(A), vr(B), src),
                          list(range(A, A + 4)) + list(range(B, B + 4))))
        return L
    def phase(self, buf, reads, first=False, extra=None, pre=None):
        a = self.a
        ms = self.mfmas(buf, first)
        reads = list(reads); extra = list(extra or [])
        if pre:
            for p in pre: a(p)
        for n, (m, regs) in enumerate(ms):
            self.trk.need(regs)
            if "nomfma" not in DBG: a(m)
            if reads:
                t, r = reads.pop(0)
                if "nolds" not in DBG:
                    a(t); self.trk.issue(r)
            elif extra:
                a(extra.pop(0))
        for t, r in reads:
            if "nolds" not in DBG:
                a(t); self.trk.issue(r)
        for e in extra: a(e)
    def prime(self, buf, reads):
        for t, r in reads:
            if "nolds" not in DBG:
                self.a(t); self.trk.issue(r)

def stamp(a, idx):
    if "stamp" not in DBG: return
    a("s_memtime s[48:49]")
    a("s_waitcnt lgkmcnt(0)")
    a("v_mov_b32 v1, s48")
    a("buffer_store_dword v1, off, s[44:47], s50 offset:%d" % (idx * 4))

def stamp_rt(a, idx):
    if "stamp" not in DBG: return
    a("s_memrealtime s[48:49]")
    a("s_waitcnt lgkmcnt(0)")
    a("v_mov_b32 v1, s48")
    a("buffer_store_dword v1, off, s[44:47], s50 offset:%d" % ((56 + idx) * 4))

def stamp_seq(a):
    if "fine" not in DBG: return
    a("s_memtime s[48:49]")
    a("s_waitcnt lgkmcnt(0)")
    a("v_mov_b32 v1, s48")
    a("buffer_store_dword v1, off, s[44:47], s51 offset:64")
    a("s_add_u32 s51, s51, 4")

def stamp_setup(a, kidx=0):
    if "stamp" not in DBG: return
    a("s_load_dwordx2 s[100:101], s[0:1], 104")
    a("s_waitcnt lgkmcnt(0)")
    a("s_add_u32 s100, s100, 0x%x" % (STAMPS + 1024 * kidx))
    a("s_addc_u32 s101, s101, 0")
    srd(a, 44, 100, 1024)
    a("s_mov_b32 s50, 0x10000")
    a("s_cmp_eq_u32 s2, 0")
    a("s_cselect_b32 s51, 0, 0x10000")
    a("s_cmp_eq_u32 s2, 240")
    a("s_cselect_b32 s51, 512, s51")
    a("s_cmp_eq_u32 s3, 0")
    a("s_cselect_b32 s50, s51, s50")
    a("s_add_u32 s51, s51, 256")
    a("s_cmp_eq_u32 s3, 4")
    a("s_cselect_b32 s50, s51, s50")
    a("s_mov_b32 s51, s50")
    stamp_rt(a, 0)

def wave_setup(a, nthreads=512):
    a("v_lshrrev_b32 v1, 6, v0")
    a("v_and_b32 v2, 63, v0")
    a("v_readfirstlane_b32 s3, v1")

def gen_k2(name="k2_kernel", R=4, dbg=""):
    a = Asm()
    SLOT = 34816; TREG = 16384; FS = 288; NST = 32
    kernel_begin(a, name)
    a("s_cmp_ge_u32 s2, 256")
    a("s_cbranch_scc1 %s_end" % name)
    a("s_load_dwordx2 s[4:5], s[0:1], 64")
    a("s_load_dwordx2 s[6:7], s[0:1], 104")
    a("s_load_dwordx2 s[16:17], s[0:1], 72")
    wave_setup(a)
    a("s_and_b32 s20, s2, 7")
    a("s_lshr_b32 s21, s2, 3")
    a("s_and_b32 s22, s20, 1")
    a("s_lshl_b32 s22, s22, 3")
    a("s_and_b32 s23, s21, 7")
    a("s_add_u32 s22, s22, s23")
    a("s_lshr_b32 s23, s20, 1")
    a("s_lshl_b32 s23, s23, 2")
    a("s_lshr_b32 s24, s21, 3")
    a("s_add_u32 s23, s23, s24")
    a("s_waitcnt lgkmcnt(0)")
    srd(a, 8, 4, 2048 * 2048 * 2)
    srd(a, 12, 6, WS_BYTES)
    srd(a, 28, 16, 2048 * 2)
    stamp_setup(a, 2); stamp(a, 0)
    a("s_cmp_ge_u32 s3, 4")
    a("s_cbranch_scc1 %s_loader" % name)
    ACC = 128; FB0 = 16; FB1 = 52
    vTa = [4, 5]; vTb = [6, 7]; vF = 8; vFh = 9
    bTa = [88, 89]; bTb = [90, 91]; bF = 92; bFh = 93
    a("s_lshr_b32 s24, s3, 1")
    a("s_and_b32 s25, s3, 1")
    a("v_and_b32 v3, 15, v2")
    a("v_lshrrev_b32 v10, 4, v2")
    a("v_lshrrev_b32 v11, 1, v3")
    a("v_xor_b32 v10, v10, v11")
    a("v_lshlrev_b32 v10, 4, v10")
    a("v_lshl_add_u32 v10, v3, 7, v10")
    a("s_lshl_b32 s26, s24, 13")
    a("v_add_u32 v10, s26, v10")
    a("s_lshl_b32 s26, s25, 12")
    a("v_add_u32 v%d, s26, v10" % bTa[0])
    a("s_xor_b32 s26, s26, 4096")
    a("v_add_u32 v%d, s26, v10" % bTb[0])
    a("v_xor_b32 v%d, 64, v%d" % (bTa[1], bTa[0]))
    a("v_xor_b32 v%d, 64, v%d" % (bTb[1], bTb[0]))
    a("v_lshrrev_b32 v10, 2, v2")
    a("v_mul_u32_u24 v10, %d, v10" % FS)
    a("v_and_b32 v11, 3, v2")
    a("v_lshl_add_u32 v10, v11, 3, v10")
    a("v_add_u32 v10, %d, v10" % TREG)
    a("s_mul_i32 s26, s25, 160")
    a("v_add_u32 v%d, s26, v10" % bF)
    a("v_add_u32 v%d, 128, v10" % bFh)
    core = Core(a, ACC, FB0, FB1, FS, TREG, vTa, vTb, vF, vFh)
    for d, s in ((vTa[0], bTa[0]), (vTb[0], bTb[0]), (vTa[1], bTa[1]), (vTb[1], bTb[1]), (vF, bF), (vFh, bFh)):
        a("v_mov_b32 v%d, v%d" % (d, s))
    a("s_mov_b32 s27, 0")
    a("s_mov_b32 s33, 0")
    a("s_barrier")
    stamp(a, 1)
    core.prime(0, core.reads(0, 0))
    def iteration(first, last):
        a("s_barrier")
        a("s_add_u32 s34, s27, %d" % SLOT)
        a("s_cmp_eq_u32 s34, %d" % (R * SLOT))
        a("s_cselect_b32 s34, 0, s34")
        core.phase(0, core.reads(1, 1), first=first)
        if not last:
            pre = ["v_add_u32 v%d, s34, v%d" % (d, s) for d, s in ((vTa[0], bTa[0]), (vF, bF), (vTb[0], bTb[0]), (vFh, bFh))]
            post = ["v_add_u32 v%d, s34, v%d" % (d, s) for d, s in ((vTa[1], bTa[1]), (vTb[1], bTb[1]))]
            core.phase(1, core.reads(0, 0), pre=pre, extra=post)
        else:
            core.phase(1, [])
        a("s_mov_b32 s27, s34")
    iteration(True, False)
    a("s_mov_b32 s33, 1")
    a.label("%s_cloop" % name)
    saved = list(core.trk.out)
    iteration(False, False)
    assert [sorted(x) for x in saved] == [sorted(x) for x in core.trk.out], "loop tracker mismatch"
    a("s_add_u32 s33, s33, 1")
    a("s_cmp_lt_u32 s33, %d" % (NST - 1))
    a("s_cbranch_scc1 %s_cloop" % name)
    Z1R = 200; BI = 236
    a("s_lshl_b32 s35, s22, 4")
    a("s_add_u32 s35, s35, s23")
    a("s_lshl_b32 s35, s35, 2")
    a("s_add_u32 s35, s35, s3")
    a("s_mul_i32 s35, s35, 9216")
    a("s_add_u32 s35, s35, 0x%x" % Z1IMG)
    a("v_lshlrev_b32 v10, 4, v2")
    for q in range(9):
        if q == 4: a("s_add_u32 s35, s35, 4096")
        if q == 8: a("s_add_u32 s35, s35, 4096")
        a("buffer_load_dwordx4 %s, v10, s[12:15], s35 offen offset:%d" % (vr(Z1R + 4 * q), (q & 3) * 1024))
    a("s_lshl_b32 s36, s22, 7")
    a("s_lshl_b32 s37, s24, 6")
    a("s_add_u32 s36, s36, s37")
    a("v_lshlrev_b32 v11, 1, v3")
    a("s_lshl_b32 s37, s25, 6")
    a("s_lshl_b32 s38, s36, 1")
    a("s_add_u32 s39, s38, s37")
    a("s_xor_b32 s37, s37, 64")
    a("s_add_u32 s40, s38, s37")
    a("buffer_load_ushort v%d, v11, s[28:31], s39 offen" % (BI + 0))
    a("buffer_load_ushort v%d, v11, s[28:31], s39 offen offset:32" % (BI + 1))
    a("buffer_load_ushort v%d, v11, s[28:31], s40 offen" % (BI + 2))
    a("buffer_load_ushort v%d, v11, s[28:31], s40 offen offset:32" % (BI + 3))
    iteration(False, True)
    stamp(a, 2)
    a("s_waitcnt vmcnt(0)")
    stamp(a, 3)
    for tt in range(4):
        a("v_lshlrev_b32 v%d, 16, v%d" % (BI + tt, BI + tt))
    a("s_nop 7"); a("s_nop 7")
    xs = 16
    for ft in range(5):
        for tt in range(4 if ft < 4 else 2):
            n = ft * 4 + tt if ft < 4 else 16 + tt
            c = core.accr(ft, tt)
            z = Z1R + 2 * n
            a("v_cvt_pk_bf16_f32 v%d, v%d, v%d" % (xs, c, c + 1))
            a("v_cvt_pk_bf16_f32 v%d, v%d, v%d" % (xs + 1, c + 2, c + 3))
            a("v_lshlrev_b32 v%d, 16, v%d" % (c, xs))
            a("v_and_b32 v%d, 0xffff0000, v%d" % (c + 1, xs))
            a("v_lshlrev_b32 v%d, 16, v%d" % (c + 2, xs + 1))
            a("v_and_b32 v%d, 0xffff0000, v%d" % (c + 3, xs + 1))
            for r in range(4):
                a("v_add_f32 v%d, v%d, v%d" % (c + r, c + r, BI + tt))
            a("v_cvt_pk_bf16_f32 v%d, v%d, v%d" % (xs, c, c + 1))
            a("v_cvt_pk_bf16_f32 v%d, v%d, v%d" % (xs + 1, c + 2, c + 3))
            a("v_lshlrev_b32 v%d, 16, v%d" % (c, xs))
            a("v_and_b32 v%d, 0xffff0000, v%d" % (c + 1, xs))
            a("v_lshlrev_b32 v%d, 16, v%d" % (c + 2, xs + 1))
            a("v_and_b32 v%d, 0xffff0000, v%d" % (c + 3, xs + 1))
            a("v_lshlrev_b32 v%d, 16, v%d" % (xs + 2, z))
            a("v_and_b32 v%d, 0xffff0000, v%d" % (xs + 3, z))
            a("v_lshlrev_b32 v%d, 16, v%d" % (xs + 4, z + 1))
            a("v_and_b32 v%d, 0xffff0000, v%d" % (xs + 5, z + 1))
            for r in range(4):
                a("v_mul_f32 v%d, v%d, v%d" % (c + r, c + r, xs + 2 + r))
            a("v_cvt_pk_bf16_f32 v%d, v%d, v%d" % (z, c, c + 1))
            a("v_cvt_pk_bf16_f32 v%d, v%d, v%d" % (z + 1, c + 2, c + 3))
    stamp(a, 4)
    emit_p_store(a, Z1R, core)
    stamp(a, 5)
    a("s_waitcnt vmcnt(0)")
    stamp(a, 6)
    stamp_rt(a, 1)
    a("s_branch %s_end" % name)
    a.label("%s_loader" % name)
    if "noprio" not in DBG: a("s_setprio 3")
    a("s_sub_u32 s3, s3, 4")
    a("v_lshrrev_b32 v3, 3, v2")
    a("s_lshl_b32 s24, s3, 5")
    a("v_add_u32 v3, s24, v3")
    a("v_and_b32 v4, 7, v2")
    for n in range(4):
        a("v_add_u32 v5, %d, v3" % (8 * n))
        a("v_lshrrev_b32 v6, 1, v5")
        a("v_and_b32 v6, 7, v6")
        a("v_xor_b32 v6, v6, v4")
        a("v_lshlrev_b32 v6, 4, v6")
        a("v_lshl_add_u32 v%d, v5, 12, v6" % (10 + n))
        if n: a("v_subrev_u32 v%d, %d, v%d" % (10 + n, n * 1024, 10 + n))
    a("v_lshlrev_b32 v14, 4, v2")
    a("s_lshl_b32 s26, s22, 19")
    a("s_mul_i32 s27, s23, %d" % (32 * 18432))
    a("s_lshl_b32 s24, s3, 12")
    a("s_add_u32 s27, s27, s24")
    if ZIMG: a("s_add_u32 s27, s27, 0x%x" % ZIMG)
    a("s_lshl_b32 s25, s3, 9")
    a("s_sub_u32 s32, s25, s24")
    a("s_add_u32 s32, s32, 16384")
    a("s_mov_b32 s33, 0")
    a("s_mov_b32 s34, 0")
    def issue():
        if "nodma" in DBG: return
        a("s_add_u32 s35, s33, s24")
        a("s_mov_b32 m0, s35")
        a("s_add_u32 s36, s35, %d" % TREG)
        for n in range(4):
            a("buffer_load_dwordx4 v%d, s[8:11], s26 offen offset:%d lds" % (10 + n, n * 1024))
        a("s_mov_b32 m0, s36")
        a("s_add_u32 s37, s27, s32")
        for n in range(4):
            a("buffer_load_dwordx4 v14, s[12:15], s27 offen offset:%d lds" % (n * 1024))
        a("s_add_u32 s36, s36, s32")
        a("s_mov_b32 m0, s36")
        a("s_mov_b64 exec, 0xffffffff")
        a("buffer_load_dwordx4 v14, s[12:15], s37 offen lds")
        a("s_mov_b64 exec, -1")
        a("s_add_u32 s26, s26, 128")
        a("s_add_u32 s27, s27, 18432")
        a("s_add_u32 s33, s33, %d" % SLOT)
        a("s_cmp_eq_u32 s33, %d" % (R * SLOT))
        a("s_cselect_b32 s33, 0, s33")
    for s in range(R - 1):
        issue()
    a("s_waitcnt vmcnt(%d)" % (9 * (R - 2)))
    a("s_barrier")
    issue()
    a("s_waitcnt vmcnt(%d)" % (9 * (R - 2)))
    a("s_barrier")
    a("s_waitcnt vmcnt(%d)" % (9 * (R - 3)))
    a("s_barrier")
    a("s_mov_b32 s34, 1")
    a.label("%s_lloop" % name)
    issue()
    a("s_waitcnt vmcnt(%d)" % (9 * (R - 3)))
    a("s_barrier")
    a("s_add_u32 s34, s34, 1")
    a("s_cmp_lt_u32 s34, %d" % (NST - R + 1))
    a("s_cbranch_scc1 %s_lloop" % name)
    for k in range(NST - R + 1, NST - 1):
        left = max(0, (NST - 1) - (k + 2))
        a("s_waitcnt vmcnt(%d)" % (9 * left))
        a("s_barrier")
    a.label("%s_end" % name)
    a("s_endpgm")
    return a.text(), kernel_desc(name, 256, 256), (name, 256, 512, R * SLOT)

def emit_p_store(a, PR, core):
    a("v_lshrrev_b32 v10, 4, v2")
    a("v_and_b32 v11, 1, v10")
    a("v_lshrrev_b32 v12, 1, v10")
    a("v_lshl_add_u32 v12, v11, 1, v12")
    a("s_mul_i32 s35, s23, 18")
    a("s_mul_i32 s36, s25, 10")
    a("s_add_u32 s36, s36, s35")
    a("v_lshrrev_b32 v13, 1, v3")
    a("s_lshl_b32 s37, s22, 1")
    a("s_add_u32 s37, s37, s24")
    a("s_mul_i32 s37, s37, %d" % (36 * 8192))
    a("s_add_u32 s37, s37, 0x%x" % PIMG)
    a("s_lshl_b32 s38, s25, 12")
    a("s_add_u32 s39, s37, s38")
    a("s_xor_b32 s38, s38, 4096")
    a("s_add_u32 s40, s37, s38")
    def addr(dst, pv):
        a("v_lshrrev_b32 v14, 3, v%d" % pv)
        a("v_lshlrev_b32 v14, 13, v14")
        a("v_and_b32 v15, 7, v%d" % pv)
        a("v_xor_b32 v15, v15, v13")
        a("v_lshl_add_u32 v14, v15, 4, v14")
        a("v_lshl_add_u32 v%d, v3, 7, v14" % dst)
    for pr in range(2):
        a("v_add_u32 v16, s36, v12")
        if pr: a("v_add_u32 v16, 4, v16")
        addr(17, 16)
        for tt in range(4):
            nA = (2 * pr) * 4 + tt; nB = (2 * pr + 1) * 4 + tt
            A = PR + 2 * nA; B = PR + 2 * nB
            a("v_mov_b32 v20, v%d" % A); a("v_mov_b32 v21, v%d" % (A + 1))
            a("v_mov_b32 v22, v%d" % B); a("v_mov_b32 v23, v%d" % (B + 1))
            a("s_nop 1")
            a("v_permlane16_swap_b32 v20, v22")
            a("v_permlane16_swap_b32 v21, v23")
            a("s_nop 1")
            a("buffer_store_dwordx4 v[20:23], v17, s[12:15], s%d offen offset:%d" % (39 if tt < 2 else 40, (tt & 1) * 2048))
            a("s_nop 1")
    a("v_lshrrev_b32 v16, 1, v10")
    a("s_add_u32 s35, s35, 8")
    a("v_add_u32 v16, s35, v16")
    addr(17, 16)
    a("v_lshl_add_u32 v17, v11, 11, v17")
    A = PR + 32; B = PR + 34
    a("v_mov_b32 v20, v%d" % A); a("v_mov_b32 v21, v%d" % (A + 1))
    a("v_mov_b32 v22, v%d" % B); a("v_mov_b32 v23, v%d" % (B + 1))
    a("s_nop 1")
    a("v_permlane16_swap_b32 v20, v22")
    a("v_permlane16_swap_b32 v21, v23")
    a("s_nop 1")
    a("buffer_store_dwordx4 v[20:23], v17, s[12:15], s39 offen")

def rnd_pair(a, tmp, r0, r1):
    a("v_cvt_pk_bf16_f32 v%d, v%d, v%d" % (tmp, r0, r1))
    a("v_lshlrev_b32 v%d, 16, v%d" % (r0, tmp))
    a("v_and_b32 v%d, 0xffff0000, v%d" % (r1, tmp))

def gen_k3(name="k3_kernel", R=4):
    a = Asm()
    TREG = 16384; FS = 160; SLOT = TREG + 128 * FS; NST = 18
    YOFF = R * SLOT
    kernel_begin(a, name)
    a("s_cmp_ge_u32 s2, 256")
    a("s_cbranch_scc1 %s_end" % name)
    a("s_load_dwordx2 s[4:5], s[0:1], 0")
    a("s_load_dwordx2 s[6:7], s[0:1], 104")
    a("s_load_dwordx2 s[16:17], s[0:1], 88")
    wave_setup(a)
    a("s_and_b32 s20, s2, 7")
    a("s_lshr_b32 s21, s2, 3")
    a("s_and_b32 s22, s20, 3")
    a("s_lshl_b32 s22, s22, 3")
    a("s_and_b32 s23, s21, 7")
    a("s_add_u32 s22, s22, s23")
    a("s_lshr_b32 s23, s20, 2")
    a("s_lshl_b32 s23, s23, 2")
    a("s_lshr_b32 s24, s21, 3")
    a("s_add_u32 s23, s23, s24")
    a("s_lshr_b32 s24, s23, 1")
    a("s_and_b32 s25, s23, 1")
    a("s_waitcnt lgkmcnt(0)")
    srd(a, 8, 4, 2048 * 576 * 2)
    srd(a, 12, 6, WS_BYTES)
    srd(a, 28, 16, 2048 * 576 * 2)
    stamp_setup(a, 3); stamp(a, 0)
    a("s_cmp_ge_u32 s3, 4")
    a("s_cbranch_scc1 %s_loader" % name)
    ACC = 128; FB0 = 16; FB1 = 52
    vTa = [4, 4]; vTb = [6, 6]; vF = 8; vFh = 9
    bTa = 88; bTb = 90; bF = 92; bFh = 93
    XR = 200; ST = 210; YR = 212
    a("v_and_b32 v3, 15, v2")
    a("v_lshrrev_b32 v10, 4, v2")
    a("s_and_b32 s26, s3, 1")
    a("s_lshl_b32 s26, s26, 2")
    a("v_add_u32 v10, s26, v10")
    a("v_lshrrev_b32 v11, 1, v3")
    a("v_xor_b32 v10, v10, v11")
    a("v_lshlrev_b32 v10, 4, v10")
    a("v_lshl_add_u32 v10, v3, 7, v10")
    a("s_lshr_b32 s26, s3, 1")
    a("s_lshl_b32 s26, s26, 13")
    a("v_add_u32 v10, s26, v10")
    a("s_lshl_b32 s26, s25, 12")
    a("v_add_u32 v%d, s26, v10" % bTa)
    a("s_xor_b32 s26, s26, 4096")
    a("v_add_u32 v%d, s26, v10" % bTb)
    a("v_lshrrev_b32 v10, 2, v2")
    a("v_mul_u32_u24 v10, %d, v10" % FS)
    a("v_and_b32 v11, 3, v2")
    a("v_lshl_add_u32 v10, v11, 3, v10")
    a("s_mul_i32 s26, s3, %d" % (32 * FS))
    a("s_add_u32 s26, s26, %d" % TREG)
    a("v_add_u32 v%d, s26, v10" % bF)
    a("v_add_u32 v%d, 128, v%d" % (bFh, bF))
    a("s_lshl_b32 s26, s25, 1")
    a("s_add_u32 s26, s26, s3")
    a("s_and_b32 s26, s26, 3")
    a("s_lshl_b32 s27, s26, 4")
    a("s_lshl_b32 s33, s22, 6")
    a("s_add_u32 s27, s27, s33")
    a("v_add_u32 v12, s27, v3")
    a("v_mul_u32_u24 v13, 1152, v12")
    a("v_lshrrev_b32 v10, 4, v2")
    a("v_lshl_add_u32 v13, v10, 3, v13")
    a("s_mul_i32 s34, s24, 288")
    a("s_mul_i32 s35, s25, 160")
    a("s_add_u32 s35, s35, s34")
    a("s_add_u32 s36, s34, 128")
    for ft in range(4):
        a("buffer_load_dwordx2 %s, v13, s[8:11], s35 offen offset:%d" % (vr(XR + 2 * ft, 2), 32 * ft))
    a("buffer_load_dwordx2 %s, v13, s[8:11], s36 offen" % vr(XR + 8, 2))
    a("v_lshlrev_b32 v14, 3, v12")
    a("s_mov_b32 s37, 0x%x" % STATS1)
    a("buffer_load_dwordx2 %s, v14, s[12:15], s37 offen" % vr(ST, 2))
    core = Core(a, ACC, FB0, FB1, FS, TREG, vTa, vTb, vF, vFh)
    pairs = ((vTa[0], bTa), (vF, bF), (vTb[0], bTb), (vFh, bFh))
    for d, s_ in pairs:
        a("v_mov_b32 v%d, v%d" % (d, s_))
    a("s_mov_b32 s27, 0")
    a("s_barrier")
    stamp(a, 1)
    core.prime(0, core.reads(0, 0))
    def iteration(buf, first, last):
        core.trk.drain()
        a("s_barrier")
        if not last:
            a("s_add_u32 s27, s27, %d" % SLOT)
            a("s_cmp_eq_u32 s27, %d" % (R * SLOT))
            a("s_cselect_b32 s27, 0, s27")
            pre = ["v_add_u32 v%d, s27, v%d" % (d, s_) for d, s_ in pairs]
            core.phase(buf, core.reads(1 - buf, 0), first=first, pre=pre)
        else:
            core.phase(buf, [])
    iteration(0, True, False)
    iteration(1, False, False)
    a("s_mov_b32 s33, 1")
    a.label("%s_cloop" % name)
    iteration(0, False, False)
    iteration(1, False, False)
    a("s_add_u32 s33, s33, 1")
    a("s_cmp_lt_u32 s33, %d" % (NST // 2 - 1))
    a("s_cbranch_scc1 %s_cloop" % name)
    iteration(0, False, False)
    iteration(1, False, True)
    stamp(a, 2)
    a("s_mul_i32 s33, s3, %d" % (18 * 1024))
    a("v_lshlrev_b32 v10, 4, v2")
    a("v_add_u32 v11, s33, v10")
    a("s_nop 7")
    for w in range(4):
        a("s_cmp_eq_u32 s3, %d" % w)
        a("s_cbranch_scc1 %s_skipw%d" % (name, w))
        for ft in range(5):
            if ft == 4 and w >= 2: continue
            n = ft * 4 + w if ft < 4 else 16 + w
            a("ds_write_b128 v11, %s offset:%d" % (vr(core.accr(ft, w)), n * 1024))
        a.label("%s_skipw%d" % (name, w))
    a("s_waitcnt lgkmcnt(0)")
    a("s_barrier")
    O = 16; PT = 40
    for w in range(4):
        a("s_cmp_lg_u32 s3, %d" % w)
        a("s_cbranch_scc1 %s_own%d" % (name, w))
        for ft in range(5):
            for r in range(4):
                if ft == 4 and w >= 2:
                    a("v_mov_b32 v%d, 0" % (O + 4 * ft + r))
                else:
                    a("v_mov_b32 v%d, v%d" % (O + 4 * ft + r, core.accr(ft, w) + r))
        a.label("%s_own%d" % (name, w))
    a("s_lshl_b32 s34, s3, 10")
    for q in range(1, 4):
        a("s_add_u32 s33, s3, %d" % q)
        a("s_and_b32 s33, s33, 3")
        a("s_mul_i32 s33, s33, %d" % (18 * 1024))
        a("s_add_u32 s33, s33, s34")
        a("v_add_u32 v11, s33, v10")
        for ft in range(5):
            a("ds_read_b128 %s, v11 offset:%d" % (vr(PT + 20 * (q - 1) + 4 * ft), ft * 4096))
    a("v_lshrrev_b32 v11, 2, v2")
    a("v_lshlrev_b32 v11, 7, v11")
    a("v_and_b32 v12, 3, v2")
    a("v_lshl_add_u32 v11, v12, 3, v11")
    a("s_lshl_b32 s33, s26, 5")
    a("s_add_u32 s33, s33, %d" % YOFF)
    a("v_add_u32 v11, s33, v11")
    for ft in range(5):
        a("ds_read_b64_tr_b16 %s, v11 offset:%d" % (vr(YR + 2 * ft, 2), ft * 2048))
    a("s_waitcnt lgkmcnt(0) vmcnt(0)")
    stamp(a, 3)
    for ft in range(5):
        for r in range(4):
            o = O + 4 * ft + r
            a("v_add_f32 v%d, v%d, v%d" % (o, o, PT + 4 * ft + r))
            a("v_add_f32 v%d, v%d, v%d" % (PT + 20 + 4 * ft + r, PT + 20 + 4 * ft + r, PT + 40 + 4 * ft + r))
            a("v_add_f32 v%d, v%d, v%d" % (o, o, PT + 20 + 4 * ft + r))
    a("s_mov_b32 s33, 0xbfb8aa3b")
    T = 104
    for ft in range(5):
        if ft == 4:
            a("s_cmp_ge_u32 s3, 2")
            a("s_cbranch_scc1 %s_fin" % name)
        o = O + 4 * ft
        X = XR + 2 * ft; Y = YR + 2 * ft
        rnd_pair(a, T + 20, o, o + 1); rnd_pair(a, T + 20, o + 2, o + 3)
        for r in range(4): a("v_mul_f32 v%d, s33, v%d" % (T + r, o + r))
        for r in range(4): a("v_exp_f32 v%d, v%d" % (T + r, T + r))
        for r in range(4): a("v_add_f32 v%d, 1.0, v%d" % (T + r, T + r))
        for r in range(4): a("v_rcp_f32 v%d, v%d" % (T + r, T + r))
        a("v_lshlrev_b32 v%d, 16, v%d" % (T + 4, X)); a("v_and_b32 v%d, 0xffff0000, v%d" % (T + 5, X))
        a("v_lshlrev_b32 v%d, 16, v%d" % (T + 6, X + 1)); a("v_and_b32 v%d, 0xffff0000, v%d" % (T + 7, X + 1))
        a("v_lshlrev_b32 v%d, 16, v%d" % (T + 8, Y)); a("v_and_b32 v%d, 0xffff0000, v%d" % (T + 9, Y))
        a("v_lshlrev_b32 v%d, 16, v%d" % (T + 10, Y + 1)); a("v_and_b32 v%d, 0xffff0000, v%d" % (T + 11, Y + 1))
        for r in range(4): a("v_mul_f32 v%d, v%d, v%d" % (o + r, o + r, T + r))
        rnd_pair(a, T + 20, o, o + 1); rnd_pair(a, T + 20, o + 2, o + 3)
        for r in range(4): a("v_sub_f32 v%d, v%d, v%d" % (T + 12 + r, T + 4 + r, ST))
        rnd_pair(a, T + 20, T + 12, T + 13); rnd_pair(a, T + 20, T + 14, T + 15)
        for r in range(4): a("v_mul_f32 v%d, v%d, v%d" % (T + 12 + r, T + 12 + r, ST + 1))
        rnd_pair(a, T + 20, T + 12, T + 13); rnd_pair(a, T + 20, T + 14, T + 15)
        for r in range(4): a("v_mul_f32 v%d, v%d, v%d" % (T + 12 + r, T + 12 + r, T + 8 + r))
        rnd_pair(a, T + 20, T + 12, T + 13); rnd_pair(a, T + 20, T + 14, T + 15)
        for r in range(4): a("v_mul_f32 v%d, v%d, v%d" % (T + 12 + r, T + 12 + r, o + r))
        rnd_pair(a, T + 20, T + 12, T + 13); rnd_pair(a, T + 20, T + 14, T + 15)
        for r in range(4): a("v_add_f32 v%d, v%d, v%d" % (T + 12 + r, T + 12 + r, T + 4 + r))
        a("v_cvt_pk_bf16_f32 v%d, v%d, v%d" % (X, T + 12, T + 13))
        a("v_cvt_pk_bf16_f32 v%d, v%d, v%d" % (X + 1, T + 14, T + 15))
        if ft < 4:
            a("buffer_store_dwordx2 %s, v13, s[28:31], s35 offen offset:%d" % (vr(X, 2), 32 * ft))
        else:
            a("buffer_store_dwordx2 %s, v13, s[28:31], s36 offen" % vr(X, 2))
    a.label("%s_fin" % name)
    stamp(a, 4)
    a("s_waitcnt vmcnt(0)")
    stamp(a, 5)
    stamp_rt(a, 1)
    a("s_branch %s_end" % name)
    a.label("%s_loader" % name)
    if "noprio" not in DBG: a("s_setprio 3")
    a("s_sub_u32 s3, s3, 4")
    a("v_lshlrev_b32 v14, 4, v2")
    a("v_lshrrev_b32 v3, 3, v2")
    a("v_and_b32 v4, 7, v2")
    a("v_lshlrev_b32 v4, 4, v4")
    a("s_mul_i32 s33, s24, 144")
    a("s_mul_i32 s34, s25, 80")
    a("s_lshl_b32 s35, s22, 7")
    a("s_add_u32 s35, s35, 0x%x" % YT)
    for n in range(3):
        if n == 2:
            a("s_cmp_ge_u32 s3, 2")
            a("s_cbranch_scc1 %s_noy" % name)
        a("s_add_u32 s36, s3, %d" % (4 * n))
        a("s_lshl_b32 s37, s36, 3")
        a("s_add_u32 s38, s37, s33")
        if n < 2: a("s_add_u32 s38, s38, s34")
        a("v_add_u32 v5, s38, v3")
        a("v_lshl_add_u32 v5, v5, 12, v4")
        a("s_lshl_b32 s36, s36, 10")
        a("s_add_u32 s36, s36, %d" % YOFF)
        a("s_mov_b32 m0, s36")
        a("s_nop 0")
        a("buffer_load_dwordx4 v5, s[12:15], s35 offen lds")
    a.label("%s_noy" % name)
    a("s_mul_i32 s26, s22, %d" % (36 * 8192))
    a("s_lshl_b32 s24, s3, 12")
    a("s_add_u32 s26, s26, s24")
    a("s_add_u32 s26, s26, 0x%x" % PIMG)
    a("s_mul_i32 s27, s23, %d" % (18 * 20480))
    a("s_mul_i32 s25, s3, 5120")
    a("s_add_u32 s27, s27, s25")
    a("s_add_u32 s27, s27, 0x%x" % WOT)
    a("s_add_u32 s25, s25, %d" % TREG)
    a("s_mov_b32 s33, 0")
    def issue():
        if "nodma" in DBG: return
        a("s_add_u32 s35, s33, s24")
        a("s_mov_b32 m0, s35")
        a("s_add_u32 s36, s33, s25")
        for n in range(4):
            a("buffer_load_dwordx4 v14, s[12:15], s26 offen offset:%d lds" % (n * 1024))
        a("s_mov_b32 m0, s36")
        a("s_add_u32 s37, s27, 4096")
        for n in range(4):
            a("buffer_load_dwordx4 v14, s[12:15], s27 offen offset:%d lds" % (n * 1024))
        a("s_add_u32 s36, s36, 4096")
        a("s_mov_b32 m0, s36")
        a("s_add_u32 s26, s26, 16384")
        a("buffer_load_dwordx4 v14, s[12:15], s37 offen lds")
        a("s_add_u32 s27, s27, 20480")
        a("s_add_u32 s33, s33, %d" % SLOT)
        a("s_cmp_eq_u32 s33, %d" % (R * SLOT))
        a("s_cselect_b32 s33, 0, s33")
    for s_ in range(R):
        issue()
    a("s_waitcnt vmcnt(%d)" % (9 * (R - 1)))
    a("s_barrier")
    a("s_waitcnt vmcnt(%d)" % (9 * (R - 2)))
    a("s_barrier")
    a("s_mov_b32 s34, 0")
    a.label("%s_lloop" % name)
    issue()
    a("s_waitcnt vmcnt(%d)" % (9 * (R - 2)))
    a("s_barrier")
    a("s_add_u32 s34, s34, 1")
    a("s_cmp_lt_u32 s34, %d" % (NST - R))
    a("s_cbranch_scc1 %s_lloop" % name)
    for k in range(NST - R, NST - 1):
        left = max(0, (NST - 1) - (k + 2))
        a("s_waitcnt vmcnt(%d)" % (9 * left))
        a("s_barrier")
    a.label("%s_end" % name)
    a("s_endpgm")
    return a.text(), kernel_desc(name, 256, 256), (name, 256, 512, R * SLOT + 10240)

import struct, math
def f32(x): return "0x%08x" % struct.unpack("<I", struct.pack("<f", x))[0]
GC0 = -2.0 * math.sqrt(2.0 / math.pi) * math.log2(math.e)
GC1 = GC0 * 0.044715

def emit_gelu_tile(a, c, dst, T):
    for h in (0, 2):
        a("v_pk_mul_f32 %s, %s, %s" % (vr(T + h, 2), vr(c + h, 2), vr(c + h, 2)))
    for h in (0, 2):
        a("v_mov_b32 v%d, s52" % (T + 4)) if False else None
        a("v_pk_fma_f32 %s, %s, s[54:55], v[%d:%d]" % (vr(T + h, 2), vr(T + h, 2), T + 4, T + 5))
    for h in (0, 2):
        a("v_pk_mul_f32 %s, %s, %s" % (vr(T + h, 2), vr(T + h, 2), vr(c + h, 2)))
    for r in range(4): a("v_exp_f32 v%d, v%d" % (T + r, T + r))
    for h in (0, 2):
        a("v_pk_add_f32 %s, %s, s[56:57]" % (vr(T + h, 2), vr(T + h, 2)))
    a("s_nop 0")
    for r in range(4): a("v_rcp_f32 v%d, v%d" % (T + r, T + r))
    a("s_nop 0")
    for h in (0, 2):
        a("v_pk_mul_f32 %s, %s, %s" % (vr(T + h, 2), vr(T + h, 2), vr(c + h, 2)))
    a("v_cvt_pk_bf16_f32 v%d, v%d, v%d" % (dst, T, T + 1))
    a("v_cvt_pk_bf16_f32 v%d, v%d, v%d" % (dst + 1, T + 2, T + 3))

def emit_xg_reduce(a, regs, t):
    for n, r in enumerate(regs): a("v_mov_b32 v%d, v%d" % (t + n, r))
    a("s_nop 1")
    for n, r in enumerate(regs): a("v_permlane32_swap_b32 v%d, v%d" % (r, t + n))
    a("s_nop 1")
    for n, r in enumerate(regs): a("v_add_f32 v%d, v%d, v%d" % (r, r, t + n))
    for n, r in enumerate(regs): a("v_mov_b32 v%d, v%d" % (t + n, r))
    a("s_nop 1")
    for n, r in enumerate(regs): a("v_permlane16_swap_b32 v%d, v%d" % (r, t + n))
    a("s_nop 1")
    for n, r in enumerate(regs): a("v_add_f32 v%d, v%d, v%d" % (r, r, t + n))

def emit_ln_finish(a, S, Q, N, M, RI, t):
    a("v_mul_f32 v%d, %s, v%d" % (M, f32(1.0 / N), S))
    a("v_mul_f32 v%d, %s, v%d" % (RI, f32(1.0 / N), Q))
    a("v_fma_f32 v%d, -v%d, v%d, v%d" % (RI, M, M, RI))
    a("v_max_f32 v%d, 0, v%d" % (RI, RI))
    rnd_pair(a, t, M, RI)
    a("v_add_f32 v%d, %s, v%d" % (RI, f32(1e-5), RI))
    a("v_cvt_pk_bf16_f32 v%d, v%d, v%d" % (t, RI, RI))
    a("v_lshlrev_b32 v%d, 16, v%d" % (RI, t))
    a("v_sqrt_f32 v%d, v%d" % (RI, RI))
    a("s_nop 0")
    a("v_cvt_pk_bf16_f32 v%d, v%d, v%d" % (t, RI, RI))
    a("v_lshlrev_b32 v%d, 16, v%d" % (RI, t))
    a("v_rcp_f32 v%d, v%d" % (RI, RI))
    a("s_nop 0")

def gen_k1(name="k1_kernel", R=4):
    a = Asm()
    SLOT = 34816; TREG = 16384; FS = 288; NST = 18
    kernel_begin(a, name)
    a("s_cmp_ge_u32 s2, 256")
    a("s_cbranch_scc1 %s_end" % name)
    a("s_load_dwordx2 s[4:5], s[0:1], 56")
    a("s_load_dwordx2 s[6:7], s[0:1], 104")
    a("s_load_dwordx2 s[16:17], s[0:1], 0")
    a("s_load_dwordx2 s[18:19], s[0:1], 96")
    wave_setup(a)
    a("s_and_b32 s20, s2, 7")
    a("s_lshr_b32 s21, s2, 3")
    a("s_and_b32 s22, s20, 1")
    a("s_lshl_b32 s22, s22, 3")
    a("s_and_b32 s23, s21, 7")
    a("s_add_u32 s22, s22, s23")
    a("s_lshr_b32 s23, s20, 1")
    a("s_lshl_b32 s23, s23, 2")
    a("s_lshr_b32 s24, s21, 3")
    a("s_add_u32 s23, s23, s24")
    a("s_waitcnt lgkmcnt(0)")
    srd(a, 8, 4, 576 * 4608 * 2)
    srd(a, 12, 6, WS_BYTES)
    srd(a, 28, 16, 2048 * 576 * 2)
    srd(a, 60, 18, 256)
    stamp_setup(a, 1); stamp(a, 0)
    a("s_cmp_ge_u32 s3, 4")
    a("s_cbranch_scc1 %s_loader" % name)
    ACC = 128; FB0 = 16; FB1 = 52
    vTa = [4, 5]; vTb = [6, 7]; vF = 8; vFh = 9
    bTa = [88, 89]; bTb = [90, 91]; bF = 92; bFh = 93
    Z2P = 200; T = 96
    a("s_lshr_b32 s24, s3, 1")
    a("s_and_b32 s25, s3, 1")
    a("v_and_b32 v3, 15, v2")
    a("v_lshrrev_b32 v10, 4, v2")
    a("v_lshrrev_b32 v11, 1, v3")
    a("v_xor_b32 v10, v10, v11")
    a("v_lshlrev_b32 v10, 4, v10")
    a("v_lshl_add_u32 v10, v3, 7, v10")
    a("s_lshl_b32 s26, s24, 13")
    a("v_add_u32 v10, s26, v10")
    a("s_lshl_b32 s26, s25, 12")
    a("v_add_u32 v%d, s26, v10" % bTa[0])
    a("s_xor_b32 s26, s26, 4096")
    a("v_add_u32 v%d, s26, v10" % bTb[0])
    a("v_xor_b32 v%d, 64, v%d" % (bTa[1], bTa[0]))
    a("v_xor_b32 v%d, 64, v%d" % (bTb[1], bTb[0]))
    a("v_lshrrev_b32 v10, 2, v2")
    a("v_mul_u32_u24 v10, %d, v10" % FS)
    a("v_and_b32 v11, 3, v2")
    a("v_lshl_add_u32 v10, v11, 3, v10")
    a("v_add_u32 v10, %d, v10" % TREG)
    a("s_mul_i32 s26, s25, 160")
    a("v_add_u32 v%d, s26, v10" % bF)
    a("v_add_u32 v%d, 128, v10" % bFh)
    for r, c in ((52, GC0), (53, GC0), (54, GC1), (55, GC1), (56, 1.0), (57, 1.0)):
        a("s_mov_b32 s%d, %s" % (r, f32(c)))
    a("v_mov_b32 v%d, s52" % (T + 4)); a("v_mov_b32 v%d, s52" % (T + 5))
    a("v_mov_b32 v%d, 0x3f803f80" % (T + 6))
    core = Core(a, ACC, FB0, FB1, FS, TREG, vTa, vTb, vF, vFh)
    for d, s_ in ((vTa[0], bTa[0]), (vTb[0], bTb[0]), (vTa[1], bTa[1]), (vTb[1], bTb[1]), (vF, bF), (vFh, bFh)):
        a("v_mov_b32 v%d, v%d" % (d, s_))
    a("s_mov_b32 s27, 0")
    a("s_barrier")
    stamp(a, 1)
    core.prime(0, core.reads(0, 0))
    def iteration(first, last, after_barrier=None):
        a("s_barrier")
        if after_barrier: after_barrier()
        a("s_add_u32 s34, s27, %d" % SLOT)
        a("s_cmp_eq_u32 s34, %d" % (R * SLOT))
        a("s_cselect_b32 s34, 0, s34")
        core.phase(0, core.reads(1, 1), first=first)
        if not last:
            pre = ["v_add_u32 v%d, s34, v%d" % (d, s_) for d, s_ in ((vTa[0], bTa[0]), (vF, bF), (vTb[0], bTb[0]), (vFh, bFh))]
            post = ["v_add_u32 v%d, s34, v%d" % (d, s_) for d, s_ in ((vTa[1], bTa[1]), (vTb[1], bTb[1]))]
            core.phase(1, core.reads(0, 0), pre=pre, extra=post)
        else:
            core.phase(1, [])
        a("s_mov_b32 s27, s34")
    def gpass(p, after_barrier=None):
        iteration(True, False, after_barrier)
        a("s_mov_b32 s33, 1")
        a.label("%s_cloop%d" % (name, p))
        iteration(False, False)
        a("s_add_u32 s33, s33, 1")
        a("s_cmp_lt_u32 s33, 8")
        a("s_cbranch_scc1 %s_cloop%d" % (name, p))
        iteration(False, p == 1)
    gpass(0)
    stamp(a, 2)
    a("s_nop 7")
    S = [104, 106, 108, 110]; Q = [105, 107, 109, 111]
    for tt in range(4):
        a("v_mov_b32 v%d, 0" % S[tt]); a("v_mov_b32 v%d, 0" % Q[tt])
    tiles = [(ft, tt) for ft in range(5) for tt in range(4 if ft < 4 else 2)]
    for (ft, tt) in tiles:
        n = ft * 4 + tt if ft < 4 else 16 + tt
        emit_gelu_tile(a, core.accr(ft, tt), Z2P + 2 * n, T)
        for d in range(2):
            a("v_dot2_f32_bf16 v%d, v%d, v%d, v%d" % (S[tt], Z2P + 2 * n + d, T + 6, S[tt]))
            a("v_dot2_f32_bf16 v%d, v%d, v%d, v%d" % (Q[tt], Z2P + 2 * n + d, Z2P + 2 * n + d, Q[tt]))
    a("s_nop 3")
    emit_xg_reduce(a, S + Q, 112)
    a("v_lshrrev_b32 v10, 4, v2")
    for g in range(1, 4):
        a("v_cmp_eq_u32 vcc, %d, v10" % g)
        a("s_nop 1")
        a("v_cndmask_b32 v%d, v%d, v%d, vcc" % (S[0], S[0], S[g]))
        a("v_cndmask_b32 v%d, v%d, v%d, vcc" % (Q[0], Q[0], Q[g]))
    a("s_lshl_b32 s33, s25, 1")
    a("v_add_u32 v11, s33, v10")
    a("v_and_b32 v11, 3, v11")
    a("v_lshl_add_u32 v11, v11, 4, v3")
    a("v_lshlrev_b32 v11, 8, v11")
    a("s_lshl_b32 s35, s22, 7")
    a("s_lshl_b32 s36, s24, 6")
    a("s_add_u32 s35, s35, s36")
    a("s_lshl_b32 s35, s35, 8")
    a("s_add_u32 s35, s35, 0x%x" % STATS2)
    a("s_lshl_b32 s36, s23, 1")
    a("s_add_u32 s36, s36, s25")
    a("s_lshl_b32 s36, s36, 3")
    a("s_add_u32 s36, s36, s35")
    a("buffer_store_dwordx2 v[%d:%d], v11, s[12:15], s36 offen sc1" % (S[0], Q[0]))
    a("s_waitcnt vmcnt(0)")
    stamp(a, 3)
    def signal():
        a("s_cmp_lg_u32 s3, 0")
        a("s_cbranch_scc1 %s_nosig" % name)
        a("v_mov_b32 v10, 1")
        a("s_lshl_b32 s33, s22, 2")
        a("v_mov_b32 v11, s33")
        a("s_mov_b64 exec, 1")
        a("buffer_atomic_add v10, v11, s[60:63], 0 offen sc1")
        a("s_mov_b64 exec, -1")
        a.label("%s_nosig" % name)
    gpass(1, signal)
    stamp(a, 4)
    a("s_nop 7")
    Z1P = 16
    a("s_lshl_b32 s36, s22, 4")
    a("s_add_u32 s36, s36, s23")
    a("s_lshl_b32 s36, s36, 2")
    a("s_add_u32 s36, s36, s3")
    a("s_mul_i32 s36, s36, 9216")
    a("s_add_u32 s36, s36, 0x%x" % Z1IMG)
    a("v_lshlrev_b32 v10, 4, v2")
    for (ft, tt) in tiles:
        n = ft * 4 + tt if ft < 4 else 16 + tt
        emit_gelu_tile(a, core.accr(ft, tt), Z1P + 2 * n, T)
        if n & 1:
            q = n >> 1
            if q in (4, 8): a("s_add_u32 s36, s36, 4096")
            a("buffer_store_dwordx4 %s, v10, s[12:15], s36 offen offset:%d" % (vr(Z1P + 4 * q), (q & 3) * 1024))
    stamp(a, 5)
    a("s_cmp_lg_u32 s3, 0")
    a("s_cbranch_scc1 %s_nopoll" % name)
    a("s_lshl_b32 s33, s22, 2")
    a("v_mov_b32 v11, s33")
    a.label("%s_poll" % name)
    a("buffer_load_dword v12, v11, s[60:63], 0 offen sc1")
    a("s_waitcnt vmcnt(0)")
    a("v_readfirstlane_b32 s33, v12")
    a("s_cmp_ge_u32 s33, 16")
    a("s_cbranch_scc1 %s_nopoll" % name)
    a("s_sleep 2")
    a("s_branch %s_poll" % name)
    a.label("%s_nopoll" % name)
    a("s_barrier")
    stamp(a, 6)
    a("v_lshrrev_b32 v10, 4, v2")
    a("v_lshlrev_b32 v11, 8, v3")
    a("v_lshl_add_u32 v11, v10, 6, v11")
    a("s_lshl_b32 s33, s25, 13")
    a("s_add_u32 s36, s35, s33")
    a("s_xor_b32 s33, s33, 8192")
    a("s_add_u32 s37, s35, s33")
    a("s_add_u32 s38, s36, 4096")
    a("s_add_u32 s39, s37, 4096")
    PB = 128
    for tt in range(4):
        for q in range(4):
            a("buffer_load_dwordx4 %s, v11, s[12:15], s%d offen offset:%d sc1" % (vr(PB + 16 * tt + 4 * q), (36, 38, 37, 39)[tt], 16 * q))
    a("s_waitcnt vmcnt(0)")
    for tt in range(4):
        b = PB + 16 * tt
        for st in (8, 4, 2):
            for q in range(0, st, 2):
                a("v_pk_add_f32 %s, %s, %s" % (vr(b + q, 2), vr(b + q, 2), vr(b + q + st, 2)))
    emit_xg_reduce(a, [PB + 16 * tt + e for tt in range(4) for e in range(2)], 112)
    MR = [104, 106, 108, 110]
    for tt in range(4):
        b = PB + 16 * tt
        emit_ln_finish(a, b, b + 1, 2304, b + 2, MR[tt], b + 4)
        a("v_mul_f32 v%d, -v%d, v%d" % (MR[tt] + 1, b + 2, MR[tt]))
    for (ft, tt) in tiles:
        n = ft * 4 + tt if ft < 4 else 16 + tt
        for d in range(2):
            z = Z2P + 2 * n + d
            a("v_lshlrev_b32 v%d, 16, v%d" % (T + 2 * d, z))
            a("v_and_b32 v%d, 0xffff0000, v%d" % (T + 2 * d + 1, z))
        for d in range(2):
            a("v_pk_fma_f32 %s, %s, %s, %s op_sel:[0,0,1] op_sel_hi:[1,0,1]" % (vr(T + 2 * d, 2), vr(T + 2 * d, 2), vr(MR[tt], 2), vr(MR[tt], 2)))
        for d in range(2):
            a("v_cvt_pk_bf16_f32 v%d, v%d, v%d" % (Z2P + 2 * n + d, T + 2 * d, T + 2 * d + 1))
    a("v_lshrrev_b32 v11, 2, v2"); a("v_and_b32 v11, 1, v11"); a("v_lshlrev_b32 v11, 4, v11")
    a("v_lshrrev_b32 v12, 3, v2"); a("v_and_b32 v12, 1, v12"); a("v_lshl_add_u32 v11, v12, 2, v11")
    a("v_and_b32 v12, 3, v2"); a("v_add_u32 v11, v11, v12")
    a("v_mul_u32_u24 v11, 288, v11")
    a("v_lshrrev_b32 v12, 1, v10"); a("v_lshl_add_u32 v11, v12, 4, v11")
    a("v_and_b32 v12, 1, v10")
    a("v_lshl_add_u32 v13, v12, 5, v11")
    a("v_mul_u32_u24 v12, 2304, v12")
    a("v_add_u32 v14, v11, v12")
    a("s_lshl_b32 s33, s23, 5")
    a("s_lshl_b32 s36, s22, 1")
    a("s_add_u32 s33, s33, s36")
    a("s_add_u32 s33, s33, s24")
    a("s_mul_i32 s33, s33, 18432")
    if ZIMG: a("s_add_u32 s33, s33, 0x%x" % ZIMG)
    a("s_mul_i32 s36, s25, 9216")
    a("s_add_u32 s37, s33, s36")
    a("s_xor_b32 s36, s36, 9216")
    a("s_add_u32 s38, s33, s36")
    a("s_add_u32 s39, s37, 128")
    a("s_mul_i32 s36, s25, 160")
    a("s_add_u32 s37, s37, s36")
    a("s_add_u32 s38, s38, s36")
    for pr in range(2):
        for tt in range(4):
            A = Z2P + 2 * ((2 * pr) * 4 + tt); B = Z2P + 2 * ((2 * pr + 1) * 4 + tt)
            a("v_mov_b32 v20, v%d" % A); a("v_mov_b32 v21, v%d" % (A + 1))
            a("v_mov_b32 v22, v%d" % B); a("v_mov_b32 v23, v%d" % (B + 1))
            a("s_nop 1")
            a("v_permlane16_swap_b32 v20, v22")
            a("v_permlane16_swap_b32 v21, v23")
            a("s_nop 1")
            a("buffer_store_dwordx4 v[20:23], v13, s[12:15], s%d offen offset:%d" % (37 if tt < 2 else 38, (tt & 1) * 2304 + 64 * pr))
            a("s_nop 1")
    A = Z2P + 32; B = Z2P + 34
    a("v_mov_b32 v20, v%d" % A); a("v_mov_b32 v21, v%d" % (A + 1))
    a("v_mov_b32 v22, v%d" % B); a("v_mov_b32 v23, v%d" % (B + 1))
    a("s_nop 1")
    a("v_permlane16_swap_b32 v20, v22")
    a("v_permlane16_swap_b32 v21, v23")
    a("s_nop 1")
    a("buffer_store_dwordx4 v[20:23], v14, s[12:15], s39 offen")
    stamp(a, 7)
    a("s_waitcnt vmcnt(0)")
    stamp(a, 8)
    a("s_branch %s_end" % name)
    a.label("%s_loader" % name)
    a("s_sub_u32 s3, s3, 4")
    X = 100
    def xr(rg, st): return X + (rg * 9 + st) * 4
    a("v_lshrrev_b32 v3, 3, v2")
    a("v_and_b32 v4, 7, v2")
    a("v_mul_u32_u24 v5, 1152, v3")
    a("v_lshl_add_u32 v5, v4, 4, v5")
    a("s_lshl_b32 s24, s22, 7")
    a("s_lshl_b32 s25, s3, 5")
    a("s_add_u32 s24, s24, s25")
    a("s_mul_i32 s25, s24, 1152")
    for rg in range(4):
        for st in range(9):
            a("buffer_load_dwordx4 %s, v5, s[28:31], s25 offen offset:%d" % (vr(xr(rg, st)), st * 128))
        if rg < 3: a("s_add_u32 s25, s25, 9216")
    for n in range(5):
        if n < 4:
            a("s_lshl_b32 s25, s3, 8")
            a("s_add_u32 s25, s25, %d" % (64 * n))
        else:
            a("s_lshl_b32 s25, s3, 5")
            a("s_add_u32 s25, s25, 1024")
        a("v_add_u32 v6, s25, v2")
        a("v_mul_u32_u24 v7, 3641, v6")
        a("v_lshrrev_b32 v7, 16, v7")
        a("v_mul_u32_u24 v8, 18, v7")
        a("v_sub_u32 v8, v6, v8")
        a("v_and_b32 v9, 35, v7")
        a("v_bfe_u32 v6, v7, 2, 2")
        a("v_lshl_add_u32 v9, v6, 3, v9")
        a("v_bfe_u32 v6, v7, 4, 1")
        a("v_lshl_add_u32 v9, v6, 2, v9")
        a("v_mul_u32_u24 v9, 9216, v9")
        a("v_lshl_add_u32 v%d, v8, 4, v9" % (10 + n))
        if 0 < n < 4: a("v_subrev_u32 v%d, %d, v%d" % (10 + n, n * 1024, 10 + n))
    a("s_mul_i32 s26, s23, 288")
    a("s_add_u32 s27, s26, 4608")
    a("s_lshl_b32 s24, s3, 12")
    a("s_lshl_b32 s25, s3, 9")
    a("s_add_u32 s25, s25, %d" % (TREG + 16384))
    a("s_mov_b32 s33, 0")
    def issueB(g):
        if "nodma" not in DBG:
            a("s_add_u32 s35, s33, s24")
            a("s_add_u32 s35, s35, %d" % TREG)
            a("s_mov_b32 m0, s35")
            a("s_add_u32 s36, s33, s25")
            for n in range(4):
                a("buffer_load_dwordx4 v%d, s[8:11], s27 offen offset:%d lds" % (10 + n, n * 1024))
            a("s_mov_b32 m0, s36")
            a("s_mov_b64 exec, 0xffffffff")
            a("buffer_load_dwordx4 v14, s[8:11], s27 offen lds")
            a("s_mov_b64 exec, -1")
        if g == 8: a("s_mov_b32 s27, s26")
        else: a("s_add_u32 s27, s27, %d" % (64 * 9216))
        a("s_add_u32 s33, s33, %d" % SLOT)
        a("s_cmp_eq_u32 s33, %d" % (R * SLOT))
        a("s_cselect_b32 s33, 0, s33")
    for g in range(R - 1): issueB(g)
    a("v_lshrrev_b32 v6, 4, v2")
    a("v_xor_b32 v7, v4, v6")
    a("v_lshlrev_b32 v7, 4, v7")
    a("v_lshl_add_u32 v7, v3, 7, v7")
    a("v_add_u32 v16, s24, v7")
    a("v_xor_b32 v17, 64, v16")
    a("v_mov_b32 v18, 0x3f803f80")
    SS = [20, 22, 24, 26]
    for rg in range(4):
        a("v_mov_b32 v%d, 0" % SS[rg]); a("v_mov_b32 v%d, 0" % (SS[rg] + 1))
    a("s_waitcnt vmcnt(%d)" % (5 * (R - 1)))
    stamp(a, 1)
    for st in range(9):
        for d in range(4):
            for rg in range(4):
                r = xr(rg, st) + d
                a("v_dot2_f32_bf16 v%d, v%d, v18, v%d" % (SS[rg], r, SS[rg]))
                a("v_dot2_f32_bf16 v%d, v%d, v%d, v%d" % (SS[rg] + 1, r, r, SS[rg] + 1))
    a("s_nop 3")
    for ctl in ("quad_perm:[1,0,3,2]", "quad_perm:[2,3,0,1]", "row_half_mirror"):
        for rg in range(4):
            for e in range(2):
                a("v_add_f32_dpp v%d, v%d, v%d %s row_mask:0xf bank_mask:0xf" % (SS[rg] + e, SS[rg] + e, SS[rg] + e, ctl))
        a("s_nop 1")
    for rg in range(4):
        emit_ln_finish(a, SS[rg], SS[rg] + 1, 576, 28 + 2 * rg, 29 + 2 * rg, 36)
        a("v_mov_b32 v%d, v%d" % (SS[rg], 29 + 2 * rg))
        a("v_mul_f32 v%d, -v%d, v%d" % (SS[rg] + 1, 28 + 2 * rg, 29 + 2 * rg))
    a("s_cmp_lg_u32 s23, 0")
    a("s_cbranch_scc1 %s_nost1" % name)
    a("s_lshl_b32 s35, s22, 7")
    a("s_lshl_b32 s36, s3, 5")
    a("s_add_u32 s35, s35, s36")
    a("s_lshl_b32 s35, s35, 3")
    a("s_add_u32 s35, s35, 0x%x" % STATS1)
    a("v_lshlrev_b32 v6, 3, v3")
    a("v_cmp_eq_u32 vcc, 0, v4")
    a("v_mov_b32 v7, 0x7ffffff0")
    a("v_cndmask_b32 v6, v7, v6, vcc")
    for rg in range(4):
        a("buffer_store_dwordx2 %s, v6, s[12:15], s35 offen offset:%d" % (vr(28 + 2 * rg, 2), 64 * rg))
    a.label("%s_nost1" % name)
    NX = 4 if True else 0
    a("s_mov_b32 s34, 0")
    def writeA(g):
        st = g % 9
        if g < 9:
            for rg in range(4):
                for d in range(4):
                    r = xr(rg, st) + d
                    t = 40 + 2 * ((rg * 4 + d) % 4)
                    a("v_lshlrev_b32 v%d, 16, v%d" % (t, r))
                    a("v_and_b32 v%d, 0xffff0000, v%d" % (t + 1, r))
                    a("v_pk_fma_f32 %s, %s, %s, %s op_sel:[0,0,1] op_sel_hi:[1,0,1]" % (vr(t, 2), vr(t, 2), vr(SS[rg], 2), vr(SS[rg], 2)))
                    a("v_cvt_pk_bf16_f32 v%d, v%d, v%d" % (r, t, t + 1))
        a("v_add_u32 v48, s34, v16")
        a("v_add_u32 v49, s34, v17")
        for rg in range(4):
            a("ds_write_b128 v%d, %s offset:%d" % (48 + (rg & 1), vr(xr(rg, st)), 1024 * rg))
        a("s_add_u32 s34, s34, %d" % SLOT)
        a("s_cmp_eq_u32 s34, %d" % (R * SLOT))
        a("s_cselect_b32 s34, 0, s34")
    writeA(0)
    stamp(a, 2)
    a("s_waitcnt vmcnt(%d) lgkmcnt(0)" % (5 * (R - 2)))
    a("s_barrier")
    issueB(R - 1)
    writeA(1)
    a("s_waitcnt vmcnt(%d) lgkmcnt(0)" % (5 * (R - 2)))
    a("s_barrier")
    writeA(2)
    a("s_waitcnt vmcnt(%d) lgkmcnt(0)" % (5 * (R - 3)))
    a("s_barrier")
    for k in range(1, NST - 1):
        g = k - 1 + R
        if g < NST:
            issueB(g)
            left = R - 3
        else:
            left = max(0, (NST - 1) - (k + 2))
        if k + 2 < NST: writeA(k + 2)
        a("s_waitcnt vmcnt(%d) lgkmcnt(0)" % (5 * left))
        a("s_barrier")
    a.label("%s_end" % name)
    a("s_endpgm")
    return a.text(), kernel_desc(name, 256, 256), (name, 256, 512, R * SLOT)

def gen_k0(name="k0_kernel"):
    a = Asm()
    NKV = 288; NWO = 180
    kernel_begin(a, name)
    a("s_cmp_ge_u32 s2, %d" % (NKV + NWO))
    a("s_cbranch_scc1 %s_end" % name)
    a("s_load_dwordx4 s[4:7], s[0:1], 8")
    a("s_load_dwordx2 s[16:17], s[0:1], 24")
    a("s_load_dwordx2 s[18:19], s[0:1], 80")
    a("s_load_dwordx2 s[20:21], s[0:1], 104")
    a("s_waitcnt lgkmcnt(0)")
    srd(a, 8, 4, 2048 * 576 * 2)
    srd(a, 12, 6, 2048 * 576 * 2)
    srd(a, 24, 16, 576 * 4 * 2)
    srd(a, 28, 18, 2304 * 576 * 2)
    srd(a, 32, 20, WS_BYTES)
    a("s_cmp_ge_u32 s2, %d" % NKV)
    a("s_cbranch_scc1 %s_wot" % name)
    a("s_mul_hi_u32 s36, s2, 0x%x" % ((2**32 + 8) // 9))
    a("s_mul_i32 s37, s36, 9")
    a("s_sub_u32 s37, s2, s37")
    a("v_and_b32 v1, 31, v0")
    a("v_lshrrev_b32 v2, 5, v0")
    a("s_lshl_b32 s38, s36, 6")
    a("v_lshl_add_u32 v3, v2, 3, s38")
    a("s_lshl_b32 s39, s37, 7")
    a("v_lshl_add_u32 v4, v1, 2, s39")
    a("v_mul_u32_u24 v5, 1152, v3")
    a("v_add_u32 v5, v5, v4")
    a("v_subrev_u32 v6, %d, v5" % (3 * 1152))
    a("v_cmp_gt_u32 vcc, 3, v3")
    a("v_mov_b32 v7, 0x7ffffff0")
    a("v_cndmask_b32 v8, v6, v7, vcc")
    for n in range(3):
        a("buffer_load_dword v%d, v8, s[8:11], 0 offen offset:%d" % (16 + n, 1152 * n))
    a("v_add_u32 v9, %d, v5" % (3456))
    a("v_add_u32 v10, %d, v5" % (6912))
    for n in range(8):
        base, off = ((5, 1152 * n) if n < 3 else (9, 1152 * (n - 3)) if n < 6 else (10, 1152 * (n - 6)))
        a("buffer_load_dword v%d, v%d, s[8:11], 0 offen offset:%d" % (19 + n, base, off))
        a("buffer_load_dword v%d, v%d, s[12:15], 0 offen offset:%d" % (32 + n, base, off))
    a("v_lshlrev_b32 v11, 2, v4")
    a("buffer_load_dwordx4 v[44:47], v11, s[24:27], 0 offen")
    a("s_waitcnt vmcnt(0)")
    for ch in range(2):
        for q in range(2):
            a("v_lshlrev_b32 v%d, 16, v%d" % (48 + 4 * ch + 2 * q, 44 + 2 * ch + q))
            a("v_and_b32 v%d, 0xffff0000, v%d" % (49 + 4 * ch + 2 * q, 44 + 2 * ch + q))
    for n in range(11):
        a("v_lshlrev_b32 v%d, 16, v%d" % (60 + n, 16 + n))
        a("v_and_b32 v%d, 0xffff0000, v%d" % (72 + n, 16 + n))
    OUT = 100
    for e in range(8):
        A0, A1, P0, P1, TM = 90, 91, 92, 93, 94
        a("v_mul_f32 v%d, v%d, v%d" % (A0, 60 + e, 48 + 3)); a("v_mul_f32 v%d, v%d, v%d" % (A1, 72 + e, 52 + 3))
        rnd_pair(a, TM, A0, A1)
        for t in range(1, 4):
            a("v_mul_f32 v%d, v%d, v%d" % (P0, 60 + e + t, 48 + 3 - t)); a("v_mul_f32 v%d, v%d, v%d" % (P1, 72 + e + t, 52 + 3 - t))
            rnd_pair(a, TM, P0, P1)
            a("v_add_f32 v%d, v%d, v%d" % (A0, A0, P0)); a("v_add_f32 v%d, v%d, v%d" % (A1, A1, P1))
            rnd_pair(a, TM, A0, A1)
        a("v_lshlrev_b32 v%d, 16, v%d" % (P0, 32 + e)); a("v_and_b32 v%d, 0xffff0000, v%d" % (P1, 32 + e))
        a("v_mul_f32 v%d, v%d, v%d" % (OUT + e, A0, P0)); a("v_mul_f32 v%d, v%d, v%d" % (OUT + 8 + e, A1, P1))
    for ch in range(2):
        for q in range(4):
            a("v_cvt_pk_bf16_f32 v%d, v%d, v%d" % (120 + 4 * ch + q, OUT + 8 * ch + 7 - 2 * q, OUT + 8 * ch + 6 - 2 * q))
    a("v_lshlrev_b32 v12, 11, v4")
    a("v_sub_u32 v13, 2040, v3")
    a("v_lshl_add_u32 v12, v13, 1, v12")
    a("v_add_u32 v13, 4096, v12")
    a("s_mov_b32 s40, 0x%x" % KVT)
    a("buffer_store_dwordx4 v[120:123], v12, s[32:35], s40 offen")
    a("buffer_store_dwordx4 v[124:127], v13, s[32:35], s40 offen")
    a("s_branch %s_end" % name)
    a.label("%s_wot" % name)
    a("s_sub_u32 s36, s2, %d" % NKV)
    a("s_lshl_b32 s36, s36, 10")
    a("s_mov_b32 s37, 0x%x" % ((2**32 + 9) // 10))
    a("s_mov_b32 s38, 0x%x" % ((2**32 + 17) // 18))
    a("s_mov_b32 s40, 0x%x" % WOT)
    for n in range(4):
        a("v_add_u32 v1, s36, v0")
        if n: a("v_add_u32 v1, %d, v1" % (256 * n))
        a("v_mul_hi_u32 v2, v1, s37")
        a("v_mul_u32_u24 v3, 10, v2")
        a("v_sub_u32 v3, v1, v3")
        a("v_lshrrev_b32 v4, 7, v2")
        a("v_and_b32 v5, 127, v2")
        a("v_mul_hi_u32 v6, v4, s38")
        a("v_mul_u32_u24 v7, 18, v6")
        a("v_sub_u32 v7, v4, v7")
        a("v_and_b32 v8, 0x63, v5")
        a("v_bfe_u32 v9, v5, 2, 2")
        a("v_lshl_add_u32 v8, v9, 3, v8")
        a("v_bfe_u32 v9, v5, 4, 1")
        a("v_lshl_add_u32 v8, v9, 2, v8")
        a("v_lshl_add_u32 v8, v7, 7, v8")
        a("v_mul_u32_u24 v8, 1152, v8")
        a("v_lshrrev_b32 v9, 1, v6")
        a("v_mul_u32_u24 v9, 288, v9")
        a("v_add_u32 v8, v8, v9")
        a("v_lshl_add_u32 v8, v3, 4, v8")
        a("v_and_b32 v9, 1, v6")
        a("v_mul_u32_u24 v9, 160, v9")
        a("v_cmp_gt_u32 vcc, 8, v3")
        a("s_nop 1")
        a("v_cndmask_b32 v9, 0, v9, vcc")
        a("v_add_u32 v8, v8, v9")
        a("buffer_load_dwordx4 v[%d:%d], v8, s[28:31], 0 offen" % (16 + 4 * n, 19 + 4 * n))
        a("v_lshlrev_b32 v%d, 4, v1" % (10 + n))
    for n in range(4):
        a("s_waitcnt vmcnt(%d)" % (3 - n + n))
    a("s_waitcnt vmcnt(0)")
    for n in range(4):
        a("buffer_store_dwordx4 v[%d:%d], v%d, s[32:35], s40 offen" % (16 + 4 * n, 19 + 4 * n, 10 + n))
    a.label("%s_end" % name)
    a("s_endpgm")
    return a.text(), kernel_desc(name, 128, 128), (name, NKV + NWO, 256, 0)

def gen_kc(name="kc_kernel"):
    a = Asm()
    EB = 0; OB = 4160 + 64; UB = 8448
    LDSB = UB + 4096 + 512
    kernel_begin(a, name)
    a("s_cmp_ge_u32 s2, 576")
    a("s_cbranch_scc1 %s_end" % name)
    a("s_mov_b32 s60, 0")
    a("s_load_dwordx4 s[4:7], s[0:1], 32")
    a("s_load_dwordx2 s[20:21], s[0:1], 104")
    a("s_waitcnt lgkmcnt(0)")
    srd(a, 8, 4, 576 * 2048 * 2)
    srd(a, 12, 6, 576 * 2)
    srd(a, 32, 20, WS_BYTES)
    a("s_lshl_b32 s36, s2, 12")
    a("v_lshlrev_b32 v1, 4, v0")
    for n in range(4):
        a("buffer_load_dwordx4 v[%d:%d], v1, s[8:11], s36 offen offset:%d" % (16 + 5 * n + (n & 1) * 0, 19 + 5 * n + (n & 1) * 0, 1024 * n)) if False else None
    H = [16, 24, 32, 40]
    for n in range(4):
        a("buffer_load_dwordx4 v[%d:%d], v1, s[8:11], s36 offen offset:%d" % (H[n], H[n] + 3, 1024 * n))
    a("v_add_u32 v2, 16, v1")
    for n in range(4):
        a("buffer_load_dword v%d, v2, s[8:11], s36 offen offset:%d" % (H[n] + 4, 1024 * n))
    a("s_add_u32 s37, s36, 0x%x" % KVT)
    a("s_add_u32 s61, s60, %d" % UB)
    a("s_mov_b32 m0, s61")
    a("v_add_u32 v12, s60, v1")
    for n in range(4):
        a("buffer_load_dwordx4 v1, s[32:35], s37 offen offset:%d lds" % (1024 * n))
    a("s_lshl_b32 s38, s2, 1")
    a("v_mov_b32 v3, s38")
    a("buffer_load_ushort v4, v3, s[12:15], 0 offen")
    a("v_mov_b32 v8, 0"); a("v_mov_b32 v9, 0"); a("v_mov_b32 v10, 0"); a("v_mov_b32 v11, 0")
    a("v_lshlrev_b32 v5, 3, v0")
    a("v_add_u32 v5, s60, v5")
    a("ds_write_b64 v5, v[8:9] offset:%d" % (UB + 4096))
    a("s_mov_b64 exec, 3")
    a("ds_write_b128 v12, v[8:11] offset:%d" % EB)
    a("ds_write_b128 v12, v[8:11] offset:%d" % OB)
    a("s_mov_b64 exec, -1")
    a("s_waitcnt vmcnt(0) lgkmcnt(0)")
    for n in range(4):
        a("ds_write_b128 v12, v[%d:%d] offset:%d" % (H[n], H[n] + 3, EB + 32 + 1024 * n))
        for q in range(4):
            a("v_alignbit_b32 v%d, v%d, v%d, 16" % (48 + q, H[n] + q + 1, H[n] + q))
        a("ds_write_b128 v12, v[48:51] offset:%d" % (OB + 32 + 1024 * n))
        a("s_nop 1")
    a("s_mov_b64 exec, 1")
    a("v_mov_b32 v5, s60")
    a("ds_write_b16 v5, v%d offset:%d" % (H[0], OB + 30))
    a("s_mov_b64 exec, -1")
    a("v_and_b32 v5, 15, v0")
    a("v_lshrrev_b32 v6, 4, v0")
    a("v_lshl_add_u32 v7, v6, 3, v5")
    a("v_and_b32 v8, 1, v5")
    a("v_add_u32 v7, v7, v8")
    a("v_lshlrev_b32 v7, 1, v7")
    a("v_cmp_eq_u32 vcc, 0, v8")
    a("v_mov_b32 v9, %d" % EB); a("v_mov_b32 v10, %d" % OB)
    a("v_cndmask_b32 v9, v9, v10, vcc")
    a("v_add_u32 v7, v7, v9")
    a("v_add_u32 v7, s60, v7")
    AA = 52
    for jj in range(8):
        a("v_add_u32 v%d, %d, v7" % (AA + jj, 512 * jj))
    a("v_lshlrev_b32 v9, 4, v6")
    a("v_lshlrev_b32 v10, 5, v5")
    a("v_sub_u32 v9, v9, v10")
    a("v_add_u32 v60, %d, v9" % (UB + 480))
    a("v_add_u32 v60, s60, v60")
    a("s_waitcnt lgkmcnt(0)")
    ACC = 64; AF = [96, 160]; BF = [128, 192]
    trk = LdsTracker(a)
    def reads(k0, buf):
        L = []
        for q in range(8):
            r = BF[buf] + 4 * q
            L.append(("ds_read_b128 %s, v60 offset:%d" % (vr(r), 3584 - 512 * q + 64 * k0), range(r, r + 4)))
            r = AF[buf] + 4 * q
            L.append(("ds_read2_b32 %s, v%d offset0:%d offset1:%d" % (vr(r, 2), AA + q, 16 * k0, 16 * k0 + 1), range(r, r + 2)))
            L.append(("ds_read2_b32 %s, v%d offset0:%d offset1:%d" % (vr(r + 2, 2), AA + q, 16 * k0 + 2, 16 * k0 + 3), range(r + 2, r + 4)))
        return L
    for t, r in reads(0, 0):
        a(t); trk.issue(r)
        if len(trk.out) >= 12: trk.drain()
    for k0 in range(8):
        buf = k0 & 1
        nxt = reads(k0 + 1, 1 - buf) if k0 < 7 else []
        ms = sorted([(max(jj, n - jj), n, jj) for n in range(8) for jj in range(n + 1)])
        for (_, n, jj) in ms:
            A = AF[buf] + 4 * jj; B = BF[buf] + 4 * (n - jj); c = ACC + 4 * n
            trk.need(list(range(A, A + 4)) + list(range(B, B + 4)))
            first = (k0 == 0 and jj == [m[2] for m in ms if m[1] == n][0])
            a("v_mfma_f32_16x16x32_bf16 %s, %s, %s, %s" % (vr(c), vr(A), vr(B), "0" if first else vr(c)))
            if nxt and len(trk.out) < 14:
                t, r = nxt.pop(0); a(t); trk.issue(r)
        for t, r in nxt:
            if len(trk.out) >= 14: trk.drain()
            a(t); trk.issue(r)
    a("v_lshlrev_b32 v9, 5, v5")
    a("v_lshl_add_u32 v9, v6, 3, v9")
    a("v_sub_u32 v10, %d, v9" % (UB + 4088 - 3584))
    a("v_add_u32 v10, s60, v10")
    for n in range(8):
        a("ds_read_b64 %s, v10 offset:%d" % (vr(96 + 2 * n, 2), 3584 - 512 * n))
    a("v_lshlrev_b32 v4, 16, v4")
    a("s_add_u32 s37, s36, 0x%x" % YT)
    a("s_waitcnt lgkmcnt(0)")
    a("s_nop 4")
    for n in range(8):
        c = ACC + 4 * n; U = 96 + 2 * n; T = 120
        a("v_and_b32 v%d, 0xffff0000, v%d" % (T + 0, U + 1)); a("v_lshlrev_b32 v%d, 16, v%d" % (T + 1, U + 1))
        a("v_and_b32 v%d, 0xffff0000, v%d" % (T + 2, U)); a("v_lshlrev_b32 v%d, 16, v%d" % (T + 3, U))
        for r in range(4): a("v_mul_f32 v%d, v%d, v4" % (T + r, T + r))
        rnd_pair(a, T + 4, T, T + 1); rnd_pair(a, T + 4, T + 2, T + 3)
        rnd_pair(a, T + 4, c, c + 1); rnd_pair(a, T + 4, c + 2, c + 3)
        for r in range(4): a("v_add_f32 v%d, v%d, v%d" % (c + r, c + r, T + r))
        a("v_cvt_pk_bf16_f32 v%d, v%d, v%d" % (U, c, c + 1))
        a("v_cvt_pk_bf16_f32 v%d, v%d, v%d" % (U + 1, c + 2, c + 3))
        a("buffer_store_dwordx2 %s, v9, s[32:35], s37 offen offset:%d" % (vr(U, 2), 512 * n))
    a.label("%s_end" % name)
    a("s_endpgm")
    return a.text(), kernel_desc(name, 224, 224), (name, 576, 64, LDSB)

if __name__ == "__main__":
    which = sys.argv[1]
    out = sys.argv[2]
    if len(sys.argv) > 3: DBG.update(sys.argv[3].split(","))
    ks = []
    for w in which.split(","):
        ks.append(globals()["gen_" + w]())
    open(out, "w").write(assemble_file([k[2] for k in ks], "".join(k[0] for k in ks), [k[1] for k in ks]))
```

```python
import sys, copy
from asmgen import *
import gen as G
import gen2 as G2
from gen import (ZIMG, Z1IMG, PIMG, WOT, KVT, YT, STATS2, STATS1, WS_BYTES, DBG, LdsTracker, vr, stamp, stamp_setup,
                 rnd_pair, f32, emit_xg_reduce, emit_ln_finish)
from gen2 import VmTracker, TILES, tidx, emit_fold_gelu, gelu_consts, seg_end, SPIN_MAX

def emit_kv_loads(a, KD=16, VD=32, SD=44, K56=56, K57=57):
    a("s_mul_hi_u32 s36, s41, 0x%x" % ((2**32 + 8) // 9))
    a("s_mul_i32 s37, s36, 9")
    a("s_sub_u32 s37, s41, s37")
    a("v_and_b32 v1, 31, v0")
    a("v_lshrrev_b32 v10, 5, v0")
    a("s_lshl_b32 s38, s36, 6")
    a("v_lshl_add_u32 v%d, v10, 3, s38" % K56)
    a("s_lshl_b32 s39, s37, 7")
    a("v_lshl_add_u32 v%d, v1, 2, s39" % K57)
    a("v_mul_u32_u24 v5, 1152, v%d" % K56)
    a("v_add_u32 v5, v5, v%d" % K57)
    a("v_subrev_u32 v6, %d, v5" % (3 * 1152))
    a("v_cmp_gt_u32 vcc, 3, v%d" % K56)
    a("v_mov_b32 v7, 0x7ffffff0")
    a("v_add_u32 v9, %d, v5" % 3456)
    a("v_cndmask_b32 v8, v6, v7, vcc")
    a("v_add_u32 v10, %d, v5" % 6912)
    for n in range(3):
        a("buffer_load_dword v%d, v8, s[64:67], 0 offen offset:%d" % (KD + n, 1152 * n))
    for n in range(8):
        base, off = ((5, 1152 * n) if n < 3 else (9, 1152 * (n - 3)) if n < 6 else (10, 1152 * (n - 6)))
        a("buffer_load_dword v%d, v%d, s[64:67], 0 offen offset:%d" % (KD + 3 + n, base, off))
        a("buffer_load_dword v%d, v%d, s[68:71], 0 offen offset:%d" % (VD + n, base, off))
    a("v_lshlrev_b32 v11, 2, v%d" % K57)
    a("buffer_load_dwordx4 %s, v11, s[72:75], 0 offen" % vr(SD))

def emit_kv_compute(a, wait=True, store=True):
    if wait: a("s_waitcnt vmcnt(0)")
    for ch in range(2):
        for q in range(2):
            a("v_lshlrev_b32 v%d, 16, v%d" % (48 + 4 * ch + 2 * q, 44 + 2 * ch + q))
            a("v_and_b32 v%d, 0xffff0000, v%d" % (49 + 4 * ch + 2 * q, 44 + 2 * ch + q))
    for n in range(11):
        a("v_lshlrev_b32 v%d, 16, v%d" % (60 + n, 16 + n))
        a("v_and_b32 v%d, 0xffff0000, v%d" % (72 + n, 16 + n))
    OUT = 100
    for e0 in range(0, 8, 2):
        es = (e0, e0 + 1)
        R_ = {e: (84 + 6 * (e & 1)) for e in es}
        for e in es:
            A0 = R_[e]
            a("v_mul_f32 v%d, v%d, v%d" % (A0, 60 + e, 51)); a("v_mul_f32 v%d, v%d, v%d" % (A0 + 1, 72 + e, 55))
        for e in es: rnd_pair(a, R_[e] + 4, R_[e], R_[e] + 1)
        for t in range(1, 4):
            for e in es:
                A0 = R_[e]
                a("v_mul_f32 v%d, v%d, v%d" % (A0 + 2, 60 + e + t, 51 - t)); a("v_mul_f32 v%d, v%d, v%d" % (A0 + 3, 72 + e + t, 55 - t))
            for e in es: rnd_pair(a, R_[e] + 4, R_[e] + 2, R_[e] + 3)
            for e in es:
                A0 = R_[e]
                a("v_add_f32 v%d, v%d, v%d" % (A0, A0, A0 + 2)); a("v_add_f32 v%d, v%d, v%d" % (A0 + 1, A0 + 1, A0 + 3))
            for e in es: rnd_pair(a, R_[e] + 4, R_[e], R_[e] + 1)
        for e in es:
            A0 = R_[e]
            a("v_lshlrev_b32 v%d, 16, v%d" % (A0 + 2, 32 + e)); a("v_and_b32 v%d, 0xffff0000, v%d" % (A0 + 3, 32 + e))
            a("v_mul_f32 v%d, v%d, v%d" % (OUT + e, A0, A0 + 2)); a("v_mul_f32 v%d, v%d, v%d" % (OUT + 8 + e, A0 + 1, A0 + 3))
    for ch in range(2):
        for q in range(4):
            a("v_cvt_pk_bf16_f32 v%d, v%d, v%d" % (120 + 4 * ch + q, OUT + 8 * ch + 7 - 2 * q, OUT + 8 * ch + 6 - 2 * q))
    a("v_lshlrev_b32 v12, 11, v57")
    a("v_sub_u32 v13, 2040, v56")
    a("v_lshl_add_u32 v12, v13, 1, v12")
    a("v_add_u32 v13, 4096, v12")
    if not store: return
    a("s_mov_b32 s39, 0x%x" % KVT)
    a("buffer_store_dwordx4 v[120:123], v12, s[12:15], s39 offen")
    a("buffer_store_dwordx4 v[124:127], v13, s[12:15], s39 offen")

def emit_wot_loads(a, WD=128, WO=140, PER=360, NL=2):
    a("s_mul_i32 s36, s42, %d" % PER)
    a("s_mov_b32 s37, 0x%x" % ((2**32 + 9) // 10))
    a("s_mov_b32 s38, 0x%x" % ((2**32 + 17) // 18))
    a("s_mov_b32 s40, 0x%x" % WOT)
    for n in range(NL):
        a("v_add_u32 v16, s36, v0")
        if n: a("v_add_u32 v16, %d, v16" % (256 * n))
        a("v_mul_hi_u32 v17, v16, s37")
        a("v_mul_u32_u24 v18, 10, v17")
        a("v_sub_u32 v18, v16, v18")
        a("v_lshrrev_b32 v19, 7, v17")
        a("v_and_b32 v20, 127, v17")
        a("v_mul_hi_u32 v21, v19, s38")
        a("v_mul_u32_u24 v22, 18, v21")
        a("v_sub_u32 v22, v19, v22")
        a("v_and_b32 v23, 0x63, v20")
        a("v_bfe_u32 v24, v20, 2, 2")
        a("v_lshl_add_u32 v23, v24, 3, v23")
        a("v_bfe_u32 v24, v20, 4, 1")
        a("v_lshl_add_u32 v23, v24, 2, v23")
        a("v_lshl_add_u32 v23, v22, 7, v23")
        a("v_mul_u32_u24 v23, 1152, v23")
        a("v_lshrrev_b32 v24, 1, v21")
        a("v_mul_u32_u24 v24, 288, v24")
        a("v_add_u32 v23, v23, v24")
        a("v_lshl_add_u32 v23, v18, 4, v23")
        a("v_and_b32 v24, 1, v21")
        a("v_cmp_gt_u32 vcc, 8, v18")
        a("v_mul_u32_u24 v24, 160, v24")
        a("v_lshlrev_b32 v%d, 4, v16" % (WO + n))
        a("v_cndmask_b32 v24, 0, v24, vcc")
        a("v_add_u32 v23, v23, v24")
        if n == NL - 1:
            a("v_cmp_gt_u32 vcc, %d, v0" % (PER - 256 * (NL - 1)))
            a("v_mov_b32 v24, 0x7ffffff0")
            a("s_nop 0")
            a("v_cndmask_b32 v23, v24, v23, vcc")
            a("v_cndmask_b32 v%d, v24, v%d, vcc" % (WO + n, WO + n))
        a("buffer_load_dwordx4 %s, v23, s[76:79], 0 offen" % vr(WD + 4 * n))

CJ_EB = 0; CJ_OB = 4160; CJ_UB = 8320; CJ_SIZE = 12928
def seg_end2(a, name):
    return

CJ_H = [56, 64, 72, 80]; CJ_U = 224
def emit_conv_loads(a, kvpol=""):
    a("s_lshl_b32 s36, s43, 12")
    a("v_lshlrev_b32 v4, 4, v2")
    for n in range(4):
        a("buffer_load_dwordx4 %s, v4, s[16:19], s36 offen offset:%d" % (vr(CJ_H[n]), 1024 * n))
    a("v_add_u32 v5, 16, v4")
    for n in range(4):
        a("buffer_load_dword v%d, v5, s[16:19], s36 offen offset:%d" % (CJ_H[n] + 4, 1024 * n))
    a("s_add_u32 s37, s36, 0x%x" % KVT)
    for n in range(4):
        a("buffer_load_dwordx4 %s, v4, s[12:15], s37 offen offset:%d%s" % (vr(CJ_U + 4 * n), 1024 * n, kvpol))
    a("s_lshl_b32 s37, s43, 1")
    a("v_mov_b32 v6, s37")
    a("buffer_load_ushort v240, v6, s[84:87], 0 offen")
    return 13

def emit_conv_job(a, name, mid=None):
    EB, OB, UB = CJ_EB, CJ_OB, CJ_UB
    H = CJ_H
    a("v_lshlrev_b32 v4, 4, v2")
    a("v_add_u32 v12, s27, v4")
    for r in range(8, 12): a("v_mov_b32 v%d, 0" % r)
    a("v_lshlrev_b32 v5, 3, v2")
    a("v_add_u32 v5, s27, v5")
    a("ds_write_b64 v5, v[8:9] offset:%d" % (UB + 4096))
    a("s_mov_b64 exec, 3")
    a("ds_write_b128 v12, v[8:11] offset:%d" % EB)
    a("ds_write_b128 v12, v[8:11] offset:%d" % OB)
    a("s_mov_b64 exec, -1")
    for n in range(4):
        a("ds_write_b128 v12, %s offset:%d" % (vr(CJ_U + 4 * n), UB + 1024 * n))
    a("s_waitcnt lgkmcnt(3)")
    for n in range(4):
        a("ds_write_b128 v12, %s offset:%d" % (vr(H[n]), EB + 32 + 1024 * n))
        for q in range(4):
            a("v_alignbit_b32 v%d, v%d, v%d, 16" % (88 + 4 * (n & 1) + q, H[n] + q + 1, H[n] + q))
        a("ds_write_b128 v12, %s offset:%d" % (vr(88 + 4 * (n & 1)), OB + 32 + 1024 * n))
    a("s_mov_b64 exec, 1")
    a("v_mov_b32 v5, s27")
    a("ds_write_b16 v5, v%d offset:%d" % (H[0], OB + 30))
    a("s_mov_b64 exec, -1")
    if mid: mid()
    a("v_and_b32 v5, 15, v2")
    a("v_lshrrev_b32 v6, 4, v2")
    a("v_lshl_add_u32 v7, v6, 3, v5")
    a("v_and_b32 v8, 1, v5")
    a("v_add_u32 v7, v7, v8")
    a("v_lshlrev_b32 v7, 1, v7")
    a("v_cmp_eq_u32 vcc, 0, v8")
    a("v_mov_b32 v9, %d" % EB); a("v_mov_b32 v10, %d" % OB)
    a("v_cndmask_b32 v9, v9, v10, vcc")
    a("v_add3_u32 v7, v7, v9, s27")
    AA = 52
    for q in range(4):
        a("v_add_u32 v%d, %d, v7" % (AA + q, 1024 * q))
    a("v_lshlrev_b32 v9, 4, v6")
    a("v_lshlrev_b32 v10, 5, v5")
    a("v_sub_u32 v9, v9, v10")
    a("s_add_u32 s38, s27, %d" % (UB + 480))
    a("v_add_u32 v11, s38, v9")
    a("v_lshlrev_b32 v9, 5, v5")
    a("v_lshl_add_u32 v9, v6, 3, v9")
    a("s_add_u32 s38, s27, %d" % (UB + 4088 - 3584))
    a("v_sub_u32 v10, s38, v9")
    ACC = 96; AF = [112, 176]; BF = [144, 208]
    for r in range(ACC, ACC + 16): a("v_mov_b32 v%d, 0" % r)
    a("v_lshlrev_b32 v13, 16, v240")
    a("s_lshl_b32 s36, s43, 12")
    a("s_add_u32 s37, s36, 0x%x" % YT)
    a("s_mov_b32 s33, 0")
    a("s_waitcnt lgkmcnt(0)")
    stamp(a, 3)
    a("s_cmp_eq_u32 s26, 1")
    a("s_cbranch_scc1 %s_cj1" % name)
    for hv, tiles in enumerate(([7, 6, 1, 0], [5, 4, 3, 2])):
        if hv: a.label("%s_cj1" % name)
        nq = max(tiles) + 1
        trk = LdsTracker(a)
        def room():
            if len(trk.out) >= 13:
                a("s_waitcnt lgkmcnt(8)"); trk.out = trk.out[-8:]
        def reads(kk, buf):
            L = []
            for q in range(nq):
                r = BF[buf] + 4 * q
                L.append(("ds_read_b128 %s, v11 offset:%d" % (vr(r), 3584 - 512 * q + 64 * kk), range(r, r + 4)))
                r = AF[buf] + 4 * q
                o = 128 * (q & 1) + 16 * kk
                L.append(("ds_read2_b32 %s, v%d offset0:%d offset1:%d" % (vr(r, 2), AA + (q >> 1), o, o + 1), range(r, r + 2)))
                L.append(("ds_read2_b32 %s, v%d offset0:%d offset1:%d" % (vr(r + 2, 2), AA + (q >> 1), o + 2, o + 3), range(r + 2, r + 4)))
            return L
        for t, r in reads(0, 0):
            room(); a(t); trk.issue(r)
        trk.drain()
        ms = sorted([(max(jj, n - jj), ti, n, jj) for ti, n in enumerate(tiles) for jj in range(n + 1)])
        def step(buf, kk_next, upd):
            nxt = [("x", u) for u in upd] + [("r", x) for x in reads(kk_next, 1 - buf)]
            tot = len(nxt); done = 0
            for mi, (_, ti, n, jj) in enumerate(ms):
                A = AF[buf] + 4 * jj; B = BF[buf] + 4 * (n - jj); c = ACC + 4 * ti
                trk.need(list(range(A, A + 4)) + list(range(B, B + 4)))
                a("v_mfma_f32_16x16x32_bf16 %s, %s, %s, %s" % (vr(c), vr(A), vr(B), vr(c)))
                want = (tot * (mi + 1) + 15) // 16
                while nxt and done < want:
                    k, t = nxt.pop(0); done += 1
                    if k == "x": a(t)
                    else:
                        room(); a(t[0]); trk.issue(t[1])
        upd = ["v_add_u32 v11, 128, v11"] + ["v_add_u32 v%d, 128, v%d" % (AA + q, AA + q) for q in range((nq + 1) // 2)] + ["s_add_u32 s33, s33, 1"]
        a.label("%s_cjl%d" % (name, hv))
        lb = len(a.lines)
        for it_ in range(8):
            st = copy.deepcopy(trk.out)
            step(0, 1, list([])); step(1, 0, list(upd))
            a("s_waitcnt lgkmcnt(6)"); trk.out = trk.out[-6:]
            if [sorted(x) for x in trk.out] == [sorted(x) for x in st]: break
            del a.lines[lb:]
        else:
            assert False, "no fixed point"
        a("s_cmp_lt_u32 s33, 4")
        a("s_cbranch_scc1 %s_cjl%d" % (name, hv))
        trk.drain()
        stamp(a, 4 + 2 * hv)
        for ti, n in enumerate(tiles):
            a("ds_read_b64 %s, v10 offset:%d" % (vr(112 + 2 * ti, 2), 3584 - 512 * n))
        a("s_waitcnt lgkmcnt(0)")
        for ti, n in enumerate(tiles):
            c = ACC + 4 * ti; U = 112 + 2 * ti; T = 120
            a("v_and_b32 v%d, 0xffff0000, v%d" % (T + 0, U + 1)); a("v_lshlrev_b32 v%d, 16, v%d" % (T + 1, U + 1))
            a("v_and_b32 v%d, 0xffff0000, v%d" % (T + 2, U)); a("v_lshlrev_b32 v%d, 16, v%d" % (T + 3, U))
            for r in range(4): a("v_mul_f32 v%d, v%d, v13" % (T + r, T + r))
            rnd_pair(a, T + 4, T, T + 1); rnd_pair(a, T + 4, T + 2, T + 3)
            rnd_pair(a, T + 4, c, c + 1); rnd_pair(a, T + 4, c + 2, c + 3)
            for r in range(4): a("v_add_f32 v%d, v%d, v%d" % (c + r, c + r, T + r))
            a("v_cvt_pk_bf16_f32 v%d, v%d, v%d" % (U, c, c + 1))
            a("v_cvt_pk_bf16_f32 v%d, v%d, v%d" % (U + 1, c + 2, c + 3))
            a("buffer_store_dwordx2 %s, v9, s[12:15], s37 offen offset:%d" % (vr(U, 2), 512 * n))
        stamp(a, 5 + 2 * hv)
        if hv == 0:
            a("s_cmp_eq_u32 s26, 0")
            a("s_cbranch_scc1 %s_cjdone" % name)
            a("v_subrev_u32 v11, 512, v11")
            for q in range(4): a("v_subrev_u32 v%d, 512, v%d" % (AA + q, AA + q))
            for r in range(ACC, ACC + 16): a("v_mov_b32 v%d, 0" % r)
            a("s_mov_b32 s33, 0")
    a.label("%s_cjdone" % name)

def gen_k1e(name="k1_kernel"):
    a = Asm()
    TS = 16384; NT = 3; TB0 = 4096; FB_ = TB0 + NT * TS; FSL = 18432; NF = 6; FS = 576; NK = 18
    LDSB = FB_ + NF * FSL; RST = 0; CSO = 1024; CJB = TB0 + 4 * 18432
    kernel_begin(a, name)
    a("s_load_dwordx2 s[80:81], s[0:1], 0")
    a("s_load_dwordx2 s[4:5], s[0:1], 56")
    a("s_cmp_ge_u32 s2, 256")
    a("s_cbranch_scc1 %s_end" % name)
    a("v_lshrrev_b32 v1, 6, v0")
    a("v_and_b32 v2, 63, v0")
    a("v_readfirstlane_b32 s3, v1")
    a("s_and_b32 s20, s2, 7")
    a("s_lshr_b32 s21, s2, 3")
    a("s_and_b32 s22, s20, 1")
    a("s_lshl_b32 s22, s22, 3")
    a("s_and_b32 s23, s21, 7")
    a("s_add_u32 s22, s22, s23")
    a("s_lshr_b32 s21, s21, 3")
    a("s_and_b32 s23, s20, 6")
    a("s_and_b32 s24, s21, 1")
    a("s_add_u32 s23, s23, s24")
    a("s_lshr_b32 s21, s21, 1")
    a("s_mov_b32 s99, 0")
    a("s_mov_b64 s[96:97], -1")
    a("s_cmp_lt_u32 s3, 4")
    a("s_cbranch_scc1 %s_consumer" % name)
    a("s_setprio 3")
    a("s_sub_u32 s3, s3, 4")
    a("v_lshrrev_b32 v3, 3, v2")
    a("v_and_b32 v4, 7, v2")
    VT = 16; VF = 20
    a("s_lshl_b32 s24, s3, 5")
    a("v_add_u32 v5, s24, v3")
    a("v_lshrrev_b32 v7, 4, v2")
    a("v_xor_b32 v7, v7, v4")
    a("v_mul_u32_u24 v6, 1152, v5")
    a("v_lshl_add_u32 v%d, v7, 4, v6" % VT)
    a("v_xor_b32 v%d, 64, v%d" % (VT + 1, VT))
    a("v_add_u32 v%d, %d, v%d" % (VT + 1, 9216 - 1024, VT + 1))
    a("v_add_u32 v%d, %d, v%d" % (VT + 2, 2 * (9216 - 1024), VT))
    a("v_add_u32 v%d, %d, v%d" % (VT + 3, 2 * (9216 - 1024), VT + 1))
    a("s_mul_i32 s26, s22, %d" % (128 * 1152))
    a("s_lshl_b32 s24, s3, 12")
    a("s_add_u32 s24, s24, %d" % TB0)
    a("s_mov_b32 s33, 0")
    a("s_waitcnt lgkmcnt(0)")
    srd(a, 28, 80, 2048 * 576 * 2)
    vm = VmTracker(a)
    def issueT(m):
        a("s_add_u32 s35, s33, s24")
        a("s_mov_b32 m0, s35")
        a("s_add_u32 s33, s33, %d" % TS)
        for n in range(4):
            if "nodma" not in DBG: a("buffer_load_dwordx4 v%d, s[28:31], s26 offen offset:%d lds" % (VT + n, 1024 * n))
        a("s_add_u32 s26, s26, 128")
        a("s_cmp_eq_u32 s33, %d" % (NT * TS))
        a("s_cselect_b32 s33, 0, s33")
        vm.issue("T%d" % m, 4)
    issueT(0)
    srd(a, 8, 4, 576 * 4608 * 2)
    for n in range(5):
        if n: a("v_add_u32 v6, %d, v2" % (64 * n))
        src = "v6" if n else "v2"
        a("v_mul_u32_u24 v7, 1821, %s" % src)
        a("v_lshrrev_b32 v7, 16, v7")
        a("v_mul_u32_u24 v8, 36, v7")
        a("v_sub_u32 v8, %s, v8" % src)
        a("v_bfe_u32 v9, v7, 2, 1")
        a("v_lshlrev_b32 v6, 1, v9")
        a("v_xor_b32 v8, v8, v6")
        a("v_and_b32 v7, 3, v7")
        a("v_lshl_add_u32 v7, v9, 3, v7")
        a("v_mul_u32_u24 v7, 9216, v7")
        a("v_lshl_add_u32 v%d, v8, 4, v7" % (VF + n))
        if 0 < n < 4: a("v_subrev_u32 v%d, %d, v%d" % (VF + n, 1024 * n, VF + n))
    a("s_and_b32 s36, s3, 1")
    a("s_lshl_b32 s36, s36, 4")
    a("s_lshr_b32 s37, s3, 1")
    a("s_lshl_b32 s37, s37, 2")
    a("s_add_u32 s36, s36, s37")
    a("s_mul_i32 s27, s36, 9216")
    a("s_mul_i32 s36, s23, 576")
    a("s_add_u32 s27, s27, s36")
    a("s_cmp_eq_u32 s21, 0")
    a("s_cselect_b32 s36, 4608, 0")
    a("s_add_u32 s27, s27, s36")
    a("s_mul_i32 s25, s3, 4608")
    a("s_add_u32 s25, s25, %d" % FB_)
    a("s_mov_b32 s34, 0")
    def issueF(k):
        a("s_add_u32 s35, s34, s25")
        a("s_mov_b32 m0, s35")
        a("s_add_u32 s36, s35, 4096")
        for n in range(4):
            if "nodma" not in DBG: a("buffer_load_dwordx4 v%d, s[8:11], s27 offen offset:%d lds" % (VF + n, 1024 * n))
        a("s_mov_b32 m0, s36")
        a("s_mov_b64 exec, 0xffffffff")
        if "nodma" not in DBG: a("buffer_load_dwordx4 v%d, s[8:11], s27 offen lds" % (VF + 4))
        a("s_mov_b64 exec, -1")
        a("s_add_u32 s27, s27, %d" % (32 * 9216))
        a("s_add_u32 s34, s34, %d" % FSL)
        a("s_cmp_eq_u32 s34, %d" % (NF * FSL))
        a("s_cselect_b32 s34, 0, s34")
        vm.issue("F%d" % k, 5)
    issueF(0); issueF(1)
    def other_setup():
        a("s_load_dwordx2 s[6:7], s[0:1], 104")
        a("s_load_dwordx2 s[18:19], s[0:1], 96")
        a("s_load_dwordx4 s[88:91], s[0:1], 32")
        a("s_waitcnt lgkmcnt(0)")
        srd(a, 12, 6, WS_BYTES)
        srd(a, 60, 18, 256)
        srd(a, 16, 88, 576 * 2048 * 2)
        srd(a, 84, 90, 576 * 2)
    other_setup()
    a("s_add_u32 s3, s3, 4"); stamp_setup(a, 1); stamp(a, 0); a("s_sub_u32 s3, s3, 4")
    SS = [28, 30, 32, 34]; ONE = 36
    for r in range(28, 36): a("v_mov_b32 v%d, 0" % r)
    for r in range(ONE, ONE + 4): a("v_mov_b32 v%d, 0x3f803f80" % r)
    CA = 40
    for r in range(CA, CA + 20): a("v_mov_b32 v%d, 0" % r)
    XB = 64; CF = 80
    a("v_lshlrev_b32 v10, 4, v2")
    a("v_add_u32 v10, s24, v10")
    a("v_lshrrev_b32 v11, 2, v2")
    a("v_mul_u32_u24 v11, %d, v11" % FS)
    a("v_and_b32 v12, 3, v2")
    a("v_lshl_add_u32 v11, v12, 3, v11")
    a("v_bfe_u32 v13, v2, 4, 1")
    a("v_lshlrev_b32 v13, 5, v13")
    a("s_lshr_b32 s36, s3, 1")
    a("s_mul_i32 s37, s36, 9")
    a("s_and_b32 s38, s3, 1")
    a("s_lshl_b32 s38, s38, 2")
    a("s_add_u32 s37, s37, s38")
    a("s_lshl_b32 s40, s37, 6")
    a("s_lshl_b32 s37, s37, 5")
    a("s_add_u32 s37, s37, %d" % FB_)
    a("v_add_u32 v11, s37, v11")
    a("v_add_u32 v5, v11, v13")
    a("v_sub_u32 v6, v11, v13")
    a("s_cmp_eq_u32 s36, 0")
    a("s_cselect_b64 vcc, -1, 0")
    a("v_cndmask_b32 v11, v6, v5, vcc")
    a("v_cndmask_b32 v12, v5, v6, vcc")
    def rowstats_rd(m):
        if "nors" in DBG: return
        a("v_add_u32 v5, %d, v10" % ((m % NT) * TS))
        for n in range(4):
            a("ds_read_b128 %s, v5 offset:%d" % (vr(XB + 4 * n), 1024 * n))
    def rowstats_do():
        if "nors" in DBG: return
        for d in range(4):
            for n in range(4):
                r = XB + 4 * n + d
                a("v_dot2_f32_bf16 v%d, v%d, v%d, v%d" % (SS[n], r, ONE, SS[n]))
                a("v_dot2_f32_bf16 v%d, v%d, v%d, v%d" % (SS[n] + 1, r, r, SS[n] + 1))
    def colsum_rd(k):
        if "nocs" in DBG: return
        a("v_add_u32 v6, %d, v11" % ((k % NF) * FSL))
        a("v_add_u32 v7, %d, v12" % ((k % NF) * FSL))
        for q in range(5):
            for half in range(2):
                a("ds_read_b64_tr_b16 %s, v%d offset:%d" % (vr(CF + 4 * q + 2 * half, 2), 6 + (q & 1), 16 * half * FS + 32 * q))
    def colsum_do():
        if "nocs" in DBG: return
        for q in range(5):
            a("v_mfma_f32_16x16x32_bf16 %s, %s, %s, %s" % (vr(CA + 4 * q), vr(CF + 4 * q), vr(ONE), vr(CA + 4 * q)))
    vm.wait(["T0", "F0"])
    a("s_barrier")
    stamp(a, 1)
    colsum_rd(0); rowstats_rd(0)
    issueT(1); issueF(2); issueF(3)
    a("s_waitcnt lgkmcnt(0)")
    colsum_do(); rowstats_do()
    vm.wait(["F1"])
    a("s_barrier")
    for k in range(NK):
        rs = (k % 2 == 1 and (k + 1) // 2 < 9)
        if k + 1 < NK: colsum_rd(k + 1)
        if rs: rowstats_rd((k + 1) // 2)
        if k == 0:
            issueF(4); issueT(2); issueF(5)
        if k >= 1 and k + 5 < NK: issueF(k + 5)
        if k % 2 == 1 and (k - 1) // 2 + 3 < 9: issueT((k - 1) // 2 + 3)
        a("s_waitcnt lgkmcnt(0)")
        if k + 1 < NK: colsum_do()
        if rs: rowstats_do()
        if k + 1 < NK:
            vm.wait(["F%d" % (k + 2), "T%d" % ((k + 2) // 2)])
            a("s_barrier")
    a("s_nop 3")
    for ctl in ("quad_perm:[1,0,3,2]", "quad_perm:[2,3,0,1]", "row_half_mirror"):
        for rg in range(4):
            for e in range(2):
                a("v_add_f32_dpp v%d, v%d, v%d %s row_mask:0xf bank_mask:0xf" % (SS[rg] + e, SS[rg] + e, SS[rg] + e, ctl))
        a("s_nop 1")
    ML = 64
    for rg in range(4):
        emit_ln_finish(a, SS[rg], SS[rg] + 1, 576, ML + 2 * rg, ML + 2 * rg + 1, 76)
        a("v_mov_b32 v%d, v%d" % (SS[rg] + 1, ML + 2 * rg + 1))
        a("v_sub_f32 v%d, 0, v%d" % (SS[rg], ML + 2 * rg))
    a("s_lshl_b32 s35, s3, 8")
    a("v_lshlrev_b32 v6, 3, v3")
    a("v_add_u32 v12, s35, v6")
    a("v_cmp_eq_u32 vcc, 0, v4")
    a("s_and_saveexec_b64 s[36:37], vcc")
    for rg in range(4):
        a("ds_write_b64 v12, %s offset:%d" % (vr(SS[rg], 2), RST + 64 * rg))
    a("s_mov_b64 exec, s[36:37]")
    a("s_lshl_b32 s36, s21, 8")
    a("s_or_b32 s36, s36, s23")
    a("s_cmp_lg_u32 s36, 256")
    a("s_cbranch_scc1 %s_nost1" % name)
    a("s_lshl_b32 s35, s22, 7")
    a("s_lshl_b32 s36, s3, 5")
    a("s_add_u32 s35, s35, s36")
    a("s_lshl_b32 s35, s35, 3")
    a("s_add_u32 s35, s35, 0x%x" % STATS1)
    a("v_mov_b32 v7, 0x7ffffff0")
    a("v_cndmask_b32 v6, v7, v6, vcc")
    for rg in range(4):
        a("buffer_store_dwordx2 %s, v6, s[12:15], s35 offen offset:%d" % (vr(ML + 2 * rg, 2), 64 * rg))
    a.label("%s_nost1" % name)
    a("v_lshrrev_b32 v12, 4, v2")
    a("v_lshlrev_b32 v12, 4, v12")
    a("v_add_u32 v12, s40, v12")
    a("v_and_b32 v13, 15, v2")
    a("v_cmp_eq_u32 vcc, 0, v13")
    a("s_and_saveexec_b64 s[36:37], vcc")
    for q in range(5):
        a("ds_write_b128 v12, %s offset:%d" % (vr(CA + 4 * q), CSO + 64 * q))
    a("s_mov_b64 exec, s[36:37]")
    a("s_waitcnt lgkmcnt(0)")
    a("s_barrier")
    a("s_setprio 0")
    ACC = 112
    a("s_lshr_b32 s24, s3, 1")
    a("s_and_b32 s25, s3, 1")
    a("v_and_b32 v3, 15, v2")
    a("s_lshl_b32 s23, s23, 1")
    a("s_add_u32 s23, s23, 1")
    a("s_mov_b32 s40, 576")
    a("s_mov_b32 s98, 1")
    a("s_mul_i32 s36, s3, 18432")
    a("s_add_u32 s36, s36, %d" % TB0)
    a("v_lshlrev_b32 v10, 4, v2")
    a("v_add_u32 v11, s36, v10")
    a("s_barrier")
    for n in range(18):
        a("ds_read_b128 %s, v11 offset:%d" % (vr(ACC + 4 * n), 1024 * n))
        if n in (7, 13): a("s_waitcnt lgkmcnt(4)")
    a("s_branch %s_epi" % name)

    def gran_addr():
        a("v_lshrrev_b32 v10, 4, v2")
        a("s_lshl_b32 s33, s25, 1")
        a("v_add_u32 v11, s33, v10")
        a("v_and_b32 v11, 3, v11")
        a("v_lshl_add_u32 v11, v11, 4, v3")
        a("v_lshlrev_b32 v94, 8, v11")
        a("s_lshl_b32 s59, s22, 7")
        a("s_lshl_b32 s36, s24, 6")
        a("s_add_u32 s59, s59, s36")
        a("s_lshl_b32 s59, s59, 8")
        a("s_add_u32 s59, s59, 0x%x" % STATS2)
        a("s_lshl_b32 s36, s23, 1")
        a("s_add_u32 s36, s36, s25")
        a("s_lshl_b32 s36, s36, 3")
        a("s_add_u32 s58, s36, s59")
    a.label("%s_consumer" % name)
    a("s_load_dwordx4 s[64:67], s[0:1], 8")
    a("s_load_dwordx2 s[76:77], s[0:1], 24")
    a("s_load_dwordx2 s[78:79], s[0:1], 64")
    other_setup()
    srd(a, 68, 66, 2048 * 576 * 2)
    a("s_mov_b32 s100, s64"); a("s_mov_b32 s101, s65")
    srd(a, 64, 100, 2048 * 576 * 2)
    srd(a, 72, 76, 576 * 8)
    srd(a, 92, 78, 2048 * 2048 * 2)
    stamp_setup(a, 1); stamp(a, 0)
    a("s_lshr_b32 s24, s3, 1")
    a("s_and_b32 s25, s3, 1")
    a("v_and_b32 v3, 15, v2")
    a("s_lshl_b32 s23, s23, 1")
    a("s_mov_b32 s98, 0")
    a("s_mov_b32 s41, s2")
    a.label("%s_kv" % name)
    emit_kv_loads(a)
    a("s_cmp_lg_u32 s41, s2")
    a("s_cbranch_scc1 %s_kv2" % name)
    a("s_cmp_lg_u32 s21, 0")
    a("s_cbranch_scc1 %s_noclr" % name)
    gran_addr()
    a("v_mov_b32 v12, 0"); a("v_mov_b32 v13, 0x80000000")
    a("buffer_store_dwordx2 v[12:13], v94, s[12:15], s58 offen sc1")
    a("buffer_store_dwordx2 v[12:13], v94, s[12:15], s58 offen offset:16 sc1")
    a.label("%s_noclr" % name)
    if "nowarm" not in DBG:
        a("s_mov_b32 s99, 1")
        for r_ in (26, 27, 33, 36, 37, 38, 39, 40, 43, 58, 59): a("s_mov_b32 s%d, 0" % r_)
        for r_ in (4, 12, 13, 94): a("v_mov_b32 v%d, 0" % r_)
        a("s_mov_b64 s[96:97], 0")
        a("s_mov_b64 exec, 0")
        a("s_cmp_eq_u32 s3, 0"); a("s_cbranch_scc1 %s_epi" % name)
        a("s_cmp_eq_u32 s3, 1"); a("s_cbranch_scc1 %s_seg1" % name)
        a("s_cmp_eq_u32 s3, 2"); a("s_cbranch_scc1 %s_seg2" % name)
        a("s_branch %s_seg3" % name)
        a.label("%s_warmret" % name)
        a("s_mov_b64 s[96:97], -1")
        a("s_mov_b64 exec, -1")
        a("s_mov_b32 s99, 0")
    a.label("%s_kv2" % name)
    emit_kv_compute(a)
    a("s_add_u32 s41, s41, 32")
    a("s_cmp_lt_u32 s41, 256")
    a("s_cbranch_scc1 %s_kvd" % name)
    a("s_cmp_lt_u32 s41, 288")
    a("s_cbranch_scc1 %s_kv" % name)
    a.label("%s_kvd" % name)
    TB = [16, 32]; FR = 48
    vTa, vTb, vP = 4, 5, [6, 7]; vH = [8, 9]
    bTa = [88, 89]; bTb = [90, 91]; bP = [92, 93]; bH = [100, 101]
    PF = 96
    a("v_lshrrev_b32 v10, 4, v2")
    a("v_lshrrev_b32 v11, 1, v3")
    a("v_xor_b32 v10, v10, v11")
    a("v_lshlrev_b32 v10, 4, v10")
    a("v_lshl_add_u32 v10, v3, 7, v10")
    a("s_lshl_b32 s26, s24, 13")
    a("s_add_u32 s26, s26, %d" % TB0)
    a("v_add_u32 v10, s26, v10")
    a("s_lshl_b32 s26, s25, 12")
    a("v_add_u32 v%d, s26, v10" % bTa[0])
    a("s_xor_b32 s26, s26, 4096")
    a("v_add_u32 v%d, s26, v10" % bTb[0])
    a("v_xor_b32 v%d, 64, v%d" % (bTa[1], bTa[0]))
    a("v_xor_b32 v%d, 64, v%d" % (bTb[1], bTb[0]))
    a("v_lshrrev_b32 v10, 2, v2")
    a("v_mul_u32_u24 v10, %d, v10" % FS)
    a("v_and_b32 v11, 3, v2")
    a("v_lshl_add_u32 v10, v11, 3, v10")
    a("v_add_u32 v10, %d, v10" % FB_)
    a("v_bfe_u32 v13, v2, 4, 1")
    a("v_lshlrev_b32 v13, 5, v13")
    a("v_add_u32 v%d, v10, v13" % bH[0])
    a("v_sub_u32 v%d, v10, v13" % bH[1])
    a("s_mul_i32 s26, s25, 160")
    a("s_cmp_eq_u32 s25, 0")
    a("s_cselect_b64 vcc, -1, 0")
    a("v_cndmask_b32 v11, v%d, v%d, vcc" % (bH[1], bH[0]))
    a("v_cndmask_b32 v12, v%d, v%d, vcc" % (bH[0], bH[1]))
    a("v_add_u32 v%d, s26, v11" % bP[0])
    a("v_add_u32 v%d, s26, v12" % bP[1])
    a("v_lshrrev_b32 v10, 4, v2")
    a("v_lshlrev_b32 v10, 12, v10")
    a("v_lshl_add_u32 v95, v3, 4, v10")
    a("s_lshl_b32 s41, s22, 7")
    a("s_lshl_b32 s36, s3, 5")
    a("s_add_u32 s41, s41, s36")
    a("s_lshl_b32 s41, s41, 12")
    a("s_add_u32 s36, s23, s21")
    a("s_lshl_b32 s36, s36, 8")
    a("s_add_u32 s41, s41, s36")
    for r in range(ACC, ACC + 144): a("v_mov_b32 v%d, 0" % r)
    def accr(z, ft, tt): return ACC + 72 * z + 4 * tidx(ft, tt)
    def Fr(z, ft): return FR + 20 * z + 4 * ft
    trk = LdsTracker(a)
    def treads(buf):
        L = []
        for tt in range(4):
            r = TB[buf] + 4 * tt
            L.append(("ds_read_b128 %s, v%d offset:%d" % (vr(r), vTa if tt < 2 else vTb, (tt & 1) * 2048), range(r, r + 4)))
        return L
    def freads(z, ft):
        r = Fr(z, ft); L = []
        for half in range(2):
            off = 16 * half * FS + 32 * (9 * z + ft)
            v = vP[(z + ft) & 1] if ft < 4 else vH[z]
            L.append(("ds_read_b64_tr_b16 %s, v%d offset:%d" % (vr(r + 2 * half, 2), v, off), range(r + 2 * half, r + 2 * half + 2)))
        return L
    def rd(t):
        a(t[0]); trk.issue(t[1])
    fpairs = ((vP[0], bP[0]), (vP[1], bP[1]), (vH[0], bH[0]), (vH[1], bH[1]))
    a("v_mov_b32 v%d, v%d" % (vTa, bTa[0])); a("v_mov_b32 v%d, v%d" % (vTb, bTb[0]))
    for d, s_ in fpairs: a("v_mov_b32 v%d, v%d" % (d, s_))
    a("s_mov_b32 s27, 0")
    a("s_mov_b32 s34, 0")
    a("s_mov_b32 s33, 0")
    stamp(a, 1)
    a("s_barrier")
    stamp(a, 2)
    for t in treads(0): rd(t)
    for z in range(2):
        for ft in range(5):
            for t in freads(z, ft): rd(t)
            if len(trk.out) >= 12: trk.drain()
    trk.drain()
    def iteration(par):
        a("s_barrier")
        upd = []
        if par == 1:
            upd += ["s_add_u32 s27, s27, %d" % TS, "s_cmp_eq_u32 s27, %d" % (NT * TS), "s_cselect_b32 s27, 0, s27"]
        upd += ["v_add_u32 v%d, s27, v%d" % (vTa, bTa[1 - par]), "v_add_u32 v%d, s27, v%d" % (vTb, bTb[1 - par])]
        upd += ["s_add_u32 s34, s34, %d" % FSL, "s_cmp_eq_u32 s34, %d" % (NF * FSL), "s_cselect_b32 s34, 0, s34"]
        upd += ["v_add_u32 v%d, s34, v%d" % (d, s_) for d, s_ in fpairs]
        pend = [("x", u) for u in upd] + [("r", t) for t in treads(1 - par)]
        if par == 0:
            pend.append(("x", "buffer_load_dwordx4 %s, v95, s[92:95], s41 offen" % vr(PF)))
            pend.append(("x", "s_add_u32 s41, s41, 16384"))
        else:
            pend.append(("x", "s_add_u32 s33, s33, 1"))
        nm = 0
        for z in range(2):
            for ft in range(5):
                for tt in range(4 if ft < 4 else 2):
                    c = accr(z, ft, tt); A = Fr(z, ft); B = TB[par] + 4 * tt
                    trk.need(list(range(A, A + 4)) + list(range(B, B + 4)))
                    if "nomfma" not in DBG: a("v_mfma_f32_16x16x32_bf16 %s, %s, %s, %s" % (vr(c), vr(A), vr(B), vr(c)))
                    nfill = 1
                    while pend and nfill:
                        k, t = pend.pop(0)
                        if k == "x":
                            a(t)
                            if t.startswith("s_") and nm < 8: continue
                        else: rd(t)
                        nfill -= 1
                    nm += 1
                pend += [("r", t) for t in freads(z, ft)]
        for k, t in pend:
            if k == "x": a(t)
            else: rd(t)
        a("s_waitcnt lgkmcnt(15)")
        if len(trk.out) > 15: trk.out = trk.out[-15:]
    a.label("%s_cloop" % name)
    trk.out = []
    lb = len(a.lines)
    iteration(0); iteration(1)
    state = copy.deepcopy(trk.out)
    del a.lines[lb:]
    trk.out = copy.deepcopy(state)
    iteration(0); iteration(1)
    assert [sorted(x) for x in trk.out] == [sorted(x) for x in state]
    a("s_cmp_lt_u32 s33, %d" % (NK // 2))
    a("s_cbranch_scc1 %s_cloop" % name)
    trk.drain()
    stamp(a, 3)
    a("s_waitcnt vmcnt(0)")
    a("s_barrier")
    a("s_cmp_lg_u32 s3, 0")
    a("s_cbranch_scc1 %s_nosig" % name)
    a("v_mov_b32 v10, 1")
    a("s_lshl_b32 s36, s22, 2")
    a("v_mov_b32 v11, s36")
    a("s_mov_b64 exec, 1")
    a("buffer_atomic_add v10, v11, s[60:63], 0 offen sc1")
    a("s_mov_b64 exec, -1")
    a.label("%s_nosig" % name)
    a("s_mul_i32 s36, s3, 18432")
    a("s_add_u32 s36, s36, %d" % TB0)
    a("v_lshlrev_b32 v10, 4, v2")
    a("v_add_u32 v11, s36, v10")
    for n, (ft, tt) in enumerate(TILES):
        a("ds_write_b128 v11, %s offset:%d" % (vr(accr(1, ft, tt)), 1024 * tidx(ft, tt)))
        if n in (7, 13): a("s_waitcnt lgkmcnt(4)")
    a("s_mov_b32 s40, 0")
    a("s_waitcnt lgkmcnt(0)")
    a("s_barrier")
    a.label("%s_epi" % name)
    MR = 100; CS = 52; ZP = 16; T = 72
    gelu_consts(a)
    a("s_lshl_b32 s36, s24, 9")
    a("s_lshl_b32 s37, s25, 8")
    a("s_add_u32 s38, s36, s37")
    a("s_xor_b32 s37, s37, 256")
    a("s_add_u32 s39, s36, s37")
    a("v_lshlrev_b32 v10, 3, v3")
    a("v_add_u32 v11, s38, v10")
    a("ds_read_b64 %s, v11 offset:%d" % (vr(MR, 2), RST))
    a("ds_read_b64 %s, v11 offset:%d" % (vr(MR + 2, 2), RST + 128))
    a("v_add_u32 v11, s39, v10")
    a("ds_read_b64 %s, v11 offset:%d" % (vr(MR + 4, 2), RST))
    a("ds_read_b64 %s, v11 offset:%d" % (vr(MR + 6, 2), RST + 128))
    a("v_lshrrev_b32 v10, 4, v2")
    a("v_lshlrev_b32 v10, 4, v10")
    a("v_add_u32 v10, s40, v10")
    a("s_mul_i32 s36, s25, 320")
    a("v_add_u32 v11, s36, v10")
    a("s_waitcnt lgkmcnt(6)")
    for ft in range(4):
        a("ds_read_b128 %s, v11 offset:%d" % (vr(CS + 4 * ft), CSO + 64 * ft))
    a("ds_read_b128 %s, v10 offset:%d" % (vr(CS + 16), CSO + 256))
    S = [108, 110, 8, 12]; Q = [109, 111, 9, 13]
    for tt in range(4):
        a("v_mov_b32 v%d, 0" % S[tt]); a("v_mov_b32 v%d, 0" % Q[tt])
    a("v_mov_b32 v88, 0x3f803f80")
    a("s_waitcnt lgkmcnt(0)")
    for ft in range(5):
        if ft == 3:
            seg_end(a, name)
            a.label("%s_seg1" % name)
        tts = range(4 if ft < 4 else 2)
        items = [(ACC + 4 * tidx(ft, tt), CS + 4 * ft, MR + 2 * tt, ZP + 2 * tidx(ft, tt)) for tt in tts]
        emit_fold_gelu(a, items, T)
        for d in range(2):
            for tt in tts:
                p = ZP + 2 * tidx(ft, tt) + d
                a("v_dot2_f32_bf16 v%d, v%d, v88, v%d" % (S[tt], p, S[tt]))
                a("v_dot2_f32_bf16 v%d, v%d, v%d, v%d" % (Q[tt], p, p, Q[tt]))
    a("s_cmp_eq_u32 s21, 0")
    a("s_cbranch_scc1 %s_z2" % name)
    a("s_lshl_b32 s36, s22, 4")
    a("s_add_u32 s36, s36, s23")
    a("s_lshl_b32 s36, s36, 2")
    a("s_add_u32 s36, s36, s3")
    a("s_mul_i32 s36, s36, 9216")
    a("s_add_u32 s36, s36, 0x%x" % Z1IMG)
    a("v_lshlrev_b32 v10, 4, v2")
    for q in range(9):
        if q in (4, 8): a("s_add_u32 s36, s36, 4096")
        a("buffer_store_dwordx4 %s, v10, s[12:15], s36 offen offset:%d" % (vr(ZP + 4 * q), (q & 3) * 1024))
    a("s_branch %s_conv" % name)
    a.label("%s_z2" % name)
    a("s_nop 1")
    emit_xg_reduce(a, S + Q, 72)
    gran_addr()
    for g in range(1, 4):
        a("v_cmp_eq_u32 vcc, %d, v10" % g)
        a("s_nop 1")
        a("v_cndmask_b32 v%d, v%d, v%d, vcc" % (S[0], S[0], S[g]))
        a("v_cndmask_b32 v%d, v%d, v%d, vcc" % (Q[0], Q[0], Q[g]))
    a("v_and_b32 v%d, 0x7fffffff, v%d" % (Q[0], Q[0]))
    a("buffer_store_dwordx2 v[%d:%d], v94, s[12:15], s58 offen sc1" % (S[0], Q[0]))
    a.label("%s_conv" % name)
    seg_end(a, name)
    stamp(a, 4)
    a("v_lshlrev_b32 v4, 2, v3")
    a("s_mov_b32 s40, 0")
    a.label("%s_pollp" % name)
    a("buffer_load_dword v5, v4, s[60:63], 0 offen sc1")
    a("s_add_u32 s40, s40, 1")
    a("s_waitcnt vmcnt(0)")
    a("v_cmp_gt_u32 vcc, 16, v5")
    a("s_cmp_gt_u32 s40, %d" % SPIN_MAX)
    a("s_cbranch_scc1 %s_pollpx" % name)
    a("s_cbranch_vccz %s_pollpx" % name)
    a("s_sleep 2")
    a("s_branch %s_pollp" % name)
    a.label("%s_pollpx" % name)
    a("s_lshl_b32 s43, s2, 2")
    a("s_add_u32 s43, s43, s3")
    a("s_mov_b32 s27, s3")
    a("s_cmp_eq_u32 s98, 0")
    a("s_cbranch_scc1 %s_cjgo" % name)
    a("s_cmp_eq_u32 s21, 0")
    a("s_cbranch_scc1 %s_cjdone" % name)
    a("s_cmp_lg_u32 s3, 0")
    a("s_cbranch_scc1 %s_cjdone" % name)
    a("s_add_u32 s43, s2, %d" % (1024 - 128))
    a("s_mov_b32 s27, 4")
    a.label("%s_cjgo" % name)
    a("s_mul_i32 s27, s27, %d" % CJ_SIZE)
    a("s_add_u32 s27, s27, %d" % CJB)
    a("s_and_b32 s26, s43, 1")
    a("s_lshr_b32 s43, s43, 1")
    a.label("%s_seg2" % name)
    emit_conv_job(a, name)
    seg_end(a, name)
    stamp(a, 5)
    a("s_cmp_lg_u32 s21, 0")
    a("s_cbranch_scc1 %s_fin" % name)
    a("v_lshrrev_b32 v10, 4, v2")
    a("v_lshlrev_b32 v11, 8, v3")
    a("v_lshl_add_u32 v11, v10, 6, v11")
    a("s_lshl_b32 s33, s25, 13")
    a("s_add_u32 s36, s59, s33")
    a("s_xor_b32 s33, s33, 8192")
    a("s_add_u32 s37, s59, s33")
    a("s_add_u32 s38, s36, 4096")
    a("s_add_u32 s39, s37, 4096")
    PB = 112
    a.label("%s_poll1" % name)
    for tt in range(4):
        for q in range(4):
            a("buffer_load_dwordx4 %s, v11, s[12:15], s%d offen offset:%d sc1" % (vr(PB + 16 * tt + 4 * q), (36, 38, 37, 39)[tt], 16 * q))
    a("s_waitcnt vmcnt(0)")
    a("v_mov_b32 v12, 0")
    for r in range(PB + 1, PB + 64, 4):
        a("v_or3_b32 v12, v12, v%d, v%d" % (r, r + 2))
    a("v_cmp_gt_i32 vcc, 0, v12")
    a("s_add_u32 s40, s40, 1")
    a("s_cmp_gt_u32 s40, %d" % SPIN_MAX)
    a("s_cbranch_scc1 %s_poll1x" % name)
    a("s_cbranch_vccz %s_poll1x" % name)
    a("s_sleep 8")
    a("s_branch %s_poll1" % name)
    a.label("%s_poll1x" % name)
    stamp(a, 6)
    a.label("%s_seg3" % name)
    for tt in range(4):
        b = PB + 16 * tt
        for st in (8, 4, 2):
            for q in range(0, st, 2):
                a("v_pk_add_f32 %s, %s, %s" % (vr(b + q, 2), vr(b + q, 2), vr(b + q + st, 2)))
    emit_xg_reduce(a, [PB + 16 * tt + e for tt in range(4) for e in range(2)], 72)
    for tt in range(4):
        b = PB + 16 * tt
        emit_ln_finish(a, b, b + 1, 2304, b + 2, MR + 2 * tt, b + 4)
        a("v_mul_f32 v%d, -v%d, v%d" % (MR + 2 * tt + 1, b + 2, MR + 2 * tt))
    a("v_lshrrev_b32 v11, 2, v2"); a("v_and_b32 v11, 1, v11"); a("v_lshlrev_b32 v11, 4, v11")
    a("v_lshrrev_b32 v12, 3, v2"); a("v_and_b32 v12, 1, v12"); a("v_lshl_add_u32 v11, v12, 2, v11")
    a("v_and_b32 v12, 3, v2"); a("v_add_u32 v11, v11, v12")
    a("v_mul_u32_u24 v11, 288, v11")
    a("v_lshrrev_b32 v12, 1, v10"); a("v_lshl_add_u32 v11, v12, 4, v11")
    a("v_and_b32 v12, 1, v10")
    a("v_lshl_add_u32 v13, v12, 5, v11")
    a("v_mul_u32_u24 v12, 2304, v12")
    a("v_add_u32 v9, v11, v12")
    a("s_lshl_b32 s33, s23, 5")
    a("s_lshl_b32 s36, s22, 1")
    a("s_add_u32 s33, s33, s36")
    a("s_add_u32 s33, s33, s24")
    a("s_mul_i32 s33, s33, 18432")
    if ZIMG: a("s_add_u32 s33, s33, 0x%x" % ZIMG)
    a("s_mul_i32 s36, s25, 9216")
    a("s_add_u32 s37, s33, s36")
    a("s_xor_b32 s36, s36, 9216")
    a("s_add_u32 s38, s33, s36")
    a("s_add_u32 s39, s37, 128")
    a("s_mul_i32 s36, s25, 160")
    a("s_add_u32 s37, s37, s36")
    a("s_add_u32 s38, s38, s36")
    def norm_pair(nA, ttA, nB, ttB, O):
        for q, (n, tt) in enumerate(((nA, ttA), (nB, ttB))):
            for d in range(2):
                z = ZP + 2 * n + d; t = T + 4 * q + 2 * d
                a("v_lshlrev_b32 v%d, 16, v%d" % (t, z))
                a("v_and_b32 v%d, 0xffff0000, v%d" % (t + 1, z))
        for q, (n, tt) in enumerate(((nA, ttA), (nB, ttB))):
            for d in range(2):
                t = T + 4 * q + 2 * d
                a("v_pk_fma_f32 %s, %s, %s, %s op_sel:[0,0,1] op_sel_hi:[1,0,1]" % (vr(t, 2), vr(t, 2), vr(MR + 2 * tt, 2), vr(MR + 2 * tt, 2)))
        for q in range(2):
            for d in range(2):
                t = T + 4 * q + 2 * d
                a("v_cvt_pk_bf16_f32 v%d, v%d, v%d" % (O + 2 * q + d, t, t + 1))
        a("s_nop 1")
        a("v_permlane16_swap_b32 v%d, v%d" % (O, O + 2))
        a("v_permlane16_swap_b32 v%d, v%d" % (O + 1, O + 3))
    cnt = 0
    for pr in range(2):
        for tt in range(4):
            O = 112 + 4 * cnt; cnt += 1
            norm_pair(tidx(2 * pr, tt), tt, tidx(2 * pr + 1, tt), tt, O)
            a("s_nop 0")
            a("buffer_store_dwordx4 %s, v13, s[12:15], s%d offen offset:%d" % (vr(O), 37 if tt < 2 else 38, (tt & 1) * 2304 + 64 * pr))
    O = 112 + 4 * cnt
    norm_pair(16, 0, 17, 1, O)
    a("s_nop 0")
    a("buffer_store_dwordx4 %s, v9, s[12:15], s39 offen" % vr(O))
    seg_end(a, name)
    a.label("%s_fin" % name)
    stamp(a, 7)
    a("s_waitcnt vmcnt(0)")
    stamp(a, 8)
    a.label("%s_end" % name)
    a("s_endpgm")
    return a.text(), kernel_desc(name, 256, 256), (name, 256, 512, LDSB)

def gen_k1f(name="k1_kernel"):
    a = Asm()
    TS = 16384; NT = 3; TB0 = 4096; FB_ = TB0 + NT * TS; FSL = 18432; NF = 6; FS = 576; NK = 18
    LDSB = FB_ + NF * FSL; RST = 0; CSO = 1024; CJB = TB0 + 4 * 18432
    kernel_begin(a, name)
    a("s_load_dwordx2 s[80:81], s[0:1], 0")
    a("s_load_dwordx2 s[4:5], s[0:1], 56")
    a("s_cmp_ge_u32 s2, 256")
    a("s_cbranch_scc1 %s_end" % name)
    a("v_lshrrev_b32 v1, 6, v0")
    a("v_and_b32 v2, 63, v0")
    a("v_readfirstlane_b32 s3, v1")
    a("s_and_b32 s20, s2, 7")
    a("s_lshr_b32 s21, s2, 3")
    a("s_and_b32 s22, s20, 1")
    a("s_lshl_b32 s22, s22, 3")
    a("s_and_b32 s23, s21, 7")
    a("s_add_u32 s22, s22, s23")
    a("s_lshr_b32 s21, s21, 3")
    a("s_and_b32 s23, s20, 6")
    a("s_and_b32 s24, s21, 1")
    a("s_add_u32 s23, s23, s24")
    a("s_lshr_b32 s21, s21, 1")
    a("s_mov_b32 s99, 0")
    a("s_mov_b64 s[96:97], -1")
    a("s_cmp_lt_u32 s3, 4")
    a("s_cbranch_scc1 %s_consumer" % name)
    a("s_setprio 3")
    a("s_sub_u32 s3, s3, 4")
    a("v_lshrrev_b32 v3, 3, v2")
    a("v_and_b32 v4, 7, v2")
    VT = 16; VF = 20
    a("s_lshl_b32 s24, s3, 5")
    a("v_add_u32 v5, s24, v3")
    a("v_lshrrev_b32 v7, 4, v2")
    a("v_xor_b32 v7, v7, v4")
    a("v_mul_u32_u24 v6, 1152, v5")
    a("v_lshl_add_u32 v%d, v7, 4, v6" % VT)
    a("v_xor_b32 v%d, 64, v%d" % (VT + 1, VT))
    a("v_add_u32 v%d, %d, v%d" % (VT + 1, 9216 - 1024, VT + 1))
    a("v_add_u32 v%d, %d, v%d" % (VT + 2, 2 * (9216 - 1024), VT))
    a("v_add_u32 v%d, %d, v%d" % (VT + 3, 2 * (9216 - 1024), VT + 1))
    a("s_mul_i32 s26, s22, %d" % (128 * 1152))
    a("s_lshl_b32 s24, s3, 12")
    a("s_add_u32 s24, s24, %d" % TB0)
    a("s_mov_b32 s33, 0")
    a("s_waitcnt lgkmcnt(0)")
    srd(a, 28, 80, 2048 * 576 * 2)
    vm = VmTracker(a)
    def issueT(m):
        a("s_add_u32 s35, s33, s24")
        a("s_mov_b32 m0, s35")
        a("s_add_u32 s33, s33, %d" % TS)
        for n in range(4):
            if "nodma" not in DBG: a("buffer_load_dwordx4 v%d, s[28:31], s26 offen offset:%d lds" % (VT + n, 1024 * n))
        a("s_add_u32 s26, s26, 128")
        a("s_cmp_eq_u32 s33, %d" % (NT * TS))
        a("s_cselect_b32 s33, 0, s33")
        vm.issue("T%d" % m, 4)
    issueT(0)
    srd(a, 8, 4, 576 * 4608 * 2)
    for n in range(5):
        if n: a("v_add_u32 v6, %d, v2" % (64 * n))
        src = "v6" if n else "v2"
        a("v_mul_u32_u24 v7, 1821, %s" % src)
        a("v_lshrrev_b32 v7, 16, v7")
        a("v_mul_u32_u24 v8, 36, v7")
        a("v_sub_u32 v8, %s, v8" % src)
        a("v_bfe_u32 v9, v7, 2, 1")
        a("v_lshlrev_b32 v6, 1, v9")
        a("v_xor_b32 v8, v8, v6")
        a("v_and_b32 v7, 3, v7")
        a("v_lshl_add_u32 v7, v9, 3, v7")
        a("v_mul_u32_u24 v7, 9216, v7")
        a("v_lshl_add_u32 v%d, v8, 4, v7" % (VF + n))
        if 0 < n < 4: a("v_subrev_u32 v%d, %d, v%d" % (VF + n, 1024 * n, VF + n))
    a("s_and_b32 s36, s3, 1")
    a("s_lshl_b32 s36, s36, 4")
    a("s_lshr_b32 s37, s3, 1")
    a("s_lshl_b32 s37, s37, 2")
    a("s_add_u32 s36, s36, s37")
    a("s_mul_i32 s27, s36, 9216")
    a("s_mul_i32 s36, s23, 576")
    a("s_add_u32 s27, s27, s36")
    a("s_cmp_eq_u32 s21, 0")
    a("s_cselect_b32 s36, 4608, 0")
    a("s_add_u32 s27, s27, s36")
    a("s_mul_i32 s25, s3, 4608")
    a("s_add_u32 s25, s25, %d" % FB_)
    a("s_mov_b32 s34, 0")
    def issueF(k):
        a("s_add_u32 s35, s34, s25")
        a("s_mov_b32 m0, s35")
        a("s_add_u32 s36, s35, 4096")
        for n in range(4):
            if "nodma" not in DBG: a("buffer_load_dwordx4 v%d, s[8:11], s27 offen offset:%d lds" % (VF + n, 1024 * n))
        a("s_mov_b32 m0, s36")
        a("s_mov_b64 exec, 0xffffffff")
        if "nodma" not in DBG: a("buffer_load_dwordx4 v%d, s[8:11], s27 offen lds" % (VF + 4))
        a("s_mov_b64 exec, -1")
        a("s_add_u32 s27, s27, %d" % (32 * 9216))
        a("s_add_u32 s34, s34, %d" % FSL)
        a("s_cmp_eq_u32 s34, %d" % (NF * FSL))
        a("s_cselect_b32 s34, 0, s34")
        vm.issue("F%d" % k, 5)
    issueF(0); issueF(1)
    def other_setup():
        a("s_load_dwordx2 s[6:7], s[0:1], 104")
        a("s_load_dwordx2 s[18:19], s[0:1], 96")
        a("s_waitcnt lgkmcnt(0)")
        srd(a, 12, 6, WS_BYTES)
        srd(a, 60, 18, 256)
    def prep_srds():
        srd(a, 68, 66, 2048 * 576 * 2)
        a("s_mov_b32 s88, s64"); a("s_mov_b32 s89, s65")
        srd(a, 64, 88, 2048 * 576 * 2)
        srd(a, 72, 76, 576 * 8)
        srd(a, 76, 100, 2304 * 576 * 2)
    other_setup()
    a("s_add_u32 s3, s3, 4"); stamp_setup(a, 1); stamp(a, 0); a("s_sub_u32 s3, s3, 4")
    a("s_load_dwordx4 s[64:67], s[0:1], 8")
    a("s_load_dwordx2 s[76:77], s[0:1], 24")
    a("s_load_dwordx2 s[100:101], s[0:1], 80")
    a("s_waitcnt lgkmcnt(0)")
    prep_srds()
    if "nowarm" not in DBG:
        a("s_mov_b32 s99, 1")
        a("s_mov_b32 s52, s24"); a("s_mov_b32 s53, s25")
        a("s_mov_b32 s82, s33"); a("s_mov_b32 s83, s34")
        for r_ in (36, 37, 38, 39, 40, 41, 42, 58, 59): a("s_mov_b32 s%d, 0" % r_)
        for r_ in (5, 8, 9, 10, 11, 12, 13, 94, 140, 141): a("v_mov_b32 v%d, 0" % r_)
        a("s_mov_b64 exec, 0")
        a("s_cmp_eq_u32 s3, 0"); a("s_cbranch_scc1 %s_epi" % name)
        a("s_cmp_eq_u32 s3, 1"); a("s_cbranch_scc1 %s_seg1" % name)
        a("s_cmp_eq_u32 s3, 2"); a("s_cbranch_scc1 %s_seg2" % name)
        a("s_branch %s_seg3" % name)
        a.label("%s_warmret" % name)
        a("s_mov_b64 exec, -1")
        a("s_mov_b32 s99, 0")
        a("s_mov_b32 s24, s52"); a("s_mov_b32 s25, s53")
        a("s_mov_b32 s33, s82"); a("s_mov_b32 s34, s83")
    SS = [28, 30, 32, 34]; ONE = 36
    for r in range(28, 36): a("v_mov_b32 v%d, 0" % r)
    for r in range(ONE, ONE + 4): a("v_mov_b32 v%d, 0x3f803f80" % r)
    CA = 40
    for r in range(CA, CA + 20): a("v_mov_b32 v%d, 0" % r)
    XB = 64; CF = 80
    a("v_lshlrev_b32 v10, 4, v2")
    a("v_add_u32 v10, s24, v10")
    a("v_lshrrev_b32 v11, 2, v2")
    a("v_mul_u32_u24 v11, %d, v11" % FS)
    a("v_and_b32 v12, 3, v2")
    a("v_lshl_add_u32 v11, v12, 3, v11")
    a("v_bfe_u32 v13, v2, 4, 1")
    a("v_lshlrev_b32 v13, 5, v13")
    a("s_lshr_b32 s36, s3, 1")
    a("s_mul_i32 s37, s36, 9")
    a("s_and_b32 s38, s3, 1")
    a("s_lshl_b32 s38, s38, 2")
    a("s_add_u32 s37, s37, s38")
    a("s_lshl_b32 s40, s37, 6")
    a("s_lshl_b32 s37, s37, 5")
    a("s_add_u32 s37, s37, %d" % FB_)
    a("v_add_u32 v11, s37, v11")
    a("v_add_u32 v5, v11, v13")
    a("v_sub_u32 v6, v11, v13")
    a("s_cmp_eq_u32 s36, 0")
    a("s_cselect_b64 vcc, -1, 0")
    a("v_cndmask_b32 v11, v6, v5, vcc")
    a("v_cndmask_b32 v12, v5, v6, vcc")
    def rowstats_rd(m):
        if "nors" in DBG: return
        a("v_add_u32 v5, %d, v10" % ((m % NT) * TS))
        for n in range(4):
            a("ds_read_b128 %s, v5 offset:%d" % (vr(XB + 4 * n), 1024 * n))
    def rowstats_do():
        if "nors" in DBG: return
        for d in range(4):
            for n in range(4):
                r = XB + 4 * n + d
                a("v_dot2_f32_bf16 v%d, v%d, v%d, v%d" % (SS[n], r, ONE, SS[n]))
                a("v_dot2_f32_bf16 v%d, v%d, v%d, v%d" % (SS[n] + 1, r, r, SS[n] + 1))
    def colsum_rd(k):
        if "nocs" in DBG: return
        a("v_add_u32 v6, %d, v11" % ((k % NF) * FSL))
        a("v_add_u32 v7, %d, v12" % ((k % NF) * FSL))
        for q in range(5):
            for half in range(2):
                a("ds_read_b64_tr_b16 %s, v%d offset:%d" % (vr(CF + 4 * q + 2 * half, 2), 6 + (q & 1), 16 * half * FS + 32 * q))
    def colsum_do():
        if "nocs" in DBG: return
        for q in range(5):
            a("v_mfma_f32_16x16x32_bf16 %s, %s, %s, %s" % (vr(CA + 4 * q), vr(CF + 4 * q), vr(ONE), vr(CA + 4 * q)))
    vm.wait(["T0", "F0"])
    a("s_barrier")
    stamp(a, 1)
    colsum_rd(0); rowstats_rd(0)
    issueT(1); issueF(2); issueF(3)
    a("s_waitcnt lgkmcnt(0)")
    colsum_do(); rowstats_do()
    vm.wait(["F1"])
    a("s_barrier")
    for k in range(NK):
        rs = (k % 2 == 1 and (k + 1) // 2 < 9)
        if k + 1 < NK: colsum_rd(k + 1)
        if rs: rowstats_rd((k + 1) // 2)
        if k == 0:
            issueF(4); issueT(2); issueF(5)
        if k >= 1 and k + 5 < NK: issueF(k + 5)
        if k % 2 == 1 and (k - 1) // 2 + 3 < 9: issueT((k - 1) // 2 + 3)
        a("s_waitcnt lgkmcnt(0)")
        if k + 1 < NK: colsum_do()
        if rs: rowstats_do()
        if k + 1 < NK:
            vm.wait(["F%d" % (k + 2), "T%d" % ((k + 2) // 2)])
            a("s_barrier")
    a("s_nop 3")
    for ctl in ("quad_perm:[1,0,3,2]", "quad_perm:[2,3,0,1]", "row_half_mirror"):
        for rg in range(4):
            for e in range(2):
                a("v_add_f32_dpp v%d, v%d, v%d %s row_mask:0xf bank_mask:0xf" % (SS[rg] + e, SS[rg] + e, SS[rg] + e, ctl))
        a("s_nop 1")
    ML = 64
    for rg in range(4):
        emit_ln_finish(a, SS[rg], SS[rg] + 1, 576, ML + 2 * rg, ML + 2 * rg + 1, 76)
        a("v_mov_b32 v%d, v%d" % (SS[rg] + 1, ML + 2 * rg + 1))
        a("v_sub_f32 v%d, 0, v%d" % (SS[rg], ML + 2 * rg))
    a("s_lshl_b32 s35, s3, 8")
    a("v_lshlrev_b32 v6, 3, v3")
    a("v_add_u32 v12, s35, v6")
    a("v_cmp_eq_u32 vcc, 0, v4")
    a("s_and_saveexec_b64 s[36:37], vcc")
    for rg in range(4):
        a("ds_write_b64 v12, %s offset:%d" % (vr(SS[rg], 2), RST + 64 * rg))
    a("s_mov_b64 exec, s[36:37]")
    a("s_lshl_b32 s36, s21, 8")
    a("s_or_b32 s36, s36, s23")
    a("s_cmp_lg_u32 s36, 256")
    a("s_cbranch_scc1 %s_nost1" % name)
    a("s_lshl_b32 s35, s22, 7")
    a("s_lshl_b32 s36, s3, 5")
    a("s_add_u32 s35, s35, s36")
    a("s_lshl_b32 s35, s35, 3")
    a("s_add_u32 s35, s35, 0x%x" % STATS1)
    a("v_mov_b32 v7, 0x7ffffff0")
    a("v_cndmask_b32 v6, v7, v6, vcc")
    for rg in range(4):
        a("buffer_store_dwordx2 %s, v6, s[12:15], s35 offen offset:%d" % (vr(ML + 2 * rg, 2), 64 * rg))
    a.label("%s_nost1" % name)
    a("v_lshrrev_b32 v12, 4, v2")
    a("v_lshlrev_b32 v12, 4, v12")
    a("v_add_u32 v12, s40, v12")
    a("v_and_b32 v13, 15, v2")
    a("v_cmp_eq_u32 vcc, 0, v13")
    a("s_and_saveexec_b64 s[36:37], vcc")
    for q in range(5):
        a("ds_write_b128 v12, %s offset:%d" % (vr(CA + 4 * q), CSO + 64 * q))
    a("s_mov_b64 exec, s[36:37]")
    a("s_waitcnt lgkmcnt(0)")
    a("s_barrier")
    a("s_setprio 0")
    ACC = 112
    a("s_lshr_b32 s24, s3, 1")
    a("s_and_b32 s25, s3, 1")
    a("v_and_b32 v3, 15, v2")
    a("s_lshl_b32 s23, s23, 1")
    a("s_add_u32 s23, s23, 1")
    a("s_mov_b32 s40, 576")
    a("s_mul_i32 s36, s3, 18432")
    a("s_add_u32 s36, s36, %d" % TB0)
    a("v_lshlrev_b32 v10, 4, v2")
    a("v_add_u32 v11, s36, v10")
    a("s_barrier")
    for n in range(18):
        a("ds_read_b128 %s, v11 offset:%d" % (vr(ACC + 4 * n), 1024 * n))
        if n in (7, 13): a("s_waitcnt lgkmcnt(4)")
    a("s_branch %s_epi" % name)

    def gran_addr():
        a("v_lshrrev_b32 v10, 4, v2")
        a("s_lshl_b32 s33, s25, 1")
        a("v_add_u32 v11, s33, v10")
        a("v_and_b32 v11, 3, v11")
        a("v_lshl_add_u32 v11, v11, 4, v3")
        a("v_lshlrev_b32 v94, 8, v11")
        a("s_lshl_b32 s59, s22, 7")
        a("s_lshl_b32 s36, s24, 6")
        a("s_add_u32 s59, s59, s36")
        a("s_lshl_b32 s59, s59, 8")
        a("s_add_u32 s59, s59, 0x%x" % STATS2)
        a("s_lshl_b32 s36, s23, 1")
        a("s_add_u32 s36, s36, s25")
        a("s_lshl_b32 s36, s36, 3")
        a("s_add_u32 s58, s36, s59")
    a.label("%s_consumer" % name)
    a("s_load_dwordx4 s[64:67], s[0:1], 8")
    a("s_load_dwordx2 s[76:77], s[0:1], 24")
    a("s_load_dwordx2 s[100:101], s[0:1], 80")
    a("s_load_dwordx2 s[90:91], s[0:1], 64")
    a("s_lshr_b32 s24, s3, 1")
    a("s_and_b32 s25, s3, 1")
    a("v_and_b32 v3, 15, v2")
    other_setup()
    srd(a, 28, 80, 2048 * 576 * 2)
    srd(a, 8, 4, 576 * 4608 * 2)
    if "nopf" not in DBG:
        a("s_and_b32 s36, s22, 7")
        a("s_mul_i32 s36, s36, 72")
        a("s_mul_i32 s37, s3, 18")
        a("s_add_u32 s36, s36, s37")
        a("s_mul_i32 s36, s36, 9216")
        a("s_mul_i32 s37, s23, 576")
        a("s_add_u32 s36, s36, s37")
        a("s_cmp_eq_u32 s21, 0")
        a("s_cselect_b32 s37, 4608, 0")
        a("s_add_u32 s36, s36, s37")
        a("s_and_b32 s36, s36, 0xffffff80")
        for n in range(2):
            a("v_add_u32 v10, %d, v2" % (64 * n))
            a("v_mul_u32_u24 v11, 13108, v10")
            a("v_lshrrev_b32 v11, 16, v11")
            a("v_mul_u32_u24 v12, 5, v11")
            a("v_sub_u32 v12, v10, v12")
            a("v_mul_u32_u24 v11, 9216, v11")
            a("v_lshl_add_u32 v11, v12, 7, v11")
            if n:
                a("v_cmp_gt_u32 vcc, 90, v10")
                a("v_mov_b32 v12, 0x7ffffff0")
                a("s_nop 0")
                a("v_cndmask_b32 v11, v12, v11, vcc")
            a("buffer_load_dword v96, v11, s[8:11], s36 offen")
        a("s_lshr_b32 s36, s2, 6")
        a("s_lshl_b32 s36, s36, 5")
        a("s_lshl_b32 s37, s22, 7")
        a("s_add_u32 s36, s36, s37")
        a("s_mul_i32 s36, s36, 1152")
        a("s_mul_i32 s37, s3, 9216")
        a("s_add_u32 s36, s36, s37")
        a("v_lshlrev_b32 v11, 7, v2")
        a("buffer_load_dword v96, v11, s[28:31], s36 offen")
        a("v_and_b32 v11, 7, v2")
        a("v_lshlrev_b32 v11, 7, v11")
        a("s_add_u32 s36, s36, 8192")
        a("buffer_load_dword v96, v11, s[28:31], s36 offen")
    prep_srds()
    srd(a, 92, 90, 2048 * 2048 * 2)
    stamp_setup(a, 1); stamp(a, 0)
    a("s_lshl_b32 s23, s23, 1")
    a("s_cmp_lg_u32 s21, 0")
    a("s_cbranch_scc1 %s_noclr" % name)
    gran_addr()
    a("v_mov_b32 v12, 0"); a("v_mov_b32 v13, 0x80000000")
    a("buffer_store_dwordx2 v[12:13], v94, s[12:15], s58 offen sc1")
    a("buffer_store_dwordx2 v[12:13], v94, s[12:15], s58 offen offset:16 sc1")
    a.label("%s_noclr" % name)
    TB = [16, 32]; FR = 48
    vTa, vTb, vP = 4, 5, [6, 7]; vH = [8, 9]
    bTa = [88, 89]; bTb = [90, 91]; bP = [92, 93]; bH = [100, 101]
    PF = 96
    a("v_lshrrev_b32 v10, 4, v2")
    a("v_lshrrev_b32 v11, 1, v3")
    a("v_xor_b32 v10, v10, v11")
    a("v_lshlrev_b32 v10, 4, v10")
    a("v_lshl_add_u32 v10, v3, 7, v10")
    a("s_lshl_b32 s26, s24, 13")
    a("s_add_u32 s26, s26, %d" % TB0)
    a("v_add_u32 v10, s26, v10")
    a("s_lshl_b32 s26, s25, 12")
    a("v_add_u32 v%d, s26, v10" % bTa[0])
    a("s_xor_b32 s26, s26, 4096")
    a("v_add_u32 v%d, s26, v10" % bTb[0])
    a("v_xor_b32 v%d, 64, v%d" % (bTa[1], bTa[0]))
    a("v_xor_b32 v%d, 64, v%d" % (bTb[1], bTb[0]))
    a("v_lshrrev_b32 v10, 2, v2")
    a("v_mul_u32_u24 v10, %d, v10" % FS)
    a("v_and_b32 v11, 3, v2")
    a("v_lshl_add_u32 v10, v11, 3, v10")
    a("v_add_u32 v10, %d, v10" % FB_)
    a("v_bfe_u32 v13, v2, 4, 1")
    a("v_lshlrev_b32 v13, 5, v13")
    a("v_add_u32 v%d, v10, v13" % bH[0])
    a("v_sub_u32 v%d, v10, v13" % bH[1])
    a("s_mul_i32 s26, s25, 160")
    a("s_cmp_eq_u32 s25, 0")
    a("s_cselect_b64 vcc, -1, 0")
    a("v_cndmask_b32 v11, v%d, v%d, vcc" % (bH[1], bH[0]))
    a("v_cndmask_b32 v12, v%d, v%d, vcc" % (bH[0], bH[1]))
    a("v_add_u32 v%d, s26, v11" % bP[0])
    a("v_add_u32 v%d, s26, v12" % bP[1])
    a("v_lshrrev_b32 v10, 4, v2")
    a("v_lshlrev_b32 v10, 12, v10")
    a("v_lshl_add_u32 v95, v3, 4, v10")
    a("s_lshl_b32 s41, s22, 7")
    a("s_lshl_b32 s36, s3, 5")
    a("s_add_u32 s41, s41, s36")
    a("s_lshl_b32 s41, s41, 12")
    a("s_add_u32 s36, s23, s21")
    a("s_lshl_b32 s36, s36, 8")
    a("s_add_u32 s41, s41, s36")
    for r in range(ACC, ACC + 144): a("v_mov_b32 v%d, 0" % r)
    def accr(z, ft, tt): return ACC + 72 * z + 4 * tidx(ft, tt)
    def Fr(z, ft): return FR + 20 * z + 4 * ft
    trk = LdsTracker(a)
    def treads(buf):
        L = []
        for tt in range(4):
            r = TB[buf] + 4 * tt
            L.append(("ds_read_b128 %s, v%d offset:%d" % (vr(r), vTa if tt < 2 else vTb, (tt & 1) * 2048), range(r, r + 4)))
        return L
    def freads(z, ft):
        r = Fr(z, ft); L = []
        for half in range(2):
            off = 16 * half * FS + 32 * (9 * z + ft)
            v = vP[(z + ft) & 1] if ft < 4 else vH[z]
            L.append(("ds_read_b64_tr_b16 %s, v%d offset:%d" % (vr(r + 2 * half, 2), v, off), range(r + 2 * half, r + 2 * half + 2)))
        return L
    def rd(t):
        a(t[0]); trk.issue(t[1])
    fpairs = ((vP[0], bP[0]), (vP[1], bP[1]), (vH[0], bH[0]), (vH[1], bH[1]))
    a("v_mov_b32 v%d, v%d" % (vTa, bTa[0])); a("v_mov_b32 v%d, v%d" % (vTb, bTb[0]))
    for d, s_ in fpairs: a("v_mov_b32 v%d, v%d" % (d, s_))
    a("s_mov_b32 s27, 0")
    a("s_mov_b32 s34, 0")
    a("s_mov_b32 s33, 0")
    stamp(a, 1)
    a("s_barrier")
    stamp(a, 2)
    for t in treads(0): rd(t)
    for z in range(2):
        for ft in range(5):
            for t in freads(z, ft): rd(t)
            if len(trk.out) >= 12: trk.drain()
    trk.drain()
    def iteration(par):
        a("s_barrier")
        upd = []
        if par == 1:
            upd += ["s_add_u32 s27, s27, %d" % TS, "s_cmp_eq_u32 s27, %d" % (NT * TS), "s_cselect_b32 s27, 0, s27"]
        upd += ["v_add_u32 v%d, s27, v%d" % (vTa, bTa[1 - par]), "v_add_u32 v%d, s27, v%d" % (vTb, bTb[1 - par])]
        upd += ["s_add_u32 s34, s34, %d" % FSL, "s_cmp_eq_u32 s34, %d" % (NF * FSL), "s_cselect_b32 s34, 0, s34"]
        upd += ["v_add_u32 v%d, s34, v%d" % (d, s_) for d, s_ in fpairs]
        pend = [("x", u) for u in upd] + [("r", t) for t in treads(1 - par)]
        if par == 0:
            pend.append(("x", "buffer_load_dwordx4 %s, v95, s[92:95], s41 offen" % vr(PF)))
            pend.append(("x", "s_add_u32 s41, s41, 16384"))
        else:
            pend.append(("x", "s_add_u32 s33, s33, 1"))
        nm = 0
        for z in range(2):
            for ft in range(5):
                for tt in range(4 if ft < 4 else 2):
                    c = accr(z, ft, tt); A = Fr(z, ft); B = TB[par] + 4 * tt
                    trk.need(list(range(A, A + 4)) + list(range(B, B + 4)))
                    if "nomfma" not in DBG: a("v_mfma_f32_16x16x32_bf16 %s, %s, %s, %s" % (vr(c), vr(A), vr(B), vr(c)))
                    nfill = 1
                    while pend and nfill:
                        k, t = pend.pop(0)
                        if k == "x":
                            a(t)
                            if t.startswith("s_") and nm < 8: continue
                        else: rd(t)
                        nfill -= 1
                    nm += 1
                pend += [("r", t) for t in freads(z, ft)]
        for k, t in pend:
            if k == "x": a(t)
            else: rd(t)
        a("s_waitcnt lgkmcnt(15)")
        if len(trk.out) > 15: trk.out = trk.out[-15:]
    a.label("%s_cloop" % name)
    trk.out = []
    lb = len(a.lines)
    iteration(0); iteration(1)
    state = copy.deepcopy(trk.out)
    del a.lines[lb:]
    trk.out = copy.deepcopy(state)
    iteration(0); iteration(1)
    assert [sorted(x) for x in trk.out] == [sorted(x) for x in state]
    a("s_cmp_lt_u32 s33, %d" % (NK // 2))
    a("s_cbranch_scc1 %s_cloop" % name)
    trk.drain()
    stamp(a, 3)
    a("s_waitcnt vmcnt(0)")
    a("s_barrier")
    a("s_or_b32 s36, s3, s21")
    a("s_cmp_lg_u32 s36, 0")
    a("s_cbranch_scc1 %s_nosig" % name)
    a("v_mov_b32 v10, 1")
    a("s_lshl_b32 s36, s22, 2")
    a("v_mov_b32 v11, s36")
    a("s_mov_b64 exec, 1")
    a("buffer_atomic_add v10, v11, s[60:63], 0 offen sc1")
    a("s_mov_b64 exec, -1")
    a.label("%s_nosig" % name)
    a("s_mul_i32 s36, s3, 18432")
    a("s_add_u32 s36, s36, %d" % TB0)
    a("v_lshlrev_b32 v10, 4, v2")
    a("v_add_u32 v11, s36, v10")
    for n, (ft, tt) in enumerate(TILES):
        a("ds_write_b128 v11, %s offset:%d" % (vr(accr(1, ft, tt)), 1024 * tidx(ft, tt)))
        if n in (7, 13): a("s_waitcnt lgkmcnt(4)")
    a("s_mov_b32 s40, 0")
    a("s_waitcnt lgkmcnt(0)")
    a("s_barrier")
    a.label("%s_epi" % name)
    MR = 100; CS = 52; ZP = 16; T = 72
    gelu_consts(a)
    a("s_lshl_b32 s36, s24, 9")
    a("s_lshl_b32 s37, s25, 8")
    a("s_add_u32 s38, s36, s37")
    a("s_xor_b32 s37, s37, 256")
    a("s_add_u32 s39, s36, s37")
    a("v_lshlrev_b32 v10, 3, v3")
    a("v_add_u32 v11, s38, v10")
    a("ds_read_b64 %s, v11 offset:%d" % (vr(MR, 2), RST))
    a("ds_read_b64 %s, v11 offset:%d" % (vr(MR + 2, 2), RST + 128))
    a("v_add_u32 v11, s39, v10")
    a("ds_read_b64 %s, v11 offset:%d" % (vr(MR + 4, 2), RST))
    a("ds_read_b64 %s, v11 offset:%d" % (vr(MR + 6, 2), RST + 128))
    a("v_lshrrev_b32 v10, 4, v2")
    a("v_lshlrev_b32 v10, 4, v10")
    a("v_add_u32 v10, s40, v10")
    a("s_mul_i32 s36, s25, 320")
    a("v_add_u32 v11, s36, v10")
    a("s_waitcnt lgkmcnt(6)")
    for ft in range(4):
        a("ds_read_b128 %s, v11 offset:%d" % (vr(CS + 4 * ft), CSO + 64 * ft))
    a("ds_read_b128 %s, v10 offset:%d" % (vr(CS + 16), CSO + 256))
    S = [108, 110, 8, 12]; Q = [109, 111, 9, 13]
    for tt in range(4):
        a("v_mov_b32 v%d, 0" % S[tt]); a("v_mov_b32 v%d, 0" % Q[tt])
    a("v_mov_b32 v88, 0x3f803f80")
    a("s_waitcnt lgkmcnt(0)")
    for ft in range(5):
        if ft == 3:
            seg_end(a, name)
            a.label("%s_seg1" % name)
        tts = range(4 if ft < 4 else 2)
        items = [(ACC + 4 * tidx(ft, tt), CS + 4 * ft, MR + 2 * tt, ZP + 2 * tidx(ft, tt)) for tt in tts]
        emit_fold_gelu(a, items, T)
        for d in range(2):
            for tt in tts:
                p = ZP + 2 * tidx(ft, tt) + d
                a("v_dot2_f32_bf16 v%d, v%d, v88, v%d" % (S[tt], p, S[tt]))
                a("v_dot2_f32_bf16 v%d, v%d, v%d, v%d" % (Q[tt], p, p, Q[tt]))
    a("s_cmp_eq_u32 s21, 0")
    a("s_cbranch_scc1 %s_z2" % name)
    a("s_lshl_b32 s36, s22, 4")
    a("s_add_u32 s36, s36, s23")
    a("s_lshl_b32 s36, s36, 2")
    a("s_add_u32 s36, s36, s3")
    a("s_mul_i32 s36, s36, 9216")
    a("s_add_u32 s36, s36, 0x%x" % Z1IMG)
    a("v_lshlrev_b32 v10, 4, v2")
    for q in range(9):
        if q in (4, 8): a("s_add_u32 s36, s36, 4096")
        a("buffer_store_dwordx4 %s, v10, s[12:15], s36 offen offset:%d" % (vr(ZP + 4 * q), (q & 3) * 1024))
    a("s_branch %s_conv" % name)
    a.label("%s_z2" % name)
    a("s_nop 1")
    emit_xg_reduce(a, S + Q, 72)
    gran_addr()
    for g in range(1, 4):
        a("v_cmp_eq_u32 vcc, %d, v10" % g)
        a("s_nop 1")
        a("v_cndmask_b32 v%d, v%d, v%d, vcc" % (S[0], S[0], S[g]))
        a("v_cndmask_b32 v%d, v%d, v%d, vcc" % (Q[0], Q[0], Q[g]))
    a("v_and_b32 v%d, 0x7fffffff, v%d" % (Q[0], Q[0]))
    a("buffer_store_dwordx2 v[%d:%d], v94, s[12:15], s58 offen sc1" % (S[0], Q[0]))
    a.label("%s_conv" % name)
    seg_end(a, name)
    a.label("%s_seg2" % name)
    stamp(a, 4)
    for r_ in range(36):
        a("v_mov_b32 v%d, v%d" % (200 + r_, ZP + r_))
    a("s_lshl_b32 s42, s22, 4")
    a("s_add_u32 s42, s42, s23")
    a("s_lshl_b32 s36, s21, 8")
    a("s_add_u32 s42, s42, s36")
    a("v_and_b32 v0, 255, v0")
    G2.emit_prep2(a, name)
    stamp(a, 5)
    a("s_cmp_lg_u32 s21, 0")
    a("s_cbranch_scc1 %s_fin" % name)
    a("v_and_b32 v3, 15, v2")
    ZP = 200
    a("s_lshl_b32 s33, s22, 2")
    a("v_mov_b32 v9, s33")
    a("s_mov_b32 s40, 0")
    a("v_lshlrev_b32 v11, 4, v3")
    a.label("%s_poll2" % name)
    a("buffer_load_dword v12, v9, s[60:63], 0 offen sc1")
    a("s_waitcnt vmcnt(0)")
    a("buffer_load_dwordx4 v[112:115], v11, s[12:15], s59 offen sc1")
    a("s_add_u32 s40, s40, 1")
    a("v_subrev_u32 v12, 8, v12")
    a("s_waitcnt vmcnt(0)")
    a("v_or3_b32 v12, v12, v113, v115")
    a("v_cmp_gt_i32 vcc, 0, v12")
    a("s_cmp_gt_u32 s40, %d" % SPIN_MAX)
    a("s_cbranch_scc1 %s_poll2x" % name)
    a("s_cbranch_vccz %s_poll2x" % name)
    a("s_sleep 10")
    a("s_branch %s_poll2" % name)
    a.label("%s_poll2x" % name)
    a("v_lshrrev_b32 v10, 4, v2")
    a("v_lshlrev_b32 v11, 8, v3")
    a("v_lshl_add_u32 v11, v10, 6, v11")
    a("s_lshl_b32 s33, s25, 13")
    a("s_add_u32 s36, s59, s33")
    a("s_xor_b32 s33, s33, 8192")
    a("s_add_u32 s37, s59, s33")
    a("s_add_u32 s38, s36, 4096")
    a("s_add_u32 s39, s37, 4096")
    PB = 112
    a.label("%s_poll1" % name)
    if "inv" in DBG: a("buffer_inv sc1")
    POL = "sc0 sc1" if "sc01" in DBG else "sc1"
    for tt in range(4):
        for q in range(4):
            a("buffer_load_dwordx4 %s, v11, s[12:15], s%d offen offset:%d %s" % (vr(PB + 16 * tt + 4 * q), (36, 38, 37, 39)[tt], 16 * q, POL))
    a("s_waitcnt vmcnt(0)")
    a("v_mov_b32 v12, 0")
    for r in range(PB + 1, PB + 64, 4):
        a("v_or3_b32 v12, v12, v%d, v%d" % (r, r + 2))
    a("v_cmp_gt_i32 vcc, 0, v12")
    a("s_add_u32 s40, s40, 1")
    a("s_cmp_gt_u32 s40, %d" % SPIN_MAX)
    a("s_cbranch_scc1 %s_poll1x" % name)
    a("s_cbranch_vccz %s_poll1x" % name)
    a("s_sleep 20")
    a("s_branch %s_poll1" % name)
    a.label("%s_poll1x" % name)
    stamp(a, 6)
    a.label("%s_seg3" % name)
    for tt in range(4):
        b = PB + 16 * tt
        for st in (8, 4, 2):
            for q in range(0, st, 2):
                a("v_pk_add_f32 %s, %s, %s" % (vr(b + q, 2), vr(b + q, 2), vr(b + q + st, 2)))
    emit_xg_reduce(a, [PB + 16 * tt + e for tt in range(4) for e in range(2)], 72)
    for tt in range(4):
        b = PB + 16 * tt
        emit_ln_finish(a, b, b + 1, 2304, b + 2, MR + 2 * tt, b + 4)
        a("v_mul_f32 v%d, -v%d, v%d" % (MR + 2 * tt + 1, b + 2, MR + 2 * tt))
    a("v_lshrrev_b32 v11, 2, v2"); a("v_and_b32 v11, 1, v11"); a("v_lshlrev_b32 v11, 4, v11")
    a("v_lshrrev_b32 v12, 3, v2"); a("v_and_b32 v12, 1, v12"); a("v_lshl_add_u32 v11, v12, 2, v11")
    a("v_and_b32 v12, 3, v2"); a("v_add_u32 v11, v11, v12")
    a("v_mul_u32_u24 v11, 288, v11")
    a("v_lshrrev_b32 v12, 1, v10"); a("v_lshl_add_u32 v11, v12, 4, v11")
    a("v_and_b32 v12, 1, v10")
    a("v_lshl_add_u32 v13, v12, 5, v11")
    a("v_mul_u32_u24 v12, 2304, v12")
    a("v_add_u32 v9, v11, v12")
    a("s_lshl_b32 s33, s23, 5")
    a("s_lshl_b32 s36, s22, 1")
    a("s_add_u32 s33, s33, s36")
    a("s_add_u32 s33, s33, s24")
    a("s_mul_i32 s33, s33, 18432")
    if ZIMG: a("s_add_u32 s33, s33, 0x%x" % ZIMG)
    a("s_mul_i32 s36, s25, 9216")
    a("s_add_u32 s37, s33, s36")
    a("s_xor_b32 s36, s36, 9216")
    a("s_add_u32 s38, s33, s36")
    a("s_add_u32 s39, s37, 128")
    a("s_mul_i32 s36, s25, 160")
    a("s_add_u32 s37, s37, s36")
    a("s_add_u32 s38, s38, s36")
    def norm_pair(nA, ttA, nB, ttB, O):
        for q, (n, tt) in enumerate(((nA, ttA), (nB, ttB))):
            for d in range(2):
                z = ZP + 2 * n + d; t = T + 4 * q + 2 * d
                a("v_lshlrev_b32 v%d, 16, v%d" % (t, z))
                a("v_and_b32 v%d, 0xffff0000, v%d" % (t + 1, z))
        for q, (n, tt) in enumerate(((nA, ttA), (nB, ttB))):
            for d in range(2):
                t = T + 4 * q + 2 * d
                a("v_pk_fma_f32 %s, %s, %s, %s op_sel:[0,0,1] op_sel_hi:[1,0,1]" % (vr(t, 2), vr(t, 2), vr(MR + 2 * tt, 2), vr(MR + 2 * tt, 2)))
        for q in range(2):
            for d in range(2):
                t = T + 4 * q + 2 * d
                a("v_cvt_pk_bf16_f32 v%d, v%d, v%d" % (O + 2 * q + d, t, t + 1))
        a("s_nop 1")
        a("v_permlane16_swap_b32 v%d, v%d" % (O, O + 2))
        a("v_permlane16_swap_b32 v%d, v%d" % (O + 1, O + 3))
    cnt = 0
    for pr in range(2):
        for tt in range(4):
            O = 112 + 4 * cnt; cnt += 1
            norm_pair(tidx(2 * pr, tt), tt, tidx(2 * pr + 1, tt), tt, O)
            a("s_nop 0")
            a("buffer_store_dwordx4 %s, v13, s[12:15], s%d offen offset:%d" % (vr(O), 37 if tt < 2 else 38, (tt & 1) * 2304 + 64 * pr))
    O = 112 + 4 * cnt
    norm_pair(16, 0, 17, 1, O)
    a("s_nop 0")
    a("buffer_store_dwordx4 %s, v9, s[12:15], s39 offen" % vr(O))
    seg_end(a, name)
    a.label("%s_fin" % name)
    stamp(a, 7)
    a("s_waitcnt vmcnt(0)")
    stamp(a, 8)
    a.label("%s_end" % name)
    a("s_endpgm")
    return a.text(), kernel_desc(name, 256, 256), (name, 256, 512, LDSB)

def gen_k1g(name="k1_kernel"):
    a = Asm()
    DBG.add('nowarm')
    TS = 16384; NT = 3; TB0 = 4096; FB_ = TB0 + NT * TS; FSL = 18432; NF = 6; FS = 576; NK = 18
    LDSB = FB_ + NF * FSL; RST = 0; CSO = 1024; CJB = TB0 + 4 * 18432
    kernel_begin(a, name)
    a("s_load_dwordx2 s[80:81], s[0:1], 0")
    a("s_load_dwordx2 s[4:5], s[0:1], 56")
    a("s_cmp_ge_u32 s2, 256")
    a("s_cbranch_scc1 %s_end" % name)
    a("v_lshrrev_b32 v1, 6, v0")
    a("v_and_b32 v2, 63, v0")
    a("v_readfirstlane_b32 s3, v1")
    a("s_and_b32 s20, s2, 7")
    a("s_lshr_b32 s21, s2, 3")
    a("s_and_b32 s22, s20, 1")
    a("s_lshl_b32 s22, s22, 3")
    a("s_and_b32 s23, s21, 7")
    a("s_add_u32 s22, s22, s23")
    a("s_lshr_b32 s21, s21, 3")
    a("s_lshr_b32 s23, s20, 1")
    a("s_lshl_b32 s23, s23, 2")
    a("s_add_u32 s23, s23, s21")
    a("s_mov_b32 s99, 0")
    a("s_mov_b64 s[96:97], -1")
    a("s_cmp_lt_u32 s3, 4")
    a("s_cbranch_scc1 %s_consumer" % name)
    a("s_setprio 3")
    a("s_sub_u32 s3, s3, 4")
    a("v_lshrrev_b32 v3, 3, v2")
    a("v_and_b32 v4, 7, v2")
    VT = 16; VF = 20
    a("s_lshl_b32 s24, s3, 5")
    a("v_add_u32 v5, s24, v3")
    a("v_lshrrev_b32 v7, 4, v2")
    a("v_xor_b32 v7, v7, v4")
    a("v_mul_u32_u24 v6, 1152, v5")
    a("v_lshl_add_u32 v%d, v7, 4, v6" % VT)
    a("v_xor_b32 v%d, 64, v%d" % (VT + 1, VT))
    a("v_add_u32 v%d, %d, v%d" % (VT + 1, 9216 - 1024, VT + 1))
    a("v_add_u32 v%d, %d, v%d" % (VT + 2, 2 * (9216 - 1024), VT))
    a("v_add_u32 v%d, %d, v%d" % (VT + 3, 2 * (9216 - 1024), VT + 1))
    a("s_mul_i32 s26, s22, %d" % (128 * 1152))
    a("s_lshl_b32 s24, s3, 12")
    a("s_add_u32 s24, s24, %d" % TB0)
    a("s_mov_b32 s33, 0")
    a("s_waitcnt lgkmcnt(0)")
    srd(a, 28, 80, 2048 * 576 * 2)
    vm = VmTracker(a)
    def capture(f, *args):
        lb = len(a.lines); f(*args); out = a.lines[lb:]; del a.lines[lb:]; return out
    def issueT(m, part=None):
        a("s_add_u32 s35, s33, s24")
        a("s_mov_b32 m0, s35")
        if part != 0: a("s_add_u32 s33, s33, %d" % TS)
        else: a("s_nop 0")
        ns = range(4) if part is None else range(2 * part, 2 * part + 2)
        for n in ns:
            if "nodma" not in DBG: a("buffer_load_dwordx4 v%d, s[28:31], s26 offen offset:%d lds" % (VT + n, 1024 * n))
        if part != 0:
            a("s_add_u32 s26, s26, 128")
            a("s_cmp_eq_u32 s33, %d" % (NT * TS))
            a("s_cselect_b32 s33, 0, s33")
        vm.issue("T%d" % m if part != 0 else "Ta%d" % m, len(ns))
    issueT(0)
    srd(a, 8, 4, 576 * 4608 * 2)
    for n in range(5):
        if n: a("v_add_u32 v6, %d, v2" % (64 * n))
        src = "v6" if n else "v2"
        a("v_mul_u32_u24 v7, 1821, %s" % src)
        a("v_lshrrev_b32 v7, 16, v7")
        a("v_mul_u32_u24 v8, 36, v7")
        a("v_sub_u32 v8, %s, v8" % src)
        a("v_bfe_u32 v9, v7, 2, 1")
        a("v_lshlrev_b32 v6, 1, v9")
        a("v_xor_b32 v8, v8, v6")
        a("v_and_b32 v7, 3, v7")
        a("v_lshl_add_u32 v7, v9, 3, v7")
        a("v_mul_u32_u24 v7, 9216, v7")
        a("v_cmp_gt_u32 vcc, 18, v8")
        a("v_lshl_add_u32 v7, v8, 4, v7")
        a("v_mov_b32 v9, 4608")
        a("v_cndmask_b32 v9, -288, v9, vcc") if False else None
        a("v_mov_b32 v6, 0xfffffee0")
        a("v_cndmask_b32 v9, v6, v9, vcc")
        a("v_add_u32 v%d, v7, v9" % (VF + n))
        if 0 < n < 4: a("v_subrev_u32 v%d, %d, v%d" % (VF + n, 1024 * n, VF + n))
    a("s_and_b32 s36, s3, 1")
    a("s_lshl_b32 s36, s36, 4")
    a("s_lshr_b32 s37, s3, 1")
    a("s_lshl_b32 s37, s37, 2")
    a("s_add_u32 s36, s36, s37")
    a("s_mul_i32 s27, s36, 9216")
    a("s_mul_i32 s36, s23, 288")
    a("s_add_u32 s27, s27, s36")
    a("s_mul_i32 s25, s3, 4608")
    a("s_add_u32 s25, s25, %d" % FB_)
    a("s_mov_b32 s34, 0")
    def issueF(k):
        a("s_add_u32 s35, s34, s25")
        a("s_mov_b32 m0, s35")
        a("s_add_u32 s36, s35, 4096")
        for n in range(4):
            if "nodma" not in DBG: a("buffer_load_dwordx4 v%d, s[8:11], s27 offen offset:%d lds" % (VF + n, 1024 * n))
        a("s_mov_b32 m0, s36")
        a("s_mov_b64 exec, 0xffffffff")
        if "nodma" not in DBG: a("buffer_load_dwordx4 v%d, s[8:11], s27 offen lds" % (VF + 4))
        a("s_mov_b64 exec, -1")
        a("s_add_u32 s27, s27, %d" % (32 * 9216))
        a("s_add_u32 s34, s34, %d" % FSL)
        a("s_cmp_eq_u32 s34, %d" % (NF * FSL))
        a("s_cselect_b32 s34, 0, s34")
        vm.issue("F%d" % k, 5)
    issueF(0); issueF(1)
    def other_setup():
        a("s_load_dwordx2 s[6:7], s[0:1], 104")
        a("s_load_dwordx2 s[18:19], s[0:1], 96")
        a("s_waitcnt lgkmcnt(0)")
        srd(a, 12, 6, WS_BYTES)
        srd(a, 60, 18, 256)
    def prep_srds():
        srd(a, 68, 66, 2048 * 576 * 2)
        a("s_mov_b32 s88, s64"); a("s_mov_b32 s89, s65")
        srd(a, 64, 88, 2048 * 576 * 2)
        srd(a, 72, 76, 576 * 8)
        srd(a, 76, 100, 2304 * 576 * 2)
    other_setup()
    a("s_add_u32 s3, s3, 4"); stamp_setup(a, 1); stamp(a, 0); a("s_sub_u32 s3, s3, 4")
    a("s_load_dwordx4 s[64:67], s[0:1], 8")
    a("s_load_dwordx2 s[76:77], s[0:1], 24")
    a("s_load_dwordx2 s[100:101], s[0:1], 80")
    a("s_waitcnt lgkmcnt(0)")
    prep_srds()
    SS = [28, 30, 32, 34]; ONE = 36
    for r in range(28, 36): a("v_mov_b32 v%d, 0" % r)
    for r in range(ONE, ONE + 4): a("v_mov_b32 v%d, 0x3f803f80" % r)
    CA = 40
    for r in range(CA, CA + 20): a("v_mov_b32 v%d, 0" % r)
    XB = 64; CF = 80
    a("v_and_b32 v5, 15, v2")
    a("v_lshrrev_b32 v6, 4, v2")
    a("v_lshrrev_b32 v7, 1, v5")
    a("v_xor_b32 v6, v6, v7")
    a("v_lshlrev_b32 v6, 4, v6")
    a("v_lshl_add_u32 v6, v5, 7, v6")
    a("v_add_u32 v10, s24, v6")
    a("v_xor_b32 v26, 64, v10")
    RA = 112
    for r in range(RA, RA + 16): a("v_mov_b32 v%d, 0" % r)
    a("v_lshrrev_b32 v11, 2, v2")
    a("v_mul_u32_u24 v11, %d, v11" % FS)
    a("v_and_b32 v12, 3, v2")
    a("v_lshl_add_u32 v11, v12, 3, v11")
    a("v_bfe_u32 v13, v2, 4, 1")
    a("v_lshlrev_b32 v13, 5, v13")
    a("s_lshr_b32 s36, s3, 1")
    a("s_mul_i32 s37, s36, 9")
    a("s_and_b32 s38, s3, 1")
    a("s_lshl_b32 s38, s38, 2")
    a("s_add_u32 s37, s37, s38")
    a("s_lshl_b32 s40, s37, 6")
    a("s_lshl_b32 s37, s37, 5")
    a("s_add_u32 s37, s37, %d" % FB_)
    a("v_add_u32 v11, s37, v11")
    a("v_add_u32 v5, v11, v13")
    a("v_sub_u32 v6, v11, v13")
    a("s_cmp_eq_u32 s36, 0")
    a("s_cselect_b64 vcc, -1, 0")
    a("v_cndmask_b32 v11, v6, v5, vcc")
    a("v_cndmask_b32 v12, v5, v6, vcc")
    def rowstats_rd(ks):
        a("v_add_u32 v5, %d, v%d" % (((ks // 2) % NT) * TS, 26 if ks & 1 else 10))
        for n in range(2):
            a("ds_read_b128 %s, v5 offset:%d" % (vr(XB + 4 * n), 2048 * n))
    def rowstats_do():
        for n in range(2):
            a("v_mfma_f32_16x16x32_bf16 %s, %s, %s, %s" % (vr(RA + 4 * n), vr(ONE), vr(XB + 4 * n), vr(RA + 4 * n)))
            a("v_mfma_f32_16x16x32_bf16 %s, %s, %s, %s" % (vr(RA + 8 + 4 * n), vr(XB + 4 * n), vr(XB + 4 * n), vr(RA + 8 + 4 * n)))
    def colsum_rd(k):
        if "nocs" in DBG: return
        a("v_add_u32 v6, %d, v11" % ((k % NF) * FSL))
        a("v_add_u32 v7, %d, v12" % ((k % NF) * FSL))
        for q in range(5):
            for half in range(2):
                a("ds_read_b64_tr_b16 %s, v%d offset:%d" % (vr(CF + 4 * q + 2 * half, 2), 6 + (q & 1), 16 * half * FS + 32 * q))
    def colsum_do():
        if "nocs" in DBG: return
        for q in range(5):
            a("v_mfma_f32_16x16x32_bf16 %s, %s, %s, %s" % (vr(CA + 4 * q), vr(CF + 4 * q), vr(ONE), vr(CA + 4 * q)))
    vm.wait(["T0", "F0"])
    a("s_barrier")
    stamp(a, 1)
    colsum_rd(0); rowstats_rd(0)
    issueT(1); issueF(2); issueF(3)
    vm.wait(["F1"])
    a("s_barrier")
    for k in range(NK):
        dma = []
        if k == 0:
            dma += capture(issueF, 4) + capture(issueT, 2) + capture(issueF, 5)
        if k >= 1 and k + 5 < NK: dma += capture(issueF, k + 5)
        if k % 2 == 1 and (k - 1) // 2 + 3 < 9: dma += capture(issueT, (k - 1) // 2 + 3, 0)
        if k % 2 == 0 and k >= 2 and (k - 2) // 2 + 3 < 9: dma += capture(issueT, (k - 2) // 2 + 3, 1)
        comp = capture(colsum_do) + capture(rowstats_do)
        groups = []; cur = []
        for l in dma:
            cur.append(l)
            if "buffer_load" in l and "exec" not in "".join(cur[-2:-1]):
                groups.append(cur); cur = []
        if cur: groups.append(cur)
        nslots = max(1, len(groups) - 1)
        per = (len(comp) + nslots - 1) // nslots if comp else 0
        waited = False
        for gi, g in enumerate(groups):
            a.lines.extend(g)
            if comp and not any("exec, 0xffffffff" in x for x in g[-2:]):
                if not waited:
                    a("s_waitcnt lgkmcnt(0)"); waited = True
                a.lines.extend(comp[:per]); comp = comp[per:]
        if not waited: a("s_waitcnt lgkmcnt(0)")
        a.lines.extend(comp)
        if k + 1 < NK:
            colsum_rd(k + 1); rowstats_rd(k + 1)
            if "fine" in DBG:
                G.stamp_seq(a); vm.issue("st", 1)
            vm.wait(["F%d" % (k + 2), "T%d" % ((k + 2) // 2)])
            if "fine" in DBG:
                G.stamp_seq(a); vm.issue("st", 1)
            a("s_barrier")
    a("s_nop 7")
    a("v_and_b32 v5, 15, v2")
    a("v_lshrrev_b32 v6, 4, v2")
    a("v_lshrrev_b32 v7, 2, v5")
    a("v_and_b32 v8, 3, v5")
    for n in range(2):
        G_ = RA + 8 + 4 * n
        for r in range(1, 4):
            a("v_cmp_eq_u32 vcc, %d, v8" % r)
            a("s_nop 1")
            a("v_cndmask_b32 v%d, v%d, v%d, vcc" % (G_, G_, G_ + r))
    ML = 64
    for n in range(2):
        emit_ln_finish(a, RA + 4 * n, RA + 8 + 4 * n, 576, ML + 2 * n, ML + 2 * n + 1, 76)
        a("v_mov_b32 v%d, v%d" % (29 + 2 * n, ML + 2 * n + 1))
        a("v_sub_f32 v%d, 0, v%d" % (28 + 2 * n, ML + 2 * n))
    a("s_lshl_b32 s35, s3, 8")
    a("v_lshlrev_b32 v9, 3, v5")
    a("v_add_u32 v12, s35, v9")
    a("v_cmp_eq_u32 vcc, v6, v7")
    a("s_and_saveexec_b64 s[36:37], vcc")
    for n in range(2):
        a("ds_write_b64 v12, %s offset:%d" % (vr(28 + 2 * n, 2), RST + 128 * n))
    a("s_mov_b64 exec, s[36:37]")
    a("s_cmp_lg_u32 s23, 0")
    a("s_cbranch_scc1 %s_nost1" % name)
    a("s_lshl_b32 s35, s22, 7")
    a("s_lshl_b32 s36, s3, 5")
    a("s_add_u32 s35, s35, s36")
    a("s_lshl_b32 s35, s35, 3")
    a("s_add_u32 s35, s35, 0x%x" % STATS1)
    a("v_mov_b32 v7, 0x7ffffff0")
    a("v_cndmask_b32 v9, v7, v9, vcc")
    for n in range(2):
        a("buffer_store_dwordx2 %s, v9, s[12:15], s35 offen offset:%d" % (vr(ML + 2 * n, 2), 128 * n))
    a.label("%s_nost1" % name)
    a("v_lshrrev_b32 v12, 4, v2")
    a("v_lshlrev_b32 v12, 4, v12")
    a("v_add_u32 v12, s40, v12")
    a("v_and_b32 v13, 15, v2")
    a("v_cmp_eq_u32 vcc, 0, v13")
    a("s_and_saveexec_b64 s[36:37], vcc")
    for q in range(5):
        a("ds_write_b128 v12, %s offset:%d" % (vr(CA + 4 * q), CSO + 64 * q))
    a("s_mov_b64 exec, s[36:37]")
    a("s_waitcnt lgkmcnt(0)")
    a("s_barrier")
    ACC = 112
    a("s_lshr_b32 s24, s3, 1")
    a("s_and_b32 s25, s3, 1")
    a("v_and_b32 v3, 15, v2")
    a("s_mov_b32 s98, 1")
    a("s_lshl_b32 s36, s3, 14")
    a("s_add_u32 s36, s36, %d" % TB0)
    a("v_lshlrev_b32 v10, 4, v2")
    a("v_add_u32 v11, s36, v10")
    a("s_barrier")
    n_ = 0
    for z in range(2):
        for ft in range(4):
            for tt in range(2):
                a("ds_read_b128 %s, v11 offset:%d" % (vr(ACC + 72 * z + 4 * tidx(ft, tt)), 1024 * n_))
                n_ += 1
                if n_ in (8, 13): a("s_waitcnt lgkmcnt(4)")
    a("s_branch %s_epi" % name)

    def gran_addr():
        a("v_lshrrev_b32 v10, 4, v2")
        a("s_lshl_b32 s33, s25, 1")
        a("v_add_u32 v11, s33, v10")
        a("v_and_b32 v11, 3, v11")
        a("v_lshl_add_u32 v11, v11, 4, v3")
        a("v_lshlrev_b32 v94, 8, v11")
        a("s_lshl_b32 s59, s22, 7")
        a("s_lshl_b32 s36, s24, 6")
        a("s_add_u32 s59, s59, s36")
        a("s_lshl_b32 s59, s59, 8")
        a("s_add_u32 s59, s59, 0x%x" % STATS2)
        a("s_lshl_b32 s36, s23, 1")
        a("s_add_u32 s36, s36, s25")
        a("s_lshl_b32 s36, s36, 3")
        a("s_add_u32 s58, s36, s59")
    a.label("%s_consumer" % name)
    a("s_load_dwordx4 s[64:67], s[0:1], 8")
    a("s_load_dwordx2 s[76:77], s[0:1], 24")
    a("s_load_dwordx2 s[100:101], s[0:1], 80")
    a("s_lshr_b32 s24, s3, 1")
    a("s_and_b32 s25, s3, 1")
    a("v_and_b32 v3, 15, v2")
    other_setup()
    srd(a, 28, 80, 2048 * 576 * 2)
    srd(a, 8, 4, 576 * 4608 * 2)
    if "nopf" not in DBG:
        a("s_and_b32 s36, s22, 7")
        a("s_mul_i32 s36, s36, 72")
        a("s_mul_i32 s37, s3, 18")
        a("s_add_u32 s36, s36, s37")
        a("s_mul_i32 s36, s36, 9216")
        a("s_mul_i32 s37, s23, 288")
        a("s_add_u32 s36, s36, s37")
        a("s_and_b32 s36, s36, 0xffffff80")
        a("v_lshrrev_b32 v10, 2, v2")
        a("v_mul_u32_u24 v10, 9216, v10")
        a("v_and_b32 v11, 3, v2")
        a("v_lshl_add_u32 v10, v11, 7, v10")
        a("v_and_b32 v12, 7, v2")
        a("v_lshrrev_b32 v12, 2, v12")
        a("v_mul_u32_u24 v12, 9216, v12")
        a("v_lshl_add_u32 v12, v11, 7, v12")
        a("s_add_u32 s37, s36, 4608")
        a("s_add_u32 s38, s36, %d" % (16 * 9216))
        a("s_add_u32 s39, s37, %d" % (16 * 9216))
        a("buffer_load_dword v96, v10, s[8:11], s37 offen")
        a("buffer_load_dword v96, v10, s[8:11], s36 offen")
        a("buffer_load_dword v96, v12, s[8:11], s39 offen")
        a("buffer_load_dword v96, v12, s[8:11], s38 offen")
        a("s_lshr_b32 s36, s2, 6")
        a("s_lshl_b32 s36, s36, 5")
        a("s_lshl_b32 s37, s22, 7")
        a("s_add_u32 s36, s36, s37")
        a("s_mul_i32 s36, s36, 1152")
        a("s_mul_i32 s37, s3, 9216")
        a("s_add_u32 s36, s36, s37")
        a("v_lshlrev_b32 v11, 7, v2")
        a("buffer_load_dword v96, v11, s[28:31], s36 offen")
        a("v_and_b32 v11, 7, v2")
        a("v_lshlrev_b32 v11, 7, v11")
        a("s_add_u32 s36, s36, 8192")
        a("buffer_load_dword v96, v11, s[28:31], s36 offen")
    prep_srds()
    if "nopf2" not in DBG:
        a("s_lshl_b32 s41, s2, 1")
        a("s_add_u32 s41, s41, s24")
        a("s_cmp_ge_u32 s41, 288")
        a("s_cbranch_scc1 %s_nopf2" % name)
        a("s_mul_hi_u32 s36, s41, 0x%x" % ((2**32 + 8) // 9))
        a("s_mul_i32 s37, s36, 9")
        a("s_sub_u32 s37, s41, s37")
        a("s_mul_i32 s36, s36, %d" % (64 * 1152))
        a("s_lshl_b32 s37, s37, 7")
        a("s_add_u32 s36, s36, s37")
        a("v_mul_u32_u24 v10, 1152, v2")
        a("s_cmp_eq_u32 s25, 0")
        a("s_cbranch_scc1 %s_pfk" % name)
        a("buffer_load_dword v96, v10, s[68:71], s36 offen")
        a("s_branch %s_nopf2" % name)
        a.label("%s_pfk" % name)
        a("buffer_load_dword v96, v10, s[64:67], s36 offen")
        a.label("%s_nopf2" % name)
        a("s_mul_i32 s36, s2, 10368")
        a("s_mul_i32 s37, s3, 2688")
        a("s_add_u32 s36, s36, s37")
        a("v_min_u32 v10, 20, v2")
        a("v_lshlrev_b32 v10, 7, v10")
        a("buffer_load_dword v96, v10, s[76:79], s36 offen")
    stamp_setup(a, 1); stamp(a, 0)
    a("s_mov_b32 s98, 0")
    gran_addr()
    a("v_mov_b32 v12, 0"); a("v_mov_b32 v13, 0x80000000")
    a("buffer_store_dwordx2 v[12:13], v94, s[12:15], s58 offen sc1")
    TB = [16, 32]; FR = 48
    vTa, vTb, vP = 4, 5, [6, 7]; vH = [8, 9]
    bTa = [88, 89]; bTb = [90, 91]; bP = [92, 93]; bH = [100, 101]
    PF = 96
    a("v_lshrrev_b32 v10, 4, v2")
    a("v_lshrrev_b32 v11, 1, v3")
    a("v_xor_b32 v10, v10, v11")
    a("v_lshlrev_b32 v10, 4, v10")
    a("v_lshl_add_u32 v10, v3, 7, v10")
    a("s_lshl_b32 s26, s24, 13")
    a("s_add_u32 s26, s26, %d" % TB0)
    a("v_add_u32 v10, s26, v10")
    a("s_lshl_b32 s26, s25, 12")
    a("v_add_u32 v%d, s26, v10" % bTa[0])
    a("s_xor_b32 s26, s26, 4096")
    a("v_add_u32 v%d, s26, v10" % bTb[0])
    a("v_xor_b32 v%d, 64, v%d" % (bTa[1], bTa[0]))
    a("v_xor_b32 v%d, 64, v%d" % (bTb[1], bTb[0]))
    a("v_lshrrev_b32 v10, 2, v2")
    a("v_mul_u32_u24 v10, %d, v10" % FS)
    a("v_and_b32 v11, 3, v2")
    a("v_lshl_add_u32 v10, v11, 3, v10")
    a("v_add_u32 v10, %d, v10" % FB_)
    a("v_bfe_u32 v13, v2, 4, 1")
    a("v_lshlrev_b32 v13, 5, v13")
    a("v_add_u32 v%d, v10, v13" % bH[0])
    a("v_sub_u32 v%d, v10, v13" % bH[1])
    a("s_mul_i32 s26, s25, 160")
    a("s_cmp_eq_u32 s25, 0")
    a("s_cselect_b64 vcc, -1, 0")
    a("v_cndmask_b32 v11, v%d, v%d, vcc" % (bH[1], bH[0]))
    a("v_cndmask_b32 v12, v%d, v%d, vcc" % (bH[0], bH[1]))
    a("v_add_u32 v%d, s26, v11" % bP[0])
    a("v_add_u32 v%d, s26, v12" % bP[1])
    a("v_lshrrev_b32 v10, 4, v2")
    a("v_lshlrev_b32 v10, 12, v10")
    a("v_lshl_add_u32 v95, v3, 4, v10")
    a("s_lshl_b32 s41, s22, 7")
    a("s_lshl_b32 s36, s3, 5")
    a("s_add_u32 s41, s41, s36")
    a("s_lshl_b32 s41, s41, 12")
    a("s_lshl_b32 s36, s23, 8")
    a("s_add_u32 s41, s41, s36")
    for r in range(ACC, ACC + 144): a("v_mov_b32 v%d, 0" % r)
    def accr(z, ft, tt): return ACC + 72 * z + 4 * tidx(ft, tt)
    def Fr(z, ft): return FR + 20 * z + 4 * ft
    trk = LdsTracker(a)
    def treads(buf):
        L = []
        for tt in range(4):
            r = TB[buf] + 4 * tt
            L.append(("ds_read_b128 %s, v%d offset:%d" % (vr(r), vTa if tt < 2 else vTb, (tt & 1) * 2048), range(r, r + 4)))
        return L
    def freads(z, ft):
        r = Fr(z, ft); L = []
        for half in range(2):
            off = 16 * half * FS + 32 * (9 * z + ft)
            v = vP[(z + ft) & 1] if ft < 4 else vH[z]
            L.append(("ds_read_b64_tr_b16 %s, v%d offset:%d" % (vr(r + 2 * half, 2), v, off), range(r + 2 * half, r + 2 * half + 2)))
        return L
    def rd(t):
        a(t[0]); trk.issue(t[1])
    fpairs = ((vP[0], bP[0]), (vP[1], bP[1]), (vH[0], bH[0]), (vH[1], bH[1]))
    a("v_mov_b32 v%d, v%d" % (vTa, bTa[0])); a("v_mov_b32 v%d, v%d" % (vTb, bTb[0]))
    for d, s_ in fpairs: a("v_mov_b32 v%d, v%d" % (d, s_))
    a("s_mov_b32 s27, 0")
    a("s_mov_b32 s34, 0")
    a("s_mov_b32 s33, 0")
    stamp(a, 1)
    a("s_barrier")
    stamp(a, 2)
    for t in treads(0): rd(t)
    for z in range(2):
        for ft in range(5):
            for t in freads(z, ft): rd(t)
            if len(trk.out) >= 12: trk.drain()
    trk.drain()
    def iteration(par):
        G.stamp_seq(a)
        if "fine" in DBG: trk.out = []
        a("s_barrier")
        upd = []
        if par == 1:
            upd += ["s_add_u32 s27, s27, %d" % TS, "s_cmp_eq_u32 s27, %d" % (NT * TS), "s_cselect_b32 s27, 0, s27"]
        upd += ["v_add_u32 v%d, s27, v%d" % (vTa, bTa[1 - par]), "v_add_u32 v%d, s27, v%d" % (vTb, bTb[1 - par])]
        upd += ["s_add_u32 s34, s34, %d" % FSL, "s_cmp_eq_u32 s34, %d" % (NF * FSL), "s_cselect_b32 s34, 0, s34"]
        upd += ["v_add_u32 v%d, s34, v%d" % (d, s_) for d, s_ in fpairs]
        pend = [("x", u) for u in upd] + [("r", t) for t in treads(1 - par)]
        if par == 0:
            pass
        else:
            pend.append(("x", "s_add_u32 s33, s33, 1"))
        nm = 0
        for z in range(2):
            for ft in range(5):
                for tt in range(4 if ft < 4 else 2):
                    c = accr(z, ft, tt); A = Fr(z, ft); B = TB[par] + 4 * tt
                    trk.need(list(range(A, A + 4)) + list(range(B, B + 4)))
                    if "nomfma" not in DBG: a("v_mfma_f32_16x16x32_bf16 %s, %s, %s, %s" % (vr(c), vr(A), vr(B), vr(c)))
                    nfill = 1
                    while pend and nfill:
                        k, t = pend.pop(0)
                        if k == "x":
                            a(t)
                            if t.startswith("s_") and nm < 8: continue
                        else: rd(t)
                        nfill -= 1
                    nm += 1
                pend += [("r", t) for t in freads(z, ft)]
        for k, t in pend:
            if k == "x": a(t)
            else: rd(t)
        a("s_waitcnt lgkmcnt(15)")
        if len(trk.out) > 15: trk.out = trk.out[-15:]
    a.label("%s_cloop" % name)
    trk.out = []
    lb = len(a.lines)
    iteration(0); iteration(1)
    state = copy.deepcopy(trk.out)
    del a.lines[lb:]
    trk.out = copy.deepcopy(state)
    iteration(0); iteration(1)
    assert [sorted(x) for x in trk.out] == [sorted(x) for x in state]
    a("s_cmp_lt_u32 s33, %d" % (NK // 2))
    a("s_cbranch_scc1 %s_cloop" % name)
    trk.drain()
    stamp(a, 3)
    a("s_waitcnt vmcnt(0)")
    a("s_barrier")
    a("s_cmp_lg_u32 s3, 0")
    a("s_cbranch_scc1 %s_nosig" % name)
    a("v_mov_b32 v10, 1")
    a("s_lshl_b32 s36, s22, 2")
    a("v_mov_b32 v11, s36")
    a("s_mov_b64 exec, 1")
    a("buffer_atomic_add v10, v11, s[60:63], 0 offen sc1")
    a("s_mov_b64 exec, -1")
    a.label("%s_nosig" % name)
    a("s_lshl_b32 s36, s3, 14")
    a("s_add_u32 s36, s36, %d" % TB0)
    a("v_lshlrev_b32 v10, 4, v2")
    a("v_add_u32 v11, s36, v10")
    n_ = 0
    for z in range(2):
        for ft in range(4):
            for tt in range(2):
                a("ds_write_b128 v11, %s offset:%d" % (vr(accr(z, ft, tt + 2)), 1024 * n_))
                n_ += 1
                if n_ in (8, 13): a("s_waitcnt lgkmcnt(4)")
    a("s_waitcnt lgkmcnt(0)")
    a("s_barrier")
    a.label("%s_epi" % name)
    MR = 100; CS = 52; T = 72; ZP1 = 16
    ZP2 = lambda n: 192 + 16 * (n >> 2) + 2 * (n & 3)
    ZP1f = lambda n: 184 + 16 * (n >> 1) + 2 * (n & 1)
    gelu_consts(a)
    a("s_xor_b32 s52, s98, s25")
    a("s_lshl_b32 s36, s24, 9")
    a("s_lshl_b32 s37, s52, 8")
    a("s_add_u32 s38, s36, s37")
    a("v_lshlrev_b32 v10, 3, v3")
    a("v_add_u32 v11, s38, v10")
    a("ds_read_b64 %s, v11 offset:%d" % (vr(MR, 2), RST))
    a("ds_read_b64 %s, v11 offset:%d" % (vr(MR + 2, 2), RST + 128))
    a("v_lshrrev_b32 v10, 4, v2")
    a("v_lshlrev_b32 v4, 4, v10")
    a("s_mul_i32 s36, s25, 320")
    a("v_add_u32 v5, s36, v4")
    def cs_loads(z):
        for ft in range(4):
            a("ds_read_b128 %s, v5 offset:%d" % (vr(CS + 4 * ft), CSO + 576 * z + 64 * ft))
        a("ds_read_b128 %s, v4 offset:%d" % (vr(CS + 16), CSO + 576 * z + 256))
    a("s_waitcnt lgkmcnt(6)")
    cs_loads(0)
    S = [108, 110]; Q = [109, 111]
    for r_ in range(108, 112): a("v_mov_b32 v%d, 0" % r_)
    a("v_mov_b32 v88, 0x3f803f80")
    a("s_waitcnt lgkmcnt(0)")
    def gelu_z(z, ZP, stats):
        def dots(lst):
            if not stats: return
            for d in range(2):
                for (ft, tt) in lst:
                    p = ZP(2 * ft + tt) + d
                    a("v_dot2_f32_bf16 v%d, v%d, v88, v%d" % (S[tt], p, S[tt]))
                    a("v_dot2_f32_bf16 v%d, v%d, v%d, v%d" % (Q[tt], p, p, Q[tt]))
        for f0 in (0, 2):
            lst = [(ft, tt) for ft in (f0, f0 + 1) for tt in range(2)]
            emit_fold_gelu(a, [(ACC + 72 * z + 4 * tidx(ft, tt), CS + 4 * ft, MR + 2 * tt, ZP(2 * ft + tt)) for ft, tt in lst], T)
            dots(lst)
        a("s_cmp_lg_u32 s98, 0")
        a("s_cbranch_scc1 %s_nohalf%d" % (name, z))
        lst = [(4, 0), (4, 1)]
        emit_fold_gelu(a, [(ACC + 72 * z + 4 * tidx(ft, tt), CS + 4 * ft, MR + 2 * tt, ZP(2 * ft + tt)) for ft, tt in lst], T)
        dots(lst)
        a.label("%s_nohalf%d" % (name, z))
    gelu_z(0, ZP2, True)
    cs_loads(1)
    a("s_nop 1")
    emit_xg_reduce(a, S + Q, 72)
    a("s_lshl_b32 s59, s22, 7")
    a("s_lshl_b32 s36, s24, 6")
    a("s_add_u32 s59, s59, s36")
    a("s_lshl_b32 s36, s52, 5")
    a("s_add_u32 s59, s59, s36")
    a("s_lshl_b32 s59, s59, 8")
    a("s_add_u32 s59, s59, 0x%x" % STATS2)
    a("s_lshl_b32 s36, s23, 1")
    a("s_add_u32 s36, s36, s25")
    a("s_lshl_b32 s36, s36, 3")
    a("s_add_u32 s58, s36, s59")
    a("v_lshlrev_b32 v11, 8, v2")
    a("v_cmp_gt_u32 vcc, 32, v2")
    a("v_mov_b32 v12, 0x7ffffff0")
    a("v_cmp_eq_u32 s[36:37], 1, v10")
    a("v_cndmask_b32 v11, v12, v11, vcc")
    a("s_nop 0")
    a("v_cndmask_b32 v108, v108, v110, s[36:37]")
    a("v_cndmask_b32 v109, v109, v111, s[36:37]")
    a("v_and_b32 v109, 0x7fffffff, v109")
    a("buffer_store_dwordx2 v[108:109], v11, s[12:15], s58 offen sc1")
    a("s_setprio 0")
    stamp(a, 4)
    a("s_lshl_b32 s42, s2, 1")
    a("s_add_u32 s42, s42, s98")
    a("v_and_b32 v0, 255, v0")
    emit_wot_loads(a, 136, 144)
    a("s_mov_b32 s41, s42")
    a("s_cmp_ge_u32 s41, 288")
    a("s_cbranch_scc1 %s_nokv1" % name)
    emit_kv_loads(a, 112, 124, 132, 146, 147)
    a.label("%s_nokv1" % name)
    PB = 148
    a("v_lshrrev_b32 v182, 4, v2")
    a("v_lshlrev_b32 v181, 8, v3")
    a("v_lshl_add_u32 v181, v182, 6, v181")
    a("s_lshl_b32 s33, s22, 2")
    a("v_mov_b32 v182, s33")
    a("s_add_u32 s53, s59, 4096")
    a("buffer_load_dword v180, v182, s[60:63], 0 offen sc1")
    a("s_load_dwordx2 s[90:91], s[0:1], 64")
    a("v_lshrrev_b32 v183, 4, v2")
    a("v_lshlrev_b32 v183, 12, v183")
    a("v_lshl_add_u32 v183, v3, 4, v183")
    a("s_lshl_b32 s82, s22, 7")
    a("s_lshl_b32 s36, s3, 5")
    a("s_add_u32 s82, s82, s36")
    a("s_lshl_b32 s36, s98, 4")
    a("s_add_u32 s82, s82, s36")
    a("s_lshl_b32 s82, s82, 12")
    a("s_lshl_b32 s36, s23, 8")
    a("s_add_u32 s82, s82, s36")
    a("s_waitcnt lgkmcnt(0)")
    srd(a, 92, 90, 2048 * 2048 * 2)
    for n in range(4):
        a("buffer_load_dwordx4 v[92:95], v183, s[92:95], s82 offen")
        if n < 3: a("s_add_u32 s82, s82, 16384")
    a("s_waitcnt lgkmcnt(0)")
    gelu_z(1, ZP1f, False)
    stamp(a, 5)
    a("s_waitcnt vmcnt(0)")
    def gather():
        for tt in range(2):
            for q in range(4):
                a("buffer_load_dwordx4 %s, v181, s[12:15], s%d offen offset:%d sc1" % (vr(PB + 16 * tt + 4 * q), (59, 53)[tt], 16 * q))
    gather()
    a("s_cmp_ge_u32 s41, 288")
    a("s_cbranch_scc1 %s_nokv2" % name)
    for n in range(11): a("v_mov_b32 v%d, v%d" % (16 + n, 112 + n))
    for n in range(8): a("v_mov_b32 v%d, v%d" % (32 + n, 124 + n))
    for n in range(4): a("v_mov_b32 v%d, v%d" % (44 + n, 132 + n))
    a("v_mov_b32 v56, v146"); a("v_mov_b32 v57, v147")
    emit_kv_compute(a, wait=False, store=False)
    a.label("%s_nokv2" % name)
    stamp(a, 6)
    a("s_mov_b32 s43, 0")
    a("v_lshrrev_b32 v10, 4, v2")
    a("s_waitcnt vmcnt(0)")
    a.label("%s_chk" % name)
    a("v_subrev_u32 v11, 16, v180")
    for r in range(PB + 1, PB + 32, 4):
        a("v_or3_b32 v11, v11, v%d, v%d" % (r, r + 2))
    a("v_cmp_gt_i32 vcc, 0, v11")
    a("s_add_u32 s43, s43, 1")
    a("s_cmp_gt_u32 s43, %d" % SPIN_MAX)
    a("s_cbranch_scc1 %s_poll1x" % name)
    a("s_cbranch_vccz %s_poll1x" % name)
    a("s_sleep 24")
    a("buffer_load_dword v180, v182, s[60:63], 0 offen sc1")
    a("s_waitcnt vmcnt(0)")
    gather()
    a("s_waitcnt vmcnt(0)")
    a("s_branch %s_chk" % name)
    a.label("%s_poll1x" % name)
    stamp(a, 7)
    for n in range(2):
        a("buffer_store_dwordx4 %s, v%d, s[12:15], s40 offen" % (vr(136 + 4 * n), 144 + n))
    a("s_cmp_ge_u32 s41, 288")
    a("s_cbranch_scc1 %s_nokv3" % name)
    a("s_mov_b32 s39, 0x%x" % KVT)
    a("buffer_store_dwordx4 v[120:123], v12, s[12:15], s39 offen")
    a("buffer_store_dwordx4 v[124:127], v13, s[12:15], s39 offen")
    a.label("%s_nokv3" % name)
    a("s_lshl_b32 s36, s22, 4")
    a("s_add_u32 s36, s36, s23")
    a("s_lshl_b32 s36, s36, 2")
    a("s_add_u32 s36, s36, s3")
    a("s_mul_i32 s36, s36, 9216")
    a("s_lshl_b32 s37, s98, 10")
    a("s_add_u32 s36, s36, s37")
    a("s_add_u32 s36, s36, 0x%x" % Z1IMG)
    a("s_add_u32 s37, s36, 4096")
    a("s_add_u32 s38, s36, 8192")
    a("v_lshlrev_b32 v11, 4, v2")
    for ft in range(4):
        a("buffer_store_dwordx4 %s, v11, s[12:15], s%d offen offset:%d" % (vr(184 + 16 * ft), 36 + (ft >> 1), (ft & 1) * 2048))
    a("s_cmp_lg_u32 s98, 0")
    a("s_cbranch_scc1 %s_noh1" % name)
    a("buffer_store_dwordx4 %s, v11, s[12:15], s38 offen" % vr(248))
    a.label("%s_noh1" % name)
    for tt in range(2):
        b = PB + 16 * tt
        for st in (8, 4, 2):
            for q in range(0, st, 2):
                a("v_pk_add_f32 %s, %s, %s" % (vr(b + q, 2), vr(b + q, 2), vr(b + q + st, 2)))
    emit_xg_reduce(a, [PB + 16 * tt + e for tt in range(2) for e in range(2)], 72)
    for tt in range(2):
        b = PB + 16 * tt
        emit_ln_finish(a, b, b + 1, 2304, b + 2, MR + 2 * tt, b + 4)
        a("v_mul_f32 v%d, -v%d, v%d" % (MR + 2 * tt + 1, b + 2, MR + 2 * tt))
    a("v_lshrrev_b32 v11, 2, v2"); a("v_and_b32 v11, 1, v11"); a("v_lshlrev_b32 v11, 4, v11")
    a("v_lshrrev_b32 v12, 3, v2"); a("v_and_b32 v12, 1, v12"); a("v_lshl_add_u32 v11, v12, 2, v11")
    a("v_and_b32 v12, 3, v2"); a("v_add_u32 v11, v11, v12")
    a("v_mul_u32_u24 v11, 288, v11")
    a("v_lshrrev_b32 v12, 1, v10"); a("v_lshl_add_u32 v11, v12, 4, v11")
    a("v_and_b32 v12, 1, v10")
    a("v_lshl_add_u32 v13, v12, 5, v11")
    a("v_mul_u32_u24 v12, 2304, v12")
    a("v_add_u32 v9, v11, v12")
    a("s_lshl_b32 s33, s23, 5")
    a("s_lshl_b32 s36, s22, 1")
    a("s_add_u32 s33, s33, s36")
    a("s_add_u32 s33, s33, s24")
    a("s_mul_i32 s33, s33, 18432")
    if ZIMG: a("s_add_u32 s33, s33, 0x%x" % ZIMG)
    a("s_mul_i32 s36, s52, 9216")
    a("s_add_u32 s37, s33, s36")
    a("s_add_u32 s39, s37, 128")
    a("s_mul_i32 s36, s25, 160")
    a("s_add_u32 s37, s37, s36")
    def norm_pair(nA, ttA, nB, ttB, O):
        for q, (n, tt) in enumerate(((nA, ttA), (nB, ttB))):
            for d in range(2):
                z = ZP2(n) + d; t = T + 4 * q + 2 * d
                a("v_lshlrev_b32 v%d, 16, v%d" % (t, z))
                a("v_and_b32 v%d, 0xffff0000, v%d" % (t + 1, z))
        for q, (n, tt) in enumerate(((nA, ttA), (nB, ttB))):
            for d in range(2):
                t = T + 4 * q + 2 * d
                a("v_pk_fma_f32 %s, %s, %s, %s op_sel:[0,0,1] op_sel_hi:[1,0,1]" % (vr(t, 2), vr(t, 2), vr(MR + 2 * tt, 2), vr(MR + 2 * tt, 2)))
        for q in range(2):
            for d in range(2):
                t = T + 4 * q + 2 * d
                a("v_cvt_pk_bf16_f32 v%d, v%d, v%d" % (O + 2 * q + d, t, t + 1))
        a("s_nop 1")
        a("v_permlane16_swap_b32 v%d, v%d" % (O, O + 2))
        a("v_permlane16_swap_b32 v%d, v%d" % (O + 1, O + 3))
    cnt = 0
    for pr in range(2):
        for tt in range(2):
            O = 16 + 4 * cnt; cnt += 1
            norm_pair(2 * (2 * pr) + tt, tt, 2 * (2 * pr + 1) + tt, tt, O)
            a("s_nop 0")
            a("buffer_store_dwordx4 %s, v13, s[12:15], s37 offen offset:%d" % (vr(O), tt * 2304 + 64 * pr))
    a("s_cmp_lg_u32 s98, 0")
    a("s_cbranch_scc1 %s_fin" % name)
    O = 16 + 4 * cnt
    norm_pair(8, 0, 9, 1, O)
    a("s_nop 0")
    a("buffer_store_dwordx4 %s, v9, s[12:15], s39 offen" % vr(O))
    a.label("%s_fin" % name)
    stamp(a, 8)
    G.stamp_rt(a, 1)
    a.label("%s_end" % name)
    a("s_endpgm")
    return a.text(), kernel_desc(name, 256, 256), (name, 256, 512, LDSB)


def emit_k2_epilogue2(a, core, Z1R, BI, pol=""):
    a("v_lshrrev_b32 v10, 4, v2")
    a("v_and_b32 v11, 1, v10")
    a("v_lshrrev_b32 v12, 1, v10")
    a("v_lshlrev_b32 v4, 5, v3")
    a("v_lshl_add_u32 v4, v11, 9, v4")
    a("v_lshl_add_u32 v4, v12, 4, v4")
    a("s_lshl_b32 s37, s22, 1")
    a("s_add_u32 s37, s37, s24")
    a("s_mul_i32 s37, s37, 144")
    a("s_mul_i32 s36, s23, 9")
    a("s_add_u32 s37, s37, s36")
    a("s_lshl_b32 s37, s37, 11")
    a("s_add_u32 s37, s37, 0x%x" % PIMG)
    a("s_lshl_b32 s38, s25, 10")
    a("s_add_u32 s35, s37, s38")
    a("s_add_u32 s35, s35, 8192")
    a("s_mul_i32 s36, s25, 10240")
    a("s_add_u32 s37, s37, s36")
    a("s_add_u32 s39, s37, s38")
    a("s_xor_b32 s38, s38, 1024")
    a("s_add_u32 s40, s37, s38")
    a("s_add_u32 s36, s39, 4096")
    a("s_add_u32 s37, s40, 4096")
    def ptiles(lst, O):
        T = 24
        for q, (ft, tt) in enumerate(lst):
            c = core.accr(ft, tt)
            for h in (0, 2):
                a("v_pk_add_f32 %s, %s, %s op_sel_hi:[1,0]" % (vr(c + h, 2), vr(c + h, 2), vr(BI + 2 * tt, 2)))
        for q, (ft, tt) in enumerate(lst):
            c = core.accr(ft, tt)
            a("v_cvt_pk_bf16_f32 v%d, v%d, v%d" % (T + 2 * q, c, c + 1))
            a("v_cvt_pk_bf16_f32 v%d, v%d, v%d" % (T + 2 * q + 1, c + 2, c + 3))
        for q, (ft, tt) in enumerate(lst):
            c = core.accr(ft, tt); z = Z1R + 2 * tidx(ft, tt)
            for d in range(2):
                a("v_lshlrev_b32 v%d, 16, v%d" % (c + 2 * d, T + 2 * q + d))
                a("v_and_b32 v%d, 0xffff0000, v%d" % (c + 2 * d + 1, T + 2 * q + d))
                a("v_lshlrev_b32 v%d, 16, v%d" % (T + 4 + 4 * q + 2 * d, z + d))
                a("v_and_b32 v%d, 0xffff0000, v%d" % (T + 5 + 4 * q + 2 * d, z + d))
        for q, (ft, tt) in enumerate(lst):
            c = core.accr(ft, tt)
            for h in (0, 2):
                a("v_pk_mul_f32 %s, %s, %s" % (vr(c + h, 2), vr(c + h, 2), vr(T + 4 + 4 * q + h, 2)))
        for q, (ft, tt) in enumerate(lst):
            c = core.accr(ft, tt)
            a("v_cvt_pk_bf16_f32 v%d, v%d, v%d" % (O + 2 * q, c, c + 1))
            a("v_cvt_pk_bf16_f32 v%d, v%d, v%d" % (O + 2 * q + 1, c + 2, c + 3))
        a("s_nop 1")
        a("v_permlane16_swap_b32 v%d, v%d" % (O, O + 2))
        a("v_permlane16_swap_b32 v%d, v%d" % (O + 1, O + 3))
        a("s_nop 0")
    cnt = 0
    for ft in range(4):
        for pp in range(2):
            O = 40 + 4 * cnt; cnt += 1
            ptiles([(ft, 2 * pp), (ft, 2 * pp + 1)], O)
            sreg = ((39, 40), (36, 37))[ft >> 1][pp]
            a("buffer_store_dwordx4 %s, v4, s[12:15], s%d offen offset:%d%s" % (vr(O), sreg, (ft & 1) * 2048, pol))
    O = 40 + 4 * cnt
    ptiles([(4, 0), (4, 1)], O)
    a("buffer_store_dwordx4 %s, v4, s[12:15], s35 offen%s" % (vr(O), pol))

def emit_k2_epilogue(a, core, Z1R, BI):
    a("v_lshrrev_b32 v10, 4, v2")
    a("v_and_b32 v11, 1, v10")
    a("v_lshrrev_b32 v12, 1, v10")
    a("v_lshl_add_u32 v12, v11, 1, v12")
    a("s_mul_i32 s35, s23, 18")
    a("s_mul_i32 s36, s25, 10")
    a("s_add_u32 s36, s36, s35")
    a("v_lshrrev_b32 v13, 1, v3")
    a("s_lshl_b32 s37, s22, 1")
    a("s_add_u32 s37, s37, s24")
    a("s_mul_i32 s37, s37, %d" % (36 * 8192))
    a("s_add_u32 s37, s37, 0x%x" % PIMG)
    a("s_lshl_b32 s38, s25, 12")
    a("s_add_u32 s39, s37, s38")
    a("s_xor_b32 s38, s38, 4096")
    a("s_add_u32 s40, s37, s38")
    def addr(dst, pv):
        a("v_lshrrev_b32 v14, 3, v%d" % pv)
        a("v_lshlrev_b32 v14, 13, v14")
        a("v_and_b32 v15, 7, v%d" % pv)
        a("v_xor_b32 v15, v15, v13")
        a("v_lshl_add_u32 v14, v15, 4, v14")
        a("v_lshl_add_u32 v%d, v3, 7, v14" % dst)
    a("v_add_u32 v16, s36, v12"); addr(4, 16)
    a("v_add_u32 v16, 4, v16"); addr(5, 16)
    a("v_lshrrev_b32 v16, 1, v10")
    a("s_add_u32 s35, s35, 8")
    a("v_add_u32 v16, s35, v16"); addr(6, 16)
    a("v_lshl_add_u32 v6, v11, 11, v6")
    def ptiles(lst, O):
        T = 24
        for q, (ft, tt) in enumerate(lst):
            c = core.accr(ft, tt)
            for h in (0, 2):
                a("v_pk_add_f32 %s, %s, %s op_sel_hi:[1,0]" % (vr(c + h, 2), vr(c + h, 2), vr(BI + 2 * tt, 2)))
        for q, (ft, tt) in enumerate(lst):
            c = core.accr(ft, tt)
            a("v_cvt_pk_bf16_f32 v%d, v%d, v%d" % (T + 2 * q, c, c + 1))
            a("v_cvt_pk_bf16_f32 v%d, v%d, v%d" % (T + 2 * q + 1, c + 2, c + 3))
        for q, (ft, tt) in enumerate(lst):
            c = core.accr(ft, tt); z = Z1R + 2 * tidx(ft, tt)
            for d in range(2):
                a("v_lshlrev_b32 v%d, 16, v%d" % (c + 2 * d, T + 2 * q + d))
                a("v_and_b32 v%d, 0xffff0000, v%d" % (c + 2 * d + 1, T + 2 * q + d))
                a("v_lshlrev_b32 v%d, 16, v%d" % (T + 4 + 4 * q + 2 * d, z + d))
                a("v_and_b32 v%d, 0xffff0000, v%d" % (T + 5 + 4 * q + 2 * d, z + d))
        for q, (ft, tt) in enumerate(lst):
            c = core.accr(ft, tt)
            for h in (0, 2):
                a("v_pk_mul_f32 %s, %s, %s" % (vr(c + h, 2), vr(c + h, 2), vr(T + 4 + 4 * q + h, 2)))
        for q, (ft, tt) in enumerate(lst):
            c = core.accr(ft, tt)
            a("v_cvt_pk_bf16_f32 v%d, v%d, v%d" % (O + 2 * q, c, c + 1))
            a("v_cvt_pk_bf16_f32 v%d, v%d, v%d" % (O + 2 * q + 1, c + 2, c + 3))
        a("s_nop 1")
        a("v_permlane16_swap_b32 v%d, v%d" % (O, O + 2))
        a("v_permlane16_swap_b32 v%d, v%d" % (O + 1, O + 3))
        a("s_nop 0")
    cnt = 0
    for pr in range(2):
        for tt in range(4):
            O = 40 + 4 * cnt; cnt += 1
            ptiles([(2 * pr, tt), (2 * pr + 1, tt)], O)
            a("buffer_store_dwordx4 %s, v%d, s[12:15], s%d offen offset:%d" % (vr(O), 4 + pr, 39 if tt < 2 else 40, (tt & 1) * 2048))
    O = 40 + 4 * cnt
    ptiles([(4, 0), (4, 1)], O)
    a("buffer_store_dwordx4 %s, v6, s[12:15], s39 offen" % vr(O))

def gen_k2b(name="k2_kernel", R=4):
    a = Asm()
    SLOT = 34816; TREG = 16384; FS = 288; NST = 32
    kernel_begin(a, name)
    a("s_load_dwordx2 s[4:5], s[0:1], 64")
    a("s_load_dwordx2 s[6:7], s[0:1], 104")
    a("s_load_dwordx4 s[88:91], s[0:1], 32")
    a("s_cmp_ge_u32 s2, 256")
    a("s_cbranch_scc1 %s_end" % name)
    a("v_lshrrev_b32 v1, 6, v0")
    a("v_and_b32 v2, 63, v0")
    a("v_readfirstlane_b32 s3, v1")
    G2.tile_ij(a)
    a("s_cmp_lt_u32 s3, 4")
    a("s_cbranch_scc1 %s_consumer" % name)
    if "noprio" not in DBG: a("s_setprio 3")
    a("s_sub_u32 s3, s3, 4")
    a("v_lshrrev_b32 v3, 3, v2")
    a("s_lshl_b32 s24, s3, 5")
    a("v_add_u32 v3, s24, v3")
    a("v_and_b32 v4, 7, v2")
    a("v_lshrrev_b32 v6, 4, v2")
    a("v_xor_b32 v6, v6, v4")
    a("v_lshlrev_b32 v6, 4, v6")
    a("v_lshl_add_u32 v10, v3, 12, v6")
    a("v_xor_b32 v11, 64, v10")
    a("v_add_u32 v11, %d, v11" % (32768 - 1024))
    a("v_add_u32 v12, %d, v10" % (2 * (32768 - 1024)))
    a("v_add_u32 v13, %d, v11" % (2 * (32768 - 1024)))
    a("v_lshlrev_b32 v14, 4, v2")
    a("s_lshl_b32 s26, s22, 19")
    a("s_mul_i32 s27, s23, %d" % (32 * 18432))
    a("s_lshl_b32 s24, s3, 12")
    a("s_add_u32 s27, s27, s24")
    if ZIMG: a("s_add_u32 s27, s27, 0x%x" % ZIMG)
    a("s_lshl_b32 s25, s3, 9")
    a("s_sub_u32 s32, s25, s24")
    a("s_add_u32 s32, s32, 16384")
    a("s_mov_b32 s33, 0")
    a("s_waitcnt lgkmcnt(0)")
    srd(a, 8, 4, 2048 * 2048 * 2)
    srd(a, 12, 6, WS_BYTES)
    def issue():
        a("s_add_u32 s35, s33, s24")
        a("s_mov_b32 m0, s35")
        a("s_add_u32 s36, s35, %d" % TREG)
        for n in range(4):
            a("buffer_load_dwordx4 v%d, s[8:11], s26 offen offset:%d lds" % (10 + n, n * 1024))
        a("s_mov_b32 m0, s36")
        a("s_add_u32 s37, s27, s32")
        for n in range(4):
            a("buffer_load_dwordx4 v14, s[12:15], s27 offen offset:%d lds" % (n * 1024))
        a("s_add_u32 s36, s36, s32")
        a("s_mov_b32 m0, s36")
        a("s_mov_b64 exec, 0xffffffff")
        a("buffer_load_dwordx4 v14, s[12:15], s37 offen lds")
        a("s_mov_b64 exec, -1")
        a("s_add_u32 s26, s26, 128")
        a("s_add_u32 s27, s27, 18432")
        a("s_add_u32 s33, s33, %d" % SLOT)
        a("s_cmp_eq_u32 s33, %d" % (R * SLOT))
        a("s_cselect_b32 s33, 0, s33")
    srd(a, 16, 88, 576 * 2048 * 2)
    srd(a, 84, 90, 576 * 2)
    a("s_lshl_b32 s43, s2, 2")
    a("s_add_u32 s43, s43, s3")
    a("s_and_b32 s53, s43, 1")
    a("s_sub_u32 s36, s43, 448")
    a("s_lshr_b32 s37, s43, 1")
    a("s_cmp_ge_u32 s43, 896")
    a("s_cselect_b32 s43, s36, s37")
    a("s_cselect_b32 s53, 2, s53")
    if "rampB" in DBG:
        issue(); issue()
        nconv = emit_conv_loads(a)
        a("s_waitcnt vmcnt(%d)" % (9 + nconv))
        a("s_barrier")
        issue(); issue()
        a("s_waitcnt vmcnt(%d)" % (18 + nconv))
        a("s_barrier")
    else:
        issue()
        nconv = emit_conv_loads(a)
        issue(); issue(); issue()
        a("s_waitcnt vmcnt(%d)" % (27 + nconv))
        a("s_barrier")
        a("s_waitcnt vmcnt(18)")
        a("s_barrier")
    a("s_add_u32 s3, s3, 4"); stamp_setup(a, 2); stamp(a, 0); a("s_sub_u32 s3, s3, 4")
    a("s_waitcnt vmcnt(9)")
    a("s_barrier")
    a("s_mov_b32 s34, 1")
    a.label("%s_lloop" % name)
    issue()
    a("s_waitcnt vmcnt(9)")
    a("s_barrier")
    a("s_add_u32 s34, s34, 1")
    a("s_cmp_lt_u32 s34, %d" % (NST - R + 1))
    a("s_cbranch_scc1 %s_lloop" % name)
    a("s_waitcnt vmcnt(0) lgkmcnt(0)")
    a("s_barrier")
    stamp(a, 1)
    a("s_mov_b32 s26, s53")
    a("s_and_b32 s27, s3, 1")
    a("s_mul_i32 s27, s27, %d" % CJ_SIZE)
    a("s_lshr_b32 s36, s3, 1")
    a("s_mul_i32 s36, s36, %d" % SLOT)
    a("s_add_u32 s27, s27, s36")
    def mid():
        if "warm2" in DBG:
            a("s_cmp_eq_u32 s99, 1")
            a("s_cbranch_scc1 %s_midskip" % name)
        a("s_barrier")
        a("s_setprio 0")
        a.label("%s_midskip" % name)
    a.label("%s_cjstart" % name)
    if "noconv" in DBG:
        mid()
    else:
        emit_conv_job(a, name, mid)
        G.stamp_rt(a, 1)
    a("s_branch %s_end" % name)
    a.label("%s_consumer" % name)
    a("s_load_dwordx2 s[92:93], s[0:1], 72")
    a("s_load_dwordx2 s[94:95], s[0:1], 80")
    ACC = 128; FB = [16, 52]
    vTa = [4, 5]; vTb = [6, 7]; vF = 8; vFh = 9
    bTa = [88, 89]; bTb = [90, 91]; bF = 92; bFh = 93
    Z1R = 200; BI = 236
    a("s_lshr_b32 s24, s3, 1")
    a("s_and_b32 s25, s3, 1")
    a("v_and_b32 v3, 15, v2")
    a("v_lshrrev_b32 v10, 4, v2")
    a("v_lshrrev_b32 v11, 1, v3")
    a("v_xor_b32 v10, v10, v11")
    a("v_lshlrev_b32 v10, 4, v10")
    a("v_lshl_add_u32 v10, v3, 7, v10")
    a("s_lshl_b32 s26, s24, 13")
    a("v_add_u32 v10, s26, v10")
    a("s_lshl_b32 s26, s25, 12")
    a("v_add_u32 v%d, s26, v10" % bTa[0])
    a("s_xor_b32 s26, s26, 4096")
    a("v_add_u32 v%d, s26, v10" % bTb[0])
    a("v_xor_b32 v%d, 64, v%d" % (bTa[1], bTa[0]))
    a("v_xor_b32 v%d, 64, v%d" % (bTb[1], bTb[0]))
    a("v_lshrrev_b32 v10, 2, v2")
    a("v_mul_u32_u24 v10, %d, v10" % FS)
    a("v_and_b32 v11, 3, v2")
    a("v_lshl_add_u32 v10, v11, 3, v10")
    a("v_add_u32 v10, %d, v10" % TREG)
    a("s_mul_i32 s26, s25, 160")
    a("v_add_u32 v%d, s26, v10" % bF)
    a("v_add_u32 v%d, 128, v10" % bFh)
    for d, s_ in ((vTa[0], bTa[0]), (vTb[0], bTb[0]), (vTa[1], bTa[1]), (vTb[1], bTb[1]), (vF, bF), (vFh, bFh)):
        a("v_mov_b32 v%d, v%d" % (d, s_))
    a("s_waitcnt lgkmcnt(0)")
    srd(a, 12, 6, WS_BYTES)
    srd(a, 28, 92, 2048 * 2)
    if "wot2" in DBG:
        srd(a, 76, 94, 2304 * 576 * 2)
        a("s_mov_b32 s42, s2")
        emit_wot_loads(a, 96, 108, 720, 3)
    stamp_setup(a, 2); stamp(a, 0)
    a("s_mov_b32 s99, 0")
    for r in range(ACC, ACC + 72): a("v_mov_b32 v%d, 0" % r)
    a("s_mov_b32 s27, 0")
    a("s_mov_b32 s33, 0")
    core = G.Core(a, ACC, FB[0], FB[1], FS, TREG, vTa, vTb, vF, vFh)
    trk = core.trk
    a("s_barrier")
    stamp(a, 1)
    core.prime(0, core.reads(0, 0))
    def phase(buf, pend):
        for (m, regs) in core.mfmas(buf):
            trk.need(regs)
            a(m)
            while pend:
                k, t = pend.pop(0)
                if k == "x":
                    a(t)
                    if t.startswith("s_"): continue
                else:
                    a(t[0]); trk.issue(t[1])
                break
        for k, t in pend:
            if k == "x": a(t)
            else: a(t[0]); trk.issue(t[1])
    def iteration(extra=None):
        a("s_barrier")
        rd = [("r", t) for t in core.reads(1, 1)]
        upd = ["s_add_u32 s27, s27, %d" % SLOT, "s_cmp_eq_u32 s27, %d" % (R * SLOT), "s_cselect_b32 s27, 0, s27"]
        tail = ["v_add_u32 v%d, s27, v%d" % (d, s_) for d, s_ in ((vTa[0], bTa[0]), (vF, bF), (vTb[0], bTb[0]), (vFh, bFh))]
        phase(0, rd[:1] + [("x", u) for u in upd] + rd[1:] + [("x", u) for u in tail])
        rd = [("r", t) for t in core.reads(0, 0)]
        tail = ["v_add_u32 v%d, s27, v%d" % (d, s_) for d, s_ in ((vTa[1], bTa[1]), (vTb[1], bTb[1]))] + ["s_add_u32 s33, s33, 1"]
        phase(1, rd + [("x", u) for u in tail])
    a.label("%s_cloop" % name)
    lb = len(a.lines); iteration(); st = copy.deepcopy(trk.out); del a.lines[lb:]; trk.out = copy.deepcopy(st)
    iteration()
    assert [sorted(x) for x in trk.out] == [sorted(x) for x in st]
    a("s_cmp_lg_u32 s33, 24")
    a("s_cbranch_scc1 %s_noz" % name)
    if "wot2" in DBG:
        a("s_mov_b32 s35, 0x%x" % WOT)
        a("s_waitcnt vmcnt(0)")
        for n in range(3):
            a("buffer_store_dwordx4 %s, v%d, s[12:15], s35 offen" % (vr(96 + 4 * n), 108 + n))
    a("s_lshl_b32 s35, s22, 4")
    a("s_add_u32 s35, s35, s23")
    a("s_lshl_b32 s35, s35, 2")
    a("s_add_u32 s35, s35, s3")
    a("s_mul_i32 s35, s35, 9216")
    a("s_add_u32 s35, s35, 0x%x" % Z1IMG)
    a("v_lshlrev_b32 v10, 4, v2")
    for q in range(9):
        if q in (4, 8): a("s_add_u32 s35, s35, 4096")
        a("buffer_load_dwordx4 %s, v10, s[12:15], s35 offen offset:%d" % (vr(Z1R + 4 * q), (q & 3) * 1024))
    a("s_lshl_b32 s36, s22, 7")
    a("s_lshl_b32 s37, s24, 6")
    a("s_add_u32 s36, s36, s37")
    a("v_lshlrev_b32 v11, 1, v3")
    a("s_lshl_b32 s37, s25, 6")
    a("s_lshl_b32 s38, s36, 1")
    a("s_add_u32 s39, s38, s37")
    a("s_xor_b32 s37, s37, 64")
    a("s_add_u32 s40, s38, s37")
    a("buffer_load_ushort v%d, v11, s[28:31], s39 offen" % (BI + 0))
    a("buffer_load_ushort v%d, v11, s[28:31], s39 offen offset:32" % (BI + 2))
    a("buffer_load_ushort v%d, v11, s[28:31], s40 offen" % (BI + 4))
    a("buffer_load_ushort v%d, v11, s[28:31], s40 offen offset:32" % (BI + 6))
    a.label("%s_noz" % name)
    a("s_cmp_lt_u32 s33, %d" % NST)
    a("s_cbranch_scc1 %s_cloop" % name)
    trk.drain()
    stamp(a, 2)
    a.label("%s_epi" % name)
    a("v_lshrrev_b32 v10, 4, v2")
    a("v_and_b32 v11, 1, v10")
    a("v_lshrrev_b32 v12, 1, v10")
    a("v_lshl_add_u32 v12, v11, 1, v12")
    a("s_mul_i32 s35, s23, 18")
    a("s_mul_i32 s36, s25, 10")
    a("s_add_u32 s36, s36, s35")
    a("v_lshrrev_b32 v13, 1, v3")
    a("s_lshl_b32 s37, s22, 1")
    a("s_add_u32 s37, s37, s24")
    a("s_mul_i32 s37, s37, %d" % (36 * 8192))
    a("s_add_u32 s37, s37, 0x%x" % PIMG)
    a("s_lshl_b32 s38, s25, 12")
    a("s_add_u32 s39, s37, s38")
    a("s_xor_b32 s38, s38, 4096")
    a("s_add_u32 s40, s37, s38")
    def addr(dst, pv):
        a("v_lshrrev_b32 v14, 3, v%d" % pv)
        a("v_lshlrev_b32 v14, 13, v14")
        a("v_and_b32 v15, 7, v%d" % pv)
        a("v_xor_b32 v15, v15, v13")
        a("v_lshl_add_u32 v14, v15, 4, v14")
        a("v_lshl_add_u32 v%d, v3, 7, v14" % dst)
    a("v_add_u32 v16, s36, v12"); addr(4, 16)
    a("v_add_u32 v16, 4, v16"); addr(5, 16)
    a("v_lshrrev_b32 v16, 1, v10")
    a("s_add_u32 s35, s35, 8")
    a("v_add_u32 v16, s35, v16"); addr(6, 16)
    a("v_lshl_add_u32 v6, v11, 11, v6")
    a("s_waitcnt vmcnt(0)")
    for tt in range(4):
        a("v_lshlrev_b32 v%d, 16, v%d" % (BI + 2 * tt, BI + 2 * tt))
    stamp(a, 3)
    def ptiles(lst, O):
        T = 24
        for q, (ft, tt) in enumerate(lst):
            c = core.accr(ft, tt)
            for h in (0, 2):
                a("v_pk_add_f32 %s, %s, %s op_sel_hi:[1,0]" % (vr(c + h, 2), vr(c + h, 2), vr(BI + 2 * tt, 2)))
        for q, (ft, tt) in enumerate(lst):
            c = core.accr(ft, tt)
            a("v_cvt_pk_bf16_f32 v%d, v%d, v%d" % (T + 2 * q, c, c + 1))
            a("v_cvt_pk_bf16_f32 v%d, v%d, v%d" % (T + 2 * q + 1, c + 2, c + 3))
        for q, (ft, tt) in enumerate(lst):
            c = core.accr(ft, tt); z = Z1R + 2 * tidx(ft, tt)
            for d in range(2):
                a("v_lshlrev_b32 v%d, 16, v%d" % (c + 2 * d, T + 2 * q + d))
                a("v_and_b32 v%d, 0xffff0000, v%d" % (c + 2 * d + 1, T + 2 * q + d))
                a("v_lshlrev_b32 v%d, 16, v%d" % (T + 4 + 4 * q + 2 * d, z + d))
                a("v_and_b32 v%d, 0xffff0000, v%d" % (T + 5 + 4 * q + 2 * d, z + d))
        for q, (ft, tt) in enumerate(lst):
            c = core.accr(ft, tt)
            for h in (0, 2):
                a("v_pk_mul_f32 %s, %s, %s" % (vr(c + h, 2), vr(c + h, 2), vr(T + 4 + 4 * q + h, 2)))
        for q, (ft, tt) in enumerate(lst):
            c = core.accr(ft, tt)
            a("v_cvt_pk_bf16_f32 v%d, v%d, v%d" % (O + 2 * q, c, c + 1))
            a("v_cvt_pk_bf16_f32 v%d, v%d, v%d" % (O + 2 * q + 1, c + 2, c + 3))
        a("s_nop 1")
        a("v_permlane16_swap_b32 v%d, v%d" % (O, O + 2))
        a("v_permlane16_swap_b32 v%d, v%d" % (O + 1, O + 3))
        a("s_nop 0")
    cnt = 0
    for pr in range(2):
        for tt in range(4):
            O = 40 + 4 * cnt; cnt += 1
            ptiles([(2 * pr, tt), (2 * pr + 1, tt)], O)
            a("buffer_store_dwordx4 %s, v%d, s[12:15], s%d offen offset:%d" % (vr(O), 4 + pr, 39 if tt < 2 else 40, (tt & 1) * 2048))
    O = 40 + 4 * cnt
    ptiles([(4, 0), (4, 1)], O)
    a("buffer_store_dwordx4 %s, v6, s[12:15], s39 offen" % vr(O))
    seg_end2(a, name)
    stamp(a, 4)
    G.stamp_rt(a, 1)
    a.label("%s_end" % name)
    a("s_endpgm")
    return a.text(), kernel_desc(name, 256, 256), (name, 256, 512, R * SLOT)


def gen_k2c(name="k2_kernel", R=4):
    a = Asm()
    SLOT = 34816; TREG = 16384; FS = 288; NST = 32
    kernel_begin(a, name)
    a("s_load_dwordx2 s[4:5], s[0:1], 64")
    a("s_load_dwordx2 s[6:7], s[0:1], 104")
    a("s_load_dwordx4 s[88:91], s[0:1], 32")
    a("s_load_dwordx2 s[80:81], s[0:1], 0")
    a("s_load_dwordx2 s[82:83], s[0:1], 56")
    a("s_cmp_ge_u32 s2, 256")
    a("s_cbranch_scc1 %s_end" % name)
    a("v_lshrrev_b32 v1, 6, v0")
    a("v_and_b32 v2, 63, v0")
    a("v_readfirstlane_b32 s3, v1")
    G2.tile_ij(a)
    a("s_cmp_lt_u32 s3, 4")
    a("s_cbranch_scc1 %s_consumer" % name)
    if "noprio" not in DBG: a("s_setprio 3")
    a("s_sub_u32 s3, s3, 4")
    a("v_lshrrev_b32 v3, 3, v2")
    a("s_lshl_b32 s24, s3, 5")
    a("v_add_u32 v3, s24, v3")
    a("v_and_b32 v4, 7, v2")
    a("v_lshrrev_b32 v6, 4, v2")
    a("v_xor_b32 v6, v6, v4")
    a("v_lshlrev_b32 v6, 4, v6")
    a("v_lshl_add_u32 v10, v3, 12, v6")
    a("v_xor_b32 v11, 64, v10")
    a("v_add_u32 v11, %d, v11" % (32768 - 1024))
    a("v_add_u32 v12, %d, v10" % (2 * (32768 - 1024)))
    a("v_add_u32 v13, %d, v11" % (2 * (32768 - 1024)))
    a("v_lshlrev_b32 v14, 4, v2")
    a("s_lshl_b32 s26, s22, 19")
    a("s_mul_i32 s27, s23, %d" % (32 * 18432))
    a("s_lshl_b32 s24, s3, 12")
    a("s_add_u32 s27, s27, s24")
    if ZIMG: a("s_add_u32 s27, s27, 0x%x" % ZIMG)
    a("s_lshl_b32 s25, s3, 9")
    a("s_sub_u32 s32, s25, s24")
    a("s_add_u32 s32, s32, 16384")
    a("s_mov_b32 s33, 0")
    a("s_waitcnt lgkmcnt(0)")
    srd(a, 8, 4, 2048 * 2048 * 2)
    srd(a, 12, 6, WS_BYTES)
    def issue():
        a("s_add_u32 s35, s33, s24")
        a("s_mov_b32 m0, s35")
        a("s_add_u32 s36, s35, %d" % TREG)
        for n in range(4):
            a("buffer_load_dwordx4 v%d, s[8:11], s26 offen offset:%d lds" % (10 + n, n * 1024))
        a("s_mov_b32 m0, s36")
        a("s_add_u32 s37, s27, s32")
        for n in range(4):
            a("buffer_load_dwordx4 v14, s[12:15], s27 offen offset:%d lds" % (n * 1024))
        a("s_add_u32 s36, s36, s32")
        a("s_mov_b32 m0, s36")
        a("s_mov_b64 exec, 0xffffffff")
        a("buffer_load_dwordx4 v14, s[12:15], s37 offen lds")
        a("s_mov_b64 exec, -1")
        a("s_add_u32 s26, s26, 128")
        a("s_add_u32 s27, s27, 18432")
        a("s_add_u32 s33, s33, %d" % SLOT)
        a("s_cmp_eq_u32 s33, %d" % (R * SLOT))
        a("s_cselect_b32 s33, 0, s33")
    srd(a, 16, 88, 576 * 2048 * 2)
    srd(a, 84, 90, 576 * 2)
    a("s_lshl_b32 s43, s2, 2")
    a("s_add_u32 s43, s43, s3")
    a("s_and_b32 s53, s43, 1")
    a("s_sub_u32 s36, s43, 448")
    a("s_lshr_b32 s37, s43, 1")
    a("s_cmp_ge_u32 s43, 896")
    a("s_cselect_b32 s43, s36, s37")
    a("s_cselect_b32 s53, 2, s53")
    VT = 16; VF = 20
    srd(a, 64, 80, 2048 * 576 * 2)
    srd(a, 68, 82, 576 * 4608 * 2)
    a("v_mul_u32_u24 v5, 1152, v3")
    a("v_add_u32 v%d, v5, v6" % VT)
    a("v_xor_b32 v%d, 64, v%d" % (VT + 1, VT))
    a("v_add_u32 v%d, %d, v%d" % (VT + 1, 9216 - 1024, VT + 1))
    a("v_add_u32 v%d, %d, v%d" % (VT + 2, 2 * (9216 - 1024), VT))
    a("v_add_u32 v%d, %d, v%d" % (VT + 3, 2 * (9216 - 1024), VT + 1))
    a("s_mul_i32 s72, s22, %d" % (128 * 1152))
    a("s_mul_i32 s73, s23, 288")
    a("s_add_u32 s74, s25, %d" % (TREG + 16384))
    def issueT1(g):
        a("s_add_u32 s35, s24, %d" % ((g % R) * SLOT))
        a("s_mov_b32 m0, s35")
        a("s_add_u32 s36, s72, %d" % (128 * g))
        for n in range(4):
            a("buffer_load_dwordx4 v%d, s[64:67], s36 offen offset:%d lds" % (VT + n, 1024 * n))
    def issueF1(g):
        a("s_add_u32 s35, s24, %d" % ((g % R) * SLOT + TREG))
        a("s_mov_b32 m0, s35")
        a("s_add_u32 s36, s73, %d" % (64 * 9216 * g))
        for n in range(4):
            a("buffer_load_dwordx4 v%d, s[68:71], s36 offen offset:%d lds" % (VF + n, 1024 * n))
        a("s_add_u32 s35, s74, %d" % ((g % R) * SLOT))
        a("s_mov_b32 m0, s35")
        a("s_mov_b64 exec, 0xffffffff")
        a("buffer_load_dwordx4 v%d, s[68:71], s36 offen lds" % (VF + 4))
        a("s_mov_b64 exec, -1")
    issueT1(0)
    for n in range(5):
        if n < 4:
            a("s_lshl_b32 s36, s3, 8")
            a("s_add_u32 s36, s36, %d" % (64 * n))
        else:
            a("s_lshl_b32 s36, s3, 5")
            a("s_add_u32 s36, s36, 1024")
        a("v_add_u32 v6, s36, v2")
        a("v_mul_u32_u24 v7, 3641, v6")
        a("v_lshrrev_b32 v7, 16, v7")
        a("v_mul_u32_u24 v8, 18, v7")
        a("v_sub_u32 v8, v6, v8")
        a("v_and_b32 v9, 35, v7")
        a("v_bfe_u32 v6, v7, 2, 2")
        a("v_lshl_add_u32 v9, v6, 3, v9")
        a("v_bfe_u32 v6, v7, 4, 1")
        a("v_lshl_add_u32 v9, v6, 2, v9")
        a("v_mul_u32_u24 v9, 9216, v9")
        a("v_lshl_add_u32 v%d, v8, 4, v9" % (VF + n))
        if 0 < n < 4: a("v_subrev_u32 v%d, %d, v%d" % (VF + n, 1024 * n, VF + n))
    issueF1(0)
    for g in (1, 2, 3): issueT1(g); issueF1(g)
    nconv = emit_conv_loads(a)
    a("s_waitcnt vmcnt(%d)" % (27 + nconv))
    a("s_barrier")
    a("s_waitcnt vmcnt(%d)" % (18 + nconv))
    a("s_barrier")
    a("s_add_u32 s3, s3, 4"); stamp_setup(a, 2); stamp(a, 0); a("s_sub_u32 s3, s3, 4")
    a("s_waitcnt vmcnt(%d)" % (9 + nconv))
    a("s_barrier")
    for kk in range(1, 6):
        issueT1(kk + 3); issueF1(kk + 3)
        a("s_waitcnt vmcnt(%d)" % (9 + (nconv if kk == 1 else 0)))
        a("s_barrier")
    a("s_mov_b32 s33, %d" % ((9 % R) * SLOT))
    a("s_mov_b32 s34, 0")
    a.label("%s_lloop" % name)
    issue()
    a("s_waitcnt vmcnt(9)")
    a("s_barrier")
    a("s_add_u32 s34, s34, 1")
    a("s_cmp_lt_u32 s34, 32")
    a("s_cbranch_scc1 %s_lloop" % name)
    a("s_waitcnt vmcnt(0) lgkmcnt(0)")
    a("s_barrier")
    stamp(a, 1)
    a("s_mov_b32 s26, s53")
    a("s_and_b32 s27, s3, 1")
    a("s_mul_i32 s27, s27, %d" % CJ_SIZE)
    a("s_lshr_b32 s36, s3, 1")
    a("s_add_u32 s36, s36, 1")
    a("s_mul_i32 s36, s36, %d" % SLOT)
    a("s_add_u32 s27, s27, s36")
    def mid():
        if "warm2" in DBG:
            a("s_cmp_eq_u32 s99, 1")
            a("s_cbranch_scc1 %s_midskip" % name)
        a("s_barrier")
        a("s_setprio 0")
        a.label("%s_midskip" % name)
    a.label("%s_cjstart" % name)
    if "noconv" in DBG:
        mid()
    else:
        emit_conv_job(a, name, mid)
        G.stamp_rt(a, 1)
    a("s_branch %s_end" % name)
    a.label("%s_consumer" % name)
    a("s_load_dwordx2 s[92:93], s[0:1], 72")
    a("s_load_dwordx2 s[94:95], s[0:1], 80")
    ACC = 128; FB = [16, 52]
    vTa = [4, 5]; vTb = [6, 7]; vF = 8; vFh = 9
    bTa = [88, 89]; bTb = [90, 91]; bF = 92; bFh = 93
    Z1R = 200; BI = 236
    a("s_lshr_b32 s24, s3, 1")
    a("s_and_b32 s25, s3, 1")
    a("v_and_b32 v3, 15, v2")
    a("v_lshrrev_b32 v10, 4, v2")
    a("v_lshrrev_b32 v11, 1, v3")
    a("v_xor_b32 v10, v10, v11")
    a("v_lshlrev_b32 v10, 4, v10")
    a("v_lshl_add_u32 v10, v3, 7, v10")
    a("s_lshl_b32 s26, s24, 13")
    a("v_add_u32 v10, s26, v10")
    a("s_lshl_b32 s26, s25, 12")
    a("v_add_u32 v%d, s26, v10" % bTa[0])
    a("s_xor_b32 s26, s26, 4096")
    a("v_add_u32 v%d, s26, v10" % bTb[0])
    a("v_xor_b32 v%d, 64, v%d" % (bTa[1], bTa[0]))
    a("v_xor_b32 v%d, 64, v%d" % (bTb[1], bTb[0]))
    a("v_lshrrev_b32 v10, 2, v2")
    a("v_mul_u32_u24 v10, %d, v10" % FS)
    a("v_and_b32 v11, 3, v2")
    a("v_lshl_add_u32 v10, v11, 3, v10")
    a("v_add_u32 v10, %d, v10" % TREG)
    a("s_mul_i32 s26, s25, 160")
    a("v_add_u32 v%d, s26, v10" % bF)
    a("v_add_u32 v%d, 128, v10" % bFh)
    for d, s_ in ((vTa[0], bTa[0]), (vTb[0], bTb[0]), (vTa[1], bTa[1]), (vTb[1], bTb[1]), (vF, bF), (vFh, bFh)):
        a("v_mov_b32 v%d, v%d" % (d, s_))
    a("s_waitcnt lgkmcnt(0)")
    srd(a, 12, 6, WS_BYTES)
    srd(a, 28, 92, 2048 * 2)
    srd(a, 76, 94, 2304 * 576 * 2)
    a("s_mov_b32 s42, s2")
    emit_wot_loads(a, 240, 252, 720, 3)
    MR = 100; CS = 108; ONE = 96
    a("s_lshl_b32 s36, s22, 7")
    a("s_lshl_b32 s37, s24, 6")
    a("s_add_u32 s36, s36, s37")
    a("s_lshl_b32 s36, s36, 3")
    a("s_add_u32 s36, s36, 0x%x" % STATS1)
    a("s_lshl_b32 s37, s25, 8")
    a("s_add_u32 s38, s36, s37")
    a("s_xor_b32 s37, s37, 256")
    a("s_add_u32 s39, s36, s37")
    a("v_lshlrev_b32 v10, 3, v3")
    a("buffer_load_dwordx2 %s, v10, s[12:15], s38 offen" % vr(MR, 2))
    a("buffer_load_dwordx2 %s, v10, s[12:15], s38 offen offset:128" % vr(MR + 2, 2))
    a("buffer_load_dwordx2 %s, v10, s[12:15], s39 offen" % vr(MR + 4, 2))
    a("buffer_load_dwordx2 %s, v10, s[12:15], s39 offen offset:128" % vr(MR + 6, 2))
    for r in range(CS, CS + 20): a("v_mov_b32 v%d, 0" % r)
    for r in range(ONE, ONE + 4): a("v_mov_b32 v%d, 0x3f803f80" % r)
    stamp_setup(a, 2); stamp(a, 0)
    a("s_mov_b32 s99, 0")
    for r in range(ACC, ACC + 72): a("v_mov_b32 v%d, 0" % r)
    a("s_mov_b32 s27, 0")
    a("s_mov_b32 s33, 0")
    core = G.Core(a, ACC, FB[0], FB[1], FS, TREG, vTa, vTb, vF, vFh)
    trk = core.trk
    a("s_barrier")
    stamp(a, 1)
    core.prime(0, core.reads(0, 0))
    withcs = [True]
    def mfmas(buf):
        L = []
        for ft in range(5):
            A = core.F(buf, ft)
            for tt in range(4 if ft < 4 else 2):
                c = core.accr(ft, tt); B = core.T(buf, tt)
                L.append(("v_mfma_f32_16x16x32_bf16 %s, %s, %s, %s" % (vr(c), vr(A), vr(B), vr(c)), list(range(A, A + 4)) + list(range(B, B + 4))))
            if withcs[0]:
                L.append(("v_mfma_f32_16x16x32_bf16 %s, %s, %s, %s" % (vr(CS + 4 * ft), vr(A), vr(ONE), vr(CS + 4 * ft)), list(range(A, A + 4))))
        return L
    def phase(buf, pend):
        for (m, regs) in mfmas(buf):
            trk.need(regs)
            a(m)
            while pend:
                k, t = pend.pop(0)
                if k == "x":
                    a(t)
                    if t.startswith("s_"): continue
                else:
                    a(t[0]); trk.issue(t[1])
                break
        for k, t in pend:
            if k == "x": a(t)
            else: a(t[0]); trk.issue(t[1])
    def iteration(extra=None):
        a("s_barrier")
        rd = [("r", t) for t in core.reads(1, 1)]
        upd = ["s_add_u32 s27, s27, %d" % SLOT, "s_cmp_eq_u32 s27, %d" % (R * SLOT), "s_cselect_b32 s27, 0, s27"]
        tail = ["v_add_u32 v%d, s27, v%d" % (d, s_) for d, s_ in ((vTa[0], bTa[0]), (vF, bF), (vTb[0], bTb[0]), (vFh, bFh))]
        phase(0, rd[:1] + [("x", u) for u in upd] + rd[1:] + [("x", u) for u in tail])
        rd = [("r", t) for t in core.reads(0, 0)]
        tail = ["v_add_u32 v%d, s27, v%d" % (d, s_) for d, s_ in ((vTa[1], bTa[1]), (vTb[1], bTb[1]))] + ["s_add_u32 s33, s33, 1"]
        phase(1, rd + [("x", u) for u in tail])
    trk.drain()
    a.label("%s_zloop" % name)
    lb = len(a.lines); iteration(); st = copy.deepcopy(trk.out); del a.lines[lb:]; trk.out = copy.deepcopy(st)
    iteration()
    assert [sorted(x) for x in trk.out] == [sorted(x) for x in st]
    a("s_cmp_lt_u32 s33, 9")
    a("s_cbranch_scc1 %s_zloop" % name)
    trk.drain()
    stamp(a, 5)
    gelu_consts(a)
    a("s_waitcnt vmcnt(0)")
    for tt in range(4): a("v_sub_f32 v%d, 0, v%d" % (MR + 2 * tt, MR + 2 * tt))
    a("s_mov_b32 s35, 0x%x" % WOT)
    for n in range(3):
        a("buffer_store_dwordx4 %s, v%d, s[12:15], s35 offen" % (vr(240 + 4 * n), 252 + n))
    for ft in range(5):
        tts = range(4 if ft < 4 else 2)
        emit_fold_gelu(a, [(core.accr(ft, tt), CS + 4 * ft, MR + 2 * tt, Z1R + 2 * tidx(ft, tt)) for tt in tts], 56)
    for r in range(ACC, ACC + 72): a("v_mov_b32 v%d, 0" % r)
    a("s_mov_b32 s33, 0")
    stamp(a, 6)
    withcs[0] = False
    a.label("%s_cloop" % name)
    lb = len(a.lines); iteration(); st = copy.deepcopy(trk.out); del a.lines[lb:]; trk.out = copy.deepcopy(st)
    iteration()
    assert [sorted(x) for x in trk.out] == [sorted(x) for x in st]
    a("s_cmp_lg_u32 s33, 24")
    a("s_cbranch_scc1 %s_noz" % name)
    a("s_lshl_b32 s36, s22, 7")
    a("s_lshl_b32 s37, s24, 6")
    a("s_add_u32 s36, s36, s37")
    a("v_lshlrev_b32 v11, 1, v3")
    a("s_lshl_b32 s37, s25, 6")
    a("s_lshl_b32 s38, s36, 1")
    a("s_add_u32 s39, s38, s37")
    a("s_xor_b32 s37, s37, 64")
    a("s_add_u32 s40, s38, s37")
    a("buffer_load_ushort v%d, v11, s[28:31], s39 offen" % (BI + 0))
    a("buffer_load_ushort v%d, v11, s[28:31], s39 offen offset:32" % (BI + 2))
    a("buffer_load_ushort v%d, v11, s[28:31], s40 offen" % (BI + 4))
    a("buffer_load_ushort v%d, v11, s[28:31], s40 offen offset:32" % (BI + 6))
    a.label("%s_noz" % name)
    a("s_cmp_lt_u32 s33, %d" % NST)
    a("s_cbranch_scc1 %s_cloop" % name)
    trk.drain()
    stamp(a, 2)
    a.label("%s_epi" % name)
    a("v_lshrrev_b32 v10, 4, v2")
    a("v_and_b32 v11, 1, v10")
    a("v_lshrrev_b32 v12, 1, v10")
    a("v_lshl_add_u32 v12, v11, 1, v12")
    a("s_mul_i32 s35, s23, 18")
    a("s_mul_i32 s36, s25, 10")
    a("s_add_u32 s36, s36, s35")
    a("v_lshrrev_b32 v13, 1, v3")
    a("s_lshl_b32 s37, s22, 1")
    a("s_add_u32 s37, s37, s24")
    a("s_mul_i32 s37, s37, %d" % (36 * 8192))
    a("s_add_u32 s37, s37, 0x%x" % PIMG)
    a("s_lshl_b32 s38, s25, 12")
    a("s_add_u32 s39, s37, s38")
    a("s_xor_b32 s38, s38, 4096")
    a("s_add_u32 s40, s37, s38")
    def addr(dst, pv):
        a("v_lshrrev_b32 v14, 3, v%d" % pv)
        a("v_lshlrev_b32 v14, 13, v14")
        a("v_and_b32 v15, 7, v%d" % pv)
        a("v_xor_b32 v15, v15, v13")
        a("v_lshl_add_u32 v14, v15, 4, v14")
        a("v_lshl_add_u32 v%d, v3, 7, v14" % dst)
    a("v_add_u32 v16, s36, v12"); addr(4, 16)
    a("v_add_u32 v16, 4, v16"); addr(5, 16)
    a("v_lshrrev_b32 v16, 1, v10")
    a("s_add_u32 s35, s35, 8")
    a("v_add_u32 v16, s35, v16"); addr(6, 16)
    a("v_lshl_add_u32 v6, v11, 11, v6")
    a("s_waitcnt vmcnt(0)")
    for tt in range(4):
        a("v_lshlrev_b32 v%d, 16, v%d" % (BI + 2 * tt, BI + 2 * tt))
    stamp(a, 3)
    def ptiles(lst, O):
        T = 24
        for q, (ft, tt) in enumerate(lst):
            c = core.accr(ft, tt)
            for h in (0, 2):
                a("v_pk_add_f32 %s, %s, %s op_sel_hi:[1,0]" % (vr(c + h, 2), vr(c + h, 2), vr(BI + 2 * tt, 2)))
        for q, (ft, tt) in enumerate(lst):
            c = core.accr(ft, tt)
            a("v_cvt_pk_bf16_f32 v%d, v%d, v%d" % (T + 2 * q, c, c + 1))
            a("v_cvt_pk_bf16_f32 v%d, v%d, v%d" % (T + 2 * q + 1, c + 2, c + 3))
        for q, (ft, tt) in enumerate(lst):
            c = core.accr(ft, tt); z = Z1R + 2 * tidx(ft, tt)
            for d in range(2):
                a("v_lshlrev_b32 v%d, 16, v%d" % (c + 2 * d, T + 2 * q + d))
                a("v_and_b32 v%d, 0xffff0000, v%d" % (c + 2 * d + 1, T + 2 * q + d))
                a("v_lshlrev_b32 v%d, 16, v%d" % (T + 4 + 4 * q + 2 * d, z + d))
                a("v_and_b32 v%d, 0xffff0000, v%d" % (T + 5 + 4 * q + 2 * d, z + d))
        for q, (ft, tt) in enumerate(lst):
            c = core.accr(ft, tt)
            for h in (0, 2):
                a("v_pk_mul_f32 %s, %s, %s" % (vr(c + h, 2), vr(c + h, 2), vr(T + 4 + 4 * q + h, 2)))
        for q, (ft, tt) in enumerate(lst):
            c = core.accr(ft, tt)
            a("v_cvt_pk_bf16_f32 v%d, v%d, v%d" % (O + 2 * q, c, c + 1))
            a("v_cvt_pk_bf16_f32 v%d, v%d, v%d" % (O + 2 * q + 1, c + 2, c + 3))
        a("s_nop 1")
        a("v_permlane16_swap_b32 v%d, v%d" % (O, O + 2))
        a("v_permlane16_swap_b32 v%d, v%d" % (O + 1, O + 3))
        a("s_nop 0")
    cnt = 0
    for pr in range(2):
        for tt in range(4):
            O = 40 + 4 * cnt; cnt += 1
            ptiles([(2 * pr, tt), (2 * pr + 1, tt)], O)
            a("buffer_store_dwordx4 %s, v%d, s[12:15], s%d offen offset:%d" % (vr(O), 4 + pr, 39 if tt < 2 else 40, (tt & 1) * 2048))
    O = 40 + 4 * cnt
    ptiles([(4, 0), (4, 1)], O)
    a("buffer_store_dwordx4 %s, v6, s[12:15], s39 offen" % vr(O))
    seg_end2(a, name)
    stamp(a, 4)
    G.stamp_rt(a, 1)
    a.label("%s_end" % name)
    a("s_endpgm")
    return a.text(), kernel_desc(name, 256, 256), (name, 256, 512, R * SLOT)


def gen_k2d(name="k2_kernel", R=4):
    a = Asm()
    SLOT = 34816; TREG = 16384; FS = 288; NST = 32
    kernel_begin(a, name)
    a("s_load_dwordx2 s[4:5], s[0:1], 64")
    a("s_load_dwordx2 s[6:7], s[0:1], 104")
    a("s_load_dwordx4 s[88:91], s[0:1], 32")
    a("s_load_dwordx2 s[80:81], s[0:1], 0")
    a("s_load_dwordx2 s[82:83], s[0:1], 56")
    a("s_load_dwordx2 s[56:57], s[0:1], 96")
    a("s_cmp_ge_u32 s2, 256")
    a("s_cbranch_scc1 %s_end" % name)
    a("v_lshrrev_b32 v1, 6, v0")
    a("v_and_b32 v2, 63, v0")
    a("v_readfirstlane_b32 s3, v1")
    G2.tile_ij(a)
    a("s_cmp_lt_u32 s3, 4")
    a("s_cbranch_scc1 %s_consumer" % name)
    if "noprio" not in DBG: a("s_setprio 3")
    a("s_sub_u32 s3, s3, 4")
    a("v_lshrrev_b32 v3, 3, v2")
    a("s_lshl_b32 s24, s3, 5")
    a("v_add_u32 v3, s24, v3")
    a("v_and_b32 v4, 7, v2")
    a("v_lshrrev_b32 v6, 4, v2")
    a("v_xor_b32 v6, v6, v4")
    a("v_lshlrev_b32 v6, 4, v6")
    a("v_lshl_add_u32 v10, v3, 12, v6")
    a("v_xor_b32 v11, 64, v10")
    a("v_add_u32 v11, %d, v11" % (32768 - 1024))
    a("v_add_u32 v12, %d, v10" % (2 * (32768 - 1024)))
    a("v_add_u32 v13, %d, v11" % (2 * (32768 - 1024)))
    a("v_lshlrev_b32 v14, 4, v2")
    a("s_lshl_b32 s26, s22, 19")
    a("s_mul_i32 s27, s23, %d" % (32 * 18432))
    a("s_lshl_b32 s24, s3, 12")
    a("s_add_u32 s27, s27, s24")
    if ZIMG: a("s_add_u32 s27, s27, 0x%x" % ZIMG)
    a("s_lshl_b32 s25, s3, 9")
    a("s_sub_u32 s32, s25, s24")
    a("s_add_u32 s32, s32, 16384")
    a("s_mov_b32 s33, 0")
    a("s_waitcnt lgkmcnt(0)")
    srd(a, 8, 4, 2048 * 2048 * 2)
    srd(a, 12, 6, WS_BYTES)
    def issue():
        a("s_add_u32 s35, s33, s24")
        a("s_mov_b32 m0, s35")
        a("s_add_u32 s36, s35, %d" % TREG)
        for n in range(4):
            a("buffer_load_dwordx4 v%d, s[8:11], s26 offen offset:%d lds" % (10 + n, n * 1024))
        a("s_mov_b32 m0, s36")
        a("s_add_u32 s37, s27, s32")
        for n in range(4):
            a("buffer_load_dwordx4 v14, s[12:15], s27 offen offset:%d sc1 lds" % (n * 1024))
        a("s_add_u32 s36, s36, s32")
        a("s_mov_b32 m0, s36")
        a("s_mov_b64 exec, 0xffffffff")
        a("buffer_load_dwordx4 v14, s[12:15], s37 offen sc1 lds")
        a("s_mov_b64 exec, -1")
        a("s_add_u32 s26, s26, 128")
        a("s_add_u32 s27, s27, 18432")
        a("s_add_u32 s33, s33, %d" % SLOT)
        a("s_cmp_eq_u32 s33, %d" % (R * SLOT))
        a("s_cselect_b32 s33, 0, s33")
    srd(a, 16, 88, 576 * 2048 * 2)
    srd(a, 84, 90, 576 * 2)
    a("s_lshl_b32 s43, s2, 2")
    a("s_add_u32 s43, s43, s3")
    a("s_and_b32 s53, s43, 1")
    a("s_sub_u32 s36, s43, 448")
    a("s_lshr_b32 s37, s43, 1")
    a("s_cmp_ge_u32 s43, 896")
    a("s_cselect_b32 s43, s36, s37")
    a("s_cselect_b32 s53, 2, s53")
    VT = 16; VF = 20
    srd(a, 64, 80, 2048 * 576 * 2)
    srd(a, 68, 82, 576 * 4608 * 2)
    a("v_mul_u32_u24 v5, 1152, v3")
    a("v_add_u32 v%d, v5, v6" % VT)
    a("v_xor_b32 v%d, 64, v%d" % (VT + 1, VT))
    a("v_add_u32 v%d, %d, v%d" % (VT + 1, 9216 - 1024, VT + 1))
    a("v_add_u32 v%d, %d, v%d" % (VT + 2, 2 * (9216 - 1024), VT))
    a("v_add_u32 v%d, %d, v%d" % (VT + 3, 2 * (9216 - 1024), VT + 1))
    a("s_mul_i32 s72, s22, %d" % (128 * 1152))
    a("s_mul_i32 s73, s23, 288")
    a("s_add_u32 s74, s25, %d" % (TREG + 16384))
    def issueT1(g):
        a("s_add_u32 s35, s24, %d" % ((g % R) * SLOT))
        a("s_mov_b32 m0, s35")
        a("s_add_u32 s36, s72, %d" % (128 * g))
        for n in range(4):
            a("buffer_load_dwordx4 v%d, s[64:67], s36 offen offset:%d lds" % (VT + n, 1024 * n))
    def issueF1(g):
        a("s_add_u32 s35, s24, %d" % ((g % R) * SLOT + TREG))
        a("s_mov_b32 m0, s35")
        a("s_add_u32 s36, s73, %d" % (64 * 9216 * g))
        for n in range(4):
            a("buffer_load_dwordx4 v%d, s[68:71], s36 offen offset:%d lds" % (VF + n, 1024 * n))
        a("s_add_u32 s35, s74, %d" % ((g % R) * SLOT))
        a("s_mov_b32 m0, s35")
        a("s_mov_b64 exec, 0xffffffff")
        a("buffer_load_dwordx4 v%d, s[68:71], s36 offen lds" % (VF + 4))
        a("s_mov_b64 exec, -1")
    issueT1(0)
    for n in range(5):
        if n < 4:
            a("s_lshl_b32 s36, s3, 8")
            a("s_add_u32 s36, s36, %d" % (64 * n))
        else:
            a("s_lshl_b32 s36, s3, 5")
            a("s_add_u32 s36, s36, 1024")
        a("v_add_u32 v6, s36, v2")
        a("v_mul_u32_u24 v7, 3641, v6")
        a("v_lshrrev_b32 v7, 16, v7")
        a("v_mul_u32_u24 v8, 18, v7")
        a("v_sub_u32 v8, v6, v8")
        a("v_and_b32 v9, 35, v7")
        a("v_bfe_u32 v6, v7, 2, 2")
        a("v_lshl_add_u32 v9, v6, 3, v9")
        a("v_bfe_u32 v6, v7, 4, 1")
        a("v_lshl_add_u32 v9, v6, 2, v9")
        a("v_mul_u32_u24 v9, 9216, v9")
        a("v_lshl_add_u32 v%d, v8, 4, v9" % (VF + n))
        if 0 < n < 4: a("v_subrev_u32 v%d, %d, v%d" % (VF + n, 1024 * n, VF + n))
    issueF1(0)
    for g in (1, 2, 3): issueT1(g); issueF1(g)
    nconv = emit_conv_loads(a)
    a("s_waitcnt vmcnt(%d)" % (27 + nconv))
    a("s_barrier")
    a("s_waitcnt vmcnt(%d)" % (18 + nconv))
    a("s_barrier")
    a("s_add_u32 s3, s3, 4"); stamp_setup(a, 2); stamp(a, 0); a("s_sub_u32 s3, s3, 4")
    a("s_waitcnt vmcnt(%d)" % (9 + nconv))
    a("s_barrier")
    for kk in range(1, 6):
        issueT1(kk + 3); issueF1(kk + 3)
        a("s_waitcnt vmcnt(%d)" % (9 + (nconv if kk == 1 else 0)))
        a("s_barrier")
    srd(a, 60, 56, 256)
    a("s_lshl_b32 s36, s23, 2")
    a("v_mov_b32 v26, s36")
    a("s_mov_b32 s34, 0")
    a.label("%s_pz" % name)
    a("buffer_load_dword v27, v26, s[60:63], 0 offen sc1")
    a("s_add_u32 s34, s34, 1")
    a("s_waitcnt vmcnt(0)")
    a("v_readfirstlane_b32 s36, v27")
    a("s_cmp_gt_u32 s34, %d" % SPIN_MAX)
    a("s_cbranch_scc1 %s_pzx" % name)
    a("s_cmp_ge_u32 s36, 16")
    a("s_cbranch_scc1 %s_pzx" % name)
    a("s_sleep 8")
    a("s_branch %s_pz" % name)
    a.label("%s_pzx" % name)
    a("s_mov_b32 s33, %d" % ((9 % R) * SLOT))
    a("s_mov_b32 s34, 0")
    a.label("%s_lloop" % name)
    issue()
    a("s_waitcnt vmcnt(9)")
    a("s_barrier")
    a("s_add_u32 s34, s34, 1")
    a("s_cmp_lt_u32 s34, 32")
    a("s_cbranch_scc1 %s_lloop" % name)
    a("s_waitcnt vmcnt(0) lgkmcnt(0)")
    a("s_barrier")
    stamp(a, 1)
    a("s_mov_b32 s26, s53")
    a("s_and_b32 s27, s3, 1")
    a("s_mul_i32 s27, s27, %d" % CJ_SIZE)
    a("s_lshr_b32 s36, s3, 1")
    a("s_add_u32 s36, s36, 1")
    a("s_mul_i32 s36, s36, %d" % SLOT)
    a("s_add_u32 s27, s27, s36")
    def mid():
        if "warm2" in DBG:
            a("s_cmp_eq_u32 s99, 1")
            a("s_cbranch_scc1 %s_midskip" % name)
        a("s_barrier")
        a("s_setprio 0")
        a.label("%s_midskip" % name)
    a.label("%s_cjstart" % name)
    if "noconv" in DBG:
        mid()
    else:
        emit_conv_job(a, name, mid)
        G.stamp_rt(a, 1)
    a("s_branch %s_end" % name)
    a.label("%s_consumer" % name)
    a("s_load_dwordx2 s[92:93], s[0:1], 72")
    a("s_load_dwordx2 s[94:95], s[0:1], 80")
    ACC = 128; FB = [16, 52]
    vTa = [4, 5]; vTb = [6, 7]; vF = 8; vFh = 9
    bTa = [88, 89]; bTb = [90, 91]; bF = 92; bFh = 93
    Z1R = 200; BI = 236
    a("s_lshr_b32 s24, s3, 1")
    a("s_and_b32 s25, s3, 1")
    a("v_and_b32 v3, 15, v2")
    a("v_lshrrev_b32 v10, 4, v2")
    a("v_lshrrev_b32 v11, 1, v3")
    a("v_xor_b32 v10, v10, v11")
    a("v_lshlrev_b32 v10, 4, v10")
    a("v_lshl_add_u32 v10, v3, 7, v10")
    a("s_lshl_b32 s26, s24, 13")
    a("v_add_u32 v10, s26, v10")
    a("s_lshl_b32 s26, s25, 12")
    a("v_add_u32 v%d, s26, v10" % bTa[0])
    a("s_xor_b32 s26, s26, 4096")
    a("v_add_u32 v%d, s26, v10" % bTb[0])
    a("v_xor_b32 v%d, 64, v%d" % (bTa[1], bTa[0]))
    a("v_xor_b32 v%d, 64, v%d" % (bTb[1], bTb[0]))
    a("v_lshrrev_b32 v10, 2, v2")
    a("v_mul_u32_u24 v10, %d, v10" % FS)
    a("v_and_b32 v11, 3, v2")
    a("v_lshl_add_u32 v10, v11, 3, v10")
    a("v_add_u32 v10, %d, v10" % TREG)
    a("s_mul_i32 s26, s25, 160")
    a("v_add_u32 v%d, s26, v10" % bF)
    a("v_add_u32 v%d, 128, v10" % bFh)
    for d, s_ in ((vTa[0], bTa[0]), (vTb[0], bTb[0]), (vTa[1], bTa[1]), (vTb[1], bTb[1]), (vF, bF), (vFh, bFh)):
        a("v_mov_b32 v%d, v%d" % (d, s_))
    a("s_waitcnt lgkmcnt(0)")
    srd(a, 12, 6, WS_BYTES)
    srd(a, 28, 92, 2048 * 2)
    srd(a, 60, 56, 256)
    stamp_setup(a, 2); stamp(a, 0)
    NTB = R * SLOT
    ND = 128
    a("s_lshl_b32 s36, s22, 7")
    a("s_lshl_b32 s37, s3, 5")
    a("s_add_u32 s36, s36, s37")
    a("s_lshl_b32 s36, s36, 8")
    a("s_add_u32 s36, s36, 0x%x" % STATS2)
    a("v_lshlrev_b32 v10, 7, v2")
    for q in range(8):
        a("buffer_load_dwordx4 %s, v10, s[12:15], s36 offen offset:%d" % (vr(16 + 4 * q), 16 * q))
    a("s_lshl_b32 s52, s23, 5")
    a("s_lshl_b32 s37, s22, 1")
    a("s_add_u32 s52, s52, s37")
    a("s_mul_i32 s52, s52, 18432")
    a("s_mul_i32 s37, s3, 9216")
    a("s_add_u32 s52, s52, s37")
    if ZIMG: a("s_add_u32 s52, s52, 0x%x" % ZIMG)
    a("s_add_u32 s53, s52, 4096")
    a("s_add_u32 s55, s52, 8192")
    a("v_lshlrev_b32 v12, 4, v2")
    for n in range(9):
        a("buffer_load_dwordx4 %s, v12, s[12:15], s%d offen offset:%d sc1" % (vr(ND + 4 * n), (52, 53, 55)[n >> 2], (n & 3) * 1024))
    a("s_waitcnt vmcnt(9)")
    stamp(a, 7)
    for st_ in (16, 8, 4, 2):
        for q in range(0, st_, 2):
            a("v_pk_add_f32 %s, %s, %s" % (vr(16 + q, 2), vr(16 + q, 2), vr(16 + q + st_, 2)))
    a("s_nop 1")
    for e in range(2):
        a("v_add_f32_dpp v%d, v%d, v%d quad_perm:[1,0,3,2] row_mask:0xf bank_mask:0xf" % (16 + e, 16 + e, 16 + e))
    emit_ln_finish(a, 16, 17, 2304, 18, 20, 22)
    a("v_mul_f32 v21, -v18, v20")
    a("v_lshrrev_b32 v10, 1, v2")
    a("v_and_b32 v11, 3, v10")
    a("v_bfe_u32 v13, v10, 3, 2")
    a("v_lshl_add_u32 v11, v13, 2, v11")
    a("v_bfe_u32 v13, v10, 2, 1")
    a("v_lshl_add_u32 v11, v13, 4, v11")
    a("s_lshl_b32 s36, s3, 8")
    a("s_add_u32 s36, s36, %d" % NTB)
    a("v_lshl_add_u32 v11, v11, 3, s36")
    a("ds_write_b64 v11, v[20:21]")
    for n in range(9):
        a("v_add_u32 v10, %d, v2" % (64 * n))
        a("v_mul_u32_u24 v10, 3641, v10")
        a("v_lshrrev_b32 v10, 16, v10")
        a("v_lshl_add_u32 v%d, v10, 3, s36" % (24 + n))
    a("s_waitcnt lgkmcnt(0)")
    for n in range(9):
        a("ds_read_b64 %s, v%d" % (vr(52 + 2 * n, 2), 24 + n))
    a("s_waitcnt vmcnt(0) lgkmcnt(0)")
    stamp(a, 8)
    for n in range(9):
        for d in range(4):
            z = ND + 4 * n + d; t_ = 72 + 2 * d
            a("v_lshlrev_b32 v%d, 16, v%d" % (t_, z))
            a("v_and_b32 v%d, 0xffff0000, v%d" % (t_ + 1, z))
        for d in range(4):
            t_ = 72 + 2 * d
            a("v_pk_fma_f32 %s, %s, %s, %s op_sel:[0,0,1] op_sel_hi:[1,0,1]" % (vr(t_, 2), vr(t_, 2), vr(52 + 2 * n, 2), vr(52 + 2 * n, 2)))
        for d in range(4):
            a("v_cvt_pk_bf16_f32 v%d, v%d, v%d" % (200 + 4 * n + d, 72 + 2 * d, 73 + 2 * d))
        a("buffer_store_dwordx4 %s, v12, s[12:15], s%d offen offset:%d sc1" % (vr(200 + 4 * n), (52, 53, 55)[n >> 2], (n & 3) * 1024))
    srd(a, 76, 94, 2304 * 576 * 2)
    a("s_mov_b32 s42, s2")
    emit_wot_loads(a, 240, 252, 720, 3)
    MR = 100; CS = 108; ONE = 96
    a("s_lshl_b32 s36, s22, 7")
    a("s_lshl_b32 s37, s24, 6")
    a("s_add_u32 s36, s36, s37")
    a("s_lshl_b32 s36, s36, 3")
    a("s_add_u32 s36, s36, 0x%x" % STATS1)
    a("s_lshl_b32 s37, s25, 8")
    a("s_add_u32 s38, s36, s37")
    a("s_xor_b32 s37, s37, 256")
    a("s_add_u32 s39, s36, s37")
    a("v_lshlrev_b32 v10, 3, v3")
    a("buffer_load_dwordx2 %s, v10, s[12:15], s38 offen" % vr(MR, 2))
    a("buffer_load_dwordx2 %s, v10, s[12:15], s38 offen offset:128" % vr(MR + 2, 2))
    a("buffer_load_dwordx2 %s, v10, s[12:15], s39 offen" % vr(MR + 4, 2))
    a("buffer_load_dwordx2 %s, v10, s[12:15], s39 offen offset:128" % vr(MR + 6, 2))
    for r in range(CS, CS + 20): a("v_mov_b32 v%d, 0" % r)
    for r in range(ONE, ONE + 4): a("v_mov_b32 v%d, 0x3f803f80" % r)
    stamp(a, 9)
    a("s_mov_b32 s99, 0")
    for r in range(ACC, ACC + 72): a("v_mov_b32 v%d, 0" % r)
    a("s_mov_b32 s27, 0")
    a("s_mov_b32 s33, 0")
    core = G.Core(a, ACC, FB[0], FB[1], FS, TREG, vTa, vTb, vF, vFh)
    trk = core.trk
    a("s_barrier")
    stamp(a, 1)
    core.prime(0, core.reads(0, 0))
    withcs = [True]
    def mfmas(buf):
        L = []
        for ft in range(5):
            A = core.F(buf, ft)
            for tt in range(4 if ft < 4 else 2):
                c = core.accr(ft, tt); B = core.T(buf, tt)
                L.append(("v_mfma_f32_16x16x32_bf16 %s, %s, %s, %s" % (vr(c), vr(A), vr(B), vr(c)), list(range(A, A + 4)) + list(range(B, B + 4))))
            if withcs[0]:
                L.append(("v_mfma_f32_16x16x32_bf16 %s, %s, %s, %s" % (vr(CS + 4 * ft), vr(A), vr(ONE), vr(CS + 4 * ft)), list(range(A, A + 4))))
        return L
    def phase(buf, pend):
        for (m, regs) in mfmas(buf):
            trk.need(regs)
            a(m)
            while pend:
                k, t = pend.pop(0)
                if k == "x":
                    a(t)
                    if t.startswith("s_"): continue
                else:
                    a(t[0]); trk.issue(t[1])
                break
        for k, t in pend:
            if k == "x": a(t)
            else: a(t[0]); trk.issue(t[1])
    def iteration(extra=None):
        a("s_barrier")
        rd = [("r", t) for t in core.reads(1, 1)]
        upd = ["s_add_u32 s27, s27, %d" % SLOT, "s_cmp_eq_u32 s27, %d" % (R * SLOT), "s_cselect_b32 s27, 0, s27"]
        tail = ["v_add_u32 v%d, s27, v%d" % (d, s_) for d, s_ in ((vTa[0], bTa[0]), (vF, bF), (vTb[0], bTb[0]), (vFh, bFh))]
        phase(0, rd[:1] + [("x", u) for u in upd] + rd[1:] + [("x", u) for u in tail])
        rd = [("r", t) for t in core.reads(0, 0)]
        tail = ["v_add_u32 v%d, s27, v%d" % (d, s_) for d, s_ in ((vTa[1], bTa[1]), (vTb[1], bTb[1]))] + ["s_add_u32 s33, s33, 1"]
        phase(1, rd + [("x", u) for u in tail])
    trk.drain()
    a.label("%s_zloop" % name)
    lb = len(a.lines); iteration(); st = copy.deepcopy(trk.out); del a.lines[lb:]; trk.out = copy.deepcopy(st)
    iteration()
    assert [sorted(x) for x in trk.out] == [sorted(x) for x in st]
    a("s_cmp_lg_u32 s33, 2")
    a("s_cbranch_scc1 %s_zs1" % name)
    a("s_waitcnt vmcnt(0)")
    a.label("%s_zs1" % name)
    a("s_lshl_b32 s36, s3, 8")
    a("s_add_u32 s36, s36, s33")
    a("s_cmp_lg_u32 s36, 3")
    a("s_cbranch_scc1 %s_zs2" % name)
    a("v_mov_b32 v10, 1")
    a("s_lshl_b32 s36, s23, 2")
    a("v_mov_b32 v11, s36")
    a("s_mov_b64 exec, 1")
    a("buffer_atomic_add v10, v11, s[60:63], 0 offen sc1")
    a("s_mov_b64 exec, -1")
    a.label("%s_zs2" % name)
    a("s_cmp_lt_u32 s33, 9")
    a("s_cbranch_scc1 %s_zloop" % name)
    trk.drain()
    stamp(a, 5)
    gelu_consts(a)
    a("s_waitcnt vmcnt(0)")
    for tt in range(4): a("v_sub_f32 v%d, 0, v%d" % (MR + 2 * tt, MR + 2 * tt))
    a("s_mov_b32 s35, 0x%x" % WOT)
    for n in range(3):
        a("buffer_store_dwordx4 %s, v%d, s[12:15], s35 offen" % (vr(240 + 4 * n), 252 + n))
    for ft in range(5):
        tts = range(4 if ft < 4 else 2)
        emit_fold_gelu(a, [(core.accr(ft, tt), CS + 4 * ft, MR + 2 * tt, Z1R + 2 * tidx(ft, tt)) for tt in tts], 56)
    for r in range(ACC, ACC + 72): a("v_mov_b32 v%d, 0" % r)
    a("s_mov_b32 s33, 0")
    stamp(a, 6)
    withcs[0] = False
    a.label("%s_cloop" % name)
    lb = len(a.lines); iteration(); st = copy.deepcopy(trk.out); del a.lines[lb:]; trk.out = copy.deepcopy(st)
    iteration()
    assert [sorted(x) for x in trk.out] == [sorted(x) for x in st]
    a("s_cmp_lg_u32 s33, 24")
    a("s_cbranch_scc1 %s_noz" % name)
    a("s_lshl_b32 s36, s22, 7")
    a("s_lshl_b32 s37, s24, 6")
    a("s_add_u32 s36, s36, s37")
    a("v_lshlrev_b32 v11, 1, v3")
    a("s_lshl_b32 s37, s25, 6")
    a("s_lshl_b32 s38, s36, 1")
    a("s_add_u32 s39, s38, s37")
    a("s_xor_b32 s37, s37, 64")
    a("s_add_u32 s40, s38, s37")
    a("buffer_load_ushort v%d, v11, s[28:31], s39 offen" % (BI + 0))
    a("buffer_load_ushort v%d, v11, s[28:31], s39 offen offset:32" % (BI + 2))
    a("buffer_load_ushort v%d, v11, s[28:31], s40 offen" % (BI + 4))
    a("buffer_load_ushort v%d, v11, s[28:31], s40 offen offset:32" % (BI + 6))
    a.label("%s_noz" % name)
    a("s_cmp_lt_u32 s33, %d" % NST)
    a("s_cbranch_scc1 %s_cloop" % name)
    trk.drain()
    stamp(a, 2)
    a.label("%s_epi" % name)
    a("v_lshrrev_b32 v10, 4, v2")
    a("v_and_b32 v11, 1, v10")
    a("v_lshrrev_b32 v12, 1, v10")
    a("v_lshl_add_u32 v12, v11, 1, v12")
    a("s_mul_i32 s35, s23, 18")
    a("s_mul_i32 s36, s25, 10")
    a("s_add_u32 s36, s36, s35")
    a("v_lshrrev_b32 v13, 1, v3")
    a("s_lshl_b32 s37, s22, 1")
    a("s_add_u32 s37, s37, s24")
    a("s_mul_i32 s37, s37, %d" % (36 * 8192))
    a("s_add_u32 s37, s37, 0x%x" % PIMG)
    a("s_lshl_b32 s38, s25, 12")
    a("s_add_u32 s39, s37, s38")
    a("s_xor_b32 s38, s38, 4096")
    a("s_add_u32 s40, s37, s38")
    def addr(dst, pv):
        a("v_lshrrev_b32 v14, 3, v%d" % pv)
        a("v_lshlrev_b32 v14, 13, v14")
        a("v_and_b32 v15, 7, v%d" % pv)
        a("v_xor_b32 v15, v15, v13")
        a("v_lshl_add_u32 v14, v15, 4, v14")
        a("v_lshl_add_u32 v%d, v3, 7, v14" % dst)
    a("v_add_u32 v16, s36, v12"); addr(4, 16)
    a("v_add_u32 v16, 4, v16"); addr(5, 16)
    a("v_lshrrev_b32 v16, 1, v10")
    a("s_add_u32 s35, s35, 8")
    a("v_add_u32 v16, s35, v16"); addr(6, 16)
    a("v_lshl_add_u32 v6, v11, 11, v6")
    a("s_waitcnt vmcnt(0)")
    for tt in range(4):
        a("v_lshlrev_b32 v%d, 16, v%d" % (BI + 2 * tt, BI + 2 * tt))
    stamp(a, 3)
    def ptiles(lst, O):
        T = 24
        for q, (ft, tt) in enumerate(lst):
            c = core.accr(ft, tt)
            for h in (0, 2):
                a("v_pk_add_f32 %s, %s, %s op_sel_hi:[1,0]" % (vr(c + h, 2), vr(c + h, 2), vr(BI + 2 * tt, 2)))
        for q, (ft, tt) in enumerate(lst):
            c = core.accr(ft, tt)
            a("v_cvt_pk_bf16_f32 v%d, v%d, v%d" % (T + 2 * q, c, c + 1))
            a("v_cvt_pk_bf16_f32 v%d, v%d, v%d" % (T + 2 * q + 1, c + 2, c + 3))
        for q, (ft, tt) in enumerate(lst):
            c = core.accr(ft, tt); z = Z1R + 2 * tidx(ft, tt)
            for d in range(2):
                a("v_lshlrev_b32 v%d, 16, v%d" % (c + 2 * d, T + 2 * q + d))
                a("v_and_b32 v%d, 0xffff0000, v%d" % (c + 2 * d + 1, T + 2 * q + d))
                a("v_lshlrev_b32 v%d, 16, v%d" % (T + 4 + 4 * q + 2 * d, z + d))
                a("v_and_b32 v%d, 0xffff0000, v%d" % (T + 5 + 4 * q + 2 * d, z + d))
        for q, (ft, tt) in enumerate(lst):
            c = core.accr(ft, tt)
            for h in (0, 2):
                a("v_pk_mul_f32 %s, %s, %s" % (vr(c + h, 2), vr(c + h, 2), vr(T + 4 + 4 * q + h, 2)))
        for q, (ft, tt) in enumerate(lst):
            c = core.accr(ft, tt)
            a("v_cvt_pk_bf16_f32 v%d, v%d, v%d" % (O + 2 * q, c, c + 1))
            a("v_cvt_pk_bf16_f32 v%d, v%d, v%d" % (O + 2 * q + 1, c + 2, c + 3))
        a("s_nop 1")
        a("v_permlane16_swap_b32 v%d, v%d" % (O, O + 2))
        a("v_permlane16_swap_b32 v%d, v%d" % (O + 1, O + 3))
        a("s_nop 0")
    cnt = 0
    for pr in range(2):
        for tt in range(4):
            O = 40 + 4 * cnt; cnt += 1
            ptiles([(2 * pr, tt), (2 * pr + 1, tt)], O)
            a("buffer_store_dwordx4 %s, v%d, s[12:15], s%d offen offset:%d" % (vr(O), 4 + pr, 39 if tt < 2 else 40, (tt & 1) * 2048))
    O = 40 + 4 * cnt
    ptiles([(4, 0), (4, 1)], O)
    a("buffer_store_dwordx4 %s, v6, s[12:15], s39 offen" % vr(O))
    seg_end2(a, name)
    stamp(a, 4)
    G.stamp_rt(a, 1)
    a.label("%s_end" % name)
    a("s_endpgm")
    return a.text(), kernel_desc(name, 256, 256), (name, 256, 512, R * SLOT + 1024)


def gen_k2g(name="k2_kernel", R=4):
    a = Asm()
    SLOT = 34816; TREG = 16384; FS = 288; NST = 32
    kernel_begin(a, name)
    a("s_load_dwordx2 s[4:5], s[0:1], 64")
    a("s_load_dwordx2 s[6:7], s[0:1], 104")
    a("s_load_dwordx4 s[88:91], s[0:1], 32")
    a("s_load_dwordx2 s[80:81], s[0:1], 0")
    a("s_load_dwordx2 s[82:83], s[0:1], 56")
    a("s_load_dwordx2 s[56:57], s[0:1], 96")
    a("s_cmp_ge_u32 s2, 256")
    a("s_cbranch_scc1 %s_end" % name)
    a("v_lshrrev_b32 v1, 6, v0")
    a("v_and_b32 v2, 63, v0")
    a("v_readfirstlane_b32 s3, v1")
    G2.tile_ij(a)
    a("s_cmp_lt_u32 s3, 4")
    a("s_cbranch_scc1 %s_consumer" % name)
    if "noprio" not in DBG: a("s_setprio 3")
    a("s_sub_u32 s3, s3, 4")
    a("v_lshrrev_b32 v3, 3, v2")
    a("s_lshl_b32 s24, s3, 5")
    a("v_add_u32 v3, s24, v3")
    a("v_and_b32 v4, 7, v2")
    a("v_lshrrev_b32 v6, 4, v2")
    a("v_xor_b32 v6, v6, v4")
    a("v_lshlrev_b32 v6, 4, v6")
    a("v_lshl_add_u32 v10, v3, 12, v6")
    a("v_xor_b32 v11, 64, v10")
    a("v_add_u32 v11, %d, v11" % (32768 - 1024))
    a("v_add_u32 v12, %d, v10" % (2 * (32768 - 1024)))
    a("v_add_u32 v13, %d, v11" % (2 * (32768 - 1024)))
    a("v_lshlrev_b32 v14, 4, v2")
    a("s_lshl_b32 s26, s22, 19")
    a("s_mul_i32 s27, s23, %d" % (32 * 18432))
    a("s_lshl_b32 s24, s3, 12")
    a("s_add_u32 s27, s27, s24")
    if ZIMG: a("s_add_u32 s27, s27, 0x%x" % ZIMG)
    a("s_lshl_b32 s25, s3, 9")
    a("s_sub_u32 s32, s25, s24")
    a("s_add_u32 s32, s32, 16384")
    a("s_mov_b32 s33, 0")
    a("s_waitcnt lgkmcnt(0)")
    srd(a, 8, 4, 2048 * 2048 * 2)
    srd(a, 12, 6, WS_BYTES)
    def issue():
        a("s_add_u32 s35, s33, s24")
        a("s_mov_b32 m0, s35")
        a("s_add_u32 s36, s35, %d" % TREG)
        for n in range(4):
            a("buffer_load_dwordx4 v%d, s[8:11], s26 offen offset:%d lds" % (10 + n, n * 1024))
        a("s_mov_b32 m0, s36")
        a("s_add_u32 s37, s27, s32")
        for n in range(4):
            a("buffer_load_dwordx4 v14, s[12:15], s27 offen offset:%d sc1 lds" % (n * 1024))
        a("s_add_u32 s36, s36, s32")
        a("s_mov_b32 m0, s36")
        a("s_mov_b64 exec, 0xffffffff")
        a("buffer_load_dwordx4 v14, s[12:15], s37 offen sc1 lds")
        a("s_mov_b64 exec, -1")
        a("s_add_u32 s26, s26, 128")
        a("s_add_u32 s27, s27, 18432")
        a("s_add_u32 s33, s33, %d" % SLOT)
        a("s_cmp_eq_u32 s33, %d" % (R * SLOT))
        a("s_cselect_b32 s33, 0, s33")
    srd(a, 16, 88, 576 * 2048 * 2)
    srd(a, 84, 90, 576 * 2)
    a("s_lshl_b32 s43, s2, 2")
    a("s_add_u32 s43, s43, s3")
    a("s_and_b32 s53, s43, 1")
    a("s_sub_u32 s36, s43, 448")
    a("s_lshr_b32 s37, s43, 1")
    a("s_cmp_ge_u32 s43, 896")
    a("s_cselect_b32 s43, s36, s37")
    a("s_cselect_b32 s53, 2, s53")
    VT = 16; VF = 20
    srd(a, 64, 80, 2048 * 576 * 2)
    srd(a, 68, 82, 576 * 4608 * 2)
    a("v_mul_u32_u24 v5, 1152, v3")
    a("v_add_u32 v%d, v5, v6" % VT)
    a("v_xor_b32 v%d, 64, v%d" % (VT + 1, VT))
    a("v_add_u32 v%d, %d, v%d" % (VT + 1, 9216 - 1024, VT + 1))
    a("v_add_u32 v%d, %d, v%d" % (VT + 2, 2 * (9216 - 1024), VT))
    a("v_add_u32 v%d, %d, v%d" % (VT + 3, 2 * (9216 - 1024), VT + 1))
    a("s_mul_i32 s72, s22, %d" % (128 * 1152))
    a("s_mul_i32 s73, s23, 288")
    a("s_add_u32 s74, s25, %d" % (TREG + 16384))
    def issueT1(g):
        a("s_add_u32 s35, s24, %d" % ((g % R) * SLOT))
        a("s_mov_b32 m0, s35")
        a("s_add_u32 s36, s72, %d" % (128 * g))
        for n in range(4):
            a("buffer_load_dwordx4 v%d, s[64:67], s36 offen offset:%d lds" % (VT + n, 1024 * n))
    def issueF1(g):
        a("s_add_u32 s35, s24, %d" % ((g % R) * SLOT + TREG))
        a("s_mov_b32 m0, s35")
        a("s_add_u32 s36, s73, %d" % (64 * 9216 * g))
        for n in range(4):
            a("buffer_load_dwordx4 v%d, s[68:71], s36 offen offset:%d lds" % (VF + n, 1024 * n))
        a("s_add_u32 s35, s74, %d" % ((g % R) * SLOT))
        a("s_mov_b32 m0, s35")
        a("s_mov_b64 exec, 0xffffffff")
        a("buffer_load_dwordx4 v%d, s[68:71], s36 offen lds" % (VF + 4))
        a("s_mov_b64 exec, -1")
    issueT1(0)
    for n in range(5):
        if n < 4:
            a("s_lshl_b32 s36, s3, 8")
            a("s_add_u32 s36, s36, %d" % (64 * n))
        else:
            a("s_lshl_b32 s36, s3, 5")
            a("s_add_u32 s36, s36, 1024")
        a("v_add_u32 v6, s36, v2")
        a("v_mul_u32_u24 v7, 3641, v6")
        a("v_lshrrev_b32 v7, 16, v7")
        a("v_mul_u32_u24 v8, 18, v7")
        a("v_sub_u32 v8, v6, v8")
        a("v_and_b32 v9, 35, v7")
        a("v_bfe_u32 v6, v7, 2, 2")
        a("v_lshl_add_u32 v9, v6, 3, v9")
        a("v_bfe_u32 v6, v7, 4, 1")
        a("v_lshl_add_u32 v9, v6, 2, v9")
        a("v_mul_u32_u24 v9, 9216, v9")
        a("v_lshl_add_u32 v%d, v8, 4, v9" % (VF + n))
        if 0 < n < 4: a("v_subrev_u32 v%d, %d, v%d" % (VF + n, 1024 * n, VF + n))
    issueF1(0)
    issueT1(1); issueF1(1)
    a("s_load_dwordx2 s[94:95], s[0:1], 80")
    a("s_waitcnt vmcnt(9) lgkmcnt(0)")
    a("s_barrier")
    issueT1(2); issueF1(2); issueT1(3); issueF1(3)
    a("s_waitcnt vmcnt(18)")
    a("s_barrier")
    a("s_add_u32 s3, s3, 4"); stamp_setup(a, 2); stamp(a, 0); a("s_sub_u32 s3, s3, 4")
    nconv = emit_conv_loads(a)
    for r_ in range(9): a("v_mov_b32 v%d, v%d" % (100 + r_, 16 + r_))
    srd(a, 76, 94, 2304 * 576 * 2)
    a("s_mov_b32 s42, s2")
    a("v_and_b32 v0, 255, v0")
    emit_wot_loads(a, 112, 124, 720, 3)
    for r_ in range(9): a("v_mov_b32 v%d, v%d" % (16 + r_, 100 + r_))
    nconv += 3
    a("s_waitcnt vmcnt(%d)" % (9 + nconv))
    a("s_barrier")
    for kk in range(1, 6):
        issueT1(kk + 3); issueF1(kk + 3)
        if kk == 3:
            for n in range(3):
                a("buffer_store_dwordx4 %s, v%d, s[12:15], s40 offen" % (vr(112 + 4 * n), 124 + n))
        a("s_waitcnt vmcnt(%d)" % (9 + (nconv if kk == 1 else 3 if kk == 3 else 0)))
        a("s_barrier")
    srd(a, 60, 56, 256)
    a("s_lshl_b32 s36, s23, 2")
    a("v_mov_b32 v26, s36")
    a("s_mov_b32 s34, 0")
    a.label("%s_pz" % name)
    a("buffer_load_dword v27, v26, s[60:63], 0 offen sc1")
    a("s_add_u32 s34, s34, 1")
    a("s_waitcnt vmcnt(0)")
    a("v_readfirstlane_b32 s36, v27")
    a("s_cmp_gt_u32 s34, %d" % SPIN_MAX)
    a("s_cbranch_scc1 %s_pzx" % name)
    a("s_cmp_ge_u32 s36, 16")
    a("s_cbranch_scc1 %s_pzx" % name)
    a("s_sleep 16")
    a("s_branch %s_pz" % name)
    a.label("%s_pzx" % name)
    a("s_mov_b32 s33, %d" % ((9 % R) * SLOT))
    a("s_mov_b32 s34, 0")
    a.label("%s_lloop" % name)
    issue()
    a("s_waitcnt vmcnt(9)")
    a("s_barrier")
    a("s_add_u32 s34, s34, 1")
    a("s_cmp_lt_u32 s34, 32")
    a("s_cbranch_scc1 %s_lloop" % name)
    a("s_waitcnt vmcnt(0) lgkmcnt(0)")
    a("s_barrier")
    stamp(a, 1)
    a("s_mov_b32 s26, s53")
    a("s_and_b32 s27, s3, 1")
    a("s_mul_i32 s27, s27, %d" % CJ_SIZE)
    a("s_lshr_b32 s36, s3, 1")
    a("s_add_u32 s36, s36, 1")
    a("s_mul_i32 s36, s36, %d" % SLOT)
    a("s_add_u32 s27, s27, s36")
    def mid():
        if "warm2" in DBG:
            a("s_cmp_eq_u32 s99, 1")
            a("s_cbranch_scc1 %s_midskip" % name)
        a("s_barrier")
        a("s_setprio 0")
        a.label("%s_midskip" % name)
    a.label("%s_cjstart" % name)
    if "noconv" in DBG:
        mid()
    else:
        emit_conv_job(a, name, mid)
        G.stamp_rt(a, 1)
    a("s_branch %s_end" % name)
    a.label("%s_consumer" % name)
    a("s_load_dwordx2 s[92:93], s[0:1], 72")
    a("s_load_dwordx2 s[94:95], s[0:1], 80")
    ACC = 128; FB = [16, 52]
    vTa = [4, 5]; vTb = [6, 7]; vF = 8; vFh = 9
    bTa = [88, 89]; bTb = [90, 91]; bF = 92; bFh = 93
    Z1R = 200; BI = 236
    a("s_lshr_b32 s24, s3, 1")
    a("s_and_b32 s25, s3, 1")
    a("v_and_b32 v3, 15, v2")
    a("v_lshrrev_b32 v10, 4, v2")
    a("v_lshrrev_b32 v11, 1, v3")
    a("v_xor_b32 v10, v10, v11")
    a("v_lshlrev_b32 v10, 4, v10")
    a("v_lshl_add_u32 v10, v3, 7, v10")
    a("s_lshl_b32 s26, s24, 13")
    a("v_add_u32 v10, s26, v10")
    a("s_lshl_b32 s26, s25, 12")
    a("v_add_u32 v%d, s26, v10" % bTa[0])
    a("s_xor_b32 s26, s26, 4096")
    a("v_add_u32 v%d, s26, v10" % bTb[0])
    a("v_xor_b32 v%d, 64, v%d" % (bTa[1], bTa[0]))
    a("v_xor_b32 v%d, 64, v%d" % (bTb[1], bTb[0]))
    a("v_lshrrev_b32 v10, 2, v2")
    a("v_mul_u32_u24 v10, %d, v10" % FS)
    a("v_and_b32 v11, 3, v2")
    a("v_lshl_add_u32 v10, v11, 3, v10")
    a("v_add_u32 v10, %d, v10" % TREG)
    a("s_mul_i32 s26, s25, 160")
    a("v_add_u32 v%d, s26, v10" % bF)
    a("v_add_u32 v%d, 128, v10" % bFh)
    for d, s_ in ((vTa[0], bTa[0]), (vTb[0], bTb[0]), (vTa[1], bTa[1]), (vTb[1], bTb[1]), (vF, bF), (vFh, bFh)):
        a("v_mov_b32 v%d, v%d" % (d, s_))
    a("s_waitcnt lgkmcnt(0)")
    srd(a, 12, 6, WS_BYTES)
    srd(a, 28, 92, 2048 * 2)
    srd(a, 60, 56, 256)
    stamp_setup(a, 2); stamp(a, 0)
    NTB = R * SLOT
    ND = 128
    a("s_lshl_b32 s36, s22, 7")
    a("s_lshl_b32 s37, s3, 5")
    a("s_add_u32 s36, s36, s37")
    a("s_lshl_b32 s36, s36, 8")
    a("s_add_u32 s36, s36, 0x%x" % STATS2)
    a("v_lshlrev_b32 v10, 7, v2")
    for q in range(8):
        a("buffer_load_dwordx4 %s, v10, s[12:15], s36 offen offset:%d" % (vr(16 + 4 * q), 16 * q))
    a("s_lshl_b32 s52, s23, 5")
    a("s_lshl_b32 s37, s22, 1")
    a("s_add_u32 s52, s52, s37")
    a("s_mul_i32 s52, s52, 18432")
    a("s_mul_i32 s37, s3, 9216")
    a("s_add_u32 s52, s52, s37")
    if ZIMG: a("s_add_u32 s52, s52, 0x%x" % ZIMG)
    a("s_add_u32 s53, s52, 4096")
    a("s_add_u32 s55, s52, 8192")
    a("v_lshlrev_b32 v12, 4, v2")
    for n in range(9):
        a("buffer_load_dwordx4 %s, v12, s[12:15], s%d offen offset:%d sc1" % (vr(ND + 4 * n), (52, 53, 55)[n >> 2], (n & 3) * 1024))
    a("s_waitcnt vmcnt(9)")
    stamp(a, 7)
    for st_ in (16, 8, 4, 2):
        for q in range(0, st_, 2):
            a("v_pk_add_f32 %s, %s, %s" % (vr(16 + q, 2), vr(16 + q, 2), vr(16 + q + st_, 2)))
    a("s_nop 1")
    for e in range(2):
        a("v_add_f32_dpp v%d, v%d, v%d quad_perm:[1,0,3,2] row_mask:0xf bank_mask:0xf" % (16 + e, 16 + e, 16 + e))
    emit_ln_finish(a, 16, 17, 2304, 18, 20, 22)
    a("v_mul_f32 v21, -v18, v20")
    a("v_lshrrev_b32 v10, 1, v2")
    a("v_and_b32 v11, 3, v10")
    a("v_bfe_u32 v13, v10, 3, 2")
    a("v_lshl_add_u32 v11, v13, 2, v11")
    a("v_bfe_u32 v13, v10, 2, 1")
    a("v_lshl_add_u32 v11, v13, 4, v11")
    a("s_lshl_b32 s36, s3, 8")
    a("s_add_u32 s36, s36, %d" % NTB)
    a("v_lshl_add_u32 v11, v11, 3, s36")
    a("ds_write_b64 v11, v[20:21]")
    for n in range(9):
        a("v_add_u32 v10, %d, v2" % (64 * n))
        a("v_mul_u32_u24 v10, 3641, v10")
        a("v_lshrrev_b32 v10, 16, v10")
        a("v_lshl_add_u32 v%d, v10, 3, s36" % (24 + n))
    a("s_waitcnt lgkmcnt(0)")
    for n in range(9):
        a("ds_read_b64 %s, v%d" % (vr(52 + 2 * n, 2), 24 + n))
    a("s_waitcnt vmcnt(0) lgkmcnt(0)")
    stamp(a, 8)
    for n in range(9):
        for d in range(4):
            z = ND + 4 * n + d; t_ = 72 + 2 * d
            a("v_lshlrev_b32 v%d, 16, v%d" % (t_, z))
            a("v_and_b32 v%d, 0xffff0000, v%d" % (t_ + 1, z))
        for d in range(4):
            t_ = 72 + 2 * d
            a("v_pk_fma_f32 %s, %s, %s, %s op_sel:[0,0,1] op_sel_hi:[1,0,1]" % (vr(t_, 2), vr(t_, 2), vr(52 + 2 * n, 2), vr(52 + 2 * n, 2)))
        for d in range(4):
            a("v_cvt_pk_bf16_f32 v%d, v%d, v%d" % (200 + 4 * n + d, 72 + 2 * d, 73 + 2 * d))
        a("buffer_store_dwordx4 %s, v12, s[12:15], s%d offen offset:%d sc1" % (vr(200 + 4 * n), (52, 53, 55)[n >> 2], (n & 3) * 1024))
    MR = 100; CS = 108; ONE = 96
    a("s_lshl_b32 s36, s22, 7")
    a("s_lshl_b32 s37, s24, 6")
    a("s_add_u32 s36, s36, s37")
    a("s_lshl_b32 s36, s36, 3")
    a("s_add_u32 s36, s36, 0x%x" % STATS1)
    a("s_lshl_b32 s37, s25, 8")
    a("s_add_u32 s38, s36, s37")
    a("s_xor_b32 s37, s37, 256")
    a("s_add_u32 s39, s36, s37")
    a("v_lshlrev_b32 v10, 3, v3")
    a("buffer_load_dwordx2 %s, v10, s[12:15], s38 offen" % vr(MR, 2))
    a("buffer_load_dwordx2 %s, v10, s[12:15], s38 offen offset:128" % vr(MR + 2, 2))
    a("buffer_load_dwordx2 %s, v10, s[12:15], s39 offen" % vr(MR + 4, 2))
    a("buffer_load_dwordx2 %s, v10, s[12:15], s39 offen offset:128" % vr(MR + 6, 2))
    for r in range(CS, CS + 20): a("v_mov_b32 v%d, 0" % r)
    for r in range(ONE, ONE + 4): a("v_mov_b32 v%d, 0x3f803f80" % r)
    stamp(a, 9)
    a("s_mov_b32 s99, 0")
    for r in range(ACC, ACC + 72): a("v_mov_b32 v%d, 0" % r)
    a("s_mov_b32 s27, 0")
    a("s_mov_b32 s33, 0")
    core = G.Core(a, ACC, FB[0], FB[1], FS, TREG, vTa, vTb, vF, vFh)
    trk = core.trk
    a("s_barrier")
    stamp(a, 1)
    core.prime(0, core.reads(0, 0))
    withcs = [True]
    def mfmas(buf):
        L = []
        for ft in range(5):
            A = core.F(buf, ft)
            for tt in range(4 if ft < 4 else 2):
                c = core.accr(ft, tt); B = core.T(buf, tt)
                L.append(("v_mfma_f32_16x16x32_bf16 %s, %s, %s, %s" % (vr(c), vr(A), vr(B), vr(c)), list(range(A, A + 4)) + list(range(B, B + 4))))
            if withcs[0]:
                L.append(("v_mfma_f32_16x16x32_bf16 %s, %s, %s, %s" % (vr(CS + 4 * ft), vr(A), vr(ONE), vr(CS + 4 * ft)), list(range(A, A + 4))))
        return L
    def phase(buf, pend):
        for (m, regs) in mfmas(buf):
            trk.need(regs)
            a(m)
            while pend:
                k, t = pend.pop(0)
                if k == "x":
                    a(t)
                    if t.startswith("s_"): continue
                else:
                    a(t[0]); trk.issue(t[1])
                break
        for k, t in pend:
            if k == "x": a(t)
            else: a(t[0]); trk.issue(t[1])
    def iteration(extra=None):
        a("s_barrier")
        rd = [("r", t) for t in core.reads(1, 1)]
        upd = ["s_add_u32 s27, s27, %d" % SLOT, "s_cmp_eq_u32 s27, %d" % (R * SLOT), "s_cselect_b32 s27, 0, s27"]
        tail = ["v_add_u32 v%d, s27, v%d" % (d, s_) for d, s_ in ((vTa[0], bTa[0]), (vF, bF), (vTb[0], bTb[0]), (vFh, bFh))]
        phase(0, rd[:1] + [("x", u) for u in upd] + rd[1:] + [("x", u) for u in tail])
        rd = [("r", t) for t in core.reads(0, 0)]
        tail = ["v_add_u32 v%d, s27, v%d" % (d, s_) for d, s_ in ((vTa[1], bTa[1]), (vTb[1], bTb[1]))] + ["s_add_u32 s33, s33, 1"]
        phase(1, rd + [("x", u) for u in tail])
    trk.drain()
    a.label("%s_zloop" % name)
    lb = len(a.lines); iteration(); st = copy.deepcopy(trk.out); del a.lines[lb:]; trk.out = copy.deepcopy(st)
    iteration()
    assert [sorted(x) for x in trk.out] == [sorted(x) for x in st]
    a("s_cmp_lg_u32 s33, 2")
    a("s_cbranch_scc1 %s_zs1" % name)
    a("s_waitcnt vmcnt(0)")
    a.label("%s_zs1" % name)
    a("s_lshl_b32 s36, s3, 8")
    a("s_add_u32 s36, s36, s33")
    a("s_cmp_lg_u32 s36, 3")
    a("s_cbranch_scc1 %s_zs2" % name)
    a("v_mov_b32 v10, 1")
    a("s_lshl_b32 s36, s23, 2")
    a("v_mov_b32 v11, s36")
    a("s_mov_b64 exec, 1")
    a("buffer_atomic_add v10, v11, s[60:63], 0 offen sc1")
    a("s_mov_b64 exec, -1")
    a.label("%s_zs2" % name)
    a("s_cmp_lt_u32 s33, 9")
    a("s_cbranch_scc1 %s_zloop" % name)
    trk.drain()
    stamp(a, 5)
    gelu_consts(a)
    a("s_waitcnt vmcnt(0)")
    for tt in range(4): a("v_sub_f32 v%d, 0, v%d" % (MR + 2 * tt, MR + 2 * tt))
    for ft in range(5):
        tts = range(4 if ft < 4 else 2)
        emit_fold_gelu(a, [(core.accr(ft, tt), CS + 4 * ft, MR + 2 * tt, Z1R + 2 * tidx(ft, tt)) for tt in tts], 56)
    for r in range(ACC, ACC + 72): a("v_mov_b32 v%d, 0" % r)
    a("s_mov_b32 s33, 0")
    stamp(a, 6)
    withcs[0] = False
    a.label("%s_cloop" % name)
    lb = len(a.lines); iteration(); st = copy.deepcopy(trk.out); del a.lines[lb:]; trk.out = copy.deepcopy(st)
    iteration()
    assert [sorted(x) for x in trk.out] == [sorted(x) for x in st]
    a("s_cmp_lg_u32 s33, 24")
    a("s_cbranch_scc1 %s_noz" % name)
    a("s_lshl_b32 s36, s22, 7")
    a("s_lshl_b32 s37, s24, 6")
    a("s_add_u32 s36, s36, s37")
    a("v_lshlrev_b32 v11, 1, v3")
    a("s_lshl_b32 s37, s25, 6")
    a("s_lshl_b32 s38, s36, 1")
    a("s_add_u32 s39, s38, s37")
    a("s_xor_b32 s37, s37, 64")
    a("s_add_u32 s40, s38, s37")
    a("buffer_load_ushort v%d, v11, s[28:31], s39 offen" % (BI + 0))
    a("buffer_load_ushort v%d, v11, s[28:31], s39 offen offset:32" % (BI + 2))
    a("buffer_load_ushort v%d, v11, s[28:31], s40 offen" % (BI + 4))
    a("buffer_load_ushort v%d, v11, s[28:31], s40 offen offset:32" % (BI + 6))
    a.label("%s_noz" % name)
    a("s_cmp_lt_u32 s33, %d" % NST)
    a("s_cbranch_scc1 %s_cloop" % name)
    trk.drain()
    stamp(a, 2)
    a.label("%s_epi" % name)
    a("v_lshrrev_b32 v10, 4, v2")
    a("v_and_b32 v11, 1, v10")
    a("v_lshrrev_b32 v12, 1, v10")
    a("v_lshl_add_u32 v12, v11, 1, v12")
    a("s_mul_i32 s35, s23, 18")
    a("s_mul_i32 s36, s25, 10")
    a("s_add_u32 s36, s36, s35")
    a("v_lshrrev_b32 v13, 1, v3")
    a("s_lshl_b32 s37, s22, 1")
    a("s_add_u32 s37, s37, s24")
    a("s_mul_i32 s37, s37, %d" % (36 * 8192))
    a("s_add_u32 s37, s37, 0x%x" % PIMG)
    a("s_lshl_b32 s38, s25, 12")
    a("s_add_u32 s39, s37, s38")
    a("s_xor_b32 s38, s38, 4096")
    a("s_add_u32 s40, s37, s38")
    def addr(dst, pv):
        a("v_lshrrev_b32 v14, 3, v%d" % pv)
        a("v_lshlrev_b32 v14, 13, v14")
        a("v_and_b32 v15, 7, v%d" % pv)
        a("v_xor_b32 v15, v15, v13")
        a("v_lshl_add_u32 v14, v15, 4, v14")
        a("v_lshl_add_u32 v%d, v3, 7, v14" % dst)
    a("v_add_u32 v16, s36, v12"); addr(4, 16)
    a("v_add_u32 v16, 4, v16"); addr(5, 16)
    a("v_lshrrev_b32 v16, 1, v10")
    a("s_add_u32 s35, s35, 8")
    a("v_add_u32 v16, s35, v16"); addr(6, 16)
    a("v_lshl_add_u32 v6, v11, 11, v6")
    a("s_waitcnt vmcnt(0)")
    for tt in range(4):
        a("v_lshlrev_b32 v%d, 16, v%d" % (BI + 2 * tt, BI + 2 * tt))
    stamp(a, 3)
    def ptiles(lst, O):
        T = 24
        for q, (ft, tt) in enumerate(lst):
            c = core.accr(ft, tt)
            for h in (0, 2):
                a("v_pk_add_f32 %s, %s, %s op_sel_hi:[1,0]" % (vr(c + h, 2), vr(c + h, 2), vr(BI + 2 * tt, 2)))
        for q, (ft, tt) in enumerate(lst):
            c = core.accr(ft, tt)
            a("v_cvt_pk_bf16_f32 v%d, v%d, v%d" % (T + 2 * q, c, c + 1))
            a("v_cvt_pk_bf16_f32 v%d, v%d, v%d" % (T + 2 * q + 1, c + 2, c + 3))
        for q, (ft, tt) in enumerate(lst):
            c = core.accr(ft, tt); z = Z1R + 2 * tidx(ft, tt)
            for d in range(2):
                a("v_lshlrev_b32 v%d, 16, v%d" % (c + 2 * d, T + 2 * q + d))
                a("v_and_b32 v%d, 0xffff0000, v%d" % (c + 2 * d + 1, T + 2 * q + d))
                a("v_lshlrev_b32 v%d, 16, v%d" % (T + 4 + 4 * q + 2 * d, z + d))
                a("v_and_b32 v%d, 0xffff0000, v%d" % (T + 5 + 4 * q + 2 * d, z + d))
        for q, (ft, tt) in enumerate(lst):
            c = core.accr(ft, tt)
            for h in (0, 2):
                a("v_pk_mul_f32 %s, %s, %s" % (vr(c + h, 2), vr(c + h, 2), vr(T + 4 + 4 * q + h, 2)))
        for q, (ft, tt) in enumerate(lst):
            c = core.accr(ft, tt)
            a("v_cvt_pk_bf16_f32 v%d, v%d, v%d" % (O + 2 * q, c, c + 1))
            a("v_cvt_pk_bf16_f32 v%d, v%d, v%d" % (O + 2 * q + 1, c + 2, c + 3))
        a("s_nop 1")
        a("v_permlane16_swap_b32 v%d, v%d" % (O, O + 2))
        a("v_permlane16_swap_b32 v%d, v%d" % (O + 1, O + 3))
        a("s_nop 0")
    cnt = 0
    for pr in range(2):
        for tt in range(4):
            O = 40 + 4 * cnt; cnt += 1
            ptiles([(2 * pr, tt), (2 * pr + 1, tt)], O)
            a("buffer_store_dwordx4 %s, v%d, s[12:15], s%d offen offset:%d" % (vr(O), 4 + pr, 39 if tt < 2 else 40, (tt & 1) * 2048))
    O = 40 + 4 * cnt
    ptiles([(4, 0), (4, 1)], O)
    a("buffer_store_dwordx4 %s, v6, s[12:15], s39 offen" % vr(O))
    seg_end2(a, name)
    stamp(a, 4)
    G.stamp_rt(a, 1)
    a.label("%s_end" % name)
    a("s_endpgm")
    return a.text(), kernel_desc(name, 256, 256), (name, 256, 512, R * SLOT + 1024)


def gen_k2e(name="k2_kernel", R=4):
    a = Asm()
    SLOT = 34816; TREG = 16384; FS = 288; NST = 32
    kernel_begin(a, name)
    a("s_load_dwordx2 s[4:5], s[0:1], 64")
    a("s_load_dwordx2 s[6:7], s[0:1], 104")
    a("s_load_dwordx4 s[88:91], s[0:1], 32")
    a("s_load_dwordx2 s[80:81], s[0:1], 0")
    a("s_load_dwordx2 s[82:83], s[0:1], 56")
    a("s_load_dwordx2 s[56:57], s[0:1], 96")
    a("s_cmp_ge_u32 s2, 256")
    a("s_cbranch_scc1 %s_end" % name)
    a("v_lshrrev_b32 v1, 6, v0")
    a("v_and_b32 v2, 63, v0")
    a("v_readfirstlane_b32 s3, v1")
    G2.tile_ij(a)
    a("s_cmp_lt_u32 s3, 4")
    a("s_cbranch_scc1 %s_consumer" % name)
    if "noprio" not in DBG: a("s_setprio 3")
    a("s_sub_u32 s3, s3, 4")
    a("v_lshrrev_b32 v3, 3, v2")
    a("s_lshl_b32 s24, s3, 5")
    a("v_add_u32 v3, s24, v3")
    a("v_and_b32 v4, 7, v2")
    a("v_lshrrev_b32 v6, 4, v2")
    a("v_xor_b32 v6, v6, v4")
    a("v_lshlrev_b32 v6, 4, v6")
    a("v_lshl_add_u32 v10, v3, 12, v6")
    a("v_xor_b32 v11, 64, v10")
    a("v_add_u32 v11, %d, v11" % (32768 - 1024))
    a("v_add_u32 v12, %d, v10" % (2 * (32768 - 1024)))
    a("v_add_u32 v13, %d, v11" % (2 * (32768 - 1024)))
    a("v_lshlrev_b32 v14, 4, v2")
    a("s_lshl_b32 s26, s22, 19")
    a("s_mul_i32 s27, s23, %d" % (32 * 18432))
    a("s_lshl_b32 s24, s3, 12")
    a("s_add_u32 s27, s27, s24")
    if ZIMG: a("s_add_u32 s27, s27, 0x%x" % ZIMG)
    a("s_lshl_b32 s25, s3, 9")
    a("s_sub_u32 s32, s25, s24")
    a("s_add_u32 s32, s32, 16384")
    a("s_mov_b32 s33, 0")
    a("s_waitcnt lgkmcnt(0)")
    srd(a, 8, 4, 2048 * 2048 * 2)
    srd(a, 12, 6, WS_BYTES)
    def issue():
        a("s_add_u32 s35, s33, s24")
        a("s_mov_b32 m0, s35")
        a("s_add_u32 s36, s35, %d" % TREG)
        for n in range(4):
            a("buffer_load_dwordx4 v%d, s[8:11], s26 offen offset:%d lds" % (10 + n, n * 1024))
        a("s_mov_b32 m0, s36")
        a("s_add_u32 s37, s27, s32")
        for n in range(4):
            a("buffer_load_dwordx4 v14, s[12:15], s27 offen offset:%d sc1 lds" % (n * 1024))
        a("s_add_u32 s36, s36, s32")
        a("s_mov_b32 m0, s36")
        a("s_mov_b64 exec, 0xffffffff")
        a("buffer_load_dwordx4 v14, s[12:15], s37 offen sc1 lds")
        a("s_mov_b64 exec, -1")
        a("s_add_u32 s26, s26, 128")
        a("s_add_u32 s27, s27, 18432")
        a("s_add_u32 s33, s33, %d" % SLOT)
        a("s_cmp_eq_u32 s33, %d" % (R * SLOT))
        a("s_cselect_b32 s33, 0, s33")
    srd(a, 16, 88, 576 * 2048 * 2)
    srd(a, 84, 90, 576 * 2)
    a("s_lshl_b32 s43, s2, 2")
    a("s_add_u32 s43, s43, s3")
    a("s_and_b32 s53, s43, 1")
    a("s_sub_u32 s36, s43, 448")
    a("s_lshr_b32 s37, s43, 1")
    a("s_cmp_ge_u32 s43, 896")
    a("s_cselect_b32 s43, s36, s37")
    a("s_cselect_b32 s53, 2, s53")
    VT = 16; VF = 20
    srd(a, 64, 80, 2048 * 576 * 2)
    srd(a, 68, 82, 576 * 4608 * 2)
    a("v_mul_u32_u24 v5, 1152, v3")
    a("v_add_u32 v%d, v5, v6" % VT)
    a("v_xor_b32 v%d, 64, v%d" % (VT + 1, VT))
    a("v_add_u32 v%d, %d, v%d" % (VT + 1, 9216 - 1024, VT + 1))
    a("v_add_u32 v%d, %d, v%d" % (VT + 2, 2 * (9216 - 1024), VT))
    a("v_add_u32 v%d, %d, v%d" % (VT + 3, 2 * (9216 - 1024), VT + 1))
    a("s_mul_i32 s72, s22, %d" % (128 * 1152))
    a("s_mul_i32 s73, s23, 288")
    a("s_add_u32 s74, s25, %d" % (TREG + 16384))
    def issueT1(g):
        a("s_add_u32 s35, s24, %d" % ((g % R) * SLOT))
        a("s_mov_b32 m0, s35")
        a("s_add_u32 s36, s72, %d" % (128 * g))
        for n in range(4):
            a("buffer_load_dwordx4 v%d, s[64:67], s36 offen offset:%d lds" % (VT + n, 1024 * n))
    def issueF1(g):
        a("s_add_u32 s35, s24, %d" % ((g % R) * SLOT + TREG))
        a("s_mov_b32 m0, s35")
        a("s_add_u32 s36, s73, %d" % (64 * 9216 * g))
        for n in range(4):
            a("buffer_load_dwordx4 v%d, s[68:71], s36 offen offset:%d lds" % (VF + n, 1024 * n))
        a("s_add_u32 s35, s74, %d" % ((g % R) * SLOT))
        a("s_mov_b32 m0, s35")
        a("s_mov_b64 exec, 0xffffffff")
        a("buffer_load_dwordx4 v%d, s[68:71], s36 offen lds" % (VF + 4))
        a("s_mov_b64 exec, -1")
    issueT1(0)
    for n in range(5):
        if n < 4:
            a("s_lshl_b32 s36, s3, 8")
            a("s_add_u32 s36, s36, %d" % (64 * n))
        else:
            a("s_lshl_b32 s36, s3, 5")
            a("s_add_u32 s36, s36, 1024")
        a("v_add_u32 v6, s36, v2")
        a("v_mul_u32_u24 v7, 3641, v6")
        a("v_lshrrev_b32 v7, 16, v7")
        a("v_mul_u32_u24 v8, 18, v7")
        a("v_sub_u32 v8, v6, v8")
        a("v_and_b32 v9, 35, v7")
        a("v_bfe_u32 v6, v7, 2, 2")
        a("v_lshl_add_u32 v9, v6, 3, v9")
        a("v_bfe_u32 v6, v7, 4, 1")
        a("v_lshl_add_u32 v9, v6, 2, v9")
        a("v_mul_u32_u24 v9, 9216, v9")
        a("v_lshl_add_u32 v%d, v8, 4, v9" % (VF + n))
        if 0 < n < 4: a("v_subrev_u32 v%d, %d, v%d" % (VF + n, 1024 * n, VF + n))
    issueF1(0)
    for g in (1, 2, 3): issueT1(g); issueF1(g)
    nconv = emit_conv_loads(a)
    NTB = R * SLOT; ND = 128; NP = 164; NT_ = 96; NA = 28; NV = 38
    a("s_lshl_b32 s36, s22, 7")
    a("s_lshl_b32 s37, s3, 5")
    a("s_add_u32 s36, s36, s37")
    a("s_lshl_b32 s36, s36, 8")
    a("s_add_u32 s36, s36, 0x%x" % STATS2)
    a("v_lshlrev_b32 v4, 7, v2")
    for q in range(8):
        a("buffer_load_dwordx4 %s, v4, s[12:15], s36 offen offset:%d" % (vr(NP + 4 * q), 16 * q))
    a("s_lshl_b32 s76, s23, 5")
    a("s_lshl_b32 s37, s22, 1")
    a("s_add_u32 s76, s76, s37")
    a("s_mul_i32 s76, s76, 18432")
    a("s_mul_i32 s37, s3, 9216")
    a("s_add_u32 s76, s76, s37")
    if ZIMG: a("s_add_u32 s76, s76, 0x%x" % ZIMG)
    a("s_add_u32 s77, s76, 4096")
    a("s_add_u32 s78, s76, 8192")
    for n in range(9):
        a("buffer_load_dwordx4 %s, v14, s[12:15], s%d offen offset:%d sc1" % (vr(ND + 4 * n), (76, 77, 78)[n >> 2], (n & 3) * 1024))
    nconv += 17
    def n_stats():
        for st_ in (16, 8, 4, 2):
            for q in range(0, st_, 2):
                a("v_pk_add_f32 %s, %s, %s" % (vr(NP + q, 2), vr(NP + q, 2), vr(NP + q + st_, 2)))
        a("s_nop 1")
        for e in range(2):
            a("v_add_f32_dpp v%d, v%d, v%d quad_perm:[1,0,3,2] row_mask:0xf bank_mask:0xf" % (NP + e, NP + e, NP + e))
        emit_ln_finish(a, NP, NP + 1, 2304, NP + 2, NP + 4, NP + 6)
        a("v_mul_f32 v%d, -v%d, v%d" % (NP + 5, NP + 2, NP + 4))
        a("v_lshrrev_b32 v4, 1, v2")
        a("v_and_b32 v5, 3, v4")
        a("v_bfe_u32 v6, v4, 3, 2")
        a("v_lshl_add_u32 v5, v6, 2, v5")
        a("v_bfe_u32 v6, v4, 2, 1")
        a("v_lshl_add_u32 v5, v6, 4, v5")
        a("s_lshl_b32 s79, s3, 8")
        a("s_add_u32 s79, s79, %d" % NTB)
        a("v_lshl_add_u32 v5, v5, 3, s79")
        a("ds_write_b64 v5, %s" % vr(NP + 4, 2))
        for n in range(9):
            a("v_add_u32 v4, %d, v2" % (64 * n))
            a("v_mul_u32_u24 v4, 3641, v4")
            a("v_lshrrev_b32 v4, 16, v4")
            a("v_lshl_add_u32 v%d, v4, 3, s79" % (NA + n))
        a("s_waitcnt lgkmcnt(0)")
        for n in range(9):
            a("ds_read_b64 %s, v%d" % (vr(NV + 2 * n, 2), NA + n))
    def n_piece(n):
        for d in range(4):
            z = ND + 4 * n + d; t_ = NT_ + 2 * d
            a("v_lshlrev_b32 v%d, 16, v%d" % (t_, z))
            a("v_and_b32 v%d, 0xffff0000, v%d" % (t_ + 1, z))
        for d in range(4):
            t_ = NT_ + 2 * d
            a("v_pk_fma_f32 %s, %s, %s, %s op_sel:[0,0,1] op_sel_hi:[1,0,1]" % (vr(t_, 2), vr(t_, 2), vr(NV + 2 * n, 2), vr(NV + 2 * n, 2)))
        for d in range(4):
            a("v_cvt_pk_bf16_f32 v%d, v%d, v%d" % (ND + 4 * n + d, NT_ + 2 * d, NT_ + 2 * d + 1))
        a("buffer_store_dwordx4 %s, v14, s[12:15], s%d offen offset:%d sc1" % (vr(ND + 4 * n), (76, 77, 78)[n >> 2], (n & 3) * 1024))
    a("s_waitcnt vmcnt(%d)" % (27 + nconv))
    a("s_barrier")
    a("s_waitcnt vmcnt(%d)" % (18 + nconv))
    a("s_barrier")
    a("s_add_u32 s3, s3, 4"); stamp_setup(a, 2); stamp(a, 0); a("s_sub_u32 s3, s3, 4")
    a("s_waitcnt vmcnt(%d)" % (9 + nconv))
    a("s_barrier")
    issueT1(4); issueF1(4)
    a("s_waitcnt vmcnt(9)")
    a("s_barrier")
    issueT1(5); issueF1(5)
    n_stats()
    a("s_waitcnt vmcnt(9)")
    a("s_barrier")
    issueT1(6); issueF1(6)
    a("s_waitcnt lgkmcnt(0)")
    for n in range(5): n_piece(n)
    a("s_waitcnt vmcnt(%d)" % (9 + 5))
    a("s_barrier")
    issueT1(7); issueF1(7)
    for n in range(5, 9): n_piece(n)
    a("s_waitcnt vmcnt(%d)" % (5 + 9 + 4))
    a("s_barrier")
    issueT1(8); issueF1(8)
    a("s_waitcnt vmcnt(9)")
    a("s_barrier")
    srd(a, 60, 56, 256)
    a("s_cmp_lg_u32 s3, 0")
    a("s_cbranch_scc1 %s_nosig" % name)
    a("v_mov_b32 v4, 1")
    a("s_lshl_b32 s36, s23, 2")
    a("v_mov_b32 v5, s36")
    a("s_mov_b64 exec, 1")
    a("buffer_atomic_add v4, v5, s[60:63], 0 offen sc1")
    a("s_mov_b64 exec, -1")
    a.label("%s_nosig" % name)
    a("s_waitcnt vmcnt(0)")
    a("s_barrier")
    a("s_barrier")
    a("s_cmp_lg_u32 s3, 0")
    a("s_cbranch_scc1 %s_pzx" % name)
    a("s_lshl_b32 s36, s23, 2")
    a("v_mov_b32 v26, s36")
    a("s_mov_b32 s34, 0")
    a.label("%s_pz" % name)
    a("buffer_load_dword v27, v26, s[60:63], 0 offen sc1")
    a("s_add_u32 s34, s34, 1")
    a("s_waitcnt vmcnt(0)")
    a("v_readfirstlane_b32 s36, v27")
    a("s_cmp_gt_u32 s34, %d" % SPIN_MAX)
    a("s_cbranch_scc1 %s_pzx" % name)
    a("s_cmp_ge_u32 s36, 16")
    a("s_cbranch_scc1 %s_pzx" % name)
    a("s_sleep 24")
    a("s_branch %s_pz" % name)
    a.label("%s_pzx" % name)
    a("s_barrier")
    a("s_mov_b32 s33, 0")
    issue(); issue(); issue(); issue()
    a("s_waitcnt vmcnt(27)")
    a("s_barrier")
    a("s_waitcnt vmcnt(18)")
    a("s_barrier")
    a("s_waitcnt vmcnt(9)")
    a("s_barrier")
    a("s_mov_b32 s34, 4")
    a.label("%s_lloop" % name)
    issue()
    a("s_waitcnt vmcnt(9)")
    a("s_barrier")
    a("s_add_u32 s34, s34, 1")
    a("s_cmp_lt_u32 s34, 32")
    a("s_cbranch_scc1 %s_lloop" % name)
    a("s_waitcnt vmcnt(0) lgkmcnt(0)")
    a("s_barrier")
    stamp(a, 1)
    a("s_mov_b32 s26, s53")
    a("s_and_b32 s27, s3, 1")
    a("s_mul_i32 s27, s27, %d" % CJ_SIZE)
    a("s_lshr_b32 s36, s3, 1")
    a("s_mul_i32 s36, s36, %d" % SLOT)
    a("s_add_u32 s27, s27, s36")
    def mid():
        if "warm2" in DBG:
            a("s_cmp_eq_u32 s99, 1")
            a("s_cbranch_scc1 %s_midskip" % name)
        a("s_barrier")
        a("s_setprio 0")
        a.label("%s_midskip" % name)
    a.label("%s_cjstart" % name)
    if "noconv" in DBG:
        mid()
    else:
        emit_conv_job(a, name, mid)
        G.stamp_rt(a, 1)
    a("s_branch %s_end" % name)
    a.label("%s_consumer" % name)
    a("s_load_dwordx2 s[92:93], s[0:1], 72")
    a("s_load_dwordx2 s[94:95], s[0:1], 80")
    ACC = 128; FB = [16, 52]
    vTa = [4, 5]; vTb = [6, 7]; vF = 8; vFh = 9
    bTa = [88, 89]; bTb = [90, 91]; bF = 92; bFh = 93
    Z1R = 200; BI = 236
    a("s_lshr_b32 s24, s3, 1")
    a("s_and_b32 s25, s3, 1")
    a("v_and_b32 v3, 15, v2")
    a("v_lshrrev_b32 v10, 4, v2")
    a("v_lshrrev_b32 v11, 1, v3")
    a("v_xor_b32 v10, v10, v11")
    a("v_lshlrev_b32 v10, 4, v10")
    a("v_lshl_add_u32 v10, v3, 7, v10")
    a("s_lshl_b32 s26, s24, 13")
    a("v_add_u32 v10, s26, v10")
    a("s_lshl_b32 s26, s25, 12")
    a("v_add_u32 v%d, s26, v10" % bTa[0])
    a("s_xor_b32 s26, s26, 4096")
    a("v_add_u32 v%d, s26, v10" % bTb[0])
    a("v_xor_b32 v%d, 64, v%d" % (bTa[1], bTa[0]))
    a("v_xor_b32 v%d, 64, v%d" % (bTb[1], bTb[0]))
    a("v_lshrrev_b32 v10, 2, v2")
    a("v_mul_u32_u24 v10, %d, v10" % FS)
    a("v_and_b32 v11, 3, v2")
    a("v_lshl_add_u32 v10, v11, 3, v10")
    a("v_add_u32 v10, %d, v10" % TREG)
    a("s_mul_i32 s26, s25, 160")
    a("v_add_u32 v%d, s26, v10" % bF)
    a("v_add_u32 v%d, 128, v10" % bFh)
    for d, s_ in ((vTa[0], bTa[0]), (vTb[0], bTb[0]), (vTa[1], bTa[1]), (vTb[1], bTb[1]), (vF, bF), (vFh, bFh)):
        a("v_mov_b32 v%d, v%d" % (d, s_))
    a("s_waitcnt lgkmcnt(0)")
    srd(a, 12, 6, WS_BYTES)
    srd(a, 28, 92, 2048 * 2)
    srd(a, 60, 56, 256)
    srd(a, 76, 94, 2304 * 576 * 2)
    a("s_mov_b32 s42, s2")
    emit_wot_loads(a, 240, 252, 720, 3)
    MR = 100; CS = 108; ONE = 96
    a("s_lshl_b32 s36, s22, 7")
    a("s_lshl_b32 s37, s24, 6")
    a("s_add_u32 s36, s36, s37")
    a("s_lshl_b32 s36, s36, 3")
    a("s_add_u32 s36, s36, 0x%x" % STATS1)
    a("s_lshl_b32 s37, s25, 8")
    a("s_add_u32 s38, s36, s37")
    a("s_xor_b32 s37, s37, 256")
    a("s_add_u32 s39, s36, s37")
    a("v_lshlrev_b32 v10, 3, v3")
    a("buffer_load_dwordx2 %s, v10, s[12:15], s38 offen" % vr(MR, 2))
    a("buffer_load_dwordx2 %s, v10, s[12:15], s38 offen offset:128" % vr(MR + 2, 2))
    a("buffer_load_dwordx2 %s, v10, s[12:15], s39 offen" % vr(MR + 4, 2))
    a("buffer_load_dwordx2 %s, v10, s[12:15], s39 offen offset:128" % vr(MR + 6, 2))
    for r in range(CS, CS + 20): a("v_mov_b32 v%d, 0" % r)
    for r in range(ONE, ONE + 4): a("v_mov_b32 v%d, 0x3f803f80" % r)
    stamp_setup(a, 2); stamp(a, 0)
    a("s_mov_b32 s99, 0")
    for r in range(ACC, ACC + 72): a("v_mov_b32 v%d, 0" % r)
    a("s_mov_b32 s27, 0")
    a("s_mov_b32 s33, 0")
    core = G.Core(a, ACC, FB[0], FB[1], FS, TREG, vTa, vTb, vF, vFh)
    trk = core.trk
    a("s_barrier")
    stamp(a, 1)
    core.prime(0, core.reads(0, 0))
    withcs = [True]
    def mfmas(buf):
        L = []
        for ft in range(5):
            A = core.F(buf, ft)
            for tt in range(4 if ft < 4 else 2):
                c = core.accr(ft, tt); B = core.T(buf, tt)
                L.append(("v_mfma_f32_16x16x32_bf16 %s, %s, %s, %s" % (vr(c), vr(A), vr(B), vr(c)), list(range(A, A + 4)) + list(range(B, B + 4))))
            if withcs[0]:
                L.append(("v_mfma_f32_16x16x32_bf16 %s, %s, %s, %s" % (vr(CS + 4 * ft), vr(A), vr(ONE), vr(CS + 4 * ft)), list(range(A, A + 4))))
        return L
    def phase(buf, pend):
        for (m, regs) in mfmas(buf):
            trk.need(regs)
            a(m)
            while pend:
                k, t = pend.pop(0)
                if k == "x":
                    a(t)
                    if t.startswith("s_"): continue
                else:
                    a(t[0]); trk.issue(t[1])
                break
        for k, t in pend:
            if k == "x": a(t)
            else: a(t[0]); trk.issue(t[1])
    def iteration(extra=None):
        a("s_barrier")
        rd = [("r", t) for t in core.reads(1, 1)]
        upd = ["s_add_u32 s27, s27, %d" % SLOT, "s_cmp_eq_u32 s27, %d" % (R * SLOT), "s_cselect_b32 s27, 0, s27"]
        tail = ["v_add_u32 v%d, s27, v%d" % (d, s_) for d, s_ in ((vTa[0], bTa[0]), (vF, bF), (vTb[0], bTb[0]), (vFh, bFh))]
        phase(0, rd[:1] + [("x", u) for u in upd] + rd[1:] + [("x", u) for u in tail])
        rd = [("r", t) for t in core.reads(0, 0)]
        tail = ["v_add_u32 v%d, s27, v%d" % (d, s_) for d, s_ in ((vTa[1], bTa[1]), (vTb[1], bTb[1]))] + ["s_add_u32 s33, s33, 1"]
        phase(1, rd + [("x", u) for u in tail])
    trk.drain()
    a.label("%s_zloop" % name)
    lb = len(a.lines); iteration(); st = copy.deepcopy(trk.out); del a.lines[lb:]; trk.out = copy.deepcopy(st)
    iteration()
    assert [sorted(x) for x in trk.out] == [sorted(x) for x in st]
    a("s_cmp_lt_u32 s33, 9")
    a("s_cbranch_scc1 %s_zloop" % name)
    trk.drain()
    a("s_barrier")
    stamp(a, 5)
    gelu_consts(a)
    a("s_waitcnt vmcnt(0)")
    for tt in range(4): a("v_sub_f32 v%d, 0, v%d" % (MR + 2 * tt, MR + 2 * tt))
    a("s_mov_b32 s35, 0x%x" % WOT)
    for n in range(3):
        a("buffer_store_dwordx4 %s, v%d, s[12:15], s35 offen" % (vr(240 + 4 * n), 252 + n))
    for ft in range(5):
        tts = range(4 if ft < 4 else 2)
        emit_fold_gelu(a, [(core.accr(ft, tt), CS + 4 * ft, MR + 2 * tt, Z1R + 2 * tidx(ft, tt)) for tt in tts], 56)
    for r in range(ACC, ACC + 72): a("v_mov_b32 v%d, 0" % r)
    a("s_mov_b32 s33, 0")
    a("s_mov_b32 s27, 0")
    for d, s_ in ((vTa[0], bTa[0]), (vTb[0], bTb[0]), (vTa[1], bTa[1]), (vTb[1], bTb[1]), (vF, bF), (vFh, bFh)):
        a("v_mov_b32 v%d, v%d" % (d, s_))
    stamp(a, 6)
    a("s_barrier")
    core.prime(0, core.reads(0, 0))
    trk.drain()
    withcs[0] = False
    a.label("%s_cloop" % name)
    lb = len(a.lines); iteration(); st = copy.deepcopy(trk.out); del a.lines[lb:]; trk.out = copy.deepcopy(st)
    iteration()
    assert [sorted(x) for x in trk.out] == [sorted(x) for x in st]
    a("s_cmp_lg_u32 s33, 24")
    a("s_cbranch_scc1 %s_noz" % name)
    a("s_lshl_b32 s36, s22, 7")
    a("s_lshl_b32 s37, s24, 6")
    a("s_add_u32 s36, s36, s37")
    a("v_lshlrev_b32 v11, 1, v3")
    a("s_lshl_b32 s37, s25, 6")
    a("s_lshl_b32 s38, s36, 1")
    a("s_add_u32 s39, s38, s37")
    a("s_xor_b32 s37, s37, 64")
    a("s_add_u32 s40, s38, s37")
    a("buffer_load_ushort v%d, v11, s[28:31], s39 offen" % (BI + 0))
    a("buffer_load_ushort v%d, v11, s[28:31], s39 offen offset:32" % (BI + 2))
    a("buffer_load_ushort v%d, v11, s[28:31], s40 offen" % (BI + 4))
    a("buffer_load_ushort v%d, v11, s[28:31], s40 offen offset:32" % (BI + 6))
    a.label("%s_noz" % name)
    a("s_cmp_lt_u32 s33, %d" % NST)
    a("s_cbranch_scc1 %s_cloop" % name)
    trk.drain()
    stamp(a, 2)
    a.label("%s_epi" % name)
    a("v_lshrrev_b32 v10, 4, v2")
    a("v_and_b32 v11, 1, v10")
    a("v_lshrrev_b32 v12, 1, v10")
    a("v_lshl_add_u32 v12, v11, 1, v12")
    a("s_mul_i32 s35, s23, 18")
    a("s_mul_i32 s36, s25, 10")
    a("s_add_u32 s36, s36, s35")
    a("v_lshrrev_b32 v13, 1, v3")
    a("s_lshl_b32 s37, s22, 1")
    a("s_add_u32 s37, s37, s24")
    a("s_mul_i32 s37, s37, %d" % (36 * 8192))
    a("s_add_u32 s37, s37, 0x%x" % PIMG)
    a("s_lshl_b32 s38, s25, 12")
    a("s_add_u32 s39, s37, s38")
    a("s_xor_b32 s38, s38, 4096")
    a("s_add_u32 s40, s37, s38")
    def addr(dst, pv):
        a("v_lshrrev_b32 v14, 3, v%d" % pv)
        a("v_lshlrev_b32 v14, 13, v14")
        a("v_and_b32 v15, 7, v%d" % pv)
        a("v_xor_b32 v15, v15, v13")
        a("v_lshl_add_u32 v14, v15, 4, v14")
        a("v_lshl_add_u32 v%d, v3, 7, v14" % dst)
    a("v_add_u32 v16, s36, v12"); addr(4, 16)
    a("v_add_u32 v16, 4, v16"); addr(5, 16)
    a("v_lshrrev_b32 v16, 1, v10")
    a("s_add_u32 s35, s35, 8")
    a("v_add_u32 v16, s35, v16"); addr(6, 16)
    a("v_lshl_add_u32 v6, v11, 11, v6")
    a("s_waitcnt vmcnt(0)")
    for tt in range(4):
        a("v_lshlrev_b32 v%d, 16, v%d" % (BI + 2 * tt, BI + 2 * tt))
    stamp(a, 3)
    def ptiles(lst, O):
        T = 24
        for q, (ft, tt) in enumerate(lst):
            c = core.accr(ft, tt)
            for h in (0, 2):
                a("v_pk_add_f32 %s, %s, %s op_sel_hi:[1,0]" % (vr(c + h, 2), vr(c + h, 2), vr(BI + 2 * tt, 2)))
        for q, (ft, tt) in enumerate(lst):
            c = core.accr(ft, tt)
            a("v_cvt_pk_bf16_f32 v%d, v%d, v%d" % (T + 2 * q, c, c + 1))
            a("v_cvt_pk_bf16_f32 v%d, v%d, v%d" % (T + 2 * q + 1, c + 2, c + 3))
        for q, (ft, tt) in enumerate(lst):
            c = core.accr(ft, tt); z = Z1R + 2 * tidx(ft, tt)
            for d in range(2):
                a("v_lshlrev_b32 v%d, 16, v%d" % (c + 2 * d, T + 2 * q + d))
                a("v_and_b32 v%d, 0xffff0000, v%d" % (c + 2 * d + 1, T + 2 * q + d))
                a("v_lshlrev_b32 v%d, 16, v%d" % (T + 4 + 4 * q + 2 * d, z + d))
                a("v_and_b32 v%d, 0xffff0000, v%d" % (T + 5 + 4 * q + 2 * d, z + d))
        for q, (ft, tt) in enumerate(lst):
            c = core.accr(ft, tt)
            for h in (0, 2):
                a("v_pk_mul_f32 %s, %s, %s" % (vr(c + h, 2), vr(c + h, 2), vr(T + 4 + 4 * q + h, 2)))
        for q, (ft, tt) in enumerate(lst):
            c = core.accr(ft, tt)
            a("v_cvt_pk_bf16_f32 v%d, v%d, v%d" % (O + 2 * q, c, c + 1))
            a("v_cvt_pk_bf16_f32 v%d, v%d, v%d" % (O + 2 * q + 1, c + 2, c + 3))
        a("s_nop 1")
        a("v_permlane16_swap_b32 v%d, v%d" % (O, O + 2))
        a("v_permlane16_swap_b32 v%d, v%d" % (O + 1, O + 3))
        a("s_nop 0")
    cnt = 0
    for pr in range(2):
        for tt in range(4):
            O = 40 + 4 * cnt; cnt += 1
            ptiles([(2 * pr, tt), (2 * pr + 1, tt)], O)
            a("buffer_store_dwordx4 %s, v%d, s[12:15], s%d offen offset:%d" % (vr(O), 4 + pr, 39 if tt < 2 else 40, (tt & 1) * 2048))
    O = 40 + 4 * cnt
    ptiles([(4, 0), (4, 1)], O)
    a("buffer_store_dwordx4 %s, v6, s[12:15], s39 offen" % vr(O))
    seg_end2(a, name)
    stamp(a, 4)
    G.stamp_rt(a, 1)
    a.label("%s_end" % name)
    a("s_endpgm")
    return a.text(), kernel_desc(name, 256, 256), (name, 256, 512, R * SLOT + 1024)


def gen_k2f(name="k2_kernel", R=4):
    a = Asm()
    SLOT = 34816; TREG = 16384; FS = 288; NST = 32
    kernel_begin(a, name)
    a("s_load_dwordx2 s[4:5], s[0:1], 64")
    a("s_load_dwordx2 s[6:7], s[0:1], 104")
    a("s_load_dwordx4 s[88:91], s[0:1], 32")
    a("s_load_dwordx2 s[80:81], s[0:1], 0")
    a("s_load_dwordx2 s[82:83], s[0:1], 56")
    a("s_load_dwordx2 s[56:57], s[0:1], 96")
    a("s_cmp_ge_u32 s2, 256")
    a("s_cbranch_scc1 %s_end" % name)
    a("v_lshrrev_b32 v1, 6, v0")
    a("v_and_b32 v2, 63, v0")
    a("v_readfirstlane_b32 s3, v1")
    G2.tile_ij(a)
    a("s_cmp_lt_u32 s3, 4")
    a("s_cbranch_scc1 %s_consumer" % name)
    if "noprio" not in DBG: a("s_setprio 3")
    a("s_sub_u32 s3, s3, 4")
    a("v_lshrrev_b32 v3, 3, v2")
    a("s_lshl_b32 s24, s3, 5")
    a("v_add_u32 v3, s24, v3")
    a("v_and_b32 v4, 7, v2")
    a("v_lshrrev_b32 v6, 4, v2")
    a("v_xor_b32 v6, v6, v4")
    a("v_lshlrev_b32 v6, 4, v6")
    a("v_lshl_add_u32 v10, v3, 12, v6")
    a("v_xor_b32 v11, 64, v10")
    a("v_add_u32 v11, %d, v11" % (32768 - 1024))
    a("v_add_u32 v12, %d, v10" % (2 * (32768 - 1024)))
    a("v_add_u32 v13, %d, v11" % (2 * (32768 - 1024)))
    a("v_lshlrev_b32 v14, 4, v2")
    a("s_lshl_b32 s26, s22, 19")
    a("s_mul_i32 s27, s23, %d" % (32 * 18432))
    a("s_lshl_b32 s24, s3, 12")
    a("s_add_u32 s27, s27, s24")
    if ZIMG: a("s_add_u32 s27, s27, 0x%x" % ZIMG)
    a("s_lshl_b32 s25, s3, 9")
    a("s_sub_u32 s32, s25, s24")
    a("s_add_u32 s32, s32, 16384")
    a("s_mov_b32 s33, 0")
    a("s_waitcnt lgkmcnt(0)")
    srd(a, 8, 4, 2048 * 2048 * 2)
    srd(a, 12, 6, WS_BYTES)
    def issue():
        a("s_add_u32 s35, s33, s24")
        a("s_mov_b32 m0, s35")
        a("s_add_u32 s36, s35, %d" % TREG)
        for n in range(4):
            a("buffer_load_dwordx4 v%d, s[8:11], s26 offen offset:%d lds" % (10 + n, n * 1024))
        a("s_mov_b32 m0, s36")
        a("s_add_u32 s37, s27, s32")
        for n in range(4):
            a("buffer_load_dwordx4 v14, s[12:15], s27 offen offset:%d sc1 lds" % (n * 1024))
        a("s_add_u32 s36, s36, s32")
        a("s_mov_b32 m0, s36")
        a("s_mov_b64 exec, 0xffffffff")
        a("buffer_load_dwordx4 v14, s[12:15], s37 offen sc1 lds")
        a("s_mov_b64 exec, -1")
        a("s_add_u32 s26, s26, 128")
        a("s_add_u32 s27, s27, 18432")
        a("s_add_u32 s33, s33, %d" % SLOT)
        a("s_cmp_eq_u32 s33, %d" % (R * SLOT))
        a("s_cselect_b32 s33, 0, s33")
    srd(a, 16, 88, 576 * 2048 * 2)
    srd(a, 84, 90, 576 * 2)
    a("s_lshl_b32 s43, s2, 2")
    a("s_add_u32 s43, s43, s3")
    a("s_and_b32 s53, s43, 1")
    a("s_sub_u32 s36, s43, 448")
    a("s_lshr_b32 s37, s43, 1")
    a("s_cmp_ge_u32 s43, 896")
    a("s_cselect_b32 s43, s36, s37")
    a("s_cselect_b32 s53, 2, s53")
    VT = 16; VF = 20
    srd(a, 64, 80, 2048 * 576 * 2)
    srd(a, 68, 82, 576 * 4608 * 2)
    a("v_mul_u32_u24 v5, 1152, v3")
    a("v_add_u32 v%d, v5, v6" % VT)
    a("v_xor_b32 v%d, 64, v%d" % (VT + 1, VT))
    a("v_add_u32 v%d, %d, v%d" % (VT + 1, 9216 - 1024, VT + 1))
    a("v_add_u32 v%d, %d, v%d" % (VT + 2, 2 * (9216 - 1024), VT))
    a("v_add_u32 v%d, %d, v%d" % (VT + 3, 2 * (9216 - 1024), VT + 1))
    a("s_mul_i32 s72, s22, %d" % (128 * 1152))
    a("s_mul_i32 s73, s23, 288")
    a("s_add_u32 s74, s25, %d" % (TREG + 16384))
    def issueT1(g):
        a("s_add_u32 s35, s24, %d" % ((g % R) * SLOT))
        a("s_mov_b32 m0, s35")
        a("s_add_u32 s36, s72, %d" % (128 * g))
        for n in range(4):
            a("buffer_load_dwordx4 v%d, s[64:67], s36 offen offset:%d lds" % (VT + n, 1024 * n))
    def issueF1(g):
        a("s_add_u32 s35, s24, %d" % ((g % R) * SLOT + TREG))
        a("s_mov_b32 m0, s35")
        a("s_add_u32 s36, s73, %d" % (64 * 9216 * g))
        for n in range(4):
            a("buffer_load_dwordx4 v%d, s[68:71], s36 offen offset:%d lds" % (VF + n, 1024 * n))
        a("s_add_u32 s35, s74, %d" % ((g % R) * SLOT))
        a("s_mov_b32 m0, s35")
        a("s_mov_b64 exec, 0xffffffff")
        a("buffer_load_dwordx4 v%d, s[68:71], s36 offen lds" % (VF + 4))
        a("s_mov_b64 exec, -1")
    issueT1(0)
    for n in range(5):
        if n < 4:
            a("s_lshl_b32 s36, s3, 8")
            a("s_add_u32 s36, s36, %d" % (64 * n))
        else:
            a("s_lshl_b32 s36, s3, 5")
            a("s_add_u32 s36, s36, 1024")
        a("v_add_u32 v6, s36, v2")
        a("v_mul_u32_u24 v7, 3641, v6")
        a("v_lshrrev_b32 v7, 16, v7")
        a("v_mul_u32_u24 v8, 18, v7")
        a("v_sub_u32 v8, v6, v8")
        a("v_and_b32 v9, 35, v7")
        a("v_bfe_u32 v6, v7, 2, 2")
        a("v_lshl_add_u32 v9, v6, 3, v9")
        a("v_bfe_u32 v6, v7, 4, 1")
        a("v_lshl_add_u32 v9, v6, 2, v9")
        a("v_mul_u32_u24 v9, 9216, v9")
        a("v_lshl_add_u32 v%d, v8, 4, v9" % (VF + n))
        if 0 < n < 4: a("v_subrev_u32 v%d, %d, v%d" % (VF + n, 1024 * n, VF + n))
    issueF1(0)
    for g in (1, 2, 3): issueT1(g); issueF1(g)
    nconv = emit_conv_loads(a)
    NTB = R * SLOT; LFLAG = NTB + 1024
    a("v_mov_b32 v26, %d" % LFLAG)
    a("v_mov_b32 v27, 0")
    a("ds_write_b32 v26, v27")
    a("s_waitcnt vmcnt(%d) lgkmcnt(0)" % (27 + nconv))
    a("s_barrier")
    a("s_waitcnt vmcnt(%d)" % (18 + nconv))
    a("s_barrier")
    a("s_add_u32 s3, s3, 4"); stamp_setup(a, 2); stamp(a, 0); a("s_sub_u32 s3, s3, 4")
    a("s_waitcnt vmcnt(%d)" % (9 + nconv))
    a("s_barrier")
    for kk in range(1, 8):
        if kk + 3 < 9:
            issueT1(kk + 3); issueF1(kk + 3)
            a("s_waitcnt vmcnt(%d)" % (9 + (nconv if kk == 1 else 0)))
        elif kk == 6:
            a("s_waitcnt vmcnt(0)")
        a("s_barrier")
    srd(a, 60, 56, 256)
    a("s_barrier")
    for g in range(4):
        a("s_add_u32 s35, s24, %d" % (g * SLOT))
        a("s_mov_b32 m0, s35")
        a("s_add_u32 s36, s26, %d" % (128 * g))
        for n in range(4):
            a("buffer_load_dwordx4 v%d, s[8:11], s36 offen offset:%d lds" % (10 + n, n * 1024))
    a("s_mov_b32 s34, 0")
    a("s_cmp_lg_u32 s3, 0")
    a("s_cbranch_scc1 %s_pl" % name)
    a("s_lshl_b32 s36, s23, 2")
    a("v_mov_b32 v28, s36")
    a.label("%s_pz" % name)
    a("buffer_load_dword v29, v28, s[60:63], 0 offen sc1")
    a("s_add_u32 s34, s34, 1")
    a("s_waitcnt vmcnt(0)")
    a("v_readfirstlane_b32 s36, v29")
    a("s_cmp_gt_u32 s34, %d" % SPIN_MAX)
    a("s_cbranch_scc1 %s_pzx" % name)
    a("s_cmp_ge_u32 s36, 16")
    a("s_cbranch_scc1 %s_pzx" % name)
    a("s_sleep 16")
    a("s_branch %s_pz" % name)
    a.label("%s_pzx" % name)
    a("v_mov_b32 v27, 1")
    a("ds_write_b32 v26, v27")
    a("s_branch %s_pgo" % name)
    a.label("%s_pl" % name)
    a("ds_read_b32 v27, v26")
    a("s_add_u32 s34, s34, 1")
    a("s_waitcnt lgkmcnt(0)")
    a("v_readfirstlane_b32 s36, v27")
    a("s_cmp_gt_u32 s34, %d" % (SPIN_MAX * 20))
    a("s_cbranch_scc1 %s_pgo" % name)
    a("s_cmp_lg_u32 s36, 0")
    a("s_cbranch_scc1 %s_pgo" % name)
    a("s_sleep 2")
    a("s_branch %s_pl" % name)
    a.label("%s_pgo" % name)
    stamp(a, 8)
    for g in range(4):
        a("s_add_u32 s35, s24, %d" % (g * SLOT + TREG))
        a("s_mov_b32 m0, s35")
        a("s_add_u32 s36, s27, %d" % (18432 * g))
        a("s_add_u32 s37, s36, s32")
        for n in range(4):
            a("buffer_load_dwordx4 v14, s[12:15], s36 offen offset:%d sc1 lds" % (n * 1024))
        a("s_add_u32 s35, s35, s32")
        a("s_mov_b32 m0, s35")
        a("s_mov_b64 exec, 0xffffffff")
        a("buffer_load_dwordx4 v14, s[12:15], s37 offen sc1 lds")
        a("s_mov_b64 exec, -1")
    a("s_add_u32 s26, s26, 512")
    a("s_add_u32 s27, s27, %d" % (4 * 18432))
    a("s_mov_b32 s33, 0")
    a("s_waitcnt vmcnt(15)")
    a("s_barrier")
    a("s_waitcnt vmcnt(10)")
    a("s_barrier")
    a("s_waitcnt vmcnt(5)")
    a("s_barrier")
    a("s_mov_b32 s34, 4")
    a.label("%s_lloop" % name)
    issue()
    a("s_waitcnt vmcnt(9)")
    a("s_barrier")
    a("s_add_u32 s34, s34, 1")
    a("s_cmp_lt_u32 s34, 32")
    a("s_cbranch_scc1 %s_lloop" % name)
    a("s_waitcnt vmcnt(0) lgkmcnt(0)")
    a("s_barrier")
    stamp(a, 1)
    a("s_mov_b32 s26, s53")
    a("s_and_b32 s27, s3, 1")
    a("s_mul_i32 s27, s27, %d" % CJ_SIZE)
    a("s_lshr_b32 s36, s3, 1")
    a("s_mul_i32 s36, s36, %d" % SLOT)
    a("s_add_u32 s27, s27, s36")
    def mid():
        if "warm2" in DBG:
            a("s_cmp_eq_u32 s99, 1")
            a("s_cbranch_scc1 %s_midskip" % name)
        a("s_barrier")
        a("s_setprio 0")
        a.label("%s_midskip" % name)
    a.label("%s_cjstart" % name)
    if "noconv" in DBG:
        mid()
    else:
        emit_conv_job(a, name, mid)
        G.stamp_rt(a, 1)
    a("s_branch %s_end" % name)
    a.label("%s_consumer" % name)
    a("s_load_dwordx2 s[92:93], s[0:1], 72")
    a("s_load_dwordx2 s[94:95], s[0:1], 80")
    ACC = 128; FB = [16, 52]
    vTa = [4, 5]; vTb = [6, 7]; vF = 8; vFh = 9
    bTa = [88, 89]; bTb = [90, 91]; bF = 92; bFh = 93
    Z1R = 200; BI = 236
    a("s_lshr_b32 s24, s3, 1")
    a("s_and_b32 s25, s3, 1")
    a("v_and_b32 v3, 15, v2")
    a("v_lshrrev_b32 v10, 4, v2")
    a("v_lshrrev_b32 v11, 1, v3")
    a("v_xor_b32 v10, v10, v11")
    a("v_lshlrev_b32 v10, 4, v10")
    a("v_lshl_add_u32 v10, v3, 7, v10")
    a("s_lshl_b32 s26, s24, 13")
    a("v_add_u32 v10, s26, v10")
    a("s_lshl_b32 s26, s25, 12")
    a("v_add_u32 v%d, s26, v10" % bTa[0])
    a("s_xor_b32 s26, s26, 4096")
    a("v_add_u32 v%d, s26, v10" % bTb[0])
    a("v_xor_b32 v%d, 64, v%d" % (bTa[1], bTa[0]))
    a("v_xor_b32 v%d, 64, v%d" % (bTb[1], bTb[0]))
    a("v_lshrrev_b32 v10, 2, v2")
    a("v_mul_u32_u24 v10, %d, v10" % FS)
    a("v_and_b32 v11, 3, v2")
    a("v_lshl_add_u32 v10, v11, 3, v10")
    a("v_add_u32 v10, %d, v10" % TREG)
    a("s_mul_i32 s26, s25, 160")
    a("v_add_u32 v%d, s26, v10" % bF)
    a("v_add_u32 v%d, 128, v10" % bFh)
    for d, s_ in ((vTa[0], bTa[0]), (vTb[0], bTb[0]), (vTa[1], bTa[1]), (vTb[1], bTb[1]), (vF, bF), (vFh, bFh)):
        a("v_mov_b32 v%d, v%d" % (d, s_))
    a("s_waitcnt lgkmcnt(0)")
    srd(a, 12, 6, WS_BYTES)
    srd(a, 28, 92, 2048 * 2)
    srd(a, 60, 56, 256)
    MR = 100; CS = 108; ONE = 96
    a("s_lshl_b32 s36, s22, 7")
    a("s_lshl_b32 s37, s24, 6")
    a("s_add_u32 s36, s36, s37")
    a("s_lshl_b32 s36, s36, 3")
    a("s_add_u32 s36, s36, 0x%x" % STATS1)
    a("s_lshl_b32 s37, s25, 8")
    a("s_add_u32 s38, s36, s37")
    a("s_xor_b32 s37, s37, 256")
    a("s_add_u32 s39, s36, s37")
    a("v_lshlrev_b32 v10, 3, v3")
    a("buffer_load_dwordx2 %s, v10, s[12:15], s38 offen" % vr(MR, 2))
    a("buffer_load_dwordx2 %s, v10, s[12:15], s38 offen offset:128" % vr(MR + 2, 2))
    a("buffer_load_dwordx2 %s, v10, s[12:15], s39 offen" % vr(MR + 4, 2))
    a("buffer_load_dwordx2 %s, v10, s[12:15], s39 offen offset:128" % vr(MR + 6, 2))
    NP = 240; ND = 200
    a("s_lshl_b32 s58, s22, 7")
    a("s_lshl_b32 s37, s3, 5")
    a("s_add_u32 s58, s58, s37")
    a("s_lshl_b32 s58, s58, 8")
    a("s_add_u32 s58, s58, 0x%x" % STATS2)
    a("v_lshlrev_b32 v12, 7, v2")
    for q in range(4):
        a("buffer_load_dwordx4 %s, v12, s[12:15], s58 offen offset:%d" % (vr(NP + 4 * q), 16 * q))
    a("s_lshl_b32 s52, s23, 5")
    a("s_lshl_b32 s37, s22, 1")
    a("s_add_u32 s52, s52, s37")
    a("s_mul_i32 s52, s52, 18432")
    a("s_mul_i32 s37, s3, 9216")
    a("s_add_u32 s52, s52, s37")
    if ZIMG: a("s_add_u32 s52, s52, 0x%x" % ZIMG)
    a("s_add_u32 s53, s52, 4096")
    a("s_add_u32 s59, s52, 8192")
    a("v_lshlrev_b32 v13, 4, v2")
    for n in range(9):
        a("buffer_load_dwordx4 %s, v13, s[12:15], s%d offen offset:%d sc1" % (vr(ND + 4 * n), (52, 53, 59)[n >> 2], (n & 3) * 1024))
    for r in range(CS, CS + 20): a("v_mov_b32 v%d, 0" % r)
    for r in range(ONE, ONE + 4): a("v_mov_b32 v%d, 0x3f803f80" % r)
    stamp_setup(a, 2); stamp(a, 0)
    a("s_mov_b32 s99, 0")
    for r in range(ACC, ACC + 72): a("v_mov_b32 v%d, 0" % r)
    a("s_mov_b32 s27, 0")
    a("s_mov_b32 s33, 0")
    core = G.Core(a, ACC, FB[0], FB[1], FS, TREG, vTa, vTb, vF, vFh)
    trk = core.trk
    a("s_barrier")
    stamp(a, 1)
    core.prime(0, core.reads(0, 0))
    withcs = [True]
    def mfmas(buf):
        L = []
        for ft in range(5):
            A = core.F(buf, ft)
            for tt in range(4 if ft < 4 else 2):
                c = core.accr(ft, tt); B = core.T(buf, tt)
                L.append(("v_mfma_f32_16x16x32_bf16 %s, %s, %s, %s" % (vr(c), vr(A), vr(B), vr(c)), list(range(A, A + 4)) + list(range(B, B + 4))))
            if withcs[0]:
                L.append(("v_mfma_f32_16x16x32_bf16 %s, %s, %s, %s" % (vr(CS + 4 * ft), vr(A), vr(ONE), vr(CS + 4 * ft)), list(range(A, A + 4))))
        return L
    def phase(buf, pend):
        for (m, regs) in mfmas(buf):
            trk.need(regs)
            a(m)
            while pend:
                k, t = pend.pop(0)
                if k == "x":
                    a(t)
                    if t.startswith("s_"): continue
                else:
                    a(t[0]); trk.issue(t[1])
                break
        for k, t in pend:
            if k == "x": a(t)
            else: a(t[0]); trk.issue(t[1])
    def iteration(extra=None):
        a("s_barrier")
        rd = [("r", t) for t in core.reads(1, 1)]
        upd = ["s_add_u32 s27, s27, %d" % SLOT, "s_cmp_eq_u32 s27, %d" % (R * SLOT), "s_cselect_b32 s27, 0, s27"]
        tail = ["v_add_u32 v%d, s27, v%d" % (d, s_) for d, s_ in ((vTa[0], bTa[0]), (vF, bF), (vTb[0], bTb[0]), (vFh, bFh))]
        phase(0, rd[:1] + [("x", u) for u in upd] + rd[1:] + [("x", u) for u in tail])
        rd = [("r", t) for t in core.reads(0, 0)]
        tail = ["v_add_u32 v%d, s27, v%d" % (d, s_) for d, s_ in ((vTa[1], bTa[1]), (vTb[1], bTb[1]))] + ["s_add_u32 s33, s33, 1"]
        phase(1, rd + [("x", u) for u in tail])
    trk.drain()
    a.label("%s_zloop" % name)
    lb = len(a.lines); iteration(); st = copy.deepcopy(trk.out); del a.lines[lb:]; trk.out = copy.deepcopy(st)
    iteration()
    assert [sorted(x) for x in trk.out] == [sorted(x) for x in st]
    a("s_cmp_lg_u32 s33, 2")
    a("s_cbranch_scc1 %s_h1" % name)
    a("s_waitcnt vmcnt(9)")
    for st_ in (8, 4, 2):
        for q in range(0, st_, 2):
            a("v_pk_add_f32 %s, %s, %s" % (vr(NP + q, 2), vr(NP + q, 2), vr(NP + q + st_, 2)))
    a("v_mov_b32 v94, v%d" % NP); a("v_mov_b32 v95, v%d" % (NP + 1))
    for q in range(4):
        a("buffer_load_dwordx4 %s, v12, s[12:15], s58 offen offset:%d" % (vr(NP + 4 * q), 64 + 16 * q))
    a.label("%s_h1" % name)
    a("s_cmp_lg_u32 s33, 4")
    a("s_cbranch_scc1 %s_h2" % name)
    a("s_waitcnt vmcnt(0)")
    for st_ in (8, 4, 2):
        for q in range(0, st_, 2):
            a("v_pk_add_f32 %s, %s, %s" % (vr(NP + q, 2), vr(NP + q, 2), vr(NP + q + st_, 2)))
    a("v_pk_add_f32 %s, %s, v[94:95]" % (vr(NP, 2), vr(NP, 2)))
    a("s_nop 1")
    for e in range(2):
        a("v_add_f32_dpp v%d, v%d, v%d quad_perm:[1,0,3,2] row_mask:0xf bank_mask:0xf" % (NP + e, NP + e, NP + e))
    emit_ln_finish(a, NP, NP + 1, 2304, NP + 2, NP + 4, NP + 6)
    a("v_mul_f32 v%d, -v%d, v%d" % (NP + 5, NP + 2, NP + 4))
    a("v_lshrrev_b32 v10, 1, v2")
    a("v_and_b32 v11, 3, v10")
    a("v_bfe_u32 v12, v10, 3, 2")
    a("v_lshl_add_u32 v11, v12, 2, v11")
    a("v_bfe_u32 v12, v10, 2, 1")
    a("v_lshl_add_u32 v11, v12, 4, v11")
    a("s_lshl_b32 s36, s3, 8")
    a("s_add_u32 s36, s36, %d" % NTB)
    a("v_lshl_add_u32 v11, v11, 3, s36")
    a("ds_write_b64 v11, %s" % vr(NP + 4, 2))
    a("s_waitcnt lgkmcnt(0)")
    for n0_ in (0, 3, 6):
        for n in range(n0_, n0_ + 3):
            a("v_add_u32 v10, %d, v2" % (64 * n))
            a("v_mul_u32_u24 v10, 3641, v10")
            a("v_lshrrev_b32 v10, 16, v10")
            a("v_lshl_add_u32 v10, v10, 3, s36")
            a("ds_read_b64 %s, v10" % vr(NP + 8 + 2 * (n - n0_), 2))
        a("s_waitcnt lgkmcnt(0)")
        for n in range(n0_, n0_ + 3):
            tb = NP + 8 + 2 * (n - n0_)
            for d in range(4):
                z = ND + 4 * n + d; t_ = NP + 2 * d
                a("v_lshlrev_b32 v%d, 16, v%d" % (t_, z))
                a("v_and_b32 v%d, 0xffff0000, v%d" % (t_ + 1, z))
            for d in range(4):
                t_ = NP + 2 * d
                a("v_pk_fma_f32 %s, %s, %s, %s op_sel:[0,0,1] op_sel_hi:[1,0,1]" % (vr(t_, 2), vr(t_, 2), vr(tb, 2), vr(tb, 2)))
            for d in range(4):
                a("v_cvt_pk_bf16_f32 v%d, v%d, v%d" % (ND + 4 * n + d, NP + 2 * d, NP + 2 * d + 1))
            a("buffer_store_dwordx4 %s, v13, s[12:15], s%d offen offset:%d sc1" % (vr(ND + 4 * n), (52, 53, 59)[n >> 2], (n & 3) * 1024))
    a.label("%s_h2" % name)
    a("s_cmp_lg_u32 s33, 7")
    a("s_cbranch_scc1 %s_h3" % name)
    a("s_waitcnt vmcnt(0)")
    a.label("%s_h3" % name)
    a("s_lshl_b32 s36, s3, 8")
    a("s_add_u32 s36, s36, s33")
    a("s_cmp_lg_u32 s36, 8")
    a("s_cbranch_scc1 %s_h4" % name)
    a("v_mov_b32 v10, 1")
    a("s_lshl_b32 s36, s23, 2")
    a("v_mov_b32 v11, s36")
    a("s_mov_b64 exec, 1")
    a("buffer_atomic_add v10, v11, s[60:63], 0 offen sc1")
    a("s_mov_b64 exec, -1")
    a.label("%s_h4" % name)
    a("s_cmp_lt_u32 s33, 9")
    a("s_cbranch_scc1 %s_zloop" % name)
    trk.drain()
    a("s_barrier")
    stamp(a, 5)
    gelu_consts(a)
    a("s_waitcnt vmcnt(0)")
    for tt in range(4): a("v_sub_f32 v%d, 0, v%d" % (MR + 2 * tt, MR + 2 * tt))
    for ft in range(5):
        tts = range(4 if ft < 4 else 2)
        emit_fold_gelu(a, [(core.accr(ft, tt), CS + 4 * ft, MR + 2 * tt, Z1R + 2 * tidx(ft, tt)) for tt in tts], 56)
    for r in range(ACC, ACC + 72): a("v_mov_b32 v%d, 0" % r)
    srd(a, 76, 94, 2304 * 576 * 2)
    a("s_mov_b32 s42, s2")
    emit_wot_loads(a, 240, 252, 720, 3)
    a("s_mov_b32 s33, 0")
    a("s_mov_b32 s27, 0")
    for d, s_ in ((vTa[0], bTa[0]), (vTb[0], bTb[0]), (vTa[1], bTa[1]), (vTb[1], bTb[1]), (vF, bF), (vFh, bFh)):
        a("v_mov_b32 v%d, v%d" % (d, s_))
    stamp(a, 6)
    a("s_barrier")
    core.prime(0, core.reads(0, 0))
    trk.drain()
    withcs[0] = False
    a.label("%s_cloop" % name)
    lb = len(a.lines); iteration(); st = copy.deepcopy(trk.out); del a.lines[lb:]; trk.out = copy.deepcopy(st)
    iteration()
    assert [sorted(x) for x in trk.out] == [sorted(x) for x in st]
    a("s_cmp_lg_u32 s33, 24")
    a("s_cbranch_scc1 %s_noz" % name)
    a("s_mov_b32 s35, 0x%x" % WOT)
    a("s_waitcnt vmcnt(0)")
    for n in range(3):
        a("buffer_store_dwordx4 %s, v%d, s[12:15], s35 offen" % (vr(240 + 4 * n), 252 + n))
    a("s_nop 1")
    a("s_lshl_b32 s36, s22, 7")
    a("s_lshl_b32 s37, s24, 6")
    a("s_add_u32 s36, s36, s37")
    a("v_lshlrev_b32 v11, 1, v3")
    a("s_lshl_b32 s37, s25, 6")
    a("s_lshl_b32 s38, s36, 1")
    a("s_add_u32 s39, s38, s37")
    a("s_xor_b32 s37, s37, 64")
    a("s_add_u32 s40, s38, s37")
    a("buffer_load_ushort v%d, v11, s[28:31], s39 offen" % (BI + 0))
    a("buffer_load_ushort v%d, v11, s[28:31], s39 offen offset:32" % (BI + 2))
    a("buffer_load_ushort v%d, v11, s[28:31], s40 offen" % (BI + 4))
    a("buffer_load_ushort v%d, v11, s[28:31], s40 offen offset:32" % (BI + 6))
    a.label("%s_noz" % name)
    a("s_cmp_lt_u32 s33, %d" % NST)
    a("s_cbranch_scc1 %s_cloop" % name)
    trk.drain()
    stamp(a, 2)
    a.label("%s_epi" % name)
    a("v_lshrrev_b32 v10, 4, v2")
    a("v_and_b32 v11, 1, v10")
    a("v_lshrrev_b32 v12, 1, v10")
    a("v_lshl_add_u32 v12, v11, 1, v12")
    a("s_mul_i32 s35, s23, 18")
    a("s_mul_i32 s36, s25, 10")
    a("s_add_u32 s36, s36, s35")
    a("v_lshrrev_b32 v13, 1, v3")
    a("s_lshl_b32 s37, s22, 1")
    a("s_add_u32 s37, s37, s24")
    a("s_mul_i32 s37, s37, %d" % (36 * 8192))
    a("s_add_u32 s37, s37, 0x%x" % PIMG)
    a("s_lshl_b32 s38, s25, 12")
    a("s_add_u32 s39, s37, s38")
    a("s_xor_b32 s38, s38, 4096")
    a("s_add_u32 s40, s37, s38")
    def addr(dst, pv):
        a("v_lshrrev_b32 v14, 3, v%d" % pv)
        a("v_lshlrev_b32 v14, 13, v14")
        a("v_and_b32 v15, 7, v%d" % pv)
        a("v_xor_b32 v15, v15, v13")
        a("v_lshl_add_u32 v14, v15, 4, v14")
        a("v_lshl_add_u32 v%d, v3, 7, v14" % dst)
    a("v_add_u32 v16, s36, v12"); addr(4, 16)
    a("v_add_u32 v16, 4, v16"); addr(5, 16)
    a("v_lshrrev_b32 v16, 1, v10")
    a("s_add_u32 s35, s35, 8")
    a("v_add_u32 v16, s35, v16"); addr(6, 16)
    a("v_lshl_add_u32 v6, v11, 11, v6")
    a("s_waitcnt vmcnt(0)")
    for tt in range(4):
        a("v_lshlrev_b32 v%d, 16, v%d" % (BI + 2 * tt, BI + 2 * tt))
    stamp(a, 3)
    def ptiles(lst, O):
        T = 24
        for q, (ft, tt) in enumerate(lst):
            c = core.accr(ft, tt)
            for h in (0, 2):
                a("v_pk_add_f32 %s, %s, %s op_sel_hi:[1,0]" % (vr(c + h, 2), vr(c + h, 2), vr(BI + 2 * tt, 2)))
        for q, (ft, tt) in enumerate(lst):
            c = core.accr(ft, tt)
            a("v_cvt_pk_bf16_f32 v%d, v%d, v%d" % (T + 2 * q, c, c + 1))
            a("v_cvt_pk_bf16_f32 v%d, v%d, v%d" % (T + 2 * q + 1, c + 2, c + 3))
        for q, (ft, tt) in enumerate(lst):
            c = core.accr(ft, tt); z = Z1R + 2 * tidx(ft, tt)
            for d in range(2):
                a("v_lshlrev_b32 v%d, 16, v%d" % (c + 2 * d, T + 2 * q + d))
                a("v_and_b32 v%d, 0xffff0000, v%d" % (c + 2 * d + 1, T + 2 * q + d))
                a("v_lshlrev_b32 v%d, 16, v%d" % (T + 4 + 4 * q + 2 * d, z + d))
                a("v_and_b32 v%d, 0xffff0000, v%d" % (T + 5 + 4 * q + 2 * d, z + d))
        for q, (ft, tt) in enumerate(lst):
            c = core.accr(ft, tt)
            for h in (0, 2):
                a("v_pk_mul_f32 %s, %s, %s" % (vr(c + h, 2), vr(c + h, 2), vr(T + 4 + 4 * q + h, 2)))
        for q, (ft, tt) in enumerate(lst):
            c = core.accr(ft, tt)
            a("v_cvt_pk_bf16_f32 v%d, v%d, v%d" % (O + 2 * q, c, c + 1))
            a("v_cvt_pk_bf16_f32 v%d, v%d, v%d" % (O + 2 * q + 1, c + 2, c + 3))
        a("s_nop 1")
        a("v_permlane16_swap_b32 v%d, v%d" % (O, O + 2))
        a("v_permlane16_swap_b32 v%d, v%d" % (O + 1, O + 3))
        a("s_nop 0")
    cnt = 0
    for pr in range(2):
        for tt in range(4):
            O = 40 + 4 * cnt; cnt += 1
            ptiles([(2 * pr, tt), (2 * pr + 1, tt)], O)
            a("buffer_store_dwordx4 %s, v%d, s[12:15], s%d offen offset:%d" % (vr(O), 4 + pr, 39 if tt < 2 else 40, (tt & 1) * 2048))
    O = 40 + 4 * cnt
    ptiles([(4, 0), (4, 1)], O)
    a("buffer_store_dwordx4 %s, v6, s[12:15], s39 offen" % vr(O))
    seg_end2(a, name)
    stamp(a, 4)
    G.stamp_rt(a, 1)
    a.label("%s_end" % name)
    a("s_endpgm")
    return a.text(), kernel_desc(name, 256, 256), (name, 256, 512, R * SLOT + 2048)


def gen_k3b(name="k3_kernel", R=4):
    a = Asm()
    TREG = 16384; FS = 160; SLOT = TREG + 128 * FS; NST = 18
    YOFF = R * SLOT
    kernel_begin(a, name)
    a("s_load_dwordx2 s[6:7], s[0:1], 104")
    a("s_load_dwordx2 s[4:5], s[0:1], 0")
    a("s_load_dwordx2 s[16:17], s[0:1], 88")
    a("s_cmp_ge_u32 s2, 256")
    a("s_cbranch_scc1 %s_end" % name)
    a("v_lshrrev_b32 v1, 6, v0")
    a("v_and_b32 v2, 63, v0")
    a("v_readfirstlane_b32 s3, v1")
    a("s_and_b32 s20, s2, 7")
    a("s_lshr_b32 s21, s2, 3")
    a("s_and_b32 s22, s20, 3")
    a("s_lshl_b32 s22, s22, 3")
    a("s_and_b32 s23, s21, 7")
    a("s_add_u32 s22, s22, s23")
    a("s_lshr_b32 s23, s20, 2")
    a("s_lshl_b32 s23, s23, 2")
    a("s_lshr_b32 s24, s21, 3")
    a("s_add_u32 s23, s23, s24")
    a("s_lshr_b32 s52, s23, 1")
    a("s_and_b32 s53, s23, 1")
    XR = 200; ST = 208
    def fin_loads():
        a("v_and_b32 v3, 15, v2")
        a("v_lshrrev_b32 v10, 4, v2")
        a("v_mul_u32_u24 v13, 1152, v3")
        a("v_lshl_add_u32 v13, v10, 3, v13")
        a("v_lshlrev_b32 v12, 3, v3")
        for s_ in range(3):
            if s_ == 2:
                a("s_cmp_ge_u32 s54, 2")
                a("s_cbranch_scc1 %s_fl%d" % (name, fin_loads.cnt))
            b = 64 + 4 * s_
            if s_ < 2:
                a("s_add_u32 s36, s54, %d" % (8 * s_))
                a("s_lshr_b32 s37, s36, 2")
                a("s_and_b32 s38, s36, 3")
                a("s_mul_i32 s39, s53, 160")
                a("s_lshl_b32 s40, s37, 5")
                a("s_add_u32 s39, s39, s40")
            else:
                a("s_add_u32 s36, s54, 16")
                a("s_mov_b32 s37, 4")
                a("s_mov_b32 s38, s54")
                a("s_mov_b32 s39, 128")
            a("s_lshl_b32 s40, s53, 1")
            a("s_add_u32 s38, s38, s40")
            a("s_and_b32 s38, s38, 3")
            a("s_lshl_b32 s40, s22, 2")
            a("s_add_u32 s40, s40, s38")
            a("s_lshl_b32 s40, s40, 4")
            a("s_mul_i32 s%d, s40, 1152" % b)
            a("s_add_u32 s%d, s%d, s39" % (b, b))
            a("s_mul_i32 s39, s52, 288")
            a("s_add_u32 s%d, s%d, s39" % (b, b))
            a("s_lshl_b32 s%d, s37, 11" % (b + 1))
            a("s_lshl_b32 s39, s38, 5")
            a("s_add_u32 s%d, s%d, s39" % (b + 1, b + 1))
            a("s_add_u32 s%d, s%d, %d" % (b + 1, b + 1, YOFF))
            a("s_lshl_b32 s%d, s36, 10" % (b + 2))
            a("s_lshl_b32 s40, s40, 3")
            a("s_add_u32 s40, s40, 0x%x" % STATS1)
            a("buffer_load_dwordx2 %s, v13, s[8:11], s%d offen" % (vr(XR + 2 * s_, 2), b))
            a("buffer_load_dwordx2 %s, v12, s[12:15], s40 offen" % vr(ST + 2 * s_, 2))
        a.label("%s_fl%d" % (name, fin_loads.cnt))
        fin_loads.cnt += 1
    fin_loads.cnt = 0
    a("s_mov_b32 s54, s3")
    a("s_cmp_lt_u32 s3, 4")
    a("s_cbranch_scc1 %s_consumer" % name)
    a("s_setprio 3")
    a("s_sub_u32 s3, s3, 4")
    a("v_lshlrev_b32 v14, 4, v2")
    a("s_mul_i32 s26, s22, %d" % (36 * 8192))
    a("s_lshl_b32 s24, s3, 12")
    a("s_add_u32 s26, s26, s24")
    a("s_add_u32 s26, s26, 0x%x" % PIMG)
    a("s_mul_i32 s27, s23, %d" % (18 * 20480))
    a("s_mul_i32 s25, s3, 5120")
    a("s_add_u32 s27, s27, s25")
    a("s_add_u32 s27, s27, 0x%x" % WOT)
    a("s_add_u32 s25, s25, %d" % TREG)
    a("s_mov_b32 s33, 0")
    a("s_waitcnt lgkmcnt(0)")
    srd(a, 12, 6, WS_BYTES)
    def issue():
        a("s_add_u32 s35, s33, s24")
        a("s_mov_b32 m0, s35")
        a("s_add_u32 s36, s33, s25")
        for n in range(4):
            a("buffer_load_dwordx4 v14, s[12:15], s26 offen offset:%d lds" % (n * 1024))
        a("s_mov_b32 m0, s36")
        a("s_add_u32 s37, s27, 4096")
        for n in range(4):
            a("buffer_load_dwordx4 v14, s[12:15], s27 offen offset:%d lds" % (n * 1024))
        a("s_add_u32 s36, s36, 4096")
        a("s_mov_b32 m0, s36")
        a("s_add_u32 s26, s26, 16384")
        a("buffer_load_dwordx4 v14, s[12:15], s37 offen lds")
        a("s_add_u32 s27, s27, 20480")
        a("s_add_u32 s33, s33, %d" % SLOT)
        a("s_cmp_eq_u32 s33, %d" % (R * SLOT))
        a("s_cselect_b32 s33, 0, s33")
    issue(); issue()
    a("s_add_u32 s3, s3, 4"); stamp_setup(a, 3); stamp(a, 0); a("s_sub_u32 s3, s3, 4")
    srd(a, 8, 4, 2048 * 576 * 2)
    srd(a, 28, 16, 2048 * 576 * 2)
    a("s_waitcnt vmcnt(9)")
    a("s_barrier")
    issue(); issue()
    a("s_waitcnt vmcnt(18)")
    a("s_barrier")
    a("s_mov_b32 s34, 0")
    a.label("%s_lloop" % name)
    issue()
    a("s_waitcnt vmcnt(18)")
    a("s_barrier")
    a("s_add_u32 s34, s34, 1")
    a("s_cmp_lt_u32 s34, %d" % (NST - R))
    a("s_cbranch_scc1 %s_lloop" % name)
    a("v_lshrrev_b32 v3, 3, v2")
    a("v_and_b32 v4, 7, v2")
    a("v_lshlrev_b32 v4, 4, v4")
    a("s_mul_i32 s33, s52, 144")
    a("s_mul_i32 s34, s53, 80")
    a("s_lshl_b32 s35, s22, 7")
    a("s_add_u32 s35, s35, 0x%x" % YT)
    for n in range(3):
        a("s_add_u32 s36, s3, %d" % (4 * n))
        if n == 2:
            a("s_min_u32 s36, s36, 9")
        a("s_lshl_b32 s37, s36, 3")
        a("s_add_u32 s38, s37, s33")
        if n < 2: a("s_add_u32 s38, s38, s34")
        a("v_add_u32 v5, s38, v3")
        a("v_lshl_add_u32 v5, v5, 12, v4")
        a("s_lshl_b32 s36, s36, 10")
        a("s_add_u32 s36, s36, %d" % YOFF)
        a("s_mov_b32 m0, s36")
        a("s_nop 0")
        a("buffer_load_dwordx4 v5, s[12:15], s35 offen lds")
    fin_loads()
    a("s_waitcnt vmcnt(%d)" % (9 + 7))
    a("s_barrier")
    a("s_waitcnt vmcnt(7)")
    a("s_barrier")
    a("s_barrier")
    a("s_setprio 0")
    a("s_waitcnt vmcnt(0)")
    a("s_branch %s_fin" % name)
    a.label("%s_consumer" % name)
    ACC = 128; FB0 = 16; FB1 = 52
    vTa = [4, 4]; vTb = [6, 6]; vF = 8; vFh = 9
    bTa = 88; bTb = 90; bF = 92; bFh = 93
    a("v_and_b32 v3, 15, v2")
    a("v_lshrrev_b32 v10, 4, v2")
    a("s_and_b32 s26, s3, 1")
    a("s_lshl_b32 s26, s26, 2")
    a("v_add_u32 v10, s26, v10")
    a("v_lshrrev_b32 v11, 1, v3")
    a("v_xor_b32 v10, v10, v11")
    a("v_lshlrev_b32 v10, 4, v10")
    a("v_lshl_add_u32 v10, v3, 7, v10")
    a("s_lshr_b32 s26, s3, 1")
    a("s_lshl_b32 s26, s26, 13")
    a("v_add_u32 v10, s26, v10")
    a("s_lshl_b32 s26, s53, 12")
    a("v_add_u32 v%d, s26, v10" % bTa)
    a("s_xor_b32 s26, s26, 4096")
    a("v_add_u32 v%d, s26, v10" % bTb)
    a("v_lshrrev_b32 v10, 2, v2")
    a("v_mul_u32_u24 v10, %d, v10" % FS)
    a("v_and_b32 v11, 3, v2")
    a("v_lshl_add_u32 v10, v11, 3, v10")
    a("s_mul_i32 s26, s3, %d" % (32 * FS))
    a("s_add_u32 s26, s26, %d" % TREG)
    a("v_add_u32 v%d, s26, v10" % bF)
    a("v_add_u32 v%d, 128, v%d" % (bFh, bF))
    a("s_waitcnt lgkmcnt(0)")
    srd(a, 12, 6, WS_BYTES)
    srd(a, 8, 4, 2048 * 576 * 2)
    srd(a, 28, 16, 2048 * 576 * 2)
    stamp_setup(a, 3); stamp(a, 0)
    fin_loads()
    core = G.Core(a, ACC, FB0, FB1, FS, TREG, vTa, vTb, vF, vFh)
    trk = core.trk
    pairs = ((vTa[0], bTa), (vF, bF), (vTb[0], bTb), (vFh, bFh))
    for d, s_ in pairs: a("v_mov_b32 v%d, v%d" % (d, s_))
    for r in range(ACC, ACC + 72): a("v_mov_b32 v%d, 0" % r)
    a("s_mov_b32 s27, 0")
    a("s_mov_b32 s33, 0")
    a("s_barrier")
    stamp(a, 1)
    core.prime(0, core.reads(0, 0))
    def iteration(buf):
        trk.drain()
        a("s_barrier")
        a("s_add_u32 s27, s27, %d" % SLOT)
        a("s_cmp_eq_u32 s27, %d" % (R * SLOT))
        a("s_cselect_b32 s27, 0, s27")
        pre = ["v_add_u32 v%d, s27, v%d" % (d, s_) for d, s_ in pairs]
        core.phase(buf, core.reads(1 - buf, 0), pre=pre)
    a.label("%s_cloop" % name)
    iteration(0); iteration(1)
    a("s_add_u32 s33, s33, 1")
    a("s_cmp_lt_u32 s33, %d" % (NST // 2))
    a("s_cbranch_scc1 %s_cloop" % name)
    trk.drain()
    stamp(a, 2)
    a("s_mul_i32 s33, s3, %d" % (18 * 1024))
    a("v_lshlrev_b32 v10, 4, v2")
    a("v_add_u32 v11, s33, v10")
    a("s_nop 4")
    for n, (ft, tt) in enumerate(TILES):
        a("ds_write_b128 v11, %s offset:%d" % (vr(core.accr(ft, tt)), 1024 * tidx(ft, tt)))
        if n in (7, 13): a("s_waitcnt lgkmcnt(4)")
    a("s_waitcnt lgkmcnt(0) vmcnt(0)")
    a.label("%s_fin" % name)
    a("s_barrier")
    stamp(a, 3)
    a("v_lshlrev_b32 v10, 4, v2")
    a("v_lshrrev_b32 v11, 2, v2")
    a("v_lshlrev_b32 v11, 7, v11")
    a("v_and_b32 v12, 3, v2")
    a("v_lshl_add_u32 v11, v12, 3, v11")
    a("s_mov_b32 s33, 0xbfb8aa3b")
    PT = 16; YR = 64
    for s_ in range(3):
        b = 64 + 4 * s_
        if s_ == 2:
            a("s_cmp_ge_u32 s54, 2")
            a("s_cbranch_scc1 %s_rd" % name)
        a("v_add_u32 v4, s%d, v10" % (b + 2))
        a("v_add_u32 v5, s%d, v11" % (b + 1))
        for q in range(4):
            a("ds_read_b128 %s, v4 offset:%d" % (vr(PT + 16 * s_ + 4 * q), 18432 * q))
        a("ds_read_b64_tr_b16 %s, v5" % vr(YR + 2 * s_, 2))
    a.label("%s_rd" % name)
    T = 104
    for s_ in range(3):
        b = 64 + 4 * s_
        if s_ == 0: a("s_waitcnt lgkmcnt(5)")
        if s_ == 1: a("s_waitcnt lgkmcnt(0)")
        if s_ == 2:
            a("s_cmp_ge_u32 s54, 2")
            a("s_cbranch_scc1 %s_done" % name)
        o = PT + 16 * s_; X = XR + 2 * s_; Y = YR + 2 * s_; S_ = ST + 2 * s_
        for h in (0, 2):
            a("v_pk_add_f32 %s, %s, %s" % (vr(o + h, 2), vr(o + h, 2), vr(o + 4 + h, 2)))
            a("v_pk_add_f32 %s, %s, %s" % (vr(o + 8 + h, 2), vr(o + 8 + h, 2), vr(o + 12 + h, 2)))
        for h in (0, 2):
            a("v_pk_add_f32 %s, %s, %s" % (vr(o + h, 2), vr(o + h, 2), vr(o + 8 + h, 2)))
        rnd_pair(a, T + 20, o, o + 1); rnd_pair(a, T + 21, o + 2, o + 3)
        for r in range(4): a("v_mul_f32 v%d, s33, v%d" % (T + r, o + r))
        for r in range(4): a("v_exp_f32 v%d, v%d" % (T + r, T + r))
        a("v_lshlrev_b32 v%d, 16, v%d" % (T + 4, X)); a("v_and_b32 v%d, 0xffff0000, v%d" % (T + 5, X))
        a("v_lshlrev_b32 v%d, 16, v%d" % (T + 6, X + 1)); a("v_and_b32 v%d, 0xffff0000, v%d" % (T + 7, X + 1))
        for r in range(4): a("v_add_f32 v%d, 1.0, v%d" % (T + r, T + r))
        for r in range(4): a("v_rcp_f32 v%d, v%d" % (T + r, T + r))
        for r in range(4): a("v_sub_f32 v%d, v%d, v%d" % (T + 12 + r, T + 4 + r, S_))
        a("v_lshlrev_b32 v%d, 16, v%d" % (T + 8, Y)); a("v_and_b32 v%d, 0xffff0000, v%d" % (T + 9, Y))
        a("v_lshlrev_b32 v%d, 16, v%d" % (T + 10, Y + 1)); a("v_and_b32 v%d, 0xffff0000, v%d" % (T + 11, Y + 1))
        for r in range(4): a("v_mul_f32 v%d, v%d, v%d" % (o + r, o + r, T + r))
        rnd_pair(a, T + 20, T + 12, T + 13); rnd_pair(a, T + 21, T + 14, T + 15)
        rnd_pair(a, T + 22, o, o + 1); rnd_pair(a, T + 23, o + 2, o + 3)
        for r in range(4): a("v_mul_f32 v%d, v%d, v%d" % (T + 12 + r, T + 12 + r, S_ + 1))
        rnd_pair(a, T + 20, T + 12, T + 13); rnd_pair(a, T + 21, T + 14, T + 15)
        for r in range(4): a("v_mul_f32 v%d, v%d, v%d" % (T + 12 + r, T + 12 + r, T + 8 + r))
        rnd_pair(a, T + 20, T + 12, T + 13); rnd_pair(a, T + 21, T + 14, T + 15)
        for r in range(4): a("v_mul_f32 v%d, v%d, v%d" % (T + 12 + r, T + 12 + r, o + r))
        rnd_pair(a, T + 20, T + 12, T + 13); rnd_pair(a, T + 21, T + 14, T + 15)
        for r in range(4): a("v_add_f32 v%d, v%d, v%d" % (T + 12 + r, T + 12 + r, T + 4 + r))
        a("v_cvt_pk_bf16_f32 v%d, v%d, v%d" % (X, T + 12, T + 13))
        a("v_cvt_pk_bf16_f32 v%d, v%d, v%d" % (X + 1, T + 14, T + 15))
        a("buffer_store_dwordx2 %s, v13, s[28:31], s%d offen" % (vr(X, 2), b))
    a.label("%s_done" % name)
    stamp(a, 4)
    G.stamp_rt(a, 1)
    a.label("%s_end" % name)
    a("s_endpgm")
    return a.text(), kernel_desc(name, 256, 256), (name, 256, 512, R * SLOT + 10240)

def gen_k3c(name="k3_kernel", R=4):
    a = Asm()
    TREG = 16384; FS = 160; SLOT = TREG + 128 * FS; NST = 18
    YOFF = R * SLOT
    kernel_begin(a, name)
    a("s_load_dwordx2 s[6:7], s[0:1], 104")
    a("s_load_dwordx2 s[4:5], s[0:1], 0")
    a("s_load_dwordx2 s[16:17], s[0:1], 88")
    a("s_cmp_ge_u32 s2, 256")
    a("s_cbranch_scc1 %s_end" % name)
    a("v_lshrrev_b32 v1, 6, v0")
    a("v_and_b32 v2, 63, v0")
    a("v_readfirstlane_b32 s3, v1")
    a("s_and_b32 s20, s2, 7")
    a("s_lshr_b32 s21, s2, 3")
    a("s_and_b32 s22, s20, 3")
    a("s_lshl_b32 s22, s22, 3")
    a("s_and_b32 s23, s21, 7")
    a("s_add_u32 s22, s22, s23")
    a("s_lshr_b32 s23, s20, 2")
    a("s_lshl_b32 s23, s23, 2")
    a("s_lshr_b32 s24, s21, 3")
    a("s_add_u32 s23, s23, s24")
    a("s_lshr_b32 s52, s23, 1")
    a("s_and_b32 s53, s23, 1")
    XR = 200; ST = 208
    def fin_loads():
        a("v_and_b32 v3, 15, v2")
        a("v_lshrrev_b32 v10, 4, v2")
        a("v_mul_u32_u24 v13, 1152, v3")
        a("v_lshl_add_u32 v13, v10, 3, v13")
        a("v_lshlrev_b32 v12, 3, v3")
        for s_ in range(3):
            if s_ == 2:
                a("s_cmp_ge_u32 s54, 2")
                a("s_cbranch_scc1 %s_fl%d" % (name, fin_loads.cnt))
            b = 64 + 4 * s_
            if s_ < 2:
                a("s_add_u32 s36, s54, %d" % (8 * s_))
                a("s_lshr_b32 s37, s36, 2")
                a("s_and_b32 s38, s36, 3")
                a("s_mul_i32 s39, s53, 160")
                a("s_lshl_b32 s40, s37, 5")
                a("s_add_u32 s39, s39, s40")
            else:
                a("s_add_u32 s36, s54, 16")
                a("s_mov_b32 s37, 4")
                a("s_mov_b32 s38, s54")
                a("s_mov_b32 s39, 128")
            a("s_lshl_b32 s40, s53, 1")
            a("s_add_u32 s38, s38, s40")
            a("s_and_b32 s38, s38, 3")
            a("s_lshl_b32 s40, s22, 2")
            a("s_add_u32 s40, s40, s38")
            a("s_lshl_b32 s40, s40, 4")
            a("s_mul_i32 s%d, s40, 1152" % b)
            a("s_add_u32 s%d, s%d, s39" % (b, b))
            a("s_mul_i32 s39, s52, 288")
            a("s_add_u32 s%d, s%d, s39" % (b, b))
            a("s_lshl_b32 s%d, s37, 11" % (b + 1))
            a("s_lshl_b32 s39, s38, 5")
            a("s_add_u32 s%d, s%d, s39" % (b + 1, b + 1))
            a("s_add_u32 s%d, s%d, %d" % (b + 1, b + 1, YOFF))
            a("s_lshl_b32 s%d, s36, 10" % (b + 2))
            a("s_lshl_b32 s40, s40, 3")
            a("s_add_u32 s40, s40, 0x%x" % STATS1)
            a("buffer_load_dwordx2 %s, v13, s[8:11], s%d offen" % (vr(XR + 2 * s_, 2), b))
            a("buffer_load_dwordx2 %s, v12, s[12:15], s40 offen" % vr(ST + 2 * s_, 2))
        a.label("%s_fl%d" % (name, fin_loads.cnt))
        fin_loads.cnt += 1
    fin_loads.cnt = 0
    a("s_mov_b32 s54, s3")
    a("s_cmp_lt_u32 s3, 4")
    a("s_cbranch_scc1 %s_consumer" % name)
    a("s_setprio 3")
    a("s_sub_u32 s3, s3, 4")
    a("v_lshlrev_b32 v14, 4, v2")
    a("s_mul_i32 s26, s22, %d" % (36 * 8192))
    a("s_lshl_b32 s24, s3, 12")
    a("s_add_u32 s26, s26, s24")
    a("s_add_u32 s26, s26, 0x%x" % PIMG)
    a("s_mul_i32 s27, s23, %d" % (18 * 20480))
    a("s_mul_i32 s25, s3, 5120")
    a("s_add_u32 s27, s27, s25")
    a("s_add_u32 s27, s27, 0x%x" % WOT)
    a("s_add_u32 s25, s25, %d" % TREG)
    a("s_mov_b32 s33, 0")
    a("s_waitcnt lgkmcnt(0)")
    srd(a, 12, 6, WS_BYTES)
    def issue():
        a("s_add_u32 s35, s33, s24")
        a("s_mov_b32 m0, s35")
        a("s_add_u32 s36, s33, s25")
        for n in range(4):
            a("buffer_load_dwordx4 v14, s[12:15], s26 offen offset:%d lds" % (n * 1024))
        a("s_mov_b32 m0, s36")
        a("s_add_u32 s37, s27, 4096")
        for n in range(4):
            a("buffer_load_dwordx4 v14, s[12:15], s27 offen offset:%d lds" % (n * 1024))
        a("s_add_u32 s36, s36, 4096")
        a("s_mov_b32 m0, s36")
        a("s_add_u32 s26, s26, 16384")
        a("buffer_load_dwordx4 v14, s[12:15], s37 offen lds")
        a("s_add_u32 s27, s27, 20480")
        a("s_add_u32 s33, s33, %d" % SLOT)
        a("s_cmp_eq_u32 s33, %d" % (R * SLOT))
        a("s_cselect_b32 s33, 0, s33")
    issue(); issue()
    a("s_add_u32 s3, s3, 4"); stamp_setup(a, 3); stamp(a, 0); a("s_sub_u32 s3, s3, 4")
    srd(a, 8, 4, 2048 * 576 * 2)
    srd(a, 28, 16, 2048 * 576 * 2)
    a("s_waitcnt vmcnt(9)")
    a("s_barrier")
    issue(); issue()
    a("s_waitcnt vmcnt(18)")
    a("s_barrier")
    a("s_mov_b32 s34, 0")
    a.label("%s_lloop" % name)
    issue()
    a("s_waitcnt vmcnt(18)")
    a("s_barrier")
    a("s_add_u32 s34, s34, 1")
    a("s_cmp_lt_u32 s34, %d" % (NST - R))
    a("s_cbranch_scc1 %s_lloop" % name)
    a("v_lshrrev_b32 v3, 3, v2")
    a("v_and_b32 v4, 7, v2")
    a("v_lshlrev_b32 v4, 4, v4")
    a("s_mul_i32 s33, s52, 144")
    a("s_mul_i32 s34, s53, 80")
    a("s_lshl_b32 s35, s22, 7")
    a("s_add_u32 s35, s35, 0x%x" % YT)
    for n in range(3):
        a("s_add_u32 s36, s3, %d" % (4 * n))
        if n == 2:
            a("s_min_u32 s36, s36, 9")
        a("s_lshl_b32 s37, s36, 3")
        a("s_add_u32 s38, s37, s33")
        if n < 2: a("s_add_u32 s38, s38, s34")
        a("v_add_u32 v5, s38, v3")
        a("v_lshl_add_u32 v5, v5, 12, v4")
        a("s_lshl_b32 s36, s36, 10")
        a("s_add_u32 s36, s36, %d" % YOFF)
        a("s_mov_b32 m0, s36")
        a("s_nop 0")
        a("buffer_load_dwordx4 v5, s[12:15], s35 offen lds")
    fin_loads()
    a("s_waitcnt vmcnt(%d)" % (9 + 7))
    a("s_barrier")
    a("s_waitcnt vmcnt(7)")
    a("s_barrier")
    a("s_barrier")
    a("s_setprio 0")
    a("s_waitcnt vmcnt(0)")
    a("s_branch %s_fin" % name)
    a.label("%s_consumer" % name)
    ACC = 128; FB0 = 16; FB1 = 52
    vTa = [4, 4]; vTb = [6, 6]; vF = 8; vFh = 9
    bTa = 88; bTb = 90; bF = 92; bFh = 93
    a("v_and_b32 v3, 15, v2")
    a("v_lshrrev_b32 v10, 5, v2")
    a("v_lshlrev_b32 v10, 11, v10")
    a("v_bfe_u32 v11, v2, 4, 1")
    a("v_lshl_add_u32 v10, v11, 4, v10")
    a("v_lshl_add_u32 v10, v3, 5, v10")
    a("s_lshl_b32 s26, s3, 12")
    a("v_add_u32 v10, s26, v10")
    a("s_lshl_b32 s26, s53, 10")
    a("v_add_u32 v%d, s26, v10" % bTa)
    a("s_xor_b32 s26, s26, 1024")
    a("v_add_u32 v%d, s26, v10" % bTb)
    a("v_lshrrev_b32 v10, 2, v2")
    a("v_mul_u32_u24 v10, %d, v10" % FS)
    a("v_and_b32 v11, 3, v2")
    a("v_lshl_add_u32 v10, v11, 3, v10")
    a("s_mul_i32 s26, s3, %d" % (32 * FS))
    a("s_add_u32 s26, s26, %d" % TREG)
    a("v_add_u32 v%d, s26, v10" % bF)
    a("v_add_u32 v%d, 128, v%d" % (bFh, bF))
    a("s_waitcnt lgkmcnt(0)")
    srd(a, 12, 6, WS_BYTES)
    srd(a, 8, 4, 2048 * 576 * 2)
    srd(a, 28, 16, 2048 * 576 * 2)
    stamp_setup(a, 3); stamp(a, 0)
    fin_loads()
    core = G.Core(a, ACC, FB0, FB1, FS, TREG, vTa, vTb, vF, vFh, TT=512)
    trk = core.trk
    pairs = ((vTa[0], bTa), (vF, bF), (vTb[0], bTb), (vFh, bFh))
    for d, s_ in pairs: a("v_mov_b32 v%d, v%d" % (d, s_))
    for r in range(ACC, ACC + 72): a("v_mov_b32 v%d, 0" % r)
    a("s_mov_b32 s27, 0")
    a("s_mov_b32 s33, 0")
    a("s_barrier")
    stamp(a, 1)
    core.prime(0, core.reads(0, 0))
    def iteration(buf):
        trk.drain()
        a("s_barrier")
        a("s_add_u32 s27, s27, %d" % SLOT)
        a("s_cmp_eq_u32 s27, %d" % (R * SLOT))
        a("s_cselect_b32 s27, 0, s27")
        pre = ["v_add_u32 v%d, s27, v%d" % (d, s_) for d, s_ in pairs]
        core.phase(buf, core.reads(1 - buf, 0), pre=pre)
    a.label("%s_cloop" % name)
    iteration(0); iteration(1)
    a("s_add_u32 s33, s33, 1")
    a("s_cmp_lt_u32 s33, %d" % (NST // 2))
    a("s_cbranch_scc1 %s_cloop" % name)
    trk.drain()
    stamp(a, 2)
    a("s_mul_i32 s33, s3, %d" % (18 * 1024))
    a("v_lshlrev_b32 v10, 4, v2")
    a("v_add_u32 v11, s33, v10")
    a("s_nop 4")
    for n, (ft, tt) in enumerate(TILES):
        a("ds_write_b128 v11, %s offset:%d" % (vr(core.accr(ft, tt)), 1024 * tidx(ft, tt)))
        if n in (7, 13): a("s_waitcnt lgkmcnt(4)")
    a("s_waitcnt lgkmcnt(0) vmcnt(0)")
    a.label("%s_fin" % name)
    a("s_barrier")
    stamp(a, 3)
    a("v_lshlrev_b32 v10, 4, v2")
    a("v_lshrrev_b32 v11, 2, v2")
    a("v_lshlrev_b32 v11, 7, v11")
    a("v_and_b32 v12, 3, v2")
    a("v_lshl_add_u32 v11, v12, 3, v11")
    a("s_mov_b32 s33, 0xbfb8aa3b")
    PT = 16; YR = 64
    for s_ in range(3):
        b = 64 + 4 * s_
        if s_ == 2:
            a("s_cmp_ge_u32 s54, 2")
            a("s_cbranch_scc1 %s_rd" % name)
        a("v_add_u32 v4, s%d, v10" % (b + 2))
        a("v_add_u32 v5, s%d, v11" % (b + 1))
        for q in range(4):
            a("ds_read_b128 %s, v4 offset:%d" % (vr(PT + 16 * s_ + 4 * q), 18432 * q))
        a("ds_read_b64_tr_b16 %s, v5" % vr(YR + 2 * s_, 2))
    a.label("%s_rd" % name)
    T = 104
    for s_ in range(3):
        b = 64 + 4 * s_
        if s_ == 0: a("s_waitcnt lgkmcnt(5)")
        if s_ == 1: a("s_waitcnt lgkmcnt(0)")
        if s_ == 2:
            a("s_cmp_ge_u32 s54, 2")
            a("s_cbranch_scc1 %s_done" % name)
        o = PT + 16 * s_; X = XR + 2 * s_; Y = YR + 2 * s_; S_ = ST + 2 * s_
        for h in (0, 2):
            a("v_pk_add_f32 %s, %s, %s" % (vr(o + h, 2), vr(o + h, 2), vr(o + 4 + h, 2)))
            a("v_pk_add_f32 %s, %s, %s" % (vr(o + 8 + h, 2), vr(o + 8 + h, 2), vr(o + 12 + h, 2)))
        for h in (0, 2):
            a("v_pk_add_f32 %s, %s, %s" % (vr(o + h, 2), vr(o + h, 2), vr(o + 8 + h, 2)))
        rnd_pair(a, T + 20, o, o + 1); rnd_pair(a, T + 21, o + 2, o + 3)
        for r in range(4): a("v_mul_f32 v%d, s33, v%d" % (T + r, o + r))
        for r in range(4): a("v_exp_f32 v%d, v%d" % (T + r, T + r))
        a("v_lshlrev_b32 v%d, 16, v%d" % (T + 4, X)); a("v_and_b32 v%d, 0xffff0000, v%d" % (T + 5, X))
        a("v_lshlrev_b32 v%d, 16, v%d" % (T + 6, X + 1)); a("v_and_b32 v%d, 0xffff0000, v%d" % (T + 7, X + 1))
        for r in range(4): a("v_add_f32 v%d, 1.0, v%d" % (T + r, T + r))
        for r in range(4): a("v_rcp_f32 v%d, v%d" % (T + r, T + r))
        for r in range(4): a("v_sub_f32 v%d, v%d, v%d" % (T + 12 + r, T + 4 + r, S_))
        a("v_lshlrev_b32 v%d, 16, v%d" % (T + 8, Y)); a("v_and_b32 v%d, 0xffff0000, v%d" % (T + 9, Y))
        a("v_lshlrev_b32 v%d, 16, v%d" % (T + 10, Y + 1)); a("v_and_b32 v%d, 0xffff0000, v%d" % (T + 11, Y + 1))
        for r in range(4): a("v_mul_f32 v%d, v%d, v%d" % (o + r, o + r, T + r))
        rnd_pair(a, T + 20, T + 12, T + 13); rnd_pair(a, T + 21, T + 14, T + 15)
        rnd_pair(a, T + 22, o, o + 1); rnd_pair(a, T + 23, o + 2, o + 3)
        for r in range(4): a("v_mul_f32 v%d, v%d, v%d" % (T + 12 + r, T + 12 + r, S_ + 1))
        rnd_pair(a, T + 20, T + 12, T + 13); rnd_pair(a, T + 21, T + 14, T + 15)
        for r in range(4): a("v_mul_f32 v%d, v%d, v%d" % (T + 12 + r, T + 12 + r, T + 8 + r))
        rnd_pair(a, T + 20, T + 12, T + 13); rnd_pair(a, T + 21, T + 14, T + 15)
        for r in range(4): a("v_mul_f32 v%d, v%d, v%d" % (T + 12 + r, T + 12 + r, o + r))
        rnd_pair(a, T + 20, T + 12, T + 13); rnd_pair(a, T + 21, T + 14, T + 15)
        for r in range(4): a("v_add_f32 v%d, v%d, v%d" % (T + 12 + r, T + 12 + r, T + 4 + r))
        a("v_cvt_pk_bf16_f32 v%d, v%d, v%d" % (X, T + 12, T + 13))
        a("v_cvt_pk_bf16_f32 v%d, v%d, v%d" % (X + 1, T + 14, T + 15))
        a("buffer_store_dwordx2 %s, v13, s[28:31], s%d offen" % (vr(X, 2), b))
    a.label("%s_done" % name)
    stamp(a, 4)
    G.stamp_rt(a, 1)
    a.label("%s_end" % name)
    a("s_endpgm")
    return a.text(), kernel_desc(name, 256, 256), (name, 256, 512, R * SLOT + 10240)

def gen_kw(name="kw_kernel"):
    return G.gen_k0(name)

gen_k2 = G.gen_k2; gen_k3 = G.gen_k3; gen_kc = G.gen_kc

if __name__ == "__main__":
    which = sys.argv[1]; out = sys.argv[2]
    if len(sys.argv) > 3: DBG.update(sys.argv[3].split(","))
    ks = [globals()["gen_" + w]() for w in which.split(",")]
    if "wt" in DBG:
        import re
        ks = [(re.sub(r"(buffer_store_dwordx[24] [^\n]*s\[12:15\][^\n]*?)( sc1)?\n", lambda m: m.group(1) + " sc1\n", k[0]),) + k[1:] for k in ks]
    if "nts" in DBG:
        import re
        ks = [(re.sub(r"(buffer_store_dwordx4 [^\n]*s\[12:15\][^\n]*?)\n", lambda m: m.group(1) + (" nt\n" if "sc1" not in m.group(1) else "\n"), k[0]),) + k[1:] for k in ks]
    open(out, "w").write(assemble_file([k[2] for k in ks], "".join(k[0] for k in ks), [k[1] for k in ks]))
```

```python
import sys, copy
from asmgen import *
import gen as G
import gen2 as G2
import gen3 as G3
from gen import (ZIMG, Z1IMG, PIMG, WOT, KVT, YT, STATS2, STATS1, WS_BYTES, DBG, LdsTracker, vr, stamp, stamp_setup,
                 rnd_pair, f32, emit_xg_reduce, emit_ln_finish)
from gen2 import VmTracker, TILES, tidx, emit_fold_gelu, gelu_consts, SPIN_MAX
from gen3 import emit_kv_loads, emit_kv_compute, emit_wot_loads

def emit_code_prefetch(a, name, nload=3):
    if "cpf" not in DBG: return
    a("s_getpc_b64 s[40:41]")
    a.label("%s_pc" % name)
    a("s_sub_u32 s40, s40, %s_pc-%s" % (name, name))
    a("s_subb_u32 s41, s41, 0")
    a("s_and_b32 s41, s41, 0xffff")
    a("s_mov_b32 s42, code_end_lbl-%s" % name)
    a("s_mov_b32 s43, 0x00020000")
    a("v_lshlrev_b32 v10, 7, v2")
    a("s_mul_i32 s36, s3, %d" % (nload * 8192))
    for n in range(nload):
        a("buffer_load_dword v200, v10, s[40:43], s36 offen")
        if n < nload - 1: a("s_add_u32 s36, s36, 8192")

def gen_k1h(name="k1_kernel", R=4):
    a = Asm()
    RB = 4096; SLOT = 34816; TREG = 16384; FS = 288; RST = 0
    LDSB = RB + R * SLOT
    def capture(f, *args):
        lb = len(a.lines); f(*args); out = a.lines[lb:]; del a.lines[lb:]; return out
    kernel_begin(a, name)
    a("s_load_dwordx2 s[80:81], s[0:1], 0")
    a("s_load_dwordx2 s[4:5], s[0:1], 56")
    a("s_load_dwordx2 s[6:7], s[0:1], 104")
    a("s_load_dwordx2 s[18:19], s[0:1], 96")
    a("s_cmp_ge_u32 s2, 256")
    a("s_cbranch_scc1 %s_end" % name)
    a("v_lshrrev_b32 v1, 6, v0")
    a("v_and_b32 v2, 63, v0")
    a("v_readfirstlane_b32 s3, v1")
    G2.tile_ij(a)
    a("s_lshr_b32 s98, s3, 2")
    a("s_mov_b32 s54x, 0".replace("s54x", "s99"))
    a("s_and_b32 s3, s3, 3")
    a("s_lshr_b32 s24, s3, 1")
    a("s_and_b32 s25, s3, 1")
    a("v_and_b32 v3, 15, v2")
    VT = 204; VF = 208
    def loader_setup():
        a("v_lshrrev_b32 v5, 3, v2")
        a("v_and_b32 v4, 7, v2")
        a("s_lshl_b32 s36, s3, 5")
        a("v_add_u32 v5, s36, v5")
        a("v_lshrrev_b32 v7, 4, v2")
        a("v_xor_b32 v7, v7, v4")
        a("v_mul_u32_u24 v6, 1152, v5")
        a("v_lshl_add_u32 v%d, v7, 4, v6" % VT)
        a("v_xor_b32 v%d, 64, v%d" % (VT + 1, VT))
        a("v_add_u32 v%d, %d, v%d" % (VT + 1, 9216 - 1024, VT + 1))
        a("v_add_u32 v%d, %d, v%d" % (VT + 2, 2 * (9216 - 1024), VT))
        a("v_add_u32 v%d, %d, v%d" % (VT + 3, 2 * (9216 - 1024), VT + 1))
        a("s_lshl_b32 s84, s3, 12")
        a("s_add_u32 s84, s84, %d" % RB)
        a("s_lshl_b32 s85, s3, 9")
        a("s_add_u32 s85, s85, %d" % (RB + TREG + 16384))
    def loader_setup2():
        for n in range(5):
            if n < 4:
                a("s_lshl_b32 s36, s3, 8")
                a("s_add_u32 s36, s36, %d" % (64 * n))
            else:
                a("s_lshl_b32 s36, s3, 5")
                a("s_add_u32 s36, s36, 1024")
            a("v_add_u32 v6, s36, v2")
            a("v_mul_u32_u24 v7, 3641, v6")
            a("v_lshrrev_b32 v7, 16, v7")
            a("v_mul_u32_u24 v8, 18, v7")
            a("v_sub_u32 v8, v6, v8")
            a("v_and_b32 v9, 35, v7")
            a("v_bfe_u32 v6, v7, 2, 2")
            a("v_lshl_add_u32 v9, v6, 3, v9")
            a("v_bfe_u32 v6, v7, 4, 1")
            a("v_lshl_add_u32 v9, v6, 2, v9")
            a("v_mul_u32_u24 v9, 9216, v9")
            a("v_lshl_add_u32 v%d, v8, 4, v9" % (VF + n))
            if 0 < n < 4: a("v_subrev_u32 v%d, %d, v%d" % (VF + n, 1024 * n, VF + n))
    def issueT(g):
        st = g % 9
        a("s_add_u32 s86, s84, %d" % ((g % R) * SLOT))
        a("s_mov_b32 m0, s86")
        a("s_add_u32 s87, s82, %d" % (128 * st))
        for n in range(4):
            a("buffer_load_dwordx4 v%d, s[28:31], s87 offen offset:%d lds" % (VT + n, 1024 * n))
    def issueF(g):
        st = g % 9
        a("s_add_u32 s86, s84, %d" % ((g % R) * SLOT + TREG))
        a("s_mov_b32 m0, s86")
        a("s_add_u32 s87, s83, %d" % (64 * 9216 * st + (4608 if g < 9 else 0)))
        for n in range(4):
            a("buffer_load_dwordx4 v%d, s[8:11], s87 offen offset:%d lds" % (VF + n, 1024 * n))
        a("s_add_u32 s86, s85, %d" % ((g % R) * SLOT))
        a("s_mov_b32 m0, s86")
        a("s_mov_b64 exec, 0xffffffff")
        a("buffer_load_dwordx4 v%d, s[8:11], s87 offen lds" % (VF + 4))
        a("s_mov_b64 exec, -1")
    def srds_main():
        srd(a, 28, 80, 2048 * 576 * 2)
        srd(a, 8, 4, 576 * 4608 * 2)
        srd(a, 12, 6, WS_BYTES)
        srd(a, 60, 18, 256)
        a("s_mul_i32 s82, s22, %d" % (128 * 1152))
        a("s_mul_i32 s83, s23, 288")
    ACC = 128; FB = [16, 52]; CS = 216; ONE = 236
    vTa = [4, 5]; vTb = [6, 7]; vF = 8; vFh = 9
    bTa = [88, 89]; bTb = [90, 91]; bF = 92; bFh = 93
    def mma_setup():
        a("v_lshrrev_b32 v10, 4, v2")
        a("v_lshrrev_b32 v11, 1, v3")
        a("v_xor_b32 v10, v10, v11")
        a("v_lshlrev_b32 v10, 4, v10")
        a("v_lshl_add_u32 v10, v3, 7, v10")
        a("s_lshl_b32 s26, s24, 13")
        a("s_add_u32 s26, s26, %d" % RB)
        a("v_add_u32 v10, s26, v10")
        a("s_lshl_b32 s26, s25, 12")
        a("v_add_u32 v%d, s26, v10" % bTa[0])
        a("s_xor_b32 s26, s26, 4096")
        a("v_add_u32 v%d, s26, v10" % bTb[0])
        a("v_xor_b32 v%d, 64, v%d" % (bTa[1], bTa[0]))
        a("v_xor_b32 v%d, 64, v%d" % (bTb[1], bTb[0]))
        a("v_lshrrev_b32 v10, 2, v2")
        a("v_mul_u32_u24 v10, %d, v10" % FS)
        a("v_and_b32 v11, 3, v2")
        a("v_lshl_add_u32 v10, v11, 3, v10")
        a("v_add_u32 v10, %d, v10" % (RB + TREG))
        a("s_mul_i32 s26, s25, 160")
        a("v_add_u32 v%d, s26, v10" % bF)
        a("v_add_u32 v%d, 128, v10" % bFh)
        for r in range(ACC, ACC + 72): a("v_mov_b32 v%d, 0" % r)
        for r in range(CS, CS + 20): a("v_mov_b32 v%d, 0" % r)
        for r in range(ONE, ONE + 4): a("v_mov_b32 v%d, 0x3f803f80" % r)
    def mma_addr(slot):
        a("s_mov_b32 s27, %d" % (slot * SLOT))
        for d, s_ in ((vTa[0], bTa[0]), (vTb[0], bTb[0]), (vTa[1], bTa[1]), (vTb[1], bTb[1]), (vF, bF), (vFh, bFh)):
            a("v_add_u32 v%d, s27, v%d" % (d, s_))
    core = G.Core(a, ACC, FB[0], FB[1], FS, TREG, vTa, vTb, vF, vFh)
    trk = core.trk
    a("s_cmp_eq_u32 s98, 0")
    a("s_cbranch_scc1 %s_A0" % name)
    a("s_setprio 3")
    loader_setup()
    a("s_waitcnt lgkmcnt(0)")
    srds_main()
    vm = VmTracker(a)
    def issue(g, vmx):
        issueT(g); issueF(g); vmx.issue("S%d" % g, 9)
    issueT(0)
    loader_setup2()
    issueF(0); vm.issue("S0", 9)
    issue(1, vm); issue(2, vm); issue(3, vm)
    a("s_add_u32 s3, s3, 4"); stamp_setup(a, 1); stamp(a, 0); a("s_sub_u32 s3, s3, 4")
    mma_setup()
    RA = 96; XB = 112
    for r in range(RA, RA + 16): a("v_mov_b32 v%d, 0" % r)
    a("v_lshrrev_b32 v10, 4, v2")
    a("v_lshrrev_b32 v11, 1, v3")
    a("v_xor_b32 v10, v10, v11")
    a("v_lshlrev_b32 v10, 4, v10")
    a("v_lshl_add_u32 v10, v3, 7, v10")
    a("v_add_u32 v12, s84, v10")
    a("v_xor_b32 v13, 64, v12")
    def rs_rd(g):
        a("v_add_u32 v10, %d, v12" % ((g % R) * SLOT))
        a("v_add_u32 v11, %d, v13" % ((g % R) * SLOT))
        for h in range(2):
            for n in range(2):
                a("ds_read_b128 %s, v%d offset:%d" % (vr(XB + 8 * h + 4 * n), 10 + h, 2048 * n))
    def rs_do():
        for h in range(2):
            for n in range(2):
                x = XB + 8 * h + 4 * n
                a("v_mfma_f32_16x16x32_bf16 %s, %s, %s, %s" % (vr(RA + 4 * n), vr(ONE), vr(x), vr(RA + 4 * n)))
                a("v_mfma_f32_16x16x32_bf16 %s, %s, %s, %s" % (vr(RA + 8 + 4 * n), vr(x), vr(x), vr(RA + 8 + 4 * n)))
    def interleave(dma, comp, vmx=None):
        groups = []; cur = []
        for l in dma:
            cur.append(l)
            if "buffer_load" in l and not any("exec, 0xffffffff" in x for x in cur[-2:]):
                groups.append(cur); cur = []
            elif "exec, -1" in l:
                groups.append(cur); cur = []
        if cur: groups.append(cur)
        ns = max(1, len(groups))
        per = (len(comp) + ns - 1) // ns
        for g in groups:
            a.lines.extend(g)
            a.lines.extend(comp[:per]); comp = comp[per:]
        a.lines.extend(comp)
    vm.wait(["S0"])
    a("s_barrier")
    stamp(a, 1)
    rs_rd(0)
    vm.wait(["S1"])
    a("s_barrier")
    for k in range(9):
        a("s_waitcnt lgkmcnt(0)")
        dma = capture(lambda: (issueT(k + 3), issueF(k + 3))) if k >= 1 else []
        interleave(dma, capture(rs_do))
        if k >= 1: vm.issue("S%d" % (k + 3), 9)
        if k < 8:
            rs_rd(k + 1)
        else:
            a("s_nop 7")
            a("v_lshrrev_b32 v10, 4, v2")
            a("v_lshrrev_b32 v11, 2, v3")
            a("v_and_b32 v12, 3, v3")
            for n in range(2):
                G_ = RA + 8 + 4 * n
                for r in range(1, 4):
                    a("v_cmp_eq_u32 vcc, %d, v12" % r)
                    a("s_nop 1")
                    a("v_cndmask_b32 v%d, v%d, v%d, vcc" % (G_, G_, G_ + r))
            ML = 112
            for n in range(2):
                emit_ln_finish(a, RA + 4 * n, RA + 8 + 4 * n, 576, ML + 2 * n, ML + 2 * n + 1, 120)
                a("v_mov_b32 v%d, v%d" % (117 + 2 * n, ML + 2 * n + 1))
                a("v_sub_f32 v%d, 0, v%d" % (116 + 2 * n, ML + 2 * n))
            a("s_lshl_b32 s35, s3, 8")
            a("v_lshlrev_b32 v13, 3, v3")
            a("v_add_u32 v12, s35, v13")
            a("v_cmp_eq_u32 vcc, v10, v11")
            a("s_and_saveexec_b64 s[36:37], vcc")
            for n in range(2):
                a("ds_write_b64 v12, %s offset:%d" % (vr(116 + 2 * n, 2), RST + 128 * n))
            a("s_mov_b64 exec, s[36:37]")
            a("s_cmp_lg_u32 s23, 0")
            a("s_cbranch_scc1 %s_nost1" % name)
            a("s_lshl_b32 s35, s22, 7")
            a("s_lshl_b32 s36, s3, 5")
            a("s_add_u32 s35, s35, s36")
            a("s_lshl_b32 s35, s35, 3")
            a("s_add_u32 s35, s35, 0x%x" % STATS1)
            a("v_mov_b32 v11, 0x7ffffff0")
            a("v_cndmask_b32 v13, v11, v13, vcc")
            for n in range(2):
                a("buffer_store_dwordx2 %s, v13, s[12:15], s35 offen offset:%d" % (vr(ML + 2 * n, 2), 128 * n))
            a.label("%s_nost1" % name)
            mma_addr(9 % R)
            a("s_mov_b32 s33, 0")
            a("s_setprio 0")
        vm.wait(["S%d" % (k + 2)], "lgkmcnt(0)" if k == 8 else "")
        if k < 8: a("s_barrier")
    a("s_branch %s_mma" % name)
    a.label("%s_A0" % name)
    emit_code_prefetch(a, name)
    a("s_load_dwordx4 s[64:67], s[0:1], 8")
    a("s_load_dwordx2 s[76:77], s[0:1], 24")
    a("s_load_dwordx2 s[90:91], s[0:1], 64")
    mma_setup()
    loader_setup(); loader_setup2()
    a("s_waitcnt lgkmcnt(0)")
    srds_main()
    srd(a, 68, 66, 2048 * 576 * 2)
    a("s_mov_b32 s88, s64"); a("s_mov_b32 s89, s65")
    srd(a, 64, 88, 2048 * 576 * 2)
    srd(a, 72, 76, 576 * 8)
    srd(a, 92, 90, 2048 * 2048 * 2)
    stamp_setup(a, 1); stamp(a, 0)
    def gran_addr():
        a("v_lshrrev_b32 v10, 4, v2")
        a("s_lshl_b32 s36, s25, 1")
        a("v_add_u32 v11, s36, v10")
        a("v_and_b32 v11, 3, v11")
        a("v_lshl_add_u32 v11, v11, 4, v3")
        a("v_lshlrev_b32 v94, 8, v11")
        a("s_lshl_b32 s59, s22, 7")
        a("s_lshl_b32 s36, s24, 6")
        a("s_add_u32 s59, s59, s36")
        a("s_lshl_b32 s59, s59, 8")
        a("s_add_u32 s59, s59, 0x%x" % STATS2)
        a("s_lshl_b32 s36, s23, 1")
        a("s_add_u32 s36, s36, s25")
        a("s_lshl_b32 s36, s36, 3")
        a("s_add_u32 s58, s36, s59")
    gran_addr()
    a("v_mov_b32 v12, 0"); a("v_mov_b32 v13, 0x80000000")
    a("buffer_store_dwordx2 v[12:13], v94, s[12:15], s58 offen sc1")
    mma_addr(0)
    a("s_mov_b32 s33, 0")
    a("s_barrier")
    stamp(a, 1)
    a.label("%s_mma" % name)
    core.prime(0, core.reads(0, 0))
    trk.drain()
    def mfmas(buf):
        L = []
        for ft in range(5):
            A = core.F(buf, ft)
            for tt in range(4 if ft < 4 else 2):
                c = core.accr(ft, tt); B = core.T(buf, tt)
                L.append(("v_mfma_f32_16x16x32_bf16 %s, %s, %s, %s" % (vr(c), vr(A), vr(B), vr(c)), list(range(A, A + 4)) + list(range(B, B + 4))))
            L.append(("v_mfma_f32_16x16x32_bf16 %s, %s, %s, %s" % (vr(CS + 4 * ft), vr(A), vr(ONE), vr(CS + 4 * ft)), list(range(A, A + 4))))
        return L
    def phase(buf, pend):
        for (m, regs) in mfmas(buf):
            trk.need(regs)
            a(m)
            while pend:
                k, t = pend.pop(0)
                if k == "x":
                    a(t)
                    if t.startswith("s_"): continue
                else:
                    a(t[0]); trk.issue(t[1])
                break
        for k, t in pend:
            if k == "x": a(t)
            else: a(t[0]); trk.issue(t[1])
    def iteration():
        a("s_waitcnt vmcnt(0)")
        a("s_barrier")
        rd = [("r", t) for t in core.reads(1, 1)]
        upd = ["s_add_u32 s27, s27, %d" % SLOT, "s_cmp_eq_u32 s27, %d" % (R * SLOT), "s_cselect_b32 s27, 0, s27"]
        tail = ["v_add_u32 v%d, s27, v%d" % (d, s_) for d, s_ in ((vTa[0], bTa[0]), (vF, bF), (vTb[0], bTb[0]), (vFh, bFh))]
        phase(0, rd[:1] + [("x", u) for u in upd] + rd[1:] + [("x", u) for u in tail])
        rd = [("r", t) for t in core.reads(0, 0)]
        tail = ["v_add_u32 v%d, s27, v%d" % (d, s_) for d, s_ in ((vTa[1], bTa[1]), (vTb[1], bTb[1]))] + ["s_add_u32 s33, s33, 1"]
        phase(1, rd + [("x", u) for u in tail])
    a.label("%s_cloop" % name)
    lb = len(a.lines); iteration(); st = copy.deepcopy(trk.out); del a.lines[lb:]; trk.out = copy.deepcopy(st)
    iteration()
    assert [sorted(x) for x in trk.out] == [sorted(x) for x in st]
    a("s_cmp_lt_u32 s33, 9")
    a("s_cbranch_scc1 %s_cloop" % name)
    trk.drain()
    stamp(a, 2)
    MR = 100; T = 72; ZP = 16
    def epi_in():
        gelu_consts(a)
        a("s_lshl_b32 s36, s24, 9")
        a("s_lshl_b32 s37, s25, 8")
        a("s_add_u32 s38, s36, s37")
        a("s_xor_b32 s37, s37, 256")
        a("s_add_u32 s39, s36, s37")
        a("v_lshlrev_b32 v10, 3, v3")
        a("v_add_u32 v11, s38, v10")
        a("ds_read_b64 %s, v11 offset:%d" % (vr(MR, 2), RST))
        a("ds_read_b64 %s, v11 offset:%d" % (vr(MR + 2, 2), RST + 128))
        a("v_add_u32 v11, s39, v10")
        a("ds_read_b64 %s, v11 offset:%d" % (vr(MR + 4, 2), RST))
        a("ds_read_b64 %s, v11 offset:%d" % (vr(MR + 6, 2), RST + 128))
        a("s_waitcnt lgkmcnt(0)")
    S = [108, 110, 52, 54]; Q = [109, 111, 53, 55]
    def gelu_ft(ft, stats):
        tts = range(4 if ft < 4 else 2)
        emit_fold_gelu(a, [(core.accr(ft, tt), CS + 4 * ft, MR + 2 * tt, ZP + 2 * tidx(ft, tt)) for tt in tts], T)
        if stats:
            for d in range(2):
                for tt in tts:
                    p = ZP + 2 * tidx(ft, tt) + d
                    a("v_dot2_f32_bf16 v%d, v%d, v%d, v%d" % (S[tt], p, ONE, S[tt]))
                    a("v_dot2_f32_bf16 v%d, v%d, v%d, v%d" % (Q[tt], p, p, Q[tt]))
    a("s_cmp_eq_u32 s98, 0")
    a("s_cbranch_scc1 %s_A1" % name)
    epi_in()
    a("s_lshl_b32 s36, s22, 4")
    a("s_add_u32 s36, s36, s23")
    a("s_lshl_b32 s36, s36, 2")
    a("s_add_u32 s36, s36, s3")
    a("s_mul_i32 s36, s36, 9216")
    a("s_add_u32 s36, s36, 0x%x" % Z1IMG)
    a("v_lshlrev_b32 v4, 4, v2")
    for ft in range(5):
        gelu_ft(ft, False)
        for q in ((2 * ft, 2 * ft + 1) if ft < 4 else (8,)):
            if q in (4, 8): a("s_add_u32 s36, s36, 4096")
            a("buffer_store_dwordx4 %s, v4, s[12:15], s36 offen offset:%d" % (vr(ZP + 4 * q), (q & 3) * 1024))
    stamp(a, 3)
    G.stamp_rt(a, 1)
    a("s_branch %s_end" % name)
    a.label("%s_A1" % name)
    a("s_setprio 2")
    vmA = VmTracker(a)
    PB = 132
    def aux_head():
        epi_in()
        for tt in range(4):
            a("v_mov_b32 v%d, 0" % S[tt]); a("v_mov_b32 v%d, 0" % Q[tt])
    def aux_pub():
        a("s_nop 2")
        emit_xg_reduce(a, S + Q, 72)
        a("v_lshrrev_b32 v10, 4, v2")
        for g in range(1, 4):
            a("v_cmp_eq_u32 vcc, %d, v10" % g)
            a("s_nop 1")
            a("v_cndmask_b32 v%d, v%d, v%d, vcc" % (S[0], S[0], S[g]))
            a("v_cndmask_b32 v%d, v%d, v%d, vcc" % (Q[0], Q[0], Q[g]))
        a("v_and_b32 v%d, 0x7fffffff, v%d" % (Q[0], Q[0]))
        a("buffer_store_dwordx2 v[%d:%d], v94, s[12:15], s58 offen sc1" % (S[0], Q[0]))
    chunks = [capture(aux_head) + capture(gelu_ft, 0, True), capture(gelu_ft, 1, True), capture(gelu_ft, 2, True),
              capture(gelu_ft, 3, True), capture(gelu_ft, 4, True) + capture(aux_pub)]
    KD = 172
    for k in range(9, 18):
        a("s_barrier")
        if k == 9:
            a("s_cmp_lg_u32 s3, 0")
            a("s_cbranch_scc1 %s_nosig" % name)
            a("v_mov_b32 v10, 1")
            a("s_lshl_b32 s36, s22, 2")
            a("v_mov_b32 v11, s36")
            a("s_mov_b64 exec, 1")
            a("buffer_atomic_add v10, v11, s[60:63], 0 offen sc1")
            a("s_mov_b64 exec, -1")
            a.label("%s_nosig" % name)
        g = k + 3
        dma = capture(lambda: (issueT(g), issueF(g))) if g < 18 else []
        comp = chunks[k - 9] if k - 9 < len(chunks) else []
        interleave(dma, comp)
        if k == 13: vmA.issue("pub", 1)
        if g < 18: vmA.issue("S%d" % g, 9)
        if k == 14:
            a("s_mov_b32 s41, s2")
            emit_kv_loads(a, KD, KD + 12, KD + 20, KD + 24, KD + 25); vmA.issue("kv", 20)
            a("s_lshl_b32 s36, s22, 2")
            a("v_mov_b32 v199, s36")
            a("buffer_load_dword v198, v199, s[60:63], 0 offen sc1"); vmA.issue("cnt", 1)
        if k + 2 < 18 and k + 2 >= 12:
            vmA.wait(["S%d" % (k + 2)])
    stamp(a, 3)
    a("s_setprio 0")
    a("v_lshrrev_b32 v10, 4, v2")
    a("v_lshlrev_b32 v95, 8, v3")
    a("v_lshl_add_u32 v95, v10, 6, v95")
    a("s_lshl_b32 s33, s25, 13")
    a("s_add_u32 s52, s59, s33")
    a("s_xor_b32 s33, s33, 8192")
    a("s_add_u32 s53, s59, s33")
    a("s_add_u32 s42, s52, 4096")
    a("s_add_u32 s43, s53, 4096")
    for r_ in range(36): a("v_mov_b32 v%d, v%d" % (216 + r_, ZP + r_))
    Z2 = 216
    a("s_waitcnt vmcnt(0)")
    GB = [128, 144, 160, 176]
    for n in range(11): a("v_mov_b32 v%d, v%d" % (16 + n, KD + n))
    for n in range(8): a("v_mov_b32 v%d, v%d" % (32 + n, KD + 12 + n))
    for n in range(4): a("v_mov_b32 v%d, v%d" % (44 + n, KD + 20 + n))
    a("v_mov_b32 v56, v%d" % (KD + 24)); a("v_mov_b32 v57, v%d" % (KD + 25))
    a("v_mov_b32 v4, v95")
    def gather():
        for tt in range(4):
            for q in range(4):
                a("buffer_load_dwordx4 %s, v4, s[12:15], s%d offen offset:%d sc1" % (vr(GB[tt] + 4 * q), (52, 42, 53, 43)[tt], 16 * q))
    gather()
    emit_kv_compute(a, wait=False, store=False)
    stamp(a, 4)
    a("s_mov_b32 s40, 0")
    a("s_waitcnt vmcnt(0)")
    a.label("%s_chk" % name)
    a("v_subrev_u32 v11, 16, v198")
    for tt in range(4):
        for r in range(GB[tt] + 1, GB[tt] + 16, 4):
            a("v_or3_b32 v11, v11, v%d, v%d" % (r, r + 2))
    a("v_cmp_gt_i32 vcc, 0, v11")
    a("s_add_u32 s40, s40, 1")
    a("s_cmp_gt_u32 s40, %d" % SPIN_MAX)
    a("s_cbranch_scc1 %s_ok" % name)
    a("s_cbranch_vccz %s_ok" % name)
    a("s_sleep 32")
    a("buffer_load_dword v198, v199, s[60:63], 0 offen sc1")
    a("s_waitcnt vmcnt(0)")
    gather()
    a("s_waitcnt vmcnt(0)")
    a("s_branch %s_chk" % name)
    a.label("%s_ok" % name)
    stamp(a, 5)
    a("v_lshrrev_b32 v5, 4, v2")
    a("v_lshlrev_b32 v5, 12, v5")
    a("v_lshl_add_u32 v5, v3, 4, v5")
    a("s_lshl_b32 s33, s22, 7")
    a("s_lshl_b32 s36, s3, 5")
    a("s_add_u32 s33, s33, s36")
    a("s_lshl_b32 s33, s33, 12")
    a("s_lshl_b32 s36, s23, 8")
    a("s_add_u32 s33, s33, s36")
    for n in range(8):
        a("buffer_load_dwordx4 v[200:203], v5, s[92:95], s33 offen")
        if n < 7: a("s_add_u32 s33, s33, 16384")
    a("s_mov_b32 s39, 0x%x" % KVT)
    a("buffer_store_dwordx4 v[120:123], v12, s[12:15], s39 offen")
    a("buffer_store_dwordx4 v[124:127], v13, s[12:15], s39 offen")
    for tt in range(4):
        b = GB[tt]
        for st_ in (8, 4, 2):
            for q in range(0, st_, 2):
                a("v_pk_add_f32 %s, %s, %s" % (vr(b + q, 2), vr(b + q, 2), vr(b + q + st_, 2)))
    emit_xg_reduce(a, [GB[tt] + e for tt in range(4) for e in range(2)], 72)
    for tt in range(4):
        b = GB[tt]
        emit_ln_finish(a, b, b + 1, 2304, b + 2, MR + 2 * tt, b + 4)
        a("v_mul_f32 v%d, -v%d, v%d" % (MR + 2 * tt + 1, b + 2, MR + 2 * tt))
    a("v_lshrrev_b32 v10, 4, v2")
    a("v_lshrrev_b32 v11, 2, v2"); a("v_and_b32 v11, 1, v11"); a("v_lshlrev_b32 v11, 4, v11")
    a("v_lshrrev_b32 v5, 3, v2"); a("v_and_b32 v5, 1, v5"); a("v_lshl_add_u32 v11, v5, 2, v11")
    a("v_and_b32 v5, 3, v2"); a("v_add_u32 v11, v11, v5")
    a("v_mul_u32_u24 v11, 288, v11")
    a("v_lshrrev_b32 v5, 1, v10"); a("v_lshl_add_u32 v11, v5, 4, v11")
    a("v_and_b32 v5, 1, v10")
    a("v_lshl_add_u32 v6, v5, 5, v11")
    a("v_mul_u32_u24 v5, 2304, v5")
    a("v_add_u32 v9, v11, v5")
    a("s_lshl_b32 s33, s23, 5")
    a("s_lshl_b32 s36, s22, 1")
    a("s_add_u32 s33, s33, s36")
    a("s_add_u32 s33, s33, s24")
    a("s_mul_i32 s33, s33, 18432")
    if ZIMG: a("s_add_u32 s33, s33, 0x%x" % ZIMG)
    a("s_mul_i32 s36, s25, 9216")
    a("s_add_u32 s37, s33, s36")
    a("s_xor_b32 s36, s36, 9216")
    a("s_add_u32 s38, s33, s36")
    a("s_add_u32 s39, s37, 128")
    a("s_mul_i32 s36, s25, 160")
    a("s_add_u32 s37, s37, s36")
    a("s_add_u32 s38, s38, s36")
    def norm_pair(nA, ttA, nB, ttB, O):
        for q, (n, tt) in enumerate(((nA, ttA), (nB, ttB))):
            for d in range(2):
                z = Z2 + 2 * n + d; t = T + 4 * q + 2 * d
                a("v_lshlrev_b32 v%d, 16, v%d" % (t, z))
                a("v_and_b32 v%d, 0xffff0000, v%d" % (t + 1, z))
        for q, (n, tt) in enumerate(((nA, ttA), (nB, ttB))):
            for d in range(2):
                t = T + 4 * q + 2 * d
                a("v_pk_fma_f32 %s, %s, %s, %s op_sel:[0,0,1] op_sel_hi:[1,0,1]" % (vr(t, 2), vr(t, 2), vr(MR + 2 * tt, 2), vr(MR + 2 * tt, 2)))
        for q in range(2):
            for d in range(2):
                t = T + 4 * q + 2 * d
                a("v_cvt_pk_bf16_f32 v%d, v%d, v%d" % (O + 2 * q + d, t, t + 1))
        a("s_nop 1")
        a("v_permlane16_swap_b32 v%d, v%d" % (O, O + 2))
        a("v_permlane16_swap_b32 v%d, v%d" % (O + 1, O + 3))
    cnt = 0
    for pr in range(2):
        for tt in range(4):
            O = 16 + 4 * cnt; cnt += 1
            norm_pair(tidx(2 * pr, tt), tt, tidx(2 * pr + 1, tt), tt, O)
            a("s_nop 0")
            a("buffer_store_dwordx4 %s, v6, s[12:15], s%d offen offset:%d" % (vr(O), 37 if tt < 2 else 38, (tt & 1) * 2304 + 64 * pr))
    O = 16 + 4 * cnt
    norm_pair(16, 0, 17, 1, O)
    a("s_nop 0")
    a("buffer_store_dwordx4 %s, v9, s[12:15], s39 offen" % vr(O))
    stamp(a, 6)
    a("s_cmp_ge_u32 s2, 32")
    a("s_cbranch_scc1 %s_fin" % name)
    a("s_add_u32 s41, s2, 256")
    emit_kv_loads(a)
    emit_kv_compute(a)
    a.label("%s_fin" % name)
    stamp(a, 7)
    G.stamp_rt(a, 1)
    a.label("%s_end" % name)
    a("s_endpgm")
    return a.text(), kernel_desc(name, 256, 256), (name, 256, 512, LDSB)

def gen_kf(name="k1_kernel", R=4):
    a = Asm()
    RB = 4096; SLOT = 34816; TREG = 16384; FS = 288; RST = 0
    LDSB = RB + R * SLOT
    LC = 2048
    ZFLG = 0x2D00000
    from gen3 import emit_conv_loads, emit_conv_job, CJ_SIZE
    def capture(f, *args):
        lb = len(a.lines); f(*args); out = a.lines[lb:]; del a.lines[lb:]; return out
    kernel_begin(a, name)
    a("s_load_dwordx2 s[80:81], s[0:1], 0")
    a("s_load_dwordx2 s[4:5], s[0:1], 56")
    a("s_load_dwordx2 s[6:7], s[0:1], 104")
    a("s_load_dwordx2 s[18:19], s[0:1], 96")
    a("s_cmp_ge_u32 s2, 256")
    a("s_cbranch_scc1 %s_end" % name)
    a("v_lshrrev_b32 v1, 6, v0")
    a("v_and_b32 v2, 63, v0")
    a("v_readfirstlane_b32 s3, v1")
    G2.tile_ij(a)
    a("s_lshr_b32 s98, s3, 2")
    a("s_mov_b32 s54x, 0".replace("s54x", "s99"))
    a("s_and_b32 s3, s3, 3")
    a("s_lshr_b32 s24, s3, 1")
    a("s_and_b32 s25, s3, 1")
    a("v_and_b32 v3, 15, v2")
    VT = 204; VF = 208
    def loader_setup():
        a("v_lshrrev_b32 v5, 3, v2")
        a("v_and_b32 v4, 7, v2")
        a("s_lshl_b32 s36, s3, 5")
        a("v_add_u32 v5, s36, v5")
        a("v_lshrrev_b32 v7, 4, v2")
        a("v_xor_b32 v7, v7, v4")
        a("v_mul_u32_u24 v6, 1152, v5")
        a("v_lshl_add_u32 v%d, v7, 4, v6" % VT)
        a("v_xor_b32 v%d, 64, v%d" % (VT + 1, VT))
        a("v_add_u32 v%d, %d, v%d" % (VT + 1, 9216 - 1024, VT + 1))
        a("v_add_u32 v%d, %d, v%d" % (VT + 2, 2 * (9216 - 1024), VT))
        a("v_add_u32 v%d, %d, v%d" % (VT + 3, 2 * (9216 - 1024), VT + 1))
        a("s_lshl_b32 s84, s3, 12")
        a("s_add_u32 s84, s84, %d" % RB)
        a("s_lshl_b32 s85, s3, 9")
        a("s_add_u32 s85, s85, %d" % (RB + TREG + 16384))
    def loader_setup2():
        for n in range(5):
            if n < 4:
                a("s_lshl_b32 s36, s3, 8")
                a("s_add_u32 s36, s36, %d" % (64 * n))
            else:
                a("s_lshl_b32 s36, s3, 5")
                a("s_add_u32 s36, s36, 1024")
            a("v_add_u32 v6, s36, v2")
            a("v_mul_u32_u24 v7, 3641, v6")
            a("v_lshrrev_b32 v7, 16, v7")
            a("v_mul_u32_u24 v8, 18, v7")
            a("v_sub_u32 v8, v6, v8")
            a("v_and_b32 v9, 35, v7")
            a("v_bfe_u32 v6, v7, 2, 2")
            a("v_lshl_add_u32 v9, v6, 3, v9")
            a("v_bfe_u32 v6, v7, 4, 1")
            a("v_lshl_add_u32 v9, v6, 2, v9")
            a("v_mul_u32_u24 v9, 9216, v9")
            a("v_lshl_add_u32 v%d, v8, 4, v9" % (VF + n))
            if 0 < n < 4: a("v_subrev_u32 v%d, %d, v%d" % (VF + n, 1024 * n, VF + n))
    def issueT(g):
        st = g % 9
        a("s_add_u32 s86, s84, %d" % ((g % R) * SLOT))
        a("s_mov_b32 m0, s86")
        a("s_add_u32 s87, s82, %d" % (128 * st))
        for n in range(4):
            a("buffer_load_dwordx4 v%d, s[28:31], s87 offen offset:%d lds" % (VT + n, 1024 * n))
    def issueF(g):
        st = g % 9
        a("s_add_u32 s86, s84, %d" % ((g % R) * SLOT + TREG))
        a("s_mov_b32 m0, s86")
        a("s_add_u32 s87, s83, %d" % (64 * 9216 * st + (4608 if g < 9 else 0)))
        for n in range(4):
            a("buffer_load_dwordx4 v%d, s[8:11], s87 offen offset:%d lds" % (VF + n, 1024 * n))
        a("s_add_u32 s86, s85, %d" % ((g % R) * SLOT))
        a("s_mov_b32 m0, s86")
        a("s_mov_b64 exec, 0xffffffff")
        a("buffer_load_dwordx4 v%d, s[8:11], s87 offen lds" % (VF + 4))
        a("s_mov_b64 exec, -1")
    def srds_main():
        srd(a, 28, 80, 2048 * 576 * 2)
        srd(a, 8, 4, 576 * 4608 * 2)
        srd(a, 12, 6, WS_BYTES)
        srd(a, 60, 18, 256)
        a("s_mul_i32 s82, s22, %d" % (128 * 1152))
        a("s_mul_i32 s83, s23, 288")
    ACC = 128; FB = [16, 52]; CS = 216; ONE = 236
    vTa = [4, 5]; vTb = [6, 7]; vF = 8; vFh = 9
    bTa = [88, 89]; bTb = [90, 91]; bF = 92; bFh = 93
    def mma_setup():
        a("v_lshrrev_b32 v10, 4, v2")
        a("v_lshrrev_b32 v11, 1, v3")
        a("v_xor_b32 v10, v10, v11")
        a("v_lshlrev_b32 v10, 4, v10")
        a("v_lshl_add_u32 v10, v3, 7, v10")
        a("s_lshl_b32 s26, s24, 13")
        a("s_add_u32 s26, s26, %d" % RB)
        a("v_add_u32 v10, s26, v10")
        a("s_lshl_b32 s26, s25, 12")
        a("v_add_u32 v%d, s26, v10" % bTa[0])
        a("s_xor_b32 s26, s26, 4096")
        a("v_add_u32 v%d, s26, v10" % bTb[0])
        a("v_xor_b32 v%d, 64, v%d" % (bTa[1], bTa[0]))
        a("v_xor_b32 v%d, 64, v%d" % (bTb[1], bTb[0]))
        a("v_lshrrev_b32 v10, 2, v2")
        a("v_mul_u32_u24 v10, %d, v10" % FS)
        a("v_and_b32 v11, 3, v2")
        a("v_lshl_add_u32 v10, v11, 3, v10")
        a("v_add_u32 v10, %d, v10" % (RB + TREG))
        a("s_mul_i32 s26, s25, 160")
        a("v_add_u32 v%d, s26, v10" % bF)
        a("v_add_u32 v%d, 128, v10" % bFh)
        for r in range(ACC, ACC + 72): a("v_mov_b32 v%d, 0" % r)
        for r in range(CS, CS + 20): a("v_mov_b32 v%d, 0" % r)
        for r in range(ONE, ONE + 4): a("v_mov_b32 v%d, 0x3f803f80" % r)
    def mma_addr(slot):
        a("s_mov_b32 s27, %d" % (slot * SLOT))
        for d, s_ in ((vTa[0], bTa[0]), (vTb[0], bTb[0]), (vTa[1], bTa[1]), (vTb[1], bTb[1]), (vF, bF), (vFh, bFh)):
            a("v_add_u32 v%d, s27, v%d" % (d, s_))
    core = G.Core(a, ACC, FB[0], FB[1], FS, TREG, vTa, vTb, vF, vFh)
    trk = core.trk
    a("s_cmp_eq_u32 s98, 0")
    a("s_cbranch_scc1 %s_A0" % name)
    a("s_setprio 3")
    loader_setup()
    a("s_waitcnt lgkmcnt(0)")
    srds_main()
    vm = VmTracker(a)
    def issue(g, vmx):
        issueT(g); issueF(g); vmx.issue("S%d" % g, 9)
    issueT(0)
    loader_setup2()
    issueF(0); vm.issue("S0", 9)
    issue(1, vm); issue(2, vm); issue(3, vm)
    a("s_add_u32 s3, s3, 4"); stamp_setup(a, 1); stamp(a, 0); a("s_sub_u32 s3, s3, 4")
    mma_setup()
    RA = 96; XB = 112
    for r in range(RA, RA + 16): a("v_mov_b32 v%d, 0" % r)
    a("v_lshrrev_b32 v10, 4, v2")
    a("v_lshrrev_b32 v11, 1, v3")
    a("v_xor_b32 v10, v10, v11")
    a("v_lshlrev_b32 v10, 4, v10")
    a("v_lshl_add_u32 v10, v3, 7, v10")
    a("v_add_u32 v12, s84, v10")
    a("v_xor_b32 v13, 64, v12")
    def rs_rd(g):
        a("v_add_u32 v10, %d, v12" % ((g % R) * SLOT))
        a("v_add_u32 v11, %d, v13" % ((g % R) * SLOT))
        for h in range(2):
            for n in range(2):
                a("ds_read_b128 %s, v%d offset:%d" % (vr(XB + 8 * h + 4 * n), 10 + h, 2048 * n))
    def rs_do():
        for h in range(2):
            for n in range(2):
                x = XB + 8 * h + 4 * n
                a("v_mfma_f32_16x16x32_bf16 %s, %s, %s, %s" % (vr(RA + 4 * n), vr(ONE), vr(x), vr(RA + 4 * n)))
                a("v_mfma_f32_16x16x32_bf16 %s, %s, %s, %s" % (vr(RA + 8 + 4 * n), vr(x), vr(x), vr(RA + 8 + 4 * n)))
    def interleave(dma, comp, vmx=None):
        groups = []; cur = []
        for l in dma:
            cur.append(l)
            if "buffer_load" in l and not any("exec, 0xffffffff" in x for x in cur[-2:]):
                groups.append(cur); cur = []
            elif "exec, -1" in l:
                groups.append(cur); cur = []
        if cur: groups.append(cur)
        ns = max(1, len(groups))
        per = (len(comp) + ns - 1) // ns
        for g in groups:
            a.lines.extend(g)
            a.lines.extend(comp[:per]); comp = comp[per:]
        a.lines.extend(comp)
    vm.wait(["S0"])
    a("s_barrier")
    stamp(a, 1)
    rs_rd(0)
    vm.wait(["S1"])
    a("s_barrier")
    for k in range(9):
        a("s_waitcnt lgkmcnt(0)")
        dma = capture(lambda: (issueT(k + 3), issueF(k + 3))) if k >= 1 else []
        interleave(dma, capture(rs_do))
        if k >= 1: vm.issue("S%d" % (k + 3), 9)
        if k < 8:
            rs_rd(k + 1)
        else:
            a("s_nop 7")
            a("v_lshrrev_b32 v10, 4, v2")
            a("v_lshrrev_b32 v11, 2, v3")
            a("v_and_b32 v12, 3, v3")
            for n in range(2):
                G_ = RA + 8 + 4 * n
                for r in range(1, 4):
                    a("v_cmp_eq_u32 vcc, %d, v12" % r)
                    a("s_nop 1")
                    a("v_cndmask_b32 v%d, v%d, v%d, vcc" % (G_, G_, G_ + r))
            ML = 112
            for n in range(2):
                emit_ln_finish(a, RA + 4 * n, RA + 8 + 4 * n, 576, ML + 2 * n, ML + 2 * n + 1, 120)
                a("v_mov_b32 v%d, v%d" % (117 + 2 * n, ML + 2 * n + 1))
                a("v_sub_f32 v%d, 0, v%d" % (116 + 2 * n, ML + 2 * n))
            a("s_lshl_b32 s35, s3, 8")
            a("v_lshlrev_b32 v13, 3, v3")
            a("v_add_u32 v12, s35, v13")
            a("v_cmp_eq_u32 vcc, v10, v11")
            a("s_and_saveexec_b64 s[36:37], vcc")
            for n in range(2):
                a("ds_write_b64 v12, %s offset:%d" % (vr(116 + 2 * n, 2), RST + 128 * n))
            a("s_mov_b64 exec, s[36:37]")
            a("s_cmp_lg_u32 s23, 0")
            a("s_cbranch_scc1 %s_nost1" % name)
            a("s_lshl_b32 s35, s22, 7")
            a("s_lshl_b32 s36, s3, 5")
            a("s_add_u32 s35, s35, s36")
            a("s_lshl_b32 s35, s35, 3")
            a("s_add_u32 s35, s35, 0x%x" % STATS1)
            a("v_mov_b32 v11, 0x7ffffff0")
            a("v_cndmask_b32 v13, v11, v13, vcc")
            for n in range(2):
                a("buffer_store_dwordx2 %s, v13, s[12:15], s35 offen offset:%d" % (vr(ML + 2 * n, 2), 128 * n))
            a.label("%s_nost1" % name)
            mma_addr(9 % R)
            a("s_mov_b32 s33, 0")
            a("s_setprio 0")
        vm.wait(["S%d" % (k + 2)], "lgkmcnt(0)" if k == 8 else "")
        if k < 8: a("s_barrier")
    a("s_branch %s_mma" % name)
    a.label("%s_A0" % name)
    emit_code_prefetch(a, name)
    a("s_load_dwordx4 s[64:67], s[0:1], 8")
    a("s_load_dwordx2 s[76:77], s[0:1], 24")
    a("s_load_dwordx2 s[78:79], s[0:1], 64")
    mma_setup()
    loader_setup(); loader_setup2()
    a("s_waitcnt lgkmcnt(0)")
    srds_main()
    srd(a, 68, 66, 2048 * 576 * 2)
    a("s_mov_b32 s88, s64"); a("s_mov_b32 s89, s65")
    srd(a, 64, 88, 2048 * 576 * 2)
    srd(a, 72, 76, 576 * 8)
    stamp_setup(a, 1); stamp(a, 0)
    def gran_addr():
        a("v_lshrrev_b32 v10, 4, v2")
        a("s_lshl_b32 s36, s25, 1")
        a("v_add_u32 v11, s36, v10")
        a("v_and_b32 v11, 3, v11")
        a("v_lshl_add_u32 v11, v11, 4, v3")
        a("v_lshlrev_b32 v94, 8, v11")
        a("s_lshl_b32 s59, s22, 7")
        a("s_lshl_b32 s36, s24, 6")
        a("s_add_u32 s59, s59, s36")
        a("s_lshl_b32 s59, s59, 8")
        a("s_add_u32 s59, s59, 0x%x" % STATS2)
        a("s_lshl_b32 s36, s23, 1")
        a("s_add_u32 s36, s36, s25")
        a("s_lshl_b32 s36, s36, 3")
        a("s_add_u32 s58, s36, s59")
    gran_addr()
    a("v_mov_b32 v12, 0"); a("v_mov_b32 v13, 0x80000000")
    a("buffer_store_dwordx2 v[12:13], v94, s[12:15], s58 offen sc1")
    a("s_lshl_b32 s36, s22, 4")
    a("s_add_u32 s36, s36, s23")
    a("s_lshl_b32 s36, s36, 8")
    a("s_add_u32 s97, s36, 0x%x" % ZFLG)
    a("v_mov_b32 v10, %d" % LC)
    a("v_mov_b32 v12, 0"); a("v_mov_b32 v13, 0")
    a("s_mov_b64 exec, 1")
    a("buffer_store_dword v12, v12, s[12:15], s97 offen sc1")
    a("s_mov_b64 exec, -1")
    a("ds_write_b64 v10, v[12:13]")
    a("ds_write_b64 v10, v[12:13] offset:8")
    mma_addr(0)
    a("s_mov_b32 s33, 0")
    a("s_waitcnt lgkmcnt(0)")
    a("s_barrier")
    stamp(a, 1)
    a.label("%s_mma" % name)
    core.prime(0, core.reads(0, 0))
    trk.drain()
    nocs = [False]
    def mfmas(buf):
        L = []
        for ft in range(5):
            A = core.F(buf, ft)
            for tt in range(4 if ft < 4 else 2):
                c = core.accr(ft, tt); B = core.T(buf, tt)
                L.append(("v_mfma_f32_16x16x32_bf16 %s, %s, %s, %s" % (vr(c), vr(A), vr(B), vr(c)), list(range(A, A + 4)) + list(range(B, B + 4))))
            if not nocs[0]: L.append(("v_mfma_f32_16x16x32_bf16 %s, %s, %s, %s" % (vr(CS + 4 * ft), vr(A), vr(ONE), vr(CS + 4 * ft)), list(range(A, A + 4))))
        return L
    def phase(buf, pend):
        for (m, regs) in mfmas(buf):
            trk.need(regs)
            a(m)
            while pend:
                k, t = pend.pop(0)
                if k == "x":
                    a(t)
                    if t.startswith("s_"): continue
                else:
                    a(t[0]); trk.issue(t[1])
                break
        for k, t in pend:
            if k == "x": a(t)
            else: a(t[0]); trk.issue(t[1])
    def iteration(vw=True):
        if vw: a("s_waitcnt vmcnt(0)")
        a("s_barrier")
        rd = [("r", t) for t in core.reads(1, 1)]
        upd = ["s_add_u32 s27, s27, %d" % SLOT, "s_cmp_eq_u32 s27, %d" % (R * SLOT), "s_cselect_b32 s27, 0, s27"]
        tail = ["v_add_u32 v%d, s27, v%d" % (d, s_) for d, s_ in ((vTa[0], bTa[0]), (vF, bF), (vTb[0], bTb[0]), (vFh, bFh))]
        phase(0, rd[:1] + [("x", u) for u in upd] + rd[1:] + [("x", u) for u in tail])
        rd = [("r", t) for t in core.reads(0, 0)]
        tail = ["v_add_u32 v%d, s27, v%d" % (d, s_) for d, s_ in ((vTa[1], bTa[1]), (vTb[1], bTb[1]))] + ["s_add_u32 s33, s33, 1"]
        phase(1, rd + [("x", u) for u in tail])
    a.label("%s_cloop" % name)
    lb = len(a.lines); iteration(); st = copy.deepcopy(trk.out); del a.lines[lb:]; trk.out = copy.deepcopy(st)
    iteration()
    assert [sorted(x) for x in trk.out] == [sorted(x) for x in st]
    a("s_cmp_lt_u32 s33, 9")
    a("s_cbranch_scc1 %s_cloop" % name)
    trk.drain()
    stamp(a, 2)
    MR = 100; T = 72; ZP = 16
    def epi_in():
        gelu_consts(a)
        a("s_lshl_b32 s36, s24, 9")
        a("s_lshl_b32 s37, s25, 8")
        a("s_add_u32 s38, s36, s37")
        a("s_xor_b32 s37, s37, 256")
        a("s_add_u32 s39, s36, s37")
        a("v_lshlrev_b32 v10, 3, v3")
        a("v_add_u32 v11, s38, v10")
        a("ds_read_b64 %s, v11 offset:%d" % (vr(MR, 2), RST))
        a("ds_read_b64 %s, v11 offset:%d" % (vr(MR + 2, 2), RST + 128))
        a("v_add_u32 v11, s39, v10")
        a("ds_read_b64 %s, v11 offset:%d" % (vr(MR + 4, 2), RST))
        a("ds_read_b64 %s, v11 offset:%d" % (vr(MR + 6, 2), RST + 128))
        a("s_waitcnt lgkmcnt(0)")
    S = [108, 110, 52, 54]; Q = [109, 111, 53, 55]
    def gelu_ft(ft, stats):
        tts = range(4 if ft < 4 else 2)
        emit_fold_gelu(a, [(core.accr(ft, tt), CS + 4 * ft, MR + 2 * tt, ZP + 2 * tidx(ft, tt)) for tt in tts], T)
        if stats:
            for d in range(2):
                for tt in tts:
                    p = ZP + 2 * tidx(ft, tt) + d
                    a("v_dot2_f32_bf16 v%d, v%d, v%d, v%d" % (S[tt], p, ONE, S[tt]))
                    a("v_dot2_f32_bf16 v%d, v%d, v%d, v%d" % (Q[tt], p, p, Q[tt]))
    a("s_cmp_eq_u32 s98, 0")
    a("s_cbranch_scc1 %s_A1" % name)
    a("s_barrier")
    a("s_load_dwordx4 s[64:67], s[0:1], 8")
    a("s_load_dwordx2 s[76:77], s[0:1], 24")
    a("s_load_dwordx2 s[94:95], s[0:1], 80")
    a("s_load_dwordx2 s[92:93], s[0:1], 72")
    epi_in()
    srd(a, 68, 66, 2048 * 576 * 2)
    a("s_mov_b32 s88, s64"); a("s_mov_b32 s89, s65")
    srd(a, 64, 88, 2048 * 576 * 2)
    srd(a, 72, 76, 576 * 8)
    srd(a, 76, 94, 2304 * 576 * 2)
    srd(a, 28, 92, 2048 * 2)
    a("v_and_b32 v0, 255, v0")
    a("s_mov_b32 s41, s2")
    KDB = 240
    emit_kv_loads(a, 112, 240, 248, 252, 253)
    for ft in range(5): gelu_ft(ft, False)
    Z1R = 200; BI = 236
    for r_ in range(36): a("v_mov_b32 v%d, v%d" % (Z1R + r_, ZP + r_))
    stamp(a, 3)
    a("s_waitcnt vmcnt(0)")
    for n in range(11): a("v_mov_b32 v%d, v%d" % (16 + n, 112 + n))
    for n in range(8): a("v_mov_b32 v%d, v%d" % (32 + n, 240 + n))
    for n in range(4): a("v_mov_b32 v%d, v%d" % (44 + n, 248 + n))
    a("v_mov_b32 v56, v252"); a("v_mov_b32 v57, v253")
    for r_ in range(6): a("v_mov_b32 v%d, v%d" % (240 + r_, 88 + r_))
    a.label("%s_kvb" % name)
    emit_kv_compute(a, wait=False, store=False)
    a("s_mov_b32 s39, 0x%x" % KVT)
    a("buffer_store_dwordx4 v[120:123], v12, s[12:15], s39 offen sc1")
    a("buffer_store_dwordx4 v[124:127], v13, s[12:15], s39 offen sc1")
    a("s_add_u32 s41, s41, 256")
    a("s_cmp_ge_u32 s41, 288")
    a("s_cbranch_scc1 %s_kvbd" % name)
    emit_kv_loads(a)
    a("s_waitcnt vmcnt(0)")
    a("s_branch %s_kvb" % name)
    a.label("%s_kvbd" % name)
    for r_ in range(6): a("v_mov_b32 v%d, v%d" % (88 + r_, 240 + r_))
    a("s_mov_b32 s42, s2")
    emit_wot_loads(a, 100, 112, 720, 3)
    a("s_lshl_b32 s36, s22, 7")
    a("s_lshl_b32 s37, s24, 6")
    a("s_add_u32 s36, s36, s37")
    a("v_lshlrev_b32 v11, 1, v3")
    a("s_lshl_b32 s37, s25, 6")
    a("s_lshl_b32 s38, s36, 1")
    a("s_add_u32 s39, s38, s37")
    a("s_xor_b32 s37, s37, 64")
    a("s_add_u32 s36, s38, s37")
    a("buffer_load_ushort v96, v11, s[28:31], s39 offen")
    a("buffer_load_ushort v97, v11, s[28:31], s39 offen offset:32")
    a("buffer_load_ushort v98, v11, s[28:31], s36 offen")
    a("buffer_load_ushort v99, v11, s[28:31], s36 offen offset:32")
    for r in range(ACC, ACC + 72): a("v_mov_b32 v%d, 0" % r)
    mma_addr(0)
    a("s_mov_b32 s33, 0")
    stamp(a, 4)
    a("s_barrier")
    stamp(a, 5)
    core.prime(0, core.reads(0, 0))
    trk.drain()
    nocs[0] = True
    a.label("%s_gloop" % name)
    lb = len(a.lines); iteration(False); st = copy.deepcopy(trk.out); del a.lines[lb:]; trk.out = copy.deepcopy(st)
    iteration(False)
    assert [sorted(x) for x in trk.out] == [sorted(x) for x in st]
    a("s_cmp_lg_u32 s33, 3")
    a("s_cbranch_scc1 %s_ghk" % name)
    a("s_waitcnt vmcnt(0)")
    for n in range(3):
        a("buffer_store_dwordx4 %s, v%d, s[12:15], s40 offen" % (vr(100 + 4 * n), 112 + n))
    for tt in range(4): a("v_lshlrev_b32 v%d, 16, v%d" % (BI + 2 * tt, 96 + tt))
    a("v_mov_b32 v10, %d" % (LC + 8))
    a("v_mov_b32 v11, 1")
    a("s_mov_b64 exec, 1")
    a("ds_add_rtn_u32 v12, v10, v11")
    a("s_waitcnt lgkmcnt(0)")
    a("v_readfirstlane_b32 s36, v12")
    a("s_cmp_lg_u32 s36, 3")
    a("s_cbranch_scc1 %s_nokvs" % name)
    a("s_and_b32 s36, s2, 15")
    a("s_lshl_b32 s36, s36, 2")
    a("s_add_u32 s36, s36, 128")
    a("v_mov_b32 v10, s36")
    a("buffer_atomic_add v11, v10, s[60:63], 0 offen sc1")
    a.label("%s_nokvs" % name)
    a("s_mov_b64 exec, -1")
    a.label("%s_ghk" % name)
    a("s_cmp_lt_u32 s33, 32")
    a("s_cbranch_scc1 %s_gloop" % name)
    trk.drain()
    stamp(a, 6)
    G3.emit_k2_epilogue(a, core, Z1R, BI)
    stamp(a, 7)
    G.stamp_rt(a, 1)
    a("s_branch %s_end" % name)
    a.label("%s_A1" % name)
    a("s_setprio 2")
    vmA = VmTracker(a)
    PB = 132
    def aux_head():
        epi_in()
        for tt in range(4):
            a("v_mov_b32 v%d, 0" % S[tt]); a("v_mov_b32 v%d, 0" % Q[tt])
    def aux_pub():
        a("s_nop 2")
        emit_xg_reduce(a, S + Q, 72)
        a("v_lshrrev_b32 v10, 4, v2")
        for g in range(1, 4):
            a("v_cmp_eq_u32 vcc, %d, v10" % g)
            a("s_nop 1")
            a("v_cndmask_b32 v%d, v%d, v%d, vcc" % (S[0], S[0], S[g]))
            a("v_cndmask_b32 v%d, v%d, v%d, vcc" % (Q[0], Q[0], Q[g]))
        a("v_and_b32 v%d, 0x7fffffff, v%d" % (Q[0], Q[0]))
        a("buffer_store_dwordx2 v[%d:%d], v94, s[12:15], s58 offen sc1" % (S[0], Q[0]))
    chunks = [capture(aux_head) + capture(gelu_ft, 0, True), capture(gelu_ft, 1, True), capture(gelu_ft, 2, True),
              capture(gelu_ft, 3, True), capture(gelu_ft, 4, True) + capture(aux_pub)]
    KD = 172
    for k in range(9, 18):
        a("s_barrier")
        if k == 9:
            a("s_cmp_lg_u32 s3, 0")
            a("s_cbranch_scc1 %s_nosig" % name)
            a("v_mov_b32 v10, 1")
            a("s_lshl_b32 s36, s22, 2")
            a("v_mov_b32 v11, s36")
            a("s_mov_b64 exec, 1")
            a("buffer_atomic_add v10, v11, s[60:63], 0 offen sc1")
            a("s_mov_b64 exec, -1")
            a.label("%s_nosig" % name)
        g = k + 3
        dma = capture(lambda: (issueT(g), issueF(g))) if g < 18 else []
        comp = chunks[k - 9] if k - 9 < len(chunks) else []
        interleave(dma, comp)
        if k == 13: vmA.issue("pub", 1)
        if g < 18: vmA.issue("S%d" % g, 9)
        if k == 14:
            srd(a, 92, 78, 2048 * 2048 * 2)
            a("v_lshrrev_b32 v10, 4, v2")
            a("v_lshlrev_b32 v10, 12, v10")
            a("v_lshl_add_u32 v10, v3, 4, v10")
            a("s_lshl_b32 s40, s22, 7")
            a("s_lshl_b32 s36, s3, 5")
            a("s_add_u32 s40, s40, s36")
            a("s_lshl_b32 s40, s40, 12")
            a("s_lshl_b32 s36, s23, 8")
            a("s_add_u32 s40, s40, s36")
            for n in range(8):
                a("buffer_load_dwordx4 v[200:203], v10, s[92:95], s40 offen")
                if n < 7: a("s_add_u32 s40, s40, 16384")
            vmA.issue("wp", 8)
            a("s_lshl_b32 s36, s22, 2")
            a("v_mov_b32 v199, s36")
            a("buffer_load_dword v198, v199, s[60:63], 0 offen sc1"); vmA.issue("cnt", 1)
        if k + 2 < 18 and k + 2 >= 12:
            vmA.wait(["S%d" % (k + 2)])
    a("s_barrier")
    stamp(a, 3)
    a("s_load_dwordx4 s[88:91], s[0:1], 32")
    a("v_lshrrev_b32 v10, 4, v2")
    a("v_lshlrev_b32 v95, 8, v3")
    a("v_lshl_add_u32 v95, v10, 6, v95")
    a("s_lshl_b32 s33, s25, 13")
    a("s_add_u32 s52, s59, s33")
    a("s_xor_b32 s33, s33, 8192")
    a("s_add_u32 s53, s59, s33")
    a("s_add_u32 s42, s52, 4096")
    a("s_add_u32 s43, s53, 4096")
    Z2 = ZP
    a("s_waitcnt vmcnt(0)")
    GB = [128, 144, 160, 176]
    a("v_mov_b32 v4, v95")
    def gather():
        for tt in range(4):
            for q in range(4):
                a("buffer_load_dwordx4 %s, v4, s[12:15], s%d offen offset:%d sc1" % (vr(GB[tt] + 4 * q), (52, 42, 53, 43)[tt], 16 * q))
    gather()
    a("s_mov_b32 s40, 0")
    a("s_waitcnt vmcnt(0)")
    a.label("%s_chk" % name)
    a("v_subrev_u32 v11, 16, v198")
    for tt in range(4):
        for r in range(GB[tt] + 1, GB[tt] + 16, 4):
            a("v_or3_b32 v11, v11, v%d, v%d" % (r, r + 2))
    a("v_cmp_gt_i32 vcc, 0, v11")
    a("s_add_u32 s40, s40, 1")
    a("s_cmp_gt_u32 s40, %d" % SPIN_MAX)
    a("s_cbranch_scc1 %s_ok" % name)
    a("s_cbranch_vccz %s_ok" % name)
    a("s_sleep 32")
    a("buffer_load_dword v198, v199, s[60:63], 0 offen sc1")
    a("s_waitcnt vmcnt(0)")
    gather()
    a("s_waitcnt vmcnt(0)")
    a("s_branch %s_chk" % name)
    a.label("%s_ok" % name)
    stamp(a, 5)
    for tt in range(4):
        b = GB[tt]
        for st_ in (8, 4, 2):
            for q in range(0, st_, 2):
                a("v_pk_add_f32 %s, %s, %s" % (vr(b + q, 2), vr(b + q, 2), vr(b + q + st_, 2)))
    emit_xg_reduce(a, [GB[tt] + e for tt in range(4) for e in range(2)], 72)
    for tt in range(4):
        b = GB[tt]
        emit_ln_finish(a, b, b + 1, 2304, b + 2, MR + 2 * tt, b + 4)
        a("v_mul_f32 v%d, -v%d, v%d" % (MR + 2 * tt + 1, b + 2, MR + 2 * tt))
    a("v_lshrrev_b32 v10, 4, v2")
    a("v_lshrrev_b32 v11, 2, v2"); a("v_and_b32 v11, 1, v11"); a("v_lshlrev_b32 v11, 4, v11")
    a("v_lshrrev_b32 v5, 3, v2"); a("v_and_b32 v5, 1, v5"); a("v_lshl_add_u32 v11, v5, 2, v11")
    a("v_and_b32 v5, 3, v2"); a("v_add_u32 v11, v11, v5")
    a("v_mul_u32_u24 v11, 288, v11")
    a("v_lshrrev_b32 v5, 1, v10"); a("v_lshl_add_u32 v11, v5, 4, v11")
    a("v_and_b32 v5, 1, v10")
    a("v_lshl_add_u32 v6, v5, 5, v11")
    a("v_mul_u32_u24 v5, 2304, v5")
    a("v_add_u32 v9, v11, v5")
    a("s_lshl_b32 s33, s23, 5")
    a("s_lshl_b32 s36, s22, 1")
    a("s_add_u32 s33, s33, s36")
    a("s_add_u32 s33, s33, s24")
    a("s_mul_i32 s33, s33, 18432")
    if ZIMG: a("s_add_u32 s33, s33, 0x%x" % ZIMG)
    a("s_mul_i32 s36, s25, 9216")
    a("s_add_u32 s37, s33, s36")
    a("s_xor_b32 s36, s36, 9216")
    a("s_add_u32 s38, s33, s36")
    a("s_add_u32 s39, s37, 128")
    a("s_mul_i32 s36, s25, 160")
    a("s_add_u32 s37, s37, s36")
    a("s_add_u32 s38, s38, s36")
    def norm_pair(nA, ttA, nB, ttB, O):
        for q, (n, tt) in enumerate(((nA, ttA), (nB, ttB))):
            for d in range(2):
                z = Z2 + 2 * n + d; t = T + 4 * q + 2 * d
                a("v_lshlrev_b32 v%d, 16, v%d" % (t, z))
                a("v_and_b32 v%d, 0xffff0000, v%d" % (t + 1, z))
        for q, (n, tt) in enumerate(((nA, ttA), (nB, ttB))):
            for d in range(2):
                t = T + 4 * q + 2 * d
                a("v_pk_fma_f32 %s, %s, %s, %s op_sel:[0,0,1] op_sel_hi:[1,0,1]" % (vr(t, 2), vr(t, 2), vr(MR + 2 * tt, 2), vr(MR + 2 * tt, 2)))
        for q in range(2):
            for d in range(2):
                t = T + 4 * q + 2 * d
                a("v_cvt_pk_bf16_f32 v%d, v%d, v%d" % (O + 2 * q + d, t, t + 1))
        a("s_nop 1")
        a("v_permlane16_swap_b32 v%d, v%d" % (O, O + 2))
        a("v_permlane16_swap_b32 v%d, v%d" % (O + 1, O + 3))
    cnt = 0
    for pr in range(2):
        for tt in range(4):
            O = 200 + 4 * cnt; cnt += 1
            norm_pair(tidx(2 * pr, tt), tt, tidx(2 * pr + 1, tt), tt, O)
            a("s_nop 0")
            a("buffer_store_dwordx4 %s, v6, s[12:15], s%d offen offset:%d" % (vr(O), 37 if tt < 2 else 38, (tt & 1) * 2304 + 64 * pr) + " sc1")
    O = 200 + 4 * cnt
    norm_pair(16, 0, 17, 1, O)
    a("s_nop 0")
    a("buffer_store_dwordx4 %s, v9, s[12:15], s39 offen sc1" % vr(O))
    stamp(a, 6)
    a("s_setprio 3")
    srd(a, 8, 78, 2048 * 2048 * 2)
    a("v_lshrrev_b32 v3, 3, v2")
    a("s_lshl_b32 s24, s3, 5")
    a("v_add_u32 v3, s24, v3")
    a("v_and_b32 v4, 7, v2")
    a("v_lshrrev_b32 v6, 4, v2")
    a("v_xor_b32 v6, v6, v4")
    a("v_lshlrev_b32 v6, 4, v6")
    a("v_lshl_add_u32 v10, v3, 12, v6")
    a("v_xor_b32 v11, 64, v10")
    a("v_add_u32 v11, %d, v11" % (32768 - 1024))
    a("v_add_u32 v12, %d, v10" % (2 * (32768 - 1024)))
    a("v_add_u32 v13, %d, v11" % (2 * (32768 - 1024)))
    a("v_lshlrev_b32 v14, 4, v2")
    a("s_lshl_b32 s26, s22, 19")
    a("s_mul_i32 s27, s23, %d" % (32 * 18432))
    a("s_lshl_b32 s24, s3, 12")
    a("s_add_u32 s27, s27, s24")
    if ZIMG: a("s_add_u32 s27, s27, 0x%x" % ZIMG)
    a("s_lshl_b32 s25, s3, 9")
    a("s_sub_u32 s32, s25, s24")
    a("s_add_u32 s32, s32, 16384")
    a("s_add_u32 s24, s24, %d" % RB)
    a("s_waitcnt vmcnt(0) lgkmcnt(0)")
    a("v_mov_b32 v26, %d" % LC)
    a("v_mov_b32 v27, 1")
    a("s_mov_b64 exec, 1")
    a("ds_add_rtn_u32 v28, v26, v27")
    a("s_waitcnt lgkmcnt(0)")
    a("v_readfirstlane_b32 s36, v28")
    a("s_cmp_lg_u32 s36, 3")
    a("s_cbranch_scc1 %s_nozs" % name)
    a("v_mov_b32 v28, 0")
    a("buffer_store_dword v27, v28, s[12:15], s97 offen sc1")
    a.label("%s_nozs" % name)
    a("s_mov_b64 exec, -1")
    stamp(a, 7)
    srd(a, 16, 88, 576 * 2048 * 2)
    srd(a, 84, 90, 576 * 2)
    for g in range(4):
        a("s_add_u32 s35, s24, %d" % (g * SLOT))
        a("s_mov_b32 m0, s35")
        a("s_add_u32 s36, s26, %d" % (128 * g))
        for n in range(4):
            a("buffer_load_dwordx4 v%d, s[8:11], s36 offen offset:%d lds" % (10 + n, n * 1024))
    a("s_mov_b32 s34, 0")
    a("s_cmp_lg_u32 s3, 0")
    a("s_cbranch_scc1 %s_pl" % name)
    a("v_and_b32 v28, 15, v2")
    a("v_lshlrev_b32 v30, 2, v28")
    a("v_lshlrev_b32 v28, 12, v28")
    a("s_lshl_b32 s52, s23, 8")
    a("s_add_u32 s52, s52, 0x%x" % ZFLG)
    a.label("%s_pz0" % name)
    a("buffer_load_dword v31, v30, s[60:63], 0 offen sc1")
    a("s_add_u32 s34, s34, 1")
    a("s_waitcnt vmcnt(0)")
    a("v_cmp_gt_u32 vcc, 16, v31")
    a("s_cmp_gt_u32 s34, %d" % SPIN_MAX)
    a("s_cbranch_scc1 %s_pz" % name)
    a("s_cbranch_vccz %s_pz" % name)
    a("s_sleep 32")
    a("s_branch %s_pz0" % name)
    a.label("%s_pz" % name)
    a("buffer_load_dword v29, v28, s[12:15], s52 offen sc1")
    a("s_add_u32 s34, s34, 1")
    a("s_waitcnt vmcnt(0)")
    a("v_cmp_ne_u32 vcc, 1, v29")
    a("s_cmp_gt_u32 s34, %d" % SPIN_MAX)
    a("s_cbranch_scc1 %s_pzx" % name)
    a("s_cbranch_vccz %s_pzx" % name)
    a("s_sleep 8")
    a("s_branch %s_pz" % name)
    a.label("%s_pzx" % name)
    a("v_mov_b32 v27, 1")
    a("ds_write_b32 v26, v27 offset:4")
    a("s_branch %s_pgo" % name)
    a.label("%s_pl" % name)
    a("ds_read_b32 v27, v26 offset:4")
    a("s_add_u32 s34, s34, 1")
    a("s_waitcnt lgkmcnt(0)")
    a("v_readfirstlane_b32 s36, v27")
    a("s_cmp_gt_u32 s34, %d" % (SPIN_MAX * 20))
    a("s_cbranch_scc1 %s_pgo" % name)
    a("s_cmp_lg_u32 s36, 0")
    a("s_cbranch_scc1 %s_pgo" % name)
    a("s_sleep 2")
    a("s_branch %s_pl" % name)
    a.label("%s_pgo" % name)
    stamp(a, 8)
    for g in range(4):
        a("s_add_u32 s35, s24, %d" % (g * SLOT + TREG))
        a("s_mov_b32 m0, s35")
        a("s_add_u32 s36, s27, %d" % (18432 * g))
        a("s_add_u32 s37, s36, s32")
        for n in range(4):
            a("buffer_load_dwordx4 v14, s[12:15], s36 offen offset:%d sc1 lds" % (n * 1024))
        a("s_add_u32 s35, s35, s32")
        a("s_mov_b32 m0, s35")
        a("s_mov_b64 exec, 0xffffffff")
        a("buffer_load_dwordx4 v14, s[12:15], s37 offen sc1 lds")
        a("s_mov_b64 exec, -1")
    a("s_add_u32 s26, s26, 512")
    a("s_add_u32 s27, s27, %d" % (4 * 18432))
    a("s_mov_b32 s33, 0")
    a("s_lshl_b32 s43, s2, 2")
    a("s_add_u32 s43, s43, s3")
    a("s_and_b32 s53, s43, 1")
    a("s_sub_u32 s36, s43, 448")
    a("s_lshr_b32 s37, s43, 1")
    a("s_cmp_ge_u32 s43, 896")
    a("s_cselect_b32 s43, s36, s37")
    a("s_cselect_b32 s53, 2, s53")
    a("s_waitcnt vmcnt(15)")
    a("s_barrier")
    a("s_waitcnt vmcnt(10)")
    a("s_barrier")
    a("s_waitcnt vmcnt(5)")
    a("s_barrier")
    a("s_mov_b32 s34, 4")
    def issue2():
        a("s_add_u32 s35, s33, s24")
        a("s_mov_b32 m0, s35")
        a("s_add_u32 s36, s35, %d" % TREG)
        for n in range(4):
            a("buffer_load_dwordx4 v%d, s[8:11], s26 offen offset:%d lds" % (10 + n, n * 1024))
        a("s_mov_b32 m0, s36")
        a("s_add_u32 s37, s27, s32")
        for n in range(4):
            a("buffer_load_dwordx4 v14, s[12:15], s27 offen offset:%d sc1 lds" % (n * 1024))
        a("s_add_u32 s36, s36, s32")
        a("s_mov_b32 m0, s36")
        a("s_mov_b64 exec, 0xffffffff")
        a("buffer_load_dwordx4 v14, s[12:15], s37 offen sc1 lds")
        a("s_mov_b64 exec, -1")
        a("s_add_u32 s26, s26, 128")
        a("s_add_u32 s27, s27, 18432")
        a("s_add_u32 s33, s33, %d" % SLOT)
        a("s_cmp_eq_u32 s33, %d" % (R * SLOT))
        a("s_cselect_b32 s33, 0, s33")
    a.label("%s_lloop" % name)
    issue2()
    a("s_cmp_eq_u32 s34, 18")
    a("s_cbranch_scc1 %s_hk1" % name)
    a("s_cmp_eq_u32 s34, 21")
    a("s_cbranch_scc1 %s_hk2" % name)
    a("s_waitcnt vmcnt(9)")
    a.label("%s_lcont" % name)
    a("s_barrier")
    a("s_add_u32 s34, s34, 1")
    a("s_cmp_lt_u32 s34, 32")
    a("s_cbranch_scc1 %s_lloop" % name)
    a("s_branch %s_ldone" % name)
    a.label("%s_hk1" % name)
    a("v_and_b32 v28, 15, v2")
    a("v_lshlrev_b32 v28, 2, v28")
    a("buffer_load_dword v29, v28, s[60:63], 0 offen offset:128 sc1")
    a("s_waitcnt vmcnt(10)")
    a("s_branch %s_lcont" % name)
    a.label("%s_hk2" % name)
    a("s_mov_b32 s52, 0")
    a.label("%s_hk2l" % name)
    a("v_cmp_gt_u32 vcc, 16, v29")
    a("s_add_u32 s52, s52, 1")
    a("s_cmp_gt_u32 s52, %d" % SPIN_MAX)
    a("s_cbranch_scc1 %s_hk2g" % name)
    a("s_cbranch_vccz %s_hk2g" % name)
    a("s_sleep 16")
    a("buffer_load_dword v29, v28, s[60:63], 0 offen offset:128 sc1")
    a("s_waitcnt vmcnt(0)")
    a("s_branch %s_hk2l" % name)
    a.label("%s_hk2g" % name)
    nconv = emit_conv_loads(a, " sc1")
    a("s_waitcnt vmcnt(%d)" % (9 + nconv))
    a("s_branch %s_lcont" % name)
    a.label("%s_ldone" % name)
    a("s_waitcnt vmcnt(0)")
    a("s_barrier")
    a("s_mov_b32 s26, s53")
    a("s_and_b32 s27, s3, 1")
    a("s_mul_i32 s27, s27, %d" % CJ_SIZE)
    a("s_lshr_b32 s36, s3, 1")
    a("s_mul_i32 s36, s36, %d" % SLOT)
    a("s_add_u32 s27, s27, s36")
    a("s_add_u32 s27, s27, %d" % RB)
    def mid():
        a("s_barrier")
        a("s_setprio 0")
    sv = set(DBG); DBG.discard("stamp")
    emit_conv_job(a, name, mid)
    DBG.update(sv)
    G.stamp_rt(a, 1)
    a.label("%s_end" % name)
    a("s_endpgm")
    return a.text(), kernel_desc(name, 256, 256), (name, 256, 512, LDSB)

def gen_kf7(name="k1_kernel", R=4):
    a = Asm()
    RB = 4096; SLOT = 34816; TREG = 16384; FS = 288; RST = 0
    LDSB = RB + R * SLOT
    LC = 2048
    ZFLG = 0x2D00000
    from gen3 import emit_conv_loads, emit_conv_job, CJ_SIZE
    def capture(f, *args):
        lb = len(a.lines); f(*args); out = a.lines[lb:]; del a.lines[lb:]; return out
    kernel_begin(a, name)
    a("s_load_dwordx2 s[80:81], s[0:1], 0")
    a("s_load_dwordx2 s[4:5], s[0:1], 56")
    a("s_load_dwordx2 s[6:7], s[0:1], 104")
    a("s_load_dwordx2 s[18:19], s[0:1], 96")
    a("s_cmp_ge_u32 s2, 256")
    a("s_cbranch_scc1 %s_end" % name)
    a("v_lshrrev_b32 v1, 6, v0")
    a("v_and_b32 v2, 63, v0")
    a("v_readfirstlane_b32 s3, v1")
    G2.tile_ij(a)
    a("s_lshr_b32 s98, s3, 2")
    a("s_mov_b32 s54x, 0".replace("s54x", "s99"))
    a("s_and_b32 s3, s3, 3")
    a("s_lshr_b32 s24, s3, 1")
    a("s_and_b32 s25, s3, 1")
    a("v_and_b32 v3, 15, v2")
    VT = 204; VF = 208
    def loader_setup():
        a("v_lshrrev_b32 v5, 3, v2")
        a("v_and_b32 v4, 7, v2")
        a("s_lshl_b32 s36, s3, 5")
        a("v_add_u32 v5, s36, v5")
        a("v_lshrrev_b32 v7, 4, v2")
        a("v_xor_b32 v7, v7, v4")
        a("v_mul_u32_u24 v6, 1152, v5")
        a("v_lshl_add_u32 v%d, v7, 4, v6" % VT)
        a("v_xor_b32 v%d, 64, v%d" % (VT + 1, VT))
        a("v_add_u32 v%d, %d, v%d" % (VT + 1, 9216 - 1024, VT + 1))
        a("v_add_u32 v%d, %d, v%d" % (VT + 2, 2 * (9216 - 1024), VT))
        a("v_add_u32 v%d, %d, v%d" % (VT + 3, 2 * (9216 - 1024), VT + 1))
        a("s_lshl_b32 s84, s3, 12")
        a("s_add_u32 s84, s84, %d" % RB)
        a("s_lshl_b32 s85, s3, 9")
        a("s_add_u32 s85, s85, %d" % (RB + TREG + 16384))
    def loader_setup2():
        for n in range(5):
            if n < 4:
                a("s_lshl_b32 s36, s3, 8")
                a("s_add_u32 s36, s36, %d" % (64 * n))
            else:
                a("s_lshl_b32 s36, s3, 5")
                a("s_add_u32 s36, s36, 1024")
            a("v_add_u32 v6, s36, v2")
            a("v_mul_u32_u24 v7, 3641, v6")
            a("v_lshrrev_b32 v7, 16, v7")
            a("v_mul_u32_u24 v8, 18, v7")
            a("v_sub_u32 v8, v6, v8")
            a("v_and_b32 v9, 35, v7")
            a("v_bfe_u32 v6, v7, 2, 2")
            a("v_lshl_add_u32 v9, v6, 3, v9")
            a("v_bfe_u32 v6, v7, 4, 1")
            a("v_lshl_add_u32 v9, v6, 2, v9")
            a("v_mul_u32_u24 v9, 9216, v9")
            a("v_lshl_add_u32 v%d, v8, 4, v9" % (VF + n))
            if 0 < n < 4: a("v_subrev_u32 v%d, %d, v%d" % (VF + n, 1024 * n, VF + n))
    def issueT(g):
        st = g % 9
        a("s_add_u32 s86, s84, %d" % ((g % R) * SLOT))
        a("s_mov_b32 m0, s86")
        a("s_add_u32 s87, s82, %d" % (128 * st))
        for n in range(4):
            a("buffer_load_dwordx4 v%d, s[28:31], s87 offen offset:%d lds" % (VT + n, 1024 * n))
    def issueF(g):
        st = g % 9
        a("s_add_u32 s86, s84, %d" % ((g % R) * SLOT + TREG))
        a("s_mov_b32 m0, s86")
        a("s_add_u32 s87, s83, %d" % (64 * 9216 * st + (4608 if g < 9 else 0)))
        for n in range(4):
            a("buffer_load_dwordx4 v%d, s[8:11], s87 offen offset:%d lds" % (VF + n, 1024 * n))
        a("s_add_u32 s86, s85, %d" % ((g % R) * SLOT))
        a("s_mov_b32 m0, s86")
        a("s_mov_b64 exec, 0xffffffff")
        a("buffer_load_dwordx4 v%d, s[8:11], s87 offen lds" % (VF + 4))
        a("s_mov_b64 exec, -1")
    def srds_main():
        srd(a, 28, 80, 2048 * 576 * 2)
        srd(a, 8, 4, 576 * 4608 * 2)
        srd(a, 12, 6, WS_BYTES)
        srd(a, 60, 18, 256)
        a("s_mul_i32 s82, s22, %d" % (128 * 1152))
        a("s_mul_i32 s83, s23, 288")
    ACC = 128; FB = [16, 52]; CS = 216; ONE = 236
    vTa = [4, 5]; vTb = [6, 7]; vF = 8; vFh = 9
    bTa = [88, 89]; bTb = [90, 91]; bF = 92; bFh = 93
    def mma_setup():
        a("v_lshrrev_b32 v10, 4, v2")
        a("v_lshrrev_b32 v11, 1, v3")
        a("v_xor_b32 v10, v10, v11")
        a("v_lshlrev_b32 v10, 4, v10")
        a("v_lshl_add_u32 v10, v3, 7, v10")
        a("s_lshl_b32 s26, s24, 13")
        a("s_add_u32 s26, s26, %d" % RB)
        a("v_add_u32 v10, s26, v10")
        a("s_lshl_b32 s26, s25, 12")
        a("v_add_u32 v%d, s26, v10" % bTa[0])
        a("s_xor_b32 s26, s26, 4096")
        a("v_add_u32 v%d, s26, v10" % bTb[0])
        a("v_xor_b32 v%d, 64, v%d" % (bTa[1], bTa[0]))
        a("v_xor_b32 v%d, 64, v%d" % (bTb[1], bTb[0]))
        a("v_lshrrev_b32 v10, 2, v2")
        a("v_mul_u32_u24 v10, %d, v10" % FS)
        a("v_and_b32 v11, 3, v2")
        a("v_lshl_add_u32 v10, v11, 3, v10")
        a("v_add_u32 v10, %d, v10" % (RB + TREG))
        a("s_mul_i32 s26, s25, 160")
        a("v_add_u32 v%d, s26, v10" % bF)
        a("v_add_u32 v%d, 128, v10" % bFh)
        for r in range(ACC, ACC + 72): a("v_mov_b32 v%d, 0" % r)
        for r in range(CS, CS + 20): a("v_mov_b32 v%d, 0" % r)
        for r in range(ONE, ONE + 4): a("v_mov_b32 v%d, 0x3f803f80" % r)
    def mma_addr(slot):
        a("s_mov_b32 s27, %d" % (slot * SLOT))
        for d, s_ in ((vTa[0], bTa[0]), (vTb[0], bTb[0]), (vTa[1], bTa[1]), (vTb[1], bTb[1]), (vF, bF), (vFh, bFh)):
            a("v_add_u32 v%d, s27, v%d" % (d, s_))
    core = G.Core(a, ACC, FB[0], FB[1], FS, TREG, vTa, vTb, vF, vFh)
    trk = core.trk
    a("s_cmp_eq_u32 s98, 0")
    a("s_cbranch_scc1 %s_A0" % name)
    a("s_setprio 3")
    loader_setup()
    a("s_waitcnt lgkmcnt(0)")
    srds_main()
    vm = VmTracker(a)
    def issue(g, vmx):
        issueT(g); issueF(g); vmx.issue("S%d" % g, 9)
    issueT(0)
    loader_setup2()
    issueF(0); vm.issue("S0", 9)
    issue(1, vm); issue(2, vm); issue(3, vm)
    a("s_add_u32 s3, s3, 4"); stamp_setup(a, 1); stamp(a, 0); a("s_sub_u32 s3, s3, 4")
    mma_setup()
    RA = 96; XB = 112
    for r in range(RA, RA + 16): a("v_mov_b32 v%d, 0" % r)
    a("v_lshrrev_b32 v10, 4, v2")
    a("v_lshrrev_b32 v11, 1, v3")
    a("v_xor_b32 v10, v10, v11")
    a("v_lshlrev_b32 v10, 4, v10")
    a("v_lshl_add_u32 v10, v3, 7, v10")
    a("v_add_u32 v12, s84, v10")
    a("v_xor_b32 v13, 64, v12")
    def rs_rd(g):
        a("v_add_u32 v10, %d, v12" % ((g % R) * SLOT))
        a("v_add_u32 v11, %d, v13" % ((g % R) * SLOT))
        for h in range(2):
            for n in range(2):
                a("ds_read_b128 %s, v%d offset:%d" % (vr(XB + 8 * h + 4 * n), 10 + h, 2048 * n))
    def rs_do():
        for h in range(2):
            for n in range(2):
                x = XB + 8 * h + 4 * n
                a("v_mfma_f32_16x16x32_bf16 %s, %s, %s, %s" % (vr(RA + 4 * n), vr(ONE), vr(x), vr(RA + 4 * n)))
                a("v_mfma_f32_16x16x32_bf16 %s, %s, %s, %s" % (vr(RA + 8 + 4 * n), vr(x), vr(x), vr(RA + 8 + 4 * n)))
    def interleave(dma, comp, vmx=None):
        groups = []; cur = []
        for l in dma:
            cur.append(l)
            if "buffer_load" in l and not any("exec, 0xffffffff" in x for x in cur[-2:]):
                groups.append(cur); cur = []
            elif "exec, -1" in l:
                groups.append(cur); cur = []
        if cur: groups.append(cur)
        ns = max(1, len(groups))
        per = (len(comp) + ns - 1) // ns
        for g in groups:
            a.lines.extend(g)
            a.lines.extend(comp[:per]); comp = comp[per:]
        a.lines.extend(comp)
    vm.wait(["S0"])
    a("s_barrier")
    stamp(a, 1)
    rs_rd(0)
    vm.wait(["S1"])
    a("s_barrier")
    for k in range(9):
        a("s_waitcnt lgkmcnt(0)")
        dma = capture(lambda: (issueT(k + 3), issueF(k + 3))) if k >= 1 else []
        interleave(dma, capture(rs_do))
        if k >= 1: vm.issue("S%d" % (k + 3), 9)
        if k < 8:
            rs_rd(k + 1)
        else:
            a("s_nop 7")
            a("v_lshrrev_b32 v10, 4, v2")
            a("v_lshrrev_b32 v11, 2, v3")
            a("v_and_b32 v12, 3, v3")
            for n in range(2):
                G_ = RA + 8 + 4 * n
                for r in range(1, 4):
                    a("v_cmp_eq_u32 vcc, %d, v12" % r)
                    a("s_nop 1")
                    a("v_cndmask_b32 v%d, v%d, v%d, vcc" % (G_, G_, G_ + r))
            ML = 112
            for n in range(2):
                emit_ln_finish(a, RA + 4 * n, RA + 8 + 4 * n, 576, ML + 2 * n, ML + 2 * n + 1, 120)
                a("v_mov_b32 v%d, v%d" % (117 + 2 * n, ML + 2 * n + 1))
                a("v_sub_f32 v%d, 0, v%d" % (116 + 2 * n, ML + 2 * n))
            a("s_lshl_b32 s35, s3, 8")
            a("v_lshlrev_b32 v13, 3, v3")
            a("v_add_u32 v12, s35, v13")
            a("v_cmp_eq_u32 vcc, v10, v11")
            a("s_and_saveexec_b64 s[36:37], vcc")
            for n in range(2):
                a("ds_write_b64 v12, %s offset:%d" % (vr(116 + 2 * n, 2), RST + 128 * n))
            a("s_mov_b64 exec, s[36:37]")
            a("s_cmp_lg_u32 s23, 0")
            a("s_cbranch_scc1 %s_nost1" % name)
            a("s_lshl_b32 s35, s22, 7")
            a("s_lshl_b32 s36, s3, 5")
            a("s_add_u32 s35, s35, s36")
            a("s_lshl_b32 s35, s35, 3")
            a("s_add_u32 s35, s35, 0x%x" % STATS1)
            a("v_mov_b32 v11, 0x7ffffff0")
            a("v_cndmask_b32 v13, v11, v13, vcc")
            for n in range(2):
                a("buffer_store_dwordx2 %s, v13, s[12:15], s35 offen offset:%d" % (vr(ML + 2 * n, 2), 128 * n))
            a.label("%s_nost1" % name)
            mma_addr(9 % R)
            a("s_mov_b32 s33, 0")
            a("s_setprio 0")
        vm.wait(["S%d" % (k + 2)], "lgkmcnt(0)" if k == 8 else "")
        if k < 8: a("s_barrier")
    a("s_branch %s_mma" % name)
    a.label("%s_A0" % name)
    emit_code_prefetch(a, name)
    a("s_load_dwordx4 s[64:67], s[0:1], 8")
    a("s_load_dwordx2 s[76:77], s[0:1], 24")
    a("s_load_dwordx2 s[78:79], s[0:1], 64")
    mma_setup()
    loader_setup(); loader_setup2()
    a("s_waitcnt lgkmcnt(0)")
    srds_main()
    srd(a, 68, 66, 2048 * 576 * 2)
    a("s_mov_b32 s88, s64"); a("s_mov_b32 s89, s65")
    srd(a, 64, 88, 2048 * 576 * 2)
    srd(a, 72, 76, 576 * 8)
    stamp_setup(a, 1); stamp(a, 0)
    def gran_addr():
        a("v_lshrrev_b32 v10, 4, v2")
        a("s_lshl_b32 s36, s25, 1")
        a("v_add_u32 v11, s36, v10")
        a("v_and_b32 v11, 3, v11")
        a("v_lshl_add_u32 v11, v11, 4, v3")
        a("v_lshlrev_b32 v94, 8, v11")
        a("s_lshl_b32 s59, s22, 7")
        a("s_lshl_b32 s36, s24, 6")
        a("s_add_u32 s59, s59, s36")
        a("s_lshl_b32 s59, s59, 8")
        a("s_add_u32 s59, s59, 0x%x" % STATS2)
        a("s_lshl_b32 s36, s23, 1")
        a("s_add_u32 s36, s36, s25")
        a("s_lshl_b32 s36, s36, 3")
        a("s_add_u32 s58, s36, s59")
    gran_addr()
    a("v_mov_b32 v12, 0"); a("v_mov_b32 v13, 0x80000000")
    a("buffer_store_dwordx2 v[12:13], v94, s[12:15], s58 offen sc1")
    a("s_lshl_b32 s36, s22, 4")
    a("s_add_u32 s36, s36, s23")
    a("s_lshl_b32 s36, s36, 8")
    a("s_add_u32 s97, s36, 0x%x" % ZFLG)
    a("v_mov_b32 v10, %d" % LC)
    a("v_mov_b32 v12, 0"); a("v_mov_b32 v13, 0")
    a("s_mov_b64 exec, 1")
    a("buffer_store_dword v12, v12, s[12:15], s97 offen sc1")
    a("s_mov_b64 exec, -1")
    a("ds_write_b64 v10, v[12:13]")
    a("ds_write_b64 v10, v[12:13] offset:8")
    mma_addr(0)
    a("s_mov_b32 s33, 0")
    a("s_waitcnt lgkmcnt(0)")
    a("s_barrier")
    stamp(a, 1)
    a.label("%s_mma" % name)
    core.prime(0, core.reads(0, 0))
    trk.drain()
    nocs = [False]
    def mfmas(buf):
        L = []
        for ft in range(5):
            A = core.F(buf, ft)
            for tt in range(4 if ft < 4 else 2):
                c = core.accr(ft, tt); B = core.T(buf, tt)
                L.append(("v_mfma_f32_16x16x32_bf16 %s, %s, %s, %s" % (vr(c), vr(A), vr(B), vr(c)), list(range(A, A + 4)) + list(range(B, B + 4))))
            if not nocs[0]: L.append(("v_mfma_f32_16x16x32_bf16 %s, %s, %s, %s" % (vr(CS + 4 * ft), vr(A), vr(ONE), vr(CS + 4 * ft)), list(range(A, A + 4))))
        return L
    def phase(buf, pend):
        for (m, regs) in mfmas(buf):
            trk.need(regs)
            a(m)
            while pend:
                k, t = pend.pop(0)
                if k == "x":
                    a(t)
                    if t.startswith("s_"): continue
                else:
                    a(t[0]); trk.issue(t[1])
                break
        for k, t in pend:
            if k == "x": a(t)
            else: a(t[0]); trk.issue(t[1])
    def iteration(vw=True):
        if vw: a("s_waitcnt vmcnt(0)")
        a("s_barrier")
        rd = [("r", t) for t in core.reads(1, 1)]
        upd = ["s_add_u32 s27, s27, %d" % SLOT, "s_cmp_eq_u32 s27, %d" % (R * SLOT), "s_cselect_b32 s27, 0, s27"]
        tail = ["v_add_u32 v%d, s27, v%d" % (d, s_) for d, s_ in ((vTa[0], bTa[0]), (vF, bF), (vTb[0], bTb[0]), (vFh, bFh))]
        phase(0, rd[:1] + [("x", u) for u in upd] + rd[1:] + [("x", u) for u in tail])
        rd = [("r", t) for t in core.reads(0, 0)]
        tail = ["v_add_u32 v%d, s27, v%d" % (d, s_) for d, s_ in ((vTa[1], bTa[1]), (vTb[1], bTb[1]))] + ["s_add_u32 s33, s33, 1"]
        phase(1, rd + [("x", u) for u in tail])
    a.label("%s_cloop" % name)
    lb = len(a.lines); iteration(); st = copy.deepcopy(trk.out); del a.lines[lb:]; trk.out = copy.deepcopy(st)
    iteration()
    assert [sorted(x) for x in trk.out] == [sorted(x) for x in st]
    a("s_cmp_lt_u32 s33, 9")
    a("s_cbranch_scc1 %s_cloop" % name)
    trk.drain()
    stamp(a, 2)
    MR = 100; T = 72; ZP = 16
    def epi_in():
        gelu_consts(a)
        a("s_lshl_b32 s36, s24, 9")
        a("s_lshl_b32 s37, s25, 8")
        a("s_add_u32 s38, s36, s37")
        a("s_xor_b32 s37, s37, 256")
        a("s_add_u32 s39, s36, s37")
        a("v_lshlrev_b32 v10, 3, v3")
        a("v_add_u32 v11, s38, v10")
        a("ds_read_b64 %s, v11 offset:%d" % (vr(MR, 2), RST))
        a("ds_read_b64 %s, v11 offset:%d" % (vr(MR + 2, 2), RST + 128))
        a("v_add_u32 v11, s39, v10")
        a("ds_read_b64 %s, v11 offset:%d" % (vr(MR + 4, 2), RST))
        a("ds_read_b64 %s, v11 offset:%d" % (vr(MR + 6, 2), RST + 128))
        a("s_waitcnt lgkmcnt(0)")
    S = [108, 110, 52, 54]; Q = [109, 111, 53, 55]
    def gelu_ft(ft, stats):
        tts = range(4 if ft < 4 else 2)
        emit_fold_gelu(a, [(core.accr(ft, tt), CS + 4 * ft, MR + 2 * tt, ZP + 2 * tidx(ft, tt)) for tt in tts], T)
        if stats:
            for d in range(2):
                for tt in tts:
                    p = ZP + 2 * tidx(ft, tt) + d
                    a("v_dot2_f32_bf16 v%d, v%d, v%d, v%d" % (S[tt], p, ONE, S[tt]))
                    a("v_dot2_f32_bf16 v%d, v%d, v%d, v%d" % (Q[tt], p, p, Q[tt]))
    a("s_cmp_eq_u32 s98, 0")
    a("s_cbranch_scc1 %s_A1" % name)
    a("s_barrier")
    a("s_load_dwordx4 s[64:67], s[0:1], 8")
    a("s_load_dwordx2 s[76:77], s[0:1], 24")
    a("s_load_dwordx2 s[94:95], s[0:1], 80")
    a("s_load_dwordx2 s[92:93], s[0:1], 72")
    epi_in()
    srd(a, 68, 66, 2048 * 576 * 2)
    a("s_mov_b32 s88, s64"); a("s_mov_b32 s89, s65")
    srd(a, 64, 88, 2048 * 576 * 2)
    srd(a, 72, 76, 576 * 8)
    srd(a, 76, 94, 2304 * 576 * 2)
    srd(a, 28, 92, 2048 * 2)
    a("v_and_b32 v0, 255, v0")
    a("s_mov_b32 s41, s2")
    KDB = 240
    emit_kv_loads(a, 112, 240, 248, 252, 253)
    for ft in range(5): gelu_ft(ft, False)
    Z1R = 200; BI = 236
    for r_ in range(36): a("v_mov_b32 v%d, v%d" % (Z1R + r_, ZP + r_))
    stamp(a, 3)
    a("s_waitcnt vmcnt(0)")
    for n in range(11): a("v_mov_b32 v%d, v%d" % (16 + n, 112 + n))
    for n in range(8): a("v_mov_b32 v%d, v%d" % (32 + n, 240 + n))
    for n in range(4): a("v_mov_b32 v%d, v%d" % (44 + n, 248 + n))
    a("v_mov_b32 v56, v252"); a("v_mov_b32 v57, v253")
    for r_ in range(6): a("v_mov_b32 v%d, v%d" % (240 + r_, 88 + r_))
    a.label("%s_kvb" % name)
    emit_kv_compute(a, wait=False, store=False)
    a("s_mov_b32 s39, 0x%x" % KVT)
    a("buffer_store_dwordx4 v[120:123], v12, s[12:15], s39 offen sc1")
    a("buffer_store_dwordx4 v[124:127], v13, s[12:15], s39 offen sc1")
    a("s_add_u32 s41, s41, 256")
    a("s_cmp_ge_u32 s41, 288")
    a("s_cbranch_scc1 %s_kvbd" % name)
    emit_kv_loads(a)
    a("s_waitcnt vmcnt(0)")
    a("s_branch %s_kvb" % name)
    a.label("%s_kvbd" % name)
    for r_ in range(6): a("v_mov_b32 v%d, v%d" % (88 + r_, 240 + r_))
    a("s_mov_b32 s42, s2")
    emit_wot_loads(a, 100, 112, 720, 3)
    a("s_lshl_b32 s36, s22, 7")
    a("s_lshl_b32 s37, s24, 6")
    a("s_add_u32 s36, s36, s37")
    a("v_lshlrev_b32 v11, 1, v3")
    a("s_lshl_b32 s37, s25, 6")
    a("s_lshl_b32 s38, s36, 1")
    a("s_add_u32 s39, s38, s37")
    a("s_xor_b32 s37, s37, 64")
    a("s_add_u32 s36, s38, s37")
    a("buffer_load_ushort v96, v11, s[28:31], s39 offen")
    a("buffer_load_ushort v97, v11, s[28:31], s39 offen offset:32")
    a("buffer_load_ushort v98, v11, s[28:31], s36 offen")
    a("buffer_load_ushort v99, v11, s[28:31], s36 offen offset:32")
    for r in range(ACC, ACC + 72): a("v_mov_b32 v%d, 0" % r)
    a("v_lshrrev_b32 v10, 2, v2")
    a("v_lshlrev_b32 v10, 5, v10")
    a("v_and_b32 v11, 3, v2")
    a("v_lshl_add_u32 v10, v11, 3, v10")
    a("v_add_u32 v10, %d, v10" % (RB + TREG))
    a("s_mul_i32 s26, s25, 10240")
    a("v_add_u32 v%d, s26, v10" % bF)
    a("v_add_u32 v%d, 8192, v10" % bFh)
    core.FS = 32; core.FT = 2048
    mma_addr(0)
    a("s_mov_b32 s33, 0")
    stamp(a, 4)
    a("s_barrier")
    stamp(a, 5)
    core.prime(0, core.reads(0, 0))
    trk.drain()
    nocs[0] = True
    a.label("%s_gloop" % name)
    lb = len(a.lines); iteration(False); st = copy.deepcopy(trk.out); del a.lines[lb:]; trk.out = copy.deepcopy(st)
    iteration(False)
    assert [sorted(x) for x in trk.out] == [sorted(x) for x in st]
    a("s_cmp_lg_u32 s33, 3")
    a("s_cbranch_scc1 %s_ghk" % name)
    a("s_waitcnt vmcnt(0)")
    for n in range(3):
        a("buffer_store_dwordx4 %s, v%d, s[12:15], s40 offen" % (vr(100 + 4 * n), 112 + n))
    for tt in range(4): a("v_lshlrev_b32 v%d, 16, v%d" % (BI + 2 * tt, 96 + tt))
    a("v_mov_b32 v10, %d" % (LC + 8))
    a("v_mov_b32 v11, 1")
    a("s_mov_b64 exec, 1")
    a("ds_add_rtn_u32 v12, v10, v11")
    a("s_waitcnt lgkmcnt(0)")
    a("v_readfirstlane_b32 s36, v12")
    a("s_cmp_lg_u32 s36, 3")
    a("s_cbranch_scc1 %s_nokvs" % name)
    a("s_and_b32 s36, s2, 15")
    a("s_lshl_b32 s36, s36, 2")
    a("s_add_u32 s36, s36, 128")
    a("v_mov_b32 v10, s36")
    a("buffer_atomic_add v11, v10, s[60:63], 0 offen sc1")
    a.label("%s_nokvs" % name)
    a("s_mov_b64 exec, -1")
    a.label("%s_ghk" % name)
    a("s_cmp_lt_u32 s33, 32")
    a("s_cbranch_scc1 %s_gloop" % name)
    trk.drain()
    stamp(a, 6)
    G3.emit_k2_epilogue2(a, core, Z1R, BI)
    stamp(a, 7)
    G.stamp_rt(a, 1)
    a("s_branch %s_end" % name)
    a.label("%s_A1" % name)
    a("s_setprio 2")
    vmA = VmTracker(a)
    PB = 132
    def aux_head():
        epi_in()
        for tt in range(4):
            a("v_mov_b32 v%d, 0" % S[tt]); a("v_mov_b32 v%d, 0" % Q[tt])
    def aux_pub():
        a("s_nop 2")
        emit_xg_reduce(a, S + Q, 72)
        a("v_lshrrev_b32 v10, 4, v2")
        for g in range(1, 4):
            a("v_cmp_eq_u32 vcc, %d, v10" % g)
            a("s_nop 1")
            a("v_cndmask_b32 v%d, v%d, v%d, vcc" % (S[0], S[0], S[g]))
            a("v_cndmask_b32 v%d, v%d, v%d, vcc" % (Q[0], Q[0], Q[g]))
        a("v_and_b32 v%d, 0x7fffffff, v%d" % (Q[0], Q[0]))
        a("buffer_store_dwordx2 v[%d:%d], v94, s[12:15], s58 offen sc1" % (S[0], Q[0]))
    chunks = [capture(aux_head) + capture(gelu_ft, 0, True), capture(gelu_ft, 1, True), capture(gelu_ft, 2, True),
              capture(gelu_ft, 3, True), capture(gelu_ft, 4, True) + capture(aux_pub)]
    KD = 172
    for k in range(9, 18):
        a("s_barrier")
        if k == 9:
            a("s_cmp_lg_u32 s3, 0")
            a("s_cbranch_scc1 %s_nosig" % name)
            a("v_mov_b32 v10, 1")
            a("s_lshl_b32 s36, s22, 2")
            a("v_mov_b32 v11, s36")
            a("s_mov_b64 exec, 1")
            a("buffer_atomic_add v10, v11, s[60:63], 0 offen sc1")
            a("s_mov_b64 exec, -1")
            a.label("%s_nosig" % name)
        g = k + 3
        dma = capture(lambda: (issueT(g), issueF(g))) if g < 18 else []
        comp = chunks[k - 9] if k - 9 < len(chunks) else []
        interleave(dma, comp)
        if k == 13: vmA.issue("pub", 1)
        if g < 18: vmA.issue("S%d" % g, 9)
        if k == 14:
            srd(a, 92, 78, 2048 * 2048 * 2)
            a("v_lshrrev_b32 v10, 4, v2")
            a("v_lshlrev_b32 v10, 12, v10")
            a("v_lshl_add_u32 v10, v3, 4, v10")
            a("s_lshl_b32 s40, s22, 7")
            a("s_lshl_b32 s36, s3, 5")
            a("s_add_u32 s40, s40, s36")
            a("s_lshl_b32 s40, s40, 12")
            a("s_lshl_b32 s36, s23, 8")
            a("s_add_u32 s40, s40, s36")
            for n in range(8):
                a("buffer_load_dwordx4 v[200:203], v10, s[92:95], s40 offen")
                if n < 7: a("s_add_u32 s40, s40, 16384")
            vmA.issue("wp", 8)
            a("s_lshl_b32 s36, s22, 2")
            a("v_mov_b32 v199, s36")
            a("buffer_load_dword v198, v199, s[60:63], 0 offen sc1"); vmA.issue("cnt", 1)
        if k + 2 < 18 and k + 2 >= 12:
            vmA.wait(["S%d" % (k + 2)])
    a("s_barrier")
    stamp(a, 3)
    a("s_load_dwordx4 s[88:91], s[0:1], 32")
    a("v_lshrrev_b32 v10, 4, v2")
    a("v_lshlrev_b32 v95, 8, v3")
    a("v_lshl_add_u32 v95, v10, 6, v95")
    a("s_lshl_b32 s33, s25, 13")
    a("s_add_u32 s52, s59, s33")
    a("s_xor_b32 s33, s33, 8192")
    a("s_add_u32 s53, s59, s33")
    a("s_add_u32 s42, s52, 4096")
    a("s_add_u32 s43, s53, 4096")
    Z2 = ZP
    a("s_waitcnt vmcnt(0)")
    GB = [128, 144, 160, 176]
    a("v_mov_b32 v4, v95")
    def gather():
        for tt in range(4):
            for q in range(4):
                a("buffer_load_dwordx4 %s, v4, s[12:15], s%d offen offset:%d sc1" % (vr(GB[tt] + 4 * q), (52, 42, 53, 43)[tt], 16 * q))
    gather()
    a("s_mov_b32 s40, 0")
    a("s_waitcnt vmcnt(0)")
    a.label("%s_chk" % name)
    a("v_subrev_u32 v11, 16, v198")
    for tt in range(4):
        for r in range(GB[tt] + 1, GB[tt] + 16, 4):
            a("v_or3_b32 v11, v11, v%d, v%d" % (r, r + 2))
    a("v_cmp_gt_i32 vcc, 0, v11")
    a("s_add_u32 s40, s40, 1")
    a("s_cmp_gt_u32 s40, %d" % SPIN_MAX)
    a("s_cbranch_scc1 %s_ok" % name)
    a("s_cbranch_vccz %s_ok" % name)
    a("s_sleep 32")
    a("buffer_load_dword v198, v199, s[60:63], 0 offen sc1")
    a("s_waitcnt vmcnt(0)")
    gather()
    a("s_waitcnt vmcnt(0)")
    a("s_branch %s_chk" % name)
    a.label("%s_ok" % name)
    stamp(a, 5)
    for tt in range(4):
        b = GB[tt]
        for st_ in (8, 4, 2):
            for q in range(0, st_, 2):
                a("v_pk_add_f32 %s, %s, %s" % (vr(b + q, 2), vr(b + q, 2), vr(b + q + st_, 2)))
    emit_xg_reduce(a, [GB[tt] + e for tt in range(4) for e in range(2)], 72)
    for tt in range(4):
        b = GB[tt]
        emit_ln_finish(a, b, b + 1, 2304, b + 2, MR + 2 * tt, b + 4)
        a("v_mul_f32 v%d, -v%d, v%d" % (MR + 2 * tt + 1, b + 2, MR + 2 * tt))
    a("v_lshrrev_b32 v10, 4, v2")
    a("v_lshrrev_b32 v11, 2, v2"); a("v_and_b32 v11, 1, v11"); a("v_lshlrev_b32 v11, 4, v11")
    a("v_lshrrev_b32 v5, 3, v2"); a("v_and_b32 v5, 1, v5"); a("v_lshl_add_u32 v11, v5, 2, v11")
    a("v_and_b32 v5, 3, v2"); a("v_add_u32 v11, v11, v5")
    a("v_and_b32 v5, 1, v10")
    a("v_lshl_add_u32 v11, v5, 3, v11")
    a("v_lshlrev_b32 v11, 5, v11")
    a("v_lshrrev_b32 v5, 1, v10")
    a("v_lshl_add_u32 v6, v5, 4, v11")
    a("s_lshl_b32 s33, s23, 5")
    a("s_lshl_b32 s36, s22, 1")
    a("s_add_u32 s33, s33, s36")
    a("s_add_u32 s33, s33, s24")
    a("s_mul_i32 s33, s33, 18432")
    if ZIMG: a("s_add_u32 s33, s33, 0x%x" % ZIMG)
    a("s_lshl_b32 s36, s25, 10")
    a("s_add_u32 s39, s33, s36")
    a("s_add_u32 s39, s39, 8192")
    a("s_mul_i32 s38, s25, 10240")
    a("s_add_u32 s33, s33, s38")
    a("s_add_u32 s37, s33, s36")
    a("s_xor_b32 s36, s36, 1024")
    a("s_add_u32 s38, s33, s36")
    a("s_add_u32 s33, s37, 4096")
    a("s_add_u32 s36, s38, 4096")
    def norm_pair(nA, ttA, nB, ttB, O):
        for q, (n, tt) in enumerate(((nA, ttA), (nB, ttB))):
            for d in range(2):
                z = Z2 + 2 * n + d; t = T + 4 * q + 2 * d
                a("v_lshlrev_b32 v%d, 16, v%d" % (t, z))
                a("v_and_b32 v%d, 0xffff0000, v%d" % (t + 1, z))
        for q, (n, tt) in enumerate(((nA, ttA), (nB, ttB))):
            for d in range(2):
                t = T + 4 * q + 2 * d
                a("v_pk_fma_f32 %s, %s, %s, %s op_sel:[0,0,1] op_sel_hi:[1,0,1]" % (vr(t, 2), vr(t, 2), vr(MR + 2 * tt, 2), vr(MR + 2 * tt, 2)))
        for q in range(2):
            for d in range(2):
                t = T + 4 * q + 2 * d
                a("v_cvt_pk_bf16_f32 v%d, v%d, v%d" % (O + 2 * q + d, t, t + 1))
        a("s_nop 1")
        a("v_permlane16_swap_b32 v%d, v%d" % (O, O + 2))
        a("v_permlane16_swap_b32 v%d, v%d" % (O + 1, O + 3))
    cnt = 0
    for ft in range(4):
        for pp in range(2):
            O = 200 + 4 * cnt; cnt += 1
            norm_pair(tidx(ft, 2 * pp), 2 * pp, tidx(ft, 2 * pp + 1), 2 * pp + 1, O)
            a("s_nop 0")
            a("buffer_store_dwordx4 %s, v6, s[12:15], s%d offen offset:%d sc1" % (vr(O), ((37, 38), (33, 36))[ft >> 1][pp], (ft & 1) * 2048))
    O = 200 + 4 * cnt
    norm_pair(16, 0, 17, 1, O)
    a("s_nop 0")
    a("buffer_store_dwordx4 %s, v6, s[12:15], s39 offen sc1" % vr(O))
    stamp(a, 6)
    a("s_setprio 3")
    srd(a, 8, 78, 2048 * 2048 * 2)
    a("v_lshrrev_b32 v3, 3, v2")
    a("s_lshl_b32 s24, s3, 5")
    a("v_add_u32 v3, s24, v3")
    a("v_and_b32 v4, 7, v2")
    a("v_lshrrev_b32 v6, 4, v2")
    a("v_xor_b32 v6, v6, v4")
    a("v_lshlrev_b32 v6, 4, v6")
    a("v_lshl_add_u32 v10, v3, 12, v6")
    a("v_xor_b32 v11, 64, v10")
    a("v_add_u32 v11, %d, v11" % (32768 - 1024))
    a("v_add_u32 v12, %d, v10" % (2 * (32768 - 1024)))
    a("v_add_u32 v13, %d, v11" % (2 * (32768 - 1024)))
    a("v_lshlrev_b32 v14, 4, v2")
    a("s_lshl_b32 s26, s22, 19")
    a("s_mul_i32 s27, s23, %d" % (32 * 18432))
    a("s_lshl_b32 s24, s3, 12")
    a("s_add_u32 s27, s27, s24")
    if ZIMG: a("s_add_u32 s27, s27, 0x%x" % ZIMG)
    a("s_lshl_b32 s25, s3, 9")
    a("s_sub_u32 s32, s25, s24")
    a("s_add_u32 s32, s32, 16384")
    a("s_add_u32 s24, s24, %d" % RB)
    a("s_waitcnt vmcnt(0) lgkmcnt(0)")
    a("v_mov_b32 v26, %d" % LC)
    a("v_mov_b32 v27, 1")
    a("s_mov_b64 exec, 1")
    a("ds_add_rtn_u32 v28, v26, v27")
    a("s_waitcnt lgkmcnt(0)")
    a("v_readfirstlane_b32 s36, v28")
    a("s_cmp_lg_u32 s36, 3")
    a("s_cbranch_scc1 %s_nozs" % name)
    a("v_mov_b32 v28, 0")
    a("buffer_store_dword v27, v28, s[12:15], s97 offen sc1")
    a.label("%s_nozs" % name)
    a("s_mov_b64 exec, -1")
    stamp(a, 7)
    srd(a, 16, 88, 576 * 2048 * 2)
    srd(a, 84, 90, 576 * 2)
    for g in range(4):
        a("s_add_u32 s35, s24, %d" % (g * SLOT))
        a("s_mov_b32 m0, s35")
        a("s_add_u32 s36, s26, %d" % (128 * g))
        for n in range(4):
            a("buffer_load_dwordx4 v%d, s[8:11], s36 offen offset:%d lds" % (10 + n, n * 1024))
    a("s_mov_b32 s34, 0")
    a("s_cmp_lg_u32 s3, 0")
    a("s_cbranch_scc1 %s_pl" % name)
    a("v_and_b32 v28, 15, v2")
    a("v_lshlrev_b32 v30, 2, v28")
    a("v_lshlrev_b32 v28, 12, v28")
    a("s_lshl_b32 s52, s23, 8")
    a("s_add_u32 s52, s52, 0x%x" % ZFLG)
    a.label("%s_pz0" % name)
    a("buffer_load_dword v31, v30, s[60:63], 0 offen sc1")
    a("s_add_u32 s34, s34, 1")
    a("s_waitcnt vmcnt(0)")
    a("v_cmp_gt_u32 vcc, 16, v31")
    a("s_cmp_gt_u32 s34, %d" % SPIN_MAX)
    a("s_cbranch_scc1 %s_pz" % name)
    a("s_cbranch_vccz %s_pz" % name)
    a("s_sleep 32")
    a("s_branch %s_pz0" % name)
    a.label("%s_pz" % name)
    a("buffer_load_dword v29, v28, s[12:15], s52 offen sc1")
    a("s_add_u32 s34, s34, 1")
    a("s_waitcnt vmcnt(0)")
    a("v_cmp_ne_u32 vcc, 1, v29")
    a("s_cmp_gt_u32 s34, %d" % SPIN_MAX)
    a("s_cbranch_scc1 %s_pzx" % name)
    a("s_cbranch_vccz %s_pzx" % name)
    a("s_sleep 8")
    a("s_branch %s_pz" % name)
    a.label("%s_pzx" % name)
    a("v_mov_b32 v27, 1")
    a("ds_write_b32 v26, v27 offset:4")
    a("s_branch %s_pgo" % name)
    a.label("%s_pl" % name)
    a("ds_read_b32 v27, v26 offset:4")
    a("s_add_u32 s34, s34, 1")
    a("s_waitcnt lgkmcnt(0)")
    a("v_readfirstlane_b32 s36, v27")
    a("s_cmp_gt_u32 s34, %d" % (SPIN_MAX * 20))
    a("s_cbranch_scc1 %s_pgo" % name)
    a("s_cmp_lg_u32 s36, 0")
    a("s_cbranch_scc1 %s_pgo" % name)
    a("s_sleep 2")
    a("s_branch %s_pl" % name)
    a.label("%s_pgo" % name)
    stamp(a, 8)
    for g in range(4):
        a("s_add_u32 s35, s24, %d" % (g * SLOT + TREG))
        a("s_mov_b32 m0, s35")
        a("s_add_u32 s36, s27, %d" % (18432 * g))
        a("s_add_u32 s37, s36, s32")
        for n in range(4):
            a("buffer_load_dwordx4 v14, s[12:15], s36 offen offset:%d sc1 lds" % (n * 1024))
        a("s_add_u32 s35, s35, s32")
        a("s_mov_b32 m0, s35")
        a("s_mov_b64 exec, 0xffffffff")
        a("buffer_load_dwordx4 v14, s[12:15], s37 offen sc1 lds")
        a("s_mov_b64 exec, -1")
    a("s_add_u32 s26, s26, 512")
    a("s_add_u32 s27, s27, %d" % (4 * 18432))
    a("s_mov_b32 s33, 0")
    a("s_lshl_b32 s43, s2, 2")
    a("s_add_u32 s43, s43, s3")
    a("s_and_b32 s53, s43, 1")
    a("s_sub_u32 s36, s43, 448")
    a("s_lshr_b32 s37, s43, 1")
    a("s_cmp_ge_u32 s43, 896")
    a("s_cselect_b32 s43, s36, s37")
    a("s_cselect_b32 s53, 2, s53")
    a("s_waitcnt vmcnt(15)")
    a("s_barrier")
    a("s_waitcnt vmcnt(10)")
    a("s_barrier")
    a("s_waitcnt vmcnt(5)")
    a("s_barrier")
    a("s_mov_b32 s34, 4")
    def issue2():
        a("s_add_u32 s35, s33, s24")
        a("s_mov_b32 m0, s35")
        a("s_add_u32 s36, s35, %d" % TREG)
        for n in range(4):
            a("buffer_load_dwordx4 v%d, s[8:11], s26 offen offset:%d lds" % (10 + n, n * 1024))
        a("s_mov_b32 m0, s36")
        a("s_add_u32 s37, s27, s32")
        for n in range(4):
            a("buffer_load_dwordx4 v14, s[12:15], s27 offen offset:%d sc1 lds" % (n * 1024))
        a("s_add_u32 s36, s36, s32")
        a("s_mov_b32 m0, s36")
        a("s_mov_b64 exec, 0xffffffff")
        a("buffer_load_dwordx4 v14, s[12:15], s37 offen sc1 lds")
        a("s_mov_b64 exec, -1")
        a("s_add_u32 s26, s26, 128")
        a("s_add_u32 s27, s27, 18432")
        a("s_add_u32 s33, s33, %d" % SLOT)
        a("s_cmp_eq_u32 s33, %d" % (R * SLOT))
        a("s_cselect_b32 s33, 0, s33")
    a.label("%s_lloop" % name)
    issue2()
    a("s_cmp_eq_u32 s34, 18")
    a("s_cbranch_scc1 %s_hk1" % name)
    a("s_cmp_eq_u32 s34, 21")
    a("s_cbranch_scc1 %s_hk2" % name)
    a("s_waitcnt vmcnt(9)")
    a.label("%s_lcont" % name)
    a("s_barrier")
    a("s_add_u32 s34, s34, 1")
    a("s_cmp_lt_u32 s34, 32")
    a("s_cbranch_scc1 %s_lloop" % name)
    a("s_branch %s_ldone" % name)
    a.label("%s_hk1" % name)
    a("v_and_b32 v28, 15, v2")
    a("v_lshlrev_b32 v28, 2, v28")
    a("buffer_load_dword v29, v28, s[60:63], 0 offen offset:128 sc1")
    a("s_waitcnt vmcnt(10)")
    a("s_branch %s_lcont" % name)
    a.label("%s_hk2" % name)
    a("s_mov_b32 s52, 0")
    a.label("%s_hk2l" % name)
    a("v_cmp_gt_u32 vcc, 16, v29")
    a("s_add_u32 s52, s52, 1")
    a("s_cmp_gt_u32 s52, %d" % SPIN_MAX)
    a("s_cbranch_scc1 %s_hk2g" % name)
    a("s_cbranch_vccz %s_hk2g" % name)
    a("s_sleep 16")
    a("buffer_load_dword v29, v28, s[60:63], 0 offen offset:128 sc1")
    a("s_waitcnt vmcnt(0)")
    a("s_branch %s_hk2l" % name)
    a.label("%s_hk2g" % name)
    nconv = emit_conv_loads(a, " sc1")
    a("s_waitcnt vmcnt(%d)" % (9 + nconv))
    a("s_branch %s_lcont" % name)
    a.label("%s_ldone" % name)
    a("s_waitcnt vmcnt(0)")
    a("s_barrier")
    a("s_mov_b32 s26, s53")
    a("s_and_b32 s27, s3, 1")
    a("s_mul_i32 s27, s27, %d" % CJ_SIZE)
    a("s_lshr_b32 s36, s3, 1")
    a("s_mul_i32 s36, s36, %d" % SLOT)
    a("s_add_u32 s27, s27, s36")
    a("s_add_u32 s27, s27, %d" % RB)
    def mid():
        a("s_barrier")
        a("s_setprio 0")
    sv = set(DBG); DBG.discard("stamp")
    emit_conv_job(a, name, mid)
    DBG.update(sv)
    G.stamp_rt(a, 1)
    a.label("%s_end" % name)
    a("s_endpgm")
    return a.text(), kernel_desc(name, 256, 256), (name, 256, 512, LDSB)

def gen_kf6(name="k1_kernel", R=4):
    a = Asm()
    RB = 4096; SLOT = 34816; TREG = 16384; FS = 288; RST = 0
    LDSB = RB + R * SLOT
    LC = 2048
    ZFLG = 0x2D00000; PFL = 128
    C0 = 77824; CW = 151552; CSL = 36864; YOFF = 151552; CTREG = 16384; CFS = 160
    from gen3 import emit_conv_loads, emit_conv_job, CJ_SIZE
    def capture(f, *args):
        lb = len(a.lines); f(*args); out = a.lines[lb:]; del a.lines[lb:]; return out

    def c_common():
        a("s_load_dwordx2 s[4:5], s[0:1], 0")
        a("s_load_dwordx2 s[16:17], s[0:1], 88")
        a("s_and_b32 s20, s2, 7")
        a("s_lshr_b32 s21, s2, 3")
        a("s_and_b32 s22, s20, 3")
        a("s_lshl_b32 s22, s22, 3")
        a("s_and_b32 s23, s21, 7")
        a("s_add_u32 s22, s22, s23")
        a("s_lshr_b32 s23, s20, 2")
        a("s_lshl_b32 s23, s23, 2")
        a("s_lshr_b32 s24, s21, 3")
        a("s_add_u32 s23, s23, s24")
        a("s_lshr_b32 s52, s23, 1")
        a("s_and_b32 s53, s23, 1")
        a("s_lshl_b32 s54, s98, 2")
        a("s_add_u32 s54, s54, s3")
        a("s_waitcnt lgkmcnt(0)")
        srd(a, 8, 4, 2048 * 576 * 2)
        srd(a, 28, 16, 2048 * 576 * 2)
    XR = 200; ST = 208
    def fin_loads():
        a("v_and_b32 v3, 15, v2")
        a("v_lshrrev_b32 v10, 4, v2")
        a("v_mul_u32_u24 v13, 1152, v3")
        a("v_lshl_add_u32 v13, v10, 3, v13")
        a("v_lshlrev_b32 v12, 3, v3")
        for s_ in range(3):
            if s_ == 2:
                a("s_cmp_ge_u32 s54, 2")
                a("s_cbranch_scc1 %s_fl%d" % (name, fin_loads.cnt))
            b = 64 + 4 * s_
            if s_ < 2:
                a("s_add_u32 s36, s54, %d" % (8 * s_))
                a("s_lshr_b32 s37, s36, 2")
                a("s_and_b32 s38, s36, 3")
                a("s_mul_i32 s39, s53, 160")
                a("s_lshl_b32 s40, s37, 5")
                a("s_add_u32 s39, s39, s40")
            else:
                a("s_add_u32 s36, s54, 16")
                a("s_mov_b32 s37, 4")
                a("s_mov_b32 s38, s54")
                a("s_mov_b32 s39, 128")
            a("s_lshl_b32 s40, s53, 1")
            a("s_add_u32 s38, s38, s40")
            a("s_and_b32 s38, s38, 3")
            a("s_lshl_b32 s40, s22, 2")
            a("s_add_u32 s40, s40, s38")
            a("s_lshl_b32 s40, s40, 4")
            a("s_mul_i32 s%d, s40, 1152" % b)
            a("s_add_u32 s%d, s%d, s39" % (b, b))
            a("s_mul_i32 s39, s52, 288")
            a("s_add_u32 s%d, s%d, s39" % (b, b))
            a("s_lshl_b32 s%d, s37, 11" % (b + 1))
            a("s_lshl_b32 s39, s38, 5")
            a("s_add_u32 s%d, s%d, s39" % (b + 1, b + 1))
            a("s_add_u32 s%d, s%d, %d" % (b + 1, b + 1, YOFF))
            a("s_lshl_b32 s%d, s36, 10" % (b + 2))
            a("s_add_u32 s%d, s%d, %d" % (b + 2, b + 2, C0))
            a("s_lshl_b32 s40, s40, 3")
            a("s_add_u32 s40, s40, 0x%x" % STATS1)
            a("buffer_load_dwordx2 %s, v13, s[8:11], s%d offen" % (vr(XR + 2 * s_, 2), b))
            a("buffer_load_dwordx2 %s, v12, s[12:15], s40 offen sc1" % vr(ST + 2 * s_, 2))
        a.label("%s_fl%d" % (name, fin_loads.cnt))
        fin_loads.cnt += 1
    fin_loads.cnt = 0
    kernel_begin(a, name)
    a("s_load_dwordx2 s[80:81], s[0:1], 0")
    a("s_load_dwordx2 s[4:5], s[0:1], 56")
    a("s_load_dwordx2 s[6:7], s[0:1], 104")
    a("s_load_dwordx2 s[18:19], s[0:1], 96")
    a("s_cmp_ge_u32 s2, 256")
    a("s_cbranch_scc1 %s_end" % name)
    a("v_lshrrev_b32 v1, 6, v0")
    a("v_and_b32 v2, 63, v0")
    a("v_readfirstlane_b32 s3, v1")
    G2.tile_ij(a)
    a("s_lshr_b32 s98, s3, 2")
    a("s_mov_b32 s54x, 0".replace("s54x", "s99"))
    a("s_and_b32 s3, s3, 3")
    a("s_lshr_b32 s24, s3, 1")
    a("s_and_b32 s25, s3, 1")
    a("v_and_b32 v3, 15, v2")
    VT = 204; VF = 208
    def loader_setup():
        a("v_lshrrev_b32 v5, 3, v2")
        a("v_and_b32 v4, 7, v2")
        a("s_lshl_b32 s36, s3, 5")
        a("v_add_u32 v5, s36, v5")
        a("v_lshrrev_b32 v7, 4, v2")
        a("v_xor_b32 v7, v7, v4")
        a("v_mul_u32_u24 v6, 1152, v5")
        a("v_lshl_add_u32 v%d, v7, 4, v6" % VT)
        a("v_xor_b32 v%d, 64, v%d" % (VT + 1, VT))
        a("v_add_u32 v%d, %d, v%d" % (VT + 1, 9216 - 1024, VT + 1))
        a("v_add_u32 v%d, %d, v%d" % (VT + 2, 2 * (9216 - 1024), VT))
        a("v_add_u32 v%d, %d, v%d" % (VT + 3, 2 * (9216 - 1024), VT + 1))
        a("s_lshl_b32 s84, s3, 12")
        a("s_add_u32 s84, s84, %d" % RB)
        a("s_lshl_b32 s85, s3, 9")
        a("s_add_u32 s85, s85, %d" % (RB + TREG + 16384))
    def loader_setup2():
        for n in range(5):
            if n < 4:
                a("s_lshl_b32 s36, s3, 8")
                a("s_add_u32 s36, s36, %d" % (64 * n))
            else:
                a("s_lshl_b32 s36, s3, 5")
                a("s_add_u32 s36, s36, 1024")
            a("v_add_u32 v6, s36, v2")
            a("v_mul_u32_u24 v7, 3641, v6")
            a("v_lshrrev_b32 v7, 16, v7")
            a("v_mul_u32_u24 v8, 18, v7")
            a("v_sub_u32 v8, v6, v8")
            a("v_and_b32 v9, 35, v7")
            a("v_bfe_u32 v6, v7, 2, 2")
            a("v_lshl_add_u32 v9, v6, 3, v9")
            a("v_bfe_u32 v6, v7, 4, 1")
            a("v_lshl_add_u32 v9, v6, 2, v9")
            a("v_mul_u32_u24 v9, 9216, v9")
            a("v_lshl_add_u32 v%d, v8, 4, v9" % (VF + n))
            if 0 < n < 4: a("v_subrev_u32 v%d, %d, v%d" % (VF + n, 1024 * n, VF + n))
    def issueT(g):
        st = g % 9
        a("s_add_u32 s86, s84, %d" % ((g % R) * SLOT))
        a("s_mov_b32 m0, s86")
        a("s_add_u32 s87, s82, %d" % (128 * st))
        for n in range(4):
            a("buffer_load_dwordx4 v%d, s[28:31], s87 offen offset:%d lds" % (VT + n, 1024 * n))
    def issueF(g):
        st = g % 9
        a("s_add_u32 s86, s84, %d" % ((g % R) * SLOT + TREG))
        a("s_mov_b32 m0, s86")
        a("s_add_u32 s87, s83, %d" % (64 * 9216 * st + (4608 if g < 9 else 0)))
        for n in range(4):
            a("buffer_load_dwordx4 v%d, s[8:11], s87 offen offset:%d lds" % (VF + n, 1024 * n))
        a("s_add_u32 s86, s85, %d" % ((g % R) * SLOT))
        a("s_mov_b32 m0, s86")
        a("s_mov_b64 exec, 0xffffffff")
        a("buffer_load_dwordx4 v%d, s[8:11], s87 offen lds" % (VF + 4))
        a("s_mov_b64 exec, -1")
    def srds_main():
        srd(a, 28, 80, 2048 * 576 * 2)
        srd(a, 8, 4, 576 * 4608 * 2)
        srd(a, 12, 6, WS_BYTES)
        srd(a, 60, 18, 256)
        a("s_mul_i32 s82, s22, %d" % (128 * 1152))
        a("s_mul_i32 s83, s23, 288")
    ACC = 128; FB = [16, 52]; CS = 216; ONE = 236
    vTa = [4, 5]; vTb = [6, 7]; vF = 8; vFh = 9
    bTa = [88, 89]; bTb = [90, 91]; bF = 92; bFh = 93
    def mma_setup():
        a("v_lshrrev_b32 v10, 4, v2")
        a("v_lshrrev_b32 v11, 1, v3")
        a("v_xor_b32 v10, v10, v11")
        a("v_lshlrev_b32 v10, 4, v10")
        a("v_lshl_add_u32 v10, v3, 7, v10")
        a("s_lshl_b32 s26, s24, 13")
        a("s_add_u32 s26, s26, %d" % RB)
        a("v_add_u32 v10, s26, v10")
        a("s_lshl_b32 s26, s25, 12")
        a("v_add_u32 v%d, s26, v10" % bTa[0])
        a("s_xor_b32 s26, s26, 4096")
        a("v_add_u32 v%d, s26, v10" % bTb[0])
        a("v_xor_b32 v%d, 64, v%d" % (bTa[1], bTa[0]))
        a("v_xor_b32 v%d, 64, v%d" % (bTb[1], bTb[0]))
        a("v_lshrrev_b32 v10, 2, v2")
        a("v_mul_u32_u24 v10, %d, v10" % FS)
        a("v_and_b32 v11, 3, v2")
        a("v_lshl_add_u32 v10, v11, 3, v10")
        a("v_add_u32 v10, %d, v10" % (RB + TREG))
        a("s_mul_i32 s26, s25, 160")
        a("v_add_u32 v%d, s26, v10" % bF)
        a("v_add_u32 v%d, 128, v10" % bFh)
        for r in range(ACC, ACC + 72): a("v_mov_b32 v%d, 0" % r)
        for r in range(CS, CS + 20): a("v_mov_b32 v%d, 0" % r)
        for r in range(ONE, ONE + 4): a("v_mov_b32 v%d, 0x3f803f80" % r)
    def mma_addr(slot):
        a("s_mov_b32 s27, %d" % (slot * SLOT))
        for d, s_ in ((vTa[0], bTa[0]), (vTb[0], bTb[0]), (vTa[1], bTa[1]), (vTb[1], bTb[1]), (vF, bF), (vFh, bFh)):
            a("v_add_u32 v%d, s27, v%d" % (d, s_))
    core = G.Core(a, ACC, FB[0], FB[1], FS, TREG, vTa, vTb, vF, vFh)
    trk = core.trk
    a("s_cmp_eq_u32 s98, 0")
    a("s_cbranch_scc1 %s_A0" % name)
    a("s_setprio 3")
    loader_setup()
    a("s_waitcnt lgkmcnt(0)")
    srds_main()
    vm = VmTracker(a)
    def issue(g, vmx):
        issueT(g); issueF(g); vmx.issue("S%d" % g, 9)
    issueT(0)
    loader_setup2()
    issueF(0); vm.issue("S0", 9)
    issue(1, vm); issue(2, vm); issue(3, vm)
    a("s_add_u32 s3, s3, 4"); stamp_setup(a, 1); stamp(a, 0); a("s_sub_u32 s3, s3, 4")
    mma_setup()
    RA = 96; XB = 112
    for r in range(RA, RA + 16): a("v_mov_b32 v%d, 0" % r)
    a("v_lshrrev_b32 v10, 4, v2")
    a("v_lshrrev_b32 v11, 1, v3")
    a("v_xor_b32 v10, v10, v11")
    a("v_lshlrev_b32 v10, 4, v10")
    a("v_lshl_add_u32 v10, v3, 7, v10")
    a("v_add_u32 v12, s84, v10")
    a("v_xor_b32 v13, 64, v12")
    def rs_rd(g):
        a("v_add_u32 v10, %d, v12" % ((g % R) * SLOT))
        a("v_add_u32 v11, %d, v13" % ((g % R) * SLOT))
        for h in range(2):
            for n in range(2):
                a("ds_read_b128 %s, v%d offset:%d" % (vr(XB + 8 * h + 4 * n), 10 + h, 2048 * n))
    def rs_do():
        for h in range(2):
            for n in range(2):
                x = XB + 8 * h + 4 * n
                a("v_mfma_f32_16x16x32_bf16 %s, %s, %s, %s" % (vr(RA + 4 * n), vr(ONE), vr(x), vr(RA + 4 * n)))
                a("v_mfma_f32_16x16x32_bf16 %s, %s, %s, %s" % (vr(RA + 8 + 4 * n), vr(x), vr(x), vr(RA + 8 + 4 * n)))
    def interleave(dma, comp, vmx=None):
        groups = []; cur = []
        for l in dma:
            cur.append(l)
            if "buffer_load" in l and not any("exec, 0xffffffff" in x for x in cur[-2:]):
                groups.append(cur); cur = []
            elif "exec, -1" in l:
                groups.append(cur); cur = []
        if cur: groups.append(cur)
        ns = max(1, len(groups))
        per = (len(comp) + ns - 1) // ns
        for g in groups:
            a.lines.extend(g)
            a.lines.extend(comp[:per]); comp = comp[per:]
        a.lines.extend(comp)
    vm.wait(["S0"])
    a("s_barrier")
    stamp(a, 1)
    rs_rd(0)
    vm.wait(["S1"])
    a("s_barrier")
    for k in range(9):
        a("s_waitcnt lgkmcnt(0)")
        dma = capture(lambda: (issueT(k + 3), issueF(k + 3))) if k >= 1 else []
        interleave(dma, capture(rs_do))
        if k >= 1: vm.issue("S%d" % (k + 3), 9)
        if k < 8:
            rs_rd(k + 1)
        else:
            a("s_nop 7")
            a("v_lshrrev_b32 v10, 4, v2")
            a("v_lshrrev_b32 v11, 2, v3")
            a("v_and_b32 v12, 3, v3")
            for n in range(2):
                G_ = RA + 8 + 4 * n
                for r in range(1, 4):
                    a("v_cmp_eq_u32 vcc, %d, v12" % r)
                    a("s_nop 1")
                    a("v_cndmask_b32 v%d, v%d, v%d, vcc" % (G_, G_, G_ + r))
            ML = 112
            for n in range(2):
                emit_ln_finish(a, RA + 4 * n, RA + 8 + 4 * n, 576, ML + 2 * n, ML + 2 * n + 1, 120)
                a("v_mov_b32 v%d, v%d" % (117 + 2 * n, ML + 2 * n + 1))
                a("v_sub_f32 v%d, 0, v%d" % (116 + 2 * n, ML + 2 * n))
            a("s_lshl_b32 s35, s3, 8")
            a("v_lshlrev_b32 v13, 3, v3")
            a("v_add_u32 v12, s35, v13")
            a("v_cmp_eq_u32 vcc, v10, v11")
            a("s_and_saveexec_b64 s[36:37], vcc")
            for n in range(2):
                a("ds_write_b64 v12, %s offset:%d" % (vr(116 + 2 * n, 2), RST + 128 * n))
            a("s_mov_b64 exec, s[36:37]")
            a("s_cmp_lg_u32 s23, 0")
            a("s_cbranch_scc1 %s_nost1" % name)
            a("s_lshl_b32 s35, s22, 7")
            a("s_lshl_b32 s36, s3, 5")
            a("s_add_u32 s35, s35, s36")
            a("s_lshl_b32 s35, s35, 3")
            a("s_add_u32 s35, s35, 0x%x" % STATS1)
            a("v_mov_b32 v11, 0x7ffffff0")
            a("v_cndmask_b32 v13, v11, v13, vcc")
            for n in range(2):
                a("buffer_store_dwordx2 %s, v13, s[12:15], s35 offen offset:%d sc1" % (vr(ML + 2 * n, 2), 128 * n))
            a.label("%s_nost1" % name)
            mma_addr(9 % R)
            a("s_mov_b32 s33, 0")
            a("s_setprio 0")
        vm.wait(["S%d" % (k + 2)], "lgkmcnt(0)" if k == 8 else "")
        if k < 8: a("s_barrier")
    a("s_branch %s_mma" % name)
    a.label("%s_A0" % name)
    emit_code_prefetch(a, name)
    a("s_load_dwordx4 s[64:67], s[0:1], 8")
    a("s_load_dwordx2 s[76:77], s[0:1], 24")
    a("s_load_dwordx2 s[78:79], s[0:1], 64")
    mma_setup()
    loader_setup(); loader_setup2()
    a("s_waitcnt lgkmcnt(0)")
    srds_main()
    srd(a, 68, 66, 2048 * 576 * 2)
    a("s_mov_b32 s88, s64"); a("s_mov_b32 s89, s65")
    srd(a, 64, 88, 2048 * 576 * 2)
    srd(a, 72, 76, 576 * 8)
    stamp_setup(a, 1); stamp(a, 0)
    def gran_addr():
        a("v_lshrrev_b32 v10, 4, v2")
        a("s_lshl_b32 s36, s25, 1")
        a("v_add_u32 v11, s36, v10")
        a("v_and_b32 v11, 3, v11")
        a("v_lshl_add_u32 v11, v11, 4, v3")
        a("v_lshlrev_b32 v94, 8, v11")
        a("s_lshl_b32 s59, s22, 7")
        a("s_lshl_b32 s36, s24, 6")
        a("s_add_u32 s59, s59, s36")
        a("s_lshl_b32 s59, s59, 8")
        a("s_add_u32 s59, s59, 0x%x" % STATS2)
        a("s_lshl_b32 s36, s23, 1")
        a("s_add_u32 s36, s36, s25")
        a("s_lshl_b32 s36, s36, 3")
        a("s_add_u32 s58, s36, s59")
    gran_addr()
    a("v_mov_b32 v12, 0"); a("v_mov_b32 v13, 0x80000000")
    a("buffer_store_dwordx2 v[12:13], v94, s[12:15], s58 offen sc1")
    a("s_lshl_b32 s36, s22, 4")
    a("s_add_u32 s36, s36, s23")
    a("s_lshl_b32 s36, s36, 8")
    a("s_add_u32 s97, s36, 0x%x" % ZFLG)
    a("v_mov_b32 v10, %d" % LC)
    a("v_mov_b32 v12, 0"); a("v_mov_b32 v13, 0")
    a("s_mov_b64 exec, 1")
    a("buffer_store_dword v12, v12, s[12:15], s97 offen sc1")
    a("buffer_store_dword v12, v12, s[12:15], s97 offen offset:%d sc1" % PFL)
    a("s_mov_b64 exec, -1")
    a("ds_write_b64 v10, v[12:13]")
    a("ds_write_b64 v10, v[12:13] offset:8")
    a("ds_write_b64 v10, v[12:13] offset:16")
    a("ds_write_b64 v10, v[12:13] offset:24")
    mma_addr(0)
    a("s_mov_b32 s33, 0")
    a("s_waitcnt lgkmcnt(0)")
    a("s_barrier")
    stamp(a, 1)
    a.label("%s_mma" % name)
    core.prime(0, core.reads(0, 0))
    trk.drain()
    nocs = [False]
    def mfmas(buf):
        L = []
        for ft in range(5):
            A = core.F(buf, ft)
            for tt in range(4 if ft < 4 else 2):
                c = core.accr(ft, tt); B = core.T(buf, tt)
                L.append(("v_mfma_f32_16x16x32_bf16 %s, %s, %s, %s" % (vr(c), vr(A), vr(B), vr(c)), list(range(A, A + 4)) + list(range(B, B + 4))))
            if not nocs[0]: L.append(("v_mfma_f32_16x16x32_bf16 %s, %s, %s, %s" % (vr(CS + 4 * ft), vr(A), vr(ONE), vr(CS + 4 * ft)), list(range(A, A + 4))))
        return L
    def phase(buf, pend):
        for (m, regs) in mfmas(buf):
            trk.need(regs)
            a(m)
            while pend:
                k, t = pend.pop(0)
                if k == "x":
                    a(t)
                    if t.startswith("s_"): continue
                else:
                    a(t[0]); trk.issue(t[1])
                break
        for k, t in pend:
            if k == "x": a(t)
            else: a(t[0]); trk.issue(t[1])
    def iteration(vw=True):
        if vw: a("s_waitcnt vmcnt(0)")
        a("s_barrier")
        rd = [("r", t) for t in core.reads(1, 1)]
        upd = ["s_add_u32 s27, s27, %d" % SLOT, "s_cmp_eq_u32 s27, %d" % (R * SLOT), "s_cselect_b32 s27, 0, s27"]
        tail = ["v_add_u32 v%d, s27, v%d" % (d, s_) for d, s_ in ((vTa[0], bTa[0]), (vF, bF), (vTb[0], bTb[0]), (vFh, bFh))]
        phase(0, rd[:1] + [("x", u) for u in upd] + rd[1:] + [("x", u) for u in tail])
        rd = [("r", t) for t in core.reads(0, 0)]
        tail = ["v_add_u32 v%d, s27, v%d" % (d, s_) for d, s_ in ((vTa[1], bTa[1]), (vTb[1], bTb[1]))] + ["s_add_u32 s33, s33, 1"]
        phase(1, rd + [("x", u) for u in tail])
    a.label("%s_cloop" % name)
    lb = len(a.lines); iteration(); st = copy.deepcopy(trk.out); del a.lines[lb:]; trk.out = copy.deepcopy(st)
    iteration()
    assert [sorted(x) for x in trk.out] == [sorted(x) for x in st]
    a("s_cmp_lt_u32 s33, 9")
    a("s_cbranch_scc1 %s_cloop" % name)
    trk.drain()
    stamp(a, 2)
    MR = 100; T = 72; ZP = 16
    def epi_in():
        gelu_consts(a)
        a("s_lshl_b32 s36, s24, 9")
        a("s_lshl_b32 s37, s25, 8")
        a("s_add_u32 s38, s36, s37")
        a("s_xor_b32 s37, s37, 256")
        a("s_add_u32 s39, s36, s37")
        a("v_lshlrev_b32 v10, 3, v3")
        a("v_add_u32 v11, s38, v10")
        a("ds_read_b64 %s, v11 offset:%d" % (vr(MR, 2), RST))
        a("ds_read_b64 %s, v11 offset:%d" % (vr(MR + 2, 2), RST + 128))
        a("v_add_u32 v11, s39, v10")
        a("ds_read_b64 %s, v11 offset:%d" % (vr(MR + 4, 2), RST))
        a("ds_read_b64 %s, v11 offset:%d" % (vr(MR + 6, 2), RST + 128))
        a("s_waitcnt lgkmcnt(0)")
    S = [108, 110, 52, 54]; Q = [109, 111, 53, 55]
    def gelu_ft(ft, stats):
        tts = range(4 if ft < 4 else 2)
        emit_fold_gelu(a, [(core.accr(ft, tt), CS + 4 * ft, MR + 2 * tt, ZP + 2 * tidx(ft, tt)) for tt in tts], T)
        if stats:
            for d in range(2):
                for tt in tts:
                    p = ZP + 2 * tidx(ft, tt) + d
                    a("v_dot2_f32_bf16 v%d, v%d, v%d, v%d" % (S[tt], p, ONE, S[tt]))
                    a("v_dot2_f32_bf16 v%d, v%d, v%d, v%d" % (Q[tt], p, p, Q[tt]))
    a("s_cmp_eq_u32 s98, 0")
    a("s_cbranch_scc1 %s_A1" % name)
    a("s_barrier")
    a("s_load_dwordx4 s[64:67], s[0:1], 8")
    a("s_load_dwordx2 s[76:77], s[0:1], 24")
    a("s_load_dwordx2 s[94:95], s[0:1], 80")
    a("s_load_dwordx2 s[92:93], s[0:1], 72")
    epi_in()
    srd(a, 68, 66, 2048 * 576 * 2)
    a("s_mov_b32 s88, s64"); a("s_mov_b32 s89, s65")
    srd(a, 64, 88, 2048 * 576 * 2)
    srd(a, 72, 76, 576 * 8)
    srd(a, 76, 94, 2304 * 576 * 2)
    srd(a, 28, 92, 2048 * 2)
    a("v_and_b32 v0, 255, v0")
    a("s_mov_b32 s41, s2")
    KDB = 240
    emit_kv_loads(a, 112, 240, 248, 252, 253)
    for ft in range(5): gelu_ft(ft, False)
    Z1R = 200; BI = 236
    for r_ in range(36): a("v_mov_b32 v%d, v%d" % (Z1R + r_, ZP + r_))
    stamp(a, 3)
    a("s_waitcnt vmcnt(0)")
    for n in range(11): a("v_mov_b32 v%d, v%d" % (16 + n, 112 + n))
    for n in range(8): a("v_mov_b32 v%d, v%d" % (32 + n, 240 + n))
    for n in range(4): a("v_mov_b32 v%d, v%d" % (44 + n, 248 + n))
    a("v_mov_b32 v56, v252"); a("v_mov_b32 v57, v253")
    for r_ in range(6): a("v_mov_b32 v%d, v%d" % (240 + r_, 88 + r_))
    a.label("%s_kvb" % name)
    emit_kv_compute(a, wait=False, store=False)
    a("s_mov_b32 s39, 0x%x" % KVT)
    a("buffer_store_dwordx4 v[120:123], v12, s[12:15], s39 offen sc1")
    a("buffer_store_dwordx4 v[124:127], v13, s[12:15], s39 offen sc1")
    a("s_add_u32 s41, s41, 256")
    a("s_cmp_ge_u32 s41, 288")
    a("s_cbranch_scc1 %s_kvbd" % name)
    emit_kv_loads(a)
    a("s_waitcnt vmcnt(0)")
    a("s_branch %s_kvb" % name)
    a.label("%s_kvbd" % name)
    for r_ in range(6): a("v_mov_b32 v%d, v%d" % (88 + r_, 240 + r_))
    a("s_mov_b32 s42, s2")
    emit_wot_loads(a, 100, 112, 720, 3)
    a("s_lshl_b32 s36, s22, 7")
    a("s_lshl_b32 s37, s24, 6")
    a("s_add_u32 s36, s36, s37")
    a("v_lshlrev_b32 v11, 1, v3")
    a("s_lshl_b32 s37, s25, 6")
    a("s_lshl_b32 s38, s36, 1")
    a("s_add_u32 s39, s38, s37")
    a("s_xor_b32 s37, s37, 64")
    a("s_add_u32 s36, s38, s37")
    a("buffer_load_ushort v96, v11, s[28:31], s39 offen")
    a("buffer_load_ushort v97, v11, s[28:31], s39 offen offset:32")
    a("buffer_load_ushort v98, v11, s[28:31], s36 offen")
    a("buffer_load_ushort v99, v11, s[28:31], s36 offen offset:32")
    for r in range(ACC, ACC + 72): a("v_mov_b32 v%d, 0" % r)
    mma_addr(0)
    a("s_mov_b32 s33, 0")
    stamp(a, 4)
    a("s_barrier")
    stamp(a, 5)
    core.prime(0, core.reads(0, 0))
    trk.drain()
    nocs[0] = True
    a.label("%s_gloop" % name)
    lb = len(a.lines); iteration(False); st = copy.deepcopy(trk.out); del a.lines[lb:]; trk.out = copy.deepcopy(st)
    iteration(False)
    assert [sorted(x) for x in trk.out] == [sorted(x) for x in st]
    a("s_cmp_lg_u32 s33, 3")
    a("s_cbranch_scc1 %s_ghk0" % name)
    a("s_waitcnt vmcnt(0)")
    for n in range(3):
        a("buffer_store_dwordx4 %s, v%d, s[12:15], s40 offen sc1" % (vr(100 + 4 * n), 112 + n))
    for tt in range(4): a("v_lshlrev_b32 v%d, 16, v%d" % (BI + 2 * tt, 96 + tt))
    a.label("%s_ghk0" % name)
    a("s_cmp_lg_u32 s33, 6")
    a("s_cbranch_scc1 %s_ghk" % name)
    a("s_waitcnt vmcnt(0)")
    a("v_mov_b32 v10, %d" % (LC + 8))
    a("v_mov_b32 v11, 1")
    a("s_mov_b64 exec, 1")
    a("ds_add_rtn_u32 v12, v10, v11")
    a("s_waitcnt lgkmcnt(0)")
    a("v_readfirstlane_b32 s36, v12")
    a("s_cmp_lg_u32 s36, 3")
    a("s_cbranch_scc1 %s_nokvs" % name)
    a("s_and_b32 s36, s2, 15")
    a("s_lshl_b32 s36, s36, 2")
    a("s_add_u32 s36, s36, 128")
    a("v_mov_b32 v10, s36")
    a("buffer_atomic_add v11, v10, s[60:63], 0 offen sc1")
    a.label("%s_nokvs" % name)
    a("s_mov_b64 exec, -1")
    a.label("%s_ghk" % name)
    a("s_cmp_lt_u32 s33, 32")
    a("s_cbranch_scc1 %s_gloop" % name)
    trk.drain()
    stamp(a, 6)
    lb_ = len(a.lines)
    G3.emit_k2_epilogue(a, core, Z1R, BI)
    for n_ in range(lb_, len(a.lines)):
        if "buffer_store_dwordx4" in a.lines[n_]: a.lines[n_] += " sc1"
    stamp(a, 7)
    a("s_setprio 3")
    a("s_lshl_b32 s36, s22, 4")
    a("s_add_u32 s36, s36, s23")
    a("s_lshl_b32 s36, s36, 8")
    a("s_add_u32 s97, s36, 0x%x" % (ZFLG + PFL))
    c_common()
    a("v_lshlrev_b32 v14, 4, v2")
    a("s_mul_i32 s26, s22, %d" % (36 * 8192))
    a("s_lshl_b32 s24, s3, 12")
    a("s_add_u32 s26, s26, s24")
    a("s_add_u32 s26, s26, 0x%x" % PIMG)
    a("s_mul_i32 s27, s23, %d" % (18 * 20480))
    a("s_mul_i32 s25, s3, 5120")
    a("s_add_u32 s27, s27, s25")
    a("s_add_u32 s27, s27, 0x%x" % WOT)
    a("s_add_u32 s25, s25, %d" % CTREG)
    a("v_and_b32 v28, 15, v2")
    a("v_lshlrev_b32 v30, 2, v28")
    a("buffer_load_dword v31, v30, s[60:63], 0 offen offset:128 sc1")
    a("v_mov_b32 v26, %d" % LC)
    a("v_mov_b32 v27, 1")
    a("s_waitcnt vmcnt(0)")
    a("s_mov_b64 exec, 1")
    a("ds_add_rtn_u32 v29, v26, v27 offset:16")
    a("s_waitcnt lgkmcnt(0)")
    a("v_readfirstlane_b32 s36, v29")
    a("s_cmp_lg_u32 s36, 3")
    a("s_cbranch_scc1 %s_nops" % name)
    a("v_mov_b32 v29, 0")
    a("buffer_store_dword v27, v29, s[12:15], s97 offen sc1")
    a.label("%s_nops" % name)
    a("s_mov_b64 exec, -1")
    a("s_mov_b32 s34, 0")
    a.label("%s_cw" % name)
    a("ds_read_b32 v29, v26 offset:16")
    a("s_add_u32 s34, s34, 1")
    a("s_waitcnt lgkmcnt(0)")
    a("v_readfirstlane_b32 s36, v29")
    a("s_cmp_gt_u32 s34, %d" % (SPIN_MAX * 20))
    a("s_cbranch_scc1 %s_cwx" % name)
    a("s_cmp_ge_u32 s36, 4")
    a("s_cbranch_scc1 %s_cwx" % name)
    a("s_sleep 1")
    a("s_branch %s_cw" % name)
    a.label("%s_cwx" % name)
    a("s_mov_b32 s34, 0")
    a.label("%s_cp" % name)
    a("v_cmp_gt_u32 vcc, 16, v31")
    a("s_add_u32 s34, s34, 1")
    a("s_cmp_gt_u32 s34, %d" % SPIN_MAX)
    a("s_cbranch_scc1 %s_cpx" % name)
    a("s_cbranch_vccz %s_cpx" % name)
    a("s_sleep 32")
    a("buffer_load_dword v31, v30, s[60:63], 0 offen offset:128 sc1")
    a("s_waitcnt vmcnt(0)")
    a("s_branch %s_cp" % name)
    a.label("%s_cpx" % name)
    def cF(off, soff):
        a("s_add_u32 s36, s25, %s" % off)
        a("s_mov_b32 m0, s36")
        a("s_add_u32 s37, %s, 4096" % soff)
        for n in range(4):
            a("buffer_load_dwordx4 v14, s[12:15], %s offen offset:%d sc1 lds" % (soff, n * 1024))
        a("s_add_u32 s36, s36, 4096")
        a("s_mov_b32 m0, s36")
        a("s_nop 0")
        a("buffer_load_dwordx4 v14, s[12:15], s37 offen sc1 lds")
    def cT(off, soff):
        a("s_add_u32 s35, s24, %s" % off)
        a("s_mov_b32 m0, s35")
        a("s_nop 0")
        for n in range(4):
            a("buffer_load_dwordx4 v14, s[12:15], %s offen offset:%d sc1 lds" % (soff, n * 1024))
    a("s_add_u32 s38, s27, 20480")
    cF(str(C0), "s27"); cF(str(C0 + CSL), "s38")
    a("s_mov_b32 s34, 0")
    a("s_cmp_lg_u32 s3, 0")
    a("s_cbranch_scc1 %s_cpl" % name)
    a("v_lshlrev_b32 v28, 8, v28")
    a("s_lshr_b32 s39, s22, 1")
    a("s_lshl_b32 s39, s39, 12")
    a("s_add_u32 s39, s39, 0x%x" % (ZFLG + PFL))
    a.label("%s_cpz" % name)
    a("buffer_load_dword v29, v28, s[12:15], s39 offen sc1")
    a("s_add_u32 s34, s34, 1")
    a("s_waitcnt vmcnt(0)")
    a("v_cmp_ne_u32 vcc, 1, v29")
    a("s_cmp_gt_u32 s34, %d" % SPIN_MAX)
    a("s_cbranch_scc1 %s_cpzx" % name)
    a("s_cbranch_vccz %s_cpzx" % name)
    a("s_sleep 8")
    a("s_branch %s_cpz" % name)
    a.label("%s_cpzx" % name)
    a("ds_write_b32 v26, v27 offset:24")
    a("s_branch %s_cgo" % name)
    a.label("%s_cpl" % name)
    a("ds_read_b32 v29, v26 offset:24")
    a("s_add_u32 s34, s34, 1")
    a("s_waitcnt lgkmcnt(0)")
    a("v_readfirstlane_b32 s36, v29")
    a("s_cmp_gt_u32 s34, %d" % (SPIN_MAX * 20))
    a("s_cbranch_scc1 %s_cgo" % name)
    a("s_cmp_lg_u32 s36, 0")
    a("s_cbranch_scc1 %s_cgo" % name)
    a("s_sleep 2")
    a("s_branch %s_cpl" % name)
    a.label("%s_cgo" % name)
    stamp(a, 8)
    a("s_add_u32 s38, s26, 16384")
    cT(str(C0), "s26"); cT(str(C0 + CSL), "s38")
    a("s_add_u32 s26, s26, 32768")
    a("s_add_u32 s27, s27, 40960")
    a("s_mov_b32 s33, %d" % RB)
    def cissue():
        cT("s33", "s26"); cF("s33", "s27")
        a("s_add_u32 s26, s26, 16384")
        a("s_add_u32 s27, s27, 20480")
        a("s_add_u32 s33, s33, %d" % CSL)
        a("s_cmp_eq_u32 s33, %d" % CW)
        a("s_cselect_b32 s33, %d, s33" % RB)
    a("s_waitcnt vmcnt(4)")
    a("s_barrier")
    cissue(); cissue()
    a("s_waitcnt vmcnt(18)")
    a("s_barrier")
    a("s_mov_b32 s34, 0")
    a.label("%s_clloop" % name)
    cissue()
    a("s_cmp_lg_u32 s34, 11")
    a("s_cbranch_scc1 %s_cl1" % name)
    a("buffer_load_dword v31, v30, s[60:63], 0 offen offset:192 sc1")
    a("s_waitcnt vmcnt(19)")
    a("s_branch %s_cl2" % name)
    a.label("%s_cl1" % name)
    a("s_waitcnt vmcnt(18)")
    a.label("%s_cl2" % name)
    a("s_barrier")
    a("s_add_u32 s34, s34, 1")
    a("s_cmp_lt_u32 s34, 14")
    a("s_cbranch_scc1 %s_clloop" % name)
    a("s_mov_b32 s34, 0")
    a.label("%s_cy" % name)
    a("v_cmp_gt_u32 vcc, 16, v31")
    a("s_add_u32 s34, s34, 1")
    a("s_cmp_gt_u32 s34, %d" % SPIN_MAX)
    a("s_cbranch_scc1 %s_cyx" % name)
    a("s_cbranch_vccz %s_cyx" % name)
    a("s_sleep 32")
    a("buffer_load_dword v31, v30, s[60:63], 0 offen offset:192 sc1")
    a("s_waitcnt vmcnt(0)")
    a("s_branch %s_cy" % name)
    a.label("%s_cyx" % name)
    a("v_lshrrev_b32 v3, 3, v2")
    a("v_and_b32 v4, 7, v2")
    a("v_lshlrev_b32 v4, 4, v4")
    a("s_mul_i32 s33, s52, 144")
    a("s_mul_i32 s34, s53, 80")
    a("s_lshl_b32 s35, s22, 7")
    a("s_add_u32 s35, s35, 0x%x" % YT)
    for n in range(3):
        a("s_add_u32 s36, s3, %d" % (4 * n))
        if n == 2: a("s_min_u32 s36, s36, 9")
        a("s_lshl_b32 s37, s36, 3")
        a("s_add_u32 s38, s37, s33")
        if n < 2: a("s_add_u32 s38, s38, s34")
        a("v_add_u32 v5, s38, v3")
        a("v_lshl_add_u32 v5, v5, 12, v4")
        a("s_lshl_b32 s36, s36, 10")
        a("s_add_u32 s36, s36, %d" % YOFF)
        a("s_mov_b32 m0, s36")
        a("s_nop 0")
        a("buffer_load_dwordx4 v5, s[12:15], s35 offen sc1 lds")
    fin_loads()
    a("s_waitcnt vmcnt(%d)" % (9 + 7))
    a("s_barrier")
    a("s_waitcnt vmcnt(7)")
    a("s_barrier")
    a("s_barrier")
    a("s_setprio 0")
    a("s_waitcnt vmcnt(0)")
    a("s_branch %s_cfin" % name)
    a.label("%s_A1" % name)
    a("s_setprio 2")
    vmA = VmTracker(a)
    PB = 132
    def aux_head():
        epi_in()
        for tt in range(4):
            a("v_mov_b32 v%d, 0" % S[tt]); a("v_mov_b32 v%d, 0" % Q[tt])
    def aux_pub():
        a("s_nop 2")
        emit_xg_reduce(a, S + Q, 72)
        a("v_lshrrev_b32 v10, 4, v2")
        for g in range(1, 4):
            a("v_cmp_eq_u32 vcc, %d, v10" % g)
            a("s_nop 1")
            a("v_cndmask_b32 v%d, v%d, v%d, vcc" % (S[0], S[0], S[g]))
            a("v_cndmask_b32 v%d, v%d, v%d, vcc" % (Q[0], Q[0], Q[g]))
        a("v_and_b32 v%d, 0x7fffffff, v%d" % (Q[0], Q[0]))
        a("buffer_store_dwordx2 v[%d:%d], v94, s[12:15], s58 offen sc1" % (S[0], Q[0]))
    chunks = [capture(aux_head) + capture(gelu_ft, 0, True), capture(gelu_ft, 1, True), capture(gelu_ft, 2, True),
              capture(gelu_ft, 3, True), capture(gelu_ft, 4, True) + capture(aux_pub)]
    KD = 172
    for k in range(9, 18):
        a("s_barrier")
        if k == 9:
            a("s_cmp_lg_u32 s3, 0")
            a("s_cbranch_scc1 %s_nosig" % name)
            a("v_mov_b32 v10, 1")
            a("s_lshl_b32 s36, s22, 2")
            a("v_mov_b32 v11, s36")
            a("s_mov_b64 exec, 1")
            a("buffer_atomic_add v10, v11, s[60:63], 0 offen sc1")
            a("s_mov_b64 exec, -1")
            a.label("%s_nosig" % name)
        g = k + 3
        dma = capture(lambda: (issueT(g), issueF(g))) if g < 18 else []
        comp = chunks[k - 9] if k - 9 < len(chunks) else []
        interleave(dma, comp)
        if k == 13: vmA.issue("pub", 1)
        if g < 18: vmA.issue("S%d" % g, 9)
        if k == 14:
            srd(a, 92, 78, 2048 * 2048 * 2)
            a("v_lshrrev_b32 v10, 4, v2")
            a("v_lshlrev_b32 v10, 12, v10")
            a("v_lshl_add_u32 v10, v3, 4, v10")
            a("s_lshl_b32 s40, s22, 7")
            a("s_lshl_b32 s36, s3, 5")
            a("s_add_u32 s40, s40, s36")
            a("s_lshl_b32 s40, s40, 12")
            a("s_lshl_b32 s36, s23, 8")
            a("s_add_u32 s40, s40, s36")
            for n in range(8):
                a("buffer_load_dwordx4 v[200:203], v10, s[92:95], s40 offen")
                if n < 7: a("s_add_u32 s40, s40, 16384")
            vmA.issue("wp", 8)
            a("s_lshl_b32 s36, s22, 2")
            a("v_mov_b32 v199, s36")
            a("buffer_load_dword v198, v199, s[60:63], 0 offen sc1"); vmA.issue("cnt", 1)
        if k + 2 < 18 and k + 2 >= 12:
            vmA.wait(["S%d" % (k + 2)])
    a("s_barrier")
    stamp(a, 3)
    a("s_load_dwordx4 s[88:91], s[0:1], 32")
    a("v_lshrrev_b32 v10, 4, v2")
    a("v_lshlrev_b32 v95, 8, v3")
    a("v_lshl_add_u32 v95, v10, 6, v95")
    a("s_lshl_b32 s33, s25, 13")
    a("s_add_u32 s52, s59, s33")
    a("s_xor_b32 s33, s33, 8192")
    a("s_add_u32 s53, s59, s33")
    a("s_add_u32 s42, s52, 4096")
    a("s_add_u32 s43, s53, 4096")
    Z2 = ZP
    a("s_waitcnt vmcnt(0)")
    GB = [128, 144, 160, 176]
    a("v_mov_b32 v4, v95")
    def gather():
        for tt in range(4):
            for q in range(4):
                a("buffer_load_dwordx4 %s, v4, s[12:15], s%d offen offset:%d sc1" % (vr(GB[tt] + 4 * q), (52, 42, 53, 43)[tt], 16 * q))
    gather()
    a("s_mov_b32 s40, 0")
    a("s_waitcnt vmcnt(0)")
    a.label("%s_chk" % name)
    a("v_subrev_u32 v11, 16, v198")
    for tt in range(4):
        for r in range(GB[tt] + 1, GB[tt] + 16, 4):
            a("v_or3_b32 v11, v11, v%d, v%d" % (r, r + 2))
    a("v_cmp_gt_i32 vcc, 0, v11")
    a("s_add_u32 s40, s40, 1")
    a("s_cmp_gt_u32 s40, %d" % SPIN_MAX)
    a("s_cbranch_scc1 %s_ok" % name)
    a("s_cbranch_vccz %s_ok" % name)
    a("s_sleep 32")
    a("buffer_load_dword v198, v199, s[60:63], 0 offen sc1")
    a("s_waitcnt vmcnt(0)")
    gather()
    a("s_waitcnt vmcnt(0)")
    a("s_branch %s_chk" % name)
    a.label("%s_ok" % name)
    stamp(a, 5)
    for tt in range(4):
        b = GB[tt]
        for st_ in (8, 4, 2):
            for q in range(0, st_, 2):
                a("v_pk_add_f32 %s, %s, %s" % (vr(b + q, 2), vr(b + q, 2), vr(b + q + st_, 2)))
    emit_xg_reduce(a, [GB[tt] + e for tt in range(4) for e in range(2)], 72)
    for tt in range(4):
        b = GB[tt]
        emit_ln_finish(a, b, b + 1, 2304, b + 2, MR + 2 * tt, b + 4)
        a("v_mul_f32 v%d, -v%d, v%d" % (MR + 2 * tt + 1, b + 2, MR + 2 * tt))
    a("v_lshrrev_b32 v10, 4, v2")
    a("v_lshrrev_b32 v11, 2, v2"); a("v_and_b32 v11, 1, v11"); a("v_lshlrev_b32 v11, 4, v11")
    a("v_lshrrev_b32 v5, 3, v2"); a("v_and_b32 v5, 1, v5"); a("v_lshl_add_u32 v11, v5, 2, v11")
    a("v_and_b32 v5, 3, v2"); a("v_add_u32 v11, v11, v5")
    a("v_mul_u32_u24 v11, 288, v11")
    a("v_lshrrev_b32 v5, 1, v10"); a("v_lshl_add_u32 v11, v5, 4, v11")
    a("v_and_b32 v5, 1, v10")
    a("v_lshl_add_u32 v6, v5, 5, v11")
    a("v_mul_u32_u24 v5, 2304, v5")
    a("v_add_u32 v9, v11, v5")
    a("s_lshl_b32 s33, s23, 5")
    a("s_lshl_b32 s36, s22, 1")
    a("s_add_u32 s33, s33, s36")
    a("s_add_u32 s33, s33, s24")
    a("s_mul_i32 s33, s33, 18432")
    if ZIMG: a("s_add_u32 s33, s33, 0x%x" % ZIMG)
    a("s_mul_i32 s36, s25, 9216")
    a("s_add_u32 s37, s33, s36")
    a("s_xor_b32 s36, s36, 9216")
    a("s_add_u32 s38, s33, s36")
    a("s_add_u32 s39, s37, 128")
    a("s_mul_i32 s36, s25, 160")
    a("s_add_u32 s37, s37, s36")
    a("s_add_u32 s38, s38, s36")
    def norm_pair(nA, ttA, nB, ttB, O):
        for q, (n, tt) in enumerate(((nA, ttA), (nB, ttB))):
            for d in range(2):
                z = Z2 + 2 * n + d; t = T + 4 * q + 2 * d
                a("v_lshlrev_b32 v%d, 16, v%d" % (t, z))
                a("v_and_b32 v%d, 0xffff0000, v%d" % (t + 1, z))
        for q, (n, tt) in enumerate(((nA, ttA), (nB, ttB))):
            for d in range(2):
                t = T + 4 * q + 2 * d
                a("v_pk_fma_f32 %s, %s, %s, %s op_sel:[0,0,1] op_sel_hi:[1,0,1]" % (vr(t, 2), vr(t, 2), vr(MR + 2 * tt, 2), vr(MR + 2 * tt, 2)))
        for q in range(2):
            for d in range(2):
                t = T + 4 * q + 2 * d
                a("v_cvt_pk_bf16_f32 v%d, v%d, v%d" % (O + 2 * q + d, t, t + 1))
        a("s_nop 1")
        a("v_permlane16_swap_b32 v%d, v%d" % (O, O + 2))
        a("v_permlane16_swap_b32 v%d, v%d" % (O + 1, O + 3))
    cnt = 0
    for pr in range(2):
        for tt in range(4):
            O = 200 + 4 * cnt; cnt += 1
            norm_pair(tidx(2 * pr, tt), tt, tidx(2 * pr + 1, tt), tt, O)
            a("s_nop 0")
            a("buffer_store_dwordx4 %s, v6, s[12:15], s%d offen offset:%d" % (vr(O), 37 if tt < 2 else 38, (tt & 1) * 2304 + 64 * pr) + " sc1")
    O = 200 + 4 * cnt
    norm_pair(16, 0, 17, 1, O)
    a("s_nop 0")
    a("buffer_store_dwordx4 %s, v9, s[12:15], s39 offen sc1" % vr(O))
    stamp(a, 6)
    a("s_setprio 3")
    srd(a, 8, 78, 2048 * 2048 * 2)
    a("v_lshrrev_b32 v3, 3, v2")
    a("s_lshl_b32 s24, s3, 5")
    a("v_add_u32 v3, s24, v3")
    a("v_and_b32 v4, 7, v2")
    a("v_lshrrev_b32 v6, 4, v2")
    a("v_xor_b32 v6, v6, v4")
    a("v_lshlrev_b32 v6, 4, v6")
    a("v_lshl_add_u32 v10, v3, 12, v6")
    a("v_xor_b32 v11, 64, v10")
    a("v_add_u32 v11, %d, v11" % (32768 - 1024))
    a("v_add_u32 v12, %d, v10" % (2 * (32768 - 1024)))
    a("v_add_u32 v13, %d, v11" % (2 * (32768 - 1024)))
    a("v_lshlrev_b32 v14, 4, v2")
    a("s_lshl_b32 s26, s22, 19")
    a("s_mul_i32 s27, s23, %d" % (32 * 18432))
    a("s_lshl_b32 s24, s3, 12")
    a("s_add_u32 s27, s27, s24")
    if ZIMG: a("s_add_u32 s27, s27, 0x%x" % ZIMG)
    a("s_lshl_b32 s25, s3, 9")
    a("s_sub_u32 s32, s25, s24")
    a("s_add_u32 s32, s32, 16384")
    a("s_add_u32 s24, s24, %d" % RB)
    a("s_waitcnt vmcnt(0) lgkmcnt(0)")
    a("v_mov_b32 v26, %d" % LC)
    a("v_mov_b32 v27, 1")
    a("s_mov_b64 exec, 1")
    a("ds_add_rtn_u32 v28, v26, v27")
    a("s_waitcnt lgkmcnt(0)")
    a("v_readfirstlane_b32 s36, v28")
    a("s_cmp_lg_u32 s36, 3")
    a("s_cbranch_scc1 %s_nozs" % name)
    a("v_mov_b32 v28, 0")
    a("buffer_store_dword v27, v28, s[12:15], s97 offen sc1")
    a.label("%s_nozs" % name)
    a("s_mov_b64 exec, -1")
    stamp(a, 7)
    srd(a, 16, 88, 576 * 2048 * 2)
    srd(a, 84, 90, 576 * 2)
    for g in range(4):
        a("s_add_u32 s35, s24, %d" % (g * SLOT))
        a("s_mov_b32 m0, s35")
        a("s_add_u32 s36, s26, %d" % (128 * g))
        for n in range(4):
            a("buffer_load_dwordx4 v%d, s[8:11], s36 offen offset:%d lds" % (10 + n, n * 1024))
    a("s_mov_b32 s34, 0")
    a("s_cmp_lg_u32 s3, 0")
    a("s_cbranch_scc1 %s_pl" % name)
    a("v_and_b32 v28, 15, v2")
    a("v_lshlrev_b32 v30, 2, v28")
    a("v_lshlrev_b32 v28, 12, v28")
    a("s_lshl_b32 s52, s23, 8")
    a("s_add_u32 s52, s52, 0x%x" % ZFLG)
    a.label("%s_pz0" % name)
    a("buffer_load_dword v31, v30, s[60:63], 0 offen sc1")
    a("s_add_u32 s34, s34, 1")
    a("s_waitcnt vmcnt(0)")
    a("v_cmp_gt_u32 vcc, 16, v31")
    a("s_cmp_gt_u32 s34, %d" % SPIN_MAX)
    a("s_cbranch_scc1 %s_pz" % name)
    a("s_cbranch_vccz %s_pz" % name)
    a("s_sleep 32")
    a("s_branch %s_pz0" % name)
    a.label("%s_pz" % name)
    a("buffer_load_dword v29, v28, s[12:15], s52 offen sc1")
    a("s_add_u32 s34, s34, 1")
    a("s_waitcnt vmcnt(0)")
    a("v_cmp_ne_u32 vcc, 1, v29")
    a("s_cmp_gt_u32 s34, %d" % SPIN_MAX)
    a("s_cbranch_scc1 %s_pzx" % name)
    a("s_cbranch_vccz %s_pzx" % name)
    a("s_sleep 8")
    a("s_branch %s_pz" % name)
    a.label("%s_pzx" % name)
    a("v_mov_b32 v27, 1")
    a("ds_write_b32 v26, v27 offset:4")
    a("s_branch %s_pgo" % name)
    a.label("%s_pl" % name)
    a("ds_read_b32 v27, v26 offset:4")
    a("s_add_u32 s34, s34, 1")
    a("s_waitcnt lgkmcnt(0)")
    a("v_readfirstlane_b32 s36, v27")
    a("s_cmp_gt_u32 s34, %d" % (SPIN_MAX * 20))
    a("s_cbranch_scc1 %s_pgo" % name)
    a("s_cmp_lg_u32 s36, 0")
    a("s_cbranch_scc1 %s_pgo" % name)
    a("s_sleep 2")
    a("s_branch %s_pl" % name)
    a.label("%s_pgo" % name)
    stamp(a, 8)
    for g in range(4):
        a("s_add_u32 s35, s24, %d" % (g * SLOT + TREG))
        a("s_mov_b32 m0, s35")
        a("s_add_u32 s36, s27, %d" % (18432 * g))
        a("s_add_u32 s37, s36, s32")
        for n in range(4):
            a("buffer_load_dwordx4 v14, s[12:15], s36 offen offset:%d sc1 lds" % (n * 1024))
        a("s_add_u32 s35, s35, s32")
        a("s_mov_b32 m0, s35")
        a("s_mov_b64 exec, 0xffffffff")
        a("buffer_load_dwordx4 v14, s[12:15], s37 offen sc1 lds")
        a("s_mov_b64 exec, -1")
    a("s_add_u32 s26, s26, 512")
    a("s_add_u32 s27, s27, %d" % (4 * 18432))
    a("s_mov_b32 s33, 0")
    a("s_lshl_b32 s43, s2, 2")
    a("s_add_u32 s43, s43, s3")
    a("s_and_b32 s53, s43, 1")
    a("s_sub_u32 s36, s43, 448")
    a("s_lshr_b32 s37, s43, 1")
    a("s_cmp_ge_u32 s43, 896")
    a("s_cselect_b32 s43, s36, s37")
    a("s_cselect_b32 s53, 2, s53")
    a("s_waitcnt vmcnt(15)")
    a("s_barrier")
    a("s_waitcnt vmcnt(10)")
    a("s_barrier")
    a("s_waitcnt vmcnt(5)")
    a("s_barrier")
    a("s_mov_b32 s34, 4")
    def issue2():
        a("s_add_u32 s35, s33, s24")
        a("s_mov_b32 m0, s35")
        a("s_add_u32 s36, s35, %d" % TREG)
        for n in range(4):
            a("buffer_load_dwordx4 v%d, s[8:11], s26 offen offset:%d lds" % (10 + n, n * 1024))
        a("s_mov_b32 m0, s36")
        a("s_add_u32 s37, s27, s32")
        for n in range(4):
            a("buffer_load_dwordx4 v14, s[12:15], s27 offen offset:%d sc1 lds" % (n * 1024))
        a("s_add_u32 s36, s36, s32")
        a("s_mov_b32 m0, s36")
        a("s_mov_b64 exec, 0xffffffff")
        a("buffer_load_dwordx4 v14, s[12:15], s37 offen sc1 lds")
        a("s_mov_b64 exec, -1")
        a("s_add_u32 s26, s26, 128")
        a("s_add_u32 s27, s27, 18432")
        a("s_add_u32 s33, s33, %d" % SLOT)
        a("s_cmp_eq_u32 s33, %d" % (R * SLOT))
        a("s_cselect_b32 s33, 0, s33")
    a.label("%s_lloop" % name)
    issue2()
    a("s_cmp_eq_u32 s34, 18")
    a("s_cbranch_scc1 %s_hk1" % name)
    a("s_cmp_eq_u32 s34, 21")
    a("s_cbranch_scc1 %s_hk2" % name)
    a("s_waitcnt vmcnt(9)")
    a.label("%s_lcont" % name)
    a("s_barrier")
    a("s_add_u32 s34, s34, 1")
    a("s_cmp_lt_u32 s34, 32")
    a("s_cbranch_scc1 %s_lloop" % name)
    a("s_branch %s_ldone" % name)
    a.label("%s_hk1" % name)
    a("v_and_b32 v28, 15, v2")
    a("v_lshlrev_b32 v28, 2, v28")
    a("buffer_load_dword v29, v28, s[60:63], 0 offen offset:128 sc1")
    a("s_waitcnt vmcnt(10)")
    a("s_branch %s_lcont" % name)
    a.label("%s_hk2" % name)
    a("s_mov_b32 s52, 0")
    a.label("%s_hk2l" % name)
    a("v_cmp_gt_u32 vcc, 16, v29")
    a("s_add_u32 s52, s52, 1")
    a("s_cmp_gt_u32 s52, %d" % SPIN_MAX)
    a("s_cbranch_scc1 %s_hk2g" % name)
    a("s_cbranch_vccz %s_hk2g" % name)
    a("s_sleep 16")
    a("buffer_load_dword v29, v28, s[60:63], 0 offen offset:128 sc1")
    a("s_waitcnt vmcnt(0)")
    a("s_branch %s_hk2l" % name)
    a.label("%s_hk2g" % name)
    nconv = emit_conv_loads(a, " sc1")
    a("s_waitcnt vmcnt(%d)" % (9 + nconv))
    a("s_branch %s_lcont" % name)
    a.label("%s_ldone" % name)
    a("s_waitcnt vmcnt(0)")
    a("s_barrier")
    a("s_mov_b32 s26, s53")
    a("s_and_b32 s27, s3, 1")
    a("s_mul_i32 s27, s27, %d" % CJ_SIZE)
    a("s_lshr_b32 s36, s3, 1")
    a("s_mul_i32 s36, s36, %d" % SLOT)
    a("s_add_u32 s27, s27, s36")
    a("s_add_u32 s27, s27, %d" % RB)
    def mid():
        a("s_barrier")
        a("s_setprio 0")
    sv = set(DBG); DBG.discard("stamp")
    lb_ = len(a.lines)
    emit_conv_job(a, name, mid)
    for n_ in range(lb_, len(a.lines)):
        if "buffer_store_dwordx2" in a.lines[n_]: a.lines[n_] += " sc1"
    DBG.update(sv)
    stamp(a, 9)
    c_common()
    cTa = [4, 4]; cTb = [6, 6]; cF_ = 8; cFh = 9
    kTa = 88; kTb = 90; kF = 92; kFh = 93
    a("v_and_b32 v3, 15, v2")
    a("v_lshrrev_b32 v10, 4, v2")
    a("s_and_b32 s26, s3, 1")
    a("s_lshl_b32 s26, s26, 2")
    a("v_add_u32 v10, s26, v10")
    a("v_lshrrev_b32 v11, 1, v3")
    a("v_xor_b32 v10, v10, v11")
    a("v_lshlrev_b32 v10, 4, v10")
    a("v_lshl_add_u32 v10, v3, 7, v10")
    a("s_lshr_b32 s26, s3, 1")
    a("s_lshl_b32 s26, s26, 13")
    a("v_add_u32 v10, s26, v10")
    a("s_lshl_b32 s26, s53, 12")
    a("v_add_u32 v%d, s26, v10" % kTa)
    a("s_xor_b32 s26, s26, 4096")
    a("v_add_u32 v%d, s26, v10" % kTb)
    a("v_lshrrev_b32 v10, 2, v2")
    a("v_mul_u32_u24 v10, %d, v10" % CFS)
    a("v_and_b32 v11, 3, v2")
    a("v_lshl_add_u32 v10, v11, 3, v10")
    a("s_mul_i32 s26, s3, %d" % (32 * CFS))
    a("s_add_u32 s26, s26, %d" % CTREG)
    a("v_add_u32 v%d, s26, v10" % kF)
    a("v_add_u32 v%d, 128, v%d" % (kFh, kF))
    a("v_mov_b32 v26, %d" % LC)
    a("v_mov_b32 v27, 1")
    a("s_waitcnt vmcnt(0)")
    a("s_mov_b64 exec, 1")
    a("ds_add_rtn_u32 v28, v26, v27 offset:20")
    a("s_waitcnt lgkmcnt(0)")
    a("v_readfirstlane_b32 s36, v28")
    a("s_cmp_lg_u32 s36, 3")
    a("s_cbranch_scc1 %s_nocs" % name)
    a("s_and_b32 s36, s2, 15")
    a("s_lshl_b32 s36, s36, 2")
    a("s_add_u32 s36, s36, 192")
    a("v_mov_b32 v28, s36")
    a("buffer_atomic_add v27, v28, s[60:63], 0 offen sc1")
    a.label("%s_nocs" % name)
    a("s_mov_b64 exec, -1")
    fin_loads()
    core3 = G.Core(a, ACC, FB[0], FB[1], CFS, CTREG, cTa, cTb, cF_, cFh)
    pairs = ((cTa[0], kTa), (cF_, kF), (cTb[0], kTb), (cFh, kFh))
    a("s_mov_b32 s27, %d" % C0)
    for d, s_ in pairs: a("v_add_u32 v%d, s27, v%d" % (d, s_))
    for r in range(ACC, ACC + 72): a("v_mov_b32 v%d, 0" % r)
    a("s_mov_b32 s33, 0")
    a("s_barrier")
    stamp(a, 10)
    core3.prime(0, core3.reads(0, 0))
    def citer(buf):
        core3.trk.drain()
        a("s_barrier")
        a("s_add_u32 s27, s27, %d" % CSL)
        a("s_cmp_eq_u32 s27, %d" % CW)
        a("s_cselect_b32 s27, %d, s27" % RB)
        pre = ["v_add_u32 v%d, s27, v%d" % (d, s_) for d, s_ in pairs]
        core3.phase(buf, core3.reads(1 - buf, 0), pre=pre)
    a.label("%s_ccloop" % name)
    citer(0); citer(1)
    a("s_add_u32 s33, s33, 1")
    a("s_cmp_lt_u32 s33, 9")
    a("s_cbranch_scc1 %s_ccloop" % name)
    core3.trk.drain()
    stamp(a, 11)
    a("s_mul_i32 s33, s3, %d" % (18 * 1024))
    a("s_add_u32 s33, s33, %d" % C0)
    a("v_lshlrev_b32 v10, 4, v2")
    a("v_add_u32 v11, s33, v10")
    a("s_nop 4")
    for n, (ft, tt) in enumerate(TILES):
        a("ds_write_b128 v11, %s offset:%d" % (vr(core3.accr(ft, tt)), 1024 * tidx(ft, tt)))
        if n in (7, 13): a("s_waitcnt lgkmcnt(4)")
    a("s_waitcnt lgkmcnt(0) vmcnt(0)")
    a.label("%s_cfin" % name)
    a("s_barrier")
    stamp(a, 12)
    a("v_lshlrev_b32 v10, 4, v2")
    a("v_lshrrev_b32 v11, 2, v2")
    a("v_lshlrev_b32 v11, 7, v11")
    a("v_and_b32 v12, 3, v2")
    a("v_lshl_add_u32 v11, v12, 3, v11")
    a("s_mov_b32 s33, 0xbfb8aa3b")
    PT = 16; YR = 64
    for s_ in range(3):
        b = 64 + 4 * s_
        if s_ == 2:
            a("s_cmp_ge_u32 s54, 2")
            a("s_cbranch_scc1 %s_rd" % name)
        a("v_add_u32 v4, s%d, v10" % (b + 2))
        a("v_add_u32 v5, s%d, v11" % (b + 1))
        for q in range(4):
            a("ds_read_b128 %s, v4 offset:%d" % (vr(PT + 16 * s_ + 4 * q), 18432 * q))
        a("ds_read_b64_tr_b16 %s, v5" % vr(YR + 2 * s_, 2))
    a.label("%s_rd" % name)
    T = 104
    for s_ in range(3):
        b = 64 + 4 * s_
        if s_ == 0: a("s_waitcnt lgkmcnt(5)")
        if s_ == 1: a("s_waitcnt lgkmcnt(0)")
        if s_ == 2:
            a("s_cmp_ge_u32 s54, 2")
            a("s_cbranch_scc1 %s_done" % name)
        o = PT + 16 * s_; X = XR + 2 * s_; Y = YR + 2 * s_; S_ = ST + 2 * s_
        for h in (0, 2):
            a("v_pk_add_f32 %s, %s, %s" % (vr(o + h, 2), vr(o + h, 2), vr(o + 4 + h, 2)))
            a("v_pk_add_f32 %s, %s, %s" % (vr(o + 8 + h, 2), vr(o + 8 + h, 2), vr(o + 12 + h, 2)))
        for h in (0, 2):
            a("v_pk_add_f32 %s, %s, %s" % (vr(o + h, 2), vr(o + h, 2), vr(o + 8 + h, 2)))
        rnd_pair(a, T + 20, o, o + 1); rnd_pair(a, T + 21, o + 2, o + 3)
        for r in range(4): a("v_mul_f32 v%d, s33, v%d" % (T + r, o + r))
        for r in range(4): a("v_exp_f32 v%d, v%d" % (T + r, T + r))
        a("v_lshlrev_b32 v%d, 16, v%d" % (T + 4, X)); a("v_and_b32 v%d, 0xffff0000, v%d" % (T + 5, X))
        a("v_lshlrev_b32 v%d, 16, v%d" % (T + 6, X + 1)); a("v_and_b32 v%d, 0xffff0000, v%d" % (T + 7, X + 1))
        for r in range(4): a("v_add_f32 v%d, 1.0, v%d" % (T + r, T + r))
        for r in range(4): a("v_rcp_f32 v%d, v%d" % (T + r, T + r))
        for r in range(4): a("v_sub_f32 v%d, v%d, v%d" % (T + 12 + r, T + 4 + r, S_))
        a("v_lshlrev_b32 v%d, 16, v%d" % (T + 8, Y)); a("v_and_b32 v%d, 0xffff0000, v%d" % (T + 9, Y))
        a("v_lshlrev_b32 v%d, 16, v%d" % (T + 10, Y + 1)); a("v_and_b32 v%d, 0xffff0000, v%d" % (T + 11, Y + 1))
        for r in range(4): a("v_mul_f32 v%d, v%d, v%d" % (o + r, o + r, T + r))
        rnd_pair(a, T + 20, T + 12, T + 13); rnd_pair(a, T + 21, T + 14, T + 15)
        rnd_pair(a, T + 22, o, o + 1); rnd_pair(a, T + 23, o + 2, o + 3)
        for r in range(4): a("v_mul_f32 v%d, v%d, v%d" % (T + 12 + r, T + 12 + r, S_ + 1))
        rnd_pair(a, T + 20, T + 12, T + 13); rnd_pair(a, T + 21, T + 14, T + 15)
        for r in range(4): a("v_mul_f32 v%d, v%d, v%d" % (T + 12 + r, T + 12 + r, T + 8 + r))
        rnd_pair(a, T + 20, T + 12, T + 13); rnd_pair(a, T + 21, T + 14, T + 15)
        for r in range(4): a("v_mul_f32 v%d, v%d, v%d" % (T + 12 + r, T + 12 + r, o + r))
        rnd_pair(a, T + 20, T + 12, T + 13); rnd_pair(a, T + 21, T + 14, T + 15)
        for r in range(4): a("v_add_f32 v%d, v%d, v%d" % (T + 12 + r, T + 12 + r, T + 4 + r))
        a("v_cvt_pk_bf16_f32 v%d, v%d, v%d" % (X, T + 12, T + 13))
        a("v_cvt_pk_bf16_f32 v%d, v%d, v%d" % (X + 1, T + 14, T + 15))
        a("buffer_store_dwordx2 %s, v13, s[28:31], s%d offen" % (vr(X, 2), b))
    a.label("%s_done" % name)
    stamp(a, 13)
    G.stamp_rt(a, 1)
    a.label("%s_end" % name)
    a("s_endpgm")
    return a.text(), kernel_desc(name, 256, 256), (name, 256, 512, YOFF + 10240)

def gen_kf8(name="k1_kernel", R=4):
    a = Asm()
    RB = 4096; SLOT = 34816; TREG = 16384; FS = 288; RST = 0
    LDSB = RB + R * SLOT
    LC = 2048
    ZFLG = 0x2D00000; PFL = 128
    C0 = 77824; CW = 151552; CSL = 36864; YOFF = 151552; CTREG = 16384; CFS = 160
    from gen3 import emit_conv_loads, emit_conv_job, CJ_SIZE
    def capture(f, *args):
        lb = len(a.lines); f(*args); out = a.lines[lb:]; del a.lines[lb:]; return out

    def c_common():
        a("s_load_dwordx2 s[4:5], s[0:1], 0")
        a("s_load_dwordx2 s[16:17], s[0:1], 88")
        a("s_and_b32 s20, s2, 7")
        a("s_lshr_b32 s21, s2, 3")
        a("s_and_b32 s22, s20, 3")
        a("s_lshl_b32 s22, s22, 3")
        a("s_and_b32 s23, s21, 7")
        a("s_add_u32 s22, s22, s23")
        a("s_lshr_b32 s23, s20, 2")
        a("s_lshl_b32 s23, s23, 2")
        a("s_lshr_b32 s24, s21, 3")
        a("s_add_u32 s23, s23, s24")
        a("s_lshr_b32 s52, s23, 1")
        a("s_and_b32 s53, s23, 1")
        a("s_lshl_b32 s54, s98, 2")
        a("s_add_u32 s54, s54, s3")
        a("s_waitcnt lgkmcnt(0)")
        srd(a, 8, 4, 2048 * 576 * 2)
        srd(a, 28, 16, 2048 * 576 * 2)
    XR = 200; ST = 208
    def fin_loads():
        a("v_and_b32 v3, 15, v2")
        a("v_lshrrev_b32 v10, 4, v2")
        a("v_mul_u32_u24 v13, 1152, v3")
        a("v_lshl_add_u32 v13, v10, 3, v13")
        a("v_lshlrev_b32 v12, 3, v3")
        for s_ in range(3):
            if s_ == 2:
                a("s_cmp_ge_u32 s54, 2")
                a("s_cbranch_scc1 %s_fl%d" % (name, fin_loads.cnt))
            b = 64 + 4 * s_
            if s_ < 2:
                a("s_add_u32 s36, s54, %d" % (8 * s_))
                a("s_lshr_b32 s37, s36, 2")
                a("s_and_b32 s38, s36, 3")
                a("s_mul_i32 s39, s53, 160")
                a("s_lshl_b32 s40, s37, 5")
                a("s_add_u32 s39, s39, s40")
            else:
                a("s_add_u32 s36, s54, 16")
                a("s_mov_b32 s37, 4")
                a("s_mov_b32 s38, s54")
                a("s_mov_b32 s39, 128")
            a("s_lshl_b32 s40, s53, 1")
            a("s_add_u32 s38, s38, s40")
            a("s_and_b32 s38, s38, 3")
            a("s_lshl_b32 s40, s22, 2")
            a("s_add_u32 s40, s40, s38")
            a("s_lshl_b32 s40, s40, 4")
            a("s_mul_i32 s%d, s40, 1152" % b)
            a("s_add_u32 s%d, s%d, s39" % (b, b))
            a("s_mul_i32 s39, s52, 288")
            a("s_add_u32 s%d, s%d, s39" % (b, b))
            a("s_lshl_b32 s%d, s37, 11" % (b + 1))
            a("s_lshl_b32 s39, s38, 5")
            a("s_add_u32 s%d, s%d, s39" % (b + 1, b + 1))
            a("s_add_u32 s%d, s%d, %d" % (b + 1, b + 1, YOFF))
            a("s_lshl_b32 s%d, s36, 10" % (b + 2))
            a("s_add_u32 s%d, s%d, %d" % (b + 2, b + 2, C0))
            a("s_lshl_b32 s40, s40, 3")
            a("s_add_u32 s40, s40, 0x%x" % STATS1)
            a("buffer_load_dwordx2 %s, v13, s[8:11], s%d offen" % (vr(XR + 2 * s_, 2), b))
            a("buffer_load_dwordx2 %s, v12, s[12:15], s40 offen sc1" % vr(ST + 2 * s_, 2))
        a.label("%s_fl%d" % (name, fin_loads.cnt))
        fin_loads.cnt += 1
    fin_loads.cnt = 0
    kernel_begin(a, name)
    a("s_load_dwordx2 s[80:81], s[0:1], 0")
    a("s_load_dwordx2 s[4:5], s[0:1], 56")
    a("s_load_dwordx2 s[6:7], s[0:1], 104")
    a("s_load_dwordx2 s[18:19], s[0:1], 96")
    a("s_cmp_ge_u32 s2, 256")
    a("s_cbranch_scc1 %s_end" % name)
    a("v_lshrrev_b32 v1, 6, v0")
    a("v_and_b32 v2, 63, v0")
    a("v_readfirstlane_b32 s3, v1")
    G2.tile_ij(a)
    a("s_lshr_b32 s98, s3, 2")
    a("s_mov_b32 s54x, 0".replace("s54x", "s99"))
    a("s_and_b32 s3, s3, 3")
    a("s_lshr_b32 s24, s3, 1")
    a("s_and_b32 s25, s3, 1")
    a("v_and_b32 v3, 15, v2")
    VT = 204; VF = 208
    def loader_setup():
        a("v_lshrrev_b32 v5, 3, v2")
        a("v_and_b32 v4, 7, v2")
        a("s_lshl_b32 s36, s3, 5")
        a("v_add_u32 v5, s36, v5")
        a("v_lshrrev_b32 v7, 4, v2")
        a("v_xor_b32 v7, v7, v4")
        a("v_mul_u32_u24 v6, 1152, v5")
        a("v_lshl_add_u32 v%d, v7, 4, v6" % VT)
        a("v_xor_b32 v%d, 64, v%d" % (VT + 1, VT))
        a("v_add_u32 v%d, %d, v%d" % (VT + 1, 9216 - 1024, VT + 1))
        a("v_add_u32 v%d, %d, v%d" % (VT + 2, 2 * (9216 - 1024), VT))
        a("v_add_u32 v%d, %d, v%d" % (VT + 3, 2 * (9216 - 1024), VT + 1))
        a("s_lshl_b32 s84, s3, 12")
        a("s_add_u32 s84, s84, %d" % RB)
        a("s_lshl_b32 s85, s3, 9")
        a("s_add_u32 s85, s85, %d" % (RB + TREG + 16384))
    def loader_setup2():
        for n in range(5):
            if n < 4:
                a("s_lshl_b32 s36, s3, 8")
                a("s_add_u32 s36, s36, %d" % (64 * n))
            else:
                a("s_lshl_b32 s36, s3, 5")
                a("s_add_u32 s36, s36, 1024")
            a("v_add_u32 v6, s36, v2")
            a("v_mul_u32_u24 v7, 3641, v6")
            a("v_lshrrev_b32 v7, 16, v7")
            a("v_mul_u32_u24 v8, 18, v7")
            a("v_sub_u32 v8, v6, v8")
            a("v_and_b32 v9, 35, v7")
            a("v_bfe_u32 v6, v7, 2, 2")
            a("v_lshl_add_u32 v9, v6, 3, v9")
            a("v_bfe_u32 v6, v7, 4, 1")
            a("v_lshl_add_u32 v9, v6, 2, v9")
            a("v_mul_u32_u24 v9, 9216, v9")
            a("v_lshl_add_u32 v%d, v8, 4, v9" % (VF + n))
            if 0 < n < 4: a("v_subrev_u32 v%d, %d, v%d" % (VF + n, 1024 * n, VF + n))
    def issueT(g):
        st = g % 9
        a("s_add_u32 s86, s84, %d" % ((g % R) * SLOT))
        a("s_mov_b32 m0, s86")
        a("s_add_u32 s87, s82, %d" % (128 * st))
        for n in range(4):
            a("buffer_load_dwordx4 v%d, s[28:31], s87 offen offset:%d lds" % (VT + n, 1024 * n))
    def issueF(g):
        st = g % 9
        a("s_add_u32 s86, s84, %d" % ((g % R) * SLOT + TREG))
        a("s_mov_b32 m0, s86")
        a("s_add_u32 s87, s83, %d" % (64 * 9216 * st + (4608 if g < 9 else 0)))
        for n in range(4):
            a("buffer_load_dwordx4 v%d, s[8:11], s87 offen offset:%d lds" % (VF + n, 1024 * n))
        a("s_add_u32 s86, s85, %d" % ((g % R) * SLOT))
        a("s_mov_b32 m0, s86")
        a("s_mov_b64 exec, 0xffffffff")
        a("buffer_load_dwordx4 v%d, s[8:11], s87 offen lds" % (VF + 4))
        a("s_mov_b64 exec, -1")
    def srds_main():
        srd(a, 28, 80, 2048 * 576 * 2)
        srd(a, 8, 4, 576 * 4608 * 2)
        srd(a, 12, 6, WS_BYTES)
        srd(a, 60, 18, 256)
        a("s_mul_i32 s82, s22, %d" % (128 * 1152))
        a("s_mul_i32 s83, s23, 288")
    ACC = 128; FB = [16, 52]; CS = 216; ONE = 236
    vTa = [4, 5]; vTb = [6, 7]; vF = 8; vFh = 9
    bTa = [88, 89]; bTb = [90, 91]; bF = 92; bFh = 93
    def mma_setup():
        a("v_lshrrev_b32 v10, 4, v2")
        a("v_lshrrev_b32 v11, 1, v3")
        a("v_xor_b32 v10, v10, v11")
        a("v_lshlrev_b32 v10, 4, v10")
        a("v_lshl_add_u32 v10, v3, 7, v10")
        a("s_lshl_b32 s26, s24, 13")
        a("s_add_u32 s26, s26, %d" % RB)
        a("v_add_u32 v10, s26, v10")
        a("s_lshl_b32 s26, s25, 12")
        a("v_add_u32 v%d, s26, v10" % bTa[0])
        a("s_xor_b32 s26, s26, 4096")
        a("v_add_u32 v%d, s26, v10" % bTb[0])
        a("v_xor_b32 v%d, 64, v%d" % (bTa[1], bTa[0]))
        a("v_xor_b32 v%d, 64, v%d" % (bTb[1], bTb[0]))
        a("v_lshrrev_b32 v10, 2, v2")
        a("v_mul_u32_u24 v10, %d, v10" % FS)
        a("v_and_b32 v11, 3, v2")
        a("v_lshl_add_u32 v10, v11, 3, v10")
        a("v_add_u32 v10, %d, v10" % (RB + TREG))
        a("s_mul_i32 s26, s25, 160")
        a("v_add_u32 v%d, s26, v10" % bF)
        a("v_add_u32 v%d, 128, v10" % bFh)
        for r in range(ACC, ACC + 72): a("v_mov_b32 v%d, 0" % r)
        for r in range(CS, CS + 20): a("v_mov_b32 v%d, 0" % r)
        for r in range(ONE, ONE + 4): a("v_mov_b32 v%d, 0x3f803f80" % r)
    def mma_addr(slot):
        a("s_mov_b32 s27, %d" % (slot * SLOT))
        for d, s_ in ((vTa[0], bTa[0]), (vTb[0], bTb[0]), (vTa[1], bTa[1]), (vTb[1], bTb[1]), (vF, bF), (vFh, bFh)):
            a("v_add_u32 v%d, s27, v%d" % (d, s_))
    core = G.Core(a, ACC, FB[0], FB[1], FS, TREG, vTa, vTb, vF, vFh)
    trk = core.trk
    a("s_cmp_eq_u32 s98, 0")
    a("s_cbranch_scc1 %s_A0" % name)
    a("s_setprio 3")
    loader_setup()
    a("s_waitcnt lgkmcnt(0)")
    srds_main()
    vm = VmTracker(a)
    def issue(g, vmx):
        issueT(g); issueF(g); vmx.issue("S%d" % g, 9)
    issueT(0)
    loader_setup2()
    issueF(0); vm.issue("S0", 9)
    issue(1, vm); issue(2, vm); issue(3, vm)
    a("s_add_u32 s3, s3, 4"); stamp_setup(a, 1); stamp(a, 0); a("s_sub_u32 s3, s3, 4")
    mma_setup()
    RA = 96; XB = 112
    for r in range(RA, RA + 16): a("v_mov_b32 v%d, 0" % r)
    a("v_lshrrev_b32 v10, 4, v2")
    a("v_lshrrev_b32 v11, 1, v3")
    a("v_xor_b32 v10, v10, v11")
    a("v_lshlrev_b32 v10, 4, v10")
    a("v_lshl_add_u32 v10, v3, 7, v10")
    a("v_add_u32 v12, s84, v10")
    a("v_xor_b32 v13, 64, v12")
    def rs_rd(g):
        a("v_add_u32 v10, %d, v12" % ((g % R) * SLOT))
        a("v_add_u32 v11, %d, v13" % ((g % R) * SLOT))
        for h in range(2):
            for n in range(2):
                a("ds_read_b128 %s, v%d offset:%d" % (vr(XB + 8 * h + 4 * n), 10 + h, 2048 * n))
    def rs_do():
        for h in range(2):
            for n in range(2):
                x = XB + 8 * h + 4 * n
                a("v_mfma_f32_16x16x32_bf16 %s, %s, %s, %s" % (vr(RA + 4 * n), vr(ONE), vr(x), vr(RA + 4 * n)))
                a("v_mfma_f32_16x16x32_bf16 %s, %s, %s, %s" % (vr(RA + 8 + 4 * n), vr(x), vr(x), vr(RA + 8 + 4 * n)))
    def interleave(dma, comp, vmx=None):
        groups = []; cur = []
        for l in dma:
            cur.append(l)
            if "buffer_load" in l and not any("exec, 0xffffffff" in x for x in cur[-2:]):
                groups.append(cur); cur = []
            elif "exec, -1" in l:
                groups.append(cur); cur = []
        if cur: groups.append(cur)
        ns = max(1, len(groups))
        per = (len(comp) + ns - 1) // ns
        for g in groups:
            a.lines.extend(g)
            a.lines.extend(comp[:per]); comp = comp[per:]
        a.lines.extend(comp)
    vm.wait(["S0"])
    a("s_barrier")
    stamp(a, 1)
    rs_rd(0)
    vm.wait(["S1"])
    a("s_barrier")
    for k in range(9):
        a("s_waitcnt lgkmcnt(0)")
        dma = capture(lambda: (issueT(k + 3), issueF(k + 3))) if k >= 1 else []
        interleave(dma, capture(rs_do))
        if k >= 1: vm.issue("S%d" % (k + 3), 9)
        if k < 8:
            rs_rd(k + 1)
        else:
            a("s_nop 7")
            a("v_lshrrev_b32 v10, 4, v2")
            a("v_lshrrev_b32 v11, 2, v3")
            a("v_and_b32 v12, 3, v3")
            for n in range(2):
                G_ = RA + 8 + 4 * n
                for r in range(1, 4):
                    a("v_cmp_eq_u32 vcc, %d, v12" % r)
                    a("s_nop 1")
                    a("v_cndmask_b32 v%d, v%d, v%d, vcc" % (G_, G_, G_ + r))
            ML = 112
            for n in range(2):
                emit_ln_finish(a, RA + 4 * n, RA + 8 + 4 * n, 576, ML + 2 * n, ML + 2 * n + 1, 120)
                a("v_mov_b32 v%d, v%d" % (117 + 2 * n, ML + 2 * n + 1))
                a("v_sub_f32 v%d, 0, v%d" % (116 + 2 * n, ML + 2 * n))
            a("s_lshl_b32 s35, s3, 8")
            a("v_lshlrev_b32 v13, 3, v3")
            a("v_add_u32 v12, s35, v13")
            a("v_cmp_eq_u32 vcc, v10, v11")
            a("s_and_saveexec_b64 s[36:37], vcc")
            for n in range(2):
                a("ds_write_b64 v12, %s offset:%d" % (vr(116 + 2 * n, 2), RST + 128 * n))
            a("s_mov_b64 exec, s[36:37]")
            a("s_cmp_lg_u32 s23, 0")
            a("s_cbranch_scc1 %s_nost1" % name)
            a("s_lshl_b32 s35, s22, 7")
            a("s_lshl_b32 s36, s3, 5")
            a("s_add_u32 s35, s35, s36")
            a("s_lshl_b32 s35, s35, 3")
            a("s_add_u32 s35, s35, 0x%x" % STATS1)
            a("v_mov_b32 v11, 0x7ffffff0")
            a("v_cndmask_b32 v13, v11, v13, vcc")
            for n in range(2):
                a("buffer_store_dwordx2 %s, v13, s[12:15], s35 offen offset:%d sc1" % (vr(ML + 2 * n, 2), 128 * n))
            a.label("%s_nost1" % name)
            mma_addr(9 % R)
            a("s_mov_b32 s33, 0")
            a("s_setprio 0")
        vm.wait(["S%d" % (k + 2)], "lgkmcnt(0)" if k == 8 else "")
        if k < 8: a("s_barrier")
    a("s_branch %s_mma" % name)
    a.label("%s_A0" % name)
    emit_code_prefetch(a, name)
    a("s_load_dwordx4 s[64:67], s[0:1], 8")
    a("s_load_dwordx2 s[76:77], s[0:1], 24")
    a("s_load_dwordx2 s[78:79], s[0:1], 64")
    mma_setup()
    loader_setup(); loader_setup2()
    a("s_waitcnt lgkmcnt(0)")
    srds_main()
    srd(a, 68, 66, 2048 * 576 * 2)
    a("s_mov_b32 s88, s64"); a("s_mov_b32 s89, s65")
    srd(a, 64, 88, 2048 * 576 * 2)
    srd(a, 72, 76, 576 * 8)
    stamp_setup(a, 1); stamp(a, 0)
    def gran_addr():
        a("v_lshrrev_b32 v10, 4, v2")
        a("s_lshl_b32 s36, s25, 1")
        a("v_add_u32 v11, s36, v10")
        a("v_and_b32 v11, 3, v11")
        a("v_lshl_add_u32 v11, v11, 4, v3")
        a("v_lshlrev_b32 v94, 8, v11")
        a("s_lshl_b32 s59, s22, 7")
        a("s_lshl_b32 s36, s24, 6")
        a("s_add_u32 s59, s59, s36")
        a("s_lshl_b32 s59, s59, 8")
        a("s_add_u32 s59, s59, 0x%x" % STATS2)
        a("s_lshl_b32 s36, s23, 1")
        a("s_add_u32 s36, s36, s25")
        a("s_lshl_b32 s36, s36, 3")
        a("s_add_u32 s58, s36, s59")
    gran_addr()
    a("v_mov_b32 v12, 0"); a("v_mov_b32 v13, 0x80000000")
    a("buffer_store_dwordx2 v[12:13], v94, s[12:15], s58 offen sc1")
    a("s_lshl_b32 s36, s22, 4")
    a("s_add_u32 s36, s36, s23")
    a("s_lshl_b32 s36, s36, 8")
    a("s_add_u32 s97, s36, 0x%x" % ZFLG)
    a("v_mov_b32 v10, %d" % LC)
    a("v_mov_b32 v12, 0"); a("v_mov_b32 v13, 0")
    a("s_mov_b64 exec, 1")
    a("buffer_store_dword v12, v12, s[12:15], s97 offen sc1")
    a("buffer_store_dword v12, v12, s[12:15], s97 offen offset:%d sc1" % PFL)
    a("s_mov_b64 exec, -1")
    a("ds_write_b64 v10, v[12:13]")
    a("ds_write_b64 v10, v[12:13] offset:8")
    a("ds_write_b64 v10, v[12:13] offset:16")
    a("ds_write_b64 v10, v[12:13] offset:24")
    mma_addr(0)
    a("s_mov_b32 s33, 0")
    a("s_waitcnt lgkmcnt(0)")
    a("s_barrier")
    stamp(a, 1)
    a.label("%s_mma" % name)
    core.prime(0, core.reads(0, 0))
    trk.drain()
    nocs = [False]
    def mfmas(buf):
        L = []
        for ft in range(5):
            A = core.F(buf, ft)
            for tt in range(4 if ft < 4 else 2):
                c = core.accr(ft, tt); B = core.T(buf, tt)
                L.append(("v_mfma_f32_16x16x32_bf16 %s, %s, %s, %s" % (vr(c), vr(A), vr(B), vr(c)), list(range(A, A + 4)) + list(range(B, B + 4))))
            if not nocs[0]: L.append(("v_mfma_f32_16x16x32_bf16 %s, %s, %s, %s" % (vr(CS + 4 * ft), vr(A), vr(ONE), vr(CS + 4 * ft)), list(range(A, A + 4))))
        return L
    def phase(buf, pend):
        for (m, regs) in mfmas(buf):
            trk.need(regs)
            a(m)
            while pend:
                k, t = pend.pop(0)
                if k == "x":
                    a(t)
                    if t.startswith("s_"): continue
                else:
                    a(t[0]); trk.issue(t[1])
                break
        for k, t in pend:
            if k == "x": a(t)
            else: a(t[0]); trk.issue(t[1])
    def iteration(vw=True):
        if vw: a("s_waitcnt vmcnt(0)")
        a("s_barrier")
        rd = [("r", t) for t in core.reads(1, 1)]
        upd = ["s_add_u32 s27, s27, %d" % SLOT, "s_cmp_eq_u32 s27, %d" % (R * SLOT), "s_cselect_b32 s27, 0, s27"]
        tail = ["v_add_u32 v%d, s27, v%d" % (d, s_) for d, s_ in ((vTa[0], bTa[0]), (vF, bF), (vTb[0], bTb[0]), (vFh, bFh))]
        phase(0, rd[:1] + [("x", u) for u in upd] + rd[1:] + [("x", u) for u in tail])
        rd = [("r", t) for t in core.reads(0, 0)]
        tail = ["v_add_u32 v%d, s27, v%d" % (d, s_) for d, s_ in ((vTa[1], bTa[1]), (vTb[1], bTb[1]))] + ["s_add_u32 s33, s33, 1"]
        phase(1, rd + [("x", u) for u in tail])
    a.label("%s_cloop" % name)
    lb = len(a.lines); iteration(); st = copy.deepcopy(trk.out); del a.lines[lb:]; trk.out = copy.deepcopy(st)
    iteration()
    assert [sorted(x) for x in trk.out] == [sorted(x) for x in st]
    a("s_cmp_lt_u32 s33, 9")
    a("s_cbranch_scc1 %s_cloop" % name)
    trk.drain()
    stamp(a, 2)
    MR = 100; T = 72; ZP = 16
    def epi_in():
        gelu_consts(a)
        a("s_lshl_b32 s36, s24, 9")
        a("s_lshl_b32 s37, s25, 8")
        a("s_add_u32 s38, s36, s37")
        a("s_xor_b32 s37, s37, 256")
        a("s_add_u32 s39, s36, s37")
        a("v_lshlrev_b32 v10, 3, v3")
        a("v_add_u32 v11, s38, v10")
        a("ds_read_b64 %s, v11 offset:%d" % (vr(MR, 2), RST))
        a("ds_read_b64 %s, v11 offset:%d" % (vr(MR + 2, 2), RST + 128))
        a("v_add_u32 v11, s39, v10")
        a("ds_read_b64 %s, v11 offset:%d" % (vr(MR + 4, 2), RST))
        a("ds_read_b64 %s, v11 offset:%d" % (vr(MR + 6, 2), RST + 128))
        a("s_waitcnt lgkmcnt(0)")
    S = [108, 110, 52, 54]; Q = [109, 111, 53, 55]
    def gelu_ft(ft, stats):
        tts = range(4 if ft < 4 else 2)
        emit_fold_gelu(a, [(core.accr(ft, tt), CS + 4 * ft, MR + 2 * tt, ZP + 2 * tidx(ft, tt)) for tt in tts], T)
        if stats:
            for d in range(2):
                for tt in tts:
                    p = ZP + 2 * tidx(ft, tt) + d
                    a("v_dot2_f32_bf16 v%d, v%d, v%d, v%d" % (S[tt], p, ONE, S[tt]))
                    a("v_dot2_f32_bf16 v%d, v%d, v%d, v%d" % (Q[tt], p, p, Q[tt]))
    a("s_cmp_eq_u32 s98, 0")
    a("s_cbranch_scc1 %s_A1" % name)
    a("s_barrier")
    a("s_load_dwordx4 s[64:67], s[0:1], 8")
    a("s_load_dwordx2 s[76:77], s[0:1], 24")
    a("s_load_dwordx2 s[94:95], s[0:1], 80")
    a("s_load_dwordx2 s[92:93], s[0:1], 72")
    epi_in()
    srd(a, 68, 66, 2048 * 576 * 2)
    a("s_mov_b32 s88, s64"); a("s_mov_b32 s89, s65")
    srd(a, 64, 88, 2048 * 576 * 2)
    srd(a, 72, 76, 576 * 8)
    srd(a, 76, 94, 2304 * 576 * 2)
    srd(a, 28, 92, 2048 * 2)
    a("v_and_b32 v0, 255, v0")
    a("s_mov_b32 s41, s2")
    KDB = 240
    emit_kv_loads(a, 112, 240, 248, 252, 253)
    for ft in range(5): gelu_ft(ft, False)
    Z1R = 200; BI = 236
    for r_ in range(36): a("v_mov_b32 v%d, v%d" % (Z1R + r_, ZP + r_))
    stamp(a, 3)
    a("s_waitcnt vmcnt(0)")
    for n in range(11): a("v_mov_b32 v%d, v%d" % (16 + n, 112 + n))
    for n in range(8): a("v_mov_b32 v%d, v%d" % (32 + n, 240 + n))
    for n in range(4): a("v_mov_b32 v%d, v%d" % (44 + n, 248 + n))
    a("v_mov_b32 v56, v252"); a("v_mov_b32 v57, v253")
    for r_ in range(6): a("v_mov_b32 v%d, v%d" % (240 + r_, 88 + r_))
    a.label("%s_kvb" % name)
    emit_kv_compute(a, wait=False, store=False)
    a("s_mov_b32 s39, 0x%x" % KVT)
    a("buffer_store_dwordx4 v[120:123], v12, s[12:15], s39 offen sc1")
    a("buffer_store_dwordx4 v[124:127], v13, s[12:15], s39 offen sc1")
    a("s_add_u32 s41, s41, 256")
    a("s_cmp_ge_u32 s41, 288")
    a("s_cbranch_scc1 %s_kvbd" % name)
    emit_kv_loads(a)
    a("s_waitcnt vmcnt(0)")
    a("s_branch %s_kvb" % name)
    a.label("%s_kvbd" % name)
    for r_ in range(6): a("v_mov_b32 v%d, v%d" % (88 + r_, 240 + r_))
    a("s_mov_b32 s42, s2")
    emit_wot_loads(a, 100, 112, 720, 3)
    a("s_lshl_b32 s36, s22, 7")
    a("s_lshl_b32 s37, s24, 6")
    a("s_add_u32 s36, s36, s37")
    a("v_lshlrev_b32 v11, 1, v3")
    a("s_lshl_b32 s37, s25, 6")
    a("s_lshl_b32 s38, s36, 1")
    a("s_add_u32 s39, s38, s37")
    a("s_xor_b32 s37, s37, 64")
    a("s_add_u32 s36, s38, s37")
    a("buffer_load_ushort v96, v11, s[28:31], s39 offen")
    a("buffer_load_ushort v97, v11, s[28:31], s39 offen offset:32")
    a("buffer_load_ushort v98, v11, s[28:31], s36 offen")
    a("buffer_load_ushort v99, v11, s[28:31], s36 offen offset:32")
    for r in range(ACC, ACC + 72): a("v_mov_b32 v%d, 0" % r)
    a("v_lshrrev_b32 v10, 2, v2")
    a("v_lshlrev_b32 v10, 5, v10")
    a("v_and_b32 v11, 3, v2")
    a("v_lshl_add_u32 v10, v11, 3, v10")
    a("v_add_u32 v10, %d, v10" % (RB + TREG))
    a("s_mul_i32 s26, s25, 10240")
    a("v_add_u32 v%d, s26, v10" % bF)
    a("v_add_u32 v%d, 8192, v10" % bFh)
    core.FS = 32; core.FT = 2048
    mma_addr(0)
    a("s_mov_b32 s33, 0")
    stamp(a, 4)
    a("s_barrier")
    stamp(a, 5)
    core.prime(0, core.reads(0, 0))
    trk.drain()
    nocs[0] = True
    a.label("%s_gloop" % name)
    lb = len(a.lines); iteration(False); st = copy.deepcopy(trk.out); del a.lines[lb:]; trk.out = copy.deepcopy(st)
    iteration(False)
    assert [sorted(x) for x in trk.out] == [sorted(x) for x in st]
    a("s_cmp_lg_u32 s33, 3")
    a("s_cbranch_scc1 %s_ghk0" % name)
    a("s_waitcnt vmcnt(0)")
    for n in range(3):
        a("buffer_store_dwordx4 %s, v%d, s[12:15], s40 offen sc1" % (vr(100 + 4 * n), 112 + n))
    for tt in range(4): a("v_lshlrev_b32 v%d, 16, v%d" % (BI + 2 * tt, 96 + tt))
    a.label("%s_ghk0" % name)
    a("s_cmp_lg_u32 s33, 6")
    a("s_cbranch_scc1 %s_ghk" % name)
    a("s_waitcnt vmcnt(0)")
    a("v_mov_b32 v10, %d" % (LC + 8))
    a("v_mov_b32 v11, 1")
    a("s_mov_b64 exec, 1")
    a("ds_add_rtn_u32 v12, v10, v11")
    a("s_waitcnt lgkmcnt(0)")
    a("v_readfirstlane_b32 s36, v12")
    a("s_cmp_lg_u32 s36, 3")
    a("s_cbranch_scc1 %s_nokvs" % name)
    a("s_and_b32 s36, s2, 15")
    a("s_lshl_b32 s36, s36, 2")
    a("s_add_u32 s36, s36, 128")
    a("v_mov_b32 v10, s36")
    a("buffer_atomic_add v11, v10, s[60:63], 0 offen sc1")
    a.label("%s_nokvs" % name)
    a("s_mov_b64 exec, -1")
    a.label("%s_ghk" % name)
    a("s_cmp_lt_u32 s33, 32")
    a("s_cbranch_scc1 %s_gloop" % name)
    trk.drain()
    stamp(a, 6)
    G3.emit_k2_epilogue2(a, core, Z1R, BI, " sc1")
    stamp(a, 7)
    a("s_setprio 3")
    a("s_lshl_b32 s36, s22, 4")
    a("s_add_u32 s36, s36, s23")
    a("s_lshl_b32 s36, s36, 8")
    a("s_add_u32 s97, s36, 0x%x" % (ZFLG + PFL))
    c_common()
    a("v_lshlrev_b32 v14, 4, v2")
    a("s_mul_i32 s26, s22, %d" % (36 * 8192))
    a("s_lshl_b32 s24, s3, 12")
    a("s_add_u32 s26, s26, s24")
    a("s_add_u32 s26, s26, 0x%x" % PIMG)
    a("s_mul_i32 s27, s23, %d" % (18 * 20480))
    a("s_mul_i32 s25, s3, 5120")
    a("s_add_u32 s27, s27, s25")
    a("s_add_u32 s27, s27, 0x%x" % WOT)
    a("s_add_u32 s25, s25, %d" % CTREG)
    a("v_and_b32 v28, 15, v2")
    a("v_lshlrev_b32 v30, 2, v28")
    a("buffer_load_dword v31, v30, s[60:63], 0 offen offset:128 sc1")
    a("v_mov_b32 v26, %d" % LC)
    a("v_mov_b32 v27, 1")
    a("s_waitcnt vmcnt(0)")
    a("s_mov_b64 exec, 1")
    a("ds_add_rtn_u32 v29, v26, v27 offset:16")
    a("s_waitcnt lgkmcnt(0)")
    a("v_readfirstlane_b32 s36, v29")
    a("s_cmp_lg_u32 s36, 3")
    a("s_cbranch_scc1 %s_nops" % name)
    a("v_mov_b32 v29, 0")
    a("buffer_store_dword v27, v29, s[12:15], s97 offen sc1")
    a.label("%s_nops" % name)
    a("s_mov_b64 exec, -1")
    a("s_mov_b32 s34, 0")
    a.label("%s_cw" % name)
    a("ds_read_b32 v29, v26 offset:16")
    a("s_add_u32 s34, s34, 1")
    a("s_waitcnt lgkmcnt(0)")
    a("v_readfirstlane_b32 s36, v29")
    a("s_cmp_gt_u32 s34, %d" % (SPIN_MAX * 20))
    a("s_cbranch_scc1 %s_cwx" % name)
    a("s_cmp_ge_u32 s36, 4")
    a("s_cbranch_scc1 %s_cwx" % name)
    a("s_sleep 1")
    a("s_branch %s_cw" % name)
    a.label("%s_cwx" % name)
    a("s_mov_b32 s34, 0")
    a.label("%s_cp" % name)
    a("v_cmp_gt_u32 vcc, 16, v31")
    a("s_add_u32 s34, s34, 1")
    a("s_cmp_gt_u32 s34, %d" % SPIN_MAX)
    a("s_cbranch_scc1 %s_cpx" % name)
    a("s_cbranch_vccz %s_cpx" % name)
    a("s_sleep 32")
    a("buffer_load_dword v31, v30, s[60:63], 0 offen offset:128 sc1")
    a("s_waitcnt vmcnt(0)")
    a("s_branch %s_cp" % name)
    a.label("%s_cpx" % name)
    def cF(off, soff):
        a("s_add_u32 s36, s25, %s" % off)
        a("s_mov_b32 m0, s36")
        a("s_add_u32 s37, %s, 4096" % soff)
        for n in range(4):
            a("buffer_load_dwordx4 v14, s[12:15], %s offen offset:%d sc1 lds" % (soff, n * 1024))
        a("s_add_u32 s36, s36, 4096")
        a("s_mov_b32 m0, s36")
        a("s_nop 0")
        a("buffer_load_dwordx4 v14, s[12:15], s37 offen sc1 lds")
    def cT(off, soff):
        a("s_add_u32 s35, s24, %s" % off)
        a("s_mov_b32 m0, s35")
        a("s_nop 0")
        for n in range(4):
            a("buffer_load_dwordx4 v14, s[12:15], %s offen offset:%d sc1 lds" % (soff, n * 1024))
    a("s_add_u32 s38, s27, 20480")
    cF(str(C0), "s27"); cF(str(C0 + CSL), "s38")
    a("s_mov_b32 s34, 0")
    a("s_cmp_lg_u32 s3, 0")
    a("s_cbranch_scc1 %s_cpl" % name)
    a("v_lshlrev_b32 v28, 8, v28")
    a("s_lshr_b32 s39, s22, 1")
    a("s_lshl_b32 s39, s39, 12")
    a("s_add_u32 s39, s39, 0x%x" % (ZFLG + PFL))
    a.label("%s_cpz" % name)
    a("buffer_load_dword v29, v28, s[12:15], s39 offen sc1")
    a("s_add_u32 s34, s34, 1")
    a("s_waitcnt vmcnt(0)")
    a("v_cmp_ne_u32 vcc, 1, v29")
    a("s_cmp_gt_u32 s34, %d" % SPIN_MAX)
    a("s_cbranch_scc1 %s_cpzx" % name)
    a("s_cbranch_vccz %s_cpzx" % name)
    a("s_sleep 8")
    a("s_branch %s_cpz" % name)
    a.label("%s_cpzx" % name)
    a("ds_write_b32 v26, v27 offset:24")
    a("s_branch %s_cgo" % name)
    a.label("%s_cpl" % name)
    a("ds_read_b32 v29, v26 offset:24")
    a("s_add_u32 s34, s34, 1")
    a("s_waitcnt lgkmcnt(0)")
    a("v_readfirstlane_b32 s36, v29")
    a("s_cmp_gt_u32 s34, %d" % (SPIN_MAX * 20))
    a("s_cbranch_scc1 %s_cgo" % name)
    a("s_cmp_lg_u32 s36, 0")
    a("s_cbranch_scc1 %s_cgo" % name)
    a("s_sleep 2")
    a("s_branch %s_cpl" % name)
    a.label("%s_cgo" % name)
    stamp(a, 8)
    a("s_add_u32 s38, s26, 16384")
    cT(str(C0), "s26"); cT(str(C0 + CSL), "s38")
    a("s_add_u32 s26, s26, 32768")
    a("s_add_u32 s27, s27, 40960")
    a("s_mov_b32 s33, %d" % RB)
    def cissue():
        cT("s33", "s26"); cF("s33", "s27")
        a("s_add_u32 s26, s26, 16384")
        a("s_add_u32 s27, s27, 20480")
        a("s_add_u32 s33, s33, %d" % CSL)
        a("s_cmp_eq_u32 s33, %d" % CW)
        a("s_cselect_b32 s33, %d, s33" % RB)
    a("s_waitcnt vmcnt(4)")
    a("s_barrier")
    cissue(); cissue()
    a("s_waitcnt vmcnt(18)")
    a("s_barrier")
    a("s_mov_b32 s34, 0")
    a.label("%s_clloop" % name)
    cissue()
    a("s_cmp_lg_u32 s34, 11")
    a("s_cbranch_scc1 %s_cl1" % name)
    a("buffer_load_dword v31, v30, s[60:63], 0 offen offset:192 sc1")
    a("s_waitcnt vmcnt(19)")
    a("s_branch %s_cl2" % name)
    a.label("%s_cl1" % name)
    a("s_waitcnt vmcnt(18)")
    a.label("%s_cl2" % name)
    a("s_barrier")
    a("s_add_u32 s34, s34, 1")
    a("s_cmp_lt_u32 s34, 14")
    a("s_cbranch_scc1 %s_clloop" % name)
    a("s_mov_b32 s34, 0")
    a.label("%s_cy" % name)
    a("v_cmp_gt_u32 vcc, 16, v31")
    a("s_add_u32 s34, s34, 1")
    a("s_cmp_gt_u32 s34, %d" % SPIN_MAX)
    a("s_cbranch_scc1 %s_cyx" % name)
    a("s_cbranch_vccz %s_cyx" % name)
    a("s_sleep 32")
    a("buffer_load_dword v31, v30, s[60:63], 0 offen offset:192 sc1")
    a("s_waitcnt vmcnt(0)")
    a("s_branch %s_cy" % name)
    a.label("%s_cyx" % name)
    a("v_lshrrev_b32 v3, 3, v2")
    a("v_and_b32 v4, 7, v2")
    a("v_lshlrev_b32 v4, 4, v4")
    a("s_mul_i32 s33, s52, 144")
    a("s_mul_i32 s34, s53, 80")
    a("s_lshl_b32 s35, s22, 7")
    a("s_add_u32 s35, s35, 0x%x" % YT)
    for n in range(3):
        a("s_add_u32 s36, s3, %d" % (4 * n))
        if n == 2: a("s_min_u32 s36, s36, 9")
        a("s_lshl_b32 s37, s36, 3")
        a("s_add_u32 s38, s37, s33")
        if n < 2: a("s_add_u32 s38, s38, s34")
        a("v_add_u32 v5, s38, v3")
        a("v_lshl_add_u32 v5, v5, 12, v4")
        a("s_lshl_b32 s36, s36, 10")
        a("s_add_u32 s36, s36, %d" % YOFF)
        a("s_mov_b32 m0, s36")
        a("s_nop 0")
        a("buffer_load_dwordx4 v5, s[12:15], s35 offen sc1 lds")
    fin_loads()
    a("s_waitcnt vmcnt(%d)" % (9 + 7))
    a("s_barrier")
    a("s_waitcnt vmcnt(7)")
    a("s_barrier")
    a("s_barrier")
    a("s_setprio 0")
    a("s_waitcnt vmcnt(0)")
    a("s_branch %s_cfin" % name)
    a.label("%s_A1" % name)
    a("s_setprio 2")
    vmA = VmTracker(a)
    PB = 132
    def aux_head():
        epi_in()
        for tt in range(4):
            a("v_mov_b32 v%d, 0" % S[tt]); a("v_mov_b32 v%d, 0" % Q[tt])
    def aux_pub():
        a("s_nop 2")
        emit_xg_reduce(a, S + Q, 72)
        a("v_lshrrev_b32 v10, 4, v2")
        for g in range(1, 4):
            a("v_cmp_eq_u32 vcc, %d, v10" % g)
            a("s_nop 1")
            a("v_cndmask_b32 v%d, v%d, v%d, vcc" % (S[0], S[0], S[g]))
            a("v_cndmask_b32 v%d, v%d, v%d, vcc" % (Q[0], Q[0], Q[g]))
        a("v_and_b32 v%d, 0x7fffffff, v%d" % (Q[0], Q[0]))
        a("buffer_store_dwordx2 v[%d:%d], v94, s[12:15], s58 offen sc1" % (S[0], Q[0]))
    chunks = [capture(aux_head) + capture(gelu_ft, 0, True), capture(gelu_ft, 1, True), capture(gelu_ft, 2, True),
              capture(gelu_ft, 3, True), capture(gelu_ft, 4, True) + capture(aux_pub)]
    KD = 172
    for k in range(9, 18):
        a("s_barrier")
        if k == 9:
            a("s_cmp_lg_u32 s3, 0")
            a("s_cbranch_scc1 %s_nosig" % name)
            a("v_mov_b32 v10, 1")
            a("s_lshl_b32 s36, s22, 2")
            a("v_mov_b32 v11, s36")
            a("s_mov_b64 exec, 1")
            a("buffer_atomic_add v10, v11, s[60:63], 0 offen sc1")
            a("s_mov_b64 exec, -1")
            a.label("%s_nosig" % name)
        g = k + 3
        dma = capture(lambda: (issueT(g), issueF(g))) if g < 18 else []
        comp = chunks[k - 9] if k - 9 < len(chunks) else []
        interleave(dma, comp)
        if k == 13: vmA.issue("pub", 1)
        if g < 18: vmA.issue("S%d" % g, 9)
        if k == 14:
            srd(a, 92, 78, 2048 * 2048 * 2)
            a("v_lshrrev_b32 v10, 4, v2")
            a("v_lshlrev_b32 v10, 12, v10")
            a("v_lshl_add_u32 v10, v3, 4, v10")
            a("s_lshl_b32 s40, s22, 7")
            a("s_lshl_b32 s36, s3, 5")
            a("s_add_u32 s40, s40, s36")
            a("s_lshl_b32 s40, s40, 12")
            a("s_lshl_b32 s36, s23, 8")
            a("s_add_u32 s40, s40, s36")
            for n in range(8):
                a("buffer_load_dwordx4 v[200:203], v10, s[92:95], s40 offen")
                if n < 7: a("s_add_u32 s40, s40, 16384")
            vmA.issue("wp", 8)
            a("s_lshl_b32 s36, s22, 2")
            a("v_mov_b32 v199, s36")
            a("buffer_load_dword v198, v199, s[60:63], 0 offen sc1"); vmA.issue("cnt", 1)
        if k + 2 < 18 and k + 2 >= 12:
            vmA.wait(["S%d" % (k + 2)])
    a("s_barrier")
    stamp(a, 3)
    a("s_load_dwordx4 s[88:91], s[0:1], 32")
    a("v_lshrrev_b32 v10, 4, v2")
    a("v_lshlrev_b32 v95, 8, v3")
    a("v_lshl_add_u32 v95, v10, 6, v95")
    a("s_lshl_b32 s33, s25, 13")
    a("s_add_u32 s52, s59, s33")
    a("s_xor_b32 s33, s33, 8192")
    a("s_add_u32 s53, s59, s33")
    a("s_add_u32 s42, s52, 4096")
    a("s_add_u32 s43, s53, 4096")
    Z2 = ZP
    a("s_waitcnt vmcnt(0)")
    GB = [128, 144, 160, 176]
    a("v_mov_b32 v4, v95")
    def gather():
        for tt in range(4):
            for q in range(4):
                a("buffer_load_dwordx4 %s, v4, s[12:15], s%d offen offset:%d sc1" % (vr(GB[tt] + 4 * q), (52, 42, 53, 43)[tt], 16 * q))
    gather()
    a("s_mov_b32 s40, 0")
    a("s_waitcnt vmcnt(0)")
    a.label("%s_chk" % name)
    a("v_subrev_u32 v11, 16, v198")
    for tt in range(4):
        for r in range(GB[tt] + 1, GB[tt] + 16, 4):
            a("v_or3_b32 v11, v11, v%d, v%d" % (r, r + 2))
    a("v_cmp_gt_i32 vcc, 0, v11")
    a("s_add_u32 s40, s40, 1")
    a("s_cmp_gt_u32 s40, %d" % SPIN_MAX)
    a("s_cbranch_scc1 %s_ok" % name)
    a("s_cbranch_vccz %s_ok" % name)
    a("s_sleep 32")
    a("buffer_load_dword v198, v199, s[60:63], 0 offen sc1")
    a("s_waitcnt vmcnt(0)")
    gather()
    a("s_waitcnt vmcnt(0)")
    a("s_branch %s_chk" % name)
    a.label("%s_ok" % name)
    stamp(a, 5)
    for tt in range(4):
        b = GB[tt]
        for st_ in (8, 4, 2):
            for q in range(0, st_, 2):
                a("v_pk_add_f32 %s, %s, %s" % (vr(b + q, 2), vr(b + q, 2), vr(b + q + st_, 2)))
    emit_xg_reduce(a, [GB[tt] + e for tt in range(4) for e in range(2)], 72)
    for tt in range(4):
        b = GB[tt]
        emit_ln_finish(a, b, b + 1, 2304, b + 2, MR + 2 * tt, b + 4)
        a("v_mul_f32 v%d, -v%d, v%d" % (MR + 2 * tt + 1, b + 2, MR + 2 * tt))
    a("v_lshrrev_b32 v10, 4, v2")
    a("v_lshrrev_b32 v11, 2, v2"); a("v_and_b32 v11, 1, v11"); a("v_lshlrev_b32 v11, 4, v11")
    a("v_lshrrev_b32 v5, 3, v2"); a("v_and_b32 v5, 1, v5"); a("v_lshl_add_u32 v11, v5, 2, v11")
    a("v_and_b32 v5, 3, v2"); a("v_add_u32 v11, v11, v5")
    a("v_and_b32 v5, 1, v10")
    a("v_lshl_add_u32 v11, v5, 3, v11")
    a("v_lshlrev_b32 v11, 5, v11")
    a("v_lshrrev_b32 v5, 1, v10")
    a("v_lshl_add_u32 v6, v5, 4, v11")
    a("s_lshl_b32 s33, s23, 5")
    a("s_lshl_b32 s36, s22, 1")
    a("s_add_u32 s33, s33, s36")
    a("s_add_u32 s33, s33, s24")
    a("s_mul_i32 s33, s33, 18432")
    if ZIMG: a("s_add_u32 s33, s33, 0x%x" % ZIMG)
    a("s_lshl_b32 s36, s25, 10")
    a("s_add_u32 s39, s33, s36")
    a("s_add_u32 s39, s39, 8192")
    a("s_mul_i32 s38, s25, 10240")
    a("s_add_u32 s33, s33, s38")
    a("s_add_u32 s37, s33, s36")
    a("s_xor_b32 s36, s36, 1024")
    a("s_add_u32 s38, s33, s36")
    a("s_add_u32 s33, s37, 4096")
    a("s_add_u32 s36, s38, 4096")
    def norm_pair(nA, ttA, nB, ttB, O):
        for q, (n, tt) in enumerate(((nA, ttA), (nB, ttB))):
            for d in range(2):
                z = Z2 + 2 * n + d; t = T + 4 * q + 2 * d
                a("v_lshlrev_b32 v%d, 16, v%d" % (t, z))
                a("v_and_b32 v%d, 0xffff0000, v%d" % (t + 1, z))
        for q, (n, tt) in enumerate(((nA, ttA), (nB, ttB))):
            for d in range(2):
                t = T + 4 * q + 2 * d
                a("v_pk_fma_f32 %s, %s, %s, %s op_sel:[0,0,1] op_sel_hi:[1,0,1]" % (vr(t, 2), vr(t, 2), vr(MR + 2 * tt, 2), vr(MR + 2 * tt, 2)))
        for q in range(2):
            for d in range(2):
                t = T + 4 * q + 2 * d
                a("v_cvt_pk_bf16_f32 v%d, v%d, v%d" % (O + 2 * q + d, t, t + 1))
        a("s_nop 1")
        a("v_permlane16_swap_b32 v%d, v%d" % (O, O + 2))
        a("v_permlane16_swap_b32 v%d, v%d" % (O + 1, O + 3))
    cnt = 0
    for ft in range(4):
        for pp in range(2):
            O = 200 + 4 * cnt; cnt += 1
            norm_pair(tidx(ft, 2 * pp), 2 * pp, tidx(ft, 2 * pp + 1), 2 * pp + 1, O)
            a("s_nop 0")
            a("buffer_store_dwordx4 %s, v6, s[12:15], s%d offen offset:%d sc1" % (vr(O), ((37, 38), (33, 36))[ft >> 1][pp], (ft & 1) * 2048))
    O = 200 + 4 * cnt
    norm_pair(16, 0, 17, 1, O)
    a("s_nop 0")
    a("buffer_store_dwordx4 %s, v6, s[12:15], s39 offen sc1" % vr(O))
    stamp(a, 6)
    a("s_setprio 3")
    srd(a, 8, 78, 2048 * 2048 * 2)
    a("v_lshrrev_b32 v3, 3, v2")
    a("s_lshl_b32 s24, s3, 5")
    a("v_add_u32 v3, s24, v3")
    a("v_and_b32 v4, 7, v2")
    a("v_lshrrev_b32 v6, 4, v2")
    a("v_xor_b32 v6, v6, v4")
    a("v_lshlrev_b32 v6, 4, v6")
    a("v_lshl_add_u32 v10, v3, 12, v6")
    a("v_xor_b32 v11, 64, v10")
    a("v_add_u32 v11, %d, v11" % (32768 - 1024))
    a("v_add_u32 v12, %d, v10" % (2 * (32768 - 1024)))
    a("v_add_u32 v13, %d, v11" % (2 * (32768 - 1024)))
    a("v_lshlrev_b32 v14, 4, v2")
    a("s_lshl_b32 s26, s22, 19")
    a("s_mul_i32 s27, s23, %d" % (32 * 18432))
    a("s_lshl_b32 s24, s3, 12")
    a("s_add_u32 s27, s27, s24")
    if ZIMG: a("s_add_u32 s27, s27, 0x%x" % ZIMG)
    a("s_lshl_b32 s25, s3, 9")
    a("s_sub_u32 s32, s25, s24")
    a("s_add_u32 s32, s32, 16384")
    a("s_add_u32 s24, s24, %d" % RB)
    a("s_waitcnt vmcnt(0) lgkmcnt(0)")
    a("v_mov_b32 v26, %d" % LC)
    a("v_mov_b32 v27, 1")
    a("s_mov_b64 exec, 1")
    a("ds_add_rtn_u32 v28, v26, v27")
    a("s_waitcnt lgkmcnt(0)")
    a("v_readfirstlane_b32 s36, v28")
    a("s_cmp_lg_u32 s36, 3")
    a("s_cbranch_scc1 %s_nozs" % name)
    a("v_mov_b32 v28, 0")
    a("buffer_store_dword v27, v28, s[12:15], s97 offen sc1")
    a.label("%s_nozs" % name)
    a("s_mov_b64 exec, -1")
    stamp(a, 7)
    srd(a, 16, 88, 576 * 2048 * 2)
    srd(a, 84, 90, 576 * 2)
    for g in range(4):
        a("s_add_u32 s35, s24, %d" % (g * SLOT))
        a("s_mov_b32 m0, s35")
        a("s_add_u32 s36, s26, %d" % (128 * g))
        for n in range(4):
            a("buffer_load_dwordx4 v%d, s[8:11], s36 offen offset:%d lds" % (10 + n, n * 1024))
    a("s_mov_b32 s34, 0")
    a("s_cmp_lg_u32 s3, 0")
    a("s_cbranch_scc1 %s_pl" % name)
    a("v_and_b32 v28, 15, v2")
    a("v_lshlrev_b32 v30, 2, v28")
    a("v_lshlrev_b32 v28, 12, v28")
    a("s_lshl_b32 s52, s23, 8")
    a("s_add_u32 s52, s52, 0x%x" % ZFLG)
    a.label("%s_pz0" % name)
    a("buffer_load_dword v31, v30, s[60:63], 0 offen sc1")
    a("s_add_u32 s34, s34, 1")
    a("s_waitcnt vmcnt(0)")
    a("v_cmp_gt_u32 vcc, 16, v31")
    a("s_cmp_gt_u32 s34, %d" % SPIN_MAX)
    a("s_cbranch_scc1 %s_pz" % name)
    a("s_cbranch_vccz %s_pz" % name)
    a("s_sleep 32")
    a("s_branch %s_pz0" % name)
    a.label("%s_pz" % name)
    a("buffer_load_dword v29, v28, s[12:15], s52 offen sc1")
    a("s_add_u32 s34, s34, 1")
    a("s_waitcnt vmcnt(0)")
    a("v_cmp_ne_u32 vcc, 1, v29")
    a("s_cmp_gt_u32 s34, %d" % SPIN_MAX)
    a("s_cbranch_scc1 %s_pzx" % name)
    a("s_cbranch_vccz %s_pzx" % name)
    a("s_sleep 8")
    a("s_branch %s_pz" % name)
    a.label("%s_pzx" % name)
    a("v_mov_b32 v27, 1")
    a("ds_write_b32 v26, v27 offset:4")
    a("s_branch %s_pgo" % name)
    a.label("%s_pl" % name)
    a("ds_read_b32 v27, v26 offset:4")
    a("s_add_u32 s34, s34, 1")
    a("s_waitcnt lgkmcnt(0)")
    a("v_readfirstlane_b32 s36, v27")
    a("s_cmp_gt_u32 s34, %d" % (SPIN_MAX * 20))
    a("s_cbranch_scc1 %s_pgo" % name)
    a("s_cmp_lg_u32 s36, 0")
    a("s_cbranch_scc1 %s_pgo" % name)
    a("s_sleep 2")
    a("s_branch %s_pl" % name)
    a.label("%s_pgo" % name)
    stamp(a, 8)
    for g in range(4):
        a("s_add_u32 s35, s24, %d" % (g * SLOT + TREG))
        a("s_mov_b32 m0, s35")
        a("s_add_u32 s36, s27, %d" % (18432 * g))
        a("s_add_u32 s37, s36, s32")
        for n in range(4):
            a("buffer_load_dwordx4 v14, s[12:15], s36 offen offset:%d sc1 lds" % (n * 1024))
        a("s_add_u32 s35, s35, s32")
        a("s_mov_b32 m0, s35")
        a("s_mov_b64 exec, 0xffffffff")
        a("buffer_load_dwordx4 v14, s[12:15], s37 offen sc1 lds")
        a("s_mov_b64 exec, -1")
    a("s_add_u32 s26, s26, 512")
    a("s_add_u32 s27, s27, %d" % (4 * 18432))
    a("s_mov_b32 s33, 0")
    a("s_lshl_b32 s43, s2, 2")
    a("s_add_u32 s43, s43, s3")
    a("s_and_b32 s53, s43, 1")
    a("s_sub_u32 s36, s43, 448")
    a("s_lshr_b32 s37, s43, 1")
    a("s_cmp_ge_u32 s43, 896")
    a("s_cselect_b32 s43, s36, s37")
    a("s_cselect_b32 s53, 2, s53")
    a("s_waitcnt vmcnt(15)")
    a("s_barrier")
    a("s_waitcnt vmcnt(10)")
    a("s_barrier")
    a("s_waitcnt vmcnt(5)")
    a("s_barrier")
    a("s_mov_b32 s34, 4")
    def issue2():
        a("s_add_u32 s35, s33, s24")
        a("s_mov_b32 m0, s35")
        a("s_add_u32 s36, s35, %d" % TREG)
        for n in range(4):
            a("buffer_load_dwordx4 v%d, s[8:11], s26 offen offset:%d lds" % (10 + n, n * 1024))
        a("s_mov_b32 m0, s36")
        a("s_add_u32 s37, s27, s32")
        for n in range(4):
            a("buffer_load_dwordx4 v14, s[12:15], s27 offen offset:%d sc1 lds" % (n * 1024))
        a("s_add_u32 s36, s36, s32")
        a("s_mov_b32 m0, s36")
        a("s_mov_b64 exec, 0xffffffff")
        a("buffer_load_dwordx4 v14, s[12:15], s37 offen sc1 lds")
        a("s_mov_b64 exec, -1")
        a("s_add_u32 s26, s26, 128")
        a("s_add_u32 s27, s27, 18432")
        a("s_add_u32 s33, s33, %d" % SLOT)
        a("s_cmp_eq_u32 s33, %d" % (R * SLOT))
        a("s_cselect_b32 s33, 0, s33")
    a.label("%s_lloop" % name)
    issue2()
    a("s_cmp_eq_u32 s34, 18")
    a("s_cbranch_scc1 %s_hk1" % name)
    a("s_cmp_eq_u32 s34, 21")
    a("s_cbranch_scc1 %s_hk2" % name)
    a("s_waitcnt vmcnt(9)")
    a.label("%s_lcont" % name)
    a("s_barrier")
    a("s_add_u32 s34, s34, 1")
    a("s_cmp_lt_u32 s34, 32")
    a("s_cbranch_scc1 %s_lloop" % name)
    a("s_branch %s_ldone" % name)
    a.label("%s_hk1" % name)
    a("v_and_b32 v28, 15, v2")
    a("v_lshlrev_b32 v28, 2, v28")
    a("buffer_load_dword v29, v28, s[60:63], 0 offen offset:128 sc1")
    a("s_waitcnt vmcnt(10)")
    a("s_branch %s_lcont" % name)
    a.label("%s_hk2" % name)
    a("s_mov_b32 s52, 0")
    a.label("%s_hk2l" % name)
    a("v_cmp_gt_u32 vcc, 16, v29")
    a("s_add_u32 s52, s52, 1")
    a("s_cmp_gt_u32 s52, %d" % SPIN_MAX)
    a("s_cbranch_scc1 %s_hk2g" % name)
    a("s_cbranch_vccz %s_hk2g" % name)
    a("s_sleep 16")
    a("buffer_load_dword v29, v28, s[60:63], 0 offen offset:128 sc1")
    a("s_waitcnt vmcnt(0)")
    a("s_branch %s_hk2l" % name)
    a.label("%s_hk2g" % name)
    nconv = emit_conv_loads(a, " sc1")
    a("s_waitcnt vmcnt(%d)" % (9 + nconv))
    a("s_branch %s_lcont" % name)
    a.label("%s_ldone" % name)
    a("s_waitcnt vmcnt(0)")
    a("s_barrier")
    a("s_mov_b32 s26, s53")
    a("s_and_b32 s27, s3, 1")
    a("s_mul_i32 s27, s27, %d" % CJ_SIZE)
    a("s_lshr_b32 s36, s3, 1")
    a("s_mul_i32 s36, s36, %d" % SLOT)
    a("s_add_u32 s27, s27, s36")
    a("s_add_u32 s27, s27, %d" % RB)
    def mid():
        a("s_barrier")
        a("s_setprio 0")
    sv = set(DBG); DBG.discard("stamp")
    lb_ = len(a.lines)
    emit_conv_job(a, name, mid)
    for n_ in range(lb_, len(a.lines)):
        if "buffer_store_dwordx2" in a.lines[n_]: a.lines[n_] += " sc1"
    DBG.update(sv)
    stamp(a, 9)
    c_common()
    cTa = [4, 4]; cTb = [6, 6]; cF_ = 8; cFh = 9
    kTa = 88; kTb = 90; kF = 92; kFh = 93
    a("v_and_b32 v3, 15, v2")
    a("v_lshrrev_b32 v10, 5, v2")
    a("v_lshlrev_b32 v10, 11, v10")
    a("v_bfe_u32 v11, v2, 4, 1")
    a("v_lshl_add_u32 v10, v11, 4, v10")
    a("v_lshl_add_u32 v10, v3, 5, v10")
    a("s_lshl_b32 s26, s3, 12")
    a("v_add_u32 v10, s26, v10")
    a("s_lshl_b32 s26, s53, 10")
    a("v_add_u32 v%d, s26, v10" % kTa)
    a("s_xor_b32 s26, s26, 1024")
    a("v_add_u32 v%d, s26, v10" % kTb)
    a("v_lshrrev_b32 v10, 2, v2")
    a("v_mul_u32_u24 v10, %d, v10" % CFS)
    a("v_and_b32 v11, 3, v2")
    a("v_lshl_add_u32 v10, v11, 3, v10")
    a("s_mul_i32 s26, s3, %d" % (32 * CFS))
    a("s_add_u32 s26, s26, %d" % CTREG)
    a("v_add_u32 v%d, s26, v10" % kF)
    a("v_add_u32 v%d, 128, v%d" % (kFh, kF))
    a("v_mov_b32 v26, %d" % LC)
    a("v_mov_b32 v27, 1")
    a("s_waitcnt vmcnt(0)")
    a("s_mov_b64 exec, 1")
    a("ds_add_rtn_u32 v28, v26, v27 offset:20")
    a("s_waitcnt lgkmcnt(0)")
    a("v_readfirstlane_b32 s36, v28")
    a("s_cmp_lg_u32 s36, 3")
    a("s_cbranch_scc1 %s_nocs" % name)
    a("s_and_b32 s36, s2, 15")
    a("s_lshl_b32 s36, s36, 2")
    a("s_add_u32 s36, s36, 192")
    a("v_mov_b32 v28, s36")
    a("buffer_atomic_add v27, v28, s[60:63], 0 offen sc1")
    a.label("%s_nocs" % name)
    a("s_mov_b64 exec, -1")
    fin_loads()
    core3 = G.Core(a, ACC, FB[0], FB[1], CFS, CTREG, cTa, cTb, cF_, cFh, TT=512)
    pairs = ((cTa[0], kTa), (cF_, kF), (cTb[0], kTb), (cFh, kFh))
    a("s_mov_b32 s27, %d" % C0)
    for d, s_ in pairs: a("v_add_u32 v%d, s27, v%d" % (d, s_))
    for r in range(ACC, ACC + 72): a("v_mov_b32 v%d, 0" % r)
    a("s_mov_b32 s33, 0")
    a("s_barrier")
    stamp(a, 10)
    core3.prime(0, core3.reads(0, 0))
    def citer(buf):
        core3.trk.drain()
        a("s_barrier")
        a("s_add_u32 s27, s27, %d" % CSL)
        a("s_cmp_eq_u32 s27, %d" % CW)
        a("s_cselect_b32 s27, %d, s27" % RB)
        pre = ["v_add_u32 v%d, s27, v%d" % (d, s_) for d, s_ in pairs]
        core3.phase(buf, core3.reads(1 - buf, 0), pre=pre)
    a.label("%s_ccloop" % name)
    citer(0); citer(1)
    a("s_add_u32 s33, s33, 1")
    a("s_cmp_lt_u32 s33, 9")
    a("s_cbranch_scc1 %s_ccloop" % name)
    core3.trk.drain()
    stamp(a, 11)
    a("s_mul_i32 s33, s3, %d" % (18 * 1024))
    a("s_add_u32 s33, s33, %d" % C0)
    a("v_lshlrev_b32 v10, 4, v2")
    a("v_add_u32 v11, s33, v10")
    a("s_nop 4")
    for n, (ft, tt) in enumerate(TILES):
        a("ds_write_b128 v11, %s offset:%d" % (vr(core3.accr(ft, tt)), 1024 * tidx(ft, tt)))
        if n in (7, 13): a("s_waitcnt lgkmcnt(4)")
    a("s_waitcnt lgkmcnt(0) vmcnt(0)")
    a.label("%s_cfin" % name)
    a("s_barrier")
    stamp(a, 12)
    a("v_lshlrev_b32 v10, 4, v2")
    a("v_lshrrev_b32 v11, 2, v2")
    a("v_lshlrev_b32 v11, 7, v11")
    a("v_and_b32 v12, 3, v2")
    a("v_lshl_add_u32 v11, v12, 3, v11")
    a("s_mov_b32 s33, 0xbfb8aa3b")
    PT = 16; YR = 64
    for s_ in range(3):
        b = 64 + 4 * s_
        if s_ == 2:
            a("s_cmp_ge_u32 s54, 2")
            a("s_cbranch_scc1 %s_rd" % name)
        a("v_add_u32 v4, s%d, v10" % (b + 2))
        a("v_add_u32 v5, s%d, v11" % (b + 1))
        for q in range(4):
            a("ds_read_b128 %s, v4 offset:%d" % (vr(PT + 16 * s_ + 4 * q), 18432 * q))
        a("ds_read_b64_tr_b16 %s, v5" % vr(YR + 2 * s_, 2))
    a.label("%s_rd" % name)
    T = 104
    for s_ in range(3):
        b = 64 + 4 * s_
        if s_ == 0: a("s_waitcnt lgkmcnt(5)")
        if s_ == 1: a("s_waitcnt lgkmcnt(0)")
        if s_ == 2:
            a("s_cmp_ge_u32 s54, 2")
            a("s_cbranch_scc1 %s_done" % name)
        o = PT + 16 * s_; X = XR + 2 * s_; Y = YR + 2 * s_; S_ = ST + 2 * s_
        for h in (0, 2):
            a("v_pk_add_f32 %s, %s, %s" % (vr(o + h, 2), vr(o + h, 2), vr(o + 4 + h, 2)))
            a("v_pk_add_f32 %s, %s, %s" % (vr(o + 8 + h, 2), vr(o + 8 + h, 2), vr(o + 12 + h, 2)))
        for h in (0, 2):
            a("v_pk_add_f32 %s, %s, %s" % (vr(o + h, 2), vr(o + h, 2), vr(o + 8 + h, 2)))
        rnd_pair(a, T + 20, o, o + 1); rnd_pair(a, T + 21, o + 2, o + 3)
        for r in range(4): a("v_mul_f32 v%d, s33, v%d" % (T + r, o + r))
        for r in range(4): a("v_exp_f32 v%d, v%d" % (T + r, T + r))
        a("v_lshlrev_b32 v%d, 16, v%d" % (T + 4, X)); a("v_and_b32 v%d, 0xffff0000, v%d" % (T + 5, X))
        a("v_lshlrev_b32 v%d, 16, v%d" % (T + 6, X + 1)); a("v_and_b32 v%d, 0xffff0000, v%d" % (T + 7, X + 1))
        for r in range(4): a("v_add_f32 v%d, 1.0, v%d" % (T + r, T + r))
        for r in range(4): a("v_rcp_f32 v%d, v%d" % (T + r, T + r))
        for r in range(4): a("v_sub_f32 v%d, v%d, v%d" % (T + 12 + r, T + 4 + r, S_))
        a("v_lshlrev_b32 v%d, 16, v%d" % (T + 8, Y)); a("v_and_b32 v%d, 0xffff0000, v%d" % (T + 9, Y))
        a("v_lshlrev_b32 v%d, 16, v%d" % (T + 10, Y + 1)); a("v_and_b32 v%d, 0xffff0000, v%d" % (T + 11, Y + 1))
        for r in range(4): a("v_mul_f32 v%d, v%d, v%d" % (o + r, o + r, T + r))
        rnd_pair(a, T + 20, T + 12, T + 13); rnd_pair(a, T + 21, T + 14, T + 15)
        rnd_pair(a, T + 22, o, o + 1); rnd_pair(a, T + 23, o + 2, o + 3)
        for r in range(4): a("v_mul_f32 v%d, v%d, v%d" % (T + 12 + r, T + 12 + r, S_ + 1))
        rnd_pair(a, T + 20, T + 12, T + 13); rnd_pair(a, T + 21, T + 14, T + 15)
        for r in range(4): a("v_mul_f32 v%d, v%d, v%d" % (T + 12 + r, T + 12 + r, T + 8 + r))
        rnd_pair(a, T + 20, T + 12, T + 13); rnd_pair(a, T + 21, T + 14, T + 15)
        for r in range(4): a("v_mul_f32 v%d, v%d, v%d" % (T + 12 + r, T + 12 + r, o + r))
        rnd_pair(a, T + 20, T + 12, T + 13); rnd_pair(a, T + 21, T + 14, T + 15)
        for r in range(4): a("v_add_f32 v%d, v%d, v%d" % (T + 12 + r, T + 12 + r, T + 4 + r))
        a("v_cvt_pk_bf16_f32 v%d, v%d, v%d" % (X, T + 12, T + 13))
        a("v_cvt_pk_bf16_f32 v%d, v%d, v%d" % (X + 1, T + 14, T + 15))
        a("buffer_store_dwordx2 %s, v13, s[28:31], s%d offen" % (vr(X, 2), b))
    a.label("%s_done" % name)
    stamp(a, 13)
    G.stamp_rt(a, 1)
    a.label("%s_end" % name)
    a("s_endpgm")
    return a.text(), kernel_desc(name, 256, 256), (name, 256, 512, YOFF + 10240)

def gen_kf3(name="k1_kernel", R=4):
    a = Asm()
    RB = 4096; SLOT = 34816; TREG = 16384; FS = 288; RST = 0
    LDSB = RB + R * SLOT
    LC = 2048
    ZFLG = 0x2D00000
    from gen3 import emit_conv_loads, emit_conv_job, CJ_SIZE
    def capture(f, *args):
        lb = len(a.lines); f(*args); out = a.lines[lb:]; del a.lines[lb:]; return out
    kernel_begin(a, name)
    a("s_load_dwordx2 s[80:81], s[0:1], 0")
    a("s_load_dwordx2 s[4:5], s[0:1], 56")
    a("s_load_dwordx2 s[6:7], s[0:1], 104")
    a("s_load_dwordx2 s[18:19], s[0:1], 96")
    a("s_cmp_ge_u32 s2, 256")
    a("s_cbranch_scc1 %s_end" % name)
    a("v_lshrrev_b32 v1, 6, v0")
    a("v_and_b32 v2, 63, v0")
    a("v_readfirstlane_b32 s3, v1")
    G2.tile_ij(a)
    a("s_lshr_b32 s98, s3, 2")
    a("s_mov_b32 s54x, 0".replace("s54x", "s99"))
    a("s_and_b32 s3, s3, 3")
    a("s_lshr_b32 s24, s3, 1")
    a("s_and_b32 s25, s3, 1")
    a("v_and_b32 v3, 15, v2")
    VT = 204; VF = 208
    def loader_setup():
        a("v_lshrrev_b32 v5, 3, v2")
        a("v_and_b32 v4, 7, v2")
        a("s_lshl_b32 s36, s3, 5")
        a("v_add_u32 v5, s36, v5")
        a("v_lshrrev_b32 v7, 4, v2")
        a("v_xor_b32 v7, v7, v4")
        a("v_mul_u32_u24 v6, 1152, v5")
        a("v_lshl_add_u32 v%d, v7, 4, v6" % VT)
        a("v_xor_b32 v%d, 64, v%d" % (VT + 1, VT))
        a("v_add_u32 v%d, %d, v%d" % (VT + 1, 9216 - 1024, VT + 1))
        a("v_add_u32 v%d, %d, v%d" % (VT + 2, 2 * (9216 - 1024), VT))
        a("v_add_u32 v%d, %d, v%d" % (VT + 3, 2 * (9216 - 1024), VT + 1))
        a("s_lshl_b32 s84, s3, 12")
        a("s_add_u32 s84, s84, %d" % RB)
        a("s_lshl_b32 s85, s3, 9")
        a("s_add_u32 s85, s85, %d" % (RB + TREG + 16384))
    def loader_setup2():
        for n in range(5):
            if n < 4:
                a("s_lshl_b32 s36, s3, 8")
                a("s_add_u32 s36, s36, %d" % (64 * n))
            else:
                a("s_lshl_b32 s36, s3, 5")
                a("s_add_u32 s36, s36, 1024")
            a("v_add_u32 v6, s36, v2")
            a("v_mul_u32_u24 v7, 3641, v6")
            a("v_lshrrev_b32 v7, 16, v7")
            a("v_mul_u32_u24 v8, 18, v7")
            a("v_sub_u32 v8, v6, v8")
            a("v_and_b32 v9, 35, v7")
            a("v_bfe_u32 v6, v7, 2, 2")
            a("v_lshl_add_u32 v9, v6, 3, v9")
            a("v_bfe_u32 v6, v7, 4, 1")
            a("v_lshl_add_u32 v9, v6, 2, v9")
            a("v_mul_u32_u24 v9, 9216, v9")
            a("v_lshl_add_u32 v%d, v8, 4, v9" % (VF + n))
            if 0 < n < 4: a("v_subrev_u32 v%d, %d, v%d" % (VF + n, 1024 * n, VF + n))
    def issueT(g):
        st = g % 9
        a("s_add_u32 s86, s84, %d" % ((g % R) * SLOT))
        a("s_mov_b32 m0, s86")
        a("s_add_u32 s87, s82, %d" % (128 * st))
        for n in range(4):
            a("buffer_load_dwordx4 v%d, s[28:31], s87 offen offset:%d lds" % (VT + n, 1024 * n))
    def issueF(g):
        st = g % 9
        a("s_add_u32 s86, s84, %d" % ((g % R) * SLOT + TREG))
        a("s_mov_b32 m0, s86")
        a("s_add_u32 s87, s83, %d" % (64 * 9216 * st + (4608 if g < 9 else 0)))
        for n in range(4):
            a("buffer_load_dwordx4 v%d, s[8:11], s87 offen offset:%d lds" % (VF + n, 1024 * n))
        a("s_add_u32 s86, s85, %d" % ((g % R) * SLOT))
        a("s_mov_b32 m0, s86")
        a("s_mov_b64 exec, 0xffffffff")
        a("buffer_load_dwordx4 v%d, s[8:11], s87 offen lds" % (VF + 4))
        a("s_mov_b64 exec, -1")
    def srds_main():
        srd(a, 28, 80, 2048 * 576 * 2)
        srd(a, 8, 4, 576 * 4608 * 2)
        srd(a, 12, 6, WS_BYTES)
        srd(a, 60, 18, 256)
        a("s_mul_i32 s82, s22, %d" % (128 * 1152))
        a("s_mul_i32 s83, s23, 288")
    ACC = 128; FB = [16, 52]; CS = 216; ONE = 236
    vTa = [4, 5]; vTb = [6, 7]; vF = 8; vFh = 9
    bTa = [88, 89]; bTb = [90, 91]; bF = 92; bFh = 93
    def mma_setup():
        a("v_lshrrev_b32 v10, 4, v2")
        a("v_lshrrev_b32 v11, 1, v3")
        a("v_xor_b32 v10, v10, v11")
        a("v_lshlrev_b32 v10, 4, v10")
        a("v_lshl_add_u32 v10, v3, 7, v10")
        a("s_lshl_b32 s26, s24, 13")
        a("s_add_u32 s26, s26, %d" % RB)
        a("v_add_u32 v10, s26, v10")
        a("s_lshl_b32 s26, s25, 12")
        a("v_add_u32 v%d, s26, v10" % bTa[0])
        a("s_xor_b32 s26, s26, 4096")
        a("v_add_u32 v%d, s26, v10" % bTb[0])
        a("v_xor_b32 v%d, 64, v%d" % (bTa[1], bTa[0]))
        a("v_xor_b32 v%d, 64, v%d" % (bTb[1], bTb[0]))
        a("v_lshrrev_b32 v10, 2, v2")
        a("v_mul_u32_u24 v10, %d, v10" % FS)
        a("v_and_b32 v11, 3, v2")
        a("v_lshl_add_u32 v10, v11, 3, v10")
        a("v_add_u32 v10, %d, v10" % (RB + TREG))
        a("s_mul_i32 s26, s25, 160")
        a("v_add_u32 v%d, s26, v10" % bF)
        a("v_add_u32 v%d, 128, v10" % bFh)
        for r in range(ACC, ACC + 72): a("v_mov_b32 v%d, 0" % r)
        for r in range(CS, CS + 20): a("v_mov_b32 v%d, 0" % r)
        for r in range(ONE, ONE + 4): a("v_mov_b32 v%d, 0x3f803f80" % r)
    def mma_addr(slot):
        a("s_mov_b32 s27, %d" % (slot * SLOT))
        for d, s_ in ((vTa[0], bTa[0]), (vTb[0], bTb[0]), (vTa[1], bTa[1]), (vTb[1], bTb[1]), (vF, bF), (vFh, bFh)):
            a("v_add_u32 v%d, s27, v%d" % (d, s_))
    core = G.Core(a, ACC, FB[0], FB[1], FS, TREG, vTa, vTb, vF, vFh)
    trk = core.trk
    a("s_cmp_eq_u32 s98, 0")
    a("s_cbranch_scc1 %s_A0" % name)
    a("s_setprio 3")
    loader_setup()
    a("s_waitcnt lgkmcnt(0)")
    srds_main()
    vm = VmTracker(a)
    def issue(g, vmx):
        issueT(g); issueF(g); vmx.issue("S%d" % g, 9)
    issueT(0)
    loader_setup2()
    issueF(0); vm.issue("S0", 9)
    issue(1, vm); issue(2, vm); issue(3, vm)
    a("s_add_u32 s3, s3, 4"); stamp_setup(a, 1); stamp(a, 0); a("s_sub_u32 s3, s3, 4")
    mma_setup()
    RA = 96; XB = 112
    for r in range(RA, RA + 16): a("v_mov_b32 v%d, 0" % r)
    a("v_lshrrev_b32 v10, 4, v2")
    a("v_lshrrev_b32 v11, 1, v3")
    a("v_xor_b32 v10, v10, v11")
    a("v_lshlrev_b32 v10, 4, v10")
    a("v_lshl_add_u32 v10, v3, 7, v10")
    a("v_add_u32 v12, s84, v10")
    a("v_xor_b32 v13, 64, v12")
    def rs_rd(g):
        a("v_add_u32 v10, %d, v12" % ((g % R) * SLOT))
        a("v_add_u32 v11, %d, v13" % ((g % R) * SLOT))
        for h in range(2):
            for n in range(2):
                a("ds_read_b128 %s, v%d offset:%d" % (vr(XB + 8 * h + 4 * n), 10 + h, 2048 * n))
    def rs_do():
        for h in range(2):
            for n in range(2):
                x = XB + 8 * h + 4 * n
                a("v_mfma_f32_16x16x32_bf16 %s, %s, %s, %s" % (vr(RA + 4 * n), vr(ONE), vr(x), vr(RA + 4 * n)))
                a("v_mfma_f32_16x16x32_bf16 %s, %s, %s, %s" % (vr(RA + 8 + 4 * n), vr(x), vr(x), vr(RA + 8 + 4 * n)))
    def interleave(dma, comp, vmx=None):
        groups = []; cur = []
        for l in dma:
            cur.append(l)
            if "buffer_load" in l and not any("exec, 0xffffffff" in x for x in cur[-2:]):
                groups.append(cur); cur = []
            elif "exec, -1" in l:
                groups.append(cur); cur = []
        if cur: groups.append(cur)
        ns = max(1, len(groups))
        per = (len(comp) + ns - 1) // ns
        for g in groups:
            a.lines.extend(g)
            a.lines.extend(comp[:per]); comp = comp[per:]
        a.lines.extend(comp)
    vm.wait(["S0"])
    a("s_barrier")
    stamp(a, 1)
    rs_rd(0)
    vm.wait(["S1"])
    a("s_barrier")
    for k in range(9):
        a("s_waitcnt lgkmcnt(0)")
        dma = capture(lambda: (issueT(k + 3), issueF(k + 3))) if k >= 1 else []
        interleave(dma, capture(rs_do))
        if k >= 1: vm.issue("S%d" % (k + 3), 9)
        if k < 8:
            rs_rd(k + 1)
        else:
            a("s_nop 7")
            a("v_lshrrev_b32 v10, 4, v2")
            a("v_lshrrev_b32 v11, 2, v3")
            a("v_and_b32 v12, 3, v3")
            for n in range(2):
                G_ = RA + 8 + 4 * n
                for r in range(1, 4):
                    a("v_cmp_eq_u32 vcc, %d, v12" % r)
                    a("s_nop 1")
                    a("v_cndmask_b32 v%d, v%d, v%d, vcc" % (G_, G_, G_ + r))
            ML = 112
            for n in range(2):
                emit_ln_finish(a, RA + 4 * n, RA + 8 + 4 * n, 576, ML + 2 * n, ML + 2 * n + 1, 120)
                a("v_mov_b32 v%d, v%d" % (117 + 2 * n, ML + 2 * n + 1))
                a("v_sub_f32 v%d, 0, v%d" % (116 + 2 * n, ML + 2 * n))
            a("s_lshl_b32 s35, s3, 8")
            a("v_lshlrev_b32 v13, 3, v3")
            a("v_add_u32 v12, s35, v13")
            a("v_cmp_eq_u32 vcc, v10, v11")
            a("s_and_saveexec_b64 s[36:37], vcc")
            for n in range(2):
                a("ds_write_b64 v12, %s offset:%d" % (vr(116 + 2 * n, 2), RST + 128 * n))
            a("s_mov_b64 exec, s[36:37]")
            a("s_cmp_lg_u32 s23, 0")
            a("s_cbranch_scc1 %s_nost1" % name)
            a("s_lshl_b32 s35, s22, 7")
            a("s_lshl_b32 s36, s3, 5")
            a("s_add_u32 s35, s35, s36")
            a("s_lshl_b32 s35, s35, 3")
            a("s_add_u32 s35, s35, 0x%x" % STATS1)
            a("v_mov_b32 v11, 0x7ffffff0")
            a("v_cndmask_b32 v13, v11, v13, vcc")
            for n in range(2):
                a("buffer_store_dwordx2 %s, v13, s[12:15], s35 offen offset:%d" % (vr(ML + 2 * n, 2), 128 * n))
            a.label("%s_nost1" % name)
            mma_addr(9 % R)
            a("s_mov_b32 s33, 0")
            a("s_setprio 0")
        vm.wait(["S%d" % (k + 2)], "lgkmcnt(0)" if k == 8 else "")
        if k < 8: a("s_barrier")
    a("s_branch %s_mma" % name)
    a.label("%s_A0" % name)
    emit_code_prefetch(a, name)
    a("s_load_dwordx4 s[64:67], s[0:1], 8")
    a("s_load_dwordx2 s[76:77], s[0:1], 24")
    a("s_load_dwordx2 s[78:79], s[0:1], 64")
    mma_setup()
    loader_setup(); loader_setup2()
    a("s_waitcnt lgkmcnt(0)")
    srds_main()
    srd(a, 68, 66, 2048 * 576 * 2)
    a("s_mov_b32 s88, s64"); a("s_mov_b32 s89, s65")
    srd(a, 64, 88, 2048 * 576 * 2)
    srd(a, 72, 76, 576 * 8)
    stamp_setup(a, 1); stamp(a, 0)
    def gran_addr():
        a("v_lshrrev_b32 v10, 4, v2")
        a("s_lshl_b32 s36, s25, 1")
        a("v_add_u32 v11, s36, v10")
        a("v_and_b32 v11, 3, v11")
        a("v_lshl_add_u32 v11, v11, 4, v3")
        a("v_lshlrev_b32 v94, 8, v11")
        a("s_lshl_b32 s59, s22, 7")
        a("s_lshl_b32 s36, s24, 6")
        a("s_add_u32 s59, s59, s36")
        a("s_lshl_b32 s59, s59, 8")
        a("s_add_u32 s59, s59, 0x%x" % STATS2)
        a("s_lshl_b32 s36, s23, 1")
        a("s_add_u32 s36, s36, s25")
        a("s_lshl_b32 s36, s36, 3")
        a("s_add_u32 s58, s36, s59")
    gran_addr()
    a("v_mov_b32 v12, 0"); a("v_mov_b32 v13, 0x80000000")
    a("buffer_store_dwordx2 v[12:13], v94, s[12:15], s58 offen sc1")
    a("s_lshl_b32 s36, s22, 4")
    a("s_add_u32 s36, s36, s23")
    a("s_lshl_b32 s36, s36, 8")
    a("s_add_u32 s97, s36, 0x%x" % ZFLG)
    a("v_mov_b32 v10, %d" % LC)
    a("v_mov_b32 v12, 0"); a("v_mov_b32 v13, 0")
    a("s_mov_b64 exec, 1")
    a("buffer_store_dword v12, v12, s[12:15], s97 offen sc1")
    a("s_mov_b64 exec, -1")
    a("ds_write_b64 v10, v[12:13]")
    a("ds_write_b64 v10, v[12:13] offset:8")
    mma_addr(0)
    a("s_mov_b32 s33, 0")
    a("s_waitcnt lgkmcnt(0)")
    a("s_barrier")
    stamp(a, 1)
    a.label("%s_mma" % name)
    core.prime(0, core.reads(0, 0))
    trk.drain()
    nocs = [False]
    def mfmas(buf):
        L = []
        for ft in range(5):
            A = core.F(buf, ft)
            for tt in range(4 if ft < 4 else 2):
                c = core.accr(ft, tt); B = core.T(buf, tt)
                L.append(("v_mfma_f32_16x16x32_bf16 %s, %s, %s, %s" % (vr(c), vr(A), vr(B), vr(c)), list(range(A, A + 4)) + list(range(B, B + 4))))
            if not nocs[0]: L.append(("v_mfma_f32_16x16x32_bf16 %s, %s, %s, %s" % (vr(CS + 4 * ft), vr(A), vr(ONE), vr(CS + 4 * ft)), list(range(A, A + 4))))
        return L
    def phase(buf, pend):
        for (m, regs) in mfmas(buf):
            trk.need(regs)
            a(m)
            while pend:
                k, t = pend.pop(0)
                if k == "x":
                    a(t)
                    if t.startswith("s_"): continue
                else:
                    a(t[0]); trk.issue(t[1])
                break
        for k, t in pend:
            if k == "x": a(t)
            else: a(t[0]); trk.issue(t[1])
    def iteration(vw=True):
        if vw: a("s_waitcnt vmcnt(0)")
        a("s_barrier")
        rd = [("r", t) for t in core.reads(1, 1)]
        upd = ["s_add_u32 s27, s27, %d" % SLOT, "s_cmp_eq_u32 s27, %d" % (R * SLOT), "s_cselect_b32 s27, 0, s27"]
        tail = ["v_add_u32 v%d, s27, v%d" % (d, s_) for d, s_ in ((vTa[0], bTa[0]), (vF, bF), (vTb[0], bTb[0]), (vFh, bFh))]
        phase(0, rd[:1] + [("x", u) for u in upd] + rd[1:] + [("x", u) for u in tail])
        rd = [("r", t) for t in core.reads(0, 0)]
        tail = ["v_add_u32 v%d, s27, v%d" % (d, s_) for d, s_ in ((vTa[1], bTa[1]), (vTb[1], bTb[1]))] + ["s_add_u32 s33, s33, 1"]
        phase(1, rd + [("x", u) for u in tail])
    a.label("%s_cloop" % name)
    lb = len(a.lines); iteration(); st = copy.deepcopy(trk.out); del a.lines[lb:]; trk.out = copy.deepcopy(st)
    iteration()
    assert [sorted(x) for x in trk.out] == [sorted(x) for x in st]
    a("s_cmp_lt_u32 s33, 9")
    a("s_cbranch_scc1 %s_cloop" % name)
    trk.drain()
    stamp(a, 2)
    MR = 100; T = 72; ZP = 16
    def epi_in():
        gelu_consts(a)
        a("s_lshl_b32 s36, s24, 9")
        a("s_lshl_b32 s37, s25, 8")
        a("s_add_u32 s38, s36, s37")
        a("s_xor_b32 s37, s37, 256")
        a("s_add_u32 s39, s36, s37")
        a("v_lshlrev_b32 v10, 3, v3")
        a("v_add_u32 v11, s38, v10")
        a("ds_read_b64 %s, v11 offset:%d" % (vr(MR, 2), RST))
        a("ds_read_b64 %s, v11 offset:%d" % (vr(MR + 2, 2), RST + 128))
        a("v_add_u32 v11, s39, v10")
        a("ds_read_b64 %s, v11 offset:%d" % (vr(MR + 4, 2), RST))
        a("ds_read_b64 %s, v11 offset:%d" % (vr(MR + 6, 2), RST + 128))
        a("s_waitcnt lgkmcnt(0)")
    S = [108, 110, 52, 54]; Q = [109, 111, 53, 55]
    def gelu_ft(ft, stats):
        tts = range(4 if ft < 4 else 2)
        emit_fold_gelu(a, [(core.accr(ft, tt), CS + 4 * ft, MR + 2 * tt, ZP + 2 * tidx(ft, tt)) for tt in tts], T)
        if stats:
            for d in range(2):
                for tt in tts:
                    p = ZP + 2 * tidx(ft, tt) + d
                    a("v_dot2_f32_bf16 v%d, v%d, v%d, v%d" % (S[tt], p, ONE, S[tt]))
                    a("v_dot2_f32_bf16 v%d, v%d, v%d, v%d" % (Q[tt], p, p, Q[tt]))
    a("s_cmp_eq_u32 s98, 0")
    a("s_cbranch_scc1 %s_A1" % name)
    a("v_mov_b32 v10, %d" % (LC + 12))
    a("v_mov_b32 v11, 1")
    a("s_mov_b64 exec, 1")
    a("ds_add_u32 v10, v11")
    a("s_mov_b64 exec, -1")
    a("s_load_dwordx4 s[64:67], s[0:1], 8")
    a("s_load_dwordx2 s[76:77], s[0:1], 24")
    a("s_load_dwordx2 s[94:95], s[0:1], 80")
    a("s_load_dwordx2 s[92:93], s[0:1], 72")
    epi_in()
    srd(a, 68, 66, 2048 * 576 * 2)
    a("s_mov_b32 s88, s64"); a("s_mov_b32 s89, s65")
    srd(a, 64, 88, 2048 * 576 * 2)
    srd(a, 72, 76, 576 * 8)
    srd(a, 76, 94, 2304 * 576 * 2)
    srd(a, 28, 92, 2048 * 2)
    a("v_and_b32 v0, 255, v0")
    a("s_mov_b32 s41, s2")
    KDB = 240
    emit_kv_loads(a, 112, 240, 248, 252, 253)
    a("s_cmp_ge_u32 s2, 32")
    a("s_cbranch_scc1 %s_kvp" % name)
    a("s_add_u32 s41, s2, 256")
    emit_kv_loads(a, 52, 63, 124, 71, 123)
    a.label("%s_kvp" % name)
    for ft in range(5): gelu_ft(ft, False)
    Z1R = 200; BI = 236
    for r_ in range(36): a("v_mov_b32 v%d, v%d" % (Z1R + r_, ZP + r_))
    stamp(a, 3)
    a("s_waitcnt vmcnt(0)")
    for n in range(11): a("v_mov_b32 v%d, v%d" % (16 + n, 112 + n))
    for n in range(8): a("v_mov_b32 v%d, v%d" % (32 + n, 240 + n))
    for n in range(4): a("v_mov_b32 v%d, v%d" % (44 + n, 248 + n))
    for r_ in range(6): a("v_mov_b32 v%d, v%d" % (240 + r_, 88 + r_))
    for r_ in range(20): a("v_mov_b32 v%d, v%d" % (128 + r_, 52 + r_))
    for r_ in range(5): a("v_mov_b32 v%d, v%d" % (148 + r_, 123 + r_))
    a("v_mov_b32 v56, v252"); a("v_mov_b32 v57, v253")
    a.label("%s_kvb" % name)
    emit_kv_compute(a, wait=False, store=False)
    a("s_mov_b32 s39, 0x%x" % KVT)
    a("buffer_store_dwordx4 v[120:123], v12, s[12:15], s39 offen sc1")
    a("buffer_store_dwordx4 v[124:127], v13, s[12:15], s39 offen sc1")
    a("s_cmp_lt_u32 s41, 256")
    a("s_cbranch_scc1 %s_kvbd" % name)
    a("s_mov_b32 s41, 0")
    for n in range(11): a("v_mov_b32 v%d, v%d" % (16 + n, 128 + n))
    for n in range(8): a("v_mov_b32 v%d, v%d" % (32 + n, 139 + n))
    for n in range(4): a("v_mov_b32 v%d, v%d" % (44 + n, 149 + n))
    a("v_mov_b32 v56, v147"); a("v_mov_b32 v57, v148")
    a("s_branch %s_kvb" % name)
    a.label("%s_kvbd" % name)
    for r_ in range(6): a("v_mov_b32 v%d, v%d" % (88 + r_, 240 + r_))
    a("s_mov_b32 s42, s2")
    emit_wot_loads(a, 100, 112, 720, 3)
    a("s_lshl_b32 s36, s22, 7")
    a("s_lshl_b32 s37, s24, 6")
    a("s_add_u32 s36, s36, s37")
    a("v_lshlrev_b32 v11, 1, v3")
    a("s_lshl_b32 s37, s25, 6")
    a("s_lshl_b32 s38, s36, 1")
    a("s_add_u32 s39, s38, s37")
    a("s_xor_b32 s37, s37, 64")
    a("s_add_u32 s36, s38, s37")
    a("buffer_load_ushort v96, v11, s[28:31], s39 offen")
    a("buffer_load_ushort v97, v11, s[28:31], s39 offen offset:32")
    a("buffer_load_ushort v98, v11, s[28:31], s36 offen")
    a("buffer_load_ushort v99, v11, s[28:31], s36 offen offset:32")
    for r in range(ACC, ACC + 72): a("v_mov_b32 v%d, 0" % r)
    mma_addr(0)
    a("s_mov_b32 s33, 0")
    stamp(a, 4)
    a("s_barrier")
    stamp(a, 5)
    core.prime(0, core.reads(0, 0))
    trk.drain()
    nocs[0] = True
    a.label("%s_gloop" % name)
    lb = len(a.lines); iteration(False); st = copy.deepcopy(trk.out); del a.lines[lb:]; trk.out = copy.deepcopy(st)
    iteration(False)
    assert [sorted(x) for x in trk.out] == [sorted(x) for x in st]
    a("s_cmp_lg_u32 s33, 3")
    a("s_cbranch_scc1 %s_ghk" % name)
    a("s_waitcnt vmcnt(0)")
    for n in range(3):
        a("buffer_store_dwordx4 %s, v%d, s[12:15], s40 offen" % (vr(100 + 4 * n), 112 + n))
    for tt in range(4): a("v_lshlrev_b32 v%d, 16, v%d" % (BI + 2 * tt, 96 + tt))
    a("v_mov_b32 v10, %d" % (LC + 8))
    a("v_mov_b32 v11, 1")
    a("s_mov_b64 exec, 1")
    a("ds_add_rtn_u32 v12, v10, v11")
    a("s_waitcnt lgkmcnt(0)")
    a("v_readfirstlane_b32 s36, v12")
    a("s_cmp_lg_u32 s36, 3")
    a("s_cbranch_scc1 %s_nokvs" % name)
    a("s_and_b32 s36, s2, 15")
    a("s_lshl_b32 s36, s36, 2")
    a("s_add_u32 s36, s36, 128")
    a("v_mov_b32 v10, s36")
    a("buffer_atomic_add v11, v10, s[60:63], 0 offen sc1")
    a.label("%s_nokvs" % name)
    a("s_mov_b64 exec, -1")
    a.label("%s_ghk" % name)
    a("s_cmp_lt_u32 s33, 32")
    a("s_cbranch_scc1 %s_gloop" % name)
    trk.drain()
    stamp(a, 6)
    G3.emit_k2_epilogue(a, core, Z1R, BI)
    stamp(a, 7)
    G.stamp_rt(a, 1)
    a("s_branch %s_end" % name)
    a.label("%s_A1" % name)
    a("s_setprio 2")
    vmA = VmTracker(a)
    PB = 132
    def aux_head():
        epi_in()
        for tt in range(4):
            a("v_mov_b32 v%d, 0" % S[tt]); a("v_mov_b32 v%d, 0" % Q[tt])
    def aux_pub():
        a("s_nop 2")
        emit_xg_reduce(a, S + Q, 72)
        a("v_lshrrev_b32 v10, 4, v2")
        for g in range(1, 4):
            a("v_cmp_eq_u32 vcc, %d, v10" % g)
            a("s_nop 1")
            a("v_cndmask_b32 v%d, v%d, v%d, vcc" % (S[0], S[0], S[g]))
            a("v_cndmask_b32 v%d, v%d, v%d, vcc" % (Q[0], Q[0], Q[g]))
        a("v_and_b32 v%d, 0x7fffffff, v%d" % (Q[0], Q[0]))
        a("buffer_store_dwordx2 v[%d:%d], v94, s[12:15], s58 offen sc1" % (S[0], Q[0]))
    chunks = [capture(aux_head) + capture(gelu_ft, 0, True), capture(gelu_ft, 1, True), capture(gelu_ft, 2, True),
              capture(gelu_ft, 3, True), capture(gelu_ft, 4, True) + capture(aux_pub)]
    GB = [128, 144, 160, 176]
    def gather():
        for tt in range(4):
            for q in range(4):
                a("buffer_load_dwordx4 %s, v4, s[12:15], s%d offen offset:%d sc1" % (vr(GB[tt] + 4 * q), (52, 42, 53, 43)[tt], 16 * q))
    KD = 172
    for k in range(9, 18):
        a("s_barrier")
        if k == 9:
            a("s_cmp_lg_u32 s3, 0")
            a("s_cbranch_scc1 %s_nosig" % name)
            a("v_mov_b32 v10, 1")
            a("s_lshl_b32 s36, s22, 2")
            a("v_mov_b32 v11, s36")
            a("s_mov_b64 exec, 1")
            a("buffer_atomic_add v10, v11, s[60:63], 0 offen sc1")
            a("s_mov_b64 exec, -1")
            a.label("%s_nosig" % name)
        g = k + 3
        dma = capture(lambda: (issueT(g), issueF(g))) if g < 18 else []
        comp = chunks[k - 9] if k - 9 < len(chunks) else []
        interleave(dma, comp)
        if k == 13: vmA.issue("pub", 1)
        if g < 18: vmA.issue("S%d" % g, 9)
        if k == 14:
            srd(a, 92, 78, 2048 * 2048 * 2)
            a("v_lshrrev_b32 v10, 4, v2")
            a("v_lshlrev_b32 v10, 12, v10")
            a("v_lshl_add_u32 v10, v3, 4, v10")
            a("s_lshl_b32 s40, s22, 7")
            a("s_lshl_b32 s36, s3, 5")
            a("s_add_u32 s40, s40, s36")
            a("s_lshl_b32 s40, s40, 12")
            a("s_lshl_b32 s36, s23, 8")
            a("s_add_u32 s40, s40, s36")
            for n in range(8):
                a("buffer_load_dwordx4 v[200:203], v10, s[92:95], s40 offen")
                if n < 7: a("s_add_u32 s40, s40, 16384")
            vmA.issue("wp", 8)
        if k == 13:
            a("s_lshl_b32 s36, s22, 2")
            a("v_mov_b32 v199, s36")
            a("buffer_load_dword v198, v199, s[60:63], 0 offen sc1"); vmA.issue("cnt", 1)
        if k == 15:
            a("v_lshrrev_b32 v10, 4, v2")
            a("v_lshlrev_b32 v95, 8, v3")
            a("v_lshl_add_u32 v95, v10, 6, v95")
            a("s_lshl_b32 s33, s25, 13")
            a("s_add_u32 s52, s59, s33")
            a("s_xor_b32 s33, s33, 8192")
            a("s_add_u32 s53, s59, s33")
            a("s_add_u32 s42, s52, 4096")
            a("s_add_u32 s43, s53, 4096")
            a("v_mov_b32 v4, v95")
            vmA.wait(["S17"])
            gather(); vmA.issue("g", 16)
        if k + 2 < 18 and k + 2 >= 12 and k != 15:
            vmA.wait(["S%d" % (k + 2)])
    stamp(a, 3)
    a("s_load_dwordx4 s[88:91], s[0:1], 32")
    Z2 = ZP
    a("s_mov_b32 s40, 0")
    a("s_waitcnt vmcnt(0)")
    a.label("%s_chk" % name)
    a("v_subrev_u32 v11, 16, v198")
    for tt in range(4):
        for r in range(GB[tt] + 1, GB[tt] + 16, 4):
            a("v_or3_b32 v11, v11, v%d, v%d" % (r, r + 2))
    a("v_cmp_gt_i32 vcc, 0, v11")
    a("s_add_u32 s40, s40, 1")
    a("s_cmp_gt_u32 s40, %d" % SPIN_MAX)
    a("s_cbranch_scc1 %s_ok" % name)
    a("s_cbranch_vccz %s_ok" % name)
    a("s_sleep 32")
    a("buffer_load_dword v198, v199, s[60:63], 0 offen sc1")
    a("s_waitcnt vmcnt(0)")
    gather()
    a("s_waitcnt vmcnt(0)")
    a("s_branch %s_chk" % name)
    a.label("%s_ok" % name)
    stamp(a, 5)
    for tt in range(4):
        b = GB[tt]
        for st_ in (8, 4, 2):
            for q in range(0, st_, 2):
                a("v_pk_add_f32 %s, %s, %s" % (vr(b + q, 2), vr(b + q, 2), vr(b + q + st_, 2)))
    emit_xg_reduce(a, [GB[tt] + e for tt in range(4) for e in range(2)], 72)
    for tt in range(4):
        b = GB[tt]
        emit_ln_finish(a, b, b + 1, 2304, b + 2, MR + 2 * tt, b + 4)
        a("v_mul_f32 v%d, -v%d, v%d" % (MR + 2 * tt + 1, b + 2, MR + 2 * tt))
    a("v_lshrrev_b32 v10, 4, v2")
    a("v_lshrrev_b32 v11, 2, v2"); a("v_and_b32 v11, 1, v11"); a("v_lshlrev_b32 v11, 4, v11")
    a("v_lshrrev_b32 v5, 3, v2"); a("v_and_b32 v5, 1, v5"); a("v_lshl_add_u32 v11, v5, 2, v11")
    a("v_and_b32 v5, 3, v2"); a("v_add_u32 v11, v11, v5")
    a("v_mul_u32_u24 v11, 288, v11")
    a("v_lshrrev_b32 v5, 1, v10"); a("v_lshl_add_u32 v11, v5, 4, v11")
    a("v_and_b32 v5, 1, v10")
    a("v_lshl_add_u32 v6, v5, 5, v11")
    a("v_mul_u32_u24 v5, 2304, v5")
    a("v_add_u32 v9, v11, v5")
    a("s_lshl_b32 s33, s23, 5")
    a("s_lshl_b32 s36, s22, 1")
    a("s_add_u32 s33, s33, s36")
    a("s_add_u32 s33, s33, s24")
    a("s_mul_i32 s33, s33, 18432")
    if ZIMG: a("s_add_u32 s33, s33, 0x%x" % ZIMG)
    a("s_mul_i32 s36, s25, 9216")
    a("s_add_u32 s37, s33, s36")
    a("s_xor_b32 s36, s36, 9216")
    a("s_add_u32 s38, s33, s36")
    a("s_add_u32 s39, s37, 128")
    a("s_mul_i32 s36, s25, 160")
    a("s_add_u32 s37, s37, s36")
    a("s_add_u32 s38, s38, s36")
    def norm_pair(nA, ttA, nB, ttB, O):
        for q, (n, tt) in enumerate(((nA, ttA), (nB, ttB))):
            for d in range(2):
                z = Z2 + 2 * n + d; t = T + 4 * q + 2 * d
                a("v_lshlrev_b32 v%d, 16, v%d" % (t, z))
                a("v_and_b32 v%d, 0xffff0000, v%d" % (t + 1, z))
        for q, (n, tt) in enumerate(((nA, ttA), (nB, ttB))):
            for d in range(2):
                t = T + 4 * q + 2 * d
                a("v_pk_fma_f32 %s, %s, %s, %s op_sel:[0,0,1] op_sel_hi:[1,0,1]" % (vr(t, 2), vr(t, 2), vr(MR + 2 * tt, 2), vr(MR + 2 * tt, 2)))
        for q in range(2):
            for d in range(2):
                t = T + 4 * q + 2 * d
                a("v_cvt_pk_bf16_f32 v%d, v%d, v%d" % (O + 2 * q + d, t, t + 1))
        a("s_nop 1")
        a("v_permlane16_swap_b32 v%d, v%d" % (O, O + 2))
        a("v_permlane16_swap_b32 v%d, v%d" % (O + 1, O + 3))
    cnt = 0
    for pr in range(2):
        for tt in range(4):
            O = 200 + 4 * cnt; cnt += 1
            norm_pair(tidx(2 * pr, tt), tt, tidx(2 * pr + 1, tt), tt, O)
            a("s_nop 0")
            a("buffer_store_dwordx4 %s, v6, s[12:15], s%d offen offset:%d" % (vr(O), 37 if tt < 2 else 38, (tt & 1) * 2304 + 64 * pr) + " sc1")
    O = 200 + 4 * cnt
    norm_pair(16, 0, 17, 1, O)
    a("s_nop 0")
    a("buffer_store_dwordx4 %s, v9, s[12:15], s39 offen sc1" % vr(O))
    stamp(a, 6)
    a("s_setprio 3")
    srd(a, 8, 78, 2048 * 2048 * 2)
    a("v_lshrrev_b32 v3, 3, v2")
    a("s_lshl_b32 s24, s3, 5")
    a("v_add_u32 v3, s24, v3")
    a("v_and_b32 v4, 7, v2")
    a("v_lshrrev_b32 v6, 4, v2")
    a("v_xor_b32 v6, v6, v4")
    a("v_lshlrev_b32 v6, 4, v6")
    a("v_lshl_add_u32 v10, v3, 12, v6")
    a("v_xor_b32 v11, 64, v10")
    a("v_add_u32 v11, %d, v11" % (32768 - 1024))
    a("v_add_u32 v12, %d, v10" % (2 * (32768 - 1024)))
    a("v_add_u32 v13, %d, v11" % (2 * (32768 - 1024)))
    a("v_lshlrev_b32 v14, 4, v2")
    a("s_lshl_b32 s26, s22, 19")
    a("s_mul_i32 s27, s23, %d" % (32 * 18432))
    a("s_lshl_b32 s24, s3, 12")
    a("s_add_u32 s27, s27, s24")
    if ZIMG: a("s_add_u32 s27, s27, 0x%x" % ZIMG)
    a("s_lshl_b32 s25, s3, 9")
    a("s_sub_u32 s32, s25, s24")
    a("s_add_u32 s32, s32, 16384")
    a("s_add_u32 s24, s24, %d" % RB)
    a("s_waitcnt vmcnt(0) lgkmcnt(0)")
    a("v_mov_b32 v26, %d" % LC)
    a("v_mov_b32 v27, 1")
    a("s_mov_b64 exec, 1")
    a("ds_add_rtn_u32 v28, v26, v27")
    a("s_waitcnt lgkmcnt(0)")
    a("v_readfirstlane_b32 s36, v28")
    a("s_cmp_lg_u32 s36, 3")
    a("s_cbranch_scc1 %s_nozs" % name)
    a("v_mov_b32 v28, 0")
    a("buffer_store_dword v27, v28, s[12:15], s97 offen sc1")
    a.label("%s_nozs" % name)
    a("s_mov_b64 exec, -1")
    stamp(a, 7)
    srd(a, 16, 88, 576 * 2048 * 2)
    srd(a, 84, 90, 576 * 2)
    a("s_mov_b32 s34, 0")
    a.label("%s_wb" % name)
    a("ds_read_b32 v27, v26 offset:12")
    a("s_add_u32 s34, s34, 1")
    a("s_waitcnt lgkmcnt(0)")
    a("v_readfirstlane_b32 s36, v27")
    a("s_cmp_gt_u32 s34, %d" % (SPIN_MAX * 20))
    a("s_cbranch_scc1 %s_wbx" % name)
    a("s_cmp_ge_u32 s36, 4")
    a("s_cbranch_scc1 %s_wbx" % name)
    a("s_sleep 2")
    a("s_branch %s_wb" % name)
    a.label("%s_wbx" % name)
    for g in range(4):
        a("s_add_u32 s35, s24, %d" % (g * SLOT))
        a("s_mov_b32 m0, s35")
        a("s_add_u32 s36, s26, %d" % (128 * g))
        for n in range(4):
            a("buffer_load_dwordx4 v%d, s[8:11], s36 offen offset:%d lds" % (10 + n, n * 1024))
    a("s_mov_b32 s34, 0")
    a("s_cmp_lg_u32 s3, 0")
    a("s_cbranch_scc1 %s_pl" % name)
    a("v_and_b32 v28, 15, v2")
    a("v_lshlrev_b32 v30, 2, v28")
    a("v_lshlrev_b32 v28, 12, v28")
    a("s_lshl_b32 s52, s23, 8")
    a("s_add_u32 s52, s52, 0x%x" % ZFLG)
    a.label("%s_pz0" % name)
    a("buffer_load_dword v31, v30, s[60:63], 0 offen sc1")
    a("s_add_u32 s34, s34, 1")
    a("s_waitcnt vmcnt(0)")
    a("v_cmp_gt_u32 vcc, 16, v31")
    a("s_cmp_gt_u32 s34, %d" % SPIN_MAX)
    a("s_cbranch_scc1 %s_pz" % name)
    a("s_cbranch_vccz %s_pz" % name)
    a("s_sleep 32")
    a("s_branch %s_pz0" % name)
    a.label("%s_pz" % name)
    a("buffer_load_dword v29, v28, s[12:15], s52 offen sc1")
    a("s_add_u32 s34, s34, 1")
    a("s_waitcnt vmcnt(0)")
    a("v_cmp_ne_u32 vcc, 1, v29")
    a("s_cmp_gt_u32 s34, %d" % SPIN_MAX)
    a("s_cbranch_scc1 %s_pzx" % name)
    a("s_cbranch_vccz %s_pzx" % name)
    a("s_sleep 8")
    a("s_branch %s_pz" % name)
    a.label("%s_pzx" % name)
    a("v_mov_b32 v27, 1")
    a("ds_write_b32 v26, v27 offset:4")
    a("s_branch %s_pgo" % name)
    a.label("%s_pl" % name)
    a("ds_read_b32 v27, v26 offset:4")
    a("s_add_u32 s34, s34, 1")
    a("s_waitcnt lgkmcnt(0)")
    a("v_readfirstlane_b32 s36, v27")
    a("s_cmp_gt_u32 s34, %d" % (SPIN_MAX * 20))
    a("s_cbranch_scc1 %s_pgo" % name)
    a("s_cmp_lg_u32 s36, 0")
    a("s_cbranch_scc1 %s_pgo" % name)
    a("s_sleep 2")
    a("s_branch %s_pl" % name)
    a.label("%s_pgo" % name)
    stamp(a, 8)
    for g in range(4):
        a("s_add_u32 s35, s24, %d" % (g * SLOT + TREG))
        a("s_mov_b32 m0, s35")
        a("s_add_u32 s36, s27, %d" % (18432 * g))
        a("s_add_u32 s37, s36, s32")
        for n in range(4):
            a("buffer_load_dwordx4 v14, s[12:15], s36 offen offset:%d sc1 lds" % (n * 1024))
        a("s_add_u32 s35, s35, s32")
        a("s_mov_b32 m0, s35")
        a("s_mov_b64 exec, 0xffffffff")
        a("buffer_load_dwordx4 v14, s[12:15], s37 offen sc1 lds")
        a("s_mov_b64 exec, -1")
    a("s_add_u32 s26, s26, 512")
    a("s_add_u32 s27, s27, %d" % (4 * 18432))
    a("s_mov_b32 s33, 0")
    a("s_lshl_b32 s43, s2, 2")
    a("s_add_u32 s43, s43, s3")
    a("s_and_b32 s53, s43, 1")
    a("s_sub_u32 s36, s43, 448")
    a("s_lshr_b32 s37, s43, 1")
    a("s_cmp_ge_u32 s43, 896")
    a("s_cselect_b32 s43, s36, s37")
    a("s_cselect_b32 s53, 2, s53")
    a("s_waitcnt vmcnt(15)")
    a("s_barrier")
    a("s_waitcnt vmcnt(10)")
    a("s_barrier")
    a("s_waitcnt vmcnt(5)")
    a("s_barrier")
    a("s_mov_b32 s34, 4")
    def issue2():
        a("s_add_u32 s35, s33, s24")
        a("s_mov_b32 m0, s35")
        a("s_add_u32 s36, s35, %d" % TREG)
        for n in range(4):
            a("buffer_load_dwordx4 v%d, s[8:11], s26 offen offset:%d lds" % (10 + n, n * 1024))
        a("s_mov_b32 m0, s36")
        a("s_add_u32 s37, s27, s32")
        for n in range(4):
            a("buffer_load_dwordx4 v14, s[12:15], s27 offen offset:%d sc1 lds" % (n * 1024))
        a("s_add_u32 s36, s36, s32")
        a("s_mov_b32 m0, s36")
        a("s_mov_b64 exec, 0xffffffff")
        a("buffer_load_dwordx4 v14, s[12:15], s37 offen sc1 lds")
        a("s_mov_b64 exec, -1")
        a("s_add_u32 s26, s26, 128")
        a("s_add_u32 s27, s27, 18432")
        a("s_add_u32 s33, s33, %d" % SLOT)
        a("s_cmp_eq_u32 s33, %d" % (R * SLOT))
        a("s_cselect_b32 s33, 0, s33")
    a.label("%s_lloop" % name)
    issue2()
    a("s_cmp_eq_u32 s34, 18")
    a("s_cbranch_scc1 %s_hk1" % name)
    a("s_cmp_eq_u32 s34, 21")
    a("s_cbranch_scc1 %s_hk2" % name)
    a("s_waitcnt vmcnt(9)")
    a.label("%s_lcont" % name)
    a("s_barrier")
    a("s_add_u32 s34, s34, 1")
    a("s_cmp_lt_u32 s34, 32")
    a("s_cbranch_scc1 %s_lloop" % name)
    a("s_branch %s_ldone" % name)
    a.label("%s_hk1" % name)
    a("v_and_b32 v28, 15, v2")
    a("v_lshlrev_b32 v28, 2, v28")
    a("buffer_load_dword v29, v28, s[60:63], 0 offen offset:128 sc1")
    a("s_waitcnt vmcnt(10)")
    a("s_branch %s_lcont" % name)
    a.label("%s_hk2" % name)
    a("s_mov_b32 s52, 0")
    a.label("%s_hk2l" % name)
    a("v_cmp_gt_u32 vcc, 16, v29")
    a("s_add_u32 s52, s52, 1")
    a("s_cmp_gt_u32 s52, %d" % SPIN_MAX)
    a("s_cbranch_scc1 %s_hk2g" % name)
    a("s_cbranch_vccz %s_hk2g" % name)
    a("s_sleep 16")
    a("buffer_load_dword v29, v28, s[60:63], 0 offen offset:128 sc1")
    a("s_waitcnt vmcnt(0)")
    a("s_branch %s_hk2l" % name)
    a.label("%s_hk2g" % name)
    nconv = emit_conv_loads(a, " sc1")
    a("s_waitcnt vmcnt(%d)" % (9 + nconv))
    a("s_branch %s_lcont" % name)
    a.label("%s_ldone" % name)
    a("s_waitcnt vmcnt(0)")
    a("s_barrier")
    a("s_mov_b32 s26, s53")
    a("s_and_b32 s27, s3, 1")
    a("s_mul_i32 s27, s27, %d" % CJ_SIZE)
    a("s_lshr_b32 s36, s3, 1")
    a("s_mul_i32 s36, s36, %d" % SLOT)
    a("s_add_u32 s27, s27, s36")
    a("s_add_u32 s27, s27, %d" % RB)
    def mid():
        a("s_barrier")
        a("s_setprio 0")
    sv = set(DBG); DBG.discard("stamp")
    emit_conv_job(a, name, mid)
    DBG.update(sv)
    G.stamp_rt(a, 1)
    a.label("%s_end" % name)
    a("s_endpgm")
    return a.text(), kernel_desc(name, 256, 256), (name, 256, 512, LDSB)

def gen_kf4(name="k1_kernel", R=4):
    a = Asm()
    RB = 4096; SLOT = 34816; TREG = 16384; FS = 288; RST = 0
    LDSB = RB + R * SLOT
    LC = 2048
    ZFLG = 0x2D00000
    from gen3 import emit_conv_loads, emit_conv_job, CJ_SIZE
    def capture(f, *args):
        lb = len(a.lines); f(*args); out = a.lines[lb:]; del a.lines[lb:]; return out
    kernel_begin(a, name)
    a("s_load_dwordx2 s[80:81], s[0:1], 0")
    a("s_load_dwordx2 s[4:5], s[0:1], 56")
    a("s_load_dwordx2 s[6:7], s[0:1], 104")
    a("s_load_dwordx2 s[18:19], s[0:1], 96")
    a("s_cmp_ge_u32 s2, 256")
    a("s_cbranch_scc1 %s_end" % name)
    a("v_lshrrev_b32 v1, 6, v0")
    a("v_and_b32 v2, 63, v0")
    a("v_readfirstlane_b32 s3, v1")
    G2.tile_ij(a)
    a("s_lshr_b32 s98, s3, 2")
    a("s_mov_b32 s54x, 0".replace("s54x", "s99"))
    a("s_and_b32 s3, s3, 3")
    a("s_lshr_b32 s24, s3, 1")
    a("s_and_b32 s25, s3, 1")
    a("v_and_b32 v3, 15, v2")
    VT = 204; VF = 208
    def loader_setup():
        a("v_lshrrev_b32 v5, 3, v2")
        a("v_and_b32 v4, 7, v2")
        a("s_lshl_b32 s36, s3, 5")
        a("v_add_u32 v5, s36, v5")
        a("v_lshrrev_b32 v7, 4, v2")
        a("v_xor_b32 v7, v7, v4")
        a("v_mul_u32_u24 v6, 1152, v5")
        a("v_lshl_add_u32 v%d, v7, 4, v6" % VT)
        a("v_xor_b32 v%d, 64, v%d" % (VT + 1, VT))
        a("v_add_u32 v%d, %d, v%d" % (VT + 1, 9216 - 1024, VT + 1))
        a("v_add_u32 v%d, %d, v%d" % (VT + 2, 2 * (9216 - 1024), VT))
        a("v_add_u32 v%d, %d, v%d" % (VT + 3, 2 * (9216 - 1024), VT + 1))
        a("s_lshl_b32 s84, s3, 12")
        a("s_add_u32 s84, s84, %d" % RB)
        a("s_lshl_b32 s85, s3, 9")
        a("s_add_u32 s85, s85, %d" % (RB + TREG + 16384))
    def loader_setup2():
        for n in range(5):
            if n < 4:
                a("s_lshl_b32 s36, s3, 8")
                a("s_add_u32 s36, s36, %d" % (64 * n))
            else:
                a("s_lshl_b32 s36, s3, 5")
                a("s_add_u32 s36, s36, 1024")
            a("v_add_u32 v6, s36, v2")
            a("v_mul_u32_u24 v7, 3641, v6")
            a("v_lshrrev_b32 v7, 16, v7")
            a("v_mul_u32_u24 v8, 18, v7")
            a("v_sub_u32 v8, v6, v8")
            a("v_and_b32 v9, 35, v7")
            a("v_bfe_u32 v6, v7, 2, 2")
            a("v_lshl_add_u32 v9, v6, 3, v9")
            a("v_bfe_u32 v6, v7, 4, 1")
            a("v_lshl_add_u32 v9, v6, 2, v9")
            a("v_mul_u32_u24 v9, 9216, v9")
            a("v_lshl_add_u32 v%d, v8, 4, v9" % (VF + n))
            if 0 < n < 4: a("v_subrev_u32 v%d, %d, v%d" % (VF + n, 1024 * n, VF + n))
    def issueT(g):
        st = g % 9
        a("s_add_u32 s86, s84, %d" % ((g % R) * SLOT))
        a("s_mov_b32 m0, s86")
        a("s_add_u32 s87, s82, %d" % (128 * st))
        for n in range(4):
            a("buffer_load_dwordx4 v%d, s[28:31], s87 offen offset:%d lds" % (VT + n, 1024 * n))
    def issueF(g):
        st = g % 9
        a("s_add_u32 s86, s84, %d" % ((g % R) * SLOT + TREG))
        a("s_mov_b32 m0, s86")
        a("s_add_u32 s87, s83, %d" % (64 * 9216 * st + (4608 if g < 9 else 0)))
        for n in range(4):
            a("buffer_load_dwordx4 v%d, s[8:11], s87 offen offset:%d lds" % (VF + n, 1024 * n))
        a("s_add_u32 s86, s85, %d" % ((g % R) * SLOT))
        a("s_mov_b32 m0, s86")
        a("s_mov_b64 exec, 0xffffffff")
        a("buffer_load_dwordx4 v%d, s[8:11], s87 offen lds" % (VF + 4))
        a("s_mov_b64 exec, -1")
    def srds_main():
        srd(a, 28, 80, 2048 * 576 * 2)
        srd(a, 8, 4, 576 * 4608 * 2)
        srd(a, 12, 6, WS_BYTES)
        srd(a, 60, 18, 256)
        a("s_mul_i32 s82, s22, %d" % (128 * 1152))
        a("s_mul_i32 s83, s23, 288")
    ACC = 128; FB = [16, 52]; CS = 216; ONE = 236
    vTa = [4, 5]; vTb = [6, 7]; vF = 8; vFh = 9
    bTa = [88, 89]; bTb = [90, 91]; bF = 92; bFh = 93
    def mma_setup():
        a("v_lshrrev_b32 v10, 4, v2")
        a("v_lshrrev_b32 v11, 1, v3")
        a("v_xor_b32 v10, v10, v11")
        a("v_lshlrev_b32 v10, 4, v10")
        a("v_lshl_add_u32 v10, v3, 7, v10")
        a("s_lshl_b32 s26, s24, 13")
        a("s_add_u32 s26, s26, %d" % RB)
        a("v_add_u32 v10, s26, v10")
        a("s_lshl_b32 s26, s25, 12")
        a("v_add_u32 v%d, s26, v10" % bTa[0])
        a("s_xor_b32 s26, s26, 4096")
        a("v_add_u32 v%d, s26, v10" % bTb[0])
        a("v_xor_b32 v%d, 64, v%d" % (bTa[1], bTa[0]))
        a("v_xor_b32 v%d, 64, v%d" % (bTb[1], bTb[0]))
        a("v_lshrrev_b32 v10, 2, v2")
        a("v_mul_u32_u24 v10, %d, v10" % FS)
        a("v_and_b32 v11, 3, v2")
        a("v_lshl_add_u32 v10, v11, 3, v10")
        a("v_add_u32 v10, %d, v10" % (RB + TREG))
        a("s_mul_i32 s26, s25, 160")
        a("v_add_u32 v%d, s26, v10" % bF)
        a("v_add_u32 v%d, 128, v10" % bFh)
        for r in range(ACC, ACC + 72): a("v_mov_b32 v%d, 0" % r)
        for r in range(CS, CS + 20): a("v_mov_b32 v%d, 0" % r)
        for r in range(ONE, ONE + 4): a("v_mov_b32 v%d, 0x3f803f80" % r)
    def mma_addr(slot):
        a("s_mov_b32 s27, %d" % (slot * SLOT))
        for d, s_ in ((vTa[0], bTa[0]), (vTb[0], bTb[0]), (vTa[1], bTa[1]), (vTb[1], bTb[1]), (vF, bF), (vFh, bFh)):
            a("v_add_u32 v%d, s27, v%d" % (d, s_))
    core = G.Core(a, ACC, FB[0], FB[1], FS, TREG, vTa, vTb, vF, vFh)
    trk = core.trk
    a("s_cmp_eq_u32 s98, 0")
    a("s_cbranch_scc1 %s_A0" % name)
    a("s_setprio 3")
    loader_setup()
    a("s_waitcnt lgkmcnt(0)")
    srds_main()
    vm = VmTracker(a)
    def issue(g, vmx):
        issueT(g); issueF(g); vmx.issue("S%d" % g, 9)
    issueT(0)
    loader_setup2()
    issueF(0); vm.issue("S0", 9)
    issue(1, vm); issue(2, vm); issue(3, vm)
    a("s_add_u32 s3, s3, 4"); stamp_setup(a, 1); stamp(a, 0); a("s_sub_u32 s3, s3, 4")
    mma_setup()
    RA = 96; XB = 112
    for r in range(RA, RA + 16): a("v_mov_b32 v%d, 0" % r)
    a("v_lshrrev_b32 v10, 4, v2")
    a("v_lshrrev_b32 v11, 1, v3")
    a("v_xor_b32 v10, v10, v11")
    a("v_lshlrev_b32 v10, 4, v10")
    a("v_lshl_add_u32 v10, v3, 7, v10")
    a("v_add_u32 v12, s84, v10")
    a("v_xor_b32 v13, 64, v12")
    def rs_rd(g):
        a("v_add_u32 v10, %d, v12" % ((g % R) * SLOT))
        a("v_add_u32 v11, %d, v13" % ((g % R) * SLOT))
        for h in range(2):
            for n in range(2):
                a("ds_read_b128 %s, v%d offset:%d" % (vr(XB + 8 * h + 4 * n), 10 + h, 2048 * n))
    def rs_do():
        for h in range(2):
            for n in range(2):
                x = XB + 8 * h + 4 * n
                a("v_mfma_f32_16x16x32_bf16 %s, %s, %s, %s" % (vr(RA + 4 * n), vr(ONE), vr(x), vr(RA + 4 * n)))
                a("v_mfma_f32_16x16x32_bf16 %s, %s, %s, %s" % (vr(RA + 8 + 4 * n), vr(x), vr(x), vr(RA + 8 + 4 * n)))
    def interleave(dma, comp, vmx=None):
        groups = []; cur = []
        for l in dma:
            cur.append(l)
            if "buffer_load" in l and not any("exec, 0xffffffff" in x for x in cur[-2:]):
                groups.append(cur); cur = []
            elif "exec, -1" in l:
                groups.append(cur); cur = []
        if cur: groups.append(cur)
        ns = max(1, len(groups))
        per = (len(comp) + ns - 1) // ns
        for g in groups:
            a.lines.extend(g)
            a.lines.extend(comp[:per]); comp = comp[per:]
        a.lines.extend(comp)
    vm.wait(["S0"])
    a("s_barrier")
    stamp(a, 1)
    rs_rd(0)
    vm.wait(["S1"])
    a("s_barrier")
    for k in range(9):
        a("s_waitcnt lgkmcnt(0)")
        dma = capture(lambda: (issueT(k + 3), issueF(k + 3))) if 1 <= k < 8 else []
        interleave(dma, capture(rs_do))
        if 1 <= k < 8: vm.issue("S%d" % (k + 3), 9)
        if k < 8:
            rs_rd(k + 1)
        else:
            a("s_nop 7")
            a("v_lshrrev_b32 v10, 4, v2")
            a("v_lshrrev_b32 v11, 2, v3")
            a("v_and_b32 v12, 3, v3")
            for n in range(2):
                G_ = RA + 8 + 4 * n
                for r in range(1, 4):
                    a("v_cmp_eq_u32 vcc, %d, v12" % r)
                    a("s_nop 1")
                    a("v_cndmask_b32 v%d, v%d, v%d, vcc" % (G_, G_, G_ + r))
            ML = 112
            for n in range(2):
                emit_ln_finish(a, RA + 4 * n, RA + 8 + 4 * n, 576, ML + 2 * n, ML + 2 * n + 1, 120)
                a("v_mov_b32 v%d, v%d" % (117 + 2 * n, ML + 2 * n + 1))
                a("v_sub_f32 v%d, 0, v%d" % (116 + 2 * n, ML + 2 * n))
            a("s_lshl_b32 s35, s3, 8")
            a("v_lshlrev_b32 v13, 3, v3")
            a("v_add_u32 v12, s35, v13")
            a("v_cmp_eq_u32 vcc, v10, v11")
            a("s_and_saveexec_b64 s[36:37], vcc")
            for n in range(2):
                a("ds_write_b64 v12, %s offset:%d" % (vr(116 + 2 * n, 2), RST + 128 * n))
            a("s_mov_b64 exec, s[36:37]")
            a("s_cmp_lg_u32 s23, 0")
            a("s_cbranch_scc1 %s_nost1" % name)
            a("s_lshl_b32 s35, s22, 7")
            a("s_lshl_b32 s36, s3, 5")
            a("s_add_u32 s35, s35, s36")
            a("s_lshl_b32 s35, s35, 3")
            a("s_add_u32 s35, s35, 0x%x" % STATS1)
            a("v_mov_b32 v11, 0x7ffffff0")
            a("v_cndmask_b32 v13, v11, v13, vcc")
            for n in range(2):
                a("buffer_store_dwordx2 %s, v13, s[12:15], s35 offen offset:%d" % (vr(ML + 2 * n, 2), 128 * n))
            a.label("%s_nost1" % name)
        if k < 8:
            vm.wait(["S%d" % (k + 2)])
            a("s_barrier")
    HO = lambda: None
    def ho_addr():
        a("s_lshr_b32 s36, s3, 1")
        a("s_mul_i32 s36, s36, %d" % (3 * SLOT))
        a("s_and_b32 s37, s3, 1")
        a("s_mul_i32 s37, s37, 12288")
        a("s_add_u32 s36, s36, s37")
        a("s_add_u32 s36, s36, %d" % RB)
        a("v_lshlrev_b32 v10, 4, v2")
        a("v_add_u32 v95, s36, v10")
    a("s_waitcnt lgkmcnt(0)")
    a("s_barrier")
    ho_addr()
    a("s_barrier")
    n_ = 0
    for ft in range(4):
        for tt in range(2):
            a("ds_read_b128 %s, v95 offset:%d" % (vr(core.accr(ft, tt)), 1024 * n_)); n_ += 1
    for ft in range(4):
        a("ds_read_b128 %s, v95 offset:%d" % (vr(CS + 4 * ft), 1024 * n_)); n_ += 1
    a("s_branch %s_g2" % name)
    a.label("%s_A0" % name)
    emit_code_prefetch(a, name)
    a("s_load_dwordx4 s[64:67], s[0:1], 8")
    a("s_load_dwordx2 s[76:77], s[0:1], 24")
    a("s_load_dwordx2 s[78:79], s[0:1], 64")
    mma_setup()
    loader_setup(); loader_setup2()
    a("s_waitcnt lgkmcnt(0)")
    srds_main()
    srd(a, 68, 66, 2048 * 576 * 2)
    a("s_mov_b32 s88, s64"); a("s_mov_b32 s89, s65")
    srd(a, 64, 88, 2048 * 576 * 2)
    srd(a, 72, 76, 576 * 8)
    stamp_setup(a, 1); stamp(a, 0)
    def gran_addr():
        a("v_lshrrev_b32 v10, 4, v2")
        a("s_lshl_b32 s36, s25, 1")
        a("v_add_u32 v11, s36, v10")
        a("v_and_b32 v11, 3, v11")
        a("v_lshl_add_u32 v11, v11, 4, v3")
        a("v_lshlrev_b32 v94, 8, v11")
        a("s_lshl_b32 s59, s22, 7")
        a("s_lshl_b32 s36, s24, 6")
        a("s_add_u32 s59, s59, s36")
        a("s_lshl_b32 s59, s59, 8")
        a("s_add_u32 s59, s59, 0x%x" % STATS2)
        a("s_lshl_b32 s36, s23, 1")
        a("s_add_u32 s36, s36, s25")
        a("s_lshl_b32 s36, s36, 3")
        a("s_add_u32 s58, s36, s59")
    gran_addr()
    a("v_mov_b32 v12, 0"); a("v_mov_b32 v13, 0x80000000")
    a("buffer_store_dwordx2 v[12:13], v94, s[12:15], s58 offen sc1")
    a("s_lshl_b32 s36, s22, 4")
    a("s_add_u32 s36, s36, s23")
    a("s_lshl_b32 s36, s36, 8")
    a("s_add_u32 s97, s36, 0x%x" % ZFLG)
    a("v_mov_b32 v10, %d" % LC)
    a("v_mov_b32 v12, 0"); a("v_mov_b32 v13, 0")
    a("s_mov_b64 exec, 1")
    a("buffer_store_dword v12, v12, s[12:15], s97 offen sc1")
    a("s_mov_b64 exec, -1")
    a("ds_write_b64 v10, v[12:13]")
    a("ds_write_b64 v10, v[12:13] offset:8")
    mma_addr(0)
    a("s_mov_b32 s33, 0")
    a("s_waitcnt lgkmcnt(0)")
    a("s_barrier")
    stamp(a, 1)
    a.label("%s_mma" % name)
    core.prime(0, core.reads(0, 0))
    trk.drain()
    nocs = [False]
    def mfmas(buf):
        L = []
        for ft in range(5):
            A = core.F(buf, ft)
            for tt in range(4 if ft < 4 else 2):
                c = core.accr(ft, tt); B = core.T(buf, tt)
                L.append(("v_mfma_f32_16x16x32_bf16 %s, %s, %s, %s" % (vr(c), vr(A), vr(B), vr(c)), list(range(A, A + 4)) + list(range(B, B + 4))))
            if not nocs[0]: L.append(("v_mfma_f32_16x16x32_bf16 %s, %s, %s, %s" % (vr(CS + 4 * ft), vr(A), vr(ONE), vr(CS + 4 * ft)), list(range(A, A + 4))))
        return L
    def phase(buf, pend):
        for (m, regs) in mfmas(buf):
            trk.need(regs)
            a(m)
            while pend:
                k, t = pend.pop(0)
                if k == "x":
                    a(t)
                    if t.startswith("s_"): continue
                else:
                    a(t[0]); trk.issue(t[1])
                break
        for k, t in pend:
            if k == "x": a(t)
            else: a(t[0]); trk.issue(t[1])
    def iteration(vw=True):
        if vw: a("s_waitcnt vmcnt(0)")
        a("s_barrier")
        rd = [("r", t) for t in core.reads(1, 1)]
        upd = ["s_add_u32 s27, s27, %d" % SLOT, "s_cmp_eq_u32 s27, %d" % (R * SLOT), "s_cselect_b32 s27, 0, s27"]
        tail = ["v_add_u32 v%d, s27, v%d" % (d, s_) for d, s_ in ((vTa[0], bTa[0]), (vF, bF), (vTb[0], bTb[0]), (vFh, bFh))]
        phase(0, rd[:1] + [("x", u) for u in upd] + rd[1:] + [("x", u) for u in tail])
        rd = [("r", t) for t in core.reads(0, 0)]
        tail = ["v_add_u32 v%d, s27, v%d" % (d, s_) for d, s_ in ((vTa[1], bTa[1]), (vTb[1], bTb[1]))] + ["s_add_u32 s33, s33, 1"]
        phase(1, rd + [("x", u) for u in tail])
    a.label("%s_cloop" % name)
    lb = len(a.lines); iteration(); st = copy.deepcopy(trk.out); del a.lines[lb:]; trk.out = copy.deepcopy(st)
    iteration()
    assert [sorted(x) for x in trk.out] == [sorted(x) for x in st]
    a("s_cmp_lt_u32 s33, 9")
    a("s_cbranch_scc1 %s_cloop" % name)
    trk.drain()
    stamp(a, 2)
    MR = 100; T = 72; ZP = 16
    a("s_cmp_eq_u32 s98, 1")
    a("s_cbranch_scc1 %s_Btail" % name)
    a("s_waitcnt vmcnt(0)")
    a("s_barrier")
    a("s_cmp_lg_u32 s3, 0")
    a("s_cbranch_scc1 %s_nosig" % name)
    a("v_mov_b32 v10, 1")
    a("s_lshl_b32 s36, s22, 2")
    a("v_mov_b32 v11, s36")
    a("s_mov_b64 exec, 1")
    a("buffer_atomic_add v10, v11, s[60:63], 0 offen sc1")
    a("s_mov_b64 exec, -1")
    a.label("%s_nosig" % name)
    ho_addr()
    n_ = 0
    for ft in range(4):
        for tt in range(2):
            a("ds_write_b128 v95, %s offset:%d" % (vr(core.accr(ft, tt + 2)), 1024 * n_)); n_ += 1
    for ft in range(4):
        a("ds_write_b128 v95, %s offset:%d" % (vr(CS + 4 * ft), 1024 * n_)); n_ += 1
    a("s_waitcnt lgkmcnt(0)")
    a("s_barrier")
    a.label("%s_g2" % name)
    gelu_consts(a)
    a("s_xor_b32 s52, s98, s25")
    a("s_lshl_b32 s36, s24, 9")
    a("s_lshl_b32 s37, s52, 8")
    a("s_add_u32 s38, s36, s37")
    a("v_lshlrev_b32 v10, 3, v3")
    a("v_add_u32 v11, s38, v10")
    a("ds_read_b64 %s, v11 offset:%d" % (vr(MR, 2), RST))
    a("ds_read_b64 %s, v11 offset:%d" % (vr(MR + 2, 2), RST + 128))
    for r_ in range(108, 112): a("v_mov_b32 v%d, 0" % r_)
    a("s_waitcnt lgkmcnt(0)")
    ZPo = lambda n: 16 + 2 * n
    def dots2(lst):
        for d in range(2):
            for (ft, tt) in lst:
                p = ZPo(2 * ft + tt) + d
                a("v_dot2_f32_bf16 v%d, v%d, v%d, v%d" % (108 + 2 * tt, p, ONE, 108 + 2 * tt))
                a("v_dot2_f32_bf16 v%d, v%d, v%d, v%d" % (109 + 2 * tt, p, p, 109 + 2 * tt))
    a("s_cmp_lg_u32 s98, 0")
    a("s_cbranch_scc1 %s_nohalf" % name)
    lst = [(4, 0), (4, 1)]
    emit_fold_gelu(a, [(core.accr(ft, tt), CS + 4 * ft, MR + 2 * tt, ZPo(2 * ft + tt)) for ft, tt in lst], T)
    dots2(lst)
    a.label("%s_nohalf" % name)
    for f0 in (0, 2):
        lst = [(ft, tt) for ft in (f0, f0 + 1) for tt in range(2)]
        emit_fold_gelu(a, [(core.accr(ft, tt), CS + 4 * ft, MR + 2 * tt, ZPo(2 * ft + tt)) for ft, tt in lst], T)
        dots2(lst)
    a("s_nop 2")
    emit_xg_reduce(a, [108, 110, 109, 111], 72)
    a("s_lshl_b32 s40, s22, 7")
    a("s_lshl_b32 s36, s24, 6")
    a("s_add_u32 s40, s40, s36")
    a("s_lshl_b32 s40, s40, 8")
    a("s_add_u32 s59, s40, 0x%x" % STATS2)
    a("s_lshl_b32 s36, s52, 13")
    a("s_add_u32 s40, s59, s36")
    a("s_lshl_b32 s36, s23, 1")
    a("s_add_u32 s36, s36, s25")
    a("s_lshl_b32 s36, s36, 3")
    a("s_add_u32 s40, s40, s36")
    a("v_lshrrev_b32 v10, 4, v2")
    a("v_lshlrev_b32 v11, 8, v2")
    a("v_cmp_gt_u32 vcc, 32, v2")
    a("v_mov_b32 v12, 0x7ffffff0")
    a("v_cmp_eq_u32 s[36:37], 1, v10")
    a("v_cndmask_b32 v11, v12, v11, vcc")
    a("s_nop 0")
    a("v_cndmask_b32 v108, v108, v110, s[36:37]")
    a("v_cndmask_b32 v109, v109, v111, s[36:37]")
    a("v_and_b32 v109, 0x7fffffff, v109")
    a("buffer_store_dwordx2 v[108:109], v11, s[12:15], s40 offen sc1")
    a("s_cmp_eq_u32 s98, 0")
    a("s_cbranch_scc1 %s_A1" % name)
    for q in range(4):
        a("ds_write_b128 v95, %s offset:%d" % (vr(16 + 4 * q), 1024 * q))
    for r in range(ACC, ACC + 72): a("v_mov_b32 v%d, 0" % r)
    for r in range(CS, CS + 20): a("v_mov_b32 v%d, 0" % r)
    mma_addr(9 % R)
    a("s_mov_b32 s33, 0")
    a("s_setprio 0")
    a("s_waitcnt lgkmcnt(0)")
    stamp(a, 9)
    a("s_barrier")
    a("s_branch %s_mma" % name)
    def epi_in():
        gelu_consts(a)
        a("s_lshl_b32 s36, s24, 9")
        a("s_lshl_b32 s37, s25, 8")
        a("s_add_u32 s38, s36, s37")
        a("s_xor_b32 s37, s37, 256")
        a("s_add_u32 s39, s36, s37")
        a("v_lshlrev_b32 v10, 3, v3")
        a("v_add_u32 v11, s38, v10")
        a("ds_read_b64 %s, v11 offset:%d" % (vr(MR, 2), RST))
        a("ds_read_b64 %s, v11 offset:%d" % (vr(MR + 2, 2), RST + 128))
        a("v_add_u32 v11, s39, v10")
        a("ds_read_b64 %s, v11 offset:%d" % (vr(MR + 4, 2), RST))
        a("ds_read_b64 %s, v11 offset:%d" % (vr(MR + 6, 2), RST + 128))
        a("s_waitcnt lgkmcnt(0)")
    S = [108, 110, 52, 54]; Q = [109, 111, 53, 55]
    def gelu_ft(ft, stats):
        tts = range(4 if ft < 4 else 2)
        emit_fold_gelu(a, [(core.accr(ft, tt), CS + 4 * ft, MR + 2 * tt, ZP + 2 * tidx(ft, tt)) for tt in tts], T)
        if stats:
            for d in range(2):
                for tt in tts:
                    p = ZP + 2 * tidx(ft, tt) + d
                    a("v_dot2_f32_bf16 v%d, v%d, v%d, v%d" % (S[tt], p, ONE, S[tt]))
                    a("v_dot2_f32_bf16 v%d, v%d, v%d, v%d" % (Q[tt], p, p, Q[tt]))
    a.label("%s_Btail" % name)
    a("v_mov_b32 v10, %d" % (LC + 12))
    a("v_mov_b32 v11, 1")
    a("s_mov_b64 exec, 1")
    a("ds_add_u32 v10, v11")
    a("s_mov_b64 exec, -1")
    a("s_load_dwordx2 s[94:95], s[0:1], 80")
    a("s_load_dwordx2 s[92:93], s[0:1], 72")
    epi_in()
    srd(a, 76, 94, 2304 * 576 * 2)
    srd(a, 28, 92, 2048 * 2)
    a("v_and_b32 v0, 255, v0")
    for ft in range(5): gelu_ft(ft, False)
    Z1R = 200; BI = 236
    for r_ in range(36): a("v_mov_b32 v%d, v%d" % (Z1R + r_, ZP + r_))
    stamp(a, 3)
    a("s_mov_b32 s42, s2")
    emit_wot_loads(a, 100, 112, 720, 3)
    a("s_lshl_b32 s36, s22, 7")
    a("s_lshl_b32 s37, s24, 6")
    a("s_add_u32 s36, s36, s37")
    a("v_lshlrev_b32 v11, 1, v3")
    a("s_lshl_b32 s37, s25, 6")
    a("s_lshl_b32 s38, s36, 1")
    a("s_add_u32 s39, s38, s37")
    a("s_xor_b32 s37, s37, 64")
    a("s_add_u32 s36, s38, s37")
    a("buffer_load_ushort v96, v11, s[28:31], s39 offen")
    a("buffer_load_ushort v97, v11, s[28:31], s39 offen offset:32")
    a("buffer_load_ushort v98, v11, s[28:31], s36 offen")
    a("buffer_load_ushort v99, v11, s[28:31], s36 offen offset:32")
    for r in range(ACC, ACC + 72): a("v_mov_b32 v%d, 0" % r)
    mma_addr(0)
    a("s_mov_b32 s33, 0")
    stamp(a, 4)
    a("s_barrier")
    stamp(a, 5)
    core.prime(0, core.reads(0, 0))
    trk.drain()
    nocs[0] = True
    a.label("%s_gloop" % name)
    lb = len(a.lines); iteration(False); st = copy.deepcopy(trk.out); del a.lines[lb:]; trk.out = copy.deepcopy(st)
    iteration(False)
    assert [sorted(x) for x in trk.out] == [sorted(x) for x in st]
    a("s_cmp_lg_u32 s33, 3")
    a("s_cbranch_scc1 %s_ghk" % name)
    a("s_waitcnt vmcnt(0)")
    for n in range(3):
        a("buffer_store_dwordx4 %s, v%d, s[12:15], s40 offen" % (vr(100 + 4 * n), 112 + n))
    for tt in range(4): a("v_lshlrev_b32 v%d, 16, v%d" % (BI + 2 * tt, 96 + tt))
    a.label("%s_ghk" % name)
    a("s_cmp_lt_u32 s33, 32")
    a("s_cbranch_scc1 %s_gloop" % name)
    trk.drain()
    stamp(a, 6)
    G3.emit_k2_epilogue(a, core, Z1R, BI)
    stamp(a, 7)
    G.stamp_rt(a, 1)
    a("s_branch %s_end" % name)
    a.label("%s_A1" % name)
    a("s_setprio 2")
    a("s_load_dwordx4 s[88:91], s[0:1], 32")
    vmA = VmTracker(a)
    stamp(a, 9)
    a("s_barrier")
    for q in range(4):
        a("ds_read_b128 %s, v95 offset:%d" % (vr(36 + 4 * q), 1024 * q))
    def zreg(ft, tt):
        return (16 + 2 * (2 * ft + tt)) if tt < 2 else (36 + 2 * (2 * ft + tt - 2))
    GB = [128, 144, 160, 176]
    def gather():
        for tt in range(4):
            for q in range(4):
                a("buffer_load_dwordx4 %s, v4, s[12:15], s%d offen offset:%d sc1" % (vr(GB[tt] + 4 * q), (52, 42, 53, 43)[tt], 16 * q))
    def st_finish():
        for tt in range(4):
            b = GB[tt]
            for st_ in (8, 4, 2):
                for q in range(0, st_, 2):
                    a("v_pk_add_f32 %s, %s, %s" % (vr(b + q, 2), vr(b + q, 2), vr(b + q + st_, 2)))
        emit_xg_reduce(a, [GB[tt] + e for tt in range(4) for e in range(2)], 72)
        for tt in range(4):
            b = GB[tt]
            emit_ln_finish(a, b, b + 1, 2304, b + 2, MR + 2 * tt, b + 4)
            a("v_mul_f32 v%d, -v%d, v%d" % (MR + 2 * tt + 1, b + 2, MR + 2 * tt))
    def z_addr():
        a("v_lshrrev_b32 v10, 4, v2")
        a("v_lshrrev_b32 v11, 2, v2"); a("v_and_b32 v11, 1, v11"); a("v_lshlrev_b32 v11, 4, v11")
        a("v_lshrrev_b32 v5, 3, v2"); a("v_and_b32 v5, 1, v5"); a("v_lshl_add_u32 v11, v5, 2, v11")
        a("v_and_b32 v5, 3, v2"); a("v_add_u32 v11, v11, v5")
        a("v_mul_u32_u24 v11, 288, v11")
        a("v_lshrrev_b32 v5, 1, v10"); a("v_lshl_add_u32 v11, v5, 4, v11")
        a("v_and_b32 v5, 1, v10")
        a("v_lshl_add_u32 v6, v5, 5, v11")
        a("v_mul_u32_u24 v5, 2304, v5")
        a("v_add_u32 v9, v11, v5")
        a("s_lshl_b32 s33, s23, 5")
        a("s_lshl_b32 s36, s22, 1")
        a("s_add_u32 s33, s33, s36")
        a("s_add_u32 s33, s33, s24")
        a("s_mul_i32 s33, s33, 18432")
        if ZIMG: a("s_add_u32 s33, s33, 0x%x" % ZIMG)
        a("s_mul_i32 s36, s25, 9216")
        a("s_add_u32 s37, s33, s36")
        a("s_xor_b32 s36, s36, 9216")
        a("s_add_u32 s38, s33, s36")
        a("s_add_u32 s39, s37, 128")
        a("s_mul_i32 s36, s25, 160")
        a("s_add_u32 s37, s37, s36")
        a("s_add_u32 s38, s38, s36")
    def norm_pair(tA, tB, O):
        for q, (ft, tt) in enumerate((tA, tB)):
            for d in range(2):
                z = zreg(ft, tt) + d; t_ = T + 4 * q + 2 * d
                a("v_lshlrev_b32 v%d, 16, v%d" % (t_, z))
                a("v_and_b32 v%d, 0xffff0000, v%d" % (t_ + 1, z))
        for q, (ft, tt) in enumerate((tA, tB)):
            for d in range(2):
                t_ = T + 4 * q + 2 * d
                a("v_pk_fma_f32 %s, %s, %s, %s op_sel:[0,0,1] op_sel_hi:[1,0,1]" % (vr(t_, 2), vr(t_, 2), vr(MR + 2 * tt, 2), vr(MR + 2 * tt, 2)))
        for q in range(2):
            for d in range(2):
                t_ = T + 4 * q + 2 * d
                a("v_cvt_pk_bf16_f32 v%d, v%d, v%d" % (O + 2 * q + d, t_, t_ + 1))
        a("s_nop 1")
        a("v_permlane16_swap_b32 v%d, v%d" % (O, O + 2))
        a("v_permlane16_swap_b32 v%d, v%d" % (O + 1, O + 3))
        a("s_nop 0")
    def zstore(idx):
        O = 216 + 4 * idx
        if idx < 8:
            pr, tt = idx >> 2, idx & 3
            norm_pair((2 * pr, tt), (2 * pr + 1, tt), O)
            a("buffer_store_dwordx4 %s, v6, s[12:15], s%d offen offset:%d sc1" % (vr(O), 37 if tt < 2 else 38, (tt & 1) * 2304 + 64 * pr))
        else:
            norm_pair((4, 0), (4, 1), O)
            a("buffer_store_dwordx4 %s, v9, s[12:15], s39 offen sc1" % vr(O))
    def dmas(gs):
        out = []
        for g in gs: out += capture(lambda: (issueT(g), issueF(g)))
        return out
    for k in range(9, 18):
        if k == 9: a("s_waitcnt lgkmcnt(0)")
        a("s_barrier")
        gs = [11, 12] if k == 9 else ([k + 3] if k + 3 < 18 else [])
        if k == 9:
            a.lines.extend(dmas(gs))
            for g in gs: vmA.issue("S%d" % g, 9)
            a("s_lshl_b32 s36, s22, 2")
            a("v_mov_b32 v199, s36")
            a("buffer_load_dword v198, v199, s[60:63], 0 offen sc1"); vmA.issue("cnt", 1)
            a("v_lshrrev_b32 v10, 4, v2")
            a("v_lshlrev_b32 v4, 8, v3")
            a("v_lshl_add_u32 v4, v10, 6, v4")
            a("s_lshl_b32 s33, s25, 13")
            a("s_add_u32 s52, s59, s33")
            a("s_xor_b32 s33, s33, 8192")
            a("s_add_u32 s53, s59, s33")
            a("s_add_u32 s42, s52, 4096")
            a("s_add_u32 s43, s53, 4096")
        elif k == 10:
            a.lines.extend(dmas(gs)); vmA.issue("S13", 9)
            z_addr()
        elif k == 11:
            vmA.wait(["cnt"])
            gather(); vmA.issue("g", 16)
            a.lines.extend(dmas(gs)); vmA.issue("S14", 9)
        elif k == 12:
            a.lines.extend(dmas(gs)); vmA.issue("S15", 9)
        elif k == 13:
            a.lines.extend(dmas(gs)); vmA.issue("S16", 9)
            vmA.wait(["g"])
            a("s_mov_b32 s40, 0")
            a.label("%s_chk" % name)
            a("v_subrev_u32 v11, 16, v198")
            for tt in range(4):
                for r in range(GB[tt] + 1, GB[tt] + 16, 4):
                    a("v_or3_b32 v11, v11, v%d, v%d" % (r, r + 2))
            a("v_cmp_gt_i32 vcc, 0, v11")
            a("s_add_u32 s40, s40, 1")
            a("s_cmp_gt_u32 s40, %d" % SPIN_MAX)
            a("s_cbranch_scc1 %s_ok" % name)
            a("s_cbranch_vccz %s_ok" % name)
            a("s_sleep 16")
            a("buffer_load_dword v198, v199, s[60:63], 0 offen sc1")
            a("s_waitcnt vmcnt(0)")
            gather()
            a("s_waitcnt vmcnt(0)")
            a("s_branch %s_chk" % name)
            a.label("%s_ok" % name)
            stamp(a, 4)
            st_finish()
        elif k == 14:
            for i_ in range(3): zstore(i_)
            vmA.issue("z", 3)
            a.lines.extend(dmas(gs)); vmA.issue("S17", 9)
        elif k == 15:
            for i_ in range(3, 6): zstore(i_)
            vmA.issue("z", 3)
        elif k == 16:
            for i_ in range(6, 9): zstore(i_)
            vmA.issue("z", 3)
            stamp(a, 5)
            a("s_mov_b32 s41, s2")
            emit_kv_loads(a, 128, 140, 148, 152, 153)
            a("s_cmp_ge_u32 s2, 32")
            a("s_cbranch_scc1 %s_kvp" % name)
            a("s_add_u32 s41, s2, 256")
            emit_kv_loads(a, 156, 168, 176, 180, 181)
            a.label("%s_kvp" % name)
        if k == 12:
            srd(a, 92, 78, 2048 * 2048 * 2)
            a("v_lshrrev_b32 v10, 4, v2")
            a("v_lshlrev_b32 v10, 12, v10")
            a("v_lshl_add_u32 v10, v3, 4, v10")
            a("s_lshl_b32 s40, s22, 7")
            a("s_lshl_b32 s36, s3, 5")
            a("s_add_u32 s40, s40, s36")
            a("s_lshl_b32 s40, s40, 12")
            a("s_lshl_b32 s36, s23, 8")
            a("s_add_u32 s40, s40, s36")
            for n in range(8):
                a("buffer_load_dwordx4 v[200:203], v10, s[92:95], s40 offen")
                if n < 7: a("s_add_u32 s40, s40, 16384")
            vmA.issue("wp", 8)
        if 11 <= k + 2 < 18 and k + 2 != 10:
            vmA.wait(["S%d" % (k + 2)])
    stamp(a, 3)
    a("s_setprio 3")
    srd(a, 8, 78, 2048 * 2048 * 2)
    a("v_lshrrev_b32 v3, 3, v2")
    a("s_lshl_b32 s24, s3, 5")
    a("v_add_u32 v3, s24, v3")
    a("v_and_b32 v4, 7, v2")
    a("v_lshrrev_b32 v6, 4, v2")
    a("v_xor_b32 v6, v6, v4")
    a("v_lshlrev_b32 v6, 4, v6")
    a("v_lshl_add_u32 v10, v3, 12, v6")
    a("v_xor_b32 v11, 64, v10")
    a("v_add_u32 v11, %d, v11" % (32768 - 1024))
    a("v_add_u32 v12, %d, v10" % (2 * (32768 - 1024)))
    a("v_add_u32 v13, %d, v11" % (2 * (32768 - 1024)))
    a("v_lshlrev_b32 v14, 4, v2")
    a("s_lshl_b32 s26, s22, 19")
    a("s_mul_i32 s27, s23, %d" % (32 * 18432))
    a("s_lshl_b32 s24, s3, 12")
    a("s_add_u32 s27, s27, s24")
    if ZIMG: a("s_add_u32 s27, s27, 0x%x" % ZIMG)
    a("s_lshl_b32 s25, s3, 9")
    a("s_sub_u32 s32, s25, s24")
    a("s_add_u32 s32, s32, 16384")
    a("s_add_u32 s24, s24, %d" % RB)
    a("s_waitcnt vmcnt(20) lgkmcnt(0)")
    a("v_mov_b32 v26, %d" % LC)
    a("v_mov_b32 v27, 1")
    a("s_mov_b64 exec, 1")
    a("ds_add_rtn_u32 v28, v26, v27")
    a("s_waitcnt lgkmcnt(0)")
    a("v_readfirstlane_b32 s36, v28")
    a("s_cmp_lg_u32 s36, 3")
    a("s_cbranch_scc1 %s_nozs" % name)
    a("v_mov_b32 v28, 0")
    a("buffer_store_dword v27, v28, s[12:15], s97 offen sc1")
    a.label("%s_nozs" % name)
    a("s_mov_b64 exec, -1")
    stamp(a, 7)
    srd(a, 16, 88, 576 * 2048 * 2)
    srd(a, 84, 90, 576 * 2)
    a("s_mov_b32 s34, 0")
    a.label("%s_wb" % name)
    a("ds_read_b32 v27, v26 offset:12")
    a("s_add_u32 s34, s34, 1")
    a("s_waitcnt lgkmcnt(0)")
    a("v_readfirstlane_b32 s36, v27")
    a("s_cmp_gt_u32 s34, %d" % (SPIN_MAX * 20))
    a("s_cbranch_scc1 %s_wbx" % name)
    a("s_cmp_ge_u32 s36, 4")
    a("s_cbranch_scc1 %s_wbx" % name)
    a("s_sleep 2")
    a("s_branch %s_wb" % name)
    a.label("%s_wbx" % name)
    for g in range(4):
        a("s_add_u32 s35, s24, %d" % (g * SLOT))
        a("s_mov_b32 m0, s35")
        a("s_add_u32 s36, s26, %d" % (128 * g))
        for n in range(4):
            a("buffer_load_dwordx4 v%d, s[8:11], s36 offen offset:%d lds" % (10 + n, n * 1024))
    a("v_mov_b32 v250, v12"); a("v_mov_b32 v251, v13"); a("v_mov_b32 v252, v26")
    a("s_mov_b32 s39, 0x%x" % KVT)
    a("s_waitcnt vmcnt(16)")
    for n in range(11): a("v_mov_b32 v%d, v%d" % (16 + n, 128 + n))
    for n in range(8): a("v_mov_b32 v%d, v%d" % (32 + n, 140 + n))
    for n in range(4): a("v_mov_b32 v%d, v%d" % (44 + n, 148 + n))
    a("v_mov_b32 v56, v152"); a("v_mov_b32 v57, v153")
    a.label("%s_kvb" % name)
    emit_kv_compute(a, wait=False, store=False)
    a("buffer_store_dwordx4 v[120:123], v12, s[12:15], s39 offen sc1")
    a("buffer_store_dwordx4 v[124:127], v13, s[12:15], s39 offen sc1")
    a("s_cmp_lt_u32 s41, 256")
    a("s_cbranch_scc1 %s_kvbd" % name)
    a("s_mov_b32 s41, 0")
    for n in range(11): a("v_mov_b32 v%d, v%d" % (16 + n, 156 + n))
    for n in range(8): a("v_mov_b32 v%d, v%d" % (32 + n, 168 + n))
    for n in range(4): a("v_mov_b32 v%d, v%d" % (44 + n, 176 + n))
    a("v_mov_b32 v56, v180"); a("v_mov_b32 v57, v181")
    a("s_branch %s_kvb" % name)
    a.label("%s_kvbd" % name)
    a("s_nop 1")
    a("v_mov_b32 v12, v250"); a("v_mov_b32 v13, v251"); a("v_mov_b32 v26, v252")
    a("s_mov_b32 s34, 0")
    a("s_cmp_lg_u32 s3, 0")
    a("s_cbranch_scc1 %s_pl" % name)
    a("v_and_b32 v28, 15, v2")
    a("v_lshlrev_b32 v30, 2, v28")
    a("v_lshlrev_b32 v28, 12, v28")
    a("s_lshl_b32 s52, s23, 8")
    a("s_add_u32 s52, s52, 0x%x" % ZFLG)
    a.label("%s_pz0" % name)
    a("buffer_load_dword v31, v30, s[60:63], 0 offen sc1")
    a("s_add_u32 s34, s34, 1")
    a("s_waitcnt vmcnt(0)")
    a("v_cmp_gt_u32 vcc, 16, v31")
    a("s_cmp_gt_u32 s34, %d" % SPIN_MAX)
    a("s_cbranch_scc1 %s_pz" % name)
    a("s_cbranch_vccz %s_pz" % name)
    a("s_sleep 32")
    a("s_branch %s_pz0" % name)
    a.label("%s_pz" % name)
    a("buffer_load_dword v29, v28, s[12:15], s52 offen sc1")
    a("s_add_u32 s34, s34, 1")
    a("s_waitcnt vmcnt(0)")
    a("v_cmp_ne_u32 vcc, 1, v29")
    a("s_cmp_gt_u32 s34, %d" % SPIN_MAX)
    a("s_cbranch_scc1 %s_pzx" % name)
    a("s_cbranch_vccz %s_pzx" % name)
    a("s_sleep 8")
    a("s_branch %s_pz" % name)
    a.label("%s_pzx" % name)
    a("v_mov_b32 v27, 1")
    a("ds_write_b32 v26, v27 offset:4")
    a("s_branch %s_pgo" % name)
    a.label("%s_pl" % name)
    a("ds_read_b32 v27, v26 offset:4")
    a("s_add_u32 s34, s34, 1")
    a("s_waitcnt lgkmcnt(0)")
    a("v_readfirstlane_b32 s36, v27")
    a("s_cmp_gt_u32 s34, %d" % (SPIN_MAX * 20))
    a("s_cbranch_scc1 %s_pgo" % name)
    a("s_cmp_lg_u32 s36, 0")
    a("s_cbranch_scc1 %s_pgo" % name)
    a("s_sleep 2")
    a("s_branch %s_pl" % name)
    a.label("%s_pgo" % name)
    stamp(a, 8)
    for g in range(4):
        a("s_add_u32 s35, s24, %d" % (g * SLOT + TREG))
        a("s_mov_b32 m0, s35")
        a("s_add_u32 s36, s27, %d" % (18432 * g))
        a("s_add_u32 s37, s36, s32")
        for n in range(4):
            a("buffer_load_dwordx4 v14, s[12:15], s36 offen offset:%d sc1 lds" % (n * 1024))
        a("s_add_u32 s35, s35, s32")
        a("s_mov_b32 m0, s35")
        a("s_mov_b64 exec, 0xffffffff")
        a("buffer_load_dwordx4 v14, s[12:15], s37 offen sc1 lds")
        a("s_mov_b64 exec, -1")
    a("s_add_u32 s26, s26, 512")
    a("s_add_u32 s27, s27, %d" % (4 * 18432))
    a("s_mov_b32 s33, 0")
    a("s_lshl_b32 s43, s2, 2")
    a("s_add_u32 s43, s43, s3")
    a("s_and_b32 s53, s43, 1")
    a("s_sub_u32 s36, s43, 448")
    a("s_lshr_b32 s37, s43, 1")
    a("s_cmp_ge_u32 s43, 896")
    a("s_cselect_b32 s43, s36, s37")
    a("s_cselect_b32 s53, 2, s53")
    a("s_waitcnt vmcnt(15)")
    a("s_barrier")
    a("s_waitcnt vmcnt(10)")
    a("s_barrier")
    a("s_waitcnt vmcnt(5)")
    a("s_barrier")
    a("s_mov_b32 s34, 4")
    def issue2():
        a("s_add_u32 s35, s33, s24")
        a("s_mov_b32 m0, s35")
        a("s_add_u32 s36, s35, %d" % TREG)
        for n in range(4):
            a("buffer_load_dwordx4 v%d, s[8:11], s26 offen offset:%d lds" % (10 + n, n * 1024))
        a("s_mov_b32 m0, s36")
        a("s_add_u32 s37, s27, s32")
        for n in range(4):
            a("buffer_load_dwordx4 v14, s[12:15], s27 offen offset:%d sc1 lds" % (n * 1024))
        a("s_add_u32 s36, s36, s32")
        a("s_mov_b32 m0, s36")
        a("s_mov_b64 exec, 0xffffffff")
        a("buffer_load_dwordx4 v14, s[12:15], s37 offen sc1 lds")
        a("s_mov_b64 exec, -1")
        a("s_add_u32 s26, s26, 128")
        a("s_add_u32 s27, s27, 18432")
        a("s_add_u32 s33, s33, %d" % SLOT)
        a("s_cmp_eq_u32 s33, %d" % (R * SLOT))
        a("s_cselect_b32 s33, 0, s33")
    a.label("%s_lloop" % name)
    issue2()
    a("s_cmp_eq_u32 s34, 8")
    a("s_cbranch_scc1 %s_hk0" % name)
    a("s_cmp_eq_u32 s34, 18")
    a("s_cbranch_scc1 %s_hk1" % name)
    a("s_cmp_eq_u32 s34, 21")
    a("s_cbranch_scc1 %s_hk2" % name)
    a("s_waitcnt vmcnt(9)")
    a.label("%s_lcont" % name)
    a("s_barrier")
    a("s_add_u32 s34, s34, 1")
    a("s_cmp_lt_u32 s34, 32")
    a("s_cbranch_scc1 %s_lloop" % name)
    a("s_branch %s_ldone" % name)
    a.label("%s_hk0" % name)
    a("v_mov_b32 v27, 1")
    a("s_mov_b64 exec, 1")
    a("ds_add_rtn_u32 v28, v26, v27 offset:8")
    a("s_waitcnt lgkmcnt(0)")
    a("v_readfirstlane_b32 s36, v28")
    a("s_cmp_lg_u32 s36, 3")
    a("s_cbranch_scc1 %s_hk0x" % name)
    a("s_and_b32 s36, s2, 15")
    a("s_lshl_b32 s36, s36, 2")
    a("s_add_u32 s36, s36, 128")
    a("v_mov_b32 v28, s36")
    a("buffer_atomic_add v27, v28, s[60:63], 0 offen sc1")
    a.label("%s_hk0x" % name)
    a("s_mov_b64 exec, -1")
    a("s_waitcnt vmcnt(9)")
    a("s_branch %s_lcont" % name)
    a.label("%s_hk1" % name)
    a("v_and_b32 v28, 15, v2")
    a("v_lshlrev_b32 v28, 2, v28")
    a("buffer_load_dword v29, v28, s[60:63], 0 offen offset:128 sc1")
    a("s_waitcnt vmcnt(10)")
    a("s_branch %s_lcont" % name)
    a.label("%s_hk2" % name)
    a("s_mov_b32 s52, 0")
    a.label("%s_hk2l" % name)
    a("v_cmp_gt_u32 vcc, 16, v29")
    a("s_add_u32 s52, s52, 1")
    a("s_cmp_gt_u32 s52, %d" % SPIN_MAX)
    a("s_cbranch_scc1 %s_hk2g" % name)
    a("s_cbranch_vccz %s_hk2g" % name)
    a("s_sleep 16")
    a("buffer_load_dword v29, v28, s[60:63], 0 offen offset:128 sc1")
    a("s_waitcnt vmcnt(0)")
    a("s_branch %s_hk2l" % name)
    a.label("%s_hk2g" % name)
    nconv = emit_conv_loads(a, " sc1")
    a("s_waitcnt vmcnt(%d)" % (9 + nconv))
    a("s_branch %s_lcont" % name)
    a.label("%s_ldone" % name)
    a("s_waitcnt vmcnt(0)")
    a("s_barrier")
    a("s_mov_b32 s26, s53")
    a("s_and_b32 s27, s3, 1")
    a("s_mul_i32 s27, s27, %d" % CJ_SIZE)
    a("s_lshr_b32 s36, s3, 1")
    a("s_mul_i32 s36, s36, %d" % SLOT)
    a("s_add_u32 s27, s27, s36")
    a("s_add_u32 s27, s27, %d" % RB)
    def mid():
        a("s_barrier")
        a("s_setprio 0")
    sv = set(DBG); DBG.discard("stamp")
    emit_conv_job(a, name, mid)
    DBG.update(sv)
    G.stamp_rt(a, 1)
    a.label("%s_end" % name)
    a("s_endpgm")
    return a.text(), kernel_desc(name, 256, 256), (name, 256, 512, LDSB)

def gen_kf5(name="k1_kernel", R=4):
    a = Asm()
    RB = 4096; SLOT = 34816; TREG = 16384; FS = 288; RST = 0
    LDSB = RB + R * SLOT
    LC = 2048
    ZFLG = 0x2D00000
    from gen3 import emit_conv_loads, emit_conv_job, CJ_SIZE
    def capture(f, *args):
        lb = len(a.lines); f(*args); out = a.lines[lb:]; del a.lines[lb:]; return out
    kernel_begin(a, name)
    a("s_load_dwordx2 s[80:81], s[0:1], 0")
    a("s_load_dwordx2 s[4:5], s[0:1], 56")
    a("s_load_dwordx2 s[6:7], s[0:1], 104")
    a("s_load_dwordx2 s[18:19], s[0:1], 96")
    a("s_cmp_ge_u32 s2, 256")
    a("s_cbranch_scc1 %s_end" % name)
    a("v_lshrrev_b32 v1, 6, v0")
    a("v_and_b32 v2, 63, v0")
    a("v_readfirstlane_b32 s3, v1")
    G2.tile_ij(a)
    a("s_lshr_b32 s98, s3, 2")
    a("s_mov_b32 s54x, 0".replace("s54x", "s99"))
    a("s_and_b32 s3, s3, 3")
    a("s_lshr_b32 s24, s3, 1")
    a("s_and_b32 s25, s3, 1")
    a("v_and_b32 v3, 15, v2")
    VT = 204; VF = 208
    def loader_setup():
        a("v_lshrrev_b32 v5, 3, v2")
        a("v_and_b32 v4, 7, v2")
        a("s_lshl_b32 s36, s3, 5")
        a("v_add_u32 v5, s36, v5")
        a("v_lshrrev_b32 v7, 4, v2")
        a("v_xor_b32 v7, v7, v4")
        a("v_mul_u32_u24 v6, 1152, v5")
        a("v_lshl_add_u32 v%d, v7, 4, v6" % VT)
        a("v_xor_b32 v%d, 64, v%d" % (VT + 1, VT))
        a("v_add_u32 v%d, %d, v%d" % (VT + 1, 9216 - 1024, VT + 1))
        a("v_add_u32 v%d, %d, v%d" % (VT + 2, 2 * (9216 - 1024), VT))
        a("v_add_u32 v%d, %d, v%d" % (VT + 3, 2 * (9216 - 1024), VT + 1))
        a("s_lshl_b32 s84, s3, 12")
        a("s_add_u32 s84, s84, %d" % RB)
        a("s_lshl_b32 s85, s3, 9")
        a("s_add_u32 s85, s85, %d" % (RB + TREG + 16384))
    def loader_setup2():
        for n in range(5):
            if n < 4:
                a("s_lshl_b32 s36, s3, 8")
                a("s_add_u32 s36, s36, %d" % (64 * n))
            else:
                a("s_lshl_b32 s36, s3, 5")
                a("s_add_u32 s36, s36, 1024")
            a("v_add_u32 v6, s36, v2")
            a("v_mul_u32_u24 v7, 3641, v6")
            a("v_lshrrev_b32 v7, 16, v7")
            a("v_mul_u32_u24 v8, 18, v7")
            a("v_sub_u32 v8, v6, v8")
            a("v_and_b32 v9, 35, v7")
            a("v_bfe_u32 v6, v7, 2, 2")
            a("v_lshl_add_u32 v9, v6, 3, v9")
            a("v_bfe_u32 v6, v7, 4, 1")
            a("v_lshl_add_u32 v9, v6, 2, v9")
            a("v_mul_u32_u24 v9, 9216, v9")
            a("v_lshl_add_u32 v%d, v8, 4, v9" % (VF + n))
            if 0 < n < 4: a("v_subrev_u32 v%d, %d, v%d" % (VF + n, 1024 * n, VF + n))
    def issueT(g):
        st = g % 9
        a("s_add_u32 s86, s84, %d" % ((g % R) * SLOT))
        a("s_mov_b32 m0, s86")
        a("s_add_u32 s87, s82, %d" % (128 * st))
        for n in range(4):
            a("buffer_load_dwordx4 v%d, s[28:31], s87 offen offset:%d lds" % (VT + n, 1024 * n))
    def issueF(g):
        st = g % 9
        a("s_add_u32 s86, s84, %d" % ((g % R) * SLOT + TREG))
        a("s_mov_b32 m0, s86")
        a("s_add_u32 s87, s83, %d" % (64 * 9216 * st + (4608 if g < 9 else 0)))
        for n in range(4):
            a("buffer_load_dwordx4 v%d, s[8:11], s87 offen offset:%d lds" % (VF + n, 1024 * n))
        a("s_add_u32 s86, s85, %d" % ((g % R) * SLOT))
        a("s_mov_b32 m0, s86")
        a("s_mov_b64 exec, 0xffffffff")
        a("buffer_load_dwordx4 v%d, s[8:11], s87 offen lds" % (VF + 4))
        a("s_mov_b64 exec, -1")
    def srds_main():
        srd(a, 28, 80, 2048 * 576 * 2)
        srd(a, 8, 4, 576 * 4608 * 2)
        srd(a, 12, 6, WS_BYTES)
        srd(a, 60, 18, 256)
        a("s_mul_i32 s82, s22, %d" % (128 * 1152))
        a("s_mul_i32 s83, s23, 288")
    ACC = 128; FB = [16, 52]; CS = 216; ONE = 236
    vTa = [4, 5]; vTb = [6, 7]; vF = 8; vFh = 9
    bTa = [88, 89]; bTb = [90, 91]; bF = 92; bFh = 93
    def mma_setup():
        a("v_lshrrev_b32 v10, 4, v2")
        a("v_lshrrev_b32 v11, 1, v3")
        a("v_xor_b32 v10, v10, v11")
        a("v_lshlrev_b32 v10, 4, v10")
        a("v_lshl_add_u32 v10, v3, 7, v10")
        a("s_lshl_b32 s26, s24, 13")
        a("s_add_u32 s26, s26, %d" % RB)
        a("v_add_u32 v10, s26, v10")
        a("s_lshl_b32 s26, s25, 12")
        a("v_add_u32 v%d, s26, v10" % bTa[0])
        a("s_xor_b32 s26, s26, 4096")
        a("v_add_u32 v%d, s26, v10" % bTb[0])
        a("v_xor_b32 v%d, 64, v%d" % (bTa[1], bTa[0]))
        a("v_xor_b32 v%d, 64, v%d" % (bTb[1], bTb[0]))
        a("v_lshrrev_b32 v10, 2, v2")
        a("v_mul_u32_u24 v10, %d, v10" % FS)
        a("v_and_b32 v11, 3, v2")
        a("v_lshl_add_u32 v10, v11, 3, v10")
        a("v_add_u32 v10, %d, v10" % (RB + TREG))
        a("s_mul_i32 s26, s25, 160")
        a("v_add_u32 v%d, s26, v10" % bF)
        a("v_add_u32 v%d, 128, v10" % bFh)
        for r in range(ACC, ACC + 72): a("v_mov_b32 v%d, 0" % r)
        for r in range(CS, CS + 20): a("v_mov_b32 v%d, 0" % r)
        for r in range(ONE, ONE + 4): a("v_mov_b32 v%d, 0x3f803f80" % r)
    def mma_addr(slot):
        a("s_mov_b32 s27, %d" % (slot * SLOT))
        for d, s_ in ((vTa[0], bTa[0]), (vTb[0], bTb[0]), (vTa[1], bTa[1]), (vTb[1], bTb[1]), (vF, bF), (vFh, bFh)):
            a("v_add_u32 v%d, s27, v%d" % (d, s_))
    core = G.Core(a, ACC, FB[0], FB[1], FS, TREG, vTa, vTb, vF, vFh)
    trk = core.trk
    a("s_cmp_eq_u32 s98, 0")
    a("s_cbranch_scc1 %s_A0" % name)
    a("s_setprio 3")
    loader_setup()
    a("s_waitcnt lgkmcnt(0)")
    srds_main()
    vm = VmTracker(a)
    def issue(g, vmx):
        issueT(g); issueF(g); vmx.issue("S%d" % g, 9)
    issueT(0)
    loader_setup2()
    issueF(0); vm.issue("S0", 9)
    issue(1, vm); issue(2, vm); issue(3, vm)
    a("s_add_u32 s3, s3, 4"); stamp_setup(a, 1); stamp(a, 0); a("s_sub_u32 s3, s3, 4")
    mma_setup()
    RA = 96; XB = 112
    for r in range(RA, RA + 16): a("v_mov_b32 v%d, 0" % r)
    a("v_lshrrev_b32 v10, 4, v2")
    a("v_lshrrev_b32 v11, 1, v3")
    a("v_xor_b32 v10, v10, v11")
    a("v_lshlrev_b32 v10, 4, v10")
    a("v_lshl_add_u32 v10, v3, 7, v10")
    a("v_add_u32 v12, s84, v10")
    a("v_xor_b32 v13, 64, v12")
    def rs_rd(g):
        a("v_add_u32 v10, %d, v12" % ((g % R) * SLOT))
        a("v_add_u32 v11, %d, v13" % ((g % R) * SLOT))
        for h in range(2):
            for n in range(2):
                a("ds_read_b128 %s, v%d offset:%d" % (vr(XB + 8 * h + 4 * n), 10 + h, 2048 * n))
    def rs_do():
        for h in range(2):
            for n in range(2):
                x = XB + 8 * h + 4 * n
                a("v_mfma_f32_16x16x32_bf16 %s, %s, %s, %s" % (vr(RA + 4 * n), vr(ONE), vr(x), vr(RA + 4 * n)))
                a("v_mfma_f32_16x16x32_bf16 %s, %s, %s, %s" % (vr(RA + 8 + 4 * n), vr(x), vr(x), vr(RA + 8 + 4 * n)))
    def interleave(dma, comp, vmx=None):
        groups = []; cur = []
        for l in dma:
            cur.append(l)
            if "buffer_load" in l and not any("exec, 0xffffffff" in x for x in cur[-2:]):
                groups.append(cur); cur = []
            elif "exec, -1" in l:
                groups.append(cur); cur = []
        if cur: groups.append(cur)
        ns = max(1, len(groups))
        per = (len(comp) + ns - 1) // ns
        for g in groups:
            a.lines.extend(g)
            a.lines.extend(comp[:per]); comp = comp[per:]
        a.lines.extend(comp)
    vm.wait(["S0"])
    a("s_barrier")
    stamp(a, 1)
    rs_rd(0)
    vm.wait(["S1"])
    a("s_barrier")
    for k in range(9):
        a("s_waitcnt lgkmcnt(0)")
        dma = capture(lambda: (issueT(k + 3), issueF(k + 3))) if 1 <= k < 8 else []
        interleave(dma, capture(rs_do))
        if 1 <= k < 8: vm.issue("S%d" % (k + 3), 9)
        if k < 8:
            rs_rd(k + 1)
        else:
            a("s_nop 7")
            a("v_lshrrev_b32 v10, 4, v2")
            a("v_lshrrev_b32 v11, 2, v3")
            a("v_and_b32 v12, 3, v3")
            for n in range(2):
                G_ = RA + 8 + 4 * n
                for r in range(1, 4):
                    a("v_cmp_eq_u32 vcc, %d, v12" % r)
                    a("s_nop 1")
                    a("v_cndmask_b32 v%d, v%d, v%d, vcc" % (G_, G_, G_ + r))
            ML = 112
            for n in range(2):
                emit_ln_finish(a, RA + 4 * n, RA + 8 + 4 * n, 576, ML + 2 * n, ML + 2 * n + 1, 120)
                a("v_mov_b32 v%d, v%d" % (117 + 2 * n, ML + 2 * n + 1))
                a("v_sub_f32 v%d, 0, v%d" % (116 + 2 * n, ML + 2 * n))
            a("s_lshl_b32 s35, s3, 8")
            a("v_lshlrev_b32 v13, 3, v3")
            a("v_add_u32 v12, s35, v13")
            a("v_cmp_eq_u32 vcc, v10, v11")
            a("s_and_saveexec_b64 s[36:37], vcc")
            for n in range(2):
                a("ds_write_b64 v12, %s offset:%d" % (vr(116 + 2 * n, 2), RST + 128 * n))
            a("s_mov_b64 exec, s[36:37]")
            a("s_cmp_lg_u32 s23, 0")
            a("s_cbranch_scc1 %s_nost1" % name)
            a("s_lshl_b32 s35, s22, 7")
            a("s_lshl_b32 s36, s3, 5")
            a("s_add_u32 s35, s35, s36")
            a("s_lshl_b32 s35, s35, 3")
            a("s_add_u32 s35, s35, 0x%x" % STATS1)
            a("v_mov_b32 v11, 0x7ffffff0")
            a("v_cndmask_b32 v13, v11, v13, vcc")
            for n in range(2):
                a("buffer_store_dwordx2 %s, v13, s[12:15], s35 offen offset:%d" % (vr(ML + 2 * n, 2), 128 * n))
            a.label("%s_nost1" % name)
        if k < 8:
            vm.wait(["S%d" % (k + 2)])
            a("s_barrier")
    HO = lambda: None
    def ho_addr():
        a("s_lshr_b32 s36, s3, 1")
        a("s_mul_i32 s36, s36, %d" % (3 * SLOT))
        a("s_and_b32 s37, s3, 1")
        a("s_mul_i32 s37, s37, 12288")
        a("s_add_u32 s36, s36, s37")
        a("s_add_u32 s36, s36, %d" % RB)
        a("v_lshlrev_b32 v10, 4, v2")
        a("v_add_u32 v95, s36, v10")
    a("s_waitcnt lgkmcnt(0)")
    a("s_barrier")
    ho_addr()
    a("s_barrier")
    n_ = 0
    for ft in range(4):
        for tt in range(2):
            a("ds_read_b128 %s, v95 offset:%d" % (vr(core.accr(ft, tt)), 1024 * n_)); n_ += 1
    for ft in range(4):
        a("ds_read_b128 %s, v95 offset:%d" % (vr(CS + 4 * ft), 1024 * n_)); n_ += 1
    a("s_branch %s_g2" % name)
    a.label("%s_A0" % name)
    emit_code_prefetch(a, name)
    a("s_load_dwordx4 s[64:67], s[0:1], 8")
    a("s_load_dwordx2 s[76:77], s[0:1], 24")
    a("s_load_dwordx2 s[78:79], s[0:1], 64")
    mma_setup()
    loader_setup(); loader_setup2()
    a("s_waitcnt lgkmcnt(0)")
    srds_main()
    srd(a, 68, 66, 2048 * 576 * 2)
    a("s_mov_b32 s88, s64"); a("s_mov_b32 s89, s65")
    srd(a, 64, 88, 2048 * 576 * 2)
    srd(a, 72, 76, 576 * 8)
    stamp_setup(a, 1); stamp(a, 0)
    def gran_addr():
        a("v_lshrrev_b32 v10, 4, v2")
        a("s_lshl_b32 s36, s25, 1")
        a("v_add_u32 v11, s36, v10")
        a("v_and_b32 v11, 3, v11")
        a("v_lshl_add_u32 v11, v11, 4, v3")
        a("v_lshlrev_b32 v94, 8, v11")
        a("s_lshl_b32 s59, s22, 7")
        a("s_lshl_b32 s36, s24, 6")
        a("s_add_u32 s59, s59, s36")
        a("s_lshl_b32 s59, s59, 8")
        a("s_add_u32 s59, s59, 0x%x" % STATS2)
        a("s_lshl_b32 s36, s23, 1")
        a("s_add_u32 s36, s36, s25")
        a("s_lshl_b32 s36, s36, 3")
        a("s_add_u32 s58, s36, s59")
    gran_addr()
    a("v_mov_b32 v12, 0"); a("v_mov_b32 v13, 0x80000000")
    a("buffer_store_dwordx2 v[12:13], v94, s[12:15], s58 offen sc1")
    a("s_lshl_b32 s36, s22, 4")
    a("s_add_u32 s36, s36, s23")
    a("s_lshl_b32 s36, s36, 8")
    a("s_add_u32 s97, s36, 0x%x" % ZFLG)
    a("v_mov_b32 v10, %d" % LC)
    a("v_mov_b32 v12, 0"); a("v_mov_b32 v13, 0")
    a("s_mov_b64 exec, 1")
    a("buffer_store_dword v12, v12, s[12:15], s97 offen sc1")
    a("s_mov_b64 exec, -1")
    a("ds_write_b64 v10, v[12:13]")
    a("ds_write_b64 v10, v[12:13] offset:8")
    mma_addr(0)
    a("s_mov_b32 s33, 0")
    a("s_waitcnt lgkmcnt(0)")
    a("s_barrier")
    stamp(a, 1)
    a.label("%s_mma" % name)
    core.prime(0, core.reads(0, 0))
    trk.drain()
    nocs = [False]
    def mfmas(buf):
        L = []
        for ft in range(5):
            A = core.F(buf, ft)
            for tt in range(4 if ft < 4 else 2):
                c = core.accr(ft, tt); B = core.T(buf, tt)
                L.append(("v_mfma_f32_16x16x32_bf16 %s, %s, %s, %s" % (vr(c), vr(A), vr(B), vr(c)), list(range(A, A + 4)) + list(range(B, B + 4))))
            if not nocs[0]: L.append(("v_mfma_f32_16x16x32_bf16 %s, %s, %s, %s" % (vr(CS + 4 * ft), vr(A), vr(ONE), vr(CS + 4 * ft)), list(range(A, A + 4))))
        return L
    def phase(buf, pend):
        for (m, regs) in mfmas(buf):
            trk.need(regs)
            a(m)
            while pend:
                k, t = pend.pop(0)
                if k == "x":
                    a(t)
                    if t.startswith("s_"): continue
                else:
                    a(t[0]); trk.issue(t[1])
                break
        for k, t in pend:
            if k == "x": a(t)
            else: a(t[0]); trk.issue(t[1])
    def iteration(vw=True):
        if vw: a("s_waitcnt vmcnt(0)")
        a("s_barrier")
        rd = [("r", t) for t in core.reads(1, 1)]
        upd = ["s_add_u32 s27, s27, %d" % SLOT, "s_cmp_eq_u32 s27, %d" % (R * SLOT), "s_cselect_b32 s27, 0, s27"]
        tail = ["v_add_u32 v%d, s27, v%d" % (d, s_) for d, s_ in ((vTa[0], bTa[0]), (vF, bF), (vTb[0], bTb[0]), (vFh, bFh))]
        phase(0, rd[:1] + [("x", u) for u in upd] + rd[1:] + [("x", u) for u in tail])
        rd = [("r", t) for t in core.reads(0, 0)]
        tail = ["v_add_u32 v%d, s27, v%d" % (d, s_) for d, s_ in ((vTa[1], bTa[1]), (vTb[1], bTb[1]))] + ["s_add_u32 s33, s33, 1"]
        phase(1, rd + [("x", u) for u in tail])
    a.label("%s_cloop" % name)
    lb = len(a.lines); iteration(); st = copy.deepcopy(trk.out); del a.lines[lb:]; trk.out = copy.deepcopy(st)
    iteration()
    assert [sorted(x) for x in trk.out] == [sorted(x) for x in st]
    a("s_cmp_lt_u32 s33, 9")
    a("s_cbranch_scc1 %s_cloop" % name)
    trk.drain()
    stamp(a, 2)
    MR = 100; T = 72; ZP = 16
    a("s_cmp_eq_u32 s98, 1")
    a("s_cbranch_scc1 %s_Btail" % name)
    a("s_waitcnt vmcnt(0)")
    a("s_barrier")
    a("s_cmp_lg_u32 s3, 0")
    a("s_cbranch_scc1 %s_nosig" % name)
    a("v_mov_b32 v10, 1")
    a("s_lshl_b32 s36, s22, 2")
    a("v_mov_b32 v11, s36")
    a("s_mov_b64 exec, 1")
    a("buffer_atomic_add v10, v11, s[60:63], 0 offen sc1")
    a("s_mov_b64 exec, -1")
    a.label("%s_nosig" % name)
    ho_addr()
    n_ = 0
    for ft in range(4):
        for tt in range(2):
            a("ds_write_b128 v95, %s offset:%d" % (vr(core.accr(ft, tt + 2)), 1024 * n_)); n_ += 1
    for ft in range(4):
        a("ds_write_b128 v95, %s offset:%d" % (vr(CS + 4 * ft), 1024 * n_)); n_ += 1
    a("s_waitcnt lgkmcnt(0)")
    a("s_barrier")
    a.label("%s_g2" % name)
    gelu_consts(a)
    a("s_xor_b32 s52, s98, s25")
    a("s_lshl_b32 s36, s24, 9")
    a("s_lshl_b32 s37, s52, 8")
    a("s_add_u32 s38, s36, s37")
    a("v_lshlrev_b32 v10, 3, v3")
    a("v_add_u32 v11, s38, v10")
    a("ds_read_b64 %s, v11 offset:%d" % (vr(MR, 2), RST))
    a("ds_read_b64 %s, v11 offset:%d" % (vr(MR + 2, 2), RST + 128))
    for r_ in range(108, 112): a("v_mov_b32 v%d, 0" % r_)
    a("s_waitcnt lgkmcnt(0)")
    ZPo = lambda n: 16 + 2 * n
    def dots2(lst):
        for d in range(2):
            for (ft, tt) in lst:
                p = ZPo(2 * ft + tt) + d
                a("v_dot2_f32_bf16 v%d, v%d, v%d, v%d" % (108 + 2 * tt, p, ONE, 108 + 2 * tt))
                a("v_dot2_f32_bf16 v%d, v%d, v%d, v%d" % (109 + 2 * tt, p, p, 109 + 2 * tt))
    a("s_cmp_lg_u32 s98, 0")
    a("s_cbranch_scc1 %s_nohalf" % name)
    lst = [(4, 0), (4, 1)]
    emit_fold_gelu(a, [(core.accr(ft, tt), CS + 4 * ft, MR + 2 * tt, ZPo(2 * ft + tt)) for ft, tt in lst], T)
    dots2(lst)
    a.label("%s_nohalf" % name)
    for f0 in (0, 2):
        lst = [(ft, tt) for ft in (f0, f0 + 1) for tt in range(2)]
        emit_fold_gelu(a, [(core.accr(ft, tt), CS + 4 * ft, MR + 2 * tt, ZPo(2 * ft + tt)) for ft, tt in lst], T)
        dots2(lst)
    a("s_nop 2")
    emit_xg_reduce(a, [108, 110, 109, 111], 72)
    a("s_lshl_b32 s40, s22, 7")
    a("s_lshl_b32 s36, s24, 6")
    a("s_add_u32 s40, s40, s36")
    a("s_lshl_b32 s40, s40, 8")
    a("s_add_u32 s59, s40, 0x%x" % STATS2)
    a("s_lshl_b32 s36, s52, 13")
    a("s_add_u32 s40, s59, s36")
    a("s_lshl_b32 s36, s23, 1")
    a("s_add_u32 s36, s36, s25")
    a("s_lshl_b32 s36, s36, 3")
    a("s_add_u32 s40, s40, s36")
    a("v_lshrrev_b32 v10, 4, v2")
    a("v_lshlrev_b32 v11, 8, v2")
    a("v_cmp_gt_u32 vcc, 32, v2")
    a("v_mov_b32 v12, 0x7ffffff0")
    a("v_cmp_eq_u32 s[36:37], 1, v10")
    a("v_cndmask_b32 v11, v12, v11, vcc")
    a("s_nop 0")
    a("v_cndmask_b32 v108, v108, v110, s[36:37]")
    a("v_cndmask_b32 v109, v109, v111, s[36:37]")
    a("v_and_b32 v109, 0x7fffffff, v109")
    a("buffer_store_dwordx2 v[108:109], v11, s[12:15], s40 offen sc1")
    a("s_cmp_eq_u32 s98, 0")
    a("s_cbranch_scc1 %s_A1" % name)
    for q in range(4):
        a("ds_write_b128 v95, %s offset:%d" % (vr(16 + 4 * q), 1024 * q))
    for r in range(ACC, ACC + 72): a("v_mov_b32 v%d, 0" % r)
    for r in range(CS, CS + 20): a("v_mov_b32 v%d, 0" % r)
    mma_addr(9 % R)
    a("s_mov_b32 s33, 0")
    a("s_setprio 0")
    a("s_waitcnt lgkmcnt(0)")
    stamp(a, 9)
    a("s_barrier")
    a("s_branch %s_mma" % name)
    def epi_in():
        gelu_consts(a)
        a("s_lshl_b32 s36, s24, 9")
        a("s_lshl_b32 s37, s25, 8")
        a("s_add_u32 s38, s36, s37")
        a("s_xor_b32 s37, s37, 256")
        a("s_add_u32 s39, s36, s37")
        a("v_lshlrev_b32 v10, 3, v3")
        a("v_add_u32 v11, s38, v10")
        a("ds_read_b64 %s, v11 offset:%d" % (vr(MR, 2), RST))
        a("ds_read_b64 %s, v11 offset:%d" % (vr(MR + 2, 2), RST + 128))
        a("v_add_u32 v11, s39, v10")
        a("ds_read_b64 %s, v11 offset:%d" % (vr(MR + 4, 2), RST))
        a("ds_read_b64 %s, v11 offset:%d" % (vr(MR + 6, 2), RST + 128))
        a("s_waitcnt lgkmcnt(0)")
    S = [108, 110, 52, 54]; Q = [109, 111, 53, 55]
    def gelu_ft(ft, stats):
        tts = range(4 if ft < 4 else 2)
        emit_fold_gelu(a, [(core.accr(ft, tt), CS + 4 * ft, MR + 2 * tt, ZP + 2 * tidx(ft, tt)) for tt in tts], T)
        if stats:
            for d in range(2):
                for tt in tts:
                    p = ZP + 2 * tidx(ft, tt) + d
                    a("v_dot2_f32_bf16 v%d, v%d, v%d, v%d" % (S[tt], p, ONE, S[tt]))
                    a("v_dot2_f32_bf16 v%d, v%d, v%d, v%d" % (Q[tt], p, p, Q[tt]))
    a.label("%s_Btail" % name)
    a("v_mov_b32 v10, %d" % (LC + 12))
    a("v_mov_b32 v11, 1")
    a("s_mov_b64 exec, 1")
    a("ds_add_u32 v10, v11")
    a("s_mov_b64 exec, -1")
    a("s_load_dwordx2 s[94:95], s[0:1], 80")
    a("s_load_dwordx2 s[92:93], s[0:1], 72")
    a("s_load_dwordx2 s[78:79], s[0:1], 64")
    epi_in()
    srd(a, 84, 78, 2048 * 2048 * 2)
    a("v_lshrrev_b32 v10, 4, v2")
    a("v_lshlrev_b32 v10, 12, v10")
    a("v_lshl_add_u32 v10, v3, 4, v10")
    a("s_lshl_b32 s40, s22, 7")
    a("s_lshl_b32 s36, s3, 5")
    a("s_add_u32 s40, s40, s36")
    a("s_lshl_b32 s40, s40, 12")
    a("s_lshl_b32 s36, s23, 8")
    a("s_add_u32 s40, s40, s36")
    for n in range(8):
        a("buffer_load_dwordx4 v[116:119], v10, s[84:87], s40 offen")
        if n < 7: a("s_add_u32 s40, s40, 16384")
    srd(a, 76, 94, 2304 * 576 * 2)
    srd(a, 28, 92, 2048 * 2)
    a("v_and_b32 v0, 255, v0")
    for ft in range(5): gelu_ft(ft, False)
    Z1R = 200; BI = 236
    for r_ in range(36): a("v_mov_b32 v%d, v%d" % (Z1R + r_, ZP + r_))
    stamp(a, 3)
    a("s_mov_b32 s42, s2")
    emit_wot_loads(a, 100, 112, 720, 3)
    a("s_lshl_b32 s36, s22, 7")
    a("s_lshl_b32 s37, s24, 6")
    a("s_add_u32 s36, s36, s37")
    a("v_lshlrev_b32 v11, 1, v3")
    a("s_lshl_b32 s37, s25, 6")
    a("s_lshl_b32 s38, s36, 1")
    a("s_add_u32 s39, s38, s37")
    a("s_xor_b32 s37, s37, 64")
    a("s_add_u32 s36, s38, s37")
    a("buffer_load_ushort v96, v11, s[28:31], s39 offen")
    a("buffer_load_ushort v97, v11, s[28:31], s39 offen offset:32")
    a("buffer_load_ushort v98, v11, s[28:31], s36 offen")
    a("buffer_load_ushort v99, v11, s[28:31], s36 offen offset:32")
    for r in range(ACC, ACC + 72): a("v_mov_b32 v%d, 0" % r)
    mma_addr(0)
    a("s_mov_b32 s33, 0")
    stamp(a, 4)
    a("s_barrier")
    stamp(a, 5)
    core.prime(0, core.reads(0, 0))
    trk.drain()
    nocs[0] = True
    a.label("%s_gloop" % name)
    lb = len(a.lines); iteration(False); st = copy.deepcopy(trk.out); del a.lines[lb:]; trk.out = copy.deepcopy(st)
    iteration(False)
    assert [sorted(x) for x in trk.out] == [sorted(x) for x in st]
    a("s_cmp_lg_u32 s33, 3")
    a("s_cbranch_scc1 %s_ghk" % name)
    a("s_waitcnt vmcnt(0)")
    for n in range(3):
        a("buffer_store_dwordx4 %s, v%d, s[12:15], s40 offen" % (vr(100 + 4 * n), 112 + n))
    for tt in range(4): a("v_lshlrev_b32 v%d, 16, v%d" % (BI + 2 * tt, 96 + tt))
    a.label("%s_ghk" % name)
    a("s_cmp_lt_u32 s33, 32")
    a("s_cbranch_scc1 %s_gloop" % name)
    trk.drain()
    stamp(a, 6)
    G3.emit_k2_epilogue(a, core, Z1R, BI)
    stamp(a, 7)
    G.stamp_rt(a, 1)
    a("s_branch %s_end" % name)
    a.label("%s_A1" % name)
    a("s_setprio 2")
    a("s_load_dwordx4 s[88:91], s[0:1], 32")
    vmA = VmTracker(a)
    stamp(a, 9)
    a("s_barrier")
    for q in range(4):
        a("ds_read_b128 %s, v95 offset:%d" % (vr(36 + 4 * q), 1024 * q))
    def zreg(ft, tt):
        return (16 + 2 * (2 * ft + tt)) if tt < 2 else (36 + 2 * (2 * ft + tt - 2))
    GB = [128, 144, 160, 176]
    def gather():
        for tt in range(4):
            for q in range(4):
                a("buffer_load_dwordx4 %s, v4, s[12:15], s%d offen offset:%d sc1" % (vr(GB[tt] + 4 * q), (52, 42, 53, 43)[tt], 16 * q))
    def st_finish():
        for tt in range(4):
            b = GB[tt]
            for st_ in (8, 4, 2):
                for q in range(0, st_, 2):
                    a("v_pk_add_f32 %s, %s, %s" % (vr(b + q, 2), vr(b + q, 2), vr(b + q + st_, 2)))
        emit_xg_reduce(a, [GB[tt] + e for tt in range(4) for e in range(2)], 72)
        for tt in range(4):
            b = GB[tt]
            emit_ln_finish(a, b, b + 1, 2304, b + 2, MR + 2 * tt, b + 4)
            a("v_mul_f32 v%d, -v%d, v%d" % (MR + 2 * tt + 1, b + 2, MR + 2 * tt))
    def z_addr():
        a("v_lshrrev_b32 v10, 4, v2")
        a("v_lshrrev_b32 v11, 2, v2"); a("v_and_b32 v11, 1, v11"); a("v_lshlrev_b32 v11, 4, v11")
        a("v_lshrrev_b32 v5, 3, v2"); a("v_and_b32 v5, 1, v5"); a("v_lshl_add_u32 v11, v5, 2, v11")
        a("v_and_b32 v5, 3, v2"); a("v_add_u32 v11, v11, v5")
        a("v_mul_u32_u24 v11, 288, v11")
        a("v_lshrrev_b32 v5, 1, v10"); a("v_lshl_add_u32 v11, v5, 4, v11")
        a("v_and_b32 v5, 1, v10")
        a("v_lshl_add_u32 v6, v5, 5, v11")
        a("v_mul_u32_u24 v5, 2304, v5")
        a("v_add_u32 v9, v11, v5")
        a("s_lshl_b32 s33, s23, 5")
        a("s_lshl_b32 s36, s22, 1")
        a("s_add_u32 s33, s33, s36")
        a("s_add_u32 s33, s33, s24")
        a("s_mul_i32 s33, s33, 18432")
        if ZIMG: a("s_add_u32 s33, s33, 0x%x" % ZIMG)
        a("s_mul_i32 s36, s25, 9216")
        a("s_add_u32 s37, s33, s36")
        a("s_xor_b32 s36, s36, 9216")
        a("s_add_u32 s38, s33, s36")
        a("s_add_u32 s39, s37, 128")
        a("s_mul_i32 s36, s25, 160")
        a("s_add_u32 s37, s37, s36")
        a("s_add_u32 s38, s38, s36")
    def norm_pair(tA, tB, O):
        for q, (ft, tt) in enumerate((tA, tB)):
            for d in range(2):
                z = zreg(ft, tt) + d; t_ = T + 4 * q + 2 * d
                a("v_lshlrev_b32 v%d, 16, v%d" % (t_, z))
                a("v_and_b32 v%d, 0xffff0000, v%d" % (t_ + 1, z))
        for q, (ft, tt) in enumerate((tA, tB)):
            for d in range(2):
                t_ = T + 4 * q + 2 * d
                a("v_pk_fma_f32 %s, %s, %s, %s op_sel:[0,0,1] op_sel_hi:[1,0,1]" % (vr(t_, 2), vr(t_, 2), vr(MR + 2 * tt, 2), vr(MR + 2 * tt, 2)))
        for q in range(2):
            for d in range(2):
                t_ = T + 4 * q + 2 * d
                a("v_cvt_pk_bf16_f32 v%d, v%d, v%d" % (O + 2 * q + d, t_, t_ + 1))
        a("s_nop 1")
        a("v_permlane16_swap_b32 v%d, v%d" % (O, O + 2))
        a("v_permlane16_swap_b32 v%d, v%d" % (O + 1, O + 3))
        a("s_nop 0")
    def zstore(idx):
        O = 216 + 4 * idx
        if idx < 8:
            pr, tt = idx >> 2, idx & 3
            norm_pair((2 * pr, tt), (2 * pr + 1, tt), O)
            a("buffer_store_dwordx4 %s, v6, s[12:15], s%d offen offset:%d sc1" % (vr(O), 37 if tt < 2 else 38, (tt & 1) * 2304 + 64 * pr))
        else:
            norm_pair((4, 0), (4, 1), O)
            a("buffer_store_dwordx4 %s, v9, s[12:15], s39 offen sc1" % vr(O))
    GK = 16
    def dmas(gs):
        out = []
        for g in gs: out += capture(lambda: (issueT(g), issueF(g)))
        return out
    for k in range(9, 18):
        if k == 9: a("s_waitcnt lgkmcnt(0)")
        a("s_barrier")
        gs = [11, 12] if k == 9 else ([k + 3] if k + 3 < 18 else [])
        if k == 9:
            a.lines.extend(dmas(gs))
            for g in gs: vmA.issue("S%d" % g, 9)
            a("s_lshl_b32 s36, s22, 2")
            a("v_mov_b32 v199, s36")
            a("buffer_load_dword v198, v199, s[60:63], 0 offen sc1"); vmA.issue("cnt", 1)
            a("v_lshrrev_b32 v10, 4, v2")
            a("v_lshlrev_b32 v4, 8, v3")
            a("v_lshl_add_u32 v4, v10, 6, v4")
            a("s_lshl_b32 s33, s25, 13")
            a("s_add_u32 s52, s59, s33")
            a("s_xor_b32 s33, s33, 8192")
            a("s_add_u32 s53, s59, s33")
            a("s_add_u32 s42, s52, 4096")
            a("s_add_u32 s43, s53, 4096")
        elif k == 10:
            a.lines.extend(dmas(gs)); vmA.issue("S13", 9)
            z_addr()
        elif k <= 14:
            a.lines.extend(dmas(gs)); vmA.issue("S%d" % gs[0], 9)
        elif k == GK:
            gather(); vmA.issue("g", 16)
        if k == 12:
            pass
        if 11 <= k + 2 < 18 and k + 2 != 10:
            vmA.wait(["S%d" % (k + 2)])
    stamp(a, 3)
    a("s_waitcnt vmcnt(0)")
    a("s_mov_b32 s40, 0")
    a.label("%s_chk" % name)
    a("v_subrev_u32 v11, 16, v198")
    for tt in range(4):
        for r in range(GB[tt] + 1, GB[tt] + 16, 4):
            a("v_or3_b32 v11, v11, v%d, v%d" % (r, r + 2))
    a("v_cmp_gt_i32 vcc, 0, v11")
    a("s_add_u32 s40, s40, 1")
    a("s_cmp_gt_u32 s40, %d" % SPIN_MAX)
    a("s_cbranch_scc1 %s_ok" % name)
    a("s_cbranch_vccz %s_ok" % name)
    a("s_sleep 16")
    a("buffer_load_dword v198, v199, s[60:63], 0 offen sc1")
    a("s_waitcnt vmcnt(0)")
    gather()
    a("s_waitcnt vmcnt(0)")
    a("s_branch %s_chk" % name)
    a.label("%s_ok" % name)
    stamp(a, 4)
    st_finish()
    for i_ in range(9): zstore(i_)
    stamp(a, 5)
    a("s_mov_b32 s41, s2")
    emit_kv_loads(a, 128, 140, 148, 152, 153)
    a("s_cmp_ge_u32 s2, 32")
    a("s_cbranch_scc1 %s_kvp" % name)
    a("s_add_u32 s41, s2, 256")
    emit_kv_loads(a, 156, 168, 176, 180, 181)
    a.label("%s_kvp" % name)
    a("s_setprio 3")
    srd(a, 8, 78, 2048 * 2048 * 2)
    a("v_lshrrev_b32 v3, 3, v2")
    a("s_lshl_b32 s24, s3, 5")
    a("v_add_u32 v3, s24, v3")
    a("v_and_b32 v4, 7, v2")
    a("v_lshrrev_b32 v6, 4, v2")
    a("v_xor_b32 v6, v6, v4")
    a("v_lshlrev_b32 v6, 4, v6")
    a("v_lshl_add_u32 v10, v3, 12, v6")
    a("v_xor_b32 v11, 64, v10")
    a("v_add_u32 v11, %d, v11" % (32768 - 1024))
    a("v_add_u32 v12, %d, v10" % (2 * (32768 - 1024)))
    a("v_add_u32 v13, %d, v11" % (2 * (32768 - 1024)))
    a("v_lshlrev_b32 v14, 4, v2")
    a("s_lshl_b32 s26, s22, 19")
    a("s_mul_i32 s27, s23, %d" % (32 * 18432))
    a("s_lshl_b32 s24, s3, 12")
    a("s_add_u32 s27, s27, s24")
    if ZIMG: a("s_add_u32 s27, s27, 0x%x" % ZIMG)
    a("s_lshl_b32 s25, s3, 9")
    a("s_sub_u32 s32, s25, s24")
    a("s_add_u32 s32, s32, 16384")
    a("s_add_u32 s24, s24, %d" % RB)
    a("s_waitcnt vmcnt(20) lgkmcnt(0)")
    a("v_mov_b32 v26, %d" % LC)
    a("v_mov_b32 v27, 1")
    a("s_mov_b64 exec, 1")
    a("ds_add_rtn_u32 v28, v26, v27")
    a("s_waitcnt lgkmcnt(0)")
    a("v_readfirstlane_b32 s36, v28")
    a("s_cmp_lg_u32 s36, 3")
    a("s_cbranch_scc1 %s_nozs" % name)
    a("v_mov_b32 v28, 0")
    a("buffer_store_dword v27, v28, s[12:15], s97 offen sc1")
    a.label("%s_nozs" % name)
    a("s_mov_b64 exec, -1")
    stamp(a, 7)
    srd(a, 16, 88, 576 * 2048 * 2)
    srd(a, 84, 90, 576 * 2)
    a("s_mov_b32 s34, 0")
    a.label("%s_wb" % name)
    a("ds_read_b32 v27, v26 offset:12")
    a("s_add_u32 s34, s34, 1")
    a("s_waitcnt lgkmcnt(0)")
    a("v_readfirstlane_b32 s36, v27")
    a("s_cmp_gt_u32 s34, %d" % (SPIN_MAX * 20))
    a("s_cbranch_scc1 %s_wbx" % name)
    a("s_cmp_ge_u32 s36, 4")
    a("s_cbranch_scc1 %s_wbx" % name)
    a("s_sleep 2")
    a("s_branch %s_wb" % name)
    a.label("%s_wbx" % name)
    for g in range(4):
        a("s_add_u32 s35, s24, %d" % (g * SLOT))
        a("s_mov_b32 m0, s35")
        a("s_add_u32 s36, s26, %d" % (128 * g))
        for n in range(4):
            a("buffer_load_dwordx4 v%d, s[8:11], s36 offen offset:%d lds" % (10 + n, n * 1024))
    a("v_mov_b32 v250, v12"); a("v_mov_b32 v251, v13"); a("v_mov_b32 v252, v26")
    a("s_mov_b32 s39, 0x%x" % KVT)
    a("s_waitcnt vmcnt(16)")
    for n in range(11): a("v_mov_b32 v%d, v%d" % (16 + n, 128 + n))
    for n in range(8): a("v_mov_b32 v%d, v%d" % (32 + n, 140 + n))
    for n in range(4): a("v_mov_b32 v%d, v%d" % (44 + n, 148 + n))
    a("v_mov_b32 v56, v152"); a("v_mov_b32 v57, v153")
    a.label("%s_kvb" % name)
    emit_kv_compute(a, wait=False, store=False)
    a("buffer_store_dwordx4 v[120:123], v12, s[12:15], s39 offen sc1")
    a("buffer_store_dwordx4 v[124:127], v13, s[12:15], s39 offen sc1")
    a("s_cmp_lt_u32 s41, 256")
    a("s_cbranch_scc1 %s_kvbd" % name)
    a("s_mov_b32 s41, 0")
    for n in range(11): a("v_mov_b32 v%d, v%d" % (16 + n, 156 + n))
    for n in range(8): a("v_mov_b32 v%d, v%d" % (32 + n, 168 + n))
    for n in range(4): a("v_mov_b32 v%d, v%d" % (44 + n, 176 + n))
    a("v_mov_b32 v56, v180"); a("v_mov_b32 v57, v181")
    a("s_branch %s_kvb" % name)
    a.label("%s_kvbd" % name)
    a("s_nop 1")
    a("v_mov_b32 v12, v250"); a("v_mov_b32 v13, v251"); a("v_mov_b32 v26, v252")
    a("s_mov_b32 s34, 0")
    a("s_cmp_lg_u32 s3, 0")
    a("s_cbranch_scc1 %s_pl" % name)
    a("v_and_b32 v28, 15, v2")
    a("v_lshlrev_b32 v30, 2, v28")
    a("v_lshlrev_b32 v28, 12, v28")
    a("s_lshl_b32 s52, s23, 8")
    a("s_add_u32 s52, s52, 0x%x" % ZFLG)
    a.label("%s_pz0" % name)
    a("buffer_load_dword v31, v30, s[60:63], 0 offen sc1")
    a("s_add_u32 s34, s34, 1")
    a("s_waitcnt vmcnt(0)")
    a("v_cmp_gt_u32 vcc, 16, v31")
    a("s_cmp_gt_u32 s34, %d" % SPIN_MAX)
    a("s_cbranch_scc1 %s_pz" % name)
    a("s_cbranch_vccz %s_pz" % name)
    a("s_sleep 32")
    a("s_branch %s_pz0" % name)
    a.label("%s_pz" % name)
    a("buffer_load_dword v29, v28, s[12:15], s52 offen sc1")
    a("s_add_u32 s34, s34, 1")
    a("s_waitcnt vmcnt(0)")
    a("v_cmp_ne_u32 vcc, 1, v29")
    a("s_cmp_gt_u32 s34, %d" % SPIN_MAX)
    a("s_cbranch_scc1 %s_pzx" % name)
    a("s_cbranch_vccz %s_pzx" % name)
    a("s_sleep 8")
    a("s_branch %s_pz" % name)
    a.label("%s_pzx" % name)
    a("v_mov_b32 v27, 1")
    a("ds_write_b32 v26, v27 offset:4")
    a("s_branch %s_pgo" % name)
    a.label("%s_pl" % name)
    a("ds_read_b32 v27, v26 offset:4")
    a("s_add_u32 s34, s34, 1")
    a("s_waitcnt lgkmcnt(0)")
    a("v_readfirstlane_b32 s36, v27")
    a("s_cmp_gt_u32 s34, %d" % (SPIN_MAX * 20))
    a("s_cbranch_scc1 %s_pgo" % name)
    a("s_cmp_lg_u32 s36, 0")
    a("s_cbranch_scc1 %s_pgo" % name)
    a("s_sleep 2")
    a("s_branch %s_pl" % name)
    a.label("%s_pgo" % name)
    stamp(a, 8)
    for g in range(4):
        a("s_add_u32 s35, s24, %d" % (g * SLOT + TREG))
        a("s_mov_b32 m0, s35")
        a("s_add_u32 s36, s27, %d" % (18432 * g))
        a("s_add_u32 s37, s36, s32")
        for n in range(4):
            a("buffer_load_dwordx4 v14, s[12:15], s36 offen offset:%d sc1 lds" % (n * 1024))
        a("s_add_u32 s35, s35, s32")
        a("s_mov_b32 m0, s35")
        a("s_mov_b64 exec, 0xffffffff")
        a("buffer_load_dwordx4 v14, s[12:15], s37 offen sc1 lds")
        a("s_mov_b64 exec, -1")
    a("s_add_u32 s26, s26, 512")
    a("s_add_u32 s27, s27, %d" % (4 * 18432))
    a("s_mov_b32 s33, 0")
    a("s_lshl_b32 s43, s2, 2")
    a("s_add_u32 s43, s43, s3")
    a("s_and_b32 s53, s43, 1")
    a("s_sub_u32 s36, s43, 448")
    a("s_lshr_b32 s37, s43, 1")
    a("s_cmp_ge_u32 s43, 896")
    a("s_cselect_b32 s43, s36, s37")
    a("s_cselect_b32 s53, 2, s53")
    a("s_waitcnt vmcnt(15)")
    a("s_barrier")
    a("s_waitcnt vmcnt(10)")
    a("s_barrier")
    a("s_waitcnt vmcnt(5)")
    a("s_barrier")
    a("s_mov_b32 s34, 4")
    def issue2():
        a("s_add_u32 s35, s33, s24")
        a("s_mov_b32 m0, s35")
        a("s_add_u32 s36, s35, %d" % TREG)
        for n in range(4):
            a("buffer_load_dwordx4 v%d, s[8:11], s26 offen offset:%d lds" % (10 + n, n * 1024))
        a("s_mov_b32 m0, s36")
        a("s_add_u32 s37, s27, s32")
        for n in range(4):
            a("buffer_load_dwordx4 v14, s[12:15], s27 offen offset:%d sc1 lds" % (n * 1024))
        a("s_add_u32 s36, s36, s32")
        a("s_mov_b32 m0, s36")
        a("s_mov_b64 exec, 0xffffffff")
        a("buffer_load_dwordx4 v14, s[12:15], s37 offen sc1 lds")
        a("s_mov_b64 exec, -1")
        a("s_add_u32 s26, s26, 128")
        a("s_add_u32 s27, s27, 18432")
        a("s_add_u32 s33, s33, %d" % SLOT)
        a("s_cmp_eq_u32 s33, %d" % (R * SLOT))
        a("s_cselect_b32 s33, 0, s33")
    a.label("%s_lloop" % name)
    issue2()
    a("s_cmp_eq_u32 s34, 8")
    a("s_cbranch_scc1 %s_hk0" % name)
    a("s_cmp_eq_u32 s34, 18")
    a("s_cbranch_scc1 %s_hk1" % name)
    a("s_cmp_eq_u32 s34, 21")
    a("s_cbranch_scc1 %s_hk2" % name)
    a("s_waitcnt vmcnt(9)")
    a.label("%s_lcont" % name)
    a("s_barrier")
    a("s_add_u32 s34, s34, 1")
    a("s_cmp_lt_u32 s34, 32")
    a("s_cbranch_scc1 %s_lloop" % name)
    a("s_branch %s_ldone" % name)
    a.label("%s_hk0" % name)
    a("v_mov_b32 v27, 1")
    a("s_mov_b64 exec, 1")
    a("ds_add_rtn_u32 v28, v26, v27 offset:8")
    a("s_waitcnt lgkmcnt(0)")
    a("v_readfirstlane_b32 s36, v28")
    a("s_cmp_lg_u32 s36, 3")
    a("s_cbranch_scc1 %s_hk0x" % name)
    a("s_and_b32 s36, s2, 15")
    a("s_lshl_b32 s36, s36, 2")
    a("s_add_u32 s36, s36, 128")
    a("v_mov_b32 v28, s36")
    a("buffer_atomic_add v27, v28, s[60:63], 0 offen sc1")
    a.label("%s_hk0x" % name)
    a("s_mov_b64 exec, -1")
    a("s_waitcnt vmcnt(9)")
    a("s_branch %s_lcont" % name)
    a.label("%s_hk1" % name)
    a("v_and_b32 v28, 15, v2")
    a("v_lshlrev_b32 v28, 2, v28")
    a("buffer_load_dword v29, v28, s[60:63], 0 offen offset:128 sc1")
    a("s_waitcnt vmcnt(10)")
    a("s_branch %s_lcont" % name)
    a.label("%s_hk2" % name)
    a("s_mov_b32 s52, 0")
    a.label("%s_hk2l" % name)
    a("v_cmp_gt_u32 vcc, 16, v29")
    a("s_add_u32 s52, s52, 1")
    a("s_cmp_gt_u32 s52, %d" % SPIN_MAX)
    a("s_cbranch_scc1 %s_hk2g" % name)
    a("s_cbranch_vccz %s_hk2g" % name)
    a("s_sleep 16")
    a("buffer_load_dword v29, v28, s[60:63], 0 offen offset:128 sc1")
    a("s_waitcnt vmcnt(0)")
    a("s_branch %s_hk2l" % name)
    a.label("%s_hk2g" % name)
    nconv = emit_conv_loads(a, " sc1")
    a("s_waitcnt vmcnt(%d)" % (9 + nconv))
    a("s_branch %s_lcont" % name)
    a.label("%s_ldone" % name)
    a("s_waitcnt vmcnt(0)")
    a("s_barrier")
    a("s_mov_b32 s26, s53")
    a("s_and_b32 s27, s3, 1")
    a("s_mul_i32 s27, s27, %d" % CJ_SIZE)
    a("s_lshr_b32 s36, s3, 1")
    a("s_mul_i32 s36, s36, %d" % SLOT)
    a("s_add_u32 s27, s27, s36")
    a("s_add_u32 s27, s27, %d" % RB)
    def mid():
        a("s_barrier")
        a("s_setprio 0")
    sv = set(DBG); DBG.discard("stamp")
    emit_conv_job(a, name, mid)
    DBG.update(sv)
    G.stamp_rt(a, 1)
    a.label("%s_end" % name)
    a("s_endpgm")
    return a.text(), kernel_desc(name, 256, 256), (name, 256, 512, LDSB)

def gen_kf2(name="k1_kernel", R=4):
    a = Asm()
    RB = 4096; SLOT = 34816; TREG = 16384; FS = 288; RST = 0
    LDSB = RB + R * SLOT
    LC = 2048
    ZFLG = 0x2D00000
    from gen3 import emit_conv_loads, emit_conv_job, CJ_SIZE
    def capture(f, *args):
        lb = len(a.lines); f(*args); out = a.lines[lb:]; del a.lines[lb:]; return out
    kernel_begin(a, name)
    a("s_load_dwordx2 s[80:81], s[0:1], 0")
    a("s_load_dwordx2 s[4:5], s[0:1], 56")
    a("s_load_dwordx2 s[6:7], s[0:1], 104")
    a("s_load_dwordx2 s[18:19], s[0:1], 96")
    a("s_cmp_ge_u32 s2, 256")
    a("s_cbranch_scc1 %s_end" % name)
    a("v_lshrrev_b32 v1, 6, v0")
    a("v_and_b32 v2, 63, v0")
    a("v_readfirstlane_b32 s3, v1")
    G2.tile_ij(a)
    a("s_lshr_b32 s98, s3, 2")
    a("s_mov_b32 s54x, 0".replace("s54x", "s99"))
    a("s_and_b32 s3, s3, 3")
    a("s_lshr_b32 s24, s3, 1")
    a("s_and_b32 s25, s3, 1")
    a("v_and_b32 v3, 15, v2")
    VT = 204; VF = 208
    def loader_setup():
        a("v_lshrrev_b32 v5, 3, v2")
        a("v_and_b32 v4, 7, v2")
        a("s_lshl_b32 s36, s3, 5")
        a("v_add_u32 v5, s36, v5")
        a("v_lshrrev_b32 v7, 4, v2")
        a("v_xor_b32 v7, v7, v4")
        a("v_mul_u32_u24 v6, 1152, v5")
        a("v_lshl_add_u32 v%d, v7, 4, v6" % VT)
        a("v_xor_b32 v%d, 64, v%d" % (VT + 1, VT))
        a("v_add_u32 v%d, %d, v%d" % (VT + 1, 9216 - 1024, VT + 1))
        a("v_add_u32 v%d, %d, v%d" % (VT + 2, 2 * (9216 - 1024), VT))
        a("v_add_u32 v%d, %d, v%d" % (VT + 3, 2 * (9216 - 1024), VT + 1))
        a("s_lshl_b32 s84, s3, 12")
        a("s_add_u32 s84, s84, %d" % RB)
        a("s_lshl_b32 s85, s3, 9")
        a("s_add_u32 s85, s85, %d" % (RB + TREG + 16384))
    def loader_setup2():
        for n in range(5):
            if n < 4:
                a("s_lshl_b32 s36, s3, 8")
                a("s_add_u32 s36, s36, %d" % (64 * n))
            else:
                a("s_lshl_b32 s36, s3, 5")
                a("s_add_u32 s36, s36, 1024")
            a("v_add_u32 v6, s36, v2")
            a("v_mul_u32_u24 v7, 3641, v6")
            a("v_lshrrev_b32 v7, 16, v7")
            a("v_mul_u32_u24 v8, 18, v7")
            a("v_sub_u32 v8, v6, v8")
            a("v_and_b32 v9, 35, v7")
            a("v_bfe_u32 v6, v7, 2, 2")
            a("v_lshl_add_u32 v9, v6, 3, v9")
            a("v_bfe_u32 v6, v7, 4, 1")
            a("v_lshl_add_u32 v9, v6, 2, v9")
            a("v_mul_u32_u24 v9, 9216, v9")
            a("v_lshl_add_u32 v%d, v8, 4, v9" % (VF + n))
            if 0 < n < 4: a("v_subrev_u32 v%d, %d, v%d" % (VF + n, 1024 * n, VF + n))
    def issueT(g):
        st = g % 9
        a("s_add_u32 s86, s84, %d" % ((g % R) * SLOT))
        a("s_mov_b32 m0, s86")
        a("s_add_u32 s87, s82, %d" % (128 * st))
        for n in range(4):
            a("buffer_load_dwordx4 v%d, s[28:31], s87 offen offset:%d lds" % (VT + n, 1024 * n))
    def issueF(g):
        st = g % 9
        a("s_add_u32 s86, s84, %d" % ((g % R) * SLOT + TREG))
        a("s_mov_b32 m0, s86")
        a("s_add_u32 s87, s83, %d" % (64 * 9216 * st + (4608 if g < 9 else 0)))
        for n in range(4):
            a("buffer_load_dwordx4 v%d, s[8:11], s87 offen offset:%d lds" % (VF + n, 1024 * n))
        a("s_add_u32 s86, s85, %d" % ((g % R) * SLOT))
        a("s_mov_b32 m0, s86")
        a("s_mov_b64 exec, 0xffffffff")
        a("buffer_load_dwordx4 v%d, s[8:11], s87 offen lds" % (VF + 4))
        a("s_mov_b64 exec, -1")
    def srds_main():
        srd(a, 28, 80, 2048 * 576 * 2)
        srd(a, 8, 4, 576 * 4608 * 2)
        srd(a, 12, 6, WS_BYTES)
        srd(a, 60, 18, 256)
        a("s_mul_i32 s82, s22, %d" % (128 * 1152))
        a("s_mul_i32 s83, s23, 288")
    ACC = 128; FB = [16, 52]; CS = 216; ONE = 236
    vTa = [4, 5]; vTb = [6, 7]; vF = 8; vFh = 9
    bTa = [88, 89]; bTb = [90, 91]; bF = 92; bFh = 93
    def mma_setup():
        a("v_lshrrev_b32 v10, 4, v2")
        a("v_lshrrev_b32 v11, 1, v3")
        a("v_xor_b32 v10, v10, v11")
        a("v_lshlrev_b32 v10, 4, v10")
        a("v_lshl_add_u32 v10, v3, 7, v10")
        a("s_lshl_b32 s26, s24, 13")
        a("s_add_u32 s26, s26, %d" % RB)
        a("v_add_u32 v10, s26, v10")
        a("s_lshl_b32 s26, s25, 12")
        a("v_add_u32 v%d, s26, v10" % bTa[0])
        a("s_xor_b32 s26, s26, 4096")
        a("v_add_u32 v%d, s26, v10" % bTb[0])
        a("v_xor_b32 v%d, 64, v%d" % (bTa[1], bTa[0]))
        a("v_xor_b32 v%d, 64, v%d" % (bTb[1], bTb[0]))
        a("v_lshrrev_b32 v10, 2, v2")
        a("v_mul_u32_u24 v10, %d, v10" % FS)
        a("v_and_b32 v11, 3, v2")
        a("v_lshl_add_u32 v10, v11, 3, v10")
        a("v_add_u32 v10, %d, v10" % (RB + TREG))
        a("s_mul_i32 s26, s25, 160")
        a("v_add_u32 v%d, s26, v10" % bF)
        a("v_add_u32 v%d, 128, v10" % bFh)
        for r in range(ACC, ACC + 72): a("v_mov_b32 v%d, 0" % r)
        for r in range(CS, CS + 20): a("v_mov_b32 v%d, 0" % r)
        for r in range(ONE, ONE + 4): a("v_mov_b32 v%d, 0x3f803f80" % r)
    def mma_addr(slot):
        a("s_mov_b32 s27, %d" % (slot * SLOT))
        for d, s_ in ((vTa[0], bTa[0]), (vTb[0], bTb[0]), (vTa[1], bTa[1]), (vTb[1], bTb[1]), (vF, bF), (vFh, bFh)):
            a("v_add_u32 v%d, s27, v%d" % (d, s_))
    core = G.Core(a, ACC, FB[0], FB[1], FS, TREG, vTa, vTb, vF, vFh)
    trk = core.trk
    a("s_cmp_eq_u32 s98, 0")
    a("s_cbranch_scc1 %s_A0" % name)
    a("s_setprio 3")
    loader_setup()
    a("s_waitcnt lgkmcnt(0)")
    srds_main()
    vm = VmTracker(a)
    def issue(g, vmx):
        issueT(g); issueF(g); vmx.issue("S%d" % g, 9)
    issueT(0)
    loader_setup2()
    issueF(0); vm.issue("S0", 9)
    issue(1, vm); issue(2, vm); issue(3, vm)
    a("s_add_u32 s3, s3, 4"); stamp_setup(a, 1); stamp(a, 0); a("s_sub_u32 s3, s3, 4")
    mma_setup()
    RA = 96; XB = 112
    for r in range(RA, RA + 16): a("v_mov_b32 v%d, 0" % r)
    a("v_lshrrev_b32 v10, 4, v2")
    a("v_lshrrev_b32 v11, 1, v3")
    a("v_xor_b32 v10, v10, v11")
    a("v_lshlrev_b32 v10, 4, v10")
    a("v_lshl_add_u32 v10, v3, 7, v10")
    a("v_add_u32 v12, s84, v10")
    a("v_xor_b32 v13, 64, v12")
    def rs_rd(g):
        a("v_add_u32 v10, %d, v12" % ((g % R) * SLOT))
        a("v_add_u32 v11, %d, v13" % ((g % R) * SLOT))
        for h in range(2):
            for n in range(2):
                a("ds_read_b128 %s, v%d offset:%d" % (vr(XB + 8 * h + 4 * n), 10 + h, 2048 * n))
    def rs_do():
        for h in range(2):
            for n in range(2):
                x = XB + 8 * h + 4 * n
                a("v_mfma_f32_16x16x32_bf16 %s, %s, %s, %s" % (vr(RA + 4 * n), vr(ONE), vr(x), vr(RA + 4 * n)))
                a("v_mfma_f32_16x16x32_bf16 %s, %s, %s, %s" % (vr(RA + 8 + 4 * n), vr(x), vr(x), vr(RA + 8 + 4 * n)))
    def interleave(dma, comp, vmx=None):
        groups = []; cur = []
        for l in dma:
            cur.append(l)
            if "buffer_load" in l and not any("exec, 0xffffffff" in x for x in cur[-2:]):
                groups.append(cur); cur = []
            elif "exec, -1" in l:
                groups.append(cur); cur = []
        if cur: groups.append(cur)
        ns = max(1, len(groups))
        per = (len(comp) + ns - 1) // ns
        for g in groups:
            a.lines.extend(g)
            a.lines.extend(comp[:per]); comp = comp[per:]
        a.lines.extend(comp)
    vm.wait(["S0"])
    a("s_barrier")
    stamp(a, 1)
    rs_rd(0)
    vm.wait(["S1"])
    a("s_barrier")
    for k in range(9):
        a("s_waitcnt lgkmcnt(0)")
        dma = capture(lambda: (issueT(k + 3), issueF(k + 3))) if k >= 1 else []
        interleave(dma, capture(rs_do))
        if k >= 1: vm.issue("S%d" % (k + 3), 9)
        if k < 8:
            rs_rd(k + 1)
        else:
            a("s_nop 7")
            a("v_lshrrev_b32 v10, 4, v2")
            a("v_lshrrev_b32 v11, 2, v3")
            a("v_and_b32 v12, 3, v3")
            for n in range(2):
                G_ = RA + 8 + 4 * n
                for r in range(1, 4):
                    a("v_cmp_eq_u32 vcc, %d, v12" % r)
                    a("s_nop 1")
                    a("v_cndmask_b32 v%d, v%d, v%d, vcc" % (G_, G_, G_ + r))
            ML = 112
            for n in range(2):
                emit_ln_finish(a, RA + 4 * n, RA + 8 + 4 * n, 576, ML + 2 * n, ML + 2 * n + 1, 120)
                a("v_mov_b32 v%d, v%d" % (117 + 2 * n, ML + 2 * n + 1))
                a("v_sub_f32 v%d, 0, v%d" % (116 + 2 * n, ML + 2 * n))
            a("s_lshl_b32 s35, s3, 8")
            a("v_lshlrev_b32 v13, 3, v3")
            a("v_add_u32 v12, s35, v13")
            a("v_cmp_eq_u32 vcc, v10, v11")
            a("s_and_saveexec_b64 s[36:37], vcc")
            for n in range(2):
                a("ds_write_b64 v12, %s offset:%d" % (vr(116 + 2 * n, 2), RST + 128 * n))
            a("s_mov_b64 exec, s[36:37]")
            a("s_cmp_lg_u32 s23, 0")
            a("s_cbranch_scc1 %s_nost1" % name)
            a("s_lshl_b32 s35, s22, 7")
            a("s_lshl_b32 s36, s3, 5")
            a("s_add_u32 s35, s35, s36")
            a("s_lshl_b32 s35, s35, 3")
            a("s_add_u32 s35, s35, 0x%x" % STATS1)
            a("v_mov_b32 v11, 0x7ffffff0")
            a("v_cndmask_b32 v13, v11, v13, vcc")
            for n in range(2):
                a("buffer_store_dwordx2 %s, v13, s[12:15], s35 offen offset:%d" % (vr(ML + 2 * n, 2), 128 * n))
            a.label("%s_nost1" % name)
            mma_addr(9 % R)
            a("s_mov_b32 s33, 0")
            a("s_setprio 0")
        vm.wait(["S%d" % (k + 2)], "lgkmcnt(0)" if k == 8 else "")
        if k < 8: a("s_barrier")
    a("s_branch %s_mma" % name)
    a.label("%s_A0" % name)
    emit_code_prefetch(a, name)
    a("s_load_dwordx4 s[64:67], s[0:1], 8")
    a("s_load_dwordx2 s[76:77], s[0:1], 24")
    a("s_load_dwordx2 s[78:79], s[0:1], 64")
    a("s_waitcnt lgkmcnt(0)")
    srds_main()
    srd(a, 68, 66, 2048 * 576 * 2)
    a("s_mov_b32 s88, s64"); a("s_mov_b32 s89, s65")
    srd(a, 64, 88, 2048 * 576 * 2)
    srd(a, 72, 76, 576 * 8)
    a("s_mov_b32 s41, s2")
    emit_kv_loads(a)
    a("s_cmp_ge_u32 s2, 32")
    a("s_cbranch_scc1 %s_kv1" % name)
    a("s_add_u32 s41, s2, 256")
    emit_kv_loads(a, 128, 140, 148, 152, 153)
    a.label("%s_kv1" % name)
    loader_setup(); loader_setup2()
    a("s_mov_b32 s39, 0x%x" % KVT)
    a("s_waitcnt vmcnt(0)")
    a.label("%s_kv2" % name)
    emit_kv_compute(a, wait=False, store=False)
    a("buffer_store_dwordx4 v[120:123], v12, s[12:15], s39 offen sc1")
    a("buffer_store_dwordx4 v[124:127], v13, s[12:15], s39 offen sc1")
    a("s_cmp_lt_u32 s41, 256")
    a("s_cbranch_scc1 %s_kv3" % name)
    a("s_mov_b32 s41, 0")
    for n in range(11): a("v_mov_b32 v%d, v%d" % (16 + n, 128 + n))
    for n in range(8): a("v_mov_b32 v%d, v%d" % (32 + n, 140 + n))
    for n in range(4): a("v_mov_b32 v%d, v%d" % (44 + n, 148 + n))
    a("v_mov_b32 v56, v152"); a("v_mov_b32 v57, v153")
    a("s_branch %s_kv2" % name)
    a.label("%s_kv3" % name)
    mma_setup()
    stamp_setup(a, 1); stamp(a, 0)
    def gran_addr():
        a("v_lshrrev_b32 v10, 4, v2")
        a("s_lshl_b32 s36, s25, 1")
        a("v_add_u32 v11, s36, v10")
        a("v_and_b32 v11, 3, v11")
        a("v_lshl_add_u32 v11, v11, 4, v3")
        a("v_lshlrev_b32 v94, 8, v11")
        a("s_lshl_b32 s59, s22, 7")
        a("s_lshl_b32 s36, s24, 6")
        a("s_add_u32 s59, s59, s36")
        a("s_lshl_b32 s59, s59, 8")
        a("s_add_u32 s59, s59, 0x%x" % STATS2)
        a("s_lshl_b32 s36, s23, 1")
        a("s_add_u32 s36, s36, s25")
        a("s_lshl_b32 s36, s36, 3")
        a("s_add_u32 s58, s36, s59")
    gran_addr()
    a("v_mov_b32 v12, 0"); a("v_mov_b32 v13, 0x80000000")
    a("buffer_store_dwordx2 v[12:13], v94, s[12:15], s58 offen sc1")
    a("s_lshl_b32 s36, s22, 4")
    a("s_add_u32 s36, s36, s23")
    a("s_lshl_b32 s36, s36, 8")
    a("s_add_u32 s97, s36, 0x%x" % ZFLG)
    a("v_mov_b32 v10, %d" % LC)
    a("v_mov_b32 v12, 0"); a("v_mov_b32 v13, 0")
    a("s_mov_b64 exec, 1")
    a("buffer_store_dword v12, v12, s[12:15], s97 offen sc1")
    a("s_mov_b64 exec, -1")
    a("ds_write_b64 v10, v[12:13]")
    a("ds_write_b64 v10, v[12:13] offset:8")
    mma_addr(0)
    a("s_mov_b32 s33, 0")
    a("s_waitcnt lgkmcnt(0)")
    a("s_barrier")
    stamp(a, 1)
    a.label("%s_mma" % name)
    core.prime(0, core.reads(0, 0))
    trk.drain()
    nocs = [False]
    def mfmas(buf):
        L = []
        for ft in range(5):
            A = core.F(buf, ft)
            for tt in range(4 if ft < 4 else 2):
                c = core.accr(ft, tt); B = core.T(buf, tt)
                L.append(("v_mfma_f32_16x16x32_bf16 %s, %s, %s, %s" % (vr(c), vr(A), vr(B), vr(c)), list(range(A, A + 4)) + list(range(B, B + 4))))
            if not nocs[0]: L.append(("v_mfma_f32_16x16x32_bf16 %s, %s, %s, %s" % (vr(CS + 4 * ft), vr(A), vr(ONE), vr(CS + 4 * ft)), list(range(A, A + 4))))
        return L
    def phase(buf, pend):
        for (m, regs) in mfmas(buf):
            trk.need(regs)
            a(m)
            while pend:
                k, t = pend.pop(0)
                if k == "x":
                    a(t)
                    if t.startswith("s_"): continue
                else:
                    a(t[0]); trk.issue(t[1])
                break
        for k, t in pend:
            if k == "x": a(t)
            else: a(t[0]); trk.issue(t[1])
    def iteration(vw=True):
        if vw: a("s_waitcnt vmcnt(0)")
        a("s_barrier")
        rd = [("r", t) for t in core.reads(1, 1)]
        upd = ["s_add_u32 s27, s27, %d" % SLOT, "s_cmp_eq_u32 s27, %d" % (R * SLOT), "s_cselect_b32 s27, 0, s27"]
        tail = ["v_add_u32 v%d, s27, v%d" % (d, s_) for d, s_ in ((vTa[0], bTa[0]), (vF, bF), (vTb[0], bTb[0]), (vFh, bFh))]
        phase(0, rd[:1] + [("x", u) for u in upd] + rd[1:] + [("x", u) for u in tail])
        rd = [("r", t) for t in core.reads(0, 0)]
        tail = ["v_add_u32 v%d, s27, v%d" % (d, s_) for d, s_ in ((vTa[1], bTa[1]), (vTb[1], bTb[1]))] + ["s_add_u32 s33, s33, 1"]
        phase(1, rd + [("x", u) for u in tail])
    a.label("%s_cloop" % name)
    lb = len(a.lines); iteration(); st = copy.deepcopy(trk.out); del a.lines[lb:]; trk.out = copy.deepcopy(st)
    iteration()
    assert [sorted(x) for x in trk.out] == [sorted(x) for x in st]
    a("s_cmp_lt_u32 s33, 9")
    a("s_cbranch_scc1 %s_cloop" % name)
    trk.drain()
    stamp(a, 2)
    MR = 100; T = 72; ZP = 16
    def epi_in():
        gelu_consts(a)
        a("s_lshl_b32 s36, s24, 9")
        a("s_lshl_b32 s37, s25, 8")
        a("s_add_u32 s38, s36, s37")
        a("s_xor_b32 s37, s37, 256")
        a("s_add_u32 s39, s36, s37")
        a("v_lshlrev_b32 v10, 3, v3")
        a("v_add_u32 v11, s38, v10")
        a("ds_read_b64 %s, v11 offset:%d" % (vr(MR, 2), RST))
        a("ds_read_b64 %s, v11 offset:%d" % (vr(MR + 2, 2), RST + 128))
        a("v_add_u32 v11, s39, v10")
        a("ds_read_b64 %s, v11 offset:%d" % (vr(MR + 4, 2), RST))
        a("ds_read_b64 %s, v11 offset:%d" % (vr(MR + 6, 2), RST + 128))
        a("s_waitcnt lgkmcnt(0)")
    S = [108, 110, 52, 54]; Q = [109, 111, 53, 55]
    def gelu_ft(ft, stats):
        tts = range(4 if ft < 4 else 2)
        emit_fold_gelu(a, [(core.accr(ft, tt), CS + 4 * ft, MR + 2 * tt, ZP + 2 * tidx(ft, tt)) for tt in tts], T)
        if stats:
            for d in range(2):
                for tt in tts:
                    p = ZP + 2 * tidx(ft, tt) + d
                    a("v_dot2_f32_bf16 v%d, v%d, v%d, v%d" % (S[tt], p, ONE, S[tt]))
                    a("v_dot2_f32_bf16 v%d, v%d, v%d, v%d" % (Q[tt], p, p, Q[tt]))
    a("s_cmp_eq_u32 s98, 0")
    a("s_cbranch_scc1 %s_A1" % name)
    a("s_barrier")
    a("s_load_dwordx2 s[94:95], s[0:1], 80")
    a("s_load_dwordx2 s[92:93], s[0:1], 72")
    epi_in()
    srd(a, 76, 94, 2304 * 576 * 2)
    srd(a, 28, 92, 2048 * 2)
    a("v_and_b32 v0, 255, v0")
    for ft in range(5): gelu_ft(ft, False)
    Z1R = 200; BI = 236
    for r_ in range(36): a("v_mov_b32 v%d, v%d" % (Z1R + r_, ZP + r_))
    stamp(a, 3)
    a("s_mov_b32 s42, s2")
    emit_wot_loads(a, 100, 112, 720, 3)
    a("s_lshl_b32 s36, s22, 7")
    a("s_lshl_b32 s37, s24, 6")
    a("s_add_u32 s36, s36, s37")
    a("v_lshlrev_b32 v11, 1, v3")
    a("s_lshl_b32 s37, s25, 6")
    a("s_lshl_b32 s38, s36, 1")
    a("s_add_u32 s39, s38, s37")
    a("s_xor_b32 s37, s37, 64")
    a("s_add_u32 s36, s38, s37")
    a("buffer_load_ushort v96, v11, s[28:31], s39 offen")
    a("buffer_load_ushort v97, v11, s[28:31], s39 offen offset:32")
    a("buffer_load_ushort v98, v11, s[28:31], s36 offen")
    a("buffer_load_ushort v99, v11, s[28:31], s36 offen offset:32")
    for r in range(ACC, ACC + 72): a("v_mov_b32 v%d, 0" % r)
    mma_addr(0)
    a("s_mov_b32 s33, 0")
    stamp(a, 4)
    a("s_barrier")
    stamp(a, 5)
    core.prime(0, core.reads(0, 0))
    trk.drain()
    nocs[0] = True
    a.label("%s_gloop" % name)
    lb = len(a.lines); iteration(False); st = copy.deepcopy(trk.out); del a.lines[lb:]; trk.out = copy.deepcopy(st)
    iteration(False)
    assert [sorted(x) for x in trk.out] == [sorted(x) for x in st]
    a("s_cmp_lg_u32 s33, 3")
    a("s_cbranch_scc1 %s_ghk" % name)
    a("s_waitcnt vmcnt(0)")
    for n in range(3):
        a("buffer_store_dwordx4 %s, v%d, s[12:15], s40 offen" % (vr(100 + 4 * n), 112 + n))
    for tt in range(4): a("v_lshlrev_b32 v%d, 16, v%d" % (BI + 2 * tt, 96 + tt))
    a.label("%s_ghk" % name)
    a("s_cmp_lt_u32 s33, 32")
    a("s_cbranch_scc1 %s_gloop" % name)
    trk.drain()
    stamp(a, 6)
    G3.emit_k2_epilogue(a, core, Z1R, BI)
    stamp(a, 7)
    G.stamp_rt(a, 1)
    a("s_branch %s_end" % name)
    a.label("%s_A1" % name)
    a("s_setprio 2")
    vmA = VmTracker(a)
    PB = 132
    def aux_head():
        epi_in()
        for tt in range(4):
            a("v_mov_b32 v%d, 0" % S[tt]); a("v_mov_b32 v%d, 0" % Q[tt])
    def aux_pub():
        a("s_nop 2")
        emit_xg_reduce(a, S + Q, 72)
        a("v_lshrrev_b32 v10, 4, v2")
        for g in range(1, 4):
            a("v_cmp_eq_u32 vcc, %d, v10" % g)
            a("s_nop 1")
            a("v_cndmask_b32 v%d, v%d, v%d, vcc" % (S[0], S[0], S[g]))
            a("v_cndmask_b32 v%d, v%d, v%d, vcc" % (Q[0], Q[0], Q[g]))
        a("v_and_b32 v%d, 0x7fffffff, v%d" % (Q[0], Q[0]))
        a("buffer_store_dwordx2 v[%d:%d], v94, s[12:15], s58 offen sc1" % (S[0], Q[0]))
    chunks = [capture(aux_head) + capture(gelu_ft, 0, True), capture(gelu_ft, 1, True), capture(gelu_ft, 2, True),
              capture(gelu_ft, 3, True), capture(gelu_ft, 4, True) + capture(aux_pub)]
    KD = 172
    for k in range(9, 18):
        a("s_barrier")
        if k == 9:
            a("s_cmp_lg_u32 s3, 0")
            a("s_cbranch_scc1 %s_nosig" % name)
            a("v_mov_b32 v10, 1")
            a("s_lshl_b32 s36, s22, 2")
            a("v_mov_b32 v11, s36")
            a("s_mov_b64 exec, 1")
            a("buffer_atomic_add v10, v11, s[60:63], 0 offen sc1")
            a("s_mov_b64 exec, -1")
            a.label("%s_nosig" % name)
        g = k + 3
        dma = capture(lambda: (issueT(g), issueF(g))) if g < 18 else []
        comp = chunks[k - 9] if k - 9 < len(chunks) else []
        interleave(dma, comp)
        if k == 13: vmA.issue("pub", 1)
        if g < 18: vmA.issue("S%d" % g, 9)
        if k == 14:
            srd(a, 92, 78, 2048 * 2048 * 2)
            a("v_lshrrev_b32 v10, 4, v2")
            a("v_lshlrev_b32 v10, 12, v10")
            a("v_lshl_add_u32 v10, v3, 4, v10")
            a("s_lshl_b32 s40, s22, 7")
            a("s_lshl_b32 s36, s3, 5")
            a("s_add_u32 s40, s40, s36")
            a("s_lshl_b32 s40, s40, 12")
            a("s_lshl_b32 s36, s23, 8")
            a("s_add_u32 s40, s40, s36")
            for n in range(8):
                a("buffer_load_dwordx4 v[200:203], v10, s[92:95], s40 offen")
                if n < 7: a("s_add_u32 s40, s40, 16384")
            vmA.issue("wp", 8)
            a("s_lshl_b32 s36, s22, 2")
            a("v_mov_b32 v199, s36")
            a("buffer_load_dword v198, v199, s[60:63], 0 offen sc1"); vmA.issue("cnt", 1)
        if k + 2 < 18 and k + 2 >= 12:
            vmA.wait(["S%d" % (k + 2)])
    a("s_barrier")
    stamp(a, 3)
    a("s_load_dwordx4 s[88:91], s[0:1], 32")
    a("v_lshrrev_b32 v10, 4, v2")
    a("v_lshlrev_b32 v95, 8, v3")
    a("v_lshl_add_u32 v95, v10, 6, v95")
    a("s_lshl_b32 s33, s25, 13")
    a("s_add_u32 s52, s59, s33")
    a("s_xor_b32 s33, s33, 8192")
    a("s_add_u32 s53, s59, s33")
    a("s_add_u32 s42, s52, 4096")
    a("s_add_u32 s43, s53, 4096")
    Z2 = ZP
    a("s_waitcnt vmcnt(0)")
    GB = [128, 144, 160, 176]
    a("v_mov_b32 v4, v95")
    def gather():
        for tt in range(4):
            for q in range(4):
                a("buffer_load_dwordx4 %s, v4, s[12:15], s%d offen offset:%d sc1" % (vr(GB[tt] + 4 * q), (52, 42, 53, 43)[tt], 16 * q))
    gather()
    a("s_mov_b32 s40, 0")
    a("s_waitcnt vmcnt(0)")
    a.label("%s_chk" % name)
    a("v_subrev_u32 v11, 16, v198")
    for tt in range(4):
        for r in range(GB[tt] + 1, GB[tt] + 16, 4):
            a("v_or3_b32 v11, v11, v%d, v%d" % (r, r + 2))
    a("v_cmp_gt_i32 vcc, 0, v11")
    a("s_add_u32 s40, s40, 1")
    a("s_cmp_gt_u32 s40, %d" % SPIN_MAX)
    a("s_cbranch_scc1 %s_ok" % name)
    a("s_cbranch_vccz %s_ok" % name)
    a("s_sleep 32")
    a("buffer_load_dword v198, v199, s[60:63], 0 offen sc1")
    a("s_waitcnt vmcnt(0)")
    gather()
    a("s_waitcnt vmcnt(0)")
    a("s_branch %s_chk" % name)
    a.label("%s_ok" % name)
    stamp(a, 5)
    for tt in range(4):
        b = GB[tt]
        for st_ in (8, 4, 2):
            for q in range(0, st_, 2):
                a("v_pk_add_f32 %s, %s, %s" % (vr(b + q, 2), vr(b + q, 2), vr(b + q + st_, 2)))
    emit_xg_reduce(a, [GB[tt] + e for tt in range(4) for e in range(2)], 72)
    for tt in range(4):
        b = GB[tt]
        emit_ln_finish(a, b, b + 1, 2304, b + 2, MR + 2 * tt, b + 4)
        a("v_mul_f32 v%d, -v%d, v%d" % (MR + 2 * tt + 1, b + 2, MR + 2 * tt))
    a("v_lshrrev_b32 v10, 4, v2")
    a("v_lshrrev_b32 v11, 2, v2"); a("v_and_b32 v11, 1, v11"); a("v_lshlrev_b32 v11, 4, v11")
    a("v_lshrrev_b32 v5, 3, v2"); a("v_and_b32 v5, 1, v5"); a("v_lshl_add_u32 v11, v5, 2, v11")
    a("v_and_b32 v5, 3, v2"); a("v_add_u32 v11, v11, v5")
    a("v_mul_u32_u24 v11, 288, v11")
    a("v_lshrrev_b32 v5, 1, v10"); a("v_lshl_add_u32 v11, v5, 4, v11")
    a("v_and_b32 v5, 1, v10")
    a("v_lshl_add_u32 v6, v5, 5, v11")
    a("v_mul_u32_u24 v5, 2304, v5")
    a("v_add_u32 v9, v11, v5")
    a("s_lshl_b32 s33, s23, 5")
    a("s_lshl_b32 s36, s22, 1")
    a("s_add_u32 s33, s33, s36")
    a("s_add_u32 s33, s33, s24")
    a("s_mul_i32 s33, s33, 18432")
    if ZIMG: a("s_add_u32 s33, s33, 0x%x" % ZIMG)
    a("s_mul_i32 s36, s25, 9216")
    a("s_add_u32 s37, s33, s36")
    a("s_xor_b32 s36, s36, 9216")
    a("s_add_u32 s38, s33, s36")
    a("s_add_u32 s39, s37, 128")
    a("s_mul_i32 s36, s25, 160")
    a("s_add_u32 s37, s37, s36")
    a("s_add_u32 s38, s38, s36")
    def norm_pair(nA, ttA, nB, ttB, O):
        for q, (n, tt) in enumerate(((nA, ttA), (nB, ttB))):
            for d in range(2):
                z = Z2 + 2 * n + d; t = T + 4 * q + 2 * d
                a("v_lshlrev_b32 v%d, 16, v%d" % (t, z))
                a("v_and_b32 v%d, 0xffff0000, v%d" % (t + 1, z))
        for q, (n, tt) in enumerate(((nA, ttA), (nB, ttB))):
            for d in range(2):
                t = T + 4 * q + 2 * d
                a("v_pk_fma_f32 %s, %s, %s, %s op_sel:[0,0,1] op_sel_hi:[1,0,1]" % (vr(t, 2), vr(t, 2), vr(MR + 2 * tt, 2), vr(MR + 2 * tt, 2)))
        for q in range(2):
            for d in range(2):
                t = T + 4 * q + 2 * d
                a("v_cvt_pk_bf16_f32 v%d, v%d, v%d" % (O + 2 * q + d, t, t + 1))
        a("s_nop 1")
        a("v_permlane16_swap_b32 v%d, v%d" % (O, O + 2))
        a("v_permlane16_swap_b32 v%d, v%d" % (O + 1, O + 3))
    cnt = 0
    for pr in range(2):
        for tt in range(4):
            O = 200 + 4 * cnt; cnt += 1
            norm_pair(tidx(2 * pr, tt), tt, tidx(2 * pr + 1, tt), tt, O)
            a("s_nop 0")
            a("buffer_store_dwordx4 %s, v6, s[12:15], s%d offen offset:%d" % (vr(O), 37 if tt < 2 else 38, (tt & 1) * 2304 + 64 * pr) + " sc1")
    O = 200 + 4 * cnt
    norm_pair(16, 0, 17, 1, O)
    a("s_nop 0")
    a("buffer_store_dwordx4 %s, v9, s[12:15], s39 offen sc1" % vr(O))
    stamp(a, 6)
    a("s_setprio 3")
    srd(a, 8, 78, 2048 * 2048 * 2)
    a("v_lshrrev_b32 v3, 3, v2")
    a("s_lshl_b32 s24, s3, 5")
    a("v_add_u32 v3, s24, v3")
    a("v_and_b32 v4, 7, v2")
    a("v_lshrrev_b32 v6, 4, v2")
    a("v_xor_b32 v6, v6, v4")
    a("v_lshlrev_b32 v6, 4, v6")
    a("v_lshl_add_u32 v10, v3, 12, v6")
    a("v_xor_b32 v11, 64, v10")
    a("v_add_u32 v11, %d, v11" % (32768 - 1024))
    a("v_add_u32 v12, %d, v10" % (2 * (32768 - 1024)))
    a("v_add_u32 v13, %d, v11" % (2 * (32768 - 1024)))
    a("v_lshlrev_b32 v14, 4, v2")
    a("s_lshl_b32 s26, s22, 19")
    a("s_mul_i32 s27, s23, %d" % (32 * 18432))
    a("s_lshl_b32 s24, s3, 12")
    a("s_add_u32 s27, s27, s24")
    if ZIMG: a("s_add_u32 s27, s27, 0x%x" % ZIMG)
    a("s_lshl_b32 s25, s3, 9")
    a("s_sub_u32 s32, s25, s24")
    a("s_add_u32 s32, s32, 16384")
    a("s_add_u32 s24, s24, %d" % RB)
    a("s_waitcnt vmcnt(0) lgkmcnt(0)")
    a("v_mov_b32 v26, %d" % LC)
    a("v_mov_b32 v27, 1")
    a("s_mov_b64 exec, 1")
    a("ds_add_rtn_u32 v28, v26, v27")
    a("s_waitcnt lgkmcnt(0)")
    a("v_readfirstlane_b32 s36, v28")
    a("s_cmp_lg_u32 s36, 3")
    a("s_cbranch_scc1 %s_nozs" % name)
    a("v_mov_b32 v28, 0")
    a("buffer_store_dword v27, v28, s[12:15], s97 offen sc1")
    a.label("%s_nozs" % name)
    a("s_mov_b64 exec, -1")
    stamp(a, 7)
    srd(a, 16, 88, 576 * 2048 * 2)
    srd(a, 84, 90, 576 * 2)
    for g in range(4):
        a("s_add_u32 s35, s24, %d" % (g * SLOT))
        a("s_mov_b32 m0, s35")
        a("s_add_u32 s36, s26, %d" % (128 * g))
        for n in range(4):
            a("buffer_load_dwordx4 v%d, s[8:11], s36 offen offset:%d lds" % (10 + n, n * 1024))
    a("s_mov_b32 s34, 0")
    a("s_cmp_lg_u32 s3, 0")
    a("s_cbranch_scc1 %s_pl" % name)
    a("v_and_b32 v28, 15, v2")
    a("v_lshlrev_b32 v30, 2, v28")
    a("v_lshlrev_b32 v28, 12, v28")
    a("s_lshl_b32 s52, s23, 8")
    a("s_add_u32 s52, s52, 0x%x" % ZFLG)
    a.label("%s_pz0" % name)
    a("buffer_load_dword v31, v30, s[60:63], 0 offen sc1")
    a("s_add_u32 s34, s34, 1")
    a("s_waitcnt vmcnt(0)")
    a("v_cmp_gt_u32 vcc, 16, v31")
    a("s_cmp_gt_u32 s34, %d" % SPIN_MAX)
    a("s_cbranch_scc1 %s_pz" % name)
    a("s_cbranch_vccz %s_pz" % name)
    a("s_sleep 32")
    a("s_branch %s_pz0" % name)
    a.label("%s_pz" % name)
    a("buffer_load_dword v29, v28, s[12:15], s52 offen sc1")
    a("s_add_u32 s34, s34, 1")
    a("s_waitcnt vmcnt(0)")
    a("v_cmp_ne_u32 vcc, 1, v29")
    a("s_cmp_gt_u32 s34, %d" % SPIN_MAX)
    a("s_cbranch_scc1 %s_pzx" % name)
    a("s_cbranch_vccz %s_pzx" % name)
    a("s_sleep 8")
    a("s_branch %s_pz" % name)
    a.label("%s_pzx" % name)
    a("v_mov_b32 v27, 1")
    a("ds_write_b32 v26, v27 offset:4")
    a("s_branch %s_pgo" % name)
    a.label("%s_pl" % name)
    a("ds_read_b32 v27, v26 offset:4")
    a("s_add_u32 s34, s34, 1")
    a("s_waitcnt lgkmcnt(0)")
    a("v_readfirstlane_b32 s36, v27")
    a("s_cmp_gt_u32 s34, %d" % (SPIN_MAX * 20))
    a("s_cbranch_scc1 %s_pgo" % name)
    a("s_cmp_lg_u32 s36, 0")
    a("s_cbranch_scc1 %s_pgo" % name)
    a("s_sleep 2")
    a("s_branch %s_pl" % name)
    a.label("%s_pgo" % name)
    stamp(a, 8)
    for g in range(4):
        a("s_add_u32 s35, s24, %d" % (g * SLOT + TREG))
        a("s_mov_b32 m0, s35")
        a("s_add_u32 s36, s27, %d" % (18432 * g))
        a("s_add_u32 s37, s36, s32")
        for n in range(4):
            a("buffer_load_dwordx4 v14, s[12:15], s36 offen offset:%d sc1 lds" % (n * 1024))
        a("s_add_u32 s35, s35, s32")
        a("s_mov_b32 m0, s35")
        a("s_mov_b64 exec, 0xffffffff")
        a("buffer_load_dwordx4 v14, s[12:15], s37 offen sc1 lds")
        a("s_mov_b64 exec, -1")
    a("s_add_u32 s26, s26, 512")
    a("s_add_u32 s27, s27, %d" % (4 * 18432))
    a("s_mov_b32 s33, 0")
    a("s_lshl_b32 s43, s2, 2")
    a("s_add_u32 s43, s43, s3")
    a("s_and_b32 s53, s43, 1")
    a("s_sub_u32 s36, s43, 448")
    a("s_lshr_b32 s37, s43, 1")
    a("s_cmp_ge_u32 s43, 896")
    a("s_cselect_b32 s43, s36, s37")
    a("s_cselect_b32 s53, 2, s53")
    a("s_waitcnt vmcnt(15)")
    a("s_barrier")
    a("s_waitcnt vmcnt(10)")
    a("s_barrier")
    a("s_waitcnt vmcnt(5)")
    a("s_barrier")
    a("s_mov_b32 s34, 4")
    def issue2():
        a("s_add_u32 s35, s33, s24")
        a("s_mov_b32 m0, s35")
        a("s_add_u32 s36, s35, %d" % TREG)
        for n in range(4):
            a("buffer_load_dwordx4 v%d, s[8:11], s26 offen offset:%d lds" % (10 + n, n * 1024))
        a("s_mov_b32 m0, s36")
        a("s_add_u32 s37, s27, s32")
        for n in range(4):
            a("buffer_load_dwordx4 v14, s[12:15], s27 offen offset:%d sc1 lds" % (n * 1024))
        a("s_add_u32 s36, s36, s32")
        a("s_mov_b32 m0, s36")
        a("s_mov_b64 exec, 0xffffffff")
        a("buffer_load_dwordx4 v14, s[12:15], s37 offen sc1 lds")
        a("s_mov_b64 exec, -1")
        a("s_add_u32 s26, s26, 128")
        a("s_add_u32 s27, s27, 18432")
        a("s_add_u32 s33, s33, %d" % SLOT)
        a("s_cmp_eq_u32 s33, %d" % (R * SLOT))
        a("s_cselect_b32 s33, 0, s33")
    a.label("%s_lloop" % name)
    issue2()
    a("s_cmp_eq_u32 s34, 18")
    a("s_cbranch_scc1 %s_hk1" % name)
    a("s_cmp_eq_u32 s34, 21")
    a("s_cbranch_scc1 %s_hk2" % name)
    a("s_waitcnt vmcnt(9)")
    a.label("%s_lcont" % name)
    a("s_barrier")
    a("s_add_u32 s34, s34, 1")
    a("s_cmp_lt_u32 s34, 32")
    a("s_cbranch_scc1 %s_lloop" % name)
    a("s_branch %s_ldone" % name)
    a.label("%s_hk1" % name)
    a("v_and_b32 v28, 15, v2")
    a("v_lshlrev_b32 v28, 2, v28")
    a("buffer_load_dword v29, v28, s[60:63], 0 offen sc1")
    a("s_waitcnt vmcnt(10)")
    a("s_branch %s_lcont" % name)
    a.label("%s_hk2" % name)
    a("s_mov_b32 s52, 0")
    a.label("%s_hk2l" % name)
    a("v_cmp_gt_u32 vcc, 16, v29")
    a("s_add_u32 s52, s52, 1")
    a("s_cmp_gt_u32 s52, %d" % SPIN_MAX)
    a("s_cbranch_scc1 %s_hk2g" % name)
    a("s_cbranch_vccz %s_hk2g" % name)
    a("s_sleep 16")
    a("buffer_load_dword v29, v28, s[60:63], 0 offen sc1")
    a("s_waitcnt vmcnt(0)")
    a("s_branch %s_hk2l" % name)
    a.label("%s_hk2g" % name)
    nconv = emit_conv_loads(a, " sc1")
    a("s_waitcnt vmcnt(%d)" % (9 + nconv))
    a("s_branch %s_lcont" % name)
    a.label("%s_ldone" % name)
    a("s_waitcnt vmcnt(0)")
    a("s_barrier")
    a("s_mov_b32 s26, s53")
    a("s_and_b32 s27, s3, 1")
    a("s_mul_i32 s27, s27, %d" % CJ_SIZE)
    a("s_lshr_b32 s36, s3, 1")
    a("s_mul_i32 s36, s36, %d" % SLOT)
    a("s_add_u32 s27, s27, s36")
    a("s_add_u32 s27, s27, %d" % RB)
    def mid():
        a("s_barrier")
        a("s_setprio 0")
    sv = set(DBG); DBG.discard("stamp")
    emit_conv_job(a, name, mid)
    DBG.update(sv)
    G.stamp_rt(a, 1)
    a.label("%s_end" % name)
    a("s_endpgm")
    return a.text(), kernel_desc(name, 256, 256), (name, 256, 512, LDSB)

def gen_k1i(name="k1_kernel", R=4):
    a = Asm()
    RB = 4096; SLOT = 34816; TREG = 16384; FS = 288; RST = 0
    LDSB = RB + R * SLOT
    def capture(f, *args):
        lb = len(a.lines); f(*args); out = a.lines[lb:]; del a.lines[lb:]; return out
    kernel_begin(a, name)
    a("s_load_dwordx2 s[80:81], s[0:1], 0")
    a("s_load_dwordx2 s[4:5], s[0:1], 56")
    a("s_load_dwordx2 s[6:7], s[0:1], 104")
    a("s_load_dwordx2 s[18:19], s[0:1], 96")
    a("s_cmp_ge_u32 s2, 256")
    a("s_cbranch_scc1 %s_end" % name)
    a("v_lshrrev_b32 v1, 6, v0")
    a("v_and_b32 v2, 63, v0")
    a("v_readfirstlane_b32 s3, v1")
    G2.tile_ij(a)
    a("s_lshr_b32 s98, s3, 2")
    a("s_mov_b32 s54x, 0".replace("s54x", "s99"))
    a("s_and_b32 s3, s3, 3")
    a("s_lshr_b32 s24, s3, 1")
    a("s_and_b32 s25, s3, 1")
    a("v_and_b32 v3, 15, v2")
    VT = 204; VF = 208
    def loader_setup():
        a("v_lshrrev_b32 v5, 3, v2")
        a("v_and_b32 v4, 7, v2")
        a("s_lshl_b32 s36, s3, 5")
        a("v_add_u32 v5, s36, v5")
        a("v_lshrrev_b32 v7, 4, v2")
        a("v_xor_b32 v7, v7, v4")
        a("v_mul_u32_u24 v6, 1152, v5")
        a("v_lshl_add_u32 v%d, v7, 4, v6" % VT)
        a("v_xor_b32 v%d, 64, v%d" % (VT + 1, VT))
        a("v_add_u32 v%d, %d, v%d" % (VT + 1, 9216 - 1024, VT + 1))
        a("v_add_u32 v%d, %d, v%d" % (VT + 2, 2 * (9216 - 1024), VT))
        a("v_add_u32 v%d, %d, v%d" % (VT + 3, 2 * (9216 - 1024), VT + 1))
        a("s_lshl_b32 s84, s3, 12")
        a("s_add_u32 s84, s84, %d" % RB)
        a("s_lshl_b32 s85, s3, 9")
        a("s_add_u32 s85, s85, %d" % (RB + TREG + 16384))
    def loader_setup2():
        for n in range(5):
            if n < 4:
                a("s_lshl_b32 s36, s3, 8")
                a("s_add_u32 s36, s36, %d" % (64 * n))
            else:
                a("s_lshl_b32 s36, s3, 5")
                a("s_add_u32 s36, s36, 1024")
            a("v_add_u32 v6, s36, v2")
            a("v_mul_u32_u24 v7, 3641, v6")
            a("v_lshrrev_b32 v7, 16, v7")
            a("v_mul_u32_u24 v8, 18, v7")
            a("v_sub_u32 v8, v6, v8")
            a("v_and_b32 v9, 35, v7")
            a("v_bfe_u32 v6, v7, 2, 2")
            a("v_lshl_add_u32 v9, v6, 3, v9")
            a("v_bfe_u32 v6, v7, 4, 1")
            a("v_lshl_add_u32 v9, v6, 2, v9")
            a("v_mul_u32_u24 v9, 9216, v9")
            a("v_lshl_add_u32 v%d, v8, 4, v9" % (VF + n))
            if 0 < n < 4: a("v_subrev_u32 v%d, %d, v%d" % (VF + n, 1024 * n, VF + n))
    def issueT(g):
        st = g % 9
        a("s_add_u32 s86, s84, %d" % ((g % R) * SLOT))
        a("s_mov_b32 m0, s86")
        a("s_add_u32 s87, s82, %d" % (128 * st))
        for n in range(4):
            a("buffer_load_dwordx4 v%d, s[28:31], s87 offen offset:%d lds" % (VT + n, 1024 * n))
    def issueF(g):
        st = g % 9
        a("s_add_u32 s86, s84, %d" % ((g % R) * SLOT + TREG))
        a("s_mov_b32 m0, s86")
        a("s_add_u32 s87, s83, %d" % (64 * 9216 * st + (4608 if g < 9 else 0)))
        for n in range(4):
            a("buffer_load_dwordx4 v%d, s[8:11], s87 offen offset:%d lds" % (VF + n, 1024 * n))
        a("s_add_u32 s86, s85, %d" % ((g % R) * SLOT))
        a("s_mov_b32 m0, s86")
        a("s_mov_b64 exec, 0xffffffff")
        a("buffer_load_dwordx4 v%d, s[8:11], s87 offen lds" % (VF + 4))
        a("s_mov_b64 exec, -1")
    def srds_main():
        srd(a, 28, 80, 2048 * 576 * 2)
        srd(a, 8, 4, 576 * 4608 * 2)
        srd(a, 12, 6, WS_BYTES)
        srd(a, 60, 18, 256)
        a("s_mul_i32 s82, s22, %d" % (128 * 1152))
        a("s_mul_i32 s83, s23, 288")
    ACC = 128; FB = [16, 52]; CS = 216; ONE = 236
    vTa = [4, 5]; vTb = [6, 7]; vF = 8; vFh = 9
    bTa = [88, 89]; bTb = [90, 91]; bF = 92; bFh = 93
    def mma_setup():
        a("v_lshrrev_b32 v10, 4, v2")
        a("v_lshrrev_b32 v11, 1, v3")
        a("v_xor_b32 v10, v10, v11")
        a("v_lshlrev_b32 v10, 4, v10")
        a("v_lshl_add_u32 v10, v3, 7, v10")
        a("s_lshl_b32 s26, s24, 13")
        a("s_add_u32 s26, s26, %d" % RB)
        a("v_add_u32 v10, s26, v10")
        a("s_lshl_b32 s26, s25, 12")
        a("v_add_u32 v%d, s26, v10" % bTa[0])
        a("s_xor_b32 s26, s26, 4096")
        a("v_add_u32 v%d, s26, v10" % bTb[0])
        a("v_xor_b32 v%d, 64, v%d" % (bTa[1], bTa[0]))
        a("v_xor_b32 v%d, 64, v%d" % (bTb[1], bTb[0]))
        a("v_lshrrev_b32 v10, 2, v2")
        a("v_mul_u32_u24 v10, %d, v10" % FS)
        a("v_and_b32 v11, 3, v2")
        a("v_lshl_add_u32 v10, v11, 3, v10")
        a("v_add_u32 v10, %d, v10" % (RB + TREG))
        a("s_mul_i32 s26, s25, 160")
        a("v_add_u32 v%d, s26, v10" % bF)
        a("v_add_u32 v%d, 128, v10" % bFh)
        for r in range(ACC, ACC + 72): a("v_mov_b32 v%d, 0" % r)
        for r in range(CS, CS + 20): a("v_mov_b32 v%d, 0" % r)
        for r in range(ONE, ONE + 4): a("v_mov_b32 v%d, 0x3f803f80" % r)
    def mma_addr(slot):
        a("s_mov_b32 s27, %d" % (slot * SLOT))
        for d, s_ in ((vTa[0], bTa[0]), (vTb[0], bTb[0]), (vTa[1], bTa[1]), (vTb[1], bTb[1]), (vF, bF), (vFh, bFh)):
            a("v_add_u32 v%d, s27, v%d" % (d, s_))
    core = G.Core(a, ACC, FB[0], FB[1], FS, TREG, vTa, vTb, vF, vFh)
    trk = core.trk
    a("s_cmp_eq_u32 s98, 0")
    a("s_cbranch_scc1 %s_A0" % name)
    a("s_setprio 3")
    loader_setup()
    a("s_waitcnt lgkmcnt(0)")
    srds_main()
    vm = VmTracker(a)
    def issue(g, vmx):
        issueT(g); issueF(g); vmx.issue("S%d" % g, 9)
    issueT(0)
    loader_setup2()
    issueF(0); vm.issue("S0", 9)
    issue(1, vm); issue(2, vm); issue(3, vm)
    a("s_add_u32 s3, s3, 4"); stamp_setup(a, 1); stamp(a, 0); a("s_sub_u32 s3, s3, 4")
    for r in range(ONE, ONE + 4): a("v_mov_b32 v%d, 0x3f803f80" % r)
    RA = 96; XB = 112
    for r in range(RA, RA + 16): a("v_mov_b32 v%d, 0" % r)
    a("v_lshrrev_b32 v10, 4, v2")
    a("v_lshrrev_b32 v11, 1, v3")
    a("v_xor_b32 v10, v10, v11")
    a("v_lshlrev_b32 v10, 4, v10")
    a("v_lshl_add_u32 v10, v3, 7, v10")
    a("v_add_u32 v12, s84, v10")
    a("v_xor_b32 v13, 64, v12")
    def rs_rd(g):
        a("v_add_u32 v10, %d, v12" % ((g % R) * SLOT))
        a("v_add_u32 v11, %d, v13" % ((g % R) * SLOT))
        for h in range(2):
            for n in range(2):
                a("ds_read_b128 %s, v%d offset:%d" % (vr(XB + 8 * h + 4 * n), 10 + h, 2048 * n))
    def rs_do():
        for h in range(2):
            for n in range(2):
                x = XB + 8 * h + 4 * n
                a("v_mfma_f32_16x16x32_bf16 %s, %s, %s, %s" % (vr(RA + 4 * n), vr(ONE), vr(x), vr(RA + 4 * n)))
                a("v_mfma_f32_16x16x32_bf16 %s, %s, %s, %s" % (vr(RA + 8 + 4 * n), vr(x), vr(x), vr(RA + 8 + 4 * n)))
    def interleave(dma, comp, vmx=None):
        groups = []; cur = []
        for l in dma:
            cur.append(l)
            if "buffer_load" in l and not any("exec, 0xffffffff" in x for x in cur[-2:]):
                groups.append(cur); cur = []
            elif "exec, -1" in l:
                groups.append(cur); cur = []
        if cur: groups.append(cur)
        ns = max(1, len(groups))
        per = (len(comp) + ns - 1) // ns
        for g in groups:
            a.lines.extend(g)
            a.lines.extend(comp[:per]); comp = comp[per:]
        a.lines.extend(comp)
    vm.wait(["S0"])
    a("s_barrier")
    stamp(a, 1)
    rs_rd(0)
    vm.wait(["S1"])
    a("s_barrier")
    for k in range(9):
        a("s_waitcnt lgkmcnt(0)")
        dma = capture(lambda: (issueT(k + 3), issueF(k + 3))) if (k >= 1 and k + 3 < 9) else []
        interleave(dma, capture(rs_do))
        if k >= 1 and k + 3 < 9: vm.issue("S%d" % (k + 3), 9)
        if k < 8:
            rs_rd(k + 1)
        else:
            a("s_nop 7")
            a("v_lshrrev_b32 v10, 4, v2")
            a("v_lshrrev_b32 v11, 2, v3")
            a("v_and_b32 v12, 3, v3")
            for n in range(2):
                G_ = RA + 8 + 4 * n
                for r in range(1, 4):
                    a("v_cmp_eq_u32 vcc, %d, v12" % r)
                    a("s_nop 1")
                    a("v_cndmask_b32 v%d, v%d, v%d, vcc" % (G_, G_, G_ + r))
            ML = 112
            for n in range(2):
                emit_ln_finish(a, RA + 4 * n, RA + 8 + 4 * n, 576, ML + 2 * n, ML + 2 * n + 1, 120)
                a("v_mov_b32 v%d, v%d" % (117 + 2 * n, ML + 2 * n + 1))
                a("v_sub_f32 v%d, 0, v%d" % (116 + 2 * n, ML + 2 * n))
            a("s_lshl_b32 s35, s3, 8")
            a("v_lshlrev_b32 v13, 3, v3")
            a("v_add_u32 v12, s35, v13")
            a("v_cmp_eq_u32 vcc, v10, v11")
            a("s_and_saveexec_b64 s[36:37], vcc")
            for n in range(2):
                a("ds_write_b64 v12, %s offset:%d" % (vr(116 + 2 * n, 2), RST + 128 * n))
            a("s_mov_b64 exec, s[36:37]")
            a("s_cmp_lg_u32 s23, 0")
            a("s_cbranch_scc1 %s_nost1" % name)
            a("s_lshl_b32 s35, s22, 7")
            a("s_lshl_b32 s36, s3, 5")
            a("s_add_u32 s35, s35, s36")
            a("s_lshl_b32 s35, s35, 3")
            a("s_add_u32 s35, s35, 0x%x" % STATS1)
            a("v_mov_b32 v11, 0x7ffffff0")
            a("v_cndmask_b32 v13, v11, v13, vcc")
            for n in range(2):
                a("buffer_store_dwordx2 %s, v13, s[12:15], s35 offen offset:%d" % (vr(ML + 2 * n, 2), 128 * n))
            a.label("%s_nost1" % name)
        if k < 8:
            vm.wait(["S%d" % (k + 2)])
            a("s_barrier")
    a("s_waitcnt lgkmcnt(0)")
    a("s_barrier")
    a("s_load_dwordx4 s[64:67], s[0:1], 8")
    a("s_load_dwordx2 s[76:77], s[0:1], 24")
    a("s_load_dwordx2 s[90:91], s[0:1], 64")
    a("s_mul_i32 s36, s3, 13312")
    a("s_add_u32 s36, s36, %d" % RB)
    a("v_lshlrev_b32 v10, 4, v2")
    a("v_add_u32 v11, s36, v10")
    a("s_waitcnt lgkmcnt(0)")
    srd(a, 68, 66, 2048 * 576 * 2)
    a("s_mov_b32 s88, s64"); a("s_mov_b32 s89, s65")
    srd(a, 64, 88, 2048 * 576 * 2)
    srd(a, 72, 76, 576 * 8)
    srd(a, 92, 90, 2048 * 2048 * 2)
    a("s_barrier")
    n_ = 0
    for ft in range(4):
        for tt in range(2):
            a("ds_read_b128 %s, v11 offset:%d" % (vr(core.accr(ft, tt)), 1024 * n_)); n_ += 1
    for ft in range(4):
        a("ds_read_b128 %s, v11 offset:%d" % (vr(CS + 4 * ft), 1024 * n_)); n_ += 1
    a("s_branch %s_epi" % name)
    a.label("%s_A0" % name)
    emit_code_prefetch(a, name)
    a("s_load_dwordx4 s[64:67], s[0:1], 8")
    a("s_load_dwordx2 s[76:77], s[0:1], 24")
    a("s_load_dwordx2 s[90:91], s[0:1], 64")
    mma_setup()
    a("s_waitcnt lgkmcnt(0)")
    srds_main()
    srd(a, 68, 66, 2048 * 576 * 2)
    a("s_mov_b32 s88, s64"); a("s_mov_b32 s89, s65")
    srd(a, 64, 88, 2048 * 576 * 2)
    srd(a, 72, 76, 576 * 8)
    srd(a, 92, 90, 2048 * 2048 * 2)
    stamp_setup(a, 1); stamp(a, 0)
    def gran_addr():
        a("v_lshrrev_b32 v10, 4, v2")
        a("s_lshl_b32 s36, s25, 1")
        a("v_add_u32 v11, s36, v10")
        a("v_and_b32 v11, 3, v11")
        a("v_lshl_add_u32 v11, v11, 4, v3")
        a("v_lshlrev_b32 v94, 8, v11")
        a("s_lshl_b32 s59, s22, 7")
        a("s_lshl_b32 s36, s24, 6")
        a("s_add_u32 s59, s59, s36")
        a("s_lshl_b32 s59, s59, 8")
        a("s_add_u32 s59, s59, 0x%x" % STATS2)
        a("s_lshl_b32 s36, s23, 1")
        a("s_add_u32 s36, s36, s25")
        a("s_lshl_b32 s36, s36, 3")
        a("s_add_u32 s58, s36, s59")
    gran_addr()
    a("v_mov_b32 v12, 0"); a("v_mov_b32 v13, 0x80000000")
    a("buffer_store_dwordx2 v[12:13], v94, s[12:15], s58 offen sc1")
    mma_addr(0)
    a("s_mov_b32 s33, 0")
    a("s_barrier")
    stamp(a, 1)
    a.label("%s_mma" % name)
    core.prime(0, core.reads(0, 0))
    trk.drain()
    def mfmas(buf):
        L = []
        for ft in range(5):
            A = core.F(buf, ft)
            for tt in range(4 if ft < 4 else 2):
                c = core.accr(ft, tt); B = core.T(buf, tt)
                L.append(("v_mfma_f32_16x16x32_bf16 %s, %s, %s, %s" % (vr(c), vr(A), vr(B), vr(c)), list(range(A, A + 4)) + list(range(B, B + 4))))
            L.append(("v_mfma_f32_16x16x32_bf16 %s, %s, %s, %s" % (vr(CS + 4 * ft), vr(A), vr(ONE), vr(CS + 4 * ft)), list(range(A, A + 4))))
        return L
    def phase(buf, pend):
        for (m, regs) in mfmas(buf):
            trk.need(regs)
            a(m)
            while pend:
                k, t = pend.pop(0)
                if k == "x":
                    a(t)
                    if t.startswith("s_"): continue
                else:
                    a(t[0]); trk.issue(t[1])
                break
        for k, t in pend:
            if k == "x": a(t)
            else: a(t[0]); trk.issue(t[1])
    def iteration():
        a("s_waitcnt vmcnt(0)")
        a("s_barrier")
        rd = [("r", t) for t in core.reads(1, 1)]
        upd = ["s_add_u32 s27, s27, %d" % SLOT, "s_cmp_eq_u32 s27, %d" % (R * SLOT), "s_cselect_b32 s27, 0, s27"]
        tail = ["v_add_u32 v%d, s27, v%d" % (d, s_) for d, s_ in ((vTa[0], bTa[0]), (vF, bF), (vTb[0], bTb[0]), (vFh, bFh))]
        phase(0, rd[:1] + [("x", u) for u in upd] + rd[1:] + [("x", u) for u in tail])
        rd = [("r", t) for t in core.reads(0, 0)]
        tail = ["v_add_u32 v%d, s27, v%d" % (d, s_) for d, s_ in ((vTa[1], bTa[1]), (vTb[1], bTb[1]))] + ["s_add_u32 s33, s33, 1"]
        phase(1, rd + [("x", u) for u in tail])
    a.label("%s_cloop" % name)
    lb = len(a.lines); iteration(); st = copy.deepcopy(trk.out); del a.lines[lb:]; trk.out = copy.deepcopy(st)
    iteration()
    assert [sorted(x) for x in trk.out] == [sorted(x) for x in st]
    a("s_cmp_lt_u32 s33, 9")
    a("s_cbranch_scc1 %s_cloop" % name)
    trk.drain()
    stamp(a, 2)
    a("s_waitcnt vmcnt(0)")
    a("s_barrier")
    a("s_cmp_lg_u32 s3, 0")
    a("s_cbranch_scc1 %s_nosig" % name)
    a("v_mov_b32 v10, 1")
    a("s_lshl_b32 s36, s22, 2")
    a("v_mov_b32 v11, s36")
    a("s_mov_b64 exec, 1")
    a("buffer_atomic_add v10, v11, s[60:63], 0 offen sc1")
    a("s_mov_b64 exec, -1")
    a.label("%s_nosig" % name)
    a("s_mul_i32 s36, s3, 13312")
    a("s_add_u32 s36, s36, %d" % RB)
    a("v_lshlrev_b32 v10, 4, v2")
    a("v_add_u32 v11, s36, v10")
    n_ = 0
    for ft in range(4):
        for tt in range(2):
            a("ds_write_b128 v11, %s offset:%d" % (vr(core.accr(ft, tt + 2)), 1024 * n_)); n_ += 1
    for ft in range(4):
        a("ds_write_b128 v11, %s offset:%d" % (vr(CS + 4 * ft), 1024 * n_)); n_ += 1
    a("s_waitcnt lgkmcnt(0)")
    a("s_barrier")
    a.label("%s_epi" % name)
    MR = 100; T = 72; ZP = 200
    gelu_consts(a)
    a("s_xor_b32 s52, s98, s25")
    a("s_lshl_b32 s36, s24, 9")
    a("s_lshl_b32 s37, s52, 8")
    a("s_add_u32 s38, s36, s37")
    a("v_lshlrev_b32 v10, 3, v3")
    a("v_add_u32 v11, s38, v10")
    a("ds_read_b64 %s, v11 offset:%d" % (vr(MR, 2), RST))
    a("ds_read_b64 %s, v11 offset:%d" % (vr(MR + 2, 2), RST + 128))
    a("s_lshl_b32 s41, s2, 1")
    a("s_add_u32 s41, s41, s98")
    a("v_and_b32 v0, 255, v0")
    a("s_cmp_ge_u32 s41, 288")
    a("s_cbranch_scc1 %s_nokv1" % name)
    emit_kv_loads(a)
    a.label("%s_nokv1" % name)
    S = [108, 110]; Q = [109, 111]
    for r_ in range(108, 112): a("v_mov_b32 v%d, 0" % r_)
    a("s_waitcnt lgkmcnt(0)")
    ZPf = lambda n: (240 + 2 * n) if n < 8 else (196 + 2 * (n - 8))
    def dots(lst):
        for d in range(2):
            for (ft, tt) in lst:
                p = ZPf(2 * ft + tt) + d
                a("v_dot2_f32_bf16 v%d, v%d, v%d, v%d" % (S[tt], p, ONE, S[tt]))
                a("v_dot2_f32_bf16 v%d, v%d, v%d, v%d" % (Q[tt], p, p, Q[tt]))
    a("s_cmp_lg_u32 s98, 0")
    a("s_cbranch_scc1 %s_nohalf" % name)
    lst = [(4, 0), (4, 1)]
    emit_fold_gelu(a, [(core.accr(ft, tt), CS + 4 * ft, MR + 2 * tt, ZPf(2 * ft + tt)) for ft, tt in lst], T)
    dots(lst)
    a.label("%s_nohalf" % name)
    for f0 in (0, 2):
        lst = [(ft, tt) for ft in (f0, f0 + 1) for tt in range(2)]
        emit_fold_gelu(a, [(core.accr(ft, tt), CS + 4 * ft, MR + 2 * tt, ZPf(2 * ft + tt)) for ft, tt in lst], T)
        dots(lst)
    a("s_nop 2")
    emit_xg_reduce(a, S + Q, 72)
    a("s_lshl_b32 s59, s22, 7")
    a("s_lshl_b32 s36, s24, 6")
    a("s_add_u32 s59, s59, s36")
    a("s_lshl_b32 s36, s52, 5")
    a("s_add_u32 s59, s59, s36")
    a("s_lshl_b32 s59, s59, 8")
    a("s_add_u32 s59, s59, 0x%x" % STATS2)
    a("s_lshl_b32 s36, s23, 1")
    a("s_add_u32 s36, s36, s25")
    a("s_lshl_b32 s36, s36, 3")
    a("s_add_u32 s58, s36, s59")
    a("v_lshrrev_b32 v10, 4, v2")
    a("v_lshlrev_b32 v11, 8, v2")
    a("v_cmp_gt_u32 vcc, 32, v2")
    a("v_mov_b32 v12, 0x7ffffff0")
    a("v_cmp_eq_u32 s[36:37], 1, v10")
    a("v_cndmask_b32 v11, v12, v11, vcc")
    a("s_nop 0")
    a("v_cndmask_b32 v108, v108, v110, s[36:37]")
    a("v_cndmask_b32 v109, v109, v111, s[36:37]")
    a("v_and_b32 v109, 0x7fffffff, v109")
    a("buffer_store_dwordx2 v[108:109], v11, s[12:15], s58 offen sc1")
    a("s_setprio 0")
    stamp(a, 3)
    a("s_lshl_b32 s33, s22, 2")
    a("v_mov_b32 v165, s33")
    a("buffer_load_dword v164, v165, s[60:63], 0 offen sc1")
    PB = 128
    a("v_lshlrev_b32 v4, 8, v3")
    a("v_lshl_add_u32 v4, v10, 6, v4")
    a("s_add_u32 s53, s59, 4096")
    a("s_cmp_ge_u32 s41, 288")
    a("s_cbranch_scc1 %s_nokv2" % name)
    a("s_waitcnt vmcnt(2)")
    emit_kv_compute(a, wait=False, store=False)
    a.label("%s_nokv2" % name)
    stamp(a, 4)
    a("s_mov_b32 s40, 0")
    a.label("%s_chk" % name)
    a("s_waitcnt vmcnt(0)")
    for tt in range(2):
        for q in range(4):
            a("buffer_load_dwordx4 %s, v4, s[12:15], s%d offen offset:%d sc1" % (vr(PB + 16 * tt + 4 * q), (59, 53)[tt], 16 * q))
    a("v_subrev_u32 v11, 16, v164")
    a("s_waitcnt vmcnt(0)")
    for r in range(PB + 1, PB + 32, 4):
        a("v_or3_b32 v11, v11, v%d, v%d" % (r, r + 2))
    a("v_cmp_gt_i32 vcc, 0, v11")
    a("s_add_u32 s40, s40, 1")
    a("s_cmp_gt_u32 s40, %d" % SPIN_MAX)
    a("s_cbranch_scc1 %s_ok" % name)
    a("s_cbranch_vccz %s_ok" % name)
    a("s_sleep 24")
    a("buffer_load_dword v164, v165, s[60:63], 0 offen sc1")
    a("s_branch %s_chk" % name)
    a.label("%s_ok" % name)
    stamp(a, 5)
    a("v_lshrrev_b32 v10, 4, v2")
    a("v_lshlrev_b32 v5, 12, v10")
    a("v_lshl_add_u32 v5, v3, 4, v5")
    a("s_lshl_b32 s33, s22, 7")
    a("s_lshl_b32 s36, s3, 5")
    a("s_add_u32 s33, s33, s36")
    a("s_lshl_b32 s36, s98, 4")
    a("s_add_u32 s33, s33, s36")
    a("s_lshl_b32 s33, s33, 12")
    a("s_lshl_b32 s36, s23, 8")
    a("s_add_u32 s33, s33, s36")
    for n in range(4):
        a("buffer_load_dwordx4 v[168:171], v5, s[92:95], s33 offen")
        if n < 3: a("s_add_u32 s33, s33, 16384")
    a("s_cmp_ge_u32 s41, 288")
    a("s_cbranch_scc1 %s_nokv3" % name)
    a("s_mov_b32 s39, 0x%x" % KVT)
    a("buffer_store_dwordx4 v[120:123], v12, s[12:15], s39 offen")
    a("buffer_store_dwordx4 v[124:127], v13, s[12:15], s39 offen")
    a.label("%s_nokv3" % name)
    for tt in range(2):
        b = PB + 16 * tt
        for st_ in (8, 4, 2):
            for q in range(0, st_, 2):
                a("v_pk_add_f32 %s, %s, %s" % (vr(b + q, 2), vr(b + q, 2), vr(b + q + st_, 2)))
    emit_xg_reduce(a, [PB + 16 * tt + e for tt in range(2) for e in range(2)], 72)
    for tt in range(2):
        b = PB + 16 * tt
        emit_ln_finish(a, b, b + 1, 2304, b + 2, MR + 2 * tt, b + 4)
        a("v_mul_f32 v%d, -v%d, v%d" % (MR + 2 * tt + 1, b + 2, MR + 2 * tt))
    a("v_lshrrev_b32 v11, 2, v2"); a("v_and_b32 v11, 1, v11"); a("v_lshlrev_b32 v11, 4, v11")
    a("v_lshrrev_b32 v5, 3, v2"); a("v_and_b32 v5, 1, v5"); a("v_lshl_add_u32 v11, v5, 2, v11")
    a("v_and_b32 v5, 3, v2"); a("v_add_u32 v11, v11, v5")
    a("v_mul_u32_u24 v11, 288, v11")
    a("v_lshrrev_b32 v5, 1, v10"); a("v_lshl_add_u32 v11, v5, 4, v11")
    a("v_and_b32 v5, 1, v10")
    a("v_lshl_add_u32 v6, v5, 5, v11")
    a("v_mul_u32_u24 v5, 2304, v5")
    a("v_add_u32 v9, v11, v5")
    a("s_lshl_b32 s33, s23, 5")
    a("s_lshl_b32 s36, s22, 1")
    a("s_add_u32 s33, s33, s36")
    a("s_add_u32 s33, s33, s24")
    a("s_mul_i32 s33, s33, 18432")
    if ZIMG: a("s_add_u32 s33, s33, 0x%x" % ZIMG)
    a("s_mul_i32 s36, s52, 9216")
    a("s_add_u32 s37, s33, s36")
    a("s_add_u32 s39, s37, 128")
    a("s_mul_i32 s36, s25, 160")
    a("s_add_u32 s37, s37, s36")
    def norm_pair(nA, ttA, nB, ttB, O):
        for q, (n, tt) in enumerate(((nA, ttA), (nB, ttB))):
            for d in range(2):
                z = ZPf(n) + d; t = T + 4 * q + 2 * d
                a("v_lshlrev_b32 v%d, 16, v%d" % (t, z))
                a("v_and_b32 v%d, 0xffff0000, v%d" % (t + 1, z))
        for q, (n, tt) in enumerate(((nA, ttA), (nB, ttB))):
            for d in range(2):
                t = T + 4 * q + 2 * d
                a("v_pk_fma_f32 %s, %s, %s, %s op_sel:[0,0,1] op_sel_hi:[1,0,1]" % (vr(t, 2), vr(t, 2), vr(MR + 2 * tt, 2), vr(MR + 2 * tt, 2)))
        for q in range(2):
            for d in range(2):
                t = T + 4 * q + 2 * d
                a("v_cvt_pk_bf16_f32 v%d, v%d, v%d" % (O + 2 * q + d, t, t + 1))
        a("s_nop 1")
        a("v_permlane16_swap_b32 v%d, v%d" % (O, O + 2))
        a("v_permlane16_swap_b32 v%d, v%d" % (O + 1, O + 3))
    cnt = 0
    for pr in range(2):
        for tt in range(2):
            O = 16 + 4 * cnt; cnt += 1
            norm_pair(2 * (2 * pr) + tt, tt, 2 * (2 * pr + 1) + tt, tt, O)
            a("s_nop 0")
            a("buffer_store_dwordx4 %s, v6, s[12:15], s37 offen offset:%d" % (vr(O), tt * 2304 + 64 * pr))
    a("s_cmp_lg_u32 s98, 0")
    a("s_cbranch_scc1 %s_fin" % name)
    O = 16 + 4 * cnt
    norm_pair(8, 0, 9, 1, O)
    a("s_nop 0")
    a("buffer_store_dwordx4 %s, v9, s[12:15], s39 offen" % vr(O))
    a.label("%s_fin" % name)
    stamp(a, 6)
    G.stamp_rt(a, 1)
    a.label("%s_end" % name)
    a("s_endpgm")
    return a.text(), kernel_desc(name, 256, 256), (name, 256, 512, LDSB)

def gen_k1j(name="k1_kernel", R=4):
    a = Asm()
    RB = 4096; SLOT = 34816; TREG = 16384; FS = 288; RST = 0
    LDSB = RB + R * SLOT
    def capture(f, *args):
        lb = len(a.lines); f(*args); out = a.lines[lb:]; del a.lines[lb:]; return out
    kernel_begin(a, name)
    a("s_load_dwordx2 s[80:81], s[0:1], 0")
    a("s_load_dwordx2 s[4:5], s[0:1], 56")
    a("s_load_dwordx2 s[6:7], s[0:1], 104")
    a("s_load_dwordx2 s[18:19], s[0:1], 96")
    a("s_cmp_ge_u32 s2, 256")
    a("s_cbranch_scc1 %s_end" % name)
    a("v_lshrrev_b32 v1, 6, v0")
    a("v_and_b32 v2, 63, v0")
    a("v_readfirstlane_b32 s3, v1")
    G2.tile_ij(a)
    a("s_lshr_b32 s98, s3, 2")
    a("s_mov_b32 s54x, 0".replace("s54x", "s99"))
    a("s_and_b32 s3, s3, 3")
    a("s_lshr_b32 s24, s3, 1")
    a("s_and_b32 s25, s3, 1")
    a("v_and_b32 v3, 15, v2")
    VT = 204; VF = 208
    def loader_setup():
        a("v_lshrrev_b32 v5, 3, v2")
        a("v_and_b32 v4, 7, v2")
        a("s_lshl_b32 s36, s3, 5")
        a("v_add_u32 v5, s36, v5")
        a("v_lshrrev_b32 v7, 4, v2")
        a("v_xor_b32 v7, v7, v4")
        a("v_mul_u32_u24 v6, 1152, v5")
        a("v_lshl_add_u32 v%d, v7, 4, v6" % VT)
        a("v_xor_b32 v%d, 64, v%d" % (VT + 1, VT))
        a("v_add_u32 v%d, %d, v%d" % (VT + 1, 9216 - 1024, VT + 1))
        a("v_add_u32 v%d, %d, v%d" % (VT + 2, 2 * (9216 - 1024), VT))
        a("v_add_u32 v%d, %d, v%d" % (VT + 3, 2 * (9216 - 1024), VT + 1))
        a("s_lshl_b32 s84, s3, 12")
        a("s_add_u32 s84, s84, %d" % RB)
        a("s_lshl_b32 s85, s3, 9")
        a("s_add_u32 s85, s85, %d" % (RB + TREG + 16384))
    def loader_setup2():
        for n in range(5):
            if n < 4:
                a("s_lshl_b32 s36, s3, 8")
                a("s_add_u32 s36, s36, %d" % (64 * n))
            else:
                a("s_lshl_b32 s36, s3, 5")
                a("s_add_u32 s36, s36, 1024")
            a("v_add_u32 v6, s36, v2")
            a("v_mul_u32_u24 v7, 3641, v6")
            a("v_lshrrev_b32 v7, 16, v7")
            a("v_mul_u32_u24 v8, 18, v7")
            a("v_sub_u32 v8, v6, v8")
            a("v_and_b32 v9, 35, v7")
            a("v_bfe_u32 v6, v7, 2, 2")
            a("v_lshl_add_u32 v9, v6, 3, v9")
            a("v_bfe_u32 v6, v7, 4, 1")
            a("v_lshl_add_u32 v9, v6, 2, v9")
            a("v_mul_u32_u24 v9, 9216, v9")
            a("v_lshl_add_u32 v%d, v8, 4, v9" % (VF + n))
            if 0 < n < 4: a("v_subrev_u32 v%d, %d, v%d" % (VF + n, 1024 * n, VF + n))
    def issueT(g):
        st = g % 9
        a("s_add_u32 s86, s84, %d" % ((g % R) * SLOT))
        a("s_mov_b32 m0, s86")
        a("s_add_u32 s87, s82, %d" % (128 * st))
        for n in range(4):
            a("buffer_load_dwordx4 v%d, s[28:31], s87 offen offset:%d lds" % (VT + n, 1024 * n))
    def issueF(g):
        st = g % 9
        a("s_add_u32 s86, s84, %d" % ((g % R) * SLOT + TREG))
        a("s_mov_b32 m0, s86")
        a("s_add_u32 s87, s83, %d" % (64 * 9216 * st + (4608 if g < 9 else 0)))
        for n in range(4):
            a("buffer_load_dwordx4 v%d, s[8:11], s87 offen offset:%d lds" % (VF + n, 1024 * n))
        a("s_add_u32 s86, s85, %d" % ((g % R) * SLOT))
        a("s_mov_b32 m0, s86")
        a("s_mov_b64 exec, 0xffffffff")
        a("buffer_load_dwordx4 v%d, s[8:11], s87 offen lds" % (VF + 4))
        a("s_mov_b64 exec, -1")
    def srds_main():
        srd(a, 28, 80, 2048 * 576 * 2)
        srd(a, 8, 4, 576 * 4608 * 2)
        srd(a, 12, 6, WS_BYTES)
        srd(a, 60, 18, 256)
        a("s_mul_i32 s82, s22, %d" % (128 * 1152))
        a("s_mul_i32 s83, s23, 288")
    ACC = 128; FB = [16, 52]; CS = 216; ONE = 236
    vTa = [4, 5]; vTb = [6, 7]; vF = 8; vFh = 9
    bTa = [88, 89]; bTb = [90, 91]; bF = 92; bFh = 93
    def mma_setup():
        a("v_lshrrev_b32 v10, 4, v2")
        a("v_lshrrev_b32 v11, 1, v3")
        a("v_xor_b32 v10, v10, v11")
        a("v_lshlrev_b32 v10, 4, v10")
        a("v_lshl_add_u32 v10, v3, 7, v10")
        a("s_lshl_b32 s26, s24, 13")
        a("s_add_u32 s26, s26, %d" % RB)
        a("v_add_u32 v10, s26, v10")
        a("s_lshl_b32 s26, s25, 12")
        a("v_add_u32 v%d, s26, v10" % bTa[0])
        a("s_xor_b32 s26, s26, 4096")
        a("v_add_u32 v%d, s26, v10" % bTb[0])
        a("v_xor_b32 v%d, 64, v%d" % (bTa[1], bTa[0]))
        a("v_xor_b32 v%d, 64, v%d" % (bTb[1], bTb[0]))
        a("v_lshrrev_b32 v10, 2, v2")
        a("v_mul_u32_u24 v10, %d, v10" % FS)
        a("v_and_b32 v11, 3, v2")
        a("v_lshl_add_u32 v10, v11, 3, v10")
        a("v_add_u32 v10, %d, v10" % (RB + TREG))
        a("s_mul_i32 s26, s25, 160")
        a("v_add_u32 v%d, s26, v10" % bF)
        a("v_add_u32 v%d, 128, v10" % bFh)
        for r in range(ACC, ACC + 72): a("v_mov_b32 v%d, 0" % r)
        for r in range(CS, CS + 20): a("v_mov_b32 v%d, 0" % r)
        for r in range(ONE, ONE + 4): a("v_mov_b32 v%d, 0x3f803f80" % r)
    def mma_addr(slot):
        a("s_mov_b32 s27, %d" % (slot * SLOT))
        for d, s_ in ((vTa[0], bTa[0]), (vTb[0], bTb[0]), (vTa[1], bTa[1]), (vTb[1], bTb[1]), (vF, bF), (vFh, bFh)):
            a("v_add_u32 v%d, s27, v%d" % (d, s_))
    core = G.Core(a, ACC, FB[0], FB[1], FS, TREG, vTa, vTb, vF, vFh)
    trk = core.trk
    a("s_cmp_eq_u32 s98, 0")
    a("s_cbranch_scc1 %s_A0" % name)
    a("s_setprio 3")
    loader_setup()
    a("s_waitcnt lgkmcnt(0)")
    srds_main()
    vm = VmTracker(a)
    def issue(g, vmx):
        issueT(g); issueF(g); vmx.issue("S%d" % g, 9)
    issueT(0)
    loader_setup2()
    issueF(0); vm.issue("S0", 9)
    issue(1, vm); issue(2, vm); issue(3, vm)
    a("s_add_u32 s3, s3, 4"); stamp_setup(a, 1); stamp(a, 0); a("s_sub_u32 s3, s3, 4")
    for r in range(ONE, ONE + 4): a("v_mov_b32 v%d, 0x3f803f80" % r)
    RA = 96; XB = 112
    for r in range(RA, RA + 16): a("v_mov_b32 v%d, 0" % r)
    a("v_lshrrev_b32 v10, 4, v2")
    a("v_lshrrev_b32 v11, 1, v3")
    a("v_xor_b32 v10, v10, v11")
    a("v_lshlrev_b32 v10, 4, v10")
    a("v_lshl_add_u32 v10, v3, 7, v10")
    a("v_add_u32 v12, s84, v10")
    a("v_xor_b32 v13, 64, v12")
    def rs_rd(g):
        a("v_add_u32 v10, %d, v12" % ((g % R) * SLOT))
        a("v_add_u32 v11, %d, v13" % ((g % R) * SLOT))
        for h in range(2):
            for n in range(2):
                a("ds_read_b128 %s, v%d offset:%d" % (vr(XB + 8 * h + 4 * n), 10 + h, 2048 * n))
    def rs_do():
        for h in range(2):
            for n in range(2):
                x = XB + 8 * h + 4 * n
                a("v_mfma_f32_16x16x32_bf16 %s, %s, %s, %s" % (vr(RA + 4 * n), vr(ONE), vr(x), vr(RA + 4 * n)))
                a("v_mfma_f32_16x16x32_bf16 %s, %s, %s, %s" % (vr(RA + 8 + 4 * n), vr(x), vr(x), vr(RA + 8 + 4 * n)))
    def interleave(dma, comp, vmx=None):
        groups = []; cur = []
        for l in dma:
            cur.append(l)
            if "buffer_load" in l and not any("exec, 0xffffffff" in x for x in cur[-2:]):
                groups.append(cur); cur = []
            elif "exec, -1" in l:
                groups.append(cur); cur = []
        if cur: groups.append(cur)
        ns = max(1, len(groups))
        per = (len(comp) + ns - 1) // ns
        for g in groups:
            a.lines.extend(g)
            a.lines.extend(comp[:per]); comp = comp[per:]
        a.lines.extend(comp)
    vm.wait(["S0"])
    a("s_barrier")
    stamp(a, 1)
    rs_rd(0)
    vm.wait(["S1"])
    a("s_barrier")
    for k in range(9):
        a("s_waitcnt lgkmcnt(0)")
        dma = capture(lambda: (issueT(k + 3), issueF(k + 3))) if (k >= 1 and k + 3 < 9) else []
        interleave(dma, capture(rs_do))
        if k >= 1 and k + 3 < 9: vm.issue("S%d" % (k + 3), 9)
        if k < 8:
            rs_rd(k + 1)
        else:
            a("s_nop 7")
            a("v_lshrrev_b32 v10, 4, v2")
            a("v_lshrrev_b32 v11, 2, v3")
            a("v_and_b32 v12, 3, v3")
            for n in range(2):
                G_ = RA + 8 + 4 * n
                for r in range(1, 4):
                    a("v_cmp_eq_u32 vcc, %d, v12" % r)
                    a("s_nop 1")
                    a("v_cndmask_b32 v%d, v%d, v%d, vcc" % (G_, G_, G_ + r))
            ML = 112
            for n in range(2):
                emit_ln_finish(a, RA + 4 * n, RA + 8 + 4 * n, 576, ML + 2 * n, ML + 2 * n + 1, 120)
                a("v_mov_b32 v%d, v%d" % (117 + 2 * n, ML + 2 * n + 1))
                a("v_sub_f32 v%d, 0, v%d" % (116 + 2 * n, ML + 2 * n))
            a("s_lshl_b32 s35, s3, 8")
            a("v_lshlrev_b32 v13, 3, v3")
            a("v_add_u32 v12, s35, v13")
            a("v_cmp_eq_u32 vcc, v10, v11")
            a("s_and_saveexec_b64 s[36:37], vcc")
            for n in range(2):
                a("ds_write_b64 v12, %s offset:%d" % (vr(116 + 2 * n, 2), RST + 128 * n))
            a("s_mov_b64 exec, s[36:37]")
            a("s_cmp_lg_u32 s23, 0")
            a("s_cbranch_scc1 %s_nost1" % name)
            a("s_lshl_b32 s35, s22, 7")
            a("s_lshl_b32 s36, s3, 5")
            a("s_add_u32 s35, s35, s36")
            a("s_lshl_b32 s35, s35, 3")
            a("s_add_u32 s35, s35, 0x%x" % STATS1)
            a("v_mov_b32 v11, 0x7ffffff0")
            a("v_cndmask_b32 v13, v11, v13, vcc")
            for n in range(2):
                a("buffer_store_dwordx2 %s, v13, s[12:15], s35 offen offset:%d" % (vr(ML + 2 * n, 2), 128 * n))
            a.label("%s_nost1" % name)
        if k < 8:
            vm.wait(["S%d" % (k + 2)])
            a("s_barrier")
    a("s_waitcnt lgkmcnt(0)")
    a("s_barrier")
    a("s_load_dwordx4 s[64:67], s[0:1], 8")
    a("s_load_dwordx2 s[76:77], s[0:1], 24")
    a("s_load_dwordx2 s[90:91], s[0:1], 64")
    a("s_mul_i32 s36, s3, 13312")
    a("s_add_u32 s36, s36, %d" % RB)
    a("v_lshlrev_b32 v10, 4, v2")
    a("v_add_u32 v11, s36, v10")
    a("s_waitcnt lgkmcnt(0)")
    srd(a, 68, 66, 2048 * 576 * 2)
    a("s_mov_b32 s88, s64"); a("s_mov_b32 s89, s65")
    srd(a, 64, 88, 2048 * 576 * 2)
    srd(a, 72, 76, 576 * 8)
    srd(a, 92, 90, 2048 * 2048 * 2)
    a("s_barrier")
    n_ = 0
    for ft in range(4):
        for tt in range(2):
            a("ds_read_b128 %s, v11 offset:%d" % (vr(core.accr(ft, tt)), 1024 * n_)); n_ += 1
    for ft in range(4):
        a("ds_read_b128 %s, v11 offset:%d" % (vr(CS + 4 * ft), 1024 * n_)); n_ += 1
    a("s_branch %s_epi" % name)
    a.label("%s_A0" % name)
    emit_code_prefetch(a, name)
    a("s_load_dwordx4 s[64:67], s[0:1], 8")
    a("s_load_dwordx2 s[76:77], s[0:1], 24")
    a("s_load_dwordx2 s[90:91], s[0:1], 64")
    mma_setup()
    a("s_waitcnt lgkmcnt(0)")
    srds_main()
    srd(a, 68, 66, 2048 * 576 * 2)
    a("s_mov_b32 s88, s64"); a("s_mov_b32 s89, s65")
    srd(a, 64, 88, 2048 * 576 * 2)
    srd(a, 72, 76, 576 * 8)
    srd(a, 92, 90, 2048 * 2048 * 2)
    stamp_setup(a, 1); stamp(a, 0)
    def gran_addr():
        a("v_lshrrev_b32 v10, 4, v2")
        a("s_lshl_b32 s36, s25, 1")
        a("v_add_u32 v11, s36, v10")
        a("v_and_b32 v11, 3, v11")
        a("v_lshl_add_u32 v11, v11, 4, v3")
        a("v_lshlrev_b32 v94, 8, v11")
        a("s_lshl_b32 s59, s22, 7")
        a("s_lshl_b32 s36, s24, 6")
        a("s_add_u32 s59, s59, s36")
        a("s_lshl_b32 s59, s59, 8")
        a("s_add_u32 s59, s59, 0x%x" % STATS2)
        a("s_lshl_b32 s36, s23, 1")
        a("s_add_u32 s36, s36, s25")
        a("s_lshl_b32 s36, s36, 3")
        a("s_add_u32 s58, s36, s59")
    mma_addr(0)
    a("s_mov_b32 s33, 0")
    a("s_barrier")
    stamp(a, 1)
    a.label("%s_mma" % name)
    core.prime(0, core.reads(0, 0))
    trk.drain()
    def mfmas(buf):
        L = []
        for ft in range(5):
            A = core.F(buf, ft)
            for tt in range(4 if ft < 4 else 2):
                c = core.accr(ft, tt); B = core.T(buf, tt)
                L.append(("v_mfma_f32_16x16x32_bf16 %s, %s, %s, %s" % (vr(c), vr(A), vr(B), vr(c)), list(range(A, A + 4)) + list(range(B, B + 4))))
            L.append(("v_mfma_f32_16x16x32_bf16 %s, %s, %s, %s" % (vr(CS + 4 * ft), vr(A), vr(ONE), vr(CS + 4 * ft)), list(range(A, A + 4))))
        return L
    def phase(buf, pend):
        for (m, regs) in mfmas(buf):
            trk.need(regs)
            a(m)
            while pend:
                k, t = pend.pop(0)
                if k == "x":
                    a(t)
                    if t.startswith("s_"): continue
                else:
                    a(t[0]); trk.issue(t[1])
                break
        for k, t in pend:
            if k == "x": a(t)
            else: a(t[0]); trk.issue(t[1])
    def iteration():
        a("s_waitcnt vmcnt(0)")
        a("s_barrier")
        rd = [("r", t) for t in core.reads(1, 1)]
        upd = ["s_add_u32 s27, s27, %d" % SLOT, "s_cmp_eq_u32 s27, %d" % (R * SLOT), "s_cselect_b32 s27, 0, s27"]
        tail = ["v_add_u32 v%d, s27, v%d" % (d, s_) for d, s_ in ((vTa[0], bTa[0]), (vF, bF), (vTb[0], bTb[0]), (vFh, bFh))]
        phase(0, rd[:1] + [("x", u) for u in upd] + rd[1:] + [("x", u) for u in tail])
        rd = [("r", t) for t in core.reads(0, 0)]
        tail = ["v_add_u32 v%d, s27, v%d" % (d, s_) for d, s_ in ((vTa[1], bTa[1]), (vTb[1], bTb[1]))] + ["s_add_u32 s33, s33, 1"]
        phase(1, rd + [("x", u) for u in tail])
    a.label("%s_cloop" % name)
    lb = len(a.lines); iteration(); st = copy.deepcopy(trk.out); del a.lines[lb:]; trk.out = copy.deepcopy(st)
    iteration()
    assert [sorted(x) for x in trk.out] == [sorted(x) for x in st]
    a("s_cmp_lt_u32 s33, 9")
    a("s_cbranch_scc1 %s_cloop" % name)
    trk.drain()
    stamp(a, 2)
    a("s_waitcnt vmcnt(0)")
    a("s_barrier")
    a("s_mul_i32 s36, s3, 13312")
    a("s_add_u32 s36, s36, %d" % RB)
    a("v_lshlrev_b32 v10, 4, v2")
    a("v_add_u32 v11, s36, v10")
    n_ = 0
    for ft in range(4):
        for tt in range(2):
            a("ds_write_b128 v11, %s offset:%d" % (vr(core.accr(ft, tt + 2)), 1024 * n_)); n_ += 1
    for ft in range(4):
        a("ds_write_b128 v11, %s offset:%d" % (vr(CS + 4 * ft), 1024 * n_)); n_ += 1
    a("s_waitcnt lgkmcnt(0)")
    a("s_barrier")
    a.label("%s_epi" % name)
    MR = 100; T = 72; ZP = 200
    gelu_consts(a)
    a("s_xor_b32 s52, s98, s25")
    a("s_lshl_b32 s36, s24, 9")
    a("s_lshl_b32 s37, s52, 8")
    a("s_add_u32 s38, s36, s37")
    a("v_lshlrev_b32 v10, 3, v3")
    a("v_add_u32 v11, s38, v10")
    a("ds_read_b64 %s, v11 offset:%d" % (vr(MR, 2), RST))
    a("ds_read_b64 %s, v11 offset:%d" % (vr(MR + 2, 2), RST + 128))
    a("s_lshl_b32 s41, s2, 1")
    a("s_add_u32 s41, s41, s98")
    a("v_and_b32 v0, 255, v0")
    a("s_cmp_ge_u32 s41, 288")
    a("s_cbranch_scc1 %s_nokv1" % name)
    emit_kv_loads(a)
    a.label("%s_nokv1" % name)
    S = [108, 110]; Q = [109, 111]
    for r_ in range(108, 112): a("v_mov_b32 v%d, 0" % r_)
    a("s_waitcnt lgkmcnt(0)")
    ZPf = lambda n: (240 + 2 * n) if n < 8 else (196 + 2 * (n - 8))
    def dots(lst):
        for d in range(2):
            for (ft, tt) in lst:
                p = ZPf(2 * ft + tt) + d
                a("v_dot2_f32_bf16 v%d, v%d, v%d, v%d" % (S[tt], p, ONE, S[tt]))
                a("v_dot2_f32_bf16 v%d, v%d, v%d, v%d" % (Q[tt], p, p, Q[tt]))
    a("s_cmp_lg_u32 s98, 0")
    a("s_cbranch_scc1 %s_nohalf" % name)
    lst = [(4, 0), (4, 1)]
    emit_fold_gelu(a, [(core.accr(ft, tt), CS + 4 * ft, MR + 2 * tt, ZPf(2 * ft + tt)) for ft, tt in lst], T)
    dots(lst)
    a.label("%s_nohalf" % name)
    for f0 in (0, 2):
        lst = [(ft, tt) for ft in (f0, f0 + 1) for tt in range(2)]
        emit_fold_gelu(a, [(core.accr(ft, tt), CS + 4 * ft, MR + 2 * tt, ZPf(2 * ft + tt)) for ft, tt in lst], T)
        dots(lst)
    a("s_nop 2")
    emit_xg_reduce(a, S + Q, 72)
    a("s_lshl_b32 s59, s22, 7")
    a("s_lshl_b32 s36, s24, 6")
    a("s_add_u32 s59, s59, s36")
    a("s_lshl_b32 s36, s52, 5")
    a("s_add_u32 s59, s59, s36")
    a("s_lshl_b32 s59, s59, 8")
    a("s_add_u32 s59, s59, 0x%x" % STATS2)
    a("s_lshl_b32 s36, s23, 1")
    a("s_add_u32 s36, s36, s25")
    a("s_lshl_b32 s36, s36, 3")
    a("s_add_u32 s58, s36, s59")
    a("v_lshrrev_b32 v10, 4, v2")
    a("v_lshlrev_b32 v11, 8, v2")
    a("v_cmp_gt_u32 vcc, 32, v2")
    a("v_mov_b32 v12, 0x7ffffff0")
    a("v_cmp_eq_u32 s[36:37], 1, v10")
    a("v_cndmask_b32 v11, v12, v11, vcc")
    a("s_nop 0")
    a("v_cndmask_b32 v108, v108, v110, s[36:37]")
    a("v_cndmask_b32 v109, v109, v111, s[36:37]")
    a("buffer_store_dwordx2 v[108:109], v11, s[12:15], s58 offen")
    a("s_setprio 0")
    stamp(a, 3)
    a("v_lshrrev_b32 v10, 4, v2")
    a("v_lshlrev_b32 v5, 12, v10")
    a("v_lshl_add_u32 v5, v3, 4, v5")
    a("s_lshl_b32 s33, s22, 7")
    a("s_lshl_b32 s36, s3, 5")
    a("s_add_u32 s33, s33, s36")
    a("s_lshl_b32 s36, s98, 4")
    a("s_add_u32 s33, s33, s36")
    a("s_lshl_b32 s33, s33, 12")
    a("s_lshl_b32 s36, s23, 8")
    a("s_add_u32 s33, s33, s36")
    for n in range(4):
        a("buffer_load_dwordx4 v[168:171], v5, s[92:95], s33 offen")
        if n < 3: a("s_add_u32 s33, s33, 16384")
    a("v_lshrrev_b32 v11, 2, v2"); a("v_and_b32 v11, 1, v11"); a("v_lshlrev_b32 v11, 4, v11")
    a("v_lshrrev_b32 v5, 3, v2"); a("v_and_b32 v5, 1, v5"); a("v_lshl_add_u32 v11, v5, 2, v11")
    a("v_and_b32 v5, 3, v2"); a("v_add_u32 v11, v11, v5")
    a("v_mul_u32_u24 v11, 288, v11")
    a("v_lshrrev_b32 v5, 1, v10"); a("v_lshl_add_u32 v11, v5, 4, v11")
    a("v_and_b32 v5, 1, v10")
    a("v_lshl_add_u32 v6, v5, 5, v11")
    a("v_mul_u32_u24 v5, 2304, v5")
    a("v_add_u32 v9, v11, v5")
    a("s_lshl_b32 s33, s23, 5")
    a("s_lshl_b32 s36, s22, 1")
    a("s_add_u32 s33, s33, s36")
    a("s_add_u32 s33, s33, s24")
    a("s_mul_i32 s33, s33, 18432")
    if ZIMG: a("s_add_u32 s33, s33, 0x%x" % ZIMG)
    a("s_mul_i32 s36, s52, 9216")
    a("s_add_u32 s37, s33, s36")
    a("s_add_u32 s39, s37, 128")
    a("s_mul_i32 s36, s25, 160")
    a("s_add_u32 s37, s37, s36")
    def norm_pair(nA, ttA, nB, ttB, O):
        for q, n in enumerate((nA, nB)):
            for d in range(2):
                a("v_mov_b32 v%d, v%d" % (O + 2 * q + d, ZPf(n) + d))
        a("s_nop 1")
        a("v_permlane16_swap_b32 v%d, v%d" % (O, O + 2))
        a("v_permlane16_swap_b32 v%d, v%d" % (O + 1, O + 3))
    cnt = 0
    for pr in range(2):
        for tt in range(2):
            O = 128 + 4 * cnt; cnt += 1
            norm_pair(2 * (2 * pr) + tt, tt, 2 * (2 * pr + 1) + tt, tt, O)
            a("s_nop 0")
            a("buffer_store_dwordx4 %s, v6, s[12:15], s37 offen offset:%d" % (vr(O), tt * 2304 + 64 * pr))
    a("s_cmp_lg_u32 s98, 0")
    a("s_cbranch_scc1 %s_fin" % name)
    O = 128 + 4 * cnt
    norm_pair(8, 0, 9, 1, O)
    a("s_nop 0")
    a("buffer_store_dwordx4 %s, v9, s[12:15], s39 offen" % vr(O))
    a.label("%s_fin" % name)
    stamp(a, 4)
    a("s_cmp_ge_u32 s41, 288")
    a("s_cbranch_scc1 %s_fin2" % name)
    a("s_waitcnt vmcnt(9)")
    emit_kv_compute(a, wait=False)
    a.label("%s_fin2" % name)
    stamp(a, 6)
    G.stamp_rt(a, 1)
    a.label("%s_end" % name)
    a("s_endpgm")
    return a.text(), kernel_desc(name, 256, 256), (name, 256, 512, LDSB)

def gen_k1k(name="k1_kernel", R=4):
    a = Asm()
    RB = 4096; SLOT = 34816; TREG = 16384; FS = 288; RST = 0
    LDSB = RB + R * SLOT
    def capture(f, *args):
        lb = len(a.lines); f(*args); out = a.lines[lb:]; del a.lines[lb:]; return out
    kernel_begin(a, name)
    a("s_load_dwordx2 s[80:81], s[0:1], 0")
    a("s_load_dwordx2 s[4:5], s[0:1], 56")
    a("s_load_dwordx2 s[6:7], s[0:1], 104")
    a("s_load_dwordx2 s[18:19], s[0:1], 96")
    a("s_cmp_ge_u32 s2, 256")
    a("s_cbranch_scc1 %s_end" % name)
    a("v_lshrrev_b32 v1, 6, v0")
    a("v_and_b32 v2, 63, v0")
    a("v_readfirstlane_b32 s3, v1")
    G2.tile_ij(a)
    a("s_lshr_b32 s98, s3, 2")
    a("s_mov_b32 s54x, 0".replace("s54x", "s99"))
    a("s_and_b32 s3, s3, 3")
    a("s_lshr_b32 s24, s3, 1")
    a("s_and_b32 s25, s3, 1")
    a("v_and_b32 v3, 15, v2")
    VT = 204; VF = 208
    def loader_setup():
        a("v_lshrrev_b32 v5, 3, v2")
        a("v_and_b32 v4, 7, v2")
        a("s_lshl_b32 s36, s3, 5")
        a("v_add_u32 v5, s36, v5")
        a("v_lshrrev_b32 v7, 4, v2")
        a("v_xor_b32 v7, v7, v4")
        a("v_mul_u32_u24 v6, 1152, v5")
        a("v_lshl_add_u32 v%d, v7, 4, v6" % VT)
        a("v_xor_b32 v%d, 64, v%d" % (VT + 1, VT))
        a("v_add_u32 v%d, %d, v%d" % (VT + 1, 9216 - 1024, VT + 1))
        a("v_add_u32 v%d, %d, v%d" % (VT + 2, 2 * (9216 - 1024), VT))
        a("v_add_u32 v%d, %d, v%d" % (VT + 3, 2 * (9216 - 1024), VT + 1))
        a("s_lshl_b32 s84, s3, 12")
        a("s_add_u32 s84, s84, %d" % RB)
        a("s_lshl_b32 s85, s3, 9")
        a("s_add_u32 s85, s85, %d" % (RB + TREG + 16384))
    def loader_setup2():
        for n in range(5):
            if n < 4:
                a("s_lshl_b32 s36, s3, 8")
                a("s_add_u32 s36, s36, %d" % (64 * n))
            else:
                a("s_lshl_b32 s36, s3, 5")
                a("s_add_u32 s36, s36, 1024")
            a("v_add_u32 v6, s36, v2")
            a("v_mul_u32_u24 v7, 3641, v6")
            a("v_lshrrev_b32 v7, 16, v7")
            a("v_mul_u32_u24 v8, 18, v7")
            a("v_sub_u32 v8, v6, v8")
            a("v_and_b32 v9, 35, v7")
            a("v_bfe_u32 v6, v7, 2, 2")
            a("v_lshl_add_u32 v9, v6, 3, v9")
            a("v_bfe_u32 v6, v7, 4, 1")
            a("v_lshl_add_u32 v9, v6, 2, v9")
            a("v_mul_u32_u24 v9, 9216, v9")
            a("v_lshl_add_u32 v%d, v8, 4, v9" % (VF + n))
            if 0 < n < 4: a("v_subrev_u32 v%d, %d, v%d" % (VF + n, 1024 * n, VF + n))
    def issueT(g):
        st = g % 9
        a("s_add_u32 s86, s84, %d" % ((g % R) * SLOT))
        a("s_mov_b32 m0, s86")
        a("s_add_u32 s87, s82, %d" % (128 * st))
        for n in range(4):
            a("buffer_load_dwordx4 v%d, s[28:31], s87 offen offset:%d lds" % (VT + n, 1024 * n))
    def issueF(g):
        st = g % 9
        a("s_add_u32 s86, s84, %d" % ((g % R) * SLOT + TREG))
        a("s_mov_b32 m0, s86")
        a("s_add_u32 s87, s83, %d" % (64 * 9216 * st + (4608 if g < 9 else 0)))
        for n in range(4):
            a("buffer_load_dwordx4 v%d, s[8:11], s87 offen offset:%d lds" % (VF + n, 1024 * n))
        a("s_add_u32 s86, s85, %d" % ((g % R) * SLOT))
        a("s_mov_b32 m0, s86")
        a("s_mov_b64 exec, 0xffffffff")
        a("buffer_load_dwordx4 v%d, s[8:11], s87 offen lds" % (VF + 4))
        a("s_mov_b64 exec, -1")
    def srds_main():
        srd(a, 28, 80, 2048 * 576 * 2)
        srd(a, 8, 4, 576 * 4608 * 2)
        srd(a, 12, 6, WS_BYTES)
        srd(a, 60, 18, 256)
        a("s_mul_i32 s82, s22, %d" % (128 * 1152))
        a("s_mul_i32 s83, s23, 288")
    ACC = 128; FB = [16, 52]; CS = 216; ONE = 236
    vTa = [4, 5]; vTb = [6, 7]; vF = 8; vFh = 9
    bTa = [88, 89]; bTb = [90, 91]; bF = 92; bFh = 93
    def mma_setup():
        a("v_lshrrev_b32 v10, 4, v2")
        a("v_lshrrev_b32 v11, 1, v3")
        a("v_xor_b32 v10, v10, v11")
        a("v_lshlrev_b32 v10, 4, v10")
        a("v_lshl_add_u32 v10, v3, 7, v10")
        a("s_lshl_b32 s26, s24, 13")
        a("s_add_u32 s26, s26, %d" % RB)
        a("v_add_u32 v10, s26, v10")
        a("s_lshl_b32 s26, s25, 12")
        a("v_add_u32 v%d, s26, v10" % bTa[0])
        a("s_xor_b32 s26, s26, 4096")
        a("v_add_u32 v%d, s26, v10" % bTb[0])
        a("v_xor_b32 v%d, 64, v%d" % (bTa[1], bTa[0]))
        a("v_xor_b32 v%d, 64, v%d" % (bTb[1], bTb[0]))
        a("v_lshrrev_b32 v10, 2, v2")
        a("v_mul_u32_u24 v10, %d, v10" % FS)
        a("v_and_b32 v11, 3, v2")
        a("v_lshl_add_u32 v10, v11, 3, v10")
        a("v_add_u32 v10, %d, v10" % (RB + TREG))
        a("s_mul_i32 s26, s25, 160")
        a("v_add_u32 v%d, s26, v10" % bF)
        a("v_add_u32 v%d, 128, v10" % bFh)
        for r in range(ACC, ACC + 72): a("v_mov_b32 v%d, 0" % r)
        for r in range(CS, CS + 20): a("v_mov_b32 v%d, 0" % r)
        for r in range(ONE, ONE + 4): a("v_mov_b32 v%d, 0x3f803f80" % r)
    def mma_addr(slot):
        a("s_mov_b32 s27, %d" % (slot * SLOT))
        for d, s_ in ((vTa[0], bTa[0]), (vTb[0], bTb[0]), (vTa[1], bTa[1]), (vTb[1], bTb[1]), (vF, bF), (vFh, bFh)):
            a("v_add_u32 v%d, s27, v%d" % (d, s_))
    core = G.Core(a, ACC, FB[0], FB[1], FS, TREG, vTa, vTb, vF, vFh)
    trk = core.trk
    a("s_cmp_eq_u32 s98, 0")
    a("s_cbranch_scc1 %s_A0" % name)
    a("s_setprio 3")
    loader_setup()
    a("s_waitcnt lgkmcnt(0)")
    srds_main()
    vm = VmTracker(a)
    def issue(g, vmx):
        issueT(g); issueF(g); vmx.issue("S%d" % g, 9)
    issueT(0)
    loader_setup2()
    issueF(0); vm.issue("S0", 9)
    issue(1, vm); issue(2, vm); issue(3, vm)
    a("s_add_u32 s3, s3, 4"); stamp_setup(a, 1); stamp(a, 0); a("s_sub_u32 s3, s3, 4")
    for r in range(ONE, ONE + 4): a("v_mov_b32 v%d, 0x3f803f80" % r)
    RA = 96; XB = 112
    for r in range(RA, RA + 16): a("v_mov_b32 v%d, 0" % r)
    a("v_lshrrev_b32 v10, 4, v2")
    a("v_lshrrev_b32 v11, 1, v3")
    a("v_xor_b32 v10, v10, v11")
    a("v_lshlrev_b32 v10, 4, v10")
    a("v_lshl_add_u32 v10, v3, 7, v10")
    a("v_add_u32 v12, s84, v10")
    a("v_xor_b32 v13, 64, v12")
    def rs_rd(g):
        a("v_add_u32 v10, %d, v12" % ((g % R) * SLOT))
        a("v_add_u32 v11, %d, v13" % ((g % R) * SLOT))
        for h in range(2):
            for n in range(2):
                a("ds_read_b128 %s, v%d offset:%d" % (vr(XB + 8 * h + 4 * n), 10 + h, 2048 * n))
    def rs_do():
        for h in range(2):
            for n in range(2):
                x = XB + 8 * h + 4 * n
                a("v_mfma_f32_16x16x32_bf16 %s, %s, %s, %s" % (vr(RA + 4 * n), vr(ONE), vr(x), vr(RA + 4 * n)))
                a("v_mfma_f32_16x16x32_bf16 %s, %s, %s, %s" % (vr(RA + 8 + 4 * n), vr(x), vr(x), vr(RA + 8 + 4 * n)))
    def interleave(dma, comp, vmx=None):
        groups = []; cur = []
        for l in dma:
            cur.append(l)
            if "buffer_load" in l and not any("exec, 0xffffffff" in x for x in cur[-2:]):
                groups.append(cur); cur = []
            elif "exec, -1" in l:
                groups.append(cur); cur = []
        if cur: groups.append(cur)
        ns = max(1, len(groups))
        per = (len(comp) + ns - 1) // ns
        for g in groups:
            a.lines.extend(g)
            a.lines.extend(comp[:per]); comp = comp[per:]
        a.lines.extend(comp)
    vm.wait(["S0"])
    a("s_barrier")
    stamp(a, 1)
    rs_rd(0)
    vm.wait(["S1"])
    a("s_barrier")
    for k in range(9):
        a("s_waitcnt lgkmcnt(0)")
        dma = capture(lambda: (issueT(k + 3), issueF(k + 3))) if (k >= 1 and k + 3 < 9) else []
        interleave(dma, capture(rs_do))
        if k >= 1 and k + 3 < 9: vm.issue("S%d" % (k + 3), 9)
        if k < 8:
            rs_rd(k + 1)
        else:
            a("s_nop 7")
            a("v_lshrrev_b32 v10, 4, v2")
            a("v_lshrrev_b32 v11, 2, v3")
            a("v_and_b32 v12, 3, v3")
            for n in range(2):
                G_ = RA + 8 + 4 * n
                for r in range(1, 4):
                    a("v_cmp_eq_u32 vcc, %d, v12" % r)
                    a("s_nop 1")
                    a("v_cndmask_b32 v%d, v%d, v%d, vcc" % (G_, G_, G_ + r))
            ML = 112
            for n in range(2):
                emit_ln_finish(a, RA + 4 * n, RA + 8 + 4 * n, 576, ML + 2 * n, ML + 2 * n + 1, 120)
                a("v_mov_b32 v%d, v%d" % (117 + 2 * n, ML + 2 * n + 1))
                a("v_sub_f32 v%d, 0, v%d" % (116 + 2 * n, ML + 2 * n))
            a("s_lshl_b32 s35, s3, 8")
            a("v_lshlrev_b32 v13, 3, v3")
            a("v_add_u32 v12, s35, v13")
            a("v_cmp_eq_u32 vcc, v10, v11")
            a("s_and_saveexec_b64 s[36:37], vcc")
            for n in range(2):
                a("ds_write_b64 v12, %s offset:%d" % (vr(116 + 2 * n, 2), RST + 128 * n))
            a("s_mov_b64 exec, s[36:37]")
            a("s_cmp_lg_u32 s23, 0")
            a("s_cbranch_scc1 %s_nost1" % name)
            a("s_lshl_b32 s35, s22, 7")
            a("s_lshl_b32 s36, s3, 5")
            a("s_add_u32 s35, s35, s36")
            a("s_lshl_b32 s35, s35, 3")
            a("s_add_u32 s35, s35, 0x%x" % STATS1)
            a("v_mov_b32 v11, 0x7ffffff0")
            a("v_cndmask_b32 v13, v11, v13, vcc")
            for n in range(2):
                a("buffer_store_dwordx2 %s, v13, s[12:15], s35 offen offset:%d" % (vr(ML + 2 * n, 2), 128 * n))
            a.label("%s_nost1" % name)
        if k < 8:
            vm.wait(["S%d" % (k + 2)])
            a("s_barrier")
    a("s_waitcnt lgkmcnt(0)")
    a("s_barrier")
    a("s_load_dwordx4 s[64:67], s[0:1], 8")
    a("s_load_dwordx2 s[76:77], s[0:1], 24")
    a("s_load_dwordx2 s[90:91], s[0:1], 64")
    a("s_mul_i32 s36, s3, 13312")
    a("s_add_u32 s36, s36, %d" % RB)
    a("v_lshlrev_b32 v10, 4, v2")
    a("v_add_u32 v11, s36, v10")
    a("s_waitcnt lgkmcnt(0)")
    srd(a, 68, 66, 2048 * 576 * 2)
    a("s_mov_b32 s88, s64"); a("s_mov_b32 s89, s65")
    srd(a, 64, 88, 2048 * 576 * 2)
    srd(a, 72, 76, 576 * 8)
    srd(a, 92, 90, 2048 * 2048 * 2)
    a("s_barrier")
    n_ = 0
    for ft in range(4):
        for tt in range(2):
            a("ds_read_b128 %s, v11 offset:%d" % (vr(core.accr(ft, tt)), 1024 * n_)); n_ += 1
    for ft in range(4):
        a("ds_read_b128 %s, v11 offset:%d" % (vr(CS + 4 * ft), 1024 * n_)); n_ += 1
    a("s_branch %s_epi" % name)
    a.label("%s_A0" % name)
    emit_code_prefetch(a, name)
    a("s_load_dwordx4 s[64:67], s[0:1], 8")
    a("s_load_dwordx2 s[76:77], s[0:1], 24")
    a("s_load_dwordx2 s[90:91], s[0:1], 64")
    mma_setup()
    a("s_waitcnt lgkmcnt(0)")
    srds_main()
    srd(a, 68, 66, 2048 * 576 * 2)
    a("s_mov_b32 s88, s64"); a("s_mov_b32 s89, s65")
    srd(a, 64, 88, 2048 * 576 * 2)
    srd(a, 72, 76, 576 * 8)
    srd(a, 92, 90, 2048 * 2048 * 2)
    stamp_setup(a, 1); stamp(a, 0)
    def gran_addr():
        a("v_lshrrev_b32 v10, 4, v2")
        a("s_lshl_b32 s36, s25, 1")
        a("v_add_u32 v11, s36, v10")
        a("v_and_b32 v11, 3, v11")
        a("v_lshl_add_u32 v11, v11, 4, v3")
        a("v_lshlrev_b32 v94, 8, v11")
        a("s_lshl_b32 s59, s22, 7")
        a("s_lshl_b32 s36, s24, 6")
        a("s_add_u32 s59, s59, s36")
        a("s_lshl_b32 s59, s59, 8")
        a("s_add_u32 s59, s59, 0x%x" % STATS2)
        a("s_lshl_b32 s36, s23, 1")
        a("s_add_u32 s36, s36, s25")
        a("s_lshl_b32 s36, s36, 3")
        a("s_add_u32 s58, s36, s59")
    mma_addr(0)
    a("s_mov_b32 s33, 0")
    a("s_barrier")
    stamp(a, 1)
    a.label("%s_mma" % name)
    core.prime(0, core.reads(0, 0))
    trk.drain()
    def mfmas(buf):
        L = []
        for ft in range(5):
            A = core.F(buf, ft)
            for tt in range(4 if ft < 4 else 2):
                c = core.accr(ft, tt); B = core.T(buf, tt)
                L.append(("v_mfma_f32_16x16x32_bf16 %s, %s, %s, %s" % (vr(c), vr(A), vr(B), vr(c)), list(range(A, A + 4)) + list(range(B, B + 4))))
            L.append(("v_mfma_f32_16x16x32_bf16 %s, %s, %s, %s" % (vr(CS + 4 * ft), vr(A), vr(ONE), vr(CS + 4 * ft)), list(range(A, A + 4))))
        return L
    def phase(buf, pend):
        for (m, regs) in mfmas(buf):
            trk.need(regs)
            a(m)
            while pend:
                k, t = pend.pop(0)
                if k == "x":
                    a(t)
                    if t.startswith("s_"): continue
                else:
                    a(t[0]); trk.issue(t[1])
                break
        for k, t in pend:
            if k == "x": a(t)
            else: a(t[0]); trk.issue(t[1])
    def iteration():
        a("s_waitcnt vmcnt(0)")
        a("s_barrier")
        rd = [("r", t) for t in core.reads(1, 1)]
        upd = ["s_add_u32 s27, s27, %d" % SLOT, "s_cmp_eq_u32 s27, %d" % (R * SLOT), "s_cselect_b32 s27, 0, s27"]
        tail = ["v_add_u32 v%d, s27, v%d" % (d, s_) for d, s_ in ((vTa[0], bTa[0]), (vF, bF), (vTb[0], bTb[0]), (vFh, bFh))]
        phase(0, rd[:1] + [("x", u) for u in upd] + rd[1:] + [("x", u) for u in tail])
        rd = [("r", t) for t in core.reads(0, 0)]
        tail = ["v_add_u32 v%d, s27, v%d" % (d, s_) for d, s_ in ((vTa[1], bTa[1]), (vTb[1], bTb[1]))] + ["s_add_u32 s33, s33, 1"]
        phase(1, rd + [("x", u) for u in tail])
    a.label("%s_cloop" % name)
    lb = len(a.lines); iteration(); st = copy.deepcopy(trk.out); del a.lines[lb:]; trk.out = copy.deepcopy(st)
    iteration()
    assert [sorted(x) for x in trk.out] == [sorted(x) for x in st]
    a("s_cmp_lt_u32 s33, 9")
    a("s_cbranch_scc1 %s_cloop" % name)
    trk.drain()
    stamp(a, 2)
    a("s_waitcnt vmcnt(0)")
    a("s_barrier")
    a("s_mul_i32 s36, s3, 13312")
    a("s_add_u32 s36, s36, %d" % RB)
    a("v_lshlrev_b32 v10, 4, v2")
    a("v_add_u32 v11, s36, v10")
    n_ = 0
    for ft in range(4):
        for tt in range(2):
            a("ds_write_b128 v11, %s offset:%d" % (vr(core.accr(ft, tt + 2)), 1024 * n_)); n_ += 1
    for ft in range(4):
        a("ds_write_b128 v11, %s offset:%d" % (vr(CS + 4 * ft), 1024 * n_)); n_ += 1
    a("s_waitcnt lgkmcnt(0)")
    a("s_barrier")
    a.label("%s_epi" % name)
    MR = 100; T = 72; ZP = 200
    gelu_consts(a)
    a("s_xor_b32 s52, s98, s25")
    a("s_lshl_b32 s36, s24, 9")
    a("s_lshl_b32 s37, s52, 8")
    a("s_add_u32 s38, s36, s37")
    a("v_lshlrev_b32 v10, 3, v3")
    a("v_add_u32 v11, s38, v10")
    a("ds_read_b64 %s, v11 offset:%d" % (vr(MR, 2), RST))
    a("ds_read_b64 %s, v11 offset:%d" % (vr(MR + 2, 2), RST + 128))
    a("s_lshl_b32 s41, s2, 1")
    a("s_add_u32 s41, s41, s98")
    a("v_and_b32 v0, 255, v0")
    a("s_cmp_ge_u32 s41, 288")
    a("s_cbranch_scc1 %s_nokv1" % name)
    emit_kv_loads(a)
    a.label("%s_nokv1" % name)
    S = [108, 110]; Q = [109, 111]
    for r_ in range(108, 112): a("v_mov_b32 v%d, 0" % r_)
    a("s_waitcnt lgkmcnt(0)")
    ZPf = lambda n: (240 + 2 * n) if n < 8 else (196 + 2 * (n - 8))
    def dots(lst):
        for d in range(2):
            for (ft, tt) in lst:
                p = ZPf(2 * ft + tt) + d
                a("v_dot2_f32_bf16 v%d, v%d, v%d, v%d" % (S[tt], p, ONE, S[tt]))
                a("v_dot2_f32_bf16 v%d, v%d, v%d, v%d" % (Q[tt], p, p, Q[tt]))
    a("v_lshrrev_b32 v10, 4, v2")
    a("v_lshlrev_b32 v5, 12, v10")
    a("v_lshl_add_u32 v5, v3, 4, v5")
    a("s_lshl_b32 s33, s22, 7")
    a("s_lshl_b32 s36, s3, 5")
    a("s_add_u32 s33, s33, s36")
    a("s_lshl_b32 s36, s98, 4")
    a("s_add_u32 s33, s33, s36")
    a("s_lshl_b32 s33, s33, 12")
    a("s_lshl_b32 s36, s23, 8")
    a("s_add_u32 s33, s33, s36")
    for n in range(4):
        a("buffer_load_dwordx4 v[160:163], v5, s[92:95], s33 offen")
        if n < 3: a("s_add_u32 s33, s33, 16384")
    a("v_lshrrev_b32 v60, 2, v2"); a("v_and_b32 v60, 1, v60"); a("v_lshlrev_b32 v60, 4, v60")
    a("v_lshrrev_b32 v61, 3, v2"); a("v_and_b32 v61, 1, v61"); a("v_lshl_add_u32 v60, v61, 2, v60")
    a("v_and_b32 v61, 3, v2"); a("v_add_u32 v60, v60, v61")
    a("v_mul_u32_u24 v60, 288, v60")
    a("v_lshrrev_b32 v61, 1, v10"); a("v_lshl_add_u32 v60, v61, 4, v60")
    a("v_and_b32 v61, 1, v10")
    a("v_lshl_add_u32 v62, v61, 5, v60")
    a("v_mul_u32_u24 v61, 2304, v61")
    a("v_add_u32 v63, v60, v61")
    a("s_lshl_b32 s84, s23, 5")
    a("s_lshl_b32 s36, s22, 1")
    a("s_add_u32 s84, s84, s36")
    a("s_add_u32 s84, s84, s24")
    a("s_mul_i32 s84, s84, 18432")
    if ZIMG: a("s_add_u32 s84, s84, 0x%x" % ZIMG)
    a("s_mul_i32 s36, s52, 9216")
    a("s_add_u32 s85, s84, s36")
    a("s_add_u32 s86, s85, 128")
    a("s_mul_i32 s36, s25, 160")
    a("s_add_u32 s85, s85, s36")
    def norm_pair(nA, ttA, nB, ttB, O):
        for q, n in enumerate((nA, nB)):
            for d in range(2):
                a("v_mov_b32 v%d, v%d" % (O + 2 * q + d, ZPf(n) + d))
        a("s_nop 1")
        a("v_permlane16_swap_b32 v%d, v%d" % (O, O + 2))
        a("v_permlane16_swap_b32 v%d, v%d" % (O + 1, O + 3))
    a("s_cmp_lg_u32 s98, 0")
    a("s_cbranch_scc1 %s_nohalf" % name)
    lst = [(4, 0), (4, 1)]
    emit_fold_gelu(a, [(core.accr(ft, tt), CS + 4 * ft, MR + 2 * tt, ZPf(2 * ft + tt)) for ft, tt in lst], T)
    dots(lst)
    norm_pair(8, 0, 9, 1, 112)
    a("s_nop 0")
    a("buffer_store_dwordx4 %s, v63, s[12:15], s86 offen" % vr(112))
    a.label("%s_nohalf" % name)
    for pr, f0 in enumerate((0, 2)):
        lst = [(ft, tt) for ft in (f0, f0 + 1) for tt in range(2)]
        emit_fold_gelu(a, [(core.accr(ft, tt), CS + 4 * ft, MR + 2 * tt, ZPf(2 * ft + tt)) for ft, tt in lst], T)
        dots(lst)
        for tt in range(2):
            O = 116 + 8 * pr + 4 * tt - 0
            O = (116, 120, 124, 88)[2 * pr + tt]
            norm_pair(2 * f0 + tt, tt, 2 * (f0 + 1) + tt, tt, O)
            a("s_nop 0")
            a("buffer_store_dwordx4 %s, v62, s[12:15], s85 offen offset:%d" % (vr(O), tt * 2304 + 64 * pr))
    a("s_nop 2")
    emit_xg_reduce(a, S + Q, 72)
    a("s_lshl_b32 s59, s22, 7")
    a("s_lshl_b32 s36, s24, 6")
    a("s_add_u32 s59, s59, s36")
    a("s_lshl_b32 s36, s52, 5")
    a("s_add_u32 s59, s59, s36")
    a("s_lshl_b32 s59, s59, 8")
    a("s_add_u32 s59, s59, 0x%x" % STATS2)
    a("s_lshl_b32 s36, s23, 1")
    a("s_add_u32 s36, s36, s25")
    a("s_lshl_b32 s36, s36, 3")
    a("s_add_u32 s58, s36, s59")
    a("v_lshrrev_b32 v10, 4, v2")
    a("v_lshlrev_b32 v11, 8, v2")
    a("v_cmp_gt_u32 vcc, 32, v2")
    a("v_mov_b32 v12, 0x7ffffff0")
    a("v_cmp_eq_u32 s[36:37], 1, v10")
    a("v_cndmask_b32 v11, v12, v11, vcc")
    a("s_nop 0")
    a("v_cndmask_b32 v108, v108, v110, s[36:37]")
    a("v_cndmask_b32 v109, v109, v111, s[36:37]")
    a("buffer_store_dwordx2 v[108:109], v11, s[12:15], s58 offen")
    a("s_setprio 0")
    stamp(a, 3)
    a.label("%s_fin" % name)
    stamp(a, 4)
    a("s_cmp_ge_u32 s41, 288")
    a("s_cbranch_scc1 %s_fin2" % name)
    a("s_waitcnt vmcnt(9)")
    a("s_nop 4")
    emit_kv_compute(a, wait=False)
    a.label("%s_fin2" % name)
    stamp(a, 6)
    G.stamp_rt(a, 1)
    a.label("%s_end" % name)
    a("s_endpgm")
    return a.text(), kernel_desc(name, 256, 256), (name, 256, 512, LDSB)

gen_k2b = G3.gen_k2b; gen_k2c = G3.gen_k2c; gen_k2d = G3.gen_k2d; gen_k2e = G3.gen_k2e; gen_k2g = G3.gen_k2g; gen_k2f = G3.gen_k2f; gen_k3b = G3.gen_k3b; gen_k3c = G3.gen_k3c; gen_kw = G3.gen_kw; gen_k1g = G3.gen_k1g

if __name__ == "__main__":
    which = sys.argv[1]; out = sys.argv[2]
    if len(sys.argv) > 3: DBG.update(sys.argv[3].split(","))
    ks = [globals()["gen_" + w]() for w in which.split(",")]
    open(out, "w").write(assemble_file([k[2] for k in ks], "".join(k[0] for k in ks) + "code_end_lbl:\n", [k[1] for k in ks]))
```

```python
import sys, copy
from asmgen import *
import gen as G
import gen2 as G2
from gen import (ZIMG, Z1IMG, PIMG, WOT, KVT, YT, STATS2, STATS1, WS_BYTES, DBG, LdsTracker, vr, stamp, stamp_setup,
                 rnd_pair, f32, emit_xg_reduce, emit_ln_finish)
from gen2 import VmTracker, TILES, tidx, emit_fold_gelu, gelu_consts, seg_end, SPIN_MAX

def emit_kv_loads(a, KD=16, VD=32, SD=44, K56=56, K57=57):
    a("s_mul_hi_u32 s36, s41, 0x%x" % ((2**32 + 8) // 9))
    a("s_mul_i32 s37, s36, 9")
    a("s_sub_u32 s37, s41, s37")
    if "kvold" in DBG:
        a("v_and_b32 v1, 31, v0")
        a("v_lshrrev_b32 v10, 5, v0")
    else:
        a("v_lshrrev_b32 v1, 3, v0")
        a("v_and_b32 v10, 7, v0")
    a("s_lshl_b32 s38, s36, 6")
    a("v_lshl_add_u32 v%d, v10, 3, s38" % K56)
    a("s_lshl_b32 s39, s37, 7")
    a("v_lshl_add_u32 v%d, v1, 2, s39" % K57)
    a("v_mul_u32_u24 v5, 1152, v%d" % K56)
    a("v_add_u32 v5, v5, v%d" % K57)
    a("v_subrev_u32 v6, %d, v5" % (3 * 1152))
    a("v_cmp_gt_u32 vcc, 3, v%d" % K56)
    a("v_mov_b32 v7, 0x7ffffff0")
    a("v_add_u32 v9, %d, v5" % 3456)
    a("v_cndmask_b32 v8, v6, v7, vcc")
    a("v_add_u32 v10, %d, v5" % 6912)
    for n in range(3):
        a("buffer_load_dword v%d, v8, s[64:67], 0 offen offset:%d" % (KD + n, 1152 * n))
    for n in range(8):
        base, off = ((5, 1152 * n) if n < 3 else (9, 1152 * (n - 3)) if n < 6 else (10, 1152 * (n - 6)))
        a("buffer_load_dword v%d, v%d, s[64:67], 0 offen offset:%d" % (KD + 3 + n, base, off))
        a("buffer_load_dword v%d, v%d, s[68:71], 0 offen offset:%d" % (VD + n, base, off))
    a("v_lshlrev_b32 v11, 2, v%d" % K57)
    a("buffer_load_dwordx4 %s, v11, s[72:75], 0 offen" % vr(SD))

def emit_kv_compute(a, wait=True, store=True):
    if wait: a("s_waitcnt vmcnt(0)")
    for ch in range(2):
        for q in range(2):
            a("v_lshlrev_b32 v%d, 16, v%d" % (48 + 4 * ch + 2 * q, 44 + 2 * ch + q))
            a("v_and_b32 v%d, 0xffff0000, v%d" % (49 + 4 * ch + 2 * q, 44 + 2 * ch + q))
    for n in range(11):
        a("v_lshlrev_b32 v%d, 16, v%d" % (60 + n, 16 + n))
        a("v_and_b32 v%d, 0xffff0000, v%d" % (72 + n, 16 + n))
    OUT = 100
    for e0 in range(0, 8, 2):
        es = (e0, e0 + 1)
        R_ = {e: (84 + 6 * (e & 1)) for e in es}
        for e in es:
            A0 = R_[e]
            a("v_mul_f32 v%d, v%d, v%d" % (A0, 60 + e, 51)); a("v_mul_f32 v%d, v%d, v%d" % (A0 + 1, 72 + e, 55))
        for e in es: rnd_pair(a, R_[e] + 4, R_[e], R_[e] + 1)
        for t in range(1, 4):
            for e in es:
                A0 = R_[e]
                a("v_mul_f32 v%d, v%d, v%d" % (A0 + 2, 60 + e + t, 51 - t)); a("v_mul_f32 v%d, v%d, v%d" % (A0 + 3, 72 + e + t, 55 - t))
            for e in es: rnd_pair(a, R_[e] + 4, R_[e] + 2, R_[e] + 3)
            for e in es:
                A0 = R_[e]
                a("v_add_f32 v%d, v%d, v%d" % (A0, A0, A0 + 2)); a("v_add_f32 v%d, v%d, v%d" % (A0 + 1, A0 + 1, A0 + 3))
            for e in es: rnd_pair(a, R_[e] + 4, R_[e], R_[e] + 1)
        for e in es:
            A0 = R_[e]
            a("v_lshlrev_b32 v%d, 16, v%d" % (A0 + 2, 32 + e)); a("v_and_b32 v%d, 0xffff0000, v%d" % (A0 + 3, 32 + e))
            a("v_mul_f32 v%d, v%d, v%d" % (OUT + e, A0, A0 + 2)); a("v_mul_f32 v%d, v%d, v%d" % (OUT + 8 + e, A0 + 1, A0 + 3))
    for ch in range(2):
        for q in range(4):
            a("v_cvt_pk_bf16_f32 v%d, v%d, v%d" % (120 + 4 * ch + q, OUT + 8 * ch + 7 - 2 * q, OUT + 8 * ch + 6 - 2 * q))
    a("v_lshlrev_b32 v12, 11, v57")
    a("v_sub_u32 v13, 2040, v56")
    a("v_lshl_add_u32 v12, v13, 1, v12")
    a("v_add_u32 v13, 4096, v12")
    if not store: return
    a("s_mov_b32 s39, 0x%x" % KVT)
    a("buffer_store_dwordx4 v[120:123], v12, s[12:15], s39 offen")
    a("buffer_store_dwordx4 v[124:127], v13, s[12:15], s39 offen")

def emit_wot_loads(a, WD=128, WO=140, PER=360, NL=2):
    a("s_mul_i32 s36, s42, %d" % PER)
    a("s_mov_b32 s37, 0x%x" % ((2**32 + 9) // 10))
    a("s_mov_b32 s38, 0x%x" % ((2**32 + 17) // 18))
    a("s_mov_b32 s40, 0x%x" % WOT)
    for n in range(NL):
        a("v_add_u32 v16, s36, v0")
        if n: a("v_add_u32 v16, %d, v16" % (256 * n))
        a("v_mul_hi_u32 v17, v16, s37")
        a("v_mul_u32_u24 v18, 10, v17")
        a("v_sub_u32 v18, v16, v18")
        a("v_lshrrev_b32 v19, 7, v17")
        a("v_and_b32 v20, 127, v17")
        a("v_mul_hi_u32 v21, v19, s38")
        a("v_mul_u32_u24 v22, 18, v21")
        a("v_sub_u32 v22, v19, v22")
        a("v_and_b32 v23, 0x63, v20")
        a("v_bfe_u32 v24, v20, 2, 2")
        a("v_lshl_add_u32 v23, v24, 3, v23")
        a("v_bfe_u32 v24, v20, 4, 1")
        a("v_lshl_add_u32 v23, v24, 2, v23")
        a("v_lshl_add_u32 v23, v22, 7, v23")
        a("v_mul_u32_u24 v23, 1152, v23")
        a("v_lshrrev_b32 v24, 1, v21")
        a("v_mul_u32_u24 v24, 288, v24")
        a("v_add_u32 v23, v23, v24")
        a("v_lshl_add_u32 v23, v18, 4, v23")
        a("v_and_b32 v24, 1, v21")
        a("v_cmp_gt_u32 vcc, 8, v18")
        a("v_mul_u32_u24 v24, 160, v24")
        a("v_lshlrev_b32 v%d, 4, v16" % (WO + n))
        a("v_cndmask_b32 v24, 0, v24, vcc")
        a("v_add_u32 v23, v23, v24")
        if n == NL - 1:
            a("v_cmp_gt_u32 vcc, %d, v0" % (PER - 256 * (NL - 1)))
            a("v_mov_b32 v24, 0x7ffffff0")
            a("s_nop 0")
            a("v_cndmask_b32 v23, v24, v23, vcc")
            a("v_cndmask_b32 v%d, v24, v%d, vcc" % (WO + n, WO + n))
        a("buffer_load_dwordx4 %s, v23, s[76:79], 0 offen" % vr(WD + 4 * n))

CJ_EB = 0; CJ_OB = 4160; CJ_UB = 8320; CJ_SIZE = 12928
def seg_end2(a, name):
    return

CJ_H = [56, 64, 72, 80]; CJ_U = 224
def emit_conv_loads(a, kvpol=""):
    a("s_lshl_b32 s36, s43, 12")
    a("v_lshlrev_b32 v4, 4, v2")
    for n in range(4):
        a("buffer_load_dwordx4 %s, v4, s[16:19], s36 offen offset:%d" % (vr(CJ_H[n]), 1024 * n))
    a("v_add_u32 v5, 16, v4")
    for n in range(4):
        a("buffer_load_dword v%d, v5, s[16:19], s36 offen offset:%d" % (CJ_H[n] + 4, 1024 * n))
    a("s_add_u32 s37, s36, 0x%x" % KVT)
    for n in range(4):
        a("buffer_load_dwordx4 %s, v4, s[12:15], s37 offen offset:%d%s" % (vr(CJ_U + 4 * n), 1024 * n, kvpol))
    a("s_lshl_b32 s37, s43, 1")
    a("v_mov_b32 v6, s37")
    a("buffer_load_ushort v240, v6, s[84:87], 0 offen")
    return 13

def emit_conv_job(a, name, mid=None):
    EB, OB, UB = CJ_EB, CJ_OB, CJ_UB
    H = CJ_H
    a("v_lshlrev_b32 v4, 4, v2")
    a("v_add_u32 v12, s27, v4")
    for r in range(8, 12): a("v_mov_b32 v%d, 0" % r)
    a("v_lshlrev_b32 v5, 3, v2")
    a("v_add_u32 v5, s27, v5")
    a("ds_write_b64 v5, v[8:9] offset:%d" % (UB + 4096))
    a("s_mov_b64 exec, 3")
    a("ds_write_b128 v12, v[8:11] offset:%d" % EB)
    a("ds_write_b128 v12, v[8:11] offset:%d" % OB)
    a("s_mov_b64 exec, -1")
    for n in range(4):
        a("ds_write_b128 v12, %s offset:%d" % (vr(CJ_U + 4 * n), UB + 1024 * n))
    a("s_waitcnt lgkmcnt(3)")
    for n in range(4):
        a("ds_write_b128 v12, %s offset:%d" % (vr(H[n]), EB + 32 + 1024 * n))
        for q in range(4):
            a("v_alignbit_b32 v%d, v%d, v%d, 16" % (88 + 4 * (n & 1) + q, H[n] + q + 1, H[n] + q))
        a("ds_write_b128 v12, %s offset:%d" % (vr(88 + 4 * (n & 1)), OB + 32 + 1024 * n))
    a("s_mov_b64 exec, 1")
    a("v_mov_b32 v5, s27")
    a("ds_write_b16 v5, v%d offset:%d" % (H[0], OB + 30))
    a("s_mov_b64 exec, -1")
    if mid: mid()
    a("v_and_b32 v5, 15, v2")
    a("v_lshrrev_b32 v6, 4, v2")
    a("v_lshl_add_u32 v7, v6, 3, v5")
    a("v_and_b32 v8, 1, v5")
    a("v_add_u32 v7, v7, v8")
    a("v_lshlrev_b32 v7, 1, v7")
    a("v_cmp_eq_u32 vcc, 0, v8")
    a("v_mov_b32 v9, %d" % EB); a("v_mov_b32 v10, %d" % OB)
    a("v_cndmask_b32 v9, v9, v10, vcc")
    a("v_add3_u32 v7, v7, v9, s27")
    AA = 52
    for q in range(4):
        a("v_add_u32 v%d, %d, v7" % (AA + q, 1024 * q))
    a("v_lshlrev_b32 v9, 4, v6")
    a("v_lshlrev_b32 v10, 5, v5")
    a("v_sub_u32 v9, v9, v10")
    a("s_add_u32 s38, s27, %d" % (UB + 480))
    a("v_add_u32 v11, s38, v9")
    a("v_lshlrev_b32 v9, 5, v5")
    a("v_lshl_add_u32 v9, v6, 3, v9")
    a("s_add_u32 s38, s27, %d" % (UB + 4088 - 3584))
    a("v_sub_u32 v10, s38, v9")
    ACC = 96; AF = [112, 176]; BF = [144, 208]
    for r in range(ACC, ACC + 16): a("v_mov_b32 v%d, 0" % r)
    a("v_lshlrev_b32 v13, 16, v240")
    a("s_lshl_b32 s36, s43, 12")
    a("s_add_u32 s37, s36, 0x%x" % YT)
    a("s_mov_b32 s33, 0")
    a("s_waitcnt lgkmcnt(0)")
    stamp(a, 3)
    a("s_cmp_eq_u32 s26, 1")
    a("s_cbranch_scc1 %s_cj1" % name)
    for hv, tiles in enumerate(([7, 6, 1, 0], [5, 4, 3, 2])):
        if hv: a.label("%s_cj1" % name)
        nq = max(tiles) + 1
        trk = LdsTracker(a)
        def room():
            if len(trk.out) >= 13:
                a("s_waitcnt lgkmcnt(8)"); trk.out = trk.out[-8:]
        def reads(kk, buf):
            L = []
            for q in range(nq):
                r = BF[buf] + 4 * q
                L.append(("ds_read_b128 %s, v11 offset:%d" % (vr(r), 3584 - 512 * q + 64 * kk), range(r, r + 4)))
                r = AF[buf] + 4 * q
                o = 128 * (q & 1) + 16 * kk
                L.append(("ds_read2_b32 %s, v%d offset0:%d offset1:%d" % (vr(r, 2), AA + (q >> 1), o, o + 1), range(r, r + 2)))
                L.append(("ds_read2_b32 %s, v%d offset0:%d offset1:%d" % (vr(r + 2, 2), AA + (q >> 1), o + 2, o + 3), range(r + 2, r + 4)))
            return L
        for t, r in reads(0, 0):
            room(); a(t); trk.issue(r)
        trk.drain()
        ms = sorted([(max(jj, n - jj), ti, n, jj) for ti, n in enumerate(tiles) for jj in range(n + 1)])
        def step(buf, kk_next, upd):
            nxt = [("x", u) for u in upd] + [("r", x) for x in reads(kk_next, 1 - buf)]
            tot = len(nxt); done = 0
            for mi, (_, ti, n, jj) in enumerate(ms):
                A = AF[buf] + 4 * jj; B = BF[buf] + 4 * (n - jj); c = ACC + 4 * ti
                trk.need(list(range(A, A + 4)) + list(range(B, B + 4)))
                a("v_mfma_f32_16x16x32_bf16 %s, %s, %s, %s" % (vr(c), vr(A), vr(B), vr(c)))
                want = (tot * (mi + 1) + 15) // 16
                while nxt and done < want:
                    k, t = nxt.pop(0); done += 1
                    if k == "x": a(t)
                    else:
                        room(); a(t[0]); trk.issue(t[1])
        upd = ["v_add_u32 v11, 128, v11"] + ["v_add_u32 v%d, 128, v%d" % (AA + q, AA + q) for q in range((nq + 1) // 2)] + ["s_add_u32 s33, s33, 1"]
        a.label("%s_cjl%d" % (name, hv))
        lb = len(a.lines)
        for it_ in range(8):
            st = copy.deepcopy(trk.out)
            step(0, 1, list([])); step(1, 0, list(upd))
            a("s_waitcnt lgkmcnt(6)"); trk.out = trk.out[-6:]
            if [sorted(x) for x in trk.out] == [sorted(x) for x in st]: break
            del a.lines[lb:]
        else:
            assert False, "no fixed point"
        a("s_cmp_lt_u32 s33, 4")
        a("s_cbranch_scc1 %s_cjl%d" % (name, hv))
        trk.drain()
        stamp(a, 4 + 2 * hv)
        for ti, n in enumerate(tiles):
            a("ds_read_b64 %s, v10 offset:%d" % (vr(112 + 2 * ti, 2), 3584 - 512 * n))
        a("s_waitcnt lgkmcnt(0)")
        for ti, n in enumerate(tiles):
            c = ACC + 4 * ti; U = 112 + 2 * ti; T = 120
            a("v_and_b32 v%d, 0xffff0000, v%d" % (T + 0, U + 1)); a("v_lshlrev_b32 v%d, 16, v%d" % (T + 1, U + 1))
            a("v_and_b32 v%d, 0xffff0000, v%d" % (T + 2, U)); a("v_lshlrev_b32 v%d, 16, v%d" % (T + 3, U))
            for r in range(4): a("v_mul_f32 v%d, v%d, v13" % (T + r, T + r))
            rnd_pair(a, T + 4, T, T + 1); rnd_pair(a, T + 4, T + 2, T + 3)
            rnd_pair(a, T + 4, c, c + 1); rnd_pair(a, T + 4, c + 2, c + 3)
            for r in range(4): a("v_add_f32 v%d, v%d, v%d" % (c + r, c + r, T + r))
            a("v_cvt_pk_bf16_f32 v%d, v%d, v%d" % (U, c, c + 1))
            a("v_cvt_pk_bf16_f32 v%d, v%d, v%d" % (U + 1, c + 2, c + 3))
            a("buffer_store_dwordx2 %s, v9, s[12:15], s37 offen offset:%d" % (vr(U, 2), 512 * n))
        stamp(a, 5 + 2 * hv)
        if hv == 0:
            a("s_cmp_eq_u32 s26, 0")
            a("s_cbranch_scc1 %s_cjdone" % name)
            a("v_subrev_u32 v11, 512, v11")
            for q in range(4): a("v_subrev_u32 v%d, 512, v%d" % (AA + q, AA + q))
            for r in range(ACC, ACC + 16): a("v_mov_b32 v%d, 0" % r)
            a("s_mov_b32 s33, 0")
    a.label("%s_cjdone" % name)

def gen_k1e(name="k1_kernel"):
    a = Asm()
    TS = 16384; NT = 3; TB0 = 4096; FB_ = TB0 + NT * TS; FSL = 18432; NF = 6; FS = 576; NK = 18
    LDSB = FB_ + NF * FSL; RST = 0; CSO = 1024; CJB = TB0 + 4 * 18432
    kernel_begin(a, name)
    a("s_load_dwordx2 s[80:81], s[0:1], 0")
    a("s_load_dwordx2 s[4:5], s[0:1], 56")
    a("s_cmp_ge_u32 s2, 256")
    a("s_cbranch_scc1 %s_end" % name)
    a("v_lshrrev_b32 v1, 6, v0")
    a("v_and_b32 v2, 63, v0")
    a("v_readfirstlane_b32 s3, v1")
    a("s_and_b32 s20, s2, 7")
    a("s_lshr_b32 s21, s2, 3")
    a("s_and_b32 s22, s20, 1")
    a("s_lshl_b32 s22, s22, 3")
    a("s_and_b32 s23, s21, 7")
    a("s_add_u32 s22, s22, s23")
    a("s_lshr_b32 s21, s21, 3")
    a("s_and_b32 s23, s20, 6")
    a("s_and_b32 s24, s21, 1")
    a("s_add_u32 s23, s23, s24")
    a("s_lshr_b32 s21, s21, 1")
    a("s_mov_b32 s99, 0")
    a("s_mov_b64 s[96:97], -1")
    a("s_cmp_lt_u32 s3, 4")
    a("s_cbranch_scc1 %s_consumer" % name)
    a("s_setprio 3")
    a("s_sub_u32 s3, s3, 4")
    a("v_lshrrev_b32 v3, 3, v2")
    a("v_and_b32 v4, 7, v2")
    VT = 16; VF = 20
    a("s_lshl_b32 s24, s3, 5")
    a("v_add_u32 v5, s24, v3")
    a("v_lshrrev_b32 v7, 4, v2")
    a("v_xor_b32 v7, v7, v4")
    a("v_mul_u32_u24 v6, 1152, v5")
    a("v_lshl_add_u32 v%d, v7, 4, v6" % VT)
    a("v_xor_b32 v%d, 64, v%d" % (VT + 1, VT))
    a("v_add_u32 v%d, %d, v%d" % (VT + 1, 9216 - 1024, VT + 1))
    a("v_add_u32 v%d, %d, v%d" % (VT + 2, 2 * (9216 - 1024), VT))
    a("v_add_u32 v%d, %d, v%d" % (VT + 3, 2 * (9216 - 1024), VT + 1))
    a("s_mul_i32 s26, s22, %d" % (128 * 1152))
    a("s_lshl_b32 s24, s3, 12")
    a("s_add_u32 s24, s24, %d" % TB0)
    a("s_mov_b32 s33, 0")
    a("s_waitcnt lgkmcnt(0)")
    srd(a, 28, 80, 2048 * 576 * 2)
    vm = VmTracker(a)
    def issueT(m):
        a("s_add_u32 s35, s33, s24")
        a("s_mov_b32 m0, s35")
        a("s_add_u32 s33, s33, %d" % TS)
        for n in range(4):
            if "nodma" not in DBG: a("buffer_load_dwordx4 v%d, s[28:31], s26 offen offset:%d lds" % (VT + n, 1024 * n))
        a("s_add_u32 s26, s26, 128")
        a("s_cmp_eq_u32 s33, %d" % (NT * TS))
        a("s_cselect_b32 s33, 0, s33")
        vm.issue("T%d" % m, 4)
    issueT(0)
    srd(a, 8, 4, 576 * 4608 * 2)
    for n in range(5):
        if n: a("v_add_u32 v6, %d, v2" % (64 * n))
        src = "v6" if n else "v2"
        a("v_mul_u32_u24 v7, 1821, %s" % src)
        a("v_lshrrev_b32 v7, 16, v7")
        a("v_mul_u32_u24 v8, 36, v7")
        a("v_sub_u32 v8, %s, v8" % src)
        a("v_bfe_u32 v9, v7, 2, 1")
        a("v_lshlrev_b32 v6, 1, v9")
        a("v_xor_b32 v8, v8, v6")
        a("v_and_b32 v7, 3, v7")
        a("v_lshl_add_u32 v7, v9, 3, v7")
        a("v_mul_u32_u24 v7, 9216, v7")
        a("v_lshl_add_u32 v%d, v8, 4, v7" % (VF + n))
        if 0 < n < 4: a("v_subrev_u32 v%d, %d, v%d" % (VF + n, 1024 * n, VF + n))
    a("s_and_b32 s36, s3, 1")
    a("s_lshl_b32 s36, s36, 4")
    a("s_lshr_b32 s37, s3, 1")
    a("s_lshl_b32 s37, s37, 2")
    a("s_add_u32 s36, s36, s37")
    a("s_mul_i32 s27, s36, 9216")
    a("s_mul_i32 s36, s23, 576")
    a("s_add_u32 s27, s27, s36")
    a("s_cmp_eq_u32 s21, 0")
    a("s_cselect_b32 s36, 4608, 0")
    a("s_add_u32 s27, s27, s36")
    a("s_mul_i32 s25, s3, 4608")
    a("s_add_u32 s25, s25, %d" % FB_)
    a("s_mov_b32 s34, 0")
    def issueF(k):
        a("s_add_u32 s35, s34, s25")
        a("s_mov_b32 m0, s35")
        a("s_add_u32 s36, s35, 4096")
        for n in range(4):
            if "nodma" not in DBG: a("buffer_load_dwordx4 v%d, s[8:11], s27 offen offset:%d lds" % (VF + n, 1024 * n))
        a("s_mov_b32 m0, s36")
        a("s_mov_b64 exec, 0xffffffff")
        if "nodma" not in DBG: a("buffer_load_dwordx4 v%d, s[8:11], s27 offen lds" % (VF + 4))
        a("s_mov_b64 exec, -1")
        a("s_add_u32 s27, s27, %d" % (32 * 9216))
        a("s_add_u32 s34, s34, %d" % FSL)
        a("s_cmp_eq_u32 s34, %d" % (NF * FSL))
        a("s_cselect_b32 s34, 0, s34")
        vm.issue("F%d" % k, 5)
    issueF(0); issueF(1)
    def other_setup():
        a("s_load_dwordx2 s[6:7], s[0:1], 104")
        a("s_load_dwordx2 s[18:19], s[0:1], 96")
        a("s_load_dwordx4 s[88:91], s[0:1], 32")
        a("s_waitcnt lgkmcnt(0)")
        srd(a, 12, 6, WS_BYTES)
        srd(a, 60, 18, 256)
        srd(a, 16, 88, 576 * 2048 * 2)
        srd(a, 84, 90, 576 * 2)
    other_setup()
    a("s_add_u32 s3, s3, 4"); stamp_setup(a, 1); stamp(a, 0); a("s_sub_u32 s3, s3, 4")
    SS = [28, 30, 32, 34]; ONE = 36
    for r in range(28, 36): a("v_mov_b32 v%d, 0" % r)
    for r in range(ONE, ONE + 4): a("v_mov_b32 v%d, 0x3f803f80" % r)
    CA = 40
    for r in range(CA, CA + 20): a("v_mov_b32 v%d, 0" % r)
    XB = 64; CF = 80
    a("v_lshlrev_b32 v10, 4, v2")
    a("v_add_u32 v10, s24, v10")
    a("v_lshrrev_b32 v11, 2, v2")
    a("v_mul_u32_u24 v11, %d, v11" % FS)
    a("v_and_b32 v12, 3, v2")
    a("v_lshl_add_u32 v11, v12, 3, v11")
    a("v_bfe_u32 v13, v2, 4, 1")
    a("v_lshlrev_b32 v13, 5, v13")
    a("s_lshr_b32 s36, s3, 1")
    a("s_mul_i32 s37, s36, 9")
    a("s_and_b32 s38, s3, 1")
    a("s_lshl_b32 s38, s38, 2")
    a("s_add_u32 s37, s37, s38")
    a("s_lshl_b32 s40, s37, 6")
    a("s_lshl_b32 s37, s37, 5")
    a("s_add_u32 s37, s37, %d" % FB_)
    a("v_add_u32 v11, s37, v11")
    a("v_add_u32 v5, v11, v13")
    a("v_sub_u32 v6, v11, v13")
    a("s_cmp_eq_u32 s36, 0")
    a("s_cselect_b64 vcc, -1, 0")
    a("v_cndmask_b32 v11, v6, v5, vcc")
    a("v_cndmask_b32 v12, v5, v6, vcc")
    def rowstats_rd(m):
        if "nors" in DBG: return
        a("v_add_u32 v5, %d, v10" % ((m % NT) * TS))
        for n in range(4):
            a("ds_read_b128 %s, v5 offset:%d" % (vr(XB + 4 * n), 1024 * n))
    def rowstats_do():
        if "nors" in DBG: return
        for d in range(4):
            for n in range(4):
                r = XB + 4 * n + d
                a("v_dot2_f32_bf16 v%d, v%d, v%d, v%d" % (SS[n], r, ONE, SS[n]))
                a("v_dot2_f32_bf16 v%d, v%d, v%d, v%d" % (SS[n] + 1, r, r, SS[n] + 1))
    def colsum_rd(k):
        if "nocs" in DBG: return
        a("v_add_u32 v6, %d, v11" % ((k % NF) * FSL))
        a("v_add_u32 v7, %d, v12" % ((k % NF) * FSL))
        for q in range(5):
            for half in range(2):
                a("ds_read_b64_tr_b16 %s, v%d offset:%d" % (vr(CF + 4 * q + 2 * half, 2), 6 + (q & 1), 16 * half * FS + 32 * q))
    def colsum_do():
        if "nocs" in DBG: return
        for q in range(5):
            a("v_mfma_f32_16x16x32_bf16 %s, %s, %s, %s" % (vr(CA + 4 * q), vr(CF + 4 * q), vr(ONE), vr(CA + 4 * q)))
    vm.wait(["T0", "F0"])
    a("s_barrier")
    stamp(a, 1)
    colsum_rd(0); rowstats_rd(0)
    issueT(1); issueF(2); issueF(3)
    a("s_waitcnt lgkmcnt(0)")
    colsum_do(); rowstats_do()
    vm.wait(["F1"])
    a("s_barrier")
    for k in range(NK):
        rs = (k % 2 == 1 and (k + 1) // 2 < 9)
        if k + 1 < NK: colsum_rd(k + 1)
        if rs: rowstats_rd((k + 1) // 2)
        if k == 0:
            issueF(4); issueT(2); issueF(5)
        if k >= 1 and k + 5 < NK: issueF(k + 5)
        if k % 2 == 1 and (k - 1) // 2 + 3 < 9: issueT((k - 1) // 2 + 3)
        a("s_waitcnt lgkmcnt(0)")
        if k + 1 < NK: colsum_do()
        if rs: rowstats_do()
        if k + 1 < NK:
            vm.wait(["F%d" % (k + 2), "T%d" % ((k + 2) // 2)])
            a("s_barrier")
    a("s_nop 3")
    for ctl in ("quad_perm:[1,0,3,2]", "quad_perm:[2,3,0,1]", "row_half_mirror"):
        for rg in range(4):
            for e in range(2):
                a("v_add_f32_dpp v%d, v%d, v%d %s row_mask:0xf bank_mask:0xf" % (SS[rg] + e, SS[rg] + e, SS[rg] + e, ctl))
        a("s_nop 1")
    ML = 64
    for rg in range(4):
        emit_ln_finish(a, SS[rg], SS[rg] + 1, 576, ML + 2 * rg, ML + 2 * rg + 1, 76)
        a("v_mov_b32 v%d, v%d" % (SS[rg] + 1, ML + 2 * rg + 1))
        a("v_sub_f32 v%d, 0, v%d" % (SS[rg], ML + 2 * rg))
    a("s_lshl_b32 s35, s3, 8")
    a("v_lshlrev_b32 v6, 3, v3")
    a("v_add_u32 v12, s35, v6")
    a("v_cmp_eq_u32 vcc, 0, v4")
    a("s_and_saveexec_b64 s[36:37], vcc")
    for rg in range(4):
        a("ds_write_b64 v12, %s offset:%d" % (vr(SS[rg], 2), RST + 64 * rg))
    a("s_mov_b64 exec, s[36:37]")
    a("s_lshl_b32 s36, s21, 8")
    a("s_or_b32 s36, s36, s23")
    a("s_cmp_lg_u32 s36, 256")
    a("s_cbranch_scc1 %s_nost1" % name)
    a("s_lshl_b32 s35, s22, 7")
    a("s_lshl_b32 s36, s3, 5")
    a("s_add_u32 s35, s35, s36")
    a("s_lshl_b32 s35, s35, 3")
    a("s_add_u32 s35, s35, 0x%x" % STATS1)
    a("v_mov_b32 v7, 0x7ffffff0")
    a("v_cndmask_b32 v6, v7, v6, vcc")
    for rg in range(4):
        a("buffer_store_dwordx2 %s, v6, s[12:15], s35 offen offset:%d" % (vr(ML + 2 * rg, 2), 64 * rg))
    a.label("%s_nost1" % name)
    a("v_lshrrev_b32 v12, 4, v2")
    a("v_lshlrev_b32 v12, 4, v12")
    a("v_add_u32 v12, s40, v12")
    a("v_and_b32 v13, 15, v2")
    a("v_cmp_eq_u32 vcc, 0, v13")
    a("s_and_saveexec_b64 s[36:37], vcc")
    for q in range(5):
        a("ds_write_b128 v12, %s offset:%d" % (vr(CA + 4 * q), CSO + 64 * q))
    a("s_mov_b64 exec, s[36:37]")
    a("s_waitcnt lgkmcnt(0)")
    a("s_barrier")
    a("s_setprio 0")
    ACC = 112
    a("s_lshr_b32 s24, s3, 1")
    a("s_and_b32 s25, s3, 1")
    a("v_and_b32 v3, 15, v2")
    a("s_lshl_b32 s23, s23, 1")
    a("s_add_u32 s23, s23, 1")
    a("s_mov_b32 s40, 576")
    a("s_mov_b32 s98, 1")
    a("s_mul_i32 s36, s3, 18432")
    a("s_add_u32 s36, s36, %d" % TB0)
    a("v_lshlrev_b32 v10, 4, v2")
    a("v_add_u32 v11, s36, v10")
    a("s_barrier")
    for n in range(18):
        a("ds_read_b128 %s, v11 offset:%d" % (vr(ACC + 4 * n), 1024 * n))
        if n in (7, 13): a("s_waitcnt lgkmcnt(4)")
    a("s_branch %s_epi" % name)

    def gran_addr():
        a("v_lshrrev_b32 v10, 4, v2")
        a("s_lshl_b32 s33, s25, 1")
        a("v_add_u32 v11, s33, v10")
        a("v_and_b32 v11, 3, v11")
        a("v_lshl_add_u32 v11, v11, 4, v3")
        a("v_lshlrev_b32 v94, 8, v11")
        a("s_lshl_b32 s59, s22, 7")
        a("s_lshl_b32 s36, s24, 6")
        a("s_add_u32 s59, s59, s36")
        a("s_lshl_b32 s59, s59, 8")
        a("s_add_u32 s59, s59, 0x%x" % STATS2)
        a("s_lshl_b32 s36, s23, 1")
        a("s_add_u32 s36, s36, s25")
        a("s_lshl_b32 s36, s36, 3")
        a("s_add_u32 s58, s36, s59")
    a.label("%s_consumer" % name)
    a("s_load_dwordx4 s[64:67], s[0:1], 8")
    a("s_load_dwordx2 s[76:77], s[0:1], 24")
    a("s_load_dwordx2 s[78:79], s[0:1], 64")
    other_setup()
    srd(a, 68, 66, 2048 * 576 * 2)
    a("s_mov_b32 s100, s64"); a("s_mov_b32 s101, s65")
    srd(a, 64, 100, 2048 * 576 * 2)
    srd(a, 72, 76, 576 * 8)
    srd(a, 92, 78, 2048 * 2048 * 2)
    stamp_setup(a, 1); stamp(a, 0)
    a("s_lshr_b32 s24, s3, 1")
    a("s_and_b32 s25, s3, 1")
    a("v_and_b32 v3, 15, v2")
    a("s_lshl_b32 s23, s23, 1")
    a("s_mov_b32 s98, 0")
    a("s_mov_b32 s41, s2")
    a.label("%s_kv" % name)
    emit_kv_loads(a)
    a("s_cmp_lg_u32 s41, s2")
    a("s_cbranch_scc1 %s_kv2" % name)
    a("s_cmp_lg_u32 s21, 0")
    a("s_cbranch_scc1 %s_noclr" % name)
    gran_addr()
    a("v_mov_b32 v12, 0"); a("v_mov_b32 v13, 0x80000000")
    a("buffer_store_dwordx2 v[12:13], v94, s[12:15], s58 offen sc1")
    a("buffer_store_dwordx2 v[12:13], v94, s[12:15], s58 offen offset:16 sc1")
    a.label("%s_noclr" % name)
    if "nowarm" not in DBG:
        a("s_mov_b32 s99, 1")
        for r_ in (26, 27, 33, 36, 37, 38, 39, 40, 43, 58, 59): a("s_mov_b32 s%d, 0" % r_)
        for r_ in (4, 12, 13, 94): a("v_mov_b32 v%d, 0" % r_)
        a("s_mov_b64 s[96:97], 0")
        a("s_mov_b64 exec, 0")
        a("s_cmp_eq_u32 s3, 0"); a("s_cbranch_scc1 %s_epi" % name)
        a("s_cmp_eq_u32 s3, 1"); a("s_cbranch_scc1 %s_seg1" % name)
        a("s_cmp_eq_u32 s3, 2"); a("s_cbranch_scc1 %s_seg2" % name)
        a("s_branch %s_seg3" % name)
        a.label("%s_warmret" % name)
        a("s_mov_b64 s[96:97], -1")
        a("s_mov_b64 exec, -1")
        a("s_mov_b32 s99, 0")
    a.label("%s_kv2" % name)
    emit_kv_compute(a)
    a("s_add_u32 s41, s41, 32")
    a("s_cmp_lt_u32 s41, 256")
    a("s_cbranch_scc1 %s_kvd" % name)
    a("s_cmp_lt_u32 s41, 288")
    a("s_cbranch_scc1 %s_kv" % name)
    a.label("%s_kvd" % name)
    TB = [16, 32]; FR = 48
    vTa, vTb, vP = 4, 5, [6, 7]; vH = [8, 9]
    bTa = [88, 89]; bTb = [90, 91]; bP = [92, 93]; bH = [100, 101]
    PF = 96
    a("v_lshrrev_b32 v10, 4, v2")
    a("v_lshrrev_b32 v11, 1, v3")
    a("v_xor_b32 v10, v10, v11")
    a("v_lshlrev_b32 v10, 4, v10")
    a("v_lshl_add_u32 v10, v3, 7, v10")
    a("s_lshl_b32 s26, s24, 13")
    a("s_add_u32 s26, s26, %d" % TB0)
    a("v_add_u32 v10, s26, v10")
    a("s_lshl_b32 s26, s25, 12")
    a("v_add_u32 v%d, s26, v10" % bTa[0])
    a("s_xor_b32 s26, s26, 4096")
    a("v_add_u32 v%d, s26, v10" % bTb[0])
    a("v_xor_b32 v%d, 64, v%d" % (bTa[1], bTa[0]))
    a("v_xor_b32 v%d, 64, v%d" % (bTb[1], bTb[0]))
    a("v_lshrrev_b32 v10, 2, v2")
    a("v_mul_u32_u24 v10, %d, v10" % FS)
    a("v_and_b32 v11, 3, v2")
    a("v_lshl_add_u32 v10, v11, 3, v10")
    a("v_add_u32 v10, %d, v10" % FB_)
    a("v_bfe_u32 v13, v2, 4, 1")
    a("v_lshlrev_b32 v13, 5, v13")
    a("v_add_u32 v%d, v10, v13" % bH[0])
    a("v_sub_u32 v%d, v10, v13" % bH[1])
    a("s_mul_i32 s26, s25, 160")
    a("s_cmp_eq_u32 s25, 0")
    a("s_cselect_b64 vcc, -1, 0")
    a("v_cndmask_b32 v11, v%d, v%d, vcc" % (bH[1], bH[0]))
    a("v_cndmask_b32 v12, v%d, v%d, vcc" % (bH[0], bH[1]))
    a("v_add_u32 v%d, s26, v11" % bP[0])
    a("v_add_u32 v%d, s26, v12" % bP[1])
    a("v_lshrrev_b32 v10, 4, v2")
    a("v_lshlrev_b32 v10, 12, v10")
    a("v_lshl_add_u32 v95, v3, 4, v10")
    a("s_lshl_b32 s41, s22, 7")
    a("s_lshl_b32 s36, s3, 5")
    a("s_add_u32 s41, s41, s36")
    a("s_lshl_b32 s41, s41, 12")
    a("s_add_u32 s36, s23, s21")
    a("s_lshl_b32 s36, s36, 8")
    a("s_add_u32 s41, s41, s36")
    for r in range(ACC, ACC + 144): a("v_mov_b32 v%d, 0" % r)
    def accr(z, ft, tt): return ACC + 72 * z + 4 * tidx(ft, tt)
    def Fr(z, ft): return FR + 20 * z + 4 * ft
    trk = LdsTracker(a)
    def treads(buf):
        L = []
        for tt in range(4):
            r = TB[buf] + 4 * tt
            L.append(("ds_read_b128 %s, v%d offset:%d" % (vr(r), vTa if tt < 2 else vTb, (tt & 1) * 2048), range(r, r + 4)))
        return L
    def freads(z, ft):
        r = Fr(z, ft); L = []
        for half in range(2):
            off = 16 * half * FS + 32 * (9 * z + ft)
            v = vP[(z + ft) & 1] if ft < 4 else vH[z]
            L.append(("ds_read_b64_tr_b16 %s, v%d offset:%d" % (vr(r + 2 * half, 2), v, off), range(r + 2 * half, r + 2 * half + 2)))
        return L
    def rd(t):
        a(t[0]); trk.issue(t[1])
    fpairs = ((vP[0], bP[0]), (vP[1], bP[1]), (vH[0], bH[0]), (vH[1], bH[1]))
    a("v_mov_b32 v%d, v%d" % (vTa, bTa[0])); a("v_mov_b32 v%d, v%d" % (vTb, bTb[0]))
    for d, s_ in fpairs: a("v_mov_b32 v%d, v%d" % (d, s_))
    a("s_mov_b32 s27, 0")
    a("s_mov_b32 s34, 0")
    a("s_mov_b32 s33, 0")
    stamp(a, 1)
    a("s_barrier")
    stamp(a, 2)
    for t in treads(0): rd(t)
    for z in range(2):
        for ft in range(5):
            for t in freads(z, ft): rd(t)
            if len(trk.out) >= 12: trk.drain()
    trk.drain()
    def iteration(par):
        a("s_barrier")
        upd = []
        if par == 1:
            upd += ["s_add_u32 s27, s27, %d" % TS, "s_cmp_eq_u32 s27, %d" % (NT * TS), "s_cselect_b32 s27, 0, s27"]
        upd += ["v_add_u32 v%d, s27, v%d" % (vTa, bTa[1 - par]), "v_add_u32 v%d, s27, v%d" % (vTb, bTb[1 - par])]
        upd += ["s_add_u32 s34, s34, %d" % FSL, "s_cmp_eq_u32 s34, %d" % (NF * FSL), "s_cselect_b32 s34, 0, s34"]
        upd += ["v_add_u32 v%d, s34, v%d" % (d, s_) for d, s_ in fpairs]
        pend = [("x", u) for u in upd] + [("r", t) for t in treads(1 - par)]
        if par == 0:
            pend.append(("x", "buffer_load_dwordx4 %s, v95, s[92:95], s41 offen" % vr(PF)))
            pend.append(("x", "s_add_u32 s41, s41, 16384"))
        else:
            pend.append(("x", "s_add_u32 s33, s33, 1"))
        nm = 0
        for z in range(2):
            for ft in range(5):
                for tt in range(4 if ft < 4 else 2):
                    c = accr(z, ft, tt); A = Fr(z, ft); B = TB[par] + 4 * tt
                    trk.need(list(range(A, A + 4)) + list(range(B, B + 4)))
                    if "nomfma" not in DBG: a("v_mfma_f32_16x16x32_bf16 %s, %s, %s, %s" % (vr(c), vr(A), vr(B), vr(c)))
                    nfill = 1
                    while pend and nfill:
                        k, t = pend.pop(0)
                        if k == "x":
                            a(t)
                            if t.startswith("s_") and nm < 8: continue
                        else: rd(t)
                        nfill -= 1
                    nm += 1
                pend += [("r", t) for t in freads(z, ft)]
        for k, t in pend:
            if k == "x": a(t)
            else: rd(t)
        a("s_waitcnt lgkmcnt(15)")
        if len(trk.out) > 15: trk.out = trk.out[-15:]
    a.label("%s_cloop" % name)
    trk.out = []
    lb = len(a.lines)
    iteration(0); iteration(1)
    state = copy.deepcopy(trk.out)
    del a.lines[lb:]
    trk.out = copy.deepcopy(state)
    iteration(0); iteration(1)
    assert [sorted(x) for x in trk.out] == [sorted(x) for x in state]
    a("s_cmp_lt_u32 s33, %d" % (NK // 2))
    a("s_cbranch_scc1 %s_cloop" % name)
    trk.drain()
    stamp(a, 3)
    a("s_waitcnt vmcnt(0)")
    a("s_barrier")
    a("s_cmp_lg_u32 s3, 0")
    a("s_cbranch_scc1 %s_nosig" % name)
    a("v_mov_b32 v10, 1")
    a("s_lshl_b32 s36, s22, 2")
    a("v_mov_b32 v11, s36")
    a("s_mov_b64 exec, 1")
    a("buffer_atomic_add v10, v11, s[60:63], 0 offen sc1")
    a("s_mov_b64 exec, -1")
    a.label("%s_nosig" % name)
    a("s_mul_i32 s36, s3, 18432")
    a("s_add_u32 s36, s36, %d" % TB0)
    a("v_lshlrev_b32 v10, 4, v2")
    a("v_add_u32 v11, s36, v10")
    for n, (ft, tt) in enumerate(TILES):
        a("ds_write_b128 v11, %s offset:%d" % (vr(accr(1, ft, tt)), 1024 * tidx(ft, tt)))
        if n in (7, 13): a("s_waitcnt lgkmcnt(4)")
    a("s_mov_b32 s40, 0")
    a("s_waitcnt lgkmcnt(0)")
    a("s_barrier")
    a.label("%s_epi" % name)
    MR = 100; CS = 52; ZP = 16; T = 72
    gelu_consts(a)
    a("s_lshl_b32 s36, s24, 9")
    a("s_lshl_b32 s37, s25, 8")
    a("s_add_u32 s38, s36, s37")
    a("s_xor_b32 s37, s37, 256")
    a("s_add_u32 s39, s36, s37")
    a("v_lshlrev_b32 v10, 3, v3")
    a("v_add_u32 v11, s38, v10")
    a("ds_read_b64 %s, v11 offset:%d" % (vr(MR, 2), RST))
    a("ds_read_b64 %s, v11 offset:%d" % (vr(MR + 2, 2), RST + 128))
    a("v_add_u32 v11, s39, v10")
    a("ds_read_b64 %s, v11 offset:%d" % (vr(MR + 4, 2), RST))
    a("ds_read_b64 %s, v11 offset:%d" % (vr(MR + 6, 2), RST + 128))
    a("v_lshrrev_b32 v10, 4, v2")
    a("v_lshlrev_b32 v10, 4, v10")
    a("v_add_u32 v10, s40, v10")
    a("s_mul_i32 s36, s25, 320")
    a("v_add_u32 v11, s36, v10")
    a("s_waitcnt lgkmcnt(6)")
    for ft in range(4):
        a("ds_read_b128 %s, v11 offset:%d" % (vr(CS + 4 * ft), CSO + 64 * ft))
    a("ds_read_b128 %s, v10 offset:%d" % (vr(CS + 16), CSO + 256))
    S = [108, 110, 8, 12]; Q = [109, 111, 9, 13]
    for tt in range(4):
        a("v_mov_b32 v%d, 0" % S[tt]); a("v_mov_b32 v%d, 0" % Q[tt])
    a("v_mov_b32 v88, 0x3f803f80")
    a("s_waitcnt lgkmcnt(0)")
    for ft in range(5):
        if ft == 3:
            seg_end(a, name)
            a.label("%s_seg1" % name)
        tts = range(4 if ft < 4 else 2)
        items = [(ACC + 4 * tidx(ft, tt), CS + 4 * ft, MR + 2 * tt, ZP + 2 * tidx(ft, tt)) for tt in tts]
        emit_fold_gelu(a, items, T)
        for d in range(2):
            for tt in tts:
                p = ZP + 2 * tidx(ft, tt) + d
                a("v_dot2_f32_bf16 v%d, v%d, v88, v%d" % (S[tt], p, S[tt]))
                a("v_dot2_f32_bf16 v%d, v%d, v%d, v%d" % (Q[tt], p, p, Q[tt]))
    a("s_cmp_eq_u32 s21, 0")
    a("s_cbranch_scc1 %s_z2" % name)
    a("s_lshl_b32 s36, s22, 4")
    a("s_add_u32 s36, s36, s23")
    a("s_lshl_b32 s36, s36, 2")
    a("s_add_u32 s36, s36, s3")
    a("s_mul_i32 s36, s36, 9216")
    a("s_add_u32 s36, s36, 0x%x" % Z1IMG)
    a("v_lshlrev_b32 v10, 4, v2")
    for q in range(9):
        if q in (4, 8): a("s_add_u32 s36, s36, 4096")
        a("buffer_store_dwordx4 %s, v10, s[12:15], s36 offen offset:%d" % (vr(ZP + 4 * q), (q & 3) * 1024))
    a("s_branch %s_conv" % name)
    a.label("%s_z2" % name)
    a("s_nop 1")
    emit_xg_reduce(a, S + Q, 72)
    gran_addr()
    for g in range(1, 4):
        a("v_cmp_eq_u32 vcc, %d, v10" % g)
        a("s_nop 1")
        a("v_cndmask_b32 v%d, v%d, v%d, vcc" % (S[0], S[0], S[g]))
        a("v_cndmask_b32 v%d, v%d, v%d, vcc" % (Q[0], Q[0], Q[g]))
    a("v_and_b32 v%d, 0x7fffffff, v%d" % (Q[0], Q[0]))
    a("buffer_store_dwordx2 v[%d:%d], v94, s[12:15], s58 offen sc1" % (S[0], Q[0]))
    a.label("%s_conv" % name)
    seg_end(a, name)
    stamp(a, 4)
    a("v_lshlrev_b32 v4, 2, v3")
    a("s_mov_b32 s40, 0")
    a.label("%s_pollp" % name)
    a("buffer_load_dword v5, v4, s[60:63], 0 offen sc1")
    a("s_add_u32 s40, s40, 1")
    a("s_waitcnt vmcnt(0)")
    a("v_cmp_gt_u32 vcc, 16, v5")
    a("s_cmp_gt_u32 s40, %d" % SPIN_MAX)
    a("s_cbranch_scc1 %s_pollpx" % name)
    a("s_cbranch_vccz %s_pollpx" % name)
    a("s_sleep 2")
    a("s_branch %s_pollp" % name)
    a.label("%s_pollpx" % name)
    a("s_lshl_b32 s43, s2, 2")
    a("s_add_u32 s43, s43, s3")
    a("s_mov_b32 s27, s3")
    a("s_cmp_eq_u32 s98, 0")
    a("s_cbranch_scc1 %s_cjgo" % name)
    a("s_cmp_eq_u32 s21, 0")
    a("s_cbranch_scc1 %s_cjdone" % name)
    a("s_cmp_lg_u32 s3, 0")
    a("s_cbranch_scc1 %s_cjdone" % name)
    a("s_add_u32 s43, s2, %d" % (1024 - 128))
    a("s_mov_b32 s27, 4")
    a.label("%s_cjgo" % name)
    a("s_mul_i32 s27, s27, %d" % CJ_SIZE)
    a("s_add_u32 s27, s27, %d" % CJB)
    a("s_and_b32 s26, s43, 1")
    a("s_lshr_b32 s43, s43, 1")
    a.label("%s_seg2" % name)
    emit_conv_job(a, name)
    seg_end(a, name)
    stamp(a, 5)
    a("s_cmp_lg_u32 s21, 0")
    a("s_cbranch_scc1 %s_fin" % name)
    a("v_lshrrev_b32 v10, 4, v2")
    a("v_lshlrev_b32 v11, 8, v3")
    a("v_lshl_add_u32 v11, v10, 6, v11")
    a("s_lshl_b32 s33, s25, 13")
    a("s_add_u32 s36, s59, s33")
    a("s_xor_b32 s33, s33, 8192")
    a("s_add_u32 s37, s59, s33")
    a("s_add_u32 s38, s36, 4096")
    a("s_add_u32 s39, s37, 4096")
    PB = 112
    a.label("%s_poll1" % name)
    for tt in range(4):
        for q in range(4):
            a("buffer_load_dwordx4 %s, v11, s[12:15], s%d offen offset:%d sc1" % (vr(PB + 16 * tt + 4 * q), (36, 38, 37, 39)[tt], 16 * q))
    a("s_waitcnt vmcnt(0)")
    a("v_mov_b32 v12, 0")
    for r in range(PB + 1, PB + 64, 4):
        a("v_or3_b32 v12, v12, v%d, v%d" % (r, r + 2))
    a("v_cmp_gt_i32 vcc, 0, v12")
    a("s_add_u32 s40, s40, 1")
    a("s_cmp_gt_u32 s40, %d" % SPIN_MAX)
    a("s_cbranch_scc1 %s_poll1x" % name)
    a("s_cbranch_vccz %s_poll1x" % name)
    a("s_sleep 8")
    a("s_branch %s_poll1" % name)
    a.label("%s_poll1x" % name)
    stamp(a, 6)
    a.label("%s_seg3" % name)
    for tt in range(4):
        b = PB + 16 * tt
        for st in (8, 4, 2):
            for q in range(0, st, 2):
                a("v_pk_add_f32 %s, %s, %s" % (vr(b + q, 2), vr(b + q, 2), vr(b + q + st, 2)))
    emit_xg_reduce(a, [PB + 16 * tt + e for tt in range(4) for e in range(2)], 72)
    for tt in range(4):
        b = PB + 16 * tt
        emit_ln_finish(a, b, b + 1, 2304, b + 2, MR + 2 * tt, b + 4)
        a("v_mul_f32 v%d, -v%d, v%d" % (MR + 2 * tt + 1, b + 2, MR + 2 * tt))
    a("v_lshrrev_b32 v11, 2, v2"); a("v_and_b32 v11, 1, v11"); a("v_lshlrev_b32 v11, 4, v11")
    a("v_lshrrev_b32 v12, 3, v2"); a("v_and_b32 v12, 1, v12"); a("v_lshl_add_u32 v11, v12, 2, v11")
    a("v_and_b32 v12, 3, v2"); a("v_add_u32 v11, v11, v12")
    a("v_mul_u32_u24 v11, 288, v11")
    a("v_lshrrev_b32 v12, 1, v10"); a("v_lshl_add_u32 v11, v12, 4, v11")
    a("v_and_b32 v12, 1, v10")
    a("v_lshl_add_u32 v13, v12, 5, v11")
    a("v_mul_u32_u24 v12, 2304, v12")
    a("v_add_u32 v9, v11, v12")
    a("s_lshl_b32 s33, s23, 5")
    a("s_lshl_b32 s36, s22, 1")
    a("s_add_u32 s33, s33, s36")
    a("s_add_u32 s33, s33, s24")
    a("s_mul_i32 s33, s33, 18432")
    if ZIMG: a("s_add_u32 s33, s33, 0x%x" % ZIMG)
    a("s_mul_i32 s36, s25, 9216")
    a("s_add_u32 s37, s33, s36")
    a("s_xor_b32 s36, s36, 9216")
    a("s_add_u32 s38, s33, s36")
    a("s_add_u32 s39, s37, 128")
    a("s_mul_i32 s36, s25, 160")
    a("s_add_u32 s37, s37, s36")
    a("s_add_u32 s38, s38, s36")
    def norm_pair(nA, ttA, nB, ttB, O):
        for q, (n, tt) in enumerate(((nA, ttA), (nB, ttB))):
            for d in range(2):
                z = ZP + 2 * n + d; t = T + 4 * q + 2 * d
                a("v_lshlrev_b32 v%d, 16, v%d" % (t, z))
                a("v_and_b32 v%d, 0xffff0000, v%d" % (t + 1, z))
        for q, (n, tt) in enumerate(((nA, ttA), (nB, ttB))):
            for d in range(2):
                t = T + 4 * q + 2 * d
                a("v_pk_fma_f32 %s, %s, %s, %s op_sel:[0,0,1] op_sel_hi:[1,0,1]" % (vr(t, 2), vr(t, 2), vr(MR + 2 * tt, 2), vr(MR + 2 * tt, 2)))
        for q in range(2):
            for d in range(2):
                t = T + 4 * q + 2 * d
                a("v_cvt_pk_bf16_f32 v%d, v%d, v%d" % (O + 2 * q + d, t, t + 1))
        a("s_nop 1")
        a("v_permlane16_swap_b32 v%d, v%d" % (O, O + 2))
        a("v_permlane16_swap_b32 v%d, v%d" % (O + 1, O + 3))
    cnt = 0
    for pr in range(2):
        for tt in range(4):
            O = 112 + 4 * cnt; cnt += 1
            norm_pair(tidx(2 * pr, tt), tt, tidx(2 * pr + 1, tt), tt, O)
            a("s_nop 0")
            a("buffer_store_dwordx4 %s, v13, s[12:15], s%d offen offset:%d" % (vr(O), 37 if tt < 2 else 38, (tt & 1) * 2304 + 64 * pr))
    O = 112 + 4 * cnt
    norm_pair(16, 0, 17, 1, O)
    a("s_nop 0")
    a("buffer_store_dwordx4 %s, v9, s[12:15], s39 offen" % vr(O))
    seg_end(a, name)
    a.label("%s_fin" % name)
    stamp(a, 7)
    a("s_waitcnt vmcnt(0)")
    stamp(a, 8)
    a.label("%s_end" % name)
    a("s_endpgm")
    return a.text(), kernel_desc(name, 256, 256), (name, 256, 512, LDSB)

def gen_k1f(name="k1_kernel"):
    a = Asm()
    TS = 16384; NT = 3; TB0 = 4096; FB_ = TB0 + NT * TS; FSL = 18432; NF = 6; FS = 576; NK = 18
    LDSB = FB_ + NF * FSL; RST = 0; CSO = 1024; CJB = TB0 + 4 * 18432
    kernel_begin(a, name)
    a("s_load_dwordx2 s[80:81], s[0:1], 0")
    a("s_load_dwordx2 s[4:5], s[0:1], 56")
    a("s_cmp_ge_u32 s2, 256")
    a("s_cbranch_scc1 %s_end" % name)
    a("v_lshrrev_b32 v1, 6, v0")
    a("v_and_b32 v2, 63, v0")
    a("v_readfirstlane_b32 s3, v1")
    a("s_and_b32 s20, s2, 7")
    a("s_lshr_b32 s21, s2, 3")
    a("s_and_b32 s22, s20, 1")
    a("s_lshl_b32 s22, s22, 3")
    a("s_and_b32 s23, s21, 7")
    a("s_add_u32 s22, s22, s23")
    a("s_lshr_b32 s21, s21, 3")
    a("s_and_b32 s23, s20, 6")
    a("s_and_b32 s24, s21, 1")
    a("s_add_u32 s23, s23, s24")
    a("s_lshr_b32 s21, s21, 1")
    a("s_mov_b32 s99, 0")
    a("s_mov_b64 s[96:97], -1")
    a("s_cmp_lt_u32 s3, 4")
    a("s_cbranch_scc1 %s_consumer" % name)
    a("s_setprio 3")
    a("s_sub_u32 s3, s3, 4")
    a("v_lshrrev_b32 v3, 3, v2")
    a("v_and_b32 v4, 7, v2")
    VT = 16; VF = 20
    a("s_lshl_b32 s24, s3, 5")
    a("v_add_u32 v5, s24, v3")
    a("v_lshrrev_b32 v7, 4, v2")
    a("v_xor_b32 v7, v7, v4")
    a("v_mul_u32_u24 v6, 1152, v5")
    a("v_lshl_add_u32 v%d, v7, 4, v6" % VT)
    a("v_xor_b32 v%d, 64, v%d" % (VT + 1, VT))
    a("v_add_u32 v%d, %d, v%d" % (VT + 1, 9216 - 1024, VT + 1))
    a("v_add_u32 v%d, %d, v%d" % (VT + 2, 2 * (9216 - 1024), VT))
    a("v_add_u32 v%d, %d, v%d" % (VT + 3, 2 * (9216 - 1024), VT + 1))
    a("s_mul_i32 s26, s22, %d" % (128 * 1152))
    a("s_lshl_b32 s24, s3, 12")
    a("s_add_u32 s24, s24, %d" % TB0)
    a("s_mov_b32 s33, 0")
    a("s_waitcnt lgkmcnt(0)")
    srd(a, 28, 80, 2048 * 576 * 2)
    vm = VmTracker(a)
    def issueT(m):
        a("s_add_u32 s35, s33, s24")
        a("s_mov_b32 m0, s35")
        a("s_add_u32 s33, s33, %d" % TS)
        for n in range(4):
            if "nodma" not in DBG: a("buffer_load_dwordx4 v%d, s[28:31], s26 offen offset:%d lds" % (VT + n, 1024 * n))
        a("s_add_u32 s26, s26, 128")
        a("s_cmp_eq_u32 s33, %d" % (NT * TS))
        a("s_cselect_b32 s33, 0, s33")
        vm.issue("T%d" % m, 4)
    issueT(0)
    srd(a, 8, 4, 576 * 4608 * 2)
    for n in range(5):
        if n: a("v_add_u32 v6, %d, v2" % (64 * n))
        src = "v6" if n else "v2"
        a("v_mul_u32_u24 v7, 1821, %s" % src)
        a("v_lshrrev_b32 v7, 16, v7")
        a("v_mul_u32_u24 v8, 36, v7")
        a("v_sub_u32 v8, %s, v8" % src)
        a("v_bfe_u32 v9, v7, 2, 1")
        a("v_lshlrev_b32 v6, 1, v9")
        a("v_xor_b32 v8, v8, v6")
        a("v_and_b32 v7, 3, v7")
        a("v_lshl_add_u32 v7, v9, 3, v7")
        a("v_mul_u32_u24 v7, 9216, v7")
        a("v_lshl_add_u32 v%d, v8, 4, v7" % (VF + n))
        if 0 < n < 4: a("v_subrev_u32 v%d, %d, v%d" % (VF + n, 1024 * n, VF + n))
    a("s_and_b32 s36, s3, 1")
    a("s_lshl_b32 s36, s36, 4")
    a("s_lshr_b32 s37, s3, 1")
    a("s_lshl_b32 s37, s37, 2")
    a("s_add_u32 s36, s36, s37")
    a("s_mul_i32 s27, s36, 9216")
    a("s_mul_i32 s36, s23, 576")
    a("s_add_u32 s27, s27, s36")
    a("s_cmp_eq_u32 s21, 0")
    a("s_cselect_b32 s36, 4608, 0")
    a("s_add_u32 s27, s27, s36")
    a("s_mul_i32 s25, s3, 4608")
    a("s_add_u32 s25, s25, %d" % FB_)
    a("s_mov_b32 s34, 0")
    def issueF(k):
        a("s_add_u32 s35, s34, s25")
        a("s_mov_b32 m0, s35")
        a("s_add_u32 s36, s35, 4096")
        for n in range(4):
            if "nodma" not in DBG: a("buffer_load_dwordx4 v%d, s[8:11], s27 offen offset:%d lds" % (VF + n, 1024 * n))
        a("s_mov_b32 m0, s36")
        a("s_mov_b64 exec, 0xffffffff")
        if "nodma" not in DBG: a("buffer_load_dwordx4 v%d, s[8:11], s27 offen lds" % (VF + 4))
        a("s_mov_b64 exec, -1")
        a("s_add_u32 s27, s27, %d" % (32 * 9216))
        a("s_add_u32 s34, s34, %d" % FSL)
        a("s_cmp_eq_u32 s34, %d" % (NF * FSL))
        a("s_cselect_b32 s34, 0, s34")
        vm.issue("F%d" % k, 5)
    issueF(0); issueF(1)
    def other_setup():
        a("s_load_dwordx2 s[6:7], s[0:1], 104")
        a("s_load_dwordx2 s[18:19], s[0:1], 96")
        a("s_waitcnt lgkmcnt(0)")
        srd(a, 12, 6, WS_BYTES)
        srd(a, 60, 18, 256)
    def prep_srds():
        srd(a, 68, 66, 2048 * 576 * 2)
        a("s_mov_b32 s88, s64"); a("s_mov_b32 s89, s65")
        srd(a, 64, 88, 2048 * 576 * 2)
        srd(a, 72, 76, 576 * 8)
        srd(a, 76, 100, 2304 * 576 * 2)
    other_setup()
    a("s_add_u32 s3, s3, 4"); stamp_setup(a, 1); stamp(a, 0); a("s_sub_u32 s3, s3, 4")
    a("s_load_dwordx4 s[64:67], s[0:1], 8")
    a("s_load_dwordx2 s[76:77], s[0:1], 24")
    a("s_load_dwordx2 s[100:101], s[0:1], 80")
    a("s_waitcnt lgkmcnt(0)")
    prep_srds()
    if "nowarm" not in DBG:
        a("s_mov_b32 s99, 1")
        a("s_mov_b32 s52, s24"); a("s_mov_b32 s53, s25")
        a("s_mov_b32 s82, s33"); a("s_mov_b32 s83, s34")
        for r_ in (36, 37, 38, 39, 40, 41, 42, 58, 59): a("s_mov_b32 s%d, 0" % r_)
        for r_ in (5, 8, 9, 10, 11, 12, 13, 94, 140, 141): a("v_mov_b32 v%d, 0" % r_)
        a("s_mov_b64 exec, 0")
        a("s_cmp_eq_u32 s3, 0"); a("s_cbranch_scc1 %s_epi" % name)
        a("s_cmp_eq_u32 s3, 1"); a("s_cbranch_scc1 %s_seg1" % name)
        a("s_cmp_eq_u32 s3, 2"); a("s_cbranch_scc1 %s_seg2" % name)
        a("s_branch %s_seg3" % name)
        a.label("%s_warmret" % name)
        a("s_mov_b64 exec, -1")
        a("s_mov_b32 s99, 0")
        a("s_mov_b32 s24, s52"); a("s_mov_b32 s25, s53")
        a("s_mov_b32 s33, s82"); a("s_mov_b32 s34, s83")
    SS = [28, 30, 32, 34]; ONE = 36
    for r in range(28, 36): a("v_mov_b32 v%d, 0" % r)
    for r in range(ONE, ONE + 4): a("v_mov_b32 v%d, 0x3f803f80" % r)
    CA = 40
    for r in range(CA, CA + 20): a("v_mov_b32 v%d, 0" % r)
    XB = 64; CF = 80
    a("v_lshlrev_b32 v10, 4, v2")
    a("v_add_u32 v10, s24, v10")
    a("v_lshrrev_b32 v11, 2, v2")
    a("v_mul_u32_u24 v11, %d, v11" % FS)
    a("v_and_b32 v12, 3, v2")
    a("v_lshl_add_u32 v11, v12, 3, v11")
    a("v_bfe_u32 v13, v2, 4, 1")
    a("v_lshlrev_b32 v13, 5, v13")
    a("s_lshr_b32 s36, s3, 1")
    a("s_mul_i32 s37, s36, 9")
    a("s_and_b32 s38, s3, 1")
    a("s_lshl_b32 s38, s38, 2")
    a("s_add_u32 s37, s37, s38")
    a("s_lshl_b32 s40, s37, 6")
    a("s_lshl_b32 s37, s37, 5")
    a("s_add_u32 s37, s37, %d" % FB_)
    a("v_add_u32 v11, s37, v11")
    a("v_add_u32 v5, v11, v13")
    a("v_sub_u32 v6, v11, v13")
    a("s_cmp_eq_u32 s36, 0")
    a("s_cselect_b64 vcc, -1, 0")
    a("v_cndmask_b32 v11, v6, v5, vcc")
    a("v_cndmask_b32 v12, v5, v6, vcc")
    def rowstats_rd(m):
        if "nors" in DBG: return
        a("v_add_u32 v5, %d, v10" % ((m % NT) * TS))
        for n in range(4):
            a("ds_read_b128 %s, v5 offset:%d" % (vr(XB + 4 * n), 1024 * n))
    def rowstats_do():
        if "nors" in DBG: return
        for d in range(4):
            for n in range(4):
                r = XB + 4 * n + d
                a("v_dot2_f32_bf16 v%d, v%d, v%d, v%d" % (SS[n], r, ONE, SS[n]))
                a("v_dot2_f32_bf16 v%d, v%d, v%d, v%d" % (SS[n] + 1, r, r, SS[n] + 1))
    def colsum_rd(k):
        if "nocs" in DBG: return
        a("v_add_u32 v6, %d, v11" % ((k % NF) * FSL))
        a("v_add_u32 v7, %d, v12" % ((k % NF) * FSL))
        for q in range(5):
            for half in range(2):
                a("ds_read_b64_tr_b16 %s, v%d offset:%d" % (vr(CF + 4 * q + 2 * half, 2), 6 + (q & 1), 16 * half * FS + 32 * q))
    def colsum_do():
        if "nocs" in DBG: return
        for q in range(5):
            a("v_mfma_f32_16x16x32_bf16 %s, %s, %s, %s" % (vr(CA + 4 * q), vr(CF + 4 * q), vr(ONE), vr(CA + 4 * q)))
    vm.wait(["T0", "F0"])
    a("s_barrier")
    stamp(a, 1)
    colsum_rd(0); rowstats_rd(0)
    issueT(1); issueF(2); issueF(3)
    a("s_waitcnt lgkmcnt(0)")
    colsum_do(); rowstats_do()
    vm.wait(["F1"])
    a("s_barrier")
    for k in range(NK):
        rs = (k % 2 == 1 and (k + 1) // 2 < 9)
        if k + 1 < NK: colsum_rd(k + 1)
        if rs: rowstats_rd((k + 1) // 2)
        if k == 0:
            issueF(4); issueT(2); issueF(5)
        if k >= 1 and k + 5 < NK: issueF(k + 5)
        if k % 2 == 1 and (k - 1) // 2 + 3 < 9: issueT((k - 1) // 2 + 3)
        a("s_waitcnt lgkmcnt(0)")
        if k + 1 < NK: colsum_do()
        if rs: rowstats_do()
        if k + 1 < NK:
            vm.wait(["F%d" % (k + 2), "T%d" % ((k + 2) // 2)])
            a("s_barrier")
    a("s_nop 3")
    for ctl in ("quad_perm:[1,0,3,2]", "quad_perm:[2,3,0,1]", "row_half_mirror"):
        for rg in range(4):
            for e in range(2):
                a("v_add_f32_dpp v%d, v%d, v%d %s row_mask:0xf bank_mask:0xf" % (SS[rg] + e, SS[rg] + e, SS[rg] + e, ctl))
        a("s_nop 1")
    ML = 64
    for rg in range(4):
        emit_ln_finish(a, SS[rg], SS[rg] + 1, 576, ML + 2 * rg, ML + 2 * rg + 1, 76)
        a("v_mov_b32 v%d, v%d" % (SS[rg] + 1, ML + 2 * rg + 1))
        a("v_sub_f32 v%d, 0, v%d" % (SS[rg], ML + 2 * rg))
    a("s_lshl_b32 s35, s3, 8")
    a("v_lshlrev_b32 v6, 3, v3")
    a("v_add_u32 v12, s35, v6")
    a("v_cmp_eq_u32 vcc, 0, v4")
    a("s_and_saveexec_b64 s[36:37], vcc")
    for rg in range(4):
        a("ds_write_b64 v12, %s offset:%d" % (vr(SS[rg], 2), RST + 64 * rg))
    a("s_mov_b64 exec, s[36:37]")
    a("s_lshl_b32 s36, s21, 8")
    a("s_or_b32 s36, s36, s23")
    a("s_cmp_lg_u32 s36, 256")
    a("s_cbranch_scc1 %s_nost1" % name)
    a("s_lshl_b32 s35, s22, 7")
    a("s_lshl_b32 s36, s3, 5")
    a("s_add_u32 s35, s35, s36")
    a("s_lshl_b32 s35, s35, 3")
    a("s_add_u32 s35, s35, 0x%x" % STATS1)
    a("v_mov_b32 v7, 0x7ffffff0")
    a("v_cndmask_b32 v6, v7, v6, vcc")
    for rg in range(4):
        a("buffer_store_dwordx2 %s, v6, s[12:15], s35 offen offset:%d" % (vr(ML + 2 * rg, 2), 64 * rg))
    a.label("%s_nost1" % name)
    a("v_lshrrev_b32 v12, 4, v2")
    a("v_lshlrev_b32 v12, 4, v12")
    a("v_add_u32 v12, s40, v12")
    a("v_and_b32 v13, 15, v2")
    a("v_cmp_eq_u32 vcc, 0, v13")
    a("s_and_saveexec_b64 s[36:37], vcc")
    for q in range(5):
        a("ds_write_b128 v12, %s offset:%d" % (vr(CA + 4 * q), CSO + 64 * q))
    a("s_mov_b64 exec, s[36:37]")
    a("s_waitcnt lgkmcnt(0)")
    a("s_barrier")
    a("s_setprio 0")
    ACC = 112
    a("s_lshr_b32 s24, s3, 1")
    a("s_and_b32 s25, s3, 1")
    a("v_and_b32 v3, 15, v2")
    a("s_lshl_b32 s23, s23, 1")
    a("s_add_u32 s23, s23, 1")
    a("s_mov_b32 s40, 576")
    a("s_mul_i32 s36, s3, 18432")
    a("s_add_u32 s36, s36, %d" % TB0)
    a("v_lshlrev_b32 v10, 4, v2")
    a("v_add_u32 v11, s36, v10")
    a("s_barrier")
    for n in range(18):
        a("ds_read_b128 %s, v11 offset:%d" % (vr(ACC + 4 * n), 1024 * n))
        if n in (7, 13): a("s_waitcnt lgkmcnt(4)")
    a("s_branch %s_epi" % name)

    def gran_addr():
        a("v_lshrrev_b32 v10, 4, v2")
        a("s_lshl_b32 s33, s25, 1")
        a("v_add_u32 v11, s33, v10")
        a("v_and_b32 v11, 3, v11")
        a("v_lshl_add_u32 v11, v11, 4, v3")
        a("v_lshlrev_b32 v94, 8, v11")
        a("s_lshl_b32 s59, s22, 7")
        a("s_lshl_b32 s36, s24, 6")
        a("s_add_u32 s59, s59, s36")
        a("s_lshl_b32 s59, s59, 8")
        a("s_add_u32 s59, s59, 0x%x" % STATS2)
        a("s_lshl_b32 s36, s23, 1")
        a("s_add_u32 s36, s36, s25")
        a("s_lshl_b32 s36, s36, 3")
        a("s_add_u32 s58, s36, s59")
    a.label("%s_consumer" % name)
    a("s_load_dwordx4 s[64:67], s[0:1], 8")
    a("s_load_dwordx2 s[76:77], s[0:1], 24")
    a("s_load_dwordx2 s[100:101], s[0:1], 80")
    a("s_load_dwordx2 s[90:91], s[0:1], 64")
    a("s_lshr_b32 s24, s3, 1")
    a("s_and_b32 s25, s3, 1")
    a("v_and_b32 v3, 15, v2")
    other_setup()
    srd(a, 28, 80, 2048 * 576 * 2)
    srd(a, 8, 4, 576 * 4608 * 2)
    if "nopf" not in DBG:
        a("s_and_b32 s36, s22, 7")
        a("s_mul_i32 s36, s36, 72")
        a("s_mul_i32 s37, s3, 18")
        a("s_add_u32 s36, s36, s37")
        a("s_mul_i32 s36, s36, 9216")
        a("s_mul_i32 s37, s23, 576")
        a("s_add_u32 s36, s36, s37")
        a("s_cmp_eq_u32 s21, 0")
        a("s_cselect_b32 s37, 4608, 0")
        a("s_add_u32 s36, s36, s37")
        a("s_and_b32 s36, s36, 0xffffff80")
        for n in range(2):
            a("v_add_u32 v10, %d, v2" % (64 * n))
            a("v_mul_u32_u24 v11, 13108, v10")
            a("v_lshrrev_b32 v11, 16, v11")
            a("v_mul_u32_u24 v12, 5, v11")
            a("v_sub_u32 v12, v10, v12")
            a("v_mul_u32_u24 v11, 9216, v11")
            a("v_lshl_add_u32 v11, v12, 7, v11")
            if n:
                a("v_cmp_gt_u32 vcc, 90, v10")
                a("v_mov_b32 v12, 0x7ffffff0")
                a("s_nop 0")
                a("v_cndmask_b32 v11, v12, v11, vcc")
            a("buffer_load_dword v96, v11, s[8:11], s36 offen")
        a("s_lshr_b32 s36, s2, 6")
        a("s_lshl_b32 s36, s36, 5")
        a("s_lshl_b32 s37, s22, 7")
        a("s_add_u32 s36, s36, s37")
        a("s_mul_i32 s36, s36, 1152")
        a("s_mul_i32 s37, s3, 9216")
        a("s_add_u32 s36, s36, s37")
        a("v_lshlrev_b32 v11, 7, v2")
        a("buffer_load_dword v96, v11, s[28:31], s36 offen")
        a("v_and_b32 v11, 7, v2")
        a("v_lshlrev_b32 v11, 7, v11")
        a("s_add_u32 s36, s36, 8192")
        a("buffer_load_dword v96, v11, s[28:31], s36 offen")
    prep_srds()
    srd(a, 92, 90, 2048 * 2048 * 2)
    stamp_setup(a, 1); stamp(a, 0)
    a("s_lshl_b32 s23, s23, 1")
    a("s_cmp_lg_u32 s21, 0")
    a("s_cbranch_scc1 %s_noclr" % name)
    gran_addr()
    a("v_mov_b32 v12, 0"); a("v_mov_b32 v13, 0x80000000")
    a("buffer_store_dwordx2 v[12:13], v94, s[12:15], s58 offen sc1")
    a("buffer_store_dwordx2 v[12:13], v94, s[12:15], s58 offen offset:16 sc1")
    a.label("%s_noclr" % name)
    TB = [16, 32]; FR = 48
    vTa, vTb, vP = 4, 5, [6, 7]; vH = [8, 9]
    bTa = [88, 89]; bTb = [90, 91]; bP = [92, 93]; bH = [100, 101]
    PF = 96
    a("v_lshrrev_b32 v10, 4, v2")
    a("v_lshrrev_b32 v11, 1, v3")
    a("v_xor_b32 v10, v10, v11")
    a("v_lshlrev_b32 v10, 4, v10")
    a("v_lshl_add_u32 v10, v3, 7, v10")
    a("s_lshl_b32 s26, s24, 13")
    a("s_add_u32 s26, s26, %d" % TB0)
    a("v_add_u32 v10, s26, v10")
    a("s_lshl_b32 s26, s25, 12")
    a("v_add_u32 v%d, s26, v10" % bTa[0])
    a("s_xor_b32 s26, s26, 4096")
    a("v_add_u32 v%d, s26, v10" % bTb[0])
    a("v_xor_b32 v%d, 64, v%d" % (bTa[1], bTa[0]))
    a("v_xor_b32 v%d, 64, v%d" % (bTb[1], bTb[0]))
    a("v_lshrrev_b32 v10, 2, v2")
    a("v_mul_u32_u24 v10, %d, v10" % FS)
    a("v_and_b32 v11, 3, v2")
    a("v_lshl_add_u32 v10, v11, 3, v10")
    a("v_add_u32 v10, %d, v10" % FB_)
    a("v_bfe_u32 v13, v2, 4, 1")
    a("v_lshlrev_b32 v13, 5, v13")
    a("v_add_u32 v%d, v10, v13" % bH[0])
    a("v_sub_u32 v%d, v10, v13" % bH[1])
    a("s_mul_i32 s26, s25, 160")
    a("s_cmp_eq_u32 s25, 0")
    a("s_cselect_b64 vcc, -1, 0")
    a("v_cndmask_b32 v11, v%d, v%d, vcc" % (bH[1], bH[0]))
    a("v_cndmask_b32 v12, v%d, v%d, vcc" % (bH[0], bH[1]))
    a("v_add_u32 v%d, s26, v11" % bP[0])
    a("v_add_u32 v%d, s26, v12" % bP[1])
    a("v_lshrrev_b32 v10, 4, v2")
    a("v_lshlrev_b32 v10, 12, v10")
    a("v_lshl_add_u32 v95, v3, 4, v10")
    a("s_lshl_b32 s41, s22, 7")
    a("s_lshl_b32 s36, s3, 5")
    a("s_add_u32 s41, s41, s36")
    a("s_lshl_b32 s41, s41, 12")
    a("s_add_u32 s36, s23, s21")
    a("s_lshl_b32 s36, s36, 8")
    a("s_add_u32 s41, s41, s36")
    for r in range(ACC, ACC + 144): a("v_mov_b32 v%d, 0" % r)
    def accr(z, ft, tt): return ACC + 72 * z + 4 * tidx(ft, tt)
    def Fr(z, ft): return FR + 20 * z + 4 * ft
    trk = LdsTracker(a)
    def treads(buf):
        L = []
        for tt in range(4):
            r = TB[buf] + 4 * tt
            L.append(("ds_read_b128 %s, v%d offset:%d" % (vr(r), vTa if tt < 2 else vTb, (tt & 1) * 2048), range(r, r + 4)))
        return L
    def freads(z, ft):
        r = Fr(z, ft); L = []
        for half in range(2):
            off = 16 * half * FS + 32 * (9 * z + ft)
            v = vP[(z + ft) & 1] if ft < 4 else vH[z]
            L.append(("ds_read_b64_tr_b16 %s, v%d offset:%d" % (vr(r + 2 * half, 2), v, off), range(r + 2 * half, r + 2 * half + 2)))
        return L
    def rd(t):
        a(t[0]); trk.issue(t[1])
    fpairs = ((vP[0], bP[0]), (vP[1], bP[1]), (vH[0], bH[0]), (vH[1], bH[1]))
    a("v_mov_b32 v%d, v%d" % (vTa, bTa[0])); a("v_mov_b32 v%d, v%d" % (vTb, bTb[0]))
    for d, s_ in fpairs: a("v_mov_b32 v%d, v%d" % (d, s_))
    a("s_mov_b32 s27, 0")
    a("s_mov_b32 s34, 0")
    a("s_mov_b32 s33, 0")
    stamp(a, 1)
    a("s_barrier")
    stamp(a, 2)
    for t in treads(0): rd(t)
    for z in range(2):
        for ft in range(5):
            for t in freads(z, ft): rd(t)
            if len(trk.out) >= 12: trk.drain()
    trk.drain()
    def iteration(par):
        a("s_barrier")
        upd = []
        if par == 1:
            upd += ["s_add_u32 s27, s27, %d" % TS, "s_cmp_eq_u32 s27, %d" % (NT * TS), "s_cselect_b32 s27, 0, s27"]
        upd += ["v_add_u32 v%d, s27, v%d" % (vTa, bTa[1 - par]), "v_add_u32 v%d, s27, v%d" % (vTb, bTb[1 - par])]
        upd += ["s_add_u32 s34, s34, %d" % FSL, "s_cmp_eq_u32 s34, %d" % (NF * FSL), "s_cselect_b32 s34, 0, s34"]
        upd += ["v_add_u32 v%d, s34, v%d" % (d, s_) for d, s_ in fpairs]
        pend = [("x", u) for u in upd] + [("r", t) for t in treads(1 - par)]
        if par == 0:
            pend.append(("x", "buffer_load_dwordx4 %s, v95, s[92:95], s41 offen" % vr(PF)))
            pend.append(("x", "s_add_u32 s41, s41, 16384"))
        else:
            pend.append(("x", "s_add_u32 s33, s33, 1"))
        nm = 0
        for z in range(2):
            for ft in range(5):
                for tt in range(4 if ft < 4 else 2):
                    c = accr(z, ft, tt); A = Fr(z, ft); B = TB[par] + 4 * tt
                    trk.need(list(range(A, A + 4)) + list(range(B, B + 4)))
                    if "nomfma" not in DBG: a("v_mfma_f32_16x16x32_bf16 %s, %s, %s, %s" % (vr(c), vr(A), vr(B), vr(c)))
                    nfill = 1
                    while pend and nfill:
                        k, t = pend.pop(0)
                        if k == "x":
                            a(t)
                            if t.startswith("s_") and nm < 8: continue
                        else: rd(t)
                        nfill -= 1
                    nm += 1
                pend += [("r", t) for t in freads(z, ft)]
        for k, t in pend:
            if k == "x": a(t)
            else: rd(t)
        a("s_waitcnt lgkmcnt(15)")
        if len(trk.out) > 15: trk.out = trk.out[-15:]
    a.label("%s_cloop" % name)
    trk.out = []
    lb = len(a.lines)
    iteration(0); iteration(1)
    state = copy.deepcopy(trk.out)
    del a.lines[lb:]
    trk.out = copy.deepcopy(state)
    iteration(0); iteration(1)
    assert [sorted(x) for x in trk.out] == [sorted(x) for x in state]
    a("s_cmp_lt_u32 s33, %d" % (NK // 2))
    a("s_cbranch_scc1 %s_cloop" % name)
    trk.drain()
    stamp(a, 3)
    a("s_waitcnt vmcnt(0)")
    a("s_barrier")
    a("s_or_b32 s36, s3, s21")
    a("s_cmp_lg_u32 s36, 0")
    a("s_cbranch_scc1 %s_nosig" % name)
    a("v_mov_b32 v10, 1")
    a("s_lshl_b32 s36, s22, 2")
    a("v_mov_b32 v11, s36")
    a("s_mov_b64 exec, 1")
    a("buffer_atomic_add v10, v11, s[60:63], 0 offen sc1")
    a("s_mov_b64 exec, -1")
    a.label("%s_nosig" % name)
    a("s_mul_i32 s36, s3, 18432")
    a("s_add_u32 s36, s36, %d" % TB0)
    a("v_lshlrev_b32 v10, 4, v2")
    a("v_add_u32 v11, s36, v10")
    for n, (ft, tt) in enumerate(TILES):
        a("ds_write_b128 v11, %s offset:%d" % (vr(accr(1, ft, tt)), 1024 * tidx(ft, tt)))
        if n in (7, 13): a("s_waitcnt lgkmcnt(4)")
    a("s_mov_b32 s40, 0")
    a("s_waitcnt lgkmcnt(0)")
    a("s_barrier")
    a.label("%s_epi" % name)
    MR = 100; CS = 52; ZP = 16; T = 72
    gelu_consts(a)
    a("s_lshl_b32 s36, s24, 9")
    a("s_lshl_b32 s37, s25, 8")
    a("s_add_u32 s38, s36, s37")
    a("s_xor_b32 s37, s37, 256")
    a("s_add_u32 s39, s36, s37")
    a("v_lshlrev_b32 v10, 3, v3")
    a("v_add_u32 v11, s38, v10")
    a("ds_read_b64 %s, v11 offset:%d" % (vr(MR, 2), RST))
    a("ds_read_b64 %s, v11 offset:%d" % (vr(MR + 2, 2), RST + 128))
    a("v_add_u32 v11, s39, v10")
    a("ds_read_b64 %s, v11 offset:%d" % (vr(MR + 4, 2), RST))
    a("ds_read_b64 %s, v11 offset:%d" % (vr(MR + 6, 2), RST + 128))
    a("v_lshrrev_b32 v10, 4, v2")
    a("v_lshlrev_b32 v10, 4, v10")
    a("v_add_u32 v10, s40, v10")
    a("s_mul_i32 s36, s25, 320")
    a("v_add_u32 v11, s36, v10")
    a("s_waitcnt lgkmcnt(6)")
    for ft in range(4):
        a("ds_read_b128 %s, v11 offset:%d" % (vr(CS + 4 * ft), CSO + 64 * ft))
    a("ds_read_b128 %s, v10 offset:%d" % (vr(CS + 16), CSO + 256))
    S = [108, 110, 8, 12]; Q = [109, 111, 9, 13]
    for tt in range(4):
        a("v_mov_b32 v%d, 0" % S[tt]); a("v_mov_b32 v%d, 0" % Q[tt])
    a("v_mov_b32 v88, 0x3f803f80")
    a("s_waitcnt lgkmcnt(0)")
    for ft in range(5):
        if ft == 3:
            seg_end(a, name)
            a.label("%s_seg1" % name)
        tts = range(4 if ft < 4 else 2)
        items = [(ACC + 4 * tidx(ft, tt), CS + 4 * ft, MR + 2 * tt, ZP + 2 * tidx(ft, tt)) for tt in tts]
        emit_fold_gelu(a, items, T)
        for d in range(2):
            for tt in tts:
                p = ZP + 2 * tidx(ft, tt) + d
                a("v_dot2_f32_bf16 v%d, v%d, v88, v%d" % (S[tt], p, S[tt]))
                a("v_dot2_f32_bf16 v%d, v%d, v%d, v%d" % (Q[tt], p, p, Q[tt]))
    a("s_cmp_eq_u32 s21, 0")
    a("s_cbranch_scc1 %s_z2" % name)
    a("s_lshl_b32 s36, s22, 4")
    a("s_add_u32 s36, s36, s23")
    a("s_lshl_b32 s36, s36, 2")
    a("s_add_u32 s36, s36, s3")
    a("s_mul_i32 s36, s36, 9216")
    a("s_add_u32 s36, s36, 0x%x" % Z1IMG)
    a("v_lshlrev_b32 v10, 4, v2")
    for q in range(9):
        if q in (4, 8): a("s_add_u32 s36, s36, 4096")
        a("buffer_store_dwordx4 %s, v10, s[12:15], s36 offen offset:%d" % (vr(ZP + 4 * q), (q & 3) * 1024))
    a("s_branch %s_conv" % name)
    a.label("%s_z2" % name)
    a("s_nop 1")
    emit_xg_reduce(a, S + Q, 72)
    gran_addr()
    for g in range(1, 4):
        a("v_cmp_eq_u32 vcc, %d, v10" % g)
        a("s_nop 1")
        a("v_cndmask_b32 v%d, v%d, v%d, vcc" % (S[0], S[0], S[g]))
        a("v_cndmask_b32 v%d, v%d, v%d, vcc" % (Q[0], Q[0], Q[g]))
    a("v_and_b32 v%d, 0x7fffffff, v%d" % (Q[0], Q[0]))
    a("buffer_store_dwordx2 v[%d:%d], v94, s[12:15], s58 offen sc1" % (S[0], Q[0]))
    a.label("%s_conv" % name)
    seg_end(a, name)
    a.label("%s_seg2" % name)
    stamp(a, 4)
    for r_ in range(36):
        a("v_mov_b32 v%d, v%d" % (200 + r_, ZP + r_))
    a("s_lshl_b32 s42, s22, 4")
    a("s_add_u32 s42, s42, s23")
    a("s_lshl_b32 s36, s21, 8")
    a("s_add_u32 s42, s42, s36")
    a("v_and_b32 v0, 255, v0")
    G2.emit_prep2(a, name)
    stamp(a, 5)
    a("s_cmp_lg_u32 s21, 0")
    a("s_cbranch_scc1 %s_fin" % name)
    a("v_and_b32 v3, 15, v2")
    ZP = 200
    a("s_lshl_b32 s33, s22, 2")
    a("v_mov_b32 v9, s33")
    a("s_mov_b32 s40, 0")
    a("v_lshlrev_b32 v11, 4, v3")
    a.label("%s_poll2" % name)
    a("buffer_load_dword v12, v9, s[60:63], 0 offen sc1")
    a("s_waitcnt vmcnt(0)")
    a("buffer_load_dwordx4 v[112:115], v11, s[12:15], s59 offen sc1")
    a("s_add_u32 s40, s40, 1")
    a("v_subrev_u32 v12, 8, v12")
    a("s_waitcnt vmcnt(0)")
    a("v_or3_b32 v12, v12, v113, v115")
    a("v_cmp_gt_i32 vcc, 0, v12")
    a("s_cmp_gt_u32 s40, %d" % SPIN_MAX)
    a("s_cbranch_scc1 %s_poll2x" % name)
    a("s_cbranch_vccz %s_poll2x" % name)
    a("s_sleep 10")
    a("s_branch %s_poll2" % name)
    a.label("%s_poll2x" % name)
    a("v_lshrrev_b32 v10, 4, v2")
    a("v_lshlrev_b32 v11, 8, v3")
    a("v_lshl_add_u32 v11, v10, 6, v11")
    a("s_lshl_b32 s33, s25, 13")
    a("s_add_u32 s36, s59, s33")
    a("s_xor_b32 s33, s33, 8192")
    a("s_add_u32 s37, s59, s33")
    a("s_add_u32 s38, s36, 4096")
    a("s_add_u32 s39, s37, 4096")
    PB = 112
    a.label("%s_poll1" % name)
    if "inv" in DBG: a("buffer_inv sc1")
    POL = "sc0 sc1" if "sc01" in DBG else "sc1"
    for tt in range(4):
        for q in range(4):
            a("buffer_load_dwordx4 %s, v11, s[12:15], s%d offen offset:%d %s" % (vr(PB + 16 * tt + 4 * q), (36, 38, 37, 39)[tt], 16 * q, POL))
    a("s_waitcnt vmcnt(0)")
    a("v_mov_b32 v12, 0")
    for r in range(PB + 1, PB + 64, 4):
        a("v_or3_b32 v12, v12, v%d, v%d" % (r, r + 2))
    a("v_cmp_gt_i32 vcc, 0, v12")
    a("s_add_u32 s40, s40, 1")
    a("s_cmp_gt_u32 s40, %d" % SPIN_MAX)
    a("s_cbranch_scc1 %s_poll1x" % name)
    a("s_cbranch_vccz %s_poll1x" % name)
    a("s_sleep 20")
    a("s_branch %s_poll1" % name)
    a.label("%s_poll1x" % name)
    stamp(a, 6)
    a.label("%s_seg3" % name)
    for tt in range(4):
        b = PB + 16 * tt
        for st in (8, 4, 2):
            for q in range(0, st, 2):
                a("v_pk_add_f32 %s, %s, %s" % (vr(b + q, 2), vr(b + q, 2), vr(b + q + st, 2)))
    emit_xg_reduce(a, [PB + 16 * tt + e for tt in range(4) for e in range(2)], 72)
    for tt in range(4):
        b = PB + 16 * tt
        emit_ln_finish(a, b, b + 1, 2304, b + 2, MR + 2 * tt, b + 4)
        a("v_mul_f32 v%d, -v%d, v%d" % (MR + 2 * tt + 1, b + 2, MR + 2 * tt))
    a("v_lshrrev_b32 v11, 2, v2"); a("v_and_b32 v11, 1, v11"); a("v_lshlrev_b32 v11, 4, v11")
    a("v_lshrrev_b32 v12, 3, v2"); a("v_and_b32 v12, 1, v12"); a("v_lshl_add_u32 v11, v12, 2, v11")
    a("v_and_b32 v12, 3, v2"); a("v_add_u32 v11, v11, v12")
    a("v_mul_u32_u24 v11, 288, v11")
    a("v_lshrrev_b32 v12, 1, v10"); a("v_lshl_add_u32 v11, v12, 4, v11")
    a("v_and_b32 v12, 1, v10")
    a("v_lshl_add_u32 v13, v12, 5, v11")
    a("v_mul_u32_u24 v12, 2304, v12")
    a("v_add_u32 v9, v11, v12")
    a("s_lshl_b32 s33, s23, 5")
    a("s_lshl_b32 s36, s22, 1")
    a("s_add_u32 s33, s33, s36")
    a("s_add_u32 s33, s33, s24")
    a("s_mul_i32 s33, s33, 18432")
    if ZIMG: a("s_add_u32 s33, s33, 0x%x" % ZIMG)
    a("s_mul_i32 s36, s25, 9216")
    a("s_add_u32 s37, s33, s36")
    a("s_xor_b32 s36, s36, 9216")
    a("s_add_u32 s38, s33, s36")
    a("s_add_u32 s39, s37, 128")
    a("s_mul_i32 s36, s25, 160")
    a("s_add_u32 s37, s37, s36")
    a("s_add_u32 s38, s38, s36")
    def norm_pair(nA, ttA, nB, ttB, O):
        for q, (n, tt) in enumerate(((nA, ttA), (nB, ttB))):
            for d in range(2):
                z = ZP + 2 * n + d; t = T + 4 * q + 2 * d
                a("v_lshlrev_b32 v%d, 16, v%d" % (t, z))
                a("v_and_b32 v%d, 0xffff0000, v%d" % (t + 1, z))
        for q, (n, tt) in enumerate(((nA, ttA), (nB, ttB))):
            for d in range(2):
                t = T + 4 * q + 2 * d
                a("v_pk_fma_f32 %s, %s, %s, %s op_sel:[0,0,1] op_sel_hi:[1,0,1]" % (vr(t, 2), vr(t, 2), vr(MR + 2 * tt, 2), vr(MR + 2 * tt, 2)))
        for q in range(2):
            for d in range(2):
                t = T + 4 * q + 2 * d
                a("v_cvt_pk_bf16_f32 v%d, v%d, v%d" % (O + 2 * q + d, t, t + 1))
        a("s_nop 1")
        a("v_permlane16_swap_b32 v%d, v%d" % (O, O + 2))
        a("v_permlane16_swap_b32 v%d, v%d" % (O + 1, O + 3))
    cnt = 0
    for pr in range(2):
        for tt in range(4):
            O = 112 + 4 * cnt; cnt += 1
            norm_pair(tidx(2 * pr, tt), tt, tidx(2 * pr + 1, tt), tt, O)
            a("s_nop 0")
            a("buffer_store_dwordx4 %s, v13, s[12:15], s%d offen offset:%d" % (vr(O), 37 if tt < 2 else 38, (tt & 1) * 2304 + 64 * pr))
    O = 112 + 4 * cnt
    norm_pair(16, 0, 17, 1, O)
    a("s_nop 0")
    a("buffer_store_dwordx4 %s, v9, s[12:15], s39 offen" % vr(O))
    seg_end(a, name)
    a.label("%s_fin" % name)
    stamp(a, 7)
    a("s_waitcnt vmcnt(0)")
    stamp(a, 8)
    a.label("%s_end" % name)
    a("s_endpgm")
    return a.text(), kernel_desc(name, 256, 256), (name, 256, 512, LDSB)

def gen_k1g(name="k1_kernel"):
    a = Asm()
    DBG.add('nowarm')
    TS = 16384; NT = 3; TB0 = 4096; FB_ = TB0 + NT * TS; FSL = 18432; NF = 6; FS = 576; NK = 18
    LDSB = FB_ + NF * FSL; RST = 0; CSO = 1024; CJB = TB0 + 4 * 18432
    kernel_begin(a, name)
    a("s_load_dwordx2 s[80:81], s[0:1], 0")
    a("s_load_dwordx2 s[4:5], s[0:1], 56")
    a("s_cmp_ge_u32 s2, 256")
    a("s_cbranch_scc1 %s_end" % name)
    a("v_lshrrev_b32 v1, 6, v0")
    a("v_and_b32 v2, 63, v0")
    a("v_readfirstlane_b32 s3, v1")
    a("s_and_b32 s20, s2, 7")
    a("s_lshr_b32 s21, s2, 3")
    a("s_and_b32 s22, s20, 1")
    a("s_lshl_b32 s22, s22, 3")
    a("s_and_b32 s23, s21, 7")
    a("s_add_u32 s22, s22, s23")
    a("s_lshr_b32 s21, s21, 3")
    a("s_lshr_b32 s23, s20, 1")
    a("s_lshl_b32 s23, s23, 2")
    a("s_add_u32 s23, s23, s21")
    a("s_mov_b32 s99, 0")
    a("s_mov_b64 s[96:97], -1")
    a("s_cmp_lt_u32 s3, 4")
    a("s_cbranch_scc1 %s_consumer" % name)
    a("s_setprio 3")
    a("s_sub_u32 s3, s3, 4")
    a("v_lshrrev_b32 v3, 3, v2")
    a("v_and_b32 v4, 7, v2")
    VT = 16; VF = 20
    a("s_lshl_b32 s24, s3, 5")
    a("v_add_u32 v5, s24, v3")
    a("v_lshrrev_b32 v7, 4, v2")
    a("v_xor_b32 v7, v7, v4")
    a("v_mul_u32_u24 v6, 1152, v5")
    a("v_lshl_add_u32 v%d, v7, 4, v6" % VT)
    a("v_xor_b32 v%d, 64, v%d" % (VT + 1, VT))
    a("v_add_u32 v%d, %d, v%d" % (VT + 1, 9216 - 1024, VT + 1))
    a("v_add_u32 v%d, %d, v%d" % (VT + 2, 2 * (9216 - 1024), VT))
    a("v_add_u32 v%d, %d, v%d" % (VT + 3, 2 * (9216 - 1024), VT + 1))
    a("s_mul_i32 s26, s22, %d" % (128 * 1152))
    a("s_lshl_b32 s24, s3, 12")
    a("s_add_u32 s24, s24, %d" % TB0)
    a("s_mov_b32 s33, 0")
    a("s_waitcnt lgkmcnt(0)")
    srd(a, 28, 80, 2048 * 576 * 2)
    vm = VmTracker(a)
    def capture(f, *args):
        lb = len(a.lines); f(*args); out = a.lines[lb:]; del a.lines[lb:]; return out
    def issueT(m, part=None):
        a("s_add_u32 s35, s33, s24")
        a("s_mov_b32 m0, s35")
        if part != 0: a("s_add_u32 s33, s33, %d" % TS)
        else: a("s_nop 0")
        ns = range(4) if part is None else range(2 * part, 2 * part + 2)
        for n in ns:
            if "nodma" not in DBG: a("buffer_load_dwordx4 v%d, s[28:31], s26 offen offset:%d lds" % (VT + n, 1024 * n))
        if part != 0:
            a("s_add_u32 s26, s26, 128")
            a("s_cmp_eq_u32 s33, %d" % (NT * TS))
            a("s_cselect_b32 s33, 0, s33")
        vm.issue("T%d" % m if part != 0 else "Ta%d" % m, len(ns))
    issueT(0)
    srd(a, 8, 4, 576 * 4608 * 2)
    for n in range(5):
        if n: a("v_add_u32 v6, %d, v2" % (64 * n))
        src = "v6" if n else "v2"
        a("v_mul_u32_u24 v7, 1821, %s" % src)
        a("v_lshrrev_b32 v7, 16, v7")
        a("v_mul_u32_u24 v8, 36, v7")
        a("v_sub_u32 v8, %s, v8" % src)
        a("v_bfe_u32 v9, v7, 2, 1")
        a("v_lshlrev_b32 v6, 1, v9")
        a("v_xor_b32 v8, v8, v6")
        a("v_and_b32 v7, 3, v7")
        a("v_lshl_add_u32 v7, v9, 3, v7")
        a("v_mul_u32_u24 v7, 9216, v7")
        a("v_cmp_gt_u32 vcc, 18, v8")
        a("v_lshl_add_u32 v7, v8, 4, v7")
        a("v_mov_b32 v9, 4608")
        a("v_cndmask_b32 v9, -288, v9, vcc") if False else None
        a("v_mov_b32 v6, 0xfffffee0")
        a("v_cndmask_b32 v9, v6, v9, vcc")
        a("v_add_u32 v%d, v7, v9" % (VF + n))
        if 0 < n < 4: a("v_subrev_u32 v%d, %d, v%d" % (VF + n, 1024 * n, VF + n))
    a("s_and_b32 s36, s3, 1")
    a("s_lshl_b32 s36, s36, 4")
    a("s_lshr_b32 s37, s3, 1")
    a("s_lshl_b32 s37, s37, 2")
    a("s_add_u32 s36, s36, s37")
    a("s_mul_i32 s27, s36, 9216")
    a("s_mul_i32 s36, s23, 288")
    a("s_add_u32 s27, s27, s36")
    a("s_mul_i32 s25, s3, 4608")
    a("s_add_u32 s25, s25, %d" % FB_)
    a("s_mov_b32 s34, 0")
    def issueF(k):
        a("s_add_u32 s35, s34, s25")
        a("s_mov_b32 m0, s35")
        a("s_add_u32 s36, s35, 4096")
        for n in range(4):
            if "nodma" not in DBG: a("buffer_load_dwordx4 v%d, s[8:11], s27 offen offset:%d lds" % (VF + n, 1024 * n))
        a("s_mov_b32 m0, s36")
        a("s_mov_b64 exec, 0xffffffff")
        if "nodma" not in DBG: a("buffer_load_dwordx4 v%d, s[8:11], s27 offen lds" % (VF + 4))
        a("s_mov_b64 exec, -1")
        a("s_add_u32 s27, s27, %d" % (32 * 9216))
        a("s_add_u32 s34, s34, %d" % FSL)
        a("s_cmp_eq_u32 s34, %d" % (NF * FSL))
        a("s_cselect_b32 s34, 0, s34")
        vm.issue("F%d" % k, 5)
    issueF(0); issueF(1)
    def other_setup():
        a("s_load_dwordx2 s[6:7], s[0:1], 104")
        a("s_load_dwordx2 s[18:19], s[0:1], 96")
        a("s_waitcnt lgkmcnt(0)")
        srd(a, 12, 6, WS_BYTES)
        srd(a, 60, 18, 256)
    def prep_srds():
        srd(a, 68, 66, 2048 * 576 * 2)
        a("s_mov_b32 s88, s64"); a("s_mov_b32 s89, s65")
        srd(a, 64, 88, 2048 * 576 * 2)
        srd(a, 72, 76, 576 * 8)
        srd(a, 76, 100, 2304 * 576 * 2)
    other_setup()
    a("s_add_u32 s3, s3, 4"); stamp_setup(a, 1); stamp(a, 0); a("s_sub_u32 s3, s3, 4")
    a("s_load_dwordx4 s[64:67], s[0:1], 8")
    a("s_load_dwordx2 s[76:77], s[0:1], 24")
    a("s_load_dwordx2 s[100:101], s[0:1], 80")
    a("s_waitcnt lgkmcnt(0)")
    prep_srds()
    SS = [28, 30, 32, 34]; ONE = 36
    for r in range(28, 36): a("v_mov_b32 v%d, 0" % r)
    for r in range(ONE, ONE + 4): a("v_mov_b32 v%d, 0x3f803f80" % r)
    CA = 40
    for r in range(CA, CA + 20): a("v_mov_b32 v%d, 0" % r)
    XB = 64; CF = 80
    a("v_and_b32 v5, 15, v2")
    a("v_lshrrev_b32 v6, 4, v2")
    a("v_lshrrev_b32 v7, 1, v5")
    a("v_xor_b32 v6, v6, v7")
    a("v_lshlrev_b32 v6, 4, v6")
    a("v_lshl_add_u32 v6, v5, 7, v6")
    a("v_add_u32 v10, s24, v6")
    a("v_xor_b32 v26, 64, v10")
    RA = 112
    for r in range(RA, RA + 16): a("v_mov_b32 v%d, 0" % r)
    a("v_lshrrev_b32 v11, 2, v2")
    a("v_mul_u32_u24 v11, %d, v11" % FS)
    a("v_and_b32 v12, 3, v2")
    a("v_lshl_add_u32 v11, v12, 3, v11")
    a("v_bfe_u32 v13, v2, 4, 1")
    a("v_lshlrev_b32 v13, 5, v13")
    a("s_lshr_b32 s36, s3, 1")
    a("s_mul_i32 s37, s36, 9")
    a("s_and_b32 s38, s3, 1")
    a("s_lshl_b32 s38, s38, 2")
    a("s_add_u32 s37, s37, s38")
    a("s_lshl_b32 s40, s37, 6")
    a("s_lshl_b32 s37, s37, 5")
    a("s_add_u32 s37, s37, %d" % FB_)
    a("v_add_u32 v11, s37, v11")
    a("v_add_u32 v5, v11, v13")
    a("v_sub_u32 v6, v11, v13")
    a("s_cmp_eq_u32 s36, 0")
    a("s_cselect_b64 vcc, -1, 0")
    a("v_cndmask_b32 v11, v6, v5, vcc")
    a("v_cndmask_b32 v12, v5, v6, vcc")
    def rowstats_rd(ks):
        a("v_add_u32 v5, %d, v%d" % (((ks // 2) % NT) * TS, 26 if ks & 1 else 10))
        for n in range(2):
            a("ds_read_b128 %s, v5 offset:%d" % (vr(XB + 4 * n), 2048 * n))
    def rowstats_do():
        for n in range(2):
            a("v_mfma_f32_16x16x32_bf16 %s, %s, %s, %s" % (vr(RA + 4 * n), vr(ONE), vr(XB + 4 * n), vr(RA + 4 * n)))
            a("v_mfma_f32_16x16x32_bf16 %s, %s, %s, %s" % (vr(RA + 8 + 4 * n), vr(XB + 4 * n), vr(XB + 4 * n), vr(RA + 8 + 4 * n)))
    def colsum_rd(k):
        if "nocs" in DBG: return
        a("v_add_u32 v6, %d, v11" % ((k % NF) * FSL))
        a("v_add_u32 v7, %d, v12" % ((k % NF) * FSL))
        for q in range(5):
            for half in range(2):
                a("ds_read_b64_tr_b16 %s, v%d offset:%d" % (vr(CF + 4 * q + 2 * half, 2), 6 + (q & 1), 16 * half * FS + 32 * q))
    def colsum_do():
        if "nocs" in DBG: return
        for q in range(5):
            a("v_mfma_f32_16x16x32_bf16 %s, %s, %s, %s" % (vr(CA + 4 * q), vr(CF + 4 * q), vr(ONE), vr(CA + 4 * q)))
    vm.wait(["T0", "F0"])
    a("s_barrier")
    stamp(a, 1)
    colsum_rd(0); rowstats_rd(0)
    issueT(1); issueF(2); issueF(3)
    vm.wait(["F1"])
    a("s_barrier")
    for k in range(NK):
        dma = []
        if k == 0:
            dma += capture(issueF, 4) + capture(issueT, 2) + capture(issueF, 5)
        if k >= 1 and k + 5 < NK: dma += capture(issueF, k + 5)
        if k % 2 == 1 and (k - 1) // 2 + 3 < 9: dma += capture(issueT, (k - 1) // 2 + 3, 0)
        if k % 2 == 0 and k >= 2 and (k - 2) // 2 + 3 < 9: dma += capture(issueT, (k - 2) // 2 + 3, 1)
        comp = capture(colsum_do) + capture(rowstats_do)
        groups = []; cur = []
        for l in dma:
            cur.append(l)
            if "buffer_load" in l and "exec" not in "".join(cur[-2:-1]):
                groups.append(cur); cur = []
        if cur: groups.append(cur)
        nslots = max(1, len(groups) - 1)
        per = (len(comp) + nslots - 1) // nslots if comp else 0
        waited = False
        for gi, g in enumerate(groups):
            a.lines.extend(g)
            if comp and not any("exec, 0xffffffff" in x for x in g[-2:]):
                if not waited:
                    a("s_waitcnt lgkmcnt(0)"); waited = True
                a.lines.extend(comp[:per]); comp = comp[per:]
        if not waited: a("s_waitcnt lgkmcnt(0)")
        a.lines.extend(comp)
        if k + 1 < NK:
            colsum_rd(k + 1); rowstats_rd(k + 1)
            if "fine" in DBG:
                G.stamp_seq(a); vm.issue("st", 1)
            vm.wait(["F%d" % (k + 2), "T%d" % ((k + 2) // 2)])
            if "fine" in DBG:
                G.stamp_seq(a); vm.issue("st", 1)
            a("s_barrier")
    a("s_nop 7")
    a("v_and_b32 v5, 15, v2")
    a("v_lshrrev_b32 v6, 4, v2")
    a("v_lshrrev_b32 v7, 2, v5")
    a("v_and_b32 v8, 3, v5")
    for n in range(2):
        G_ = RA + 8 + 4 * n
        for r in range(1, 4):
            a("v_cmp_eq_u32 vcc, %d, v8" % r)
            a("s_nop 1")
            a("v_cndmask_b32 v%d, v%d, v%d, vcc" % (G_, G_, G_ + r))
    ML = 64
    for n in range(2):
        emit_ln_finish(a, RA + 4 * n, RA + 8 + 4 * n, 576, ML + 2 * n, ML + 2 * n + 1, 76)
        a("v_mov_b32 v%d, v%d" % (29 + 2 * n, ML + 2 * n + 1))
        a("v_sub_f32 v%d, 0, v%d" % (28 + 2 * n, ML + 2 * n))
    a("s_lshl_b32 s35, s3, 8")
    a("v_lshlrev_b32 v9, 3, v5")
    a("v_add_u32 v12, s35, v9")
    a("v_cmp_eq_u32 vcc, v6, v7")
    a("s_and_saveexec_b64 s[36:37], vcc")
    for n in range(2):
        a("ds_write_b64 v12, %s offset:%d" % (vr(28 + 2 * n, 2), RST + 128 * n))
    a("s_mov_b64 exec, s[36:37]")
    a("s_cmp_lg_u32 s23, 0")
    a("s_cbranch_scc1 %s_nost1" % name)
    a("s_lshl_b32 s35, s22, 7")
    a("s_lshl_b32 s36, s3, 5")
    a("s_add_u32 s35, s35, s36")
    a("s_lshl_b32 s35, s35, 3")
    a("s_add_u32 s35, s35, 0x%x" % STATS1)
    a("v_mov_b32 v7, 0x7ffffff0")
    a("v_cndmask_b32 v9, v7, v9, vcc")
    for n in range(2):
        a("buffer_store_dwordx2 %s, v9, s[12:15], s35 offen offset:%d" % (vr(ML + 2 * n, 2), 128 * n))
    a.label("%s_nost1" % name)
    a("v_lshrrev_b32 v12, 4, v2")
    a("v_lshlrev_b32 v12, 4, v12")
    a("v_add_u32 v12, s40, v12")
    a("v_and_b32 v13, 15, v2")
    a("v_cmp_eq_u32 vcc, 0, v13")
    a("s_and_saveexec_b64 s[36:37], vcc")
    for q in range(5):
        a("ds_write_b128 v12, %s offset:%d" % (vr(CA + 4 * q), CSO + 64 * q))
    a("s_mov_b64 exec, s[36:37]")
    a("s_waitcnt lgkmcnt(0)")
    a("s_barrier")
    ACC = 112
    a("s_lshr_b32 s24, s3, 1")
    a("s_and_b32 s25, s3, 1")
    a("v_and_b32 v3, 15, v2")
    a("s_mov_b32 s98, 1")
    a("s_lshl_b32 s36, s3, 14")
    a("s_add_u32 s36, s36, %d" % TB0)
    a("v_lshlrev_b32 v10, 4, v2")
    a("v_add_u32 v11, s36, v10")
    a("s_barrier")
    n_ = 0
    for z in range(2):
        for ft in range(4):
            for tt in range(2):
                a("ds_read_b128 %s, v11 offset:%d" % (vr(ACC + 72 * z + 4 * tidx(ft, tt)), 1024 * n_))
                n_ += 1
                if n_ in (8, 13): a("s_waitcnt lgkmcnt(4)")
    a("s_branch %s_epi" % name)

    def gran_addr():
        a("v_lshrrev_b32 v10, 4, v2")
        a("s_lshl_b32 s33, s25, 1")
        a("v_add_u32 v11, s33, v10")
        a("v_and_b32 v11, 3, v11")
        a("v_lshl_add_u32 v11, v11, 4, v3")
        a("v_lshlrev_b32 v94, 8, v11")
        a("s_lshl_b32 s59, s22, 7")
        a("s_lshl_b32 s36, s24, 6")
        a("s_add_u32 s59, s59, s36")
        a("s_lshl_b32 s59, s59, 8")
        a("s_add_u32 s59, s59, 0x%x" % STATS2)
        a("s_lshl_b32 s36, s23, 1")
        a("s_add_u32 s36, s36, s25")
        a("s_lshl_b32 s36, s36, 3")
        a("s_add_u32 s58, s36, s59")
    a.label("%s_consumer" % name)
    a("s_load_dwordx4 s[64:67], s[0:1], 8")
    a("s_load_dwordx2 s[76:77], s[0:1], 24")
    a("s_load_dwordx2 s[100:101], s[0:1], 80")
    a("s_lshr_b32 s24, s3, 1")
    a("s_and_b32 s25, s3, 1")
    a("v_and_b32 v3, 15, v2")
    other_setup()
    srd(a, 28, 80, 2048 * 576 * 2)
    srd(a, 8, 4, 576 * 4608 * 2)
    if "nopf" not in DBG:
        a("s_and_b32 s36, s22, 7")
        a("s_mul_i32 s36, s36, 72")
        a("s_mul_i32 s37, s3, 18")
        a("s_add_u32 s36, s36, s37")
        a("s_mul_i32 s36, s36, 9216")
        a("s_mul_i32 s37, s23, 288")
        a("s_add_u32 s36, s36, s37")
        a("s_and_b32 s36, s36, 0xffffff80")
        a("v_lshrrev_b32 v10, 2, v2")
        a("v_mul_u32_u24 v10, 9216, v10")
        a("v_and_b32 v11, 3, v2")
        a("v_lshl_add_u32 v10, v11, 7, v10")
        a("v_and_b32 v12, 7, v2")
        a("v_lshrrev_b32 v12, 2, v12")
        a("v_mul_u32_u24 v12, 9216, v12")
        a("v_lshl_add_u32 v12, v11, 7, v12")
        a("s_add_u32 s37, s36, 4608")
        a("s_add_u32 s38, s36, %d" % (16 * 9216))
        a("s_add_u32 s39, s37, %d" % (16 * 9216))
        a("buffer_load_dword v96, v10, s[8:11], s37 offen")
        a("buffer_load_dword v96, v10, s[8:11], s36 offen")
        a("buffer_load_dword v96, v12, s[8:11], s39 offen")
        a("buffer_load_dword v96, v12, s[8:11], s38 offen")
        a("s_lshr_b32 s36, s2, 6")
        a("s_lshl_b32 s36, s36, 5")
        a("s_lshl_b32 s37, s22, 7")
        a("s_add_u32 s36, s36, s37")
        a("s_mul_i32 s36, s36, 1152")
        a("s_mul_i32 s37, s3, 9216")
        a("s_add_u32 s36, s36, s37")
        a("v_lshlrev_b32 v11, 7, v2")
        a("buffer_load_dword v96, v11, s[28:31], s36 offen")
        a("v_and_b32 v11, 7, v2")
        a("v_lshlrev_b32 v11, 7, v11")
        a("s_add_u32 s36, s36, 8192")
        a("buffer_load_dword v96, v11, s[28:31], s36 offen")
    prep_srds()
    if "nopf2" not in DBG:
        a("s_lshl_b32 s41, s2, 1")
        a("s_add_u32 s41, s41, s24")
        a("s_cmp_ge_u32 s41, 288")
        a("s_cbranch_scc1 %s_nopf2" % name)
        a("s_mul_hi_u32 s36, s41, 0x%x" % ((2**32 + 8) // 9))
        a("s_mul_i32 s37, s36, 9")
        a("s_sub_u32 s37, s41, s37")
        a("s_mul_i32 s36, s36, %d" % (64 * 1152))
        a("s_lshl_b32 s37, s37, 7")
        a("s_add_u32 s36, s36, s37")
        a("v_mul_u32_u24 v10, 1152, v2")
        a("s_cmp_eq_u32 s25, 0")
        a("s_cbranch_scc1 %s_pfk" % name)
        a("buffer_load_dword v96, v10, s[68:71], s36 offen")
        a("s_branch %s_nopf2" % name)
        a.label("%s_pfk" % name)
        a("buffer_load_dword v96, v10, s[64:67], s36 offen")
        a.label("%s_nopf2" % name)
        a("s_mul_i32 s36, s2, 10368")
        a("s_mul_i32 s37, s3, 2688")
        a("s_add_u32 s36, s36, s37")
        a("v_min_u32 v10, 20, v2")
        a("v_lshlrev_b32 v10, 7, v10")
        a("buffer_load_dword v96, v10, s[76:79], s36 offen")
    stamp_setup(a, 1); stamp(a, 0)
    a("s_mov_b32 s98, 0")
    gran_addr()
    a("v_mov_b32 v12, 0"); a("v_mov_b32 v13, 0x80000000")
    a("buffer_store_dwordx2 v[12:13], v94, s[12:15], s58 offen sc1")
    TB = [16, 32]; FR = 48
    vTa, vTb, vP = 4, 5, [6, 7]; vH = [8, 9]
    bTa = [88, 89]; bTb = [90, 91]; bP = [92, 93]; bH = [100, 101]
    PF = 96
    a("v_lshrrev_b32 v10, 4, v2")
    a("v_lshrrev_b32 v11, 1, v3")
    a("v_xor_b32 v10, v10, v11")
    a("v_lshlrev_b32 v10, 4, v10")
    a("v_lshl_add_u32 v10, v3, 7, v10")
    a("s_lshl_b32 s26, s24, 13")
    a("s_add_u32 s26, s26, %d" % TB0)
    a("v_add_u32 v10, s26, v10")
    a("s_lshl_b32 s26, s25, 12")
    a("v_add_u32 v%d, s26, v10" % bTa[0])
    a("s_xor_b32 s26, s26, 4096")
    a("v_add_u32 v%d, s26, v10" % bTb[0])
    a("v_xor_b32 v%d, 64, v%d" % (bTa[1], bTa[0]))
    a("v_xor_b32 v%d, 64, v%d" % (bTb[1], bTb[0]))
    a("v_lshrrev_b32 v10, 2, v2")
    a("v_mul_u32_u24 v10, %d, v10" % FS)
    a("v_and_b32 v11, 3, v2")
    a("v_lshl_add_u32 v10, v11, 3, v10")
    a("v_add_u32 v10, %d, v10" % FB_)
    a("v_bfe_u32 v13, v2, 4, 1")
    a("v_lshlrev_b32 v13, 5, v13")
    a("v_add_u32 v%d, v10, v13" % bH[0])
    a("v_sub_u32 v%d, v10, v13" % bH[1])
    a("s_mul_i32 s26, s25, 160")
    a("s_cmp_eq_u32 s25, 0")
    a("s_cselect_b64 vcc, -1, 0")
    a("v_cndmask_b32 v11, v%d, v%d, vcc" % (bH[1], bH[0]))
    a("v_cndmask_b32 v12, v%d, v%d, vcc" % (bH[0], bH[1]))
    a("v_add_u32 v%d, s26, v11" % bP[0])
    a("v_add_u32 v%d, s26, v12" % bP[1])
    a("v_lshrrev_b32 v10, 4, v2")
    a("v_lshlrev_b32 v10, 12, v10")
    a("v_lshl_add_u32 v95, v3, 4, v10")
    a("s_lshl_b32 s41, s22, 7")
    a("s_lshl_b32 s36, s3, 5")
    a("s_add_u32 s41, s41, s36")
    a("s_lshl_b32 s41, s41, 12")
    a("s_lshl_b32 s36, s23, 8")
    a("s_add_u32 s41, s41, s36")
    for r in range(ACC, ACC + 144): a("v_mov_b32 v%d, 0" % r)
    def accr(z, ft, tt): return ACC + 72 * z + 4 * tidx(ft, tt)
    def Fr(z, ft): return FR + 20 * z + 4 * ft
    trk = LdsTracker(a)
    def treads(buf):
        L = []
        for tt in range(4):
            r = TB[buf] + 4 * tt
            L.append(("ds_read_b128 %s, v%d offset:%d" % (vr(r), vTa if tt < 2 else vTb, (tt & 1) * 2048), range(r, r + 4)))
        return L
    def freads(z, ft):
        r = Fr(z, ft); L = []
        for half in range(2):
            off = 16 * half * FS + 32 * (9 * z + ft)
            v = vP[(z + ft) & 1] if ft < 4 else vH[z]
            L.append(("ds_read_b64_tr_b16 %s, v%d offset:%d" % (vr(r + 2 * half, 2), v, off), range(r + 2 * half, r + 2 * half + 2)))
        return L
    def rd(t):
        a(t[0]); trk.issue(t[1])
    fpairs = ((vP[0], bP[0]), (vP[1], bP[1]), (vH[0], bH[0]), (vH[1], bH[1]))
    a("v_mov_b32 v%d, v%d" % (vTa, bTa[0])); a("v_mov_b32 v%d, v%d" % (vTb, bTb[0]))
    for d, s_ in fpairs: a("v_mov_b32 v%d, v%d" % (d, s_))
    a("s_mov_b32 s27, 0")
    a("s_mov_b32 s34, 0")
    a("s_mov_b32 s33, 0")
    stamp(a, 1)
    a("s_barrier")
    stamp(a, 2)
    for t in treads(0): rd(t)
    for z in range(2):
        for ft in range(5):
            for t in freads(z, ft): rd(t)
            if len(trk.out) >= 12: trk.drain()
    trk.drain()
    def iteration(par):
        G.stamp_seq(a)
        if "fine" in DBG: trk.out = []
        a("s_barrier")
        upd = []
        if par == 1:
            upd += ["s_add_u32 s27, s27, %d" % TS, "s_cmp_eq_u32 s27, %d" % (NT * TS), "s_cselect_b32 s27, 0, s27"]
        upd += ["v_add_u32 v%d, s27, v%d" % (vTa, bTa[1 - par]), "v_add_u32 v%d, s27, v%d" % (vTb, bTb[1 - par])]
        upd += ["s_add_u32 s34, s34, %d" % FSL, "s_cmp_eq_u32 s34, %d" % (NF * FSL), "s_cselect_b32 s34, 0, s34"]
        upd += ["v_add_u32 v%d, s34, v%d" % (d, s_) for d, s_ in fpairs]
        pend = [("x", u) for u in upd] + [("r", t) for t in treads(1 - par)]
        if par == 0:
            pass
        else:
            pend.append(("x", "s_add_u32 s33, s33, 1"))
        nm = 0
        for z in range(2):
            for ft in range(5):
                for tt in range(4 if ft < 4 else 2):
                    c = accr(z, ft, tt); A = Fr(z, ft); B = TB[par] + 4 * tt
                    trk.need(list(range(A, A + 4)) + list(range(B, B + 4)))
                    if "nomfma" not in DBG: a("v_mfma_f32_16x16x32_bf16 %s, %s, %s, %s" % (vr(c), vr(A), vr(B), vr(c)))
                    nfill = 1
                    while pend and nfill:
                        k, t = pend.pop(0)
                        if k == "x":
                            a(t)
                            if t.startswith("s_") and nm < 8: continue
                        else: rd(t)
                        nfill -= 1
                    nm += 1
                pend += [("r", t) for t in freads(z, ft)]
        for k, t in pend:
            if k == "x": a(t)
            else: rd(t)
        a("s_waitcnt lgkmcnt(15)")
        if len(trk.out) > 15: trk.out = trk.out[-15:]
    a.label("%s_cloop" % name)
    trk.out = []
    lb = len(a.lines)
    iteration(0); iteration(1)
    state = copy.deepcopy(trk.out)
    del a.lines[lb:]
    trk.out = copy.deepcopy(state)
    iteration(0); iteration(1)
    assert [sorted(x) for x in trk.out] == [sorted(x) for x in state]
    a("s_cmp_lt_u32 s33, %d" % (NK // 2))
    a("s_cbranch_scc1 %s_cloop" % name)
    trk.drain()
    stamp(a, 3)
    a("s_waitcnt vmcnt(0)")
    a("s_barrier")
    a("s_cmp_lg_u32 s3, 0")
    a("s_cbranch_scc1 %s_nosig" % name)
    a("v_mov_b32 v10, 1")
    a("s_lshl_b32 s36, s22, 2")
    a("v_mov_b32 v11, s36")
    a("s_mov_b64 exec, 1")
    a("buffer_atomic_add v10, v11, s[60:63], 0 offen sc1")
    a("s_mov_b64 exec, -1")
    a.label("%s_nosig" % name)
    a("s_lshl_b32 s36, s3, 14")
    a("s_add_u32 s36, s36, %d" % TB0)
    a("v_lshlrev_b32 v10, 4, v2")
    a("v_add_u32 v11, s36, v10")
    n_ = 0
    for z in range(2):
        for ft in range(4):
            for tt in range(2):
                a("ds_write_b128 v11, %s offset:%d" % (vr(accr(z, ft, tt + 2)), 1024 * n_))
                n_ += 1
                if n_ in (8, 13): a("s_waitcnt lgkmcnt(4)")
    a("s_waitcnt lgkmcnt(0)")
    a("s_barrier")
    a.label("%s_epi" % name)
    MR = 100; CS = 52; T = 72; ZP1 = 16
    ZP2 = lambda n: 192 + 16 * (n >> 2) + 2 * (n & 3)
    ZP1f = lambda n: 184 + 16 * (n >> 1) + 2 * (n & 1)
    gelu_consts(a)
    a("s_xor_b32 s52, s98, s25")
    a("s_lshl_b32 s36, s24, 9")
    a("s_lshl_b32 s37, s52, 8")
    a("s_add_u32 s38, s36, s37")
    a("v_lshlrev_b32 v10, 3, v3")
    a("v_add_u32 v11, s38, v10")
    a("ds_read_b64 %s, v11 offset:%d" % (vr(MR, 2), RST))
    a("ds_read_b64 %s, v11 offset:%d" % (vr(MR + 2, 2), RST + 128))
    a("v_lshrrev_b32 v10, 4, v2")
    a("v_lshlrev_b32 v4, 4, v10")
    a("s_mul_i32 s36, s25, 320")
    a("v_add_u32 v5, s36, v4")
    def cs_loads(z):
        for ft in range(4):
            a("ds_read_b128 %s, v5 offset:%d" % (vr(CS + 4 * ft), CSO + 576 * z + 64 * ft))
        a("ds_read_b128 %s, v4 offset:%d" % (vr(CS + 16), CSO + 576 * z + 256))
    a("s_waitcnt lgkmcnt(6)")
    cs_loads(0)
    S = [108, 110]; Q = [109, 111]
    for r_ in range(108, 112): a("v_mov_b32 v%d, 0" % r_)
    a("v_mov_b32 v88, 0x3f803f80")
    a("s_waitcnt lgkmcnt(0)")
    def gelu_z(z, ZP, stats):
        def dots(lst):
            if not stats: return
            for d in range(2):
                for (ft, tt) in lst:
                    p = ZP(2 * ft + tt) + d
                    a("v_dot2_f32_bf16 v%d, v%d, v88, v%d" % (S[tt], p, S[tt]))
                    a("v_dot2_f32_bf16 v%d, v%d, v%d, v%d" % (Q[tt], p, p, Q[tt]))
        for f0 in (0, 2):
            lst = [(ft, tt) for ft in (f0, f0 + 1) for tt in range(2)]
            emit_fold_gelu(a, [(ACC + 72 * z + 4 * tidx(ft, tt), CS + 4 * ft, MR + 2 * tt, ZP(2 * ft + tt)) for ft, tt in lst], T)
            dots(lst)
        a("s_cmp_lg_u32 s98, 0")
        a("s_cbranch_scc1 %s_nohalf%d" % (name, z))
        lst = [(4, 0), (4, 1)]
        emit_fold_gelu(a, [(ACC + 72 * z + 4 * tidx(ft, tt), CS + 4 * ft, MR + 2 * tt, ZP(2 * ft + tt)) for ft, tt in lst], T)
        dots(lst)
        a.label("%s_nohalf%d" % (name, z))
    gelu_z(0, ZP2, True)
    cs_loads(1)
    a("s_nop 1")
    emit_xg_reduce(a, S + Q, 72)
    a("s_lshl_b32 s59, s22, 7")
    a("s_lshl_b32 s36, s24, 6")
    a("s_add_u32 s59, s59, s36")
    a("s_lshl_b32 s36, s52, 5")
    a("s_add_u32 s59, s59, s36")
    a("s_lshl_b32 s59, s59, 8")
    a("s_add_u32 s59, s59, 0x%x" % STATS2)
    a("s_lshl_b32 s36, s23, 1")
    a("s_add_u32 s36, s36, s25")
    a("s_lshl_b32 s36, s36, 3")
    a("s_add_u32 s58, s36, s59")
    a("v_lshlrev_b32 v11, 8, v2")
    a("v_cmp_gt_u32 vcc, 32, v2")
    a("v_mov_b32 v12, 0x7ffffff0")
    a("v_cmp_eq_u32 s[36:37], 1, v10")
    a("v_cndmask_b32 v11, v12, v11, vcc")
    a("s_nop 0")
    a("v_cndmask_b32 v108, v108, v110, s[36:37]")
    a("v_cndmask_b32 v109, v109, v111, s[36:37]")
    a("v_and_b32 v109, 0x7fffffff, v109")
    a("buffer_store_dwordx2 v[108:109], v11, s[12:15], s58 offen sc1")
    a("s_setprio 0")
    stamp(a, 4)
    a("s_lshl_b32 s42, s2, 1")
    a("s_add_u32 s42, s42, s98")
    a("v_and_b32 v0, 255, v0")
    emit_wot_loads(a, 136, 144)
    a("s_mov_b32 s41, s42")
    a("s_cmp_ge_u32 s41, 288")
    a("s_cbranch_scc1 %s_nokv1" % name)
    emit_kv_loads(a, 112, 124, 132, 146, 147)
    a.label("%s_nokv1" % name)
    PB = 148
    a("v_lshrrev_b32 v182, 4, v2")
    a("v_lshlrev_b32 v181, 8, v3")
    a("v_lshl_add_u32 v181, v182, 6, v181")
    a("s_lshl_b32 s33, s22, 2")
    a("v_mov_b32 v182, s33")
    a("s_add_u32 s53, s59, 4096")
    a("buffer_load_dword v180, v182, s[60:63], 0 offen sc1")
    a("s_load_dwordx2 s[90:91], s[0:1], 64")
    a("v_lshrrev_b32 v183, 4, v2")
    a("v_lshlrev_b32 v183, 12, v183")
    a("v_lshl_add_u32 v183, v3, 4, v183")
    a("s_lshl_b32 s82, s22, 7")
    a("s_lshl_b32 s36, s3, 5")
    a("s_add_u32 s82, s82, s36")
    a("s_lshl_b32 s36, s98, 4")
    a("s_add_u32 s82, s82, s36")
    a("s_lshl_b32 s82, s82, 12")
    a("s_lshl_b32 s36, s23, 8")
    a("s_add_u32 s82, s82, s36")
    a("s_waitcnt lgkmcnt(0)")
    srd(a, 92, 90, 2048 * 2048 * 2)
    for n in range(4):
        a("buffer_load_dwordx4 v[92:95], v183, s[92:95], s82 offen")
        if n < 3: a("s_add_u32 s82, s82, 16384")
    a("s_waitcnt lgkmcnt(0)")
    gelu_z(1, ZP1f, False)
    stamp(a, 5)
    a("s_waitcnt vmcnt(0)")
    def gather():
        for tt in range(2):
            for q in range(4):
                a("buffer_load_dwordx4 %s, v181, s[12:15], s%d offen offset:%d sc1" % (vr(PB + 16 * tt + 4 * q), (59, 53)[tt], 16 * q))
    gather()
    a("s_cmp_ge_u32 s41, 288")
    a("s_cbranch_scc1 %s_nokv2" % name)
    for n in range(11): a("v_mov_b32 v%d, v%d" % (16 + n, 112 + n))
    for n in range(8): a("v_mov_b32 v%d, v%d" % (32 + n, 124 + n))
    for n in range(4): a("v_mov_b32 v%d, v%d" % (44 + n, 132 + n))
    a("v_mov_b32 v56, v146"); a("v_mov_b32 v57, v147")
    emit_kv_compute(a, wait=False, store=False)
    a.label("%s_nokv2" % name)
    stamp(a, 6)
    a("s_mov_b32 s43, 0")
    a("v_lshrrev_b32 v10, 4, v2")
    a("s_waitcnt vmcnt(0)")
    a.label("%s_chk" % name)
    a("v_subrev_u32 v11, 16, v180")
    for r in range(PB + 1, PB + 32, 4):
        a("v_or3_b32 v11, v11, v%d, v%d" % (r, r + 2))
    a("v_cmp_gt_i32 vcc, 0, v11")
    a("s_add_u32 s43, s43, 1")
    a("s_cmp_gt_u32 s43, %d" % SPIN_MAX)
    a("s_cbranch_scc1 %s_poll1x" % name)
    a("s_cbranch_vccz %s_poll1x" % name)
    a("s_sleep 24")
    a("buffer_load_dword v180, v182, s[60:63], 0 offen sc1")
    a("s_waitcnt vmcnt(0)")
    gather()
    a("s_waitcnt vmcnt(0)")
    a("s_branch %s_chk" % name)
    a.label("%s_poll1x" % name)
    stamp(a, 7)
    for n in range(2):
        a("buffer_store_dwordx4 %s, v%d, s[12:15], s40 offen" % (vr(136 + 4 * n), 144 + n))
    a("s_cmp_ge_u32 s41, 288")
    a("s_cbranch_scc1 %s_nokv3" % name)
    a("s_mov_b32 s39, 0x%x" % KVT)
    a("buffer_store_dwordx4 v[120:123], v12, s[12:15], s39 offen")
    a("buffer_store_dwordx4 v[124:127], v13, s[12:15], s39 offen")
    a.label("%s_nokv3" % name)
    a("s_lshl_b32 s36, s22, 4")
    a("s_add_u32 s36, s36, s23")
    a("s_lshl_b32 s36, s36, 2")
    a("s_add_u32 s36, s36, s3")
    a("s_mul_i32 s36, s36, 9216")
    a("s_lshl_b32 s37, s98, 10")
    a("s_add_u32 s36, s36, s37")
    a("s_add_u32 s36, s36, 0x%x" % Z1IMG)
    a("s_add_u32 s37, s36, 4096")
    a("s_add_u32 s38, s36, 8192")
    a("v_lshlrev_b32 v11, 4, v2")
    for ft in range(4):
        a("buffer_store_dwordx4 %s, v11, s[12:15], s%d offen offset:%d" % (vr(184 + 16 * ft), 36 + (ft >> 1), (ft & 1) * 2048))
    a("s_cmp_lg_u32 s98, 0")
    a("s_cbranch_scc1 %s_noh1" % name)
    a("buffer_store_dwordx4 %s, v11, s[12:15], s38 offen" % vr(248))
    a.label("%s_noh1" % name)
    for tt in range(2):
        b = PB + 16 * tt
        for st in (8, 4, 2):
            for q in range(0, st, 2):
                a("v_pk_add_f32 %s, %s, %s" % (vr(b + q, 2), vr(b + q, 2), vr(b + q + st, 2)))
    emit_xg_reduce(a, [PB + 16 * tt + e for tt in range(2) for e in range(2)], 72)
    for tt in range(2):
        b = PB + 16 * tt
        emit_ln_finish(a, b, b + 1, 2304, b + 2, MR + 2 * tt, b + 4)
        a("v_mul_f32 v%d, -v%d, v%d" % (MR + 2 * tt + 1, b + 2, MR + 2 * tt))
    a("v_lshrrev_b32 v11, 2, v2"); a("v_and_b32 v11, 1, v11"); a("v_lshlrev_b32 v11, 4, v11")
    a("v_lshrrev_b32 v12, 3, v2"); a("v_and_b32 v12, 1, v12"); a("v_lshl_add_u32 v11, v12, 2, v11")
    a("v_and_b32 v12, 3, v2"); a("v_add_u32 v11, v11, v12")
    a("v_mul_u32_u24 v11, 288, v11")
    a("v_lshrrev_b32 v12, 1, v10"); a("v_lshl_add_u32 v11, v12, 4, v11")
    a("v_and_b32 v12, 1, v10")
    a("v_lshl_add_u32 v13, v12, 5, v11")
    a("v_mul_u32_u24 v12, 2304, v12")
    a("v_add_u32 v9, v11, v12")
    a("s_lshl_b32 s33, s23, 5")
    a("s_lshl_b32 s36, s22, 1")
    a("s_add_u32 s33, s33, s36")
    a("s_add_u32 s33, s33, s24")
    a("s_mul_i32 s33, s33, 18432")
    if ZIMG: a("s_add_u32 s33, s33, 0x%x" % ZIMG)
    a("s_mul_i32 s36, s52, 9216")
    a("s_add_u32 s37, s33, s36")
    a("s_add_u32 s39, s37, 128")
    a("s_mul_i32 s36, s25, 160")
    a("s_add_u32 s37, s37, s36")
    def norm_pair(nA, ttA, nB, ttB, O):
        for q, (n, tt) in enumerate(((nA, ttA), (nB, ttB))):
            for d in range(2):
                z = ZP2(n) + d; t = T + 4 * q + 2 * d
                a("v_lshlrev_b32 v%d, 16, v%d" % (t, z))
                a("v_and_b32 v%d, 0xffff0000, v%d" % (t + 1, z))
        for q, (n, tt) in enumerate(((nA, ttA), (nB, ttB))):
            for d in range(2):
                t = T + 4 * q + 2 * d
                a("v_pk_fma_f32 %s, %s, %s, %s op_sel:[0,0,1] op_sel_hi:[1,0,1]" % (vr(t, 2), vr(t, 2), vr(MR + 2 * tt, 2), vr(MR + 2 * tt, 2)))
        for q in range(2):
            for d in range(2):
                t = T + 4 * q + 2 * d
                a("v_cvt_pk_bf16_f32 v%d, v%d, v%d" % (O + 2 * q + d, t, t + 1))
        a("s_nop 1")
        a("v_permlane16_swap_b32 v%d, v%d" % (O, O + 2))
        a("v_permlane16_swap_b32 v%d, v%d" % (O + 1, O + 3))
    cnt = 0
    for pr in range(2):
        for tt in range(2):
            O = 16 + 4 * cnt; cnt += 1
            norm_pair(2 * (2 * pr) + tt, tt, 2 * (2 * pr + 1) + tt, tt, O)
            a("s_nop 0")
            a("buffer_store_dwordx4 %s, v13, s[12:15], s37 offen offset:%d" % (vr(O), tt * 2304 + 64 * pr))
    a("s_cmp_lg_u32 s98, 0")
    a("s_cbranch_scc1 %s_fin" % name)
    O = 16 + 4 * cnt
    norm_pair(8, 0, 9, 1, O)
    a("s_nop 0")
    a("buffer_store_dwordx4 %s, v9, s[12:15], s39 offen" % vr(O))
    a.label("%s_fin" % name)
    stamp(a, 8)
    G.stamp_rt(a, 1)
    a.label("%s_end" % name)
    a("s_endpgm")
    return a.text(), kernel_desc(name, 256, 256), (name, 256, 512, LDSB)


def emit_k2_epilogue2(a, core, Z1R, BI, pol=""):
    a("v_lshrrev_b32 v10, 4, v2")
    a("v_and_b32 v11, 1, v10")
    a("v_lshrrev_b32 v12, 1, v10")
    a("v_lshlrev_b32 v4, 5, v3")
    a("v_lshl_add_u32 v4, v11, 9, v4")
    a("v_lshl_add_u32 v4, v12, 4, v4")
    a("s_lshl_b32 s37, s22, 1")
    a("s_add_u32 s37, s37, s24")
    a("s_mul_i32 s37, s37, 144")
    a("s_mul_i32 s36, s23, 9")
    a("s_add_u32 s37, s37, s36")
    a("s_lshl_b32 s37, s37, 11")
    a("s_add_u32 s37, s37, 0x%x" % PIMG)
    a("s_lshl_b32 s38, s25, 10")
    a("s_add_u32 s35, s37, s38")
    a("s_add_u32 s35, s35, 8192")
    a("s_mul_i32 s36, s25, 10240")
    a("s_add_u32 s37, s37, s36")
    a("s_add_u32 s39, s37, s38")
    a("s_xor_b32 s38, s38, 1024")
    a("s_add_u32 s40, s37, s38")
    a("s_add_u32 s36, s39, 4096")
    a("s_add_u32 s37, s40, 4096")
    def ptiles(lst, O):
        T = 24
        for q, (ft, tt) in enumerate(lst):
            c = core.accr(ft, tt)
            for h in (0, 2):
                a("v_pk_add_f32 %s, %s, %s op_sel_hi:[1,0]" % (vr(c + h, 2), vr(c + h, 2), vr(BI + 2 * tt, 2)))
        for q, (ft, tt) in enumerate(lst):
            c = core.accr(ft, tt)
            a("v_cvt_pk_bf16_f32 v%d, v%d, v%d" % (T + 2 * q, c, c + 1))
            a("v_cvt_pk_bf16_f32 v%d, v%d, v%d" % (T + 2 * q + 1, c + 2, c + 3))
        for q, (ft, tt) in enumerate(lst):
            c = core.accr(ft, tt); z = Z1R + 2 * tidx(ft, tt)
            for d in range(2):
                a("v_lshlrev_b32 v%d, 16, v%d" % (c + 2 * d, T + 2 * q + d))
                a("v_and_b32 v%d, 0xffff0000, v%d" % (c + 2 * d + 1, T + 2 * q + d))
                a("v_lshlrev_b32 v%d, 16, v%d" % (T + 4 + 4 * q + 2 * d, z + d))
                a("v_and_b32 v%d, 0xffff0000, v%d" % (T + 5 + 4 * q + 2 * d, z + d))
        for q, (ft, tt) in enumerate(lst):
            c = core.accr(ft, tt)
            for h in (0, 2):
                a("v_pk_mul_f32 %s, %s, %s" % (vr(c + h, 2), vr(c + h, 2), vr(T + 4 + 4 * q + h, 2)))
        for q, (ft, tt) in enumerate(lst):
            c = core.accr(ft, tt)
            a("v_cvt_pk_bf16_f32 v%d, v%d, v%d" % (O + 2 * q, c, c + 1))
            a("v_cvt_pk_bf16_f32 v%d, v%d, v%d" % (O + 2 * q + 1, c + 2, c + 3))
        a("s_nop 1")
        a("v_permlane16_swap_b32 v%d, v%d" % (O, O + 2))
        a("v_permlane16_swap_b32 v%d, v%d" % (O + 1, O + 3))
        a("s_nop 0")
    cnt = 0
    for ft in range(4):
        for pp in range(2):
            O = 40 + 4 * cnt; cnt += 1
            ptiles([(ft, 2 * pp), (ft, 2 * pp + 1)], O)
            sreg = ((39, 40), (36, 37))[ft >> 1][pp]
            a("buffer_store_dwordx4 %s, v4, s[12:15], s%d offen offset:%d%s" % (vr(O), sreg, (ft & 1) * 2048, pol))
    O = 40 + 4 * cnt
    ptiles([(4, 0), (4, 1)], O)
    a("buffer_store_dwordx4 %s, v4, s[12:15], s35 offen%s" % (vr(O), pol))

def emit_k2_epilogue(a, core, Z1R, BI):
    a("v_lshrrev_b32 v10, 4, v2")
    a("v_and_b32 v11, 1, v10")
    a("v_lshrrev_b32 v12, 1, v10")
    a("v_lshl_add_u32 v12, v11, 1, v12")
    a("s_mul_i32 s35, s23, 18")
    a("s_mul_i32 s36, s25, 10")
    a("s_add_u32 s36, s36, s35")
    a("v_lshrrev_b32 v13, 1, v3")
    a("s_lshl_b32 s37, s22, 1")
    a("s_add_u32 s37, s37, s24")
    a("s_mul_i32 s37, s37, %d" % (36 * 8192))
    a("s_add_u32 s37, s37, 0x%x" % PIMG)
    a("s_lshl_b32 s38, s25, 12")
    a("s_add_u32 s39, s37, s38")
    a("s_xor_b32 s38, s38, 4096")
    a("s_add_u32 s40, s37, s38")
    def addr(dst, pv):
        a("v_lshrrev_b32 v14, 3, v%d" % pv)
        a("v_lshlrev_b32 v14, 13, v14")
        a("v_and_b32 v15, 7, v%d" % pv)
        a("v_xor_b32 v15, v15, v13")
        a("v_lshl_add_u32 v14, v15, 4, v14")
        a("v_lshl_add_u32 v%d, v3, 7, v14" % dst)
    a("v_add_u32 v16, s36, v12"); addr(4, 16)
    a("v_add_u32 v16, 4, v16"); addr(5, 16)
    a("v_lshrrev_b32 v16, 1, v10")
    a("s_add_u32 s35, s35, 8")
    a("v_add_u32 v16, s35, v16"); addr(6, 16)
    a("v_lshl_add_u32 v6, v11, 11, v6")
    def ptiles(lst, O):
        T = 24
        for q, (ft, tt) in enumerate(lst):
            c = core.accr(ft, tt)
            for h in (0, 2):
                a("v_pk_add_f32 %s, %s, %s op_sel_hi:[1,0]" % (vr(c + h, 2), vr(c + h, 2), vr(BI + 2 * tt, 2)))
        for q, (ft, tt) in enumerate(lst):
            c = core.accr(ft, tt)
            a("v_cvt_pk_bf16_f32 v%d, v%d, v%d" % (T + 2 * q, c, c + 1))
            a("v_cvt_pk_bf16_f32 v%d, v%d, v%d" % (T + 2 * q + 1, c + 2, c + 3))
        for q, (ft, tt) in enumerate(lst):
            c = core.accr(ft, tt); z = Z1R + 2 * tidx(ft, tt)
            for d in range(2):
                a("v_lshlrev_b32 v%d, 16, v%d" % (c + 2 * d, T + 2 * q + d))
                a("v_and_b32 v%d, 0xffff0000, v%d" % (c + 2 * d + 1, T + 2 * q + d))
                a("v_lshlrev_b32 v%d, 16, v%d" % (T + 4 + 4 * q + 2 * d, z + d))
                a("v_and_b32 v%d, 0xffff0000, v%d" % (T + 5 + 4 * q + 2 * d, z + d))
        for q, (ft, tt) in enumerate(lst):
            c = core.accr(ft, tt)
            for h in (0, 2):
                a("v_pk_mul_f32 %s, %s, %s" % (vr(c + h, 2), vr(c + h, 2), vr(T + 4 + 4 * q + h, 2)))
        for q, (ft, tt) in enumerate(lst):
            c = core.accr(ft, tt)
            a("v_cvt_pk_bf16_f32 v%d, v%d, v%d" % (O + 2 * q, c, c + 1))
            a("v_cvt_pk_bf16_f32 v%d, v%d, v%d" % (O + 2 * q + 1, c + 2, c + 3))
        a("s_nop 1")
        a("v_permlane16_swap_b32 v%d, v%d" % (O, O + 2))
        a("v_permlane16_swap_b32 v%d, v%d" % (O + 1, O + 3))
        a("s_nop 0")
    cnt = 0
    for pr in range(2):
        for tt in range(4):
            O = 40 + 4 * cnt; cnt += 1
            ptiles([(2 * pr, tt), (2 * pr + 1, tt)], O)
            a("buffer_store_dwordx4 %s, v%d, s[12:15], s%d offen offset:%d" % (vr(O), 4 + pr, 39 if tt < 2 else 40, (tt & 1) * 2048))
    O = 40 + 4 * cnt
    ptiles([(4, 0), (4, 1)], O)
    a("buffer_store_dwordx4 %s, v6, s[12:15], s39 offen" % vr(O))

def gen_k2b(name="k2_kernel", R=4):
    a = Asm()
    SLOT = 34816; TREG = 16384; FS = 288; NST = 32
    kernel_begin(a, name)
    a("s_load_dwordx2 s[4:5], s[0:1], 64")
    a("s_load_dwordx2 s[6:7], s[0:1], 104")
    a("s_load_dwordx4 s[88:91], s[0:1], 32")
    a("s_cmp_ge_u32 s2, 256")
    a("s_cbranch_scc1 %s_end" % name)
    a("v_lshrrev_b32 v1, 6, v0")
    a("v_and_b32 v2, 63, v0")
    a("v_readfirstlane_b32 s3, v1")
    G2.tile_ij(a)
    a("s_cmp_lt_u32 s3, 4")
    a("s_cbranch_scc1 %s_consumer" % name)
    if "noprio" not in DBG: a("s_setprio 3")
    a("s_sub_u32 s3, s3, 4")
    a("v_lshrrev_b32 v3, 3, v2")
    a("s_lshl_b32 s24, s3, 5")
    a("v_add_u32 v3, s24, v3")
    a("v_and_b32 v4, 7, v2")
    a("v_lshrrev_b32 v6, 4, v2")
    a("v_xor_b32 v6, v6, v4")
    a("v_lshlrev_b32 v6, 4, v6")
    a("v_lshl_add_u32 v10, v3, 12, v6")
    a("v_xor_b32 v11, 64, v10")
    a("v_add_u32 v11, %d, v11" % (32768 - 1024))
    a("v_add_u32 v12, %d, v10" % (2 * (32768 - 1024)))
    a("v_add_u32 v13, %d, v11" % (2 * (32768 - 1024)))
    a("v_lshlrev_b32 v14, 4, v2")
    a("s_lshl_b32 s26, s22, 19")
    a("s_mul_i32 s27, s23, %d" % (32 * 18432))
    a("s_lshl_b32 s24, s3, 12")
    a("s_add_u32 s27, s27, s24")
    if ZIMG: a("s_add_u32 s27, s27, 0x%x" % ZIMG)
    a("s_lshl_b32 s25, s3, 9")
    a("s_sub_u32 s32, s25, s24")
    a("s_add_u32 s32, s32, 16384")
    a("s_mov_b32 s33, 0")
    a("s_waitcnt lgkmcnt(0)")
    srd(a, 8, 4, 2048 * 2048 * 2)
    srd(a, 12, 6, WS_BYTES)
    def issue():
        a("s_add_u32 s35, s33, s24")
        a("s_mov_b32 m0, s35")
        a("s_add_u32 s36, s35, %d" % TREG)
        for n in range(4):
            a("buffer_load_dwordx4 v%d, s[8:11], s26 offen offset:%d lds" % (10 + n, n * 1024))
        a("s_mov_b32 m0, s36")
        a("s_add_u32 s37, s27, s32")
        for n in range(4):
            a("buffer_load_dwordx4 v14, s[12:15], s27 offen offset:%d lds" % (n * 1024))
        a("s_add_u32 s36, s36, s32")
        a("s_mov_b32 m0, s36")
        a("s_mov_b64 exec, 0xffffffff")
        a("buffer_load_dwordx4 v14, s[12:15], s37 offen lds")
        a("s_mov_b64 exec, -1")
        a("s_add_u32 s26, s26, 128")
        a("s_add_u32 s27, s27, 18432")
        a("s_add_u32 s33, s33, %d" % SLOT)
        a("s_cmp_eq_u32 s33, %d" % (R * SLOT))
        a("s_cselect_b32 s33, 0, s33")
    srd(a, 16, 88, 576 * 2048 * 2)
    srd(a, 84, 90, 576 * 2)
    a("s_lshl_b32 s43, s2, 2")
    a("s_add_u32 s43, s43, s3")
    a("s_and_b32 s53, s43, 1")
    a("s_sub_u32 s36, s43, 448")
    a("s_lshr_b32 s37, s43, 1")
    a("s_cmp_ge_u32 s43, 896")
    a("s_cselect_b32 s43, s36, s37")
    a("s_cselect_b32 s53, 2, s53")
    if "rampB" in DBG:
        issue(); issue()
        nconv = emit_conv_loads(a)
        a("s_waitcnt vmcnt(%d)" % (9 + nconv))
        a("s_barrier")
        issue(); issue()
        a("s_waitcnt vmcnt(%d)" % (18 + nconv))
        a("s_barrier")
    else:
        issue()
        nconv = emit_conv_loads(a)
        issue(); issue(); issue()
        a("s_waitcnt vmcnt(%d)" % (27 + nconv))
        a("s_barrier")
        a("s_waitcnt vmcnt(18)")
        a("s_barrier")
    a("s_add_u32 s3, s3, 4"); stamp_setup(a, 2); stamp(a, 0); a("s_sub_u32 s3, s3, 4")
    a("s_waitcnt vmcnt(9)")
    a("s_barrier")
    a("s_mov_b32 s34, 1")
    a.label("%s_lloop" % name)
    issue()
    a("s_waitcnt vmcnt(9)")
    a("s_barrier")
    a("s_add_u32 s34, s34, 1")
    a("s_cmp_lt_u32 s34, %d" % (NST - R + 1))
    a("s_cbranch_scc1 %s_lloop" % name)
    a("s_waitcnt vmcnt(0) lgkmcnt(0)")
    a("s_barrier")
    stamp(a, 1)
    a("s_mov_b32 s26, s53")
    a("s_and_b32 s27, s3, 1")
    a("s_mul_i32 s27, s27, %d" % CJ_SIZE)
    a("s_lshr_b32 s36, s3, 1")
    a("s_mul_i32 s36, s36, %d" % SLOT)
    a("s_add_u32 s27, s27, s36")
    def mid():
        if "warm2" in DBG:
            a("s_cmp_eq_u32 s99, 1")
            a("s_cbranch_scc1 %s_midskip" % name)
        a("s_barrier")
        a("s_setprio 0")
        a.label("%s_midskip" % name)
    a.label("%s_cjstart" % name)
    if "noconv" in DBG:
        mid()
    else:
        emit_conv_job(a, name, mid)
        G.stamp_rt(a, 1)
    a("s_branch %s_end" % name)
    a.label("%s_consumer" % name)
    a("s_load_dwordx2 s[92:93], s[0:1], 72")
    a("s_load_dwordx2 s[94:95], s[0:1], 80")
    ACC = 128; FB = [16, 52]
    vTa = [4, 5]; vTb = [6, 7]; vF = 8; vFh = 9
    bTa = [88, 89]; bTb = [90, 91]; bF = 92; bFh = 93
    Z1R = 200; BI = 236
    a("s_lshr_b32 s24, s3, 1")
    a("s_and_b32 s25, s3, 1")
    a("v_and_b32 v3, 15, v2")
    a("v_lshrrev_b32 v10, 4, v2")
    a("v_lshrrev_b32 v11, 1, v3")
    a("v_xor_b32 v10, v10, v11")
    a("v_lshlrev_b32 v10, 4, v10")
    a("v_lshl_add_u32 v10, v3, 7, v10")
    a("s_lshl_b32 s26, s24, 13")
    a("v_add_u32 v10, s26, v10")
    a("s_lshl_b32 s26, s25, 12")
    a("v_add_u32 v%d, s26, v10" % bTa[0])
    a("s_xor_b32 s26, s26, 4096")
    a("v_add_u32 v%d, s26, v10" % bTb[0])
    a("v_xor_b32 v%d, 64, v%d" % (bTa[1], bTa[0]))
    a("v_xor_b32 v%d, 64, v%d" % (bTb[1], bTb[0]))
    a("v_lshrrev_b32 v10, 2, v2")
    a("v_mul_u32_u24 v10, %d, v10" % FS)
    a("v_and_b32 v11, 3, v2")
    a("v_lshl_add_u32 v10, v11, 3, v10")
    a("v_add_u32 v10, %d, v10" % TREG)
    a("s_mul_i32 s26, s25, 160")
    a("v_add_u32 v%d, s26, v10" % bF)
    a("v_add_u32 v%d, 128, v10" % bFh)
    for d, s_ in ((vTa[0], bTa[0]), (vTb[0], bTb[0]), (vTa[1], bTa[1]), (vTb[1], bTb[1]), (vF, bF), (vFh, bFh)):
        a("v_mov_b32 v%d, v%d" % (d, s_))
    a("s_waitcnt lgkmcnt(0)")
    srd(a, 12, 6, WS_BYTES)
    srd(a, 28, 92, 2048 * 2)
    if "wot2" in DBG:
        srd(a, 76, 94, 2304 * 576 * 2)
        a("s_mov_b32 s42, s2")
        emit_wot_loads(a, 96, 108, 720, 3)
    stamp_setup(a, 2); stamp(a, 0)
    a("s_mov_b32 s99, 0")
    for r in range(ACC, ACC + 72): a("v_mov_b32 v%d, 0" % r)
    a("s_mov_b32 s27, 0")
    a("s_mov_b32 s33, 0")
    core = G.Core(a, ACC, FB[0], FB[1], FS, TREG, vTa, vTb, vF, vFh)
    trk = core.trk
    a("s_barrier")
    stamp(a, 1)
    core.prime(0, core.reads(0, 0))
    def phase(buf, pend):
        for (m, regs) in core.mfmas(buf):
            trk.need(regs)
            a(m)
            while pend:
                k, t = pend.pop(0)
                if k == "x":
                    a(t)
                    if t.startswith("s_"): continue
                else:
                    a(t[0]); trk.issue(t[1])
                break
        for k, t in pend:
            if k == "x": a(t)
            else: a(t[0]); trk.issue(t[1])
    def iteration(extra=None):
        a("s_barrier")
        rd = [("r", t) for t in core.reads(1, 1)]
        upd = ["s_add_u32 s27, s27, %d" % SLOT, "s_cmp_eq_u32 s27, %d" % (R * SLOT), "s_cselect_b32 s27, 0, s27"]
        tail = ["v_add_u32 v%d, s27, v%d" % (d, s_) for d, s_ in ((vTa[0], bTa[0]), (vF, bF), (vTb[0], bTb[0]), (vFh, bFh))]
        phase(0, rd[:1] + [("x", u) for u in upd] + rd[1:] + [("x", u) for u in tail])
        rd = [("r", t) for t in core.reads(0, 0)]
        tail = ["v_add_u32 v%d, s27, v%d" % (d, s_) for d, s_ in ((vTa[1], bTa[1]), (vTb[1], bTb[1]))] + ["s_add_u32 s33, s33, 1"]
        phase(1, rd + [("x", u) for u in tail])
    a.label("%s_cloop" % name)
    lb = len(a.lines); iteration(); st = copy.deepcopy(trk.out); del a.lines[lb:]; trk.out = copy.deepcopy(st)
    iteration()
    assert [sorted(x) for x in trk.out] == [sorted(x) for x in st]
    a("s_cmp_lg_u32 s33, 24")
    a("s_cbranch_scc1 %s_noz" % name)
    if "wot2" in DBG:
        a("s_mov_b32 s35, 0x%x" % WOT)
        a("s_waitcnt vmcnt(0)")
        for n in range(3):
            a("buffer_store_dwordx4 %s, v%d, s[12:15], s35 offen" % (vr(96 + 4 * n), 108 + n))
    a("s_lshl_b32 s35, s22, 4")
    a("s_add_u32 s35, s35, s23")
    a("s_lshl_b32 s35, s35, 2")
    a("s_add_u32 s35, s35, s3")
    a("s_mul_i32 s35, s35, 9216")
    a("s_add_u32 s35, s35, 0x%x" % Z1IMG)
    a("v_lshlrev_b32 v10, 4, v2")
    for q in range(9):
        if q in (4, 8): a("s_add_u32 s35, s35, 4096")
        a("buffer_load_dwordx4 %s, v10, s[12:15], s35 offen offset:%d" % (vr(Z1R + 4 * q), (q & 3) * 1024))
    a("s_lshl_b32 s36, s22, 7")
    a("s_lshl_b32 s37, s24, 6")
    a("s_add_u32 s36, s36, s37")
    a("v_lshlrev_b32 v11, 1, v3")
    a("s_lshl_b32 s37, s25, 6")
    a("s_lshl_b32 s38, s36, 1")
    a("s_add_u32 s39, s38, s37")
    a("s_xor_b32 s37, s37, 64")
    a("s_add_u32 s40, s38, s37")
    a("buffer_load_ushort v%d, v11, s[28:31], s39 offen" % (BI + 0))
    a("buffer_load_ushort v%d, v11, s[28:31], s39 offen offset:32" % (BI + 2))
    a("buffer_load_ushort v%d, v11, s[28:31], s40 offen" % (BI + 4))
    a("buffer_load_ushort v%d, v11, s[28:31], s40 offen offset:32" % (BI + 6))
    a.label("%s_noz" % name)
    a("s_cmp_lt_u32 s33, %d" % NST)
    a("s_cbranch_scc1 %s_cloop" % name)
    trk.drain()
    stamp(a, 2)
    a.label("%s_epi" % name)
    a("v_lshrrev_b32 v10, 4, v2")
    a("v_and_b32 v11, 1, v10")
    a("v_lshrrev_b32 v12, 1, v10")
    a("v_lshl_add_u32 v12, v11, 1, v12")
    a("s_mul_i32 s35, s23, 18")
    a("s_mul_i32 s36, s25, 10")
    a("s_add_u32 s36, s36, s35")
    a("v_lshrrev_b32 v13, 1, v3")
    a("s_lshl_b32 s37, s22, 1")
    a("s_add_u32 s37, s37, s24")
    a("s_mul_i32 s37, s37, %d" % (36 * 8192))
    a("s_add_u32 s37, s37, 0x%x" % PIMG)
    a("s_lshl_b32 s38, s25, 12")
    a("s_add_u32 s39, s37, s38")
    a("s_xor_b32 s38, s38, 4096")
    a("s_add_u32 s40, s37, s38")
    def addr(dst, pv):
        a("v_lshrrev_b32 v14, 3, v%d" % pv)
        a("v_lshlrev_b32 v14, 13, v14")
        a("v_and_b32 v15, 7, v%d" % pv)
        a("v_xor_b32 v15, v15, v13")
        a("v_lshl_add_u32 v14, v15, 4, v14")
        a("v_lshl_add_u32 v%d, v3, 7, v14" % dst)
    a("v_add_u32 v16, s36, v12"); addr(4, 16)
    a("v_add_u32 v16, 4, v16"); addr(5, 16)
    a("v_lshrrev_b32 v16, 1, v10")
    a("s_add_u32 s35, s35, 8")
    a("v_add_u32 v16, s35, v16"); addr(6, 16)
    a("v_lshl_add_u32 v6, v11, 11, v6")
    a("s_waitcnt vmcnt(0)")
    for tt in range(4):
        a("v_lshlrev_b32 v%d, 16, v%d" % (BI + 2 * tt, BI + 2 * tt))
    stamp(a, 3)
    def ptiles(lst, O):
        T = 24
        for q, (ft, tt) in enumerate(lst):
            c = core.accr(ft, tt)
            for h in (0, 2):
                a("v_pk_add_f32 %s, %s, %s op_sel_hi:[1,0]" % (vr(c + h, 2), vr(c + h, 2), vr(BI + 2 * tt, 2)))
        for q, (ft, tt) in enumerate(lst):
            c = core.accr(ft, tt)
            a("v_cvt_pk_bf16_f32 v%d, v%d, v%d" % (T + 2 * q, c, c + 1))
            a("v_cvt_pk_bf16_f32 v%d, v%d, v%d" % (T + 2 * q + 1, c + 2, c + 3))
        for q, (ft, tt) in enumerate(lst):
            c = core.accr(ft, tt); z = Z1R + 2 * tidx(ft, tt)
            for d in range(2):
                a("v_lshlrev_b32 v%d, 16, v%d" % (c + 2 * d, T + 2 * q + d))
                a("v_and_b32 v%d, 0xffff0000, v%d" % (c + 2 * d + 1, T + 2 * q + d))
                a("v_lshlrev_b32 v%d, 16, v%d" % (T + 4 + 4 * q + 2 * d, z + d))
                a("v_and_b32 v%d, 0xffff0000, v%d" % (T + 5 + 4 * q + 2 * d, z + d))
        for q, (ft, tt) in enumerate(lst):
            c = core.accr(ft, tt)
            for h in (0, 2):
                a("v_pk_mul_f32 %s, %s, %s" % (vr(c + h, 2), vr(c + h, 2), vr(T + 4 + 4 * q + h, 2)))
        for q, (ft, tt) in enumerate(lst):
            c = core.accr(ft, tt)
            a("v_cvt_pk_bf16_f32 v%d, v%d, v%d" % (O + 2 * q, c, c + 1))
            a("v_cvt_pk_bf16_f32 v%d, v%d, v%d" % (O + 2 * q + 1, c + 2, c + 3))
        a("s_nop 1")
        a("v_permlane16_swap_b32 v%d, v%d" % (O, O + 2))
        a("v_permlane16_swap_b32 v%d, v%d" % (O + 1, O + 3))
        a("s_nop 0")
    cnt = 0
    for pr in range(2):
        for tt in range(4):
            O = 40 + 4 * cnt; cnt += 1
            ptiles([(2 * pr, tt), (2 * pr + 1, tt)], O)
            a("buffer_store_dwordx4 %s, v%d, s[12:15], s%d offen offset:%d" % (vr(O), 4 + pr, 39 if tt < 2 else 40, (tt & 1) * 2048))
    O = 40 + 4 * cnt
    ptiles([(4, 0), (4, 1)], O)
    a("buffer_store_dwordx4 %s, v6, s[12:15], s39 offen" % vr(O))
    seg_end2(a, name)
    stamp(a, 4)
    G.stamp_rt(a, 1)
    a.label("%s_end" % name)
    a("s_endpgm")
    return a.text(), kernel_desc(name, 256, 256), (name, 256, 512, R * SLOT)


def gen_k2c(name="k2_kernel", R=4):
    a = Asm()
    SLOT = 34816; TREG = 16384; FS = 288; NST = 32
    kernel_begin(a, name)
    a("s_load_dwordx2 s[4:5], s[0:1], 64")
    a("s_load_dwordx2 s[6:7], s[0:1], 104")
    a("s_load_dwordx4 s[88:91], s[0:1], 32")
    a("s_load_dwordx2 s[80:81], s[0:1], 0")
    a("s_load_dwordx2 s[82:83], s[0:1], 56")
    a("s_cmp_ge_u32 s2, 256")
    a("s_cbranch_scc1 %s_end" % name)
    a("v_lshrrev_b32 v1, 6, v0")
    a("v_and_b32 v2, 63, v0")
    a("v_readfirstlane_b32 s3, v1")
    G2.tile_ij(a)
    a("s_cmp_lt_u32 s3, 4")
    a("s_cbranch_scc1 %s_consumer" % name)
    if "noprio" not in DBG: a("s_setprio 3")
    a("s_sub_u32 s3, s3, 4")
    a("v_lshrrev_b32 v3, 3, v2")
    a("s_lshl_b32 s24, s3, 5")
    a("v_add_u32 v3, s24, v3")
    a("v_and_b32 v4, 7, v2")
    a("v_lshrrev_b32 v6, 4, v2")
    a("v_xor_b32 v6, v6, v4")
    a("v_lshlrev_b32 v6, 4, v6")
    a("v_lshl_add_u32 v10, v3, 12, v6")
    a("v_xor_b32 v11, 64, v10")
    a("v_add_u32 v11, %d, v11" % (32768 - 1024))
    a("v_add_u32 v12, %d, v10" % (2 * (32768 - 1024)))
    a("v_add_u32 v13, %d, v11" % (2 * (32768 - 1024)))
    a("v_lshlrev_b32 v14, 4, v2")
    a("s_lshl_b32 s26, s22, 19")
    a("s_mul_i32 s27, s23, %d" % (32 * 18432))
    a("s_lshl_b32 s24, s3, 12")
    a("s_add_u32 s27, s27, s24")
    if ZIMG: a("s_add_u32 s27, s27, 0x%x" % ZIMG)
    a("s_lshl_b32 s25, s3, 9")
    a("s_sub_u32 s32, s25, s24")
    a("s_add_u32 s32, s32, 16384")
    a("s_mov_b32 s33, 0")
    a("s_waitcnt lgkmcnt(0)")
    srd(a, 8, 4, 2048 * 2048 * 2)
    srd(a, 12, 6, WS_BYTES)
    def issue():
        a("s_add_u32 s35, s33, s24")
        a("s_mov_b32 m0, s35")
        a("s_add_u32 s36, s35, %d" % TREG)
        for n in range(4):
            a("buffer_load_dwordx4 v%d, s[8:11], s26 offen offset:%d lds" % (10 + n, n * 1024))
        a("s_mov_b32 m0, s36")
        a("s_add_u32 s37, s27, s32")
        for n in range(4):
            a("buffer_load_dwordx4 v14, s[12:15], s27 offen offset:%d lds" % (n * 1024))
        a("s_add_u32 s36, s36, s32")
        a("s_mov_b32 m0, s36")
        a("s_mov_b64 exec, 0xffffffff")
        a("buffer_load_dwordx4 v14, s[12:15], s37 offen lds")
        a("s_mov_b64 exec, -1")
        a("s_add_u32 s26, s26, 128")
        a("s_add_u32 s27, s27, 18432")
        a("s_add_u32 s33, s33, %d" % SLOT)
        a("s_cmp_eq_u32 s33, %d" % (R * SLOT))
        a("s_cselect_b32 s33, 0, s33")
    srd(a, 16, 88, 576 * 2048 * 2)
    srd(a, 84, 90, 576 * 2)
    a("s_lshl_b32 s43, s2, 2")
    a("s_add_u32 s43, s43, s3")
    a("s_and_b32 s53, s43, 1")
    a("s_sub_u32 s36, s43, 448")
    a("s_lshr_b32 s37, s43, 1")
    a("s_cmp_ge_u32 s43, 896")
    a("s_cselect_b32 s43, s36, s37")
    a("s_cselect_b32 s53, 2, s53")
    VT = 16; VF = 20
    srd(a, 64, 80, 2048 * 576 * 2)
    srd(a, 68, 82, 576 * 4608 * 2)
    a("v_mul_u32_u24 v5, 1152, v3")
    a("v_add_u32 v%d, v5, v6" % VT)
    a("v_xor_b32 v%d, 64, v%d" % (VT + 1, VT))
    a("v_add_u32 v%d, %d, v%d" % (VT + 1, 9216 - 1024, VT + 1))
    a("v_add_u32 v%d, %d, v%d" % (VT + 2, 2 * (9216 - 1024), VT))
    a("v_add_u32 v%d, %d, v%d" % (VT + 3, 2 * (9216 - 1024), VT + 1))
    a("s_mul_i32 s72, s22, %d" % (128 * 1152))
    a("s_mul_i32 s73, s23, 288")
    a("s_add_u32 s74, s25, %d" % (TREG + 16384))
    def issueT1(g):
        a("s_add_u32 s35, s24, %d" % ((g % R) * SLOT))
        a("s_mov_b32 m0, s35")
        a("s_add_u32 s36, s72, %d" % (128 * g))
        for n in range(4):
            a("buffer_load_dwordx4 v%d, s[64:67], s36 offen offset:%d lds" % (VT + n, 1024 * n))
    def issueF1(g):
        a("s_add_u32 s35, s24, %d" % ((g % R) * SLOT + TREG))
        a("s_mov_b32 m0, s35")
        a("s_add_u32 s36, s73, %d" % (64 * 9216 * g))
        for n in range(4):
            a("buffer_load_dwordx4 v%d, s[68:71], s36 offen offset:%d lds" % (VF + n, 1024 * n))
        a("s_add_u32 s35, s74, %d" % ((g % R) * SLOT))
        a("s_mov_b32 m0, s35")
        a("s_mov_b64 exec, 0xffffffff")
        a("buffer_load_dwordx4 v%d, s[68:71], s36 offen lds" % (VF + 4))
        a("s_mov_b64 exec, -1")
    issueT1(0)
    for n in range(5):
        if n < 4:
            a("s_lshl_b32 s36, s3, 8")
            a("s_add_u32 s36, s36, %d" % (64 * n))
        else:
            a("s_lshl_b32 s36, s3, 5")
            a("s_add_u32 s36, s36, 1024")
        a("v_add_u32 v6, s36, v2")
        a("v_mul_u32_u24 v7, 3641, v6")
        a("v_lshrrev_b32 v7, 16, v7")
        a("v_mul_u32_u24 v8, 18, v7")
        a("v_sub_u32 v8, v6, v8")
        a("v_and_b32 v9, 35, v7")
        a("v_bfe_u32 v6, v7, 2, 2")
        a("v_lshl_add_u32 v9, v6, 3, v9")
        a("v_bfe_u32 v6, v7, 4, 1")
        a("v_lshl_add_u32 v9, v6, 2, v9")
        a("v_mul_u32_u24 v9, 9216, v9")
        a("v_lshl_add_u32 v%d, v8, 4, v9" % (VF + n))
        if 0 < n < 4: a("v_subrev_u32 v%d, %d, v%d" % (VF + n, 1024 * n, VF + n))
    issueF1(0)
    for g in (1, 2, 3): issueT1(g); issueF1(g)
    nconv = emit_conv_loads(a)
    a("s_waitcnt vmcnt(%d)" % (27 + nconv))
    a("s_barrier")
    a("s_waitcnt vmcnt(%d)" % (18 + nconv))
    a("s_barrier")
    a("s_add_u32 s3, s3, 4"); stamp_setup(a, 2); stamp(a, 0); a("s_sub_u32 s3, s3, 4")
    a("s_waitcnt vmcnt(%d)" % (9 + nconv))
    a("s_barrier")
    for kk in range(1, 6):
        issueT1(kk + 3); issueF1(kk + 3)
        a("s_waitcnt vmcnt(%d)" % (9 + (nconv if kk == 1 else 0)))
        a("s_barrier")
    a("s_mov_b32 s33, %d" % ((9 % R) * SLOT))
    a("s_mov_b32 s34, 0")
    a.label("%s_lloop" % name)
    issue()
    a("s_waitcnt vmcnt(9)")
    a("s_barrier")
    a("s_add_u32 s34, s34, 1")
    a("s_cmp_lt_u32 s34, 32")
    a("s_cbranch_scc1 %s_lloop" % name)
    a("s_waitcnt vmcnt(0) lgkmcnt(0)")
    a("s_barrier")
    stamp(a, 1)
    a("s_mov_b32 s26, s53")
    a("s_and_b32 s27, s3, 1")
    a("s_mul_i32 s27, s27, %d" % CJ_SIZE)
    a("s_lshr_b32 s36, s3, 1")
    a("s_add_u32 s36, s36, 1")
    a("s_mul_i32 s36, s36, %d" % SLOT)
    a("s_add_u32 s27, s27, s36")
    def mid():
        if "warm2" in DBG:
            a("s_cmp_eq_u32 s99, 1")
            a("s_cbranch_scc1 %s_midskip" % name)
        a("s_barrier")
        a("s_setprio 0")
        a.label("%s_midskip" % name)
    a.label("%s_cjstart" % name)
    if "noconv" in DBG:
        mid()
    else:
        emit_conv_job(a, name, mid)
        G.stamp_rt(a, 1)
    a("s_branch %s_end" % name)
    a.label("%s_consumer" % name)
    a("s_load_dwordx2 s[92:93], s[0:1], 72")
    a("s_load_dwordx2 s[94:95], s[0:1], 80")
    ACC = 128; FB = [16, 52]
    vTa = [4, 5]; vTb = [6, 7]; vF = 8; vFh = 9
    bTa = [88, 89]; bTb = [90, 91]; bF = 92; bFh = 93
    Z1R = 200; BI = 236
    a("s_lshr_b32 s24, s3, 1")
    a("s_and_b32 s25, s3, 1")
    a("v_and_b32 v3, 15, v2")
    a("v_lshrrev_b32 v10, 4, v2")
    a("v_lshrrev_b32 v11, 1, v3")
    a("v_xor_b32 v10, v10, v11")
    a("v_lshlrev_b32 v10, 4, v10")
    a("v_lshl_add_u32 v10, v3, 7, v10")
    a("s_lshl_b32 s26, s24, 13")
    a("v_add_u32 v10, s26, v10")
    a("s_lshl_b32 s26, s25, 12")
    a("v_add_u32 v%d, s26, v10" % bTa[0])
    a("s_xor_b32 s26, s26, 4096")
    a("v_add_u32 v%d, s26, v10" % bTb[0])
    a("v_xor_b32 v%d, 64, v%d" % (bTa[1], bTa[0]))
    a("v_xor_b32 v%d, 64, v%d" % (bTb[1], bTb[0]))
    a("v_lshrrev_b32 v10, 2, v2")
    a("v_mul_u32_u24 v10, %d, v10" % FS)
    a("v_and_b32 v11, 3, v2")
    a("v_lshl_add_u32 v10, v11, 3, v10")
    a("v_add_u32 v10, %d, v10" % TREG)
    a("s_mul_i32 s26, s25, 160")
    a("v_add_u32 v%d, s26, v10" % bF)
    a("v_add_u32 v%d, 128, v10" % bFh)
    for d, s_ in ((vTa[0], bTa[0]), (vTb[0], bTb[0]), (vTa[1], bTa[1]), (vTb[1], bTb[1]), (vF, bF), (vFh, bFh)):
        a("v_mov_b32 v%d, v%d" % (d, s_))
    a("s_waitcnt lgkmcnt(0)")
    srd(a, 12, 6, WS_BYTES)
    srd(a, 28, 92, 2048 * 2)
    srd(a, 76, 94, 2304 * 576 * 2)
    a("s_mov_b32 s42, s2")
    emit_wot_loads(a, 240, 252, 720, 3)
    MR = 100; CS = 108; ONE = 96
    a("s_lshl_b32 s36, s22, 7")
    a("s_lshl_b32 s37, s24, 6")
    a("s_add_u32 s36, s36, s37")
    a("s_lshl_b32 s36, s36, 3")
    a("s_add_u32 s36, s36, 0x%x" % STATS1)
    a("s_lshl_b32 s37, s25, 8")
    a("s_add_u32 s38, s36, s37")
    a("s_xor_b32 s37, s37, 256")
    a("s_add_u32 s39, s36, s37")
    a("v_lshlrev_b32 v10, 3, v3")
    a("buffer_load_dwordx2 %s, v10, s[12:15], s38 offen" % vr(MR, 2))
    a("buffer_load_dwordx2 %s, v10, s[12:15], s38 offen offset:128" % vr(MR + 2, 2))
    a("buffer_load_dwordx2 %s, v10, s[12:15], s39 offen" % vr(MR + 4, 2))
    a("buffer_load_dwordx2 %s, v10, s[12:15], s39 offen offset:128" % vr(MR + 6, 2))
    for r in range(CS, CS + 20): a("v_mov_b32 v%d, 0" % r)
    for r in range(ONE, ONE + 4): a("v_mov_b32 v%d, 0x3f803f80" % r)
    stamp_setup(a, 2); stamp(a, 0)
    a("s_mov_b32 s99, 0")
    for r in range(ACC, ACC + 72): a("v_mov_b32 v%d, 0" % r)
    a("s_mov_b32 s27, 0")
    a("s_mov_b32 s33, 0")
    core = G.Core(a, ACC, FB[0], FB[1], FS, TREG, vTa, vTb, vF, vFh)
    trk = core.trk
    a("s_barrier")
    stamp(a, 1)
    core.prime(0, core.reads(0, 0))
    withcs = [True]
    def mfmas(buf):
        L = []
        for ft in range(5):
            A = core.F(buf, ft)
            for tt in range(4 if ft < 4 else 2):
                c = core.accr(ft, tt); B = core.T(buf, tt)
                L.append(("v_mfma_f32_16x16x32_bf16 %s, %s, %s, %s" % (vr(c), vr(A), vr(B), vr(c)), list(range(A, A + 4)) + list(range(B, B + 4))))
            if withcs[0]:
                L.append(("v_mfma_f32_16x16x32_bf16 %s, %s, %s, %s" % (vr(CS + 4 * ft), vr(A), vr(ONE), vr(CS + 4 * ft)), list(range(A, A + 4))))
        return L
    def phase(buf, pend):
        for (m, regs) in mfmas(buf):
            trk.need(regs)
            a(m)
            while pend:
                k, t = pend.pop(0)
                if k == "x":
                    a(t)
                    if t.startswith("s_"): continue
                else:
                    a(t[0]); trk.issue(t[1])
                break
        for k, t in pend:
            if k == "x": a(t)
            else: a(t[0]); trk.issue(t[1])
    def iteration(extra=None):
        a("s_barrier")
        rd = [("r", t) for t in core.reads(1, 1)]
        upd = ["s_add_u32 s27, s27, %d" % SLOT, "s_cmp_eq_u32 s27, %d" % (R * SLOT), "s_cselect_b32 s27, 0, s27"]
        tail = ["v_add_u32 v%d, s27, v%d" % (d, s_) for d, s_ in ((vTa[0], bTa[0]), (vF, bF), (vTb[0], bTb[0]), (vFh, bFh))]
        phase(0, rd[:1] + [("x", u) for u in upd] + rd[1:] + [("x", u) for u in tail])
        rd = [("r", t) for t in core.reads(0, 0)]
        tail = ["v_add_u32 v%d, s27, v%d" % (d, s_) for d, s_ in ((vTa[1], bTa[1]), (vTb[1], bTb[1]))] + ["s_add_u32 s33, s33, 1"]
        phase(1, rd + [("x", u) for u in tail])
    trk.drain()
    a.label("%s_zloop" % name)
    lb = len(a.lines); iteration(); st = copy.deepcopy(trk.out); del a.lines[lb:]; trk.out = copy.deepcopy(st)
    iteration()
    assert [sorted(x) for x in trk.out] == [sorted(x) for x in st]
    a("s_cmp_lt_u32 s33, 9")
    a("s_cbranch_scc1 %s_zloop" % name)
    trk.drain()
    stamp(a, 5)
    gelu_consts(a)
    a("s_waitcnt vmcnt(0)")
    for tt in range(4): a("v_sub_f32 v%d, 0, v%d" % (MR + 2 * tt, MR + 2 * tt))
    a("s_mov_b32 s35, 0x%x" % WOT)
    for n in range(3):
        a("buffer_store_dwordx4 %s, v%d, s[12:15], s35 offen" % (vr(240 + 4 * n), 252 + n))
    for ft in range(5):
        tts = range(4 if ft < 4 else 2)
        emit_fold_gelu(a, [(core.accr(ft, tt), CS + 4 * ft, MR + 2 * tt, Z1R + 2 * tidx(ft, tt)) for tt in tts], 56)
    for r in range(ACC, ACC + 72): a("v_mov_b32 v%d, 0" % r)
    a("s_mov_b32 s33, 0")
    stamp(a, 6)
    withcs[0] = False
    a.label("%s_cloop" % name)
    lb = len(a.lines); iteration(); st = copy.deepcopy(trk.out); del a.lines[lb:]; trk.out = copy.deepcopy(st)
    iteration()
    assert [sorted(x) for x in trk.out] == [sorted(x) for x in st]
    a("s_cmp_lg_u32 s33, 24")
    a("s_cbranch_scc1 %s_noz" % name)
    a("s_lshl_b32 s36, s22, 7")
    a("s_lshl_b32 s37, s24, 6")
    a("s_add_u32 s36, s36, s37")
    a("v_lshlrev_b32 v11, 1, v3")
    a("s_lshl_b32 s37, s25, 6")
    a("s_lshl_b32 s38, s36, 1")
    a("s_add_u32 s39, s38, s37")
    a("s_xor_b32 s37, s37, 64")
    a("s_add_u32 s40, s38, s37")
    a("buffer_load_ushort v%d, v11, s[28:31], s39 offen" % (BI + 0))
    a("buffer_load_ushort v%d, v11, s[28:31], s39 offen offset:32" % (BI + 2))
    a("buffer_load_ushort v%d, v11, s[28:31], s40 offen" % (BI + 4))
    a("buffer_load_ushort v%d, v11, s[28:31], s40 offen offset:32" % (BI + 6))
    a.label("%s_noz" % name)
    a("s_cmp_lt_u32 s33, %d" % NST)
    a("s_cbranch_scc1 %s_cloop" % name)
    trk.drain()
    stamp(a, 2)
    a.label("%s_epi" % name)
    a("v_lshrrev_b32 v10, 4, v2")
    a("v_and_b32 v11, 1, v10")
    a("v_lshrrev_b32 v12, 1, v10")
    a("v_lshl_add_u32 v12, v11, 1, v12")
    a("s_mul_i32 s35, s23, 18")
    a("s_mul_i32 s36, s25, 10")
    a("s_add_u32 s36, s36, s35")
    a("v_lshrrev_b32 v13, 1, v3")
    a("s_lshl_b32 s37, s22, 1")
    a("s_add_u32 s37, s37, s24")
    a("s_mul_i32 s37, s37, %d" % (36 * 8192))
    a("s_add_u32 s37, s37, 0x%x" % PIMG)
    a("s_lshl_b32 s38, s25, 12")
    a("s_add_u32 s39, s37, s38")
    a("s_xor_b32 s38, s38, 4096")
    a("s_add_u32 s40, s37, s38")
    def addr(dst, pv):
        a("v_lshrrev_b32 v14, 3, v%d" % pv)
        a("v_lshlrev_b32 v14, 13, v14")
        a("v_and_b32 v15, 7, v%d" % pv)
        a("v_xor_b32 v15, v15, v13")
        a("v_lshl_add_u32 v14, v15, 4, v14")
        a("v_lshl_add_u32 v%d, v3, 7, v14" % dst)
    a("v_add_u32 v16, s36, v12"); addr(4, 16)
    a("v_add_u32 v16, 4, v16"); addr(5, 16)
    a("v_lshrrev_b32 v16, 1, v10")
    a("s_add_u32 s35, s35, 8")
    a("v_add_u32 v16, s35, v16"); addr(6, 16)
    a("v_lshl_add_u32 v6, v11, 11, v6")
    a("s_waitcnt vmcnt(0)")
    for tt in range(4):
        a("v_lshlrev_b32 v%d, 16, v%d" % (BI + 2 * tt, BI + 2 * tt))
    stamp(a, 3)
    def ptiles(lst, O):
        T = 24
        for q, (ft, tt) in enumerate(lst):
            c = core.accr(ft, tt)
            for h in (0, 2):
                a("v_pk_add_f32 %s, %s, %s op_sel_hi:[1,0]" % (vr(c + h, 2), vr(c + h, 2), vr(BI + 2 * tt, 2)))
        for q, (ft, tt) in enumerate(lst):
            c = core.accr(ft, tt)
            a("v_cvt_pk_bf16_f32 v%d, v%d, v%d" % (T + 2 * q, c, c + 1))
            a("v_cvt_pk_bf16_f32 v%d, v%d, v%d" % (T + 2 * q + 1, c + 2, c + 3))
        for q, (ft, tt) in enumerate(lst):
            c = core.accr(ft, tt); z = Z1R + 2 * tidx(ft, tt)
            for d in range(2):
                a("v_lshlrev_b32 v%d, 16, v%d" % (c + 2 * d, T + 2 * q + d))
                a("v_and_b32 v%d, 0xffff0000, v%d" % (c + 2 * d + 1, T + 2 * q + d))
                a("v_lshlrev_b32 v%d, 16, v%d" % (T + 4 + 4 * q + 2 * d, z + d))
                a("v_and_b32 v%d, 0xffff0000, v%d" % (T + 5 + 4 * q + 2 * d, z + d))
        for q, (ft, tt) in enumerate(lst):
            c = core.accr(ft, tt)
            for h in (0, 2):
                a("v_pk_mul_f32 %s, %s, %s" % (vr(c + h, 2), vr(c + h, 2), vr(T + 4 + 4 * q + h, 2)))
        for q, (ft, tt) in enumerate(lst):
            c = core.accr(ft, tt)
            a("v_cvt_pk_bf16_f32 v%d, v%d, v%d" % (O + 2 * q, c, c + 1))
            a("v_cvt_pk_bf16_f32 v%d, v%d, v%d" % (O + 2 * q + 1, c + 2, c + 3))
        a("s_nop 1")
        a("v_permlane16_swap_b32 v%d, v%d" % (O, O + 2))
        a("v_permlane16_swap_b32 v%d, v%d" % (O + 1, O + 3))
        a("s_nop 0")
    cnt = 0
    for pr in range(2):
        for tt in range(4):
            O = 40 + 4 * cnt; cnt += 1
            ptiles([(2 * pr, tt), (2 * pr + 1, tt)], O)
            a("buffer_store_dwordx4 %s, v%d, s[12:15], s%d offen offset:%d" % (vr(O), 4 + pr, 39 if tt < 2 else 40, (tt & 1) * 2048))
    O = 40 + 4 * cnt
    ptiles([(4, 0), (4, 1)], O)
    a("buffer_store_dwordx4 %s, v6, s[12:15], s39 offen" % vr(O))
    seg_end2(a, name)
    stamp(a, 4)
    G.stamp_rt(a, 1)
    a.label("%s_end" % name)
    a("s_endpgm")
    return a.text(), kernel_desc(name, 256, 256), (name, 256, 512, R * SLOT)


def gen_k2d(name="k2_kernel", R=4):
    a = Asm()
    SLOT = 34816; TREG = 16384; FS = 288; NST = 32
    kernel_begin(a, name)
    a("s_load_dwordx2 s[4:5], s[0:1], 64")
    a("s_load_dwordx2 s[6:7], s[0:1], 104")
    a("s_load_dwordx4 s[88:91], s[0:1], 32")
    a("s_load_dwordx2 s[80:81], s[0:1], 0")
    a("s_load_dwordx2 s[82:83], s[0:1], 56")
    a("s_load_dwordx2 s[56:57], s[0:1], 96")
    a("s_cmp_ge_u32 s2, 256")
    a("s_cbranch_scc1 %s_end" % name)
    a("v_lshrrev_b32 v1, 6, v0")
    a("v_and_b32 v2, 63, v0")
    a("v_readfirstlane_b32 s3, v1")
    G2.tile_ij(a)
    a("s_cmp_lt_u32 s3, 4")
    a("s_cbranch_scc1 %s_consumer" % name)
    if "noprio" not in DBG: a("s_setprio 3")
    a("s_sub_u32 s3, s3, 4")
    a("v_lshrrev_b32 v3, 3, v2")
    a("s_lshl_b32 s24, s3, 5")
    a("v_add_u32 v3, s24, v3")
    a("v_and_b32 v4, 7, v2")
    a("v_lshrrev_b32 v6, 4, v2")
    a("v_xor_b32 v6, v6, v4")
    a("v_lshlrev_b32 v6, 4, v6")
    a("v_lshl_add_u32 v10, v3, 12, v6")
    a("v_xor_b32 v11, 64, v10")
    a("v_add_u32 v11, %d, v11" % (32768 - 1024))
    a("v_add_u32 v12, %d, v10" % (2 * (32768 - 1024)))
    a("v_add_u32 v13, %d, v11" % (2 * (32768 - 1024)))
    a("v_lshlrev_b32 v14, 4, v2")
    a("s_lshl_b32 s26, s22, 19")
    a("s_mul_i32 s27, s23, %d" % (32 * 18432))
    a("s_lshl_b32 s24, s3, 12")
    a("s_add_u32 s27, s27, s24")
    if ZIMG: a("s_add_u32 s27, s27, 0x%x" % ZIMG)
    a("s_lshl_b32 s25, s3, 9")
    a("s_sub_u32 s32, s25, s24")
    a("s_add_u32 s32, s32, 16384")
    a("s_mov_b32 s33, 0")
    a("s_waitcnt lgkmcnt(0)")
    srd(a, 8, 4, 2048 * 2048 * 2)
    srd(a, 12, 6, WS_BYTES)
    def issue():
        a("s_add_u32 s35, s33, s24")
        a("s_mov_b32 m0, s35")
        a("s_add_u32 s36, s35, %d" % TREG)
        for n in range(4):
            a("buffer_load_dwordx4 v%d, s[8:11], s26 offen offset:%d lds" % (10 + n, n * 1024))
        a("s_mov_b32 m0, s36")
        a("s_add_u32 s37, s27, s32")
        for n in range(4):
            a("buffer_load_dwordx4 v14, s[12:15], s27 offen offset:%d sc1 lds" % (n * 1024))
        a("s_add_u32 s36, s36, s32")
        a("s_mov_b32 m0, s36")
        a("s_mov_b64 exec, 0xffffffff")
        a("buffer_load_dwordx4 v14, s[12:15], s37 offen sc1 lds")
        a("s_mov_b64 exec, -1")
        a("s_add_u32 s26, s26, 128")
        a("s_add_u32 s27, s27, 18432")
        a("s_add_u32 s33, s33, %d" % SLOT)
        a("s_cmp_eq_u32 s33, %d" % (R * SLOT))
        a("s_cselect_b32 s33, 0, s33")
    srd(a, 16, 88, 576 * 2048 * 2)
    srd(a, 84, 90, 576 * 2)
    a("s_lshl_b32 s43, s2, 2")
    a("s_add_u32 s43, s43, s3")
    a("s_and_b32 s53, s43, 1")
    a("s_sub_u32 s36, s43, 448")
    a("s_lshr_b32 s37, s43, 1")
    a("s_cmp_ge_u32 s43, 896")
    a("s_cselect_b32 s43, s36, s37")
    a("s_cselect_b32 s53, 2, s53")
    VT = 16; VF = 20
    srd(a, 64, 80, 2048 * 576 * 2)
    srd(a, 68, 82, 576 * 4608 * 2)
    a("v_mul_u32_u24 v5, 1152, v3")
    a("v_add_u32 v%d, v5, v6" % VT)
    a("v_xor_b32 v%d, 64, v%d" % (VT + 1, VT))
    a("v_add_u32 v%d, %d, v%d" % (VT + 1, 9216 - 1024, VT + 1))
    a("v_add_u32 v%d, %d, v%d" % (VT + 2, 2 * (9216 - 1024), VT))
    a("v_add_u32 v%d, %d, v%d" % (VT + 3, 2 * (9216 - 1024), VT + 1))
    a("s_mul_i32 s72, s22, %d" % (128 * 1152))
    a("s_mul_i32 s73, s23, 288")
    a("s_add_u32 s74, s25, %d" % (TREG + 16384))
    def issueT1(g):
        a("s_add_u32 s35, s24, %d" % ((g % R) * SLOT))
        a("s_mov_b32 m0, s35")
        a("s_add_u32 s36, s72, %d" % (128 * g))
        for n in range(4):
            a("buffer_load_dwordx4 v%d, s[64:67], s36 offen offset:%d lds" % (VT + n, 1024 * n))
    def issueF1(g):
        a("s_add_u32 s35, s24, %d" % ((g % R) * SLOT + TREG))
        a("s_mov_b32 m0, s35")
        a("s_add_u32 s36, s73, %d" % (64 * 9216 * g))
        for n in range(4):
            a("buffer_load_dwordx4 v%d, s[68:71], s36 offen offset:%d lds" % (VF + n, 1024 * n))
        a("s_add_u32 s35, s74, %d" % ((g % R) * SLOT))
        a("s_mov_b32 m0, s35")
        a("s_mov_b64 exec, 0xffffffff")
        a("buffer_load_dwordx4 v%d, s[68:71], s36 offen lds" % (VF + 4))
        a("s_mov_b64 exec, -1")
    issueT1(0)
    for n in range(5):
        if n < 4:
            a("s_lshl_b32 s36, s3, 8")
            a("s_add_u32 s36, s36, %d" % (64 * n))
        else:
            a("s_lshl_b32 s36, s3, 5")
            a("s_add_u32 s36, s36, 1024")
        a("v_add_u32 v6, s36, v2")
        a("v_mul_u32_u24 v7, 3641, v6")
        a("v_lshrrev_b32 v7, 16, v7")
        a("v_mul_u32_u24 v8, 18, v7")
        a("v_sub_u32 v8, v6, v8")
        a("v_and_b32 v9, 35, v7")
        a("v_bfe_u32 v6, v7, 2, 2")
        a("v_lshl_add_u32 v9, v6, 3, v9")
        a("v_bfe_u32 v6, v7, 4, 1")
        a("v_lshl_add_u32 v9, v6, 2, v9")
        a("v_mul_u32_u24 v9, 9216, v9")
        a("v_lshl_add_u32 v%d, v8, 4, v9" % (VF + n))
        if 0 < n < 4: a("v_subrev_u32 v%d, %d, v%d" % (VF + n, 1024 * n, VF + n))
    issueF1(0)
    for g in (1, 2, 3): issueT1(g); issueF1(g)
    nconv = emit_conv_loads(a)
    a("s_waitcnt vmcnt(%d)" % (27 + nconv))
    a("s_barrier")
    a("s_waitcnt vmcnt(%d)" % (18 + nconv))
    a("s_barrier")
    a("s_add_u32 s3, s3, 4"); stamp_setup(a, 2); stamp(a, 0); a("s_sub_u32 s3, s3, 4")
    a("s_waitcnt vmcnt(%d)" % (9 + nconv))
    a("s_barrier")
    for kk in range(1, 6):
        issueT1(kk + 3); issueF1(kk + 3)
        a("s_waitcnt vmcnt(%d)" % (9 + (nconv if kk == 1 else 0)))
        a("s_barrier")
    srd(a, 60, 56, 256)
    a("s_lshl_b32 s36, s23, 2")
    a("v_mov_b32 v26, s36")
    a("s_mov_b32 s34, 0")
    a.label("%s_pz" % name)
    a("buffer_load_dword v27, v26, s[60:63], 0 offen sc1")
    a("s_add_u32 s34, s34, 1")
    a("s_waitcnt vmcnt(0)")
    a("v_readfirstlane_b32 s36, v27")
    a("s_cmp_gt_u32 s34, %d" % SPIN_MAX)
    a("s_cbranch_scc1 %s_pzx" % name)
    a("s_cmp_ge_u32 s36, 16")
    a("s_cbranch_scc1 %s_pzx" % name)
    a("s_sleep 8")
    a("s_branch %s_pz" % name)
    a.label("%s_pzx" % name)
    a("s_mov_b32 s33, %d" % ((9 % R) * SLOT))
    a("s_mov_b32 s34, 0")
    a.label("%s_lloop" % name)
    issue()
    a("s_waitcnt vmcnt(9)")
    a("s_barrier")
    a("s_add_u32 s34, s34, 1")
    a("s_cmp_lt_u32 s34, 32")
    a("s_cbranch_scc1 %s_lloop" % name)
    a("s_waitcnt vmcnt(0) lgkmcnt(0)")
    a("s_barrier")
    stamp(a, 1)
    a("s_mov_b32 s26, s53")
    a("s_and_b32 s27, s3, 1")
    a("s_mul_i32 s27, s27, %d" % CJ_SIZE)
    a("s_lshr_b32 s36, s3, 1")
    a("s_add_u32 s36, s36, 1")
    a("s_mul_i32 s36, s36, %d" % SLOT)
    a("s_add_u32 s27, s27, s36")
    def mid():
        if "warm2" in DBG:
            a("s_cmp_eq_u32 s99, 1")
            a("s_cbranch_scc1 %s_midskip" % name)
        a("s_barrier")
        a("s_setprio 0")
        a.label("%s_midskip" % name)
    a.label("%s_cjstart" % name)
    if "noconv" in DBG:
        mid()
    else:
        emit_conv_job(a, name, mid)
        G.stamp_rt(a, 1)
    a("s_branch %s_end" % name)
    a.label("%s_consumer" % name)
    a("s_load_dwordx2 s[92:93], s[0:1], 72")
    a("s_load_dwordx2 s[94:95], s[0:1], 80")
    ACC = 128; FB = [16, 52]
    vTa = [4, 5]; vTb = [6, 7]; vF = 8; vFh = 9
    bTa = [88, 89]; bTb = [90, 91]; bF = 92; bFh = 93
    Z1R = 200; BI = 236
    a("s_lshr_b32 s24, s3, 1")
    a("s_and_b32 s25, s3, 1")
    a("v_and_b32 v3, 15, v2")
    a("v_lshrrev_b32 v10, 4, v2")
    a("v_lshrrev_b32 v11, 1, v3")
    a("v_xor_b32 v10, v10, v11")
    a("v_lshlrev_b32 v10, 4, v10")
    a("v_lshl_add_u32 v10, v3, 7, v10")
    a("s_lshl_b32 s26, s24, 13")
    a("v_add_u32 v10, s26, v10")
    a("s_lshl_b32 s26, s25, 12")
    a("v_add_u32 v%d, s26, v10" % bTa[0])
    a("s_xor_b32 s26, s26, 4096")
    a("v_add_u32 v%d, s26, v10" % bTb[0])
    a("v_xor_b32 v%d, 64, v%d" % (bTa[1], bTa[0]))
    a("v_xor_b32 v%d, 64, v%d" % (bTb[1], bTb[0]))
    a("v_lshrrev_b32 v10, 2, v2")
    a("v_mul_u32_u24 v10, %d, v10" % FS)
    a("v_and_b32 v11, 3, v2")
    a("v_lshl_add_u32 v10, v11, 3, v10")
    a("v_add_u32 v10, %d, v10" % TREG)
    a("s_mul_i32 s26, s25, 160")
    a("v_add_u32 v%d, s26, v10" % bF)
    a("v_add_u32 v%d, 128, v10" % bFh)
    for d, s_ in ((vTa[0], bTa[0]), (vTb[0], bTb[0]), (vTa[1], bTa[1]), (vTb[1], bTb[1]), (vF, bF), (vFh, bFh)):
        a("v_mov_b32 v%d, v%d" % (d, s_))
    a("s_waitcnt lgkmcnt(0)")
    srd(a, 12, 6, WS_BYTES)
    srd(a, 28, 92, 2048 * 2)
    srd(a, 60, 56, 256)
    stamp_setup(a, 2); stamp(a, 0)
    NTB = R * SLOT
    ND = 128
    a("s_lshl_b32 s36, s22, 7")
    a("s_lshl_b32 s37, s3, 5")
    a("s_add_u32 s36, s36, s37")
    a("s_lshl_b32 s36, s36, 8")
    a("s_add_u32 s36, s36, 0x%x" % STATS2)
    a("v_lshlrev_b32 v10, 7, v2")
    for q in range(8):
        a("buffer_load_dwordx4 %s, v10, s[12:15], s36 offen offset:%d" % (vr(16 + 4 * q), 16 * q))
    a("s_lshl_b32 s52, s23, 5")
    a("s_lshl_b32 s37, s22, 1")
    a("s_add_u32 s52, s52, s37")
    a("s_mul_i32 s52, s52, 18432")
    a("s_mul_i32 s37, s3, 9216")
    a("s_add_u32 s52, s52, s37")
    if ZIMG: a("s_add_u32 s52, s52, 0x%x" % ZIMG)
    a("s_add_u32 s53, s52, 4096")
    a("s_add_u32 s55, s52, 8192")
    a("v_lshlrev_b32 v12, 4, v2")
    for n in range(9):
        a("buffer_load_dwordx4 %s, v12, s[12:15], s%d offen offset:%d sc1" % (vr(ND + 4 * n), (52, 53, 55)[n >> 2], (n & 3) * 1024))
    a("s_waitcnt vmcnt(9)")
    stamp(a, 7)
    for st_ in (16, 8, 4, 2):
        for q in range(0, st_, 2):
            a("v_pk_add_f32 %s, %s, %s" % (vr(16 + q, 2), vr(16 + q, 2), vr(16 + q + st_, 2)))
    a("s_nop 1")
    for e in range(2):
        a("v_add_f32_dpp v%d, v%d, v%d quad_perm:[1,0,3,2] row_mask:0xf bank_mask:0xf" % (16 + e, 16 + e, 16 + e))
    emit_ln_finish(a, 16, 17, 2304, 18, 20, 22)
    a("v_mul_f32 v21, -v18, v20")
    a("v_lshrrev_b32 v10, 1, v2")
    a("v_and_b32 v11, 3, v10")
    a("v_bfe_u32 v13, v10, 3, 2")
    a("v_lshl_add_u32 v11, v13, 2, v11")
    a("v_bfe_u32 v13, v10, 2, 1")
    a("v_lshl_add_u32 v11, v13, 4, v11")
    a("s_lshl_b32 s36, s3, 8")
    a("s_add_u32 s36, s36, %d" % NTB)
    a("v_lshl_add_u32 v11, v11, 3, s36")
    a("ds_write_b64 v11, v[20:21]")
    for n in range(9):
        a("v_add_u32 v10, %d, v2" % (64 * n))
        a("v_mul_u32_u24 v10, 3641, v10")
        a("v_lshrrev_b32 v10, 16, v10")
        a("v_lshl_add_u32 v%d, v10, 3, s36" % (24 + n))
    a("s_waitcnt lgkmcnt(0)")
    for n in range(9):
        a("ds_read_b64 %s, v%d" % (vr(52 + 2 * n, 2), 24 + n))
    a("s_waitcnt vmcnt(0) lgkmcnt(0)")
    stamp(a, 8)
    for n in range(9):
        for d in range(4):
            z = ND + 4 * n + d; t_ = 72 + 2 * d
            a("v_lshlrev_b32 v%d, 16, v%d" % (t_, z))
            a("v_and_b32 v%d, 0xffff0000, v%d" % (t_ + 1, z))
        for d in range(4):
            t_ = 72 + 2 * d
            a("v_pk_fma_f32 %s, %s, %s, %s op_sel:[0,0,1] op_sel_hi:[1,0,1]" % (vr(t_, 2), vr(t_, 2), vr(52 + 2 * n, 2), vr(52 + 2 * n, 2)))
        for d in range(4):
            a("v_cvt_pk_bf16_f32 v%d, v%d, v%d" % (200 + 4 * n + d, 72 + 2 * d, 73 + 2 * d))
        a("buffer_store_dwordx4 %s, v12, s[12:15], s%d offen offset:%d sc1" % (vr(200 + 4 * n), (52, 53, 55)[n >> 2], (n & 3) * 1024))
    srd(a, 76, 94, 2304 * 576 * 2)
    a("s_mov_b32 s42, s2")
    emit_wot_loads(a, 240, 252, 720, 3)
    MR = 100; CS = 108; ONE = 96
    a("s_lshl_b32 s36, s22, 7")
    a("s_lshl_b32 s37, s24, 6")
    a("s_add_u32 s36, s36, s37")
    a("s_lshl_b32 s36, s36, 3")
    a("s_add_u32 s36, s36, 0x%x" % STATS1)
    a("s_lshl_b32 s37, s25, 8")
    a("s_add_u32 s38, s36, s37")
    a("s_xor_b32 s37, s37, 256")
    a("s_add_u32 s39, s36, s37")
    a("v_lshlrev_b32 v10, 3, v3")
    a("buffer_load_dwordx2 %s, v10, s[12:15], s38 offen" % vr(MR, 2))
    a("buffer_load_dwordx2 %s, v10, s[12:15], s38 offen offset:128" % vr(MR + 2, 2))
    a("buffer_load_dwordx2 %s, v10, s[12:15], s39 offen" % vr(MR + 4, 2))
    a("buffer_load_dwordx2 %s, v10, s[12:15], s39 offen offset:128" % vr(MR + 6, 2))
    for r in range(CS, CS + 20): a("v_mov_b32 v%d, 0" % r)
    for r in range(ONE, ONE + 4): a("v_mov_b32 v%d, 0x3f803f80" % r)
    stamp(a, 9)
    a("s_mov_b32 s99, 0")
    for r in range(ACC, ACC + 72): a("v_mov_b32 v%d, 0" % r)
    a("s_mov_b32 s27, 0")
    a("s_mov_b32 s33, 0")
    core = G.Core(a, ACC, FB[0], FB[1], FS, TREG, vTa, vTb, vF, vFh)
    trk = core.trk
    a("s_barrier")
    stamp(a, 1)
    core.prime(0, core.reads(0, 0))
    withcs = [True]
    def mfmas(buf):
        L = []
        for ft in range(5):
            A = core.F(buf, ft)
            for tt in range(4 if ft < 4 else 2):
                c = core.accr(ft, tt); B = core.T(buf, tt)
                L.append(("v_mfma_f32_16x16x32_bf16 %s, %s, %s, %s" % (vr(c), vr(A), vr(B), vr(c)), list(range(A, A + 4)) + list(range(B, B + 4))))
            if withcs[0]:
                L.append(("v_mfma_f32_16x16x32_bf16 %s, %s, %s, %s" % (vr(CS + 4 * ft), vr(A), vr(ONE), vr(CS + 4 * ft)), list(range(A, A + 4))))
        return L
    def phase(buf, pend):
        for (m, regs) in mfmas(buf):
            trk.need(regs)
            a(m)
            while pend:
                k, t = pend.pop(0)
                if k == "x":
                    a(t)
                    if t.startswith("s_"): continue
                else:
                    a(t[0]); trk.issue(t[1])
                break
        for k, t in pend:
            if k == "x": a(t)
            else: a(t[0]); trk.issue(t[1])
    def iteration(extra=None):
        a("s_barrier")
        rd = [("r", t) for t in core.reads(1, 1)]
        upd = ["s_add_u32 s27, s27, %d" % SLOT, "s_cmp_eq_u32 s27, %d" % (R * SLOT), "s_cselect_b32 s27, 0, s27"]
        tail = ["v_add_u32 v%d, s27, v%d" % (d, s_) for d, s_ in ((vTa[0], bTa[0]), (vF, bF), (vTb[0], bTb[0]), (vFh, bFh))]
        phase(0, rd[:1] + [("x", u) for u in upd] + rd[1:] + [("x", u) for u in tail])
        rd = [("r", t) for t in core.reads(0, 0)]
        tail = ["v_add_u32 v%d, s27, v%d" % (d, s_) for d, s_ in ((vTa[1], bTa[1]), (vTb[1], bTb[1]))] + ["s_add_u32 s33, s33, 1"]
        phase(1, rd + [("x", u) for u in tail])
    trk.drain()
    a.label("%s_zloop" % name)
    lb = len(a.lines); iteration(); st = copy.deepcopy(trk.out); del a.lines[lb:]; trk.out = copy.deepcopy(st)
    iteration()
    assert [sorted(x) for x in trk.out] == [sorted(x) for x in st]
    a("s_cmp_lg_u32 s33, 2")
    a("s_cbranch_scc1 %s_zs1" % name)
    a("s_waitcnt vmcnt(0)")
    a.label("%s_zs1" % name)
    a("s_lshl_b32 s36, s3, 8")
    a("s_add_u32 s36, s36, s33")
    a("s_cmp_lg_u32 s36, 3")
    a("s_cbranch_scc1 %s_zs2" % name)
    a("v_mov_b32 v10, 1")
    a("s_lshl_b32 s36, s23, 2")
    a("v_mov_b32 v11, s36")
    a("s_mov_b64 exec, 1")
    a("buffer_atomic_add v10, v11, s[60:63], 0 offen sc1")
    a("s_mov_b64 exec, -1")
    a.label("%s_zs2" % name)
    a("s_cmp_lt_u32 s33, 9")
    a("s_cbranch_scc1 %s_zloop" % name)
    trk.drain()
    stamp(a, 5)
    gelu_consts(a)
    a("s_waitcnt vmcnt(0)")
    for tt in range(4): a("v_sub_f32 v%d, 0, v%d" % (MR + 2 * tt, MR + 2 * tt))
    a("s_mov_b32 s35, 0x%x" % WOT)
    for n in range(3):
        a("buffer_store_dwordx4 %s, v%d, s[12:15], s35 offen" % (vr(240 + 4 * n), 252 + n))
    for ft in range(5):
        tts = range(4 if ft < 4 else 2)
        emit_fold_gelu(a, [(core.accr(ft, tt), CS + 4 * ft, MR + 2 * tt, Z1R + 2 * tidx(ft, tt)) for tt in tts], 56)
    for r in range(ACC, ACC + 72): a("v_mov_b32 v%d, 0" % r)
    a("s_mov_b32 s33, 0")
    stamp(a, 6)
    withcs[0] = False
    a.label("%s_cloop" % name)
    lb = len(a.lines); iteration(); st = copy.deepcopy(trk.out); del a.lines[lb:]; trk.out = copy.deepcopy(st)
    iteration()
    assert [sorted(x) for x in trk.out] == [sorted(x) for x in st]
    a("s_cmp_lg_u32 s33, 24")
    a("s_cbranch_scc1 %s_noz" % name)
    a("s_lshl_b32 s36, s22, 7")
    a("s_lshl_b32 s37, s24, 6")
    a("s_add_u32 s36, s36, s37")
    a("v_lshlrev_b32 v11, 1, v3")
    a("s_lshl_b32 s37, s25, 6")
    a("s_lshl_b32 s38, s36, 1")
    a("s_add_u32 s39, s38, s37")
    a("s_xor_b32 s37, s37, 64")
    a("s_add_u32 s40, s38, s37")
    a("buffer_load_ushort v%d, v11, s[28:31], s39 offen" % (BI + 0))
    a("buffer_load_ushort v%d, v11, s[28:31], s39 offen offset:32" % (BI + 2))
    a("buffer_load_ushort v%d, v11, s[28:31], s40 offen" % (BI + 4))
    a("buffer_load_ushort v%d, v11, s[28:31], s40 offen offset:32" % (BI + 6))
    a.label("%s_noz" % name)
    a("s_cmp_lt_u32 s33, %d" % NST)
    a("s_cbranch_scc1 %s_cloop" % name)
    trk.drain()
    stamp(a, 2)
    a.label("%s_epi" % name)
    a("v_lshrrev_b32 v10, 4, v2")
    a("v_and_b32 v11, 1, v10")
    a("v_lshrrev_b32 v12, 1, v10")
    a("v_lshl_add_u32 v12, v11, 1, v12")
    a("s_mul_i32 s35, s23, 18")
    a("s_mul_i32 s36, s25, 10")
    a("s_add_u32 s36, s36, s35")
    a("v_lshrrev_b32 v13, 1, v3")
    a("s_lshl_b32 s37, s22, 1")
    a("s_add_u32 s37, s37, s24")
    a("s_mul_i32 s37, s37, %d" % (36 * 8192))
    a("s_add_u32 s37, s37, 0x%x" % PIMG)
    a("s_lshl_b32 s38, s25, 12")
    a("s_add_u32 s39, s37, s38")
    a("s_xor_b32 s38, s38, 4096")
    a("s_add_u32 s40, s37, s38")
    def addr(dst, pv):
        a("v_lshrrev_b32 v14, 3, v%d" % pv)
        a("v_lshlrev_b32 v14, 13, v14")
        a("v_and_b32 v15, 7, v%d" % pv)
        a("v_xor_b32 v15, v15, v13")
        a("v_lshl_add_u32 v14, v15, 4, v14")
        a("v_lshl_add_u32 v%d, v3, 7, v14" % dst)
    a("v_add_u32 v16, s36, v12"); addr(4, 16)
    a("v_add_u32 v16, 4, v16"); addr(5, 16)
    a("v_lshrrev_b32 v16, 1, v10")
    a("s_add_u32 s35, s35, 8")
    a("v_add_u32 v16, s35, v16"); addr(6, 16)
    a("v_lshl_add_u32 v6, v11, 11, v6")
    a("s_waitcnt vmcnt(0)")
    for tt in range(4):
        a("v_lshlrev_b32 v%d, 16, v%d" % (BI + 2 * tt, BI + 2 * tt))
    stamp(a, 3)
    def ptiles(lst, O):
        T = 24
        for q, (ft, tt) in enumerate(lst):
            c = core.accr(ft, tt)
            for h in (0, 2):
                a("v_pk_add_f32 %s, %s, %s op_sel_hi:[1,0]" % (vr(c + h, 2), vr(c + h, 2), vr(BI + 2 * tt, 2)))
        for q, (ft, tt) in enumerate(lst):
            c = core.accr(ft, tt)
            a("v_cvt_pk_bf16_f32 v%d, v%d, v%d" % (T + 2 * q, c, c + 1))
            a("v_cvt_pk_bf16_f32 v%d, v%d, v%d" % (T + 2 * q + 1, c + 2, c + 3))
        for q, (ft, tt) in enumerate(lst):
            c = core.accr(ft, tt); z = Z1R + 2 * tidx(ft, tt)
            for d in range(2):
                a("v_lshlrev_b32 v%d, 16, v%d" % (c + 2 * d, T + 2 * q + d))
                a("v_and_b32 v%d, 0xffff0000, v%d" % (c + 2 * d + 1, T + 2 * q + d))
                a("v_lshlrev_b32 v%d, 16, v%d" % (T + 4 + 4 * q + 2 * d, z + d))
                a("v_and_b32 v%d, 0xffff0000, v%d" % (T + 5 + 4 * q + 2 * d, z + d))
        for q, (ft, tt) in enumerate(lst):
            c = core.accr(ft, tt)
            for h in (0, 2):
                a("v_pk_mul_f32 %s, %s, %s" % (vr(c + h, 2), vr(c + h, 2), vr(T + 4 + 4 * q + h, 2)))
        for q, (ft, tt) in enumerate(lst):
            c = core.accr(ft, tt)
            a("v_cvt_pk_bf16_f32 v%d, v%d, v%d" % (O + 2 * q, c, c + 1))
            a("v_cvt_pk_bf16_f32 v%d, v%d, v%d" % (O + 2 * q + 1, c + 2, c + 3))
        a("s_nop 1")
        a("v_permlane16_swap_b32 v%d, v%d" % (O, O + 2))
        a("v_permlane16_swap_b32 v%d, v%d" % (O + 1, O + 3))
        a("s_nop 0")
    cnt = 0
    for pr in range(2):
        for tt in range(4):
            O = 40 + 4 * cnt; cnt += 1
            ptiles([(2 * pr, tt), (2 * pr + 1, tt)], O)
            a("buffer_store_dwordx4 %s, v%d, s[12:15], s%d offen offset:%d" % (vr(O), 4 + pr, 39 if tt < 2 else 40, (tt & 1) * 2048))
    O = 40 + 4 * cnt
    ptiles([(4, 0), (4, 1)], O)
    a("buffer_store_dwordx4 %s, v6, s[12:15], s39 offen" % vr(O))
    seg_end2(a, name)
    stamp(a, 4)
    G.stamp_rt(a, 1)
    a.label("%s_end" % name)
    a("s_endpgm")
    return a.text(), kernel_desc(name, 256, 256), (name, 256, 512, R * SLOT + 1024)


def gen_k2g(name="k2_kernel", R=4):
    a = Asm()
    SLOT = 34816; TREG = 16384; FS = 288; NST = 32
    kernel_begin(a, name)
    a("s_load_dwordx2 s[4:5], s[0:1], 64")
    a("s_load_dwordx2 s[6:7], s[0:1], 104")
    a("s_load_dwordx4 s[88:91], s[0:1], 32")
    a("s_load_dwordx2 s[80:81], s[0:1], 0")
    a("s_load_dwordx2 s[82:83], s[0:1], 56")
    a("s_load_dwordx2 s[56:57], s[0:1], 96")
    a("s_cmp_ge_u32 s2, 256")
    a("s_cbranch_scc1 %s_end" % name)
    a("v_lshrrev_b32 v1, 6, v0")
    a("v_and_b32 v2, 63, v0")
    a("v_readfirstlane_b32 s3, v1")
    G2.tile_ij(a)
    a("s_cmp_lt_u32 s3, 4")
    a("s_cbranch_scc1 %s_consumer" % name)
    if "noprio" not in DBG: a("s_setprio 3")
    a("s_sub_u32 s3, s3, 4")
    a("v_lshrrev_b32 v3, 3, v2")
    a("s_lshl_b32 s24, s3, 5")
    a("v_add_u32 v3, s24, v3")
    a("v_and_b32 v4, 7, v2")
    a("v_lshrrev_b32 v6, 4, v2")
    a("v_xor_b32 v6, v6, v4")
    a("v_lshlrev_b32 v6, 4, v6")
    a("v_lshl_add_u32 v10, v3, 12, v6")
    a("v_xor_b32 v11, 64, v10")
    a("v_add_u32 v11, %d, v11" % (32768 - 1024))
    a("v_add_u32 v12, %d, v10" % (2 * (32768 - 1024)))
    a("v_add_u32 v13, %d, v11" % (2 * (32768 - 1024)))
    a("v_lshlrev_b32 v14, 4, v2")
    a("s_lshl_b32 s26, s22, 19")
    a("s_mul_i32 s27, s23, %d" % (32 * 18432))
    a("s_lshl_b32 s24, s3, 12")
    a("s_add_u32 s27, s27, s24")
    if ZIMG: a("s_add_u32 s27, s27, 0x%x" % ZIMG)
    a("s_lshl_b32 s25, s3, 9")
    a("s_sub_u32 s32, s25, s24")
    a("s_add_u32 s32, s32, 16384")
    a("s_mov_b32 s33, 0")
    a("s_waitcnt lgkmcnt(0)")
    srd(a, 8, 4, 2048 * 2048 * 2)
    srd(a, 12, 6, WS_BYTES)
    def issue():
        a("s_add_u32 s35, s33, s24")
        a("s_mov_b32 m0, s35")
        a("s_add_u32 s36, s35, %d" % TREG)
        for n in range(4):
            a("buffer_load_dwordx4 v%d, s[8:11], s26 offen offset:%d lds" % (10 + n, n * 1024))
        a("s_mov_b32 m0, s36")
        a("s_add_u32 s37, s27, s32")
        for n in range(4):
            a("buffer_load_dwordx4 v14, s[12:15], s27 offen offset:%d sc1 lds" % (n * 1024))
        a("s_add_u32 s36, s36, s32")
        a("s_mov_b32 m0, s36")
        a("s_mov_b64 exec, 0xffffffff")
        a("buffer_load_dwordx4 v14, s[12:15], s37 offen sc1 lds")
        a("s_mov_b64 exec, -1")
        a("s_add_u32 s26, s26, 128")
        a("s_add_u32 s27, s27, 18432")
        a("s_add_u32 s33, s33, %d" % SLOT)
        a("s_cmp_eq_u32 s33, %d" % (R * SLOT))
        a("s_cselect_b32 s33, 0, s33")
    srd(a, 16, 88, 576 * 2048 * 2)
    srd(a, 84, 90, 576 * 2)
    a("s_lshl_b32 s43, s2, 2")
    a("s_add_u32 s43, s43, s3")
    a("s_and_b32 s53, s43, 1")
    a("s_sub_u32 s36, s43, 448")
    a("s_lshr_b32 s37, s43, 1")
    a("s_cmp_ge_u32 s43, 896")
    a("s_cselect_b32 s43, s36, s37")
    a("s_cselect_b32 s53, 2, s53")
    VT = 16; VF = 20
    srd(a, 64, 80, 2048 * 576 * 2)
    srd(a, 68, 82, 576 * 4608 * 2)
    a("v_mul_u32_u24 v5, 1152, v3")
    a("v_add_u32 v%d, v5, v6" % VT)
    a("v_xor_b32 v%d, 64, v%d" % (VT + 1, VT))
    a("v_add_u32 v%d, %d, v%d" % (VT + 1, 9216 - 1024, VT + 1))
    a("v_add_u32 v%d, %d, v%d" % (VT + 2, 2 * (9216 - 1024), VT))
    a("v_add_u32 v%d, %d, v%d" % (VT + 3, 2 * (9216 - 1024), VT + 1))
    a("s_mul_i32 s72, s22, %d" % (128 * 1152))
    a("s_mul_i32 s73, s23, 288")
    a("s_add_u32 s74, s25, %d" % (TREG + 16384))
    def issueT1(g):
        a("s_add_u32 s35, s24, %d" % ((g % R) * SLOT))
        a("s_mov_b32 m0, s35")
        a("s_add_u32 s36, s72, %d" % (128 * g))
        for n in range(4):
            a("buffer_load_dwordx4 v%d, s[64:67], s36 offen offset:%d lds" % (VT + n, 1024 * n))
    def issueF1(g):
        a("s_add_u32 s35, s24, %d" % ((g % R) * SLOT + TREG))
        a("s_mov_b32 m0, s35")
        a("s_add_u32 s36, s73, %d" % (64 * 9216 * g))
        for n in range(4):
            a("buffer_load_dwordx4 v%d, s[68:71], s36 offen offset:%d lds" % (VF + n, 1024 * n))
        a("s_add_u32 s35, s74, %d" % ((g % R) * SLOT))
        a("s_mov_b32 m0, s35")
        a("s_mov_b64 exec, 0xffffffff")
        a("buffer_load_dwordx4 v%d, s[68:71], s36 offen lds" % (VF + 4))
        a("s_mov_b64 exec, -1")
    issueT1(0)
    for n in range(5):
        if n < 4:
            a("s_lshl_b32 s36, s3, 8")
            a("s_add_u32 s36, s36, %d" % (64 * n))
        else:
            a("s_lshl_b32 s36, s3, 5")
            a("s_add_u32 s36, s36, 1024")
        a("v_add_u32 v6, s36, v2")
        a("v_mul_u32_u24 v7, 3641, v6")
        a("v_lshrrev_b32 v7, 16, v7")
        a("v_mul_u32_u24 v8, 18, v7")
        a("v_sub_u32 v8, v6, v8")
        a("v_and_b32 v9, 35, v7")
        a("v_bfe_u32 v6, v7, 2, 2")
        a("v_lshl_add_u32 v9, v6, 3, v9")
        a("v_bfe_u32 v6, v7, 4, 1")
        a("v_lshl_add_u32 v9, v6, 2, v9")
        a("v_mul_u32_u24 v9, 9216, v9")
        a("v_lshl_add_u32 v%d, v8, 4, v9" % (VF + n))
        if 0 < n < 4: a("v_subrev_u32 v%d, %d, v%d" % (VF + n, 1024 * n, VF + n))
    issueF1(0)
    issueT1(1); issueF1(1)
    a("s_load_dwordx2 s[94:95], s[0:1], 80")
    a("s_waitcnt vmcnt(9) lgkmcnt(0)")
    a("s_barrier")
    issueT1(2); issueF1(2); issueT1(3); issueF1(3)
    a("s_waitcnt vmcnt(18)")
    a("s_barrier")
    a("s_add_u32 s3, s3, 4"); stamp_setup(a, 2); stamp(a, 0); a("s_sub_u32 s3, s3, 4")
    nconv = emit_conv_loads(a)
    for r_ in range(9): a("v_mov_b32 v%d, v%d" % (100 + r_, 16 + r_))
    srd(a, 76, 94, 2304 * 576 * 2)
    a("s_mov_b32 s42, s2")
    a("v_and_b32 v0, 255, v0")
    emit_wot_loads(a, 112, 124, 720, 3)
    for r_ in range(9): a("v_mov_b32 v%d, v%d" % (16 + r_, 100 + r_))
    nconv += 3
    a("s_waitcnt vmcnt(%d)" % (9 + nconv))
    a("s_barrier")
    for kk in range(1, 6):
        issueT1(kk + 3); issueF1(kk + 3)
        if kk == 3:
            for n in range(3):
                a("buffer_store_dwordx4 %s, v%d, s[12:15], s40 offen" % (vr(112 + 4 * n), 124 + n))
        a("s_waitcnt vmcnt(%d)" % (9 + (nconv if kk == 1 else 3 if kk == 3 else 0)))
        a("s_barrier")
    srd(a, 60, 56, 256)
    a("s_lshl_b32 s36, s23, 2")
    a("v_mov_b32 v26, s36")
    a("s_mov_b32 s34, 0")
    a.label("%s_pz" % name)
    a("buffer_load_dword v27, v26, s[60:63], 0 offen sc1")
    a("s_add_u32 s34, s34, 1")
    a("s_waitcnt vmcnt(0)")
    a("v_readfirstlane_b32 s36, v27")
    a("s_cmp_gt_u32 s34, %d" % SPIN_MAX)
    a("s_cbranch_scc1 %s_pzx" % name)
    a("s_cmp_ge_u32 s36, 16")
    a("s_cbranch_scc1 %s_pzx" % name)
    a("s_sleep 16")
    a("s_branch %s_pz" % name)
    a.label("%s_pzx" % name)
    a("s_mov_b32 s33, %d" % ((9 % R) * SLOT))
    a("s_mov_b32 s34, 0")
    a.label("%s_lloop" % name)
    issue()
    a("s_waitcnt vmcnt(9)")
    a("s_barrier")
    a("s_add_u32 s34, s34, 1")
    a("s_cmp_lt_u32 s34, 32")
    a("s_cbranch_scc1 %s_lloop" % name)
    a("s_waitcnt vmcnt(0) lgkmcnt(0)")
    a("s_barrier")
    stamp(a, 1)
    a("s_mov_b32 s26, s53")
    a("s_and_b32 s27, s3, 1")
    a("s_mul_i32 s27, s27, %d" % CJ_SIZE)
    a("s_lshr_b32 s36, s3, 1")
    a("s_add_u32 s36, s36, 1")
    a("s_mul_i32 s36, s36, %d" % SLOT)
    a("s_add_u32 s27, s27, s36")
    def mid():
        if "warm2" in DBG:
            a("s_cmp_eq_u32 s99, 1")
            a("s_cbranch_scc1 %s_midskip" % name)
        a("s_barrier")
        a("s_setprio 0")
        a.label("%s_midskip" % name)
    a.label("%s_cjstart" % name)
    if "noconv" in DBG:
        mid()
    else:
        emit_conv_job(a, name, mid)
        G.stamp_rt(a, 1)
    a("s_branch %s_end" % name)
    a.label("%s_consumer" % name)
    a("s_load_dwordx2 s[92:93], s[0:1], 72")
    a("s_load_dwordx2 s[94:95], s[0:1], 80")
    ACC = 128; FB = [16, 52]
    vTa = [4, 5]; vTb = [6, 7]; vF = 8; vFh = 9
    bTa = [88, 89]; bTb = [90, 91]; bF = 92; bFh = 93
    Z1R = 200; BI = 236
    a("s_lshr_b32 s24, s3, 1")
    a("s_and_b32 s25, s3, 1")
    a("v_and_b32 v3, 15, v2")
    a("v_lshrrev_b32 v10, 4, v2")
    a("v_lshrrev_b32 v11, 1, v3")
    a("v_xor_b32 v10, v10, v11")
    a("v_lshlrev_b32 v10, 4, v10")
    a("v_lshl_add_u32 v10, v3, 7, v10")
    a("s_lshl_b32 s26, s24, 13")
    a("v_add_u32 v10, s26, v10")
    a("s_lshl_b32 s26, s25, 12")
    a("v_add_u32 v%d, s26, v10" % bTa[0])
    a("s_xor_b32 s26, s26, 4096")
    a("v_add_u32 v%d, s26, v10" % bTb[0])
    a("v_xor_b32 v%d, 64, v%d" % (bTa[1], bTa[0]))
    a("v_xor_b32 v%d, 64, v%d" % (bTb[1], bTb[0]))
    a("v_lshrrev_b32 v10, 2, v2")
    a("v_mul_u32_u24 v10, %d, v10" % FS)
    a("v_and_b32 v11, 3, v2")
    a("v_lshl_add_u32 v10, v11, 3, v10")
    a("v_add_u32 v10, %d, v10" % TREG)
    a("s_mul_i32 s26, s25, 160")
    a("v_add_u32 v%d, s26, v10" % bF)
    a("v_add_u32 v%d, 128, v10" % bFh)
    for d, s_ in ((vTa[0], bTa[0]), (vTb[0], bTb[0]), (vTa[1], bTa[1]), (vTb[1], bTb[1]), (vF, bF), (vFh, bFh)):
        a("v_mov_b32 v%d, v%d" % (d, s_))
    a("s_waitcnt lgkmcnt(0)")
    srd(a, 12, 6, WS_BYTES)
    srd(a, 28, 92, 2048 * 2)
    srd(a, 60, 56, 256)
    stamp_setup(a, 2); stamp(a, 0)
    NTB = R * SLOT
    ND = 128
    a("s_lshl_b32 s36, s22, 7")
    a("s_lshl_b32 s37, s3, 5")
    a("s_add_u32 s36, s36, s37")
    a("s_lshl_b32 s36, s36, 8")
    a("s_add_u32 s36, s36, 0x%x" % STATS2)
    a("v_lshlrev_b32 v10, 7, v2")
    for q in range(8):
        a("buffer_load_dwordx4 %s, v10, s[12:15], s36 offen offset:%d" % (vr(16 + 4 * q), 16 * q))
    a("s_lshl_b32 s52, s23, 5")
    a("s_lshl_b32 s37, s22, 1")
    a("s_add_u32 s52, s52, s37")
    a("s_mul_i32 s52, s52, 18432")
    a("s_mul_i32 s37, s3, 9216")
    a("s_add_u32 s52, s52, s37")
    if ZIMG: a("s_add_u32 s52, s52, 0x%x" % ZIMG)
    a("s_add_u32 s53, s52, 4096")
    a("s_add_u32 s55, s52, 8192")
    a("v_lshlrev_b32 v12, 4, v2")
    for n in range(9):
        a("buffer_load_dwordx4 %s, v12, s[12:15], s%d offen offset:%d sc1" % (vr(ND + 4 * n), (52, 53, 55)[n >> 2], (n & 3) * 1024))
    a("s_waitcnt vmcnt(9)")
    stamp(a, 7)
    for st_ in (16, 8, 4, 2):
        for q in range(0, st_, 2):
            a("v_pk_add_f32 %s, %s, %s" % (vr(16 + q, 2), vr(16 + q, 2), vr(16 + q + st_, 2)))
    a("s_nop 1")
    for e in range(2):
        a("v_add_f32_dpp v%d, v%d, v%d quad_perm:[1,0,3,2] row_mask:0xf bank_mask:0xf" % (16 + e, 16 + e, 16 + e))
    emit_ln_finish(a, 16, 17, 2304, 18, 20, 22)
    a("v_mul_f32 v21, -v18, v20")
    a("v_lshrrev_b32 v10, 1, v2")
    a("v_and_b32 v11, 3, v10")
    a("v_bfe_u32 v13, v10, 3, 2")
    a("v_lshl_add_u32 v11, v13, 2, v11")
    a("v_bfe_u32 v13, v10, 2, 1")
    a("v_lshl_add_u32 v11, v13, 4, v11")
    a("s_lshl_b32 s36, s3, 8")
    a("s_add_u32 s36, s36, %d" % NTB)
    a("v_lshl_add_u32 v11, v11, 3, s36")
    a("ds_write_b64 v11, v[20:21]")
    for n in range(9):
        a("v_add_u32 v10, %d, v2" % (64 * n))
        a("v_mul_u32_u24 v10, 3641, v10")
        a("v_lshrrev_b32 v10, 16, v10")
        a("v_lshl_add_u32 v%d, v10, 3, s36" % (24 + n))
    a("s_waitcnt lgkmcnt(0)")
    for n in range(9):
        a("ds_read_b64 %s, v%d" % (vr(52 + 2 * n, 2), 24 + n))
    a("s_waitcnt vmcnt(0) lgkmcnt(0)")
    stamp(a, 8)
    for n in range(9):
        for d in range(4):
            z = ND + 4 * n + d; t_ = 72 + 2 * d
            a("v_lshlrev_b32 v%d, 16, v%d" % (t_, z))
            a("v_and_b32 v%d, 0xffff0000, v%d" % (t_ + 1, z))
        for d in range(4):
            t_ = 72 + 2 * d
            a("v_pk_fma_f32 %s, %s, %s, %s op_sel:[0,0,1] op_sel_hi:[1,0,1]" % (vr(t_, 2), vr(t_, 2), vr(52 + 2 * n, 2), vr(52 + 2 * n, 2)))
        for d in range(4):
            a("v_cvt_pk_bf16_f32 v%d, v%d, v%d" % (200 + 4 * n + d, 72 + 2 * d, 73 + 2 * d))
        a("buffer_store_dwordx4 %s, v12, s[12:15], s%d offen offset:%d sc1" % (vr(200 + 4 * n), (52, 53, 55)[n >> 2], (n & 3) * 1024))
    MR = 100; CS = 108; ONE = 96
    a("s_lshl_b32 s36, s22, 7")
    a("s_lshl_b32 s37, s24, 6")
    a("s_add_u32 s36, s36, s37")
    a("s_lshl_b32 s36, s36, 3")
    a("s_add_u32 s36, s36, 0x%x" % STATS1)
    a("s_lshl_b32 s37, s25, 8")
    a("s_add_u32 s38, s36, s37")
    a("s_xor_b32 s37, s37, 256")
    a("s_add_u32 s39, s36, s37")
    a("v_lshlrev_b32 v10, 3, v3")
    a("buffer_load_dwordx2 %s, v10, s[12:15], s38 offen" % vr(MR, 2))
    a("buffer_load_dwordx2 %s, v10, s[12:15], s38 offen offset:128" % vr(MR + 2, 2))
    a("buffer_load_dwordx2 %s, v10, s[12:15], s39 offen" % vr(MR + 4, 2))
    a("buffer_load_dwordx2 %s, v10, s[12:15], s39 offen offset:128" % vr(MR + 6, 2))
    for r in range(CS, CS + 20): a("v_mov_b32 v%d, 0" % r)
    for r in range(ONE, ONE + 4): a("v_mov_b32 v%d, 0x3f803f80" % r)
    stamp(a, 9)
    a("s_mov_b32 s99, 0")
    for r in range(ACC, ACC + 72): a("v_mov_b32 v%d, 0" % r)
    a("s_mov_b32 s27, 0")
    a("s_mov_b32 s33, 0")
    core = G.Core(a, ACC, FB[0], FB[1], FS, TREG, vTa, vTb, vF, vFh)
    trk = core.trk
    a("s_barrier")
    stamp(a, 1)
    core.prime(0, core.reads(0, 0))
    withcs = [True]
    def mfmas(buf):
        L = []
        for ft in range(5):
            A = core.F(buf, ft)
            for tt in range(4 if ft < 4 else 2):
                c = core.accr(ft, tt); B = core.T(buf, tt)
                L.append(("v_mfma_f32_16x16x32_bf16 %s, %s, %s, %s" % (vr(c), vr(A), vr(B), vr(c)), list(range(A, A + 4)) + list(range(B, B + 4))))
            if withcs[0]:
                L.append(("v_mfma_f32_16x16x32_bf16 %s, %s, %s, %s" % (vr(CS + 4 * ft), vr(A), vr(ONE), vr(CS + 4 * ft)), list(range(A, A + 4))))
        return L
    def phase(buf, pend):
        for (m, regs) in mfmas(buf):
            trk.need(regs)
            a(m)
            while pend:
                k, t = pend.pop(0)
                if k == "x":
                    a(t)
                    if t.startswith("s_"): continue
                else:
                    a(t[0]); trk.issue(t[1])
                break
        for k, t in pend:
            if k == "x": a(t)
            else: a(t[0]); trk.issue(t[1])
    def iteration(extra=None):
        a("s_barrier")
        rd = [("r", t) for t in core.reads(1, 1)]
        upd = ["s_add_u32 s27, s27, %d" % SLOT, "s_cmp_eq_u32 s27, %d" % (R * SLOT), "s_cselect_b32 s27, 0, s27"]
        tail = ["v_add_u32 v%d, s27, v%d" % (d, s_) for d, s_ in ((vTa[0], bTa[0]), (vF, bF), (vTb[0], bTb[0]), (vFh, bFh))]
        phase(0, rd[:1] + [("x", u) for u in upd] + rd[1:] + [("x", u) for u in tail])
        rd = [("r", t) for t in core.reads(0, 0)]
        tail = ["v_add_u32 v%d, s27, v%d" % (d, s_) for d, s_ in ((vTa[1], bTa[1]), (vTb[1], bTb[1]))] + ["s_add_u32 s33, s33, 1"]
        phase(1, rd + [("x", u) for u in tail])
    trk.drain()
    a.label("%s_zloop" % name)
    lb = len(a.lines); iteration(); st = copy.deepcopy(trk.out); del a.lines[lb:]; trk.out = copy.deepcopy(st)
    iteration()
    assert [sorted(x) for x in trk.out] == [sorted(x) for x in st]
    a("s_cmp_lg_u32 s33, 2")
    a("s_cbranch_scc1 %s_zs1" % name)
    a("s_waitcnt vmcnt(0)")
    a.label("%s_zs1" % name)
    a("s_lshl_b32 s36, s3, 8")
    a("s_add_u32 s36, s36, s33")
    a("s_cmp_lg_u32 s36, 3")
    a("s_cbranch_scc1 %s_zs2" % name)
    a("v_mov_b32 v10, 1")
    a("s_lshl_b32 s36, s23, 2")
    a("v_mov_b32 v11, s36")
    a("s_mov_b64 exec, 1")
    a("buffer_atomic_add v10, v11, s[60:63], 0 offen sc1")
    a("s_mov_b64 exec, -1")
    a.label("%s_zs2" % name)
    a("s_cmp_lt_u32 s33, 9")
    a("s_cbranch_scc1 %s_zloop" % name)
    trk.drain()
    stamp(a, 5)
    gelu_consts(a)
    a("s_waitcnt vmcnt(0)")
    for tt in range(4): a("v_sub_f32 v%d, 0, v%d" % (MR + 2 * tt, MR + 2 * tt))
    for ft in range(5):
        tts = range(4 if ft < 4 else 2)
        emit_fold_gelu(a, [(core.accr(ft, tt), CS + 4 * ft, MR + 2 * tt, Z1R + 2 * tidx(ft, tt)) for tt in tts], 56)
    for r in range(ACC, ACC + 72): a("v_mov_b32 v%d, 0" % r)
    a("s_mov_b32 s33, 0")
    stamp(a, 6)
    withcs[0] = False
    a.label("%s_cloop" % name)
    lb = len(a.lines); iteration(); st = copy.deepcopy(trk.out); del a.lines[lb:]; trk.out = copy.deepcopy(st)
    iteration()
    assert [sorted(x) for x in trk.out] == [sorted(x) for x in st]
    a("s_cmp_lg_u32 s33, 24")
    a("s_cbranch_scc1 %s_noz" % name)
    a("s_lshl_b32 s36, s22, 7")
    a("s_lshl_b32 s37, s24, 6")
    a("s_add_u32 s36, s36, s37")
    a("v_lshlrev_b32 v11, 1, v3")
    a("s_lshl_b32 s37, s25, 6")
    a("s_lshl_b32 s38, s36, 1")
    a("s_add_u32 s39, s38, s37")
    a("s_xor_b32 s37, s37, 64")
    a("s_add_u32 s40, s38, s37")
    a("buffer_load_ushort v%d, v11, s[28:31], s39 offen" % (BI + 0))
    a("buffer_load_ushort v%d, v11, s[28:31], s39 offen offset:32" % (BI + 2))
    a("buffer_load_ushort v%d, v11, s[28:31], s40 offen" % (BI + 4))
    a("buffer_load_ushort v%d, v11, s[28:31], s40 offen offset:32" % (BI + 6))
    a.label("%s_noz" % name)
    a("s_cmp_lt_u32 s33, %d" % NST)
    a("s_cbranch_scc1 %s_cloop" % name)
    trk.drain()
    stamp(a, 2)
    a.label("%s_epi" % name)
    a("v_lshrrev_b32 v10, 4, v2")
    a("v_and_b32 v11, 1, v10")
    a("v_lshrrev_b32 v12, 1, v10")
    a("v_lshl_add_u32 v12, v11, 1, v12")
    a("s_mul_i32 s35, s23, 18")
    a("s_mul_i32 s36, s25, 10")
    a("s_add_u32 s36, s36, s35")
    a("v_lshrrev_b32 v13, 1, v3")
    a("s_lshl_b32 s37, s22, 1")
    a("s_add_u32 s37, s37, s24")
    a("s_mul_i32 s37, s37, %d" % (36 * 8192))
    a("s_add_u32 s37, s37, 0x%x" % PIMG)
    a("s_lshl_b32 s38, s25, 12")
    a("s_add_u32 s39, s37, s38")
    a("s_xor_b32 s38, s38, 4096")
    a("s_add_u32 s40, s37, s38")
    def addr(dst, pv):
        a("v_lshrrev_b32 v14, 3, v%d" % pv)
        a("v_lshlrev_b32 v14, 13, v14")
        a("v_and_b32 v15, 7, v%d" % pv)
        a("v_xor_b32 v15, v15, v13")
        a("v_lshl_add_u32 v14, v15, 4, v14")
        a("v_lshl_add_u32 v%d, v3, 7, v14" % dst)
    a("v_add_u32 v16, s36, v12"); addr(4, 16)
    a("v_add_u32 v16, 4, v16"); addr(5, 16)
    a("v_lshrrev_b32 v16, 1, v10")
    a("s_add_u32 s35, s35, 8")
    a("v_add_u32 v16, s35, v16"); addr(6, 16)
    a("v_lshl_add_u32 v6, v11, 11, v6")
    a("s_waitcnt vmcnt(0)")
    for tt in range(4):
        a("v_lshlrev_b32 v%d, 16, v%d" % (BI + 2 * tt, BI + 2 * tt))
    stamp(a, 3)
    def ptiles(lst, O):
        T = 24
        for q, (ft, tt) in enumerate(lst):
            c = core.accr(ft, tt)
            for h in (0, 2):
                a("v_pk_add_f32 %s, %s, %s op_sel_hi:[1,0]" % (vr(c + h, 2), vr(c + h, 2), vr(BI + 2 * tt, 2)))
        for q, (ft, tt) in enumerate(lst):
            c = core.accr(ft, tt)
            a("v_cvt_pk_bf16_f32 v%d, v%d, v%d" % (T + 2 * q, c, c + 1))
            a("v_cvt_pk_bf16_f32 v%d, v%d, v%d" % (T + 2 * q + 1, c + 2, c + 3))
        for q, (ft, tt) in enumerate(lst):
            c = core.accr(ft, tt); z = Z1R + 2 * tidx(ft, tt)
            for d in range(2):
                a("v_lshlrev_b32 v%d, 16, v%d" % (c + 2 * d, T + 2 * q + d))
                a("v_and_b32 v%d, 0xffff0000, v%d" % (c + 2 * d + 1, T + 2 * q + d))
                a("v_lshlrev_b32 v%d, 16, v%d" % (T + 4 + 4 * q + 2 * d, z + d))
                a("v_and_b32 v%d, 0xffff0000, v%d" % (T + 5 + 4 * q + 2 * d, z + d))
        for q, (ft, tt) in enumerate(lst):
            c = core.accr(ft, tt)
            for h in (0, 2):
                a("v_pk_mul_f32 %s, %s, %s" % (vr(c + h, 2), vr(c + h, 2), vr(T + 4 + 4 * q + h, 2)))
        for q, (ft, tt) in enumerate(lst):
            c = core.accr(ft, tt)
            a("v_cvt_pk_bf16_f32 v%d, v%d, v%d" % (O + 2 * q, c, c + 1))
            a("v_cvt_pk_bf16_f32 v%d, v%d, v%d" % (O + 2 * q + 1, c + 2, c + 3))
        a("s_nop 1")
        a("v_permlane16_swap_b32 v%d, v%d" % (O, O + 2))
        a("v_permlane16_swap_b32 v%d, v%d" % (O + 1, O + 3))
        a("s_nop 0")
    cnt = 0
    for pr in range(2):
        for tt in range(4):
            O = 40 + 4 * cnt; cnt += 1
            ptiles([(2 * pr, tt), (2 * pr + 1, tt)], O)
            a("buffer_store_dwordx4 %s, v%d, s[12:15], s%d offen offset:%d" % (vr(O), 4 + pr, 39 if tt < 2 else 40, (tt & 1) * 2048))
    O = 40 + 4 * cnt
    ptiles([(4, 0), (4, 1)], O)
    a("buffer_store_dwordx4 %s, v6, s[12:15], s39 offen" % vr(O))
    seg_end2(a, name)
    stamp(a, 4)
    G.stamp_rt(a, 1)
    a.label("%s_end" % name)
    a("s_endpgm")
    return a.text(), kernel_desc(name, 256, 256), (name, 256, 512, R * SLOT + 1024)


def gen_k2e(name="k2_kernel", R=4):
    a = Asm()
    SLOT = 34816; TREG = 16384; FS = 288; NST = 32
    kernel_begin(a, name)
    a("s_load_dwordx2 s[4:5], s[0:1], 64")
    a("s_load_dwordx2 s[6:7], s[0:1], 104")
    a("s_load_dwordx4 s[88:91], s[0:1], 32")
    a("s_load_dwordx2 s[80:81], s[0:1], 0")
    a("s_load_dwordx2 s[82:83], s[0:1], 56")
    a("s_load_dwordx2 s[56:57], s[0:1], 96")
    a("s_cmp_ge_u32 s2, 256")
    a("s_cbranch_scc1 %s_end" % name)
    a("v_lshrrev_b32 v1, 6, v0")
    a("v_and_b32 v2, 63, v0")
    a("v_readfirstlane_b32 s3, v1")
    G2.tile_ij(a)
    a("s_cmp_lt_u32 s3, 4")
    a("s_cbranch_scc1 %s_consumer" % name)
    if "noprio" not in DBG: a("s_setprio 3")
    a("s_sub_u32 s3, s3, 4")
    a("v_lshrrev_b32 v3, 3, v2")
    a("s_lshl_b32 s24, s3, 5")
    a("v_add_u32 v3, s24, v3")
    a("v_and_b32 v4, 7, v2")
    a("v_lshrrev_b32 v6, 4, v2")
    a("v_xor_b32 v6, v6, v4")
    a("v_lshlrev_b32 v6, 4, v6")
    a("v_lshl_add_u32 v10, v3, 12, v6")
    a("v_xor_b32 v11, 64, v10")
    a("v_add_u32 v11, %d, v11" % (32768 - 1024))
    a("v_add_u32 v12, %d, v10" % (2 * (32768 - 1024)))
    a("v_add_u32 v13, %d, v11" % (2 * (32768 - 1024)))
    a("v_lshlrev_b32 v14, 4, v2")
    a("s_lshl_b32 s26, s22, 19")
    a("s_mul_i32 s27, s23, %d" % (32 * 18432))
    a("s_lshl_b32 s24, s3, 12")
    a("s_add_u32 s27, s27, s24")
    if ZIMG: a("s_add_u32 s27, s27, 0x%x" % ZIMG)
    a("s_lshl_b32 s25, s3, 9")
    a("s_sub_u32 s32, s25, s24")
    a("s_add_u32 s32, s32, 16384")
    a("s_mov_b32 s33, 0")
    a("s_waitcnt lgkmcnt(0)")
    srd(a, 8, 4, 2048 * 2048 * 2)
    srd(a, 12, 6, WS_BYTES)
    def issue():
        a("s_add_u32 s35, s33, s24")
        a("s_mov_b32 m0, s35")
        a("s_add_u32 s36, s35, %d" % TREG)
        for n in range(4):
            a("buffer_load_dwordx4 v%d, s[8:11], s26 offen offset:%d lds" % (10 + n, n * 1024))
        a("s_mov_b32 m0, s36")
        a("s_add_u32 s37, s27, s32")
        for n in range(4):
            a("buffer_load_dwordx4 v14, s[12:15], s27 offen offset:%d sc1 lds" % (n * 1024))
        a("s_add_u32 s36, s36, s32")
        a("s_mov_b32 m0, s36")
        a("s_mov_b64 exec, 0xffffffff")
        a("buffer_load_dwordx4 v14, s[12:15], s37 offen sc1 lds")
        a("s_mov_b64 exec, -1")
        a("s_add_u32 s26, s26, 128")
        a("s_add_u32 s27, s27, 18432")
        a("s_add_u32 s33, s33, %d" % SLOT)
        a("s_cmp_eq_u32 s33, %d" % (R * SLOT))
        a("s_cselect_b32 s33, 0, s33")
    srd(a, 16, 88, 576 * 2048 * 2)
    srd(a, 84, 90, 576 * 2)
    a("s_lshl_b32 s43, s2, 2")
    a("s_add_u32 s43, s43, s3")
    a("s_and_b32 s53, s43, 1")
    a("s_sub_u32 s36, s43, 448")
    a("s_lshr_b32 s37, s43, 1")
    a("s_cmp_ge_u32 s43, 896")
    a("s_cselect_b32 s43, s36, s37")
    a("s_cselect_b32 s53, 2, s53")
    VT = 16; VF = 20
    srd(a, 64, 80, 2048 * 576 * 2)
    srd(a, 68, 82, 576 * 4608 * 2)
    a("v_mul_u32_u24 v5, 1152, v3")
    a("v_add_u32 v%d, v5, v6" % VT)
    a("v_xor_b32 v%d, 64, v%d" % (VT + 1, VT))
    a("v_add_u32 v%d, %d, v%d" % (VT + 1, 9216 - 1024, VT + 1))
    a("v_add_u32 v%d, %d, v%d" % (VT + 2, 2 * (9216 - 1024), VT))
    a("v_add_u32 v%d, %d, v%d" % (VT + 3, 2 * (9216 - 1024), VT + 1))
    a("s_mul_i32 s72, s22, %d" % (128 * 1152))
    a("s_mul_i32 s73, s23, 288")
    a("s_add_u32 s74, s25, %d" % (TREG + 16384))
    def issueT1(g):
        a("s_add_u32 s35, s24, %d" % ((g % R) * SLOT))
        a("s_mov_b32 m0, s35")
        a("s_add_u32 s36, s72, %d" % (128 * g))
        for n in range(4):
            a("buffer_load_dwordx4 v%d, s[64:67], s36 offen offset:%d lds" % (VT + n, 1024 * n))
    def issueF1(g):
        a("s_add_u32 s35, s24, %d" % ((g % R) * SLOT + TREG))
        a("s_mov_b32 m0, s35")
        a("s_add_u32 s36, s73, %d" % (64 * 9216 * g))
        for n in range(4):
            a("buffer_load_dwordx4 v%d, s[68:71], s36 offen offset:%d lds" % (VF + n, 1024 * n))
        a("s_add_u32 s35, s74, %d" % ((g % R) * SLOT))
        a("s_mov_b32 m0, s35")
        a("s_mov_b64 exec, 0xffffffff")
        a("buffer_load_dwordx4 v%d, s[68:71], s36 offen lds" % (VF + 4))
        a("s_mov_b64 exec, -1")
    issueT1(0)
    for n in range(5):
        if n < 4:
            a("s_lshl_b32 s36, s3, 8")
            a("s_add_u32 s36, s36, %d" % (64 * n))
        else:
            a("s_lshl_b32 s36, s3, 5")
            a("s_add_u32 s36, s36, 1024")
        a("v_add_u32 v6, s36, v2")
        a("v_mul_u32_u24 v7, 3641, v6")
        a("v_lshrrev_b32 v7, 16, v7")
        a("v_mul_u32_u24 v8, 18, v7")
        a("v_sub_u32 v8, v6, v8")
        a("v_and_b32 v9, 35, v7")
        a("v_bfe_u32 v6, v7, 2, 2")
        a("v_lshl_add_u32 v9, v6, 3, v9")
        a("v_bfe_u32 v6, v7, 4, 1")
        a("v_lshl_add_u32 v9, v6, 2, v9")
        a("v_mul_u32_u24 v9, 9216, v9")
        a("v_lshl_add_u32 v%d, v8, 4, v9" % (VF + n))
        if 0 < n < 4: a("v_subrev_u32 v%d, %d, v%d" % (VF + n, 1024 * n, VF + n))
    issueF1(0)
    for g in (1, 2, 3): issueT1(g); issueF1(g)
    nconv = emit_conv_loads(a)
    NTB = R * SLOT; ND = 128; NP = 164; NT_ = 96; NA = 28; NV = 38
    a("s_lshl_b32 s36, s22, 7")
    a("s_lshl_b32 s37, s3, 5")
    a("s_add_u32 s36, s36, s37")
    a("s_lshl_b32 s36, s36, 8")
    a("s_add_u32 s36, s36, 0x%x" % STATS2)
    a("v_lshlrev_b32 v4, 7, v2")
    for q in range(8):
        a("buffer_load_dwordx4 %s, v4, s[12:15], s36 offen offset:%d" % (vr(NP + 4 * q), 16 * q))
    a("s_lshl_b32 s76, s23, 5")
    a("s_lshl_b32 s37, s22, 1")
    a("s_add_u32 s76, s76, s37")
    a("s_mul_i32 s76, s76, 18432")
    a("s_mul_i32 s37, s3, 9216")
    a("s_add_u32 s76, s76, s37")
    if ZIMG: a("s_add_u32 s76, s76, 0x%x" % ZIMG)
    a("s_add_u32 s77, s76, 4096")
    a("s_add_u32 s78, s76, 8192")
    for n in range(9):
        a("buffer_load_dwordx4 %s, v14, s[12:15], s%d offen offset:%d sc1" % (vr(ND + 4 * n), (76, 77, 78)[n >> 2], (n & 3) * 1024))
    nconv += 17
    def n_stats():
        for st_ in (16, 8, 4, 2):
            for q in range(0, st_, 2):
                a("v_pk_add_f32 %s, %s, %s" % (vr(NP + q, 2), vr(NP + q, 2), vr(NP + q + st_, 2)))
        a("s_nop 1")
        for e in range(2):
            a("v_add_f32_dpp v%d, v%d, v%d quad_perm:[1,0,3,2] row_mask:0xf bank_mask:0xf" % (NP + e, NP + e, NP + e))
        emit_ln_finish(a, NP, NP + 1, 2304, NP + 2, NP + 4, NP + 6)
        a("v_mul_f32 v%d, -v%d, v%d" % (NP + 5, NP + 2, NP + 4))
        a("v_lshrrev_b32 v4, 1, v2")
        a("v_and_b32 v5, 3, v4")
        a("v_bfe_u32 v6, v4, 3, 2")
        a("v_lshl_add_u32 v5, v6, 2, v5")
        a("v_bfe_u32 v6, v4, 2, 1")
        a("v_lshl_add_u32 v5, v6, 4, v5")
        a("s_lshl_b32 s79, s3, 8")
        a("s_add_u32 s79, s79, %d" % NTB)
        a("v_lshl_add_u32 v5, v5, 3, s79")
        a("ds_write_b64 v5, %s" % vr(NP + 4, 2))
        for n in range(9):
            a("v_add_u32 v4, %d, v2" % (64 * n))
            a("v_mul_u32_u24 v4, 3641, v4")
            a("v_lshrrev_b32 v4, 16, v4")
            a("v_lshl_add_u32 v%d, v4, 3, s79" % (NA + n))
        a("s_waitcnt lgkmcnt(0)")
        for n in range(9):
            a("ds_read_b64 %s, v%d" % (vr(NV + 2 * n, 2), NA + n))
    def n_piece(n):
        for d in range(4):
            z = ND + 4 * n + d; t_ = NT_ + 2 * d
            a("v_lshlrev_b32 v%d, 16, v%d" % (t_, z))
            a("v_and_b32 v%d, 0xffff0000, v%d" % (t_ + 1, z))
        for d in range(4):
            t_ = NT_ + 2 * d
            a("v_pk_fma_f32 %s, %s, %s, %s op_sel:[0,0,1] op_sel_hi:[1,0,1]" % (vr(t_, 2), vr(t_, 2), vr(NV + 2 * n, 2), vr(NV + 2 * n, 2)))
        for d in range(4):
            a("v_cvt_pk_bf16_f32 v%d, v%d, v%d" % (ND + 4 * n + d, NT_ + 2 * d, NT_ + 2 * d + 1))
        a("buffer_store_dwordx4 %s, v14, s[12:15], s%d offen offset:%d sc1" % (vr(ND + 4 * n), (76, 77, 78)[n >> 2], (n & 3) * 1024))
    a("s_waitcnt vmcnt(%d)" % (27 + nconv))
    a("s_barrier")
    a("s_waitcnt vmcnt(%d)" % (18 + nconv))
    a("s_barrier")
    a("s_add_u32 s3, s3, 4"); stamp_setup(a, 2); stamp(a, 0); a("s_sub_u32 s3, s3, 4")
    a("s_waitcnt vmcnt(%d)" % (9 + nconv))
    a("s_barrier")
    issueT1(4); issueF1(4)
    a("s_waitcnt vmcnt(9)")
    a("s_barrier")
    issueT1(5); issueF1(5)
    n_stats()
    a("s_waitcnt vmcnt(9)")
    a("s_barrier")
    issueT1(6); issueF1(6)
    a("s_waitcnt lgkmcnt(0)")
    for n in range(5): n_piece(n)
    a("s_waitcnt vmcnt(%d)" % (9 + 5))
    a("s_barrier")
    issueT1(7); issueF1(7)
    for n in range(5, 9): n_piece(n)
    a("s_waitcnt vmcnt(%d)" % (5 + 9 + 4))
    a("s_barrier")
    issueT1(8); issueF1(8)
    a("s_waitcnt vmcnt(9)")
    a("s_barrier")
    srd(a, 60, 56, 256)
    a("s_cmp_lg_u32 s3, 0")
    a("s_cbranch_scc1 %s_nosig" % name)
    a("v_mov_b32 v4, 1")
    a("s_lshl_b32 s36, s23, 2")
    a("v_mov_b32 v5, s36")
    a("s_mov_b64 exec, 1")
    a("buffer_atomic_add v4, v5, s[60:63], 0 offen sc1")
    a("s_mov_b64 exec, -1")
    a.label("%s_nosig" % name)
    a("s_waitcnt vmcnt(0)")
    a("s_barrier")
    a("s_barrier")
    a("s_cmp_lg_u32 s3, 0")
    a("s_cbranch_scc1 %s_pzx" % name)
    a("s_lshl_b32 s36, s23, 2")
    a("v_mov_b32 v26, s36")
    a("s_mov_b32 s34, 0")
    a.label("%s_pz" % name)
    a("buffer_load_dword v27, v26, s[60:63], 0 offen sc1")
    a("s_add_u32 s34, s34, 1")
    a("s_waitcnt vmcnt(0)")
    a("v_readfirstlane_b32 s36, v27")
    a("s_cmp_gt_u32 s34, %d" % SPIN_MAX)
    a("s_cbranch_scc1 %s_pzx" % name)
    a("s_cmp_ge_u32 s36, 16")
    a("s_cbranch_scc1 %s_pzx" % name)
    a("s_sleep 24")
    a("s_branch %s_pz" % name)
    a.label("%s_pzx" % name)
    a("s_barrier")
    a("s_mov_b32 s33, 0")
    issue(); issue(); issue(); issue()
    a("s_waitcnt vmcnt(27)")
    a("s_barrier")
    a("s_waitcnt vmcnt(18)")
    a("s_barrier")
    a("s_waitcnt vmcnt(9)")
    a("s_barrier")
    a("s_mov_b32 s34, 4")
    a.label("%s_lloop" % name)
    issue()
    a("s_waitcnt vmcnt(9)")
    a("s_barrier")
    a("s_add_u32 s34, s34, 1")
    a("s_cmp_lt_u32 s34, 32")
    a("s_cbranch_scc1 %s_lloop" % name)
    a("s_waitcnt vmcnt(0) lgkmcnt(0)")
    a("s_barrier")
    stamp(a, 1)
    a("s_mov_b32 s26, s53")
    a("s_and_b32 s27, s3, 1")
    a("s_mul_i32 s27, s27, %d" % CJ_SIZE)
    a("s_lshr_b32 s36, s3, 1")
    a("s_mul_i32 s36, s36, %d" % SLOT)
    a("s_add_u32 s27, s27, s36")
    def mid():
        if "warm2" in DBG:
            a("s_cmp_eq_u32 s99, 1")
            a("s_cbranch_scc1 %s_midskip" % name)
        a("s_barrier")
        a("s_setprio 0")
        a.label("%s_midskip" % name)
    a.label("%s_cjstart" % name)
    if "noconv" in DBG:
        mid()
    else:
        emit_conv_job(a, name, mid)
        G.stamp_rt(a, 1)
    a("s_branch %s_end" % name)
    a.label("%s_consumer" % name)
    a("s_load_dwordx2 s[92:93], s[0:1], 72")
    a("s_load_dwordx2 s[94:95], s[0:1], 80")
    ACC = 128; FB = [16, 52]
    vTa = [4, 5]; vTb = [6, 7]; vF = 8; vFh = 9
    bTa = [88, 89]; bTb = [90, 91]; bF = 92; bFh = 93
    Z1R = 200; BI = 236
    a("s_lshr_b32 s24, s3, 1")
    a("s_and_b32 s25, s3, 1")
    a("v_and_b32 v3, 15, v2")
    a("v_lshrrev_b32 v10, 4, v2")
    a("v_lshrrev_b32 v11, 1, v3")
    a("v_xor_b32 v10, v10, v11")
    a("v_lshlrev_b32 v10, 4, v10")
    a("v_lshl_add_u32 v10, v3, 7, v10")
    a("s_lshl_b32 s26, s24, 13")
    a("v_add_u32 v10, s26, v10")
    a("s_lshl_b32 s26, s25, 12")
    a("v_add_u32 v%d, s26, v10" % bTa[0])
    a("s_xor_b32 s26, s26, 4096")
    a("v_add_u32 v%d, s26, v10" % bTb[0])
    a("v_xor_b32 v%d, 64, v%d" % (bTa[1], bTa[0]))
    a("v_xor_b32 v%d, 64, v%d" % (bTb[1], bTb[0]))
    a("v_lshrrev_b32 v10, 2, v2")
    a("v_mul_u32_u24 v10, %d, v10" % FS)
    a("v_and_b32 v11, 3, v2")
    a("v_lshl_add_u32 v10, v11, 3, v10")
    a("v_add_u32 v10, %d, v10" % TREG)
    a("s_mul_i32 s26, s25, 160")
    a("v_add_u32 v%d, s26, v10" % bF)
    a("v_add_u32 v%d, 128, v10" % bFh)
    for d, s_ in ((vTa[0], bTa[0]), (vTb[0], bTb[0]), (vTa[1], bTa[1]), (vTb[1], bTb[1]), (vF, bF), (vFh, bFh)):
        a("v_mov_b32 v%d, v%d" % (d, s_))
    a("s_waitcnt lgkmcnt(0)")
    srd(a, 12, 6, WS_BYTES)
    srd(a, 28, 92, 2048 * 2)
    srd(a, 60, 56, 256)
    srd(a, 76, 94, 2304 * 576 * 2)
    a("s_mov_b32 s42, s2")
    emit_wot_loads(a, 240, 252, 720, 3)
    MR = 100; CS = 108; ONE = 96
    a("s_lshl_b32 s36, s22, 7")
    a("s_lshl_b32 s37, s24, 6")
    a("s_add_u32 s36, s36, s37")
    a("s_lshl_b32 s36, s36, 3")
    a("s_add_u32 s36, s36, 0x%x" % STATS1)
    a("s_lshl_b32 s37, s25, 8")
    a("s_add_u32 s38, s36, s37")
    a("s_xor_b32 s37, s37, 256")
    a("s_add_u32 s39, s36, s37")
    a("v_lshlrev_b32 v10, 3, v3")
    a("buffer_load_dwordx2 %s, v10, s[12:15], s38 offen" % vr(MR, 2))
    a("buffer_load_dwordx2 %s, v10, s[12:15], s38 offen offset:128" % vr(MR + 2, 2))
    a("buffer_load_dwordx2 %s, v10, s[12:15], s39 offen" % vr(MR + 4, 2))
    a("buffer_load_dwordx2 %s, v10, s[12:15], s39 offen offset:128" % vr(MR + 6, 2))
    for r in range(CS, CS + 20): a("v_mov_b32 v%d, 0" % r)
    for r in range(ONE, ONE + 4): a("v_mov_b32 v%d, 0x3f803f80" % r)
    stamp_setup(a, 2); stamp(a, 0)
    a("s_mov_b32 s99, 0")
    for r in range(ACC, ACC + 72): a("v_mov_b32 v%d, 0" % r)
    a("s_mov_b32 s27, 0")
    a("s_mov_b32 s33, 0")
    core = G.Core(a, ACC, FB[0], FB[1], FS, TREG, vTa, vTb, vF, vFh)
    trk = core.trk
    a("s_barrier")
    stamp(a, 1)
    core.prime(0, core.reads(0, 0))
    withcs = [True]
    def mfmas(buf):
        L = []
        for ft in range(5):
            A = core.F(buf, ft)
            for tt in range(4 if ft < 4 else 2):
                c = core.accr(ft, tt); B = core.T(buf, tt)
                L.append(("v_mfma_f32_16x16x32_bf16 %s, %s, %s, %s" % (vr(c), vr(A), vr(B), vr(c)), list(range(A, A + 4)) + list(range(B, B + 4))))
            if withcs[0]:
                L.append(("v_mfma_f32_16x16x32_bf16 %s, %s, %s, %s" % (vr(CS + 4 * ft), vr(A), vr(ONE), vr(CS + 4 * ft)), list(range(A, A + 4))))
        return L
    def phase(buf, pend):
        for (m, regs) in mfmas(buf):
            trk.need(regs)
            a(m)
            while pend:
                k, t = pend.pop(0)
                if k == "x":
                    a(t)
                    if t.startswith("s_"): continue
                else:
                    a(t[0]); trk.issue(t[1])
                break
        for k, t in pend:
            if k == "x": a(t)
            else: a(t[0]); trk.issue(t[1])
    def iteration(extra=None):
        a("s_barrier")
        rd = [("r", t) for t in core.reads(1, 1)]
        upd = ["s_add_u32 s27, s27, %d" % SLOT, "s_cmp_eq_u32 s27, %d" % (R * SLOT), "s_cselect_b32 s27, 0, s27"]
        tail = ["v_add_u32 v%d, s27, v%d" % (d, s_) for d, s_ in ((vTa[0], bTa[0]), (vF, bF), (vTb[0], bTb[0]), (vFh, bFh))]
        phase(0, rd[:1] + [("x", u) for u in upd] + rd[1:] + [("x", u) for u in tail])
        rd = [("r", t) for t in core.reads(0, 0)]
        tail = ["v_add_u32 v%d, s27, v%d" % (d, s_) for d, s_ in ((vTa[1], bTa[1]), (vTb[1], bTb[1]))] + ["s_add_u32 s33, s33, 1"]
        phase(1, rd + [("x", u) for u in tail])
    trk.drain()
    a.label("%s_zloop" % name)
    lb = len(a.lines); iteration(); st = copy.deepcopy(trk.out); del a.lines[lb:]; trk.out = copy.deepcopy(st)
    iteration()
    assert [sorted(x) for x in trk.out] == [sorted(x) for x in st]
    a("s_cmp_lt_u32 s33, 9")
    a("s_cbranch_scc1 %s_zloop" % name)
    trk.drain()
    a("s_barrier")
    stamp(a, 5)
    gelu_consts(a)
    a("s_waitcnt vmcnt(0)")
    for tt in range(4): a("v_sub_f32 v%d, 0, v%d" % (MR + 2 * tt, MR + 2 * tt))
    a("s_mov_b32 s35, 0x%x" % WOT)
    for n in range(3):
        a("buffer_store_dwordx4 %s, v%d, s[12:15], s35 offen" % (vr(240 + 4 * n), 252 + n))
    for ft in range(5):
        tts = range(4 if ft < 4 else 2)
        emit_fold_gelu(a, [(core.accr(ft, tt), CS + 4 * ft, MR + 2 * tt, Z1R + 2 * tidx(ft, tt)) for tt in tts], 56)
    for r in range(ACC, ACC + 72): a("v_mov_b32 v%d, 0" % r)
    a("s_mov_b32 s33, 0")
    a("s_mov_b32 s27, 0")
    for d, s_ in ((vTa[0], bTa[0]), (vTb[0], bTb[0]), (vTa[1], bTa[1]), (vTb[1], bTb[1]), (vF, bF), (vFh, bFh)):
        a("v_mov_b32 v%d, v%d" % (d, s_))
    stamp(a, 6)
    a("s_barrier")
    core.prime(0, core.reads(0, 0))
    trk.drain()
    withcs[0] = False
    a.label("%s_cloop" % name)
    lb = len(a.lines); iteration(); st = copy.deepcopy(trk.out); del a.lines[lb:]; trk.out = copy.deepcopy(st)
    iteration()
    assert [sorted(x) for x in trk.out] == [sorted(x) for x in st]
    a("s_cmp_lg_u32 s33, 24")
    a("s_cbranch_scc1 %s_noz" % name)
    a("s_lshl_b32 s36, s22, 7")
    a("s_lshl_b32 s37, s24, 6")
    a("s_add_u32 s36, s36, s37")
    a("v_lshlrev_b32 v11, 1, v3")
    a("s_lshl_b32 s37, s25, 6")
    a("s_lshl_b32 s38, s36, 1")
    a("s_add_u32 s39, s38, s37")
    a("s_xor_b32 s37, s37, 64")
    a("s_add_u32 s40, s38, s37")
    a("buffer_load_ushort v%d, v11, s[28:31], s39 offen" % (BI + 0))
    a("buffer_load_ushort v%d, v11, s[28:31], s39 offen offset:32" % (BI + 2))
    a("buffer_load_ushort v%d, v11, s[28:31], s40 offen" % (BI + 4))
    a("buffer_load_ushort v%d, v11, s[28:31], s40 offen offset:32" % (BI + 6))
    a.label("%s_noz" % name)
    a("s_cmp_lt_u32 s33, %d" % NST)
    a("s_cbranch_scc1 %s_cloop" % name)
    trk.drain()
    stamp(a, 2)
    a.label("%s_epi" % name)
    a("v_lshrrev_b32 v10, 4, v2")
    a("v_and_b32 v11, 1, v10")
    a("v_lshrrev_b32 v12, 1, v10")
    a("v_lshl_add_u32 v12, v11, 1, v12")
    a("s_mul_i32 s35, s23, 18")
    a("s_mul_i32 s36, s25, 10")
    a("s_add_u32 s36, s36, s35")
    a("v_lshrrev_b32 v13, 1, v3")
    a("s_lshl_b32 s37, s22, 1")
    a("s_add_u32 s37, s37, s24")
    a("s_mul_i32 s37, s37, %d" % (36 * 8192))
    a("s_add_u32 s37, s37, 0x%x" % PIMG)
    a("s_lshl_b32 s38, s25, 12")
    a("s_add_u32 s39, s37, s38")
    a("s_xor_b32 s38, s38, 4096")
    a("s_add_u32 s40, s37, s38")
    def addr(dst, pv):
        a("v_lshrrev_b32 v14, 3, v%d" % pv)
        a("v_lshlrev_b32 v14, 13, v14")
        a("v_and_b32 v15, 7, v%d" % pv)
        a("v_xor_b32 v15, v15, v13")
        a("v_lshl_add_u32 v14, v15, 4, v14")
        a("v_lshl_add_u32 v%d, v3, 7, v14" % dst)
    a("v_add_u32 v16, s36, v12"); addr(4, 16)
    a("v_add_u32 v16, 4, v16"); addr(5, 16)
    a("v_lshrrev_b32 v16, 1, v10")
    a("s_add_u32 s35, s35, 8")
    a("v_add_u32 v16, s35, v16"); addr(6, 16)
    a("v_lshl_add_u32 v6, v11, 11, v6")
    a("s_waitcnt vmcnt(0)")
    for tt in range(4):
        a("v_lshlrev_b32 v%d, 16, v%d" % (BI + 2 * tt, BI + 2 * tt))
    stamp(a, 3)
    def ptiles(lst, O):
        T = 24
        for q, (ft, tt) in enumerate(lst):
            c = core.accr(ft, tt)
            for h in (0, 2):
                a("v_pk_add_f32 %s, %s, %s op_sel_hi:[1,0]" % (vr(c + h, 2), vr(c + h, 2), vr(BI + 2 * tt, 2)))
        for q, (ft, tt) in enumerate(lst):
            c = core.accr(ft, tt)
            a("v_cvt_pk_bf16_f32 v%d, v%d, v%d" % (T + 2 * q, c, c + 1))
            a("v_cvt_pk_bf16_f32 v%d, v%d, v%d" % (T + 2 * q + 1, c + 2, c + 3))
        for q, (ft, tt) in enumerate(lst):
            c = core.accr(ft, tt); z = Z1R + 2 * tidx(ft, tt)
            for d in range(2):
                a("v_lshlrev_b32 v%d, 16, v%d" % (c + 2 * d, T + 2 * q + d))
                a("v_and_b32 v%d, 0xffff0000, v%d" % (c + 2 * d + 1, T + 2 * q + d))
                a("v_lshlrev_b32 v%d, 16, v%d" % (T + 4 + 4 * q + 2 * d, z + d))
                a("v_and_b32 v%d, 0xffff0000, v%d" % (T + 5 + 4 * q + 2 * d, z + d))
        for q, (ft, tt) in enumerate(lst):
            c = core.accr(ft, tt)
            for h in (0, 2):
                a("v_pk_mul_f32 %s, %s, %s" % (vr(c + h, 2), vr(c + h, 2), vr(T + 4 + 4 * q + h, 2)))
        for q, (ft, tt) in enumerate(lst):
            c = core.accr(ft, tt)
            a("v_cvt_pk_bf16_f32 v%d, v%d, v%d" % (O + 2 * q, c, c + 1))
            a("v_cvt_pk_bf16_f32 v%d, v%d, v%d" % (O + 2 * q + 1, c + 2, c + 3))
        a("s_nop 1")
        a("v_permlane16_swap_b32 v%d, v%d" % (O, O + 2))
        a("v_permlane16_swap_b32 v%d, v%d" % (O + 1, O + 3))
        a("s_nop 0")
    cnt = 0
    for pr in range(2):
        for tt in range(4):
            O = 40 + 4 * cnt; cnt += 1
            ptiles([(2 * pr, tt), (2 * pr + 1, tt)], O)
            a("buffer_store_dwordx4 %s, v%d, s[12:15], s%d offen offset:%d" % (vr(O), 4 + pr, 39 if tt < 2 else 40, (tt & 1) * 2048))
    O = 40 + 4 * cnt
    ptiles([(4, 0), (4, 1)], O)
    a("buffer_store_dwordx4 %s, v6, s[12:15], s39 offen" % vr(O))
    seg_end2(a, name)
    stamp(a, 4)
    G.stamp_rt(a, 1)
    a.label("%s_end" % name)
    a("s_endpgm")
    return a.text(), kernel_desc(name, 256, 256), (name, 256, 512, R * SLOT + 1024)


def gen_k2f(name="k2_kernel", R=4):
    a = Asm()
    SLOT = 34816; TREG = 16384; FS = 288; NST = 32
    kernel_begin(a, name)
    a("s_load_dwordx2 s[4:5], s[0:1], 64")
    a("s_load_dwordx2 s[6:7], s[0:1], 104")
    a("s_load_dwordx4 s[88:91], s[0:1], 32")
    a("s_load_dwordx2 s[80:81], s[0:1], 0")
    a("s_load_dwordx2 s[82:83], s[0:1], 56")
    a("s_load_dwordx2 s[56:57], s[0:1], 96")
    a("s_cmp_ge_u32 s2, 256")
    a("s_cbranch_scc1 %s_end" % name)
    a("v_lshrrev_b32 v1, 6, v0")
    a("v_and_b32 v2, 63, v0")
    a("v_readfirstlane_b32 s3, v1")
    G2.tile_ij(a)
    a("s_cmp_lt_u32 s3, 4")
    a("s_cbranch_scc1 %s_consumer" % name)
    if "noprio" not in DBG: a("s_setprio 3")
    a("s_sub_u32 s3, s3, 4")
    a("v_lshrrev_b32 v3, 3, v2")
    a("s_lshl_b32 s24, s3, 5")
    a("v_add_u32 v3, s24, v3")
    a("v_and_b32 v4, 7, v2")
    a("v_lshrrev_b32 v6, 4, v2")
    a("v_xor_b32 v6, v6, v4")
    a("v_lshlrev_b32 v6, 4, v6")
    a("v_lshl_add_u32 v10, v3, 12, v6")
    a("v_xor_b32 v11, 64, v10")
    a("v_add_u32 v11, %d, v11" % (32768 - 1024))
    a("v_add_u32 v12, %d, v10" % (2 * (32768 - 1024)))
    a("v_add_u32 v13, %d, v11" % (2 * (32768 - 1024)))
    a("v_lshlrev_b32 v14, 4, v2")
    a("s_lshl_b32 s26, s22, 19")
    a("s_mul_i32 s27, s23, %d" % (32 * 18432))
    a("s_lshl_b32 s24, s3, 12")
    a("s_add_u32 s27, s27, s24")
    if ZIMG: a("s_add_u32 s27, s27, 0x%x" % ZIMG)
    a("s_lshl_b32 s25, s3, 9")
    a("s_sub_u32 s32, s25, s24")
    a("s_add_u32 s32, s32, 16384")
    a("s_mov_b32 s33, 0")
    a("s_waitcnt lgkmcnt(0)")
    srd(a, 8, 4, 2048 * 2048 * 2)
    srd(a, 12, 6, WS_BYTES)
    def issue():
        a("s_add_u32 s35, s33, s24")
        a("s_mov_b32 m0, s35")
        a("s_add_u32 s36, s35, %d" % TREG)
        for n in range(4):
            a("buffer_load_dwordx4 v%d, s[8:11], s26 offen offset:%d lds" % (10 + n, n * 1024))
        a("s_mov_b32 m0, s36")
        a("s_add_u32 s37, s27, s32")
        for n in range(4):
            a("buffer_load_dwordx4 v14, s[12:15], s27 offen offset:%d sc1 lds" % (n * 1024))
        a("s_add_u32 s36, s36, s32")
        a("s_mov_b32 m0, s36")
        a("s_mov_b64 exec, 0xffffffff")
        a("buffer_load_dwordx4 v14, s[12:15], s37 offen sc1 lds")
        a("s_mov_b64 exec, -1")
        a("s_add_u32 s26, s26, 128")
        a("s_add_u32 s27, s27, 18432")
        a("s_add_u32 s33, s33, %d" % SLOT)
        a("s_cmp_eq_u32 s33, %d" % (R * SLOT))
        a("s_cselect_b32 s33, 0, s33")
    srd(a, 16, 88, 576 * 2048 * 2)
    srd(a, 84, 90, 576 * 2)
    a("s_lshl_b32 s43, s2, 2")
    a("s_add_u32 s43, s43, s3")
    a("s_and_b32 s53, s43, 1")
    a("s_sub_u32 s36, s43, 448")
    a("s_lshr_b32 s37, s43, 1")
    a("s_cmp_ge_u32 s43, 896")
    a("s_cselect_b32 s43, s36, s37")
    a("s_cselect_b32 s53, 2, s53")
    VT = 16; VF = 20
    srd(a, 64, 80, 2048 * 576 * 2)
    srd(a, 68, 82, 576 * 4608 * 2)
    a("v_mul_u32_u24 v5, 1152, v3")
    a("v_add_u32 v%d, v5, v6" % VT)
    a("v_xor_b32 v%d, 64, v%d" % (VT + 1, VT))
    a("v_add_u32 v%d, %d, v%d" % (VT + 1, 9216 - 1024, VT + 1))
    a("v_add_u32 v%d, %d, v%d" % (VT + 2, 2 * (9216 - 1024), VT))
    a("v_add_u32 v%d, %d, v%d" % (VT + 3, 2 * (9216 - 1024), VT + 1))
    a("s_mul_i32 s72, s22, %d" % (128 * 1152))
    a("s_mul_i32 s73, s23, 288")
    a("s_add_u32 s74, s25, %d" % (TREG + 16384))
    def issueT1(g):
        a("s_add_u32 s35, s24, %d" % ((g % R) * SLOT))
        a("s_mov_b32 m0, s35")
        a("s_add_u32 s36, s72, %d" % (128 * g))
        for n in range(4):
            a("buffer_load_dwordx4 v%d, s[64:67], s36 offen offset:%d lds" % (VT + n, 1024 * n))
    def issueF1(g):
        a("s_add_u32 s35, s24, %d" % ((g % R) * SLOT + TREG))
        a("s_mov_b32 m0, s35")
        a("s_add_u32 s36, s73, %d" % (64 * 9216 * g))
        for n in range(4):
            a("buffer_load_dwordx4 v%d, s[68:71], s36 offen offset:%d lds" % (VF + n, 1024 * n))
        a("s_add_u32 s35, s74, %d" % ((g % R) * SLOT))
        a("s_mov_b32 m0, s35")
        a("s_mov_b64 exec, 0xffffffff")
        a("buffer_load_dwordx4 v%d, s[68:71], s36 offen lds" % (VF + 4))
        a("s_mov_b64 exec, -1")
    issueT1(0)
    for n in range(5):
        if n < 4:
            a("s_lshl_b32 s36, s3, 8")
            a("s_add_u32 s36, s36, %d" % (64 * n))
        else:
            a("s_lshl_b32 s36, s3, 5")
            a("s_add_u32 s36, s36, 1024")
        a("v_add_u32 v6, s36, v2")
        a("v_mul_u32_u24 v7, 3641, v6")
        a("v_lshrrev_b32 v7, 16, v7")
        a("v_mul_u32_u24 v8, 18, v7")
        a("v_sub_u32 v8, v6, v8")
        a("v_and_b32 v9, 35, v7")
        a("v_bfe_u32 v6, v7, 2, 2")
        a("v_lshl_add_u32 v9, v6, 3, v9")
        a("v_bfe_u32 v6, v7, 4, 1")
        a("v_lshl_add_u32 v9, v6, 2, v9")
        a("v_mul_u32_u24 v9, 9216, v9")
        a("v_lshl_add_u32 v%d, v8, 4, v9" % (VF + n))
        if 0 < n < 4: a("v_subrev_u32 v%d, %d, v%d" % (VF + n, 1024 * n, VF + n))
    issueF1(0)
    for g in (1, 2, 3): issueT1(g); issueF1(g)
    nconv = emit_conv_loads(a)
    NTB = R * SLOT; LFLAG = NTB + 1024
    a("v_mov_b32 v26, %d" % LFLAG)
    a("v_mov_b32 v27, 0")
    a("ds_write_b32 v26, v27")
    a("s_waitcnt vmcnt(%d) lgkmcnt(0)" % (27 + nconv))
    a("s_barrier")
    a("s_waitcnt vmcnt(%d)" % (18 + nconv))
    a("s_barrier")
    a("s_add_u32 s3, s3, 4"); stamp_setup(a, 2); stamp(a, 0); a("s_sub_u32 s3, s3, 4")
    a("s_waitcnt vmcnt(%d)" % (9 + nconv))
    a("s_barrier")
    for kk in range(1, 8):
        if kk + 3 < 9:
            issueT1(kk + 3); issueF1(kk + 3)
            a("s_waitcnt vmcnt(%d)" % (9 + (nconv if kk == 1 else 0)))
        elif kk == 6:
            a("s_waitcnt vmcnt(0)")
        a("s_barrier")
    srd(a, 60, 56, 256)
    a("s_barrier")
    for g in range(4):
        a("s_add_u32 s35, s24, %d" % (g * SLOT))
        a("s_mov_b32 m0, s35")
        a("s_add_u32 s36, s26, %d" % (128 * g))
        for n in range(4):
            a("buffer_load_dwordx4 v%d, s[8:11], s36 offen offset:%d lds" % (10 + n, n * 1024))
    a("s_mov_b32 s34, 0")
    a("s_cmp_lg_u32 s3, 0")
    a("s_cbranch_scc1 %s_pl" % name)
    a("s_lshl_b32 s36, s23, 2")
    a("v_mov_b32 v28, s36")
    a.label("%s_pz" % name)
    a("buffer_load_dword v29, v28, s[60:63], 0 offen sc1")
    a("s_add_u32 s34, s34, 1")
    a("s_waitcnt vmcnt(0)")
    a("v_readfirstlane_b32 s36, v29")
    a("s_cmp_gt_u32 s34, %d" % SPIN_MAX)
    a("s_cbranch_scc1 %s_pzx" % name)
    a("s_cmp_ge_u32 s36, 16")
    a("s_cbranch_scc1 %s_pzx" % name)
    a("s_sleep 16")
    a("s_branch %s_pz" % name)
    a.label("%s_pzx" % name)
    a("v_mov_b32 v27, 1")
    a("ds_write_b32 v26, v27")
    a("s_branch %s_pgo" % name)
    a.label("%s_pl" % name)
    a("ds_read_b32 v27, v26")
    a("s_add_u32 s34, s34, 1")
    a("s_waitcnt lgkmcnt(0)")
    a("v_readfirstlane_b32 s36, v27")
    a("s_cmp_gt_u32 s34, %d" % (SPIN_MAX * 20))
    a("s_cbranch_scc1 %s_pgo" % name)
    a("s_cmp_lg_u32 s36, 0")
    a("s_cbranch_scc1 %s_pgo" % name)
    a("s_sleep 2")
    a("s_branch %s_pl" % name)
    a.label("%s_pgo" % name)
    stamp(a, 8)
    for g in range(4):
        a("s_add_u32 s35, s24, %d" % (g * SLOT + TREG))
        a("s_mov_b32 m0, s35")
        a("s_add_u32 s36, s27, %d" % (18432 * g))
        a("s_add_u32 s37, s36, s32")
        for n in range(4):
            a("buffer_load_dwordx4 v14, s[12:15], s36 offen offset:%d sc1 lds" % (n * 1024))
        a("s_add_u32 s35, s35, s32")
        a("s_mov_b32 m0, s35")
        a("s_mov_b64 exec, 0xffffffff")
        a("buffer_load_dwordx4 v14, s[12:15], s37 offen sc1 lds")
        a("s_mov_b64 exec, -1")
    a("s_add_u32 s26, s26, 512")
    a("s_add_u32 s27, s27, %d" % (4 * 18432))
    a("s_mov_b32 s33, 0")
    a("s_waitcnt vmcnt(15)")
    a("s_barrier")
    a("s_waitcnt vmcnt(10)")
    a("s_barrier")
    a("s_waitcnt vmcnt(5)")
    a("s_barrier")
    a("s_mov_b32 s34, 4")
    a.label("%s_lloop" % name)
    issue()
    a("s_waitcnt vmcnt(9)")
    a("s_barrier")
    a("s_add_u32 s34, s34, 1")
    a("s_cmp_lt_u32 s34, 32")
    a("s_cbranch_scc1 %s_lloop" % name)
    a("s_waitcnt vmcnt(0) lgkmcnt(0)")
    a("s_barrier")
    stamp(a, 1)
    a("s_mov_b32 s26, s53")
    a("s_and_b32 s27, s3, 1")
    a("s_mul_i32 s27, s27, %d" % CJ_SIZE)
    a("s_lshr_b32 s36, s3, 1")
    a("s_mul_i32 s36, s36, %d" % SLOT)
    a("s_add_u32 s27, s27, s36")
    def mid():
        if "warm2" in DBG:
            a("s_cmp_eq_u32 s99, 1")
            a("s_cbranch_scc1 %s_midskip" % name)
        a("s_barrier")
        a("s_setprio 0")
        a.label("%s_midskip" % name)
    a.label("%s_cjstart" % name)
    if "noconv" in DBG:
        mid()
    else:
        emit_conv_job(a, name, mid)
        G.stamp_rt(a, 1)
    a("s_branch %s_end" % name)
    a.label("%s_consumer" % name)
    a("s_load_dwordx2 s[92:93], s[0:1], 72")
    a("s_load_dwordx2 s[94:95], s[0:1], 80")
    ACC = 128; FB = [16, 52]
    vTa = [4, 5]; vTb = [6, 7]; vF = 8; vFh = 9
    bTa = [88, 89]; bTb = [90, 91]; bF = 92; bFh = 93
    Z1R = 200; BI = 236
    a("s_lshr_b32 s24, s3, 1")
    a("s_and_b32 s25, s3, 1")
    a("v_and_b32 v3, 15, v2")
    a("v_lshrrev_b32 v10, 4, v2")
    a("v_lshrrev_b32 v11, 1, v3")
    a("v_xor_b32 v10, v10, v11")
    a("v_lshlrev_b32 v10, 4, v10")
    a("v_lshl_add_u32 v10, v3, 7, v10")
    a("s_lshl_b32 s26, s24, 13")
    a("v_add_u32 v10, s26, v10")
    a("s_lshl_b32 s26, s25, 12")
    a("v_add_u32 v%d, s26, v10" % bTa[0])
    a("s_xor_b32 s26, s26, 4096")
    a("v_add_u32 v%d, s26, v10" % bTb[0])
    a("v_xor_b32 v%d, 64, v%d" % (bTa[1], bTa[0]))
    a("v_xor_b32 v%d, 64, v%d" % (bTb[1], bTb[0]))
    a("v_lshrrev_b32 v10, 2, v2")
    a("v_mul_u32_u24 v10, %d, v10" % FS)
    a("v_and_b32 v11, 3, v2")
    a("v_lshl_add_u32 v10, v11, 3, v10")
    a("v_add_u32 v10, %d, v10" % TREG)
    a("s_mul_i32 s26, s25, 160")
    a("v_add_u32 v%d, s26, v10" % bF)
    a("v_add_u32 v%d, 128, v10" % bFh)
    for d, s_ in ((vTa[0], bTa[0]), (vTb[0], bTb[0]), (vTa[1], bTa[1]), (vTb[1], bTb[1]), (vF, bF), (vFh, bFh)):
        a("v_mov_b32 v%d, v%d" % (d, s_))
    a("s_waitcnt lgkmcnt(0)")
    srd(a, 12, 6, WS_BYTES)
    srd(a, 28, 92, 2048 * 2)
    srd(a, 60, 56, 256)
    MR = 100; CS = 108; ONE = 96
    a("s_lshl_b32 s36, s22, 7")
    a("s_lshl_b32 s37, s24, 6")
    a("s_add_u32 s36, s36, s37")
    a("s_lshl_b32 s36, s36, 3")
    a("s_add_u32 s36, s36, 0x%x" % STATS1)
    a("s_lshl_b32 s37, s25, 8")
    a("s_add_u32 s38, s36, s37")
    a("s_xor_b32 s37, s37, 256")
    a("s_add_u32 s39, s36, s37")
    a("v_lshlrev_b32 v10, 3, v3")
    a("buffer_load_dwordx2 %s, v10, s[12:15], s38 offen" % vr(MR, 2))
    a("buffer_load_dwordx2 %s, v10, s[12:15], s38 offen offset:128" % vr(MR + 2, 2))
    a("buffer_load_dwordx2 %s, v10, s[12:15], s39 offen" % vr(MR + 4, 2))
    a("buffer_load_dwordx2 %s, v10, s[12:15], s39 offen offset:128" % vr(MR + 6, 2))
    NP = 240; ND = 200
    a("s_lshl_b32 s58, s22, 7")
    a("s_lshl_b32 s37, s3, 5")
    a("s_add_u32 s58, s58, s37")
    a("s_lshl_b32 s58, s58, 8")
    a("s_add_u32 s58, s58, 0x%x" % STATS2)
    a("v_lshlrev_b32 v12, 7, v2")
    for q in range(4):
        a("buffer_load_dwordx4 %s, v12, s[12:15], s58 offen offset:%d" % (vr(NP + 4 * q), 16 * q))
    a("s_lshl_b32 s52, s23, 5")
    a("s_lshl_b32 s37, s22, 1")
    a("s_add_u32 s52, s52, s37")
    a("s_mul_i32 s52, s52, 18432")
    a("s_mul_i32 s37, s3, 9216")
    a("s_add_u32 s52, s52, s37")
    if ZIMG: a("s_add_u32 s52, s52, 0x%x" % ZIMG)
    a("s_add_u32 s53, s52, 4096")
    a("s_add_u32 s59, s52, 8192")
    a("v_lshlrev_b32 v13, 4, v2")
    for n in range(9):
        a("buffer_load_dwordx4 %s, v13, s[12:15], s%d offen offset:%d sc1" % (vr(ND + 4 * n), (52, 53, 59)[n >> 2], (n & 3) * 1024))
    for r in range(CS, CS + 20): a("v_mov_b32 v%d, 0" % r)
    for r in range(ONE, ONE + 4): a("v_mov_b32 v%d, 0x3f803f80" % r)
    stamp_setup(a, 2); stamp(a, 0)
    a("s_mov_b32 s99, 0")
    for r in range(ACC, ACC + 72): a("v_mov_b32 v%d, 0" % r)
    a("s_mov_b32 s27, 0")
    a("s_mov_b32 s33, 0")
    core = G.Core(a, ACC, FB[0], FB[1], FS, TREG, vTa, vTb, vF, vFh)
    trk = core.trk
    a("s_barrier")
    stamp(a, 1)
    core.prime(0, core.reads(0, 0))
    withcs = [True]
    def mfmas(buf):
        L = []
        for ft in range(5):
            A = core.F(buf, ft)
            for tt in range(4 if ft < 4 else 2):
                c = core.accr(ft, tt); B = core.T(buf, tt)
                L.append(("v_mfma_f32_16x16x32_bf16 %s, %s, %s, %s" % (vr(c), vr(A), vr(B), vr(c)), list(range(A, A + 4)) + list(range(B, B + 4))))
            if withcs[0]:
                L.append(("v_mfma_f32_16x16x32_bf16 %s, %s, %s, %s" % (vr(CS + 4 * ft), vr(A), vr(ONE), vr(CS + 4 * ft)), list(range(A, A + 4))))
        return L
    def phase(buf, pend):
        for (m, regs) in mfmas(buf):
            trk.need(regs)
            a(m)
            while pend:
                k, t = pend.pop(0)
                if k == "x":
                    a(t)
                    if t.startswith("s_"): continue
                else:
                    a(t[0]); trk.issue(t[1])
                break
        for k, t in pend:
            if k == "x": a(t)
            else: a(t[0]); trk.issue(t[1])
    def iteration(extra=None):
        a("s_barrier")
        rd = [("r", t) for t in core.reads(1, 1)]
        upd = ["s_add_u32 s27, s27, %d" % SLOT, "s_cmp_eq_u32 s27, %d" % (R * SLOT), "s_cselect_b32 s27, 0, s27"]
        tail = ["v_add_u32 v%d, s27, v%d" % (d, s_) for d, s_ in ((vTa[0], bTa[0]), (vF, bF), (vTb[0], bTb[0]), (vFh, bFh))]
        phase(0, rd[:1] + [("x", u) for u in upd] + rd[1:] + [("x", u) for u in tail])
        rd = [("r", t) for t in core.reads(0, 0)]
        tail = ["v_add_u32 v%d, s27, v%d" % (d, s_) for d, s_ in ((vTa[1], bTa[1]), (vTb[1], bTb[1]))] + ["s_add_u32 s33, s33, 1"]
        phase(1, rd + [("x", u) for u in tail])
    trk.drain()
    a.label("%s_zloop" % name)
    lb = len(a.lines); iteration(); st = copy.deepcopy(trk.out); del a.lines[lb:]; trk.out = copy.deepcopy(st)
    iteration()
    assert [sorted(x) for x in trk.out] == [sorted(x) for x in st]
    a("s_cmp_lg_u32 s33, 2")
    a("s_cbranch_scc1 %s_h1" % name)
    a("s_waitcnt vmcnt(9)")
    for st_ in (8, 4, 2):
        for q in range(0, st_, 2):
            a("v_pk_add_f32 %s, %s, %s" % (vr(NP + q, 2), vr(NP + q, 2), vr(NP + q + st_, 2)))
    a("v_mov_b32 v94, v%d" % NP); a("v_mov_b32 v95, v%d" % (NP + 1))
    for q in range(4):
        a("buffer_load_dwordx4 %s, v12, s[12:15], s58 offen offset:%d" % (vr(NP + 4 * q), 64 + 16 * q))
    a.label("%s_h1" % name)
    a("s_cmp_lg_u32 s33, 4")
    a("s_cbranch_scc1 %s_h2" % name)
    a("s_waitcnt vmcnt(0)")
    for st_ in (8, 4, 2):
        for q in range(0, st_, 2):
            a("v_pk_add_f32 %s, %s, %s" % (vr(NP + q, 2), vr(NP + q, 2), vr(NP + q + st_, 2)))
    a("v_pk_add_f32 %s, %s, v[94:95]" % (vr(NP, 2), vr(NP, 2)))
    a("s_nop 1")
    for e in range(2):
        a("v_add_f32_dpp v%d, v%d, v%d quad_perm:[1,0,3,2] row_mask:0xf bank_mask:0xf" % (NP + e, NP + e, NP + e))
    emit_ln_finish(a, NP, NP + 1, 2304, NP + 2, NP + 4, NP + 6)
    a("v_mul_f32 v%d, -v%d, v%d" % (NP + 5, NP + 2, NP + 4))
    a("v_lshrrev_b32 v10, 1, v2")
    a("v_and_b32 v11, 3, v10")
    a("v_bfe_u32 v12, v10, 3, 2")
    a("v_lshl_add_u32 v11, v12, 2, v11")
    a("v_bfe_u32 v12, v10, 2, 1")
    a("v_lshl_add_u32 v11, v12, 4, v11")
    a("s_lshl_b32 s36, s3, 8")
    a("s_add_u32 s36, s36, %d" % NTB)
    a("v_lshl_add_u32 v11, v11, 3, s36")
    a("ds_write_b64 v11, %s" % vr(NP + 4, 2))
    a("s_waitcnt lgkmcnt(0)")
    for n0_ in (0, 3, 6):
        for n in range(n0_, n0_ + 3):
            a("v_add_u32 v10, %d, v2" % (64 * n))
            a("v_mul_u32_u24 v10, 3641, v10")
            a("v_lshrrev_b32 v10, 16, v10")
            a("v_lshl_add_u32 v10, v10, 3, s36")
            a("ds_read_b64 %s, v10" % vr(NP + 8 + 2 * (n - n0_), 2))
        a("s_waitcnt lgkmcnt(0)")
        for n in range(n0_, n0_ + 3):
            tb = NP + 8 + 2 * (n - n0_)
            for d in range(4):
                z = ND + 4 * n + d; t_ = NP + 2 * d
                a("v_lshlrev_b32 v%d, 16, v%d" % (t_, z))
                a("v_and_b32 v%d, 0xffff0000, v%d" % (t_ + 1, z))
            for d in range(4):
                t_ = NP + 2 * d
                a("v_pk_fma_f32 %s, %s, %s, %s op_sel:[0,0,1] op_sel_hi:[1,0,1]" % (vr(t_, 2), vr(t_, 2), vr(tb, 2), vr(tb, 2)))
            for d in range(4):
                a("v_cvt_pk_bf16_f32 v%d, v%d, v%d" % (ND + 4 * n + d, NP + 2 * d, NP + 2 * d + 1))
            a("buffer_store_dwordx4 %s, v13, s[12:15], s%d offen offset:%d sc1" % (vr(ND + 4 * n), (52, 53, 59)[n >> 2], (n & 3) * 1024))
    a.label("%s_h2" % name)
    a("s_cmp_lg_u32 s33, 7")
    a("s_cbranch_scc1 %s_h3" % name)
    a("s_waitcnt vmcnt(0)")
    a.label("%s_h3" % name)
    a("s_lshl_b32 s36, s3, 8")
    a("s_add_u32 s36, s36, s33")
    a("s_cmp_lg_u32 s36, 8")
    a("s_cbranch_scc1 %s_h4" % name)
    a("v_mov_b32 v10, 1")
    a("s_lshl_b32 s36, s23, 2")
    a("v_mov_b32 v11, s36")
    a("s_mov_b64 exec, 1")
    a("buffer_atomic_add v10, v11, s[60:63], 0 offen sc1")
    a("s_mov_b64 exec, -1")
    a.label("%s_h4" % name)
    a("s_cmp_lt_u32 s33, 9")
    a("s_cbranch_scc1 %s_zloop" % name)
    trk.drain()
    a("s_barrier")
    stamp(a, 5)
    gelu_consts(a)
    a("s_waitcnt vmcnt(0)")
    for tt in range(4): a("v_sub_f32 v%d, 0, v%d" % (MR + 2 * tt, MR + 2 * tt))
    for ft in range(5):
        tts = range(4 if ft < 4 else 2)
        emit_fold_gelu(a, [(core.accr(ft, tt), CS + 4 * ft, MR + 2 * tt, Z1R + 2 * tidx(ft, tt)) for tt in tts], 56)
    for r in range(ACC, ACC + 72): a("v_mov_b32 v%d, 0" % r)
    srd(a, 76, 94, 2304 * 576 * 2)
    a("s_mov_b32 s42, s2")
    emit_wot_loads(a, 240, 252, 720, 3)
    a("s_mov_b32 s33, 0")
    a("s_mov_b32 s27, 0")
    for d, s_ in ((vTa[0], bTa[0]), (vTb[0], bTb[0]), (vTa[1], bTa[1]), (vTb[1], bTb[1]), (vF, bF), (vFh, bFh)):
        a("v_mov_b32 v%d, v%d" % (d, s_))
    stamp(a, 6)
    a("s_barrier")
    core.prime(0, core.reads(0, 0))
    trk.drain()
    withcs[0] = False
    a.label("%s_cloop" % name)
    lb = len(a.lines); iteration(); st = copy.deepcopy(trk.out); del a.lines[lb:]; trk.out = copy.deepcopy(st)
    iteration()
    assert [sorted(x) for x in trk.out] == [sorted(x) for x in st]
    a("s_cmp_lg_u32 s33, 24")
    a("s_cbranch_scc1 %s_noz" % name)
    a("s_mov_b32 s35, 0x%x" % WOT)
    a("s_waitcnt vmcnt(0)")
    for n in range(3):
        a("buffer_store_dwordx4 %s, v%d, s[12:15], s35 offen" % (vr(240 + 4 * n), 252 + n))
    a("s_nop 1")
    a("s_lshl_b32 s36, s22, 7")
    a("s_lshl_b32 s37, s24, 6")
    a("s_add_u32 s36, s36, s37")
    a("v_lshlrev_b32 v11, 1, v3")
    a("s_lshl_b32 s37, s25, 6")
    a("s_lshl_b32 s38, s36, 1")
    a("s_add_u32 s39, s38, s37")
    a("s_xor_b32 s37, s37, 64")
    a("s_add_u32 s40, s38, s37")
    a("buffer_load_ushort v%d, v11, s[28:31], s39 offen" % (BI + 0))
    a("buffer_load_ushort v%d, v11, s[28:31], s39 offen offset:32" % (BI + 2))
    a("buffer_load_ushort v%d, v11, s[28:31], s40 offen" % (BI + 4))
    a("buffer_load_ushort v%d, v11, s[28:31], s40 offen offset:32" % (BI + 6))
    a.label("%s_noz" % name)
    a("s_cmp_lt_u32 s33, %d" % NST)
    a("s_cbranch_scc1 %s_cloop" % name)
    trk.drain()
    stamp(a, 2)
    a.label("%s_epi" % name)
    a("v_lshrrev_b32 v10, 4, v2")
    a("v_and_b32 v11, 1, v10")
    a("v_lshrrev_b32 v12, 1, v10")
    a("v_lshl_add_u32 v12, v11, 1, v12")
    a("s_mul_i32 s35, s23, 18")
    a("s_mul_i32 s36, s25, 10")
    a("s_add_u32 s36, s36, s35")
    a("v_lshrrev_b32 v13, 1, v3")
    a("s_lshl_b32 s37, s22, 1")
    a("s_add_u32 s37, s37, s24")
    a("s_mul_i32 s37, s37, %d" % (36 * 8192))
    a("s_add_u32 s37, s37, 0x%x" % PIMG)
    a("s_lshl_b32 s38, s25, 12")
    a("s_add_u32 s39, s37, s38")
    a("s_xor_b32 s38, s38, 4096")
    a("s_add_u32 s40, s37, s38")
    def addr(dst, pv):
        a("v_lshrrev_b32 v14, 3, v%d" % pv)
        a("v_lshlrev_b32 v14, 13, v14")
        a("v_and_b32 v15, 7, v%d" % pv)
        a("v_xor_b32 v15, v15, v13")
        a("v_lshl_add_u32 v14, v15, 4, v14")
        a("v_lshl_add_u32 v%d, v3, 7, v14" % dst)
    a("v_add_u32 v16, s36, v12"); addr(4, 16)
    a("v_add_u32 v16, 4, v16"); addr(5, 16)
    a("v_lshrrev_b32 v16, 1, v10")
    a("s_add_u32 s35, s35, 8")
    a("v_add_u32 v16, s35, v16"); addr(6, 16)
    a("v_lshl_add_u32 v6, v11, 11, v6")
    a("s_waitcnt vmcnt(0)")
    for tt in range(4):
        a("v_lshlrev_b32 v%d, 16, v%d" % (BI + 2 * tt, BI + 2 * tt))
    stamp(a, 3)
    def ptiles(lst, O):
        T = 24
        for q, (ft, tt) in enumerate(lst):
            c = core.accr(ft, tt)
            for h in (0, 2):
                a("v_pk_add_f32 %s, %s, %s op_sel_hi:[1,0]" % (vr(c + h, 2), vr(c + h, 2), vr(BI + 2 * tt, 2)))
        for q, (ft, tt) in enumerate(lst):
            c = core.accr(ft, tt)
            a("v_cvt_pk_bf16_f32 v%d, v%d, v%d" % (T + 2 * q, c, c + 1))
            a("v_cvt_pk_bf16_f32 v%d, v%d, v%d" % (T + 2 * q + 1, c + 2, c + 3))
        for q, (ft, tt) in enumerate(lst):
            c = core.accr(ft, tt); z = Z1R + 2 * tidx(ft, tt)
            for d in range(2):
                a("v_lshlrev_b32 v%d, 16, v%d" % (c + 2 * d, T + 2 * q + d))
                a("v_and_b32 v%d, 0xffff0000, v%d" % (c + 2 * d + 1, T + 2 * q + d))
                a("v_lshlrev_b32 v%d, 16, v%d" % (T + 4 + 4 * q + 2 * d, z + d))
                a("v_and_b32 v%d, 0xffff0000, v%d" % (T + 5 + 4 * q + 2 * d, z + d))
        for q, (ft, tt) in enumerate(lst):
            c = core.accr(ft, tt)
            for h in (0, 2):
                a("v_pk_mul_f32 %s, %s, %s" % (vr(c + h, 2), vr(c + h, 2), vr(T + 4 + 4 * q + h, 2)))
        for q, (ft, tt) in enumerate(lst):
            c = core.accr(ft, tt)
            a("v_cvt_pk_bf16_f32 v%d, v%d, v%d" % (O + 2 * q, c, c + 1))
            a("v_cvt_pk_bf16_f32 v%d, v%d, v%d" % (O + 2 * q + 1, c + 2, c + 3))
        a("s_nop 1")
        a("v_permlane16_swap_b32 v%d, v%d" % (O, O + 2))
        a("v_permlane16_swap_b32 v%d, v%d" % (O + 1, O + 3))
        a("s_nop 0")
    cnt = 0
    for pr in range(2):
        for tt in range(4):
            O = 40 + 4 * cnt; cnt += 1
            ptiles([(2 * pr, tt), (2 * pr + 1, tt)], O)
            a("buffer_store_dwordx4 %s, v%d, s[12:15], s%d offen offset:%d" % (vr(O), 4 + pr, 39 if tt < 2 else 40, (tt & 1) * 2048))
    O = 40 + 4 * cnt
    ptiles([(4, 0), (4, 1)], O)
    a("buffer_store_dwordx4 %s, v6, s[12:15], s39 offen" % vr(O))
    seg_end2(a, name)
    stamp(a, 4)
    G.stamp_rt(a, 1)
    a.label("%s_end" % name)
    a("s_endpgm")
    return a.text(), kernel_desc(name, 256, 256), (name, 256, 512, R * SLOT + 2048)


def gen_k3b(name="k3_kernel", R=4):
    a = Asm()
    TREG = 16384; FS = 160; SLOT = TREG + 128 * FS; NST = 18
    YOFF = R * SLOT
    kernel_begin(a, name)
    a("s_load_dwordx2 s[6:7], s[0:1], 104")
    a("s_load_dwordx2 s[4:5], s[0:1], 0")
    a("s_load_dwordx2 s[16:17], s[0:1], 88")
    a("s_cmp_ge_u32 s2, 256")
    a("s_cbranch_scc1 %s_end" % name)
    a("v_lshrrev_b32 v1, 6, v0")
    a("v_and_b32 v2, 63, v0")
    a("v_readfirstlane_b32 s3, v1")
    a("s_and_b32 s20, s2, 7")
    a("s_lshr_b32 s21, s2, 3")
    a("s_and_b32 s22, s20, 3")
    a("s_lshl_b32 s22, s22, 3")
    a("s_and_b32 s23, s21, 7")
    a("s_add_u32 s22, s22, s23")
    a("s_lshr_b32 s23, s20, 2")
    a("s_lshl_b32 s23, s23, 2")
    a("s_lshr_b32 s24, s21, 3")
    a("s_add_u32 s23, s23, s24")
    a("s_lshr_b32 s52, s23, 1")
    a("s_and_b32 s53, s23, 1")
    XR = 200; ST = 208
    def fin_loads():
        a("v_and_b32 v3, 15, v2")
        a("v_lshrrev_b32 v10, 4, v2")
        a("v_mul_u32_u24 v13, 1152, v3")
        a("v_lshl_add_u32 v13, v10, 3, v13")
        a("v_lshlrev_b32 v12, 3, v3")
        for s_ in range(3):
            if s_ == 2:
                a("s_cmp_ge_u32 s54, 2")
                a("s_cbranch_scc1 %s_fl%d" % (name, fin_loads.cnt))
            b = 64 + 4 * s_
            if s_ < 2:
                a("s_add_u32 s36, s54, %d" % (8 * s_))
                a("s_lshr_b32 s37, s36, 2")
                a("s_and_b32 s38, s36, 3")
                a("s_mul_i32 s39, s53, 160")
                a("s_lshl_b32 s40, s37, 5")
                a("s_add_u32 s39, s39, s40")
            else:
                a("s_add_u32 s36, s54, 16")
                a("s_mov_b32 s37, 4")
                a("s_mov_b32 s38, s54")
                a("s_mov_b32 s39, 128")
            a("s_lshl_b32 s40, s53, 1")
            a("s_add_u32 s38, s38, s40")
            a("s_and_b32 s38, s38, 3")
            a("s_lshl_b32 s40, s22, 2")
            a("s_add_u32 s40, s40, s38")
            a("s_lshl_b32 s40, s40, 4")
            a("s_mul_i32 s%d, s40, 1152" % b)
            a("s_add_u32 s%d, s%d, s39" % (b, b))
            a("s_mul_i32 s39, s52, 288")
            a("s_add_u32 s%d, s%d, s39" % (b, b))
            a("s_lshl_b32 s%d, s37, 11" % (b + 1))
            a("s_lshl_b32 s39, s38, 5")
            a("s_add_u32 s%d, s%d, s39" % (b + 1, b + 1))
            a("s_add_u32 s%d, s%d, %d" % (b + 1, b + 1, YOFF))
            a("s_lshl_b32 s%d, s36, 10" % (b + 2))
            a("s_lshl_b32 s40, s40, 3")
            a("s_add_u32 s40, s40, 0x%x" % STATS1)
            a("buffer_load_dwordx2 %s, v13, s[8:11], s%d offen" % (vr(XR + 2 * s_, 2), b))
            a("buffer_load_dwordx2 %s, v12, s[12:15], s40 offen" % vr(ST + 2 * s_, 2))
        a.label("%s_fl%d" % (name, fin_loads.cnt))
        fin_loads.cnt += 1
    fin_loads.cnt = 0
    a("s_mov_b32 s54, s3")
    a("s_cmp_lt_u32 s3, 4")
    a("s_cbranch_scc1 %s_consumer" % name)
    a("s_setprio 3")
    a("s_sub_u32 s3, s3, 4")
    a("v_lshlrev_b32 v14, 4, v2")
    a("s_mul_i32 s26, s22, %d" % (36 * 8192))
    a("s_lshl_b32 s24, s3, 12")
    a("s_add_u32 s26, s26, s24")
    a("s_add_u32 s26, s26, 0x%x" % PIMG)
    a("s_mul_i32 s27, s23, %d" % (18 * 20480))
    a("s_mul_i32 s25, s3, 5120")
    a("s_add_u32 s27, s27, s25")
    a("s_add_u32 s27, s27, 0x%x" % WOT)
    a("s_add_u32 s25, s25, %d" % TREG)
    a("s_mov_b32 s33, 0")
    a("s_waitcnt lgkmcnt(0)")
    srd(a, 12, 6, WS_BYTES)
    def issue():
        a("s_add_u32 s35, s33, s24")
        a("s_mov_b32 m0, s35")
        a("s_add_u32 s36, s33, s25")
        for n in range(4):
            a("buffer_load_dwordx4 v14, s[12:15], s26 offen offset:%d lds" % (n * 1024))
        a("s_mov_b32 m0, s36")
        a("s_add_u32 s37, s27, 4096")
        for n in range(4):
            a("buffer_load_dwordx4 v14, s[12:15], s27 offen offset:%d lds" % (n * 1024))
        a("s_add_u32 s36, s36, 4096")
        a("s_mov_b32 m0, s36")
        a("s_add_u32 s26, s26, 16384")
        a("buffer_load_dwordx4 v14, s[12:15], s37 offen lds")
        a("s_add_u32 s27, s27, 20480")
        a("s_add_u32 s33, s33, %d" % SLOT)
        a("s_cmp_eq_u32 s33, %d" % (R * SLOT))
        a("s_cselect_b32 s33, 0, s33")
    issue(); issue()
    a("s_add_u32 s3, s3, 4"); stamp_setup(a, 3); stamp(a, 0); a("s_sub_u32 s3, s3, 4")
    srd(a, 8, 4, 2048 * 576 * 2)
    srd(a, 28, 16, 2048 * 576 * 2)
    a("s_waitcnt vmcnt(9)")
    a("s_barrier")
    issue(); issue()
    a("s_waitcnt vmcnt(18)")
    a("s_barrier")
    a("s_mov_b32 s34, 0")
    a.label("%s_lloop" % name)
    issue()
    a("s_waitcnt vmcnt(18)")
    a("s_barrier")
    a("s_add_u32 s34, s34, 1")
    a("s_cmp_lt_u32 s34, %d" % (NST - R))
    a("s_cbranch_scc1 %s_lloop" % name)
    a("v_lshrrev_b32 v3, 3, v2")
    a("v_and_b32 v4, 7, v2")
    a("v_lshlrev_b32 v4, 4, v4")
    a("s_mul_i32 s33, s52, 144")
    a("s_mul_i32 s34, s53, 80")
    a("s_lshl_b32 s35, s22, 7")
    a("s_add_u32 s35, s35, 0x%x" % YT)
    for n in range(3):
        a("s_add_u32 s36, s3, %d" % (4 * n))
        if n == 2:
            a("s_min_u32 s36, s36, 9")
        a("s_lshl_b32 s37, s36, 3")
        a("s_add_u32 s38, s37, s33")
        if n < 2: a("s_add_u32 s38, s38, s34")
        a("v_add_u32 v5, s38, v3")
        a("v_lshl_add_u32 v5, v5, 12, v4")
        a("s_lshl_b32 s36, s36, 10")
        a("s_add_u32 s36, s36, %d" % YOFF)
        a("s_mov_b32 m0, s36")
        a("s_nop 0")
        a("buffer_load_dwordx4 v5, s[12:15], s35 offen lds")
    fin_loads()
    a("s_waitcnt vmcnt(%d)" % (9 + 7))
    a("s_barrier")
    a("s_waitcnt vmcnt(7)")
    a("s_barrier")
    a("s_barrier")
    a("s_setprio 0")
    a("s_waitcnt vmcnt(0)")
    a("s_branch %s_fin" % name)
    a.label("%s_consumer" % name)
    ACC = 128; FB0 = 16; FB1 = 52
    vTa = [4, 4]; vTb = [6, 6]; vF = 8; vFh = 9
    bTa = 88; bTb = 90; bF = 92; bFh = 93
    a("v_and_b32 v3, 15, v2")
    a("v_lshrrev_b32 v10, 4, v2")
    a("s_and_b32 s26, s3, 1")
    a("s_lshl_b32 s26, s26, 2")
    a("v_add_u32 v10, s26, v10")
    a("v_lshrrev_b32 v11, 1, v3")
    a("v_xor_b32 v10, v10, v11")
    a("v_lshlrev_b32 v10, 4, v10")
    a("v_lshl_add_u32 v10, v3, 7, v10")
    a("s_lshr_b32 s26, s3, 1")
    a("s_lshl_b32 s26, s26, 13")
    a("v_add_u32 v10, s26, v10")
    a("s_lshl_b32 s26, s53, 12")
    a("v_add_u32 v%d, s26, v10" % bTa)
    a("s_xor_b32 s26, s26, 4096")
    a("v_add_u32 v%d, s26, v10" % bTb)
    a("v_lshrrev_b32 v10, 2, v2")
    a("v_mul_u32_u24 v10, %d, v10" % FS)
    a("v_and_b32 v11, 3, v2")
    a("v_lshl_add_u32 v10, v11, 3, v10")
    a("s_mul_i32 s26, s3, %d" % (32 * FS))
    a("s_add_u32 s26, s26, %d" % TREG)
    a("v_add_u32 v%d, s26, v10" % bF)
    a("v_add_u32 v%d, 128, v%d" % (bFh, bF))
    a("s_waitcnt lgkmcnt(0)")
    srd(a, 12, 6, WS_BYTES)
    srd(a, 8, 4, 2048 * 576 * 2)
    srd(a, 28, 16, 2048 * 576 * 2)
    stamp_setup(a, 3); stamp(a, 0)
    fin_loads()
    core = G.Core(a, ACC, FB0, FB1, FS, TREG, vTa, vTb, vF, vFh)
    trk = core.trk
    pairs = ((vTa[0], bTa), (vF, bF), (vTb[0], bTb), (vFh, bFh))
    for d, s_ in pairs: a("v_mov_b32 v%d, v%d" % (d, s_))
    for r in range(ACC, ACC + 72): a("v_mov_b32 v%d, 0" % r)
    a("s_mov_b32 s27, 0")
    a("s_mov_b32 s33, 0")
    a("s_barrier")
    stamp(a, 1)
    core.prime(0, core.reads(0, 0))
    def iteration(buf):
        trk.drain()
        a("s_barrier")
        a("s_add_u32 s27, s27, %d" % SLOT)
        a("s_cmp_eq_u32 s27, %d" % (R * SLOT))
        a("s_cselect_b32 s27, 0, s27")
        pre = ["v_add_u32 v%d, s27, v%d" % (d, s_) for d, s_ in pairs]
        core.phase(buf, core.reads(1 - buf, 0), pre=pre)
    a.label("%s_cloop" % name)
    iteration(0); iteration(1)
    a("s_add_u32 s33, s33, 1")
    a("s_cmp_lt_u32 s33, %d" % (NST // 2))
    a("s_cbranch_scc1 %s_cloop" % name)
    trk.drain()
    stamp(a, 2)
    a("s_mul_i32 s33, s3, %d" % (18 * 1024))
    a("v_lshlrev_b32 v10, 4, v2")
    a("v_add_u32 v11, s33, v10")
    a("s_nop 4")
    for n, (ft, tt) in enumerate(TILES):
        a("ds_write_b128 v11, %s offset:%d" % (vr(core.accr(ft, tt)), 1024 * tidx(ft, tt)))
        if n in (7, 13): a("s_waitcnt lgkmcnt(4)")
    a("s_waitcnt lgkmcnt(0) vmcnt(0)")
    a.label("%s_fin" % name)
    a("s_barrier")
    stamp(a, 3)
    a("v_lshlrev_b32 v10, 4, v2")
    a("v_lshrrev_b32 v11, 2, v2")
    a("v_lshlrev_b32 v11, 7, v11")
    a("v_and_b32 v12, 3, v2")
    a("v_lshl_add_u32 v11, v12, 3, v11")
    a("s_mov_b32 s33, 0xbfb8aa3b")
    PT = 16; YR = 64
    for s_ in range(3):
        b = 64 + 4 * s_
        if s_ == 2:
            a("s_cmp_ge_u32 s54, 2")
            a("s_cbranch_scc1 %s_rd" % name)
        a("v_add_u32 v4, s%d, v10" % (b + 2))
        a("v_add_u32 v5, s%d, v11" % (b + 1))
        for q in range(4):
            a("ds_read_b128 %s, v4 offset:%d" % (vr(PT + 16 * s_ + 4 * q), 18432 * q))
        a("ds_read_b64_tr_b16 %s, v5" % vr(YR + 2 * s_, 2))
    a.label("%s_rd" % name)
    T = 104
    for s_ in range(3):
        b = 64 + 4 * s_
        if s_ == 0: a("s_waitcnt lgkmcnt(5)")
        if s_ == 1: a("s_waitcnt lgkmcnt(0)")
        if s_ == 2:
            a("s_cmp_ge_u32 s54, 2")
            a("s_cbranch_scc1 %s_done" % name)
        o = PT + 16 * s_; X = XR + 2 * s_; Y = YR + 2 * s_; S_ = ST + 2 * s_
        for h in (0, 2):
            a("v_pk_add_f32 %s, %s, %s" % (vr(o + h, 2), vr(o + h, 2), vr(o + 4 + h, 2)))
            a("v_pk_add_f32 %s, %s, %s" % (vr(o + 8 + h, 2), vr(o + 8 + h, 2), vr(o + 12 + h, 2)))
        for h in (0, 2):
            a("v_pk_add_f32 %s, %s, %s" % (vr(o + h, 2), vr(o + h, 2), vr(o + 8 + h, 2)))
        rnd_pair(a, T + 20, o, o + 1); rnd_pair(a, T + 21, o + 2, o + 3)
        for r in range(4): a("v_mul_f32 v%d, s33, v%d" % (T + r, o + r))
        for r in range(4): a("v_exp_f32 v%d, v%d" % (T + r, T + r))
        a("v_lshlrev_b32 v%d, 16, v%d" % (T + 4, X)); a("v_and_b32 v%d, 0xffff0000, v%d" % (T + 5, X))
        a("v_lshlrev_b32 v%d, 16, v%d" % (T + 6, X + 1)); a("v_and_b32 v%d, 0xffff0000, v%d" % (T + 7, X + 1))
        for r in range(4): a("v_add_f32 v%d, 1.0, v%d" % (T + r, T + r))
        for r in range(4): a("v_rcp_f32 v%d, v%d" % (T + r, T + r))
        for r in range(4): a("v_sub_f32 v%d, v%d, v%d" % (T + 12 + r, T + 4 + r, S_))
        a("v_lshlrev_b32 v%d, 16, v%d" % (T + 8, Y)); a("v_and_b32 v%d, 0xffff0000, v%d" % (T + 9, Y))
        a("v_lshlrev_b32 v%d, 16, v%d" % (T + 10, Y + 1)); a("v_and_b32 v%d, 0xffff0000, v%d" % (T + 11, Y + 1))
        for r in range(4): a("v_mul_f32 v%d, v%d, v%d" % (o + r, o + r, T + r))
        rnd_pair(a, T + 20, T + 12, T + 13); rnd_pair(a, T + 21, T + 14, T + 15)
        rnd_pair(a, T + 22, o, o + 1); rnd_pair(a, T + 23, o + 2, o + 3)
        for r in range(4): a("v_mul_f32 v%d, v%d, v%d" % (T + 12 + r, T + 12 + r, S_ + 1))
        rnd_pair(a, T + 20, T + 12, T + 13); rnd_pair(a, T + 21, T + 14, T + 15)
        for r in range(4): a("v_mul_f32 v%d, v%d, v%d" % (T + 12 + r, T + 12 + r, T + 8 + r))
        rnd_pair(a, T + 20, T + 12, T + 13); rnd_pair(a, T + 21, T + 14, T + 15)
        for r in range(4): a("v_mul_f32 v%d, v%d, v%d" % (T + 12 + r, T + 12 + r, o + r))
        rnd_pair(a, T + 20, T + 12, T + 13); rnd_pair(a, T + 21, T + 14, T + 15)
        for r in range(4): a("v_add_f32 v%d, v%d, v%d" % (T + 12 + r, T + 12 + r, T + 4 + r))
        a("v_cvt_pk_bf16_f32 v%d, v%d, v%d" % (X, T + 12, T + 13))
        a("v_cvt_pk_bf16_f32 v%d, v%d, v%d" % (X + 1, T + 14, T + 15))
        a("buffer_store_dwordx2 %s, v13, s[28:31], s%d offen" % (vr(X, 2), b))
    a.label("%s_done" % name)
    stamp(a, 4)
    G.stamp_rt(a, 1)
    a.label("%s_end" % name)
    a("s_endpgm")
    return a.text(), kernel_desc(name, 256, 256), (name, 256, 512, R * SLOT + 10240)

def gen_k3c(name="k3_kernel", R=4):
    a = Asm()
    TREG = 16384; FS = 160; SLOT = TREG + 128 * FS; NST = 18
    YOFF = R * SLOT
    kernel_begin(a, name)
    a("s_load_dwordx2 s[6:7], s[0:1], 104")
    a("s_load_dwordx2 s[4:5], s[0:1], 0")
    a("s_load_dwordx2 s[16:17], s[0:1], 88")
    a("s_cmp_ge_u32 s2, 256")
    a("s_cbranch_scc1 %s_end" % name)
    a("v_lshrrev_b32 v1, 6, v0")
    a("v_and_b32 v2, 63, v0")
    a("v_readfirstlane_b32 s3, v1")
    a("s_and_b32 s20, s2, 7")
    a("s_lshr_b32 s21, s2, 3")
    a("s_and_b32 s22, s20, 3")
    a("s_lshl_b32 s22, s22, 3")
    a("s_and_b32 s23, s21, 7")
    a("s_add_u32 s22, s22, s23")
    a("s_lshr_b32 s23, s20, 2")
    a("s_lshl_b32 s23, s23, 2")
    a("s_lshr_b32 s24, s21, 3")
    a("s_add_u32 s23, s23, s24")
    a("s_lshr_b32 s52, s23, 1")
    a("s_and_b32 s53, s23, 1")
    XR = 200; ST = 208
    def fin_loads():
        a("v_and_b32 v3, 15, v2")
        a("v_lshrrev_b32 v10, 4, v2")
        a("v_mul_u32_u24 v13, 1152, v3")
        a("v_lshl_add_u32 v13, v10, 3, v13")
        a("v_lshlrev_b32 v12, 3, v3")
        for s_ in range(3):
            if s_ == 2:
                a("s_cmp_ge_u32 s54, 2")
                a("s_cbranch_scc1 %s_fl%d" % (name, fin_loads.cnt))
            b = 64 + 4 * s_
            if s_ < 2:
                a("s_add_u32 s36, s54, %d" % (8 * s_))
                a("s_lshr_b32 s37, s36, 2")
                a("s_and_b32 s38, s36, 3")
                a("s_mul_i32 s39, s53, 160")
                a("s_lshl_b32 s40, s37, 5")
                a("s_add_u32 s39, s39, s40")
            else:
                a("s_add_u32 s36, s54, 16")
                a("s_mov_b32 s37, 4")
                a("s_mov_b32 s38, s54")
                a("s_mov_b32 s39, 128")
            a("s_lshl_b32 s40, s53, 1")
            a("s_add_u32 s38, s38, s40")
            a("s_and_b32 s38, s38, 3")
            a("s_lshl_b32 s40, s22, 2")
            a("s_add_u32 s40, s40, s38")
            a("s_lshl_b32 s40, s40, 4")
            a("s_mul_i32 s%d, s40, 1152" % b)
            a("s_add_u32 s%d, s%d, s39" % (b, b))
            a("s_mul_i32 s39, s52, 288")
            a("s_add_u32 s%d, s%d, s39" % (b, b))
            a("s_lshl_b32 s%d, s37, 11" % (b + 1))
            a("s_lshl_b32 s39, s38, 5")
            a("s_add_u32 s%d, s%d, s39" % (b + 1, b + 1))
            a("s_add_u32 s%d, s%d, %d" % (b + 1, b + 1, YOFF))
            a("s_lshl_b32 s%d, s36, 10" % (b + 2))
            a("s_lshl_b32 s40, s40, 3")
            a("s_add_u32 s40, s40, 0x%x" % STATS1)
            a("buffer_load_dwordx2 %s, v13, s[8:11], s%d offen" % (vr(XR + 2 * s_, 2), b))
            a("buffer_load_dwordx2 %s, v12, s[12:15], s40 offen" % vr(ST + 2 * s_, 2))
        a.label("%s_fl%d" % (name, fin_loads.cnt))
        fin_loads.cnt += 1
    fin_loads.cnt = 0
    a("s_mov_b32 s54, s3")
    a("s_cmp_lt_u32 s3, 4")
    a("s_cbranch_scc1 %s_consumer" % name)
    a("s_setprio 3")
    a("s_sub_u32 s3, s3, 4")
    a("v_lshlrev_b32 v14, 4, v2")
    a("s_mul_i32 s26, s22, %d" % (36 * 8192))
    a("s_lshl_b32 s24, s3, 12")
    a("s_add_u32 s26, s26, s24")
    a("s_add_u32 s26, s26, 0x%x" % PIMG)
    a("s_mul_i32 s27, s23, %d" % (18 * 20480))
    a("s_mul_i32 s25, s3, 5120")
    a("s_add_u32 s27, s27, s25")
    a("s_add_u32 s27, s27, 0x%x" % WOT)
    a("s_add_u32 s25, s25, %d" % TREG)
    a("s_mov_b32 s33, 0")
    a("s_waitcnt lgkmcnt(0)")
    srd(a, 12, 6, WS_BYTES)
    def issue():
        a("s_add_u32 s35, s33, s24")
        a("s_mov_b32 m0, s35")
        a("s_add_u32 s36, s33, s25")
        for n in range(4):
            a("buffer_load_dwordx4 v14, s[12:15], s26 offen offset:%d lds" % (n * 1024))
        a("s_mov_b32 m0, s36")
        a("s_add_u32 s37, s27, 4096")
        for n in range(4):
            a("buffer_load_dwordx4 v14, s[12:15], s27 offen offset:%d lds" % (n * 1024))
        a("s_add_u32 s36, s36, 4096")
        a("s_mov_b32 m0, s36")
        a("s_add_u32 s26, s26, 16384")
        a("buffer_load_dwordx4 v14, s[12:15], s37 offen lds")
        a("s_add_u32 s27, s27, 20480")
        a("s_add_u32 s33, s33, %d" % SLOT)
        a("s_cmp_eq_u32 s33, %d" % (R * SLOT))
        a("s_cselect_b32 s33, 0, s33")
    issue(); issue()
    a("s_add_u32 s3, s3, 4"); stamp_setup(a, 3); stamp(a, 0); a("s_sub_u32 s3, s3, 4")
    srd(a, 8, 4, 2048 * 576 * 2)
    srd(a, 28, 16, 2048 * 576 * 2)
    a("s_waitcnt vmcnt(9)")
    a("s_barrier")
    issue(); issue()
    a("s_waitcnt vmcnt(18)")
    a("s_barrier")
    a("s_mov_b32 s34, 0")
    a.label("%s_lloop" % name)
    issue()
    a("s_waitcnt vmcnt(18)")
    a("s_barrier")
    a("s_add_u32 s34, s34, 1")
    a("s_cmp_lt_u32 s34, %d" % (NST - R))
    a("s_cbranch_scc1 %s_lloop" % name)
    a("v_lshrrev_b32 v3, 3, v2")
    a("v_and_b32 v4, 7, v2")
    a("v_lshlrev_b32 v4, 4, v4")
    a("s_mul_i32 s33, s52, 144")
    a("s_mul_i32 s34, s53, 80")
    a("s_lshl_b32 s35, s22, 7")
    a("s_add_u32 s35, s35, 0x%x" % YT)
    for n in range(3):
        a("s_add_u32 s36, s3, %d" % (4 * n))
        if n == 2:
            a("s_min_u32 s36, s36, 9")
        a("s_lshl_b32 s37, s36, 3")
        a("s_add_u32 s38, s37, s33")
        if n < 2: a("s_add_u32 s38, s38, s34")
        a("v_add_u32 v5, s38, v3")
        a("v_lshl_add_u32 v5, v5, 12, v4")
        a("s_lshl_b32 s36, s36, 10")
        a("s_add_u32 s36, s36, %d" % YOFF)
        a("s_mov_b32 m0, s36")
        a("s_nop 0")
        a("buffer_load_dwordx4 v5, s[12:15], s35 offen lds")
    fin_loads()
    a("s_waitcnt vmcnt(%d)" % (9 + 7))
    a("s_barrier")
    a("s_waitcnt vmcnt(7)")
    a("s_barrier")
    a("s_barrier")
    a("s_setprio 0")
    a("s_waitcnt vmcnt(0)")
    a("s_branch %s_fin" % name)
    a.label("%s_consumer" % name)
    ACC = 128; FB0 = 16; FB1 = 52
    vTa = [4, 4]; vTb = [6, 6]; vF = 8; vFh = 9
    bTa = 88; bTb = 90; bF = 92; bFh = 93
    a("v_and_b32 v3, 15, v2")
    a("v_lshrrev_b32 v10, 5, v2")
    a("v_lshlrev_b32 v10, 11, v10")
    a("v_bfe_u32 v11, v2, 4, 1")
    a("v_lshl_add_u32 v10, v11, 4, v10")
    a("v_lshl_add_u32 v10, v3, 5, v10")
    a("s_lshl_b32 s26, s3, 12")
    a("v_add_u32 v10, s26, v10")
    a("s_lshl_b32 s26, s53, 10")
    a("v_add_u32 v%d, s26, v10" % bTa)
    a("s_xor_b32 s26, s26, 1024")
    a("v_add_u32 v%d, s26, v10" % bTb)
    a("v_lshrrev_b32 v10, 2, v2")
    a("v_mul_u32_u24 v10, %d, v10" % FS)
    a("v_and_b32 v11, 3, v2")
    a("v_lshl_add_u32 v10, v11, 3, v10")
    a("s_mul_i32 s26, s3, %d" % (32 * FS))
    a("s_add_u32 s26, s26, %d" % TREG)
    a("v_add_u32 v%d, s26, v10" % bF)
    a("v_add_u32 v%d, 128, v%d" % (bFh, bF))
    a("s_waitcnt lgkmcnt(0)")
    srd(a, 12, 6, WS_BYTES)
    srd(a, 8, 4, 2048 * 576 * 2)
    srd(a, 28, 16, 2048 * 576 * 2)
    stamp_setup(a, 3); stamp(a, 0)
    fin_loads()
    core = G.Core(a, ACC, FB0, FB1, FS, TREG, vTa, vTb, vF, vFh, TT=512)
    trk = core.trk
    pairs = ((vTa[0], bTa), (vF, bF), (vTb[0], bTb), (vFh, bFh))
    for d, s_ in pairs: a("v_mov_b32 v%d, v%d" % (d, s_))
    for r in range(ACC, ACC + 72): a("v_mov_b32 v%d, 0" % r)
    a("s_mov_b32 s27, 0")
    a("s_mov_b32 s33, 0")
    a("s_barrier")
    stamp(a, 1)
    core.prime(0, core.reads(0, 0))
    def iteration(buf):
        trk.drain()
        a("s_barrier")
        a("s_add_u32 s27, s27, %d" % SLOT)
        a("s_cmp_eq_u32 s27, %d" % (R * SLOT))
        a("s_cselect_b32 s27, 0, s27")
        pre = ["v_add_u32 v%d, s27, v%d" % (d, s_) for d, s_ in pairs]
        core.phase(buf, core.reads(1 - buf, 0), pre=pre)
    a.label("%s_cloop" % name)
    iteration(0); iteration(1)
    a("s_add_u32 s33, s33, 1")
    a("s_cmp_lt_u32 s33, %d" % (NST // 2))
    a("s_cbranch_scc1 %s_cloop" % name)
    trk.drain()
    stamp(a, 2)
    a("s_mul_i32 s33, s3, %d" % (18 * 1024))
    a("v_lshlrev_b32 v10, 4, v2")
    a("v_add_u32 v11, s33, v10")
    a("s_nop 4")
    for n, (ft, tt) in enumerate(TILES):
        a("ds_write_b128 v11, %s offset:%d" % (vr(core.accr(ft, tt)), 1024 * tidx(ft, tt)))
        if n in (7, 13): a("s_waitcnt lgkmcnt(4)")
    a("s_waitcnt lgkmcnt(0) vmcnt(0)")
    a.label("%s_fin" % name)
    a("s_barrier")
    stamp(a, 3)
    a("v_lshlrev_b32 v10, 4, v2")
    a("v_lshrrev_b32 v11, 2, v2")
    a("v_lshlrev_b32 v11, 7, v11")
    a("v_and_b32 v12, 3, v2")
    a("v_lshl_add_u32 v11, v12, 3, v11")
    a("s_mov_b32 s33, 0xbfb8aa3b")
    PT = 16; YR = 64
    for s_ in range(3):
        b = 64 + 4 * s_
        if s_ == 2:
            a("s_cmp_ge_u32 s54, 2")
            a("s_cbranch_scc1 %s_rd" % name)
        a("v_add_u32 v4, s%d, v10" % (b + 2))
        a("v_add_u32 v5, s%d, v11" % (b + 1))
        for q in range(4):
            a("ds_read_b128 %s, v4 offset:%d" % (vr(PT + 16 * s_ + 4 * q), 18432 * q))
        a("ds_read_b64_tr_b16 %s, v5" % vr(YR + 2 * s_, 2))
    a.label("%s_rd" % name)
    T = 104
    for s_ in range(3):
        b = 64 + 4 * s_
        if s_ == 0: a("s_waitcnt lgkmcnt(5)")
        if s_ == 1: a("s_waitcnt lgkmcnt(0)")
        if s_ == 2:
            a("s_cmp_ge_u32 s54, 2")
            a("s_cbranch_scc1 %s_done" % name)
        o = PT + 16 * s_; X = XR + 2 * s_; Y = YR + 2 * s_; S_ = ST + 2 * s_
        for h in (0, 2):
            a("v_pk_add_f32 %s, %s, %s" % (vr(o + h, 2), vr(o + h, 2), vr(o + 4 + h, 2)))
            a("v_pk_add_f32 %s, %s, %s" % (vr(o + 8 + h, 2), vr(o + 8 + h, 2), vr(o + 12 + h, 2)))
        for h in (0, 2):
            a("v_pk_add_f32 %s, %s, %s" % (vr(o + h, 2), vr(o + h, 2), vr(o + 8 + h, 2)))
        rnd_pair(a, T + 20, o, o + 1); rnd_pair(a, T + 21, o + 2, o + 3)
        for r in range(4): a("v_mul_f32 v%d, s33, v%d" % (T + r, o + r))
        for r in range(4): a("v_exp_f32 v%d, v%d" % (T + r, T + r))
        a("v_lshlrev_b32 v%d, 16, v%d" % (T + 4, X)); a("v_and_b32 v%d, 0xffff0000, v%d" % (T + 5, X))
        a("v_lshlrev_b32 v%d, 16, v%d" % (T + 6, X + 1)); a("v_and_b32 v%d, 0xffff0000, v%d" % (T + 7, X + 1))
        for r in range(4): a("v_add_f32 v%d, 1.0, v%d" % (T + r, T + r))
        for r in range(4): a("v_rcp_f32 v%d, v%d" % (T + r, T + r))
        for r in range(4): a("v_sub_f32 v%d, v%d, v%d" % (T + 12 + r, T + 4 + r, S_))
        a("v_lshlrev_b32 v%d, 16, v%d" % (T + 8, Y)); a("v_and_b32 v%d, 0xffff0000, v%d" % (T + 9, Y))
        a("v_lshlrev_b32 v%d, 16, v%d" % (T + 10, Y + 1)); a("v_and_b32 v%d, 0xffff0000, v%d" % (T + 11, Y + 1))
        for r in range(4): a("v_mul_f32 v%d, v%d, v%d" % (o + r, o + r, T + r))
        rnd_pair(a, T + 20, T + 12, T + 13); rnd_pair(a, T + 21, T + 14, T + 15)
        rnd_pair(a, T + 22, o, o + 1); rnd_pair(a, T + 23, o + 2, o + 3)
        for r in range(4): a("v_mul_f32 v%d, v%d, v%d" % (T + 12 + r, T + 12 + r, S_ + 1))
        rnd_pair(a, T + 20, T + 12, T + 13); rnd_pair(a, T + 21, T + 14, T + 15)
        for r in range(4): a("v_mul_f32 v%d, v%d, v%d" % (T + 12 + r, T + 12 + r, T + 8 + r))
        rnd_pair(a, T + 20, T + 12, T + 13); rnd_pair(a, T + 21, T + 14, T + 15)
        for r in range(4): a("v_mul_f32 v%d, v%d, v%d" % (T + 12 + r, T + 12 + r, o + r))
        rnd_pair(a, T + 20, T + 12, T + 13); rnd_pair(a, T + 21, T + 14, T + 15)
        for r in range(4): a("v_add_f32 v%d, v%d, v%d" % (T + 12 + r, T + 12 + r, T + 4 + r))
        a("v_cvt_pk_bf16_f32 v%d, v%d, v%d" % (X, T + 12, T + 13))
        a("v_cvt_pk_bf16_f32 v%d, v%d, v%d" % (X + 1, T + 14, T + 15))
        a("buffer_store_dwordx2 %s, v13, s[28:31], s%d offen" % (vr(X, 2), b))
    a.label("%s_done" % name)
    stamp(a, 4)
    G.stamp_rt(a, 1)
    a.label("%s_end" % name)
    a("s_endpgm")
    return a.text(), kernel_desc(name, 256, 256), (name, 256, 512, R * SLOT + 10240)

def gen_kw(name="kw_kernel"):
    return G.gen_k0(name)

gen_k2 = G.gen_k2; gen_k3 = G.gen_k3; gen_kc = G.gen_kc

if __name__ == "__main__":
    which = sys.argv[1]; out = sys.argv[2]
    if len(sys.argv) > 3: DBG.update(sys.argv[3].split(","))
    ks = [globals()["gen_" + w]() for w in which.split(",")]
    if "wt" in DBG:
        import re
        ks = [(re.sub(r"(buffer_store_dwordx[24] [^\n]*s\[12:15\][^\n]*?)( sc1)?\n", lambda m: m.group(1) + " sc1\n", k[0]),) + k[1:] for k in ks]
    if "nts" in DBG:
        import re
        ks = [(re.sub(r"(buffer_store_dwordx4 [^\n]*s\[12:15\][^\n]*?)\n", lambda m: m.group(1) + (" nt\n" if "sc1" not in m.group(1) else "\n"), k[0]),) + k[1:] for k in ks]
    open(out, "w").write(assemble_file([k[2] for k in ks], "".join(k[0] for k in ks), [k[1] for k in ks]))
```

```python
import sys, copy
from asmgen import *
import gen as G
import gen2 as G2
import gen3 as G3
from gen import (ZIMG, Z1IMG, PIMG, WOT, KVT, YT, STATS2, STATS1, WS_BYTES, DBG, LdsTracker, vr, stamp, stamp_setup,
                 rnd_pair, f32, emit_xg_reduce, emit_ln_finish)
from gen2 import VmTracker, TILES, tidx, emit_fold_gelu, gelu_consts, SPIN_MAX
from gen3 import emit_kv_loads, emit_kv_compute, emit_wot_loads

def emit_code_prefetch(a, name, nload=3):
    if "cpf" not in DBG: return
    a("s_getpc_b64 s[40:41]")
    a.label("%s_pc" % name)
    a("s_sub_u32 s40, s40, %s_pc-%s" % (name, name))
    a("s_subb_u32 s41, s41, 0")
    a("s_and_b32 s41, s41, 0xffff")
    a("s_mov_b32 s42, code_end_lbl-%s" % name)
    a("s_mov_b32 s43, 0x00020000")
    a("v_lshlrev_b32 v10, 7, v2")
    a("s_mul_i32 s36, s3, %d" % (nload * 8192))
    for n in range(nload):
        a("buffer_load_dword v200, v10, s[40:43], s36 offen")
        if n < nload - 1: a("s_add_u32 s36, s36, 8192")

def gen_k1h(name="k1_kernel", R=4):
    a = Asm()
    RB = 4096; SLOT = 34816; TREG = 16384; FS = 288; RST = 0
    LDSB = RB + R * SLOT
    def capture(f, *args):
        lb = len(a.lines); f(*args); out = a.lines[lb:]; del a.lines[lb:]; return out
    kernel_begin(a, name)
    a("s_load_dwordx2 s[80:81], s[0:1], 0")
    a("s_load_dwordx2 s[4:5], s[0:1], 56")
    a("s_load_dwordx2 s[6:7], s[0:1], 104")
    a("s_load_dwordx2 s[18:19], s[0:1], 96")
    a("s_cmp_ge_u32 s2, 256")
    a("s_cbranch_scc1 %s_end" % name)
    a("v_lshrrev_b32 v1, 6, v0")
    a("v_and_b32 v2, 63, v0")
    a("v_readfirstlane_b32 s3, v1")
    G2.tile_ij(a)
    a("s_lshr_b32 s98, s3, 2")
    a("s_mov_b32 s54x, 0".replace("s54x", "s99"))
    a("s_and_b32 s3, s3, 3")
    a("s_lshr_b32 s24, s3, 1")
    a("s_and_b32 s25, s3, 1")
    a("v_and_b32 v3, 15, v2")
    VT = 204; VF = 208
    def loader_setup():
        a("v_lshrrev_b32 v5, 3, v2")
        a("v_and_b32 v4, 7, v2")
        a("s_lshl_b32 s36, s3, 5")
        a("v_add_u32 v5, s36, v5")
        a("v_lshrrev_b32 v7, 4, v2")
        a("v_xor_b32 v7, v7, v4")
        a("v_mul_u32_u24 v6, 1152, v5")
        a("v_lshl_add_u32 v%d, v7, 4, v6" % VT)
        a("v_xor_b32 v%d, 64, v%d" % (VT + 1, VT))
        a("v_add_u32 v%d, %d, v%d" % (VT + 1, 9216 - 1024, VT + 1))
        a("v_add_u32 v%d, %d, v%d" % (VT + 2, 2 * (9216 - 1024), VT))
        a("v_add_u32 v%d, %d, v%d" % (VT + 3, 2 * (9216 - 1024), VT + 1))
        a("s_lshl_b32 s84, s3, 12")
        a("s_add_u32 s84, s84, %d" % RB)
        a("s_lshl_b32 s85, s3, 9")
        a("s_add_u32 s85, s85, %d" % (RB + TREG + 16384))
    def loader_setup2():
        for n in range(5):
            if n < 4:
                a("s_lshl_b32 s36, s3, 8")
                a("s_add_u32 s36, s36, %d" % (64 * n))
            else:
                a("s_lshl_b32 s36, s3, 5")
                a("s_add_u32 s36, s36, 1024")
            a("v_add_u32 v6, s36, v2")
            a("v_mul_u32_u24 v7, 3641, v6")
            a("v_lshrrev_b32 v7, 16, v7")
            a("v_mul_u32_u24 v8, 18, v7")
            a("v_sub_u32 v8, v6, v8")
            a("v_and_b32 v9, 35, v7")
            a("v_bfe_u32 v6, v7, 2, 2")
            a("v_lshl_add_u32 v9, v6, 3, v9")
            a("v_bfe_u32 v6, v7, 4, 1")
            a("v_lshl_add_u32 v9, v6, 2, v9")
            a("v_mul_u32_u24 v9, 9216, v9")
            a("v_lshl_add_u32 v%d, v8, 4, v9" % (VF + n))
            if 0 < n < 4: a("v_subrev_u32 v%d, %d, v%d" % (VF + n, 1024 * n, VF + n))
    def issueT(g):
        st = g % 9
        a("s_add_u32 s86, s84, %d" % ((g % R) * SLOT))
        a("s_mov_b32 m0, s86")
        a("s_add_u32 s87, s82, %d" % (128 * st))
        for n in range(4):
            a("buffer_load_dwordx4 v%d, s[28:31], s87 offen offset:%d lds" % (VT + n, 1024 * n))
    def issueF(g):
        st = g % 9
        a("s_add_u32 s86, s84, %d" % ((g % R) * SLOT + TREG))
        a("s_mov_b32 m0, s86")
        a("s_add_u32 s87, s83, %d" % (64 * 9216 * st + (4608 if g < 9 else 0)))
        for n in range(4):
            a("buffer_load_dwordx4 v%d, s[8:11], s87 offen offset:%d lds" % (VF + n, 1024 * n))
        a("s_add_u32 s86, s85, %d" % ((g % R) * SLOT))
        a("s_mov_b32 m0, s86")
        a("s_mov_b64 exec, 0xffffffff")
        a("buffer_load_dwordx4 v%d, s[8:11], s87 offen lds" % (VF + 4))
        a("s_mov_b64 exec, -1")
    def srds_main():
        srd(a, 28, 80, 2048 * 576 * 2)
        srd(a, 8, 4, 576 * 4608 * 2)
        srd(a, 12, 6, WS_BYTES)
        srd(a, 60, 18, 256)
        a("s_mul_i32 s82, s22, %d" % (128 * 1152))
        a("s_mul_i32 s83, s23, 288")
    ACC = 128; FB = [16, 52]; CS = 216; ONE = 236
    vTa = [4, 5]; vTb = [6, 7]; vF = 8; vFh = 9
    bTa = [88, 89]; bTb = [90, 91]; bF = 92; bFh = 93
    def mma_setup():
        a("v_lshrrev_b32 v10, 4, v2")
        a("v_lshrrev_b32 v11, 1, v3")
        a("v_xor_b32 v10, v10, v11")
        a("v_lshlrev_b32 v10, 4, v10")
        a("v_lshl_add_u32 v10, v3, 7, v10")
        a("s_lshl_b32 s26, s24, 13")
        a("s_add_u32 s26, s26, %d" % RB)
        a("v_add_u32 v10, s26, v10")
        a("s_lshl_b32 s26, s25, 12")
        a("v_add_u32 v%d, s26, v10" % bTa[0])
        a("s_xor_b32 s26, s26, 4096")
        a("v_add_u32 v%d, s26, v10" % bTb[0])
        a("v_xor_b32 v%d, 64, v%d" % (bTa[1], bTa[0]))
        a("v_xor_b32 v%d, 64, v%d" % (bTb[1], bTb[0]))
        a("v_lshrrev_b32 v10, 2, v2")
        a("v_mul_u32_u24 v10, %d, v10" % FS)
        a("v_and_b32 v11, 3, v2")
        a("v_lshl_add_u32 v10, v11, 3, v10")
        a("v_add_u32 v10, %d, v10" % (RB + TREG))
        a("s_mul_i32 s26, s25, 160")
        a("v_add_u32 v%d, s26, v10" % bF)
        a("v_add_u32 v%d, 128, v10" % bFh)
        for r in range(ACC, ACC + 72): a("v_mov_b32 v%d, 0" % r)
        for r in range(CS, CS + 20): a("v_mov_b32 v%d, 0" % r)
        for r in range(ONE, ONE + 4): a("v_mov_b32 v%d, 0x3f803f80" % r)
    def mma_addr(slot):
        a("s_mov_b32 s27, %d" % (slot * SLOT))
        for d, s_ in ((vTa[0], bTa[0]), (vTb[0], bTb[0]), (vTa[1], bTa[1]), (vTb[1], bTb[1]), (vF, bF), (vFh, bFh)):
            a("v_add_u32 v%d, s27, v%d" % (d, s_))
    core = G.Core(a, ACC, FB[0], FB[1], FS, TREG, vTa, vTb, vF, vFh)
    trk = core.trk
    a("s_cmp_eq_u32 s98, 0")
    a("s_cbranch_scc1 %s_A0" % name)
    a("s_setprio 3")
    loader_setup()
    a("s_waitcnt lgkmcnt(0)")
    srds_main()
    vm = VmTracker(a)
    def issue(g, vmx):
        issueT(g); issueF(g); vmx.issue("S%d" % g, 9)
    issueT(0)
    loader_setup2()
    issueF(0); vm.issue("S0", 9)
    issue(1, vm); issue(2, vm); issue(3, vm)
    a("s_add_u32 s3, s3, 4"); stamp_setup(a, 1); stamp(a, 0); a("s_sub_u32 s3, s3, 4")
    mma_setup()
    RA = 96; XB = 112
    for r in range(RA, RA + 16): a("v_mov_b32 v%d, 0" % r)
    a("v_lshrrev_b32 v10, 4, v2")
    a("v_lshrrev_b32 v11, 1, v3")
    a("v_xor_b32 v10, v10, v11")
    a("v_lshlrev_b32 v10, 4, v10")
    a("v_lshl_add_u32 v10, v3, 7, v10")
    a("v_add_u32 v12, s84, v10")
    a("v_xor_b32 v13, 64, v12")
    def rs_rd(g):
        a("v_add_u32 v10, %d, v12" % ((g % R) * SLOT))
        a("v_add_u32 v11, %d, v13" % ((g % R) * SLOT))
        for h in range(2):
            for n in range(2):
                a("ds_read_b128 %s, v%d offset:%d" % (vr(XB + 8 * h + 4 * n), 10 + h, 2048 * n))
    def rs_do():
        for h in range(2):
            for n in range(2):
                x = XB + 8 * h + 4 * n
                a("v_mfma_f32_16x16x32_bf16 %s, %s, %s, %s" % (vr(RA + 4 * n), vr(ONE), vr(x), vr(RA + 4 * n)))
                a("v_mfma_f32_16x16x32_bf16 %s, %s, %s, %s" % (vr(RA + 8 + 4 * n), vr(x), vr(x), vr(RA + 8 + 4 * n)))
    def interleave(dma, comp, vmx=None):
        groups = []; cur = []
        for l in dma:
            cur.append(l)
            if "buffer_load" in l and not any("exec, 0xffffffff" in x for x in cur[-2:]):
                groups.append(cur); cur = []
            elif "exec, -1" in l:
                groups.append(cur); cur = []
        if cur: groups.append(cur)
        ns = max(1, len(groups))
        per = (len(comp) + ns - 1) // ns
        for g in groups:
            a.lines.extend(g)
            a.lines.extend(comp[:per]); comp = comp[per:]
        a.lines.extend(comp)
    vm.wait(["S0"])
    a("s_barrier")
    stamp(a, 1)
    rs_rd(0)
    vm.wait(["S1"])
    a("s_barrier")
    for k in range(9):
        a("s_waitcnt lgkmcnt(0)")
        dma = capture(lambda: (issueT(k + 3), issueF(k + 3))) if k >= 1 else []
        interleave(dma, capture(rs_do))
        if k >= 1: vm.issue("S%d" % (k + 3), 9)
        if k < 8:
            rs_rd(k + 1)
        else:
            a("s_nop 7")
            a("v_lshrrev_b32 v10, 4, v2")
            a("v_lshrrev_b32 v11, 2, v3")
            a("v_and_b32 v12, 3, v3")
            for n in range(2):
                G_ = RA + 8 + 4 * n
                for r in range(1, 4):
                    a("v_cmp_eq_u32 vcc, %d, v12" % r)
                    a("s_nop 1")
                    a("v_cndmask_b32 v%d, v%d, v%d, vcc" % (G_, G_, G_ + r))
            ML = 112
            for n in range(2):
                emit_ln_finish(a, RA + 4 * n, RA + 8 + 4 * n, 576, ML + 2 * n, ML + 2 * n + 1, 120)
                a("v_mov_b32 v%d, v%d" % (117 + 2 * n, ML + 2 * n + 1))
                a("v_sub_f32 v%d, 0, v%d" % (116 + 2 * n, ML + 2 * n))
            a("s_lshl_b32 s35, s3, 8")
            a("v_lshlrev_b32 v13, 3, v3")
            a("v_add_u32 v12, s35, v13")
            a("v_cmp_eq_u32 vcc, v10, v11")
            a("s_and_saveexec_b64 s[36:37], vcc")
            for n in range(2):
                a("ds_write_b64 v12, %s offset:%d" % (vr(116 + 2 * n, 2), RST + 128 * n))
            a("s_mov_b64 exec, s[36:37]")
            a("s_cmp_lg_u32 s23, 0")
            a("s_cbranch_scc1 %s_nost1" % name)
            a("s_lshl_b32 s35, s22, 7")
            a("s_lshl_b32 s36, s3, 5")
            a("s_add_u32 s35, s35, s36")
            a("s_lshl_b32 s35, s35, 3")
            a("s_add_u32 s35, s35, 0x%x" % STATS1)
            a("v_mov_b32 v11, 0x7ffffff0")
            a("v_cndmask_b32 v13, v11, v13, vcc")
            for n in range(2):
                a("buffer_store_dwordx2 %s, v13, s[12:15], s35 offen offset:%d" % (vr(ML + 2 * n, 2), 128 * n))
            a.label("%s_nost1" % name)
            mma_addr(9 % R)
            a("s_mov_b32 s33, 0")
            a("s_setprio 0")
        vm.wait(["S%d" % (k + 2)], "lgkmcnt(0)" if k == 8 else "")
        if k < 8: a("s_barrier")
    a("s_branch %s_mma" % name)
    a.label("%s_A0" % name)
    emit_code_prefetch(a, name)
    a("s_load_dwordx4 s[64:67], s[0:1], 8")
    a("s_load_dwordx2 s[76:77], s[0:1], 24")
    a("s_load_dwordx2 s[90:91], s[0:1], 64")
    mma_setup()
    loader_setup(); loader_setup2()
    a("s_waitcnt lgkmcnt(0)")
    srds_main()
    srd(a, 68, 66, 2048 * 576 * 2)
    a("s_mov_b32 s88, s64"); a("s_mov_b32 s89, s65")
    srd(a, 64, 88, 2048 * 576 * 2)
    srd(a, 72, 76, 576 * 8)
    srd(a, 92, 90, 2048 * 2048 * 2)
    stamp_setup(a, 1); stamp(a, 0)
    def gran_addr():
        a("v_lshrrev_b32 v10, 4, v2")
        a("s_lshl_b32 s36, s25, 1")
        a("v_add_u32 v11, s36, v10")
        a("v_and_b32 v11, 3, v11")
        a("v_lshl_add_u32 v11, v11, 4, v3")
        a("v_lshlrev_b32 v94, 8, v11")
        a("s_lshl_b32 s59, s22, 7")
        a("s_lshl_b32 s36, s24, 6")
        a("s_add_u32 s59, s59, s36")
        a("s_lshl_b32 s59, s59, 8")
        a("s_add_u32 s59, s59, 0x%x" % STATS2)
        a("s_lshl_b32 s36, s23, 1")
        a("s_add_u32 s36, s36, s25")
        a("s_lshl_b32 s36, s36, 3")
        a("s_add_u32 s58, s36, s59")
    gran_addr()
    a("v_mov_b32 v12, 0"); a("v_mov_b32 v13, 0x80000000")
    a("buffer_store_dwordx2 v[12:13], v94, s[12:15], s58 offen sc1")
    mma_addr(0)
    a("s_mov_b32 s33, 0")
    a("s_barrier")
    stamp(a, 1)
    a.label("%s_mma" % name)
    core.prime(0, core.reads(0, 0))
    trk.drain()
    def mfmas(buf):
        L = []
        for ft in range(5):
            A = core.F(buf, ft)
            for tt in range(4 if ft < 4 else 2):
                c = core.accr(ft, tt); B = core.T(buf, tt)
                L.append(("v_mfma_f32_16x16x32_bf16 %s, %s, %s, %s" % (vr(c), vr(A), vr(B), vr(c)), list(range(A, A + 4)) + list(range(B, B + 4))))
            L.append(("v_mfma_f32_16x16x32_bf16 %s, %s, %s, %s" % (vr(CS + 4 * ft), vr(A), vr(ONE), vr(CS + 4 * ft)), list(range(A, A + 4))))
        return L
    def phase(buf, pend):
        for (m, regs) in mfmas(buf):
            trk.need(regs)
            a(m)
            while pend:
                k, t = pend.pop(0)
                if k == "x":
                    a(t)
                    if t.startswith("s_"): continue
                else:
                    a(t[0]); trk.issue(t[1])
                break
        for k, t in pend:
            if k == "x": a(t)
            else: a(t[0]); trk.issue(t[1])
    def iteration():
        a("s_waitcnt vmcnt(0)")
        a("s_barrier")
        rd = [("r", t) for t in core.reads(1, 1)]
        upd = ["s_add_u32 s27, s27, %d" % SLOT, "s_cmp_eq_u32 s27, %d" % (R * SLOT), "s_cselect_b32 s27, 0, s27"]
        tail = ["v_add_u32 v%d, s27, v%d" % (d, s_) for d, s_ in ((vTa[0], bTa[0]), (vF, bF), (vTb[0], bTb[0]), (vFh, bFh))]
        phase(0, rd[:1] + [("x", u) for u in upd] + rd[1:] + [("x", u) for u in tail])
        rd = [("r", t) for t in core.reads(0, 0)]
        tail = ["v_add_u32 v%d, s27, v%d" % (d, s_) for d, s_ in ((vTa[1], bTa[1]), (vTb[1], bTb[1]))] + ["s_add_u32 s33, s33, 1"]
        phase(1, rd + [("x", u) for u in tail])
    a.label("%s_cloop" % name)
    lb = len(a.lines); iteration(); st = copy.deepcopy(trk.out); del a.lines[lb:]; trk.out = copy.deepcopy(st)
    iteration()
    assert [sorted(x) for x in trk.out] == [sorted(x) for x in st]
    a("s_cmp_lt_u32 s33, 9")
    a("s_cbranch_scc1 %s_cloop" % name)
    trk.drain()
    stamp(a, 2)
    MR = 100; T = 72; ZP = 16
    def epi_in():
        gelu_consts(a)
        a("s_lshl_b32 s36, s24, 9")
        a("s_lshl_b32 s37, s25, 8")
        a("s_add_u32 s38, s36, s37")
        a("s_xor_b32 s37, s37, 256")
        a("s_add_u32 s39, s36, s37")
        a("v_lshlrev_b32 v10, 3, v3")
        a("v_add_u32 v11, s38, v10")
        a("ds_read_b64 %s, v11 offset:%d" % (vr(MR, 2), RST))
        a("ds_read_b64 %s, v11 offset:%d" % (vr(MR + 2, 2), RST + 128))
        a("v_add_u32 v11, s39, v10")
        a("ds_read_b64 %s, v11 offset:%d" % (vr(MR + 4, 2), RST))
        a("ds_read_b64 %s, v11 offset:%d" % (vr(MR + 6, 2), RST + 128))
        a("s_waitcnt lgkmcnt(0)")
    S = [108, 110, 52, 54]; Q = [109, 111, 53, 55]
    def gelu_ft(ft, stats):
        tts = range(4 if ft < 4 else 2)
        emit_fold_gelu(a, [(core.accr(ft, tt), CS + 4 * ft, MR + 2 * tt, ZP + 2 * tidx(ft, tt)) for tt in tts], T)
        if stats:
            for d in range(2):
                for tt in tts:
                    p = ZP + 2 * tidx(ft, tt) + d
                    a("v_dot2_f32_bf16 v%d, v%d, v%d, v%d" % (S[tt], p, ONE, S[tt]))
                    a("v_dot2_f32_bf16 v%d, v%d, v%d, v%d" % (Q[tt], p, p, Q[tt]))
    a("s_cmp_eq_u32 s98, 0")
    a("s_cbranch_scc1 %s_A1" % name)
    epi_in()
    a("s_lshl_b32 s36, s22, 4")
    a("s_add_u32 s36, s36, s23")
    a("s_lshl_b32 s36, s36, 2")
    a("s_add_u32 s36, s36, s3")
    a("s_mul_i32 s36, s36, 9216")
    a("s_add_u32 s36, s36, 0x%x" % Z1IMG)
    a("v_lshlrev_b32 v4, 4, v2")
    for ft in range(5):
        gelu_ft(ft, False)
        for q in ((2 * ft, 2 * ft + 1) if ft < 4 else (8,)):
            if q in (4, 8): a("s_add_u32 s36, s36, 4096")
            a("buffer_store_dwordx4 %s, v4, s[12:15], s36 offen offset:%d" % (vr(ZP + 4 * q), (q & 3) * 1024))
    stamp(a, 3)
    G.stamp_rt(a, 1)
    a("s_branch %s_end" % name)
    a.label("%s_A1" % name)
    a("s_setprio 2")
    vmA = VmTracker(a)
    PB = 132
    def aux_head():
        epi_in()
        for tt in range(4):
            a("v_mov_b32 v%d, 0" % S[tt]); a("v_mov_b32 v%d, 0" % Q[tt])
    def aux_pub():
        a("s_nop 2")
        emit_xg_reduce(a, S + Q, 72)
        a("v_lshrrev_b32 v10, 4, v2")
        for g in range(1, 4):
            a("v_cmp_eq_u32 vcc, %d, v10" % g)
            a("s_nop 1")
            a("v_cndmask_b32 v%d, v%d, v%d, vcc" % (S[0], S[0], S[g]))
            a("v_cndmask_b32 v%d, v%d, v%d, vcc" % (Q[0], Q[0], Q[g]))
        a("v_and_b32 v%d, 0x7fffffff, v%d" % (Q[0], Q[0]))
        a("buffer_store_dwordx2 v[%d:%d], v94, s[12:15], s58 offen sc1" % (S[0], Q[0]))
    chunks = [capture(aux_head) + capture(gelu_ft, 0, True), capture(gelu_ft, 1, True), capture(gelu_ft, 2, True),
              capture(gelu_ft, 3, True), capture(gelu_ft, 4, True) + capture(aux_pub)]
    KD = 172
    for k in range(9, 18):
        a("s_barrier")
        if k == 9:
            a("s_cmp_lg_u32 s3, 0")
            a("s_cbranch_scc1 %s_nosig" % name)
            a("v_mov_b32 v10, 1")
            a("s_lshl_b32 s36, s22, 2")
            a("v_mov_b32 v11, s36")
            a("s_mov_b64 exec, 1")
            a("buffer_atomic_add v10, v11, s[60:63], 0 offen sc1")
            a("s_mov_b64 exec, -1")
            a.label("%s_nosig" % name)
        g = k + 3
        dma = capture(lambda: (issueT(g), issueF(g))) if g < 18 else []
        comp = chunks[k - 9] if k - 9 < len(chunks) else []
        interleave(dma, comp)
        if k == 13: vmA.issue("pub", 1)
        if g < 18: vmA.issue("S%d" % g, 9)
        if k == 14:
            a("s_mov_b32 s41, s2")
            emit_kv_loads(a, KD, KD + 12, KD + 20, KD + 24, KD + 25); vmA.issue("kv", 20)
            a("s_lshl_b32 s36, s22, 2")
            a("v_mov_b32 v199, s36")
            a("buffer_load_dword v198, v199, s[60:63], 0 offen sc1"); vmA.issue("cnt", 1)
        if k + 2 < 18 and k + 2 >= 12:
            vmA.wait(["S%d" % (k + 2)])
    stamp(a, 3)
    a("s_setprio 0")
    a("v_lshrrev_b32 v10, 4, v2")
    a("v_lshlrev_b32 v95, 8, v3")
    a("v_lshl_add_u32 v95, v10, 6, v95")
    a("s_lshl_b32 s33, s25, 13")
    a("s_add_u32 s52, s59, s33")
    a("s_xor_b32 s33, s33, 8192")
    a("s_add_u32 s53, s59, s33")
    a("s_add_u32 s42, s52, 4096")
    a("s_add_u32 s43, s53, 4096")
    for r_ in range(36): a("v_mov_b32 v%d, v%d" % (216 + r_, ZP + r_))
    Z2 = 216
    a("s_waitcnt vmcnt(0)")
    GB = [128, 144, 160, 176]
    for n in range(11): a("v_mov_b32 v%d, v%d" % (16 + n, KD + n))
    for n in range(8): a("v_mov_b32 v%d, v%d" % (32 + n, KD + 12 + n))
    for n in range(4): a("v_mov_b32 v%d, v%d" % (44 + n, KD + 20 + n))
    a("v_mov_b32 v56, v%d" % (KD + 24)); a("v_mov_b32 v57, v%d" % (KD + 25))
    a("v_mov_b32 v4, v95")
    def gather():
        for tt in range(4):
            for q in range(4):
                a("buffer_load_dwordx4 %s, v4, s[12:15], s%d offen offset:%d sc1" % (vr(GB[tt] + 4 * q), (52, 42, 53, 43)[tt], 16 * q))
    gather()
    emit_kv_compute(a, wait=False, store=False)
    stamp(a, 4)
    a("s_mov_b32 s40, 0")
    a("s_waitcnt vmcnt(0)")
    a.label("%s_chk" % name)
    a("v_subrev_u32 v11, 16, v198")
    for tt in range(4):
        for r in range(GB[tt] + 1, GB[tt] + 16, 4):
            a("v_or3_b32 v11, v11, v%d, v%d" % (r, r + 2))
    a("v_cmp_gt_i32 vcc, 0, v11")
    a("s_add_u32 s40, s40, 1")
    a("s_cmp_gt_u32 s40, %d" % SPIN_MAX)
    a("s_cbranch_scc1 %s_ok" % name)
    a("s_cbranch_vccz %s_ok" % name)
    a("s_sleep 32")
    a("buffer_load_dword v198, v199, s[60:63], 0 offen sc1")
    a("s_waitcnt vmcnt(0)")
    gather()
    a("s_waitcnt vmcnt(0)")
    a("s_branch %s_chk" % name)
    a.label("%s_ok" % name)
    stamp(a, 5)
    a("v_lshrrev_b32 v5, 4, v2")
    a("v_lshlrev_b32 v5, 12, v5")
    a("v_lshl_add_u32 v5, v3, 4, v5")
    a("s_lshl_b32 s33, s22, 7")
    a("s_lshl_b32 s36, s3, 5")
    a("s_add_u32 s33, s33, s36")
    a("s_lshl_b32 s33, s33, 12")
    a("s_lshl_b32 s36, s23, 8")
    a("s_add_u32 s33, s33, s36")
    for n in range(8):
        a("buffer_load_dwordx4 v[200:203], v5, s[92:95], s33 offen")
        if n < 7: a("s_add_u32 s33, s33, 16384")
    a("s_mov_b32 s39, 0x%x" % KVT)
    a("buffer_store_dwordx4 v[120:123], v12, s[12:15], s39 offen")
    a("buffer_store_dwordx4 v[124:127], v13, s[12:15], s39 offen")
    for tt in range(4):
        b = GB[tt]
        for st_ in (8, 4, 2):
            for q in range(0, st_, 2):
                a("v_pk_add_f32 %s, %s, %s" % (vr(b + q, 2), vr(b + q, 2), vr(b + q + st_, 2)))
    emit_xg_reduce(a, [GB[tt] + e for tt in range(4) for e in range(2)], 72)
    for tt in range(4):
        b = GB[tt]
        emit_ln_finish(a, b, b + 1, 2304, b + 2, MR + 2 * tt, b + 4)
        a("v_mul_f32 v%d, -v%d, v%d" % (MR + 2 * tt + 1, b + 2, MR + 2 * tt))
    a("v_lshrrev_b32 v10, 4, v2")
    a("v_lshrrev_b32 v11, 2, v2"); a("v_and_b32 v11, 1, v11"); a("v_lshlrev_b32 v11, 4, v11")
    a("v_lshrrev_b32 v5, 3, v2"); a("v_and_b32 v5, 1, v5"); a("v_lshl_add_u32 v11, v5, 2, v11")
    a("v_and_b32 v5, 3, v2"); a("v_add_u32 v11, v11, v5")
    a("v_mul_u32_u24 v11, 288, v11")
    a("v_lshrrev_b32 v5, 1, v10"); a("v_lshl_add_u32 v11, v5, 4, v11")
    a("v_and_b32 v5, 1, v10")
    a("v_lshl_add_u32 v6, v5, 5, v11")
    a("v_mul_u32_u24 v5, 2304, v5")
    a("v_add_u32 v9, v11, v5")
    a("s_lshl_b32 s33, s23, 5")
    a("s_lshl_b32 s36, s22, 1")
    a("s_add_u32 s33, s33, s36")
    a("s_add_u32 s33, s33, s24")
    a("s_mul_i32 s33, s33, 18432")
    if ZIMG: a("s_add_u32 s33, s33, 0x%x" % ZIMG)
    a("s_mul_i32 s36, s25, 9216")
    a("s_add_u32 s37, s33, s36")
    a("s_xor_b32 s36, s36, 9216")
    a("s_add_u32 s38, s33, s36")
    a("s_add_u32 s39, s37, 128")
    a("s_mul_i32 s36, s25, 160")
    a("s_add_u32 s37, s37, s36")
    a("s_add_u32 s38, s38, s36")
    def norm_pair(nA, ttA, nB, ttB, O):
        for q, (n, tt) in enumerate(((nA, ttA), (nB, ttB))):
            for d in range(2):
                z = Z2 + 2 * n + d; t = T + 4 * q + 2 * d
                a("v_lshlrev_b32 v%d, 16, v%d" % (t, z))
                a("v_and_b32 v%d, 0xffff0000, v%d" % (t + 1, z))
        for q, (n, tt) in enumerate(((nA, ttA), (nB, ttB))):
            for d in range(2):
                t = T + 4 * q + 2 * d
                a("v_pk_fma_f32 %s, %s, %s, %s op_sel:[0,0,1] op_sel_hi:[1,0,1]" % (vr(t, 2), vr(t, 2), vr(MR + 2 * tt, 2), vr(MR + 2 * tt, 2)))
        for q in range(2):
            for d in range(2):
                t = T + 4 * q + 2 * d
                a("v_cvt_pk_bf16_f32 v%d, v%d, v%d" % (O + 2 * q + d, t, t + 1))
        a("s_nop 1")
        a("v_permlane16_swap_b32 v%d, v%d" % (O, O + 2))
        a("v_permlane16_swap_b32 v%d, v%d" % (O + 1, O + 3))
    cnt = 0
    for pr in range(2):
        for tt in range(4):
            O = 16 + 4 * cnt; cnt += 1
            norm_pair(tidx(2 * pr, tt), tt, tidx(2 * pr + 1, tt), tt, O)
            a("s_nop 0")
            a("buffer_store_dwordx4 %s, v6, s[12:15], s%d offen offset:%d" % (vr(O), 37 if tt < 2 else 38, (tt & 1) * 2304 + 64 * pr))
    O = 16 + 4 * cnt
    norm_pair(16, 0, 17, 1, O)
    a("s_nop 0")
    a("buffer_store_dwordx4 %s, v9, s[12:15], s39 offen" % vr(O))
    stamp(a, 6)
    a("s_cmp_ge_u32 s2, 32")
    a("s_cbranch_scc1 %s_fin" % name)
    a("s_add_u32 s41, s2, 256")
    emit_kv_loads(a)
    emit_kv_compute(a)
    a.label("%s_fin" % name)
    stamp(a, 7)
    G.stamp_rt(a, 1)
    a.label("%s_end" % name)
    a("s_endpgm")
    return a.text(), kernel_desc(name, 256, 256), (name, 256, 512, LDSB)

def gen_kf(name="k1_kernel", R=4):
    a = Asm()
    RB = 4096; SLOT = 34816; TREG = 16384; FS = 288; RST = 0
    LDSB = RB + R * SLOT
    LC = 2048
    ZFLG = 0x2D00000
    from gen3 import emit_conv_loads, emit_conv_job, CJ_SIZE
    def capture(f, *args):
        lb = len(a.lines); f(*args); out = a.lines[lb:]; del a.lines[lb:]; return out
    kernel_begin(a, name)
    a("s_load_dwordx2 s[80:81], s[0:1], 0")
    a("s_load_dwordx2 s[4:5], s[0:1], 56")
    a("s_load_dwordx2 s[6:7], s[0:1], 104")
    a("s_load_dwordx2 s[18:19], s[0:1], 96")
    a("s_cmp_ge_u32 s2, 256")
    a("s_cbranch_scc1 %s_end" % name)
    a("v_lshrrev_b32 v1, 6, v0")
    a("v_and_b32 v2, 63, v0")
    a("v_readfirstlane_b32 s3, v1")
    G2.tile_ij(a)
    a("s_lshr_b32 s98, s3, 2")
    a("s_mov_b32 s54x, 0".replace("s54x", "s99"))
    a("s_and_b32 s3, s3, 3")
    a("s_lshr_b32 s24, s3, 1")
    a("s_and_b32 s25, s3, 1")
    a("v_and_b32 v3, 15, v2")
    VT = 204; VF = 208
    def loader_setup():
        a("v_lshrrev_b32 v5, 3, v2")
        a("v_and_b32 v4, 7, v2")
        a("s_lshl_b32 s36, s3, 5")
        a("v_add_u32 v5, s36, v5")
        a("v_lshrrev_b32 v7, 4, v2")
        a("v_xor_b32 v7, v7, v4")
        a("v_mul_u32_u24 v6, 1152, v5")
        a("v_lshl_add_u32 v%d, v7, 4, v6" % VT)
        a("v_xor_b32 v%d, 64, v%d" % (VT + 1, VT))
        a("v_add_u32 v%d, %d, v%d" % (VT + 1, 9216 - 1024, VT + 1))
        a("v_add_u32 v%d, %d, v%d" % (VT + 2, 2 * (9216 - 1024), VT))
        a("v_add_u32 v%d, %d, v%d" % (VT + 3, 2 * (9216 - 1024), VT + 1))
        a("s_lshl_b32 s84, s3, 12")
        a("s_add_u32 s84, s84, %d" % RB)
        a("s_lshl_b32 s85, s3, 9")
        a("s_add_u32 s85, s85, %d" % (RB + TREG + 16384))
    def loader_setup2():
        for n in range(5):
            if n < 4:
                a("s_lshl_b32 s36, s3, 8")
                a("s_add_u32 s36, s36, %d" % (64 * n))
            else:
                a("s_lshl_b32 s36, s3, 5")
                a("s_add_u32 s36, s36, 1024")
            a("v_add_u32 v6, s36, v2")
            a("v_mul_u32_u24 v7, 3641, v6")
            a("v_lshrrev_b32 v7, 16, v7")
            a("v_mul_u32_u24 v8, 18, v7")
            a("v_sub_u32 v8, v6, v8")
            a("v_and_b32 v9, 35, v7")
            a("v_bfe_u32 v6, v7, 2, 2")
            a("v_lshl_add_u32 v9, v6, 3, v9")
            a("v_bfe_u32 v6, v7, 4, 1")
            a("v_lshl_add_u32 v9, v6, 2, v9")
            a("v_mul_u32_u24 v9, 9216, v9")
            a("v_lshl_add_u32 v%d, v8, 4, v9" % (VF + n))
            if 0 < n < 4: a("v_subrev_u32 v%d, %d, v%d" % (VF + n, 1024 * n, VF + n))
    def issueT(g):
        st = g % 9
        a("s_add_u32 s86, s84, %d" % ((g % R) * SLOT))
        a("s_mov_b32 m0, s86")
        a("s_add_u32 s87, s82, %d" % (128 * st))
        for n in range(4):
            a("buffer_load_dwordx4 v%d, s[28:31], s87 offen offset:%d lds" % (VT + n, 1024 * n))
    def issueF(g):
        st = g % 9
        a("s_add_u32 s86, s84, %d" % ((g % R) * SLOT + TREG))
        a("s_mov_b32 m0, s86")
        a("s_add_u32 s87, s83, %d" % (64 * 9216 * st + (4608 if g < 9 else 0)))
        for n in range(4):
            a("buffer_load_dwordx4 v%d, s[8:11], s87 offen offset:%d lds" % (VF + n, 1024 * n))
        a("s_add_u32 s86, s85, %d" % ((g % R) * SLOT))
        a("s_mov_b32 m0, s86")
        a("s_mov_b64 exec, 0xffffffff")
        a("buffer_load_dwordx4 v%d, s[8:11], s87 offen lds" % (VF + 4))
        a("s_mov_b64 exec, -1")
    def srds_main():
        srd(a, 28, 80, 2048 * 576 * 2)
        srd(a, 8, 4, 576 * 4608 * 2)
        srd(a, 12, 6, WS_BYTES)
        srd(a, 60, 18, 256)
        a("s_mul_i32 s82, s22, %d" % (128 * 1152))
        a("s_mul_i32 s83, s23, 288")
    ACC = 128; FB = [16, 52]; CS = 216; ONE = 236
    vTa = [4, 5]; vTb = [6, 7]; vF = 8; vFh = 9
    bTa = [88, 89]; bTb = [90, 91]; bF = 92; bFh = 93
    def mma_setup():
        a("v_lshrrev_b32 v10, 4, v2")
        a("v_lshrrev_b32 v11, 1, v3")
        a("v_xor_b32 v10, v10, v11")
        a("v_lshlrev_b32 v10, 4, v10")
        a("v_lshl_add_u32 v10, v3, 7, v10")
        a("s_lshl_b32 s26, s24, 13")
        a("s_add_u32 s26, s26, %d" % RB)
        a("v_add_u32 v10, s26, v10")
        a("s_lshl_b32 s26, s25, 12")
        a("v_add_u32 v%d, s26, v10" % bTa[0])
        a("s_xor_b32 s26, s26, 4096")
        a("v_add_u32 v%d, s26, v10" % bTb[0])
        a("v_xor_b32 v%d, 64, v%d" % (bTa[1], bTa[0]))
        a("v_xor_b32 v%d, 64, v%d" % (bTb[1], bTb[0]))
        a("v_lshrrev_b32 v10, 2, v2")
        a("v_mul_u32_u24 v10, %d, v10" % FS)
        a("v_and_b32 v11, 3, v2")
        a("v_lshl_add_u32 v10, v11, 3, v10")
        a("v_add_u32 v10, %d, v10" % (RB + TREG))
        a("s_mul_i32 s26, s25, 160")
        a("v_add_u32 v%d, s26, v10" % bF)
        a("v_add_u32 v%d, 128, v10" % bFh)
        for r in range(ACC, ACC + 72): a("v_mov_b32 v%d, 0" % r)
        for r in range(CS, CS + 20): a("v_mov_b32 v%d, 0" % r)
        for r in range(ONE, ONE + 4): a("v_mov_b32 v%d, 0x3f803f80" % r)
    def mma_addr(slot):
        a("s_mov_b32 s27, %d" % (slot * SLOT))
        for d, s_ in ((vTa[0], bTa[0]), (vTb[0], bTb[0]), (vTa[1], bTa[1]), (vTb[1], bTb[1]), (vF, bF), (vFh, bFh)):
            a("v_add_u32 v%d, s27, v%d" % (d, s_))
    core = G.Core(a, ACC, FB[0], FB[1], FS, TREG, vTa, vTb, vF, vFh)
    trk = core.trk
    a("s_cmp_eq_u32 s98, 0")
    a("s_cbranch_scc1 %s_A0" % name)
    a("s_setprio 3")
    loader_setup()
    a("s_waitcnt lgkmcnt(0)")
    srds_main()
    vm = VmTracker(a)
    def issue(g, vmx):
        issueT(g); issueF(g); vmx.issue("S%d" % g, 9)
    issueT(0)
    loader_setup2()
    issueF(0); vm.issue("S0", 9)
    issue(1, vm); issue(2, vm); issue(3, vm)
    a("s_add_u32 s3, s3, 4"); stamp_setup(a, 1); stamp(a, 0); a("s_sub_u32 s3, s3, 4")
    mma_setup()
    RA = 96; XB = 112
    for r in range(RA, RA + 16): a("v_mov_b32 v%d, 0" % r)
    a("v_lshrrev_b32 v10, 4, v2")
    a("v_lshrrev_b32 v11, 1, v3")
    a("v_xor_b32 v10, v10, v11")
    a("v_lshlrev_b32 v10, 4, v10")
    a("v_lshl_add_u32 v10, v3, 7, v10")
    a("v_add_u32 v12, s84, v10")
    a("v_xor_b32 v13, 64, v12")
    def rs_rd(g):
        a("v_add_u32 v10, %d, v12" % ((g % R) * SLOT))
        a("v_add_u32 v11, %d, v13" % ((g % R) * SLOT))
        for h in range(2):
            for n in range(2):
                a("ds_read_b128 %s, v%d offset:%d" % (vr(XB + 8 * h + 4 * n), 10 + h, 2048 * n))
    def rs_do():
        for h in range(2):
            for n in range(2):
                x = XB + 8 * h + 4 * n
                a("v_mfma_f32_16x16x32_bf16 %s, %s, %s, %s" % (vr(RA + 4 * n), vr(ONE), vr(x), vr(RA + 4 * n)))
                a("v_mfma_f32_16x16x32_bf16 %s, %s, %s, %s" % (vr(RA + 8 + 4 * n), vr(x), vr(x), vr(RA + 8 + 4 * n)))
    def interleave(dma, comp, vmx=None):
        groups = []; cur = []
        for l in dma:
            cur.append(l)
            if "buffer_load" in l and not any("exec, 0xffffffff" in x for x in cur[-2:]):
                groups.append(cur); cur = []
            elif "exec, -1" in l:
                groups.append(cur); cur = []
        if cur: groups.append(cur)
        ns = max(1, len(groups))
        per = (len(comp) + ns - 1) // ns
        for g in groups:
            a.lines.extend(g)
            a.lines.extend(comp[:per]); comp = comp[per:]
        a.lines.extend(comp)
    vm.wait(["S0"])
    a("s_barrier")
    stamp(a, 1)
    rs_rd(0)
    vm.wait(["S1"])
    a("s_barrier")
    for k in range(9):
        a("s_waitcnt lgkmcnt(0)")
        dma = capture(lambda: (issueT(k + 3), issueF(k + 3))) if k >= 1 else []
        interleave(dma, capture(rs_do))
        if k >= 1: vm.issue("S%d" % (k + 3), 9)
        if k < 8:
            rs_rd(k + 1)
        else:
            a("s_nop 7")
            a("v_lshrrev_b32 v10, 4, v2")
            a("v_lshrrev_b32 v11, 2, v3")
            a("v_and_b32 v12, 3, v3")
            for n in range(2):
                G_ = RA + 8 + 4 * n
                for r in range(1, 4):
                    a("v_cmp_eq_u32 vcc, %d, v12" % r)
                    a("s_nop 1")
                    a("v_cndmask_b32 v%d, v%d, v%d, vcc" % (G_, G_, G_ + r))
            ML = 112
            for n in range(2):
                emit_ln_finish(a, RA + 4 * n, RA + 8 + 4 * n, 576, ML + 2 * n, ML + 2 * n + 1, 120)
                a("v_mov_b32 v%d, v%d" % (117 + 2 * n, ML + 2 * n + 1))
                a("v_sub_f32 v%d, 0, v%d" % (116 + 2 * n, ML + 2 * n))
            a("s_lshl_b32 s35, s3, 8")
            a("v_lshlrev_b32 v13, 3, v3")
            a("v_add_u32 v12, s35, v13")
            a("v_cmp_eq_u32 vcc, v10, v11")
            a("s_and_saveexec_b64 s[36:37], vcc")
            for n in range(2):
                a("ds_write_b64 v12, %s offset:%d" % (vr(116 + 2 * n, 2), RST + 128 * n))
            a("s_mov_b64 exec, s[36:37]")
            a("s_cmp_lg_u32 s23, 0")
            a("s_cbranch_scc1 %s_nost1" % name)
            a("s_lshl_b32 s35, s22, 7")
            a("s_lshl_b32 s36, s3, 5")
            a("s_add_u32 s35, s35, s36")
            a("s_lshl_b32 s35, s35, 3")
            a("s_add_u32 s35, s35, 0x%x" % STATS1)
            a("v_mov_b32 v11, 0x7ffffff0")
            a("v_cndmask_b32 v13, v11, v13, vcc")
            for n in range(2):
                a("buffer_store_dwordx2 %s, v13, s[12:15], s35 offen offset:%d" % (vr(ML + 2 * n, 2), 128 * n))
            a.label("%s_nost1" % name)
            mma_addr(9 % R)
            a("s_mov_b32 s33, 0")
            a("s_setprio 0")
        vm.wait(["S%d" % (k + 2)], "lgkmcnt(0)" if k == 8 else "")
        if k < 8: a("s_barrier")
    a("s_branch %s_mma" % name)
    a.label("%s_A0" % name)
    emit_code_prefetch(a, name)
    a("s_load_dwordx4 s[64:67], s[0:1], 8")
    a("s_load_dwordx2 s[76:77], s[0:1], 24")
    a("s_load_dwordx2 s[78:79], s[0:1], 64")
    mma_setup()
    loader_setup(); loader_setup2()
    a("s_waitcnt lgkmcnt(0)")
    srds_main()
    srd(a, 68, 66, 2048 * 576 * 2)
    a("s_mov_b32 s88, s64"); a("s_mov_b32 s89, s65")
    srd(a, 64, 88, 2048 * 576 * 2)
    srd(a, 72, 76, 576 * 8)
    stamp_setup(a, 1); stamp(a, 0)
    def gran_addr():
        a("v_lshrrev_b32 v10, 4, v2")
        a("s_lshl_b32 s36, s25, 1")
        a("v_add_u32 v11, s36, v10")
        a("v_and_b32 v11, 3, v11")
        a("v_lshl_add_u32 v11, v11, 4, v3")
        a("v_lshlrev_b32 v94, 8, v11")
        a("s_lshl_b32 s59, s22, 7")
        a("s_lshl_b32 s36, s24, 6")
        a("s_add_u32 s59, s59, s36")
        a("s_lshl_b32 s59, s59, 8")
        a("s_add_u32 s59, s59, 0x%x" % STATS2)
        a("s_lshl_b32 s36, s23, 1")
        a("s_add_u32 s36, s36, s25")
        a("s_lshl_b32 s36, s36, 3")
        a("s_add_u32 s58, s36, s59")
    gran_addr()
    a("v_mov_b32 v12, 0"); a("v_mov_b32 v13, 0x80000000")
    a("buffer_store_dwordx2 v[12:13], v94, s[12:15], s58 offen sc1")
    a("s_lshl_b32 s36, s22, 4")
    a("s_add_u32 s36, s36, s23")
    a("s_lshl_b32 s36, s36, 8")
    a("s_add_u32 s97, s36, 0x%x" % ZFLG)
    a("v_mov_b32 v10, %d" % LC)
    a("v_mov_b32 v12, 0"); a("v_mov_b32 v13, 0")
    a("s_mov_b64 exec, 1")
    a("buffer_store_dword v12, v12, s[12:15], s97 offen sc1")
    a("s_mov_b64 exec, -1")
    a("ds_write_b64 v10, v[12:13]")
    a("ds_write_b64 v10, v[12:13] offset:8")
    mma_addr(0)
    a("s_mov_b32 s33, 0")
    a("s_waitcnt lgkmcnt(0)")
    a("s_barrier")
    stamp(a, 1)
    a.label("%s_mma" % name)
    core.prime(0, core.reads(0, 0))
    trk.drain()
    nocs = [False]
    def mfmas(buf):
        L = []
        for ft in range(5):
            A = core.F(buf, ft)
            for tt in range(4 if ft < 4 else 2):
                c = core.accr(ft, tt); B = core.T(buf, tt)
                L.append(("v_mfma_f32_16x16x32_bf16 %s, %s, %s, %s" % (vr(c), vr(A), vr(B), vr(c)), list(range(A, A + 4)) + list(range(B, B + 4))))
            if not nocs[0]: L.append(("v_mfma_f32_16x16x32_bf16 %s, %s, %s, %s" % (vr(CS + 4 * ft), vr(A), vr(ONE), vr(CS + 4 * ft)), list(range(A, A + 4))))
        return L
    def phase(buf, pend):
        for (m, regs) in mfmas(buf):
            trk.need(regs)
            a(m)
            while pend:
                k, t = pend.pop(0)
                if k == "x":
                    a(t)
                    if t.startswith("s_"): continue
                else:
                    a(t[0]); trk.issue(t[1])
                break
        for k, t in pend:
            if k == "x": a(t)
            else: a(t[0]); trk.issue(t[1])
    def iteration(vw=True):
        if vw: a("s_waitcnt vmcnt(0)")
        a("s_barrier")
        rd = [("r", t) for t in core.reads(1, 1)]
        upd = ["s_add_u32 s27, s27, %d" % SLOT, "s_cmp_eq_u32 s27, %d" % (R * SLOT), "s_cselect_b32 s27, 0, s27"]
        tail = ["v_add_u32 v%d, s27, v%d" % (d, s_) for d, s_ in ((vTa[0], bTa[0]), (vF, bF), (vTb[0], bTb[0]), (vFh, bFh))]
        phase(0, rd[:1] + [("x", u) for u in upd] + rd[1:] + [("x", u) for u in tail])
        rd = [("r", t) for t in core.reads(0, 0)]
        tail = ["v_add_u32 v%d, s27, v%d" % (d, s_) for d, s_ in ((vTa[1], bTa[1]), (vTb[1], bTb[1]))] + ["s_add_u32 s33, s33, 1"]
        phase(1, rd + [("x", u) for u in tail])
    a.label("%s_cloop" % name)
    lb = len(a.lines); iteration(); st = copy.deepcopy(trk.out); del a.lines[lb:]; trk.out = copy.deepcopy(st)
    iteration()
    assert [sorted(x) for x in trk.out] == [sorted(x) for x in st]
    a("s_cmp_lt_u32 s33, 9")
    a("s_cbranch_scc1 %s_cloop" % name)
    trk.drain()
    stamp(a, 2)
    MR = 100; T = 72; ZP = 16
    def epi_in():
        gelu_consts(a)
        a("s_lshl_b32 s36, s24, 9")
        a("s_lshl_b32 s37, s25, 8")
        a("s_add_u32 s38, s36, s37")
        a("s_xor_b32 s37, s37, 256")
        a("s_add_u32 s39, s36, s37")
        a("v_lshlrev_b32 v10, 3, v3")
        a("v_add_u32 v11, s38, v10")
        a("ds_read_b64 %s, v11 offset:%d" % (vr(MR, 2), RST))
        a("ds_read_b64 %s, v11 offset:%d" % (vr(MR + 2, 2), RST + 128))
        a("v_add_u32 v11, s39, v10")
        a("ds_read_b64 %s, v11 offset:%d" % (vr(MR + 4, 2), RST))
        a("ds_read_b64 %s, v11 offset:%d" % (vr(MR + 6, 2), RST + 128))
        a("s_waitcnt lgkmcnt(0)")
    S = [108, 110, 52, 54]; Q = [109, 111, 53, 55]
    def gelu_ft(ft, stats):
        tts = range(4 if ft < 4 else 2)
        emit_fold_gelu(a, [(core.accr(ft, tt), CS + 4 * ft, MR + 2 * tt, ZP + 2 * tidx(ft, tt)) for tt in tts], T)
        if stats:
            for d in range(2):
                for tt in tts:
                    p = ZP + 2 * tidx(ft, tt) + d
                    a("v_dot2_f32_bf16 v%d, v%d, v%d, v%d" % (S[tt], p, ONE, S[tt]))
                    a("v_dot2_f32_bf16 v%d, v%d, v%d, v%d" % (Q[tt], p, p, Q[tt]))
    a("s_cmp_eq_u32 s98, 0")
    a("s_cbranch_scc1 %s_A1" % name)
    a("s_barrier")
    a("s_load_dwordx4 s[64:67], s[0:1], 8")
    a("s_load_dwordx2 s[76:77], s[0:1], 24")
    a("s_load_dwordx2 s[94:95], s[0:1], 80")
    a("s_load_dwordx2 s[92:93], s[0:1], 72")
    epi_in()
    srd(a, 68, 66, 2048 * 576 * 2)
    a("s_mov_b32 s88, s64"); a("s_mov_b32 s89, s65")
    srd(a, 64, 88, 2048 * 576 * 2)
    srd(a, 72, 76, 576 * 8)
    srd(a, 76, 94, 2304 * 576 * 2)
    srd(a, 28, 92, 2048 * 2)
    a("v_and_b32 v0, 255, v0")
    a("s_mov_b32 s41, s2")
    KDB = 240
    emit_kv_loads(a, 112, 240, 248, 252, 253)
    for ft in range(5): gelu_ft(ft, False)
    Z1R = 200; BI = 236
    for r_ in range(36): a("v_mov_b32 v%d, v%d" % (Z1R + r_, ZP + r_))
    stamp(a, 3)
    a("s_waitcnt vmcnt(0)")
    for n in range(11): a("v_mov_b32 v%d, v%d" % (16 + n, 112 + n))
    for n in range(8): a("v_mov_b32 v%d, v%d" % (32 + n, 240 + n))
    for n in range(4): a("v_mov_b32 v%d, v%d" % (44 + n, 248 + n))
    a("v_mov_b32 v56, v252"); a("v_mov_b32 v57, v253")
    for r_ in range(6): a("v_mov_b32 v%d, v%d" % (240 + r_, 88 + r_))
    a.label("%s_kvb" % name)
    emit_kv_compute(a, wait=False, store=False)
    a("s_mov_b32 s39, 0x%x" % KVT)
    a("buffer_store_dwordx4 v[120:123], v12, s[12:15], s39 offen sc1")
    a("buffer_store_dwordx4 v[124:127], v13, s[12:15], s39 offen sc1")
    a("s_add_u32 s41, s41, 256")
    a("s_cmp_ge_u32 s41, 288")
    a("s_cbranch_scc1 %s_kvbd" % name)
    emit_kv_loads(a)
    a("s_waitcnt vmcnt(0)")
    a("s_branch %s_kvb" % name)
    a.label("%s_kvbd" % name)
    for r_ in range(6): a("v_mov_b32 v%d, v%d" % (88 + r_, 240 + r_))
    a("s_mov_b32 s42, s2")
    emit_wot_loads(a, 100, 112, 720, 3)
    a("s_lshl_b32 s36, s22, 7")
    a("s_lshl_b32 s37, s24, 6")
    a("s_add_u32 s36, s36, s37")
    a("v_lshlrev_b32 v11, 1, v3")
    a("s_lshl_b32 s37, s25, 6")
    a("s_lshl_b32 s38, s36, 1")
    a("s_add_u32 s39, s38, s37")
    a("s_xor_b32 s37, s37, 64")
    a("s_add_u32 s36, s38, s37")
    a("buffer_load_ushort v96, v11, s[28:31], s39 offen")
    a("buffer_load_ushort v97, v11, s[28:31], s39 offen offset:32")
    a("buffer_load_ushort v98, v11, s[28:31], s36 offen")
    a("buffer_load_ushort v99, v11, s[28:31], s36 offen offset:32")
    for r in range(ACC, ACC + 72): a("v_mov_b32 v%d, 0" % r)
    mma_addr(0)
    a("s_mov_b32 s33, 0")
    stamp(a, 4)
    a("s_barrier")
    stamp(a, 5)
    core.prime(0, core.reads(0, 0))
    trk.drain()
    nocs[0] = True
    a.label("%s_gloop" % name)
    lb = len(a.lines); iteration(False); st = copy.deepcopy(trk.out); del a.lines[lb:]; trk.out = copy.deepcopy(st)
    iteration(False)
    assert [sorted(x) for x in trk.out] == [sorted(x) for x in st]
    a("s_cmp_lg_u32 s33, 3")
    a("s_cbranch_scc1 %s_ghk" % name)
    a("s_waitcnt vmcnt(0)")
    for n in range(3):
        a("buffer_store_dwordx4 %s, v%d, s[12:15], s40 offen" % (vr(100 + 4 * n), 112 + n))
    for tt in range(4): a("v_lshlrev_b32 v%d, 16, v%d" % (BI + 2 * tt, 96 + tt))
    a("v_mov_b32 v10, %d" % (LC + 8))
    a("v_mov_b32 v11, 1")
    a("s_mov_b64 exec, 1")
    a("ds_add_rtn_u32 v12, v10, v11")
    a("s_waitcnt lgkmcnt(0)")
    a("v_readfirstlane_b32 s36, v12")
    a("s_cmp_lg_u32 s36, 3")
    a("s_cbranch_scc1 %s_nokvs" % name)
    a("s_and_b32 s36, s2, 15")
    a("s_lshl_b32 s36, s36, 2")
    a("s_add_u32 s36, s36, 128")
    a("v_mov_b32 v10, s36")
    a("buffer_atomic_add v11, v10, s[60:63], 0 offen sc1")
    a.label("%s_nokvs" % name)
    a("s_mov_b64 exec, -1")
    a.label("%s_ghk" % name)
    a("s_cmp_lt_u32 s33, 32")
    a("s_cbranch_scc1 %s_gloop" % name)
    trk.drain()
    stamp(a, 6)
    G3.emit_k2_epilogue(a, core, Z1R, BI)
    stamp(a, 7)
    G.stamp_rt(a, 1)
    a("s_branch %s_end" % name)
    a.label("%s_A1" % name)
    a("s_setprio 2")
    vmA = VmTracker(a)
    PB = 132
    def aux_head():
        epi_in()
        for tt in range(4):
            a("v_mov_b32 v%d, 0" % S[tt]); a("v_mov_b32 v%d, 0" % Q[tt])
    def aux_pub():
        a("s_nop 2")
        emit_xg_reduce(a, S + Q, 72)
        a("v_lshrrev_b32 v10, 4, v2")
        for g in range(1, 4):
            a("v_cmp_eq_u32 vcc, %d, v10" % g)
            a("s_nop 1")
            a("v_cndmask_b32 v%d, v%d, v%d, vcc" % (S[0], S[0], S[g]))
            a("v_cndmask_b32 v%d, v%d, v%d, vcc" % (Q[0], Q[0], Q[g]))
        a("v_and_b32 v%d, 0x7fffffff, v%d" % (Q[0], Q[0]))
        a("buffer_store_dwordx2 v[%d:%d], v94, s[12:15], s58 offen sc1" % (S[0], Q[0]))
    chunks = [capture(aux_head) + capture(gelu_ft, 0, True), capture(gelu_ft, 1, True), capture(gelu_ft, 2, True),
              capture(gelu_ft, 3, True), capture(gelu_ft, 4, True) + capture(aux_pub)]
    KD = 172
    for k in range(9, 18):
        a("s_barrier")
        if k == 9:
            a("s_cmp_lg_u32 s3, 0")
            a("s_cbranch_scc1 %s_nosig" % name)
            a("v_mov_b32 v10, 1")
            a("s_lshl_b32 s36, s22, 2")
            a("v_mov_b32 v11, s36")
            a("s_mov_b64 exec, 1")
            a("buffer_atomic_add v10, v11, s[60:63], 0 offen sc1")
            a("s_mov_b64 exec, -1")
            a.label("%s_nosig" % name)
        g = k + 3
        dma = capture(lambda: (issueT(g), issueF(g))) if g < 18 else []
        comp = chunks[k - 9] if k - 9 < len(chunks) else []
        interleave(dma, comp)
        if k == 13: vmA.issue("pub", 1)
        if g < 18: vmA.issue("S%d" % g, 9)
        if k == 14:
            srd(a, 92, 78, 2048 * 2048 * 2)
            a("v_lshrrev_b32 v10, 4, v2")
            a("v_lshlrev_b32 v10, 12, v10")
            a("v_lshl_add_u32 v10, v3, 4, v10")
            a("s_lshl_b32 s40, s22, 7")
            a("s_lshl_b32 s36, s3, 5")
            a("s_add_u32 s40, s40, s36")
            a("s_lshl_b32 s40, s40, 12")
            a("s_lshl_b32 s36, s23, 8")
            a("s_add_u32 s40, s40, s36")
            for n in range(8):
                a("buffer_load_dwordx4 v[200:203], v10, s[92:95], s40 offen")
                if n < 7: a("s_add_u32 s40, s40, 16384")
            vmA.issue("wp", 8)
            a("s_lshl_b32 s36, s22, 2")
            a("v_mov_b32 v199, s36")
            a("buffer_load_dword v198, v199, s[60:63], 0 offen sc1"); vmA.issue("cnt", 1)
        if k + 2 < 18 and k + 2 >= 12:
            vmA.wait(["S%d" % (k + 2)])
    a("s_barrier")
    stamp(a, 3)
    a("s_load_dwordx4 s[88:91], s[0:1], 32")
    a("v_lshrrev_b32 v10, 4, v2")
    a("v_lshlrev_b32 v95, 8, v3")
    a("v_lshl_add_u32 v95, v10, 6, v95")
    a("s_lshl_b32 s33, s25, 13")
    a("s_add_u32 s52, s59, s33")
    a("s_xor_b32 s33, s33, 8192")
    a("s_add_u32 s53, s59, s33")
    a("s_add_u32 s42, s52, 4096")
    a("s_add_u32 s43, s53, 4096")
    Z2 = ZP
    a("s_waitcnt vmcnt(0)")
    GB = [128, 144, 160, 176]
    a("v_mov_b32 v4, v95")
    def gather():
        for tt in range(4):
            for q in range(4):
                a("buffer_load_dwordx4 %s, v4, s[12:15], s%d offen offset:%d sc1" % (vr(GB[tt] + 4 * q), (52, 42, 53, 43)[tt], 16 * q))
    gather()
    a("s_mov_b32 s40, 0")
    a("s_waitcnt vmcnt(0)")
    a.label("%s_chk" % name)
    a("v_subrev_u32 v11, 16, v198")
    for tt in range(4):
        for r in range(GB[tt] + 1, GB[tt] + 16, 4):
            a("v_or3_b32 v11, v11, v%d, v%d" % (r, r + 2))
    a("v_cmp_gt_i32 vcc, 0, v11")
    a("s_add_u32 s40, s40, 1")
    a("s_cmp_gt_u32 s40, %d" % SPIN_MAX)
    a("s_cbranch_scc1 %s_ok" % name)
    a("s_cbranch_vccz %s_ok" % name)
    a("s_sleep 32")
    a("buffer_load_dword v198, v199, s[60:63], 0 offen sc1")
    a("s_waitcnt vmcnt(0)")
    gather()
    a("s_waitcnt vmcnt(0)")
    a("s_branch %s_chk" % name)
    a.label("%s_ok" % name)
    stamp(a, 5)
    for tt in range(4):
        b = GB[tt]
        for st_ in (8, 4, 2):
            for q in range(0, st_, 2):
                a("v_pk_add_f32 %s, %s, %s" % (vr(b + q, 2), vr(b + q, 2), vr(b + q + st_, 2)))
    emit_xg_reduce(a, [GB[tt] + e for tt in range(4) for e in range(2)], 72)
    for tt in range(4):
        b = GB[tt]
        emit_ln_finish(a, b, b + 1, 2304, b + 2, MR + 2 * tt, b + 4)
        a("v_mul_f32 v%d, -v%d, v%d" % (MR + 2 * tt + 1, b + 2, MR + 2 * tt))
    a("v_lshrrev_b32 v10, 4, v2")
    a("v_lshrrev_b32 v11, 2, v2"); a("v_and_b32 v11, 1, v11"); a("v_lshlrev_b32 v11, 4, v11")
    a("v_lshrrev_b32 v5, 3, v2"); a("v_and_b32 v5, 1, v5"); a("v_lshl_add_u32 v11, v5, 2, v11")
    a("v_and_b32 v5, 3, v2"); a("v_add_u32 v11, v11, v5")
    a("v_mul_u32_u24 v11, 288, v11")
    a("v_lshrrev_b32 v5, 1, v10"); a("v_lshl_add_u32 v11, v5, 4, v11")
    a("v_and_b32 v5, 1, v10")
    a("v_lshl_add_u32 v6, v5, 5, v11")
    a("v_mul_u32_u24 v5, 2304, v5")
    a("v_add_u32 v9, v11, v5")
    a("s_lshl_b32 s33, s23, 5")
    a("s_lshl_b32 s36, s22, 1")
    a("s_add_u32 s33, s33, s36")
    a("s_add_u32 s33, s33, s24")
    a("s_mul_i32 s33, s33, 18432")
    if ZIMG: a("s_add_u32 s33, s33, 0x%x" % ZIMG)
    a("s_mul_i32 s36, s25, 9216")
    a("s_add_u32 s37, s33, s36")
    a("s_xor_b32 s36, s36, 9216")
    a("s_add_u32 s38, s33, s36")
    a("s_add_u32 s39, s37, 128")
    a("s_mul_i32 s36, s25, 160")
    a("s_add_u32 s37, s37, s36")
    a("s_add_u32 s38, s38, s36")
    def norm_pair(nA, ttA, nB, ttB, O):
        for q, (n, tt) in enumerate(((nA, ttA), (nB, ttB))):
            for d in range(2):
                z = Z2 + 2 * n + d; t = T + 4 * q + 2 * d
                a("v_lshlrev_b32 v%d, 16, v%d" % (t, z))
                a("v_and_b32 v%d, 0xffff0000, v%d" % (t + 1, z))
        for q, (n, tt) in enumerate(((nA, ttA), (nB, ttB))):
            for d in range(2):
                t = T + 4 * q + 2 * d
                a("v_pk_fma_f32 %s, %s, %s, %s op_sel:[0,0,1] op_sel_hi:[1,0,1]" % (vr(t, 2), vr(t, 2), vr(MR + 2 * tt, 2), vr(MR + 2 * tt, 2)))
        for q in range(2):
            for d in range(2):
                t = T + 4 * q + 2 * d
                a("v_cvt_pk_bf16_f32 v%d, v%d, v%d" % (O + 2 * q + d, t, t + 1))
        a("s_nop 1")
        a("v_permlane16_swap_b32 v%d, v%d" % (O, O + 2))
        a("v_permlane16_swap_b32 v%d, v%d" % (O + 1, O + 3))
    cnt = 0
    for pr in range(2):
        for tt in range(4):
            O = 200 + 4 * cnt; cnt += 1
            norm_pair(tidx(2 * pr, tt), tt, tidx(2 * pr + 1, tt), tt, O)
            a("s_nop 0")
            a("buffer_store_dwordx4 %s, v6, s[12:15], s%d offen offset:%d" % (vr(O), 37 if tt < 2 else 38, (tt & 1) * 2304 + 64 * pr) + " sc1")
    O = 200 + 4 * cnt
    norm_pair(16, 0, 17, 1, O)
    a("s_nop 0")
    a("buffer_store_dwordx4 %s, v9, s[12:15], s39 offen sc1" % vr(O))
    stamp(a, 6)
    a("s_setprio 3")
    srd(a, 8, 78, 2048 * 2048 * 2)
    a("v_lshrrev_b32 v3, 3, v2")
    a("s_lshl_b32 s24, s3, 5")
    a("v_add_u32 v3, s24, v3")
    a("v_and_b32 v4, 7, v2")
    a("v_lshrrev_b32 v6, 4, v2")
    a("v_xor_b32 v6, v6, v4")
    a("v_lshlrev_b32 v6, 4, v6")
    a("v_lshl_add_u32 v10, v3, 12, v6")
    a("v_xor_b32 v11, 64, v10")
    a("v_add_u32 v11, %d, v11" % (32768 - 1024))
    a("v_add_u32 v12, %d, v10" % (2 * (32768 - 1024)))
    a("v_add_u32 v13, %d, v11" % (2 * (32768 - 1024)))
    a("v_lshlrev_b32 v14, 4, v2")
    a("s_lshl_b32 s26, s22, 19")
    a("s_mul_i32 s27, s23, %d" % (32 * 18432))
    a("s_lshl_b32 s24, s3, 12")
    a("s_add_u32 s27, s27, s24")
    if ZIMG: a("s_add_u32 s27, s27, 0x%x" % ZIMG)
    a("s_lshl_b32 s25, s3, 9")
    a("s_sub_u32 s32, s25, s24")
    a("s_add_u32 s32, s32, 16384")
    a("s_add_u32 s24, s24, %d" % RB)
    a("s_waitcnt vmcnt(0) lgkmcnt(0)")
    a("v_mov_b32 v26, %d" % LC)
    a("v_mov_b32 v27, 1")
    a("s_mov_b64 exec, 1")
    a("ds_add_rtn_u32 v28, v26, v27")
    a("s_waitcnt lgkmcnt(0)")
    a("v_readfirstlane_b32 s36, v28")
    a("s_cmp_lg_u32 s36, 3")
    a("s_cbranch_scc1 %s_nozs" % name)
    a("v_mov_b32 v28, 0")
    a("buffer_store_dword v27, v28, s[12:15], s97 offen sc1")
    a.label("%s_nozs" % name)
    a("s_mov_b64 exec, -1")
    stamp(a, 7)
    srd(a, 16, 88, 576 * 2048 * 2)
    srd(a, 84, 90, 576 * 2)
    for g in range(4):
        a("s_add_u32 s35, s24, %d" % (g * SLOT))
        a("s_mov_b32 m0, s35")
        a("s_add_u32 s36, s26, %d" % (128 * g))
        for n in range(4):
            a("buffer_load_dwordx4 v%d, s[8:11], s36 offen offset:%d lds" % (10 + n, n * 1024))
    a("s_mov_b32 s34, 0")
    a("s_cmp_lg_u32 s3, 0")
    a("s_cbranch_scc1 %s_pl" % name)
    a("v_and_b32 v28, 15, v2")
    a("v_lshlrev_b32 v30, 2, v28")
    a("v_lshlrev_b32 v28, 12, v28")
    a("s_lshl_b32 s52, s23, 8")
    a("s_add_u32 s52, s52, 0x%x" % ZFLG)
    a.label("%s_pz0" % name)
    a("buffer_load_dword v31, v30, s[60:63], 0 offen sc1")
    a("s_add_u32 s34, s34, 1")
    a("s_waitcnt vmcnt(0)")
    a("v_cmp_gt_u32 vcc, 16, v31")
    a("s_cmp_gt_u32 s34, %d" % SPIN_MAX)
    a("s_cbranch_scc1 %s_pz" % name)
    a("s_cbranch_vccz %s_pz" % name)
    a("s_sleep 32")
    a("s_branch %s_pz0" % name)
    a.label("%s_pz" % name)
    a("buffer_load_dword v29, v28, s[12:15], s52 offen sc1")
    a("s_add_u32 s34, s34, 1")
    a("s_waitcnt vmcnt(0)")
    a("v_cmp_ne_u32 vcc, 1, v29")
    a("s_cmp_gt_u32 s34, %d" % SPIN_MAX)
    a("s_cbranch_scc1 %s_pzx" % name)
    a("s_cbranch_vccz %s_pzx" % name)
    a("s_sleep 8")
    a("s_branch %s_pz" % name)
    a.label("%s_pzx" % name)
    a("v_mov_b32 v27, 1")
    a("ds_write_b32 v26, v27 offset:4")
    a("s_branch %s_pgo" % name)
    a.label("%s_pl" % name)
    a("ds_read_b32 v27, v26 offset:4")
    a("s_add_u32 s34, s34, 1")
    a("s_waitcnt lgkmcnt(0)")
    a("v_readfirstlane_b32 s36, v27")
    a("s_cmp_gt_u32 s34, %d" % (SPIN_MAX * 20))
    a("s_cbranch_scc1 %s_pgo" % name)
    a("s_cmp_lg_u32 s36, 0")
    a("s_cbranch_scc1 %s_pgo" % name)
    a("s_sleep 2")
    a("s_branch %s_pl" % name)
    a.label("%s_pgo" % name)
    stamp(a, 8)
    for g in range(4):
        a("s_add_u32 s35, s24, %d" % (g * SLOT + TREG))
        a("s_mov_b32 m0, s35")
        a("s_add_u32 s36, s27, %d" % (18432 * g))
        a("s_add_u32 s37, s36, s32")
        for n in range(4):
            a("buffer_load_dwordx4 v14, s[12:15], s36 offen offset:%d sc1 lds" % (n * 1024))
        a("s_add_u32 s35, s35, s32")
        a("s_mov_b32 m0, s35")
        a("s_mov_b64 exec, 0xffffffff")
        a("buffer_load_dwordx4 v14, s[12:15], s37 offen sc1 lds")
        a("s_mov_b64 exec, -1")
    a("s_add_u32 s26, s26, 512")
    a("s_add_u32 s27, s27, %d" % (4 * 18432))
    a("s_mov_b32 s33, 0")
    a("s_lshl_b32 s43, s2, 2")
    a("s_add_u32 s43, s43, s3")
    a("s_and_b32 s53, s43, 1")
    a("s_sub_u32 s36, s43, 448")
    a("s_lshr_b32 s37, s43, 1")
    a("s_cmp_ge_u32 s43, 896")
    a("s_cselect_b32 s43, s36, s37")
    a("s_cselect_b32 s53, 2, s53")
    a("s_waitcnt vmcnt(15)")
    a("s_barrier")
    a("s_waitcnt vmcnt(10)")
    a("s_barrier")
    a("s_waitcnt vmcnt(5)")
    a("s_barrier")
    a("s_mov_b32 s34, 4")
    def issue2():
        a("s_add_u32 s35, s33, s24")
        a("s_mov_b32 m0, s35")
        a("s_add_u32 s36, s35, %d" % TREG)
        for n in range(4):
            a("buffer_load_dwordx4 v%d, s[8:11], s26 offen offset:%d lds" % (10 + n, n * 1024))
        a("s_mov_b32 m0, s36")
        a("s_add_u32 s37, s27, s32")
        for n in range(4):
            a("buffer_load_dwordx4 v14, s[12:15], s27 offen offset:%d sc1 lds" % (n * 1024))
        a("s_add_u32 s36, s36, s32")
        a("s_mov_b32 m0, s36")
        a("s_mov_b64 exec, 0xffffffff")
        a("buffer_load_dwordx4 v14, s[12:15], s37 offen sc1 lds")
        a("s_mov_b64 exec, -1")
        a("s_add_u32 s26, s26, 128")
        a("s_add_u32 s27, s27, 18432")
        a("s_add_u32 s33, s33, %d" % SLOT)
        a("s_cmp_eq_u32 s33, %d" % (R * SLOT))
        a("s_cselect_b32 s33, 0, s33")
    a.label("%s_lloop" % name)
    issue2()
    a("s_cmp_eq_u32 s34, 18")
    a("s_cbranch_scc1 %s_hk1" % name)
    a("s_cmp_eq_u32 s34, 21")
    a("s_cbranch_scc1 %s_hk2" % name)
    a("s_waitcnt vmcnt(9)")
    a.label("%s_lcont" % name)
    a("s_barrier")
    a("s_add_u32 s34, s34, 1")
    a("s_cmp_lt_u32 s34, 32")
    a("s_cbranch_scc1 %s_lloop" % name)
    a("s_branch %s_ldone" % name)
    a.label("%s_hk1" % name)
    a("v_and_b32 v28, 15, v2")
    a("v_lshlrev_b32 v28, 2, v28")
    a("buffer_load_dword v29, v28, s[60:63], 0 offen offset:128 sc1")
    a("s_waitcnt vmcnt(10)")
    a("s_branch %s_lcont" % name)
    a.label("%s_hk2" % name)
    a("s_mov_b32 s52, 0")
    a.label("%s_hk2l" % name)
    a("v_cmp_gt_u32 vcc, 16, v29")
    a("s_add_u32 s52, s52, 1")
    a("s_cmp_gt_u32 s52, %d" % SPIN_MAX)
    a("s_cbranch_scc1 %s_hk2g" % name)
    a("s_cbranch_vccz %s_hk2g" % name)
    a("s_sleep 16")
    a("buffer_load_dword v29, v28, s[60:63], 0 offen offset:128 sc1")
    a("s_waitcnt vmcnt(0)")
    a("s_branch %s_hk2l" % name)
    a.label("%s_hk2g" % name)
    nconv = emit_conv_loads(a, " sc1")
    a("s_waitcnt vmcnt(%d)" % (9 + nconv))
    a("s_branch %s_lcont" % name)
    a.label("%s_ldone" % name)
    a("s_waitcnt vmcnt(0)")
    a("s_barrier")
    a("s_mov_b32 s26, s53")
    a("s_and_b32 s27, s3, 1")
    a("s_mul_i32 s27, s27, %d" % CJ_SIZE)
    a("s_lshr_b32 s36, s3, 1")
    a("s_mul_i32 s36, s36, %d" % SLOT)
    a("s_add_u32 s27, s27, s36")
    a("s_add_u32 s27, s27, %d" % RB)
    def mid():
        a("s_barrier")
        a("s_setprio 0")
    sv = set(DBG); DBG.discard("stamp")
    emit_conv_job(a, name, mid)
    DBG.update(sv)
    G.stamp_rt(a, 1)
    a.label("%s_end" % name)
    a("s_endpgm")
    return a.text(), kernel_desc(name, 256, 256), (name, 256, 512, LDSB)

def gen_kf7(name="k1_kernel", R=4):
    a = Asm()
    RB = 4096; SLOT = 34816; TREG = 16384; FS = 288; RST = 0
    LDSB = RB + R * SLOT
    LC = 2048
    ZFLG = 0x2D00000
    from gen3 import emit_conv_loads, emit_conv_job, CJ_SIZE
    def capture(f, *args):
        lb = len(a.lines); f(*args); out = a.lines[lb:]; del a.lines[lb:]; return out
    kernel_begin(a, name)
    a("s_load_dwordx2 s[80:81], s[0:1], 0")
    a("s_load_dwordx2 s[4:5], s[0:1], 56")
    a("s_load_dwordx2 s[6:7], s[0:1], 104")
    a("s_load_dwordx2 s[18:19], s[0:1], 96")
    a("s_cmp_ge_u32 s2, 256")
    a("s_cbranch_scc1 %s_end" % name)
    a("v_lshrrev_b32 v1, 6, v0")
    a("v_and_b32 v2, 63, v0")
    a("v_readfirstlane_b32 s3, v1")
    G2.tile_ij(a)
    a("s_lshr_b32 s98, s3, 2")
    a("s_mov_b32 s54x, 0".replace("s54x", "s99"))
    a("s_and_b32 s3, s3, 3")
    a("s_lshr_b32 s24, s3, 1")
    a("s_and_b32 s25, s3, 1")
    a("v_and_b32 v3, 15, v2")
    VT = 204; VF = 208
    def loader_setup():
        a("v_lshrrev_b32 v5, 3, v2")
        a("v_and_b32 v4, 7, v2")
        a("s_lshl_b32 s36, s3, 5")
        a("v_add_u32 v5, s36, v5")
        a("v_lshrrev_b32 v7, 4, v2")
        a("v_xor_b32 v7, v7, v4")
        a("v_mul_u32_u24 v6, 1152, v5")
        a("v_lshl_add_u32 v%d, v7, 4, v6" % VT)
        a("v_xor_b32 v%d, 64, v%d" % (VT + 1, VT))
        a("v_add_u32 v%d, %d, v%d" % (VT + 1, 9216 - 1024, VT + 1))
        a("v_add_u32 v%d, %d, v%d" % (VT + 2, 2 * (9216 - 1024), VT))
        a("v_add_u32 v%d, %d, v%d" % (VT + 3, 2 * (9216 - 1024), VT + 1))
        a("s_lshl_b32 s84, s3, 12")
        a("s_add_u32 s84, s84, %d" % RB)
        a("s_lshl_b32 s85, s3, 9")
        a("s_add_u32 s85, s85, %d" % (RB + TREG + 16384))
    def loader_setup2():
        for n in range(5):
            if n < 4:
                a("s_lshl_b32 s36, s3, 8")
                a("s_add_u32 s36, s36, %d" % (64 * n))
            else:
                a("s_lshl_b32 s36, s3, 5")
                a("s_add_u32 s36, s36, 1024")
            a("v_add_u32 v6, s36, v2")
            a("v_mul_u32_u24 v7, 3641, v6")
            a("v_lshrrev_b32 v7, 16, v7")
            a("v_mul_u32_u24 v8, 18, v7")
            a("v_sub_u32 v8, v6, v8")
            a("v_and_b32 v9, 35, v7")
            a("v_bfe_u32 v6, v7, 2, 2")
            a("v_lshl_add_u32 v9, v6, 3, v9")
            a("v_bfe_u32 v6, v7, 4, 1")
            a("v_lshl_add_u32 v9, v6, 2, v9")
            a("v_mul_u32_u24 v9, 9216, v9")
            a("v_lshl_add_u32 v%d, v8, 4, v9" % (VF + n))
            if 0 < n < 4: a("v_subrev_u32 v%d, %d, v%d" % (VF + n, 1024 * n, VF + n))
    def issueT(g):
        st = g % 9
        a("s_add_u32 s86, s84, %d" % ((g % R) * SLOT))
        a("s_mov_b32 m0, s86")
        a("s_add_u32 s87, s82, %d" % (128 * st))
        for n in range(4):
            a("buffer_load_dwordx4 v%d, s[28:31], s87 offen offset:%d lds" % (VT + n, 1024 * n))
    def issueF(g):
        st = g % 9
        a("s_add_u32 s86, s84, %d" % ((g % R) * SLOT + TREG))
        a("s_mov_b32 m0, s86")
        a("s_add_u32 s87, s83, %d" % (64 * 9216 * st + (4608 if g < 9 else 0)))
        for n in range(4):
            a("buffer_load_dwordx4 v%d, s[8:11], s87 offen offset:%d lds" % (VF + n, 1024 * n))
        a("s_add_u32 s86, s85, %d" % ((g % R) * SLOT))
        a("s_mov_b32 m0, s86")
        a("s_mov_b64 exec, 0xffffffff")
        a("buffer_load_dwordx4 v%d, s[8:11], s87 offen lds" % (VF + 4))
        a("s_mov_b64 exec, -1")
    def srds_main():
        srd(a, 28, 80, 2048 * 576 * 2)
        srd(a, 8, 4, 576 * 4608 * 2)
        srd(a, 12, 6, WS_BYTES)
        srd(a, 60, 18, 256)
        a("s_mul_i32 s82, s22, %d" % (128 * 1152))
        a("s_mul_i32 s83, s23, 288")
    ACC = 128; FB = [16, 52]; CS = 216; ONE = 236
    vTa = [4, 5]; vTb = [6, 7]; vF = 8; vFh = 9
    bTa = [88, 89]; bTb = [90, 91]; bF = 92; bFh = 93
    def mma_setup():
        a("v_lshrrev_b32 v10, 4, v2")
        a("v_lshrrev_b32 v11, 1, v3")
        a("v_xor_b32 v10, v10, v11")
        a("v_lshlrev_b32 v10, 4, v10")
        a("v_lshl_add_u32 v10, v3, 7, v10")
        a("s_lshl_b32 s26, s24, 13")
        a("s_add_u32 s26, s26, %d" % RB)
        a("v_add_u32 v10, s26, v10")
        a("s_lshl_b32 s26, s25, 12")
        a("v_add_u32 v%d, s26, v10" % bTa[0])
        a("s_xor_b32 s26, s26, 4096")
        a("v_add_u32 v%d, s26, v10" % bTb[0])
        a("v_xor_b32 v%d, 64, v%d" % (bTa[1], bTa[0]))
        a("v_xor_b32 v%d, 64, v%d" % (bTb[1], bTb[0]))
        a("v_lshrrev_b32 v10, 2, v2")
        a("v_mul_u32_u24 v10, %d, v10" % FS)
        a("v_and_b32 v11, 3, v2")
        a("v_lshl_add_u32 v10, v11, 3, v10")
        a("v_add_u32 v10, %d, v10" % (RB + TREG))
        a("s_mul_i32 s26, s25, 160")
        a("v_add_u32 v%d, s26, v10" % bF)
        a("v_add_u32 v%d, 128, v10" % bFh)
        for r in range(ACC, ACC + 72): a("v_mov_b32 v%d, 0" % r)
        for r in range(CS, CS + 20): a("v_mov_b32 v%d, 0" % r)
        for r in range(ONE, ONE + 4): a("v_mov_b32 v%d, 0x3f803f80" % r)
    def mma_addr(slot):
        a("s_mov_b32 s27, %d" % (slot * SLOT))
        for d, s_ in ((vTa[0], bTa[0]), (vTb[0], bTb[0]), (vTa[1], bTa[1]), (vTb[1], bTb[1]), (vF, bF), (vFh, bFh)):
            a("v_add_u32 v%d, s27, v%d" % (d, s_))
    core = G.Core(a, ACC, FB[0], FB[1], FS, TREG, vTa, vTb, vF, vFh)
    trk = core.trk
    a("s_cmp_eq_u32 s98, 0")
    a("s_cbranch_scc1 %s_A0" % name)
    a("s_setprio 3")
    loader_setup()
    a("s_waitcnt lgkmcnt(0)")
    srds_main()
    vm = VmTracker(a)
    def issue(g, vmx):
        issueT(g); issueF(g); vmx.issue("S%d" % g, 9)
    issueT(0)
    loader_setup2()
    issueF(0); vm.issue("S0", 9)
    issue(1, vm); issue(2, vm); issue(3, vm)
    a("s_add_u32 s3, s3, 4"); stamp_setup(a, 1); stamp(a, 0); a("s_sub_u32 s3, s3, 4")
    mma_setup()
    RA = 96; XB = 112
    for r in range(RA, RA + 16): a("v_mov_b32 v%d, 0" % r)
    a("v_lshrrev_b32 v10, 4, v2")
    a("v_lshrrev_b32 v11, 1, v3")
    a("v_xor_b32 v10, v10, v11")
    a("v_lshlrev_b32 v10, 4, v10")
    a("v_lshl_add_u32 v10, v3, 7, v10")
    a("v_add_u32 v12, s84, v10")
    a("v_xor_b32 v13, 64, v12")
    def rs_rd(g):
        a("v_add_u32 v10, %d, v12" % ((g % R) * SLOT))
        a("v_add_u32 v11, %d, v13" % ((g % R) * SLOT))
        for h in range(2):
            for n in range(2):
                a("ds_read_b128 %s, v%d offset:%d" % (vr(XB + 8 * h + 4 * n), 10 + h, 2048 * n))
    def rs_do():
        for h in range(2):
            for n in range(2):
                x = XB + 8 * h + 4 * n
                a("v_mfma_f32_16x16x32_bf16 %s, %s, %s, %s" % (vr(RA + 4 * n), vr(ONE), vr(x), vr(RA + 4 * n)))
                a("v_mfma_f32_16x16x32_bf16 %s, %s, %s, %s" % (vr(RA + 8 + 4 * n), vr(x), vr(x), vr(RA + 8 + 4 * n)))
    def interleave(dma, comp, vmx=None):
        groups = []; cur = []
        for l in dma:
            cur.append(l)
            if "buffer_load" in l and not any("exec, 0xffffffff" in x for x in cur[-2:]):
                groups.append(cur); cur = []
            elif "exec, -1" in l:
                groups.append(cur); cur = []
        if cur: groups.append(cur)
        ns = max(1, len(groups))
        per = (len(comp) + ns - 1) // ns
        for g in groups:
            a.lines.extend(g)
            a.lines.extend(comp[:per]); comp = comp[per:]
        a.lines.extend(comp)
    vm.wait(["S0"])
    a("s_barrier")
    stamp(a, 1)
    rs_rd(0)
    vm.wait(["S1"])
    a("s_barrier")
    for k in range(9):
        a("s_waitcnt lgkmcnt(0)")
        dma = capture(lambda: (issueT(k + 3), issueF(k + 3))) if k >= 1 else []
        interleave(dma, capture(rs_do))
        if k >= 1: vm.issue("S%d" % (k + 3), 9)
        if k < 8:
            rs_rd(k + 1)
        else:
            a("s_nop 7")
            a("v_lshrrev_b32 v10, 4, v2")
            a("v_lshrrev_b32 v11, 2, v3")
            a("v_and_b32 v12, 3, v3")
            for n in range(2):
                G_ = RA + 8 + 4 * n
                for r in range(1, 4):
                    a("v_cmp_eq_u32 vcc, %d, v12" % r)
                    a("s_nop 1")
                    a("v_cndmask_b32 v%d, v%d, v%d, vcc" % (G_, G_, G_ + r))
            ML = 112
            for n in range(2):
                emit_ln_finish(a, RA + 4 * n, RA + 8 + 4 * n, 576, ML + 2 * n, ML + 2 * n + 1, 120)
                a("v_mov_b32 v%d, v%d" % (117 + 2 * n, ML + 2 * n + 1))
                a("v_sub_f32 v%d, 0, v%d" % (116 + 2 * n, ML + 2 * n))
            a("s_lshl_b32 s35, s3, 8")
            a("v_lshlrev_b32 v13, 3, v3")
            a("v_add_u32 v12, s35, v13")
            a("v_cmp_eq_u32 vcc, v10, v11")
            a("s_and_saveexec_b64 s[36:37], vcc")
            for n in range(2):
                a("ds_write_b64 v12, %s offset:%d" % (vr(116 + 2 * n, 2), RST + 128 * n))
            a("s_mov_b64 exec, s[36:37]")
            a("s_cmp_lg_u32 s23, 0")
            a("s_cbranch_scc1 %s_nost1" % name)
            a("s_lshl_b32 s35, s22, 7")
            a("s_lshl_b32 s36, s3, 5")
            a("s_add_u32 s35, s35, s36")
            a("s_lshl_b32 s35, s35, 3")
            a("s_add_u32 s35, s35, 0x%x" % STATS1)
            a("v_mov_b32 v11, 0x7ffffff0")
            a("v_cndmask_b32 v13, v11, v13, vcc")
            for n in range(2):
                a("buffer_store_dwordx2 %s, v13, s[12:15], s35 offen offset:%d" % (vr(ML + 2 * n, 2), 128 * n))
            a.label("%s_nost1" % name)
            mma_addr(9 % R)
            a("s_mov_b32 s33, 0")
            a("s_setprio 0")
        vm.wait(["S%d" % (k + 2)], "lgkmcnt(0)" if k == 8 else "")
        if k < 8: a("s_barrier")
    a("s_branch %s_mma" % name)
    a.label("%s_A0" % name)
    emit_code_prefetch(a, name)
    a("s_load_dwordx4 s[64:67], s[0:1], 8")
    a("s_load_dwordx2 s[76:77], s[0:1], 24")
    a("s_load_dwordx2 s[78:79], s[0:1], 64")
    mma_setup()
    loader_setup(); loader_setup2()
    a("s_waitcnt lgkmcnt(0)")
    srds_main()
    srd(a, 68, 66, 2048 * 576 * 2)
    a("s_mov_b32 s88, s64"); a("s_mov_b32 s89, s65")
    srd(a, 64, 88, 2048 * 576 * 2)
    srd(a, 72, 76, 576 * 8)
    stamp_setup(a, 1); stamp(a, 0)
    def gran_addr():
        a("v_lshrrev_b32 v10, 4, v2")
        a("s_lshl_b32 s36, s25, 1")
        a("v_add_u32 v11, s36, v10")
        a("v_and_b32 v11, 3, v11")
        a("v_lshl_add_u32 v11, v11, 4, v3")
        a("v_lshlrev_b32 v94, 8, v11")
        a("s_lshl_b32 s59, s22, 7")
        a("s_lshl_b32 s36, s24, 6")
        a("s_add_u32 s59, s59, s36")
        a("s_lshl_b32 s59, s59, 8")
        a("s_add_u32 s59, s59, 0x%x" % STATS2)
        a("s_lshl_b32 s36, s23, 1")
        a("s_add_u32 s36, s36, s25")
        a("s_lshl_b32 s36, s36, 3")
        a("s_add_u32 s58, s36, s59")
    gran_addr()
    a("v_mov_b32 v12, 0"); a("v_mov_b32 v13, 0x80000000")
    a("buffer_store_dwordx2 v[12:13], v94, s[12:15], s58 offen sc1")
    a("s_lshl_b32 s36, s22, 4")
    a("s_add_u32 s36, s36, s23")
    a("s_lshl_b32 s36, s36, 8")
    a("s_add_u32 s97, s36, 0x%x" % ZFLG)
    a("v_mov_b32 v10, %d" % LC)
    a("v_mov_b32 v12, 0"); a("v_mov_b32 v13, 0")
    a("s_mov_b64 exec, 1")
    a("buffer_store_dword v12, v12, s[12:15], s97 offen sc1")
    a("s_mov_b64 exec, -1")
    a("ds_write_b64 v10, v[12:13]")
    a("ds_write_b64 v10, v[12:13] offset:8")
    mma_addr(0)
    a("s_mov_b32 s33, 0")
    a("s_waitcnt lgkmcnt(0)")
    a("s_barrier")
    stamp(a, 1)
    a.label("%s_mma" % name)
    core.prime(0, core.reads(0, 0))
    trk.drain()
    nocs = [False]
    def mfmas(buf):
        L = []
        for ft in range(5):
            A = core.F(buf, ft)
            for tt in range(4 if ft < 4 else 2):
                c = core.accr(ft, tt); B = core.T(buf, tt)
                L.append(("v_mfma_f32_16x16x32_bf16 %s, %s, %s, %s" % (vr(c), vr(A), vr(B), vr(c)), list(range(A, A + 4)) + list(range(B, B + 4))))
            if not nocs[0]: L.append(("v_mfma_f32_16x16x32_bf16 %s, %s, %s, %s" % (vr(CS + 4 * ft), vr(A), vr(ONE), vr(CS + 4 * ft)), list(range(A, A + 4))))
        return L
    def phase(buf, pend):
        for (m, regs) in mfmas(buf):
            trk.need(regs)
            a(m)
            while pend:
                k, t = pend.pop(0)
                if k == "x":
                    a(t)
                    if t.startswith("s_"): continue
                else:
                    a(t[0]); trk.issue(t[1])
                break
        for k, t in pend:
            if k == "x": a(t)
            else: a(t[0]); trk.issue(t[1])
    def iteration(vw=True):
        if vw: a("s_waitcnt vmcnt(0)")
        a("s_barrier")
        rd = [("r", t) for t in core.reads(1, 1)]
        upd = ["s_add_u32 s27, s27, %d" % SLOT, "s_cmp_eq_u32 s27, %d" % (R * SLOT), "s_cselect_b32 s27, 0, s27"]
        tail = ["v_add_u32 v%d, s27, v%d" % (d, s_) for d, s_ in ((vTa[0], bTa[0]), (vF, bF), (vTb[0], bTb[0]), (vFh, bFh))]
        phase(0, rd[:1] + [("x", u) for u in upd] + rd[1:] + [("x", u) for u in tail])
        rd = [("r", t) for t in core.reads(0, 0)]
        tail = ["v_add_u32 v%d, s27, v%d" % (d, s_) for d, s_ in ((vTa[1], bTa[1]), (vTb[1], bTb[1]))] + ["s_add_u32 s33, s33, 1"]
        phase(1, rd + [("x", u) for u in tail])
    a.label("%s_cloop" % name)
    lb = len(a.lines); iteration(); st = copy.deepcopy(trk.out); del a.lines[lb:]; trk.out = copy.deepcopy(st)
    iteration()
    assert [sorted(x) for x in trk.out] == [sorted(x) for x in st]
    a("s_cmp_lt_u32 s33, 9")
    a("s_cbranch_scc1 %s_cloop" % name)
    trk.drain()
    stamp(a, 2)
    MR = 100; T = 72; ZP = 16
    def epi_in():
        gelu_consts(a)
        a("s_lshl_b32 s36, s24, 9")
        a("s_lshl_b32 s37, s25, 8")
        a("s_add_u32 s38, s36, s37")
        a("s_xor_b32 s37, s37, 256")
        a("s_add_u32 s39, s36, s37")
        a("v_lshlrev_b32 v10, 3, v3")
        a("v_add_u32 v11, s38, v10")
        a("ds_read_b64 %s, v11 offset:%d" % (vr(MR, 2), RST))
        a("ds_read_b64 %s, v11 offset:%d" % (vr(MR + 2, 2), RST + 128))
        a("v_add_u32 v11, s39, v10")
        a("ds_read_b64 %s, v11 offset:%d" % (vr(MR + 4, 2), RST))
        a("ds_read_b64 %s, v11 offset:%d" % (vr(MR + 6, 2), RST + 128))
        a("s_waitcnt lgkmcnt(0)")
    S = [108, 110, 52, 54]; Q = [109, 111, 53, 55]
    def gelu_ft(ft, stats):
        tts = range(4 if ft < 4 else 2)
        emit_fold_gelu(a, [(core.accr(ft, tt), CS + 4 * ft, MR + 2 * tt, ZP + 2 * tidx(ft, tt)) for tt in tts], T)
        if stats:
            for d in range(2):
                for tt in tts:
                    p = ZP + 2 * tidx(ft, tt) + d
                    a("v_dot2_f32_bf16 v%d, v%d, v%d, v%d" % (S[tt], p, ONE, S[tt]))
                    a("v_dot2_f32_bf16 v%d, v%d, v%d, v%d" % (Q[tt], p, p, Q[tt]))
    a("s_cmp_eq_u32 s98, 0")
    a("s_cbranch_scc1 %s_A1" % name)
    a("s_barrier")
    a("s_load_dwordx4 s[64:67], s[0:1], 8")
    a("s_load_dwordx2 s[76:77], s[0:1], 24")
    a("s_load_dwordx2 s[94:95], s[0:1], 80")
    a("s_load_dwordx2 s[92:93], s[0:1], 72")
    epi_in()
    srd(a, 68, 66, 2048 * 576 * 2)
    a("s_mov_b32 s88, s64"); a("s_mov_b32 s89, s65")
    srd(a, 64, 88, 2048 * 576 * 2)
    srd(a, 72, 76, 576 * 8)
    srd(a, 76, 94, 2304 * 576 * 2)
    srd(a, 28, 92, 2048 * 2)
    a("v_and_b32 v0, 255, v0")
    a("s_mov_b32 s41, s2")
    KDB = 240
    emit_kv_loads(a, 112, 240, 248, 252, 253)
    for ft in range(5): gelu_ft(ft, False)
    Z1R = 200; BI = 236
    for r_ in range(36): a("v_mov_b32 v%d, v%d" % (Z1R + r_, ZP + r_))
    stamp(a, 3)
    a("s_waitcnt vmcnt(0)")
    for n in range(11): a("v_mov_b32 v%d, v%d" % (16 + n, 112 + n))
    for n in range(8): a("v_mov_b32 v%d, v%d" % (32 + n, 240 + n))
    for n in range(4): a("v_mov_b32 v%d, v%d" % (44 + n, 248 + n))
    a("v_mov_b32 v56, v252"); a("v_mov_b32 v57, v253")
    for r_ in range(6): a("v_mov_b32 v%d, v%d" % (240 + r_, 88 + r_))
    a.label("%s_kvb" % name)
    emit_kv_compute(a, wait=False, store=False)
    a("s_mov_b32 s39, 0x%x" % KVT)
    a("buffer_store_dwordx4 v[120:123], v12, s[12:15], s39 offen sc1")
    a("buffer_store_dwordx4 v[124:127], v13, s[12:15], s39 offen sc1")
    a("s_add_u32 s41, s41, 256")
    a("s_cmp_ge_u32 s41, 288")
    a("s_cbranch_scc1 %s_kvbd" % name)
    emit_kv_loads(a)
    a("s_waitcnt vmcnt(0)")
    a("s_branch %s_kvb" % name)
    a.label("%s_kvbd" % name)
    for r_ in range(6): a("v_mov_b32 v%d, v%d" % (88 + r_, 240 + r_))
    a("s_mov_b32 s42, s2")
    emit_wot_loads(a, 100, 112, 720, 3)
    a("s_lshl_b32 s36, s22, 7")
    a("s_lshl_b32 s37, s24, 6")
    a("s_add_u32 s36, s36, s37")
    a("v_lshlrev_b32 v11, 1, v3")
    a("s_lshl_b32 s37, s25, 6")
    a("s_lshl_b32 s38, s36, 1")
    a("s_add_u32 s39, s38, s37")
    a("s_xor_b32 s37, s37, 64")
    a("s_add_u32 s36, s38, s37")
    a("buffer_load_ushort v96, v11, s[28:31], s39 offen")
    a("buffer_load_ushort v97, v11, s[28:31], s39 offen offset:32")
    a("buffer_load_ushort v98, v11, s[28:31], s36 offen")
    a("buffer_load_ushort v99, v11, s[28:31], s36 offen offset:32")
    for r in range(ACC, ACC + 72): a("v_mov_b32 v%d, 0" % r)
    a("v_lshrrev_b32 v10, 2, v2")
    a("v_lshlrev_b32 v10, 5, v10")
    a("v_and_b32 v11, 3, v2")
    a("v_lshl_add_u32 v10, v11, 3, v10")
    a("v_add_u32 v10, %d, v10" % (RB + TREG))
    a("s_mul_i32 s26, s25, 10240")
    a("v_add_u32 v%d, s26, v10" % bF)
    a("v_add_u32 v%d, 8192, v10" % bFh)
    core.FS = 32; core.FT = 2048
    mma_addr(0)
    a("s_mov_b32 s33, 0")
    stamp(a, 4)
    a("s_barrier")
    stamp(a, 5)
    core.prime(0, core.reads(0, 0))
    trk.drain()
    nocs[0] = True
    a.label("%s_gloop" % name)
    lb = len(a.lines); iteration(False); st = copy.deepcopy(trk.out); del a.lines[lb:]; trk.out = copy.deepcopy(st)
    iteration(False)
    assert [sorted(x) for x in trk.out] == [sorted(x) for x in st]
    a("s_cmp_lg_u32 s33, 3")
    a("s_cbranch_scc1 %s_ghk" % name)
    a("s_waitcnt vmcnt(0)")
    for n in range(3):
        a("buffer_store_dwordx4 %s, v%d, s[12:15], s40 offen" % (vr(100 + 4 * n), 112 + n))
    for tt in range(4): a("v_lshlrev_b32 v%d, 16, v%d" % (BI + 2 * tt, 96 + tt))
    a("v_mov_b32 v10, %d" % (LC + 8))
    a("v_mov_b32 v11, 1")
    a("s_mov_b64 exec, 1")
    a("ds_add_rtn_u32 v12, v10, v11")
    a("s_waitcnt lgkmcnt(0)")
    a("v_readfirstlane_b32 s36, v12")
    a("s_cmp_lg_u32 s36, 3")
    a("s_cbranch_scc1 %s_nokvs" % name)
    a("s_and_b32 s36, s2, 15")
    a("s_lshl_b32 s36, s36, 2")
    a("s_add_u32 s36, s36, 128")
    a("v_mov_b32 v10, s36")
    a("buffer_atomic_add v11, v10, s[60:63], 0 offen sc1")
    a.label("%s_nokvs" % name)
    a("s_mov_b64 exec, -1")
    a.label("%s_ghk" % name)
    a("s_cmp_lt_u32 s33, 32")
    a("s_cbranch_scc1 %s_gloop" % name)
    trk.drain()
    stamp(a, 6)
    G3.emit_k2_epilogue2(a, core, Z1R, BI)
    stamp(a, 7)
    G.stamp_rt(a, 1)
    a("s_branch %s_end" % name)
    a.label("%s_A1" % name)
    a("s_setprio 2")
    vmA = VmTracker(a)
    PB = 132
    def aux_head():
        epi_in()
        for tt in range(4):
            a("v_mov_b32 v%d, 0" % S[tt]); a("v_mov_b32 v%d, 0" % Q[tt])
    def aux_pub():
        a("s_nop 2")
        emit_xg_reduce(a, S + Q, 72)
        a("v_lshrrev_b32 v10, 4, v2")
        for g in range(1, 4):
            a("v_cmp_eq_u32 vcc, %d, v10" % g)
            a("s_nop 1")
            a("v_cndmask_b32 v%d, v%d, v%d, vcc" % (S[0], S[0], S[g]))
            a("v_cndmask_b32 v%d, v%d, v%d, vcc" % (Q[0], Q[0], Q[g]))
        a("v_and_b32 v%d, 0x7fffffff, v%d" % (Q[0], Q[0]))
        a("buffer_store_dwordx2 v[%d:%d], v94, s[12:15], s58 offen sc1" % (S[0], Q[0]))
    chunks = [capture(aux_head) + capture(gelu_ft, 0, True), capture(gelu_ft, 1, True), capture(gelu_ft, 2, True),
              capture(gelu_ft, 3, True), capture(gelu_ft, 4, True) + capture(aux_pub)]
    KD = 172
    for k in range(9, 18):
        a("s_barrier")
        if k == 9:
            a("s_cmp_lg_u32 s3, 0")
            a("s_cbranch_scc1 %s_nosig" % name)
            a("v_mov_b32 v10, 1")
            a("s_lshl_b32 s36, s22, 2")
            a("v_mov_b32 v11, s36")
            a("s_mov_b64 exec, 1")
            a("buffer_atomic_add v10, v11, s[60:63], 0 offen sc1")
            a("s_mov_b64 exec, -1")
            a.label("%s_nosig" % name)
        g = k + 3
        dma = capture(lambda: (issueT(g), issueF(g))) if g < 18 else []
        comp = chunks[k - 9] if k - 9 < len(chunks) else []
        interleave(dma, comp)
        if k == 13: vmA.issue("pub", 1)
        if g < 18: vmA.issue("S%d" % g, 9)
        if k == 14:
            srd(a, 92, 78, 2048 * 2048 * 2)
            a("v_lshrrev_b32 v10, 4, v2")
            a("v_lshlrev_b32 v10, 12, v10")
            a("v_lshl_add_u32 v10, v3, 4, v10")
            a("s_lshl_b32 s40, s22, 7")
            a("s_lshl_b32 s36, s3, 5")
            a("s_add_u32 s40, s40, s36")
            a("s_lshl_b32 s40, s40, 12")
            a("s_lshl_b32 s36, s23, 8")
            a("s_add_u32 s40, s40, s36")
            for n in range(8):
                a("buffer_load_dwordx4 v[200:203], v10, s[92:95], s40 offen")
                if n < 7: a("s_add_u32 s40, s40, 16384")
            vmA.issue("wp", 8)
            a("s_lshl_b32 s36, s22, 2")
            a("v_mov_b32 v199, s36")
            a("buffer_load_dword v198, v199, s[60:63], 0 offen sc1"); vmA.issue("cnt", 1)
        if k + 2 < 18 and k + 2 >= 12:
            vmA.wait(["S%d" % (k + 2)])
    a("s_barrier")
    stamp(a, 3)
    a("s_load_dwordx4 s[88:91], s[0:1], 32")
    a("v_lshrrev_b32 v10, 4, v2")
    a("v_lshlrev_b32 v95, 8, v3")
    a("v_lshl_add_u32 v95, v10, 6, v95")
    a("s_lshl_b32 s33, s25, 13")
    a("s_add_u32 s52, s59, s33")
    a("s_xor_b32 s33, s33, 8192")
    a("s_add_u32 s53, s59, s33")
    a("s_add_u32 s42, s52, 4096")
    a("s_add_u32 s43, s53, 4096")
    Z2 = ZP
    a("s_waitcnt vmcnt(0)")
    GB = [128, 144, 160, 176]
    a("v_mov_b32 v4, v95")
    def gather():
        for tt in range(4):
            for q in range(4):
                a("buffer_load_dwordx4 %s, v4, s[12:15], s%d offen offset:%d sc1" % (vr(GB[tt] + 4 * q), (52, 42, 53, 43)[tt], 16 * q))
    gather()
    a("s_mov_b32 s40, 0")
    a("s_waitcnt vmcnt(0)")
    a.label("%s_chk" % name)
    a("v_subrev_u32 v11, 16, v198")
    for tt in range(4):
        for r in range(GB[tt] + 1, GB[tt] + 16, 4):
            a("v_or3_b32 v11, v11, v%d, v%d" % (r, r + 2))
    a("v_cmp_gt_i32 vcc, 0, v11")
    a("s_add_u32 s40, s40, 1")
    a("s_cmp_gt_u32 s40, %d" % SPIN_MAX)
    a("s_cbranch_scc1 %s_ok" % name)
    a("s_cbranch_vccz %s_ok" % name)
    a("s_sleep 32")
    a("buffer_load_dword v198, v199, s[60:63], 0 offen sc1")
    a("s_waitcnt vmcnt(0)")
    gather()
    a("s_waitcnt vmcnt(0)")
    a("s_branch %s_chk" % name)
    a.label("%s_ok" % name)
    stamp(a, 5)
    for tt in range(4):
        b = GB[tt]
        for st_ in (8, 4, 2):
            for q in range(0, st_, 2):
                a("v_pk_add_f32 %s, %s, %s" % (vr(b + q, 2), vr(b + q, 2), vr(b + q + st_, 2)))
    emit_xg_reduce(a, [GB[tt] + e for tt in range(4) for e in range(2)], 72)
    for tt in range(4):
        b = GB[tt]
        emit_ln_finish(a, b, b + 1, 2304, b + 2, MR + 2 * tt, b + 4)
        a("v_mul_f32 v%d, -v%d, v%d" % (MR + 2 * tt + 1, b + 2, MR + 2 * tt))
    a("v_lshrrev_b32 v10, 4, v2")
    a("v_lshrrev_b32 v11, 2, v2"); a("v_and_b32 v11, 1, v11"); a("v_lshlrev_b32 v11, 4, v11")
    a("v_lshrrev_b32 v5, 3, v2"); a("v_and_b32 v5, 1, v5"); a("v_lshl_add_u32 v11, v5, 2, v11")
    a("v_and_b32 v5, 3, v2"); a("v_add_u32 v11, v11, v5")
    a("v_and_b32 v5, 1, v10")
    a("v_lshl_add_u32 v11, v5, 3, v11")
    a("v_lshlrev_b32 v11, 5, v11")
    a("v_lshrrev_b32 v5, 1, v10")
    a("v_lshl_add_u32 v6, v5, 4, v11")
    a("s_lshl_b32 s33, s23, 5")
    a("s_lshl_b32 s36, s22, 1")
    a("s_add_u32 s33, s33, s36")
    a("s_add_u32 s33, s33, s24")
    a("s_mul_i32 s33, s33, 18432")
    if ZIMG: a("s_add_u32 s33, s33, 0x%x" % ZIMG)
    a("s_lshl_b32 s36, s25, 10")
    a("s_add_u32 s39, s33, s36")
    a("s_add_u32 s39, s39, 8192")
    a("s_mul_i32 s38, s25, 10240")
    a("s_add_u32 s33, s33, s38")
    a("s_add_u32 s37, s33, s36")
    a("s_xor_b32 s36, s36, 1024")
    a("s_add_u32 s38, s33, s36")
    a("s_add_u32 s33, s37, 4096")
    a("s_add_u32 s36, s38, 4096")
    def norm_pair(nA, ttA, nB, ttB, O):
        for q, (n, tt) in enumerate(((nA, ttA), (nB, ttB))):
            for d in range(2):
                z = Z2 + 2 * n + d; t = T + 4 * q + 2 * d
                a("v_lshlrev_b32 v%d, 16, v%d" % (t, z))
                a("v_and_b32 v%d, 0xffff0000, v%d" % (t + 1, z))
        for q, (n, tt) in enumerate(((nA, ttA), (nB, ttB))):
            for d in range(2):
                t = T + 4 * q + 2 * d
                a("v_pk_fma_f32 %s, %s, %s, %s op_sel:[0,0,1] op_sel_hi:[1,0,1]" % (vr(t, 2), vr(t, 2), vr(MR + 2 * tt, 2), vr(MR + 2 * tt, 2)))
        for q in range(2):
            for d in range(2):
                t = T + 4 * q + 2 * d
                a("v_cvt_pk_bf16_f32 v%d, v%d, v%d" % (O + 2 * q + d, t, t + 1))
        a("s_nop 1")
        a("v_permlane16_swap_b32 v%d, v%d" % (O, O + 2))
        a("v_permlane16_swap_b32 v%d, v%d" % (O + 1, O + 3))
    cnt = 0
    for ft in range(4):
        for pp in range(2):
            O = 200 + 4 * cnt; cnt += 1
            norm_pair(tidx(ft, 2 * pp), 2 * pp, tidx(ft, 2 * pp + 1), 2 * pp + 1, O)
            a("s_nop 0")
            a("buffer_store_dwordx4 %s, v6, s[12:15], s%d offen offset:%d sc1" % (vr(O), ((37, 38), (33, 36))[ft >> 1][pp], (ft & 1) * 2048))
    O = 200 + 4 * cnt
    norm_pair(16, 0, 17, 1, O)
    a("s_nop 0")
    a("buffer_store_dwordx4 %s, v6, s[12:15], s39 offen sc1" % vr(O))
    stamp(a, 6)
    a("s_setprio 3")
    srd(a, 8, 78, 2048 * 2048 * 2)
    a("v_lshrrev_b32 v3, 3, v2")
    a("s_lshl_b32 s24, s3, 5")
    a("v_add_u32 v3, s24, v3")
    a("v_and_b32 v4, 7, v2")
    a("v_lshrrev_b32 v6, 4, v2")
    a("v_xor_b32 v6, v6, v4")
    a("v_lshlrev_b32 v6, 4, v6")
    a("v_lshl_add_u32 v10, v3, 12, v6")
    a("v_xor_b32 v11, 64, v10")
    a("v_add_u32 v11, %d, v11" % (32768 - 1024))
    a("v_add_u32 v12, %d, v10" % (2 * (32768 - 1024)))
    a("v_add_u32 v13, %d, v11" % (2 * (32768 - 1024)))
    a("v_lshlrev_b32 v14, 4, v2")
    a("s_lshl_b32 s26, s22, 19")
    a("s_mul_i32 s27, s23, %d" % (32 * 18432))
    a("s_lshl_b32 s24, s3, 12")
    a("s_add_u32 s27, s27, s24")
    if ZIMG: a("s_add_u32 s27, s27, 0x%x" % ZIMG)
    a("s_lshl_b32 s25, s3, 9")
    a("s_sub_u32 s32, s25, s24")
    a("s_add_u32 s32, s32, 16384")
    a("s_add_u32 s24, s24, %d" % RB)
    a("s_waitcnt vmcnt(0) lgkmcnt(0)")
    a("v_mov_b32 v26, %d" % LC)
    a("v_mov_b32 v27, 1")
    a("s_mov_b64 exec, 1")
    a("ds_add_rtn_u32 v28, v26, v27")
    a("s_waitcnt lgkmcnt(0)")
    a("v_readfirstlane_b32 s36, v28")
    a("s_cmp_lg_u32 s36, 3")
    a("s_cbranch_scc1 %s_nozs" % name)
    a("v_mov_b32 v28, 0")
    a("buffer_store_dword v27, v28, s[12:15], s97 offen sc1")
    a.label("%s_nozs" % name)
    a("s_mov_b64 exec, -1")
    stamp(a, 7)
    srd(a, 16, 88, 576 * 2048 * 2)
    srd(a, 84, 90, 576 * 2)
    for g in range(4):
        a("s_add_u32 s35, s24, %d" % (g * SLOT))
        a("s_mov_b32 m0, s35")
        a("s_add_u32 s36, s26, %d" % (128 * g))
        for n in range(4):
            a("buffer_load_dwordx4 v%d, s[8:11], s36 offen offset:%d lds" % (10 + n, n * 1024))
    a("s_mov_b32 s34, 0")
    a("s_cmp_lg_u32 s3, 0")
    a("s_cbranch_scc1 %s_pl" % name)
    a("v_and_b32 v28, 15, v2")
    a("v_lshlrev_b32 v30, 2, v28")
    a("v_lshlrev_b32 v28, 12, v28")
    a("s_lshl_b32 s52, s23, 8")
    a("s_add_u32 s52, s52, 0x%x" % ZFLG)
    a.label("%s_pz0" % name)
    a("buffer_load_dword v31, v30, s[60:63], 0 offen sc1")
    a("s_add_u32 s34, s34, 1")
    a("s_waitcnt vmcnt(0)")
    a("v_cmp_gt_u32 vcc, 16, v31")
    a("s_cmp_gt_u32 s34, %d" % SPIN_MAX)
    a("s_cbranch_scc1 %s_pz" % name)
    a("s_cbranch_vccz %s_pz" % name)
    a("s_sleep 32")
    a("s_branch %s_pz0" % name)
    a.label("%s_pz" % name)
    a("buffer_load_dword v29, v28, s[12:15], s52 offen sc1")
    a("s_add_u32 s34, s34, 1")
    a("s_waitcnt vmcnt(0)")
    a("v_cmp_ne_u32 vcc, 1, v29")
    a("s_cmp_gt_u32 s34, %d" % SPIN_MAX)
    a("s_cbranch_scc1 %s_pzx" % name)
    a("s_cbranch_vccz %s_pzx" % name)
    a("s_sleep 8")
    a("s_branch %s_pz" % name)
    a.label("%s_pzx" % name)
    a("v_mov_b32 v27, 1")
    a("ds_write_b32 v26, v27 offset:4")
    a("s_branch %s_pgo" % name)
    a.label("%s_pl" % name)
    a("ds_read_b32 v27, v26 offset:4")
    a("s_add_u32 s34, s34, 1")
    a("s_waitcnt lgkmcnt(0)")
    a("v_readfirstlane_b32 s36, v27")
    a("s_cmp_gt_u32 s34, %d" % (SPIN_MAX * 20))
    a("s_cbranch_scc1 %s_pgo" % name)
    a("s_cmp_lg_u32 s36, 0")
    a("s_cbranch_scc1 %s_pgo" % name)
    a("s_sleep 2")
    a("s_branch %s_pl" % name)
    a.label("%s_pgo" % name)
    stamp(a, 8)
    for g in range(4):
        a("s_add_u32 s35, s24, %d" % (g * SLOT + TREG))
        a("s_mov_b32 m0, s35")
        a("s_add_u32 s36, s27, %d" % (18432 * g))
        a("s_add_u32 s37, s36, s32")
        for n in range(4):
            a("buffer_load_dwordx4 v14, s[12:15], s36 offen offset:%d sc1 lds" % (n * 1024))
        a("s_add_u32 s35, s35, s32")
        a("s_mov_b32 m0, s35")
        a("s_mov_b64 exec, 0xffffffff")
        a("buffer_load_dwordx4 v14, s[12:15], s37 offen sc1 lds")
        a("s_mov_b64 exec, -1")
    a("s_add_u32 s26, s26, 512")
    a("s_add_u32 s27, s27, %d" % (4 * 18432))
    a("s_mov_b32 s33, 0")
    a("s_lshl_b32 s43, s2, 2")
    a("s_add_u32 s43, s43, s3")
    a("s_and_b32 s53, s43, 1")
    a("s_sub_u32 s36, s43, 448")
    a("s_lshr_b32 s37, s43, 1")
    a("s_cmp_ge_u32 s43, 896")
    a("s_cselect_b32 s43, s36, s37")
    a("s_cselect_b32 s53, 2, s53")
    a("s_waitcnt vmcnt(15)")
    a("s_barrier")
    a("s_waitcnt vmcnt(10)")
    a("s_barrier")
    a("s_waitcnt vmcnt(5)")
    a("s_barrier")
    a("s_mov_b32 s34, 4")
    def issue2():
        a("s_add_u32 s35, s33, s24")
        a("s_mov_b32 m0, s35")
        a("s_add_u32 s36, s35, %d" % TREG)
        for n in range(4):
            a("buffer_load_dwordx4 v%d, s[8:11], s26 offen offset:%d lds" % (10 + n, n * 1024))
        a("s_mov_b32 m0, s36")
        a("s_add_u32 s37, s27, s32")
        for n in range(4):
            a("buffer_load_dwordx4 v14, s[12:15], s27 offen offset:%d sc1 lds" % (n * 1024))
        a("s_add_u32 s36, s36, s32")
        a("s_mov_b32 m0, s36")
        a("s_mov_b64 exec, 0xffffffff")
        a("buffer_load_dwordx4 v14, s[12:15], s37 offen sc1 lds")
        a("s_mov_b64 exec, -1")
        a("s_add_u32 s26, s26, 128")
        a("s_add_u32 s27, s27, 18432")
        a("s_add_u32 s33, s33, %d" % SLOT)
        a("s_cmp_eq_u32 s33, %d" % (R * SLOT))
        a("s_cselect_b32 s33, 0, s33")
    a.label("%s_lloop" % name)
    issue2()
    a("s_cmp_eq_u32 s34, 18")
    a("s_cbranch_scc1 %s_hk1" % name)
    a("s_cmp_eq_u32 s34, 21")
    a("s_cbranch_scc1 %s_hk2" % name)
    a("s_waitcnt vmcnt(9)")
    a.label("%s_lcont" % name)
    a("s_barrier")
    a("s_add_u32 s34, s34, 1")
    a("s_cmp_lt_u32 s34, 32")
    a("s_cbranch_scc1 %s_lloop" % name)
    a("s_branch %s_ldone" % name)
    a.label("%s_hk1" % name)
    a("v_and_b32 v28, 15, v2")
    a("v_lshlrev_b32 v28, 2, v28")
    a("buffer_load_dword v29, v28, s[60:63], 0 offen offset:128 sc1")
    a("s_waitcnt vmcnt(10)")
    a("s_branch %s_lcont" % name)
    a.label("%s_hk2" % name)
    a("s_mov_b32 s52, 0")
    a.label("%s_hk2l" % name)
    a("v_cmp_gt_u32 vcc, 16, v29")
    a("s_add_u32 s52, s52, 1")
    a("s_cmp_gt_u32 s52, %d" % SPIN_MAX)
    a("s_cbranch_scc1 %s_hk2g" % name)
    a("s_cbranch_vccz %s_hk2g" % name)
    a("s_sleep 16")
    a("buffer_load_dword v29, v28, s[60:63], 0 offen offset:128 sc1")
    a("s_waitcnt vmcnt(0)")
    a("s_branch %s_hk2l" % name)
    a.label("%s_hk2g" % name)
    nconv = emit_conv_loads(a, " sc1")
    a("s_waitcnt vmcnt(%d)" % (9 + nconv))
    a("s_branch %s_lcont" % name)
    a.label("%s_ldone" % name)
    a("s_waitcnt vmcnt(0)")
    a("s_barrier")
    a("s_mov_b32 s26, s53")
    a("s_and_b32 s27, s3, 1")
    a("s_mul_i32 s27, s27, %d" % CJ_SIZE)
    a("s_lshr_b32 s36, s3, 1")
    a("s_mul_i32 s36, s36, %d" % SLOT)
    a("s_add_u32 s27, s27, s36")
    a("s_add_u32 s27, s27, %d" % RB)
    def mid():
        a("s_barrier")
        a("s_setprio 0")
    sv = set(DBG); DBG.discard("stamp")
    emit_conv_job(a, name, mid)
    DBG.update(sv)
    G.stamp_rt(a, 1)
    a.label("%s_end" % name)
    a("s_endpgm")
    return a.text(), kernel_desc(name, 256, 256), (name, 256, 512, LDSB)

def gen_kf6(name="k1_kernel", R=4):
    a = Asm()
    RB = 4096; SLOT = 34816; TREG = 16384; FS = 288; RST = 0
    LDSB = RB + R * SLOT
    LC = 2048
    ZFLG = 0x2D00000; PFL = 128
    C0 = 77824; CW = 151552; CSL = 36864; YOFF = 151552; CTREG = 16384; CFS = 160
    from gen3 import emit_conv_loads, emit_conv_job, CJ_SIZE
    def capture(f, *args):
        lb = len(a.lines); f(*args); out = a.lines[lb:]; del a.lines[lb:]; return out

    def c_common():
        a("s_load_dwordx2 s[4:5], s[0:1], 0")
        a("s_load_dwordx2 s[16:17], s[0:1], 88")
        a("s_and_b32 s20, s2, 7")
        a("s_lshr_b32 s21, s2, 3")
        a("s_and_b32 s22, s20, 3")
        a("s_lshl_b32 s22, s22, 3")
        a("s_and_b32 s23, s21, 7")
        a("s_add_u32 s22, s22, s23")
        a("s_lshr_b32 s23, s20, 2")
        a("s_lshl_b32 s23, s23, 2")
        a("s_lshr_b32 s24, s21, 3")
        a("s_add_u32 s23, s23, s24")
        a("s_lshr_b32 s52, s23, 1")
        a("s_and_b32 s53, s23, 1")
        a("s_lshl_b32 s54, s98, 2")
        a("s_add_u32 s54, s54, s3")
        a("s_waitcnt lgkmcnt(0)")
        srd(a, 8, 4, 2048 * 576 * 2)
        srd(a, 28, 16, 2048 * 576 * 2)
    XR = 200; ST = 208
    def fin_loads():
        a("v_and_b32 v3, 15, v2")
        a("v_lshrrev_b32 v10, 4, v2")
        a("v_mul_u32_u24 v13, 1152, v3")
        a("v_lshl_add_u32 v13, v10, 3, v13")
        a("v_lshlrev_b32 v12, 3, v3")
        for s_ in range(3):
            if s_ == 2:
                a("s_cmp_ge_u32 s54, 2")
                a("s_cbranch_scc1 %s_fl%d" % (name, fin_loads.cnt))
            b = 64 + 4 * s_
            if s_ < 2:
                a("s_add_u32 s36, s54, %d" % (8 * s_))
                a("s_lshr_b32 s37, s36, 2")
                a("s_and_b32 s38, s36, 3")
                a("s_mul_i32 s39, s53, 160")
                a("s_lshl_b32 s40, s37, 5")
                a("s_add_u32 s39, s39, s40")
            else:
                a("s_add_u32 s36, s54, 16")
                a("s_mov_b32 s37, 4")
                a("s_mov_b32 s38, s54")
                a("s_mov_b32 s39, 128")
            a("s_lshl_b32 s40, s53, 1")
            a("s_add_u32 s38, s38, s40")
            a("s_and_b32 s38, s38, 3")
            a("s_lshl_b32 s40, s22, 2")
            a("s_add_u32 s40, s40, s38")
            a("s_lshl_b32 s40, s40, 4")
            a("s_mul_i32 s%d, s40, 1152" % b)
            a("s_add_u32 s%d, s%d, s39" % (b, b))
            a("s_mul_i32 s39, s52, 288")
            a("s_add_u32 s%d, s%d, s39" % (b, b))
            a("s_lshl_b32 s%d, s37, 11" % (b + 1))
            a("s_lshl_b32 s39, s38, 5")
            a("s_add_u32 s%d, s%d, s39" % (b + 1, b + 1))
            a("s_add_u32 s%d, s%d, %d" % (b + 1, b + 1, YOFF))
            a("s_lshl_b32 s%d, s36, 10" % (b + 2))
            a("s_add_u32 s%d, s%d, %d" % (b + 2, b + 2, C0))
            a("s_lshl_b32 s40, s40, 3")
            a("s_add_u32 s40, s40, 0x%x" % STATS1)
            a("buffer_load_dwordx2 %s, v13, s[8:11], s%d offen" % (vr(XR + 2 * s_, 2), b))
            a("buffer_load_dwordx2 %s, v12, s[12:15], s40 offen sc1" % vr(ST + 2 * s_, 2))
        a.label("%s_fl%d" % (name, fin_loads.cnt))
        fin_loads.cnt += 1
    fin_loads.cnt = 0
    kernel_begin(a, name)
    a("s_load_dwordx2 s[80:81], s[0:1], 0")
    a("s_load_dwordx2 s[4:5], s[0:1], 56")
    a("s_load_dwordx2 s[6:7], s[0:1], 104")
    a("s_load_dwordx2 s[18:19], s[0:1], 96")
    a("s_cmp_ge_u32 s2, 256")
    a("s_cbranch_scc1 %s_end" % name)
    a("v_lshrrev_b32 v1, 6, v0")
    a("v_and_b32 v2, 63, v0")
    a("v_readfirstlane_b32 s3, v1")
    G2.tile_ij(a)
    a("s_lshr_b32 s98, s3, 2")
    a("s_mov_b32 s54x, 0".replace("s54x", "s99"))
    a("s_and_b32 s3, s3, 3")
    a("s_lshr_b32 s24, s3, 1")
    a("s_and_b32 s25, s3, 1")
    a("v_and_b32 v3, 15, v2")
    VT = 204; VF = 208
    def loader_setup():
        a("v_lshrrev_b32 v5, 3, v2")
        a("v_and_b32 v4, 7, v2")
        a("s_lshl_b32 s36, s3, 5")
        a("v_add_u32 v5, s36, v5")
        a("v_lshrrev_b32 v7, 4, v2")
        a("v_xor_b32 v7, v7, v4")
        a("v_mul_u32_u24 v6, 1152, v5")
        a("v_lshl_add_u32 v%d, v7, 4, v6" % VT)
        a("v_xor_b32 v%d, 64, v%d" % (VT + 1, VT))
        a("v_add_u32 v%d, %d, v%d" % (VT + 1, 9216 - 1024, VT + 1))
        a("v_add_u32 v%d, %d, v%d" % (VT + 2, 2 * (9216 - 1024), VT))
        a("v_add_u32 v%d, %d, v%d" % (VT + 3, 2 * (9216 - 1024), VT + 1))
        a("s_lshl_b32 s84, s3, 12")
        a("s_add_u32 s84, s84, %d" % RB)
        a("s_lshl_b32 s85, s3, 9")
        a("s_add_u32 s85, s85, %d" % (RB + TREG + 16384))
    def loader_setup2():
        for n in range(5):
            if n < 4:
                a("s_lshl_b32 s36, s3, 8")
                a("s_add_u32 s36, s36, %d" % (64 * n))
            else:
                a("s_lshl_b32 s36, s3, 5")
                a("s_add_u32 s36, s36, 1024")
            a("v_add_u32 v6, s36, v2")
            a("v_mul_u32_u24 v7, 3641, v6")
            a("v_lshrrev_b32 v7, 16, v7")
            a("v_mul_u32_u24 v8, 18, v7")
            a("v_sub_u32 v8, v6, v8")
            a("v_and_b32 v9, 35, v7")
            a("v_bfe_u32 v6, v7, 2, 2")
            a("v_lshl_add_u32 v9, v6, 3, v9")
            a("v_bfe_u32 v6, v7, 4, 1")
            a("v_lshl_add_u32 v9, v6, 2, v9")
            a("v_mul_u32_u24 v9, 9216, v9")
            a("v_lshl_add_u32 v%d, v8, 4, v9" % (VF + n))
            if 0 < n < 4: a("v_subrev_u32 v%d, %d, v%d" % (VF + n, 1024 * n, VF + n))
    def issueT(g):
        st = g % 9
        a("s_add_u32 s86, s84, %d" % ((g % R) * SLOT))
        a("s_mov_b32 m0, s86")
        a("s_add_u32 s87, s82, %d" % (128 * st))
        for n in range(4):
            a("buffer_load_dwordx4 v%d, s[28:31], s87 offen offset:%d lds" % (VT + n, 1024 * n))
    def issueF(g):
        st = g % 9
        a("s_add_u32 s86, s84, %d" % ((g % R) * SLOT + TREG))
        a("s_mov_b32 m0, s86")
        a("s_add_u32 s87, s83, %d" % (64 * 9216 * st + (4608 if g < 9 else 0)))
        for n in range(4):
            a("buffer_load_dwordx4 v%d, s[8:11], s87 offen offset:%d lds" % (VF + n, 1024 * n))
        a("s_add_u32 s86, s85, %d" % ((g % R) * SLOT))
        a("s_mov_b32 m0, s86")
        a("s_mov_b64 exec, 0xffffffff")
        a("buffer_load_dwordx4 v%d, s[8:11], s87 offen lds" % (VF + 4))
        a("s_mov_b64 exec, -1")
    def srds_main():
        srd(a, 28, 80, 2048 * 576 * 2)
        srd(a, 8, 4, 576 * 4608 * 2)
        srd(a, 12, 6, WS_BYTES)
        srd(a, 60, 18, 256)
        a("s_mul_i32 s82, s22, %d" % (128 * 1152))
        a("s_mul_i32 s83, s23, 288")
    ACC = 128; FB = [16, 52]; CS = 216; ONE = 236
    vTa = [4, 5]; vTb = [6, 7]; vF = 8; vFh = 9
    bTa = [88, 89]; bTb = [90, 91]; bF = 92; bFh = 93
    def mma_setup():
        a("v_lshrrev_b32 v10, 4, v2")
        a("v_lshrrev_b32 v11, 1, v3")
        a("v_xor_b32 v10, v10, v11")
        a("v_lshlrev_b32 v10, 4, v10")
        a("v_lshl_add_u32 v10, v3, 7, v10")
        a("s_lshl_b32 s26, s24, 13")
        a("s_add_u32 s26, s26, %d" % RB)
        a("v_add_u32 v10, s26, v10")
        a("s_lshl_b32 s26, s25, 12")
        a("v_add_u32 v%d, s26, v10" % bTa[0])
        a("s_xor_b32 s26, s26, 4096")
        a("v_add_u32 v%d, s26, v10" % bTb[0])
        a("v_xor_b32 v%d, 64, v%d" % (bTa[1], bTa[0]))
        a("v_xor_b32 v%d, 64, v%d" % (bTb[1], bTb[0]))
        a("v_lshrrev_b32 v10, 2, v2")
        a("v_mul_u32_u24 v10, %d, v10" % FS)
        a("v_and_b32 v11, 3, v2")
        a("v_lshl_add_u32 v10, v11, 3, v10")
        a("v_add_u32 v10, %d, v10" % (RB + TREG))
        a("s_mul_i32 s26, s25, 160")
        a("v_add_u32 v%d, s26, v10" % bF)
        a("v_add_u32 v%d, 128, v10" % bFh)
        for r in range(ACC, ACC + 72): a("v_mov_b32 v%d, 0" % r)
        for r in range(CS, CS + 20): a("v_mov_b32 v%d, 0" % r)
        for r in range(ONE, ONE + 4): a("v_mov_b32 v%d, 0x3f803f80" % r)
    def mma_addr(slot):
        a("s_mov_b32 s27, %d" % (slot * SLOT))
        for d, s_ in ((vTa[0], bTa[0]), (vTb[0], bTb[0]), (vTa[1], bTa[1]), (vTb[1], bTb[1]), (vF, bF), (vFh, bFh)):
            a("v_add_u32 v%d, s27, v%d" % (d, s_))
    core = G.Core(a, ACC, FB[0], FB[1], FS, TREG, vTa, vTb, vF, vFh)
    trk = core.trk
    a("s_cmp_eq_u32 s98, 0")
    a("s_cbranch_scc1 %s_A0" % name)
    a("s_setprio 3")
    loader_setup()
    a("s_waitcnt lgkmcnt(0)")
    srds_main()
    vm = VmTracker(a)
    def issue(g, vmx):
        issueT(g); issueF(g); vmx.issue("S%d" % g, 9)
    issueT(0)
    loader_setup2()
    issueF(0); vm.issue("S0", 9)
    issue(1, vm); issue(2, vm); issue(3, vm)
    a("s_add_u32 s3, s3, 4"); stamp_setup(a, 1); stamp(a, 0); a("s_sub_u32 s3, s3, 4")
    mma_setup()
    RA = 96; XB = 112
    for r in range(RA, RA + 16): a("v_mov_b32 v%d, 0" % r)
    a("v_lshrrev_b32 v10, 4, v2")
    a("v_lshrrev_b32 v11, 1, v3")
    a("v_xor_b32 v10, v10, v11")
    a("v_lshlrev_b32 v10, 4, v10")
    a("v_lshl_add_u32 v10, v3, 7, v10")
    a("v_add_u32 v12, s84, v10")
    a("v_xor_b32 v13, 64, v12")
    def rs_rd(g):
        a("v_add_u32 v10, %d, v12" % ((g % R) * SLOT))
        a("v_add_u32 v11, %d, v13" % ((g % R) * SLOT))
        for h in range(2):
            for n in range(2):
                a("ds_read_b128 %s, v%d offset:%d" % (vr(XB + 8 * h + 4 * n), 10 + h, 2048 * n))
    def rs_do():
        for h in range(2):
            for n in range(2):
                x = XB + 8 * h + 4 * n
                a("v_mfma_f32_16x16x32_bf16 %s, %s, %s, %s" % (vr(RA + 4 * n), vr(ONE), vr(x), vr(RA + 4 * n)))
                a("v_mfma_f32_16x16x32_bf16 %s, %s, %s, %s" % (vr(RA + 8 + 4 * n), vr(x), vr(x), vr(RA + 8 + 4 * n)))
    def interleave(dma, comp, vmx=None):
        groups = []; cur = []
        for l in dma:
            cur.append(l)
            if "buffer_load" in l and not any("exec, 0xffffffff" in x for x in cur[-2:]):
                groups.append(cur); cur = []
            elif "exec, -1" in l:
                groups.append(cur); cur = []
        if cur: groups.append(cur)
        ns = max(1, len(groups))
        per = (len(comp) + ns - 1) // ns
        for g in groups:
            a.lines.extend(g)
            a.lines.extend(comp[:per]); comp = comp[per:]
        a.lines.extend(comp)
    vm.wait(["S0"])
    a("s_barrier")
    stamp(a, 1)
    rs_rd(0)
    vm.wait(["S1"])
    a("s_barrier")
    for k in range(9):
        a("s_waitcnt lgkmcnt(0)")
        dma = capture(lambda: (issueT(k + 3), issueF(k + 3))) if k >= 1 else []
        interleave(dma, capture(rs_do))
        if k >= 1: vm.issue("S%d" % (k + 3), 9)
        if k < 8:
            rs_rd(k + 1)
        else:
            a("s_nop 7")
            a("v_lshrrev_b32 v10, 4, v2")
            a("v_lshrrev_b32 v11, 2, v3")
            a("v_and_b32 v12, 3, v3")
            for n in range(2):
                G_ = RA + 8 + 4 * n
                for r in range(1, 4):
                    a("v_cmp_eq_u32 vcc, %d, v12" % r)
                    a("s_nop 1")
                    a("v_cndmask_b32 v%d, v%d, v%d, vcc" % (G_, G_, G_ + r))
            ML = 112
            for n in range(2):
                emit_ln_finish(a, RA + 4 * n, RA + 8 + 4 * n, 576, ML + 2 * n, ML + 2 * n + 1, 120)
                a("v_mov_b32 v%d, v%d" % (117 + 2 * n, ML + 2 * n + 1))
                a("v_sub_f32 v%d, 0, v%d" % (116 + 2 * n, ML + 2 * n))
            a("s_lshl_b32 s35, s3, 8")
            a("v_lshlrev_b32 v13, 3, v3")
            a("v_add_u32 v12, s35, v13")
            a("v_cmp_eq_u32 vcc, v10, v11")
            a("s_and_saveexec_b64 s[36:37], vcc")
            for n in range(2):
                a("ds_write_b64 v12, %s offset:%d" % (vr(116 + 2 * n, 2), RST + 128 * n))
            a("s_mov_b64 exec, s[36:37]")
            a("s_cmp_lg_u32 s23, 0")
            a("s_cbranch_scc1 %s_nost1" % name)
            a("s_lshl_b32 s35, s22, 7")
            a("s_lshl_b32 s36, s3, 5")
            a("s_add_u32 s35, s35, s36")
            a("s_lshl_b32 s35, s35, 3")
            a("s_add_u32 s35, s35, 0x%x" % STATS1)
            a("v_mov_b32 v11, 0x7ffffff0")
            a("v_cndmask_b32 v13, v11, v13, vcc")
            for n in range(2):
                a("buffer_store_dwordx2 %s, v13, s[12:15], s35 offen offset:%d sc1" % (vr(ML + 2 * n, 2), 128 * n))
            a.label("%s_nost1" % name)
            mma_addr(9 % R)
            a("s_mov_b32 s33, 0")
            a("s_setprio 0")
        vm.wait(["S%d" % (k + 2)], "lgkmcnt(0)" if k == 8 else "")
        if k < 8: a("s_barrier")
    a("s_branch %s_mma" % name)
    a.label("%s_A0" % name)
    emit_code_prefetch(a, name)
    a("s_load_dwordx4 s[64:67], s[0:1], 8")
    a("s_load_dwordx2 s[76:77], s[0:1], 24")
    a("s_load_dwordx2 s[78:79], s[0:1], 64")
    mma_setup()
    loader_setup(); loader_setup2()
    a("s_waitcnt lgkmcnt(0)")
    srds_main()
    srd(a, 68, 66, 2048 * 576 * 2)
    a("s_mov_b32 s88, s64"); a("s_mov_b32 s89, s65")
    srd(a, 64, 88, 2048 * 576 * 2)
    srd(a, 72, 76, 576 * 8)
    stamp_setup(a, 1); stamp(a, 0)
    def gran_addr():
        a("v_lshrrev_b32 v10, 4, v2")
        a("s_lshl_b32 s36, s25, 1")
        a("v_add_u32 v11, s36, v10")
        a("v_and_b32 v11, 3, v11")
        a("v_lshl_add_u32 v11, v11, 4, v3")
        a("v_lshlrev_b32 v94, 8, v11")
        a("s_lshl_b32 s59, s22, 7")
        a("s_lshl_b32 s36, s24, 6")
        a("s_add_u32 s59, s59, s36")
        a("s_lshl_b32 s59, s59, 8")
        a("s_add_u32 s59, s59, 0x%x" % STATS2)
        a("s_lshl_b32 s36, s23, 1")
        a("s_add_u32 s36, s36, s25")
        a("s_lshl_b32 s36, s36, 3")
        a("s_add_u32 s58, s36, s59")
    gran_addr()
    a("v_mov_b32 v12, 0"); a("v_mov_b32 v13, 0x80000000")
    a("buffer_store_dwordx2 v[12:13], v94, s[12:15], s58 offen sc1")
    a("s_lshl_b32 s36, s22, 4")
    a("s_add_u32 s36, s36, s23")
    a("s_lshl_b32 s36, s36, 8")
    a("s_add_u32 s97, s36, 0x%x" % ZFLG)
    a("v_mov_b32 v10, %d" % LC)
    a("v_mov_b32 v12, 0"); a("v_mov_b32 v13, 0")
    a("s_mov_b64 exec, 1")
    a("buffer_store_dword v12, v12, s[12:15], s97 offen sc1")
    a("buffer_store_dword v12, v12, s[12:15], s97 offen offset:%d sc1" % PFL)
    a("s_mov_b64 exec, -1")
    a("ds_write_b64 v10, v[12:13]")
    a("ds_write_b64 v10, v[12:13] offset:8")
    a("ds_write_b64 v10, v[12:13] offset:16")
    a("ds_write_b64 v10, v[12:13] offset:24")
    mma_addr(0)
    a("s_mov_b32 s33, 0")
    a("s_waitcnt lgkmcnt(0)")
    a("s_barrier")
    stamp(a, 1)
    a.label("%s_mma" % name)
    core.prime(0, core.reads(0, 0))
    trk.drain()
    nocs = [False]
    def mfmas(buf):
        L = []
        for ft in range(5):
            A = core.F(buf, ft)
            for tt in range(4 if ft < 4 else 2):
                c = core.accr(ft, tt); B = core.T(buf, tt)
                L.append(("v_mfma_f32_16x16x32_bf16 %s, %s, %s, %s" % (vr(c), vr(A), vr(B), vr(c)), list(range(A, A + 4)) + list(range(B, B + 4))))
            if not nocs[0]: L.append(("v_mfma_f32_16x16x32_bf16 %s, %s, %s, %s" % (vr(CS + 4 * ft), vr(A), vr(ONE), vr(CS + 4 * ft)), list(range(A, A + 4))))
        return L
    def phase(buf, pend):
        for (m, regs) in mfmas(buf):
            trk.need(regs)
            a(m)
            while pend:
                k, t = pend.pop(0)
                if k == "x":
                    a(t)
                    if t.startswith("s_"): continue
                else:
                    a(t[0]); trk.issue(t[1])
                break
        for k, t in pend:
            if k == "x": a(t)
            else: a(t[0]); trk.issue(t[1])
    def iteration(vw=True):
        if vw: a("s_waitcnt vmcnt(0)")
        a("s_barrier")
        rd = [("r", t) for t in core.reads(1, 1)]
        upd = ["s_add_u32 s27, s27, %d" % SLOT, "s_cmp_eq_u32 s27, %d" % (R * SLOT), "s_cselect_b32 s27, 0, s27"]
        tail = ["v_add_u32 v%d, s27, v%d" % (d, s_) for d, s_ in ((vTa[0], bTa[0]), (vF, bF), (vTb[0], bTb[0]), (vFh, bFh))]
        phase(0, rd[:1] + [("x", u) for u in upd] + rd[1:] + [("x", u) for u in tail])
        rd = [("r", t) for t in core.reads(0, 0)]
        tail = ["v_add_u32 v%d, s27, v%d" % (d, s_) for d, s_ in ((vTa[1], bTa[1]), (vTb[1], bTb[1]))] + ["s_add_u32 s33, s33, 1"]
        phase(1, rd + [("x", u) for u in tail])
    a.label("%s_cloop" % name)
    lb = len(a.lines); iteration(); st = copy.deepcopy(trk.out); del a.lines[lb:]; trk.out = copy.deepcopy(st)
    iteration()
    assert [sorted(x) for x in trk.out] == [sorted(x) for x in st]
    a("s_cmp_lt_u32 s33, 9")
    a("s_cbranch_scc1 %s_cloop" % name)
    trk.drain()
    stamp(a, 2)
    MR = 100; T = 72; ZP = 16
    def epi_in():
        gelu_consts(a)
        a("s_lshl_b32 s36, s24, 9")
        a("s_lshl_b32 s37, s25, 8")
        a("s_add_u32 s38, s36, s37")
        a("s_xor_b32 s37, s37, 256")
        a("s_add_u32 s39, s36, s37")
        a("v_lshlrev_b32 v10, 3, v3")
        a("v_add_u32 v11, s38, v10")
        a("ds_read_b64 %s, v11 offset:%d" % (vr(MR, 2), RST))
        a("ds_read_b64 %s, v11 offset:%d" % (vr(MR + 2, 2), RST + 128))
        a("v_add_u32 v11, s39, v10")
        a("ds_read_b64 %s, v11 offset:%d" % (vr(MR + 4, 2), RST))
        a("ds_read_b64 %s, v11 offset:%d" % (vr(MR + 6, 2), RST + 128))
        a("s_waitcnt lgkmcnt(0)")
    S = [108, 110, 52, 54]; Q = [109, 111, 53, 55]
    def gelu_ft(ft, stats):
        tts = range(4 if ft < 4 else 2)
        emit_fold_gelu(a, [(core.accr(ft, tt), CS + 4 * ft, MR + 2 * tt, ZP + 2 * tidx(ft, tt)) for tt in tts], T)
        if stats:
            for d in range(2):
                for tt in tts:
                    p = ZP + 2 * tidx(ft, tt) + d
                    a("v_dot2_f32_bf16 v%d, v%d, v%d, v%d" % (S[tt], p, ONE, S[tt]))
                    a("v_dot2_f32_bf16 v%d, v%d, v%d, v%d" % (Q[tt], p, p, Q[tt]))
    a("s_cmp_eq_u32 s98, 0")
    a("s_cbranch_scc1 %s_A1" % name)
    a("s_barrier")
    a("s_load_dwordx4 s[64:67], s[0:1], 8")
    a("s_load_dwordx2 s[76:77], s[0:1], 24")
    a("s_load_dwordx2 s[94:95], s[0:1], 80")
    a("s_load_dwordx2 s[92:93], s[0:1], 72")
    epi_in()
    srd(a, 68, 66, 2048 * 576 * 2)
    a("s_mov_b32 s88, s64"); a("s_mov_b32 s89, s65")
    srd(a, 64, 88, 2048 * 576 * 2)
    srd(a, 72, 76, 576 * 8)
    srd(a, 76, 94, 2304 * 576 * 2)
    srd(a, 28, 92, 2048 * 2)
    a("v_and_b32 v0, 255, v0")
    a("s_mov_b32 s41, s2")
    KDB = 240
    emit_kv_loads(a, 112, 240, 248, 252, 253)
    for ft in range(5): gelu_ft(ft, False)
    Z1R = 200; BI = 236
    for r_ in range(36): a("v_mov_b32 v%d, v%d" % (Z1R + r_, ZP + r_))
    stamp(a, 3)
    a("s_waitcnt vmcnt(0)")
    for n in range(11): a("v_mov_b32 v%d, v%d" % (16 + n, 112 + n))
    for n in range(8): a("v_mov_b32 v%d, v%d" % (32 + n, 240 + n))
    for n in range(4): a("v_mov_b32 v%d, v%d" % (44 + n, 248 + n))
    a("v_mov_b32 v56, v252"); a("v_mov_b32 v57, v253")
    for r_ in range(6): a("v_mov_b32 v%d, v%d" % (240 + r_, 88 + r_))
    a.label("%s_kvb" % name)
    emit_kv_compute(a, wait=False, store=False)
    a("s_mov_b32 s39, 0x%x" % KVT)
    a("buffer_store_dwordx4 v[120:123], v12, s[12:15], s39 offen sc1")
    a("buffer_store_dwordx4 v[124:127], v13, s[12:15], s39 offen sc1")
    a("s_add_u32 s41, s41, 256")
    a("s_cmp_ge_u32 s41, 288")
    a("s_cbranch_scc1 %s_kvbd" % name)
    emit_kv_loads(a)
    a("s_waitcnt vmcnt(0)")
    a("s_branch %s_kvb" % name)
    a.label("%s_kvbd" % name)
    for r_ in range(6): a("v_mov_b32 v%d, v%d" % (88 + r_, 240 + r_))
    a("s_mov_b32 s42, s2")
    emit_wot_loads(a, 100, 112, 720, 3)
    a("s_lshl_b32 s36, s22, 7")
    a("s_lshl_b32 s37, s24, 6")
    a("s_add_u32 s36, s36, s37")
    a("v_lshlrev_b32 v11, 1, v3")
    a("s_lshl_b32 s37, s25, 6")
    a("s_lshl_b32 s38, s36, 1")
    a("s_add_u32 s39, s38, s37")
    a("s_xor_b32 s37, s37, 64")
    a("s_add_u32 s36, s38, s37")
    a("buffer_load_ushort v96, v11, s[28:31], s39 offen")
    a("buffer_load_ushort v97, v11, s[28:31], s39 offen offset:32")
    a("buffer_load_ushort v98, v11, s[28:31], s36 offen")
    a("buffer_load_ushort v99, v11, s[28:31], s36 offen offset:32")
    for r in range(ACC, ACC + 72): a("v_mov_b32 v%d, 0" % r)
    mma_addr(0)
    a("s_mov_b32 s33, 0")
    stamp(a, 4)
    a("s_barrier")
    stamp(a, 5)
    core.prime(0, core.reads(0, 0))
    trk.drain()
    nocs[0] = True
    a.label("%s_gloop" % name)
    lb = len(a.lines); iteration(False); st = copy.deepcopy(trk.out); del a.lines[lb:]; trk.out = copy.deepcopy(st)
    iteration(False)
    assert [sorted(x) for x in trk.out] == [sorted(x) for x in st]
    a("s_cmp_lg_u32 s33, 3")
    a("s_cbranch_scc1 %s_ghk0" % name)
    a("s_waitcnt vmcnt(0)")
    for n in range(3):
        a("buffer_store_dwordx4 %s, v%d, s[12:15], s40 offen sc1" % (vr(100 + 4 * n), 112 + n))
    for tt in range(4): a("v_lshlrev_b32 v%d, 16, v%d" % (BI + 2 * tt, 96 + tt))
    a.label("%s_ghk0" % name)
    a("s_cmp_lg_u32 s33, 6")
    a("s_cbranch_scc1 %s_ghk" % name)
    a("s_waitcnt vmcnt(0)")
    a("v_mov_b32 v10, %d" % (LC + 8))
    a("v_mov_b32 v11, 1")
    a("s_mov_b64 exec, 1")
    a("ds_add_rtn_u32 v12, v10, v11")
    a("s_waitcnt lgkmcnt(0)")
    a("v_readfirstlane_b32 s36, v12")
    a("s_cmp_lg_u32 s36, 3")
    a("s_cbranch_scc1 %s_nokvs" % name)
    a("s_and_b32 s36, s2, 15")
    a("s_lshl_b32 s36, s36, 2")
    a("s_add_u32 s36, s36, 128")
    a("v_mov_b32 v10, s36")
    a("buffer_atomic_add v11, v10, s[60:63], 0 offen sc1")
    a.label("%s_nokvs" % name)
    a("s_mov_b64 exec, -1")
    a.label("%s_ghk" % name)
    a("s_cmp_lt_u32 s33, 32")
    a("s_cbranch_scc1 %s_gloop" % name)
    trk.drain()
    stamp(a, 6)
    lb_ = len(a.lines)
    G3.emit_k2_epilogue(a, core, Z1R, BI)
    for n_ in range(lb_, len(a.lines)):
        if "buffer_store_dwordx4" in a.lines[n_]: a.lines[n_] += " sc1"
    stamp(a, 7)
    a("s_setprio 3")
    a("s_lshl_b32 s36, s22, 4")
    a("s_add_u32 s36, s36, s23")
    a("s_lshl_b32 s36, s36, 8")
    a("s_add_u32 s97, s36, 0x%x" % (ZFLG + PFL))
    c_common()
    a("v_lshlrev_b32 v14, 4, v2")
    a("s_mul_i32 s26, s22, %d" % (36 * 8192))
    a("s_lshl_b32 s24, s3, 12")
    a("s_add_u32 s26, s26, s24")
    a("s_add_u32 s26, s26, 0x%x" % PIMG)
    a("s_mul_i32 s27, s23, %d" % (18 * 20480))
    a("s_mul_i32 s25, s3, 5120")
    a("s_add_u32 s27, s27, s25")
    a("s_add_u32 s27, s27, 0x%x" % WOT)
    a("s_add_u32 s25, s25, %d" % CTREG)
    a("v_and_b32 v28, 15, v2")
    a("v_lshlrev_b32 v30, 2, v28")
    a("buffer_load_dword v31, v30, s[60:63], 0 offen offset:128 sc1")
    a("v_mov_b32 v26, %d" % LC)
    a("v_mov_b32 v27, 1")
    a("s_waitcnt vmcnt(0)")
    a("s_mov_b64 exec, 1")
    a("ds_add_rtn_u32 v29, v26, v27 offset:16")
    a("s_waitcnt lgkmcnt(0)")
    a("v_readfirstlane_b32 s36, v29")
    a("s_cmp_lg_u32 s36, 3")
    a("s_cbranch_scc1 %s_nops" % name)
    a("v_mov_b32 v29, 0")
    a("buffer_store_dword v27, v29, s[12:15], s97 offen sc1")
    a.label("%s_nops" % name)
    a("s_mov_b64 exec, -1")
    a("s_mov_b32 s34, 0")
    a.label("%s_cw" % name)
    a("ds_read_b32 v29, v26 offset:16")
    a("s_add_u32 s34, s34, 1")
    a("s_waitcnt lgkmcnt(0)")
    a("v_readfirstlane_b32 s36, v29")
    a("s_cmp_gt_u32 s34, %d" % (SPIN_MAX * 20))
    a("s_cbranch_scc1 %s_cwx" % name)
    a("s_cmp_ge_u32 s36, 4")
    a("s_cbranch_scc1 %s_cwx" % name)
    a("s_sleep 1")
    a("s_branch %s_cw" % name)
    a.label("%s_cwx" % name)
    a("s_mov_b32 s34, 0")
    a.label("%s_cp" % name)
    a("v_cmp_gt_u32 vcc, 16, v31")
    a("s_add_u32 s34, s34, 1")
    a("s_cmp_gt_u32 s34, %d" % SPIN_MAX)
    a("s_cbranch_scc1 %s_cpx" % name)
    a("s_cbranch_vccz %s_cpx" % name)
    a("s_sleep 32")
    a("buffer_load_dword v31, v30, s[60:63], 0 offen offset:128 sc1")
    a("s_waitcnt vmcnt(0)")
    a("s_branch %s_cp" % name)
    a.label("%s_cpx" % name)
    def cF(off, soff):
        a("s_add_u32 s36, s25, %s" % off)
        a("s_mov_b32 m0, s36")
        a("s_add_u32 s37, %s, 4096" % soff)
        for n in range(4):
            a("buffer_load_dwordx4 v14, s[12:15], %s offen offset:%d sc1 lds" % (soff, n * 1024))
        a("s_add_u32 s36, s36, 4096")
        a("s_mov_b32 m0, s36")
        a("s_nop 0")
        a("buffer_load_dwordx4 v14, s[12:15], s37 offen sc1 lds")
    def cT(off, soff):
        a("s_add_u32 s35, s24, %s" % off)
        a("s_mov_b32 m0, s35")
        a("s_nop 0")
        for n in range(4):
            a("buffer_load_dwordx4 v14, s[12:15], %s offen offset:%d sc1 lds" % (soff, n * 1024))
    a("s_add_u32 s38, s27, 20480")
    cF(str(C0), "s27"); cF(str(C0 + CSL), "s38")
    a("s_mov_b32 s34, 0")
    a("s_cmp_lg_u32 s3, 0")
    a("s_cbranch_scc1 %s_cpl" % name)
    a("v_lshlrev_b32 v28, 8, v28")
    a("s_lshr_b32 s39, s22, 1")
    a("s_lshl_b32 s39, s39, 12")
    a("s_add_u32 s39, s39, 0x%x" % (ZFLG + PFL))
    a.label("%s_cpz" % name)
    a("buffer_load_dword v29, v28, s[12:15], s39 offen sc1")
    a("s_add_u32 s34, s34, 1")
    a("s_waitcnt vmcnt(0)")
    a("v_cmp_ne_u32 vcc, 1, v29")
    a("s_cmp_gt_u32 s34, %d" % SPIN_MAX)
    a("s_cbranch_scc1 %s_cpzx" % name)
    a("s_cbranch_vccz %s_cpzx" % name)
    a("s_sleep 8")
    a("s_branch %s_cpz" % name)
    a.label("%s_cpzx" % name)
    a("ds_write_b32 v26, v27 offset:24")
    a("s_branch %s_cgo" % name)
    a.label("%s_cpl" % name)
    a("ds_read_b32 v29, v26 offset:24")
    a("s_add_u32 s34, s34, 1")
    a("s_waitcnt lgkmcnt(0)")
    a("v_readfirstlane_b32 s36, v29")
    a("s_cmp_gt_u32 s34, %d" % (SPIN_MAX * 20))
    a("s_cbranch_scc1 %s_cgo" % name)
    a("s_cmp_lg_u32 s36, 0")
    a("s_cbranch_scc1 %s_cgo" % name)
    a("s_sleep 2")
    a("s_branch %s_cpl" % name)
    a.label("%s_cgo" % name)
    stamp(a, 8)
    a("s_add_u32 s38, s26, 16384")
    cT(str(C0), "s26"); cT(str(C0 + CSL), "s38")
    a("s_add_u32 s26, s26, 32768")
    a("s_add_u32 s27, s27, 40960")
    a("s_mov_b32 s33, %d" % RB)
    def cissue():
        cT("s33", "s26"); cF("s33", "s27")
        a("s_add_u32 s26, s26, 16384")
        a("s_add_u32 s27, s27, 20480")
        a("s_add_u32 s33, s33, %d" % CSL)
        a("s_cmp_eq_u32 s33, %d" % CW)
        a("s_cselect_b32 s33, %d, s33" % RB)
    a("s_waitcnt vmcnt(4)")
    a("s_barrier")
    cissue(); cissue()
    a("s_waitcnt vmcnt(18)")
    a("s_barrier")
    a("s_mov_b32 s34, 0")
    a.label("%s_clloop" % name)
    cissue()
    a("s_cmp_lg_u32 s34, 11")
    a("s_cbranch_scc1 %s_cl1" % name)
    a("buffer_load_dword v31, v30, s[60:63], 0 offen offset:192 sc1")
    a("s_waitcnt vmcnt(19)")
    a("s_branch %s_cl2" % name)
    a.label("%s_cl1" % name)
    a("s_waitcnt vmcnt(18)")
    a.label("%s_cl2" % name)
    a("s_barrier")
    a("s_add_u32 s34, s34, 1")
    a("s_cmp_lt_u32 s34, 14")
    a("s_cbranch_scc1 %s_clloop" % name)
    a("s_mov_b32 s34, 0")
    a.label("%s_cy" % name)
    a("v_cmp_gt_u32 vcc, 16, v31")
    a("s_add_u32 s34, s34, 1")
    a("s_cmp_gt_u32 s34, %d" % SPIN_MAX)
    a("s_cbranch_scc1 %s_cyx" % name)
    a("s_cbranch_vccz %s_cyx" % name)
    a("s_sleep 32")
    a("buffer_load_dword v31, v30, s[60:63], 0 offen offset:192 sc1")
    a("s_waitcnt vmcnt(0)")
    a("s_branch %s_cy" % name)
    a.label("%s_cyx" % name)
    a("v_lshrrev_b32 v3, 3, v2")
    a("v_and_b32 v4, 7, v2")
    a("v_lshlrev_b32 v4, 4, v4")
    a("s_mul_i32 s33, s52, 144")
    a("s_mul_i32 s34, s53, 80")
    a("s_lshl_b32 s35, s22, 7")
    a("s_add_u32 s35, s35, 0x%x" % YT)
    for n in range(3):
        a("s_add_u32 s36, s3, %d" % (4 * n))
        if n == 2: a("s_min_u32 s36, s36, 9")
        a("s_lshl_b32 s37, s36, 3")
        a("s_add_u32 s38, s37, s33")
        if n < 2: a("s_add_u32 s38, s38, s34")
        a("v_add_u32 v5, s38, v3")
        a("v_lshl_add_u32 v5, v5, 12, v4")
        a("s_lshl_b32 s36, s36, 10")
        a("s_add_u32 s36, s36, %d" % YOFF)
        a("s_mov_b32 m0, s36")
        a("s_nop 0")
        a("buffer_load_dwordx4 v5, s[12:15], s35 offen sc1 lds")
    fin_loads()
    a("s_waitcnt vmcnt(%d)" % (9 + 7))
    a("s_barrier")
    a("s_waitcnt vmcnt(7)")
    a("s_barrier")
    a("s_barrier")
    a("s_setprio 0")
    a("s_waitcnt vmcnt(0)")
    a("s_branch %s_cfin" % name)
    a.label("%s_A1" % name)
    a("s_setprio 2")
    vmA = VmTracker(a)
    PB = 132
    def aux_head():
        epi_in()
        for tt in range(4):
            a("v_mov_b32 v%d, 0" % S[tt]); a("v_mov_b32 v%d, 0" % Q[tt])
    def aux_pub():
        a("s_nop 2")
        emit_xg_reduce(a, S + Q, 72)
        a("v_lshrrev_b32 v10, 4, v2")
        for g in range(1, 4):
            a("v_cmp_eq_u32 vcc, %d, v10" % g)
            a("s_nop 1")
            a("v_cndmask_b32 v%d, v%d, v%d, vcc" % (S[0], S[0], S[g]))
            a("v_cndmask_b32 v%d, v%d, v%d, vcc" % (Q[0], Q[0], Q[g]))
        a("v_and_b32 v%d, 0x7fffffff, v%d" % (Q[0], Q[0]))
        a("buffer_store_dwordx2 v[%d:%d], v94, s[12:15], s58 offen sc1" % (S[0], Q[0]))
    chunks = [capture(aux_head) + capture(gelu_ft, 0, True), capture(gelu_ft, 1, True), capture(gelu_ft, 2, True),
              capture(gelu_ft, 3, True), capture(gelu_ft, 4, True) + capture(aux_pub)]
    KD = 172
    for k in range(9, 18):
        a("s_barrier")
        if k == 9:
            a("s_cmp_lg_u32 s3, 0")
            a("s_cbranch_scc1 %s_nosig" % name)
            a("v_mov_b32 v10, 1")
            a("s_lshl_b32 s36, s22, 2")
            a("v_mov_b32 v11, s36")
            a("s_mov_b64 exec, 1")
            a("buffer_atomic_add v10, v11, s[60:63], 0 offen sc1")
            a("s_mov_b64 exec, -1")
            a.label("%s_nosig" % name)
        g = k + 3
        dma = capture(lambda: (issueT(g), issueF(g))) if g < 18 else []
        comp = chunks[k - 9] if k - 9 < len(chunks) else []
        interleave(dma, comp)
        if k == 13: vmA.issue("pub", 1)
        if g < 18: vmA.issue("S%d" % g, 9)
        if k == 14:
            srd(a, 92, 78, 2048 * 2048 * 2)
            a("v_lshrrev_b32 v10, 4, v2")
            a("v_lshlrev_b32 v10, 12, v10")
            a("v_lshl_add_u32 v10, v3, 4, v10")
            a("s_lshl_b32 s40, s22, 7")
            a("s_lshl_b32 s36, s3, 5")
            a("s_add_u32 s40, s40, s36")
            a("s_lshl_b32 s40, s40, 12")
            a("s_lshl_b32 s36, s23, 8")
            a("s_add_u32 s40, s40, s36")
            for n in range(8):
                a("buffer_load_dwordx4 v[200:203], v10, s[92:95], s40 offen")
                if n < 7: a("s_add_u32 s40, s40, 16384")
            vmA.issue("wp", 8)
            a("s_lshl_b32 s36, s22, 2")
            a("v_mov_b32 v199, s36")
            a("buffer_load_dword v198, v199, s[60:63], 0 offen sc1"); vmA.issue("cnt", 1)
        if k + 2 < 18 and k + 2 >= 12:
            vmA.wait(["S%d" % (k + 2)])
    a("s_barrier")
    stamp(a, 3)
    a("s_load_dwordx4 s[88:91], s[0:1], 32")
    a("v_lshrrev_b32 v10, 4, v2")
    a("v_lshlrev_b32 v95, 8, v3")
    a("v_lshl_add_u32 v95, v10, 6, v95")
    a("s_lshl_b32 s33, s25, 13")
    a("s_add_u32 s52, s59, s33")
    a("s_xor_b32 s33, s33, 8192")
    a("s_add_u32 s53, s59, s33")
    a("s_add_u32 s42, s52, 4096")
    a("s_add_u32 s43, s53, 4096")
    Z2 = ZP
    a("s_waitcnt vmcnt(0)")
    GB = [128, 144, 160, 176]
    a("v_mov_b32 v4, v95")
    def gather():
        for tt in range(4):
            for q in range(4):
                a("buffer_load_dwordx4 %s, v4, s[12:15], s%d offen offset:%d sc1" % (vr(GB[tt] + 4 * q), (52, 42, 53, 43)[tt], 16 * q))
    gather()
    a("s_mov_b32 s40, 0")
    a("s_waitcnt vmcnt(0)")
    a.label("%s_chk" % name)
    a("v_subrev_u32 v11, 16, v198")
    for tt in range(4):
        for r in range(GB[tt] + 1, GB[tt] + 16, 4):
            a("v_or3_b32 v11, v11, v%d, v%d" % (r, r + 2))
    a("v_cmp_gt_i32 vcc, 0, v11")
    a("s_add_u32 s40, s40, 1")
    a("s_cmp_gt_u32 s40, %d" % SPIN_MAX)
    a("s_cbranch_scc1 %s_ok" % name)
    a("s_cbranch_vccz %s_ok" % name)
    a("s_sleep 32")
    a("buffer_load_dword v198, v199, s[60:63], 0 offen sc1")
    a("s_waitcnt vmcnt(0)")
    gather()
    a("s_waitcnt vmcnt(0)")
    a("s_branch %s_chk" % name)
    a.label("%s_ok" % name)
    stamp(a, 5)
    for tt in range(4):
        b = GB[tt]
        for st_ in (8, 4, 2):
            for q in range(0, st_, 2):
                a("v_pk_add_f32 %s, %s, %s" % (vr(b + q, 2), vr(b + q, 2), vr(b + q + st_, 2)))
    emit_xg_reduce(a, [GB[tt] + e for tt in range(4) for e in range(2)], 72)
    for tt in range(4):
        b = GB[tt]
        emit_ln_finish(a, b, b + 1, 2304, b + 2, MR + 2 * tt, b + 4)
        a("v_mul_f32 v%d, -v%d, v%d" % (MR + 2 * tt + 1, b + 2, MR + 2 * tt))
    a("v_lshrrev_b32 v10, 4, v2")
    a("v_lshrrev_b32 v11, 2, v2"); a("v_and_b32 v11, 1, v11"); a("v_lshlrev_b32 v11, 4, v11")
    a("v_lshrrev_b32 v5, 3, v2"); a("v_and_b32 v5, 1, v5"); a("v_lshl_add_u32 v11, v5, 2, v11")
    a("v_and_b32 v5, 3, v2"); a("v_add_u32 v11, v11, v5")
    a("v_mul_u32_u24 v11, 288, v11")
    a("v_lshrrev_b32 v5, 1, v10"); a("v_lshl_add_u32 v11, v5, 4, v11")
    a("v_and_b32 v5, 1, v10")
    a("v_lshl_add_u32 v6, v5, 5, v11")
    a("v_mul_u32_u24 v5, 2304, v5")
    a("v_add_u32 v9, v11, v5")
    a("s_lshl_b32 s33, s23, 5")
    a("s_lshl_b32 s36, s22, 1")
    a("s_add_u32 s33, s33, s36")
    a("s_add_u32 s33, s33, s24")
    a("s_mul_i32 s33, s33, 18432")
    if ZIMG: a("s_add_u32 s33, s33, 0x%x" % ZIMG)
    a("s_mul_i32 s36, s25, 9216")
    a("s_add_u32 s37, s33, s36")
    a("s_xor_b32 s36, s36, 9216")
    a("s_add_u32 s38, s33, s36")
    a("s_add_u32 s39, s37, 128")
    a("s_mul_i32 s36, s25, 160")
    a("s_add_u32 s37, s37, s36")
    a("s_add_u32 s38, s38, s36")
    def norm_pair(nA, ttA, nB, ttB, O):
        for q, (n, tt) in enumerate(((nA, ttA), (nB, ttB))):
            for d in range(2):
                z = Z2 + 2 * n + d; t = T + 4 * q + 2 * d
                a("v_lshlrev_b32 v%d, 16, v%d" % (t, z))
                a("v_and_b32 v%d, 0xffff0000, v%d" % (t + 1, z))
        for q, (n, tt) in enumerate(((nA, ttA), (nB, ttB))):
            for d in range(2):
                t = T + 4 * q + 2 * d
                a("v_pk_fma_f32 %s, %s, %s, %s op_sel:[0,0,1] op_sel_hi:[1,0,1]" % (vr(t, 2), vr(t, 2), vr(MR + 2 * tt, 2), vr(MR + 2 * tt, 2)))
        for q in range(2):
            for d in range(2):
                t = T + 4 * q + 2 * d
                a("v_cvt_pk_bf16_f32 v%d, v%d, v%d" % (O + 2 * q + d, t, t + 1))
        a("s_nop 1")
        a("v_permlane16_swap_b32 v%d, v%d" % (O, O + 2))
        a("v_permlane16_swap_b32 v%d, v%d" % (O + 1, O + 3))
    cnt = 0
    for pr in range(2):
        for tt in range(4):
            O = 200 + 4 * cnt; cnt += 1
            norm_pair(tidx(2 * pr, tt), tt, tidx(2 * pr + 1, tt), tt, O)
            a("s_nop 0")
            a("buffer_store_dwordx4 %s, v6, s[12:15], s%d offen offset:%d" % (vr(O), 37 if tt < 2 else 38, (tt & 1) * 2304 + 64 * pr) + " sc1")
    O = 200 + 4 * cnt
    norm_pair(16, 0, 17, 1, O)
    a("s_nop 0")
    a("buffer_store_dwordx4 %s, v9, s[12:15], s39 offen sc1" % vr(O))
    stamp(a, 6)
    a("s_setprio 3")
    srd(a, 8, 78, 2048 * 2048 * 2)
    a("v_lshrrev_b32 v3, 3, v2")
    a("s_lshl_b32 s24, s3, 5")
    a("v_add_u32 v3, s24, v3")
    a("v_and_b32 v4, 7, v2")
    a("v_lshrrev_b32 v6, 4, v2")
    a("v_xor_b32 v6, v6, v4")
    a("v_lshlrev_b32 v6, 4, v6")
    a("v_lshl_add_u32 v10, v3, 12, v6")
    a("v_xor_b32 v11, 64, v10")
    a("v_add_u32 v11, %d, v11" % (32768 - 1024))
    a("v_add_u32 v12, %d, v10" % (2 * (32768 - 1024)))
    a("v_add_u32 v13, %d, v11" % (2 * (32768 - 1024)))
    a("v_lshlrev_b32 v14, 4, v2")
    a("s_lshl_b32 s26, s22, 19")
    a("s_mul_i32 s27, s23, %d" % (32 * 18432))
    a("s_lshl_b32 s24, s3, 12")
    a("s_add_u32 s27, s27, s24")
    if ZIMG: a("s_add_u32 s27, s27, 0x%x" % ZIMG)
    a("s_lshl_b32 s25, s3, 9")
    a("s_sub_u32 s32, s25, s24")
    a("s_add_u32 s32, s32, 16384")
    a("s_add_u32 s24, s24, %d" % RB)
    a("s_waitcnt vmcnt(0) lgkmcnt(0)")
    a("v_mov_b32 v26, %d" % LC)
    a("v_mov_b32 v27, 1")
    a("s_mov_b64 exec, 1")
    a("ds_add_rtn_u32 v28, v26, v27")
    a("s_waitcnt lgkmcnt(0)")
    a("v_readfirstlane_b32 s36, v28")
    a("s_cmp_lg_u32 s36, 3")
    a("s_cbranch_scc1 %s_nozs" % name)
    a("v_mov_b32 v28, 0")
    a("buffer_store_dword v27, v28, s[12:15], s97 offen sc1")
    a.label("%s_nozs" % name)
    a("s_mov_b64 exec, -1")
    stamp(a, 7)
    srd(a, 16, 88, 576 * 2048 * 2)
    srd(a, 84, 90, 576 * 2)
    for g in range(4):
        a("s_add_u32 s35, s24, %d" % (g * SLOT))
        a("s_mov_b32 m0, s35")
        a("s_add_u32 s36, s26, %d" % (128 * g))
        for n in range(4):
            a("buffer_load_dwordx4 v%d, s[8:11], s36 offen offset:%d lds" % (10 + n, n * 1024))
    a("s_mov_b32 s34, 0")
    a("s_cmp_lg_u32 s3, 0")
    a("s_cbranch_scc1 %s_pl" % name)
    a("v_and_b32 v28, 15, v2")
    a("v_lshlrev_b32 v30, 2, v28")
    a("v_lshlrev_b32 v28, 12, v28")
    a("s_lshl_b32 s52, s23, 8")
    a("s_add_u32 s52, s52, 0x%x" % ZFLG)
    a.label("%s_pz0" % name)
    a("buffer_load_dword v31, v30, s[60:63], 0 offen sc1")
    a("s_add_u32 s34, s34, 1")
    a("s_waitcnt vmcnt(0)")
    a("v_cmp_gt_u32 vcc, 16, v31")
    a("s_cmp_gt_u32 s34, %d" % SPIN_MAX)
    a("s_cbranch_scc1 %s_pz" % name)
    a("s_cbranch_vccz %s_pz" % name)
    a("s_sleep 32")
    a("s_branch %s_pz0" % name)
    a.label("%s_pz" % name)
    a("buffer_load_dword v29, v28, s[12:15], s52 offen sc1")
    a("s_add_u32 s34, s34, 1")
    a("s_waitcnt vmcnt(0)")
    a("v_cmp_ne_u32 vcc, 1, v29")
    a("s_cmp_gt_u32 s34, %d" % SPIN_MAX)
    a("s_cbranch_scc1 %s_pzx" % name)
    a("s_cbranch_vccz %s_pzx" % name)
    a("s_sleep 8")
    a("s_branch %s_pz" % name)
    a.label("%s_pzx" % name)
    a("v_mov_b32 v27, 1")
    a("ds_write_b32 v26, v27 offset:4")
    a("s_branch %s_pgo" % name)
    a.label("%s_pl" % name)
    a("ds_read_b32 v27, v26 offset:4")
    a("s_add_u32 s34, s34, 1")
    a("s_waitcnt lgkmcnt(0)")
    a("v_readfirstlane_b32 s36, v27")
    a("s_cmp_gt_u32 s34, %d" % (SPIN_MAX * 20))
    a("s_cbranch_scc1 %s_pgo" % name)
    a("s_cmp_lg_u32 s36, 0")
    a("s_cbranch_scc1 %s_pgo" % name)
    a("s_sleep 2")
    a("s_branch %s_pl" % name)
    a.label("%s_pgo" % name)
    stamp(a, 8)
    for g in range(4):
        a("s_add_u32 s35, s24, %d" % (g * SLOT + TREG))
        a("s_mov_b32 m0, s35")
        a("s_add_u32 s36, s27, %d" % (18432 * g))
        a("s_add_u32 s37, s36, s32")
        for n in range(4):
            a("buffer_load_dwordx4 v14, s[12:15], s36 offen offset:%d sc1 lds" % (n * 1024))
        a("s_add_u32 s35, s35, s32")
        a("s_mov_b32 m0, s35")
        a("s_mov_b64 exec, 0xffffffff")
        a("buffer_load_dwordx4 v14, s[12:15], s37 offen sc1 lds")
        a("s_mov_b64 exec, -1")
    a("s_add_u32 s26, s26, 512")
    a("s_add_u32 s27, s27, %d" % (4 * 18432))
    a("s_mov_b32 s33, 0")
    a("s_lshl_b32 s43, s2, 2")
    a("s_add_u32 s43, s43, s3")
    a("s_and_b32 s53, s43, 1")
    a("s_sub_u32 s36, s43, 448")
    a("s_lshr_b32 s37, s43, 1")
    a("s_cmp_ge_u32 s43, 896")
    a("s_cselect_b32 s43, s36, s37")
    a("s_cselect_b32 s53, 2, s53")
    a("s_waitcnt vmcnt(15)")
    a("s_barrier")
    a("s_waitcnt vmcnt(10)")
    a("s_barrier")
    a("s_waitcnt vmcnt(5)")
    a("s_barrier")
    a("s_mov_b32 s34, 4")
    def issue2():
        a("s_add_u32 s35, s33, s24")
        a("s_mov_b32 m0, s35")
        a("s_add_u32 s36, s35, %d" % TREG)
        for n in range(4):
            a("buffer_load_dwordx4 v%d, s[8:11], s26 offen offset:%d lds" % (10 + n, n * 1024))
        a("s_mov_b32 m0, s36")
        a("s_add_u32 s37, s27, s32")
        for n in range(4):
            a("buffer_load_dwordx4 v14, s[12:15], s27 offen offset:%d sc1 lds" % (n * 1024))
        a("s_add_u32 s36, s36, s32")
        a("s_mov_b32 m0, s36")
        a("s_mov_b64 exec, 0xffffffff")
        a("buffer_load_dwordx4 v14, s[12:15], s37 offen sc1 lds")
        a("s_mov_b64 exec, -1")
        a("s_add_u32 s26, s26, 128")
        a("s_add_u32 s27, s27, 18432")
        a("s_add_u32 s33, s33, %d" % SLOT)
        a("s_cmp_eq_u32 s33, %d" % (R * SLOT))
        a("s_cselect_b32 s33, 0, s33")
    a.label("%s_lloop" % name)
    issue2()
    a("s_cmp_eq_u32 s34, 18")
    a("s_cbranch_scc1 %s_hk1" % name)
    a("s_cmp_eq_u32 s34, 21")
    a("s_cbranch_scc1 %s_hk2" % name)
    a("s_waitcnt vmcnt(9)")
    a.label("%s_lcont" % name)
    a("s_barrier")
    a("s_add_u32 s34, s34, 1")
    a("s_cmp_lt_u32 s34, 32")
    a("s_cbranch_scc1 %s_lloop" % name)
    a("s_branch %s_ldone" % name)
    a.label("%s_hk1" % name)
    a("v_and_b32 v28, 15, v2")
    a("v_lshlrev_b32 v28, 2, v28")
    a("buffer_load_dword v29, v28, s[60:63], 0 offen offset:128 sc1")
    a("s_waitcnt vmcnt(10)")
    a("s_branch %s_lcont" % name)
    a.label("%s_hk2" % name)
    a("s_mov_b32 s52, 0")
    a.label("%s_hk2l" % name)
    a("v_cmp_gt_u32 vcc, 16, v29")
    a("s_add_u32 s52, s52, 1")
    a("s_cmp_gt_u32 s52, %d" % SPIN_MAX)
    a("s_cbranch_scc1 %s_hk2g" % name)
    a("s_cbranch_vccz %s_hk2g" % name)
    a("s_sleep 16")
    a("buffer_load_dword v29, v28, s[60:63], 0 offen offset:128 sc1")
    a("s_waitcnt vmcnt(0)")
    a("s_branch %s_hk2l" % name)
    a.label("%s_hk2g" % name)
    nconv = emit_conv_loads(a, " sc1")
    a("s_waitcnt vmcnt(%d)" % (9 + nconv))
    a("s_branch %s_lcont" % name)
    a.label("%s_ldone" % name)
    a("s_waitcnt vmcnt(0)")
    a("s_barrier")
    a("s_mov_b32 s26, s53")
    a("s_and_b32 s27, s3, 1")
    a("s_mul_i32 s27, s27, %d" % CJ_SIZE)
    a("s_lshr_b32 s36, s3, 1")
    a("s_mul_i32 s36, s36, %d" % SLOT)
    a("s_add_u32 s27, s27, s36")
    a("s_add_u32 s27, s27, %d" % RB)
    def mid():
        a("s_barrier")
        a("s_setprio 0")
    sv = set(DBG); DBG.discard("stamp")
    lb_ = len(a.lines)
    emit_conv_job(a, name, mid)
    for n_ in range(lb_, len(a.lines)):
        if "buffer_store_dwordx2" in a.lines[n_]: a.lines[n_] += " sc1"
    DBG.update(sv)
    stamp(a, 9)
    c_common()
    cTa = [4, 4]; cTb = [6, 6]; cF_ = 8; cFh = 9
    kTa = 88; kTb = 90; kF = 92; kFh = 93
    a("v_and_b32 v3, 15, v2")
    a("v_lshrrev_b32 v10, 4, v2")
    a("s_and_b32 s26, s3, 1")
    a("s_lshl_b32 s26, s26, 2")
    a("v_add_u32 v10, s26, v10")
    a("v_lshrrev_b32 v11, 1, v3")
    a("v_xor_b32 v10, v10, v11")
    a("v_lshlrev_b32 v10, 4, v10")
    a("v_lshl_add_u32 v10, v3, 7, v10")
    a("s_lshr_b32 s26, s3, 1")
    a("s_lshl_b32 s26, s26, 13")
    a("v_add_u32 v10, s26, v10")
    a("s_lshl_b32 s26, s53, 12")
    a("v_add_u32 v%d, s26, v10" % kTa)
    a("s_xor_b32 s26, s26, 4096")
    a("v_add_u32 v%d, s26, v10" % kTb)
    a("v_lshrrev_b32 v10, 2, v2")
    a("v_mul_u32_u24 v10, %d, v10" % CFS)
    a("v_and_b32 v11, 3, v2")
    a("v_lshl_add_u32 v10, v11, 3, v10")
    a("s_mul_i32 s26, s3, %d" % (32 * CFS))
    a("s_add_u32 s26, s26, %d" % CTREG)
    a("v_add_u32 v%d, s26, v10" % kF)
    a("v_add_u32 v%d, 128, v%d" % (kFh, kF))
    a("v_mov_b32 v26, %d" % LC)
    a("v_mov_b32 v27, 1")
    a("s_waitcnt vmcnt(0)")
    a("s_mov_b64 exec, 1")
    a("ds_add_rtn_u32 v28, v26, v27 offset:20")
    a("s_waitcnt lgkmcnt(0)")
    a("v_readfirstlane_b32 s36, v28")
    a("s_cmp_lg_u32 s36, 3")
    a("s_cbranch_scc1 %s_nocs" % name)
    a("s_and_b32 s36, s2, 15")
    a("s_lshl_b32 s36, s36, 2")
    a("s_add_u32 s36, s36, 192")
    a("v_mov_b32 v28, s36")
    a("buffer_atomic_add v27, v28, s[60:63], 0 offen sc1")
    a.label("%s_nocs" % name)
    a("s_mov_b64 exec, -1")
    fin_loads()
    core3 = G.Core(a, ACC, FB[0], FB[1], CFS, CTREG, cTa, cTb, cF_, cFh)
    pairs = ((cTa[0], kTa), (cF_, kF), (cTb[0], kTb), (cFh, kFh))
    a("s_mov_b32 s27, %d" % C0)
    for d, s_ in pairs: a("v_add_u32 v%d, s27, v%d" % (d, s_))
    for r in range(ACC, ACC + 72): a("v_mov_b32 v%d, 0" % r)
    a("s_mov_b32 s33, 0")
    a("s_barrier")
    stamp(a, 10)
    core3.prime(0, core3.reads(0, 0))
    def citer(buf):
        core3.trk.drain()
        a("s_barrier")
        a("s_add_u32 s27, s27, %d" % CSL)
        a("s_cmp_eq_u32 s27, %d" % CW)
        a("s_cselect_b32 s27, %d, s27" % RB)
        pre = ["v_add_u32 v%d, s27, v%d" % (d, s_) for d, s_ in pairs]
        core3.phase(buf, core3.reads(1 - buf, 0), pre=pre)
    a.label("%s_ccloop" % name)
    citer(0); citer(1)
    a("s_add_u32 s33, s33, 1")
    a("s_cmp_lt_u32 s33, 9")
    a("s_cbranch_scc1 %s_ccloop" % name)
    core3.trk.drain()
    stamp(a, 11)
    a("s_mul_i32 s33, s3, %d" % (18 * 1024))
    a("s_add_u32 s33, s33, %d" % C0)
    a("v_lshlrev_b32 v10, 4, v2")
    a("v_add_u32 v11, s33, v10")
    a("s_nop 4")
    for n, (ft, tt) in enumerate(TILES):
        a("ds_write_b128 v11, %s offset:%d" % (vr(core3.accr(ft, tt)), 1024 * tidx(ft, tt)))
        if n in (7, 13): a("s_waitcnt lgkmcnt(4)")
    a("s_waitcnt lgkmcnt(0) vmcnt(0)")
    a.label("%s_cfin" % name)
    a("s_barrier")
    stamp(a, 12)
    a("v_lshlrev_b32 v10, 4, v2")
    a("v_lshrrev_b32 v11, 2, v2")
    a("v_lshlrev_b32 v11, 7, v11")
    a("v_and_b32 v12, 3, v2")
    a("v_lshl_add_u32 v11, v12, 3, v11")
    a("s_mov_b32 s33, 0xbfb8aa3b")
    PT = 16; YR = 64
    for s_ in range(3):
        b = 64 + 4 * s_
        if s_ == 2:
            a("s_cmp_ge_u32 s54, 2")
            a("s_cbranch_scc1 %s_rd" % name)
        a("v_add_u32 v4, s%d, v10" % (b + 2))
        a("v_add_u32 v5, s%d, v11" % (b + 1))
        for q in range(4):
            a("ds_read_b128 %s, v4 offset:%d" % (vr(PT + 16 * s_ + 4 * q), 18432 * q))
        a("ds_read_b64_tr_b16 %s, v5" % vr(YR + 2 * s_, 2))
    a.label("%s_rd" % name)
    T = 104
    for s_ in range(3):
        b = 64 + 4 * s_
        if s_ == 0: a("s_waitcnt lgkmcnt(5)")
        if s_ == 1: a("s_waitcnt lgkmcnt(0)")
        if s_ == 2:
            a("s_cmp_ge_u32 s54, 2")
            a("s_cbranch_scc1 %s_done" % name)
        o = PT + 16 * s_; X = XR + 2 * s_; Y = YR + 2 * s_; S_ = ST + 2 * s_
        for h in (0, 2):
            a("v_pk_add_f32 %s, %s, %s" % (vr(o + h, 2), vr(o + h, 2), vr(o + 4 + h, 2)))
            a("v_pk_add_f32 %s, %s, %s" % (vr(o + 8 + h, 2), vr(o + 8 + h, 2), vr(o + 12 + h, 2)))
        for h in (0, 2):
            a("v_pk_add_f32 %s, %s, %s" % (vr(o + h, 2), vr(o + h, 2), vr(o + 8 + h, 2)))
        rnd_pair(a, T + 20, o, o + 1); rnd_pair(a, T + 21, o + 2, o + 3)
        for r in range(4): a("v_mul_f32 v%d, s33, v%d" % (T + r, o + r))
        for r in range(4): a("v_exp_f32 v%d, v%d" % (T + r, T + r))
        a("v_lshlrev_b32 v%d, 16, v%d" % (T + 4, X)); a("v_and_b32 v%d, 0xffff0000, v%d" % (T + 5, X))
        a("v_lshlrev_b32 v%d, 16, v%d" % (T + 6, X + 1)); a("v_and_b32 v%d, 0xffff0000, v%d" % (T + 7, X + 1))
        for r in range(4): a("v_add_f32 v%d, 1.0, v%d" % (T + r, T + r))
        for r in range(4): a("v_rcp_f32 v%d, v%d" % (T + r, T + r))
        for r in range(4): a("v_sub_f32 v%d, v%d, v%d" % (T + 12 + r, T + 4 + r, S_))
        a("v_lshlrev_b32 v%d, 16, v%d" % (T + 8, Y)); a("v_and_b32 v%d, 0xffff0000, v%d" % (T + 9, Y))
        a("v_lshlrev_b32 v%d, 16, v%d" % (T + 10, Y + 1)); a("v_and_b32 v%d, 0xffff0000, v%d" % (T + 11, Y + 1))
        for r in range(4): a("v_mul_f32 v%d, v%d, v%d" % (o + r, o + r, T + r))
        rnd_pair(a, T + 20, T + 12, T + 13); rnd_pair(a, T + 21, T + 14, T + 15)
        rnd_pair(a, T + 22, o, o + 1); rnd_pair(a, T + 23, o + 2, o + 3)
        for r in range(4): a("v_mul_f32 v%d, v%d, v%d" % (T + 12 + r, T + 12 + r, S_ + 1))
        rnd_pair(a, T + 20, T + 12, T + 13); rnd_pair(a, T + 21, T + 14, T + 15)
        for r in range(4): a("v_mul_f32 v%d, v%d, v%d" % (T + 12 + r, T + 12 + r, T + 8 + r))
        rnd_pair(a, T + 20, T + 12, T + 13); rnd_pair(a, T + 21, T + 14, T + 15)
        for r in range(4): a("v_mul_f32 v%d, v%d, v%d" % (T + 12 + r, T + 12 + r, o + r))
        rnd_pair(a, T + 20, T + 12, T + 13); rnd_pair(a, T + 21, T + 14, T + 15)
        for r in range(4): a("v_add_f32 v%d, v%d, v%d" % (T + 12 + r, T + 12 + r, T + 4 + r))
        a("v_cvt_pk_bf16_f32 v%d, v%d, v%d" % (X, T + 12, T + 13))
        a("v_cvt_pk_bf16_f32 v%d, v%d, v%d" % (X + 1, T + 14, T + 15))
        a("buffer_store_dwordx2 %s, v13, s[28:31], s%d offen" % (vr(X, 2), b))
    a.label("%s_done" % name)
    stamp(a, 13)
    G.stamp_rt(a, 1)
    a.label("%s_end" % name)
    a("s_endpgm")
    return a.text(), kernel_desc(name, 256, 256), (name, 256, 512, YOFF + 10240)

def gen_kf8(name="k1_kernel", R=4):
    a = Asm()
    RB = 4096; SLOT = 34816; TREG = 16384; FS = 288; RST = 0
    LDSB = RB + R * SLOT
    LC = 2048
    ZFLG = 0x2D00000; PFL = 128
    C0 = 77824; CW = 151552; CSL = 36864; YOFF = 151552; CTREG = 16384; CFS = 160
    from gen3 import emit_conv_loads, emit_conv_job, CJ_SIZE
    def capture(f, *args):
        lb = len(a.lines); f(*args); out = a.lines[lb:]; del a.lines[lb:]; return out

    def c_common():
        a("s_load_dwordx2 s[4:5], s[0:1], 0")
        a("s_load_dwordx2 s[16:17], s[0:1], 88")
        a("s_and_b32 s20, s2, 7")
        a("s_lshr_b32 s21, s2, 3")
        a("s_and_b32 s22, s20, 3")
        a("s_lshl_b32 s22, s22, 3")
        a("s_and_b32 s23, s21, 7")
        a("s_add_u32 s22, s22, s23")
        a("s_lshr_b32 s23, s20, 2")
        a("s_lshl_b32 s23, s23, 2")
        a("s_lshr_b32 s24, s21, 3")
        a("s_add_u32 s23, s23, s24")
        a("s_lshr_b32 s52, s23, 1")
        a("s_and_b32 s53, s23, 1")
        a("s_lshl_b32 s54, s98, 2")
        a("s_add_u32 s54, s54, s3")
        a("s_waitcnt lgkmcnt(0)")
        srd(a, 8, 4, 2048 * 576 * 2)
        srd(a, 28, 16, 2048 * 576 * 2)
    XR = 200; ST = 208
    def fin_loads():
        a("v_and_b32 v3, 15, v2")
        a("v_lshrrev_b32 v10, 4, v2")
        a("v_mul_u32_u24 v13, 1152, v3")
        a("v_lshl_add_u32 v13, v10, 3, v13")
        a("v_lshlrev_b32 v12, 3, v3")
        for s_ in range(3):
            if s_ == 2:
                a("s_cmp_ge_u32 s54, 2")
                a("s_cbranch_scc1 %s_fl%d" % (name, fin_loads.cnt))
            b = 64 + 4 * s_
            if s_ < 2:
                a("s_add_u32 s36, s54, %d" % (8 * s_))
                a("s_lshr_b32 s37, s36, 2")
                a("s_and_b32 s38, s36, 3")
                a("s_mul_i32 s39, s53, 160")
                a("s_lshl_b32 s40, s37, 5")
                a("s_add_u32 s39, s39, s40")
            else:
                a("s_add_u32 s36, s54, 16")
                a("s_mov_b32 s37, 4")
                a("s_mov_b32 s38, s54")
                a("s_mov_b32 s39, 128")
            a("s_lshl_b32 s40, s53, 1")
            a("s_add_u32 s38, s38, s40")
            a("s_and_b32 s38, s38, 3")
            a("s_lshl_b32 s40, s22, 2")
            a("s_add_u32 s40, s40, s38")
            a("s_lshl_b32 s40, s40, 4")
            a("s_mul_i32 s%d, s40, 1152" % b)
            a("s_add_u32 s%d, s%d, s39" % (b, b))
            a("s_mul_i32 s39, s52, 288")
            a("s_add_u32 s%d, s%d, s39" % (b, b))
            a("s_lshl_b32 s%d, s37, 11" % (b + 1))
            a("s_lshl_b32 s39, s38, 5")
            a("s_add_u32 s%d, s%d, s39" % (b + 1, b + 1))
            a("s_add_u32 s%d, s%d, %d" % (b + 1, b + 1, YOFF))
            a("s_lshl_b32 s%d, s36, 10" % (b + 2))
            a("s_add_u32 s%d, s%d, %d" % (b + 2, b + 2, C0))
            a("s_lshl_b32 s40, s40, 3")
            a("s_add_u32 s40, s40, 0x%x" % STATS1)
            a("buffer_load_dwordx2 %s, v13, s[8:11], s%d offen" % (vr(XR + 2 * s_, 2), b))
            a("buffer_load_dwordx2 %s, v12, s[12:15], s40 offen sc1" % vr(ST + 2 * s_, 2))
        a.label("%s_fl%d" % (name, fin_loads.cnt))
        fin_loads.cnt += 1
    fin_loads.cnt = 0
    kernel_begin(a, name)
    a("s_load_dwordx2 s[80:81], s[0:1], 0")
    a("s_load_dwordx2 s[4:5], s[0:1], 56")
    a("s_load_dwordx2 s[6:7], s[0:1], 104")
    a("s_load_dwordx2 s[18:19], s[0:1], 96")
    a("s_cmp_ge_u32 s2, 256")
    a("s_cbranch_scc1 %s_end" % name)
    a("v_lshrrev_b32 v1, 6, v0")
    a("v_and_b32 v2, 63, v0")
    a("v_readfirstlane_b32 s3, v1")
    G2.tile_ij(a)
    a("s_lshr_b32 s98, s3, 2")
    a("s_mov_b32 s54x, 0".replace("s54x", "s99"))
    a("s_and_b32 s3, s3, 3")
    a("s_lshr_b32 s24, s3, 1")
    a("s_and_b32 s25, s3, 1")
    a("v_and_b32 v3, 15, v2")
    VT = 204; VF = 208
    def loader_setup():
        a("v_lshrrev_b32 v5, 3, v2")
        a("v_and_b32 v4, 7, v2")
        a("s_lshl_b32 s36, s3, 5")
        a("v_add_u32 v5, s36, v5")
        a("v_lshrrev_b32 v7, 4, v2")
        a("v_xor_b32 v7, v7, v4")
        a("v_mul_u32_u24 v6, 1152, v5")
        a("v_lshl_add_u32 v%d, v7, 4, v6" % VT)
        a("v_xor_b32 v%d, 64, v%d" % (VT + 1, VT))
        a("v_add_u32 v%d, %d, v%d" % (VT + 1, 9216 - 1024, VT + 1))
        a("v_add_u32 v%d, %d, v%d" % (VT + 2, 2 * (9216 - 1024), VT))
        a("v_add_u32 v%d, %d, v%d" % (VT + 3, 2 * (9216 - 1024), VT + 1))
        a("s_lshl_b32 s84, s3, 12")
        a("s_add_u32 s84, s84, %d" % RB)
        a("s_lshl_b32 s85, s3, 9")
        a("s_add_u32 s85, s85, %d" % (RB + TREG + 16384))
    def loader_setup2():
        for n in range(5):
            if n < 4:
                a("s_lshl_b32 s36, s3, 8")
                a("s_add_u32 s36, s36, %d" % (64 * n))
            else:
                a("s_lshl_b32 s36, s3, 5")
                a("s_add_u32 s36, s36, 1024")
            a("v_add_u32 v6, s36, v2")
            a("v_mul_u32_u24 v7, 3641, v6")
            a("v_lshrrev_b32 v7, 16, v7")
            a("v_mul_u32_u24 v8, 18, v7")
            a("v_sub_u32 v8, v6, v8")
            a("v_and_b32 v9, 35, v7")
            a("v_bfe_u32 v6, v7, 2, 2")
            a("v_lshl_add_u32 v9, v6, 3, v9")
            a("v_bfe_u32 v6, v7, 4, 1")
            a("v_lshl_add_u32 v9, v6, 2, v9")
            a("v_mul_u32_u24 v9, 9216, v9")
            a("v_lshl_add_u32 v%d, v8, 4, v9" % (VF + n))
            if 0 < n < 4: a("v_subrev_u32 v%d, %d, v%d" % (VF + n, 1024 * n, VF + n))
    def issueT(g):
        st = g % 9
        a("s_add_u32 s86, s84, %d" % ((g % R) * SLOT))
        a("s_mov_b32 m0, s86")
        a("s_add_u32 s87, s82, %d" % (128 * st))
        for n in range(4):
            a("buffer_load_dwordx4 v%d, s[28:31], s87 offen offset:%d lds" % (VT + n, 1024 * n))
    def issueF(g):
        st = g % 9
        a("s_add_u32 s86, s84, %d" % ((g % R) * SLOT + TREG))
        a("s_mov_b32 m0, s86")
        a("s_add_u32 s87, s83, %d" % (64 * 9216 * st + (4608 if g < 9 else 0)))
        for n in range(4):
            a("buffer_load_dwordx4 v%d, s[8:11], s87 offen offset:%d lds" % (VF + n, 1024 * n))
        a("s_add_u32 s86, s85, %d" % ((g % R) * SLOT))
        a("s_mov_b32 m0, s86")
        a("s_mov_b64 exec, 0xffffffff")
        a("buffer_load_dwordx4 v%d, s[8:11], s87 offen lds" % (VF + 4))
        a("s_mov_b64 exec, -1")
    def srds_main():
        srd(a, 28, 80, 2048 * 576 * 2)
        srd(a, 8, 4, 576 * 4608 * 2)
        srd(a, 12, 6, WS_BYTES)
        srd(a, 60, 18, 256)
        a("s_mul_i32 s82, s22, %d" % (128 * 1152))
        a("s_mul_i32 s83, s23, 288")
    ACC = 128; FB = [16, 52]; CS = 216; ONE = 236
    vTa = [4, 5]; vTb = [6, 7]; vF = 8; vFh = 9
    bTa = [88, 89]; bTb = [90, 91]; bF = 92; bFh = 93
    def mma_setup():
        a("v_lshrrev_b32 v10, 4, v2")
        a("v_lshrrev_b32 v11, 1, v3")
        a("v_xor_b32 v10, v10, v11")
        a("v_lshlrev_b32 v10, 4, v10")
        a("v_lshl_add_u32 v10, v3, 7, v10")
        a("s_lshl_b32 s26, s24, 13")
        a("s_add_u32 s26, s26, %d" % RB)
        a("v_add_u32 v10, s26, v10")
        a("s_lshl_b32 s26, s25, 12")
        a("v_add_u32 v%d, s26, v10" % bTa[0])
        a("s_xor_b32 s26, s26, 4096")
        a("v_add_u32 v%d, s26, v10" % bTb[0])
        a("v_xor_b32 v%d, 64, v%d" % (bTa[1], bTa[0]))
        a("v_xor_b32 v%d, 64, v%d" % (bTb[1], bTb[0]))
        a("v_lshrrev_b32 v10, 2, v2")
        a("v_mul_u32_u24 v10, %d, v10" % FS)
        a("v_and_b32 v11, 3, v2")
        a("v_lshl_add_u32 v10, v11, 3, v10")
        a("v_add_u32 v10, %d, v10" % (RB + TREG))
        a("s_mul_i32 s26, s25, 160")
        a("v_add_u32 v%d, s26, v10" % bF)
        a("v_add_u32 v%d, 128, v10" % bFh)
        for r in range(ACC, ACC + 72): a("v_mov_b32 v%d, 0" % r)
        for r in range(CS, CS + 20): a("v_mov_b32 v%d, 0" % r)
        for r in range(ONE, ONE + 4): a("v_mov_b32 v%d, 0x3f803f80" % r)
    def mma_addr(slot):
        a("s_mov_b32 s27, %d" % (slot * SLOT))
        for d, s_ in ((vTa[0], bTa[0]), (vTb[0], bTb[0]), (vTa[1], bTa[1]), (vTb[1], bTb[1]), (vF, bF), (vFh, bFh)):
            a("v_add_u32 v%d, s27, v%d" % (d, s_))
    core = G.Core(a, ACC, FB[0], FB[1], FS, TREG, vTa, vTb, vF, vFh)
    trk = core.trk
    a("s_cmp_eq_u32 s98, 0")
    a("s_cbranch_scc1 %s_A0" % name)
    a("s_setprio 3")
    loader_setup()
    a("s_waitcnt lgkmcnt(0)")
    srds_main()
    vm = VmTracker(a)
    def issue(g, vmx):
        issueT(g); issueF(g); vmx.issue("S%d" % g, 9)
    issueT(0)
    loader_setup2()
    issueF(0); vm.issue("S0", 9)
    issue(1, vm); issue(2, vm); issue(3, vm)
    a("s_add_u32 s3, s3, 4"); stamp_setup(a, 1); stamp(a, 0); a("s_sub_u32 s3, s3, 4")
    mma_setup()
    RA = 96; XB = 112
    for r in range(RA, RA + 16): a("v_mov_b32 v%d, 0" % r)
    a("v_lshrrev_b32 v10, 4, v2")
    a("v_lshrrev_b32 v11, 1, v3")
    a("v_xor_b32 v10, v10, v11")
    a("v_lshlrev_b32 v10, 4, v10")
    a("v_lshl_add_u32 v10, v3, 7, v10")
    a("v_add_u32 v12, s84, v10")
    a("v_xor_b32 v13, 64, v12")
    def rs_rd(g):
        a("v_add_u32 v10, %d, v12" % ((g % R) * SLOT))
        a("v_add_u32 v11, %d, v13" % ((g % R) * SLOT))
        for h in range(2):
            for n in range(2):
                a("ds_read_b128 %s, v%d offset:%d" % (vr(XB + 8 * h + 4 * n), 10 + h, 2048 * n))
    def rs_do():
        for h in range(2):
            for n in range(2):
                x = XB + 8 * h + 4 * n
                a("v_mfma_f32_16x16x32_bf16 %s, %s, %s, %s" % (vr(RA + 4 * n), vr(ONE), vr(x), vr(RA + 4 * n)))
                a("v_mfma_f32_16x16x32_bf16 %s, %s, %s, %s" % (vr(RA + 8 + 4 * n), vr(x), vr(x), vr(RA + 8 + 4 * n)))
    def interleave(dma, comp, vmx=None):
        groups = []; cur = []
        for l in dma:
            cur.append(l)
            if "buffer_load" in l and not any("exec, 0xffffffff" in x for x in cur[-2:]):
                groups.append(cur); cur = []
            elif "exec, -1" in l:
                groups.append(cur); cur = []
        if cur: groups.append(cur)
        ns = max(1, len(groups))
        per = (len(comp) + ns - 1) // ns
        for g in groups:
            a.lines.extend(g)
            a.lines.extend(comp[:per]); comp = comp[per:]
        a.lines.extend(comp)
    vm.wait(["S0"])
    a("s_barrier")
    stamp(a, 1)
    rs_rd(0)
    vm.wait(["S1"])
    a("s_barrier")
    for k in range(9):
        a("s_waitcnt lgkmcnt(0)")
        dma = capture(lambda: (issueT(k + 3), issueF(k + 3))) if k >= 1 else []
        interleave(dma, capture(rs_do))
        if k >= 1: vm.issue("S%d" % (k + 3), 9)
        if k < 8:
            rs_rd(k + 1)
        else:
            a("s_nop 7")
            a("v_lshrrev_b32 v10, 4, v2")
            a("v_lshrrev_b32 v11, 2, v3")
            a("v_and_b32 v12, 3, v3")
            for n in range(2):
                G_ = RA + 8 + 4 * n
                for r in range(1, 4):
                    a("v_cmp_eq_u32 vcc, %d, v12" % r)
                    a("s_nop 1")
                    a("v_cndmask_b32 v%d, v%d, v%d, vcc" % (G_, G_, G_ + r))
            ML = 112
            for n in range(2):
                emit_ln_finish(a, RA + 4 * n, RA + 8 + 4 * n, 576, ML + 2 * n, ML + 2 * n + 1, 120)
                a("v_mov_b32 v%d, v%d" % (117 + 2 * n, ML + 2 * n + 1))
                a("v_sub_f32 v%d, 0, v%d" % (116 + 2 * n, ML + 2 * n))
            a("s_lshl_b32 s35, s3, 8")
            a("v_lshlrev_b32 v13, 3, v3")
            a("v_add_u32 v12, s35, v13")
            a("v_cmp_eq_u32 vcc, v10, v11")
            a("s_and_saveexec_b64 s[36:37], vcc")
            for n in range(2):
                a("ds_write_b64 v12, %s offset:%d" % (vr(116 + 2 * n, 2), RST + 128 * n))
            a("s_mov_b64 exec, s[36:37]")
            a("s_cmp_lg_u32 s23, 0")
            a("s_cbranch_scc1 %s_nost1" % name)
            a("s_lshl_b32 s35, s22, 7")
            a("s_lshl_b32 s36, s3, 5")
            a("s_add_u32 s35, s35, s36")
            a("s_lshl_b32 s35, s35, 3")
            a("s_add_u32 s35, s35, 0x%x" % STATS1)
            a("v_mov_b32 v11, 0x7ffffff0")
            a("v_cndmask_b32 v13, v11, v13, vcc")
            for n in range(2):
                a("buffer_store_dwordx2 %s, v13, s[12:15], s35 offen offset:%d sc1" % (vr(ML + 2 * n, 2), 128 * n))
            a.label("%s_nost1" % name)
            mma_addr(9 % R)
            a("s_mov_b32 s33, 0")
            a("s_setprio 0")
        vm.wait(["S%d" % (k + 2)], "lgkmcnt(0)" if k == 8 else "")
        if k < 8: a("s_barrier")
    a("s_branch %s_mma" % name)
    a.label("%s_A0" % name)
    emit_code_prefetch(a, name)
    a("s_load_dwordx4 s[64:67], s[0:1], 8")
    a("s_load_dwordx2 s[76:77], s[0:1], 24")
    a("s_load_dwordx2 s[78:79], s[0:1], 64")
    mma_setup()
    loader_setup(); loader_setup2()
    a("s_waitcnt lgkmcnt(0)")
    srds_main()
    srd(a, 68, 66, 2048 * 576 * 2)
    a("s_mov_b32 s88, s64"); a("s_mov_b32 s89, s65")
    srd(a, 64, 88, 2048 * 576 * 2)
    srd(a, 72, 76, 576 * 8)
    stamp_setup(a, 1); stamp(a, 0)
    def gran_addr():
        a("v_lshrrev_b32 v10, 4, v2")
        a("s_lshl_b32 s36, s25, 1")
        a("v_add_u32 v11, s36, v10")
        a("v_and_b32 v11, 3, v11")
        a("v_lshl_add_u32 v11, v11, 4, v3")
        a("v_lshlrev_b32 v94, 8, v11")
        a("s_lshl_b32 s59, s22, 7")
        a("s_lshl_b32 s36, s24, 6")
        a("s_add_u32 s59, s59, s36")
        a("s_lshl_b32 s59, s59, 8")
        a("s_add_u32 s59, s59, 0x%x" % STATS2)
        a("s_lshl_b32 s36, s23, 1")
        a("s_add_u32 s36, s36, s25")
        a("s_lshl_b32 s36, s36, 3")
        a("s_add_u32 s58, s36, s59")
    gran_addr()
    a("v_mov_b32 v12, 0"); a("v_mov_b32 v13, 0x80000000")
    a("buffer_store_dwordx2 v[12:13], v94, s[12:15], s58 offen sc1")
    a("s_lshl_b32 s36, s22, 4")
    a("s_add_u32 s36, s36, s23")
    a("s_lshl_b32 s36, s36, 8")
    a("s_add_u32 s97, s36, 0x%x" % ZFLG)
    a("v_mov_b32 v10, %d" % LC)
    a("v_mov_b32 v12, 0"); a("v_mov_b32 v13, 0")
    a("s_mov_b64 exec, 1")
    a("buffer_store_dword v12, v12, s[12:15], s97 offen sc1")
    a("buffer_store_dword v12, v12, s[12:15], s97 offen offset:%d sc1" % PFL)
    a("s_mov_b64 exec, -1")
    a("ds_write_b64 v10, v[12:13]")
    a("ds_write_b64 v10, v[12:13] offset:8")
    a("ds_write_b64 v10, v[12:13] offset:16")
    a("ds_write_b64 v10, v[12:13] offset:24")
    mma_addr(0)
    a("s_mov_b32 s33, 0")
    a("s_waitcnt lgkmcnt(0)")
    a("s_barrier")
    stamp(a, 1)
    a.label("%s_mma" % name)
    core.prime(0, core.reads(0, 0))
    trk.drain()
    nocs = [False]
    def mfmas(buf):
        L = []
        for ft in range(5):
            A = core.F(buf, ft)
            for tt in range(4 if ft < 4 else 2):
                c = core.accr(ft, tt); B = core.T(buf, tt)
                L.append(("v_mfma_f32_16x16x32_bf16 %s, %s, %s, %s" % (vr(c), vr(A), vr(B), vr(c)), list(range(A, A + 4)) + list(range(B, B + 4))))
            if not nocs[0]: L.append(("v_mfma_f32_16x16x32_bf16 %s, %s, %s, %s" % (vr(CS + 4 * ft), vr(A), vr(ONE), vr(CS + 4 * ft)), list(range(A, A + 4))))
        return L
    def phase(buf, pend):
        for (m, regs) in mfmas(buf):
            trk.need(regs)
            a(m)
            while pend:
                k, t = pend.pop(0)
                if k == "x":
                    a(t)
                    if t.startswith("s_"): continue
                else:
                    a(t[0]); trk.issue(t[1])
                break
        for k, t in pend:
            if k == "x": a(t)
            else: a(t[0]); trk.issue(t[1])
    def iteration(vw=True):
        if vw: a("s_waitcnt vmcnt(0)")
        a("s_barrier")
        rd = [("r", t) for t in core.reads(1, 1)]
        upd = ["s_add_u32 s27, s27, %d" % SLOT, "s_cmp_eq_u32 s27, %d" % (R * SLOT), "s_cselect_b32 s27, 0, s27"]
        tail = ["v_add_u32 v%d, s27, v%d" % (d, s_) for d, s_ in ((vTa[0], bTa[0]), (vF, bF), (vTb[0], bTb[0]), (vFh, bFh))]
        phase(0, rd[:1] + [("x", u) for u in upd] + rd[1:] + [("x", u) for u in tail])
        rd = [("r", t) for t in core.reads(0, 0)]
        tail = ["v_add_u32 v%d, s27, v%d" % (d, s_) for d, s_ in ((vTa[1], bTa[1]), (vTb[1], bTb[1]))] + ["s_add_u32 s33, s33, 1"]
        phase(1, rd + [("x", u) for u in tail])
    a.label("%s_cloop" % name)
    lb = len(a.lines); iteration(); st = copy.deepcopy(trk.out); del a.lines[lb:]; trk.out = copy.deepcopy(st)
    iteration()
    assert [sorted(x) for x in trk.out] == [sorted(x) for x in st]
    a("s_cmp_lt_u32 s33, 9")
    a("s_cbranch_scc1 %s_cloop" % name)
    trk.drain()
    stamp(a, 2)
    MR = 100; T = 72; ZP = 16
    def epi_in():
        gelu_consts(a)
        a("s_lshl_b32 s36, s24, 9")
        a("s_lshl_b32 s37, s25, 8")
        a("s_add_u32 s38, s36, s37")
        a("s_xor_b32 s37, s37, 256")
        a("s_add_u32 s39, s36, s37")
        a("v_lshlrev_b32 v10, 3, v3")
        a("v_add_u32 v11, s38, v10")
        a("ds_read_b64 %s, v11 offset:%d" % (vr(MR, 2), RST))
        a("ds_read_b64 %s, v11 offset:%d" % (vr(MR + 2, 2), RST + 128))
        a("v_add_u32 v11, s39, v10")
        a("ds_read_b64 %s, v11 offset:%d" % (vr(MR + 4, 2), RST))
        a("ds_read_b64 %s, v11 offset:%d" % (vr(MR + 6, 2), RST + 128))
        a("s_waitcnt lgkmcnt(0)")
    S = [108, 110, 52, 54]; Q = [109, 111, 53, 55]
    def gelu_ft(ft, stats):
        tts = range(4 if ft < 4 else 2)
        emit_fold_gelu(a, [(core.accr(ft, tt), CS + 4 * ft, MR + 2 * tt, ZP + 2 * tidx(ft, tt)) for tt in tts], T)
        if stats:
            for d in range(2):
                for tt in tts:
                    p = ZP + 2 * tidx(ft, tt) + d
                    a("v_dot2_f32_bf16 v%d, v%d, v%d, v%d" % (S[tt], p, ONE, S[tt]))
                    a("v_dot2_f32_bf16 v%d, v%d, v%d, v%d" % (Q[tt], p, p, Q[tt]))
    a("s_cmp_eq_u32 s98, 0")
    a("s_cbranch_scc1 %s_A1" % name)
    a("s_barrier")
    a("s_load_dwordx4 s[64:67], s[0:1], 8")
    a("s_load_dwordx2 s[76:77], s[0:1], 24")
    a("s_load_dwordx2 s[94:95], s[0:1], 80")
    a("s_load_dwordx2 s[92:93], s[0:1], 72")
    epi_in()
    srd(a, 68, 66, 2048 * 576 * 2)
    a("s_mov_b32 s88, s64"); a("s_mov_b32 s89, s65")
    srd(a, 64, 88, 2048 * 576 * 2)
    srd(a, 72, 76, 576 * 8)
    srd(a, 76, 94, 2304 * 576 * 2)
    srd(a, 28, 92, 2048 * 2)
    a("v_and_b32 v0, 255, v0")
    a("s_mov_b32 s41, s2")
    KDB = 240
    emit_kv_loads(a, 112, 240, 248, 252, 253)
    for ft in range(5): gelu_ft(ft, False)
    Z1R = 200; BI = 236
    for r_ in range(36): a("v_mov_b32 v%d, v%d" % (Z1R + r_, ZP + r_))
    stamp(a, 3)
    a("s_waitcnt vmcnt(0)")
    for n in range(11): a("v_mov_b32 v%d, v%d" % (16 + n, 112 + n))
    for n in range(8): a("v_mov_b32 v%d, v%d" % (32 + n, 240 + n))
    for n in range(4): a("v_mov_b32 v%d, v%d" % (44 + n, 248 + n))
    a("v_mov_b32 v56, v252"); a("v_mov_b32 v57, v253")
    for r_ in range(6): a("v_mov_b32 v%d, v%d" % (240 + r_, 88 + r_))
    a.label("%s_kvb" % name)
    emit_kv_compute(a, wait=False, store=False)
    a("s_mov_b32 s39, 0x%x" % KVT)
    a("buffer_store_dwordx4 v[120:123], v12, s[12:15], s39 offen sc1")
    a("buffer_store_dwordx4 v[124:127], v13, s[12:15], s39 offen sc1")
    a("s_add_u32 s41, s41, 256")
    a("s_cmp_ge_u32 s41, 288")
    a("s_cbranch_scc1 %s_kvbd" % name)
    emit_kv_loads(a)
    a("s_waitcnt vmcnt(0)")
    a("s_branch %s_kvb" % name)
    a.label("%s_kvbd" % name)
    for r_ in range(6): a("v_mov_b32 v%d, v%d" % (88 + r_, 240 + r_))
    a("s_mov_b32 s42, s2")
    emit_wot_loads(a, 100, 112, 720, 3)
    a("s_lshl_b32 s36, s22, 7")
    a("s_lshl_b32 s37, s24, 6")
    a("s_add_u32 s36, s36, s37")
    a("v_lshlrev_b32 v11, 1, v3")
    a("s_lshl_b32 s37, s25, 6")
    a("s_lshl_b32 s38, s36, 1")
    a("s_add_u32 s39, s38, s37")
    a("s_xor_b32 s37, s37, 64")
    a("s_add_u32 s36, s38, s37")
    a("buffer_load_ushort v96, v11, s[28:31], s39 offen")
    a("buffer_load_ushort v97, v11, s[28:31], s39 offen offset:32")
    a("buffer_load_ushort v98, v11, s[28:31], s36 offen")
    a("buffer_load_ushort v99, v11, s[28:31], s36 offen offset:32")
    for r in range(ACC, ACC + 72): a("v_mov_b32 v%d, 0" % r)
    a("v_lshrrev_b32 v10, 2, v2")
    a("v_lshlrev_b32 v10, 5, v10")
    a("v_and_b32 v11, 3, v2")
    a("v_lshl_add_u32 v10, v11, 3, v10")
    a("v_add_u32 v10, %d, v10" % (RB + TREG))
    a("s_mul_i32 s26, s25, 10240")
    a("v_add_u32 v%d, s26, v10" % bF)
    a("v_add_u32 v%d, 8192, v10" % bFh)
    core.FS = 32; core.FT = 2048
    mma_addr(0)
    a("s_mov_b32 s33, 0")
    stamp(a, 4)
    a("s_barrier")
    stamp(a, 5)
    core.prime(0, core.reads(0, 0))
    trk.drain()
    nocs[0] = True
    a.label("%s_gloop" % name)
    lb = len(a.lines); iteration(False); st = copy.deepcopy(trk.out); del a.lines[lb:]; trk.out = copy.deepcopy(st)
    iteration(False)
    assert [sorted(x) for x in trk.out] == [sorted(x) for x in st]
    a("s_cmp_lg_u32 s33, 3")
    a("s_cbranch_scc1 %s_ghk0" % name)
    a("s_waitcnt vmcnt(0)")
    for n in range(3):
        a("buffer_store_dwordx4 %s, v%d, s[12:15], s40 offen sc1" % (vr(100 + 4 * n), 112 + n))
    for tt in range(4): a("v_lshlrev_b32 v%d, 16, v%d" % (BI + 2 * tt, 96 + tt))
    a.label("%s_ghk0" % name)
    a("s_cmp_lg_u32 s33, 6")
    a("s_cbranch_scc1 %s_ghk" % name)
    a("s_waitcnt vmcnt(0)")
    a("v_mov_b32 v10, %d" % (LC + 8))
    a("v_mov_b32 v11, 1")
    a("s_mov_b64 exec, 1")
    a("ds_add_rtn_u32 v12, v10, v11")
    a("s_waitcnt lgkmcnt(0)")
    a("v_readfirstlane_b32 s36, v12")
    a("s_cmp_lg_u32 s36, 3")
    a("s_cbranch_scc1 %s_nokvs" % name)
    a("s_and_b32 s36, s2, 15")
    a("s_lshl_b32 s36, s36, 2")
    a("s_add_u32 s36, s36, 128")
    a("v_mov_b32 v10, s36")
    a("buffer_atomic_add v11, v10, s[60:63], 0 offen sc1")
    a.label("%s_nokvs" % name)
    a("s_mov_b64 exec, -1")
    a.label("%s_ghk" % name)
    a("s_cmp_lg_u32 s33, 24")
    a("s_cbranch_scc1 %s_ghk2" % name)
    a("v_lshlrev_b32 v10, 2, v3")
    a("buffer_load_dword v254, v10, s[60:63], 0 offen offset:128 sc1")
    a.label("%s_ghk2" % name)
    a("s_cmp_lt_u32 s33, 32")
    a("s_cbranch_scc1 %s_gloop" % name)
    trk.drain()
    stamp(a, 6)
    G3.emit_k2_epilogue2(a, core, Z1R, BI, " sc1")
    stamp(a, 7)
    a("s_setprio 3")
    a("s_lshl_b32 s36, s22, 4")
    a("s_add_u32 s36, s36, s23")
    a("s_lshl_b32 s36, s36, 8")
    a("s_add_u32 s97, s36, 0x%x" % (ZFLG + PFL))
    c_common()
    a("v_lshlrev_b32 v14, 4, v2")
    a("s_mul_i32 s26, s22, %d" % (36 * 8192))
    a("s_lshl_b32 s24, s3, 12")
    a("s_add_u32 s26, s26, s24")
    a("s_add_u32 s26, s26, 0x%x" % PIMG)
    a("s_mul_i32 s27, s23, %d" % (18 * 20480))
    a("s_mul_i32 s25, s3, 5120")
    a("s_add_u32 s27, s27, s25")
    a("s_add_u32 s27, s27, 0x%x" % WOT)
    a("s_add_u32 s25, s25, %d" % CTREG)
    a("v_and_b32 v28, 15, v2")
    a("v_lshlrev_b32 v30, 2, v28")
    a("v_mov_b32 v26, %d" % LC)
    a("v_mov_b32 v27, 1")
    a("s_waitcnt vmcnt(0)")
    a("v_mov_b32 v31, v254")
    a("s_mov_b64 exec, 1")
    a("ds_add_rtn_u32 v29, v26, v27 offset:16")
    a("s_waitcnt lgkmcnt(0)")
    a("v_readfirstlane_b32 s36, v29")
    a("s_cmp_lg_u32 s36, 3")
    a("s_cbranch_scc1 %s_nops" % name)
    a("v_mov_b32 v29, 0")
    a("buffer_store_dword v27, v29, s[12:15], s97 offen sc1")
    a.label("%s_nops" % name)
    a("s_mov_b64 exec, -1")
    a("s_mov_b32 s34, 0")
    a.label("%s_cw" % name)
    a("ds_read_b32 v29, v26 offset:16")
    a("s_add_u32 s34, s34, 1")
    a("s_waitcnt lgkmcnt(0)")
    a("v_readfirstlane_b32 s36, v29")
    a("s_cmp_gt_u32 s34, %d" % (SPIN_MAX * 20))
    a("s_cbranch_scc1 %s_cwx" % name)
    a("s_cmp_ge_u32 s36, 4")
    a("s_cbranch_scc1 %s_cwx" % name)
    a("s_sleep 1")
    a("s_branch %s_cw" % name)
    a.label("%s_cwx" % name)
    a("s_mov_b32 s34, 0")
    a.label("%s_cp" % name)
    a("v_cmp_gt_u32 vcc, 16, v31")
    a("s_add_u32 s34, s34, 1")
    a("s_cmp_gt_u32 s34, %d" % SPIN_MAX)
    a("s_cbranch_scc1 %s_cpx" % name)
    a("s_cbranch_vccz %s_cpx" % name)
    a("s_sleep 32")
    a("buffer_load_dword v31, v30, s[60:63], 0 offen offset:128 sc1")
    a("s_waitcnt vmcnt(0)")
    a("s_branch %s_cp" % name)
    a.label("%s_cpx" % name)
    def cF(off, soff):
        a("s_add_u32 s36, s25, %s" % off)
        a("s_mov_b32 m0, s36")
        a("s_add_u32 s37, %s, 4096" % soff)
        for n in range(4):
            a("buffer_load_dwordx4 v14, s[12:15], %s offen offset:%d sc1 lds" % (soff, n * 1024))
        a("s_add_u32 s36, s36, 4096")
        a("s_mov_b32 m0, s36")
        a("s_nop 0")
        a("buffer_load_dwordx4 v14, s[12:15], s37 offen sc1 lds")
    def cT(off, soff):
        a("s_add_u32 s35, s24, %s" % off)
        a("s_mov_b32 m0, s35")
        a("s_nop 0")
        for n in range(4):
            a("buffer_load_dwordx4 v14, s[12:15], %s offen offset:%d sc1 lds" % (soff, n * 1024))
    a("s_add_u32 s38, s27, 20480")
    cF(str(C0), "s27"); cF(str(C0 + CSL), "s38")
    a("s_mov_b32 s34, 0")
    a("s_cmp_lg_u32 s3, 0")
    a("s_cbranch_scc1 %s_cpl" % name)
    a("v_lshlrev_b32 v28, 8, v28")
    a("s_lshr_b32 s39, s22, 1")
    a("s_lshl_b32 s39, s39, 12")
    a("s_add_u32 s39, s39, 0x%x" % (ZFLG + PFL))
    a.label("%s_cpz" % name)
    a("buffer_load_dword v29, v28, s[12:15], s39 offen sc1")
    a("s_add_u32 s34, s34, 1")
    a("s_waitcnt vmcnt(0)")
    a("v_cmp_ne_u32 vcc, 1, v29")
    a("s_cmp_gt_u32 s34, %d" % SPIN_MAX)
    a("s_cbranch_scc1 %s_cpzx" % name)
    a("s_cbranch_vccz %s_cpzx" % name)
    a("s_sleep 8")
    a("s_branch %s_cpz" % name)
    a.label("%s_cpzx" % name)
    a("ds_write_b32 v26, v27 offset:24")
    a("s_branch %s_cgo" % name)
    a.label("%s_cpl" % name)
    a("ds_read_b32 v29, v26 offset:24")
    a("s_add_u32 s34, s34, 1")
    a("s_waitcnt lgkmcnt(0)")
    a("v_readfirstlane_b32 s36, v29")
    a("s_cmp_gt_u32 s34, %d" % (SPIN_MAX * 20))
    a("s_cbranch_scc1 %s_cgo" % name)
    a("s_cmp_lg_u32 s36, 0")
    a("s_cbranch_scc1 %s_cgo" % name)
    a("s_sleep 2")
    a("s_branch %s_cpl" % name)
    a.label("%s_cgo" % name)
    stamp(a, 8)
    a("s_add_u32 s38, s26, 16384")
    cT(str(C0), "s26"); cT(str(C0 + CSL), "s38")
    a("s_add_u32 s26, s26, 32768")
    a("s_add_u32 s27, s27, 40960")
    a("s_mov_b32 s33, %d" % RB)
    def cissue():
        cT("s33", "s26"); cF("s33", "s27")
        a("s_add_u32 s26, s26, 16384")
        a("s_add_u32 s27, s27, 20480")
        a("s_add_u32 s33, s33, %d" % CSL)
        a("s_cmp_eq_u32 s33, %d" % CW)
        a("s_cselect_b32 s33, %d, s33" % RB)
    a("s_waitcnt vmcnt(4)")
    a("s_barrier")
    cissue(); cissue()
    a("s_waitcnt vmcnt(18)")
    a("s_barrier")
    a("s_mov_b32 s34, 0")
    a.label("%s_clloop" % name)
    cissue()
    a("s_cmp_lg_u32 s34, 11")
    a("s_cbranch_scc1 %s_cl1" % name)
    a("buffer_load_dword v31, v30, s[60:63], 0 offen offset:192 sc1")
    a("s_waitcnt vmcnt(19)")
    a("s_branch %s_cl2" % name)
    a.label("%s_cl1" % name)
    a("s_waitcnt vmcnt(18)")
    a.label("%s_cl2" % name)
    a("s_barrier")
    a("s_add_u32 s34, s34, 1")
    a("s_cmp_lt_u32 s34, 14")
    a("s_cbranch_scc1 %s_clloop" % name)
    a("s_mov_b32 s34, 0")
    a.label("%s_cy" % name)
    a("v_cmp_gt_u32 vcc, 16, v31")
    a("s_add_u32 s34, s34, 1")
    a("s_cmp_gt_u32 s34, %d" % SPIN_MAX)
    a("s_cbranch_scc1 %s_cyx" % name)
    a("s_cbranch_vccz %s_cyx" % name)
    a("s_sleep 32")
    a("buffer_load_dword v31, v30, s[60:63], 0 offen offset:192 sc1")
    a("s_waitcnt vmcnt(0)")
    a("s_branch %s_cy" % name)
    a.label("%s_cyx" % name)
    a("v_lshrrev_b32 v3, 3, v2")
    a("v_and_b32 v4, 7, v2")
    a("v_lshlrev_b32 v4, 4, v4")
    a("s_mul_i32 s33, s52, 144")
    a("s_mul_i32 s34, s53, 80")
    a("s_lshl_b32 s35, s22, 7")
    a("s_add_u32 s35, s35, 0x%x" % YT)
    for n in range(3):
        a("s_add_u32 s36, s3, %d" % (4 * n))
        if n == 2: a("s_min_u32 s36, s36, 9")
        a("s_lshl_b32 s37, s36, 3")
        a("s_add_u32 s38, s37, s33")
        if n < 2: a("s_add_u32 s38, s38, s34")
        a("v_add_u32 v5, s38, v3")
        a("v_lshl_add_u32 v5, v5, 12, v4")
        a("s_lshl_b32 s36, s36, 10")
        a("s_add_u32 s36, s36, %d" % YOFF)
        a("s_mov_b32 m0, s36")
        a("s_nop 0")
        a("buffer_load_dwordx4 v5, s[12:15], s35 offen sc1 lds")
    fin_loads()
    a("s_waitcnt vmcnt(%d)" % (9 + 7))
    a("s_barrier")
    a("s_waitcnt vmcnt(7)")
    a("s_barrier")
    a("s_barrier")
    a("s_setprio 0")
    a("s_waitcnt vmcnt(0)")
    a("s_branch %s_cfin" % name)
    a.label("%s_A1" % name)
    a("s_setprio 2")
    vmA = VmTracker(a)
    PB = 132
    def aux_head():
        epi_in()
        for tt in range(4):
            a("v_mov_b32 v%d, 0" % S[tt]); a("v_mov_b32 v%d, 0" % Q[tt])
    def aux_pub():
        a("s_nop 2")
        emit_xg_reduce(a, S + Q, 72)
        a("v_lshrrev_b32 v10, 4, v2")
        for g in range(1, 4):
            a("v_cmp_eq_u32 vcc, %d, v10" % g)
            a("s_nop 1")
            a("v_cndmask_b32 v%d, v%d, v%d, vcc" % (S[0], S[0], S[g]))
            a("v_cndmask_b32 v%d, v%d, v%d, vcc" % (Q[0], Q[0], Q[g]))
        a("v_and_b32 v%d, 0x7fffffff, v%d" % (Q[0], Q[0]))
        a("buffer_store_dwordx2 v[%d:%d], v94, s[12:15], s58 offen sc1" % (S[0], Q[0]))
    chunks = [capture(aux_head) + capture(gelu_ft, 0, True), capture(gelu_ft, 1, True), capture(gelu_ft, 2, True),
              capture(gelu_ft, 3, True), capture(gelu_ft, 4, True) + capture(aux_pub)]
    KD = 172
    for k in range(9, 18):
        a("s_barrier")
        if k == 9:
            a("s_cmp_lg_u32 s3, 0")
            a("s_cbranch_scc1 %s_nosig" % name)
            a("v_mov_b32 v10, 1")
            a("s_lshl_b32 s36, s22, 2")
            a("v_mov_b32 v11, s36")
            a("s_mov_b64 exec, 1")
            a("buffer_atomic_add v10, v11, s[60:63], 0 offen sc1")
            a("s_mov_b64 exec, -1")
            a.label("%s_nosig" % name)
        g = k + 3
        dma = capture(lambda: (issueT(g), issueF(g))) if g < 18 else []
        comp = chunks[k - 9] if k - 9 < len(chunks) else []
        interleave(dma, comp)
        if k == 13: vmA.issue("pub", 1)
        if g < 18: vmA.issue("S%d" % g, 9)
        if k == 14:
            srd(a, 92, 78, 2048 * 2048 * 2)
            a("v_lshrrev_b32 v10, 4, v2")
            a("v_lshlrev_b32 v10, 12, v10")
            a("v_lshl_add_u32 v10, v3, 4, v10")
            a("s_lshl_b32 s40, s22, 7")
            a("s_lshl_b32 s36, s3, 5")
            a("s_add_u32 s40, s40, s36")
            a("s_lshl_b32 s40, s40, 12")
            a("s_lshl_b32 s36, s23, 8")
            a("s_add_u32 s40, s40, s36")
            for n in range(8):
                a("buffer_load_dwordx4 v[200:203], v10, s[92:95], s40 offen")
                if n < 7: a("s_add_u32 s40, s40, 16384")
            vmA.issue("wp", 8)
            a("s_lshl_b32 s36, s22, 2")
            a("v_mov_b32 v199, s36")
            a("buffer_load_dword v198, v199, s[60:63], 0 offen sc1"); vmA.issue("cnt", 1)
        if k + 2 < 18 and k + 2 >= 12:
            vmA.wait(["S%d" % (k + 2)])
    a("s_barrier")
    stamp(a, 3)
    a("s_load_dwordx4 s[88:91], s[0:1], 32")
    a("v_lshrrev_b32 v10, 4, v2")
    a("v_lshlrev_b32 v95, 8, v3")
    a("v_lshl_add_u32 v95, v10, 6, v95")
    a("s_lshl_b32 s33, s25, 13")
    a("s_add_u32 s52, s59, s33")
    a("s_xor_b32 s33, s33, 8192")
    a("s_add_u32 s53, s59, s33")
    a("s_add_u32 s42, s52, 4096")
    a("s_add_u32 s43, s53, 4096")
    Z2 = ZP
    a("s_waitcnt vmcnt(0)")
    GB = [128, 144, 160, 176]
    a("v_mov_b32 v4, v95")
    def gather():
        for tt in range(4):
            for q in range(4):
                a("buffer_load_dwordx4 %s, v4, s[12:15], s%d offen offset:%d sc1" % (vr(GB[tt] + 4 * q), (52, 42, 53, 43)[tt], 16 * q))
    gather()
    a("s_mov_b32 s40, 0")
    a("s_waitcnt vmcnt(0)")
    a.label("%s_chk" % name)
    a("v_subrev_u32 v11, 16, v198")
    for tt in range(4):
        for r in range(GB[tt] + 1, GB[tt] + 16, 4):
            a("v_or3_b32 v11, v11, v%d, v%d" % (r, r + 2))
    a("v_cmp_gt_i32 vcc, 0, v11")
    a("s_add_u32 s40, s40, 1")
    a("s_cmp_gt_u32 s40, %d" % SPIN_MAX)
    a("s_cbranch_scc1 %s_ok" % name)
    a("s_cbranch_vccz %s_ok" % name)
    a("s_sleep 32")
    a("buffer_load_dword v198, v199, s[60:63], 0 offen sc1")
    a("s_waitcnt vmcnt(0)")
    gather()
    a("s_waitcnt vmcnt(0)")
    a("s_branch %s_chk" % name)
    a.label("%s_ok" % name)
    stamp(a, 5)
    for tt in range(4):
        b = GB[tt]
        for st_ in (8, 4, 2):
            for q in range(0, st_, 2):
                a("v_pk_add_f32 %s, %s, %s" % (vr(b + q, 2), vr(b + q, 2), vr(b + q + st_, 2)))
    emit_xg_reduce(a, [GB[tt] + e for tt in range(4) for e in range(2)], 72)
    for tt in range(4):
        b = GB[tt]
        emit_ln_finish(a, b, b + 1, 2304, b + 2, MR + 2 * tt, b + 4)
        a("v_mul_f32 v%d, -v%d, v%d" % (MR + 2 * tt + 1, b + 2, MR + 2 * tt))
    a("v_lshrrev_b32 v10, 4, v2")
    a("v_lshrrev_b32 v11, 2, v2"); a("v_and_b32 v11, 1, v11"); a("v_lshlrev_b32 v11, 4, v11")
    a("v_lshrrev_b32 v5, 3, v2"); a("v_and_b32 v5, 1, v5"); a("v_lshl_add_u32 v11, v5, 2, v11")
    a("v_and_b32 v5, 3, v2"); a("v_add_u32 v11, v11, v5")
    a("v_and_b32 v5, 1, v10")
    a("v_lshl_add_u32 v11, v5, 3, v11")
    a("v_lshlrev_b32 v11, 5, v11")
    a("v_lshrrev_b32 v5, 1, v10")
    a("v_lshl_add_u32 v6, v5, 4, v11")
    a("s_lshl_b32 s33, s23, 5")
    a("s_lshl_b32 s36, s22, 1")
    a("s_add_u32 s33, s33, s36")
    a("s_add_u32 s33, s33, s24")
    a("s_mul_i32 s33, s33, 18432")
    if ZIMG: a("s_add_u32 s33, s33, 0x%x" % ZIMG)
    a("s_lshl_b32 s36, s25, 10")
    a("s_add_u32 s39, s33, s36")
    a("s_add_u32 s39, s39, 8192")
    a("s_mul_i32 s38, s25, 10240")
    a("s_add_u32 s33, s33, s38")
    a("s_add_u32 s37, s33, s36")
    a("s_xor_b32 s36, s36, 1024")
    a("s_add_u32 s38, s33, s36")
    a("s_add_u32 s33, s37, 4096")
    a("s_add_u32 s36, s38, 4096")
    def norm_pair(nA, ttA, nB, ttB, O):
        for q, (n, tt) in enumerate(((nA, ttA), (nB, ttB))):
            for d in range(2):
                z = Z2 + 2 * n + d; t = T + 4 * q + 2 * d
                a("v_lshlrev_b32 v%d, 16, v%d" % (t, z))
                a("v_and_b32 v%d, 0xffff0000, v%d" % (t + 1, z))
        for q, (n, tt) in enumerate(((nA, ttA), (nB, ttB))):
            for d in range(2):
                t = T + 4 * q + 2 * d
                a("v_pk_fma_f32 %s, %s, %s, %s op_sel:[0,0,1] op_sel_hi:[1,0,1]" % (vr(t, 2), vr(t, 2), vr(MR + 2 * tt, 2), vr(MR + 2 * tt, 2)))
        for q in range(2):
            for d in range(2):
                t = T + 4 * q + 2 * d
                a("v_cvt_pk_bf16_f32 v%d, v%d, v%d" % (O + 2 * q + d, t, t + 1))
        a("s_nop 1")
        a("v_permlane16_swap_b32 v%d, v%d" % (O, O + 2))
        a("v_permlane16_swap_b32 v%d, v%d" % (O + 1, O + 3))
    cnt = 0
    for ft in range(4):
        for pp in range(2):
            O = 200 + 4 * cnt; cnt += 1
            norm_pair(tidx(ft, 2 * pp), 2 * pp, tidx(ft, 2 * pp + 1), 2 * pp + 1, O)
            a("s_nop 0")
            a("buffer_store_dwordx4 %s, v6, s[12:15], s%d offen offset:%d sc1" % (vr(O), ((37, 38), (33, 36))[ft >> 1][pp], (ft & 1) * 2048))
    O = 200 + 4 * cnt
    norm_pair(16, 0, 17, 1, O)
    a("s_nop 0")
    a("buffer_store_dwordx4 %s, v6, s[12:15], s39 offen sc1" % vr(O))
    stamp(a, 6)
    a("s_setprio 3")
    srd(a, 8, 78, 2048 * 2048 * 2)
    a("v_lshrrev_b32 v3, 3, v2")
    a("s_lshl_b32 s24, s3, 5")
    a("v_add_u32 v3, s24, v3")
    a("v_and_b32 v4, 7, v2")
    a("v_lshrrev_b32 v6, 4, v2")
    a("v_xor_b32 v6, v6, v4")
    a("v_lshlrev_b32 v6, 4, v6")
    a("v_lshl_add_u32 v10, v3, 12, v6")
    a("v_xor_b32 v11, 64, v10")
    a("v_add_u32 v11, %d, v11" % (32768 - 1024))
    a("v_add_u32 v12, %d, v10" % (2 * (32768 - 1024)))
    a("v_add_u32 v13, %d, v11" % (2 * (32768 - 1024)))
    a("v_lshlrev_b32 v14, 4, v2")
    a("s_lshl_b32 s26, s22, 19")
    a("s_mul_i32 s27, s23, %d" % (32 * 18432))
    a("s_lshl_b32 s24, s3, 12")
    a("s_add_u32 s27, s27, s24")
    if ZIMG: a("s_add_u32 s27, s27, 0x%x" % ZIMG)
    a("s_lshl_b32 s25, s3, 9")
    a("s_sub_u32 s32, s25, s24")
    a("s_add_u32 s32, s32, 16384")
    a("s_add_u32 s24, s24, %d" % RB)
    a("s_waitcnt vmcnt(0) lgkmcnt(0)")
    a("v_mov_b32 v26, %d" % LC)
    a("v_mov_b32 v27, 1")
    a("s_mov_b64 exec, 1")
    a("ds_add_rtn_u32 v28, v26, v27")
    a("s_waitcnt lgkmcnt(0)")
    a("v_readfirstlane_b32 s36, v28")
    a("s_cmp_lg_u32 s36, 3")
    a("s_cbranch_scc1 %s_nozs" % name)
    a("v_mov_b32 v28, 0")
    a("buffer_store_dword v27, v28, s[12:15], s97 offen sc1")
    a.label("%s_nozs" % name)
    a("s_mov_b64 exec, -1")
    stamp(a, 7)
    srd(a, 16, 88, 576 * 2048 * 2)
    srd(a, 84, 90, 576 * 2)
    for g in range(4):
        a("s_add_u32 s35, s24, %d" % (g * SLOT))
        a("s_mov_b32 m0, s35")
        a("s_add_u32 s36, s26, %d" % (128 * g))
        for n in range(4):
            a("buffer_load_dwordx4 v%d, s[8:11], s36 offen offset:%d lds" % (10 + n, n * 1024))
    a("s_mov_b32 s34, 0")
    a("s_cmp_lg_u32 s3, 0")
    a("s_cbranch_scc1 %s_pl" % name)
    a("v_and_b32 v28, 15, v2")
    a("v_lshlrev_b32 v30, 2, v28")
    a("v_lshlrev_b32 v28, 12, v28")
    a("s_lshl_b32 s52, s23, 8")
    a("s_add_u32 s52, s52, 0x%x" % ZFLG)
    a.label("%s_pz0" % name)
    a("buffer_load_dword v31, v30, s[60:63], 0 offen sc1")
    a("s_add_u32 s34, s34, 1")
    a("s_waitcnt vmcnt(0)")
    a("v_cmp_gt_u32 vcc, 16, v31")
    a("s_cmp_gt_u32 s34, %d" % SPIN_MAX)
    a("s_cbranch_scc1 %s_pz" % name)
    a("s_cbranch_vccz %s_pz" % name)
    a("s_sleep 32")
    a("s_branch %s_pz0" % name)
    a.label("%s_pz" % name)
    a("buffer_load_dword v29, v28, s[12:15], s52 offen sc1")
    a("s_add_u32 s34, s34, 1")
    a("s_waitcnt vmcnt(0)")
    a("v_cmp_ne_u32 vcc, 1, v29")
    a("s_cmp_gt_u32 s34, %d" % SPIN_MAX)
    a("s_cbranch_scc1 %s_pzx" % name)
    a("s_cbranch_vccz %s_pzx" % name)
    a("s_sleep 8")
    a("s_branch %s_pz" % name)
    a.label("%s_pzx" % name)
    a("v_mov_b32 v27, 1")
    a("ds_write_b32 v26, v27 offset:4")
    a("s_branch %s_pgo" % name)
    a.label("%s_pl" % name)
    a("ds_read_b32 v27, v26 offset:4")
    a("s_add_u32 s34, s34, 1")
    a("s_waitcnt lgkmcnt(0)")
    a("v_readfirstlane_b32 s36, v27")
    a("s_cmp_gt_u32 s34, %d" % (SPIN_MAX * 20))
    a("s_cbranch_scc1 %s_pgo" % name)
    a("s_cmp_lg_u32 s36, 0")
    a("s_cbranch_scc1 %s_pgo" % name)
    a("s_sleep 2")
    a("s_branch %s_pl" % name)
    a.label("%s_pgo" % name)
    stamp(a, 8)
    for g in range(4):
        a("s_add_u32 s35, s24, %d" % (g * SLOT + TREG))
        a("s_mov_b32 m0, s35")
        a("s_add_u32 s36, s27, %d" % (18432 * g))
        a("s_add_u32 s37, s36, s32")
        for n in range(4):
            a("buffer_load_dwordx4 v14, s[12:15], s36 offen offset:%d sc1 lds" % (n * 1024))
        a("s_add_u32 s35, s35, s32")
        a("s_mov_b32 m0, s35")
        a("s_mov_b64 exec, 0xffffffff")
        a("buffer_load_dwordx4 v14, s[12:15], s37 offen sc1 lds")
        a("s_mov_b64 exec, -1")
    a("s_add_u32 s26, s26, 512")
    a("s_add_u32 s27, s27, %d" % (4 * 18432))
    a("s_mov_b32 s33, 0")
    a("s_lshl_b32 s43, s2, 2")
    a("s_add_u32 s43, s43, s3")
    a("s_and_b32 s53, s43, 1")
    a("s_sub_u32 s36, s43, 448")
    a("s_lshr_b32 s37, s43, 1")
    a("s_cmp_ge_u32 s43, 896")
    a("s_cselect_b32 s43, s36, s37")
    a("s_cselect_b32 s53, 2, s53")
    a("s_waitcnt vmcnt(15)")
    a("s_barrier")
    a("s_waitcnt vmcnt(10)")
    a("s_barrier")
    a("s_waitcnt vmcnt(5)")
    a("s_barrier")
    a("s_mov_b32 s34, 4")
    def issue2():
        a("s_add_u32 s35, s33, s24")
        a("s_mov_b32 m0, s35")
        a("s_add_u32 s36, s35, %d" % TREG)
        for n in range(4):
            a("buffer_load_dwordx4 v%d, s[8:11], s26 offen offset:%d lds" % (10 + n, n * 1024))
        a("s_mov_b32 m0, s36")
        a("s_add_u32 s37, s27, s32")
        for n in range(4):
            a("buffer_load_dwordx4 v14, s[12:15], s27 offen offset:%d sc1 lds" % (n * 1024))
        a("s_add_u32 s36, s36, s32")
        a("s_mov_b32 m0, s36")
        a("s_mov_b64 exec, 0xffffffff")
        a("buffer_load_dwordx4 v14, s[12:15], s37 offen sc1 lds")
        a("s_mov_b64 exec, -1")
        a("s_add_u32 s26, s26, 128")
        a("s_add_u32 s27, s27, 18432")
        a("s_add_u32 s33, s33, %d" % SLOT)
        a("s_cmp_eq_u32 s33, %d" % (R * SLOT))
        a("s_cselect_b32 s33, 0, s33")
    a.label("%s_lloop" % name)
    issue2()
    a("s_cmp_eq_u32 s34, 18")
    a("s_cbranch_scc1 %s_hk1" % name)
    a("s_cmp_eq_u32 s34, 21")
    a("s_cbranch_scc1 %s_hk2" % name)
    a("s_waitcnt vmcnt(9)")
    a.label("%s_lcont" % name)
    a("s_barrier")
    a("s_add_u32 s34, s34, 1")
    a("s_cmp_lt_u32 s34, 32")
    a("s_cbranch_scc1 %s_lloop" % name)
    a("s_branch %s_ldone" % name)
    a.label("%s_hk1" % name)
    a("v_and_b32 v28, 15, v2")
    a("v_lshlrev_b32 v28, 2, v28")
    a("buffer_load_dword v29, v28, s[60:63], 0 offen offset:128 sc1")
    a("s_waitcnt vmcnt(10)")
    a("s_branch %s_lcont" % name)
    a.label("%s_hk2" % name)
    a("s_mov_b32 s52, 0")
    a.label("%s_hk2l" % name)
    a("v_cmp_gt_u32 vcc, 16, v29")
    a("s_add_u32 s52, s52, 1")
    a("s_cmp_gt_u32 s52, %d" % SPIN_MAX)
    a("s_cbranch_scc1 %s_hk2g" % name)
    a("s_cbranch_vccz %s_hk2g" % name)
    a("s_sleep 16")
    a("buffer_load_dword v29, v28, s[60:63], 0 offen offset:128 sc1")
    a("s_waitcnt vmcnt(0)")
    a("s_branch %s_hk2l" % name)
    a.label("%s_hk2g" % name)
    nconv = emit_conv_loads(a, " sc1")
    a("s_waitcnt vmcnt(%d)" % (9 + nconv))
    a("s_branch %s_lcont" % name)
    a.label("%s_ldone" % name)
    a("s_waitcnt vmcnt(0)")
    a("s_barrier")
    a("s_mov_b32 s26, s53")
    a("s_and_b32 s27, s3, 1")
    a("s_mul_i32 s27, s27, %d" % CJ_SIZE)
    a("s_lshr_b32 s36, s3, 1")
    a("s_mul_i32 s36, s36, %d" % SLOT)
    a("s_add_u32 s27, s27, s36")
    a("s_add_u32 s27, s27, %d" % RB)
    def mid():
        a("s_barrier")
        a("s_setprio 0")
    sv = set(DBG); DBG.discard("stamp")
    lb_ = len(a.lines)
    emit_conv_job(a, name, mid)
    for n_ in range(lb_, len(a.lines)):
        if "buffer_store_dwordx2" in a.lines[n_]: a.lines[n_] += " sc1"
    DBG.update(sv)
    stamp(a, 9)
    c_common()
    cTa = [4, 4]; cTb = [6, 6]; cF_ = 8; cFh = 9
    kTa = 88; kTb = 90; kF = 92; kFh = 93
    a("v_and_b32 v3, 15, v2")
    a("v_lshrrev_b32 v10, 5, v2")
    a("v_lshlrev_b32 v10, 11, v10")
    a("v_bfe_u32 v11, v2, 4, 1")
    a("v_lshl_add_u32 v10, v11, 4, v10")
    a("v_lshl_add_u32 v10, v3, 5, v10")
    a("s_lshl_b32 s26, s3, 12")
    a("v_add_u32 v10, s26, v10")
    a("s_lshl_b32 s26, s53, 10")
    a("v_add_u32 v%d, s26, v10" % kTa)
    a("s_xor_b32 s26, s26, 1024")
    a("v_add_u32 v%d, s26, v10" % kTb)
    a("v_lshrrev_b32 v10, 2, v2")
    a("v_mul_u32_u24 v10, %d, v10" % CFS)
    a("v_and_b32 v11, 3, v2")
    a("v_lshl_add_u32 v10, v11, 3, v10")
    a("s_mul_i32 s26, s3, %d" % (32 * CFS))
    a("s_add_u32 s26, s26, %d" % CTREG)
    a("v_add_u32 v%d, s26, v10" % kF)
    a("v_add_u32 v%d, 128, v%d" % (kFh, kF))
    a("v_mov_b32 v26, %d" % LC)
    a("v_mov_b32 v27, 1")
    a("s_waitcnt vmcnt(0)")
    a("s_mov_b64 exec, 1")
    a("ds_add_rtn_u32 v28, v26, v27 offset:20")
    a("s_waitcnt lgkmcnt(0)")
    a("v_readfirstlane_b32 s36, v28")
    a("s_cmp_lg_u32 s36, 3")
    a("s_cbranch_scc1 %s_nocs" % name)
    a("s_and_b32 s36, s2, 15")
    a("s_lshl_b32 s36, s36, 2")
    a("s_add_u32 s36, s36, 192")
    a("v_mov_b32 v28, s36")
    a("buffer_atomic_add v27, v28, s[60:63], 0 offen sc1")
    a.label("%s_nocs" % name)
    a("s_mov_b64 exec, -1")
    fin_loads()
    core3 = G.Core(a, ACC, FB[0], FB[1], CFS, CTREG, cTa, cTb, cF_, cFh, TT=512)
    pairs = ((cTa[0], kTa), (cF_, kF), (cTb[0], kTb), (cFh, kFh))
    a("s_mov_b32 s27, %d" % C0)
    for d, s_ in pairs: a("v_add_u32 v%d, s27, v%d" % (d, s_))
    for r in range(ACC, ACC + 72): a("v_mov_b32 v%d, 0" % r)
    a("s_mov_b32 s33, 0")
    a("s_barrier")
    stamp(a, 10)
    core3.prime(0, core3.reads(0, 0))
    def citer(buf):
        core3.trk.drain()
        a("s_barrier")
        a("s_add_u32 s27, s27, %d" % CSL)
        a("s_cmp_eq_u32 s27, %d" % CW)
        a("s_cselect_b32 s27, %d, s27" % RB)
        pre = ["v_add_u32 v%d, s27, v%d" % (d, s_) for d, s_ in pairs]
        core3.phase(buf, core3.reads(1 - buf, 0), pre=pre)
    a.label("%s_ccloop" % name)
    citer(0); citer(1)
    a("s_add_u32 s33, s33, 1")
    a("s_cmp_lt_u32 s33, 9")
    a("s_cbranch_scc1 %s_ccloop" % name)
    core3.trk.drain()
    stamp(a, 11)
    a("s_mul_i32 s33, s3, %d" % (18 * 1024))
    a("s_add_u32 s33, s33, %d" % C0)
    a("v_lshlrev_b32 v10, 4, v2")
    a("v_add_u32 v11, s33, v10")
    a("s_nop 4")
    for n, (ft, tt) in enumerate(TILES):
        a("ds_write_b128 v11, %s offset:%d" % (vr(core3.accr(ft, tt)), 1024 * tidx(ft, tt)))
        if n in (7, 13): a("s_waitcnt lgkmcnt(4)")
    a("s_waitcnt lgkmcnt(0) vmcnt(0)")
    a.label("%s_cfin" % name)
    a("s_barrier")
    stamp(a, 12)
    a("v_lshlrev_b32 v10, 4, v2")
    a("v_lshrrev_b32 v11, 2, v2")
    a("v_lshlrev_b32 v11, 7, v11")
    a("v_and_b32 v12, 3, v2")
    a("v_lshl_add_u32 v11, v12, 3, v11")
    a("s_mov_b32 s33, 0xbfb8aa3b")
    PT = 16; YR = 64
    for s_ in range(3):
        b = 64 + 4 * s_
        if s_ == 2:
            a("s_cmp_ge_u32 s54, 2")
            a("s_cbranch_scc1 %s_rd" % name)
        a("v_add_u32 v4, s%d, v10" % (b + 2))
        a("v_add_u32 v5, s%d, v11" % (b + 1))
        for q in range(4):
            a("ds_read_b128 %s, v4 offset:%d" % (vr(PT + 16 * s_ + 4 * q), 18432 * q))
        a("ds_read_b64_tr_b16 %s, v5" % vr(YR + 2 * s_, 2))
    a.label("%s_rd" % name)
    T = 104
    for s_ in range(3):
        b = 64 + 4 * s_
        if s_ == 0: a("s_waitcnt lgkmcnt(5)")
        if s_ == 1: a("s_waitcnt lgkmcnt(0)")
        if s_ == 2:
            a("s_cmp_ge_u32 s54, 2")
            a("s_cbranch_scc1 %s_done" % name)
        o = PT + 16 * s_; X = XR + 2 * s_; Y = YR + 2 * s_; S_ = ST + 2 * s_
        for h in (0, 2):
            a("v_pk_add_f32 %s, %s, %s" % (vr(o + h, 2), vr(o + h, 2), vr(o + 4 + h, 2)))
            a("v_pk_add_f32 %s, %s, %s" % (vr(o + 8 + h, 2), vr(o + 8 + h, 2), vr(o + 12 + h, 2)))
        for h in (0, 2):
            a("v_pk_add_f32 %s, %s, %s" % (vr(o + h, 2), vr(o + h, 2), vr(o + 8 + h, 2)))
        rnd_pair(a, T + 20, o, o + 1); rnd_pair(a, T + 21, o + 2, o + 3)
        for r in range(4): a("v_mul_f32 v%d, s33, v%d" % (T + r, o + r))
        for r in range(4): a("v_exp_f32 v%d, v%d" % (T + r, T + r))
        a("v_lshlrev_b32 v%d, 16, v%d" % (T + 4, X)); a("v_and_b32 v%d, 0xffff0000, v%d" % (T + 5, X))
        a("v_lshlrev_b32 v%d, 16, v%d" % (T + 6, X + 1)); a("v_and_b32 v%d, 0xffff0000, v%d" % (T + 7, X + 1))
        for r in range(4): a("v_add_f32 v%d, 1.0, v%d" % (T + r, T + r))
        for r in range(4): a("v_rcp_f32 v%d, v%d" % (T + r, T + r))
        for r in range(4): a("v_sub_f32 v%d, v%d, v%d" % (T + 12 + r, T + 4 + r, S_))
        a("v_lshlrev_b32 v%d, 16, v%d" % (T + 8, Y)); a("v_and_b32 v%d, 0xffff0000, v%d" % (T + 9, Y))
        a("v_lshlrev_b32 v%d, 16, v%d" % (T + 10, Y + 1)); a("v_and_b32 v%d, 0xffff0000, v%d" % (T + 11, Y + 1))
        for r in range(4): a("v_mul_f32 v%d, v%d, v%d" % (o + r, o + r, T + r))
        rnd_pair(a, T + 20, T + 12, T + 13); rnd_pair(a, T + 21, T + 14, T + 15)
        rnd_pair(a, T + 22, o, o + 1); rnd_pair(a, T + 23, o + 2, o + 3)
        for r in range(4): a("v_mul_f32 v%d, v%d, v%d" % (T + 12 + r, T + 12 + r, S_ + 1))
        rnd_pair(a, T + 20, T + 12, T + 13); rnd_pair(a, T + 21, T + 14, T + 15)
        for r in range(4): a("v_mul_f32 v%d, v%d, v%d" % (T + 12 + r, T + 12 + r, T + 8 + r))
        rnd_pair(a, T + 20, T + 12, T + 13); rnd_pair(a, T + 21, T + 14, T + 15)
        for r in range(4): a("v_mul_f32 v%d, v%d, v%d" % (T + 12 + r, T + 12 + r, o + r))
        rnd_pair(a, T + 20, T + 12, T + 13); rnd_pair(a, T + 21, T + 14, T + 15)
        for r in range(4): a("v_add_f32 v%d, v%d, v%d" % (T + 12 + r, T + 12 + r, T + 4 + r))
        a("v_cvt_pk_bf16_f32 v%d, v%d, v%d" % (X, T + 12, T + 13))
        a("v_cvt_pk_bf16_f32 v%d, v%d, v%d" % (X + 1, T + 14, T + 15))
        a("buffer_store_dwordx2 %s, v13, s[28:31], s%d offen" % (vr(X, 2), b))
    a.label("%s_done" % name)
    stamp(a, 13)
    G.stamp_rt(a, 1)
    a.label("%s_end" % name)
    a("s_endpgm")
    return a.text(), kernel_desc(name, 256, 256), (name, 256, 512, YOFF + 10240)

def gen_kf3(name="k1_kernel", R=4):
    a = Asm()
    RB = 4096; SLOT = 34816; TREG = 16384; FS = 288; RST = 0
    LDSB = RB + R * SLOT
    LC = 2048
    ZFLG = 0x2D00000
    from gen3 import emit_conv_loads, emit_conv_job, CJ_SIZE
    def capture(f, *args):
        lb = len(a.lines); f(*args); out = a.lines[lb:]; del a.lines[lb:]; return out
    kernel_begin(a, name)
    a("s_load_dwordx2 s[80:81], s[0:1], 0")
    a("s_load_dwordx2 s[4:5], s[0:1], 56")
    a("s_load_dwordx2 s[6:7], s[0:1], 104")
    a("s_load_dwordx2 s[18:19], s[0:1], 96")
    a("s_cmp_ge_u32 s2, 256")
    a("s_cbranch_scc1 %s_end" % name)
    a("v_lshrrev_b32 v1, 6, v0")
    a("v_and_b32 v2, 63, v0")
    a("v_readfirstlane_b32 s3, v1")
    G2.tile_ij(a)
    a("s_lshr_b32 s98, s3, 2")
    a("s_mov_b32 s54x, 0".replace("s54x", "s99"))
    a("s_and_b32 s3, s3, 3")
    a("s_lshr_b32 s24, s3, 1")
    a("s_and_b32 s25, s3, 1")
    a("v_and_b32 v3, 15, v2")
    VT = 204; VF = 208
    def loader_setup():
        a("v_lshrrev_b32 v5, 3, v2")
        a("v_and_b32 v4, 7, v2")
        a("s_lshl_b32 s36, s3, 5")
        a("v_add_u32 v5, s36, v5")
        a("v_lshrrev_b32 v7, 4, v2")
        a("v_xor_b32 v7, v7, v4")
        a("v_mul_u32_u24 v6, 1152, v5")
        a("v_lshl_add_u32 v%d, v7, 4, v6" % VT)
        a("v_xor_b32 v%d, 64, v%d" % (VT + 1, VT))
        a("v_add_u32 v%d, %d, v%d" % (VT + 1, 9216 - 1024, VT + 1))
        a("v_add_u32 v%d, %d, v%d" % (VT + 2, 2 * (9216 - 1024), VT))
        a("v_add_u32 v%d, %d, v%d" % (VT + 3, 2 * (9216 - 1024), VT + 1))
        a("s_lshl_b32 s84, s3, 12")
        a("s_add_u32 s84, s84, %d" % RB)
        a("s_lshl_b32 s85, s3, 9")
        a("s_add_u32 s85, s85, %d" % (RB + TREG + 16384))
    def loader_setup2():
        for n in range(5):
            if n < 4:
                a("s_lshl_b32 s36, s3, 8")
                a("s_add_u32 s36, s36, %d" % (64 * n))
            else:
                a("s_lshl_b32 s36, s3, 5")
                a("s_add_u32 s36, s36, 1024")
            a("v_add_u32 v6, s36, v2")
            a("v_mul_u32_u24 v7, 3641, v6")
            a("v_lshrrev_b32 v7, 16, v7")
            a("v_mul_u32_u24 v8, 18, v7")
            a("v_sub_u32 v8, v6, v8")
            a("v_and_b32 v9, 35, v7")
            a("v_bfe_u32 v6, v7, 2, 2")
            a("v_lshl_add_u32 v9, v6, 3, v9")
            a("v_bfe_u32 v6, v7, 4, 1")
            a("v_lshl_add_u32 v9, v6, 2, v9")
            a("v_mul_u32_u24 v9, 9216, v9")
            a("v_lshl_add_u32 v%d, v8, 4, v9" % (VF + n))
            if 0 < n < 4: a("v_subrev_u32 v%d, %d, v%d" % (VF + n, 1024 * n, VF + n))
    def issueT(g):
        st = g % 9
        a("s_add_u32 s86, s84, %d" % ((g % R) * SLOT))
        a("s_mov_b32 m0, s86")
        a("s_add_u32 s87, s82, %d" % (128 * st))
        for n in range(4):
            a("buffer_load_dwordx4 v%d, s[28:31], s87 offen offset:%d lds" % (VT + n, 1024 * n))
    def issueF(g):
        st = g % 9
        a("s_add_u32 s86, s84, %d" % ((g % R) * SLOT + TREG))
        a("s_mov_b32 m0, s86")
        a("s_add_u32 s87, s83, %d" % (64 * 9216 * st + (4608 if g < 9 else 0)))
        for n in range(4):
            a("buffer_load_dwordx4 v%d, s[8:11], s87 offen offset:%d lds" % (VF + n, 1024 * n))
        a("s_add_u32 s86, s85, %d" % ((g % R) * SLOT))
        a("s_mov_b32 m0, s86")
        a("s_mov_b64 exec, 0xffffffff")
        a("buffer_load_dwordx4 v%d, s[8:11], s87 offen lds" % (VF + 4))
        a("s_mov_b64 exec, -1")
    def srds_main():
        srd(a, 28, 80, 2048 * 576 * 2)
        srd(a, 8, 4, 576 * 4608 * 2)
        srd(a, 12, 6, WS_BYTES)
        srd(a, 60, 18, 256)
        a("s_mul_i32 s82, s22, %d" % (128 * 1152))
        a("s_mul_i32 s83, s23, 288")
    ACC = 128; FB = [16, 52]; CS = 216; ONE = 236
    vTa = [4, 5]; vTb = [6, 7]; vF = 8; vFh = 9
    bTa = [88, 89]; bTb = [90, 91]; bF = 92; bFh = 93
    def mma_setup():
        a("v_lshrrev_b32 v10, 4, v2")
        a("v_lshrrev_b32 v11, 1, v3")
        a("v_xor_b32 v10, v10, v11")
        a("v_lshlrev_b32 v10, 4, v10")
        a("v_lshl_add_u32 v10, v3, 7, v10")
        a("s_lshl_b32 s26, s24, 13")
        a("s_add_u32 s26, s26, %d" % RB)
        a("v_add_u32 v10, s26, v10")
        a("s_lshl_b32 s26, s25, 12")
        a("v_add_u32 v%d, s26, v10" % bTa[0])
        a("s_xor_b32 s26, s26, 4096")
        a("v_add_u32 v%d, s26, v10" % bTb[0])
        a("v_xor_b32 v%d, 64, v%d" % (bTa[1], bTa[0]))
        a("v_xor_b32 v%d, 64, v%d" % (bTb[1], bTb[0]))
        a("v_lshrrev_b32 v10, 2, v2")
        a("v_mul_u32_u24 v10, %d, v10" % FS)
        a("v_and_b32 v11, 3, v2")
        a("v_lshl_add_u32 v10, v11, 3, v10")
        a("v_add_u32 v10, %d, v10" % (RB + TREG))
        a("s_mul_i32 s26, s25, 160")
        a("v_add_u32 v%d, s26, v10" % bF)
        a("v_add_u32 v%d, 128, v10" % bFh)
        for r in range(ACC, ACC + 72): a("v_mov_b32 v%d, 0" % r)
        for r in range(CS, CS + 20): a("v_mov_b32 v%d, 0" % r)
        for r in range(ONE, ONE + 4): a("v_mov_b32 v%d, 0x3f803f80" % r)
    def mma_addr(slot):
        a("s_mov_b32 s27, %d" % (slot * SLOT))
        for d, s_ in ((vTa[0], bTa[0]), (vTb[0], bTb[0]), (vTa[1], bTa[1]), (vTb[1], bTb[1]), (vF, bF), (vFh, bFh)):
            a("v_add_u32 v%d, s27, v%d" % (d, s_))
    core = G.Core(a, ACC, FB[0], FB[1], FS, TREG, vTa, vTb, vF, vFh)
    trk = core.trk
    a("s_cmp_eq_u32 s98, 0")
    a("s_cbranch_scc1 %s_A0" % name)
    a("s_setprio 3")
    loader_setup()
    a("s_waitcnt lgkmcnt(0)")
    srds_main()
    vm = VmTracker(a)
    def issue(g, vmx):
        issueT(g); issueF(g); vmx.issue("S%d" % g, 9)
    issueT(0)
    loader_setup2()
    issueF(0); vm.issue("S0", 9)
    issue(1, vm); issue(2, vm); issue(3, vm)
    a("s_add_u32 s3, s3, 4"); stamp_setup(a, 1); stamp(a, 0); a("s_sub_u32 s3, s3, 4")
    mma_setup()
    RA = 96; XB = 112
    for r in range(RA, RA + 16): a("v_mov_b32 v%d, 0" % r)
    a("v_lshrrev_b32 v10, 4, v2")
    a("v_lshrrev_b32 v11, 1, v3")
    a("v_xor_b32 v10, v10, v11")
    a("v_lshlrev_b32 v10, 4, v10")
    a("v_lshl_add_u32 v10, v3, 7, v10")
    a("v_add_u32 v12, s84, v10")
    a("v_xor_b32 v13, 64, v12")
    def rs_rd(g):
        a("v_add_u32 v10, %d, v12" % ((g % R) * SLOT))
        a("v_add_u32 v11, %d, v13" % ((g % R) * SLOT))
        for h in range(2):
            for n in range(2):
                a("ds_read_b128 %s, v%d offset:%d" % (vr(XB + 8 * h + 4 * n), 10 + h, 2048 * n))
    def rs_do():
        for h in range(2):
            for n in range(2):
                x = XB + 8 * h + 4 * n
                a("v_mfma_f32_16x16x32_bf16 %s, %s, %s, %s" % (vr(RA + 4 * n), vr(ONE), vr(x), vr(RA + 4 * n)))
                a("v_mfma_f32_16x16x32_bf16 %s, %s, %s, %s" % (vr(RA + 8 + 4 * n), vr(x), vr(x), vr(RA + 8 + 4 * n)))
    def interleave(dma, comp, vmx=None):
        groups = []; cur = []
        for l in dma:
            cur.append(l)
            if "buffer_load" in l and not any("exec, 0xffffffff" in x for x in cur[-2:]):
                groups.append(cur); cur = []
            elif "exec, -1" in l:
                groups.append(cur); cur = []
        if cur: groups.append(cur)
        ns = max(1, len(groups))
        per = (len(comp) + ns - 1) // ns
        for g in groups:
            a.lines.extend(g)
            a.lines.extend(comp[:per]); comp = comp[per:]
        a.lines.extend(comp)
    vm.wait(["S0"])
    a("s_barrier")
    stamp(a, 1)
    rs_rd(0)
    vm.wait(["S1"])
    a("s_barrier")
    for k in range(9):
        a("s_waitcnt lgkmcnt(0)")
        dma = capture(lambda: (issueT(k + 3), issueF(k + 3))) if k >= 1 else []
        interleave(dma, capture(rs_do))
        if k >= 1: vm.issue("S%d" % (k + 3), 9)
        if k < 8:
            rs_rd(k + 1)
        else:
            a("s_nop 7")
            a("v_lshrrev_b32 v10, 4, v2")
            a("v_lshrrev_b32 v11, 2, v3")
            a("v_and_b32 v12, 3, v3")
            for n in range(2):
                G_ = RA + 8 + 4 * n
                for r in range(1, 4):
                    a("v_cmp_eq_u32 vcc, %d, v12" % r)
                    a("s_nop 1")
                    a("v_cndmask_b32 v%d, v%d, v%d, vcc" % (G_, G_, G_ + r))
            ML = 112
            for n in range(2):
                emit_ln_finish(a, RA + 4 * n, RA + 8 + 4 * n, 576, ML + 2 * n, ML + 2 * n + 1, 120)
                a("v_mov_b32 v%d, v%d" % (117 + 2 * n, ML + 2 * n + 1))
                a("v_sub_f32 v%d, 0, v%d" % (116 + 2 * n, ML + 2 * n))
            a("s_lshl_b32 s35, s3, 8")
            a("v_lshlrev_b32 v13, 3, v3")
            a("v_add_u32 v12, s35, v13")
            a("v_cmp_eq_u32 vcc, v10, v11")
            a("s_and_saveexec_b64 s[36:37], vcc")
            for n in range(2):
                a("ds_write_b64 v12, %s offset:%d" % (vr(116 + 2 * n, 2), RST + 128 * n))
            a("s_mov_b64 exec, s[36:37]")
            a("s_cmp_lg_u32 s23, 0")
            a("s_cbranch_scc1 %s_nost1" % name)
            a("s_lshl_b32 s35, s22, 7")
            a("s_lshl_b32 s36, s3, 5")
            a("s_add_u32 s35, s35, s36")
            a("s_lshl_b32 s35, s35, 3")
            a("s_add_u32 s35, s35, 0x%x" % STATS1)
            a("v_mov_b32 v11, 0x7ffffff0")
            a("v_cndmask_b32 v13, v11, v13, vcc")
            for n in range(2):
                a("buffer_store_dwordx2 %s, v13, s[12:15], s35 offen offset:%d" % (vr(ML + 2 * n, 2), 128 * n))
            a.label("%s_nost1" % name)
            mma_addr(9 % R)
            a("s_mov_b32 s33, 0")
            a("s_setprio 0")
        vm.wait(["S%d" % (k + 2)], "lgkmcnt(0)" if k == 8 else "")
        if k < 8: a("s_barrier")
    a("s_branch %s_mma" % name)
    a.label("%s_A0" % name)
    emit_code_prefetch(a, name)
    a("s_load_dwordx4 s[64:67], s[0:1], 8")
    a("s_load_dwordx2 s[76:77], s[0:1], 24")
    a("s_load_dwordx2 s[78:79], s[0:1], 64")
    mma_setup()
    loader_setup(); loader_setup2()
    a("s_waitcnt lgkmcnt(0)")
    srds_main()
    srd(a, 68, 66, 2048 * 576 * 2)
    a("s_mov_b32 s88, s64"); a("s_mov_b32 s89, s65")
    srd(a, 64, 88, 2048 * 576 * 2)
    srd(a, 72, 76, 576 * 8)
    stamp_setup(a, 1); stamp(a, 0)
    def gran_addr():
        a("v_lshrrev_b32 v10, 4, v2")
        a("s_lshl_b32 s36, s25, 1")
        a("v_add_u32 v11, s36, v10")
        a("v_and_b32 v11, 3, v11")
        a("v_lshl_add_u32 v11, v11, 4, v3")
        a("v_lshlrev_b32 v94, 8, v11")
        a("s_lshl_b32 s59, s22, 7")
        a("s_lshl_b32 s36, s24, 6")
        a("s_add_u32 s59, s59, s36")
        a("s_lshl_b32 s59, s59, 8")
        a("s_add_u32 s59, s59, 0x%x" % STATS2)
        a("s_lshl_b32 s36, s23, 1")
        a("s_add_u32 s36, s36, s25")
        a("s_lshl_b32 s36, s36, 3")
        a("s_add_u32 s58, s36, s59")
    gran_addr()
    a("v_mov_b32 v12, 0"); a("v_mov_b32 v13, 0x80000000")
    a("buffer_store_dwordx2 v[12:13], v94, s[12:15], s58 offen sc1")
    a("s_lshl_b32 s36, s22, 4")
    a("s_add_u32 s36, s36, s23")
    a("s_lshl_b32 s36, s36, 8")
    a("s_add_u32 s97, s36, 0x%x" % ZFLG)
    a("v_mov_b32 v10, %d" % LC)
    a("v_mov_b32 v12, 0"); a("v_mov_b32 v13, 0")
    a("s_mov_b64 exec, 1")
    a("buffer_store_dword v12, v12, s[12:15], s97 offen sc1")
    a("s_mov_b64 exec, -1")
    a("ds_write_b64 v10, v[12:13]")
    a("ds_write_b64 v10, v[12:13] offset:8")
    mma_addr(0)
    a("s_mov_b32 s33, 0")
    a("s_waitcnt lgkmcnt(0)")
    a("s_barrier")
    stamp(a, 1)
    a.label("%s_mma" % name)
    core.prime(0, core.reads(0, 0))
    trk.drain()
    nocs = [False]
    def mfmas(buf):
        L = []
        for ft in range(5):
            A = core.F(buf, ft)
            for tt in range(4 if ft < 4 else 2):
                c = core.accr(ft, tt); B = core.T(buf, tt)
                L.append(("v_mfma_f32_16x16x32_bf16 %s, %s, %s, %s" % (vr(c), vr(A), vr(B), vr(c)), list(range(A, A + 4)) + list(range(B, B + 4))))
            if not nocs[0]: L.append(("v_mfma_f32_16x16x32_bf16 %s, %s, %s, %s" % (vr(CS + 4 * ft), vr(A), vr(ONE), vr(CS + 4 * ft)), list(range(A, A + 4))))
        return L
    def phase(buf, pend):
        for (m, regs) in mfmas(buf):
            trk.need(regs)
            a(m)
            while pend:
                k, t = pend.pop(0)
                if k == "x":
                    a(t)
                    if t.startswith("s_"): continue
                else:
                    a(t[0]); trk.issue(t[1])
                break
        for k, t in pend:
            if k == "x": a(t)
            else: a(t[0]); trk.issue(t[1])
    def iteration(vw=True):
        if vw: a("s_waitcnt vmcnt(0)")
        a("s_barrier")
        rd = [("r", t) for t in core.reads(1, 1)]
        upd = ["s_add_u32 s27, s27, %d" % SLOT, "s_cmp_eq_u32 s27, %d" % (R * SLOT), "s_cselect_b32 s27, 0, s27"]
        tail = ["v_add_u32 v%d, s27, v%d" % (d, s_) for d, s_ in ((vTa[0], bTa[0]), (vF, bF), (vTb[0], bTb[0]), (vFh, bFh))]
        phase(0, rd[:1] + [("x", u) for u in upd] + rd[1:] + [("x", u) for u in tail])
        rd = [("r", t) for t in core.reads(0, 0)]
        tail = ["v_add_u32 v%d, s27, v%d" % (d, s_) for d, s_ in ((vTa[1], bTa[1]), (vTb[1], bTb[1]))] + ["s_add_u32 s33, s33, 1"]
        phase(1, rd + [("x", u) for u in tail])
    a.label("%s_cloop" % name)
    lb = len(a.lines); iteration(); st = copy.deepcopy(trk.out); del a.lines[lb:]; trk.out = copy.deepcopy(st)
    iteration()
    assert [sorted(x) for x in trk.out] == [sorted(x) for x in st]
    a("s_cmp_lt_u32 s33, 9")
    a("s_cbranch_scc1 %s_cloop" % name)
    trk.drain()
    stamp(a, 2)
    MR = 100; T = 72; ZP = 16
    def epi_in():
        gelu_consts(a)
        a("s_lshl_b32 s36, s24, 9")
        a("s_lshl_b32 s37, s25, 8")
        a("s_add_u32 s38, s36, s37")
        a("s_xor_b32 s37, s37, 256")
        a("s_add_u32 s39, s36, s37")
        a("v_lshlrev_b32 v10, 3, v3")
        a("v_add_u32 v11, s38, v10")
        a("ds_read_b64 %s, v11 offset:%d" % (vr(MR, 2), RST))
        a("ds_read_b64 %s, v11 offset:%d" % (vr(MR + 2, 2), RST + 128))
        a("v_add_u32 v11, s39, v10")
        a("ds_read_b64 %s, v11 offset:%d" % (vr(MR + 4, 2), RST))
        a("ds_read_b64 %s, v11 offset:%d" % (vr(MR + 6, 2), RST + 128))
        a("s_waitcnt lgkmcnt(0)")
    S = [108, 110, 52, 54]; Q = [109, 111, 53, 55]
    def gelu_ft(ft, stats):
        tts = range(4 if ft < 4 else 2)
        emit_fold_gelu(a, [(core.accr(ft, tt), CS + 4 * ft, MR + 2 * tt, ZP + 2 * tidx(ft, tt)) for tt in tts], T)
        if stats:
            for d in range(2):
                for tt in tts:
                    p = ZP + 2 * tidx(ft, tt) + d
                    a("v_dot2_f32_bf16 v%d, v%d, v%d, v%d" % (S[tt], p, ONE, S[tt]))
                    a("v_dot2_f32_bf16 v%d, v%d, v%d, v%d" % (Q[tt], p, p, Q[tt]))
    a("s_cmp_eq_u32 s98, 0")
    a("s_cbranch_scc1 %s_A1" % name)
    a("v_mov_b32 v10, %d" % (LC + 12))
    a("v_mov_b32 v11, 1")
    a("s_mov_b64 exec, 1")
    a("ds_add_u32 v10, v11")
    a("s_mov_b64 exec, -1")
    a("s_load_dwordx4 s[64:67], s[0:1], 8")
    a("s_load_dwordx2 s[76:77], s[0:1], 24")
    a("s_load_dwordx2 s[94:95], s[0:1], 80")
    a("s_load_dwordx2 s[92:93], s[0:1], 72")
    epi_in()
    srd(a, 68, 66, 2048 * 576 * 2)
    a("s_mov_b32 s88, s64"); a("s_mov_b32 s89, s65")
    srd(a, 64, 88, 2048 * 576 * 2)
    srd(a, 72, 76, 576 * 8)
    srd(a, 76, 94, 2304 * 576 * 2)
    srd(a, 28, 92, 2048 * 2)
    a("v_and_b32 v0, 255, v0")
    a("s_mov_b32 s41, s2")
    KDB = 240
    emit_kv_loads(a, 112, 240, 248, 252, 253)
    a("s_cmp_ge_u32 s2, 32")
    a("s_cbranch_scc1 %s_kvp" % name)
    a("s_add_u32 s41, s2, 256")
    emit_kv_loads(a, 52, 63, 124, 71, 123)
    a.label("%s_kvp" % name)
    for ft in range(5): gelu_ft(ft, False)
    Z1R = 200; BI = 236
    for r_ in range(36): a("v_mov_b32 v%d, v%d" % (Z1R + r_, ZP + r_))
    stamp(a, 3)
    a("s_waitcnt vmcnt(0)")
    for n in range(11): a("v_mov_b32 v%d, v%d" % (16 + n, 112 + n))
    for n in range(8): a("v_mov_b32 v%d, v%d" % (32 + n, 240 + n))
    for n in range(4): a("v_mov_b32 v%d, v%d" % (44 + n, 248 + n))
    for r_ in range(6): a("v_mov_b32 v%d, v%d" % (240 + r_, 88 + r_))
    for r_ in range(20): a("v_mov_b32 v%d, v%d" % (128 + r_, 52 + r_))
    for r_ in range(5): a("v_mov_b32 v%d, v%d" % (148 + r_, 123 + r_))
    a("v_mov_b32 v56, v252"); a("v_mov_b32 v57, v253")
    a.label("%s_kvb" % name)
    emit_kv_compute(a, wait=False, store=False)
    a("s_mov_b32 s39, 0x%x" % KVT)
    a("buffer_store_dwordx4 v[120:123], v12, s[12:15], s39 offen sc1")
    a("buffer_store_dwordx4 v[124:127], v13, s[12:15], s39 offen sc1")
    a("s_cmp_lt_u32 s41, 256")
    a("s_cbranch_scc1 %s_kvbd" % name)
    a("s_mov_b32 s41, 0")
    for n in range(11): a("v_mov_b32 v%d, v%d" % (16 + n, 128 + n))
    for n in range(8): a("v_mov_b32 v%d, v%d" % (32 + n, 139 + n))
    for n in range(4): a("v_mov_b32 v%d, v%d" % (44 + n, 149 + n))
    a("v_mov_b32 v56, v147"); a("v_mov_b32 v57, v148")
    a("s_branch %s_kvb" % name)
    a.label("%s_kvbd" % name)
    for r_ in range(6): a("v_mov_b32 v%d, v%d" % (88 + r_, 240 + r_))
    a("s_mov_b32 s42, s2")
    emit_wot_loads(a, 100, 112, 720, 3)
    a("s_lshl_b32 s36, s22, 7")
    a("s_lshl_b32 s37, s24, 6")
    a("s_add_u32 s36, s36, s37")
    a("v_lshlrev_b32 v11, 1, v3")
    a("s_lshl_b32 s37, s25, 6")
    a("s_lshl_b32 s38, s36, 1")
    a("s_add_u32 s39, s38, s37")
    a("s_xor_b32 s37, s37, 64")
    a("s_add_u32 s36, s38, s37")
    a("buffer_load_ushort v96, v11, s[28:31], s39 offen")
    a("buffer_load_ushort v97, v11, s[28:31], s39 offen offset:32")
    a("buffer_load_ushort v98, v11, s[28:31], s36 offen")
    a("buffer_load_ushort v99, v11, s[28:31], s36 offen offset:32")
    for r in range(ACC, ACC + 72): a("v_mov_b32 v%d, 0" % r)
    mma_addr(0)
    a("s_mov_b32 s33, 0")
    stamp(a, 4)
    a("s_barrier")
    stamp(a, 5)
    core.prime(0, core.reads(0, 0))
    trk.drain()
    nocs[0] = True
    a.label("%s_gloop" % name)
    lb = len(a.lines); iteration(False); st = copy.deepcopy(trk.out); del a.lines[lb:]; trk.out = copy.deepcopy(st)
    iteration(False)
    assert [sorted(x) for x in trk.out] == [sorted(x) for x in st]
    a("s_cmp_lg_u32 s33, 3")
    a("s_cbranch_scc1 %s_ghk" % name)
    a("s_waitcnt vmcnt(0)")
    for n in range(3):
        a("buffer_store_dwordx4 %s, v%d, s[12:15], s40 offen" % (vr(100 + 4 * n), 112 + n))
    for tt in range(4): a("v_lshlrev_b32 v%d, 16, v%d" % (BI + 2 * tt, 96 + tt))
    a("v_mov_b32 v10, %d" % (LC + 8))
    a("v_mov_b32 v11, 1")
    a("s_mov_b64 exec, 1")
    a("ds_add_rtn_u32 v12, v10, v11")
    a("s_waitcnt lgkmcnt(0)")
    a("v_readfirstlane_b32 s36, v12")
    a("s_cmp_lg_u32 s36, 3")
    a("s_cbranch_scc1 %s_nokvs" % name)
    a("s_and_b32 s36, s2, 15")
    a("s_lshl_b32 s36, s36, 2")
    a("s_add_u32 s36, s36, 128")
    a("v_mov_b32 v10, s36")
    a("buffer_atomic_add v11, v10, s[60:63], 0 offen sc1")
    a.label("%s_nokvs" % name)
    a("s_mov_b64 exec, -1")
    a.label("%s_ghk" % name)
    a("s_cmp_lt_u32 s33, 32")
    a("s_cbranch_scc1 %s_gloop" % name)
    trk.drain()
    stamp(a, 6)
    G3.emit_k2_epilogue(a, core, Z1R, BI)
    stamp(a, 7)
    G.stamp_rt(a, 1)
    a("s_branch %s_end" % name)
    a.label("%s_A1" % name)
    a("s_setprio 2")
    vmA = VmTracker(a)
    PB = 132
    def aux_head():
        epi_in()
        for tt in range(4):
            a("v_mov_b32 v%d, 0" % S[tt]); a("v_mov_b32 v%d, 0" % Q[tt])
    def aux_pub():
        a("s_nop 2")
        emit_xg_reduce(a, S + Q, 72)
        a("v_lshrrev_b32 v10, 4, v2")
        for g in range(1, 4):
            a("v_cmp_eq_u32 vcc, %d, v10" % g)
            a("s_nop 1")
            a("v_cndmask_b32 v%d, v%d, v%d, vcc" % (S[0], S[0], S[g]))
            a("v_cndmask_b32 v%d, v%d, v%d, vcc" % (Q[0], Q[0], Q[g]))
        a("v_and_b32 v%d, 0x7fffffff, v%d" % (Q[0], Q[0]))
        a("buffer_store_dwordx2 v[%d:%d], v94, s[12:15], s58 offen sc1" % (S[0], Q[0]))
    chunks = [capture(aux_head) + capture(gelu_ft, 0, True), capture(gelu_ft, 1, True), capture(gelu_ft, 2, True),
              capture(gelu_ft, 3, True), capture(gelu_ft, 4, True) + capture(aux_pub)]
    GB = [128, 144, 160, 176]
    def gather():
        for tt in range(4):
            for q in range(4):
                a("buffer_load_dwordx4 %s, v4, s[12:15], s%d offen offset:%d sc1" % (vr(GB[tt] + 4 * q), (52, 42, 53, 43)[tt], 16 * q))
    KD = 172
    for k in range(9, 18):
        a("s_barrier")
        if k == 9:
            a("s_cmp_lg_u32 s3, 0")
            a("s_cbranch_scc1 %s_nosig" % name)
            a("v_mov_b32 v10, 1")
            a("s_lshl_b32 s36, s22, 2")
            a("v_mov_b32 v11, s36")
            a("s_mov_b64 exec, 1")
            a("buffer_atomic_add v10, v11, s[60:63], 0 offen sc1")
            a("s_mov_b64 exec, -1")
            a.label("%s_nosig" % name)
        g = k + 3
        dma = capture(lambda: (issueT(g), issueF(g))) if g < 18 else []
        comp = chunks[k - 9] if k - 9 < len(chunks) else []
        interleave(dma, comp)
        if k == 13: vmA.issue("pub", 1)
        if g < 18: vmA.issue("S%d" % g, 9)
        if k == 14:
            srd(a, 92, 78, 2048 * 2048 * 2)
            a("v_lshrrev_b32 v10, 4, v2")
            a("v_lshlrev_b32 v10, 12, v10")
            a("v_lshl_add_u32 v10, v3, 4, v10")
            a("s_lshl_b32 s40, s22, 7")
            a("s_lshl_b32 s36, s3, 5")
            a("s_add_u32 s40, s40, s36")
            a("s_lshl_b32 s40, s40, 12")
            a("s_lshl_b32 s36, s23, 8")
            a("s_add_u32 s40, s40, s36")
            for n in range(8):
                a("buffer_load_dwordx4 v[200:203], v10, s[92:95], s40 offen")
                if n < 7: a("s_add_u32 s40, s40, 16384")
            vmA.issue("wp", 8)
        if k == 13:
            a("s_lshl_b32 s36, s22, 2")
            a("v_mov_b32 v199, s36")
            a("buffer_load_dword v198, v199, s[60:63], 0 offen sc1"); vmA.issue("cnt", 1)
        if k == 15:
            a("v_lshrrev_b32 v10, 4, v2")
            a("v_lshlrev_b32 v95, 8, v3")
            a("v_lshl_add_u32 v95, v10, 6, v95")
            a("s_lshl_b32 s33, s25, 13")
            a("s_add_u32 s52, s59, s33")
            a("s_xor_b32 s33, s33, 8192")
            a("s_add_u32 s53, s59, s33")
            a("s_add_u32 s42, s52, 4096")
            a("s_add_u32 s43, s53, 4096")
            a("v_mov_b32 v4, v95")
            vmA.wait(["S17"])
            gather(); vmA.issue("g", 16)
        if k + 2 < 18 and k + 2 >= 12 and k != 15:
            vmA.wait(["S%d" % (k + 2)])
    stamp(a, 3)
    a("s_load_dwordx4 s[88:91], s[0:1], 32")
    Z2 = ZP
    a("s_mov_b32 s40, 0")
    a("s_waitcnt vmcnt(0)")
    a.label("%s_chk" % name)
    a("v_subrev_u32 v11, 16, v198")
    for tt in range(4):
        for r in range(GB[tt] + 1, GB[tt] + 16, 4):
            a("v_or3_b32 v11, v11, v%d, v%d" % (r, r + 2))
    a("v_cmp_gt_i32 vcc, 0, v11")
    a("s_add_u32 s40, s40, 1")
    a("s_cmp_gt_u32 s40, %d" % SPIN_MAX)
    a("s_cbranch_scc1 %s_ok" % name)
    a("s_cbranch_vccz %s_ok" % name)
    a("s_sleep 32")
    a("buffer_load_dword v198, v199, s[60:63], 0 offen sc1")
    a("s_waitcnt vmcnt(0)")
    gather()
    a("s_waitcnt vmcnt(0)")
    a("s_branch %s_chk" % name)
    a.label("%s_ok" % name)
    stamp(a, 5)
    for tt in range(4):
        b = GB[tt]
        for st_ in (8, 4, 2):
            for q in range(0, st_, 2):
                a("v_pk_add_f32 %s, %s, %s" % (vr(b + q, 2), vr(b + q, 2), vr(b + q + st_, 2)))
    emit_xg_reduce(a, [GB[tt] + e for tt in range(4) for e in range(2)], 72)
    for tt in range(4):
        b = GB[tt]
        emit_ln_finish(a, b, b + 1, 2304, b + 2, MR + 2 * tt, b + 4)
        a("v_mul_f32 v%d, -v%d, v%d" % (MR + 2 * tt + 1, b + 2, MR + 2 * tt))
    a("v_lshrrev_b32 v10, 4, v2")
    a("v_lshrrev_b32 v11, 2, v2"); a("v_and_b32 v11, 1, v11"); a("v_lshlrev_b32 v11, 4, v11")
    a("v_lshrrev_b32 v5, 3, v2"); a("v_and_b32 v5, 1, v5"); a("v_lshl_add_u32 v11, v5, 2, v11")
    a("v_and_b32 v5, 3, v2"); a("v_add_u32 v11, v11, v5")
    a("v_mul_u32_u24 v11, 288, v11")
    a("v_lshrrev_b32 v5, 1, v10"); a("v_lshl_add_u32 v11, v5, 4, v11")
    a("v_and_b32 v5, 1, v10")
    a("v_lshl_add_u32 v6, v5, 5, v11")
    a("v_mul_u32_u24 v5, 2304, v5")
    a("v_add_u32 v9, v11, v5")
    a("s_lshl_b32 s33, s23, 5")
    a("s_lshl_b32 s36, s22, 1")
    a("s_add_u32 s33, s33, s36")
    a("s_add_u32 s33, s33, s24")
    a("s_mul_i32 s33, s33, 18432")
    if ZIMG: a("s_add_u32 s33, s33, 0x%x" % ZIMG)
    a("s_mul_i32 s36, s25, 9216")
    a("s_add_u32 s37, s33, s36")
    a("s_xor_b32 s36, s36, 9216")
    a("s_add_u32 s38, s33, s36")
    a("s_add_u32 s39, s37, 128")
    a("s_mul_i32 s36, s25, 160")
    a("s_add_u32 s37, s37, s36")
    a("s_add_u32 s38, s38, s36")
    def norm_pair(nA, ttA, nB, ttB, O):
        for q, (n, tt) in enumerate(((nA, ttA), (nB, ttB))):
            for d in range(2):
                z = Z2 + 2 * n + d; t = T + 4 * q + 2 * d
                a("v_lshlrev_b32 v%d, 16, v%d" % (t, z))
                a("v_and_b32 v%d, 0xffff0000, v%d" % (t + 1, z))
        for q, (n, tt) in enumerate(((nA, ttA), (nB, ttB))):
            for d in range(2):
                t = T + 4 * q + 2 * d
                a("v_pk_fma_f32 %s, %s, %s, %s op_sel:[0,0,1] op_sel_hi:[1,0,1]" % (vr(t, 2), vr(t, 2), vr(MR + 2 * tt, 2), vr(MR + 2 * tt, 2)))
        for q in range(2):
            for d in range(2):
                t = T + 4 * q + 2 * d
                a("v_cvt_pk_bf16_f32 v%d, v%d, v%d" % (O + 2 * q + d, t, t + 1))
        a("s_nop 1")
        a("v_permlane16_swap_b32 v%d, v%d" % (O, O + 2))
        a("v_permlane16_swap_b32 v%d, v%d" % (O + 1, O + 3))
    cnt = 0
    for pr in range(2):
        for tt in range(4):
            O = 200 + 4 * cnt; cnt += 1
            norm_pair(tidx(2 * pr, tt), tt, tidx(2 * pr + 1, tt), tt, O)
            a("s_nop 0")
            a("buffer_store_dwordx4 %s, v6, s[12:15], s%d offen offset:%d" % (vr(O), 37 if tt < 2 else 38, (tt & 1) * 2304 + 64 * pr) + " sc1")
    O = 200 + 4 * cnt
    norm_pair(16, 0, 17, 1, O)
    a("s_nop 0")
    a("buffer_store_dwordx4 %s, v9, s[12:15], s39 offen sc1" % vr(O))
    stamp(a, 6)
    a("s_setprio 3")
    srd(a, 8, 78, 2048 * 2048 * 2)
    a("v_lshrrev_b32 v3, 3, v2")
    a("s_lshl_b32 s24, s3, 5")
    a("v_add_u32 v3, s24, v3")
    a("v_and_b32 v4, 7, v2")
    a("v_lshrrev_b32 v6, 4, v2")
    a("v_xor_b32 v6, v6, v4")
    a("v_lshlrev_b32 v6, 4, v6")
    a("v_lshl_add_u32 v10, v3, 12, v6")
    a("v_xor_b32 v11, 64, v10")
    a("v_add_u32 v11, %d, v11" % (32768 - 1024))
    a("v_add_u32 v12, %d, v10" % (2 * (32768 - 1024)))
    a("v_add_u32 v13, %d, v11" % (2 * (32768 - 1024)))
    a("v_lshlrev_b32 v14, 4, v2")
    a("s_lshl_b32 s26, s22, 19")
    a("s_mul_i32 s27, s23, %d" % (32 * 18432))
    a("s_lshl_b32 s24, s3, 12")
    a("s_add_u32 s27, s27, s24")
    if ZIMG: a("s_add_u32 s27, s27, 0x%x" % ZIMG)
    a("s_lshl_b32 s25, s3, 9")
    a("s_sub_u32 s32, s25, s24")
    a("s_add_u32 s32, s32, 16384")
    a("s_add_u32 s24, s24, %d" % RB)
    a("s_waitcnt vmcnt(0) lgkmcnt(0)")
    a("v_mov_b32 v26, %d" % LC)
    a("v_mov_b32 v27, 1")
    a("s_mov_b64 exec, 1")
    a("ds_add_rtn_u32 v28, v26, v27")
    a("s_waitcnt lgkmcnt(0)")
    a("v_readfirstlane_b32 s36, v28")
    a("s_cmp_lg_u32 s36, 3")
    a("s_cbranch_scc1 %s_nozs" % name)
    a("v_mov_b32 v28, 0")
    a("buffer_store_dword v27, v28, s[12:15], s97 offen sc1")
    a.label("%s_nozs" % name)
    a("s_mov_b64 exec, -1")
    stamp(a, 7)
    srd(a, 16, 88, 576 * 2048 * 2)
    srd(a, 84, 90, 576 * 2)
    a("s_mov_b32 s34, 0")
    a.label("%s_wb" % name)
    a("ds_read_b32 v27, v26 offset:12")
    a("s_add_u32 s34, s34, 1")
    a("s_waitcnt lgkmcnt(0)")
    a("v_readfirstlane_b32 s36, v27")
    a("s_cmp_gt_u32 s34, %d" % (SPIN_MAX * 20))
    a("s_cbranch_scc1 %s_wbx" % name)
    a("s_cmp_ge_u32 s36, 4")
    a("s_cbranch_scc1 %s_wbx" % name)
    a("s_sleep 2")
    a("s_branch %s_wb" % name)
    a.label("%s_wbx" % name)
    for g in range(4):
        a("s_add_u32 s35, s24, %d" % (g * SLOT))
        a("s_mov_b32 m0, s35")
        a("s_add_u32 s36, s26, %d" % (128 * g))
        for n in range(4):
            a("buffer_load_dwordx4 v%d, s[8:11], s36 offen offset:%d lds" % (10 + n, n * 1024))
    a("s_mov_b32 s34, 0")
    a("s_cmp_lg_u32 s3, 0")
    a("s_cbranch_scc1 %s_pl" % name)
    a("v_and_b32 v28, 15, v2")
    a("v_lshlrev_b32 v30, 2, v28")
    a("v_lshlrev_b32 v28, 12, v28")
    a("s_lshl_b32 s52, s23, 8")
    a("s_add_u32 s52, s52, 0x%x" % ZFLG)
    a.label("%s_pz0" % name)
    a("buffer_load_dword v31, v30, s[60:63], 0 offen sc1")
    a("s_add_u32 s34, s34, 1")
    a("s_waitcnt vmcnt(0)")
    a("v_cmp_gt_u32 vcc, 16, v31")
    a("s_cmp_gt_u32 s34, %d" % SPIN_MAX)
    a("s_cbranch_scc1 %s_pz" % name)
    a("s_cbranch_vccz %s_pz" % name)
    a("s_sleep 32")
    a("s_branch %s_pz0" % name)
    a.label("%s_pz" % name)
    a("buffer_load_dword v29, v28, s[12:15], s52 offen sc1")
    a("s_add_u32 s34, s34, 1")
    a("s_waitcnt vmcnt(0)")
    a("v_cmp_ne_u32 vcc, 1, v29")
    a("s_cmp_gt_u32 s34, %d" % SPIN_MAX)
    a("s_cbranch_scc1 %s_pzx" % name)
    a("s_cbranch_vccz %s_pzx" % name)
    a("s_sleep 8")
    a("s_branch %s_pz" % name)
    a.label("%s_pzx" % name)
    a("v_mov_b32 v27, 1")
    a("ds_write_b32 v26, v27 offset:4")
    a("s_branch %s_pgo" % name)
    a.label("%s_pl" % name)
    a("ds_read_b32 v27, v26 offset:4")
    a("s_add_u32 s34, s34, 1")
    a("s_waitcnt lgkmcnt(0)")
    a("v_readfirstlane_b32 s36, v27")
    a("s_cmp_gt_u32 s34, %d" % (SPIN_MAX * 20))
    a("s_cbranch_scc1 %s_pgo" % name)
    a("s_cmp_lg_u32 s36, 0")
    a("s_cbranch_scc1 %s_pgo" % name)
    a("s_sleep 2")
    a("s_branch %s_pl" % name)
    a.label("%s_pgo" % name)
    stamp(a, 8)
    for g in range(4):
        a("s_add_u32 s35, s24, %d" % (g * SLOT + TREG))
        a("s_mov_b32 m0, s35")
        a("s_add_u32 s36, s27, %d" % (18432 * g))
        a("s_add_u32 s37, s36, s32")
        for n in range(4):
            a("buffer_load_dwordx4 v14, s[12:15], s36 offen offset:%d sc1 lds" % (n * 1024))
        a("s_add_u32 s35, s35, s32")
        a("s_mov_b32 m0, s35")
        a("s_mov_b64 exec, 0xffffffff")
        a("buffer_load_dwordx4 v14, s[12:15], s37 offen sc1 lds")
        a("s_mov_b64 exec, -1")
    a("s_add_u32 s26, s26, 512")
    a("s_add_u32 s27, s27, %d" % (4 * 18432))
    a("s_mov_b32 s33, 0")
    a("s_lshl_b32 s43, s2, 2")
    a("s_add_u32 s43, s43, s3")
    a("s_and_b32 s53, s43, 1")
    a("s_sub_u32 s36, s43, 448")
    a("s_lshr_b32 s37, s43, 1")
    a("s_cmp_ge_u32 s43, 896")
    a("s_cselect_b32 s43, s36, s37")
    a("s_cselect_b32 s53, 2, s53")
    a("s_waitcnt vmcnt(15)")
    a("s_barrier")
    a("s_waitcnt vmcnt(10)")
    a("s_barrier")
    a("s_waitcnt vmcnt(5)")
    a("s_barrier")
    a("s_mov_b32 s34, 4")
    def issue2():
        a("s_add_u32 s35, s33, s24")
        a("s_mov_b32 m0, s35")
        a("s_add_u32 s36, s35, %d" % TREG)
        for n in range(4):
            a("buffer_load_dwordx4 v%d, s[8:11], s26 offen offset:%d lds" % (10 + n, n * 1024))
        a("s_mov_b32 m0, s36")
        a("s_add_u32 s37, s27, s32")
        for n in range(4):
            a("buffer_load_dwordx4 v14, s[12:15], s27 offen offset:%d sc1 lds" % (n * 1024))
        a("s_add_u32 s36, s36, s32")
        a("s_mov_b32 m0, s36")
        a("s_mov_b64 exec, 0xffffffff")
        a("buffer_load_dwordx4 v14, s[12:15], s37 offen sc1 lds")
        a("s_mov_b64 exec, -1")
        a("s_add_u32 s26, s26, 128")
        a("s_add_u32 s27, s27, 18432")
        a("s_add_u32 s33, s33, %d" % SLOT)
        a("s_cmp_eq_u32 s33, %d" % (R * SLOT))
        a("s_cselect_b32 s33, 0, s33")
    a.label("%s_lloop" % name)
    issue2()
    a("s_cmp_eq_u32 s34, 18")
    a("s_cbranch_scc1 %s_hk1" % name)
    a("s_cmp_eq_u32 s34, 21")
    a("s_cbranch_scc1 %s_hk2" % name)
    a("s_waitcnt vmcnt(9)")
    a.label("%s_lcont" % name)
    a("s_barrier")
    a("s_add_u32 s34, s34, 1")
    a("s_cmp_lt_u32 s34, 32")
    a("s_cbranch_scc1 %s_lloop" % name)
    a("s_branch %s_ldone" % name)
    a.label("%s_hk1" % name)
    a("v_and_b32 v28, 15, v2")
    a("v_lshlrev_b32 v28, 2, v28")
    a("buffer_load_dword v29, v28, s[60:63], 0 offen offset:128 sc1")
    a("s_waitcnt vmcnt(10)")
    a("s_branch %s_lcont" % name)
    a.label("%s_hk2" % name)
    a("s_mov_b32 s52, 0")
    a.label("%s_hk2l" % name)
    a("v_cmp_gt_u32 vcc, 16, v29")
    a("s_add_u32 s52, s52, 1")
    a("s_cmp_gt_u32 s52, %d" % SPIN_MAX)
    a("s_cbranch_scc1 %s_hk2g" % name)
    a("s_cbranch_vccz %s_hk2g" % name)
    a("s_sleep 16")
    a("buffer_load_dword v29, v28, s[60:63], 0 offen offset:128 sc1")
    a("s_waitcnt vmcnt(0)")
    a("s_branch %s_hk2l" % name)
    a.label("%s_hk2g" % name)
    nconv = emit_conv_loads(a, " sc1")
    a("s_waitcnt vmcnt(%d)" % (9 + nconv))
    a("s_branch %s_lcont" % name)
    a.label("%s_ldone" % name)
    a("s_waitcnt vmcnt(0)")
    a("s_barrier")
    a("s_mov_b32 s26, s53")
    a("s_and_b32 s27, s3, 1")
    a("s_mul_i32 s27, s27, %d" % CJ_SIZE)
    a("s_lshr_b32 s36, s3, 1")
    a("s_mul_i32 s36, s36, %d" % SLOT)
    a("s_add_u32 s27, s27, s36")
    a("s_add_u32 s27, s27, %d" % RB)
    def mid():
        a("s_barrier")
        a("s_setprio 0")
    sv = set(DBG); DBG.discard("stamp")
    emit_conv_job(a, name, mid)
    DBG.update(sv)
    G.stamp_rt(a, 1)
    a.label("%s_end" % name)
    a("s_endpgm")
    return a.text(), kernel_desc(name, 256, 256), (name, 256, 512, LDSB)

def gen_kf4(name="k1_kernel", R=4):
    a = Asm()
    RB = 4096; SLOT = 34816; TREG = 16384; FS = 288; RST = 0
    LDSB = RB + R * SLOT
    LC = 2048
    ZFLG = 0x2D00000
    from gen3 import emit_conv_loads, emit_conv_job, CJ_SIZE
    def capture(f, *args):
        lb = len(a.lines); f(*args); out = a.lines[lb:]; del a.lines[lb:]; return out
    kernel_begin(a, name)
    a("s_load_dwordx2 s[80:81], s[0:1], 0")
    a("s_load_dwordx2 s[4:5], s[0:1], 56")
    a("s_load_dwordx2 s[6:7], s[0:1], 104")
    a("s_load_dwordx2 s[18:19], s[0:1], 96")
    a("s_cmp_ge_u32 s2, 256")
    a("s_cbranch_scc1 %s_end" % name)
    a("v_lshrrev_b32 v1, 6, v0")
    a("v_and_b32 v2, 63, v0")
    a("v_readfirstlane_b32 s3, v1")
    G2.tile_ij(a)
    a("s_lshr_b32 s98, s3, 2")
    a("s_mov_b32 s54x, 0".replace("s54x", "s99"))
    a("s_and_b32 s3, s3, 3")
    a("s_lshr_b32 s24, s3, 1")
    a("s_and_b32 s25, s3, 1")
    a("v_and_b32 v3, 15, v2")
    VT = 204; VF = 208
    def loader_setup():
        a("v_lshrrev_b32 v5, 3, v2")
        a("v_and_b32 v4, 7, v2")
        a("s_lshl_b32 s36, s3, 5")
        a("v_add_u32 v5, s36, v5")
        a("v_lshrrev_b32 v7, 4, v2")
        a("v_xor_b32 v7, v7, v4")
        a("v_mul_u32_u24 v6, 1152, v5")
        a("v_lshl_add_u32 v%d, v7, 4, v6" % VT)
        a("v_xor_b32 v%d, 64, v%d" % (VT + 1, VT))
        a("v_add_u32 v%d, %d, v%d" % (VT + 1, 9216 - 1024, VT + 1))
        a("v_add_u32 v%d, %d, v%d" % (VT + 2, 2 * (9216 - 1024), VT))
        a("v_add_u32 v%d, %d, v%d" % (VT + 3, 2 * (9216 - 1024), VT + 1))
        a("s_lshl_b32 s84, s3, 12")
        a("s_add_u32 s84, s84, %d" % RB)
        a("s_lshl_b32 s85, s3, 9")
        a("s_add_u32 s85, s85, %d" % (RB + TREG + 16384))
    def loader_setup2():
        for n in range(5):
            if n < 4:
                a("s_lshl_b32 s36, s3, 8")
                a("s_add_u32 s36, s36, %d" % (64 * n))
            else:
                a("s_lshl_b32 s36, s3, 5")
                a("s_add_u32 s36, s36, 1024")
            a("v_add_u32 v6, s36, v2")
            a("v_mul_u32_u24 v7, 3641, v6")
            a("v_lshrrev_b32 v7, 16, v7")
            a("v_mul_u32_u24 v8, 18, v7")
            a("v_sub_u32 v8, v6, v8")
            a("v_and_b32 v9, 35, v7")
            a("v_bfe_u32 v6, v7, 2, 2")
            a("v_lshl_add_u32 v9, v6, 3, v9")
            a("v_bfe_u32 v6, v7, 4, 1")
            a("v_lshl_add_u32 v9, v6, 2, v9")
            a("v_mul_u32_u24 v9, 9216, v9")
            a("v_lshl_add_u32 v%d, v8, 4, v9" % (VF + n))
            if 0 < n < 4: a("v_subrev_u32 v%d, %d, v%d" % (VF + n, 1024 * n, VF + n))
    def issueT(g):
        st = g % 9
        a("s_add_u32 s86, s84, %d" % ((g % R) * SLOT))
        a("s_mov_b32 m0, s86")
        a("s_add_u32 s87, s82, %d" % (128 * st))
        for n in range(4):
            a("buffer_load_dwordx4 v%d, s[28:31], s87 offen offset:%d lds" % (VT + n, 1024 * n))
    def issueF(g):
        st = g % 9
        a("s_add_u32 s86, s84, %d" % ((g % R) * SLOT + TREG))
        a("s_mov_b32 m0, s86")
        a("s_add_u32 s87, s83, %d" % (64 * 9216 * st + (4608 if g < 9 else 0)))
        for n in range(4):
            a("buffer_load_dwordx4 v%d, s[8:11], s87 offen offset:%d lds" % (VF + n, 1024 * n))
        a("s_add_u32 s86, s85, %d" % ((g % R) * SLOT))
        a("s_mov_b32 m0, s86")
        a("s_mov_b64 exec, 0xffffffff")
        a("buffer_load_dwordx4 v%d, s[8:11], s87 offen lds" % (VF + 4))
        a("s_mov_b64 exec, -1")
    def srds_main():
        srd(a, 28, 80, 2048 * 576 * 2)
        srd(a, 8, 4, 576 * 4608 * 2)
        srd(a, 12, 6, WS_BYTES)
        srd(a, 60, 18, 256)
        a("s_mul_i32 s82, s22, %d" % (128 * 1152))
        a("s_mul_i32 s83, s23, 288")
    ACC = 128; FB = [16, 52]; CS = 216; ONE = 236
    vTa = [4, 5]; vTb = [6, 7]; vF = 8; vFh = 9
    bTa = [88, 89]; bTb = [90, 91]; bF = 92; bFh = 93
    def mma_setup():
        a("v_lshrrev_b32 v10, 4, v2")
        a("v_lshrrev_b32 v11, 1, v3")
        a("v_xor_b32 v10, v10, v11")
        a("v_lshlrev_b32 v10, 4, v10")
        a("v_lshl_add_u32 v10, v3, 7, v10")
        a("s_lshl_b32 s26, s24, 13")
        a("s_add_u32 s26, s26, %d" % RB)
        a("v_add_u32 v10, s26, v10")
        a("s_lshl_b32 s26, s25, 12")
        a("v_add_u32 v%d, s26, v10" % bTa[0])
        a("s_xor_b32 s26, s26, 4096")
        a("v_add_u32 v%d, s26, v10" % bTb[0])
        a("v_xor_b32 v%d, 64, v%d" % (bTa[1], bTa[0]))
        a("v_xor_b32 v%d, 64, v%d" % (bTb[1], bTb[0]))
        a("v_lshrrev_b32 v10, 2, v2")
        a("v_mul_u32_u24 v10, %d, v10" % FS)
        a("v_and_b32 v11, 3, v2")
        a("v_lshl_add_u32 v10, v11, 3, v10")
        a("v_add_u32 v10, %d, v10" % (RB + TREG))
        a("s_mul_i32 s26, s25, 160")
        a("v_add_u32 v%d, s26, v10" % bF)
        a("v_add_u32 v%d, 128, v10" % bFh)
        for r in range(ACC, ACC + 72): a("v_mov_b32 v%d, 0" % r)
        for r in range(CS, CS + 20): a("v_mov_b32 v%d, 0" % r)
        for r in range(ONE, ONE + 4): a("v_mov_b32 v%d, 0x3f803f80" % r)
    def mma_addr(slot):
        a("s_mov_b32 s27, %d" % (slot * SLOT))
        for d, s_ in ((vTa[0], bTa[0]), (vTb[0], bTb[0]), (vTa[1], bTa[1]), (vTb[1], bTb[1]), (vF, bF), (vFh, bFh)):
            a("v_add_u32 v%d, s27, v%d" % (d, s_))
    core = G.Core(a, ACC, FB[0], FB[1], FS, TREG, vTa, vTb, vF, vFh)
    trk = core.trk
    a("s_cmp_eq_u32 s98, 0")
    a("s_cbranch_scc1 %s_A0" % name)
    a("s_setprio 3")
    loader_setup()
    a("s_waitcnt lgkmcnt(0)")
    srds_main()
    vm = VmTracker(a)
    def issue(g, vmx):
        issueT(g); issueF(g); vmx.issue("S%d" % g, 9)
    issueT(0)
    loader_setup2()
    issueF(0); vm.issue("S0", 9)
    issue(1, vm); issue(2, vm); issue(3, vm)
    a("s_add_u32 s3, s3, 4"); stamp_setup(a, 1); stamp(a, 0); a("s_sub_u32 s3, s3, 4")
    mma_setup()
    RA = 96; XB = 112
    for r in range(RA, RA + 16): a("v_mov_b32 v%d, 0" % r)
    a("v_lshrrev_b32 v10, 4, v2")
    a("v_lshrrev_b32 v11, 1, v3")
    a("v_xor_b32 v10, v10, v11")
    a("v_lshlrev_b32 v10, 4, v10")
    a("v_lshl_add_u32 v10, v3, 7, v10")
    a("v_add_u32 v12, s84, v10")
    a("v_xor_b32 v13, 64, v12")
    def rs_rd(g):
        a("v_add_u32 v10, %d, v12" % ((g % R) * SLOT))
        a("v_add_u32 v11, %d, v13" % ((g % R) * SLOT))
        for h in range(2):
            for n in range(2):
                a("ds_read_b128 %s, v%d offset:%d" % (vr(XB + 8 * h + 4 * n), 10 + h, 2048 * n))
    def rs_do():
        for h in range(2):
            for n in range(2):
                x = XB + 8 * h + 4 * n
                a("v_mfma_f32_16x16x32_bf16 %s, %s, %s, %s" % (vr(RA + 4 * n), vr(ONE), vr(x), vr(RA + 4 * n)))
                a("v_mfma_f32_16x16x32_bf16 %s, %s, %s, %s" % (vr(RA + 8 + 4 * n), vr(x), vr(x), vr(RA + 8 + 4 * n)))
    def interleave(dma, comp, vmx=None):
        groups = []; cur = []
        for l in dma:
            cur.append(l)
            if "buffer_load" in l and not any("exec, 0xffffffff" in x for x in cur[-2:]):
                groups.append(cur); cur = []
            elif "exec, -1" in l:
                groups.append(cur); cur = []
        if cur: groups.append(cur)
        ns = max(1, len(groups))
        per = (len(comp) + ns - 1) // ns
        for g in groups:
            a.lines.extend(g)
            a.lines.extend(comp[:per]); comp = comp[per:]
        a.lines.extend(comp)
    vm.wait(["S0"])
    a("s_barrier")
    stamp(a, 1)
    rs_rd(0)
    vm.wait(["S1"])
    a("s_barrier")
    for k in range(9):
        a("s_waitcnt lgkmcnt(0)")
        dma = capture(lambda: (issueT(k + 3), issueF(k + 3))) if 1 <= k < 8 else []
        interleave(dma, capture(rs_do))
        if 1 <= k < 8: vm.issue("S%d" % (k + 3), 9)
        if k < 8:
            rs_rd(k + 1)
        else:
            a("s_nop 7")
            a("v_lshrrev_b32 v10, 4, v2")
            a("v_lshrrev_b32 v11, 2, v3")
            a("v_and_b32 v12, 3, v3")
            for n in range(2):
                G_ = RA + 8 + 4 * n
                for r in range(1, 4):
                    a("v_cmp_eq_u32 vcc, %d, v12" % r)
                    a("s_nop 1")
                    a("v_cndmask_b32 v%d, v%d, v%d, vcc" % (G_, G_, G_ + r))
            ML = 112
            for n in range(2):
                emit_ln_finish(a, RA + 4 * n, RA + 8 + 4 * n, 576, ML + 2 * n, ML + 2 * n + 1, 120)
                a("v_mov_b32 v%d, v%d" % (117 + 2 * n, ML + 2 * n + 1))
                a("v_sub_f32 v%d, 0, v%d" % (116 + 2 * n, ML + 2 * n))
            a("s_lshl_b32 s35, s3, 8")
            a("v_lshlrev_b32 v13, 3, v3")
            a("v_add_u32 v12, s35, v13")
            a("v_cmp_eq_u32 vcc, v10, v11")
            a("s_and_saveexec_b64 s[36:37], vcc")
            for n in range(2):
                a("ds_write_b64 v12, %s offset:%d" % (vr(116 + 2 * n, 2), RST + 128 * n))
            a("s_mov_b64 exec, s[36:37]")
            a("s_cmp_lg_u32 s23, 0")
            a("s_cbranch_scc1 %s_nost1" % name)
            a("s_lshl_b32 s35, s22, 7")
            a("s_lshl_b32 s36, s3, 5")
            a("s_add_u32 s35, s35, s36")
            a("s_lshl_b32 s35, s35, 3")
            a("s_add_u32 s35, s35, 0x%x" % STATS1)
            a("v_mov_b32 v11, 0x7ffffff0")
            a("v_cndmask_b32 v13, v11, v13, vcc")
            for n in range(2):
                a("buffer_store_dwordx2 %s, v13, s[12:15], s35 offen offset:%d" % (vr(ML + 2 * n, 2), 128 * n))
            a.label("%s_nost1" % name)
        if k < 8:
            vm.wait(["S%d" % (k + 2)])
            a("s_barrier")
    HO = lambda: None
    def ho_addr():
        a("s_lshr_b32 s36, s3, 1")
        a("s_mul_i32 s36, s36, %d" % (3 * SLOT))
        a("s_and_b32 s37, s3, 1")
        a("s_mul_i32 s37, s37, 12288")
        a("s_add_u32 s36, s36, s37")
        a("s_add_u32 s36, s36, %d" % RB)
        a("v_lshlrev_b32 v10, 4, v2")
        a("v_add_u32 v95, s36, v10")
    a("s_waitcnt lgkmcnt(0)")
    a("s_barrier")
    ho_addr()
    a("s_barrier")
    n_ = 0
    for ft in range(4):
        for tt in range(2):
            a("ds_read_b128 %s, v95 offset:%d" % (vr(core.accr(ft, tt)), 1024 * n_)); n_ += 1
    for ft in range(4):
        a("ds_read_b128 %s, v95 offset:%d" % (vr(CS + 4 * ft), 1024 * n_)); n_ += 1
    a("s_branch %s_g2" % name)
    a.label("%s_A0" % name)
    emit_code_prefetch(a, name)
    a("s_load_dwordx4 s[64:67], s[0:1], 8")
    a("s_load_dwordx2 s[76:77], s[0:1], 24")
    a("s_load_dwordx2 s[78:79], s[0:1], 64")
    mma_setup()
    loader_setup(); loader_setup2()
    a("s_waitcnt lgkmcnt(0)")
    srds_main()
    srd(a, 68, 66, 2048 * 576 * 2)
    a("s_mov_b32 s88, s64"); a("s_mov_b32 s89, s65")
    srd(a, 64, 88, 2048 * 576 * 2)
    srd(a, 72, 76, 576 * 8)
    stamp_setup(a, 1); stamp(a, 0)
    def gran_addr():
        a("v_lshrrev_b32 v10, 4, v2")
        a("s_lshl_b32 s36, s25, 1")
        a("v_add_u32 v11, s36, v10")
        a("v_and_b32 v11, 3, v11")
        a("v_lshl_add_u32 v11, v11, 4, v3")
        a("v_lshlrev_b32 v94, 8, v11")
        a("s_lshl_b32 s59, s22, 7")
        a("s_lshl_b32 s36, s24, 6")
        a("s_add_u32 s59, s59, s36")
        a("s_lshl_b32 s59, s59, 8")
        a("s_add_u32 s59, s59, 0x%x" % STATS2)
        a("s_lshl_b32 s36, s23, 1")
        a("s_add_u32 s36, s36, s25")
        a("s_lshl_b32 s36, s36, 3")
        a("s_add_u32 s58, s36, s59")
    gran_addr()
    a("v_mov_b32 v12, 0"); a("v_mov_b32 v13, 0x80000000")
    a("buffer_store_dwordx2 v[12:13], v94, s[12:15], s58 offen sc1")
    a("s_lshl_b32 s36, s22, 4")
    a("s_add_u32 s36, s36, s23")
    a("s_lshl_b32 s36, s36, 8")
    a("s_add_u32 s97, s36, 0x%x" % ZFLG)
    a("v_mov_b32 v10, %d" % LC)
    a("v_mov_b32 v12, 0"); a("v_mov_b32 v13, 0")
    a("s_mov_b64 exec, 1")
    a("buffer_store_dword v12, v12, s[12:15], s97 offen sc1")
    a("s_mov_b64 exec, -1")
    a("ds_write_b64 v10, v[12:13]")
    a("ds_write_b64 v10, v[12:13] offset:8")
    mma_addr(0)
    a("s_mov_b32 s33, 0")
    a("s_waitcnt lgkmcnt(0)")
    a("s_barrier")
    stamp(a, 1)
    a.label("%s_mma" % name)
    core.prime(0, core.reads(0, 0))
    trk.drain()
    nocs = [False]
    def mfmas(buf):
        L = []
        for ft in range(5):
            A = core.F(buf, ft)
            for tt in range(4 if ft < 4 else 2):
                c = core.accr(ft, tt); B = core.T(buf, tt)
                L.append(("v_mfma_f32_16x16x32_bf16 %s, %s, %s, %s" % (vr(c), vr(A), vr(B), vr(c)), list(range(A, A + 4)) + list(range(B, B + 4))))
            if not nocs[0]: L.append(("v_mfma_f32_16x16x32_bf16 %s, %s, %s, %s" % (vr(CS + 4 * ft), vr(A), vr(ONE), vr(CS + 4 * ft)), list(range(A, A + 4))))
        return L
    def phase(buf, pend):
        for (m, regs) in mfmas(buf):
            trk.need(regs)
            a(m)
            while pend:
                k, t = pend.pop(0)
                if k == "x":
                    a(t)
                    if t.startswith("s_"): continue
                else:
                    a(t[0]); trk.issue(t[1])
                break
        for k, t in pend:
            if k == "x": a(t)
            else: a(t[0]); trk.issue(t[1])
    def iteration(vw=True):
        if vw: a("s_waitcnt vmcnt(0)")
        a("s_barrier")
        rd = [("r", t) for t in core.reads(1, 1)]
        upd = ["s_add_u32 s27, s27, %d" % SLOT, "s_cmp_eq_u32 s27, %d" % (R * SLOT), "s_cselect_b32 s27, 0, s27"]
        tail = ["v_add_u32 v%d, s27, v%d" % (d, s_) for d, s_ in ((vTa[0], bTa[0]), (vF, bF), (vTb[0], bTb[0]), (vFh, bFh))]
        phase(0, rd[:1] + [("x", u) for u in upd] + rd[1:] + [("x", u) for u in tail])
        rd = [("r", t) for t in core.reads(0, 0)]
        tail = ["v_add_u32 v%d, s27, v%d" % (d, s_) for d, s_ in ((vTa[1], bTa[1]), (vTb[1], bTb[1]))] + ["s_add_u32 s33, s33, 1"]
        phase(1, rd + [("x", u) for u in tail])
    a.label("%s_cloop" % name)
    lb = len(a.lines); iteration(); st = copy.deepcopy(trk.out); del a.lines[lb:]; trk.out = copy.deepcopy(st)
    iteration()
    assert [sorted(x) for x in trk.out] == [sorted(x) for x in st]
    a("s_cmp_lt_u32 s33, 9")
    a("s_cbranch_scc1 %s_cloop" % name)
    trk.drain()
    stamp(a, 2)
    MR = 100; T = 72; ZP = 16
    a("s_cmp_eq_u32 s98, 1")
    a("s_cbranch_scc1 %s_Btail" % name)
    a("s_waitcnt vmcnt(0)")
    a("s_barrier")
    a("s_cmp_lg_u32 s3, 0")
    a("s_cbranch_scc1 %s_nosig" % name)
    a("v_mov_b32 v10, 1")
    a("s_lshl_b32 s36, s22, 2")
    a("v_mov_b32 v11, s36")
    a("s_mov_b64 exec, 1")
    a("buffer_atomic_add v10, v11, s[60:63], 0 offen sc1")
    a("s_mov_b64 exec, -1")
    a.label("%s_nosig" % name)
    ho_addr()
    n_ = 0
    for ft in range(4):
        for tt in range(2):
            a("ds_write_b128 v95, %s offset:%d" % (vr(core.accr(ft, tt + 2)), 1024 * n_)); n_ += 1
    for ft in range(4):
        a("ds_write_b128 v95, %s offset:%d" % (vr(CS + 4 * ft), 1024 * n_)); n_ += 1
    a("s_waitcnt lgkmcnt(0)")
    a("s_barrier")
    a.label("%s_g2" % name)
    gelu_consts(a)
    a("s_xor_b32 s52, s98, s25")
    a("s_lshl_b32 s36, s24, 9")
    a("s_lshl_b32 s37, s52, 8")
    a("s_add_u32 s38, s36, s37")
    a("v_lshlrev_b32 v10, 3, v3")
    a("v_add_u32 v11, s38, v10")
    a("ds_read_b64 %s, v11 offset:%d" % (vr(MR, 2), RST))
    a("ds_read_b64 %s, v11 offset:%d" % (vr(MR + 2, 2), RST + 128))
    for r_ in range(108, 112): a("v_mov_b32 v%d, 0" % r_)
    a("s_waitcnt lgkmcnt(0)")
    ZPo = lambda n: 16 + 2 * n
    def dots2(lst):
        for d in range(2):
            for (ft, tt) in lst:
                p = ZPo(2 * ft + tt) + d
                a("v_dot2_f32_bf16 v%d, v%d, v%d, v%d" % (108 + 2 * tt, p, ONE, 108 + 2 * tt))
                a("v_dot2_f32_bf16 v%d, v%d, v%d, v%d" % (109 + 2 * tt, p, p, 109 + 2 * tt))
    a("s_cmp_lg_u32 s98, 0")
    a("s_cbranch_scc1 %s_nohalf" % name)
    lst = [(4, 0), (4, 1)]
    emit_fold_gelu(a, [(core.accr(ft, tt), CS + 4 * ft, MR + 2 * tt, ZPo(2 * ft + tt)) for ft, tt in lst], T)
    dots2(lst)
    a.label("%s_nohalf" % name)
    for f0 in (0, 2):
        lst = [(ft, tt) for ft in (f0, f0 + 1) for tt in range(2)]
        emit_fold_gelu(a, [(core.accr(ft, tt), CS + 4 * ft, MR + 2 * tt, ZPo(2 * ft + tt)) for ft, tt in lst], T)
        dots2(lst)
    a("s_nop 2")
    emit_xg_reduce(a, [108, 110, 109, 111], 72)
    a("s_lshl_b32 s40, s22, 7")
    a("s_lshl_b32 s36, s24, 6")
    a("s_add_u32 s40, s40, s36")
    a("s_lshl_b32 s40, s40, 8")
    a("s_add_u32 s59, s40, 0x%x" % STATS2)
    a("s_lshl_b32 s36, s52, 13")
    a("s_add_u32 s40, s59, s36")
    a("s_lshl_b32 s36, s23, 1")
    a("s_add_u32 s36, s36, s25")
    a("s_lshl_b32 s36, s36, 3")
    a("s_add_u32 s40, s40, s36")
    a("v_lshrrev_b32 v10, 4, v2")
    a("v_lshlrev_b32 v11, 8, v2")
    a("v_cmp_gt_u32 vcc, 32, v2")
    a("v_mov_b32 v12, 0x7ffffff0")
    a("v_cmp_eq_u32 s[36:37], 1, v10")
    a("v_cndmask_b32 v11, v12, v11, vcc")
    a("s_nop 0")
    a("v_cndmask_b32 v108, v108, v110, s[36:37]")
    a("v_cndmask_b32 v109, v109, v111, s[36:37]")
    a("v_and_b32 v109, 0x7fffffff, v109")
    a("buffer_store_dwordx2 v[108:109], v11, s[12:15], s40 offen sc1")
    a("s_cmp_eq_u32 s98, 0")
    a("s_cbranch_scc1 %s_A1" % name)
    for q in range(4):
        a("ds_write_b128 v95, %s offset:%d" % (vr(16 + 4 * q), 1024 * q))
    for r in range(ACC, ACC + 72): a("v_mov_b32 v%d, 0" % r)
    for r in range(CS, CS + 20): a("v_mov_b32 v%d, 0" % r)
    mma_addr(9 % R)
    a("s_mov_b32 s33, 0")
    a("s_setprio 0")
    a("s_waitcnt lgkmcnt(0)")
    stamp(a, 9)
    a("s_barrier")
    a("s_branch %s_mma" % name)
    def epi_in():
        gelu_consts(a)
        a("s_lshl_b32 s36, s24, 9")
        a("s_lshl_b32 s37, s25, 8")
        a("s_add_u32 s38, s36, s37")
        a("s_xor_b32 s37, s37, 256")
        a("s_add_u32 s39, s36, s37")
        a("v_lshlrev_b32 v10, 3, v3")
        a("v_add_u32 v11, s38, v10")
        a("ds_read_b64 %s, v11 offset:%d" % (vr(MR, 2), RST))
        a("ds_read_b64 %s, v11 offset:%d" % (vr(MR + 2, 2), RST + 128))
        a("v_add_u32 v11, s39, v10")
        a("ds_read_b64 %s, v11 offset:%d" % (vr(MR + 4, 2), RST))
        a("ds_read_b64 %s, v11 offset:%d" % (vr(MR + 6, 2), RST + 128))
        a("s_waitcnt lgkmcnt(0)")
    S = [108, 110, 52, 54]; Q = [109, 111, 53, 55]
    def gelu_ft(ft, stats):
        tts = range(4 if ft < 4 else 2)
        emit_fold_gelu(a, [(core.accr(ft, tt), CS + 4 * ft, MR + 2 * tt, ZP + 2 * tidx(ft, tt)) for tt in tts], T)
        if stats:
            for d in range(2):
                for tt in tts:
                    p = ZP + 2 * tidx(ft, tt) + d
                    a("v_dot2_f32_bf16 v%d, v%d, v%d, v%d" % (S[tt], p, ONE, S[tt]))
                    a("v_dot2_f32_bf16 v%d, v%d, v%d, v%d" % (Q[tt], p, p, Q[tt]))
    a.label("%s_Btail" % name)
    a("v_mov_b32 v10, %d" % (LC + 12))
    a("v_mov_b32 v11, 1")
    a("s_mov_b64 exec, 1")
    a("ds_add_u32 v10, v11")
    a("s_mov_b64 exec, -1")
    a("s_load_dwordx2 s[94:95], s[0:1], 80")
    a("s_load_dwordx2 s[92:93], s[0:1], 72")
    epi_in()
    srd(a, 76, 94, 2304 * 576 * 2)
    srd(a, 28, 92, 2048 * 2)
    a("v_and_b32 v0, 255, v0")
    for ft in range(5): gelu_ft(ft, False)
    Z1R = 200; BI = 236
    for r_ in range(36): a("v_mov_b32 v%d, v%d" % (Z1R + r_, ZP + r_))
    stamp(a, 3)
    a("s_mov_b32 s42, s2")
    emit_wot_loads(a, 100, 112, 720, 3)
    a("s_lshl_b32 s36, s22, 7")
    a("s_lshl_b32 s37, s24, 6")
    a("s_add_u32 s36, s36, s37")
    a("v_lshlrev_b32 v11, 1, v3")
    a("s_lshl_b32 s37, s25, 6")
    a("s_lshl_b32 s38, s36, 1")
    a("s_add_u32 s39, s38, s37")
    a("s_xor_b32 s37, s37, 64")
    a("s_add_u32 s36, s38, s37")
    a("buffer_load_ushort v96, v11, s[28:31], s39 offen")
    a("buffer_load_ushort v97, v11, s[28:31], s39 offen offset:32")
    a("buffer_load_ushort v98, v11, s[28:31], s36 offen")
    a("buffer_load_ushort v99, v11, s[28:31], s36 offen offset:32")
    for r in range(ACC, ACC + 72): a("v_mov_b32 v%d, 0" % r)
    mma_addr(0)
    a("s_mov_b32 s33, 0")
    stamp(a, 4)
    a("s_barrier")
    stamp(a, 5)
    core.prime(0, core.reads(0, 0))
    trk.drain()
    nocs[0] = True
    a.label("%s_gloop" % name)
    lb = len(a.lines); iteration(False); st = copy.deepcopy(trk.out); del a.lines[lb:]; trk.out = copy.deepcopy(st)
    iteration(False)
    assert [sorted(x) for x in trk.out] == [sorted(x) for x in st]
    a("s_cmp_lg_u32 s33, 3")
    a("s_cbranch_scc1 %s_ghk" % name)
    a("s_waitcnt vmcnt(0)")
    for n in range(3):
        a("buffer_store_dwordx4 %s, v%d, s[12:15], s40 offen" % (vr(100 + 4 * n), 112 + n))
    for tt in range(4): a("v_lshlrev_b32 v%d, 16, v%d" % (BI + 2 * tt, 96 + tt))
    a.label("%s_ghk" % name)
    a("s_cmp_lt_u32 s33, 32")
    a("s_cbranch_scc1 %s_gloop" % name)
    trk.drain()
    stamp(a, 6)
    G3.emit_k2_epilogue(a, core, Z1R, BI)
    stamp(a, 7)
    G.stamp_rt(a, 1)
    a("s_branch %s_end" % name)
    a.label("%s_A1" % name)
    a("s_setprio 2")
    a("s_load_dwordx4 s[88:91], s[0:1], 32")
    vmA = VmTracker(a)
    stamp(a, 9)
    a("s_barrier")
    for q in range(4):
        a("ds_read_b128 %s, v95 offset:%d" % (vr(36 + 4 * q), 1024 * q))
    def zreg(ft, tt):
        return (16 + 2 * (2 * ft + tt)) if tt < 2 else (36 + 2 * (2 * ft + tt - 2))
    GB = [128, 144, 160, 176]
    def gather():
        for tt in range(4):
            for q in range(4):
                a("buffer_load_dwordx4 %s, v4, s[12:15], s%d offen offset:%d sc1" % (vr(GB[tt] + 4 * q), (52, 42, 53, 43)[tt], 16 * q))
    def st_finish():
        for tt in range(4):
            b = GB[tt]
            for st_ in (8, 4, 2):
                for q in range(0, st_, 2):
                    a("v_pk_add_f32 %s, %s, %s" % (vr(b + q, 2), vr(b + q, 2), vr(b + q + st_, 2)))
        emit_xg_reduce(a, [GB[tt] + e for tt in range(4) for e in range(2)], 72)
        for tt in range(4):
            b = GB[tt]
            emit_ln_finish(a, b, b + 1, 2304, b + 2, MR + 2 * tt, b + 4)
            a("v_mul_f32 v%d, -v%d, v%d" % (MR + 2 * tt + 1, b + 2, MR + 2 * tt))
    def z_addr():
        a("v_lshrrev_b32 v10, 4, v2")
        a("v_lshrrev_b32 v11, 2, v2"); a("v_and_b32 v11, 1, v11"); a("v_lshlrev_b32 v11, 4, v11")
        a("v_lshrrev_b32 v5, 3, v2"); a("v_and_b32 v5, 1, v5"); a("v_lshl_add_u32 v11, v5, 2, v11")
        a("v_and_b32 v5, 3, v2"); a("v_add_u32 v11, v11, v5")
        a("v_mul_u32_u24 v11, 288, v11")
        a("v_lshrrev_b32 v5, 1, v10"); a("v_lshl_add_u32 v11, v5, 4, v11")
        a("v_and_b32 v5, 1, v10")
        a("v_lshl_add_u32 v6, v5, 5, v11")
        a("v_mul_u32_u24 v5, 2304, v5")
        a("v_add_u32 v9, v11, v5")
        a("s_lshl_b32 s33, s23, 5")
        a("s_lshl_b32 s36, s22, 1")
        a("s_add_u32 s33, s33, s36")
        a("s_add_u32 s33, s33, s24")
        a("s_mul_i32 s33, s33, 18432")
        if ZIMG: a("s_add_u32 s33, s33, 0x%x" % ZIMG)
        a("s_mul_i32 s36, s25, 9216")
        a("s_add_u32 s37, s33, s36")
        a("s_xor_b32 s36, s36, 9216")
        a("s_add_u32 s38, s33, s36")
        a("s_add_u32 s39, s37, 128")
        a("s_mul_i32 s36, s25, 160")
        a("s_add_u32 s37, s37, s36")
        a("s_add_u32 s38, s38, s36")
    def norm_pair(tA, tB, O):
        for q, (ft, tt) in enumerate((tA, tB)):
            for d in range(2):
                z = zreg(ft, tt) + d; t_ = T + 4 * q + 2 * d
                a("v_lshlrev_b32 v%d, 16, v%d" % (t_, z))
                a("v_and_b32 v%d, 0xffff0000, v%d" % (t_ + 1, z))
        for q, (ft, tt) in enumerate((tA, tB)):
            for d in range(2):
                t_ = T + 4 * q + 2 * d
                a("v_pk_fma_f32 %s, %s, %s, %s op_sel:[0,0,1] op_sel_hi:[1,0,1]" % (vr(t_, 2), vr(t_, 2), vr(MR + 2 * tt, 2), vr(MR + 2 * tt, 2)))
        for q in range(2):
            for d in range(2):
                t_ = T + 4 * q + 2 * d
                a("v_cvt_pk_bf16_f32 v%d, v%d, v%d" % (O + 2 * q + d, t_, t_ + 1))
        a("s_nop 1")
        a("v_permlane16_swap_b32 v%d, v%d" % (O, O + 2))
        a("v_permlane16_swap_b32 v%d, v%d" % (O + 1, O + 3))
        a("s_nop 0")
    def zstore(idx):
        O = 216 + 4 * idx
        if idx < 8:
            pr, tt = idx >> 2, idx & 3
            norm_pair((2 * pr, tt), (2 * pr + 1, tt), O)
            a("buffer_store_dwordx4 %s, v6, s[12:15], s%d offen offset:%d sc1" % (vr(O), 37 if tt < 2 else 38, (tt & 1) * 2304 + 64 * pr))
        else:
            norm_pair((4, 0), (4, 1), O)
            a("buffer_store_dwordx4 %s, v9, s[12:15], s39 offen sc1" % vr(O))
    def dmas(gs):
        out = []
        for g in gs: out += capture(lambda: (issueT(g), issueF(g)))
        return out
    for k in range(9, 18):
        if k == 9: a("s_waitcnt lgkmcnt(0)")
        a("s_barrier")
        gs = [11, 12] if k == 9 else ([k + 3] if k + 3 < 18 else [])
        if k == 9:
            a.lines.extend(dmas(gs))
            for g in gs: vmA.issue("S%d" % g, 9)
            a("s_lshl_b32 s36, s22, 2")
            a("v_mov_b32 v199, s36")
            a("buffer_load_dword v198, v199, s[60:63], 0 offen sc1"); vmA.issue("cnt", 1)
            a("v_lshrrev_b32 v10, 4, v2")
            a("v_lshlrev_b32 v4, 8, v3")
            a("v_lshl_add_u32 v4, v10, 6, v4")
            a("s_lshl_b32 s33, s25, 13")
            a("s_add_u32 s52, s59, s33")
            a("s_xor_b32 s33, s33, 8192")
            a("s_add_u32 s53, s59, s33")
            a("s_add_u32 s42, s52, 4096")
            a("s_add_u32 s43, s53, 4096")
        elif k == 10:
            a.lines.extend(dmas(gs)); vmA.issue("S13", 9)
            z_addr()
        elif k == 11:
            vmA.wait(["cnt"])
            gather(); vmA.issue("g", 16)
            a.lines.extend(dmas(gs)); vmA.issue("S14", 9)
        elif k == 12:
            a.lines.extend(dmas(gs)); vmA.issue("S15", 9)
        elif k == 13:
            a.lines.extend(dmas(gs)); vmA.issue("S16", 9)
            vmA.wait(["g"])
            a("s_mov_b32 s40, 0")
            a.label("%s_chk" % name)
            a("v_subrev_u32 v11, 16, v198")
            for tt in range(4):
                for r in range(GB[tt] + 1, GB[tt] + 16, 4):
                    a("v_or3_b32 v11, v11, v%d, v%d" % (r, r + 2))
            a("v_cmp_gt_i32 vcc, 0, v11")
            a("s_add_u32 s40, s40, 1")
            a("s_cmp_gt_u32 s40, %d" % SPIN_MAX)
            a("s_cbranch_scc1 %s_ok" % name)
            a("s_cbranch_vccz %s_ok" % name)
            a("s_sleep 16")
            a("buffer_load_dword v198, v199, s[60:63], 0 offen sc1")
            a("s_waitcnt vmcnt(0)")
            gather()
            a("s_waitcnt vmcnt(0)")
            a("s_branch %s_chk" % name)
            a.label("%s_ok" % name)
            stamp(a, 4)
            st_finish()
        elif k == 14:
            for i_ in range(3): zstore(i_)
            vmA.issue("z", 3)
            a.lines.extend(dmas(gs)); vmA.issue("S17", 9)
        elif k == 15:
            for i_ in range(3, 6): zstore(i_)
            vmA.issue("z", 3)
        elif k == 16:
            for i_ in range(6, 9): zstore(i_)
            vmA.issue("z", 3)
            stamp(a, 5)
            a("s_mov_b32 s41, s2")
            emit_kv_loads(a, 128, 140, 148, 152, 153)
            a("s_cmp_ge_u32 s2, 32")
            a("s_cbranch_scc1 %s_kvp" % name)
            a("s_add_u32 s41, s2, 256")
            emit_kv_loads(a, 156, 168, 176, 180, 181)
            a.label("%s_kvp" % name)
        if k == 12:
            srd(a, 92, 78, 2048 * 2048 * 2)
            a("v_lshrrev_b32 v10, 4, v2")
            a("v_lshlrev_b32 v10, 12, v10")
            a("v_lshl_add_u32 v10, v3, 4, v10")
            a("s_lshl_b32 s40, s22, 7")
            a("s_lshl_b32 s36, s3, 5")
            a("s_add_u32 s40, s40, s36")
            a("s_lshl_b32 s40, s40, 12")
            a("s_lshl_b32 s36, s23, 8")
            a("s_add_u32 s40, s40, s36")
            for n in range(8):
                a("buffer_load_dwordx4 v[200:203], v10, s[92:95], s40 offen")
                if n < 7: a("s_add_u32 s40, s40, 16384")
            vmA.issue("wp", 8)
        if 11 <= k + 2 < 18 and k + 2 != 10:
            vmA.wait(["S%d" % (k + 2)])
    stamp(a, 3)
    a("s_setprio 3")
    srd(a, 8, 78, 2048 * 2048 * 2)
    a("v_lshrrev_b32 v3, 3, v2")
    a("s_lshl_b32 s24, s3, 5")
    a("v_add_u32 v3, s24, v3")
    a("v_and_b32 v4, 7, v2")
    a("v_lshrrev_b32 v6, 4, v2")
    a("v_xor_b32 v6, v6, v4")
    a("v_lshlrev_b32 v6, 4, v6")
    a("v_lshl_add_u32 v10, v3, 12, v6")
    a("v_xor_b32 v11, 64, v10")
    a("v_add_u32 v11, %d, v11" % (32768 - 1024))
    a("v_add_u32 v12, %d, v10" % (2 * (32768 - 1024)))
    a("v_add_u32 v13, %d, v11" % (2 * (32768 - 1024)))
    a("v_lshlrev_b32 v14, 4, v2")
    a("s_lshl_b32 s26, s22, 19")
    a("s_mul_i32 s27, s23, %d" % (32 * 18432))
    a("s_lshl_b32 s24, s3, 12")
    a("s_add_u32 s27, s27, s24")
    if ZIMG: a("s_add_u32 s27, s27, 0x%x" % ZIMG)
    a("s_lshl_b32 s25, s3, 9")
    a("s_sub_u32 s32, s25, s24")
    a("s_add_u32 s32, s32, 16384")
    a("s_add_u32 s24, s24, %d" % RB)
    a("s_waitcnt vmcnt(20) lgkmcnt(0)")
    a("v_mov_b32 v26, %d" % LC)
    a("v_mov_b32 v27, 1")
    a("s_mov_b64 exec, 1")
    a("ds_add_rtn_u32 v28, v26, v27")
    a("s_waitcnt lgkmcnt(0)")
    a("v_readfirstlane_b32 s36, v28")
    a("s_cmp_lg_u32 s36, 3")
    a("s_cbranch_scc1 %s_nozs" % name)
    a("v_mov_b32 v28, 0")
    a("buffer_store_dword v27, v28, s[12:15], s97 offen sc1")
    a.label("%s_nozs" % name)
    a("s_mov_b64 exec, -1")
    stamp(a, 7)
    srd(a, 16, 88, 576 * 2048 * 2)
    srd(a, 84, 90, 576 * 2)
    a("s_mov_b32 s34, 0")
    a.label("%s_wb" % name)
    a("ds_read_b32 v27, v26 offset:12")
    a("s_add_u32 s34, s34, 1")
    a("s_waitcnt lgkmcnt(0)")
    a("v_readfirstlane_b32 s36, v27")
    a("s_cmp_gt_u32 s34, %d" % (SPIN_MAX * 20))
    a("s_cbranch_scc1 %s_wbx" % name)
    a("s_cmp_ge_u32 s36, 4")
    a("s_cbranch_scc1 %s_wbx" % name)
    a("s_sleep 2")
    a("s_branch %s_wb" % name)
    a.label("%s_wbx" % name)
    for g in range(4):
        a("s_add_u32 s35, s24, %d" % (g * SLOT))
        a("s_mov_b32 m0, s35")
        a("s_add_u32 s36, s26, %d" % (128 * g))
        for n in range(4):
            a("buffer_load_dwordx4 v%d, s[8:11], s36 offen offset:%d lds" % (10 + n, n * 1024))
    a("v_mov_b32 v250, v12"); a("v_mov_b32 v251, v13"); a("v_mov_b32 v252, v26")
    a("s_mov_b32 s39, 0x%x" % KVT)
    a("s_waitcnt vmcnt(16)")
    for n in range(11): a("v_mov_b32 v%d, v%d" % (16 + n, 128 + n))
    for n in range(8): a("v_mov_b32 v%d, v%d" % (32 + n, 140 + n))
    for n in range(4): a("v_mov_b32 v%d, v%d" % (44 + n, 148 + n))
    a("v_mov_b32 v56, v152"); a("v_mov_b32 v57, v153")
    a.label("%s_kvb" % name)
    emit_kv_compute(a, wait=False, store=False)
    a("buffer_store_dwordx4 v[120:123], v12, s[12:15], s39 offen sc1")
    a("buffer_store_dwordx4 v[124:127], v13, s[12:15], s39 offen sc1")
    a("s_cmp_lt_u32 s41, 256")
    a("s_cbranch_scc1 %s_kvbd" % name)
    a("s_mov_b32 s41, 0")
    for n in range(11): a("v_mov_b32 v%d, v%d" % (16 + n, 156 + n))
    for n in range(8): a("v_mov_b32 v%d, v%d" % (32 + n, 168 + n))
    for n in range(4): a("v_mov_b32 v%d, v%d" % (44 + n, 176 + n))
    a("v_mov_b32 v56, v180"); a("v_mov_b32 v57, v181")
    a("s_branch %s_kvb" % name)
    a.label("%s_kvbd" % name)
    a("s_nop 1")
    a("v_mov_b32 v12, v250"); a("v_mov_b32 v13, v251"); a("v_mov_b32 v26, v252")
    a("s_mov_b32 s34, 0")
    a("s_cmp_lg_u32 s3, 0")
    a("s_cbranch_scc1 %s_pl" % name)
    a("v_and_b32 v28, 15, v2")
    a("v_lshlrev_b32 v30, 2, v28")
    a("v_lshlrev_b32 v28, 12, v28")
    a("s_lshl_b32 s52, s23, 8")
    a("s_add_u32 s52, s52, 0x%x" % ZFLG)
    a.label("%s_pz0" % name)
    a("buffer_load_dword v31, v30, s[60:63], 0 offen sc1")
    a("s_add_u32 s34, s34, 1")
    a("s_waitcnt vmcnt(0)")
    a("v_cmp_gt_u32 vcc, 16, v31")
    a("s_cmp_gt_u32 s34, %d" % SPIN_MAX)
    a("s_cbranch_scc1 %s_pz" % name)
    a("s_cbranch_vccz %s_pz" % name)
    a("s_sleep 32")
    a("s_branch %s_pz0" % name)
    a.label("%s_pz" % name)
    a("buffer_load_dword v29, v28, s[12:15], s52 offen sc1")
    a("s_add_u32 s34, s34, 1")
    a("s_waitcnt vmcnt(0)")
    a("v_cmp_ne_u32 vcc, 1, v29")
    a("s_cmp_gt_u32 s34, %d" % SPIN_MAX)
    a("s_cbranch_scc1 %s_pzx" % name)
    a("s_cbranch_vccz %s_pzx" % name)
    a("s_sleep 8")
    a("s_branch %s_pz" % name)
    a.label("%s_pzx" % name)
    a("v_mov_b32 v27, 1")
    a("ds_write_b32 v26, v27 offset:4")
    a("s_branch %s_pgo" % name)
    a.label("%s_pl" % name)
    a("ds_read_b32 v27, v26 offset:4")
    a("s_add_u32 s34, s34, 1")
    a("s_waitcnt lgkmcnt(0)")
    a("v_readfirstlane_b32 s36, v27")
    a("s_cmp_gt_u32 s34, %d" % (SPIN_MAX * 20))
    a("s_cbranch_scc1 %s_pgo" % name)
    a("s_cmp_lg_u32 s36, 0")
    a("s_cbranch_scc1 %s_pgo" % name)
    a("s_sleep 2")
    a("s_branch %s_pl" % name)
    a.label("%s_pgo" % name)
    stamp(a, 8)
    for g in range(4):
        a("s_add_u32 s35, s24, %d" % (g * SLOT + TREG))
        a("s_mov_b32 m0, s35")
        a("s_add_u32 s36, s27, %d" % (18432 * g))
        a("s_add_u32 s37, s36, s32")
        for n in range(4):
            a("buffer_load_dwordx4 v14, s[12:15], s36 offen offset:%d sc1 lds" % (n * 1024))
        a("s_add_u32 s35, s35, s32")
        a("s_mov_b32 m0, s35")
        a("s_mov_b64 exec, 0xffffffff")
        a("buffer_load_dwordx4 v14, s[12:15], s37 offen sc1 lds")
        a("s_mov_b64 exec, -1")
    a("s_add_u32 s26, s26, 512")
    a("s_add_u32 s27, s27, %d" % (4 * 18432))
    a("s_mov_b32 s33, 0")
    a("s_lshl_b32 s43, s2, 2")
    a("s_add_u32 s43, s43, s3")
    a("s_and_b32 s53, s43, 1")
    a("s_sub_u32 s36, s43, 448")
    a("s_lshr_b32 s37, s43, 1")
    a("s_cmp_ge_u32 s43, 896")
    a("s_cselect_b32 s43, s36, s37")
    a("s_cselect_b32 s53, 2, s53")
    a("s_waitcnt vmcnt(15)")
    a("s_barrier")
    a("s_waitcnt vmcnt(10)")
    a("s_barrier")
    a("s_waitcnt vmcnt(5)")
    a("s_barrier")
    a("s_mov_b32 s34, 4")
    def issue2():
        a("s_add_u32 s35, s33, s24")
        a("s_mov_b32 m0, s35")
        a("s_add_u32 s36, s35, %d" % TREG)
        for n in range(4):
            a("buffer_load_dwordx4 v%d, s[8:11], s26 offen offset:%d lds" % (10 + n, n * 1024))
        a("s_mov_b32 m0, s36")
        a("s_add_u32 s37, s27, s32")
        for n in range(4):
            a("buffer_load_dwordx4 v14, s[12:15], s27 offen offset:%d sc1 lds" % (n * 1024))
        a("s_add_u32 s36, s36, s32")
        a("s_mov_b32 m0, s36")
        a("s_mov_b64 exec, 0xffffffff")
        a("buffer_load_dwordx4 v14, s[12:15], s37 offen sc1 lds")
        a("s_mov_b64 exec, -1")
        a("s_add_u32 s26, s26, 128")
        a("s_add_u32 s27, s27, 18432")
        a("s_add_u32 s33, s33, %d" % SLOT)
        a("s_cmp_eq_u32 s33, %d" % (R * SLOT))
        a("s_cselect_b32 s33, 0, s33")
    a.label("%s_lloop" % name)
    issue2()
    a("s_cmp_eq_u32 s34, 8")
    a("s_cbranch_scc1 %s_hk0" % name)
    a("s_cmp_eq_u32 s34, 18")
    a("s_cbranch_scc1 %s_hk1" % name)
    a("s_cmp_eq_u32 s34, 21")
    a("s_cbranch_scc1 %s_hk2" % name)
    a("s_waitcnt vmcnt(9)")
    a.label("%s_lcont" % name)
    a("s_barrier")
    a("s_add_u32 s34, s34, 1")
    a("s_cmp_lt_u32 s34, 32")
    a("s_cbranch_scc1 %s_lloop" % name)
    a("s_branch %s_ldone" % name)
    a.label("%s_hk0" % name)
    a("v_mov_b32 v27, 1")
    a("s_mov_b64 exec, 1")
    a("ds_add_rtn_u32 v28, v26, v27 offset:8")
    a("s_waitcnt lgkmcnt(0)")
    a("v_readfirstlane_b32 s36, v28")
    a("s_cmp_lg_u32 s36, 3")
    a("s_cbranch_scc1 %s_hk0x" % name)
    a("s_and_b32 s36, s2, 15")
    a("s_lshl_b32 s36, s36, 2")
    a("s_add_u32 s36, s36, 128")
    a("v_mov_b32 v28, s36")
    a("buffer_atomic_add v27, v28, s[60:63], 0 offen sc1")
    a.label("%s_hk0x" % name)
    a("s_mov_b64 exec, -1")
    a("s_waitcnt vmcnt(9)")
    a("s_branch %s_lcont" % name)
    a.label("%s_hk1" % name)
    a("v_and_b32 v28, 15, v2")
    a("v_lshlrev_b32 v28, 2, v28")
    a("buffer_load_dword v29, v28, s[60:63], 0 offen offset:128 sc1")
    a("s_waitcnt vmcnt(10)")
    a("s_branch %s_lcont" % name)
    a.label("%s_hk2" % name)
    a("s_mov_b32 s52, 0")
    a.label("%s_hk2l" % name)
    a("v_cmp_gt_u32 vcc, 16, v29")
    a("s_add_u32 s52, s52, 1")
    a("s_cmp_gt_u32 s52, %d" % SPIN_MAX)
    a("s_cbranch_scc1 %s_hk2g" % name)
    a("s_cbranch_vccz %s_hk2g" % name)
    a("s_sleep 16")
    a("buffer_load_dword v29, v28, s[60:63], 0 offen offset:128 sc1")
    a("s_waitcnt vmcnt(0)")
    a("s_branch %s_hk2l" % name)
    a.label("%s_hk2g" % name)
    nconv = emit_conv_loads(a, " sc1")
    a("s_waitcnt vmcnt(%d)" % (9 + nconv))
    a("s_branch %s_lcont" % name)
    a.label("%s_ldone" % name)
    a("s_waitcnt vmcnt(0)")
    a("s_barrier")
    a("s_mov_b32 s26, s53")
    a("s_and_b32 s27, s3, 1")
    a("s_mul_i32 s27, s27, %d" % CJ_SIZE)
    a("s_lshr_b32 s36, s3, 1")
    a("s_mul_i32 s36, s36, %d" % SLOT)
    a("s_add_u32 s27, s27, s36")
    a("s_add_u32 s27, s27, %d" % RB)
    def mid():
        a("s_barrier")
        a("s_setprio 0")
    sv = set(DBG); DBG.discard("stamp")
    emit_conv_job(a, name, mid)
    DBG.update(sv)
    G.stamp_rt(a, 1)
    a.label("%s_end" % name)
    a("s_endpgm")
    return a.text(), kernel_desc(name, 256, 256), (name, 256, 512, LDSB)

def gen_kf5(name="k1_kernel", R=4):
    a = Asm()
    RB = 4096; SLOT = 34816; TREG = 16384; FS = 288; RST = 0
    LDSB = RB + R * SLOT
    LC = 2048
    ZFLG = 0x2D00000
    from gen3 import emit_conv_loads, emit_conv_job, CJ_SIZE
    def capture(f, *args):
        lb = len(a.lines); f(*args); out = a.lines[lb:]; del a.lines[lb:]; return out
    kernel_begin(a, name)
    a("s_load_dwordx2 s[80:81], s[0:1], 0")
    a("s_load_dwordx2 s[4:5], s[0:1], 56")
    a("s_load_dwordx2 s[6:7], s[0:1], 104")
    a("s_load_dwordx2 s[18:19], s[0:1], 96")
    a("s_cmp_ge_u32 s2, 256")
    a("s_cbranch_scc1 %s_end" % name)
    a("v_lshrrev_b32 v1, 6, v0")
    a("v_and_b32 v2, 63, v0")
    a("v_readfirstlane_b32 s3, v1")
    G2.tile_ij(a)
    a("s_lshr_b32 s98, s3, 2")
    a("s_mov_b32 s54x, 0".replace("s54x", "s99"))
    a("s_and_b32 s3, s3, 3")
    a("s_lshr_b32 s24, s3, 1")
    a("s_and_b32 s25, s3, 1")
    a("v_and_b32 v3, 15, v2")
    VT = 204; VF = 208
    def loader_setup():
        a("v_lshrrev_b32 v5, 3, v2")
        a("v_and_b32 v4, 7, v2")
        a("s_lshl_b32 s36, s3, 5")
        a("v_add_u32 v5, s36, v5")
        a("v_lshrrev_b32 v7, 4, v2")
        a("v_xor_b32 v7, v7, v4")
        a("v_mul_u32_u24 v6, 1152, v5")
        a("v_lshl_add_u32 v%d, v7, 4, v6" % VT)
        a("v_xor_b32 v%d, 64, v%d" % (VT + 1, VT))
        a("v_add_u32 v%d, %d, v%d" % (VT + 1, 9216 - 1024, VT + 1))
        a("v_add_u32 v%d, %d, v%d" % (VT + 2, 2 * (9216 - 1024), VT))
        a("v_add_u32 v%d, %d, v%d" % (VT + 3, 2 * (9216 - 1024), VT + 1))
        a("s_lshl_b32 s84, s3, 12")
        a("s_add_u32 s84, s84, %d" % RB)
        a("s_lshl_b32 s85, s3, 9")
        a("s_add_u32 s85, s85, %d" % (RB + TREG + 16384))
    def loader_setup2():
        for n in range(5):
            if n < 4:
                a("s_lshl_b32 s36, s3, 8")
                a("s_add_u32 s36, s36, %d" % (64 * n))
            else:
                a("s_lshl_b32 s36, s3, 5")
                a("s_add_u32 s36, s36, 1024")
            a("v_add_u32 v6, s36, v2")
            a("v_mul_u32_u24 v7, 3641, v6")
            a("v_lshrrev_b32 v7, 16, v7")
            a("v_mul_u32_u24 v8, 18, v7")
            a("v_sub_u32 v8, v6, v8")
            a("v_and_b32 v9, 35, v7")
            a("v_bfe_u32 v6, v7, 2, 2")
            a("v_lshl_add_u32 v9, v6, 3, v9")
            a("v_bfe_u32 v6, v7, 4, 1")
            a("v_lshl_add_u32 v9, v6, 2, v9")
            a("v_mul_u32_u24 v9, 9216, v9")
            a("v_lshl_add_u32 v%d, v8, 4, v9" % (VF + n))
            if 0 < n < 4: a("v_subrev_u32 v%d, %d, v%d" % (VF + n, 1024 * n, VF + n))
    def issueT(g):
        st = g % 9
        a("s_add_u32 s86, s84, %d" % ((g % R) * SLOT))
        a("s_mov_b32 m0, s86")
        a("s_add_u32 s87, s82, %d" % (128 * st))
        for n in range(4):
            a("buffer_load_dwordx4 v%d, s[28:31], s87 offen offset:%d lds" % (VT + n, 1024 * n))
    def issueF(g):
        st = g % 9
        a("s_add_u32 s86, s84, %d" % ((g % R) * SLOT + TREG))
        a("s_mov_b32 m0, s86")
        a("s_add_u32 s87, s83, %d" % (64 * 9216 * st + (4608 if g < 9 else 0)))
        for n in range(4):
            a("buffer_load_dwordx4 v%d, s[8:11], s87 offen offset:%d lds" % (VF + n, 1024 * n))
        a("s_add_u32 s86, s85, %d" % ((g % R) * SLOT))
        a("s_mov_b32 m0, s86")
        a("s_mov_b64 exec, 0xffffffff")
        a("buffer_load_dwordx4 v%d, s[8:11], s87 offen lds" % (VF + 4))
        a("s_mov_b64 exec, -1")
    def srds_main():
        srd(a, 28, 80, 2048 * 576 * 2)
        srd(a, 8, 4, 576 * 4608 * 2)
        srd(a, 12, 6, WS_BYTES)
        srd(a, 60, 18, 256)
        a("s_mul_i32 s82, s22, %d" % (128 * 1152))
        a("s_mul_i32 s83, s23, 288")
    ACC = 128; FB = [16, 52]; CS = 216; ONE = 236
    vTa = [4, 5]; vTb = [6, 7]; vF = 8; vFh = 9
    bTa = [88, 89]; bTb = [90, 91]; bF = 92; bFh = 93
    def mma_setup():
        a("v_lshrrev_b32 v10, 4, v2")
        a("v_lshrrev_b32 v11, 1, v3")
        a("v_xor_b32 v10, v10, v11")
        a("v_lshlrev_b32 v10, 4, v10")
        a("v_lshl_add_u32 v10, v3, 7, v10")
        a("s_lshl_b32 s26, s24, 13")
        a("s_add_u32 s26, s26, %d" % RB)
        a("v_add_u32 v10, s26, v10")
        a("s_lshl_b32 s26, s25, 12")
        a("v_add_u32 v%d, s26, v10" % bTa[0])
        a("s_xor_b32 s26, s26, 4096")
        a("v_add_u32 v%d, s26, v10" % bTb[0])
        a("v_xor_b32 v%d, 64, v%d" % (bTa[1], bTa[0]))
        a("v_xor_b32 v%d, 64, v%d" % (bTb[1], bTb[0]))
        a("v_lshrrev_b32 v10, 2, v2")
        a("v_mul_u32_u24 v10, %d, v10" % FS)
        a("v_and_b32 v11, 3, v2")
        a("v_lshl_add_u32 v10, v11, 3, v10")
        a("v_add_u32 v10, %d, v10" % (RB + TREG))
        a("s_mul_i32 s26, s25, 160")
        a("v_add_u32 v%d, s26, v10" % bF)
        a("v_add_u32 v%d, 128, v10" % bFh)
        for r in range(ACC, ACC + 72): a("v_mov_b32 v%d, 0" % r)
        for r in range(CS, CS + 20): a("v_mov_b32 v%d, 0" % r)
        for r in range(ONE, ONE + 4): a("v_mov_b32 v%d, 0x3f803f80" % r)
    def mma_addr(slot):
        a("s_mov_b32 s27, %d" % (slot * SLOT))
        for d, s_ in ((vTa[0], bTa[0]), (vTb[0], bTb[0]), (vTa[1], bTa[1]), (vTb[1], bTb[1]), (vF, bF), (vFh, bFh)):
            a("v_add_u32 v%d, s27, v%d" % (d, s_))
    core = G.Core(a, ACC, FB[0], FB[1], FS, TREG, vTa, vTb, vF, vFh)
    trk = core.trk
    a("s_cmp_eq_u32 s98, 0")
    a("s_cbranch_scc1 %s_A0" % name)
    a("s_setprio 3")
    loader_setup()
    a("s_waitcnt lgkmcnt(0)")
    srds_main()
    vm = VmTracker(a)
    def issue(g, vmx):
        issueT(g); issueF(g); vmx.issue("S%d" % g, 9)
    issueT(0)
    loader_setup2()
    issueF(0); vm.issue("S0", 9)
    issue(1, vm); issue(2, vm); issue(3, vm)
    a("s_add_u32 s3, s3, 4"); stamp_setup(a, 1); stamp(a, 0); a("s_sub_u32 s3, s3, 4")
    mma_setup()
    RA = 96; XB = 112
    for r in range(RA, RA + 16): a("v_mov_b32 v%d, 0" % r)
    a("v_lshrrev_b32 v10, 4, v2")
    a("v_lshrrev_b32 v11, 1, v3")
    a("v_xor_b32 v10, v10, v11")
    a("v_lshlrev_b32 v10, 4, v10")
    a("v_lshl_add_u32 v10, v3, 7, v10")
    a("v_add_u32 v12, s84, v10")
    a("v_xor_b32 v13, 64, v12")
    def rs_rd(g):
        a("v_add_u32 v10, %d, v12" % ((g % R) * SLOT))
        a("v_add_u32 v11, %d, v13" % ((g % R) * SLOT))
        for h in range(2):
            for n in range(2):
                a("ds_read_b128 %s, v%d offset:%d" % (vr(XB + 8 * h + 4 * n), 10 + h, 2048 * n))
    def rs_do():
        for h in range(2):
            for n in range(2):
                x = XB + 8 * h + 4 * n
                a("v_mfma_f32_16x16x32_bf16 %s, %s, %s, %s" % (vr(RA + 4 * n), vr(ONE), vr(x), vr(RA + 4 * n)))
                a("v_mfma_f32_16x16x32_bf16 %s, %s, %s, %s" % (vr(RA + 8 + 4 * n), vr(x), vr(x), vr(RA + 8 + 4 * n)))
    def interleave(dma, comp, vmx=None):
        groups = []; cur = []
        for l in dma:
            cur.append(l)
            if "buffer_load" in l and not any("exec, 0xffffffff" in x for x in cur[-2:]):
                groups.append(cur); cur = []
            elif "exec, -1" in l:
                groups.append(cur); cur = []
        if cur: groups.append(cur)
        ns = max(1, len(groups))
        per = (len(comp) + ns - 1) // ns
        for g in groups:
            a.lines.extend(g)
            a.lines.extend(comp[:per]); comp = comp[per:]
        a.lines.extend(comp)
    vm.wait(["S0"])
    a("s_barrier")
    stamp(a, 1)
    rs_rd(0)
    vm.wait(["S1"])
    a("s_barrier")
    for k in range(9):
        a("s_waitcnt lgkmcnt(0)")
        dma = capture(lambda: (issueT(k + 3), issueF(k + 3))) if 1 <= k < 8 else []
        interleave(dma, capture(rs_do))
        if 1 <= k < 8: vm.issue("S%d" % (k + 3), 9)
        if k < 8:
            rs_rd(k + 1)
        else:
            a("s_nop 7")
            a("v_lshrrev_b32 v10, 4, v2")
            a("v_lshrrev_b32 v11, 2, v3")
            a("v_and_b32 v12, 3, v3")
            for n in range(2):
                G_ = RA + 8 + 4 * n
                for r in range(1, 4):
                    a("v_cmp_eq_u32 vcc, %d, v12" % r)
                    a("s_nop 1")
                    a("v_cndmask_b32 v%d, v%d, v%d, vcc" % (G_, G_, G_ + r))
            ML = 112
            for n in range(2):
                emit_ln_finish(a, RA + 4 * n, RA + 8 + 4 * n, 576, ML + 2 * n, ML + 2 * n + 1, 120)
                a("v_mov_b32 v%d, v%d" % (117 + 2 * n, ML + 2 * n + 1))
                a("v_sub_f32 v%d, 0, v%d" % (116 + 2 * n, ML + 2 * n))
            a("s_lshl_b32 s35, s3, 8")
            a("v_lshlrev_b32 v13, 3, v3")
            a("v_add_u32 v12, s35, v13")
            a("v_cmp_eq_u32 vcc, v10, v11")
            a("s_and_saveexec_b64 s[36:37], vcc")
            for n in range(2):
                a("ds_write_b64 v12, %s offset:%d" % (vr(116 + 2 * n, 2), RST + 128 * n))
            a("s_mov_b64 exec, s[36:37]")
            a("s_cmp_lg_u32 s23, 0")
            a("s_cbranch_scc1 %s_nost1" % name)
            a("s_lshl_b32 s35, s22, 7")
            a("s_lshl_b32 s36, s3, 5")
            a("s_add_u32 s35, s35, s36")
            a("s_lshl_b32 s35, s35, 3")
            a("s_add_u32 s35, s35, 0x%x" % STATS1)
            a("v_mov_b32 v11, 0x7ffffff0")
            a("v_cndmask_b32 v13, v11, v13, vcc")
            for n in range(2):
                a("buffer_store_dwordx2 %s, v13, s[12:15], s35 offen offset:%d" % (vr(ML + 2 * n, 2), 128 * n))
            a.label("%s_nost1" % name)
        if k < 8:
            vm.wait(["S%d" % (k + 2)])
            a("s_barrier")
    HO = lambda: None
    def ho_addr():
        a("s_lshr_b32 s36, s3, 1")
        a("s_mul_i32 s36, s36, %d" % (3 * SLOT))
        a("s_and_b32 s37, s3, 1")
        a("s_mul_i32 s37, s37, 12288")
        a("s_add_u32 s36, s36, s37")
        a("s_add_u32 s36, s36, %d" % RB)
        a("v_lshlrev_b32 v10, 4, v2")
        a("v_add_u32 v95, s36, v10")
    a("s_waitcnt lgkmcnt(0)")
    a("s_barrier")
    ho_addr()
    a("s_barrier")
    n_ = 0
    for ft in range(4):
        for tt in range(2):
            a("ds_read_b128 %s, v95 offset:%d" % (vr(core.accr(ft, tt)), 1024 * n_)); n_ += 1
    for ft in range(4):
        a("ds_read_b128 %s, v95 offset:%d" % (vr(CS + 4 * ft), 1024 * n_)); n_ += 1
    a("s_branch %s_g2" % name)
    a.label("%s_A0" % name)
    emit_code_prefetch(a, name)
    a("s_load_dwordx4 s[64:67], s[0:1], 8")
    a("s_load_dwordx2 s[76:77], s[0:1], 24")
    a("s_load_dwordx2 s[78:79], s[0:1], 64")
    mma_setup()
    loader_setup(); loader_setup2()
    a("s_waitcnt lgkmcnt(0)")
    srds_main()
    srd(a, 68, 66, 2048 * 576 * 2)
    a("s_mov_b32 s88, s64"); a("s_mov_b32 s89, s65")
    srd(a, 64, 88, 2048 * 576 * 2)
    srd(a, 72, 76, 576 * 8)
    stamp_setup(a, 1); stamp(a, 0)
    def gran_addr():
        a("v_lshrrev_b32 v10, 4, v2")
        a("s_lshl_b32 s36, s25, 1")
        a("v_add_u32 v11, s36, v10")
        a("v_and_b32 v11, 3, v11")
        a("v_lshl_add_u32 v11, v11, 4, v3")
        a("v_lshlrev_b32 v94, 8, v11")
        a("s_lshl_b32 s59, s22, 7")
        a("s_lshl_b32 s36, s24, 6")
        a("s_add_u32 s59, s59, s36")
        a("s_lshl_b32 s59, s59, 8")
        a("s_add_u32 s59, s59, 0x%x" % STATS2)
        a("s_lshl_b32 s36, s23, 1")
        a("s_add_u32 s36, s36, s25")
        a("s_lshl_b32 s36, s36, 3")
        a("s_add_u32 s58, s36, s59")
    gran_addr()
    a("v_mov_b32 v12, 0"); a("v_mov_b32 v13, 0x80000000")
    a("buffer_store_dwordx2 v[12:13], v94, s[12:15], s58 offen sc1")
    a("s_lshl_b32 s36, s22, 4")
    a("s_add_u32 s36, s36, s23")
    a("s_lshl_b32 s36, s36, 8")
    a("s_add_u32 s97, s36, 0x%x" % ZFLG)
    a("v_mov_b32 v10, %d" % LC)
    a("v_mov_b32 v12, 0"); a("v_mov_b32 v13, 0")
    a("s_mov_b64 exec, 1")
    a("buffer_store_dword v12, v12, s[12:15], s97 offen sc1")
    a("s_mov_b64 exec, -1")
    a("ds_write_b64 v10, v[12:13]")
    a("ds_write_b64 v10, v[12:13] offset:8")
    mma_addr(0)
    a("s_mov_b32 s33, 0")
    a("s_waitcnt lgkmcnt(0)")
    a("s_barrier")
    stamp(a, 1)
    a.label("%s_mma" % name)
    core.prime(0, core.reads(0, 0))
    trk.drain()
    nocs = [False]
    def mfmas(buf):
        L = []
        for ft in range(5):
            A = core.F(buf, ft)
            for tt in range(4 if ft < 4 else 2):
                c = core.accr(ft, tt); B = core.T(buf, tt)
                L.append(("v_mfma_f32_16x16x32_bf16 %s, %s, %s, %s" % (vr(c), vr(A), vr(B), vr(c)), list(range(A, A + 4)) + list(range(B, B + 4))))
            if not nocs[0]: L.append(("v_mfma_f32_16x16x32_bf16 %s, %s, %s, %s" % (vr(CS + 4 * ft), vr(A), vr(ONE), vr(CS + 4 * ft)), list(range(A, A + 4))))
        return L
    def phase(buf, pend):
        for (m, regs) in mfmas(buf):
            trk.need(regs)
            a(m)
            while pend:
                k, t = pend.pop(0)
                if k == "x":
                    a(t)
                    if t.startswith("s_"): continue
                else:
                    a(t[0]); trk.issue(t[1])
                break
        for k, t in pend:
            if k == "x": a(t)
            else: a(t[0]); trk.issue(t[1])
    def iteration(vw=True):
        if vw: a("s_waitcnt vmcnt(0)")
        a("s_barrier")
        rd = [("r", t) for t in core.reads(1, 1)]
        upd = ["s_add_u32 s27, s27, %d" % SLOT, "s_cmp_eq_u32 s27, %d" % (R * SLOT), "s_cselect_b32 s27, 0, s27"]
        tail = ["v_add_u32 v%d, s27, v%d" % (d, s_) for d, s_ in ((vTa[0], bTa[0]), (vF, bF), (vTb[0], bTb[0]), (vFh, bFh))]
        phase(0, rd[:1] + [("x", u) for u in upd] + rd[1:] + [("x", u) for u in tail])
        rd = [("r", t) for t in core.reads(0, 0)]
        tail = ["v_add_u32 v%d, s27, v%d" % (d, s_) for d, s_ in ((vTa[1], bTa[1]), (vTb[1], bTb[1]))] + ["s_add_u32 s33, s33, 1"]
        phase(1, rd + [("x", u) for u in tail])
    a.label("%s_cloop" % name)
    lb = len(a.lines); iteration(); st = copy.deepcopy(trk.out); del a.lines[lb:]; trk.out = copy.deepcopy(st)
    iteration()
    assert [sorted(x) for x in trk.out] == [sorted(x) for x in st]
    a("s_cmp_lt_u32 s33, 9")
    a("s_cbranch_scc1 %s_cloop" % name)
    trk.drain()
    stamp(a, 2)
    MR = 100; T = 72; ZP = 16
    a("s_cmp_eq_u32 s98, 1")
    a("s_cbranch_scc1 %s_Btail" % name)
    a("s_waitcnt vmcnt(0)")
    a("s_barrier")
    a("s_cmp_lg_u32 s3, 0")
    a("s_cbranch_scc1 %s_nosig" % name)
    a("v_mov_b32 v10, 1")
    a("s_lshl_b32 s36, s22, 2")
    a("v_mov_b32 v11, s36")
    a("s_mov_b64 exec, 1")
    a("buffer_atomic_add v10, v11, s[60:63], 0 offen sc1")
    a("s_mov_b64 exec, -1")
    a.label("%s_nosig" % name)
    ho_addr()
    n_ = 0
    for ft in range(4):
        for tt in range(2):
            a("ds_write_b128 v95, %s offset:%d" % (vr(core.accr(ft, tt + 2)), 1024 * n_)); n_ += 1
    for ft in range(4):
        a("ds_write_b128 v95, %s offset:%d" % (vr(CS + 4 * ft), 1024 * n_)); n_ += 1
    a("s_waitcnt lgkmcnt(0)")
    a("s_barrier")
    a.label("%s_g2" % name)
    gelu_consts(a)
    a("s_xor_b32 s52, s98, s25")
    a("s_lshl_b32 s36, s24, 9")
    a("s_lshl_b32 s37, s52, 8")
    a("s_add_u32 s38, s36, s37")
    a("v_lshlrev_b32 v10, 3, v3")
    a("v_add_u32 v11, s38, v10")
    a("ds_read_b64 %s, v11 offset:%d" % (vr(MR, 2), RST))
    a("ds_read_b64 %s, v11 offset:%d" % (vr(MR + 2, 2), RST + 128))
    for r_ in range(108, 112): a("v_mov_b32 v%d, 0" % r_)
    a("s_waitcnt lgkmcnt(0)")
    ZPo = lambda n: 16 + 2 * n
    def dots2(lst):
        for d in range(2):
            for (ft, tt) in lst:
                p = ZPo(2 * ft + tt) + d
                a("v_dot2_f32_bf16 v%d, v%d, v%d, v%d" % (108 + 2 * tt, p, ONE, 108 + 2 * tt))
                a("v_dot2_f32_bf16 v%d, v%d, v%d, v%d" % (109 + 2 * tt, p, p, 109 + 2 * tt))
    a("s_cmp_lg_u32 s98, 0")
    a("s_cbranch_scc1 %s_nohalf" % name)
    lst = [(4, 0), (4, 1)]
    emit_fold_gelu(a, [(core.accr(ft, tt), CS + 4 * ft, MR + 2 * tt, ZPo(2 * ft + tt)) for ft, tt in lst], T)
    dots2(lst)
    a.label("%s_nohalf" % name)
    for f0 in (0, 2):
        lst = [(ft, tt) for ft in (f0, f0 + 1) for tt in range(2)]
        emit_fold_gelu(a, [(core.accr(ft, tt), CS + 4 * ft, MR + 2 * tt, ZPo(2 * ft + tt)) for ft, tt in lst], T)
        dots2(lst)
    a("s_nop 2")
    emit_xg_reduce(a, [108, 110, 109, 111], 72)
    a("s_lshl_b32 s40, s22, 7")
    a("s_lshl_b32 s36, s24, 6")
    a("s_add_u32 s40, s40, s36")
    a("s_lshl_b32 s40, s40, 8")
    a("s_add_u32 s59, s40, 0x%x" % STATS2)
    a("s_lshl_b32 s36, s52, 13")
    a("s_add_u32 s40, s59, s36")
    a("s_lshl_b32 s36, s23, 1")
    a("s_add_u32 s36, s36, s25")
    a("s_lshl_b32 s36, s36, 3")
    a("s_add_u32 s40, s40, s36")
    a("v_lshrrev_b32 v10, 4, v2")
    a("v_lshlrev_b32 v11, 8, v2")
    a("v_cmp_gt_u32 vcc, 32, v2")
    a("v_mov_b32 v12, 0x7ffffff0")
    a("v_cmp_eq_u32 s[36:37], 1, v10")
    a("v_cndmask_b32 v11, v12, v11, vcc")
    a("s_nop 0")
    a("v_cndmask_b32 v108, v108, v110, s[36:37]")
    a("v_cndmask_b32 v109, v109, v111, s[36:37]")
    a("v_and_b32 v109, 0x7fffffff, v109")
    a("buffer_store_dwordx2 v[108:109], v11, s[12:15], s40 offen sc1")
    a("s_cmp_eq_u32 s98, 0")
    a("s_cbranch_scc1 %s_A1" % name)
    for q in range(4):
        a("ds_write_b128 v95, %s offset:%d" % (vr(16 + 4 * q), 1024 * q))
    for r in range(ACC, ACC + 72): a("v_mov_b32 v%d, 0" % r)
    for r in range(CS, CS + 20): a("v_mov_b32 v%d, 0" % r)
    mma_addr(9 % R)
    a("s_mov_b32 s33, 0")
    a("s_setprio 0")
    a("s_waitcnt lgkmcnt(0)")
    stamp(a, 9)
    a("s_barrier")
    a("s_branch %s_mma" % name)
    def epi_in():
        gelu_consts(a)
        a("s_lshl_b32 s36, s24, 9")
        a("s_lshl_b32 s37, s25, 8")
        a("s_add_u32 s38, s36, s37")
        a("s_xor_b32 s37, s37, 256")
        a("s_add_u32 s39, s36, s37")
        a("v_lshlrev_b32 v10, 3, v3")
        a("v_add_u32 v11, s38, v10")
        a("ds_read_b64 %s, v11 offset:%d" % (vr(MR, 2), RST))
        a("ds_read_b64 %s, v11 offset:%d" % (vr(MR + 2, 2), RST + 128))
        a("v_add_u32 v11, s39, v10")
        a("ds_read_b64 %s, v11 offset:%d" % (vr(MR + 4, 2), RST))
        a("ds_read_b64 %s, v11 offset:%d" % (vr(MR + 6, 2), RST + 128))
        a("s_waitcnt lgkmcnt(0)")
    S = [108, 110, 52, 54]; Q = [109, 111, 53, 55]
    def gelu_ft(ft, stats):
        tts = range(4 if ft < 4 else 2)
        emit_fold_gelu(a, [(core.accr(ft, tt), CS + 4 * ft, MR + 2 * tt, ZP + 2 * tidx(ft, tt)) for tt in tts], T)
        if stats:
            for d in range(2):
                for tt in tts:
                    p = ZP + 2 * tidx(ft, tt) + d
                    a("v_dot2_f32_bf16 v%d, v%d, v%d, v%d" % (S[tt], p, ONE, S[tt]))
                    a("v_dot2_f32_bf16 v%d, v%d, v%d, v%d" % (Q[tt], p, p, Q[tt]))
    a.label("%s_Btail" % name)
    a("v_mov_b32 v10, %d" % (LC + 12))
    a("v_mov_b32 v11, 1")
    a("s_mov_b64 exec, 1")
    a("ds_add_u32 v10, v11")
    a("s_mov_b64 exec, -1")
    a("s_load_dwordx2 s[94:95], s[0:1], 80")
    a("s_load_dwordx2 s[92:93], s[0:1], 72")
    a("s_load_dwordx2 s[78:79], s[0:1], 64")
    epi_in()
    srd(a, 84, 78, 2048 * 2048 * 2)
    a("v_lshrrev_b32 v10, 4, v2")
    a("v_lshlrev_b32 v10, 12, v10")
    a("v_lshl_add_u32 v10, v3, 4, v10")
    a("s_lshl_b32 s40, s22, 7")
    a("s_lshl_b32 s36, s3, 5")
    a("s_add_u32 s40, s40, s36")
    a("s_lshl_b32 s40, s40, 12")
    a("s_lshl_b32 s36, s23, 8")
    a("s_add_u32 s40, s40, s36")
    for n in range(8):
        a("buffer_load_dwordx4 v[116:119], v10, s[84:87], s40 offen")
        if n < 7: a("s_add_u32 s40, s40, 16384")
    srd(a, 76, 94, 2304 * 576 * 2)
    srd(a, 28, 92, 2048 * 2)
    a("v_and_b32 v0, 255, v0")
    for ft in range(5): gelu_ft(ft, False)
    Z1R = 200; BI = 236
    for r_ in range(36): a("v_mov_b32 v%d, v%d" % (Z1R + r_, ZP + r_))
    stamp(a, 3)
    a("s_mov_b32 s42, s2")
    emit_wot_loads(a, 100, 112, 720, 3)
    a("s_lshl_b32 s36, s22, 7")
    a("s_lshl_b32 s37, s24, 6")
    a("s_add_u32 s36, s36, s37")
    a("v_lshlrev_b32 v11, 1, v3")
    a("s_lshl_b32 s37, s25, 6")
    a("s_lshl_b32 s38, s36, 1")
    a("s_add_u32 s39, s38, s37")
    a("s_xor_b32 s37, s37, 64")
    a("s_add_u32 s36, s38, s37")
    a("buffer_load_ushort v96, v11, s[28:31], s39 offen")
    a("buffer_load_ushort v97, v11, s[28:31], s39 offen offset:32")
    a("buffer_load_ushort v98, v11, s[28:31], s36 offen")
    a("buffer_load_ushort v99, v11, s[28:31], s36 offen offset:32")
    for r in range(ACC, ACC + 72): a("v_mov_b32 v%d, 0" % r)
    mma_addr(0)
    a("s_mov_b32 s33, 0")
    stamp(a, 4)
    a("s_barrier")
    stamp(a, 5)
    core.prime(0, core.reads(0, 0))
    trk.drain()
    nocs[0] = True
    a.label("%s_gloop" % name)
    lb = len(a.lines); iteration(False); st = copy.deepcopy(trk.out); del a.lines[lb:]; trk.out = copy.deepcopy(st)
    iteration(False)
    assert [sorted(x) for x in trk.out] == [sorted(x) for x in st]
    a("s_cmp_lg_u32 s33, 3")
    a("s_cbranch_scc1 %s_ghk" % name)
    a("s_waitcnt vmcnt(0)")
    for n in range(3):
        a("buffer_store_dwordx4 %s, v%d, s[12:15], s40 offen" % (vr(100 + 4 * n), 112 + n))
    for tt in range(4): a("v_lshlrev_b32 v%d, 16, v%d" % (BI + 2 * tt, 96 + tt))
    a.label("%s_ghk" % name)
    a("s_cmp_lt_u32 s33, 32")
    a("s_cbranch_scc1 %s_gloop" % name)
    trk.drain()
    stamp(a, 6)
    G3.emit_k2_epilogue(a, core, Z1R, BI)
    stamp(a, 7)
    G.stamp_rt(a, 1)
    a("s_branch %s_end" % name)
    a.label("%s_A1" % name)
    a("s_setprio 2")
    a("s_load_dwordx4 s[88:91], s[0:1], 32")
    vmA = VmTracker(a)
    stamp(a, 9)
    a("s_barrier")
    for q in range(4):
        a("ds_read_b128 %s, v95 offset:%d" % (vr(36 + 4 * q), 1024 * q))
    def zreg(ft, tt):
        return (16 + 2 * (2 * ft + tt)) if tt < 2 else (36 + 2 * (2 * ft + tt - 2))
    GB = [128, 144, 160, 176]
    def gather():
        for tt in range(4):
            for q in range(4):
                a("buffer_load_dwordx4 %s, v4, s[12:15], s%d offen offset:%d sc1" % (vr(GB[tt] + 4 * q), (52, 42, 53, 43)[tt], 16 * q))
    def st_finish():
        for tt in range(4):
            b = GB[tt]
            for st_ in (8, 4, 2):
                for q in range(0, st_, 2):
                    a("v_pk_add_f32 %s, %s, %s" % (vr(b + q, 2), vr(b + q, 2), vr(b + q + st_, 2)))
        emit_xg_reduce(a, [GB[tt] + e for tt in range(4) for e in range(2)], 72)
        for tt in range(4):
            b = GB[tt]
            emit_ln_finish(a, b, b + 1, 2304, b + 2, MR + 2 * tt, b + 4)
            a("v_mul_f32 v%d, -v%d, v%d" % (MR + 2 * tt + 1, b + 2, MR + 2 * tt))
    def z_addr():
        a("v_lshrrev_b32 v10, 4, v2")
        a("v_lshrrev_b32 v11, 2, v2"); a("v_and_b32 v11, 1, v11"); a("v_lshlrev_b32 v11, 4, v11")
        a("v_lshrrev_b32 v5, 3, v2"); a("v_and_b32 v5, 1, v5"); a("v_lshl_add_u32 v11, v5, 2, v11")
        a("v_and_b32 v5, 3, v2"); a("v_add_u32 v11, v11, v5")
        a("v_mul_u32_u24 v11, 288, v11")
        a("v_lshrrev_b32 v5, 1, v10"); a("v_lshl_add_u32 v11, v5, 4, v11")
        a("v_and_b32 v5, 1, v10")
        a("v_lshl_add_u32 v6, v5, 5, v11")
        a("v_mul_u32_u24 v5, 2304, v5")
        a("v_add_u32 v9, v11, v5")
        a("s_lshl_b32 s33, s23, 5")
        a("s_lshl_b32 s36, s22, 1")
        a("s_add_u32 s33, s33, s36")
        a("s_add_u32 s33, s33, s24")
        a("s_mul_i32 s33, s33, 18432")
        if ZIMG: a("s_add_u32 s33, s33, 0x%x" % ZIMG)
        a("s_mul_i32 s36, s25, 9216")
        a("s_add_u32 s37, s33, s36")
        a("s_xor_b32 s36, s36, 9216")
        a("s_add_u32 s38, s33, s36")
        a("s_add_u32 s39, s37, 128")
        a("s_mul_i32 s36, s25, 160")
        a("s_add_u32 s37, s37, s36")
        a("s_add_u32 s38, s38, s36")
    def norm_pair(tA, tB, O):
        for q, (ft, tt) in enumerate((tA, tB)):
            for d in range(2):
                z = zreg(ft, tt) + d; t_ = T + 4 * q + 2 * d
                a("v_lshlrev_b32 v%d, 16, v%d" % (t_, z))
                a("v_and_b32 v%d, 0xffff0000, v%d" % (t_ + 1, z))
        for q, (ft, tt) in enumerate((tA, tB)):
            for d in range(2):
                t_ = T + 4 * q + 2 * d
                a("v_pk_fma_f32 %s, %s, %s, %s op_sel:[0,0,1] op_sel_hi:[1,0,1]" % (vr(t_, 2), vr(t_, 2), vr(MR + 2 * tt, 2), vr(MR + 2 * tt, 2)))
        for q in range(2):
            for d in range(2):
                t_ = T + 4 * q + 2 * d
                a("v_cvt_pk_bf16_f32 v%d, v%d, v%d" % (O + 2 * q + d, t_, t_ + 1))
        a("s_nop 1")
        a("v_permlane16_swap_b32 v%d, v%d" % (O, O + 2))
        a("v_permlane16_swap_b32 v%d, v%d" % (O + 1, O + 3))
        a("s_nop 0")
    def zstore(idx):
        O = 216 + 4 * idx
        if idx < 8:
            pr, tt = idx >> 2, idx & 3
            norm_pair((2 * pr, tt), (2 * pr + 1, tt), O)
            a("buffer_store_dwordx4 %s, v6, s[12:15], s%d offen offset:%d sc1" % (vr(O), 37 if tt < 2 else 38, (tt & 1) * 2304 + 64 * pr))
        else:
            norm_pair((4, 0), (4, 1), O)
            a("buffer_store_dwordx4 %s, v9, s[12:15], s39 offen sc1" % vr(O))
    GK = 16
    def dmas(gs):
        out = []
        for g in gs: out += capture(lambda: (issueT(g), issueF(g)))
        return out
    for k in range(9, 18):
        if k == 9: a("s_waitcnt lgkmcnt(0)")
        a("s_barrier")
        gs = [11, 12] if k == 9 else ([k + 3] if k + 3 < 18 else [])
        if k == 9:
            a.lines.extend(dmas(gs))
            for g in gs: vmA.issue("S%d" % g, 9)
            a("s_lshl_b32 s36, s22, 2")
            a("v_mov_b32 v199, s36")
            a("buffer_load_dword v198, v199, s[60:63], 0 offen sc1"); vmA.issue("cnt", 1)
            a("v_lshrrev_b32 v10, 4, v2")
            a("v_lshlrev_b32 v4, 8, v3")
            a("v_lshl_add_u32 v4, v10, 6, v4")
            a("s_lshl_b32 s33, s25, 13")
            a("s_add_u32 s52, s59, s33")
            a("s_xor_b32 s33, s33, 8192")
            a("s_add_u32 s53, s59, s33")
            a("s_add_u32 s42, s52, 4096")
            a("s_add_u32 s43, s53, 4096")
        elif k == 10:
            a.lines.extend(dmas(gs)); vmA.issue("S13", 9)
            z_addr()
        elif k <= 14:
            a.lines.extend(dmas(gs)); vmA.issue("S%d" % gs[0], 9)
        elif k == GK:
            gather(); vmA.issue("g", 16)
        if k == 12:
            pass
        if 11 <= k + 2 < 18 and k + 2 != 10:
            vmA.wait(["S%d" % (k + 2)])
    stamp(a, 3)
    a("s_waitcnt vmcnt(0)")
    a("s_mov_b32 s40, 0")
    a.label("%s_chk" % name)
    a("v_subrev_u32 v11, 16, v198")
    for tt in range(4):
        for r in range(GB[tt] + 1, GB[tt] + 16, 4):
            a("v_or3_b32 v11, v11, v%d, v%d" % (r, r + 2))
    a("v_cmp_gt_i32 vcc, 0, v11")
    a("s_add_u32 s40, s40, 1")
    a("s_cmp_gt_u32 s40, %d" % SPIN_MAX)
    a("s_cbranch_scc1 %s_ok" % name)
    a("s_cbranch_vccz %s_ok" % name)
    a("s_sleep 16")
    a("buffer_load_dword v198, v199, s[60:63], 0 offen sc1")
    a("s_waitcnt vmcnt(0)")
    gather()
    a("s_waitcnt vmcnt(0)")
    a("s_branch %s_chk" % name)
    a.label("%s_ok" % name)
    stamp(a, 4)
    st_finish()
    for i_ in range(9): zstore(i_)
    stamp(a, 5)
    a("s_mov_b32 s41, s2")
    emit_kv_loads(a, 128, 140, 148, 152, 153)
    a("s_cmp_ge_u32 s2, 32")
    a("s_cbranch_scc1 %s_kvp" % name)
    a("s_add_u32 s41, s2, 256")
    emit_kv_loads(a, 156, 168, 176, 180, 181)
    a.label("%s_kvp" % name)
    a("s_setprio 3")
    srd(a, 8, 78, 2048 * 2048 * 2)
    a("v_lshrrev_b32 v3, 3, v2")
    a("s_lshl_b32 s24, s3, 5")
    a("v_add_u32 v3, s24, v3")
    a("v_and_b32 v4, 7, v2")
    a("v_lshrrev_b32 v6, 4, v2")
    a("v_xor_b32 v6, v6, v4")
    a("v_lshlrev_b32 v6, 4, v6")
    a("v_lshl_add_u32 v10, v3, 12, v6")
    a("v_xor_b32 v11, 64, v10")
    a("v_add_u32 v11, %d, v11" % (32768 - 1024))
    a("v_add_u32 v12, %d, v10" % (2 * (32768 - 1024)))
    a("v_add_u32 v13, %d, v11" % (2 * (32768 - 1024)))
    a("v_lshlrev_b32 v14, 4, v2")
    a("s_lshl_b32 s26, s22, 19")
    a("s_mul_i32 s27, s23, %d" % (32 * 18432))
    a("s_lshl_b32 s24, s3, 12")
    a("s_add_u32 s27, s27, s24")
    if ZIMG: a("s_add_u32 s27, s27, 0x%x" % ZIMG)
    a("s_lshl_b32 s25, s3, 9")
    a("s_sub_u32 s32, s25, s24")
    a("s_add_u32 s32, s32, 16384")
    a("s_add_u32 s24, s24, %d" % RB)
    a("s_waitcnt vmcnt(20) lgkmcnt(0)")
    a("v_mov_b32 v26, %d" % LC)
    a("v_mov_b32 v27, 1")
    a("s_mov_b64 exec, 1")
    a("ds_add_rtn_u32 v28, v26, v27")
    a("s_waitcnt lgkmcnt(0)")
    a("v_readfirstlane_b32 s36, v28")
    a("s_cmp_lg_u32 s36, 3")
    a("s_cbranch_scc1 %s_nozs" % name)
    a("v_mov_b32 v28, 0")
    a("buffer_store_dword v27, v28, s[12:15], s97 offen sc1")
    a.label("%s_nozs" % name)
    a("s_mov_b64 exec, -1")
    stamp(a, 7)
    srd(a, 16, 88, 576 * 2048 * 2)
    srd(a, 84, 90, 576 * 2)
    a("s_mov_b32 s34, 0")
    a.label("%s_wb" % name)
    a("ds_read_b32 v27, v26 offset:12")
    a("s_add_u32 s34, s34, 1")
    a("s_waitcnt lgkmcnt(0)")
    a("v_readfirstlane_b32 s36, v27")
    a("s_cmp_gt_u32 s34, %d" % (SPIN_MAX * 20))
    a("s_cbranch_scc1 %s_wbx" % name)
    a("s_cmp_ge_u32 s36, 4")
    a("s_cbranch_scc1 %s_wbx" % name)
    a("s_sleep 2")
    a("s_branch %s_wb" % name)
    a.label("%s_wbx" % name)
    for g in range(4):
        a("s_add_u32 s35, s24, %d" % (g * SLOT))
        a("s_mov_b32 m0, s35")
        a("s_add_u32 s36, s26, %d" % (128 * g))
        for n in range(4):
            a("buffer_load_dwordx4 v%d, s[8:11], s36 offen offset:%d lds" % (10 + n, n * 1024))
    a("v_mov_b32 v250, v12"); a("v_mov_b32 v251, v13"); a("v_mov_b32 v252, v26")
    a("s_mov_b32 s39, 0x%x" % KVT)
    a("s_waitcnt vmcnt(16)")
    for n in range(11): a("v_mov_b32 v%d, v%d" % (16 + n, 128 + n))
    for n in range(8): a("v_mov_b32 v%d, v%d" % (32 + n, 140 + n))
    for n in range(4): a("v_mov_b32 v%d, v%d" % (44 + n, 148 + n))
    a("v_mov_b32 v56, v152"); a("v_mov_b32 v57, v153")
    a.label("%s_kvb" % name)
    emit_kv_compute(a, wait=False, store=False)
    a("buffer_store_dwordx4 v[120:123], v12, s[12:15], s39 offen sc1")
    a("buffer_store_dwordx4 v[124:127], v13, s[12:15], s39 offen sc1")
    a("s_cmp_lt_u32 s41, 256")
    a("s_cbranch_scc1 %s_kvbd" % name)
    a("s_mov_b32 s41, 0")
    for n in range(11): a("v_mov_b32 v%d, v%d" % (16 + n, 156 + n))
    for n in range(8): a("v_mov_b32 v%d, v%d" % (32 + n, 168 + n))
    for n in range(4): a("v_mov_b32 v%d, v%d" % (44 + n, 176 + n))
    a("v_mov_b32 v56, v180"); a("v_mov_b32 v57, v181")
    a("s_branch %s_kvb" % name)
    a.label("%s_kvbd" % name)
    a("s_nop 1")
    a("v_mov_b32 v12, v250"); a("v_mov_b32 v13, v251"); a("v_mov_b32 v26, v252")
    a("s_mov_b32 s34, 0")
    a("s_cmp_lg_u32 s3, 0")
    a("s_cbranch_scc1 %s_pl" % name)
    a("v_and_b32 v28, 15, v2")
    a("v_lshlrev_b32 v30, 2, v28")
    a("v_lshlrev_b32 v28, 12, v28")
    a("s_lshl_b32 s52, s23, 8")
    a("s_add_u32 s52, s52, 0x%x" % ZFLG)
    a.label("%s_pz0" % name)
    a("buffer_load_dword v31, v30, s[60:63], 0 offen sc1")
    a("s_add_u32 s34, s34, 1")
    a("s_waitcnt vmcnt(0)")
    a("v_cmp_gt_u32 vcc, 16, v31")
    a("s_cmp_gt_u32 s34, %d" % SPIN_MAX)
    a("s_cbranch_scc1 %s_pz" % name)
    a("s_cbranch_vccz %s_pz" % name)
    a("s_sleep 32")
    a("s_branch %s_pz0" % name)
    a.label("%s_pz" % name)
    a("buffer_load_dword v29, v28, s[12:15], s52 offen sc1")
    a("s_add_u32 s34, s34, 1")
    a("s_waitcnt vmcnt(0)")
    a("v_cmp_ne_u32 vcc, 1, v29")
    a("s_cmp_gt_u32 s34, %d" % SPIN_MAX)
    a("s_cbranch_scc1 %s_pzx" % name)
    a("s_cbranch_vccz %s_pzx" % name)
    a("s_sleep 8")
    a("s_branch %s_pz" % name)
    a.label("%s_pzx" % name)
    a("v_mov_b32 v27, 1")
    a("ds_write_b32 v26, v27 offset:4")
    a("s_branch %s_pgo" % name)
    a.label("%s_pl" % name)
    a("ds_read_b32 v27, v26 offset:4")
    a("s_add_u32 s34, s34, 1")
    a("s_waitcnt lgkmcnt(0)")
    a("v_readfirstlane_b32 s36, v27")
    a("s_cmp_gt_u32 s34, %d" % (SPIN_MAX * 20))
    a("s_cbranch_scc1 %s_pgo" % name)
    a("s_cmp_lg_u32 s36, 0")
    a("s_cbranch_scc1 %s_pgo" % name)
    a("s_sleep 2")
    a("s_branch %s_pl" % name)
    a.label("%s_pgo" % name)
    stamp(a, 8)
    for g in range(4):
        a("s_add_u32 s35, s24, %d" % (g * SLOT + TREG))
        a("s_mov_b32 m0, s35")
        a("s_add_u32 s36, s27, %d" % (18432 * g))
        a("s_add_u32 s37, s36, s32")
        for n in range(4):
            a("buffer_load_dwordx4 v14, s[12:15], s36 offen offset:%d sc1 lds" % (n * 1024))
        a("s_add_u32 s35, s35, s32")
        a("s_mov_b32 m0, s35")
        a("s_mov_b64 exec, 0xffffffff")
        a("buffer_load_dwordx4 v14, s[12:15], s37 offen sc1 lds")
        a("s_mov_b64 exec, -1")
    a("s_add_u32 s26, s26, 512")
    a("s_add_u32 s27, s27, %d" % (4 * 18432))
    a("s_mov_b32 s33, 0")
    a("s_lshl_b32 s43, s2, 2")
    a("s_add_u32 s43, s43, s3")
    a("s_and_b32 s53, s43, 1")
    a("s_sub_u32 s36, s43, 448")
    a("s_lshr_b32 s37, s43, 1")
    a("s_cmp_ge_u32 s43, 896")
    a("s_cselect_b32 s43, s36, s37")
    a("s_cselect_b32 s53, 2, s53")
    a("s_waitcnt vmcnt(15)")
    a("s_barrier")
    a("s_waitcnt vmcnt(10)")
    a("s_barrier")
    a("s_waitcnt vmcnt(5)")
    a("s_barrier")
    a("s_mov_b32 s34, 4")
    def issue2():
        a("s_add_u32 s35, s33, s24")
        a("s_mov_b32 m0, s35")
        a("s_add_u32 s36, s35, %d" % TREG)
        for n in range(4):
            a("buffer_load_dwordx4 v%d, s[8:11], s26 offen offset:%d lds" % (10 + n, n * 1024))
        a("s_mov_b32 m0, s36")
        a("s_add_u32 s37, s27, s32")
        for n in range(4):
            a("buffer_load_dwordx4 v14, s[12:15], s27 offen offset:%d sc1 lds" % (n * 1024))
        a("s_add_u32 s36, s36, s32")
        a("s_mov_b32 m0, s36")
        a("s_mov_b64 exec, 0xffffffff")
        a("buffer_load_dwordx4 v14, s[12:15], s37 offen sc1 lds")
        a("s_mov_b64 exec, -1")
        a("s_add_u32 s26, s26, 128")
        a("s_add_u32 s27, s27, 18432")
        a("s_add_u32 s33, s33, %d" % SLOT)
        a("s_cmp_eq_u32 s33, %d" % (R * SLOT))
        a("s_cselect_b32 s33, 0, s33")
    a.label("%s_lloop" % name)
    issue2()
    a("s_cmp_eq_u32 s34, 8")
    a("s_cbranch_scc1 %s_hk0" % name)
    a("s_cmp_eq_u32 s34, 18")
    a("s_cbranch_scc1 %s_hk1" % name)
    a("s_cmp_eq_u32 s34, 21")
    a("s_cbranch_scc1 %s_hk2" % name)
    a("s_waitcnt vmcnt(9)")
    a.label("%s_lcont" % name)
    a("s_barrier")
    a("s_add_u32 s34, s34, 1")
    a("s_cmp_lt_u32 s34, 32")
    a("s_cbranch_scc1 %s_lloop" % name)
    a("s_branch %s_ldone" % name)
    a.label("%s_hk0" % name)
    a("v_mov_b32 v27, 1")
    a("s_mov_b64 exec, 1")
    a("ds_add_rtn_u32 v28, v26, v27 offset:8")
    a("s_waitcnt lgkmcnt(0)")
    a("v_readfirstlane_b32 s36, v28")
    a("s_cmp_lg_u32 s36, 3")
    a("s_cbranch_scc1 %s_hk0x" % name)
    a("s_and_b32 s36, s2, 15")
    a("s_lshl_b32 s36, s36, 2")
    a("s_add_u32 s36, s36, 128")
    a("v_mov_b32 v28, s36")
    a("buffer_atomic_add v27, v28, s[60:63], 0 offen sc1")
    a.label("%s_hk0x" % name)
    a("s_mov_b64 exec, -1")
    a("s_waitcnt vmcnt(9)")
    a("s_branch %s_lcont" % name)
    a.label("%s_hk1" % name)
    a("v_and_b32 v28, 15, v2")
    a("v_lshlrev_b32 v28, 2, v28")
    a("buffer_load_dword v29, v28, s[60:63], 0 offen offset:128 sc1")
    a("s_waitcnt vmcnt(10)")
    a("s_branch %s_lcont" % name)
    a.label("%s_hk2" % name)
    a("s_mov_b32 s52, 0")
    a.label("%s_hk2l" % name)
    a("v_cmp_gt_u32 vcc, 16, v29")
    a("s_add_u32 s52, s52, 1")
    a("s_cmp_gt_u32 s52, %d" % SPIN_MAX)
    a("s_cbranch_scc1 %s_hk2g" % name)
    a("s_cbranch_vccz %s_hk2g" % name)
    a("s_sleep 16")
    a("buffer_load_dword v29, v28, s[60:63], 0 offen offset:128 sc1")
    a("s_waitcnt vmcnt(0)")
    a("s_branch %s_hk2l" % name)
    a.label("%s_hk2g" % name)
    nconv = emit_conv_loads(a, " sc1")
    a("s_waitcnt vmcnt(%d)" % (9 + nconv))
    a("s_branch %s_lcont" % name)
    a.label("%s_ldone" % name)
    a("s_waitcnt vmcnt(0)")
    a("s_barrier")
    a("s_mov_b32 s26, s53")
    a("s_and_b32 s27, s3, 1")
    a("s_mul_i32 s27, s27, %d" % CJ_SIZE)
    a("s_lshr_b32 s36, s3, 1")
    a("s_mul_i32 s36, s36, %d" % SLOT)
    a("s_add_u32 s27, s27, s36")
    a("s_add_u32 s27, s27, %d" % RB)
    def mid():
        a("s_barrier")
        a("s_setprio 0")
    sv = set(DBG); DBG.discard("stamp")
    emit_conv_job(a, name, mid)
    DBG.update(sv)
    G.stamp_rt(a, 1)
    a.label("%s_end" % name)
    a("s_endpgm")
    return a.text(), kernel_desc(name, 256, 256), (name, 256, 512, LDSB)

def gen_kf2(name="k1_kernel", R=4):
    a = Asm()
    RB = 4096; SLOT = 34816; TREG = 16384; FS = 288; RST = 0
    LDSB = RB + R * SLOT
    LC = 2048
    ZFLG = 0x2D00000
    from gen3 import emit_conv_loads, emit_conv_job, CJ_SIZE
    def capture(f, *args):
        lb = len(a.lines); f(*args); out = a.lines[lb:]; del a.lines[lb:]; return out
    kernel_begin(a, name)
    a("s_load_dwordx2 s[80:81], s[0:1], 0")
    a("s_load_dwordx2 s[4:5], s[0:1], 56")
    a("s_load_dwordx2 s[6:7], s[0:1], 104")
    a("s_load_dwordx2 s[18:19], s[0:1], 96")
    a("s_cmp_ge_u32 s2, 256")
    a("s_cbranch_scc1 %s_end" % name)
    a("v_lshrrev_b32 v1, 6, v0")
    a("v_and_b32 v2, 63, v0")
    a("v_readfirstlane_b32 s3, v1")
    G2.tile_ij(a)
    a("s_lshr_b32 s98, s3, 2")
    a("s_mov_b32 s54x, 0".replace("s54x", "s99"))
    a("s_and_b32 s3, s3, 3")
    a("s_lshr_b32 s24, s3, 1")
    a("s_and_b32 s25, s3, 1")
    a("v_and_b32 v3, 15, v2")
    VT = 204; VF = 208
    def loader_setup():
        a("v_lshrrev_b32 v5, 3, v2")
        a("v_and_b32 v4, 7, v2")
        a("s_lshl_b32 s36, s3, 5")
        a("v_add_u32 v5, s36, v5")
        a("v_lshrrev_b32 v7, 4, v2")
        a("v_xor_b32 v7, v7, v4")
        a("v_mul_u32_u24 v6, 1152, v5")
        a("v_lshl_add_u32 v%d, v7, 4, v6" % VT)
        a("v_xor_b32 v%d, 64, v%d" % (VT + 1, VT))
        a("v_add_u32 v%d, %d, v%d" % (VT + 1, 9216 - 1024, VT + 1))
        a("v_add_u32 v%d, %d, v%d" % (VT + 2, 2 * (9216 - 1024), VT))
        a("v_add_u32 v%d, %d, v%d" % (VT + 3, 2 * (9216 - 1024), VT + 1))
        a("s_lshl_b32 s84, s3, 12")
        a("s_add_u32 s84, s84, %d" % RB)
        a("s_lshl_b32 s85, s3, 9")
        a("s_add_u32 s85, s85, %d" % (RB + TREG + 16384))
    def loader_setup2():
        for n in range(5):
            if n < 4:
                a("s_lshl_b32 s36, s3, 8")
                a("s_add_u32 s36, s36, %d" % (64 * n))
            else:
                a("s_lshl_b32 s36, s3, 5")
                a("s_add_u32 s36, s36, 1024")
            a("v_add_u32 v6, s36, v2")
            a("v_mul_u32_u24 v7, 3641, v6")
            a("v_lshrrev_b32 v7, 16, v7")
            a("v_mul_u32_u24 v8, 18, v7")
            a("v_sub_u32 v8, v6, v8")
            a("v_and_b32 v9, 35, v7")
            a("v_bfe_u32 v6, v7, 2, 2")
            a("v_lshl_add_u32 v9, v6, 3, v9")
            a("v_bfe_u32 v6, v7, 4, 1")
            a("v_lshl_add_u32 v9, v6, 2, v9")
            a("v_mul_u32_u24 v9, 9216, v9")
            a("v_lshl_add_u32 v%d, v8, 4, v9" % (VF + n))
            if 0 < n < 4: a("v_subrev_u32 v%d, %d, v%d" % (VF + n, 1024 * n, VF + n))
    def issueT(g):
        st = g % 9
        a("s_add_u32 s86, s84, %d" % ((g % R) * SLOT))
        a("s_mov_b32 m0, s86")
        a("s_add_u32 s87, s82, %d" % (128 * st))
        for n in range(4):
            a("buffer_load_dwordx4 v%d, s[28:31], s87 offen offset:%d lds" % (VT + n, 1024 * n))
    def issueF(g):
        st = g % 9
        a("s_add_u32 s86, s84, %d" % ((g % R) * SLOT + TREG))
        a("s_mov_b32 m0, s86")
        a("s_add_u32 s87, s83, %d" % (64 * 9216 * st + (4608 if g < 9 else 0)))
        for n in range(4):
            a("buffer_load_dwordx4 v%d, s[8:11], s87 offen offset:%d lds" % (VF + n, 1024 * n))
        a("s_add_u32 s86, s85, %d" % ((g % R) * SLOT))
        a("s_mov_b32 m0, s86")
        a("s_mov_b64 exec, 0xffffffff")
        a("buffer_load_dwordx4 v%d, s[8:11], s87 offen lds" % (VF + 4))
        a("s_mov_b64 exec, -1")
    def srds_main():
        srd(a, 28, 80, 2048 * 576 * 2)
        srd(a, 8, 4, 576 * 4608 * 2)
        srd(a, 12, 6, WS_BYTES)
        srd(a, 60, 18, 256)
        a("s_mul_i32 s82, s22, %d" % (128 * 1152))
        a("s_mul_i32 s83, s23, 288")
    ACC = 128; FB = [16, 52]; CS = 216; ONE = 236
    vTa = [4, 5]; vTb = [6, 7]; vF = 8; vFh = 9
    bTa = [88, 89]; bTb = [90, 91]; bF = 92; bFh = 93
    def mma_setup():
        a("v_lshrrev_b32 v10, 4, v2")
        a("v_lshrrev_b32 v11, 1, v3")
        a("v_xor_b32 v10, v10, v11")
        a("v_lshlrev_b32 v10, 4, v10")
        a("v_lshl_add_u32 v10, v3, 7, v10")
        a("s_lshl_b32 s26, s24, 13")
        a("s_add_u32 s26, s26, %d" % RB)
        a("v_add_u32 v10, s26, v10")
        a("s_lshl_b32 s26, s25, 12")
        a("v_add_u32 v%d, s26, v10" % bTa[0])
        a("s_xor_b32 s26, s26, 4096")
        a("v_add_u32 v%d, s26, v10" % bTb[0])
        a("v_xor_b32 v%d, 64, v%d" % (bTa[1], bTa[0]))
        a("v_xor_b32 v%d, 64, v%d" % (bTb[1], bTb[0]))
        a("v_lshrrev_b32 v10, 2, v2")
        a("v_mul_u32_u24 v10, %d, v10" % FS)
        a("v_and_b32 v11, 3, v2")
        a("v_lshl_add_u32 v10, v11, 3, v10")
        a("v_add_u32 v10, %d, v10" % (RB + TREG))
        a("s_mul_i32 s26, s25, 160")
        a("v_add_u32 v%d, s26, v10" % bF)
        a("v_add_u32 v%d, 128, v10" % bFh)
        for r in range(ACC, ACC + 72): a("v_mov_b32 v%d, 0" % r)
        for r in range(CS, CS + 20): a("v_mov_b32 v%d, 0" % r)
        for r in range(ONE, ONE + 4): a("v_mov_b32 v%d, 0x3f803f80" % r)
    def mma_addr(slot):
        a("s_mov_b32 s27, %d" % (slot * SLOT))
        for d, s_ in ((vTa[0], bTa[0]), (vTb[0], bTb[0]), (vTa[1], bTa[1]), (vTb[1], bTb[1]), (vF, bF), (vFh, bFh)):
            a("v_add_u32 v%d, s27, v%d" % (d, s_))
    core = G.Core(a, ACC, FB[0], FB[1], FS, TREG, vTa, vTb, vF, vFh)
    trk = core.trk
    a("s_cmp_eq_u32 s98, 0")
    a("s_cbranch_scc1 %s_A0" % name)
    a("s_setprio 3")
    loader_setup()
    a("s_waitcnt lgkmcnt(0)")
    srds_main()
    vm = VmTracker(a)
    def issue(g, vmx):
        issueT(g); issueF(g); vmx.issue("S%d" % g, 9)
    issueT(0)
    loader_setup2()
    issueF(0); vm.issue("S0", 9)
    issue(1, vm); issue(2, vm); issue(3, vm)
    a("s_add_u32 s3, s3, 4"); stamp_setup(a, 1); stamp(a, 0); a("s_sub_u32 s3, s3, 4")
    mma_setup()
    RA = 96; XB = 112
    for r in range(RA, RA + 16): a("v_mov_b32 v%d, 0" % r)
    a("v_lshrrev_b32 v10, 4, v2")
    a("v_lshrrev_b32 v11, 1, v3")
    a("v_xor_b32 v10, v10, v11")
    a("v_lshlrev_b32 v10, 4, v10")
    a("v_lshl_add_u32 v10, v3, 7, v10")
    a("v_add_u32 v12, s84, v10")
    a("v_xor_b32 v13, 64, v12")
    def rs_rd(g):
        a("v_add_u32 v10, %d, v12" % ((g % R) * SLOT))
        a("v_add_u32 v11, %d, v13" % ((g % R) * SLOT))
        for h in range(2):
            for n in range(2):
                a("ds_read_b128 %s, v%d offset:%d" % (vr(XB + 8 * h + 4 * n), 10 + h, 2048 * n))
    def rs_do():
        for h in range(2):
            for n in range(2):
                x = XB + 8 * h + 4 * n
                a("v_mfma_f32_16x16x32_bf16 %s, %s, %s, %s" % (vr(RA + 4 * n), vr(ONE), vr(x), vr(RA + 4 * n)))
                a("v_mfma_f32_16x16x32_bf16 %s, %s, %s, %s" % (vr(RA + 8 + 4 * n), vr(x), vr(x), vr(RA + 8 + 4 * n)))
    def interleave(dma, comp, vmx=None):
        groups = []; cur = []
        for l in dma:
            cur.append(l)
            if "buffer_load" in l and not any("exec, 0xffffffff" in x for x in cur[-2:]):
                groups.append(cur); cur = []
            elif "exec, -1" in l:
                groups.append(cur); cur = []
        if cur: groups.append(cur)
        ns = max(1, len(groups))
        per = (len(comp) + ns - 1) // ns
        for g in groups:
            a.lines.extend(g)
            a.lines.extend(comp[:per]); comp = comp[per:]
        a.lines.extend(comp)
    vm.wait(["S0"])
    a("s_barrier")
    stamp(a, 1)
    rs_rd(0)
    vm.wait(["S1"])
    a("s_barrier")
    for k in range(9):
        a("s_waitcnt lgkmcnt(0)")
        dma = capture(lambda: (issueT(k + 3), issueF(k + 3))) if k >= 1 else []
        interleave(dma, capture(rs_do))
        if k >= 1: vm.issue("S%d" % (k + 3), 9)
        if k < 8:
            rs_rd(k + 1)
        else:
            a("s_nop 7")
            a("v_lshrrev_b32 v10, 4, v2")
            a("v_lshrrev_b32 v11, 2, v3")
            a("v_and_b32 v12, 3, v3")
            for n in range(2):
                G_ = RA + 8 + 4 * n
                for r in range(1, 4):
                    a("v_cmp_eq_u32 vcc, %d, v12" % r)
                    a("s_nop 1")
                    a("v_cndmask_b32 v%d, v%d, v%d, vcc" % (G_, G_, G_ + r))
            ML = 112
            for n in range(2):
                emit_ln_finish(a, RA + 4 * n, RA + 8 + 4 * n, 576, ML + 2 * n, ML + 2 * n + 1, 120)
                a("v_mov_b32 v%d, v%d" % (117 + 2 * n, ML + 2 * n + 1))
                a("v_sub_f32 v%d, 0, v%d" % (116 + 2 * n, ML + 2 * n))
            a("s_lshl_b32 s35, s3, 8")
            a("v_lshlrev_b32 v13, 3, v3")
            a("v_add_u32 v12, s35, v13")
            a("v_cmp_eq_u32 vcc, v10, v11")
            a("s_and_saveexec_b64 s[36:37], vcc")
            for n in range(2):
                a("ds_write_b64 v12, %s offset:%d" % (vr(116 + 2 * n, 2), RST + 128 * n))
            a("s_mov_b64 exec, s[36:37]")
            a("s_cmp_lg_u32 s23, 0")
            a("s_cbranch_scc1 %s_nost1" % name)
            a("s_lshl_b32 s35, s22, 7")
            a("s_lshl_b32 s36, s3, 5")
            a("s_add_u32 s35, s35, s36")
            a("s_lshl_b32 s35, s35, 3")
            a("s_add_u32 s35, s35, 0x%x" % STATS1)
            a("v_mov_b32 v11, 0x7ffffff0")
            a("v_cndmask_b32 v13, v11, v13, vcc")
            for n in range(2):
                a("buffer_store_dwordx2 %s, v13, s[12:15], s35 offen offset:%d" % (vr(ML + 2 * n, 2), 128 * n))
            a.label("%s_nost1" % name)
            mma_addr(9 % R)
            a("s_mov_b32 s33, 0")
            a("s_setprio 0")
        vm.wait(["S%d" % (k + 2)], "lgkmcnt(0)" if k == 8 else "")
        if k < 8: a("s_barrier")
    a("s_branch %s_mma" % name)
    a.label("%s_A0" % name)
    emit_code_prefetch(a, name)
    a("s_load_dwordx4 s[64:67], s[0:1], 8")
    a("s_load_dwordx2 s[76:77], s[0:1], 24")
    a("s_load_dwordx2 s[78:79], s[0:1], 64")
    a("s_waitcnt lgkmcnt(0)")
    srds_main()
    srd(a, 68, 66, 2048 * 576 * 2)
    a("s_mov_b32 s88, s64"); a("s_mov_b32 s89, s65")
    srd(a, 64, 88, 2048 * 576 * 2)
    srd(a, 72, 76, 576 * 8)
    a("s_mov_b32 s41, s2")
    emit_kv_loads(a)
    a("s_cmp_ge_u32 s2, 32")
    a("s_cbranch_scc1 %s_kv1" % name)
    a("s_add_u32 s41, s2, 256")
    emit_kv_loads(a, 128, 140, 148, 152, 153)
    a.label("%s_kv1" % name)
    loader_setup(); loader_setup2()
    a("s_mov_b32 s39, 0x%x" % KVT)
    a("s_waitcnt vmcnt(0)")
    a.label("%s_kv2" % name)
    emit_kv_compute(a, wait=False, store=False)
    a("buffer_store_dwordx4 v[120:123], v12, s[12:15], s39 offen sc1")
    a("buffer_store_dwordx4 v[124:127], v13, s[12:15], s39 offen sc1")
    a("s_cmp_lt_u32 s41, 256")
    a("s_cbranch_scc1 %s_kv3" % name)
    a("s_mov_b32 s41, 0")
    for n in range(11): a("v_mov_b32 v%d, v%d" % (16 + n, 128 + n))
    for n in range(8): a("v_mov_b32 v%d, v%d" % (32 + n, 140 + n))
    for n in range(4): a("v_mov_b32 v%d, v%d" % (44 + n, 148 + n))
    a("v_mov_b32 v56, v152"); a("v_mov_b32 v57, v153")
    a("s_branch %s_kv2" % name)
    a.label("%s_kv3" % name)
    mma_setup()
    stamp_setup(a, 1); stamp(a, 0)
    def gran_addr():
        a("v_lshrrev_b32 v10, 4, v2")
        a("s_lshl_b32 s36, s25, 1")
        a("v_add_u32 v11, s36, v10")
        a("v_and_b32 v11, 3, v11")
        a("v_lshl_add_u32 v11, v11, 4, v3")
        a("v_lshlrev_b32 v94, 8, v11")
        a("s_lshl_b32 s59, s22, 7")
        a("s_lshl_b32 s36, s24, 6")
        a("s_add_u32 s59, s59, s36")
        a("s_lshl_b32 s59, s59, 8")
        a("s_add_u32 s59, s59, 0x%x" % STATS2)
        a("s_lshl_b32 s36, s23, 1")
        a("s_add_u32 s36, s36, s25")
        a("s_lshl_b32 s36, s36, 3")
        a("s_add_u32 s58, s36, s59")
    gran_addr()
    a("v_mov_b32 v12, 0"); a("v_mov_b32 v13, 0x80000000")
    a("buffer_store_dwordx2 v[12:13], v94, s[12:15], s58 offen sc1")
    a("s_lshl_b32 s36, s22, 4")
    a("s_add_u32 s36, s36, s23")
    a("s_lshl_b32 s36, s36, 8")
    a("s_add_u32 s97, s36, 0x%x" % ZFLG)
    a("v_mov_b32 v10, %d" % LC)
    a("v_mov_b32 v12, 0"); a("v_mov_b32 v13, 0")
    a("s_mov_b64 exec, 1")
    a("buffer_store_dword v12, v12, s[12:15], s97 offen sc1")
    a("s_mov_b64 exec, -1")
    a("ds_write_b64 v10, v[12:13]")
    a("ds_write_b64 v10, v[12:13] offset:8")
    mma_addr(0)
    a("s_mov_b32 s33, 0")
    a("s_waitcnt lgkmcnt(0)")
    a("s_barrier")
    stamp(a, 1)
    a.label("%s_mma" % name)
    core.prime(0, core.reads(0, 0))
    trk.drain()
    nocs = [False]
    def mfmas(buf):
        L = []
        for ft in range(5):
            A = core.F(buf, ft)
            for tt in range(4 if ft < 4 else 2):
                c = core.accr(ft, tt); B = core.T(buf, tt)
                L.append(("v_mfma_f32_16x16x32_bf16 %s, %s, %s, %s" % (vr(c), vr(A), vr(B), vr(c)), list(range(A, A + 4)) + list(range(B, B + 4))))
            if not nocs[0]: L.append(("v_mfma_f32_16x16x32_bf16 %s, %s, %s, %s" % (vr(CS + 4 * ft), vr(A), vr(ONE), vr(CS + 4 * ft)), list(range(A, A + 4))))
        return L
    def phase(buf, pend):
        for (m, regs) in mfmas(buf):
            trk.need(regs)
            a(m)
            while pend:
                k, t = pend.pop(0)
                if k == "x":
                    a(t)
                    if t.startswith("s_"): continue
                else:
                    a(t[0]); trk.issue(t[1])
                break
        for k, t in pend:
            if k == "x": a(t)
            else: a(t[0]); trk.issue(t[1])
    def iteration(vw=True):
        if vw: a("s_waitcnt vmcnt(0)")
        a("s_barrier")
        rd = [("r", t) for t in core.reads(1, 1)]
        upd = ["s_add_u32 s27, s27, %d" % SLOT, "s_cmp_eq_u32 s27, %d" % (R * SLOT), "s_cselect_b32 s27, 0, s27"]
        tail = ["v_add_u32 v%d, s27, v%d" % (d, s_) for d, s_ in ((vTa[0], bTa[0]), (vF, bF), (vTb[0], bTb[0]), (vFh, bFh))]
        phase(0, rd[:1] + [("x", u) for u in upd] + rd[1:] + [("x", u) for u in tail])
        rd = [("r", t) for t in core.reads(0, 0)]
        tail = ["v_add_u32 v%d, s27, v%d" % (d, s_) for d, s_ in ((vTa[1], bTa[1]), (vTb[1], bTb[1]))] + ["s_add_u32 s33, s33, 1"]
        phase(1, rd + [("x", u) for u in tail])
    a.label("%s_cloop" % name)
    lb = len(a.lines); iteration(); st = copy.deepcopy(trk.out); del a.lines[lb:]; trk.out = copy.deepcopy(st)
    iteration()
    assert [sorted(x) for x in trk.out] == [sorted(x) for x in st]
    a("s_cmp_lt_u32 s33, 9")
    a("s_cbranch_scc1 %s_cloop" % name)
    trk.drain()
    stamp(a, 2)
    MR = 100; T = 72; ZP = 16
    def epi_in():
        gelu_consts(a)
        a("s_lshl_b32 s36, s24, 9")
        a("s_lshl_b32 s37, s25, 8")
        a("s_add_u32 s38, s36, s37")
        a("s_xor_b32 s37, s37, 256")
        a("s_add_u32 s39, s36, s37")
        a("v_lshlrev_b32 v10, 3, v3")
        a("v_add_u32 v11, s38, v10")
        a("ds_read_b64 %s, v11 offset:%d" % (vr(MR, 2), RST))
        a("ds_read_b64 %s, v11 offset:%d" % (vr(MR + 2, 2), RST + 128))
        a("v_add_u32 v11, s39, v10")
        a("ds_read_b64 %s, v11 offset:%d" % (vr(MR + 4, 2), RST))
        a("ds_read_b64 %s, v11 offset:%d" % (vr(MR + 6, 2), RST + 128))
        a("s_waitcnt lgkmcnt(0)")
    S = [108, 110, 52, 54]; Q = [109, 111, 53, 55]
    def gelu_ft(ft, stats):
        tts = range(4 if ft < 4 else 2)
        emit_fold_gelu(a, [(core.accr(ft, tt), CS + 4 * ft, MR + 2 * tt, ZP + 2 * tidx(ft, tt)) for tt in tts], T)
        if stats:
            for d in range(2):
                for tt in tts:
                    p = ZP + 2 * tidx(ft, tt) + d
                    a("v_dot2_f32_bf16 v%d, v%d, v%d, v%d" % (S[tt], p, ONE, S[tt]))
                    a("v_dot2_f32_bf16 v%d, v%d, v%d, v%d" % (Q[tt], p, p, Q[tt]))
    a("s_cmp_eq_u32 s98, 0")
    a("s_cbranch_scc1 %s_A1" % name)
    a("s_barrier")
    a("s_load_dwordx2 s[94:95], s[0:1], 80")
    a("s_load_dwordx2 s[92:93], s[0:1], 72")
    epi_in()
    srd(a, 76, 94, 2304 * 576 * 2)
    srd(a, 28, 92, 2048 * 2)
    a("v_and_b32 v0, 255, v0")
    for ft in range(5): gelu_ft(ft, False)
    Z1R = 200; BI = 236
    for r_ in range(36): a("v_mov_b32 v%d, v%d" % (Z1R + r_, ZP + r_))
    stamp(a, 3)
    a("s_mov_b32 s42, s2")
    emit_wot_loads(a, 100, 112, 720, 3)
    a("s_lshl_b32 s36, s22, 7")
    a("s_lshl_b32 s37, s24, 6")
    a("s_add_u32 s36, s36, s37")
    a("v_lshlrev_b32 v11, 1, v3")
    a("s_lshl_b32 s37, s25, 6")
    a("s_lshl_b32 s38, s36, 1")
    a("s_add_u32 s39, s38, s37")
    a("s_xor_b32 s37, s37, 64")
    a("s_add_u32 s36, s38, s37")
    a("buffer_load_ushort v96, v11, s[28:31], s39 offen")
    a("buffer_load_ushort v97, v11, s[28:31], s39 offen offset:32")
    a("buffer_load_ushort v98, v11, s[28:31], s36 offen")
    a("buffer_load_ushort v99, v11, s[28:31], s36 offen offset:32")
    for r in range(ACC, ACC + 72): a("v_mov_b32 v%d, 0" % r)
    mma_addr(0)
    a("s_mov_b32 s33, 0")
    stamp(a, 4)
    a("s_barrier")
    stamp(a, 5)
    core.prime(0, core.reads(0, 0))
    trk.drain()
    nocs[0] = True
    a.label("%s_gloop" % name)
    lb = len(a.lines); iteration(False); st = copy.deepcopy(trk.out); del a.lines[lb:]; trk.out = copy.deepcopy(st)
    iteration(False)
    assert [sorted(x) for x in trk.out] == [sorted(x) for x in st]
    a("s_cmp_lg_u32 s33, 3")
    a("s_cbranch_scc1 %s_ghk" % name)
    a("s_waitcnt vmcnt(0)")
    for n in range(3):
        a("buffer_store_dwordx4 %s, v%d, s[12:15], s40 offen" % (vr(100 + 4 * n), 112 + n))
    for tt in range(4): a("v_lshlrev_b32 v%d, 16, v%d" % (BI + 2 * tt, 96 + tt))
    a.label("%s_ghk" % name)
    a("s_cmp_lt_u32 s33, 32")
    a("s_cbranch_scc1 %s_gloop" % name)
    trk.drain()
    stamp(a, 6)
    G3.emit_k2_epilogue(a, core, Z1R, BI)
    stamp(a, 7)
    G.stamp_rt(a, 1)
    a("s_branch %s_end" % name)
    a.label("%s_A1" % name)
    a("s_setprio 2")
    vmA = VmTracker(a)
    PB = 132
    def aux_head():
        epi_in()
        for tt in range(4):
            a("v_mov_b32 v%d, 0" % S[tt]); a("v_mov_b32 v%d, 0" % Q[tt])
    def aux_pub():
        a("s_nop 2")
        emit_xg_reduce(a, S + Q, 72)
        a("v_lshrrev_b32 v10, 4, v2")
        for g in range(1, 4):
            a("v_cmp_eq_u32 vcc, %d, v10" % g)
            a("s_nop 1")
            a("v_cndmask_b32 v%d, v%d, v%d, vcc" % (S[0], S[0], S[g]))
            a("v_cndmask_b32 v%d, v%d, v%d, vcc" % (Q[0], Q[0], Q[g]))
        a("v_and_b32 v%d, 0x7fffffff, v%d" % (Q[0], Q[0]))
        a("buffer_store_dwordx2 v[%d:%d], v94, s[12:15], s58 offen sc1" % (S[0], Q[0]))
    chunks = [capture(aux_head) + capture(gelu_ft, 0, True), capture(gelu_ft, 1, True), capture(gelu_ft, 2, True),
              capture(gelu_ft, 3, True), capture(gelu_ft, 4, True) + capture(aux_pub)]
    KD = 172
    for k in range(9, 18):
        a("s_barrier")
        if k == 9:
            a("s_cmp_lg_u32 s3, 0")
            a("s_cbranch_scc1 %s_nosig" % name)
            a("v_mov_b32 v10, 1")
            a("s_lshl_b32 s36, s22, 2")
            a("v_mov_b32 v11, s36")
            a("s_mov_b64 exec, 1")
            a("buffer_atomic_add v10, v11, s[60:63], 0 offen sc1")
            a("s_mov_b64 exec, -1")
            a.label("%s_nosig" % name)
        g = k + 3
        dma = capture(lambda: (issueT(g), issueF(g))) if g < 18 else []
        comp = chunks[k - 9] if k - 9 < len(chunks) else []
        interleave(dma, comp)
        if k == 13: vmA.issue("pub", 1)
        if g < 18: vmA.issue("S%d" % g, 9)
        if k == 14:
            srd(a, 92, 78, 2048 * 2048 * 2)
            a("v_lshrrev_b32 v10, 4, v2")
            a("v_lshlrev_b32 v10, 12, v10")
            a("v_lshl_add_u32 v10, v3, 4, v10")
            a("s_lshl_b32 s40, s22, 7")
            a("s_lshl_b32 s36, s3, 5")
            a("s_add_u32 s40, s40, s36")
            a("s_lshl_b32 s40, s40, 12")
            a("s_lshl_b32 s36, s23, 8")
            a("s_add_u32 s40, s40, s36")
            for n in range(8):
                a("buffer_load_dwordx4 v[200:203], v10, s[92:95], s40 offen")
                if n < 7: a("s_add_u32 s40, s40, 16384")
            vmA.issue("wp", 8)
            a("s_lshl_b32 s36, s22, 2")
            a("v_mov_b32 v199, s36")
            a("buffer_load_dword v198, v199, s[60:63], 0 offen sc1"); vmA.issue("cnt", 1)
        if k + 2 < 18 and k + 2 >= 12:
            vmA.wait(["S%d" % (k + 2)])
    a("s_barrier")
    stamp(a, 3)
    a("s_load_dwordx4 s[88:91], s[0:1], 32")
    a("v_lshrrev_b32 v10, 4, v2")
    a("v_lshlrev_b32 v95, 8, v3")
    a("v_lshl_add_u32 v95, v10, 6, v95")
    a("s_lshl_b32 s33, s25, 13")
    a("s_add_u32 s52, s59, s33")
    a("s_xor_b32 s33, s33, 8192")
    a("s_add_u32 s53, s59, s33")
    a("s_add_u32 s42, s52, 4096")
    a("s_add_u32 s43, s53, 4096")
    Z2 = ZP
    a("s_waitcnt vmcnt(0)")
    GB = [128, 144, 160, 176]
    a("v_mov_b32 v4, v95")
    def gather():
        for tt in range(4):
            for q in range(4):
                a("buffer_load_dwordx4 %s, v4, s[12:15], s%d offen offset:%d sc1" % (vr(GB[tt] + 4 * q), (52, 42, 53, 43)[tt], 16 * q))
    gather()
    a("s_mov_b32 s40, 0")
    a("s_waitcnt vmcnt(0)")
    a.label("%s_chk" % name)
    a("v_subrev_u32 v11, 16, v198")
    for tt in range(4):
        for r in range(GB[tt] + 1, GB[tt] + 16, 4):
            a("v_or3_b32 v11, v11, v%d, v%d" % (r, r + 2))
    a("v_cmp_gt_i32 vcc, 0, v11")
    a("s_add_u32 s40, s40, 1")
    a("s_cmp_gt_u32 s40, %d" % SPIN_MAX)
    a("s_cbranch_scc1 %s_ok" % name)
    a("s_cbranch_vccz %s_ok" % name)
    a("s_sleep 32")
    a("buffer_load_dword v198, v199, s[60:63], 0 offen sc1")
    a("s_waitcnt vmcnt(0)")
    gather()
    a("s_waitcnt vmcnt(0)")
    a("s_branch %s_chk" % name)
    a.label("%s_ok" % name)
    stamp(a, 5)
    for tt in range(4):
        b = GB[tt]
        for st_ in (8, 4, 2):
            for q in range(0, st_, 2):
                a("v_pk_add_f32 %s, %s, %s" % (vr(b + q, 2), vr(b + q, 2), vr(b + q + st_, 2)))
    emit_xg_reduce(a, [GB[tt] + e for tt in range(4) for e in range(2)], 72)
    for tt in range(4):
        b = GB[tt]
        emit_ln_finish(a, b, b + 1, 2304, b + 2, MR + 2 * tt, b + 4)
        a("v_mul_f32 v%d, -v%d, v%d" % (MR + 2 * tt + 1, b + 2, MR + 2 * tt))
    a("v_lshrrev_b32 v10, 4, v2")
    a("v_lshrrev_b32 v11, 2, v2"); a("v_and_b32 v11, 1, v11"); a("v_lshlrev_b32 v11, 4, v11")
    a("v_lshrrev_b32 v5, 3, v2"); a("v_and_b32 v5, 1, v5"); a("v_lshl_add_u32 v11, v5, 2, v11")
    a("v_and_b32 v5, 3, v2"); a("v_add_u32 v11, v11, v5")
    a("v_mul_u32_u24 v11, 288, v11")
    a("v_lshrrev_b32 v5, 1, v10"); a("v_lshl_add_u32 v11, v5, 4, v11")
    a("v_and_b32 v5, 1, v10")
    a("v_lshl_add_u32 v6, v5, 5, v11")
    a("v_mul_u32_u24 v5, 2304, v5")
    a("v_add_u32 v9, v11, v5")
    a("s_lshl_b32 s33, s23, 5")
    a("s_lshl_b32 s36, s22, 1")
    a("s_add_u32 s33, s33, s36")
    a("s_add_u32 s33, s33, s24")
    a("s_mul_i32 s33, s33, 18432")
    if ZIMG: a("s_add_u32 s33, s33, 0x%x" % ZIMG)
    a("s_mul_i32 s36, s25, 9216")
    a("s_add_u32 s37, s33, s36")
    a("s_xor_b32 s36, s36, 9216")
    a("s_add_u32 s38, s33, s36")
    a("s_add_u32 s39, s37, 128")
    a("s_mul_i32 s36, s25, 160")
    a("s_add_u32 s37, s37, s36")
    a("s_add_u32 s38, s38, s36")
    def norm_pair(nA, ttA, nB, ttB, O):
        for q, (n, tt) in enumerate(((nA, ttA), (nB, ttB))):
            for d in range(2):
                z = Z2 + 2 * n + d; t = T + 4 * q + 2 * d
                a("v_lshlrev_b32 v%d, 16, v%d" % (t, z))
                a("v_and_b32 v%d, 0xffff0000, v%d" % (t + 1, z))
        for q, (n, tt) in enumerate(((nA, ttA), (nB, ttB))):
            for d in range(2):
                t = T + 4 * q + 2 * d
                a("v_pk_fma_f32 %s, %s, %s, %s op_sel:[0,0,1] op_sel_hi:[1,0,1]" % (vr(t, 2), vr(t, 2), vr(MR + 2 * tt, 2), vr(MR + 2 * tt, 2)))
        for q in range(2):
            for d in range(2):
                t = T + 4 * q + 2 * d
                a("v_cvt_pk_bf16_f32 v%d, v%d, v%d" % (O + 2 * q + d, t, t + 1))
        a("s_nop 1")
        a("v_permlane16_swap_b32 v%d, v%d" % (O, O + 2))
        a("v_permlane16_swap_b32 v%d, v%d" % (O + 1, O + 3))
    cnt = 0
    for pr in range(2):
        for tt in range(4):
            O = 200 + 4 * cnt; cnt += 1
            norm_pair(tidx(2 * pr, tt), tt, tidx(2 * pr + 1, tt), tt, O)
            a("s_nop 0")
            a("buffer_store_dwordx4 %s, v6, s[12:15], s%d offen offset:%d" % (vr(O), 37 if tt < 2 else 38, (tt & 1) * 2304 + 64 * pr) + " sc1")
    O = 200 + 4 * cnt
    norm_pair(16, 0, 17, 1, O)
    a("s_nop 0")
    a("buffer_store_dwordx4 %s, v9, s[12:15], s39 offen sc1" % vr(O))
    stamp(a, 6)
    a("s_setprio 3")
    srd(a, 8, 78, 2048 * 2048 * 2)
    a("v_lshrrev_b32 v3, 3, v2")
    a("s_lshl_b32 s24, s3, 5")
    a("v_add_u32 v3, s24, v3")
    a("v_and_b32 v4, 7, v2")
    a("v_lshrrev_b32 v6, 4, v2")
    a("v_xor_b32 v6, v6, v4")
    a("v_lshlrev_b32 v6, 4, v6")
    a("v_lshl_add_u32 v10, v3, 12, v6")
    a("v_xor_b32 v11, 64, v10")
    a("v_add_u32 v11, %d, v11" % (32768 - 1024))
    a("v_add_u32 v12, %d, v10" % (2 * (32768 - 1024)))
    a("v_add_u32 v13, %d, v11" % (2 * (32768 - 1024)))
    a("v_lshlrev_b32 v14, 4, v2")
    a("s_lshl_b32 s26, s22, 19")
    a("s_mul_i32 s27, s23, %d" % (32 * 18432))
    a("s_lshl_b32 s24, s3, 12")
    a("s_add_u32 s27, s27, s24")
    if ZIMG: a("s_add_u32 s27, s27, 0x%x" % ZIMG)
    a("s_lshl_b32 s25, s3, 9")
    a("s_sub_u32 s32, s25, s24")
    a("s_add_u32 s32, s32, 16384")
    a("s_add_u32 s24, s24, %d" % RB)
    a("s_waitcnt vmcnt(0) lgkmcnt(0)")
    a("v_mov_b32 v26, %d" % LC)
    a("v_mov_b32 v27, 1")
    a("s_mov_b64 exec, 1")
    a("ds_add_rtn_u32 v28, v26, v27")
    a("s_waitcnt lgkmcnt(0)")
    a("v_readfirstlane_b32 s36, v28")
    a("s_cmp_lg_u32 s36, 3")
    a("s_cbranch_scc1 %s_nozs" % name)
    a("v_mov_b32 v28, 0")
    a("buffer_store_dword v27, v28, s[12:15], s97 offen sc1")
    a.label("%s_nozs" % name)
    a("s_mov_b64 exec, -1")
    stamp(a, 7)
    srd(a, 16, 88, 576 * 2048 * 2)
    srd(a, 84, 90, 576 * 2)
    for g in range(4):
        a("s_add_u32 s35, s24, %d" % (g * SLOT))
        a("s_mov_b32 m0, s35")
        a("s_add_u32 s36, s26, %d" % (128 * g))
        for n in range(4):
            a("buffer_load_dwordx4 v%d, s[8:11], s36 offen offset:%d lds" % (10 + n, n * 1024))
    a("s_mov_b32 s34, 0")
    a("s_cmp_lg_u32 s3, 0")
    a("s_cbranch_scc1 %s_pl" % name)
    a("v_and_b32 v28, 15, v2")
    a("v_lshlrev_b32 v30, 2, v28")
    a("v_lshlrev_b32 v28, 12, v28")
    a("s_lshl_b32 s52, s23, 8")
    a("s_add_u32 s52, s52, 0x%x" % ZFLG)
    a.label("%s_pz0" % name)
    a("buffer_load_dword v31, v30, s[60:63], 0 offen sc1")
    a("s_add_u32 s34, s34, 1")
    a("s_waitcnt vmcnt(0)")
    a("v_cmp_gt_u32 vcc, 16, v31")
    a("s_cmp_gt_u32 s34, %d" % SPIN_MAX)
    a("s_cbranch_scc1 %s_pz" % name)
    a("s_cbranch_vccz %s_pz" % name)
    a("s_sleep 32")
    a("s_branch %s_pz0" % name)
    a.label("%s_pz" % name)
    a("buffer_load_dword v29, v28, s[12:15], s52 offen sc1")
    a("s_add_u32 s34, s34, 1")
    a("s_waitcnt vmcnt(0)")
    a("v_cmp_ne_u32 vcc, 1, v29")
    a("s_cmp_gt_u32 s34, %d" % SPIN_MAX)
    a("s_cbranch_scc1 %s_pzx" % name)
    a("s_cbranch_vccz %s_pzx" % name)
    a("s_sleep 8")
    a("s_branch %s_pz" % name)
    a.label("%s_pzx" % name)
    a("v_mov_b32 v27, 1")
    a("ds_write_b32 v26, v27 offset:4")
    a("s_branch %s_pgo" % name)
    a.label("%s_pl" % name)
    a("ds_read_b32 v27, v26 offset:4")
    a("s_add_u32 s34, s34, 1")
    a("s_waitcnt lgkmcnt(0)")
    a("v_readfirstlane_b32 s36, v27")
    a("s_cmp_gt_u32 s34, %d" % (SPIN_MAX * 20))
    a("s_cbranch_scc1 %s_pgo" % name)
    a("s_cmp_lg_u32 s36, 0")
    a("s_cbranch_scc1 %s_pgo" % name)
    a("s_sleep 2")
    a("s_branch %s_pl" % name)
    a.label("%s_pgo" % name)
    stamp(a, 8)
    for g in range(4):
        a("s_add_u32 s35, s24, %d" % (g * SLOT + TREG))
        a("s_mov_b32 m0, s35")
        a("s_add_u32 s36, s27, %d" % (18432 * g))
        a("s_add_u32 s37, s36, s32")
        for n in range(4):
            a("buffer_load_dwordx4 v14, s[12:15], s36 offen offset:%d sc1 lds" % (n * 1024))
        a("s_add_u32 s35, s35, s32")
        a("s_mov_b32 m0, s35")
        a("s_mov_b64 exec, 0xffffffff")
        a("buffer_load_dwordx4 v14, s[12:15], s37 offen sc1 lds")
        a("s_mov_b64 exec, -1")
    a("s_add_u32 s26, s26, 512")
    a("s_add_u32 s27, s27, %d" % (4 * 18432))
    a("s_mov_b32 s33, 0")
    a("s_lshl_b32 s43, s2, 2")
    a("s_add_u32 s43, s43, s3")
    a("s_and_b32 s53, s43, 1")
    a("s_sub_u32 s36, s43, 448")
    a("s_lshr_b32 s37, s43, 1")
    a("s_cmp_ge_u32 s43, 896")
    a("s_cselect_b32 s43, s36, s37")
    a("s_cselect_b32 s53, 2, s53")
    a("s_waitcnt vmcnt(15)")
    a("s_barrier")
    a("s_waitcnt vmcnt(10)")
    a("s_barrier")
    a("s_waitcnt vmcnt(5)")
    a("s_barrier")
    a("s_mov_b32 s34, 4")
    def issue2():
        a("s_add_u32 s35, s33, s24")
        a("s_mov_b32 m0, s35")
        a("s_add_u32 s36, s35, %d" % TREG)
        for n in range(4):
            a("buffer_load_dwordx4 v%d, s[8:11], s26 offen offset:%d lds" % (10 + n, n * 1024))
        a("s_mov_b32 m0, s36")
        a("s_add_u32 s37, s27, s32")
        for n in range(4):
            a("buffer_load_dwordx4 v14, s[12:15], s27 offen offset:%d sc1 lds" % (n * 1024))
        a("s_add_u32 s36, s36, s32")
        a("s_mov_b32 m0, s36")
        a("s_mov_b64 exec, 0xffffffff")
        a("buffer_load_dwordx4 v14, s[12:15], s37 offen sc1 lds")
        a("s_mov_b64 exec, -1")
        a("s_add_u32 s26, s26, 128")
        a("s_add_u32 s27, s27, 18432")
        a("s_add_u32 s33, s33, %d" % SLOT)
        a("s_cmp_eq_u32 s33, %d" % (R * SLOT))
        a("s_cselect_b32 s33, 0, s33")
    a.label("%s_lloop" % name)
    issue2()
    a("s_cmp_eq_u32 s34, 18")
    a("s_cbranch_scc1 %s_hk1" % name)
    a("s_cmp_eq_u32 s34, 21")
    a("s_cbranch_scc1 %s_hk2" % name)
    a("s_waitcnt vmcnt(9)")
    a.label("%s_lcont" % name)
    a("s_barrier")
    a("s_add_u32 s34, s34, 1")
    a("s_cmp_lt_u32 s34, 32")
    a("s_cbranch_scc1 %s_lloop" % name)
    a("s_branch %s_ldone" % name)
    a.label("%s_hk1" % name)
    a("v_and_b32 v28, 15, v2")
    a("v_lshlrev_b32 v28, 2, v28")
    a("buffer_load_dword v29, v28, s[60:63], 0 offen sc1")
    a("s_waitcnt vmcnt(10)")
    a("s_branch %s_lcont" % name)
    a.label("%s_hk2" % name)
    a("s_mov_b32 s52, 0")
    a.label("%s_hk2l" % name)
    a("v_cmp_gt_u32 vcc, 16, v29")
    a("s_add_u32 s52, s52, 1")
    a("s_cmp_gt_u32 s52, %d" % SPIN_MAX)
    a("s_cbranch_scc1 %s_hk2g" % name)
    a("s_cbranch_vccz %s_hk2g" % name)
    a("s_sleep 16")
    a("buffer_load_dword v29, v28, s[60:63], 0 offen sc1")
    a("s_waitcnt vmcnt(0)")
    a("s_branch %s_hk2l" % name)
    a.label("%s_hk2g" % name)
    nconv = emit_conv_loads(a, " sc1")
    a("s_waitcnt vmcnt(%d)" % (9 + nconv))
    a("s_branch %s_lcont" % name)
    a.label("%s_ldone" % name)
    a("s_waitcnt vmcnt(0)")
    a("s_barrier")
    a("s_mov_b32 s26, s53")
    a("s_and_b32 s27, s3, 1")
    a("s_mul_i32 s27, s27, %d" % CJ_SIZE)
    a("s_lshr_b32 s36, s3, 1")
    a("s_mul_i32 s36, s36, %d" % SLOT)
    a("s_add_u32 s27, s27, s36")
    a("s_add_u32 s27, s27, %d" % RB)
    def mid():
        a("s_barrier")
        a("s_setprio 0")
    sv = set(DBG); DBG.discard("stamp")
    emit_conv_job(a, name, mid)
    DBG.update(sv)
    G.stamp_rt(a, 1)
    a.label("%s_end" % name)
    a("s_endpgm")
    return a.text(), kernel_desc(name, 256, 256), (name, 256, 512, LDSB)

def gen_k1i(name="k1_kernel", R=4):
    a = Asm()
    RB = 4096; SLOT = 34816; TREG = 16384; FS = 288; RST = 0
    LDSB = RB + R * SLOT
    def capture(f, *args):
        lb = len(a.lines); f(*args); out = a.lines[lb:]; del a.lines[lb:]; return out
    kernel_begin(a, name)
    a("s_load_dwordx2 s[80:81], s[0:1], 0")
    a("s_load_dwordx2 s[4:5], s[0:1], 56")
    a("s_load_dwordx2 s[6:7], s[0:1], 104")
    a("s_load_dwordx2 s[18:19], s[0:1], 96")
    a("s_cmp_ge_u32 s2, 256")
    a("s_cbranch_scc1 %s_end" % name)
    a("v_lshrrev_b32 v1, 6, v0")
    a("v_and_b32 v2, 63, v0")
    a("v_readfirstlane_b32 s3, v1")
    G2.tile_ij(a)
    a("s_lshr_b32 s98, s3, 2")
    a("s_mov_b32 s54x, 0".replace("s54x", "s99"))
    a("s_and_b32 s3, s3, 3")
    a("s_lshr_b32 s24, s3, 1")
    a("s_and_b32 s25, s3, 1")
    a("v_and_b32 v3, 15, v2")
    VT = 204; VF = 208
    def loader_setup():
        a("v_lshrrev_b32 v5, 3, v2")
        a("v_and_b32 v4, 7, v2")
        a("s_lshl_b32 s36, s3, 5")
        a("v_add_u32 v5, s36, v5")
        a("v_lshrrev_b32 v7, 4, v2")
        a("v_xor_b32 v7, v7, v4")
        a("v_mul_u32_u24 v6, 1152, v5")
        a("v_lshl_add_u32 v%d, v7, 4, v6" % VT)
        a("v_xor_b32 v%d, 64, v%d" % (VT + 1, VT))
        a("v_add_u32 v%d, %d, v%d" % (VT + 1, 9216 - 1024, VT + 1))
        a("v_add_u32 v%d, %d, v%d" % (VT + 2, 2 * (9216 - 1024), VT))
        a("v_add_u32 v%d, %d, v%d" % (VT + 3, 2 * (9216 - 1024), VT + 1))
        a("s_lshl_b32 s84, s3, 12")
        a("s_add_u32 s84, s84, %d" % RB)
        a("s_lshl_b32 s85, s3, 9")
        a("s_add_u32 s85, s85, %d" % (RB + TREG + 16384))
    def loader_setup2():
        for n in range(5):
            if n < 4:
                a("s_lshl_b32 s36, s3, 8")
                a("s_add_u32 s36, s36, %d" % (64 * n))
            else:
                a("s_lshl_b32 s36, s3, 5")
                a("s_add_u32 s36, s36, 1024")
            a("v_add_u32 v6, s36, v2")
            a("v_mul_u32_u24 v7, 3641, v6")
            a("v_lshrrev_b32 v7, 16, v7")
            a("v_mul_u32_u24 v8, 18, v7")
            a("v_sub_u32 v8, v6, v8")
            a("v_and_b32 v9, 35, v7")
            a("v_bfe_u32 v6, v7, 2, 2")
            a("v_lshl_add_u32 v9, v6, 3, v9")
            a("v_bfe_u32 v6, v7, 4, 1")
            a("v_lshl_add_u32 v9, v6, 2, v9")
            a("v_mul_u32_u24 v9, 9216, v9")
            a("v_lshl_add_u32 v%d, v8, 4, v9" % (VF + n))
            if 0 < n < 4: a("v_subrev_u32 v%d, %d, v%d" % (VF + n, 1024 * n, VF + n))
    def issueT(g):
        st = g % 9
        a("s_add_u32 s86, s84, %d" % ((g % R) * SLOT))
        a("s_mov_b32 m0, s86")
        a("s_add_u32 s87, s82, %d" % (128 * st))
        for n in range(4):
            a("buffer_load_dwordx4 v%d, s[28:31], s87 offen offset:%d lds" % (VT + n, 1024 * n))
    def issueF(g):
        st = g % 9
        a("s_add_u32 s86, s84, %d" % ((g % R) * SLOT + TREG))
        a("s_mov_b32 m0, s86")
        a("s_add_u32 s87, s83, %d" % (64 * 9216 * st + (4608 if g < 9 else 0)))
        for n in range(4):
            a("buffer_load_dwordx4 v%d, s[8:11], s87 offen offset:%d lds" % (VF + n, 1024 * n))
        a("s_add_u32 s86, s85, %d" % ((g % R) * SLOT))
        a("s_mov_b32 m0, s86")
        a("s_mov_b64 exec, 0xffffffff")
        a("buffer_load_dwordx4 v%d, s[8:11], s87 offen lds" % (VF + 4))
        a("s_mov_b64 exec, -1")
    def srds_main():
        srd(a, 28, 80, 2048 * 576 * 2)
        srd(a, 8, 4, 576 * 4608 * 2)
        srd(a, 12, 6, WS_BYTES)
        srd(a, 60, 18, 256)
        a("s_mul_i32 s82, s22, %d" % (128 * 1152))
        a("s_mul_i32 s83, s23, 288")
    ACC = 128; FB = [16, 52]; CS = 216; ONE = 236
    vTa = [4, 5]; vTb = [6, 7]; vF = 8; vFh = 9
    bTa = [88, 89]; bTb = [90, 91]; bF = 92; bFh = 93
    def mma_setup():
        a("v_lshrrev_b32 v10, 4, v2")
        a("v_lshrrev_b32 v11, 1, v3")
        a("v_xor_b32 v10, v10, v11")
        a("v_lshlrev_b32 v10, 4, v10")
        a("v_lshl_add_u32 v10, v3, 7, v10")
        a("s_lshl_b32 s26, s24, 13")
        a("s_add_u32 s26, s26, %d" % RB)
        a("v_add_u32 v10, s26, v10")
        a("s_lshl_b32 s26, s25, 12")
        a("v_add_u32 v%d, s26, v10" % bTa[0])
        a("s_xor_b32 s26, s26, 4096")
        a("v_add_u32 v%d, s26, v10" % bTb[0])
        a("v_xor_b32 v%d, 64, v%d" % (bTa[1], bTa[0]))
        a("v_xor_b32 v%d, 64, v%d" % (bTb[1], bTb[0]))
        a("v_lshrrev_b32 v10, 2, v2")
        a("v_mul_u32_u24 v10, %d, v10" % FS)
        a("v_and_b32 v11, 3, v2")
        a("v_lshl_add_u32 v10, v11, 3, v10")
        a("v_add_u32 v10, %d, v10" % (RB + TREG))
        a("s_mul_i32 s26, s25, 160")
        a("v_add_u32 v%d, s26, v10" % bF)
        a("v_add_u32 v%d, 128, v10" % bFh)
        for r in range(ACC, ACC + 72): a("v_mov_b32 v%d, 0" % r)
        for r in range(CS, CS + 20): a("v_mov_b32 v%d, 0" % r)
        for r in range(ONE, ONE + 4): a("v_mov_b32 v%d, 0x3f803f80" % r)
    def mma_addr(slot):
        a("s_mov_b32 s27, %d" % (slot * SLOT))
        for d, s_ in ((vTa[0], bTa[0]), (vTb[0], bTb[0]), (vTa[1], bTa[1]), (vTb[1], bTb[1]), (vF, bF), (vFh, bFh)):
            a("v_add_u32 v%d, s27, v%d" % (d, s_))
    core = G.Core(a, ACC, FB[0], FB[1], FS, TREG, vTa, vTb, vF, vFh)
    trk = core.trk
    a("s_cmp_eq_u32 s98, 0")
    a("s_cbranch_scc1 %s_A0" % name)
    a("s_setprio 3")
    loader_setup()
    a("s_waitcnt lgkmcnt(0)")
    srds_main()
    vm = VmTracker(a)
    def issue(g, vmx):
        issueT(g); issueF(g); vmx.issue("S%d" % g, 9)
    issueT(0)
    loader_setup2()
    issueF(0); vm.issue("S0", 9)
    issue(1, vm); issue(2, vm); issue(3, vm)
    a("s_add_u32 s3, s3, 4"); stamp_setup(a, 1); stamp(a, 0); a("s_sub_u32 s3, s3, 4")
    for r in range(ONE, ONE + 4): a("v_mov_b32 v%d, 0x3f803f80" % r)
    RA = 96; XB = 112
    for r in range(RA, RA + 16): a("v_mov_b32 v%d, 0" % r)
    a("v_lshrrev_b32 v10, 4, v2")
    a("v_lshrrev_b32 v11, 1, v3")
    a("v_xor_b32 v10, v10, v11")
    a("v_lshlrev_b32 v10, 4, v10")
    a("v_lshl_add_u32 v10, v3, 7, v10")
    a("v_add_u32 v12, s84, v10")
    a("v_xor_b32 v13, 64, v12")
    def rs_rd(g):
        a("v_add_u32 v10, %d, v12" % ((g % R) * SLOT))
        a("v_add_u32 v11, %d, v13" % ((g % R) * SLOT))
        for h in range(2):
            for n in range(2):
                a("ds_read_b128 %s, v%d offset:%d" % (vr(XB + 8 * h + 4 * n), 10 + h, 2048 * n))
    def rs_do():
        for h in range(2):
            for n in range(2):
                x = XB + 8 * h + 4 * n
                a("v_mfma_f32_16x16x32_bf16 %s, %s, %s, %s" % (vr(RA + 4 * n), vr(ONE), vr(x), vr(RA + 4 * n)))
                a("v_mfma_f32_16x16x32_bf16 %s, %s, %s, %s" % (vr(RA + 8 + 4 * n), vr(x), vr(x), vr(RA + 8 + 4 * n)))
    def interleave(dma, comp, vmx=None):
        groups = []; cur = []
        for l in dma:
            cur.append(l)
            if "buffer_load" in l and not any("exec, 0xffffffff" in x for x in cur[-2:]):
                groups.append(cur); cur = []
            elif "exec, -1" in l:
                groups.append(cur); cur = []
        if cur: groups.append(cur)
        ns = max(1, len(groups))
        per = (len(comp) + ns - 1) // ns
        for g in groups:
            a.lines.extend(g)
            a.lines.extend(comp[:per]); comp = comp[per:]
        a.lines.extend(comp)
    vm.wait(["S0"])
    a("s_barrier")
    stamp(a, 1)
    rs_rd(0)
    vm.wait(["S1"])
    a("s_barrier")
    for k in range(9):
        a("s_waitcnt lgkmcnt(0)")
        dma = capture(lambda: (issueT(k + 3), issueF(k + 3))) if (k >= 1 and k + 3 < 9) else []
        interleave(dma, capture(rs_do))
        if k >= 1 and k + 3 < 9: vm.issue("S%d" % (k + 3), 9)
        if k < 8:
            rs_rd(k + 1)
        else:
            a("s_nop 7")
            a("v_lshrrev_b32 v10, 4, v2")
            a("v_lshrrev_b32 v11, 2, v3")
            a("v_and_b32 v12, 3, v3")
            for n in range(2):
                G_ = RA + 8 + 4 * n
                for r in range(1, 4):
                    a("v_cmp_eq_u32 vcc, %d, v12" % r)
                    a("s_nop 1")
                    a("v_cndmask_b32 v%d, v%d, v%d, vcc" % (G_, G_, G_ + r))
            ML = 112
            for n in range(2):
                emit_ln_finish(a, RA + 4 * n, RA + 8 + 4 * n, 576, ML + 2 * n, ML + 2 * n + 1, 120)
                a("v_mov_b32 v%d, v%d" % (117 + 2 * n, ML + 2 * n + 1))
                a("v_sub_f32 v%d, 0, v%d" % (116 + 2 * n, ML + 2 * n))
            a("s_lshl_b32 s35, s3, 8")
            a("v_lshlrev_b32 v13, 3, v3")
            a("v_add_u32 v12, s35, v13")
            a("v_cmp_eq_u32 vcc, v10, v11")
            a("s_and_saveexec_b64 s[36:37], vcc")
            for n in range(2):
                a("ds_write_b64 v12, %s offset:%d" % (vr(116 + 2 * n, 2), RST + 128 * n))
            a("s_mov_b64 exec, s[36:37]")
            a("s_cmp_lg_u32 s23, 0")
            a("s_cbranch_scc1 %s_nost1" % name)
            a("s_lshl_b32 s35, s22, 7")
            a("s_lshl_b32 s36, s3, 5")
            a("s_add_u32 s35, s35, s36")
            a("s_lshl_b32 s35, s35, 3")
            a("s_add_u32 s35, s35, 0x%x" % STATS1)
            a("v_mov_b32 v11, 0x7ffffff0")
            a("v_cndmask_b32 v13, v11, v13, vcc")
            for n in range(2):
                a("buffer_store_dwordx2 %s, v13, s[12:15], s35 offen offset:%d" % (vr(ML + 2 * n, 2), 128 * n))
            a.label("%s_nost1" % name)
        if k < 8:
            vm.wait(["S%d" % (k + 2)])
            a("s_barrier")
    a("s_waitcnt lgkmcnt(0)")
    a("s_barrier")
    a("s_load_dwordx4 s[64:67], s[0:1], 8")
    a("s_load_dwordx2 s[76:77], s[0:1], 24")
    a("s_load_dwordx2 s[90:91], s[0:1], 64")
    a("s_mul_i32 s36, s3, 13312")
    a("s_add_u32 s36, s36, %d" % RB)
    a("v_lshlrev_b32 v10, 4, v2")
    a("v_add_u32 v11, s36, v10")
    a("s_waitcnt lgkmcnt(0)")
    srd(a, 68, 66, 2048 * 576 * 2)
    a("s_mov_b32 s88, s64"); a("s_mov_b32 s89, s65")
    srd(a, 64, 88, 2048 * 576 * 2)
    srd(a, 72, 76, 576 * 8)
    srd(a, 92, 90, 2048 * 2048 * 2)
    a("s_barrier")
    n_ = 0
    for ft in range(4):
        for tt in range(2):
            a("ds_read_b128 %s, v11 offset:%d" % (vr(core.accr(ft, tt)), 1024 * n_)); n_ += 1
    for ft in range(4):
        a("ds_read_b128 %s, v11 offset:%d" % (vr(CS + 4 * ft), 1024 * n_)); n_ += 1
    a("s_branch %s_epi" % name)
    a.label("%s_A0" % name)
    emit_code_prefetch(a, name)
    a("s_load_dwordx4 s[64:67], s[0:1], 8")
    a("s_load_dwordx2 s[76:77], s[0:1], 24")
    a("s_load_dwordx2 s[90:91], s[0:1], 64")
    mma_setup()
    a("s_waitcnt lgkmcnt(0)")
    srds_main()
    srd(a, 68, 66, 2048 * 576 * 2)
    a("s_mov_b32 s88, s64"); a("s_mov_b32 s89, s65")
    srd(a, 64, 88, 2048 * 576 * 2)
    srd(a, 72, 76, 576 * 8)
    srd(a, 92, 90, 2048 * 2048 * 2)
    stamp_setup(a, 1); stamp(a, 0)
    def gran_addr():
        a("v_lshrrev_b32 v10, 4, v2")
        a("s_lshl_b32 s36, s25, 1")
        a("v_add_u32 v11, s36, v10")
        a("v_and_b32 v11, 3, v11")
        a("v_lshl_add_u32 v11, v11, 4, v3")
        a("v_lshlrev_b32 v94, 8, v11")
        a("s_lshl_b32 s59, s22, 7")
        a("s_lshl_b32 s36, s24, 6")
        a("s_add_u32 s59, s59, s36")
        a("s_lshl_b32 s59, s59, 8")
        a("s_add_u32 s59, s59, 0x%x" % STATS2)
        a("s_lshl_b32 s36, s23, 1")
        a("s_add_u32 s36, s36, s25")
        a("s_lshl_b32 s36, s36, 3")
        a("s_add_u32 s58, s36, s59")
    gran_addr()
    a("v_mov_b32 v12, 0"); a("v_mov_b32 v13, 0x80000000")
    a("buffer_store_dwordx2 v[12:13], v94, s[12:15], s58 offen sc1")
    mma_addr(0)
    a("s_mov_b32 s33, 0")
    a("s_barrier")
    stamp(a, 1)
    a.label("%s_mma" % name)
    core.prime(0, core.reads(0, 0))
    trk.drain()
    def mfmas(buf):
        L = []
        for ft in range(5):
            A = core.F(buf, ft)
            for tt in range(4 if ft < 4 else 2):
                c = core.accr(ft, tt); B = core.T(buf, tt)
                L.append(("v_mfma_f32_16x16x32_bf16 %s, %s, %s, %s" % (vr(c), vr(A), vr(B), vr(c)), list(range(A, A + 4)) + list(range(B, B + 4))))
            L.append(("v_mfma_f32_16x16x32_bf16 %s, %s, %s, %s" % (vr(CS + 4 * ft), vr(A), vr(ONE), vr(CS + 4 * ft)), list(range(A, A + 4))))
        return L
    def phase(buf, pend):
        for (m, regs) in mfmas(buf):
            trk.need(regs)
            a(m)
            while pend:
                k, t = pend.pop(0)
                if k == "x":
                    a(t)
                    if t.startswith("s_"): continue
                else:
                    a(t[0]); trk.issue(t[1])
                break
        for k, t in pend:
            if k == "x": a(t)
            else: a(t[0]); trk.issue(t[1])
    def iteration():
        a("s_waitcnt vmcnt(0)")
        a("s_barrier")
        rd = [("r", t) for t in core.reads(1, 1)]
        upd = ["s_add_u32 s27, s27, %d" % SLOT, "s_cmp_eq_u32 s27, %d" % (R * SLOT), "s_cselect_b32 s27, 0, s27"]
        tail = ["v_add_u32 v%d, s27, v%d" % (d, s_) for d, s_ in ((vTa[0], bTa[0]), (vF, bF), (vTb[0], bTb[0]), (vFh, bFh))]
        phase(0, rd[:1] + [("x", u) for u in upd] + rd[1:] + [("x", u) for u in tail])
        rd = [("r", t) for t in core.reads(0, 0)]
        tail = ["v_add_u32 v%d, s27, v%d" % (d, s_) for d, s_ in ((vTa[1], bTa[1]), (vTb[1], bTb[1]))] + ["s_add_u32 s33, s33, 1"]
        phase(1, rd + [("x", u) for u in tail])
    a.label("%s_cloop" % name)
    lb = len(a.lines); iteration(); st = copy.deepcopy(trk.out); del a.lines[lb:]; trk.out = copy.deepcopy(st)
    iteration()
    assert [sorted(x) for x in trk.out] == [sorted(x) for x in st]
    a("s_cmp_lt_u32 s33, 9")
    a("s_cbranch_scc1 %s_cloop" % name)
    trk.drain()
    stamp(a, 2)
    a("s_waitcnt vmcnt(0)")
    a("s_barrier")
    a("s_cmp_lg_u32 s3, 0")
    a("s_cbranch_scc1 %s_nosig" % name)
    a("v_mov_b32 v10, 1")
    a("s_lshl_b32 s36, s22, 2")
    a("v_mov_b32 v11, s36")
    a("s_mov_b64 exec, 1")
    a("buffer_atomic_add v10, v11, s[60:63], 0 offen sc1")
    a("s_mov_b64 exec, -1")
    a.label("%s_nosig" % name)
    a("s_mul_i32 s36, s3, 13312")
    a("s_add_u32 s36, s36, %d" % RB)
    a("v_lshlrev_b32 v10, 4, v2")
    a("v_add_u32 v11, s36, v10")
    n_ = 0
    for ft in range(4):
        for tt in range(2):
            a("ds_write_b128 v11, %s offset:%d" % (vr(core.accr(ft, tt + 2)), 1024 * n_)); n_ += 1
    for ft in range(4):
        a("ds_write_b128 v11, %s offset:%d" % (vr(CS + 4 * ft), 1024 * n_)); n_ += 1
    a("s_waitcnt lgkmcnt(0)")
    a("s_barrier")
    a.label("%s_epi" % name)
    MR = 100; T = 72; ZP = 200
    gelu_consts(a)
    a("s_xor_b32 s52, s98, s25")
    a("s_lshl_b32 s36, s24, 9")
    a("s_lshl_b32 s37, s52, 8")
    a("s_add_u32 s38, s36, s37")
    a("v_lshlrev_b32 v10, 3, v3")
    a("v_add_u32 v11, s38, v10")
    a("ds_read_b64 %s, v11 offset:%d" % (vr(MR, 2), RST))
    a("ds_read_b64 %s, v11 offset:%d" % (vr(MR + 2, 2), RST + 128))
    a("s_lshl_b32 s41, s2, 1")
    a("s_add_u32 s41, s41, s98")
    a("v_and_b32 v0, 255, v0")
    a("s_cmp_ge_u32 s41, 288")
    a("s_cbranch_scc1 %s_nokv1" % name)
    emit_kv_loads(a)
    a.label("%s_nokv1" % name)
    S = [108, 110]; Q = [109, 111]
    for r_ in range(108, 112): a("v_mov_b32 v%d, 0" % r_)
    a("s_waitcnt lgkmcnt(0)")
    ZPf = lambda n: (240 + 2 * n) if n < 8 else (196 + 2 * (n - 8))
    def dots(lst):
        for d in range(2):
            for (ft, tt) in lst:
                p = ZPf(2 * ft + tt) + d
                a("v_dot2_f32_bf16 v%d, v%d, v%d, v%d" % (S[tt], p, ONE, S[tt]))
                a("v_dot2_f32_bf16 v%d, v%d, v%d, v%d" % (Q[tt], p, p, Q[tt]))
    a("s_cmp_lg_u32 s98, 0")
    a("s_cbranch_scc1 %s_nohalf" % name)
    lst = [(4, 0), (4, 1)]
    emit_fold_gelu(a, [(core.accr(ft, tt), CS + 4 * ft, MR + 2 * tt, ZPf(2 * ft + tt)) for ft, tt in lst], T)
    dots(lst)
    a.label("%s_nohalf" % name)
    for f0 in (0, 2):
        lst = [(ft, tt) for ft in (f0, f0 + 1) for tt in range(2)]
        emit_fold_gelu(a, [(core.accr(ft, tt), CS + 4 * ft, MR + 2 * tt, ZPf(2 * ft + tt)) for ft, tt in lst], T)
        dots(lst)
    a("s_nop 2")
    emit_xg_reduce(a, S + Q, 72)
    a("s_lshl_b32 s59, s22, 7")
    a("s_lshl_b32 s36, s24, 6")
    a("s_add_u32 s59, s59, s36")
    a("s_lshl_b32 s36, s52, 5")
    a("s_add_u32 s59, s59, s36")
    a("s_lshl_b32 s59, s59, 8")
    a("s_add_u32 s59, s59, 0x%x" % STATS2)
    a("s_lshl_b32 s36, s23, 1")
    a("s_add_u32 s36, s36, s25")
    a("s_lshl_b32 s36, s36, 3")
    a("s_add_u32 s58, s36, s59")
    a("v_lshrrev_b32 v10, 4, v2")
    a("v_lshlrev_b32 v11, 8, v2")
    a("v_cmp_gt_u32 vcc, 32, v2")
    a("v_mov_b32 v12, 0x7ffffff0")
    a("v_cmp_eq_u32 s[36:37], 1, v10")
    a("v_cndmask_b32 v11, v12, v11, vcc")
    a("s_nop 0")
    a("v_cndmask_b32 v108, v108, v110, s[36:37]")
    a("v_cndmask_b32 v109, v109, v111, s[36:37]")
    a("v_and_b32 v109, 0x7fffffff, v109")
    a("buffer_store_dwordx2 v[108:109], v11, s[12:15], s58 offen sc1")
    a("s_setprio 0")
    stamp(a, 3)
    a("s_lshl_b32 s33, s22, 2")
    a("v_mov_b32 v165, s33")
    a("buffer_load_dword v164, v165, s[60:63], 0 offen sc1")
    PB = 128
    a("v_lshlrev_b32 v4, 8, v3")
    a("v_lshl_add_u32 v4, v10, 6, v4")
    a("s_add_u32 s53, s59, 4096")
    a("s_cmp_ge_u32 s41, 288")
    a("s_cbranch_scc1 %s_nokv2" % name)
    a("s_waitcnt vmcnt(2)")
    emit_kv_compute(a, wait=False, store=False)
    a.label("%s_nokv2" % name)
    stamp(a, 4)
    a("s_mov_b32 s40, 0")
    a.label("%s_chk" % name)
    a("s_waitcnt vmcnt(0)")
    for tt in range(2):
        for q in range(4):
            a("buffer_load_dwordx4 %s, v4, s[12:15], s%d offen offset:%d sc1" % (vr(PB + 16 * tt + 4 * q), (59, 53)[tt], 16 * q))
    a("v_subrev_u32 v11, 16, v164")
    a("s_waitcnt vmcnt(0)")
    for r in range(PB + 1, PB + 32, 4):
        a("v_or3_b32 v11, v11, v%d, v%d" % (r, r + 2))
    a("v_cmp_gt_i32 vcc, 0, v11")
    a("s_add_u32 s40, s40, 1")
    a("s_cmp_gt_u32 s40, %d" % SPIN_MAX)
    a("s_cbranch_scc1 %s_ok" % name)
    a("s_cbranch_vccz %s_ok" % name)
    a("s_sleep 24")
    a("buffer_load_dword v164, v165, s[60:63], 0 offen sc1")
    a("s_branch %s_chk" % name)
    a.label("%s_ok" % name)
    stamp(a, 5)
    a("v_lshrrev_b32 v10, 4, v2")
    a("v_lshlrev_b32 v5, 12, v10")
    a("v_lshl_add_u32 v5, v3, 4, v5")
    a("s_lshl_b32 s33, s22, 7")
    a("s_lshl_b32 s36, s3, 5")
    a("s_add_u32 s33, s33, s36")
    a("s_lshl_b32 s36, s98, 4")
    a("s_add_u32 s33, s33, s36")
    a("s_lshl_b32 s33, s33, 12")
    a("s_lshl_b32 s36, s23, 8")
    a("s_add_u32 s33, s33, s36")
    for n in range(4):
        a("buffer_load_dwordx4 v[168:171], v5, s[92:95], s33 offen")
        if n < 3: a("s_add_u32 s33, s33, 16384")
    a("s_cmp_ge_u32 s41, 288")
    a("s_cbranch_scc1 %s_nokv3" % name)
    a("s_mov_b32 s39, 0x%x" % KVT)
    a("buffer_store_dwordx4 v[120:123], v12, s[12:15], s39 offen")
    a("buffer_store_dwordx4 v[124:127], v13, s[12:15], s39 offen")
    a.label("%s_nokv3" % name)
    for tt in range(2):
        b = PB + 16 * tt
        for st_ in (8, 4, 2):
            for q in range(0, st_, 2):
                a("v_pk_add_f32 %s, %s, %s" % (vr(b + q, 2), vr(b + q, 2), vr(b + q + st_, 2)))
    emit_xg_reduce(a, [PB + 16 * tt + e for tt in range(2) for e in range(2)], 72)
    for tt in range(2):
        b = PB + 16 * tt
        emit_ln_finish(a, b, b + 1, 2304, b + 2, MR + 2 * tt, b + 4)
        a("v_mul_f32 v%d, -v%d, v%d" % (MR + 2 * tt + 1, b + 2, MR + 2 * tt))
    a("v_lshrrev_b32 v11, 2, v2"); a("v_and_b32 v11, 1, v11"); a("v_lshlrev_b32 v11, 4, v11")
    a("v_lshrrev_b32 v5, 3, v2"); a("v_and_b32 v5, 1, v5"); a("v_lshl_add_u32 v11, v5, 2, v11")
    a("v_and_b32 v5, 3, v2"); a("v_add_u32 v11, v11, v5")
    a("v_mul_u32_u24 v11, 288, v11")
    a("v_lshrrev_b32 v5, 1, v10"); a("v_lshl_add_u32 v11, v5, 4, v11")
    a("v_and_b32 v5, 1, v10")
    a("v_lshl_add_u32 v6, v5, 5, v11")
    a("v_mul_u32_u24 v5, 2304, v5")
    a("v_add_u32 v9, v11, v5")
    a("s_lshl_b32 s33, s23, 5")
    a("s_lshl_b32 s36, s22, 1")
    a("s_add_u32 s33, s33, s36")
    a("s_add_u32 s33, s33, s24")
    a("s_mul_i32 s33, s33, 18432")
    if ZIMG: a("s_add_u32 s33, s33, 0x%x" % ZIMG)
    a("s_mul_i32 s36, s52, 9216")
    a("s_add_u32 s37, s33, s36")
    a("s_add_u32 s39, s37, 128")
    a("s_mul_i32 s36, s25, 160")
    a("s_add_u32 s37, s37, s36")
    def norm_pair(nA, ttA, nB, ttB, O):
        for q, (n, tt) in enumerate(((nA, ttA), (nB, ttB))):
            for d in range(2):
                z = ZPf(n) + d; t = T + 4 * q + 2 * d
                a("v_lshlrev_b32 v%d, 16, v%d" % (t, z))
                a("v_and_b32 v%d, 0xffff0000, v%d" % (t + 1, z))
        for q, (n, tt) in enumerate(((nA, ttA), (nB, ttB))):
            for d in range(2):
                t = T + 4 * q + 2 * d
                a("v_pk_fma_f32 %s, %s, %s, %s op_sel:[0,0,1] op_sel_hi:[1,0,1]" % (vr(t, 2), vr(t, 2), vr(MR + 2 * tt, 2), vr(MR + 2 * tt, 2)))
        for q in range(2):
            for d in range(2):
                t = T + 4 * q + 2 * d
                a("v_cvt_pk_bf16_f32 v%d, v%d, v%d" % (O + 2 * q + d, t, t + 1))
        a("s_nop 1")
        a("v_permlane16_swap_b32 v%d, v%d" % (O, O + 2))
        a("v_permlane16_swap_b32 v%d, v%d" % (O + 1, O + 3))
    cnt = 0
    for pr in range(2):
        for tt in range(2):
            O = 16 + 4 * cnt; cnt += 1
            norm_pair(2 * (2 * pr) + tt, tt, 2 * (2 * pr + 1) + tt, tt, O)
            a("s_nop 0")
            a("buffer_store_dwordx4 %s, v6, s[12:15], s37 offen offset:%d" % (vr(O), tt * 2304 + 64 * pr))
    a("s_cmp_lg_u32 s98, 0")
    a("s_cbranch_scc1 %s_fin" % name)
    O = 16 + 4 * cnt
    norm_pair(8, 0, 9, 1, O)
    a("s_nop 0")
    a("buffer_store_dwordx4 %s, v9, s[12:15], s39 offen" % vr(O))
    a.label("%s_fin" % name)
    stamp(a, 6)
    G.stamp_rt(a, 1)
    a.label("%s_end" % name)
    a("s_endpgm")
    return a.text(), kernel_desc(name, 256, 256), (name, 256, 512, LDSB)

def gen_k1j(name="k1_kernel", R=4):
    a = Asm()
    RB = 4096; SLOT = 34816; TREG = 16384; FS = 288; RST = 0
    LDSB = RB + R * SLOT
    def capture(f, *args):
        lb = len(a.lines); f(*args); out = a.lines[lb:]; del a.lines[lb:]; return out
    kernel_begin(a, name)
    a("s_load_dwordx2 s[80:81], s[0:1], 0")
    a("s_load_dwordx2 s[4:5], s[0:1], 56")
    a("s_load_dwordx2 s[6:7], s[0:1], 104")
    a("s_load_dwordx2 s[18:19], s[0:1], 96")
    a("s_cmp_ge_u32 s2, 256")
    a("s_cbranch_scc1 %s_end" % name)
    a("v_lshrrev_b32 v1, 6, v0")
    a("v_and_b32 v2, 63, v0")
    a("v_readfirstlane_b32 s3, v1")
    G2.tile_ij(a)
    a("s_lshr_b32 s98, s3, 2")
    a("s_mov_b32 s54x, 0".replace("s54x", "s99"))
    a("s_and_b32 s3, s3, 3")
    a("s_lshr_b32 s24, s3, 1")
    a("s_and_b32 s25, s3, 1")
    a("v_and_b32 v3, 15, v2")
    VT = 204; VF = 208
    def loader_setup():
        a("v_lshrrev_b32 v5, 3, v2")
        a("v_and_b32 v4, 7, v2")
        a("s_lshl_b32 s36, s3, 5")
        a("v_add_u32 v5, s36, v5")
        a("v_lshrrev_b32 v7, 4, v2")
        a("v_xor_b32 v7, v7, v4")
        a("v_mul_u32_u24 v6, 1152, v5")
        a("v_lshl_add_u32 v%d, v7, 4, v6" % VT)
        a("v_xor_b32 v%d, 64, v%d" % (VT + 1, VT))
        a("v_add_u32 v%d, %d, v%d" % (VT + 1, 9216 - 1024, VT + 1))
        a("v_add_u32 v%d, %d, v%d" % (VT + 2, 2 * (9216 - 1024), VT))
        a("v_add_u32 v%d, %d, v%d" % (VT + 3, 2 * (9216 - 1024), VT + 1))
        a("s_lshl_b32 s84, s3, 12")
        a("s_add_u32 s84, s84, %d" % RB)
        a("s_lshl_b32 s85, s3, 9")
        a("s_add_u32 s85, s85, %d" % (RB + TREG + 16384))
    def loader_setup2():
        for n in range(5):
            if n < 4:
                a("s_lshl_b32 s36, s3, 8")
                a("s_add_u32 s36, s36, %d" % (64 * n))
            else:
                a("s_lshl_b32 s36, s3, 5")
                a("s_add_u32 s36, s36, 1024")
            a("v_add_u32 v6, s36, v2")
            a("v_mul_u32_u24 v7, 3641, v6")
            a("v_lshrrev_b32 v7, 16, v7")
            a("v_mul_u32_u24 v8, 18, v7")
            a("v_sub_u32 v8, v6, v8")
            a("v_and_b32 v9, 35, v7")
            a("v_bfe_u32 v6, v7, 2, 2")
            a("v_lshl_add_u32 v9, v6, 3, v9")
            a("v_bfe_u32 v6, v7, 4, 1")
            a("v_lshl_add_u32 v9, v6, 2, v9")
            a("v_mul_u32_u24 v9, 9216, v9")
            a("v_lshl_add_u32 v%d, v8, 4, v9" % (VF + n))
            if 0 < n < 4: a("v_subrev_u32 v%d, %d, v%d" % (VF + n, 1024 * n, VF + n))
    def issueT(g):
        st = g % 9
        a("s_add_u32 s86, s84, %d" % ((g % R) * SLOT))
        a("s_mov_b32 m0, s86")
        a("s_add_u32 s87, s82, %d" % (128 * st))
        for n in range(4):
            a("buffer_load_dwordx4 v%d, s[28:31], s87 offen offset:%d lds" % (VT + n, 1024 * n))
    def issueF(g):
        st = g % 9
        a("s_add_u32 s86, s84, %d" % ((g % R) * SLOT + TREG))
        a("s_mov_b32 m0, s86")
        a("s_add_u32 s87, s83, %d" % (64 * 9216 * st + (4608 if g < 9 else 0)))
        for n in range(4):
            a("buffer_load_dwordx4 v%d, s[8:11], s87 offen offset:%d lds" % (VF + n, 1024 * n))
        a("s_add_u32 s86, s85, %d" % ((g % R) * SLOT))
        a("s_mov_b32 m0, s86")
        a("s_mov_b64 exec, 0xffffffff")
        a("buffer_load_dwordx4 v%d, s[8:11], s87 offen lds" % (VF + 4))
        a("s_mov_b64 exec, -1")
    def srds_main():
        srd(a, 28, 80, 2048 * 576 * 2)
        srd(a, 8, 4, 576 * 4608 * 2)
        srd(a, 12, 6, WS_BYTES)
        srd(a, 60, 18, 256)
        a("s_mul_i32 s82, s22, %d" % (128 * 1152))
        a("s_mul_i32 s83, s23, 288")
    ACC = 128; FB = [16, 52]; CS = 216; ONE = 236
    vTa = [4, 5]; vTb = [6, 7]; vF = 8; vFh = 9
    bTa = [88, 89]; bTb = [90, 91]; bF = 92; bFh = 93
    def mma_setup():
        a("v_lshrrev_b32 v10, 4, v2")
        a("v_lshrrev_b32 v11, 1, v3")
        a("v_xor_b32 v10, v10, v11")
        a("v_lshlrev_b32 v10, 4, v10")
        a("v_lshl_add_u32 v10, v3, 7, v10")
        a("s_lshl_b32 s26, s24, 13")
        a("s_add_u32 s26, s26, %d" % RB)
        a("v_add_u32 v10, s26, v10")
        a("s_lshl_b32 s26, s25, 12")
        a("v_add_u32 v%d, s26, v10" % bTa[0])
        a("s_xor_b32 s26, s26, 4096")
        a("v_add_u32 v%d, s26, v10" % bTb[0])
        a("v_xor_b32 v%d, 64, v%d" % (bTa[1], bTa[0]))
        a("v_xor_b32 v%d, 64, v%d" % (bTb[1], bTb[0]))
        a("v_lshrrev_b32 v10, 2, v2")
        a("v_mul_u32_u24 v10, %d, v10" % FS)
        a("v_and_b32 v11, 3, v2")
        a("v_lshl_add_u32 v10, v11, 3, v10")
        a("v_add_u32 v10, %d, v10" % (RB + TREG))
        a("s_mul_i32 s26, s25, 160")
        a("v_add_u32 v%d, s26, v10" % bF)
        a("v_add_u32 v%d, 128, v10" % bFh)
        for r in range(ACC, ACC + 72): a("v_mov_b32 v%d, 0" % r)
        for r in range(CS, CS + 20): a("v_mov_b32 v%d, 0" % r)
        for r in range(ONE, ONE + 4): a("v_mov_b32 v%d, 0x3f803f80" % r)
    def mma_addr(slot):
        a("s_mov_b32 s27, %d" % (slot * SLOT))
        for d, s_ in ((vTa[0], bTa[0]), (vTb[0], bTb[0]), (vTa[1], bTa[1]), (vTb[1], bTb[1]), (vF, bF), (vFh, bFh)):
            a("v_add_u32 v%d, s27, v%d" % (d, s_))
    core = G.Core(a, ACC, FB[0], FB[1], FS, TREG, vTa, vTb, vF, vFh)
    trk = core.trk
    a("s_cmp_eq_u32 s98, 0")
    a("s_cbranch_scc1 %s_A0" % name)
    a("s_setprio 3")
    loader_setup()
    a("s_waitcnt lgkmcnt(0)")
    srds_main()
    vm = VmTracker(a)
    def issue(g, vmx):
        issueT(g); issueF(g); vmx.issue("S%d" % g, 9)
    issueT(0)
    loader_setup2()
    issueF(0); vm.issue("S0", 9)
    issue(1, vm); issue(2, vm); issue(3, vm)
    a("s_add_u32 s3, s3, 4"); stamp_setup(a, 1); stamp(a, 0); a("s_sub_u32 s3, s3, 4")
    for r in range(ONE, ONE + 4): a("v_mov_b32 v%d, 0x3f803f80" % r)
    RA = 96; XB = 112
    for r in range(RA, RA + 16): a("v_mov_b32 v%d, 0" % r)
    a("v_lshrrev_b32 v10, 4, v2")
    a("v_lshrrev_b32 v11, 1, v3")
    a("v_xor_b32 v10, v10, v11")
    a("v_lshlrev_b32 v10, 4, v10")
    a("v_lshl_add_u32 v10, v3, 7, v10")
    a("v_add_u32 v12, s84, v10")
    a("v_xor_b32 v13, 64, v12")
    def rs_rd(g):
        a("v_add_u32 v10, %d, v12" % ((g % R) * SLOT))
        a("v_add_u32 v11, %d, v13" % ((g % R) * SLOT))
        for h in range(2):
            for n in range(2):
                a("ds_read_b128 %s, v%d offset:%d" % (vr(XB + 8 * h + 4 * n), 10 + h, 2048 * n))
    def rs_do():
        for h in range(2):
            for n in range(2):
                x = XB + 8 * h + 4 * n
                a("v_mfma_f32_16x16x32_bf16 %s, %s, %s, %s" % (vr(RA + 4 * n), vr(ONE), vr(x), vr(RA + 4 * n)))
                a("v_mfma_f32_16x16x32_bf16 %s, %s, %s, %s" % (vr(RA + 8 + 4 * n), vr(x), vr(x), vr(RA + 8 + 4 * n)))
    def interleave(dma, comp, vmx=None):
        groups = []; cur = []
        for l in dma:
            cur.append(l)
            if "buffer_load" in l and not any("exec, 0xffffffff" in x for x in cur[-2:]):
                groups.append(cur); cur = []
            elif "exec, -1" in l:
                groups.append(cur); cur = []
        if cur: groups.append(cur)
        ns = max(1, len(groups))
        per = (len(comp) + ns - 1) // ns
        for g in groups:
            a.lines.extend(g)
            a.lines.extend(comp[:per]); comp = comp[per:]
        a.lines.extend(comp)
    vm.wait(["S0"])
    a("s_barrier")
    stamp(a, 1)
    rs_rd(0)
    vm.wait(["S1"])
    a("s_barrier")
    for k in range(9):
        a("s_waitcnt lgkmcnt(0)")
        dma = capture(lambda: (issueT(k + 3), issueF(k + 3))) if (k >= 1 and k + 3 < 9) else []
        interleave(dma, capture(rs_do))
        if k >= 1 and k + 3 < 9: vm.issue("S%d" % (k + 3), 9)
        if k < 8:
            rs_rd(k + 1)
        else:
            a("s_nop 7")
            a("v_lshrrev_b32 v10, 4, v2")
            a("v_lshrrev_b32 v11, 2, v3")
            a("v_and_b32 v12, 3, v3")
            for n in range(2):
                G_ = RA + 8 + 4 * n
                for r in range(1, 4):
                    a("v_cmp_eq_u32 vcc, %d, v12" % r)
                    a("s_nop 1")
                    a("v_cndmask_b32 v%d, v%d, v%d, vcc" % (G_, G_, G_ + r))
            ML = 112
            for n in range(2):
                emit_ln_finish(a, RA + 4 * n, RA + 8 + 4 * n, 576, ML + 2 * n, ML + 2 * n + 1, 120)
                a("v_mov_b32 v%d, v%d" % (117 + 2 * n, ML + 2 * n + 1))
                a("v_sub_f32 v%d, 0, v%d" % (116 + 2 * n, ML + 2 * n))
            a("s_lshl_b32 s35, s3, 8")
            a("v_lshlrev_b32 v13, 3, v3")
            a("v_add_u32 v12, s35, v13")
            a("v_cmp_eq_u32 vcc, v10, v11")
            a("s_and_saveexec_b64 s[36:37], vcc")
            for n in range(2):
                a("ds_write_b64 v12, %s offset:%d" % (vr(116 + 2 * n, 2), RST + 128 * n))
            a("s_mov_b64 exec, s[36:37]")
            a("s_cmp_lg_u32 s23, 0")
            a("s_cbranch_scc1 %s_nost1" % name)
            a("s_lshl_b32 s35, s22, 7")
            a("s_lshl_b32 s36, s3, 5")
            a("s_add_u32 s35, s35, s36")
            a("s_lshl_b32 s35, s35, 3")
            a("s_add_u32 s35, s35, 0x%x" % STATS1)
            a("v_mov_b32 v11, 0x7ffffff0")
            a("v_cndmask_b32 v13, v11, v13, vcc")
            for n in range(2):
                a("buffer_store_dwordx2 %s, v13, s[12:15], s35 offen offset:%d" % (vr(ML + 2 * n, 2), 128 * n))
            a.label("%s_nost1" % name)
        if k < 8:
            vm.wait(["S%d" % (k + 2)])
            a("s_barrier")
    a("s_waitcnt lgkmcnt(0)")
    a("s_barrier")
    a("s_load_dwordx4 s[64:67], s[0:1], 8")
    a("s_load_dwordx2 s[76:77], s[0:1], 24")
    a("s_load_dwordx2 s[90:91], s[0:1], 64")
    a("s_mul_i32 s36, s3, 13312")
    a("s_add_u32 s36, s36, %d" % RB)
    a("v_lshlrev_b32 v10, 4, v2")
    a("v_add_u32 v11, s36, v10")
    a("s_waitcnt lgkmcnt(0)")
    srd(a, 68, 66, 2048 * 576 * 2)
    a("s_mov_b32 s88, s64"); a("s_mov_b32 s89, s65")
    srd(a, 64, 88, 2048 * 576 * 2)
    srd(a, 72, 76, 576 * 8)
    srd(a, 92, 90, 2048 * 2048 * 2)
    a("s_barrier")
    n_ = 0
    for ft in range(4):
        for tt in range(2):
            a("ds_read_b128 %s, v11 offset:%d" % (vr(core.accr(ft, tt)), 1024 * n_)); n_ += 1
    for ft in range(4):
        a("ds_read_b128 %s, v11 offset:%d" % (vr(CS + 4 * ft), 1024 * n_)); n_ += 1
    a("s_branch %s_epi" % name)
    a.label("%s_A0" % name)
    emit_code_prefetch(a, name)
    a("s_load_dwordx4 s[64:67], s[0:1], 8")
    a("s_load_dwordx2 s[76:77], s[0:1], 24")
    a("s_load_dwordx2 s[90:91], s[0:1], 64")
    mma_setup()
    a("s_waitcnt lgkmcnt(0)")
    srds_main()
    srd(a, 68, 66, 2048 * 576 * 2)
    a("s_mov_b32 s88, s64"); a("s_mov_b32 s89, s65")
    srd(a, 64, 88, 2048 * 576 * 2)
    srd(a, 72, 76, 576 * 8)
    srd(a, 92, 90, 2048 * 2048 * 2)
    stamp_setup(a, 1); stamp(a, 0)
    def gran_addr():
        a("v_lshrrev_b32 v10, 4, v2")
        a("s_lshl_b32 s36, s25, 1")
        a("v_add_u32 v11, s36, v10")
        a("v_and_b32 v11, 3, v11")
        a("v_lshl_add_u32 v11, v11, 4, v3")
        a("v_lshlrev_b32 v94, 8, v11")
        a("s_lshl_b32 s59, s22, 7")
        a("s_lshl_b32 s36, s24, 6")
        a("s_add_u32 s59, s59, s36")
        a("s_lshl_b32 s59, s59, 8")
        a("s_add_u32 s59, s59, 0x%x" % STATS2)
        a("s_lshl_b32 s36, s23, 1")
        a("s_add_u32 s36, s36, s25")
        a("s_lshl_b32 s36, s36, 3")
        a("s_add_u32 s58, s36, s59")
    mma_addr(0)
    a("s_mov_b32 s33, 0")
    a("s_barrier")
    stamp(a, 1)
    a.label("%s_mma" % name)
    core.prime(0, core.reads(0, 0))
    trk.drain()
    def mfmas(buf):
        L = []
        for ft in range(5):
            A = core.F(buf, ft)
            for tt in range(4 if ft < 4 else 2):
                c = core.accr(ft, tt); B = core.T(buf, tt)
                L.append(("v_mfma_f32_16x16x32_bf16 %s, %s, %s, %s" % (vr(c), vr(A), vr(B), vr(c)), list(range(A, A + 4)) + list(range(B, B + 4))))
            L.append(("v_mfma_f32_16x16x32_bf16 %s, %s, %s, %s" % (vr(CS + 4 * ft), vr(A), vr(ONE), vr(CS + 4 * ft)), list(range(A, A + 4))))
        return L
    def phase(buf, pend):
        for (m, regs) in mfmas(buf):
            trk.need(regs)
            a(m)
            while pend:
                k, t = pend.pop(0)
                if k == "x":
                    a(t)
                    if t.startswith("s_"): continue
                else:
                    a(t[0]); trk.issue(t[1])
                break
        for k, t in pend:
            if k == "x": a(t)
            else: a(t[0]); trk.issue(t[1])
    def iteration():
        a("s_waitcnt vmcnt(0)")
        a("s_barrier")
        rd = [("r", t) for t in core.reads(1, 1)]
        upd = ["s_add_u32 s27, s27, %d" % SLOT, "s_cmp_eq_u32 s27, %d" % (R * SLOT), "s_cselect_b32 s27, 0, s27"]
        tail = ["v_add_u32 v%d, s27, v%d" % (d, s_) for d, s_ in ((vTa[0], bTa[0]), (vF, bF), (vTb[0], bTb[0]), (vFh, bFh))]
        phase(0, rd[:1] + [("x", u) for u in upd] + rd[1:] + [("x", u) for u in tail])
        rd = [("r", t) for t in core.reads(0, 0)]
        tail = ["v_add_u32 v%d, s27, v%d" % (d, s_) for d, s_ in ((vTa[1], bTa[1]), (vTb[1], bTb[1]))] + ["s_add_u32 s33, s33, 1"]
        phase(1, rd + [("x", u) for u in tail])
    a.label("%s_cloop" % name)
    lb = len(a.lines); iteration(); st = copy.deepcopy(trk.out); del a.lines[lb:]; trk.out = copy.deepcopy(st)
    iteration()
    assert [sorted(x) for x in trk.out] == [sorted(x) for x in st]
    a("s_cmp_lt_u32 s33, 9")
    a("s_cbranch_scc1 %s_cloop" % name)
    trk.drain()
    stamp(a, 2)
    a("s_waitcnt vmcnt(0)")
    a("s_barrier")
    a("s_mul_i32 s36, s3, 13312")
    a("s_add_u32 s36, s36, %d" % RB)
    a("v_lshlrev_b32 v10, 4, v2")
    a("v_add_u32 v11, s36, v10")
    n_ = 0
    for ft in range(4):
        for tt in range(2):
            a("ds_write_b128 v11, %s offset:%d" % (vr(core.accr(ft, tt + 2)), 1024 * n_)); n_ += 1
    for ft in range(4):
        a("ds_write_b128 v11, %s offset:%d" % (vr(CS + 4 * ft), 1024 * n_)); n_ += 1
    a("s_waitcnt lgkmcnt(0)")
    a("s_barrier")
    a.label("%s_epi" % name)
    MR = 100; T = 72; ZP = 200
    gelu_consts(a)
    a("s_xor_b32 s52, s98, s25")
    a("s_lshl_b32 s36, s24, 9")
    a("s_lshl_b32 s37, s52, 8")
    a("s_add_u32 s38, s36, s37")
    a("v_lshlrev_b32 v10, 3, v3")
    a("v_add_u32 v11, s38, v10")
    a("ds_read_b64 %s, v11 offset:%d" % (vr(MR, 2), RST))
    a("ds_read_b64 %s, v11 offset:%d" % (vr(MR + 2, 2), RST + 128))
    a("s_lshl_b32 s41, s2, 1")
    a("s_add_u32 s41, s41, s98")
    a("v_and_b32 v0, 255, v0")
    a("s_cmp_ge_u32 s41, 288")
    a("s_cbranch_scc1 %s_nokv1" % name)
    emit_kv_loads(a)
    a.label("%s_nokv1" % name)
    S = [108, 110]; Q = [109, 111]
    for r_ in range(108, 112): a("v_mov_b32 v%d, 0" % r_)
    a("s_waitcnt lgkmcnt(0)")
    ZPf = lambda n: (240 + 2 * n) if n < 8 else (196 + 2 * (n - 8))
    def dots(lst):
        for d in range(2):
            for (ft, tt) in lst:
                p = ZPf(2 * ft + tt) + d
                a("v_dot2_f32_bf16 v%d, v%d, v%d, v%d" % (S[tt], p, ONE, S[tt]))
                a("v_dot2_f32_bf16 v%d, v%d, v%d, v%d" % (Q[tt], p, p, Q[tt]))
    a("s_cmp_lg_u32 s98, 0")
    a("s_cbranch_scc1 %s_nohalf" % name)
    lst = [(4, 0), (4, 1)]
    emit_fold_gelu(a, [(core.accr(ft, tt), CS + 4 * ft, MR + 2 * tt, ZPf(2 * ft + tt)) for ft, tt in lst], T)
    dots(lst)
    a.label("%s_nohalf" % name)
    for f0 in (0, 2):
        lst = [(ft, tt) for ft in (f0, f0 + 1) for tt in range(2)]
        emit_fold_gelu(a, [(core.accr(ft, tt), CS + 4 * ft, MR + 2 * tt, ZPf(2 * ft + tt)) for ft, tt in lst], T)
        dots(lst)
    a("s_nop 2")
    emit_xg_reduce(a, S + Q, 72)
    a("s_lshl_b32 s59, s22, 7")
    a("s_lshl_b32 s36, s24, 6")
    a("s_add_u32 s59, s59, s36")
    a("s_lshl_b32 s36, s52, 5")
    a("s_add_u32 s59, s59, s36")
    a("s_lshl_b32 s59, s59, 8")
    a("s_add_u32 s59, s59, 0x%x" % STATS2)
    a("s_lshl_b32 s36, s23, 1")
    a("s_add_u32 s36, s36, s25")
    a("s_lshl_b32 s36, s36, 3")
    a("s_add_u32 s58, s36, s59")
    a("v_lshrrev_b32 v10, 4, v2")
    a("v_lshlrev_b32 v11, 8, v2")
    a("v_cmp_gt_u32 vcc, 32, v2")
    a("v_mov_b32 v12, 0x7ffffff0")
    a("v_cmp_eq_u32 s[36:37], 1, v10")
    a("v_cndmask_b32 v11, v12, v11, vcc")
    a("s_nop 0")
    a("v_cndmask_b32 v108, v108, v110, s[36:37]")
    a("v_cndmask_b32 v109, v109, v111, s[36:37]")
    a("buffer_store_dwordx2 v[108:109], v11, s[12:15], s58 offen")
    a("s_setprio 0")
    stamp(a, 3)
    a("v_lshrrev_b32 v10, 4, v2")
    a("v_lshlrev_b32 v5, 12, v10")
    a("v_lshl_add_u32 v5, v3, 4, v5")
    a("s_lshl_b32 s33, s22, 7")
    a("s_lshl_b32 s36, s3, 5")
    a("s_add_u32 s33, s33, s36")
    a("s_lshl_b32 s36, s98, 4")
    a("s_add_u32 s33, s33, s36")
    a("s_lshl_b32 s33, s33, 12")
    a("s_lshl_b32 s36, s23, 8")
    a("s_add_u32 s33, s33, s36")
    for n in range(4):
        a("buffer_load_dwordx4 v[168:171], v5, s[92:95], s33 offen")
        if n < 3: a("s_add_u32 s33, s33, 16384")
    a("v_lshrrev_b32 v11, 2, v2"); a("v_and_b32 v11, 1, v11"); a("v_lshlrev_b32 v11, 4, v11")
    a("v_lshrrev_b32 v5, 3, v2"); a("v_and_b32 v5, 1, v5"); a("v_lshl_add_u32 v11, v5, 2, v11")
    a("v_and_b32 v5, 3, v2"); a("v_add_u32 v11, v11, v5")
    a("v_mul_u32_u24 v11, 288, v11")
    a("v_lshrrev_b32 v5, 1, v10"); a("v_lshl_add_u32 v11, v5, 4, v11")
    a("v_and_b32 v5, 1, v10")
    a("v_lshl_add_u32 v6, v5, 5, v11")
    a("v_mul_u32_u24 v5, 2304, v5")
    a("v_add_u32 v9, v11, v5")
    a("s_lshl_b32 s33, s23, 5")
    a("s_lshl_b32 s36, s22, 1")
    a("s_add_u32 s33, s33, s36")
    a("s_add_u32 s33, s33, s24")
    a("s_mul_i32 s33, s33, 18432")
    if ZIMG: a("s_add_u32 s33, s33, 0x%x" % ZIMG)
    a("s_mul_i32 s36, s52, 9216")
    a("s_add_u32 s37, s33, s36")
    a("s_add_u32 s39, s37, 128")
    a("s_mul_i32 s36, s25, 160")
    a("s_add_u32 s37, s37, s36")
    def norm_pair(nA, ttA, nB, ttB, O):
        for q, n in enumerate((nA, nB)):
            for d in range(2):
                a("v_mov_b32 v%d, v%d" % (O + 2 * q + d, ZPf(n) + d))
        a("s_nop 1")
        a("v_permlane16_swap_b32 v%d, v%d" % (O, O + 2))
        a("v_permlane16_swap_b32 v%d, v%d" % (O + 1, O + 3))
    cnt = 0
    for pr in range(2):
        for tt in range(2):
            O = 128 + 4 * cnt; cnt += 1
            norm_pair(2 * (2 * pr) + tt, tt, 2 * (2 * pr + 1) + tt, tt, O)
            a("s_nop 0")
            a("buffer_store_dwordx4 %s, v6, s[12:15], s37 offen offset:%d" % (vr(O), tt * 2304 + 64 * pr))
    a("s_cmp_lg_u32 s98, 0")
    a("s_cbranch_scc1 %s_fin" % name)
    O = 128 + 4 * cnt
    norm_pair(8, 0, 9, 1, O)
    a("s_nop 0")
    a("buffer_store_dwordx4 %s, v9, s[12:15], s39 offen" % vr(O))
    a.label("%s_fin" % name)
    stamp(a, 4)
    a("s_cmp_ge_u32 s41, 288")
    a("s_cbranch_scc1 %s_fin2" % name)
    a("s_waitcnt vmcnt(9)")
    emit_kv_compute(a, wait=False)
    a.label("%s_fin2" % name)
    stamp(a, 6)
    G.stamp_rt(a, 1)
    a.label("%s_end" % name)
    a("s_endpgm")
    return a.text(), kernel_desc(name, 256, 256), (name, 256, 512, LDSB)

def gen_k1k(name="k1_kernel", R=4):
    a = Asm()
    RB = 4096; SLOT = 34816; TREG = 16384; FS = 288; RST = 0
    LDSB = RB + R * SLOT
    def capture(f, *args):
        lb = len(a.lines); f(*args); out = a.lines[lb:]; del a.lines[lb:]; return out
    kernel_begin(a, name)
    a("s_load_dwordx2 s[80:81], s[0:1], 0")
    a("s_load_dwordx2 s[4:5], s[0:1], 56")
    a("s_load_dwordx2 s[6:7], s[0:1], 104")
    a("s_load_dwordx2 s[18:19], s[0:1], 96")
    a("s_cmp_ge_u32 s2, 256")
    a("s_cbranch_scc1 %s_end" % name)
    a("v_lshrrev_b32 v1, 6, v0")
    a("v_and_b32 v2, 63, v0")
    a("v_readfirstlane_b32 s3, v1")
    G2.tile_ij(a)
    a("s_lshr_b32 s98, s3, 2")
    a("s_mov_b32 s54x, 0".replace("s54x", "s99"))
    a("s_and_b32 s3, s3, 3")
    a("s_lshr_b32 s24, s3, 1")
    a("s_and_b32 s25, s3, 1")
    a("v_and_b32 v3, 15, v2")
    VT = 204; VF = 208
    def loader_setup():
        a("v_lshrrev_b32 v5, 3, v2")
        a("v_and_b32 v4, 7, v2")
        a("s_lshl_b32 s36, s3, 5")
        a("v_add_u32 v5, s36, v5")
        a("v_lshrrev_b32 v7, 4, v2")
        a("v_xor_b32 v7, v7, v4")
        a("v_mul_u32_u24 v6, 1152, v5")
        a("v_lshl_add_u32 v%d, v7, 4, v6" % VT)
        a("v_xor_b32 v%d, 64, v%d" % (VT + 1, VT))
        a("v_add_u32 v%d, %d, v%d" % (VT + 1, 9216 - 1024, VT + 1))
        a("v_add_u32 v%d, %d, v%d" % (VT + 2, 2 * (9216 - 1024), VT))
        a("v_add_u32 v%d, %d, v%d" % (VT + 3, 2 * (9216 - 1024), VT + 1))
        a("s_lshl_b32 s84, s3, 12")
        a("s_add_u32 s84, s84, %d" % RB)
        a("s_lshl_b32 s85, s3, 9")
        a("s_add_u32 s85, s85, %d" % (RB + TREG + 16384))
    def loader_setup2():
        for n in range(5):
            if n < 4:
                a("s_lshl_b32 s36, s3, 8")
                a("s_add_u32 s36, s36, %d" % (64 * n))
            else:
                a("s_lshl_b32 s36, s3, 5")
                a("s_add_u32 s36, s36, 1024")
            a("v_add_u32 v6, s36, v2")
            a("v_mul_u32_u24 v7, 3641, v6")
            a("v_lshrrev_b32 v7, 16, v7")
            a("v_mul_u32_u24 v8, 18, v7")
            a("v_sub_u32 v8, v6, v8")
            a("v_and_b32 v9, 35, v7")
            a("v_bfe_u32 v6, v7, 2, 2")
            a("v_lshl_add_u32 v9, v6, 3, v9")
            a("v_bfe_u32 v6, v7, 4, 1")
            a("v_lshl_add_u32 v9, v6, 2, v9")
            a("v_mul_u32_u24 v9, 9216, v9")
            a("v_lshl_add_u32 v%d, v8, 4, v9" % (VF + n))
            if 0 < n < 4: a("v_subrev_u32 v%d, %d, v%d" % (VF + n, 1024 * n, VF + n))
    def issueT(g):
        st = g % 9
        a("s_add_u32 s86, s84, %d" % ((g % R) * SLOT))
        a("s_mov_b32 m0, s86")
        a("s_add_u32 s87, s82, %d" % (128 * st))
        for n in range(4):
            a("buffer_load_dwordx4 v%d, s[28:31], s87 offen offset:%d lds" % (VT + n, 1024 * n))
    def issueF(g):
        st = g % 9
        a("s_add_u32 s86, s84, %d" % ((g % R) * SLOT + TREG))
        a("s_mov_b32 m0, s86")
        a("s_add_u32 s87, s83, %d" % (64 * 9216 * st + (4608 if g < 9 else 0)))
        for n in range(4):
            a("buffer_load_dwordx4 v%d, s[8:11], s87 offen offset:%d lds" % (VF + n, 1024 * n))
        a("s_add_u32 s86, s85, %d" % ((g % R) * SLOT))
        a("s_mov_b32 m0, s86")
        a("s_mov_b64 exec, 0xffffffff")
        a("buffer_load_dwordx4 v%d, s[8:11], s87 offen lds" % (VF + 4))
        a("s_mov_b64 exec, -1")
    def srds_main():
        srd(a, 28, 80, 2048 * 576 * 2)
        srd(a, 8, 4, 576 * 4608 * 2)
        srd(a, 12, 6, WS_BYTES)
        srd(a, 60, 18, 256)
        a("s_mul_i32 s82, s22, %d" % (128 * 1152))
        a("s_mul_i32 s83, s23, 288")
    ACC = 128; FB = [16, 52]; CS = 216; ONE = 236
    vTa = [4, 5]; vTb = [6, 7]; vF = 8; vFh = 9
    bTa = [88, 89]; bTb = [90, 91]; bF = 92; bFh = 93
    def mma_setup():
        a("v_lshrrev_b32 v10, 4, v2")
        a("v_lshrrev_b32 v11, 1, v3")
        a("v_xor_b32 v10, v10, v11")
        a("v_lshlrev_b32 v10, 4, v10")
        a("v_lshl_add_u32 v10, v3, 7, v10")
        a("s_lshl_b32 s26, s24, 13")
        a("s_add_u32 s26, s26, %d" % RB)
        a("v_add_u32 v10, s26, v10")
        a("s_lshl_b32 s26, s25, 12")
        a("v_add_u32 v%d, s26, v10" % bTa[0])
        a("s_xor_b32 s26, s26, 4096")
        a("v_add_u32 v%d, s26, v10" % bTb[0])
        a("v_xor_b32 v%d, 64, v%d" % (bTa[1], bTa[0]))
        a("v_xor_b32 v%d, 64, v%d" % (bTb[1], bTb[0]))
        a("v_lshrrev_b32 v10, 2, v2")
        a("v_mul_u32_u24 v10, %d, v10" % FS)
        a("v_and_b32 v11, 3, v2")
        a("v_lshl_add_u32 v10, v11, 3, v10")
        a("v_add_u32 v10, %d, v10" % (RB + TREG))
        a("s_mul_i32 s26, s25, 160")
        a("v_add_u32 v%d, s26, v10" % bF)
        a("v_add_u32 v%d, 128, v10" % bFh)
        for r in range(ACC, ACC + 72): a("v_mov_b32 v%d, 0" % r)
        for r in range(CS, CS + 20): a("v_mov_b32 v%d, 0" % r)
        for r in range(ONE, ONE + 4): a("v_mov_b32 v%d, 0x3f803f80" % r)
    def mma_addr(slot):
        a("s_mov_b32 s27, %d" % (slot * SLOT))
        for d, s_ in ((vTa[0], bTa[0]), (vTb[0], bTb[0]), (vTa[1], bTa[1]), (vTb[1], bTb[1]), (vF, bF), (vFh, bFh)):
            a("v_add_u32 v%d, s27, v%d" % (d, s_))
    core = G.Core(a, ACC, FB[0], FB[1], FS, TREG, vTa, vTb, vF, vFh)
    trk = core.trk
    a("s_cmp_eq_u32 s98, 0")
    a("s_cbranch_scc1 %s_A0" % name)
    a("s_setprio 3")
    loader_setup()
    a("s_waitcnt lgkmcnt(0)")
    srds_main()
    vm = VmTracker(a)
    def issue(g, vmx):
        issueT(g); issueF(g); vmx.issue("S%d" % g, 9)
    issueT(0)
    loader_setup2()
    issueF(0); vm.issue("S0", 9)
    issue(1, vm); issue(2, vm); issue(3, vm)
    a("s_add_u32 s3, s3, 4"); stamp_setup(a, 1); stamp(a, 0); a("s_sub_u32 s3, s3, 4")
    for r in range(ONE, ONE + 4): a("v_mov_b32 v%d, 0x3f803f80" % r)
    RA = 96; XB = 112
    for r in range(RA, RA + 16): a("v_mov_b32 v%d, 0" % r)
    a("v_lshrrev_b32 v10, 4, v2")
    a("v_lshrrev_b32 v11, 1, v3")
    a("v_xor_b32 v10, v10, v11")
    a("v_lshlrev_b32 v10, 4, v10")
    a("v_lshl_add_u32 v10, v3, 7, v10")
    a("v_add_u32 v12, s84, v10")
    a("v_xor_b32 v13, 64, v12")
    def rs_rd(g):
        a("v_add_u32 v10, %d, v12" % ((g % R) * SLOT))
        a("v_add_u32 v11, %d, v13" % ((g % R) * SLOT))
        for h in range(2):
            for n in range(2):
                a("ds_read_b128 %s, v%d offset:%d" % (vr(XB + 8 * h + 4 * n), 10 + h, 2048 * n))
    def rs_do():
        for h in range(2):
            for n in range(2):
                x = XB + 8 * h + 4 * n
                a("v_mfma_f32_16x16x32_bf16 %s, %s, %s, %s" % (vr(RA + 4 * n), vr(ONE), vr(x), vr(RA + 4 * n)))
                a("v_mfma_f32_16x16x32_bf16 %s, %s, %s, %s" % (vr(RA + 8 + 4 * n), vr(x), vr(x), vr(RA + 8 + 4 * n)))
    def interleave(dma, comp, vmx=None):
        groups = []; cur = []
        for l in dma:
            cur.append(l)
            if "buffer_load" in l and not any("exec, 0xffffffff" in x for x in cur[-2:]):
                groups.append(cur); cur = []
            elif "exec, -1" in l:
                groups.append(cur); cur = []
        if cur: groups.append(cur)
        ns = max(1, len(groups))
        per = (len(comp) + ns - 1) // ns
        for g in groups:
            a.lines.extend(g)
            a.lines.extend(comp[:per]); comp = comp[per:]
        a.lines.extend(comp)
    vm.wait(["S0"])
    a("s_barrier")
    stamp(a, 1)
    rs_rd(0)
    vm.wait(["S1"])
    a("s_barrier")
    for k in range(9):
        a("s_waitcnt lgkmcnt(0)")
        dma = capture(lambda: (issueT(k + 3), issueF(k + 3))) if (k >= 1 and k + 3 < 9) else []
        interleave(dma, capture(rs_do))
        if k >= 1 and k + 3 < 9: vm.issue("S%d" % (k + 3), 9)
        if k < 8:
            rs_rd(k + 1)
        else:
            a("s_nop 7")
            a("v_lshrrev_b32 v10, 4, v2")
            a("v_lshrrev_b32 v11, 2, v3")
            a("v_and_b32 v12, 3, v3")
            for n in range(2):
                G_ = RA + 8 + 4 * n
                for r in range(1, 4):
                    a("v_cmp_eq_u32 vcc, %d, v12" % r)
                    a("s_nop 1")
                    a("v_cndmask_b32 v%d, v%d, v%d, vcc" % (G_, G_, G_ + r))
            ML = 112
            for n in range(2):
                emit_ln_finish(a, RA + 4 * n, RA + 8 + 4 * n, 576, ML + 2 * n, ML + 2 * n + 1, 120)
                a("v_mov_b32 v%d, v%d" % (117 + 2 * n, ML + 2 * n + 1))
                a("v_sub_f32 v%d, 0, v%d" % (116 + 2 * n, ML + 2 * n))
            a("s_lshl_b32 s35, s3, 8")
            a("v_lshlrev_b32 v13, 3, v3")
            a("v_add_u32 v12, s35, v13")
            a("v_cmp_eq_u32 vcc, v10, v11")
            a("s_and_saveexec_b64 s[36:37], vcc")
            for n in range(2):
                a("ds_write_b64 v12, %s offset:%d" % (vr(116 + 2 * n, 2), RST + 128 * n))
            a("s_mov_b64 exec, s[36:37]")
            a("s_cmp_lg_u32 s23, 0")
            a("s_cbranch_scc1 %s_nost1" % name)
            a("s_lshl_b32 s35, s22, 7")
            a("s_lshl_b32 s36, s3, 5")
            a("s_add_u32 s35, s35, s36")
            a("s_lshl_b32 s35, s35, 3")
            a("s_add_u32 s35, s35, 0x%x" % STATS1)
            a("v_mov_b32 v11, 0x7ffffff0")
            a("v_cndmask_b32 v13, v11, v13, vcc")
            for n in range(2):
                a("buffer_store_dwordx2 %s, v13, s[12:15], s35 offen offset:%d" % (vr(ML + 2 * n, 2), 128 * n))
            a.label("%s_nost1" % name)
        if k < 8:
            vm.wait(["S%d" % (k + 2)])
            a("s_barrier")
    a("s_waitcnt lgkmcnt(0)")
    a("s_barrier")
    a("s_load_dwordx4 s[64:67], s[0:1], 8")
    a("s_load_dwordx2 s[76:77], s[0:1], 24")
    a("s_load_dwordx2 s[90:91], s[0:1], 64")
    a("s_mul_i32 s36, s3, 13312")
    a("s_add_u32 s36, s36, %d" % RB)
    a("v_lshlrev_b32 v10, 4, v2")
    a("v_add_u32 v11, s36, v10")
    a("s_waitcnt lgkmcnt(0)")
    srd(a, 68, 66, 2048 * 576 * 2)
    a("s_mov_b32 s88, s64"); a("s_mov_b32 s89, s65")
    srd(a, 64, 88, 2048 * 576 * 2)
    srd(a, 72, 76, 576 * 8)
    srd(a, 92, 90, 2048 * 2048 * 2)
    a("s_barrier")
    n_ = 0
    for ft in range(4):
        for tt in range(2):
            a("ds_read_b128 %s, v11 offset:%d" % (vr(core.accr(ft, tt)), 1024 * n_)); n_ += 1
    for ft in range(4):
        a("ds_read_b128 %s, v11 offset:%d" % (vr(CS + 4 * ft), 1024 * n_)); n_ += 1
    a("s_branch %s_epi" % name)
    a.label("%s_A0" % name)
    emit_code_prefetch(a, name)
    a("s_load_dwordx4 s[64:67], s[0:1], 8")
    a("s_load_dwordx2 s[76:77], s[0:1], 24")
    a("s_load_dwordx2 s[90:91], s[0:1], 64")
    mma_setup()
    a("s_waitcnt lgkmcnt(0)")
    srds_main()
    srd(a, 68, 66, 2048 * 576 * 2)
    a("s_mov_b32 s88, s64"); a("s_mov_b32 s89, s65")
    srd(a, 64, 88, 2048 * 576 * 2)
    srd(a, 72, 76, 576 * 8)
    srd(a, 92, 90, 2048 * 2048 * 2)
    stamp_setup(a, 1); stamp(a, 0)
    def gran_addr():
        a("v_lshrrev_b32 v10, 4, v2")
        a("s_lshl_b32 s36, s25, 1")
        a("v_add_u32 v11, s36, v10")
        a("v_and_b32 v11, 3, v11")
        a("v_lshl_add_u32 v11, v11, 4, v3")
        a("v_lshlrev_b32 v94, 8, v11")
        a("s_lshl_b32 s59, s22, 7")
        a("s_lshl_b32 s36, s24, 6")
        a("s_add_u32 s59, s59, s36")
        a("s_lshl_b32 s59, s59, 8")
        a("s_add_u32 s59, s59, 0x%x" % STATS2)
        a("s_lshl_b32 s36, s23, 1")
        a("s_add_u32 s36, s36, s25")
        a("s_lshl_b32 s36, s36, 3")
        a("s_add_u32 s58, s36, s59")
    mma_addr(0)
    a("s_mov_b32 s33, 0")
    a("s_barrier")
    stamp(a, 1)
    a.label("%s_mma" % name)
    core.prime(0, core.reads(0, 0))
    trk.drain()
    def mfmas(buf):
        L = []
        for ft in range(5):
            A = core.F(buf, ft)
            for tt in range(4 if ft < 4 else 2):
                c = core.accr(ft, tt); B = core.T(buf, tt)
                L.append(("v_mfma_f32_16x16x32_bf16 %s, %s, %s, %s" % (vr(c), vr(A), vr(B), vr(c)), list(range(A, A + 4)) + list(range(B, B + 4))))
            L.append(("v_mfma_f32_16x16x32_bf16 %s, %s, %s, %s" % (vr(CS + 4 * ft), vr(A), vr(ONE), vr(CS + 4 * ft)), list(range(A, A + 4))))
        return L
    def phase(buf, pend):
        for (m, regs) in mfmas(buf):
            trk.need(regs)
            a(m)
            while pend:
                k, t = pend.pop(0)
                if k == "x":
                    a(t)
                    if t.startswith("s_"): continue
                else:
                    a(t[0]); trk.issue(t[1])
                break
        for k, t in pend:
            if k == "x": a(t)
            else: a(t[0]); trk.issue(t[1])
    def iteration():
        a("s_waitcnt vmcnt(0)")
        a("s_barrier")
        rd = [("r", t) for t in core.reads(1, 1)]
        upd = ["s_add_u32 s27, s27, %d" % SLOT, "s_cmp_eq_u32 s27, %d" % (R * SLOT), "s_cselect_b32 s27, 0, s27"]
        tail = ["v_add_u32 v%d, s27, v%d" % (d, s_) for d, s_ in ((vTa[0], bTa[0]), (vF, bF), (vTb[0], bTb[0]), (vFh, bFh))]
        phase(0, rd[:1] + [("x", u) for u in upd] + rd[1:] + [("x", u) for u in tail])
        rd = [("r", t) for t in core.reads(0, 0)]
        tail = ["v_add_u32 v%d, s27, v%d" % (d, s_) for d, s_ in ((vTa[1], bTa[1]), (vTb[1], bTb[1]))] + ["s_add_u32 s33, s33, 1"]
        phase(1, rd + [("x", u) for u in tail])
    a.label("%s_cloop" % name)
    lb = len(a.lines); iteration(); st = copy.deepcopy(trk.out); del a.lines[lb:]; trk.out = copy.deepcopy(st)
    iteration()
    assert [sorted(x) for x in trk.out] == [sorted(x) for x in st]
    a("s_cmp_lt_u32 s33, 9")
    a("s_cbranch_scc1 %s_cloop" % name)
    trk.drain()
    stamp(a, 2)
    a("s_waitcnt vmcnt(0)")
    a("s_barrier")
    a("s_mul_i32 s36, s3, 13312")
    a("s_add_u32 s36, s36, %d" % RB)
    a("v_lshlrev_b32 v10, 4, v2")
    a("v_add_u32 v11, s36, v10")
    n_ = 0
    for ft in range(4):
        for tt in range(2):
            a("ds_write_b128 v11, %s offset:%d" % (vr(core.accr(ft, tt + 2)), 1024 * n_)); n_ += 1
    for ft in range(4):
        a("ds_write_b128 v11, %s offset:%d" % (vr(CS + 4 * ft), 1024 * n_)); n_ += 1
    a("s_waitcnt lgkmcnt(0)")
    a("s_barrier")
    a.label("%s_epi" % name)
    MR = 100; T = 72; ZP = 200
    gelu_consts(a)
    a("s_xor_b32 s52, s98, s25")
    a("s_lshl_b32 s36, s24, 9")
    a("s_lshl_b32 s37, s52, 8")
    a("s_add_u32 s38, s36, s37")
    a("v_lshlrev_b32 v10, 3, v3")
    a("v_add_u32 v11, s38, v10")
    a("ds_read_b64 %s, v11 offset:%d" % (vr(MR, 2), RST))
    a("ds_read_b64 %s, v11 offset:%d" % (vr(MR + 2, 2), RST + 128))
    a("s_lshl_b32 s41, s2, 1")
    a("s_add_u32 s41, s41, s98")
    a("v_and_b32 v0, 255, v0")
    a("s_cmp_ge_u32 s41, 288")
    a("s_cbranch_scc1 %s_nokv1" % name)
    emit_kv_loads(a)
    a.label("%s_nokv1" % name)
    S = [108, 110]; Q = [109, 111]
    for r_ in range(108, 112): a("v_mov_b32 v%d, 0" % r_)
    a("s_waitcnt lgkmcnt(0)")
    ZPf = lambda n: (240 + 2 * n) if n < 8 else (196 + 2 * (n - 8))
    def dots(lst):
        for d in range(2):
            for (ft, tt) in lst:
                p = ZPf(2 * ft + tt) + d
                a("v_dot2_f32_bf16 v%d, v%d, v%d, v%d" % (S[tt], p, ONE, S[tt]))
                a("v_dot2_f32_bf16 v%d, v%d, v%d, v%d" % (Q[tt], p, p, Q[tt]))
    a("v_lshrrev_b32 v10, 4, v2")
    a("v_lshlrev_b32 v5, 12, v10")
    a("v_lshl_add_u32 v5, v3, 4, v5")
    a("s_lshl_b32 s33, s22, 7")
    a("s_lshl_b32 s36, s3, 5")
    a("s_add_u32 s33, s33, s36")
    a("s_lshl_b32 s36, s98, 4")
    a("s_add_u32 s33, s33, s36")
    a("s_lshl_b32 s33, s33, 12")
    a("s_lshl_b32 s36, s23, 8")
    a("s_add_u32 s33, s33, s36")
    for n in range(4):
        a("buffer_load_dwordx4 v[160:163], v5, s[92:95], s33 offen")
        if n < 3: a("s_add_u32 s33, s33, 16384")
    a("v_lshrrev_b32 v60, 2, v2"); a("v_and_b32 v60, 1, v60"); a("v_lshlrev_b32 v60, 4, v60")
    a("v_lshrrev_b32 v61, 3, v2"); a("v_and_b32 v61, 1, v61"); a("v_lshl_add_u32 v60, v61, 2, v60")
    a("v_and_b32 v61, 3, v2"); a("v_add_u32 v60, v60, v61")
    a("v_mul_u32_u24 v60, 288, v60")
    a("v_lshrrev_b32 v61, 1, v10"); a("v_lshl_add_u32 v60, v61, 4, v60")
    a("v_and_b32 v61, 1, v10")
    a("v_lshl_add_u32 v62, v61, 5, v60")
    a("v_mul_u32_u24 v61, 2304, v61")
    a("v_add_u32 v63, v60, v61")
    a("s_lshl_b32 s84, s23, 5")
    a("s_lshl_b32 s36, s22, 1")
    a("s_add_u32 s84, s84, s36")
    a("s_add_u32 s84, s84, s24")
    a("s_mul_i32 s84, s84, 18432")
    if ZIMG: a("s_add_u32 s84, s84, 0x%x" % ZIMG)
    a("s_mul_i32 s36, s52, 9216")
    a("s_add_u32 s85, s84, s36")
    a("s_add_u32 s86, s85, 128")
    a("s_mul_i32 s36, s25, 160")
    a("s_add_u32 s85, s85, s36")
    def norm_pair(nA, ttA, nB, ttB, O):
        for q, n in enumerate((nA, nB)):
            for d in range(2):
                a("v_mov_b32 v%d, v%d" % (O + 2 * q + d, ZPf(n) + d))
        a("s_nop 1")
        a("v_permlane16_swap_b32 v%d, v%d" % (O, O + 2))
        a("v_permlane16_swap_b32 v%d, v%d" % (O + 1, O + 3))
    a("s_cmp_lg_u32 s98, 0")
    a("s_cbranch_scc1 %s_nohalf" % name)
    lst = [(4, 0), (4, 1)]
    emit_fold_gelu(a, [(core.accr(ft, tt), CS + 4 * ft, MR + 2 * tt, ZPf(2 * ft + tt)) for ft, tt in lst], T)
    dots(lst)
    norm_pair(8, 0, 9, 1, 112)
    a("s_nop 0")
    a("buffer_store_dwordx4 %s, v63, s[12:15], s86 offen" % vr(112))
    a.label("%s_nohalf" % name)
    for pr, f0 in enumerate((0, 2)):
        lst = [(ft, tt) for ft in (f0, f0 + 1) for tt in range(2)]
        emit_fold_gelu(a, [(core.accr(ft, tt), CS + 4 * ft, MR + 2 * tt, ZPf(2 * ft + tt)) for ft, tt in lst], T)
        dots(lst)
        for tt in range(2):
            O = 116 + 8 * pr + 4 * tt - 0
            O = (116, 120, 124, 88)[2 * pr + tt]
            norm_pair(2 * f0 + tt, tt, 2 * (f0 + 1) + tt, tt, O)
            a("s_nop 0")
            a("buffer_store_dwordx4 %s, v62, s[12:15], s85 offen offset:%d" % (vr(O), tt * 2304 + 64 * pr))
    a("s_nop 2")
    emit_xg_reduce(a, S + Q, 72)
    a("s_lshl_b32 s59, s22, 7")
    a("s_lshl_b32 s36, s24, 6")
    a("s_add_u32 s59, s59, s36")
    a("s_lshl_b32 s36, s52, 5")
    a("s_add_u32 s59, s59, s36")
    a("s_lshl_b32 s59, s59, 8")
    a("s_add_u32 s59, s59, 0x%x" % STATS2)
    a("s_lshl_b32 s36, s23, 1")
    a("s_add_u32 s36, s36, s25")
    a("s_lshl_b32 s36, s36, 3")
    a("s_add_u32 s58, s36, s59")
    a("v_lshrrev_b32 v10, 4, v2")
    a("v_lshlrev_b32 v11, 8, v2")
    a("v_cmp_gt_u32 vcc, 32, v2")
    a("v_mov_b32 v12, 0x7ffffff0")
    a("v_cmp_eq_u32 s[36:37], 1, v10")
    a("v_cndmask_b32 v11, v12, v11, vcc")
    a("s_nop 0")
    a("v_cndmask_b32 v108, v108, v110, s[36:37]")
    a("v_cndmask_b32 v109, v109, v111, s[36:37]")
    a("buffer_store_dwordx2 v[108:109], v11, s[12:15], s58 offen")
    a("s_setprio 0")
    stamp(a, 3)
    a.label("%s_fin" % name)
    stamp(a, 4)
    a("s_cmp_ge_u32 s41, 288")
    a("s_cbranch_scc1 %s_fin2" % name)
    a("s_waitcnt vmcnt(9)")
    a("s_nop 4")
    emit_kv_compute(a, wait=False)
    a.label("%s_fin2" % name)
    stamp(a, 6)
    G.stamp_rt(a, 1)
    a.label("%s_end" % name)
    a("s_endpgm")
    return a.text(), kernel_desc(name, 256, 256), (name, 256, 512, LDSB)

gen_k2b = G3.gen_k2b; gen_k2c = G3.gen_k2c; gen_k2d = G3.gen_k2d; gen_k2e = G3.gen_k2e; gen_k2g = G3.gen_k2g; gen_k2f = G3.gen_k2f; gen_k3b = G3.gen_k3b; gen_k3c = G3.gen_k3c; gen_kw = G3.gen_kw; gen_k1g = G3.gen_k1g

if __name__ == "__main__":
    which = sys.argv[1]; out = sys.argv[2]
    if len(sys.argv) > 3: DBG.update(sys.argv[3].split(","))
    ks = [globals()["gen_" + w]() for w in which.split(",")]
    open(out, "w").write(assemble_file([k[2] for k in ks], "".join(k[0] for k in ks) + "code_end_lbl:\n", [k[1] for k in ks]))
```

```python
import sys, copy, re
from asmgen import *
import gen as G
import gen2 as G2
import gen3 as G3
from gen import (ZIMG, Z1IMG, PIMG, WOT, KVT, YT, STATS2, STATS1, WS_BYTES, DBG, LdsTracker, vr, stamp, stamp_setup,
                 rnd_pair, f32, emit_xg_reduce, emit_ln_finish)
from gen2 import VmTracker, TILES, tidx, emit_fold_gelu, gelu_consts, SPIN_MAX
from gen3 import emit_kv_loads, emit_kv_compute, emit_wot_loads

def emit_code_prefetch(a, name, nload=3):
    if "cpf" not in DBG: return
    a("s_getpc_b64 s[40:41]")
    a.label("%s_pc" % name)
    a("s_sub_u32 s40, s40, %s_pc-%s" % (name, name))
    a("s_subb_u32 s41, s41, 0")
    a("s_and_b32 s41, s41, 0xffff")
    a("s_mov_b32 s42, code_end_lbl-%s" % name)
    a("s_mov_b32 s43, 0x00020000")
    a("v_lshlrev_b32 v10, 7, v2")
    a("s_mul_i32 s36, s3, %d" % (nload * 8192))
    for n in range(nload):
        a("buffer_load_dword v200, v10, s[40:43], s36 offen")
        if n < nload - 1: a("s_add_u32 s36, s36, 8192")

def gen_k1h(name="k1_kernel", R=4):
    a = Asm()
    RB = 4096; SLOT = 34816; TREG = 16384; FS = 288; RST = 0
    LDSB = RB + R * SLOT
    def capture(f, *args):
        lb = len(a.lines); f(*args); out = a.lines[lb:]; del a.lines[lb:]; return out
    kernel_begin(a, name)
    a("s_load_dwordx2 s[80:81], s[0:1], 0")
    a("s_load_dwordx2 s[4:5], s[0:1], 56")
    a("s_load_dwordx2 s[6:7], s[0:1], 104")
    a("s_load_dwordx2 s[18:19], s[0:1], 96")
    a("s_cmp_ge_u32 s2, 256")
    a("s_cbranch_scc1 %s_end" % name)
    a("v_lshrrev_b32 v1, 6, v0")
    a("v_and_b32 v2, 63, v0")
    a("v_readfirstlane_b32 s3, v1")
    G2.tile_ij(a)
    a("s_lshr_b32 s98, s3, 2")
    a("s_mov_b32 s54x, 0".replace("s54x", "s99"))
    a("s_and_b32 s3, s3, 3")
    a("s_lshr_b32 s24, s3, 1")
    a("s_and_b32 s25, s3, 1")
    a("v_and_b32 v3, 15, v2")
    VT = 204; VF = 208
    def loader_setup():
        a("v_lshrrev_b32 v5, 3, v2")
        a("v_and_b32 v4, 7, v2")
        a("s_lshl_b32 s36, s3, 5")
        a("v_add_u32 v5, s36, v5")
        a("v_lshrrev_b32 v7, 4, v2")
        a("v_xor_b32 v7, v7, v4")
        a("v_mul_u32_u24 v6, 1152, v5")
        a("v_lshl_add_u32 v%d, v7, 4, v6" % VT)
        a("v_xor_b32 v%d, 64, v%d" % (VT + 1, VT))
        a("v_add_u32 v%d, %d, v%d" % (VT + 1, 9216 - 1024, VT + 1))
        a("v_add_u32 v%d, %d, v%d" % (VT + 2, 2 * (9216 - 1024), VT))
        a("v_add_u32 v%d, %d, v%d" % (VT + 3, 2 * (9216 - 1024), VT + 1))
        a("s_lshl_b32 s84, s3, 12")
        a("s_add_u32 s84, s84, %d" % RB)
        a("s_lshl_b32 s85, s3, 9")
        a("s_add_u32 s85, s85, %d" % (RB + TREG + 16384))
    def loader_setup2():
        for n in range(5):
            if n < 4:
                a("s_lshl_b32 s36, s3, 8")
                a("s_add_u32 s36, s36, %d" % (64 * n))
            else:
                a("s_lshl_b32 s36, s3, 5")
                a("s_add_u32 s36, s36, 1024")
            a("v_add_u32 v6, s36, v2")
            a("v_mul_u32_u24 v7, 3641, v6")
            a("v_lshrrev_b32 v7, 16, v7")
            a("v_mul_u32_u24 v8, 18, v7")
            a("v_sub_u32 v8, v6, v8")
            a("v_and_b32 v9, 35, v7")
            a("v_bfe_u32 v6, v7, 2, 2")
            a("v_lshl_add_u32 v9, v6, 3, v9")
            a("v_bfe_u32 v6, v7, 4, 1")
            a("v_lshl_add_u32 v9, v6, 2, v9")
            a("v_mul_u32_u24 v9, 9216, v9")
            a("v_lshl_add_u32 v%d, v8, 4, v9" % (VF + n))
            if 0 < n < 4: a("v_subrev_u32 v%d, %d, v%d" % (VF + n, 1024 * n, VF + n))
    def issueT(g):
        st = g % 9
        a("s_add_u32 s86, s84, %d" % ((g % R) * SLOT))
        a("s_mov_b32 m0, s86")
        a("s_add_u32 s87, s82, %d" % (128 * st))
        for n in range(4):
            a("buffer_load_dwordx4 v%d, s[28:31], s87 offen offset:%d lds" % (VT + n, 1024 * n))
    def issueF(g):
        st = g % 9
        a("s_add_u32 s86, s84, %d" % ((g % R) * SLOT + TREG))
        a("s_mov_b32 m0, s86")
        a("s_add_u32 s87, s83, %d" % (64 * 9216 * st + (4608 if g < 9 else 0)))
        for n in range(4):
            a("buffer_load_dwordx4 v%d, s[8:11], s87 offen offset:%d lds" % (VF + n, 1024 * n))
        a("s_add_u32 s86, s85, %d" % ((g % R) * SLOT))
        a("s_mov_b32 m0, s86")
        a("s_mov_b64 exec, 0xffffffff")
        a("buffer_load_dwordx4 v%d, s[8:11], s87 offen lds" % (VF + 4))
        a("s_mov_b64 exec, -1")
    def srds_main():
        srd(a, 28, 80, 2048 * 576 * 2)
        srd(a, 8, 4, 576 * 4608 * 2)
        srd(a, 12, 6, WS_BYTES)
        srd(a, 60, 18, 256)
        a("s_mul_i32 s82, s22, %d" % (128 * 1152))
        a("s_mul_i32 s83, s23, 288")
    ACC = 128; FB = [16, 52]; CS = 216; ONE = 236
    vTa = [4, 5]; vTb = [6, 7]; vF = 8; vFh = 9
    bTa = [88, 89]; bTb = [90, 91]; bF = 92; bFh = 93
    def mma_setup():
        a("v_lshrrev_b32 v10, 4, v2")
        a("v_lshrrev_b32 v11, 1, v3")
        a("v_xor_b32 v10, v10, v11")
        a("v_lshlrev_b32 v10, 4, v10")
        a("v_lshl_add_u32 v10, v3, 7, v10")
        a("s_lshl_b32 s26, s24, 13")
        a("s_add_u32 s26, s26, %d" % RB)
        a("v_add_u32 v10, s26, v10")
        a("s_lshl_b32 s26, s25, 12")
        a("v_add_u32 v%d, s26, v10" % bTa[0])
        a("s_xor_b32 s26, s26, 4096")
        a("v_add_u32 v%d, s26, v10" % bTb[0])
        a("v_xor_b32 v%d, 64, v%d" % (bTa[1], bTa[0]))
        a("v_xor_b32 v%d, 64, v%d" % (bTb[1], bTb[0]))
        a("v_lshrrev_b32 v10, 2, v2")
        a("v_mul_u32_u24 v10, %d, v10" % FS)
        a("v_and_b32 v11, 3, v2")
        a("v_lshl_add_u32 v10, v11, 3, v10")
        a("v_add_u32 v10, %d, v10" % (RB + TREG))
        a("s_mul_i32 s26, s25, 160")
        a("v_add_u32 v%d, s26, v10" % bF)
        a("v_add_u32 v%d, 128, v10" % bFh)
        for r in range(ACC, ACC + 72): a("v_mov_b32 v%d, 0" % r)
        for r in range(CS, CS + 20): a("v_mov_b32 v%d, 0" % r)
        for r in range(ONE, ONE + 4): a("v_mov_b32 v%d, 0x3f803f80" % r)
    def mma_addr(slot):
        a("s_mov_b32 s27, %d" % (slot * SLOT))
        for d, s_ in ((vTa[0], bTa[0]), (vTb[0], bTb[0]), (vTa[1], bTa[1]), (vTb[1], bTb[1]), (vF, bF), (vFh, bFh)):
            a("v_add_u32 v%d, s27, v%d" % (d, s_))
    core = G.Core(a, ACC, FB[0], FB[1], FS, TREG, vTa, vTb, vF, vFh)
    trk = core.trk
    a("s_cmp_eq_u32 s98, 0")
    a("s_cbranch_scc1 %s_A0" % name)
    a("s_setprio 3")
    loader_setup()
    a("s_waitcnt lgkmcnt(0)")
    srds_main()
    vm = VmTracker(a)
    def issue(g, vmx):
        issueT(g); issueF(g); vmx.issue("S%d" % g, 9)
    issueT(0)
    loader_setup2()
    issueF(0); vm.issue("S0", 9)
    issue(1, vm); issue(2, vm); issue(3, vm)
    a("s_add_u32 s3, s3, 4"); stamp_setup(a, 1); stamp(a, 0); a("s_sub_u32 s3, s3, 4")
    mma_setup()
    RA = 96; XB = 112
    for r in range(RA, RA + 16): a("v_mov_b32 v%d, 0" % r)
    a("v_lshrrev_b32 v10, 4, v2")
    a("v_lshrrev_b32 v11, 1, v3")
    a("v_xor_b32 v10, v10, v11")
    a("v_lshlrev_b32 v10, 4, v10")
    a("v_lshl_add_u32 v10, v3, 7, v10")
    a("v_add_u32 v12, s84, v10")
    a("v_xor_b32 v13, 64, v12")
    def rs_rd(g):
        a("v_add_u32 v10, %d, v12" % ((g % R) * SLOT))
        a("v_add_u32 v11, %d, v13" % ((g % R) * SLOT))
        for h in range(2):
            for n in range(2):
                a("ds_read_b128 %s, v%d offset:%d" % (vr(XB + 8 * h + 4 * n), 10 + h, 2048 * n))
    def rs_do():
        for h in range(2):
            for n in range(2):
                x = XB + 8 * h + 4 * n
                a("v_mfma_f32_16x16x32_bf16 %s, %s, %s, %s" % (vr(RA + 4 * n), vr(ONE), vr(x), vr(RA + 4 * n)))
                a("v_mfma_f32_16x16x32_bf16 %s, %s, %s, %s" % (vr(RA + 8 + 4 * n), vr(x), vr(x), vr(RA + 8 + 4 * n)))
    def interleave(dma, comp, vmx=None):
        groups = []; cur = []
        for l in dma:
            cur.append(l)
            if "buffer_load" in l and not any("exec, 0xffffffff" in x for x in cur[-2:]):
                groups.append(cur); cur = []
            elif "exec, -1" in l:
                groups.append(cur); cur = []
        if cur: groups.append(cur)
        ns = max(1, len(groups))
        per = (len(comp) + ns - 1) // ns
        for g in groups:
            a.lines.extend(g)
            a.lines.extend(comp[:per]); comp = comp[per:]
        a.lines.extend(comp)
    vm.wait(["S0"])
    a("s_barrier")
    stamp(a, 1)
    rs_rd(0)
    vm.wait(["S1"])
    a("s_barrier")
    for k in range(9):
        a("s_waitcnt lgkmcnt(0)")
        dma = capture(lambda: (issueT(k + 3), issueF(k + 3))) if k >= 1 else []
        interleave(dma, capture(rs_do))
        if k >= 1: vm.issue("S%d" % (k + 3), 9)
        if k < 8:
            rs_rd(k + 1)
        else:
            a("s_nop 7")
            a("v_lshrrev_b32 v10, 4, v2")
            a("v_lshrrev_b32 v11, 2, v3")
            a("v_and_b32 v12, 3, v3")
            for n in range(2):
                G_ = RA + 8 + 4 * n
                for r in range(1, 4):
                    a("v_cmp_eq_u32 vcc, %d, v12" % r)
                    a("s_nop 1")
                    a("v_cndmask_b32 v%d, v%d, v%d, vcc" % (G_, G_, G_ + r))
            ML = 112
            for n in range(2):
                emit_ln_finish(a, RA + 4 * n, RA + 8 + 4 * n, 576, ML + 2 * n, ML + 2 * n + 1, 120)
                a("v_mov_b32 v%d, v%d" % (117 + 2 * n, ML + 2 * n + 1))
                a("v_sub_f32 v%d, 0, v%d" % (116 + 2 * n, ML + 2 * n))
            a("s_lshl_b32 s35, s3, 8")
            a("v_lshlrev_b32 v13, 3, v3")
            a("v_add_u32 v12, s35, v13")
            a("v_cmp_eq_u32 vcc, v10, v11")
            a("s_and_saveexec_b64 s[36:37], vcc")
            for n in range(2):
                a("ds_write_b64 v12, %s offset:%d" % (vr(116 + 2 * n, 2), RST + 128 * n))
            a("s_mov_b64 exec, s[36:37]")
            a("s_cmp_lg_u32 s23, 0")
            a("s_cbranch_scc1 %s_nost1" % name)
            a("s_lshl_b32 s35, s22, 7")
            a("s_lshl_b32 s36, s3, 5")
            a("s_add_u32 s35, s35, s36")
            a("s_lshl_b32 s35, s35, 3")
            a("s_add_u32 s35, s35, 0x%x" % STATS1)
            a("v_mov_b32 v11, 0x7ffffff0")
            a("v_cndmask_b32 v13, v11, v13, vcc")
            for n in range(2):
                a("buffer_store_dwordx2 %s, v13, s[12:15], s35 offen offset:%d" % (vr(ML + 2 * n, 2), 128 * n))
            a.label("%s_nost1" % name)
            mma_addr(9 % R)
            a("s_mov_b32 s33, 0")
            a("s_setprio 0")
        vm.wait(["S%d" % (k + 2)], "lgkmcnt(0)" if k == 8 else "")
        if k < 8: a("s_barrier")
    a("s_branch %s_mma" % name)
    a.label("%s_A0" % name)
    emit_code_prefetch(a, name)
    a("s_load_dwordx4 s[64:67], s[0:1], 8")
    a("s_load_dwordx2 s[76:77], s[0:1], 24")
    a("s_load_dwordx2 s[90:91], s[0:1], 64")
    mma_setup()
    loader_setup(); loader_setup2()
    a("s_waitcnt lgkmcnt(0)")
    srds_main()
    srd(a, 68, 66, 2048 * 576 * 2)
    a("s_mov_b32 s88, s64"); a("s_mov_b32 s89, s65")
    srd(a, 64, 88, 2048 * 576 * 2)
    srd(a, 72, 76, 576 * 8)
    srd(a, 92, 90, 2048 * 2048 * 2)
    stamp_setup(a, 1); stamp(a, 0)
    def gran_addr():
        a("v_lshrrev_b32 v10, 4, v2")
        a("s_lshl_b32 s36, s25, 1")
        a("v_add_u32 v11, s36, v10")
        a("v_and_b32 v11, 3, v11")
        a("v_lshl_add_u32 v11, v11, 4, v3")
        a("v_lshlrev_b32 v94, 8, v11")
        a("s_lshl_b32 s59, s22, 7")
        a("s_lshl_b32 s36, s24, 6")
        a("s_add_u32 s59, s59, s36")
        a("s_lshl_b32 s59, s59, 8")
        a("s_add_u32 s59, s59, 0x%x" % STATS2)
        a("s_lshl_b32 s36, s23, 1")
        a("s_add_u32 s36, s36, s25")
        a("s_lshl_b32 s36, s36, 3")
        a("s_add_u32 s58, s36, s59")
    gran_addr()
    a("v_mov_b32 v12, 0"); a("v_mov_b32 v13, 0x80000000")
    a("buffer_store_dwordx2 v[12:13], v94, s[12:15], s58 offen sc1")
    mma_addr(0)
    a("s_mov_b32 s33, 0")
    a("s_barrier")
    stamp(a, 1)
    a.label("%s_mma" % name)
    core.prime(0, core.reads(0, 0))
    trk.drain()
    def mfmas(buf):
        L = []
        for ft in range(5):
            A = core.F(buf, ft)
            for tt in range(4 if ft < 4 else 2):
                c = core.accr(ft, tt); B = core.T(buf, tt)
                L.append(("v_mfma_f32_16x16x32_bf16 %s, %s, %s, %s" % (vr(c), vr(A), vr(B), vr(c)), list(range(A, A + 4)) + list(range(B, B + 4))))
            L.append(("v_mfma_f32_16x16x32_bf16 %s, %s, %s, %s" % (vr(CS + 4 * ft), vr(A), vr(ONE), vr(CS + 4 * ft)), list(range(A, A + 4))))
        return L
    def phase(buf, pend):
        for (m, regs) in mfmas(buf):
            trk.need(regs)
            a(m)
            while pend:
                k, t = pend.pop(0)
                if k == "x":
                    a(t)
                    if t.startswith("s_"): continue
                else:
                    a(t[0]); trk.issue(t[1])
                break
        for k, t in pend:
            if k == "x": a(t)
            else: a(t[0]); trk.issue(t[1])
    def iteration():
        a("s_waitcnt vmcnt(0)")
        a("s_barrier")
        rd = [("r", t) for t in core.reads(1, 1)]
        upd = ["s_add_u32 s27, s27, %d" % SLOT, "s_cmp_eq_u32 s27, %d" % (R * SLOT), "s_cselect_b32 s27, 0, s27"]
        tail = ["v_add_u32 v%d, s27, v%d" % (d, s_) for d, s_ in ((vTa[0], bTa[0]), (vF, bF), (vTb[0], bTb[0]), (vFh, bFh))]
        phase(0, rd[:1] + [("x", u) for u in upd] + rd[1:] + [("x", u) for u in tail])
        rd = [("r", t) for t in core.reads(0, 0)]
        tail = ["v_add_u32 v%d, s27, v%d" % (d, s_) for d, s_ in ((vTa[1], bTa[1]), (vTb[1], bTb[1]))] + ["s_add_u32 s33, s33, 1"]
        phase(1, rd + [("x", u) for u in tail])
    a.label("%s_cloop" % name)
    lb = len(a.lines); iteration(); st = copy.deepcopy(trk.out); del a.lines[lb:]; trk.out = copy.deepcopy(st)
    iteration()
    assert [sorted(x) for x in trk.out] == [sorted(x) for x in st]
    a("s_cmp_lt_u32 s33, 9")
    a("s_cbranch_scc1 %s_cloop" % name)
    trk.drain()
    stamp(a, 2)
    MR = 100; T = 72; ZP = 16
    def epi_in():
        gelu_consts(a)
        a("s_lshl_b32 s36, s24, 9")
        a("s_lshl_b32 s37, s25, 8")
        a("s_add_u32 s38, s36, s37")
        a("s_xor_b32 s37, s37, 256")
        a("s_add_u32 s39, s36, s37")
        a("v_lshlrev_b32 v10, 3, v3")
        a("v_add_u32 v11, s38, v10")
        a("ds_read_b64 %s, v11 offset:%d" % (vr(MR, 2), RST))
        a("ds_read_b64 %s, v11 offset:%d" % (vr(MR + 2, 2), RST + 128))
        a("v_add_u32 v11, s39, v10")
        a("ds_read_b64 %s, v11 offset:%d" % (vr(MR + 4, 2), RST))
        a("ds_read_b64 %s, v11 offset:%d" % (vr(MR + 6, 2), RST + 128))
        a("s_waitcnt lgkmcnt(0)")
    S = [108, 110, 52, 54]; Q = [109, 111, 53, 55]
    def gelu_ft(ft, stats):
        tts = range(4 if ft < 4 else 2)
        emit_fold_gelu(a, [(core.accr(ft, tt), CS + 4 * ft, MR + 2 * tt, ZP + 2 * tidx(ft, tt)) for tt in tts], T)
        if stats:
            for d in range(2):
                for tt in tts:
                    p = ZP + 2 * tidx(ft, tt) + d
                    a("v_dot2_f32_bf16 v%d, v%d, v%d, v%d" % (S[tt], p, ONE, S[tt]))
                    a("v_dot2_f32_bf16 v%d, v%d, v%d, v%d" % (Q[tt], p, p, Q[tt]))
    a("s_cmp_eq_u32 s98, 0")
    a("s_cbranch_scc1 %s_A1" % name)
    epi_in()
    a("s_lshl_b32 s36, s22, 4")
    a("s_add_u32 s36, s36, s23")
    a("s_lshl_b32 s36, s36, 2")
    a("s_add_u32 s36, s36, s3")
    a("s_mul_i32 s36, s36, 9216")
    a("s_add_u32 s36, s36, 0x%x" % Z1IMG)
    a("v_lshlrev_b32 v4, 4, v2")
    for ft in range(5):
        gelu_ft(ft, False)
        for q in ((2 * ft, 2 * ft + 1) if ft < 4 else (8,)):
            if q in (4, 8): a("s_add_u32 s36, s36, 4096")
            a("buffer_store_dwordx4 %s, v4, s[12:15], s36 offen offset:%d" % (vr(ZP + 4 * q), (q & 3) * 1024))
    stamp(a, 3)
    G.stamp_rt(a, 1)
    a("s_branch %s_end" % name)
    a.label("%s_A1" % name)
    a("s_setprio 2")
    vmA = VmTracker(a)
    PB = 132
    def aux_head():
        epi_in()
        for tt in range(4):
            a("v_mov_b32 v%d, 0" % S[tt]); a("v_mov_b32 v%d, 0" % Q[tt])
    def aux_pub():
        a("s_nop 2")
        emit_xg_reduce(a, S + Q, 72)
        a("v_lshrrev_b32 v10, 4, v2")
        for g in range(1, 4):
            a("v_cmp_eq_u32 vcc, %d, v10" % g)
            a("s_nop 1")
            a("v_cndmask_b32 v%d, v%d, v%d, vcc" % (S[0], S[0], S[g]))
            a("v_cndmask_b32 v%d, v%d, v%d, vcc" % (Q[0], Q[0], Q[g]))
        a("v_and_b32 v%d, 0x7fffffff, v%d" % (Q[0], Q[0]))
        a("buffer_store_dwordx2 v[%d:%d], v94, s[12:15], s58 offen sc1" % (S[0], Q[0]))
    chunks = [capture(aux_head) + capture(gelu_ft, 0, True), capture(gelu_ft, 1, True), capture(gelu_ft, 2, True),
              capture(gelu_ft, 3, True), capture(gelu_ft, 4, True) + capture(aux_pub)]
    KD = 172
    for k in range(9, 18):
        a("s_barrier")
        if k == 9:
            a("s_cmp_lg_u32 s3, 0")
            a("s_cbranch_scc1 %s_nosig" % name)
            a("v_mov_b32 v10, 1")
            a("s_lshl_b32 s36, s22, 2")
            a("v_mov_b32 v11, s36")
            a("s_mov_b64 exec, 1")
            a("buffer_atomic_add v10, v11, s[60:63], 0 offen sc1")
            a("s_mov_b64 exec, -1")
            a.label("%s_nosig" % name)
        g = k + 3
        dma = capture(lambda: (issueT(g), issueF(g))) if g < 18 else []
        comp = chunks[k - 9] if k - 9 < len(chunks) else []
        interleave(dma, comp)
        if k == 13: vmA.issue("pub", 1)
        if g < 18: vmA.issue("S%d" % g, 9)
        if k == 14:
            a("s_mov_b32 s41, s2")
            emit_kv_loads(a, KD, KD + 12, KD + 20, KD + 24, KD + 25); vmA.issue("kv", 20)
            a("s_lshl_b32 s36, s22, 2")
            a("v_mov_b32 v199, s36")
            a("buffer_load_dword v198, v199, s[60:63], 0 offen sc1"); vmA.issue("cnt", 1)
        if k + 2 < 18 and k + 2 >= 12:
            vmA.wait(["S%d" % (k + 2)])
    stamp(a, 3)
    a("s_setprio 0")
    a("v_lshrrev_b32 v10, 4, v2")
    a("v_lshlrev_b32 v95, 8, v3")
    a("v_lshl_add_u32 v95, v10, 6, v95")
    a("s_lshl_b32 s33, s25, 13")
    a("s_add_u32 s52, s59, s33")
    a("s_xor_b32 s33, s33, 8192")
    a("s_add_u32 s53, s59, s33")
    a("s_add_u32 s42, s52, 4096")
    a("s_add_u32 s43, s53, 4096")
    for r_ in range(36): a("v_mov_b32 v%d, v%d" % (216 + r_, ZP + r_))
    Z2 = 216
    a("s_waitcnt vmcnt(0)")
    GB = [128, 144, 160, 176]
    for n in range(11): a("v_mov_b32 v%d, v%d" % (16 + n, KD + n))
    for n in range(8): a("v_mov_b32 v%d, v%d" % (32 + n, KD + 12 + n))
    for n in range(4): a("v_mov_b32 v%d, v%d" % (44 + n, KD + 20 + n))
    a("v_mov_b32 v56, v%d" % (KD + 24)); a("v_mov_b32 v57, v%d" % (KD + 25))
    a("v_mov_b32 v4, v95")
    def gather():
        for tt in range(4):
            for q in range(4):
                a("buffer_load_dwordx4 %s, v4, s[12:15], s%d offen offset:%d sc1" % (vr(GB[tt] + 4 * q), (52, 42, 53, 43)[tt], 16 * q))
    gather()
    emit_kv_compute(a, wait=False, store=False)
    stamp(a, 4)
    a("s_mov_b32 s40, 0")
    a("s_waitcnt vmcnt(0)")
    a.label("%s_chk" % name)
    a("v_subrev_u32 v11, 16, v198")
    for tt in range(4):
        for r in range(GB[tt] + 1, GB[tt] + 16, 4):
            a("v_or3_b32 v11, v11, v%d, v%d" % (r, r + 2))
    a("v_cmp_gt_i32 vcc, 0, v11")
    a("s_add_u32 s40, s40, 1")
    a("s_cmp_gt_u32 s40, %d" % SPIN_MAX)
    a("s_cbranch_scc1 %s_ok" % name)
    a("s_cbranch_vccz %s_ok" % name)
    a("s_sleep 32")
    a("buffer_load_dword v198, v199, s[60:63], 0 offen sc1")
    a("s_waitcnt vmcnt(0)")
    gather()
    a("s_waitcnt vmcnt(0)")
    a("s_branch %s_chk" % name)
    a.label("%s_ok" % name)
    stamp(a, 5)
    a("v_lshrrev_b32 v5, 4, v2")
    a("v_lshlrev_b32 v5, 12, v5")
    a("v_lshl_add_u32 v5, v3, 4, v5")
    a("s_lshl_b32 s33, s22, 7")
    a("s_lshl_b32 s36, s3, 5")
    a("s_add_u32 s33, s33, s36")
    a("s_lshl_b32 s33, s33, 12")
    a("s_lshl_b32 s36, s23, 8")
    a("s_add_u32 s33, s33, s36")
    for n in range(8):
        a("buffer_load_dwordx4 v[200:203], v5, s[92:95], s33 offen")
        if n < 7: a("s_add_u32 s33, s33, 16384")
    a("s_mov_b32 s39, 0x%x" % KVT)
    a("buffer_store_dwordx4 v[120:123], v12, s[12:15], s39 offen")
    a("buffer_store_dwordx4 v[124:127], v13, s[12:15], s39 offen")
    for tt in range(4):
        b = GB[tt]
        for st_ in (8, 4, 2):
            for q in range(0, st_, 2):
                a("v_pk_add_f32 %s, %s, %s" % (vr(b + q, 2), vr(b + q, 2), vr(b + q + st_, 2)))
    emit_xg_reduce(a, [GB[tt] + e for tt in range(4) for e in range(2)], 72)
    for tt in range(4):
        b = GB[tt]
        emit_ln_finish(a, b, b + 1, 2304, b + 2, MR + 2 * tt, b + 4)
        a("v_mul_f32 v%d, -v%d, v%d" % (MR + 2 * tt + 1, b + 2, MR + 2 * tt))
    a("v_lshrrev_b32 v10, 4, v2")
    a("v_lshrrev_b32 v11, 2, v2"); a("v_and_b32 v11, 1, v11"); a("v_lshlrev_b32 v11, 4, v11")
    a("v_lshrrev_b32 v5, 3, v2"); a("v_and_b32 v5, 1, v5"); a("v_lshl_add_u32 v11, v5, 2, v11")
    a("v_and_b32 v5, 3, v2"); a("v_add_u32 v11, v11, v5")
    a("v_mul_u32_u24 v11, 288, v11")
    a("v_lshrrev_b32 v5, 1, v10"); a("v_lshl_add_u32 v11, v5, 4, v11")
    a("v_and_b32 v5, 1, v10")
    a("v_lshl_add_u32 v6, v5, 5, v11")
    a("v_mul_u32_u24 v5, 2304, v5")
    a("v_add_u32 v9, v11, v5")
    a("s_lshl_b32 s33, s23, 5")
    a("s_lshl_b32 s36, s22, 1")
    a("s_add_u32 s33, s33, s36")
    a("s_add_u32 s33, s33, s24")
    a("s_mul_i32 s33, s33, 18432")
    if ZIMG: a("s_add_u32 s33, s33, 0x%x" % ZIMG)
    a("s_mul_i32 s36, s25, 9216")
    a("s_add_u32 s37, s33, s36")
    a("s_xor_b32 s36, s36, 9216")
    a("s_add_u32 s38, s33, s36")
    a("s_add_u32 s39, s37, 128")
    a("s_mul_i32 s36, s25, 160")
    a("s_add_u32 s37, s37, s36")
    a("s_add_u32 s38, s38, s36")
    def norm_pair(nA, ttA, nB, ttB, O):
        for q, (n, tt) in enumerate(((nA, ttA), (nB, ttB))):
            for d in range(2):
                z = Z2 + 2 * n + d; t = T + 4 * q + 2 * d
                a("v_lshlrev_b32 v%d, 16, v%d" % (t, z))
                a("v_and_b32 v%d, 0xffff0000, v%d" % (t + 1, z))
        for q, (n, tt) in enumerate(((nA, ttA), (nB, ttB))):
            for d in range(2):
                t = T + 4 * q + 2 * d
                a("v_pk_fma_f32 %s, %s, %s, %s op_sel:[0,0,1] op_sel_hi:[1,0,1]" % (vr(t, 2), vr(t, 2), vr(MR + 2 * tt, 2), vr(MR + 2 * tt, 2)))
        for q in range(2):
            for d in range(2):
                t = T + 4 * q + 2 * d
                a("v_cvt_pk_bf16_f32 v%d, v%d, v%d" % (O + 2 * q + d, t, t + 1))
        a("s_nop 1")
        a("v_permlane16_swap_b32 v%d, v%d" % (O, O + 2))
        a("v_permlane16_swap_b32 v%d, v%d" % (O + 1, O + 3))
    cnt = 0
    for pr in range(2):
        for tt in range(4):
            O = 16 + 4 * cnt; cnt += 1
            norm_pair(tidx(2 * pr, tt), tt, tidx(2 * pr + 1, tt), tt, O)
            a("s_nop 0")
            a("buffer_store_dwordx4 %s, v6, s[12:15], s%d offen offset:%d" % (vr(O), 37 if tt < 2 else 38, (tt & 1) * 2304 + 64 * pr))
    O = 16 + 4 * cnt
    norm_pair(16, 0, 17, 1, O)
    a("s_nop 0")
    a("buffer_store_dwordx4 %s, v9, s[12:15], s39 offen" % vr(O))
    stamp(a, 6)
    a("s_cmp_ge_u32 s2, 32")
    a("s_cbranch_scc1 %s_fin" % name)
    a("s_add_u32 s41, s2, 256")
    emit_kv_loads(a)
    emit_kv_compute(a)
    a.label("%s_fin" % name)
    stamp(a, 7)
    G.stamp_rt(a, 1)
    a.label("%s_end" % name)
    a("s_endpgm")
    return a.text(), kernel_desc(name, 256, 256), (name, 256, 512, LDSB)

def gen_kf(name="k1_kernel", R=4):
    a = Asm()
    RB = 4096; SLOT = 34816; TREG = 16384; FS = 288; RST = 0
    LDSB = RB + R * SLOT
    LC = 2048
    ZFLG = 0x2D00000
    from gen3 import emit_conv_loads, emit_conv_job, CJ_SIZE
    def capture(f, *args):
        lb = len(a.lines); f(*args); out = a.lines[lb:]; del a.lines[lb:]; return out
    kernel_begin(a, name)
    a("s_load_dwordx2 s[80:81], s[0:1], 0")
    a("s_load_dwordx2 s[4:5], s[0:1], 56")
    a("s_load_dwordx2 s[6:7], s[0:1], 104")
    a("s_load_dwordx2 s[18:19], s[0:1], 96")
    a("s_cmp_ge_u32 s2, 256")
    a("s_cbranch_scc1 %s_end" % name)
    a("v_lshrrev_b32 v1, 6, v0")
    a("v_and_b32 v2, 63, v0")
    a("v_readfirstlane_b32 s3, v1")
    G2.tile_ij(a)
    a("s_lshr_b32 s98, s3, 2")
    a("s_mov_b32 s54x, 0".replace("s54x", "s99"))
    a("s_and_b32 s3, s3, 3")
    a("s_lshr_b32 s24, s3, 1")
    a("s_and_b32 s25, s3, 1")
    a("v_and_b32 v3, 15, v2")
    VT = 204; VF = 208
    def loader_setup():
        a("v_lshrrev_b32 v5, 3, v2")
        a("v_and_b32 v4, 7, v2")
        a("s_lshl_b32 s36, s3, 5")
        a("v_add_u32 v5, s36, v5")
        a("v_lshrrev_b32 v7, 4, v2")
        a("v_xor_b32 v7, v7, v4")
        a("v_mul_u32_u24 v6, 1152, v5")
        a("v_lshl_add_u32 v%d, v7, 4, v6" % VT)
        a("v_xor_b32 v%d, 64, v%d" % (VT + 1, VT))
        a("v_add_u32 v%d, %d, v%d" % (VT + 1, 9216 - 1024, VT + 1))
        a("v_add_u32 v%d, %d, v%d" % (VT + 2, 2 * (9216 - 1024), VT))
        a("v_add_u32 v%d, %d, v%d" % (VT + 3, 2 * (9216 - 1024), VT + 1))
        a("s_lshl_b32 s84, s3, 12")
        a("s_add_u32 s84, s84, %d" % RB)
        a("s_lshl_b32 s85, s3, 9")
        a("s_add_u32 s85, s85, %d" % (RB + TREG + 16384))
    def loader_setup2():
        for n in range(5):
            if n < 4:
                a("s_lshl_b32 s36, s3, 8")
                a("s_add_u32 s36, s36, %d" % (64 * n))
            else:
                a("s_lshl_b32 s36, s3, 5")
                a("s_add_u32 s36, s36, 1024")
            a("v_add_u32 v6, s36, v2")
            a("v_mul_u32_u24 v7, 3641, v6")
            a("v_lshrrev_b32 v7, 16, v7")
            a("v_mul_u32_u24 v8, 18, v7")
            a("v_sub_u32 v8, v6, v8")
            a("v_and_b32 v9, 35, v7")
            a("v_bfe_u32 v6, v7, 2, 2")
            a("v_lshl_add_u32 v9, v6, 3, v9")
            a("v_bfe_u32 v6, v7, 4, 1")
            a("v_lshl_add_u32 v9, v6, 2, v9")
            a("v_mul_u32_u24 v9, 9216, v9")
            a("v_lshl_add_u32 v%d, v8, 4, v9" % (VF + n))
            if 0 < n < 4: a("v_subrev_u32 v%d, %d, v%d" % (VF + n, 1024 * n, VF + n))
    def issueT(g):
        st = g % 9
        a("s_add_u32 s86, s84, %d" % ((g % R) * SLOT))
        a("s_mov_b32 m0, s86")
        a("s_add_u32 s87, s82, %d" % (128 * st))
        for n in range(4):
            a("buffer_load_dwordx4 v%d, s[28:31], s87 offen offset:%d lds" % (VT + n, 1024 * n))
    def issueF(g):
        st = g % 9
        a("s_add_u32 s86, s84, %d" % ((g % R) * SLOT + TREG))
        a("s_mov_b32 m0, s86")
        a("s_add_u32 s87, s83, %d" % (64 * 9216 * st + (4608 if g < 9 else 0)))
        for n in range(4):
            a("buffer_load_dwordx4 v%d, s[8:11], s87 offen offset:%d lds" % (VF + n, 1024 * n))
        a("s_add_u32 s86, s85, %d" % ((g % R) * SLOT))
        a("s_mov_b32 m0, s86")
        a("s_mov_b64 exec, 0xffffffff")
        a("buffer_load_dwordx4 v%d, s[8:11], s87 offen lds" % (VF + 4))
        a("s_mov_b64 exec, -1")
    def srds_main():
        srd(a, 28, 80, 2048 * 576 * 2)
        srd(a, 8, 4, 576 * 4608 * 2)
        srd(a, 12, 6, WS_BYTES)
        srd(a, 60, 18, 256)
        a("s_mul_i32 s82, s22, %d" % (128 * 1152))
        a("s_mul_i32 s83, s23, 288")
    ACC = 128; FB = [16, 52]; CS = 216; ONE = 236
    vTa = [4, 5]; vTb = [6, 7]; vF = 8; vFh = 9
    bTa = [88, 89]; bTb = [90, 91]; bF = 92; bFh = 93
    def mma_setup():
        a("v_lshrrev_b32 v10, 4, v2")
        a("v_lshrrev_b32 v11, 1, v3")
        a("v_xor_b32 v10, v10, v11")
        a("v_lshlrev_b32 v10, 4, v10")
        a("v_lshl_add_u32 v10, v3, 7, v10")
        a("s_lshl_b32 s26, s24, 13")
        a("s_add_u32 s26, s26, %d" % RB)
        a("v_add_u32 v10, s26, v10")
        a("s_lshl_b32 s26, s25, 12")
        a("v_add_u32 v%d, s26, v10" % bTa[0])
        a("s_xor_b32 s26, s26, 4096")
        a("v_add_u32 v%d, s26, v10" % bTb[0])
        a("v_xor_b32 v%d, 64, v%d" % (bTa[1], bTa[0]))
        a("v_xor_b32 v%d, 64, v%d" % (bTb[1], bTb[0]))
        a("v_lshrrev_b32 v10, 2, v2")
        a("v_mul_u32_u24 v10, %d, v10" % FS)
        a("v_and_b32 v11, 3, v2")
        a("v_lshl_add_u32 v10, v11, 3, v10")
        a("v_add_u32 v10, %d, v10" % (RB + TREG))
        a("s_mul_i32 s26, s25, 160")
        a("v_add_u32 v%d, s26, v10" % bF)
        a("v_add_u32 v%d, 128, v10" % bFh)
        for r in range(ACC, ACC + 72): a("v_mov_b32 v%d, 0" % r)
        for r in range(CS, CS + 20): a("v_mov_b32 v%d, 0" % r)
        for r in range(ONE, ONE + 4): a("v_mov_b32 v%d, 0x3f803f80" % r)
    def mma_addr(slot):
        a("s_mov_b32 s27, %d" % (slot * SLOT))
        for d, s_ in ((vTa[0], bTa[0]), (vTb[0], bTb[0]), (vTa[1], bTa[1]), (vTb[1], bTb[1]), (vF, bF), (vFh, bFh)):
            a("v_add_u32 v%d, s27, v%d" % (d, s_))
    core = G.Core(a, ACC, FB[0], FB[1], FS, TREG, vTa, vTb, vF, vFh)
    trk = core.trk
    a("s_cmp_eq_u32 s98, 0")
    a("s_cbranch_scc1 %s_A0" % name)
    a("s_setprio 3")
    loader_setup()
    a("s_waitcnt lgkmcnt(0)")
    srds_main()
    vm = VmTracker(a)
    def issue(g, vmx):
        issueT(g); issueF(g); vmx.issue("S%d" % g, 9)
    issueT(0)
    loader_setup2()
    issueF(0); vm.issue("S0", 9)
    issue(1, vm); issue(2, vm); issue(3, vm)
    a("s_add_u32 s3, s3, 4"); stamp_setup(a, 1); stamp(a, 0); a("s_sub_u32 s3, s3, 4")
    mma_setup()
    RA = 96; XB = 112
    for r in range(RA, RA + 16): a("v_mov_b32 v%d, 0" % r)
    a("v_lshrrev_b32 v10, 4, v2")
    a("v_lshrrev_b32 v11, 1, v3")
    a("v_xor_b32 v10, v10, v11")
    a("v_lshlrev_b32 v10, 4, v10")
    a("v_lshl_add_u32 v10, v3, 7, v10")
    a("v_add_u32 v12, s84, v10")
    a("v_xor_b32 v13, 64, v12")
    def rs_rd(g):
        a("v_add_u32 v10, %d, v12" % ((g % R) * SLOT))
        a("v_add_u32 v11, %d, v13" % ((g % R) * SLOT))
        for h in range(2):
            for n in range(2):
                a("ds_read_b128 %s, v%d offset:%d" % (vr(XB + 8 * h + 4 * n), 10 + h, 2048 * n))
    def rs_do():
        for h in range(2):
            for n in range(2):
                x = XB + 8 * h + 4 * n
                a("v_mfma_f32_16x16x32_bf16 %s, %s, %s, %s" % (vr(RA + 4 * n), vr(ONE), vr(x), vr(RA + 4 * n)))
                a("v_mfma_f32_16x16x32_bf16 %s, %s, %s, %s" % (vr(RA + 8 + 4 * n), vr(x), vr(x), vr(RA + 8 + 4 * n)))
    def interleave(dma, comp, vmx=None):
        groups = []; cur = []
        for l in dma:
            cur.append(l)
            if "buffer_load" in l and not any("exec, 0xffffffff" in x for x in cur[-2:]):
                groups.append(cur); cur = []
            elif "exec, -1" in l:
                groups.append(cur); cur = []
        if cur: groups.append(cur)
        ns = max(1, len(groups))
        per = (len(comp) + ns - 1) // ns
        for g in groups:
            a.lines.extend(g)
            a.lines.extend(comp[:per]); comp = comp[per:]
        a.lines.extend(comp)
    vm.wait(["S0"])
    a("s_barrier")
    stamp(a, 1)
    rs_rd(0)
    vm.wait(["S1"])
    a("s_barrier")
    for k in range(9):
        a("s_waitcnt lgkmcnt(0)")
        dma = capture(lambda: (issueT(k + 3), issueF(k + 3))) if k >= 1 else []
        interleave(dma, capture(rs_do))
        if k >= 1: vm.issue("S%d" % (k + 3), 9)
        if k < 8:
            rs_rd(k + 1)
        else:
            a("s_nop 7")
            a("v_lshrrev_b32 v10, 4, v2")
            a("v_lshrrev_b32 v11, 2, v3")
            a("v_and_b32 v12, 3, v3")
            for n in range(2):
                G_ = RA + 8 + 4 * n
                for r in range(1, 4):
                    a("v_cmp_eq_u32 vcc, %d, v12" % r)
                    a("s_nop 1")
                    a("v_cndmask_b32 v%d, v%d, v%d, vcc" % (G_, G_, G_ + r))
            ML = 112
            for n in range(2):
                emit_ln_finish(a, RA + 4 * n, RA + 8 + 4 * n, 576, ML + 2 * n, ML + 2 * n + 1, 120)
                a("v_mov_b32 v%d, v%d" % (117 + 2 * n, ML + 2 * n + 1))
                a("v_sub_f32 v%d, 0, v%d" % (116 + 2 * n, ML + 2 * n))
            a("s_lshl_b32 s35, s3, 8")
            a("v_lshlrev_b32 v13, 3, v3")
            a("v_add_u32 v12, s35, v13")
            a("v_cmp_eq_u32 vcc, v10, v11")
            a("s_and_saveexec_b64 s[36:37], vcc")
            for n in range(2):
                a("ds_write_b64 v12, %s offset:%d" % (vr(116 + 2 * n, 2), RST + 128 * n))
            a("s_mov_b64 exec, s[36:37]")
            a("s_cmp_lg_u32 s23, 0")
            a("s_cbranch_scc1 %s_nost1" % name)
            a("s_lshl_b32 s35, s22, 7")
            a("s_lshl_b32 s36, s3, 5")
            a("s_add_u32 s35, s35, s36")
            a("s_lshl_b32 s35, s35, 3")
            a("s_add_u32 s35, s35, 0x%x" % STATS1)
            a("v_mov_b32 v11, 0x7ffffff0")
            a("v_cndmask_b32 v13, v11, v13, vcc")
            for n in range(2):
                a("buffer_store_dwordx2 %s, v13, s[12:15], s35 offen offset:%d" % (vr(ML + 2 * n, 2), 128 * n))
            a.label("%s_nost1" % name)
            mma_addr(9 % R)
            a("s_mov_b32 s33, 0")
            a("s_setprio 0")
        vm.wait(["S%d" % (k + 2)], "lgkmcnt(0)" if k == 8 else "")
        if k < 8: a("s_barrier")
    a("s_branch %s_mma" % name)
    a.label("%s_A0" % name)
    emit_code_prefetch(a, name)
    a("s_load_dwordx4 s[64:67], s[0:1], 8")
    a("s_load_dwordx2 s[76:77], s[0:1], 24")
    a("s_load_dwordx2 s[78:79], s[0:1], 64")
    mma_setup()
    loader_setup(); loader_setup2()
    a("s_waitcnt lgkmcnt(0)")
    srds_main()
    srd(a, 68, 66, 2048 * 576 * 2)
    a("s_mov_b32 s88, s64"); a("s_mov_b32 s89, s65")
    srd(a, 64, 88, 2048 * 576 * 2)
    srd(a, 72, 76, 576 * 8)
    stamp_setup(a, 1); stamp(a, 0)
    def gran_addr():
        a("v_lshrrev_b32 v10, 4, v2")
        a("s_lshl_b32 s36, s25, 1")
        a("v_add_u32 v11, s36, v10")
        a("v_and_b32 v11, 3, v11")
        a("v_lshl_add_u32 v11, v11, 4, v3")
        a("v_lshlrev_b32 v94, 8, v11")
        a("s_lshl_b32 s59, s22, 7")
        a("s_lshl_b32 s36, s24, 6")
        a("s_add_u32 s59, s59, s36")
        a("s_lshl_b32 s59, s59, 8")
        a("s_add_u32 s59, s59, 0x%x" % STATS2)
        a("s_lshl_b32 s36, s23, 1")
        a("s_add_u32 s36, s36, s25")
        a("s_lshl_b32 s36, s36, 3")
        a("s_add_u32 s58, s36, s59")
    gran_addr()
    a("v_mov_b32 v12, 0"); a("v_mov_b32 v13, 0x80000000")
    a("buffer_store_dwordx2 v[12:13], v94, s[12:15], s58 offen sc1")
    a("s_lshl_b32 s36, s22, 4")
    a("s_add_u32 s36, s36, s23")
    a("s_lshl_b32 s36, s36, 8")
    a("s_add_u32 s97, s36, 0x%x" % ZFLG)
    a("v_mov_b32 v10, %d" % LC)
    a("v_mov_b32 v12, 0"); a("v_mov_b32 v13, 0")
    a("s_mov_b64 exec, 1")
    a("buffer_store_dword v12, v12, s[12:15], s97 offen sc1")
    a("s_mov_b64 exec, -1")
    a("ds_write_b64 v10, v[12:13]")
    a("ds_write_b64 v10, v[12:13] offset:8")
    mma_addr(0)
    a("s_mov_b32 s33, 0")
    a("s_waitcnt lgkmcnt(0)")
    a("s_barrier")
    stamp(a, 1)
    a.label("%s_mma" % name)
    core.prime(0, core.reads(0, 0))
    trk.drain()
    nocs = [False]
    def mfmas(buf):
        L = []
        for ft in range(5):
            A = core.F(buf, ft)
            for tt in range(4 if ft < 4 else 2):
                c = core.accr(ft, tt); B = core.T(buf, tt)
                L.append(("v_mfma_f32_16x16x32_bf16 %s, %s, %s, %s" % (vr(c), vr(A), vr(B), vr(c)), list(range(A, A + 4)) + list(range(B, B + 4))))
            if not nocs[0]: L.append(("v_mfma_f32_16x16x32_bf16 %s, %s, %s, %s" % (vr(CS + 4 * ft), vr(A), vr(ONE), vr(CS + 4 * ft)), list(range(A, A + 4))))
        return L
    def phase(buf, pend):
        for (m, regs) in mfmas(buf):
            trk.need(regs)
            a(m)
            while pend:
                k, t = pend.pop(0)
                if k == "x":
                    a(t)
                    if t.startswith("s_"): continue
                else:
                    a(t[0]); trk.issue(t[1])
                break
        for k, t in pend:
            if k == "x": a(t)
            else: a(t[0]); trk.issue(t[1])
    def iteration(vw=True):
        if vw: a("s_waitcnt vmcnt(0)")
        a("s_barrier")
        rd = [("r", t) for t in core.reads(1, 1)]
        upd = ["s_add_u32 s27, s27, %d" % SLOT, "s_cmp_eq_u32 s27, %d" % (R * SLOT), "s_cselect_b32 s27, 0, s27"]
        tail = ["v_add_u32 v%d, s27, v%d" % (d, s_) for d, s_ in ((vTa[0], bTa[0]), (vF, bF), (vTb[0], bTb[0]), (vFh, bFh))]
        phase(0, rd[:1] + [("x", u) for u in upd] + rd[1:] + [("x", u) for u in tail])
        rd = [("r", t) for t in core.reads(0, 0)]
        tail = ["v_add_u32 v%d, s27, v%d" % (d, s_) for d, s_ in ((vTa[1], bTa[1]), (vTb[1], bTb[1]))] + ["s_add_u32 s33, s33, 1"]
        phase(1, rd + [("x", u) for u in tail])
    a.label("%s_cloop" % name)
    lb = len(a.lines); iteration(); st = copy.deepcopy(trk.out); del a.lines[lb:]; trk.out = copy.deepcopy(st)
    iteration()
    assert [sorted(x) for x in trk.out] == [sorted(x) for x in st]
    a("s_cmp_lt_u32 s33, 9")
    a("s_cbranch_scc1 %s_cloop" % name)
    trk.drain()
    stamp(a, 2)
    MR = 100; T = 72; ZP = 16
    def epi_in():
        gelu_consts(a)
        a("s_lshl_b32 s36, s24, 9")
        a("s_lshl_b32 s37, s25, 8")
        a("s_add_u32 s38, s36, s37")
        a("s_xor_b32 s37, s37, 256")
        a("s_add_u32 s39, s36, s37")
        a("v_lshlrev_b32 v10, 3, v3")
        a("v_add_u32 v11, s38, v10")
        a("ds_read_b64 %s, v11 offset:%d" % (vr(MR, 2), RST))
        a("ds_read_b64 %s, v11 offset:%d" % (vr(MR + 2, 2), RST + 128))
        a("v_add_u32 v11, s39, v10")
        a("ds_read_b64 %s, v11 offset:%d" % (vr(MR + 4, 2), RST))
        a("ds_read_b64 %s, v11 offset:%d" % (vr(MR + 6, 2), RST + 128))
        a("s_waitcnt lgkmcnt(0)")
    S = [108, 110, 52, 54]; Q = [109, 111, 53, 55]
    def gelu_ft(ft, stats):
        tts = range(4 if ft < 4 else 2)
        emit_fold_gelu(a, [(core.accr(ft, tt), CS + 4 * ft, MR + 2 * tt, ZP + 2 * tidx(ft, tt)) for tt in tts], T)
        if stats:
            for d in range(2):
                for tt in tts:
                    p = ZP + 2 * tidx(ft, tt) + d
                    a("v_dot2_f32_bf16 v%d, v%d, v%d, v%d" % (S[tt], p, ONE, S[tt]))
                    a("v_dot2_f32_bf16 v%d, v%d, v%d, v%d" % (Q[tt], p, p, Q[tt]))
    a("s_cmp_eq_u32 s98, 0")
    a("s_cbranch_scc1 %s_A1" % name)
    a("s_barrier")
    a("s_load_dwordx4 s[64:67], s[0:1], 8")
    a("s_load_dwordx2 s[76:77], s[0:1], 24")
    a("s_load_dwordx2 s[94:95], s[0:1], 80")
    a("s_load_dwordx2 s[92:93], s[0:1], 72")
    epi_in()
    srd(a, 68, 66, 2048 * 576 * 2)
    a("s_mov_b32 s88, s64"); a("s_mov_b32 s89, s65")
    srd(a, 64, 88, 2048 * 576 * 2)
    srd(a, 72, 76, 576 * 8)
    srd(a, 76, 94, 2304 * 576 * 2)
    srd(a, 28, 92, 2048 * 2)
    a("v_and_b32 v0, 255, v0")
    a("s_mov_b32 s41, s2")
    KDB = 240
    emit_kv_loads(a, 112, 240, 248, 252, 253)
    for ft in range(5): gelu_ft(ft, False)
    Z1R = 200; BI = 236
    for r_ in range(36): a("v_mov_b32 v%d, v%d" % (Z1R + r_, ZP + r_))
    stamp(a, 3)
    a("s_waitcnt vmcnt(0)")
    for n in range(11): a("v_mov_b32 v%d, v%d" % (16 + n, 112 + n))
    for n in range(8): a("v_mov_b32 v%d, v%d" % (32 + n, 240 + n))
    for n in range(4): a("v_mov_b32 v%d, v%d" % (44 + n, 248 + n))
    a("v_mov_b32 v56, v252"); a("v_mov_b32 v57, v253")
    for r_ in range(6): a("v_mov_b32 v%d, v%d" % (240 + r_, 88 + r_))
    a.label("%s_kvb" % name)
    emit_kv_compute(a, wait=False, store=False)
    a("s_mov_b32 s39, 0x%x" % KVT)
    a("buffer_store_dwordx4 v[120:123], v12, s[12:15], s39 offen sc1")
    a("buffer_store_dwordx4 v[124:127], v13, s[12:15], s39 offen sc1")
    a("s_add_u32 s41, s41, 256")
    a("s_cmp_ge_u32 s41, 288")
    a("s_cbranch_scc1 %s_kvbd" % name)
    emit_kv_loads(a)
    a("s_waitcnt vmcnt(0)")
    a("s_branch %s_kvb" % name)
    a.label("%s_kvbd" % name)
    for r_ in range(6): a("v_mov_b32 v%d, v%d" % (88 + r_, 240 + r_))
    a("s_mov_b32 s42, s2")
    emit_wot_loads(a, 100, 112, 720, 3)
    a("s_lshl_b32 s36, s22, 7")
    a("s_lshl_b32 s37, s24, 6")
    a("s_add_u32 s36, s36, s37")
    a("v_lshlrev_b32 v11, 1, v3")
    a("s_lshl_b32 s37, s25, 6")
    a("s_lshl_b32 s38, s36, 1")
    a("s_add_u32 s39, s38, s37")
    a("s_xor_b32 s37, s37, 64")
    a("s_add_u32 s36, s38, s37")
    a("buffer_load_ushort v96, v11, s[28:31], s39 offen")
    a("buffer_load_ushort v97, v11, s[28:31], s39 offen offset:32")
    a("buffer_load_ushort v98, v11, s[28:31], s36 offen")
    a("buffer_load_ushort v99, v11, s[28:31], s36 offen offset:32")
    for r in range(ACC, ACC + 72): a("v_mov_b32 v%d, 0" % r)
    mma_addr(0)
    a("s_mov_b32 s33, 0")
    stamp(a, 4)
    a("s_barrier")
    stamp(a, 5)
    core.prime(0, core.reads(0, 0))
    trk.drain()
    nocs[0] = True
    a.label("%s_gloop" % name)
    lb = len(a.lines); iteration(False); st = copy.deepcopy(trk.out); del a.lines[lb:]; trk.out = copy.deepcopy(st)
    iteration(False)
    assert [sorted(x) for x in trk.out] == [sorted(x) for x in st]
    a("s_cmp_lg_u32 s33, 3")
    a("s_cbranch_scc1 %s_ghk" % name)
    a("s_waitcnt vmcnt(0)")
    for n in range(3):
        a("buffer_store_dwordx4 %s, v%d, s[12:15], s40 offen" % (vr(100 + 4 * n), 112 + n))
    for tt in range(4): a("v_lshlrev_b32 v%d, 16, v%d" % (BI + 2 * tt, 96 + tt))
    a("v_mov_b32 v10, %d" % (LC + 8))
    a("v_mov_b32 v11, 1")
    a("s_mov_b64 exec, 1")
    a("ds_add_rtn_u32 v12, v10, v11")
    a("s_waitcnt lgkmcnt(0)")
    a("v_readfirstlane_b32 s36, v12")
    a("s_cmp_lg_u32 s36, 3")
    a("s_cbranch_scc1 %s_nokvs" % name)
    a("s_and_b32 s36, s2, 15")
    a("s_lshl_b32 s36, s36, 2")
    a("s_add_u32 s36, s36, 128")
    a("v_mov_b32 v10, s36")
    a("buffer_atomic_add v11, v10, s[60:63], 0 offen sc1")
    a.label("%s_nokvs" % name)
    a("s_mov_b64 exec, -1")
    a.label("%s_ghk" % name)
    a("s_cmp_lt_u32 s33, 32")
    a("s_cbranch_scc1 %s_gloop" % name)
    trk.drain()
    stamp(a, 6)
    G3.emit_k2_epilogue(a, core, Z1R, BI)
    stamp(a, 7)
    G.stamp_rt(a, 1)
    a("s_branch %s_end" % name)
    a.label("%s_A1" % name)
    a("s_setprio 2")
    vmA = VmTracker(a)
    PB = 132
    def aux_head():
        epi_in()
        for tt in range(4):
            a("v_mov_b32 v%d, 0" % S[tt]); a("v_mov_b32 v%d, 0" % Q[tt])
    def aux_pub():
        a("s_nop 2")
        emit_xg_reduce(a, S + Q, 72)
        a("v_lshrrev_b32 v10, 4, v2")
        for g in range(1, 4):
            a("v_cmp_eq_u32 vcc, %d, v10" % g)
            a("s_nop 1")
            a("v_cndmask_b32 v%d, v%d, v%d, vcc" % (S[0], S[0], S[g]))
            a("v_cndmask_b32 v%d, v%d, v%d, vcc" % (Q[0], Q[0], Q[g]))
        a("v_and_b32 v%d, 0x7fffffff, v%d" % (Q[0], Q[0]))
        a("buffer_store_dwordx2 v[%d:%d], v94, s[12:15], s58 offen sc1" % (S[0], Q[0]))
    chunks = [capture(aux_head) + capture(gelu_ft, 0, True), capture(gelu_ft, 1, True), capture(gelu_ft, 2, True),
              capture(gelu_ft, 3, True), capture(gelu_ft, 4, True) + capture(aux_pub)]
    KD = 172
    for k in range(9, 18):
        a("s_barrier")
        if k == 9:
            a("s_cmp_lg_u32 s3, 0")
            a("s_cbranch_scc1 %s_nosig" % name)
            a("v_mov_b32 v10, 1")
            a("s_lshl_b32 s36, s22, 2")
            a("v_mov_b32 v11, s36")
            a("s_mov_b64 exec, 1")
            a("buffer_atomic_add v10, v11, s[60:63], 0 offen sc1")
            a("s_mov_b64 exec, -1")
            a.label("%s_nosig" % name)
        g = k + 3
        dma = capture(lambda: (issueT(g), issueF(g))) if g < 18 else []
        comp = chunks[k - 9] if k - 9 < len(chunks) else []
        interleave(dma, comp)
        if k == 13: vmA.issue("pub", 1)
        if g < 18: vmA.issue("S%d" % g, 9)
        if k == 14:
            srd(a, 92, 78, 2048 * 2048 * 2)
            a("v_lshrrev_b32 v10, 4, v2")
            a("v_lshlrev_b32 v10, 12, v10")
            a("v_lshl_add_u32 v10, v3, 4, v10")
            a("s_lshl_b32 s40, s22, 7")
            a("s_lshl_b32 s36, s3, 5")
            a("s_add_u32 s40, s40, s36")
            a("s_lshl_b32 s40, s40, 12")
            a("s_lshl_b32 s36, s23, 8")
            a("s_add_u32 s40, s40, s36")
            for n in range(8):
                a("buffer_load_dwordx4 v[200:203], v10, s[92:95], s40 offen")
                if n < 7: a("s_add_u32 s40, s40, 16384")
            vmA.issue("wp", 8)
            a("s_lshl_b32 s36, s22, 2")
            a("v_mov_b32 v199, s36")
            a("buffer_load_dword v198, v199, s[60:63], 0 offen sc1"); vmA.issue("cnt", 1)
        if k + 2 < 18 and k + 2 >= 12:
            vmA.wait(["S%d" % (k + 2)])
    a("s_barrier")
    stamp(a, 3)
    a("s_load_dwordx4 s[88:91], s[0:1], 32")
    a("v_lshrrev_b32 v10, 4, v2")
    a("v_lshlrev_b32 v95, 8, v3")
    a("v_lshl_add_u32 v95, v10, 6, v95")
    a("s_lshl_b32 s33, s25, 13")
    a("s_add_u32 s52, s59, s33")
    a("s_xor_b32 s33, s33, 8192")
    a("s_add_u32 s53, s59, s33")
    a("s_add_u32 s42, s52, 4096")
    a("s_add_u32 s43, s53, 4096")
    Z2 = ZP
    a("s_waitcnt vmcnt(0)")
    GB = [128, 144, 160, 176]
    a("v_mov_b32 v4, v95")
    def gather():
        for tt in range(4):
            for q in range(4):
                a("buffer_load_dwordx4 %s, v4, s[12:15], s%d offen offset:%d sc1" % (vr(GB[tt] + 4 * q), (52, 42, 53, 43)[tt], 16 * q))
    gather()
    a("s_mov_b32 s40, 0")
    a("s_waitcnt vmcnt(0)")
    a.label("%s_chk" % name)
    a("v_subrev_u32 v11, 16, v198")
    for tt in range(4):
        for r in range(GB[tt] + 1, GB[tt] + 16, 4):
            a("v_or3_b32 v11, v11, v%d, v%d" % (r, r + 2))
    a("v_cmp_gt_i32 vcc, 0, v11")
    a("s_add_u32 s40, s40, 1")
    a("s_cmp_gt_u32 s40, %d" % SPIN_MAX)
    a("s_cbranch_scc1 %s_ok" % name)
    a("s_cbranch_vccz %s_ok" % name)
    a("s_sleep 32")
    a("buffer_load_dword v198, v199, s[60:63], 0 offen sc1")
    a("s_waitcnt vmcnt(0)")
    gather()
    a("s_waitcnt vmcnt(0)")
    a("s_branch %s_chk" % name)
    a.label("%s_ok" % name)
    stamp(a, 5)
    for tt in range(4):
        b = GB[tt]
        for st_ in (8, 4, 2):
            for q in range(0, st_, 2):
                a("v_pk_add_f32 %s, %s, %s" % (vr(b + q, 2), vr(b + q, 2), vr(b + q + st_, 2)))
    emit_xg_reduce(a, [GB[tt] + e for tt in range(4) for e in range(2)], 72)
    for tt in range(4):
        b = GB[tt]
        emit_ln_finish(a, b, b + 1, 2304, b + 2, MR + 2 * tt, b + 4)
        a("v_mul_f32 v%d, -v%d, v%d" % (MR + 2 * tt + 1, b + 2, MR + 2 * tt))
    a("v_lshrrev_b32 v10, 4, v2")
    a("v_lshrrev_b32 v11, 2, v2"); a("v_and_b32 v11, 1, v11"); a("v_lshlrev_b32 v11, 4, v11")
    a("v_lshrrev_b32 v5, 3, v2"); a("v_and_b32 v5, 1, v5"); a("v_lshl_add_u32 v11, v5, 2, v11")
    a("v_and_b32 v5, 3, v2"); a("v_add_u32 v11, v11, v5")
    a("v_mul_u32_u24 v11, 288, v11")
    a("v_lshrrev_b32 v5, 1, v10"); a("v_lshl_add_u32 v11, v5, 4, v11")
    a("v_and_b32 v5, 1, v10")
    a("v_lshl_add_u32 v6, v5, 5, v11")
    a("v_mul_u32_u24 v5, 2304, v5")
    a("v_add_u32 v9, v11, v5")
    a("s_lshl_b32 s33, s23, 5")
    a("s_lshl_b32 s36, s22, 1")
    a("s_add_u32 s33, s33, s36")
    a("s_add_u32 s33, s33, s24")
    a("s_mul_i32 s33, s33, 18432")
    if ZIMG: a("s_add_u32 s33, s33, 0x%x" % ZIMG)
    a("s_mul_i32 s36, s25, 9216")
    a("s_add_u32 s37, s33, s36")
    a("s_xor_b32 s36, s36, 9216")
    a("s_add_u32 s38, s33, s36")
    a("s_add_u32 s39, s37, 128")
    a("s_mul_i32 s36, s25, 160")
    a("s_add_u32 s37, s37, s36")
    a("s_add_u32 s38, s38, s36")
    def norm_pair(nA, ttA, nB, ttB, O):
        for q, (n, tt) in enumerate(((nA, ttA), (nB, ttB))):
            for d in range(2):
                z = Z2 + 2 * n + d; t = T + 4 * q + 2 * d
                a("v_lshlrev_b32 v%d, 16, v%d" % (t, z))
                a("v_and_b32 v%d, 0xffff0000, v%d" % (t + 1, z))
        for q, (n, tt) in enumerate(((nA, ttA), (nB, ttB))):
            for d in range(2):
                t = T + 4 * q + 2 * d
                a("v_pk_fma_f32 %s, %s, %s, %s op_sel:[0,0,1] op_sel_hi:[1,0,1]" % (vr(t, 2), vr(t, 2), vr(MR + 2 * tt, 2), vr(MR + 2 * tt, 2)))
        for q in range(2):
            for d in range(2):
                t = T + 4 * q + 2 * d
                a("v_cvt_pk_bf16_f32 v%d, v%d, v%d" % (O + 2 * q + d, t, t + 1))
        a("s_nop 1")
        a("v_permlane16_swap_b32 v%d, v%d" % (O, O + 2))
        a("v_permlane16_swap_b32 v%d, v%d" % (O + 1, O + 3))
    cnt = 0
    for pr in range(2):
        for tt in range(4):
            O = 200 + 4 * cnt; cnt += 1
            norm_pair(tidx(2 * pr, tt), tt, tidx(2 * pr + 1, tt), tt, O)
            a("s_nop 0")
            a("buffer_store_dwordx4 %s, v6, s[12:15], s%d offen offset:%d" % (vr(O), 37 if tt < 2 else 38, (tt & 1) * 2304 + 64 * pr) + " sc1")
    O = 200 + 4 * cnt
    norm_pair(16, 0, 17, 1, O)
    a("s_nop 0")
    a("buffer_store_dwordx4 %s, v9, s[12:15], s39 offen sc1" % vr(O))
    stamp(a, 6)
    a("s_setprio 3")
    srd(a, 8, 78, 2048 * 2048 * 2)
    a("v_lshrrev_b32 v3, 3, v2")
    a("s_lshl_b32 s24, s3, 5")
    a("v_add_u32 v3, s24, v3")
    a("v_and_b32 v4, 7, v2")
    a("v_lshrrev_b32 v6, 4, v2")
    a("v_xor_b32 v6, v6, v4")
    a("v_lshlrev_b32 v6, 4, v6")
    a("v_lshl_add_u32 v10, v3, 12, v6")
    a("v_xor_b32 v11, 64, v10")
    a("v_add_u32 v11, %d, v11" % (32768 - 1024))
    a("v_add_u32 v12, %d, v10" % (2 * (32768 - 1024)))
    a("v_add_u32 v13, %d, v11" % (2 * (32768 - 1024)))
    a("v_lshlrev_b32 v14, 4, v2")
    a("s_lshl_b32 s26, s22, 19")
    a("s_mul_i32 s27, s23, %d" % (32 * 18432))
    a("s_lshl_b32 s24, s3, 12")
    a("s_add_u32 s27, s27, s24")
    if ZIMG: a("s_add_u32 s27, s27, 0x%x" % ZIMG)
    a("s_lshl_b32 s25, s3, 9")
    a("s_sub_u32 s32, s25, s24")
    a("s_add_u32 s32, s32, 16384")
    a("s_add_u32 s24, s24, %d" % RB)
    a("s_waitcnt vmcnt(0) lgkmcnt(0)")
    a("v_mov_b32 v26, %d" % LC)
    a("v_mov_b32 v27, 1")
    a("s_mov_b64 exec, 1")
    a("ds_add_rtn_u32 v28, v26, v27")
    a("s_waitcnt lgkmcnt(0)")
    a("v_readfirstlane_b32 s36, v28")
    a("s_cmp_lg_u32 s36, 3")
    a("s_cbranch_scc1 %s_nozs" % name)
    a("v_mov_b32 v28, 0")
    a("buffer_store_dword v27, v28, s[12:15], s97 offen sc1")
    a.label("%s_nozs" % name)
    a("s_mov_b64 exec, -1")
    stamp(a, 7)
    srd(a, 16, 88, 576 * 2048 * 2)
    srd(a, 84, 90, 576 * 2)
    for g in range(4):
        a("s_add_u32 s35, s24, %d" % (g * SLOT))
        a("s_mov_b32 m0, s35")
        a("s_add_u32 s36, s26, %d" % (128 * g))
        for n in range(4):
            a("buffer_load_dwordx4 v%d, s[8:11], s36 offen offset:%d lds" % (10 + n, n * 1024))
    a("s_mov_b32 s34, 0")
    a("s_cmp_lg_u32 s3, 0")
    a("s_cbranch_scc1 %s_pl" % name)
    a("v_and_b32 v28, 15, v2")
    a("v_lshlrev_b32 v30, 2, v28")
    a("v_lshlrev_b32 v28, 12, v28")
    a("s_lshl_b32 s52, s23, 8")
    a("s_add_u32 s52, s52, 0x%x" % ZFLG)
    a.label("%s_pz0" % name)
    a("buffer_load_dword v31, v30, s[60:63], 0 offen sc1")
    a("s_add_u32 s34, s34, 1")
    a("s_waitcnt vmcnt(0)")
    a("v_cmp_gt_u32 vcc, 16, v31")
    a("s_cmp_gt_u32 s34, %d" % SPIN_MAX)
    a("s_cbranch_scc1 %s_pz" % name)
    a("s_cbranch_vccz %s_pz" % name)
    a("s_sleep 32")
    a("s_branch %s_pz0" % name)
    a.label("%s_pz" % name)
    a("buffer_load_dword v29, v28, s[12:15], s52 offen sc1")
    a("s_add_u32 s34, s34, 1")
    a("s_waitcnt vmcnt(0)")
    a("v_cmp_ne_u32 vcc, 1, v29")
    a("s_cmp_gt_u32 s34, %d" % SPIN_MAX)
    a("s_cbranch_scc1 %s_pzx" % name)
    a("s_cbranch_vccz %s_pzx" % name)
    a("s_sleep 8")
    a("s_branch %s_pz" % name)
    a.label("%s_pzx" % name)
    a("v_mov_b32 v27, 1")
    a("ds_write_b32 v26, v27 offset:4")
    a("s_branch %s_pgo" % name)
    a.label("%s_pl" % name)
    a("ds_read_b32 v27, v26 offset:4")
    a("s_add_u32 s34, s34, 1")
    a("s_waitcnt lgkmcnt(0)")
    a("v_readfirstlane_b32 s36, v27")
    a("s_cmp_gt_u32 s34, %d" % (SPIN_MAX * 20))
    a("s_cbranch_scc1 %s_pgo" % name)
    a("s_cmp_lg_u32 s36, 0")
    a("s_cbranch_scc1 %s_pgo" % name)
    a("s_sleep 2")
    a("s_branch %s_pl" % name)
    a.label("%s_pgo" % name)
    stamp(a, 8)
    for g in range(4):
        a("s_add_u32 s35, s24, %d" % (g * SLOT + TREG))
        a("s_mov_b32 m0, s35")
        a("s_add_u32 s36, s27, %d" % (18432 * g))
        a("s_add_u32 s37, s36, s32")
        for n in range(4):
            a("buffer_load_dwordx4 v14, s[12:15], s36 offen offset:%d sc1 lds" % (n * 1024))
        a("s_add_u32 s35, s35, s32")
        a("s_mov_b32 m0, s35")
        a("s_mov_b64 exec, 0xffffffff")
        a("buffer_load_dwordx4 v14, s[12:15], s37 offen sc1 lds")
        a("s_mov_b64 exec, -1")
    a("s_add_u32 s26, s26, 512")
    a("s_add_u32 s27, s27, %d" % (4 * 18432))
    a("s_mov_b32 s33, 0")
    a("s_lshl_b32 s43, s2, 2")
    a("s_add_u32 s43, s43, s3")
    a("s_and_b32 s53, s43, 1")
    a("s_sub_u32 s36, s43, 448")
    a("s_lshr_b32 s37, s43, 1")
    a("s_cmp_ge_u32 s43, 896")
    a("s_cselect_b32 s43, s36, s37")
    a("s_cselect_b32 s53, 2, s53")
    a("s_waitcnt vmcnt(15)")
    a("s_barrier")
    a("s_waitcnt vmcnt(10)")
    a("s_barrier")
    a("s_waitcnt vmcnt(5)")
    a("s_barrier")
    a("s_mov_b32 s34, 4")
    def issue2():
        a("s_add_u32 s35, s33, s24")
        a("s_mov_b32 m0, s35")
        a("s_add_u32 s36, s35, %d" % TREG)
        for n in range(4):
            a("buffer_load_dwordx4 v%d, s[8:11], s26 offen offset:%d lds" % (10 + n, n * 1024))
        a("s_mov_b32 m0, s36")
        a("s_add_u32 s37, s27, s32")
        for n in range(4):
            a("buffer_load_dwordx4 v14, s[12:15], s27 offen offset:%d sc1 lds" % (n * 1024))
        a("s_add_u32 s36, s36, s32")
        a("s_mov_b32 m0, s36")
        a("s_mov_b64 exec, 0xffffffff")
        a("buffer_load_dwordx4 v14, s[12:15], s37 offen sc1 lds")
        a("s_mov_b64 exec, -1")
        a("s_add_u32 s26, s26, 128")
        a("s_add_u32 s27, s27, 18432")
        a("s_add_u32 s33, s33, %d" % SLOT)
        a("s_cmp_eq_u32 s33, %d" % (R * SLOT))
        a("s_cselect_b32 s33, 0, s33")
    a.label("%s_lloop" % name)
    issue2()
    a("s_cmp_eq_u32 s34, 18")
    a("s_cbranch_scc1 %s_hk1" % name)
    a("s_cmp_eq_u32 s34, 21")
    a("s_cbranch_scc1 %s_hk2" % name)
    a("s_waitcnt vmcnt(9)")
    a.label("%s_lcont" % name)
    a("s_barrier")
    a("s_add_u32 s34, s34, 1")
    a("s_cmp_lt_u32 s34, 32")
    a("s_cbranch_scc1 %s_lloop" % name)
    a("s_branch %s_ldone" % name)
    a.label("%s_hk1" % name)
    a("v_and_b32 v28, 15, v2")
    a("v_lshlrev_b32 v28, 2, v28")
    a("buffer_load_dword v29, v28, s[60:63], 0 offen offset:128 sc1")
    a("s_waitcnt vmcnt(10)")
    a("s_branch %s_lcont" % name)
    a.label("%s_hk2" % name)
    a("s_mov_b32 s52, 0")
    a.label("%s_hk2l" % name)
    a("v_cmp_gt_u32 vcc, 16, v29")
    a("s_add_u32 s52, s52, 1")
    a("s_cmp_gt_u32 s52, %d" % SPIN_MAX)
    a("s_cbranch_scc1 %s_hk2g" % name)
    a("s_cbranch_vccz %s_hk2g" % name)
    a("s_sleep 16")
    a("buffer_load_dword v29, v28, s[60:63], 0 offen offset:128 sc1")
    a("s_waitcnt vmcnt(0)")
    a("s_branch %s_hk2l" % name)
    a.label("%s_hk2g" % name)
    nconv = emit_conv_loads(a, " sc1")
    a("s_waitcnt vmcnt(%d)" % (9 + nconv))
    a("s_branch %s_lcont" % name)
    a.label("%s_ldone" % name)
    a("s_waitcnt vmcnt(0)")
    a("s_barrier")
    a("s_mov_b32 s26, s53")
    a("s_and_b32 s27, s3, 1")
    a("s_mul_i32 s27, s27, %d" % CJ_SIZE)
    a("s_lshr_b32 s36, s3, 1")
    a("s_mul_i32 s36, s36, %d" % SLOT)
    a("s_add_u32 s27, s27, s36")
    a("s_add_u32 s27, s27, %d" % RB)
    def mid():
        a("s_barrier")
        a("s_setprio 0")
    sv = set(DBG); DBG.discard("stamp")
    emit_conv_job(a, name, mid)
    DBG.update(sv)
    G.stamp_rt(a, 1)
    a.label("%s_end" % name)
    a("s_endpgm")
    return a.text(), kernel_desc(name, 256, 256), (name, 256, 512, LDSB)

def gen_kf7(name="k1_kernel", R=4):
    a = Asm()
    RB = 4096; SLOT = 34816; TREG = 16384; FS = 288; RST = 0
    LDSB = RB + R * SLOT
    LC = 2048
    ZFLG = 0x2D00000
    from gen3 import emit_conv_loads, emit_conv_job, CJ_SIZE
    def capture(f, *args):
        lb = len(a.lines); f(*args); out = a.lines[lb:]; del a.lines[lb:]; return out
    kernel_begin(a, name)
    a("s_load_dwordx2 s[80:81], s[0:1], 0")
    a("s_load_dwordx2 s[4:5], s[0:1], 56")
    a("s_load_dwordx2 s[6:7], s[0:1], 104")
    a("s_load_dwordx2 s[18:19], s[0:1], 96")
    a("s_cmp_ge_u32 s2, 256")
    a("s_cbranch_scc1 %s_end" % name)
    a("v_lshrrev_b32 v1, 6, v0")
    a("v_and_b32 v2, 63, v0")
    a("v_readfirstlane_b32 s3, v1")
    G2.tile_ij(a)
    a("s_lshr_b32 s98, s3, 2")
    a("s_mov_b32 s54x, 0".replace("s54x", "s99"))
    a("s_and_b32 s3, s3, 3")
    a("s_lshr_b32 s24, s3, 1")
    a("s_and_b32 s25, s3, 1")
    a("v_and_b32 v3, 15, v2")
    VT = 204; VF = 208
    def loader_setup():
        a("v_lshrrev_b32 v5, 3, v2")
        a("v_and_b32 v4, 7, v2")
        a("s_lshl_b32 s36, s3, 5")
        a("v_add_u32 v5, s36, v5")
        a("v_lshrrev_b32 v7, 4, v2")
        a("v_xor_b32 v7, v7, v4")
        a("v_mul_u32_u24 v6, 1152, v5")
        a("v_lshl_add_u32 v%d, v7, 4, v6" % VT)
        a("v_xor_b32 v%d, 64, v%d" % (VT + 1, VT))
        a("v_add_u32 v%d, %d, v%d" % (VT + 1, 9216 - 1024, VT + 1))
        a("v_add_u32 v%d, %d, v%d" % (VT + 2, 2 * (9216 - 1024), VT))
        a("v_add_u32 v%d, %d, v%d" % (VT + 3, 2 * (9216 - 1024), VT + 1))
        a("s_lshl_b32 s84, s3, 12")
        a("s_add_u32 s84, s84, %d" % RB)
        a("s_lshl_b32 s85, s3, 9")
        a("s_add_u32 s85, s85, %d" % (RB + TREG + 16384))
    def loader_setup2():
        for n in range(5):
            if n < 4:
                a("s_lshl_b32 s36, s3, 8")
                a("s_add_u32 s36, s36, %d" % (64 * n))
            else:
                a("s_lshl_b32 s36, s3, 5")
                a("s_add_u32 s36, s36, 1024")
            a("v_add_u32 v6, s36, v2")
            a("v_mul_u32_u24 v7, 3641, v6")
            a("v_lshrrev_b32 v7, 16, v7")
            a("v_mul_u32_u24 v8, 18, v7")
            a("v_sub_u32 v8, v6, v8")
            a("v_and_b32 v9, 35, v7")
            a("v_bfe_u32 v6, v7, 2, 2")
            a("v_lshl_add_u32 v9, v6, 3, v9")
            a("v_bfe_u32 v6, v7, 4, 1")
            a("v_lshl_add_u32 v9, v6, 2, v9")
            a("v_mul_u32_u24 v9, 9216, v9")
            a("v_lshl_add_u32 v%d, v8, 4, v9" % (VF + n))
            if 0 < n < 4: a("v_subrev_u32 v%d, %d, v%d" % (VF + n, 1024 * n, VF + n))
    def issueT(g):
        st = g % 9
        a("s_add_u32 s86, s84, %d" % ((g % R) * SLOT))
        a("s_mov_b32 m0, s86")
        a("s_add_u32 s87, s82, %d" % (128 * st))
        for n in range(4):
            a("buffer_load_dwordx4 v%d, s[28:31], s87 offen offset:%d lds" % (VT + n, 1024 * n))
    def issueF(g):
        st = g % 9
        a("s_add_u32 s86, s84, %d" % ((g % R) * SLOT + TREG))
        a("s_mov_b32 m0, s86")
        a("s_add_u32 s87, s83, %d" % (64 * 9216 * st + (4608 if g < 9 else 0)))
        for n in range(4):
            a("buffer_load_dwordx4 v%d, s[8:11], s87 offen offset:%d lds" % (VF + n, 1024 * n))
        a("s_add_u32 s86, s85, %d" % ((g % R) * SLOT))
        a("s_mov_b32 m0, s86")
        a("s_mov_b64 exec, 0xffffffff")
        a("buffer_load_dwordx4 v%d, s[8:11], s87 offen lds" % (VF + 4))
        a("s_mov_b64 exec, -1")
    def srds_main():
        srd(a, 28, 80, 2048 * 576 * 2)
        srd(a, 8, 4, 576 * 4608 * 2)
        srd(a, 12, 6, WS_BYTES)
        srd(a, 60, 18, 256)
        a("s_mul_i32 s82, s22, %d" % (128 * 1152))
        a("s_mul_i32 s83, s23, 288")
    ACC = 128; FB = [16, 52]; CS = 216; ONE = 236
    vTa = [4, 5]; vTb = [6, 7]; vF = 8; vFh = 9
    bTa = [88, 89]; bTb = [90, 91]; bF = 92; bFh = 93
    def mma_setup():
        a("v_lshrrev_b32 v10, 4, v2")
        a("v_lshrrev_b32 v11, 1, v3")
        a("v_xor_b32 v10, v10, v11")
        a("v_lshlrev_b32 v10, 4, v10")
        a("v_lshl_add_u32 v10, v3, 7, v10")
        a("s_lshl_b32 s26, s24, 13")
        a("s_add_u32 s26, s26, %d" % RB)
        a("v_add_u32 v10, s26, v10")
        a("s_lshl_b32 s26, s25, 12")
        a("v_add_u32 v%d, s26, v10" % bTa[0])
        a("s_xor_b32 s26, s26, 4096")
        a("v_add_u32 v%d, s26, v10" % bTb[0])
        a("v_xor_b32 v%d, 64, v%d" % (bTa[1], bTa[0]))
        a("v_xor_b32 v%d, 64, v%d" % (bTb[1], bTb[0]))
        a("v_lshrrev_b32 v10, 2, v2")
        a("v_mul_u32_u24 v10, %d, v10" % FS)
        a("v_and_b32 v11, 3, v2")
        a("v_lshl_add_u32 v10, v11, 3, v10")
        a("v_add_u32 v10, %d, v10" % (RB + TREG))
        a("s_mul_i32 s26, s25, 160")
        a("v_add_u32 v%d, s26, v10" % bF)
        a("v_add_u32 v%d, 128, v10" % bFh)
        for r in range(ACC, ACC + 72): a("v_mov_b32 v%d, 0" % r)
        for r in range(CS, CS + 20): a("v_mov_b32 v%d, 0" % r)
        for r in range(ONE, ONE + 4): a("v_mov_b32 v%d, 0x3f803f80" % r)
    def mma_addr(slot):
        a("s_mov_b32 s27, %d" % (slot * SLOT))
        for d, s_ in ((vTa[0], bTa[0]), (vTb[0], bTb[0]), (vTa[1], bTa[1]), (vTb[1], bTb[1]), (vF, bF), (vFh, bFh)):
            a("v_add_u32 v%d, s27, v%d" % (d, s_))
    core = G.Core(a, ACC, FB[0], FB[1], FS, TREG, vTa, vTb, vF, vFh)
    trk = core.trk
    a("s_cmp_eq_u32 s98, 0")
    a("s_cbranch_scc1 %s_A0" % name)
    a("s_setprio 3")
    loader_setup()
    a("s_waitcnt lgkmcnt(0)")
    srds_main()
    vm = VmTracker(a)
    def issue(g, vmx):
        issueT(g); issueF(g); vmx.issue("S%d" % g, 9)
    issueT(0)
    loader_setup2()
    issueF(0); vm.issue("S0", 9)
    issue(1, vm); issue(2, vm); issue(3, vm)
    a("s_add_u32 s3, s3, 4"); stamp_setup(a, 1); stamp(a, 0); a("s_sub_u32 s3, s3, 4")
    mma_setup()
    RA = 96; XB = 112
    for r in range(RA, RA + 16): a("v_mov_b32 v%d, 0" % r)
    a("v_lshrrev_b32 v10, 4, v2")
    a("v_lshrrev_b32 v11, 1, v3")
    a("v_xor_b32 v10, v10, v11")
    a("v_lshlrev_b32 v10, 4, v10")
    a("v_lshl_add_u32 v10, v3, 7, v10")
    a("v_add_u32 v12, s84, v10")
    a("v_xor_b32 v13, 64, v12")
    def rs_rd(g):
        a("v_add_u32 v10, %d, v12" % ((g % R) * SLOT))
        a("v_add_u32 v11, %d, v13" % ((g % R) * SLOT))
        for h in range(2):
            for n in range(2):
                a("ds_read_b128 %s, v%d offset:%d" % (vr(XB + 8 * h + 4 * n), 10 + h, 2048 * n))
    def rs_do():
        for h in range(2):
            for n in range(2):
                x = XB + 8 * h + 4 * n
                a("v_mfma_f32_16x16x32_bf16 %s, %s, %s, %s" % (vr(RA + 4 * n), vr(ONE), vr(x), vr(RA + 4 * n)))
                a("v_mfma_f32_16x16x32_bf16 %s, %s, %s, %s" % (vr(RA + 8 + 4 * n), vr(x), vr(x), vr(RA + 8 + 4 * n)))
    def interleave(dma, comp, vmx=None):
        groups = []; cur = []
        for l in dma:
            cur.append(l)
            if "buffer_load" in l and not any("exec, 0xffffffff" in x for x in cur[-2:]):
                groups.append(cur); cur = []
            elif "exec, -1" in l:
                groups.append(cur); cur = []
        if cur: groups.append(cur)
        ns = max(1, len(groups))
        per = (len(comp) + ns - 1) // ns
        for g in groups:
            a.lines.extend(g)
            a.lines.extend(comp[:per]); comp = comp[per:]
        a.lines.extend(comp)
    vm.wait(["S0"])
    a("s_barrier")
    stamp(a, 1)
    rs_rd(0)
    vm.wait(["S1"])
    a("s_barrier")
    for k in range(9):
        a("s_waitcnt lgkmcnt(0)")
        dma = capture(lambda: (issueT(k + 3), issueF(k + 3))) if k >= 1 else []
        interleave(dma, capture(rs_do))
        if k >= 1: vm.issue("S%d" % (k + 3), 9)
        if k < 8:
            rs_rd(k + 1)
        else:
            a("s_nop 7")
            a("v_lshrrev_b32 v10, 4, v2")
            a("v_lshrrev_b32 v11, 2, v3")
            a("v_and_b32 v12, 3, v3")
            for n in range(2):
                G_ = RA + 8 + 4 * n
                for r in range(1, 4):
                    a("v_cmp_eq_u32 vcc, %d, v12" % r)
                    a("s_nop 1")
                    a("v_cndmask_b32 v%d, v%d, v%d, vcc" % (G_, G_, G_ + r))
            ML = 112
            for n in range(2):
                emit_ln_finish(a, RA + 4 * n, RA + 8 + 4 * n, 576, ML + 2 * n, ML + 2 * n + 1, 120)
                a("v_mov_b32 v%d, v%d" % (117 + 2 * n, ML + 2 * n + 1))
                a("v_sub_f32 v%d, 0, v%d" % (116 + 2 * n, ML + 2 * n))
            a("s_lshl_b32 s35, s3, 8")
            a("v_lshlrev_b32 v13, 3, v3")
            a("v_add_u32 v12, s35, v13")
            a("v_cmp_eq_u32 vcc, v10, v11")
            a("s_and_saveexec_b64 s[36:37], vcc")
            for n in range(2):
                a("ds_write_b64 v12, %s offset:%d" % (vr(116 + 2 * n, 2), RST + 128 * n))
            a("s_mov_b64 exec, s[36:37]")
            a("s_cmp_lg_u32 s23, 0")
            a("s_cbranch_scc1 %s_nost1" % name)
            a("s_lshl_b32 s35, s22, 7")
            a("s_lshl_b32 s36, s3, 5")
            a("s_add_u32 s35, s35, s36")
            a("s_lshl_b32 s35, s35, 3")
            a("s_add_u32 s35, s35, 0x%x" % STATS1)
            a("v_mov_b32 v11, 0x7ffffff0")
            a("v_cndmask_b32 v13, v11, v13, vcc")
            for n in range(2):
                a("buffer_store_dwordx2 %s, v13, s[12:15], s35 offen offset:%d" % (vr(ML + 2 * n, 2), 128 * n))
            a.label("%s_nost1" % name)
            mma_addr(9 % R)
            a("s_mov_b32 s33, 0")
            a("s_setprio 0")
        vm.wait(["S%d" % (k + 2)], "lgkmcnt(0)" if k == 8 else "")
        if k < 8: a("s_barrier")
    a("s_branch %s_mma" % name)
    a.label("%s_A0" % name)
    emit_code_prefetch(a, name)
    a("s_load_dwordx4 s[64:67], s[0:1], 8")
    a("s_load_dwordx2 s[76:77], s[0:1], 24")
    a("s_load_dwordx2 s[78:79], s[0:1], 64")
    mma_setup()
    loader_setup(); loader_setup2()
    a("s_waitcnt lgkmcnt(0)")
    srds_main()
    srd(a, 68, 66, 2048 * 576 * 2)
    a("s_mov_b32 s88, s64"); a("s_mov_b32 s89, s65")
    srd(a, 64, 88, 2048 * 576 * 2)
    srd(a, 72, 76, 576 * 8)
    stamp_setup(a, 1); stamp(a, 0)
    def gran_addr():
        a("v_lshrrev_b32 v10, 4, v2")
        a("s_lshl_b32 s36, s25, 1")
        a("v_add_u32 v11, s36, v10")
        a("v_and_b32 v11, 3, v11")
        a("v_lshl_add_u32 v11, v11, 4, v3")
        a("v_lshlrev_b32 v94, 8, v11")
        a("s_lshl_b32 s59, s22, 7")
        a("s_lshl_b32 s36, s24, 6")
        a("s_add_u32 s59, s59, s36")
        a("s_lshl_b32 s59, s59, 8")
        a("s_add_u32 s59, s59, 0x%x" % STATS2)
        a("s_lshl_b32 s36, s23, 1")
        a("s_add_u32 s36, s36, s25")
        a("s_lshl_b32 s36, s36, 3")
        a("s_add_u32 s58, s36, s59")
    gran_addr()
    a("v_mov_b32 v12, 0"); a("v_mov_b32 v13, 0x80000000")
    a("buffer_store_dwordx2 v[12:13], v94, s[12:15], s58 offen sc1")
    a("s_lshl_b32 s36, s22, 4")
    a("s_add_u32 s36, s36, s23")
    a("s_lshl_b32 s36, s36, 8")
    a("s_add_u32 s97, s36, 0x%x" % ZFLG)
    a("v_mov_b32 v10, %d" % LC)
    a("v_mov_b32 v12, 0"); a("v_mov_b32 v13, 0")
    a("s_mov_b64 exec, 1")
    a("buffer_store_dword v12, v12, s[12:15], s97 offen sc1")
    a("s_mov_b64 exec, -1")
    a("ds_write_b64 v10, v[12:13]")
    a("ds_write_b64 v10, v[12:13] offset:8")
    mma_addr(0)
    a("s_mov_b32 s33, 0")
    a("s_waitcnt lgkmcnt(0)")
    a("s_barrier")
    stamp(a, 1)
    a.label("%s_mma" % name)
    core.prime(0, core.reads(0, 0))
    trk.drain()
    nocs = [False]
    def mfmas(buf):
        L = []
        for ft in range(5):
            A = core.F(buf, ft)
            for tt in range(4 if ft < 4 else 2):
                c = core.accr(ft, tt); B = core.T(buf, tt)
                L.append(("v_mfma_f32_16x16x32_bf16 %s, %s, %s, %s" % (vr(c), vr(A), vr(B), vr(c)), list(range(A, A + 4)) + list(range(B, B + 4))))
            if not nocs[0]: L.append(("v_mfma_f32_16x16x32_bf16 %s, %s, %s, %s" % (vr(CS + 4 * ft), vr(A), vr(ONE), vr(CS + 4 * ft)), list(range(A, A + 4))))
        return L
    def phase(buf, pend):
        for (m, regs) in mfmas(buf):
            trk.need(regs)
            a(m)
            while pend:
                k, t = pend.pop(0)
                if k == "x":
                    a(t)
                    if t.startswith("s_"): continue
                else:
                    a(t[0]); trk.issue(t[1])
                break
        for k, t in pend:
            if k == "x": a(t)
            else: a(t[0]); trk.issue(t[1])
    def iteration(vw=True):
        if vw: a("s_waitcnt vmcnt(0)")
        a("s_barrier")
        rd = [("r", t) for t in core.reads(1, 1)]
        upd = ["s_add_u32 s27, s27, %d" % SLOT, "s_cmp_eq_u32 s27, %d" % (R * SLOT), "s_cselect_b32 s27, 0, s27"]
        tail = ["v_add_u32 v%d, s27, v%d" % (d, s_) for d, s_ in ((vTa[0], bTa[0]), (vF, bF), (vTb[0], bTb[0]), (vFh, bFh))]
        phase(0, rd[:1] + [("x", u) for u in upd] + rd[1:] + [("x", u) for u in tail])
        rd = [("r", t) for t in core.reads(0, 0)]
        tail = ["v_add_u32 v%d, s27, v%d" % (d, s_) for d, s_ in ((vTa[1], bTa[1]), (vTb[1], bTb[1]))] + ["s_add_u32 s33, s33, 1"]
        phase(1, rd + [("x", u) for u in tail])
    a.label("%s_cloop" % name)
    lb = len(a.lines); iteration(); st = copy.deepcopy(trk.out); del a.lines[lb:]; trk.out = copy.deepcopy(st)
    iteration()
    assert [sorted(x) for x in trk.out] == [sorted(x) for x in st]
    a("s_cmp_lt_u32 s33, 9")
    a("s_cbranch_scc1 %s_cloop" % name)
    trk.drain()
    stamp(a, 2)
    MR = 100; T = 72; ZP = 16
    def epi_in():
        gelu_consts(a)
        a("s_lshl_b32 s36, s24, 9")
        a("s_lshl_b32 s37, s25, 8")
        a("s_add_u32 s38, s36, s37")
        a("s_xor_b32 s37, s37, 256")
        a("s_add_u32 s39, s36, s37")
        a("v_lshlrev_b32 v10, 3, v3")
        a("v_add_u32 v11, s38, v10")
        a("ds_read_b64 %s, v11 offset:%d" % (vr(MR, 2), RST))
        a("ds_read_b64 %s, v11 offset:%d" % (vr(MR + 2, 2), RST + 128))
        a("v_add_u32 v11, s39, v10")
        a("ds_read_b64 %s, v11 offset:%d" % (vr(MR + 4, 2), RST))
        a("ds_read_b64 %s, v11 offset:%d" % (vr(MR + 6, 2), RST + 128))
        a("s_waitcnt lgkmcnt(0)")
    S = [108, 110, 52, 54]; Q = [109, 111, 53, 55]
    def gelu_ft(ft, stats):
        tts = range(4 if ft < 4 else 2)
        emit_fold_gelu(a, [(core.accr(ft, tt), CS + 4 * ft, MR + 2 * tt, ZP + 2 * tidx(ft, tt)) for tt in tts], T)
        if stats:
            for d in range(2):
                for tt in tts:
                    p = ZP + 2 * tidx(ft, tt) + d
                    a("v_dot2_f32_bf16 v%d, v%d, v%d, v%d" % (S[tt], p, ONE, S[tt]))
                    a("v_dot2_f32_bf16 v%d, v%d, v%d, v%d" % (Q[tt], p, p, Q[tt]))
    a("s_cmp_eq_u32 s98, 0")
    a("s_cbranch_scc1 %s_A1" % name)
    a("s_barrier")
    a("s_load_dwordx4 s[64:67], s[0:1], 8")
    a("s_load_dwordx2 s[76:77], s[0:1], 24")
    a("s_load_dwordx2 s[94:95], s[0:1], 80")
    a("s_load_dwordx2 s[92:93], s[0:1], 72")
    epi_in()
    srd(a, 68, 66, 2048 * 576 * 2)
    a("s_mov_b32 s88, s64"); a("s_mov_b32 s89, s65")
    srd(a, 64, 88, 2048 * 576 * 2)
    srd(a, 72, 76, 576 * 8)
    srd(a, 76, 94, 2304 * 576 * 2)
    srd(a, 28, 92, 2048 * 2)
    a("v_and_b32 v0, 255, v0")
    a("s_mov_b32 s41, s2")
    KDB = 240
    emit_kv_loads(a, 112, 240, 248, 252, 253)
    for ft in range(5): gelu_ft(ft, False)
    Z1R = 200; BI = 236
    for r_ in range(36): a("v_mov_b32 v%d, v%d" % (Z1R + r_, ZP + r_))
    stamp(a, 3)
    a("s_waitcnt vmcnt(0)")
    for n in range(11): a("v_mov_b32 v%d, v%d" % (16 + n, 112 + n))
    for n in range(8): a("v_mov_b32 v%d, v%d" % (32 + n, 240 + n))
    for n in range(4): a("v_mov_b32 v%d, v%d" % (44 + n, 248 + n))
    a("v_mov_b32 v56, v252"); a("v_mov_b32 v57, v253")
    for r_ in range(6): a("v_mov_b32 v%d, v%d" % (240 + r_, 88 + r_))
    a.label("%s_kvb" % name)
    emit_kv_compute(a, wait=False, store=False)
    a("s_mov_b32 s39, 0x%x" % KVT)
    a("buffer_store_dwordx4 v[120:123], v12, s[12:15], s39 offen sc1")
    a("buffer_store_dwordx4 v[124:127], v13, s[12:15], s39 offen sc1")
    a("s_add_u32 s41, s41, 256")
    a("s_cmp_ge_u32 s41, 288")
    a("s_cbranch_scc1 %s_kvbd" % name)
    emit_kv_loads(a)
    a("s_waitcnt vmcnt(0)")
    a("s_branch %s_kvb" % name)
    a.label("%s_kvbd" % name)
    for r_ in range(6): a("v_mov_b32 v%d, v%d" % (88 + r_, 240 + r_))
    a("s_mov_b32 s42, s2")
    emit_wot_loads(a, 100, 112, 720, 3)
    a("s_lshl_b32 s36, s22, 7")
    a("s_lshl_b32 s37, s24, 6")
    a("s_add_u32 s36, s36, s37")
    a("v_lshlrev_b32 v11, 1, v3")
    a("s_lshl_b32 s37, s25, 6")
    a("s_lshl_b32 s38, s36, 1")
    a("s_add_u32 s39, s38, s37")
    a("s_xor_b32 s37, s37, 64")
    a("s_add_u32 s36, s38, s37")
    a("buffer_load_ushort v96, v11, s[28:31], s39 offen")
    a("buffer_load_ushort v97, v11, s[28:31], s39 offen offset:32")
    a("buffer_load_ushort v98, v11, s[28:31], s36 offen")
    a("buffer_load_ushort v99, v11, s[28:31], s36 offen offset:32")
    for r in range(ACC, ACC + 72): a("v_mov_b32 v%d, 0" % r)
    a("v_lshrrev_b32 v10, 2, v2")
    a("v_lshlrev_b32 v10, 5, v10")
    a("v_and_b32 v11, 3, v2")
    a("v_lshl_add_u32 v10, v11, 3, v10")
    a("v_add_u32 v10, %d, v10" % (RB + TREG))
    a("s_mul_i32 s26, s25, 10240")
    a("v_add_u32 v%d, s26, v10" % bF)
    a("v_add_u32 v%d, 8192, v10" % bFh)
    core.FS = 32; core.FT = 2048
    mma_addr(0)
    a("s_mov_b32 s33, 0")
    stamp(a, 4)
    a("s_barrier")
    stamp(a, 5)
    core.prime(0, core.reads(0, 0))
    trk.drain()
    nocs[0] = True
    a.label("%s_gloop" % name)
    lb = len(a.lines); iteration(False); st = copy.deepcopy(trk.out); del a.lines[lb:]; trk.out = copy.deepcopy(st)
    iteration(False)
    assert [sorted(x) for x in trk.out] == [sorted(x) for x in st]
    a("s_cmp_lg_u32 s33, 3")
    a("s_cbranch_scc1 %s_ghk" % name)
    a("s_waitcnt vmcnt(0)")
    for n in range(3):
        a("buffer_store_dwordx4 %s, v%d, s[12:15], s40 offen" % (vr(100 + 4 * n), 112 + n))
    for tt in range(4): a("v_lshlrev_b32 v%d, 16, v%d" % (BI + 2 * tt, 96 + tt))
    a("v_mov_b32 v10, %d" % (LC + 8))
    a("v_mov_b32 v11, 1")
    a("s_mov_b64 exec, 1")
    a("ds_add_rtn_u32 v12, v10, v11")
    a("s_waitcnt lgkmcnt(0)")
    a("v_readfirstlane_b32 s36, v12")
    a("s_cmp_lg_u32 s36, 3")
    a("s_cbranch_scc1 %s_nokvs" % name)
    a("s_and_b32 s36, s2, 15")
    a("s_lshl_b32 s36, s36, 2")
    a("s_add_u32 s36, s36, 128")
    a("v_mov_b32 v10, s36")
    a("buffer_atomic_add v11, v10, s[60:63], 0 offen sc1")
    a.label("%s_nokvs" % name)
    a("s_mov_b64 exec, -1")
    a.label("%s_ghk" % name)
    a("s_cmp_lt_u32 s33, 32")
    a("s_cbranch_scc1 %s_gloop" % name)
    trk.drain()
    stamp(a, 6)
    G3.emit_k2_epilogue2(a, core, Z1R, BI)
    stamp(a, 7)
    G.stamp_rt(a, 1)
    a("s_branch %s_end" % name)
    a.label("%s_A1" % name)
    a("s_setprio 2")
    vmA = VmTracker(a)
    PB = 132
    def aux_head():
        epi_in()
        for tt in range(4):
            a("v_mov_b32 v%d, 0" % S[tt]); a("v_mov_b32 v%d, 0" % Q[tt])
    def aux_pub():
        a("s_nop 2")
        emit_xg_reduce(a, S + Q, 72)
        a("v_lshrrev_b32 v10, 4, v2")
        for g in range(1, 4):
            a("v_cmp_eq_u32 vcc, %d, v10" % g)
            a("s_nop 1")
            a("v_cndmask_b32 v%d, v%d, v%d, vcc" % (S[0], S[0], S[g]))
            a("v_cndmask_b32 v%d, v%d, v%d, vcc" % (Q[0], Q[0], Q[g]))
        a("v_and_b32 v%d, 0x7fffffff, v%d" % (Q[0], Q[0]))
        a("buffer_store_dwordx2 v[%d:%d], v94, s[12:15], s58 offen sc1" % (S[0], Q[0]))
    chunks = [capture(aux_head) + capture(gelu_ft, 0, True), capture(gelu_ft, 1, True), capture(gelu_ft, 2, True),
              capture(gelu_ft, 3, True), capture(gelu_ft, 4, True) + capture(aux_pub)]
    KD = 172
    for k in range(9, 18):
        a("s_barrier")
        if k == 9:
            a("s_cmp_lg_u32 s3, 0")
            a("s_cbranch_scc1 %s_nosig" % name)
            a("v_mov_b32 v10, 1")
            a("s_lshl_b32 s36, s22, 2")
            a("v_mov_b32 v11, s36")
            a("s_mov_b64 exec, 1")
            a("buffer_atomic_add v10, v11, s[60:63], 0 offen sc1")
            a("s_mov_b64 exec, -1")
            a.label("%s_nosig" % name)
        g = k + 3
        dma = capture(lambda: (issueT(g), issueF(g))) if g < 18 else []
        comp = chunks[k - 9] if k - 9 < len(chunks) else []
        interleave(dma, comp)
        if k == 13: vmA.issue("pub", 1)
        if g < 18: vmA.issue("S%d" % g, 9)
        if k == 14:
            srd(a, 92, 78, 2048 * 2048 * 2)
            a("v_lshrrev_b32 v10, 4, v2")
            a("v_lshlrev_b32 v10, 12, v10")
            a("v_lshl_add_u32 v10, v3, 4, v10")
            a("s_lshl_b32 s40, s22, 7")
            a("s_lshl_b32 s36, s3, 5")
            a("s_add_u32 s40, s40, s36")
            a("s_lshl_b32 s40, s40, 12")
            a("s_lshl_b32 s36, s23, 8")
            a("s_add_u32 s40, s40, s36")
            for n in range(8):
                a("buffer_load_dwordx4 v[200:203], v10, s[92:95], s40 offen")
                if n < 7: a("s_add_u32 s40, s40, 16384")
            vmA.issue("wp", 8)
            a("s_lshl_b32 s36, s22, 2")
            a("v_mov_b32 v199, s36")
            a("buffer_load_dword v198, v199, s[60:63], 0 offen sc1"); vmA.issue("cnt", 1)
        if k + 2 < 18 and k + 2 >= 12:
            vmA.wait(["S%d" % (k + 2)])
    a("s_barrier")
    stamp(a, 3)
    a("s_load_dwordx4 s[88:91], s[0:1], 32")
    a("v_lshrrev_b32 v10, 4, v2")
    a("v_lshlrev_b32 v95, 8, v3")
    a("v_lshl_add_u32 v95, v10, 6, v95")
    a("s_lshl_b32 s33, s25, 13")
    a("s_add_u32 s52, s59, s33")
    a("s_xor_b32 s33, s33, 8192")
    a("s_add_u32 s53, s59, s33")
    a("s_add_u32 s42, s52, 4096")
    a("s_add_u32 s43, s53, 4096")
    Z2 = ZP
    a("s_waitcnt vmcnt(0)")
    GB = [128, 144, 160, 176]
    a("v_mov_b32 v4, v95")
    def gather():
        for tt in range(4):
            for q in range(4):
                a("buffer_load_dwordx4 %s, v4, s[12:15], s%d offen offset:%d sc1" % (vr(GB[tt] + 4 * q), (52, 42, 53, 43)[tt], 16 * q))
    gather()
    a("s_mov_b32 s40, 0")
    a("s_waitcnt vmcnt(0)")
    a.label("%s_chk" % name)
    a("v_subrev_u32 v11, 16, v198")
    for tt in range(4):
        for r in range(GB[tt] + 1, GB[tt] + 16, 4):
            a("v_or3_b32 v11, v11, v%d, v%d" % (r, r + 2))
    a("v_cmp_gt_i32 vcc, 0, v11")
    a("s_add_u32 s40, s40, 1")
    a("s_cmp_gt_u32 s40, %d" % SPIN_MAX)
    a("s_cbranch_scc1 %s_ok" % name)
    a("s_cbranch_vccz %s_ok" % name)
    a("s_sleep 32")
    a("buffer_load_dword v198, v199, s[60:63], 0 offen sc1")
    a("s_waitcnt vmcnt(0)")
    gather()
    a("s_waitcnt vmcnt(0)")
    a("s_branch %s_chk" % name)
    a.label("%s_ok" % name)
    stamp(a, 5)
    for tt in range(4):
        b = GB[tt]
        for st_ in (8, 4, 2):
            for q in range(0, st_, 2):
                a("v_pk_add_f32 %s, %s, %s" % (vr(b + q, 2), vr(b + q, 2), vr(b + q + st_, 2)))
    emit_xg_reduce(a, [GB[tt] + e for tt in range(4) for e in range(2)], 72)
    for tt in range(4):
        b = GB[tt]
        emit_ln_finish(a, b, b + 1, 2304, b + 2, MR + 2 * tt, b + 4)
        a("v_mul_f32 v%d, -v%d, v%d" % (MR + 2 * tt + 1, b + 2, MR + 2 * tt))
    a("v_lshrrev_b32 v10, 4, v2")
    a("v_lshrrev_b32 v11, 2, v2"); a("v_and_b32 v11, 1, v11"); a("v_lshlrev_b32 v11, 4, v11")
    a("v_lshrrev_b32 v5, 3, v2"); a("v_and_b32 v5, 1, v5"); a("v_lshl_add_u32 v11, v5, 2, v11")
    a("v_and_b32 v5, 3, v2"); a("v_add_u32 v11, v11, v5")
    a("v_and_b32 v5, 1, v10")
    a("v_lshl_add_u32 v11, v5, 3, v11")
    a("v_lshlrev_b32 v11, 5, v11")
    a("v_lshrrev_b32 v5, 1, v10")
    a("v_lshl_add_u32 v6, v5, 4, v11")
    a("s_lshl_b32 s33, s23, 5")
    a("s_lshl_b32 s36, s22, 1")
    a("s_add_u32 s33, s33, s36")
    a("s_add_u32 s33, s33, s24")
    a("s_mul_i32 s33, s33, 18432")
    if ZIMG: a("s_add_u32 s33, s33, 0x%x" % ZIMG)
    a("s_lshl_b32 s36, s25, 10")
    a("s_add_u32 s39, s33, s36")
    a("s_add_u32 s39, s39, 8192")
    a("s_mul_i32 s38, s25, 10240")
    a("s_add_u32 s33, s33, s38")
    a("s_add_u32 s37, s33, s36")
    a("s_xor_b32 s36, s36, 1024")
    a("s_add_u32 s38, s33, s36")
    a("s_add_u32 s33, s37, 4096")
    a("s_add_u32 s36, s38, 4096")
    def norm_pair(nA, ttA, nB, ttB, O):
        for q, (n, tt) in enumerate(((nA, ttA), (nB, ttB))):
            for d in range(2):
                z = Z2 + 2 * n + d; t = T + 4 * q + 2 * d
                a("v_lshlrev_b32 v%d, 16, v%d" % (t, z))
                a("v_and_b32 v%d, 0xffff0000, v%d" % (t + 1, z))
        for q, (n, tt) in enumerate(((nA, ttA), (nB, ttB))):
            for d in range(2):
                t = T + 4 * q + 2 * d
                a("v_pk_fma_f32 %s, %s, %s, %s op_sel:[0,0,1] op_sel_hi:[1,0,1]" % (vr(t, 2), vr(t, 2), vr(MR + 2 * tt, 2), vr(MR + 2 * tt, 2)))
        for q in range(2):
            for d in range(2):
                t = T + 4 * q + 2 * d
                a("v_cvt_pk_bf16_f32 v%d, v%d, v%d" % (O + 2 * q + d, t, t + 1))
        a("s_nop 1")
        a("v_permlane16_swap_b32 v%d, v%d" % (O, O + 2))
        a("v_permlane16_swap_b32 v%d, v%d" % (O + 1, O + 3))
    cnt = 0
    for ft in range(4):
        for pp in range(2):
            O = 200 + 4 * cnt; cnt += 1
            norm_pair(tidx(ft, 2 * pp), 2 * pp, tidx(ft, 2 * pp + 1), 2 * pp + 1, O)
            a("s_nop 0")
            a("buffer_store_dwordx4 %s, v6, s[12:15], s%d offen offset:%d sc1" % (vr(O), ((37, 38), (33, 36))[ft >> 1][pp], (ft & 1) * 2048))
    O = 200 + 4 * cnt
    norm_pair(16, 0, 17, 1, O)
    a("s_nop 0")
    a("buffer_store_dwordx4 %s, v6, s[12:15], s39 offen sc1" % vr(O))
    stamp(a, 6)
    a("s_setprio 3")
    srd(a, 8, 78, 2048 * 2048 * 2)
    a("v_lshrrev_b32 v3, 3, v2")
    a("s_lshl_b32 s24, s3, 5")
    a("v_add_u32 v3, s24, v3")
    a("v_and_b32 v4, 7, v2")
    a("v_lshrrev_b32 v6, 4, v2")
    a("v_xor_b32 v6, v6, v4")
    a("v_lshlrev_b32 v6, 4, v6")
    a("v_lshl_add_u32 v10, v3, 12, v6")
    a("v_xor_b32 v11, 64, v10")
    a("v_add_u32 v11, %d, v11" % (32768 - 1024))
    a("v_add_u32 v12, %d, v10" % (2 * (32768 - 1024)))
    a("v_add_u32 v13, %d, v11" % (2 * (32768 - 1024)))
    a("v_lshlrev_b32 v14, 4, v2")
    a("s_lshl_b32 s26, s22, 19")
    a("s_mul_i32 s27, s23, %d" % (32 * 18432))
    a("s_lshl_b32 s24, s3, 12")
    a("s_add_u32 s27, s27, s24")
    if ZIMG: a("s_add_u32 s27, s27, 0x%x" % ZIMG)
    a("s_lshl_b32 s25, s3, 9")
    a("s_sub_u32 s32, s25, s24")
    a("s_add_u32 s32, s32, 16384")
    a("s_add_u32 s24, s24, %d" % RB)
    a("s_waitcnt vmcnt(0) lgkmcnt(0)")
    a("v_mov_b32 v26, %d" % LC)
    a("v_mov_b32 v27, 1")
    a("s_mov_b64 exec, 1")
    a("ds_add_rtn_u32 v28, v26, v27")
    a("s_waitcnt lgkmcnt(0)")
    a("v_readfirstlane_b32 s36, v28")
    a("s_cmp_lg_u32 s36, 3")
    a("s_cbranch_scc1 %s_nozs" % name)
    a("v_mov_b32 v28, 0")
    a("buffer_store_dword v27, v28, s[12:15], s97 offen sc1")
    a.label("%s_nozs" % name)
    a("s_mov_b64 exec, -1")
    stamp(a, 7)
    srd(a, 16, 88, 576 * 2048 * 2)
    srd(a, 84, 90, 576 * 2)
    for g in range(4):
        a("s_add_u32 s35, s24, %d" % (g * SLOT))
        a("s_mov_b32 m0, s35")
        a("s_add_u32 s36, s26, %d" % (128 * g))
        for n in range(4):
            a("buffer_load_dwordx4 v%d, s[8:11], s36 offen offset:%d lds" % (10 + n, n * 1024))
    a("s_mov_b32 s34, 0")
    a("s_cmp_lg_u32 s3, 0")
    a("s_cbranch_scc1 %s_pl" % name)
    a("v_and_b32 v28, 15, v2")
    a("v_lshlrev_b32 v30, 2, v28")
    a("v_lshlrev_b32 v28, 12, v28")
    a("s_lshl_b32 s52, s23, 8")
    a("s_add_u32 s52, s52, 0x%x" % ZFLG)
    a.label("%s_pz0" % name)
    a("buffer_load_dword v31, v30, s[60:63], 0 offen sc1")
    a("s_add_u32 s34, s34, 1")
    a("s_waitcnt vmcnt(0)")
    a("v_cmp_gt_u32 vcc, 16, v31")
    a("s_cmp_gt_u32 s34, %d" % SPIN_MAX)
    a("s_cbranch_scc1 %s_pz" % name)
    a("s_cbranch_vccz %s_pz" % name)
    a("s_sleep 32")
    a("s_branch %s_pz0" % name)
    a.label("%s_pz" % name)
    a("buffer_load_dword v29, v28, s[12:15], s52 offen sc1")
    a("s_add_u32 s34, s34, 1")
    a("s_waitcnt vmcnt(0)")
    a("v_cmp_ne_u32 vcc, 1, v29")
    a("s_cmp_gt_u32 s34, %d" % SPIN_MAX)
    a("s_cbranch_scc1 %s_pzx" % name)
    a("s_cbranch_vccz %s_pzx" % name)
    a("s_sleep 8")
    a("s_branch %s_pz" % name)
    a.label("%s_pzx" % name)
    a("v_mov_b32 v27, 1")
    a("ds_write_b32 v26, v27 offset:4")
    a("s_branch %s_pgo" % name)
    a.label("%s_pl" % name)
    a("ds_read_b32 v27, v26 offset:4")
    a("s_add_u32 s34, s34, 1")
    a("s_waitcnt lgkmcnt(0)")
    a("v_readfirstlane_b32 s36, v27")
    a("s_cmp_gt_u32 s34, %d" % (SPIN_MAX * 20))
    a("s_cbranch_scc1 %s_pgo" % name)
    a("s_cmp_lg_u32 s36, 0")
    a("s_cbranch_scc1 %s_pgo" % name)
    a("s_sleep 2")
    a("s_branch %s_pl" % name)
    a.label("%s_pgo" % name)
    stamp(a, 8)
    for g in range(4):
        a("s_add_u32 s35, s24, %d" % (g * SLOT + TREG))
        a("s_mov_b32 m0, s35")
        a("s_add_u32 s36, s27, %d" % (18432 * g))
        a("s_add_u32 s37, s36, s32")
        for n in range(4):
            a("buffer_load_dwordx4 v14, s[12:15], s36 offen offset:%d sc1 lds" % (n * 1024))
        a("s_add_u32 s35, s35, s32")
        a("s_mov_b32 m0, s35")
        a("s_mov_b64 exec, 0xffffffff")
        a("buffer_load_dwordx4 v14, s[12:15], s37 offen sc1 lds")
        a("s_mov_b64 exec, -1")
    a("s_add_u32 s26, s26, 512")
    a("s_add_u32 s27, s27, %d" % (4 * 18432))
    a("s_mov_b32 s33, 0")
    a("s_lshl_b32 s43, s2, 2")
    a("s_add_u32 s43, s43, s3")
    a("s_and_b32 s53, s43, 1")
    a("s_sub_u32 s36, s43, 448")
    a("s_lshr_b32 s37, s43, 1")
    a("s_cmp_ge_u32 s43, 896")
    a("s_cselect_b32 s43, s36, s37")
    a("s_cselect_b32 s53, 2, s53")
    a("s_waitcnt vmcnt(15)")
    a("s_barrier")
    a("s_waitcnt vmcnt(10)")
    a("s_barrier")
    a("s_waitcnt vmcnt(5)")
    a("s_barrier")
    a("s_mov_b32 s34, 4")
    def issue2():
        a("s_add_u32 s35, s33, s24")
        a("s_mov_b32 m0, s35")
        a("s_add_u32 s36, s35, %d" % TREG)
        for n in range(4):
            a("buffer_load_dwordx4 v%d, s[8:11], s26 offen offset:%d lds" % (10 + n, n * 1024))
        a("s_mov_b32 m0, s36")
        a("s_add_u32 s37, s27, s32")
        for n in range(4):
            a("buffer_load_dwordx4 v14, s[12:15], s27 offen offset:%d sc1 lds" % (n * 1024))
        a("s_add_u32 s36, s36, s32")
        a("s_mov_b32 m0, s36")
        a("s_mov_b64 exec, 0xffffffff")
        a("buffer_load_dwordx4 v14, s[12:15], s37 offen sc1 lds")
        a("s_mov_b64 exec, -1")
        a("s_add_u32 s26, s26, 128")
        a("s_add_u32 s27, s27, 18432")
        a("s_add_u32 s33, s33, %d" % SLOT)
        a("s_cmp_eq_u32 s33, %d" % (R * SLOT))
        a("s_cselect_b32 s33, 0, s33")
    a.label("%s_lloop" % name)
    issue2()
    a("s_cmp_eq_u32 s34, 18")
    a("s_cbranch_scc1 %s_hk1" % name)
    a("s_cmp_eq_u32 s34, 21")
    a("s_cbranch_scc1 %s_hk2" % name)
    a("s_waitcnt vmcnt(9)")
    a.label("%s_lcont" % name)
    a("s_barrier")
    a("s_add_u32 s34, s34, 1")
    a("s_cmp_lt_u32 s34, 32")
    a("s_cbranch_scc1 %s_lloop" % name)
    a("s_branch %s_ldone" % name)
    a.label("%s_hk1" % name)
    a("v_and_b32 v28, 15, v2")
    a("v_lshlrev_b32 v28, 2, v28")
    a("buffer_load_dword v29, v28, s[60:63], 0 offen offset:128 sc1")
    a("s_waitcnt vmcnt(10)")
    a("s_branch %s_lcont" % name)
    a.label("%s_hk2" % name)
    a("s_mov_b32 s52, 0")
    a.label("%s_hk2l" % name)
    a("v_cmp_gt_u32 vcc, 16, v29")
    a("s_add_u32 s52, s52, 1")
    a("s_cmp_gt_u32 s52, %d" % SPIN_MAX)
    a("s_cbranch_scc1 %s_hk2g" % name)
    a("s_cbranch_vccz %s_hk2g" % name)
    a("s_sleep 16")
    a("buffer_load_dword v29, v28, s[60:63], 0 offen offset:128 sc1")
    a("s_waitcnt vmcnt(0)")
    a("s_branch %s_hk2l" % name)
    a.label("%s_hk2g" % name)
    nconv = emit_conv_loads(a, " sc1")
    a("s_waitcnt vmcnt(%d)" % (9 + nconv))
    a("s_branch %s_lcont" % name)
    a.label("%s_ldone" % name)
    a("s_waitcnt vmcnt(0)")
    a("s_barrier")
    a("s_mov_b32 s26, s53")
    a("s_and_b32 s27, s3, 1")
    a("s_mul_i32 s27, s27, %d" % CJ_SIZE)
    a("s_lshr_b32 s36, s3, 1")
    a("s_mul_i32 s36, s36, %d" % SLOT)
    a("s_add_u32 s27, s27, s36")
    a("s_add_u32 s27, s27, %d" % RB)
    def mid():
        a("s_barrier")
        a("s_setprio 0")
    sv = set(DBG); DBG.discard("stamp")
    emit_conv_job(a, name, mid)
    DBG.update(sv)
    G.stamp_rt(a, 1)
    a.label("%s_end" % name)
    a("s_endpgm")
    return a.text(), kernel_desc(name, 256, 256), (name, 256, 512, LDSB)

def gen_kf6(name="k1_kernel", R=4):
    a = Asm()
    RB = 4096; SLOT = 34816; TREG = 16384; FS = 288; RST = 0
    LDSB = RB + R * SLOT
    LC = 2048
    ZFLG = 0x2D00000; PFL = 128
    C0 = 77824; CW = 151552; CSL = 36864; YOFF = 151552; CTREG = 16384; CFS = 160
    from gen3 import emit_conv_loads, emit_conv_job, CJ_SIZE
    def capture(f, *args):
        lb = len(a.lines); f(*args); out = a.lines[lb:]; del a.lines[lb:]; return out

    def c_common():
        a("s_load_dwordx2 s[4:5], s[0:1], 0")
        a("s_load_dwordx2 s[16:17], s[0:1], 88")
        a("s_and_b32 s20, s2, 7")
        a("s_lshr_b32 s21, s2, 3")
        a("s_and_b32 s22, s20, 3")
        a("s_lshl_b32 s22, s22, 3")
        a("s_and_b32 s23, s21, 7")
        a("s_add_u32 s22, s22, s23")
        a("s_lshr_b32 s23, s20, 2")
        a("s_lshl_b32 s23, s23, 2")
        a("s_lshr_b32 s24, s21, 3")
        a("s_add_u32 s23, s23, s24")
        a("s_lshr_b32 s52, s23, 1")
        a("s_and_b32 s53, s23, 1")
        a("s_lshl_b32 s54, s98, 2")
        a("s_add_u32 s54, s54, s3")
        a("s_waitcnt lgkmcnt(0)")
        srd(a, 8, 4, 2048 * 576 * 2)
        srd(a, 28, 16, 2048 * 576 * 2)
    XR = 200; ST = 208
    def fin_loads():
        a("v_and_b32 v3, 15, v2")
        a("v_lshrrev_b32 v10, 4, v2")
        a("v_mul_u32_u24 v13, 1152, v3")
        a("v_lshl_add_u32 v13, v10, 3, v13")
        a("v_lshlrev_b32 v12, 3, v3")
        for s_ in range(3):
            if s_ == 2:
                a("s_cmp_ge_u32 s54, 2")
                a("s_cbranch_scc1 %s_fl%d" % (name, fin_loads.cnt))
            b = 64 + 4 * s_
            if s_ < 2:
                a("s_add_u32 s36, s54, %d" % (8 * s_))
                a("s_lshr_b32 s37, s36, 2")
                a("s_and_b32 s38, s36, 3")
                a("s_mul_i32 s39, s53, 160")
                a("s_lshl_b32 s40, s37, 5")
                a("s_add_u32 s39, s39, s40")
            else:
                a("s_add_u32 s36, s54, 16")
                a("s_mov_b32 s37, 4")
                a("s_mov_b32 s38, s54")
                a("s_mov_b32 s39, 128")
            a("s_lshl_b32 s40, s53, 1")
            a("s_add_u32 s38, s38, s40")
            a("s_and_b32 s38, s38, 3")
            a("s_lshl_b32 s40, s22, 2")
            a("s_add_u32 s40, s40, s38")
            a("s_lshl_b32 s40, s40, 4")
            a("s_mul_i32 s%d, s40, 1152" % b)
            a("s_add_u32 s%d, s%d, s39" % (b, b))
            a("s_mul_i32 s39, s52, 288")
            a("s_add_u32 s%d, s%d, s39" % (b, b))
            a("s_lshl_b32 s%d, s37, 11" % (b + 1))
            a("s_lshl_b32 s39, s38, 5")
            a("s_add_u32 s%d, s%d, s39" % (b + 1, b + 1))
            a("s_add_u32 s%d, s%d, %d" % (b + 1, b + 1, YOFF))
            a("s_lshl_b32 s%d, s36, 10" % (b + 2))
            a("s_add_u32 s%d, s%d, %d" % (b + 2, b + 2, C0))
            a("s_lshl_b32 s40, s40, 3")
            a("s_add_u32 s40, s40, 0x%x" % STATS1)
            a("buffer_load_dwordx2 %s, v13, s[8:11], s%d offen" % (vr(XR + 2 * s_, 2), b))
            a("buffer_load_dwordx2 %s, v12, s[12:15], s40 offen sc1" % vr(ST + 2 * s_, 2))
        a.label("%s_fl%d" % (name, fin_loads.cnt))
        fin_loads.cnt += 1
    fin_loads.cnt = 0
    kernel_begin(a, name)
    a("s_load_dwordx2 s[80:81], s[0:1], 0")
    a("s_load_dwordx2 s[4:5], s[0:1], 56")
    a("s_load_dwordx2 s[6:7], s[0:1], 104")
    a("s_load_dwordx2 s[18:19], s[0:1], 96")
    a("s_cmp_ge_u32 s2, 256")
    a("s_cbranch_scc1 %s_end" % name)
    a("v_lshrrev_b32 v1, 6, v0")
    a("v_and_b32 v2, 63, v0")
    a("v_readfirstlane_b32 s3, v1")
    G2.tile_ij(a)
    a("s_lshr_b32 s98, s3, 2")
    a("s_mov_b32 s54x, 0".replace("s54x", "s99"))
    a("s_and_b32 s3, s3, 3")
    a("s_lshr_b32 s24, s3, 1")
    a("s_and_b32 s25, s3, 1")
    a("v_and_b32 v3, 15, v2")
    VT = 204; VF = 208
    def loader_setup():
        a("v_lshrrev_b32 v5, 3, v2")
        a("v_and_b32 v4, 7, v2")
        a("s_lshl_b32 s36, s3, 5")
        a("v_add_u32 v5, s36, v5")
        a("v_lshrrev_b32 v7, 4, v2")
        a("v_xor_b32 v7, v7, v4")
        a("v_mul_u32_u24 v6, 1152, v5")
        a("v_lshl_add_u32 v%d, v7, 4, v6" % VT)
        a("v_xor_b32 v%d, 64, v%d" % (VT + 1, VT))
        a("v_add_u32 v%d, %d, v%d" % (VT + 1, 9216 - 1024, VT + 1))
        a("v_add_u32 v%d, %d, v%d" % (VT + 2, 2 * (9216 - 1024), VT))
        a("v_add_u32 v%d, %d, v%d" % (VT + 3, 2 * (9216 - 1024), VT + 1))
        a("s_lshl_b32 s84, s3, 12")
        a("s_add_u32 s84, s84, %d" % RB)
        a("s_lshl_b32 s85, s3, 9")
        a("s_add_u32 s85, s85, %d" % (RB + TREG + 16384))
    def loader_setup2():
        for n in range(5):
            if n < 4:
                a("s_lshl_b32 s36, s3, 8")
                a("s_add_u32 s36, s36, %d" % (64 * n))
            else:
                a("s_lshl_b32 s36, s3, 5")
                a("s_add_u32 s36, s36, 1024")
            a("v_add_u32 v6, s36, v2")
            a("v_mul_u32_u24 v7, 3641, v6")
            a("v_lshrrev_b32 v7, 16, v7")
            a("v_mul_u32_u24 v8, 18, v7")
            a("v_sub_u32 v8, v6, v8")
            a("v_and_b32 v9, 35, v7")
            a("v_bfe_u32 v6, v7, 2, 2")
            a("v_lshl_add_u32 v9, v6, 3, v9")
            a("v_bfe_u32 v6, v7, 4, 1")
            a("v_lshl_add_u32 v9, v6, 2, v9")
            a("v_mul_u32_u24 v9, 9216, v9")
            a("v_lshl_add_u32 v%d, v8, 4, v9" % (VF + n))
            if 0 < n < 4: a("v_subrev_u32 v%d, %d, v%d" % (VF + n, 1024 * n, VF + n))
    def issueT(g):
        st = g % 9
        a("s_add_u32 s86, s84, %d" % ((g % R) * SLOT))
        a("s_mov_b32 m0, s86")
        a("s_add_u32 s87, s82, %d" % (128 * st))
        for n in range(4):
            a("buffer_load_dwordx4 v%d, s[28:31], s87 offen offset:%d lds" % (VT + n, 1024 * n))
    def issueF(g):
        st = g % 9
        a("s_add_u32 s86, s84, %d" % ((g % R) * SLOT + TREG))
        a("s_mov_b32 m0, s86")
        a("s_add_u32 s87, s83, %d" % (64 * 9216 * st + (4608 if g < 9 else 0)))
        for n in range(4):
            a("buffer_load_dwordx4 v%d, s[8:11], s87 offen offset:%d lds" % (VF + n, 1024 * n))
        a("s_add_u32 s86, s85, %d" % ((g % R) * SLOT))
        a("s_mov_b32 m0, s86")
        a("s_mov_b64 exec, 0xffffffff")
        a("buffer_load_dwordx4 v%d, s[8:11], s87 offen lds" % (VF + 4))
        a("s_mov_b64 exec, -1")
    def srds_main():
        srd(a, 28, 80, 2048 * 576 * 2)
        srd(a, 8, 4, 576 * 4608 * 2)
        srd(a, 12, 6, WS_BYTES)
        srd(a, 60, 18, 256)
        a("s_mul_i32 s82, s22, %d" % (128 * 1152))
        a("s_mul_i32 s83, s23, 288")
    ACC = 128; FB = [16, 52]; CS = 216; ONE = 236
    vTa = [4, 5]; vTb = [6, 7]; vF = 8; vFh = 9
    bTa = [88, 89]; bTb = [90, 91]; bF = 92; bFh = 93
    def mma_setup():
        a("v_lshrrev_b32 v10, 4, v2")
        a("v_lshrrev_b32 v11, 1, v3")
        a("v_xor_b32 v10, v10, v11")
        a("v_lshlrev_b32 v10, 4, v10")
        a("v_lshl_add_u32 v10, v3, 7, v10")
        a("s_lshl_b32 s26, s24, 13")
        a("s_add_u32 s26, s26, %d" % RB)
        a("v_add_u32 v10, s26, v10")
        a("s_lshl_b32 s26, s25, 12")
        a("v_add_u32 v%d, s26, v10" % bTa[0])
        a("s_xor_b32 s26, s26, 4096")
        a("v_add_u32 v%d, s26, v10" % bTb[0])
        a("v_xor_b32 v%d, 64, v%d" % (bTa[1], bTa[0]))
        a("v_xor_b32 v%d, 64, v%d" % (bTb[1], bTb[0]))
        a("v_lshrrev_b32 v10, 2, v2")
        a("v_mul_u32_u24 v10, %d, v10" % FS)
        a("v_and_b32 v11, 3, v2")
        a("v_lshl_add_u32 v10, v11, 3, v10")
        a("v_add_u32 v10, %d, v10" % (RB + TREG))
        a("s_mul_i32 s26, s25, 160")
        a("v_add_u32 v%d, s26, v10" % bF)
        a("v_add_u32 v%d, 128, v10" % bFh)
        for r in range(ACC, ACC + 72): a("v_mov_b32 v%d, 0" % r)
        for r in range(CS, CS + 20): a("v_mov_b32 v%d, 0" % r)
        for r in range(ONE, ONE + 4): a("v_mov_b32 v%d, 0x3f803f80" % r)
    def mma_addr(slot):
        a("s_mov_b32 s27, %d" % (slot * SLOT))
        for d, s_ in ((vTa[0], bTa[0]), (vTb[0], bTb[0]), (vTa[1], bTa[1]), (vTb[1], bTb[1]), (vF, bF), (vFh, bFh)):
            a("v_add_u32 v%d, s27, v%d" % (d, s_))
    core = G.Core(a, ACC, FB[0], FB[1], FS, TREG, vTa, vTb, vF, vFh)
    trk = core.trk
    a("s_cmp_eq_u32 s98, 0")
    a("s_cbranch_scc1 %s_A0" % name)
    a("s_setprio 3")
    loader_setup()
    a("s_waitcnt lgkmcnt(0)")
    srds_main()
    vm = VmTracker(a)
    def issue(g, vmx):
        issueT(g); issueF(g); vmx.issue("S%d" % g, 9)
    issueT(0)
    loader_setup2()
    issueF(0); vm.issue("S0", 9)
    issue(1, vm); issue(2, vm); issue(3, vm)
    a("s_add_u32 s3, s3, 4"); stamp_setup(a, 1); stamp(a, 0); a("s_sub_u32 s3, s3, 4")
    mma_setup()
    RA = 96; XB = 112
    for r in range(RA, RA + 16): a("v_mov_b32 v%d, 0" % r)
    a("v_lshrrev_b32 v10, 4, v2")
    a("v_lshrrev_b32 v11, 1, v3")
    a("v_xor_b32 v10, v10, v11")
    a("v_lshlrev_b32 v10, 4, v10")
    a("v_lshl_add_u32 v10, v3, 7, v10")
    a("v_add_u32 v12, s84, v10")
    a("v_xor_b32 v13, 64, v12")
    def rs_rd(g):
        a("v_add_u32 v10, %d, v12" % ((g % R) * SLOT))
        a("v_add_u32 v11, %d, v13" % ((g % R) * SLOT))
        for h in range(2):
            for n in range(2):
                a("ds_read_b128 %s, v%d offset:%d" % (vr(XB + 8 * h + 4 * n), 10 + h, 2048 * n))
    def rs_do():
        for h in range(2):
            for n in range(2):
                x = XB + 8 * h + 4 * n
                a("v_mfma_f32_16x16x32_bf16 %s, %s, %s, %s" % (vr(RA + 4 * n), vr(ONE), vr(x), vr(RA + 4 * n)))
                a("v_mfma_f32_16x16x32_bf16 %s, %s, %s, %s" % (vr(RA + 8 + 4 * n), vr(x), vr(x), vr(RA + 8 + 4 * n)))
    def interleave(dma, comp, vmx=None):
        groups = []; cur = []
        for l in dma:
            cur.append(l)
            if "buffer_load" in l and not any("exec, 0xffffffff" in x for x in cur[-2:]):
                groups.append(cur); cur = []
            elif "exec, -1" in l:
                groups.append(cur); cur = []
        if cur: groups.append(cur)
        ns = max(1, len(groups))
        per = (len(comp) + ns - 1) // ns
        for g in groups:
            a.lines.extend(g)
            a.lines.extend(comp[:per]); comp = comp[per:]
        a.lines.extend(comp)
    vm.wait(["S0"])
    a("s_barrier")
    stamp(a, 1)
    rs_rd(0)
    vm.wait(["S1"])
    a("s_barrier")
    for k in range(9):
        a("s_waitcnt lgkmcnt(0)")
        dma = capture(lambda: (issueT(k + 3), issueF(k + 3))) if k >= 1 else []
        interleave(dma, capture(rs_do))
        if k >= 1: vm.issue("S%d" % (k + 3), 9)
        if k < 8:
            rs_rd(k + 1)
        else:
            a("s_nop 7")
            a("v_lshrrev_b32 v10, 4, v2")
            a("v_lshrrev_b32 v11, 2, v3")
            a("v_and_b32 v12, 3, v3")
            for n in range(2):
                G_ = RA + 8 + 4 * n
                for r in range(1, 4):
                    a("v_cmp_eq_u32 vcc, %d, v12" % r)
                    a("s_nop 1")
                    a("v_cndmask_b32 v%d, v%d, v%d, vcc" % (G_, G_, G_ + r))
            ML = 112
            for n in range(2):
                emit_ln_finish(a, RA + 4 * n, RA + 8 + 4 * n, 576, ML + 2 * n, ML + 2 * n + 1, 120)
                a("v_mov_b32 v%d, v%d" % (117 + 2 * n, ML + 2 * n + 1))
                a("v_sub_f32 v%d, 0, v%d" % (116 + 2 * n, ML + 2 * n))
            a("s_lshl_b32 s35, s3, 8")
            a("v_lshlrev_b32 v13, 3, v3")
            a("v_add_u32 v12, s35, v13")
            a("v_cmp_eq_u32 vcc, v10, v11")
            a("s_and_saveexec_b64 s[36:37], vcc")
            for n in range(2):
                a("ds_write_b64 v12, %s offset:%d" % (vr(116 + 2 * n, 2), RST + 128 * n))
            a("s_mov_b64 exec, s[36:37]")
            a("s_cmp_lg_u32 s23, 0")
            a("s_cbranch_scc1 %s_nost1" % name)
            a("s_lshl_b32 s35, s22, 7")
            a("s_lshl_b32 s36, s3, 5")
            a("s_add_u32 s35, s35, s36")
            a("s_lshl_b32 s35, s35, 3")
            a("s_add_u32 s35, s35, 0x%x" % STATS1)
            a("v_mov_b32 v11, 0x7ffffff0")
            a("v_cndmask_b32 v13, v11, v13, vcc")
            for n in range(2):
                a("buffer_store_dwordx2 %s, v13, s[12:15], s35 offen offset:%d sc1" % (vr(ML + 2 * n, 2), 128 * n))
            a.label("%s_nost1" % name)
            mma_addr(9 % R)
            a("s_mov_b32 s33, 0")
            a("s_setprio 0")
        vm.wait(["S%d" % (k + 2)], "lgkmcnt(0)" if k == 8 else "")
        if k < 8: a("s_barrier")
    a("s_branch %s_mma" % name)
    a.label("%s_A0" % name)
    emit_code_prefetch(a, name)
    a("s_load_dwordx4 s[64:67], s[0:1], 8")
    a("s_load_dwordx2 s[76:77], s[0:1], 24")
    a("s_load_dwordx2 s[78:79], s[0:1], 64")
    mma_setup()
    loader_setup(); loader_setup2()
    a("s_waitcnt lgkmcnt(0)")
    srds_main()
    srd(a, 68, 66, 2048 * 576 * 2)
    a("s_mov_b32 s88, s64"); a("s_mov_b32 s89, s65")
    srd(a, 64, 88, 2048 * 576 * 2)
    srd(a, 72, 76, 576 * 8)
    stamp_setup(a, 1); stamp(a, 0)
    def gran_addr():
        a("v_lshrrev_b32 v10, 4, v2")
        a("s_lshl_b32 s36, s25, 1")
        a("v_add_u32 v11, s36, v10")
        a("v_and_b32 v11, 3, v11")
        a("v_lshl_add_u32 v11, v11, 4, v3")
        a("v_lshlrev_b32 v94, 8, v11")
        a("s_lshl_b32 s59, s22, 7")
        a("s_lshl_b32 s36, s24, 6")
        a("s_add_u32 s59, s59, s36")
        a("s_lshl_b32 s59, s59, 8")
        a("s_add_u32 s59, s59, 0x%x" % STATS2)
        a("s_lshl_b32 s36, s23, 1")
        a("s_add_u32 s36, s36, s25")
        a("s_lshl_b32 s36, s36, 3")
        a("s_add_u32 s58, s36, s59")
    gran_addr()
    a("v_mov_b32 v12, 0"); a("v_mov_b32 v13, 0x80000000")
    a("buffer_store_dwordx2 v[12:13], v94, s[12:15], s58 offen sc1")
    a("s_lshl_b32 s36, s22, 4")
    a("s_add_u32 s36, s36, s23")
    a("s_lshl_b32 s36, s36, 8")
    a("s_add_u32 s97, s36, 0x%x" % ZFLG)
    a("v_mov_b32 v10, %d" % LC)
    a("v_mov_b32 v12, 0"); a("v_mov_b32 v13, 0")
    a("s_mov_b64 exec, 1")
    a("buffer_store_dword v12, v12, s[12:15], s97 offen sc1")
    a("buffer_store_dword v12, v12, s[12:15], s97 offen offset:%d sc1" % PFL)
    a("s_mov_b64 exec, -1")
    a("ds_write_b64 v10, v[12:13]")
    a("ds_write_b64 v10, v[12:13] offset:8")
    a("ds_write_b64 v10, v[12:13] offset:16")
    a("ds_write_b64 v10, v[12:13] offset:24")
    mma_addr(0)
    a("s_mov_b32 s33, 0")
    a("s_waitcnt lgkmcnt(0)")
    a("s_barrier")
    stamp(a, 1)
    a.label("%s_mma" % name)
    core.prime(0, core.reads(0, 0))
    trk.drain()
    nocs = [False]
    def mfmas(buf):
        L = []
        for ft in range(5):
            A = core.F(buf, ft)
            for tt in range(4 if ft < 4 else 2):
                c = core.accr(ft, tt); B = core.T(buf, tt)
                L.append(("v_mfma_f32_16x16x32_bf16 %s, %s, %s, %s" % (vr(c), vr(A), vr(B), vr(c)), list(range(A, A + 4)) + list(range(B, B + 4))))
            if not nocs[0]: L.append(("v_mfma_f32_16x16x32_bf16 %s, %s, %s, %s" % (vr(CS + 4 * ft), vr(A), vr(ONE), vr(CS + 4 * ft)), list(range(A, A + 4))))
        return L
    def phase(buf, pend):
        for (m, regs) in mfmas(buf):
            trk.need(regs)
            a(m)
            while pend:
                k, t = pend.pop(0)
                if k == "x":
                    a(t)
                    if t.startswith("s_"): continue
                else:
                    a(t[0]); trk.issue(t[1])
                break
        for k, t in pend:
            if k == "x": a(t)
            else: a(t[0]); trk.issue(t[1])
    def iteration(vw=True):
        if vw: a("s_waitcnt vmcnt(0)")
        a("s_barrier")
        rd = [("r", t) for t in core.reads(1, 1)]
        upd = ["s_add_u32 s27, s27, %d" % SLOT, "s_cmp_eq_u32 s27, %d" % (R * SLOT), "s_cselect_b32 s27, 0, s27"]
        tail = ["v_add_u32 v%d, s27, v%d" % (d, s_) for d, s_ in ((vTa[0], bTa[0]), (vF, bF), (vTb[0], bTb[0]), (vFh, bFh))]
        phase(0, rd[:1] + [("x", u) for u in upd] + rd[1:] + [("x", u) for u in tail])
        rd = [("r", t) for t in core.reads(0, 0)]
        tail = ["v_add_u32 v%d, s27, v%d" % (d, s_) for d, s_ in ((vTa[1], bTa[1]), (vTb[1], bTb[1]))] + ["s_add_u32 s33, s33, 1"]
        phase(1, rd + [("x", u) for u in tail])
    a.label("%s_cloop" % name)
    lb = len(a.lines); iteration(); st = copy.deepcopy(trk.out); del a.lines[lb:]; trk.out = copy.deepcopy(st)
    iteration()
    assert [sorted(x) for x in trk.out] == [sorted(x) for x in st]
    a("s_cmp_lt_u32 s33, 9")
    a("s_cbranch_scc1 %s_cloop" % name)
    trk.drain()
    stamp(a, 2)
    MR = 100; T = 72; ZP = 16
    def epi_in():
        gelu_consts(a)
        a("s_lshl_b32 s36, s24, 9")
        a("s_lshl_b32 s37, s25, 8")
        a("s_add_u32 s38, s36, s37")
        a("s_xor_b32 s37, s37, 256")
        a("s_add_u32 s39, s36, s37")
        a("v_lshlrev_b32 v10, 3, v3")
        a("v_add_u32 v11, s38, v10")
        a("ds_read_b64 %s, v11 offset:%d" % (vr(MR, 2), RST))
        a("ds_read_b64 %s, v11 offset:%d" % (vr(MR + 2, 2), RST + 128))
        a("v_add_u32 v11, s39, v10")
        a("ds_read_b64 %s, v11 offset:%d" % (vr(MR + 4, 2), RST))
        a("ds_read_b64 %s, v11 offset:%d" % (vr(MR + 6, 2), RST + 128))
        a("s_waitcnt lgkmcnt(0)")
    S = [108, 110, 52, 54]; Q = [109, 111, 53, 55]
    def gelu_ft(ft, stats):
        tts = range(4 if ft < 4 else 2)
        emit_fold_gelu(a, [(core.accr(ft, tt), CS + 4 * ft, MR + 2 * tt, ZP + 2 * tidx(ft, tt)) for tt in tts], T)
        if stats:
            for d in range(2):
                for tt in tts:
                    p = ZP + 2 * tidx(ft, tt) + d
                    a("v_dot2_f32_bf16 v%d, v%d, v%d, v%d" % (S[tt], p, ONE, S[tt]))
                    a("v_dot2_f32_bf16 v%d, v%d, v%d, v%d" % (Q[tt], p, p, Q[tt]))
    a("s_cmp_eq_u32 s98, 0")
    a("s_cbranch_scc1 %s_A1" % name)
    a("s_barrier")
    a("s_load_dwordx4 s[64:67], s[0:1], 8")
    a("s_load_dwordx2 s[76:77], s[0:1], 24")
    a("s_load_dwordx2 s[94:95], s[0:1], 80")
    a("s_load_dwordx2 s[92:93], s[0:1], 72")
    epi_in()
    srd(a, 68, 66, 2048 * 576 * 2)
    a("s_mov_b32 s88, s64"); a("s_mov_b32 s89, s65")
    srd(a, 64, 88, 2048 * 576 * 2)
    srd(a, 72, 76, 576 * 8)
    srd(a, 76, 94, 2304 * 576 * 2)
    srd(a, 28, 92, 2048 * 2)
    a("v_and_b32 v0, 255, v0")
    a("s_mov_b32 s41, s2")
    KDB = 240
    emit_kv_loads(a, 112, 240, 248, 252, 253)
    for ft in range(5): gelu_ft(ft, False)
    Z1R = 200; BI = 236
    for r_ in range(36): a("v_mov_b32 v%d, v%d" % (Z1R + r_, ZP + r_))
    stamp(a, 3)
    a("s_waitcnt vmcnt(0)")
    for n in range(11): a("v_mov_b32 v%d, v%d" % (16 + n, 112 + n))
    for n in range(8): a("v_mov_b32 v%d, v%d" % (32 + n, 240 + n))
    for n in range(4): a("v_mov_b32 v%d, v%d" % (44 + n, 248 + n))
    a("v_mov_b32 v56, v252"); a("v_mov_b32 v57, v253")
    for r_ in range(6): a("v_mov_b32 v%d, v%d" % (240 + r_, 88 + r_))
    a.label("%s_kvb" % name)
    emit_kv_compute(a, wait=False, store=False)
    a("s_mov_b32 s39, 0x%x" % KVT)
    a("buffer_store_dwordx4 v[120:123], v12, s[12:15], s39 offen sc1")
    a("buffer_store_dwordx4 v[124:127], v13, s[12:15], s39 offen sc1")
    a("s_add_u32 s41, s41, 256")
    a("s_cmp_ge_u32 s41, 288")
    a("s_cbranch_scc1 %s_kvbd" % name)
    emit_kv_loads(a)
    a("s_waitcnt vmcnt(0)")
    a("s_branch %s_kvb" % name)
    a.label("%s_kvbd" % name)
    for r_ in range(6): a("v_mov_b32 v%d, v%d" % (88 + r_, 240 + r_))
    a("s_mov_b32 s42, s2")
    emit_wot_loads(a, 100, 112, 720, 3)
    a("s_lshl_b32 s36, s22, 7")
    a("s_lshl_b32 s37, s24, 6")
    a("s_add_u32 s36, s36, s37")
    a("v_lshlrev_b32 v11, 1, v3")
    a("s_lshl_b32 s37, s25, 6")
    a("s_lshl_b32 s38, s36, 1")
    a("s_add_u32 s39, s38, s37")
    a("s_xor_b32 s37, s37, 64")
    a("s_add_u32 s36, s38, s37")
    a("buffer_load_ushort v96, v11, s[28:31], s39 offen")
    a("buffer_load_ushort v97, v11, s[28:31], s39 offen offset:32")
    a("buffer_load_ushort v98, v11, s[28:31], s36 offen")
    a("buffer_load_ushort v99, v11, s[28:31], s36 offen offset:32")
    for r in range(ACC, ACC + 72): a("v_mov_b32 v%d, 0" % r)
    mma_addr(0)
    a("s_mov_b32 s33, 0")
    stamp(a, 4)
    a("s_barrier")
    stamp(a, 5)
    core.prime(0, core.reads(0, 0))
    trk.drain()
    nocs[0] = True
    a.label("%s_gloop" % name)
    lb = len(a.lines); iteration(False); st = copy.deepcopy(trk.out); del a.lines[lb:]; trk.out = copy.deepcopy(st)
    iteration(False)
    assert [sorted(x) for x in trk.out] == [sorted(x) for x in st]
    a("s_cmp_lg_u32 s33, 3")
    a("s_cbranch_scc1 %s_ghk0" % name)
    a("s_waitcnt vmcnt(0)")
    for n in range(3):
        a("buffer_store_dwordx4 %s, v%d, s[12:15], s40 offen sc1" % (vr(100 + 4 * n), 112 + n))
    for tt in range(4): a("v_lshlrev_b32 v%d, 16, v%d" % (BI + 2 * tt, 96 + tt))
    a.label("%s_ghk0" % name)
    a("s_cmp_lg_u32 s33, 6")
    a("s_cbranch_scc1 %s_ghk" % name)
    a("s_waitcnt vmcnt(0)")
    a("v_mov_b32 v10, %d" % (LC + 8))
    a("v_mov_b32 v11, 1")
    a("s_mov_b64 exec, 1")
    a("ds_add_rtn_u32 v12, v10, v11")
    a("s_waitcnt lgkmcnt(0)")
    a("v_readfirstlane_b32 s36, v12")
    a("s_cmp_lg_u32 s36, 3")
    a("s_cbranch_scc1 %s_nokvs" % name)
    a("s_and_b32 s36, s2, 15")
    a("s_lshl_b32 s36, s36, 2")
    a("s_add_u32 s36, s36, 128")
    a("v_mov_b32 v10, s36")
    a("buffer_atomic_add v11, v10, s[60:63], 0 offen sc1")
    a.label("%s_nokvs" % name)
    a("s_mov_b64 exec, -1")
    a.label("%s_ghk" % name)
    a("s_cmp_lt_u32 s33, 32")
    a("s_cbranch_scc1 %s_gloop" % name)
    trk.drain()
    stamp(a, 6)
    lb_ = len(a.lines)
    G3.emit_k2_epilogue(a, core, Z1R, BI)
    for n_ in range(lb_, len(a.lines)):
        if "buffer_store_dwordx4" in a.lines[n_]: a.lines[n_] += " sc1"
    stamp(a, 7)
    a("s_setprio 3")
    a("s_lshl_b32 s36, s22, 4")
    a("s_add_u32 s36, s36, s23")
    a("s_lshl_b32 s36, s36, 8")
    a("s_add_u32 s97, s36, 0x%x" % (ZFLG + PFL))
    c_common()
    a("v_lshlrev_b32 v14, 4, v2")
    a("s_mul_i32 s26, s22, %d" % (36 * 8192))
    a("s_lshl_b32 s24, s3, 12")
    a("s_add_u32 s26, s26, s24")
    a("s_add_u32 s26, s26, 0x%x" % PIMG)
    a("s_mul_i32 s27, s23, %d" % (18 * 20480))
    a("s_mul_i32 s25, s3, 5120")
    a("s_add_u32 s27, s27, s25")
    a("s_add_u32 s27, s27, 0x%x" % WOT)
    a("s_add_u32 s25, s25, %d" % CTREG)
    a("v_and_b32 v28, 15, v2")
    a("v_lshlrev_b32 v30, 2, v28")
    a("buffer_load_dword v31, v30, s[60:63], 0 offen offset:128 sc1")
    a("v_mov_b32 v26, %d" % LC)
    a("v_mov_b32 v27, 1")
    a("s_waitcnt vmcnt(0)")
    a("s_mov_b64 exec, 1")
    a("ds_add_rtn_u32 v29, v26, v27 offset:16")
    a("s_waitcnt lgkmcnt(0)")
    a("v_readfirstlane_b32 s36, v29")
    a("s_cmp_lg_u32 s36, 3")
    a("s_cbranch_scc1 %s_nops" % name)
    a("v_mov_b32 v29, 0")
    a("buffer_store_dword v27, v29, s[12:15], s97 offen sc1")
    a.label("%s_nops" % name)
    a("s_mov_b64 exec, -1")
    a("s_mov_b32 s34, 0")
    a.label("%s_cw" % name)
    a("ds_read_b32 v29, v26 offset:16")
    a("s_add_u32 s34, s34, 1")
    a("s_waitcnt lgkmcnt(0)")
    a("v_readfirstlane_b32 s36, v29")
    a("s_cmp_gt_u32 s34, %d" % (SPIN_MAX * 20))
    a("s_cbranch_scc1 %s_cwx" % name)
    a("s_cmp_ge_u32 s36, 4")
    a("s_cbranch_scc1 %s_cwx" % name)
    a("s_sleep 1")
    a("s_branch %s_cw" % name)
    a.label("%s_cwx" % name)
    a("s_mov_b32 s34, 0")
    a.label("%s_cp" % name)
    a("v_cmp_gt_u32 vcc, 16, v31")
    a("s_add_u32 s34, s34, 1")
    a("s_cmp_gt_u32 s34, %d" % SPIN_MAX)
    a("s_cbranch_scc1 %s_cpx" % name)
    a("s_cbranch_vccz %s_cpx" % name)
    a("s_sleep 32")
    a("buffer_load_dword v31, v30, s[60:63], 0 offen offset:128 sc1")
    a("s_waitcnt vmcnt(0)")
    a("s_branch %s_cp" % name)
    a.label("%s_cpx" % name)
    def cF(off, soff):
        a("s_add_u32 s36, s25, %s" % off)
        a("s_mov_b32 m0, s36")
        a("s_add_u32 s37, %s, 4096" % soff)
        for n in range(4):
            a("buffer_load_dwordx4 v14, s[12:15], %s offen offset:%d sc1 lds" % (soff, n * 1024))
        a("s_add_u32 s36, s36, 4096")
        a("s_mov_b32 m0, s36")
        a("s_nop 0")
        a("buffer_load_dwordx4 v14, s[12:15], s37 offen sc1 lds")
    def cT(off, soff):
        a("s_add_u32 s35, s24, %s" % off)
        a("s_mov_b32 m0, s35")
        a("s_nop 0")
        for n in range(4):
            a("buffer_load_dwordx4 v14, s[12:15], %s offen offset:%d sc1 lds" % (soff, n * 1024))
    a("s_add_u32 s38, s27, 20480")
    cF(str(C0), "s27"); cF(str(C0 + CSL), "s38")
    a("s_mov_b32 s34, 0")
    a("s_cmp_lg_u32 s3, 0")
    a("s_cbranch_scc1 %s_cpl" % name)
    a("v_lshlrev_b32 v28, 8, v28")
    a("s_lshr_b32 s39, s22, 1")
    a("s_lshl_b32 s39, s39, 12")
    a("s_add_u32 s39, s39, 0x%x" % (ZFLG + PFL))
    a.label("%s_cpz" % name)
    a("buffer_load_dword v29, v28, s[12:15], s39 offen sc1")
    a("s_add_u32 s34, s34, 1")
    a("s_waitcnt vmcnt(0)")
    a("v_cmp_ne_u32 vcc, 1, v29")
    a("s_cmp_gt_u32 s34, %d" % SPIN_MAX)
    a("s_cbranch_scc1 %s_cpzx" % name)
    a("s_cbranch_vccz %s_cpzx" % name)
    a("s_sleep 8")
    a("s_branch %s_cpz" % name)
    a.label("%s_cpzx" % name)
    a("ds_write_b32 v26, v27 offset:24")
    a("s_branch %s_cgo" % name)
    a.label("%s_cpl" % name)
    a("ds_read_b32 v29, v26 offset:24")
    a("s_add_u32 s34, s34, 1")
    a("s_waitcnt lgkmcnt(0)")
    a("v_readfirstlane_b32 s36, v29")
    a("s_cmp_gt_u32 s34, %d" % (SPIN_MAX * 20))
    a("s_cbranch_scc1 %s_cgo" % name)
    a("s_cmp_lg_u32 s36, 0")
    a("s_cbranch_scc1 %s_cgo" % name)
    a("s_sleep 2")
    a("s_branch %s_cpl" % name)
    a.label("%s_cgo" % name)
    stamp(a, 8)
    a("s_add_u32 s38, s26, 16384")
    cT(str(C0), "s26"); cT(str(C0 + CSL), "s38")
    a("s_add_u32 s26, s26, 32768")
    a("s_add_u32 s27, s27, 40960")
    a("s_mov_b32 s33, %d" % RB)
    def cissue():
        cT("s33", "s26"); cF("s33", "s27")
        a("s_add_u32 s26, s26, 16384")
        a("s_add_u32 s27, s27, 20480")
        a("s_add_u32 s33, s33, %d" % CSL)
        a("s_cmp_eq_u32 s33, %d" % CW)
        a("s_cselect_b32 s33, %d, s33" % RB)
    a("s_waitcnt vmcnt(4)")
    a("s_barrier")
    cissue(); cissue()
    a("s_waitcnt vmcnt(18)")
    a("s_barrier")
    a("s_mov_b32 s34, 0")
    a.label("%s_clloop" % name)
    cissue()
    a("s_cmp_lg_u32 s34, 11")
    a("s_cbranch_scc1 %s_cl1" % name)
    a("buffer_load_dword v31, v30, s[60:63], 0 offen offset:192 sc1")
    a("s_waitcnt vmcnt(19)")
    a("s_branch %s_cl2" % name)
    a.label("%s_cl1" % name)
    a("s_waitcnt vmcnt(18)")
    a.label("%s_cl2" % name)
    a("s_barrier")
    a("s_add_u32 s34, s34, 1")
    a("s_cmp_lt_u32 s34, 14")
    a("s_cbranch_scc1 %s_clloop" % name)
    a("s_mov_b32 s34, 0")
    a.label("%s_cy" % name)
    a("v_cmp_gt_u32 vcc, 16, v31")
    a("s_add_u32 s34, s34, 1")
    a("s_cmp_gt_u32 s34, %d" % SPIN_MAX)
    a("s_cbranch_scc1 %s_cyx" % name)
    a("s_cbranch_vccz %s_cyx" % name)
    a("s_sleep 32")
    a("buffer_load_dword v31, v30, s[60:63], 0 offen offset:192 sc1")
    a("s_waitcnt vmcnt(0)")
    a("s_branch %s_cy" % name)
    a.label("%s_cyx" % name)
    a("v_lshrrev_b32 v3, 3, v2")
    a("v_and_b32 v4, 7, v2")
    a("v_lshlrev_b32 v4, 4, v4")
    a("s_mul_i32 s33, s52, 144")
    a("s_mul_i32 s34, s53, 80")
    a("s_lshl_b32 s35, s22, 7")
    a("s_add_u32 s35, s35, 0x%x" % YT)
    for n in range(3):
        a("s_add_u32 s36, s3, %d" % (4 * n))
        if n == 2: a("s_min_u32 s36, s36, 9")
        a("s_lshl_b32 s37, s36, 3")
        a("s_add_u32 s38, s37, s33")
        if n < 2: a("s_add_u32 s38, s38, s34")
        a("v_add_u32 v5, s38, v3")
        a("v_lshl_add_u32 v5, v5, 12, v4")
        a("s_lshl_b32 s36, s36, 10")
        a("s_add_u32 s36, s36, %d" % YOFF)
        a("s_mov_b32 m0, s36")
        a("s_nop 0")
        a("buffer_load_dwordx4 v5, s[12:15], s35 offen sc1 lds")
    fin_loads()
    a("s_waitcnt vmcnt(%d)" % (9 + 7))
    a("s_barrier")
    a("s_waitcnt vmcnt(7)")
    a("s_barrier")
    a("s_barrier")
    a("s_setprio 0")
    a("s_waitcnt vmcnt(0)")
    a("s_branch %s_cfin" % name)
    a.label("%s_A1" % name)
    a("s_setprio 2")
    vmA = VmTracker(a)
    PB = 132
    def aux_head():
        epi_in()
        for tt in range(4):
            a("v_mov_b32 v%d, 0" % S[tt]); a("v_mov_b32 v%d, 0" % Q[tt])
    def aux_pub():
        a("s_nop 2")
        emit_xg_reduce(a, S + Q, 72)
        a("v_lshrrev_b32 v10, 4, v2")
        for g in range(1, 4):
            a("v_cmp_eq_u32 vcc, %d, v10" % g)
            a("s_nop 1")
            a("v_cndmask_b32 v%d, v%d, v%d, vcc" % (S[0], S[0], S[g]))
            a("v_cndmask_b32 v%d, v%d, v%d, vcc" % (Q[0], Q[0], Q[g]))
        a("v_and_b32 v%d, 0x7fffffff, v%d" % (Q[0], Q[0]))
        a("buffer_store_dwordx2 v[%d:%d], v94, s[12:15], s58 offen sc1" % (S[0], Q[0]))
    chunks = [capture(aux_head) + capture(gelu_ft, 0, True), capture(gelu_ft, 1, True), capture(gelu_ft, 2, True),
              capture(gelu_ft, 3, True), capture(gelu_ft, 4, True) + capture(aux_pub)]
    KD = 172
    for k in range(9, 18):
        a("s_barrier")
        if k == 9:
            a("s_cmp_lg_u32 s3, 0")
            a("s_cbranch_scc1 %s_nosig" % name)
            a("v_mov_b32 v10, 1")
            a("s_lshl_b32 s36, s22, 2")
            a("v_mov_b32 v11, s36")
            a("s_mov_b64 exec, 1")
            a("buffer_atomic_add v10, v11, s[60:63], 0 offen sc1")
            a("s_mov_b64 exec, -1")
            a.label("%s_nosig" % name)
        g = k + 3
        dma = capture(lambda: (issueT(g), issueF(g))) if g < 18 else []
        comp = chunks[k - 9] if k - 9 < len(chunks) else []
        interleave(dma, comp)
        if k == 13: vmA.issue("pub", 1)
        if g < 18: vmA.issue("S%d" % g, 9)
        if k == 14:
            srd(a, 92, 78, 2048 * 2048 * 2)
            a("v_lshrrev_b32 v10, 4, v2")
            a("v_lshlrev_b32 v10, 12, v10")
            a("v_lshl_add_u32 v10, v3, 4, v10")
            a("s_lshl_b32 s40, s22, 7")
            a("s_lshl_b32 s36, s3, 5")
            a("s_add_u32 s40, s40, s36")
            a("s_lshl_b32 s40, s40, 12")
            a("s_lshl_b32 s36, s23, 8")
            a("s_add_u32 s40, s40, s36")
            for n in range(8):
                a("buffer_load_dwordx4 v[200:203], v10, s[92:95], s40 offen")
                if n < 7: a("s_add_u32 s40, s40, 16384")
            vmA.issue("wp", 8)
            a("s_lshl_b32 s36, s22, 2")
            a("v_mov_b32 v199, s36")
            a("buffer_load_dword v198, v199, s[60:63], 0 offen sc1"); vmA.issue("cnt", 1)
        if k + 2 < 18 and k + 2 >= 12:
            vmA.wait(["S%d" % (k + 2)])
    a("s_barrier")
    stamp(a, 3)
    a("s_load_dwordx4 s[88:91], s[0:1], 32")
    a("v_lshrrev_b32 v10, 4, v2")
    a("v_lshlrev_b32 v95, 8, v3")
    a("v_lshl_add_u32 v95, v10, 6, v95")
    a("s_lshl_b32 s33, s25, 13")
    a("s_add_u32 s52, s59, s33")
    a("s_xor_b32 s33, s33, 8192")
    a("s_add_u32 s53, s59, s33")
    a("s_add_u32 s42, s52, 4096")
    a("s_add_u32 s43, s53, 4096")
    Z2 = ZP
    a("s_waitcnt vmcnt(0)")
    GB = [128, 144, 160, 176]
    a("v_mov_b32 v4, v95")
    def gather():
        for tt in range(4):
            for q in range(4):
                a("buffer_load_dwordx4 %s, v4, s[12:15], s%d offen offset:%d sc1" % (vr(GB[tt] + 4 * q), (52, 42, 53, 43)[tt], 16 * q))
    gather()
    a("s_mov_b32 s40, 0")
    a("s_waitcnt vmcnt(0)")
    a.label("%s_chk" % name)
    a("v_subrev_u32 v11, 16, v198")
    for tt in range(4):
        for r in range(GB[tt] + 1, GB[tt] + 16, 4):
            a("v_or3_b32 v11, v11, v%d, v%d" % (r, r + 2))
    a("v_cmp_gt_i32 vcc, 0, v11")
    a("s_add_u32 s40, s40, 1")
    a("s_cmp_gt_u32 s40, %d" % SPIN_MAX)
    a("s_cbranch_scc1 %s_ok" % name)
    a("s_cbranch_vccz %s_ok" % name)
    a("s_sleep 32")
    a("buffer_load_dword v198, v199, s[60:63], 0 offen sc1")
    a("s_waitcnt vmcnt(0)")
    gather()
    a("s_waitcnt vmcnt(0)")
    a("s_branch %s_chk" % name)
    a.label("%s_ok" % name)
    stamp(a, 5)
    for tt in range(4):
        b = GB[tt]
        for st_ in (8, 4, 2):
            for q in range(0, st_, 2):
                a("v_pk_add_f32 %s, %s, %s" % (vr(b + q, 2), vr(b + q, 2), vr(b + q + st_, 2)))
    emit_xg_reduce(a, [GB[tt] + e for tt in range(4) for e in range(2)], 72)
    for tt in range(4):
        b = GB[tt]
        emit_ln_finish(a, b, b + 1, 2304, b + 2, MR + 2 * tt, b + 4)
        a("v_mul_f32 v%d, -v%d, v%d" % (MR + 2 * tt + 1, b + 2, MR + 2 * tt))
    a("v_lshrrev_b32 v10, 4, v2")
    a("v_lshrrev_b32 v11, 2, v2"); a("v_and_b32 v11, 1, v11"); a("v_lshlrev_b32 v11, 4, v11")
    a("v_lshrrev_b32 v5, 3, v2"); a("v_and_b32 v5, 1, v5"); a("v_lshl_add_u32 v11, v5, 2, v11")
    a("v_and_b32 v5, 3, v2"); a("v_add_u32 v11, v11, v5")
    a("v_mul_u32_u24 v11, 288, v11")
    a("v_lshrrev_b32 v5, 1, v10"); a("v_lshl_add_u32 v11, v5, 4, v11")
    a("v_and_b32 v5, 1, v10")
    a("v_lshl_add_u32 v6, v5, 5, v11")
    a("v_mul_u32_u24 v5, 2304, v5")
    a("v_add_u32 v9, v11, v5")
    a("s_lshl_b32 s33, s23, 5")
    a("s_lshl_b32 s36, s22, 1")
    a("s_add_u32 s33, s33, s36")
    a("s_add_u32 s33, s33, s24")
    a("s_mul_i32 s33, s33, 18432")
    if ZIMG: a("s_add_u32 s33, s33, 0x%x" % ZIMG)
    a("s_mul_i32 s36, s25, 9216")
    a("s_add_u32 s37, s33, s36")
    a("s_xor_b32 s36, s36, 9216")
    a("s_add_u32 s38, s33, s36")
    a("s_add_u32 s39, s37, 128")
    a("s_mul_i32 s36, s25, 160")
    a("s_add_u32 s37, s37, s36")
    a("s_add_u32 s38, s38, s36")
    def norm_pair(nA, ttA, nB, ttB, O):
        for q, (n, tt) in enumerate(((nA, ttA), (nB, ttB))):
            for d in range(2):
                z = Z2 + 2 * n + d; t = T + 4 * q + 2 * d
                a("v_lshlrev_b32 v%d, 16, v%d" % (t, z))
                a("v_and_b32 v%d, 0xffff0000, v%d" % (t + 1, z))
        for q, (n, tt) in enumerate(((nA, ttA), (nB, ttB))):
            for d in range(2):
                t = T + 4 * q + 2 * d
                a("v_pk_fma_f32 %s, %s, %s, %s op_sel:[0,0,1] op_sel_hi:[1,0,1]" % (vr(t, 2), vr(t, 2), vr(MR + 2 * tt, 2), vr(MR + 2 * tt, 2)))
        for q in range(2):
            for d in range(2):
                t = T + 4 * q + 2 * d
                a("v_cvt_pk_bf16_f32 v%d, v%d, v%d" % (O + 2 * q + d, t, t + 1))
        a("s_nop 1")
        a("v_permlane16_swap_b32 v%d, v%d" % (O, O + 2))
        a("v_permlane16_swap_b32 v%d, v%d" % (O + 1, O + 3))
    cnt = 0
    for pr in range(2):
        for tt in range(4):
            O = 200 + 4 * cnt; cnt += 1
            norm_pair(tidx(2 * pr, tt), tt, tidx(2 * pr + 1, tt), tt, O)
            a("s_nop 0")
            a("buffer_store_dwordx4 %s, v6, s[12:15], s%d offen offset:%d" % (vr(O), 37 if tt < 2 else 38, (tt & 1) * 2304 + 64 * pr) + " sc1")
    O = 200 + 4 * cnt
    norm_pair(16, 0, 17, 1, O)
    a("s_nop 0")
    a("buffer_store_dwordx4 %s, v9, s[12:15], s39 offen sc1" % vr(O))
    stamp(a, 6)
    a("s_setprio 3")
    srd(a, 8, 78, 2048 * 2048 * 2)
    a("v_lshrrev_b32 v3, 3, v2")
    a("s_lshl_b32 s24, s3, 5")
    a("v_add_u32 v3, s24, v3")
    a("v_and_b32 v4, 7, v2")
    a("v_lshrrev_b32 v6, 4, v2")
    a("v_xor_b32 v6, v6, v4")
    a("v_lshlrev_b32 v6, 4, v6")
    a("v_lshl_add_u32 v10, v3, 12, v6")
    a("v_xor_b32 v11, 64, v10")
    a("v_add_u32 v11, %d, v11" % (32768 - 1024))
    a("v_add_u32 v12, %d, v10" % (2 * (32768 - 1024)))
    a("v_add_u32 v13, %d, v11" % (2 * (32768 - 1024)))
    a("v_lshlrev_b32 v14, 4, v2")
    a("s_lshl_b32 s26, s22, 19")
    a("s_mul_i32 s27, s23, %d" % (32 * 18432))
    a("s_lshl_b32 s24, s3, 12")
    a("s_add_u32 s27, s27, s24")
    if ZIMG: a("s_add_u32 s27, s27, 0x%x" % ZIMG)
    a("s_lshl_b32 s25, s3, 9")
    a("s_sub_u32 s32, s25, s24")
    a("s_add_u32 s32, s32, 16384")
    a("s_add_u32 s24, s24, %d" % RB)
    a("s_waitcnt vmcnt(0) lgkmcnt(0)")
    a("v_mov_b32 v26, %d" % LC)
    a("v_mov_b32 v27, 1")
    a("s_mov_b64 exec, 1")
    a("ds_add_rtn_u32 v28, v26, v27")
    a("s_waitcnt lgkmcnt(0)")
    a("v_readfirstlane_b32 s36, v28")
    a("s_cmp_lg_u32 s36, 3")
    a("s_cbranch_scc1 %s_nozs" % name)
    a("v_mov_b32 v28, 0")
    a("buffer_store_dword v27, v28, s[12:15], s97 offen sc1")
    a.label("%s_nozs" % name)
    a("s_mov_b64 exec, -1")
    stamp(a, 7)
    srd(a, 16, 88, 576 * 2048 * 2)
    srd(a, 84, 90, 576 * 2)
    for g in range(4):
        a("s_add_u32 s35, s24, %d" % (g * SLOT))
        a("s_mov_b32 m0, s35")
        a("s_add_u32 s36, s26, %d" % (128 * g))
        for n in range(4):
            a("buffer_load_dwordx4 v%d, s[8:11], s36 offen offset:%d lds" % (10 + n, n * 1024))
    a("s_mov_b32 s34, 0")
    a("s_cmp_lg_u32 s3, 0")
    a("s_cbranch_scc1 %s_pl" % name)
    a("v_and_b32 v28, 15, v2")
    a("v_lshlrev_b32 v30, 2, v28")
    a("v_lshlrev_b32 v28, 12, v28")
    a("s_lshl_b32 s52, s23, 8")
    a("s_add_u32 s52, s52, 0x%x" % ZFLG)
    a.label("%s_pz0" % name)
    a("buffer_load_dword v31, v30, s[60:63], 0 offen sc1")
    a("s_add_u32 s34, s34, 1")
    a("s_waitcnt vmcnt(0)")
    a("v_cmp_gt_u32 vcc, 16, v31")
    a("s_cmp_gt_u32 s34, %d" % SPIN_MAX)
    a("s_cbranch_scc1 %s_pz" % name)
    a("s_cbranch_vccz %s_pz" % name)
    a("s_sleep 32")
    a("s_branch %s_pz0" % name)
    a.label("%s_pz" % name)
    a("buffer_load_dword v29, v28, s[12:15], s52 offen sc1")
    a("s_add_u32 s34, s34, 1")
    a("s_waitcnt vmcnt(0)")
    a("v_cmp_ne_u32 vcc, 1, v29")
    a("s_cmp_gt_u32 s34, %d" % SPIN_MAX)
    a("s_cbranch_scc1 %s_pzx" % name)
    a("s_cbranch_vccz %s_pzx" % name)
    a("s_sleep 8")
    a("s_branch %s_pz" % name)
    a.label("%s_pzx" % name)
    a("v_mov_b32 v27, 1")
    a("ds_write_b32 v26, v27 offset:4")
    a("s_branch %s_pgo" % name)
    a.label("%s_pl" % name)
    a("ds_read_b32 v27, v26 offset:4")
    a("s_add_u32 s34, s34, 1")
    a("s_waitcnt lgkmcnt(0)")
    a("v_readfirstlane_b32 s36, v27")
    a("s_cmp_gt_u32 s34, %d" % (SPIN_MAX * 20))
    a("s_cbranch_scc1 %s_pgo" % name)
    a("s_cmp_lg_u32 s36, 0")
    a("s_cbranch_scc1 %s_pgo" % name)
    a("s_sleep 2")
    a("s_branch %s_pl" % name)
    a.label("%s_pgo" % name)
    stamp(a, 8)
    for g in range(4):
        a("s_add_u32 s35, s24, %d" % (g * SLOT + TREG))
        a("s_mov_b32 m0, s35")
        a("s_add_u32 s36, s27, %d" % (18432 * g))
        a("s_add_u32 s37, s36, s32")
        for n in range(4):
            a("buffer_load_dwordx4 v14, s[12:15], s36 offen offset:%d sc1 lds" % (n * 1024))
        a("s_add_u32 s35, s35, s32")
        a("s_mov_b32 m0, s35")
        a("s_mov_b64 exec, 0xffffffff")
        a("buffer_load_dwordx4 v14, s[12:15], s37 offen sc1 lds")
        a("s_mov_b64 exec, -1")
    a("s_add_u32 s26, s26, 512")
    a("s_add_u32 s27, s27, %d" % (4 * 18432))
    a("s_mov_b32 s33, 0")
    a("s_lshl_b32 s43, s2, 2")
    a("s_add_u32 s43, s43, s3")
    a("s_and_b32 s53, s43, 1")
    a("s_sub_u32 s36, s43, 448")
    a("s_lshr_b32 s37, s43, 1")
    a("s_cmp_ge_u32 s43, 896")
    a("s_cselect_b32 s43, s36, s37")
    a("s_cselect_b32 s53, 2, s53")
    a("s_waitcnt vmcnt(15)")
    a("s_barrier")
    a("s_waitcnt vmcnt(10)")
    a("s_barrier")
    a("s_waitcnt vmcnt(5)")
    a("s_barrier")
    a("s_mov_b32 s34, 4")
    def issue2():
        a("s_add_u32 s35, s33, s24")
        a("s_mov_b32 m0, s35")
        a("s_add_u32 s36, s35, %d" % TREG)
        for n in range(4):
            a("buffer_load_dwordx4 v%d, s[8:11], s26 offen offset:%d lds" % (10 + n, n * 1024))
        a("s_mov_b32 m0, s36")
        a("s_add_u32 s37, s27, s32")
        for n in range(4):
            a("buffer_load_dwordx4 v14, s[12:15], s27 offen offset:%d sc1 lds" % (n * 1024))
        a("s_add_u32 s36, s36, s32")
        a("s_mov_b32 m0, s36")
        a("s_mov_b64 exec, 0xffffffff")
        a("buffer_load_dwordx4 v14, s[12:15], s37 offen sc1 lds")
        a("s_mov_b64 exec, -1")
        a("s_add_u32 s26, s26, 128")
        a("s_add_u32 s27, s27, 18432")
        a("s_add_u32 s33, s33, %d" % SLOT)
        a("s_cmp_eq_u32 s33, %d" % (R * SLOT))
        a("s_cselect_b32 s33, 0, s33")
    a.label("%s_lloop" % name)
    issue2()
    a("s_cmp_eq_u32 s34, 18")
    a("s_cbranch_scc1 %s_hk1" % name)
    a("s_cmp_eq_u32 s34, 21")
    a("s_cbranch_scc1 %s_hk2" % name)
    a("s_waitcnt vmcnt(9)")
    a.label("%s_lcont" % name)
    a("s_barrier")
    a("s_add_u32 s34, s34, 1")
    a("s_cmp_lt_u32 s34, 32")
    a("s_cbranch_scc1 %s_lloop" % name)
    a("s_branch %s_ldone" % name)
    a.label("%s_hk1" % name)
    a("v_and_b32 v28, 15, v2")
    a("v_lshlrev_b32 v28, 2, v28")
    a("buffer_load_dword v29, v28, s[60:63], 0 offen offset:128 sc1")
    a("s_waitcnt vmcnt(10)")
    a("s_branch %s_lcont" % name)
    a.label("%s_hk2" % name)
    a("s_mov_b32 s52, 0")
    a.label("%s_hk2l" % name)
    a("v_cmp_gt_u32 vcc, 16, v29")
    a("s_add_u32 s52, s52, 1")
    a("s_cmp_gt_u32 s52, %d" % SPIN_MAX)
    a("s_cbranch_scc1 %s_hk2g" % name)
    a("s_cbranch_vccz %s_hk2g" % name)
    a("s_sleep 16")
    a("buffer_load_dword v29, v28, s[60:63], 0 offen offset:128 sc1")
    a("s_waitcnt vmcnt(0)")
    a("s_branch %s_hk2l" % name)
    a.label("%s_hk2g" % name)
    nconv = emit_conv_loads(a, " sc1")
    a("s_waitcnt vmcnt(%d)" % (9 + nconv))
    a("s_branch %s_lcont" % name)
    a.label("%s_ldone" % name)
    a("s_waitcnt vmcnt(0)")
    a("s_barrier")
    a("s_mov_b32 s26, s53")
    a("s_and_b32 s27, s3, 1")
    a("s_mul_i32 s27, s27, %d" % CJ_SIZE)
    a("s_lshr_b32 s36, s3, 1")
    a("s_mul_i32 s36, s36, %d" % SLOT)
    a("s_add_u32 s27, s27, s36")
    a("s_add_u32 s27, s27, %d" % RB)
    def mid():
        a("s_barrier")
        a("s_setprio 0")
    sv = set(DBG); DBG.discard("stamp")
    lb_ = len(a.lines)
    emit_conv_job(a, name, mid)
    for n_ in range(lb_, len(a.lines)):
        if "buffer_store_dwordx2" in a.lines[n_]: a.lines[n_] += " sc1"
    DBG.update(sv)
    stamp(a, 9)
    c_common()
    cTa = [4, 4]; cTb = [6, 6]; cF_ = 8; cFh = 9
    kTa = 88; kTb = 90; kF = 92; kFh = 93
    a("v_and_b32 v3, 15, v2")
    a("v_lshrrev_b32 v10, 4, v2")
    a("s_and_b32 s26, s3, 1")
    a("s_lshl_b32 s26, s26, 2")
    a("v_add_u32 v10, s26, v10")
    a("v_lshrrev_b32 v11, 1, v3")
    a("v_xor_b32 v10, v10, v11")
    a("v_lshlrev_b32 v10, 4, v10")
    a("v_lshl_add_u32 v10, v3, 7, v10")
    a("s_lshr_b32 s26, s3, 1")
    a("s_lshl_b32 s26, s26, 13")
    a("v_add_u32 v10, s26, v10")
    a("s_lshl_b32 s26, s53, 12")
    a("v_add_u32 v%d, s26, v10" % kTa)
    a("s_xor_b32 s26, s26, 4096")
    a("v_add_u32 v%d, s26, v10" % kTb)
    a("v_lshrrev_b32 v10, 2, v2")
    a("v_mul_u32_u24 v10, %d, v10" % CFS)
    a("v_and_b32 v11, 3, v2")
    a("v_lshl_add_u32 v10, v11, 3, v10")
    a("s_mul_i32 s26, s3, %d" % (32 * CFS))
    a("s_add_u32 s26, s26, %d" % CTREG)
    a("v_add_u32 v%d, s26, v10" % kF)
    a("v_add_u32 v%d, 128, v%d" % (kFh, kF))
    a("v_mov_b32 v26, %d" % LC)
    a("v_mov_b32 v27, 1")
    a("s_waitcnt vmcnt(0)")
    a("s_mov_b64 exec, 1")
    a("ds_add_rtn_u32 v28, v26, v27 offset:20")
    a("s_waitcnt lgkmcnt(0)")
    a("v_readfirstlane_b32 s36, v28")
    a("s_cmp_lg_u32 s36, 3")
    a("s_cbranch_scc1 %s_nocs" % name)
    a("s_and_b32 s36, s2, 15")
    a("s_lshl_b32 s36, s36, 2")
    a("s_add_u32 s36, s36, 192")
    a("v_mov_b32 v28, s36")
    a("buffer_atomic_add v27, v28, s[60:63], 0 offen sc1")
    a.label("%s_nocs" % name)
    a("s_mov_b64 exec, -1")
    fin_loads()
    core3 = G.Core(a, ACC, FB[0], FB[1], CFS, CTREG, cTa, cTb, cF_, cFh)
    pairs = ((cTa[0], kTa), (cF_, kF), (cTb[0], kTb), (cFh, kFh))
    a("s_mov_b32 s27, %d" % C0)
    for d, s_ in pairs: a("v_add_u32 v%d, s27, v%d" % (d, s_))
    for r in range(ACC, ACC + 72): a("v_mov_b32 v%d, 0" % r)
    a("s_mov_b32 s33, 0")
    a("s_barrier")
    stamp(a, 10)
    core3.prime(0, core3.reads(0, 0))
    def citer(buf):
        core3.trk.drain()
        a("s_barrier")
        a("s_add_u32 s27, s27, %d" % CSL)
        a("s_cmp_eq_u32 s27, %d" % CW)
        a("s_cselect_b32 s27, %d, s27" % RB)
        pre = ["v_add_u32 v%d, s27, v%d" % (d, s_) for d, s_ in pairs]
        core3.phase(buf, core3.reads(1 - buf, 0), pre=pre)
    a.label("%s_ccloop" % name)
    citer(0); citer(1)
    a("s_add_u32 s33, s33, 1")
    a("s_cmp_lt_u32 s33, 9")
    a("s_cbranch_scc1 %s_ccloop" % name)
    core3.trk.drain()
    stamp(a, 11)
    a("s_mul_i32 s33, s3, %d" % (18 * 1024))
    a("s_add_u32 s33, s33, %d" % C0)
    a("v_lshlrev_b32 v10, 4, v2")
    a("v_add_u32 v11, s33, v10")
    a("s_nop 4")
    for n, (ft, tt) in enumerate(TILES):
        a("ds_write_b128 v11, %s offset:%d" % (vr(core3.accr(ft, tt)), 1024 * tidx(ft, tt)))
        if n in (7, 13): a("s_waitcnt lgkmcnt(4)")
    a("s_waitcnt lgkmcnt(0) vmcnt(0)")
    a.label("%s_cfin" % name)
    a("s_barrier")
    stamp(a, 12)
    a("v_lshlrev_b32 v10, 4, v2")
    a("v_lshrrev_b32 v11, 2, v2")
    a("v_lshlrev_b32 v11, 7, v11")
    a("v_and_b32 v12, 3, v2")
    a("v_lshl_add_u32 v11, v12, 3, v11")
    a("s_mov_b32 s33, 0xbfb8aa3b")
    PT = 16; YR = 64
    for s_ in range(3):
        b = 64 + 4 * s_
        if s_ == 2:
            a("s_cmp_ge_u32 s54, 2")
            a("s_cbranch_scc1 %s_rd" % name)
        a("v_add_u32 v4, s%d, v10" % (b + 2))
        a("v_add_u32 v5, s%d, v11" % (b + 1))
        for q in range(4):
            a("ds_read_b128 %s, v4 offset:%d" % (vr(PT + 16 * s_ + 4 * q), 18432 * q))
        a("ds_read_b64_tr_b16 %s, v5" % vr(YR + 2 * s_, 2))
    a.label("%s_rd" % name)
    T = 104
    for s_ in range(3):
        b = 64 + 4 * s_
        if s_ == 0: a("s_waitcnt lgkmcnt(5)")
        if s_ == 1: a("s_waitcnt lgkmcnt(0)")
        if s_ == 2:
            a("s_cmp_ge_u32 s54, 2")
            a("s_cbranch_scc1 %s_done" % name)
        o = PT + 16 * s_; X = XR + 2 * s_; Y = YR + 2 * s_; S_ = ST + 2 * s_
        for h in (0, 2):
            a("v_pk_add_f32 %s, %s, %s" % (vr(o + h, 2), vr(o + h, 2), vr(o + 4 + h, 2)))
            a("v_pk_add_f32 %s, %s, %s" % (vr(o + 8 + h, 2), vr(o + 8 + h, 2), vr(o + 12 + h, 2)))
        for h in (0, 2):
            a("v_pk_add_f32 %s, %s, %s" % (vr(o + h, 2), vr(o + h, 2), vr(o + 8 + h, 2)))
        rnd_pair(a, T + 20, o, o + 1); rnd_pair(a, T + 21, o + 2, o + 3)
        for r in range(4): a("v_mul_f32 v%d, s33, v%d" % (T + r, o + r))
        for r in range(4): a("v_exp_f32 v%d, v%d" % (T + r, T + r))
        a("v_lshlrev_b32 v%d, 16, v%d" % (T + 4, X)); a("v_and_b32 v%d, 0xffff0000, v%d" % (T + 5, X))
        a("v_lshlrev_b32 v%d, 16, v%d" % (T + 6, X + 1)); a("v_and_b32 v%d, 0xffff0000, v%d" % (T + 7, X + 1))
        for r in range(4): a("v_add_f32 v%d, 1.0, v%d" % (T + r, T + r))
        for r in range(4): a("v_rcp_f32 v%d, v%d" % (T + r, T + r))
        for r in range(4): a("v_sub_f32 v%d, v%d, v%d" % (T + 12 + r, T + 4 + r, S_))
        a("v_lshlrev_b32 v%d, 16, v%d" % (T + 8, Y)); a("v_and_b32 v%d, 0xffff0000, v%d" % (T + 9, Y))
        a("v_lshlrev_b32 v%d, 16, v%d" % (T + 10, Y + 1)); a("v_and_b32 v%d, 0xffff0000, v%d" % (T + 11, Y + 1))
        for r in range(4): a("v_mul_f32 v%d, v%d, v%d" % (o + r, o + r, T + r))
        rnd_pair(a, T + 20, T + 12, T + 13); rnd_pair(a, T + 21, T + 14, T + 15)
        rnd_pair(a, T + 22, o, o + 1); rnd_pair(a, T + 23, o + 2, o + 3)
        for r in range(4): a("v_mul_f32 v%d, v%d, v%d" % (T + 12 + r, T + 12 + r, S_ + 1))
        rnd_pair(a, T + 20, T + 12, T + 13); rnd_pair(a, T + 21, T + 14, T + 15)
        for r in range(4): a("v_mul_f32 v%d, v%d, v%d" % (T + 12 + r, T + 12 + r, T + 8 + r))
        rnd_pair(a, T + 20, T + 12, T + 13); rnd_pair(a, T + 21, T + 14, T + 15)
        for r in range(4): a("v_mul_f32 v%d, v%d, v%d" % (T + 12 + r, T + 12 + r, o + r))
        rnd_pair(a, T + 20, T + 12, T + 13); rnd_pair(a, T + 21, T + 14, T + 15)
        for r in range(4): a("v_add_f32 v%d, v%d, v%d" % (T + 12 + r, T + 12 + r, T + 4 + r))
        a("v_cvt_pk_bf16_f32 v%d, v%d, v%d" % (X, T + 12, T + 13))
        a("v_cvt_pk_bf16_f32 v%d, v%d, v%d" % (X + 1, T + 14, T + 15))
        a("buffer_store_dwordx2 %s, v13, s[28:31], s%d offen" % (vr(X, 2), b))
    a.label("%s_done" % name)
    stamp(a, 13)
    G.stamp_rt(a, 1)
    a.label("%s_end" % name)
    a("s_endpgm")
    return a.text(), kernel_desc(name, 256, 256), (name, 256, 512, YOFF + 10240)

def gen_kf8(name="k1_kernel", R=4):
    a = Asm()
    RB = 4096; SLOT = 34816; TREG = 16384; FS = 288; RST = 0
    LDSB = RB + R * SLOT
    LC = 2048
    ZFLG = 0x2D00000; PFL = 128
    C0 = 77824; CW = 151552; CSL = 36864; YOFF = 151552; CTREG = 16384; CFS = 160
    from gen3 import emit_conv_loads, emit_conv_job, CJ_SIZE
    def capture(f, *args):
        lb = len(a.lines); f(*args); out = a.lines[lb:]; del a.lines[lb:]; return out

    def c_common():
        a("s_load_dwordx2 s[4:5], s[0:1], 0")
        a("s_load_dwordx2 s[16:17], s[0:1], 88")
        a("s_and_b32 s20, s2, 7")
        a("s_lshr_b32 s21, s2, 3")
        a("s_and_b32 s22, s20, 3")
        a("s_lshl_b32 s22, s22, 3")
        a("s_and_b32 s23, s21, 7")
        a("s_add_u32 s22, s22, s23")
        a("s_lshr_b32 s23, s20, 2")
        a("s_lshl_b32 s23, s23, 2")
        a("s_lshr_b32 s24, s21, 3")
        a("s_add_u32 s23, s23, s24")
        a("s_lshr_b32 s52, s23, 1")
        a("s_and_b32 s53, s23, 1")
        a("s_lshl_b32 s54, s98, 2")
        a("s_add_u32 s54, s54, s3")
        a("s_waitcnt lgkmcnt(0)")
        srd(a, 8, 4, 2048 * 576 * 2)
        srd(a, 28, 16, 2048 * 576 * 2)
    XR = 200; ST = 208
    def fin_loads():
        a("v_and_b32 v3, 15, v2")
        a("v_lshrrev_b32 v10, 4, v2")
        a("v_mul_u32_u24 v13, 1152, v3")
        a("v_lshl_add_u32 v13, v10, 3, v13")
        a("v_lshlrev_b32 v12, 3, v3")
        for s_ in range(3):
            if s_ == 2:
                a("s_cmp_ge_u32 s54, 2")
                a("s_cbranch_scc1 %s_fl%d" % (name, fin_loads.cnt))
            b = 64 + 4 * s_
            if s_ < 2:
                a("s_add_u32 s36, s54, %d" % (8 * s_))
                a("s_lshr_b32 s37, s36, 2")
                a("s_and_b32 s38, s36, 3")
                a("s_mul_i32 s39, s53, 160")
                a("s_lshl_b32 s40, s37, 5")
                a("s_add_u32 s39, s39, s40")
            else:
                a("s_add_u32 s36, s54, 16")
                a("s_mov_b32 s37, 4")
                a("s_mov_b32 s38, s54")
                a("s_mov_b32 s39, 128")
            a("s_lshl_b32 s40, s53, 1")
            a("s_add_u32 s38, s38, s40")
            a("s_and_b32 s38, s38, 3")
            a("s_lshl_b32 s40, s22, 2")
            a("s_add_u32 s40, s40, s38")
            a("s_lshl_b32 s40, s40, 4")
            a("s_mul_i32 s%d, s40, 1152" % b)
            a("s_add_u32 s%d, s%d, s39" % (b, b))
            a("s_mul_i32 s39, s52, 288")
            a("s_add_u32 s%d, s%d, s39" % (b, b))
            a("s_lshl_b32 s%d, s37, 11" % (b + 1))
            a("s_lshl_b32 s39, s38, 5")
            a("s_add_u32 s%d, s%d, s39" % (b + 1, b + 1))
            a("s_add_u32 s%d, s%d, %d" % (b + 1, b + 1, YOFF))
            a("s_lshl_b32 s%d, s36, 10" % (b + 2))
            a("s_add_u32 s%d, s%d, %d" % (b + 2, b + 2, C0))
            a("s_lshl_b32 s40, s40, 3")
            a("s_add_u32 s40, s40, 0x%x" % STATS1)
            a("buffer_load_dwordx2 %s, v13, s[8:11], s%d offen" % (vr(XR + 2 * s_, 2), b))
            a("buffer_load_dwordx2 %s, v12, s[12:15], s40 offen sc1" % vr(ST + 2 * s_, 2))
        a.label("%s_fl%d" % (name, fin_loads.cnt))
        fin_loads.cnt += 1
    fin_loads.cnt = 0
    kernel_begin(a, name)
    a("s_load_dwordx2 s[80:81], s[0:1], 0")
    a("s_load_dwordx2 s[4:5], s[0:1], 56")
    a("s_load_dwordx2 s[6:7], s[0:1], 104")
    a("s_load_dwordx2 s[18:19], s[0:1], 96")
    a("s_cmp_ge_u32 s2, 256")
    a("s_cbranch_scc1 %s_end" % name)
    a("v_lshrrev_b32 v1, 6, v0")
    a("v_and_b32 v2, 63, v0")
    a("v_readfirstlane_b32 s3, v1")
    G2.tile_ij(a)
    a("s_lshr_b32 s98, s3, 2")
    a("s_mov_b32 s54x, 0".replace("s54x", "s99"))
    a("s_and_b32 s3, s3, 3")
    a("s_lshr_b32 s24, s3, 1")
    a("s_and_b32 s25, s3, 1")
    a("v_and_b32 v3, 15, v2")
    VT = 204; VF = 208
    def loader_setup():
        a("v_lshrrev_b32 v5, 3, v2")
        a("v_and_b32 v4, 7, v2")
        a("s_lshl_b32 s36, s3, 5")
        a("v_add_u32 v5, s36, v5")
        a("v_lshrrev_b32 v7, 4, v2")
        a("v_xor_b32 v7, v7, v4")
        a("v_mul_u32_u24 v6, 1152, v5")
        a("v_lshl_add_u32 v%d, v7, 4, v6" % VT)
        a("v_xor_b32 v%d, 64, v%d" % (VT + 1, VT))
        a("v_add_u32 v%d, %d, v%d" % (VT + 1, 9216 - 1024, VT + 1))
        a("v_add_u32 v%d, %d, v%d" % (VT + 2, 2 * (9216 - 1024), VT))
        a("v_add_u32 v%d, %d, v%d" % (VT + 3, 2 * (9216 - 1024), VT + 1))
        a("s_lshl_b32 s84, s3, 12")
        a("s_add_u32 s84, s84, %d" % RB)
        a("s_lshl_b32 s85, s3, 9")
        a("s_add_u32 s85, s85, %d" % (RB + TREG + 16384))
    def loader_setup2():
        for n in range(5):
            if n < 4:
                a("s_lshl_b32 s36, s3, 8")
                a("s_add_u32 s36, s36, %d" % (64 * n))
            else:
                a("s_lshl_b32 s36, s3, 5")
                a("s_add_u32 s36, s36, 1024")
            a("v_add_u32 v6, s36, v2")
            a("v_mul_u32_u24 v7, 3641, v6")
            a("v_lshrrev_b32 v7, 16, v7")
            a("v_mul_u32_u24 v8, 18, v7")
            a("v_sub_u32 v8, v6, v8")
            a("v_and_b32 v9, 35, v7")
            a("v_bfe_u32 v6, v7, 2, 2")
            a("v_lshl_add_u32 v9, v6, 3, v9")
            a("v_bfe_u32 v6, v7, 4, 1")
            a("v_lshl_add_u32 v9, v6, 2, v9")
            a("v_mul_u32_u24 v9, 9216, v9")
            a("v_lshl_add_u32 v%d, v8, 4, v9" % (VF + n))
            if 0 < n < 4: a("v_subrev_u32 v%d, %d, v%d" % (VF + n, 1024 * n, VF + n))
    def issueT(g):
        st = g % 9
        a("s_add_u32 s86, s84, %d" % ((g % R) * SLOT))
        a("s_mov_b32 m0, s86")
        a("s_add_u32 s87, s82, %d" % (128 * st))
        for n in range(4):
            a("buffer_load_dwordx4 v%d, s[28:31], s87 offen offset:%d lds" % (VT + n, 1024 * n))
    def issueF(g):
        st = g % 9
        a("s_add_u32 s86, s84, %d" % ((g % R) * SLOT + TREG))
        a("s_mov_b32 m0, s86")
        a("s_add_u32 s87, s83, %d" % (64 * 9216 * st + (4608 if g < 9 else 0)))
        for n in range(4):
            a("buffer_load_dwordx4 v%d, s[8:11], s87 offen offset:%d lds" % (VF + n, 1024 * n))
        a("s_add_u32 s86, s85, %d" % ((g % R) * SLOT))
        a("s_mov_b32 m0, s86")
        a("s_mov_b64 exec, 0xffffffff")
        a("buffer_load_dwordx4 v%d, s[8:11], s87 offen lds" % (VF + 4))
        a("s_mov_b64 exec, -1")
    def srds_main():
        srd(a, 28, 80, 2048 * 576 * 2)
        srd(a, 8, 4, 576 * 4608 * 2)
        srd(a, 12, 6, WS_BYTES)
        srd(a, 60, 18, 256)
        a("s_mul_i32 s82, s22, %d" % (128 * 1152))
        a("s_mul_i32 s83, s23, 288")
    ACC = 128; FB = [16, 52]; CS = 216; ONE = 236
    vTa = [4, 5]; vTb = [6, 7]; vF = 8; vFh = 9
    bTa = [88, 89]; bTb = [90, 91]; bF = 92; bFh = 93
    def mma_setup():
        a("v_lshrrev_b32 v10, 4, v2")
        a("v_lshrrev_b32 v11, 1, v3")
        a("v_xor_b32 v10, v10, v11")
        a("v_lshlrev_b32 v10, 4, v10")
        a("v_lshl_add_u32 v10, v3, 7, v10")
        a("s_lshl_b32 s26, s24, 13")
        a("s_add_u32 s26, s26, %d" % RB)
        a("v_add_u32 v10, s26, v10")
        a("s_lshl_b32 s26, s25, 12")
        a("v_add_u32 v%d, s26, v10" % bTa[0])
        a("s_xor_b32 s26, s26, 4096")
        a("v_add_u32 v%d, s26, v10" % bTb[0])
        a("v_xor_b32 v%d, 64, v%d" % (bTa[1], bTa[0]))
        a("v_xor_b32 v%d, 64, v%d" % (bTb[1], bTb[0]))
        a("v_lshrrev_b32 v10, 2, v2")
        a("v_mul_u32_u24 v10, %d, v10" % FS)
        a("v_and_b32 v11, 3, v2")
        a("v_lshl_add_u32 v10, v11, 3, v10")
        a("v_add_u32 v10, %d, v10" % (RB + TREG))
        a("s_mul_i32 s26, s25, 160")
        a("v_add_u32 v%d, s26, v10" % bF)
        a("v_add_u32 v%d, 128, v10" % bFh)
        for r in range(ACC, ACC + 72): a("v_mov_b32 v%d, 0" % r)
        for r in range(CS, CS + 20): a("v_mov_b32 v%d, 0" % r)
        for r in range(ONE, ONE + 4): a("v_mov_b32 v%d, 0x3f803f80" % r)
    def mma_addr(slot):
        a("s_mov_b32 s27, %d" % (slot * SLOT))
        for d, s_ in ((vTa[0], bTa[0]), (vTb[0], bTb[0]), (vTa[1], bTa[1]), (vTb[1], bTb[1]), (vF, bF), (vFh, bFh)):
            a("v_add_u32 v%d, s27, v%d" % (d, s_))
    core = G.Core(a, ACC, FB[0], FB[1], FS, TREG, vTa, vTb, vF, vFh)
    trk = core.trk
    a("s_cmp_eq_u32 s98, 0")
    a("s_cbranch_scc1 %s_A0" % name)
    a("s_setprio 3")
    loader_setup()
    a("s_waitcnt lgkmcnt(0)")
    srds_main()
    vm = VmTracker(a)
    def issue(g, vmx):
        issueT(g); issueF(g); vmx.issue("S%d" % g, 9)
    issueT(0)
    loader_setup2()
    issueF(0); vm.issue("S0", 9)
    issue(1, vm); issue(2, vm); issue(3, vm)
    a("s_add_u32 s3, s3, 4"); stamp_setup(a, 1); stamp(a, 0); a("s_sub_u32 s3, s3, 4")
    mma_setup()
    RA = 96; XB = 112
    for r in range(RA, RA + 16): a("v_mov_b32 v%d, 0" % r)
    a("v_lshrrev_b32 v10, 4, v2")
    a("v_lshrrev_b32 v11, 1, v3")
    a("v_xor_b32 v10, v10, v11")
    a("v_lshlrev_b32 v10, 4, v10")
    a("v_lshl_add_u32 v10, v3, 7, v10")
    a("v_add_u32 v12, s84, v10")
    a("v_xor_b32 v13, 64, v12")
    def rs_rd(g):
        a("v_add_u32 v10, %d, v12" % ((g % R) * SLOT))
        a("v_add_u32 v11, %d, v13" % ((g % R) * SLOT))
        for h in range(2):
            for n in range(2):
                a("ds_read_b128 %s, v%d offset:%d" % (vr(XB + 8 * h + 4 * n), 10 + h, 2048 * n))
    def rs_do():
        for h in range(2):
            for n in range(2):
                x = XB + 8 * h + 4 * n
                a("v_mfma_f32_16x16x32_bf16 %s, %s, %s, %s" % (vr(RA + 4 * n), vr(ONE), vr(x), vr(RA + 4 * n)))
                a("v_mfma_f32_16x16x32_bf16 %s, %s, %s, %s" % (vr(RA + 8 + 4 * n), vr(x), vr(x), vr(RA + 8 + 4 * n)))
    def interleave(dma, comp, vmx=None):
        groups = []; cur = []
        for l in dma:
            cur.append(l)
            if "buffer_load" in l and not any("exec, 0xffffffff" in x for x in cur[-2:]):
                groups.append(cur); cur = []
            elif "exec, -1" in l:
                groups.append(cur); cur = []
        if cur: groups.append(cur)
        ns = max(1, len(groups))
        per = (len(comp) + ns - 1) // ns
        for g in groups:
            a.lines.extend(g)
            a.lines.extend(comp[:per]); comp = comp[per:]
        a.lines.extend(comp)
    vm.wait(["S0"])
    a("s_barrier")
    stamp(a, 1)
    rs_rd(0)
    vm.wait(["S1"])
    a("s_barrier")
    for k in range(9):
        a("s_waitcnt lgkmcnt(0)")
        dma = capture(lambda: (issueT(k + 3), issueF(k + 3))) if k >= 1 else []
        interleave(dma, capture(rs_do))
        if k >= 1: vm.issue("S%d" % (k + 3), 9)
        if k < 8:
            rs_rd(k + 1)
        else:
            a("s_nop 7")
            a("v_lshrrev_b32 v10, 4, v2")
            a("v_lshrrev_b32 v11, 2, v3")
            a("v_and_b32 v12, 3, v3")
            for n in range(2):
                G_ = RA + 8 + 4 * n
                for r in range(1, 4):
                    a("v_cmp_eq_u32 vcc, %d, v12" % r)
                    a("s_nop 1")
                    a("v_cndmask_b32 v%d, v%d, v%d, vcc" % (G_, G_, G_ + r))
            ML = 112
            for n in range(2):
                emit_ln_finish(a, RA + 4 * n, RA + 8 + 4 * n, 576, ML + 2 * n, ML + 2 * n + 1, 120)
                a("v_mov_b32 v%d, v%d" % (117 + 2 * n, ML + 2 * n + 1))
                a("v_sub_f32 v%d, 0, v%d" % (116 + 2 * n, ML + 2 * n))
            a("s_lshl_b32 s35, s3, 8")
            a("v_lshlrev_b32 v13, 3, v3")
            a("v_add_u32 v12, s35, v13")
            a("v_cmp_eq_u32 vcc, v10, v11")
            a("s_and_saveexec_b64 s[36:37], vcc")
            for n in range(2):
                a("ds_write_b64 v12, %s offset:%d" % (vr(116 + 2 * n, 2), RST + 128 * n))
            a("s_mov_b64 exec, s[36:37]")
            a("s_cmp_lg_u32 s23, 0")
            a("s_cbranch_scc1 %s_nost1" % name)
            a("s_lshl_b32 s35, s22, 7")
            a("s_lshl_b32 s36, s3, 5")
            a("s_add_u32 s35, s35, s36")
            a("s_lshl_b32 s35, s35, 3")
            a("s_add_u32 s35, s35, 0x%x" % STATS1)
            a("v_mov_b32 v11, 0x7ffffff0")
            a("v_cndmask_b32 v13, v11, v13, vcc")
            for n in range(2):
                a("buffer_store_dwordx2 %s, v13, s[12:15], s35 offen offset:%d sc1" % (vr(ML + 2 * n, 2), 128 * n))
            a.label("%s_nost1" % name)
            mma_addr(9 % R)
            a("s_mov_b32 s33, 0")
            a("s_setprio 0")
        vm.wait(["S%d" % (k + 2)], "lgkmcnt(0)" if k == 8 else "")
        if k < 8: a("s_barrier")
    a("s_branch %s_mma" % name)
    a.label("%s_A0" % name)
    emit_code_prefetch(a, name)
    a("s_load_dwordx4 s[64:67], s[0:1], 8")
    a("s_load_dwordx2 s[76:77], s[0:1], 24")
    a("s_load_dwordx2 s[78:79], s[0:1], 64")
    mma_setup()
    loader_setup(); loader_setup2()
    a("s_waitcnt lgkmcnt(0)")
    srds_main()
    srd(a, 68, 66, 2048 * 576 * 2)
    a("s_mov_b32 s88, s64"); a("s_mov_b32 s89, s65")
    srd(a, 64, 88, 2048 * 576 * 2)
    srd(a, 72, 76, 576 * 8)
    stamp_setup(a, 1); stamp(a, 0)
    def gran_addr():
        a("v_lshrrev_b32 v10, 4, v2")
        a("s_lshl_b32 s36, s25, 1")
        a("v_add_u32 v11, s36, v10")
        a("v_and_b32 v11, 3, v11")
        a("v_lshl_add_u32 v11, v11, 4, v3")
        a("v_lshlrev_b32 v94, 8, v11")
        a("s_lshl_b32 s59, s22, 7")
        a("s_lshl_b32 s36, s24, 6")
        a("s_add_u32 s59, s59, s36")
        a("s_lshl_b32 s59, s59, 8")
        a("s_add_u32 s59, s59, 0x%x" % STATS2)
        a("s_lshl_b32 s36, s23, 1")
        a("s_add_u32 s36, s36, s25")
        a("s_lshl_b32 s36, s36, 3")
        a("s_add_u32 s58, s36, s59")
    gran_addr()
    a("v_mov_b32 v12, 0"); a("v_mov_b32 v13, 0x80000000")
    a("buffer_store_dwordx2 v[12:13], v94, s[12:15], s58 offen sc1")
    a("s_lshl_b32 s36, s22, 4")
    a("s_add_u32 s36, s36, s23")
    a("s_lshl_b32 s36, s36, 8")
    a("s_add_u32 s97, s36, 0x%x" % ZFLG)
    a("v_mov_b32 v10, %d" % LC)
    a("v_mov_b32 v12, 0"); a("v_mov_b32 v13, 0")
    a("s_mov_b64 exec, 1")
    a("buffer_store_dword v12, v12, s[12:15], s97 offen sc1")
    a("buffer_store_dword v12, v12, s[12:15], s97 offen offset:%d sc1" % PFL)
    a("s_mov_b64 exec, -1")
    a("ds_write_b64 v10, v[12:13]")
    a("ds_write_b64 v10, v[12:13] offset:8")
    a("ds_write_b64 v10, v[12:13] offset:16")
    a("ds_write_b64 v10, v[12:13] offset:24")
    mma_addr(0)
    a("s_mov_b32 s33, 0")
    a("s_waitcnt lgkmcnt(0)")
    a("s_barrier")
    stamp(a, 1)
    a.label("%s_mma" % name)
    core.prime(0, core.reads(0, 0))
    trk.drain()
    nocs = [False]
    def mfmas(buf):
        L = []
        for ft in range(5):
            A = core.F(buf, ft)
            for tt in range(4 if ft < 4 else 2):
                c = core.accr(ft, tt); B = core.T(buf, tt)
                L.append(("v_mfma_f32_16x16x32_bf16 %s, %s, %s, %s" % (vr(c), vr(A), vr(B), vr(c)), list(range(A, A + 4)) + list(range(B, B + 4))))
            if not nocs[0]: L.append(("v_mfma_f32_16x16x32_bf16 %s, %s, %s, %s" % (vr(CS + 4 * ft), vr(A), vr(ONE), vr(CS + 4 * ft)), list(range(A, A + 4))))
        return L
    def phase(buf, pend):
        for (m, regs) in mfmas(buf):
            trk.need(regs)
            a(m)
            while pend:
                k, t = pend.pop(0)
                if k == "x":
                    a(t)
                    if t.startswith("s_"): continue
                else:
                    a(t[0]); trk.issue(t[1])
                break
        for k, t in pend:
            if k == "x": a(t)
            else: a(t[0]); trk.issue(t[1])
    def iteration(vw=True):
        if vw: a("s_waitcnt vmcnt(0)")
        a("s_barrier")
        rd = [("r", t) for t in core.reads(1, 1)]
        upd = ["s_add_u32 s27, s27, %d" % SLOT, "s_cmp_eq_u32 s27, %d" % (R * SLOT), "s_cselect_b32 s27, 0, s27"]
        tail = ["v_add_u32 v%d, s27, v%d" % (d, s_) for d, s_ in ((vTa[0], bTa[0]), (vF, bF), (vTb[0], bTb[0]), (vFh, bFh))]
        phase(0, rd[:1] + [("x", u) for u in upd] + rd[1:] + [("x", u) for u in tail])
        rd = [("r", t) for t in core.reads(0, 0)]
        tail = ["v_add_u32 v%d, s27, v%d" % (d, s_) for d, s_ in ((vTa[1], bTa[1]), (vTb[1], bTb[1]))] + ["s_add_u32 s33, s33, 1"]
        phase(1, rd + [("x", u) for u in tail])
    a.label("%s_cloop" % name)
    lb = len(a.lines); iteration(); st = copy.deepcopy(trk.out); del a.lines[lb:]; trk.out = copy.deepcopy(st)
    iteration()
    assert [sorted(x) for x in trk.out] == [sorted(x) for x in st]
    a("s_cmp_lt_u32 s33, 9")
    a("s_cbranch_scc1 %s_cloop" % name)
    trk.drain()
    stamp(a, 2)
    MR = 100; T = 72; ZP = 16
    def epi_in():
        gelu_consts(a)
        a("s_lshl_b32 s36, s24, 9")
        a("s_lshl_b32 s37, s25, 8")
        a("s_add_u32 s38, s36, s37")
        a("s_xor_b32 s37, s37, 256")
        a("s_add_u32 s39, s36, s37")
        a("v_lshlrev_b32 v10, 3, v3")
        a("v_add_u32 v11, s38, v10")
        a("ds_read_b64 %s, v11 offset:%d" % (vr(MR, 2), RST))
        a("ds_read_b64 %s, v11 offset:%d" % (vr(MR + 2, 2), RST + 128))
        a("v_add_u32 v11, s39, v10")
        a("ds_read_b64 %s, v11 offset:%d" % (vr(MR + 4, 2), RST))
        a("ds_read_b64 %s, v11 offset:%d" % (vr(MR + 6, 2), RST + 128))
        a("s_waitcnt lgkmcnt(0)")
    S = [108, 110, 52, 54]; Q = [109, 111, 53, 55]
    def gelu_ft(ft, stats):
        tts = range(4 if ft < 4 else 2)
        emit_fold_gelu(a, [(core.accr(ft, tt), CS + 4 * ft, MR + 2 * tt, ZP + 2 * tidx(ft, tt)) for tt in tts], T)
        if stats:
            for d in range(2):
                for tt in tts:
                    p = ZP + 2 * tidx(ft, tt) + d
                    a("v_dot2_f32_bf16 v%d, v%d, v%d, v%d" % (S[tt], p, ONE, S[tt]))
                    a("v_dot2_f32_bf16 v%d, v%d, v%d, v%d" % (Q[tt], p, p, Q[tt]))
    a("s_cmp_eq_u32 s98, 0")
    a("s_cbranch_scc1 %s_A1" % name)
    a("s_barrier")
    a("s_load_dwordx4 s[64:67], s[0:1], 8")
    a("s_load_dwordx2 s[76:77], s[0:1], 24")
    a("s_load_dwordx2 s[94:95], s[0:1], 80")
    a("s_load_dwordx2 s[92:93], s[0:1], 72")
    epi_in()
    srd(a, 68, 66, 2048 * 576 * 2)
    a("s_mov_b32 s88, s64"); a("s_mov_b32 s89, s65")
    srd(a, 64, 88, 2048 * 576 * 2)
    srd(a, 72, 76, 576 * 8)
    srd(a, 76, 94, 2304 * 576 * 2)
    srd(a, 28, 92, 2048 * 2)
    a("v_and_b32 v0, 255, v0")
    a("s_mov_b32 s41, s2")
    KDB = 240
    emit_kv_loads(a, 112, 240, 248, 252, 253)
    for ft in range(5): gelu_ft(ft, False)
    Z1R = 200; BI = 236
    for r_ in range(36): a("v_mov_b32 v%d, v%d" % (Z1R + r_, ZP + r_))
    stamp(a, 3)
    a("s_waitcnt vmcnt(0)")
    for n in range(11): a("v_mov_b32 v%d, v%d" % (16 + n, 112 + n))
    for n in range(8): a("v_mov_b32 v%d, v%d" % (32 + n, 240 + n))
    for n in range(4): a("v_mov_b32 v%d, v%d" % (44 + n, 248 + n))
    a("v_mov_b32 v56, v252"); a("v_mov_b32 v57, v253")
    for r_ in range(6): a("v_mov_b32 v%d, v%d" % (240 + r_, 88 + r_))
    a.label("%s_kvb" % name)
    emit_kv_compute(a, wait=False, store=False)
    a("s_mov_b32 s39, 0x%x" % KVT)
    a("buffer_store_dwordx4 v[120:123], v12, s[12:15], s39 offen sc1")
    a("buffer_store_dwordx4 v[124:127], v13, s[12:15], s39 offen sc1")
    a("s_add_u32 s41, s41, 256")
    a("s_cmp_ge_u32 s41, 288")
    a("s_cbranch_scc1 %s_kvbd" % name)
    emit_kv_loads(a)
    a("s_waitcnt vmcnt(0)")
    a("s_branch %s_kvb" % name)
    a.label("%s_kvbd" % name)
    for r_ in range(6): a("v_mov_b32 v%d, v%d" % (88 + r_, 240 + r_))
    a("s_mov_b32 s42, s2")
    emit_wot_loads(a, 100, 112, 720, 3)
    a("s_lshl_b32 s36, s22, 7")
    a("s_lshl_b32 s37, s24, 6")
    a("s_add_u32 s36, s36, s37")
    a("v_lshlrev_b32 v11, 1, v3")
    a("s_lshl_b32 s37, s25, 6")
    a("s_lshl_b32 s38, s36, 1")
    a("s_add_u32 s39, s38, s37")
    a("s_xor_b32 s37, s37, 64")
    a("s_add_u32 s36, s38, s37")
    a("buffer_load_ushort v96, v11, s[28:31], s39 offen")
    a("buffer_load_ushort v97, v11, s[28:31], s39 offen offset:32")
    a("buffer_load_ushort v98, v11, s[28:31], s36 offen")
    a("buffer_load_ushort v99, v11, s[28:31], s36 offen offset:32")
    for r in range(ACC, ACC + 72): a("v_mov_b32 v%d, 0" % r)
    a("v_lshrrev_b32 v10, 2, v2")
    a("v_lshlrev_b32 v10, 5, v10")
    a("v_and_b32 v11, 3, v2")
    a("v_lshl_add_u32 v10, v11, 3, v10")
    a("v_add_u32 v10, %d, v10" % (RB + TREG))
    a("s_mul_i32 s26, s25, 10240")
    a("v_add_u32 v%d, s26, v10" % bF)
    a("v_add_u32 v%d, 8192, v10" % bFh)
    core.FS = 32; core.FT = 2048
    mma_addr(0)
    a("s_mov_b32 s33, 0")
    stamp(a, 4)
    a("s_barrier")
    stamp(a, 5)
    core.prime(0, core.reads(0, 0))
    trk.drain()
    nocs[0] = True
    a.label("%s_gloop" % name)
    lb = len(a.lines); iteration(False); st = copy.deepcopy(trk.out); del a.lines[lb:]; trk.out = copy.deepcopy(st)
    iteration(False)
    assert [sorted(x) for x in trk.out] == [sorted(x) for x in st]
    a("s_cmp_lg_u32 s33, 3")
    a("s_cbranch_scc1 %s_ghk0" % name)
    a("s_waitcnt vmcnt(0)")
    for n in range(3):
        a("buffer_store_dwordx4 %s, v%d, s[12:15], s40 offen sc1" % (vr(100 + 4 * n), 112 + n))
    for tt in range(4): a("v_lshlrev_b32 v%d, 16, v%d" % (BI + 2 * tt, 96 + tt))
    a.label("%s_ghk0" % name)
    a("s_cmp_lg_u32 s33, 6")
    a("s_cbranch_scc1 %s_ghk" % name)
    a("s_waitcnt vmcnt(0)")
    a("v_mov_b32 v10, %d" % (LC + 8))
    a("v_mov_b32 v11, 1")
    a("s_mov_b64 exec, 1")
    a("ds_add_rtn_u32 v12, v10, v11")
    a("s_waitcnt lgkmcnt(0)")
    a("v_readfirstlane_b32 s36, v12")
    a("s_cmp_lg_u32 s36, 3")
    a("s_cbranch_scc1 %s_nokvs" % name)
    a("s_and_b32 s36, s2, 15")
    a("s_lshl_b32 s36, s36, 2")
    a("s_add_u32 s36, s36, 128")
    a("v_mov_b32 v10, s36")
    a("buffer_atomic_add v11, v10, s[60:63], 0 offen sc1")
    a.label("%s_nokvs" % name)
    a("s_mov_b64 exec, -1")
    a.label("%s_ghk" % name)
    a("s_cmp_lg_u32 s33, 24")
    a("s_cbranch_scc1 %s_ghk2" % name)
    a("v_lshlrev_b32 v10, 2, v3")
    a("buffer_load_dword v254, v10, s[60:63], 0 offen offset:128 sc1")
    a.label("%s_ghk2" % name)
    a("s_cmp_lt_u32 s33, 32")
    a("s_cbranch_scc1 %s_gloop" % name)
    trk.drain()
    stamp(a, 6)
    G3.emit_k2_epilogue2(a, core, Z1R, BI, " sc1")
    stamp(a, 7)
    a("s_setprio 3")
    a("s_lshl_b32 s36, s22, 4")
    a("s_add_u32 s36, s36, s23")
    a("s_lshl_b32 s36, s36, 8")
    a("s_add_u32 s97, s36, 0x%x" % (ZFLG + PFL))
    c_common()
    a("v_lshlrev_b32 v14, 4, v2")
    a("s_mul_i32 s26, s22, %d" % (36 * 8192))
    a("s_lshl_b32 s24, s3, 12")
    a("s_add_u32 s26, s26, s24")
    a("s_add_u32 s26, s26, 0x%x" % PIMG)
    a("s_mul_i32 s27, s23, %d" % (18 * 20480))
    a("s_mul_i32 s25, s3, 5120")
    a("s_add_u32 s27, s27, s25")
    a("s_add_u32 s27, s27, 0x%x" % WOT)
    a("s_add_u32 s25, s25, %d" % CTREG)
    a("v_and_b32 v28, 15, v2")
    a("v_lshlrev_b32 v30, 2, v28")
    a("v_mov_b32 v26, %d" % LC)
    a("v_mov_b32 v27, 1")
    a("s_waitcnt vmcnt(0)")
    a("v_mov_b32 v31, v254")
    a("s_mov_b64 exec, 1")
    a("ds_add_rtn_u32 v29, v26, v27 offset:16")
    a("s_waitcnt lgkmcnt(0)")
    a("v_readfirstlane_b32 s36, v29")
    a("s_cmp_lg_u32 s36, 3")
    a("s_cbranch_scc1 %s_nops" % name)
    a("v_mov_b32 v29, 0")
    a("buffer_store_dword v27, v29, s[12:15], s97 offen sc1")
    a.label("%s_nops" % name)
    a("s_mov_b64 exec, -1")
    a("s_mov_b32 s34, 0")
    a.label("%s_cw" % name)
    a("ds_read_b32 v29, v26 offset:16")
    a("s_add_u32 s34, s34, 1")
    a("s_waitcnt lgkmcnt(0)")
    a("v_readfirstlane_b32 s36, v29")
    a("s_cmp_gt_u32 s34, %d" % (SPIN_MAX * 20))
    a("s_cbranch_scc1 %s_cwx" % name)
    a("s_cmp_ge_u32 s36, 4")
    a("s_cbranch_scc1 %s_cwx" % name)
    a("s_sleep 1")
    a("s_branch %s_cw" % name)
    a.label("%s_cwx" % name)
    a("s_mov_b32 s34, 0")
    a.label("%s_cp" % name)
    a("v_cmp_gt_u32 vcc, 16, v31")
    a("s_add_u32 s34, s34, 1")
    a("s_cmp_gt_u32 s34, %d" % SPIN_MAX)
    a("s_cbranch_scc1 %s_cpx" % name)
    a("s_cbranch_vccz %s_cpx" % name)
    a("s_sleep 32")
    a("buffer_load_dword v31, v30, s[60:63], 0 offen offset:128 sc1")
    a("s_waitcnt vmcnt(0)")
    a("s_branch %s_cp" % name)
    a.label("%s_cpx" % name)
    def cF(off, soff):
        a("s_add_u32 s36, s25, %s" % off)
        a("s_mov_b32 m0, s36")
        a("s_add_u32 s37, %s, 4096" % soff)
        for n in range(4):
            a("buffer_load_dwordx4 v14, s[12:15], %s offen offset:%d sc1 lds" % (soff, n * 1024))
        a("s_add_u32 s36, s36, 4096")
        a("s_mov_b32 m0, s36")
        a("s_nop 0")
        a("buffer_load_dwordx4 v14, s[12:15], s37 offen sc1 lds")
    def cT(off, soff):
        a("s_add_u32 s35, s24, %s" % off)
        a("s_mov_b32 m0, s35")
        a("s_nop 0")
        for n in range(4):
            a("buffer_load_dwordx4 v14, s[12:15], %s offen offset:%d sc1 lds" % (soff, n * 1024))
    a("s_add_u32 s38, s27, 20480")
    cF(str(C0), "s27"); cF(str(C0 + CSL), "s38")
    a("s_mov_b32 s34, 0")
    a("s_cmp_lg_u32 s3, 0")
    a("s_cbranch_scc1 %s_cpl" % name)
    a("v_lshlrev_b32 v28, 8, v28")
    a("s_lshr_b32 s39, s22, 1")
    a("s_lshl_b32 s39, s39, 12")
    a("s_add_u32 s39, s39, 0x%x" % (ZFLG + PFL))
    a.label("%s_cpz" % name)
    a("buffer_load_dword v29, v28, s[12:15], s39 offen sc1")
    a("s_add_u32 s34, s34, 1")
    a("s_waitcnt vmcnt(0)")
    a("v_cmp_ne_u32 vcc, 1, v29")
    a("s_cmp_gt_u32 s34, %d" % SPIN_MAX)
    a("s_cbranch_scc1 %s_cpzx" % name)
    a("s_cbranch_vccz %s_cpzx" % name)
    a("s_sleep 8")
    a("s_branch %s_cpz" % name)
    a.label("%s_cpzx" % name)
    a("ds_write_b32 v26, v27 offset:24")
    a("s_branch %s_cgo" % name)
    a.label("%s_cpl" % name)
    a("ds_read_b32 v29, v26 offset:24")
    a("s_add_u32 s34, s34, 1")
    a("s_waitcnt lgkmcnt(0)")
    a("v_readfirstlane_b32 s36, v29")
    a("s_cmp_gt_u32 s34, %d" % (SPIN_MAX * 20))
    a("s_cbranch_scc1 %s_cgo" % name)
    a("s_cmp_lg_u32 s36, 0")
    a("s_cbranch_scc1 %s_cgo" % name)
    a("s_sleep 2")
    a("s_branch %s_cpl" % name)
    a.label("%s_cgo" % name)
    stamp(a, 8)
    a("s_add_u32 s38, s26, 16384")
    cT(str(C0), "s26"); cT(str(C0 + CSL), "s38")
    a("s_add_u32 s26, s26, 32768")
    a("s_add_u32 s27, s27, 40960")
    a("s_mov_b32 s33, %d" % RB)
    def cissue():
        cT("s33", "s26"); cF("s33", "s27")
        a("s_add_u32 s26, s26, 16384")
        a("s_add_u32 s27, s27, 20480")
        a("s_add_u32 s33, s33, %d" % CSL)
        a("s_cmp_eq_u32 s33, %d" % CW)
        a("s_cselect_b32 s33, %d, s33" % RB)
    a("s_waitcnt vmcnt(4)")
    a("s_barrier")
    cissue(); cissue()
    a("s_waitcnt vmcnt(18)")
    a("s_barrier")
    a("s_mov_b32 s34, 0")
    a.label("%s_clloop" % name)
    cissue()
    a("s_cmp_lg_u32 s34, 11")
    a("s_cbranch_scc1 %s_cl1" % name)
    a("buffer_load_dword v31, v30, s[60:63], 0 offen offset:192 sc1")
    a("s_waitcnt vmcnt(19)")
    a("s_branch %s_cl2" % name)
    a.label("%s_cl1" % name)
    a("s_waitcnt vmcnt(18)")
    a.label("%s_cl2" % name)
    a("s_barrier")
    a("s_add_u32 s34, s34, 1")
    a("s_cmp_lt_u32 s34, 14")
    a("s_cbranch_scc1 %s_clloop" % name)
    a("s_mov_b32 s34, 0")
    a.label("%s_cy" % name)
    a("v_cmp_gt_u32 vcc, 16, v31")
    a("s_add_u32 s34, s34, 1")
    a("s_cmp_gt_u32 s34, %d" % SPIN_MAX)
    a("s_cbranch_scc1 %s_cyx" % name)
    a("s_cbranch_vccz %s_cyx" % name)
    a("s_sleep 32")
    a("buffer_load_dword v31, v30, s[60:63], 0 offen offset:192 sc1")
    a("s_waitcnt vmcnt(0)")
    a("s_branch %s_cy" % name)
    a.label("%s_cyx" % name)
    a("v_lshrrev_b32 v3, 3, v2")
    a("v_and_b32 v4, 7, v2")
    a("v_lshlrev_b32 v4, 4, v4")
    a("s_mul_i32 s33, s52, 144")
    a("s_mul_i32 s34, s53, 80")
    a("s_lshl_b32 s35, s22, 7")
    a("s_add_u32 s35, s35, 0x%x" % YT)
    for n in range(3):
        a("s_add_u32 s36, s3, %d" % (4 * n))
        if n == 2: a("s_min_u32 s36, s36, 9")
        a("s_lshl_b32 s37, s36, 3")
        a("s_add_u32 s38, s37, s33")
        if n < 2: a("s_add_u32 s38, s38, s34")
        a("v_add_u32 v5, s38, v3")
        a("v_lshl_add_u32 v5, v5, 12, v4")
        a("s_lshl_b32 s36, s36, 10")
        a("s_add_u32 s36, s36, %d" % YOFF)
        a("s_mov_b32 m0, s36")
        a("s_nop 0")
        a("buffer_load_dwordx4 v5, s[12:15], s35 offen sc1 lds")
    fin_loads()
    a("s_waitcnt vmcnt(%d)" % (9 + 7))
    a("s_barrier")
    a("s_waitcnt vmcnt(7)")
    a("s_barrier")
    a("s_barrier")
    a("s_setprio 0")
    a("s_waitcnt vmcnt(0)")
    a("s_branch %s_cfin" % name)
    a.label("%s_A1" % name)
    a("s_setprio 2")
    vmA = VmTracker(a)
    PB = 132
    def aux_head():
        epi_in()
        for tt in range(4):
            a("v_mov_b32 v%d, 0" % S[tt]); a("v_mov_b32 v%d, 0" % Q[tt])
    def aux_pub():
        a("s_nop 2")
        emit_xg_reduce(a, S + Q, 72)
        a("v_lshrrev_b32 v10, 4, v2")
        for g in range(1, 4):
            a("v_cmp_eq_u32 vcc, %d, v10" % g)
            a("s_nop 1")
            a("v_cndmask_b32 v%d, v%d, v%d, vcc" % (S[0], S[0], S[g]))
            a("v_cndmask_b32 v%d, v%d, v%d, vcc" % (Q[0], Q[0], Q[g]))
        a("v_and_b32 v%d, 0x7fffffff, v%d" % (Q[0], Q[0]))
        a("buffer_store_dwordx2 v[%d:%d], v94, s[12:15], s58 offen sc1" % (S[0], Q[0]))
    chunks = [capture(aux_head) + capture(gelu_ft, 0, True), capture(gelu_ft, 1, True), capture(gelu_ft, 2, True),
              capture(gelu_ft, 3, True), capture(gelu_ft, 4, True) + capture(aux_pub)]
    KD = 172
    for k in range(9, 18):
        a("s_barrier")
        if k == 9:
            a("s_cmp_lg_u32 s3, 0")
            a("s_cbranch_scc1 %s_nosig" % name)
            a("v_mov_b32 v10, 1")
            a("s_lshl_b32 s36, s22, 2")
            a("v_mov_b32 v11, s36")
            a("s_mov_b64 exec, 1")
            a("buffer_atomic_add v10, v11, s[60:63], 0 offen sc1")
            a("s_mov_b64 exec, -1")
            a.label("%s_nosig" % name)
        g = k + 3
        dma = capture(lambda: (issueT(g), issueF(g))) if g < 18 else []
        comp = chunks[k - 9] if k - 9 < len(chunks) else []
        interleave(dma, comp)
        if k == 13: vmA.issue("pub", 1)
        if g < 18: vmA.issue("S%d" % g, 9)
        if k == 14:
            srd(a, 92, 78, 2048 * 2048 * 2)
            a("v_lshrrev_b32 v10, 4, v2")
            a("v_lshlrev_b32 v10, 12, v10")
            a("v_lshl_add_u32 v10, v3, 4, v10")
            a("s_lshl_b32 s40, s22, 7")
            a("s_lshl_b32 s36, s3, 5")
            a("s_add_u32 s40, s40, s36")
            a("s_lshl_b32 s40, s40, 12")
            a("s_lshl_b32 s36, s23, 8")
            a("s_add_u32 s40, s40, s36")
            for n in range(8):
                a("buffer_load_dwordx4 v[200:203], v10, s[92:95], s40 offen")
                if n < 7: a("s_add_u32 s40, s40, 16384")
            vmA.issue("wp", 8)
            a("s_lshl_b32 s36, s22, 2")
            a("v_mov_b32 v199, s36")
            a("buffer_load_dword v198, v199, s[60:63], 0 offen sc1"); vmA.issue("cnt", 1)
        if k + 2 < 18 and k + 2 >= 12:
            vmA.wait(["S%d" % (k + 2)])
    a("s_barrier")
    stamp(a, 3)
    a("s_load_dwordx4 s[88:91], s[0:1], 32")
    a("v_lshrrev_b32 v10, 4, v2")
    a("v_lshlrev_b32 v95, 8, v3")
    a("v_lshl_add_u32 v95, v10, 6, v95")
    a("s_lshl_b32 s33, s25, 13")
    a("s_add_u32 s52, s59, s33")
    a("s_xor_b32 s33, s33, 8192")
    a("s_add_u32 s53, s59, s33")
    a("s_add_u32 s42, s52, 4096")
    a("s_add_u32 s43, s53, 4096")
    Z2 = ZP
    a("s_waitcnt vmcnt(0)")
    GB = [128, 144, 160, 176]
    a("v_mov_b32 v4, v95")
    def gather():
        for tt in range(4):
            for q in range(4):
                a("buffer_load_dwordx4 %s, v4, s[12:15], s%d offen offset:%d sc1" % (vr(GB[tt] + 4 * q), (52, 42, 53, 43)[tt], 16 * q))
    gather()
    a("s_mov_b32 s40, 0")
    a("s_waitcnt vmcnt(0)")
    a.label("%s_chk" % name)
    a("v_subrev_u32 v11, 16, v198")
    for tt in range(4):
        for r in range(GB[tt] + 1, GB[tt] + 16, 4):
            a("v_or3_b32 v11, v11, v%d, v%d" % (r, r + 2))
    a("v_cmp_gt_i32 vcc, 0, v11")
    a("s_add_u32 s40, s40, 1")
    a("s_cmp_gt_u32 s40, %d" % SPIN_MAX)
    a("s_cbranch_scc1 %s_ok" % name)
    a("s_cbranch_vccz %s_ok" % name)
    a("s_sleep 32")
    a("buffer_load_dword v198, v199, s[60:63], 0 offen sc1")
    a("s_waitcnt vmcnt(0)")
    gather()
    a("s_waitcnt vmcnt(0)")
    a("s_branch %s_chk" % name)
    a.label("%s_ok" % name)
    stamp(a, 5)
    for tt in range(4):
        b = GB[tt]
        for st_ in (8, 4, 2):
            for q in range(0, st_, 2):
                a("v_pk_add_f32 %s, %s, %s" % (vr(b + q, 2), vr(b + q, 2), vr(b + q + st_, 2)))
    emit_xg_reduce(a, [GB[tt] + e for tt in range(4) for e in range(2)], 72)
    for tt in range(4):
        b = GB[tt]
        emit_ln_finish(a, b, b + 1, 2304, b + 2, MR + 2 * tt, b + 4)
        a("v_mul_f32 v%d, -v%d, v%d" % (MR + 2 * tt + 1, b + 2, MR + 2 * tt))
    a("v_lshrrev_b32 v10, 4, v2")
    a("v_lshrrev_b32 v11, 2, v2"); a("v_and_b32 v11, 1, v11"); a("v_lshlrev_b32 v11, 4, v11")
    a("v_lshrrev_b32 v5, 3, v2"); a("v_and_b32 v5, 1, v5"); a("v_lshl_add_u32 v11, v5, 2, v11")
    a("v_and_b32 v5, 3, v2"); a("v_add_u32 v11, v11, v5")
    a("v_and_b32 v5, 1, v10")
    a("v_lshl_add_u32 v11, v5, 3, v11")
    a("v_lshlrev_b32 v11, 5, v11")
    a("v_lshrrev_b32 v5, 1, v10")
    a("v_lshl_add_u32 v6, v5, 4, v11")
    a("s_lshl_b32 s33, s23, 5")
    a("s_lshl_b32 s36, s22, 1")
    a("s_add_u32 s33, s33, s36")
    a("s_add_u32 s33, s33, s24")
    a("s_mul_i32 s33, s33, 18432")
    if ZIMG: a("s_add_u32 s33, s33, 0x%x" % ZIMG)
    a("s_lshl_b32 s36, s25, 10")
    a("s_add_u32 s39, s33, s36")
    a("s_add_u32 s39, s39, 8192")
    a("s_mul_i32 s38, s25, 10240")
    a("s_add_u32 s33, s33, s38")
    a("s_add_u32 s37, s33, s36")
    a("s_xor_b32 s36, s36, 1024")
    a("s_add_u32 s38, s33, s36")
    a("s_add_u32 s33, s37, 4096")
    a("s_add_u32 s36, s38, 4096")
    def norm_pair(nA, ttA, nB, ttB, O):
        for q, (n, tt) in enumerate(((nA, ttA), (nB, ttB))):
            for d in range(2):
                z = Z2 + 2 * n + d; t = T + 4 * q + 2 * d
                a("v_lshlrev_b32 v%d, 16, v%d" % (t, z))
                a("v_and_b32 v%d, 0xffff0000, v%d" % (t + 1, z))
        for q, (n, tt) in enumerate(((nA, ttA), (nB, ttB))):
            for d in range(2):
                t = T + 4 * q + 2 * d
                a("v_pk_fma_f32 %s, %s, %s, %s op_sel:[0,0,1] op_sel_hi:[1,0,1]" % (vr(t, 2), vr(t, 2), vr(MR + 2 * tt, 2), vr(MR + 2 * tt, 2)))
        for q in range(2):
            for d in range(2):
                t = T + 4 * q + 2 * d
                a("v_cvt_pk_bf16_f32 v%d, v%d, v%d" % (O + 2 * q + d, t, t + 1))
        a("s_nop 1")
        a("v_permlane16_swap_b32 v%d, v%d" % (O, O + 2))
        a("v_permlane16_swap_b32 v%d, v%d" % (O + 1, O + 3))
    cnt = 0
    for ft in range(4):
        for pp in range(2):
            O = 200 + 4 * cnt; cnt += 1
            norm_pair(tidx(ft, 2 * pp), 2 * pp, tidx(ft, 2 * pp + 1), 2 * pp + 1, O)
            a("s_nop 0")
            a("buffer_store_dwordx4 %s, v6, s[12:15], s%d offen offset:%d sc1" % (vr(O), ((37, 38), (33, 36))[ft >> 1][pp], (ft & 1) * 2048))
    O = 200 + 4 * cnt
    norm_pair(16, 0, 17, 1, O)
    a("s_nop 0")
    a("buffer_store_dwordx4 %s, v6, s[12:15], s39 offen sc1" % vr(O))
    stamp(a, 6)
    a("s_setprio 3")
    srd(a, 8, 78, 2048 * 2048 * 2)
    a("v_lshrrev_b32 v3, 3, v2")
    a("s_lshl_b32 s24, s3, 5")
    a("v_add_u32 v3, s24, v3")
    a("v_and_b32 v4, 7, v2")
    a("v_lshrrev_b32 v6, 4, v2")
    a("v_xor_b32 v6, v6, v4")
    a("v_lshlrev_b32 v6, 4, v6")
    a("v_lshl_add_u32 v10, v3, 12, v6")
    a("v_xor_b32 v11, 64, v10")
    a("v_add_u32 v11, %d, v11" % (32768 - 1024))
    a("v_add_u32 v12, %d, v10" % (2 * (32768 - 1024)))
    a("v_add_u32 v13, %d, v11" % (2 * (32768 - 1024)))
    a("v_lshlrev_b32 v14, 4, v2")
    a("s_lshl_b32 s26, s22, 19")
    a("s_mul_i32 s27, s23, %d" % (32 * 18432))
    a("s_lshl_b32 s24, s3, 12")
    a("s_add_u32 s27, s27, s24")
    if ZIMG: a("s_add_u32 s27, s27, 0x%x" % ZIMG)
    a("s_lshl_b32 s25, s3, 9")
    a("s_sub_u32 s32, s25, s24")
    a("s_add_u32 s32, s32, 16384")
    a("s_add_u32 s24, s24, %d" % RB)
    a("s_waitcnt vmcnt(0) lgkmcnt(0)")
    a("v_mov_b32 v26, %d" % LC)
    a("v_mov_b32 v27, 1")
    a("s_mov_b64 exec, 1")
    a("ds_add_rtn_u32 v28, v26, v27")
    a("s_waitcnt lgkmcnt(0)")
    a("v_readfirstlane_b32 s36, v28")
    a("s_cmp_lg_u32 s36, 3")
    a("s_cbranch_scc1 %s_nozs" % name)
    a("v_mov_b32 v28, 0")
    a("buffer_store_dword v27, v28, s[12:15], s97 offen sc1")
    a.label("%s_nozs" % name)
    a("s_mov_b64 exec, -1")
    stamp(a, 7)
    srd(a, 16, 88, 576 * 2048 * 2)
    srd(a, 84, 90, 576 * 2)
    for g in range(4):
        a("s_add_u32 s35, s24, %d" % (g * SLOT))
        a("s_mov_b32 m0, s35")
        a("s_add_u32 s36, s26, %d" % (128 * g))
        for n in range(4):
            a("buffer_load_dwordx4 v%d, s[8:11], s36 offen offset:%d lds" % (10 + n, n * 1024))
    a("s_mov_b32 s34, 0")
    a("s_cmp_lg_u32 s3, 0")
    a("s_cbranch_scc1 %s_pl" % name)
    a("v_and_b32 v28, 15, v2")
    a("v_lshlrev_b32 v30, 2, v28")
    a("v_lshlrev_b32 v28, 12, v28")
    a("s_lshl_b32 s52, s23, 8")
    a("s_add_u32 s52, s52, 0x%x" % ZFLG)
    a.label("%s_pz0" % name)
    a("buffer_load_dword v31, v30, s[60:63], 0 offen sc1")
    a("s_add_u32 s34, s34, 1")
    a("s_waitcnt vmcnt(0)")
    a("v_cmp_gt_u32 vcc, 16, v31")
    a("s_cmp_gt_u32 s34, %d" % SPIN_MAX)
    a("s_cbranch_scc1 %s_pz" % name)
    a("s_cbranch_vccz %s_pz" % name)
    a("s_sleep 32")
    a("s_branch %s_pz0" % name)
    a.label("%s_pz" % name)
    a("buffer_load_dword v29, v28, s[12:15], s52 offen sc1")
    a("s_add_u32 s34, s34, 1")
    a("s_waitcnt vmcnt(0)")
    a("v_cmp_ne_u32 vcc, 1, v29")
    a("s_cmp_gt_u32 s34, %d" % SPIN_MAX)
    a("s_cbranch_scc1 %s_pzx" % name)
    a("s_cbranch_vccz %s_pzx" % name)
    a("s_sleep 8")
    a("s_branch %s_pz" % name)
    a.label("%s_pzx" % name)
    a("v_mov_b32 v27, 1")
    a("ds_write_b32 v26, v27 offset:4")
    a("s_branch %s_pgo" % name)
    a.label("%s_pl" % name)
    a("ds_read_b32 v27, v26 offset:4")
    a("s_add_u32 s34, s34, 1")
    a("s_waitcnt lgkmcnt(0)")
    a("v_readfirstlane_b32 s36, v27")
    a("s_cmp_gt_u32 s34, %d" % (SPIN_MAX * 20))
    a("s_cbranch_scc1 %s_pgo" % name)
    a("s_cmp_lg_u32 s36, 0")
    a("s_cbranch_scc1 %s_pgo" % name)
    a("s_sleep 2")
    a("s_branch %s_pl" % name)
    a.label("%s_pgo" % name)
    stamp(a, 8)
    for g in range(4):
        a("s_add_u32 s35, s24, %d" % (g * SLOT + TREG))
        a("s_mov_b32 m0, s35")
        a("s_add_u32 s36, s27, %d" % (18432 * g))
        a("s_add_u32 s37, s36, s32")
        for n in range(4):
            a("buffer_load_dwordx4 v14, s[12:15], s36 offen offset:%d sc1 lds" % (n * 1024))
        a("s_add_u32 s35, s35, s32")
        a("s_mov_b32 m0, s35")
        a("s_mov_b64 exec, 0xffffffff")
        a("buffer_load_dwordx4 v14, s[12:15], s37 offen sc1 lds")
        a("s_mov_b64 exec, -1")
    a("s_add_u32 s26, s26, 512")
    a("s_add_u32 s27, s27, %d" % (4 * 18432))
    a("s_mov_b32 s33, 0")
    a("s_lshl_b32 s43, s2, 2")
    a("s_add_u32 s43, s43, s3")
    a("s_and_b32 s53, s43, 1")
    a("s_sub_u32 s36, s43, 448")
    a("s_lshr_b32 s37, s43, 1")
    a("s_cmp_ge_u32 s43, 896")
    a("s_cselect_b32 s43, s36, s37")
    a("s_cselect_b32 s53, 2, s53")
    a("s_waitcnt vmcnt(15)")
    a("s_barrier")
    a("s_waitcnt vmcnt(10)")
    a("s_barrier")
    a("s_waitcnt vmcnt(5)")
    a("s_barrier")
    a("s_mov_b32 s34, 4")
    def issue2():
        a("s_add_u32 s35, s33, s24")
        a("s_mov_b32 m0, s35")
        a("s_add_u32 s36, s35, %d" % TREG)
        for n in range(4):
            a("buffer_load_dwordx4 v%d, s[8:11], s26 offen offset:%d lds" % (10 + n, n * 1024))
        a("s_mov_b32 m0, s36")
        a("s_add_u32 s37, s27, s32")
        for n in range(4):
            a("buffer_load_dwordx4 v14, s[12:15], s27 offen offset:%d sc1 lds" % (n * 1024))
        a("s_add_u32 s36, s36, s32")
        a("s_mov_b32 m0, s36")
        a("s_mov_b64 exec, 0xffffffff")
        a("buffer_load_dwordx4 v14, s[12:15], s37 offen sc1 lds")
        a("s_mov_b64 exec, -1")
        a("s_add_u32 s26, s26, 128")
        a("s_add_u32 s27, s27, 18432")
        a("s_add_u32 s33, s33, %d" % SLOT)
        a("s_cmp_eq_u32 s33, %d" % (R * SLOT))
        a("s_cselect_b32 s33, 0, s33")
    a.label("%s_lloop" % name)
    issue2()
    a("s_cmp_eq_u32 s34, 18")
    a("s_cbranch_scc1 %s_hk1" % name)
    a("s_cmp_eq_u32 s34, 21")
    a("s_cbranch_scc1 %s_hk2" % name)
    a("s_waitcnt vmcnt(9)")
    a.label("%s_lcont" % name)
    a("s_barrier")
    a("s_add_u32 s34, s34, 1")
    a("s_cmp_lt_u32 s34, 32")
    a("s_cbranch_scc1 %s_lloop" % name)
    a("s_branch %s_ldone" % name)
    a.label("%s_hk1" % name)
    a("v_and_b32 v28, 15, v2")
    a("v_lshlrev_b32 v28, 2, v28")
    a("buffer_load_dword v29, v28, s[60:63], 0 offen offset:128 sc1")
    a("s_waitcnt vmcnt(10)")
    a("s_branch %s_lcont" % name)
    a.label("%s_hk2" % name)
    a("s_mov_b32 s52, 0")
    a.label("%s_hk2l" % name)
    a("v_cmp_gt_u32 vcc, 16, v29")
    a("s_add_u32 s52, s52, 1")
    a("s_cmp_gt_u32 s52, %d" % SPIN_MAX)
    a("s_cbranch_scc1 %s_hk2g" % name)
    a("s_cbranch_vccz %s_hk2g" % name)
    a("s_sleep 16")
    a("buffer_load_dword v29, v28, s[60:63], 0 offen offset:128 sc1")
    a("s_waitcnt vmcnt(0)")
    a("s_branch %s_hk2l" % name)
    a.label("%s_hk2g" % name)
    nconv = emit_conv_loads(a, " sc1")
    a("s_waitcnt vmcnt(%d)" % (9 + nconv))
    a("s_branch %s_lcont" % name)
    a.label("%s_ldone" % name)
    a("s_waitcnt vmcnt(0)")
    a("s_barrier")
    a("s_mov_b32 s26, s53")
    a("s_and_b32 s27, s3, 1")
    a("s_mul_i32 s27, s27, %d" % CJ_SIZE)
    a("s_lshr_b32 s36, s3, 1")
    a("s_mul_i32 s36, s36, %d" % SLOT)
    a("s_add_u32 s27, s27, s36")
    a("s_add_u32 s27, s27, %d" % RB)
    def mid():
        a("s_barrier")
        a("s_setprio 0")
    sv = set(DBG); DBG.discard("stamp")
    lb_ = len(a.lines)
    emit_conv_job(a, name, mid)
    for n_ in range(lb_, len(a.lines)):
        if "buffer_store_dwordx2" in a.lines[n_]: a.lines[n_] += " sc1"
    DBG.update(sv)
    stamp(a, 9)
    c_common()
    cTa = [4, 4]; cTb = [6, 6]; cF_ = 8; cFh = 9
    kTa = 88; kTb = 90; kF = 92; kFh = 93
    a("v_and_b32 v3, 15, v2")
    a("v_lshrrev_b32 v10, 5, v2")
    a("v_lshlrev_b32 v10, 11, v10")
    a("v_bfe_u32 v11, v2, 4, 1")
    a("v_lshl_add_u32 v10, v11, 4, v10")
    a("v_lshl_add_u32 v10, v3, 5, v10")
    a("s_lshl_b32 s26, s3, 12")
    a("v_add_u32 v10, s26, v10")
    a("s_lshl_b32 s26, s53, 10")
    a("v_add_u32 v%d, s26, v10" % kTa)
    a("s_xor_b32 s26, s26, 1024")
    a("v_add_u32 v%d, s26, v10" % kTb)
    a("v_lshrrev_b32 v10, 2, v2")
    a("v_mul_u32_u24 v10, %d, v10" % CFS)
    a("v_and_b32 v11, 3, v2")
    a("v_lshl_add_u32 v10, v11, 3, v10")
    a("s_mul_i32 s26, s3, %d" % (32 * CFS))
    a("s_add_u32 s26, s26, %d" % CTREG)
    a("v_add_u32 v%d, s26, v10" % kF)
    a("v_add_u32 v%d, 128, v%d" % (kFh, kF))
    a("v_mov_b32 v26, %d" % LC)
    a("v_mov_b32 v27, 1")
    a("s_waitcnt vmcnt(0)")
    a("s_mov_b64 exec, 1")
    a("ds_add_rtn_u32 v28, v26, v27 offset:20")
    a("s_waitcnt lgkmcnt(0)")
    a("v_readfirstlane_b32 s36, v28")
    a("s_cmp_lg_u32 s36, 3")
    a("s_cbranch_scc1 %s_nocs" % name)
    a("s_and_b32 s36, s2, 15")
    a("s_lshl_b32 s36, s36, 2")
    a("s_add_u32 s36, s36, 192")
    a("v_mov_b32 v28, s36")
    a("buffer_atomic_add v27, v28, s[60:63], 0 offen sc1")
    a.label("%s_nocs" % name)
    a("s_mov_b64 exec, -1")
    fin_loads()
    core3 = G.Core(a, ACC, FB[0], FB[1], CFS, CTREG, cTa, cTb, cF_, cFh, TT=512)
    pairs = ((cTa[0], kTa), (cF_, kF), (cTb[0], kTb), (cFh, kFh))
    a("s_mov_b32 s27, %d" % C0)
    for d, s_ in pairs: a("v_add_u32 v%d, s27, v%d" % (d, s_))
    for r in range(ACC, ACC + 72): a("v_mov_b32 v%d, 0" % r)
    a("s_mov_b32 s33, 0")
    a("s_barrier")
    stamp(a, 10)
    core3.prime(0, core3.reads(0, 0))
    def citer(buf):
        core3.trk.drain()
        a("s_barrier")
        a("s_add_u32 s27, s27, %d" % CSL)
        a("s_cmp_eq_u32 s27, %d" % CW)
        a("s_cselect_b32 s27, %d, s27" % RB)
        pre = ["v_add_u32 v%d, s27, v%d" % (d, s_) for d, s_ in pairs]
        core3.phase(buf, core3.reads(1 - buf, 0), pre=pre)
    a.label("%s_ccloop" % name)
    citer(0); citer(1)
    a("s_add_u32 s33, s33, 1")
    a("s_cmp_lt_u32 s33, 9")
    a("s_cbranch_scc1 %s_ccloop" % name)
    core3.trk.drain()
    stamp(a, 11)
    a("s_mul_i32 s33, s3, %d" % (18 * 1024))
    a("s_add_u32 s33, s33, %d" % C0)
    a("v_lshlrev_b32 v10, 4, v2")
    a("v_add_u32 v11, s33, v10")
    a("s_nop 4")
    for n, (ft, tt) in enumerate(TILES):
        a("ds_write_b128 v11, %s offset:%d" % (vr(core3.accr(ft, tt)), 1024 * tidx(ft, tt)))
        if n in (7, 13): a("s_waitcnt lgkmcnt(4)")
    a("s_waitcnt lgkmcnt(0) vmcnt(0)")
    a.label("%s_cfin" % name)
    a("s_barrier")
    stamp(a, 12)
    a("v_lshlrev_b32 v10, 4, v2")
    a("v_lshrrev_b32 v11, 2, v2")
    a("v_lshlrev_b32 v11, 7, v11")
    a("v_and_b32 v12, 3, v2")
    a("v_lshl_add_u32 v11, v12, 3, v11")
    a("s_mov_b32 s33, 0xbfb8aa3b")
    PT = 16; YR = 64
    for s_ in range(3):
        b = 64 + 4 * s_
        if s_ == 2:
            a("s_cmp_ge_u32 s54, 2")
            a("s_cbranch_scc1 %s_rd" % name)
        a("v_add_u32 v4, s%d, v10" % (b + 2))
        a("v_add_u32 v5, s%d, v11" % (b + 1))
        for q in range(4):
            a("ds_read_b128 %s, v4 offset:%d" % (vr(PT + 16 * s_ + 4 * q), 18432 * q))
        a("ds_read_b64_tr_b16 %s, v5" % vr(YR + 2 * s_, 2))
    a.label("%s_rd" % name)
    T = 104
    for s_ in range(3):
        b = 64 + 4 * s_
        if s_ == 0: a("s_waitcnt lgkmcnt(5)")
        if s_ == 1: a("s_waitcnt lgkmcnt(0)")
        if s_ == 2:
            a("s_cmp_ge_u32 s54, 2")
            a("s_cbranch_scc1 %s_done" % name)
        o = PT + 16 * s_; X = XR + 2 * s_; Y = YR + 2 * s_; S_ = ST + 2 * s_
        for h in (0, 2):
            a("v_pk_add_f32 %s, %s, %s" % (vr(o + h, 2), vr(o + h, 2), vr(o + 4 + h, 2)))
            a("v_pk_add_f32 %s, %s, %s" % (vr(o + 8 + h, 2), vr(o + 8 + h, 2), vr(o + 12 + h, 2)))
        for h in (0, 2):
            a("v_pk_add_f32 %s, %s, %s" % (vr(o + h, 2), vr(o + h, 2), vr(o + 8 + h, 2)))
        rnd_pair(a, T + 20, o, o + 1); rnd_pair(a, T + 21, o + 2, o + 3)
        for r in range(4): a("v_mul_f32 v%d, s33, v%d" % (T + r, o + r))
        for r in range(4): a("v_exp_f32 v%d, v%d" % (T + r, T + r))
        a("v_lshlrev_b32 v%d, 16, v%d" % (T + 4, X)); a("v_and_b32 v%d, 0xffff0000, v%d" % (T + 5, X))
        a("v_lshlrev_b32 v%d, 16, v%d" % (T + 6, X + 1)); a("v_and_b32 v%d, 0xffff0000, v%d" % (T + 7, X + 1))
        for r in range(4): a("v_add_f32 v%d, 1.0, v%d" % (T + r, T + r))
        for r in range(4): a("v_rcp_f32 v%d, v%d" % (T + r, T + r))
        for r in range(4): a("v_sub_f32 v%d, v%d, v%d" % (T + 12 + r, T + 4 + r, S_))
        a("v_lshlrev_b32 v%d, 16, v%d" % (T + 8, Y)); a("v_and_b32 v%d, 0xffff0000, v%d" % (T + 9, Y))
        a("v_lshlrev_b32 v%d, 16, v%d" % (T + 10, Y + 1)); a("v_and_b32 v%d, 0xffff0000, v%d" % (T + 11, Y + 1))
        for r in range(4): a("v_mul_f32 v%d, v%d, v%d" % (o + r, o + r, T + r))
        rnd_pair(a, T + 20, T + 12, T + 13); rnd_pair(a, T + 21, T + 14, T + 15)
        rnd_pair(a, T + 22, o, o + 1); rnd_pair(a, T + 23, o + 2, o + 3)
        for r in range(4): a("v_mul_f32 v%d, v%d, v%d" % (T + 12 + r, T + 12 + r, S_ + 1))
        rnd_pair(a, T + 20, T + 12, T + 13); rnd_pair(a, T + 21, T + 14, T + 15)
        for r in range(4): a("v_mul_f32 v%d, v%d, v%d" % (T + 12 + r, T + 12 + r, T + 8 + r))
        rnd_pair(a, T + 20, T + 12, T + 13); rnd_pair(a, T + 21, T + 14, T + 15)
        for r in range(4): a("v_mul_f32 v%d, v%d, v%d" % (T + 12 + r, T + 12 + r, o + r))
        rnd_pair(a, T + 20, T + 12, T + 13); rnd_pair(a, T + 21, T + 14, T + 15)
        for r in range(4): a("v_add_f32 v%d, v%d, v%d" % (T + 12 + r, T + 12 + r, T + 4 + r))
        a("v_cvt_pk_bf16_f32 v%d, v%d, v%d" % (X, T + 12, T + 13))
        a("v_cvt_pk_bf16_f32 v%d, v%d, v%d" % (X + 1, T + 14, T + 15))
        a("buffer_store_dwordx2 %s, v13, s[28:31], s%d offen" % (vr(X, 2), b))
    a.label("%s_done" % name)
    stamp(a, 13)
    G.stamp_rt(a, 1)
    a.label("%s_end" % name)
    a("s_endpgm")
    return a.text(), kernel_desc(name, 256, 256), (name, 256, 512, YOFF + 10240)

def gen_kf10(name="k1_kernel", R=4):
    a = Asm()
    RB = 4096; SLOT = 34816; TREG = 16384; FS = 288; RST = 0
    LDSB = RB + R * SLOT
    LC = 2048
    ZFLG = 0x2D00000; PFL = 128
    C0 = 77824; CW = 151552; CSL = 36864; YOFF = 151552; CTREG = 16384; CFS = 160
    from gen3 import emit_conv_loads, emit_conv_job, CJ_SIZE
    def capture(f, *args):
        lb = len(a.lines); f(*args); out = a.lines[lb:]; del a.lines[lb:]; return out

    def c_common():
        a("s_load_dwordx2 s[4:5], s[0:1], 0")
        a("s_load_dwordx2 s[16:17], s[0:1], 88")
        a("s_and_b32 s20, s2, 7")
        a("s_lshr_b32 s21, s2, 3")
        a("s_and_b32 s22, s20, 3")
        a("s_lshl_b32 s22, s22, 3")
        a("s_and_b32 s23, s21, 7")
        a("s_add_u32 s22, s22, s23")
        a("s_lshr_b32 s23, s20, 2")
        a("s_lshl_b32 s23, s23, 2")
        a("s_lshr_b32 s24, s21, 3")
        a("s_add_u32 s23, s23, s24")
        a("s_lshr_b32 s52, s23, 1")
        a("s_and_b32 s53, s23, 1")
        a("s_lshl_b32 s54, s98, 2")
        a("s_add_u32 s54, s54, s3")
        a("s_waitcnt lgkmcnt(0)")
        srd(a, 8, 4, 2048 * 576 * 2)
        srd(a, 28, 16, 2048 * 576 * 2)
    XR = 200; ST = 208
    def fin_loads():
        a("v_and_b32 v3, 15, v2")
        a("v_lshrrev_b32 v10, 4, v2")
        a("v_mul_u32_u24 v13, 1152, v3")
        a("v_lshl_add_u32 v13, v10, 3, v13")
        a("v_lshlrev_b32 v12, 3, v3")
        for s_ in range(3):
            if s_ == 2:
                a("s_cmp_ge_u32 s54, 2")
                a("s_cbranch_scc1 %s_fl%d" % (name, fin_loads.cnt))
            b = 64 + 4 * s_
            if s_ < 2:
                a("s_add_u32 s36, s54, %d" % (8 * s_))
                a("s_lshr_b32 s37, s36, 2")
                a("s_and_b32 s38, s36, 3")
                a("s_mul_i32 s39, s53, 160")
                a("s_lshl_b32 s40, s37, 5")
                a("s_add_u32 s39, s39, s40")
            else:
                a("s_add_u32 s36, s54, 16")
                a("s_mov_b32 s37, 4")
                a("s_mov_b32 s38, s54")
                a("s_mov_b32 s39, 128")
            a("s_lshl_b32 s40, s53, 1")
            a("s_add_u32 s38, s38, s40")
            a("s_and_b32 s38, s38, 3")
            a("s_lshl_b32 s40, s22, 2")
            a("s_add_u32 s40, s40, s38")
            a("s_lshl_b32 s40, s40, 4")
            a("s_mul_i32 s%d, s40, 1152" % b)
            a("s_add_u32 s%d, s%d, s39" % (b, b))
            a("s_mul_i32 s39, s52, 288")
            a("s_add_u32 s%d, s%d, s39" % (b, b))
            a("s_lshl_b32 s%d, s37, 11" % (b + 1))
            a("s_lshl_b32 s39, s38, 5")
            a("s_add_u32 s%d, s%d, s39" % (b + 1, b + 1))
            a("s_add_u32 s%d, s%d, %d" % (b + 1, b + 1, YOFF))
            a("s_lshl_b32 s%d, s36, 10" % (b + 2))
            a("s_add_u32 s%d, s%d, %d" % (b + 2, b + 2, C0))
            a("s_lshl_b32 s40, s40, 3")
            a("s_add_u32 s40, s40, 0x%x" % STATS1)
            a("buffer_load_dwordx2 %s, v13, s[8:11], s%d offen" % (vr(XR + 2 * s_, 2), b))
            a("buffer_load_dwordx2 %s, v12, s[12:15], s40 offen sc1" % vr(ST + 2 * s_, 2))
        a.label("%s_fl%d" % (name, fin_loads.cnt))
        fin_loads.cnt += 1
    fin_loads.cnt = 0
    kernel_begin(a, name)
    a("s_load_dwordx2 s[80:81], s[0:1], 0")
    a("s_load_dwordx2 s[4:5], s[0:1], 56")
    a("s_load_dwordx2 s[6:7], s[0:1], 104")
    a("s_load_dwordx2 s[18:19], s[0:1], 96")
    a("s_cmp_ge_u32 s2, 256")
    a("s_cbranch_scc1 %s_end" % name)
    a("v_lshrrev_b32 v1, 6, v0")
    a("v_and_b32 v2, 63, v0")
    a("v_readfirstlane_b32 s3, v1")
    G2.tile_ij(a)
    a("s_lshr_b32 s98, s3, 2")
    a("s_mov_b32 s54x, 0".replace("s54x", "s99"))
    a("s_and_b32 s3, s3, 3")
    a("s_lshr_b32 s24, s3, 1")
    a("s_and_b32 s25, s3, 1")
    a("v_and_b32 v3, 15, v2")
    VT = 204; VF = 208
    def loader_setup():
        a("v_lshrrev_b32 v5, 3, v2")
        a("v_and_b32 v4, 7, v2")
        a("s_lshl_b32 s36, s3, 5")
        a("v_add_u32 v5, s36, v5")
        a("v_lshrrev_b32 v7, 4, v2")
        a("v_xor_b32 v7, v7, v4")
        a("v_mul_u32_u24 v6, 1152, v5")
        a("v_lshl_add_u32 v%d, v7, 4, v6" % VT)
        a("v_xor_b32 v%d, 64, v%d" % (VT + 1, VT))
        a("v_add_u32 v%d, %d, v%d" % (VT + 1, 9216 - 1024, VT + 1))
        a("v_add_u32 v%d, %d, v%d" % (VT + 2, 2 * (9216 - 1024), VT))
        a("v_add_u32 v%d, %d, v%d" % (VT + 3, 2 * (9216 - 1024), VT + 1))
        a("s_lshl_b32 s84, s3, 12")
        a("s_add_u32 s84, s84, %d" % RB)
        a("s_lshl_b32 s85, s3, 9")
        a("s_add_u32 s85, s85, %d" % (RB + TREG + 16384))
    def loader_setup2():
        for n in range(5):
            if n < 4:
                a("s_lshl_b32 s36, s3, 8")
                a("s_add_u32 s36, s36, %d" % (64 * n))
            else:
                a("s_lshl_b32 s36, s3, 5")
                a("s_add_u32 s36, s36, 1024")
            a("v_add_u32 v6, s36, v2")
            a("v_mul_u32_u24 v7, 3641, v6")
            a("v_lshrrev_b32 v7, 16, v7")
            a("v_mul_u32_u24 v8, 18, v7")
            a("v_sub_u32 v8, v6, v8")
            a("v_and_b32 v9, 35, v7")
            a("v_bfe_u32 v6, v7, 2, 2")
            a("v_lshl_add_u32 v9, v6, 3, v9")
            a("v_bfe_u32 v6, v7, 4, 1")
            a("v_lshl_add_u32 v9, v6, 2, v9")
            a("v_mul_u32_u24 v9, 9216, v9")
            a("v_lshl_add_u32 v%d, v8, 4, v9" % (VF + n))
            if 0 < n < 4: a("v_subrev_u32 v%d, %d, v%d" % (VF + n, 1024 * n, VF + n))
    def issueT(g):
        st = g % 9
        a("s_add_u32 s86, s84, %d" % ((g % R) * SLOT))
        a("s_mov_b32 m0, s86")
        a("s_add_u32 s87, s82, %d" % (128 * st))
        for n in range(4):
            a("buffer_load_dwordx4 v%d, s[28:31], s87 offen offset:%d lds" % (VT + n, 1024 * n))
    def issueF(g):
        st = g % 9
        a("s_add_u32 s86, s84, %d" % ((g % R) * SLOT + TREG))
        a("s_mov_b32 m0, s86")
        a("s_add_u32 s87, s83, %d" % (64 * 9216 * st + (4608 if g < 9 else 0)))
        for n in range(4):
            a("buffer_load_dwordx4 v%d, s[8:11], s87 offen offset:%d lds" % (VF + n, 1024 * n))
        a("s_add_u32 s86, s85, %d" % ((g % R) * SLOT))
        a("s_mov_b32 m0, s86")
        a("s_mov_b64 exec, 0xffffffff")
        a("buffer_load_dwordx4 v%d, s[8:11], s87 offen lds" % (VF + 4))
        a("s_mov_b64 exec, -1")
    def srds_main():
        srd(a, 28, 80, 2048 * 576 * 2)
        srd(a, 8, 4, 576 * 4608 * 2)
        srd(a, 12, 6, WS_BYTES)
        srd(a, 60, 18, 256)
        a("s_mul_i32 s82, s22, %d" % (128 * 1152))
        a("s_mul_i32 s83, s23, 288")
    ACC = 128; FB = [16, 52]; CS = 216; ONE = 236
    vTa = [4, 5]; vTb = [6, 7]; vF = 8; vFh = 9
    bTa = [88, 89]; bTb = [90, 91]; bF = 92; bFh = 93
    def mma_setup():
        a("v_lshrrev_b32 v10, 4, v2")
        a("v_lshrrev_b32 v11, 1, v3")
        a("v_xor_b32 v10, v10, v11")
        a("v_lshlrev_b32 v10, 4, v10")
        a("v_lshl_add_u32 v10, v3, 7, v10")
        a("s_lshl_b32 s26, s24, 13")
        a("s_add_u32 s26, s26, %d" % RB)
        a("v_add_u32 v10, s26, v10")
        a("s_lshl_b32 s26, s25, 12")
        a("v_add_u32 v%d, s26, v10" % bTa[0])
        a("s_xor_b32 s26, s26, 4096")
        a("v_add_u32 v%d, s26, v10" % bTb[0])
        a("v_xor_b32 v%d, 64, v%d" % (bTa[1], bTa[0]))
        a("v_xor_b32 v%d, 64, v%d" % (bTb[1], bTb[0]))
        a("v_lshrrev_b32 v10, 2, v2")
        a("v_mul_u32_u24 v10, %d, v10" % FS)
        a("v_and_b32 v11, 3, v2")
        a("v_lshl_add_u32 v10, v11, 3, v10")
        a("v_add_u32 v10, %d, v10" % (RB + TREG))
        a("s_mul_i32 s26, s25, 160")
        a("v_add_u32 v%d, s26, v10" % bF)
        a("v_add_u32 v%d, 128, v10" % bFh)
        for r in range(ACC, ACC + 72): a("v_mov_b32 v%d, 0" % r)
        for r in range(CS, CS + 20): a("v_mov_b32 v%d, 0" % r)
        for r in range(ONE, ONE + 4): a("v_mov_b32 v%d, 0x3f803f80" % r)
    def mma_addr(slot):
        a("s_mov_b32 s27, %d" % (slot * SLOT))
        for d, s_ in ((vTa[0], bTa[0]), (vTb[0], bTb[0]), (vTa[1], bTa[1]), (vTb[1], bTb[1]), (vF, bF), (vFh, bFh)):
            a("v_add_u32 v%d, s27, v%d" % (d, s_))
    core = G.Core(a, ACC, FB[0], FB[1], FS, TREG, vTa, vTb, vF, vFh)
    trk = core.trk
    a("s_cmp_eq_u32 s98, 0")
    a("s_cbranch_scc1 %s_A0" % name)
    a("s_setprio 3")
    loader_setup()
    a("s_waitcnt lgkmcnt(0)")
    srds_main()
    vm = VmTracker(a)
    def issue(g, vmx):
        issueT(g); issueF(g); vmx.issue("S%d" % g, 9)
    issueT(0)
    loader_setup2()
    issueF(0); vm.issue("S0", 9)
    issue(1, vm); issue(2, vm); issue(3, vm)
    a("s_add_u32 s3, s3, 4"); stamp_setup(a, 1); stamp(a, 0); a("s_sub_u32 s3, s3, 4")
    mma_setup()
    RA = 96; XB = 112
    for r in range(RA, RA + 16): a("v_mov_b32 v%d, 0" % r)
    a("v_lshrrev_b32 v10, 4, v2")
    a("v_lshrrev_b32 v11, 1, v3")
    a("v_xor_b32 v10, v10, v11")
    a("v_lshlrev_b32 v10, 4, v10")
    a("v_lshl_add_u32 v10, v3, 7, v10")
    a("v_add_u32 v12, s84, v10")
    a("v_xor_b32 v13, 64, v12")
    def rs_rd(g):
        a("v_add_u32 v10, %d, v12" % ((g % R) * SLOT))
        a("v_add_u32 v11, %d, v13" % ((g % R) * SLOT))
        for h in range(2):
            for n in range(2):
                a("ds_read_b128 %s, v%d offset:%d" % (vr(XB + 8 * h + 4 * n), 10 + h, 2048 * n))
    def rs_do():
        for h in range(2):
            for n in range(2):
                x = XB + 8 * h + 4 * n
                a("v_mfma_f32_16x16x32_bf16 %s, %s, %s, %s" % (vr(RA + 4 * n), vr(ONE), vr(x), vr(RA + 4 * n)))
                a("v_mfma_f32_16x16x32_bf16 %s, %s, %s, %s" % (vr(RA + 8 + 4 * n), vr(x), vr(x), vr(RA + 8 + 4 * n)))
    def interleave(dma, comp, vmx=None):
        groups = []; cur = []
        for l in dma:
            cur.append(l)
            if "buffer_load" in l and not any("exec, 0xffffffff" in x for x in cur[-2:]):
                groups.append(cur); cur = []
            elif "exec, -1" in l:
                groups.append(cur); cur = []
        if cur: groups.append(cur)
        ns = max(1, len(groups))
        per = (len(comp) + ns - 1) // ns
        for g in groups:
            a.lines.extend(g)
            a.lines.extend(comp[:per]); comp = comp[per:]
        a.lines.extend(comp)
    vm.wait(["S0"])
    a("s_barrier")
    stamp(a, 1)
    rs_rd(0)
    vm.wait(["S1"])
    a("s_barrier")
    for k in range(9):
        a("s_waitcnt lgkmcnt(0)")
        dma = capture(lambda: (issueT(k + 3), issueF(k + 3))) if k >= 1 else []
        interleave(dma, capture(rs_do))
        if k >= 1: vm.issue("S%d" % (k + 3), 9)
        if k < 8:
            rs_rd(k + 1)
        else:
            a("s_nop 7")
            a("v_lshrrev_b32 v10, 4, v2")
            a("v_lshrrev_b32 v11, 2, v3")
            a("v_and_b32 v12, 3, v3")
            for n in range(2):
                G_ = RA + 8 + 4 * n
                for r in range(1, 4):
                    a("v_cmp_eq_u32 vcc, %d, v12" % r)
                    a("s_nop 1")
                    a("v_cndmask_b32 v%d, v%d, v%d, vcc" % (G_, G_, G_ + r))
            ML = 112
            for n in range(2):
                emit_ln_finish(a, RA + 4 * n, RA + 8 + 4 * n, 576, ML + 2 * n, ML + 2 * n + 1, 120)
                a("v_mov_b32 v%d, v%d" % (117 + 2 * n, ML + 2 * n + 1))
                a("v_sub_f32 v%d, 0, v%d" % (116 + 2 * n, ML + 2 * n))
            a("s_lshl_b32 s35, s3, 8")
            a("v_lshlrev_b32 v13, 3, v3")
            a("v_add_u32 v12, s35, v13")
            a("v_cmp_eq_u32 vcc, v10, v11")
            a("s_and_saveexec_b64 s[36:37], vcc")
            for n in range(2):
                a("ds_write_b64 v12, %s offset:%d" % (vr(116 + 2 * n, 2), RST + 128 * n))
            a("s_mov_b64 exec, s[36:37]")
            a("s_cmp_lg_u32 s23, 0")
            a("s_cbranch_scc1 %s_nost1" % name)
            a("s_lshl_b32 s35, s22, 7")
            a("s_lshl_b32 s36, s3, 5")
            a("s_add_u32 s35, s35, s36")
            a("s_lshl_b32 s35, s35, 3")
            a("s_add_u32 s35, s35, 0x%x" % STATS1)
            a("v_mov_b32 v11, 0x7ffffff0")
            a("v_cndmask_b32 v13, v11, v13, vcc")
            for n in range(2):
                a("buffer_store_dwordx2 %s, v13, s[12:15], s35 offen offset:%d sc1" % (vr(ML + 2 * n, 2), 128 * n))
            a.label("%s_nost1" % name)
            mma_addr(9 % R)
            a("s_mov_b32 s33, 0")
            a("s_setprio 0")
        vm.wait(["S%d" % (k + 2)], "lgkmcnt(0)" if k == 8 else "")
        if k < 8: a("s_barrier")
    a("s_branch %s_mma" % name)
    a.label("%s_A0" % name)
    emit_code_prefetch(a, name)
    a("s_load_dwordx4 s[64:67], s[0:1], 8")
    a("s_load_dwordx2 s[76:77], s[0:1], 24")
    a("s_load_dwordx2 s[78:79], s[0:1], 64")
    mma_setup()
    loader_setup(); loader_setup2()
    a("s_waitcnt lgkmcnt(0)")
    srds_main()
    srd(a, 68, 66, 2048 * 576 * 2)
    a("s_mov_b32 s88, s64"); a("s_mov_b32 s89, s65")
    srd(a, 64, 88, 2048 * 576 * 2)
    srd(a, 72, 76, 576 * 8)
    stamp_setup(a, 1); stamp(a, 0)
    def gran_addr():
        a("v_lshrrev_b32 v10, 4, v2")
        a("s_lshl_b32 s36, s25, 1")
        a("v_add_u32 v11, s36, v10")
        a("v_and_b32 v11, 3, v11")
        a("v_lshl_add_u32 v11, v11, 4, v3")
        a("v_lshlrev_b32 v94, 8, v11")
        a("s_lshl_b32 s59, s22, 7")
        a("s_lshl_b32 s36, s24, 6")
        a("s_add_u32 s59, s59, s36")
        a("s_lshl_b32 s59, s59, 8")
        a("s_add_u32 s59, s59, 0x%x" % STATS2)
        a("s_lshl_b32 s36, s23, 1")
        a("s_add_u32 s36, s36, s25")
        a("s_lshl_b32 s36, s36, 3")
        a("s_add_u32 s58, s36, s59")
    gran_addr()
    a("v_mov_b32 v12, 0"); a("v_mov_b32 v13, 0x80000000")
    a("buffer_store_dwordx2 v[12:13], v94, s[12:15], s58 offen sc1")
    a("s_lshl_b32 s36, s22, 4")
    a("s_add_u32 s36, s36, s23")
    a("s_lshl_b32 s36, s36, 8")
    a("s_add_u32 s97, s36, 0x%x" % ZFLG)
    a("v_mov_b32 v10, %d" % LC)
    a("v_mov_b32 v12, 0"); a("v_mov_b32 v13, 0")
    a("s_mov_b64 exec, 1")
    a("buffer_store_dword v12, v12, s[12:15], s97 offen sc1")
    a("buffer_store_dword v12, v12, s[12:15], s97 offen offset:%d sc1" % PFL)
    a("s_mov_b64 exec, -1")
    a("ds_write_b64 v10, v[12:13]")
    a("ds_write_b64 v10, v[12:13] offset:8")
    a("ds_write_b64 v10, v[12:13] offset:16")
    a("ds_write_b64 v10, v[12:13] offset:24")
    mma_addr(0)
    a("s_mov_b32 s33, 0")
    a("s_waitcnt lgkmcnt(0)")
    a("s_barrier")
    stamp(a, 1)
    a.label("%s_mma" % name)
    core.prime(0, core.reads(0, 0))
    trk.drain()
    nocs = [False]
    def mfmas(buf):
        L = []
        for ft in range(5):
            A = core.F(buf, ft)
            for tt in range(4 if ft < 4 else 2):
                c = core.accr(ft, tt); B = core.T(buf, tt)
                L.append(("v_mfma_f32_16x16x32_bf16 %s, %s, %s, %s" % (vr(c), vr(A), vr(B), vr(c)), list(range(A, A + 4)) + list(range(B, B + 4))))
            if not nocs[0]: L.append(("v_mfma_f32_16x16x32_bf16 %s, %s, %s, %s" % (vr(CS + 4 * ft), vr(A), vr(ONE), vr(CS + 4 * ft)), list(range(A, A + 4))))
        return L
    def phase(buf, pend):
        for (m, regs) in mfmas(buf):
            trk.need(regs)
            a(m)
            while pend:
                k, t = pend.pop(0)
                if k == "x":
                    a(t)
                    if t.startswith("s_"): continue
                else:
                    a(t[0]); trk.issue(t[1])
                break
        for k, t in pend:
            if k == "x": a(t)
            else: a(t[0]); trk.issue(t[1])
    def iteration(vw=True):
        if vw: a("s_waitcnt vmcnt(0)")
        a("s_barrier")
        rd = [("r", t) for t in core.reads(1, 1)]
        upd = ["s_add_u32 s27, s27, %d" % SLOT, "s_cmp_eq_u32 s27, %d" % (R * SLOT), "s_cselect_b32 s27, 0, s27"]
        tail = ["v_add_u32 v%d, s27, v%d" % (d, s_) for d, s_ in ((vTa[0], bTa[0]), (vF, bF), (vTb[0], bTb[0]), (vFh, bFh))]
        phase(0, rd[:1] + [("x", u) for u in upd] + rd[1:] + [("x", u) for u in tail])
        rd = [("r", t) for t in core.reads(0, 0)]
        tail = ["v_add_u32 v%d, s27, v%d" % (d, s_) for d, s_ in ((vTa[1], bTa[1]), (vTb[1], bTb[1]))] + ["s_add_u32 s33, s33, 1"]
        phase(1, rd + [("x", u) for u in tail])
    a.label("%s_cloop" % name)
    lb = len(a.lines); iteration(); st = copy.deepcopy(trk.out); del a.lines[lb:]; trk.out = copy.deepcopy(st)
    iteration()
    assert [sorted(x) for x in trk.out] == [sorted(x) for x in st]
    a("s_cmp_lt_u32 s33, 9")
    a("s_cbranch_scc1 %s_cloop" % name)
    trk.drain()
    stamp(a, 2)
    MR = 100; T = 72; ZP = 16
    def epi_in():
        gelu_consts(a)
        a("s_lshl_b32 s36, s24, 9")
        a("s_lshl_b32 s37, s25, 8")
        a("s_add_u32 s38, s36, s37")
        a("s_xor_b32 s37, s37, 256")
        a("s_add_u32 s39, s36, s37")
        a("v_lshlrev_b32 v10, 3, v3")
        a("v_add_u32 v11, s38, v10")
        a("ds_read_b64 %s, v11 offset:%d" % (vr(MR, 2), RST))
        a("ds_read_b64 %s, v11 offset:%d" % (vr(MR + 2, 2), RST + 128))
        a("v_add_u32 v11, s39, v10")
        a("ds_read_b64 %s, v11 offset:%d" % (vr(MR + 4, 2), RST))
        a("ds_read_b64 %s, v11 offset:%d" % (vr(MR + 6, 2), RST + 128))
        a("s_waitcnt lgkmcnt(0)")
    S = [108, 110, 52, 54]; Q = [109, 111, 53, 55]
    def gelu_ft(ft, stats):
        tts = range(4 if ft < 4 else 2)
        a("s_call_b64 s[34:35], %s_gsub%d" % (name, ft))
        if stats:
            for d in range(2):
                for tt in tts:
                    p = ZP + 2 * tidx(ft, tt) + d
                    a("v_dot2_f32_bf16 v%d, v%d, v%d, v%d" % (S[tt], p, ONE, S[tt]))
                    a("v_dot2_f32_bf16 v%d, v%d, v%d, v%d" % (Q[tt], p, p, Q[tt]))
    a("s_cmp_eq_u32 s98, 0")
    a("s_cbranch_scc1 %s_A1" % name)
    a("s_barrier")
    a("s_load_dwordx4 s[64:67], s[0:1], 8")
    a("s_load_dwordx2 s[76:77], s[0:1], 24")
    a("s_load_dwordx2 s[94:95], s[0:1], 80")
    a("s_load_dwordx2 s[92:93], s[0:1], 72")
    epi_in()
    srd(a, 68, 66, 2048 * 576 * 2)
    a("s_mov_b32 s88, s64"); a("s_mov_b32 s89, s65")
    srd(a, 64, 88, 2048 * 576 * 2)
    srd(a, 72, 76, 576 * 8)
    srd(a, 76, 94, 2304 * 576 * 2)
    srd(a, 28, 92, 2048 * 2)
    a("v_and_b32 v0, 255, v0")
    a("s_mov_b32 s41, s2")
    KDB = 240
    emit_kv_loads(a, 112, 240, 248, 252, 253)
    a("s_cmp_ge_u32 s2, 32")
    a("s_cbranch_scc1 %s_kvp" % name)
    a("s_add_u32 s41, s2, 256")
    emit_kv_loads(a, 52, 63, 124, 71, 123)
    a.label("%s_kvp" % name)
    for ft in range(5): gelu_ft(ft, False)
    Z1R = 200; BI = 236
    for r_ in range(36): a("v_mov_b32 v%d, v%d" % (Z1R + r_, ZP + r_))
    stamp(a, 3)
    a("s_waitcnt vmcnt(0)")
    for n in range(11): a("v_mov_b32 v%d, v%d" % (16 + n, 112 + n))
    for n in range(8): a("v_mov_b32 v%d, v%d" % (32 + n, 240 + n))
    for n in range(4): a("v_mov_b32 v%d, v%d" % (44 + n, 248 + n))
    for r_ in range(6): a("v_mov_b32 v%d, v%d" % (240 + r_, 88 + r_))
    for r_ in range(20): a("v_mov_b32 v%d, v%d" % (128 + r_, 52 + r_))
    for r_ in range(5): a("v_mov_b32 v%d, v%d" % (148 + r_, 123 + r_))
    a("v_mov_b32 v56, v252"); a("v_mov_b32 v57, v253")
    a.label("%s_kvb" % name)
    emit_kv_compute(a, wait=False, store=False)
    a("s_mov_b32 s39, 0x%x" % KVT)
    a("buffer_store_dwordx4 v[120:123], v12, s[12:15], s39 offen sc1")
    a("buffer_store_dwordx4 v[124:127], v13, s[12:15], s39 offen sc1")
    a("s_cmp_lt_u32 s41, 256")
    a("s_cbranch_scc1 %s_kvbd" % name)
    a("s_mov_b32 s41, 0")
    for n in range(11): a("v_mov_b32 v%d, v%d" % (16 + n, 128 + n))
    for n in range(8): a("v_mov_b32 v%d, v%d" % (32 + n, 139 + n))
    for n in range(4): a("v_mov_b32 v%d, v%d" % (44 + n, 149 + n))
    a("v_mov_b32 v56, v147"); a("v_mov_b32 v57, v148")
    a("s_branch %s_kvb" % name)
    a.label("%s_kvbd" % name)
    for r_ in range(6): a("v_mov_b32 v%d, v%d" % (88 + r_, 240 + r_))
    a("s_mov_b32 s42, s2")
    emit_wot_loads(a, 100, 112, 720, 3)
    a("s_lshl_b32 s36, s22, 7")
    a("s_lshl_b32 s37, s24, 6")
    a("s_add_u32 s36, s36, s37")
    a("v_lshlrev_b32 v11, 1, v3")
    a("s_lshl_b32 s37, s25, 6")
    a("s_lshl_b32 s38, s36, 1")
    a("s_add_u32 s39, s38, s37")
    a("s_xor_b32 s37, s37, 64")
    a("s_add_u32 s36, s38, s37")
    a("buffer_load_ushort v96, v11, s[28:31], s39 offen")
    a("buffer_load_ushort v97, v11, s[28:31], s39 offen offset:32")
    a("buffer_load_ushort v98, v11, s[28:31], s36 offen")
    a("buffer_load_ushort v99, v11, s[28:31], s36 offen offset:32")
    for r in range(ACC, ACC + 72): a("v_mov_b32 v%d, 0" % r)
    a("v_lshrrev_b32 v10, 2, v2")
    a("v_lshlrev_b32 v10, 5, v10")
    a("v_and_b32 v11, 3, v2")
    a("v_lshl_add_u32 v10, v11, 3, v10")
    a("v_add_u32 v10, %d, v10" % (RB + TREG))
    a("s_mul_i32 s26, s25, 10240")
    a("v_add_u32 v%d, s26, v10" % bF)
    a("v_add_u32 v%d, 8192, v10" % bFh)
    core.FS = 32; core.FT = 2048
    mma_addr(0)
    a("s_mov_b32 s33, 0")
    stamp(a, 4)
    a("s_barrier")
    stamp(a, 5)
    core.prime(0, core.reads(0, 0))
    trk.drain()
    nocs[0] = True
    a.label("%s_gloop" % name)
    lb = len(a.lines); iteration(False); st = copy.deepcopy(trk.out); del a.lines[lb:]; trk.out = copy.deepcopy(st)
    iteration(False)
    assert [sorted(x) for x in trk.out] == [sorted(x) for x in st]
    a("s_cmp_lg_u32 s33, 3")
    a("s_cbranch_scc1 %s_ghk0" % name)
    a("s_waitcnt vmcnt(0)")
    for n in range(3):
        a("buffer_store_dwordx4 %s, v%d, s[12:15], s40 offen sc1" % (vr(100 + 4 * n), 112 + n))
    for tt in range(4): a("v_lshlrev_b32 v%d, 16, v%d" % (BI + 2 * tt, 96 + tt))
    a.label("%s_ghk0" % name)
    a("s_cmp_lg_u32 s33, 6")
    a("s_cbranch_scc1 %s_ghk" % name)
    a("s_waitcnt vmcnt(0)")
    a("v_mov_b32 v10, %d" % (LC + 8))
    a("v_mov_b32 v11, 1")
    a("s_mov_b64 exec, 1")
    a("ds_add_rtn_u32 v12, v10, v11")
    a("s_waitcnt lgkmcnt(0)")
    a("v_readfirstlane_b32 s36, v12")
    a("s_cmp_lg_u32 s36, 3")
    a("s_cbranch_scc1 %s_nokvs" % name)
    a("s_and_b32 s36, s2, 15")
    a("s_lshl_b32 s36, s36, 2")
    a("s_add_u32 s36, s36, 128")
    a("v_mov_b32 v10, s36")
    a("buffer_atomic_add v11, v10, s[60:63], 0 offen sc1")
    a.label("%s_nokvs" % name)
    a("s_mov_b64 exec, -1")
    a.label("%s_ghk" % name)
    a("s_cmp_lg_u32 s33, 24")
    a("s_cbranch_scc1 %s_ghk2" % name)
    a("v_lshlrev_b32 v10, 2, v3")
    a("buffer_load_dword v254, v10, s[60:63], 0 offen offset:128 sc1")
    a.label("%s_ghk2" % name)
    a("s_cmp_lt_u32 s33, 32")
    a("s_cbranch_scc1 %s_gloop" % name)
    trk.drain()
    stamp(a, 6)
    G3.emit_k2_epilogue2(a, core, Z1R, BI, " sc1")
    stamp(a, 7)
    a("s_setprio 3")
    a("s_lshl_b32 s36, s22, 4")
    a("s_add_u32 s36, s36, s23")
    a("s_lshl_b32 s36, s36, 8")
    a("s_add_u32 s97, s36, 0x%x" % (ZFLG + PFL))
    c_common()
    a("v_lshlrev_b32 v14, 4, v2")
    a("s_mul_i32 s26, s22, %d" % (36 * 8192))
    a("s_lshl_b32 s24, s3, 12")
    a("s_add_u32 s26, s26, s24")
    a("s_add_u32 s26, s26, 0x%x" % PIMG)
    a("s_mul_i32 s27, s23, %d" % (18 * 20480))
    a("s_mul_i32 s25, s3, 5120")
    a("s_add_u32 s27, s27, s25")
    a("s_add_u32 s27, s27, 0x%x" % WOT)
    a("s_add_u32 s25, s25, %d" % CTREG)
    a("v_and_b32 v28, 15, v2")
    a("v_lshlrev_b32 v30, 2, v28")
    a("v_mov_b32 v26, %d" % LC)
    a("v_mov_b32 v27, 1")
    a("s_waitcnt vmcnt(0)")
    a("v_mov_b32 v31, v254")
    a("s_mov_b64 exec, 1")
    a("ds_add_rtn_u32 v29, v26, v27 offset:16")
    a("s_waitcnt lgkmcnt(0)")
    a("v_readfirstlane_b32 s36, v29")
    a("s_cmp_lg_u32 s36, 3")
    a("s_cbranch_scc1 %s_nops" % name)
    a("v_mov_b32 v29, 0")
    a("buffer_store_dword v27, v29, s[12:15], s97 offen sc1")
    a.label("%s_nops" % name)
    a("s_mov_b64 exec, -1")
    a("s_mov_b32 s34, 0")
    a.label("%s_cw" % name)
    a("ds_read_b32 v29, v26 offset:16")
    a("s_add_u32 s34, s34, 1")
    a("s_waitcnt lgkmcnt(0)")
    a("v_readfirstlane_b32 s36, v29")
    a("s_cmp_gt_u32 s34, %d" % (SPIN_MAX * 20))
    a("s_cbranch_scc1 %s_cwx" % name)
    a("s_cmp_ge_u32 s36, 4")
    a("s_cbranch_scc1 %s_cwx" % name)
    a("s_sleep 1")
    a("s_branch %s_cw" % name)
    a.label("%s_cwx" % name)
    a("s_mov_b32 s34, 0")
    a.label("%s_cp" % name)
    a("v_cmp_gt_u32 vcc, 16, v31")
    a("s_add_u32 s34, s34, 1")
    a("s_cmp_gt_u32 s34, %d" % SPIN_MAX)
    a("s_cbranch_scc1 %s_cpx" % name)
    a("s_cbranch_vccz %s_cpx" % name)
    a("s_sleep 32")
    a("buffer_load_dword v31, v30, s[60:63], 0 offen offset:128 sc1")
    a("s_waitcnt vmcnt(0)")
    a("s_branch %s_cp" % name)
    a.label("%s_cpx" % name)
    def cF(off, soff):
        a("s_add_u32 s36, s25, %s" % off)
        a("s_mov_b32 m0, s36")
        a("s_add_u32 s37, %s, 4096" % soff)
        for n in range(4):
            a("buffer_load_dwordx4 v14, s[12:15], %s offen offset:%d sc1 lds" % (soff, n * 1024))
        a("s_add_u32 s36, s36, 4096")
        a("s_mov_b32 m0, s36")
        a("s_nop 0")
        a("buffer_load_dwordx4 v14, s[12:15], s37 offen sc1 lds")
    def cT(off, soff):
        a("s_add_u32 s35, s24, %s" % off)
        a("s_mov_b32 m0, s35")
        a("s_nop 0")
        for n in range(4):
            a("buffer_load_dwordx4 v14, s[12:15], %s offen offset:%d sc1 lds" % (soff, n * 1024))
    a("s_add_u32 s38, s27, 20480")
    cF(str(C0), "s27"); cF(str(C0 + CSL), "s38")
    a("s_mov_b32 s34, 0")
    a("s_cmp_lg_u32 s3, 0")
    a("s_cbranch_scc1 %s_cpl" % name)
    a("v_lshlrev_b32 v28, 8, v28")
    a("s_lshr_b32 s39, s22, 1")
    a("s_lshl_b32 s39, s39, 12")
    a("s_add_u32 s39, s39, 0x%x" % (ZFLG + PFL))
    a.label("%s_cpz" % name)
    a("buffer_load_dword v29, v28, s[12:15], s39 offen sc1")
    a("s_add_u32 s34, s34, 1")
    a("s_waitcnt vmcnt(0)")
    a("v_cmp_ne_u32 vcc, 1, v29")
    a("s_cmp_gt_u32 s34, %d" % SPIN_MAX)
    a("s_cbranch_scc1 %s_cpzx" % name)
    a("s_cbranch_vccz %s_cpzx" % name)
    a("s_sleep 8")
    a("s_branch %s_cpz" % name)
    a.label("%s_cpzx" % name)
    a("ds_write_b32 v26, v27 offset:24")
    a("s_branch %s_cgo" % name)
    a.label("%s_cpl" % name)
    a("ds_read_b32 v29, v26 offset:24")
    a("s_add_u32 s34, s34, 1")
    a("s_waitcnt lgkmcnt(0)")
    a("v_readfirstlane_b32 s36, v29")
    a("s_cmp_gt_u32 s34, %d" % (SPIN_MAX * 20))
    a("s_cbranch_scc1 %s_cgo" % name)
    a("s_cmp_lg_u32 s36, 0")
    a("s_cbranch_scc1 %s_cgo" % name)
    a("s_sleep 2")
    a("s_branch %s_cpl" % name)
    a.label("%s_cgo" % name)
    stamp(a, 8)
    a("s_add_u32 s38, s26, 16384")
    cT(str(C0), "s26"); cT(str(C0 + CSL), "s38")
    a("s_add_u32 s26, s26, 32768")
    a("s_add_u32 s27, s27, 40960")
    a("s_mov_b32 s33, %d" % RB)
    def cissue():
        cT("s33", "s26"); cF("s33", "s27")
        a("s_add_u32 s26, s26, 16384")
        a("s_add_u32 s27, s27, 20480")
        a("s_add_u32 s33, s33, %d" % CSL)
        a("s_cmp_eq_u32 s33, %d" % CW)
        a("s_cselect_b32 s33, %d, s33" % RB)
    a("s_waitcnt vmcnt(4)")
    a("s_barrier")
    cissue(); cissue()
    a("s_waitcnt vmcnt(18)")
    a("s_barrier")
    a("s_mov_b32 s34, 0")
    a.label("%s_clloop" % name)
    cissue()
    a("s_cmp_lg_u32 s34, 11")
    a("s_cbranch_scc1 %s_cl1" % name)
    a("buffer_load_dword v31, v30, s[60:63], 0 offen offset:192 sc1")
    a("s_waitcnt vmcnt(19)")
    a("s_branch %s_cl2" % name)
    a.label("%s_cl1" % name)
    a("s_waitcnt vmcnt(18)")
    a.label("%s_cl2" % name)
    a("s_barrier")
    a("s_add_u32 s34, s34, 1")
    a("s_cmp_lt_u32 s34, 14")
    a("s_cbranch_scc1 %s_clloop" % name)
    a("s_mov_b32 s34, 0")
    a.label("%s_cy" % name)
    a("v_cmp_gt_u32 vcc, 16, v31")
    a("s_add_u32 s34, s34, 1")
    a("s_cmp_gt_u32 s34, %d" % SPIN_MAX)
    a("s_cbranch_scc1 %s_cyx" % name)
    a("s_cbranch_vccz %s_cyx" % name)
    a("s_sleep 32")
    a("buffer_load_dword v31, v30, s[60:63], 0 offen offset:192 sc1")
    a("s_waitcnt vmcnt(0)")
    a("s_branch %s_cy" % name)
    a.label("%s_cyx" % name)
    a("v_lshrrev_b32 v3, 3, v2")
    a("v_and_b32 v4, 7, v2")
    a("v_lshlrev_b32 v4, 4, v4")
    a("s_mul_i32 s33, s52, 144")
    a("s_mul_i32 s34, s53, 80")
    a("s_lshl_b32 s35, s22, 7")
    a("s_add_u32 s35, s35, 0x%x" % YT)
    for n in range(3):
        a("s_add_u32 s36, s3, %d" % (4 * n))
        if n == 2: a("s_min_u32 s36, s36, 9")
        a("s_lshl_b32 s37, s36, 3")
        a("s_add_u32 s38, s37, s33")
        if n < 2: a("s_add_u32 s38, s38, s34")
        a("v_add_u32 v5, s38, v3")
        a("v_lshl_add_u32 v5, v5, 12, v4")
        a("s_lshl_b32 s36, s36, 10")
        a("s_add_u32 s36, s36, %d" % YOFF)
        a("s_mov_b32 m0, s36")
        a("s_nop 0")
        a("buffer_load_dwordx4 v5, s[12:15], s35 offen sc1 lds")
    fin_loads()
    a("s_waitcnt vmcnt(%d)" % (9 + 7))
    a("s_barrier")
    a("s_waitcnt vmcnt(7)")
    a("s_barrier")
    a("s_barrier")
    a("s_setprio 0")
    a("s_waitcnt vmcnt(0)")
    a("s_branch %s_cfin" % name)
    a.label("%s_A1" % name)
    a("s_setprio 2")
    vmA = VmTracker(a)
    PB = 132
    def aux_head():
        epi_in()
        for tt in range(4):
            a("v_mov_b32 v%d, 0" % S[tt]); a("v_mov_b32 v%d, 0" % Q[tt])
    def aux_pub():
        a("s_nop 2")
        emit_xg_reduce(a, S + Q, 72)
        a("v_lshrrev_b32 v10, 4, v2")
        for g in range(1, 4):
            a("v_cmp_eq_u32 vcc, %d, v10" % g)
            a("s_nop 1")
            a("v_cndmask_b32 v%d, v%d, v%d, vcc" % (S[0], S[0], S[g]))
            a("v_cndmask_b32 v%d, v%d, v%d, vcc" % (Q[0], Q[0], Q[g]))
        a("v_and_b32 v%d, 0x7fffffff, v%d" % (Q[0], Q[0]))
        a("buffer_store_dwordx2 v[%d:%d], v94, s[12:15], s58 offen sc1" % (S[0], Q[0]))
    chunks = [capture(aux_head) + capture(gelu_ft, 0, True), capture(gelu_ft, 1, True), capture(gelu_ft, 2, True),
              capture(gelu_ft, 3, True), capture(gelu_ft, 4, True) + capture(aux_pub)]
    KD = 172
    for k in range(9, 18):
        a("s_barrier")
        if k == 9:
            a("s_cmp_lg_u32 s3, 0")
            a("s_cbranch_scc1 %s_nosig" % name)
            a("v_mov_b32 v10, 1")
            a("s_lshl_b32 s36, s22, 2")
            a("v_mov_b32 v11, s36")
            a("s_mov_b64 exec, 1")
            a("buffer_atomic_add v10, v11, s[60:63], 0 offen sc1")
            a("s_mov_b64 exec, -1")
            a.label("%s_nosig" % name)
        g = k + 3
        dma = capture(lambda: (issueT(g), issueF(g))) if g < 18 else []
        comp = chunks[k - 9] if k - 9 < len(chunks) else []
        a.lines.extend(dma); a.lines.extend(comp)
        if k == 13: vmA.issue("pub", 1)
        if g < 18: vmA.issue("S%d" % g, 9)
        if k == 14:
            srd(a, 92, 78, 2048 * 2048 * 2)
            a("v_lshrrev_b32 v10, 4, v2")
            a("v_lshlrev_b32 v10, 12, v10")
            a("v_lshl_add_u32 v10, v3, 4, v10")
            a("s_lshl_b32 s40, s22, 7")
            a("s_lshl_b32 s36, s3, 5")
            a("s_add_u32 s40, s40, s36")
            a("s_lshl_b32 s40, s40, 12")
            a("s_lshl_b32 s36, s23, 8")
            a("s_add_u32 s40, s40, s36")
            for n in range(8):
                a("buffer_load_dwordx4 v[200:203], v10, s[92:95], s40 offen")
                if n < 7: a("s_add_u32 s40, s40, 16384")
            vmA.issue("wp", 8)
            a("s_lshl_b32 s36, s22, 2")
            a("v_mov_b32 v199, s36")
            a("buffer_load_dword v198, v199, s[60:63], 0 offen sc1"); vmA.issue("cnt", 1)
        if k + 2 < 18 and k + 2 >= 12:
            vmA.wait(["S%d" % (k + 2)])
    a("s_barrier")
    stamp(a, 3)
    a("s_load_dwordx4 s[88:91], s[0:1], 32")
    a("v_lshrrev_b32 v10, 4, v2")
    a("v_lshlrev_b32 v95, 8, v3")
    a("v_lshl_add_u32 v95, v10, 6, v95")
    a("s_lshl_b32 s33, s25, 13")
    a("s_add_u32 s52, s59, s33")
    a("s_xor_b32 s33, s33, 8192")
    a("s_add_u32 s53, s59, s33")
    a("s_add_u32 s42, s52, 4096")
    a("s_add_u32 s43, s53, 4096")
    Z2 = ZP
    a("s_waitcnt vmcnt(0)")
    GB = [128, 144, 160, 176]
    a("v_mov_b32 v4, v95")
    def gather():
        for tt in range(4):
            for q in range(4):
                a("buffer_load_dwordx4 %s, v4, s[12:15], s%d offen offset:%d sc1" % (vr(GB[tt] + 4 * q), (52, 42, 53, 43)[tt], 16 * q))
    gather()
    a("s_mov_b32 s40, 0")
    a("s_waitcnt vmcnt(0)")
    a.label("%s_chk" % name)
    a("v_subrev_u32 v11, 16, v198")
    for tt in range(4):
        for r in range(GB[tt] + 1, GB[tt] + 16, 4):
            a("v_or3_b32 v11, v11, v%d, v%d" % (r, r + 2))
    a("v_cmp_gt_i32 vcc, 0, v11")
    a("s_add_u32 s40, s40, 1")
    a("s_cmp_gt_u32 s40, %d" % SPIN_MAX)
    a("s_cbranch_scc1 %s_ok" % name)
    a("s_cbranch_vccz %s_ok" % name)
    a("s_sleep 32")
    a("buffer_load_dword v198, v199, s[60:63], 0 offen sc1")
    a("s_waitcnt vmcnt(0)")
    gather()
    a("s_waitcnt vmcnt(0)")
    a("s_branch %s_chk" % name)
    a.label("%s_ok" % name)
    stamp(a, 5)
    for tt in range(4):
        b = GB[tt]
        for st_ in (8, 4, 2):
            for q in range(0, st_, 2):
                a("v_pk_add_f32 %s, %s, %s" % (vr(b + q, 2), vr(b + q, 2), vr(b + q + st_, 2)))
    emit_xg_reduce(a, [GB[tt] + e for tt in range(4) for e in range(2)], 72)
    for tt in range(4):
        b = GB[tt]
        emit_ln_finish(a, b, b + 1, 2304, b + 2, MR + 2 * tt, b + 4)
        a("v_mul_f32 v%d, -v%d, v%d" % (MR + 2 * tt + 1, b + 2, MR + 2 * tt))
    a("v_lshrrev_b32 v10, 4, v2")
    a("v_lshrrev_b32 v11, 2, v2"); a("v_and_b32 v11, 1, v11"); a("v_lshlrev_b32 v11, 4, v11")
    a("v_lshrrev_b32 v5, 3, v2"); a("v_and_b32 v5, 1, v5"); a("v_lshl_add_u32 v11, v5, 2, v11")
    a("v_and_b32 v5, 3, v2"); a("v_add_u32 v11, v11, v5")
    a("v_and_b32 v5, 1, v10")
    a("v_lshl_add_u32 v11, v5, 3, v11")
    a("v_lshlrev_b32 v11, 5, v11")
    a("v_lshrrev_b32 v5, 1, v10")
    a("v_lshl_add_u32 v6, v5, 4, v11")
    a("s_lshl_b32 s33, s23, 5")
    a("s_lshl_b32 s36, s22, 1")
    a("s_add_u32 s33, s33, s36")
    a("s_add_u32 s33, s33, s24")
    a("s_mul_i32 s33, s33, 18432")
    if ZIMG: a("s_add_u32 s33, s33, 0x%x" % ZIMG)
    a("s_lshl_b32 s36, s25, 10")
    a("s_add_u32 s39, s33, s36")
    a("s_add_u32 s39, s39, 8192")
    a("s_mul_i32 s38, s25, 10240")
    a("s_add_u32 s33, s33, s38")
    a("s_add_u32 s37, s33, s36")
    a("s_xor_b32 s36, s36, 1024")
    a("s_add_u32 s38, s33, s36")
    a("s_add_u32 s33, s37, 4096")
    a("s_add_u32 s36, s38, 4096")
    def norm_pair(nA, ttA, nB, ttB, O):
        for q, (n, tt) in enumerate(((nA, ttA), (nB, ttB))):
            for d in range(2):
                z = Z2 + 2 * n + d; t = T + 4 * q + 2 * d
                a("v_lshlrev_b32 v%d, 16, v%d" % (t, z))
                a("v_and_b32 v%d, 0xffff0000, v%d" % (t + 1, z))
        for q, (n, tt) in enumerate(((nA, ttA), (nB, ttB))):
            for d in range(2):
                t = T + 4 * q + 2 * d
                a("v_pk_fma_f32 %s, %s, %s, %s op_sel:[0,0,1] op_sel_hi:[1,0,1]" % (vr(t, 2), vr(t, 2), vr(MR + 2 * tt, 2), vr(MR + 2 * tt, 2)))
        for q in range(2):
            for d in range(2):
                t = T + 4 * q + 2 * d
                a("v_cvt_pk_bf16_f32 v%d, v%d, v%d" % (O + 2 * q + d, t, t + 1))
        a("s_nop 1")
        a("v_permlane16_swap_b32 v%d, v%d" % (O, O + 2))
        a("v_permlane16_swap_b32 v%d, v%d" % (O + 1, O + 3))
    cnt = 0
    for ft in range(4):
        for pp in range(2):
            O = 200 + 4 * cnt; cnt += 1
            norm_pair(tidx(ft, 2 * pp), 2 * pp, tidx(ft, 2 * pp + 1), 2 * pp + 1, O)
            a("s_nop 0")
            a("buffer_store_dwordx4 %s, v6, s[12:15], s%d offen offset:%d sc1" % (vr(O), ((37, 38), (33, 36))[ft >> 1][pp], (ft & 1) * 2048))
    O = 200 + 4 * cnt
    norm_pair(16, 0, 17, 1, O)
    a("s_nop 0")
    a("buffer_store_dwordx4 %s, v6, s[12:15], s39 offen sc1" % vr(O))
    stamp(a, 6)
    a("s_setprio 3")
    srd(a, 8, 78, 2048 * 2048 * 2)
    a("v_lshrrev_b32 v3, 3, v2")
    a("s_lshl_b32 s24, s3, 5")
    a("v_add_u32 v3, s24, v3")
    a("v_and_b32 v4, 7, v2")
    a("v_lshrrev_b32 v6, 4, v2")
    a("v_xor_b32 v6, v6, v4")
    a("v_lshlrev_b32 v6, 4, v6")
    a("v_lshl_add_u32 v10, v3, 12, v6")
    a("v_xor_b32 v11, 64, v10")
    a("v_add_u32 v11, %d, v11" % (32768 - 1024))
    a("v_add_u32 v12, %d, v10" % (2 * (32768 - 1024)))
    a("v_add_u32 v13, %d, v11" % (2 * (32768 - 1024)))
    a("v_lshlrev_b32 v14, 4, v2")
    a("s_lshl_b32 s26, s22, 19")
    a("s_mul_i32 s27, s23, %d" % (32 * 18432))
    a("s_lshl_b32 s24, s3, 12")
    a("s_add_u32 s27, s27, s24")
    if ZIMG: a("s_add_u32 s27, s27, 0x%x" % ZIMG)
    a("s_lshl_b32 s25, s3, 9")
    a("s_sub_u32 s32, s25, s24")
    a("s_add_u32 s32, s32, 16384")
    a("s_add_u32 s24, s24, %d" % RB)
    a("s_waitcnt vmcnt(0) lgkmcnt(0)")
    a("v_mov_b32 v26, %d" % LC)
    a("v_mov_b32 v27, 1")
    a("s_mov_b64 exec, 1")
    a("ds_add_rtn_u32 v28, v26, v27")
    a("s_waitcnt lgkmcnt(0)")
    a("v_readfirstlane_b32 s36, v28")
    a("s_cmp_lg_u32 s36, 3")
    a("s_cbranch_scc1 %s_nozs" % name)
    a("v_mov_b32 v28, 0")
    a("buffer_store_dword v27, v28, s[12:15], s97 offen sc1")
    a.label("%s_nozs" % name)
    a("s_mov_b64 exec, -1")
    stamp(a, 7)
    srd(a, 16, 88, 576 * 2048 * 2)
    srd(a, 84, 90, 576 * 2)
    for g in range(4):
        a("s_add_u32 s35, s24, %d" % (g * SLOT))
        a("s_mov_b32 m0, s35")
        a("s_add_u32 s36, s26, %d" % (128 * g))
        for n in range(4):
            a("buffer_load_dwordx4 v%d, s[8:11], s36 offen offset:%d lds" % (10 + n, n * 1024))
    a("s_mov_b32 s34, 0")
    a("s_cmp_lg_u32 s3, 0")
    a("s_cbranch_scc1 %s_pl" % name)
    a("v_and_b32 v28, 15, v2")
    a("v_lshlrev_b32 v30, 2, v28")
    a("v_lshlrev_b32 v28, 12, v28")
    a("s_lshl_b32 s52, s23, 8")
    a("s_add_u32 s52, s52, 0x%x" % ZFLG)
    a.label("%s_pz0" % name)
    a("buffer_load_dword v31, v30, s[60:63], 0 offen sc1")
    a("s_add_u32 s34, s34, 1")
    a("s_waitcnt vmcnt(0)")
    a("v_cmp_gt_u32 vcc, 16, v31")
    a("s_cmp_gt_u32 s34, %d" % SPIN_MAX)
    a("s_cbranch_scc1 %s_pz" % name)
    a("s_cbranch_vccz %s_pz" % name)
    a("s_sleep 32")
    a("s_branch %s_pz0" % name)
    a.label("%s_pz" % name)
    a("buffer_load_dword v29, v28, s[12:15], s52 offen sc1")
    a("s_add_u32 s34, s34, 1")
    a("s_waitcnt vmcnt(0)")
    a("v_cmp_ne_u32 vcc, 1, v29")
    a("s_cmp_gt_u32 s34, %d" % SPIN_MAX)
    a("s_cbranch_scc1 %s_pzx" % name)
    a("s_cbranch_vccz %s_pzx" % name)
    a("s_sleep 8")
    a("s_branch %s_pz" % name)
    a.label("%s_pzx" % name)
    a("v_mov_b32 v27, 1")
    a("ds_write_b32 v26, v27 offset:4")
    a("s_branch %s_pgo" % name)
    a.label("%s_pl" % name)
    a("ds_read_b32 v27, v26 offset:4")
    a("s_add_u32 s34, s34, 1")
    a("s_waitcnt lgkmcnt(0)")
    a("v_readfirstlane_b32 s36, v27")
    a("s_cmp_gt_u32 s34, %d" % (SPIN_MAX * 20))
    a("s_cbranch_scc1 %s_pgo" % name)
    a("s_cmp_lg_u32 s36, 0")
    a("s_cbranch_scc1 %s_pgo" % name)
    a("s_sleep 2")
    a("s_branch %s_pl" % name)
    a.label("%s_pgo" % name)
    stamp(a, 8)
    for g in range(4):
        a("s_add_u32 s35, s24, %d" % (g * SLOT + TREG))
        a("s_mov_b32 m0, s35")
        a("s_add_u32 s36, s27, %d" % (18432 * g))
        a("s_add_u32 s37, s36, s32")
        for n in range(4):
            a("buffer_load_dwordx4 v14, s[12:15], s36 offen offset:%d sc1 lds" % (n * 1024))
        a("s_add_u32 s35, s35, s32")
        a("s_mov_b32 m0, s35")
        a("s_mov_b64 exec, 0xffffffff")
        a("buffer_load_dwordx4 v14, s[12:15], s37 offen sc1 lds")
        a("s_mov_b64 exec, -1")
    a("s_add_u32 s26, s26, 512")
    a("s_add_u32 s27, s27, %d" % (4 * 18432))
    a("s_mov_b32 s33, 0")
    a("s_lshl_b32 s43, s2, 2")
    a("s_add_u32 s43, s43, s3")
    a("s_and_b32 s53, s43, 1")
    a("s_sub_u32 s36, s43, 448")
    a("s_lshr_b32 s37, s43, 1")
    a("s_cmp_ge_u32 s43, 896")
    a("s_cselect_b32 s43, s36, s37")
    a("s_cselect_b32 s53, 2, s53")
    a("s_waitcnt vmcnt(15)")
    a("s_barrier")
    a("s_waitcnt vmcnt(10)")
    a("s_barrier")
    a("s_waitcnt vmcnt(5)")
    a("s_barrier")
    a("s_mov_b32 s34, 4")
    def issue2():
        a("s_add_u32 s35, s33, s24")
        a("s_mov_b32 m0, s35")
        a("s_add_u32 s36, s35, %d" % TREG)
        for n in range(4):
            a("buffer_load_dwordx4 v%d, s[8:11], s26 offen offset:%d lds" % (10 + n, n * 1024))
        a("s_mov_b32 m0, s36")
        a("s_add_u32 s37, s27, s32")
        for n in range(4):
            a("buffer_load_dwordx4 v14, s[12:15], s27 offen offset:%d sc1 lds" % (n * 1024))
        a("s_add_u32 s36, s36, s32")
        a("s_mov_b32 m0, s36")
        a("s_mov_b64 exec, 0xffffffff")
        a("buffer_load_dwordx4 v14, s[12:15], s37 offen sc1 lds")
        a("s_mov_b64 exec, -1")
        a("s_add_u32 s26, s26, 128")
        a("s_add_u32 s27, s27, 18432")
        a("s_add_u32 s33, s33, %d" % SLOT)
        a("s_cmp_eq_u32 s33, %d" % (R * SLOT))
        a("s_cselect_b32 s33, 0, s33")
    a.label("%s_lloop" % name)
    issue2()
    a("s_cmp_eq_u32 s34, 18")
    a("s_cbranch_scc1 %s_hk1" % name)
    a("s_cmp_eq_u32 s34, 21")
    a("s_cbranch_scc1 %s_hk2" % name)
    a("s_waitcnt vmcnt(9)")
    a.label("%s_lcont" % name)
    a("s_barrier")
    a("s_add_u32 s34, s34, 1")
    a("s_cmp_lt_u32 s34, 32")
    a("s_cbranch_scc1 %s_lloop" % name)
    a("s_branch %s_ldone" % name)
    a.label("%s_hk1" % name)
    a("v_and_b32 v28, 15, v2")
    a("v_lshlrev_b32 v28, 2, v28")
    a("buffer_load_dword v29, v28, s[60:63], 0 offen offset:128 sc1")
    a("s_waitcnt vmcnt(10)")
    a("s_branch %s_lcont" % name)
    a.label("%s_hk2" % name)
    a("s_mov_b32 s52, 0")
    a.label("%s_hk2l" % name)
    a("v_cmp_gt_u32 vcc, 16, v29")
    a("s_add_u32 s52, s52, 1")
    a("s_cmp_gt_u32 s52, %d" % SPIN_MAX)
    a("s_cbranch_scc1 %s_hk2g" % name)
    a("s_cbranch_vccz %s_hk2g" % name)
    a("s_sleep 16")
    a("buffer_load_dword v29, v28, s[60:63], 0 offen offset:128 sc1")
    a("s_waitcnt vmcnt(0)")
    a("s_branch %s_hk2l" % name)
    a.label("%s_hk2g" % name)
    nconv = emit_conv_loads(a, " sc1")
    a("s_waitcnt vmcnt(%d)" % (9 + nconv))
    a("s_branch %s_lcont" % name)
    a.label("%s_ldone" % name)
    a("s_waitcnt vmcnt(0)")
    a("s_barrier")
    a("s_mov_b32 s26, s53")
    a("s_and_b32 s27, s3, 1")
    a("s_mul_i32 s27, s27, %d" % CJ_SIZE)
    a("s_lshr_b32 s36, s3, 1")
    a("s_mul_i32 s36, s36, %d" % SLOT)
    a("s_add_u32 s27, s27, s36")
    a("s_add_u32 s27, s27, %d" % RB)
    def mid():
        a("s_barrier")
        a("s_setprio 0")
    sv = set(DBG); DBG.discard("stamp")
    lb_ = len(a.lines)
    emit_conv_job(a, name, mid)
    for n_ in range(lb_, len(a.lines)):
        if "buffer_store_dwordx2" in a.lines[n_]: a.lines[n_] += " sc1"
    DBG.update(sv)
    stamp(a, 9)
    c_common()
    cTa = [4, 4]; cTb = [6, 6]; cF_ = 8; cFh = 9
    kTa = 88; kTb = 90; kF = 92; kFh = 93
    a("v_and_b32 v3, 15, v2")
    a("v_lshrrev_b32 v10, 5, v2")
    a("v_lshlrev_b32 v10, 11, v10")
    a("v_bfe_u32 v11, v2, 4, 1")
    a("v_lshl_add_u32 v10, v11, 4, v10")
    a("v_lshl_add_u32 v10, v3, 5, v10")
    a("s_lshl_b32 s26, s3, 12")
    a("v_add_u32 v10, s26, v10")
    a("s_lshl_b32 s26, s53, 10")
    a("v_add_u32 v%d, s26, v10" % kTa)
    a("s_xor_b32 s26, s26, 1024")
    a("v_add_u32 v%d, s26, v10" % kTb)
    a("v_lshrrev_b32 v10, 2, v2")
    a("v_mul_u32_u24 v10, %d, v10" % CFS)
    a("v_and_b32 v11, 3, v2")
    a("v_lshl_add_u32 v10, v11, 3, v10")
    a("s_mul_i32 s26, s3, %d" % (32 * CFS))
    a("s_add_u32 s26, s26, %d" % CTREG)
    a("v_add_u32 v%d, s26, v10" % kF)
    a("v_add_u32 v%d, 128, v%d" % (kFh, kF))
    a("v_mov_b32 v26, %d" % LC)
    a("v_mov_b32 v27, 1")
    a("s_waitcnt vmcnt(0)")
    a("s_mov_b64 exec, 1")
    a("ds_add_rtn_u32 v28, v26, v27 offset:20")
    a("s_waitcnt lgkmcnt(0)")
    a("v_readfirstlane_b32 s36, v28")
    a("s_cmp_lg_u32 s36, 3")
    a("s_cbranch_scc1 %s_nocs" % name)
    a("s_and_b32 s36, s2, 15")
    a("s_lshl_b32 s36, s36, 2")
    a("s_add_u32 s36, s36, 192")
    a("v_mov_b32 v28, s36")
    a("buffer_atomic_add v27, v28, s[60:63], 0 offen sc1")
    a.label("%s_nocs" % name)
    a("s_mov_b64 exec, -1")
    fin_loads()
    core3 = G.Core(a, ACC, FB[0], FB[1], CFS, CTREG, cTa, cTb, cF_, cFh, TT=512)
    pairs = ((cTa[0], kTa), (cF_, kF), (cTb[0], kTb), (cFh, kFh))
    a("s_mov_b32 s27, %d" % C0)
    for d, s_ in pairs: a("v_add_u32 v%d, s27, v%d" % (d, s_))
    for r in range(ACC, ACC + 72): a("v_mov_b32 v%d, 0" % r)
    a("s_mov_b32 s33, 0")
    a("s_barrier")
    stamp(a, 10)
    core3.prime(0, core3.reads(0, 0))
    def citer(buf):
        core3.trk.drain()
        a("s_barrier")
        a("s_add_u32 s27, s27, %d" % CSL)
        a("s_cmp_eq_u32 s27, %d" % CW)
        a("s_cselect_b32 s27, %d, s27" % RB)
        pre = ["v_add_u32 v%d, s27, v%d" % (d, s_) for d, s_ in pairs]
        core3.phase(buf, core3.reads(1 - buf, 0), pre=pre)
    a.label("%s_ccloop" % name)
    citer(0); citer(1)
    a("s_add_u32 s33, s33, 1")
    a("s_cmp_lt_u32 s33, 9")
    a("s_cbranch_scc1 %s_ccloop" % name)
    core3.trk.drain()
    stamp(a, 11)
    a("s_mul_i32 s33, s3, %d" % (18 * 1024))
    a("s_add_u32 s33, s33, %d" % C0)
    a("v_lshlrev_b32 v10, 4, v2")
    a("v_add_u32 v11, s33, v10")
    a("s_nop 4")
    for n, (ft, tt) in enumerate(TILES):
        a("ds_write_b128 v11, %s offset:%d" % (vr(core3.accr(ft, tt)), 1024 * tidx(ft, tt)))
        if n in (7, 13): a("s_waitcnt lgkmcnt(4)")
    a("s_waitcnt lgkmcnt(0) vmcnt(0)")
    a.label("%s_cfin" % name)
    a("s_barrier")
    stamp(a, 12)
    a("v_lshlrev_b32 v10, 4, v2")
    a("v_lshrrev_b32 v11, 2, v2")
    a("v_lshlrev_b32 v11, 7, v11")
    a("v_and_b32 v12, 3, v2")
    a("v_lshl_add_u32 v11, v12, 3, v11")
    a("s_mov_b32 s33, 0xbfb8aa3b")
    PT = 16; YR = 64
    for s_ in range(3):
        b = 64 + 4 * s_
        if s_ == 2:
            a("s_cmp_ge_u32 s54, 2")
            a("s_cbranch_scc1 %s_rd" % name)
        a("v_add_u32 v4, s%d, v10" % (b + 2))
        a("v_add_u32 v5, s%d, v11" % (b + 1))
        for q in range(4):
            a("ds_read_b128 %s, v4 offset:%d" % (vr(PT + 16 * s_ + 4 * q), 18432 * q))
        a("ds_read_b64_tr_b16 %s, v5" % vr(YR + 2 * s_, 2))
    a.label("%s_rd" % name)
    T = 104
    for s_ in range(3):
        b = 64 + 4 * s_
        if s_ == 0: a("s_waitcnt lgkmcnt(5)")
        if s_ == 1: a("s_waitcnt lgkmcnt(0)")
        if s_ == 2:
            a("s_cmp_ge_u32 s54, 2")
            a("s_cbranch_scc1 %s_done" % name)
        o = PT + 16 * s_; X = XR + 2 * s_; Y = YR + 2 * s_; S_ = ST + 2 * s_
        for h in (0, 2):
            a("v_pk_add_f32 %s, %s, %s" % (vr(o + h, 2), vr(o + h, 2), vr(o + 4 + h, 2)))
            a("v_pk_add_f32 %s, %s, %s" % (vr(o + 8 + h, 2), vr(o + 8 + h, 2), vr(o + 12 + h, 2)))
        for h in (0, 2):
            a("v_pk_add_f32 %s, %s, %s" % (vr(o + h, 2), vr(o + h, 2), vr(o + 8 + h, 2)))
        rnd_pair(a, T + 20, o, o + 1); rnd_pair(a, T + 21, o + 2, o + 3)
        for r in range(4): a("v_mul_f32 v%d, s33, v%d" % (T + r, o + r))
        for r in range(4): a("v_exp_f32 v%d, v%d" % (T + r, T + r))
        a("v_lshlrev_b32 v%d, 16, v%d" % (T + 4, X)); a("v_and_b32 v%d, 0xffff0000, v%d" % (T + 5, X))
        a("v_lshlrev_b32 v%d, 16, v%d" % (T + 6, X + 1)); a("v_and_b32 v%d, 0xffff0000, v%d" % (T + 7, X + 1))
        for r in range(4): a("v_add_f32 v%d, 1.0, v%d" % (T + r, T + r))
        for r in range(4): a("v_rcp_f32 v%d, v%d" % (T + r, T + r))
        for r in range(4): a("v_sub_f32 v%d, v%d, v%d" % (T + 12 + r, T + 4 + r, S_))
        a("v_lshlrev_b32 v%d, 16, v%d" % (T + 8, Y)); a("v_and_b32 v%d, 0xffff0000, v%d" % (T + 9, Y))
        a("v_lshlrev_b32 v%d, 16, v%d" % (T + 10, Y + 1)); a("v_and_b32 v%d, 0xffff0000, v%d" % (T + 11, Y + 1))
        for r in range(4): a("v_mul_f32 v%d, v%d, v%d" % (o + r, o + r, T + r))
        rnd_pair(a, T + 20, T + 12, T + 13); rnd_pair(a, T + 21, T + 14, T + 15)
        rnd_pair(a, T + 22, o, o + 1); rnd_pair(a, T + 23, o + 2, o + 3)
        for r in range(4): a("v_mul_f32 v%d, v%d, v%d" % (T + 12 + r, T + 12 + r, S_ + 1))
        rnd_pair(a, T + 20, T + 12, T + 13); rnd_pair(a, T + 21, T + 14, T + 15)
        for r in range(4): a("v_mul_f32 v%d, v%d, v%d" % (T + 12 + r, T + 12 + r, T + 8 + r))
        rnd_pair(a, T + 20, T + 12, T + 13); rnd_pair(a, T + 21, T + 14, T + 15)
        for r in range(4): a("v_mul_f32 v%d, v%d, v%d" % (T + 12 + r, T + 12 + r, o + r))
        rnd_pair(a, T + 20, T + 12, T + 13); rnd_pair(a, T + 21, T + 14, T + 15)
        for r in range(4): a("v_add_f32 v%d, v%d, v%d" % (T + 12 + r, T + 12 + r, T + 4 + r))
        a("v_cvt_pk_bf16_f32 v%d, v%d, v%d" % (X, T + 12, T + 13))
        a("v_cvt_pk_bf16_f32 v%d, v%d, v%d" % (X + 1, T + 14, T + 15))
        a("buffer_store_dwordx2 %s, v13, s[28:31], s%d offen" % (vr(X, 2), b))
    a.label("%s_done" % name)
    stamp(a, 13)
    G.stamp_rt(a, 1)
    a.label("%s_end" % name)
    a("s_endpgm")
    for ft in range(5):
        a.label("%s_gsub%d" % (name, ft))
        tts = range(4 if ft < 4 else 2)
        emit_fold_gelu(a, [(128 + 4 * tidx(ft, tt), CS + 4 * ft, MR + 2 * tt, ZP + 2 * tidx(ft, tt)) for tt in tts], 72)
        a("s_setpc_b64 s[34:35]")
    return a.text(), kernel_desc(name, 256, 256), (name, 256, 512, YOFF + 10240)

def gen_kf11(name="k1_kernel", R=4):
    a = Asm()
    RB = 4096; SLOT = 34816; TREG = 16384; FS = 288; RST = 0
    LDSB = RB + R * SLOT
    LC = 2048
    ZFLG = 0x2D00000; PFL = 128
    KVL = 143360
    C0 = 77824; CW = 151552; CSL = 36864; YOFF = 151552; CTREG = 16384; CFS = 160
    from gen3 import emit_conv_loads, emit_conv_job, CJ_SIZE
    def capture(f, *args):
        lb = len(a.lines); f(*args); out = a.lines[lb:]; del a.lines[lb:]; return out

    def c_common():
        a("s_load_dwordx2 s[4:5], s[0:1], 0")
        a("s_load_dwordx2 s[16:17], s[0:1], 88")
        a("s_and_b32 s20, s2, 7")
        a("s_lshr_b32 s21, s2, 3")
        a("s_and_b32 s22, s20, 3")
        a("s_lshl_b32 s22, s22, 3")
        a("s_and_b32 s23, s21, 7")
        a("s_add_u32 s22, s22, s23")
        a("s_lshr_b32 s23, s20, 2")
        a("s_lshl_b32 s23, s23, 2")
        a("s_lshr_b32 s24, s21, 3")
        a("s_add_u32 s23, s23, s24")
        a("s_lshr_b32 s52, s23, 1")
        a("s_and_b32 s53, s23, 1")
        a("s_lshl_b32 s54, s98, 2")
        a("s_add_u32 s54, s54, s3")
        a("s_waitcnt lgkmcnt(0)")
        srd(a, 8, 4, 2048 * 576 * 2)
        srd(a, 28, 16, 2048 * 576 * 2)
    XR = 200; ST = 208
    def fin_loads():
        a("v_and_b32 v3, 15, v2")
        a("v_lshrrev_b32 v10, 4, v2")
        a("v_mul_u32_u24 v13, 1152, v3")
        a("v_lshl_add_u32 v13, v10, 3, v13")
        a("v_lshlrev_b32 v12, 3, v3")
        for s_ in range(3):
            if s_ == 2:
                a("s_cmp_ge_u32 s54, 2")
                a("s_cbranch_scc1 %s_fl%d" % (name, fin_loads.cnt))
            b = 64 + 4 * s_
            if s_ < 2:
                a("s_add_u32 s36, s54, %d" % (8 * s_))
                a("s_lshr_b32 s37, s36, 2")
                a("s_and_b32 s38, s36, 3")
                a("s_mul_i32 s39, s53, 160")
                a("s_lshl_b32 s40, s37, 5")
                a("s_add_u32 s39, s39, s40")
            else:
                a("s_add_u32 s36, s54, 16")
                a("s_mov_b32 s37, 4")
                a("s_mov_b32 s38, s54")
                a("s_mov_b32 s39, 128")
            a("s_lshl_b32 s40, s53, 1")
            a("s_add_u32 s38, s38, s40")
            a("s_and_b32 s38, s38, 3")
            a("s_lshl_b32 s40, s22, 2")
            a("s_add_u32 s40, s40, s38")
            a("s_lshl_b32 s40, s40, 4")
            a("s_mul_i32 s%d, s40, 1152" % b)
            a("s_add_u32 s%d, s%d, s39" % (b, b))
            a("s_mul_i32 s39, s52, 288")
            a("s_add_u32 s%d, s%d, s39" % (b, b))
            a("s_lshl_b32 s%d, s37, 11" % (b + 1))
            a("s_lshl_b32 s39, s38, 5")
            a("s_add_u32 s%d, s%d, s39" % (b + 1, b + 1))
            a("s_add_u32 s%d, s%d, %d" % (b + 1, b + 1, YOFF))
            a("s_lshl_b32 s%d, s36, 10" % (b + 2))
            a("s_add_u32 s%d, s%d, %d" % (b + 2, b + 2, C0))
            a("s_lshl_b32 s40, s40, 3")
            a("s_add_u32 s40, s40, 0x%x" % STATS1)
            a("buffer_load_dwordx2 %s, v13, s[8:11], s%d offen" % (vr(XR + 2 * s_, 2), b))
            a("buffer_load_dwordx2 %s, v12, s[12:15], s40 offen sc1" % vr(ST + 2 * s_, 2))
        a.label("%s_fl%d" % (name, fin_loads.cnt))
        fin_loads.cnt += 1
    fin_loads.cnt = 0
    kernel_begin(a, name)
    a("s_load_dwordx2 s[80:81], s[0:1], 0")
    a("s_load_dwordx2 s[4:5], s[0:1], 56")
    a("s_load_dwordx2 s[6:7], s[0:1], 104")
    a("s_load_dwordx2 s[18:19], s[0:1], 96")
    a("s_cmp_ge_u32 s2, 256")
    a("s_cbranch_scc1 %s_end" % name)
    a("v_lshrrev_b32 v1, 6, v0")
    a("v_and_b32 v2, 63, v0")
    a("v_readfirstlane_b32 s3, v1")
    G2.tile_ij(a)
    a("s_lshr_b32 s98, s3, 2")
    a("s_mov_b32 s54x, 0".replace("s54x", "s99"))
    a("s_and_b32 s3, s3, 3")
    a("s_lshr_b32 s24, s3, 1")
    a("s_and_b32 s25, s3, 1")
    a("v_and_b32 v3, 15, v2")
    VT = 204; VF = 208
    def loader_setup():
        a("v_lshrrev_b32 v5, 3, v2")
        a("v_and_b32 v4, 7, v2")
        a("s_lshl_b32 s36, s3, 5")
        a("v_add_u32 v5, s36, v5")
        a("v_lshrrev_b32 v7, 4, v2")
        a("v_xor_b32 v7, v7, v4")
        a("v_mul_u32_u24 v6, 1152, v5")
        a("v_lshl_add_u32 v%d, v7, 4, v6" % VT)
        a("v_xor_b32 v%d, 64, v%d" % (VT + 1, VT))
        a("v_add_u32 v%d, %d, v%d" % (VT + 1, 9216 - 1024, VT + 1))
        a("v_add_u32 v%d, %d, v%d" % (VT + 2, 2 * (9216 - 1024), VT))
        a("v_add_u32 v%d, %d, v%d" % (VT + 3, 2 * (9216 - 1024), VT + 1))
        a("s_lshl_b32 s84, s3, 12")
        a("s_add_u32 s84, s84, %d" % RB)
        a("s_lshl_b32 s85, s3, 9")
        a("s_add_u32 s85, s85, %d" % (RB + TREG + 16384))
    def loader_setup2():
        for n in range(5):
            if n < 4:
                a("s_lshl_b32 s36, s3, 8")
                a("s_add_u32 s36, s36, %d" % (64 * n))
            else:
                a("s_lshl_b32 s36, s3, 5")
                a("s_add_u32 s36, s36, 1024")
            a("v_add_u32 v6, s36, v2")
            a("v_mul_u32_u24 v7, 3641, v6")
            a("v_lshrrev_b32 v7, 16, v7")
            a("v_mul_u32_u24 v8, 18, v7")
            a("v_sub_u32 v8, v6, v8")
            a("v_and_b32 v9, 35, v7")
            a("v_bfe_u32 v6, v7, 2, 2")
            a("v_lshl_add_u32 v9, v6, 3, v9")
            a("v_bfe_u32 v6, v7, 4, 1")
            a("v_lshl_add_u32 v9, v6, 2, v9")
            a("v_mul_u32_u24 v9, 9216, v9")
            a("v_lshl_add_u32 v%d, v8, 4, v9" % (VF + n))
            if 0 < n < 4: a("v_subrev_u32 v%d, %d, v%d" % (VF + n, 1024 * n, VF + n))
    def issueT(g):
        st = g % 9
        a("s_add_u32 s86, s84, %d" % ((g % R) * SLOT))
        a("s_mov_b32 m0, s86")
        a("s_add_u32 s87, s82, %d" % (128 * st))
        for n in range(4):
            a("buffer_load_dwordx4 v%d, s[28:31], s87 offen offset:%d lds" % (VT + n, 1024 * n))
    def issueF(g):
        st = g % 9
        a("s_add_u32 s86, s84, %d" % ((g % R) * SLOT + TREG))
        a("s_mov_b32 m0, s86")
        a("s_add_u32 s87, s83, %d" % (64 * 9216 * st + (4608 if g < 9 else 0)))
        for n in range(4):
            a("buffer_load_dwordx4 v%d, s[8:11], s87 offen offset:%d lds" % (VF + n, 1024 * n))
        a("s_add_u32 s86, s85, %d" % ((g % R) * SLOT))
        a("s_mov_b32 m0, s86")
        a("s_mov_b64 exec, 0xffffffff")
        a("buffer_load_dwordx4 v%d, s[8:11], s87 offen lds" % (VF + 4))
        a("s_mov_b64 exec, -1")
    def srds_main():
        srd(a, 28, 80, 2048 * 576 * 2)
        srd(a, 8, 4, 576 * 4608 * 2)
        srd(a, 12, 6, WS_BYTES)
        srd(a, 60, 18, 256)
        a("s_mul_i32 s82, s22, %d" % (128 * 1152))
        a("s_mul_i32 s83, s23, 288")
    ACC = 128; FB = [16, 52]; CS = 216; ONE = 236
    vTa = [4, 5]; vTb = [6, 7]; vF = 8; vFh = 9
    bTa = [88, 89]; bTb = [90, 91]; bF = 92; bFh = 93
    def mma_setup():
        a("v_lshrrev_b32 v10, 4, v2")
        a("v_lshrrev_b32 v11, 1, v3")
        a("v_xor_b32 v10, v10, v11")
        a("v_lshlrev_b32 v10, 4, v10")
        a("v_lshl_add_u32 v10, v3, 7, v10")
        a("s_lshl_b32 s26, s24, 13")
        a("s_add_u32 s26, s26, %d" % RB)
        a("v_add_u32 v10, s26, v10")
        a("s_lshl_b32 s26, s25, 12")
        a("v_add_u32 v%d, s26, v10" % bTa[0])
        a("s_xor_b32 s26, s26, 4096")
        a("v_add_u32 v%d, s26, v10" % bTb[0])
        a("v_xor_b32 v%d, 64, v%d" % (bTa[1], bTa[0]))
        a("v_xor_b32 v%d, 64, v%d" % (bTb[1], bTb[0]))
        a("v_lshrrev_b32 v10, 2, v2")
        a("v_mul_u32_u24 v10, %d, v10" % FS)
        a("v_and_b32 v11, 3, v2")
        a("v_lshl_add_u32 v10, v11, 3, v10")
        a("v_add_u32 v10, %d, v10" % (RB + TREG))
        a("s_mul_i32 s26, s25, 160")
        a("v_add_u32 v%d, s26, v10" % bF)
        a("v_add_u32 v%d, 128, v10" % bFh)
        for r in range(ACC, ACC + 72): a("v_mov_b32 v%d, 0" % r)
        for r in range(CS, CS + 20): a("v_mov_b32 v%d, 0" % r)
        for r in range(ONE, ONE + 4): a("v_mov_b32 v%d, 0x3f803f80" % r)
    def mma_addr(slot):
        a("s_mov_b32 s27, %d" % (slot * SLOT))
        for d, s_ in ((vTa[0], bTa[0]), (vTb[0], bTb[0]), (vTa[1], bTa[1]), (vTb[1], bTb[1]), (vF, bF), (vFh, bFh)):
            a("v_add_u32 v%d, s27, v%d" % (d, s_))
    core = G.Core(a, ACC, FB[0], FB[1], FS, TREG, vTa, vTb, vF, vFh)
    trk = core.trk
    a("s_cmp_eq_u32 s98, 0")
    a("s_cbranch_scc1 %s_A0" % name)
    a("s_setprio 3")
    loader_setup()
    a("s_waitcnt lgkmcnt(0)")
    srds_main()
    vm = VmTracker(a)
    def issue(g, vmx):
        issueT(g); issueF(g); vmx.issue("S%d" % g, 9)
    issueT(0)
    loader_setup2()
    issueF(0); vm.issue("S0", 9)
    issue(1, vm); issue(2, vm); issue(3, vm)
    a("s_add_u32 s3, s3, 4"); stamp_setup(a, 1); stamp(a, 0); a("s_sub_u32 s3, s3, 4")
    a("s_load_dwordx4 s[64:67], s[0:1], 8")
    a("s_load_dwordx2 s[76:77], s[0:1], 24")
    mma_setup()
    a("s_waitcnt lgkmcnt(0)")
    srd(a, 68, 66, 2048 * 576 * 2)
    a("s_mov_b32 s88, s64"); a("s_mov_b32 s89, s65")
    srd(a, 64, 88, 2048 * 576 * 2)
    srd(a, 72, 76, 576 * 8)
    def kv_dma():
        a("s_mul_hi_u32 s36, s2, 0x%x" % ((2**32 + 8) // 9))
        a("s_mul_i32 s37, s36, 9")
        a("s_sub_u32 s37, s2, s37")
        a("s_lshl_b32 s36, s36, 6")
        a("s_lshl_b32 s38, s3, 3")
        a("s_add_u32 s36, s36, s38")
        a("v_lshrrev_b32 v240, 3, v2")
        a("v_add_u32 v240, s36, v240")
        a("v_mul_u32_u24 v241, 1152, v240")
        a("v_and_b32 v242, 7, v2")
        a("v_lshl_add_u32 v241, v242, 4, v241")
        a("s_lshl_b32 s37, s37, 7")
        a("v_add_u32 v241, s37, v241")
        a("v_subrev_u32 v242, %d, v241" % (3 * 1152))
        a("s_lshl_b32 s38, s3, 10")
        for q in range(3):
            a("s_add_u32 s39, s38, %d" % (KVL + 4096 * q))
            if q == 2:
                a("s_mov_b32 s39, %d" % (KVL + 8192))
                a("s_mul_i32 s40, s3, %d" % (8 * 1152))
                a("s_sub_u32 s40, %d, s40" % (64 * 1152))
            else:
                a("s_mov_b32 s40, %d" % (32 * 1152 * q))
            a("s_mov_b32 m0, s39")
            a("v_add_u32 v243, s40, v242")
            a("buffer_load_dwordx4 v243, s[64:67], 0 offen lds")
        for q in range(2):
            a("s_add_u32 s39, s38, %d" % (KVL + 9216 + 4096 * q))
            a("s_mov_b32 m0, s39")
            a("s_mov_b32 s40, %d" % (32 * 1152 * q))
            a("buffer_load_dwordx4 v241, s[68:71], s40 offen lds")
    RA = 96; XB = 112
    for r in range(RA, RA + 16): a("v_mov_b32 v%d, 0" % r)
    a("v_lshrrev_b32 v10, 4, v2")
    a("v_lshrrev_b32 v11, 1, v3")
    a("v_xor_b32 v10, v10, v11")
    a("v_lshlrev_b32 v10, 4, v10")
    a("v_lshl_add_u32 v10, v3, 7, v10")
    a("v_add_u32 v12, s84, v10")
    a("v_xor_b32 v13, 64, v12")
    def rs_rd(g):
        a("v_add_u32 v10, %d, v12" % ((g % R) * SLOT))
        a("v_add_u32 v11, %d, v13" % ((g % R) * SLOT))
        for h in range(2):
            for n in range(2):
                a("ds_read_b128 %s, v%d offset:%d" % (vr(XB + 8 * h + 4 * n), 10 + h, 2048 * n))
    def rs_do():
        for h in range(2):
            for n in range(2):
                x = XB + 8 * h + 4 * n
                a("v_mfma_f32_16x16x32_bf16 %s, %s, %s, %s" % (vr(RA + 4 * n), vr(ONE), vr(x), vr(RA + 4 * n)))
                a("v_mfma_f32_16x16x32_bf16 %s, %s, %s, %s" % (vr(RA + 8 + 4 * n), vr(x), vr(x), vr(RA + 8 + 4 * n)))
    def interleave(dma, comp, vmx=None):
        groups = []; cur = []
        for l in dma:
            cur.append(l)
            if "buffer_load" in l and not any("exec, 0xffffffff" in x for x in cur[-2:]):
                groups.append(cur); cur = []
            elif "exec, -1" in l:
                groups.append(cur); cur = []
        if cur: groups.append(cur)
        ns = max(1, len(groups))
        per = (len(comp) + ns - 1) // ns
        for g in groups:
            a.lines.extend(g)
            a.lines.extend(comp[:per]); comp = comp[per:]
        a.lines.extend(comp)
    vm.wait(["S0"])
    a("s_barrier")
    stamp(a, 1)
    rs_rd(0)
    vm.wait(["S1"])
    a("s_barrier")
    for k in range(9):
        a("s_waitcnt lgkmcnt(0)")
        dma = capture(lambda: (issueT(k + 3), issueF(k + 3))) if k >= 1 else []
        interleave(dma, capture(rs_do))
        if k >= 1: vm.issue("S%d" % (k + 3), 9)
        if k == 3:
            kv_dma(); vm.issue("KV", 5)
        if k < 8:
            rs_rd(k + 1)
        else:
            a("s_nop 7")
            a("v_lshrrev_b32 v10, 4, v2")
            a("v_lshrrev_b32 v11, 2, v3")
            a("v_and_b32 v12, 3, v3")
            for n in range(2):
                G_ = RA + 8 + 4 * n
                for r in range(1, 4):
                    a("v_cmp_eq_u32 vcc, %d, v12" % r)
                    a("s_nop 1")
                    a("v_cndmask_b32 v%d, v%d, v%d, vcc" % (G_, G_, G_ + r))
            ML = 112
            for n in range(2):
                emit_ln_finish(a, RA + 4 * n, RA + 8 + 4 * n, 576, ML + 2 * n, ML + 2 * n + 1, 120)
                a("v_mov_b32 v%d, v%d" % (117 + 2 * n, ML + 2 * n + 1))
                a("v_sub_f32 v%d, 0, v%d" % (116 + 2 * n, ML + 2 * n))
            a("s_lshl_b32 s35, s3, 8")
            a("v_lshlrev_b32 v13, 3, v3")
            a("v_add_u32 v12, s35, v13")
            a("v_cmp_eq_u32 vcc, v10, v11")
            a("s_and_saveexec_b64 s[36:37], vcc")
            for n in range(2):
                a("ds_write_b64 v12, %s offset:%d" % (vr(116 + 2 * n, 2), RST + 128 * n))
            a("s_mov_b64 exec, s[36:37]")
            a("s_cmp_lg_u32 s23, 0")
            a("s_cbranch_scc1 %s_nost1" % name)
            a("s_lshl_b32 s35, s22, 7")
            a("s_lshl_b32 s36, s3, 5")
            a("s_add_u32 s35, s35, s36")
            a("s_lshl_b32 s35, s35, 3")
            a("s_add_u32 s35, s35, 0x%x" % STATS1)
            a("v_mov_b32 v11, 0x7ffffff0")
            a("v_cndmask_b32 v13, v11, v13, vcc")
            for n in range(2):
                a("buffer_store_dwordx2 %s, v13, s[12:15], s35 offen offset:%d sc1" % (vr(ML + 2 * n, 2), 128 * n))
            a.label("%s_nost1" % name)
            mma_addr(9 % R)
            a("s_mov_b32 s33, 0")
            a("s_setprio 0")
        vm.wait(["S%d" % (k + 2)], "lgkmcnt(0)" if k == 8 else "")
        if k < 8: a("s_barrier")
    a("s_branch %s_mma" % name)
    a.label("%s_A0" % name)
    emit_code_prefetch(a, name)
    a("s_load_dwordx4 s[64:67], s[0:1], 8")
    a("s_load_dwordx2 s[76:77], s[0:1], 24")
    a("s_load_dwordx2 s[78:79], s[0:1], 64")
    mma_setup()
    loader_setup(); loader_setup2()
    a("s_waitcnt lgkmcnt(0)")
    srds_main()
    srd(a, 68, 66, 2048 * 576 * 2)
    a("s_mov_b32 s88, s64"); a("s_mov_b32 s89, s65")
    srd(a, 64, 88, 2048 * 576 * 2)
    srd(a, 72, 76, 576 * 8)
    stamp_setup(a, 1); stamp(a, 0)
    def gran_addr():
        a("v_lshrrev_b32 v10, 4, v2")
        a("s_lshl_b32 s36, s25, 1")
        a("v_add_u32 v11, s36, v10")
        a("v_and_b32 v11, 3, v11")
        a("v_lshl_add_u32 v11, v11, 4, v3")
        a("v_lshlrev_b32 v94, 8, v11")
        a("s_lshl_b32 s59, s22, 7")
        a("s_lshl_b32 s36, s24, 6")
        a("s_add_u32 s59, s59, s36")
        a("s_lshl_b32 s59, s59, 8")
        a("s_add_u32 s59, s59, 0x%x" % STATS2)
        a("s_lshl_b32 s36, s23, 1")
        a("s_add_u32 s36, s36, s25")
        a("s_lshl_b32 s36, s36, 3")
        a("s_add_u32 s58, s36, s59")
    gran_addr()
    a("v_mov_b32 v12, 0"); a("v_mov_b32 v13, 0x80000000")
    a("buffer_store_dwordx2 v[12:13], v94, s[12:15], s58 offen sc1")
    a("s_lshl_b32 s36, s22, 4")
    a("s_add_u32 s36, s36, s23")
    a("s_lshl_b32 s36, s36, 8")
    a("s_add_u32 s97, s36, 0x%x" % ZFLG)
    a("v_mov_b32 v10, %d" % LC)
    a("v_mov_b32 v12, 0"); a("v_mov_b32 v13, 0")
    a("s_mov_b64 exec, 1")
    a("buffer_store_dword v12, v12, s[12:15], s97 offen sc1")
    a("buffer_store_dword v12, v12, s[12:15], s97 offen offset:%d sc1" % PFL)
    a("s_mov_b64 exec, -1")
    a("ds_write_b64 v10, v[12:13]")
    a("ds_write_b64 v10, v[12:13] offset:8")
    a("ds_write_b64 v10, v[12:13] offset:16")
    a("ds_write_b64 v10, v[12:13] offset:24")
    mma_addr(0)
    a("s_mov_b32 s33, 0")
    a("s_waitcnt lgkmcnt(0)")
    a("s_barrier")
    stamp(a, 1)
    a.label("%s_mma" % name)
    core.prime(0, core.reads(0, 0))
    trk.drain()
    nocs = [False]
    def mfmas(buf):
        L = []
        for ft in range(5):
            A = core.F(buf, ft)
            for tt in range(4 if ft < 4 else 2):
                c = core.accr(ft, tt); B = core.T(buf, tt)
                L.append(("v_mfma_f32_16x16x32_bf16 %s, %s, %s, %s" % (vr(c), vr(A), vr(B), vr(c)), list(range(A, A + 4)) + list(range(B, B + 4))))
            if not nocs[0]: L.append(("v_mfma_f32_16x16x32_bf16 %s, %s, %s, %s" % (vr(CS + 4 * ft), vr(A), vr(ONE), vr(CS + 4 * ft)), list(range(A, A + 4))))
        return L
    def phase(buf, pend):
        for (m, regs) in mfmas(buf):
            trk.need(regs)
            a(m)
            while pend:
                k, t = pend.pop(0)
                if k == "x":
                    a(t)
                    if t.startswith("s_"): continue
                else:
                    a(t[0]); trk.issue(t[1])
                break
        for k, t in pend:
            if k == "x": a(t)
            else: a(t[0]); trk.issue(t[1])
    def iteration(vw=True):
        if vw: a("s_waitcnt vmcnt(0)")
        a("s_barrier")
        rd = [("r", t) for t in core.reads(1, 1)]
        upd = ["s_add_u32 s27, s27, %d" % SLOT, "s_cmp_eq_u32 s27, %d" % (R * SLOT), "s_cselect_b32 s27, 0, s27"]
        tail = ["v_add_u32 v%d, s27, v%d" % (d, s_) for d, s_ in ((vTa[0], bTa[0]), (vF, bF), (vTb[0], bTb[0]), (vFh, bFh))]
        phase(0, rd[:1] + [("x", u) for u in upd] + rd[1:] + [("x", u) for u in tail])
        rd = [("r", t) for t in core.reads(0, 0)]
        tail = ["v_add_u32 v%d, s27, v%d" % (d, s_) for d, s_ in ((vTa[1], bTa[1]), (vTb[1], bTb[1]))] + ["s_add_u32 s33, s33, 1"]
        phase(1, rd + [("x", u) for u in tail])
    a.label("%s_cloop" % name)
    lb = len(a.lines); iteration(); st = copy.deepcopy(trk.out); del a.lines[lb:]; trk.out = copy.deepcopy(st)
    iteration()
    assert [sorted(x) for x in trk.out] == [sorted(x) for x in st]
    a("s_cmp_lt_u32 s33, 9")
    a("s_cbranch_scc1 %s_cloop" % name)
    trk.drain()
    stamp(a, 2)
    MR = 100; T = 72; ZP = 16
    def epi_in():
        gelu_consts(a)
        a("s_lshl_b32 s36, s24, 9")
        a("s_lshl_b32 s37, s25, 8")
        a("s_add_u32 s38, s36, s37")
        a("s_xor_b32 s37, s37, 256")
        a("s_add_u32 s39, s36, s37")
        a("v_lshlrev_b32 v10, 3, v3")
        a("v_add_u32 v11, s38, v10")
        a("ds_read_b64 %s, v11 offset:%d" % (vr(MR, 2), RST))
        a("ds_read_b64 %s, v11 offset:%d" % (vr(MR + 2, 2), RST + 128))
        a("v_add_u32 v11, s39, v10")
        a("ds_read_b64 %s, v11 offset:%d" % (vr(MR + 4, 2), RST))
        a("ds_read_b64 %s, v11 offset:%d" % (vr(MR + 6, 2), RST + 128))
        a("s_waitcnt lgkmcnt(0)")
    S = [108, 110, 52, 54]; Q = [109, 111, 53, 55]
    def gelu_ft(ft, stats):
        tts = range(4 if ft < 4 else 2)
        a("s_call_b64 s[34:35], %s_gsub%d" % (name, ft))
        if stats:
            for d in range(2):
                for tt in tts:
                    p = ZP + 2 * tidx(ft, tt) + d
                    a("v_dot2_f32_bf16 v%d, v%d, v%d, v%d" % (S[tt], p, ONE, S[tt]))
                    a("v_dot2_f32_bf16 v%d, v%d, v%d, v%d" % (Q[tt], p, p, Q[tt]))
    a("s_cmp_eq_u32 s98, 0")
    a("s_cbranch_scc1 %s_A1" % name)
    a("s_barrier")
    a("s_load_dwordx2 s[94:95], s[0:1], 80")
    a("s_load_dwordx2 s[92:93], s[0:1], 72")
    epi_in()
    srd(a, 76, 94, 2304 * 576 * 2)
    srd(a, 28, 92, 2048 * 2)
    a("v_and_b32 v0, 255, v0")
    a("s_mov_b32 s41, s2")
    a("s_mul_hi_u32 s36, s41, 0x%x" % ((2**32 + 8) // 9))
    a("s_mul_i32 s37, s36, 9")
    a("s_sub_u32 s37, s41, s37")
    a("v_lshrrev_b32 v1, 3, v0")
    a("v_and_b32 v10, 7, v0")
    a("s_lshl_b32 s38, s36, 6")
    a("v_lshl_add_u32 v252, v10, 3, s38")
    a("s_lshl_b32 s39, s37, 7")
    a("v_lshl_add_u32 v253, v1, 2, s39")
    a("v_lshlrev_b32 v11, 2, v253")
    a("buffer_load_dwordx4 v[248:251], v11, s[72:75], 0 offen")
    a("v_lshlrev_b32 v254, 10, v10")
    a("v_lshl_add_u32 v254, v1, 2, v254")
    a("v_add_u32 v254, %d, v254" % KVL)
    a("s_cmp_ge_u32 s2, 32")
    a("s_cbranch_scc1 %s_kvp" % name)
    a("s_add_u32 s41, s2, 256")
    emit_kv_loads(a, 52, 63, 124, 71, 123)
    a.label("%s_kvp" % name)
    for ft in range(5): gelu_ft(ft, False)
    Z1R = 200; BI = 236
    for r_ in range(36): a("v_mov_b32 v%d, v%d" % (Z1R + r_, ZP + r_))
    stamp(a, 3)
    a("s_waitcnt vmcnt(0)")
    for n in range(11): a("ds_read_b32 v%d, v254 offset:%d" % (16 + n, 128 * n))
    a("s_waitcnt lgkmcnt(4)")
    for n in range(8): a("ds_read_b32 v%d, v254 offset:%d" % (32 + n, 9216 + 128 * n))
    for n in range(4): a("v_mov_b32 v%d, v%d" % (44 + n, 248 + n))
    for r_ in range(6): a("v_mov_b32 v%d, v%d" % (240 + r_, 88 + r_))
    for r_ in range(20): a("v_mov_b32 v%d, v%d" % (128 + r_, 52 + r_))
    for r_ in range(5): a("v_mov_b32 v%d, v%d" % (148 + r_, 123 + r_))
    a("v_mov_b32 v56, v252"); a("v_mov_b32 v57, v253")
    a("s_waitcnt lgkmcnt(0)")
    a.label("%s_kvb" % name)
    emit_kv_compute(a, wait=False, store=False)
    a("s_mov_b32 s39, 0x%x" % KVT)
    a("buffer_store_dwordx4 v[120:123], v12, s[12:15], s39 offen sc1")
    a("buffer_store_dwordx4 v[124:127], v13, s[12:15], s39 offen sc1")
    a("s_cmp_lt_u32 s41, 256")
    a("s_cbranch_scc1 %s_kvbd" % name)
    a("s_mov_b32 s41, 0")
    for n in range(11): a("v_mov_b32 v%d, v%d" % (16 + n, 128 + n))
    for n in range(8): a("v_mov_b32 v%d, v%d" % (32 + n, 139 + n))
    for n in range(4): a("v_mov_b32 v%d, v%d" % (44 + n, 149 + n))
    a("v_mov_b32 v56, v147"); a("v_mov_b32 v57, v148")
    a("s_branch %s_kvb" % name)
    a.label("%s_kvbd" % name)
    for r_ in range(6): a("v_mov_b32 v%d, v%d" % (88 + r_, 240 + r_))
    a("s_mov_b32 s42, s2")
    emit_wot_loads(a, 100, 112, 720, 3)
    a("s_lshl_b32 s36, s22, 7")
    a("s_lshl_b32 s37, s24, 6")
    a("s_add_u32 s36, s36, s37")
    a("v_lshlrev_b32 v11, 1, v3")
    a("s_lshl_b32 s37, s25, 6")
    a("s_lshl_b32 s38, s36, 1")
    a("s_add_u32 s39, s38, s37")
    a("s_xor_b32 s37, s37, 64")
    a("s_add_u32 s36, s38, s37")
    a("buffer_load_ushort v96, v11, s[28:31], s39 offen")
    a("buffer_load_ushort v97, v11, s[28:31], s39 offen offset:32")
    a("buffer_load_ushort v98, v11, s[28:31], s36 offen")
    a("buffer_load_ushort v99, v11, s[28:31], s36 offen offset:32")
    for r in range(ACC, ACC + 72): a("v_mov_b32 v%d, 0" % r)
    a("v_lshrrev_b32 v10, 2, v2")
    a("v_lshlrev_b32 v10, 5, v10")
    a("v_and_b32 v11, 3, v2")
    a("v_lshl_add_u32 v10, v11, 3, v10")
    a("v_add_u32 v10, %d, v10" % (RB + TREG))
    a("s_mul_i32 s26, s25, 10240")
    a("v_add_u32 v%d, s26, v10" % bF)
    a("v_add_u32 v%d, 8192, v10" % bFh)
    core.FS = 32; core.FT = 2048
    mma_addr(0)
    a("s_mov_b32 s33, 0")
    stamp(a, 4)
    a("s_barrier")
    stamp(a, 5)
    core.prime(0, core.reads(0, 0))
    trk.drain()
    nocs[0] = True
    a.label("%s_gloop" % name)
    lb = len(a.lines); iteration(False); st = copy.deepcopy(trk.out); del a.lines[lb:]; trk.out = copy.deepcopy(st)
    iteration(False)
    assert [sorted(x) for x in trk.out] == [sorted(x) for x in st]
    a("s_cmp_lg_u32 s33, 3")
    a("s_cbranch_scc1 %s_ghk0" % name)
    a("s_waitcnt vmcnt(0)")
    for n in range(3):
        a("buffer_store_dwordx4 %s, v%d, s[12:15], s40 offen sc1" % (vr(100 + 4 * n), 112 + n))
    for tt in range(4): a("v_lshlrev_b32 v%d, 16, v%d" % (BI + 2 * tt, 96 + tt))
    a.label("%s_ghk0" % name)
    a("s_cmp_lg_u32 s33, 6")
    a("s_cbranch_scc1 %s_ghk" % name)
    a("s_waitcnt vmcnt(0)")
    a("v_mov_b32 v10, %d" % (LC + 8))
    a("v_mov_b32 v11, 1")
    a("s_mov_b64 exec, 1")
    a("ds_add_rtn_u32 v12, v10, v11")
    a("s_waitcnt lgkmcnt(0)")
    a("v_readfirstlane_b32 s36, v12")
    a("s_cmp_lg_u32 s36, 3")
    a("s_cbranch_scc1 %s_nokvs" % name)
    a("s_and_b32 s36, s2, 15")
    a("s_lshl_b32 s36, s36, 2")
    a("s_add_u32 s36, s36, 128")
    a("v_mov_b32 v10, s36")
    a("buffer_atomic_add v11, v10, s[60:63], 0 offen sc1")
    a.label("%s_nokvs" % name)
    a("s_mov_b64 exec, -1")
    a.label("%s_ghk" % name)
    a("s_cmp_lg_u32 s33, 24")
    a("s_cbranch_scc1 %s_ghk2" % name)
    a("v_lshlrev_b32 v10, 2, v3")
    a("buffer_load_dword v254, v10, s[60:63], 0 offen offset:128 sc1")
    a.label("%s_ghk2" % name)
    a("s_cmp_lt_u32 s33, 32")
    a("s_cbranch_scc1 %s_gloop" % name)
    trk.drain()
    stamp(a, 6)
    G3.emit_k2_epilogue2(a, core, Z1R, BI, " sc1")
    stamp(a, 7)
    a("s_setprio 3")
    a("s_lshl_b32 s36, s22, 4")
    a("s_add_u32 s36, s36, s23")
    a("s_lshl_b32 s36, s36, 8")
    a("s_add_u32 s97, s36, 0x%x" % (ZFLG + PFL))
    c_common()
    a("v_lshlrev_b32 v14, 4, v2")
    a("s_mul_i32 s26, s22, %d" % (36 * 8192))
    a("s_lshl_b32 s24, s3, 12")
    a("s_add_u32 s26, s26, s24")
    a("s_add_u32 s26, s26, 0x%x" % PIMG)
    a("s_mul_i32 s27, s23, %d" % (18 * 20480))
    a("s_mul_i32 s25, s3, 5120")
    a("s_add_u32 s27, s27, s25")
    a("s_add_u32 s27, s27, 0x%x" % WOT)
    a("s_add_u32 s25, s25, %d" % CTREG)
    a("v_and_b32 v28, 15, v2")
    a("v_lshlrev_b32 v30, 2, v28")
    a("v_mov_b32 v26, %d" % LC)
    a("v_mov_b32 v27, 1")
    a("s_waitcnt vmcnt(0)")
    a("v_mov_b32 v31, v254")
    a("s_mov_b64 exec, 1")
    a("ds_add_rtn_u32 v29, v26, v27 offset:16")
    a("s_waitcnt lgkmcnt(0)")
    a("v_readfirstlane_b32 s36, v29")
    a("s_cmp_lg_u32 s36, 3")
    a("s_cbranch_scc1 %s_nops" % name)
    a("v_mov_b32 v29, 0")
    a("buffer_store_dword v27, v29, s[12:15], s97 offen sc1")
    a.label("%s_nops" % name)
    a("s_mov_b64 exec, -1")
    a("s_mov_b32 s34, 0")
    a.label("%s_cw" % name)
    a("ds_read_b32 v29, v26 offset:16")
    a("s_add_u32 s34, s34, 1")
    a("s_waitcnt lgkmcnt(0)")
    a("v_readfirstlane_b32 s36, v29")
    a("s_cmp_gt_u32 s34, %d" % (SPIN_MAX * 20))
    a("s_cbranch_scc1 %s_cwx" % name)
    a("s_cmp_ge_u32 s36, 4")
    a("s_cbranch_scc1 %s_cwx" % name)
    a("s_sleep 1")
    a("s_branch %s_cw" % name)
    a.label("%s_cwx" % name)
    a("s_mov_b32 s34, 0")
    a.label("%s_cp" % name)
    a("v_cmp_gt_u32 vcc, 16, v31")
    a("s_add_u32 s34, s34, 1")
    a("s_cmp_gt_u32 s34, %d" % SPIN_MAX)
    a("s_cbranch_scc1 %s_cpx" % name)
    a("s_cbranch_vccz %s_cpx" % name)
    a("s_sleep 32")
    a("buffer_load_dword v31, v30, s[60:63], 0 offen offset:128 sc1")
    a("s_waitcnt vmcnt(0)")
    a("s_branch %s_cp" % name)
    a.label("%s_cpx" % name)
    def cF(off, soff):
        a("s_add_u32 s36, s25, %s" % off)
        a("s_mov_b32 m0, s36")
        a("s_add_u32 s37, %s, 4096" % soff)
        for n in range(4):
            a("buffer_load_dwordx4 v14, s[12:15], %s offen offset:%d sc1 lds" % (soff, n * 1024))
        a("s_add_u32 s36, s36, 4096")
        a("s_mov_b32 m0, s36")
        a("s_nop 0")
        a("buffer_load_dwordx4 v14, s[12:15], s37 offen sc1 lds")
    def cT(off, soff):
        a("s_add_u32 s35, s24, %s" % off)
        a("s_mov_b32 m0, s35")
        a("s_nop 0")
        for n in range(4):
            a("buffer_load_dwordx4 v14, s[12:15], %s offen offset:%d sc1 lds" % (soff, n * 1024))
    a("s_add_u32 s38, s27, 20480")
    cF(str(C0), "s27"); cF(str(C0 + CSL), "s38")
    a("s_mov_b32 s34, 0")
    a("s_cmp_lg_u32 s3, 0")
    a("s_cbranch_scc1 %s_cpl" % name)
    a("v_lshlrev_b32 v28, 8, v28")
    a("s_lshr_b32 s39, s22, 1")
    a("s_lshl_b32 s39, s39, 12")
    a("s_add_u32 s39, s39, 0x%x" % (ZFLG + PFL))
    a.label("%s_cpz" % name)
    a("buffer_load_dword v29, v28, s[12:15], s39 offen sc1")
    a("s_add_u32 s34, s34, 1")
    a("s_waitcnt vmcnt(0)")
    a("v_cmp_ne_u32 vcc, 1, v29")
    a("s_cmp_gt_u32 s34, %d" % SPIN_MAX)
    a("s_cbranch_scc1 %s_cpzx" % name)
    a("s_cbranch_vccz %s_cpzx" % name)
    a("s_sleep 8")
    a("s_branch %s_cpz" % name)
    a.label("%s_cpzx" % name)
    a("ds_write_b32 v26, v27 offset:24")
    a("s_branch %s_cgo" % name)
    a.label("%s_cpl" % name)
    a("ds_read_b32 v29, v26 offset:24")
    a("s_add_u32 s34, s34, 1")
    a("s_waitcnt lgkmcnt(0)")
    a("v_readfirstlane_b32 s36, v29")
    a("s_cmp_gt_u32 s34, %d" % (SPIN_MAX * 20))
    a("s_cbranch_scc1 %s_cgo" % name)
    a("s_cmp_lg_u32 s36, 0")
    a("s_cbranch_scc1 %s_cgo" % name)
    a("s_sleep 2")
    a("s_branch %s_cpl" % name)
    a.label("%s_cgo" % name)
    stamp(a, 8)
    a("s_add_u32 s38, s26, 16384")
    cT(str(C0), "s26"); cT(str(C0 + CSL), "s38")
    a("s_add_u32 s26, s26, 32768")
    a("s_add_u32 s27, s27, 40960")
    a("s_mov_b32 s33, %d" % RB)
    def cissue():
        cT("s33", "s26"); cF("s33", "s27")
        a("s_add_u32 s26, s26, 16384")
        a("s_add_u32 s27, s27, 20480")
        a("s_add_u32 s33, s33, %d" % CSL)
        a("s_cmp_eq_u32 s33, %d" % CW)
        a("s_cselect_b32 s33, %d, s33" % RB)
    a("s_waitcnt vmcnt(4)")
    a("s_barrier")
    cissue(); cissue()
    a("s_waitcnt vmcnt(18)")
    a("s_barrier")
    a("s_mov_b32 s34, 0")
    a.label("%s_clloop" % name)
    cissue()
    a("s_cmp_lg_u32 s34, 11")
    a("s_cbranch_scc1 %s_cl1" % name)
    a("buffer_load_dword v31, v30, s[60:63], 0 offen offset:192 sc1")
    a("s_waitcnt vmcnt(19)")
    a("s_branch %s_cl2" % name)
    a.label("%s_cl1" % name)
    a("s_waitcnt vmcnt(18)")
    a.label("%s_cl2" % name)
    a("s_barrier")
    a("s_add_u32 s34, s34, 1")
    a("s_cmp_lt_u32 s34, 14")
    a("s_cbranch_scc1 %s_clloop" % name)
    a("s_mov_b32 s34, 0")
    a.label("%s_cy" % name)
    a("v_cmp_gt_u32 vcc, 16, v31")
    a("s_add_u32 s34, s34, 1")
    a("s_cmp_gt_u32 s34, %d" % SPIN_MAX)
    a("s_cbranch_scc1 %s_cyx" % name)
    a("s_cbranch_vccz %s_cyx" % name)
    a("s_sleep 32")
    a("buffer_load_dword v31, v30, s[60:63], 0 offen offset:192 sc1")
    a("s_waitcnt vmcnt(0)")
    a("s_branch %s_cy" % name)
    a.label("%s_cyx" % name)
    a("v_lshrrev_b32 v3, 3, v2")
    a("v_and_b32 v4, 7, v2")
    a("v_lshlrev_b32 v4, 4, v4")
    a("s_mul_i32 s33, s52, 144")
    a("s_mul_i32 s34, s53, 80")
    a("s_lshl_b32 s35, s22, 7")
    a("s_add_u32 s35, s35, 0x%x" % YT)
    for n in range(3):
        a("s_add_u32 s36, s3, %d" % (4 * n))
        if n == 2: a("s_min_u32 s36, s36, 9")
        a("s_lshl_b32 s37, s36, 3")
        a("s_add_u32 s38, s37, s33")
        if n < 2: a("s_add_u32 s38, s38, s34")
        a("v_add_u32 v5, s38, v3")
        a("v_lshl_add_u32 v5, v5, 12, v4")
        a("s_lshl_b32 s36, s36, 10")
        a("s_add_u32 s36, s36, %d" % YOFF)
        a("s_mov_b32 m0, s36")
        a("s_nop 0")
        a("buffer_load_dwordx4 v5, s[12:15], s35 offen sc1 lds")
    fin_loads()
    a("s_waitcnt vmcnt(%d)" % (9 + 7))
    a("s_barrier")
    a("s_waitcnt vmcnt(7)")
    a("s_barrier")
    a("s_barrier")
    a("s_setprio 0")
    a("s_waitcnt vmcnt(0)")
    a("s_branch %s_cfin" % name)
    a.label("%s_A1" % name)
    a("s_setprio 2")
    vmA = VmTracker(a)
    PB = 132
    def aux_head():
        epi_in()
        for tt in range(4):
            a("v_mov_b32 v%d, 0" % S[tt]); a("v_mov_b32 v%d, 0" % Q[tt])
    def aux_pub():
        a("s_nop 2")
        emit_xg_reduce(a, S + Q, 72)
        a("v_lshrrev_b32 v10, 4, v2")
        for g in range(1, 4):
            a("v_cmp_eq_u32 vcc, %d, v10" % g)
            a("s_nop 1")
            a("v_cndmask_b32 v%d, v%d, v%d, vcc" % (S[0], S[0], S[g]))
            a("v_cndmask_b32 v%d, v%d, v%d, vcc" % (Q[0], Q[0], Q[g]))
        a("v_and_b32 v%d, 0x7fffffff, v%d" % (Q[0], Q[0]))
        a("buffer_store_dwordx2 v[%d:%d], v94, s[12:15], s58 offen sc1" % (S[0], Q[0]))
    chunks = [capture(aux_head) + capture(gelu_ft, 0, True), capture(gelu_ft, 1, True), capture(gelu_ft, 2, True),
              capture(gelu_ft, 3, True), capture(gelu_ft, 4, True) + capture(aux_pub)]
    KD = 172
    for k in range(9, 18):
        a("s_barrier")
        if k == 9:
            a("s_cmp_lg_u32 s3, 0")
            a("s_cbranch_scc1 %s_nosig" % name)
            a("v_mov_b32 v10, 1")
            a("s_lshl_b32 s36, s22, 2")
            a("v_mov_b32 v11, s36")
            a("s_mov_b64 exec, 1")
            a("buffer_atomic_add v10, v11, s[60:63], 0 offen sc1")
            a("s_mov_b64 exec, -1")
            a.label("%s_nosig" % name)
        g = k + 3
        dma = capture(lambda: (issueT(g), issueF(g))) if g < 18 else []
        comp = chunks[k - 9] if k - 9 < len(chunks) else []
        a.lines.extend(dma); a.lines.extend(comp)
        if k == 13: vmA.issue("pub", 1)
        if g < 18: vmA.issue("S%d" % g, 9)
        if k == 14:
            srd(a, 92, 78, 2048 * 2048 * 2)
            a("v_lshrrev_b32 v10, 4, v2")
            a("v_lshlrev_b32 v10, 12, v10")
            a("v_lshl_add_u32 v10, v3, 4, v10")
            a("s_lshl_b32 s40, s22, 7")
            a("s_lshl_b32 s36, s3, 5")
            a("s_add_u32 s40, s40, s36")
            a("s_lshl_b32 s40, s40, 12")
            a("s_lshl_b32 s36, s23, 8")
            a("s_add_u32 s40, s40, s36")
            for n in range(8):
                a("buffer_load_dwordx4 v[200:203], v10, s[92:95], s40 offen")
                if n < 7: a("s_add_u32 s40, s40, 16384")
            vmA.issue("wp", 8)
            a("s_lshl_b32 s36, s22, 2")
            a("v_mov_b32 v199, s36")
            a("buffer_load_dword v198, v199, s[60:63], 0 offen sc1"); vmA.issue("cnt", 1)
        if k + 2 < 18 and k + 2 >= 12:
            vmA.wait(["S%d" % (k + 2)])
    a("s_barrier")
    stamp(a, 3)
    a("s_load_dwordx4 s[88:91], s[0:1], 32")
    a("v_lshrrev_b32 v10, 4, v2")
    a("v_lshlrev_b32 v95, 8, v3")
    a("v_lshl_add_u32 v95, v10, 6, v95")
    a("s_lshl_b32 s33, s25, 13")
    a("s_add_u32 s52, s59, s33")
    a("s_xor_b32 s33, s33, 8192")
    a("s_add_u32 s53, s59, s33")
    a("s_add_u32 s42, s52, 4096")
    a("s_add_u32 s43, s53, 4096")
    Z2 = ZP
    a("s_waitcnt vmcnt(0)")
    GB = [128, 144, 160, 176]
    a("v_mov_b32 v4, v95")
    def gather():
        for tt in range(4):
            for q in range(4):
                a("buffer_load_dwordx4 %s, v4, s[12:15], s%d offen offset:%d sc1" % (vr(GB[tt] + 4 * q), (52, 42, 53, 43)[tt], 16 * q))
    gather()
    a("s_mov_b32 s40, 0")
    a("s_waitcnt vmcnt(0)")
    a.label("%s_chk" % name)
    a("v_subrev_u32 v11, 16, v198")
    for tt in range(4):
        for r in range(GB[tt] + 1, GB[tt] + 16, 4):
            a("v_or3_b32 v11, v11, v%d, v%d" % (r, r + 2))
    a("v_cmp_gt_i32 vcc, 0, v11")
    a("s_add_u32 s40, s40, 1")
    a("s_cmp_gt_u32 s40, %d" % SPIN_MAX)
    a("s_cbranch_scc1 %s_ok" % name)
    a("s_cbranch_vccz %s_ok" % name)
    a("s_sleep 32")
    a("buffer_load_dword v198, v199, s[60:63], 0 offen sc1")
    a("s_waitcnt vmcnt(0)")
    gather()
    a("s_waitcnt vmcnt(0)")
    a("s_branch %s_chk" % name)
    a.label("%s_ok" % name)
    stamp(a, 5)
    for tt in range(4):
        b = GB[tt]
        for st_ in (8, 4, 2):
            for q in range(0, st_, 2):
                a("v_pk_add_f32 %s, %s, %s" % (vr(b + q, 2), vr(b + q, 2), vr(b + q + st_, 2)))
    emit_xg_reduce(a, [GB[tt] + e for tt in range(4) for e in range(2)], 72)
    for tt in range(4):
        b = GB[tt]
        emit_ln_finish(a, b, b + 1, 2304, b + 2, MR + 2 * tt, b + 4)
        a("v_mul_f32 v%d, -v%d, v%d" % (MR + 2 * tt + 1, b + 2, MR + 2 * tt))
    a("v_lshrrev_b32 v10, 4, v2")
    a("v_lshrrev_b32 v11, 2, v2"); a("v_and_b32 v11, 1, v11"); a("v_lshlrev_b32 v11, 4, v11")
    a("v_lshrrev_b32 v5, 3, v2"); a("v_and_b32 v5, 1, v5"); a("v_lshl_add_u32 v11, v5, 2, v11")
    a("v_and_b32 v5, 3, v2"); a("v_add_u32 v11, v11, v5")
    a("v_and_b32 v5, 1, v10")
    a("v_lshl_add_u32 v11, v5, 3, v11")
    a("v_lshlrev_b32 v11, 5, v11")
    a("v_lshrrev_b32 v5, 1, v10")
    a("v_lshl_add_u32 v6, v5, 4, v11")
    a("s_lshl_b32 s33, s23, 5")
    a("s_lshl_b32 s36, s22, 1")
    a("s_add_u32 s33, s33, s36")
    a("s_add_u32 s33, s33, s24")
    a("s_mul_i32 s33, s33, 18432")
    if ZIMG: a("s_add_u32 s33, s33, 0x%x" % ZIMG)
    a("s_lshl_b32 s36, s25, 10")
    a("s_add_u32 s39, s33, s36")
    a("s_add_u32 s39, s39, 8192")
    a("s_mul_i32 s38, s25, 10240")
    a("s_add_u32 s33, s33, s38")
    a("s_add_u32 s37, s33, s36")
    a("s_xor_b32 s36, s36, 1024")
    a("s_add_u32 s38, s33, s36")
    a("s_add_u32 s33, s37, 4096")
    a("s_add_u32 s36, s38, 4096")
    def norm_pair(nA, ttA, nB, ttB, O):
        for q, (n, tt) in enumerate(((nA, ttA), (nB, ttB))):
            for d in range(2):
                z = Z2 + 2 * n + d; t = T + 4 * q + 2 * d
                a("v_lshlrev_b32 v%d, 16, v%d" % (t, z))
                a("v_and_b32 v%d, 0xffff0000, v%d" % (t + 1, z))
        for q, (n, tt) in enumerate(((nA, ttA), (nB, ttB))):
            for d in range(2):
                t = T + 4 * q + 2 * d
                a("v_pk_fma_f32 %s, %s, %s, %s op_sel:[0,0,1] op_sel_hi:[1,0,1]" % (vr(t, 2), vr(t, 2), vr(MR + 2 * tt, 2), vr(MR + 2 * tt, 2)))
        for q in range(2):
            for d in range(2):
                t = T + 4 * q + 2 * d
                a("v_cvt_pk_bf16_f32 v%d, v%d, v%d" % (O + 2 * q + d, t, t + 1))
        a("s_nop 1")
        a("v_permlane16_swap_b32 v%d, v%d" % (O, O + 2))
        a("v_permlane16_swap_b32 v%d, v%d" % (O + 1, O + 3))
    cnt = 0
    for ft in range(4):
        for pp in range(2):
            O = 200 + 4 * cnt; cnt += 1
            norm_pair(tidx(ft, 2 * pp), 2 * pp, tidx(ft, 2 * pp + 1), 2 * pp + 1, O)
            a("s_nop 0")
            a("buffer_store_dwordx4 %s, v6, s[12:15], s%d offen offset:%d sc1" % (vr(O), ((37, 38), (33, 36))[ft >> 1][pp], (ft & 1) * 2048))
    O = 200 + 4 * cnt
    norm_pair(16, 0, 17, 1, O)
    a("s_nop 0")
    a("buffer_store_dwordx4 %s, v6, s[12:15], s39 offen sc1" % vr(O))
    stamp(a, 6)
    a("s_setprio 3")
    srd(a, 8, 78, 2048 * 2048 * 2)
    a("v_lshrrev_b32 v3, 3, v2")
    a("s_lshl_b32 s24, s3, 5")
    a("v_add_u32 v3, s24, v3")
    a("v_and_b32 v4, 7, v2")
    a("v_lshrrev_b32 v6, 4, v2")
    a("v_xor_b32 v6, v6, v4")
    a("v_lshlrev_b32 v6, 4, v6")
    a("v_lshl_add_u32 v10, v3, 12, v6")
    a("v_xor_b32 v11, 64, v10")
    a("v_add_u32 v11, %d, v11" % (32768 - 1024))
    a("v_add_u32 v12, %d, v10" % (2 * (32768 - 1024)))
    a("v_add_u32 v13, %d, v11" % (2 * (32768 - 1024)))
    a("v_lshlrev_b32 v14, 4, v2")
    a("s_lshl_b32 s26, s22, 19")
    a("s_mul_i32 s27, s23, %d" % (32 * 18432))
    a("s_lshl_b32 s24, s3, 12")
    a("s_add_u32 s27, s27, s24")
    if ZIMG: a("s_add_u32 s27, s27, 0x%x" % ZIMG)
    a("s_lshl_b32 s25, s3, 9")
    a("s_sub_u32 s32, s25, s24")
    a("s_add_u32 s32, s32, 16384")
    a("s_add_u32 s24, s24, %d" % RB)
    a("s_waitcnt vmcnt(0) lgkmcnt(0)")
    a("v_mov_b32 v26, %d" % LC)
    a("v_mov_b32 v27, 1")
    a("s_mov_b64 exec, 1")
    a("ds_add_rtn_u32 v28, v26, v27")
    a("s_waitcnt lgkmcnt(0)")
    a("v_readfirstlane_b32 s36, v28")
    a("s_cmp_lg_u32 s36, 3")
    a("s_cbranch_scc1 %s_nozs" % name)
    a("v_mov_b32 v28, 0")
    a("buffer_store_dword v27, v28, s[12:15], s97 offen sc1")
    a.label("%s_nozs" % name)
    a("s_mov_b64 exec, -1")
    stamp(a, 7)
    srd(a, 16, 88, 576 * 2048 * 2)
    srd(a, 84, 90, 576 * 2)
    for g in range(4):
        a("s_add_u32 s35, s24, %d" % (g * SLOT))
        a("s_mov_b32 m0, s35")
        a("s_add_u32 s36, s26, %d" % (128 * g))
        for n in range(4):
            a("buffer_load_dwordx4 v%d, s[8:11], s36 offen offset:%d lds" % (10 + n, n * 1024))
    a("s_mov_b32 s34, 0")
    a("s_cmp_lg_u32 s3, 0")
    a("s_cbranch_scc1 %s_pl" % name)
    a("v_and_b32 v28, 15, v2")
    a("v_lshlrev_b32 v30, 2, v28")
    a("v_lshlrev_b32 v28, 12, v28")
    a("s_lshl_b32 s52, s23, 8")
    a("s_add_u32 s52, s52, 0x%x" % ZFLG)
    a.label("%s_pz0" % name)
    a("buffer_load_dword v31, v30, s[60:63], 0 offen sc1")
    a("s_add_u32 s34, s34, 1")
    a("s_waitcnt vmcnt(0)")
    a("v_cmp_gt_u32 vcc, 16, v31")
    a("s_cmp_gt_u32 s34, %d" % SPIN_MAX)
    a("s_cbranch_scc1 %s_pz" % name)
    a("s_cbranch_vccz %s_pz" % name)
    a("s_sleep 32")
    a("s_branch %s_pz0" % name)
    a.label("%s_pz" % name)
    a("buffer_load_dword v29, v28, s[12:15], s52 offen sc1")
    a("s_add_u32 s34, s34, 1")
    a("s_waitcnt vmcnt(0)")
    a("v_cmp_ne_u32 vcc, 1, v29")
    a("s_cmp_gt_u32 s34, %d" % SPIN_MAX)
    a("s_cbranch_scc1 %s_pzx" % name)
    a("s_cbranch_vccz %s_pzx" % name)
    a("s_sleep 8")
    a("s_branch %s_pz" % name)
    a.label("%s_pzx" % name)
    a("v_mov_b32 v27, 1")
    a("ds_write_b32 v26, v27 offset:4")
    a("s_branch %s_pgo" % name)
    a.label("%s_pl" % name)
    a("ds_read_b32 v27, v26 offset:4")
    a("s_add_u32 s34, s34, 1")
    a("s_waitcnt lgkmcnt(0)")
    a("v_readfirstlane_b32 s36, v27")
    a("s_cmp_gt_u32 s34, %d" % (SPIN_MAX * 20))
    a("s_cbranch_scc1 %s_pgo" % name)
    a("s_cmp_lg_u32 s36, 0")
    a("s_cbranch_scc1 %s_pgo" % name)
    a("s_sleep 2")
    a("s_branch %s_pl" % name)
    a.label("%s_pgo" % name)
    stamp(a, 8)
    for g in range(4):
        a("s_add_u32 s35, s24, %d" % (g * SLOT + TREG))
        a("s_mov_b32 m0, s35")
        a("s_add_u32 s36, s27, %d" % (18432 * g))
        a("s_add_u32 s37, s36, s32")
        for n in range(4):
            a("buffer_load_dwordx4 v14, s[12:15], s36 offen offset:%d sc1 lds" % (n * 1024))
        a("s_add_u32 s35, s35, s32")
        a("s_mov_b32 m0, s35")
        a("s_mov_b64 exec, 0xffffffff")
        a("buffer_load_dwordx4 v14, s[12:15], s37 offen sc1 lds")
        a("s_mov_b64 exec, -1")
    a("s_add_u32 s26, s26, 512")
    a("s_add_u32 s27, s27, %d" % (4 * 18432))
    a("s_mov_b32 s33, 0")
    a("s_lshl_b32 s43, s2, 2")
    a("s_add_u32 s43, s43, s3")
    a("s_and_b32 s53, s43, 1")
    a("s_sub_u32 s36, s43, 448")
    a("s_lshr_b32 s37, s43, 1")
    a("s_cmp_ge_u32 s43, 896")
    a("s_cselect_b32 s43, s36, s37")
    a("s_cselect_b32 s53, 2, s53")
    a("s_waitcnt vmcnt(15)")
    a("s_barrier")
    a("s_waitcnt vmcnt(10)")
    a("s_barrier")
    a("s_waitcnt vmcnt(5)")
    a("s_barrier")
    a("s_mov_b32 s34, 4")
    def issue2():
        a("s_add_u32 s35, s33, s24")
        a("s_mov_b32 m0, s35")
        a("s_add_u32 s36, s35, %d" % TREG)
        for n in range(4):
            a("buffer_load_dwordx4 v%d, s[8:11], s26 offen offset:%d lds" % (10 + n, n * 1024))
        a("s_mov_b32 m0, s36")
        a("s_add_u32 s37, s27, s32")
        for n in range(4):
            a("buffer_load_dwordx4 v14, s[12:15], s27 offen offset:%d sc1 lds" % (n * 1024))
        a("s_add_u32 s36, s36, s32")
        a("s_mov_b32 m0, s36")
        a("s_mov_b64 exec, 0xffffffff")
        a("buffer_load_dwordx4 v14, s[12:15], s37 offen sc1 lds")
        a("s_mov_b64 exec, -1")
        a("s_add_u32 s26, s26, 128")
        a("s_add_u32 s27, s27, 18432")
        a("s_add_u32 s33, s33, %d" % SLOT)
        a("s_cmp_eq_u32 s33, %d" % (R * SLOT))
        a("s_cselect_b32 s33, 0, s33")
    a.label("%s_lloop" % name)
    issue2()
    a("s_cmp_eq_u32 s34, 18")
    a("s_cbranch_scc1 %s_hk1" % name)
    a("s_cmp_eq_u32 s34, 21")
    a("s_cbranch_scc1 %s_hk2" % name)
    a("s_waitcnt vmcnt(9)")
    a.label("%s_lcont" % name)
    a("s_barrier")
    a("s_add_u32 s34, s34, 1")
    a("s_cmp_lt_u32 s34, 32")
    a("s_cbranch_scc1 %s_lloop" % name)
    a("s_branch %s_ldone" % name)
    a.label("%s_hk1" % name)
    a("v_and_b32 v28, 15, v2")
    a("v_lshlrev_b32 v28, 2, v28")
    a("buffer_load_dword v29, v28, s[60:63], 0 offen offset:128 sc1")
    a("s_waitcnt vmcnt(10)")
    a("s_branch %s_lcont" % name)
    a.label("%s_hk2" % name)
    a("s_mov_b32 s52, 0")
    a.label("%s_hk2l" % name)
    a("v_cmp_gt_u32 vcc, 16, v29")
    a("s_add_u32 s52, s52, 1")
    a("s_cmp_gt_u32 s52, %d" % SPIN_MAX)
    a("s_cbranch_scc1 %s_hk2g" % name)
    a("s_cbranch_vccz %s_hk2g" % name)
    a("s_sleep 16")
    a("buffer_load_dword v29, v28, s[60:63], 0 offen offset:128 sc1")
    a("s_waitcnt vmcnt(0)")
    a("s_branch %s_hk2l" % name)
    a.label("%s_hk2g" % name)
    nconv = emit_conv_loads(a, " sc1")
    a("s_waitcnt vmcnt(%d)" % (9 + nconv))
    a("s_branch %s_lcont" % name)
    a.label("%s_ldone" % name)
    a("s_waitcnt vmcnt(0)")
    a("s_barrier")
    a("s_mov_b32 s26, s53")
    a("s_and_b32 s27, s3, 1")
    a("s_mul_i32 s27, s27, %d" % CJ_SIZE)
    a("s_lshr_b32 s36, s3, 1")
    a("s_mul_i32 s36, s36, %d" % SLOT)
    a("s_add_u32 s27, s27, s36")
    a("s_add_u32 s27, s27, %d" % RB)
    def mid():
        a("s_barrier")
        a("s_setprio 0")
    sv = set(DBG); DBG.discard("stamp")
    lb_ = len(a.lines)
    emit_conv_job(a, name, mid)
    for n_ in range(lb_, len(a.lines)):
        if "buffer_store_dwordx2" in a.lines[n_]: a.lines[n_] += " sc1"
    DBG.update(sv)
    stamp(a, 9)
    c_common()
    cTa = [4, 4]; cTb = [6, 6]; cF_ = 8; cFh = 9
    kTa = 88; kTb = 90; kF = 92; kFh = 93
    a("v_and_b32 v3, 15, v2")
    a("v_lshrrev_b32 v10, 5, v2")
    a("v_lshlrev_b32 v10, 11, v10")
    a("v_bfe_u32 v11, v2, 4, 1")
    a("v_lshl_add_u32 v10, v11, 4, v10")
    a("v_lshl_add_u32 v10, v3, 5, v10")
    a("s_lshl_b32 s26, s3, 12")
    a("v_add_u32 v10, s26, v10")
    a("s_lshl_b32 s26, s53, 10")
    a("v_add_u32 v%d, s26, v10" % kTa)
    a("s_xor_b32 s26, s26, 1024")
    a("v_add_u32 v%d, s26, v10" % kTb)
    a("v_lshrrev_b32 v10, 2, v2")
    a("v_mul_u32_u24 v10, %d, v10" % CFS)
    a("v_and_b32 v11, 3, v2")
    a("v_lshl_add_u32 v10, v11, 3, v10")
    a("s_mul_i32 s26, s3, %d" % (32 * CFS))
    a("s_add_u32 s26, s26, %d" % CTREG)
    a("v_add_u32 v%d, s26, v10" % kF)
    a("v_add_u32 v%d, 128, v%d" % (kFh, kF))
    a("v_mov_b32 v26, %d" % LC)
    a("v_mov_b32 v27, 1")
    a("s_waitcnt vmcnt(0)")
    a("s_mov_b64 exec, 1")
    a("ds_add_rtn_u32 v28, v26, v27 offset:20")
    a("s_waitcnt lgkmcnt(0)")
    a("v_readfirstlane_b32 s36, v28")
    a("s_cmp_lg_u32 s36, 3")
    a("s_cbranch_scc1 %s_nocs" % name)
    a("s_and_b32 s36, s2, 15")
    a("s_lshl_b32 s36, s36, 2")
    a("s_add_u32 s36, s36, 192")
    a("v_mov_b32 v28, s36")
    a("buffer_atomic_add v27, v28, s[60:63], 0 offen sc1")
    a.label("%s_nocs" % name)
    a("s_mov_b64 exec, -1")
    fin_loads()
    core3 = G.Core(a, ACC, FB[0], FB[1], CFS, CTREG, cTa, cTb, cF_, cFh, TT=512)
    pairs = ((cTa[0], kTa), (cF_, kF), (cTb[0], kTb), (cFh, kFh))
    a("s_mov_b32 s27, %d" % C0)
    for d, s_ in pairs: a("v_add_u32 v%d, s27, v%d" % (d, s_))
    for r in range(ACC, ACC + 72): a("v_mov_b32 v%d, 0" % r)
    a("s_mov_b32 s33, 0")
    a("s_barrier")
    stamp(a, 10)
    core3.prime(0, core3.reads(0, 0))
    def citer(buf):
        core3.trk.drain()
        a("s_barrier")
        a("s_add_u32 s27, s27, %d" % CSL)
        a("s_cmp_eq_u32 s27, %d" % CW)
        a("s_cselect_b32 s27, %d, s27" % RB)
        pre = ["v_add_u32 v%d, s27, v%d" % (d, s_) for d, s_ in pairs]
        core3.phase(buf, core3.reads(1 - buf, 0), pre=pre)
    a.label("%s_ccloop" % name)
    citer(0); citer(1)
    a("s_add_u32 s33, s33, 1")
    a("s_cmp_lt_u32 s33, 9")
    a("s_cbranch_scc1 %s_ccloop" % name)
    core3.trk.drain()
    stamp(a, 11)
    a("s_mul_i32 s33, s3, %d" % (18 * 1024))
    a("s_add_u32 s33, s33, %d" % C0)
    a("v_lshlrev_b32 v10, 4, v2")
    a("v_add_u32 v11, s33, v10")
    a("s_nop 4")
    for n, (ft, tt) in enumerate(TILES):
        a("ds_write_b128 v11, %s offset:%d" % (vr(core3.accr(ft, tt)), 1024 * tidx(ft, tt)))
        if n in (7, 13): a("s_waitcnt lgkmcnt(4)")
    a("s_waitcnt lgkmcnt(0) vmcnt(0)")
    a.label("%s_cfin" % name)
    a("s_barrier")
    stamp(a, 12)
    a("v_lshlrev_b32 v10, 4, v2")
    a("v_lshrrev_b32 v11, 2, v2")
    a("v_lshlrev_b32 v11, 7, v11")
    a("v_and_b32 v12, 3, v2")
    a("v_lshl_add_u32 v11, v12, 3, v11")
    a("s_mov_b32 s33, 0xbfb8aa3b")
    PT = 16; YR = 64
    for s_ in range(3):
        b = 64 + 4 * s_
        if s_ == 2:
            a("s_cmp_ge_u32 s54, 2")
            a("s_cbranch_scc1 %s_rd" % name)
        a("v_add_u32 v4, s%d, v10" % (b + 2))
        a("v_add_u32 v5, s%d, v11" % (b + 1))
        for q in range(4):
            a("ds_read_b128 %s, v4 offset:%d" % (vr(PT + 16 * s_ + 4 * q), 18432 * q))
        a("ds_read_b64_tr_b16 %s, v5" % vr(YR + 2 * s_, 2))
    a.label("%s_rd" % name)
    T = 104
    for s_ in range(3):
        b = 64 + 4 * s_
        if s_ == 0: a("s_waitcnt lgkmcnt(5)")
        if s_ == 1: a("s_waitcnt lgkmcnt(0)")
        if s_ == 2:
            a("s_cmp_ge_u32 s54, 2")
            a("s_cbranch_scc1 %s_done" % name)
        o = PT + 16 * s_; X = XR + 2 * s_; Y = YR + 2 * s_; S_ = ST + 2 * s_
        for h in (0, 2):
            a("v_pk_add_f32 %s, %s, %s" % (vr(o + h, 2), vr(o + h, 2), vr(o + 4 + h, 2)))
            a("v_pk_add_f32 %s, %s, %s" % (vr(o + 8 + h, 2), vr(o + 8 + h, 2), vr(o + 12 + h, 2)))
        for h in (0, 2):
            a("v_pk_add_f32 %s, %s, %s" % (vr(o + h, 2), vr(o + h, 2), vr(o + 8 + h, 2)))
        rnd_pair(a, T + 20, o, o + 1); rnd_pair(a, T + 21, o + 2, o + 3)
        for r in range(4): a("v_mul_f32 v%d, s33, v%d" % (T + r, o + r))
        for r in range(4): a("v_exp_f32 v%d, v%d" % (T + r, T + r))
        a("v_lshlrev_b32 v%d, 16, v%d" % (T + 4, X)); a("v_and_b32 v%d, 0xffff0000, v%d" % (T + 5, X))
        a("v_lshlrev_b32 v%d, 16, v%d" % (T + 6, X + 1)); a("v_and_b32 v%d, 0xffff0000, v%d" % (T + 7, X + 1))
        for r in range(4): a("v_add_f32 v%d, 1.0, v%d" % (T + r, T + r))
        for r in range(4): a("v_rcp_f32 v%d, v%d" % (T + r, T + r))
        for r in range(4): a("v_sub_f32 v%d, v%d, v%d" % (T + 12 + r, T + 4 + r, S_))
        a("v_lshlrev_b32 v%d, 16, v%d" % (T + 8, Y)); a("v_and_b32 v%d, 0xffff0000, v%d" % (T + 9, Y))
        a("v_lshlrev_b32 v%d, 16, v%d" % (T + 10, Y + 1)); a("v_and_b32 v%d, 0xffff0000, v%d" % (T + 11, Y + 1))
        for r in range(4): a("v_mul_f32 v%d, v%d, v%d" % (o + r, o + r, T + r))
        rnd_pair(a, T + 20, T + 12, T + 13); rnd_pair(a, T + 21, T + 14, T + 15)
        rnd_pair(a, T + 22, o, o + 1); rnd_pair(a, T + 23, o + 2, o + 3)
        for r in range(4): a("v_mul_f32 v%d, v%d, v%d" % (T + 12 + r, T + 12 + r, S_ + 1))
        rnd_pair(a, T + 20, T + 12, T + 13); rnd_pair(a, T + 21, T + 14, T + 15)
        for r in range(4): a("v_mul_f32 v%d, v%d, v%d" % (T + 12 + r, T + 12 + r, T + 8 + r))
        rnd_pair(a, T + 20, T + 12, T + 13); rnd_pair(a, T + 21, T + 14, T + 15)
        for r in range(4): a("v_mul_f32 v%d, v%d, v%d" % (T + 12 + r, T + 12 + r, o + r))
        rnd_pair(a, T + 20, T + 12, T + 13); rnd_pair(a, T + 21, T + 14, T + 15)
        for r in range(4): a("v_add_f32 v%d, v%d, v%d" % (T + 12 + r, T + 12 + r, T + 4 + r))
        a("v_cvt_pk_bf16_f32 v%d, v%d, v%d" % (X, T + 12, T + 13))
        a("v_cvt_pk_bf16_f32 v%d, v%d, v%d" % (X + 1, T + 14, T + 15))
        a("buffer_store_dwordx2 %s, v13, s[28:31], s%d offen" % (vr(X, 2), b))
    a.label("%s_done" % name)
    stamp(a, 13)
    G.stamp_rt(a, 1)
    a.label("%s_end" % name)
    a("s_endpgm")
    for ft in range(5):
        a.label("%s_gsub%d" % (name, ft))
        tts = range(4 if ft < 4 else 2)
        emit_fold_gelu(a, [(128 + 4 * tidx(ft, tt), CS + 4 * ft, MR + 2 * tt, ZP + 2 * tidx(ft, tt)) for tt in tts], 72)
        a("s_setpc_b64 s[34:35]")
    return a.text(), kernel_desc(name, 256, 256), (name, 256, 512, YOFF + 10240)

def gen_kf12(name="k1_kernel", R=4):
    a = Asm()
    RB = 4096; SLOT = 34816; TREG = 16384; FS = 288; RST = 0
    LDSB = RB + R * SLOT
    LC = 2048
    ZFLG = 0x2D00000; PFL = 128
    KVL = 143360
    C0 = 77824; CW = 151552; CSL = 36864; YOFF = 151552; CTREG = 16384; CFS = 160
    from gen3 import emit_conv_loads, emit_conv_job, CJ_SIZE
    def capture(f, *args):
        lb = len(a.lines); f(*args); out = a.lines[lb:]; del a.lines[lb:]; return out

    def c_common():
        a("s_load_dwordx2 s[4:5], s[0:1], 0")
        a("s_load_dwordx2 s[16:17], s[0:1], 88")
        a("s_and_b32 s20, s2, 7")
        a("s_lshr_b32 s21, s2, 3")
        a("s_and_b32 s22, s20, 3")
        a("s_lshl_b32 s22, s22, 3")
        a("s_and_b32 s23, s21, 7")
        a("s_add_u32 s22, s22, s23")
        a("s_lshr_b32 s23, s20, 2")
        a("s_lshl_b32 s23, s23, 2")
        a("s_lshr_b32 s24, s21, 3")
        a("s_add_u32 s23, s23, s24")
        a("s_lshr_b32 s52, s23, 1")
        a("s_and_b32 s53, s23, 1")
        a("s_lshl_b32 s54, s98, 2")
        a("s_add_u32 s54, s54, s3")
        a("s_waitcnt lgkmcnt(0)")
        srd(a, 8, 4, 2048 * 576 * 2)
        srd(a, 28, 16, 2048 * 576 * 2)
    XR = 200; ST = 208
    def fin_loads():
        a("v_and_b32 v3, 15, v2")
        a("v_lshrrev_b32 v10, 4, v2")
        a("v_mul_u32_u24 v13, 1152, v3")
        a("v_lshl_add_u32 v13, v10, 3, v13")
        a("v_lshlrev_b32 v12, 3, v3")
        for s_ in range(3):
            if s_ == 2:
                a("s_cmp_ge_u32 s54, 2")
                a("s_cbranch_scc1 %s_fl%d" % (name, fin_loads.cnt))
            b = 64 + 4 * s_
            if s_ < 2:
                a("s_add_u32 s36, s54, %d" % (8 * s_))
                a("s_lshr_b32 s37, s36, 2")
                a("s_and_b32 s38, s36, 3")
                a("s_mul_i32 s39, s53, 160")
                a("s_lshl_b32 s40, s37, 5")
                a("s_add_u32 s39, s39, s40")
            else:
                a("s_add_u32 s36, s54, 16")
                a("s_mov_b32 s37, 4")
                a("s_mov_b32 s38, s54")
                a("s_mov_b32 s39, 128")
            a("s_lshl_b32 s40, s53, 1")
            a("s_add_u32 s38, s38, s40")
            a("s_and_b32 s38, s38, 3")
            a("s_lshl_b32 s40, s22, 2")
            a("s_add_u32 s40, s40, s38")
            a("s_lshl_b32 s40, s40, 4")
            a("s_mul_i32 s%d, s40, 1152" % b)
            a("s_add_u32 s%d, s%d, s39" % (b, b))
            a("s_mul_i32 s39, s52, 288")
            a("s_add_u32 s%d, s%d, s39" % (b, b))
            a("s_lshl_b32 s%d, s37, 11" % (b + 1))
            a("s_lshl_b32 s39, s38, 5")
            a("s_add_u32 s%d, s%d, s39" % (b + 1, b + 1))
            a("s_add_u32 s%d, s%d, %d" % (b + 1, b + 1, YOFF))
            a("s_lshl_b32 s%d, s36, 10" % (b + 2))
            a("s_add_u32 s%d, s%d, %d" % (b + 2, b + 2, C0))
            a("s_lshl_b32 s40, s40, 3")
            a("s_add_u32 s40, s40, 0x%x" % STATS1)
            a("buffer_load_dwordx2 %s, v13, s[8:11], s%d offen" % (vr(XR + 2 * s_, 2), b))
            a("buffer_load_dwordx2 %s, v12, s[12:15], s40 offen sc1" % vr(ST + 2 * s_, 2))
        a.label("%s_fl%d" % (name, fin_loads.cnt))
        fin_loads.cnt += 1
    fin_loads.cnt = 0
    kernel_begin(a, name)
    a("s_load_dwordx2 s[80:81], s[0:1], 0")
    a("s_load_dwordx2 s[4:5], s[0:1], 56")
    a("s_load_dwordx2 s[6:7], s[0:1], 104")
    a("s_load_dwordx2 s[18:19], s[0:1], 96")
    a("s_cmp_ge_u32 s2, 256")
    a("s_cbranch_scc1 %s_end" % name)
    a("v_lshrrev_b32 v1, 6, v0")
    a("v_and_b32 v2, 63, v0")
    a("v_readfirstlane_b32 s3, v1")
    G2.tile_ij(a)
    a("s_lshr_b32 s98, s3, 2")
    a("s_mov_b32 s54x, 0".replace("s54x", "s99"))
    a("s_and_b32 s3, s3, 3")
    a("s_lshr_b32 s24, s3, 1")
    a("s_and_b32 s25, s3, 1")
    a("v_and_b32 v3, 15, v2")
    VT = 204; VF = 208
    def loader_setup():
        a("v_lshrrev_b32 v5, 3, v2")
        a("v_and_b32 v4, 7, v2")
        a("s_lshl_b32 s36, s3, 5")
        a("v_add_u32 v5, s36, v5")
        a("v_lshrrev_b32 v7, 4, v2")
        a("v_xor_b32 v7, v7, v4")
        a("v_mul_u32_u24 v6, 1152, v5")
        a("v_lshl_add_u32 v%d, v7, 4, v6" % VT)
        a("v_xor_b32 v%d, 64, v%d" % (VT + 1, VT))
        a("v_add_u32 v%d, %d, v%d" % (VT + 1, 9216 - 1024, VT + 1))
        a("v_add_u32 v%d, %d, v%d" % (VT + 2, 2 * (9216 - 1024), VT))
        a("v_add_u32 v%d, %d, v%d" % (VT + 3, 2 * (9216 - 1024), VT + 1))
        a("s_lshl_b32 s84, s3, 12")
        a("s_add_u32 s84, s84, %d" % RB)
        a("s_lshl_b32 s85, s3, 9")
        a("s_add_u32 s85, s85, %d" % (RB + TREG + 16384))
    def loader_setup2():
        for n in range(5):
            if n < 4:
                a("s_lshl_b32 s36, s3, 8")
                a("s_add_u32 s36, s36, %d" % (64 * n))
            else:
                a("s_lshl_b32 s36, s3, 5")
                a("s_add_u32 s36, s36, 1024")
            a("v_add_u32 v6, s36, v2")
            a("v_mul_u32_u24 v7, 3641, v6")
            a("v_lshrrev_b32 v7, 16, v7")
            a("v_mul_u32_u24 v8, 18, v7")
            a("v_sub_u32 v8, v6, v8")
            a("v_and_b32 v9, 35, v7")
            a("v_bfe_u32 v6, v7, 2, 2")
            a("v_lshl_add_u32 v9, v6, 3, v9")
            a("v_bfe_u32 v6, v7, 4, 1")
            a("v_lshl_add_u32 v9, v6, 2, v9")
            a("v_mul_u32_u24 v9, 9216, v9")
            a("v_lshl_add_u32 v%d, v8, 4, v9" % (VF + n))
            if 0 < n < 4: a("v_subrev_u32 v%d, %d, v%d" % (VF + n, 1024 * n, VF + n))
    def issueT(g):
        st = g % 9
        a("s_add_u32 s86, s84, %d" % ((g % R) * SLOT))
        a("s_mov_b32 m0, s86")
        a("s_add_u32 s87, s82, %d" % (128 * st))
        for n in range(4):
            a("buffer_load_dwordx4 v%d, s[28:31], s87 offen offset:%d lds" % (VT + n, 1024 * n))
    def issueF(g):
        st = g % 9
        a("s_add_u32 s86, s84, %d" % ((g % R) * SLOT + TREG))
        a("s_mov_b32 m0, s86")
        a("s_add_u32 s87, s83, %d" % (64 * 9216 * st + (4608 if g < 9 else 0)))
        for n in range(4):
            a("buffer_load_dwordx4 v%d, s[8:11], s87 offen offset:%d lds" % (VF + n, 1024 * n))
        a("s_add_u32 s86, s85, %d" % ((g % R) * SLOT))
        a("s_mov_b32 m0, s86")
        a("s_mov_b64 exec, 0xffffffff")
        a("buffer_load_dwordx4 v%d, s[8:11], s87 offen lds" % (VF + 4))
        a("s_mov_b64 exec, -1")
    def srds_main():
        srd(a, 28, 80, 2048 * 576 * 2)
        srd(a, 8, 4, 576 * 4608 * 2)
        srd(a, 12, 6, WS_BYTES)
        srd(a, 60, 18, 256)
        a("s_mul_i32 s82, s22, %d" % (128 * 1152))
        a("s_mul_i32 s83, s23, 288")
    ACC = 128; FB = [16, 52]; CS = 216; ONE = 236
    vTa = [4, 5]; vTb = [6, 7]; vF = 8; vFh = 9
    bTa = [88, 89]; bTb = [90, 91]; bF = 92; bFh = 93
    def mma_setup():
        a("v_lshrrev_b32 v10, 4, v2")
        a("v_lshrrev_b32 v11, 1, v3")
        a("v_xor_b32 v10, v10, v11")
        a("v_lshlrev_b32 v10, 4, v10")
        a("v_lshl_add_u32 v10, v3, 7, v10")
        a("s_lshl_b32 s26, s24, 13")
        a("s_add_u32 s26, s26, %d" % RB)
        a("v_add_u32 v10, s26, v10")
        a("s_lshl_b32 s26, s25, 12")
        a("v_add_u32 v%d, s26, v10" % bTa[0])
        a("s_xor_b32 s26, s26, 4096")
        a("v_add_u32 v%d, s26, v10" % bTb[0])
        a("v_xor_b32 v%d, 64, v%d" % (bTa[1], bTa[0]))
        a("v_xor_b32 v%d, 64, v%d" % (bTb[1], bTb[0]))
        a("v_lshrrev_b32 v10, 2, v2")
        a("v_mul_u32_u24 v10, %d, v10" % FS)
        a("v_and_b32 v11, 3, v2")
        a("v_lshl_add_u32 v10, v11, 3, v10")
        a("v_add_u32 v10, %d, v10" % (RB + TREG))
        a("s_mul_i32 s26, s25, 160")
        a("v_add_u32 v%d, s26, v10" % bF)
        a("v_add_u32 v%d, 128, v10" % bFh)
        for r in range(ACC, ACC + 72): a("v_mov_b32 v%d, 0" % r)
        for r in range(CS, CS + 20): a("v_mov_b32 v%d, 0" % r)
        for r in range(ONE, ONE + 4): a("v_mov_b32 v%d, 0x3f803f80" % r)
    def mma_addr(slot):
        a("s_mov_b32 s27, %d" % (slot * SLOT))
        for d, s_ in ((vTa[0], bTa[0]), (vTb[0], bTb[0]), (vTa[1], bTa[1]), (vTb[1], bTb[1]), (vF, bF), (vFh, bFh)):
            a("v_add_u32 v%d, s27, v%d" % (d, s_))
    core = G.Core(a, ACC, FB[0], FB[1], FS, TREG, vTa, vTb, vF, vFh)
    trk = core.trk
    a("s_cmp_eq_u32 s98, 0")
    a("s_cbranch_scc1 %s_A0" % name)
    a("s_setprio 3")
    loader_setup()
    a("s_waitcnt lgkmcnt(0)")
    srds_main()
    vm = VmTracker(a)
    def issue(g, vmx):
        issueT(g); issueF(g); vmx.issue("S%d" % g, 9)
    issueT(0)
    loader_setup2()
    issueF(0); vm.issue("S0", 9)
    issue(1, vm); issue(2, vm); issue(3, vm)
    a("s_add_u32 s3, s3, 4"); stamp_setup(a, 1); stamp(a, 0); a("s_sub_u32 s3, s3, 4")
    a("s_load_dwordx4 s[64:67], s[0:1], 8")
    a("s_load_dwordx2 s[76:77], s[0:1], 24")
    mma_setup()
    a("s_waitcnt lgkmcnt(0)")
    srd(a, 68, 66, 2048 * 576 * 2)
    a("s_mov_b32 s88, s64"); a("s_mov_b32 s89, s65")
    srd(a, 64, 88, 2048 * 576 * 2)
    srd(a, 72, 76, 576 * 8)
    def kv_dma():
        a("s_lshr_b32 s36, s2, 3")
        a("s_mul_i32 s36, s36, %d" % (64 * 1152))
        a("s_and_b32 s37, s2, 7")
        a("s_mul_i32 s37, s37, 144")
        a("s_add_u32 s36, s36, s37")
        for q in range(5):
            a("s_add_u32 s38, s3, %d" % (4 * q))
            if q == 4: a("s_min_u32 s38, s38, 18")
            isK = (q < 2); isV = (q > 2)
            a("s_sub_u32 s39, s38, 10")
            a("s_cmp_lt_u32 s38, 10")
            a("s_cselect_b32 s39, s38, s39")
            a("s_cselect_b32 s40, %d, 0" % ((-3 * 1152) & 0xffffffff))
            a("s_lshl_b32 s37, s39, 6")
            a("v_add_u32 v240, s37, v2")
            a("v_mul_u32_u24 v241, 7282, v240")
            a("v_lshrrev_b32 v241, 16, v241")
            a("v_mul_u32_u24 v242, 9, v241")
            a("v_sub_u32 v242, v240, v242")
            a("v_mul_u32_u24 v241, 1152, v241")
            a("v_lshl_add_u32 v241, v242, 4, v241")
            a("s_add_u32 s40, s40, s36")
            a("v_add_u32 v241, s40, v241")
            a("s_lshl_b32 s37, s38, 10")
            a("s_add_u32 s37, s37, %d" % KVL)
            a("s_mov_b32 m0, s37")
            if isK:
                a("s_nop 0")
                a("buffer_load_dwordx4 v241, s[64:67], 0 offen lds")
            elif isV:
                a("s_nop 0")
                a("buffer_load_dwordx4 v241, s[68:71], 0 offen lds")
            else:
                a("s_cmp_lt_u32 s38, 10")
                a("s_cbranch_scc1 %s_kd1" % name)
                a("buffer_load_dwordx4 v241, s[68:71], 0 offen lds")
                a("s_branch %s_kd2" % name)
                a.label("%s_kd1" % name)
                a("buffer_load_dwordx4 v241, s[64:67], 0 offen lds")
                a.label("%s_kd2" % name)
    RA = 96; XB = 112
    for r in range(RA, RA + 16): a("v_mov_b32 v%d, 0" % r)
    a("v_lshrrev_b32 v10, 4, v2")
    a("v_lshrrev_b32 v11, 1, v3")
    a("v_xor_b32 v10, v10, v11")
    a("v_lshlrev_b32 v10, 4, v10")
    a("v_lshl_add_u32 v10, v3, 7, v10")
    a("v_add_u32 v12, s84, v10")
    a("v_xor_b32 v13, 64, v12")
    def rs_rd(g):
        a("v_add_u32 v10, %d, v12" % ((g % R) * SLOT))
        a("v_add_u32 v11, %d, v13" % ((g % R) * SLOT))
        for h in range(2):
            for n in range(2):
                a("ds_read_b128 %s, v%d offset:%d" % (vr(XB + 8 * h + 4 * n), 10 + h, 2048 * n))
    def rs_do():
        for h in range(2):
            for n in range(2):
                x = XB + 8 * h + 4 * n
                a("v_mfma_f32_16x16x32_bf16 %s, %s, %s, %s" % (vr(RA + 4 * n), vr(ONE), vr(x), vr(RA + 4 * n)))
                a("v_mfma_f32_16x16x32_bf16 %s, %s, %s, %s" % (vr(RA + 8 + 4 * n), vr(x), vr(x), vr(RA + 8 + 4 * n)))
    def interleave(dma, comp, vmx=None):
        groups = []; cur = []
        for l in dma:
            cur.append(l)
            if "buffer_load" in l and not any("exec, 0xffffffff" in x for x in cur[-2:]):
                groups.append(cur); cur = []
            elif "exec, -1" in l:
                groups.append(cur); cur = []
        if cur: groups.append(cur)
        ns = max(1, len(groups))
        per = (len(comp) + ns - 1) // ns
        for g in groups:
            a.lines.extend(g)
            a.lines.extend(comp[:per]); comp = comp[per:]
        a.lines.extend(comp)
    vm.wait(["S0"])
    a("s_barrier")
    stamp(a, 1)
    rs_rd(0)
    vm.wait(["S1"])
    a("s_barrier")
    for k in range(9):
        a("s_waitcnt lgkmcnt(0)")
        dma = capture(lambda: (issueT(k + 3), issueF(k + 3))) if k >= 1 else []
        interleave(dma, capture(rs_do))
        if k >= 1: vm.issue("S%d" % (k + 3), 9)
        if k == 3:
            kv_dma(); vm.issue("KV", 5)
        if k < 8:
            rs_rd(k + 1)
        else:
            a("s_nop 7")
            a("v_lshrrev_b32 v10, 4, v2")
            a("v_lshrrev_b32 v11, 2, v3")
            a("v_and_b32 v12, 3, v3")
            for n in range(2):
                G_ = RA + 8 + 4 * n
                for r in range(1, 4):
                    a("v_cmp_eq_u32 vcc, %d, v12" % r)
                    a("s_nop 1")
                    a("v_cndmask_b32 v%d, v%d, v%d, vcc" % (G_, G_, G_ + r))
            ML = 112
            for n in range(2):
                emit_ln_finish(a, RA + 4 * n, RA + 8 + 4 * n, 576, ML + 2 * n, ML + 2 * n + 1, 120)
                a("v_mov_b32 v%d, v%d" % (117 + 2 * n, ML + 2 * n + 1))
                a("v_sub_f32 v%d, 0, v%d" % (116 + 2 * n, ML + 2 * n))
            a("s_lshl_b32 s35, s3, 8")
            a("v_lshlrev_b32 v13, 3, v3")
            a("v_add_u32 v12, s35, v13")
            a("v_cmp_eq_u32 vcc, v10, v11")
            a("s_and_saveexec_b64 s[36:37], vcc")
            for n in range(2):
                a("ds_write_b64 v12, %s offset:%d" % (vr(116 + 2 * n, 2), RST + 128 * n))
            a("s_mov_b64 exec, s[36:37]")
            a("s_cmp_lg_u32 s23, 0")
            a("s_cbranch_scc1 %s_nost1" % name)
            a("s_lshl_b32 s35, s22, 7")
            a("s_lshl_b32 s36, s3, 5")
            a("s_add_u32 s35, s35, s36")
            a("s_lshl_b32 s35, s35, 3")
            a("s_add_u32 s35, s35, 0x%x" % STATS1)
            a("v_mov_b32 v11, 0x7ffffff0")
            a("v_cndmask_b32 v13, v11, v13, vcc")
            for n in range(2):
                a("buffer_store_dwordx2 %s, v13, s[12:15], s35 offen offset:%d sc1" % (vr(ML + 2 * n, 2), 128 * n))
            a.label("%s_nost1" % name)
            mma_addr(9 % R)
            a("s_mov_b32 s33, 0")
            a("s_setprio 0")
        vm.wait(["S%d" % (k + 2)], "lgkmcnt(0)" if k == 8 else "")
        if k < 8: a("s_barrier")
    a("s_branch %s_mma" % name)
    a.label("%s_A0" % name)
    emit_code_prefetch(a, name)
    a("s_load_dwordx4 s[64:67], s[0:1], 8")
    a("s_load_dwordx2 s[76:77], s[0:1], 24")
    a("s_load_dwordx2 s[78:79], s[0:1], 64")
    mma_setup()
    loader_setup(); loader_setup2()
    a("s_waitcnt lgkmcnt(0)")
    srds_main()
    srd(a, 68, 66, 2048 * 576 * 2)
    a("s_mov_b32 s88, s64"); a("s_mov_b32 s89, s65")
    srd(a, 64, 88, 2048 * 576 * 2)
    srd(a, 72, 76, 576 * 8)
    stamp_setup(a, 1); stamp(a, 0)
    def gran_addr():
        a("v_lshrrev_b32 v10, 4, v2")
        a("s_lshl_b32 s36, s25, 1")
        a("v_add_u32 v11, s36, v10")
        a("v_and_b32 v11, 3, v11")
        a("v_lshl_add_u32 v11, v11, 4, v3")
        a("v_lshlrev_b32 v94, 8, v11")
        a("s_lshl_b32 s59, s22, 7")
        a("s_lshl_b32 s36, s24, 6")
        a("s_add_u32 s59, s59, s36")
        a("s_lshl_b32 s59, s59, 8")
        a("s_add_u32 s59, s59, 0x%x" % STATS2)
        a("s_lshl_b32 s36, s23, 1")
        a("s_add_u32 s36, s36, s25")
        a("s_lshl_b32 s36, s36, 3")
        a("s_add_u32 s58, s36, s59")
    gran_addr()
    a("v_mov_b32 v12, 0"); a("v_mov_b32 v13, 0x80000000")
    a("buffer_store_dwordx2 v[12:13], v94, s[12:15], s58 offen sc1")
    a("s_lshl_b32 s36, s22, 4")
    a("s_add_u32 s36, s36, s23")
    a("s_lshl_b32 s36, s36, 8")
    a("s_add_u32 s97, s36, 0x%x" % ZFLG)
    a("v_mov_b32 v10, %d" % LC)
    a("v_mov_b32 v12, 0"); a("v_mov_b32 v13, 0")
    a("s_mov_b64 exec, 1")
    a("buffer_store_dword v12, v12, s[12:15], s97 offen sc1")
    a("buffer_store_dword v12, v12, s[12:15], s97 offen offset:%d sc1" % PFL)
    a("s_mov_b64 exec, -1")
    a("ds_write_b64 v10, v[12:13]")
    a("ds_write_b64 v10, v[12:13] offset:8")
    a("ds_write_b64 v10, v[12:13] offset:16")
    a("ds_write_b64 v10, v[12:13] offset:24")
    mma_addr(0)
    a("s_mov_b32 s33, 0")
    a("s_waitcnt lgkmcnt(0)")
    a("s_barrier")
    stamp(a, 1)
    a.label("%s_mma" % name)
    core.prime(0, core.reads(0, 0))
    trk.drain()
    nocs = [False]
    def mfmas(buf):
        L = []
        for ft in range(5):
            A = core.F(buf, ft)
            for tt in range(4 if ft < 4 else 2):
                c = core.accr(ft, tt); B = core.T(buf, tt)
                L.append(("v_mfma_f32_16x16x32_bf16 %s, %s, %s, %s" % (vr(c), vr(A), vr(B), vr(c)), list(range(A, A + 4)) + list(range(B, B + 4))))
            if not nocs[0]: L.append(("v_mfma_f32_16x16x32_bf16 %s, %s, %s, %s" % (vr(CS + 4 * ft), vr(A), vr(ONE), vr(CS + 4 * ft)), list(range(A, A + 4))))
        return L
    def phase(buf, pend):
        for (m, regs) in mfmas(buf):
            trk.need(regs)
            a(m)
            while pend:
                k, t = pend.pop(0)
                if k == "x":
                    a(t)
                    if t.startswith("s_"): continue
                else:
                    a(t[0]); trk.issue(t[1])
                break
        for k, t in pend:
            if k == "x": a(t)
            else: a(t[0]); trk.issue(t[1])
    def iteration(vw=True):
        if vw: a("s_waitcnt vmcnt(0)")
        a("s_barrier")
        rd = [("r", t) for t in core.reads(1, 1)]
        upd = ["s_add_u32 s27, s27, %d" % SLOT, "s_cmp_eq_u32 s27, %d" % (R * SLOT), "s_cselect_b32 s27, 0, s27"]
        tail = ["v_add_u32 v%d, s27, v%d" % (d, s_) for d, s_ in ((vTa[0], bTa[0]), (vF, bF), (vTb[0], bTb[0]), (vFh, bFh))]
        phase(0, rd[:1] + [("x", u) for u in upd] + rd[1:] + [("x", u) for u in tail])
        rd = [("r", t) for t in core.reads(0, 0)]
        tail = ["v_add_u32 v%d, s27, v%d" % (d, s_) for d, s_ in ((vTa[1], bTa[1]), (vTb[1], bTb[1]))] + ["s_add_u32 s33, s33, 1"]
        phase(1, rd + [("x", u) for u in tail])
    a.label("%s_cloop" % name)
    lb = len(a.lines); iteration(); st = copy.deepcopy(trk.out); del a.lines[lb:]; trk.out = copy.deepcopy(st)
    iteration()
    assert [sorted(x) for x in trk.out] == [sorted(x) for x in st]
    a("s_cmp_lt_u32 s33, 9")
    a("s_cbranch_scc1 %s_cloop" % name)
    trk.drain()
    stamp(a, 2)
    MR = 100; T = 72; ZP = 16
    def epi_in():
        gelu_consts(a)
        a("s_lshl_b32 s36, s24, 9")
        a("s_lshl_b32 s37, s25, 8")
        a("s_add_u32 s38, s36, s37")
        a("s_xor_b32 s37, s37, 256")
        a("s_add_u32 s39, s36, s37")
        a("v_lshlrev_b32 v10, 3, v3")
        a("v_add_u32 v11, s38, v10")
        a("ds_read_b64 %s, v11 offset:%d" % (vr(MR, 2), RST))
        a("ds_read_b64 %s, v11 offset:%d" % (vr(MR + 2, 2), RST + 128))
        a("v_add_u32 v11, s39, v10")
        a("ds_read_b64 %s, v11 offset:%d" % (vr(MR + 4, 2), RST))
        a("ds_read_b64 %s, v11 offset:%d" % (vr(MR + 6, 2), RST + 128))
        a("s_waitcnt lgkmcnt(0)")
    S = [108, 110, 52, 54]; Q = [109, 111, 53, 55]
    def gelu_ft(ft, stats):
        tts = range(4 if ft < 4 else 2)
        a("s_call_b64 s[34:35], %s_gsub%d" % (name, ft))
        if stats:
            for d in range(2):
                for tt in tts:
                    p = ZP + 2 * tidx(ft, tt) + d
                    a("v_dot2_f32_bf16 v%d, v%d, v%d, v%d" % (S[tt], p, ONE, S[tt]))
                    a("v_dot2_f32_bf16 v%d, v%d, v%d, v%d" % (Q[tt], p, p, Q[tt]))
    a("s_cmp_eq_u32 s98, 0")
    a("s_cbranch_scc1 %s_A1" % name)
    a("s_barrier")
    a("s_load_dwordx2 s[94:95], s[0:1], 80")
    a("s_load_dwordx2 s[92:93], s[0:1], 72")
    epi_in()
    srd(a, 76, 94, 2304 * 576 * 2)
    srd(a, 28, 92, 2048 * 2)
    a("v_and_b32 v0, 255, v0")
    a("v_lshrrev_b32 v1, 3, v0")
    a("v_and_b32 v10, 7, v0")
    a("s_lshr_b32 s38, s2, 3")
    a("s_lshl_b32 s38, s38, 6")
    a("v_lshl_add_u32 v252, v10, 3, s38")
    a("s_and_b32 s39, s2, 7")
    a("s_mul_i32 s39, s39, 144")
    a("v_lshl_add_u32 v253, v1, 2, s39")
    a("v_lshlrev_b32 v11, 2, v253")
    a("buffer_load_dwordx4 v[248:251], v11, s[72:75], 0 offen")
    a("buffer_load_dwordx4 v[244:247], v11, s[72:75], 0 offen offset:512")
    a("v_mul_u32_u24 v254, 1152, v10")
    a("v_lshl_add_u32 v254, v1, 2, v254")
    a("v_add_u32 v254, %d, v254" % KVL)
    a("s_mov_b32 s41, 0")
    for ft in range(5): gelu_ft(ft, False)
    Z1R = 200; BI = 236
    for r_ in range(36): a("v_mov_b32 v%d, v%d" % (Z1R + r_, ZP + r_))
    stamp(a, 3)
    a("s_waitcnt vmcnt(0)")
    for r_ in range(6): a("v_mov_b32 v%d, v%d" % (128 + r_, 88 + r_))
    a.label("%s_kvb" % name)
    for n in range(11): a("ds_read_b32 v%d, v254 offset:%d" % (16 + n, 144 * n))
    a("s_waitcnt lgkmcnt(4)")
    for n in range(8): a("ds_read_b32 v%d, v254 offset:%d" % (32 + n, 10240 + 144 * n))
    for n in range(4): a("v_mov_b32 v%d, v%d" % (44 + n, 248 + n))
    a("v_mov_b32 v56, v252"); a("v_mov_b32 v57, v253")
    a("s_waitcnt lgkmcnt(0)")
    emit_kv_compute(a, wait=False, store=False)
    a("s_mov_b32 s39, 0x%x" % KVT)
    a("buffer_store_dwordx4 v[120:123], v12, s[12:15], s39 offen sc1")
    a("buffer_store_dwordx4 v[124:127], v13, s[12:15], s39 offen sc1")
    a("s_cmp_lg_u32 s41, 0")
    a("s_cbranch_scc1 %s_kvbx" % name)
    a("s_cmp_lg_u32 s3, 0")
    a("s_cbranch_scc1 %s_kvbx" % name)
    a("s_mov_b32 s41, 1")
    for n in range(4): a("v_mov_b32 v%d, v%d" % (248 + n, 244 + n))
    a("v_add_u32 v253, 128, v253")
    a("v_add_u32 v254, 128, v254")
    a("s_mov_b64 exec, 0xffffffff")
    a("s_branch %s_kvb" % name)
    a.label("%s_kvbx" % name)
    a("s_mov_b64 exec, -1")
    for r_ in range(6): a("v_mov_b32 v%d, v%d" % (240 + r_, 128 + r_))
    a.label("%s_kvbd" % name)
    for r_ in range(6): a("v_mov_b32 v%d, v%d" % (88 + r_, 240 + r_))
    a("s_mov_b32 s42, s2")
    emit_wot_loads(a, 100, 112, 720, 3)
    a("s_lshl_b32 s36, s22, 7")
    a("s_lshl_b32 s37, s24, 6")
    a("s_add_u32 s36, s36, s37")
    a("v_lshlrev_b32 v11, 1, v3")
    a("s_lshl_b32 s37, s25, 6")
    a("s_lshl_b32 s38, s36, 1")
    a("s_add_u32 s39, s38, s37")
    a("s_xor_b32 s37, s37, 64")
    a("s_add_u32 s36, s38, s37")
    a("buffer_load_ushort v96, v11, s[28:31], s39 offen")
    a("buffer_load_ushort v97, v11, s[28:31], s39 offen offset:32")
    a("buffer_load_ushort v98, v11, s[28:31], s36 offen")
    a("buffer_load_ushort v99, v11, s[28:31], s36 offen offset:32")
    for r in range(ACC, ACC + 72): a("v_mov_b32 v%d, 0" % r)
    a("v_lshrrev_b32 v10, 2, v2")
    a("v_lshlrev_b32 v10, 5, v10")
    a("v_and_b32 v11, 3, v2")
    a("v_lshl_add_u32 v10, v11, 3, v10")
    a("v_add_u32 v10, %d, v10" % (RB + TREG))
    a("s_mul_i32 s26, s25, 10240")
    a("v_add_u32 v%d, s26, v10" % bF)
    a("v_add_u32 v%d, 8192, v10" % bFh)
    core.FS = 32; core.FT = 2048
    mma_addr(0)
    a("s_mov_b32 s33, 0")
    stamp(a, 4)
    a("s_barrier")
    stamp(a, 5)
    core.prime(0, core.reads(0, 0))
    trk.drain()
    nocs[0] = True
    a.label("%s_gloop" % name)
    lb = len(a.lines); iteration(False); st = copy.deepcopy(trk.out); del a.lines[lb:]; trk.out = copy.deepcopy(st)
    iteration(False)
    assert [sorted(x) for x in trk.out] == [sorted(x) for x in st]
    a("s_cmp_lg_u32 s33, 3")
    a("s_cbranch_scc1 %s_ghk0" % name)
    a("s_waitcnt vmcnt(0)")
    for n in range(3):
        a("buffer_store_dwordx4 %s, v%d, s[12:15], s40 offen sc1" % (vr(100 + 4 * n), 112 + n))
    for tt in range(4): a("v_lshlrev_b32 v%d, 16, v%d" % (BI + 2 * tt, 96 + tt))
    a.label("%s_ghk0" % name)
    a("s_cmp_lg_u32 s33, 6")
    a("s_cbranch_scc1 %s_ghk" % name)
    a("s_waitcnt vmcnt(0)")
    a("v_mov_b32 v10, %d" % (LC + 8))
    a("v_mov_b32 v11, 1")
    a("s_mov_b64 exec, 1")
    a("ds_add_rtn_u32 v12, v10, v11")
    a("s_waitcnt lgkmcnt(0)")
    a("v_readfirstlane_b32 s36, v12")
    a("s_cmp_lg_u32 s36, 3")
    a("s_cbranch_scc1 %s_nokvs" % name)
    a("s_and_b32 s36, s2, 15")
    a("s_lshl_b32 s36, s36, 2")
    a("s_add_u32 s36, s36, 128")
    a("v_mov_b32 v10, s36")
    a("buffer_atomic_add v11, v10, s[60:63], 0 offen sc1")
    a.label("%s_nokvs" % name)
    a("s_mov_b64 exec, -1")
    a.label("%s_ghk" % name)
    a("s_cmp_lg_u32 s33, 24")
    a("s_cbranch_scc1 %s_ghk2" % name)
    a("v_lshlrev_b32 v10, 2, v3")
    a("buffer_load_dword v254, v10, s[60:63], 0 offen offset:128 sc1")
    a.label("%s_ghk2" % name)
    a("s_cmp_lt_u32 s33, 32")
    a("s_cbranch_scc1 %s_gloop" % name)
    trk.drain()
    stamp(a, 6)
    G3.emit_k2_epilogue2(a, core, Z1R, BI, " sc1")
    stamp(a, 7)
    a("s_setprio 3")
    a("s_lshl_b32 s36, s22, 4")
    a("s_add_u32 s36, s36, s23")
    a("s_lshl_b32 s36, s36, 8")
    a("s_add_u32 s97, s36, 0x%x" % (ZFLG + PFL))
    c_common()
    a("v_lshlrev_b32 v14, 4, v2")
    a("s_mul_i32 s26, s22, %d" % (36 * 8192))
    a("s_lshl_b32 s24, s3, 12")
    a("s_add_u32 s26, s26, s24")
    a("s_add_u32 s26, s26, 0x%x" % PIMG)
    a("s_mul_i32 s27, s23, %d" % (18 * 20480))
    a("s_mul_i32 s25, s3, 5120")
    a("s_add_u32 s27, s27, s25")
    a("s_add_u32 s27, s27, 0x%x" % WOT)
    a("s_add_u32 s25, s25, %d" % CTREG)
    a("v_and_b32 v28, 15, v2")
    a("v_lshlrev_b32 v30, 2, v28")
    a("v_mov_b32 v26, %d" % LC)
    a("v_mov_b32 v27, 1")
    a("s_waitcnt vmcnt(0)")
    a("v_mov_b32 v31, v254")
    a("s_mov_b64 exec, 1")
    a("ds_add_rtn_u32 v29, v26, v27 offset:16")
    a("s_waitcnt lgkmcnt(0)")
    a("v_readfirstlane_b32 s36, v29")
    a("s_cmp_lg_u32 s36, 3")
    a("s_cbranch_scc1 %s_nops" % name)
    a("v_mov_b32 v29, 0")
    a("buffer_store_dword v27, v29, s[12:15], s97 offen sc1")
    a.label("%s_nops" % name)
    a("s_mov_b64 exec, -1")
    a("s_mov_b32 s34, 0")
    a.label("%s_cw" % name)
    a("ds_read_b32 v29, v26 offset:16")
    a("s_add_u32 s34, s34, 1")
    a("s_waitcnt lgkmcnt(0)")
    a("v_readfirstlane_b32 s36, v29")
    a("s_cmp_gt_u32 s34, %d" % (SPIN_MAX * 20))
    a("s_cbranch_scc1 %s_cwx" % name)
    a("s_cmp_ge_u32 s36, 4")
    a("s_cbranch_scc1 %s_cwx" % name)
    a("s_sleep 1")
    a("s_branch %s_cw" % name)
    a.label("%s_cwx" % name)
    a("s_mov_b32 s34, 0")
    a.label("%s_cp" % name)
    a("v_cmp_gt_u32 vcc, 16, v31")
    a("s_add_u32 s34, s34, 1")
    a("s_cmp_gt_u32 s34, %d" % SPIN_MAX)
    a("s_cbranch_scc1 %s_cpx" % name)
    a("s_cbranch_vccz %s_cpx" % name)
    a("s_sleep 32")
    a("buffer_load_dword v31, v30, s[60:63], 0 offen offset:128 sc1")
    a("s_waitcnt vmcnt(0)")
    a("s_branch %s_cp" % name)
    a.label("%s_cpx" % name)
    def cF(off, soff):
        a("s_add_u32 s36, s25, %s" % off)
        a("s_mov_b32 m0, s36")
        a("s_add_u32 s37, %s, 4096" % soff)
        for n in range(4):
            a("buffer_load_dwordx4 v14, s[12:15], %s offen offset:%d sc1 lds" % (soff, n * 1024))
        a("s_add_u32 s36, s36, 4096")
        a("s_mov_b32 m0, s36")
        a("s_nop 0")
        a("buffer_load_dwordx4 v14, s[12:15], s37 offen sc1 lds")
    def cT(off, soff):
        a("s_add_u32 s35, s24, %s" % off)
        a("s_mov_b32 m0, s35")
        a("s_nop 0")
        for n in range(4):
            a("buffer_load_dwordx4 v14, s[12:15], %s offen offset:%d sc1 lds" % (soff, n * 1024))
    a("s_add_u32 s38, s27, 20480")
    cF(str(C0), "s27"); cF(str(C0 + CSL), "s38")
    a("s_mov_b32 s34, 0")
    a("s_cmp_lg_u32 s3, 0")
    a("s_cbranch_scc1 %s_cpl" % name)
    a("v_lshlrev_b32 v28, 8, v28")
    a("s_lshr_b32 s39, s22, 1")
    a("s_lshl_b32 s39, s39, 12")
    a("s_add_u32 s39, s39, 0x%x" % (ZFLG + PFL))
    a.label("%s_cpz" % name)
    a("buffer_load_dword v29, v28, s[12:15], s39 offen sc1")
    a("s_add_u32 s34, s34, 1")
    a("s_waitcnt vmcnt(0)")
    a("v_cmp_ne_u32 vcc, 1, v29")
    a("s_cmp_gt_u32 s34, %d" % SPIN_MAX)
    a("s_cbranch_scc1 %s_cpzx" % name)
    a("s_cbranch_vccz %s_cpzx" % name)
    a("s_sleep 8")
    a("s_branch %s_cpz" % name)
    a.label("%s_cpzx" % name)
    a("ds_write_b32 v26, v27 offset:24")
    a("s_branch %s_cgo" % name)
    a.label("%s_cpl" % name)
    a("ds_read_b32 v29, v26 offset:24")
    a("s_add_u32 s34, s34, 1")
    a("s_waitcnt lgkmcnt(0)")
    a("v_readfirstlane_b32 s36, v29")
    a("s_cmp_gt_u32 s34, %d" % (SPIN_MAX * 20))
    a("s_cbranch_scc1 %s_cgo" % name)
    a("s_cmp_lg_u32 s36, 0")
    a("s_cbranch_scc1 %s_cgo" % name)
    a("s_sleep 2")
    a("s_branch %s_cpl" % name)
    a.label("%s_cgo" % name)
    stamp(a, 8)
    a("s_add_u32 s38, s26, 16384")
    cT(str(C0), "s26"); cT(str(C0 + CSL), "s38")
    a("s_add_u32 s26, s26, 32768")
    a("s_add_u32 s27, s27, 40960")
    a("s_mov_b32 s33, %d" % RB)
    def cissue():
        cT("s33", "s26"); cF("s33", "s27")
        a("s_add_u32 s26, s26, 16384")
        a("s_add_u32 s27, s27, 20480")
        a("s_add_u32 s33, s33, %d" % CSL)
        a("s_cmp_eq_u32 s33, %d" % CW)
        a("s_cselect_b32 s33, %d, s33" % RB)
    a("s_waitcnt vmcnt(4)")
    a("s_barrier")
    cissue(); cissue()
    a("s_waitcnt vmcnt(18)")
    a("s_barrier")
    a("s_mov_b32 s34, 0")
    a.label("%s_clloop" % name)
    cissue()
    a("s_cmp_lg_u32 s34, 11")
    a("s_cbranch_scc1 %s_cl1" % name)
    a("buffer_load_dword v31, v30, s[60:63], 0 offen offset:192 sc1")
    a("s_waitcnt vmcnt(19)")
    a("s_branch %s_cl2" % name)
    a.label("%s_cl1" % name)
    a("s_waitcnt vmcnt(18)")
    a.label("%s_cl2" % name)
    a("s_barrier")
    a("s_add_u32 s34, s34, 1")
    a("s_cmp_lt_u32 s34, 14")
    a("s_cbranch_scc1 %s_clloop" % name)
    a("s_mov_b32 s34, 0")
    a.label("%s_cy" % name)
    a("v_cmp_gt_u32 vcc, 16, v31")
    a("s_add_u32 s34, s34, 1")
    a("s_cmp_gt_u32 s34, %d" % SPIN_MAX)
    a("s_cbranch_scc1 %s_cyx" % name)
    a("s_cbranch_vccz %s_cyx" % name)
    a("s_sleep 32")
    a("buffer_load_dword v31, v30, s[60:63], 0 offen offset:192 sc1")
    a("s_waitcnt vmcnt(0)")
    a("s_branch %s_cy" % name)
    a.label("%s_cyx" % name)
    a("v_lshrrev_b32 v3, 3, v2")
    a("v_and_b32 v4, 7, v2")
    a("v_lshlrev_b32 v4, 4, v4")
    a("s_mul_i32 s33, s52, 144")
    a("s_mul_i32 s34, s53, 80")
    a("s_lshl_b32 s35, s22, 7")
    a("s_add_u32 s35, s35, 0x%x" % YT)
    for n in range(3):
        a("s_add_u32 s36, s3, %d" % (4 * n))
        if n == 2: a("s_min_u32 s36, s36, 9")
        a("s_lshl_b32 s37, s36, 3")
        a("s_add_u32 s38, s37, s33")
        if n < 2: a("s_add_u32 s38, s38, s34")
        a("v_add_u32 v5, s38, v3")
        a("v_lshl_add_u32 v5, v5, 12, v4")
        a("s_lshl_b32 s36, s36, 10")
        a("s_add_u32 s36, s36, %d" % YOFF)
        a("s_mov_b32 m0, s36")
        a("s_nop 0")
        a("buffer_load_dwordx4 v5, s[12:15], s35 offen sc1 lds")
    fin_loads()
    a("s_waitcnt vmcnt(%d)" % (9 + 7))
    a("s_barrier")
    a("s_waitcnt vmcnt(7)")
    a("s_barrier")
    a("s_barrier")
    a("s_setprio 0")
    a("s_waitcnt vmcnt(0)")
    a("s_branch %s_cfin" % name)
    a.label("%s_A1" % name)
    a("s_setprio 2")
    vmA = VmTracker(a)
    PB = 132
    def aux_head():
        epi_in()
        for tt in range(4):
            a("v_mov_b32 v%d, 0" % S[tt]); a("v_mov_b32 v%d, 0" % Q[tt])
    def aux_pub():
        a("s_nop 2")
        emit_xg_reduce(a, S + Q, 72)
        a("v_lshrrev_b32 v10, 4, v2")
        for g in range(1, 4):
            a("v_cmp_eq_u32 vcc, %d, v10" % g)
            a("s_nop 1")
            a("v_cndmask_b32 v%d, v%d, v%d, vcc" % (S[0], S[0], S[g]))
            a("v_cndmask_b32 v%d, v%d, v%d, vcc" % (Q[0], Q[0], Q[g]))
        a("v_and_b32 v%d, 0x7fffffff, v%d" % (Q[0], Q[0]))
        a("buffer_store_dwordx2 v[%d:%d], v94, s[12:15], s58 offen sc1" % (S[0], Q[0]))
    chunks = [capture(aux_head) + capture(gelu_ft, 0, True), capture(gelu_ft, 1, True), capture(gelu_ft, 2, True),
              capture(gelu_ft, 3, True), capture(gelu_ft, 4, True) + capture(aux_pub)]
    KD = 172
    for k in range(9, 18):
        a("s_barrier")
        if k == 9:
            a("s_cmp_lg_u32 s3, 0")
            a("s_cbranch_scc1 %s_nosig" % name)
            a("v_mov_b32 v10, 1")
            a("s_lshl_b32 s36, s22, 2")
            a("v_mov_b32 v11, s36")
            a("s_mov_b64 exec, 1")
            a("buffer_atomic_add v10, v11, s[60:63], 0 offen sc1")
            a("s_mov_b64 exec, -1")
            a.label("%s_nosig" % name)
        g = k + 3
        dma = capture(lambda: (issueT(g), issueF(g))) if g < 18 else []
        comp = chunks[k - 9] if k - 9 < len(chunks) else []
        a.lines.extend(dma); a.lines.extend(comp)
        if k == 13: vmA.issue("pub", 1)
        if g < 18: vmA.issue("S%d" % g, 9)
        if k == 14:
            srd(a, 92, 78, 2048 * 2048 * 2)
            a("v_lshrrev_b32 v10, 4, v2")
            a("v_lshlrev_b32 v10, 12, v10")
            a("v_lshl_add_u32 v10, v3, 4, v10")
            a("s_lshl_b32 s40, s22, 7")
            a("s_lshl_b32 s36, s3, 5")
            a("s_add_u32 s40, s40, s36")
            a("s_lshl_b32 s40, s40, 12")
            a("s_lshl_b32 s36, s23, 8")
            a("s_add_u32 s40, s40, s36")
            for n in range(8):
                a("buffer_load_dwordx4 v[200:203], v10, s[92:95], s40 offen")
                if n < 7: a("s_add_u32 s40, s40, 16384")
            vmA.issue("wp", 8)
            a("s_lshl_b32 s36, s22, 2")
            a("v_mov_b32 v199, s36")
            a("buffer_load_dword v198, v199, s[60:63], 0 offen sc1"); vmA.issue("cnt", 1)
        if k + 2 < 18 and k + 2 >= 12:
            vmA.wait(["S%d" % (k + 2)])
    a("s_barrier")
    stamp(a, 3)
    a("s_load_dwordx4 s[88:91], s[0:1], 32")
    a("v_lshrrev_b32 v10, 4, v2")
    a("v_lshlrev_b32 v95, 8, v3")
    a("v_lshl_add_u32 v95, v10, 6, v95")
    a("s_lshl_b32 s33, s25, 13")
    a("s_add_u32 s52, s59, s33")
    a("s_xor_b32 s33, s33, 8192")
    a("s_add_u32 s53, s59, s33")
    a("s_add_u32 s42, s52, 4096")
    a("s_add_u32 s43, s53, 4096")
    Z2 = ZP
    a("s_waitcnt vmcnt(0)")
    GB = [128, 144, 160, 176]
    a("v_mov_b32 v4, v95")
    def gather():
        for tt in range(4):
            for q in range(4):
                a("buffer_load_dwordx4 %s, v4, s[12:15], s%d offen offset:%d sc1" % (vr(GB[tt] + 4 * q), (52, 42, 53, 43)[tt], 16 * q))
    gather()
    a("s_mov_b32 s40, 0")
    a("s_waitcnt vmcnt(0)")
    a.label("%s_chk" % name)
    a("v_subrev_u32 v11, 16, v198")
    for tt in range(4):
        for r in range(GB[tt] + 1, GB[tt] + 16, 4):
            a("v_or3_b32 v11, v11, v%d, v%d" % (r, r + 2))
    a("v_cmp_gt_i32 vcc, 0, v11")
    a("s_add_u32 s40, s40, 1")
    a("s_cmp_gt_u32 s40, %d" % SPIN_MAX)
    a("s_cbranch_scc1 %s_ok" % name)
    a("s_cbranch_vccz %s_ok" % name)
    a("s_sleep 32")
    a("buffer_load_dword v198, v199, s[60:63], 0 offen sc1")
    a("s_waitcnt vmcnt(0)")
    gather()
    a("s_waitcnt vmcnt(0)")
    a("s_branch %s_chk" % name)
    a.label("%s_ok" % name)
    stamp(a, 5)
    for tt in range(4):
        b = GB[tt]
        for st_ in (8, 4, 2):
            for q in range(0, st_, 2):
                a("v_pk_add_f32 %s, %s, %s" % (vr(b + q, 2), vr(b + q, 2), vr(b + q + st_, 2)))
    emit_xg_reduce(a, [GB[tt] + e for tt in range(4) for e in range(2)], 72)
    for tt in range(4):
        b = GB[tt]
        emit_ln_finish(a, b, b + 1, 2304, b + 2, MR + 2 * tt, b + 4)
        a("v_mul_f32 v%d, -v%d, v%d" % (MR + 2 * tt + 1, b + 2, MR + 2 * tt))
    a("v_lshrrev_b32 v10, 4, v2")
    a("v_lshrrev_b32 v11, 2, v2"); a("v_and_b32 v11, 1, v11"); a("v_lshlrev_b32 v11, 4, v11")
    a("v_lshrrev_b32 v5, 3, v2"); a("v_and_b32 v5, 1, v5"); a("v_lshl_add_u32 v11, v5, 2, v11")
    a("v_and_b32 v5, 3, v2"); a("v_add_u32 v11, v11, v5")
    a("v_and_b32 v5, 1, v10")
    a("v_lshl_add_u32 v11, v5, 3, v11")
    a("v_lshlrev_b32 v11, 5, v11")
    a("v_lshrrev_b32 v5, 1, v10")
    a("v_lshl_add_u32 v6, v5, 4, v11")
    a("s_lshl_b32 s33, s23, 5")
    a("s_lshl_b32 s36, s22, 1")
    a("s_add_u32 s33, s33, s36")
    a("s_add_u32 s33, s33, s24")
    a("s_mul_i32 s33, s33, 18432")
    if ZIMG: a("s_add_u32 s33, s33, 0x%x" % ZIMG)
    a("s_lshl_b32 s36, s25, 10")
    a("s_add_u32 s39, s33, s36")
    a("s_add_u32 s39, s39, 8192")
    a("s_mul_i32 s38, s25, 10240")
    a("s_add_u32 s33, s33, s38")
    a("s_add_u32 s37, s33, s36")
    a("s_xor_b32 s36, s36, 1024")
    a("s_add_u32 s38, s33, s36")
    a("s_add_u32 s33, s37, 4096")
    a("s_add_u32 s36, s38, 4096")
    def norm_pair(nA, ttA, nB, ttB, O):
        for q, (n, tt) in enumerate(((nA, ttA), (nB, ttB))):
            for d in range(2):
                z = Z2 + 2 * n + d; t = T + 4 * q + 2 * d
                a("v_lshlrev_b32 v%d, 16, v%d" % (t, z))
                a("v_and_b32 v%d, 0xffff0000, v%d" % (t + 1, z))
        for q, (n, tt) in enumerate(((nA, ttA), (nB, ttB))):
            for d in range(2):
                t = T + 4 * q + 2 * d
                a("v_pk_fma_f32 %s, %s, %s, %s op_sel:[0,0,1] op_sel_hi:[1,0,1]" % (vr(t, 2), vr(t, 2), vr(MR + 2 * tt, 2), vr(MR + 2 * tt, 2)))
        for q in range(2):
            for d in range(2):
                t = T + 4 * q + 2 * d
                a("v_cvt_pk_bf16_f32 v%d, v%d, v%d" % (O + 2 * q + d, t, t + 1))
        a("s_nop 1")
        a("v_permlane16_swap_b32 v%d, v%d" % (O, O + 2))
        a("v_permlane16_swap_b32 v%d, v%d" % (O + 1, O + 3))
    cnt = 0
    for ft in range(4):
        for pp in range(2):
            O = 200 + 4 * cnt; cnt += 1
            norm_pair(tidx(ft, 2 * pp), 2 * pp, tidx(ft, 2 * pp + 1), 2 * pp + 1, O)
            a("s_nop 0")
            a("buffer_store_dwordx4 %s, v6, s[12:15], s%d offen offset:%d sc1" % (vr(O), ((37, 38), (33, 36))[ft >> 1][pp], (ft & 1) * 2048))
    O = 200 + 4 * cnt
    norm_pair(16, 0, 17, 1, O)
    a("s_nop 0")
    a("buffer_store_dwordx4 %s, v6, s[12:15], s39 offen sc1" % vr(O))
    stamp(a, 6)
    a("s_setprio 3")
    srd(a, 8, 78, 2048 * 2048 * 2)
    a("v_lshrrev_b32 v3, 3, v2")
    a("s_lshl_b32 s24, s3, 5")
    a("v_add_u32 v3, s24, v3")
    a("v_and_b32 v4, 7, v2")
    a("v_lshrrev_b32 v6, 4, v2")
    a("v_xor_b32 v6, v6, v4")
    a("v_lshlrev_b32 v6, 4, v6")
    a("v_lshl_add_u32 v10, v3, 12, v6")
    a("v_xor_b32 v11, 64, v10")
    a("v_add_u32 v11, %d, v11" % (32768 - 1024))
    a("v_add_u32 v12, %d, v10" % (2 * (32768 - 1024)))
    a("v_add_u32 v13, %d, v11" % (2 * (32768 - 1024)))
    a("v_lshlrev_b32 v14, 4, v2")
    a("s_lshl_b32 s26, s22, 19")
    a("s_mul_i32 s27, s23, %d" % (32 * 18432))
    a("s_lshl_b32 s24, s3, 12")
    a("s_add_u32 s27, s27, s24")
    if ZIMG: a("s_add_u32 s27, s27, 0x%x" % ZIMG)
    a("s_lshl_b32 s25, s3, 9")
    a("s_sub_u32 s32, s25, s24")
    a("s_add_u32 s32, s32, 16384")
    a("s_add_u32 s24, s24, %d" % RB)
    a("s_waitcnt vmcnt(0) lgkmcnt(0)")
    a("v_mov_b32 v26, %d" % LC)
    a("v_mov_b32 v27, 1")
    a("s_mov_b64 exec, 1")
    a("ds_add_rtn_u32 v28, v26, v27")
    a("s_waitcnt lgkmcnt(0)")
    a("v_readfirstlane_b32 s36, v28")
    a("s_cmp_lg_u32 s36, 3")
    a("s_cbranch_scc1 %s_nozs" % name)
    a("v_mov_b32 v28, 0")
    a("buffer_store_dword v27, v28, s[12:15], s97 offen sc1")
    a.label("%s_nozs" % name)
    a("s_mov_b64 exec, -1")
    stamp(a, 7)
    srd(a, 16, 88, 576 * 2048 * 2)
    srd(a, 84, 90, 576 * 2)
    for g in range(4):
        a("s_add_u32 s35, s24, %d" % (g * SLOT))
        a("s_mov_b32 m0, s35")
        a("s_add_u32 s36, s26, %d" % (128 * g))
        for n in range(4):
            a("buffer_load_dwordx4 v%d, s[8:11], s36 offen offset:%d lds" % (10 + n, n * 1024))
    a("s_mov_b32 s34, 0")
    a("s_cmp_lg_u32 s3, 0")
    a("s_cbranch_scc1 %s_pl" % name)
    a("v_and_b32 v28, 15, v2")
    a("v_lshlrev_b32 v30, 2, v28")
    a("v_lshlrev_b32 v28, 12, v28")
    a("s_lshl_b32 s52, s23, 8")
    a("s_add_u32 s52, s52, 0x%x" % ZFLG)
    a.label("%s_pz0" % name)
    a("buffer_load_dword v31, v30, s[60:63], 0 offen sc1")
    a("s_add_u32 s34, s34, 1")
    a("s_waitcnt vmcnt(0)")
    a("v_cmp_gt_u32 vcc, 16, v31")
    a("s_cmp_gt_u32 s34, %d" % SPIN_MAX)
    a("s_cbranch_scc1 %s_pz" % name)
    a("s_cbranch_vccz %s_pz" % name)
    a("s_sleep 32")
    a("s_branch %s_pz0" % name)
    a.label("%s_pz" % name)
    a("buffer_load_dword v29, v28, s[12:15], s52 offen sc1")
    a("s_add_u32 s34, s34, 1")
    a("s_waitcnt vmcnt(0)")
    a("v_cmp_ne_u32 vcc, 1, v29")
    a("s_cmp_gt_u32 s34, %d" % SPIN_MAX)
    a("s_cbranch_scc1 %s_pzx" % name)
    a("s_cbranch_vccz %s_pzx" % name)
    a("s_sleep 8")
    a("s_branch %s_pz" % name)
    a.label("%s_pzx" % name)
    a("v_mov_b32 v27, 1")
    a("ds_write_b32 v26, v27 offset:4")
    a("s_branch %s_pgo" % name)
    a.label("%s_pl" % name)
    a("ds_read_b32 v27, v26 offset:4")
    a("s_add_u32 s34, s34, 1")
    a("s_waitcnt lgkmcnt(0)")
    a("v_readfirstlane_b32 s36, v27")
    a("s_cmp_gt_u32 s34, %d" % (SPIN_MAX * 20))
    a("s_cbranch_scc1 %s_pgo" % name)
    a("s_cmp_lg_u32 s36, 0")
    a("s_cbranch_scc1 %s_pgo" % name)
    a("s_sleep 2")
    a("s_branch %s_pl" % name)
    a.label("%s_pgo" % name)
    stamp(a, 8)
    for g in range(4):
        a("s_add_u32 s35, s24, %d" % (g * SLOT + TREG))
        a("s_mov_b32 m0, s35")
        a("s_add_u32 s36, s27, %d" % (18432 * g))
        a("s_add_u32 s37, s36, s32")
        for n in range(4):
            a("buffer_load_dwordx4 v14, s[12:15], s36 offen offset:%d sc1 lds" % (n * 1024))
        a("s_add_u32 s35, s35, s32")
        a("s_mov_b32 m0, s35")
        a("s_mov_b64 exec, 0xffffffff")
        a("buffer_load_dwordx4 v14, s[12:15], s37 offen sc1 lds")
        a("s_mov_b64 exec, -1")
    a("s_add_u32 s26, s26, 512")
    a("s_add_u32 s27, s27, %d" % (4 * 18432))
    a("s_mov_b32 s33, 0")
    a("s_lshl_b32 s43, s2, 2")
    a("s_add_u32 s43, s43, s3")
    a("s_and_b32 s53, s43, 1")
    a("s_sub_u32 s36, s43, 448")
    a("s_lshr_b32 s37, s43, 1")
    a("s_cmp_ge_u32 s43, 896")
    a("s_cselect_b32 s43, s36, s37")
    a("s_cselect_b32 s53, 2, s53")
    a("s_waitcnt vmcnt(15)")
    a("s_barrier")
    a("s_waitcnt vmcnt(10)")
    a("s_barrier")
    a("s_waitcnt vmcnt(5)")
    a("s_barrier")
    a("s_mov_b32 s34, 4")
    def issue2():
        a("s_add_u32 s35, s33, s24")
        a("s_mov_b32 m0, s35")
        a("s_add_u32 s36, s35, %d" % TREG)
        for n in range(4):
            a("buffer_load_dwordx4 v%d, s[8:11], s26 offen offset:%d lds" % (10 + n, n * 1024))
        a("s_mov_b32 m0, s36")
        a("s_add_u32 s37, s27, s32")
        for n in range(4):
            a("buffer_load_dwordx4 v14, s[12:15], s27 offen offset:%d sc1 lds" % (n * 1024))
        a("s_add_u32 s36, s36, s32")
        a("s_mov_b32 m0, s36")
        a("s_mov_b64 exec, 0xffffffff")
        a("buffer_load_dwordx4 v14, s[12:15], s37 offen sc1 lds")
        a("s_mov_b64 exec, -1")
        a("s_add_u32 s26, s26, 128")
        a("s_add_u32 s27, s27, 18432")
        a("s_add_u32 s33, s33, %d" % SLOT)
        a("s_cmp_eq_u32 s33, %d" % (R * SLOT))
        a("s_cselect_b32 s33, 0, s33")
    a.label("%s_lloop" % name)
    issue2()
    a("s_cmp_eq_u32 s34, 18")
    a("s_cbranch_scc1 %s_hk1" % name)
    a("s_cmp_eq_u32 s34, 21")
    a("s_cbranch_scc1 %s_hk2" % name)
    a("s_waitcnt vmcnt(9)")
    a.label("%s_lcont" % name)
    a("s_barrier")
    a("s_add_u32 s34, s34, 1")
    a("s_cmp_lt_u32 s34, 32")
    a("s_cbranch_scc1 %s_lloop" % name)
    a("s_branch %s_ldone" % name)
    a.label("%s_hk1" % name)
    a("v_and_b32 v28, 15, v2")
    a("v_lshlrev_b32 v28, 2, v28")
    a("buffer_load_dword v29, v28, s[60:63], 0 offen offset:128 sc1")
    a("s_waitcnt vmcnt(10)")
    a("s_branch %s_lcont" % name)
    a.label("%s_hk2" % name)
    a("s_mov_b32 s52, 0")
    a.label("%s_hk2l" % name)
    a("v_cmp_gt_u32 vcc, 16, v29")
    a("s_add_u32 s52, s52, 1")
    a("s_cmp_gt_u32 s52, %d" % SPIN_MAX)
    a("s_cbranch_scc1 %s_hk2g" % name)
    a("s_cbranch_vccz %s_hk2g" % name)
    a("s_sleep 16")
    a("buffer_load_dword v29, v28, s[60:63], 0 offen offset:128 sc1")
    a("s_waitcnt vmcnt(0)")
    a("s_branch %s_hk2l" % name)
    a.label("%s_hk2g" % name)
    nconv = emit_conv_loads(a, " sc1")
    a("s_waitcnt vmcnt(%d)" % (9 + nconv))
    a("s_branch %s_lcont" % name)
    a.label("%s_ldone" % name)
    a("s_waitcnt vmcnt(0)")
    a("s_barrier")
    a("s_mov_b32 s26, s53")
    a("s_and_b32 s27, s3, 1")
    a("s_mul_i32 s27, s27, %d" % CJ_SIZE)
    a("s_lshr_b32 s36, s3, 1")
    a("s_mul_i32 s36, s36, %d" % SLOT)
    a("s_add_u32 s27, s27, s36")
    a("s_add_u32 s27, s27, %d" % RB)
    def mid():
        a("s_barrier")
        a("s_setprio 0")
    sv = set(DBG); DBG.discard("stamp")
    lb_ = len(a.lines)
    emit_conv_job(a, name, mid)
    for n_ in range(lb_, len(a.lines)):
        if "buffer_store_dwordx2" in a.lines[n_]: a.lines[n_] += " sc1"
    DBG.update(sv)
    stamp(a, 9)
    c_common()
    cTa = [4, 4]; cTb = [6, 6]; cF_ = 8; cFh = 9
    kTa = 88; kTb = 90; kF = 92; kFh = 93
    a("v_and_b32 v3, 15, v2")
    a("v_lshrrev_b32 v10, 5, v2")
    a("v_lshlrev_b32 v10, 11, v10")
    a("v_bfe_u32 v11, v2, 4, 1")
    a("v_lshl_add_u32 v10, v11, 4, v10")
    a("v_lshl_add_u32 v10, v3, 5, v10")
    a("s_lshl_b32 s26, s3, 12")
    a("v_add_u32 v10, s26, v10")
    a("s_lshl_b32 s26, s53, 10")
    a("v_add_u32 v%d, s26, v10" % kTa)
    a("s_xor_b32 s26, s26, 1024")
    a("v_add_u32 v%d, s26, v10" % kTb)
    a("v_lshrrev_b32 v10, 2, v2")
    a("v_mul_u32_u24 v10, %d, v10" % CFS)
    a("v_and_b32 v11, 3, v2")
    a("v_lshl_add_u32 v10, v11, 3, v10")
    a("s_mul_i32 s26, s3, %d" % (32 * CFS))
    a("s_add_u32 s26, s26, %d" % CTREG)
    a("v_add_u32 v%d, s26, v10" % kF)
    a("v_add_u32 v%d, 128, v%d" % (kFh, kF))
    a("v_mov_b32 v26, %d" % LC)
    a("v_mov_b32 v27, 1")
    a("s_waitcnt vmcnt(0)")
    a("s_mov_b64 exec, 1")
    a("ds_add_rtn_u32 v28, v26, v27 offset:20")
    a("s_waitcnt lgkmcnt(0)")
    a("v_readfirstlane_b32 s36, v28")
    a("s_cmp_lg_u32 s36, 3")
    a("s_cbranch_scc1 %s_nocs" % name)
    a("s_and_b32 s36, s2, 15")
    a("s_lshl_b32 s36, s36, 2")
    a("s_add_u32 s36, s36, 192")
    a("v_mov_b32 v28, s36")
    a("buffer_atomic_add v27, v28, s[60:63], 0 offen sc1")
    a.label("%s_nocs" % name)
    a("s_mov_b64 exec, -1")
    fin_loads()
    core3 = G.Core(a, ACC, FB[0], FB[1], CFS, CTREG, cTa, cTb, cF_, cFh, TT=512)
    pairs = ((cTa[0], kTa), (cF_, kF), (cTb[0], kTb), (cFh, kFh))
    a("s_mov_b32 s27, %d" % C0)
    for d, s_ in pairs: a("v_add_u32 v%d, s27, v%d" % (d, s_))
    for r in range(ACC, ACC + 72): a("v_mov_b32 v%d, 0" % r)
    a("s_mov_b32 s33, 0")
    a("s_barrier")
    stamp(a, 10)
    core3.prime(0, core3.reads(0, 0))
    def citer(buf):
        core3.trk.drain()
        a("s_barrier")
        a("s_add_u32 s27, s27, %d" % CSL)
        a("s_cmp_eq_u32 s27, %d" % CW)
        a("s_cselect_b32 s27, %d, s27" % RB)
        pre = ["v_add_u32 v%d, s27, v%d" % (d, s_) for d, s_ in pairs]
        core3.phase(buf, core3.reads(1 - buf, 0), pre=pre)
    a.label("%s_ccloop" % name)
    citer(0); citer(1)
    a("s_add_u32 s33, s33, 1")
    a("s_cmp_lt_u32 s33, 9")
    a("s_cbranch_scc1 %s_ccloop" % name)
    core3.trk.drain()
    stamp(a, 11)
    a("s_mul_i32 s33, s3, %d" % (18 * 1024))
    a("s_add_u32 s33, s33, %d" % C0)
    a("v_lshlrev_b32 v10, 4, v2")
    a("v_add_u32 v11, s33, v10")
    a("s_nop 4")
    for n, (ft, tt) in enumerate(TILES):
        a("ds_write_b128 v11, %s offset:%d" % (vr(core3.accr(ft, tt)), 1024 * tidx(ft, tt)))
        if n in (7, 13): a("s_waitcnt lgkmcnt(4)")
    a("s_waitcnt lgkmcnt(0) vmcnt(0)")
    a.label("%s_cfin" % name)
    a("s_barrier")
    stamp(a, 12)
    a("v_lshlrev_b32 v10, 4, v2")
    a("v_lshrrev_b32 v11, 2, v2")
    a("v_lshlrev_b32 v11, 7, v11")
    a("v_and_b32 v12, 3, v2")
    a("v_lshl_add_u32 v11, v12, 3, v11")
    a("s_mov_b32 s33, 0xbfb8aa3b")
    PT = 16; YR = 64
    for s_ in range(3):
        b = 64 + 4 * s_
        if s_ == 2:
            a("s_cmp_ge_u32 s54, 2")
            a("s_cbranch_scc1 %s_rd" % name)
        a("v_add_u32 v4, s%d, v10" % (b + 2))
        a("v_add_u32 v5, s%d, v11" % (b + 1))
        for q in range(4):
            a("ds_read_b128 %s, v4 offset:%d" % (vr(PT + 16 * s_ + 4 * q), 18432 * q))
        a("ds_read_b64_tr_b16 %s, v5" % vr(YR + 2 * s_, 2))
    a.label("%s_rd" % name)
    T = 104
    for s_ in range(3):
        b = 64 + 4 * s_
        if s_ == 0: a("s_waitcnt lgkmcnt(5)")
        if s_ == 1: a("s_waitcnt lgkmcnt(0)")
        if s_ == 2:
            a("s_cmp_ge_u32 s54, 2")
            a("s_cbranch_scc1 %s_done" % name)
        o = PT + 16 * s_; X = XR + 2 * s_; Y = YR + 2 * s_; S_ = ST + 2 * s_
        for h in (0, 2):
            a("v_pk_add_f32 %s, %s, %s" % (vr(o + h, 2), vr(o + h, 2), vr(o + 4 + h, 2)))
            a("v_pk_add_f32 %s, %s, %s" % (vr(o + 8 + h, 2), vr(o + 8 + h, 2), vr(o + 12 + h, 2)))
        for h in (0, 2):
            a("v_pk_add_f32 %s, %s, %s" % (vr(o + h, 2), vr(o + h, 2), vr(o + 8 + h, 2)))
        rnd_pair(a, T + 20, o, o + 1); rnd_pair(a, T + 21, o + 2, o + 3)
        for r in range(4): a("v_mul_f32 v%d, s33, v%d" % (T + r, o + r))
        for r in range(4): a("v_exp_f32 v%d, v%d" % (T + r, T + r))
        a("v_lshlrev_b32 v%d, 16, v%d" % (T + 4, X)); a("v_and_b32 v%d, 0xffff0000, v%d" % (T + 5, X))
        a("v_lshlrev_b32 v%d, 16, v%d" % (T + 6, X + 1)); a("v_and_b32 v%d, 0xffff0000, v%d" % (T + 7, X + 1))
        for r in range(4): a("v_add_f32 v%d, 1.0, v%d" % (T + r, T + r))
        for r in range(4): a("v_rcp_f32 v%d, v%d" % (T + r, T + r))
        for r in range(4): a("v_sub_f32 v%d, v%d, v%d" % (T + 12 + r, T + 4 + r, S_))
        a("v_lshlrev_b32 v%d, 16, v%d" % (T + 8, Y)); a("v_and_b32 v%d, 0xffff0000, v%d" % (T + 9, Y))
        a("v_lshlrev_b32 v%d, 16, v%d" % (T + 10, Y + 1)); a("v_and_b32 v%d, 0xffff0000, v%d" % (T + 11, Y + 1))
        for r in range(4): a("v_mul_f32 v%d, v%d, v%d" % (o + r, o + r, T + r))
        rnd_pair(a, T + 20, T + 12, T + 13); rnd_pair(a, T + 21, T + 14, T + 15)
        rnd_pair(a, T + 22, o, o + 1); rnd_pair(a, T + 23, o + 2, o + 3)
        for r in range(4): a("v_mul_f32 v%d, v%d, v%d" % (T + 12 + r, T + 12 + r, S_ + 1))
        rnd_pair(a, T + 20, T + 12, T + 13); rnd_pair(a, T + 21, T + 14, T + 15)
        for r in range(4): a("v_mul_f32 v%d, v%d, v%d" % (T + 12 + r, T + 12 + r, T + 8 + r))
        rnd_pair(a, T + 20, T + 12, T + 13); rnd_pair(a, T + 21, T + 14, T + 15)
        for r in range(4): a("v_mul_f32 v%d, v%d, v%d" % (T + 12 + r, T + 12 + r, o + r))
        rnd_pair(a, T + 20, T + 12, T + 13); rnd_pair(a, T + 21, T + 14, T + 15)
        for r in range(4): a("v_add_f32 v%d, v%d, v%d" % (T + 12 + r, T + 12 + r, T + 4 + r))
        a("v_cvt_pk_bf16_f32 v%d, v%d, v%d" % (X, T + 12, T + 13))
        a("v_cvt_pk_bf16_f32 v%d, v%d, v%d" % (X + 1, T + 14, T + 15))
        a("buffer_store_dwordx2 %s, v13, s[28:31], s%d offen" % (vr(X, 2), b))
    a.label("%s_done" % name)
    stamp(a, 13)
    G.stamp_rt(a, 1)
    a.label("%s_end" % name)
    a("s_endpgm")
    for ft in range(5):
        a.label("%s_gsub%d" % (name, ft))
        tts = range(4 if ft < 4 else 2)
        emit_fold_gelu(a, [(128 + 4 * tidx(ft, tt), CS + 4 * ft, MR + 2 * tt, ZP + 2 * tidx(ft, tt)) for tt in tts], 72)
        a("s_setpc_b64 s[34:35]")
    return a.text(), kernel_desc(name, 256, 256), (name, 256, 512, 163840)

def gen_kf13(name="k1_kernel", R=4):
    a = Asm()
    RB = 4096; SLOT = 34816; TREG = 16384; FS = 288; RST = 0
    LDSB = RB + R * SLOT
    LC = 2048
    ZFLG = 0x2D00000; PFL = 128
    KVL = 143360
    C0 = 77824; CW = 151552; CSL = 36864; YOFF = 151552; CTREG = 16384; CFS = 160
    from gen3 import emit_conv_loads, emit_conv_job, CJ_SIZE
    def capture(f, *args):
        lb = len(a.lines); f(*args); out = a.lines[lb:]; del a.lines[lb:]; return out

    def c_common():
        a("s_load_dwordx2 s[4:5], s[0:1], 0")
        a("s_load_dwordx2 s[16:17], s[0:1], 88")
        a("s_and_b32 s20, s2, 7")
        a("s_lshr_b32 s21, s2, 3")
        a("s_and_b32 s22, s20, 3")
        a("s_lshl_b32 s22, s22, 3")
        a("s_and_b32 s23, s21, 7")
        a("s_add_u32 s22, s22, s23")
        a("s_lshr_b32 s23, s20, 2")
        a("s_lshl_b32 s23, s23, 2")
        a("s_lshr_b32 s24, s21, 3")
        a("s_add_u32 s23, s23, s24")
        a("s_lshr_b32 s52, s23, 1")
        a("s_and_b32 s53, s23, 1")
        a("s_lshl_b32 s54, s98, 2")
        a("s_add_u32 s54, s54, s3")
        a("s_waitcnt lgkmcnt(0)")
        srd(a, 8, 4, 2048 * 576 * 2)
        srd(a, 28, 16, 2048 * 576 * 2)
    XR = 200; ST = 208
    def fin_loads():
        a("v_and_b32 v3, 15, v2")
        a("v_lshrrev_b32 v10, 4, v2")
        a("v_mul_u32_u24 v13, 1152, v3")
        a("v_lshl_add_u32 v13, v10, 3, v13")
        a("v_lshlrev_b32 v12, 3, v3")
        for s_ in range(3):
            if s_ == 2:
                a("s_cmp_ge_u32 s54, 2")
                a("s_cbranch_scc1 %s_fl%d" % (name, fin_loads.cnt))
            b = 64 + 4 * s_
            if s_ < 2:
                a("s_add_u32 s36, s54, %d" % (8 * s_))
                a("s_lshr_b32 s37, s36, 2")
                a("s_and_b32 s38, s36, 3")
                a("s_mul_i32 s39, s53, 160")
                a("s_lshl_b32 s40, s37, 5")
                a("s_add_u32 s39, s39, s40")
            else:
                a("s_add_u32 s36, s54, 16")
                a("s_mov_b32 s37, 4")
                a("s_mov_b32 s38, s54")
                a("s_mov_b32 s39, 128")
            a("s_lshl_b32 s40, s53, 1")
            a("s_add_u32 s38, s38, s40")
            a("s_and_b32 s38, s38, 3")
            a("s_lshl_b32 s40, s22, 2")
            a("s_add_u32 s40, s40, s38")
            a("s_lshl_b32 s40, s40, 4")
            a("s_mul_i32 s%d, s40, 1152" % b)
            a("s_add_u32 s%d, s%d, s39" % (b, b))
            a("s_mul_i32 s39, s52, 288")
            a("s_add_u32 s%d, s%d, s39" % (b, b))
            a("s_lshl_b32 s%d, s37, 11" % (b + 1))
            a("s_lshl_b32 s39, s38, 5")
            a("s_add_u32 s%d, s%d, s39" % (b + 1, b + 1))
            a("s_add_u32 s%d, s%d, %d" % (b + 1, b + 1, YOFF))
            a("s_lshl_b32 s%d, s36, 10" % (b + 2))
            a("s_add_u32 s%d, s%d, %d" % (b + 2, b + 2, C0))
            a("s_lshl_b32 s40, s40, 3")
            a("s_add_u32 s40, s40, 0x%x" % STATS1)
            a("buffer_load_dwordx2 %s, v13, s[8:11], s%d offen" % (vr(XR + 2 * s_, 2), b))
            a("buffer_load_dwordx2 %s, v12, s[12:15], s40 offen sc1" % vr(ST + 2 * s_, 2))
        a.label("%s_fl%d" % (name, fin_loads.cnt))
        fin_loads.cnt += 1
    fin_loads.cnt = 0
    kernel_begin(a, name)
    a("s_load_dwordx2 s[80:81], s[0:1], 0")
    a("s_load_dwordx2 s[4:5], s[0:1], 56")
    a("s_load_dwordx2 s[6:7], s[0:1], 104")
    a("s_load_dwordx2 s[18:19], s[0:1], 96")
    a("s_cmp_ge_u32 s2, 256")
    a("s_cbranch_scc1 %s_end" % name)
    a("v_lshrrev_b32 v1, 6, v0")
    a("v_and_b32 v2, 63, v0")
    a("v_readfirstlane_b32 s3, v1")
    G2.tile_ij(a)
    a("s_lshr_b32 s98, s3, 2")
    a("s_mov_b32 s54x, 0".replace("s54x", "s99"))
    a("s_and_b32 s3, s3, 3")
    a("s_lshr_b32 s24, s3, 1")
    a("s_and_b32 s25, s3, 1")
    a("v_and_b32 v3, 15, v2")
    VT = 204; VF = 208
    def loader_setup():
        a("v_lshrrev_b32 v5, 3, v2")
        a("v_and_b32 v4, 7, v2")
        a("s_lshl_b32 s36, s3, 5")
        a("v_add_u32 v5, s36, v5")
        a("v_lshrrev_b32 v7, 4, v2")
        a("v_xor_b32 v7, v7, v4")
        a("v_mul_u32_u24 v6, 1152, v5")
        a("v_lshl_add_u32 v%d, v7, 4, v6" % VT)
        a("v_xor_b32 v%d, 64, v%d" % (VT + 1, VT))
        a("v_add_u32 v%d, %d, v%d" % (VT + 1, 9216 - 1024, VT + 1))
        a("v_add_u32 v%d, %d, v%d" % (VT + 2, 2 * (9216 - 1024), VT))
        a("v_add_u32 v%d, %d, v%d" % (VT + 3, 2 * (9216 - 1024), VT + 1))
        a("s_lshl_b32 s84, s3, 12")
        a("s_add_u32 s84, s84, %d" % RB)
        a("s_lshl_b32 s85, s3, 9")
        a("s_add_u32 s85, s85, %d" % (RB + TREG + 16384))
    def loader_setup2():
        for n in range(5):
            if n < 4:
                a("s_lshl_b32 s36, s3, 8")
                a("s_add_u32 s36, s36, %d" % (64 * n))
            else:
                a("s_lshl_b32 s36, s3, 5")
                a("s_add_u32 s36, s36, 1024")
            a("v_add_u32 v6, s36, v2")
            a("v_mul_u32_u24 v7, 3641, v6")
            a("v_lshrrev_b32 v7, 16, v7")
            a("v_mul_u32_u24 v8, 18, v7")
            a("v_sub_u32 v8, v6, v8")
            a("v_and_b32 v9, 35, v7")
            a("v_bfe_u32 v6, v7, 2, 2")
            a("v_lshl_add_u32 v9, v6, 3, v9")
            a("v_bfe_u32 v6, v7, 4, 1")
            a("v_lshl_add_u32 v9, v6, 2, v9")
            a("v_mul_u32_u24 v9, 9216, v9")
            a("v_lshl_add_u32 v%d, v8, 4, v9" % (VF + n))
            if 0 < n < 4: a("v_subrev_u32 v%d, %d, v%d" % (VF + n, 1024 * n, VF + n))
    def issueT(g):
        st = g % 9
        a("s_add_u32 s86, s84, %d" % ((g % R) * SLOT))
        a("s_mov_b32 m0, s86")
        a("s_add_u32 s87, s82, %d" % (128 * st))
        for n in range(4):
            a("buffer_load_dwordx4 v%d, s[28:31], s87 offen offset:%d lds" % (VT + n, 1024 * n))
    def issueF(g):
        st = g % 9
        a("s_add_u32 s86, s84, %d" % ((g % R) * SLOT + TREG))
        a("s_mov_b32 m0, s86")
        a("s_add_u32 s87, s83, %d" % (64 * 9216 * st + (4608 if g < 9 else 0)))
        for n in range(4):
            a("buffer_load_dwordx4 v%d, s[8:11], s87 offen offset:%d lds" % (VF + n, 1024 * n))
        a("s_add_u32 s86, s85, %d" % ((g % R) * SLOT))
        a("s_mov_b32 m0, s86")
        a("s_mov_b64 exec, 0xffffffff")
        a("buffer_load_dwordx4 v%d, s[8:11], s87 offen lds" % (VF + 4))
        a("s_mov_b64 exec, -1")
    def srds_main():
        srd(a, 28, 80, 2048 * 576 * 2)
        srd(a, 8, 4, 576 * 4608 * 2)
        srd(a, 12, 6, WS_BYTES)
        srd(a, 60, 18, 256)
        a("s_mul_i32 s82, s22, %d" % (128 * 1152))
        a("s_mul_i32 s83, s23, 288")
    ACC = 128; FB = [16, 52]; CS = 216; ONE = 236
    vTa = [4, 5]; vTb = [6, 7]; vF = 8; vFh = 9
    bTa = [88, 89]; bTb = [90, 91]; bF = 92; bFh = 93
    def mma_setup():
        a("v_lshrrev_b32 v10, 4, v2")
        a("v_lshrrev_b32 v11, 1, v3")
        a("v_xor_b32 v10, v10, v11")
        a("v_lshlrev_b32 v10, 4, v10")
        a("v_lshl_add_u32 v10, v3, 7, v10")
        a("s_lshl_b32 s26, s24, 13")
        a("s_add_u32 s26, s26, %d" % RB)
        a("v_add_u32 v10, s26, v10")
        a("s_lshl_b32 s26, s25, 12")
        a("v_add_u32 v%d, s26, v10" % bTa[0])
        a("s_xor_b32 s26, s26, 4096")
        a("v_add_u32 v%d, s26, v10" % bTb[0])
        a("v_xor_b32 v%d, 64, v%d" % (bTa[1], bTa[0]))
        a("v_xor_b32 v%d, 64, v%d" % (bTb[1], bTb[0]))
        a("v_lshrrev_b32 v10, 2, v2")
        a("v_mul_u32_u24 v10, %d, v10" % FS)
        a("v_and_b32 v11, 3, v2")
        a("v_lshl_add_u32 v10, v11, 3, v10")
        a("v_add_u32 v10, %d, v10" % (RB + TREG))
        a("s_mul_i32 s26, s25, 160")
        a("v_add_u32 v%d, s26, v10" % bF)
        a("v_add_u32 v%d, 128, v10" % bFh)
        for r in range(ACC, ACC + 72): a("v_mov_b32 v%d, 0" % r)
        for r in range(CS, CS + 20): a("v_mov_b32 v%d, 0" % r)
        for r in range(ONE, ONE + 4): a("v_mov_b32 v%d, 0x3f803f80" % r)
    def mma_addr(slot):
        a("s_mov_b32 s27, %d" % (slot * SLOT))
        for d, s_ in ((vTa[0], bTa[0]), (vTb[0], bTb[0]), (vTa[1], bTa[1]), (vTb[1], bTb[1]), (vF, bF), (vFh, bFh)):
            a("v_add_u32 v%d, s27, v%d" % (d, s_))
    core = G.Core(a, ACC, FB[0], FB[1], FS, TREG, vTa, vTb, vF, vFh)
    trk = core.trk
    a("s_cmp_eq_u32 s98, 0")
    a("s_cbranch_scc1 %s_A0" % name)
    a("s_setprio 3")
    loader_setup()
    a("s_waitcnt lgkmcnt(0)")
    srds_main()
    vm = VmTracker(a)
    def issue(g, vmx):
        issueT(g); issueF(g); vmx.issue("S%d" % g, 9)
    issueT(0)
    loader_setup2()
    issueF(0); vm.issue("S0", 9)
    issue(1, vm); issue(2, vm); issue(3, vm)
    a("s_add_u32 s3, s3, 4"); stamp_setup(a, 1); stamp(a, 0); a("s_sub_u32 s3, s3, 4")
    a("s_load_dwordx4 s[64:67], s[0:1], 8")
    a("s_load_dwordx2 s[76:77], s[0:1], 24")
    mma_setup()
    a("s_waitcnt lgkmcnt(0)")
    srd(a, 68, 66, 2048 * 576 * 2)
    a("s_mov_b32 s88, s64"); a("s_mov_b32 s89, s65")
    srd(a, 64, 88, 2048 * 576 * 2)
    srd(a, 72, 76, 576 * 8)
    def kv_dma():
        a("s_lshr_b32 s36, s2, 3")
        a("s_mul_i32 s36, s36, %d" % (64 * 1152))
        a("s_and_b32 s37, s2, 7")
        a("s_mul_i32 s37, s37, 144")
        a("s_add_u32 s36, s36, s37")
        for q in range(5):
            a("s_add_u32 s38, s3, %d" % (4 * q))
            if q == 4: a("s_min_u32 s38, s38, 18")
            isK = (q < 2); isV = (q > 2)
            a("s_sub_u32 s39, s38, 10")
            a("s_cmp_lt_u32 s38, 10")
            a("s_cselect_b32 s39, s38, s39")
            a("s_cselect_b32 s40, %d, 0" % ((-3 * 1152) & 0xffffffff))
            a("s_lshl_b32 s37, s39, 6")
            a("v_add_u32 v240, s37, v2")
            a("v_mul_u32_u24 v241, 7282, v240")
            a("v_lshrrev_b32 v241, 16, v241")
            a("v_mul_u32_u24 v242, 9, v241")
            a("v_sub_u32 v242, v240, v242")
            a("v_mul_u32_u24 v241, 1152, v241")
            a("v_lshl_add_u32 v241, v242, 4, v241")
            a("s_add_u32 s40, s40, s36")
            a("v_add_u32 v241, s40, v241")
            a("s_lshl_b32 s37, s38, 10")
            a("s_add_u32 s37, s37, %d" % KVL)
            a("s_mov_b32 m0, s37")
            if isK:
                a("s_nop 0")
                a("buffer_load_dwordx4 v241, s[64:67], 0 offen lds")
            elif isV:
                a("s_nop 0")
                a("buffer_load_dwordx4 v241, s[68:71], 0 offen lds")
            else:
                a("s_cmp_lt_u32 s38, 10")
                a("s_cbranch_scc1 %s_kd1" % name)
                a("buffer_load_dwordx4 v241, s[68:71], 0 offen lds")
                a("s_branch %s_kd2" % name)
                a.label("%s_kd1" % name)
                a("buffer_load_dwordx4 v241, s[64:67], 0 offen lds")
                a.label("%s_kd2" % name)
    RA = 96; XB = 112
    for r in range(RA, RA + 16): a("v_mov_b32 v%d, 0" % r)
    a("v_lshrrev_b32 v10, 4, v2")
    a("v_lshrrev_b32 v11, 1, v3")
    a("v_xor_b32 v10, v10, v11")
    a("v_lshlrev_b32 v10, 4, v10")
    a("v_lshl_add_u32 v10, v3, 7, v10")
    a("v_add_u32 v12, s84, v10")
    a("v_xor_b32 v13, 64, v12")
    def rs_rd(g):
        a("v_add_u32 v10, %d, v12" % ((g % R) * SLOT))
        a("v_add_u32 v11, %d, v13" % ((g % R) * SLOT))
        for h in range(2):
            for n in range(2):
                a("ds_read_b128 %s, v%d offset:%d" % (vr(XB + 8 * h + 4 * n), 10 + h, 2048 * n))
    def rs_do():
        for h in range(2):
            for n in range(2):
                x = XB + 8 * h + 4 * n
                a("v_mfma_f32_16x16x32_bf16 %s, %s, %s, %s" % (vr(RA + 4 * n), vr(ONE), vr(x), vr(RA + 4 * n)))
                a("v_mfma_f32_16x16x32_bf16 %s, %s, %s, %s" % (vr(RA + 8 + 4 * n), vr(x), vr(x), vr(RA + 8 + 4 * n)))
    def interleave(dma, comp, vmx=None):
        groups = []; cur = []
        for l in dma:
            cur.append(l)
            if "buffer_load" in l and not any("exec, 0xffffffff" in x for x in cur[-2:]):
                groups.append(cur); cur = []
            elif "exec, -1" in l:
                groups.append(cur); cur = []
        if cur: groups.append(cur)
        ns = max(1, len(groups))
        per = (len(comp) + ns - 1) // ns
        for g in groups:
            a.lines.extend(g)
            a.lines.extend(comp[:per]); comp = comp[per:]
        a.lines.extend(comp)
    vm.wait(["S0"])
    a("s_barrier")
    stamp(a, 1)
    rs_rd(0)
    vm.wait(["S1"])
    a("s_barrier")
    for k in range(9):
        a("s_waitcnt lgkmcnt(0)")
        dma = capture(lambda: (issueT(k + 3), issueF(k + 3))) if k >= 1 else []
        interleave(dma, capture(rs_do))
        if k >= 1: vm.issue("S%d" % (k + 3), 9)
        if k == 3:
            kv_dma(); vm.issue("KV", 5)
        if k < 8:
            rs_rd(k + 1)
        else:
            a("s_nop 7")
            a("v_lshrrev_b32 v10, 4, v2")
            a("v_lshrrev_b32 v11, 2, v3")
            a("v_and_b32 v12, 3, v3")
            for n in range(2):
                G_ = RA + 8 + 4 * n
                for r in range(1, 4):
                    a("v_cmp_eq_u32 vcc, %d, v12" % r)
                    a("s_nop 1")
                    a("v_cndmask_b32 v%d, v%d, v%d, vcc" % (G_, G_, G_ + r))
            ML = 112
            for n in range(2):
                emit_ln_finish(a, RA + 4 * n, RA + 8 + 4 * n, 576, ML + 2 * n, ML + 2 * n + 1, 120)
                a("v_mov_b32 v%d, v%d" % (117 + 2 * n, ML + 2 * n + 1))
                a("v_sub_f32 v%d, 0, v%d" % (116 + 2 * n, ML + 2 * n))
            a("s_lshl_b32 s35, s3, 8")
            a("v_lshlrev_b32 v13, 3, v3")
            a("v_add_u32 v12, s35, v13")
            a("v_cmp_eq_u32 vcc, v10, v11")
            a("s_and_saveexec_b64 s[36:37], vcc")
            for n in range(2):
                a("ds_write_b64 v12, %s offset:%d" % (vr(116 + 2 * n, 2), RST + 128 * n))
            a("s_mov_b64 exec, s[36:37]")
            a("s_cmp_lg_u32 s23, 0")
            a("s_cbranch_scc1 %s_nost1" % name)
            a("s_lshl_b32 s35, s22, 7")
            a("s_lshl_b32 s36, s3, 5")
            a("s_add_u32 s35, s35, s36")
            a("s_lshl_b32 s35, s35, 3")
            a("s_add_u32 s35, s35, 0x%x" % STATS1)
            a("v_mov_b32 v11, 0x7ffffff0")
            a("v_cndmask_b32 v13, v11, v13, vcc")
            for n in range(2):
                a("buffer_store_dwordx2 %s, v13, s[12:15], s35 offen offset:%d sc1" % (vr(ML + 2 * n, 2), 128 * n))
            a.label("%s_nost1" % name)
            a("v_and_b32 v0, 255, v0")
            a("v_lshrrev_b32 v1, 3, v0")
            a("v_and_b32 v10, 7, v0")
            a("s_lshr_b32 s38, s2, 3")
            a("s_lshl_b32 s38, s38, 6")
            a("v_lshl_add_u32 v252, v10, 3, s38")
            a("s_and_b32 s39, s2, 7")
            a("s_mul_i32 s39, s39, 144")
            a("v_lshl_add_u32 v253, v1, 2, s39")
            a("v_lshlrev_b32 v11, 2, v253")
            a("buffer_load_dwordx4 v[248:251], v11, s[72:75], 0 offen")
            a("buffer_load_dwordx4 v[244:247], v11, s[72:75], 0 offen offset:512")
            a("v_mul_u32_u24 v254, 1152, v10")
            a("v_lshl_add_u32 v254, v1, 2, v254")
            a("v_add_u32 v254, %d, v254" % KVL)
            a("s_mov_b32 s41, 0")
            mma_addr(9 % R)
            a("s_mov_b32 s33, 0")
            a("s_setprio 0")
        vm.wait(["S%d" % (k + 2)], "lgkmcnt(0)" if k == 8 else "")
        if k < 8: a("s_barrier")
    a("s_branch %s_mma" % name)
    a.label("%s_A0" % name)
    emit_code_prefetch(a, name)
    a("s_load_dwordx4 s[64:67], s[0:1], 8")
    a("s_load_dwordx2 s[76:77], s[0:1], 24")
    a("s_load_dwordx2 s[78:79], s[0:1], 64")
    mma_setup()
    loader_setup(); loader_setup2()
    a("s_waitcnt lgkmcnt(0)")
    srds_main()
    srd(a, 68, 66, 2048 * 576 * 2)
    a("s_mov_b32 s88, s64"); a("s_mov_b32 s89, s65")
    srd(a, 64, 88, 2048 * 576 * 2)
    srd(a, 72, 76, 576 * 8)
    stamp_setup(a, 1); stamp(a, 0)
    def gran_addr():
        a("v_lshrrev_b32 v10, 4, v2")
        a("s_lshl_b32 s36, s25, 1")
        a("v_add_u32 v11, s36, v10")
        a("v_and_b32 v11, 3, v11")
        a("v_lshl_add_u32 v11, v11, 4, v3")
        a("v_lshlrev_b32 v94, 3, v11")
        a("s_lshl_b32 s59, s22, 15")
        a("s_lshl_b32 s36, s24, 9")
        a("s_add_u32 s59, s59, s36")
        a("s_add_u32 s59, s59, 0x%x" % STATS2)
        a("s_lshl_b32 s36, s23, 1")
        a("s_add_u32 s36, s36, s25")
        a("s_lshl_b32 s36, s36, 10")
        a("s_add_u32 s58, s36, s59")
    gran_addr()
    a("v_mov_b32 v12, 0"); a("v_mov_b32 v13, 0x80000000")
    a("buffer_store_dwordx2 v[12:13], v94, s[12:15], s58 offen sc1")
    a("s_lshl_b32 s36, s22, 4")
    a("s_add_u32 s36, s36, s23")
    a("s_lshl_b32 s36, s36, 8")
    a("s_add_u32 s97, s36, 0x%x" % ZFLG)
    a("v_mov_b32 v10, %d" % LC)
    a("v_mov_b32 v12, 0"); a("v_mov_b32 v13, 0")
    a("s_mov_b64 exec, 1")
    a("buffer_store_dword v12, v12, s[12:15], s97 offen sc1")
    a("buffer_store_dword v12, v12, s[12:15], s97 offen offset:%d sc1" % PFL)
    a("s_mov_b64 exec, -1")
    a("ds_write_b64 v10, v[12:13]")
    a("ds_write_b64 v10, v[12:13] offset:8")
    a("ds_write_b64 v10, v[12:13] offset:16")
    a("ds_write_b64 v10, v[12:13] offset:24")
    mma_addr(0)
    a("s_mov_b32 s33, 0")
    a("s_waitcnt lgkmcnt(0)")
    a("s_barrier")
    stamp(a, 1)
    a.label("%s_mma" % name)
    core.prime(0, core.reads(0, 0))
    trk.drain()
    nocs = [False]
    def mfmas(buf):
        L = []
        for ft in range(5):
            A = core.F(buf, ft)
            for tt in range(4 if ft < 4 else 2):
                c = core.accr(ft, tt); B = core.T(buf, tt)
                L.append(("v_mfma_f32_16x16x32_bf16 %s, %s, %s, %s" % (vr(c), vr(A), vr(B), vr(c)), list(range(A, A + 4)) + list(range(B, B + 4))))
            if not nocs[0]: L.append(("v_mfma_f32_16x16x32_bf16 %s, %s, %s, %s" % (vr(CS + 4 * ft), vr(A), vr(ONE), vr(CS + 4 * ft)), list(range(A, A + 4))))
        return L
    def phase(buf, pend):
        for (m, regs) in mfmas(buf):
            trk.need(regs)
            a(m)
            while pend:
                k, t = pend.pop(0)
                if k == "x":
                    a(t)
                    if t.startswith("s_"): continue
                else:
                    a(t[0]); trk.issue(t[1])
                break
        for k, t in pend:
            if k == "x": a(t)
            else: a(t[0]); trk.issue(t[1])
    def iteration(vw=True):
        if vw: a("s_waitcnt vmcnt(0)")
        a("s_barrier")
        rd = [("r", t) for t in core.reads(1, 1)]
        upd = ["s_add_u32 s27, s27, %d" % SLOT, "s_cmp_eq_u32 s27, %d" % (R * SLOT), "s_cselect_b32 s27, 0, s27"]
        tail = ["v_add_u32 v%d, s27, v%d" % (d, s_) for d, s_ in ((vTa[0], bTa[0]), (vF, bF), (vTb[0], bTb[0]), (vFh, bFh))]
        phase(0, rd[:1] + [("x", u) for u in upd] + rd[1:] + [("x", u) for u in tail])
        rd = [("r", t) for t in core.reads(0, 0)]
        tail = ["v_add_u32 v%d, s27, v%d" % (d, s_) for d, s_ in ((vTa[1], bTa[1]), (vTb[1], bTb[1]))] + ["s_add_u32 s33, s33, 1"]
        phase(1, rd + [("x", u) for u in tail])
    a.label("%s_cloop" % name)
    lb = len(a.lines); iteration(); st = copy.deepcopy(trk.out); del a.lines[lb:]; trk.out = copy.deepcopy(st)
    iteration()
    assert [sorted(x) for x in trk.out] == [sorted(x) for x in st]
    a("s_cmp_lt_u32 s33, 9")
    a("s_cbranch_scc1 %s_cloop" % name)
    trk.drain()
    stamp(a, 2)
    MR = 100; T = 72; ZP = 16
    def epi_in():
        gelu_consts(a)
        a("s_lshl_b32 s36, s24, 9")
        a("s_lshl_b32 s37, s25, 8")
        a("s_add_u32 s38, s36, s37")
        a("s_xor_b32 s37, s37, 256")
        a("s_add_u32 s39, s36, s37")
        a("v_lshlrev_b32 v10, 3, v3")
        a("v_add_u32 v11, s38, v10")
        a("ds_read_b64 %s, v11 offset:%d" % (vr(MR, 2), RST))
        a("ds_read_b64 %s, v11 offset:%d" % (vr(MR + 2, 2), RST + 128))
        a("v_add_u32 v11, s39, v10")
        a("ds_read_b64 %s, v11 offset:%d" % (vr(MR + 4, 2), RST))
        a("ds_read_b64 %s, v11 offset:%d" % (vr(MR + 6, 2), RST + 128))
        a("s_waitcnt lgkmcnt(0)")
    S = [108, 110, 52, 54]; Q = [109, 111, 53, 55]
    def gelu_ft(ft, stats):
        tts = range(4 if ft < 4 else 2)
        a("s_call_b64 s[34:35], %s_gsub%d" % (name, ft))
        if stats:
            for d in range(2):
                for tt in tts:
                    p = ZP + 2 * tidx(ft, tt) + d
                    a("v_dot2_f32_bf16 v%d, v%d, v%d, v%d" % (S[tt], p, ONE, S[tt]))
                    a("v_dot2_f32_bf16 v%d, v%d, v%d, v%d" % (Q[tt], p, p, Q[tt]))
    a("s_cmp_eq_u32 s98, 0")
    a("s_cbranch_scc1 %s_A1" % name)
    a("s_barrier")
    a("s_load_dwordx2 s[94:95], s[0:1], 80")
    a("s_load_dwordx2 s[92:93], s[0:1], 72")
    epi_in()
    srd(a, 76, 94, 2304 * 576 * 2)
    srd(a, 28, 92, 2048 * 2)
    for ft in range(5): gelu_ft(ft, False)
    Z1R = 200; BI = 236
    for r_ in range(36): a("v_mov_b32 v%d, v%d" % (Z1R + r_, ZP + r_))
    stamp(a, 3)
    a("s_waitcnt vmcnt(0)")
    for r_ in range(6): a("v_mov_b32 v%d, v%d" % (128 + r_, 88 + r_))
    a.label("%s_kvb" % name)
    for n in range(11): a("ds_read_b32 v%d, v254 offset:%d" % (16 + n, 144 * n))
    a("s_waitcnt lgkmcnt(4)")
    for n in range(8): a("ds_read_b32 v%d, v254 offset:%d" % (32 + n, 10240 + 144 * n))
    for n in range(4): a("v_mov_b32 v%d, v%d" % (44 + n, 248 + n))
    a("v_mov_b32 v56, v252"); a("v_mov_b32 v57, v253")
    a("s_waitcnt lgkmcnt(0)")
    emit_kv_compute(a, wait=False, store=False)
    a("s_mov_b32 s39, 0x%x" % KVT)
    a("buffer_store_dwordx4 v[120:123], v12, s[12:15], s39 offen sc1")
    a("buffer_store_dwordx4 v[124:127], v13, s[12:15], s39 offen sc1")
    a("s_cmp_lg_u32 s41, 0")
    a("s_cbranch_scc1 %s_kvbx" % name)
    a("s_cmp_lg_u32 s3, 0")
    a("s_cbranch_scc1 %s_kvbx" % name)
    a("s_mov_b32 s41, 1")
    for n in range(4): a("v_mov_b32 v%d, v%d" % (248 + n, 244 + n))
    a("v_add_u32 v253, 128, v253")
    a("v_add_u32 v254, 128, v254")
    a("s_mov_b64 exec, 0xffffffff")
    a("s_branch %s_kvb" % name)
    a.label("%s_kvbx" % name)
    a("s_mov_b64 exec, -1")
    for r_ in range(6): a("v_mov_b32 v%d, v%d" % (240 + r_, 128 + r_))
    a.label("%s_kvbd" % name)
    for r_ in range(6): a("v_mov_b32 v%d, v%d" % (88 + r_, 240 + r_))
    a("s_mov_b32 s42, s2")
    emit_wot_loads(a, 100, 112, 720, 3)
    a("s_lshl_b32 s36, s22, 7")
    a("s_lshl_b32 s37, s24, 6")
    a("s_add_u32 s36, s36, s37")
    a("v_lshlrev_b32 v11, 1, v3")
    a("s_lshl_b32 s37, s25, 6")
    a("s_lshl_b32 s38, s36, 1")
    a("s_add_u32 s39, s38, s37")
    a("s_xor_b32 s37, s37, 64")
    a("s_add_u32 s36, s38, s37")
    a("buffer_load_ushort v96, v11, s[28:31], s39 offen")
    a("buffer_load_ushort v97, v11, s[28:31], s39 offen offset:32")
    a("buffer_load_ushort v98, v11, s[28:31], s36 offen")
    a("buffer_load_ushort v99, v11, s[28:31], s36 offen offset:32")
    for r in range(ACC, ACC + 72): a("v_mov_b32 v%d, 0" % r)
    a("v_lshrrev_b32 v10, 2, v2")
    a("v_lshlrev_b32 v10, 5, v10")
    a("v_and_b32 v11, 3, v2")
    a("v_lshl_add_u32 v10, v11, 3, v10")
    a("v_add_u32 v10, %d, v10" % (RB + TREG))
    a("s_mul_i32 s26, s25, 10240")
    a("v_add_u32 v%d, s26, v10" % bF)
    a("v_add_u32 v%d, 8192, v10" % bFh)
    core.FS = 32; core.FT = 2048
    mma_addr(0)
    a("s_mov_b32 s33, 0")
    stamp(a, 4)
    a("s_barrier")
    stamp(a, 5)
    core.prime(0, core.reads(0, 0))
    trk.drain()
    nocs[0] = True
    a.label("%s_gloop" % name)
    lb = len(a.lines); iteration(False); st = copy.deepcopy(trk.out); del a.lines[lb:]; trk.out = copy.deepcopy(st)
    iteration(False)
    assert [sorted(x) for x in trk.out] == [sorted(x) for x in st]
    a("s_cmp_lg_u32 s33, 3")
    a("s_cbranch_scc1 %s_ghk0" % name)
    a("s_waitcnt vmcnt(0)")
    for n in range(3):
        a("buffer_store_dwordx4 %s, v%d, s[12:15], s40 offen sc1" % (vr(100 + 4 * n), 112 + n))
    for tt in range(4): a("v_lshlrev_b32 v%d, 16, v%d" % (BI + 2 * tt, 96 + tt))
    a.label("%s_ghk0" % name)
    a("s_cmp_lg_u32 s33, 6")
    a("s_cbranch_scc1 %s_ghk" % name)
    a("s_waitcnt vmcnt(0)")
    a("v_mov_b32 v10, %d" % (LC + 8))
    a("v_mov_b32 v11, 1")
    a("s_mov_b64 exec, 1")
    a("ds_add_rtn_u32 v12, v10, v11")
    a("s_waitcnt lgkmcnt(0)")
    a("v_readfirstlane_b32 s36, v12")
    a("s_cmp_lg_u32 s36, 3")
    a("s_cbranch_scc1 %s_nokvs" % name)
    a("s_and_b32 s36, s2, 15")
    a("s_lshl_b32 s36, s36, 2")
    a("s_add_u32 s36, s36, 128")
    a("v_mov_b32 v10, s36")
    a("buffer_atomic_add v11, v10, s[60:63], 0 offen sc1")
    a.label("%s_nokvs" % name)
    a("s_mov_b64 exec, -1")
    a.label("%s_ghk" % name)
    a("s_cmp_lg_u32 s33, 24")
    a("s_cbranch_scc1 %s_ghk2" % name)
    a("v_lshlrev_b32 v10, 2, v3")
    a("buffer_load_dword v254, v10, s[60:63], 0 offen offset:128 sc1")
    a.label("%s_ghk2" % name)
    a("s_cmp_lt_u32 s33, 32")
    a("s_cbranch_scc1 %s_gloop" % name)
    trk.drain()
    stamp(a, 6)
    G3.emit_k2_epilogue2(a, core, Z1R, BI, " sc1")
    stamp(a, 7)
    a("s_setprio 3")
    a("s_lshl_b32 s36, s22, 4")
    a("s_add_u32 s36, s36, s23")
    a("s_lshl_b32 s36, s36, 8")
    a("s_add_u32 s97, s36, 0x%x" % (ZFLG + PFL))
    c_common()
    a("v_lshlrev_b32 v14, 4, v2")
    a("s_mul_i32 s26, s22, %d" % (36 * 8192))
    a("s_lshl_b32 s24, s3, 12")
    a("s_add_u32 s26, s26, s24")
    a("s_add_u32 s26, s26, 0x%x" % PIMG)
    a("s_mul_i32 s27, s23, %d" % (18 * 20480))
    a("s_mul_i32 s25, s3, 5120")
    a("s_add_u32 s27, s27, s25")
    a("s_add_u32 s27, s27, 0x%x" % WOT)
    a("s_add_u32 s25, s25, %d" % CTREG)
    a("v_and_b32 v28, 15, v2")
    a("v_lshlrev_b32 v30, 2, v28")
    a("v_mov_b32 v26, %d" % LC)
    a("v_mov_b32 v27, 1")
    a("s_waitcnt vmcnt(0)")
    a("v_mov_b32 v31, v254")
    a("s_mov_b64 exec, 1")
    a("ds_add_rtn_u32 v29, v26, v27 offset:16")
    a("s_waitcnt lgkmcnt(0)")
    a("v_readfirstlane_b32 s36, v29")
    a("s_cmp_lg_u32 s36, 3")
    a("s_cbranch_scc1 %s_nops" % name)
    a("v_mov_b32 v29, 0")
    a("buffer_store_dword v27, v29, s[12:15], s97 offen sc1")
    a.label("%s_nops" % name)
    a("s_mov_b64 exec, -1")
    a("s_mov_b32 s34, 0")
    a.label("%s_cw" % name)
    a("ds_read_b32 v29, v26 offset:16")
    a("s_add_u32 s34, s34, 1")
    a("s_waitcnt lgkmcnt(0)")
    a("v_readfirstlane_b32 s36, v29")
    a("s_cmp_gt_u32 s34, %d" % (SPIN_MAX * 20))
    a("s_cbranch_scc1 %s_cwx" % name)
    a("s_cmp_ge_u32 s36, 4")
    a("s_cbranch_scc1 %s_cwx" % name)
    a("s_sleep 1")
    a("s_branch %s_cw" % name)
    a.label("%s_cwx" % name)
    a("s_mov_b32 s34, 0")
    a.label("%s_cp" % name)
    a("v_cmp_gt_u32 vcc, 16, v31")
    a("s_add_u32 s34, s34, 1")
    a("s_cmp_gt_u32 s34, %d" % SPIN_MAX)
    a("s_cbranch_scc1 %s_cpx" % name)
    a("s_cbranch_vccz %s_cpx" % name)
    a("s_sleep 32")
    a("buffer_load_dword v31, v30, s[60:63], 0 offen offset:128 sc1")
    a("s_waitcnt vmcnt(0)")
    a("s_branch %s_cp" % name)
    a.label("%s_cpx" % name)
    def cF(off, soff):
        a("s_add_u32 s36, s25, %s" % off)
        a("s_mov_b32 m0, s36")
        a("s_add_u32 s37, %s, 4096" % soff)
        for n in range(4):
            a("buffer_load_dwordx4 v14, s[12:15], %s offen offset:%d sc1 lds" % (soff, n * 1024))
        a("s_add_u32 s36, s36, 4096")
        a("s_mov_b32 m0, s36")
        a("s_nop 0")
        a("buffer_load_dwordx4 v14, s[12:15], s37 offen sc1 lds")
    def cT(off, soff):
        a("s_add_u32 s35, s24, %s" % off)
        a("s_mov_b32 m0, s35")
        a("s_nop 0")
        for n in range(4):
            a("buffer_load_dwordx4 v14, s[12:15], %s offen offset:%d sc1 lds" % (soff, n * 1024))
    a("s_add_u32 s38, s27, 20480")
    cF(str(C0), "s27"); cF(str(C0 + CSL), "s38")
    a("s_mov_b32 s34, 0")
    a("s_cmp_lg_u32 s3, 0")
    a("s_cbranch_scc1 %s_cpl" % name)
    a("v_lshlrev_b32 v28, 8, v28")
    a("s_lshr_b32 s39, s22, 1")
    a("s_lshl_b32 s39, s39, 12")
    a("s_add_u32 s39, s39, 0x%x" % (ZFLG + PFL))
    a.label("%s_cpz" % name)
    a("buffer_load_dword v29, v28, s[12:15], s39 offen sc1")
    a("s_add_u32 s34, s34, 1")
    a("s_waitcnt vmcnt(0)")
    a("v_cmp_ne_u32 vcc, 1, v29")
    a("s_cmp_gt_u32 s34, %d" % SPIN_MAX)
    a("s_cbranch_scc1 %s_cpzx" % name)
    a("s_cbranch_vccz %s_cpzx" % name)
    a("s_sleep 8")
    a("s_branch %s_cpz" % name)
    a.label("%s_cpzx" % name)
    a("ds_write_b32 v26, v27 offset:24")
    a("s_branch %s_cgo" % name)
    a.label("%s_cpl" % name)
    a("ds_read_b32 v29, v26 offset:24")
    a("s_add_u32 s34, s34, 1")
    a("s_waitcnt lgkmcnt(0)")
    a("v_readfirstlane_b32 s36, v29")
    a("s_cmp_gt_u32 s34, %d" % (SPIN_MAX * 20))
    a("s_cbranch_scc1 %s_cgo" % name)
    a("s_cmp_lg_u32 s36, 0")
    a("s_cbranch_scc1 %s_cgo" % name)
    a("s_sleep 2")
    a("s_branch %s_cpl" % name)
    a.label("%s_cgo" % name)
    stamp(a, 8)
    a("s_add_u32 s38, s26, 16384")
    cT(str(C0), "s26"); cT(str(C0 + CSL), "s38")
    a("s_add_u32 s26, s26, 32768")
    a("s_add_u32 s27, s27, 40960")
    a("s_mov_b32 s33, %d" % RB)
    def cissue():
        cT("s33", "s26"); cF("s33", "s27")
        a("s_add_u32 s26, s26, 16384")
        a("s_add_u32 s27, s27, 20480")
        a("s_add_u32 s33, s33, %d" % CSL)
        a("s_cmp_eq_u32 s33, %d" % CW)
        a("s_cselect_b32 s33, %d, s33" % RB)
    a("s_waitcnt vmcnt(4)")
    a("s_barrier")
    cissue(); cissue()
    a("s_waitcnt vmcnt(18)")
    a("s_barrier")
    a("s_mov_b32 s34, 0")
    a.label("%s_clloop" % name)
    cissue()
    a("s_cmp_lg_u32 s34, 11")
    a("s_cbranch_scc1 %s_cl1" % name)
    a("buffer_load_dword v31, v30, s[60:63], 0 offen offset:192 sc1")
    a("s_waitcnt vmcnt(19)")
    a("s_branch %s_cl2" % name)
    a.label("%s_cl1" % name)
    a("s_waitcnt vmcnt(18)")
    a.label("%s_cl2" % name)
    a("s_barrier")
    a("s_add_u32 s34, s34, 1")
    a("s_cmp_lt_u32 s34, 14")
    a("s_cbranch_scc1 %s_clloop" % name)
    a("s_mov_b32 s34, 0")
    a.label("%s_cy" % name)
    a("v_cmp_gt_u32 vcc, 16, v31")
    a("s_add_u32 s34, s34, 1")
    a("s_cmp_gt_u32 s34, %d" % SPIN_MAX)
    a("s_cbranch_scc1 %s_cyx" % name)
    a("s_cbranch_vccz %s_cyx" % name)
    a("s_sleep 32")
    a("buffer_load_dword v31, v30, s[60:63], 0 offen offset:192 sc1")
    a("s_waitcnt vmcnt(0)")
    a("s_branch %s_cy" % name)
    a.label("%s_cyx" % name)
    a("v_lshrrev_b32 v3, 3, v2")
    a("v_and_b32 v4, 7, v2")
    a("v_lshlrev_b32 v4, 4, v4")
    a("s_mul_i32 s33, s52, 144")
    a("s_mul_i32 s34, s53, 80")
    a("s_lshl_b32 s35, s22, 7")
    a("s_add_u32 s35, s35, 0x%x" % YT)
    for n in range(3):
        a("s_add_u32 s36, s3, %d" % (4 * n))
        if n == 2: a("s_min_u32 s36, s36, 9")
        a("s_lshl_b32 s37, s36, 3")
        a("s_add_u32 s38, s37, s33")
        if n < 2: a("s_add_u32 s38, s38, s34")
        a("v_add_u32 v5, s38, v3")
        a("v_lshl_add_u32 v5, v5, 12, v4")
        a("s_lshl_b32 s36, s36, 10")
        a("s_add_u32 s36, s36, %d" % YOFF)
        a("s_mov_b32 m0, s36")
        a("s_nop 0")
        a("buffer_load_dwordx4 v5, s[12:15], s35 offen sc1 lds")
    fin_loads()
    a("s_waitcnt vmcnt(%d)" % (9 + 7))
    a("s_barrier")
    a("s_waitcnt vmcnt(7)")
    a("s_barrier")
    a("s_barrier")
    a("s_setprio 0")
    a("s_waitcnt vmcnt(0)")
    a("s_branch %s_cfin" % name)
    a.label("%s_A1" % name)
    a("s_setprio 2")
    vmA = VmTracker(a)
    PB = 132
    def aux_head():
        epi_in()
        for tt in range(4):
            a("v_mov_b32 v%d, 0" % S[tt]); a("v_mov_b32 v%d, 0" % Q[tt])
    def aux_pub():
        a("s_nop 2")
        emit_xg_reduce(a, S + Q, 72)
        a("v_lshrrev_b32 v10, 4, v2")
        for g in range(1, 4):
            a("v_cmp_eq_u32 vcc, %d, v10" % g)
            a("s_nop 1")
            a("v_cndmask_b32 v%d, v%d, v%d, vcc" % (S[0], S[0], S[g]))
            a("v_cndmask_b32 v%d, v%d, v%d, vcc" % (Q[0], Q[0], Q[g]))
        a("v_and_b32 v%d, 0x7fffffff, v%d" % (Q[0], Q[0]))
        a("buffer_store_dwordx2 v[%d:%d], v94, s[12:15], s58 offen sc1" % (S[0], Q[0]))
    chunks = [capture(aux_head) + capture(gelu_ft, 0, True), capture(gelu_ft, 1, True), capture(gelu_ft, 2, True),
              capture(gelu_ft, 3, True), capture(gelu_ft, 4, True) + capture(aux_pub)]
    KD = 172
    for k in range(9, 18):
        a("s_barrier")
        if k == 9:
            a("s_cmp_lg_u32 s3, 0")
            a("s_cbranch_scc1 %s_nosig" % name)
            a("v_mov_b32 v10, 1")
            a("s_lshl_b32 s36, s22, 2")
            a("v_mov_b32 v11, s36")
            a("s_mov_b64 exec, 1")
            a("buffer_atomic_add v10, v11, s[60:63], 0 offen sc1")
            a("s_mov_b64 exec, -1")
            a.label("%s_nosig" % name)
        g = k + 3
        dma = capture(lambda: (issueT(g), issueF(g))) if g < 18 else []
        comp = chunks[k - 9] if k - 9 < len(chunks) else []
        a.lines.extend(dma); a.lines.extend(comp)
        if k == 13: vmA.issue("pub", 1)
        if g < 18: vmA.issue("S%d" % g, 9)
        if k == 14:
            srd(a, 92, 78, 2048 * 2048 * 2)
            a("v_lshrrev_b32 v10, 4, v2")
            a("v_lshlrev_b32 v10, 12, v10")
            a("v_lshl_add_u32 v10, v3, 4, v10")
            a("s_lshl_b32 s40, s22, 7")
            a("s_lshl_b32 s36, s3, 5")
            a("s_add_u32 s40, s40, s36")
            a("s_lshl_b32 s40, s40, 12")
            a("s_lshl_b32 s36, s23, 8")
            a("s_add_u32 s40, s40, s36")
            for n in range(8):
                a("buffer_load_dwordx4 v[200:203], v10, s[92:95], s40 offen")
                if n < 7: a("s_add_u32 s40, s40, 16384")
            vmA.issue("wp", 8)
            a("s_lshl_b32 s36, s22, 2")
            a("v_mov_b32 v199, s36")
            a("buffer_load_dword v198, v199, s[60:63], 0 offen sc1"); vmA.issue("cnt", 1)
        if k + 2 < 18 and k + 2 >= 12:
            vmA.wait(["S%d" % (k + 2)])
    a("s_barrier")
    stamp(a, 3)
    a("s_load_dwordx4 s[88:91], s[0:1], 32")
    Z2 = ZP
    a("v_and_b32 v4, 31, v2")
    a("v_lshlrev_b32 v4, 4, v4")
    a("v_lshrrev_b32 v10, 5, v2")
    a("v_lshl_add_u32 v4, v10, 10, v4")
    for q in range(8): a("s_add_u32 s%d, s59, %d" % ((52, 53, 42, 43, 40, 41, 38, 39)[q], 4096 * q))
    GB = 128
    def gather():
        for q in range(16):
            a("buffer_load_dwordx4 %s, v4, s[12:15], s%d offen offset:%d sc1" % (vr(GB + 4 * q), (52, 53, 42, 43, 40, 41, 38, 39)[q >> 1], 2048 * (q & 1)))
    a("s_waitcnt vmcnt(0)")
    gather()
    a("s_mov_b32 s33, 0")
    a("s_waitcnt vmcnt(0)")
    a.label("%s_chk" % name)
    a("v_subrev_u32 v11, 16, v198")
    for q in range(16):
        a("v_or3_b32 v11, v11, v%d, v%d" % (GB + 4 * q + 1, GB + 4 * q + 3))
    a("v_cmp_gt_i32 vcc, 0, v11")
    a("s_add_u32 s33, s33, 1")
    a("s_cmp_gt_u32 s33, %d" % SPIN_MAX)
    a("s_cbranch_scc1 %s_ok" % name)
    a("s_cbranch_vccz %s_ok" % name)
    a("s_sleep 32")
    a("buffer_load_dword v198, v199, s[60:63], 0 offen sc1")
    a("s_waitcnt vmcnt(0)")
    gather()
    a("s_waitcnt vmcnt(0)")
    a("s_branch %s_chk" % name)
    a.label("%s_ok" % name)
    stamp(a, 5)
    for st_ in (32, 16, 8, 4):
        for q in range(0, st_, 2):
            a("v_pk_add_f32 %s, %s, %s" % (vr(GB + q, 2), vr(GB + q, 2), vr(GB + q + st_, 2)))
    for e in range(4): a("v_mov_b32 v%d, v%d" % (72 + e, GB + e))
    a("s_nop 1")
    for e in range(4): a("v_permlane32_swap_b32 v%d, v%d" % (GB + e, 72 + e))
    a("s_nop 1")
    for e in range(4): a("v_add_f32 v%d, v%d, v%d" % (GB + e, GB + e, 72 + e))
    for h in range(2):
        emit_ln_finish(a, GB + 2 * h, GB + 2 * h + 1, 2304, GB + 8 + h, GB + 4 + 2 * h, GB + 12)
        a("v_mul_f32 v%d, -v%d, v%d" % (GB + 5 + 2 * h, GB + 8 + h, GB + 4 + 2 * h))
    a("v_and_b32 v10, 31, v2")
    a("s_lshl_b32 s36, s24, 9")
    a("v_lshl_add_u32 v10, v10, 4, s36")
    a("ds_write_b128 v10, %s offset:1024" % vr(GB + 4))
    a("s_lshl_b32 s37, s25, 8")
    a("s_add_u32 s38, s36, s37")
    a("s_xor_b32 s37, s37, 256")
    a("s_add_u32 s39, s36, s37")
    a("v_lshlrev_b32 v10, 3, v3")
    a("v_add_u32 v11, s38, v10")
    a("v_add_u32 v10, s39, v10")
    a("s_waitcnt lgkmcnt(0)")
    a("ds_read_b64 %s, v11 offset:1024" % vr(MR, 2))
    a("ds_read_b64 %s, v11 offset:1152" % vr(MR + 2, 2))
    a("ds_read_b64 %s, v10 offset:1024" % vr(MR + 4, 2))
    a("ds_read_b64 %s, v10 offset:1152" % vr(MR + 6, 2))
    a("v_lshrrev_b32 v10, 4, v2")
    a("v_lshrrev_b32 v11, 2, v2"); a("v_and_b32 v11, 1, v11"); a("v_lshlrev_b32 v11, 4, v11")
    a("v_lshrrev_b32 v5, 3, v2"); a("v_and_b32 v5, 1, v5"); a("v_lshl_add_u32 v11, v5, 2, v11")
    a("v_and_b32 v5, 3, v2"); a("v_add_u32 v11, v11, v5")
    a("v_and_b32 v5, 1, v10")
    a("v_lshl_add_u32 v11, v5, 3, v11")
    a("v_lshlrev_b32 v11, 5, v11")
    a("v_lshrrev_b32 v5, 1, v10")
    a("v_lshl_add_u32 v6, v5, 4, v11")
    a("s_lshl_b32 s33, s23, 5")
    a("s_lshl_b32 s36, s22, 1")
    a("s_add_u32 s33, s33, s36")
    a("s_add_u32 s33, s33, s24")
    a("s_mul_i32 s33, s33, 18432")
    if ZIMG: a("s_add_u32 s33, s33, 0x%x" % ZIMG)
    a("s_lshl_b32 s36, s25, 10")
    a("s_add_u32 s39, s33, s36")
    a("s_add_u32 s39, s39, 8192")
    a("s_mul_i32 s38, s25, 10240")
    a("s_add_u32 s33, s33, s38")
    a("s_add_u32 s37, s33, s36")
    a("s_xor_b32 s36, s36, 1024")
    a("s_add_u32 s38, s33, s36")
    a("s_add_u32 s33, s37, 4096")
    a("s_add_u32 s36, s38, 4096")
    def norm_pair(nA, ttA, nB, ttB, O):
        for q, (n, tt) in enumerate(((nA, ttA), (nB, ttB))):
            for d in range(2):
                z = Z2 + 2 * n + d; t = T + 4 * q + 2 * d
                a("v_lshlrev_b32 v%d, 16, v%d" % (t, z))
                a("v_and_b32 v%d, 0xffff0000, v%d" % (t + 1, z))
        for q, (n, tt) in enumerate(((nA, ttA), (nB, ttB))):
            for d in range(2):
                t = T + 4 * q + 2 * d
                a("v_pk_fma_f32 %s, %s, %s, %s op_sel:[0,0,1] op_sel_hi:[1,0,1]" % (vr(t, 2), vr(t, 2), vr(MR + 2 * tt, 2), vr(MR + 2 * tt, 2)))
        for q in range(2):
            for d in range(2):
                t = T + 4 * q + 2 * d
                a("v_cvt_pk_bf16_f32 v%d, v%d, v%d" % (O + 2 * q + d, t, t + 1))
        a("s_nop 1")
        a("v_permlane16_swap_b32 v%d, v%d" % (O, O + 2))
        a("v_permlane16_swap_b32 v%d, v%d" % (O + 1, O + 3))
    a("s_waitcnt lgkmcnt(0)")
    cnt = 0
    for ft in range(4):
        for pp in range(2):
            O = 200 + 4 * cnt; cnt += 1
            norm_pair(tidx(ft, 2 * pp), 2 * pp, tidx(ft, 2 * pp + 1), 2 * pp + 1, O)
            a("s_nop 0")
            a("buffer_store_dwordx4 %s, v6, s[12:15], s%d offen offset:%d sc1" % (vr(O), ((37, 38), (33, 36))[ft >> 1][pp], (ft & 1) * 2048))
    O = 200 + 4 * cnt
    norm_pair(16, 0, 17, 1, O)
    a("s_nop 0")
    a("buffer_store_dwordx4 %s, v6, s[12:15], s39 offen sc1" % vr(O))
    stamp(a, 6)
    a("s_setprio 3")
    srd(a, 8, 78, 2048 * 2048 * 2)
    a("v_lshrrev_b32 v3, 3, v2")
    a("s_lshl_b32 s24, s3, 5")
    a("v_add_u32 v3, s24, v3")
    a("v_and_b32 v4, 7, v2")
    a("v_lshrrev_b32 v6, 4, v2")
    a("v_xor_b32 v6, v6, v4")
    a("v_lshlrev_b32 v6, 4, v6")
    a("v_lshl_add_u32 v10, v3, 12, v6")
    a("v_xor_b32 v11, 64, v10")
    a("v_add_u32 v11, %d, v11" % (32768 - 1024))
    a("v_add_u32 v12, %d, v10" % (2 * (32768 - 1024)))
    a("v_add_u32 v13, %d, v11" % (2 * (32768 - 1024)))
    a("v_lshlrev_b32 v14, 4, v2")
    a("s_lshl_b32 s26, s22, 19")
    a("s_mul_i32 s27, s23, %d" % (32 * 18432))
    a("s_lshl_b32 s24, s3, 12")
    a("s_add_u32 s27, s27, s24")
    if ZIMG: a("s_add_u32 s27, s27, 0x%x" % ZIMG)
    a("s_lshl_b32 s25, s3, 9")
    a("s_sub_u32 s32, s25, s24")
    a("s_add_u32 s32, s32, 16384")
    a("s_add_u32 s24, s24, %d" % RB)
    a("s_waitcnt vmcnt(0) lgkmcnt(0)")
    a("v_mov_b32 v26, %d" % LC)
    a("v_mov_b32 v27, 1")
    a("s_mov_b64 exec, 1")
    a("ds_add_rtn_u32 v28, v26, v27")
    a("s_waitcnt lgkmcnt(0)")
    a("v_readfirstlane_b32 s36, v28")
    a("s_cmp_lg_u32 s36, 3")
    a("s_cbranch_scc1 %s_nozs" % name)
    a("v_mov_b32 v28, 0")
    a("buffer_store_dword v27, v28, s[12:15], s97 offen sc1")
    a.label("%s_nozs" % name)
    a("s_mov_b64 exec, -1")
    stamp(a, 7)
    srd(a, 16, 88, 576 * 2048 * 2)
    srd(a, 84, 90, 576 * 2)
    for g in range(4):
        a("s_add_u32 s35, s24, %d" % (g * SLOT))
        a("s_mov_b32 m0, s35")
        a("s_add_u32 s36, s26, %d" % (128 * g))
        for n in range(4):
            a("buffer_load_dwordx4 v%d, s[8:11], s36 offen offset:%d lds" % (10 + n, n * 1024))
    a("s_mov_b32 s34, 0")
    a("s_cmp_lg_u32 s3, 0")
    a("s_cbranch_scc1 %s_pl" % name)
    a("v_and_b32 v28, 15, v2")
    a("v_lshlrev_b32 v30, 2, v28")
    a("v_lshlrev_b32 v28, 12, v28")
    a("s_lshl_b32 s52, s23, 8")
    a("s_add_u32 s52, s52, 0x%x" % ZFLG)
    a.label("%s_pz0" % name)
    a("buffer_load_dword v31, v30, s[60:63], 0 offen sc1")
    a("s_add_u32 s34, s34, 1")
    a("s_waitcnt vmcnt(0)")
    a("v_cmp_gt_u32 vcc, 16, v31")
    a("s_cmp_gt_u32 s34, %d" % SPIN_MAX)
    a("s_cbranch_scc1 %s_pz" % name)
    a("s_cbranch_vccz %s_pz" % name)
    a("s_sleep 32")
    a("s_branch %s_pz0" % name)
    a.label("%s_pz" % name)
    a("buffer_load_dword v29, v28, s[12:15], s52 offen sc1")
    a("s_add_u32 s34, s34, 1")
    a("s_waitcnt vmcnt(0)")
    a("v_cmp_ne_u32 vcc, 1, v29")
    a("s_cmp_gt_u32 s34, %d" % SPIN_MAX)
    a("s_cbranch_scc1 %s_pzx" % name)
    a("s_cbranch_vccz %s_pzx" % name)
    a("s_sleep 8")
    a("s_branch %s_pz" % name)
    a.label("%s_pzx" % name)
    a("v_mov_b32 v27, 1")
    a("ds_write_b32 v26, v27 offset:4")
    a("s_branch %s_pgo" % name)
    a.label("%s_pl" % name)
    a("ds_read_b32 v27, v26 offset:4")
    a("s_add_u32 s34, s34, 1")
    a("s_waitcnt lgkmcnt(0)")
    a("v_readfirstlane_b32 s36, v27")
    a("s_cmp_gt_u32 s34, %d" % (SPIN_MAX * 20))
    a("s_cbranch_scc1 %s_pgo" % name)
    a("s_cmp_lg_u32 s36, 0")
    a("s_cbranch_scc1 %s_pgo" % name)
    a("s_sleep 2")
    a("s_branch %s_pl" % name)
    a.label("%s_pgo" % name)
    stamp(a, 8)
    for g in range(4):
        a("s_add_u32 s35, s24, %d" % (g * SLOT + TREG))
        a("s_mov_b32 m0, s35")
        a("s_add_u32 s36, s27, %d" % (18432 * g))
        a("s_add_u32 s37, s36, s32")
        for n in range(4):
            a("buffer_load_dwordx4 v14, s[12:15], s36 offen offset:%d sc1 lds" % (n * 1024))
        a("s_add_u32 s35, s35, s32")
        a("s_mov_b32 m0, s35")
        a("s_mov_b64 exec, 0xffffffff")
        a("buffer_load_dwordx4 v14, s[12:15], s37 offen sc1 lds")
        a("s_mov_b64 exec, -1")
    a("s_add_u32 s26, s26, 512")
    a("s_add_u32 s27, s27, %d" % (4 * 18432))
    a("s_mov_b32 s33, 0")
    a("s_lshl_b32 s43, s2, 2")
    a("s_add_u32 s43, s43, s3")
    a("s_and_b32 s53, s43, 1")
    a("s_sub_u32 s36, s43, 448")
    a("s_lshr_b32 s37, s43, 1")
    a("s_cmp_ge_u32 s43, 896")
    a("s_cselect_b32 s43, s36, s37")
    a("s_cselect_b32 s53, 2, s53")
    a("s_waitcnt vmcnt(15)")
    a("s_barrier")
    a("s_waitcnt vmcnt(10)")
    a("s_barrier")
    a("s_waitcnt vmcnt(5)")
    a("s_barrier")
    a("s_mov_b32 s34, 4")
    def issue2():
        a("s_add_u32 s35, s33, s24")
        a("s_mov_b32 m0, s35")
        a("s_add_u32 s36, s35, %d" % TREG)
        for n in range(4):
            a("buffer_load_dwordx4 v%d, s[8:11], s26 offen offset:%d lds" % (10 + n, n * 1024))
        a("s_mov_b32 m0, s36")
        a("s_add_u32 s37, s27, s32")
        for n in range(4):
            a("buffer_load_dwordx4 v14, s[12:15], s27 offen offset:%d sc1 lds" % (n * 1024))
        a("s_add_u32 s36, s36, s32")
        a("s_mov_b32 m0, s36")
        a("s_mov_b64 exec, 0xffffffff")
        a("buffer_load_dwordx4 v14, s[12:15], s37 offen sc1 lds")
        a("s_mov_b64 exec, -1")
        a("s_add_u32 s26, s26, 128")
        a("s_add_u32 s27, s27, 18432")
        a("s_add_u32 s33, s33, %d" % SLOT)
        a("s_cmp_eq_u32 s33, %d" % (R * SLOT))
        a("s_cselect_b32 s33, 0, s33")
    a.label("%s_lloop" % name)
    issue2()
    a("s_cmp_eq_u32 s34, 18")
    a("s_cbranch_scc1 %s_hk1" % name)
    a("s_cmp_eq_u32 s34, 21")
    a("s_cbranch_scc1 %s_hk2" % name)
    a("s_waitcnt vmcnt(9)")
    a.label("%s_lcont" % name)
    a("s_barrier")
    a("s_add_u32 s34, s34, 1")
    a("s_cmp_lt_u32 s34, 32")
    a("s_cbranch_scc1 %s_lloop" % name)
    a("s_branch %s_ldone" % name)
    a.label("%s_hk1" % name)
    a("v_and_b32 v28, 15, v2")
    a("v_lshlrev_b32 v28, 2, v28")
    a("buffer_load_dword v29, v28, s[60:63], 0 offen offset:128 sc1")
    a("s_waitcnt vmcnt(10)")
    a("s_branch %s_lcont" % name)
    a.label("%s_hk2" % name)
    a("s_mov_b32 s52, 0")
    a.label("%s_hk2l" % name)
    a("v_cmp_gt_u32 vcc, 16, v29")
    a("s_add_u32 s52, s52, 1")
    a("s_cmp_gt_u32 s52, %d" % SPIN_MAX)
    a("s_cbranch_scc1 %s_hk2g" % name)
    a("s_cbranch_vccz %s_hk2g" % name)
    a("s_sleep 16")
    a("buffer_load_dword v29, v28, s[60:63], 0 offen offset:128 sc1")
    a("s_waitcnt vmcnt(0)")
    a("s_branch %s_hk2l" % name)
    a.label("%s_hk2g" % name)
    nconv = emit_conv_loads(a, " sc1")
    a("s_waitcnt vmcnt(%d)" % (9 + nconv))
    a("s_branch %s_lcont" % name)
    a.label("%s_ldone" % name)
    a("s_waitcnt vmcnt(0)")
    a("s_barrier")
    a("s_mov_b32 s26, s53")
    a("s_and_b32 s27, s3, 1")
    a("s_mul_i32 s27, s27, %d" % CJ_SIZE)
    a("s_lshr_b32 s36, s3, 1")
    a("s_mul_i32 s36, s36, %d" % SLOT)
    a("s_add_u32 s27, s27, s36")
    a("s_add_u32 s27, s27, %d" % RB)
    def mid():
        a("s_barrier")
        a("s_setprio 0")
    sv = set(DBG); DBG.discard("stamp")
    lb_ = len(a.lines)
    emit_conv_job(a, name, mid)
    for n_ in range(lb_, len(a.lines)):
        if "buffer_store_dwordx2" in a.lines[n_]: a.lines[n_] += " sc1"
    DBG.update(sv)
    stamp(a, 9)
    c_common()
    cTa = [4, 4]; cTb = [6, 6]; cF_ = 8; cFh = 9
    kTa = 88; kTb = 90; kF = 92; kFh = 93
    a("v_and_b32 v3, 15, v2")
    a("v_lshrrev_b32 v10, 5, v2")
    a("v_lshlrev_b32 v10, 11, v10")
    a("v_bfe_u32 v11, v2, 4, 1")
    a("v_lshl_add_u32 v10, v11, 4, v10")
    a("v_lshl_add_u32 v10, v3, 5, v10")
    a("s_lshl_b32 s26, s3, 12")
    a("v_add_u32 v10, s26, v10")
    a("s_lshl_b32 s26, s53, 10")
    a("v_add_u32 v%d, s26, v10" % kTa)
    a("s_xor_b32 s26, s26, 1024")
    a("v_add_u32 v%d, s26, v10" % kTb)
    a("v_lshrrev_b32 v10, 2, v2")
    a("v_mul_u32_u24 v10, %d, v10" % CFS)
    a("v_and_b32 v11, 3, v2")
    a("v_lshl_add_u32 v10, v11, 3, v10")
    a("s_mul_i32 s26, s3, %d" % (32 * CFS))
    a("s_add_u32 s26, s26, %d" % CTREG)
    a("v_add_u32 v%d, s26, v10" % kF)
    a("v_add_u32 v%d, 128, v%d" % (kFh, kF))
    a("v_mov_b32 v26, %d" % LC)
    a("v_mov_b32 v27, 1")
    a("s_waitcnt vmcnt(0)")
    a("s_mov_b64 exec, 1")
    a("ds_add_rtn_u32 v28, v26, v27 offset:20")
    a("s_waitcnt lgkmcnt(0)")
    a("v_readfirstlane_b32 s36, v28")
    a("s_cmp_lg_u32 s36, 3")
    a("s_cbranch_scc1 %s_nocs" % name)
    a("s_and_b32 s36, s2, 15")
    a("s_lshl_b32 s36, s36, 2")
    a("s_add_u32 s36, s36, 192")
    a("v_mov_b32 v28, s36")
    a("buffer_atomic_add v27, v28, s[60:63], 0 offen sc1")
    a.label("%s_nocs" % name)
    a("s_mov_b64 exec, -1")
    fin_loads()
    core3 = G.Core(a, ACC, FB[0], FB[1], CFS, CTREG, cTa, cTb, cF_, cFh, TT=512)
    pairs = ((cTa[0], kTa), (cF_, kF), (cTb[0], kTb), (cFh, kFh))
    a("s_mov_b32 s27, %d" % C0)
    for d, s_ in pairs: a("v_add_u32 v%d, s27, v%d" % (d, s_))
    for r in range(ACC, ACC + 72): a("v_mov_b32 v%d, 0" % r)
    a("s_mov_b32 s33, 0")
    a("s_barrier")
    stamp(a, 10)
    core3.prime(0, core3.reads(0, 0))
    def citer(buf):
        core3.trk.drain()
        a("s_barrier")
        a("s_add_u32 s27, s27, %d" % CSL)
        a("s_cmp_eq_u32 s27, %d" % CW)
        a("s_cselect_b32 s27, %d, s27" % RB)
        pre = ["v_add_u32 v%d, s27, v%d" % (d, s_) for d, s_ in pairs]
        core3.phase(buf, core3.reads(1 - buf, 0), pre=pre)
    a.label("%s_ccloop" % name)
    citer(0); citer(1)
    a("s_add_u32 s33, s33, 1")
    a("s_cmp_lt_u32 s33, 9")
    a("s_cbranch_scc1 %s_ccloop" % name)
    core3.trk.drain()
    stamp(a, 11)
    a("s_mul_i32 s33, s3, %d" % (18 * 1024))
    a("s_add_u32 s33, s33, %d" % C0)
    a("v_lshlrev_b32 v10, 4, v2")
    a("v_add_u32 v11, s33, v10")
    a("s_nop 4")
    for n, (ft, tt) in enumerate(TILES):
        a("ds_write_b128 v11, %s offset:%d" % (vr(core3.accr(ft, tt)), 1024 * tidx(ft, tt)))
        if n in (7, 13): a("s_waitcnt lgkmcnt(4)")
    a("s_waitcnt lgkmcnt(0) vmcnt(0)")
    a.label("%s_cfin" % name)
    a("s_barrier")
    stamp(a, 12)
    a("v_lshlrev_b32 v10, 4, v2")
    a("v_lshrrev_b32 v11, 2, v2")
    a("v_lshlrev_b32 v11, 7, v11")
    a("v_and_b32 v12, 3, v2")
    a("v_lshl_add_u32 v11, v12, 3, v11")
    a("s_mov_b32 s33, 0xbfb8aa3b")
    PT = 16; YR = 64
    for s_ in range(3):
        b = 64 + 4 * s_
        if s_ == 2:
            a("s_cmp_ge_u32 s54, 2")
            a("s_cbranch_scc1 %s_rd" % name)
        a("v_add_u32 v4, s%d, v10" % (b + 2))
        a("v_add_u32 v5, s%d, v11" % (b + 1))
        for q in range(4):
            a("ds_read_b128 %s, v4 offset:%d" % (vr(PT + 16 * s_ + 4 * q), 18432 * q))
        a("ds_read_b64_tr_b16 %s, v5" % vr(YR + 2 * s_, 2))
    a.label("%s_rd" % name)
    T = 104
    for s_ in range(3):
        b = 64 + 4 * s_
        if s_ == 0: a("s_waitcnt lgkmcnt(5)")
        if s_ == 1: a("s_waitcnt lgkmcnt(0)")
        if s_ == 2:
            a("s_cmp_ge_u32 s54, 2")
            a("s_cbranch_scc1 %s_done" % name)
        o = PT + 16 * s_; X = XR + 2 * s_; Y = YR + 2 * s_; S_ = ST + 2 * s_
        for h in (0, 2):
            a("v_pk_add_f32 %s, %s, %s" % (vr(o + h, 2), vr(o + h, 2), vr(o + 4 + h, 2)))
            a("v_pk_add_f32 %s, %s, %s" % (vr(o + 8 + h, 2), vr(o + 8 + h, 2), vr(o + 12 + h, 2)))
        for h in (0, 2):
            a("v_pk_add_f32 %s, %s, %s" % (vr(o + h, 2), vr(o + h, 2), vr(o + 8 + h, 2)))
        rnd_pair(a, T + 20, o, o + 1); rnd_pair(a, T + 21, o + 2, o + 3)
        for r in range(4): a("v_mul_f32 v%d, s33, v%d" % (T + r, o + r))
        for r in range(4): a("v_exp_f32 v%d, v%d" % (T + r, T + r))
        a("v_lshlrev_b32 v%d, 16, v%d" % (T + 4, X)); a("v_and_b32 v%d, 0xffff0000, v%d" % (T + 5, X))
        a("v_lshlrev_b32 v%d, 16, v%d" % (T + 6, X + 1)); a("v_and_b32 v%d, 0xffff0000, v%d" % (T + 7, X + 1))
        for r in range(4): a("v_add_f32 v%d, 1.0, v%d" % (T + r, T + r))
        for r in range(4): a("v_rcp_f32 v%d, v%d" % (T + r, T + r))
        for r in range(4): a("v_sub_f32 v%d, v%d, v%d" % (T + 12 + r, T + 4 + r, S_))
        a("v_lshlrev_b32 v%d, 16, v%d" % (T + 8, Y)); a("v_and_b32 v%d, 0xffff0000, v%d" % (T + 9, Y))
        a("v_lshlrev_b32 v%d, 16, v%d" % (T + 10, Y + 1)); a("v_and_b32 v%d, 0xffff0000, v%d" % (T + 11, Y + 1))
        for r in range(4): a("v_mul_f32 v%d, v%d, v%d" % (o + r, o + r, T + r))
        rnd_pair(a, T + 20, T + 12, T + 13); rnd_pair(a, T + 21, T + 14, T + 15)
        rnd_pair(a, T + 22, o, o + 1); rnd_pair(a, T + 23, o + 2, o + 3)
        for r in range(4): a("v_mul_f32 v%d, v%d, v%d" % (T + 12 + r, T + 12 + r, S_ + 1))
        rnd_pair(a, T + 20, T + 12, T + 13); rnd_pair(a, T + 21, T + 14, T + 15)
        for r in range(4): a("v_mul_f32 v%d, v%d, v%d" % (T + 12 + r, T + 12 + r, T + 8 + r))
        rnd_pair(a, T + 20, T + 12, T + 13); rnd_pair(a, T + 21, T + 14, T + 15)
        for r in range(4): a("v_mul_f32 v%d, v%d, v%d" % (T + 12 + r, T + 12 + r, o + r))
        rnd_pair(a, T + 20, T + 12, T + 13); rnd_pair(a, T + 21, T + 14, T + 15)
        for r in range(4): a("v_add_f32 v%d, v%d, v%d" % (T + 12 + r, T + 12 + r, T + 4 + r))
        a("v_cvt_pk_bf16_f32 v%d, v%d, v%d" % (X, T + 12, T + 13))
        a("v_cvt_pk_bf16_f32 v%d, v%d, v%d" % (X + 1, T + 14, T + 15))
        a("buffer_store_dwordx2 %s, v13, s[28:31], s%d offen" % (vr(X, 2), b))
    a.label("%s_done" % name)
    stamp(a, 13)
    G.stamp_rt(a, 1)
    a.label("%s_end" % name)
    a("s_endpgm")
    for ft in range(5):
        a.label("%s_gsub%d" % (name, ft))
        tts = range(4 if ft < 4 else 2)
        emit_fold_gelu(a, [(128 + 4 * tidx(ft, tt), CS + 4 * ft, MR + 2 * tt, ZP + 2 * tidx(ft, tt)) for tt in tts], 72)
        a("s_setpc_b64 s[34:35]")
    return a.text(), kernel_desc(name, 256, 256), (name, 256, 512, 163840)

def gen_kf15(name="k1_kernel", R=4):
    a = Asm()
    RB = 4096; SLOT = 34816; TREG = 16384; FS = 288; RST = 0
    LDSB = RB + R * SLOT
    LC = 2048
    ZFLG = 0x2D00000; PFL = 128
    KVL = 143360; XFLG = 0x2D20000; CFLG = 0x2D30000
    C0 = 77824; CW = 151552; CSL = 36864; YOFF = 151552; CTREG = 16384; CFS = 160
    from gen3 import emit_conv_loads, emit_conv_job, CJ_SIZE
    def capture(f, *args):
        lb = len(a.lines); f(*args); out = a.lines[lb:]; del a.lines[lb:]; return out

    def c_common():
        a("s_load_dwordx2 s[4:5], s[0:1], 0")
        a("s_load_dwordx2 s[16:17], s[0:1], 88")
        a("s_and_b32 s20, s2, 7")
        a("s_lshr_b32 s21, s2, 3")
        a("s_and_b32 s22, s20, 3")
        a("s_lshl_b32 s22, s22, 3")
        a("s_and_b32 s23, s21, 7")
        a("s_add_u32 s22, s22, s23")
        a("s_lshr_b32 s23, s20, 2")
        a("s_lshl_b32 s23, s23, 2")
        a("s_lshr_b32 s24, s21, 3")
        a("s_add_u32 s23, s23, s24")
        a("s_lshr_b32 s52, s23, 1")
        a("s_and_b32 s53, s23, 1")
        a("s_lshl_b32 s54, s98, 2")
        a("s_add_u32 s54, s54, s3")
        a("s_waitcnt lgkmcnt(0)")
        srd(a, 8, 4, 2048 * 576 * 2)
        srd(a, 28, 16, 2048 * 576 * 2)
    XR = 200; ST = 208
    def fin_loads():
        a("v_and_b32 v3, 15, v2")
        a("v_lshrrev_b32 v10, 4, v2")
        a("v_mul_u32_u24 v13, 1152, v3")
        a("v_lshl_add_u32 v13, v10, 3, v13")
        a("v_lshlrev_b32 v12, 3, v3")
        for s_ in range(3):
            if s_ == 2:
                a("s_cmp_ge_u32 s54, 2")
                a("s_cbranch_scc1 %s_fl%d" % (name, fin_loads.cnt))
            b = 64 + 4 * s_
            if s_ < 2:
                a("s_add_u32 s36, s54, %d" % (8 * s_))
                a("s_lshr_b32 s37, s36, 2")
                a("s_and_b32 s38, s36, 3")
                a("s_mul_i32 s39, s53, 160")
                a("s_lshl_b32 s40, s37, 5")
                a("s_add_u32 s39, s39, s40")
            else:
                a("s_add_u32 s36, s54, 16")
                a("s_mov_b32 s37, 4")
                a("s_mov_b32 s38, s54")
                a("s_mov_b32 s39, 128")
            a("s_lshl_b32 s40, s53, 1")
            a("s_add_u32 s38, s38, s40")
            a("s_and_b32 s38, s38, 3")
            a("s_lshl_b32 s40, s22, 2")
            a("s_add_u32 s40, s40, s38")
            a("s_lshl_b32 s40, s40, 4")
            a("s_mul_i32 s%d, s40, 1152" % b)
            a("s_add_u32 s%d, s%d, s39" % (b, b))
            a("s_mul_i32 s39, s52, 288")
            a("s_add_u32 s%d, s%d, s39" % (b, b))
            a("s_lshl_b32 s%d, s37, 11" % (b + 1))
            a("s_lshl_b32 s39, s38, 5")
            a("s_add_u32 s%d, s%d, s39" % (b + 1, b + 1))
            a("s_add_u32 s%d, s%d, %d" % (b + 1, b + 1, YOFF))
            a("s_lshl_b32 s%d, s36, 10" % (b + 2))
            a("s_add_u32 s%d, s%d, %d" % (b + 2, b + 2, C0))
            a("s_lshl_b32 s40, s40, 3")
            a("s_add_u32 s40, s40, 0x%x" % STATS1)
            a("buffer_load_dwordx2 %s, v13, s[8:11], s%d offen" % (vr(XR + 2 * s_, 2), b))
            a("buffer_load_dwordx2 %s, v12, s[12:15], s40 offen sc1" % vr(ST + 2 * s_, 2))
        a.label("%s_fl%d" % (name, fin_loads.cnt))
        fin_loads.cnt += 1
    fin_loads.cnt = 0
    kernel_begin(a, name)
    a("s_load_dwordx2 s[80:81], s[0:1], 0")
    a("s_load_dwordx2 s[4:5], s[0:1], 56")
    a("s_load_dwordx2 s[6:7], s[0:1], 104")
    a("s_load_dwordx2 s[18:19], s[0:1], 96")
    a("s_cmp_ge_u32 s2, 256")
    a("s_cbranch_scc1 %s_end" % name)
    a("v_lshrrev_b32 v1, 6, v0")
    a("v_and_b32 v2, 63, v0")
    a("v_readfirstlane_b32 s3, v1")
    G2.tile_ij(a)
    a("s_lshr_b32 s98, s3, 2")
    a("s_mov_b32 s54x, 0".replace("s54x", "s99"))
    a("s_and_b32 s3, s3, 3")
    a("s_lshr_b32 s24, s3, 1")
    a("s_and_b32 s25, s3, 1")
    a("v_and_b32 v3, 15, v2")
    VT = 204; VF = 208
    def loader_setup():
        a("v_lshrrev_b32 v5, 3, v2")
        a("v_and_b32 v4, 7, v2")
        a("s_lshl_b32 s36, s3, 5")
        a("v_add_u32 v5, s36, v5")
        a("v_lshrrev_b32 v7, 4, v2")
        a("v_xor_b32 v7, v7, v4")
        a("v_mul_u32_u24 v6, 1152, v5")
        a("v_lshl_add_u32 v%d, v7, 4, v6" % VT)
        a("v_xor_b32 v%d, 64, v%d" % (VT + 1, VT))
        a("v_add_u32 v%d, %d, v%d" % (VT + 1, 9216 - 1024, VT + 1))
        a("v_add_u32 v%d, %d, v%d" % (VT + 2, 2 * (9216 - 1024), VT))
        a("v_add_u32 v%d, %d, v%d" % (VT + 3, 2 * (9216 - 1024), VT + 1))
        a("s_lshl_b32 s84, s3, 12")
        a("s_add_u32 s84, s84, %d" % RB)
        a("s_lshl_b32 s85, s3, 9")
        a("s_add_u32 s85, s85, %d" % (RB + TREG + 16384))
    def loader_setup2():
        for n in range(5):
            if n < 4:
                a("s_lshl_b32 s36, s3, 8")
                a("s_add_u32 s36, s36, %d" % (64 * n))
            else:
                a("s_lshl_b32 s36, s3, 5")
                a("s_add_u32 s36, s36, 1024")
            a("v_add_u32 v6, s36, v2")
            a("v_mul_u32_u24 v7, 3641, v6")
            a("v_lshrrev_b32 v7, 16, v7")
            a("v_mul_u32_u24 v8, 18, v7")
            a("v_sub_u32 v8, v6, v8")
            a("v_and_b32 v9, 35, v7")
            a("v_bfe_u32 v6, v7, 2, 2")
            a("v_lshl_add_u32 v9, v6, 3, v9")
            a("v_bfe_u32 v6, v7, 4, 1")
            a("v_lshl_add_u32 v9, v6, 2, v9")
            a("v_mul_u32_u24 v9, 9216, v9")
            a("v_lshl_add_u32 v%d, v8, 4, v9" % (VF + n))
            if 0 < n < 4: a("v_subrev_u32 v%d, %d, v%d" % (VF + n, 1024 * n, VF + n))
    def issueT(g):
        st = g % 9
        a("s_add_u32 s86, s84, %d" % ((g % R) * SLOT))
        a("s_mov_b32 m0, s86")
        a("s_add_u32 s87, s82, %d" % (128 * st))
        for n in range(4):
            a("buffer_load_dwordx4 v%d, s[28:31], s87 offen offset:%d lds" % (VT + n, 1024 * n))
    def issueF(g):
        st = g % 9
        a("s_add_u32 s86, s84, %d" % ((g % R) * SLOT + TREG))
        a("s_mov_b32 m0, s86")
        a("s_add_u32 s87, s83, %d" % (64 * 9216 * st + (4608 if g < 9 else 0)))
        for n in range(4):
            a("buffer_load_dwordx4 v%d, s[8:11], s87 offen offset:%d lds" % (VF + n, 1024 * n))
        a("s_add_u32 s86, s85, %d" % ((g % R) * SLOT))
        a("s_mov_b32 m0, s86")
        a("s_mov_b64 exec, 0xffffffff")
        a("buffer_load_dwordx4 v%d, s[8:11], s87 offen lds" % (VF + 4))
        a("s_mov_b64 exec, -1")
    def srds_main():
        srd(a, 28, 80, 2048 * 576 * 2)
        srd(a, 8, 4, 576 * 4608 * 2)
        srd(a, 12, 6, WS_BYTES)
        srd(a, 60, 18, 256)
        a("s_mul_i32 s82, s22, %d" % (128 * 1152))
        a("s_mul_i32 s83, s23, 288")
    ACC = 128; FB = [16, 52]; CS = 216; ONE = 236
    vTa = [4, 5]; vTb = [6, 7]; vF = 8; vFh = 9
    bTa = [88, 89]; bTb = [90, 91]; bF = 92; bFh = 93
    def mma_setup():
        a("v_lshrrev_b32 v10, 4, v2")
        a("v_lshrrev_b32 v11, 1, v3")
        a("v_xor_b32 v10, v10, v11")
        a("v_lshlrev_b32 v10, 4, v10")
        a("v_lshl_add_u32 v10, v3, 7, v10")
        a("s_lshl_b32 s26, s24, 13")
        a("s_add_u32 s26, s26, %d" % RB)
        a("v_add_u32 v10, s26, v10")
        a("s_lshl_b32 s26, s25, 12")
        a("v_add_u32 v%d, s26, v10" % bTa[0])
        a("s_xor_b32 s26, s26, 4096")
        a("v_add_u32 v%d, s26, v10" % bTb[0])
        a("v_xor_b32 v%d, 64, v%d" % (bTa[1], bTa[0]))
        a("v_xor_b32 v%d, 64, v%d" % (bTb[1], bTb[0]))
        a("v_lshrrev_b32 v10, 2, v2")
        a("v_mul_u32_u24 v10, %d, v10" % FS)
        a("v_and_b32 v11, 3, v2")
        a("v_lshl_add_u32 v10, v11, 3, v10")
        a("v_add_u32 v10, %d, v10" % (RB + TREG))
        a("s_mul_i32 s26, s25, 160")
        a("v_add_u32 v%d, s26, v10" % bF)
        a("v_add_u32 v%d, 128, v10" % bFh)
        for r in range(ACC, ACC + 72): a("v_mov_b32 v%d, 0" % r)
        for r in range(CS, CS + 20): a("v_mov_b32 v%d, 0" % r)
        for r in range(ONE, ONE + 4): a("v_mov_b32 v%d, 0x3f803f80" % r)
    def mma_addr(slot):
        a("s_mov_b32 s27, %d" % (slot * SLOT))
        for d, s_ in ((vTa[0], bTa[0]), (vTb[0], bTb[0]), (vTa[1], bTa[1]), (vTb[1], bTb[1]), (vF, bF), (vFh, bFh)):
            a("v_add_u32 v%d, s27, v%d" % (d, s_))
    core = G.Core(a, ACC, FB[0], FB[1], FS, TREG, vTa, vTb, vF, vFh)
    trk = core.trk
    a("s_cmp_eq_u32 s98, 0")
    a("s_cbranch_scc1 %s_A0" % name)
    a("s_setprio 3")
    loader_setup()
    a("s_waitcnt lgkmcnt(0)")
    srds_main()
    vm = VmTracker(a)
    def issue(g, vmx):
        issueT(g); issueF(g); vmx.issue("S%d" % g, 9)
    issueT(0)
    loader_setup2()
    issueF(0); vm.issue("S0", 9)
    issue(1, vm); issue(2, vm); issue(3, vm)
    a("s_add_u32 s3, s3, 4"); stamp_setup(a, 1); stamp(a, 0); a("s_sub_u32 s3, s3, 4")
    a("s_load_dwordx4 s[64:67], s[0:1], 8")
    a("s_load_dwordx2 s[76:77], s[0:1], 24")
    mma_setup()
    a("s_waitcnt lgkmcnt(0)")
    srd(a, 68, 66, 2048 * 576 * 2)
    a("s_mov_b32 s88, s64"); a("s_mov_b32 s89, s65")
    srd(a, 64, 88, 2048 * 576 * 2)
    srd(a, 72, 76, 576 * 8)
    def kv_dma():
        a("s_lshr_b32 s36, s2, 3")
        a("s_mul_i32 s36, s36, %d" % (64 * 1152))
        a("s_and_b32 s37, s2, 7")
        a("s_mul_i32 s37, s37, 144")
        a("s_add_u32 s36, s36, s37")
        for q in range(5):
            a("s_add_u32 s38, s3, %d" % (4 * q))
            if q == 4: a("s_min_u32 s38, s38, 18")
            isK = (q < 2); isV = (q > 2)
            a("s_sub_u32 s39, s38, 10")
            a("s_cmp_lt_u32 s38, 10")
            a("s_cselect_b32 s39, s38, s39")
            a("s_cselect_b32 s40, %d, 0" % ((-3 * 1152) & 0xffffffff))
            a("s_lshl_b32 s37, s39, 6")
            a("v_add_u32 v240, s37, v2")
            a("v_mul_u32_u24 v241, 7282, v240")
            a("v_lshrrev_b32 v241, 16, v241")
            a("v_mul_u32_u24 v242, 9, v241")
            a("v_sub_u32 v242, v240, v242")
            a("v_mul_u32_u24 v241, 1152, v241")
            a("v_lshl_add_u32 v241, v242, 4, v241")
            a("s_add_u32 s40, s40, s36")
            a("v_add_u32 v241, s40, v241")
            a("s_lshl_b32 s37, s38, 10")
            a("s_add_u32 s37, s37, %d" % KVL)
            a("s_mov_b32 m0, s37")
            if isK:
                a("s_nop 0")
                a("buffer_load_dwordx4 v241, s[64:67], 0 offen lds")
            elif isV:
                a("s_nop 0")
                a("buffer_load_dwordx4 v241, s[68:71], 0 offen lds")
            else:
                a("s_cmp_lt_u32 s38, 10")
                a("s_cbranch_scc1 %s_kd1" % name)
                a("buffer_load_dwordx4 v241, s[68:71], 0 offen lds")
                a("s_branch %s_kd2" % name)
                a.label("%s_kd1" % name)
                a("buffer_load_dwordx4 v241, s[64:67], 0 offen lds")
                a.label("%s_kd2" % name)
    RA = 96; XB = 112
    for r in range(RA, RA + 16): a("v_mov_b32 v%d, 0" % r)
    a("v_lshrrev_b32 v10, 4, v2")
    a("v_lshrrev_b32 v11, 1, v3")
    a("v_xor_b32 v10, v10, v11")
    a("v_lshlrev_b32 v10, 4, v10")
    a("v_lshl_add_u32 v10, v3, 7, v10")
    a("v_add_u32 v12, s84, v10")
    a("v_xor_b32 v13, 64, v12")
    def rs_rd(g):
        a("v_add_u32 v10, %d, v12" % ((g % R) * SLOT))
        a("v_add_u32 v11, %d, v13" % ((g % R) * SLOT))
        for h in range(2):
            for n in range(2):
                a("ds_read_b128 %s, v%d offset:%d" % (vr(XB + 8 * h + 4 * n), 10 + h, 2048 * n))
    def rs_do():
        for h in range(2):
            for n in range(2):
                x = XB + 8 * h + 4 * n
                a("v_mfma_f32_16x16x32_bf16 %s, %s, %s, %s" % (vr(RA + 4 * n), vr(ONE), vr(x), vr(RA + 4 * n)))
                a("v_mfma_f32_16x16x32_bf16 %s, %s, %s, %s" % (vr(RA + 8 + 4 * n), vr(x), vr(x), vr(RA + 8 + 4 * n)))
    def interleave(dma, comp, vmx=None):
        groups = []; cur = []
        for l in dma:
            cur.append(l)
            if "buffer_load" in l and not any("exec, 0xffffffff" in x for x in cur[-2:]):
                groups.append(cur); cur = []
            elif "exec, -1" in l:
                groups.append(cur); cur = []
        if cur: groups.append(cur)
        ns = max(1, len(groups))
        per = (len(comp) + ns - 1) // ns
        for g in groups:
            a.lines.extend(g)
            a.lines.extend(comp[:per]); comp = comp[per:]
        a.lines.extend(comp)
    vm.wait(["S0"])
    a("s_barrier")
    stamp(a, 1)
    rs_rd(0)
    vm.wait(["S1"])
    a("s_barrier")
    for k in range(9):
        a("s_waitcnt lgkmcnt(0)")
        dma = capture(lambda: (issueT(k + 3), issueF(k + 3))) if k >= 1 else []
        interleave(dma, capture(rs_do))
        if k >= 1: vm.issue("S%d" % (k + 3), 9)
        if k == 3:
            kv_dma(); vm.issue("KV", 5)
        if k < 8:
            rs_rd(k + 1)
        else:
            a("s_nop 7")
            a("v_lshrrev_b32 v10, 4, v2")
            a("v_lshrrev_b32 v11, 2, v3")
            a("v_and_b32 v12, 3, v3")
            for n in range(2):
                G_ = RA + 8 + 4 * n
                for r in range(1, 4):
                    a("v_cmp_eq_u32 vcc, %d, v12" % r)
                    a("s_nop 1")
                    a("v_cndmask_b32 v%d, v%d, v%d, vcc" % (G_, G_, G_ + r))
            ML = 112
            for n in range(2):
                emit_ln_finish(a, RA + 4 * n, RA + 8 + 4 * n, 576, ML + 2 * n, ML + 2 * n + 1, 120)
                a("v_mov_b32 v%d, v%d" % (117 + 2 * n, ML + 2 * n + 1))
                a("v_sub_f32 v%d, 0, v%d" % (116 + 2 * n, ML + 2 * n))
            a("s_lshl_b32 s35, s3, 8")
            a("v_lshlrev_b32 v13, 3, v3")
            a("v_add_u32 v12, s35, v13")
            a("v_cmp_eq_u32 vcc, v10, v11")
            a("s_and_saveexec_b64 s[36:37], vcc")
            for n in range(2):
                a("ds_write_b64 v12, %s offset:%d" % (vr(116 + 2 * n, 2), RST + 128 * n))
            a("s_mov_b64 exec, s[36:37]")
            a("s_cmp_lg_u32 s23, 0")
            a("s_cbranch_scc1 %s_nost1" % name)
            a("s_lshl_b32 s35, s22, 7")
            a("s_lshl_b32 s36, s3, 5")
            a("s_add_u32 s35, s35, s36")
            a("s_lshl_b32 s35, s35, 3")
            a("s_add_u32 s35, s35, 0x%x" % STATS1)
            a("v_mov_b32 v11, 0x7ffffff0")
            a("v_cndmask_b32 v13, v11, v13, vcc")
            for n in range(2):
                a("buffer_store_dwordx2 %s, v13, s[12:15], s35 offen offset:%d sc1" % (vr(ML + 2 * n, 2), 128 * n))
            a.label("%s_nost1" % name)
            a("v_and_b32 v0, 255, v0")
            a("v_lshrrev_b32 v1, 3, v0")
            a("v_and_b32 v10, 7, v0")
            a("s_lshr_b32 s38, s2, 3")
            a("s_lshl_b32 s38, s38, 6")
            a("v_lshl_add_u32 v252, v10, 3, s38")
            a("s_and_b32 s39, s2, 7")
            a("s_mul_i32 s39, s39, 144")
            a("v_lshl_add_u32 v253, v1, 2, s39")
            a("v_lshlrev_b32 v11, 2, v253")
            a("buffer_load_dwordx4 v[248:251], v11, s[72:75], 0 offen")
            a("buffer_load_dwordx4 v[244:247], v11, s[72:75], 0 offen offset:512")
            a("v_mul_u32_u24 v254, 1152, v10")
            a("v_lshl_add_u32 v254, v1, 2, v254")
            a("v_add_u32 v254, %d, v254" % KVL)
            a("s_mov_b32 s41, 0")
            mma_addr(9 % R)
            a("s_mov_b32 s33, 0")
            a("s_setprio 0")
        vm.wait(["S%d" % (k + 2)], "lgkmcnt(0)" if k == 8 else "")
        if k < 8: a("s_barrier")
    a("s_branch %s_mma" % name)
    a.label("%s_A0" % name)
    emit_code_prefetch(a, name)
    a("s_load_dwordx4 s[64:67], s[0:1], 8")
    a("s_load_dwordx2 s[76:77], s[0:1], 24")
    a("s_load_dwordx2 s[78:79], s[0:1], 64")
    mma_setup()
    loader_setup(); loader_setup2()
    a("s_waitcnt lgkmcnt(0)")
    srds_main()
    srd(a, 68, 66, 2048 * 576 * 2)
    a("s_mov_b32 s88, s64"); a("s_mov_b32 s89, s65")
    srd(a, 64, 88, 2048 * 576 * 2)
    srd(a, 72, 76, 576 * 8)
    stamp_setup(a, 1); stamp(a, 0)
    def gran_addr():
        a("v_lshrrev_b32 v10, 4, v2")
        a("s_lshl_b32 s36, s25, 1")
        a("v_add_u32 v11, s36, v10")
        a("v_and_b32 v11, 3, v11")
        a("v_lshl_add_u32 v11, v11, 4, v3")
        a("v_lshlrev_b32 v94, 3, v11")
        a("s_lshl_b32 s59, s22, 15")
        a("s_lshl_b32 s36, s24, 9")
        a("s_add_u32 s59, s59, s36")
        a("s_add_u32 s59, s59, 0x%x" % STATS2)
        a("s_lshl_b32 s36, s23, 1")
        a("s_add_u32 s36, s36, s25")
        a("s_lshl_b32 s36, s36, 10")
        a("s_add_u32 s58, s36, s59")
    gran_addr()
    a("v_mov_b32 v12, 0"); a("v_mov_b32 v13, 0x80000000")
    a("buffer_store_dwordx2 v[12:13], v94, s[12:15], s58 offen sc1")
    a("s_lshl_b32 s36, s22, 4")
    a("s_add_u32 s36, s36, s23")
    a("s_lshl_b32 s36, s36, 8")
    a("s_add_u32 s97, s36, 0x%x" % ZFLG)
    a("v_mov_b32 v10, %d" % LC)
    a("v_mov_b32 v12, 0"); a("v_mov_b32 v13, 0")
    a("s_mov_b64 exec, 1")
    a("buffer_store_dword v12, v12, s[12:15], s97 offen sc1")
    a("buffer_store_dword v12, v12, s[12:15], s97 offen offset:%d sc1" % PFL)
    a("s_lshl_b32 s36, s2, 7")
    a("s_add_u32 s37, s36, 0x%x" % XFLG)
    a("s_add_u32 s36, s36, 0x%x" % CFLG)
    a("buffer_store_dword v12, v12, s[12:15], s37 offen sc1")
    a("buffer_store_dword v12, v12, s[12:15], s36 offen sc1")
    a("s_mov_b64 exec, -1")
    a("ds_write_b64 v10, v[12:13]")
    a("ds_write_b64 v10, v[12:13] offset:8")
    a("ds_write_b64 v10, v[12:13] offset:16")
    a("ds_write_b64 v10, v[12:13] offset:24")
    mma_addr(0)
    a("s_mov_b32 s33, 0")
    a("s_waitcnt lgkmcnt(0)")
    a("s_barrier")
    stamp(a, 1)
    a.label("%s_mma" % name)
    core.prime(0, core.reads(0, 0))
    trk.drain()
    nocs = [False]
    def mfmas(buf):
        L = []
        for ft in range(5):
            A = core.F(buf, ft)
            for tt in range(4 if ft < 4 else 2):
                c = core.accr(ft, tt); B = core.T(buf, tt)
                L.append(("v_mfma_f32_16x16x32_bf16 %s, %s, %s, %s" % (vr(c), vr(A), vr(B), vr(c)), list(range(A, A + 4)) + list(range(B, B + 4))))
            if not nocs[0]: L.append(("v_mfma_f32_16x16x32_bf16 %s, %s, %s, %s" % (vr(CS + 4 * ft), vr(A), vr(ONE), vr(CS + 4 * ft)), list(range(A, A + 4))))
        return L
    def phase(buf, pend):
        for (m, regs) in mfmas(buf):
            trk.need(regs)
            a(m)
            while pend:
                k, t = pend.pop(0)
                if k == "x":
                    a(t)
                    if t.startswith("s_"): continue
                else:
                    a(t[0]); trk.issue(t[1])
                break
        for k, t in pend:
            if k == "x": a(t)
            else: a(t[0]); trk.issue(t[1])
    def iteration(vw=True):
        if vw: a("s_waitcnt vmcnt(0)")
        a("s_barrier")
        rd = [("r", t) for t in core.reads(1, 1)]
        upd = ["s_add_u32 s27, s27, %d" % SLOT, "s_cmp_eq_u32 s27, %d" % (R * SLOT), "s_cselect_b32 s27, 0, s27"]
        tail = ["v_add_u32 v%d, s27, v%d" % (d, s_) for d, s_ in ((vTa[0], bTa[0]), (vF, bF), (vTb[0], bTb[0]), (vFh, bFh))]
        phase(0, rd[:1] + [("x", u) for u in upd] + rd[1:] + [("x", u) for u in tail])
        rd = [("r", t) for t in core.reads(0, 0)]
        tail = ["v_add_u32 v%d, s27, v%d" % (d, s_) for d, s_ in ((vTa[1], bTa[1]), (vTb[1], bTb[1]))] + ["s_add_u32 s33, s33, 1"]
        phase(1, rd + [("x", u) for u in tail])
    a.label("%s_cloop" % name)
    lb = len(a.lines); iteration(); st = copy.deepcopy(trk.out); del a.lines[lb:]; trk.out = copy.deepcopy(st)
    iteration()
    assert [sorted(x) for x in trk.out] == [sorted(x) for x in st]
    a("s_cmp_lt_u32 s33, 9")
    a("s_cbranch_scc1 %s_cloop" % name)
    trk.drain()
    stamp(a, 2)
    MR = 100; T = 72; ZP = 16
    def epi_in():
        gelu_consts(a)
        a("s_lshl_b32 s36, s24, 9")
        a("s_lshl_b32 s37, s25, 8")
        a("s_add_u32 s38, s36, s37")
        a("s_xor_b32 s37, s37, 256")
        a("s_add_u32 s39, s36, s37")
        a("v_lshlrev_b32 v10, 3, v3")
        a("v_add_u32 v11, s38, v10")
        a("ds_read_b64 %s, v11 offset:%d" % (vr(MR, 2), RST))
        a("ds_read_b64 %s, v11 offset:%d" % (vr(MR + 2, 2), RST + 128))
        a("v_add_u32 v11, s39, v10")
        a("ds_read_b64 %s, v11 offset:%d" % (vr(MR + 4, 2), RST))
        a("ds_read_b64 %s, v11 offset:%d" % (vr(MR + 6, 2), RST + 128))
        a("s_waitcnt lgkmcnt(0)")
    S = [108, 110, 52, 54]; Q = [109, 111, 53, 55]
    def gelu_ft(ft, stats):
        tts = range(4 if ft < 4 else 2)
        a("s_call_b64 s[34:35], %s_gsub%d" % (name, ft))
        if stats:
            for d in range(2):
                for tt in tts:
                    p = ZP + 2 * tidx(ft, tt) + d
                    a("v_dot2_f32_bf16 v%d, v%d, v%d, v%d" % (S[tt], p, ONE, S[tt]))
                    a("v_dot2_f32_bf16 v%d, v%d, v%d, v%d" % (Q[tt], p, p, Q[tt]))
    a("s_cmp_eq_u32 s98, 0")
    a("s_cbranch_scc1 %s_A1" % name)
    a("s_barrier")
    a("s_load_dwordx2 s[94:95], s[0:1], 80")
    a("s_load_dwordx2 s[92:93], s[0:1], 72")
    epi_in()
    srd(a, 76, 94, 2304 * 576 * 2)
    srd(a, 28, 92, 2048 * 2)
    for ft in range(5): gelu_ft(ft, False)
    Z1R = 200; BI = 236
    for r_ in range(36): a("v_mov_b32 v%d, v%d" % (Z1R + r_, ZP + r_))
    stamp(a, 3)
    a("s_waitcnt vmcnt(0)")
    for r_ in range(6): a("v_mov_b32 v%d, v%d" % (128 + r_, 88 + r_))
    a.label("%s_kvb" % name)
    for n in range(11): a("ds_read_b32 v%d, v254 offset:%d" % (16 + n, 144 * n))
    a("s_waitcnt lgkmcnt(4)")
    for n in range(8): a("ds_read_b32 v%d, v254 offset:%d" % (32 + n, 10240 + 144 * n))
    for n in range(4): a("v_mov_b32 v%d, v%d" % (44 + n, 248 + n))
    a("v_mov_b32 v56, v252"); a("v_mov_b32 v57, v253")
    a("s_waitcnt lgkmcnt(0)")
    emit_kv_compute(a, wait=False, store=False)
    a("s_mov_b32 s39, 0x%x" % KVT)
    a("buffer_store_dwordx4 v[120:123], v12, s[12:15], s39 offen sc1")
    a("buffer_store_dwordx4 v[124:127], v13, s[12:15], s39 offen sc1")
    a("s_cmp_lg_u32 s41, 0")
    a("s_cbranch_scc1 %s_kvbx" % name)
    a("s_cmp_lg_u32 s3, 0")
    a("s_cbranch_scc1 %s_kvbx" % name)
    a("s_mov_b32 s41, 1")
    for n in range(4): a("v_mov_b32 v%d, v%d" % (248 + n, 244 + n))
    a("v_add_u32 v253, 128, v253")
    a("v_add_u32 v254, 128, v254")
    a("s_mov_b64 exec, 0xffffffff")
    a("s_branch %s_kvb" % name)
    a.label("%s_kvbx" % name)
    a("s_mov_b64 exec, -1")
    for r_ in range(6): a("v_mov_b32 v%d, v%d" % (240 + r_, 128 + r_))
    a.label("%s_kvbd" % name)
    for r_ in range(6): a("v_mov_b32 v%d, v%d" % (88 + r_, 240 + r_))
    a("s_mov_b32 s42, s2")
    emit_wot_loads(a, 100, 112, 720, 3)
    a("s_lshl_b32 s36, s22, 7")
    a("s_lshl_b32 s37, s24, 6")
    a("s_add_u32 s36, s36, s37")
    a("v_lshlrev_b32 v11, 1, v3")
    a("s_lshl_b32 s37, s25, 6")
    a("s_lshl_b32 s38, s36, 1")
    a("s_add_u32 s39, s38, s37")
    a("s_xor_b32 s37, s37, 64")
    a("s_add_u32 s36, s38, s37")
    a("buffer_load_ushort v96, v11, s[28:31], s39 offen")
    a("buffer_load_ushort v97, v11, s[28:31], s39 offen offset:32")
    a("buffer_load_ushort v98, v11, s[28:31], s36 offen")
    a("buffer_load_ushort v99, v11, s[28:31], s36 offen offset:32")
    for r in range(ACC, ACC + 72): a("v_mov_b32 v%d, 0" % r)
    a("v_lshrrev_b32 v10, 2, v2")
    a("v_lshlrev_b32 v10, 5, v10")
    a("v_and_b32 v11, 3, v2")
    a("v_lshl_add_u32 v10, v11, 3, v10")
    a("v_add_u32 v10, %d, v10" % (RB + TREG))
    a("s_mul_i32 s26, s25, 10240")
    a("v_add_u32 v%d, s26, v10" % bF)
    a("v_add_u32 v%d, 8192, v10" % bFh)
    core.FS = 32; core.FT = 2048
    mma_addr(0)
    a("s_mov_b32 s33, 0")
    stamp(a, 4)
    a("s_barrier")
    stamp(a, 5)
    core.prime(0, core.reads(0, 0))
    trk.drain()
    nocs[0] = True
    a.label("%s_gloop" % name)
    lb = len(a.lines); iteration(False); st = copy.deepcopy(trk.out); del a.lines[lb:]; trk.out = copy.deepcopy(st)
    iteration(False)
    assert [sorted(x) for x in trk.out] == [sorted(x) for x in st]
    a("s_cmp_lg_u32 s33, 3")
    a("s_cbranch_scc1 %s_ghk0" % name)
    a("s_waitcnt vmcnt(0)")
    for n in range(3):
        a("buffer_store_dwordx4 %s, v%d, s[12:15], s40 offen sc1" % (vr(100 + 4 * n), 112 + n))
    for tt in range(4): a("v_lshlrev_b32 v%d, 16, v%d" % (BI + 2 * tt, 96 + tt))
    a.label("%s_ghk0" % name)
    a("s_cmp_lg_u32 s33, 6")
    a("s_cbranch_scc1 %s_ghk" % name)
    a("s_waitcnt vmcnt(0)")
    a("v_mov_b32 v10, %d" % (LC + 8))
    a("v_mov_b32 v11, 1")
    a("s_mov_b64 exec, 1")
    a("ds_add_rtn_u32 v12, v10, v11")
    a("s_waitcnt lgkmcnt(0)")
    a("v_readfirstlane_b32 s36, v12")
    a("s_cmp_lg_u32 s36, 3")
    a("s_cbranch_scc1 %s_nokvs" % name)
    a("s_lshl_b32 s36, s2, 7")
    a("s_add_u32 s36, s36, 0x%x" % XFLG)
    a("v_mov_b32 v10, 0")
    a("buffer_store_dword v11, v10, s[12:15], s36 offen sc1")
    a.label("%s_nokvs" % name)
    a("s_mov_b64 exec, -1")
    a.label("%s_ghk" % name)
    a("s_cmp_lg_u32 s33, 24")
    a("s_cbranch_scc1 %s_ghk2" % name)
    a("v_lshlrev_b32 v10, 7, v2")
    a("s_mov_b32 s36, 0x%x" % (XFLG + 0))
    a("buffer_load_dword v250, v10, s[12:15], s36 offen sc1")
    a("s_mov_b32 s36, 0x%x" % (XFLG + 8192))
    a("buffer_load_dword v251, v10, s[12:15], s36 offen sc1")
    a("s_mov_b32 s36, 0x%x" % (XFLG + 16384))
    a("buffer_load_dword v252, v10, s[12:15], s36 offen sc1")
    a("s_mov_b32 s36, 0x%x" % (XFLG + 24576))
    a("buffer_load_dword v253, v10, s[12:15], s36 offen sc1")

    a.label("%s_ghk2" % name)
    a("s_cmp_lt_u32 s33, 32")
    a("s_cbranch_scc1 %s_gloop" % name)
    trk.drain()
    stamp(a, 6)
    G3.emit_k2_epilogue2(a, core, Z1R, BI, " sc1")
    stamp(a, 7)
    a("s_setprio 3")
    a("s_lshl_b32 s36, s22, 4")
    a("s_add_u32 s36, s36, s23")
    a("s_lshl_b32 s36, s36, 8")
    a("s_add_u32 s97, s36, 0x%x" % (ZFLG + PFL))
    c_common()
    a("v_lshlrev_b32 v14, 4, v2")
    a("s_mul_i32 s26, s22, %d" % (36 * 8192))
    a("s_lshl_b32 s24, s3, 12")
    a("s_add_u32 s26, s26, s24")
    a("s_add_u32 s26, s26, 0x%x" % PIMG)
    a("s_mul_i32 s27, s23, %d" % (18 * 20480))
    a("s_mul_i32 s25, s3, 5120")
    a("s_add_u32 s27, s27, s25")
    a("s_add_u32 s27, s27, 0x%x" % WOT)
    a("s_add_u32 s25, s25, %d" % CTREG)
    a("v_and_b32 v28, 15, v2")
    a("v_lshlrev_b32 v30, 7, v2")
    a("v_mov_b32 v26, %d" % LC)
    a("v_mov_b32 v27, 1")
    a("s_waitcnt vmcnt(0)")
    for q_ in range(4): a("v_mov_b32 v%d, v%d" % (32 + q_, 250 + q_))
    a("s_mov_b64 exec, 1")
    a("ds_add_rtn_u32 v29, v26, v27 offset:16")
    a("s_waitcnt lgkmcnt(0)")
    a("v_readfirstlane_b32 s36, v29")
    a("s_cmp_lg_u32 s36, 3")
    a("s_cbranch_scc1 %s_nops" % name)
    a("v_mov_b32 v29, 0")
    a("buffer_store_dword v27, v29, s[12:15], s97 offen sc1")
    a.label("%s_nops" % name)
    a("s_mov_b64 exec, -1")
    a("s_mov_b32 s34, 0")
    a.label("%s_cw" % name)
    a("ds_read_b32 v29, v26 offset:16")
    a("s_add_u32 s34, s34, 1")
    a("s_waitcnt lgkmcnt(0)")
    a("v_readfirstlane_b32 s36, v29")
    a("s_cmp_gt_u32 s34, %d" % (SPIN_MAX * 20))
    a("s_cbranch_scc1 %s_cwx" % name)
    a("s_cmp_ge_u32 s36, 4")
    a("s_cbranch_scc1 %s_cwx" % name)
    a("s_sleep 1")
    a("s_branch %s_cw" % name)
    a.label("%s_cwx" % name)
    a("s_mov_b32 s34, 0")
    a.label("%s_cp" % name)
    a("v_and_b32 v32, v32, v33")
    a("v_and_b32 v34, v34, v35")
    a("v_and_b32 v32, v32, v34")
    a("v_cmp_eq_u32 vcc, 1, v32")
    a("s_nop 1")
    a("v_cndmask_b32 v32, 0, 16, vcc")
    a("v_cmp_gt_u32 vcc, 16, v32")
    a("s_add_u32 s34, s34, 1")
    a("s_cmp_gt_u32 s34, %d" % SPIN_MAX)
    a("s_cbranch_scc1 %s_cpx" % name)
    a("s_cbranch_vccz %s_cpx" % name)
    a("s_sleep 32")
    a("s_mov_b32 s38, 0x%x" % (XFLG + 0))
    a("buffer_load_dword v32, v30, s[12:15], s38 offen sc1")
    a("s_mov_b32 s38, 0x%x" % (XFLG + 8192))
    a("buffer_load_dword v33, v30, s[12:15], s38 offen sc1")
    a("s_mov_b32 s38, 0x%x" % (XFLG + 16384))
    a("buffer_load_dword v34, v30, s[12:15], s38 offen sc1")
    a("s_mov_b32 s38, 0x%x" % (XFLG + 24576))
    a("buffer_load_dword v35, v30, s[12:15], s38 offen sc1")
    a("s_waitcnt vmcnt(0)")
    a("s_branch %s_cp" % name)
    a.label("%s_cpx" % name)
    def cF(off, soff):
        a("s_add_u32 s36, s25, %s" % off)
        a("s_mov_b32 m0, s36")
        a("s_add_u32 s37, %s, 4096" % soff)
        for n in range(4):
            a("buffer_load_dwordx4 v14, s[12:15], %s offen offset:%d sc1 lds" % (soff, n * 1024))
        a("s_add_u32 s36, s36, 4096")
        a("s_mov_b32 m0, s36")
        a("s_nop 0")
        a("buffer_load_dwordx4 v14, s[12:15], s37 offen sc1 lds")
    def cT(off, soff):
        a("s_add_u32 s35, s24, %s" % off)
        a("s_mov_b32 m0, s35")
        a("s_nop 0")
        for n in range(4):
            a("buffer_load_dwordx4 v14, s[12:15], %s offen offset:%d sc1 lds" % (soff, n * 1024))
    a("s_add_u32 s38, s27, 20480")
    cF(str(C0), "s27"); cF(str(C0 + CSL), "s38")
    a("s_mov_b32 s34, 0")
    a("s_cmp_lg_u32 s3, 0")
    a("s_cbranch_scc1 %s_cpl" % name)
    a("v_lshlrev_b32 v28, 8, v28")
    a("s_lshr_b32 s39, s22, 1")
    a("s_lshl_b32 s39, s39, 12")
    a("s_add_u32 s39, s39, 0x%x" % (ZFLG + PFL))
    a.label("%s_cpz" % name)
    a("buffer_load_dword v29, v28, s[12:15], s39 offen sc1")
    a("s_add_u32 s34, s34, 1")
    a("s_waitcnt vmcnt(0)")
    a("v_cmp_ne_u32 vcc, 1, v29")
    a("s_cmp_gt_u32 s34, %d" % SPIN_MAX)
    a("s_cbranch_scc1 %s_cpzx" % name)
    a("s_cbranch_vccz %s_cpzx" % name)
    a("s_sleep 8")
    a("s_branch %s_cpz" % name)
    a.label("%s_cpzx" % name)
    a("ds_write_b32 v26, v27 offset:24")
    a("s_branch %s_cgo" % name)
    a.label("%s_cpl" % name)
    a("ds_read_b32 v29, v26 offset:24")
    a("s_add_u32 s34, s34, 1")
    a("s_waitcnt lgkmcnt(0)")
    a("v_readfirstlane_b32 s36, v29")
    a("s_cmp_gt_u32 s34, %d" % (SPIN_MAX * 20))
    a("s_cbranch_scc1 %s_cgo" % name)
    a("s_cmp_lg_u32 s36, 0")
    a("s_cbranch_scc1 %s_cgo" % name)
    a("s_sleep 2")
    a("s_branch %s_cpl" % name)
    a.label("%s_cgo" % name)
    stamp(a, 8)
    a("s_add_u32 s38, s26, 16384")
    cT(str(C0), "s26"); cT(str(C0 + CSL), "s38")
    a("s_add_u32 s26, s26, 32768")
    a("s_add_u32 s27, s27, 40960")
    a("s_mov_b32 s33, %d" % RB)
    def cissue():
        cT("s33", "s26"); cF("s33", "s27")
        a("s_add_u32 s26, s26, 16384")
        a("s_add_u32 s27, s27, 20480")
        a("s_add_u32 s33, s33, %d" % CSL)
        a("s_cmp_eq_u32 s33, %d" % CW)
        a("s_cselect_b32 s33, %d, s33" % RB)
    a("s_waitcnt vmcnt(4)")
    a("s_barrier")
    cissue(); cissue()
    a("s_waitcnt vmcnt(18)")
    a("s_barrier")
    a("s_mov_b32 s34, 0")
    a.label("%s_clloop" % name)
    cissue()
    a("s_cmp_lg_u32 s34, 11")
    a("s_cbranch_scc1 %s_cl1" % name)
    a("s_mov_b32 s38, 0x%x" % (CFLG + 0))
    a("buffer_load_dword v32, v30, s[12:15], s38 offen sc1")
    a("s_mov_b32 s38, 0x%x" % (CFLG + 8192))
    a("buffer_load_dword v33, v30, s[12:15], s38 offen sc1")
    a("s_mov_b32 s38, 0x%x" % (CFLG + 16384))
    a("buffer_load_dword v34, v30, s[12:15], s38 offen sc1")
    a("s_mov_b32 s38, 0x%x" % (CFLG + 24576))
    a("buffer_load_dword v35, v30, s[12:15], s38 offen sc1")
    a("s_waitcnt vmcnt(22)")
    a("s_branch %s_cl2" % name)
    a.label("%s_cl1" % name)
    a("s_waitcnt vmcnt(18)")
    a.label("%s_cl2" % name)
    a("s_barrier")
    a("s_add_u32 s34, s34, 1")
    a("s_cmp_lt_u32 s34, 14")
    a("s_cbranch_scc1 %s_clloop" % name)
    a("s_mov_b32 s34, 0")
    a.label("%s_cy" % name)
    a("v_and_b32 v32, v32, v33")
    a("v_and_b32 v34, v34, v35")
    a("v_and_b32 v32, v32, v34")
    a("v_cmp_eq_u32 vcc, 1, v32")
    a("s_nop 1")
    a("v_cndmask_b32 v32, 0, 16, vcc")
    a("v_cmp_gt_u32 vcc, 16, v32")
    a("s_add_u32 s34, s34, 1")
    a("s_cmp_gt_u32 s34, %d" % SPIN_MAX)
    a("s_cbranch_scc1 %s_cyx" % name)
    a("s_cbranch_vccz %s_cyx" % name)
    a("s_sleep 32")
    a("s_mov_b32 s38, 0x%x" % (CFLG + 0))
    a("buffer_load_dword v32, v30, s[12:15], s38 offen sc1")
    a("s_mov_b32 s38, 0x%x" % (CFLG + 8192))
    a("buffer_load_dword v33, v30, s[12:15], s38 offen sc1")
    a("s_mov_b32 s38, 0x%x" % (CFLG + 16384))
    a("buffer_load_dword v34, v30, s[12:15], s38 offen sc1")
    a("s_mov_b32 s38, 0x%x" % (CFLG + 24576))
    a("buffer_load_dword v35, v30, s[12:15], s38 offen sc1")
    a("s_waitcnt vmcnt(0)")
    a("s_branch %s_cy" % name)
    a.label("%s_cyx" % name)
    a("v_lshrrev_b32 v3, 3, v2")
    a("v_and_b32 v4, 7, v2")
    a("v_lshlrev_b32 v4, 4, v4")
    a("s_mul_i32 s33, s52, 144")
    a("s_mul_i32 s34, s53, 80")
    a("s_lshl_b32 s35, s22, 7")
    a("s_add_u32 s35, s35, 0x%x" % YT)
    for n in range(3):
        a("s_add_u32 s36, s3, %d" % (4 * n))
        if n == 2: a("s_min_u32 s36, s36, 9")
        a("s_lshl_b32 s37, s36, 3")
        a("s_add_u32 s38, s37, s33")
        if n < 2: a("s_add_u32 s38, s38, s34")
        a("v_add_u32 v5, s38, v3")
        a("v_lshl_add_u32 v5, v5, 12, v4")
        a("s_lshl_b32 s36, s36, 10")
        a("s_add_u32 s36, s36, %d" % YOFF)
        a("s_mov_b32 m0, s36")
        a("s_nop 0")
        a("buffer_load_dwordx4 v5, s[12:15], s35 offen sc1 lds")
    fin_loads()
    a("s_waitcnt vmcnt(%d)" % (9 + 7))
    a("s_barrier")
    a("s_waitcnt vmcnt(7)")
    a("s_barrier")
    a("s_barrier")
    a("s_setprio 0")
    a("s_waitcnt vmcnt(0)")
    a("s_branch %s_cfin" % name)
    a.label("%s_A1" % name)
    a("s_setprio 2")
    vmA = VmTracker(a)
    PB = 132
    def aux_head():
        epi_in()
        for tt in range(4):
            a("v_mov_b32 v%d, 0" % S[tt]); a("v_mov_b32 v%d, 0" % Q[tt])
    def aux_pub():
        a("s_nop 2")
        emit_xg_reduce(a, S + Q, 72)
        a("v_lshrrev_b32 v10, 4, v2")
        for g in range(1, 4):
            a("v_cmp_eq_u32 vcc, %d, v10" % g)
            a("s_nop 1")
            a("v_cndmask_b32 v%d, v%d, v%d, vcc" % (S[0], S[0], S[g]))
            a("v_cndmask_b32 v%d, v%d, v%d, vcc" % (Q[0], Q[0], Q[g]))
        a("v_and_b32 v%d, 0x7fffffff, v%d" % (Q[0], Q[0]))
        a("buffer_store_dwordx2 v[%d:%d], v94, s[12:15], s58 offen sc1" % (S[0], Q[0]))
    chunks = [capture(aux_head) + capture(gelu_ft, 0, True), capture(gelu_ft, 1, True), capture(gelu_ft, 2, True),
              capture(gelu_ft, 3, True), capture(gelu_ft, 4, True) + capture(aux_pub)]
    KD = 172
    for k in range(9, 18):
        a("s_barrier")
        if k == 9:
            a("s_cmp_lg_u32 s3, 0")
            a("s_cbranch_scc1 %s_nosig" % name)
            a("v_mov_b32 v10, 1")
            a("s_lshl_b32 s36, s22, 2")
            a("v_mov_b32 v11, s36")
            a("s_mov_b64 exec, 1")
            a("buffer_atomic_add v10, v11, s[60:63], 0 offen sc1")
            a("s_mov_b64 exec, -1")
            a.label("%s_nosig" % name)
        g = k + 3
        dma = capture(lambda: (issueT(g), issueF(g))) if g < 18 else []
        comp = chunks[k - 9] if k - 9 < len(chunks) else []
        a.lines.extend(dma); a.lines.extend(comp)
        if k == 13: vmA.issue("pub", 1)
        if g < 18: vmA.issue("S%d" % g, 9)
        if k == 14:
            srd(a, 92, 78, 2048 * 2048 * 2)
            a("v_lshrrev_b32 v10, 4, v2")
            a("v_lshlrev_b32 v10, 12, v10")
            a("v_lshl_add_u32 v10, v3, 4, v10")
            a("s_lshl_b32 s40, s22, 7")
            a("s_lshl_b32 s36, s3, 5")
            a("s_add_u32 s40, s40, s36")
            a("s_lshl_b32 s40, s40, 12")
            a("s_lshl_b32 s36, s23, 8")
            a("s_add_u32 s40, s40, s36")
            for n in range(8):
                a("buffer_load_dwordx4 v[200:203], v10, s[92:95], s40 offen")
                if n < 7: a("s_add_u32 s40, s40, 16384")
            vmA.issue("wp", 8)
            a("s_lshl_b32 s36, s22, 2")
            a("v_mov_b32 v199, s36")
            a("buffer_load_dword v198, v199, s[60:63], 0 offen sc1"); vmA.issue("cnt", 1)
        if k + 2 < 18 and k + 2 >= 12:
            vmA.wait(["S%d" % (k + 2)])
    a("s_barrier")
    stamp(a, 3)
    a("s_load_dwordx4 s[88:91], s[0:1], 32")
    Z2 = ZP
    a("v_and_b32 v4, 31, v2")
    a("v_lshlrev_b32 v4, 4, v4")
    a("v_lshrrev_b32 v10, 5, v2")
    a("v_lshl_add_u32 v4, v10, 10, v4")
    for q in range(8): a("s_add_u32 s%d, s59, %d" % ((52, 53, 42, 43, 40, 41, 38, 39)[q], 4096 * q))
    GB = 128
    def gather():
        for q in range(16):
            a("buffer_load_dwordx4 %s, v4, s[12:15], s%d offen offset:%d sc1" % (vr(GB + 4 * q), (52, 53, 42, 43, 40, 41, 38, 39)[q >> 1], 2048 * (q & 1)))
    a("s_waitcnt vmcnt(0)")
    gather()
    a("s_mov_b32 s33, 0")
    a("s_waitcnt vmcnt(0)")
    a.label("%s_chk" % name)
    a("v_subrev_u32 v11, 16, v198")
    for q in range(16):
        a("v_or3_b32 v11, v11, v%d, v%d" % (GB + 4 * q + 1, GB + 4 * q + 3))
    a("v_cmp_gt_i32 vcc, 0, v11")
    a("s_add_u32 s33, s33, 1")
    a("s_cmp_gt_u32 s33, %d" % SPIN_MAX)
    a("s_cbranch_scc1 %s_ok" % name)
    a("s_cbranch_vccz %s_ok" % name)
    a("s_sleep 32")
    a("buffer_load_dword v198, v199, s[60:63], 0 offen sc1")
    a("s_waitcnt vmcnt(0)")
    gather()
    a("s_waitcnt vmcnt(0)")
    a("s_branch %s_chk" % name)
    a.label("%s_ok" % name)
    stamp(a, 5)
    for st_ in (32, 16, 8, 4):
        for q in range(0, st_, 2):
            a("v_pk_add_f32 %s, %s, %s" % (vr(GB + q, 2), vr(GB + q, 2), vr(GB + q + st_, 2)))
    for e in range(4): a("v_mov_b32 v%d, v%d" % (72 + e, GB + e))
    a("s_nop 1")
    for e in range(4): a("v_permlane32_swap_b32 v%d, v%d" % (GB + e, 72 + e))
    a("s_nop 1")
    for e in range(4): a("v_add_f32 v%d, v%d, v%d" % (GB + e, GB + e, 72 + e))
    for h in range(2):
        emit_ln_finish(a, GB + 2 * h, GB + 2 * h + 1, 2304, GB + 8 + h, GB + 4 + 2 * h, GB + 12)
        a("v_mul_f32 v%d, -v%d, v%d" % (GB + 5 + 2 * h, GB + 8 + h, GB + 4 + 2 * h))
    a("v_and_b32 v10, 31, v2")
    a("s_lshl_b32 s36, s24, 9")
    a("v_lshl_add_u32 v10, v10, 4, s36")
    a("ds_write_b128 v10, %s offset:1024" % vr(GB + 4))
    a("s_lshl_b32 s37, s25, 8")
    a("s_add_u32 s38, s36, s37")
    a("s_xor_b32 s37, s37, 256")
    a("s_add_u32 s39, s36, s37")
    a("v_lshlrev_b32 v10, 3, v3")
    a("v_add_u32 v11, s38, v10")
    a("v_add_u32 v10, s39, v10")
    a("s_waitcnt lgkmcnt(0)")
    a("ds_read_b64 %s, v11 offset:1024" % vr(MR, 2))
    a("ds_read_b64 %s, v11 offset:1152" % vr(MR + 2, 2))
    a("ds_read_b64 %s, v10 offset:1024" % vr(MR + 4, 2))
    a("ds_read_b64 %s, v10 offset:1152" % vr(MR + 6, 2))
    a("v_lshrrev_b32 v10, 4, v2")
    a("v_lshrrev_b32 v11, 2, v2"); a("v_and_b32 v11, 1, v11"); a("v_lshlrev_b32 v11, 4, v11")
    a("v_lshrrev_b32 v5, 3, v2"); a("v_and_b32 v5, 1, v5"); a("v_lshl_add_u32 v11, v5, 2, v11")
    a("v_and_b32 v5, 3, v2"); a("v_add_u32 v11, v11, v5")
    a("v_and_b32 v5, 1, v10")
    a("v_lshl_add_u32 v11, v5, 3, v11")
    a("v_lshlrev_b32 v11, 5, v11")
    a("v_lshrrev_b32 v5, 1, v10")
    a("v_lshl_add_u32 v6, v5, 4, v11")
    a("s_lshl_b32 s33, s23, 5")
    a("s_lshl_b32 s36, s22, 1")
    a("s_add_u32 s33, s33, s36")
    a("s_add_u32 s33, s33, s24")
    a("s_mul_i32 s33, s33, 18432")
    if ZIMG: a("s_add_u32 s33, s33, 0x%x" % ZIMG)
    a("s_lshl_b32 s36, s25, 10")
    a("s_add_u32 s39, s33, s36")
    a("s_add_u32 s39, s39, 8192")
    a("s_mul_i32 s38, s25, 10240")
    a("s_add_u32 s33, s33, s38")
    a("s_add_u32 s37, s33, s36")
    a("s_xor_b32 s36, s36, 1024")
    a("s_add_u32 s38, s33, s36")
    a("s_add_u32 s33, s37, 4096")
    a("s_add_u32 s36, s38, 4096")
    def norm_pair(nA, ttA, nB, ttB, O):
        for q, (n, tt) in enumerate(((nA, ttA), (nB, ttB))):
            for d in range(2):
                z = Z2 + 2 * n + d; t = T + 4 * q + 2 * d
                a("v_lshlrev_b32 v%d, 16, v%d" % (t, z))
                a("v_and_b32 v%d, 0xffff0000, v%d" % (t + 1, z))
        for q, (n, tt) in enumerate(((nA, ttA), (nB, ttB))):
            for d in range(2):
                t = T + 4 * q + 2 * d
                a("v_pk_fma_f32 %s, %s, %s, %s op_sel:[0,0,1] op_sel_hi:[1,0,1]" % (vr(t, 2), vr(t, 2), vr(MR + 2 * tt, 2), vr(MR + 2 * tt, 2)))
        for q in range(2):
            for d in range(2):
                t = T + 4 * q + 2 * d
                a("v_cvt_pk_bf16_f32 v%d, v%d, v%d" % (O + 2 * q + d, t, t + 1))
        a("s_nop 1")
        a("v_permlane16_swap_b32 v%d, v%d" % (O, O + 2))
        a("v_permlane16_swap_b32 v%d, v%d" % (O + 1, O + 3))
    a("s_waitcnt lgkmcnt(0)")
    cnt = 0
    for ft in range(4):
        for pp in range(2):
            O = 200 + 4 * cnt; cnt += 1
            norm_pair(tidx(ft, 2 * pp), 2 * pp, tidx(ft, 2 * pp + 1), 2 * pp + 1, O)
            a("s_nop 0")
            a("buffer_store_dwordx4 %s, v6, s[12:15], s%d offen offset:%d sc1" % (vr(O), ((37, 38), (33, 36))[ft >> 1][pp], (ft & 1) * 2048))
    O = 200 + 4 * cnt
    norm_pair(16, 0, 17, 1, O)
    a("s_nop 0")
    a("buffer_store_dwordx4 %s, v6, s[12:15], s39 offen sc1" % vr(O))
    stamp(a, 6)
    a("s_setprio 3")
    srd(a, 8, 78, 2048 * 2048 * 2)
    a("v_lshrrev_b32 v3, 3, v2")
    a("s_lshl_b32 s24, s3, 5")
    a("v_add_u32 v3, s24, v3")
    a("v_and_b32 v4, 7, v2")
    a("v_lshrrev_b32 v6, 4, v2")
    a("v_xor_b32 v6, v6, v4")
    a("v_lshlrev_b32 v6, 4, v6")
    a("v_lshl_add_u32 v10, v3, 12, v6")
    a("v_xor_b32 v11, 64, v10")
    a("v_add_u32 v11, %d, v11" % (32768 - 1024))
    a("v_add_u32 v12, %d, v10" % (2 * (32768 - 1024)))
    a("v_add_u32 v13, %d, v11" % (2 * (32768 - 1024)))
    a("v_lshlrev_b32 v14, 4, v2")
    a("s_lshl_b32 s26, s22, 19")
    a("s_mul_i32 s27, s23, %d" % (32 * 18432))
    a("s_lshl_b32 s24, s3, 12")
    a("s_add_u32 s27, s27, s24")
    if ZIMG: a("s_add_u32 s27, s27, 0x%x" % ZIMG)
    a("s_lshl_b32 s25, s3, 9")
    a("s_sub_u32 s32, s25, s24")
    a("s_add_u32 s32, s32, 16384")
    a("s_add_u32 s24, s24, %d" % RB)
    a("s_waitcnt vmcnt(0) lgkmcnt(0)")
    a("v_mov_b32 v26, %d" % LC)
    a("v_mov_b32 v27, 1")
    a("s_mov_b64 exec, 1")
    a("ds_add_rtn_u32 v28, v26, v27")
    a("s_waitcnt lgkmcnt(0)")
    a("v_readfirstlane_b32 s36, v28")
    a("s_cmp_lg_u32 s36, 3")
    a("s_cbranch_scc1 %s_nozs" % name)
    a("v_mov_b32 v28, 0")
    a("buffer_store_dword v27, v28, s[12:15], s97 offen sc1")
    a.label("%s_nozs" % name)
    a("s_mov_b64 exec, -1")
    stamp(a, 7)
    srd(a, 16, 88, 576 * 2048 * 2)
    srd(a, 84, 90, 576 * 2)
    for g in range(4):
        a("s_add_u32 s35, s24, %d" % (g * SLOT))
        a("s_mov_b32 m0, s35")
        a("s_add_u32 s36, s26, %d" % (128 * g))
        for n in range(4):
            a("buffer_load_dwordx4 v%d, s[8:11], s36 offen offset:%d lds" % (10 + n, n * 1024))
    a("s_mov_b32 s34, 0")
    a("s_cmp_lg_u32 s3, 0")
    a("s_cbranch_scc1 %s_pl" % name)
    a("v_and_b32 v28, 15, v2")
    a("v_lshlrev_b32 v30, 2, v28")
    a("v_lshlrev_b32 v28, 12, v28")
    a("s_lshl_b32 s52, s23, 8")
    a("s_add_u32 s52, s52, 0x%x" % ZFLG)
    a.label("%s_pz0" % name)
    a("buffer_load_dword v31, v30, s[60:63], 0 offen sc1")
    a("s_add_u32 s34, s34, 1")
    a("s_waitcnt vmcnt(0)")
    a("v_cmp_gt_u32 vcc, 16, v31")
    a("s_cmp_gt_u32 s34, %d" % SPIN_MAX)
    a("s_cbranch_scc1 %s_pz" % name)
    a("s_cbranch_vccz %s_pz" % name)
    a("s_sleep 32")
    a("s_branch %s_pz0" % name)
    a.label("%s_pz" % name)
    a("buffer_load_dword v29, v28, s[12:15], s52 offen sc1")
    a("s_add_u32 s34, s34, 1")
    a("s_waitcnt vmcnt(0)")
    a("v_cmp_ne_u32 vcc, 1, v29")
    a("s_cmp_gt_u32 s34, %d" % SPIN_MAX)
    a("s_cbranch_scc1 %s_pzx" % name)
    a("s_cbranch_vccz %s_pzx" % name)
    a("s_sleep 8")
    a("s_branch %s_pz" % name)
    a.label("%s_pzx" % name)
    a("v_mov_b32 v27, 1")
    a("ds_write_b32 v26, v27 offset:4")
    a("s_branch %s_pgo" % name)
    a.label("%s_pl" % name)
    a("ds_read_b32 v27, v26 offset:4")
    a("s_add_u32 s34, s34, 1")
    a("s_waitcnt lgkmcnt(0)")
    a("v_readfirstlane_b32 s36, v27")
    a("s_cmp_gt_u32 s34, %d" % (SPIN_MAX * 20))
    a("s_cbranch_scc1 %s_pgo" % name)
    a("s_cmp_lg_u32 s36, 0")
    a("s_cbranch_scc1 %s_pgo" % name)
    a("s_sleep 2")
    a("s_branch %s_pl" % name)
    a.label("%s_pgo" % name)
    stamp(a, 8)
    for g in range(4):
        a("s_add_u32 s35, s24, %d" % (g * SLOT + TREG))
        a("s_mov_b32 m0, s35")
        a("s_add_u32 s36, s27, %d" % (18432 * g))
        a("s_add_u32 s37, s36, s32")
        for n in range(4):
            a("buffer_load_dwordx4 v14, s[12:15], s36 offen offset:%d sc1 lds" % (n * 1024))
        a("s_add_u32 s35, s35, s32")
        a("s_mov_b32 m0, s35")
        a("s_mov_b64 exec, 0xffffffff")
        a("buffer_load_dwordx4 v14, s[12:15], s37 offen sc1 lds")
        a("s_mov_b64 exec, -1")
    a("s_add_u32 s26, s26, 512")
    a("s_add_u32 s27, s27, %d" % (4 * 18432))
    a("s_mov_b32 s33, 0")
    a("s_lshl_b32 s43, s2, 2")
    a("s_add_u32 s43, s43, s3")
    a("s_and_b32 s53, s43, 1")
    a("s_sub_u32 s36, s43, 448")
    a("s_lshr_b32 s37, s43, 1")
    a("s_cmp_ge_u32 s43, 896")
    a("s_cselect_b32 s43, s36, s37")
    a("s_cselect_b32 s53, 2, s53")
    a("s_waitcnt vmcnt(15)")
    a("s_barrier")
    a("s_waitcnt vmcnt(10)")
    a("s_barrier")
    a("s_waitcnt vmcnt(5)")
    a("s_barrier")
    a("s_mov_b32 s34, 4")
    def issue2():
        a("s_add_u32 s35, s33, s24")
        a("s_mov_b32 m0, s35")
        a("s_add_u32 s36, s35, %d" % TREG)
        for n in range(4):
            a("buffer_load_dwordx4 v%d, s[8:11], s26 offen offset:%d lds" % (10 + n, n * 1024))
        a("s_mov_b32 m0, s36")
        a("s_add_u32 s37, s27, s32")
        for n in range(4):
            a("buffer_load_dwordx4 v14, s[12:15], s27 offen offset:%d sc1 lds" % (n * 1024))
        a("s_add_u32 s36, s36, s32")
        a("s_mov_b32 m0, s36")
        a("s_mov_b64 exec, 0xffffffff")
        a("buffer_load_dwordx4 v14, s[12:15], s37 offen sc1 lds")
        a("s_mov_b64 exec, -1")
        a("s_add_u32 s26, s26, 128")
        a("s_add_u32 s27, s27, 18432")
        a("s_add_u32 s33, s33, %d" % SLOT)
        a("s_cmp_eq_u32 s33, %d" % (R * SLOT))
        a("s_cselect_b32 s33, 0, s33")
    a.label("%s_lloop" % name)
    issue2()
    a("s_cmp_eq_u32 s34, 18")
    a("s_cbranch_scc1 %s_hk1" % name)
    a("s_cmp_eq_u32 s34, 21")
    a("s_cbranch_scc1 %s_hk2" % name)
    a("s_waitcnt vmcnt(9)")
    a.label("%s_lcont" % name)
    a("s_barrier")
    a("s_add_u32 s34, s34, 1")
    a("s_cmp_lt_u32 s34, 32")
    a("s_cbranch_scc1 %s_lloop" % name)
    a("s_branch %s_ldone" % name)
    a.label("%s_hk1" % name)
    a("v_lshlrev_b32 v28, 7, v2")
    a("s_mov_b32 s52, 0x%x" % (XFLG + 0))
    a("buffer_load_dword v32, v28, s[12:15], s52 offen sc1")
    a("s_mov_b32 s52, 0x%x" % (XFLG + 8192))
    a("buffer_load_dword v33, v28, s[12:15], s52 offen sc1")
    a("s_mov_b32 s52, 0x%x" % (XFLG + 16384))
    a("buffer_load_dword v34, v28, s[12:15], s52 offen sc1")
    a("s_mov_b32 s52, 0x%x" % (XFLG + 24576))
    a("buffer_load_dword v35, v28, s[12:15], s52 offen sc1")
    a("s_waitcnt vmcnt(13)")
    a("s_branch %s_lcont" % name)
    a.label("%s_hk2" % name)
    a("s_mov_b32 s52, 0")
    a.label("%s_hk2l" % name)
    a("v_and_b32 v32, v32, v33")
    a("v_and_b32 v34, v34, v35")
    a("v_and_b32 v32, v32, v34")
    a("v_cmp_eq_u32 vcc, 1, v32")
    a("s_nop 1")
    a("v_cndmask_b32 v32, 0, 16, vcc")
    a("v_cmp_gt_u32 vcc, 16, v32")
    a("s_add_u32 s52, s52, 1")
    a("s_cmp_gt_u32 s52, %d" % SPIN_MAX)
    a("s_cbranch_scc1 %s_hk2g" % name)
    a("s_cbranch_vccz %s_hk2g" % name)
    a("s_sleep 16")
    a("s_mov_b32 s38, 0x%x" % (XFLG + 0))
    a("buffer_load_dword v32, v28, s[12:15], s38 offen sc1")
    a("s_mov_b32 s38, 0x%x" % (XFLG + 8192))
    a("buffer_load_dword v33, v28, s[12:15], s38 offen sc1")
    a("s_mov_b32 s38, 0x%x" % (XFLG + 16384))
    a("buffer_load_dword v34, v28, s[12:15], s38 offen sc1")
    a("s_mov_b32 s38, 0x%x" % (XFLG + 24576))
    a("buffer_load_dword v35, v28, s[12:15], s38 offen sc1")
    a("s_waitcnt vmcnt(0)")
    a("s_branch %s_hk2l" % name)
    a.label("%s_hk2g" % name)
    nconv = emit_conv_loads(a, " sc1")
    a("s_waitcnt vmcnt(%d)" % (9 + nconv))
    a("s_branch %s_lcont" % name)
    a.label("%s_ldone" % name)
    a("s_waitcnt vmcnt(0)")
    a("s_barrier")
    a("s_mov_b32 s26, s53")
    a("s_and_b32 s27, s3, 1")
    a("s_mul_i32 s27, s27, %d" % CJ_SIZE)
    a("s_lshr_b32 s36, s3, 1")
    a("s_mul_i32 s36, s36, %d" % SLOT)
    a("s_add_u32 s27, s27, s36")
    a("s_add_u32 s27, s27, %d" % RB)
    def mid():
        a("s_barrier")
        a("s_setprio 0")
    sv = set(DBG); DBG.discard("stamp")
    lb_ = len(a.lines)
    emit_conv_job(a, name, mid)
    for n_ in range(lb_, len(a.lines)):
        if "buffer_store_dwordx2" in a.lines[n_]: a.lines[n_] += " sc1"
    DBG.update(sv)
    stamp(a, 9)
    c_common()
    cTa = [4, 4]; cTb = [6, 6]; cF_ = 8; cFh = 9
    kTa = 88; kTb = 90; kF = 92; kFh = 93
    a("v_and_b32 v3, 15, v2")
    a("v_lshrrev_b32 v10, 5, v2")
    a("v_lshlrev_b32 v10, 11, v10")
    a("v_bfe_u32 v11, v2, 4, 1")
    a("v_lshl_add_u32 v10, v11, 4, v10")
    a("v_lshl_add_u32 v10, v3, 5, v10")
    a("s_lshl_b32 s26, s3, 12")
    a("v_add_u32 v10, s26, v10")
    a("s_lshl_b32 s26, s53, 10")
    a("v_add_u32 v%d, s26, v10" % kTa)
    a("s_xor_b32 s26, s26, 1024")
    a("v_add_u32 v%d, s26, v10" % kTb)
    a("v_lshrrev_b32 v10, 2, v2")
    a("v_mul_u32_u24 v10, %d, v10" % CFS)
    a("v_and_b32 v11, 3, v2")
    a("v_lshl_add_u32 v10, v11, 3, v10")
    a("s_mul_i32 s26, s3, %d" % (32 * CFS))
    a("s_add_u32 s26, s26, %d" % CTREG)
    a("v_add_u32 v%d, s26, v10" % kF)
    a("v_add_u32 v%d, 128, v%d" % (kFh, kF))
    a("v_mov_b32 v26, %d" % LC)
    a("v_mov_b32 v27, 1")
    a("s_waitcnt vmcnt(0)")
    a("s_mov_b64 exec, 1")
    a("ds_add_rtn_u32 v28, v26, v27 offset:20")
    a("s_waitcnt lgkmcnt(0)")
    a("v_readfirstlane_b32 s36, v28")
    a("s_cmp_lg_u32 s36, 3")
    a("s_cbranch_scc1 %s_nocs" % name)
    a("s_lshl_b32 s36, s2, 7")
    a("s_add_u32 s36, s36, 0x%x" % CFLG)
    a("v_mov_b32 v28, 0")
    a("buffer_store_dword v27, v28, s[12:15], s36 offen sc1")
    a.label("%s_nocs" % name)
    a("s_mov_b64 exec, -1")
    fin_loads()
    core3 = G.Core(a, ACC, FB[0], FB[1], CFS, CTREG, cTa, cTb, cF_, cFh, TT=512)
    pairs = ((cTa[0], kTa), (cF_, kF), (cTb[0], kTb), (cFh, kFh))
    a("s_mov_b32 s27, %d" % C0)
    for d, s_ in pairs: a("v_add_u32 v%d, s27, v%d" % (d, s_))
    for r in range(ACC, ACC + 72): a("v_mov_b32 v%d, 0" % r)
    a("s_mov_b32 s33, 0")
    a("s_barrier")
    stamp(a, 10)
    core3.prime(0, core3.reads(0, 0))
    def citer(buf):
        core3.trk.drain()
        a("s_barrier")
        a("s_add_u32 s27, s27, %d" % CSL)
        a("s_cmp_eq_u32 s27, %d" % CW)
        a("s_cselect_b32 s27, %d, s27" % RB)
        pre = ["v_add_u32 v%d, s27, v%d" % (d, s_) for d, s_ in pairs]
        core3.phase(buf, core3.reads(1 - buf, 0), pre=pre)
    a.label("%s_ccloop" % name)
    citer(0); citer(1)
    a("s_add_u32 s33, s33, 1")
    a("s_cmp_lt_u32 s33, 9")
    a("s_cbranch_scc1 %s_ccloop" % name)
    core3.trk.drain()
    stamp(a, 11)
    a("s_mul_i32 s33, s3, %d" % (18 * 1024))
    a("s_add_u32 s33, s33, %d" % C0)
    a("v_lshlrev_b32 v10, 4, v2")
    a("v_add_u32 v11, s33, v10")
    a("s_nop 4")
    for n, (ft, tt) in enumerate(TILES):
        a("ds_write_b128 v11, %s offset:%d" % (vr(core3.accr(ft, tt)), 1024 * tidx(ft, tt)))
        if n in (7, 13): a("s_waitcnt lgkmcnt(4)")
    a("s_waitcnt lgkmcnt(0) vmcnt(0)")
    a.label("%s_cfin" % name)
    a("s_barrier")
    stamp(a, 12)
    a("v_lshlrev_b32 v10, 4, v2")
    a("v_lshrrev_b32 v11, 2, v2")
    a("v_lshlrev_b32 v11, 7, v11")
    a("v_and_b32 v12, 3, v2")
    a("v_lshl_add_u32 v11, v12, 3, v11")
    a("s_mov_b32 s33, 0xbfb8aa3b")
    PT = 16; YR = 64
    for s_ in range(3):
        b = 64 + 4 * s_
        if s_ == 2:
            a("s_cmp_ge_u32 s54, 2")
            a("s_cbranch_scc1 %s_rd" % name)
        a("v_add_u32 v4, s%d, v10" % (b + 2))
        a("v_add_u32 v5, s%d, v11" % (b + 1))
        for q in range(4):
            a("ds_read_b128 %s, v4 offset:%d" % (vr(PT + 16 * s_ + 4 * q), 18432 * q))
        a("ds_read_b64_tr_b16 %s, v5" % vr(YR + 2 * s_, 2))
    a.label("%s_rd" % name)
    T = 104
    for s_ in range(3):
        b = 64 + 4 * s_
        if s_ == 0: a("s_waitcnt lgkmcnt(5)")
        if s_ == 1: a("s_waitcnt lgkmcnt(0)")
        if s_ == 2:
            a("s_cmp_ge_u32 s54, 2")
            a("s_cbranch_scc1 %s_done" % name)
        o = PT + 16 * s_; X = XR + 2 * s_; Y = YR + 2 * s_; S_ = ST + 2 * s_
        for h in (0, 2):
            a("v_pk_add_f32 %s, %s, %s" % (vr(o + h, 2), vr(o + h, 2), vr(o + 4 + h, 2)))
            a("v_pk_add_f32 %s, %s, %s" % (vr(o + 8 + h, 2), vr(o + 8 + h, 2), vr(o + 12 + h, 2)))
        for h in (0, 2):
            a("v_pk_add_f32 %s, %s, %s" % (vr(o + h, 2), vr(o + h, 2), vr(o + 8 + h, 2)))
        rnd_pair(a, T + 20, o, o + 1); rnd_pair(a, T + 21, o + 2, o + 3)
        for r in range(4): a("v_mul_f32 v%d, s33, v%d" % (T + r, o + r))
        for r in range(4): a("v_exp_f32 v%d, v%d" % (T + r, T + r))
        a("v_lshlrev_b32 v%d, 16, v%d" % (T + 4, X)); a("v_and_b32 v%d, 0xffff0000, v%d" % (T + 5, X))
        a("v_lshlrev_b32 v%d, 16, v%d" % (T + 6, X + 1)); a("v_and_b32 v%d, 0xffff0000, v%d" % (T + 7, X + 1))
        for r in range(4): a("v_add_f32 v%d, 1.0, v%d" % (T + r, T + r))
        for r in range(4): a("v_rcp_f32 v%d, v%d" % (T + r, T + r))
        for r in range(4): a("v_sub_f32 v%d, v%d, v%d" % (T + 12 + r, T + 4 + r, S_))
        a("v_lshlrev_b32 v%d, 16, v%d" % (T + 8, Y)); a("v_and_b32 v%d, 0xffff0000, v%d" % (T + 9, Y))
        a("v_lshlrev_b32 v%d, 16, v%d" % (T + 10, Y + 1)); a("v_and_b32 v%d, 0xffff0000, v%d" % (T + 11, Y + 1))
        for r in range(4): a("v_mul_f32 v%d, v%d, v%d" % (o + r, o + r, T + r))
        rnd_pair(a, T + 20, T + 12, T + 13); rnd_pair(a, T + 21, T + 14, T + 15)
        rnd_pair(a, T + 22, o, o + 1); rnd_pair(a, T + 23, o + 2, o + 3)
        for r in range(4): a("v_mul_f32 v%d, v%d, v%d" % (T + 12 + r, T + 12 + r, S_ + 1))
        rnd_pair(a, T + 20, T + 12, T + 13); rnd_pair(a, T + 21, T + 14, T + 15)
        for r in range(4): a("v_mul_f32 v%d, v%d, v%d" % (T + 12 + r, T + 12 + r, T + 8 + r))
        rnd_pair(a, T + 20, T + 12, T + 13); rnd_pair(a, T + 21, T + 14, T + 15)
        for r in range(4): a("v_mul_f32 v%d, v%d, v%d" % (T + 12 + r, T + 12 + r, o + r))
        rnd_pair(a, T + 20, T + 12, T + 13); rnd_pair(a, T + 21, T + 14, T + 15)
        for r in range(4): a("v_add_f32 v%d, v%d, v%d" % (T + 12 + r, T + 12 + r, T + 4 + r))
        a("v_cvt_pk_bf16_f32 v%d, v%d, v%d" % (X, T + 12, T + 13))
        a("v_cvt_pk_bf16_f32 v%d, v%d, v%d" % (X + 1, T + 14, T + 15))
        a("buffer_store_dwordx2 %s, v13, s[28:31], s%d offen" % (vr(X, 2), b))
    a.label("%s_done" % name)
    stamp(a, 13)
    G.stamp_rt(a, 1)
    a.label("%s_end" % name)
    a("s_endpgm")
    for ft in range(5):
        a.label("%s_gsub%d" % (name, ft))
        tts = range(4 if ft < 4 else 2)
        emit_fold_gelu(a, [(128 + 4 * tidx(ft, tt), CS + 4 * ft, MR + 2 * tt, ZP + 2 * tidx(ft, tt)) for tt in tts], 72)
        a("s_setpc_b64 s[34:35]")
    return a.text(), kernel_desc(name, 256, 256), (name, 256, 512, 163840)

def gen_kf16(name="k1_kernel", R=4):
    a = Asm()
    RB = 4096; SLOT = 34816; TREG = 16384; FS = 288; RST = 0
    LDSB = RB + R * SLOT
    LC = 2048
    ZFLG = 0x2D00000; PFL = 128
    KVL = 143360; XFLG = 0x2D20000; CFLG = 0x2D30000
    C0 = 77824; CW = 151552; CSL = 36864; YOFF = 151552; CTREG = 16384; CFS = 160
    from gen3 import emit_conv_loads, emit_conv_job, CJ_SIZE
    def capture(f, *args):
        lb = len(a.lines); f(*args); out = a.lines[lb:]; del a.lines[lb:]; return out

    def c_common():
        a("s_load_dwordx2 s[4:5], s[0:1], 0")
        a("s_load_dwordx2 s[16:17], s[0:1], 88")
        a("s_and_b32 s20, s2, 7")
        a("s_lshr_b32 s21, s2, 3")
        a("s_and_b32 s22, s20, 3")
        a("s_lshl_b32 s22, s22, 3")
        a("s_and_b32 s23, s21, 7")
        a("s_add_u32 s22, s22, s23")
        a("s_lshr_b32 s23, s20, 2")
        a("s_lshl_b32 s23, s23, 2")
        a("s_lshr_b32 s24, s21, 3")
        a("s_add_u32 s23, s23, s24")
        a("s_lshr_b32 s52, s23, 1")
        a("s_and_b32 s53, s23, 1")
        a("s_lshl_b32 s54, s98, 2")
        a("s_add_u32 s54, s54, s3")
        a("s_waitcnt lgkmcnt(0)")
        srd(a, 8, 4, 2048 * 576 * 2)
        srd(a, 28, 16, 2048 * 576 * 2)
    XR = 200; ST = 208
    def fin_loads():
        a("v_and_b32 v3, 15, v2")
        a("v_lshrrev_b32 v10, 4, v2")
        a("v_mul_u32_u24 v13, 1152, v3")
        a("v_lshl_add_u32 v13, v10, 3, v13")
        a("v_lshlrev_b32 v12, 3, v3")
        for s_ in range(3):
            if s_ == 2:
                a("s_cmp_ge_u32 s54, 2")
                a("s_cbranch_scc1 %s_fl%d" % (name, fin_loads.cnt))
            b = 64 + 4 * s_
            if s_ < 2:
                a("s_add_u32 s36, s54, %d" % (8 * s_))
                a("s_lshr_b32 s37, s36, 2")
                a("s_and_b32 s38, s36, 3")
                a("s_mul_i32 s39, s53, 160")
                a("s_lshl_b32 s40, s37, 5")
                a("s_add_u32 s39, s39, s40")
            else:
                a("s_add_u32 s36, s54, 16")
                a("s_mov_b32 s37, 4")
                a("s_mov_b32 s38, s54")
                a("s_mov_b32 s39, 128")
            a("s_lshl_b32 s40, s53, 1")
            a("s_add_u32 s38, s38, s40")
            a("s_and_b32 s38, s38, 3")
            a("s_lshl_b32 s40, s22, 2")
            a("s_add_u32 s40, s40, s38")
            a("s_lshl_b32 s40, s40, 4")
            a("s_mul_i32 s%d, s40, 1152" % b)
            a("s_add_u32 s%d, s%d, s39" % (b, b))
            a("s_mul_i32 s39, s52, 288")
            a("s_add_u32 s%d, s%d, s39" % (b, b))
            a("s_lshl_b32 s%d, s37, 11" % (b + 1))
            a("s_lshl_b32 s39, s38, 5")
            a("s_add_u32 s%d, s%d, s39" % (b + 1, b + 1))
            a("s_add_u32 s%d, s%d, %d" % (b + 1, b + 1, YOFF))
            a("s_lshl_b32 s%d, s36, 10" % (b + 2))
            a("s_add_u32 s%d, s%d, %d" % (b + 2, b + 2, C0))
            a("s_lshl_b32 s40, s40, 3")
            a("s_add_u32 s40, s40, 0x%x" % STATS1)
            a("buffer_load_dwordx2 %s, v13, s[8:11], s%d offen" % (vr(XR + 2 * s_, 2), b))
            a("buffer_load_dwordx2 %s, v12, s[12:15], s40 offen sc1" % vr(ST + 2 * s_, 2))
        a.label("%s_fl%d" % (name, fin_loads.cnt))
        fin_loads.cnt += 1
    fin_loads.cnt = 0
    kernel_begin(a, name)
    a("s_load_dwordx2 s[80:81], s[0:1], 0")
    a("s_load_dwordx2 s[4:5], s[0:1], 56")
    a("s_load_dwordx2 s[6:7], s[0:1], 104")
    a("s_load_dwordx2 s[18:19], s[0:1], 96")
    a("s_cmp_ge_u32 s2, 256")
    a("s_cbranch_scc1 %s_end" % name)
    a("v_lshrrev_b32 v1, 6, v0")
    a("v_and_b32 v2, 63, v0")
    a("v_readfirstlane_b32 s3, v1")
    G2.tile_ij(a)
    a("s_lshr_b32 s98, s3, 2")
    a("s_mov_b32 s54x, 0".replace("s54x", "s99"))
    a("s_and_b32 s3, s3, 3")
    a("s_lshr_b32 s24, s3, 1")
    a("s_and_b32 s25, s3, 1")
    a("v_and_b32 v3, 15, v2")
    VT = 204; VF = 208
    def loader_setup():
        a("v_lshrrev_b32 v5, 3, v2")
        a("v_and_b32 v4, 7, v2")
        a("s_lshl_b32 s36, s3, 5")
        a("v_add_u32 v5, s36, v5")
        a("v_lshrrev_b32 v7, 4, v2")
        a("v_xor_b32 v7, v7, v4")
        a("v_mul_u32_u24 v6, 1152, v5")
        a("v_lshl_add_u32 v%d, v7, 4, v6" % VT)
        a("v_xor_b32 v%d, 64, v%d" % (VT + 1, VT))
        a("v_add_u32 v%d, %d, v%d" % (VT + 1, 9216 - 1024, VT + 1))
        a("v_add_u32 v%d, %d, v%d" % (VT + 2, 2 * (9216 - 1024), VT))
        a("v_add_u32 v%d, %d, v%d" % (VT + 3, 2 * (9216 - 1024), VT + 1))
        a("s_lshl_b32 s84, s3, 12")
        a("s_add_u32 s84, s84, %d" % RB)
        a("s_lshl_b32 s85, s3, 9")
        a("s_add_u32 s85, s85, %d" % (RB + TREG + 16384))
    def loader_setup2():
        for n in range(5):
            if n < 4:
                a("s_lshl_b32 s36, s3, 8")
                a("s_add_u32 s36, s36, %d" % (64 * n))
            else:
                a("s_lshl_b32 s36, s3, 5")
                a("s_add_u32 s36, s36, 1024")
            a("v_add_u32 v6, s36, v2")
            a("v_mul_u32_u24 v7, 3641, v6")
            a("v_lshrrev_b32 v7, 16, v7")
            a("v_mul_u32_u24 v8, 18, v7")
            a("v_sub_u32 v8, v6, v8")
            a("v_and_b32 v9, 35, v7")
            a("v_bfe_u32 v6, v7, 2, 2")
            a("v_lshl_add_u32 v9, v6, 3, v9")
            a("v_bfe_u32 v6, v7, 4, 1")
            a("v_lshl_add_u32 v9, v6, 2, v9")
            a("v_mul_u32_u24 v9, 9216, v9")
            a("v_lshl_add_u32 v%d, v8, 4, v9" % (VF + n))
            if 0 < n < 4: a("v_subrev_u32 v%d, %d, v%d" % (VF + n, 1024 * n, VF + n))
    def issueT(g):
        st = g % 9
        a("s_add_u32 s86, s84, %d" % ((g % R) * SLOT))
        a("s_mov_b32 m0, s86")
        a("s_add_u32 s87, s82, %d" % (128 * st))
        for n in range(4):
            a("buffer_load_dwordx4 v%d, s[28:31], s87 offen offset:%d lds" % (VT + n, 1024 * n))
    def issueF(g):
        st = g % 9
        a("s_add_u32 s86, s84, %d" % ((g % R) * SLOT + TREG))
        a("s_mov_b32 m0, s86")
        a("s_add_u32 s87, s83, %d" % (64 * 9216 * st + (4608 if g < 9 else 0)))
        for n in range(4):
            a("buffer_load_dwordx4 v%d, s[8:11], s87 offen offset:%d lds" % (VF + n, 1024 * n))
        a("s_add_u32 s86, s85, %d" % ((g % R) * SLOT))
        a("s_mov_b32 m0, s86")
        a("s_mov_b64 exec, 0xffffffff")
        a("buffer_load_dwordx4 v%d, s[8:11], s87 offen lds" % (VF + 4))
        a("s_mov_b64 exec, -1")
    def srds_main():
        srd(a, 28, 80, 2048 * 576 * 2)
        srd(a, 8, 4, 576 * 4608 * 2)
        srd(a, 12, 6, WS_BYTES)
        srd(a, 60, 18, 256)
        a("s_mul_i32 s82, s22, %d" % (128 * 1152))
        a("s_mul_i32 s83, s23, 288")
    ACC = 128; FB = [16, 52]; CS = 216; ONE = 236
    vTa = [4, 5]; vTb = [6, 7]; vF = 8; vFh = 9
    bTa = [88, 89]; bTb = [90, 91]; bF = 92; bFh = 93
    def mma_setup():
        a("v_lshrrev_b32 v10, 4, v2")
        a("v_lshrrev_b32 v11, 1, v3")
        a("v_xor_b32 v10, v10, v11")
        a("v_lshlrev_b32 v10, 4, v10")
        a("v_lshl_add_u32 v10, v3, 7, v10")
        a("s_lshl_b32 s26, s24, 13")
        a("s_add_u32 s26, s26, %d" % RB)
        a("v_add_u32 v10, s26, v10")
        a("s_lshl_b32 s26, s25, 12")
        a("v_add_u32 v%d, s26, v10" % bTa[0])
        a("s_xor_b32 s26, s26, 4096")
        a("v_add_u32 v%d, s26, v10" % bTb[0])
        a("v_xor_b32 v%d, 64, v%d" % (bTa[1], bTa[0]))
        a("v_xor_b32 v%d, 64, v%d" % (bTb[1], bTb[0]))
        a("v_lshrrev_b32 v10, 2, v2")
        a("v_mul_u32_u24 v10, %d, v10" % FS)
        a("v_and_b32 v11, 3, v2")
        a("v_lshl_add_u32 v10, v11, 3, v10")
        a("v_add_u32 v10, %d, v10" % (RB + TREG))
        a("s_mul_i32 s26, s25, 160")
        a("v_add_u32 v%d, s26, v10" % bF)
        a("v_add_u32 v%d, 128, v10" % bFh)
        for r in range(ACC, ACC + 72): a("v_mov_b32 v%d, 0" % r)
        for r in range(CS, CS + 20): a("v_mov_b32 v%d, 0" % r)
        for r in range(ONE, ONE + 4): a("v_mov_b32 v%d, 0x3f803f80" % r)
    def mma_addr(slot):
        a("s_mov_b32 s27, %d" % (slot * SLOT))
        for d, s_ in ((vTa[0], bTa[0]), (vTb[0], bTb[0]), (vTa[1], bTa[1]), (vTb[1], bTb[1]), (vF, bF), (vFh, bFh)):
            a("v_add_u32 v%d, s27, v%d" % (d, s_))
    core = G.Core(a, ACC, FB[0], FB[1], FS, TREG, vTa, vTb, vF, vFh)
    trk = core.trk
    a("s_cmp_eq_u32 s98, 0")
    a("s_cbranch_scc1 %s_A0" % name)
    a("s_setprio 3")
    loader_setup()
    a("s_waitcnt lgkmcnt(0)")
    srds_main()
    vm = VmTracker(a)
    def issue(g, vmx):
        issueT(g); issueF(g); vmx.issue("S%d" % g, 9)
    issueT(0)
    loader_setup2()
    issueF(0); vm.issue("S0", 9)
    issue(1, vm); issue(2, vm); issue(3, vm)
    a("s_add_u32 s3, s3, 4"); stamp_setup(a, 1); stamp(a, 0); a("s_sub_u32 s3, s3, 4")
    a("s_load_dwordx4 s[64:67], s[0:1], 8")
    a("s_load_dwordx2 s[76:77], s[0:1], 24")
    mma_setup()
    a("s_waitcnt lgkmcnt(0)")
    srd(a, 68, 66, 2048 * 576 * 2)
    a("s_mov_b32 s88, s64"); a("s_mov_b32 s89, s65")
    srd(a, 64, 88, 2048 * 576 * 2)
    srd(a, 72, 76, 576 * 8)
    def kv_dma():
        a("s_lshr_b32 s36, s2, 3")
        a("s_mul_i32 s36, s36, %d" % (64 * 1152))
        a("s_and_b32 s37, s2, 7")
        a("s_mul_i32 s37, s37, 144")
        a("s_add_u32 s36, s36, s37")
        for q in range(5):
            a("s_add_u32 s38, s3, %d" % (4 * q))
            if q == 4: a("s_min_u32 s38, s38, 18")
            isK = (q < 2); isV = (q > 2)
            a("s_sub_u32 s39, s38, 10")
            a("s_cmp_lt_u32 s38, 10")
            a("s_cselect_b32 s39, s38, s39")
            a("s_cselect_b32 s40, %d, 0" % ((-3 * 1152) & 0xffffffff))
            a("s_lshl_b32 s37, s39, 6")
            a("v_add_u32 v240, s37, v2")
            a("v_mul_u32_u24 v241, 7282, v240")
            a("v_lshrrev_b32 v241, 16, v241")
            a("v_mul_u32_u24 v242, 9, v241")
            a("v_sub_u32 v242, v240, v242")
            a("v_mul_u32_u24 v241, 1152, v241")
            a("v_lshl_add_u32 v241, v242, 4, v241")
            a("s_add_u32 s40, s40, s36")
            a("v_add_u32 v241, s40, v241")
            a("s_lshl_b32 s37, s38, 10")
            a("s_add_u32 s37, s37, %d" % KVL)
            a("s_mov_b32 m0, s37")
            if isK:
                a("s_nop 0")
                a("buffer_load_dwordx4 v241, s[64:67], 0 offen lds")
            elif isV:
                a("s_nop 0")
                a("buffer_load_dwordx4 v241, s[68:71], 0 offen lds")
            else:
                a("s_cmp_lt_u32 s38, 10")
                a("s_cbranch_scc1 %s_kd1" % name)
                a("buffer_load_dwordx4 v241, s[68:71], 0 offen lds")
                a("s_branch %s_kd2" % name)
                a.label("%s_kd1" % name)
                a("buffer_load_dwordx4 v241, s[64:67], 0 offen lds")
                a.label("%s_kd2" % name)
    RA = 96; XB = 112
    for r in range(RA, RA + 16): a("v_mov_b32 v%d, 0" % r)
    a("v_lshrrev_b32 v10, 4, v2")
    a("v_lshrrev_b32 v11, 1, v3")
    a("v_xor_b32 v10, v10, v11")
    a("v_lshlrev_b32 v10, 4, v10")
    a("v_lshl_add_u32 v10, v3, 7, v10")
    a("v_add_u32 v12, s84, v10")
    a("v_xor_b32 v13, 64, v12")
    def rs_rd(g):
        a("v_add_u32 v10, %d, v12" % ((g % R) * SLOT))
        a("v_add_u32 v11, %d, v13" % ((g % R) * SLOT))
        for h in range(2):
            for n in range(2):
                a("ds_read_b128 %s, v%d offset:%d" % (vr(XB + 8 * h + 4 * n), 10 + h, 2048 * n))
    def rs_do():
        for h in range(2):
            for n in range(2):
                x = XB + 8 * h + 4 * n
                a("v_mfma_f32_16x16x32_bf16 %s, %s, %s, %s" % (vr(RA + 4 * n), vr(ONE), vr(x), vr(RA + 4 * n)))
                a("v_mfma_f32_16x16x32_bf16 %s, %s, %s, %s" % (vr(RA + 8 + 4 * n), vr(x), vr(x), vr(RA + 8 + 4 * n)))
    def interleave(dma, comp, vmx=None):
        groups = []; cur = []
        for l in dma:
            cur.append(l)
            if "buffer_load" in l and not any("exec, 0xffffffff" in x for x in cur[-2:]):
                groups.append(cur); cur = []
            elif "exec, -1" in l:
                groups.append(cur); cur = []
        if cur: groups.append(cur)
        ns = max(1, len(groups))
        per = (len(comp) + ns - 1) // ns
        for g in groups:
            a.lines.extend(g)
            a.lines.extend(comp[:per]); comp = comp[per:]
        a.lines.extend(comp)
    vm.wait(["S0"])
    a("s_barrier")
    stamp(a, 1)
    rs_rd(0)
    vm.wait(["S1"])
    a("s_barrier")
    for k in range(9):
        a("s_waitcnt lgkmcnt(0)")
        dma = capture(lambda: (issueT(k + 3), issueF(k + 3))) if k >= 1 else []
        interleave(dma, capture(rs_do))
        if k >= 1: vm.issue("S%d" % (k + 3), 9)
        if k == 3:
            kv_dma(); vm.issue("KV", 5)
        if k < 8:
            rs_rd(k + 1)
        else:
            a("s_nop 7")
            a("v_lshrrev_b32 v10, 4, v2")
            a("v_lshrrev_b32 v11, 2, v3")
            a("v_and_b32 v12, 3, v3")
            for n in range(2):
                G_ = RA + 8 + 4 * n
                for r in range(1, 4):
                    a("v_cmp_eq_u32 vcc, %d, v12" % r)
                    a("s_nop 1")
                    a("v_cndmask_b32 v%d, v%d, v%d, vcc" % (G_, G_, G_ + r))
            ML = 112
            for n in range(2):
                emit_ln_finish(a, RA + 4 * n, RA + 8 + 4 * n, 576, ML + 2 * n, ML + 2 * n + 1, 120)
                a("v_mov_b32 v%d, v%d" % (117 + 2 * n, ML + 2 * n + 1))
                a("v_sub_f32 v%d, 0, v%d" % (116 + 2 * n, ML + 2 * n))
            a("s_lshl_b32 s35, s3, 8")
            a("v_lshlrev_b32 v13, 3, v3")
            a("v_add_u32 v12, s35, v13")
            a("v_cmp_eq_u32 vcc, v10, v11")
            a("s_and_saveexec_b64 s[36:37], vcc")
            for n in range(2):
                a("ds_write_b64 v12, %s offset:%d" % (vr(116 + 2 * n, 2), RST + 128 * n))
            a("s_mov_b64 exec, s[36:37]")
            a("s_cmp_lg_u32 s23, 0")
            a("s_cbranch_scc1 %s_nost1" % name)
            a("s_lshl_b32 s35, s22, 7")
            a("s_lshl_b32 s36, s3, 5")
            a("s_add_u32 s35, s35, s36")
            a("s_lshl_b32 s35, s35, 3")
            a("s_add_u32 s35, s35, 0x%x" % STATS1)
            a("v_mov_b32 v11, 0x7ffffff0")
            a("v_cndmask_b32 v13, v11, v13, vcc")
            for n in range(2):
                a("buffer_store_dwordx2 %s, v13, s[12:15], s35 offen offset:%d sc1" % (vr(ML + 2 * n, 2), 128 * n))
            a.label("%s_nost1" % name)
            a("v_and_b32 v0, 255, v0")
            a("v_lshrrev_b32 v1, 3, v0")
            a("v_and_b32 v10, 7, v0")
            a("s_lshr_b32 s38, s2, 3")
            a("s_lshl_b32 s38, s38, 6")
            a("v_lshl_add_u32 v252, v10, 3, s38")
            a("s_and_b32 s39, s2, 7")
            a("s_mul_i32 s39, s39, 144")
            a("v_lshl_add_u32 v253, v1, 2, s39")
            a("v_lshlrev_b32 v11, 2, v253")
            a("buffer_load_dwordx4 v[248:251], v11, s[72:75], 0 offen")
            a("buffer_load_dwordx4 v[244:247], v11, s[72:75], 0 offen offset:512")
            a("v_mul_u32_u24 v254, 1152, v10")
            a("v_lshl_add_u32 v254, v1, 2, v254")
            a("v_add_u32 v254, %d, v254" % KVL)
            a("s_mov_b32 s41, 0")
            mma_addr(9 % R)
            a("s_mov_b32 s33, 0")
            a("s_setprio 0")
        vm.wait(["S%d" % (k + 2)], "lgkmcnt(0)" if k == 8 else "")
        if k < 8: a("s_barrier")
    a("s_branch %s_mma" % name)
    a.label("%s_A0" % name)
    emit_code_prefetch(a, name)
    a("s_load_dwordx4 s[64:67], s[0:1], 8")
    a("s_load_dwordx2 s[76:77], s[0:1], 24")
    a("s_load_dwordx2 s[78:79], s[0:1], 64")
    mma_setup()
    loader_setup(); loader_setup2()
    a("s_waitcnt lgkmcnt(0)")
    srds_main()
    srd(a, 68, 66, 2048 * 576 * 2)
    a("s_mov_b32 s88, s64"); a("s_mov_b32 s89, s65")
    srd(a, 64, 88, 2048 * 576 * 2)
    srd(a, 72, 76, 576 * 8)
    stamp_setup(a, 1); stamp(a, 0)
    def gran_addr():
        a("v_lshrrev_b32 v10, 4, v2")
        a("s_lshl_b32 s36, s25, 1")
        a("v_add_u32 v11, s36, v10")
        a("v_and_b32 v11, 3, v11")
        a("v_lshl_add_u32 v11, v11, 4, v3")
        a("v_lshlrev_b32 v94, 3, v11")
        a("s_lshl_b32 s59, s22, 15")
        a("s_lshl_b32 s36, s24, 9")
        a("s_add_u32 s59, s59, s36")
        a("s_add_u32 s59, s59, 0x%x" % STATS2)
        a("s_lshl_b32 s36, s23, 1")
        a("s_add_u32 s36, s36, s25")
        a("s_lshl_b32 s36, s36, 10")
        a("s_add_u32 s58, s36, s59")
    gran_addr()
    a("v_mov_b32 v12, 0"); a("v_mov_b32 v13, 0x80000000")
    a("buffer_store_dwordx2 v[12:13], v94, s[12:15], s58 offen sc1")
    a("s_lshl_b32 s36, s22, 4")
    a("s_add_u32 s36, s36, s23")
    a("s_lshl_b32 s36, s36, 8")
    a("s_add_u32 s97, s36, 0x%x" % ZFLG)
    a("v_mov_b32 v10, %d" % LC)
    a("v_mov_b32 v12, 0"); a("v_mov_b32 v13, 0")
    a("s_mov_b64 exec, 1")
    a("buffer_store_dword v12, v12, s[12:15], s97 offen sc1")
    a("buffer_store_dword v12, v12, s[12:15], s97 offen offset:%d sc1" % PFL)
    a("s_lshl_b32 s36, s2, 7")
    a("s_add_u32 s37, s36, 0x%x" % XFLG)
    a("s_add_u32 s36, s36, 0x%x" % CFLG)
    a("buffer_store_dword v12, v12, s[12:15], s37 offen sc1")
    a("buffer_store_dword v12, v12, s[12:15], s36 offen sc1")
    a("s_mov_b64 exec, -1")
    a("ds_write_b64 v10, v[12:13]")
    a("ds_write_b64 v10, v[12:13] offset:8")
    a("ds_write_b64 v10, v[12:13] offset:16")
    a("ds_write_b64 v10, v[12:13] offset:24")
    mma_addr(0)
    a("s_mov_b32 s33, 0")
    a("s_waitcnt lgkmcnt(0)")
    a("s_barrier")
    stamp(a, 1)
    a.label("%s_mma" % name)
    core.prime(0, core.reads(0, 0))
    trk.drain()
    nocs = [False]
    def mfmas(buf):
        L = []
        for ft in range(5):
            A = core.F(buf, ft)
            for tt in range(4 if ft < 4 else 2):
                c = core.accr(ft, tt); B = core.T(buf, tt)
                L.append(("v_mfma_f32_16x16x32_bf16 %s, %s, %s, %s" % (vr(c), vr(A), vr(B), vr(c)), list(range(A, A + 4)) + list(range(B, B + 4))))
            if not nocs[0]: L.append(("v_mfma_f32_16x16x32_bf16 %s, %s, %s, %s" % (vr(CS + 4 * ft), vr(A), vr(ONE), vr(CS + 4 * ft)), list(range(A, A + 4))))
        return L
    def phase(buf, pend):
        for (m, regs) in mfmas(buf):
            trk.need(regs)
            a(m)
            while pend:
                k, t = pend.pop(0)
                if k == "x":
                    a(t)
                    if t.startswith("s_"): continue
                else:
                    a(t[0]); trk.issue(t[1])
                break
        for k, t in pend:
            if k == "x": a(t)
            else: a(t[0]); trk.issue(t[1])
    def iteration(vw=True):
        if vw: a("s_waitcnt vmcnt(0)")
        a("s_barrier")
        rd = [("r", t) for t in core.reads(1, 1)]
        upd = ["s_add_u32 s27, s27, %d" % SLOT, "s_cmp_eq_u32 s27, %d" % (R * SLOT), "s_cselect_b32 s27, 0, s27"]
        tail = ["v_add_u32 v%d, s27, v%d" % (d, s_) for d, s_ in ((vTa[0], bTa[0]), (vF, bF), (vTb[0], bTb[0]), (vFh, bFh))]
        phase(0, rd[:1] + [("x", u) for u in upd] + rd[1:] + [("x", u) for u in tail])
        rd = [("r", t) for t in core.reads(0, 0)]
        tail = ["v_add_u32 v%d, s27, v%d" % (d, s_) for d, s_ in ((vTa[1], bTa[1]), (vTb[1], bTb[1]))] + ["s_add_u32 s33, s33, 1"]
        phase(1, rd + [("x", u) for u in tail])
    a.label("%s_cloop" % name)
    lb = len(a.lines); iteration(); st = copy.deepcopy(trk.out); del a.lines[lb:]; trk.out = copy.deepcopy(st)
    iteration()
    assert [sorted(x) for x in trk.out] == [sorted(x) for x in st]
    a("s_cmp_lt_u32 s33, 9")
    a("s_cbranch_scc1 %s_cloop" % name)
    trk.drain()
    stamp(a, 2)
    MR = 100; T = 72; ZP = 16
    def epi_in():
        gelu_consts(a)
        a("s_lshl_b32 s36, s24, 9")
        a("s_lshl_b32 s37, s25, 8")
        a("s_add_u32 s38, s36, s37")
        a("s_xor_b32 s37, s37, 256")
        a("s_add_u32 s39, s36, s37")
        a("v_lshlrev_b32 v10, 3, v3")
        a("v_add_u32 v11, s38, v10")
        a("ds_read_b64 %s, v11 offset:%d" % (vr(MR, 2), RST))
        a("ds_read_b64 %s, v11 offset:%d" % (vr(MR + 2, 2), RST + 128))
        a("v_add_u32 v11, s39, v10")
        a("ds_read_b64 %s, v11 offset:%d" % (vr(MR + 4, 2), RST))
        a("ds_read_b64 %s, v11 offset:%d" % (vr(MR + 6, 2), RST + 128))
        a("s_waitcnt lgkmcnt(0)")
    S = [108, 110, 52, 54]; Q = [109, 111, 53, 55]
    def gelu_ft(ft, stats):
        tts = range(4 if ft < 4 else 2)
        a("s_call_b64 s[34:35], %s_gsub%d" % (name, ft))
        if stats:
            for d in range(2):
                for tt in tts:
                    p = ZP + 2 * tidx(ft, tt) + d
                    a("v_dot2_f32_bf16 v%d, v%d, v%d, v%d" % (S[tt], p, ONE, S[tt]))
                    a("v_dot2_f32_bf16 v%d, v%d, v%d, v%d" % (Q[tt], p, p, Q[tt]))
    a("s_cmp_eq_u32 s98, 0")
    a("s_cbranch_scc1 %s_A1" % name)
    a("s_barrier")
    a("s_load_dwordx2 s[94:95], s[0:1], 80")
    a("s_load_dwordx2 s[92:93], s[0:1], 72")
    epi_in()
    srd(a, 76, 94, 2304 * 576 * 2)
    srd(a, 28, 92, 2048 * 2)
    for ft in range(5): gelu_ft(ft, False)
    Z1R = 200; BI = 236
    for r_ in range(36): a("v_mov_b32 v%d, v%d" % (Z1R + r_, ZP + r_))
    stamp(a, 3)
    a("s_waitcnt vmcnt(0)")
    for r_ in range(6): a("v_mov_b32 v%d, v%d" % (128 + r_, 88 + r_))
    a.label("%s_kvb" % name)
    for n in range(11): a("ds_read_b32 v%d, v254 offset:%d" % (16 + n, 144 * n))
    a("s_waitcnt lgkmcnt(4)")
    for n in range(8): a("ds_read_b32 v%d, v254 offset:%d" % (32 + n, 10240 + 144 * n))
    for n in range(4): a("v_mov_b32 v%d, v%d" % (44 + n, 248 + n))
    a("v_mov_b32 v56, v252"); a("v_mov_b32 v57, v253")
    a("s_waitcnt lgkmcnt(0)")
    emit_kv_compute(a, wait=False, store=False)
    a("s_mov_b32 s39, 0x%x" % KVT)
    a("buffer_store_dwordx4 v[120:123], v12, s[12:15], s39 offen sc1")
    a("buffer_store_dwordx4 v[124:127], v13, s[12:15], s39 offen sc1")
    a("s_cmp_lg_u32 s41, 0")
    a("s_cbranch_scc1 %s_kvbx" % name)
    a("s_cmp_lg_u32 s3, 0")
    a("s_cbranch_scc1 %s_kvbx" % name)
    a("s_mov_b32 s41, 1")
    for n in range(4): a("v_mov_b32 v%d, v%d" % (248 + n, 244 + n))
    a("v_add_u32 v253, 128, v253")
    a("v_add_u32 v254, 128, v254")
    a("s_mov_b64 exec, 0xffffffff")
    a("s_branch %s_kvb" % name)
    a.label("%s_kvbx" % name)
    a("s_mov_b64 exec, -1")
    for r_ in range(6): a("v_mov_b32 v%d, v%d" % (240 + r_, 128 + r_))
    a.label("%s_kvbd" % name)
    for r_ in range(6): a("v_mov_b32 v%d, v%d" % (88 + r_, 240 + r_))
    a("s_mov_b32 s42, s2")
    emit_wot_loads(a, 100, 112, 720, 3)
    a("s_lshl_b32 s36, s22, 7")
    a("s_lshl_b32 s37, s24, 6")
    a("s_add_u32 s36, s36, s37")
    a("v_lshlrev_b32 v11, 1, v3")
    a("s_lshl_b32 s37, s25, 6")
    a("s_lshl_b32 s38, s36, 1")
    a("s_add_u32 s39, s38, s37")
    a("s_xor_b32 s37, s37, 64")
    a("s_add_u32 s36, s38, s37")
    a("buffer_load_ushort v96, v11, s[28:31], s39 offen")
    a("buffer_load_ushort v97, v11, s[28:31], s39 offen offset:32")
    a("buffer_load_ushort v98, v11, s[28:31], s36 offen")
    a("buffer_load_ushort v99, v11, s[28:31], s36 offen offset:32")
    for r in range(ACC, ACC + 72): a("v_mov_b32 v%d, 0" % r)
    a("v_lshrrev_b32 v10, 2, v2")
    a("v_lshlrev_b32 v10, 5, v10")
    a("v_and_b32 v11, 3, v2")
    a("v_lshl_add_u32 v10, v11, 3, v10")
    a("v_add_u32 v10, %d, v10" % (RB + TREG))
    a("s_mul_i32 s26, s25, 10240")
    a("v_add_u32 v%d, s26, v10" % bF)
    a("v_add_u32 v%d, 8192, v10" % bFh)
    core.FS = 32; core.FT = 2048
    mma_addr(0)
    a("s_mov_b32 s33, 0")
    stamp(a, 4)
    a("s_barrier")
    stamp(a, 5)
    core.prime(0, core.reads(0, 0))
    trk.drain()
    nocs[0] = True
    a.label("%s_gloop" % name)
    lb = len(a.lines); iteration(False); st = copy.deepcopy(trk.out); del a.lines[lb:]; trk.out = copy.deepcopy(st)
    iteration(False)
    assert [sorted(x) for x in trk.out] == [sorted(x) for x in st]
    a("s_cmp_lg_u32 s33, 3")
    a("s_cbranch_scc1 %s_ghk0" % name)
    a("s_waitcnt vmcnt(0)")
    for n in range(3):
        a("buffer_store_dwordx4 %s, v%d, s[12:15], s40 offen sc1" % (vr(100 + 4 * n), 112 + n))
    for tt in range(4): a("v_lshlrev_b32 v%d, 16, v%d" % (BI + 2 * tt, 96 + tt))
    a.label("%s_ghk0" % name)
    a("s_cmp_lg_u32 s33, 6")
    a("s_cbranch_scc1 %s_ghk" % name)
    a("s_waitcnt vmcnt(0)")
    a("v_mov_b32 v10, %d" % (LC + 8))
    a("v_mov_b32 v11, 1")
    a("s_mov_b64 exec, 1")
    a("ds_add_rtn_u32 v12, v10, v11")
    a("s_waitcnt lgkmcnt(0)")
    a("v_readfirstlane_b32 s36, v12")
    a("s_cmp_lg_u32 s36, 3")
    a("s_cbranch_scc1 %s_nokvs" % name)
    a("s_lshl_b32 s36, s2, 7")
    a("s_add_u32 s36, s36, 0x%x" % XFLG)
    a("v_mov_b32 v10, 0")
    a("buffer_store_dword v11, v10, s[12:15], s36 offen sc1")
    a.label("%s_nokvs" % name)
    a("s_mov_b64 exec, -1")
    a.label("%s_ghk" % name)
    a("s_cmp_lt_u32 s33, 32")
    a("s_cbranch_scc1 %s_gloop" % name)
    trk.drain()
    stamp(a, 6)
    G3.emit_k2_epilogue2(a, core, Z1R, BI, " sc1")
    stamp(a, 7)
    a("s_setprio 3")
    a("s_lshl_b32 s36, s22, 4")
    a("s_add_u32 s36, s36, s23")
    a("s_lshl_b32 s36, s36, 8")
    a("s_add_u32 s97, s36, 0x%x" % (ZFLG + PFL))
    c_common()
    a("v_lshlrev_b32 v14, 4, v2")
    a("s_mul_i32 s26, s22, %d" % (36 * 8192))
    a("s_lshl_b32 s24, s3, 12")
    a("s_add_u32 s26, s26, s24")
    a("s_add_u32 s26, s26, 0x%x" % PIMG)
    a("s_mul_i32 s27, s23, %d" % (18 * 20480))
    a("s_mul_i32 s25, s3, 5120")
    a("s_add_u32 s27, s27, s25")
    a("s_add_u32 s27, s27, 0x%x" % WOT)
    a("s_add_u32 s25, s25, %d" % CTREG)
    a("v_and_b32 v28, 15, v2")
    a("v_lshlrev_b32 v30, 7, v2")
    a("v_mov_b32 v26, %d" % LC)
    a("v_mov_b32 v27, 1")
    a("s_waitcnt vmcnt(0)")
    a("s_mov_b64 exec, 1")
    a("ds_add_rtn_u32 v29, v26, v27 offset:16")
    a("s_waitcnt lgkmcnt(0)")
    a("v_readfirstlane_b32 s36, v29")
    a("s_cmp_lg_u32 s36, 3")
    a("s_cbranch_scc1 %s_nops" % name)
    a("v_mov_b32 v29, 0")
    a("buffer_store_dword v27, v29, s[12:15], s97 offen sc1")
    a.label("%s_nops" % name)
    a("s_mov_b64 exec, -1")
    a("s_mov_b32 s34, 0")
    a.label("%s_cw" % name)
    a("ds_read_b32 v29, v26 offset:16")
    a("s_add_u32 s34, s34, 1")
    a("s_waitcnt lgkmcnt(0)")
    a("v_readfirstlane_b32 s36, v29")
    a("s_cmp_gt_u32 s34, %d" % (SPIN_MAX * 20))
    a("s_cbranch_scc1 %s_cwx" % name)
    a("s_cmp_ge_u32 s36, 4")
    a("s_cbranch_scc1 %s_cwx" % name)
    a("s_sleep 1")
    a("s_branch %s_cw" % name)
    a.label("%s_cwx" % name)
    def cF(off, soff):
        a("s_add_u32 s36, s25, %s" % off)
        a("s_mov_b32 m0, s36")
        a("s_add_u32 s37, %s, 4096" % soff)
        for n in range(4):
            a("buffer_load_dwordx4 v14, s[12:15], %s offen offset:%d sc1 lds" % (soff, n * 1024))
        a("s_add_u32 s36, s36, 4096")
        a("s_mov_b32 m0, s36")
        a("s_nop 0")
        a("buffer_load_dwordx4 v14, s[12:15], s37 offen sc1 lds")
    def cT(off, soff):
        a("s_add_u32 s35, s24, %s" % off)
        a("s_mov_b32 m0, s35")
        a("s_nop 0")
        for n in range(4):
            a("buffer_load_dwordx4 v14, s[12:15], %s offen offset:%d sc1 lds" % (soff, n * 1024))
    a("s_add_u32 s38, s27, 20480")
    cF(str(C0), "s27"); cF(str(C0 + CSL), "s38")
    a("s_mov_b32 s34, 0")
    a("s_cmp_lg_u32 s3, 0")
    a("s_cbranch_scc1 %s_cpl" % name)
    a("v_lshlrev_b32 v28, 8, v28")
    a("s_lshr_b32 s39, s22, 1")
    a("s_lshl_b32 s39, s39, 12")
    a("s_add_u32 s39, s39, 0x%x" % (ZFLG + PFL))
    a.label("%s_cpz" % name)
    a("buffer_load_dword v29, v28, s[12:15], s39 offen sc1")
    a("s_add_u32 s34, s34, 1")
    a("s_waitcnt vmcnt(0)")
    a("v_cmp_ne_u32 vcc, 1, v29")
    a("s_cmp_gt_u32 s34, %d" % SPIN_MAX)
    a("s_cbranch_scc1 %s_cpzx" % name)
    a("s_cbranch_vccz %s_cpzx" % name)
    a("s_sleep 8")
    a("s_branch %s_cpz" % name)
    a.label("%s_cpzx" % name)
    a("ds_write_b32 v26, v27 offset:24")
    a("s_branch %s_cgo" % name)
    a.label("%s_cpl" % name)
    a("ds_read_b32 v29, v26 offset:24")
    a("s_add_u32 s34, s34, 1")
    a("s_waitcnt lgkmcnt(0)")
    a("v_readfirstlane_b32 s36, v29")
    a("s_cmp_gt_u32 s34, %d" % (SPIN_MAX * 20))
    a("s_cbranch_scc1 %s_cgo" % name)
    a("s_cmp_lg_u32 s36, 0")
    a("s_cbranch_scc1 %s_cgo" % name)
    a("s_sleep 2")
    a("s_branch %s_cpl" % name)
    a.label("%s_cgo" % name)
    stamp(a, 8)
    a("s_add_u32 s38, s26, 16384")
    cT(str(C0), "s26"); cT(str(C0 + CSL), "s38")
    a("s_add_u32 s26, s26, 32768")
    a("s_add_u32 s27, s27, 40960")
    a("s_mov_b32 s33, %d" % RB)
    def cissue():
        cT("s33", "s26"); cF("s33", "s27")
        a("s_add_u32 s26, s26, 16384")
        a("s_add_u32 s27, s27, 20480")
        a("s_add_u32 s33, s33, %d" % CSL)
        a("s_cmp_eq_u32 s33, %d" % CW)
        a("s_cselect_b32 s33, %d, s33" % RB)
    a("s_waitcnt vmcnt(4)")
    a("s_barrier")
    cissue(); cissue()
    a("s_waitcnt vmcnt(18)")
    a("s_barrier")
    a("s_mov_b32 s34, 0")
    a.label("%s_clloop" % name)
    cissue()
    a("s_lshl_b32 s38, s3, 8")
    a("s_add_u32 s38, s38, s34")
    a("s_cmp_eq_u32 s38, 13")
    a("s_cbranch_scc1 %s_cyc" % name)
    a("s_cmp_lg_u32 s38, 10")
    a("s_cbranch_scc1 %s_cl1" % name)
    a("s_mov_b32 s38, 0x%x" % (CFLG + 0))
    a("buffer_load_dword v32, v30, s[12:15], s38 offen sc1")
    a("s_mov_b32 s38, 0x%x" % (CFLG + 8192))
    a("buffer_load_dword v33, v30, s[12:15], s38 offen sc1")
    a("s_mov_b32 s38, 0x%x" % (CFLG + 16384))
    a("buffer_load_dword v34, v30, s[12:15], s38 offen sc1")
    a("s_mov_b32 s38, 0x%x" % (CFLG + 24576))
    a("buffer_load_dword v35, v30, s[12:15], s38 offen sc1")
    a("s_waitcnt vmcnt(22)")
    a("s_branch %s_cl2" % name)
    a.label("%s_cl1" % name)
    a("s_waitcnt vmcnt(18)")
    a.label("%s_cl2" % name)
    a("s_barrier")
    a("s_add_u32 s34, s34, 1")
    a("s_cmp_lt_u32 s34, 14")
    a("s_cbranch_scc1 %s_clloop" % name)
    a("s_branch %s_cyx" % name)
    a.label("%s_cyc" % name)
    a("s_mov_b32 s39, 0")
    a.label("%s_cy" % name)
    a("v_and_b32 v32, v32, v33")
    a("v_and_b32 v34, v34, v35")
    a("v_and_b32 v32, v32, v34")
    a("v_cmp_eq_u32 vcc, 1, v32")
    a("s_nop 1")
    a("v_cndmask_b32 v32, 0, 16, vcc")
    a("v_cmp_gt_u32 vcc, 16, v32")
    a("s_add_u32 s39, s39, 1")
    a("s_cmp_gt_u32 s39, %d" % SPIN_MAX)
    a("s_cbranch_scc1 %s_cl1" % name)
    a("s_cbranch_vccz %s_cl1" % name)
    a("s_sleep 32")
    a("s_mov_b32 s38, 0x%x" % (CFLG + 0))
    a("buffer_load_dword v32, v30, s[12:15], s38 offen sc1")
    a("s_mov_b32 s38, 0x%x" % (CFLG + 8192))
    a("buffer_load_dword v33, v30, s[12:15], s38 offen sc1")
    a("s_mov_b32 s38, 0x%x" % (CFLG + 16384))
    a("buffer_load_dword v34, v30, s[12:15], s38 offen sc1")
    a("s_mov_b32 s38, 0x%x" % (CFLG + 24576))
    a("buffer_load_dword v35, v30, s[12:15], s38 offen sc1")
    a("s_waitcnt vmcnt(0)")
    a("s_branch %s_cy" % name)
    a.label("%s_cyx" % name)
    a("v_lshrrev_b32 v3, 3, v2")
    a("v_and_b32 v4, 7, v2")
    a("v_lshlrev_b32 v4, 4, v4")
    a("s_mul_i32 s33, s52, 144")
    a("s_mul_i32 s34, s53, 80")
    a("s_lshl_b32 s35, s22, 7")
    a("s_add_u32 s35, s35, 0x%x" % YT)
    for n in range(3):
        a("s_add_u32 s36, s3, %d" % (4 * n))
        if n == 2: a("s_min_u32 s36, s36, 9")
        a("s_lshl_b32 s37, s36, 3")
        a("s_add_u32 s38, s37, s33")
        if n < 2: a("s_add_u32 s38, s38, s34")
        a("v_add_u32 v5, s38, v3")
        a("v_lshl_add_u32 v5, v5, 12, v4")
        a("s_lshl_b32 s36, s36, 10")
        a("s_add_u32 s36, s36, %d" % YOFF)
        a("s_mov_b32 m0, s36")
        a("s_nop 0")
        a("buffer_load_dwordx4 v5, s[12:15], s35 offen sc1 lds")
    fin_loads()
    a("s_waitcnt vmcnt(%d)" % (9 + 7))
    a("s_barrier")
    a("s_waitcnt vmcnt(7)")
    a("s_barrier")
    a("s_barrier")
    a("s_setprio 0")
    a("s_waitcnt vmcnt(0)")
    a("s_branch %s_cfin" % name)
    a.label("%s_A1" % name)
    a("s_setprio 2")
    vmA = VmTracker(a)
    PB = 132
    def aux_head():
        epi_in()
        for tt in range(4):
            a("v_mov_b32 v%d, 0" % S[tt]); a("v_mov_b32 v%d, 0" % Q[tt])
    def aux_pub():
        a("s_nop 2")
        emit_xg_reduce(a, S + Q, 72)
        a("v_lshrrev_b32 v10, 4, v2")
        for g in range(1, 4):
            a("v_cmp_eq_u32 vcc, %d, v10" % g)
            a("s_nop 1")
            a("v_cndmask_b32 v%d, v%d, v%d, vcc" % (S[0], S[0], S[g]))
            a("v_cndmask_b32 v%d, v%d, v%d, vcc" % (Q[0], Q[0], Q[g]))
        a("v_and_b32 v%d, 0x7fffffff, v%d" % (Q[0], Q[0]))
        a("buffer_store_dwordx2 v[%d:%d], v94, s[12:15], s58 offen sc1" % (S[0], Q[0]))
    chunks = [capture(aux_head) + capture(gelu_ft, 0, True), capture(gelu_ft, 1, True), capture(gelu_ft, 2, True),
              capture(gelu_ft, 3, True), capture(gelu_ft, 4, True) + capture(aux_pub)]
    KD = 172
    for k in range(9, 18):
        a("s_barrier")
        if k == 9:
            a("s_cmp_lg_u32 s3, 0")
            a("s_cbranch_scc1 %s_nosig" % name)
            a("v_mov_b32 v10, 1")
            a("s_lshl_b32 s36, s22, 2")
            a("v_mov_b32 v11, s36")
            a("s_mov_b64 exec, 1")
            a("buffer_atomic_add v10, v11, s[60:63], 0 offen sc1")
            a("s_mov_b64 exec, -1")
            a.label("%s_nosig" % name)
        g = k + 3
        dma = capture(lambda: (issueT(g), issueF(g))) if g < 18 else []
        comp = chunks[k - 9] if k - 9 < len(chunks) else []
        a.lines.extend(dma); a.lines.extend(comp)
        if k == 13: vmA.issue("pub", 1)
        if g < 18: vmA.issue("S%d" % g, 9)
        if k == 14:
            srd(a, 92, 78, 2048 * 2048 * 2)
            a("v_lshrrev_b32 v10, 4, v2")
            a("v_lshlrev_b32 v10, 12, v10")
            a("v_lshl_add_u32 v10, v3, 4, v10")
            a("s_lshl_b32 s40, s22, 7")
            a("s_lshl_b32 s36, s3, 5")
            a("s_add_u32 s40, s40, s36")
            a("s_lshl_b32 s40, s40, 12")
            a("s_lshl_b32 s36, s23, 8")
            a("s_add_u32 s40, s40, s36")
            for n in range(8):
                a("buffer_load_dwordx4 v[200:203], v10, s[92:95], s40 offen")
                if n < 7: a("s_add_u32 s40, s40, 16384")
            vmA.issue("wp", 8)
            a("s_lshl_b32 s36, s22, 2")
            a("v_mov_b32 v199, s36")
            a("buffer_load_dword v198, v199, s[60:63], 0 offen sc1"); vmA.issue("cnt", 1)
        if k + 2 < 18 and k + 2 >= 12:
            vmA.wait(["S%d" % (k + 2)])
    a("s_barrier")
    stamp(a, 3)
    a("s_load_dwordx4 s[88:91], s[0:1], 32")
    Z2 = ZP
    a("v_and_b32 v4, 31, v2")
    a("v_lshlrev_b32 v4, 4, v4")
    a("v_lshrrev_b32 v10, 5, v2")
    a("v_lshl_add_u32 v4, v10, 10, v4")
    for q in range(8): a("s_add_u32 s%d, s59, %d" % ((52, 53, 42, 43, 40, 41, 38, 39)[q], 4096 * q))
    GB = 128
    def gather():
        for q in range(16):
            a("buffer_load_dwordx4 %s, v4, s[12:15], s%d offen offset:%d sc1" % (vr(GB + 4 * q), (52, 53, 42, 43, 40, 41, 38, 39)[q >> 1], 2048 * (q & 1)))
    a("s_waitcnt vmcnt(0)")
    gather()
    a("s_mov_b32 s33, 0")
    a("s_waitcnt vmcnt(0)")
    a.label("%s_chk" % name)
    a("v_subrev_u32 v11, 16, v198")
    for q in range(16):
        a("v_or3_b32 v11, v11, v%d, v%d" % (GB + 4 * q + 1, GB + 4 * q + 3))
    a("v_cmp_gt_i32 vcc, 0, v11")
    a("s_add_u32 s33, s33, 1")
    a("s_cmp_gt_u32 s33, %d" % SPIN_MAX)
    a("s_cbranch_scc1 %s_ok" % name)
    a("s_cbranch_vccz %s_ok" % name)
    a("s_sleep 32")
    a("buffer_load_dword v198, v199, s[60:63], 0 offen sc1")
    a("s_waitcnt vmcnt(0)")
    gather()
    a("s_waitcnt vmcnt(0)")
    a("s_branch %s_chk" % name)
    a.label("%s_ok" % name)
    stamp(a, 5)
    for st_ in (32, 16, 8, 4):
        for q in range(0, st_, 2):
            a("v_pk_add_f32 %s, %s, %s" % (vr(GB + q, 2), vr(GB + q, 2), vr(GB + q + st_, 2)))
    for e in range(4): a("v_mov_b32 v%d, v%d" % (72 + e, GB + e))
    a("s_nop 1")
    for e in range(4): a("v_permlane32_swap_b32 v%d, v%d" % (GB + e, 72 + e))
    a("s_nop 1")
    for e in range(4): a("v_add_f32 v%d, v%d, v%d" % (GB + e, GB + e, 72 + e))
    for h in range(2):
        emit_ln_finish(a, GB + 2 * h, GB + 2 * h + 1, 2304, GB + 8 + h, GB + 4 + 2 * h, GB + 12)
        a("v_mul_f32 v%d, -v%d, v%d" % (GB + 5 + 2 * h, GB + 8 + h, GB + 4 + 2 * h))
    a("v_and_b32 v10, 31, v2")
    a("s_lshl_b32 s36, s24, 9")
    a("v_lshl_add_u32 v10, v10, 4, s36")
    a("ds_write_b128 v10, %s offset:1024" % vr(GB + 4))
    a("s_lshl_b32 s37, s25, 8")
    a("s_add_u32 s38, s36, s37")
    a("s_xor_b32 s37, s37, 256")
    a("s_add_u32 s39, s36, s37")
    a("v_lshlrev_b32 v10, 3, v3")
    a("v_add_u32 v11, s38, v10")
    a("v_add_u32 v10, s39, v10")
    a("s_waitcnt lgkmcnt(0)")
    a("ds_read_b64 %s, v11 offset:1024" % vr(MR, 2))
    a("ds_read_b64 %s, v11 offset:1152" % vr(MR + 2, 2))
    a("ds_read_b64 %s, v10 offset:1024" % vr(MR + 4, 2))
    a("ds_read_b64 %s, v10 offset:1152" % vr(MR + 6, 2))
    a("v_lshrrev_b32 v10, 4, v2")
    a("v_lshrrev_b32 v11, 2, v2"); a("v_and_b32 v11, 1, v11"); a("v_lshlrev_b32 v11, 4, v11")
    a("v_lshrrev_b32 v5, 3, v2"); a("v_and_b32 v5, 1, v5"); a("v_lshl_add_u32 v11, v5, 2, v11")
    a("v_and_b32 v5, 3, v2"); a("v_add_u32 v11, v11, v5")
    a("v_and_b32 v5, 1, v10")
    a("v_lshl_add_u32 v11, v5, 3, v11")
    a("v_lshlrev_b32 v11, 5, v11")
    a("v_lshrrev_b32 v5, 1, v10")
    a("v_lshl_add_u32 v6, v5, 4, v11")
    a("s_lshl_b32 s33, s23, 5")
    a("s_lshl_b32 s36, s22, 1")
    a("s_add_u32 s33, s33, s36")
    a("s_add_u32 s33, s33, s24")
    a("s_mul_i32 s33, s33, 18432")
    if ZIMG: a("s_add_u32 s33, s33, 0x%x" % ZIMG)
    a("s_lshl_b32 s36, s25, 10")
    a("s_add_u32 s39, s33, s36")
    a("s_add_u32 s39, s39, 8192")
    a("s_mul_i32 s38, s25, 10240")
    a("s_add_u32 s33, s33, s38")
    a("s_add_u32 s37, s33, s36")
    a("s_xor_b32 s36, s36, 1024")
    a("s_add_u32 s38, s33, s36")
    a("s_add_u32 s33, s37, 4096")
    a("s_add_u32 s36, s38, 4096")
    def norm_pair(nA, ttA, nB, ttB, O):
        for q, (n, tt) in enumerate(((nA, ttA), (nB, ttB))):
            for d in range(2):
                z = Z2 + 2 * n + d; t = T + 4 * q + 2 * d
                a("v_lshlrev_b32 v%d, 16, v%d" % (t, z))
                a("v_and_b32 v%d, 0xffff0000, v%d" % (t + 1, z))
        for q, (n, tt) in enumerate(((nA, ttA), (nB, ttB))):
            for d in range(2):
                t = T + 4 * q + 2 * d
                a("v_pk_fma_f32 %s, %s, %s, %s op_sel:[0,0,1] op_sel_hi:[1,0,1]" % (vr(t, 2), vr(t, 2), vr(MR + 2 * tt, 2), vr(MR + 2 * tt, 2)))
        for q in range(2):
            for d in range(2):
                t = T + 4 * q + 2 * d
                a("v_cvt_pk_bf16_f32 v%d, v%d, v%d" % (O + 2 * q + d, t, t + 1))
        a("s_nop 1")
        a("v_permlane16_swap_b32 v%d, v%d" % (O, O + 2))
        a("v_permlane16_swap_b32 v%d, v%d" % (O + 1, O + 3))
    a("s_waitcnt lgkmcnt(0)")
    cnt = 0
    for ft in range(4):
        for pp in range(2):
            O = 200 + 4 * cnt; cnt += 1
            norm_pair(tidx(ft, 2 * pp), 2 * pp, tidx(ft, 2 * pp + 1), 2 * pp + 1, O)
            a("s_nop 0")
            a("buffer_store_dwordx4 %s, v6, s[12:15], s%d offen offset:%d sc1" % (vr(O), ((37, 38), (33, 36))[ft >> 1][pp], (ft & 1) * 2048))
    O = 200 + 4 * cnt
    norm_pair(16, 0, 17, 1, O)
    a("s_nop 0")
    a("buffer_store_dwordx4 %s, v6, s[12:15], s39 offen sc1" % vr(O))
    stamp(a, 6)
    a("s_setprio 3")
    srd(a, 8, 78, 2048 * 2048 * 2)
    a("v_lshrrev_b32 v3, 3, v2")
    a("s_lshl_b32 s24, s3, 5")
    a("v_add_u32 v3, s24, v3")
    a("v_and_b32 v4, 7, v2")
    a("v_lshrrev_b32 v6, 4, v2")
    a("v_xor_b32 v6, v6, v4")
    a("v_lshlrev_b32 v6, 4, v6")
    a("v_lshl_add_u32 v10, v3, 12, v6")
    a("v_xor_b32 v11, 64, v10")
    a("v_add_u32 v11, %d, v11" % (32768 - 1024))
    a("v_add_u32 v12, %d, v10" % (2 * (32768 - 1024)))
    a("v_add_u32 v13, %d, v11" % (2 * (32768 - 1024)))
    a("v_lshlrev_b32 v14, 4, v2")
    a("s_lshl_b32 s26, s22, 19")
    a("s_mul_i32 s27, s23, %d" % (32 * 18432))
    a("s_lshl_b32 s24, s3, 12")
    a("s_add_u32 s27, s27, s24")
    if ZIMG: a("s_add_u32 s27, s27, 0x%x" % ZIMG)
    a("s_lshl_b32 s25, s3, 9")
    a("s_sub_u32 s32, s25, s24")
    a("s_add_u32 s32, s32, 16384")
    a("s_add_u32 s24, s24, %d" % RB)
    a("s_waitcnt vmcnt(0) lgkmcnt(0)")
    a("v_mov_b32 v26, %d" % LC)
    a("v_mov_b32 v27, 1")
    a("s_mov_b64 exec, 1")
    a("ds_add_rtn_u32 v28, v26, v27")
    a("s_waitcnt lgkmcnt(0)")
    a("v_readfirstlane_b32 s36, v28")
    a("s_cmp_lg_u32 s36, 3")
    a("s_cbranch_scc1 %s_nozs" % name)
    a("v_mov_b32 v28, 0")
    a("buffer_store_dword v27, v28, s[12:15], s97 offen sc1")
    a.label("%s_nozs" % name)
    a("s_mov_b64 exec, -1")
    stamp(a, 7)
    srd(a, 16, 88, 576 * 2048 * 2)
    srd(a, 84, 90, 576 * 2)
    for g in range(4):
        a("s_add_u32 s35, s24, %d" % (g * SLOT))
        a("s_mov_b32 m0, s35")
        a("s_add_u32 s36, s26, %d" % (128 * g))
        for n in range(4):
            a("buffer_load_dwordx4 v%d, s[8:11], s36 offen offset:%d lds" % (10 + n, n * 1024))
    a("s_mov_b32 s34, 0")
    a("s_cmp_lg_u32 s3, 0")
    a("s_cbranch_scc1 %s_pl" % name)
    a("v_and_b32 v28, 15, v2")
    a("v_lshlrev_b32 v30, 2, v28")
    a("v_lshlrev_b32 v28, 12, v28")
    a("s_lshl_b32 s52, s23, 8")
    a("s_add_u32 s52, s52, 0x%x" % ZFLG)
    a.label("%s_pz0" % name)
    a("buffer_load_dword v31, v30, s[60:63], 0 offen sc1")
    a("s_add_u32 s34, s34, 1")
    a("s_waitcnt vmcnt(0)")
    a("v_cmp_gt_u32 vcc, 16, v31")
    a("s_cmp_gt_u32 s34, %d" % SPIN_MAX)
    a("s_cbranch_scc1 %s_pz" % name)
    a("s_cbranch_vccz %s_pz" % name)
    a("s_sleep 32")
    a("s_branch %s_pz0" % name)
    a.label("%s_pz" % name)
    a("buffer_load_dword v29, v28, s[12:15], s52 offen sc1")
    a("s_add_u32 s34, s34, 1")
    a("s_waitcnt vmcnt(0)")
    a("v_cmp_ne_u32 vcc, 1, v29")
    a("s_cmp_gt_u32 s34, %d" % SPIN_MAX)
    a("s_cbranch_scc1 %s_pzx" % name)
    a("s_cbranch_vccz %s_pzx" % name)
    a("s_sleep 8")
    a("s_branch %s_pz" % name)
    a.label("%s_pzx" % name)
    a("v_mov_b32 v27, 1")
    a("ds_write_b32 v26, v27 offset:4")
    a("s_branch %s_pgo" % name)
    a.label("%s_pl" % name)
    a("ds_read_b32 v27, v26 offset:4")
    a("s_add_u32 s34, s34, 1")
    a("s_waitcnt lgkmcnt(0)")
    a("v_readfirstlane_b32 s36, v27")
    a("s_cmp_gt_u32 s34, %d" % (SPIN_MAX * 20))
    a("s_cbranch_scc1 %s_pgo" % name)
    a("s_cmp_lg_u32 s36, 0")
    a("s_cbranch_scc1 %s_pgo" % name)
    a("s_sleep 2")
    a("s_branch %s_pl" % name)
    a.label("%s_pgo" % name)
    stamp(a, 8)
    for g in range(4):
        a("s_add_u32 s35, s24, %d" % (g * SLOT + TREG))
        a("s_mov_b32 m0, s35")
        a("s_add_u32 s36, s27, %d" % (18432 * g))
        a("s_add_u32 s37, s36, s32")
        for n in range(4):
            a("buffer_load_dwordx4 v14, s[12:15], s36 offen offset:%d sc1 lds" % (n * 1024))
        a("s_add_u32 s35, s35, s32")
        a("s_mov_b32 m0, s35")
        a("s_mov_b64 exec, 0xffffffff")
        a("buffer_load_dwordx4 v14, s[12:15], s37 offen sc1 lds")
        a("s_mov_b64 exec, -1")
    a("s_add_u32 s26, s26, 512")
    a("s_add_u32 s27, s27, %d" % (4 * 18432))
    a("s_mov_b32 s33, 0")
    a("s_lshl_b32 s43, s2, 2")
    a("s_add_u32 s43, s43, s3")
    a("s_and_b32 s53, s43, 1")
    a("s_sub_u32 s36, s43, 448")
    a("s_lshr_b32 s37, s43, 1")
    a("s_cmp_ge_u32 s43, 896")
    a("s_cselect_b32 s43, s36, s37")
    a("s_cselect_b32 s53, 2, s53")
    a("s_waitcnt vmcnt(15)")
    a("s_barrier")
    a("s_waitcnt vmcnt(10)")
    a("s_barrier")
    a("s_waitcnt vmcnt(5)")
    a("s_barrier")
    a("s_mov_b32 s34, 4")
    def issue2():
        a("s_add_u32 s35, s33, s24")
        a("s_mov_b32 m0, s35")
        a("s_add_u32 s36, s35, %d" % TREG)
        for n in range(4):
            a("buffer_load_dwordx4 v%d, s[8:11], s26 offen offset:%d lds" % (10 + n, n * 1024))
        a("s_mov_b32 m0, s36")
        a("s_add_u32 s37, s27, s32")
        for n in range(4):
            a("buffer_load_dwordx4 v14, s[12:15], s27 offen offset:%d sc1 lds" % (n * 1024))
        a("s_add_u32 s36, s36, s32")
        a("s_mov_b32 m0, s36")
        a("s_mov_b64 exec, 0xffffffff")
        a("buffer_load_dwordx4 v14, s[12:15], s37 offen sc1 lds")
        a("s_mov_b64 exec, -1")
        a("s_add_u32 s26, s26, 128")
        a("s_add_u32 s27, s27, 18432")
        a("s_add_u32 s33, s33, %d" % SLOT)
        a("s_cmp_eq_u32 s33, %d" % (R * SLOT))
        a("s_cselect_b32 s33, 0, s33")
    a.label("%s_lloop" % name)
    issue2()
    a("s_cmp_eq_u32 s34, 18")
    a("s_cbranch_scc1 %s_hk1" % name)
    a("s_cmp_eq_u32 s34, 21")
    a("s_cbranch_scc1 %s_hk2" % name)
    a("s_cmp_eq_u32 s34, 22")
    a("s_cbranch_scc1 %s_hk2g" % name)
    a.label("%s_lw9" % name)
    a("s_waitcnt vmcnt(9)")
    a.label("%s_lcont" % name)
    a("s_barrier")
    a("s_add_u32 s34, s34, 1")
    a("s_cmp_lt_u32 s34, 32")
    a("s_cbranch_scc1 %s_lloop" % name)
    a("s_branch %s_ldone" % name)
    a.label("%s_hk1" % name)
    a("s_cmp_lg_u32 s3, 0")
    a("s_cbranch_scc1 %s_lw9" % name)
    a("v_lshlrev_b32 v28, 7, v2")
    a("s_mov_b32 s52, 0x%x" % (XFLG + 0))
    a("buffer_load_dword v32, v28, s[12:15], s52 offen sc1")
    a("s_mov_b32 s52, 0x%x" % (XFLG + 8192))
    a("buffer_load_dword v33, v28, s[12:15], s52 offen sc1")
    a("s_mov_b32 s52, 0x%x" % (XFLG + 16384))
    a("buffer_load_dword v34, v28, s[12:15], s52 offen sc1")
    a("s_mov_b32 s52, 0x%x" % (XFLG + 24576))
    a("buffer_load_dword v35, v28, s[12:15], s52 offen sc1")
    a("s_waitcnt vmcnt(13)")
    a("s_branch %s_lcont" % name)
    a.label("%s_hk2" % name)
    a("s_cmp_lg_u32 s3, 0")
    a("s_cbranch_scc1 %s_lw9" % name)
    a("s_mov_b32 s52, 0")
    a.label("%s_hk2l" % name)
    a("v_and_b32 v32, v32, v33")
    a("v_and_b32 v34, v34, v35")
    a("v_and_b32 v32, v32, v34")
    a("v_cmp_eq_u32 vcc, 1, v32")
    a("s_nop 1")
    a("v_cndmask_b32 v32, 0, 16, vcc")
    a("v_cmp_gt_u32 vcc, 16, v32")
    a("s_add_u32 s52, s52, 1")
    a("s_cmp_gt_u32 s52, %d" % SPIN_MAX)
    a("s_cbranch_scc1 %s_lw9" % name)
    a("s_cbranch_vccz %s_lw9" % name)
    a("s_sleep 16")
    a("s_mov_b32 s38, 0x%x" % (XFLG + 0))
    a("buffer_load_dword v32, v28, s[12:15], s38 offen sc1")
    a("s_mov_b32 s38, 0x%x" % (XFLG + 8192))
    a("buffer_load_dword v33, v28, s[12:15], s38 offen sc1")
    a("s_mov_b32 s38, 0x%x" % (XFLG + 16384))
    a("buffer_load_dword v34, v28, s[12:15], s38 offen sc1")
    a("s_mov_b32 s38, 0x%x" % (XFLG + 24576))
    a("buffer_load_dword v35, v28, s[12:15], s38 offen sc1")
    a("s_waitcnt vmcnt(0)")
    a("s_branch %s_hk2l" % name)
    a.label("%s_hk2g" % name)
    nconv = emit_conv_loads(a, " sc1")
    a("s_waitcnt vmcnt(%d)" % (9 + nconv))
    a("s_branch %s_lcont" % name)
    a.label("%s_ldone" % name)
    a("s_waitcnt vmcnt(0)")
    a("s_barrier")
    a("s_mov_b32 s26, s53")
    a("s_and_b32 s27, s3, 1")
    a("s_mul_i32 s27, s27, %d" % CJ_SIZE)
    a("s_lshr_b32 s36, s3, 1")
    a("s_mul_i32 s36, s36, %d" % SLOT)
    a("s_add_u32 s27, s27, s36")
    a("s_add_u32 s27, s27, %d" % RB)
    def mid():
        a("s_barrier")
        a("s_setprio 0")
    sv = set(DBG); DBG.discard("stamp")
    lb_ = len(a.lines)
    emit_conv_job(a, name, mid)
    for n_ in range(lb_, len(a.lines)):
        if "buffer_store_dwordx2" in a.lines[n_]: a.lines[n_] += " sc1"
    DBG.update(sv)
    stamp(a, 9)
    c_common()
    cTa = [4, 4]; cTb = [6, 6]; cF_ = 8; cFh = 9
    kTa = 88; kTb = 90; kF = 92; kFh = 93
    a("v_and_b32 v3, 15, v2")
    a("v_lshrrev_b32 v10, 5, v2")
    a("v_lshlrev_b32 v10, 11, v10")
    a("v_bfe_u32 v11, v2, 4, 1")
    a("v_lshl_add_u32 v10, v11, 4, v10")
    a("v_lshl_add_u32 v10, v3, 5, v10")
    a("s_lshl_b32 s26, s3, 12")
    a("v_add_u32 v10, s26, v10")
    a("s_lshl_b32 s26, s53, 10")
    a("v_add_u32 v%d, s26, v10" % kTa)
    a("s_xor_b32 s26, s26, 1024")
    a("v_add_u32 v%d, s26, v10" % kTb)
    a("v_lshrrev_b32 v10, 2, v2")
    a("v_mul_u32_u24 v10, %d, v10" % CFS)
    a("v_and_b32 v11, 3, v2")
    a("v_lshl_add_u32 v10, v11, 3, v10")
    a("s_mul_i32 s26, s3, %d" % (32 * CFS))
    a("s_add_u32 s26, s26, %d" % CTREG)
    a("v_add_u32 v%d, s26, v10" % kF)
    a("v_add_u32 v%d, 128, v%d" % (kFh, kF))
    a("v_mov_b32 v26, %d" % LC)
    a("v_mov_b32 v27, 1")
    a("s_waitcnt vmcnt(0)")
    a("s_mov_b64 exec, 1")
    a("ds_add_rtn_u32 v28, v26, v27 offset:20")
    a("s_waitcnt lgkmcnt(0)")
    a("v_readfirstlane_b32 s36, v28")
    a("s_cmp_lg_u32 s36, 3")
    a("s_cbranch_scc1 %s_nocs" % name)
    a("s_lshl_b32 s36, s2, 7")
    a("s_add_u32 s36, s36, 0x%x" % CFLG)
    a("v_mov_b32 v28, 0")
    a("buffer_store_dword v27, v28, s[12:15], s36 offen sc1")
    a.label("%s_nocs" % name)
    a("s_mov_b64 exec, -1")
    fin_loads()
    core3 = G.Core(a, ACC, FB[0], FB[1], CFS, CTREG, cTa, cTb, cF_, cFh, TT=512)
    pairs = ((cTa[0], kTa), (cF_, kF), (cTb[0], kTb), (cFh, kFh))
    a("s_mov_b32 s27, %d" % C0)
    for d, s_ in pairs: a("v_add_u32 v%d, s27, v%d" % (d, s_))
    for r in range(ACC, ACC + 72): a("v_mov_b32 v%d, 0" % r)
    a("s_mov_b32 s33, 0")
    a("s_barrier")
    stamp(a, 10)
    core3.prime(0, core3.reads(0, 0))
    def citer(buf):
        core3.trk.drain()
        a("s_barrier")
        a("s_add_u32 s27, s27, %d" % CSL)
        a("s_cmp_eq_u32 s27, %d" % CW)
        a("s_cselect_b32 s27, %d, s27" % RB)
        pre = ["v_add_u32 v%d, s27, v%d" % (d, s_) for d, s_ in pairs]
        core3.phase(buf, core3.reads(1 - buf, 0), pre=pre)
    a.label("%s_ccloop" % name)
    citer(0); citer(1)
    a("s_add_u32 s33, s33, 1")
    a("s_cmp_lt_u32 s33, 9")
    a("s_cbranch_scc1 %s_ccloop" % name)
    core3.trk.drain()
    stamp(a, 11)
    a("s_mul_i32 s33, s3, %d" % (18 * 1024))
    a("s_add_u32 s33, s33, %d" % C0)
    a("v_lshlrev_b32 v10, 4, v2")
    a("v_add_u32 v11, s33, v10")
    a("s_nop 4")
    for n, (ft, tt) in enumerate(TILES):
        a("ds_write_b128 v11, %s offset:%d" % (vr(core3.accr(ft, tt)), 1024 * tidx(ft, tt)))
        if n in (7, 13): a("s_waitcnt lgkmcnt(4)")
    a("s_waitcnt lgkmcnt(0) vmcnt(0)")
    a.label("%s_cfin" % name)
    a("s_barrier")
    stamp(a, 12)
    a("v_lshlrev_b32 v10, 4, v2")
    a("v_lshrrev_b32 v11, 2, v2")
    a("v_lshlrev_b32 v11, 7, v11")
    a("v_and_b32 v12, 3, v2")
    a("v_lshl_add_u32 v11, v12, 3, v11")
    a("s_mov_b32 s33, 0xbfb8aa3b")
    PT = 16; YR = 64
    for s_ in range(3):
        b = 64 + 4 * s_
        if s_ == 2:
            a("s_cmp_ge_u32 s54, 2")
            a("s_cbranch_scc1 %s_rd" % name)
        a("v_add_u32 v4, s%d, v10" % (b + 2))
        a("v_add_u32 v5, s%d, v11" % (b + 1))
        for q in range(4):
            a("ds_read_b128 %s, v4 offset:%d" % (vr(PT + 16 * s_ + 4 * q), 18432 * q))
        a("ds_read_b64_tr_b16 %s, v5" % vr(YR + 2 * s_, 2))
    a.label("%s_rd" % name)
    T = 104
    for s_ in range(3):
        b = 64 + 4 * s_
        if s_ == 0: a("s_waitcnt lgkmcnt(5)")
        if s_ == 1: a("s_waitcnt lgkmcnt(0)")
        if s_ == 2:
            a("s_cmp_ge_u32 s54, 2")
            a("s_cbranch_scc1 %s_done" % name)
        o = PT + 16 * s_; X = XR + 2 * s_; Y = YR + 2 * s_; S_ = ST + 2 * s_
        for h in (0, 2):
            a("v_pk_add_f32 %s, %s, %s" % (vr(o + h, 2), vr(o + h, 2), vr(o + 4 + h, 2)))
            a("v_pk_add_f32 %s, %s, %s" % (vr(o + 8 + h, 2), vr(o + 8 + h, 2), vr(o + 12 + h, 2)))
        for h in (0, 2):
            a("v_pk_add_f32 %s, %s, %s" % (vr(o + h, 2), vr(o + h, 2), vr(o + 8 + h, 2)))
        rnd_pair(a, T + 20, o, o + 1); rnd_pair(a, T + 21, o + 2, o + 3)
        for r in range(4): a("v_mul_f32 v%d, s33, v%d" % (T + r, o + r))
        for r in range(4): a("v_exp_f32 v%d, v%d" % (T + r, T + r))
        a("v_lshlrev_b32 v%d, 16, v%d" % (T + 4, X)); a("v_and_b32 v%d, 0xffff0000, v%d" % (T + 5, X))
        a("v_lshlrev_b32 v%d, 16, v%d" % (T + 6, X + 1)); a("v_and_b32 v%d, 0xffff0000, v%d" % (T + 7, X + 1))
        for r in range(4): a("v_add_f32 v%d, 1.0, v%d" % (T + r, T + r))
        for r in range(4): a("v_rcp_f32 v%d, v%d" % (T + r, T + r))
        for r in range(4): a("v_sub_f32 v%d, v%d, v%d" % (T + 12 + r, T + 4 + r, S_))
        a("v_lshlrev_b32 v%d, 16, v%d" % (T + 8, Y)); a("v_and_b32 v%d, 0xffff0000, v%d" % (T + 9, Y))
        a("v_lshlrev_b32 v%d, 16, v%d" % (T + 10, Y + 1)); a("v_and_b32 v%d, 0xffff0000, v%d" % (T + 11, Y + 1))
        for r in range(4): a("v_mul_f32 v%d, v%d, v%d" % (o + r, o + r, T + r))
        rnd_pair(a, T + 20, T + 12, T + 13); rnd_pair(a, T + 21, T + 14, T + 15)
        rnd_pair(a, T + 22, o, o + 1); rnd_pair(a, T + 23, o + 2, o + 3)
        for r in range(4): a("v_mul_f32 v%d, v%d, v%d" % (T + 12 + r, T + 12 + r, S_ + 1))
        rnd_pair(a, T + 20, T + 12, T + 13); rnd_pair(a, T + 21, T + 14, T + 15)
        for r in range(4): a("v_mul_f32 v%d, v%d, v%d" % (T + 12 + r, T + 12 + r, T + 8 + r))
        rnd_pair(a, T + 20, T + 12, T + 13); rnd_pair(a, T + 21, T + 14, T + 15)
        for r in range(4): a("v_mul_f32 v%d, v%d, v%d" % (T + 12 + r, T + 12 + r, o + r))
        rnd_pair(a, T + 20, T + 12, T + 13); rnd_pair(a, T + 21, T + 14, T + 15)
        for r in range(4): a("v_add_f32 v%d, v%d, v%d" % (T + 12 + r, T + 12 + r, T + 4 + r))
        a("v_cvt_pk_bf16_f32 v%d, v%d, v%d" % (X, T + 12, T + 13))
        a("v_cvt_pk_bf16_f32 v%d, v%d, v%d" % (X + 1, T + 14, T + 15))
        a("buffer_store_dwordx2 %s, v13, s[28:31], s%d offen" % (vr(X, 2), b))
    a.label("%s_done" % name)
    stamp(a, 13)
    G.stamp_rt(a, 1)
    a.label("%s_end" % name)
    a("s_endpgm")
    for ft in range(5):
        a.label("%s_gsub%d" % (name, ft))
        tts = range(4 if ft < 4 else 2)
        emit_fold_gelu(a, [(128 + 4 * tidx(ft, tt), CS + 4 * ft, MR + 2 * tt, ZP + 2 * tidx(ft, tt)) for tt in tts], 72)
        a("s_setpc_b64 s[34:35]")
    return a.text(), kernel_desc(name, 256, 256), (name, 256, 512, 163840)

def gen_kf17(name="k1_kernel", R=4):
    a = Asm()
    RB = 4096; SLOT = 34816; TREG = 16384; FS = 288; RST = 0
    LDSB = RB + R * SLOT
    LC = 2048
    ZFLG = 0x2D00000; PFL = 128
    KVL = 143360; XFLG = 0x2D20000; CFLG = 0x2D30000
    C0 = 77824; CW = 151552; CSL = 36864; YOFF = 151552; CTREG = 16384; CFS = 160
    from gen3 import emit_conv_loads, emit_conv_job, CJ_SIZE
    def capture(f, *args):
        lb = len(a.lines); f(*args); out = a.lines[lb:]; del a.lines[lb:]; return out

    def c_common():
        a("s_load_dwordx2 s[4:5], s[0:1], 0")
        a("s_load_dwordx2 s[16:17], s[0:1], 88")
        a("s_and_b32 s20, s2, 7")
        a("s_lshr_b32 s21, s2, 3")
        a("s_and_b32 s22, s20, 3")
        a("s_lshl_b32 s22, s22, 3")
        a("s_and_b32 s23, s21, 7")
        a("s_add_u32 s22, s22, s23")
        a("s_lshr_b32 s23, s20, 2")
        a("s_lshl_b32 s23, s23, 2")
        a("s_lshr_b32 s24, s21, 3")
        a("s_add_u32 s23, s23, s24")
        a("s_lshr_b32 s52, s23, 1")
        a("s_and_b32 s53, s23, 1")
        a("s_lshl_b32 s54, s98, 2")
        a("s_add_u32 s54, s54, s3")
        a("s_waitcnt lgkmcnt(0)")
        srd(a, 8, 4, 2048 * 576 * 2)
        srd(a, 28, 16, 2048 * 576 * 2)
    XR = 200; ST = 208
    def fin_loads():
        a("v_and_b32 v3, 15, v2")
        a("v_lshrrev_b32 v10, 4, v2")
        a("v_mul_u32_u24 v13, 1152, v3")
        a("v_lshl_add_u32 v13, v10, 3, v13")
        a("v_lshlrev_b32 v12, 3, v3")
        for s_ in range(3):
            if s_ == 2:
                a("s_cmp_ge_u32 s54, 2")
                a("s_cbranch_scc1 %s_fl%d" % (name, fin_loads.cnt))
            b = 64 + 4 * s_
            if s_ < 2:
                a("s_add_u32 s36, s54, %d" % (8 * s_))
                a("s_lshr_b32 s37, s36, 2")
                a("s_and_b32 s38, s36, 3")
                a("s_mul_i32 s39, s53, 160")
                a("s_lshl_b32 s40, s37, 5")
                a("s_add_u32 s39, s39, s40")
            else:
                a("s_add_u32 s36, s54, 16")
                a("s_mov_b32 s37, 4")
                a("s_mov_b32 s38, s54")
                a("s_mov_b32 s39, 128")
            a("s_lshl_b32 s40, s53, 1")
            a("s_add_u32 s38, s38, s40")
            a("s_and_b32 s38, s38, 3")
            a("s_lshl_b32 s40, s22, 2")
            a("s_add_u32 s40, s40, s38")
            a("s_lshl_b32 s40, s40, 4")
            a("s_mul_i32 s%d, s40, 1152" % b)
            a("s_add_u32 s%d, s%d, s39" % (b, b))
            a("s_mul_i32 s39, s52, 288")
            a("s_add_u32 s%d, s%d, s39" % (b, b))
            a("s_lshl_b32 s%d, s37, 11" % (b + 1))
            a("s_lshl_b32 s39, s38, 5")
            a("s_add_u32 s%d, s%d, s39" % (b + 1, b + 1))
            a("s_add_u32 s%d, s%d, %d" % (b + 1, b + 1, YOFF))
            a("s_lshl_b32 s%d, s36, 10" % (b + 2))
            a("s_add_u32 s%d, s%d, %d" % (b + 2, b + 2, C0))
            a("s_lshl_b32 s40, s40, 3")
            a("s_add_u32 s40, s40, 0x%x" % STATS1)
            a("buffer_load_dwordx2 %s, v13, s[8:11], s%d offen" % (vr(XR + 2 * s_, 2), b))
            a("buffer_load_dwordx2 %s, v12, s[12:15], s40 offen sc1" % vr(ST + 2 * s_, 2))
        a.label("%s_fl%d" % (name, fin_loads.cnt))
        fin_loads.cnt += 1
    fin_loads.cnt = 0
    kernel_begin(a, name)
    a("s_load_dwordx2 s[80:81], s[0:1], 0")
    a("s_load_dwordx2 s[4:5], s[0:1], 56")
    a("s_load_dwordx2 s[6:7], s[0:1], 104")
    a("s_load_dwordx2 s[18:19], s[0:1], 96")
    a("s_cmp_ge_u32 s2, 256")
    a("s_cbranch_scc1 %s_end" % name)
    a("v_lshrrev_b32 v1, 6, v0")
    a("v_and_b32 v2, 63, v0")
    a("v_readfirstlane_b32 s3, v1")
    G2.tile_ij(a)
    a("s_lshr_b32 s98, s3, 2")
    a("s_mov_b32 s54x, 0".replace("s54x", "s99"))
    a("s_and_b32 s3, s3, 3")
    a("s_lshr_b32 s24, s3, 1")
    a("s_and_b32 s25, s3, 1")
    a("v_and_b32 v3, 15, v2")
    VT = 204; VF = 208
    def loader_setup():
        a("v_lshrrev_b32 v5, 3, v2")
        a("v_and_b32 v4, 7, v2")
        a("s_lshl_b32 s36, s3, 5")
        a("v_add_u32 v5, s36, v5")
        a("v_lshrrev_b32 v7, 4, v2")
        a("v_xor_b32 v7, v7, v4")
        a("v_mul_u32_u24 v6, 1152, v5")
        a("v_lshl_add_u32 v%d, v7, 4, v6" % VT)
        a("v_xor_b32 v%d, 64, v%d" % (VT + 1, VT))
        a("v_add_u32 v%d, %d, v%d" % (VT + 1, 9216 - 1024, VT + 1))
        a("v_add_u32 v%d, %d, v%d" % (VT + 2, 2 * (9216 - 1024), VT))
        a("v_add_u32 v%d, %d, v%d" % (VT + 3, 2 * (9216 - 1024), VT + 1))
        a("s_lshl_b32 s84, s3, 12")
        a("s_add_u32 s84, s84, %d" % RB)
        a("s_lshl_b32 s85, s3, 9")
        a("s_add_u32 s85, s85, %d" % (RB + TREG + 16384))
    def loader_setup2():
        for n in range(5):
            if n < 4:
                a("s_lshl_b32 s36, s3, 8")
                a("s_add_u32 s36, s36, %d" % (64 * n))
            else:
                a("s_lshl_b32 s36, s3, 5")
                a("s_add_u32 s36, s36, 1024")
            a("v_add_u32 v6, s36, v2")
            a("v_mul_u32_u24 v7, 3641, v6")
            a("v_lshrrev_b32 v7, 16, v7")
            a("v_mul_u32_u24 v8, 18, v7")
            a("v_sub_u32 v8, v6, v8")
            a("v_and_b32 v9, 35, v7")
            a("v_bfe_u32 v6, v7, 2, 2")
            a("v_lshl_add_u32 v9, v6, 3, v9")
            a("v_bfe_u32 v6, v7, 4, 1")
            a("v_lshl_add_u32 v9, v6, 2, v9")
            a("v_mul_u32_u24 v9, 9216, v9")
            a("v_lshl_add_u32 v%d, v8, 4, v9" % (VF + n))
            if 0 < n < 4: a("v_subrev_u32 v%d, %d, v%d" % (VF + n, 1024 * n, VF + n))
    def issueT(g):
        st = g % 9
        a("s_add_u32 s86, s84, %d" % ((g % R) * SLOT))
        a("s_mov_b32 m0, s86")
        a("s_add_u32 s87, s82, %d" % (128 * st))
        for n in range(4):
            a("buffer_load_dwordx4 v%d, s[28:31], s87 offen offset:%d lds" % (VT + n, 1024 * n))
    def issueF(g):
        st = g % 9
        a("s_add_u32 s86, s84, %d" % ((g % R) * SLOT + TREG))
        a("s_mov_b32 m0, s86")
        a("s_add_u32 s87, s83, %d" % (64 * 9216 * st + (4608 if g < 9 else 0)))
        for n in range(4):
            a("buffer_load_dwordx4 v%d, s[8:11], s87 offen offset:%d lds" % (VF + n, 1024 * n))
        a("s_add_u32 s86, s85, %d" % ((g % R) * SLOT))
        a("s_mov_b32 m0, s86")
        a("s_mov_b64 exec, 0xffffffff")
        a("buffer_load_dwordx4 v%d, s[8:11], s87 offen lds" % (VF + 4))
        a("s_mov_b64 exec, -1")
    def srds_main():
        srd(a, 28, 80, 2048 * 576 * 2)
        srd(a, 8, 4, 576 * 4608 * 2)
        srd(a, 12, 6, WS_BYTES)
        srd(a, 60, 18, 256)
        a("s_mul_i32 s82, s22, %d" % (128 * 1152))
        a("s_mul_i32 s83, s23, 288")
    ACC = 128; FB = [16, 52]; CS = 216; ONE = 236
    vTa = [4, 5]; vTb = [6, 7]; vF = 8; vFh = 9
    bTa = [88, 89]; bTb = [90, 91]; bF = 92; bFh = 93
    def mma_setup():
        a("v_lshrrev_b32 v10, 4, v2")
        a("v_lshrrev_b32 v11, 1, v3")
        a("v_xor_b32 v10, v10, v11")
        a("v_lshlrev_b32 v10, 4, v10")
        a("v_lshl_add_u32 v10, v3, 7, v10")
        a("s_lshl_b32 s26, s24, 13")
        a("s_add_u32 s26, s26, %d" % RB)
        a("v_add_u32 v10, s26, v10")
        a("s_lshl_b32 s26, s25, 12")
        a("v_add_u32 v%d, s26, v10" % bTa[0])
        a("s_xor_b32 s26, s26, 4096")
        a("v_add_u32 v%d, s26, v10" % bTb[0])
        a("v_xor_b32 v%d, 64, v%d" % (bTa[1], bTa[0]))
        a("v_xor_b32 v%d, 64, v%d" % (bTb[1], bTb[0]))
        a("v_lshrrev_b32 v10, 2, v2")
        a("v_mul_u32_u24 v10, %d, v10" % FS)
        a("v_and_b32 v11, 3, v2")
        a("v_lshl_add_u32 v10, v11, 3, v10")
        a("v_add_u32 v10, %d, v10" % (RB + TREG))
        a("s_mul_i32 s26, s25, 160")
        a("v_add_u32 v%d, s26, v10" % bF)
        a("v_add_u32 v%d, 128, v10" % bFh)
        for r in range(ACC, ACC + 72): a("v_mov_b32 v%d, 0" % r)
        for r in range(CS, CS + 20): a("v_mov_b32 v%d, 0" % r)
        for r in range(ONE, ONE + 4): a("v_mov_b32 v%d, 0x3f803f80" % r)
    def mma_addr(slot):
        a("s_mov_b32 s27, %d" % (slot * SLOT))
        for d, s_ in ((vTa[0], bTa[0]), (vTb[0], bTb[0]), (vTa[1], bTa[1]), (vTb[1], bTb[1]), (vF, bF), (vFh, bFh)):
            a("v_add_u32 v%d, s27, v%d" % (d, s_))
    core = G.Core(a, ACC, FB[0], FB[1], FS, TREG, vTa, vTb, vF, vFh)
    trk = core.trk
    a("s_cmp_eq_u32 s98, 0")
    a("s_cbranch_scc1 %s_A0" % name)
    a("s_setprio 3")
    loader_setup()
    a("s_waitcnt lgkmcnt(0)")
    srds_main()
    vm = VmTracker(a)
    def issue(g, vmx):
        issueT(g); issueF(g); vmx.issue("S%d" % g, 9)
    issueT(0)
    loader_setup2()
    issueF(0); vm.issue("S0", 9)
    issue(1, vm); issue(2, vm); issue(3, vm)
    a("s_add_u32 s3, s3, 4"); stamp_setup(a, 1); stamp(a, 0); a("s_sub_u32 s3, s3, 4")
    a("s_load_dwordx4 s[64:67], s[0:1], 8")
    a("s_load_dwordx2 s[76:77], s[0:1], 24")
    mma_setup()
    a("s_waitcnt lgkmcnt(0)")
    srd(a, 68, 66, 2048 * 576 * 2)
    a("s_mov_b32 s88, s64"); a("s_mov_b32 s89, s65")
    srd(a, 64, 88, 2048 * 576 * 2)
    srd(a, 72, 76, 576 * 8)
    def kv_dma():
        a("s_lshr_b32 s36, s2, 3")
        a("s_mul_i32 s36, s36, %d" % (64 * 1152))
        a("s_and_b32 s37, s2, 7")
        a("s_mul_i32 s37, s37, 144")
        a("s_add_u32 s36, s36, s37")
        for q in range(5):
            a("s_add_u32 s38, s3, %d" % (4 * q))
            if q == 4: a("s_min_u32 s38, s38, 18")
            isK = (q < 2); isV = (q > 2)
            a("s_sub_u32 s39, s38, 10")
            a("s_cmp_lt_u32 s38, 10")
            a("s_cselect_b32 s39, s38, s39")
            a("s_cselect_b32 s40, %d, 0" % ((-3 * 1152) & 0xffffffff))
            a("s_lshl_b32 s37, s39, 6")
            a("v_add_u32 v240, s37, v2")
            a("v_mul_u32_u24 v241, 7282, v240")
            a("v_lshrrev_b32 v241, 16, v241")
            a("v_mul_u32_u24 v242, 9, v241")
            a("v_sub_u32 v242, v240, v242")
            a("v_mul_u32_u24 v241, 1152, v241")
            a("v_lshl_add_u32 v241, v242, 4, v241")
            a("s_add_u32 s40, s40, s36")
            a("v_add_u32 v241, s40, v241")
            a("s_lshl_b32 s37, s38, 10")
            a("s_add_u32 s37, s37, %d" % KVL)
            a("s_mov_b32 m0, s37")
            if isK:
                a("s_nop 0")
                a("buffer_load_dwordx4 v241, s[64:67], 0 offen lds")
            elif isV:
                a("s_nop 0")
                a("buffer_load_dwordx4 v241, s[68:71], 0 offen lds")
            else:
                a("s_cmp_lt_u32 s38, 10")
                a("s_cbranch_scc1 %s_kd1" % name)
                a("buffer_load_dwordx4 v241, s[68:71], 0 offen lds")
                a("s_branch %s_kd2" % name)
                a.label("%s_kd1" % name)
                a("buffer_load_dwordx4 v241, s[64:67], 0 offen lds")
                a.label("%s_kd2" % name)
    RA = 96; XB = 112
    for r in range(RA, RA + 16): a("v_mov_b32 v%d, 0" % r)
    a("v_lshrrev_b32 v10, 4, v2")
    a("v_lshrrev_b32 v11, 1, v3")
    a("v_xor_b32 v10, v10, v11")
    a("v_lshlrev_b32 v10, 4, v10")
    a("v_lshl_add_u32 v10, v3, 7, v10")
    a("v_add_u32 v12, s84, v10")
    a("v_xor_b32 v13, 64, v12")
    def rs_rd(g):
        a("v_add_u32 v10, %d, v12" % ((g % R) * SLOT))
        a("v_add_u32 v11, %d, v13" % ((g % R) * SLOT))
        for h in range(2):
            for n in range(2):
                a("ds_read_b128 %s, v%d offset:%d" % (vr(XB + 8 * h + 4 * n), 10 + h, 2048 * n))
    def rs_do():
        for h in range(2):
            for n in range(2):
                x = XB + 8 * h + 4 * n
                a("v_mfma_f32_16x16x32_bf16 %s, %s, %s, %s" % (vr(RA + 4 * n), vr(ONE), vr(x), vr(RA + 4 * n)))
                a("v_mfma_f32_16x16x32_bf16 %s, %s, %s, %s" % (vr(RA + 8 + 4 * n), vr(x), vr(x), vr(RA + 8 + 4 * n)))
    def interleave(dma, comp, vmx=None):
        groups = []; cur = []
        for l in dma:
            cur.append(l)
            if "buffer_load" in l and not any("exec, 0xffffffff" in x for x in cur[-2:]):
                groups.append(cur); cur = []
            elif "exec, -1" in l:
                groups.append(cur); cur = []
        if cur: groups.append(cur)
        ns = max(1, len(groups))
        per = (len(comp) + ns - 1) // ns
        for g in groups:
            a.lines.extend(g)
            a.lines.extend(comp[:per]); comp = comp[per:]
        a.lines.extend(comp)
    vm.wait(["S0"])
    a("s_barrier")
    stamp(a, 1)
    rs_rd(0)
    vm.wait(["S1"])
    a("s_barrier")
    for k in range(9):
        a("s_waitcnt lgkmcnt(0)")
        dma = capture(lambda: (issueT(k + 3), issueF(k + 3))) if k >= 1 else []
        interleave(dma, capture(rs_do))
        if k >= 1: vm.issue("S%d" % (k + 3), 9)
        if k == 3:
            kv_dma(); vm.issue("KV", 5)
        if k < 8:
            rs_rd(k + 1)
        else:
            a("s_nop 7")
            a("v_lshrrev_b32 v10, 4, v2")
            a("v_lshrrev_b32 v11, 2, v3")
            a("v_and_b32 v12, 3, v3")
            for n in range(2):
                G_ = RA + 8 + 4 * n
                for r in range(1, 4):
                    a("v_cmp_eq_u32 vcc, %d, v12" % r)
                    a("s_nop 1")
                    a("v_cndmask_b32 v%d, v%d, v%d, vcc" % (G_, G_, G_ + r))
            ML = 112
            for n in range(2):
                emit_ln_finish(a, RA + 4 * n, RA + 8 + 4 * n, 576, ML + 2 * n, ML + 2 * n + 1, 120)
                a("v_mov_b32 v%d, v%d" % (117 + 2 * n, ML + 2 * n + 1))
                a("v_sub_f32 v%d, 0, v%d" % (116 + 2 * n, ML + 2 * n))
            a("s_lshl_b32 s35, s3, 8")
            a("v_lshlrev_b32 v13, 3, v3")
            a("v_add_u32 v12, s35, v13")
            a("v_cmp_eq_u32 vcc, v10, v11")
            a("s_and_saveexec_b64 s[36:37], vcc")
            for n in range(2):
                a("ds_write_b64 v12, %s offset:%d" % (vr(116 + 2 * n, 2), RST + 128 * n))
            a("s_mov_b64 exec, s[36:37]")
            a("s_cmp_lg_u32 s23, 0")
            a("s_cbranch_scc1 %s_nost1" % name)
            a("s_lshl_b32 s35, s22, 7")
            a("s_lshl_b32 s36, s3, 5")
            a("s_add_u32 s35, s35, s36")
            a("s_lshl_b32 s35, s35, 3")
            a("s_add_u32 s35, s35, 0x%x" % STATS1)
            a("v_mov_b32 v11, 0x7ffffff0")
            a("v_cndmask_b32 v13, v11, v13, vcc")
            for n in range(2):
                a("buffer_store_dwordx2 %s, v13, s[12:15], s35 offen offset:%d sc1" % (vr(ML + 2 * n, 2), 128 * n))
            a.label("%s_nost1" % name)
            a("v_and_b32 v0, 255, v0")
            lb_ = len(a.lines)
            a("s_mov_b32 s42, s2")
            emit_wot_loads(a, 100, 243, 720, 3)
            n_ = 0
            for i_ in range(lb_, len(a.lines)):
                if "buffer_load_dwordx4" in a.lines[i_]:
                    a.lines[i_] = "    v_mov_b32 v%d, v23" % (246 + n_); n_ += 1
            mma_addr(9 % R)
            a("s_mov_b32 s33, 0")
            a("s_setprio 0")
        vm.wait(["S%d" % (k + 2)], "lgkmcnt(0)" if k == 8 else "")
        if k < 8: a("s_barrier")
    a("s_branch %s_mma" % name)
    a.label("%s_A0" % name)
    emit_code_prefetch(a, name)
    a("s_load_dwordx4 s[64:67], s[0:1], 8")
    a("s_load_dwordx2 s[76:77], s[0:1], 24")
    a("s_load_dwordx2 s[78:79], s[0:1], 64")
    mma_setup()
    loader_setup(); loader_setup2()
    a("s_waitcnt lgkmcnt(0)")
    srds_main()
    srd(a, 68, 66, 2048 * 576 * 2)
    a("s_mov_b32 s88, s64"); a("s_mov_b32 s89, s65")
    srd(a, 64, 88, 2048 * 576 * 2)
    srd(a, 72, 76, 576 * 8)
    stamp_setup(a, 1); stamp(a, 0)
    def gran_addr():
        a("v_lshrrev_b32 v10, 4, v2")
        a("s_lshl_b32 s36, s25, 1")
        a("v_add_u32 v11, s36, v10")
        a("v_and_b32 v11, 3, v11")
        a("v_lshl_add_u32 v11, v11, 4, v3")
        a("v_lshlrev_b32 v94, 3, v11")
        a("s_lshl_b32 s59, s22, 15")
        a("s_lshl_b32 s36, s24, 9")
        a("s_add_u32 s59, s59, s36")
        a("s_add_u32 s59, s59, 0x%x" % STATS2)
        a("s_lshl_b32 s36, s23, 1")
        a("s_add_u32 s36, s36, s25")
        a("s_lshl_b32 s36, s36, 10")
        a("s_add_u32 s58, s36, s59")
    gran_addr()
    a("v_mov_b32 v12, 0"); a("v_mov_b32 v13, 0x80000000")
    a("buffer_store_dwordx2 v[12:13], v94, s[12:15], s58 offen sc1")
    a("s_lshl_b32 s36, s22, 4")
    a("s_add_u32 s36, s36, s23")
    a("s_lshl_b32 s36, s36, 8")
    a("s_add_u32 s97, s36, 0x%x" % ZFLG)
    a("v_mov_b32 v10, %d" % LC)
    a("v_mov_b32 v12, 0"); a("v_mov_b32 v13, 0")
    a("s_mov_b64 exec, 1")
    a("buffer_store_dword v12, v12, s[12:15], s97 offen sc1")
    a("buffer_store_dword v12, v12, s[12:15], s97 offen offset:%d sc1" % PFL)
    a("s_lshl_b32 s36, s2, 7")
    a("s_add_u32 s37, s36, 0x%x" % XFLG)
    a("s_add_u32 s36, s36, 0x%x" % CFLG)
    a("buffer_store_dword v12, v12, s[12:15], s37 offen sc1")
    a("buffer_store_dword v12, v12, s[12:15], s36 offen sc1")
    a("s_mov_b64 exec, -1")
    a("ds_write_b64 v10, v[12:13]")
    a("ds_write_b64 v10, v[12:13] offset:8")
    a("ds_write_b64 v10, v[12:13] offset:16")
    a("ds_write_b64 v10, v[12:13] offset:24")
    mma_addr(0)
    a("s_mov_b32 s33, 0")
    a("s_waitcnt lgkmcnt(0)")
    a("s_barrier")
    stamp(a, 1)
    a.label("%s_mma" % name)
    core.prime(0, core.reads(0, 0))
    trk.drain()
    nocs = [False]
    def mfmas(buf):
        L = []
        for ft in range(5):
            A = core.F(buf, ft)
            for tt in range(4 if ft < 4 else 2):
                c = core.accr(ft, tt); B = core.T(buf, tt)
                L.append(("v_mfma_f32_16x16x32_bf16 %s, %s, %s, %s" % (vr(c), vr(A), vr(B), vr(c)), list(range(A, A + 4)) + list(range(B, B + 4))))
            if not nocs[0]: L.append(("v_mfma_f32_16x16x32_bf16 %s, %s, %s, %s" % (vr(CS + 4 * ft), vr(A), vr(ONE), vr(CS + 4 * ft)), list(range(A, A + 4))))
        return L
    def phase(buf, pend):
        for (m, regs) in mfmas(buf):
            trk.need(regs)
            a(m)
            while pend:
                k, t = pend.pop(0)
                if k == "x":
                    a(t)
                    if t.startswith("s_"): continue
                else:
                    a(t[0]); trk.issue(t[1])
                break
        for k, t in pend:
            if k == "x": a(t)
            else: a(t[0]); trk.issue(t[1])
    def iteration(vw=True):
        if vw: a("s_waitcnt vmcnt(0)")
        a("s_barrier")
        rd = [("r", t) for t in core.reads(1, 1)]
        upd = ["s_add_u32 s27, s27, %d" % SLOT, "s_cmp_eq_u32 s27, %d" % (R * SLOT), "s_cselect_b32 s27, 0, s27"]
        tail = ["v_add_u32 v%d, s27, v%d" % (d, s_) for d, s_ in ((vTa[0], bTa[0]), (vF, bF), (vTb[0], bTb[0]), (vFh, bFh))]
        phase(0, rd[:1] + [("x", u) for u in upd] + rd[1:] + [("x", u) for u in tail])
        rd = [("r", t) for t in core.reads(0, 0)]
        tail = ["v_add_u32 v%d, s27, v%d" % (d, s_) for d, s_ in ((vTa[1], bTa[1]), (vTb[1], bTb[1]))] + ["s_add_u32 s33, s33, 1"]
        phase(1, rd + [("x", u) for u in tail])
    a.label("%s_cloop" % name)
    lb = len(a.lines); iteration(); st = copy.deepcopy(trk.out); del a.lines[lb:]; trk.out = copy.deepcopy(st)
    iteration()
    assert [sorted(x) for x in trk.out] == [sorted(x) for x in st]
    a("s_cmp_lt_u32 s33, 9")
    a("s_cbranch_scc1 %s_cloop" % name)
    trk.drain()
    stamp(a, 2)
    MR = 100; T = 72; ZP = 16
    def epi_in():
        gelu_consts(a)
        a("s_lshl_b32 s36, s24, 9")
        a("s_lshl_b32 s37, s25, 8")
        a("s_add_u32 s38, s36, s37")
        a("s_xor_b32 s37, s37, 256")
        a("s_add_u32 s39, s36, s37")
        a("v_lshlrev_b32 v10, 3, v3")
        a("v_add_u32 v11, s38, v10")
        a("ds_read_b64 %s, v11 offset:%d" % (vr(MR, 2), RST))
        a("ds_read_b64 %s, v11 offset:%d" % (vr(MR + 2, 2), RST + 128))
        a("v_add_u32 v11, s39, v10")
        a("ds_read_b64 %s, v11 offset:%d" % (vr(MR + 4, 2), RST))
        a("ds_read_b64 %s, v11 offset:%d" % (vr(MR + 6, 2), RST + 128))
        a("s_waitcnt lgkmcnt(0)")
    S = [108, 110, 52, 54]; Q = [109, 111, 53, 55]
    def gelu_ft(ft, stats):
        tts = range(4 if ft < 4 else 2)
        a("s_call_b64 s[34:35], %s_gsub%d" % (name, ft))
        if stats:
            for d in range(2):
                for tt in tts:
                    p = ZP + 2 * tidx(ft, tt) + d
                    a("v_dot2_f32_bf16 v%d, v%d, v%d, v%d" % (S[tt], p, ONE, S[tt]))
                    a("v_dot2_f32_bf16 v%d, v%d, v%d, v%d" % (Q[tt], p, p, Q[tt]))
    a("s_cmp_eq_u32 s98, 0")
    a("s_cbranch_scc1 %s_A1" % name)
    a("s_barrier")
    a("s_load_dwordx2 s[94:95], s[0:1], 80")
    a("s_load_dwordx2 s[92:93], s[0:1], 72")
    epi_in()
    srd(a, 76, 94, 2304 * 576 * 2)
    srd(a, 28, 92, 2048 * 2)
    for ft in range(5): gelu_ft(ft, False)
    Z1R = 200; BI = 236
    for r_ in range(36): a("v_mov_b32 v%d, v%d" % (Z1R + r_, ZP + r_))
    stamp(a, 3)
    a("s_mov_b32 s40, 0x%x" % WOT)
    for r in range(ACC, ACC + 72): a("v_mov_b32 v%d, 0" % r)
    a("v_lshrrev_b32 v10, 2, v2")
    a("v_lshlrev_b32 v10, 5, v10")
    a("v_and_b32 v11, 3, v2")
    a("v_lshl_add_u32 v10, v11, 3, v10")
    a("v_add_u32 v10, %d, v10" % (RB + TREG))
    a("s_mul_i32 s26, s25, 10240")
    a("v_add_u32 v%d, s26, v10" % bF)
    a("v_add_u32 v%d, 8192, v10" % bFh)
    core.FS = 32; core.FT = 2048
    mma_addr(0)
    a("s_mov_b32 s33, 0")
    stamp(a, 4)
    a("s_barrier")
    stamp(a, 5)
    core.prime(0, core.reads(0, 0))
    trk.drain()
    nocs[0] = True
    a.label("%s_gloop" % name)
    lb = len(a.lines); iteration(False); st = copy.deepcopy(trk.out); del a.lines[lb:]; trk.out = copy.deepcopy(st)
    iteration(False)
    assert [sorted(x) for x in trk.out] == [sorted(x) for x in st]
    a("s_cmp_lg_u32 s33, 2")
    a("s_cbranch_scc1 %s_ghkA" % name)
    for n in range(3):
        a("buffer_load_dwordx4 %s, v%d, s[76:79], 0 offen" % (vr(100 + 4 * n), 246 + n))
    a("s_lshl_b32 s36, s22, 7")
    a("s_lshl_b32 s37, s24, 6")
    a("s_add_u32 s36, s36, s37")
    a("v_lshlrev_b32 v11, 1, v3")
    a("s_lshl_b32 s37, s25, 6")
    a("s_lshl_b32 s38, s36, 1")
    a("s_add_u32 s39, s38, s37")
    a("s_xor_b32 s37, s37, 64")
    a("s_add_u32 s36, s38, s37")
    a("buffer_load_ushort v96, v11, s[28:31], s39 offen")
    a("buffer_load_ushort v97, v11, s[28:31], s39 offen offset:32")
    a("buffer_load_ushort v98, v11, s[28:31], s36 offen")
    a("buffer_load_ushort v99, v11, s[28:31], s36 offen offset:32")
    a.label("%s_ghkA" % name)
    a("s_cmp_lg_u32 s33, 6")
    a("s_cbranch_scc1 %s_ghk0" % name)
    a("s_waitcnt vmcnt(0)")
    for n in range(3):
        a("buffer_store_dwordx4 %s, v%d, s[12:15], s40 offen sc1" % (vr(100 + 4 * n), 243 + n))
    for tt in range(4): a("v_lshlrev_b32 v%d, 16, v%d" % (BI + 2 * tt, 96 + tt))
    a.label("%s_ghk0" % name)
    a("s_cmp_lg_u32 s33, 9")
    a("s_cbranch_scc1 %s_ghk" % name)
    a("s_waitcnt vmcnt(0)")
    a("v_mov_b32 v10, %d" % (LC + 8))
    a("v_mov_b32 v11, 1")
    a("s_mov_b64 exec, 1")
    a("ds_add_rtn_u32 v12, v10, v11")
    a("s_waitcnt lgkmcnt(0)")
    a("v_readfirstlane_b32 s36, v12")
    a("s_cmp_lg_u32 s36, 3")
    a("s_cbranch_scc1 %s_nokvs" % name)
    a("s_lshl_b32 s36, s2, 7")
    a("s_add_u32 s36, s36, 0x%x" % XFLG)
    a("v_mov_b32 v10, 0")
    a("buffer_store_dword v11, v10, s[12:15], s36 offen sc1")
    a.label("%s_nokvs" % name)
    a("s_mov_b64 exec, -1")
    a.label("%s_ghk" % name)
    a("s_cmp_lt_u32 s33, 32")
    a("s_cbranch_scc1 %s_gloop" % name)
    trk.drain()
    stamp(a, 6)
    G3.emit_k2_epilogue2(a, core, Z1R, BI, " sc1")
    stamp(a, 7)
    a("s_setprio 3")
    a("s_lshl_b32 s36, s22, 4")
    a("s_add_u32 s36, s36, s23")
    a("s_lshl_b32 s36, s36, 8")
    a("s_add_u32 s97, s36, 0x%x" % (ZFLG + PFL))
    c_common()
    a("v_lshlrev_b32 v14, 4, v2")
    a("s_mul_i32 s26, s22, %d" % (36 * 8192))
    a("s_lshl_b32 s24, s3, 12")
    a("s_add_u32 s26, s26, s24")
    a("s_add_u32 s26, s26, 0x%x" % PIMG)
    a("s_mul_i32 s27, s23, %d" % (18 * 20480))
    a("s_mul_i32 s25, s3, 5120")
    a("s_add_u32 s27, s27, s25")
    a("s_add_u32 s27, s27, 0x%x" % WOT)
    a("s_add_u32 s25, s25, %d" % CTREG)
    a("v_and_b32 v28, 15, v2")
    a("v_lshlrev_b32 v30, 7, v2")
    a("v_mov_b32 v26, %d" % LC)
    a("v_mov_b32 v27, 1")
    a("s_waitcnt vmcnt(0)")
    a("s_mov_b64 exec, 1")
    a("ds_add_rtn_u32 v29, v26, v27 offset:16")
    a("s_waitcnt lgkmcnt(0)")
    a("v_readfirstlane_b32 s36, v29")
    a("s_cmp_lg_u32 s36, 3")
    a("s_cbranch_scc1 %s_nops" % name)
    a("v_mov_b32 v29, 0")
    a("buffer_store_dword v27, v29, s[12:15], s97 offen sc1")
    a.label("%s_nops" % name)
    a("s_mov_b64 exec, -1")
    a("s_mov_b32 s34, 0")
    a.label("%s_cw" % name)
    a("ds_read_b32 v29, v26 offset:16")
    a("s_add_u32 s34, s34, 1")
    a("s_waitcnt lgkmcnt(0)")
    a("v_readfirstlane_b32 s36, v29")
    a("s_cmp_gt_u32 s34, %d" % (SPIN_MAX * 20))
    a("s_cbranch_scc1 %s_cwx" % name)
    a("s_cmp_ge_u32 s36, 4")
    a("s_cbranch_scc1 %s_cwx" % name)
    a("s_sleep 1")
    a("s_branch %s_cw" % name)
    a.label("%s_cwx" % name)
    def cF(off, soff):
        a("s_add_u32 s36, s25, %s" % off)
        a("s_mov_b32 m0, s36")
        a("s_add_u32 s37, %s, 4096" % soff)
        for n in range(4):
            a("buffer_load_dwordx4 v14, s[12:15], %s offen offset:%d sc1 lds" % (soff, n * 1024))
        a("s_add_u32 s36, s36, 4096")
        a("s_mov_b32 m0, s36")
        a("s_nop 0")
        a("buffer_load_dwordx4 v14, s[12:15], s37 offen sc1 lds")
    def cT(off, soff):
        a("s_add_u32 s35, s24, %s" % off)
        a("s_mov_b32 m0, s35")
        a("s_nop 0")
        for n in range(4):
            a("buffer_load_dwordx4 v14, s[12:15], %s offen offset:%d sc1 lds" % (soff, n * 1024))
    a("s_add_u32 s38, s27, 20480")
    cF(str(C0), "s27"); cF(str(C0 + CSL), "s38")
    a("s_mov_b32 s34, 0")
    a("s_cmp_lg_u32 s3, 0")
    a("s_cbranch_scc1 %s_cpl" % name)
    a("v_lshlrev_b32 v28, 8, v28")
    a("s_lshr_b32 s39, s22, 1")
    a("s_lshl_b32 s39, s39, 12")
    a("s_add_u32 s39, s39, 0x%x" % (ZFLG + PFL))
    a.label("%s_cpz" % name)
    a("buffer_load_dword v29, v28, s[12:15], s39 offen sc1")
    a("s_add_u32 s34, s34, 1")
    a("s_waitcnt vmcnt(0)")
    a("v_cmp_ne_u32 vcc, 1, v29")
    a("s_cmp_gt_u32 s34, %d" % SPIN_MAX)
    a("s_cbranch_scc1 %s_cpzx" % name)
    a("s_cbranch_vccz %s_cpzx" % name)
    a("s_sleep 8")
    a("s_branch %s_cpz" % name)
    a.label("%s_cpzx" % name)
    a("ds_write_b32 v26, v27 offset:24")
    a("s_branch %s_cgo" % name)
    a.label("%s_cpl" % name)
    a("ds_read_b32 v29, v26 offset:24")
    a("s_add_u32 s34, s34, 1")
    a("s_waitcnt lgkmcnt(0)")
    a("v_readfirstlane_b32 s36, v29")
    a("s_cmp_gt_u32 s34, %d" % (SPIN_MAX * 20))
    a("s_cbranch_scc1 %s_cgo" % name)
    a("s_cmp_lg_u32 s36, 0")
    a("s_cbranch_scc1 %s_cgo" % name)
    a("s_sleep 2")
    a("s_branch %s_cpl" % name)
    a.label("%s_cgo" % name)
    stamp(a, 8)
    a("s_add_u32 s38, s26, 16384")
    cT(str(C0), "s26"); cT(str(C0 + CSL), "s38")
    a("s_add_u32 s26, s26, 32768")
    a("s_add_u32 s27, s27, 40960")
    a("s_mov_b32 s33, %d" % RB)
    def cissue():
        cT("s33", "s26"); cF("s33", "s27")
        a("s_add_u32 s26, s26, 16384")
        a("s_add_u32 s27, s27, 20480")
        a("s_add_u32 s33, s33, %d" % CSL)
        a("s_cmp_eq_u32 s33, %d" % CW)
        a("s_cselect_b32 s33, %d, s33" % RB)
    a("s_waitcnt vmcnt(4)")
    a("s_barrier")
    cissue(); cissue()
    a("s_waitcnt vmcnt(18)")
    a("s_barrier")
    a("s_mov_b32 s34, 0")
    a.label("%s_clloop" % name)
    cissue()
    a("s_lshl_b32 s38, s3, 8")
    a("s_add_u32 s38, s38, s34")
    a("s_cmp_eq_u32 s38, 13")
    a("s_cbranch_scc1 %s_cyc" % name)
    a("s_cmp_lg_u32 s38, 10")
    a("s_cbranch_scc1 %s_cl1" % name)
    a("s_mov_b32 s38, 0x%x" % (CFLG + 0))
    a("buffer_load_dword v32, v30, s[12:15], s38 offen sc1")
    a("s_mov_b32 s38, 0x%x" % (CFLG + 8192))
    a("buffer_load_dword v33, v30, s[12:15], s38 offen sc1")
    a("s_mov_b32 s38, 0x%x" % (CFLG + 16384))
    a("buffer_load_dword v34, v30, s[12:15], s38 offen sc1")
    a("s_mov_b32 s38, 0x%x" % (CFLG + 24576))
    a("buffer_load_dword v35, v30, s[12:15], s38 offen sc1")
    a("s_waitcnt vmcnt(22)")
    a("s_branch %s_cl2" % name)
    a.label("%s_cl1" % name)
    a("s_waitcnt vmcnt(18)")
    a.label("%s_cl2" % name)
    a("s_barrier")
    a("s_add_u32 s34, s34, 1")
    a("s_cmp_lt_u32 s34, 14")
    a("s_cbranch_scc1 %s_clloop" % name)
    a("s_branch %s_cyx" % name)
    a.label("%s_cyc" % name)
    a("s_mov_b32 s39, 0")
    a.label("%s_cy" % name)
    a("v_and_b32 v32, v32, v33")
    a("v_and_b32 v34, v34, v35")
    a("v_and_b32 v32, v32, v34")
    a("v_cmp_eq_u32 vcc, 1, v32")
    a("s_nop 1")
    a("v_cndmask_b32 v32, 0, 16, vcc")
    a("v_cmp_gt_u32 vcc, 16, v32")
    a("s_add_u32 s39, s39, 1")
    a("s_cmp_gt_u32 s39, %d" % SPIN_MAX)
    a("s_cbranch_scc1 %s_cl1" % name)
    a("s_cbranch_vccz %s_cl1" % name)
    a("s_sleep 32")
    a("s_mov_b32 s38, 0x%x" % (CFLG + 0))
    a("buffer_load_dword v32, v30, s[12:15], s38 offen sc1")
    a("s_mov_b32 s38, 0x%x" % (CFLG + 8192))
    a("buffer_load_dword v33, v30, s[12:15], s38 offen sc1")
    a("s_mov_b32 s38, 0x%x" % (CFLG + 16384))
    a("buffer_load_dword v34, v30, s[12:15], s38 offen sc1")
    a("s_mov_b32 s38, 0x%x" % (CFLG + 24576))
    a("buffer_load_dword v35, v30, s[12:15], s38 offen sc1")
    a("s_waitcnt vmcnt(0)")
    a("s_branch %s_cy" % name)
    a.label("%s_cyx" % name)
    a("v_lshrrev_b32 v3, 3, v2")
    a("v_and_b32 v4, 7, v2")
    a("v_lshlrev_b32 v4, 4, v4")
    a("s_mul_i32 s33, s52, 144")
    a("s_mul_i32 s34, s53, 80")
    a("s_lshl_b32 s35, s22, 7")
    a("s_add_u32 s35, s35, 0x%x" % YT)
    for n in range(3):
        a("s_add_u32 s36, s3, %d" % (4 * n))
        if n == 2: a("s_min_u32 s36, s36, 9")
        a("s_lshl_b32 s37, s36, 3")
        a("s_add_u32 s38, s37, s33")
        if n < 2: a("s_add_u32 s38, s38, s34")
        a("v_add_u32 v5, s38, v3")
        a("v_lshl_add_u32 v5, v5, 12, v4")
        a("s_lshl_b32 s36, s36, 10")
        a("s_add_u32 s36, s36, %d" % YOFF)
        a("s_mov_b32 m0, s36")
        a("s_nop 0")
        a("buffer_load_dwordx4 v5, s[12:15], s35 offen sc1 lds")
    fin_loads()
    a("s_waitcnt vmcnt(%d)" % (9 + 7))
    a("s_barrier")
    a("s_waitcnt vmcnt(7)")
    a("s_barrier")
    a("s_barrier")
    a("s_setprio 0")
    a("s_waitcnt vmcnt(0)")
    a("s_branch %s_cfin" % name)
    a.label("%s_A1" % name)
    a("s_setprio 2")
    vmA = VmTracker(a)
    PB = 132
    def aux_head():
        epi_in()
        for tt in range(4):
            a("v_mov_b32 v%d, 0" % S[tt]); a("v_mov_b32 v%d, 0" % Q[tt])
    def aux_pub():
        a("s_nop 2")
        emit_xg_reduce(a, S + Q, 72)
        a("v_lshrrev_b32 v10, 4, v2")
        for g in range(1, 4):
            a("v_cmp_eq_u32 vcc, %d, v10" % g)
            a("s_nop 1")
            a("v_cndmask_b32 v%d, v%d, v%d, vcc" % (S[0], S[0], S[g]))
            a("v_cndmask_b32 v%d, v%d, v%d, vcc" % (Q[0], Q[0], Q[g]))
        a("v_and_b32 v%d, 0x7fffffff, v%d" % (Q[0], Q[0]))
        a("buffer_store_dwordx2 v[%d:%d], v94, s[12:15], s58 offen sc1" % (S[0], Q[0]))
    chunks = [capture(aux_head) + capture(gelu_ft, 0, True), capture(gelu_ft, 1, True), capture(gelu_ft, 2, True),
              capture(gelu_ft, 3, True), capture(gelu_ft, 4, True) + capture(aux_pub)]
    def shifted(lines, off):
        out = []
        for l in lines:
            l = re.sub(r"v\[(\d+):(\d+)\]", lambda m: "v[%d:%d]" % (int(m.group(1)) + off, int(m.group(2)) + off), l)
            l = re.sub(r"\bv(\d+)\b", lambda m: "v%d" % (int(m.group(1)) + off), l)
            out.append(l)
        return out
    def kv_pass():
        for n in range(11): a("ds_read_b32 v%d, v254 offset:%d" % (128 + n, 144 * n))
        a("s_waitcnt lgkmcnt(4)")
        for n in range(8): a("ds_read_b32 v%d, v254 offset:%d" % (144 + n, 10240 + 144 * n))
        for n in range(4): a("v_mov_b32 v%d, v%d" % (156 + n, 248 + n))
        a("v_mov_b32 v168, v252"); a("v_mov_b32 v169, v253")
        a("s_waitcnt lgkmcnt(0)")
        a.lines.extend(shifted(capture(lambda: emit_kv_compute(a, wait=False, store=False)), 112))
        a("s_mov_b32 s41, 0x%x" % KVT)
        a("buffer_store_dwordx4 v[232:235], v124, s[12:15], s41 offen sc1")
        a("buffer_store_dwordx4 v[236:239], v125, s[12:15], s41 offen sc1")
    kvl = capture(kv_pass); nk = len(kvl)
    for k in range(9, 18):
        a("s_barrier")
        if k == 9:
            a("s_cmp_lg_u32 s3, 0")
            a("s_cbranch_scc1 %s_nosig" % name)
            a("v_mov_b32 v10, 1")
            a("s_lshl_b32 s36, s22, 2")
            a("v_mov_b32 v11, s36")
            a("s_mov_b64 exec, 1")
            a("buffer_atomic_add v10, v11, s[60:63], 0 offen sc1")
            a("s_mov_b64 exec, -1")
            a.label("%s_nosig" % name)
        g = k + 3
        dma = capture(lambda: (issueT(g), issueF(g))) if g < 18 else []
        comp = chunks[k - 9] if k - 9 < len(chunks) else []
        a.lines.extend(dma); a.lines.extend(comp)
        if k == 13: vmA.issue("pub", 1)
        if g < 18: vmA.issue("S%d" % g, 9)
        if k == 13:
            a("v_lshrrev_b32 v1, 3, v0")
            a("v_and_b32 v10, 7, v0")
            a("s_lshr_b32 s38, s2, 3")
            a("s_lshl_b32 s38, s38, 6")
            a("v_lshl_add_u32 v252, v10, 3, s38")
            a("s_and_b32 s39, s2, 7")
            a("s_mul_i32 s39, s39, 144")
            a("v_lshl_add_u32 v253, v1, 2, s39")
            a("v_lshlrev_b32 v11, 2, v253")
            a("buffer_load_dwordx4 v[248:251], v11, s[72:75], 0 offen")
            a("buffer_load_dwordx4 v[244:247], v11, s[72:75], 0 offen offset:512")
            vmA.issue("sk", 2)
            a("v_mul_u32_u24 v254, 1152, v10")
            a("v_lshl_add_u32 v254, v1, 2, v254")
            a("v_add_u32 v254, %d, v254" % KVL)
        if k == 15:
            vmA.wait(["sk"])
            a.lines.extend(kvl[:nk // 3])
        if k == 16: a.lines.extend(kvl[nk // 3:2 * nk // 3])
        if k == 17: a.lines.extend(kvl[2 * nk // 3:])
        if k == 14:
            srd(a, 92, 78, 2048 * 2048 * 2)
            a("v_lshrrev_b32 v10, 4, v2")
            a("v_lshlrev_b32 v10, 12, v10")
            a("v_lshl_add_u32 v10, v3, 4, v10")
            a("s_lshl_b32 s40, s22, 7")
            a("s_lshl_b32 s36, s3, 5")
            a("s_add_u32 s40, s40, s36")
            a("s_lshl_b32 s40, s40, 12")
            a("s_lshl_b32 s36, s23, 8")
            a("s_add_u32 s40, s40, s36")
            for n in range(8):
                a("buffer_load_dwordx4 v[240:243], v10, s[92:95], s40 offen")
                if n < 7: a("s_add_u32 s40, s40, 16384")
            vmA.issue("wp", 8)
            a("s_lshl_b32 s36, s22, 2")
            a("v_mov_b32 v97, s36")
            a("buffer_load_dword v96, v97, s[60:63], 0 offen sc1"); vmA.issue("cnt", 1)
        if k + 2 < 18 and k + 2 >= 12:
            vmA.wait(["S%d" % (k + 2)])
    a("s_barrier")
    stamp(a, 3)
    a("s_load_dwordx4 s[88:91], s[0:1], 32")
    Z2 = ZP
    a("v_and_b32 v4, 31, v2")
    a("v_lshlrev_b32 v4, 4, v4")
    a("v_lshrrev_b32 v10, 5, v2")
    a("v_lshl_add_u32 v4, v10, 10, v4")
    for q in range(8): a("s_add_u32 s%d, s59, %d" % ((52, 53, 42, 43, 40, 41, 38, 39)[q], 4096 * q))
    GB = 128
    def gather():
        for q in range(16):
            a("buffer_load_dwordx4 %s, v4, s[12:15], s%d offen offset:%d sc1" % (vr(GB + 4 * q), (52, 53, 42, 43, 40, 41, 38, 39)[q >> 1], 2048 * (q & 1)))
    a("s_waitcnt vmcnt(0)")
    gather()
    a("s_mov_b32 s33, 0")
    a("s_waitcnt vmcnt(0)")
    a.label("%s_chk" % name)
    a("v_subrev_u32 v11, 16, v96")
    for q in range(16):
        a("v_or3_b32 v11, v11, v%d, v%d" % (GB + 4 * q + 1, GB + 4 * q + 3))
    a("v_cmp_gt_i32 vcc, 0, v11")
    a("s_add_u32 s33, s33, 1")
    a("s_cmp_gt_u32 s33, %d" % SPIN_MAX)
    a("s_cbranch_scc1 %s_ok" % name)
    a("s_cbranch_vccz %s_ok" % name)
    a("s_sleep 32")
    a("buffer_load_dword v96, v97, s[60:63], 0 offen sc1")
    a("s_waitcnt vmcnt(0)")
    gather()
    a("s_waitcnt vmcnt(0)")
    a("s_branch %s_chk" % name)
    a.label("%s_ok" % name)
    stamp(a, 5)
    for st_ in (32, 16, 8, 4):
        for q in range(0, st_, 2):
            a("v_pk_add_f32 %s, %s, %s" % (vr(GB + q, 2), vr(GB + q, 2), vr(GB + q + st_, 2)))
    for e in range(4): a("v_mov_b32 v%d, v%d" % (72 + e, GB + e))
    a("s_nop 1")
    for e in range(4): a("v_permlane32_swap_b32 v%d, v%d" % (GB + e, 72 + e))
    a("s_nop 1")
    for e in range(4): a("v_add_f32 v%d, v%d, v%d" % (GB + e, GB + e, 72 + e))
    for h in range(2):
        emit_ln_finish(a, GB + 2 * h, GB + 2 * h + 1, 2304, GB + 8 + h, GB + 4 + 2 * h, GB + 12)
        a("v_mul_f32 v%d, -v%d, v%d" % (GB + 5 + 2 * h, GB + 8 + h, GB + 4 + 2 * h))
    a("v_and_b32 v10, 31, v2")
    a("s_lshl_b32 s36, s24, 9")
    a("v_lshl_add_u32 v10, v10, 4, s36")
    a("ds_write_b128 v10, %s offset:1024" % vr(GB + 4))
    a("s_lshl_b32 s37, s25, 8")
    a("s_add_u32 s38, s36, s37")
    a("s_xor_b32 s37, s37, 256")
    a("s_add_u32 s39, s36, s37")
    a("v_lshlrev_b32 v10, 3, v3")
    a("v_add_u32 v11, s38, v10")
    a("v_add_u32 v10, s39, v10")
    a("s_waitcnt lgkmcnt(0)")
    a("ds_read_b64 %s, v11 offset:1024" % vr(MR, 2))
    a("ds_read_b64 %s, v11 offset:1152" % vr(MR + 2, 2))
    a("ds_read_b64 %s, v10 offset:1024" % vr(MR + 4, 2))
    a("ds_read_b64 %s, v10 offset:1152" % vr(MR + 6, 2))
    a("v_lshrrev_b32 v10, 4, v2")
    a("v_lshrrev_b32 v11, 2, v2"); a("v_and_b32 v11, 1, v11"); a("v_lshlrev_b32 v11, 4, v11")
    a("v_lshrrev_b32 v5, 3, v2"); a("v_and_b32 v5, 1, v5"); a("v_lshl_add_u32 v11, v5, 2, v11")
    a("v_and_b32 v5, 3, v2"); a("v_add_u32 v11, v11, v5")
    a("v_and_b32 v5, 1, v10")
    a("v_lshl_add_u32 v11, v5, 3, v11")
    a("v_lshlrev_b32 v11, 5, v11")
    a("v_lshrrev_b32 v5, 1, v10")
    a("v_lshl_add_u32 v6, v5, 4, v11")
    a("s_lshl_b32 s33, s23, 5")
    a("s_lshl_b32 s36, s22, 1")
    a("s_add_u32 s33, s33, s36")
    a("s_add_u32 s33, s33, s24")
    a("s_mul_i32 s33, s33, 18432")
    if ZIMG: a("s_add_u32 s33, s33, 0x%x" % ZIMG)
    a("s_lshl_b32 s36, s25, 10")
    a("s_add_u32 s39, s33, s36")
    a("s_add_u32 s39, s39, 8192")
    a("s_mul_i32 s38, s25, 10240")
    a("s_add_u32 s33, s33, s38")
    a("s_add_u32 s37, s33, s36")
    a("s_xor_b32 s36, s36, 1024")
    a("s_add_u32 s38, s33, s36")
    a("s_add_u32 s33, s37, 4096")
    a("s_add_u32 s36, s38, 4096")
    def norm_pair(nA, ttA, nB, ttB, O):
        for q, (n, tt) in enumerate(((nA, ttA), (nB, ttB))):
            for d in range(2):
                z = Z2 + 2 * n + d; t = T + 4 * q + 2 * d
                a("v_lshlrev_b32 v%d, 16, v%d" % (t, z))
                a("v_and_b32 v%d, 0xffff0000, v%d" % (t + 1, z))
        for q, (n, tt) in enumerate(((nA, ttA), (nB, ttB))):
            for d in range(2):
                t = T + 4 * q + 2 * d
                a("v_pk_fma_f32 %s, %s, %s, %s op_sel:[0,0,1] op_sel_hi:[1,0,1]" % (vr(t, 2), vr(t, 2), vr(MR + 2 * tt, 2), vr(MR + 2 * tt, 2)))
        for q in range(2):
            for d in range(2):
                t = T + 4 * q + 2 * d
                a("v_cvt_pk_bf16_f32 v%d, v%d, v%d" % (O + 2 * q + d, t, t + 1))
        a("s_nop 1")
        a("v_permlane16_swap_b32 v%d, v%d" % (O, O + 2))
        a("v_permlane16_swap_b32 v%d, v%d" % (O + 1, O + 3))
    a("s_waitcnt lgkmcnt(0)")
    cnt = 0
    for ft in range(4):
        for pp in range(2):
            O = 200 + 4 * cnt; cnt += 1
            norm_pair(tidx(ft, 2 * pp), 2 * pp, tidx(ft, 2 * pp + 1), 2 * pp + 1, O)
            a("s_nop 0")
            a("buffer_store_dwordx4 %s, v6, s[12:15], s%d offen offset:%d sc1" % (vr(O), ((37, 38), (33, 36))[ft >> 1][pp], (ft & 1) * 2048))
    O = 200 + 4 * cnt
    norm_pair(16, 0, 17, 1, O)
    a("s_nop 0")
    a("buffer_store_dwordx4 %s, v6, s[12:15], s39 offen sc1" % vr(O))
    stamp(a, 6)
    a("s_setprio 3")
    srd(a, 8, 78, 2048 * 2048 * 2)
    a("v_lshrrev_b32 v3, 3, v2")
    a("s_lshl_b32 s24, s3, 5")
    a("v_add_u32 v3, s24, v3")
    a("v_and_b32 v4, 7, v2")
    a("v_lshrrev_b32 v6, 4, v2")
    a("v_xor_b32 v6, v6, v4")
    a("v_lshlrev_b32 v6, 4, v6")
    a("v_lshl_add_u32 v10, v3, 12, v6")
    a("v_xor_b32 v11, 64, v10")
    a("v_add_u32 v11, %d, v11" % (32768 - 1024))
    a("v_add_u32 v12, %d, v10" % (2 * (32768 - 1024)))
    a("v_add_u32 v13, %d, v11" % (2 * (32768 - 1024)))
    a("v_lshlrev_b32 v14, 4, v2")
    a("s_lshl_b32 s26, s22, 19")
    a("s_mul_i32 s27, s23, %d" % (32 * 18432))
    a("s_lshl_b32 s24, s3, 12")
    a("s_add_u32 s27, s27, s24")
    if ZIMG: a("s_add_u32 s27, s27, 0x%x" % ZIMG)
    a("s_lshl_b32 s25, s3, 9")
    a("s_sub_u32 s32, s25, s24")
    a("s_add_u32 s32, s32, 16384")
    a("s_add_u32 s24, s24, %d" % RB)
    a("s_waitcnt vmcnt(0) lgkmcnt(0)")
    a("v_mov_b32 v26, %d" % LC)
    a("v_mov_b32 v27, 1")
    a("s_mov_b64 exec, 1")
    a("ds_add_rtn_u32 v28, v26, v27")
    a("s_waitcnt lgkmcnt(0)")
    a("v_readfirstlane_b32 s36, v28")
    a("s_cmp_lg_u32 s36, 3")
    a("s_cbranch_scc1 %s_nozs" % name)
    a("v_mov_b32 v28, 0")
    a("buffer_store_dword v27, v28, s[12:15], s97 offen sc1")
    a.label("%s_nozs" % name)
    a("s_mov_b64 exec, -1")
    stamp(a, 7)
    srd(a, 16, 88, 576 * 2048 * 2)
    srd(a, 84, 90, 576 * 2)
    for g in range(4):
        a("s_add_u32 s35, s24, %d" % (g * SLOT))
        a("s_mov_b32 m0, s35")
        a("s_add_u32 s36, s26, %d" % (128 * g))
        for n in range(4):
            a("buffer_load_dwordx4 v%d, s[8:11], s36 offen offset:%d lds" % (10 + n, n * 1024))
    a("s_mov_b32 s34, 0")
    a("s_cmp_lg_u32 s3, 0")
    a("s_cbranch_scc1 %s_pl" % name)
    a("v_and_b32 v28, 15, v2")
    a("v_lshlrev_b32 v30, 2, v28")
    a("v_lshlrev_b32 v28, 12, v28")
    a("s_lshl_b32 s52, s23, 8")
    a("s_add_u32 s52, s52, 0x%x" % ZFLG)
    a.label("%s_pz0" % name)
    a("buffer_load_dword v31, v30, s[60:63], 0 offen sc1")
    a("s_add_u32 s34, s34, 1")
    a("s_waitcnt vmcnt(0)")
    a("v_cmp_gt_u32 vcc, 16, v31")
    a("s_cmp_gt_u32 s34, %d" % SPIN_MAX)
    a("s_cbranch_scc1 %s_pz" % name)
    a("s_cbranch_vccz %s_pz" % name)
    a("s_sleep 32")
    a("s_branch %s_pz0" % name)
    a.label("%s_pz" % name)
    a("buffer_load_dword v29, v28, s[12:15], s52 offen sc1")
    a("s_add_u32 s34, s34, 1")
    a("s_waitcnt vmcnt(0)")
    a("v_cmp_ne_u32 vcc, 1, v29")
    a("s_cmp_gt_u32 s34, %d" % SPIN_MAX)
    a("s_cbranch_scc1 %s_pzx" % name)
    a("s_cbranch_vccz %s_pzx" % name)
    a("s_sleep 8")
    a("s_branch %s_pz" % name)
    a.label("%s_pzx" % name)
    a("v_mov_b32 v27, 1")
    a("ds_write_b32 v26, v27 offset:4")
    a("s_branch %s_pgo" % name)
    a.label("%s_pl" % name)
    a("s_cmp_lg_u32 s3, 1")
    a("s_cbranch_scc1 %s_pl2" % name)
    a("v_subrev_u32 v253, 32, v253")
    a("v_subrev_u32 v254, 32, v254")
    a("v_add_u32 v253, 128, v253")
    a("v_add_u32 v254, 128, v254")
    a("v_lshlrev_b32 v1, 2, v253")
    a("buffer_load_dwordx4 v[248:251], v1, s[72:75], 0 offen")
    a("s_waitcnt vmcnt(0)")
    a("s_mov_b64 exec, 0xffffffff")
    a.lines.extend(kvl)
    a("s_mov_b64 exec, -1")
    a.label("%s_pl2" % name)
    a("ds_read_b32 v27, v26 offset:4")
    a("s_add_u32 s34, s34, 1")
    a("s_waitcnt lgkmcnt(0)")
    a("v_readfirstlane_b32 s36, v27")
    a("s_cmp_gt_u32 s34, %d" % (SPIN_MAX * 20))
    a("s_cbranch_scc1 %s_pgo" % name)
    a("s_cmp_lg_u32 s36, 0")
    a("s_cbranch_scc1 %s_pgo" % name)
    a("s_sleep 2")
    a("s_branch %s_pl2" % name)
    a.label("%s_pgo" % name)
    stamp(a, 8)
    for g in range(4):
        a("s_add_u32 s35, s24, %d" % (g * SLOT + TREG))
        a("s_mov_b32 m0, s35")
        a("s_add_u32 s36, s27, %d" % (18432 * g))
        a("s_add_u32 s37, s36, s32")
        for n in range(4):
            a("buffer_load_dwordx4 v14, s[12:15], s36 offen offset:%d sc1 lds" % (n * 1024))
        a("s_add_u32 s35, s35, s32")
        a("s_mov_b32 m0, s35")
        a("s_mov_b64 exec, 0xffffffff")
        a("buffer_load_dwordx4 v14, s[12:15], s37 offen sc1 lds")
        a("s_mov_b64 exec, -1")
    a("s_add_u32 s26, s26, 512")
    a("s_add_u32 s27, s27, %d" % (4 * 18432))
    a("s_mov_b32 s33, 0")
    a("s_lshl_b32 s43, s2, 2")
    a("s_add_u32 s43, s43, s3")
    a("s_and_b32 s53, s43, 1")
    a("s_sub_u32 s36, s43, 448")
    a("s_lshr_b32 s37, s43, 1")
    a("s_cmp_ge_u32 s43, 896")
    a("s_cselect_b32 s43, s36, s37")
    a("s_cselect_b32 s53, 2, s53")
    a("s_waitcnt vmcnt(15)")
    a("s_barrier")
    a("s_waitcnt vmcnt(10)")
    a("s_barrier")
    a("s_waitcnt vmcnt(5)")
    a("s_barrier")
    a("s_mov_b32 s34, 4")
    def issue2():
        a("s_add_u32 s35, s33, s24")
        a("s_mov_b32 m0, s35")
        a("s_add_u32 s36, s35, %d" % TREG)
        for n in range(4):
            a("buffer_load_dwordx4 v%d, s[8:11], s26 offen offset:%d lds" % (10 + n, n * 1024))
        a("s_mov_b32 m0, s36")
        a("s_add_u32 s37, s27, s32")
        for n in range(4):
            a("buffer_load_dwordx4 v14, s[12:15], s27 offen offset:%d sc1 lds" % (n * 1024))
        a("s_add_u32 s36, s36, s32")
        a("s_mov_b32 m0, s36")
        a("s_mov_b64 exec, 0xffffffff")
        a("buffer_load_dwordx4 v14, s[12:15], s37 offen sc1 lds")
        a("s_mov_b64 exec, -1")
        a("s_add_u32 s26, s26, 128")
        a("s_add_u32 s27, s27, 18432")
        a("s_add_u32 s33, s33, %d" % SLOT)
        a("s_cmp_eq_u32 s33, %d" % (R * SLOT))
        a("s_cselect_b32 s33, 0, s33")
    a.label("%s_lloop" % name)
    issue2()
    a("s_cmp_eq_u32 s34, 18")
    a("s_cbranch_scc1 %s_hk1" % name)
    a("s_cmp_eq_u32 s34, 21")
    a("s_cbranch_scc1 %s_hk2" % name)
    a("s_cmp_eq_u32 s34, 22")
    a("s_cbranch_scc1 %s_hk2g" % name)
    a.label("%s_lw9" % name)
    a("s_waitcnt vmcnt(9)")
    a.label("%s_lcont" % name)
    a("s_barrier")
    a("s_add_u32 s34, s34, 1")
    a("s_cmp_lt_u32 s34, 32")
    a("s_cbranch_scc1 %s_lloop" % name)
    a("s_branch %s_ldone" % name)
    a.label("%s_hk1" % name)
    a("s_cmp_lg_u32 s3, 0")
    a("s_cbranch_scc1 %s_lw9" % name)
    a("v_lshlrev_b32 v28, 7, v2")
    a("s_mov_b32 s52, 0x%x" % (XFLG + 0))
    a("buffer_load_dword v32, v28, s[12:15], s52 offen sc1")
    a("s_mov_b32 s52, 0x%x" % (XFLG + 8192))
    a("buffer_load_dword v33, v28, s[12:15], s52 offen sc1")
    a("s_mov_b32 s52, 0x%x" % (XFLG + 16384))
    a("buffer_load_dword v34, v28, s[12:15], s52 offen sc1")
    a("s_mov_b32 s52, 0x%x" % (XFLG + 24576))
    a("buffer_load_dword v35, v28, s[12:15], s52 offen sc1")
    a("s_waitcnt vmcnt(13)")
    a("s_branch %s_lcont" % name)
    a.label("%s_hk2" % name)
    a("s_cmp_lg_u32 s3, 0")
    a("s_cbranch_scc1 %s_lw9" % name)
    a("s_mov_b32 s52, 0")
    a.label("%s_hk2l" % name)
    a("v_and_b32 v32, v32, v33")
    a("v_and_b32 v34, v34, v35")
    a("v_and_b32 v32, v32, v34")
    a("v_cmp_eq_u32 vcc, 1, v32")
    a("s_nop 1")
    a("v_cndmask_b32 v32, 0, 16, vcc")
    a("v_cmp_gt_u32 vcc, 16, v32")
    a("s_add_u32 s52, s52, 1")
    a("s_cmp_gt_u32 s52, %d" % SPIN_MAX)
    a("s_cbranch_scc1 %s_lw9" % name)
    a("s_cbranch_vccz %s_lw9" % name)
    a("s_sleep 16")
    a("s_mov_b32 s38, 0x%x" % (XFLG + 0))
    a("buffer_load_dword v32, v28, s[12:15], s38 offen sc1")
    a("s_mov_b32 s38, 0x%x" % (XFLG + 8192))
    a("buffer_load_dword v33, v28, s[12:15], s38 offen sc1")
    a("s_mov_b32 s38, 0x%x" % (XFLG + 16384))
    a("buffer_load_dword v34, v28, s[12:15], s38 offen sc1")
    a("s_mov_b32 s38, 0x%x" % (XFLG + 24576))
    a("buffer_load_dword v35, v28, s[12:15], s38 offen sc1")
    a("s_waitcnt vmcnt(0)")
    a("s_branch %s_hk2l" % name)
    a.label("%s_hk2g" % name)
    nconv = emit_conv_loads(a, " sc1")
    a("s_waitcnt vmcnt(%d)" % (9 + nconv))
    a("s_branch %s_lcont" % name)
    a.label("%s_ldone" % name)
    a("s_waitcnt vmcnt(0)")
    a("s_barrier")
    a("s_mov_b32 s26, s53")
    a("s_and_b32 s27, s3, 1")
    a("s_mul_i32 s27, s27, %d" % CJ_SIZE)
    a("s_lshr_b32 s36, s3, 1")
    a("s_mul_i32 s36, s36, %d" % SLOT)
    a("s_add_u32 s27, s27, s36")
    a("s_add_u32 s27, s27, %d" % RB)
    def mid():
        a("s_barrier")
        a("s_setprio 0")
    sv = set(DBG); DBG.discard("stamp")
    lb_ = len(a.lines)
    emit_conv_job(a, name, mid)
    for n_ in range(lb_, len(a.lines)):
        if "buffer_store_dwordx2" in a.lines[n_]: a.lines[n_] += " sc1"
    DBG.update(sv)
    stamp(a, 9)
    c_common()
    cTa = [4, 4]; cTb = [6, 6]; cF_ = 8; cFh = 9
    kTa = 88; kTb = 90; kF = 92; kFh = 93
    a("v_and_b32 v3, 15, v2")
    a("v_lshrrev_b32 v10, 5, v2")
    a("v_lshlrev_b32 v10, 11, v10")
    a("v_bfe_u32 v11, v2, 4, 1")
    a("v_lshl_add_u32 v10, v11, 4, v10")
    a("v_lshl_add_u32 v10, v3, 5, v10")
    a("s_lshl_b32 s26, s3, 12")
    a("v_add_u32 v10, s26, v10")
    a("s_lshl_b32 s26, s53, 10")
    a("v_add_u32 v%d, s26, v10" % kTa)
    a("s_xor_b32 s26, s26, 1024")
    a("v_add_u32 v%d, s26, v10" % kTb)
    a("v_lshrrev_b32 v10, 2, v2")
    a("v_mul_u32_u24 v10, %d, v10" % CFS)
    a("v_and_b32 v11, 3, v2")
    a("v_lshl_add_u32 v10, v11, 3, v10")
    a("s_mul_i32 s26, s3, %d" % (32 * CFS))
    a("s_add_u32 s26, s26, %d" % CTREG)
    a("v_add_u32 v%d, s26, v10" % kF)
    a("v_add_u32 v%d, 128, v%d" % (kFh, kF))
    a("v_mov_b32 v26, %d" % LC)
    a("v_mov_b32 v27, 1")
    a("s_waitcnt vmcnt(0)")
    a("s_mov_b64 exec, 1")
    a("ds_add_rtn_u32 v28, v26, v27 offset:20")
    a("s_waitcnt lgkmcnt(0)")
    a("v_readfirstlane_b32 s36, v28")
    a("s_cmp_lg_u32 s36, 3")
    a("s_cbranch_scc1 %s_nocs" % name)
    a("s_lshl_b32 s36, s2, 7")
    a("s_add_u32 s36, s36, 0x%x" % CFLG)
    a("v_mov_b32 v28, 0")
    a("buffer_store_dword v27, v28, s[12:15], s36 offen sc1")
    a.label("%s_nocs" % name)
    a("s_mov_b64 exec, -1")
    fin_loads()
    core3 = G.Core(a, ACC, FB[0], FB[1], CFS, CTREG, cTa, cTb, cF_, cFh, TT=512)
    pairs = ((cTa[0], kTa), (cF_, kF), (cTb[0], kTb), (cFh, kFh))
    a("s_mov_b32 s27, %d" % C0)
    for d, s_ in pairs: a("v_add_u32 v%d, s27, v%d" % (d, s_))
    for r in range(ACC, ACC + 72): a("v_mov_b32 v%d, 0" % r)
    a("s_mov_b32 s33, 0")
    a("s_barrier")
    stamp(a, 10)
    core3.prime(0, core3.reads(0, 0))
    def citer(buf):
        core3.trk.drain()
        a("s_barrier")
        a("s_add_u32 s27, s27, %d" % CSL)
        a("s_cmp_eq_u32 s27, %d" % CW)
        a("s_cselect_b32 s27, %d, s27" % RB)
        pre = ["v_add_u32 v%d, s27, v%d" % (d, s_) for d, s_ in pairs]
        core3.phase(buf, core3.reads(1 - buf, 0), pre=pre)
    a.label("%s_ccloop" % name)
    citer(0); citer(1)
    a("s_add_u32 s33, s33, 1")
    a("s_cmp_lt_u32 s33, 9")
    a("s_cbranch_scc1 %s_ccloop" % name)
    core3.trk.drain()
    stamp(a, 11)
    a("s_mul_i32 s33, s3, %d" % (18 * 1024))
    a("s_add_u32 s33, s33, %d" % C0)
    a("v_lshlrev_b32 v10, 4, v2")
    a("v_add_u32 v11, s33, v10")
    a("s_nop 4")
    for n, (ft, tt) in enumerate(TILES):
        a("ds_write_b128 v11, %s offset:%d" % (vr(core3.accr(ft, tt)), 1024 * tidx(ft, tt)))
        if n in (7, 13): a("s_waitcnt lgkmcnt(4)")
    a("s_waitcnt lgkmcnt(0) vmcnt(0)")
    a.label("%s_cfin" % name)
    a("s_barrier")
    stamp(a, 12)
    a("v_lshlrev_b32 v10, 4, v2")
    a("v_lshrrev_b32 v11, 2, v2")
    a("v_lshlrev_b32 v11, 7, v11")
    a("v_and_b32 v12, 3, v2")
    a("v_lshl_add_u32 v11, v12, 3, v11")
    a("s_mov_b32 s33, 0xbfb8aa3b")
    PT = 16; YR = 64
    for s_ in range(3):
        b = 64 + 4 * s_
        if s_ == 2:
            a("s_cmp_ge_u32 s54, 2")
            a("s_cbranch_scc1 %s_rd" % name)
        a("v_add_u32 v4, s%d, v10" % (b + 2))
        a("v_add_u32 v5, s%d, v11" % (b + 1))
        for q in range(4):
            a("ds_read_b128 %s, v4 offset:%d" % (vr(PT + 16 * s_ + 4 * q), 18432 * q))
        a("ds_read_b64_tr_b16 %s, v5" % vr(YR + 2 * s_, 2))
    a.label("%s_rd" % name)
    T = 104
    for s_ in range(3):
        b = 64 + 4 * s_
        if s_ == 0: a("s_waitcnt lgkmcnt(5)")
        if s_ == 1: a("s_waitcnt lgkmcnt(0)")
        if s_ == 2:
            a("s_cmp_ge_u32 s54, 2")
            a("s_cbranch_scc1 %s_done" % name)
        o = PT + 16 * s_; X = XR + 2 * s_; Y = YR + 2 * s_; S_ = ST + 2 * s_
        for h in (0, 2):
            a("v_pk_add_f32 %s, %s, %s" % (vr(o + h, 2), vr(o + h, 2), vr(o + 4 + h, 2)))
            a("v_pk_add_f32 %s, %s, %s" % (vr(o + 8 + h, 2), vr(o + 8 + h, 2), vr(o + 12 + h, 2)))
        for h in (0, 2):
            a("v_pk_add_f32 %s, %s, %s" % (vr(o + h, 2), vr(o + h, 2), vr(o + 8 + h, 2)))
        rnd_pair(a, T + 20, o, o + 1); rnd_pair(a, T + 21, o + 2, o + 3)
        for r in range(4): a("v_mul_f32 v%d, s33, v%d" % (T + r, o + r))
        for r in range(4): a("v_exp_f32 v%d, v%d" % (T + r, T + r))
        a("v_lshlrev_b32 v%d, 16, v%d" % (T + 4, X)); a("v_and_b32 v%d, 0xffff0000, v%d" % (T + 5, X))
        a("v_lshlrev_b32 v%d, 16, v%d" % (T + 6, X + 1)); a("v_and_b32 v%d, 0xffff0000, v%d" % (T + 7, X + 1))
        for r in range(4): a("v_add_f32 v%d, 1.0, v%d" % (T + r, T + r))
        for r in range(4): a("v_rcp_f32 v%d, v%d" % (T + r, T + r))
        for r in range(4): a("v_sub_f32 v%d, v%d, v%d" % (T + 12 + r, T + 4 + r, S_))
        a("v_lshlrev_b32 v%d, 16, v%d" % (T + 8, Y)); a("v_and_b32 v%d, 0xffff0000, v%d" % (T + 9, Y))
        a("v_lshlrev_b32 v%d, 16, v%d" % (T + 10, Y + 1)); a("v_and_b32 v%d, 0xffff0000, v%d" % (T + 11, Y + 1))
        for r in range(4): a("v_mul_f32 v%d, v%d, v%d" % (o + r, o + r, T + r))
        rnd_pair(a, T + 20, T + 12, T + 13); rnd_pair(a, T + 21, T + 14, T + 15)
        rnd_pair(a, T + 22, o, o + 1); rnd_pair(a, T + 23, o + 2, o + 3)
        for r in range(4): a("v_mul_f32 v%d, v%d, v%d" % (T + 12 + r, T + 12 + r, S_ + 1))
        rnd_pair(a, T + 20, T + 12, T + 13); rnd_pair(a, T + 21, T + 14, T + 15)
        for r in range(4): a("v_mul_f32 v%d, v%d, v%d" % (T + 12 + r, T + 12 + r, T + 8 + r))
        rnd_pair(a, T + 20, T + 12, T + 13); rnd_pair(a, T + 21, T + 14, T + 15)
        for r in range(4): a("v_mul_f32 v%d, v%d, v%d" % (T + 12 + r, T + 12 + r, o + r))
        rnd_pair(a, T + 20, T + 12, T + 13); rnd_pair(a, T + 21, T + 14, T + 15)
        for r in range(4): a("v_add_f32 v%d, v%d, v%d" % (T + 12 + r, T + 12 + r, T + 4 + r))
        a("v_cvt_pk_bf16_f32 v%d, v%d, v%d" % (X, T + 12, T + 13))
        a("v_cvt_pk_bf16_f32 v%d, v%d, v%d" % (X + 1, T + 14, T + 15))
        a("buffer_store_dwordx2 %s, v13, s[28:31], s%d offen" % (vr(X, 2), b))
    a.label("%s_done" % name)
    stamp(a, 13)
    G.stamp_rt(a, 1)
    a.label("%s_end" % name)
    a("s_endpgm")
    for ft in range(5):
        a.label("%s_gsub%d" % (name, ft))
        tts = range(4 if ft < 4 else 2)
        emit_fold_gelu(a, [(128 + 4 * tidx(ft, tt), CS + 4 * ft, MR + 2 * tt, ZP + 2 * tidx(ft, tt)) for tt in tts], 72)
        a("s_setpc_b64 s[34:35]")
    return a.text(), kernel_desc(name, 256, 256), (name, 256, 512, 163840)

def gen_kf14(name="k1_kernel", R=4):
    a = Asm()
    RB = 4096; SLOT = 34816; TREG = 16384; FS = 288; RST = 0
    LDSB = RB + R * SLOT
    LC = 2048
    ZFLG = 0x2D00000; PFL = 128
    KVL = 143360
    C0 = 77824; CW = 151552; CSL = 36864; YOFF = 151552; CTREG = 16384; CFS = 160
    from gen3 import emit_conv_loads, emit_conv_job, CJ_SIZE
    def capture(f, *args):
        lb = len(a.lines); f(*args); out = a.lines[lb:]; del a.lines[lb:]; return out

    def c_common():
        a("s_load_dwordx2 s[4:5], s[0:1], 0")
        a("s_load_dwordx2 s[16:17], s[0:1], 88")
        a("s_and_b32 s20, s2, 7")
        a("s_lshr_b32 s21, s2, 3")
        a("s_and_b32 s22, s20, 3")
        a("s_lshl_b32 s22, s22, 3")
        a("s_and_b32 s23, s21, 7")
        a("s_add_u32 s22, s22, s23")
        a("s_lshr_b32 s23, s20, 2")
        a("s_lshl_b32 s23, s23, 2")
        a("s_lshr_b32 s24, s21, 3")
        a("s_add_u32 s23, s23, s24")
        a("s_lshr_b32 s52, s23, 1")
        a("s_and_b32 s53, s23, 1")
        a("s_lshl_b32 s54, s98, 2")
        a("s_add_u32 s54, s54, s3")
        a("s_waitcnt lgkmcnt(0)")
        srd(a, 8, 4, 2048 * 576 * 2)
        srd(a, 28, 16, 2048 * 576 * 2)
    XR = 200; ST = 208
    def fin_loads():
        a("v_and_b32 v3, 15, v2")
        a("v_lshrrev_b32 v10, 4, v2")
        a("v_mul_u32_u24 v13, 1152, v3")
        a("v_lshl_add_u32 v13, v10, 3, v13")
        a("v_lshlrev_b32 v12, 3, v3")
        for s_ in range(3):
            if s_ == 2:
                a("s_cmp_ge_u32 s54, 2")
                a("s_cbranch_scc1 %s_fl%d" % (name, fin_loads.cnt))
            b = 64 + 4 * s_
            if s_ < 2:
                a("s_add_u32 s36, s54, %d" % (8 * s_))
                a("s_lshr_b32 s37, s36, 2")
                a("s_and_b32 s38, s36, 3")
                a("s_mul_i32 s39, s53, 160")
                a("s_lshl_b32 s40, s37, 5")
                a("s_add_u32 s39, s39, s40")
            else:
                a("s_add_u32 s36, s54, 16")
                a("s_mov_b32 s37, 4")
                a("s_mov_b32 s38, s54")
                a("s_mov_b32 s39, 128")
            a("s_lshl_b32 s40, s53, 1")
            a("s_add_u32 s38, s38, s40")
            a("s_and_b32 s38, s38, 3")
            a("s_lshl_b32 s40, s22, 2")
            a("s_add_u32 s40, s40, s38")
            a("s_lshl_b32 s40, s40, 4")
            a("s_mul_i32 s%d, s40, 1152" % b)
            a("s_add_u32 s%d, s%d, s39" % (b, b))
            a("s_mul_i32 s39, s52, 288")
            a("s_add_u32 s%d, s%d, s39" % (b, b))
            a("s_lshl_b32 s%d, s37, 11" % (b + 1))
            a("s_lshl_b32 s39, s38, 5")
            a("s_add_u32 s%d, s%d, s39" % (b + 1, b + 1))
            a("s_add_u32 s%d, s%d, %d" % (b + 1, b + 1, YOFF))
            a("s_lshl_b32 s%d, s36, 10" % (b + 2))
            a("s_add_u32 s%d, s%d, %d" % (b + 2, b + 2, C0))
            a("s_lshl_b32 s40, s40, 3")
            a("s_add_u32 s40, s40, 0x%x" % STATS1)
            a("buffer_load_dwordx2 %s, v13, s[8:11], s%d offen" % (vr(XR + 2 * s_, 2), b))
            a("buffer_load_dwordx2 %s, v12, s[12:15], s40 offen sc1" % vr(ST + 2 * s_, 2))
        a.label("%s_fl%d" % (name, fin_loads.cnt))
        fin_loads.cnt += 1
    fin_loads.cnt = 0
    kernel_begin(a, name)
    a("s_load_dwordx2 s[80:81], s[0:1], 0")
    a("s_load_dwordx2 s[4:5], s[0:1], 56")
    a("s_load_dwordx2 s[6:7], s[0:1], 104")
    a("s_load_dwordx2 s[18:19], s[0:1], 96")
    a("s_cmp_ge_u32 s2, 256")
    a("s_cbranch_scc1 %s_end" % name)
    a("v_lshrrev_b32 v1, 6, v0")
    a("v_and_b32 v2, 63, v0")
    a("v_readfirstlane_b32 s3, v1")
    G2.tile_ij(a)
    a("s_lshr_b32 s98, s3, 2")
    a("s_mov_b32 s54x, 0".replace("s54x", "s99"))
    a("s_and_b32 s3, s3, 3")
    a("s_lshr_b32 s24, s3, 1")
    a("s_and_b32 s25, s3, 1")
    a("v_and_b32 v3, 15, v2")
    VT = 204; VF = 208
    def loader_setup():
        a("v_lshrrev_b32 v5, 3, v2")
        a("v_and_b32 v4, 7, v2")
        a("s_lshl_b32 s36, s3, 5")
        a("v_add_u32 v5, s36, v5")
        a("v_lshrrev_b32 v7, 4, v2")
        a("v_xor_b32 v7, v7, v4")
        a("v_mul_u32_u24 v6, 1152, v5")
        a("v_lshl_add_u32 v%d, v7, 4, v6" % VT)
        a("v_xor_b32 v%d, 64, v%d" % (VT + 1, VT))
        a("v_add_u32 v%d, %d, v%d" % (VT + 1, 9216 - 1024, VT + 1))
        a("v_add_u32 v%d, %d, v%d" % (VT + 2, 2 * (9216 - 1024), VT))
        a("v_add_u32 v%d, %d, v%d" % (VT + 3, 2 * (9216 - 1024), VT + 1))
        a("s_lshl_b32 s84, s3, 12")
        a("s_add_u32 s84, s84, %d" % RB)
        a("s_lshl_b32 s85, s3, 9")
        a("s_add_u32 s85, s85, %d" % (RB + TREG + 16384))
    def loader_setup2():
        for n in range(5):
            if n < 4:
                a("s_lshl_b32 s36, s3, 8")
                a("s_add_u32 s36, s36, %d" % (64 * n))
            else:
                a("s_lshl_b32 s36, s3, 5")
                a("s_add_u32 s36, s36, 1024")
            a("v_add_u32 v6, s36, v2")
            a("v_mul_u32_u24 v7, 3641, v6")
            a("v_lshrrev_b32 v7, 16, v7")
            a("v_mul_u32_u24 v8, 18, v7")
            a("v_sub_u32 v8, v6, v8")
            a("v_and_b32 v9, 35, v7")
            a("v_bfe_u32 v6, v7, 2, 2")
            a("v_lshl_add_u32 v9, v6, 3, v9")
            a("v_bfe_u32 v6, v7, 4, 1")
            a("v_lshl_add_u32 v9, v6, 2, v9")
            a("v_mul_u32_u24 v9, 9216, v9")
            a("v_lshl_add_u32 v%d, v8, 4, v9" % (VF + n))
            if 0 < n < 4: a("v_subrev_u32 v%d, %d, v%d" % (VF + n, 1024 * n, VF + n))
    def issueT(g):
        st = g % 9
        a("s_add_u32 s86, s84, %d" % ((g % R) * SLOT))
        a("s_mov_b32 m0, s86")
        a("s_add_u32 s87, s82, %d" % (128 * st))
        for n in range(4):
            a("buffer_load_dwordx4 v%d, s[28:31], s87 offen offset:%d lds" % (VT + n, 1024 * n))
    def issueF(g):
        st = g % 9
        a("s_add_u32 s86, s84, %d" % ((g % R) * SLOT + TREG))
        a("s_mov_b32 m0, s86")
        a("s_add_u32 s87, s83, %d" % (64 * 9216 * st + (4608 if g < 9 else 0)))
        for n in range(4):
            a("buffer_load_dwordx4 v%d, s[8:11], s87 offen offset:%d lds" % (VF + n, 1024 * n))
        a("s_add_u32 s86, s85, %d" % ((g % R) * SLOT))
        a("s_mov_b32 m0, s86")
        a("s_mov_b64 exec, 0xffffffff")
        a("buffer_load_dwordx4 v%d, s[8:11], s87 offen lds" % (VF + 4))
        a("s_mov_b64 exec, -1")
    def srds_main():
        srd(a, 28, 80, 2048 * 576 * 2)
        srd(a, 8, 4, 576 * 4608 * 2)
        srd(a, 12, 6, WS_BYTES)
        srd(a, 60, 18, 256)
        a("s_mul_i32 s82, s22, %d" % (128 * 1152))
        a("s_mul_i32 s83, s23, 288")
    ACC = 128; FB = [16, 52]; CS = 216; ONE = 236
    vTa = [4, 5]; vTb = [6, 7]; vF = 8; vFh = 9
    bTa = [88, 89]; bTb = [90, 91]; bF = 92; bFh = 93
    def mma_setup():
        a("v_lshrrev_b32 v10, 4, v2")
        a("v_lshrrev_b32 v11, 1, v3")
        a("v_xor_b32 v10, v10, v11")
        a("v_lshlrev_b32 v10, 4, v10")
        a("v_lshl_add_u32 v10, v3, 7, v10")
        a("s_lshl_b32 s26, s24, 13")
        a("s_add_u32 s26, s26, %d" % RB)
        a("v_add_u32 v10, s26, v10")
        a("s_lshl_b32 s26, s25, 12")
        a("v_add_u32 v%d, s26, v10" % bTa[0])
        a("s_xor_b32 s26, s26, 4096")
        a("v_add_u32 v%d, s26, v10" % bTb[0])
        a("v_xor_b32 v%d, 64, v%d" % (bTa[1], bTa[0]))
        a("v_xor_b32 v%d, 64, v%d" % (bTb[1], bTb[0]))
        a("v_lshrrev_b32 v10, 2, v2")
        a("v_mul_u32_u24 v10, %d, v10" % FS)
        a("v_and_b32 v11, 3, v2")
        a("v_lshl_add_u32 v10, v11, 3, v10")
        a("v_add_u32 v10, %d, v10" % (RB + TREG))
        a("s_mul_i32 s26, s25, 160")
        a("v_add_u32 v%d, s26, v10" % bF)
        a("v_add_u32 v%d, 128, v10" % bFh)
        for r in range(ACC, ACC + 72): a("v_mov_b32 v%d, 0" % r)
        for r in range(CS, CS + 20): a("v_mov_b32 v%d, 0" % r)
        for r in range(ONE, ONE + 4): a("v_mov_b32 v%d, 0x3f803f80" % r)
    def mma_addr(slot):
        a("s_mov_b32 s27, %d" % (slot * SLOT))
        for d, s_ in ((vTa[0], bTa[0]), (vTb[0], bTb[0]), (vTa[1], bTa[1]), (vTb[1], bTb[1]), (vF, bF), (vFh, bFh)):
            a("v_add_u32 v%d, s27, v%d" % (d, s_))
    core = G.Core(a, ACC, FB[0], FB[1], FS, TREG, vTa, vTb, vF, vFh)
    trk = core.trk
    a("s_cmp_eq_u32 s98, 0")
    a("s_cbranch_scc1 %s_A0" % name)
    a("s_setprio 3")
    loader_setup()
    a("s_waitcnt lgkmcnt(0)")
    srds_main()
    vm = VmTracker(a)
    def issue(g, vmx):
        issueT(g); issueF(g); vmx.issue("S%d" % g, 9)
    issueT(0)
    loader_setup2()
    issueF(0); vm.issue("S0", 9)
    issue(1, vm); issue(2, vm); issue(3, vm)
    a("s_add_u32 s3, s3, 4"); stamp_setup(a, 1); stamp(a, 0); a("s_sub_u32 s3, s3, 4")
    a("s_load_dwordx4 s[64:67], s[0:1], 8")
    a("s_load_dwordx2 s[76:77], s[0:1], 24")
    mma_setup()
    a("s_waitcnt lgkmcnt(0)")
    srd(a, 68, 66, 2048 * 576 * 2)
    a("s_mov_b32 s88, s64"); a("s_mov_b32 s89, s65")
    srd(a, 64, 88, 2048 * 576 * 2)
    srd(a, 72, 76, 576 * 8)
    def kv_dma():
        a("s_lshr_b32 s36, s2, 3")
        a("s_mul_i32 s36, s36, %d" % (64 * 1152))
        a("s_and_b32 s37, s2, 7")
        a("s_mul_i32 s37, s37, 144")
        a("s_add_u32 s36, s36, s37")
        for q in range(5):
            a("s_add_u32 s38, s3, %d" % (4 * q))
            if q == 4: a("s_min_u32 s38, s38, 18")
            isK = (q < 2); isV = (q > 2)
            a("s_sub_u32 s39, s38, 10")
            a("s_cmp_lt_u32 s38, 10")
            a("s_cselect_b32 s39, s38, s39")
            a("s_cselect_b32 s40, %d, 0" % ((-3 * 1152) & 0xffffffff))
            a("s_lshl_b32 s37, s39, 6")
            a("v_add_u32 v240, s37, v2")
            a("v_mul_u32_u24 v241, 7282, v240")
            a("v_lshrrev_b32 v241, 16, v241")
            a("v_mul_u32_u24 v242, 9, v241")
            a("v_sub_u32 v242, v240, v242")
            a("v_mul_u32_u24 v241, 1152, v241")
            a("v_lshl_add_u32 v241, v242, 4, v241")
            a("s_add_u32 s40, s40, s36")
            a("v_add_u32 v241, s40, v241")
            a("s_lshl_b32 s37, s38, 10")
            a("s_add_u32 s37, s37, %d" % KVL)
            a("s_mov_b32 m0, s37")
            if isK:
                a("s_nop 0")
                a("buffer_load_dwordx4 v241, s[64:67], 0 offen lds")
            elif isV:
                a("s_nop 0")
                a("buffer_load_dwordx4 v241, s[68:71], 0 offen lds")
            else:
                a("s_cmp_lt_u32 s38, 10")
                a("s_cbranch_scc1 %s_kd1" % name)
                a("buffer_load_dwordx4 v241, s[68:71], 0 offen lds")
                a("s_branch %s_kd2" % name)
                a.label("%s_kd1" % name)
                a("buffer_load_dwordx4 v241, s[64:67], 0 offen lds")
                a.label("%s_kd2" % name)
    RA = 96; XB = 112
    for r in range(RA, RA + 16): a("v_mov_b32 v%d, 0" % r)
    a("v_lshrrev_b32 v10, 4, v2")
    a("v_lshrrev_b32 v11, 1, v3")
    a("v_xor_b32 v10, v10, v11")
    a("v_lshlrev_b32 v10, 4, v10")
    a("v_lshl_add_u32 v10, v3, 7, v10")
    a("v_add_u32 v12, s84, v10")
    a("v_xor_b32 v13, 64, v12")
    def rs_rd(g):
        a("v_add_u32 v10, %d, v12" % ((g % R) * SLOT))
        a("v_add_u32 v11, %d, v13" % ((g % R) * SLOT))
        for h in range(2):
            for n in range(2):
                a("ds_read_b128 %s, v%d offset:%d" % (vr(XB + 8 * h + 4 * n), 10 + h, 2048 * n))
    def rs_do():
        for h in range(2):
            for n in range(2):
                x = XB + 8 * h + 4 * n
                a("v_mfma_f32_16x16x32_bf16 %s, %s, %s, %s" % (vr(RA + 4 * n), vr(ONE), vr(x), vr(RA + 4 * n)))
                a("v_mfma_f32_16x16x32_bf16 %s, %s, %s, %s" % (vr(RA + 8 + 4 * n), vr(x), vr(x), vr(RA + 8 + 4 * n)))
    def interleave(dma, comp, vmx=None):
        groups = []; cur = []
        for l in dma:
            cur.append(l)
            if "buffer_load" in l and not any("exec, 0xffffffff" in x for x in cur[-2:]):
                groups.append(cur); cur = []
            elif "exec, -1" in l:
                groups.append(cur); cur = []
        if cur: groups.append(cur)
        ns = max(1, len(groups))
        per = (len(comp) + ns - 1) // ns
        for g in groups:
            a.lines.extend(g)
            a.lines.extend(comp[:per]); comp = comp[per:]
        a.lines.extend(comp)
    vm.wait(["S0"])
    a("s_barrier")
    stamp(a, 1)
    rs_rd(0)
    vm.wait(["S1"])
    a("s_barrier")
    for k in range(9):
        a("s_waitcnt lgkmcnt(0)")
        dma = capture(lambda: (issueT(k + 3), issueF(k + 3))) if k >= 1 else []
        interleave(dma, capture(rs_do))
        if k >= 1: vm.issue("S%d" % (k + 3), 9)
        if k == 3:
            kv_dma(); vm.issue("KV", 5)
        if k < 8:
            rs_rd(k + 1)
        else:
            a("s_nop 7")
            a("v_lshrrev_b32 v10, 4, v2")
            a("v_lshrrev_b32 v11, 2, v3")
            a("v_and_b32 v12, 3, v3")
            for n in range(2):
                G_ = RA + 8 + 4 * n
                for r in range(1, 4):
                    a("v_cmp_eq_u32 vcc, %d, v12" % r)
                    a("s_nop 1")
                    a("v_cndmask_b32 v%d, v%d, v%d, vcc" % (G_, G_, G_ + r))
            ML = 112
            for n in range(2):
                emit_ln_finish(a, RA + 4 * n, RA + 8 + 4 * n, 576, ML + 2 * n, ML + 2 * n + 1, 120)
                a("v_mov_b32 v%d, v%d" % (117 + 2 * n, ML + 2 * n + 1))
                a("v_sub_f32 v%d, 0, v%d" % (116 + 2 * n, ML + 2 * n))
            a("s_lshl_b32 s35, s3, 8")
            a("v_lshlrev_b32 v13, 3, v3")
            a("v_add_u32 v12, s35, v13")
            a("v_cmp_eq_u32 vcc, v10, v11")
            a("s_and_saveexec_b64 s[36:37], vcc")
            for n in range(2):
                a("ds_write_b64 v12, %s offset:%d" % (vr(116 + 2 * n, 2), RST + 128 * n))
            a("s_mov_b64 exec, s[36:37]")
            a("s_cmp_lg_u32 s23, 0")
            a("s_cbranch_scc1 %s_nost1" % name)
            a("s_lshl_b32 s35, s22, 7")
            a("s_lshl_b32 s36, s3, 5")
            a("s_add_u32 s35, s35, s36")
            a("s_lshl_b32 s35, s35, 3")
            a("s_add_u32 s35, s35, 0x%x" % STATS1)
            a("v_mov_b32 v11, 0x7ffffff0")
            a("v_cndmask_b32 v13, v11, v13, vcc")
            for n in range(2):
                a("buffer_store_dwordx2 %s, v13, s[12:15], s35 offen offset:%d sc1" % (vr(ML + 2 * n, 2), 128 * n))
            a.label("%s_nost1" % name)
            a("v_and_b32 v0, 255, v0")
            a("v_lshrrev_b32 v1, 3, v0")
            a("v_and_b32 v10, 7, v0")
            a("s_lshr_b32 s38, s2, 3")
            a("s_lshl_b32 s38, s38, 6")
            a("v_lshl_add_u32 v252, v10, 3, s38")
            a("s_and_b32 s39, s2, 7")
            a("s_mul_i32 s39, s39, 144")
            a("v_lshl_add_u32 v253, v1, 2, s39")
            a("v_lshlrev_b32 v11, 2, v253")
            a("buffer_load_dwordx4 v[248:251], v11, s[72:75], 0 offen")
            a("buffer_load_dwordx4 v[244:247], v11, s[72:75], 0 offen offset:512")
            a("v_mul_u32_u24 v254, 1152, v10")
            a("v_lshl_add_u32 v254, v1, 2, v254")
            a("v_add_u32 v254, %d, v254" % KVL)
            a("s_mov_b32 s41, 0")
            lb_ = len(a.lines)
            a("s_mov_b32 s42, s2")
            emit_wot_loads(a, 100, 200, 720, 3)
            n_ = 0
            for i_ in range(lb_, len(a.lines)):
                if "buffer_load_dwordx4" in a.lines[i_]:
                    a.lines[i_] = "    v_mov_b32 v%d, v23" % (240 + n_); n_ += 1
            mma_addr(9 % R)
            a("s_mov_b32 s33, 0")
            a("s_setprio 0")
        vm.wait(["S%d" % (k + 2)], "lgkmcnt(0)" if k == 8 else "")
        if k < 8: a("s_barrier")
    a("s_branch %s_mma" % name)
    a.label("%s_A0" % name)
    emit_code_prefetch(a, name)
    a("s_load_dwordx4 s[64:67], s[0:1], 8")
    a("s_load_dwordx2 s[76:77], s[0:1], 24")
    a("s_load_dwordx2 s[78:79], s[0:1], 64")
    mma_setup()
    loader_setup(); loader_setup2()
    a("s_waitcnt lgkmcnt(0)")
    srds_main()
    srd(a, 68, 66, 2048 * 576 * 2)
    a("s_mov_b32 s88, s64"); a("s_mov_b32 s89, s65")
    srd(a, 64, 88, 2048 * 576 * 2)
    srd(a, 72, 76, 576 * 8)
    stamp_setup(a, 1); stamp(a, 0)
    def gran_addr():
        a("v_lshrrev_b32 v10, 4, v2")
        a("s_lshl_b32 s36, s25, 1")
        a("v_add_u32 v11, s36, v10")
        a("v_and_b32 v11, 3, v11")
        a("v_lshl_add_u32 v11, v11, 4, v3")
        a("v_lshlrev_b32 v94, 3, v11")
        a("s_lshl_b32 s59, s22, 15")
        a("s_lshl_b32 s36, s24, 9")
        a("s_add_u32 s59, s59, s36")
        a("s_add_u32 s59, s59, 0x%x" % STATS2)
        a("s_lshl_b32 s36, s23, 1")
        a("s_add_u32 s36, s36, s25")
        a("s_lshl_b32 s36, s36, 10")
        a("s_add_u32 s58, s36, s59")
    gran_addr()
    a("v_mov_b32 v12, 0"); a("v_mov_b32 v13, 0x80000000")
    a("buffer_store_dwordx2 v[12:13], v94, s[12:15], s58 offen sc1")
    a("s_lshl_b32 s36, s22, 4")
    a("s_add_u32 s36, s36, s23")
    a("s_lshl_b32 s36, s36, 8")
    a("s_add_u32 s97, s36, 0x%x" % ZFLG)
    a("v_mov_b32 v10, %d" % LC)
    a("v_mov_b32 v12, 0"); a("v_mov_b32 v13, 0")
    a("s_mov_b64 exec, 1")
    a("buffer_store_dword v12, v12, s[12:15], s97 offen sc1")
    a("buffer_store_dword v12, v12, s[12:15], s97 offen offset:%d sc1" % PFL)
    a("s_mov_b64 exec, -1")
    a("ds_write_b64 v10, v[12:13]")
    a("ds_write_b64 v10, v[12:13] offset:8")
    a("ds_write_b64 v10, v[12:13] offset:16")
    a("ds_write_b64 v10, v[12:13] offset:24")
    mma_addr(0)
    a("s_mov_b32 s33, 0")
    a("s_waitcnt lgkmcnt(0)")
    a("s_barrier")
    stamp(a, 1)
    a.label("%s_mma" % name)
    core.prime(0, core.reads(0, 0))
    trk.drain()
    nocs = [False]
    def mfmas(buf):
        L = []
        for ft in range(5):
            A = core.F(buf, ft)
            for tt in range(4 if ft < 4 else 2):
                c = core.accr(ft, tt); B = core.T(buf, tt)
                L.append(("v_mfma_f32_16x16x32_bf16 %s, %s, %s, %s" % (vr(c), vr(A), vr(B), vr(c)), list(range(A, A + 4)) + list(range(B, B + 4))))
            if not nocs[0]: L.append(("v_mfma_f32_16x16x32_bf16 %s, %s, %s, %s" % (vr(CS + 4 * ft), vr(A), vr(ONE), vr(CS + 4 * ft)), list(range(A, A + 4))))
        return L
    def phase(buf, pend):
        for (m, regs) in mfmas(buf):
            trk.need(regs)
            a(m)
            while pend:
                k, t = pend.pop(0)
                if k == "x":
                    a(t)
                    if t.startswith("s_"): continue
                else:
                    a(t[0]); trk.issue(t[1])
                break
        for k, t in pend:
            if k == "x": a(t)
            else: a(t[0]); trk.issue(t[1])
    def iteration(vw=True):
        if vw: a("s_waitcnt vmcnt(0)")
        a("s_barrier")
        rd = [("r", t) for t in core.reads(1, 1)]
        upd = ["s_add_u32 s27, s27, %d" % SLOT, "s_cmp_eq_u32 s27, %d" % (R * SLOT), "s_cselect_b32 s27, 0, s27"]
        tail = ["v_add_u32 v%d, s27, v%d" % (d, s_) for d, s_ in ((vTa[0], bTa[0]), (vF, bF), (vTb[0], bTb[0]), (vFh, bFh))]
        phase(0, rd[:1] + [("x", u) for u in upd] + rd[1:] + [("x", u) for u in tail])
        rd = [("r", t) for t in core.reads(0, 0)]
        tail = ["v_add_u32 v%d, s27, v%d" % (d, s_) for d, s_ in ((vTa[1], bTa[1]), (vTb[1], bTb[1]))] + ["s_add_u32 s33, s33, 1"]
        phase(1, rd + [("x", u) for u in tail])
    a.label("%s_cloop" % name)
    lb = len(a.lines); iteration(); st = copy.deepcopy(trk.out); del a.lines[lb:]; trk.out = copy.deepcopy(st)
    iteration()
    assert [sorted(x) for x in trk.out] == [sorted(x) for x in st]
    a("s_cmp_lt_u32 s33, 9")
    a("s_cbranch_scc1 %s_cloop" % name)
    trk.drain()
    stamp(a, 2)
    MR = 100; T = 72; ZP = 16
    def epi_in():
        gelu_consts(a)
        a("s_lshl_b32 s36, s24, 9")
        a("s_lshl_b32 s37, s25, 8")
        a("s_add_u32 s38, s36, s37")
        a("s_xor_b32 s37, s37, 256")
        a("s_add_u32 s39, s36, s37")
        a("v_lshlrev_b32 v10, 3, v3")
        a("v_add_u32 v11, s38, v10")
        a("ds_read_b64 %s, v11 offset:%d" % (vr(MR, 2), RST))
        a("ds_read_b64 %s, v11 offset:%d" % (vr(MR + 2, 2), RST + 128))
        a("v_add_u32 v11, s39, v10")
        a("ds_read_b64 %s, v11 offset:%d" % (vr(MR + 4, 2), RST))
        a("ds_read_b64 %s, v11 offset:%d" % (vr(MR + 6, 2), RST + 128))
        a("s_waitcnt lgkmcnt(0)")
    S = [108, 110, 52, 54]; Q = [109, 111, 53, 55]
    def gelu_ft(ft, stats):
        tts = range(4 if ft < 4 else 2)
        a("s_call_b64 s[34:35], %s_gsub%d" % (name, ft))
        if stats:
            for d in range(2):
                for tt in tts:
                    p = ZP + 2 * tidx(ft, tt) + d
                    a("v_dot2_f32_bf16 v%d, v%d, v%d, v%d" % (S[tt], p, ONE, S[tt]))
                    a("v_dot2_f32_bf16 v%d, v%d, v%d, v%d" % (Q[tt], p, p, Q[tt]))
    a("s_cmp_eq_u32 s98, 0")
    a("s_cbranch_scc1 %s_A1" % name)
    a("s_barrier")
    a("s_load_dwordx2 s[94:95], s[0:1], 80")
    a("s_load_dwordx2 s[92:93], s[0:1], 72")
    epi_in()
    srd(a, 76, 94, 2304 * 576 * 2)
    srd(a, 28, 92, 2048 * 2)
    for ft in range(5): gelu_ft(ft, False)
    Z1R = 200; BI = 236
    for r_ in range(3):
        a("v_mov_b32 v%d, v%d" % (134 + r_, 200 + r_)); a("v_mov_b32 v%d, v%d" % (137 + r_, 240 + r_))
    for r_ in range(36): a("v_mov_b32 v%d, v%d" % (Z1R + r_, ZP + r_))
    stamp(a, 3)
    a("s_waitcnt vmcnt(0)")
    for r_ in range(6): a("v_mov_b32 v%d, v%d" % (128 + r_, 88 + r_))
    a.label("%s_kvb" % name)
    for n in range(11): a("ds_read_b32 v%d, v254 offset:%d" % (16 + n, 144 * n))
    a("s_waitcnt lgkmcnt(4)")
    for n in range(8): a("ds_read_b32 v%d, v254 offset:%d" % (32 + n, 10240 + 144 * n))
    for n in range(4): a("v_mov_b32 v%d, v%d" % (44 + n, 248 + n))
    a("v_mov_b32 v56, v252"); a("v_mov_b32 v57, v253")
    a("s_waitcnt lgkmcnt(0)")
    emit_kv_compute(a, wait=False, store=False)
    a("s_mov_b32 s39, 0x%x" % KVT)
    a("buffer_store_dwordx4 v[120:123], v12, s[12:15], s39 offen sc1")
    a("buffer_store_dwordx4 v[124:127], v13, s[12:15], s39 offen sc1")
    a("s_cmp_lg_u32 s41, 0")
    a("s_cbranch_scc1 %s_kvbx" % name)
    a("s_cmp_lg_u32 s3, 0")
    a("s_cbranch_scc1 %s_kvbx" % name)
    a("s_mov_b32 s41, 1")
    for n in range(4): a("v_mov_b32 v%d, v%d" % (248 + n, 244 + n))
    a("v_add_u32 v253, 128, v253")
    a("v_add_u32 v254, 128, v254")
    a("s_mov_b64 exec, 0xffffffff")
    a("s_branch %s_kvb" % name)
    a.label("%s_kvbx" % name)
    a("s_mov_b64 exec, -1")
    for r_ in range(6): a("v_mov_b32 v%d, v%d" % (240 + r_, 128 + r_))
    a.label("%s_kvbd" % name)
    for r_ in range(6): a("v_mov_b32 v%d, v%d" % (88 + r_, 240 + r_))
    for r_ in range(6): a("v_mov_b32 v%d, v%d" % (112 + r_, 134 + r_))
    a("s_mov_b32 s40, 0x%x" % WOT)
    for r in range(ACC, ACC + 72): a("v_mov_b32 v%d, 0" % r)
    a("v_lshrrev_b32 v10, 2, v2")
    a("v_lshlrev_b32 v10, 5, v10")
    a("v_and_b32 v11, 3, v2")
    a("v_lshl_add_u32 v10, v11, 3, v10")
    a("v_add_u32 v10, %d, v10" % (RB + TREG))
    a("s_mul_i32 s26, s25, 10240")
    a("v_add_u32 v%d, s26, v10" % bF)
    a("v_add_u32 v%d, 8192, v10" % bFh)
    core.FS = 32; core.FT = 2048
    mma_addr(0)
    a("s_mov_b32 s33, 0")
    stamp(a, 4)
    a("s_barrier")
    stamp(a, 5)
    core.prime(0, core.reads(0, 0))
    trk.drain()
    nocs[0] = True
    a.label("%s_gloop" % name)
    lb = len(a.lines); iteration(False); st = copy.deepcopy(trk.out); del a.lines[lb:]; trk.out = copy.deepcopy(st)
    iteration(False)
    assert [sorted(x) for x in trk.out] == [sorted(x) for x in st]
    a("s_cmp_lg_u32 s33, 2")
    a("s_cbranch_scc1 %s_ghkA" % name)
    for n in range(3):
        a("buffer_load_dwordx4 %s, v%d, s[76:79], 0 offen" % (vr(100 + 4 * n), 115 + n))
    a("s_lshl_b32 s36, s22, 7")
    a("s_lshl_b32 s37, s24, 6")
    a("s_add_u32 s36, s36, s37")
    a("v_lshlrev_b32 v11, 1, v3")
    a("s_lshl_b32 s37, s25, 6")
    a("s_lshl_b32 s38, s36, 1")
    a("s_add_u32 s39, s38, s37")
    a("s_xor_b32 s37, s37, 64")
    a("s_add_u32 s36, s38, s37")
    a("buffer_load_ushort v96, v11, s[28:31], s39 offen")
    a("buffer_load_ushort v97, v11, s[28:31], s39 offen offset:32")
    a("buffer_load_ushort v98, v11, s[28:31], s36 offen")
    a("buffer_load_ushort v99, v11, s[28:31], s36 offen offset:32")
    a.label("%s_ghkA" % name)
    a("s_cmp_lg_u32 s33, 6")
    a("s_cbranch_scc1 %s_ghk0" % name)
    a("s_waitcnt vmcnt(0)")
    for n in range(3):
        a("buffer_store_dwordx4 %s, v%d, s[12:15], s40 offen sc1" % (vr(100 + 4 * n), 112 + n))
    for tt in range(4): a("v_lshlrev_b32 v%d, 16, v%d" % (BI + 2 * tt, 96 + tt))
    a.label("%s_ghk0" % name)
    a("s_cmp_lg_u32 s33, 9")
    a("s_cbranch_scc1 %s_ghk" % name)
    a("s_waitcnt vmcnt(0)")
    a("v_mov_b32 v10, %d" % (LC + 8))
    a("v_mov_b32 v11, 1")
    a("s_mov_b64 exec, 1")
    a("ds_add_rtn_u32 v12, v10, v11")
    a("s_waitcnt lgkmcnt(0)")
    a("v_readfirstlane_b32 s36, v12")
    a("s_cmp_lg_u32 s36, 3")
    a("s_cbranch_scc1 %s_nokvs" % name)
    a("s_and_b32 s36, s2, 15")
    a("s_lshl_b32 s36, s36, 2")
    a("s_add_u32 s36, s36, 128")
    a("v_mov_b32 v10, s36")
    a("buffer_atomic_add v11, v10, s[60:63], 0 offen sc1")
    a.label("%s_nokvs" % name)
    a("s_mov_b64 exec, -1")
    a.label("%s_ghk" % name)
    a("s_cmp_lg_u32 s33, 24")
    a("s_cbranch_scc1 %s_ghk2" % name)
    a("v_lshlrev_b32 v10, 2, v3")
    a("buffer_load_dword v254, v10, s[60:63], 0 offen offset:128 sc1")
    a.label("%s_ghk2" % name)
    a("s_cmp_lt_u32 s33, 32")
    a("s_cbranch_scc1 %s_gloop" % name)
    trk.drain()
    stamp(a, 6)
    G3.emit_k2_epilogue2(a, core, Z1R, BI, " sc1")
    stamp(a, 7)
    a("s_setprio 3")
    a("s_lshl_b32 s36, s22, 4")
    a("s_add_u32 s36, s36, s23")
    a("s_lshl_b32 s36, s36, 8")
    a("s_add_u32 s97, s36, 0x%x" % (ZFLG + PFL))
    c_common()
    a("v_lshlrev_b32 v14, 4, v2")
    a("s_mul_i32 s26, s22, %d" % (36 * 8192))
    a("s_lshl_b32 s24, s3, 12")
    a("s_add_u32 s26, s26, s24")
    a("s_add_u32 s26, s26, 0x%x" % PIMG)
    a("s_mul_i32 s27, s23, %d" % (18 * 20480))
    a("s_mul_i32 s25, s3, 5120")
    a("s_add_u32 s27, s27, s25")
    a("s_add_u32 s27, s27, 0x%x" % WOT)
    a("s_add_u32 s25, s25, %d" % CTREG)
    a("v_and_b32 v28, 15, v2")
    a("v_lshlrev_b32 v30, 2, v28")
    a("v_mov_b32 v26, %d" % LC)
    a("v_mov_b32 v27, 1")
    a("s_waitcnt vmcnt(0)")
    a("v_mov_b32 v31, v254")
    a("s_mov_b64 exec, 1")
    a("ds_add_rtn_u32 v29, v26, v27 offset:16")
    a("s_waitcnt lgkmcnt(0)")
    a("v_readfirstlane_b32 s36, v29")
    a("s_cmp_lg_u32 s36, 3")
    a("s_cbranch_scc1 %s_nops" % name)
    a("v_mov_b32 v29, 0")
    a("buffer_store_dword v27, v29, s[12:15], s97 offen sc1")
    a.label("%s_nops" % name)
    a("s_mov_b64 exec, -1")
    a("s_mov_b32 s34, 0")
    a.label("%s_cw" % name)
    a("ds_read_b32 v29, v26 offset:16")
    a("s_add_u32 s34, s34, 1")
    a("s_waitcnt lgkmcnt(0)")
    a("v_readfirstlane_b32 s36, v29")
    a("s_cmp_gt_u32 s34, %d" % (SPIN_MAX * 20))
    a("s_cbranch_scc1 %s_cwx" % name)
    a("s_cmp_ge_u32 s36, 4")
    a("s_cbranch_scc1 %s_cwx" % name)
    a("s_sleep 1")
    a("s_branch %s_cw" % name)
    a.label("%s_cwx" % name)
    a("s_mov_b32 s34, 0")
    a.label("%s_cp" % name)
    a("v_cmp_gt_u32 vcc, 16, v31")
    a("s_add_u32 s34, s34, 1")
    a("s_cmp_gt_u32 s34, %d" % SPIN_MAX)
    a("s_cbranch_scc1 %s_cpx" % name)
    a("s_cbranch_vccz %s_cpx" % name)
    a("s_sleep 32")
    a("buffer_load_dword v31, v30, s[60:63], 0 offen offset:128 sc1")
    a("s_waitcnt vmcnt(0)")
    a("s_branch %s_cp" % name)
    a.label("%s_cpx" % name)
    def cF(off, soff):
        a("s_add_u32 s36, s25, %s" % off)
        a("s_mov_b32 m0, s36")
        a("s_add_u32 s37, %s, 4096" % soff)
        for n in range(4):
            a("buffer_load_dwordx4 v14, s[12:15], %s offen offset:%d sc1 lds" % (soff, n * 1024))
        a("s_add_u32 s36, s36, 4096")
        a("s_mov_b32 m0, s36")
        a("s_nop 0")
        a("buffer_load_dwordx4 v14, s[12:15], s37 offen sc1 lds")
    def cT(off, soff):
        a("s_add_u32 s35, s24, %s" % off)
        a("s_mov_b32 m0, s35")
        a("s_nop 0")
        for n in range(4):
            a("buffer_load_dwordx4 v14, s[12:15], %s offen offset:%d sc1 lds" % (soff, n * 1024))
    a("s_add_u32 s38, s27, 20480")
    cF(str(C0), "s27"); cF(str(C0 + CSL), "s38")
    a("s_mov_b32 s34, 0")
    a("s_cmp_lg_u32 s3, 0")
    a("s_cbranch_scc1 %s_cpl" % name)
    a("v_lshlrev_b32 v28, 8, v28")
    a("s_lshr_b32 s39, s22, 1")
    a("s_lshl_b32 s39, s39, 12")
    a("s_add_u32 s39, s39, 0x%x" % (ZFLG + PFL))
    a.label("%s_cpz" % name)
    a("buffer_load_dword v29, v28, s[12:15], s39 offen sc1")
    a("s_add_u32 s34, s34, 1")
    a("s_waitcnt vmcnt(0)")
    a("v_cmp_ne_u32 vcc, 1, v29")
    a("s_cmp_gt_u32 s34, %d" % SPIN_MAX)
    a("s_cbranch_scc1 %s_cpzx" % name)
    a("s_cbranch_vccz %s_cpzx" % name)
    a("s_sleep 8")
    a("s_branch %s_cpz" % name)
    a.label("%s_cpzx" % name)
    a("ds_write_b32 v26, v27 offset:24")
    a("s_branch %s_cgo" % name)
    a.label("%s_cpl" % name)
    a("ds_read_b32 v29, v26 offset:24")
    a("s_add_u32 s34, s34, 1")
    a("s_waitcnt lgkmcnt(0)")
    a("v_readfirstlane_b32 s36, v29")
    a("s_cmp_gt_u32 s34, %d" % (SPIN_MAX * 20))
    a("s_cbranch_scc1 %s_cgo" % name)
    a("s_cmp_lg_u32 s36, 0")
    a("s_cbranch_scc1 %s_cgo" % name)
    a("s_sleep 2")
    a("s_branch %s_cpl" % name)
    a.label("%s_cgo" % name)
    stamp(a, 8)
    a("s_add_u32 s38, s26, 16384")
    cT(str(C0), "s26"); cT(str(C0 + CSL), "s38")
    a("s_add_u32 s26, s26, 32768")
    a("s_add_u32 s27, s27, 40960")
    a("s_mov_b32 s33, %d" % RB)
    def cissue():
        cT("s33", "s26"); cF("s33", "s27")
        a("s_add_u32 s26, s26, 16384")
        a("s_add_u32 s27, s27, 20480")
        a("s_add_u32 s33, s33, %d" % CSL)
        a("s_cmp_eq_u32 s33, %d" % CW)
        a("s_cselect_b32 s33, %d, s33" % RB)
    a("s_waitcnt vmcnt(4)")
    a("s_barrier")
    cissue(); cissue()
    a("s_waitcnt vmcnt(18)")
    a("s_barrier")
    a("s_mov_b32 s34, 0")
    a.label("%s_clloop" % name)
    cissue()
    a("s_cmp_lg_u32 s34, 11")
    a("s_cbranch_scc1 %s_cl1" % name)
    a("buffer_load_dword v31, v30, s[60:63], 0 offen offset:192 sc1")
    a("s_waitcnt vmcnt(19)")
    a("s_branch %s_cl2" % name)
    a.label("%s_cl1" % name)
    a("s_waitcnt vmcnt(18)")
    a.label("%s_cl2" % name)
    a("s_barrier")
    a("s_add_u32 s34, s34, 1")
    a("s_cmp_lt_u32 s34, 14")
    a("s_cbranch_scc1 %s_clloop" % name)
    a("s_mov_b32 s34, 0")
    a.label("%s_cy" % name)
    a("v_cmp_gt_u32 vcc, 16, v31")
    a("s_add_u32 s34, s34, 1")
    a("s_cmp_gt_u32 s34, %d" % SPIN_MAX)
    a("s_cbranch_scc1 %s_cyx" % name)
    a("s_cbranch_vccz %s_cyx" % name)
    a("s_sleep 32")
    a("buffer_load_dword v31, v30, s[60:63], 0 offen offset:192 sc1")
    a("s_waitcnt vmcnt(0)")
    a("s_branch %s_cy" % name)
    a.label("%s_cyx" % name)
    a("v_lshrrev_b32 v3, 3, v2")
    a("v_and_b32 v4, 7, v2")
    a("v_lshlrev_b32 v4, 4, v4")
    a("s_mul_i32 s33, s52, 144")
    a("s_mul_i32 s34, s53, 80")
    a("s_lshl_b32 s35, s22, 7")
    a("s_add_u32 s35, s35, 0x%x" % YT)
    for n in range(3):
        a("s_add_u32 s36, s3, %d" % (4 * n))
        if n == 2: a("s_min_u32 s36, s36, 9")
        a("s_lshl_b32 s37, s36, 3")
        a("s_add_u32 s38, s37, s33")
        if n < 2: a("s_add_u32 s38, s38, s34")
        a("v_add_u32 v5, s38, v3")
        a("v_lshl_add_u32 v5, v5, 12, v4")
        a("s_lshl_b32 s36, s36, 10")
        a("s_add_u32 s36, s36, %d" % YOFF)
        a("s_mov_b32 m0, s36")
        a("s_nop 0")
        a("buffer_load_dwordx4 v5, s[12:15], s35 offen sc1 lds")
    fin_loads()
    a("s_waitcnt vmcnt(%d)" % (9 + 7))
    a("s_barrier")
    a("s_waitcnt vmcnt(7)")
    a("s_barrier")
    a("s_barrier")
    a("s_setprio 0")
    a("s_waitcnt vmcnt(0)")
    a("s_branch %s_cfin" % name)
    a.label("%s_A1" % name)
    a("s_setprio 2")
    vmA = VmTracker(a)
    PB = 132
    def aux_head():
        epi_in()
        for tt in range(4):
            a("v_mov_b32 v%d, 0" % S[tt]); a("v_mov_b32 v%d, 0" % Q[tt])
    def aux_pub():
        a("s_nop 2")
        emit_xg_reduce(a, S + Q, 72)
        a("v_lshrrev_b32 v10, 4, v2")
        for g in range(1, 4):
            a("v_cmp_eq_u32 vcc, %d, v10" % g)
            a("s_nop 1")
            a("v_cndmask_b32 v%d, v%d, v%d, vcc" % (S[0], S[0], S[g]))
            a("v_cndmask_b32 v%d, v%d, v%d, vcc" % (Q[0], Q[0], Q[g]))
        a("v_and_b32 v%d, 0x7fffffff, v%d" % (Q[0], Q[0]))
        a("buffer_store_dwordx2 v[%d:%d], v94, s[12:15], s58 offen sc1" % (S[0], Q[0]))
    chunks = [capture(aux_head) + capture(gelu_ft, 0, True), capture(gelu_ft, 1, True), capture(gelu_ft, 2, True),
              capture(gelu_ft, 3, True), capture(gelu_ft, 4, True) + capture(aux_pub)]
    KD = 172
    for k in range(9, 18):
        a("s_barrier")
        if k == 9:
            a("s_cmp_lg_u32 s3, 0")
            a("s_cbranch_scc1 %s_nosig" % name)
            a("v_mov_b32 v10, 1")
            a("s_lshl_b32 s36, s22, 2")
            a("v_mov_b32 v11, s36")
            a("s_mov_b64 exec, 1")
            a("buffer_atomic_add v10, v11, s[60:63], 0 offen sc1")
            a("s_mov_b64 exec, -1")
            a.label("%s_nosig" % name)
        g = k + 3
        dma = capture(lambda: (issueT(g), issueF(g))) if g < 18 else []
        comp = chunks[k - 9] if k - 9 < len(chunks) else []
        a.lines.extend(dma); a.lines.extend(comp)
        if k == 13: vmA.issue("pub", 1)
        if g < 18: vmA.issue("S%d" % g, 9)
        if k == 14:
            srd(a, 92, 78, 2048 * 2048 * 2)
            a("v_lshrrev_b32 v10, 4, v2")
            a("v_lshlrev_b32 v10, 12, v10")
            a("v_lshl_add_u32 v10, v3, 4, v10")
            a("s_lshl_b32 s40, s22, 7")
            a("s_lshl_b32 s36, s3, 5")
            a("s_add_u32 s40, s40, s36")
            a("s_lshl_b32 s40, s40, 12")
            a("s_lshl_b32 s36, s23, 8")
            a("s_add_u32 s40, s40, s36")
            for n in range(8):
                a("buffer_load_dwordx4 v[200:203], v10, s[92:95], s40 offen")
                if n < 7: a("s_add_u32 s40, s40, 16384")
            vmA.issue("wp", 8)
            a("s_lshl_b32 s36, s22, 2")
            a("v_mov_b32 v199, s36")
            a("buffer_load_dword v198, v199, s[60:63], 0 offen sc1"); vmA.issue("cnt", 1)
        if k + 2 < 18 and k + 2 >= 12:
            vmA.wait(["S%d" % (k + 2)])
    a("s_barrier")
    stamp(a, 3)
    a("s_load_dwordx4 s[88:91], s[0:1], 32")
    Z2 = ZP
    a("v_and_b32 v4, 31, v2")
    a("v_lshlrev_b32 v4, 4, v4")
    a("v_lshrrev_b32 v10, 5, v2")
    a("v_lshl_add_u32 v4, v10, 10, v4")
    for q in range(8): a("s_add_u32 s%d, s59, %d" % ((52, 53, 42, 43, 40, 41, 38, 39)[q], 4096 * q))
    GB = 128
    def gather():
        for q in range(16):
            a("buffer_load_dwordx4 %s, v4, s[12:15], s%d offen offset:%d sc1" % (vr(GB + 4 * q), (52, 53, 42, 43, 40, 41, 38, 39)[q >> 1], 2048 * (q & 1)))
    a("s_waitcnt vmcnt(0)")
    gather()
    a("s_mov_b32 s33, 0")
    a("s_waitcnt vmcnt(0)")
    a.label("%s_chk" % name)
    a("v_subrev_u32 v11, 16, v198")
    for q in range(16):
        a("v_or3_b32 v11, v11, v%d, v%d" % (GB + 4 * q + 1, GB + 4 * q + 3))
    a("v_cmp_gt_i32 vcc, 0, v11")
    a("s_add_u32 s33, s33, 1")
    a("s_cmp_gt_u32 s33, %d" % SPIN_MAX)
    a("s_cbranch_scc1 %s_ok" % name)
    a("s_cbranch_vccz %s_ok" % name)
    a("s_sleep 32")
    a("buffer_load_dword v198, v199, s[60:63], 0 offen sc1")
    a("s_waitcnt vmcnt(0)")
    gather()
    a("s_waitcnt vmcnt(0)")
    a("s_branch %s_chk" % name)
    a.label("%s_ok" % name)
    stamp(a, 5)
    for st_ in (32, 16, 8, 4):
        for q in range(0, st_, 2):
            a("v_pk_add_f32 %s, %s, %s" % (vr(GB + q, 2), vr(GB + q, 2), vr(GB + q + st_, 2)))
    for e in range(4): a("v_mov_b32 v%d, v%d" % (72 + e, GB + e))
    a("s_nop 1")
    for e in range(4): a("v_permlane32_swap_b32 v%d, v%d" % (GB + e, 72 + e))
    a("s_nop 1")
    for e in range(4): a("v_add_f32 v%d, v%d, v%d" % (GB + e, GB + e, 72 + e))
    for h in range(2):
        emit_ln_finish(a, GB + 2 * h, GB + 2 * h + 1, 2304, GB + 8 + h, GB + 4 + 2 * h, GB + 12)
        a("v_mul_f32 v%d, -v%d, v%d" % (GB + 5 + 2 * h, GB + 8 + h, GB + 4 + 2 * h))
    a("v_and_b32 v10, 31, v2")
    a("s_lshl_b32 s36, s24, 9")
    a("v_lshl_add_u32 v10, v10, 4, s36")
    a("ds_write_b128 v10, %s offset:1024" % vr(GB + 4))
    a("s_lshl_b32 s37, s25, 8")
    a("s_add_u32 s38, s36, s37")
    a("s_xor_b32 s37, s37, 256")
    a("s_add_u32 s39, s36, s37")
    a("v_lshlrev_b32 v10, 3, v3")
    a("v_add_u32 v11, s38, v10")
    a("v_add_u32 v10, s39, v10")
    a("s_waitcnt lgkmcnt(0)")
    a("ds_read_b64 %s, v11 offset:1024" % vr(MR, 2))
    a("ds_read_b64 %s, v11 offset:1152" % vr(MR + 2, 2))
    a("ds_read_b64 %s, v10 offset:1024" % vr(MR + 4, 2))
    a("ds_read_b64 %s, v10 offset:1152" % vr(MR + 6, 2))
    a("v_lshrrev_b32 v10, 4, v2")
    a("v_lshrrev_b32 v11, 2, v2"); a("v_and_b32 v11, 1, v11"); a("v_lshlrev_b32 v11, 4, v11")
    a("v_lshrrev_b32 v5, 3, v2"); a("v_and_b32 v5, 1, v5"); a("v_lshl_add_u32 v11, v5, 2, v11")
    a("v_and_b32 v5, 3, v2"); a("v_add_u32 v11, v11, v5")
    a("v_and_b32 v5, 1, v10")
    a("v_lshl_add_u32 v11, v5, 3, v11")
    a("v_lshlrev_b32 v11, 5, v11")
    a("v_lshrrev_b32 v5, 1, v10")
    a("v_lshl_add_u32 v6, v5, 4, v11")
    a("s_lshl_b32 s33, s23, 5")
    a("s_lshl_b32 s36, s22, 1")
    a("s_add_u32 s33, s33, s36")
    a("s_add_u32 s33, s33, s24")
    a("s_mul_i32 s33, s33, 18432")
    if ZIMG: a("s_add_u32 s33, s33, 0x%x" % ZIMG)
    a("s_lshl_b32 s36, s25, 10")
    a("s_add_u32 s39, s33, s36")
    a("s_add_u32 s39, s39, 8192")
    a("s_mul_i32 s38, s25, 10240")
    a("s_add_u32 s33, s33, s38")
    a("s_add_u32 s37, s33, s36")
    a("s_xor_b32 s36, s36, 1024")
    a("s_add_u32 s38, s33, s36")
    a("s_add_u32 s33, s37, 4096")
    a("s_add_u32 s36, s38, 4096")
    def norm_pair(nA, ttA, nB, ttB, O):
        for q, (n, tt) in enumerate(((nA, ttA), (nB, ttB))):
            for d in range(2):
                z = Z2 + 2 * n + d; t = T + 4 * q + 2 * d
                a("v_lshlrev_b32 v%d, 16, v%d" % (t, z))
                a("v_and_b32 v%d, 0xffff0000, v%d" % (t + 1, z))
        for q, (n, tt) in enumerate(((nA, ttA), (nB, ttB))):
            for d in range(2):
                t = T + 4 * q + 2 * d
                a("v_pk_fma_f32 %s, %s, %s, %s op_sel:[0,0,1] op_sel_hi:[1,0,1]" % (vr(t, 2), vr(t, 2), vr(MR + 2 * tt, 2), vr(MR + 2 * tt, 2)))
        for q in range(2):
            for d in range(2):
                t = T + 4 * q + 2 * d
                a("v_cvt_pk_bf16_f32 v%d, v%d, v%d" % (O + 2 * q + d, t, t + 1))
        a("s_nop 1")
        a("v_permlane16_swap_b32 v%d, v%d" % (O, O + 2))
        a("v_permlane16_swap_b32 v%d, v%d" % (O + 1, O + 3))
    a("s_waitcnt lgkmcnt(0)")
    cnt = 0
    for ft in range(4):
        for pp in range(2):
            O = 200 + 4 * cnt; cnt += 1
            norm_pair(tidx(ft, 2 * pp), 2 * pp, tidx(ft, 2 * pp + 1), 2 * pp + 1, O)
            a("s_nop 0")
            a("buffer_store_dwordx4 %s, v6, s[12:15], s%d offen offset:%d sc1" % (vr(O), ((37, 38), (33, 36))[ft >> 1][pp], (ft & 1) * 2048))
    O = 200 + 4 * cnt
    norm_pair(16, 0, 17, 1, O)
    a("s_nop 0")
    a("buffer_store_dwordx4 %s, v6, s[12:15], s39 offen sc1" % vr(O))
    stamp(a, 6)
    a("s_setprio 3")
    srd(a, 8, 78, 2048 * 2048 * 2)
    a("v_lshrrev_b32 v3, 3, v2")
    a("s_lshl_b32 s24, s3, 5")
    a("v_add_u32 v3, s24, v3")
    a("v_and_b32 v4, 7, v2")
    a("v_lshrrev_b32 v6, 4, v2")
    a("v_xor_b32 v6, v6, v4")
    a("v_lshlrev_b32 v6, 4, v6")
    a("v_lshl_add_u32 v10, v3, 12, v6")
    a("v_xor_b32 v11, 64, v10")
    a("v_add_u32 v11, %d, v11" % (32768 - 1024))
    a("v_add_u32 v12, %d, v10" % (2 * (32768 - 1024)))
    a("v_add_u32 v13, %d, v11" % (2 * (32768 - 1024)))
    a("v_lshlrev_b32 v14, 4, v2")
    a("s_lshl_b32 s26, s22, 19")
    a("s_mul_i32 s27, s23, %d" % (32 * 18432))
    a("s_lshl_b32 s24, s3, 12")
    a("s_add_u32 s27, s27, s24")
    if ZIMG: a("s_add_u32 s27, s27, 0x%x" % ZIMG)
    a("s_lshl_b32 s25, s3, 9")
    a("s_sub_u32 s32, s25, s24")
    a("s_add_u32 s32, s32, 16384")
    a("s_add_u32 s24, s24, %d" % RB)
    a("s_waitcnt vmcnt(0) lgkmcnt(0)")
    a("v_mov_b32 v26, %d" % LC)
    a("v_mov_b32 v27, 1")
    a("s_mov_b64 exec, 1")
    a("ds_add_rtn_u32 v28, v26, v27")
    a("s_waitcnt lgkmcnt(0)")
    a("v_readfirstlane_b32 s36, v28")
    a("s_cmp_lg_u32 s36, 3")
    a("s_cbranch_scc1 %s_nozs" % name)
    a("v_mov_b32 v28, 0")
    a("buffer_store_dword v27, v28, s[12:15], s97 offen sc1")
    a.label("%s_nozs" % name)
    a("s_mov_b64 exec, -1")
    stamp(a, 7)
    srd(a, 16, 88, 576 * 2048 * 2)
    srd(a, 84, 90, 576 * 2)
    for g in range(4):
        a("s_add_u32 s35, s24, %d" % (g * SLOT))
        a("s_mov_b32 m0, s35")
        a("s_add_u32 s36, s26, %d" % (128 * g))
        for n in range(4):
            a("buffer_load_dwordx4 v%d, s[8:11], s36 offen offset:%d lds" % (10 + n, n * 1024))
    a("s_mov_b32 s34, 0")
    a("s_cmp_lg_u32 s3, 0")
    a("s_cbranch_scc1 %s_pl" % name)
    a("v_and_b32 v28, 15, v2")
    a("v_lshlrev_b32 v30, 2, v28")
    a("v_lshlrev_b32 v28, 12, v28")
    a("s_lshl_b32 s52, s23, 8")
    a("s_add_u32 s52, s52, 0x%x" % ZFLG)
    a.label("%s_pz0" % name)
    a("buffer_load_dword v31, v30, s[60:63], 0 offen sc1")
    a("s_add_u32 s34, s34, 1")
    a("s_waitcnt vmcnt(0)")
    a("v_cmp_gt_u32 vcc, 16, v31")
    a("s_cmp_gt_u32 s34, %d" % SPIN_MAX)
    a("s_cbranch_scc1 %s_pz" % name)
    a("s_cbranch_vccz %s_pz" % name)
    a("s_sleep 32")
    a("s_branch %s_pz0" % name)
    a.label("%s_pz" % name)
    a("buffer_load_dword v29, v28, s[12:15], s52 offen sc1")
    a("s_add_u32 s34, s34, 1")
    a("s_waitcnt vmcnt(0)")
    a("v_cmp_ne_u32 vcc, 1, v29")
    a("s_cmp_gt_u32 s34, %d" % SPIN_MAX)
    a("s_cbranch_scc1 %s_pzx" % name)
    a("s_cbranch_vccz %s_pzx" % name)
    a("s_sleep 8")
    a("s_branch %s_pz" % name)
    a.label("%s_pzx" % name)
    a("v_mov_b32 v27, 1")
    a("ds_write_b32 v26, v27 offset:4")
    a("s_branch %s_pgo" % name)
    a.label("%s_pl" % name)
    a("ds_read_b32 v27, v26 offset:4")
    a("s_add_u32 s34, s34, 1")
    a("s_waitcnt lgkmcnt(0)")
    a("v_readfirstlane_b32 s36, v27")
    a("s_cmp_gt_u32 s34, %d" % (SPIN_MAX * 20))
    a("s_cbranch_scc1 %s_pgo" % name)
    a("s_cmp_lg_u32 s36, 0")
    a("s_cbranch_scc1 %s_pgo" % name)
    a("s_sleep 2")
    a("s_branch %s_pl" % name)
    a.label("%s_pgo" % name)
    stamp(a, 8)
    for g in range(4):
        a("s_add_u32 s35, s24, %d" % (g * SLOT + TREG))
        a("s_mov_b32 m0, s35")
        a("s_add_u32 s36, s27, %d" % (18432 * g))
        a("s_add_u32 s37, s36, s32")
        for n in range(4):
            a("buffer_load_dwordx4 v14, s[12:15], s36 offen offset:%d sc1 lds" % (n * 1024))
        a("s_add_u32 s35, s35, s32")
        a("s_mov_b32 m0, s35")
        a("s_mov_b64 exec, 0xffffffff")
        a("buffer_load_dwordx4 v14, s[12:15], s37 offen sc1 lds")
        a("s_mov_b64 exec, -1")
    a("s_add_u32 s26, s26, 512")
    a("s_add_u32 s27, s27, %d" % (4 * 18432))
    a("s_mov_b32 s33, 0")
    a("s_lshl_b32 s43, s2, 2")
    a("s_add_u32 s43, s43, s3")
    a("s_and_b32 s53, s43, 1")
    a("s_sub_u32 s36, s43, 448")
    a("s_lshr_b32 s37, s43, 1")
    a("s_cmp_ge_u32 s43, 896")
    a("s_cselect_b32 s43, s36, s37")
    a("s_cselect_b32 s53, 2, s53")
    a("s_waitcnt vmcnt(15)")
    a("s_barrier")
    a("s_waitcnt vmcnt(10)")
    a("s_barrier")
    a("s_waitcnt vmcnt(5)")
    a("s_barrier")
    a("s_mov_b32 s34, 4")
    def issue2():
        a("s_add_u32 s35, s33, s24")
        a("s_mov_b32 m0, s35")
        a("s_add_u32 s36, s35, %d" % TREG)
        for n in range(4):
            a("buffer_load_dwordx4 v%d, s[8:11], s26 offen offset:%d lds" % (10 + n, n * 1024))
        a("s_mov_b32 m0, s36")
        a("s_add_u32 s37, s27, s32")
        for n in range(4):
            a("buffer_load_dwordx4 v14, s[12:15], s27 offen offset:%d sc1 lds" % (n * 1024))
        a("s_add_u32 s36, s36, s32")
        a("s_mov_b32 m0, s36")
        a("s_mov_b64 exec, 0xffffffff")
        a("buffer_load_dwordx4 v14, s[12:15], s37 offen sc1 lds")
        a("s_mov_b64 exec, -1")
        a("s_add_u32 s26, s26, 128")
        a("s_add_u32 s27, s27, 18432")
        a("s_add_u32 s33, s33, %d" % SLOT)
        a("s_cmp_eq_u32 s33, %d" % (R * SLOT))
        a("s_cselect_b32 s33, 0, s33")
    a.label("%s_lloop" % name)
    issue2()
    a("s_cmp_eq_u32 s34, 18")
    a("s_cbranch_scc1 %s_hk1" % name)
    a("s_cmp_eq_u32 s34, 21")
    a("s_cbranch_scc1 %s_hk2" % name)
    a("s_waitcnt vmcnt(9)")
    a.label("%s_lcont" % name)
    a("s_barrier")
    a("s_add_u32 s34, s34, 1")
    a("s_cmp_lt_u32 s34, 32")
    a("s_cbranch_scc1 %s_lloop" % name)
    a("s_branch %s_ldone" % name)
    a.label("%s_hk1" % name)
    a("v_and_b32 v28, 15, v2")
    a("v_lshlrev_b32 v28, 2, v28")
    a("buffer_load_dword v29, v28, s[60:63], 0 offen offset:128 sc1")
    a("s_waitcnt vmcnt(10)")
    a("s_branch %s_lcont" % name)
    a.label("%s_hk2" % name)
    a("s_mov_b32 s52, 0")
    a.label("%s_hk2l" % name)
    a("v_cmp_gt_u32 vcc, 16, v29")
    a("s_add_u32 s52, s52, 1")
    a("s_cmp_gt_u32 s52, %d" % SPIN_MAX)
    a("s_cbranch_scc1 %s_hk2g" % name)
    a("s_cbranch_vccz %s_hk2g" % name)
    a("s_sleep 16")
    a("buffer_load_dword v29, v28, s[60:63], 0 offen offset:128 sc1")
    a("s_waitcnt vmcnt(0)")
    a("s_branch %s_hk2l" % name)
    a.label("%s_hk2g" % name)
    nconv = emit_conv_loads(a, " sc1")
    a("s_waitcnt vmcnt(%d)" % (9 + nconv))
    a("s_branch %s_lcont" % name)
    a.label("%s_ldone" % name)
    a("s_waitcnt vmcnt(0)")
    a("s_barrier")
    a("s_mov_b32 s26, s53")
    a("s_and_b32 s27, s3, 1")
    a("s_mul_i32 s27, s27, %d" % CJ_SIZE)
    a("s_lshr_b32 s36, s3, 1")
    a("s_mul_i32 s36, s36, %d" % SLOT)
    a("s_add_u32 s27, s27, s36")
    a("s_add_u32 s27, s27, %d" % RB)
    def mid():
        a("s_barrier")
        a("s_setprio 0")
    sv = set(DBG); DBG.discard("stamp")
    lb_ = len(a.lines)
    emit_conv_job(a, name, mid)
    for n_ in range(lb_, len(a.lines)):
        if "buffer_store_dwordx2" in a.lines[n_]: a.lines[n_] += " sc1"
    DBG.update(sv)
    stamp(a, 9)
    c_common()
    cTa = [4, 4]; cTb = [6, 6]; cF_ = 8; cFh = 9
    kTa = 88; kTb = 90; kF = 92; kFh = 93
    a("v_and_b32 v3, 15, v2")
    a("v_lshrrev_b32 v10, 5, v2")
    a("v_lshlrev_b32 v10, 11, v10")
    a("v_bfe_u32 v11, v2, 4, 1")
    a("v_lshl_add_u32 v10, v11, 4, v10")
    a("v_lshl_add_u32 v10, v3, 5, v10")
    a("s_lshl_b32 s26, s3, 12")
    a("v_add_u32 v10, s26, v10")
    a("s_lshl_b32 s26, s53, 10")
    a("v_add_u32 v%d, s26, v10" % kTa)
    a("s_xor_b32 s26, s26, 1024")
    a("v_add_u32 v%d, s26, v10" % kTb)
    a("v_lshrrev_b32 v10, 2, v2")
    a("v_mul_u32_u24 v10, %d, v10" % CFS)
    a("v_and_b32 v11, 3, v2")
    a("v_lshl_add_u32 v10, v11, 3, v10")
    a("s_mul_i32 s26, s3, %d" % (32 * CFS))
    a("s_add_u32 s26, s26, %d" % CTREG)
    a("v_add_u32 v%d, s26, v10" % kF)
    a("v_add_u32 v%d, 128, v%d" % (kFh, kF))
    a("v_mov_b32 v26, %d" % LC)
    a("v_mov_b32 v27, 1")
    a("s_waitcnt vmcnt(0)")
    a("s_mov_b64 exec, 1")
    a("ds_add_rtn_u32 v28, v26, v27 offset:20")
    a("s_waitcnt lgkmcnt(0)")
    a("v_readfirstlane_b32 s36, v28")
    a("s_cmp_lg_u32 s36, 3")
    a("s_cbranch_scc1 %s_nocs" % name)
    a("s_and_b32 s36, s2, 15")
    a("s_lshl_b32 s36, s36, 2")
    a("s_add_u32 s36, s36, 192")
    a("v_mov_b32 v28, s36")
    a("buffer_atomic_add v27, v28, s[60:63], 0 offen sc1")
    a.label("%s_nocs" % name)
    a("s_mov_b64 exec, -1")
    fin_loads()
    core3 = G.Core(a, ACC, FB[0], FB[1], CFS, CTREG, cTa, cTb, cF_, cFh, TT=512)
    pairs = ((cTa[0], kTa), (cF_, kF), (cTb[0], kTb), (cFh, kFh))
    a("s_mov_b32 s27, %d" % C0)
    for d, s_ in pairs: a("v_add_u32 v%d, s27, v%d" % (d, s_))
    for r in range(ACC, ACC + 72): a("v_mov_b32 v%d, 0" % r)
    a("s_mov_b32 s33, 0")
    a("s_barrier")
    stamp(a, 10)
    core3.prime(0, core3.reads(0, 0))
    def citer(buf):
        core3.trk.drain()
        a("s_barrier")
        a("s_add_u32 s27, s27, %d" % CSL)
        a("s_cmp_eq_u32 s27, %d" % CW)
        a("s_cselect_b32 s27, %d, s27" % RB)
        pre = ["v_add_u32 v%d, s27, v%d" % (d, s_) for d, s_ in pairs]
        core3.phase(buf, core3.reads(1 - buf, 0), pre=pre)
    a.label("%s_ccloop" % name)
    citer(0); citer(1)
    a("s_add_u32 s33, s33, 1")
    a("s_cmp_lt_u32 s33, 9")
    a("s_cbranch_scc1 %s_ccloop" % name)
    core3.trk.drain()
    stamp(a, 11)
    a("s_mul_i32 s33, s3, %d" % (18 * 1024))
    a("s_add_u32 s33, s33, %d" % C0)
    a("v_lshlrev_b32 v10, 4, v2")
    a("v_add_u32 v11, s33, v10")
    a("s_nop 4")
    for n, (ft, tt) in enumerate(TILES):
        a("ds_write_b128 v11, %s offset:%d" % (vr(core3.accr(ft, tt)), 1024 * tidx(ft, tt)))
        if n in (7, 13): a("s_waitcnt lgkmcnt(4)")
    a("s_waitcnt lgkmcnt(0) vmcnt(0)")
    a.label("%s_cfin" % name)
    a("s_barrier")
    stamp(a, 12)
    a("v_lshlrev_b32 v10, 4, v2")
    a("v_lshrrev_b32 v11, 2, v2")
    a("v_lshlrev_b32 v11, 7, v11")
    a("v_and_b32 v12, 3, v2")
    a("v_lshl_add_u32 v11, v12, 3, v11")
    a("s_mov_b32 s33, 0xbfb8aa3b")
    PT = 16; YR = 64
    for s_ in range(3):
        b = 64 + 4 * s_
        if s_ == 2:
            a("s_cmp_ge_u32 s54, 2")
            a("s_cbranch_scc1 %s_rd" % name)
        a("v_add_u32 v4, s%d, v10" % (b + 2))
        a("v_add_u32 v5, s%d, v11" % (b + 1))
        for q in range(4):
            a("ds_read_b128 %s, v4 offset:%d" % (vr(PT + 16 * s_ + 4 * q), 18432 * q))
        a("ds_read_b64_tr_b16 %s, v5" % vr(YR + 2 * s_, 2))
    a.label("%s_rd" % name)
    T = 104
    for s_ in range(3):
        b = 64 + 4 * s_
        if s_ == 0: a("s_waitcnt lgkmcnt(5)")
        if s_ == 1: a("s_waitcnt lgkmcnt(0)")
        if s_ == 2:
            a("s_cmp_ge_u32 s54, 2")
            a("s_cbranch_scc1 %s_done" % name)
        o = PT + 16 * s_; X = XR + 2 * s_; Y = YR + 2 * s_; S_ = ST + 2 * s_
        for h in (0, 2):
            a("v_pk_add_f32 %s, %s, %s" % (vr(o + h, 2), vr(o + h, 2), vr(o + 4 + h, 2)))
            a("v_pk_add_f32 %s, %s, %s" % (vr(o + 8 + h, 2), vr(o + 8 + h, 2), vr(o + 12 + h, 2)))
        for h in (0, 2):
            a("v_pk_add_f32 %s, %s, %s" % (vr(o + h, 2), vr(o + h, 2), vr(o + 8 + h, 2)))
        rnd_pair(a, T + 20, o, o + 1); rnd_pair(a, T + 21, o + 2, o + 3)
        for r in range(4): a("v_mul_f32 v%d, s33, v%d" % (T + r, o + r))
        for r in range(4): a("v_exp_f32 v%d, v%d" % (T + r, T + r))
        a("v_lshlrev_b32 v%d, 16, v%d" % (T + 4, X)); a("v_and_b32 v%d, 0xffff0000, v%d" % (T + 5, X))
        a("v_lshlrev_b32 v%d, 16, v%d" % (T + 6, X + 1)); a("v_and_b32 v%d, 0xffff0000, v%d" % (T + 7, X + 1))
        for r in range(4): a("v_add_f32 v%d, 1.0, v%d" % (T + r, T + r))
        for r in range(4): a("v_rcp_f32 v%d, v%d" % (T + r, T + r))
        for r in range(4): a("v_sub_f32 v%d, v%d, v%d" % (T + 12 + r, T + 4 + r, S_))
        a("v_lshlrev_b32 v%d, 16, v%d" % (T + 8, Y)); a("v_and_b32 v%d, 0xffff0000, v%d" % (T + 9, Y))
        a("v_lshlrev_b32 v%d, 16, v%d" % (T + 10, Y + 1)); a("v_and_b32 v%d, 0xffff0000, v%d" % (T + 11, Y + 1))
        for r in range(4): a("v_mul_f32 v%d, v%d, v%d" % (o + r, o + r, T + r))
        rnd_pair(a, T + 20, T + 12, T + 13); rnd_pair(a, T + 21, T + 14, T + 15)
        rnd_pair(a, T + 22, o, o + 1); rnd_pair(a, T + 23, o + 2, o + 3)
        for r in range(4): a("v_mul_f32 v%d, v%d, v%d" % (T + 12 + r, T + 12 + r, S_ + 1))
        rnd_pair(a, T + 20, T + 12, T + 13); rnd_pair(a, T + 21, T + 14, T + 15)
        for r in range(4): a("v_mul_f32 v%d, v%d, v%d" % (T + 12 + r, T + 12 + r, T + 8 + r))
        rnd_pair(a, T + 20, T + 12, T + 13); rnd_pair(a, T + 21, T + 14, T + 15)
        for r in range(4): a("v_mul_f32 v%d, v%d, v%d" % (T + 12 + r, T + 12 + r, o + r))
        rnd_pair(a, T + 20, T + 12, T + 13); rnd_pair(a, T + 21, T + 14, T + 15)
        for r in range(4): a("v_add_f32 v%d, v%d, v%d" % (T + 12 + r, T + 12 + r, T + 4 + r))
        a("v_cvt_pk_bf16_f32 v%d, v%d, v%d" % (X, T + 12, T + 13))
        a("v_cvt_pk_bf16_f32 v%d, v%d, v%d" % (X + 1, T + 14, T + 15))
        a("buffer_store_dwordx2 %s, v13, s[28:31], s%d offen" % (vr(X, 2), b))
    a.label("%s_done" % name)
    stamp(a, 13)
    G.stamp_rt(a, 1)
    a.label("%s_end" % name)
    a("s_endpgm")
    for ft in range(5):
        a.label("%s_gsub%d" % (name, ft))
        tts = range(4 if ft < 4 else 2)
        emit_fold_gelu(a, [(128 + 4 * tidx(ft, tt), CS + 4 * ft, MR + 2 * tt, ZP + 2 * tidx(ft, tt)) for tt in tts], 72)
        a("s_setpc_b64 s[34:35]")
    return a.text(), kernel_desc(name, 256, 256), (name, 256, 512, 163840)

def gen_kf9(name="k1_kernel", R=4):
    a = Asm()
    RB = 4096; SLOT = 34816; TREG = 16384; FS = 288; RST = 0
    LDSB = RB + R * SLOT
    LC = 2048
    ZFLG = 0x2D00000; PFL = 128
    C0 = 77824; CW = 151552; CSL = 36864; YOFF = 151552; CTREG = 16384; CFS = 160
    from gen3 import emit_conv_loads, emit_conv_job, CJ_SIZE
    def capture(f, *args):
        lb = len(a.lines); f(*args); out = a.lines[lb:]; del a.lines[lb:]; return out

    def c_common():
        a("s_load_dwordx2 s[4:5], s[0:1], 0")
        a("s_load_dwordx2 s[16:17], s[0:1], 88")
        a("s_and_b32 s20, s2, 7")
        a("s_lshr_b32 s21, s2, 3")
        a("s_and_b32 s22, s20, 3")
        a("s_lshl_b32 s22, s22, 3")
        a("s_and_b32 s23, s21, 7")
        a("s_add_u32 s22, s22, s23")
        a("s_lshr_b32 s23, s20, 2")
        a("s_lshl_b32 s23, s23, 2")
        a("s_lshr_b32 s24, s21, 3")
        a("s_add_u32 s23, s23, s24")
        a("s_lshr_b32 s52, s23, 1")
        a("s_and_b32 s53, s23, 1")
        a("s_lshl_b32 s54, s98, 2")
        a("s_add_u32 s54, s54, s3")
        a("s_waitcnt lgkmcnt(0)")
        srd(a, 8, 4, 2048 * 576 * 2)
        srd(a, 28, 16, 2048 * 576 * 2)
    XR = 200; ST = 208
    def fin_loads():
        a("v_and_b32 v3, 15, v2")
        a("v_lshrrev_b32 v10, 4, v2")
        a("v_mul_u32_u24 v13, 1152, v3")
        a("v_lshl_add_u32 v13, v10, 3, v13")
        a("v_lshlrev_b32 v12, 3, v3")
        for s_ in range(3):
            if s_ == 2:
                a("s_cmp_ge_u32 s54, 2")
                a("s_cbranch_scc1 %s_fl%d" % (name, fin_loads.cnt))
            b = 64 + 4 * s_
            if s_ < 2:
                a("s_add_u32 s36, s54, %d" % (8 * s_))
                a("s_lshr_b32 s37, s36, 2")
                a("s_and_b32 s38, s36, 3")
                a("s_mul_i32 s39, s53, 160")
                a("s_lshl_b32 s40, s37, 5")
                a("s_add_u32 s39, s39, s40")
            else:
                a("s_add_u32 s36, s54, 16")
                a("s_mov_b32 s37, 4")
                a("s_mov_b32 s38, s54")
                a("s_mov_b32 s39, 128")
            a("s_lshl_b32 s40, s53, 1")
            a("s_add_u32 s38, s38, s40")
            a("s_and_b32 s38, s38, 3")
            a("s_lshl_b32 s40, s22, 2")
            a("s_add_u32 s40, s40, s38")
            a("s_lshl_b32 s40, s40, 4")
            a("s_mul_i32 s%d, s40, 1152" % b)
            a("s_add_u32 s%d, s%d, s39" % (b, b))
            a("s_mul_i32 s39, s52, 288")
            a("s_add_u32 s%d, s%d, s39" % (b, b))
            a("s_lshl_b32 s%d, s37, 11" % (b + 1))
            a("s_lshl_b32 s39, s38, 5")
            a("s_add_u32 s%d, s%d, s39" % (b + 1, b + 1))
            a("s_add_u32 s%d, s%d, %d" % (b + 1, b + 1, YOFF))
            a("s_lshl_b32 s%d, s36, 10" % (b + 2))
            a("s_add_u32 s%d, s%d, %d" % (b + 2, b + 2, C0))
            a("s_lshl_b32 s40, s40, 3")
            a("s_add_u32 s40, s40, 0x%x" % STATS1)
            a("buffer_load_dwordx2 %s, v13, s[8:11], s%d offen" % (vr(XR + 2 * s_, 2), b))
            a("buffer_load_dwordx2 %s, v12, s[12:15], s40 offen sc1" % vr(ST + 2 * s_, 2))
        a.label("%s_fl%d" % (name, fin_loads.cnt))
        fin_loads.cnt += 1
    fin_loads.cnt = 0
    kernel_begin(a, name)
    a("s_load_dwordx2 s[80:81], s[0:1], 0")
    a("s_load_dwordx2 s[4:5], s[0:1], 56")
    a("s_load_dwordx2 s[6:7], s[0:1], 104")
    a("s_load_dwordx2 s[18:19], s[0:1], 96")
    a("s_cmp_ge_u32 s2, 256")
    a("s_cbranch_scc1 %s_end" % name)
    a("v_lshrrev_b32 v1, 6, v0")
    a("v_and_b32 v2, 63, v0")
    a("v_readfirstlane_b32 s3, v1")
    G2.tile_ij(a)
    a("s_lshr_b32 s98, s3, 2")
    a("s_mov_b32 s54x, 0".replace("s54x", "s99"))
    a("s_and_b32 s3, s3, 3")
    a("s_lshr_b32 s24, s3, 1")
    a("s_and_b32 s25, s3, 1")
    a("v_and_b32 v3, 15, v2")
    VT = 204; VF = 208
    def loader_setup():
        a("v_lshrrev_b32 v5, 3, v2")
        a("v_and_b32 v4, 7, v2")
        a("s_lshl_b32 s36, s3, 5")
        a("v_add_u32 v5, s36, v5")
        a("v_lshrrev_b32 v7, 4, v2")
        a("v_xor_b32 v7, v7, v4")
        a("v_mul_u32_u24 v6, 1152, v5")
        a("v_lshl_add_u32 v%d, v7, 4, v6" % VT)
        a("v_xor_b32 v%d, 64, v%d" % (VT + 1, VT))
        a("v_add_u32 v%d, %d, v%d" % (VT + 1, 9216 - 1024, VT + 1))
        a("v_add_u32 v%d, %d, v%d" % (VT + 2, 2 * (9216 - 1024), VT))
        a("v_add_u32 v%d, %d, v%d" % (VT + 3, 2 * (9216 - 1024), VT + 1))
        a("s_lshl_b32 s84, s3, 12")
        a("s_add_u32 s84, s84, %d" % RB)
        a("s_lshl_b32 s85, s3, 9")
        a("s_add_u32 s85, s85, %d" % (RB + TREG + 16384))
    def loader_setup2():
        for n in range(5):
            if n < 4:
                a("s_lshl_b32 s36, s3, 8")
                a("s_add_u32 s36, s36, %d" % (64 * n))
            else:
                a("s_lshl_b32 s36, s3, 5")
                a("s_add_u32 s36, s36, 1024")
            a("v_add_u32 v6, s36, v2")
            a("v_mul_u32_u24 v7, 3641, v6")
            a("v_lshrrev_b32 v7, 16, v7")
            a("v_mul_u32_u24 v8, 18, v7")
            a("v_sub_u32 v8, v6, v8")
            a("v_and_b32 v9, 35, v7")
            a("v_bfe_u32 v6, v7, 2, 2")
            a("v_lshl_add_u32 v9, v6, 3, v9")
            a("v_bfe_u32 v6, v7, 4, 1")
            a("v_lshl_add_u32 v9, v6, 2, v9")
            a("v_mul_u32_u24 v9, 9216, v9")
            a("v_lshl_add_u32 v%d, v8, 4, v9" % (VF + n))
            if 0 < n < 4: a("v_subrev_u32 v%d, %d, v%d" % (VF + n, 1024 * n, VF + n))
    def issueT(g):
        st = g % 9
        a("s_add_u32 s86, s84, %d" % ((g % R) * SLOT))
        a("s_mov_b32 m0, s86")
        a("s_add_u32 s87, s82, %d" % (128 * st))
        for n in range(4):
            a("buffer_load_dwordx4 v%d, s[28:31], s87 offen offset:%d lds" % (VT + n, 1024 * n))
    def issueF(g):
        st = g % 9
        a("s_add_u32 s86, s84, %d" % ((g % R) * SLOT + TREG))
        a("s_mov_b32 m0, s86")
        a("s_add_u32 s87, s83, %d" % (64 * 9216 * st + (4608 if g < 9 else 0)))
        for n in range(4):
            a("buffer_load_dwordx4 v%d, s[8:11], s87 offen offset:%d lds" % (VF + n, 1024 * n))
        a("s_add_u32 s86, s85, %d" % ((g % R) * SLOT))
        a("s_mov_b32 m0, s86")
        a("s_mov_b64 exec, 0xffffffff")
        a("buffer_load_dwordx4 v%d, s[8:11], s87 offen lds" % (VF + 4))
        a("s_mov_b64 exec, -1")
    def srds_main():
        srd(a, 28, 80, 2048 * 576 * 2)
        srd(a, 8, 4, 576 * 4608 * 2)
        srd(a, 12, 6, WS_BYTES)
        srd(a, 60, 18, 256)
        a("s_mul_i32 s82, s22, %d" % (128 * 1152))
        a("s_mul_i32 s83, s23, 288")
    ACC = 128; FB = [16, 52]; CS = 216; ONE = 236
    vTa = [4, 5]; vTb = [6, 7]; vF = 8; vFh = 9
    bTa = [88, 89]; bTb = [90, 91]; bF = 92; bFh = 93
    def mma_setup():
        a("v_lshrrev_b32 v10, 4, v2")
        a("v_lshrrev_b32 v11, 1, v3")
        a("v_xor_b32 v10, v10, v11")
        a("v_lshlrev_b32 v10, 4, v10")
        a("v_lshl_add_u32 v10, v3, 7, v10")
        a("s_lshl_b32 s26, s24, 13")
        a("s_add_u32 s26, s26, %d" % RB)
        a("v_add_u32 v10, s26, v10")
        a("s_lshl_b32 s26, s25, 12")
        a("v_add_u32 v%d, s26, v10" % bTa[0])
        a("s_xor_b32 s26, s26, 4096")
        a("v_add_u32 v%d, s26, v10" % bTb[0])
        a("v_xor_b32 v%d, 64, v%d" % (bTa[1], bTa[0]))
        a("v_xor_b32 v%d, 64, v%d" % (bTb[1], bTb[0]))
        a("v_lshrrev_b32 v10, 2, v2")
        a("v_mul_u32_u24 v10, %d, v10" % FS)
        a("v_and_b32 v11, 3, v2")
        a("v_lshl_add_u32 v10, v11, 3, v10")
        a("v_add_u32 v10, %d, v10" % (RB + TREG))
        a("s_mul_i32 s26, s25, 160")
        a("v_add_u32 v%d, s26, v10" % bF)
        a("v_add_u32 v%d, 128, v10" % bFh)
        for r in range(ACC, ACC + 72): a("v_mov_b32 v%d, 0" % r)
        for r in range(CS, CS + 20): a("v_mov_b32 v%d, 0" % r)
        for r in range(ONE, ONE + 4): a("v_mov_b32 v%d, 0x3f803f80" % r)
    def mma_addr(slot):
        a("s_mov_b32 s27, %d" % (slot * SLOT))
        for d, s_ in ((vTa[0], bTa[0]), (vTb[0], bTb[0]), (vTa[1], bTa[1]), (vTb[1], bTb[1]), (vF, bF), (vFh, bFh)):
            a("v_add_u32 v%d, s27, v%d" % (d, s_))
    core = G.Core(a, ACC, FB[0], FB[1], FS, TREG, vTa, vTb, vF, vFh)
    trk = core.trk
    a("s_cmp_eq_u32 s98, 0")
    a("s_cbranch_scc1 %s_A0" % name)
    a("s_setprio 3")
    loader_setup()
    a("s_waitcnt lgkmcnt(0)")
    srds_main()
    vm = VmTracker(a)
    def issue(g, vmx):
        issueT(g); issueF(g); vmx.issue("S%d" % g, 9)
    issueT(0)
    loader_setup2()
    issueF(0); vm.issue("S0", 9)
    issue(1, vm); issue(2, vm); issue(3, vm)
    a("s_add_u32 s3, s3, 4"); stamp_setup(a, 1); stamp(a, 0); a("s_sub_u32 s3, s3, 4")
    mma_setup()
    RA = 96; XB = 112
    for r in range(RA, RA + 16): a("v_mov_b32 v%d, 0" % r)
    a("v_lshrrev_b32 v10, 4, v2")
    a("v_lshrrev_b32 v11, 1, v3")
    a("v_xor_b32 v10, v10, v11")
    a("v_lshlrev_b32 v10, 4, v10")
    a("v_lshl_add_u32 v10, v3, 7, v10")
    a("v_add_u32 v12, s84, v10")
    a("v_xor_b32 v13, 64, v12")
    def rs_rd(g):
        a("v_add_u32 v10, %d, v12" % ((g % R) * SLOT))
        a("v_add_u32 v11, %d, v13" % ((g % R) * SLOT))
        for h in range(2):
            for n in range(2):
                a("ds_read_b128 %s, v%d offset:%d" % (vr(XB + 8 * h + 4 * n), 10 + h, 2048 * n))
    def rs_do():
        for h in range(2):
            for n in range(2):
                x = XB + 8 * h + 4 * n
                a("v_mfma_f32_16x16x32_bf16 %s, %s, %s, %s" % (vr(RA + 4 * n), vr(ONE), vr(x), vr(RA + 4 * n)))
                a("v_mfma_f32_16x16x32_bf16 %s, %s, %s, %s" % (vr(RA + 8 + 4 * n), vr(x), vr(x), vr(RA + 8 + 4 * n)))
    def interleave(dma, comp, vmx=None):
        groups = []; cur = []
        for l in dma:
            cur.append(l)
            if "buffer_load" in l and not any("exec, 0xffffffff" in x for x in cur[-2:]):
                groups.append(cur); cur = []
            elif "exec, -1" in l:
                groups.append(cur); cur = []
        if cur: groups.append(cur)
        ns = max(1, len(groups))
        per = (len(comp) + ns - 1) // ns
        for g in groups:
            a.lines.extend(g)
            a.lines.extend(comp[:per]); comp = comp[per:]
        a.lines.extend(comp)
    vm.wait(["S0"])
    a("s_barrier")
    stamp(a, 1)
    rs_rd(0)
    vm.wait(["S1"])
    a("s_barrier")
    for k in range(9):
        a("s_waitcnt lgkmcnt(0)")
        dma = capture(lambda: (issueT(k + 3), issueF(k + 3))) if k >= 1 else []
        interleave(dma, capture(rs_do))
        if k >= 1: vm.issue("S%d" % (k + 3), 9)
        if k < 8:
            rs_rd(k + 1)
        else:
            a("s_nop 7")
            a("v_lshrrev_b32 v10, 4, v2")
            a("v_lshrrev_b32 v11, 2, v3")
            a("v_and_b32 v12, 3, v3")
            for n in range(2):
                G_ = RA + 8 + 4 * n
                for r in range(1, 4):
                    a("v_cmp_eq_u32 vcc, %d, v12" % r)
                    a("s_nop 1")
                    a("v_cndmask_b32 v%d, v%d, v%d, vcc" % (G_, G_, G_ + r))
            ML = 112
            for n in range(2):
                emit_ln_finish(a, RA + 4 * n, RA + 8 + 4 * n, 576, ML + 2 * n, ML + 2 * n + 1, 120)
                a("v_mov_b32 v%d, v%d" % (117 + 2 * n, ML + 2 * n + 1))
                a("v_sub_f32 v%d, 0, v%d" % (116 + 2 * n, ML + 2 * n))
            a("s_lshl_b32 s35, s3, 8")
            a("v_lshlrev_b32 v13, 3, v3")
            a("v_add_u32 v12, s35, v13")
            a("v_cmp_eq_u32 vcc, v10, v11")
            a("s_and_saveexec_b64 s[36:37], vcc")
            for n in range(2):
                a("ds_write_b64 v12, %s offset:%d" % (vr(116 + 2 * n, 2), RST + 128 * n))
            a("s_mov_b64 exec, s[36:37]")
            a("s_cmp_lg_u32 s23, 0")
            a("s_cbranch_scc1 %s_nost1" % name)
            a("s_lshl_b32 s35, s22, 7")
            a("s_lshl_b32 s36, s3, 5")
            a("s_add_u32 s35, s35, s36")
            a("s_lshl_b32 s35, s35, 3")
            a("s_add_u32 s35, s35, 0x%x" % STATS1)
            a("v_mov_b32 v11, 0x7ffffff0")
            a("v_cndmask_b32 v13, v11, v13, vcc")
            for n in range(2):
                a("buffer_store_dwordx2 %s, v13, s[12:15], s35 offen offset:%d sc1" % (vr(ML + 2 * n, 2), 128 * n))
            a.label("%s_nost1" % name)
            mma_addr(9 % R)
            a("s_mov_b32 s33, 0")
            a("s_setprio 0")
        vm.wait(["S%d" % (k + 2)], "lgkmcnt(0)" if k == 8 else "")
        if k < 8: a("s_barrier")
    a("s_branch %s_mma" % name)
    a.label("%s_A0" % name)
    emit_code_prefetch(a, name)
    a("s_load_dwordx4 s[64:67], s[0:1], 8")
    a("s_load_dwordx2 s[76:77], s[0:1], 24")
    a("s_load_dwordx2 s[78:79], s[0:1], 64")
    mma_setup()
    loader_setup(); loader_setup2()
    a("s_waitcnt lgkmcnt(0)")
    srds_main()
    srd(a, 68, 66, 2048 * 576 * 2)
    a("s_mov_b32 s88, s64"); a("s_mov_b32 s89, s65")
    srd(a, 64, 88, 2048 * 576 * 2)
    srd(a, 72, 76, 576 * 8)
    stamp_setup(a, 1); stamp(a, 0)
    def gran_addr():
        a("v_lshrrev_b32 v10, 4, v2")
        a("s_lshl_b32 s36, s25, 1")
        a("v_add_u32 v11, s36, v10")
        a("v_and_b32 v11, 3, v11")
        a("v_lshl_add_u32 v11, v11, 4, v3")
        a("v_lshlrev_b32 v94, 8, v11")
        a("s_lshl_b32 s59, s22, 7")
        a("s_lshl_b32 s36, s24, 6")
        a("s_add_u32 s59, s59, s36")
        a("s_lshl_b32 s59, s59, 8")
        a("s_add_u32 s59, s59, 0x%x" % STATS2)
        a("s_lshl_b32 s36, s23, 1")
        a("s_add_u32 s36, s36, s25")
        a("s_lshl_b32 s36, s36, 3")
        a("s_add_u32 s58, s36, s59")
    gran_addr()
    a("v_mov_b32 v12, 0"); a("v_mov_b32 v13, 0x80000000")
    a("buffer_store_dwordx2 v[12:13], v94, s[12:15], s58 offen sc1")
    a("s_lshl_b32 s36, s22, 4")
    a("s_add_u32 s36, s36, s23")
    a("s_lshl_b32 s36, s36, 8")
    a("s_add_u32 s97, s36, 0x%x" % ZFLG)
    a("v_mov_b32 v10, %d" % LC)
    a("v_mov_b32 v12, 0"); a("v_mov_b32 v13, 0")
    a("s_mov_b64 exec, 1")
    a("buffer_store_dword v12, v12, s[12:15], s97 offen sc1")
    a("buffer_store_dword v12, v12, s[12:15], s97 offen offset:%d sc1" % PFL)
    a("s_mov_b64 exec, -1")
    a("ds_write_b64 v10, v[12:13]")
    a("ds_write_b64 v10, v[12:13] offset:8")
    a("ds_write_b64 v10, v[12:13] offset:16")
    a("ds_write_b64 v10, v[12:13] offset:24")
    mma_addr(0)
    a("s_mov_b32 s33, 0")
    a("s_waitcnt lgkmcnt(0)")
    a("s_barrier")
    stamp(a, 1)
    a.label("%s_mma" % name)
    core.prime(0, core.reads(0, 0))
    trk.drain()
    nocs = [False]
    def mfmas(buf):
        L = []
        for ft in range(5):
            A = core.F(buf, ft)
            for tt in range(4 if ft < 4 else 2):
                c = core.accr(ft, tt); B = core.T(buf, tt)
                L.append(("v_mfma_f32_16x16x32_bf16 %s, %s, %s, %s" % (vr(c), vr(A), vr(B), vr(c)), list(range(A, A + 4)) + list(range(B, B + 4))))
            if not nocs[0]: L.append(("v_mfma_f32_16x16x32_bf16 %s, %s, %s, %s" % (vr(CS + 4 * ft), vr(A), vr(ONE), vr(CS + 4 * ft)), list(range(A, A + 4))))
        return L
    def phase(buf, pend):
        for (m, regs) in mfmas(buf):
            trk.need(regs)
            a(m)
            while pend:
                k, t = pend.pop(0)
                if k == "x":
                    a(t)
                    if t.startswith("s_"): continue
                else:
                    a(t[0]); trk.issue(t[1])
                break
        for k, t in pend:
            if k == "x": a(t)
            else: a(t[0]); trk.issue(t[1])
    def iteration(vw=True):
        if vw: a("s_waitcnt vmcnt(0)")
        a("s_barrier")
        rd = [("r", t) for t in core.reads(1, 1)]
        upd = ["s_add_u32 s27, s27, %d" % SLOT, "s_cmp_eq_u32 s27, %d" % (R * SLOT), "s_cselect_b32 s27, 0, s27"]
        tail = ["v_add_u32 v%d, s27, v%d" % (d, s_) for d, s_ in ((vTa[0], bTa[0]), (vF, bF), (vTb[0], bTb[0]), (vFh, bFh))]
        phase(0, rd[:1] + [("x", u) for u in upd] + rd[1:] + [("x", u) for u in tail])
        rd = [("r", t) for t in core.reads(0, 0)]
        tail = ["v_add_u32 v%d, s27, v%d" % (d, s_) for d, s_ in ((vTa[1], bTa[1]), (vTb[1], bTb[1]))] + ["s_add_u32 s33, s33, 1"]
        phase(1, rd + [("x", u) for u in tail])
    a.label("%s_cloop" % name)
    lb = len(a.lines); iteration(); st = copy.deepcopy(trk.out); del a.lines[lb:]; trk.out = copy.deepcopy(st)
    iteration()
    assert [sorted(x) for x in trk.out] == [sorted(x) for x in st]
    a("s_cmp_lt_u32 s33, 9")
    a("s_cbranch_scc1 %s_cloop" % name)
    trk.drain()
    stamp(a, 2)
    MR = 100; T = 72; ZP = 16
    def epi_in():
        gelu_consts(a)
        a("s_lshl_b32 s36, s24, 9")
        a("s_lshl_b32 s37, s25, 8")
        a("s_add_u32 s38, s36, s37")
        a("s_xor_b32 s37, s37, 256")
        a("s_add_u32 s39, s36, s37")
        a("v_lshlrev_b32 v10, 3, v3")
        a("v_add_u32 v11, s38, v10")
        a("ds_read_b64 %s, v11 offset:%d" % (vr(MR, 2), RST))
        a("ds_read_b64 %s, v11 offset:%d" % (vr(MR + 2, 2), RST + 128))
        a("v_add_u32 v11, s39, v10")
        a("ds_read_b64 %s, v11 offset:%d" % (vr(MR + 4, 2), RST))
        a("ds_read_b64 %s, v11 offset:%d" % (vr(MR + 6, 2), RST + 128))
        a("s_waitcnt lgkmcnt(0)")
    S = [108, 110, 52, 54]; Q = [109, 111, 53, 55]
    def gelu_ft(ft, stats):
        tts = range(4 if ft < 4 else 2)
        if "nosub" in DBG:
            emit_fold_gelu(a, [(core.accr(ft, tt), CS + 4 * ft, MR + 2 * tt, ZP + 2 * tidx(ft, tt)) for tt in tts], T)
        else:
            a("s_call_b64 s[34:35], %s_gsub%d" % (name, ft))
        if stats:
            for d in range(2):
                for tt in tts:
                    p = ZP + 2 * tidx(ft, tt) + d
                    a("v_dot2_f32_bf16 v%d, v%d, v%d, v%d" % (S[tt], p, ONE, S[tt]))
                    a("v_dot2_f32_bf16 v%d, v%d, v%d, v%d" % (Q[tt], p, p, Q[tt]))
    a("s_cmp_eq_u32 s98, 0")
    a("s_cbranch_scc1 %s_A1" % name)
    a("s_barrier")
    a("s_load_dwordx2 s[92:93], s[0:1], 72")
    epi_in()
    srd(a, 28, 92, 2048 * 2)
    for ft in range(5): gelu_ft(ft, False)
    Z1R = 200; BI = 236
    for r_ in range(36): a("v_mov_b32 v%d, v%d" % (Z1R + r_, ZP + r_))
    stamp(a, 3)
    a("s_lshl_b32 s36, s22, 7")
    a("s_lshl_b32 s37, s24, 6")
    a("s_add_u32 s36, s36, s37")
    a("v_lshlrev_b32 v11, 1, v3")
    a("s_lshl_b32 s37, s25, 6")
    a("s_lshl_b32 s38, s36, 1")
    a("s_add_u32 s39, s38, s37")
    a("s_xor_b32 s37, s37, 64")
    a("s_add_u32 s36, s38, s37")
    a("buffer_load_ushort v96, v11, s[28:31], s39 offen")
    a("buffer_load_ushort v97, v11, s[28:31], s39 offen offset:32")
    a("buffer_load_ushort v98, v11, s[28:31], s36 offen")
    a("buffer_load_ushort v99, v11, s[28:31], s36 offen offset:32")
    for r in range(ACC, ACC + 72): a("v_mov_b32 v%d, 0" % r)
    a("v_lshrrev_b32 v10, 2, v2")
    a("v_lshlrev_b32 v10, 5, v10")
    a("v_and_b32 v11, 3, v2")
    a("v_lshl_add_u32 v10, v11, 3, v10")
    a("v_add_u32 v10, %d, v10" % (RB + TREG))
    a("s_mul_i32 s26, s25, 10240")
    a("v_add_u32 v%d, s26, v10" % bF)
    a("v_add_u32 v%d, 8192, v10" % bFh)
    core.FS = 32; core.FT = 2048
    mma_addr(0)
    a("s_mov_b32 s33, 0")
    stamp(a, 4)
    a("s_barrier")
    stamp(a, 5)
    core.prime(0, core.reads(0, 0))
    trk.drain()
    nocs[0] = True
    a.label("%s_gloop" % name)
    lb = len(a.lines); iteration(False); st = copy.deepcopy(trk.out); del a.lines[lb:]; trk.out = copy.deepcopy(st)
    iteration(False)
    assert [sorted(x) for x in trk.out] == [sorted(x) for x in st]
    a("s_cmp_lg_u32 s33, 3")
    a("s_cbranch_scc1 %s_ghk0" % name)
    a("s_waitcnt vmcnt(0)")
    for tt in range(4): a("v_lshlrev_b32 v%d, 16, v%d" % (BI + 2 * tt, 96 + tt))
    a.label("%s_ghk0" % name)
    a.label("%s_ghk" % name)
    a("s_cmp_lg_u32 s33, 26")
    a("s_cbranch_scc1 %s_ghk2" % name)
    a("v_lshlrev_b32 v10, 2, v3")
    a("buffer_load_dword v254, v10, s[60:63], 0 offen offset:128 sc1")
    a.label("%s_ghk2" % name)
    a("s_cmp_lt_u32 s33, 32")
    a("s_cbranch_scc1 %s_gloop" % name)
    trk.drain()
    stamp(a, 6)
    G3.emit_k2_epilogue2(a, core, Z1R, BI, " sc1")
    stamp(a, 7)
    a("s_setprio 3")
    a("s_lshl_b32 s36, s22, 4")
    a("s_add_u32 s36, s36, s23")
    a("s_lshl_b32 s36, s36, 8")
    a("s_add_u32 s97, s36, 0x%x" % (ZFLG + PFL))
    c_common()
    a("v_lshlrev_b32 v14, 4, v2")
    a("s_mul_i32 s26, s22, %d" % (36 * 8192))
    a("s_lshl_b32 s24, s3, 12")
    a("s_add_u32 s26, s26, s24")
    a("s_add_u32 s26, s26, 0x%x" % PIMG)
    a("s_mul_i32 s27, s23, %d" % (18 * 20480))
    a("s_mul_i32 s25, s3, 5120")
    a("s_add_u32 s27, s27, s25")
    a("s_add_u32 s27, s27, 0x%x" % WOT)
    a("s_add_u32 s25, s25, %d" % CTREG)
    a("v_and_b32 v28, 15, v2")
    a("v_lshlrev_b32 v30, 2, v28")
    a("v_mov_b32 v26, %d" % LC)
    a("v_mov_b32 v27, 1")
    a("s_waitcnt vmcnt(0)")
    a("v_mov_b32 v31, v254")
    a("s_mov_b64 exec, 1")
    a("ds_add_rtn_u32 v29, v26, v27 offset:16")
    a("s_waitcnt lgkmcnt(0)")
    a("v_readfirstlane_b32 s36, v29")
    a("s_cmp_lg_u32 s36, 3")
    a("s_cbranch_scc1 %s_nops" % name)
    a("v_mov_b32 v29, 0")
    a("buffer_store_dword v27, v29, s[12:15], s97 offen sc1")
    a.label("%s_nops" % name)
    a("s_mov_b64 exec, -1")
    a("s_mov_b32 s34, 0")
    a.label("%s_cw" % name)
    a("ds_read_b32 v29, v26 offset:16")
    a("s_add_u32 s34, s34, 1")
    a("s_waitcnt lgkmcnt(0)")
    a("v_readfirstlane_b32 s36, v29")
    a("s_cmp_gt_u32 s34, %d" % (SPIN_MAX * 20))
    a("s_cbranch_scc1 %s_cwx" % name)
    a("s_cmp_ge_u32 s36, 4")
    a("s_cbranch_scc1 %s_cwx" % name)
    a("s_sleep 1")
    a("s_branch %s_cw" % name)
    a.label("%s_cwx" % name)
    a("s_mov_b32 s34, 0")
    a.label("%s_cp" % name)
    a("v_cmp_gt_u32 vcc, 16, v31")
    a("s_add_u32 s34, s34, 1")
    a("s_cmp_gt_u32 s34, %d" % SPIN_MAX)
    a("s_cbranch_scc1 %s_cpx" % name)
    a("s_cbranch_vccz %s_cpx" % name)
    a("s_sleep 32")
    a("buffer_load_dword v31, v30, s[60:63], 0 offen offset:128 sc1")
    a("s_waitcnt vmcnt(0)")
    a("s_branch %s_cp" % name)
    a.label("%s_cpx" % name)
    def cF(off, soff):
        a("s_add_u32 s36, s25, %s" % off)
        a("s_mov_b32 m0, s36")
        a("s_add_u32 s37, %s, 4096" % soff)
        for n in range(4):
            a("buffer_load_dwordx4 v14, s[12:15], %s offen offset:%d sc1 lds" % (soff, n * 1024))
        a("s_add_u32 s36, s36, 4096")
        a("s_mov_b32 m0, s36")
        a("s_nop 0")
        a("buffer_load_dwordx4 v14, s[12:15], s37 offen sc1 lds")
    def cT(off, soff):
        a("s_add_u32 s35, s24, %s" % off)
        a("s_mov_b32 m0, s35")
        a("s_nop 0")
        for n in range(4):
            a("buffer_load_dwordx4 v14, s[12:15], %s offen offset:%d sc1 lds" % (soff, n * 1024))
    a("s_add_u32 s38, s27, 20480")
    cF(str(C0), "s27"); cF(str(C0 + CSL), "s38")
    a("s_mov_b32 s34, 0")
    a("s_cmp_lg_u32 s3, 0")
    a("s_cbranch_scc1 %s_cpl" % name)
    a("v_lshlrev_b32 v28, 8, v28")
    a("s_lshr_b32 s39, s22, 1")
    a("s_lshl_b32 s39, s39, 12")
    a("s_add_u32 s39, s39, 0x%x" % (ZFLG + PFL))
    a.label("%s_cpz" % name)
    a("buffer_load_dword v29, v28, s[12:15], s39 offen sc1")
    a("s_add_u32 s34, s34, 1")
    a("s_waitcnt vmcnt(0)")
    a("v_cmp_ne_u32 vcc, 1, v29")
    a("s_cmp_gt_u32 s34, %d" % SPIN_MAX)
    a("s_cbranch_scc1 %s_cpzx" % name)
    a("s_cbranch_vccz %s_cpzx" % name)
    a("s_sleep 8")
    a("s_branch %s_cpz" % name)
    a.label("%s_cpzx" % name)
    a("ds_write_b32 v26, v27 offset:24")
    a("s_branch %s_cgo" % name)
    a.label("%s_cpl" % name)
    a("ds_read_b32 v29, v26 offset:24")
    a("s_add_u32 s34, s34, 1")
    a("s_waitcnt lgkmcnt(0)")
    a("v_readfirstlane_b32 s36, v29")
    a("s_cmp_gt_u32 s34, %d" % (SPIN_MAX * 20))
    a("s_cbranch_scc1 %s_cgo" % name)
    a("s_cmp_lg_u32 s36, 0")
    a("s_cbranch_scc1 %s_cgo" % name)
    a("s_sleep 2")
    a("s_branch %s_cpl" % name)
    a.label("%s_cgo" % name)
    stamp(a, 8)
    a("s_add_u32 s38, s26, 16384")
    cT(str(C0), "s26"); cT(str(C0 + CSL), "s38")
    a("s_add_u32 s26, s26, 32768")
    a("s_add_u32 s27, s27, 40960")
    a("s_mov_b32 s33, %d" % RB)
    def cissue():
        cT("s33", "s26"); cF("s33", "s27")
        a("s_add_u32 s26, s26, 16384")
        a("s_add_u32 s27, s27, 20480")
        a("s_add_u32 s33, s33, %d" % CSL)
        a("s_cmp_eq_u32 s33, %d" % CW)
        a("s_cselect_b32 s33, %d, s33" % RB)
    a("s_waitcnt vmcnt(4)")
    a("s_barrier")
    cissue(); cissue()
    a("s_waitcnt vmcnt(18)")
    a("s_barrier")
    a("s_mov_b32 s34, 0")
    a.label("%s_clloop" % name)
    cissue()
    a("s_cmp_lg_u32 s34, 11")
    a("s_cbranch_scc1 %s_cl1" % name)
    a("buffer_load_dword v31, v30, s[60:63], 0 offen offset:192 sc1")
    a("s_waitcnt vmcnt(19)")
    a("s_branch %s_cl2" % name)
    a.label("%s_cl1" % name)
    a("s_waitcnt vmcnt(18)")
    a.label("%s_cl2" % name)
    a("s_barrier")
    a("s_add_u32 s34, s34, 1")
    a("s_cmp_lt_u32 s34, 14")
    a("s_cbranch_scc1 %s_clloop" % name)
    a("s_mov_b32 s34, 0")
    a.label("%s_cy" % name)
    a("v_cmp_gt_u32 vcc, 16, v31")
    a("s_add_u32 s34, s34, 1")
    a("s_cmp_gt_u32 s34, %d" % SPIN_MAX)
    a("s_cbranch_scc1 %s_cyx" % name)
    a("s_cbranch_vccz %s_cyx" % name)
    a("s_sleep 32")
    a("buffer_load_dword v31, v30, s[60:63], 0 offen offset:192 sc1")
    a("s_waitcnt vmcnt(0)")
    a("s_branch %s_cy" % name)
    a.label("%s_cyx" % name)
    a("v_lshrrev_b32 v3, 3, v2")
    a("v_and_b32 v4, 7, v2")
    a("v_lshlrev_b32 v4, 4, v4")
    a("s_mul_i32 s33, s52, 144")
    a("s_mul_i32 s34, s53, 80")
    a("s_lshl_b32 s35, s22, 7")
    a("s_add_u32 s35, s35, 0x%x" % YT)
    for n in range(3):
        a("s_add_u32 s36, s3, %d" % (4 * n))
        if n == 2: a("s_min_u32 s36, s36, 9")
        a("s_lshl_b32 s37, s36, 3")
        a("s_add_u32 s38, s37, s33")
        if n < 2: a("s_add_u32 s38, s38, s34")
        a("v_add_u32 v5, s38, v3")
        a("v_lshl_add_u32 v5, v5, 12, v4")
        a("s_lshl_b32 s36, s36, 10")
        a("s_add_u32 s36, s36, %d" % YOFF)
        a("s_mov_b32 m0, s36")
        a("s_nop 0")
        a("buffer_load_dwordx4 v5, s[12:15], s35 offen sc1 lds")
    fin_loads()
    a("s_waitcnt vmcnt(%d)" % (9 + 7))
    a("s_barrier")
    a("s_waitcnt vmcnt(7)")
    a("s_barrier")
    a("s_barrier")
    a("s_setprio 0")
    a("s_waitcnt vmcnt(0)")
    a("s_branch %s_cfin" % name)
    a.label("%s_A1" % name)
    a("s_setprio 2")
    vmA = VmTracker(a)
    PB = 132
    def aux_head():
        epi_in()
        for tt in range(4):
            a("v_mov_b32 v%d, 0" % S[tt]); a("v_mov_b32 v%d, 0" % Q[tt])
    def aux_pub():
        a("s_nop 2")
        emit_xg_reduce(a, S + Q, 72)
        a("v_lshrrev_b32 v10, 4, v2")
        for g in range(1, 4):
            a("v_cmp_eq_u32 vcc, %d, v10" % g)
            a("s_nop 1")
            a("v_cndmask_b32 v%d, v%d, v%d, vcc" % (S[0], S[0], S[g]))
            a("v_cndmask_b32 v%d, v%d, v%d, vcc" % (Q[0], Q[0], Q[g]))
        a("v_and_b32 v%d, 0x7fffffff, v%d" % (Q[0], Q[0]))
        a("buffer_store_dwordx2 v[%d:%d], v94, s[12:15], s58 offen sc1" % (S[0], Q[0]))
    chunks = [capture(aux_head) + capture(gelu_ft, 0, True), capture(gelu_ft, 1, True), capture(gelu_ft, 2, True),
              capture(gelu_ft, 3, True), capture(gelu_ft, 4, True) + capture(aux_pub)]
    KD = 172
    for k in range(9, 18):
        a("s_barrier")
        if k == 9:
            a("s_cmp_lg_u32 s3, 0")
            a("s_cbranch_scc1 %s_nosig" % name)
            a("v_mov_b32 v10, 1")
            a("s_lshl_b32 s36, s22, 2")
            a("v_mov_b32 v11, s36")
            a("s_mov_b64 exec, 1")
            a("buffer_atomic_add v10, v11, s[60:63], 0 offen sc1")
            a("s_mov_b64 exec, -1")
            a.label("%s_nosig" % name)
        g = k + 3
        dma = capture(lambda: (issueT(g), issueF(g))) if g < 18 else []
        comp = chunks[k - 9] if k - 9 < len(chunks) else []
        if "nosub" in DBG: interleave(dma, comp)
        else:
            a.lines.extend(dma); a.lines.extend(comp)
        if k == 13: vmA.issue("pub", 1)
        if g < 18: vmA.issue("S%d" % g, 9)
        if k == 14:
            srd(a, 92, 78, 2048 * 2048 * 2)
            a("v_lshrrev_b32 v10, 4, v2")
            a("v_lshlrev_b32 v10, 12, v10")
            a("v_lshl_add_u32 v10, v3, 4, v10")
            a("s_lshl_b32 s40, s22, 7")
            a("s_lshl_b32 s36, s3, 5")
            a("s_add_u32 s40, s40, s36")
            a("s_lshl_b32 s40, s40, 12")
            a("s_lshl_b32 s36, s23, 8")
            a("s_add_u32 s40, s40, s36")
            for n in range(8):
                a("buffer_load_dwordx4 v[200:203], v10, s[92:95], s40 offen")
                if n < 7: a("s_add_u32 s40, s40, 16384")
            vmA.issue("wp", 8)
            a("s_lshl_b32 s36, s22, 2")
            a("v_mov_b32 v199, s36")
            a("buffer_load_dword v198, v199, s[60:63], 0 offen sc1"); vmA.issue("cnt", 1)
        if k + 2 < 18 and k + 2 >= 12:
            vmA.wait(["S%d" % (k + 2)])
    a("s_barrier")
    stamp(a, 3)
    a("s_load_dwordx4 s[88:91], s[0:1], 32")
    a("s_load_dwordx2 s[94:95], s[0:1], 80")
    a("v_lshrrev_b32 v10, 4, v2")
    a("v_lshlrev_b32 v95, 8, v3")
    a("v_lshl_add_u32 v95, v10, 6, v95")
    a("s_lshl_b32 s33, s25, 13")
    a("s_add_u32 s52, s59, s33")
    a("s_xor_b32 s33, s33, 8192")
    a("s_add_u32 s53, s59, s33")
    a("s_add_u32 s42, s52, 4096")
    a("s_add_u32 s43, s53, 4096")
    Z2 = ZP
    a("s_waitcnt vmcnt(0)")
    GB = [128, 144, 160, 176]
    a("v_mov_b32 v4, v95")
    def gather():
        for tt in range(4):
            for q in range(4):
                a("buffer_load_dwordx4 %s, v4, s[12:15], s%d offen offset:%d sc1" % (vr(GB[tt] + 4 * q), (52, 42, 53, 43)[tt], 16 * q))
    gather()
    a("s_mov_b32 s40, 0")
    a("s_waitcnt vmcnt(0)")
    a.label("%s_chk" % name)
    a("v_subrev_u32 v11, 16, v198")
    for tt in range(4):
        for r in range(GB[tt] + 1, GB[tt] + 16, 4):
            a("v_or3_b32 v11, v11, v%d, v%d" % (r, r + 2))
    a("v_cmp_gt_i32 vcc, 0, v11")
    a("s_add_u32 s40, s40, 1")
    a("s_cmp_gt_u32 s40, %d" % SPIN_MAX)
    a("s_cbranch_scc1 %s_ok" % name)
    a("s_cbranch_vccz %s_ok" % name)
    a("s_sleep 32")
    a("buffer_load_dword v198, v199, s[60:63], 0 offen sc1")
    a("s_waitcnt vmcnt(0)")
    gather()
    a("s_waitcnt vmcnt(0)")
    a("s_branch %s_chk" % name)
    a.label("%s_ok" % name)
    stamp(a, 5)
    for tt in range(4):
        b = GB[tt]
        for st_ in (8, 4, 2):
            for q in range(0, st_, 2):
                a("v_pk_add_f32 %s, %s, %s" % (vr(b + q, 2), vr(b + q, 2), vr(b + q + st_, 2)))
    emit_xg_reduce(a, [GB[tt] + e for tt in range(4) for e in range(2)], 72)
    for tt in range(4):
        b = GB[tt]
        emit_ln_finish(a, b, b + 1, 2304, b + 2, MR + 2 * tt, b + 4)
        a("v_mul_f32 v%d, -v%d, v%d" % (MR + 2 * tt + 1, b + 2, MR + 2 * tt))
    a("v_lshrrev_b32 v10, 4, v2")
    a("v_lshrrev_b32 v11, 2, v2"); a("v_and_b32 v11, 1, v11"); a("v_lshlrev_b32 v11, 4, v11")
    a("v_lshrrev_b32 v5, 3, v2"); a("v_and_b32 v5, 1, v5"); a("v_lshl_add_u32 v11, v5, 2, v11")
    a("v_and_b32 v5, 3, v2"); a("v_add_u32 v11, v11, v5")
    a("v_and_b32 v5, 1, v10")
    a("v_lshl_add_u32 v11, v5, 3, v11")
    a("v_lshlrev_b32 v11, 5, v11")
    a("v_lshrrev_b32 v5, 1, v10")
    a("v_lshl_add_u32 v6, v5, 4, v11")
    a("s_lshl_b32 s33, s23, 5")
    a("s_lshl_b32 s36, s22, 1")
    a("s_add_u32 s33, s33, s36")
    a("s_add_u32 s33, s33, s24")
    a("s_mul_i32 s33, s33, 18432")
    if ZIMG: a("s_add_u32 s33, s33, 0x%x" % ZIMG)
    a("s_lshl_b32 s36, s25, 10")
    a("s_add_u32 s39, s33, s36")
    a("s_add_u32 s39, s39, 8192")
    a("s_mul_i32 s38, s25, 10240")
    a("s_add_u32 s33, s33, s38")
    a("s_add_u32 s37, s33, s36")
    a("s_xor_b32 s36, s36, 1024")
    a("s_add_u32 s38, s33, s36")
    a("s_add_u32 s33, s37, 4096")
    a("s_add_u32 s36, s38, 4096")
    def norm_pair(nA, ttA, nB, ttB, O):
        for q, (n, tt) in enumerate(((nA, ttA), (nB, ttB))):
            for d in range(2):
                z = Z2 + 2 * n + d; t = T + 4 * q + 2 * d
                a("v_lshlrev_b32 v%d, 16, v%d" % (t, z))
                a("v_and_b32 v%d, 0xffff0000, v%d" % (t + 1, z))
        for q, (n, tt) in enumerate(((nA, ttA), (nB, ttB))):
            for d in range(2):
                t = T + 4 * q + 2 * d
                a("v_pk_fma_f32 %s, %s, %s, %s op_sel:[0,0,1] op_sel_hi:[1,0,1]" % (vr(t, 2), vr(t, 2), vr(MR + 2 * tt, 2), vr(MR + 2 * tt, 2)))
        for q in range(2):
            for d in range(2):
                t = T + 4 * q + 2 * d
                a("v_cvt_pk_bf16_f32 v%d, v%d, v%d" % (O + 2 * q + d, t, t + 1))
        a("s_nop 1")
        a("v_permlane16_swap_b32 v%d, v%d" % (O, O + 2))
        a("v_permlane16_swap_b32 v%d, v%d" % (O + 1, O + 3))
    cnt = 0
    for ft in range(4):
        for pp in range(2):
            O = 200 + 4 * cnt; cnt += 1
            norm_pair(tidx(ft, 2 * pp), 2 * pp, tidx(ft, 2 * pp + 1), 2 * pp + 1, O)
            a("s_nop 0")
            a("buffer_store_dwordx4 %s, v6, s[12:15], s%d offen offset:%d sc1" % (vr(O), ((37, 38), (33, 36))[ft >> 1][pp], (ft & 1) * 2048))
    O = 200 + 4 * cnt
    norm_pair(16, 0, 17, 1, O)
    a("s_nop 0")
    a("buffer_store_dwordx4 %s, v6, s[12:15], s39 offen sc1" % vr(O))
    stamp(a, 6)
    a("s_setprio 3")
    srd(a, 8, 78, 2048 * 2048 * 2)
    a("v_lshrrev_b32 v3, 3, v2")
    a("s_lshl_b32 s24, s3, 5")
    a("v_add_u32 v3, s24, v3")
    a("v_and_b32 v4, 7, v2")
    a("v_lshrrev_b32 v6, 4, v2")
    a("v_xor_b32 v6, v6, v4")
    a("v_lshlrev_b32 v6, 4, v6")
    a("v_lshl_add_u32 v10, v3, 12, v6")
    a("v_xor_b32 v11, 64, v10")
    a("v_add_u32 v11, %d, v11" % (32768 - 1024))
    a("v_add_u32 v12, %d, v10" % (2 * (32768 - 1024)))
    a("v_add_u32 v13, %d, v11" % (2 * (32768 - 1024)))
    a("v_lshlrev_b32 v14, 4, v2")
    a("s_lshl_b32 s26, s22, 19")
    a("s_mul_i32 s27, s23, %d" % (32 * 18432))
    a("s_lshl_b32 s24, s3, 12")
    a("s_add_u32 s27, s27, s24")
    if ZIMG: a("s_add_u32 s27, s27, 0x%x" % ZIMG)
    a("s_lshl_b32 s25, s3, 9")
    a("s_sub_u32 s32, s25, s24")
    a("s_add_u32 s32, s32, 16384")
    a("s_add_u32 s24, s24, %d" % RB)
    a("s_waitcnt vmcnt(0) lgkmcnt(0)")
    a("v_mov_b32 v26, %d" % LC)
    a("v_mov_b32 v27, 1")
    a("s_mov_b64 exec, 1")
    a("ds_add_rtn_u32 v28, v26, v27")
    a("s_waitcnt lgkmcnt(0)")
    a("v_readfirstlane_b32 s36, v28")
    a("s_cmp_lg_u32 s36, 3")
    a("s_cbranch_scc1 %s_nozs" % name)
    a("v_mov_b32 v28, 0")
    a("buffer_store_dword v27, v28, s[12:15], s97 offen sc1")
    a.label("%s_nozs" % name)
    a("s_mov_b64 exec, -1")
    stamp(a, 7)
    srd(a, 16, 88, 576 * 2048 * 2)
    srd(a, 84, 90, 576 * 2)
    for g in range(4):
        a("s_add_u32 s35, s24, %d" % (g * SLOT))
        a("s_mov_b32 m0, s35")
        a("s_add_u32 s36, s26, %d" % (128 * g))
        for n in range(4):
            a("buffer_load_dwordx4 v%d, s[8:11], s36 offen offset:%d lds" % (10 + n, n * 1024))
    a("s_mov_b32 s34, 0")
    a("s_cmp_lg_u32 s3, 0")
    a("s_cbranch_scc1 %s_pl" % name)
    a("v_and_b32 v28, 15, v2")
    a("v_lshlrev_b32 v30, 2, v28")
    a("v_lshlrev_b32 v28, 12, v28")
    a("s_lshl_b32 s52, s23, 8")
    a("s_add_u32 s52, s52, 0x%x" % ZFLG)
    a.label("%s_pz0" % name)
    a("buffer_load_dword v31, v30, s[60:63], 0 offen sc1")
    a("s_add_u32 s34, s34, 1")
    a("s_waitcnt vmcnt(0)")
    a("v_cmp_gt_u32 vcc, 16, v31")
    a("s_cmp_gt_u32 s34, %d" % SPIN_MAX)
    a("s_cbranch_scc1 %s_pz" % name)
    a("s_cbranch_vccz %s_pz" % name)
    a("s_sleep 32")
    a("s_branch %s_pz0" % name)
    a.label("%s_pz" % name)
    a("buffer_load_dword v29, v28, s[12:15], s52 offen sc1")
    a("s_add_u32 s34, s34, 1")
    a("s_waitcnt vmcnt(0)")
    a("v_cmp_ne_u32 vcc, 1, v29")
    a("s_cmp_gt_u32 s34, %d" % SPIN_MAX)
    a("s_cbranch_scc1 %s_pzx" % name)
    a("s_cbranch_vccz %s_pzx" % name)
    a("s_sleep 8")
    a("s_branch %s_pz" % name)
    a.label("%s_pzx" % name)
    a("v_mov_b32 v27, 1")
    a("ds_write_b32 v26, v27 offset:4")
    a("s_branch %s_pgo" % name)
    a.label("%s_pl" % name)
    a("ds_read_b32 v27, v26 offset:4")
    a("s_add_u32 s34, s34, 1")
    a("s_waitcnt lgkmcnt(0)")
    a("v_readfirstlane_b32 s36, v27")
    a("s_cmp_gt_u32 s34, %d" % (SPIN_MAX * 20))
    a("s_cbranch_scc1 %s_pgo" % name)
    a("s_cmp_lg_u32 s36, 0")
    a("s_cbranch_scc1 %s_pgo" % name)
    a("s_sleep 2")
    a("s_branch %s_pl" % name)
    a.label("%s_pgo" % name)
    stamp(a, 8)
    for g in range(4):
        a("s_add_u32 s35, s24, %d" % (g * SLOT + TREG))
        a("s_mov_b32 m0, s35")
        a("s_add_u32 s36, s27, %d" % (18432 * g))
        a("s_add_u32 s37, s36, s32")
        for n in range(4):
            a("buffer_load_dwordx4 v14, s[12:15], s36 offen offset:%d sc1 lds" % (n * 1024))
        a("s_add_u32 s35, s35, s32")
        a("s_mov_b32 m0, s35")
        a("s_mov_b64 exec, 0xffffffff")
        a("buffer_load_dwordx4 v14, s[12:15], s37 offen sc1 lds")
        a("s_mov_b64 exec, -1")
    a("s_add_u32 s26, s26, 512")
    a("s_add_u32 s27, s27, %d" % (4 * 18432))
    a("s_mov_b32 s33, 0")
    a("s_lshl_b32 s43, s2, 2")
    a("s_add_u32 s43, s43, s3")
    a("s_and_b32 s53, s43, 1")
    a("s_sub_u32 s36, s43, 448")
    a("s_lshr_b32 s37, s43, 1")
    a("s_cmp_ge_u32 s43, 896")
    a("s_cselect_b32 s43, s36, s37")
    a("s_cselect_b32 s53, 2, s53")
    a("s_waitcnt vmcnt(15)")
    a("s_barrier")
    a("s_waitcnt vmcnt(10)")
    a("s_barrier")
    a("s_waitcnt vmcnt(5)")
    a("s_barrier")
    a("s_mov_b32 s34, 4")
    def issue2():
        a("s_add_u32 s35, s33, s24")
        a("s_mov_b32 m0, s35")
        a("s_add_u32 s36, s35, %d" % TREG)
        for n in range(4):
            a("buffer_load_dwordx4 v%d, s[8:11], s26 offen offset:%d lds" % (10 + n, n * 1024))
        a("s_mov_b32 m0, s36")
        a("s_add_u32 s37, s27, s32")
        for n in range(4):
            a("buffer_load_dwordx4 v14, s[12:15], s27 offen offset:%d sc1 lds" % (n * 1024))
        a("s_add_u32 s36, s36, s32")
        a("s_mov_b32 m0, s36")
        a("s_mov_b64 exec, 0xffffffff")
        a("buffer_load_dwordx4 v14, s[12:15], s37 offen sc1 lds")
        a("s_mov_b64 exec, -1")
        a("s_add_u32 s26, s26, 128")
        a("s_add_u32 s27, s27, 18432")
        a("s_add_u32 s33, s33, %d" % SLOT)
        a("s_cmp_eq_u32 s33, %d" % (R * SLOT))
        a("s_cselect_b32 s33, 0, s33")
    def kvc(src):
        for n in range(11): a("v_mov_b32 v%d, v%d" % (16 + n, src + n))
        for n in range(8): a("v_mov_b32 v%d, v%d" % (32 + n, src + 12 + n))
        for n in range(4): a("v_mov_b32 v%d, v%d" % (44 + n, src + 20 + n))
        a("v_mov_b32 v56, v%d" % (src + 24)); a("v_mov_b32 v57, v%d" % (src + 25))
        emit_kv_compute(a, wait=False, store=False)
        a("s_mov_b32 s39, 0x%x" % KVT)
        a("buffer_store_dwordx4 v[120:123], v12, s[12:15], s39 offen sc1")
        a("buffer_store_dwordx4 v[124:127], v13, s[12:15], s39 offen sc1")
        a("s_nop 1")
        a("v_mov_b32 v12, v252"); a("v_mov_b32 v13, v253")
    issue2()
    a("v_mov_b32 v250, v10"); a("v_mov_b32 v251, v11"); a("v_mov_b32 v252, v12"); a("v_mov_b32 v253, v13")
    srd(a, 76, 94, 2304 * 576 * 2)
    a("s_mov_b32 s42, s2")
    emit_wot_loads(a, 128, 140, 720, 3)
    a("s_mov_b32 s41, s2")
    emit_kv_loads(a, 144, 156, 164, 168, 169)
    a("s_cmp_ge_u32 s2, 32")
    a("s_cbranch_scc1 %s_kvp" % name)
    a("s_add_u32 s41, s2, 256")
    emit_kv_loads(a, 172, 184, 192, 196, 197)
    a.label("%s_kvp" % name)
    a("v_mov_b32 v10, v250"); a("v_mov_b32 v11, v251")
    a("s_waitcnt vmcnt(32)")
    a("s_barrier")
    issue2()
    a("s_waitcnt vmcnt(32)")
    a("s_barrier")
    issue2()
    a("s_waitcnt vmcnt(9)")
    a("s_barrier")
    body = capture(kvc, 144)
    nb = len(body); cut = [0, nb // 3, 2 * nb // 3, nb]
    for c_ in range(3):
        issue2()
        if c_ == 0:
            for n in range(3):
                a("buffer_store_dwordx4 %s, v%d, s[12:15], s40 offen sc1" % (vr(128 + 4 * n), 140 + n))
        a.lines.extend(body[cut[c_]:cut[c_ + 1]])
        a("s_waitcnt vmcnt(%d)" % (12, 12, 11)[c_])
        a("s_barrier")
    a("s_cmp_ge_u32 s2, 32")
    a("s_cbranch_scc1 %s_kvq" % name)
    kvc(172)
    a.label("%s_kvq" % name)
    a("v_mov_b32 v26, %d" % LC)
    a("s_mov_b32 s34, 10")
    a.label("%s_lloop" % name)
    issue2()
    a("s_cmp_eq_u32 s34, 13")
    a("s_cbranch_scc1 %s_hk0" % name)
    a("s_cmp_eq_u32 s34, 21")
    a("s_cbranch_scc1 %s_hk1" % name)
    a("s_cmp_eq_u32 s34, 24")
    a("s_cbranch_scc1 %s_hk2" % name)
    a("s_waitcnt vmcnt(9)")
    a.label("%s_lcont" % name)
    a("s_barrier")
    a("s_add_u32 s34, s34, 1")
    a("s_cmp_lt_u32 s34, 32")
    a("s_cbranch_scc1 %s_lloop" % name)
    a("s_branch %s_ldone" % name)
    a.label("%s_hk0" % name)
    a("v_mov_b32 v27, 1")
    a("s_mov_b64 exec, 1")
    a("ds_add_rtn_u32 v28, v26, v27 offset:8")
    a("s_waitcnt lgkmcnt(0)")
    a("v_readfirstlane_b32 s36, v28")
    a("s_cmp_lg_u32 s36, 3")
    a("s_cbranch_scc1 %s_hk0x" % name)
    a("s_and_b32 s36, s2, 15")
    a("s_lshl_b32 s36, s36, 2")
    a("s_add_u32 s36, s36, 128")
    a("v_mov_b32 v28, s36")
    a("buffer_atomic_add v27, v28, s[60:63], 0 offen sc1")
    a.label("%s_hk0x" % name)
    a("s_mov_b64 exec, -1")
    a("s_waitcnt vmcnt(9)")
    a("s_branch %s_lcont" % name)
    a.label("%s_hk1" % name)
    a("v_and_b32 v28, 15, v2")
    a("v_lshlrev_b32 v28, 2, v28")
    a("buffer_load_dword v29, v28, s[60:63], 0 offen offset:128 sc1")
    a("s_waitcnt vmcnt(10)")
    a("s_branch %s_lcont" % name)
    a.label("%s_hk2" % name)
    a("s_mov_b32 s52, 0")
    a.label("%s_hk2l" % name)
    a("v_cmp_gt_u32 vcc, 16, v29")
    a("s_add_u32 s52, s52, 1")
    a("s_cmp_gt_u32 s52, %d" % SPIN_MAX)
    a("s_cbranch_scc1 %s_hk2g" % name)
    a("s_cbranch_vccz %s_hk2g" % name)
    a("s_sleep 16")
    a("buffer_load_dword v29, v28, s[60:63], 0 offen offset:128 sc1")
    a("s_waitcnt vmcnt(0)")
    a("s_branch %s_hk2l" % name)
    a.label("%s_hk2g" % name)
    nconv = emit_conv_loads(a, " sc1")
    a("s_waitcnt vmcnt(%d)" % (9 + nconv))
    a("s_branch %s_lcont" % name)
    a.label("%s_ldone" % name)
    a("s_waitcnt vmcnt(0)")
    a("s_barrier")
    a("s_mov_b32 s26, s53")
    a("s_and_b32 s27, s3, 1")
    a("s_mul_i32 s27, s27, %d" % CJ_SIZE)
    a("s_lshr_b32 s36, s3, 1")
    a("s_mul_i32 s36, s36, %d" % SLOT)
    a("s_add_u32 s27, s27, s36")
    a("s_add_u32 s27, s27, %d" % RB)
    def mid():
        a("s_barrier")
        a("s_setprio 0")
    sv = set(DBG); DBG.discard("stamp")
    lb_ = len(a.lines)
    emit_conv_job(a, name, mid)
    for n_ in range(lb_, len(a.lines)):
        if "buffer_store_dwordx2" in a.lines[n_]: a.lines[n_] += " sc1"
    DBG.update(sv)
    stamp(a, 9)
    c_common()
    cTa = [4, 4]; cTb = [6, 6]; cF_ = 8; cFh = 9
    kTa = 88; kTb = 90; kF = 92; kFh = 93
    a("v_and_b32 v3, 15, v2")
    a("v_lshrrev_b32 v10, 5, v2")
    a("v_lshlrev_b32 v10, 11, v10")
    a("v_bfe_u32 v11, v2, 4, 1")
    a("v_lshl_add_u32 v10, v11, 4, v10")
    a("v_lshl_add_u32 v10, v3, 5, v10")
    a("s_lshl_b32 s26, s3, 12")
    a("v_add_u32 v10, s26, v10")
    a("s_lshl_b32 s26, s53, 10")
    a("v_add_u32 v%d, s26, v10" % kTa)
    a("s_xor_b32 s26, s26, 1024")
    a("v_add_u32 v%d, s26, v10" % kTb)
    a("v_lshrrev_b32 v10, 2, v2")
    a("v_mul_u32_u24 v10, %d, v10" % CFS)
    a("v_and_b32 v11, 3, v2")
    a("v_lshl_add_u32 v10, v11, 3, v10")
    a("s_mul_i32 s26, s3, %d" % (32 * CFS))
    a("s_add_u32 s26, s26, %d" % CTREG)
    a("v_add_u32 v%d, s26, v10" % kF)
    a("v_add_u32 v%d, 128, v%d" % (kFh, kF))
    a("v_mov_b32 v26, %d" % LC)
    a("v_mov_b32 v27, 1")
    a("s_waitcnt vmcnt(0)")
    a("s_mov_b64 exec, 1")
    a("ds_add_rtn_u32 v28, v26, v27 offset:20")
    a("s_waitcnt lgkmcnt(0)")
    a("v_readfirstlane_b32 s36, v28")
    a("s_cmp_lg_u32 s36, 3")
    a("s_cbranch_scc1 %s_nocs" % name)
    a("s_and_b32 s36, s2, 15")
    a("s_lshl_b32 s36, s36, 2")
    a("s_add_u32 s36, s36, 192")
    a("v_mov_b32 v28, s36")
    a("buffer_atomic_add v27, v28, s[60:63], 0 offen sc1")
    a.label("%s_nocs" % name)
    a("s_mov_b64 exec, -1")
    fin_loads()
    core3 = G.Core(a, ACC, FB[0], FB[1], CFS, CTREG, cTa, cTb, cF_, cFh, TT=512)
    pairs = ((cTa[0], kTa), (cF_, kF), (cTb[0], kTb), (cFh, kFh))
    a("s_mov_b32 s27, %d" % C0)
    for d, s_ in pairs: a("v_add_u32 v%d, s27, v%d" % (d, s_))
    for r in range(ACC, ACC + 72): a("v_mov_b32 v%d, 0" % r)
    a("s_mov_b32 s33, 0")
    a("s_barrier")
    stamp(a, 10)
    core3.prime(0, core3.reads(0, 0))
    def citer(buf):
        core3.trk.drain()
        a("s_barrier")
        a("s_add_u32 s27, s27, %d" % CSL)
        a("s_cmp_eq_u32 s27, %d" % CW)
        a("s_cselect_b32 s27, %d, s27" % RB)
        pre = ["v_add_u32 v%d, s27, v%d" % (d, s_) for d, s_ in pairs]
        core3.phase(buf, core3.reads(1 - buf, 0), pre=pre)
    a.label("%s_ccloop" % name)
    citer(0); citer(1)
    a("s_add_u32 s33, s33, 1")
    a("s_cmp_lt_u32 s33, 9")
    a("s_cbranch_scc1 %s_ccloop" % name)
    core3.trk.drain()
    stamp(a, 11)
    a("s_mul_i32 s33, s3, %d" % (18 * 1024))
    a("s_add_u32 s33, s33, %d" % C0)
    a("v_lshlrev_b32 v10, 4, v2")
    a("v_add_u32 v11, s33, v10")
    a("s_nop 4")
    for n, (ft, tt) in enumerate(TILES):
        a("ds_write_b128 v11, %s offset:%d" % (vr(core3.accr(ft, tt)), 1024 * tidx(ft, tt)))
        if n in (7, 13): a("s_waitcnt lgkmcnt(4)")
    a("s_waitcnt lgkmcnt(0) vmcnt(0)")
    a.label("%s_cfin" % name)
    a("s_barrier")
    stamp(a, 12)
    a("v_lshlrev_b32 v10, 4, v2")
    a("v_lshrrev_b32 v11, 2, v2")
    a("v_lshlrev_b32 v11, 7, v11")
    a("v_and_b32 v12, 3, v2")
    a("v_lshl_add_u32 v11, v12, 3, v11")
    a("s_mov_b32 s33, 0xbfb8aa3b")
    PT = 16; YR = 64
    for s_ in range(3):
        b = 64 + 4 * s_
        if s_ == 2:
            a("s_cmp_ge_u32 s54, 2")
            a("s_cbranch_scc1 %s_rd" % name)
        a("v_add_u32 v4, s%d, v10" % (b + 2))
        a("v_add_u32 v5, s%d, v11" % (b + 1))
        for q in range(4):
            a("ds_read_b128 %s, v4 offset:%d" % (vr(PT + 16 * s_ + 4 * q), 18432 * q))
        a("ds_read_b64_tr_b16 %s, v5" % vr(YR + 2 * s_, 2))
    a.label("%s_rd" % name)
    T = 104
    for s_ in range(3):
        b = 64 + 4 * s_
        if s_ == 0: a("s_waitcnt lgkmcnt(5)")
        if s_ == 1: a("s_waitcnt lgkmcnt(0)")
        if s_ == 2:
            a("s_cmp_ge_u32 s54, 2")
            a("s_cbranch_scc1 %s_done" % name)
        o = PT + 16 * s_; X = XR + 2 * s_; Y = YR + 2 * s_; S_ = ST + 2 * s_
        for h in (0, 2):
            a("v_pk_add_f32 %s, %s, %s" % (vr(o + h, 2), vr(o + h, 2), vr(o + 4 + h, 2)))
            a("v_pk_add_f32 %s, %s, %s" % (vr(o + 8 + h, 2), vr(o + 8 + h, 2), vr(o + 12 + h, 2)))
        for h in (0, 2):
            a("v_pk_add_f32 %s, %s, %s" % (vr(o + h, 2), vr(o + h, 2), vr(o + 8 + h, 2)))
        rnd_pair(a, T + 20, o, o + 1); rnd_pair(a, T + 21, o + 2, o + 3)
        for r in range(4): a("v_mul_f32 v%d, s33, v%d" % (T + r, o + r))
        for r in range(4): a("v_exp_f32 v%d, v%d" % (T + r, T + r))
        a("v_lshlrev_b32 v%d, 16, v%d" % (T + 4, X)); a("v_and_b32 v%d, 0xffff0000, v%d" % (T + 5, X))
        a("v_lshlrev_b32 v%d, 16, v%d" % (T + 6, X + 1)); a("v_and_b32 v%d, 0xffff0000, v%d" % (T + 7, X + 1))
        for r in range(4): a("v_add_f32 v%d, 1.0, v%d" % (T + r, T + r))
        for r in range(4): a("v_rcp_f32 v%d, v%d" % (T + r, T + r))
        for r in range(4): a("v_sub_f32 v%d, v%d, v%d" % (T + 12 + r, T + 4 + r, S_))
        a("v_lshlrev_b32 v%d, 16, v%d" % (T + 8, Y)); a("v_and_b32 v%d, 0xffff0000, v%d" % (T + 9, Y))
        a("v_lshlrev_b32 v%d, 16, v%d" % (T + 10, Y + 1)); a("v_and_b32 v%d, 0xffff0000, v%d" % (T + 11, Y + 1))
        for r in range(4): a("v_mul_f32 v%d, v%d, v%d" % (o + r, o + r, T + r))
        rnd_pair(a, T + 20, T + 12, T + 13); rnd_pair(a, T + 21, T + 14, T + 15)
        rnd_pair(a, T + 22, o, o + 1); rnd_pair(a, T + 23, o + 2, o + 3)
        for r in range(4): a("v_mul_f32 v%d, v%d, v%d" % (T + 12 + r, T + 12 + r, S_ + 1))
        rnd_pair(a, T + 20, T + 12, T + 13); rnd_pair(a, T + 21, T + 14, T + 15)
        for r in range(4): a("v_mul_f32 v%d, v%d, v%d" % (T + 12 + r, T + 12 + r, T + 8 + r))
        rnd_pair(a, T + 20, T + 12, T + 13); rnd_pair(a, T + 21, T + 14, T + 15)
        for r in range(4): a("v_mul_f32 v%d, v%d, v%d" % (T + 12 + r, T + 12 + r, o + r))
        rnd_pair(a, T + 20, T + 12, T + 13); rnd_pair(a, T + 21, T + 14, T + 15)
        for r in range(4): a("v_add_f32 v%d, v%d, v%d" % (T + 12 + r, T + 12 + r, T + 4 + r))
        a("v_cvt_pk_bf16_f32 v%d, v%d, v%d" % (X, T + 12, T + 13))
        a("v_cvt_pk_bf16_f32 v%d, v%d, v%d" % (X + 1, T + 14, T + 15))
        a("buffer_store_dwordx2 %s, v13, s[28:31], s%d offen" % (vr(X, 2), b))
    a.label("%s_done" % name)
    stamp(a, 13)
    G.stamp_rt(a, 1)
    a.label("%s_end" % name)
    a("s_endpgm")
    if "nosub" not in DBG:
        for ft in range(5):
            a.label("%s_gsub%d" % (name, ft))
            tts = range(4 if ft < 4 else 2)
            emit_fold_gelu(a, [(128 + 4 * tidx(ft, tt), CS + 4 * ft, MR + 2 * tt, ZP + 2 * tidx(ft, tt)) for tt in tts], 72)
            a("s_setpc_b64 s[34:35]")
    return a.text(), kernel_desc(name, 256, 256), (name, 256, 512, YOFF + 10240)

def gen_kf3(name="k1_kernel", R=4):
    a = Asm()
    RB = 4096; SLOT = 34816; TREG = 16384; FS = 288; RST = 0
    LDSB = RB + R * SLOT
    LC = 2048
    ZFLG = 0x2D00000
    from gen3 import emit_conv_loads, emit_conv_job, CJ_SIZE
    def capture(f, *args):
        lb = len(a.lines); f(*args); out = a.lines[lb:]; del a.lines[lb:]; return out
    kernel_begin(a, name)
    a("s_load_dwordx2 s[80:81], s[0:1], 0")
    a("s_load_dwordx2 s[4:5], s[0:1], 56")
    a("s_load_dwordx2 s[6:7], s[0:1], 104")
    a("s_load_dwordx2 s[18:19], s[0:1], 96")
    a("s_cmp_ge_u32 s2, 256")
    a("s_cbranch_scc1 %s_end" % name)
    a("v_lshrrev_b32 v1, 6, v0")
    a("v_and_b32 v2, 63, v0")
    a("v_readfirstlane_b32 s3, v1")
    G2.tile_ij(a)
    a("s_lshr_b32 s98, s3, 2")
    a("s_mov_b32 s54x, 0".replace("s54x", "s99"))
    a("s_and_b32 s3, s3, 3")
    a("s_lshr_b32 s24, s3, 1")
    a("s_and_b32 s25, s3, 1")
    a("v_and_b32 v3, 15, v2")
    VT = 204; VF = 208
    def loader_setup():
        a("v_lshrrev_b32 v5, 3, v2")
        a("v_and_b32 v4, 7, v2")
        a("s_lshl_b32 s36, s3, 5")
        a("v_add_u32 v5, s36, v5")
        a("v_lshrrev_b32 v7, 4, v2")
        a("v_xor_b32 v7, v7, v4")
        a("v_mul_u32_u24 v6, 1152, v5")
        a("v_lshl_add_u32 v%d, v7, 4, v6" % VT)
        a("v_xor_b32 v%d, 64, v%d" % (VT + 1, VT))
        a("v_add_u32 v%d, %d, v%d" % (VT + 1, 9216 - 1024, VT + 1))
        a("v_add_u32 v%d, %d, v%d" % (VT + 2, 2 * (9216 - 1024), VT))
        a("v_add_u32 v%d, %d, v%d" % (VT + 3, 2 * (9216 - 1024), VT + 1))
        a("s_lshl_b32 s84, s3, 12")
        a("s_add_u32 s84, s84, %d" % RB)
        a("s_lshl_b32 s85, s3, 9")
        a("s_add_u32 s85, s85, %d" % (RB + TREG + 16384))
    def loader_setup2():
        for n in range(5):
            if n < 4:
                a("s_lshl_b32 s36, s3, 8")
                a("s_add_u32 s36, s36, %d" % (64 * n))
            else:
                a("s_lshl_b32 s36, s3, 5")
                a("s_add_u32 s36, s36, 1024")
            a("v_add_u32 v6, s36, v2")
            a("v_mul_u32_u24 v7, 3641, v6")
            a("v_lshrrev_b32 v7, 16, v7")
            a("v_mul_u32_u24 v8, 18, v7")
            a("v_sub_u32 v8, v6, v8")
            a("v_and_b32 v9, 35, v7")
            a("v_bfe_u32 v6, v7, 2, 2")
            a("v_lshl_add_u32 v9, v6, 3, v9")
            a("v_bfe_u32 v6, v7, 4, 1")
            a("v_lshl_add_u32 v9, v6, 2, v9")
            a("v_mul_u32_u24 v9, 9216, v9")
            a("v_lshl_add_u32 v%d, v8, 4, v9" % (VF + n))
            if 0 < n < 4: a("v_subrev_u32 v%d, %d, v%d" % (VF + n, 1024 * n, VF + n))
    def issueT(g):
        st = g % 9
        a("s_add_u32 s86, s84, %d" % ((g % R) * SLOT))
        a("s_mov_b32 m0, s86")
        a("s_add_u32 s87, s82, %d" % (128 * st))
        for n in range(4):
            a("buffer_load_dwordx4 v%d, s[28:31], s87 offen offset:%d lds" % (VT + n, 1024 * n))
    def issueF(g):
        st = g % 9
        a("s_add_u32 s86, s84, %d" % ((g % R) * SLOT + TREG))
        a("s_mov_b32 m0, s86")
        a("s_add_u32 s87, s83, %d" % (64 * 9216 * st + (4608 if g < 9 else 0)))
        for n in range(4):
            a("buffer_load_dwordx4 v%d, s[8:11], s87 offen offset:%d lds" % (VF + n, 1024 * n))
        a("s_add_u32 s86, s85, %d" % ((g % R) * SLOT))
        a("s_mov_b32 m0, s86")
        a("s_mov_b64 exec, 0xffffffff")
        a("buffer_load_dwordx4 v%d, s[8:11], s87 offen lds" % (VF + 4))
        a("s_mov_b64 exec, -1")
    def srds_main():
        srd(a, 28, 80, 2048 * 576 * 2)
        srd(a, 8, 4, 576 * 4608 * 2)
        srd(a, 12, 6, WS_BYTES)
        srd(a, 60, 18, 256)
        a("s_mul_i32 s82, s22, %d" % (128 * 1152))
        a("s_mul_i32 s83, s23, 288")
    ACC = 128; FB = [16, 52]; CS = 216; ONE = 236
    vTa = [4, 5]; vTb = [6, 7]; vF = 8; vFh = 9
    bTa = [88, 89]; bTb = [90, 91]; bF = 92; bFh = 93
    def mma_setup():
        a("v_lshrrev_b32 v10, 4, v2")
        a("v_lshrrev_b32 v11, 1, v3")
        a("v_xor_b32 v10, v10, v11")
        a("v_lshlrev_b32 v10, 4, v10")
        a("v_lshl_add_u32 v10, v3, 7, v10")
        a("s_lshl_b32 s26, s24, 13")
        a("s_add_u32 s26, s26, %d" % RB)
        a("v_add_u32 v10, s26, v10")
        a("s_lshl_b32 s26, s25, 12")
        a("v_add_u32 v%d, s26, v10" % bTa[0])
        a("s_xor_b32 s26, s26, 4096")
        a("v_add_u32 v%d, s26, v10" % bTb[0])
        a("v_xor_b32 v%d, 64, v%d" % (bTa[1], bTa[0]))
        a("v_xor_b32 v%d, 64, v%d" % (bTb[1], bTb[0]))
        a("v_lshrrev_b32 v10, 2, v2")
        a("v_mul_u32_u24 v10, %d, v10" % FS)
        a("v_and_b32 v11, 3, v2")
        a("v_lshl_add_u32 v10, v11, 3, v10")
        a("v_add_u32 v10, %d, v10" % (RB + TREG))
        a("s_mul_i32 s26, s25, 160")
        a("v_add_u32 v%d, s26, v10" % bF)
        a("v_add_u32 v%d, 128, v10" % bFh)
        for r in range(ACC, ACC + 72): a("v_mov_b32 v%d, 0" % r)
        for r in range(CS, CS + 20): a("v_mov_b32 v%d, 0" % r)
        for r in range(ONE, ONE + 4): a("v_mov_b32 v%d, 0x3f803f80" % r)
    def mma_addr(slot):
        a("s_mov_b32 s27, %d" % (slot * SLOT))
        for d, s_ in ((vTa[0], bTa[0]), (vTb[0], bTb[0]), (vTa[1], bTa[1]), (vTb[1], bTb[1]), (vF, bF), (vFh, bFh)):
            a("v_add_u32 v%d, s27, v%d" % (d, s_))
    core = G.Core(a, ACC, FB[0], FB[1], FS, TREG, vTa, vTb, vF, vFh)
    trk = core.trk
    a("s_cmp_eq_u32 s98, 0")
    a("s_cbranch_scc1 %s_A0" % name)
    a("s_setprio 3")
    loader_setup()
    a("s_waitcnt lgkmcnt(0)")
    srds_main()
    vm = VmTracker(a)
    def issue(g, vmx):
        issueT(g); issueF(g); vmx.issue("S%d" % g, 9)
    issueT(0)
    loader_setup2()
    issueF(0); vm.issue("S0", 9)
    issue(1, vm); issue(2, vm); issue(3, vm)
    a("s_add_u32 s3, s3, 4"); stamp_setup(a, 1); stamp(a, 0); a("s_sub_u32 s3, s3, 4")
    mma_setup()
    RA = 96; XB = 112
    for r in range(RA, RA + 16): a("v_mov_b32 v%d, 0" % r)
    a("v_lshrrev_b32 v10, 4, v2")
    a("v_lshrrev_b32 v11, 1, v3")
    a("v_xor_b32 v10, v10, v11")
    a("v_lshlrev_b32 v10, 4, v10")
    a("v_lshl_add_u32 v10, v3, 7, v10")
    a("v_add_u32 v12, s84, v10")
    a("v_xor_b32 v13, 64, v12")
    def rs_rd(g):
        a("v_add_u32 v10, %d, v12" % ((g % R) * SLOT))
        a("v_add_u32 v11, %d, v13" % ((g % R) * SLOT))
        for h in range(2):
            for n in range(2):
                a("ds_read_b128 %s, v%d offset:%d" % (vr(XB + 8 * h + 4 * n), 10 + h, 2048 * n))
    def rs_do():
        for h in range(2):
            for n in range(2):
                x = XB + 8 * h + 4 * n
                a("v_mfma_f32_16x16x32_bf16 %s, %s, %s, %s" % (vr(RA + 4 * n), vr(ONE), vr(x), vr(RA + 4 * n)))
                a("v_mfma_f32_16x16x32_bf16 %s, %s, %s, %s" % (vr(RA + 8 + 4 * n), vr(x), vr(x), vr(RA + 8 + 4 * n)))
    def interleave(dma, comp, vmx=None):
        groups = []; cur = []
        for l in dma:
            cur.append(l)
            if "buffer_load" in l and not any("exec, 0xffffffff" in x for x in cur[-2:]):
                groups.append(cur); cur = []
            elif "exec, -1" in l:
                groups.append(cur); cur = []
        if cur: groups.append(cur)
        ns = max(1, len(groups))
        per = (len(comp) + ns - 1) // ns
        for g in groups:
            a.lines.extend(g)
            a.lines.extend(comp[:per]); comp = comp[per:]
        a.lines.extend(comp)
    vm.wait(["S0"])
    a("s_barrier")
    stamp(a, 1)
    rs_rd(0)
    vm.wait(["S1"])
    a("s_barrier")
    for k in range(9):
        a("s_waitcnt lgkmcnt(0)")
        dma = capture(lambda: (issueT(k + 3), issueF(k + 3))) if k >= 1 else []
        interleave(dma, capture(rs_do))
        if k >= 1: vm.issue("S%d" % (k + 3), 9)
        if k < 8:
            rs_rd(k + 1)
        else:
            a("s_nop 7")
            a("v_lshrrev_b32 v10, 4, v2")
            a("v_lshrrev_b32 v11, 2, v3")
            a("v_and_b32 v12, 3, v3")
            for n in range(2):
                G_ = RA + 8 + 4 * n
                for r in range(1, 4):
                    a("v_cmp_eq_u32 vcc, %d, v12" % r)
                    a("s_nop 1")
                    a("v_cndmask_b32 v%d, v%d, v%d, vcc" % (G_, G_, G_ + r))
            ML = 112
            for n in range(2):
                emit_ln_finish(a, RA + 4 * n, RA + 8 + 4 * n, 576, ML + 2 * n, ML + 2 * n + 1, 120)
                a("v_mov_b32 v%d, v%d" % (117 + 2 * n, ML + 2 * n + 1))
                a("v_sub_f32 v%d, 0, v%d" % (116 + 2 * n, ML + 2 * n))
            a("s_lshl_b32 s35, s3, 8")
            a("v_lshlrev_b32 v13, 3, v3")
            a("v_add_u32 v12, s35, v13")
            a("v_cmp_eq_u32 vcc, v10, v11")
            a("s_and_saveexec_b64 s[36:37], vcc")
            for n in range(2):
                a("ds_write_b64 v12, %s offset:%d" % (vr(116 + 2 * n, 2), RST + 128 * n))
            a("s_mov_b64 exec, s[36:37]")
            a("s_cmp_lg_u32 s23, 0")
            a("s_cbranch_scc1 %s_nost1" % name)
            a("s_lshl_b32 s35, s22, 7")
            a("s_lshl_b32 s36, s3, 5")
            a("s_add_u32 s35, s35, s36")
            a("s_lshl_b32 s35, s35, 3")
            a("s_add_u32 s35, s35, 0x%x" % STATS1)
            a("v_mov_b32 v11, 0x7ffffff0")
            a("v_cndmask_b32 v13, v11, v13, vcc")
            for n in range(2):
                a("buffer_store_dwordx2 %s, v13, s[12:15], s35 offen offset:%d" % (vr(ML + 2 * n, 2), 128 * n))
            a.label("%s_nost1" % name)
            mma_addr(9 % R)
            a("s_mov_b32 s33, 0")
            a("s_setprio 0")
        vm.wait(["S%d" % (k + 2)], "lgkmcnt(0)" if k == 8 else "")
        if k < 8: a("s_barrier")
    a("s_branch %s_mma" % name)
    a.label("%s_A0" % name)
    emit_code_prefetch(a, name)
    a("s_load_dwordx4 s[64:67], s[0:1], 8")
    a("s_load_dwordx2 s[76:77], s[0:1], 24")
    a("s_load_dwordx2 s[78:79], s[0:1], 64")
    mma_setup()
    loader_setup(); loader_setup2()
    a("s_waitcnt lgkmcnt(0)")
    srds_main()
    srd(a, 68, 66, 2048 * 576 * 2)
    a("s_mov_b32 s88, s64"); a("s_mov_b32 s89, s65")
    srd(a, 64, 88, 2048 * 576 * 2)
    srd(a, 72, 76, 576 * 8)
    stamp_setup(a, 1); stamp(a, 0)
    def gran_addr():
        a("v_lshrrev_b32 v10, 4, v2")
        a("s_lshl_b32 s36, s25, 1")
        a("v_add_u32 v11, s36, v10")
        a("v_and_b32 v11, 3, v11")
        a("v_lshl_add_u32 v11, v11, 4, v3")
        a("v_lshlrev_b32 v94, 8, v11")
        a("s_lshl_b32 s59, s22, 7")
        a("s_lshl_b32 s36, s24, 6")
        a("s_add_u32 s59, s59, s36")
        a("s_lshl_b32 s59, s59, 8")
        a("s_add_u32 s59, s59, 0x%x" % STATS2)
        a("s_lshl_b32 s36, s23, 1")
        a("s_add_u32 s36, s36, s25")
        a("s_lshl_b32 s36, s36, 3")
        a("s_add_u32 s58, s36, s59")
    gran_addr()
    a("v_mov_b32 v12, 0"); a("v_mov_b32 v13, 0x80000000")
    a("buffer_store_dwordx2 v[12:13], v94, s[12:15], s58 offen sc1")
    a("s_lshl_b32 s36, s22, 4")
    a("s_add_u32 s36, s36, s23")
    a("s_lshl_b32 s36, s36, 8")
    a("s_add_u32 s97, s36, 0x%x" % ZFLG)
    a("v_mov_b32 v10, %d" % LC)
    a("v_mov_b32 v12, 0"); a("v_mov_b32 v13, 0")
    a("s_mov_b64 exec, 1")
    a("buffer_store_dword v12, v12, s[12:15], s97 offen sc1")
    a("s_mov_b64 exec, -1")
    a("ds_write_b64 v10, v[12:13]")
    a("ds_write_b64 v10, v[12:13] offset:8")
    mma_addr(0)
    a("s_mov_b32 s33, 0")
    a("s_waitcnt lgkmcnt(0)")
    a("s_barrier")
    stamp(a, 1)
    a.label("%s_mma" % name)
    core.prime(0, core.reads(0, 0))
    trk.drain()
    nocs = [False]
    def mfmas(buf):
        L = []
        for ft in range(5):
            A = core.F(buf, ft)
            for tt in range(4 if ft < 4 else 2):
                c = core.accr(ft, tt); B = core.T(buf, tt)
                L.append(("v_mfma_f32_16x16x32_bf16 %s, %s, %s, %s" % (vr(c), vr(A), vr(B), vr(c)), list(range(A, A + 4)) + list(range(B, B + 4))))
            if not nocs[0]: L.append(("v_mfma_f32_16x16x32_bf16 %s, %s, %s, %s" % (vr(CS + 4 * ft), vr(A), vr(ONE), vr(CS + 4 * ft)), list(range(A, A + 4))))
        return L
    def phase(buf, pend):
        for (m, regs) in mfmas(buf):
            trk.need(regs)
            a(m)
            while pend:
                k, t = pend.pop(0)
                if k == "x":
                    a(t)
                    if t.startswith("s_"): continue
                else:
                    a(t[0]); trk.issue(t[1])
                break
        for k, t in pend:
            if k == "x": a(t)
            else: a(t[0]); trk.issue(t[1])
    def iteration(vw=True):
        if vw: a("s_waitcnt vmcnt(0)")
        a("s_barrier")
        rd = [("r", t) for t in core.reads(1, 1)]
        upd = ["s_add_u32 s27, s27, %d" % SLOT, "s_cmp_eq_u32 s27, %d" % (R * SLOT), "s_cselect_b32 s27, 0, s27"]
        tail = ["v_add_u32 v%d, s27, v%d" % (d, s_) for d, s_ in ((vTa[0], bTa[0]), (vF, bF), (vTb[0], bTb[0]), (vFh, bFh))]
        phase(0, rd[:1] + [("x", u) for u in upd] + rd[1:] + [("x", u) for u in tail])
        rd = [("r", t) for t in core.reads(0, 0)]
        tail = ["v_add_u32 v%d, s27, v%d" % (d, s_) for d, s_ in ((vTa[1], bTa[1]), (vTb[1], bTb[1]))] + ["s_add_u32 s33, s33, 1"]
        phase(1, rd + [("x", u) for u in tail])
    a.label("%s_cloop" % name)
    lb = len(a.lines); iteration(); st = copy.deepcopy(trk.out); del a.lines[lb:]; trk.out = copy.deepcopy(st)
    iteration()
    assert [sorted(x) for x in trk.out] == [sorted(x) for x in st]
    a("s_cmp_lt_u32 s33, 9")
    a("s_cbranch_scc1 %s_cloop" % name)
    trk.drain()
    stamp(a, 2)
    MR = 100; T = 72; ZP = 16
    def epi_in():
        gelu_consts(a)
        a("s_lshl_b32 s36, s24, 9")
        a("s_lshl_b32 s37, s25, 8")
        a("s_add_u32 s38, s36, s37")
        a("s_xor_b32 s37, s37, 256")
        a("s_add_u32 s39, s36, s37")
        a("v_lshlrev_b32 v10, 3, v3")
        a("v_add_u32 v11, s38, v10")
        a("ds_read_b64 %s, v11 offset:%d" % (vr(MR, 2), RST))
        a("ds_read_b64 %s, v11 offset:%d" % (vr(MR + 2, 2), RST + 128))
        a("v_add_u32 v11, s39, v10")
        a("ds_read_b64 %s, v11 offset:%d" % (vr(MR + 4, 2), RST))
        a("ds_read_b64 %s, v11 offset:%d" % (vr(MR + 6, 2), RST + 128))
        a("s_waitcnt lgkmcnt(0)")
    S = [108, 110, 52, 54]; Q = [109, 111, 53, 55]
    def gelu_ft(ft, stats):
        tts = range(4 if ft < 4 else 2)
        emit_fold_gelu(a, [(core.accr(ft, tt), CS + 4 * ft, MR + 2 * tt, ZP + 2 * tidx(ft, tt)) for tt in tts], T)
        if stats:
            for d in range(2):
                for tt in tts:
                    p = ZP + 2 * tidx(ft, tt) + d
                    a("v_dot2_f32_bf16 v%d, v%d, v%d, v%d" % (S[tt], p, ONE, S[tt]))
                    a("v_dot2_f32_bf16 v%d, v%d, v%d, v%d" % (Q[tt], p, p, Q[tt]))
    a("s_cmp_eq_u32 s98, 0")
    a("s_cbranch_scc1 %s_A1" % name)
    a("v_mov_b32 v10, %d" % (LC + 12))
    a("v_mov_b32 v11, 1")
    a("s_mov_b64 exec, 1")
    a("ds_add_u32 v10, v11")
    a("s_mov_b64 exec, -1")
    a("s_load_dwordx4 s[64:67], s[0:1], 8")
    a("s_load_dwordx2 s[76:77], s[0:1], 24")
    a("s_load_dwordx2 s[94:95], s[0:1], 80")
    a("s_load_dwordx2 s[92:93], s[0:1], 72")
    epi_in()
    srd(a, 68, 66, 2048 * 576 * 2)
    a("s_mov_b32 s88, s64"); a("s_mov_b32 s89, s65")
    srd(a, 64, 88, 2048 * 576 * 2)
    srd(a, 72, 76, 576 * 8)
    srd(a, 76, 94, 2304 * 576 * 2)
    srd(a, 28, 92, 2048 * 2)
    a("v_and_b32 v0, 255, v0")
    a("s_mov_b32 s41, s2")
    KDB = 240
    emit_kv_loads(a, 112, 240, 248, 252, 253)
    a("s_cmp_ge_u32 s2, 32")
    a("s_cbranch_scc1 %s_kvp" % name)
    a("s_add_u32 s41, s2, 256")
    emit_kv_loads(a, 52, 63, 124, 71, 123)
    a.label("%s_kvp" % name)
    for ft in range(5): gelu_ft(ft, False)
    Z1R = 200; BI = 236
    for r_ in range(36): a("v_mov_b32 v%d, v%d" % (Z1R + r_, ZP + r_))
    stamp(a, 3)
    a("s_waitcnt vmcnt(0)")
    for n in range(11): a("v_mov_b32 v%d, v%d" % (16 + n, 112 + n))
    for n in range(8): a("v_mov_b32 v%d, v%d" % (32 + n, 240 + n))
    for n in range(4): a("v_mov_b32 v%d, v%d" % (44 + n, 248 + n))
    for r_ in range(6): a("v_mov_b32 v%d, v%d" % (240 + r_, 88 + r_))
    for r_ in range(20): a("v_mov_b32 v%d, v%d" % (128 + r_, 52 + r_))
    for r_ in range(5): a("v_mov_b32 v%d, v%d" % (148 + r_, 123 + r_))
    a("v_mov_b32 v56, v252"); a("v_mov_b32 v57, v253")
    a.label("%s_kvb" % name)
    emit_kv_compute(a, wait=False, store=False)
    a("s_mov_b32 s39, 0x%x" % KVT)
    a("buffer_store_dwordx4 v[120:123], v12, s[12:15], s39 offen sc1")
    a("buffer_store_dwordx4 v[124:127], v13, s[12:15], s39 offen sc1")
    a("s_cmp_lt_u32 s41, 256")
    a("s_cbranch_scc1 %s_kvbd" % name)
    a("s_mov_b32 s41, 0")
    for n in range(11): a("v_mov_b32 v%d, v%d" % (16 + n, 128 + n))
    for n in range(8): a("v_mov_b32 v%d, v%d" % (32 + n, 139 + n))
    for n in range(4): a("v_mov_b32 v%d, v%d" % (44 + n, 149 + n))
    a("v_mov_b32 v56, v147"); a("v_mov_b32 v57, v148")
    a("s_branch %s_kvb" % name)
    a.label("%s_kvbd" % name)
    for r_ in range(6): a("v_mov_b32 v%d, v%d" % (88 + r_, 240 + r_))
    a("s_mov_b32 s42, s2")
    emit_wot_loads(a, 100, 112, 720, 3)
    a("s_lshl_b32 s36, s22, 7")
    a("s_lshl_b32 s37, s24, 6")
    a("s_add_u32 s36, s36, s37")
    a("v_lshlrev_b32 v11, 1, v3")
    a("s_lshl_b32 s37, s25, 6")
    a("s_lshl_b32 s38, s36, 1")
    a("s_add_u32 s39, s38, s37")
    a("s_xor_b32 s37, s37, 64")
    a("s_add_u32 s36, s38, s37")
    a("buffer_load_ushort v96, v11, s[28:31], s39 offen")
    a("buffer_load_ushort v97, v11, s[28:31], s39 offen offset:32")
    a("buffer_load_ushort v98, v11, s[28:31], s36 offen")
    a("buffer_load_ushort v99, v11, s[28:31], s36 offen offset:32")
    for r in range(ACC, ACC + 72): a("v_mov_b32 v%d, 0" % r)
    mma_addr(0)
    a("s_mov_b32 s33, 0")
    stamp(a, 4)
    a("s_barrier")
    stamp(a, 5)
    core.prime(0, core.reads(0, 0))
    trk.drain()
    nocs[0] = True
    a.label("%s_gloop" % name)
    lb = len(a.lines); iteration(False); st = copy.deepcopy(trk.out); del a.lines[lb:]; trk.out = copy.deepcopy(st)
    iteration(False)
    assert [sorted(x) for x in trk.out] == [sorted(x) for x in st]
    a("s_cmp_lg_u32 s33, 3")
    a("s_cbranch_scc1 %s_ghk" % name)
    a("s_waitcnt vmcnt(0)")
    for n in range(3):
        a("buffer_store_dwordx4 %s, v%d, s[12:15], s40 offen" % (vr(100 + 4 * n), 112 + n))
    for tt in range(4): a("v_lshlrev_b32 v%d, 16, v%d" % (BI + 2 * tt, 96 + tt))
    a("v_mov_b32 v10, %d" % (LC + 8))
    a("v_mov_b32 v11, 1")
    a("s_mov_b64 exec, 1")
    a("ds_add_rtn_u32 v12, v10, v11")
    a("s_waitcnt lgkmcnt(0)")
    a("v_readfirstlane_b32 s36, v12")
    a("s_cmp_lg_u32 s36, 3")
    a("s_cbranch_scc1 %s_nokvs" % name)
    a("s_and_b32 s36, s2, 15")
    a("s_lshl_b32 s36, s36, 2")
    a("s_add_u32 s36, s36, 128")
    a("v_mov_b32 v10, s36")
    a("buffer_atomic_add v11, v10, s[60:63], 0 offen sc1")
    a.label("%s_nokvs" % name)
    a("s_mov_b64 exec, -1")
    a.label("%s_ghk" % name)
    a("s_cmp_lt_u32 s33, 32")
    a("s_cbranch_scc1 %s_gloop" % name)
    trk.drain()
    stamp(a, 6)
    G3.emit_k2_epilogue(a, core, Z1R, BI)
    stamp(a, 7)
    G.stamp_rt(a, 1)
    a("s_branch %s_end" % name)
    a.label("%s_A1" % name)
    a("s_setprio 2")
    vmA = VmTracker(a)
    PB = 132
    def aux_head():
        epi_in()
        for tt in range(4):
            a("v_mov_b32 v%d, 0" % S[tt]); a("v_mov_b32 v%d, 0" % Q[tt])
    def aux_pub():
        a("s_nop 2")
        emit_xg_reduce(a, S + Q, 72)
        a("v_lshrrev_b32 v10, 4, v2")
        for g in range(1, 4):
            a("v_cmp_eq_u32 vcc, %d, v10" % g)
            a("s_nop 1")
            a("v_cndmask_b32 v%d, v%d, v%d, vcc" % (S[0], S[0], S[g]))
            a("v_cndmask_b32 v%d, v%d, v%d, vcc" % (Q[0], Q[0], Q[g]))
        a("v_and_b32 v%d, 0x7fffffff, v%d" % (Q[0], Q[0]))
        a("buffer_store_dwordx2 v[%d:%d], v94, s[12:15], s58 offen sc1" % (S[0], Q[0]))
    chunks = [capture(aux_head) + capture(gelu_ft, 0, True), capture(gelu_ft, 1, True), capture(gelu_ft, 2, True),
              capture(gelu_ft, 3, True), capture(gelu_ft, 4, True) + capture(aux_pub)]
    GB = [128, 144, 160, 176]
    def gather():
        for tt in range(4):
            for q in range(4):
                a("buffer_load_dwordx4 %s, v4, s[12:15], s%d offen offset:%d sc1" % (vr(GB[tt] + 4 * q), (52, 42, 53, 43)[tt], 16 * q))
    KD = 172
    for k in range(9, 18):
        a("s_barrier")
        if k == 9:
            a("s_cmp_lg_u32 s3, 0")
            a("s_cbranch_scc1 %s_nosig" % name)
            a("v_mov_b32 v10, 1")
            a("s_lshl_b32 s36, s22, 2")
            a("v_mov_b32 v11, s36")
            a("s_mov_b64 exec, 1")
            a("buffer_atomic_add v10, v11, s[60:63], 0 offen sc1")
            a("s_mov_b64 exec, -1")
            a.label("%s_nosig" % name)
        g = k + 3
        dma = capture(lambda: (issueT(g), issueF(g))) if g < 18 else []
        comp = chunks[k - 9] if k - 9 < len(chunks) else []
        interleave(dma, comp)
        if k == 13: vmA.issue("pub", 1)
        if g < 18: vmA.issue("S%d" % g, 9)
        if k == 14:
            srd(a, 92, 78, 2048 * 2048 * 2)
            a("v_lshrrev_b32 v10, 4, v2")
            a("v_lshlrev_b32 v10, 12, v10")
            a("v_lshl_add_u32 v10, v3, 4, v10")
            a("s_lshl_b32 s40, s22, 7")
            a("s_lshl_b32 s36, s3, 5")
            a("s_add_u32 s40, s40, s36")
            a("s_lshl_b32 s40, s40, 12")
            a("s_lshl_b32 s36, s23, 8")
            a("s_add_u32 s40, s40, s36")
            for n in range(8):
                a("buffer_load_dwordx4 v[200:203], v10, s[92:95], s40 offen")
                if n < 7: a("s_add_u32 s40, s40, 16384")
            vmA.issue("wp", 8)
        if k == 13:
            a("s_lshl_b32 s36, s22, 2")
            a("v_mov_b32 v199, s36")
            a("buffer_load_dword v198, v199, s[60:63], 0 offen sc1"); vmA.issue("cnt", 1)
        if k == 15:
            a("v_lshrrev_b32 v10, 4, v2")
            a("v_lshlrev_b32 v95, 8, v3")
            a("v_lshl_add_u32 v95, v10, 6, v95")
            a("s_lshl_b32 s33, s25, 13")
            a("s_add_u32 s52, s59, s33")
            a("s_xor_b32 s33, s33, 8192")
            a("s_add_u32 s53, s59, s33")
            a("s_add_u32 s42, s52, 4096")
            a("s_add_u32 s43, s53, 4096")
            a("v_mov_b32 v4, v95")
            vmA.wait(["S17"])
            gather(); vmA.issue("g", 16)
        if k + 2 < 18 and k + 2 >= 12 and k != 15:
            vmA.wait(["S%d" % (k + 2)])
    stamp(a, 3)
    a("s_load_dwordx4 s[88:91], s[0:1], 32")
    Z2 = ZP
    a("s_mov_b32 s40, 0")
    a("s_waitcnt vmcnt(0)")
    a.label("%s_chk" % name)
    a("v_subrev_u32 v11, 16, v198")
    for tt in range(4):
        for r in range(GB[tt] + 1, GB[tt] + 16, 4):
            a("v_or3_b32 v11, v11, v%d, v%d" % (r, r + 2))
    a("v_cmp_gt_i32 vcc, 0, v11")
    a("s_add_u32 s40, s40, 1")
    a("s_cmp_gt_u32 s40, %d" % SPIN_MAX)
    a("s_cbranch_scc1 %s_ok" % name)
    a("s_cbranch_vccz %s_ok" % name)
    a("s_sleep 32")
    a("buffer_load_dword v198, v199, s[60:63], 0 offen sc1")
    a("s_waitcnt vmcnt(0)")
    gather()
    a("s_waitcnt vmcnt(0)")
    a("s_branch %s_chk" % name)
    a.label("%s_ok" % name)
    stamp(a, 5)
    for tt in range(4):
        b = GB[tt]
        for st_ in (8, 4, 2):
            for q in range(0, st_, 2):
                a("v_pk_add_f32 %s, %s, %s" % (vr(b + q, 2), vr(b + q, 2), vr(b + q + st_, 2)))
    emit_xg_reduce(a, [GB[tt] + e for tt in range(4) for e in range(2)], 72)
    for tt in range(4):
        b = GB[tt]
        emit_ln_finish(a, b, b + 1, 2304, b + 2, MR + 2 * tt, b + 4)
        a("v_mul_f32 v%d, -v%d, v%d" % (MR + 2 * tt + 1, b + 2, MR + 2 * tt))
    a("v_lshrrev_b32 v10, 4, v2")
    a("v_lshrrev_b32 v11, 2, v2"); a("v_and_b32 v11, 1, v11"); a("v_lshlrev_b32 v11, 4, v11")
    a("v_lshrrev_b32 v5, 3, v2"); a("v_and_b32 v5, 1, v5"); a("v_lshl_add_u32 v11, v5, 2, v11")
    a("v_and_b32 v5, 3, v2"); a("v_add_u32 v11, v11, v5")
    a("v_mul_u32_u24 v11, 288, v11")
    a("v_lshrrev_b32 v5, 1, v10"); a("v_lshl_add_u32 v11, v5, 4, v11")
    a("v_and_b32 v5, 1, v10")
    a("v_lshl_add_u32 v6, v5, 5, v11")
    a("v_mul_u32_u24 v5, 2304, v5")
    a("v_add_u32 v9, v11, v5")
    a("s_lshl_b32 s33, s23, 5")
    a("s_lshl_b32 s36, s22, 1")
    a("s_add_u32 s33, s33, s36")
    a("s_add_u32 s33, s33, s24")
    a("s_mul_i32 s33, s33, 18432")
    if ZIMG: a("s_add_u32 s33, s33, 0x%x" % ZIMG)
    a("s_mul_i32 s36, s25, 9216")
    a("s_add_u32 s37, s33, s36")
    a("s_xor_b32 s36, s36, 9216")
    a("s_add_u32 s38, s33, s36")
    a("s_add_u32 s39, s37, 128")
    a("s_mul_i32 s36, s25, 160")
    a("s_add_u32 s37, s37, s36")
    a("s_add_u32 s38, s38, s36")
    def norm_pair(nA, ttA, nB, ttB, O):
        for q, (n, tt) in enumerate(((nA, ttA), (nB, ttB))):
            for d in range(2):
                z = Z2 + 2 * n + d; t = T + 4 * q + 2 * d
                a("v_lshlrev_b32 v%d, 16, v%d" % (t, z))
                a("v_and_b32 v%d, 0xffff0000, v%d" % (t + 1, z))
        for q, (n, tt) in enumerate(((nA, ttA), (nB, ttB))):
            for d in range(2):
                t = T + 4 * q + 2 * d
                a("v_pk_fma_f32 %s, %s, %s, %s op_sel:[0,0,1] op_sel_hi:[1,0,1]" % (vr(t, 2), vr(t, 2), vr(MR + 2 * tt, 2), vr(MR + 2 * tt, 2)))
        for q in range(2):
            for d in range(2):
                t = T + 4 * q + 2 * d
                a("v_cvt_pk_bf16_f32 v%d, v%d, v%d" % (O + 2 * q + d, t, t + 1))
        a("s_nop 1")
        a("v_permlane16_swap_b32 v%d, v%d" % (O, O + 2))
        a("v_permlane16_swap_b32 v%d, v%d" % (O + 1, O + 3))
    cnt = 0
    for pr in range(2):
        for tt in range(4):
            O = 200 + 4 * cnt; cnt += 1
            norm_pair(tidx(2 * pr, tt), tt, tidx(2 * pr + 1, tt), tt, O)
            a("s_nop 0")
            a("buffer_store_dwordx4 %s, v6, s[12:15], s%d offen offset:%d" % (vr(O), 37 if tt < 2 else 38, (tt & 1) * 2304 + 64 * pr) + " sc1")
    O = 200 + 4 * cnt
    norm_pair(16, 0, 17, 1, O)
    a("s_nop 0")
    a("buffer_store_dwordx4 %s, v9, s[12:15], s39 offen sc1" % vr(O))
    stamp(a, 6)
    a("s_setprio 3")
    srd(a, 8, 78, 2048 * 2048 * 2)
    a("v_lshrrev_b32 v3, 3, v2")
    a("s_lshl_b32 s24, s3, 5")
    a("v_add_u32 v3, s24, v3")
    a("v_and_b32 v4, 7, v2")
    a("v_lshrrev_b32 v6, 4, v2")
    a("v_xor_b32 v6, v6, v4")
    a("v_lshlrev_b32 v6, 4, v6")
    a("v_lshl_add_u32 v10, v3, 12, v6")
    a("v_xor_b32 v11, 64, v10")
    a("v_add_u32 v11, %d, v11" % (32768 - 1024))
    a("v_add_u32 v12, %d, v10" % (2 * (32768 - 1024)))
    a("v_add_u32 v13, %d, v11" % (2 * (32768 - 1024)))
    a("v_lshlrev_b32 v14, 4, v2")
    a("s_lshl_b32 s26, s22, 19")
    a("s_mul_i32 s27, s23, %d" % (32 * 18432))
    a("s_lshl_b32 s24, s3, 12")
    a("s_add_u32 s27, s27, s24")
    if ZIMG: a("s_add_u32 s27, s27, 0x%x" % ZIMG)
    a("s_lshl_b32 s25, s3, 9")
    a("s_sub_u32 s32, s25, s24")
    a("s_add_u32 s32, s32, 16384")
    a("s_add_u32 s24, s24, %d" % RB)
    a("s_waitcnt vmcnt(0) lgkmcnt(0)")
    a("v_mov_b32 v26, %d" % LC)
    a("v_mov_b32 v27, 1")
    a("s_mov_b64 exec, 1")
    a("ds_add_rtn_u32 v28, v26, v27")
    a("s_waitcnt lgkmcnt(0)")
    a("v_readfirstlane_b32 s36, v28")
    a("s_cmp_lg_u32 s36, 3")
    a("s_cbranch_scc1 %s_nozs" % name)
    a("v_mov_b32 v28, 0")
    a("buffer_store_dword v27, v28, s[12:15], s97 offen sc1")
    a.label("%s_nozs" % name)
    a("s_mov_b64 exec, -1")
    stamp(a, 7)
    srd(a, 16, 88, 576 * 2048 * 2)
    srd(a, 84, 90, 576 * 2)
    a("s_mov_b32 s34, 0")
    a.label("%s_wb" % name)
    a("ds_read_b32 v27, v26 offset:12")
    a("s_add_u32 s34, s34, 1")
    a("s_waitcnt lgkmcnt(0)")
    a("v_readfirstlane_b32 s36, v27")
    a("s_cmp_gt_u32 s34, %d" % (SPIN_MAX * 20))
    a("s_cbranch_scc1 %s_wbx" % name)
    a("s_cmp_ge_u32 s36, 4")
    a("s_cbranch_scc1 %s_wbx" % name)
    a("s_sleep 2")
    a("s_branch %s_wb" % name)
    a.label("%s_wbx" % name)
    for g in range(4):
        a("s_add_u32 s35, s24, %d" % (g * SLOT))
        a("s_mov_b32 m0, s35")
        a("s_add_u32 s36, s26, %d" % (128 * g))
        for n in range(4):
            a("buffer_load_dwordx4 v%d, s[8:11], s36 offen offset:%d lds" % (10 + n, n * 1024))
    a("s_mov_b32 s34, 0")
    a("s_cmp_lg_u32 s3, 0")
    a("s_cbranch_scc1 %s_pl" % name)
    a("v_and_b32 v28, 15, v2")
    a("v_lshlrev_b32 v30, 2, v28")
    a("v_lshlrev_b32 v28, 12, v28")
    a("s_lshl_b32 s52, s23, 8")
    a("s_add_u32 s52, s52, 0x%x" % ZFLG)
    a.label("%s_pz0" % name)
    a("buffer_load_dword v31, v30, s[60:63], 0 offen sc1")
    a("s_add_u32 s34, s34, 1")
    a("s_waitcnt vmcnt(0)")
    a("v_cmp_gt_u32 vcc, 16, v31")
    a("s_cmp_gt_u32 s34, %d" % SPIN_MAX)
    a("s_cbranch_scc1 %s_pz" % name)
    a("s_cbranch_vccz %s_pz" % name)
    a("s_sleep 32")
    a("s_branch %s_pz0" % name)
    a.label("%s_pz" % name)
    a("buffer_load_dword v29, v28, s[12:15], s52 offen sc1")
    a("s_add_u32 s34, s34, 1")
    a("s_waitcnt vmcnt(0)")
    a("v_cmp_ne_u32 vcc, 1, v29")
    a("s_cmp_gt_u32 s34, %d" % SPIN_MAX)
    a("s_cbranch_scc1 %s_pzx" % name)
    a("s_cbranch_vccz %s_pzx" % name)
    a("s_sleep 8")
    a("s_branch %s_pz" % name)
    a.label("%s_pzx" % name)
    a("v_mov_b32 v27, 1")
    a("ds_write_b32 v26, v27 offset:4")
    a("s_branch %s_pgo" % name)
    a.label("%s_pl" % name)
    a("ds_read_b32 v27, v26 offset:4")
    a("s_add_u32 s34, s34, 1")
    a("s_waitcnt lgkmcnt(0)")
    a("v_readfirstlane_b32 s36, v27")
    a("s_cmp_gt_u32 s34, %d" % (SPIN_MAX * 20))
    a("s_cbranch_scc1 %s_pgo" % name)
    a("s_cmp_lg_u32 s36, 0")
    a("s_cbranch_scc1 %s_pgo" % name)
    a("s_sleep 2")
    a("s_branch %s_pl" % name)
    a.label("%s_pgo" % name)
    stamp(a, 8)
    for g in range(4):
        a("s_add_u32 s35, s24, %d" % (g * SLOT + TREG))
        a("s_mov_b32 m0, s35")
        a("s_add_u32 s36, s27, %d" % (18432 * g))
        a("s_add_u32 s37, s36, s32")
        for n in range(4):
            a("buffer_load_dwordx4 v14, s[12:15], s36 offen offset:%d sc1 lds" % (n * 1024))
        a("s_add_u32 s35, s35, s32")
        a("s_mov_b32 m0, s35")
        a("s_mov_b64 exec, 0xffffffff")
        a("buffer_load_dwordx4 v14, s[12:15], s37 offen sc1 lds")
        a("s_mov_b64 exec, -1")
    a("s_add_u32 s26, s26, 512")
    a("s_add_u32 s27, s27, %d" % (4 * 18432))
    a("s_mov_b32 s33, 0")
    a("s_lshl_b32 s43, s2, 2")
    a("s_add_u32 s43, s43, s3")
    a("s_and_b32 s53, s43, 1")
    a("s_sub_u32 s36, s43, 448")
    a("s_lshr_b32 s37, s43, 1")
    a("s_cmp_ge_u32 s43, 896")
    a("s_cselect_b32 s43, s36, s37")
    a("s_cselect_b32 s53, 2, s53")
    a("s_waitcnt vmcnt(15)")
    a("s_barrier")
    a("s_waitcnt vmcnt(10)")
    a("s_barrier")
    a("s_waitcnt vmcnt(5)")
    a("s_barrier")
    a("s_mov_b32 s34, 4")
    def issue2():
        a("s_add_u32 s35, s33, s24")
        a("s_mov_b32 m0, s35")
        a("s_add_u32 s36, s35, %d" % TREG)
        for n in range(4):
            a("buffer_load_dwordx4 v%d, s[8:11], s26 offen offset:%d lds" % (10 + n, n * 1024))
        a("s_mov_b32 m0, s36")
        a("s_add_u32 s37, s27, s32")
        for n in range(4):
            a("buffer_load_dwordx4 v14, s[12:15], s27 offen offset:%d sc1 lds" % (n * 1024))
        a("s_add_u32 s36, s36, s32")
        a("s_mov_b32 m0, s36")
        a("s_mov_b64 exec, 0xffffffff")
        a("buffer_load_dwordx4 v14, s[12:15], s37 offen sc1 lds")
        a("s_mov_b64 exec, -1")
        a("s_add_u32 s26, s26, 128")
        a("s_add_u32 s27, s27, 18432")
        a("s_add_u32 s33, s33, %d" % SLOT)
        a("s_cmp_eq_u32 s33, %d" % (R * SLOT))
        a("s_cselect_b32 s33, 0, s33")
    a.label("%s_lloop" % name)
    issue2()
    a("s_cmp_eq_u32 s34, 18")
    a("s_cbranch_scc1 %s_hk1" % name)
    a("s_cmp_eq_u32 s34, 21")
    a("s_cbranch_scc1 %s_hk2" % name)
    a("s_waitcnt vmcnt(9)")
    a.label("%s_lcont" % name)
    a("s_barrier")
    a("s_add_u32 s34, s34, 1")
    a("s_cmp_lt_u32 s34, 32")
    a("s_cbranch_scc1 %s_lloop" % name)
    a("s_branch %s_ldone" % name)
    a.label("%s_hk1" % name)
    a("v_and_b32 v28, 15, v2")
    a("v_lshlrev_b32 v28, 2, v28")
    a("buffer_load_dword v29, v28, s[60:63], 0 offen offset:128 sc1")
    a("s_waitcnt vmcnt(10)")
    a("s_branch %s_lcont" % name)
    a.label("%s_hk2" % name)
    a("s_mov_b32 s52, 0")
    a.label("%s_hk2l" % name)
    a("v_cmp_gt_u32 vcc, 16, v29")
    a("s_add_u32 s52, s52, 1")
    a("s_cmp_gt_u32 s52, %d" % SPIN_MAX)
    a("s_cbranch_scc1 %s_hk2g" % name)
    a("s_cbranch_vccz %s_hk2g" % name)
    a("s_sleep 16")
    a("buffer_load_dword v29, v28, s[60:63], 0 offen offset:128 sc1")
    a("s_waitcnt vmcnt(0)")
    a("s_branch %s_hk2l" % name)
    a.label("%s_hk2g" % name)
    nconv = emit_conv_loads(a, " sc1")
    a("s_waitcnt vmcnt(%d)" % (9 + nconv))
    a("s_branch %s_lcont" % name)
    a.label("%s_ldone" % name)
    a("s_waitcnt vmcnt(0)")
    a("s_barrier")
    a("s_mov_b32 s26, s53")
    a("s_and_b32 s27, s3, 1")
    a("s_mul_i32 s27, s27, %d" % CJ_SIZE)
    a("s_lshr_b32 s36, s3, 1")
    a("s_mul_i32 s36, s36, %d" % SLOT)
    a("s_add_u32 s27, s27, s36")
    a("s_add_u32 s27, s27, %d" % RB)
    def mid():
        a("s_barrier")
        a("s_setprio 0")
    sv = set(DBG); DBG.discard("stamp")
    emit_conv_job(a, name, mid)
    DBG.update(sv)
    G.stamp_rt(a, 1)
    a.label("%s_end" % name)
    a("s_endpgm")
    return a.text(), kernel_desc(name, 256, 256), (name, 256, 512, LDSB)

def gen_kf4(name="k1_kernel", R=4):
    a = Asm()
    RB = 4096; SLOT = 34816; TREG = 16384; FS = 288; RST = 0
    LDSB = RB + R * SLOT
    LC = 2048
    ZFLG = 0x2D00000
    from gen3 import emit_conv_loads, emit_conv_job, CJ_SIZE
    def capture(f, *args):
        lb = len(a.lines); f(*args); out = a.lines[lb:]; del a.lines[lb:]; return out
    kernel_begin(a, name)
    a("s_load_dwordx2 s[80:81], s[0:1], 0")
    a("s_load_dwordx2 s[4:5], s[0:1], 56")
    a("s_load_dwordx2 s[6:7], s[0:1], 104")
    a("s_load_dwordx2 s[18:19], s[0:1], 96")
    a("s_cmp_ge_u32 s2, 256")
    a("s_cbranch_scc1 %s_end" % name)
    a("v_lshrrev_b32 v1, 6, v0")
    a("v_and_b32 v2, 63, v0")
    a("v_readfirstlane_b32 s3, v1")
    G2.tile_ij(a)
    a("s_lshr_b32 s98, s3, 2")
    a("s_mov_b32 s54x, 0".replace("s54x", "s99"))
    a("s_and_b32 s3, s3, 3")
    a("s_lshr_b32 s24, s3, 1")
    a("s_and_b32 s25, s3, 1")
    a("v_and_b32 v3, 15, v2")
    VT = 204; VF = 208
    def loader_setup():
        a("v_lshrrev_b32 v5, 3, v2")
        a("v_and_b32 v4, 7, v2")
        a("s_lshl_b32 s36, s3, 5")
        a("v_add_u32 v5, s36, v5")
        a("v_lshrrev_b32 v7, 4, v2")
        a("v_xor_b32 v7, v7, v4")
        a("v_mul_u32_u24 v6, 1152, v5")
        a("v_lshl_add_u32 v%d, v7, 4, v6" % VT)
        a("v_xor_b32 v%d, 64, v%d" % (VT + 1, VT))
        a("v_add_u32 v%d, %d, v%d" % (VT + 1, 9216 - 1024, VT + 1))
        a("v_add_u32 v%d, %d, v%d" % (VT + 2, 2 * (9216 - 1024), VT))
        a("v_add_u32 v%d, %d, v%d" % (VT + 3, 2 * (9216 - 1024), VT + 1))
        a("s_lshl_b32 s84, s3, 12")
        a("s_add_u32 s84, s84, %d" % RB)
        a("s_lshl_b32 s85, s3, 9")
        a("s_add_u32 s85, s85, %d" % (RB + TREG + 16384))
    def loader_setup2():
        for n in range(5):
            if n < 4:
                a("s_lshl_b32 s36, s3, 8")
                a("s_add_u32 s36, s36, %d" % (64 * n))
            else:
                a("s_lshl_b32 s36, s3, 5")
                a("s_add_u32 s36, s36, 1024")
            a("v_add_u32 v6, s36, v2")
            a("v_mul_u32_u24 v7, 3641, v6")
            a("v_lshrrev_b32 v7, 16, v7")
            a("v_mul_u32_u24 v8, 18, v7")
            a("v_sub_u32 v8, v6, v8")
            a("v_and_b32 v9, 35, v7")
            a("v_bfe_u32 v6, v7, 2, 2")
            a("v_lshl_add_u32 v9, v6, 3, v9")
            a("v_bfe_u32 v6, v7, 4, 1")
            a("v_lshl_add_u32 v9, v6, 2, v9")
            a("v_mul_u32_u24 v9, 9216, v9")
            a("v_lshl_add_u32 v%d, v8, 4, v9" % (VF + n))
            if 0 < n < 4: a("v_subrev_u32 v%d, %d, v%d" % (VF + n, 1024 * n, VF + n))
    def issueT(g):
        st = g % 9
        a("s_add_u32 s86, s84, %d" % ((g % R) * SLOT))
        a("s_mov_b32 m0, s86")
        a("s_add_u32 s87, s82, %d" % (128 * st))
        for n in range(4):
            a("buffer_load_dwordx4 v%d, s[28:31], s87 offen offset:%d lds" % (VT + n, 1024 * n))
    def issueF(g):
        st = g % 9
        a("s_add_u32 s86, s84, %d" % ((g % R) * SLOT + TREG))
        a("s_mov_b32 m0, s86")
        a("s_add_u32 s87, s83, %d" % (64 * 9216 * st + (4608 if g < 9 else 0)))
        for n in range(4):
            a("buffer_load_dwordx4 v%d, s[8:11], s87 offen offset:%d lds" % (VF + n, 1024 * n))
        a("s_add_u32 s86, s85, %d" % ((g % R) * SLOT))
        a("s_mov_b32 m0, s86")
        a("s_mov_b64 exec, 0xffffffff")
        a("buffer_load_dwordx4 v%d, s[8:11], s87 offen lds" % (VF + 4))
        a("s_mov_b64 exec, -1")
    def srds_main():
        srd(a, 28, 80, 2048 * 576 * 2)
        srd(a, 8, 4, 576 * 4608 * 2)
        srd(a, 12, 6, WS_BYTES)
        srd(a, 60, 18, 256)
        a("s_mul_i32 s82, s22, %d" % (128 * 1152))
        a("s_mul_i32 s83, s23, 288")
    ACC = 128; FB = [16, 52]; CS = 216; ONE = 236
    vTa = [4, 5]; vTb = [6, 7]; vF = 8; vFh = 9
    bTa = [88, 89]; bTb = [90, 91]; bF = 92; bFh = 93
    def mma_setup():
        a("v_lshrrev_b32 v10, 4, v2")
        a("v_lshrrev_b32 v11, 1, v3")
        a("v_xor_b32 v10, v10, v11")
        a("v_lshlrev_b32 v10, 4, v10")
        a("v_lshl_add_u32 v10, v3, 7, v10")
        a("s_lshl_b32 s26, s24, 13")
        a("s_add_u32 s26, s26, %d" % RB)
        a("v_add_u32 v10, s26, v10")
        a("s_lshl_b32 s26, s25, 12")
        a("v_add_u32 v%d, s26, v10" % bTa[0])
        a("s_xor_b32 s26, s26, 4096")
        a("v_add_u32 v%d, s26, v10" % bTb[0])
        a("v_xor_b32 v%d, 64, v%d" % (bTa[1], bTa[0]))
        a("v_xor_b32 v%d, 64, v%d" % (bTb[1], bTb[0]))
        a("v_lshrrev_b32 v10, 2, v2")
        a("v_mul_u32_u24 v10, %d, v10" % FS)
        a("v_and_b32 v11, 3, v2")
        a("v_lshl_add_u32 v10, v11, 3, v10")
        a("v_add_u32 v10, %d, v10" % (RB + TREG))
        a("s_mul_i32 s26, s25, 160")
        a("v_add_u32 v%d, s26, v10" % bF)
        a("v_add_u32 v%d, 128, v10" % bFh)
        for r in range(ACC, ACC + 72): a("v_mov_b32 v%d, 0" % r)
        for r in range(CS, CS + 20): a("v_mov_b32 v%d, 0" % r)
        for r in range(ONE, ONE + 4): a("v_mov_b32 v%d, 0x3f803f80" % r)
    def mma_addr(slot):
        a("s_mov_b32 s27, %d" % (slot * SLOT))
        for d, s_ in ((vTa[0], bTa[0]), (vTb[0], bTb[0]), (vTa[1], bTa[1]), (vTb[1], bTb[1]), (vF, bF), (vFh, bFh)):
            a("v_add_u32 v%d, s27, v%d" % (d, s_))
    core = G.Core(a, ACC, FB[0], FB[1], FS, TREG, vTa, vTb, vF, vFh)
    trk = core.trk
    a("s_cmp_eq_u32 s98, 0")
    a("s_cbranch_scc1 %s_A0" % name)
    a("s_setprio 3")
    loader_setup()
    a("s_waitcnt lgkmcnt(0)")
    srds_main()
    vm = VmTracker(a)
    def issue(g, vmx):
        issueT(g); issueF(g); vmx.issue("S%d" % g, 9)
    issueT(0)
    loader_setup2()
    issueF(0); vm.issue("S0", 9)
    issue(1, vm); issue(2, vm); issue(3, vm)
    a("s_add_u32 s3, s3, 4"); stamp_setup(a, 1); stamp(a, 0); a("s_sub_u32 s3, s3, 4")
    mma_setup()
    RA = 96; XB = 112
    for r in range(RA, RA + 16): a("v_mov_b32 v%d, 0" % r)
    a("v_lshrrev_b32 v10, 4, v2")
    a("v_lshrrev_b32 v11, 1, v3")
    a("v_xor_b32 v10, v10, v11")
    a("v_lshlrev_b32 v10, 4, v10")
    a("v_lshl_add_u32 v10, v3, 7, v10")
    a("v_add_u32 v12, s84, v10")
    a("v_xor_b32 v13, 64, v12")
    def rs_rd(g):
        a("v_add_u32 v10, %d, v12" % ((g % R) * SLOT))
        a("v_add_u32 v11, %d, v13" % ((g % R) * SLOT))
        for h in range(2):
            for n in range(2):
                a("ds_read_b128 %s, v%d offset:%d" % (vr(XB + 8 * h + 4 * n), 10 + h, 2048 * n))
    def rs_do():
        for h in range(2):
            for n in range(2):
                x = XB + 8 * h + 4 * n
                a("v_mfma_f32_16x16x32_bf16 %s, %s, %s, %s" % (vr(RA + 4 * n), vr(ONE), vr(x), vr(RA + 4 * n)))
                a("v_mfma_f32_16x16x32_bf16 %s, %s, %s, %s" % (vr(RA + 8 + 4 * n), vr(x), vr(x), vr(RA + 8 + 4 * n)))
    def interleave(dma, comp, vmx=None):
        groups = []; cur = []
        for l in dma:
            cur.append(l)
            if "buffer_load" in l and not any("exec, 0xffffffff" in x for x in cur[-2:]):
                groups.append(cur); cur = []
            elif "exec, -1" in l:
                groups.append(cur); cur = []
        if cur: groups.append(cur)
        ns = max(1, len(groups))
        per = (len(comp) + ns - 1) // ns
        for g in groups:
            a.lines.extend(g)
            a.lines.extend(comp[:per]); comp = comp[per:]
        a.lines.extend(comp)
    vm.wait(["S0"])
    a("s_barrier")
    stamp(a, 1)
    rs_rd(0)
    vm.wait(["S1"])
    a("s_barrier")
    for k in range(9):
        a("s_waitcnt lgkmcnt(0)")
        dma = capture(lambda: (issueT(k + 3), issueF(k + 3))) if 1 <= k < 8 else []
        interleave(dma, capture(rs_do))
        if 1 <= k < 8: vm.issue("S%d" % (k + 3), 9)
        if k < 8:
            rs_rd(k + 1)
        else:
            a("s_nop 7")
            a("v_lshrrev_b32 v10, 4, v2")
            a("v_lshrrev_b32 v11, 2, v3")
            a("v_and_b32 v12, 3, v3")
            for n in range(2):
                G_ = RA + 8 + 4 * n
                for r in range(1, 4):
                    a("v_cmp_eq_u32 vcc, %d, v12" % r)
                    a("s_nop 1")
                    a("v_cndmask_b32 v%d, v%d, v%d, vcc" % (G_, G_, G_ + r))
            ML = 112
            for n in range(2):
                emit_ln_finish(a, RA + 4 * n, RA + 8 + 4 * n, 576, ML + 2 * n, ML + 2 * n + 1, 120)
                a("v_mov_b32 v%d, v%d" % (117 + 2 * n, ML + 2 * n + 1))
                a("v_sub_f32 v%d, 0, v%d" % (116 + 2 * n, ML + 2 * n))
            a("s_lshl_b32 s35, s3, 8")
            a("v_lshlrev_b32 v13, 3, v3")
            a("v_add_u32 v12, s35, v13")
            a("v_cmp_eq_u32 vcc, v10, v11")
            a("s_and_saveexec_b64 s[36:37], vcc")
            for n in range(2):
                a("ds_write_b64 v12, %s offset:%d" % (vr(116 + 2 * n, 2), RST + 128 * n))
            a("s_mov_b64 exec, s[36:37]")
            a("s_cmp_lg_u32 s23, 0")
            a("s_cbranch_scc1 %s_nost1" % name)
            a("s_lshl_b32 s35, s22, 7")
            a("s_lshl_b32 s36, s3, 5")
            a("s_add_u32 s35, s35, s36")
            a("s_lshl_b32 s35, s35, 3")
            a("s_add_u32 s35, s35, 0x%x" % STATS1)
            a("v_mov_b32 v11, 0x7ffffff0")
            a("v_cndmask_b32 v13, v11, v13, vcc")
            for n in range(2):
                a("buffer_store_dwordx2 %s, v13, s[12:15], s35 offen offset:%d" % (vr(ML + 2 * n, 2), 128 * n))
            a.label("%s_nost1" % name)
        if k < 8:
            vm.wait(["S%d" % (k + 2)])
            a("s_barrier")
    HO = lambda: None
    def ho_addr():
        a("s_lshr_b32 s36, s3, 1")
        a("s_mul_i32 s36, s36, %d" % (3 * SLOT))
        a("s_and_b32 s37, s3, 1")
        a("s_mul_i32 s37, s37, 12288")
        a("s_add_u32 s36, s36, s37")
        a("s_add_u32 s36, s36, %d" % RB)
        a("v_lshlrev_b32 v10, 4, v2")
        a("v_add_u32 v95, s36, v10")
    a("s_waitcnt lgkmcnt(0)")
    a("s_barrier")
    ho_addr()
    a("s_barrier")
    n_ = 0
    for ft in range(4):
        for tt in range(2):
            a("ds_read_b128 %s, v95 offset:%d" % (vr(core.accr(ft, tt)), 1024 * n_)); n_ += 1
    for ft in range(4):
        a("ds_read_b128 %s, v95 offset:%d" % (vr(CS + 4 * ft), 1024 * n_)); n_ += 1
    a("s_branch %s_g2" % name)
    a.label("%s_A0" % name)
    emit_code_prefetch(a, name)
    a("s_load_dwordx4 s[64:67], s[0:1], 8")
    a("s_load_dwordx2 s[76:77], s[0:1], 24")
    a("s_load_dwordx2 s[78:79], s[0:1], 64")
    mma_setup()
    loader_setup(); loader_setup2()
    a("s_waitcnt lgkmcnt(0)")
    srds_main()
    srd(a, 68, 66, 2048 * 576 * 2)
    a("s_mov_b32 s88, s64"); a("s_mov_b32 s89, s65")
    srd(a, 64, 88, 2048 * 576 * 2)
    srd(a, 72, 76, 576 * 8)
    stamp_setup(a, 1); stamp(a, 0)
    def gran_addr():
        a("v_lshrrev_b32 v10, 4, v2")
        a("s_lshl_b32 s36, s25, 1")
        a("v_add_u32 v11, s36, v10")
        a("v_and_b32 v11, 3, v11")
        a("v_lshl_add_u32 v11, v11, 4, v3")
        a("v_lshlrev_b32 v94, 8, v11")
        a("s_lshl_b32 s59, s22, 7")
        a("s_lshl_b32 s36, s24, 6")
        a("s_add_u32 s59, s59, s36")
        a("s_lshl_b32 s59, s59, 8")
        a("s_add_u32 s59, s59, 0x%x" % STATS2)
        a("s_lshl_b32 s36, s23, 1")
        a("s_add_u32 s36, s36, s25")
        a("s_lshl_b32 s36, s36, 3")
        a("s_add_u32 s58, s36, s59")
    gran_addr()
    a("v_mov_b32 v12, 0"); a("v_mov_b32 v13, 0x80000000")
    a("buffer_store_dwordx2 v[12:13], v94, s[12:15], s58 offen sc1")
    a("s_lshl_b32 s36, s22, 4")
    a("s_add_u32 s36, s36, s23")
    a("s_lshl_b32 s36, s36, 8")
    a("s_add_u32 s97, s36, 0x%x" % ZFLG)
    a("v_mov_b32 v10, %d" % LC)
    a("v_mov_b32 v12, 0"); a("v_mov_b32 v13, 0")
    a("s_mov_b64 exec, 1")
    a("buffer_store_dword v12, v12, s[12:15], s97 offen sc1")
    a("s_mov_b64 exec, -1")
    a("ds_write_b64 v10, v[12:13]")
    a("ds_write_b64 v10, v[12:13] offset:8")
    mma_addr(0)
    a("s_mov_b32 s33, 0")
    a("s_waitcnt lgkmcnt(0)")
    a("s_barrier")
    stamp(a, 1)
    a.label("%s_mma" % name)
    core.prime(0, core.reads(0, 0))
    trk.drain()
    nocs = [False]
    def mfmas(buf):
        L = []
        for ft in range(5):
            A = core.F(buf, ft)
            for tt in range(4 if ft < 4 else 2):
                c = core.accr(ft, tt); B = core.T(buf, tt)
                L.append(("v_mfma_f32_16x16x32_bf16 %s, %s, %s, %s" % (vr(c), vr(A), vr(B), vr(c)), list(range(A, A + 4)) + list(range(B, B + 4))))
            if not nocs[0]: L.append(("v_mfma_f32_16x16x32_bf16 %s, %s, %s, %s" % (vr(CS + 4 * ft), vr(A), vr(ONE), vr(CS + 4 * ft)), list(range(A, A + 4))))
        return L
    def phase(buf, pend):
        for (m, regs) in mfmas(buf):
            trk.need(regs)
            a(m)
            while pend:
                k, t = pend.pop(0)
                if k == "x":
                    a(t)
                    if t.startswith("s_"): continue
                else:
                    a(t[0]); trk.issue(t[1])
                break
        for k, t in pend:
            if k == "x": a(t)
            else: a(t[0]); trk.issue(t[1])
    def iteration(vw=True):
        if vw: a("s_waitcnt vmcnt(0)")
        a("s_barrier")
        rd = [("r", t) for t in core.reads(1, 1)]
        upd = ["s_add_u32 s27, s27, %d" % SLOT, "s_cmp_eq_u32 s27, %d" % (R * SLOT), "s_cselect_b32 s27, 0, s27"]
        tail = ["v_add_u32 v%d, s27, v%d" % (d, s_) for d, s_ in ((vTa[0], bTa[0]), (vF, bF), (vTb[0], bTb[0]), (vFh, bFh))]
        phase(0, rd[:1] + [("x", u) for u in upd] + rd[1:] + [("x", u) for u in tail])
        rd = [("r", t) for t in core.reads(0, 0)]
        tail = ["v_add_u32 v%d, s27, v%d" % (d, s_) for d, s_ in ((vTa[1], bTa[1]), (vTb[1], bTb[1]))] + ["s_add_u32 s33, s33, 1"]
        phase(1, rd + [("x", u) for u in tail])
    a.label("%s_cloop" % name)
    lb = len(a.lines); iteration(); st = copy.deepcopy(trk.out); del a.lines[lb:]; trk.out = copy.deepcopy(st)
    iteration()
    assert [sorted(x) for x in trk.out] == [sorted(x) for x in st]
    a("s_cmp_lt_u32 s33, 9")
    a("s_cbranch_scc1 %s_cloop" % name)
    trk.drain()
    stamp(a, 2)
    MR = 100; T = 72; ZP = 16
    a("s_cmp_eq_u32 s98, 1")
    a("s_cbranch_scc1 %s_Btail" % name)
    a("s_waitcnt vmcnt(0)")
    a("s_barrier")
    a("s_cmp_lg_u32 s3, 0")
    a("s_cbranch_scc1 %s_nosig" % name)
    a("v_mov_b32 v10, 1")
    a("s_lshl_b32 s36, s22, 2")
    a("v_mov_b32 v11, s36")
    a("s_mov_b64 exec, 1")
    a("buffer_atomic_add v10, v11, s[60:63], 0 offen sc1")
    a("s_mov_b64 exec, -1")
    a.label("%s_nosig" % name)
    ho_addr()
    n_ = 0
    for ft in range(4):
        for tt in range(2):
            a("ds_write_b128 v95, %s offset:%d" % (vr(core.accr(ft, tt + 2)), 1024 * n_)); n_ += 1
    for ft in range(4):
        a("ds_write_b128 v95, %s offset:%d" % (vr(CS + 4 * ft), 1024 * n_)); n_ += 1
    a("s_waitcnt lgkmcnt(0)")
    a("s_barrier")
    a.label("%s_g2" % name)
    gelu_consts(a)
    a("s_xor_b32 s52, s98, s25")
    a("s_lshl_b32 s36, s24, 9")
    a("s_lshl_b32 s37, s52, 8")
    a("s_add_u32 s38, s36, s37")
    a("v_lshlrev_b32 v10, 3, v3")
    a("v_add_u32 v11, s38, v10")
    a("ds_read_b64 %s, v11 offset:%d" % (vr(MR, 2), RST))
    a("ds_read_b64 %s, v11 offset:%d" % (vr(MR + 2, 2), RST + 128))
    for r_ in range(108, 112): a("v_mov_b32 v%d, 0" % r_)
    a("s_waitcnt lgkmcnt(0)")
    ZPo = lambda n: 16 + 2 * n
    def dots2(lst):
        for d in range(2):
            for (ft, tt) in lst:
                p = ZPo(2 * ft + tt) + d
                a("v_dot2_f32_bf16 v%d, v%d, v%d, v%d" % (108 + 2 * tt, p, ONE, 108 + 2 * tt))
                a("v_dot2_f32_bf16 v%d, v%d, v%d, v%d" % (109 + 2 * tt, p, p, 109 + 2 * tt))
    a("s_cmp_lg_u32 s98, 0")
    a("s_cbranch_scc1 %s_nohalf" % name)
    lst = [(4, 0), (4, 1)]
    emit_fold_gelu(a, [(core.accr(ft, tt), CS + 4 * ft, MR + 2 * tt, ZPo(2 * ft + tt)) for ft, tt in lst], T)
    dots2(lst)
    a.label("%s_nohalf" % name)
    for f0 in (0, 2):
        lst = [(ft, tt) for ft in (f0, f0 + 1) for tt in range(2)]
        emit_fold_gelu(a, [(core.accr(ft, tt), CS + 4 * ft, MR + 2 * tt, ZPo(2 * ft + tt)) for ft, tt in lst], T)
        dots2(lst)
    a("s_nop 2")
    emit_xg_reduce(a, [108, 110, 109, 111], 72)
    a("s_lshl_b32 s40, s22, 7")
    a("s_lshl_b32 s36, s24, 6")
    a("s_add_u32 s40, s40, s36")
    a("s_lshl_b32 s40, s40, 8")
    a("s_add_u32 s59, s40, 0x%x" % STATS2)
    a("s_lshl_b32 s36, s52, 13")
    a("s_add_u32 s40, s59, s36")
    a("s_lshl_b32 s36, s23, 1")
    a("s_add_u32 s36, s36, s25")
    a("s_lshl_b32 s36, s36, 3")
    a("s_add_u32 s40, s40, s36")
    a("v_lshrrev_b32 v10, 4, v2")
    a("v_lshlrev_b32 v11, 8, v2")
    a("v_cmp_gt_u32 vcc, 32, v2")
    a("v_mov_b32 v12, 0x7ffffff0")
    a("v_cmp_eq_u32 s[36:37], 1, v10")
    a("v_cndmask_b32 v11, v12, v11, vcc")
    a("s_nop 0")
    a("v_cndmask_b32 v108, v108, v110, s[36:37]")
    a("v_cndmask_b32 v109, v109, v111, s[36:37]")
    a("v_and_b32 v109, 0x7fffffff, v109")
    a("buffer_store_dwordx2 v[108:109], v11, s[12:15], s40 offen sc1")
    a("s_cmp_eq_u32 s98, 0")
    a("s_cbranch_scc1 %s_A1" % name)
    for q in range(4):
        a("ds_write_b128 v95, %s offset:%d" % (vr(16 + 4 * q), 1024 * q))
    for r in range(ACC, ACC + 72): a("v_mov_b32 v%d, 0" % r)
    for r in range(CS, CS + 20): a("v_mov_b32 v%d, 0" % r)
    mma_addr(9 % R)
    a("s_mov_b32 s33, 0")
    a("s_setprio 0")
    a("s_waitcnt lgkmcnt(0)")
    stamp(a, 9)
    a("s_barrier")
    a("s_branch %s_mma" % name)
    def epi_in():
        gelu_consts(a)
        a("s_lshl_b32 s36, s24, 9")
        a("s_lshl_b32 s37, s25, 8")
        a("s_add_u32 s38, s36, s37")
        a("s_xor_b32 s37, s37, 256")
        a("s_add_u32 s39, s36, s37")
        a("v_lshlrev_b32 v10, 3, v3")
        a("v_add_u32 v11, s38, v10")
        a("ds_read_b64 %s, v11 offset:%d" % (vr(MR, 2), RST))
        a("ds_read_b64 %s, v11 offset:%d" % (vr(MR + 2, 2), RST + 128))
        a("v_add_u32 v11, s39, v10")
        a("ds_read_b64 %s, v11 offset:%d" % (vr(MR + 4, 2), RST))
        a("ds_read_b64 %s, v11 offset:%d" % (vr(MR + 6, 2), RST + 128))
        a("s_waitcnt lgkmcnt(0)")
    S = [108, 110, 52, 54]; Q = [109, 111, 53, 55]
    def gelu_ft(ft, stats):
        tts = range(4 if ft < 4 else 2)
        emit_fold_gelu(a, [(core.accr(ft, tt), CS + 4 * ft, MR + 2 * tt, ZP + 2 * tidx(ft, tt)) for tt in tts], T)
        if stats:
            for d in range(2):
                for tt in tts:
                    p = ZP + 2 * tidx(ft, tt) + d
                    a("v_dot2_f32_bf16 v%d, v%d, v%d, v%d" % (S[tt], p, ONE, S[tt]))
                    a("v_dot2_f32_bf16 v%d, v%d, v%d, v%d" % (Q[tt], p, p, Q[tt]))
    a.label("%s_Btail" % name)
    a("v_mov_b32 v10, %d" % (LC + 12))
    a("v_mov_b32 v11, 1")
    a("s_mov_b64 exec, 1")
    a("ds_add_u32 v10, v11")
    a("s_mov_b64 exec, -1")
    a("s_load_dwordx2 s[94:95], s[0:1], 80")
    a("s_load_dwordx2 s[92:93], s[0:1], 72")
    epi_in()
    srd(a, 76, 94, 2304 * 576 * 2)
    srd(a, 28, 92, 2048 * 2)
    a("v_and_b32 v0, 255, v0")
    for ft in range(5): gelu_ft(ft, False)
    Z1R = 200; BI = 236
    for r_ in range(36): a("v_mov_b32 v%d, v%d" % (Z1R + r_, ZP + r_))
    stamp(a, 3)
    a("s_mov_b32 s42, s2")
    emit_wot_loads(a, 100, 112, 720, 3)
    a("s_lshl_b32 s36, s22, 7")
    a("s_lshl_b32 s37, s24, 6")
    a("s_add_u32 s36, s36, s37")
    a("v_lshlrev_b32 v11, 1, v3")
    a("s_lshl_b32 s37, s25, 6")
    a("s_lshl_b32 s38, s36, 1")
    a("s_add_u32 s39, s38, s37")
    a("s_xor_b32 s37, s37, 64")
    a("s_add_u32 s36, s38, s37")
    a("buffer_load_ushort v96, v11, s[28:31], s39 offen")
    a("buffer_load_ushort v97, v11, s[28:31], s39 offen offset:32")
    a("buffer_load_ushort v98, v11, s[28:31], s36 offen")
    a("buffer_load_ushort v99, v11, s[28:31], s36 offen offset:32")
    for r in range(ACC, ACC + 72): a("v_mov_b32 v%d, 0" % r)
    mma_addr(0)
    a("s_mov_b32 s33, 0")
    stamp(a, 4)
    a("s_barrier")
    stamp(a, 5)
    core.prime(0, core.reads(0, 0))
    trk.drain()
    nocs[0] = True
    a.label("%s_gloop" % name)
    lb = len(a.lines); iteration(False); st = copy.deepcopy(trk.out); del a.lines[lb:]; trk.out = copy.deepcopy(st)
    iteration(False)
    assert [sorted(x) for x in trk.out] == [sorted(x) for x in st]
    a("s_cmp_lg_u32 s33, 3")
    a("s_cbranch_scc1 %s_ghk" % name)
    a("s_waitcnt vmcnt(0)")
    for n in range(3):
        a("buffer_store_dwordx4 %s, v%d, s[12:15], s40 offen" % (vr(100 + 4 * n), 112 + n))
    for tt in range(4): a("v_lshlrev_b32 v%d, 16, v%d" % (BI + 2 * tt, 96 + tt))
    a.label("%s_ghk" % name)
    a("s_cmp_lt_u32 s33, 32")
    a("s_cbranch_scc1 %s_gloop" % name)
    trk.drain()
    stamp(a, 6)
    G3.emit_k2_epilogue(a, core, Z1R, BI)
    stamp(a, 7)
    G.stamp_rt(a, 1)
    a("s_branch %s_end" % name)
    a.label("%s_A1" % name)
    a("s_setprio 2")
    a("s_load_dwordx4 s[88:91], s[0:1], 32")
    vmA = VmTracker(a)
    stamp(a, 9)
    a("s_barrier")
    for q in range(4):
        a("ds_read_b128 %s, v95 offset:%d" % (vr(36 + 4 * q), 1024 * q))
    def zreg(ft, tt):
        return (16 + 2 * (2 * ft + tt)) if tt < 2 else (36 + 2 * (2 * ft + tt - 2))
    GB = [128, 144, 160, 176]
    def gather():
        for tt in range(4):
            for q in range(4):
                a("buffer_load_dwordx4 %s, v4, s[12:15], s%d offen offset:%d sc1" % (vr(GB[tt] + 4 * q), (52, 42, 53, 43)[tt], 16 * q))
    def st_finish():
        for tt in range(4):
            b = GB[tt]
            for st_ in (8, 4, 2):
                for q in range(0, st_, 2):
                    a("v_pk_add_f32 %s, %s, %s" % (vr(b + q, 2), vr(b + q, 2), vr(b + q + st_, 2)))
        emit_xg_reduce(a, [GB[tt] + e for tt in range(4) for e in range(2)], 72)
        for tt in range(4):
            b = GB[tt]
            emit_ln_finish(a, b, b + 1, 2304, b + 2, MR + 2 * tt, b + 4)
            a("v_mul_f32 v%d, -v%d, v%d" % (MR + 2 * tt + 1, b + 2, MR + 2 * tt))
    def z_addr():
        a("v_lshrrev_b32 v10, 4, v2")
        a("v_lshrrev_b32 v11, 2, v2"); a("v_and_b32 v11, 1, v11"); a("v_lshlrev_b32 v11, 4, v11")
        a("v_lshrrev_b32 v5, 3, v2"); a("v_and_b32 v5, 1, v5"); a("v_lshl_add_u32 v11, v5, 2, v11")
        a("v_and_b32 v5, 3, v2"); a("v_add_u32 v11, v11, v5")
        a("v_mul_u32_u24 v11, 288, v11")
        a("v_lshrrev_b32 v5, 1, v10"); a("v_lshl_add_u32 v11, v5, 4, v11")
        a("v_and_b32 v5, 1, v10")
        a("v_lshl_add_u32 v6, v5, 5, v11")
        a("v_mul_u32_u24 v5, 2304, v5")
        a("v_add_u32 v9, v11, v5")
        a("s_lshl_b32 s33, s23, 5")
        a("s_lshl_b32 s36, s22, 1")
        a("s_add_u32 s33, s33, s36")
        a("s_add_u32 s33, s33, s24")
        a("s_mul_i32 s33, s33, 18432")
        if ZIMG: a("s_add_u32 s33, s33, 0x%x" % ZIMG)
        a("s_mul_i32 s36, s25, 9216")
        a("s_add_u32 s37, s33, s36")
        a("s_xor_b32 s36, s36, 9216")
        a("s_add_u32 s38, s33, s36")
        a("s_add_u32 s39, s37, 128")
        a("s_mul_i32 s36, s25, 160")
        a("s_add_u32 s37, s37, s36")
        a("s_add_u32 s38, s38, s36")
    def norm_pair(tA, tB, O):
        for q, (ft, tt) in enumerate((tA, tB)):
            for d in range(2):
                z = zreg(ft, tt) + d; t_ = T + 4 * q + 2 * d
                a("v_lshlrev_b32 v%d, 16, v%d" % (t_, z))
                a("v_and_b32 v%d, 0xffff0000, v%d" % (t_ + 1, z))
        for q, (ft, tt) in enumerate((tA, tB)):
            for d in range(2):
                t_ = T + 4 * q + 2 * d
                a("v_pk_fma_f32 %s, %s, %s, %s op_sel:[0,0,1] op_sel_hi:[1,0,1]" % (vr(t_, 2), vr(t_, 2), vr(MR + 2 * tt, 2), vr(MR + 2 * tt, 2)))
        for q in range(2):
            for d in range(2):
                t_ = T + 4 * q + 2 * d
                a("v_cvt_pk_bf16_f32 v%d, v%d, v%d" % (O + 2 * q + d, t_, t_ + 1))
        a("s_nop 1")
        a("v_permlane16_swap_b32 v%d, v%d" % (O, O + 2))
        a("v_permlane16_swap_b32 v%d, v%d" % (O + 1, O + 3))
        a("s_nop 0")
    def zstore(idx):
        O = 216 + 4 * idx
        if idx < 8:
            pr, tt = idx >> 2, idx & 3
            norm_pair((2 * pr, tt), (2 * pr + 1, tt), O)
            a("buffer_store_dwordx4 %s, v6, s[12:15], s%d offen offset:%d sc1" % (vr(O), 37 if tt < 2 else 38, (tt & 1) * 2304 + 64 * pr))
        else:
            norm_pair((4, 0), (4, 1), O)
            a("buffer_store_dwordx4 %s, v9, s[12:15], s39 offen sc1" % vr(O))
    def dmas(gs):
        out = []
        for g in gs: out += capture(lambda: (issueT(g), issueF(g)))
        return out
    for k in range(9, 18):
        if k == 9: a("s_waitcnt lgkmcnt(0)")
        a("s_barrier")
        gs = [11, 12] if k == 9 else ([k + 3] if k + 3 < 18 else [])
        if k == 9:
            a.lines.extend(dmas(gs))
            for g in gs: vmA.issue("S%d" % g, 9)
            a("s_lshl_b32 s36, s22, 2")
            a("v_mov_b32 v199, s36")
            a("buffer_load_dword v198, v199, s[60:63], 0 offen sc1"); vmA.issue("cnt", 1)
            a("v_lshrrev_b32 v10, 4, v2")
            a("v_lshlrev_b32 v4, 8, v3")
            a("v_lshl_add_u32 v4, v10, 6, v4")
            a("s_lshl_b32 s33, s25, 13")
            a("s_add_u32 s52, s59, s33")
            a("s_xor_b32 s33, s33, 8192")
            a("s_add_u32 s53, s59, s33")
            a("s_add_u32 s42, s52, 4096")
            a("s_add_u32 s43, s53, 4096")
        elif k == 10:
            a.lines.extend(dmas(gs)); vmA.issue("S13", 9)
            z_addr()
        elif k == 11:
            vmA.wait(["cnt"])
            gather(); vmA.issue("g", 16)
            a.lines.extend(dmas(gs)); vmA.issue("S14", 9)
        elif k == 12:
            a.lines.extend(dmas(gs)); vmA.issue("S15", 9)
        elif k == 13:
            a.lines.extend(dmas(gs)); vmA.issue("S16", 9)
            vmA.wait(["g"])
            a("s_mov_b32 s40, 0")
            a.label("%s_chk" % name)
            a("v_subrev_u32 v11, 16, v198")
            for tt in range(4):
                for r in range(GB[tt] + 1, GB[tt] + 16, 4):
                    a("v_or3_b32 v11, v11, v%d, v%d" % (r, r + 2))
            a("v_cmp_gt_i32 vcc, 0, v11")
            a("s_add_u32 s40, s40, 1")
            a("s_cmp_gt_u32 s40, %d" % SPIN_MAX)
            a("s_cbranch_scc1 %s_ok" % name)
            a("s_cbranch_vccz %s_ok" % name)
            a("s_sleep 16")
            a("buffer_load_dword v198, v199, s[60:63], 0 offen sc1")
            a("s_waitcnt vmcnt(0)")
            gather()
            a("s_waitcnt vmcnt(0)")
            a("s_branch %s_chk" % name)
            a.label("%s_ok" % name)
            stamp(a, 4)
            st_finish()
        elif k == 14:
            for i_ in range(3): zstore(i_)
            vmA.issue("z", 3)
            a.lines.extend(dmas(gs)); vmA.issue("S17", 9)
        elif k == 15:
            for i_ in range(3, 6): zstore(i_)
            vmA.issue("z", 3)
        elif k == 16:
            for i_ in range(6, 9): zstore(i_)
            vmA.issue("z", 3)
            stamp(a, 5)
            a("s_mov_b32 s41, s2")
            emit_kv_loads(a, 128, 140, 148, 152, 153)
            a("s_cmp_ge_u32 s2, 32")
            a("s_cbranch_scc1 %s_kvp" % name)
            a("s_add_u32 s41, s2, 256")
            emit_kv_loads(a, 156, 168, 176, 180, 181)
            a.label("%s_kvp" % name)
        if k == 12:
            srd(a, 92, 78, 2048 * 2048 * 2)
            a("v_lshrrev_b32 v10, 4, v2")
            a("v_lshlrev_b32 v10, 12, v10")
            a("v_lshl_add_u32 v10, v3, 4, v10")
            a("s_lshl_b32 s40, s22, 7")
            a("s_lshl_b32 s36, s3, 5")
            a("s_add_u32 s40, s40, s36")
            a("s_lshl_b32 s40, s40, 12")
            a("s_lshl_b32 s36, s23, 8")
            a("s_add_u32 s40, s40, s36")
            for n in range(8):
                a("buffer_load_dwordx4 v[200:203], v10, s[92:95], s40 offen")
                if n < 7: a("s_add_u32 s40, s40, 16384")
            vmA.issue("wp", 8)
        if 11 <= k + 2 < 18 and k + 2 != 10:
            vmA.wait(["S%d" % (k + 2)])
    stamp(a, 3)
    a("s_setprio 3")
    srd(a, 8, 78, 2048 * 2048 * 2)
    a("v_lshrrev_b32 v3, 3, v2")
    a("s_lshl_b32 s24, s3, 5")
    a("v_add_u32 v3, s24, v3")
    a("v_and_b32 v4, 7, v2")
    a("v_lshrrev_b32 v6, 4, v2")
    a("v_xor_b32 v6, v6, v4")
    a("v_lshlrev_b32 v6, 4, v6")
    a("v_lshl_add_u32 v10, v3, 12, v6")
    a("v_xor_b32 v11, 64, v10")
    a("v_add_u32 v11, %d, v11" % (32768 - 1024))
    a("v_add_u32 v12, %d, v10" % (2 * (32768 - 1024)))
    a("v_add_u32 v13, %d, v11" % (2 * (32768 - 1024)))
    a("v_lshlrev_b32 v14, 4, v2")
    a("s_lshl_b32 s26, s22, 19")
    a("s_mul_i32 s27, s23, %d" % (32 * 18432))
    a("s_lshl_b32 s24, s3, 12")
    a("s_add_u32 s27, s27, s24")
    if ZIMG: a("s_add_u32 s27, s27, 0x%x" % ZIMG)
    a("s_lshl_b32 s25, s3, 9")
    a("s_sub_u32 s32, s25, s24")
    a("s_add_u32 s32, s32, 16384")
    a("s_add_u32 s24, s24, %d" % RB)
    a("s_waitcnt vmcnt(20) lgkmcnt(0)")
    a("v_mov_b32 v26, %d" % LC)
    a("v_mov_b32 v27, 1")
    a("s_mov_b64 exec, 1")
    a("ds_add_rtn_u32 v28, v26, v27")
    a("s_waitcnt lgkmcnt(0)")
    a("v_readfirstlane_b32 s36, v28")
    a("s_cmp_lg_u32 s36, 3")
    a("s_cbranch_scc1 %s_nozs" % name)
    a("v_mov_b32 v28, 0")
    a("buffer_store_dword v27, v28, s[12:15], s97 offen sc1")
    a.label("%s_nozs" % name)
    a("s_mov_b64 exec, -1")
    stamp(a, 7)
    srd(a, 16, 88, 576 * 2048 * 2)
    srd(a, 84, 90, 576 * 2)
    a("s_mov_b32 s34, 0")
    a.label("%s_wb" % name)
    a("ds_read_b32 v27, v26 offset:12")
    a("s_add_u32 s34, s34, 1")
    a("s_waitcnt lgkmcnt(0)")
    a("v_readfirstlane_b32 s36, v27")
    a("s_cmp_gt_u32 s34, %d" % (SPIN_MAX * 20))
    a("s_cbranch_scc1 %s_wbx" % name)
    a("s_cmp_ge_u32 s36, 4")
    a("s_cbranch_scc1 %s_wbx" % name)
    a("s_sleep 2")
    a("s_branch %s_wb" % name)
    a.label("%s_wbx" % name)
    for g in range(4):
        a("s_add_u32 s35, s24, %d" % (g * SLOT))
        a("s_mov_b32 m0, s35")
        a("s_add_u32 s36, s26, %d" % (128 * g))
        for n in range(4):
            a("buffer_load_dwordx4 v%d, s[8:11], s36 offen offset:%d lds" % (10 + n, n * 1024))
    a("v_mov_b32 v250, v12"); a("v_mov_b32 v251, v13"); a("v_mov_b32 v252, v26")
    a("s_mov_b32 s39, 0x%x" % KVT)
    a("s_waitcnt vmcnt(16)")
    for n in range(11): a("v_mov_b32 v%d, v%d" % (16 + n, 128 + n))
    for n in range(8): a("v_mov_b32 v%d, v%d" % (32 + n, 140 + n))
    for n in range(4): a("v_mov_b32 v%d, v%d" % (44 + n, 148 + n))
    a("v_mov_b32 v56, v152"); a("v_mov_b32 v57, v153")
    a.label("%s_kvb" % name)
    emit_kv_compute(a, wait=False, store=False)
    a("buffer_store_dwordx4 v[120:123], v12, s[12:15], s39 offen sc1")
    a("buffer_store_dwordx4 v[124:127], v13, s[12:15], s39 offen sc1")
    a("s_cmp_lt_u32 s41, 256")
    a("s_cbranch_scc1 %s_kvbd" % name)
    a("s_mov_b32 s41, 0")
    for n in range(11): a("v_mov_b32 v%d, v%d" % (16 + n, 156 + n))
    for n in range(8): a("v_mov_b32 v%d, v%d" % (32 + n, 168 + n))
    for n in range(4): a("v_mov_b32 v%d, v%d" % (44 + n, 176 + n))
    a("v_mov_b32 v56, v180"); a("v_mov_b32 v57, v181")
    a("s_branch %s_kvb" % name)
    a.label("%s_kvbd" % name)
    a("s_nop 1")
    a("v_mov_b32 v12, v250"); a("v_mov_b32 v13, v251"); a("v_mov_b32 v26, v252")
    a("s_mov_b32 s34, 0")
    a("s_cmp_lg_u32 s3, 0")
    a("s_cbranch_scc1 %s_pl" % name)
    a("v_and_b32 v28, 15, v2")
    a("v_lshlrev_b32 v30, 2, v28")
    a("v_lshlrev_b32 v28, 12, v28")
    a("s_lshl_b32 s52, s23, 8")
    a("s_add_u32 s52, s52, 0x%x" % ZFLG)
    a.label("%s_pz0" % name)
    a("buffer_load_dword v31, v30, s[60:63], 0 offen sc1")
    a("s_add_u32 s34, s34, 1")
    a("s_waitcnt vmcnt(0)")
    a("v_cmp_gt_u32 vcc, 16, v31")
    a("s_cmp_gt_u32 s34, %d" % SPIN_MAX)
    a("s_cbranch_scc1 %s_pz" % name)
    a("s_cbranch_vccz %s_pz" % name)
    a("s_sleep 32")
    a("s_branch %s_pz0" % name)
    a.label("%s_pz" % name)
    a("buffer_load_dword v29, v28, s[12:15], s52 offen sc1")
    a("s_add_u32 s34, s34, 1")
    a("s_waitcnt vmcnt(0)")
    a("v_cmp_ne_u32 vcc, 1, v29")
    a("s_cmp_gt_u32 s34, %d" % SPIN_MAX)
    a("s_cbranch_scc1 %s_pzx" % name)
    a("s_cbranch_vccz %s_pzx" % name)
    a("s_sleep 8")
    a("s_branch %s_pz" % name)
    a.label("%s_pzx" % name)
    a("v_mov_b32 v27, 1")
    a("ds_write_b32 v26, v27 offset:4")
    a("s_branch %s_pgo" % name)
    a.label("%s_pl" % name)
    a("ds_read_b32 v27, v26 offset:4")
    a("s_add_u32 s34, s34, 1")
    a("s_waitcnt lgkmcnt(0)")
    a("v_readfirstlane_b32 s36, v27")
    a("s_cmp_gt_u32 s34, %d" % (SPIN_MAX * 20))
    a("s_cbranch_scc1 %s_pgo" % name)
    a("s_cmp_lg_u32 s36, 0")
    a("s_cbranch_scc1 %s_pgo" % name)
    a("s_sleep 2")
    a("s_branch %s_pl" % name)
    a.label("%s_pgo" % name)
    stamp(a, 8)
    for g in range(4):
        a("s_add_u32 s35, s24, %d" % (g * SLOT + TREG))
        a("s_mov_b32 m0, s35")
        a("s_add_u32 s36, s27, %d" % (18432 * g))
        a("s_add_u32 s37, s36, s32")
        for n in range(4):
            a("buffer_load_dwordx4 v14, s[12:15], s36 offen offset:%d sc1 lds" % (n * 1024))
        a("s_add_u32 s35, s35, s32")
        a("s_mov_b32 m0, s35")
        a("s_mov_b64 exec, 0xffffffff")
        a("buffer_load_dwordx4 v14, s[12:15], s37 offen sc1 lds")
        a("s_mov_b64 exec, -1")
    a("s_add_u32 s26, s26, 512")
    a("s_add_u32 s27, s27, %d" % (4 * 18432))
    a("s_mov_b32 s33, 0")
    a("s_lshl_b32 s43, s2, 2")
    a("s_add_u32 s43, s43, s3")
    a("s_and_b32 s53, s43, 1")
    a("s_sub_u32 s36, s43, 448")
    a("s_lshr_b32 s37, s43, 1")
    a("s_cmp_ge_u32 s43, 896")
    a("s_cselect_b32 s43, s36, s37")
    a("s_cselect_b32 s53, 2, s53")
    a("s_waitcnt vmcnt(15)")
    a("s_barrier")
    a("s_waitcnt vmcnt(10)")
    a("s_barrier")
    a("s_waitcnt vmcnt(5)")
    a("s_barrier")
    a("s_mov_b32 s34, 4")
    def issue2():
        a("s_add_u32 s35, s33, s24")
        a("s_mov_b32 m0, s35")
        a("s_add_u32 s36, s35, %d" % TREG)
        for n in range(4):
            a("buffer_load_dwordx4 v%d, s[8:11], s26 offen offset:%d lds" % (10 + n, n * 1024))
        a("s_mov_b32 m0, s36")
        a("s_add_u32 s37, s27, s32")
        for n in range(4):
            a("buffer_load_dwordx4 v14, s[12:15], s27 offen offset:%d sc1 lds" % (n * 1024))
        a("s_add_u32 s36, s36, s32")
        a("s_mov_b32 m0, s36")
        a("s_mov_b64 exec, 0xffffffff")
        a("buffer_load_dwordx4 v14, s[12:15], s37 offen sc1 lds")
        a("s_mov_b64 exec, -1")
        a("s_add_u32 s26, s26, 128")
        a("s_add_u32 s27, s27, 18432")
        a("s_add_u32 s33, s33, %d" % SLOT)
        a("s_cmp_eq_u32 s33, %d" % (R * SLOT))
        a("s_cselect_b32 s33, 0, s33")
    a.label("%s_lloop" % name)
    issue2()
    a("s_cmp_eq_u32 s34, 8")
    a("s_cbranch_scc1 %s_hk0" % name)
    a("s_cmp_eq_u32 s34, 18")
    a("s_cbranch_scc1 %s_hk1" % name)
    a("s_cmp_eq_u32 s34, 21")
    a("s_cbranch_scc1 %s_hk2" % name)
    a("s_waitcnt vmcnt(9)")
    a.label("%s_lcont" % name)
    a("s_barrier")
    a("s_add_u32 s34, s34, 1")
    a("s_cmp_lt_u32 s34, 32")
    a("s_cbranch_scc1 %s_lloop" % name)
    a("s_branch %s_ldone" % name)
    a.label("%s_hk0" % name)
    a("v_mov_b32 v27, 1")
    a("s_mov_b64 exec, 1")
    a("ds_add_rtn_u32 v28, v26, v27 offset:8")
    a("s_waitcnt lgkmcnt(0)")
    a("v_readfirstlane_b32 s36, v28")
    a("s_cmp_lg_u32 s36, 3")
    a("s_cbranch_scc1 %s_hk0x" % name)
    a("s_and_b32 s36, s2, 15")
    a("s_lshl_b32 s36, s36, 2")
    a("s_add_u32 s36, s36, 128")
    a("v_mov_b32 v28, s36")
    a("buffer_atomic_add v27, v28, s[60:63], 0 offen sc1")
    a.label("%s_hk0x" % name)
    a("s_mov_b64 exec, -1")
    a("s_waitcnt vmcnt(9)")
    a("s_branch %s_lcont" % name)
    a.label("%s_hk1" % name)
    a("v_and_b32 v28, 15, v2")
    a("v_lshlrev_b32 v28, 2, v28")
    a("buffer_load_dword v29, v28, s[60:63], 0 offen offset:128 sc1")
    a("s_waitcnt vmcnt(10)")
    a("s_branch %s_lcont" % name)
    a.label("%s_hk2" % name)
    a("s_mov_b32 s52, 0")
    a.label("%s_hk2l" % name)
    a("v_cmp_gt_u32 vcc, 16, v29")
    a("s_add_u32 s52, s52, 1")
    a("s_cmp_gt_u32 s52, %d" % SPIN_MAX)
    a("s_cbranch_scc1 %s_hk2g" % name)
    a("s_cbranch_vccz %s_hk2g" % name)
    a("s_sleep 16")
    a("buffer_load_dword v29, v28, s[60:63], 0 offen offset:128 sc1")
    a("s_waitcnt vmcnt(0)")
    a("s_branch %s_hk2l" % name)
    a.label("%s_hk2g" % name)
    nconv = emit_conv_loads(a, " sc1")
    a("s_waitcnt vmcnt(%d)" % (9 + nconv))
    a("s_branch %s_lcont" % name)
    a.label("%s_ldone" % name)
    a("s_waitcnt vmcnt(0)")
    a("s_barrier")
    a("s_mov_b32 s26, s53")
    a("s_and_b32 s27, s3, 1")
    a("s_mul_i32 s27, s27, %d" % CJ_SIZE)
    a("s_lshr_b32 s36, s3, 1")
    a("s_mul_i32 s36, s36, %d" % SLOT)
    a("s_add_u32 s27, s27, s36")
    a("s_add_u32 s27, s27, %d" % RB)
    def mid():
        a("s_barrier")
        a("s_setprio 0")
    sv = set(DBG); DBG.discard("stamp")
    emit_conv_job(a, name, mid)
    DBG.update(sv)
    G.stamp_rt(a, 1)
    a.label("%s_end" % name)
    a("s_endpgm")
    return a.text(), kernel_desc(name, 256, 256), (name, 256, 512, LDSB)

def gen_kf5(name="k1_kernel", R=4):
    a = Asm()
    RB = 4096; SLOT = 34816; TREG = 16384; FS = 288; RST = 0
    LDSB = RB + R * SLOT
    LC = 2048
    ZFLG = 0x2D00000
    from gen3 import emit_conv_loads, emit_conv_job, CJ_SIZE
    def capture(f, *args):
        lb = len(a.lines); f(*args); out = a.lines[lb:]; del a.lines[lb:]; return out
    kernel_begin(a, name)
    a("s_load_dwordx2 s[80:81], s[0:1], 0")
    a("s_load_dwordx2 s[4:5], s[0:1], 56")
    a("s_load_dwordx2 s[6:7], s[0:1], 104")
    a("s_load_dwordx2 s[18:19], s[0:1], 96")
    a("s_cmp_ge_u32 s2, 256")
    a("s_cbranch_scc1 %s_end" % name)
    a("v_lshrrev_b32 v1, 6, v0")
    a("v_and_b32 v2, 63, v0")
    a("v_readfirstlane_b32 s3, v1")
    G2.tile_ij(a)
    a("s_lshr_b32 s98, s3, 2")
    a("s_mov_b32 s54x, 0".replace("s54x", "s99"))
    a("s_and_b32 s3, s3, 3")
    a("s_lshr_b32 s24, s3, 1")
    a("s_and_b32 s25, s3, 1")
    a("v_and_b32 v3, 15, v2")
    VT = 204; VF = 208
    def loader_setup():
        a("v_lshrrev_b32 v5, 3, v2")
        a("v_and_b32 v4, 7, v2")
        a("s_lshl_b32 s36, s3, 5")
        a("v_add_u32 v5, s36, v5")
        a("v_lshrrev_b32 v7, 4, v2")
        a("v_xor_b32 v7, v7, v4")
        a("v_mul_u32_u24 v6, 1152, v5")
        a("v_lshl_add_u32 v%d, v7, 4, v6" % VT)
        a("v_xor_b32 v%d, 64, v%d" % (VT + 1, VT))
        a("v_add_u32 v%d, %d, v%d" % (VT + 1, 9216 - 1024, VT + 1))
        a("v_add_u32 v%d, %d, v%d" % (VT + 2, 2 * (9216 - 1024), VT))
        a("v_add_u32 v%d, %d, v%d" % (VT + 3, 2 * (9216 - 1024), VT + 1))
        a("s_lshl_b32 s84, s3, 12")
        a("s_add_u32 s84, s84, %d" % RB)
        a("s_lshl_b32 s85, s3, 9")
        a("s_add_u32 s85, s85, %d" % (RB + TREG + 16384))
    def loader_setup2():
        for n in range(5):
            if n < 4:
                a("s_lshl_b32 s36, s3, 8")
                a("s_add_u32 s36, s36, %d" % (64 * n))
            else:
                a("s_lshl_b32 s36, s3, 5")
                a("s_add_u32 s36, s36, 1024")
            a("v_add_u32 v6, s36, v2")
            a("v_mul_u32_u24 v7, 3641, v6")
            a("v_lshrrev_b32 v7, 16, v7")
            a("v_mul_u32_u24 v8, 18, v7")
            a("v_sub_u32 v8, v6, v8")
            a("v_and_b32 v9, 35, v7")
            a("v_bfe_u32 v6, v7, 2, 2")
            a("v_lshl_add_u32 v9, v6, 3, v9")
            a("v_bfe_u32 v6, v7, 4, 1")
            a("v_lshl_add_u32 v9, v6, 2, v9")
            a("v_mul_u32_u24 v9, 9216, v9")
            a("v_lshl_add_u32 v%d, v8, 4, v9" % (VF + n))
            if 0 < n < 4: a("v_subrev_u32 v%d, %d, v%d" % (VF + n, 1024 * n, VF + n))
    def issueT(g):
        st = g % 9
        a("s_add_u32 s86, s84, %d" % ((g % R) * SLOT))
        a("s_mov_b32 m0, s86")
        a("s_add_u32 s87, s82, %d" % (128 * st))
        for n in range(4):
            a("buffer_load_dwordx4 v%d, s[28:31], s87 offen offset:%d lds" % (VT + n, 1024 * n))
    def issueF(g):
        st = g % 9
        a("s_add_u32 s86, s84, %d" % ((g % R) * SLOT + TREG))
        a("s_mov_b32 m0, s86")
        a("s_add_u32 s87, s83, %d" % (64 * 9216 * st + (4608 if g < 9 else 0)))
        for n in range(4):
            a("buffer_load_dwordx4 v%d, s[8:11], s87 offen offset:%d lds" % (VF + n, 1024 * n))
        a("s_add_u32 s86, s85, %d" % ((g % R) * SLOT))
        a("s_mov_b32 m0, s86")
        a("s_mov_b64 exec, 0xffffffff")
        a("buffer_load_dwordx4 v%d, s[8:11], s87 offen lds" % (VF + 4))
        a("s_mov_b64 exec, -1")
    def srds_main():
        srd(a, 28, 80, 2048 * 576 * 2)
        srd(a, 8, 4, 576 * 4608 * 2)
        srd(a, 12, 6, WS_BYTES)
        srd(a, 60, 18, 256)
        a("s_mul_i32 s82, s22, %d" % (128 * 1152))
        a("s_mul_i32 s83, s23, 288")
    ACC = 128; FB = [16, 52]; CS = 216; ONE = 236
    vTa = [4, 5]; vTb = [6, 7]; vF = 8; vFh = 9
    bTa = [88, 89]; bTb = [90, 91]; bF = 92; bFh = 93
    def mma_setup():
        a("v_lshrrev_b32 v10, 4, v2")
        a("v_lshrrev_b32 v11, 1, v3")
        a("v_xor_b32 v10, v10, v11")
        a("v_lshlrev_b32 v10, 4, v10")
        a("v_lshl_add_u32 v10, v3, 7, v10")
        a("s_lshl_b32 s26, s24, 13")
        a("s_add_u32 s26, s26, %d" % RB)
        a("v_add_u32 v10, s26, v10")
        a("s_lshl_b32 s26, s25, 12")
        a("v_add_u32 v%d, s26, v10" % bTa[0])
        a("s_xor_b32 s26, s26, 4096")
        a("v_add_u32 v%d, s26, v10" % bTb[0])
        a("v_xor_b32 v%d, 64, v%d" % (bTa[1], bTa[0]))
        a("v_xor_b32 v%d, 64, v%d" % (bTb[1], bTb[0]))
        a("v_lshrrev_b32 v10, 2, v2")
        a("v_mul_u32_u24 v10, %d, v10" % FS)
        a("v_and_b32 v11, 3, v2")
        a("v_lshl_add_u32 v10, v11, 3, v10")
        a("v_add_u32 v10, %d, v10" % (RB + TREG))
        a("s_mul_i32 s26, s25, 160")
        a("v_add_u32 v%d, s26, v10" % bF)
        a("v_add_u32 v%d, 128, v10" % bFh)
        for r in range(ACC, ACC + 72): a("v_mov_b32 v%d, 0" % r)
        for r in range(CS, CS + 20): a("v_mov_b32 v%d, 0" % r)
        for r in range(ONE, ONE + 4): a("v_mov_b32 v%d, 0x3f803f80" % r)
    def mma_addr(slot):
        a("s_mov_b32 s27, %d" % (slot * SLOT))
        for d, s_ in ((vTa[0], bTa[0]), (vTb[0], bTb[0]), (vTa[1], bTa[1]), (vTb[1], bTb[1]), (vF, bF), (vFh, bFh)):
            a("v_add_u32 v%d, s27, v%d" % (d, s_))
    core = G.Core(a, ACC, FB[0], FB[1], FS, TREG, vTa, vTb, vF, vFh)
    trk = core.trk
    a("s_cmp_eq_u32 s98, 0")
    a("s_cbranch_scc1 %s_A0" % name)
    a("s_setprio 3")
    loader_setup()
    a("s_waitcnt lgkmcnt(0)")
    srds_main()
    vm = VmTracker(a)
    def issue(g, vmx):
        issueT(g); issueF(g); vmx.issue("S%d" % g, 9)
    issueT(0)
    loader_setup2()
    issueF(0); vm.issue("S0", 9)
    issue(1, vm); issue(2, vm); issue(3, vm)
    a("s_add_u32 s3, s3, 4"); stamp_setup(a, 1); stamp(a, 0); a("s_sub_u32 s3, s3, 4")
    mma_setup()
    RA = 96; XB = 112
    for r in range(RA, RA + 16): a("v_mov_b32 v%d, 0" % r)
    a("v_lshrrev_b32 v10, 4, v2")
    a("v_lshrrev_b32 v11, 1, v3")
    a("v_xor_b32 v10, v10, v11")
    a("v_lshlrev_b32 v10, 4, v10")
    a("v_lshl_add_u32 v10, v3, 7, v10")
    a("v_add_u32 v12, s84, v10")
    a("v_xor_b32 v13, 64, v12")
    def rs_rd(g):
        a("v_add_u32 v10, %d, v12" % ((g % R) * SLOT))
        a("v_add_u32 v11, %d, v13" % ((g % R) * SLOT))
        for h in range(2):
            for n in range(2):
                a("ds_read_b128 %s, v%d offset:%d" % (vr(XB + 8 * h + 4 * n), 10 + h, 2048 * n))
    def rs_do():
        for h in range(2):
            for n in range(2):
                x = XB + 8 * h + 4 * n
                a("v_mfma_f32_16x16x32_bf16 %s, %s, %s, %s" % (vr(RA + 4 * n), vr(ONE), vr(x), vr(RA + 4 * n)))
                a("v_mfma_f32_16x16x32_bf16 %s, %s, %s, %s" % (vr(RA + 8 + 4 * n), vr(x), vr(x), vr(RA + 8 + 4 * n)))
    def interleave(dma, comp, vmx=None):
        groups = []; cur = []
        for l in dma:
            cur.append(l)
            if "buffer_load" in l and not any("exec, 0xffffffff" in x for x in cur[-2:]):
                groups.append(cur); cur = []
            elif "exec, -1" in l:
                groups.append(cur); cur = []
        if cur: groups.append(cur)
        ns = max(1, len(groups))
        per = (len(comp) + ns - 1) // ns
        for g in groups:
            a.lines.extend(g)
            a.lines.extend(comp[:per]); comp = comp[per:]
        a.lines.extend(comp)
    vm.wait(["S0"])
    a("s_barrier")
    stamp(a, 1)
    rs_rd(0)
    vm.wait(["S1"])
    a("s_barrier")
    for k in range(9):
        a("s_waitcnt lgkmcnt(0)")
        dma = capture(lambda: (issueT(k + 3), issueF(k + 3))) if 1 <= k < 8 else []
        interleave(dma, capture(rs_do))
        if 1 <= k < 8: vm.issue("S%d" % (k + 3), 9)
        if k < 8:
            rs_rd(k + 1)
        else:
            a("s_nop 7")
            a("v_lshrrev_b32 v10, 4, v2")
            a("v_lshrrev_b32 v11, 2, v3")
            a("v_and_b32 v12, 3, v3")
            for n in range(2):
                G_ = RA + 8 + 4 * n
                for r in range(1, 4):
                    a("v_cmp_eq_u32 vcc, %d, v12" % r)
                    a("s_nop 1")
                    a("v_cndmask_b32 v%d, v%d, v%d, vcc" % (G_, G_, G_ + r))
            ML = 112
            for n in range(2):
                emit_ln_finish(a, RA + 4 * n, RA + 8 + 4 * n, 576, ML + 2 * n, ML + 2 * n + 1, 120)
                a("v_mov_b32 v%d, v%d" % (117 + 2 * n, ML + 2 * n + 1))
                a("v_sub_f32 v%d, 0, v%d" % (116 + 2 * n, ML + 2 * n))
            a("s_lshl_b32 s35, s3, 8")
            a("v_lshlrev_b32 v13, 3, v3")
            a("v_add_u32 v12, s35, v13")
            a("v_cmp_eq_u32 vcc, v10, v11")
            a("s_and_saveexec_b64 s[36:37], vcc")
            for n in range(2):
                a("ds_write_b64 v12, %s offset:%d" % (vr(116 + 2 * n, 2), RST + 128 * n))
            a("s_mov_b64 exec, s[36:37]")
            a("s_cmp_lg_u32 s23, 0")
            a("s_cbranch_scc1 %s_nost1" % name)
            a("s_lshl_b32 s35, s22, 7")
            a("s_lshl_b32 s36, s3, 5")
            a("s_add_u32 s35, s35, s36")
            a("s_lshl_b32 s35, s35, 3")
            a("s_add_u32 s35, s35, 0x%x" % STATS1)
            a("v_mov_b32 v11, 0x7ffffff0")
            a("v_cndmask_b32 v13, v11, v13, vcc")
            for n in range(2):
                a("buffer_store_dwordx2 %s, v13, s[12:15], s35 offen offset:%d" % (vr(ML + 2 * n, 2), 128 * n))
            a.label("%s_nost1" % name)
        if k < 8:
            vm.wait(["S%d" % (k + 2)])
            a("s_barrier")
    HO = lambda: None
    def ho_addr():
        a("s_lshr_b32 s36, s3, 1")
        a("s_mul_i32 s36, s36, %d" % (3 * SLOT))
        a("s_and_b32 s37, s3, 1")
        a("s_mul_i32 s37, s37, 12288")
        a("s_add_u32 s36, s36, s37")
        a("s_add_u32 s36, s36, %d" % RB)
        a("v_lshlrev_b32 v10, 4, v2")
        a("v_add_u32 v95, s36, v10")
    a("s_waitcnt lgkmcnt(0)")
    a("s_barrier")
    ho_addr()
    a("s_barrier")
    n_ = 0
    for ft in range(4):
        for tt in range(2):
            a("ds_read_b128 %s, v95 offset:%d" % (vr(core.accr(ft, tt)), 1024 * n_)); n_ += 1
    for ft in range(4):
        a("ds_read_b128 %s, v95 offset:%d" % (vr(CS + 4 * ft), 1024 * n_)); n_ += 1
    a("s_branch %s_g2" % name)
    a.label("%s_A0" % name)
    emit_code_prefetch(a, name)
    a("s_load_dwordx4 s[64:67], s[0:1], 8")
    a("s_load_dwordx2 s[76:77], s[0:1], 24")
    a("s_load_dwordx2 s[78:79], s[0:1], 64")
    mma_setup()
    loader_setup(); loader_setup2()
    a("s_waitcnt lgkmcnt(0)")
    srds_main()
    srd(a, 68, 66, 2048 * 576 * 2)
    a("s_mov_b32 s88, s64"); a("s_mov_b32 s89, s65")
    srd(a, 64, 88, 2048 * 576 * 2)
    srd(a, 72, 76, 576 * 8)
    stamp_setup(a, 1); stamp(a, 0)
    def gran_addr():
        a("v_lshrrev_b32 v10, 4, v2")
        a("s_lshl_b32 s36, s25, 1")
        a("v_add_u32 v11, s36, v10")
        a("v_and_b32 v11, 3, v11")
        a("v_lshl_add_u32 v11, v11, 4, v3")
        a("v_lshlrev_b32 v94, 8, v11")
        a("s_lshl_b32 s59, s22, 7")
        a("s_lshl_b32 s36, s24, 6")
        a("s_add_u32 s59, s59, s36")
        a("s_lshl_b32 s59, s59, 8")
        a("s_add_u32 s59, s59, 0x%x" % STATS2)
        a("s_lshl_b32 s36, s23, 1")
        a("s_add_u32 s36, s36, s25")
        a("s_lshl_b32 s36, s36, 3")
        a("s_add_u32 s58, s36, s59")
    gran_addr()
    a("v_mov_b32 v12, 0"); a("v_mov_b32 v13, 0x80000000")
    a("buffer_store_dwordx2 v[12:13], v94, s[12:15], s58 offen sc1")
    a("s_lshl_b32 s36, s22, 4")
    a("s_add_u32 s36, s36, s23")
    a("s_lshl_b32 s36, s36, 8")
    a("s_add_u32 s97, s36, 0x%x" % ZFLG)
    a("v_mov_b32 v10, %d" % LC)
    a("v_mov_b32 v12, 0"); a("v_mov_b32 v13, 0")
    a("s_mov_b64 exec, 1")
    a("buffer_store_dword v12, v12, s[12:15], s97 offen sc1")
    a("s_mov_b64 exec, -1")
    a("ds_write_b64 v10, v[12:13]")
    a("ds_write_b64 v10, v[12:13] offset:8")
    mma_addr(0)
    a("s_mov_b32 s33, 0")
    a("s_waitcnt lgkmcnt(0)")
    a("s_barrier")
    stamp(a, 1)
    a.label("%s_mma" % name)
    core.prime(0, core.reads(0, 0))
    trk.drain()
    nocs = [False]
    def mfmas(buf):
        L = []
        for ft in range(5):
            A = core.F(buf, ft)
            for tt in range(4 if ft < 4 else 2):
                c = core.accr(ft, tt); B = core.T(buf, tt)
                L.append(("v_mfma_f32_16x16x32_bf16 %s, %s, %s, %s" % (vr(c), vr(A), vr(B), vr(c)), list(range(A, A + 4)) + list(range(B, B + 4))))
            if not nocs[0]: L.append(("v_mfma_f32_16x16x32_bf16 %s, %s, %s, %s" % (vr(CS + 4 * ft), vr(A), vr(ONE), vr(CS + 4 * ft)), list(range(A, A + 4))))
        return L
    def phase(buf, pend):
        for (m, regs) in mfmas(buf):
            trk.need(regs)
            a(m)
            while pend:
                k, t = pend.pop(0)
                if k == "x":
                    a(t)
                    if t.startswith("s_"): continue
                else:
                    a(t[0]); trk.issue(t[1])
                break
        for k, t in pend:
            if k == "x": a(t)
            else: a(t[0]); trk.issue(t[1])
    def iteration(vw=True):
        if vw: a("s_waitcnt vmcnt(0)")
        a("s_barrier")
        rd = [("r", t) for t in core.reads(1, 1)]
        upd = ["s_add_u32 s27, s27, %d" % SLOT, "s_cmp_eq_u32 s27, %d" % (R * SLOT), "s_cselect_b32 s27, 0, s27"]
        tail = ["v_add_u32 v%d, s27, v%d" % (d, s_) for d, s_ in ((vTa[0], bTa[0]), (vF, bF), (vTb[0], bTb[0]), (vFh, bFh))]
        phase(0, rd[:1] + [("x", u) for u in upd] + rd[1:] + [("x", u) for u in tail])
        rd = [("r", t) for t in core.reads(0, 0)]
        tail = ["v_add_u32 v%d, s27, v%d" % (d, s_) for d, s_ in ((vTa[1], bTa[1]), (vTb[1], bTb[1]))] + ["s_add_u32 s33, s33, 1"]
        phase(1, rd + [("x", u) for u in tail])
    a.label("%s_cloop" % name)
    lb = len(a.lines); iteration(); st = copy.deepcopy(trk.out); del a.lines[lb:]; trk.out = copy.deepcopy(st)
    iteration()
    assert [sorted(x) for x in trk.out] == [sorted(x) for x in st]
    a("s_cmp_lt_u32 s33, 9")
    a("s_cbranch_scc1 %s_cloop" % name)
    trk.drain()
    stamp(a, 2)
    MR = 100; T = 72; ZP = 16
    a("s_cmp_eq_u32 s98, 1")
    a("s_cbranch_scc1 %s_Btail" % name)
    a("s_waitcnt vmcnt(0)")
    a("s_barrier")
    a("s_cmp_lg_u32 s3, 0")
    a("s_cbranch_scc1 %s_nosig" % name)
    a("v_mov_b32 v10, 1")
    a("s_lshl_b32 s36, s22, 2")
    a("v_mov_b32 v11, s36")
    a("s_mov_b64 exec, 1")
    a("buffer_atomic_add v10, v11, s[60:63], 0 offen sc1")
    a("s_mov_b64 exec, -1")
    a.label("%s_nosig" % name)
    ho_addr()
    n_ = 0
    for ft in range(4):
        for tt in range(2):
            a("ds_write_b128 v95, %s offset:%d" % (vr(core.accr(ft, tt + 2)), 1024 * n_)); n_ += 1
    for ft in range(4):
        a("ds_write_b128 v95, %s offset:%d" % (vr(CS + 4 * ft), 1024 * n_)); n_ += 1
    a("s_waitcnt lgkmcnt(0)")
    a("s_barrier")
    a.label("%s_g2" % name)
    gelu_consts(a)
    a("s_xor_b32 s52, s98, s25")
    a("s_lshl_b32 s36, s24, 9")
    a("s_lshl_b32 s37, s52, 8")
    a("s_add_u32 s38, s36, s37")
    a("v_lshlrev_b32 v10, 3, v3")
    a("v_add_u32 v11, s38, v10")
    a("ds_read_b64 %s, v11 offset:%d" % (vr(MR, 2), RST))
    a("ds_read_b64 %s, v11 offset:%d" % (vr(MR + 2, 2), RST + 128))
    for r_ in range(108, 112): a("v_mov_b32 v%d, 0" % r_)
    a("s_waitcnt lgkmcnt(0)")
    ZPo = lambda n: 16 + 2 * n
    def dots2(lst):
        for d in range(2):
            for (ft, tt) in lst:
                p = ZPo(2 * ft + tt) + d
                a("v_dot2_f32_bf16 v%d, v%d, v%d, v%d" % (108 + 2 * tt, p, ONE, 108 + 2 * tt))
                a("v_dot2_f32_bf16 v%d, v%d, v%d, v%d" % (109 + 2 * tt, p, p, 109 + 2 * tt))
    a("s_cmp_lg_u32 s98, 0")
    a("s_cbranch_scc1 %s_nohalf" % name)
    lst = [(4, 0), (4, 1)]
    emit_fold_gelu(a, [(core.accr(ft, tt), CS + 4 * ft, MR + 2 * tt, ZPo(2 * ft + tt)) for ft, tt in lst], T)
    dots2(lst)
    a.label("%s_nohalf" % name)
    for f0 in (0, 2):
        lst = [(ft, tt) for ft in (f0, f0 + 1) for tt in range(2)]
        emit_fold_gelu(a, [(core.accr(ft, tt), CS + 4 * ft, MR + 2 * tt, ZPo(2 * ft + tt)) for ft, tt in lst], T)
        dots2(lst)
    a("s_nop 2")
    emit_xg_reduce(a, [108, 110, 109, 111], 72)
    a("s_lshl_b32 s40, s22, 7")
    a("s_lshl_b32 s36, s24, 6")
    a("s_add_u32 s40, s40, s36")
    a("s_lshl_b32 s40, s40, 8")
    a("s_add_u32 s59, s40, 0x%x" % STATS2)
    a("s_lshl_b32 s36, s52, 13")
    a("s_add_u32 s40, s59, s36")
    a("s_lshl_b32 s36, s23, 1")
    a("s_add_u32 s36, s36, s25")
    a("s_lshl_b32 s36, s36, 3")
    a("s_add_u32 s40, s40, s36")
    a("v_lshrrev_b32 v10, 4, v2")
    a("v_lshlrev_b32 v11, 8, v2")
    a("v_cmp_gt_u32 vcc, 32, v2")
    a("v_mov_b32 v12, 0x7ffffff0")
    a("v_cmp_eq_u32 s[36:37], 1, v10")
    a("v_cndmask_b32 v11, v12, v11, vcc")
    a("s_nop 0")
    a("v_cndmask_b32 v108, v108, v110, s[36:37]")
    a("v_cndmask_b32 v109, v109, v111, s[36:37]")
    a("v_and_b32 v109, 0x7fffffff, v109")
    a("buffer_store_dwordx2 v[108:109], v11, s[12:15], s40 offen sc1")
    a("s_cmp_eq_u32 s98, 0")
    a("s_cbranch_scc1 %s_A1" % name)
    for q in range(4):
        a("ds_write_b128 v95, %s offset:%d" % (vr(16 + 4 * q), 1024 * q))
    for r in range(ACC, ACC + 72): a("v_mov_b32 v%d, 0" % r)
    for r in range(CS, CS + 20): a("v_mov_b32 v%d, 0" % r)
    mma_addr(9 % R)
    a("s_mov_b32 s33, 0")
    a("s_setprio 0")
    a("s_waitcnt lgkmcnt(0)")
    stamp(a, 9)
    a("s_barrier")
    a("s_branch %s_mma" % name)
    def epi_in():
        gelu_consts(a)
        a("s_lshl_b32 s36, s24, 9")
        a("s_lshl_b32 s37, s25, 8")
        a("s_add_u32 s38, s36, s37")
        a("s_xor_b32 s37, s37, 256")
        a("s_add_u32 s39, s36, s37")
        a("v_lshlrev_b32 v10, 3, v3")
        a("v_add_u32 v11, s38, v10")
        a("ds_read_b64 %s, v11 offset:%d" % (vr(MR, 2), RST))
        a("ds_read_b64 %s, v11 offset:%d" % (vr(MR + 2, 2), RST + 128))
        a("v_add_u32 v11, s39, v10")
        a("ds_read_b64 %s, v11 offset:%d" % (vr(MR + 4, 2), RST))
        a("ds_read_b64 %s, v11 offset:%d" % (vr(MR + 6, 2), RST + 128))
        a("s_waitcnt lgkmcnt(0)")
    S = [108, 110, 52, 54]; Q = [109, 111, 53, 55]
    def gelu_ft(ft, stats):
        tts = range(4 if ft < 4 else 2)
        emit_fold_gelu(a, [(core.accr(ft, tt), CS + 4 * ft, MR + 2 * tt, ZP + 2 * tidx(ft, tt)) for tt in tts], T)
        if stats:
            for d in range(2):
                for tt in tts:
                    p = ZP + 2 * tidx(ft, tt) + d
                    a("v_dot2_f32_bf16 v%d, v%d, v%d, v%d" % (S[tt], p, ONE, S[tt]))
                    a("v_dot2_f32_bf16 v%d, v%d, v%d, v%d" % (Q[tt], p, p, Q[tt]))
    a.label("%s_Btail" % name)
    a("v_mov_b32 v10, %d" % (LC + 12))
    a("v_mov_b32 v11, 1")
    a("s_mov_b64 exec, 1")
    a("ds_add_u32 v10, v11")
    a("s_mov_b64 exec, -1")
    a("s_load_dwordx2 s[94:95], s[0:1], 80")
    a("s_load_dwordx2 s[92:93], s[0:1], 72")
    a("s_load_dwordx2 s[78:79], s[0:1], 64")
    epi_in()
    srd(a, 84, 78, 2048 * 2048 * 2)
    a("v_lshrrev_b32 v10, 4, v2")
    a("v_lshlrev_b32 v10, 12, v10")
    a("v_lshl_add_u32 v10, v3, 4, v10")
    a("s_lshl_b32 s40, s22, 7")
    a("s_lshl_b32 s36, s3, 5")
    a("s_add_u32 s40, s40, s36")
    a("s_lshl_b32 s40, s40, 12")
    a("s_lshl_b32 s36, s23, 8")
    a("s_add_u32 s40, s40, s36")
    for n in range(8):
        a("buffer_load_dwordx4 v[116:119], v10, s[84:87], s40 offen")
        if n < 7: a("s_add_u32 s40, s40, 16384")
    srd(a, 76, 94, 2304 * 576 * 2)
    srd(a, 28, 92, 2048 * 2)
    a("v_and_b32 v0, 255, v0")
    for ft in range(5): gelu_ft(ft, False)
    Z1R = 200; BI = 236
    for r_ in range(36): a("v_mov_b32 v%d, v%d" % (Z1R + r_, ZP + r_))
    stamp(a, 3)
    a("s_mov_b32 s42, s2")
    emit_wot_loads(a, 100, 112, 720, 3)
    a("s_lshl_b32 s36, s22, 7")
    a("s_lshl_b32 s37, s24, 6")
    a("s_add_u32 s36, s36, s37")
    a("v_lshlrev_b32 v11, 1, v3")
    a("s_lshl_b32 s37, s25, 6")
    a("s_lshl_b32 s38, s36, 1")
    a("s_add_u32 s39, s38, s37")
    a("s_xor_b32 s37, s37, 64")
    a("s_add_u32 s36, s38, s37")
    a("buffer_load_ushort v96, v11, s[28:31], s39 offen")
    a("buffer_load_ushort v97, v11, s[28:31], s39 offen offset:32")
    a("buffer_load_ushort v98, v11, s[28:31], s36 offen")
    a("buffer_load_ushort v99, v11, s[28:31], s36 offen offset:32")
    for r in range(ACC, ACC + 72): a("v_mov_b32 v%d, 0" % r)
    mma_addr(0)
    a("s_mov_b32 s33, 0")
    stamp(a, 4)
    a("s_barrier")
    stamp(a, 5)
    core.prime(0, core.reads(0, 0))
    trk.drain()
    nocs[0] = True
    a.label("%s_gloop" % name)
    lb = len(a.lines); iteration(False); st = copy.deepcopy(trk.out); del a.lines[lb:]; trk.out = copy.deepcopy(st)
    iteration(False)
    assert [sorted(x) for x in trk.out] == [sorted(x) for x in st]
    a("s_cmp_lg_u32 s33, 3")
    a("s_cbranch_scc1 %s_ghk" % name)
    a("s_waitcnt vmcnt(0)")
    for n in range(3):
        a("buffer_store_dwordx4 %s, v%d, s[12:15], s40 offen" % (vr(100 + 4 * n), 112 + n))
    for tt in range(4): a("v_lshlrev_b32 v%d, 16, v%d" % (BI + 2 * tt, 96 + tt))
    a.label("%s_ghk" % name)
    a("s_cmp_lt_u32 s33, 32")
    a("s_cbranch_scc1 %s_gloop" % name)
    trk.drain()
    stamp(a, 6)
    G3.emit_k2_epilogue(a, core, Z1R, BI)
    stamp(a, 7)
    G.stamp_rt(a, 1)
    a("s_branch %s_end" % name)
    a.label("%s_A1" % name)
    a("s_setprio 2")
    a("s_load_dwordx4 s[88:91], s[0:1], 32")
    vmA = VmTracker(a)
    stamp(a, 9)
    a("s_barrier")
    for q in range(4):
        a("ds_read_b128 %s, v95 offset:%d" % (vr(36 + 4 * q), 1024 * q))
    def zreg(ft, tt):
        return (16 + 2 * (2 * ft + tt)) if tt < 2 else (36 + 2 * (2 * ft + tt - 2))
    GB = [128, 144, 160, 176]
    def gather():
        for tt in range(4):
            for q in range(4):
                a("buffer_load_dwordx4 %s, v4, s[12:15], s%d offen offset:%d sc1" % (vr(GB[tt] + 4 * q), (52, 42, 53, 43)[tt], 16 * q))
    def st_finish():
        for tt in range(4):
            b = GB[tt]
            for st_ in (8, 4, 2):
                for q in range(0, st_, 2):
                    a("v_pk_add_f32 %s, %s, %s" % (vr(b + q, 2), vr(b + q, 2), vr(b + q + st_, 2)))
        emit_xg_reduce(a, [GB[tt] + e for tt in range(4) for e in range(2)], 72)
        for tt in range(4):
            b = GB[tt]
            emit_ln_finish(a, b, b + 1, 2304, b + 2, MR + 2 * tt, b + 4)
            a("v_mul_f32 v%d, -v%d, v%d" % (MR + 2 * tt + 1, b + 2, MR + 2 * tt))
    def z_addr():
        a("v_lshrrev_b32 v10, 4, v2")
        a("v_lshrrev_b32 v11, 2, v2"); a("v_and_b32 v11, 1, v11"); a("v_lshlrev_b32 v11, 4, v11")
        a("v_lshrrev_b32 v5, 3, v2"); a("v_and_b32 v5, 1, v5"); a("v_lshl_add_u32 v11, v5, 2, v11")
        a("v_and_b32 v5, 3, v2"); a("v_add_u32 v11, v11, v5")
        a("v_mul_u32_u24 v11, 288, v11")
        a("v_lshrrev_b32 v5, 1, v10"); a("v_lshl_add_u32 v11, v5, 4, v11")
        a("v_and_b32 v5, 1, v10")
        a("v_lshl_add_u32 v6, v5, 5, v11")
        a("v_mul_u32_u24 v5, 2304, v5")
        a("v_add_u32 v9, v11, v5")
        a("s_lshl_b32 s33, s23, 5")
        a("s_lshl_b32 s36, s22, 1")
        a("s_add_u32 s33, s33, s36")
        a("s_add_u32 s33, s33, s24")
        a("s_mul_i32 s33, s33, 18432")
        if ZIMG: a("s_add_u32 s33, s33, 0x%x" % ZIMG)
        a("s_mul_i32 s36, s25, 9216")
        a("s_add_u32 s37, s33, s36")
        a("s_xor_b32 s36, s36, 9216")
        a("s_add_u32 s38, s33, s36")
        a("s_add_u32 s39, s37, 128")
        a("s_mul_i32 s36, s25, 160")
        a("s_add_u32 s37, s37, s36")
        a("s_add_u32 s38, s38, s36")
    def norm_pair(tA, tB, O):
        for q, (ft, tt) in enumerate((tA, tB)):
            for d in range(2):
                z = zreg(ft, tt) + d; t_ = T + 4 * q + 2 * d
                a("v_lshlrev_b32 v%d, 16, v%d" % (t_, z))
                a("v_and_b32 v%d, 0xffff0000, v%d" % (t_ + 1, z))
        for q, (ft, tt) in enumerate((tA, tB)):
            for d in range(2):
                t_ = T + 4 * q + 2 * d
                a("v_pk_fma_f32 %s, %s, %s, %s op_sel:[0,0,1] op_sel_hi:[1,0,1]" % (vr(t_, 2), vr(t_, 2), vr(MR + 2 * tt, 2), vr(MR + 2 * tt, 2)))
        for q in range(2):
            for d in range(2):
                t_ = T + 4 * q + 2 * d
                a("v_cvt_pk_bf16_f32 v%d, v%d, v%d" % (O + 2 * q + d, t_, t_ + 1))
        a("s_nop 1")
        a("v_permlane16_swap_b32 v%d, v%d" % (O, O + 2))
        a("v_permlane16_swap_b32 v%d, v%d" % (O + 1, O + 3))
        a("s_nop 0")
    def zstore(idx):
        O = 216 + 4 * idx
        if idx < 8:
            pr, tt = idx >> 2, idx & 3
            norm_pair((2 * pr, tt), (2 * pr + 1, tt), O)
            a("buffer_store_dwordx4 %s, v6, s[12:15], s%d offen offset:%d sc1" % (vr(O), 37 if tt < 2 else 38, (tt & 1) * 2304 + 64 * pr))
        else:
            norm_pair((4, 0), (4, 1), O)
            a("buffer_store_dwordx4 %s, v9, s[12:15], s39 offen sc1" % vr(O))
    GK = 16
    def dmas(gs):
        out = []
        for g in gs: out += capture(lambda: (issueT(g), issueF(g)))
        return out
    for k in range(9, 18):
        if k == 9: a("s_waitcnt lgkmcnt(0)")
        a("s_barrier")
        gs = [11, 12] if k == 9 else ([k + 3] if k + 3 < 18 else [])
        if k == 9:
            a.lines.extend(dmas(gs))
            for g in gs: vmA.issue("S%d" % g, 9)
            a("s_lshl_b32 s36, s22, 2")
            a("v_mov_b32 v199, s36")
            a("buffer_load_dword v198, v199, s[60:63], 0 offen sc1"); vmA.issue("cnt", 1)
            a("v_lshrrev_b32 v10, 4, v2")
            a("v_lshlrev_b32 v4, 8, v3")
            a("v_lshl_add_u32 v4, v10, 6, v4")
            a("s_lshl_b32 s33, s25, 13")
            a("s_add_u32 s52, s59, s33")
            a("s_xor_b32 s33, s33, 8192")
            a("s_add_u32 s53, s59, s33")
            a("s_add_u32 s42, s52, 4096")
            a("s_add_u32 s43, s53, 4096")
        elif k == 10:
            a.lines.extend(dmas(gs)); vmA.issue("S13", 9)
            z_addr()
        elif k <= 14:
            a.lines.extend(dmas(gs)); vmA.issue("S%d" % gs[0], 9)
        elif k == GK:
            gather(); vmA.issue("g", 16)
        if k == 12:
            pass
        if 11 <= k + 2 < 18 and k + 2 != 10:
            vmA.wait(["S%d" % (k + 2)])
    stamp(a, 3)
    a("s_waitcnt vmcnt(0)")
    a("s_mov_b32 s40, 0")
    a.label("%s_chk" % name)
    a("v_subrev_u32 v11, 16, v198")
    for tt in range(4):
        for r in range(GB[tt] + 1, GB[tt] + 16, 4):
            a("v_or3_b32 v11, v11, v%d, v%d" % (r, r + 2))
    a("v_cmp_gt_i32 vcc, 0, v11")
    a("s_add_u32 s40, s40, 1")
    a("s_cmp_gt_u32 s40, %d" % SPIN_MAX)
    a("s_cbranch_scc1 %s_ok" % name)
    a("s_cbranch_vccz %s_ok" % name)
    a("s_sleep 16")
    a("buffer_load_dword v198, v199, s[60:63], 0 offen sc1")
    a("s_waitcnt vmcnt(0)")
    gather()
    a("s_waitcnt vmcnt(0)")
    a("s_branch %s_chk" % name)
    a.label("%s_ok" % name)
    stamp(a, 4)
    st_finish()
    for i_ in range(9): zstore(i_)
    stamp(a, 5)
    a("s_mov_b32 s41, s2")
    emit_kv_loads(a, 128, 140, 148, 152, 153)
    a("s_cmp_ge_u32 s2, 32")
    a("s_cbranch_scc1 %s_kvp" % name)
    a("s_add_u32 s41, s2, 256")
    emit_kv_loads(a, 156, 168, 176, 180, 181)
    a.label("%s_kvp" % name)
    a("s_setprio 3")
    srd(a, 8, 78, 2048 * 2048 * 2)
    a("v_lshrrev_b32 v3, 3, v2")
    a("s_lshl_b32 s24, s3, 5")
    a("v_add_u32 v3, s24, v3")
    a("v_and_b32 v4, 7, v2")
    a("v_lshrrev_b32 v6, 4, v2")
    a("v_xor_b32 v6, v6, v4")
    a("v_lshlrev_b32 v6, 4, v6")
    a("v_lshl_add_u32 v10, v3, 12, v6")
    a("v_xor_b32 v11, 64, v10")
    a("v_add_u32 v11, %d, v11" % (32768 - 1024))
    a("v_add_u32 v12, %d, v10" % (2 * (32768 - 1024)))
    a("v_add_u32 v13, %d, v11" % (2 * (32768 - 1024)))
    a("v_lshlrev_b32 v14, 4, v2")
    a("s_lshl_b32 s26, s22, 19")
    a("s_mul_i32 s27, s23, %d" % (32 * 18432))
    a("s_lshl_b32 s24, s3, 12")
    a("s_add_u32 s27, s27, s24")
    if ZIMG: a("s_add_u32 s27, s27, 0x%x" % ZIMG)
    a("s_lshl_b32 s25, s3, 9")
    a("s_sub_u32 s32, s25, s24")
    a("s_add_u32 s32, s32, 16384")
    a("s_add_u32 s24, s24, %d" % RB)
    a("s_waitcnt vmcnt(20) lgkmcnt(0)")
    a("v_mov_b32 v26, %d" % LC)
    a("v_mov_b32 v27, 1")
    a("s_mov_b64 exec, 1")
    a("ds_add_rtn_u32 v28, v26, v27")
    a("s_waitcnt lgkmcnt(0)")
    a("v_readfirstlane_b32 s36, v28")
    a("s_cmp_lg_u32 s36, 3")
    a("s_cbranch_scc1 %s_nozs" % name)
    a("v_mov_b32 v28, 0")
    a("buffer_store_dword v27, v28, s[12:15], s97 offen sc1")
    a.label("%s_nozs" % name)
    a("s_mov_b64 exec, -1")
    stamp(a, 7)
    srd(a, 16, 88, 576 * 2048 * 2)
    srd(a, 84, 90, 576 * 2)
    a("s_mov_b32 s34, 0")
    a.label("%s_wb" % name)
    a("ds_read_b32 v27, v26 offset:12")
    a("s_add_u32 s34, s34, 1")
    a("s_waitcnt lgkmcnt(0)")
    a("v_readfirstlane_b32 s36, v27")
    a("s_cmp_gt_u32 s34, %d" % (SPIN_MAX * 20))
    a("s_cbranch_scc1 %s_wbx" % name)
    a("s_cmp_ge_u32 s36, 4")
    a("s_cbranch_scc1 %s_wbx" % name)
    a("s_sleep 2")
    a("s_branch %s_wb" % name)
    a.label("%s_wbx" % name)
    for g in range(4):
        a("s_add_u32 s35, s24, %d" % (g * SLOT))
        a("s_mov_b32 m0, s35")
        a("s_add_u32 s36, s26, %d" % (128 * g))
        for n in range(4):
            a("buffer_load_dwordx4 v%d, s[8:11], s36 offen offset:%d lds" % (10 + n, n * 1024))
    a("v_mov_b32 v250, v12"); a("v_mov_b32 v251, v13"); a("v_mov_b32 v252, v26")
    a("s_mov_b32 s39, 0x%x" % KVT)
    a("s_waitcnt vmcnt(16)")
    for n in range(11): a("v_mov_b32 v%d, v%d" % (16 + n, 128 + n))
    for n in range(8): a("v_mov_b32 v%d, v%d" % (32 + n, 140 + n))
    for n in range(4): a("v_mov_b32 v%d, v%d" % (44 + n, 148 + n))
    a("v_mov_b32 v56, v152"); a("v_mov_b32 v57, v153")
    a.label("%s_kvb" % name)
    emit_kv_compute(a, wait=False, store=False)
    a("buffer_store_dwordx4 v[120:123], v12, s[12:15], s39 offen sc1")
    a("buffer_store_dwordx4 v[124:127], v13, s[12:15], s39 offen sc1")
    a("s_cmp_lt_u32 s41, 256")
    a("s_cbranch_scc1 %s_kvbd" % name)
    a("s_mov_b32 s41, 0")
    for n in range(11): a("v_mov_b32 v%d, v%d" % (16 + n, 156 + n))
    for n in range(8): a("v_mov_b32 v%d, v%d" % (32 + n, 168 + n))
    for n in range(4): a("v_mov_b32 v%d, v%d" % (44 + n, 176 + n))
    a("v_mov_b32 v56, v180"); a("v_mov_b32 v57, v181")
    a("s_branch %s_kvb" % name)
    a.label("%s_kvbd" % name)
    a("s_nop 1")
    a("v_mov_b32 v12, v250"); a("v_mov_b32 v13, v251"); a("v_mov_b32 v26, v252")
    a("s_mov_b32 s34, 0")
    a("s_cmp_lg_u32 s3, 0")
    a("s_cbranch_scc1 %s_pl" % name)
    a("v_and_b32 v28, 15, v2")
    a("v_lshlrev_b32 v30, 2, v28")
    a("v_lshlrev_b32 v28, 12, v28")
    a("s_lshl_b32 s52, s23, 8")
    a("s_add_u32 s52, s52, 0x%x" % ZFLG)
    a.label("%s_pz0" % name)
    a("buffer_load_dword v31, v30, s[60:63], 0 offen sc1")
    a("s_add_u32 s34, s34, 1")
    a("s_waitcnt vmcnt(0)")
    a("v_cmp_gt_u32 vcc, 16, v31")
    a("s_cmp_gt_u32 s34, %d" % SPIN_MAX)
    a("s_cbranch_scc1 %s_pz" % name)
    a("s_cbranch_vccz %s_pz" % name)
    a("s_sleep 32")
    a("s_branch %s_pz0" % name)
    a.label("%s_pz" % name)
    a("buffer_load_dword v29, v28, s[12:15], s52 offen sc1")
    a("s_add_u32 s34, s34, 1")
    a("s_waitcnt vmcnt(0)")
    a("v_cmp_ne_u32 vcc, 1, v29")
    a("s_cmp_gt_u32 s34, %d" % SPIN_MAX)
    a("s_cbranch_scc1 %s_pzx" % name)
    a("s_cbranch_vccz %s_pzx" % name)
    a("s_sleep 8")
    a("s_branch %s_pz" % name)
    a.label("%s_pzx" % name)
    a("v_mov_b32 v27, 1")
    a("ds_write_b32 v26, v27 offset:4")
    a("s_branch %s_pgo" % name)
    a.label("%s_pl" % name)
    a("ds_read_b32 v27, v26 offset:4")
    a("s_add_u32 s34, s34, 1")
    a("s_waitcnt lgkmcnt(0)")
    a("v_readfirstlane_b32 s36, v27")
    a("s_cmp_gt_u32 s34, %d" % (SPIN_MAX * 20))
    a("s_cbranch_scc1 %s_pgo" % name)
    a("s_cmp_lg_u32 s36, 0")
    a("s_cbranch_scc1 %s_pgo" % name)
    a("s_sleep 2")
    a("s_branch %s_pl" % name)
    a.label("%s_pgo" % name)
    stamp(a, 8)
    for g in range(4):
        a("s_add_u32 s35, s24, %d" % (g * SLOT + TREG))
        a("s_mov_b32 m0, s35")
        a("s_add_u32 s36, s27, %d" % (18432 * g))
        a("s_add_u32 s37, s36, s32")
        for n in range(4):
            a("buffer_load_dwordx4 v14, s[12:15], s36 offen offset:%d sc1 lds" % (n * 1024))
        a("s_add_u32 s35, s35, s32")
        a("s_mov_b32 m0, s35")
        a("s_mov_b64 exec, 0xffffffff")
        a("buffer_load_dwordx4 v14, s[12:15], s37 offen sc1 lds")
        a("s_mov_b64 exec, -1")
    a("s_add_u32 s26, s26, 512")
    a("s_add_u32 s27, s27, %d" % (4 * 18432))
    a("s_mov_b32 s33, 0")
    a("s_lshl_b32 s43, s2, 2")
    a("s_add_u32 s43, s43, s3")
    a("s_and_b32 s53, s43, 1")
    a("s_sub_u32 s36, s43, 448")
    a("s_lshr_b32 s37, s43, 1")
    a("s_cmp_ge_u32 s43, 896")
    a("s_cselect_b32 s43, s36, s37")
    a("s_cselect_b32 s53, 2, s53")
    a("s_waitcnt vmcnt(15)")
    a("s_barrier")
    a("s_waitcnt vmcnt(10)")
    a("s_barrier")
    a("s_waitcnt vmcnt(5)")
    a("s_barrier")
    a("s_mov_b32 s34, 4")
    def issue2():
        a("s_add_u32 s35, s33, s24")
        a("s_mov_b32 m0, s35")
        a("s_add_u32 s36, s35, %d" % TREG)
        for n in range(4):
            a("buffer_load_dwordx4 v%d, s[8:11], s26 offen offset:%d lds" % (10 + n, n * 1024))
        a("s_mov_b32 m0, s36")
        a("s_add_u32 s37, s27, s32")
        for n in range(4):
            a("buffer_load_dwordx4 v14, s[12:15], s27 offen offset:%d sc1 lds" % (n * 1024))
        a("s_add_u32 s36, s36, s32")
        a("s_mov_b32 m0, s36")
        a("s_mov_b64 exec, 0xffffffff")
        a("buffer_load_dwordx4 v14, s[12:15], s37 offen sc1 lds")
        a("s_mov_b64 exec, -1")
        a("s_add_u32 s26, s26, 128")
        a("s_add_u32 s27, s27, 18432")
        a("s_add_u32 s33, s33, %d" % SLOT)
        a("s_cmp_eq_u32 s33, %d" % (R * SLOT))
        a("s_cselect_b32 s33, 0, s33")
    a.label("%s_lloop" % name)
    issue2()
    a("s_cmp_eq_u32 s34, 8")
    a("s_cbranch_scc1 %s_hk0" % name)
    a("s_cmp_eq_u32 s34, 18")
    a("s_cbranch_scc1 %s_hk1" % name)
    a("s_cmp_eq_u32 s34, 21")
    a("s_cbranch_scc1 %s_hk2" % name)
    a("s_waitcnt vmcnt(9)")
    a.label("%s_lcont" % name)
    a("s_barrier")
    a("s_add_u32 s34, s34, 1")
    a("s_cmp_lt_u32 s34, 32")
    a("s_cbranch_scc1 %s_lloop" % name)
    a("s_branch %s_ldone" % name)
    a.label("%s_hk0" % name)
    a("v_mov_b32 v27, 1")
    a("s_mov_b64 exec, 1")
    a("ds_add_rtn_u32 v28, v26, v27 offset:8")
    a("s_waitcnt lgkmcnt(0)")
    a("v_readfirstlane_b32 s36, v28")
    a("s_cmp_lg_u32 s36, 3")
    a("s_cbranch_scc1 %s_hk0x" % name)
    a("s_and_b32 s36, s2, 15")
    a("s_lshl_b32 s36, s36, 2")
    a("s_add_u32 s36, s36, 128")
    a("v_mov_b32 v28, s36")
    a("buffer_atomic_add v27, v28, s[60:63], 0 offen sc1")
    a.label("%s_hk0x" % name)
    a("s_mov_b64 exec, -1")
    a("s_waitcnt vmcnt(9)")
    a("s_branch %s_lcont" % name)
    a.label("%s_hk1" % name)
    a("v_and_b32 v28, 15, v2")
    a("v_lshlrev_b32 v28, 2, v28")
    a("buffer_load_dword v29, v28, s[60:63], 0 offen offset:128 sc1")
    a("s_waitcnt vmcnt(10)")
    a("s_branch %s_lcont" % name)
    a.label("%s_hk2" % name)
    a("s_mov_b32 s52, 0")
    a.label("%s_hk2l" % name)
    a("v_cmp_gt_u32 vcc, 16, v29")
    a("s_add_u32 s52, s52, 1")
    a("s_cmp_gt_u32 s52, %d" % SPIN_MAX)
    a("s_cbranch_scc1 %s_hk2g" % name)
    a("s_cbranch_vccz %s_hk2g" % name)
    a("s_sleep 16")
    a("buffer_load_dword v29, v28, s[60:63], 0 offen offset:128 sc1")
    a("s_waitcnt vmcnt(0)")
    a("s_branch %s_hk2l" % name)
    a.label("%s_hk2g" % name)
    nconv = emit_conv_loads(a, " sc1")
    a("s_waitcnt vmcnt(%d)" % (9 + nconv))
    a("s_branch %s_lcont" % name)
    a.label("%s_ldone" % name)
    a("s_waitcnt vmcnt(0)")
    a("s_barrier")
    a("s_mov_b32 s26, s53")
    a("s_and_b32 s27, s3, 1")
    a("s_mul_i32 s27, s27, %d" % CJ_SIZE)
    a("s_lshr_b32 s36, s3, 1")
    a("s_mul_i32 s36, s36, %d" % SLOT)
    a("s_add_u32 s27, s27, s36")
    a("s_add_u32 s27, s27, %d" % RB)
    def mid():
        a("s_barrier")
        a("s_setprio 0")
    sv = set(DBG); DBG.discard("stamp")
    emit_conv_job(a, name, mid)
    DBG.update(sv)
    G.stamp_rt(a, 1)
    a.label("%s_end" % name)
    a("s_endpgm")
    return a.text(), kernel_desc(name, 256, 256), (name, 256, 512, LDSB)

def gen_kf2(name="k1_kernel", R=4):
    a = Asm()
    RB = 4096; SLOT = 34816; TREG = 16384; FS = 288; RST = 0
    LDSB = RB + R * SLOT
    LC = 2048
    ZFLG = 0x2D00000
    from gen3 import emit_conv_loads, emit_conv_job, CJ_SIZE
    def capture(f, *args):
        lb = len(a.lines); f(*args); out = a.lines[lb:]; del a.lines[lb:]; return out
    kernel_begin(a, name)
    a("s_load_dwordx2 s[80:81], s[0:1], 0")
    a("s_load_dwordx2 s[4:5], s[0:1], 56")
    a("s_load_dwordx2 s[6:7], s[0:1], 104")
    a("s_load_dwordx2 s[18:19], s[0:1], 96")
    a("s_cmp_ge_u32 s2, 256")
    a("s_cbranch_scc1 %s_end" % name)
    a("v_lshrrev_b32 v1, 6, v0")
    a("v_and_b32 v2, 63, v0")
    a("v_readfirstlane_b32 s3, v1")
    G2.tile_ij(a)
    a("s_lshr_b32 s98, s3, 2")
    a("s_mov_b32 s54x, 0".replace("s54x", "s99"))
    a("s_and_b32 s3, s3, 3")
    a("s_lshr_b32 s24, s3, 1")
    a("s_and_b32 s25, s3, 1")
    a("v_and_b32 v3, 15, v2")
    VT = 204; VF = 208
    def loader_setup():
        a("v_lshrrev_b32 v5, 3, v2")
        a("v_and_b32 v4, 7, v2")
        a("s_lshl_b32 s36, s3, 5")
        a("v_add_u32 v5, s36, v5")
        a("v_lshrrev_b32 v7, 4, v2")
        a("v_xor_b32 v7, v7, v4")
        a("v_mul_u32_u24 v6, 1152, v5")
        a("v_lshl_add_u32 v%d, v7, 4, v6" % VT)
        a("v_xor_b32 v%d, 64, v%d" % (VT + 1, VT))
        a("v_add_u32 v%d, %d, v%d" % (VT + 1, 9216 - 1024, VT + 1))
        a("v_add_u32 v%d, %d, v%d" % (VT + 2, 2 * (9216 - 1024), VT))
        a("v_add_u32 v%d, %d, v%d" % (VT + 3, 2 * (9216 - 1024), VT + 1))
        a("s_lshl_b32 s84, s3, 12")
        a("s_add_u32 s84, s84, %d" % RB)
        a("s_lshl_b32 s85, s3, 9")
        a("s_add_u32 s85, s85, %d" % (RB + TREG + 16384))
    def loader_setup2():
        for n in range(5):
            if n < 4:
                a("s_lshl_b32 s36, s3, 8")
                a("s_add_u32 s36, s36, %d" % (64 * n))
            else:
                a("s_lshl_b32 s36, s3, 5")
                a("s_add_u32 s36, s36, 1024")
            a("v_add_u32 v6, s36, v2")
            a("v_mul_u32_u24 v7, 3641, v6")
            a("v_lshrrev_b32 v7, 16, v7")
            a("v_mul_u32_u24 v8, 18, v7")
            a("v_sub_u32 v8, v6, v8")
            a("v_and_b32 v9, 35, v7")
            a("v_bfe_u32 v6, v7, 2, 2")
            a("v_lshl_add_u32 v9, v6, 3, v9")
            a("v_bfe_u32 v6, v7, 4, 1")
            a("v_lshl_add_u32 v9, v6, 2, v9")
            a("v_mul_u32_u24 v9, 9216, v9")
            a("v_lshl_add_u32 v%d, v8, 4, v9" % (VF + n))
            if 0 < n < 4: a("v_subrev_u32 v%d, %d, v%d" % (VF + n, 1024 * n, VF + n))
    def issueT(g):
        st = g % 9
        a("s_add_u32 s86, s84, %d" % ((g % R) * SLOT))
        a("s_mov_b32 m0, s86")
        a("s_add_u32 s87, s82, %d" % (128 * st))
        for n in range(4):
            a("buffer_load_dwordx4 v%d, s[28:31], s87 offen offset:%d lds" % (VT + n, 1024 * n))
    def issueF(g):
        st = g % 9
        a("s_add_u32 s86, s84, %d" % ((g % R) * SLOT + TREG))
        a("s_mov_b32 m0, s86")
        a("s_add_u32 s87, s83, %d" % (64 * 9216 * st + (4608 if g < 9 else 0)))
        for n in range(4):
            a("buffer_load_dwordx4 v%d, s[8:11], s87 offen offset:%d lds" % (VF + n, 1024 * n))
        a("s_add_u32 s86, s85, %d" % ((g % R) * SLOT))
        a("s_mov_b32 m0, s86")
        a("s_mov_b64 exec, 0xffffffff")
        a("buffer_load_dwordx4 v%d, s[8:11], s87 offen lds" % (VF + 4))
        a("s_mov_b64 exec, -1")
    def srds_main():
        srd(a, 28, 80, 2048 * 576 * 2)
        srd(a, 8, 4, 576 * 4608 * 2)
        srd(a, 12, 6, WS_BYTES)
        srd(a, 60, 18, 256)
        a("s_mul_i32 s82, s22, %d" % (128 * 1152))
        a("s_mul_i32 s83, s23, 288")
    ACC = 128; FB = [16, 52]; CS = 216; ONE = 236
    vTa = [4, 5]; vTb = [6, 7]; vF = 8; vFh = 9
    bTa = [88, 89]; bTb = [90, 91]; bF = 92; bFh = 93
    def mma_setup():
        a("v_lshrrev_b32 v10, 4, v2")
        a("v_lshrrev_b32 v11, 1, v3")
        a("v_xor_b32 v10, v10, v11")
        a("v_lshlrev_b32 v10, 4, v10")
        a("v_lshl_add_u32 v10, v3, 7, v10")
        a("s_lshl_b32 s26, s24, 13")
        a("s_add_u32 s26, s26, %d" % RB)
        a("v_add_u32 v10, s26, v10")
        a("s_lshl_b32 s26, s25, 12")
        a("v_add_u32 v%d, s26, v10" % bTa[0])
        a("s_xor_b32 s26, s26, 4096")
        a("v_add_u32 v%d, s26, v10" % bTb[0])
        a("v_xor_b32 v%d, 64, v%d" % (bTa[1], bTa[0]))
        a("v_xor_b32 v%d, 64, v%d" % (bTb[1], bTb[0]))
        a("v_lshrrev_b32 v10, 2, v2")
        a("v_mul_u32_u24 v10, %d, v10" % FS)
        a("v_and_b32 v11, 3, v2")
        a("v_lshl_add_u32 v10, v11, 3, v10")
        a("v_add_u32 v10, %d, v10" % (RB + TREG))
        a("s_mul_i32 s26, s25, 160")
        a("v_add_u32 v%d, s26, v10" % bF)
        a("v_add_u32 v%d, 128, v10" % bFh)
        for r in range(ACC, ACC + 72): a("v_mov_b32 v%d, 0" % r)
        for r in range(CS, CS + 20): a("v_mov_b32 v%d, 0" % r)
        for r in range(ONE, ONE + 4): a("v_mov_b32 v%d, 0x3f803f80" % r)
    def mma_addr(slot):
        a("s_mov_b32 s27, %d" % (slot * SLOT))
        for d, s_ in ((vTa[0], bTa[0]), (vTb[0], bTb[0]), (vTa[1], bTa[1]), (vTb[1], bTb[1]), (vF, bF), (vFh, bFh)):
            a("v_add_u32 v%d, s27, v%d" % (d, s_))
    core = G.Core(a, ACC, FB[0], FB[1], FS, TREG, vTa, vTb, vF, vFh)
    trk = core.trk
    a("s_cmp_eq_u32 s98, 0")
    a("s_cbranch_scc1 %s_A0" % name)
    a("s_setprio 3")
    loader_setup()
    a("s_waitcnt lgkmcnt(0)")
    srds_main()
    vm = VmTracker(a)
    def issue(g, vmx):
        issueT(g); issueF(g); vmx.issue("S%d" % g, 9)
    issueT(0)
    loader_setup2()
    issueF(0); vm.issue("S0", 9)
    issue(1, vm); issue(2, vm); issue(3, vm)
    a("s_add_u32 s3, s3, 4"); stamp_setup(a, 1); stamp(a, 0); a("s_sub_u32 s3, s3, 4")
    mma_setup()
    RA = 96; XB = 112
    for r in range(RA, RA + 16): a("v_mov_b32 v%d, 0" % r)
    a("v_lshrrev_b32 v10, 4, v2")
    a("v_lshrrev_b32 v11, 1, v3")
    a("v_xor_b32 v10, v10, v11")
    a("v_lshlrev_b32 v10, 4, v10")
    a("v_lshl_add_u32 v10, v3, 7, v10")
    a("v_add_u32 v12, s84, v10")
    a("v_xor_b32 v13, 64, v12")
    def rs_rd(g):
        a("v_add_u32 v10, %d, v12" % ((g % R) * SLOT))
        a("v_add_u32 v11, %d, v13" % ((g % R) * SLOT))
        for h in range(2):
            for n in range(2):
                a("ds_read_b128 %s, v%d offset:%d" % (vr(XB + 8 * h + 4 * n), 10 + h, 2048 * n))
    def rs_do():
        for h in range(2):
            for n in range(2):
                x = XB + 8 * h + 4 * n
                a("v_mfma_f32_16x16x32_bf16 %s, %s, %s, %s" % (vr(RA + 4 * n), vr(ONE), vr(x), vr(RA + 4 * n)))
                a("v_mfma_f32_16x16x32_bf16 %s, %s, %s, %s" % (vr(RA + 8 + 4 * n), vr(x), vr(x), vr(RA + 8 + 4 * n)))
    def interleave(dma, comp, vmx=None):
        groups = []; cur = []
        for l in dma:
            cur.append(l)
            if "buffer_load" in l and not any("exec, 0xffffffff" in x for x in cur[-2:]):
                groups.append(cur); cur = []
            elif "exec, -1" in l:
                groups.append(cur); cur = []
        if cur: groups.append(cur)
        ns = max(1, len(groups))
        per = (len(comp) + ns - 1) // ns
        for g in groups:
            a.lines.extend(g)
            a.lines.extend(comp[:per]); comp = comp[per:]
        a.lines.extend(comp)
    vm.wait(["S0"])
    a("s_barrier")
    stamp(a, 1)
    rs_rd(0)
    vm.wait(["S1"])
    a("s_barrier")
    for k in range(9):
        a("s_waitcnt lgkmcnt(0)")
        dma = capture(lambda: (issueT(k + 3), issueF(k + 3))) if k >= 1 else []
        interleave(dma, capture(rs_do))
        if k >= 1: vm.issue("S%d" % (k + 3), 9)
        if k < 8:
            rs_rd(k + 1)
        else:
            a("s_nop 7")
            a("v_lshrrev_b32 v10, 4, v2")
            a("v_lshrrev_b32 v11, 2, v3")
            a("v_and_b32 v12, 3, v3")
            for n in range(2):
                G_ = RA + 8 + 4 * n
                for r in range(1, 4):
                    a("v_cmp_eq_u32 vcc, %d, v12" % r)
                    a("s_nop 1")
                    a("v_cndmask_b32 v%d, v%d, v%d, vcc" % (G_, G_, G_ + r))
            ML = 112
            for n in range(2):
                emit_ln_finish(a, RA + 4 * n, RA + 8 + 4 * n, 576, ML + 2 * n, ML + 2 * n + 1, 120)
                a("v_mov_b32 v%d, v%d" % (117 + 2 * n, ML + 2 * n + 1))
                a("v_sub_f32 v%d, 0, v%d" % (116 + 2 * n, ML + 2 * n))
            a("s_lshl_b32 s35, s3, 8")
            a("v_lshlrev_b32 v13, 3, v3")
            a("v_add_u32 v12, s35, v13")
            a("v_cmp_eq_u32 vcc, v10, v11")
            a("s_and_saveexec_b64 s[36:37], vcc")
            for n in range(2):
                a("ds_write_b64 v12, %s offset:%d" % (vr(116 + 2 * n, 2), RST + 128 * n))
            a("s_mov_b64 exec, s[36:37]")
            a("s_cmp_lg_u32 s23, 0")
            a("s_cbranch_scc1 %s_nost1" % name)
            a("s_lshl_b32 s35, s22, 7")
            a("s_lshl_b32 s36, s3, 5")
            a("s_add_u32 s35, s35, s36")
            a("s_lshl_b32 s35, s35, 3")
            a("s_add_u32 s35, s35, 0x%x" % STATS1)
            a("v_mov_b32 v11, 0x7ffffff0")
            a("v_cndmask_b32 v13, v11, v13, vcc")
            for n in range(2):
                a("buffer_store_dwordx2 %s, v13, s[12:15], s35 offen offset:%d" % (vr(ML + 2 * n, 2), 128 * n))
            a.label("%s_nost1" % name)
            mma_addr(9 % R)
            a("s_mov_b32 s33, 0")
            a("s_setprio 0")
        vm.wait(["S%d" % (k + 2)], "lgkmcnt(0)" if k == 8 else "")
        if k < 8: a("s_barrier")
    a("s_branch %s_mma" % name)
    a.label("%s_A0" % name)
    emit_code_prefetch(a, name)
    a("s_load_dwordx4 s[64:67], s[0:1], 8")
    a("s_load_dwordx2 s[76:77], s[0:1], 24")
    a("s_load_dwordx2 s[78:79], s[0:1], 64")
    a("s_waitcnt lgkmcnt(0)")
    srds_main()
    srd(a, 68, 66, 2048 * 576 * 2)
    a("s_mov_b32 s88, s64"); a("s_mov_b32 s89, s65")
    srd(a, 64, 88, 2048 * 576 * 2)
    srd(a, 72, 76, 576 * 8)
    a("s_mov_b32 s41, s2")
    emit_kv_loads(a)
    a("s_cmp_ge_u32 s2, 32")
    a("s_cbranch_scc1 %s_kv1" % name)
    a("s_add_u32 s41, s2, 256")
    emit_kv_loads(a, 128, 140, 148, 152, 153)
    a.label("%s_kv1" % name)
    loader_setup(); loader_setup2()
    a("s_mov_b32 s39, 0x%x" % KVT)
    a("s_waitcnt vmcnt(0)")
    a.label("%s_kv2" % name)
    emit_kv_compute(a, wait=False, store=False)
    a("buffer_store_dwordx4 v[120:123], v12, s[12:15], s39 offen sc1")
    a("buffer_store_dwordx4 v[124:127], v13, s[12:15], s39 offen sc1")
    a("s_cmp_lt_u32 s41, 256")
    a("s_cbranch_scc1 %s_kv3" % name)
    a("s_mov_b32 s41, 0")
    for n in range(11): a("v_mov_b32 v%d, v%d" % (16 + n, 128 + n))
    for n in range(8): a("v_mov_b32 v%d, v%d" % (32 + n, 140 + n))
    for n in range(4): a("v_mov_b32 v%d, v%d" % (44 + n, 148 + n))
    a("v_mov_b32 v56, v152"); a("v_mov_b32 v57, v153")
    a("s_branch %s_kv2" % name)
    a.label("%s_kv3" % name)
    mma_setup()
    stamp_setup(a, 1); stamp(a, 0)
    def gran_addr():
        a("v_lshrrev_b32 v10, 4, v2")
        a("s_lshl_b32 s36, s25, 1")
        a("v_add_u32 v11, s36, v10")
        a("v_and_b32 v11, 3, v11")
        a("v_lshl_add_u32 v11, v11, 4, v3")
        a("v_lshlrev_b32 v94, 8, v11")
        a("s_lshl_b32 s59, s22, 7")
        a("s_lshl_b32 s36, s24, 6")
        a("s_add_u32 s59, s59, s36")
        a("s_lshl_b32 s59, s59, 8")
        a("s_add_u32 s59, s59, 0x%x" % STATS2)
        a("s_lshl_b32 s36, s23, 1")
        a("s_add_u32 s36, s36, s25")
        a("s_lshl_b32 s36, s36, 3")
        a("s_add_u32 s58, s36, s59")
    gran_addr()
    a("v_mov_b32 v12, 0"); a("v_mov_b32 v13, 0x80000000")
    a("buffer_store_dwordx2 v[12:13], v94, s[12:15], s58 offen sc1")
    a("s_lshl_b32 s36, s22, 4")
    a("s_add_u32 s36, s36, s23")
    a("s_lshl_b32 s36, s36, 8")
    a("s_add_u32 s97, s36, 0x%x" % ZFLG)
    a("v_mov_b32 v10, %d" % LC)
    a("v_mov_b32 v12, 0"); a("v_mov_b32 v13, 0")
    a("s_mov_b64 exec, 1")
    a("buffer_store_dword v12, v12, s[12:15], s97 offen sc1")
    a("s_mov_b64 exec, -1")
    a("ds_write_b64 v10, v[12:13]")
    a("ds_write_b64 v10, v[12:13] offset:8")
    mma_addr(0)
    a("s_mov_b32 s33, 0")
    a("s_waitcnt lgkmcnt(0)")
    a("s_barrier")
    stamp(a, 1)
    a.label("%s_mma" % name)
    core.prime(0, core.reads(0, 0))
    trk.drain()
    nocs = [False]
    def mfmas(buf):
        L = []
        for ft in range(5):
            A = core.F(buf, ft)
            for tt in range(4 if ft < 4 else 2):
                c = core.accr(ft, tt); B = core.T(buf, tt)
                L.append(("v_mfma_f32_16x16x32_bf16 %s, %s, %s, %s" % (vr(c), vr(A), vr(B), vr(c)), list(range(A, A + 4)) + list(range(B, B + 4))))
            if not nocs[0]: L.append(("v_mfma_f32_16x16x32_bf16 %s, %s, %s, %s" % (vr(CS + 4 * ft), vr(A), vr(ONE), vr(CS + 4 * ft)), list(range(A, A + 4))))
        return L
    def phase(buf, pend):
        for (m, regs) in mfmas(buf):
            trk.need(regs)
            a(m)
            while pend:
                k, t = pend.pop(0)
                if k == "x":
                    a(t)
                    if t.startswith("s_"): continue
                else:
                    a(t[0]); trk.issue(t[1])
                break
        for k, t in pend:
            if k == "x": a(t)
            else: a(t[0]); trk.issue(t[1])
    def iteration(vw=True):
        if vw: a("s_waitcnt vmcnt(0)")
        a("s_barrier")
        rd = [("r", t) for t in core.reads(1, 1)]
        upd = ["s_add_u32 s27, s27, %d" % SLOT, "s_cmp_eq_u32 s27, %d" % (R * SLOT), "s_cselect_b32 s27, 0, s27"]
        tail = ["v_add_u32 v%d, s27, v%d" % (d, s_) for d, s_ in ((vTa[0], bTa[0]), (vF, bF), (vTb[0], bTb[0]), (vFh, bFh))]
        phase(0, rd[:1] + [("x", u) for u in upd] + rd[1:] + [("x", u) for u in tail])
        rd = [("r", t) for t in core.reads(0, 0)]
        tail = ["v_add_u32 v%d, s27, v%d" % (d, s_) for d, s_ in ((vTa[1], bTa[1]), (vTb[1], bTb[1]))] + ["s_add_u32 s33, s33, 1"]
        phase(1, rd + [("x", u) for u in tail])
    a.label("%s_cloop" % name)
    lb = len(a.lines); iteration(); st = copy.deepcopy(trk.out); del a.lines[lb:]; trk.out = copy.deepcopy(st)
    iteration()
    assert [sorted(x) for x in trk.out] == [sorted(x) for x in st]
    a("s_cmp_lt_u32 s33, 9")
    a("s_cbranch_scc1 %s_cloop" % name)
    trk.drain()
    stamp(a, 2)
    MR = 100; T = 72; ZP = 16
    def epi_in():
        gelu_consts(a)
        a("s_lshl_b32 s36, s24, 9")
        a("s_lshl_b32 s37, s25, 8")
        a("s_add_u32 s38, s36, s37")
        a("s_xor_b32 s37, s37, 256")
        a("s_add_u32 s39, s36, s37")
        a("v_lshlrev_b32 v10, 3, v3")
        a("v_add_u32 v11, s38, v10")
        a("ds_read_b64 %s, v11 offset:%d" % (vr(MR, 2), RST))
        a("ds_read_b64 %s, v11 offset:%d" % (vr(MR + 2, 2), RST + 128))
        a("v_add_u32 v11, s39, v10")
        a("ds_read_b64 %s, v11 offset:%d" % (vr(MR + 4, 2), RST))
        a("ds_read_b64 %s, v11 offset:%d" % (vr(MR + 6, 2), RST + 128))
        a("s_waitcnt lgkmcnt(0)")
    S = [108, 110, 52, 54]; Q = [109, 111, 53, 55]
    def gelu_ft(ft, stats):
        tts = range(4 if ft < 4 else 2)
        emit_fold_gelu(a, [(core.accr(ft, tt), CS + 4 * ft, MR + 2 * tt, ZP + 2 * tidx(ft, tt)) for tt in tts], T)
        if stats:
            for d in range(2):
                for tt in tts:
                    p = ZP + 2 * tidx(ft, tt) + d
                    a("v_dot2_f32_bf16 v%d, v%d, v%d, v%d" % (S[tt], p, ONE, S[tt]))
                    a("v_dot2_f32_bf16 v%d, v%d, v%d, v%d" % (Q[tt], p, p, Q[tt]))
    a("s_cmp_eq_u32 s98, 0")
    a("s_cbranch_scc1 %s_A1" % name)
    a("s_barrier")
    a("s_load_dwordx2 s[94:95], s[0:1], 80")
    a("s_load_dwordx2 s[92:93], s[0:1], 72")
    epi_in()
    srd(a, 76, 94, 2304 * 576 * 2)
    srd(a, 28, 92, 2048 * 2)
    a("v_and_b32 v0, 255, v0")
    for ft in range(5): gelu_ft(ft, False)
    Z1R = 200; BI = 236
    for r_ in range(36): a("v_mov_b32 v%d, v%d" % (Z1R + r_, ZP + r_))
    stamp(a, 3)
    a("s_mov_b32 s42, s2")
    emit_wot_loads(a, 100, 112, 720, 3)
    a("s_lshl_b32 s36, s22, 7")
    a("s_lshl_b32 s37, s24, 6")
    a("s_add_u32 s36, s36, s37")
    a("v_lshlrev_b32 v11, 1, v3")
    a("s_lshl_b32 s37, s25, 6")
    a("s_lshl_b32 s38, s36, 1")
    a("s_add_u32 s39, s38, s37")
    a("s_xor_b32 s37, s37, 64")
    a("s_add_u32 s36, s38, s37")
    a("buffer_load_ushort v96, v11, s[28:31], s39 offen")
    a("buffer_load_ushort v97, v11, s[28:31], s39 offen offset:32")
    a("buffer_load_ushort v98, v11, s[28:31], s36 offen")
    a("buffer_load_ushort v99, v11, s[28:31], s36 offen offset:32")
    for r in range(ACC, ACC + 72): a("v_mov_b32 v%d, 0" % r)
    mma_addr(0)
    a("s_mov_b32 s33, 0")
    stamp(a, 4)
    a("s_barrier")
    stamp(a, 5)
    core.prime(0, core.reads(0, 0))
    trk.drain()
    nocs[0] = True
    a.label("%s_gloop" % name)
    lb = len(a.lines); iteration(False); st = copy.deepcopy(trk.out); del a.lines[lb:]; trk.out = copy.deepcopy(st)
    iteration(False)
    assert [sorted(x) for x in trk.out] == [sorted(x) for x in st]
    a("s_cmp_lg_u32 s33, 3")
    a("s_cbranch_scc1 %s_ghk" % name)
    a("s_waitcnt vmcnt(0)")
    for n in range(3):
        a("buffer_store_dwordx4 %s, v%d, s[12:15], s40 offen" % (vr(100 + 4 * n), 112 + n))
    for tt in range(4): a("v_lshlrev_b32 v%d, 16, v%d" % (BI + 2 * tt, 96 + tt))
    a.label("%s_ghk" % name)
    a("s_cmp_lt_u32 s33, 32")
    a("s_cbranch_scc1 %s_gloop" % name)
    trk.drain()
    stamp(a, 6)
    G3.emit_k2_epilogue(a, core, Z1R, BI)
    stamp(a, 7)
    G.stamp_rt(a, 1)
    a("s_branch %s_end" % name)
    a.label("%s_A1" % name)
    a("s_setprio 2")
    vmA = VmTracker(a)
    PB = 132
    def aux_head():
        epi_in()
        for tt in range(4):
            a("v_mov_b32 v%d, 0" % S[tt]); a("v_mov_b32 v%d, 0" % Q[tt])
    def aux_pub():
        a("s_nop 2")
        emit_xg_reduce(a, S + Q, 72)
        a("v_lshrrev_b32 v10, 4, v2")
        for g in range(1, 4):
            a("v_cmp_eq_u32 vcc, %d, v10" % g)
            a("s_nop 1")
            a("v_cndmask_b32 v%d, v%d, v%d, vcc" % (S[0], S[0], S[g]))
            a("v_cndmask_b32 v%d, v%d, v%d, vcc" % (Q[0], Q[0], Q[g]))
        a("v_and_b32 v%d, 0x7fffffff, v%d" % (Q[0], Q[0]))
        a("buffer_store_dwordx2 v[%d:%d], v94, s[12:15], s58 offen sc1" % (S[0], Q[0]))
    chunks = [capture(aux_head) + capture(gelu_ft, 0, True), capture(gelu_ft, 1, True), capture(gelu_ft, 2, True),
              capture(gelu_ft, 3, True), capture(gelu_ft, 4, True) + capture(aux_pub)]
    KD = 172
    for k in range(9, 18):
        a("s_barrier")
        if k == 9:
            a("s_cmp_lg_u32 s3, 0")
            a("s_cbranch_scc1 %s_nosig" % name)
            a("v_mov_b32 v10, 1")
            a("s_lshl_b32 s36, s22, 2")
            a("v_mov_b32 v11, s36")
            a("s_mov_b64 exec, 1")
            a("buffer_atomic_add v10, v11, s[60:63], 0 offen sc1")
            a("s_mov_b64 exec, -1")
            a.label("%s_nosig" % name)
        g = k + 3
        dma = capture(lambda: (issueT(g), issueF(g))) if g < 18 else []
        comp = chunks[k - 9] if k - 9 < len(chunks) else []
        interleave(dma, comp)
        if k == 13: vmA.issue("pub", 1)
        if g < 18: vmA.issue("S%d" % g, 9)
        if k == 14:
            srd(a, 92, 78, 2048 * 2048 * 2)
            a("v_lshrrev_b32 v10, 4, v2")
            a("v_lshlrev_b32 v10, 12, v10")
            a("v_lshl_add_u32 v10, v3, 4, v10")
            a("s_lshl_b32 s40, s22, 7")
            a("s_lshl_b32 s36, s3, 5")
            a("s_add_u32 s40, s40, s36")
            a("s_lshl_b32 s40, s40, 12")
            a("s_lshl_b32 s36, s23, 8")
            a("s_add_u32 s40, s40, s36")
            for n in range(8):
                a("buffer_load_dwordx4 v[200:203], v10, s[92:95], s40 offen")
                if n < 7: a("s_add_u32 s40, s40, 16384")
            vmA.issue("wp", 8)
            a("s_lshl_b32 s36, s22, 2")
            a("v_mov_b32 v199, s36")
            a("buffer_load_dword v198, v199, s[60:63], 0 offen sc1"); vmA.issue("cnt", 1)
        if k + 2 < 18 and k + 2 >= 12:
            vmA.wait(["S%d" % (k + 2)])
    a("s_barrier")
    stamp(a, 3)
    a("s_load_dwordx4 s[88:91], s[0:1], 32")
    a("v_lshrrev_b32 v10, 4, v2")
    a("v_lshlrev_b32 v95, 8, v3")
    a("v_lshl_add_u32 v95, v10, 6, v95")
    a("s_lshl_b32 s33, s25, 13")
    a("s_add_u32 s52, s59, s33")
    a("s_xor_b32 s33, s33, 8192")
    a("s_add_u32 s53, s59, s33")
    a("s_add_u32 s42, s52, 4096")
    a("s_add_u32 s43, s53, 4096")
    Z2 = ZP
    a("s_waitcnt vmcnt(0)")
    GB = [128, 144, 160, 176]
    a("v_mov_b32 v4, v95")
    def gather():
        for tt in range(4):
            for q in range(4):
                a("buffer_load_dwordx4 %s, v4, s[12:15], s%d offen offset:%d sc1" % (vr(GB[tt] + 4 * q), (52, 42, 53, 43)[tt], 16 * q))
    gather()
    a("s_mov_b32 s40, 0")
    a("s_waitcnt vmcnt(0)")
    a.label("%s_chk" % name)
    a("v_subrev_u32 v11, 16, v198")
    for tt in range(4):
        for r in range(GB[tt] + 1, GB[tt] + 16, 4):
            a("v_or3_b32 v11, v11, v%d, v%d" % (r, r + 2))
    a("v_cmp_gt_i32 vcc, 0, v11")
    a("s_add_u32 s40, s40, 1")
    a("s_cmp_gt_u32 s40, %d" % SPIN_MAX)
    a("s_cbranch_scc1 %s_ok" % name)
    a("s_cbranch_vccz %s_ok" % name)
    a("s_sleep 32")
    a("buffer_load_dword v198, v199, s[60:63], 0 offen sc1")
    a("s_waitcnt vmcnt(0)")
    gather()
    a("s_waitcnt vmcnt(0)")
    a("s_branch %s_chk" % name)
    a.label("%s_ok" % name)
    stamp(a, 5)
    for tt in range(4):
        b = GB[tt]
        for st_ in (8, 4, 2):
            for q in range(0, st_, 2):
                a("v_pk_add_f32 %s, %s, %s" % (vr(b + q, 2), vr(b + q, 2), vr(b + q + st_, 2)))
    emit_xg_reduce(a, [GB[tt] + e for tt in range(4) for e in range(2)], 72)
    for tt in range(4):
        b = GB[tt]
        emit_ln_finish(a, b, b + 1, 2304, b + 2, MR + 2 * tt, b + 4)
        a("v_mul_f32 v%d, -v%d, v%d" % (MR + 2 * tt + 1, b + 2, MR + 2 * tt))
    a("v_lshrrev_b32 v10, 4, v2")
    a("v_lshrrev_b32 v11, 2, v2"); a("v_and_b32 v11, 1, v11"); a("v_lshlrev_b32 v11, 4, v11")
    a("v_lshrrev_b32 v5, 3, v2"); a("v_and_b32 v5, 1, v5"); a("v_lshl_add_u32 v11, v5, 2, v11")
    a("v_and_b32 v5, 3, v2"); a("v_add_u32 v11, v11, v5")
    a("v_mul_u32_u24 v11, 288, v11")
    a("v_lshrrev_b32 v5, 1, v10"); a("v_lshl_add_u32 v11, v5, 4, v11")
    a("v_and_b32 v5, 1, v10")
    a("v_lshl_add_u32 v6, v5, 5, v11")
    a("v_mul_u32_u24 v5, 2304, v5")
    a("v_add_u32 v9, v11, v5")
    a("s_lshl_b32 s33, s23, 5")
    a("s_lshl_b32 s36, s22, 1")
    a("s_add_u32 s33, s33, s36")
    a("s_add_u32 s33, s33, s24")
    a("s_mul_i32 s33, s33, 18432")
    if ZIMG: a("s_add_u32 s33, s33, 0x%x" % ZIMG)
    a("s_mul_i32 s36, s25, 9216")
    a("s_add_u32 s37, s33, s36")
    a("s_xor_b32 s36, s36, 9216")
    a("s_add_u32 s38, s33, s36")
    a("s_add_u32 s39, s37, 128")
    a("s_mul_i32 s36, s25, 160")
    a("s_add_u32 s37, s37, s36")
    a("s_add_u32 s38, s38, s36")
    def norm_pair(nA, ttA, nB, ttB, O):
        for q, (n, tt) in enumerate(((nA, ttA), (nB, ttB))):
            for d in range(2):
                z = Z2 + 2 * n + d; t = T + 4 * q + 2 * d
                a("v_lshlrev_b32 v%d, 16, v%d" % (t, z))
                a("v_and_b32 v%d, 0xffff0000, v%d" % (t + 1, z))
        for q, (n, tt) in enumerate(((nA, ttA), (nB, ttB))):
            for d in range(2):
                t = T + 4 * q + 2 * d
                a("v_pk_fma_f32 %s, %s, %s, %s op_sel:[0,0,1] op_sel_hi:[1,0,1]" % (vr(t, 2), vr(t, 2), vr(MR + 2 * tt, 2), vr(MR + 2 * tt, 2)))
        for q in range(2):
            for d in range(2):
                t = T + 4 * q + 2 * d
                a("v_cvt_pk_bf16_f32 v%d, v%d, v%d" % (O + 2 * q + d, t, t + 1))
        a("s_nop 1")
        a("v_permlane16_swap_b32 v%d, v%d" % (O, O + 2))
        a("v_permlane16_swap_b32 v%d, v%d" % (O + 1, O + 3))
    cnt = 0
    for pr in range(2):
        for tt in range(4):
            O = 200 + 4 * cnt; cnt += 1
            norm_pair(tidx(2 * pr, tt), tt, tidx(2 * pr + 1, tt), tt, O)
            a("s_nop 0")
            a("buffer_store_dwordx4 %s, v6, s[12:15], s%d offen offset:%d" % (vr(O), 37 if tt < 2 else 38, (tt & 1) * 2304 + 64 * pr) + " sc1")
    O = 200 + 4 * cnt
    norm_pair(16, 0, 17, 1, O)
    a("s_nop 0")
    a("buffer_store_dwordx4 %s, v9, s[12:15], s39 offen sc1" % vr(O))
    stamp(a, 6)
    a("s_setprio 3")
    srd(a, 8, 78, 2048 * 2048 * 2)
    a("v_lshrrev_b32 v3, 3, v2")
    a("s_lshl_b32 s24, s3, 5")
    a("v_add_u32 v3, s24, v3")
    a("v_and_b32 v4, 7, v2")
    a("v_lshrrev_b32 v6, 4, v2")
    a("v_xor_b32 v6, v6, v4")
    a("v_lshlrev_b32 v6, 4, v6")
    a("v_lshl_add_u32 v10, v3, 12, v6")
    a("v_xor_b32 v11, 64, v10")
    a("v_add_u32 v11, %d, v11" % (32768 - 1024))
    a("v_add_u32 v12, %d, v10" % (2 * (32768 - 1024)))
    a("v_add_u32 v13, %d, v11" % (2 * (32768 - 1024)))
    a("v_lshlrev_b32 v14, 4, v2")
    a("s_lshl_b32 s26, s22, 19")
    a("s_mul_i32 s27, s23, %d" % (32 * 18432))
    a("s_lshl_b32 s24, s3, 12")
    a("s_add_u32 s27, s27, s24")
    if ZIMG: a("s_add_u32 s27, s27, 0x%x" % ZIMG)
    a("s_lshl_b32 s25, s3, 9")
    a("s_sub_u32 s32, s25, s24")
    a("s_add_u32 s32, s32, 16384")
    a("s_add_u32 s24, s24, %d" % RB)
    a("s_waitcnt vmcnt(0) lgkmcnt(0)")
    a("v_mov_b32 v26, %d" % LC)
    a("v_mov_b32 v27, 1")
    a("s_mov_b64 exec, 1")
    a("ds_add_rtn_u32 v28, v26, v27")
    a("s_waitcnt lgkmcnt(0)")
    a("v_readfirstlane_b32 s36, v28")
    a("s_cmp_lg_u32 s36, 3")
    a("s_cbranch_scc1 %s_nozs" % name)
    a("v_mov_b32 v28, 0")
    a("buffer_store_dword v27, v28, s[12:15], s97 offen sc1")
    a.label("%s_nozs" % name)
    a("s_mov_b64 exec, -1")
    stamp(a, 7)
    srd(a, 16, 88, 576 * 2048 * 2)
    srd(a, 84, 90, 576 * 2)
    for g in range(4):
        a("s_add_u32 s35, s24, %d" % (g * SLOT))
        a("s_mov_b32 m0, s35")
        a("s_add_u32 s36, s26, %d" % (128 * g))
        for n in range(4):
            a("buffer_load_dwordx4 v%d, s[8:11], s36 offen offset:%d lds" % (10 + n, n * 1024))
    a("s_mov_b32 s34, 0")
    a("s_cmp_lg_u32 s3, 0")
    a("s_cbranch_scc1 %s_pl" % name)
    a("v_and_b32 v28, 15, v2")
    a("v_lshlrev_b32 v30, 2, v28")
    a("v_lshlrev_b32 v28, 12, v28")
    a("s_lshl_b32 s52, s23, 8")
    a("s_add_u32 s52, s52, 0x%x" % ZFLG)
    a.label("%s_pz0" % name)
    a("buffer_load_dword v31, v30, s[60:63], 0 offen sc1")
    a("s_add_u32 s34, s34, 1")
    a("s_waitcnt vmcnt(0)")
    a("v_cmp_gt_u32 vcc, 16, v31")
    a("s_cmp_gt_u32 s34, %d" % SPIN_MAX)
    a("s_cbranch_scc1 %s_pz" % name)
    a("s_cbranch_vccz %s_pz" % name)
    a("s_sleep 32")
    a("s_branch %s_pz0" % name)
    a.label("%s_pz" % name)
    a("buffer_load_dword v29, v28, s[12:15], s52 offen sc1")
    a("s_add_u32 s34, s34, 1")
    a("s_waitcnt vmcnt(0)")
    a("v_cmp_ne_u32 vcc, 1, v29")
    a("s_cmp_gt_u32 s34, %d" % SPIN_MAX)
    a("s_cbranch_scc1 %s_pzx" % name)
    a("s_cbranch_vccz %s_pzx" % name)
    a("s_sleep 8")
    a("s_branch %s_pz" % name)
    a.label("%s_pzx" % name)
    a("v_mov_b32 v27, 1")
    a("ds_write_b32 v26, v27 offset:4")
    a("s_branch %s_pgo" % name)
    a.label("%s_pl" % name)
    a("ds_read_b32 v27, v26 offset:4")
    a("s_add_u32 s34, s34, 1")
    a("s_waitcnt lgkmcnt(0)")
    a("v_readfirstlane_b32 s36, v27")
    a("s_cmp_gt_u32 s34, %d" % (SPIN_MAX * 20))
    a("s_cbranch_scc1 %s_pgo" % name)
    a("s_cmp_lg_u32 s36, 0")
    a("s_cbranch_scc1 %s_pgo" % name)
    a("s_sleep 2")
    a("s_branch %s_pl" % name)
    a.label("%s_pgo" % name)
    stamp(a, 8)
    for g in range(4):
        a("s_add_u32 s35, s24, %d" % (g * SLOT + TREG))
        a("s_mov_b32 m0, s35")
        a("s_add_u32 s36, s27, %d" % (18432 * g))
        a("s_add_u32 s37, s36, s32")
        for n in range(4):
            a("buffer_load_dwordx4 v14, s[12:15], s36 offen offset:%d sc1 lds" % (n * 1024))
        a("s_add_u32 s35, s35, s32")
        a("s_mov_b32 m0, s35")
        a("s_mov_b64 exec, 0xffffffff")
        a("buffer_load_dwordx4 v14, s[12:15], s37 offen sc1 lds")
        a("s_mov_b64 exec, -1")
    a("s_add_u32 s26, s26, 512")
    a("s_add_u32 s27, s27, %d" % (4 * 18432))
    a("s_mov_b32 s33, 0")
    a("s_lshl_b32 s43, s2, 2")
    a("s_add_u32 s43, s43, s3")
    a("s_and_b32 s53, s43, 1")
    a("s_sub_u32 s36, s43, 448")
    a("s_lshr_b32 s37, s43, 1")
    a("s_cmp_ge_u32 s43, 896")
    a("s_cselect_b32 s43, s36, s37")
    a("s_cselect_b32 s53, 2, s53")
    a("s_waitcnt vmcnt(15)")
    a("s_barrier")
    a("s_waitcnt vmcnt(10)")
    a("s_barrier")
    a("s_waitcnt vmcnt(5)")
    a("s_barrier")
    a("s_mov_b32 s34, 4")
    def issue2():
        a("s_add_u32 s35, s33, s24")
        a("s_mov_b32 m0, s35")
        a("s_add_u32 s36, s35, %d" % TREG)
        for n in range(4):
            a("buffer_load_dwordx4 v%d, s[8:11], s26 offen offset:%d lds" % (10 + n, n * 1024))
        a("s_mov_b32 m0, s36")
        a("s_add_u32 s37, s27, s32")
        for n in range(4):
            a("buffer_load_dwordx4 v14, s[12:15], s27 offen offset:%d sc1 lds" % (n * 1024))
        a("s_add_u32 s36, s36, s32")
        a("s_mov_b32 m0, s36")
        a("s_mov_b64 exec, 0xffffffff")
        a("buffer_load_dwordx4 v14, s[12:15], s37 offen sc1 lds")
        a("s_mov_b64 exec, -1")
        a("s_add_u32 s26, s26, 128")
        a("s_add_u32 s27, s27, 18432")
        a("s_add_u32 s33, s33, %d" % SLOT)
        a("s_cmp_eq_u32 s33, %d" % (R * SLOT))
        a("s_cselect_b32 s33, 0, s33")
    a.label("%s_lloop" % name)
    issue2()
    a("s_cmp_eq_u32 s34, 18")
    a("s_cbranch_scc1 %s_hk1" % name)
    a("s_cmp_eq_u32 s34, 21")
    a("s_cbranch_scc1 %s_hk2" % name)
    a("s_waitcnt vmcnt(9)")
    a.label("%s_lcont" % name)
    a("s_barrier")
    a("s_add_u32 s34, s34, 1")
    a("s_cmp_lt_u32 s34, 32")
    a("s_cbranch_scc1 %s_lloop" % name)
    a("s_branch %s_ldone" % name)
    a.label("%s_hk1" % name)
    a("v_and_b32 v28, 15, v2")
    a("v_lshlrev_b32 v28, 2, v28")
    a("buffer_load_dword v29, v28, s[60:63], 0 offen sc1")
    a("s_waitcnt vmcnt(10)")
    a("s_branch %s_lcont" % name)
    a.label("%s_hk2" % name)
    a("s_mov_b32 s52, 0")
    a.label("%s_hk2l" % name)
    a("v_cmp_gt_u32 vcc, 16, v29")
    a("s_add_u32 s52, s52, 1")
    a("s_cmp_gt_u32 s52, %d" % SPIN_MAX)
    a("s_cbranch_scc1 %s_hk2g" % name)
    a("s_cbranch_vccz %s_hk2g" % name)
    a("s_sleep 16")
    a("buffer_load_dword v29, v28, s[60:63], 0 offen sc1")
    a("s_waitcnt vmcnt(0)")
    a("s_branch %s_hk2l" % name)
    a.label("%s_hk2g" % name)
    nconv = emit_conv_loads(a, " sc1")
    a("s_waitcnt vmcnt(%d)" % (9 + nconv))
    a("s_branch %s_lcont" % name)
    a.label("%s_ldone" % name)
    a("s_waitcnt vmcnt(0)")
    a("s_barrier")
    a("s_mov_b32 s26, s53")
    a("s_and_b32 s27, s3, 1")
    a("s_mul_i32 s27, s27, %d" % CJ_SIZE)
    a("s_lshr_b32 s36, s3, 1")
    a("s_mul_i32 s36, s36, %d" % SLOT)
    a("s_add_u32 s27, s27, s36")
    a("s_add_u32 s27, s27, %d" % RB)
    def mid():
        a("s_barrier")
        a("s_setprio 0")
    sv = set(DBG); DBG.discard("stamp")
    emit_conv_job(a, name, mid)
    DBG.update(sv)
    G.stamp_rt(a, 1)
    a.label("%s_end" % name)
    a("s_endpgm")
    return a.text(), kernel_desc(name, 256, 256), (name, 256, 512, LDSB)

def gen_k1i(name="k1_kernel", R=4):
    a = Asm()
    RB = 4096; SLOT = 34816; TREG = 16384; FS = 288; RST = 0
    LDSB = RB + R * SLOT
    def capture(f, *args):
        lb = len(a.lines); f(*args); out = a.lines[lb:]; del a.lines[lb:]; return out
    kernel_begin(a, name)
    a("s_load_dwordx2 s[80:81], s[0:1], 0")
    a("s_load_dwordx2 s[4:5], s[0:1], 56")
    a("s_load_dwordx2 s[6:7], s[0:1], 104")
    a("s_load_dwordx2 s[18:19], s[0:1], 96")
    a("s_cmp_ge_u32 s2, 256")
    a("s_cbranch_scc1 %s_end" % name)
    a("v_lshrrev_b32 v1, 6, v0")
    a("v_and_b32 v2, 63, v0")
    a("v_readfirstlane_b32 s3, v1")
    G2.tile_ij(a)
    a("s_lshr_b32 s98, s3, 2")
    a("s_mov_b32 s54x, 0".replace("s54x", "s99"))
    a("s_and_b32 s3, s3, 3")
    a("s_lshr_b32 s24, s3, 1")
    a("s_and_b32 s25, s3, 1")
    a("v_and_b32 v3, 15, v2")
    VT = 204; VF = 208
    def loader_setup():
        a("v_lshrrev_b32 v5, 3, v2")
        a("v_and_b32 v4, 7, v2")
        a("s_lshl_b32 s36, s3, 5")
        a("v_add_u32 v5, s36, v5")
        a("v_lshrrev_b32 v7, 4, v2")
        a("v_xor_b32 v7, v7, v4")
        a("v_mul_u32_u24 v6, 1152, v5")
        a("v_lshl_add_u32 v%d, v7, 4, v6" % VT)
        a("v_xor_b32 v%d, 64, v%d" % (VT + 1, VT))
        a("v_add_u32 v%d, %d, v%d" % (VT + 1, 9216 - 1024, VT + 1))
        a("v_add_u32 v%d, %d, v%d" % (VT + 2, 2 * (9216 - 1024), VT))
        a("v_add_u32 v%d, %d, v%d" % (VT + 3, 2 * (9216 - 1024), VT + 1))
        a("s_lshl_b32 s84, s3, 12")
        a("s_add_u32 s84, s84, %d" % RB)
        a("s_lshl_b32 s85, s3, 9")
        a("s_add_u32 s85, s85, %d" % (RB + TREG + 16384))
    def loader_setup2():
        for n in range(5):
            if n < 4:
                a("s_lshl_b32 s36, s3, 8")
                a("s_add_u32 s36, s36, %d" % (64 * n))
            else:
                a("s_lshl_b32 s36, s3, 5")
                a("s_add_u32 s36, s36, 1024")
            a("v_add_u32 v6, s36, v2")
            a("v_mul_u32_u24 v7, 3641, v6")
            a("v_lshrrev_b32 v7, 16, v7")
            a("v_mul_u32_u24 v8, 18, v7")
            a("v_sub_u32 v8, v6, v8")
            a("v_and_b32 v9, 35, v7")
            a("v_bfe_u32 v6, v7, 2, 2")
            a("v_lshl_add_u32 v9, v6, 3, v9")
            a("v_bfe_u32 v6, v7, 4, 1")
            a("v_lshl_add_u32 v9, v6, 2, v9")
            a("v_mul_u32_u24 v9, 9216, v9")
            a("v_lshl_add_u32 v%d, v8, 4, v9" % (VF + n))
            if 0 < n < 4: a("v_subrev_u32 v%d, %d, v%d" % (VF + n, 1024 * n, VF + n))
    def issueT(g):
        st = g % 9
        a("s_add_u32 s86, s84, %d" % ((g % R) * SLOT))
        a("s_mov_b32 m0, s86")
        a("s_add_u32 s87, s82, %d" % (128 * st))
        for n in range(4):
            a("buffer_load_dwordx4 v%d, s[28:31], s87 offen offset:%d lds" % (VT + n, 1024 * n))
    def issueF(g):
        st = g % 9
        a("s_add_u32 s86, s84, %d" % ((g % R) * SLOT + TREG))
        a("s_mov_b32 m0, s86")
        a("s_add_u32 s87, s83, %d" % (64 * 9216 * st + (4608 if g < 9 else 0)))
        for n in range(4):
            a("buffer_load_dwordx4 v%d, s[8:11], s87 offen offset:%d lds" % (VF + n, 1024 * n))
        a("s_add_u32 s86, s85, %d" % ((g % R) * SLOT))
        a("s_mov_b32 m0, s86")
        a("s_mov_b64 exec, 0xffffffff")
        a("buffer_load_dwordx4 v%d, s[8:11], s87 offen lds" % (VF + 4))
        a("s_mov_b64 exec, -1")
    def srds_main():
        srd(a, 28, 80, 2048 * 576 * 2)
        srd(a, 8, 4, 576 * 4608 * 2)
        srd(a, 12, 6, WS_BYTES)
        srd(a, 60, 18, 256)
        a("s_mul_i32 s82, s22, %d" % (128 * 1152))
        a("s_mul_i32 s83, s23, 288")
    ACC = 128; FB = [16, 52]; CS = 216; ONE = 236
    vTa = [4, 5]; vTb = [6, 7]; vF = 8; vFh = 9
    bTa = [88, 89]; bTb = [90, 91]; bF = 92; bFh = 93
    def mma_setup():
        a("v_lshrrev_b32 v10, 4, v2")
        a("v_lshrrev_b32 v11, 1, v3")
        a("v_xor_b32 v10, v10, v11")
        a("v_lshlrev_b32 v10, 4, v10")
        a("v_lshl_add_u32 v10, v3, 7, v10")
        a("s_lshl_b32 s26, s24, 13")
        a("s_add_u32 s26, s26, %d" % RB)
        a("v_add_u32 v10, s26, v10")
        a("s_lshl_b32 s26, s25, 12")
        a("v_add_u32 v%d, s26, v10" % bTa[0])
        a("s_xor_b32 s26, s26, 4096")
        a("v_add_u32 v%d, s26, v10" % bTb[0])
        a("v_xor_b32 v%d, 64, v%d" % (bTa[1], bTa[0]))
        a("v_xor_b32 v%d, 64, v%d" % (bTb[1], bTb[0]))
        a("v_lshrrev_b32 v10, 2, v2")
        a("v_mul_u32_u24 v10, %d, v10" % FS)
        a("v_and_b32 v11, 3, v2")
        a("v_lshl_add_u32 v10, v11, 3, v10")
        a("v_add_u32 v10, %d, v10" % (RB + TREG))
        a("s_mul_i32 s26, s25, 160")
        a("v_add_u32 v%d, s26, v10" % bF)
        a("v_add_u32 v%d, 128, v10" % bFh)
        for r in range(ACC, ACC + 72): a("v_mov_b32 v%d, 0" % r)
        for r in range(CS, CS + 20): a("v_mov_b32 v%d, 0" % r)
        for r in range(ONE, ONE + 4): a("v_mov_b32 v%d, 0x3f803f80" % r)
    def mma_addr(slot):
        a("s_mov_b32 s27, %d" % (slot * SLOT))
        for d, s_ in ((vTa[0], bTa[0]), (vTb[0], bTb[0]), (vTa[1], bTa[1]), (vTb[1], bTb[1]), (vF, bF), (vFh, bFh)):
            a("v_add_u32 v%d, s27, v%d" % (d, s_))
    core = G.Core(a, ACC, FB[0], FB[1], FS, TREG, vTa, vTb, vF, vFh)
    trk = core.trk
    a("s_cmp_eq_u32 s98, 0")
    a("s_cbranch_scc1 %s_A0" % name)
    a("s_setprio 3")
    loader_setup()
    a("s_waitcnt lgkmcnt(0)")
    srds_main()
    vm = VmTracker(a)
    def issue(g, vmx):
        issueT(g); issueF(g); vmx.issue("S%d" % g, 9)
    issueT(0)
    loader_setup2()
    issueF(0); vm.issue("S0", 9)
    issue(1, vm); issue(2, vm); issue(3, vm)
    a("s_add_u32 s3, s3, 4"); stamp_setup(a, 1); stamp(a, 0); a("s_sub_u32 s3, s3, 4")
    for r in range(ONE, ONE + 4): a("v_mov_b32 v%d, 0x3f803f80" % r)
    RA = 96; XB = 112
    for r in range(RA, RA + 16): a("v_mov_b32 v%d, 0" % r)
    a("v_lshrrev_b32 v10, 4, v2")
    a("v_lshrrev_b32 v11, 1, v3")
    a("v_xor_b32 v10, v10, v11")
    a("v_lshlrev_b32 v10, 4, v10")
    a("v_lshl_add_u32 v10, v3, 7, v10")
    a("v_add_u32 v12, s84, v10")
    a("v_xor_b32 v13, 64, v12")
    def rs_rd(g):
        a("v_add_u32 v10, %d, v12" % ((g % R) * SLOT))
        a("v_add_u32 v11, %d, v13" % ((g % R) * SLOT))
        for h in range(2):
            for n in range(2):
                a("ds_read_b128 %s, v%d offset:%d" % (vr(XB + 8 * h + 4 * n), 10 + h, 2048 * n))
    def rs_do():
        for h in range(2):
            for n in range(2):
                x = XB + 8 * h + 4 * n
                a("v_mfma_f32_16x16x32_bf16 %s, %s, %s, %s" % (vr(RA + 4 * n), vr(ONE), vr(x), vr(RA + 4 * n)))
                a("v_mfma_f32_16x16x32_bf16 %s, %s, %s, %s" % (vr(RA + 8 + 4 * n), vr(x), vr(x), vr(RA + 8 + 4 * n)))
    def interleave(dma, comp, vmx=None):
        groups = []; cur = []
        for l in dma:
            cur.append(l)
            if "buffer_load" in l and not any("exec, 0xffffffff" in x for x in cur[-2:]):
                groups.append(cur); cur = []
            elif "exec, -1" in l:
                groups.append(cur); cur = []
        if cur: groups.append(cur)
        ns = max(1, len(groups))
        per = (len(comp) + ns - 1) // ns
        for g in groups:
            a.lines.extend(g)
            a.lines.extend(comp[:per]); comp = comp[per:]
        a.lines.extend(comp)
    vm.wait(["S0"])
    a("s_barrier")
    stamp(a, 1)
    rs_rd(0)
    vm.wait(["S1"])
    a("s_barrier")
    for k in range(9):
        a("s_waitcnt lgkmcnt(0)")
        dma = capture(lambda: (issueT(k + 3), issueF(k + 3))) if (k >= 1 and k + 3 < 9) else []
        interleave(dma, capture(rs_do))
        if k >= 1 and k + 3 < 9: vm.issue("S%d" % (k + 3), 9)
        if k < 8:
            rs_rd(k + 1)
        else:
            a("s_nop 7")
            a("v_lshrrev_b32 v10, 4, v2")
            a("v_lshrrev_b32 v11, 2, v3")
            a("v_and_b32 v12, 3, v3")
            for n in range(2):
                G_ = RA + 8 + 4 * n
                for r in range(1, 4):
                    a("v_cmp_eq_u32 vcc, %d, v12" % r)
                    a("s_nop 1")
                    a("v_cndmask_b32 v%d, v%d, v%d, vcc" % (G_, G_, G_ + r))
            ML = 112
            for n in range(2):
                emit_ln_finish(a, RA + 4 * n, RA + 8 + 4 * n, 576, ML + 2 * n, ML + 2 * n + 1, 120)
                a("v_mov_b32 v%d, v%d" % (117 + 2 * n, ML + 2 * n + 1))
                a("v_sub_f32 v%d, 0, v%d" % (116 + 2 * n, ML + 2 * n))
            a("s_lshl_b32 s35, s3, 8")
            a("v_lshlrev_b32 v13, 3, v3")
            a("v_add_u32 v12, s35, v13")
            a("v_cmp_eq_u32 vcc, v10, v11")
            a("s_and_saveexec_b64 s[36:37], vcc")
            for n in range(2):
                a("ds_write_b64 v12, %s offset:%d" % (vr(116 + 2 * n, 2), RST + 128 * n))
            a("s_mov_b64 exec, s[36:37]")
            a("s_cmp_lg_u32 s23, 0")
            a("s_cbranch_scc1 %s_nost1" % name)
            a("s_lshl_b32 s35, s22, 7")
            a("s_lshl_b32 s36, s3, 5")
            a("s_add_u32 s35, s35, s36")
            a("s_lshl_b32 s35, s35, 3")
            a("s_add_u32 s35, s35, 0x%x" % STATS1)
            a("v_mov_b32 v11, 0x7ffffff0")
            a("v_cndmask_b32 v13, v11, v13, vcc")
            for n in range(2):
                a("buffer_store_dwordx2 %s, v13, s[12:15], s35 offen offset:%d" % (vr(ML + 2 * n, 2), 128 * n))
            a.label("%s_nost1" % name)
        if k < 8:
            vm.wait(["S%d" % (k + 2)])
            a("s_barrier")
    a("s_waitcnt lgkmcnt(0)")
    a("s_barrier")
    a("s_load_dwordx4 s[64:67], s[0:1], 8")
    a("s_load_dwordx2 s[76:77], s[0:1], 24")
    a("s_load_dwordx2 s[90:91], s[0:1], 64")
    a("s_mul_i32 s36, s3, 13312")
    a("s_add_u32 s36, s36, %d" % RB)
    a("v_lshlrev_b32 v10, 4, v2")
    a("v_add_u32 v11, s36, v10")
    a("s_waitcnt lgkmcnt(0)")
    srd(a, 68, 66, 2048 * 576 * 2)
    a("s_mov_b32 s88, s64"); a("s_mov_b32 s89, s65")
    srd(a, 64, 88, 2048 * 576 * 2)
    srd(a, 72, 76, 576 * 8)
    srd(a, 92, 90, 2048 * 2048 * 2)
    a("s_barrier")
    n_ = 0
    for ft in range(4):
        for tt in range(2):
            a("ds_read_b128 %s, v11 offset:%d" % (vr(core.accr(ft, tt)), 1024 * n_)); n_ += 1
    for ft in range(4):
        a("ds_read_b128 %s, v11 offset:%d" % (vr(CS + 4 * ft), 1024 * n_)); n_ += 1
    a("s_branch %s_epi" % name)
    a.label("%s_A0" % name)
    emit_code_prefetch(a, name)
    a("s_load_dwordx4 s[64:67], s[0:1], 8")
    a("s_load_dwordx2 s[76:77], s[0:1], 24")
    a("s_load_dwordx2 s[90:91], s[0:1], 64")
    mma_setup()
    a("s_waitcnt lgkmcnt(0)")
    srds_main()
    srd(a, 68, 66, 2048 * 576 * 2)
    a("s_mov_b32 s88, s64"); a("s_mov_b32 s89, s65")
    srd(a, 64, 88, 2048 * 576 * 2)
    srd(a, 72, 76, 576 * 8)
    srd(a, 92, 90, 2048 * 2048 * 2)
    stamp_setup(a, 1); stamp(a, 0)
    def gran_addr():
        a("v_lshrrev_b32 v10, 4, v2")
        a("s_lshl_b32 s36, s25, 1")
        a("v_add_u32 v11, s36, v10")
        a("v_and_b32 v11, 3, v11")
        a("v_lshl_add_u32 v11, v11, 4, v3")
        a("v_lshlrev_b32 v94, 8, v11")
        a("s_lshl_b32 s59, s22, 7")
        a("s_lshl_b32 s36, s24, 6")
        a("s_add_u32 s59, s59, s36")
        a("s_lshl_b32 s59, s59, 8")
        a("s_add_u32 s59, s59, 0x%x" % STATS2)
        a("s_lshl_b32 s36, s23, 1")
        a("s_add_u32 s36, s36, s25")
        a("s_lshl_b32 s36, s36, 3")
        a("s_add_u32 s58, s36, s59")
    gran_addr()
    a("v_mov_b32 v12, 0"); a("v_mov_b32 v13, 0x80000000")
    a("buffer_store_dwordx2 v[12:13], v94, s[12:15], s58 offen sc1")
    mma_addr(0)
    a("s_mov_b32 s33, 0")
    a("s_barrier")
    stamp(a, 1)
    a.label("%s_mma" % name)
    core.prime(0, core.reads(0, 0))
    trk.drain()
    def mfmas(buf):
        L = []
        for ft in range(5):
            A = core.F(buf, ft)
            for tt in range(4 if ft < 4 else 2):
                c = core.accr(ft, tt); B = core.T(buf, tt)
                L.append(("v_mfma_f32_16x16x32_bf16 %s, %s, %s, %s" % (vr(c), vr(A), vr(B), vr(c)), list(range(A, A + 4)) + list(range(B, B + 4))))
            L.append(("v_mfma_f32_16x16x32_bf16 %s, %s, %s, %s" % (vr(CS + 4 * ft), vr(A), vr(ONE), vr(CS + 4 * ft)), list(range(A, A + 4))))
        return L
    def phase(buf, pend):
        for (m, regs) in mfmas(buf):
            trk.need(regs)
            a(m)
            while pend:
                k, t = pend.pop(0)
                if k == "x":
                    a(t)
                    if t.startswith("s_"): continue
                else:
                    a(t[0]); trk.issue(t[1])
                break
        for k, t in pend:
            if k == "x": a(t)
            else: a(t[0]); trk.issue(t[1])
    def iteration():
        a("s_waitcnt vmcnt(0)")
        a("s_barrier")
        rd = [("r", t) for t in core.reads(1, 1)]
        upd = ["s_add_u32 s27, s27, %d" % SLOT, "s_cmp_eq_u32 s27, %d" % (R * SLOT), "s_cselect_b32 s27, 0, s27"]
        tail = ["v_add_u32 v%d, s27, v%d" % (d, s_) for d, s_ in ((vTa[0], bTa[0]), (vF, bF), (vTb[0], bTb[0]), (vFh, bFh))]
        phase(0, rd[:1] + [("x", u) for u in upd] + rd[1:] + [("x", u) for u in tail])
        rd = [("r", t) for t in core.reads(0, 0)]
        tail = ["v_add_u32 v%d, s27, v%d" % (d, s_) for d, s_ in ((vTa[1], bTa[1]), (vTb[1], bTb[1]))] + ["s_add_u32 s33, s33, 1"]
        phase(1, rd + [("x", u) for u in tail])
    a.label("%s_cloop" % name)
    lb = len(a.lines); iteration(); st = copy.deepcopy(trk.out); del a.lines[lb:]; trk.out = copy.deepcopy(st)
    iteration()
    assert [sorted(x) for x in trk.out] == [sorted(x) for x in st]
    a("s_cmp_lt_u32 s33, 9")
    a("s_cbranch_scc1 %s_cloop" % name)
    trk.drain()
    stamp(a, 2)
    a("s_waitcnt vmcnt(0)")
    a("s_barrier")
    a("s_cmp_lg_u32 s3, 0")
    a("s_cbranch_scc1 %s_nosig" % name)
    a("v_mov_b32 v10, 1")
    a("s_lshl_b32 s36, s22, 2")
    a("v_mov_b32 v11, s36")
    a("s_mov_b64 exec, 1")
    a("buffer_atomic_add v10, v11, s[60:63], 0 offen sc1")
    a("s_mov_b64 exec, -1")
    a.label("%s_nosig" % name)
    a("s_mul_i32 s36, s3, 13312")
    a("s_add_u32 s36, s36, %d" % RB)
    a("v_lshlrev_b32 v10, 4, v2")
    a("v_add_u32 v11, s36, v10")
    n_ = 0
    for ft in range(4):
        for tt in range(2):
            a("ds_write_b128 v11, %s offset:%d" % (vr(core.accr(ft, tt + 2)), 1024 * n_)); n_ += 1
    for ft in range(4):
        a("ds_write_b128 v11, %s offset:%d" % (vr(CS + 4 * ft), 1024 * n_)); n_ += 1
    a("s_waitcnt lgkmcnt(0)")
    a("s_barrier")
    a.label("%s_epi" % name)
    MR = 100; T = 72; ZP = 200
    gelu_consts(a)
    a("s_xor_b32 s52, s98, s25")
    a("s_lshl_b32 s36, s24, 9")
    a("s_lshl_b32 s37, s52, 8")
    a("s_add_u32 s38, s36, s37")
    a("v_lshlrev_b32 v10, 3, v3")
    a("v_add_u32 v11, s38, v10")
    a("ds_read_b64 %s, v11 offset:%d" % (vr(MR, 2), RST))
    a("ds_read_b64 %s, v11 offset:%d" % (vr(MR + 2, 2), RST + 128))
    a("s_lshl_b32 s41, s2, 1")
    a("s_add_u32 s41, s41, s98")
    a("v_and_b32 v0, 255, v0")
    a("s_cmp_ge_u32 s41, 288")
    a("s_cbranch_scc1 %s_nokv1" % name)
    emit_kv_loads(a)
    a.label("%s_nokv1" % name)
    S = [108, 110]; Q = [109, 111]
    for r_ in range(108, 112): a("v_mov_b32 v%d, 0" % r_)
    a("s_waitcnt lgkmcnt(0)")
    ZPf = lambda n: (240 + 2 * n) if n < 8 else (196 + 2 * (n - 8))
    def dots(lst):
        for d in range(2):
            for (ft, tt) in lst:
                p = ZPf(2 * ft + tt) + d
                a("v_dot2_f32_bf16 v%d, v%d, v%d, v%d" % (S[tt], p, ONE, S[tt]))
                a("v_dot2_f32_bf16 v%d, v%d, v%d, v%d" % (Q[tt], p, p, Q[tt]))
    a("s_cmp_lg_u32 s98, 0")
    a("s_cbranch_scc1 %s_nohalf" % name)
    lst = [(4, 0), (4, 1)]
    emit_fold_gelu(a, [(core.accr(ft, tt), CS + 4 * ft, MR + 2 * tt, ZPf(2 * ft + tt)) for ft, tt in lst], T)
    dots(lst)
    a.label("%s_nohalf" % name)
    for f0 in (0, 2):
        lst = [(ft, tt) for ft in (f0, f0 + 1) for tt in range(2)]
        emit_fold_gelu(a, [(core.accr(ft, tt), CS + 4 * ft, MR + 2 * tt, ZPf(2 * ft + tt)) for ft, tt in lst], T)
        dots(lst)
    a("s_nop 2")
    emit_xg_reduce(a, S + Q, 72)
    a("s_lshl_b32 s59, s22, 7")
    a("s_lshl_b32 s36, s24, 6")
    a("s_add_u32 s59, s59, s36")
    a("s_lshl_b32 s36, s52, 5")
    a("s_add_u32 s59, s59, s36")
    a("s_lshl_b32 s59, s59, 8")
    a("s_add_u32 s59, s59, 0x%x" % STATS2)
    a("s_lshl_b32 s36, s23, 1")
    a("s_add_u32 s36, s36, s25")
    a("s_lshl_b32 s36, s36, 3")
    a("s_add_u32 s58, s36, s59")
    a("v_lshrrev_b32 v10, 4, v2")
    a("v_lshlrev_b32 v11, 8, v2")
    a("v_cmp_gt_u32 vcc, 32, v2")
    a("v_mov_b32 v12, 0x7ffffff0")
    a("v_cmp_eq_u32 s[36:37], 1, v10")
    a("v_cndmask_b32 v11, v12, v11, vcc")
    a("s_nop 0")
    a("v_cndmask_b32 v108, v108, v110, s[36:37]")
    a("v_cndmask_b32 v109, v109, v111, s[36:37]")
    a("v_and_b32 v109, 0x7fffffff, v109")
    a("buffer_store_dwordx2 v[108:109], v11, s[12:15], s58 offen sc1")
    a("s_setprio 0")
    stamp(a, 3)
    a("s_lshl_b32 s33, s22, 2")
    a("v_mov_b32 v165, s33")
    a("buffer_load_dword v164, v165, s[60:63], 0 offen sc1")
    PB = 128
    a("v_lshlrev_b32 v4, 8, v3")
    a("v_lshl_add_u32 v4, v10, 6, v4")
    a("s_add_u32 s53, s59, 4096")
    a("s_cmp_ge_u32 s41, 288")
    a("s_cbranch_scc1 %s_nokv2" % name)
    a("s_waitcnt vmcnt(2)")
    emit_kv_compute(a, wait=False, store=False)
    a.label("%s_nokv2" % name)
    stamp(a, 4)
    a("s_mov_b32 s40, 0")
    a.label("%s_chk" % name)
    a("s_waitcnt vmcnt(0)")
    for tt in range(2):
        for q in range(4):
            a("buffer_load_dwordx4 %s, v4, s[12:15], s%d offen offset:%d sc1" % (vr(PB + 16 * tt + 4 * q), (59, 53)[tt], 16 * q))
    a("v_subrev_u32 v11, 16, v164")
    a("s_waitcnt vmcnt(0)")
    for r in range(PB + 1, PB + 32, 4):
        a("v_or3_b32 v11, v11, v%d, v%d" % (r, r + 2))
    a("v_cmp_gt_i32 vcc, 0, v11")
    a("s_add_u32 s40, s40, 1")
    a("s_cmp_gt_u32 s40, %d" % SPIN_MAX)
    a("s_cbranch_scc1 %s_ok" % name)
    a("s_cbranch_vccz %s_ok" % name)
    a("s_sleep 24")
    a("buffer_load_dword v164, v165, s[60:63], 0 offen sc1")
    a("s_branch %s_chk" % name)
    a.label("%s_ok" % name)
    stamp(a, 5)
    a("v_lshrrev_b32 v10, 4, v2")
    a("v_lshlrev_b32 v5, 12, v10")
    a("v_lshl_add_u32 v5, v3, 4, v5")
    a("s_lshl_b32 s33, s22, 7")
    a("s_lshl_b32 s36, s3, 5")
    a("s_add_u32 s33, s33, s36")
    a("s_lshl_b32 s36, s98, 4")
    a("s_add_u32 s33, s33, s36")
    a("s_lshl_b32 s33, s33, 12")
    a("s_lshl_b32 s36, s23, 8")
    a("s_add_u32 s33, s33, s36")
    for n in range(4):
        a("buffer_load_dwordx4 v[168:171], v5, s[92:95], s33 offen")
        if n < 3: a("s_add_u32 s33, s33, 16384")
    a("s_cmp_ge_u32 s41, 288")
    a("s_cbranch_scc1 %s_nokv3" % name)
    a("s_mov_b32 s39, 0x%x" % KVT)
    a("buffer_store_dwordx4 v[120:123], v12, s[12:15], s39 offen")
    a("buffer_store_dwordx4 v[124:127], v13, s[12:15], s39 offen")
    a.label("%s_nokv3" % name)
    for tt in range(2):
        b = PB + 16 * tt
        for st_ in (8, 4, 2):
            for q in range(0, st_, 2):
                a("v_pk_add_f32 %s, %s, %s" % (vr(b + q, 2), vr(b + q, 2), vr(b + q + st_, 2)))
    emit_xg_reduce(a, [PB + 16 * tt + e for tt in range(2) for e in range(2)], 72)
    for tt in range(2):
        b = PB + 16 * tt
        emit_ln_finish(a, b, b + 1, 2304, b + 2, MR + 2 * tt, b + 4)
        a("v_mul_f32 v%d, -v%d, v%d" % (MR + 2 * tt + 1, b + 2, MR + 2 * tt))
    a("v_lshrrev_b32 v11, 2, v2"); a("v_and_b32 v11, 1, v11"); a("v_lshlrev_b32 v11, 4, v11")
    a("v_lshrrev_b32 v5, 3, v2"); a("v_and_b32 v5, 1, v5"); a("v_lshl_add_u32 v11, v5, 2, v11")
    a("v_and_b32 v5, 3, v2"); a("v_add_u32 v11, v11, v5")
    a("v_mul_u32_u24 v11, 288, v11")
    a("v_lshrrev_b32 v5, 1, v10"); a("v_lshl_add_u32 v11, v5, 4, v11")
    a("v_and_b32 v5, 1, v10")
    a("v_lshl_add_u32 v6, v5, 5, v11")
    a("v_mul_u32_u24 v5, 2304, v5")
    a("v_add_u32 v9, v11, v5")
    a("s_lshl_b32 s33, s23, 5")
    a("s_lshl_b32 s36, s22, 1")
    a("s_add_u32 s33, s33, s36")
    a("s_add_u32 s33, s33, s24")
    a("s_mul_i32 s33, s33, 18432")
    if ZIMG: a("s_add_u32 s33, s33, 0x%x" % ZIMG)
    a("s_mul_i32 s36, s52, 9216")
    a("s_add_u32 s37, s33, s36")
    a("s_add_u32 s39, s37, 128")
    a("s_mul_i32 s36, s25, 160")
    a("s_add_u32 s37, s37, s36")
    def norm_pair(nA, ttA, nB, ttB, O):
        for q, (n, tt) in enumerate(((nA, ttA), (nB, ttB))):
            for d in range(2):
                z = ZPf(n) + d; t = T + 4 * q + 2 * d
                a("v_lshlrev_b32 v%d, 16, v%d" % (t, z))
                a("v_and_b32 v%d, 0xffff0000, v%d" % (t + 1, z))
        for q, (n, tt) in enumerate(((nA, ttA), (nB, ttB))):
            for d in range(2):
                t = T + 4 * q + 2 * d
                a("v_pk_fma_f32 %s, %s, %s, %s op_sel:[0,0,1] op_sel_hi:[1,0,1]" % (vr(t, 2), vr(t, 2), vr(MR + 2 * tt, 2), vr(MR + 2 * tt, 2)))
        for q in range(2):
            for d in range(2):
                t = T + 4 * q + 2 * d
                a("v_cvt_pk_bf16_f32 v%d, v%d, v%d" % (O + 2 * q + d, t, t + 1))
        a("s_nop 1")
        a("v_permlane16_swap_b32 v%d, v%d" % (O, O + 2))
        a("v_permlane16_swap_b32 v%d, v%d" % (O + 1, O + 3))
    cnt = 0
    for pr in range(2):
        for tt in range(2):
            O = 16 + 4 * cnt; cnt += 1
            norm_pair(2 * (2 * pr) + tt, tt, 2 * (2 * pr + 1) + tt, tt, O)
            a("s_nop 0")
            a("buffer_store_dwordx4 %s, v6, s[12:15], s37 offen offset:%d" % (vr(O), tt * 2304 + 64 * pr))
    a("s_cmp_lg_u32 s98, 0")
    a("s_cbranch_scc1 %s_fin" % name)
    O = 16 + 4 * cnt
    norm_pair(8, 0, 9, 1, O)
    a("s_nop 0")
    a("buffer_store_dwordx4 %s, v9, s[12:15], s39 offen" % vr(O))
    a.label("%s_fin" % name)
    stamp(a, 6)
    G.stamp_rt(a, 1)
    a.label("%s_end" % name)
    a("s_endpgm")
    return a.text(), kernel_desc(name, 256, 256), (name, 256, 512, LDSB)

def gen_k1j(name="k1_kernel", R=4):
    a = Asm()
    RB = 4096; SLOT = 34816; TREG = 16384; FS = 288; RST = 0
    LDSB = RB + R * SLOT
    def capture(f, *args):
        lb = len(a.lines); f(*args); out = a.lines[lb:]; del a.lines[lb:]; return out
    kernel_begin(a, name)
    a("s_load_dwordx2 s[80:81], s[0:1], 0")
    a("s_load_dwordx2 s[4:5], s[0:1], 56")
    a("s_load_dwordx2 s[6:7], s[0:1], 104")
    a("s_load_dwordx2 s[18:19], s[0:1], 96")
    a("s_cmp_ge_u32 s2, 256")
    a("s_cbranch_scc1 %s_end" % name)
    a("v_lshrrev_b32 v1, 6, v0")
    a("v_and_b32 v2, 63, v0")
    a("v_readfirstlane_b32 s3, v1")
    G2.tile_ij(a)
    a("s_lshr_b32 s98, s3, 2")
    a("s_mov_b32 s54x, 0".replace("s54x", "s99"))
    a("s_and_b32 s3, s3, 3")
    a("s_lshr_b32 s24, s3, 1")
    a("s_and_b32 s25, s3, 1")
    a("v_and_b32 v3, 15, v2")
    VT = 204; VF = 208
    def loader_setup():
        a("v_lshrrev_b32 v5, 3, v2")
        a("v_and_b32 v4, 7, v2")
        a("s_lshl_b32 s36, s3, 5")
        a("v_add_u32 v5, s36, v5")
        a("v_lshrrev_b32 v7, 4, v2")
        a("v_xor_b32 v7, v7, v4")
        a("v_mul_u32_u24 v6, 1152, v5")
        a("v_lshl_add_u32 v%d, v7, 4, v6" % VT)
        a("v_xor_b32 v%d, 64, v%d" % (VT + 1, VT))
        a("v_add_u32 v%d, %d, v%d" % (VT + 1, 9216 - 1024, VT + 1))
        a("v_add_u32 v%d, %d, v%d" % (VT + 2, 2 * (9216 - 1024), VT))
        a("v_add_u32 v%d, %d, v%d" % (VT + 3, 2 * (9216 - 1024), VT + 1))
        a("s_lshl_b32 s84, s3, 12")
        a("s_add_u32 s84, s84, %d" % RB)
        a("s_lshl_b32 s85, s3, 9")
        a("s_add_u32 s85, s85, %d" % (RB + TREG + 16384))
    def loader_setup2():
        for n in range(5):
            if n < 4:
                a("s_lshl_b32 s36, s3, 8")
                a("s_add_u32 s36, s36, %d" % (64 * n))
            else:
                a("s_lshl_b32 s36, s3, 5")
                a("s_add_u32 s36, s36, 1024")
            a("v_add_u32 v6, s36, v2")
            a("v_mul_u32_u24 v7, 3641, v6")
            a("v_lshrrev_b32 v7, 16, v7")
            a("v_mul_u32_u24 v8, 18, v7")
            a("v_sub_u32 v8, v6, v8")
            a("v_and_b32 v9, 35, v7")
            a("v_bfe_u32 v6, v7, 2, 2")
            a("v_lshl_add_u32 v9, v6, 3, v9")
            a("v_bfe_u32 v6, v7, 4, 1")
            a("v_lshl_add_u32 v9, v6, 2, v9")
            a("v_mul_u32_u24 v9, 9216, v9")
            a("v_lshl_add_u32 v%d, v8, 4, v9" % (VF + n))
            if 0 < n < 4: a("v_subrev_u32 v%d, %d, v%d" % (VF + n, 1024 * n, VF + n))
    def issueT(g):
        st = g % 9
        a("s_add_u32 s86, s84, %d" % ((g % R) * SLOT))
        a("s_mov_b32 m0, s86")
        a("s_add_u32 s87, s82, %d" % (128 * st))
        for n in range(4):
            a("buffer_load_dwordx4 v%d, s[28:31], s87 offen offset:%d lds" % (VT + n, 1024 * n))
    def issueF(g):
        st = g % 9
        a("s_add_u32 s86, s84, %d" % ((g % R) * SLOT + TREG))
        a("s_mov_b32 m0, s86")
        a("s_add_u32 s87, s83, %d" % (64 * 9216 * st + (4608 if g < 9 else 0)))
        for n in range(4):
            a("buffer_load_dwordx4 v%d, s[8:11], s87 offen offset:%d lds" % (VF + n, 1024 * n))
        a("s_add_u32 s86, s85, %d" % ((g % R) * SLOT))
        a("s_mov_b32 m0, s86")
        a("s_mov_b64 exec, 0xffffffff")
        a("buffer_load_dwordx4 v%d, s[8:11], s87 offen lds" % (VF + 4))
        a("s_mov_b64 exec, -1")
    def srds_main():
        srd(a, 28, 80, 2048 * 576 * 2)
        srd(a, 8, 4, 576 * 4608 * 2)
        srd(a, 12, 6, WS_BYTES)
        srd(a, 60, 18, 256)
        a("s_mul_i32 s82, s22, %d" % (128 * 1152))
        a("s_mul_i32 s83, s23, 288")
    ACC = 128; FB = [16, 52]; CS = 216; ONE = 236
    vTa = [4, 5]; vTb = [6, 7]; vF = 8; vFh = 9
    bTa = [88, 89]; bTb = [90, 91]; bF = 92; bFh = 93
    def mma_setup():
        a("v_lshrrev_b32 v10, 4, v2")
        a("v_lshrrev_b32 v11, 1, v3")
        a("v_xor_b32 v10, v10, v11")
        a("v_lshlrev_b32 v10, 4, v10")
        a("v_lshl_add_u32 v10, v3, 7, v10")
        a("s_lshl_b32 s26, s24, 13")
        a("s_add_u32 s26, s26, %d" % RB)
        a("v_add_u32 v10, s26, v10")
        a("s_lshl_b32 s26, s25, 12")
        a("v_add_u32 v%d, s26, v10" % bTa[0])
        a("s_xor_b32 s26, s26, 4096")
        a("v_add_u32 v%d, s26, v10" % bTb[0])
        a("v_xor_b32 v%d, 64, v%d" % (bTa[1], bTa[0]))
        a("v_xor_b32 v%d, 64, v%d" % (bTb[1], bTb[0]))
        a("v_lshrrev_b32 v10, 2, v2")
        a("v_mul_u32_u24 v10, %d, v10" % FS)
        a("v_and_b32 v11, 3, v2")
        a("v_lshl_add_u32 v10, v11, 3, v10")
        a("v_add_u32 v10, %d, v10" % (RB + TREG))
        a("s_mul_i32 s26, s25, 160")
        a("v_add_u32 v%d, s26, v10" % bF)
        a("v_add_u32 v%d, 128, v10" % bFh)
        for r in range(ACC, ACC + 72): a("v_mov_b32 v%d, 0" % r)
        for r in range(CS, CS + 20): a("v_mov_b32 v%d, 0" % r)
        for r in range(ONE, ONE + 4): a("v_mov_b32 v%d, 0x3f803f80" % r)
    def mma_addr(slot):
        a("s_mov_b32 s27, %d" % (slot * SLOT))
        for d, s_ in ((vTa[0], bTa[0]), (vTb[0], bTb[0]), (vTa[1], bTa[1]), (vTb[1], bTb[1]), (vF, bF), (vFh, bFh)):
            a("v_add_u32 v%d, s27, v%d" % (d, s_))
    core = G.Core(a, ACC, FB[0], FB[1], FS, TREG, vTa, vTb, vF, vFh)
    trk = core.trk
    a("s_cmp_eq_u32 s98, 0")
    a("s_cbranch_scc1 %s_A0" % name)
    a("s_setprio 3")
    loader_setup()
    a("s_waitcnt lgkmcnt(0)")
    srds_main()
    vm = VmTracker(a)
    def issue(g, vmx):
        issueT(g); issueF(g); vmx.issue("S%d" % g, 9)
    issueT(0)
    loader_setup2()
    issueF(0); vm.issue("S0", 9)
    issue(1, vm); issue(2, vm); issue(3, vm)
    a("s_add_u32 s3, s3, 4"); stamp_setup(a, 1); stamp(a, 0); a("s_sub_u32 s3, s3, 4")
    for r in range(ONE, ONE + 4): a("v_mov_b32 v%d, 0x3f803f80" % r)
    RA = 96; XB = 112
    for r in range(RA, RA + 16): a("v_mov_b32 v%d, 0" % r)
    a("v_lshrrev_b32 v10, 4, v2")
    a("v_lshrrev_b32 v11, 1, v3")
    a("v_xor_b32 v10, v10, v11")
    a("v_lshlrev_b32 v10, 4, v10")
    a("v_lshl_add_u32 v10, v3, 7, v10")
    a("v_add_u32 v12, s84, v10")
    a("v_xor_b32 v13, 64, v12")
    def rs_rd(g):
        a("v_add_u32 v10, %d, v12" % ((g % R) * SLOT))
        a("v_add_u32 v11, %d, v13" % ((g % R) * SLOT))
        for h in range(2):
            for n in range(2):
                a("ds_read_b128 %s, v%d offset:%d" % (vr(XB + 8 * h + 4 * n), 10 + h, 2048 * n))
    def rs_do():
        for h in range(2):
            for n in range(2):
                x = XB + 8 * h + 4 * n
                a("v_mfma_f32_16x16x32_bf16 %s, %s, %s, %s" % (vr(RA + 4 * n), vr(ONE), vr(x), vr(RA + 4 * n)))
                a("v_mfma_f32_16x16x32_bf16 %s, %s, %s, %s" % (vr(RA + 8 + 4 * n), vr(x), vr(x), vr(RA + 8 + 4 * n)))
    def interleave(dma, comp, vmx=None):
        groups = []; cur = []
        for l in dma:
            cur.append(l)
            if "buffer_load" in l and not any("exec, 0xffffffff" in x for x in cur[-2:]):
                groups.append(cur); cur = []
            elif "exec, -1" in l:
                groups.append(cur); cur = []
        if cur: groups.append(cur)
        ns = max(1, len(groups))
        per = (len(comp) + ns - 1) // ns
        for g in groups:
            a.lines.extend(g)
            a.lines.extend(comp[:per]); comp = comp[per:]
        a.lines.extend(comp)
    vm.wait(["S0"])
    a("s_barrier")
    stamp(a, 1)
    rs_rd(0)
    vm.wait(["S1"])
    a("s_barrier")
    for k in range(9):
        a("s_waitcnt lgkmcnt(0)")
        dma = capture(lambda: (issueT(k + 3), issueF(k + 3))) if (k >= 1 and k + 3 < 9) else []
        interleave(dma, capture(rs_do))
        if k >= 1 and k + 3 < 9: vm.issue("S%d" % (k + 3), 9)
        if k < 8:
            rs_rd(k + 1)
        else:
            a("s_nop 7")
            a("v_lshrrev_b32 v10, 4, v2")
            a("v_lshrrev_b32 v11, 2, v3")
            a("v_and_b32 v12, 3, v3")
            for n in range(2):
                G_ = RA + 8 + 4 * n
                for r in range(1, 4):
                    a("v_cmp_eq_u32 vcc, %d, v12" % r)
                    a("s_nop 1")
                    a("v_cndmask_b32 v%d, v%d, v%d, vcc" % (G_, G_, G_ + r))
            ML = 112
            for n in range(2):
                emit_ln_finish(a, RA + 4 * n, RA + 8 + 4 * n, 576, ML + 2 * n, ML + 2 * n + 1, 120)
                a("v_mov_b32 v%d, v%d" % (117 + 2 * n, ML + 2 * n + 1))
                a("v_sub_f32 v%d, 0, v%d" % (116 + 2 * n, ML + 2 * n))
            a("s_lshl_b32 s35, s3, 8")
            a("v_lshlrev_b32 v13, 3, v3")
            a("v_add_u32 v12, s35, v13")
            a("v_cmp_eq_u32 vcc, v10, v11")
            a("s_and_saveexec_b64 s[36:37], vcc")
            for n in range(2):
                a("ds_write_b64 v12, %s offset:%d" % (vr(116 + 2 * n, 2), RST + 128 * n))
            a("s_mov_b64 exec, s[36:37]")
            a("s_cmp_lg_u32 s23, 0")
            a("s_cbranch_scc1 %s_nost1" % name)
            a("s_lshl_b32 s35, s22, 7")
            a("s_lshl_b32 s36, s3, 5")
            a("s_add_u32 s35, s35, s36")
            a("s_lshl_b32 s35, s35, 3")
            a("s_add_u32 s35, s35, 0x%x" % STATS1)
            a("v_mov_b32 v11, 0x7ffffff0")
            a("v_cndmask_b32 v13, v11, v13, vcc")
            for n in range(2):
                a("buffer_store_dwordx2 %s, v13, s[12:15], s35 offen offset:%d" % (vr(ML + 2 * n, 2), 128 * n))
            a.label("%s_nost1" % name)
        if k < 8:
            vm.wait(["S%d" % (k + 2)])
            a("s_barrier")
    a("s_waitcnt lgkmcnt(0)")
    a("s_barrier")
    a("s_load_dwordx4 s[64:67], s[0:1], 8")
    a("s_load_dwordx2 s[76:77], s[0:1], 24")
    a("s_load_dwordx2 s[90:91], s[0:1], 64")
    a("s_mul_i32 s36, s3, 13312")
    a("s_add_u32 s36, s36, %d" % RB)
    a("v_lshlrev_b32 v10, 4, v2")
    a("v_add_u32 v11, s36, v10")
    a("s_waitcnt lgkmcnt(0)")
    srd(a, 68, 66, 2048 * 576 * 2)
    a("s_mov_b32 s88, s64"); a("s_mov_b32 s89, s65")
    srd(a, 64, 88, 2048 * 576 * 2)
    srd(a, 72, 76, 576 * 8)
    srd(a, 92, 90, 2048 * 2048 * 2)
    a("s_barrier")
    n_ = 0
    for ft in range(4):
        for tt in range(2):
            a("ds_read_b128 %s, v11 offset:%d" % (vr(core.accr(ft, tt)), 1024 * n_)); n_ += 1
    for ft in range(4):
        a("ds_read_b128 %s, v11 offset:%d" % (vr(CS + 4 * ft), 1024 * n_)); n_ += 1
    a("s_branch %s_epi" % name)
    a.label("%s_A0" % name)
    emit_code_prefetch(a, name)
    a("s_load_dwordx4 s[64:67], s[0:1], 8")
    a("s_load_dwordx2 s[76:77], s[0:1], 24")
    a("s_load_dwordx2 s[90:91], s[0:1], 64")
    mma_setup()
    a("s_waitcnt lgkmcnt(0)")
    srds_main()
    srd(a, 68, 66, 2048 * 576 * 2)
    a("s_mov_b32 s88, s64"); a("s_mov_b32 s89, s65")
    srd(a, 64, 88, 2048 * 576 * 2)
    srd(a, 72, 76, 576 * 8)
    srd(a, 92, 90, 2048 * 2048 * 2)
    stamp_setup(a, 1); stamp(a, 0)
    def gran_addr():
        a("v_lshrrev_b32 v10, 4, v2")
        a("s_lshl_b32 s36, s25, 1")
        a("v_add_u32 v11, s36, v10")
        a("v_and_b32 v11, 3, v11")
        a("v_lshl_add_u32 v11, v11, 4, v3")
        a("v_lshlrev_b32 v94, 8, v11")
        a("s_lshl_b32 s59, s22, 7")
        a("s_lshl_b32 s36, s24, 6")
        a("s_add_u32 s59, s59, s36")
        a("s_lshl_b32 s59, s59, 8")
        a("s_add_u32 s59, s59, 0x%x" % STATS2)
        a("s_lshl_b32 s36, s23, 1")
        a("s_add_u32 s36, s36, s25")
        a("s_lshl_b32 s36, s36, 3")
        a("s_add_u32 s58, s36, s59")
    mma_addr(0)
    a("s_mov_b32 s33, 0")
    a("s_barrier")
    stamp(a, 1)
    a.label("%s_mma" % name)
    core.prime(0, core.reads(0, 0))
    trk.drain()
    def mfmas(buf):
        L = []
        for ft in range(5):
            A = core.F(buf, ft)
            for tt in range(4 if ft < 4 else 2):
                c = core.accr(ft, tt); B = core.T(buf, tt)
                L.append(("v_mfma_f32_16x16x32_bf16 %s, %s, %s, %s" % (vr(c), vr(A), vr(B), vr(c)), list(range(A, A + 4)) + list(range(B, B + 4))))
            L.append(("v_mfma_f32_16x16x32_bf16 %s, %s, %s, %s" % (vr(CS + 4 * ft), vr(A), vr(ONE), vr(CS + 4 * ft)), list(range(A, A + 4))))
        return L
    def phase(buf, pend):
        for (m, regs) in mfmas(buf):
            trk.need(regs)
            a(m)
            while pend:
                k, t = pend.pop(0)
                if k == "x":
                    a(t)
                    if t.startswith("s_"): continue
                else:
                    a(t[0]); trk.issue(t[1])
                break
        for k, t in pend:
            if k == "x": a(t)
            else: a(t[0]); trk.issue(t[1])
    def iteration():
        a("s_waitcnt vmcnt(0)")
        a("s_barrier")
        rd = [("r", t) for t in core.reads(1, 1)]
        upd = ["s_add_u32 s27, s27, %d" % SLOT, "s_cmp_eq_u32 s27, %d" % (R * SLOT), "s_cselect_b32 s27, 0, s27"]
        tail = ["v_add_u32 v%d, s27, v%d" % (d, s_) for d, s_ in ((vTa[0], bTa[0]), (vF, bF), (vTb[0], bTb[0]), (vFh, bFh))]
        phase(0, rd[:1] + [("x", u) for u in upd] + rd[1:] + [("x", u) for u in tail])
        rd = [("r", t) for t in core.reads(0, 0)]
        tail = ["v_add_u32 v%d, s27, v%d" % (d, s_) for d, s_ in ((vTa[1], bTa[1]), (vTb[1], bTb[1]))] + ["s_add_u32 s33, s33, 1"]
        phase(1, rd + [("x", u) for u in tail])
    a.label("%s_cloop" % name)
    lb = len(a.lines); iteration(); st = copy.deepcopy(trk.out); del a.lines[lb:]; trk.out = copy.deepcopy(st)
    iteration()
    assert [sorted(x) for x in trk.out] == [sorted(x) for x in st]
    a("s_cmp_lt_u32 s33, 9")
    a("s_cbranch_scc1 %s_cloop" % name)
    trk.drain()
    stamp(a, 2)
    a("s_waitcnt vmcnt(0)")
    a("s_barrier")
    a("s_mul_i32 s36, s3, 13312")
    a("s_add_u32 s36, s36, %d" % RB)
    a("v_lshlrev_b32 v10, 4, v2")
    a("v_add_u32 v11, s36, v10")
    n_ = 0
    for ft in range(4):
        for tt in range(2):
            a("ds_write_b128 v11, %s offset:%d" % (vr(core.accr(ft, tt + 2)), 1024 * n_)); n_ += 1
    for ft in range(4):
        a("ds_write_b128 v11, %s offset:%d" % (vr(CS + 4 * ft), 1024 * n_)); n_ += 1
    a("s_waitcnt lgkmcnt(0)")
    a("s_barrier")
    a.label("%s_epi" % name)
    MR = 100; T = 72; ZP = 200
    gelu_consts(a)
    a("s_xor_b32 s52, s98, s25")
    a("s_lshl_b32 s36, s24, 9")
    a("s_lshl_b32 s37, s52, 8")
    a("s_add_u32 s38, s36, s37")
    a("v_lshlrev_b32 v10, 3, v3")
    a("v_add_u32 v11, s38, v10")
    a("ds_read_b64 %s, v11 offset:%d" % (vr(MR, 2), RST))
    a("ds_read_b64 %s, v11 offset:%d" % (vr(MR + 2, 2), RST + 128))
    a("s_lshl_b32 s41, s2, 1")
    a("s_add_u32 s41, s41, s98")
    a("v_and_b32 v0, 255, v0")
    a("s_cmp_ge_u32 s41, 288")
    a("s_cbranch_scc1 %s_nokv1" % name)
    emit_kv_loads(a)
    a.label("%s_nokv1" % name)
    S = [108, 110]; Q = [109, 111]
    for r_ in range(108, 112): a("v_mov_b32 v%d, 0" % r_)
    a("s_waitcnt lgkmcnt(0)")
    ZPf = lambda n: (240 + 2 * n) if n < 8 else (196 + 2 * (n - 8))
    def dots(lst):
        for d in range(2):
            for (ft, tt) in lst:
                p = ZPf(2 * ft + tt) + d
                a("v_dot2_f32_bf16 v%d, v%d, v%d, v%d" % (S[tt], p, ONE, S[tt]))
                a("v_dot2_f32_bf16 v%d, v%d, v%d, v%d" % (Q[tt], p, p, Q[tt]))
    a("s_cmp_lg_u32 s98, 0")
    a("s_cbranch_scc1 %s_nohalf" % name)
    lst = [(4, 0), (4, 1)]
    emit_fold_gelu(a, [(core.accr(ft, tt), CS + 4 * ft, MR + 2 * tt, ZPf(2 * ft + tt)) for ft, tt in lst], T)
    dots(lst)
    a.label("%s_nohalf" % name)
    for f0 in (0, 2):
        lst = [(ft, tt) for ft in (f0, f0 + 1) for tt in range(2)]
        emit_fold_gelu(a, [(core.accr(ft, tt), CS + 4 * ft, MR + 2 * tt, ZPf(2 * ft + tt)) for ft, tt in lst], T)
        dots(lst)
    a("s_nop 2")
    emit_xg_reduce(a, S + Q, 72)
    a("s_lshl_b32 s59, s22, 7")
    a("s_lshl_b32 s36, s24, 6")
    a("s_add_u32 s59, s59, s36")
    a("s_lshl_b32 s36, s52, 5")
    a("s_add_u32 s59, s59, s36")
    a("s_lshl_b32 s59, s59, 8")
    a("s_add_u32 s59, s59, 0x%x" % STATS2)
    a("s_lshl_b32 s36, s23, 1")
    a("s_add_u32 s36, s36, s25")
    a("s_lshl_b32 s36, s36, 3")
    a("s_add_u32 s58, s36, s59")
    a("v_lshrrev_b32 v10, 4, v2")
    a("v_lshlrev_b32 v11, 8, v2")
    a("v_cmp_gt_u32 vcc, 32, v2")
    a("v_mov_b32 v12, 0x7ffffff0")
    a("v_cmp_eq_u32 s[36:37], 1, v10")
    a("v_cndmask_b32 v11, v12, v11, vcc")
    a("s_nop 0")
    a("v_cndmask_b32 v108, v108, v110, s[36:37]")
    a("v_cndmask_b32 v109, v109, v111, s[36:37]")
    a("buffer_store_dwordx2 v[108:109], v11, s[12:15], s58 offen")
    a("s_setprio 0")
    stamp(a, 3)
    a("v_lshrrev_b32 v10, 4, v2")
    a("v_lshlrev_b32 v5, 12, v10")
    a("v_lshl_add_u32 v5, v3, 4, v5")
    a("s_lshl_b32 s33, s22, 7")
    a("s_lshl_b32 s36, s3, 5")
    a("s_add_u32 s33, s33, s36")
    a("s_lshl_b32 s36, s98, 4")
    a("s_add_u32 s33, s33, s36")
    a("s_lshl_b32 s33, s33, 12")
    a("s_lshl_b32 s36, s23, 8")
    a("s_add_u32 s33, s33, s36")
    for n in range(4):
        a("buffer_load_dwordx4 v[168:171], v5, s[92:95], s33 offen")
        if n < 3: a("s_add_u32 s33, s33, 16384")
    a("v_lshrrev_b32 v11, 2, v2"); a("v_and_b32 v11, 1, v11"); a("v_lshlrev_b32 v11, 4, v11")
    a("v_lshrrev_b32 v5, 3, v2"); a("v_and_b32 v5, 1, v5"); a("v_lshl_add_u32 v11, v5, 2, v11")
    a("v_and_b32 v5, 3, v2"); a("v_add_u32 v11, v11, v5")
    a("v_mul_u32_u24 v11, 288, v11")
    a("v_lshrrev_b32 v5, 1, v10"); a("v_lshl_add_u32 v11, v5, 4, v11")
    a("v_and_b32 v5, 1, v10")
    a("v_lshl_add_u32 v6, v5, 5, v11")
    a("v_mul_u32_u24 v5, 2304, v5")
    a("v_add_u32 v9, v11, v5")
    a("s_lshl_b32 s33, s23, 5")
    a("s_lshl_b32 s36, s22, 1")
    a("s_add_u32 s33, s33, s36")
    a("s_add_u32 s33, s33, s24")
    a("s_mul_i32 s33, s33, 18432")
    if ZIMG: a("s_add_u32 s33, s33, 0x%x" % ZIMG)
    a("s_mul_i32 s36, s52, 9216")
    a("s_add_u32 s37, s33, s36")
    a("s_add_u32 s39, s37, 128")
    a("s_mul_i32 s36, s25, 160")
    a("s_add_u32 s37, s37, s36")
    def norm_pair(nA, ttA, nB, ttB, O):
        for q, n in enumerate((nA, nB)):
            for d in range(2):
                a("v_mov_b32 v%d, v%d" % (O + 2 * q + d, ZPf(n) + d))
        a("s_nop 1")
        a("v_permlane16_swap_b32 v%d, v%d" % (O, O + 2))
        a("v_permlane16_swap_b32 v%d, v%d" % (O + 1, O + 3))
    cnt = 0
    for pr in range(2):
        for tt in range(2):
            O = 128 + 4 * cnt; cnt += 1
            norm_pair(2 * (2 * pr) + tt, tt, 2 * (2 * pr + 1) + tt, tt, O)
            a("s_nop 0")
            a("buffer_store_dwordx4 %s, v6, s[12:15], s37 offen offset:%d" % (vr(O), tt * 2304 + 64 * pr))
    a("s_cmp_lg_u32 s98, 0")
    a("s_cbranch_scc1 %s_fin" % name)
    O = 128 + 4 * cnt
    norm_pair(8, 0, 9, 1, O)
    a("s_nop 0")
    a("buffer_store_dwordx4 %s, v9, s[12:15], s39 offen" % vr(O))
    a.label("%s_fin" % name)
    stamp(a, 4)
    a("s_cmp_ge_u32 s41, 288")
    a("s_cbranch_scc1 %s_fin2" % name)
    a("s_waitcnt vmcnt(9)")
    emit_kv_compute(a, wait=False)
    a.label("%s_fin2" % name)
    stamp(a, 6)
    G.stamp_rt(a, 1)
    a.label("%s_end" % name)
    a("s_endpgm")
    return a.text(), kernel_desc(name, 256, 256), (name, 256, 512, LDSB)

def gen_k1k(name="k1_kernel", R=4):
    a = Asm()
    RB = 4096; SLOT = 34816; TREG = 16384; FS = 288; RST = 0
    LDSB = RB + R * SLOT
    def capture(f, *args):
        lb = len(a.lines); f(*args); out = a.lines[lb:]; del a.lines[lb:]; return out
    kernel_begin(a, name)
    a("s_load_dwordx2 s[80:81], s[0:1], 0")
    a("s_load_dwordx2 s[4:5], s[0:1], 56")
    a("s_load_dwordx2 s[6:7], s[0:1], 104")
    a("s_load_dwordx2 s[18:19], s[0:1], 96")
    a("s_cmp_ge_u32 s2, 256")
    a("s_cbranch_scc1 %s_end" % name)
    a("v_lshrrev_b32 v1, 6, v0")
    a("v_and_b32 v2, 63, v0")
    a("v_readfirstlane_b32 s3, v1")
    G2.tile_ij(a)
    a("s_lshr_b32 s98, s3, 2")
    a("s_mov_b32 s54x, 0".replace("s54x", "s99"))
    a("s_and_b32 s3, s3, 3")
    a("s_lshr_b32 s24, s3, 1")
    a("s_and_b32 s25, s3, 1")
    a("v_and_b32 v3, 15, v2")
    VT = 204; VF = 208
    def loader_setup():
        a("v_lshrrev_b32 v5, 3, v2")
        a("v_and_b32 v4, 7, v2")
        a("s_lshl_b32 s36, s3, 5")
        a("v_add_u32 v5, s36, v5")
        a("v_lshrrev_b32 v7, 4, v2")
        a("v_xor_b32 v7, v7, v4")
        a("v_mul_u32_u24 v6, 1152, v5")
        a("v_lshl_add_u32 v%d, v7, 4, v6" % VT)
        a("v_xor_b32 v%d, 64, v%d" % (VT + 1, VT))
        a("v_add_u32 v%d, %d, v%d" % (VT + 1, 9216 - 1024, VT + 1))
        a("v_add_u32 v%d, %d, v%d" % (VT + 2, 2 * (9216 - 1024), VT))
        a("v_add_u32 v%d, %d, v%d" % (VT + 3, 2 * (9216 - 1024), VT + 1))
        a("s_lshl_b32 s84, s3, 12")
        a("s_add_u32 s84, s84, %d" % RB)
        a("s_lshl_b32 s85, s3, 9")
        a("s_add_u32 s85, s85, %d" % (RB + TREG + 16384))
    def loader_setup2():
        for n in range(5):
            if n < 4:
                a("s_lshl_b32 s36, s3, 8")
                a("s_add_u32 s36, s36, %d" % (64 * n))
            else:
                a("s_lshl_b32 s36, s3, 5")
                a("s_add_u32 s36, s36, 1024")
            a("v_add_u32 v6, s36, v2")
            a("v_mul_u32_u24 v7, 3641, v6")
            a("v_lshrrev_b32 v7, 16, v7")
            a("v_mul_u32_u24 v8, 18, v7")
            a("v_sub_u32 v8, v6, v8")
            a("v_and_b32 v9, 35, v7")
            a("v_bfe_u32 v6, v7, 2, 2")
            a("v_lshl_add_u32 v9, v6, 3, v9")
            a("v_bfe_u32 v6, v7, 4, 1")
            a("v_lshl_add_u32 v9, v6, 2, v9")
            a("v_mul_u32_u24 v9, 9216, v9")
            a("v_lshl_add_u32 v%d, v8, 4, v9" % (VF + n))
            if 0 < n < 4: a("v_subrev_u32 v%d, %d, v%d" % (VF + n, 1024 * n, VF + n))
    def issueT(g):
        st = g % 9
        a("s_add_u32 s86, s84, %d" % ((g % R) * SLOT))
        a("s_mov_b32 m0, s86")
        a("s_add_u32 s87, s82, %d" % (128 * st))
        for n in range(4):
            a("buffer_load_dwordx4 v%d, s[28:31], s87 offen offset:%d lds" % (VT + n, 1024 * n))
    def issueF(g):
        st = g % 9
        a("s_add_u32 s86, s84, %d" % ((g % R) * SLOT + TREG))
        a("s_mov_b32 m0, s86")
        a("s_add_u32 s87, s83, %d" % (64 * 9216 * st + (4608 if g < 9 else 0)))
        for n in range(4):
            a("buffer_load_dwordx4 v%d, s[8:11], s87 offen offset:%d lds" % (VF + n, 1024 * n))
        a("s_add_u32 s86, s85, %d" % ((g % R) * SLOT))
        a("s_mov_b32 m0, s86")
        a("s_mov_b64 exec, 0xffffffff")
        a("buffer_load_dwordx4 v%d, s[8:11], s87 offen lds" % (VF + 4))
        a("s_mov_b64 exec, -1")
    def srds_main():
        srd(a, 28, 80, 2048 * 576 * 2)
        srd(a, 8, 4, 576 * 4608 * 2)
        srd(a, 12, 6, WS_BYTES)
        srd(a, 60, 18, 256)
        a("s_mul_i32 s82, s22, %d" % (128 * 1152))
        a("s_mul_i32 s83, s23, 288")
    ACC = 128; FB = [16, 52]; CS = 216; ONE = 236
    vTa = [4, 5]; vTb = [6, 7]; vF = 8; vFh = 9
    bTa = [88, 89]; bTb = [90, 91]; bF = 92; bFh = 93
    def mma_setup():
        a("v_lshrrev_b32 v10, 4, v2")
        a("v_lshrrev_b32 v11, 1, v3")
        a("v_xor_b32 v10, v10, v11")
        a("v_lshlrev_b32 v10, 4, v10")
        a("v_lshl_add_u32 v10, v3, 7, v10")
        a("s_lshl_b32 s26, s24, 13")
        a("s_add_u32 s26, s26, %d" % RB)
        a("v_add_u32 v10, s26, v10")
        a("s_lshl_b32 s26, s25, 12")
        a("v_add_u32 v%d, s26, v10" % bTa[0])
        a("s_xor_b32 s26, s26, 4096")
        a("v_add_u32 v%d, s26, v10" % bTb[0])
        a("v_xor_b32 v%d, 64, v%d" % (bTa[1], bTa[0]))
        a("v_xor_b32 v%d, 64, v%d" % (bTb[1], bTb[0]))
        a("v_lshrrev_b32 v10, 2, v2")
        a("v_mul_u32_u24 v10, %d, v10" % FS)
        a("v_and_b32 v11, 3, v2")
        a("v_lshl_add_u32 v10, v11, 3, v10")
        a("v_add_u32 v10, %d, v10" % (RB + TREG))
        a("s_mul_i32 s26, s25, 160")
        a("v_add_u32 v%d, s26, v10" % bF)
        a("v_add_u32 v%d, 128, v10" % bFh)
        for r in range(ACC, ACC + 72): a("v_mov_b32 v%d, 0" % r)
        for r in range(CS, CS + 20): a("v_mov_b32 v%d, 0" % r)
        for r in range(ONE, ONE + 4): a("v_mov_b32 v%d, 0x3f803f80" % r)
    def mma_addr(slot):
        a("s_mov_b32 s27, %d" % (slot * SLOT))
        for d, s_ in ((vTa[0], bTa[0]), (vTb[0], bTb[0]), (vTa[1], bTa[1]), (vTb[1], bTb[1]), (vF, bF), (vFh, bFh)):
            a("v_add_u32 v%d, s27, v%d" % (d, s_))
    core = G.Core(a, ACC, FB[0], FB[1], FS, TREG, vTa, vTb, vF, vFh)
    trk = core.trk
    a("s_cmp_eq_u32 s98, 0")
    a("s_cbranch_scc1 %s_A0" % name)
    a("s_setprio 3")
    loader_setup()
    a("s_waitcnt lgkmcnt(0)")
    srds_main()
    vm = VmTracker(a)
    def issue(g, vmx):
        issueT(g); issueF(g); vmx.issue("S%d" % g, 9)
    issueT(0)
    loader_setup2()
    issueF(0); vm.issue("S0", 9)
    issue(1, vm); issue(2, vm); issue(3, vm)
    a("s_add_u32 s3, s3, 4"); stamp_setup(a, 1); stamp(a, 0); a("s_sub_u32 s3, s3, 4")
    for r in range(ONE, ONE + 4): a("v_mov_b32 v%d, 0x3f803f80" % r)
    RA = 96; XB = 112
    for r in range(RA, RA + 16): a("v_mov_b32 v%d, 0" % r)
    a("v_lshrrev_b32 v10, 4, v2")
    a("v_lshrrev_b32 v11, 1, v3")
    a("v_xor_b32 v10, v10, v11")
    a("v_lshlrev_b32 v10, 4, v10")
    a("v_lshl_add_u32 v10, v3, 7, v10")
    a("v_add_u32 v12, s84, v10")
    a("v_xor_b32 v13, 64, v12")
    def rs_rd(g):
        a("v_add_u32 v10, %d, v12" % ((g % R) * SLOT))
        a("v_add_u32 v11, %d, v13" % ((g % R) * SLOT))
        for h in range(2):
            for n in range(2):
                a("ds_read_b128 %s, v%d offset:%d" % (vr(XB + 8 * h + 4 * n), 10 + h, 2048 * n))
    def rs_do():
        for h in range(2):
            for n in range(2):
                x = XB + 8 * h + 4 * n
                a("v_mfma_f32_16x16x32_bf16 %s, %s, %s, %s" % (vr(RA + 4 * n), vr(ONE), vr(x), vr(RA + 4 * n)))
                a("v_mfma_f32_16x16x32_bf16 %s, %s, %s, %s" % (vr(RA + 8 + 4 * n), vr(x), vr(x), vr(RA + 8 + 4 * n)))
    def interleave(dma, comp, vmx=None):
        groups = []; cur = []
        for l in dma:
            cur.append(l)
            if "buffer_load" in l and not any("exec, 0xffffffff" in x for x in cur[-2:]):
                groups.append(cur); cur = []
            elif "exec, -1" in l:
                groups.append(cur); cur = []
        if cur: groups.append(cur)
        ns = max(1, len(groups))
        per = (len(comp) + ns - 1) // ns
        for g in groups:
            a.lines.extend(g)
            a.lines.extend(comp[:per]); comp = comp[per:]
        a.lines.extend(comp)
    vm.wait(["S0"])
    a("s_barrier")
    stamp(a, 1)
    rs_rd(0)
    vm.wait(["S1"])
    a("s_barrier")
    for k in range(9):
        a("s_waitcnt lgkmcnt(0)")
        dma = capture(lambda: (issueT(k + 3), issueF(k + 3))) if (k >= 1 and k + 3 < 9) else []
        interleave(dma, capture(rs_do))
        if k >= 1 and k + 3 < 9: vm.issue("S%d" % (k + 3), 9)
        if k < 8:
            rs_rd(k + 1)
        else:
            a("s_nop 7")
            a("v_lshrrev_b32 v10, 4, v2")
            a("v_lshrrev_b32 v11, 2, v3")
            a("v_and_b32 v12, 3, v3")
            for n in range(2):
                G_ = RA + 8 + 4 * n
                for r in range(1, 4):
                    a("v_cmp_eq_u32 vcc, %d, v12" % r)
                    a("s_nop 1")
                    a("v_cndmask_b32 v%d, v%d, v%d, vcc" % (G_, G_, G_ + r))
            ML = 112
            for n in range(2):
                emit_ln_finish(a, RA + 4 * n, RA + 8 + 4 * n, 576, ML + 2 * n, ML + 2 * n + 1, 120)
                a("v_mov_b32 v%d, v%d" % (117 + 2 * n, ML + 2 * n + 1))
                a("v_sub_f32 v%d, 0, v%d" % (116 + 2 * n, ML + 2 * n))
            a("s_lshl_b32 s35, s3, 8")
            a("v_lshlrev_b32 v13, 3, v3")
            a("v_add_u32 v12, s35, v13")
            a("v_cmp_eq_u32 vcc, v10, v11")
            a("s_and_saveexec_b64 s[36:37], vcc")
            for n in range(2):
                a("ds_write_b64 v12, %s offset:%d" % (vr(116 + 2 * n, 2), RST + 128 * n))
            a("s_mov_b64 exec, s[36:37]")
            a("s_cmp_lg_u32 s23, 0")
            a("s_cbranch_scc1 %s_nost1" % name)
            a("s_lshl_b32 s35, s22, 7")
            a("s_lshl_b32 s36, s3, 5")
            a("s_add_u32 s35, s35, s36")
            a("s_lshl_b32 s35, s35, 3")
            a("s_add_u32 s35, s35, 0x%x" % STATS1)
            a("v_mov_b32 v11, 0x7ffffff0")
            a("v_cndmask_b32 v13, v11, v13, vcc")
            for n in range(2):
                a("buffer_store_dwordx2 %s, v13, s[12:15], s35 offen offset:%d" % (vr(ML + 2 * n, 2), 128 * n))
            a.label("%s_nost1" % name)
        if k < 8:
            vm.wait(["S%d" % (k + 2)])
            a("s_barrier")
    a("s_waitcnt lgkmcnt(0)")
    a("s_barrier")
    a("s_load_dwordx4 s[64:67], s[0:1], 8")
    a("s_load_dwordx2 s[76:77], s[0:1], 24")
    a("s_load_dwordx2 s[90:91], s[0:1], 64")
    a("s_mul_i32 s36, s3, 13312")
    a("s_add_u32 s36, s36, %d" % RB)
    a("v_lshlrev_b32 v10, 4, v2")
    a("v_add_u32 v11, s36, v10")
    a("s_waitcnt lgkmcnt(0)")
    srd(a, 68, 66, 2048 * 576 * 2)
    a("s_mov_b32 s88, s64"); a("s_mov_b32 s89, s65")
    srd(a, 64, 88, 2048 * 576 * 2)
    srd(a, 72, 76, 576 * 8)
    srd(a, 92, 90, 2048 * 2048 * 2)
    a("s_barrier")
    n_ = 0
    for ft in range(4):
        for tt in range(2):
            a("ds_read_b128 %s, v11 offset:%d" % (vr(core.accr(ft, tt)), 1024 * n_)); n_ += 1
    for ft in range(4):
        a("ds_read_b128 %s, v11 offset:%d" % (vr(CS + 4 * ft), 1024 * n_)); n_ += 1
    a("s_branch %s_epi" % name)
    a.label("%s_A0" % name)
    emit_code_prefetch(a, name)
    a("s_load_dwordx4 s[64:67], s[0:1], 8")
    a("s_load_dwordx2 s[76:77], s[0:1], 24")
    a("s_load_dwordx2 s[90:91], s[0:1], 64")
    mma_setup()
    a("s_waitcnt lgkmcnt(0)")
    srds_main()
    srd(a, 68, 66, 2048 * 576 * 2)
    a("s_mov_b32 s88, s64"); a("s_mov_b32 s89, s65")
    srd(a, 64, 88, 2048 * 576 * 2)
    srd(a, 72, 76, 576 * 8)
    srd(a, 92, 90, 2048 * 2048 * 2)
    stamp_setup(a, 1); stamp(a, 0)
    def gran_addr():
        a("v_lshrrev_b32 v10, 4, v2")
        a("s_lshl_b32 s36, s25, 1")
        a("v_add_u32 v11, s36, v10")
        a("v_and_b32 v11, 3, v11")
        a("v_lshl_add_u32 v11, v11, 4, v3")
        a("v_lshlrev_b32 v94, 8, v11")
        a("s_lshl_b32 s59, s22, 7")
        a("s_lshl_b32 s36, s24, 6")
        a("s_add_u32 s59, s59, s36")
        a("s_lshl_b32 s59, s59, 8")
        a("s_add_u32 s59, s59, 0x%x" % STATS2)
        a("s_lshl_b32 s36, s23, 1")
        a("s_add_u32 s36, s36, s25")
        a("s_lshl_b32 s36, s36, 3")
        a("s_add_u32 s58, s36, s59")
    mma_addr(0)
    a("s_mov_b32 s33, 0")
    a("s_barrier")
    stamp(a, 1)
    a.label("%s_mma" % name)
    core.prime(0, core.reads(0, 0))
    trk.drain()
    def mfmas(buf):
        L = []
        for ft in range(5):
            A = core.F(buf, ft)
            for tt in range(4 if ft < 4 else 2):
                c = core.accr(ft, tt); B = core.T(buf, tt)
                L.append(("v_mfma_f32_16x16x32_bf16 %s, %s, %s, %s" % (vr(c), vr(A), vr(B), vr(c)), list(range(A, A + 4)) + list(range(B, B + 4))))
            L.append(("v_mfma_f32_16x16x32_bf16 %s, %s, %s, %s" % (vr(CS + 4 * ft), vr(A), vr(ONE), vr(CS + 4 * ft)), list(range(A, A + 4))))
        return L
    def phase(buf, pend):
        for (m, regs) in mfmas(buf):
            trk.need(regs)
            a(m)
            while pend:
                k, t = pend.pop(0)
                if k == "x":
                    a(t)
                    if t.startswith("s_"): continue
                else:
                    a(t[0]); trk.issue(t[1])
                break
        for k, t in pend:
            if k == "x": a(t)
            else: a(t[0]); trk.issue(t[1])
    def iteration():
        a("s_waitcnt vmcnt(0)")
        a("s_barrier")
        rd = [("r", t) for t in core.reads(1, 1)]
        upd = ["s_add_u32 s27, s27, %d" % SLOT, "s_cmp_eq_u32 s27, %d" % (R * SLOT), "s_cselect_b32 s27, 0, s27"]
        tail = ["v_add_u32 v%d, s27, v%d" % (d, s_) for d, s_ in ((vTa[0], bTa[0]), (vF, bF), (vTb[0], bTb[0]), (vFh, bFh))]
        phase(0, rd[:1] + [("x", u) for u in upd] + rd[1:] + [("x", u) for u in tail])
        rd = [("r", t) for t in core.reads(0, 0)]
        tail = ["v_add_u32 v%d, s27, v%d" % (d, s_) for d, s_ in ((vTa[1], bTa[1]), (vTb[1], bTb[1]))] + ["s_add_u32 s33, s33, 1"]
        phase(1, rd + [("x", u) for u in tail])
    a.label("%s_cloop" % name)
    lb = len(a.lines); iteration(); st = copy.deepcopy(trk.out); del a.lines[lb:]; trk.out = copy.deepcopy(st)
    iteration()
    assert [sorted(x) for x in trk.out] == [sorted(x) for x in st]
    a("s_cmp_lt_u32 s33, 9")
    a("s_cbranch_scc1 %s_cloop" % name)
    trk.drain()
    stamp(a, 2)
    a("s_waitcnt vmcnt(0)")
    a("s_barrier")
    a("s_mul_i32 s36, s3, 13312")
    a("s_add_u32 s36, s36, %d" % RB)
    a("v_lshlrev_b32 v10, 4, v2")
    a("v_add_u32 v11, s36, v10")
    n_ = 0
    for ft in range(4):
        for tt in range(2):
            a("ds_write_b128 v11, %s offset:%d" % (vr(core.accr(ft, tt + 2)), 1024 * n_)); n_ += 1
    for ft in range(4):
        a("ds_write_b128 v11, %s offset:%d" % (vr(CS + 4 * ft), 1024 * n_)); n_ += 1
    a("s_waitcnt lgkmcnt(0)")
    a("s_barrier")
    a.label("%s_epi" % name)
    MR = 100; T = 72; ZP = 200
    gelu_consts(a)
    a("s_xor_b32 s52, s98, s25")
    a("s_lshl_b32 s36, s24, 9")
    a("s_lshl_b32 s37, s52, 8")
    a("s_add_u32 s38, s36, s37")
    a("v_lshlrev_b32 v10, 3, v3")
    a("v_add_u32 v11, s38, v10")
    a("ds_read_b64 %s, v11 offset:%d" % (vr(MR, 2), RST))
    a("ds_read_b64 %s, v11 offset:%d" % (vr(MR + 2, 2), RST + 128))
    a("s_lshl_b32 s41, s2, 1")
    a("s_add_u32 s41, s41, s98")
    a("v_and_b32 v0, 255, v0")
    a("s_cmp_ge_u32 s41, 288")
    a("s_cbranch_scc1 %s_nokv1" % name)
    emit_kv_loads(a)
    a.label("%s_nokv1" % name)
    S = [108, 110]; Q = [109, 111]
    for r_ in range(108, 112): a("v_mov_b32 v%d, 0" % r_)
    a("s_waitcnt lgkmcnt(0)")
    ZPf = lambda n: (240 + 2 * n) if n < 8 else (196 + 2 * (n - 8))
    def dots(lst):
        for d in range(2):
            for (ft, tt) in lst:
                p = ZPf(2 * ft + tt) + d
                a("v_dot2_f32_bf16 v%d, v%d, v%d, v%d" % (S[tt], p, ONE, S[tt]))
                a("v_dot2_f32_bf16 v%d, v%d, v%d, v%d" % (Q[tt], p, p, Q[tt]))
    a("v_lshrrev_b32 v10, 4, v2")
    a("v_lshlrev_b32 v5, 12, v10")
    a("v_lshl_add_u32 v5, v3, 4, v5")
    a("s_lshl_b32 s33, s22, 7")
    a("s_lshl_b32 s36, s3, 5")
    a("s_add_u32 s33, s33, s36")
    a("s_lshl_b32 s36, s98, 4")
    a("s_add_u32 s33, s33, s36")
    a("s_lshl_b32 s33, s33, 12")
    a("s_lshl_b32 s36, s23, 8")
    a("s_add_u32 s33, s33, s36")
    for n in range(4):
        a("buffer_load_dwordx4 v[160:163], v5, s[92:95], s33 offen")
        if n < 3: a("s_add_u32 s33, s33, 16384")
    a("v_lshrrev_b32 v60, 2, v2"); a("v_and_b32 v60, 1, v60"); a("v_lshlrev_b32 v60, 4, v60")
    a("v_lshrrev_b32 v61, 3, v2"); a("v_and_b32 v61, 1, v61"); a("v_lshl_add_u32 v60, v61, 2, v60")
    a("v_and_b32 v61, 3, v2"); a("v_add_u32 v60, v60, v61")
    a("v_mul_u32_u24 v60, 288, v60")
    a("v_lshrrev_b32 v61, 1, v10"); a("v_lshl_add_u32 v60, v61, 4, v60")
    a("v_and_b32 v61, 1, v10")
    a("v_lshl_add_u32 v62, v61, 5, v60")
    a("v_mul_u32_u24 v61, 2304, v61")
    a("v_add_u32 v63, v60, v61")
    a("s_lshl_b32 s84, s23, 5")
    a("s_lshl_b32 s36, s22, 1")
    a("s_add_u32 s84, s84, s36")
    a("s_add_u32 s84, s84, s24")
    a("s_mul_i32 s84, s84, 18432")
    if ZIMG: a("s_add_u32 s84, s84, 0x%x" % ZIMG)
    a("s_mul_i32 s36, s52, 9216")
    a("s_add_u32 s85, s84, s36")
    a("s_add_u32 s86, s85, 128")
    a("s_mul_i32 s36, s25, 160")
    a("s_add_u32 s85, s85, s36")
    def norm_pair(nA, ttA, nB, ttB, O):
        for q, n in enumerate((nA, nB)):
            for d in range(2):
                a("v_mov_b32 v%d, v%d" % (O + 2 * q + d, ZPf(n) + d))
        a("s_nop 1")
        a("v_permlane16_swap_b32 v%d, v%d" % (O, O + 2))
        a("v_permlane16_swap_b32 v%d, v%d" % (O + 1, O + 3))
    a("s_cmp_lg_u32 s98, 0")
    a("s_cbranch_scc1 %s_nohalf" % name)
    lst = [(4, 0), (4, 1)]
    emit_fold_gelu(a, [(core.accr(ft, tt), CS + 4 * ft, MR + 2 * tt, ZPf(2 * ft + tt)) for ft, tt in lst], T)
    dots(lst)
    norm_pair(8, 0, 9, 1, 112)
    a("s_nop 0")
    a("buffer_store_dwordx4 %s, v63, s[12:15], s86 offen" % vr(112))
    a.label("%s_nohalf" % name)
    for pr, f0 in enumerate((0, 2)):
        lst = [(ft, tt) for ft in (f0, f0 + 1) for tt in range(2)]
        emit_fold_gelu(a, [(core.accr(ft, tt), CS + 4 * ft, MR + 2 * tt, ZPf(2 * ft + tt)) for ft, tt in lst], T)
        dots(lst)
        for tt in range(2):
            O = 116 + 8 * pr + 4 * tt - 0
            O = (116, 120, 124, 88)[2 * pr + tt]
            norm_pair(2 * f0 + tt, tt, 2 * (f0 + 1) + tt, tt, O)
            a("s_nop 0")
            a("buffer_store_dwordx4 %s, v62, s[12:15], s85 offen offset:%d" % (vr(O), tt * 2304 + 64 * pr))
    a("s_nop 2")
    emit_xg_reduce(a, S + Q, 72)
    a("s_lshl_b32 s59, s22, 7")
    a("s_lshl_b32 s36, s24, 6")
    a("s_add_u32 s59, s59, s36")
    a("s_lshl_b32 s36, s52, 5")
    a("s_add_u32 s59, s59, s36")
    a("s_lshl_b32 s59, s59, 8")
    a("s_add_u32 s59, s59, 0x%x" % STATS2)
    a("s_lshl_b32 s36, s23, 1")
    a("s_add_u32 s36, s36, s25")
    a("s_lshl_b32 s36, s36, 3")
    a("s_add_u32 s58, s36, s59")
    a("v_lshrrev_b32 v10, 4, v2")
    a("v_lshlrev_b32 v11, 8, v2")
    a("v_cmp_gt_u32 vcc, 32, v2")
    a("v_mov_b32 v12, 0x7ffffff0")
    a("v_cmp_eq_u32 s[36:37], 1, v10")
    a("v_cndmask_b32 v11, v12, v11, vcc")
    a("s_nop 0")
    a("v_cndmask_b32 v108, v108, v110, s[36:37]")
    a("v_cndmask_b32 v109, v109, v111, s[36:37]")
    a("buffer_store_dwordx2 v[108:109], v11, s[12:15], s58 offen")
    a("s_setprio 0")
    stamp(a, 3)
    a.label("%s_fin" % name)
    stamp(a, 4)
    a("s_cmp_ge_u32 s41, 288")
    a("s_cbranch_scc1 %s_fin2" % name)
    a("s_waitcnt vmcnt(9)")
    a("s_nop 4")
    emit_kv_compute(a, wait=False)
    a.label("%s_fin2" % name)
    stamp(a, 6)
    G.stamp_rt(a, 1)
    a.label("%s_end" % name)
    a("s_endpgm")
    return a.text(), kernel_desc(name, 256, 256), (name, 256, 512, LDSB)

gen_k2b = G3.gen_k2b; gen_k2c = G3.gen_k2c; gen_k2d = G3.gen_k2d; gen_k2e = G3.gen_k2e; gen_k2g = G3.gen_k2g; gen_k2f = G3.gen_k2f; gen_k3b = G3.gen_k3b; gen_k3c = G3.gen_k3c; gen_kw = G3.gen_kw; gen_k1g = G3.gen_k1g

if __name__ == "__main__":
    which = sys.argv[1]; out = sys.argv[2]
    if len(sys.argv) > 3: DBG.update(sys.argv[3].split(","))
    ks = [globals()["gen_" + w]() for w in which.split(",")]
    open(out, "w").write(assemble_file([k[2] for k in ks], "".join(k[0] for k in ks) + "code_end_lbl:\n", [k[1] for k in ks]))
```

```python
import sys, copy, re
from asmgen import *
import gen as G
import gen2 as G2
import gen3 as G3
from gen import (ZIMG, Z1IMG, PIMG, WOT, KVT, YT, STATS2, STATS1, WS_BYTES, DBG, LdsTracker, vr, stamp, stamp_setup,
                 rnd_pair, f32, emit_xg_reduce, emit_ln_finish)
from gen2 import VmTracker, TILES, tidx, emit_fold_gelu, gelu_consts, SPIN_MAX
from gen3 import emit_kv_loads, emit_kv_compute, emit_wot_loads

def emit_code_prefetch(a, name, nload=3):
    if "cpf" not in DBG: return
    a("s_getpc_b64 s[40:41]")
    a.label("%s_pc" % name)
    a("s_sub_u32 s40, s40, %s_pc-%s" % (name, name))
    a("s_subb_u32 s41, s41, 0")
    a("s_and_b32 s41, s41, 0xffff")
    a("s_mov_b32 s42, code_end_lbl-%s" % name)
    a("s_mov_b32 s43, 0x00020000")
    a("v_lshlrev_b32 v10, 7, v2")
    a("s_mul_i32 s36, s3, %d" % (nload * 8192))
    for n in range(nload):
        a("buffer_load_dword v200, v10, s[40:43], s36 offen")
        if n < nload - 1: a("s_add_u32 s36, s36, 8192")

def gen_k1h(name="k1_kernel", R=4):
    a = Asm()
    RB = 4096; SLOT = 34816; TREG = 16384; FS = 288; RST = 0
    LDSB = RB + R * SLOT
    def capture(f, *args):
        lb = len(a.lines); f(*args); out = a.lines[lb:]; del a.lines[lb:]; return out
    kernel_begin(a, name)
    a("s_load_dwordx2 s[80:81], s[0:1], 0")
    a("s_load_dwordx2 s[4:5], s[0:1], 56")
    a("s_load_dwordx2 s[6:7], s[0:1], 104")
    a("s_load_dwordx2 s[18:19], s[0:1], 96")
    a("s_cmp_ge_u32 s2, 256")
    a("s_cbranch_scc1 %s_end" % name)
    a("v_lshrrev_b32 v1, 6, v0")
    a("v_and_b32 v2, 63, v0")
    a("v_readfirstlane_b32 s3, v1")
    G2.tile_ij(a)
    a("s_lshr_b32 s98, s3, 2")
    a("s_mov_b32 s54x, 0".replace("s54x", "s99"))
    a("s_and_b32 s3, s3, 3")
    a("s_lshr_b32 s24, s3, 1")
    a("s_and_b32 s25, s3, 1")
    a("v_and_b32 v3, 15, v2")
    VT = 204; VF = 208
    def loader_setup():
        a("v_lshrrev_b32 v5, 3, v2")
        a("v_and_b32 v4, 7, v2")
        a("s_lshl_b32 s36, s3, 5")
        a("v_add_u32 v5, s36, v5")
        a("v_lshrrev_b32 v7, 4, v2")
        a("v_xor_b32 v7, v7, v4")
        a("v_mul_u32_u24 v6, 1152, v5")
        a("v_lshl_add_u32 v%d, v7, 4, v6" % VT)
        a("v_xor_b32 v%d, 64, v%d" % (VT + 1, VT))
        a("v_add_u32 v%d, %d, v%d" % (VT + 1, 9216 - 1024, VT + 1))
        a("v_add_u32 v%d, %d, v%d" % (VT + 2, 2 * (9216 - 1024), VT))
        a("v_add_u32 v%d, %d, v%d" % (VT + 3, 2 * (9216 - 1024), VT + 1))
        a("s_lshl_b32 s84, s3, 12")
        a("s_add_u32 s84, s84, %d" % RB)
        a("s_lshl_b32 s85, s3, 9")
        a("s_add_u32 s85, s85, %d" % (RB + TREG + 16384))
    def loader_setup2():
        for n in range(5):
            if n < 4:
                a("s_lshl_b32 s36, s3, 8")
                a("s_add_u32 s36, s36, %d" % (64 * n))
            else:
                a("s_lshl_b32 s36, s3, 5")
                a("s_add_u32 s36, s36, 1024")
            a("v_add_u32 v6, s36, v2")
            a("v_mul_u32_u24 v7, 3641, v6")
            a("v_lshrrev_b32 v7, 16, v7")
            a("v_mul_u32_u24 v8, 18, v7")
            a("v_sub_u32 v8, v6, v8")
            a("v_and_b32 v9, 35, v7")
            a("v_bfe_u32 v6, v7, 2, 2")
            a("v_lshl_add_u32 v9, v6, 3, v9")
            a("v_bfe_u32 v6, v7, 4, 1")
            a("v_lshl_add_u32 v9, v6, 2, v9")
            a("v_mul_u32_u24 v9, 9216, v9")
            a("v_lshl_add_u32 v%d, v8, 4, v9" % (VF + n))
            if 0 < n < 4: a("v_subrev_u32 v%d, %d, v%d" % (VF + n, 1024 * n, VF + n))
    def issueT(g):
        st = g % 9
        a("s_add_u32 s86, s84, %d" % ((g % R) * SLOT))
        a("s_mov_b32 m0, s86")
        a("s_add_u32 s87, s82, %d" % (128 * st))
        for n in range(4):
            a("buffer_load_dwordx4 v%d, s[28:31], s87 offen offset:%d lds" % (VT + n, 1024 * n))
    def issueF(g):
        st = g % 9
        a("s_add_u32 s86, s84, %d" % ((g % R) * SLOT + TREG))
        a("s_mov_b32 m0, s86")
        a("s_add_u32 s87, s83, %d" % (64 * 9216 * st + (4608 if g < 9 else 0)))
        for n in range(4):
            a("buffer_load_dwordx4 v%d, s[8:11], s87 offen offset:%d lds" % (VF + n, 1024 * n))
        a("s_add_u32 s86, s85, %d" % ((g % R) * SLOT))
        a("s_mov_b32 m0, s86")
        a("s_mov_b64 exec, 0xffffffff")
        a("buffer_load_dwordx4 v%d, s[8:11], s87 offen lds" % (VF + 4))
        a("s_mov_b64 exec, -1")
    def srds_main():
        srd(a, 28, 80, 2048 * 576 * 2)
        srd(a, 8, 4, 576 * 4608 * 2)
        srd(a, 12, 6, WS_BYTES)
        srd(a, 60, 18, 256)
        a("s_mul_i32 s82, s22, %d" % (128 * 1152))
        a("s_mul_i32 s83, s23, 288")
    ACC = 128; FB = [16, 52]; CS = 216; ONE = 236
    vTa = [4, 5]; vTb = [6, 7]; vF = 8; vFh = 9
    bTa = [88, 89]; bTb = [90, 91]; bF = 92; bFh = 93
    def mma_setup():
        a("v_lshrrev_b32 v10, 4, v2")
        a("v_lshrrev_b32 v11, 1, v3")
        a("v_xor_b32 v10, v10, v11")
        a("v_lshlrev_b32 v10, 4, v10")
        a("v_lshl_add_u32 v10, v3, 7, v10")
        a("s_lshl_b32 s26, s24, 13")
        a("s_add_u32 s26, s26, %d" % RB)
        a("v_add_u32 v10, s26, v10")
        a("s_lshl_b32 s26, s25, 12")
        a("v_add_u32 v%d, s26, v10" % bTa[0])
        a("s_xor_b32 s26, s26, 4096")
        a("v_add_u32 v%d, s26, v10" % bTb[0])
        a("v_xor_b32 v%d, 64, v%d" % (bTa[1], bTa[0]))
        a("v_xor_b32 v%d, 64, v%d" % (bTb[1], bTb[0]))
        a("v_lshrrev_b32 v10, 2, v2")
        a("v_mul_u32_u24 v10, %d, v10" % FS)
        a("v_and_b32 v11, 3, v2")
        a("v_lshl_add_u32 v10, v11, 3, v10")
        a("v_add_u32 v10, %d, v10" % (RB + TREG))
        a("s_mul_i32 s26, s25, 160")
        a("v_add_u32 v%d, s26, v10" % bF)
        a("v_add_u32 v%d, 128, v10" % bFh)
        for r in range(ACC, ACC + 72): a("v_mov_b32 v%d, 0" % r)
        for r in range(CS, CS + 20): a("v_mov_b32 v%d, 0" % r)
        for r in range(ONE, ONE + 4): a("v_mov_b32 v%d, 0x3f803f80" % r)
    def mma_addr(slot):
        a("s_mov_b32 s27, %d" % (slot * SLOT))
        for d, s_ in ((vTa[0], bTa[0]), (vTb[0], bTb[0]), (vTa[1], bTa[1]), (vTb[1], bTb[1]), (vF, bF), (vFh, bFh)):
            a("v_add_u32 v%d, s27, v%d" % (d, s_))
    core = G.Core(a, ACC, FB[0], FB[1], FS, TREG, vTa, vTb, vF, vFh)
    trk = core.trk
    a("s_cmp_eq_u32 s98, 0")
    a("s_cbranch_scc1 %s_A0" % name)
    a("s_setprio 3")
    loader_setup()
    a("s_waitcnt lgkmcnt(0)")
    srds_main()
    vm = VmTracker(a)
    def issue(g, vmx):
        issueT(g); issueF(g); vmx.issue("S%d" % g, 9)
    issueT(0)
    loader_setup2()
    issueF(0); vm.issue("S0", 9)
    issue(1, vm); issue(2, vm); issue(3, vm)
    a("s_add_u32 s3, s3, 4"); stamp_setup(a, 1); stamp(a, 0); a("s_sub_u32 s3, s3, 4")
    mma_setup()
    RA = 96; XB = 112
    for r in range(RA, RA + 16): a("v_mov_b32 v%d, 0" % r)
    a("v_lshrrev_b32 v10, 4, v2")
    a("v_lshrrev_b32 v11, 1, v3")
    a("v_xor_b32 v10, v10, v11")
    a("v_lshlrev_b32 v10, 4, v10")
    a("v_lshl_add_u32 v10, v3, 7, v10")
    a("v_add_u32 v12, s84, v10")
    a("v_xor_b32 v13, 64, v12")
    def rs_rd(g):
        a("v_add_u32 v10, %d, v12" % ((g % R) * SLOT))
        a("v_add_u32 v11, %d, v13" % ((g % R) * SLOT))
        for h in range(2):
            for n in range(2):
                a("ds_read_b128 %s, v%d offset:%d" % (vr(XB + 8 * h + 4 * n), 10 + h, 2048 * n))
    def rs_do():
        for h in range(2):
            for n in range(2):
                x = XB + 8 * h + 4 * n
                a("v_mfma_f32_16x16x32_bf16 %s, %s, %s, %s" % (vr(RA + 4 * n), vr(ONE), vr(x), vr(RA + 4 * n)))
                a("v_mfma_f32_16x16x32_bf16 %s, %s, %s, %s" % (vr(RA + 8 + 4 * n), vr(x), vr(x), vr(RA + 8 + 4 * n)))
    def interleave(dma, comp, vmx=None):
        groups = []; cur = []
        for l in dma:
            cur.append(l)
            if "buffer_load" in l and not any("exec, 0xffffffff" in x for x in cur[-2:]):
                groups.append(cur); cur = []
            elif "exec, -1" in l:
                groups.append(cur); cur = []
        if cur: groups.append(cur)
        ns = max(1, len(groups))
        per = (len(comp) + ns - 1) // ns
        for g in groups:
            a.lines.extend(g)
            a.lines.extend(comp[:per]); comp = comp[per:]
        a.lines.extend(comp)
    vm.wait(["S0"])
    a("s_barrier")
    stamp(a, 1)
    rs_rd(0)
    vm.wait(["S1"])
    a("s_barrier")
    for k in range(9):
        a("s_waitcnt lgkmcnt(0)")
        dma = capture(lambda: (issueT(k + 3), issueF(k + 3))) if k >= 1 else []
        interleave(dma, capture(rs_do))
        if k >= 1: vm.issue("S%d" % (k + 3), 9)
        if k < 8:
            rs_rd(k + 1)
        else:
            a("s_nop 7")
            a("v_lshrrev_b32 v10, 4, v2")
            a("v_lshrrev_b32 v11, 2, v3")
            a("v_and_b32 v12, 3, v3")
            for n in range(2):
                G_ = RA + 8 + 4 * n
                for r in range(1, 4):
                    a("v_cmp_eq_u32 vcc, %d, v12" % r)
                    a("s_nop 1")
                    a("v_cndmask_b32 v%d, v%d, v%d, vcc" % (G_, G_, G_ + r))
            ML = 112
            for n in range(2):
                emit_ln_finish(a, RA + 4 * n, RA + 8 + 4 * n, 576, ML + 2 * n, ML + 2 * n + 1, 120)
                a("v_mov_b32 v%d, v%d" % (117 + 2 * n, ML + 2 * n + 1))
                a("v_sub_f32 v%d, 0, v%d" % (116 + 2 * n, ML + 2 * n))
            a("s_lshl_b32 s35, s3, 8")
            a("v_lshlrev_b32 v13, 3, v3")
            a("v_add_u32 v12, s35, v13")
            a("v_cmp_eq_u32 vcc, v10, v11")
            a("s_and_saveexec_b64 s[36:37], vcc")
            for n in range(2):
                a("ds_write_b64 v12, %s offset:%d" % (vr(116 + 2 * n, 2), RST + 128 * n))
            a("s_mov_b64 exec, s[36:37]")
            a("s_cmp_lg_u32 s23, 0")
            a("s_cbranch_scc1 %s_nost1" % name)
            a("s_lshl_b32 s35, s22, 7")
            a("s_lshl_b32 s36, s3, 5")
            a("s_add_u32 s35, s35, s36")
            a("s_lshl_b32 s35, s35, 3")
            a("s_add_u32 s35, s35, 0x%x" % STATS1)
            a("v_mov_b32 v11, 0x7ffffff0")
            a("v_cndmask_b32 v13, v11, v13, vcc")
            for n in range(2):
                a("buffer_store_dwordx2 %s, v13, s[12:15], s35 offen offset:%d" % (vr(ML + 2 * n, 2), 128 * n))
            a.label("%s_nost1" % name)
            mma_addr(9 % R)
            a("s_mov_b32 s33, 0")
            a("s_setprio 0")
        vm.wait(["S%d" % (k + 2)], "lgkmcnt(0)" if k == 8 else "")
        if k < 8: a("s_barrier")
    a("s_branch %s_mma" % name)
    a.label("%s_A0" % name)
    emit_code_prefetch(a, name)
    a("s_load_dwordx4 s[64:67], s[0:1], 8")
    a("s_load_dwordx2 s[76:77], s[0:1], 24")
    a("s_load_dwordx2 s[90:91], s[0:1], 64")
    mma_setup()
    loader_setup(); loader_setup2()
    a("s_waitcnt lgkmcnt(0)")
    srds_main()
    srd(a, 68, 66, 2048 * 576 * 2)
    a("s_mov_b32 s88, s64"); a("s_mov_b32 s89, s65")
    srd(a, 64, 88, 2048 * 576 * 2)
    srd(a, 72, 76, 576 * 8)
    srd(a, 92, 90, 2048 * 2048 * 2)
    stamp_setup(a, 1); stamp(a, 0)
    def gran_addr():
        a("v_lshrrev_b32 v10, 4, v2")
        a("s_lshl_b32 s36, s25, 1")
        a("v_add_u32 v11, s36, v10")
        a("v_and_b32 v11, 3, v11")
        a("v_lshl_add_u32 v11, v11, 4, v3")
        a("v_lshlrev_b32 v94, 8, v11")
        a("s_lshl_b32 s59, s22, 7")
        a("s_lshl_b32 s36, s24, 6")
        a("s_add_u32 s59, s59, s36")
        a("s_lshl_b32 s59, s59, 8")
        a("s_add_u32 s59, s59, 0x%x" % STATS2)
        a("s_lshl_b32 s36, s23, 1")
        a("s_add_u32 s36, s36, s25")
        a("s_lshl_b32 s36, s36, 3")
        a("s_add_u32 s58, s36, s59")
    gran_addr()
    a("v_mov_b32 v12, 0"); a("v_mov_b32 v13, 0x80000000")
    a("buffer_store_dwordx2 v[12:13], v94, s[12:15], s58 offen sc1")
    mma_addr(0)
    a("s_mov_b32 s33, 0")
    a("s_barrier")
    stamp(a, 1)
    a.label("%s_mma" % name)
    core.prime(0, core.reads(0, 0))
    trk.drain()
    def mfmas(buf):
        L = []
        for ft in range(5):
            A = core.F(buf, ft)
            for tt in range(4 if ft < 4 else 2):
                c = core.accr(ft, tt); B = core.T(buf, tt)
                L.append(("v_mfma_f32_16x16x32_bf16 %s, %s, %s, %s" % (vr(c), vr(A), vr(B), vr(c)), list(range(A, A + 4)) + list(range(B, B + 4))))
            L.append(("v_mfma_f32_16x16x32_bf16 %s, %s, %s, %s" % (vr(CS + 4 * ft), vr(A), vr(ONE), vr(CS + 4 * ft)), list(range(A, A + 4))))
        return L
    def phase(buf, pend):
        for (m, regs) in mfmas(buf):
            trk.need(regs)
            a(m)
            while pend:
                k, t = pend.pop(0)
                if k == "x":
                    a(t)
                    if t.startswith("s_"): continue
                else:
                    a(t[0]); trk.issue(t[1])
                break
        for k, t in pend:
            if k == "x": a(t)
            else: a(t[0]); trk.issue(t[1])
    def iteration():
        a("s_waitcnt vmcnt(0)")
        a("s_barrier")
        rd = [("r", t) for t in core.reads(1, 1)]
        upd = ["s_add_u32 s27, s27, %d" % SLOT, "s_cmp_eq_u32 s27, %d" % (R * SLOT), "s_cselect_b32 s27, 0, s27"]
        tail = ["v_add_u32 v%d, s27, v%d" % (d, s_) for d, s_ in ((vTa[0], bTa[0]), (vF, bF), (vTb[0], bTb[0]), (vFh, bFh))]
        phase(0, rd[:1] + [("x", u) for u in upd] + rd[1:] + [("x", u) for u in tail])
        rd = [("r", t) for t in core.reads(0, 0)]
        tail = ["v_add_u32 v%d, s27, v%d" % (d, s_) for d, s_ in ((vTa[1], bTa[1]), (vTb[1], bTb[1]))] + ["s_add_u32 s33, s33, 1"]
        phase(1, rd + [("x", u) for u in tail])
    a.label("%s_cloop" % name)
    lb = len(a.lines); iteration(); st = copy.deepcopy(trk.out); del a.lines[lb:]; trk.out = copy.deepcopy(st)
    iteration()
    assert [sorted(x) for x in trk.out] == [sorted(x) for x in st]
    a("s_cmp_lt_u32 s33, 9")
    a("s_cbranch_scc1 %s_cloop" % name)
    trk.drain()
    stamp(a, 2)
    MR = 100; T = 72; ZP = 16
    def epi_in():
        gelu_consts(a)
        a("s_lshl_b32 s36, s24, 9")
        a("s_lshl_b32 s37, s25, 8")
        a("s_add_u32 s38, s36, s37")
        a("s_xor_b32 s37, s37, 256")
        a("s_add_u32 s39, s36, s37")
        a("v_lshlrev_b32 v10, 3, v3")
        a("v_add_u32 v11, s38, v10")
        a("ds_read_b64 %s, v11 offset:%d" % (vr(MR, 2), RST))
        a("ds_read_b64 %s, v11 offset:%d" % (vr(MR + 2, 2), RST + 128))
        a("v_add_u32 v11, s39, v10")
        a("ds_read_b64 %s, v11 offset:%d" % (vr(MR + 4, 2), RST))
        a("ds_read_b64 %s, v11 offset:%d" % (vr(MR + 6, 2), RST + 128))
        a("s_waitcnt lgkmcnt(0)")
    S = [108, 110, 52, 54]; Q = [109, 111, 53, 55]
    def gelu_ft(ft, stats):
        tts = range(4 if ft < 4 else 2)
        emit_fold_gelu(a, [(core.accr(ft, tt), CS + 4 * ft, MR + 2 * tt, ZP + 2 * tidx(ft, tt)) for tt in tts], T)
        if stats:
            for d in range(2):
                for tt in tts:
                    p = ZP + 2 * tidx(ft, tt) + d
                    a("v_dot2_f32_bf16 v%d, v%d, v%d, v%d" % (S[tt], p, ONE, S[tt]))
                    a("v_dot2_f32_bf16 v%d, v%d, v%d, v%d" % (Q[tt], p, p, Q[tt]))
    a("s_cmp_eq_u32 s98, 0")
    a("s_cbranch_scc1 %s_A1" % name)
    epi_in()
    a("s_lshl_b32 s36, s22, 4")
    a("s_add_u32 s36, s36, s23")
    a("s_lshl_b32 s36, s36, 2")
    a("s_add_u32 s36, s36, s3")
    a("s_mul_i32 s36, s36, 9216")
    a("s_add_u32 s36, s36, 0x%x" % Z1IMG)
    a("v_lshlrev_b32 v4, 4, v2")
    for ft in range(5):
        gelu_ft(ft, False)
        for q in ((2 * ft, 2 * ft + 1) if ft < 4 else (8,)):
            if q in (4, 8): a("s_add_u32 s36, s36, 4096")
            a("buffer_store_dwordx4 %s, v4, s[12:15], s36 offen offset:%d" % (vr(ZP + 4 * q), (q & 3) * 1024))
    stamp(a, 3)
    G.stamp_rt(a, 1)
    a("s_branch %s_end" % name)
    a.label("%s_A1" % name)
    a("s_setprio 2")
    vmA = VmTracker(a)
    PB = 132
    def aux_head():
        epi_in()
        for tt in range(4):
            a("v_mov_b32 v%d, 0" % S[tt]); a("v_mov_b32 v%d, 0" % Q[tt])
    def aux_pub():
        a("s_nop 2")
        emit_xg_reduce(a, S + Q, 72)
        a("v_lshrrev_b32 v10, 4, v2")
        for g in range(1, 4):
            a("v_cmp_eq_u32 vcc, %d, v10" % g)
            a("s_nop 1")
            a("v_cndmask_b32 v%d, v%d, v%d, vcc" % (S[0], S[0], S[g]))
            a("v_cndmask_b32 v%d, v%d, v%d, vcc" % (Q[0], Q[0], Q[g]))
        a("v_and_b32 v%d, 0x7fffffff, v%d" % (Q[0], Q[0]))
        a("buffer_store_dwordx2 v[%d:%d], v94, s[12:15], s58 offen sc1" % (S[0], Q[0]))
    chunks = [capture(aux_head) + capture(gelu_ft, 0, True), capture(gelu_ft, 1, True), capture(gelu_ft, 2, True),
              capture(gelu_ft, 3, True), capture(gelu_ft, 4, True) + capture(aux_pub)]
    KD = 172
    for k in range(9, 18):
        a("s_barrier")
        if k == 9:
            a("s_cmp_lg_u32 s3, 0")
            a("s_cbranch_scc1 %s_nosig" % name)
            a("v_mov_b32 v10, 1")
            a("s_lshl_b32 s36, s22, 2")
            a("v_mov_b32 v11, s36")
            a("s_mov_b64 exec, 1")
            a("buffer_atomic_add v10, v11, s[60:63], 0 offen sc1")
            a("s_mov_b64 exec, -1")
            a.label("%s_nosig" % name)
        g = k + 3
        dma = capture(lambda: (issueT(g), issueF(g))) if g < 18 else []
        comp = chunks[k - 9] if k - 9 < len(chunks) else []
        interleave(dma, comp)
        if k == 13: vmA.issue("pub", 1)
        if g < 18: vmA.issue("S%d" % g, 9)
        if k == 14:
            a("s_mov_b32 s41, s2")
            emit_kv_loads(a, KD, KD + 12, KD + 20, KD + 24, KD + 25); vmA.issue("kv", 20)
            a("s_lshl_b32 s36, s22, 2")
            a("v_mov_b32 v199, s36")
            a("buffer_load_dword v198, v199, s[60:63], 0 offen sc1"); vmA.issue("cnt", 1)
        if k + 2 < 18 and k + 2 >= 12:
            vmA.wait(["S%d" % (k + 2)])
    stamp(a, 3)
    a("s_setprio 0")
    a("v_lshrrev_b32 v10, 4, v2")
    a("v_lshlrev_b32 v95, 8, v3")
    a("v_lshl_add_u32 v95, v10, 6, v95")
    a("s_lshl_b32 s33, s25, 13")
    a("s_add_u32 s52, s59, s33")
    a("s_xor_b32 s33, s33, 8192")
    a("s_add_u32 s53, s59, s33")
    a("s_add_u32 s42, s52, 4096")
    a("s_add_u32 s43, s53, 4096")
    for r_ in range(36): a("v_mov_b32 v%d, v%d" % (216 + r_, ZP + r_))
    Z2 = 216
    a("s_waitcnt vmcnt(0)")
    GB = [128, 144, 160, 176]
    for n in range(11): a("v_mov_b32 v%d, v%d" % (16 + n, KD + n))
    for n in range(8): a("v_mov_b32 v%d, v%d" % (32 + n, KD + 12 + n))
    for n in range(4): a("v_mov_b32 v%d, v%d" % (44 + n, KD + 20 + n))
    a("v_mov_b32 v56, v%d" % (KD + 24)); a("v_mov_b32 v57, v%d" % (KD + 25))
    a("v_mov_b32 v4, v95")
    def gather():
        for tt in range(4):
            for q in range(4):
                a("buffer_load_dwordx4 %s, v4, s[12:15], s%d offen offset:%d sc1" % (vr(GB[tt] + 4 * q), (52, 42, 53, 43)[tt], 16 * q))
    gather()
    emit_kv_compute(a, wait=False, store=False)
    stamp(a, 4)
    a("s_mov_b32 s40, 0")
    a("s_waitcnt vmcnt(0)")
    a.label("%s_chk" % name)
    a("v_subrev_u32 v11, 16, v198")
    for tt in range(4):
        for r in range(GB[tt] + 1, GB[tt] + 16, 4):
            a("v_or3_b32 v11, v11, v%d, v%d" % (r, r + 2))
    a("v_cmp_gt_i32 vcc, 0, v11")
    a("s_add_u32 s40, s40, 1")
    a("s_cmp_gt_u32 s40, %d" % SPIN_MAX)
    a("s_cbranch_scc1 %s_ok" % name)
    a("s_cbranch_vccz %s_ok" % name)
    a("s_sleep 32")
    a("buffer_load_dword v198, v199, s[60:63], 0 offen sc1")
    a("s_waitcnt vmcnt(0)")
    gather()
    a("s_waitcnt vmcnt(0)")
    a("s_branch %s_chk" % name)
    a.label("%s_ok" % name)
    stamp(a, 5)
    a("v_lshrrev_b32 v5, 4, v2")
    a("v_lshlrev_b32 v5, 12, v5")
    a("v_lshl_add_u32 v5, v3, 4, v5")
    a("s_lshl_b32 s33, s22, 7")
    a("s_lshl_b32 s36, s3, 5")
    a("s_add_u32 s33, s33, s36")
    a("s_lshl_b32 s33, s33, 12")
    a("s_lshl_b32 s36, s23, 8")
    a("s_add_u32 s33, s33, s36")
    for n in range(8):
        a("buffer_load_dwordx4 v[200:203], v5, s[92:95], s33 offen")
        if n < 7: a("s_add_u32 s33, s33, 16384")
    a("s_mov_b32 s39, 0x%x" % KVT)
    a("buffer_store_dwordx4 v[120:123], v12, s[12:15], s39 offen")
    a("buffer_store_dwordx4 v[124:127], v13, s[12:15], s39 offen")
    for tt in range(4):
        b = GB[tt]
        for st_ in (8, 4, 2):
            for q in range(0, st_, 2):
                a("v_pk_add_f32 %s, %s, %s" % (vr(b + q, 2), vr(b + q, 2), vr(b + q + st_, 2)))
    emit_xg_reduce(a, [GB[tt] + e for tt in range(4) for e in range(2)], 72)
    for tt in range(4):
        b = GB[tt]
        emit_ln_finish(a, b, b + 1, 2304, b + 2, MR + 2 * tt, b + 4)
        a("v_mul_f32 v%d, -v%d, v%d" % (MR + 2 * tt + 1, b + 2, MR + 2 * tt))
    a("v_lshrrev_b32 v10, 4, v2")
    a("v_lshrrev_b32 v11, 2, v2"); a("v_and_b32 v11, 1, v11"); a("v_lshlrev_b32 v11, 4, v11")
    a("v_lshrrev_b32 v5, 3, v2"); a("v_and_b32 v5, 1, v5"); a("v_lshl_add_u32 v11, v5, 2, v11")
    a("v_and_b32 v5, 3, v2"); a("v_add_u32 v11, v11, v5")
    a("v_mul_u32_u24 v11, 288, v11")
    a("v_lshrrev_b32 v5, 1, v10"); a("v_lshl_add_u32 v11, v5, 4, v11")
    a("v_and_b32 v5, 1, v10")
    a("v_lshl_add_u32 v6, v5, 5, v11")
    a("v_mul_u32_u24 v5, 2304, v5")
    a("v_add_u32 v9, v11, v5")
    a("s_lshl_b32 s33, s23, 5")
    a("s_lshl_b32 s36, s22, 1")
    a("s_add_u32 s33, s33, s36")
    a("s_add_u32 s33, s33, s24")
    a("s_mul_i32 s33, s33, 18432")
    if ZIMG: a("s_add_u32 s33, s33, 0x%x" % ZIMG)
    a("s_mul_i32 s36, s25, 9216")
    a("s_add_u32 s37, s33, s36")
    a("s_xor_b32 s36, s36, 9216")
    a("s_add_u32 s38, s33, s36")
    a("s_add_u32 s39, s37, 128")
    a("s_mul_i32 s36, s25, 160")
    a("s_add_u32 s37, s37, s36")
    a("s_add_u32 s38, s38, s36")
    def norm_pair(nA, ttA, nB, ttB, O):
        for q, (n, tt) in enumerate(((nA, ttA), (nB, ttB))):
            for d in range(2):
                z = Z2 + 2 * n + d; t = T + 4 * q + 2 * d
                a("v_lshlrev_b32 v%d, 16, v%d" % (t, z))
                a("v_and_b32 v%d, 0xffff0000, v%d" % (t + 1, z))
        for q, (n, tt) in enumerate(((nA, ttA), (nB, ttB))):
            for d in range(2):
                t = T + 4 * q + 2 * d
                a("v_pk_fma_f32 %s, %s, %s, %s op_sel:[0,0,1] op_sel_hi:[1,0,1]" % (vr(t, 2), vr(t, 2), vr(MR + 2 * tt, 2), vr(MR + 2 * tt, 2)))
        for q in range(2):
            for d in range(2):
                t = T + 4 * q + 2 * d
                a("v_cvt_pk_bf16_f32 v%d, v%d, v%d" % (O + 2 * q + d, t, t + 1))
        a("s_nop 1")
        a("v_permlane16_swap_b32 v%d, v%d" % (O, O + 2))
        a("v_permlane16_swap_b32 v%d, v%d" % (O + 1, O + 3))
    cnt = 0
    for pr in range(2):
        for tt in range(4):
            O = 16 + 4 * cnt; cnt += 1
            norm_pair(tidx(2 * pr, tt), tt, tidx(2 * pr + 1, tt), tt, O)
            a("s_nop 0")
            a("buffer_store_dwordx4 %s, v6, s[12:15], s%d offen offset:%d" % (vr(O), 37 if tt < 2 else 38, (tt & 1) * 2304 + 64 * pr))
    O = 16 + 4 * cnt
    norm_pair(16, 0, 17, 1, O)
    a("s_nop 0")
    a("buffer_store_dwordx4 %s, v9, s[12:15], s39 offen" % vr(O))
    stamp(a, 6)
    a("s_cmp_ge_u32 s2, 32")
    a("s_cbranch_scc1 %s_fin" % name)
    a("s_add_u32 s41, s2, 256")
    emit_kv_loads(a)
    emit_kv_compute(a)
    a.label("%s_fin" % name)
    stamp(a, 7)
    G.stamp_rt(a, 1)
    a.label("%s_end" % name)
    a("s_endpgm")
    return a.text(), kernel_desc(name, 256, 256), (name, 256, 512, LDSB)

def gen_kf(name="k1_kernel", R=4):
    a = Asm()
    RB = 4096; SLOT = 34816; TREG = 16384; FS = 288; RST = 0
    LDSB = RB + R * SLOT
    LC = 2048
    ZFLG = 0x2D00000
    from gen3 import emit_conv_loads, emit_conv_job, CJ_SIZE
    def capture(f, *args):
        lb = len(a.lines); f(*args); out = a.lines[lb:]; del a.lines[lb:]; return out
    kernel_begin(a, name)
    a("s_load_dwordx2 s[80:81], s[0:1], 0")
    a("s_load_dwordx2 s[4:5], s[0:1], 56")
    a("s_load_dwordx2 s[6:7], s[0:1], 104")
    a("s_load_dwordx2 s[18:19], s[0:1], 96")
    a("s_cmp_ge_u32 s2, 256")
    a("s_cbranch_scc1 %s_end" % name)
    a("v_lshrrev_b32 v1, 6, v0")
    a("v_and_b32 v2, 63, v0")
    a("v_readfirstlane_b32 s3, v1")
    G2.tile_ij(a)
    a("s_lshr_b32 s98, s3, 2")
    a("s_mov_b32 s54x, 0".replace("s54x", "s99"))
    a("s_and_b32 s3, s3, 3")
    a("s_lshr_b32 s24, s3, 1")
    a("s_and_b32 s25, s3, 1")
    a("v_and_b32 v3, 15, v2")
    VT = 204; VF = 208
    def loader_setup():
        a("v_lshrrev_b32 v5, 3, v2")
        a("v_and_b32 v4, 7, v2")
        a("s_lshl_b32 s36, s3, 5")
        a("v_add_u32 v5, s36, v5")
        a("v_lshrrev_b32 v7, 4, v2")
        a("v_xor_b32 v7, v7, v4")
        a("v_mul_u32_u24 v6, 1152, v5")
        a("v_lshl_add_u32 v%d, v7, 4, v6" % VT)
        a("v_xor_b32 v%d, 64, v%d" % (VT + 1, VT))
        a("v_add_u32 v%d, %d, v%d" % (VT + 1, 9216 - 1024, VT + 1))
        a("v_add_u32 v%d, %d, v%d" % (VT + 2, 2 * (9216 - 1024), VT))
        a("v_add_u32 v%d, %d, v%d" % (VT + 3, 2 * (9216 - 1024), VT + 1))
        a("s_lshl_b32 s84, s3, 12")
        a("s_add_u32 s84, s84, %d" % RB)
        a("s_lshl_b32 s85, s3, 9")
        a("s_add_u32 s85, s85, %d" % (RB + TREG + 16384))
    def loader_setup2():
        for n in range(5):
            if n < 4:
                a("s_lshl_b32 s36, s3, 8")
                a("s_add_u32 s36, s36, %d" % (64 * n))
            else:
                a("s_lshl_b32 s36, s3, 5")
                a("s_add_u32 s36, s36, 1024")
            a("v_add_u32 v6, s36, v2")
            a("v_mul_u32_u24 v7, 3641, v6")
            a("v_lshrrev_b32 v7, 16, v7")
            a("v_mul_u32_u24 v8, 18, v7")
            a("v_sub_u32 v8, v6, v8")
            a("v_and_b32 v9, 35, v7")
            a("v_bfe_u32 v6, v7, 2, 2")
            a("v_lshl_add_u32 v9, v6, 3, v9")
            a("v_bfe_u32 v6, v7, 4, 1")
            a("v_lshl_add_u32 v9, v6, 2, v9")
            a("v_mul_u32_u24 v9, 9216, v9")
            a("v_lshl_add_u32 v%d, v8, 4, v9" % (VF + n))
            if 0 < n < 4: a("v_subrev_u32 v%d, %d, v%d" % (VF + n, 1024 * n, VF + n))
    def issueT(g):
        st = g % 9
        a("s_add_u32 s86, s84, %d" % ((g % R) * SLOT))
        a("s_mov_b32 m0, s86")
        a("s_add_u32 s87, s82, %d" % (128 * st))
        for n in range(4):
            a("buffer_load_dwordx4 v%d, s[28:31], s87 offen offset:%d lds" % (VT + n, 1024 * n))
    def issueF(g):
        st = g % 9
        a("s_add_u32 s86, s84, %d" % ((g % R) * SLOT + TREG))
        a("s_mov_b32 m0, s86")
        a("s_add_u32 s87, s83, %d" % (64 * 9216 * st + (4608 if g < 9 else 0)))
        for n in range(4):
            a("buffer_load_dwordx4 v%d, s[8:11], s87 offen offset:%d lds" % (VF + n, 1024 * n))
        a("s_add_u32 s86, s85, %d" % ((g % R) * SLOT))
        a("s_mov_b32 m0, s86")
        a("s_mov_b64 exec, 0xffffffff")
        a("buffer_load_dwordx4 v%d, s[8:11], s87 offen lds" % (VF + 4))
        a("s_mov_b64 exec, -1")
    def srds_main():
        srd(a, 28, 80, 2048 * 576 * 2)
        srd(a, 8, 4, 576 * 4608 * 2)
        srd(a, 12, 6, WS_BYTES)
        srd(a, 60, 18, 256)
        a("s_mul_i32 s82, s22, %d" % (128 * 1152))
        a("s_mul_i32 s83, s23, 288")
    ACC = 128; FB = [16, 52]; CS = 216; ONE = 236
    vTa = [4, 5]; vTb = [6, 7]; vF = 8; vFh = 9
    bTa = [88, 89]; bTb = [90, 91]; bF = 92; bFh = 93
    def mma_setup():
        a("v_lshrrev_b32 v10, 4, v2")
        a("v_lshrrev_b32 v11, 1, v3")
        a("v_xor_b32 v10, v10, v11")
        a("v_lshlrev_b32 v10, 4, v10")
        a("v_lshl_add_u32 v10, v3, 7, v10")
        a("s_lshl_b32 s26, s24, 13")
        a("s_add_u32 s26, s26, %d" % RB)
        a("v_add_u32 v10, s26, v10")
        a("s_lshl_b32 s26, s25, 12")
        a("v_add_u32 v%d, s26, v10" % bTa[0])
        a("s_xor_b32 s26, s26, 4096")
        a("v_add_u32 v%d, s26, v10" % bTb[0])
        a("v_xor_b32 v%d, 64, v%d" % (bTa[1], bTa[0]))
        a("v_xor_b32 v%d, 64, v%d" % (bTb[1], bTb[0]))
        a("v_lshrrev_b32 v10, 2, v2")
        a("v_mul_u32_u24 v10, %d, v10" % FS)
        a("v_and_b32 v11, 3, v2")
        a("v_lshl_add_u32 v10, v11, 3, v10")
        a("v_add_u32 v10, %d, v10" % (RB + TREG))
        a("s_mul_i32 s26, s25, 160")
        a("v_add_u32 v%d, s26, v10" % bF)
        a("v_add_u32 v%d, 128, v10" % bFh)
        for r in range(ACC, ACC + 72): a("v_mov_b32 v%d, 0" % r)
        for r in range(CS, CS + 20): a("v_mov_b32 v%d, 0" % r)
        for r in range(ONE, ONE + 4): a("v_mov_b32 v%d, 0x3f803f80" % r)
    def mma_addr(slot):
        a("s_mov_b32 s27, %d" % (slot * SLOT))
        for d, s_ in ((vTa[0], bTa[0]), (vTb[0], bTb[0]), (vTa[1], bTa[1]), (vTb[1], bTb[1]), (vF, bF), (vFh, bFh)):
            a("v_add_u32 v%d, s27, v%d" % (d, s_))
    core = G.Core(a, ACC, FB[0], FB[1], FS, TREG, vTa, vTb, vF, vFh)
    trk = core.trk
    a("s_cmp_eq_u32 s98, 0")
    a("s_cbranch_scc1 %s_A0" % name)
    a("s_setprio 3")
    loader_setup()
    a("s_waitcnt lgkmcnt(0)")
    srds_main()
    vm = VmTracker(a)
    def issue(g, vmx):
        issueT(g); issueF(g); vmx.issue("S%d" % g, 9)
    issueT(0)
    loader_setup2()
    issueF(0); vm.issue("S0", 9)
    issue(1, vm); issue(2, vm); issue(3, vm)
    a("s_add_u32 s3, s3, 4"); stamp_setup(a, 1); stamp(a, 0); a("s_sub_u32 s3, s3, 4")
    mma_setup()
    RA = 96; XB = 112
    for r in range(RA, RA + 16): a("v_mov_b32 v%d, 0" % r)
    a("v_lshrrev_b32 v10, 4, v2")
    a("v_lshrrev_b32 v11, 1, v3")
    a("v_xor_b32 v10, v10, v11")
    a("v_lshlrev_b32 v10, 4, v10")
    a("v_lshl_add_u32 v10, v3, 7, v10")
    a("v_add_u32 v12, s84, v10")
    a("v_xor_b32 v13, 64, v12")
    def rs_rd(g):
        a("v_add_u32 v10, %d, v12" % ((g % R) * SLOT))
        a("v_add_u32 v11, %d, v13" % ((g % R) * SLOT))
        for h in range(2):
            for n in range(2):
                a("ds_read_b128 %s, v%d offset:%d" % (vr(XB + 8 * h + 4 * n), 10 + h, 2048 * n))
    def rs_do():
        for h in range(2):
            for n in range(2):
                x = XB + 8 * h + 4 * n
                a("v_mfma_f32_16x16x32_bf16 %s, %s, %s, %s" % (vr(RA + 4 * n), vr(ONE), vr(x), vr(RA + 4 * n)))
                a("v_mfma_f32_16x16x32_bf16 %s, %s, %s, %s" % (vr(RA + 8 + 4 * n), vr(x), vr(x), vr(RA + 8 + 4 * n)))
    def interleave(dma, comp, vmx=None):
        groups = []; cur = []
        for l in dma:
            cur.append(l)
            if "buffer_load" in l and not any("exec, 0xffffffff" in x for x in cur[-2:]):
                groups.append(cur); cur = []
            elif "exec, -1" in l:
                groups.append(cur); cur = []
        if cur: groups.append(cur)
        ns = max(1, len(groups))
        per = (len(comp) + ns - 1) // ns
        for g in groups:
            a.lines.extend(g)
            a.lines.extend(comp[:per]); comp = comp[per:]
        a.lines.extend(comp)
    vm.wait(["S0"])
    a("s_barrier")
    stamp(a, 1)
    rs_rd(0)
    vm.wait(["S1"])
    a("s_barrier")
    for k in range(9):
        a("s_waitcnt lgkmcnt(0)")
        dma = capture(lambda: (issueT(k + 3), issueF(k + 3))) if k >= 1 else []
        interleave(dma, capture(rs_do))
        if k >= 1: vm.issue("S%d" % (k + 3), 9)
        if k < 8:
            rs_rd(k + 1)
        else:
            a("s_nop 7")
            a("v_lshrrev_b32 v10, 4, v2")
            a("v_lshrrev_b32 v11, 2, v3")
            a("v_and_b32 v12, 3, v3")
            for n in range(2):
                G_ = RA + 8 + 4 * n
                for r in range(1, 4):
                    a("v_cmp_eq_u32 vcc, %d, v12" % r)
                    a("s_nop 1")
                    a("v_cndmask_b32 v%d, v%d, v%d, vcc" % (G_, G_, G_ + r))
            ML = 112
            for n in range(2):
                emit_ln_finish(a, RA + 4 * n, RA + 8 + 4 * n, 576, ML + 2 * n, ML + 2 * n + 1, 120)
                a("v_mov_b32 v%d, v%d" % (117 + 2 * n, ML + 2 * n + 1))
                a("v_sub_f32 v%d, 0, v%d" % (116 + 2 * n, ML + 2 * n))
            a("s_lshl_b32 s35, s3, 8")
            a("v_lshlrev_b32 v13, 3, v3")
            a("v_add_u32 v12, s35, v13")
            a("v_cmp_eq_u32 vcc, v10, v11")
            a("s_and_saveexec_b64 s[36:37], vcc")
            for n in range(2):
                a("ds_write_b64 v12, %s offset:%d" % (vr(116 + 2 * n, 2), RST + 128 * n))
            a("s_mov_b64 exec, s[36:37]")
            a("s_cmp_lg_u32 s23, 0")
            a("s_cbranch_scc1 %s_nost1" % name)
            a("s_lshl_b32 s35, s22, 7")
            a("s_lshl_b32 s36, s3, 5")
            a("s_add_u32 s35, s35, s36")
            a("s_lshl_b32 s35, s35, 3")
            a("s_add_u32 s35, s35, 0x%x" % STATS1)
            a("v_mov_b32 v11, 0x7ffffff0")
            a("v_cndmask_b32 v13, v11, v13, vcc")
            for n in range(2):
                a("buffer_store_dwordx2 %s, v13, s[12:15], s35 offen offset:%d" % (vr(ML + 2 * n, 2), 128 * n))
            a.label("%s_nost1" % name)
            mma_addr(9 % R)
            a("s_mov_b32 s33, 0")
            a("s_setprio 0")
        vm.wait(["S%d" % (k + 2)], "lgkmcnt(0)" if k == 8 else "")
        if k < 8: a("s_barrier")
    a("s_branch %s_mma" % name)
    a.label("%s_A0" % name)
    emit_code_prefetch(a, name)
    a("s_load_dwordx4 s[64:67], s[0:1], 8")
    a("s_load_dwordx2 s[76:77], s[0:1], 24")
    a("s_load_dwordx2 s[78:79], s[0:1], 64")
    mma_setup()
    loader_setup(); loader_setup2()
    a("s_waitcnt lgkmcnt(0)")
    srds_main()
    srd(a, 68, 66, 2048 * 576 * 2)
    a("s_mov_b32 s88, s64"); a("s_mov_b32 s89, s65")
    srd(a, 64, 88, 2048 * 576 * 2)
    srd(a, 72, 76, 576 * 8)
    stamp_setup(a, 1); stamp(a, 0)
    def gran_addr():
        a("v_lshrrev_b32 v10, 4, v2")
        a("s_lshl_b32 s36, s25, 1")
        a("v_add_u32 v11, s36, v10")
        a("v_and_b32 v11, 3, v11")
        a("v_lshl_add_u32 v11, v11, 4, v3")
        a("v_lshlrev_b32 v94, 8, v11")
        a("s_lshl_b32 s59, s22, 7")
        a("s_lshl_b32 s36, s24, 6")
        a("s_add_u32 s59, s59, s36")
        a("s_lshl_b32 s59, s59, 8")
        a("s_add_u32 s59, s59, 0x%x" % STATS2)
        a("s_lshl_b32 s36, s23, 1")
        a("s_add_u32 s36, s36, s25")
        a("s_lshl_b32 s36, s36, 3")
        a("s_add_u32 s58, s36, s59")
    gran_addr()
    a("v_mov_b32 v12, 0"); a("v_mov_b32 v13, 0x80000000")
    a("buffer_store_dwordx2 v[12:13], v94, s[12:15], s58 offen sc1")
    a("s_lshl_b32 s36, s22, 4")
    a("s_add_u32 s36, s36, s23")
    a("s_lshl_b32 s36, s36, 8")
    a("s_add_u32 s97, s36, 0x%x" % ZFLG)
    a("v_mov_b32 v10, %d" % LC)
    a("v_mov_b32 v12, 0"); a("v_mov_b32 v13, 0")
    a("s_mov_b64 exec, 1")
    a("buffer_store_dword v12, v12, s[12:15], s97 offen sc1")
    a("s_mov_b64 exec, -1")
    a("ds_write_b64 v10, v[12:13]")
    a("ds_write_b64 v10, v[12:13] offset:8")
    mma_addr(0)
    a("s_mov_b32 s33, 0")
    a("s_waitcnt lgkmcnt(0)")
    a("s_barrier")
    stamp(a, 1)
    a.label("%s_mma" % name)
    core.prime(0, core.reads(0, 0))
    trk.drain()
    nocs = [False]
    def mfmas(buf):
        L = []
        for ft in range(5):
            A = core.F(buf, ft)
            for tt in range(4 if ft < 4 else 2):
                c = core.accr(ft, tt); B = core.T(buf, tt)
                L.append(("v_mfma_f32_16x16x32_bf16 %s, %s, %s, %s" % (vr(c), vr(A), vr(B), vr(c)), list(range(A, A + 4)) + list(range(B, B + 4))))
            if not nocs[0]: L.append(("v_mfma_f32_16x16x32_bf16 %s, %s, %s, %s" % (vr(CS + 4 * ft), vr(A), vr(ONE), vr(CS + 4 * ft)), list(range(A, A + 4))))
        return L
    def phase(buf, pend):
        for (m, regs) in mfmas(buf):
            trk.need(regs)
            a(m)
            while pend:
                k, t = pend.pop(0)
                if k == "x":
                    a(t)
                    if t.startswith("s_"): continue
                else:
                    a(t[0]); trk.issue(t[1])
                break
        for k, t in pend:
            if k == "x": a(t)
            else: a(t[0]); trk.issue(t[1])
    def iteration(vw=True):
        if vw: a("s_waitcnt vmcnt(0)")
        a("s_barrier")
        rd = [("r", t) for t in core.reads(1, 1)]
        upd = ["s_add_u32 s27, s27, %d" % SLOT, "s_cmp_eq_u32 s27, %d" % (R * SLOT), "s_cselect_b32 s27, 0, s27"]
        tail = ["v_add_u32 v%d, s27, v%d" % (d, s_) for d, s_ in ((vTa[0], bTa[0]), (vF, bF), (vTb[0], bTb[0]), (vFh, bFh))]
        phase(0, rd[:1] + [("x", u) for u in upd] + rd[1:] + [("x", u) for u in tail])
        rd = [("r", t) for t in core.reads(0, 0)]
        tail = ["v_add_u32 v%d, s27, v%d" % (d, s_) for d, s_ in ((vTa[1], bTa[1]), (vTb[1], bTb[1]))] + ["s_add_u32 s33, s33, 1"]
        phase(1, rd + [("x", u) for u in tail])
    a.label("%s_cloop" % name)
    lb = len(a.lines); iteration(); st = copy.deepcopy(trk.out); del a.lines[lb:]; trk.out = copy.deepcopy(st)
    iteration()
    assert [sorted(x) for x in trk.out] == [sorted(x) for x in st]
    a("s_cmp_lt_u32 s33, 9")
    a("s_cbranch_scc1 %s_cloop" % name)
    trk.drain()
    stamp(a, 2)
    MR = 100; T = 72; ZP = 16
    def epi_in():
        gelu_consts(a)
        a("s_lshl_b32 s36, s24, 9")
        a("s_lshl_b32 s37, s25, 8")
        a("s_add_u32 s38, s36, s37")
        a("s_xor_b32 s37, s37, 256")
        a("s_add_u32 s39, s36, s37")
        a("v_lshlrev_b32 v10, 3, v3")
        a("v_add_u32 v11, s38, v10")
        a("ds_read_b64 %s, v11 offset:%d" % (vr(MR, 2), RST))
        a("ds_read_b64 %s, v11 offset:%d" % (vr(MR + 2, 2), RST + 128))
        a("v_add_u32 v11, s39, v10")
        a("ds_read_b64 %s, v11 offset:%d" % (vr(MR + 4, 2), RST))
        a("ds_read_b64 %s, v11 offset:%d" % (vr(MR + 6, 2), RST + 128))
        a("s_waitcnt lgkmcnt(0)")
    S = [108, 110, 52, 54]; Q = [109, 111, 53, 55]
    def gelu_ft(ft, stats):
        tts = range(4 if ft < 4 else 2)
        emit_fold_gelu(a, [(core.accr(ft, tt), CS + 4 * ft, MR + 2 * tt, ZP + 2 * tidx(ft, tt)) for tt in tts], T)
        if stats:
            for d in range(2):
                for tt in tts:
                    p = ZP + 2 * tidx(ft, tt) + d
                    a("v_dot2_f32_bf16 v%d, v%d, v%d, v%d" % (S[tt], p, ONE, S[tt]))
                    a("v_dot2_f32_bf16 v%d, v%d, v%d, v%d" % (Q[tt], p, p, Q[tt]))
    a("s_cmp_eq_u32 s98, 0")
    a("s_cbranch_scc1 %s_A1" % name)
    a("s_barrier")
    a("s_load_dwordx4 s[64:67], s[0:1], 8")
    a("s_load_dwordx2 s[76:77], s[0:1], 24")
    a("s_load_dwordx2 s[94:95], s[0:1], 80")
    a("s_load_dwordx2 s[92:93], s[0:1], 72")
    epi_in()
    srd(a, 68, 66, 2048 * 576 * 2)
    a("s_mov_b32 s88, s64"); a("s_mov_b32 s89, s65")
    srd(a, 64, 88, 2048 * 576 * 2)
    srd(a, 72, 76, 576 * 8)
    srd(a, 76, 94, 2304 * 576 * 2)
    srd(a, 28, 92, 2048 * 2)
    a("v_and_b32 v0, 255, v0")
    a("s_mov_b32 s41, s2")
    KDB = 240
    emit_kv_loads(a, 112, 240, 248, 252, 253)
    for ft in range(5): gelu_ft(ft, False)
    Z1R = 200; BI = 236
    for r_ in range(36): a("v_mov_b32 v%d, v%d" % (Z1R + r_, ZP + r_))
    stamp(a, 3)
    a("s_waitcnt vmcnt(0)")
    for n in range(11): a("v_mov_b32 v%d, v%d" % (16 + n, 112 + n))
    for n in range(8): a("v_mov_b32 v%d, v%d" % (32 + n, 240 + n))
    for n in range(4): a("v_mov_b32 v%d, v%d" % (44 + n, 248 + n))
    a("v_mov_b32 v56, v252"); a("v_mov_b32 v57, v253")
    for r_ in range(6): a("v_mov_b32 v%d, v%d" % (240 + r_, 88 + r_))
    a.label("%s_kvb" % name)
    emit_kv_compute(a, wait=False, store=False)
    a("s_mov_b32 s39, 0x%x" % KVT)
    a("buffer_store_dwordx4 v[120:123], v12, s[12:15], s39 offen sc1")
    a("buffer_store_dwordx4 v[124:127], v13, s[12:15], s39 offen sc1")
    a("s_add_u32 s41, s41, 256")
    a("s_cmp_ge_u32 s41, 288")
    a("s_cbranch_scc1 %s_kvbd" % name)
    emit_kv_loads(a)
    a("s_waitcnt vmcnt(0)")
    a("s_branch %s_kvb" % name)
    a.label("%s_kvbd" % name)
    for r_ in range(6): a("v_mov_b32 v%d, v%d" % (88 + r_, 240 + r_))
    a("s_mov_b32 s42, s2")
    emit_wot_loads(a, 100, 112, 720, 3)
    a("s_lshl_b32 s36, s22, 7")
    a("s_lshl_b32 s37, s24, 6")
    a("s_add_u32 s36, s36, s37")
    a("v_lshlrev_b32 v11, 1, v3")
    a("s_lshl_b32 s37, s25, 6")
    a("s_lshl_b32 s38, s36, 1")
    a("s_add_u32 s39, s38, s37")
    a("s_xor_b32 s37, s37, 64")
    a("s_add_u32 s36, s38, s37")
    a("buffer_load_ushort v96, v11, s[28:31], s39 offen")
    a("buffer_load_ushort v97, v11, s[28:31], s39 offen offset:32")
    a("buffer_load_ushort v98, v11, s[28:31], s36 offen")
    a("buffer_load_ushort v99, v11, s[28:31], s36 offen offset:32")
    for r in range(ACC, ACC + 72): a("v_mov_b32 v%d, 0" % r)
    mma_addr(0)
    a("s_mov_b32 s33, 0")
    stamp(a, 4)
    a("s_barrier")
    stamp(a, 5)
    core.prime(0, core.reads(0, 0))
    trk.drain()
    nocs[0] = True
    a.label("%s_gloop" % name)
    lb = len(a.lines); iteration(False); st = copy.deepcopy(trk.out); del a.lines[lb:]; trk.out = copy.deepcopy(st)
    iteration(False)
    assert [sorted(x) for x in trk.out] == [sorted(x) for x in st]
    a("s_cmp_lg_u32 s33, 3")
    a("s_cbranch_scc1 %s_ghk" % name)
    a("s_waitcnt vmcnt(0)")
    for n in range(3):
        a("buffer_store_dwordx4 %s, v%d, s[12:15], s40 offen" % (vr(100 + 4 * n), 112 + n))
    for tt in range(4): a("v_lshlrev_b32 v%d, 16, v%d" % (BI + 2 * tt, 96 + tt))
    a("v_mov_b32 v10, %d" % (LC + 8))
    a("v_mov_b32 v11, 1")
    a("s_mov_b64 exec, 1")
    a("ds_add_rtn_u32 v12, v10, v11")
    a("s_waitcnt lgkmcnt(0)")
    a("v_readfirstlane_b32 s36, v12")
    a("s_cmp_lg_u32 s36, 3")
    a("s_cbranch_scc1 %s_nokvs" % name)
    a("s_and_b32 s36, s2, 15")
    a("s_lshl_b32 s36, s36, 2")
    a("s_add_u32 s36, s36, 128")
    a("v_mov_b32 v10, s36")
    a("buffer_atomic_add v11, v10, s[60:63], 0 offen sc1")
    a.label("%s_nokvs" % name)
    a("s_mov_b64 exec, -1")
    a.label("%s_ghk" % name)
    a("s_cmp_lt_u32 s33, 32")
    a("s_cbranch_scc1 %s_gloop" % name)
    trk.drain()
    stamp(a, 6)
    G3.emit_k2_epilogue(a, core, Z1R, BI)
    stamp(a, 7)
    G.stamp_rt(a, 1)
    a("s_branch %s_end" % name)
    a.label("%s_A1" % name)
    a("s_setprio 2")
    vmA = VmTracker(a)
    PB = 132
    def aux_head():
        epi_in()
        for tt in range(4):
            a("v_mov_b32 v%d, 0" % S[tt]); a("v_mov_b32 v%d, 0" % Q[tt])
    def aux_pub():
        a("s_nop 2")
        emit_xg_reduce(a, S + Q, 72)
        a("v_lshrrev_b32 v10, 4, v2")
        for g in range(1, 4):
            a("v_cmp_eq_u32 vcc, %d, v10" % g)
            a("s_nop 1")
            a("v_cndmask_b32 v%d, v%d, v%d, vcc" % (S[0], S[0], S[g]))
            a("v_cndmask_b32 v%d, v%d, v%d, vcc" % (Q[0], Q[0], Q[g]))
        a("v_and_b32 v%d, 0x7fffffff, v%d" % (Q[0], Q[0]))
        a("buffer_store_dwordx2 v[%d:%d], v94, s[12:15], s58 offen sc1" % (S[0], Q[0]))
    chunks = [capture(aux_head) + capture(gelu_ft, 0, True), capture(gelu_ft, 1, True), capture(gelu_ft, 2, True),
              capture(gelu_ft, 3, True), capture(gelu_ft, 4, True) + capture(aux_pub)]
    KD = 172
    for k in range(9, 18):
        a("s_barrier")
        if k == 9:
            a("s_cmp_lg_u32 s3, 0")
            a("s_cbranch_scc1 %s_nosig" % name)
            a("v_mov_b32 v10, 1")
            a("s_lshl_b32 s36, s22, 2")
            a("v_mov_b32 v11, s36")
            a("s_mov_b64 exec, 1")
            a("buffer_atomic_add v10, v11, s[60:63], 0 offen sc1")
            a("s_mov_b64 exec, -1")
            a.label("%s_nosig" % name)
        g = k + 3
        dma = capture(lambda: (issueT(g), issueF(g))) if g < 18 else []
        comp = chunks[k - 9] if k - 9 < len(chunks) else []
        interleave(dma, comp)
        if k == 13: vmA.issue("pub", 1)
        if g < 18: vmA.issue("S%d" % g, 9)
        if k == 14:
            srd(a, 92, 78, 2048 * 2048 * 2)
            a("v_lshrrev_b32 v10, 4, v2")
            a("v_lshlrev_b32 v10, 12, v10")
            a("v_lshl_add_u32 v10, v3, 4, v10")
            a("s_lshl_b32 s40, s22, 7")
            a("s_lshl_b32 s36, s3, 5")
            a("s_add_u32 s40, s40, s36")
            a("s_lshl_b32 s40, s40, 12")
            a("s_lshl_b32 s36, s23, 8")
            a("s_add_u32 s40, s40, s36")
            for n in range(8):
                a("buffer_load_dwordx4 v[200:203], v10, s[92:95], s40 offen")
                if n < 7: a("s_add_u32 s40, s40, 16384")
            vmA.issue("wp", 8)
            a("s_lshl_b32 s36, s22, 2")
            a("v_mov_b32 v199, s36")
            a("buffer_load_dword v198, v199, s[60:63], 0 offen sc1"); vmA.issue("cnt", 1)
        if k + 2 < 18 and k + 2 >= 12:
            vmA.wait(["S%d" % (k + 2)])
    a("s_barrier")
    stamp(a, 3)
    a("s_load_dwordx4 s[88:91], s[0:1], 32")
    a("v_lshrrev_b32 v10, 4, v2")
    a("v_lshlrev_b32 v95, 8, v3")
    a("v_lshl_add_u32 v95, v10, 6, v95")
    a("s_lshl_b32 s33, s25, 13")
    a("s_add_u32 s52, s59, s33")
    a("s_xor_b32 s33, s33, 8192")
    a("s_add_u32 s53, s59, s33")
    a("s_add_u32 s42, s52, 4096")
    a("s_add_u32 s43, s53, 4096")
    Z2 = ZP
    a("s_waitcnt vmcnt(0)")
    GB = [128, 144, 160, 176]
    a("v_mov_b32 v4, v95")
    def gather():
        for tt in range(4):
            for q in range(4):
                a("buffer_load_dwordx4 %s, v4, s[12:15], s%d offen offset:%d sc1" % (vr(GB[tt] + 4 * q), (52, 42, 53, 43)[tt], 16 * q))
    gather()
    a("s_mov_b32 s40, 0")
    a("s_waitcnt vmcnt(0)")
    a.label("%s_chk" % name)
    a("v_subrev_u32 v11, 16, v198")
    for tt in range(4):
        for r in range(GB[tt] + 1, GB[tt] + 16, 4):
            a("v_or3_b32 v11, v11, v%d, v%d" % (r, r + 2))
    a("v_cmp_gt_i32 vcc, 0, v11")
    a("s_add_u32 s40, s40, 1")
    a("s_cmp_gt_u32 s40, %d" % SPIN_MAX)
    a("s_cbranch_scc1 %s_ok" % name)
    a("s_cbranch_vccz %s_ok" % name)
    a("s_sleep 32")
    a("buffer_load_dword v198, v199, s[60:63], 0 offen sc1")
    a("s_waitcnt vmcnt(0)")
    gather()
    a("s_waitcnt vmcnt(0)")
    a("s_branch %s_chk" % name)
    a.label("%s_ok" % name)
    stamp(a, 5)
    for tt in range(4):
        b = GB[tt]
        for st_ in (8, 4, 2):
            for q in range(0, st_, 2):
                a("v_pk_add_f32 %s, %s, %s" % (vr(b + q, 2), vr(b + q, 2), vr(b + q + st_, 2)))
    emit_xg_reduce(a, [GB[tt] + e for tt in range(4) for e in range(2)], 72)
    for tt in range(4):
        b = GB[tt]
        emit_ln_finish(a, b, b + 1, 2304, b + 2, MR + 2 * tt, b + 4)
        a("v_mul_f32 v%d, -v%d, v%d" % (MR + 2 * tt + 1, b + 2, MR + 2 * tt))
    a("v_lshrrev_b32 v10, 4, v2")
    a("v_lshrrev_b32 v11, 2, v2"); a("v_and_b32 v11, 1, v11"); a("v_lshlrev_b32 v11, 4, v11")
    a("v_lshrrev_b32 v5, 3, v2"); a("v_and_b32 v5, 1, v5"); a("v_lshl_add_u32 v11, v5, 2, v11")
    a("v_and_b32 v5, 3, v2"); a("v_add_u32 v11, v11, v5")
    a("v_mul_u32_u24 v11, 288, v11")
    a("v_lshrrev_b32 v5, 1, v10"); a("v_lshl_add_u32 v11, v5, 4, v11")
    a("v_and_b32 v5, 1, v10")
    a("v_lshl_add_u32 v6, v5, 5, v11")
    a("v_mul_u32_u24 v5, 2304, v5")
    a("v_add_u32 v9, v11, v5")
    a("s_lshl_b32 s33, s23, 5")
    a("s_lshl_b32 s36, s22, 1")
    a("s_add_u32 s33, s33, s36")
    a("s_add_u32 s33, s33, s24")
    a("s_mul_i32 s33, s33, 18432")
    if ZIMG: a("s_add_u32 s33, s33, 0x%x" % ZIMG)
    a("s_mul_i32 s36, s25, 9216")
    a("s_add_u32 s37, s33, s36")
    a("s_xor_b32 s36, s36, 9216")
    a("s_add_u32 s38, s33, s36")
    a("s_add_u32 s39, s37, 128")
    a("s_mul_i32 s36, s25, 160")
    a("s_add_u32 s37, s37, s36")
    a("s_add_u32 s38, s38, s36")
    def norm_pair(nA, ttA, nB, ttB, O):
        for q, (n, tt) in enumerate(((nA, ttA), (nB, ttB))):
            for d in range(2):
                z = Z2 + 2 * n + d; t = T + 4 * q + 2 * d
                a("v_lshlrev_b32 v%d, 16, v%d" % (t, z))
                a("v_and_b32 v%d, 0xffff0000, v%d" % (t + 1, z))
        for q, (n, tt) in enumerate(((nA, ttA), (nB, ttB))):
            for d in range(2):
                t = T + 4 * q + 2 * d
                a("v_pk_fma_f32 %s, %s, %s, %s op_sel:[0,0,1] op_sel_hi:[1,0,1]" % (vr(t, 2), vr(t, 2), vr(MR + 2 * tt, 2), vr(MR + 2 * tt, 2)))
        for q in range(2):
            for d in range(2):
                t = T + 4 * q + 2 * d
                a("v_cvt_pk_bf16_f32 v%d, v%d, v%d" % (O + 2 * q + d, t, t + 1))
        a("s_nop 1")
        a("v_permlane16_swap_b32 v%d, v%d" % (O, O + 2))
        a("v_permlane16_swap_b32 v%d, v%d" % (O + 1, O + 3))
    cnt = 0
    for pr in range(2):
        for tt in range(4):
            O = 200 + 4 * cnt; cnt += 1
            norm_pair(tidx(2 * pr, tt), tt, tidx(2 * pr + 1, tt), tt, O)
            a("s_nop 0")
            a("buffer_store_dwordx4 %s, v6, s[12:15], s%d offen offset:%d" % (vr(O), 37 if tt < 2 else 38, (tt & 1) * 2304 + 64 * pr) + " sc1")
    O = 200 + 4 * cnt
    norm_pair(16, 0, 17, 1, O)
    a("s_nop 0")
    a("buffer_store_dwordx4 %s, v9, s[12:15], s39 offen sc1" % vr(O))
    stamp(a, 6)
    a("s_setprio 3")
    srd(a, 8, 78, 2048 * 2048 * 2)
    a("v_lshrrev_b32 v3, 3, v2")
    a("s_lshl_b32 s24, s3, 5")
    a("v_add_u32 v3, s24, v3")
    a("v_and_b32 v4, 7, v2")
    a("v_lshrrev_b32 v6, 4, v2")
    a("v_xor_b32 v6, v6, v4")
    a("v_lshlrev_b32 v6, 4, v6")
    a("v_lshl_add_u32 v10, v3, 12, v6")
    a("v_xor_b32 v11, 64, v10")
    a("v_add_u32 v11, %d, v11" % (32768 - 1024))
    a("v_add_u32 v12, %d, v10" % (2 * (32768 - 1024)))
    a("v_add_u32 v13, %d, v11" % (2 * (32768 - 1024)))
    a("v_lshlrev_b32 v14, 4, v2")
    a("s_lshl_b32 s26, s22, 19")
    a("s_mul_i32 s27, s23, %d" % (32 * 18432))
    a("s_lshl_b32 s24, s3, 12")
    a("s_add_u32 s27, s27, s24")
    if ZIMG: a("s_add_u32 s27, s27, 0x%x" % ZIMG)
    a("s_lshl_b32 s25, s3, 9")
    a("s_sub_u32 s32, s25, s24")
    a("s_add_u32 s32, s32, 16384")
    a("s_add_u32 s24, s24, %d" % RB)
    a("s_waitcnt vmcnt(0) lgkmcnt(0)")
    a("v_mov_b32 v26, %d" % LC)
    a("v_mov_b32 v27, 1")
    a("s_mov_b64 exec, 1")
    a("ds_add_rtn_u32 v28, v26, v27")
    a("s_waitcnt lgkmcnt(0)")
    a("v_readfirstlane_b32 s36, v28")
    a("s_cmp_lg_u32 s36, 3")
    a("s_cbranch_scc1 %s_nozs" % name)
    a("v_mov_b32 v28, 0")
    a("buffer_store_dword v27, v28, s[12:15], s97 offen sc1")
    a.label("%s_nozs" % name)
    a("s_mov_b64 exec, -1")
    stamp(a, 7)
    srd(a, 16, 88, 576 * 2048 * 2)
    srd(a, 84, 90, 576 * 2)
    for g in range(4):
        a("s_add_u32 s35, s24, %d" % (g * SLOT))
        a("s_mov_b32 m0, s35")
        a("s_add_u32 s36, s26, %d" % (128 * g))
        for n in range(4):
            a("buffer_load_dwordx4 v%d, s[8:11], s36 offen offset:%d lds" % (10 + n, n * 1024))
    a("s_mov_b32 s34, 0")
    a("s_cmp_lg_u32 s3, 0")
    a("s_cbranch_scc1 %s_pl" % name)
    a("v_and_b32 v28, 15, v2")
    a("v_lshlrev_b32 v30, 2, v28")
    a("v_lshlrev_b32 v28, 12, v28")
    a("s_lshl_b32 s52, s23, 8")
    a("s_add_u32 s52, s52, 0x%x" % ZFLG)
    a.label("%s_pz0" % name)
    a("buffer_load_dword v31, v30, s[60:63], 0 offen sc1")
    a("s_add_u32 s34, s34, 1")
    a("s_waitcnt vmcnt(0)")
    a("v_cmp_gt_u32 vcc, 16, v31")
    a("s_cmp_gt_u32 s34, %d" % SPIN_MAX)
    a("s_cbranch_scc1 %s_pz" % name)
    a("s_cbranch_vccz %s_pz" % name)
    a("s_sleep 32")
    a("s_branch %s_pz0" % name)
    a.label("%s_pz" % name)
    a("buffer_load_dword v29, v28, s[12:15], s52 offen sc1")
    a("s_add_u32 s34, s34, 1")
    a("s_waitcnt vmcnt(0)")
    a("v_cmp_ne_u32 vcc, 1, v29")
    a("s_cmp_gt_u32 s34, %d" % SPIN_MAX)
    a("s_cbranch_scc1 %s_pzx" % name)
    a("s_cbranch_vccz %s_pzx" % name)
    a("s_sleep 8")
    a("s_branch %s_pz" % name)
    a.label("%s_pzx" % name)
    a("v_mov_b32 v27, 1")
    a("ds_write_b32 v26, v27 offset:4")
    a("s_branch %s_pgo" % name)
    a.label("%s_pl" % name)
    a("ds_read_b32 v27, v26 offset:4")
    a("s_add_u32 s34, s34, 1")
    a("s_waitcnt lgkmcnt(0)")
    a("v_readfirstlane_b32 s36, v27")
    a("s_cmp_gt_u32 s34, %d" % (SPIN_MAX * 20))
    a("s_cbranch_scc1 %s_pgo" % name)
    a("s_cmp_lg_u32 s36, 0")
    a("s_cbranch_scc1 %s_pgo" % name)
    a("s_sleep 2")
    a("s_branch %s_pl" % name)
    a.label("%s_pgo" % name)
    stamp(a, 8)
    for g in range(4):
        a("s_add_u32 s35, s24, %d" % (g * SLOT + TREG))
        a("s_mov_b32 m0, s35")
        a("s_add_u32 s36, s27, %d" % (18432 * g))
        a("s_add_u32 s37, s36, s32")
        for n in range(4):
            a("buffer_load_dwordx4 v14, s[12:15], s36 offen offset:%d sc1 lds" % (n * 1024))
        a("s_add_u32 s35, s35, s32")
        a("s_mov_b32 m0, s35")
        a("s_mov_b64 exec, 0xffffffff")
        a("buffer_load_dwordx4 v14, s[12:15], s37 offen sc1 lds")
        a("s_mov_b64 exec, -1")
    a("s_add_u32 s26, s26, 512")
    a("s_add_u32 s27, s27, %d" % (4 * 18432))
    a("s_mov_b32 s33, 0")
    a("s_lshl_b32 s43, s2, 2")
    a("s_add_u32 s43, s43, s3")
    a("s_and_b32 s53, s43, 1")
    a("s_sub_u32 s36, s43, 448")
    a("s_lshr_b32 s37, s43, 1")
    a("s_cmp_ge_u32 s43, 896")
    a("s_cselect_b32 s43, s36, s37")
    a("s_cselect_b32 s53, 2, s53")
    a("s_waitcnt vmcnt(15)")
    a("s_barrier")
    a("s_waitcnt vmcnt(10)")
    a("s_barrier")
    a("s_waitcnt vmcnt(5)")
    a("s_barrier")
    a("s_mov_b32 s34, 4")
    def issue2():
        a("s_add_u32 s35, s33, s24")
        a("s_mov_b32 m0, s35")
        a("s_add_u32 s36, s35, %d" % TREG)
        for n in range(4):
            a("buffer_load_dwordx4 v%d, s[8:11], s26 offen offset:%d lds" % (10 + n, n * 1024))
        a("s_mov_b32 m0, s36")
        a("s_add_u32 s37, s27, s32")
        for n in range(4):
            a("buffer_load_dwordx4 v14, s[12:15], s27 offen offset:%d sc1 lds" % (n * 1024))
        a("s_add_u32 s36, s36, s32")
        a("s_mov_b32 m0, s36")
        a("s_mov_b64 exec, 0xffffffff")
        a("buffer_load_dwordx4 v14, s[12:15], s37 offen sc1 lds")
        a("s_mov_b64 exec, -1")
        a("s_add_u32 s26, s26, 128")
        a("s_add_u32 s27, s27, 18432")
        a("s_add_u32 s33, s33, %d" % SLOT)
        a("s_cmp_eq_u32 s33, %d" % (R * SLOT))
        a("s_cselect_b32 s33, 0, s33")
    a.label("%s_lloop" % name)
    issue2()
    a("s_cmp_eq_u32 s34, 18")
    a("s_cbranch_scc1 %s_hk1" % name)
    a("s_cmp_eq_u32 s34, 21")
    a("s_cbranch_scc1 %s_hk2" % name)
    a("s_waitcnt vmcnt(9)")
    a.label("%s_lcont" % name)
    a("s_barrier")
    a("s_add_u32 s34, s34, 1")
    a("s_cmp_lt_u32 s34, 32")
    a("s_cbranch_scc1 %s_lloop" % name)
    a("s_branch %s_ldone" % name)
    a.label("%s_hk1" % name)
    a("v_and_b32 v28, 15, v2")
    a("v_lshlrev_b32 v28, 2, v28")
    a("buffer_load_dword v29, v28, s[60:63], 0 offen offset:128 sc1")
    a("s_waitcnt vmcnt(10)")
    a("s_branch %s_lcont" % name)
    a.label("%s_hk2" % name)
    a("s_mov_b32 s52, 0")
    a.label("%s_hk2l" % name)
    a("v_cmp_gt_u32 vcc, 16, v29")
    a("s_add_u32 s52, s52, 1")
    a("s_cmp_gt_u32 s52, %d" % SPIN_MAX)
    a("s_cbranch_scc1 %s_hk2g" % name)
    a("s_cbranch_vccz %s_hk2g" % name)
    a("s_sleep 16")
    a("buffer_load_dword v29, v28, s[60:63], 0 offen offset:128 sc1")
    a("s_waitcnt vmcnt(0)")
    a("s_branch %s_hk2l" % name)
    a.label("%s_hk2g" % name)
    nconv = emit_conv_loads(a, " sc1")
    a("s_waitcnt vmcnt(%d)" % (9 + nconv))
    a("s_branch %s_lcont" % name)
    a.label("%s_ldone" % name)
    a("s_waitcnt vmcnt(0)")
    a("s_barrier")
    a("s_mov_b32 s26, s53")
    a("s_and_b32 s27, s3, 1")
    a("s_mul_i32 s27, s27, %d" % CJ_SIZE)
    a("s_lshr_b32 s36, s3, 1")
    a("s_mul_i32 s36, s36, %d" % SLOT)
    a("s_add_u32 s27, s27, s36")
    a("s_add_u32 s27, s27, %d" % RB)
    def mid():
        a("s_barrier")
        a("s_setprio 0")
    sv = set(DBG); DBG.discard("stamp")
    emit_conv_job(a, name, mid)
    DBG.update(sv)
    G.stamp_rt(a, 1)
    a.label("%s_end" % name)
    a("s_endpgm")
    return a.text(), kernel_desc(name, 256, 256), (name, 256, 512, LDSB)

def gen_kf7(name="k1_kernel", R=4):
    a = Asm()
    RB = 4096; SLOT = 34816; TREG = 16384; FS = 288; RST = 0
    LDSB = RB + R * SLOT
    LC = 2048
    ZFLG = 0x2D00000
    from gen3 import emit_conv_loads, emit_conv_job, CJ_SIZE
    def capture(f, *args):
        lb = len(a.lines); f(*args); out = a.lines[lb:]; del a.lines[lb:]; return out
    kernel_begin(a, name)
    a("s_load_dwordx2 s[80:81], s[0:1], 0")
    a("s_load_dwordx2 s[4:5], s[0:1], 56")
    a("s_load_dwordx2 s[6:7], s[0:1], 104")
    a("s_load_dwordx2 s[18:19], s[0:1], 96")
    a("s_cmp_ge_u32 s2, 256")
    a("s_cbranch_scc1 %s_end" % name)
    a("v_lshrrev_b32 v1, 6, v0")
    a("v_and_b32 v2, 63, v0")
    a("v_readfirstlane_b32 s3, v1")
    G2.tile_ij(a)
    a("s_lshr_b32 s98, s3, 2")
    a("s_mov_b32 s54x, 0".replace("s54x", "s99"))
    a("s_and_b32 s3, s3, 3")
    a("s_lshr_b32 s24, s3, 1")
    a("s_and_b32 s25, s3, 1")
    a("v_and_b32 v3, 15, v2")
    VT = 204; VF = 208
    def loader_setup():
        a("v_lshrrev_b32 v5, 3, v2")
        a("v_and_b32 v4, 7, v2")
        a("s_lshl_b32 s36, s3, 5")
        a("v_add_u32 v5, s36, v5")
        a("v_lshrrev_b32 v7, 4, v2")
        a("v_xor_b32 v7, v7, v4")
        a("v_mul_u32_u24 v6, 1152, v5")
        a("v_lshl_add_u32 v%d, v7, 4, v6" % VT)
        a("v_xor_b32 v%d, 64, v%d" % (VT + 1, VT))
        a("v_add_u32 v%d, %d, v%d" % (VT + 1, 9216 - 1024, VT + 1))
        a("v_add_u32 v%d, %d, v%d" % (VT + 2, 2 * (9216 - 1024), VT))
        a("v_add_u32 v%d, %d, v%d" % (VT + 3, 2 * (9216 - 1024), VT + 1))
        a("s_lshl_b32 s84, s3, 12")
        a("s_add_u32 s84, s84, %d" % RB)
        a("s_lshl_b32 s85, s3, 9")
        a("s_add_u32 s85, s85, %d" % (RB + TREG + 16384))
    def loader_setup2():
        for n in range(5):
            if n < 4:
                a("s_lshl_b32 s36, s3, 8")
                a("s_add_u32 s36, s36, %d" % (64 * n))
            else:
                a("s_lshl_b32 s36, s3, 5")
                a("s_add_u32 s36, s36, 1024")
            a("v_add_u32 v6, s36, v2")
            a("v_mul_u32_u24 v7, 3641, v6")
            a("v_lshrrev_b32 v7, 16, v7")
            a("v_mul_u32_u24 v8, 18, v7")
            a("v_sub_u32 v8, v6, v8")
            a("v_and_b32 v9, 35, v7")
            a("v_bfe_u32 v6, v7, 2, 2")
            a("v_lshl_add_u32 v9, v6, 3, v9")
            a("v_bfe_u32 v6, v7, 4, 1")
            a("v_lshl_add_u32 v9, v6, 2, v9")
            a("v_mul_u32_u24 v9, 9216, v9")
            a("v_lshl_add_u32 v%d, v8, 4, v9" % (VF + n))
            if 0 < n < 4: a("v_subrev_u32 v%d, %d, v%d" % (VF + n, 1024 * n, VF + n))
    def issueT(g):
        st = g % 9
        a("s_add_u32 s86, s84, %d" % ((g % R) * SLOT))
        a("s_mov_b32 m0, s86")
        a("s_add_u32 s87, s82, %d" % (128 * st))
        for n in range(4):
            a("buffer_load_dwordx4 v%d, s[28:31], s87 offen offset:%d lds" % (VT + n, 1024 * n))
    def issueF(g):
        st = g % 9
        a("s_add_u32 s86, s84, %d" % ((g % R) * SLOT + TREG))
        a("s_mov_b32 m0, s86")
        a("s_add_u32 s87, s83, %d" % (64 * 9216 * st + (4608 if g < 9 else 0)))
        for n in range(4):
            a("buffer_load_dwordx4 v%d, s[8:11], s87 offen offset:%d lds" % (VF + n, 1024 * n))
        a("s_add_u32 s86, s85, %d" % ((g % R) * SLOT))
        a("s_mov_b32 m0, s86")
        a("s_mov_b64 exec, 0xffffffff")
        a("buffer_load_dwordx4 v%d, s[8:11], s87 offen lds" % (VF + 4))
        a("s_mov_b64 exec, -1")
    def srds_main():
        srd(a, 28, 80, 2048 * 576 * 2)
        srd(a, 8, 4, 576 * 4608 * 2)
        srd(a, 12, 6, WS_BYTES)
        srd(a, 60, 18, 256)
        a("s_mul_i32 s82, s22, %d" % (128 * 1152))
        a("s_mul_i32 s83, s23, 288")
    ACC = 128; FB = [16, 52]; CS = 216; ONE = 236
    vTa = [4, 5]; vTb = [6, 7]; vF = 8; vFh = 9
    bTa = [88, 89]; bTb = [90, 91]; bF = 92; bFh = 93
    def mma_setup():
        a("v_lshrrev_b32 v10, 4, v2")
        a("v_lshrrev_b32 v11, 1, v3")
        a("v_xor_b32 v10, v10, v11")
        a("v_lshlrev_b32 v10, 4, v10")
        a("v_lshl_add_u32 v10, v3, 7, v10")
        a("s_lshl_b32 s26, s24, 13")
        a("s_add_u32 s26, s26, %d" % RB)
        a("v_add_u32 v10, s26, v10")
        a("s_lshl_b32 s26, s25, 12")
        a("v_add_u32 v%d, s26, v10" % bTa[0])
        a("s_xor_b32 s26, s26, 4096")
        a("v_add_u32 v%d, s26, v10" % bTb[0])
        a("v_xor_b32 v%d, 64, v%d" % (bTa[1], bTa[0]))
        a("v_xor_b32 v%d, 64, v%d" % (bTb[1], bTb[0]))
        a("v_lshrrev_b32 v10, 2, v2")
        a("v_mul_u32_u24 v10, %d, v10" % FS)
        a("v_and_b32 v11, 3, v2")
        a("v_lshl_add_u32 v10, v11, 3, v10")
        a("v_add_u32 v10, %d, v10" % (RB + TREG))
        a("s_mul_i32 s26, s25, 160")
        a("v_add_u32 v%d, s26, v10" % bF)
        a("v_add_u32 v%d, 128, v10" % bFh)
        for r in range(ACC, ACC + 72): a("v_mov_b32 v%d, 0" % r)
        for r in range(CS, CS + 20): a("v_mov_b32 v%d, 0" % r)
        for r in range(ONE, ONE + 4): a("v_mov_b32 v%d, 0x3f803f80" % r)
    def mma_addr(slot):
        a("s_mov_b32 s27, %d" % (slot * SLOT))
        for d, s_ in ((vTa[0], bTa[0]), (vTb[0], bTb[0]), (vTa[1], bTa[1]), (vTb[1], bTb[1]), (vF, bF), (vFh, bFh)):
            a("v_add_u32 v%d, s27, v%d" % (d, s_))
    core = G.Core(a, ACC, FB[0], FB[1], FS, TREG, vTa, vTb, vF, vFh)
    trk = core.trk
    a("s_cmp_eq_u32 s98, 0")
    a("s_cbranch_scc1 %s_A0" % name)
    a("s_setprio 3")
    loader_setup()
    a("s_waitcnt lgkmcnt(0)")
    srds_main()
    vm = VmTracker(a)
    def issue(g, vmx):
        issueT(g); issueF(g); vmx.issue("S%d" % g, 9)
    issueT(0)
    loader_setup2()
    issueF(0); vm.issue("S0", 9)
    issue(1, vm); issue(2, vm); issue(3, vm)
    a("s_add_u32 s3, s3, 4"); stamp_setup(a, 1); stamp(a, 0); a("s_sub_u32 s3, s3, 4")
    mma_setup()
    RA = 96; XB = 112
    for r in range(RA, RA + 16): a("v_mov_b32 v%d, 0" % r)
    a("v_lshrrev_b32 v10, 4, v2")
    a("v_lshrrev_b32 v11, 1, v3")
    a("v_xor_b32 v10, v10, v11")
    a("v_lshlrev_b32 v10, 4, v10")
    a("v_lshl_add_u32 v10, v3, 7, v10")
    a("v_add_u32 v12, s84, v10")
    a("v_xor_b32 v13, 64, v12")
    def rs_rd(g):
        a("v_add_u32 v10, %d, v12" % ((g % R) * SLOT))
        a("v_add_u32 v11, %d, v13" % ((g % R) * SLOT))
        for h in range(2):
            for n in range(2):
                a("ds_read_b128 %s, v%d offset:%d" % (vr(XB + 8 * h + 4 * n), 10 + h, 2048 * n))
    def rs_do():
        for h in range(2):
            for n in range(2):
                x = XB + 8 * h + 4 * n
                a("v_mfma_f32_16x16x32_bf16 %s, %s, %s, %s" % (vr(RA + 4 * n), vr(ONE), vr(x), vr(RA + 4 * n)))
                a("v_mfma_f32_16x16x32_bf16 %s, %s, %s, %s" % (vr(RA + 8 + 4 * n), vr(x), vr(x), vr(RA + 8 + 4 * n)))
    def interleave(dma, comp, vmx=None):
        groups = []; cur = []
        for l in dma:
            cur.append(l)
            if "buffer_load" in l and not any("exec, 0xffffffff" in x for x in cur[-2:]):
                groups.append(cur); cur = []
            elif "exec, -1" in l:
                groups.append(cur); cur = []
        if cur: groups.append(cur)
        ns = max(1, len(groups))
        per = (len(comp) + ns - 1) // ns
        for g in groups:
            a.lines.extend(g)
            a.lines.extend(comp[:per]); comp = comp[per:]
        a.lines.extend(comp)
    vm.wait(["S0"])
    a("s_barrier")
    stamp(a, 1)
    rs_rd(0)
    vm.wait(["S1"])
    a("s_barrier")
    for k in range(9):
        a("s_waitcnt lgkmcnt(0)")
        dma = capture(lambda: (issueT(k + 3), issueF(k + 3))) if k >= 1 else []
        interleave(dma, capture(rs_do))
        if k >= 1: vm.issue("S%d" % (k + 3), 9)
        if k < 8:
            rs_rd(k + 1)
        else:
            a("s_nop 7")
            a("v_lshrrev_b32 v10, 4, v2")
            a("v_lshrrev_b32 v11, 2, v3")
            a("v_and_b32 v12, 3, v3")
            for n in range(2):
                G_ = RA + 8 + 4 * n
                for r in range(1, 4):
                    a("v_cmp_eq_u32 vcc, %d, v12" % r)
                    a("s_nop 1")
                    a("v_cndmask_b32 v%d, v%d, v%d, vcc" % (G_, G_, G_ + r))
            ML = 112
            for n in range(2):
                emit_ln_finish(a, RA + 4 * n, RA + 8 + 4 * n, 576, ML + 2 * n, ML + 2 * n + 1, 120)
                a("v_mov_b32 v%d, v%d" % (117 + 2 * n, ML + 2 * n + 1))
                a("v_sub_f32 v%d, 0, v%d" % (116 + 2 * n, ML + 2 * n))
            a("s_lshl_b32 s35, s3, 8")
            a("v_lshlrev_b32 v13, 3, v3")
            a("v_add_u32 v12, s35, v13")
            a("v_cmp_eq_u32 vcc, v10, v11")
            a("s_and_saveexec_b64 s[36:37], vcc")
            for n in range(2):
                a("ds_write_b64 v12, %s offset:%d" % (vr(116 + 2 * n, 2), RST + 128 * n))
            a("s_mov_b64 exec, s[36:37]")
            a("s_cmp_lg_u32 s23, 0")
            a("s_cbranch_scc1 %s_nost1" % name)
            a("s_lshl_b32 s35, s22, 7")
            a("s_lshl_b32 s36, s3, 5")
            a("s_add_u32 s35, s35, s36")
            a("s_lshl_b32 s35, s35, 3")
            a("s_add_u32 s35, s35, 0x%x" % STATS1)
            a("v_mov_b32 v11, 0x7ffffff0")
            a("v_cndmask_b32 v13, v11, v13, vcc")
            for n in range(2):
                a("buffer_store_dwordx2 %s, v13, s[12:15], s35 offen offset:%d" % (vr(ML + 2 * n, 2), 128 * n))
            a.label("%s_nost1" % name)
            mma_addr(9 % R)
            a("s_mov_b32 s33, 0")
            a("s_setprio 0")
        vm.wait(["S%d" % (k + 2)], "lgkmcnt(0)" if k == 8 else "")
        if k < 8: a("s_barrier")
    a("s_branch %s_mma" % name)
    a.label("%s_A0" % name)
    emit_code_prefetch(a, name)
    a("s_load_dwordx4 s[64:67], s[0:1], 8")
    a("s_load_dwordx2 s[76:77], s[0:1], 24")
    a("s_load_dwordx2 s[78:79], s[0:1], 64")
    mma_setup()
    loader_setup(); loader_setup2()
    a("s_waitcnt lgkmcnt(0)")
    srds_main()
    srd(a, 68, 66, 2048 * 576 * 2)
    a("s_mov_b32 s88, s64"); a("s_mov_b32 s89, s65")
    srd(a, 64, 88, 2048 * 576 * 2)
    srd(a, 72, 76, 576 * 8)
    stamp_setup(a, 1); stamp(a, 0)
    def gran_addr():
        a("v_lshrrev_b32 v10, 4, v2")
        a("s_lshl_b32 s36, s25, 1")
        a("v_add_u32 v11, s36, v10")
        a("v_and_b32 v11, 3, v11")
        a("v_lshl_add_u32 v11, v11, 4, v3")
        a("v_lshlrev_b32 v94, 8, v11")
        a("s_lshl_b32 s59, s22, 7")
        a("s_lshl_b32 s36, s24, 6")
        a("s_add_u32 s59, s59, s36")
        a("s_lshl_b32 s59, s59, 8")
        a("s_add_u32 s59, s59, 0x%x" % STATS2)
        a("s_lshl_b32 s36, s23, 1")
        a("s_add_u32 s36, s36, s25")
        a("s_lshl_b32 s36, s36, 3")
        a("s_add_u32 s58, s36, s59")
    gran_addr()
    a("v_mov_b32 v12, 0"); a("v_mov_b32 v13, 0x80000000")
    a("buffer_store_dwordx2 v[12:13], v94, s[12:15], s58 offen sc1")
    a("s_lshl_b32 s36, s22, 4")
    a("s_add_u32 s36, s36, s23")
    a("s_lshl_b32 s36, s36, 8")
    a("s_add_u32 s97, s36, 0x%x" % ZFLG)
    a("v_mov_b32 v10, %d" % LC)
    a("v_mov_b32 v12, 0"); a("v_mov_b32 v13, 0")
    a("s_mov_b64 exec, 1")
    a("buffer_store_dword v12, v12, s[12:15], s97 offen sc1")
    a("s_mov_b64 exec, -1")
    a("ds_write_b64 v10, v[12:13]")
    a("ds_write_b64 v10, v[12:13] offset:8")
    mma_addr(0)
    a("s_mov_b32 s33, 0")
    a("s_waitcnt lgkmcnt(0)")
    a("s_barrier")
    stamp(a, 1)
    a.label("%s_mma" % name)
    core.prime(0, core.reads(0, 0))
    trk.drain()
    nocs = [False]
    def mfmas(buf):
        L = []
        for ft in range(5):
            A = core.F(buf, ft)
            for tt in range(4 if ft < 4 else 2):
                c = core.accr(ft, tt); B = core.T(buf, tt)
                L.append(("v_mfma_f32_16x16x32_bf16 %s, %s, %s, %s" % (vr(c), vr(A), vr(B), vr(c)), list(range(A, A + 4)) + list(range(B, B + 4))))
            if not nocs[0]: L.append(("v_mfma_f32_16x16x32_bf16 %s, %s, %s, %s" % (vr(CS + 4 * ft), vr(A), vr(ONE), vr(CS + 4 * ft)), list(range(A, A + 4))))
        return L
    def phase(buf, pend):
        for (m, regs) in mfmas(buf):
            trk.need(regs)
            a(m)
            while pend:
                k, t = pend.pop(0)
                if k == "x":
                    a(t)
                    if t.startswith("s_"): continue
                else:
                    a(t[0]); trk.issue(t[1])
                break
        for k, t in pend:
            if k == "x": a(t)
            else: a(t[0]); trk.issue(t[1])
    def iteration(vw=True):
        if vw: a("s_waitcnt vmcnt(0)")
        a("s_barrier")
        rd = [("r", t) for t in core.reads(1, 1)]
        upd = ["s_add_u32 s27, s27, %d" % SLOT, "s_cmp_eq_u32 s27, %d" % (R * SLOT), "s_cselect_b32 s27, 0, s27"]
        tail = ["v_add_u32 v%d, s27, v%d" % (d, s_) for d, s_ in ((vTa[0], bTa[0]), (vF, bF), (vTb[0], bTb[0]), (vFh, bFh))]
        phase(0, rd[:1] + [("x", u) for u in upd] + rd[1:] + [("x", u) for u in tail])
        rd = [("r", t) for t in core.reads(0, 0)]
        tail = ["v_add_u32 v%d, s27, v%d" % (d, s_) for d, s_ in ((vTa[1], bTa[1]), (vTb[1], bTb[1]))] + ["s_add_u32 s33, s33, 1"]
        phase(1, rd + [("x", u) for u in tail])
    a.label("%s_cloop" % name)
    lb = len(a.lines); iteration(); st = copy.deepcopy(trk.out); del a.lines[lb:]; trk.out = copy.deepcopy(st)
    iteration()
    assert [sorted(x) for x in trk.out] == [sorted(x) for x in st]
    a("s_cmp_lt_u32 s33, 9")
    a("s_cbranch_scc1 %s_cloop" % name)
    trk.drain()
    stamp(a, 2)
    MR = 100; T = 72; ZP = 16
    def epi_in():
        gelu_consts(a)
        a("s_lshl_b32 s36, s24, 9")
        a("s_lshl_b32 s37, s25, 8")
        a("s_add_u32 s38, s36, s37")
        a("s_xor_b32 s37, s37, 256")
        a("s_add_u32 s39, s36, s37")
        a("v_lshlrev_b32 v10, 3, v3")
        a("v_add_u32 v11, s38, v10")
        a("ds_read_b64 %s, v11 offset:%d" % (vr(MR, 2), RST))
        a("ds_read_b64 %s, v11 offset:%d" % (vr(MR + 2, 2), RST + 128))
        a("v_add_u32 v11, s39, v10")
        a("ds_read_b64 %s, v11 offset:%d" % (vr(MR + 4, 2), RST))
        a("ds_read_b64 %s, v11 offset:%d" % (vr(MR + 6, 2), RST + 128))
        a("s_waitcnt lgkmcnt(0)")
    S = [108, 110, 52, 54]; Q = [109, 111, 53, 55]
    def gelu_ft(ft, stats):
        tts = range(4 if ft < 4 else 2)
        emit_fold_gelu(a, [(core.accr(ft, tt), CS + 4 * ft, MR + 2 * tt, ZP + 2 * tidx(ft, tt)) for tt in tts], T)
        if stats:
            for d in range(2):
                for tt in tts:
                    p = ZP + 2 * tidx(ft, tt) + d
                    a("v_dot2_f32_bf16 v%d, v%d, v%d, v%d" % (S[tt], p, ONE, S[tt]))
                    a("v_dot2_f32_bf16 v%d, v%d, v%d, v%d" % (Q[tt], p, p, Q[tt]))
    a("s_cmp_eq_u32 s98, 0")
    a("s_cbranch_scc1 %s_A1" % name)
    a("s_barrier")
    a("s_load_dwordx4 s[64:67], s[0:1], 8")
    a("s_load_dwordx2 s[76:77], s[0:1], 24")
    a("s_load_dwordx2 s[94:95], s[0:1], 80")
    a("s_load_dwordx2 s[92:93], s[0:1], 72")
    epi_in()
    srd(a, 68, 66, 2048 * 576 * 2)
    a("s_mov_b32 s88, s64"); a("s_mov_b32 s89, s65")
    srd(a, 64, 88, 2048 * 576 * 2)
    srd(a, 72, 76, 576 * 8)
    srd(a, 76, 94, 2304 * 576 * 2)
    srd(a, 28, 92, 2048 * 2)
    a("v_and_b32 v0, 255, v0")
    a("s_mov_b32 s41, s2")
    KDB = 240
    emit_kv_loads(a, 112, 240, 248, 252, 253)
    for ft in range(5): gelu_ft(ft, False)
    Z1R = 200; BI = 236
    for r_ in range(36): a("v_mov_b32 v%d, v%d" % (Z1R + r_, ZP + r_))
    stamp(a, 3)
    a("s_waitcnt vmcnt(0)")
    for n in range(11): a("v_mov_b32 v%d, v%d" % (16 + n, 112 + n))
    for n in range(8): a("v_mov_b32 v%d, v%d" % (32 + n, 240 + n))
    for n in range(4): a("v_mov_b32 v%d, v%d" % (44 + n, 248 + n))
    a("v_mov_b32 v56, v252"); a("v_mov_b32 v57, v253")
    for r_ in range(6): a("v_mov_b32 v%d, v%d" % (240 + r_, 88 + r_))
    a.label("%s_kvb" % name)
    emit_kv_compute(a, wait=False, store=False)
    a("s_mov_b32 s39, 0x%x" % KVT)
    a("buffer_store_dwordx4 v[120:123], v12, s[12:15], s39 offen sc1")
    a("buffer_store_dwordx4 v[124:127], v13, s[12:15], s39 offen sc1")
    a("s_add_u32 s41, s41, 256")
    a("s_cmp_ge_u32 s41, 288")
    a("s_cbranch_scc1 %s_kvbd" % name)
    emit_kv_loads(a)
    a("s_waitcnt vmcnt(0)")
    a("s_branch %s_kvb" % name)
    a.label("%s_kvbd" % name)
    for r_ in range(6): a("v_mov_b32 v%d, v%d" % (88 + r_, 240 + r_))
    a("s_mov_b32 s42, s2")
    emit_wot_loads(a, 100, 112, 720, 3)
    a("s_lshl_b32 s36, s22, 7")
    a("s_lshl_b32 s37, s24, 6")
    a("s_add_u32 s36, s36, s37")
    a("v_lshlrev_b32 v11, 1, v3")
    a("s_lshl_b32 s37, s25, 6")
    a("s_lshl_b32 s38, s36, 1")
    a("s_add_u32 s39, s38, s37")
    a("s_xor_b32 s37, s37, 64")
    a("s_add_u32 s36, s38, s37")
    a("buffer_load_ushort v96, v11, s[28:31], s39 offen")
    a("buffer_load_ushort v97, v11, s[28:31], s39 offen offset:32")
    a("buffer_load_ushort v98, v11, s[28:31], s36 offen")
    a("buffer_load_ushort v99, v11, s[28:31], s36 offen offset:32")
    for r in range(ACC, ACC + 72): a("v_mov_b32 v%d, 0" % r)
    a("v_lshrrev_b32 v10, 2, v2")
    a("v_lshlrev_b32 v10, 5, v10")
    a("v_and_b32 v11, 3, v2")
    a("v_lshl_add_u32 v10, v11, 3, v10")
    a("v_add_u32 v10, %d, v10" % (RB + TREG))
    a("s_mul_i32 s26, s25, 10240")
    a("v_add_u32 v%d, s26, v10" % bF)
    a("v_add_u32 v%d, 8192, v10" % bFh)
    core.FS = 32; core.FT = 2048
    mma_addr(0)
    a("s_mov_b32 s33, 0")
    stamp(a, 4)
    a("s_barrier")
    stamp(a, 5)
    core.prime(0, core.reads(0, 0))
    trk.drain()
    nocs[0] = True
    a.label("%s_gloop" % name)
    lb = len(a.lines); iteration(False); st = copy.deepcopy(trk.out); del a.lines[lb:]; trk.out = copy.deepcopy(st)
    iteration(False)
    assert [sorted(x) for x in trk.out] == [sorted(x) for x in st]
    a("s_cmp_lg_u32 s33, 3")
    a("s_cbranch_scc1 %s_ghk" % name)
    a("s_waitcnt vmcnt(0)")
    for n in range(3):
        a("buffer_store_dwordx4 %s, v%d, s[12:15], s40 offen" % (vr(100 + 4 * n), 112 + n))
    for tt in range(4): a("v_lshlrev_b32 v%d, 16, v%d" % (BI + 2 * tt, 96 + tt))
    a("v_mov_b32 v10, %d" % (LC + 8))
    a("v_mov_b32 v11, 1")
    a("s_mov_b64 exec, 1")
    a("ds_add_rtn_u32 v12, v10, v11")
    a("s_waitcnt lgkmcnt(0)")
    a("v_readfirstlane_b32 s36, v12")
    a("s_cmp_lg_u32 s36, 3")
    a("s_cbranch_scc1 %s_nokvs" % name)
    a("s_and_b32 s36, s2, 15")
    a("s_lshl_b32 s36, s36, 2")
    a("s_add_u32 s36, s36, 128")
    a("v_mov_b32 v10, s36")
    a("buffer_atomic_add v11, v10, s[60:63], 0 offen sc1")
    a.label("%s_nokvs" % name)
    a("s_mov_b64 exec, -1")
    a.label("%s_ghk" % name)
    a("s_cmp_lt_u32 s33, 32")
    a("s_cbranch_scc1 %s_gloop" % name)
    trk.drain()
    stamp(a, 6)
    G3.emit_k2_epilogue2(a, core, Z1R, BI)
    stamp(a, 7)
    G.stamp_rt(a, 1)
    a("s_branch %s_end" % name)
    a.label("%s_A1" % name)
    a("s_setprio 2")
    vmA = VmTracker(a)
    PB = 132
    def aux_head():
        epi_in()
        for tt in range(4):
            a("v_mov_b32 v%d, 0" % S[tt]); a("v_mov_b32 v%d, 0" % Q[tt])
    def aux_pub():
        a("s_nop 2")
        emit_xg_reduce(a, S + Q, 72)
        a("v_lshrrev_b32 v10, 4, v2")
        for g in range(1, 4):
            a("v_cmp_eq_u32 vcc, %d, v10" % g)
            a("s_nop 1")
            a("v_cndmask_b32 v%d, v%d, v%d, vcc" % (S[0], S[0], S[g]))
            a("v_cndmask_b32 v%d, v%d, v%d, vcc" % (Q[0], Q[0], Q[g]))
        a("v_and_b32 v%d, 0x7fffffff, v%d" % (Q[0], Q[0]))
        a("buffer_store_dwordx2 v[%d:%d], v94, s[12:15], s58 offen sc1" % (S[0], Q[0]))
    chunks = [capture(aux_head) + capture(gelu_ft, 0, True), capture(gelu_ft, 1, True), capture(gelu_ft, 2, True),
              capture(gelu_ft, 3, True), capture(gelu_ft, 4, True) + capture(aux_pub)]
    KD = 172
    for k in range(9, 18):
        a("s_barrier")
        if k == 9:
            a("s_cmp_lg_u32 s3, 0")
            a("s_cbranch_scc1 %s_nosig" % name)
            a("v_mov_b32 v10, 1")
            a("s_lshl_b32 s36, s22, 2")
            a("v_mov_b32 v11, s36")
            a("s_mov_b64 exec, 1")
            a("buffer_atomic_add v10, v11, s[60:63], 0 offen sc1")
            a("s_mov_b64 exec, -1")
            a.label("%s_nosig" % name)
        g = k + 3
        dma = capture(lambda: (issueT(g), issueF(g))) if g < 18 else []
        comp = chunks[k - 9] if k - 9 < len(chunks) else []
        interleave(dma, comp)
        if k == 13: vmA.issue("pub", 1)
        if g < 18: vmA.issue("S%d" % g, 9)
        if k == 14:
            srd(a, 92, 78, 2048 * 2048 * 2)
            a("v_lshrrev_b32 v10, 4, v2")
            a("v_lshlrev_b32 v10, 12, v10")
            a("v_lshl_add_u32 v10, v3, 4, v10")
            a("s_lshl_b32 s40, s22, 7")
            a("s_lshl_b32 s36, s3, 5")
            a("s_add_u32 s40, s40, s36")
            a("s_lshl_b32 s40, s40, 12")
            a("s_lshl_b32 s36, s23, 8")
            a("s_add_u32 s40, s40, s36")
            for n in range(8):
                a("buffer_load_dwordx4 v[200:203], v10, s[92:95], s40 offen")
                if n < 7: a("s_add_u32 s40, s40, 16384")
            vmA.issue("wp", 8)
            a("s_lshl_b32 s36, s22, 2")
            a("v_mov_b32 v199, s36")
            a("buffer_load_dword v198, v199, s[60:63], 0 offen sc1"); vmA.issue("cnt", 1)
        if k + 2 < 18 and k + 2 >= 12:
            vmA.wait(["S%d" % (k + 2)])
    a("s_barrier")
    stamp(a, 3)
    a("s_load_dwordx4 s[88:91], s[0:1], 32")
    a("v_lshrrev_b32 v10, 4, v2")
    a("v_lshlrev_b32 v95, 8, v3")
    a("v_lshl_add_u32 v95, v10, 6, v95")
    a("s_lshl_b32 s33, s25, 13")
    a("s_add_u32 s52, s59, s33")
    a("s_xor_b32 s33, s33, 8192")
    a("s_add_u32 s53, s59, s33")
    a("s_add_u32 s42, s52, 4096")
    a("s_add_u32 s43, s53, 4096")
    Z2 = ZP
    a("s_waitcnt vmcnt(0)")
    GB = [128, 144, 160, 176]
    a("v_mov_b32 v4, v95")
    def gather():
        for tt in range(4):
            for q in range(4):
                a("buffer_load_dwordx4 %s, v4, s[12:15], s%d offen offset:%d sc1" % (vr(GB[tt] + 4 * q), (52, 42, 53, 43)[tt], 16 * q))
    gather()
    a("s_mov_b32 s40, 0")
    a("s_waitcnt vmcnt(0)")
    a.label("%s_chk" % name)
    a("v_subrev_u32 v11, 16, v198")
    for tt in range(4):
        for r in range(GB[tt] + 1, GB[tt] + 16, 4):
            a("v_or3_b32 v11, v11, v%d, v%d" % (r, r + 2))
    a("v_cmp_gt_i32 vcc, 0, v11")
    a("s_add_u32 s40, s40, 1")
    a("s_cmp_gt_u32 s40, %d" % SPIN_MAX)
    a("s_cbranch_scc1 %s_ok" % name)
    a("s_cbranch_vccz %s_ok" % name)
    a("s_sleep 32")
    a("buffer_load_dword v198, v199, s[60:63], 0 offen sc1")
    a("s_waitcnt vmcnt(0)")
    gather()
    a("s_waitcnt vmcnt(0)")
    a("s_branch %s_chk" % name)
    a.label("%s_ok" % name)
    stamp(a, 5)
    for tt in range(4):
        b = GB[tt]
        for st_ in (8, 4, 2):
            for q in range(0, st_, 2):
                a("v_pk_add_f32 %s, %s, %s" % (vr(b + q, 2), vr(b + q, 2), vr(b + q + st_, 2)))
    emit_xg_reduce(a, [GB[tt] + e for tt in range(4) for e in range(2)], 72)
    for tt in range(4):
        b = GB[tt]
        emit_ln_finish(a, b, b + 1, 2304, b + 2, MR + 2 * tt, b + 4)
        a("v_mul_f32 v%d, -v%d, v%d" % (MR + 2 * tt + 1, b + 2, MR + 2 * tt))
    a("v_lshrrev_b32 v10, 4, v2")
    a("v_lshrrev_b32 v11, 2, v2"); a("v_and_b32 v11, 1, v11"); a("v_lshlrev_b32 v11, 4, v11")
    a("v_lshrrev_b32 v5, 3, v2"); a("v_and_b32 v5, 1, v5"); a("v_lshl_add_u32 v11, v5, 2, v11")
    a("v_and_b32 v5, 3, v2"); a("v_add_u32 v11, v11, v5")
    a("v_and_b32 v5, 1, v10")
    a("v_lshl_add_u32 v11, v5, 3, v11")
    a("v_lshlrev_b32 v11, 5, v11")
    a("v_lshrrev_b32 v5, 1, v10")
    a("v_lshl_add_u32 v6, v5, 4, v11")
    a("s_lshl_b32 s33, s23, 5")
    a("s_lshl_b32 s36, s22, 1")
    a("s_add_u32 s33, s33, s36")
    a("s_add_u32 s33, s33, s24")
    a("s_mul_i32 s33, s33, 18432")
    if ZIMG: a("s_add_u32 s33, s33, 0x%x" % ZIMG)
    a("s_lshl_b32 s36, s25, 10")
    a("s_add_u32 s39, s33, s36")
    a("s_add_u32 s39, s39, 8192")
    a("s_mul_i32 s38, s25, 10240")
    a("s_add_u32 s33, s33, s38")
    a("s_add_u32 s37, s33, s36")
    a("s_xor_b32 s36, s36, 1024")
    a("s_add_u32 s38, s33, s36")
    a("s_add_u32 s33, s37, 4096")
    a("s_add_u32 s36, s38, 4096")
    def norm_pair(nA, ttA, nB, ttB, O):
        for q, (n, tt) in enumerate(((nA, ttA), (nB, ttB))):
            for d in range(2):
                z = Z2 + 2 * n + d; t = T + 4 * q + 2 * d
                a("v_lshlrev_b32 v%d, 16, v%d" % (t, z))
                a("v_and_b32 v%d, 0xffff0000, v%d" % (t + 1, z))
        for q, (n, tt) in enumerate(((nA, ttA), (nB, ttB))):
            for d in range(2):
                t = T + 4 * q + 2 * d
                a("v_pk_fma_f32 %s, %s, %s, %s op_sel:[0,0,1] op_sel_hi:[1,0,1]" % (vr(t, 2), vr(t, 2), vr(MR + 2 * tt, 2), vr(MR + 2 * tt, 2)))
        for q in range(2):
            for d in range(2):
                t = T + 4 * q + 2 * d
                a("v_cvt_pk_bf16_f32 v%d, v%d, v%d" % (O + 2 * q + d, t, t + 1))
        a("s_nop 1")
        a("v_permlane16_swap_b32 v%d, v%d" % (O, O + 2))
        a("v_permlane16_swap_b32 v%d, v%d" % (O + 1, O + 3))
    cnt = 0
    for ft in range(4):
        for pp in range(2):
            O = 200 + 4 * cnt; cnt += 1
            norm_pair(tidx(ft, 2 * pp), 2 * pp, tidx(ft, 2 * pp + 1), 2 * pp + 1, O)
            a("s_nop 0")
            a("buffer_store_dwordx4 %s, v6, s[12:15], s%d offen offset:%d sc1" % (vr(O), ((37, 38), (33, 36))[ft >> 1][pp], (ft & 1) * 2048))
    O = 200 + 4 * cnt
    norm_pair(16, 0, 17, 1, O)
    a("s_nop 0")
    a("buffer_store_dwordx4 %s, v6, s[12:15], s39 offen sc1" % vr(O))
    stamp(a, 6)
    a("s_setprio 3")
    srd(a, 8, 78, 2048 * 2048 * 2)
    a("v_lshrrev_b32 v3, 3, v2")
    a("s_lshl_b32 s24, s3, 5")
    a("v_add_u32 v3, s24, v3")
    a("v_and_b32 v4, 7, v2")
    a("v_lshrrev_b32 v6, 4, v2")
    a("v_xor_b32 v6, v6, v4")
    a("v_lshlrev_b32 v6, 4, v6")
    a("v_lshl_add_u32 v10, v3, 12, v6")
    a("v_xor_b32 v11, 64, v10")
    a("v_add_u32 v11, %d, v11" % (32768 - 1024))
    a("v_add_u32 v12, %d, v10" % (2 * (32768 - 1024)))
    a("v_add_u32 v13, %d, v11" % (2 * (32768 - 1024)))
    a("v_lshlrev_b32 v14, 4, v2")
    a("s_lshl_b32 s26, s22, 19")
    a("s_mul_i32 s27, s23, %d" % (32 * 18432))
    a("s_lshl_b32 s24, s3, 12")
    a("s_add_u32 s27, s27, s24")
    if ZIMG: a("s_add_u32 s27, s27, 0x%x" % ZIMG)
    a("s_lshl_b32 s25, s3, 9")
    a("s_sub_u32 s32, s25, s24")
    a("s_add_u32 s32, s32, 16384")
    a("s_add_u32 s24, s24, %d" % RB)
    a("s_waitcnt vmcnt(0) lgkmcnt(0)")
    a("v_mov_b32 v26, %d" % LC)
    a("v_mov_b32 v27, 1")
    a("s_mov_b64 exec, 1")
    a("ds_add_rtn_u32 v28, v26, v27")
    a("s_waitcnt lgkmcnt(0)")
    a("v_readfirstlane_b32 s36, v28")
    a("s_cmp_lg_u32 s36, 3")
    a("s_cbranch_scc1 %s_nozs" % name)
    a("v_mov_b32 v28, 0")
    a("buffer_store_dword v27, v28, s[12:15], s97 offen sc1")
    a.label("%s_nozs" % name)
    a("s_mov_b64 exec, -1")
    stamp(a, 7)
    srd(a, 16, 88, 576 * 2048 * 2)
    srd(a, 84, 90, 576 * 2)
    for g in range(4):
        a("s_add_u32 s35, s24, %d" % (g * SLOT))
        a("s_mov_b32 m0, s35")
        a("s_add_u32 s36, s26, %d" % (128 * g))
        for n in range(4):
            a("buffer_load_dwordx4 v%d, s[8:11], s36 offen offset:%d lds" % (10 + n, n * 1024))
    a("s_mov_b32 s34, 0")
    a("s_cmp_lg_u32 s3, 0")
    a("s_cbranch_scc1 %s_pl" % name)
    a("v_and_b32 v28, 15, v2")
    a("v_lshlrev_b32 v30, 2, v28")
    a("v_lshlrev_b32 v28, 12, v28")
    a("s_lshl_b32 s52, s23, 8")
    a("s_add_u32 s52, s52, 0x%x" % ZFLG)
    a.label("%s_pz0" % name)
    a("buffer_load_dword v31, v30, s[60:63], 0 offen sc1")
    a("s_add_u32 s34, s34, 1")
    a("s_waitcnt vmcnt(0)")
    a("v_cmp_gt_u32 vcc, 16, v31")
    a("s_cmp_gt_u32 s34, %d" % SPIN_MAX)
    a("s_cbranch_scc1 %s_pz" % name)
    a("s_cbranch_vccz %s_pz" % name)
    a("s_sleep 32")
    a("s_branch %s_pz0" % name)
    a.label("%s_pz" % name)
    a("buffer_load_dword v29, v28, s[12:15], s52 offen sc1")
    a("s_add_u32 s34, s34, 1")
    a("s_waitcnt vmcnt(0)")
    a("v_cmp_ne_u32 vcc, 1, v29")
    a("s_cmp_gt_u32 s34, %d" % SPIN_MAX)
    a("s_cbranch_scc1 %s_pzx" % name)
    a("s_cbranch_vccz %s_pzx" % name)
    a("s_sleep 8")
    a("s_branch %s_pz" % name)
    a.label("%s_pzx" % name)
    a("v_mov_b32 v27, 1")
    a("ds_write_b32 v26, v27 offset:4")
    a("s_branch %s_pgo" % name)
    a.label("%s_pl" % name)
    a("ds_read_b32 v27, v26 offset:4")
    a("s_add_u32 s34, s34, 1")
    a("s_waitcnt lgkmcnt(0)")
    a("v_readfirstlane_b32 s36, v27")
    a("s_cmp_gt_u32 s34, %d" % (SPIN_MAX * 20))
    a("s_cbranch_scc1 %s_pgo" % name)
    a("s_cmp_lg_u32 s36, 0")
    a("s_cbranch_scc1 %s_pgo" % name)
    a("s_sleep 2")
    a("s_branch %s_pl" % name)
    a.label("%s_pgo" % name)
    stamp(a, 8)
    for g in range(4):
        a("s_add_u32 s35, s24, %d" % (g * SLOT + TREG))
        a("s_mov_b32 m0, s35")
        a("s_add_u32 s36, s27, %d" % (18432 * g))
        a("s_add_u32 s37, s36, s32")
        for n in range(4):
            a("buffer_load_dwordx4 v14, s[12:15], s36 offen offset:%d sc1 lds" % (n * 1024))
        a("s_add_u32 s35, s35, s32")
        a("s_mov_b32 m0, s35")
        a("s_mov_b64 exec, 0xffffffff")
        a("buffer_load_dwordx4 v14, s[12:15], s37 offen sc1 lds")
        a("s_mov_b64 exec, -1")
    a("s_add_u32 s26, s26, 512")
    a("s_add_u32 s27, s27, %d" % (4 * 18432))
    a("s_mov_b32 s33, 0")
    a("s_lshl_b32 s43, s2, 2")
    a("s_add_u32 s43, s43, s3")
    a("s_and_b32 s53, s43, 1")
    a("s_sub_u32 s36, s43, 448")
    a("s_lshr_b32 s37, s43, 1")
    a("s_cmp_ge_u32 s43, 896")
    a("s_cselect_b32 s43, s36, s37")
    a("s_cselect_b32 s53, 2, s53")
    a("s_waitcnt vmcnt(15)")
    a("s_barrier")
    a("s_waitcnt vmcnt(10)")
    a("s_barrier")
    a("s_waitcnt vmcnt(5)")
    a("s_barrier")
    a("s_mov_b32 s34, 4")
    def issue2():
        a("s_add_u32 s35, s33, s24")
        a("s_mov_b32 m0, s35")
        a("s_add_u32 s36, s35, %d" % TREG)
        for n in range(4):
            a("buffer_load_dwordx4 v%d, s[8:11], s26 offen offset:%d lds" % (10 + n, n * 1024))
        a("s_mov_b32 m0, s36")
        a("s_add_u32 s37, s27, s32")
        for n in range(4):
            a("buffer_load_dwordx4 v14, s[12:15], s27 offen offset:%d sc1 lds" % (n * 1024))
        a("s_add_u32 s36, s36, s32")
        a("s_mov_b32 m0, s36")
        a("s_mov_b64 exec, 0xffffffff")
        a("buffer_load_dwordx4 v14, s[12:15], s37 offen sc1 lds")
        a("s_mov_b64 exec, -1")
        a("s_add_u32 s26, s26, 128")
        a("s_add_u32 s27, s27, 18432")
        a("s_add_u32 s33, s33, %d" % SLOT)
        a("s_cmp_eq_u32 s33, %d" % (R * SLOT))
        a("s_cselect_b32 s33, 0, s33")
    a.label("%s_lloop" % name)
    issue2()
    a("s_cmp_eq_u32 s34, 18")
    a("s_cbranch_scc1 %s_hk1" % name)
    a("s_cmp_eq_u32 s34, 21")
    a("s_cbranch_scc1 %s_hk2" % name)
    a("s_waitcnt vmcnt(9)")
    a.label("%s_lcont" % name)
    a("s_barrier")
    a("s_add_u32 s34, s34, 1")
    a("s_cmp_lt_u32 s34, 32")
    a("s_cbranch_scc1 %s_lloop" % name)
    a("s_branch %s_ldone" % name)
    a.label("%s_hk1" % name)
    a("v_and_b32 v28, 15, v2")
    a("v_lshlrev_b32 v28, 2, v28")
    a("buffer_load_dword v29, v28, s[60:63], 0 offen offset:128 sc1")
    a("s_waitcnt vmcnt(10)")
    a("s_branch %s_lcont" % name)
    a.label("%s_hk2" % name)
    a("s_mov_b32 s52, 0")
    a.label("%s_hk2l" % name)
    a("v_cmp_gt_u32 vcc, 16, v29")
    a("s_add_u32 s52, s52, 1")
    a("s_cmp_gt_u32 s52, %d" % SPIN_MAX)
    a("s_cbranch_scc1 %s_hk2g" % name)
    a("s_cbranch_vccz %s_hk2g" % name)
    a("s_sleep 16")
    a("buffer_load_dword v29, v28, s[60:63], 0 offen offset:128 sc1")
    a("s_waitcnt vmcnt(0)")
    a("s_branch %s_hk2l" % name)
    a.label("%s_hk2g" % name)
    nconv = emit_conv_loads(a, " sc1")
    a("s_waitcnt vmcnt(%d)" % (9 + nconv))
    a("s_branch %s_lcont" % name)
    a.label("%s_ldone" % name)
    a("s_waitcnt vmcnt(0)")
    a("s_barrier")
    a("s_mov_b32 s26, s53")
    a("s_and_b32 s27, s3, 1")
    a("s_mul_i32 s27, s27, %d" % CJ_SIZE)
    a("s_lshr_b32 s36, s3, 1")
    a("s_mul_i32 s36, s36, %d" % SLOT)
    a("s_add_u32 s27, s27, s36")
    a("s_add_u32 s27, s27, %d" % RB)
    def mid():
        a("s_barrier")
        a("s_setprio 0")
    sv = set(DBG); DBG.discard("stamp")
    emit_conv_job(a, name, mid)
    DBG.update(sv)
    G.stamp_rt(a, 1)
    a.label("%s_end" % name)
    a("s_endpgm")
    return a.text(), kernel_desc(name, 256, 256), (name, 256, 512, LDSB)

def gen_kf6(name="k1_kernel", R=4):
    a = Asm()
    RB = 4096; SLOT = 34816; TREG = 16384; FS = 288; RST = 0
    LDSB = RB + R * SLOT
    LC = 2048
    ZFLG = 0x2D00000; PFL = 128
    C0 = 77824; CW = 151552; CSL = 36864; YOFF = 151552; CTREG = 16384; CFS = 160
    from gen3 import emit_conv_loads, emit_conv_job, CJ_SIZE
    def capture(f, *args):
        lb = len(a.lines); f(*args); out = a.lines[lb:]; del a.lines[lb:]; return out

    def c_common():
        a("s_load_dwordx2 s[4:5], s[0:1], 0")
        a("s_load_dwordx2 s[16:17], s[0:1], 88")
        a("s_and_b32 s20, s2, 7")
        a("s_lshr_b32 s21, s2, 3")
        a("s_and_b32 s22, s20, 3")
        a("s_lshl_b32 s22, s22, 3")
        a("s_and_b32 s23, s21, 7")
        a("s_add_u32 s22, s22, s23")
        a("s_lshr_b32 s23, s20, 2")
        a("s_lshl_b32 s23, s23, 2")
        a("s_lshr_b32 s24, s21, 3")
        a("s_add_u32 s23, s23, s24")
        a("s_lshr_b32 s52, s23, 1")
        a("s_and_b32 s53, s23, 1")
        a("s_lshl_b32 s54, s98, 2")
        a("s_add_u32 s54, s54, s3")
        a("s_waitcnt lgkmcnt(0)")
        srd(a, 8, 4, 2048 * 576 * 2)
        srd(a, 28, 16, 2048 * 576 * 2)
    XR = 200; ST = 208
    def fin_loads():
        a("v_and_b32 v3, 15, v2")
        a("v_lshrrev_b32 v10, 4, v2")
        a("v_mul_u32_u24 v13, 1152, v3")
        a("v_lshl_add_u32 v13, v10, 3, v13")
        a("v_lshlrev_b32 v12, 3, v3")
        for s_ in range(3):
            if s_ == 2:
                a("s_cmp_ge_u32 s54, 2")
                a("s_cbranch_scc1 %s_fl%d" % (name, fin_loads.cnt))
            b = 64 + 4 * s_
            if s_ < 2:
                a("s_add_u32 s36, s54, %d" % (8 * s_))
                a("s_lshr_b32 s37, s36, 2")
                a("s_and_b32 s38, s36, 3")
                a("s_mul_i32 s39, s53, 160")
                a("s_lshl_b32 s40, s37, 5")
                a("s_add_u32 s39, s39, s40")
            else:
                a("s_add_u32 s36, s54, 16")
                a("s_mov_b32 s37, 4")
                a("s_mov_b32 s38, s54")
                a("s_mov_b32 s39, 128")
            a("s_lshl_b32 s40, s53, 1")
            a("s_add_u32 s38, s38, s40")
            a("s_and_b32 s38, s38, 3")
            a("s_lshl_b32 s40, s22, 2")
            a("s_add_u32 s40, s40, s38")
            a("s_lshl_b32 s40, s40, 4")
            a("s_mul_i32 s%d, s40, 1152" % b)
            a("s_add_u32 s%d, s%d, s39" % (b, b))
            a("s_mul_i32 s39, s52, 288")
            a("s_add_u32 s%d, s%d, s39" % (b, b))
            a("s_lshl_b32 s%d, s37, 11" % (b + 1))
            a("s_lshl_b32 s39, s38, 5")
            a("s_add_u32 s%d, s%d, s39" % (b + 1, b + 1))
            a("s_add_u32 s%d, s%d, %d" % (b + 1, b + 1, YOFF))
            a("s_lshl_b32 s%d, s36, 10" % (b + 2))
            a("s_add_u32 s%d, s%d, %d" % (b + 2, b + 2, C0))
            a("s_lshl_b32 s40, s40, 3")
            a("s_add_u32 s40, s40, 0x%x" % STATS1)
            a("buffer_load_dwordx2 %s, v13, s[8:11], s%d offen" % (vr(XR + 2 * s_, 2), b))
            a("buffer_load_dwordx2 %s, v12, s[12:15], s40 offen sc1" % vr(ST + 2 * s_, 2))
        a.label("%s_fl%d" % (name, fin_loads.cnt))
        fin_loads.cnt += 1
    fin_loads.cnt = 0
    kernel_begin(a, name)
    a("s_load_dwordx2 s[80:81], s[0:1], 0")
    a("s_load_dwordx2 s[4:5], s[0:1], 56")
    a("s_load_dwordx2 s[6:7], s[0:1], 104")
    a("s_load_dwordx2 s[18:19], s[0:1], 96")
    a("s_cmp_ge_u32 s2, 256")
    a("s_cbranch_scc1 %s_end" % name)
    a("v_lshrrev_b32 v1, 6, v0")
    a("v_and_b32 v2, 63, v0")
    a("v_readfirstlane_b32 s3, v1")
    G2.tile_ij(a)
    a("s_lshr_b32 s98, s3, 2")
    a("s_mov_b32 s54x, 0".replace("s54x", "s99"))
    a("s_and_b32 s3, s3, 3")
    a("s_lshr_b32 s24, s3, 1")
    a("s_and_b32 s25, s3, 1")
    a("v_and_b32 v3, 15, v2")
    VT = 204; VF = 208
    def loader_setup():
        a("v_lshrrev_b32 v5, 3, v2")
        a("v_and_b32 v4, 7, v2")
        a("s_lshl_b32 s36, s3, 5")
        a("v_add_u32 v5, s36, v5")
        a("v_lshrrev_b32 v7, 4, v2")
        a("v_xor_b32 v7, v7, v4")
        a("v_mul_u32_u24 v6, 1152, v5")
        a("v_lshl_add_u32 v%d, v7, 4, v6" % VT)
        a("v_xor_b32 v%d, 64, v%d" % (VT + 1, VT))
        a("v_add_u32 v%d, %d, v%d" % (VT + 1, 9216 - 1024, VT + 1))
        a("v_add_u32 v%d, %d, v%d" % (VT + 2, 2 * (9216 - 1024), VT))
        a("v_add_u32 v%d, %d, v%d" % (VT + 3, 2 * (9216 - 1024), VT + 1))
        a("s_lshl_b32 s84, s3, 12")
        a("s_add_u32 s84, s84, %d" % RB)
        a("s_lshl_b32 s85, s3, 9")
        a("s_add_u32 s85, s85, %d" % (RB + TREG + 16384))
    def loader_setup2():
        for n in range(5):
            if n < 4:
                a("s_lshl_b32 s36, s3, 8")
                a("s_add_u32 s36, s36, %d" % (64 * n))
            else:
                a("s_lshl_b32 s36, s3, 5")
                a("s_add_u32 s36, s36, 1024")
            a("v_add_u32 v6, s36, v2")
            a("v_mul_u32_u24 v7, 3641, v6")
            a("v_lshrrev_b32 v7, 16, v7")
            a("v_mul_u32_u24 v8, 18, v7")
            a("v_sub_u32 v8, v6, v8")
            a("v_and_b32 v9, 35, v7")
            a("v_bfe_u32 v6, v7, 2, 2")
            a("v_lshl_add_u32 v9, v6, 3, v9")
            a("v_bfe_u32 v6, v7, 4, 1")
            a("v_lshl_add_u32 v9, v6, 2, v9")
            a("v_mul_u32_u24 v9, 9216, v9")
            a("v_lshl_add_u32 v%d, v8, 4, v9" % (VF + n))
            if 0 < n < 4: a("v_subrev_u32 v%d, %d, v%d" % (VF + n, 1024 * n, VF + n))
    def issueT(g):
        st = g % 9
        a("s_add_u32 s86, s84, %d" % ((g % R) * SLOT))
        a("s_mov_b32 m0, s86")
        a("s_add_u32 s87, s82, %d" % (128 * st))
        for n in range(4):
            a("buffer_load_dwordx4 v%d, s[28:31], s87 offen offset:%d lds" % (VT + n, 1024 * n))
    def issueF(g):
        st = g % 9
        a("s_add_u32 s86, s84, %d" % ((g % R) * SLOT + TREG))
        a("s_mov_b32 m0, s86")
        a("s_add_u32 s87, s83, %d" % (64 * 9216 * st + (4608 if g < 9 else 0)))
        for n in range(4):
            a("buffer_load_dwordx4 v%d, s[8:11], s87 offen offset:%d lds" % (VF + n, 1024 * n))
        a("s_add_u32 s86, s85, %d" % ((g % R) * SLOT))
        a("s_mov_b32 m0, s86")
        a("s_mov_b64 exec, 0xffffffff")
        a("buffer_load_dwordx4 v%d, s[8:11], s87 offen lds" % (VF + 4))
        a("s_mov_b64 exec, -1")
    def srds_main():
        srd(a, 28, 80, 2048 * 576 * 2)
        srd(a, 8, 4, 576 * 4608 * 2)
        srd(a, 12, 6, WS_BYTES)
        srd(a, 60, 18, 256)
        a("s_mul_i32 s82, s22, %d" % (128 * 1152))
        a("s_mul_i32 s83, s23, 288")
    ACC = 128; FB = [16, 52]; CS = 216; ONE = 236
    vTa = [4, 5]; vTb = [6, 7]; vF = 8; vFh = 9
    bTa = [88, 89]; bTb = [90, 91]; bF = 92; bFh = 93
    def mma_setup():
        a("v_lshrrev_b32 v10, 4, v2")
        a("v_lshrrev_b32 v11, 1, v3")
        a("v_xor_b32 v10, v10, v11")
        a("v_lshlrev_b32 v10, 4, v10")
        a("v_lshl_add_u32 v10, v3, 7, v10")
        a("s_lshl_b32 s26, s24, 13")
        a("s_add_u32 s26, s26, %d" % RB)
        a("v_add_u32 v10, s26, v10")
        a("s_lshl_b32 s26, s25, 12")
        a("v_add_u32 v%d, s26, v10" % bTa[0])
        a("s_xor_b32 s26, s26, 4096")
        a("v_add_u32 v%d, s26, v10" % bTb[0])
        a("v_xor_b32 v%d, 64, v%d" % (bTa[1], bTa[0]))
        a("v_xor_b32 v%d, 64, v%d" % (bTb[1], bTb[0]))
        a("v_lshrrev_b32 v10, 2, v2")
        a("v_mul_u32_u24 v10, %d, v10" % FS)
        a("v_and_b32 v11, 3, v2")
        a("v_lshl_add_u32 v10, v11, 3, v10")
        a("v_add_u32 v10, %d, v10" % (RB + TREG))
        a("s_mul_i32 s26, s25, 160")
        a("v_add_u32 v%d, s26, v10" % bF)
        a("v_add_u32 v%d, 128, v10" % bFh)
        for r in range(ACC, ACC + 72): a("v_mov_b32 v%d, 0" % r)
        for r in range(CS, CS + 20): a("v_mov_b32 v%d, 0" % r)
        for r in range(ONE, ONE + 4): a("v_mov_b32 v%d, 0x3f803f80" % r)
    def mma_addr(slot):
        a("s_mov_b32 s27, %d" % (slot * SLOT))
        for d, s_ in ((vTa[0], bTa[0]), (vTb[0], bTb[0]), (vTa[1], bTa[1]), (vTb[1], bTb[1]), (vF, bF), (vFh, bFh)):
            a("v_add_u32 v%d, s27, v%d" % (d, s_))
    core = G.Core(a, ACC, FB[0], FB[1], FS, TREG, vTa, vTb, vF, vFh)
    trk = core.trk
    a("s_cmp_eq_u32 s98, 0")
    a("s_cbranch_scc1 %s_A0" % name)
    a("s_setprio 3")
    loader_setup()
    a("s_waitcnt lgkmcnt(0)")
    srds_main()
    vm = VmTracker(a)
    def issue(g, vmx):
        issueT(g); issueF(g); vmx.issue("S%d" % g, 9)
    issueT(0)
    loader_setup2()
    issueF(0); vm.issue("S0", 9)
    issue(1, vm); issue(2, vm); issue(3, vm)
    a("s_add_u32 s3, s3, 4"); stamp_setup(a, 1); stamp(a, 0); a("s_sub_u32 s3, s3, 4")
    mma_setup()
    RA = 96; XB = 112
    for r in range(RA, RA + 16): a("v_mov_b32 v%d, 0" % r)
    a("v_lshrrev_b32 v10, 4, v2")
    a("v_lshrrev_b32 v11, 1, v3")
    a("v_xor_b32 v10, v10, v11")
    a("v_lshlrev_b32 v10, 4, v10")
    a("v_lshl_add_u32 v10, v3, 7, v10")
    a("v_add_u32 v12, s84, v10")
    a("v_xor_b32 v13, 64, v12")
    def rs_rd(g):
        a("v_add_u32 v10, %d, v12" % ((g % R) * SLOT))
        a("v_add_u32 v11, %d, v13" % ((g % R) * SLOT))
        for h in range(2):
            for n in range(2):
                a("ds_read_b128 %s, v%d offset:%d" % (vr(XB + 8 * h + 4 * n), 10 + h, 2048 * n))
    def rs_do():
        for h in range(2):
            for n in range(2):
                x = XB + 8 * h + 4 * n
                a("v_mfma_f32_16x16x32_bf16 %s, %s, %s, %s" % (vr(RA + 4 * n), vr(ONE), vr(x), vr(RA + 4 * n)))
                a("v_mfma_f32_16x16x32_bf16 %s, %s, %s, %s" % (vr(RA + 8 + 4 * n), vr(x), vr(x), vr(RA + 8 + 4 * n)))
    def interleave(dma, comp, vmx=None):
        groups = []; cur = []
        for l in dma:
            cur.append(l)
            if "buffer_load" in l and not any("exec, 0xffffffff" in x for x in cur[-2:]):
                groups.append(cur); cur = []
            elif "exec, -1" in l:
                groups.append(cur); cur = []
        if cur: groups.append(cur)
        ns = max(1, len(groups))
        per = (len(comp) + ns - 1) // ns
        for g in groups:
            a.lines.extend(g)
            a.lines.extend(comp[:per]); comp = comp[per:]
        a.lines.extend(comp)
    vm.wait(["S0"])
    a("s_barrier")
    stamp(a, 1)
    rs_rd(0)
    vm.wait(["S1"])
    a("s_barrier")
    for k in range(9):
        a("s_waitcnt lgkmcnt(0)")
        dma = capture(lambda: (issueT(k + 3), issueF(k + 3))) if k >= 1 else []
        interleave(dma, capture(rs_do))
        if k >= 1: vm.issue("S%d" % (k + 3), 9)
        if k < 8:
            rs_rd(k + 1)
        else:
            a("s_nop 7")
            a("v_lshrrev_b32 v10, 4, v2")
            a("v_lshrrev_b32 v11, 2, v3")
            a("v_and_b32 v12, 3, v3")
            for n in range(2):
                G_ = RA + 8 + 4 * n
                for r in range(1, 4):
                    a("v_cmp_eq_u32 vcc, %d, v12" % r)
                    a("s_nop 1")
                    a("v_cndmask_b32 v%d, v%d, v%d, vcc" % (G_, G_, G_ + r))
            ML = 112
            for n in range(2):
                emit_ln_finish(a, RA + 4 * n, RA + 8 + 4 * n, 576, ML + 2 * n, ML + 2 * n + 1, 120)
                a("v_mov_b32 v%d, v%d" % (117 + 2 * n, ML + 2 * n + 1))
                a("v_sub_f32 v%d, 0, v%d" % (116 + 2 * n, ML + 2 * n))
            a("s_lshl_b32 s35, s3, 8")
            a("v_lshlrev_b32 v13, 3, v3")
            a("v_add_u32 v12, s35, v13")
            a("v_cmp_eq_u32 vcc, v10, v11")
            a("s_and_saveexec_b64 s[36:37], vcc")
            for n in range(2):
                a("ds_write_b64 v12, %s offset:%d" % (vr(116 + 2 * n, 2), RST + 128 * n))
            a("s_mov_b64 exec, s[36:37]")
            a("s_cmp_lg_u32 s23, 0")
            a("s_cbranch_scc1 %s_nost1" % name)
            a("s_lshl_b32 s35, s22, 7")
            a("s_lshl_b32 s36, s3, 5")
            a("s_add_u32 s35, s35, s36")
            a("s_lshl_b32 s35, s35, 3")
            a("s_add_u32 s35, s35, 0x%x" % STATS1)
            a("v_mov_b32 v11, 0x7ffffff0")
            a("v_cndmask_b32 v13, v11, v13, vcc")
            for n in range(2):
                a("buffer_store_dwordx2 %s, v13, s[12:15], s35 offen offset:%d sc1" % (vr(ML + 2 * n, 2), 128 * n))
            a.label("%s_nost1" % name)
            mma_addr(9 % R)
            a("s_mov_b32 s33, 0")
            a("s_setprio 0")
        vm.wait(["S%d" % (k + 2)], "lgkmcnt(0)" if k == 8 else "")
        if k < 8: a("s_barrier")
    a("s_branch %s_mma" % name)
    a.label("%s_A0" % name)
    emit_code_prefetch(a, name)
    a("s_load_dwordx4 s[64:67], s[0:1], 8")
    a("s_load_dwordx2 s[76:77], s[0:1], 24")
    a("s_load_dwordx2 s[78:79], s[0:1], 64")
    mma_setup()
    loader_setup(); loader_setup2()
    a("s_waitcnt lgkmcnt(0)")
    srds_main()
    srd(a, 68, 66, 2048 * 576 * 2)
    a("s_mov_b32 s88, s64"); a("s_mov_b32 s89, s65")
    srd(a, 64, 88, 2048 * 576 * 2)
    srd(a, 72, 76, 576 * 8)
    stamp_setup(a, 1); stamp(a, 0)
    def gran_addr():
        a("v_lshrrev_b32 v10, 4, v2")
        a("s_lshl_b32 s36, s25, 1")
        a("v_add_u32 v11, s36, v10")
        a("v_and_b32 v11, 3, v11")
        a("v_lshl_add_u32 v11, v11, 4, v3")
        a("v_lshlrev_b32 v94, 8, v11")
        a("s_lshl_b32 s59, s22, 7")
        a("s_lshl_b32 s36, s24, 6")
        a("s_add_u32 s59, s59, s36")
        a("s_lshl_b32 s59, s59, 8")
        a("s_add_u32 s59, s59, 0x%x" % STATS2)
        a("s_lshl_b32 s36, s23, 1")
        a("s_add_u32 s36, s36, s25")
        a("s_lshl_b32 s36, s36, 3")
        a("s_add_u32 s58, s36, s59")
    gran_addr()
    a("v_mov_b32 v12, 0"); a("v_mov_b32 v13, 0x80000000")
    a("buffer_store_dwordx2 v[12:13], v94, s[12:15], s58 offen sc1")
    a("s_lshl_b32 s36, s22, 4")
    a("s_add_u32 s36, s36, s23")
    a("s_lshl_b32 s36, s36, 8")
    a("s_add_u32 s97, s36, 0x%x" % ZFLG)
    a("v_mov_b32 v10, %d" % LC)
    a("v_mov_b32 v12, 0"); a("v_mov_b32 v13, 0")
    a("s_mov_b64 exec, 1")
    a("buffer_store_dword v12, v12, s[12:15], s97 offen sc1")
    a("buffer_store_dword v12, v12, s[12:15], s97 offen offset:%d sc1" % PFL)
    a("s_mov_b64 exec, -1")
    a("ds_write_b64 v10, v[12:13]")
    a("ds_write_b64 v10, v[12:13] offset:8")
    a("ds_write_b64 v10, v[12:13] offset:16")
    a("ds_write_b64 v10, v[12:13] offset:24")
    mma_addr(0)
    a("s_mov_b32 s33, 0")
    a("s_waitcnt lgkmcnt(0)")
    a("s_barrier")
    stamp(a, 1)
    a.label("%s_mma" % name)
    core.prime(0, core.reads(0, 0))
    trk.drain()
    nocs = [False]
    def mfmas(buf):
        L = []
        for ft in range(5):
            A = core.F(buf, ft)
            for tt in range(4 if ft < 4 else 2):
                c = core.accr(ft, tt); B = core.T(buf, tt)
                L.append(("v_mfma_f32_16x16x32_bf16 %s, %s, %s, %s" % (vr(c), vr(A), vr(B), vr(c)), list(range(A, A + 4)) + list(range(B, B + 4))))
            if not nocs[0]: L.append(("v_mfma_f32_16x16x32_bf16 %s, %s, %s, %s" % (vr(CS + 4 * ft), vr(A), vr(ONE), vr(CS + 4 * ft)), list(range(A, A + 4))))
        return L
    def phase(buf, pend):
        for (m, regs) in mfmas(buf):
            trk.need(regs)
            a(m)
            while pend:
                k, t = pend.pop(0)
                if k == "x":
                    a(t)
                    if t.startswith("s_"): continue
                else:
                    a(t[0]); trk.issue(t[1])
                break
        for k, t in pend:
            if k == "x": a(t)
            else: a(t[0]); trk.issue(t[1])
    def iteration(vw=True):
        if vw: a("s_waitcnt vmcnt(0)")
        a("s_barrier")
        rd = [("r", t) for t in core.reads(1, 1)]
        upd = ["s_add_u32 s27, s27, %d" % SLOT, "s_cmp_eq_u32 s27, %d" % (R * SLOT), "s_cselect_b32 s27, 0, s27"]
        tail = ["v_add_u32 v%d, s27, v%d" % (d, s_) for d, s_ in ((vTa[0], bTa[0]), (vF, bF), (vTb[0], bTb[0]), (vFh, bFh))]
        phase(0, rd[:1] + [("x", u) for u in upd] + rd[1:] + [("x", u) for u in tail])
        rd = [("r", t) for t in core.reads(0, 0)]
        tail = ["v_add_u32 v%d, s27, v%d" % (d, s_) for d, s_ in ((vTa[1], bTa[1]), (vTb[1], bTb[1]))] + ["s_add_u32 s33, s33, 1"]
        phase(1, rd + [("x", u) for u in tail])
    a.label("%s_cloop" % name)
    lb = len(a.lines); iteration(); st = copy.deepcopy(trk.out); del a.lines[lb:]; trk.out = copy.deepcopy(st)
    iteration()
    assert [sorted(x) for x in trk.out] == [sorted(x) for x in st]
    a("s_cmp_lt_u32 s33, 9")
    a("s_cbranch_scc1 %s_cloop" % name)
    trk.drain()
    stamp(a, 2)
    MR = 100; T = 72; ZP = 16
    def epi_in():
        gelu_consts(a)
        a("s_lshl_b32 s36, s24, 9")
        a("s_lshl_b32 s37, s25, 8")
        a("s_add_u32 s38, s36, s37")
        a("s_xor_b32 s37, s37, 256")
        a("s_add_u32 s39, s36, s37")
        a("v_lshlrev_b32 v10, 3, v3")
        a("v_add_u32 v11, s38, v10")
        a("ds_read_b64 %s, v11 offset:%d" % (vr(MR, 2), RST))
        a("ds_read_b64 %s, v11 offset:%d" % (vr(MR + 2, 2), RST + 128))
        a("v_add_u32 v11, s39, v10")
        a("ds_read_b64 %s, v11 offset:%d" % (vr(MR + 4, 2), RST))
        a("ds_read_b64 %s, v11 offset:%d" % (vr(MR + 6, 2), RST + 128))
        a("s_waitcnt lgkmcnt(0)")
    S = [108, 110, 52, 54]; Q = [109, 111, 53, 55]
    def gelu_ft(ft, stats):
        tts = range(4 if ft < 4 else 2)
        emit_fold_gelu(a, [(core.accr(ft, tt), CS + 4 * ft, MR + 2 * tt, ZP + 2 * tidx(ft, tt)) for tt in tts], T)
        if stats:
            for d in range(2):
                for tt in tts:
                    p = ZP + 2 * tidx(ft, tt) + d
                    a("v_dot2_f32_bf16 v%d, v%d, v%d, v%d" % (S[tt], p, ONE, S[tt]))
                    a("v_dot2_f32_bf16 v%d, v%d, v%d, v%d" % (Q[tt], p, p, Q[tt]))
    a("s_cmp_eq_u32 s98, 0")
    a("s_cbranch_scc1 %s_A1" % name)
    a("s_barrier")
    a("s_load_dwordx4 s[64:67], s[0:1], 8")
    a("s_load_dwordx2 s[76:77], s[0:1], 24")
    a("s_load_dwordx2 s[94:95], s[0:1], 80")
    a("s_load_dwordx2 s[92:93], s[0:1], 72")
    epi_in()
    srd(a, 68, 66, 2048 * 576 * 2)
    a("s_mov_b32 s88, s64"); a("s_mov_b32 s89, s65")
    srd(a, 64, 88, 2048 * 576 * 2)
    srd(a, 72, 76, 576 * 8)
    srd(a, 76, 94, 2304 * 576 * 2)
    srd(a, 28, 92, 2048 * 2)
    a("v_and_b32 v0, 255, v0")
    a("s_mov_b32 s41, s2")
    KDB = 240
    emit_kv_loads(a, 112, 240, 248, 252, 253)
    for ft in range(5): gelu_ft(ft, False)
    Z1R = 200; BI = 236
    for r_ in range(36): a("v_mov_b32 v%d, v%d" % (Z1R + r_, ZP + r_))
    stamp(a, 3)
    a("s_waitcnt vmcnt(0)")
    for n in range(11): a("v_mov_b32 v%d, v%d" % (16 + n, 112 + n))
    for n in range(8): a("v_mov_b32 v%d, v%d" % (32 + n, 240 + n))
    for n in range(4): a("v_mov_b32 v%d, v%d" % (44 + n, 248 + n))
    a("v_mov_b32 v56, v252"); a("v_mov_b32 v57, v253")
    for r_ in range(6): a("v_mov_b32 v%d, v%d" % (240 + r_, 88 + r_))
    a.label("%s_kvb" % name)
    emit_kv_compute(a, wait=False, store=False)
    a("s_mov_b32 s39, 0x%x" % KVT)
    a("buffer_store_dwordx4 v[120:123], v12, s[12:15], s39 offen sc1")
    a("buffer_store_dwordx4 v[124:127], v13, s[12:15], s39 offen sc1")
    a("s_add_u32 s41, s41, 256")
    a("s_cmp_ge_u32 s41, 288")
    a("s_cbranch_scc1 %s_kvbd" % name)
    emit_kv_loads(a)
    a("s_waitcnt vmcnt(0)")
    a("s_branch %s_kvb" % name)
    a.label("%s_kvbd" % name)
    for r_ in range(6): a("v_mov_b32 v%d, v%d" % (88 + r_, 240 + r_))
    a("s_mov_b32 s42, s2")
    emit_wot_loads(a, 100, 112, 720, 3)
    a("s_lshl_b32 s36, s22, 7")
    a("s_lshl_b32 s37, s24, 6")
    a("s_add_u32 s36, s36, s37")
    a("v_lshlrev_b32 v11, 1, v3")
    a("s_lshl_b32 s37, s25, 6")
    a("s_lshl_b32 s38, s36, 1")
    a("s_add_u32 s39, s38, s37")
    a("s_xor_b32 s37, s37, 64")
    a("s_add_u32 s36, s38, s37")
    a("buffer_load_ushort v96, v11, s[28:31], s39 offen")
    a("buffer_load_ushort v97, v11, s[28:31], s39 offen offset:32")
    a("buffer_load_ushort v98, v11, s[28:31], s36 offen")
    a("buffer_load_ushort v99, v11, s[28:31], s36 offen offset:32")
    for r in range(ACC, ACC + 72): a("v_mov_b32 v%d, 0" % r)
    mma_addr(0)
    a("s_mov_b32 s33, 0")
    stamp(a, 4)
    a("s_barrier")
    stamp(a, 5)
    core.prime(0, core.reads(0, 0))
    trk.drain()
    nocs[0] = True
    a.label("%s_gloop" % name)
    lb = len(a.lines); iteration(False); st = copy.deepcopy(trk.out); del a.lines[lb:]; trk.out = copy.deepcopy(st)
    iteration(False)
    assert [sorted(x) for x in trk.out] == [sorted(x) for x in st]
    a("s_cmp_lg_u32 s33, 3")
    a("s_cbranch_scc1 %s_ghk0" % name)
    a("s_waitcnt vmcnt(0)")
    for n in range(3):
        a("buffer_store_dwordx4 %s, v%d, s[12:15], s40 offen sc1" % (vr(100 + 4 * n), 112 + n))
    for tt in range(4): a("v_lshlrev_b32 v%d, 16, v%d" % (BI + 2 * tt, 96 + tt))
    a.label("%s_ghk0" % name)
    a("s_cmp_lg_u32 s33, 6")
    a("s_cbranch_scc1 %s_ghk" % name)
    a("s_waitcnt vmcnt(0)")
    a("v_mov_b32 v10, %d" % (LC + 8))
    a("v_mov_b32 v11, 1")
    a("s_mov_b64 exec, 1")
    a("ds_add_rtn_u32 v12, v10, v11")
    a("s_waitcnt lgkmcnt(0)")
    a("v_readfirstlane_b32 s36, v12")
    a("s_cmp_lg_u32 s36, 3")
    a("s_cbranch_scc1 %s_nokvs" % name)
    a("s_and_b32 s36, s2, 15")
    a("s_lshl_b32 s36, s36, 2")
    a("s_add_u32 s36, s36, 128")
    a("v_mov_b32 v10, s36")
    a("buffer_atomic_add v11, v10, s[60:63], 0 offen sc1")
    a.label("%s_nokvs" % name)
    a("s_mov_b64 exec, -1")
    a.label("%s_ghk" % name)
    a("s_cmp_lt_u32 s33, 32")
    a("s_cbranch_scc1 %s_gloop" % name)
    trk.drain()
    stamp(a, 6)
    lb_ = len(a.lines)
    G3.emit_k2_epilogue(a, core, Z1R, BI)
    for n_ in range(lb_, len(a.lines)):
        if "buffer_store_dwordx4" in a.lines[n_]: a.lines[n_] += " sc1"
    stamp(a, 7)
    a("s_setprio 3")
    a("s_lshl_b32 s36, s22, 4")
    a("s_add_u32 s36, s36, s23")
    a("s_lshl_b32 s36, s36, 8")
    a("s_add_u32 s97, s36, 0x%x" % (ZFLG + PFL))
    c_common()
    a("v_lshlrev_b32 v14, 4, v2")
    a("s_mul_i32 s26, s22, %d" % (36 * 8192))
    a("s_lshl_b32 s24, s3, 12")
    a("s_add_u32 s26, s26, s24")
    a("s_add_u32 s26, s26, 0x%x" % PIMG)
    a("s_mul_i32 s27, s23, %d" % (18 * 20480))
    a("s_mul_i32 s25, s3, 5120")
    a("s_add_u32 s27, s27, s25")
    a("s_add_u32 s27, s27, 0x%x" % WOT)
    a("s_add_u32 s25, s25, %d" % CTREG)
    a("v_and_b32 v28, 15, v2")
    a("v_lshlrev_b32 v30, 2, v28")
    a("buffer_load_dword v31, v30, s[60:63], 0 offen offset:128 sc1")
    a("v_mov_b32 v26, %d" % LC)
    a("v_mov_b32 v27, 1")
    a("s_waitcnt vmcnt(0)")
    a("s_mov_b64 exec, 1")
    a("ds_add_rtn_u32 v29, v26, v27 offset:16")
    a("s_waitcnt lgkmcnt(0)")
    a("v_readfirstlane_b32 s36, v29")
    a("s_cmp_lg_u32 s36, 3")
    a("s_cbranch_scc1 %s_nops" % name)
    a("v_mov_b32 v29, 0")
    a("buffer_store_dword v27, v29, s[12:15], s97 offen sc1")
    a.label("%s_nops" % name)
    a("s_mov_b64 exec, -1")
    a("s_mov_b32 s34, 0")
    a.label("%s_cw" % name)
    a("ds_read_b32 v29, v26 offset:16")
    a("s_add_u32 s34, s34, 1")
    a("s_waitcnt lgkmcnt(0)")
    a("v_readfirstlane_b32 s36, v29")
    a("s_cmp_gt_u32 s34, %d" % (SPIN_MAX * 20))
    a("s_cbranch_scc1 %s_cwx" % name)
    a("s_cmp_ge_u32 s36, 4")
    a("s_cbranch_scc1 %s_cwx" % name)
    a("s_sleep 1")
    a("s_branch %s_cw" % name)
    a.label("%s_cwx" % name)
    a("s_mov_b32 s34, 0")
    a.label("%s_cp" % name)
    a("v_cmp_gt_u32 vcc, 16, v31")
    a("s_add_u32 s34, s34, 1")
    a("s_cmp_gt_u32 s34, %d" % SPIN_MAX)
    a("s_cbranch_scc1 %s_cpx" % name)
    a("s_cbranch_vccz %s_cpx" % name)
    a("s_sleep 32")
    a("buffer_load_dword v31, v30, s[60:63], 0 offen offset:128 sc1")
    a("s_waitcnt vmcnt(0)")
    a("s_branch %s_cp" % name)
    a.label("%s_cpx" % name)
    def cF(off, soff):
        a("s_add_u32 s36, s25, %s" % off)
        a("s_mov_b32 m0, s36")
        a("s_add_u32 s37, %s, 4096" % soff)
        for n in range(4):
            a("buffer_load_dwordx4 v14, s[12:15], %s offen offset:%d sc1 lds" % (soff, n * 1024))
        a("s_add_u32 s36, s36, 4096")
        a("s_mov_b32 m0, s36")
        a("s_nop 0")
        a("buffer_load_dwordx4 v14, s[12:15], s37 offen sc1 lds")
    def cT(off, soff):
        a("s_add_u32 s35, s24, %s" % off)
        a("s_mov_b32 m0, s35")
        a("s_nop 0")
        for n in range(4):
            a("buffer_load_dwordx4 v14, s[12:15], %s offen offset:%d sc1 lds" % (soff, n * 1024))
    a("s_add_u32 s38, s27, 20480")
    cF(str(C0), "s27"); cF(str(C0 + CSL), "s38")
    a("s_mov_b32 s34, 0")
    a("s_cmp_lg_u32 s3, 0")
    a("s_cbranch_scc1 %s_cpl" % name)
    a("v_lshlrev_b32 v28, 8, v28")
    a("s_lshr_b32 s39, s22, 1")
    a("s_lshl_b32 s39, s39, 12")
    a("s_add_u32 s39, s39, 0x%x" % (ZFLG + PFL))
    a.label("%s_cpz" % name)
    a("buffer_load_dword v29, v28, s[12:15], s39 offen sc1")
    a("s_add_u32 s34, s34, 1")
    a("s_waitcnt vmcnt(0)")
    a("v_cmp_ne_u32 vcc, 1, v29")
    a("s_cmp_gt_u32 s34, %d" % SPIN_MAX)
    a("s_cbranch_scc1 %s_cpzx" % name)
    a("s_cbranch_vccz %s_cpzx" % name)
    a("s_sleep 8")
    a("s_branch %s_cpz" % name)
    a.label("%s_cpzx" % name)
    a("ds_write_b32 v26, v27 offset:24")
    a("s_branch %s_cgo" % name)
    a.label("%s_cpl" % name)
    a("ds_read_b32 v29, v26 offset:24")
    a("s_add_u32 s34, s34, 1")
    a("s_waitcnt lgkmcnt(0)")
    a("v_readfirstlane_b32 s36, v29")
    a("s_cmp_gt_u32 s34, %d" % (SPIN_MAX * 20))
    a("s_cbranch_scc1 %s_cgo" % name)
    a("s_cmp_lg_u32 s36, 0")
    a("s_cbranch_scc1 %s_cgo" % name)
    a("s_sleep 2")
    a("s_branch %s_cpl" % name)
    a.label("%s_cgo" % name)
    stamp(a, 8)
    a("s_add_u32 s38, s26, 16384")
    cT(str(C0), "s26"); cT(str(C0 + CSL), "s38")
    a("s_add_u32 s26, s26, 32768")
    a("s_add_u32 s27, s27, 40960")
    a("s_mov_b32 s33, %d" % RB)
    def cissue():
        cT("s33", "s26"); cF("s33", "s27")
        a("s_add_u32 s26, s26, 16384")
        a("s_add_u32 s27, s27, 20480")
        a("s_add_u32 s33, s33, %d" % CSL)
        a("s_cmp_eq_u32 s33, %d" % CW)
        a("s_cselect_b32 s33, %d, s33" % RB)
    a("s_waitcnt vmcnt(4)")
    a("s_barrier")
    cissue(); cissue()
    a("s_waitcnt vmcnt(18)")
    a("s_barrier")
    a("s_mov_b32 s34, 0")
    a.label("%s_clloop" % name)
    cissue()
    a("s_cmp_lg_u32 s34, 11")
    a("s_cbranch_scc1 %s_cl1" % name)
    a("buffer_load_dword v31, v30, s[60:63], 0 offen offset:192 sc1")
    a("s_waitcnt vmcnt(19)")
    a("s_branch %s_cl2" % name)
    a.label("%s_cl1" % name)
    a("s_waitcnt vmcnt(18)")
    a.label("%s_cl2" % name)
    a("s_barrier")
    a("s_add_u32 s34, s34, 1")
    a("s_cmp_lt_u32 s34, 14")
    a("s_cbranch_scc1 %s_clloop" % name)
    a("s_mov_b32 s34, 0")
    a.label("%s_cy" % name)
    a("v_cmp_gt_u32 vcc, 16, v31")
    a("s_add_u32 s34, s34, 1")
    a("s_cmp_gt_u32 s34, %d" % SPIN_MAX)
    a("s_cbranch_scc1 %s_cyx" % name)
    a("s_cbranch_vccz %s_cyx" % name)
    a("s_sleep 32")
    a("buffer_load_dword v31, v30, s[60:63], 0 offen offset:192 sc1")
    a("s_waitcnt vmcnt(0)")
    a("s_branch %s_cy" % name)
    a.label("%s_cyx" % name)
    a("v_lshrrev_b32 v3, 3, v2")
    a("v_and_b32 v4, 7, v2")
    a("v_lshlrev_b32 v4, 4, v4")
    a("s_mul_i32 s33, s52, 144")
    a("s_mul_i32 s34, s53, 80")
    a("s_lshl_b32 s35, s22, 7")
    a("s_add_u32 s35, s35, 0x%x" % YT)
    for n in range(3):
        a("s_add_u32 s36, s3, %d" % (4 * n))
        if n == 2: a("s_min_u32 s36, s36, 9")
        a("s_lshl_b32 s37, s36, 3")
        a("s_add_u32 s38, s37, s33")
        if n < 2: a("s_add_u32 s38, s38, s34")
        a("v_add_u32 v5, s38, v3")
        a("v_lshl_add_u32 v5, v5, 12, v4")
        a("s_lshl_b32 s36, s36, 10")
        a("s_add_u32 s36, s36, %d" % YOFF)
        a("s_mov_b32 m0, s36")
        a("s_nop 0")
        a("buffer_load_dwordx4 v5, s[12:15], s35 offen sc1 lds")
    fin_loads()
    a("s_waitcnt vmcnt(%d)" % (9 + 7))
    a("s_barrier")
    a("s_waitcnt vmcnt(7)")
    a("s_barrier")
    a("s_barrier")
    a("s_setprio 0")
    a("s_waitcnt vmcnt(0)")
    a("s_branch %s_cfin" % name)
    a.label("%s_A1" % name)
    a("s_setprio 2")
    vmA = VmTracker(a)
    PB = 132
    def aux_head():
        epi_in()
        for tt in range(4):
            a("v_mov_b32 v%d, 0" % S[tt]); a("v_mov_b32 v%d, 0" % Q[tt])
    def aux_pub():
        a("s_nop 2")
        emit_xg_reduce(a, S + Q, 72)
        a("v_lshrrev_b32 v10, 4, v2")
        for g in range(1, 4):
            a("v_cmp_eq_u32 vcc, %d, v10" % g)
            a("s_nop 1")
            a("v_cndmask_b32 v%d, v%d, v%d, vcc" % (S[0], S[0], S[g]))
            a("v_cndmask_b32 v%d, v%d, v%d, vcc" % (Q[0], Q[0], Q[g]))
        a("v_and_b32 v%d, 0x7fffffff, v%d" % (Q[0], Q[0]))
        a("buffer_store_dwordx2 v[%d:%d], v94, s[12:15], s58 offen sc1" % (S[0], Q[0]))
    chunks = [capture(aux_head) + capture(gelu_ft, 0, True), capture(gelu_ft, 1, True), capture(gelu_ft, 2, True),
              capture(gelu_ft, 3, True), capture(gelu_ft, 4, True) + capture(aux_pub)]
    KD = 172
    for k in range(9, 18):
        a("s_barrier")
        if k == 9:
            a("s_cmp_lg_u32 s3, 0")
            a("s_cbranch_scc1 %s_nosig" % name)
            a("v_mov_b32 v10, 1")
            a("s_lshl_b32 s36, s22, 2")
            a("v_mov_b32 v11, s36")
            a("s_mov_b64 exec, 1")
            a("buffer_atomic_add v10, v11, s[60:63], 0 offen sc1")
            a("s_mov_b64 exec, -1")
            a.label("%s_nosig" % name)
        g = k + 3
        dma = capture(lambda: (issueT(g), issueF(g))) if g < 18 else []
        comp = chunks[k - 9] if k - 9 < len(chunks) else []
        interleave(dma, comp)
        if k == 13: vmA.issue("pub", 1)
        if g < 18: vmA.issue("S%d" % g, 9)
        if k == 14:
            srd(a, 92, 78, 2048 * 2048 * 2)
            a("v_lshrrev_b32 v10, 4, v2")
            a("v_lshlrev_b32 v10, 12, v10")
            a("v_lshl_add_u32 v10, v3, 4, v10")
            a("s_lshl_b32 s40, s22, 7")
            a("s_lshl_b32 s36, s3, 5")
            a("s_add_u32 s40, s40, s36")
            a("s_lshl_b32 s40, s40, 12")
            a("s_lshl_b32 s36, s23, 8")
            a("s_add_u32 s40, s40, s36")
            for n in range(8):
                a("buffer_load_dwordx4 v[200:203], v10, s[92:95], s40 offen")
                if n < 7: a("s_add_u32 s40, s40, 16384")
            vmA.issue("wp", 8)
            a("s_lshl_b32 s36, s22, 2")
            a("v_mov_b32 v199, s36")
            a("buffer_load_dword v198, v199, s[60:63], 0 offen sc1"); vmA.issue("cnt", 1)
        if k + 2 < 18 and k + 2 >= 12:
            vmA.wait(["S%d" % (k + 2)])
    a("s_barrier")
    stamp(a, 3)
    a("s_load_dwordx4 s[88:91], s[0:1], 32")
    a("v_lshrrev_b32 v10, 4, v2")
    a("v_lshlrev_b32 v95, 8, v3")
    a("v_lshl_add_u32 v95, v10, 6, v95")
    a("s_lshl_b32 s33, s25, 13")
    a("s_add_u32 s52, s59, s33")
    a("s_xor_b32 s33, s33, 8192")
    a("s_add_u32 s53, s59, s33")
    a("s_add_u32 s42, s52, 4096")
    a("s_add_u32 s43, s53, 4096")
    Z2 = ZP
    a("s_waitcnt vmcnt(0)")
    GB = [128, 144, 160, 176]
    a("v_mov_b32 v4, v95")
    def gather():
        for tt in range(4):
            for q in range(4):
                a("buffer_load_dwordx4 %s, v4, s[12:15], s%d offen offset:%d sc1" % (vr(GB[tt] + 4 * q), (52, 42, 53, 43)[tt], 16 * q))
    gather()
    a("s_mov_b32 s40, 0")
    a("s_waitcnt vmcnt(0)")
    a.label("%s_chk" % name)
    a("v_subrev_u32 v11, 16, v198")
    for tt in range(4):
        for r in range(GB[tt] + 1, GB[tt] + 16, 4):
            a("v_or3_b32 v11, v11, v%d, v%d" % (r, r + 2))
    a("v_cmp_gt_i32 vcc, 0, v11")
    a("s_add_u32 s40, s40, 1")
    a("s_cmp_gt_u32 s40, %d" % SPIN_MAX)
    a("s_cbranch_scc1 %s_ok" % name)
    a("s_cbranch_vccz %s_ok" % name)
    a("s_sleep 32")
    a("buffer_load_dword v198, v199, s[60:63], 0 offen sc1")
    a("s_waitcnt vmcnt(0)")
    gather()
    a("s_waitcnt vmcnt(0)")
    a("s_branch %s_chk" % name)
    a.label("%s_ok" % name)
    stamp(a, 5)
    for tt in range(4):
        b = GB[tt]
        for st_ in (8, 4, 2):
            for q in range(0, st_, 2):
                a("v_pk_add_f32 %s, %s, %s" % (vr(b + q, 2), vr(b + q, 2), vr(b + q + st_, 2)))
    emit_xg_reduce(a, [GB[tt] + e for tt in range(4) for e in range(2)], 72)
    for tt in range(4):
        b = GB[tt]
        emit_ln_finish(a, b, b + 1, 2304, b + 2, MR + 2 * tt, b + 4)
        a("v_mul_f32 v%d, -v%d, v%d" % (MR + 2 * tt + 1, b + 2, MR + 2 * tt))
    a("v_lshrrev_b32 v10, 4, v2")
    a("v_lshrrev_b32 v11, 2, v2"); a("v_and_b32 v11, 1, v11"); a("v_lshlrev_b32 v11, 4, v11")
    a("v_lshrrev_b32 v5, 3, v2"); a("v_and_b32 v5, 1, v5"); a("v_lshl_add_u32 v11, v5, 2, v11")
    a("v_and_b32 v5, 3, v2"); a("v_add_u32 v11, v11, v5")
    a("v_mul_u32_u24 v11, 288, v11")
    a("v_lshrrev_b32 v5, 1, v10"); a("v_lshl_add_u32 v11, v5, 4, v11")
    a("v_and_b32 v5, 1, v10")
    a("v_lshl_add_u32 v6, v5, 5, v11")
    a("v_mul_u32_u24 v5, 2304, v5")
    a("v_add_u32 v9, v11, v5")
    a("s_lshl_b32 s33, s23, 5")
    a("s_lshl_b32 s36, s22, 1")
    a("s_add_u32 s33, s33, s36")
    a("s_add_u32 s33, s33, s24")
    a("s_mul_i32 s33, s33, 18432")
    if ZIMG: a("s_add_u32 s33, s33, 0x%x" % ZIMG)
    a("s_mul_i32 s36, s25, 9216")
    a("s_add_u32 s37, s33, s36")
    a("s_xor_b32 s36, s36, 9216")
    a("s_add_u32 s38, s33, s36")
    a("s_add_u32 s39, s37, 128")
    a("s_mul_i32 s36, s25, 160")
    a("s_add_u32 s37, s37, s36")
    a("s_add_u32 s38, s38, s36")
    def norm_pair(nA, ttA, nB, ttB, O):
        for q, (n, tt) in enumerate(((nA, ttA), (nB, ttB))):
            for d in range(2):
                z = Z2 + 2 * n + d; t = T + 4 * q + 2 * d
                a("v_lshlrev_b32 v%d, 16, v%d" % (t, z))
                a("v_and_b32 v%d, 0xffff0000, v%d" % (t + 1, z))
        for q, (n, tt) in enumerate(((nA, ttA), (nB, ttB))):
            for d in range(2):
                t = T + 4 * q + 2 * d
                a("v_pk_fma_f32 %s, %s, %s, %s op_sel:[0,0,1] op_sel_hi:[1,0,1]" % (vr(t, 2), vr(t, 2), vr(MR + 2 * tt, 2), vr(MR + 2 * tt, 2)))
        for q in range(2):
            for d in range(2):
                t = T + 4 * q + 2 * d
                a("v_cvt_pk_bf16_f32 v%d, v%d, v%d" % (O + 2 * q + d, t, t + 1))
        a("s_nop 1")
        a("v_permlane16_swap_b32 v%d, v%d" % (O, O + 2))
        a("v_permlane16_swap_b32 v%d, v%d" % (O + 1, O + 3))
    cnt = 0
    for pr in range(2):
        for tt in range(4):
            O = 200 + 4 * cnt; cnt += 1
            norm_pair(tidx(2 * pr, tt), tt, tidx(2 * pr + 1, tt), tt, O)
            a("s_nop 0")
            a("buffer_store_dwordx4 %s, v6, s[12:15], s%d offen offset:%d" % (vr(O), 37 if tt < 2 else 38, (tt & 1) * 2304 + 64 * pr) + " sc1")
    O = 200 + 4 * cnt
    norm_pair(16, 0, 17, 1, O)
    a("s_nop 0")
    a("buffer_store_dwordx4 %s, v9, s[12:15], s39 offen sc1" % vr(O))
    stamp(a, 6)
    a("s_setprio 3")
    srd(a, 8, 78, 2048 * 2048 * 2)
    a("v_lshrrev_b32 v3, 3, v2")
    a("s_lshl_b32 s24, s3, 5")
    a("v_add_u32 v3, s24, v3")
    a("v_and_b32 v4, 7, v2")
    a("v_lshrrev_b32 v6, 4, v2")
    a("v_xor_b32 v6, v6, v4")
    a("v_lshlrev_b32 v6, 4, v6")
    a("v_lshl_add_u32 v10, v3, 12, v6")
    a("v_xor_b32 v11, 64, v10")
    a("v_add_u32 v11, %d, v11" % (32768 - 1024))
    a("v_add_u32 v12, %d, v10" % (2 * (32768 - 1024)))
    a("v_add_u32 v13, %d, v11" % (2 * (32768 - 1024)))
    a("v_lshlrev_b32 v14, 4, v2")
    a("s_lshl_b32 s26, s22, 19")
    a("s_mul_i32 s27, s23, %d" % (32 * 18432))
    a("s_lshl_b32 s24, s3, 12")
    a("s_add_u32 s27, s27, s24")
    if ZIMG: a("s_add_u32 s27, s27, 0x%x" % ZIMG)
    a("s_lshl_b32 s25, s3, 9")
    a("s_sub_u32 s32, s25, s24")
    a("s_add_u32 s32, s32, 16384")
    a("s_add_u32 s24, s24, %d" % RB)
    a("s_waitcnt vmcnt(0) lgkmcnt(0)")
    a("v_mov_b32 v26, %d" % LC)
    a("v_mov_b32 v27, 1")
    a("s_mov_b64 exec, 1")
    a("ds_add_rtn_u32 v28, v26, v27")
    a("s_waitcnt lgkmcnt(0)")
    a("v_readfirstlane_b32 s36, v28")
    a("s_cmp_lg_u32 s36, 3")
    a("s_cbranch_scc1 %s_nozs" % name)
    a("v_mov_b32 v28, 0")
    a("buffer_store_dword v27, v28, s[12:15], s97 offen sc1")
    a.label("%s_nozs" % name)
    a("s_mov_b64 exec, -1")
    stamp(a, 7)
    srd(a, 16, 88, 576 * 2048 * 2)
    srd(a, 84, 90, 576 * 2)
    for g in range(4):
        a("s_add_u32 s35, s24, %d" % (g * SLOT))
        a("s_mov_b32 m0, s35")
        a("s_add_u32 s36, s26, %d" % (128 * g))
        for n in range(4):
            a("buffer_load_dwordx4 v%d, s[8:11], s36 offen offset:%d lds" % (10 + n, n * 1024))
    a("s_mov_b32 s34, 0")
    a("s_cmp_lg_u32 s3, 0")
    a("s_cbranch_scc1 %s_pl" % name)
    a("v_and_b32 v28, 15, v2")
    a("v_lshlrev_b32 v30, 2, v28")
    a("v_lshlrev_b32 v28, 12, v28")
    a("s_lshl_b32 s52, s23, 8")
    a("s_add_u32 s52, s52, 0x%x" % ZFLG)
    a.label("%s_pz0" % name)
    a("buffer_load_dword v31, v30, s[60:63], 0 offen sc1")
    a("s_add_u32 s34, s34, 1")
    a("s_waitcnt vmcnt(0)")
    a("v_cmp_gt_u32 vcc, 16, v31")
    a("s_cmp_gt_u32 s34, %d" % SPIN_MAX)
    a("s_cbranch_scc1 %s_pz" % name)
    a("s_cbranch_vccz %s_pz" % name)
    a("s_sleep 32")
    a("s_branch %s_pz0" % name)
    a.label("%s_pz" % name)
    a("buffer_load_dword v29, v28, s[12:15], s52 offen sc1")
    a("s_add_u32 s34, s34, 1")
    a("s_waitcnt vmcnt(0)")
    a("v_cmp_ne_u32 vcc, 1, v29")
    a("s_cmp_gt_u32 s34, %d" % SPIN_MAX)
    a("s_cbranch_scc1 %s_pzx" % name)
    a("s_cbranch_vccz %s_pzx" % name)
    a("s_sleep 8")
    a("s_branch %s_pz" % name)
    a.label("%s_pzx" % name)
    a("v_mov_b32 v27, 1")
    a("ds_write_b32 v26, v27 offset:4")
    a("s_branch %s_pgo" % name)
    a.label("%s_pl" % name)
    a("ds_read_b32 v27, v26 offset:4")
    a("s_add_u32 s34, s34, 1")
    a("s_waitcnt lgkmcnt(0)")
    a("v_readfirstlane_b32 s36, v27")
    a("s_cmp_gt_u32 s34, %d" % (SPIN_MAX * 20))
    a("s_cbranch_scc1 %s_pgo" % name)
    a("s_cmp_lg_u32 s36, 0")
    a("s_cbranch_scc1 %s_pgo" % name)
    a("s_sleep 2")
    a("s_branch %s_pl" % name)
    a.label("%s_pgo" % name)
    stamp(a, 8)
    for g in range(4):
        a("s_add_u32 s35, s24, %d" % (g * SLOT + TREG))
        a("s_mov_b32 m0, s35")
        a("s_add_u32 s36, s27, %d" % (18432 * g))
        a("s_add_u32 s37, s36, s32")
        for n in range(4):
            a("buffer_load_dwordx4 v14, s[12:15], s36 offen offset:%d sc1 lds" % (n * 1024))
        a("s_add_u32 s35, s35, s32")
        a("s_mov_b32 m0, s35")
        a("s_mov_b64 exec, 0xffffffff")
        a("buffer_load_dwordx4 v14, s[12:15], s37 offen sc1 lds")
        a("s_mov_b64 exec, -1")
    a("s_add_u32 s26, s26, 512")
    a("s_add_u32 s27, s27, %d" % (4 * 18432))
    a("s_mov_b32 s33, 0")
    a("s_lshl_b32 s43, s2, 2")
    a("s_add_u32 s43, s43, s3")
    a("s_and_b32 s53, s43, 1")
    a("s_sub_u32 s36, s43, 448")
    a("s_lshr_b32 s37, s43, 1")
    a("s_cmp_ge_u32 s43, 896")
    a("s_cselect_b32 s43, s36, s37")
    a("s_cselect_b32 s53, 2, s53")
    a("s_waitcnt vmcnt(15)")
    a("s_barrier")
    a("s_waitcnt vmcnt(10)")
    a("s_barrier")
    a("s_waitcnt vmcnt(5)")
    a("s_barrier")
    a("s_mov_b32 s34, 4")
    def issue2():
        a("s_add_u32 s35, s33, s24")
        a("s_mov_b32 m0, s35")
        a("s_add_u32 s36, s35, %d" % TREG)
        for n in range(4):
            a("buffer_load_dwordx4 v%d, s[8:11], s26 offen offset:%d lds" % (10 + n, n * 1024))
        a("s_mov_b32 m0, s36")
        a("s_add_u32 s37, s27, s32")
        for n in range(4):
            a("buffer_load_dwordx4 v14, s[12:15], s27 offen offset:%d sc1 lds" % (n * 1024))
        a("s_add_u32 s36, s36, s32")
        a("s_mov_b32 m0, s36")
        a("s_mov_b64 exec, 0xffffffff")
        a("buffer_load_dwordx4 v14, s[12:15], s37 offen sc1 lds")
        a("s_mov_b64 exec, -1")
        a("s_add_u32 s26, s26, 128")
        a("s_add_u32 s27, s27, 18432")
        a("s_add_u32 s33, s33, %d" % SLOT)
        a("s_cmp_eq_u32 s33, %d" % (R * SLOT))
        a("s_cselect_b32 s33, 0, s33")
    a.label("%s_lloop" % name)
    issue2()
    a("s_cmp_eq_u32 s34, 18")
    a("s_cbranch_scc1 %s_hk1" % name)
    a("s_cmp_eq_u32 s34, 21")
    a("s_cbranch_scc1 %s_hk2" % name)
    a("s_waitcnt vmcnt(9)")
    a.label("%s_lcont" % name)
    a("s_barrier")
    a("s_add_u32 s34, s34, 1")
    a("s_cmp_lt_u32 s34, 32")
    a("s_cbranch_scc1 %s_lloop" % name)
    a("s_branch %s_ldone" % name)
    a.label("%s_hk1" % name)
    a("v_and_b32 v28, 15, v2")
    a("v_lshlrev_b32 v28, 2, v28")
    a("buffer_load_dword v29, v28, s[60:63], 0 offen offset:128 sc1")
    a("s_waitcnt vmcnt(10)")
    a("s_branch %s_lcont" % name)
    a.label("%s_hk2" % name)
    a("s_mov_b32 s52, 0")
    a.label("%s_hk2l" % name)
    a("v_cmp_gt_u32 vcc, 16, v29")
    a("s_add_u32 s52, s52, 1")
    a("s_cmp_gt_u32 s52, %d" % SPIN_MAX)
    a("s_cbranch_scc1 %s_hk2g" % name)
    a("s_cbranch_vccz %s_hk2g" % name)
    a("s_sleep 16")
    a("buffer_load_dword v29, v28, s[60:63], 0 offen offset:128 sc1")
    a("s_waitcnt vmcnt(0)")
    a("s_branch %s_hk2l" % name)
    a.label("%s_hk2g" % name)
    nconv = emit_conv_loads(a, " sc1")
    a("s_waitcnt vmcnt(%d)" % (9 + nconv))
    a("s_branch %s_lcont" % name)
    a.label("%s_ldone" % name)
    a("s_waitcnt vmcnt(0)")
    a("s_barrier")
    a("s_mov_b32 s26, s53")
    a("s_and_b32 s27, s3, 1")
    a("s_mul_i32 s27, s27, %d" % CJ_SIZE)
    a("s_lshr_b32 s36, s3, 1")
    a("s_mul_i32 s36, s36, %d" % SLOT)
    a("s_add_u32 s27, s27, s36")
    a("s_add_u32 s27, s27, %d" % RB)
    def mid():
        a("s_barrier")
        a("s_setprio 0")
    sv = set(DBG); DBG.discard("stamp")
    lb_ = len(a.lines)
    emit_conv_job(a, name, mid)
    for n_ in range(lb_, len(a.lines)):
        if "buffer_store_dwordx2" in a.lines[n_]: a.lines[n_] += " sc1"
    DBG.update(sv)
    stamp(a, 9)
    c_common()
    cTa = [4, 4]; cTb = [6, 6]; cF_ = 8; cFh = 9
    kTa = 88; kTb = 90; kF = 92; kFh = 93
    a("v_and_b32 v3, 15, v2")
    a("v_lshrrev_b32 v10, 4, v2")
    a("s_and_b32 s26, s3, 1")
    a("s_lshl_b32 s26, s26, 2")
    a("v_add_u32 v10, s26, v10")
    a("v_lshrrev_b32 v11, 1, v3")
    a("v_xor_b32 v10, v10, v11")
    a("v_lshlrev_b32 v10, 4, v10")
    a("v_lshl_add_u32 v10, v3, 7, v10")
    a("s_lshr_b32 s26, s3, 1")
    a("s_lshl_b32 s26, s26, 13")
    a("v_add_u32 v10, s26, v10")
    a("s_lshl_b32 s26, s53, 12")
    a("v_add_u32 v%d, s26, v10" % kTa)
    a("s_xor_b32 s26, s26, 4096")
    a("v_add_u32 v%d, s26, v10" % kTb)
    a("v_lshrrev_b32 v10, 2, v2")
    a("v_mul_u32_u24 v10, %d, v10" % CFS)
    a("v_and_b32 v11, 3, v2")
    a("v_lshl_add_u32 v10, v11, 3, v10")
    a("s_mul_i32 s26, s3, %d" % (32 * CFS))
    a("s_add_u32 s26, s26, %d" % CTREG)
    a("v_add_u32 v%d, s26, v10" % kF)
    a("v_add_u32 v%d, 128, v%d" % (kFh, kF))
    a("v_mov_b32 v26, %d" % LC)
    a("v_mov_b32 v27, 1")
    a("s_waitcnt vmcnt(0)")
    a("s_mov_b64 exec, 1")
    a("ds_add_rtn_u32 v28, v26, v27 offset:20")
    a("s_waitcnt lgkmcnt(0)")
    a("v_readfirstlane_b32 s36, v28")
    a("s_cmp_lg_u32 s36, 3")
    a("s_cbranch_scc1 %s_nocs" % name)
    a("s_and_b32 s36, s2, 15")
    a("s_lshl_b32 s36, s36, 2")
    a("s_add_u32 s36, s36, 192")
    a("v_mov_b32 v28, s36")
    a("buffer_atomic_add v27, v28, s[60:63], 0 offen sc1")
    a.label("%s_nocs" % name)
    a("s_mov_b64 exec, -1")
    fin_loads()
    core3 = G.Core(a, ACC, FB[0], FB[1], CFS, CTREG, cTa, cTb, cF_, cFh)
    pairs = ((cTa[0], kTa), (cF_, kF), (cTb[0], kTb), (cFh, kFh))
    a("s_mov_b32 s27, %d" % C0)
    for d, s_ in pairs: a("v_add_u32 v%d, s27, v%d" % (d, s_))
    for r in range(ACC, ACC + 72): a("v_mov_b32 v%d, 0" % r)
    a("s_mov_b32 s33, 0")
    a("s_barrier")
    stamp(a, 10)
    core3.prime(0, core3.reads(0, 0))
    def citer(buf):
        core3.trk.drain()
        a("s_barrier")
        a("s_add_u32 s27, s27, %d" % CSL)
        a("s_cmp_eq_u32 s27, %d" % CW)
        a("s_cselect_b32 s27, %d, s27" % RB)
        pre = ["v_add_u32 v%d, s27, v%d" % (d, s_) for d, s_ in pairs]
        core3.phase(buf, core3.reads(1 - buf, 0), pre=pre)
    a.label("%s_ccloop" % name)
    citer(0); citer(1)
    a("s_add_u32 s33, s33, 1")
    a("s_cmp_lt_u32 s33, 9")
    a("s_cbranch_scc1 %s_ccloop" % name)
    core3.trk.drain()
    stamp(a, 11)
    a("s_mul_i32 s33, s3, %d" % (18 * 1024))
    a("s_add_u32 s33, s33, %d" % C0)
    a("v_lshlrev_b32 v10, 4, v2")
    a("v_add_u32 v11, s33, v10")
    a("s_nop 4")
    for n, (ft, tt) in enumerate(TILES):
        a("ds_write_b128 v11, %s offset:%d" % (vr(core3.accr(ft, tt)), 1024 * tidx(ft, tt)))
        if n in (7, 13): a("s_waitcnt lgkmcnt(4)")
    a("s_waitcnt lgkmcnt(0) vmcnt(0)")
    a.label("%s_cfin" % name)
    a("s_barrier")
    stamp(a, 12)
    a("v_lshlrev_b32 v10, 4, v2")
    a("v_lshrrev_b32 v11, 2, v2")
    a("v_lshlrev_b32 v11, 7, v11")
    a("v_and_b32 v12, 3, v2")
    a("v_lshl_add_u32 v11, v12, 3, v11")
    a("s_mov_b32 s33, 0xbfb8aa3b")
    PT = 16; YR = 64
    for s_ in range(3):
        b = 64 + 4 * s_
        if s_ == 2:
            a("s_cmp_ge_u32 s54, 2")
            a("s_cbranch_scc1 %s_rd" % name)
        a("v_add_u32 v4, s%d, v10" % (b + 2))
        a("v_add_u32 v5, s%d, v11" % (b + 1))
        for q in range(4):
            a("ds_read_b128 %s, v4 offset:%d" % (vr(PT + 16 * s_ + 4 * q), 18432 * q))
        a("ds_read_b64_tr_b16 %s, v5" % vr(YR + 2 * s_, 2))
    a.label("%s_rd" % name)
    T = 104
    for s_ in range(3):
        b = 64 + 4 * s_
        if s_ == 0: a("s_waitcnt lgkmcnt(5)")
        if s_ == 1: a("s_waitcnt lgkmcnt(0)")
        if s_ == 2:
            a("s_cmp_ge_u32 s54, 2")
            a("s_cbranch_scc1 %s_done" % name)
        o = PT + 16 * s_; X = XR + 2 * s_; Y = YR + 2 * s_; S_ = ST + 2 * s_
        for h in (0, 2):
            a("v_pk_add_f32 %s, %s, %s" % (vr(o + h, 2), vr(o + h, 2), vr(o + 4 + h, 2)))
            a("v_pk_add_f32 %s, %s, %s" % (vr(o + 8 + h, 2), vr(o + 8 + h, 2), vr(o + 12 + h, 2)))
        for h in (0, 2):
            a("v_pk_add_f32 %s, %s, %s" % (vr(o + h, 2), vr(o + h, 2), vr(o + 8 + h, 2)))
        rnd_pair(a, T + 20, o, o + 1); rnd_pair(a, T + 21, o + 2, o + 3)
        for r in range(4): a("v_mul_f32 v%d, s33, v%d" % (T + r, o + r))
        for r in range(4): a("v_exp_f32 v%d, v%d" % (T + r, T + r))
        a("v_lshlrev_b32 v%d, 16, v%d" % (T + 4, X)); a("v_and_b32 v%d, 0xffff0000, v%d" % (T + 5, X))
        a("v_lshlrev_b32 v%d, 16, v%d" % (T + 6, X + 1)); a("v_and_b32 v%d, 0xffff0000, v%d" % (T + 7, X + 1))
        for r in range(4): a("v_add_f32 v%d, 1.0, v%d" % (T + r, T + r))
        for r in range(4): a("v_rcp_f32 v%d, v%d" % (T + r, T + r))
        for r in range(4): a("v_sub_f32 v%d, v%d, v%d" % (T + 12 + r, T + 4 + r, S_))
        a("v_lshlrev_b32 v%d, 16, v%d" % (T + 8, Y)); a("v_and_b32 v%d, 0xffff0000, v%d" % (T + 9, Y))
        a("v_lshlrev_b32 v%d, 16, v%d" % (T + 10, Y + 1)); a("v_and_b32 v%d, 0xffff0000, v%d" % (T + 11, Y + 1))
        for r in range(4): a("v_mul_f32 v%d, v%d, v%d" % (o + r, o + r, T + r))
        rnd_pair(a, T + 20, T + 12, T + 13); rnd_pair(a, T + 21, T + 14, T + 15)
        rnd_pair(a, T + 22, o, o + 1); rnd_pair(a, T + 23, o + 2, o + 3)
        for r in range(4): a("v_mul_f32 v%d, v%d, v%d" % (T + 12 + r, T + 12 + r, S_ + 1))
        rnd_pair(a, T + 20, T + 12, T + 13); rnd_pair(a, T + 21, T + 14, T + 15)
        for r in range(4): a("v_mul_f32 v%d, v%d, v%d" % (T + 12 + r, T + 12 + r, T + 8 + r))
        rnd_pair(a, T + 20, T + 12, T + 13); rnd_pair(a, T + 21, T + 14, T + 15)
        for r in range(4): a("v_mul_f32 v%d, v%d, v%d" % (T + 12 + r, T + 12 + r, o + r))
        rnd_pair(a, T + 20, T + 12, T + 13); rnd_pair(a, T + 21, T + 14, T + 15)
        for r in range(4): a("v_add_f32 v%d, v%d, v%d" % (T + 12 + r, T + 12 + r, T + 4 + r))
        a("v_cvt_pk_bf16_f32 v%d, v%d, v%d" % (X, T + 12, T + 13))
        a("v_cvt_pk_bf16_f32 v%d, v%d, v%d" % (X + 1, T + 14, T + 15))
        a("buffer_store_dwordx2 %s, v13, s[28:31], s%d offen" % (vr(X, 2), b))
    a.label("%s_done" % name)
    stamp(a, 13)
    G.stamp_rt(a, 1)
    a.label("%s_end" % name)
    a("s_endpgm")
    return a.text(), kernel_desc(name, 256, 256), (name, 256, 512, YOFF + 10240)

def gen_kf8(name="k1_kernel", R=4):
    a = Asm()
    RB = 4096; SLOT = 34816; TREG = 16384; FS = 288; RST = 0
    LDSB = RB + R * SLOT
    LC = 2048
    ZFLG = 0x2D00000; PFL = 128
    C0 = 77824; CW = 151552; CSL = 36864; YOFF = 151552; CTREG = 16384; CFS = 160
    from gen3 import emit_conv_loads, emit_conv_job, CJ_SIZE
    def capture(f, *args):
        lb = len(a.lines); f(*args); out = a.lines[lb:]; del a.lines[lb:]; return out

    def c_common():
        a("s_load_dwordx2 s[4:5], s[0:1], 0")
        a("s_load_dwordx2 s[16:17], s[0:1], 88")
        a("s_and_b32 s20, s2, 7")
        a("s_lshr_b32 s21, s2, 3")
        a("s_and_b32 s22, s20, 3")
        a("s_lshl_b32 s22, s22, 3")
        a("s_and_b32 s23, s21, 7")
        a("s_add_u32 s22, s22, s23")
        a("s_lshr_b32 s23, s20, 2")
        a("s_lshl_b32 s23, s23, 2")
        a("s_lshr_b32 s24, s21, 3")
        a("s_add_u32 s23, s23, s24")
        a("s_lshr_b32 s52, s23, 1")
        a("s_and_b32 s53, s23, 1")
        a("s_lshl_b32 s54, s98, 2")
        a("s_add_u32 s54, s54, s3")
        a("s_waitcnt lgkmcnt(0)")
        srd(a, 8, 4, 2048 * 576 * 2)
        srd(a, 28, 16, 2048 * 576 * 2)
    XR = 200; ST = 208
    def fin_loads():
        a("v_and_b32 v3, 15, v2")
        a("v_lshrrev_b32 v10, 4, v2")
        a("v_mul_u32_u24 v13, 1152, v3")
        a("v_lshl_add_u32 v13, v10, 3, v13")
        a("v_lshlrev_b32 v12, 3, v3")
        for s_ in range(3):
            if s_ == 2:
                a("s_cmp_ge_u32 s54, 2")
                a("s_cbranch_scc1 %s_fl%d" % (name, fin_loads.cnt))
            b = 64 + 4 * s_
            if s_ < 2:
                a("s_add_u32 s36, s54, %d" % (8 * s_))
                a("s_lshr_b32 s37, s36, 2")
                a("s_and_b32 s38, s36, 3")
                a("s_mul_i32 s39, s53, 160")
                a("s_lshl_b32 s40, s37, 5")
                a("s_add_u32 s39, s39, s40")
            else:
                a("s_add_u32 s36, s54, 16")
                a("s_mov_b32 s37, 4")
                a("s_mov_b32 s38, s54")
                a("s_mov_b32 s39, 128")
            a("s_lshl_b32 s40, s53, 1")
            a("s_add_u32 s38, s38, s40")
            a("s_and_b32 s38, s38, 3")
            a("s_lshl_b32 s40, s22, 2")
            a("s_add_u32 s40, s40, s38")
            a("s_lshl_b32 s40, s40, 4")
            a("s_mul_i32 s%d, s40, 1152" % b)
            a("s_add_u32 s%d, s%d, s39" % (b, b))
            a("s_mul_i32 s39, s52, 288")
            a("s_add_u32 s%d, s%d, s39" % (b, b))
            a("s_lshl_b32 s%d, s37, 11" % (b + 1))
            a("s_lshl_b32 s39, s38, 5")
            a("s_add_u32 s%d, s%d, s39" % (b + 1, b + 1))
            a("s_add_u32 s%d, s%d, %d" % (b + 1, b + 1, YOFF))
            a("s_lshl_b32 s%d, s36, 10" % (b + 2))
            a("s_add_u32 s%d, s%d, %d" % (b + 2, b + 2, C0))
            a("s_lshl_b32 s40, s40, 3")
            a("s_add_u32 s40, s40, 0x%x" % STATS1)
            a("buffer_load_dwordx2 %s, v13, s[8:11], s%d offen" % (vr(XR + 2 * s_, 2), b))
            a("buffer_load_dwordx2 %s, v12, s[12:15], s40 offen sc1" % vr(ST + 2 * s_, 2))
        a.label("%s_fl%d" % (name, fin_loads.cnt))
        fin_loads.cnt += 1
    fin_loads.cnt = 0
    kernel_begin(a, name)
    a("s_load_dwordx2 s[80:81], s[0:1], 0")
    a("s_load_dwordx2 s[4:5], s[0:1], 56")
    a("s_load_dwordx2 s[6:7], s[0:1], 104")
    a("s_load_dwordx2 s[18:19], s[0:1], 96")
    a("s_cmp_ge_u32 s2, 256")
    a("s_cbranch_scc1 %s_end" % name)
    a("v_lshrrev_b32 v1, 6, v0")
    a("v_and_b32 v2, 63, v0")
    a("v_readfirstlane_b32 s3, v1")
    G2.tile_ij(a)
    a("s_lshr_b32 s98, s3, 2")
    a("s_mov_b32 s54x, 0".replace("s54x", "s99"))
    a("s_and_b32 s3, s3, 3")
    a("s_lshr_b32 s24, s3, 1")
    a("s_and_b32 s25, s3, 1")
    a("v_and_b32 v3, 15, v2")
    VT = 204; VF = 208
    def loader_setup():
        a("v_lshrrev_b32 v5, 3, v2")
        a("v_and_b32 v4, 7, v2")
        a("s_lshl_b32 s36, s3, 5")
        a("v_add_u32 v5, s36, v5")
        a("v_lshrrev_b32 v7, 4, v2")
        a("v_xor_b32 v7, v7, v4")
        a("v_mul_u32_u24 v6, 1152, v5")
        a("v_lshl_add_u32 v%d, v7, 4, v6" % VT)
        a("v_xor_b32 v%d, 64, v%d" % (VT + 1, VT))
        a("v_add_u32 v%d, %d, v%d" % (VT + 1, 9216 - 1024, VT + 1))
        a("v_add_u32 v%d, %d, v%d" % (VT + 2, 2 * (9216 - 1024), VT))
        a("v_add_u32 v%d, %d, v%d" % (VT + 3, 2 * (9216 - 1024), VT + 1))
        a("s_lshl_b32 s84, s3, 12")
        a("s_add_u32 s84, s84, %d" % RB)
        a("s_lshl_b32 s85, s3, 9")
        a("s_add_u32 s85, s85, %d" % (RB + TREG + 16384))
    def loader_setup2():
        for n in range(5):
            if n < 4:
                a("s_lshl_b32 s36, s3, 8")
                a("s_add_u32 s36, s36, %d" % (64 * n))
            else:
                a("s_lshl_b32 s36, s3, 5")
                a("s_add_u32 s36, s36, 1024")
            a("v_add_u32 v6, s36, v2")
            a("v_mul_u32_u24 v7, 3641, v6")
            a("v_lshrrev_b32 v7, 16, v7")
            a("v_mul_u32_u24 v8, 18, v7")
            a("v_sub_u32 v8, v6, v8")
            a("v_and_b32 v9, 35, v7")
            a("v_bfe_u32 v6, v7, 2, 2")
            a("v_lshl_add_u32 v9, v6, 3, v9")
            a("v_bfe_u32 v6, v7, 4, 1")
            a("v_lshl_add_u32 v9, v6, 2, v9")
            a("v_mul_u32_u24 v9, 9216, v9")
            a("v_lshl_add_u32 v%d, v8, 4, v9" % (VF + n))
            if 0 < n < 4: a("v_subrev_u32 v%d, %d, v%d" % (VF + n, 1024 * n, VF + n))
    def issueT(g):
        st = g % 9
        a("s_add_u32 s86, s84, %d" % ((g % R) * SLOT))
        a("s_mov_b32 m0, s86")
        a("s_add_u32 s87, s82, %d" % (128 * st))
        for n in range(4):
            a("buffer_load_dwordx4 v%d, s[28:31], s87 offen offset:%d lds" % (VT + n, 1024 * n))
    def issueF(g):
        st = g % 9
        a("s_add_u32 s86, s84, %d" % ((g % R) * SLOT + TREG))
        a("s_mov_b32 m0, s86")
        a("s_add_u32 s87, s83, %d" % (64 * 9216 * st + (4608 if g < 9 else 0)))
        for n in range(4):
            a("buffer_load_dwordx4 v%d, s[8:11], s87 offen offset:%d lds" % (VF + n, 1024 * n))
        a("s_add_u32 s86, s85, %d" % ((g % R) * SLOT))
        a("s_mov_b32 m0, s86")
        a("s_mov_b64 exec, 0xffffffff")
        a("buffer_load_dwordx4 v%d, s[8:11], s87 offen lds" % (VF + 4))
        a("s_mov_b64 exec, -1")
    def srds_main():
        srd(a, 28, 80, 2048 * 576 * 2)
        srd(a, 8, 4, 576 * 4608 * 2)
        srd(a, 12, 6, WS_BYTES)
        srd(a, 60, 18, 256)
        a("s_mul_i32 s82, s22, %d" % (128 * 1152))
        a("s_mul_i32 s83, s23, 288")
    ACC = 128; FB = [16, 52]; CS = 216; ONE = 236
    vTa = [4, 5]; vTb = [6, 7]; vF = 8; vFh = 9
    bTa = [88, 89]; bTb = [90, 91]; bF = 92; bFh = 93
    def mma_setup():
        a("v_lshrrev_b32 v10, 4, v2")
        a("v_lshrrev_b32 v11, 1, v3")
        a("v_xor_b32 v10, v10, v11")
        a("v_lshlrev_b32 v10, 4, v10")
        a("v_lshl_add_u32 v10, v3, 7, v10")
        a("s_lshl_b32 s26, s24, 13")
        a("s_add_u32 s26, s26, %d" % RB)
        a("v_add_u32 v10, s26, v10")
        a("s_lshl_b32 s26, s25, 12")
        a("v_add_u32 v%d, s26, v10" % bTa[0])
        a("s_xor_b32 s26, s26, 4096")
        a("v_add_u32 v%d, s26, v10" % bTb[0])
        a("v_xor_b32 v%d, 64, v%d" % (bTa[1], bTa[0]))
        a("v_xor_b32 v%d, 64, v%d" % (bTb[1], bTb[0]))
        a("v_lshrrev_b32 v10, 2, v2")
        a("v_mul_u32_u24 v10, %d, v10" % FS)
        a("v_and_b32 v11, 3, v2")
        a("v_lshl_add_u32 v10, v11, 3, v10")
        a("v_add_u32 v10, %d, v10" % (RB + TREG))
        a("s_mul_i32 s26, s25, 160")
        a("v_add_u32 v%d, s26, v10" % bF)
        a("v_add_u32 v%d, 128, v10" % bFh)
        for r in range(ACC, ACC + 72): a("v_mov_b32 v%d, 0" % r)
        for r in range(CS, CS + 20): a("v_mov_b32 v%d, 0" % r)
        for r in range(ONE, ONE + 4): a("v_mov_b32 v%d, 0x3f803f80" % r)
    def mma_addr(slot):
        a("s_mov_b32 s27, %d" % (slot * SLOT))
        for d, s_ in ((vTa[0], bTa[0]), (vTb[0], bTb[0]), (vTa[1], bTa[1]), (vTb[1], bTb[1]), (vF, bF), (vFh, bFh)):
            a("v_add_u32 v%d, s27, v%d" % (d, s_))
    core = G.Core(a, ACC, FB[0], FB[1], FS, TREG, vTa, vTb, vF, vFh)
    trk = core.trk
    a("s_cmp_eq_u32 s98, 0")
    a("s_cbranch_scc1 %s_A0" % name)
    a("s_setprio 3")
    loader_setup()
    a("s_waitcnt lgkmcnt(0)")
    srds_main()
    vm = VmTracker(a)
    def issue(g, vmx):
        issueT(g); issueF(g); vmx.issue("S%d" % g, 9)
    issueT(0)
    loader_setup2()
    issueF(0); vm.issue("S0", 9)
    issue(1, vm); issue(2, vm); issue(3, vm)
    a("s_add_u32 s3, s3, 4"); stamp_setup(a, 1); stamp(a, 0); a("s_sub_u32 s3, s3, 4")
    mma_setup()
    RA = 96; XB = 112
    for r in range(RA, RA + 16): a("v_mov_b32 v%d, 0" % r)
    a("v_lshrrev_b32 v10, 4, v2")
    a("v_lshrrev_b32 v11, 1, v3")
    a("v_xor_b32 v10, v10, v11")
    a("v_lshlrev_b32 v10, 4, v10")
    a("v_lshl_add_u32 v10, v3, 7, v10")
    a("v_add_u32 v12, s84, v10")
    a("v_xor_b32 v13, 64, v12")
    def rs_rd(g):
        a("v_add_u32 v10, %d, v12" % ((g % R) * SLOT))
        a("v_add_u32 v11, %d, v13" % ((g % R) * SLOT))
        for h in range(2):
            for n in range(2):
                a("ds_read_b128 %s, v%d offset:%d" % (vr(XB + 8 * h + 4 * n), 10 + h, 2048 * n))
    def rs_do():
        for h in range(2):
            for n in range(2):
                x = XB + 8 * h + 4 * n
                a("v_mfma_f32_16x16x32_bf16 %s, %s, %s, %s" % (vr(RA + 4 * n), vr(ONE), vr(x), vr(RA + 4 * n)))
                a("v_mfma_f32_16x16x32_bf16 %s, %s, %s, %s" % (vr(RA + 8 + 4 * n), vr(x), vr(x), vr(RA + 8 + 4 * n)))
    def interleave(dma, comp, vmx=None):
        groups = []; cur = []
        for l in dma:
            cur.append(l)
            if "buffer_load" in l and not any("exec, 0xffffffff" in x for x in cur[-2:]):
                groups.append(cur); cur = []
            elif "exec, -1" in l:
                groups.append(cur); cur = []
        if cur: groups.append(cur)
        ns = max(1, len(groups))
        per = (len(comp) + ns - 1) // ns
        for g in groups:
            a.lines.extend(g)
            a.lines.extend(comp[:per]); comp = comp[per:]
        a.lines.extend(comp)
    vm.wait(["S0"])
    a("s_barrier")
    stamp(a, 1)
    rs_rd(0)
    vm.wait(["S1"])
    a("s_barrier")
    for k in range(9):
        a("s_waitcnt lgkmcnt(0)")
        dma = capture(lambda: (issueT(k + 3), issueF(k + 3))) if k >= 1 else []
        interleave(dma, capture(rs_do))
        if k >= 1: vm.issue("S%d" % (k + 3), 9)
        if k < 8:
            rs_rd(k + 1)
        else:
            a("s_nop 7")
            a("v_lshrrev_b32 v10, 4, v2")
            a("v_lshrrev_b32 v11, 2, v3")
            a("v_and_b32 v12, 3, v3")
            for n in range(2):
                G_ = RA + 8 + 4 * n
                for r in range(1, 4):
                    a("v_cmp_eq_u32 vcc, %d, v12" % r)
                    a("s_nop 1")
                    a("v_cndmask_b32 v%d, v%d, v%d, vcc" % (G_, G_, G_ + r))
            ML = 112
            for n in range(2):
                emit_ln_finish(a, RA + 4 * n, RA + 8 + 4 * n, 576, ML + 2 * n, ML + 2 * n + 1, 120)
                a("v_mov_b32 v%d, v%d" % (117 + 2 * n, ML + 2 * n + 1))
                a("v_sub_f32 v%d, 0, v%d" % (116 + 2 * n, ML + 2 * n))
            a("s_lshl_b32 s35, s3, 8")
            a("v_lshlrev_b32 v13, 3, v3")
            a("v_add_u32 v12, s35, v13")
            a("v_cmp_eq_u32 vcc, v10, v11")
            a("s_and_saveexec_b64 s[36:37], vcc")
            for n in range(2):
                a("ds_write_b64 v12, %s offset:%d" % (vr(116 + 2 * n, 2), RST + 128 * n))
            a("s_mov_b64 exec, s[36:37]")
            a("s_cmp_lg_u32 s23, 0")
            a("s_cbranch_scc1 %s_nost1" % name)
            a("s_lshl_b32 s35, s22, 7")
            a("s_lshl_b32 s36, s3, 5")
            a("s_add_u32 s35, s35, s36")
            a("s_lshl_b32 s35, s35, 3")
            a("s_add_u32 s35, s35, 0x%x" % STATS1)
            a("v_mov_b32 v11, 0x7ffffff0")
            a("v_cndmask_b32 v13, v11, v13, vcc")
            for n in range(2):
                a("buffer_store_dwordx2 %s, v13, s[12:15], s35 offen offset:%d sc1" % (vr(ML + 2 * n, 2), 128 * n))
            a.label("%s_nost1" % name)
            mma_addr(9 % R)
            a("s_mov_b32 s33, 0")
            a("s_setprio 0")
        vm.wait(["S%d" % (k + 2)], "lgkmcnt(0)" if k == 8 else "")
        if k < 8: a("s_barrier")
    a("s_branch %s_mma" % name)
    a.label("%s_A0" % name)
    emit_code_prefetch(a, name)
    a("s_load_dwordx4 s[64:67], s[0:1], 8")
    a("s_load_dwordx2 s[76:77], s[0:1], 24")
    a("s_load_dwordx2 s[78:79], s[0:1], 64")
    mma_setup()
    loader_setup(); loader_setup2()
    a("s_waitcnt lgkmcnt(0)")
    srds_main()
    srd(a, 68, 66, 2048 * 576 * 2)
    a("s_mov_b32 s88, s64"); a("s_mov_b32 s89, s65")
    srd(a, 64, 88, 2048 * 576 * 2)
    srd(a, 72, 76, 576 * 8)
    stamp_setup(a, 1); stamp(a, 0)
    def gran_addr():
        a("v_lshrrev_b32 v10, 4, v2")
        a("s_lshl_b32 s36, s25, 1")
        a("v_add_u32 v11, s36, v10")
        a("v_and_b32 v11, 3, v11")
        a("v_lshl_add_u32 v11, v11, 4, v3")
        a("v_lshlrev_b32 v94, 8, v11")
        a("s_lshl_b32 s59, s22, 7")
        a("s_lshl_b32 s36, s24, 6")
        a("s_add_u32 s59, s59, s36")
        a("s_lshl_b32 s59, s59, 8")
        a("s_add_u32 s59, s59, 0x%x" % STATS2)
        a("s_lshl_b32 s36, s23, 1")
        a("s_add_u32 s36, s36, s25")
        a("s_lshl_b32 s36, s36, 3")
        a("s_add_u32 s58, s36, s59")
    gran_addr()
    a("v_mov_b32 v12, 0"); a("v_mov_b32 v13, 0x80000000")
    a("buffer_store_dwordx2 v[12:13], v94, s[12:15], s58 offen sc1")
    a("s_lshl_b32 s36, s22, 4")
    a("s_add_u32 s36, s36, s23")
    a("s_lshl_b32 s36, s36, 8")
    a("s_add_u32 s97, s36, 0x%x" % ZFLG)
    a("v_mov_b32 v10, %d" % LC)
    a("v_mov_b32 v12, 0"); a("v_mov_b32 v13, 0")
    a("s_mov_b64 exec, 1")
    a("buffer_store_dword v12, v12, s[12:15], s97 offen sc1")
    a("buffer_store_dword v12, v12, s[12:15], s97 offen offset:%d sc1" % PFL)
    a("s_mov_b64 exec, -1")
    a("ds_write_b64 v10, v[12:13]")
    a("ds_write_b64 v10, v[12:13] offset:8")
    a("ds_write_b64 v10, v[12:13] offset:16")
    a("ds_write_b64 v10, v[12:13] offset:24")
    mma_addr(0)
    a("s_mov_b32 s33, 0")
    a("s_waitcnt lgkmcnt(0)")
    a("s_barrier")
    stamp(a, 1)
    a.label("%s_mma" % name)
    core.prime(0, core.reads(0, 0))
    trk.drain()
    nocs = [False]
    def mfmas(buf):
        L = []
        for ft in range(5):
            A = core.F(buf, ft)
            for tt in range(4 if ft < 4 else 2):
                c = core.accr(ft, tt); B = core.T(buf, tt)
                L.append(("v_mfma_f32_16x16x32_bf16 %s, %s, %s, %s" % (vr(c), vr(A), vr(B), vr(c)), list(range(A, A + 4)) + list(range(B, B + 4))))
            if not nocs[0]: L.append(("v_mfma_f32_16x16x32_bf16 %s, %s, %s, %s" % (vr(CS + 4 * ft), vr(A), vr(ONE), vr(CS + 4 * ft)), list(range(A, A + 4))))
        return L
    def phase(buf, pend):
        for (m, regs) in mfmas(buf):
            trk.need(regs)
            a(m)
            while pend:
                k, t = pend.pop(0)
                if k == "x":
                    a(t)
                    if t.startswith("s_"): continue
                else:
                    a(t[0]); trk.issue(t[1])
                break
        for k, t in pend:
            if k == "x": a(t)
            else: a(t[0]); trk.issue(t[1])
    def iteration(vw=True):
        if vw: a("s_waitcnt vmcnt(0)")
        a("s_barrier")
        rd = [("r", t) for t in core.reads(1, 1)]
        upd = ["s_add_u32 s27, s27, %d" % SLOT, "s_cmp_eq_u32 s27, %d" % (R * SLOT), "s_cselect_b32 s27, 0, s27"]
        tail = ["v_add_u32 v%d, s27, v%d" % (d, s_) for d, s_ in ((vTa[0], bTa[0]), (vF, bF), (vTb[0], bTb[0]), (vFh, bFh))]
        phase(0, rd[:1] + [("x", u) for u in upd] + rd[1:] + [("x", u) for u in tail])
        rd = [("r", t) for t in core.reads(0, 0)]
        tail = ["v_add_u32 v%d, s27, v%d" % (d, s_) for d, s_ in ((vTa[1], bTa[1]), (vTb[1], bTb[1]))] + ["s_add_u32 s33, s33, 1"]
        phase(1, rd + [("x", u) for u in tail])
    a.label("%s_cloop" % name)
    lb = len(a.lines); iteration(); st = copy.deepcopy(trk.out); del a.lines[lb:]; trk.out = copy.deepcopy(st)
    iteration()
    assert [sorted(x) for x in trk.out] == [sorted(x) for x in st]
    a("s_cmp_lt_u32 s33, 9")
    a("s_cbranch_scc1 %s_cloop" % name)
    trk.drain()
    stamp(a, 2)
    MR = 100; T = 72; ZP = 16
    def epi_in():
        gelu_consts(a)
        a("s_lshl_b32 s36, s24, 9")
        a("s_lshl_b32 s37, s25, 8")
        a("s_add_u32 s38, s36, s37")
        a("s_xor_b32 s37, s37, 256")
        a("s_add_u32 s39, s36, s37")
        a("v_lshlrev_b32 v10, 3, v3")
        a("v_add_u32 v11, s38, v10")
        a("ds_read_b64 %s, v11 offset:%d" % (vr(MR, 2), RST))
        a("ds_read_b64 %s, v11 offset:%d" % (vr(MR + 2, 2), RST + 128))
        a("v_add_u32 v11, s39, v10")
        a("ds_read_b64 %s, v11 offset:%d" % (vr(MR + 4, 2), RST))
        a("ds_read_b64 %s, v11 offset:%d" % (vr(MR + 6, 2), RST + 128))
        a("s_waitcnt lgkmcnt(0)")
    S = [108, 110, 52, 54]; Q = [109, 111, 53, 55]
    def gelu_ft(ft, stats):
        tts = range(4 if ft < 4 else 2)
        emit_fold_gelu(a, [(core.accr(ft, tt), CS + 4 * ft, MR + 2 * tt, ZP + 2 * tidx(ft, tt)) for tt in tts], T)
        if stats:
            for d in range(2):
                for tt in tts:
                    p = ZP + 2 * tidx(ft, tt) + d
                    a("v_dot2_f32_bf16 v%d, v%d, v%d, v%d" % (S[tt], p, ONE, S[tt]))
                    a("v_dot2_f32_bf16 v%d, v%d, v%d, v%d" % (Q[tt], p, p, Q[tt]))
    a("s_cmp_eq_u32 s98, 0")
    a("s_cbranch_scc1 %s_A1" % name)
    a("s_barrier")
    a("s_load_dwordx4 s[64:67], s[0:1], 8")
    a("s_load_dwordx2 s[76:77], s[0:1], 24")
    a("s_load_dwordx2 s[94:95], s[0:1], 80")
    a("s_load_dwordx2 s[92:93], s[0:1], 72")
    epi_in()
    srd(a, 68, 66, 2048 * 576 * 2)
    a("s_mov_b32 s88, s64"); a("s_mov_b32 s89, s65")
    srd(a, 64, 88, 2048 * 576 * 2)
    srd(a, 72, 76, 576 * 8)
    srd(a, 76, 94, 2304 * 576 * 2)
    srd(a, 28, 92, 2048 * 2)
    a("v_and_b32 v0, 255, v0")
    a("s_mov_b32 s41, s2")
    KDB = 240
    emit_kv_loads(a, 112, 240, 248, 252, 253)
    for ft in range(5): gelu_ft(ft, False)
    Z1R = 200; BI = 236
    for r_ in range(36): a("v_mov_b32 v%d, v%d" % (Z1R + r_, ZP + r_))
    stamp(a, 3)
    a("s_waitcnt vmcnt(0)")
    for n in range(11): a("v_mov_b32 v%d, v%d" % (16 + n, 112 + n))
    for n in range(8): a("v_mov_b32 v%d, v%d" % (32 + n, 240 + n))
    for n in range(4): a("v_mov_b32 v%d, v%d" % (44 + n, 248 + n))
    a("v_mov_b32 v56, v252"); a("v_mov_b32 v57, v253")
    for r_ in range(6): a("v_mov_b32 v%d, v%d" % (240 + r_, 88 + r_))
    a.label("%s_kvb" % name)
    emit_kv_compute(a, wait=False, store=False)
    a("s_mov_b32 s39, 0x%x" % KVT)
    a("buffer_store_dwordx4 v[120:123], v12, s[12:15], s39 offen sc1")
    a("buffer_store_dwordx4 v[124:127], v13, s[12:15], s39 offen sc1")
    a("s_add_u32 s41, s41, 256")
    a("s_cmp_ge_u32 s41, 288")
    a("s_cbranch_scc1 %s_kvbd" % name)
    emit_kv_loads(a)
    a("s_waitcnt vmcnt(0)")
    a("s_branch %s_kvb" % name)
    a.label("%s_kvbd" % name)
    for r_ in range(6): a("v_mov_b32 v%d, v%d" % (88 + r_, 240 + r_))
    a("s_mov_b32 s42, s2")
    emit_wot_loads(a, 100, 112, 720, 3)
    a("s_lshl_b32 s36, s22, 7")
    a("s_lshl_b32 s37, s24, 6")
    a("s_add_u32 s36, s36, s37")
    a("v_lshlrev_b32 v11, 1, v3")
    a("s_lshl_b32 s37, s25, 6")
    a("s_lshl_b32 s38, s36, 1")
    a("s_add_u32 s39, s38, s37")
    a("s_xor_b32 s37, s37, 64")
    a("s_add_u32 s36, s38, s37")
    a("buffer_load_ushort v96, v11, s[28:31], s39 offen")
    a("buffer_load_ushort v97, v11, s[28:31], s39 offen offset:32")
    a("buffer_load_ushort v98, v11, s[28:31], s36 offen")
    a("buffer_load_ushort v99, v11, s[28:31], s36 offen offset:32")
    for r in range(ACC, ACC + 72): a("v_mov_b32 v%d, 0" % r)
    a("v_lshrrev_b32 v10, 2, v2")
    a("v_lshlrev_b32 v10, 5, v10")
    a("v_and_b32 v11, 3, v2")
    a("v_lshl_add_u32 v10, v11, 3, v10")
    a("v_add_u32 v10, %d, v10" % (RB + TREG))
    a("s_mul_i32 s26, s25, 10240")
    a("v_add_u32 v%d, s26, v10" % bF)
    a("v_add_u32 v%d, 8192, v10" % bFh)
    core.FS = 32; core.FT = 2048
    mma_addr(0)
    a("s_mov_b32 s33, 0")
    stamp(a, 4)
    a("s_barrier")
    stamp(a, 5)
    core.prime(0, core.reads(0, 0))
    trk.drain()
    nocs[0] = True
    a.label("%s_gloop" % name)
    lb = len(a.lines); iteration(False); st = copy.deepcopy(trk.out); del a.lines[lb:]; trk.out = copy.deepcopy(st)
    iteration(False)
    assert [sorted(x) for x in trk.out] == [sorted(x) for x in st]
    a("s_cmp_lg_u32 s33, 3")
    a("s_cbranch_scc1 %s_ghk0" % name)
    a("s_waitcnt vmcnt(0)")
    for n in range(3):
        a("buffer_store_dwordx4 %s, v%d, s[12:15], s40 offen sc1" % (vr(100 + 4 * n), 112 + n))
    for tt in range(4): a("v_lshlrev_b32 v%d, 16, v%d" % (BI + 2 * tt, 96 + tt))
    a.label("%s_ghk0" % name)
    a("s_cmp_lg_u32 s33, 6")
    a("s_cbranch_scc1 %s_ghk" % name)
    a("s_waitcnt vmcnt(0)")
    a("v_mov_b32 v10, %d" % (LC + 8))
    a("v_mov_b32 v11, 1")
    a("s_mov_b64 exec, 1")
    a("ds_add_rtn_u32 v12, v10, v11")
    a("s_waitcnt lgkmcnt(0)")
    a("v_readfirstlane_b32 s36, v12")
    a("s_cmp_lg_u32 s36, 3")
    a("s_cbranch_scc1 %s_nokvs" % name)
    a("s_and_b32 s36, s2, 15")
    a("s_lshl_b32 s36, s36, 2")
    a("s_add_u32 s36, s36, 128")
    a("v_mov_b32 v10, s36")
    a("buffer_atomic_add v11, v10, s[60:63], 0 offen sc1")
    a.label("%s_nokvs" % name)
    a("s_mov_b64 exec, -1")
    a.label("%s_ghk" % name)
    a("s_cmp_lg_u32 s33, 24")
    a("s_cbranch_scc1 %s_ghk2" % name)
    a("v_lshlrev_b32 v10, 2, v3")
    a("buffer_load_dword v254, v10, s[60:63], 0 offen offset:128 sc1")
    a.label("%s_ghk2" % name)
    a("s_cmp_lt_u32 s33, 32")
    a("s_cbranch_scc1 %s_gloop" % name)
    trk.drain()
    stamp(a, 6)
    G3.emit_k2_epilogue2(a, core, Z1R, BI, " sc1")
    stamp(a, 7)
    a("s_setprio 3")
    a("s_lshl_b32 s36, s22, 4")
    a("s_add_u32 s36, s36, s23")
    a("s_lshl_b32 s36, s36, 8")
    a("s_add_u32 s97, s36, 0x%x" % (ZFLG + PFL))
    c_common()
    a("v_lshlrev_b32 v14, 4, v2")
    a("s_mul_i32 s26, s22, %d" % (36 * 8192))
    a("s_lshl_b32 s24, s3, 12")
    a("s_add_u32 s26, s26, s24")
    a("s_add_u32 s26, s26, 0x%x" % PIMG)
    a("s_mul_i32 s27, s23, %d" % (18 * 20480))
    a("s_mul_i32 s25, s3, 5120")
    a("s_add_u32 s27, s27, s25")
    a("s_add_u32 s27, s27, 0x%x" % WOT)
    a("s_add_u32 s25, s25, %d" % CTREG)
    a("v_and_b32 v28, 15, v2")
    a("v_lshlrev_b32 v30, 2, v28")
    a("v_mov_b32 v26, %d" % LC)
    a("v_mov_b32 v27, 1")
    a("s_waitcnt vmcnt(0)")
    a("v_mov_b32 v31, v254")
    a("s_mov_b64 exec, 1")
    a("ds_add_rtn_u32 v29, v26, v27 offset:16")
    a("s_waitcnt lgkmcnt(0)")
    a("v_readfirstlane_b32 s36, v29")
    a("s_cmp_lg_u32 s36, 3")
    a("s_cbranch_scc1 %s_nops" % name)
    a("v_mov_b32 v29, 0")
    a("buffer_store_dword v27, v29, s[12:15], s97 offen sc1")
    a.label("%s_nops" % name)
    a("s_mov_b64 exec, -1")
    a("s_mov_b32 s34, 0")
    a.label("%s_cw" % name)
    a("ds_read_b32 v29, v26 offset:16")
    a("s_add_u32 s34, s34, 1")
    a("s_waitcnt lgkmcnt(0)")
    a("v_readfirstlane_b32 s36, v29")
    a("s_cmp_gt_u32 s34, %d" % (SPIN_MAX * 20))
    a("s_cbranch_scc1 %s_cwx" % name)
    a("s_cmp_ge_u32 s36, 4")
    a("s_cbranch_scc1 %s_cwx" % name)
    a("s_sleep 1")
    a("s_branch %s_cw" % name)
    a.label("%s_cwx" % name)
    a("s_mov_b32 s34, 0")
    a.label("%s_cp" % name)
    a("v_cmp_gt_u32 vcc, 16, v31")
    a("s_add_u32 s34, s34, 1")
    a("s_cmp_gt_u32 s34, %d" % SPIN_MAX)
    a("s_cbranch_scc1 %s_cpx" % name)
    a("s_cbranch_vccz %s_cpx" % name)
    a("s_sleep 32")
    a("buffer_load_dword v31, v30, s[60:63], 0 offen offset:128 sc1")
    a("s_waitcnt vmcnt(0)")
    a("s_branch %s_cp" % name)
    a.label("%s_cpx" % name)
    def cF(off, soff):
        a("s_add_u32 s36, s25, %s" % off)
        a("s_mov_b32 m0, s36")
        a("s_add_u32 s37, %s, 4096" % soff)
        for n in range(4):
            a("buffer_load_dwordx4 v14, s[12:15], %s offen offset:%d sc1 lds" % (soff, n * 1024))
        a("s_add_u32 s36, s36, 4096")
        a("s_mov_b32 m0, s36")
        a("s_nop 0")
        a("buffer_load_dwordx4 v14, s[12:15], s37 offen sc1 lds")
    def cT(off, soff):
        a("s_add_u32 s35, s24, %s" % off)
        a("s_mov_b32 m0, s35")
        a("s_nop 0")
        for n in range(4):
            a("buffer_load_dwordx4 v14, s[12:15], %s offen offset:%d sc1 lds" % (soff, n * 1024))
    a("s_add_u32 s38, s27, 20480")
    cF(str(C0), "s27"); cF(str(C0 + CSL), "s38")
    a("s_mov_b32 s34, 0")
    a("s_cmp_lg_u32 s3, 0")
    a("s_cbranch_scc1 %s_cpl" % name)
    a("v_lshlrev_b32 v28, 8, v28")
    a("s_lshr_b32 s39, s22, 1")
    a("s_lshl_b32 s39, s39, 12")
    a("s_add_u32 s39, s39, 0x%x" % (ZFLG + PFL))
    a.label("%s_cpz" % name)
    a("buffer_load_dword v29, v28, s[12:15], s39 offen sc1")
    a("s_add_u32 s34, s34, 1")
    a("s_waitcnt vmcnt(0)")
    a("v_cmp_ne_u32 vcc, 1, v29")
    a("s_cmp_gt_u32 s34, %d" % SPIN_MAX)
    a("s_cbranch_scc1 %s_cpzx" % name)
    a("s_cbranch_vccz %s_cpzx" % name)
    a("s_sleep 8")
    a("s_branch %s_cpz" % name)
    a.label("%s_cpzx" % name)
    a("ds_write_b32 v26, v27 offset:24")
    a("s_branch %s_cgo" % name)
    a.label("%s_cpl" % name)
    a("ds_read_b32 v29, v26 offset:24")
    a("s_add_u32 s34, s34, 1")
    a("s_waitcnt lgkmcnt(0)")
    a("v_readfirstlane_b32 s36, v29")
    a("s_cmp_gt_u32 s34, %d" % (SPIN_MAX * 20))
    a("s_cbranch_scc1 %s_cgo" % name)
    a("s_cmp_lg_u32 s36, 0")
    a("s_cbranch_scc1 %s_cgo" % name)
    a("s_sleep 2")
    a("s_branch %s_cpl" % name)
    a.label("%s_cgo" % name)
    stamp(a, 8)
    a("s_add_u32 s38, s26, 16384")
    cT(str(C0), "s26"); cT(str(C0 + CSL), "s38")
    a("s_add_u32 s26, s26, 32768")
    a("s_add_u32 s27, s27, 40960")
    a("s_mov_b32 s33, %d" % RB)
    def cissue():
        cT("s33", "s26"); cF("s33", "s27")
        a("s_add_u32 s26, s26, 16384")
        a("s_add_u32 s27, s27, 20480")
        a("s_add_u32 s33, s33, %d" % CSL)
        a("s_cmp_eq_u32 s33, %d" % CW)
        a("s_cselect_b32 s33, %d, s33" % RB)
    a("s_waitcnt vmcnt(4)")
    a("s_barrier")
    cissue(); cissue()
    a("s_waitcnt vmcnt(18)")
    a("s_barrier")
    a("s_mov_b32 s34, 0")
    a.label("%s_clloop" % name)
    cissue()
    a("s_cmp_lg_u32 s34, 11")
    a("s_cbranch_scc1 %s_cl1" % name)
    a("buffer_load_dword v31, v30, s[60:63], 0 offen offset:192 sc1")
    a("s_waitcnt vmcnt(19)")
    a("s_branch %s_cl2" % name)
    a.label("%s_cl1" % name)
    a("s_waitcnt vmcnt(18)")
    a.label("%s_cl2" % name)
    a("s_barrier")
    a("s_add_u32 s34, s34, 1")
    a("s_cmp_lt_u32 s34, 14")
    a("s_cbranch_scc1 %s_clloop" % name)
    a("s_mov_b32 s34, 0")
    a.label("%s_cy" % name)
    a("v_cmp_gt_u32 vcc, 16, v31")
    a("s_add_u32 s34, s34, 1")
    a("s_cmp_gt_u32 s34, %d" % SPIN_MAX)
    a("s_cbranch_scc1 %s_cyx" % name)
    a("s_cbranch_vccz %s_cyx" % name)
    a("s_sleep 32")
    a("buffer_load_dword v31, v30, s[60:63], 0 offen offset:192 sc1")
    a("s_waitcnt vmcnt(0)")
    a("s_branch %s_cy" % name)
    a.label("%s_cyx" % name)
    a("v_lshrrev_b32 v3, 3, v2")
    a("v_and_b32 v4, 7, v2")
    a("v_lshlrev_b32 v4, 4, v4")
    a("s_mul_i32 s33, s52, 144")
    a("s_mul_i32 s34, s53, 80")
    a("s_lshl_b32 s35, s22, 7")
    a("s_add_u32 s35, s35, 0x%x" % YT)
    for n in range(3):
        a("s_add_u32 s36, s3, %d" % (4 * n))
        if n == 2: a("s_min_u32 s36, s36, 9")
        a("s_lshl_b32 s37, s36, 3")
        a("s_add_u32 s38, s37, s33")
        if n < 2: a("s_add_u32 s38, s38, s34")
        a("v_add_u32 v5, s38, v3")
        a("v_lshl_add_u32 v5, v5, 12, v4")
        a("s_lshl_b32 s36, s36, 10")
        a("s_add_u32 s36, s36, %d" % YOFF)
        a("s_mov_b32 m0, s36")
        a("s_nop 0")
        a("buffer_load_dwordx4 v5, s[12:15], s35 offen sc1 lds")
    fin_loads()
    a("s_waitcnt vmcnt(%d)" % (9 + 7))
    a("s_barrier")
    a("s_waitcnt vmcnt(7)")
    a("s_barrier")
    a("s_barrier")
    a("s_setprio 0")
    a("s_waitcnt vmcnt(0)")
    a("s_branch %s_cfin" % name)
    a.label("%s_A1" % name)
    a("s_setprio 2")
    vmA = VmTracker(a)
    PB = 132
    def aux_head():
        epi_in()
        for tt in range(4):
            a("v_mov_b32 v%d, 0" % S[tt]); a("v_mov_b32 v%d, 0" % Q[tt])
    def aux_pub():
        a("s_nop 2")
        emit_xg_reduce(a, S + Q, 72)
        a("v_lshrrev_b32 v10, 4, v2")
        for g in range(1, 4):
            a("v_cmp_eq_u32 vcc, %d, v10" % g)
            a("s_nop 1")
            a("v_cndmask_b32 v%d, v%d, v%d, vcc" % (S[0], S[0], S[g]))
            a("v_cndmask_b32 v%d, v%d, v%d, vcc" % (Q[0], Q[0], Q[g]))
        a("v_and_b32 v%d, 0x7fffffff, v%d" % (Q[0], Q[0]))
        a("buffer_store_dwordx2 v[%d:%d], v94, s[12:15], s58 offen sc1" % (S[0], Q[0]))
    chunks = [capture(aux_head) + capture(gelu_ft, 0, True), capture(gelu_ft, 1, True), capture(gelu_ft, 2, True),
              capture(gelu_ft, 3, True), capture(gelu_ft, 4, True) + capture(aux_pub)]
    KD = 172
    for k in range(9, 18):
        a("s_barrier")
        if k == 9:
            a("s_cmp_lg_u32 s3, 0")
            a("s_cbranch_scc1 %s_nosig" % name)
            a("v_mov_b32 v10, 1")
            a("s_lshl_b32 s36, s22, 2")
            a("v_mov_b32 v11, s36")
            a("s_mov_b64 exec, 1")
            a("buffer_atomic_add v10, v11, s[60:63], 0 offen sc1")
            a("s_mov_b64 exec, -1")
            a.label("%s_nosig" % name)
        g = k + 3
        dma = capture(lambda: (issueT(g), issueF(g))) if g < 18 else []
        comp = chunks[k - 9] if k - 9 < len(chunks) else []
        interleave(dma, comp)
        if k == 13: vmA.issue("pub", 1)
        if g < 18: vmA.issue("S%d" % g, 9)
        if k == 14:
            srd(a, 92, 78, 2048 * 2048 * 2)
            a("v_lshrrev_b32 v10, 4, v2")
            a("v_lshlrev_b32 v10, 12, v10")
            a("v_lshl_add_u32 v10, v3, 4, v10")
            a("s_lshl_b32 s40, s22, 7")
            a("s_lshl_b32 s36, s3, 5")
            a("s_add_u32 s40, s40, s36")
            a("s_lshl_b32 s40, s40, 12")
            a("s_lshl_b32 s36, s23, 8")
            a("s_add_u32 s40, s40, s36")
            for n in range(8):
                a("buffer_load_dwordx4 v[200:203], v10, s[92:95], s40 offen")
                if n < 7: a("s_add_u32 s40, s40, 16384")
            vmA.issue("wp", 8)
            a("s_lshl_b32 s36, s22, 2")
            a("v_mov_b32 v199, s36")
            a("buffer_load_dword v198, v199, s[60:63], 0 offen sc1"); vmA.issue("cnt", 1)
        if k + 2 < 18 and k + 2 >= 12:
            vmA.wait(["S%d" % (k + 2)])
    a("s_barrier")
    stamp(a, 3)
    a("s_load_dwordx4 s[88:91], s[0:1], 32")
    a("v_lshrrev_b32 v10, 4, v2")
    a("v_lshlrev_b32 v95, 8, v3")
    a("v_lshl_add_u32 v95, v10, 6, v95")
    a("s_lshl_b32 s33, s25, 13")
    a("s_add_u32 s52, s59, s33")
    a("s_xor_b32 s33, s33, 8192")
    a("s_add_u32 s53, s59, s33")
    a("s_add_u32 s42, s52, 4096")
    a("s_add_u32 s43, s53, 4096")
    Z2 = ZP
    a("s_waitcnt vmcnt(0)")
    GB = [128, 144, 160, 176]
    a("v_mov_b32 v4, v95")
    def gather():
        for tt in range(4):
            for q in range(4):
                a("buffer_load_dwordx4 %s, v4, s[12:15], s%d offen offset:%d sc1" % (vr(GB[tt] + 4 * q), (52, 42, 53, 43)[tt], 16 * q))
    gather()
    a("s_mov_b32 s40, 0")
    a("s_waitcnt vmcnt(0)")
    a.label("%s_chk" % name)
    a("v_subrev_u32 v11, 16, v198")
    for tt in range(4):
        for r in range(GB[tt] + 1, GB[tt] + 16, 4):
            a("v_or3_b32 v11, v11, v%d, v%d" % (r, r + 2))
    a("v_cmp_gt_i32 vcc, 0, v11")
    a("s_add_u32 s40, s40, 1")
    a("s_cmp_gt_u32 s40, %d" % SPIN_MAX)
    a("s_cbranch_scc1 %s_ok" % name)
    a("s_cbranch_vccz %s_ok" % name)
    a("s_sleep 32")
    a("buffer_load_dword v198, v199, s[60:63], 0 offen sc1")
    a("s_waitcnt vmcnt(0)")
    gather()
    a("s_waitcnt vmcnt(0)")
    a("s_branch %s_chk" % name)
    a.label("%s_ok" % name)
    stamp(a, 5)
    for tt in range(4):
        b = GB[tt]
        for st_ in (8, 4, 2):
            for q in range(0, st_, 2):
                a("v_pk_add_f32 %s, %s, %s" % (vr(b + q, 2), vr(b + q, 2), vr(b + q + st_, 2)))
    emit_xg_reduce(a, [GB[tt] + e for tt in range(4) for e in range(2)], 72)
    for tt in range(4):
        b = GB[tt]
        emit_ln_finish(a, b, b + 1, 2304, b + 2, MR + 2 * tt, b + 4)
        a("v_mul_f32 v%d, -v%d, v%d" % (MR + 2 * tt + 1, b + 2, MR + 2 * tt))
    a("v_lshrrev_b32 v10, 4, v2")
    a("v_lshrrev_b32 v11, 2, v2"); a("v_and_b32 v11, 1, v11"); a("v_lshlrev_b32 v11, 4, v11")
    a("v_lshrrev_b32 v5, 3, v2"); a("v_and_b32 v5, 1, v5"); a("v_lshl_add_u32 v11, v5, 2, v11")
    a("v_and_b32 v5, 3, v2"); a("v_add_u32 v11, v11, v5")
    a("v_and_b32 v5, 1, v10")
    a("v_lshl_add_u32 v11, v5, 3, v11")
    a("v_lshlrev_b32 v11, 5, v11")
    a("v_lshrrev_b32 v5, 1, v10")
    a("v_lshl_add_u32 v6, v5, 4, v11")
    a("s_lshl_b32 s33, s23, 5")
    a("s_lshl_b32 s36, s22, 1")
    a("s_add_u32 s33, s33, s36")
    a("s_add_u32 s33, s33, s24")
    a("s_mul_i32 s33, s33, 18432")
    if ZIMG: a("s_add_u32 s33, s33, 0x%x" % ZIMG)
    a("s_lshl_b32 s36, s25, 10")
    a("s_add_u32 s39, s33, s36")
    a("s_add_u32 s39, s39, 8192")
    a("s_mul_i32 s38, s25, 10240")
    a("s_add_u32 s33, s33, s38")
    a("s_add_u32 s37, s33, s36")
    a("s_xor_b32 s36, s36, 1024")
    a("s_add_u32 s38, s33, s36")
    a("s_add_u32 s33, s37, 4096")
    a("s_add_u32 s36, s38, 4096")
    def norm_pair(nA, ttA, nB, ttB, O):
        for q, (n, tt) in enumerate(((nA, ttA), (nB, ttB))):
            for d in range(2):
                z = Z2 + 2 * n + d; t = T + 4 * q + 2 * d
                a("v_lshlrev_b32 v%d, 16, v%d" % (t, z))
                a("v_and_b32 v%d, 0xffff0000, v%d" % (t + 1, z))
        for q, (n, tt) in enumerate(((nA, ttA), (nB, ttB))):
            for d in range(2):
                t = T + 4 * q + 2 * d
                a("v_pk_fma_f32 %s, %s, %s, %s op_sel:[0,0,1] op_sel_hi:[1,0,1]" % (vr(t, 2), vr(t, 2), vr(MR + 2 * tt, 2), vr(MR + 2 * tt, 2)))
        for q in range(2):
            for d in range(2):
                t = T + 4 * q + 2 * d
                a("v_cvt_pk_bf16_f32 v%d, v%d, v%d" % (O + 2 * q + d, t, t + 1))
        a("s_nop 1")
        a("v_permlane16_swap_b32 v%d, v%d" % (O, O + 2))
        a("v_permlane16_swap_b32 v%d, v%d" % (O + 1, O + 3))
    cnt = 0
    for ft in range(4):
        for pp in range(2):
            O = 200 + 4 * cnt; cnt += 1
            norm_pair(tidx(ft, 2 * pp), 2 * pp, tidx(ft, 2 * pp + 1), 2 * pp + 1, O)
            a("s_nop 0")
            a("buffer_store_dwordx4 %s, v6, s[12:15], s%d offen offset:%d sc1" % (vr(O), ((37, 38), (33, 36))[ft >> 1][pp], (ft & 1) * 2048))
    O = 200 + 4 * cnt
    norm_pair(16, 0, 17, 1, O)
    a("s_nop 0")
    a("buffer_store_dwordx4 %s, v6, s[12:15], s39 offen sc1" % vr(O))
    stamp(a, 6)
    a("s_setprio 3")
    srd(a, 8, 78, 2048 * 2048 * 2)
    a("v_lshrrev_b32 v3, 3, v2")
    a("s_lshl_b32 s24, s3, 5")
    a("v_add_u32 v3, s24, v3")
    a("v_and_b32 v4, 7, v2")
    a("v_lshrrev_b32 v6, 4, v2")
    a("v_xor_b32 v6, v6, v4")
    a("v_lshlrev_b32 v6, 4, v6")
    a("v_lshl_add_u32 v10, v3, 12, v6")
    a("v_xor_b32 v11, 64, v10")
    a("v_add_u32 v11, %d, v11" % (32768 - 1024))
    a("v_add_u32 v12, %d, v10" % (2 * (32768 - 1024)))
    a("v_add_u32 v13, %d, v11" % (2 * (32768 - 1024)))
    a("v_lshlrev_b32 v14, 4, v2")
    a("s_lshl_b32 s26, s22, 19")
    a("s_mul_i32 s27, s23, %d" % (32 * 18432))
    a("s_lshl_b32 s24, s3, 12")
    a("s_add_u32 s27, s27, s24")
    if ZIMG: a("s_add_u32 s27, s27, 0x%x" % ZIMG)
    a("s_lshl_b32 s25, s3, 9")
    a("s_sub_u32 s32, s25, s24")
    a("s_add_u32 s32, s32, 16384")
    a("s_add_u32 s24, s24, %d" % RB)
    a("s_waitcnt vmcnt(0) lgkmcnt(0)")
    a("v_mov_b32 v26, %d" % LC)
    a("v_mov_b32 v27, 1")
    a("s_mov_b64 exec, 1")
    a("ds_add_rtn_u32 v28, v26, v27")
    a("s_waitcnt lgkmcnt(0)")
    a("v_readfirstlane_b32 s36, v28")
    a("s_cmp_lg_u32 s36, 3")
    a("s_cbranch_scc1 %s_nozs" % name)
    a("v_mov_b32 v28, 0")
    a("buffer_store_dword v27, v28, s[12:15], s97 offen sc1")
    a.label("%s_nozs" % name)
    a("s_mov_b64 exec, -1")
    stamp(a, 7)
    srd(a, 16, 88, 576 * 2048 * 2)
    srd(a, 84, 90, 576 * 2)
    for g in range(4):
        a("s_add_u32 s35, s24, %d" % (g * SLOT))
        a("s_mov_b32 m0, s35")
        a("s_add_u32 s36, s26, %d" % (128 * g))
        for n in range(4):
            a("buffer_load_dwordx4 v%d, s[8:11], s36 offen offset:%d lds" % (10 + n, n * 1024))
    a("s_mov_b32 s34, 0")
    a("s_cmp_lg_u32 s3, 0")
    a("s_cbranch_scc1 %s_pl" % name)
    a("v_and_b32 v28, 15, v2")
    a("v_lshlrev_b32 v30, 2, v28")
    a("v_lshlrev_b32 v28, 12, v28")
    a("s_lshl_b32 s52, s23, 8")
    a("s_add_u32 s52, s52, 0x%x" % ZFLG)
    a.label("%s_pz0" % name)
    a("buffer_load_dword v31, v30, s[60:63], 0 offen sc1")
    a("s_add_u32 s34, s34, 1")
    a("s_waitcnt vmcnt(0)")
    a("v_cmp_gt_u32 vcc, 16, v31")
    a("s_cmp_gt_u32 s34, %d" % SPIN_MAX)
    a("s_cbranch_scc1 %s_pz" % name)
    a("s_cbranch_vccz %s_pz" % name)
    a("s_sleep 32")
    a("s_branch %s_pz0" % name)
    a.label("%s_pz" % name)
    a("buffer_load_dword v29, v28, s[12:15], s52 offen sc1")
    a("s_add_u32 s34, s34, 1")
    a("s_waitcnt vmcnt(0)")
    a("v_cmp_ne_u32 vcc, 1, v29")
    a("s_cmp_gt_u32 s34, %d" % SPIN_MAX)
    a("s_cbranch_scc1 %s_pzx" % name)
    a("s_cbranch_vccz %s_pzx" % name)
    a("s_sleep 8")
    a("s_branch %s_pz" % name)
    a.label("%s_pzx" % name)
    a("v_mov_b32 v27, 1")
    a("ds_write_b32 v26, v27 offset:4")
    a("s_branch %s_pgo" % name)
    a.label("%s_pl" % name)
    a("ds_read_b32 v27, v26 offset:4")
    a("s_add_u32 s34, s34, 1")
    a("s_waitcnt lgkmcnt(0)")
    a("v_readfirstlane_b32 s36, v27")
    a("s_cmp_gt_u32 s34, %d" % (SPIN_MAX * 20))
    a("s_cbranch_scc1 %s_pgo" % name)
    a("s_cmp_lg_u32 s36, 0")
    a("s_cbranch_scc1 %s_pgo" % name)
    a("s_sleep 2")
    a("s_branch %s_pl" % name)
    a.label("%s_pgo" % name)
    stamp(a, 8)
    for g in range(4):
        a("s_add_u32 s35, s24, %d" % (g * SLOT + TREG))
        a("s_mov_b32 m0, s35")
        a("s_add_u32 s36, s27, %d" % (18432 * g))
        a("s_add_u32 s37, s36, s32")
        for n in range(4):
            a("buffer_load_dwordx4 v14, s[12:15], s36 offen offset:%d sc1 lds" % (n * 1024))
        a("s_add_u32 s35, s35, s32")
        a("s_mov_b32 m0, s35")
        a("s_mov_b64 exec, 0xffffffff")
        a("buffer_load_dwordx4 v14, s[12:15], s37 offen sc1 lds")
        a("s_mov_b64 exec, -1")
    a("s_add_u32 s26, s26, 512")
    a("s_add_u32 s27, s27, %d" % (4 * 18432))
    a("s_mov_b32 s33, 0")
    a("s_lshl_b32 s43, s2, 2")
    a("s_add_u32 s43, s43, s3")
    a("s_and_b32 s53, s43, 1")
    a("s_sub_u32 s36, s43, 448")
    a("s_lshr_b32 s37, s43, 1")
    a("s_cmp_ge_u32 s43, 896")
    a("s_cselect_b32 s43, s36, s37")
    a("s_cselect_b32 s53, 2, s53")
    a("s_waitcnt vmcnt(15)")
    a("s_barrier")
    a("s_waitcnt vmcnt(10)")
    a("s_barrier")
    a("s_waitcnt vmcnt(5)")
    a("s_barrier")
    a("s_mov_b32 s34, 4")
    def issue2():
        a("s_add_u32 s35, s33, s24")
        a("s_mov_b32 m0, s35")
        a("s_add_u32 s36, s35, %d" % TREG)
        for n in range(4):
            a("buffer_load_dwordx4 v%d, s[8:11], s26 offen offset:%d lds" % (10 + n, n * 1024))
        a("s_mov_b32 m0, s36")
        a("s_add_u32 s37, s27, s32")
        for n in range(4):
            a("buffer_load_dwordx4 v14, s[12:15], s27 offen offset:%d sc1 lds" % (n * 1024))
        a("s_add_u32 s36, s36, s32")
        a("s_mov_b32 m0, s36")
        a("s_mov_b64 exec, 0xffffffff")
        a("buffer_load_dwordx4 v14, s[12:15], s37 offen sc1 lds")
        a("s_mov_b64 exec, -1")
        a("s_add_u32 s26, s26, 128")
        a("s_add_u32 s27, s27, 18432")
        a("s_add_u32 s33, s33, %d" % SLOT)
        a("s_cmp_eq_u32 s33, %d" % (R * SLOT))
        a("s_cselect_b32 s33, 0, s33")
    a.label("%s_lloop" % name)
    issue2()
    a("s_cmp_eq_u32 s34, 18")
    a("s_cbranch_scc1 %s_hk1" % name)
    a("s_cmp_eq_u32 s34, 21")
    a("s_cbranch_scc1 %s_hk2" % name)
    a("s_waitcnt vmcnt(9)")
    a.label("%s_lcont" % name)
    a("s_barrier")
    a("s_add_u32 s34, s34, 1")
    a("s_cmp_lt_u32 s34, 32")
    a("s_cbranch_scc1 %s_lloop" % name)
    a("s_branch %s_ldone" % name)
    a.label("%s_hk1" % name)
    a("v_and_b32 v28, 15, v2")
    a("v_lshlrev_b32 v28, 2, v28")
    a("buffer_load_dword v29, v28, s[60:63], 0 offen offset:128 sc1")
    a("s_waitcnt vmcnt(10)")
    a("s_branch %s_lcont" % name)
    a.label("%s_hk2" % name)
    a("s_mov_b32 s52, 0")
    a.label("%s_hk2l" % name)
    a("v_cmp_gt_u32 vcc, 16, v29")
    a("s_add_u32 s52, s52, 1")
    a("s_cmp_gt_u32 s52, %d" % SPIN_MAX)
    a("s_cbranch_scc1 %s_hk2g" % name)
    a("s_cbranch_vccz %s_hk2g" % name)
    a("s_sleep 16")
    a("buffer_load_dword v29, v28, s[60:63], 0 offen offset:128 sc1")
    a("s_waitcnt vmcnt(0)")
    a("s_branch %s_hk2l" % name)
    a.label("%s_hk2g" % name)
    nconv = emit_conv_loads(a, " sc1")
    a("s_waitcnt vmcnt(%d)" % (9 + nconv))
    a("s_branch %s_lcont" % name)
    a.label("%s_ldone" % name)
    a("s_waitcnt vmcnt(0)")
    a("s_barrier")
    a("s_mov_b32 s26, s53")
    a("s_and_b32 s27, s3, 1")
    a("s_mul_i32 s27, s27, %d" % CJ_SIZE)
    a("s_lshr_b32 s36, s3, 1")
    a("s_mul_i32 s36, s36, %d" % SLOT)
    a("s_add_u32 s27, s27, s36")
    a("s_add_u32 s27, s27, %d" % RB)
    def mid():
        a("s_barrier")
        a("s_setprio 0")
    sv = set(DBG); DBG.discard("stamp")
    lb_ = len(a.lines)
    emit_conv_job(a, name, mid)
    for n_ in range(lb_, len(a.lines)):
        if "buffer_store_dwordx2" in a.lines[n_]: a.lines[n_] += " sc1"
    DBG.update(sv)
    stamp(a, 9)
    c_common()
    cTa = [4, 4]; cTb = [6, 6]; cF_ = 8; cFh = 9
    kTa = 88; kTb = 90; kF = 92; kFh = 93
    a("v_and_b32 v3, 15, v2")
    a("v_lshrrev_b32 v10, 5, v2")
    a("v_lshlrev_b32 v10, 11, v10")
    a("v_bfe_u32 v11, v2, 4, 1")
    a("v_lshl_add_u32 v10, v11, 4, v10")
    a("v_lshl_add_u32 v10, v3, 5, v10")
    a("s_lshl_b32 s26, s3, 12")
    a("v_add_u32 v10, s26, v10")
    a("s_lshl_b32 s26, s53, 10")
    a("v_add_u32 v%d, s26, v10" % kTa)
    a("s_xor_b32 s26, s26, 1024")
    a("v_add_u32 v%d, s26, v10" % kTb)
    a("v_lshrrev_b32 v10, 2, v2")
    a("v_mul_u32_u24 v10, %d, v10" % CFS)
    a("v_and_b32 v11, 3, v2")
    a("v_lshl_add_u32 v10, v11, 3, v10")
    a("s_mul_i32 s26, s3, %d" % (32 * CFS))
    a("s_add_u32 s26, s26, %d" % CTREG)
    a("v_add_u32 v%d, s26, v10" % kF)
    a("v_add_u32 v%d, 128, v%d" % (kFh, kF))
    a("v_mov_b32 v26, %d" % LC)
    a("v_mov_b32 v27, 1")
    a("s_waitcnt vmcnt(0)")
    a("s_mov_b64 exec, 1")
    a("ds_add_rtn_u32 v28, v26, v27 offset:20")
    a("s_waitcnt lgkmcnt(0)")
    a("v_readfirstlane_b32 s36, v28")
    a("s_cmp_lg_u32 s36, 3")
    a("s_cbranch_scc1 %s_nocs" % name)
    a("s_and_b32 s36, s2, 15")
    a("s_lshl_b32 s36, s36, 2")
    a("s_add_u32 s36, s36, 192")
    a("v_mov_b32 v28, s36")
    a("buffer_atomic_add v27, v28, s[60:63], 0 offen sc1")
    a.label("%s_nocs" % name)
    a("s_mov_b64 exec, -1")
    fin_loads()
    core3 = G.Core(a, ACC, FB[0], FB[1], CFS, CTREG, cTa, cTb, cF_, cFh, TT=512)
    pairs = ((cTa[0], kTa), (cF_, kF), (cTb[0], kTb), (cFh, kFh))
    a("s_mov_b32 s27, %d" % C0)
    for d, s_ in pairs: a("v_add_u32 v%d, s27, v%d" % (d, s_))
    for r in range(ACC, ACC + 72): a("v_mov_b32 v%d, 0" % r)
    a("s_mov_b32 s33, 0")
    a("s_barrier")
    stamp(a, 10)
    core3.prime(0, core3.reads(0, 0))
    def citer(buf):
        core3.trk.drain()
        a("s_barrier")
        a("s_add_u32 s27, s27, %d" % CSL)
        a("s_cmp_eq_u32 s27, %d" % CW)
        a("s_cselect_b32 s27, %d, s27" % RB)
        pre = ["v_add_u32 v%d, s27, v%d" % (d, s_) for d, s_ in pairs]
        core3.phase(buf, core3.reads(1 - buf, 0), pre=pre)
    a.label("%s_ccloop" % name)
    citer(0); citer(1)
    a("s_add_u32 s33, s33, 1")
    a("s_cmp_lt_u32 s33, 9")
    a("s_cbranch_scc1 %s_ccloop" % name)
    core3.trk.drain()
    stamp(a, 11)
    a("s_mul_i32 s33, s3, %d" % (18 * 1024))
    a("s_add_u32 s33, s33, %d" % C0)
    a("v_lshlrev_b32 v10, 4, v2")
    a("v_add_u32 v11, s33, v10")
    a("s_nop 4")
    for n, (ft, tt) in enumerate(TILES):
        a("ds_write_b128 v11, %s offset:%d" % (vr(core3.accr(ft, tt)), 1024 * tidx(ft, tt)))
        if n in (7, 13): a("s_waitcnt lgkmcnt(4)")
    a("s_waitcnt lgkmcnt(0) vmcnt(0)")
    a.label("%s_cfin" % name)
    a("s_barrier")
    stamp(a, 12)
    a("v_lshlrev_b32 v10, 4, v2")
    a("v_lshrrev_b32 v11, 2, v2")
    a("v_lshlrev_b32 v11, 7, v11")
    a("v_and_b32 v12, 3, v2")
    a("v_lshl_add_u32 v11, v12, 3, v11")
    a("s_mov_b32 s33, 0xbfb8aa3b")
    PT = 16; YR = 64
    for s_ in range(3):
        b = 64 + 4 * s_
        if s_ == 2:
            a("s_cmp_ge_u32 s54, 2")
            a("s_cbranch_scc1 %s_rd" % name)
        a("v_add_u32 v4, s%d, v10" % (b + 2))
        a("v_add_u32 v5, s%d, v11" % (b + 1))
        for q in range(4):
            a("ds_read_b128 %s, v4 offset:%d" % (vr(PT + 16 * s_ + 4 * q), 18432 * q))
        a("ds_read_b64_tr_b16 %s, v5" % vr(YR + 2 * s_, 2))
    a.label("%s_rd" % name)
    T = 104
    for s_ in range(3):
        b = 64 + 4 * s_
        if s_ == 0: a("s_waitcnt lgkmcnt(5)")
        if s_ == 1: a("s_waitcnt lgkmcnt(0)")
        if s_ == 2:
            a("s_cmp_ge_u32 s54, 2")
            a("s_cbranch_scc1 %s_done" % name)
        o = PT + 16 * s_; X = XR + 2 * s_; Y = YR + 2 * s_; S_ = ST + 2 * s_
        for h in (0, 2):
            a("v_pk_add_f32 %s, %s, %s" % (vr(o + h, 2), vr(o + h, 2), vr(o + 4 + h, 2)))
            a("v_pk_add_f32 %s, %s, %s" % (vr(o + 8 + h, 2), vr(o + 8 + h, 2), vr(o + 12 + h, 2)))
        for h in (0, 2):
            a("v_pk_add_f32 %s, %s, %s" % (vr(o + h, 2), vr(o + h, 2), vr(o + 8 + h, 2)))
        rnd_pair(a, T + 20, o, o + 1); rnd_pair(a, T + 21, o + 2, o + 3)
        for r in range(4): a("v_mul_f32 v%d, s33, v%d" % (T + r, o + r))
        for r in range(4): a("v_exp_f32 v%d, v%d" % (T + r, T + r))
        a("v_lshlrev_b32 v%d, 16, v%d" % (T + 4, X)); a("v_and_b32 v%d, 0xffff0000, v%d" % (T + 5, X))
        a("v_lshlrev_b32 v%d, 16, v%d" % (T + 6, X + 1)); a("v_and_b32 v%d, 0xffff0000, v%d" % (T + 7, X + 1))
        for r in range(4): a("v_add_f32 v%d, 1.0, v%d" % (T + r, T + r))
        for r in range(4): a("v_rcp_f32 v%d, v%d" % (T + r, T + r))
        for r in range(4): a("v_sub_f32 v%d, v%d, v%d" % (T + 12 + r, T + 4 + r, S_))
        a("v_lshlrev_b32 v%d, 16, v%d" % (T + 8, Y)); a("v_and_b32 v%d, 0xffff0000, v%d" % (T + 9, Y))
        a("v_lshlrev_b32 v%d, 16, v%d" % (T + 10, Y + 1)); a("v_and_b32 v%d, 0xffff0000, v%d" % (T + 11, Y + 1))
        for r in range(4): a("v_mul_f32 v%d, v%d, v%d" % (o + r, o + r, T + r))
        rnd_pair(a, T + 20, T + 12, T + 13); rnd_pair(a, T + 21, T + 14, T + 15)
        rnd_pair(a, T + 22, o, o + 1); rnd_pair(a, T + 23, o + 2, o + 3)
        for r in range(4): a("v_mul_f32 v%d, v%d, v%d" % (T + 12 + r, T + 12 + r, S_ + 1))
        rnd_pair(a, T + 20, T + 12, T + 13); rnd_pair(a, T + 21, T + 14, T + 15)
        for r in range(4): a("v_mul_f32 v%d, v%d, v%d" % (T + 12 + r, T + 12 + r, T + 8 + r))
        rnd_pair(a, T + 20, T + 12, T + 13); rnd_pair(a, T + 21, T + 14, T + 15)
        for r in range(4): a("v_mul_f32 v%d, v%d, v%d" % (T + 12 + r, T + 12 + r, o + r))
        rnd_pair(a, T + 20, T + 12, T + 13); rnd_pair(a, T + 21, T + 14, T + 15)
        for r in range(4): a("v_add_f32 v%d, v%d, v%d" % (T + 12 + r, T + 12 + r, T + 4 + r))
        a("v_cvt_pk_bf16_f32 v%d, v%d, v%d" % (X, T + 12, T + 13))
        a("v_cvt_pk_bf16_f32 v%d, v%d, v%d" % (X + 1, T + 14, T + 15))
        a("buffer_store_dwordx2 %s, v13, s[28:31], s%d offen" % (vr(X, 2), b))
    a.label("%s_done" % name)
    stamp(a, 13)
    G.stamp_rt(a, 1)
    a.label("%s_end" % name)
    a("s_endpgm")
    return a.text(), kernel_desc(name, 256, 256), (name, 256, 512, YOFF + 10240)

def gen_kf10(name="k1_kernel", R=4):
    a = Asm()
    RB = 4096; SLOT = 34816; TREG = 16384; FS = 288; RST = 0
    LDSB = RB + R * SLOT
    LC = 2048
    ZFLG = 0x2D00000; PFL = 128
    C0 = 77824; CW = 151552; CSL = 36864; YOFF = 151552; CTREG = 16384; CFS = 160
    from gen3 import emit_conv_loads, emit_conv_job, CJ_SIZE
    def capture(f, *args):
        lb = len(a.lines); f(*args); out = a.lines[lb:]; del a.lines[lb:]; return out

    def c_common():
        a("s_load_dwordx2 s[4:5], s[0:1], 0")
        a("s_load_dwordx2 s[16:17], s[0:1], 88")
        a("s_and_b32 s20, s2, 7")
        a("s_lshr_b32 s21, s2, 3")
        a("s_and_b32 s22, s20, 3")
        a("s_lshl_b32 s22, s22, 3")
        a("s_and_b32 s23, s21, 7")
        a("s_add_u32 s22, s22, s23")
        a("s_lshr_b32 s23, s20, 2")
        a("s_lshl_b32 s23, s23, 2")
        a("s_lshr_b32 s24, s21, 3")
        a("s_add_u32 s23, s23, s24")
        a("s_lshr_b32 s52, s23, 1")
        a("s_and_b32 s53, s23, 1")
        a("s_lshl_b32 s54, s98, 2")
        a("s_add_u32 s54, s54, s3")
        a("s_waitcnt lgkmcnt(0)")
        srd(a, 8, 4, 2048 * 576 * 2)
        srd(a, 28, 16, 2048 * 576 * 2)
    XR = 200; ST = 208
    def fin_loads():
        a("v_and_b32 v3, 15, v2")
        a("v_lshrrev_b32 v10, 4, v2")
        a("v_mul_u32_u24 v13, 1152, v3")
        a("v_lshl_add_u32 v13, v10, 3, v13")
        a("v_lshlrev_b32 v12, 3, v3")
        for s_ in range(3):
            if s_ == 2:
                a("s_cmp_ge_u32 s54, 2")
                a("s_cbranch_scc1 %s_fl%d" % (name, fin_loads.cnt))
            b = 64 + 4 * s_
            if s_ < 2:
                a("s_add_u32 s36, s54, %d" % (8 * s_))
                a("s_lshr_b32 s37, s36, 2")
                a("s_and_b32 s38, s36, 3")
                a("s_mul_i32 s39, s53, 160")
                a("s_lshl_b32 s40, s37, 5")
                a("s_add_u32 s39, s39, s40")
            else:
                a("s_add_u32 s36, s54, 16")
                a("s_mov_b32 s37, 4")
                a("s_mov_b32 s38, s54")
                a("s_mov_b32 s39, 128")
            a("s_lshl_b32 s40, s53, 1")
            a("s_add_u32 s38, s38, s40")
            a("s_and_b32 s38, s38, 3")
            a("s_lshl_b32 s40, s22, 2")
            a("s_add_u32 s40, s40, s38")
            a("s_lshl_b32 s40, s40, 4")
            a("s_mul_i32 s%d, s40, 1152" % b)
            a("s_add_u32 s%d, s%d, s39" % (b, b))
            a("s_mul_i32 s39, s52, 288")
            a("s_add_u32 s%d, s%d, s39" % (b, b))
            a("s_lshl_b32 s%d, s37, 11" % (b + 1))
            a("s_lshl_b32 s39, s38, 5")
            a("s_add_u32 s%d, s%d, s39" % (b + 1, b + 1))
            a("s_add_u32 s%d, s%d, %d" % (b + 1, b + 1, YOFF))
            a("s_lshl_b32 s%d, s36, 10" % (b + 2))
            a("s_add_u32 s%d, s%d, %d" % (b + 2, b + 2, C0))
            a("s_lshl_b32 s40, s40, 3")
            a("s_add_u32 s40, s40, 0x%x" % STATS1)
            a("buffer_load_dwordx2 %s, v13, s[8:11], s%d offen" % (vr(XR + 2 * s_, 2), b))
            a("buffer_load_dwordx2 %s, v12, s[12:15], s40 offen sc1" % vr(ST + 2 * s_, 2))
        a.label("%s_fl%d" % (name, fin_loads.cnt))
        fin_loads.cnt += 1
    fin_loads.cnt = 0
    kernel_begin(a, name)
    a("s_load_dwordx2 s[80:81], s[0:1], 0")
    a("s_load_dwordx2 s[4:5], s[0:1], 56")
    a("s_load_dwordx2 s[6:7], s[0:1], 104")
    a("s_load_dwordx2 s[18:19], s[0:1], 96")
    a("s_cmp_ge_u32 s2, 256")
    a("s_cbranch_scc1 %s_end" % name)
    a("v_lshrrev_b32 v1, 6, v0")
    a("v_and_b32 v2, 63, v0")
    a("v_readfirstlane_b32 s3, v1")
    G2.tile_ij(a)
    a("s_lshr_b32 s98, s3, 2")
    a("s_mov_b32 s54x, 0".replace("s54x", "s99"))
    a("s_and_b32 s3, s3, 3")
    a("s_lshr_b32 s24, s3, 1")
    a("s_and_b32 s25, s3, 1")
    a("v_and_b32 v3, 15, v2")
    VT = 204; VF = 208
    def loader_setup():
        a("v_lshrrev_b32 v5, 3, v2")
        a("v_and_b32 v4, 7, v2")
        a("s_lshl_b32 s36, s3, 5")
        a("v_add_u32 v5, s36, v5")
        a("v_lshrrev_b32 v7, 4, v2")
        a("v_xor_b32 v7, v7, v4")
        a("v_mul_u32_u24 v6, 1152, v5")
        a("v_lshl_add_u32 v%d, v7, 4, v6" % VT)
        a("v_xor_b32 v%d, 64, v%d" % (VT + 1, VT))
        a("v_add_u32 v%d, %d, v%d" % (VT + 1, 9216 - 1024, VT + 1))
        a("v_add_u32 v%d, %d, v%d" % (VT + 2, 2 * (9216 - 1024), VT))
        a("v_add_u32 v%d, %d, v%d" % (VT + 3, 2 * (9216 - 1024), VT + 1))
        a("s_lshl_b32 s84, s3, 12")
        a("s_add_u32 s84, s84, %d" % RB)
        a("s_lshl_b32 s85, s3, 9")
        a("s_add_u32 s85, s85, %d" % (RB + TREG + 16384))
    def loader_setup2():
        for n in range(5):
            if n < 4:
                a("s_lshl_b32 s36, s3, 8")
                a("s_add_u32 s36, s36, %d" % (64 * n))
            else:
                a("s_lshl_b32 s36, s3, 5")
                a("s_add_u32 s36, s36, 1024")
            a("v_add_u32 v6, s36, v2")
            a("v_mul_u32_u24 v7, 3641, v6")
            a("v_lshrrev_b32 v7, 16, v7")
            a("v_mul_u32_u24 v8, 18, v7")
            a("v_sub_u32 v8, v6, v8")
            a("v_and_b32 v9, 35, v7")
            a("v_bfe_u32 v6, v7, 2, 2")
            a("v_lshl_add_u32 v9, v6, 3, v9")
            a("v_bfe_u32 v6, v7, 4, 1")
            a("v_lshl_add_u32 v9, v6, 2, v9")
            a("v_mul_u32_u24 v9, 9216, v9")
            a("v_lshl_add_u32 v%d, v8, 4, v9" % (VF + n))
            if 0 < n < 4: a("v_subrev_u32 v%d, %d, v%d" % (VF + n, 1024 * n, VF + n))
    def issueT(g):
        st = g % 9
        a("s_add_u32 s86, s84, %d" % ((g % R) * SLOT))
        a("s_mov_b32 m0, s86")
        a("s_add_u32 s87, s82, %d" % (128 * st))
        for n in range(4):
            a("buffer_load_dwordx4 v%d, s[28:31], s87 offen offset:%d lds" % (VT + n, 1024 * n))
    def issueF(g):
        st = g % 9
        a("s_add_u32 s86, s84, %d" % ((g % R) * SLOT + TREG))
        a("s_mov_b32 m0, s86")
        a("s_add_u32 s87, s83, %d" % (64 * 9216 * st + (4608 if g < 9 else 0)))
        for n in range(4):
            a("buffer_load_dwordx4 v%d, s[8:11], s87 offen offset:%d lds" % (VF + n, 1024 * n))
        a("s_add_u32 s86, s85, %d" % ((g % R) * SLOT))
        a("s_mov_b32 m0, s86")
        a("s_mov_b64 exec, 0xffffffff")
        a("buffer_load_dwordx4 v%d, s[8:11], s87 offen lds" % (VF + 4))
        a("s_mov_b64 exec, -1")
    def srds_main():
        srd(a, 28, 80, 2048 * 576 * 2)
        srd(a, 8, 4, 576 * 4608 * 2)
        srd(a, 12, 6, WS_BYTES)
        srd(a, 60, 18, 256)
        a("s_mul_i32 s82, s22, %d" % (128 * 1152))
        a("s_mul_i32 s83, s23, 288")
    ACC = 128; FB = [16, 52]; CS = 216; ONE = 236
    vTa = [4, 5]; vTb = [6, 7]; vF = 8; vFh = 9
    bTa = [88, 89]; bTb = [90, 91]; bF = 92; bFh = 93
    def mma_setup():
        a("v_lshrrev_b32 v10, 4, v2")
        a("v_lshrrev_b32 v11, 1, v3")
        a("v_xor_b32 v10, v10, v11")
        a("v_lshlrev_b32 v10, 4, v10")
        a("v_lshl_add_u32 v10, v3, 7, v10")
        a("s_lshl_b32 s26, s24, 13")
        a("s_add_u32 s26, s26, %d" % RB)
        a("v_add_u32 v10, s26, v10")
        a("s_lshl_b32 s26, s25, 12")
        a("v_add_u32 v%d, s26, v10" % bTa[0])
        a("s_xor_b32 s26, s26, 4096")
        a("v_add_u32 v%d, s26, v10" % bTb[0])
        a("v_xor_b32 v%d, 64, v%d" % (bTa[1], bTa[0]))
        a("v_xor_b32 v%d, 64, v%d" % (bTb[1], bTb[0]))
        a("v_lshrrev_b32 v10, 2, v2")
        a("v_mul_u32_u24 v10, %d, v10" % FS)
        a("v_and_b32 v11, 3, v2")
        a("v_lshl_add_u32 v10, v11, 3, v10")
        a("v_add_u32 v10, %d, v10" % (RB + TREG))
        a("s_mul_i32 s26, s25, 160")
        a("v_add_u32 v%d, s26, v10" % bF)
        a("v_add_u32 v%d, 128, v10" % bFh)
        for r in range(ACC, ACC + 72): a("v_mov_b32 v%d, 0" % r)
        for r in range(CS, CS + 20): a("v_mov_b32 v%d, 0" % r)
        for r in range(ONE, ONE + 4): a("v_mov_b32 v%d, 0x3f803f80" % r)
    def mma_addr(slot):
        a("s_mov_b32 s27, %d" % (slot * SLOT))
        for d, s_ in ((vTa[0], bTa[0]), (vTb[0], bTb[0]), (vTa[1], bTa[1]), (vTb[1], bTb[1]), (vF, bF), (vFh, bFh)):
            a("v_add_u32 v%d, s27, v%d" % (d, s_))
    core = G.Core(a, ACC, FB[0], FB[1], FS, TREG, vTa, vTb, vF, vFh)
    trk = core.trk
    a("s_cmp_eq_u32 s98, 0")
    a("s_cbranch_scc1 %s_A0" % name)
    a("s_setprio 3")
    loader_setup()
    a("s_waitcnt lgkmcnt(0)")
    srds_main()
    vm = VmTracker(a)
    def issue(g, vmx):
        issueT(g); issueF(g); vmx.issue("S%d" % g, 9)
    issueT(0)
    loader_setup2()
    issueF(0); vm.issue("S0", 9)
    issue(1, vm); issue(2, vm); issue(3, vm)
    a("s_add_u32 s3, s3, 4"); stamp_setup(a, 1); stamp(a, 0); a("s_sub_u32 s3, s3, 4")
    mma_setup()
    RA = 96; XB = 112
    for r in range(RA, RA + 16): a("v_mov_b32 v%d, 0" % r)
    a("v_lshrrev_b32 v10, 4, v2")
    a("v_lshrrev_b32 v11, 1, v3")
    a("v_xor_b32 v10, v10, v11")
    a("v_lshlrev_b32 v10, 4, v10")
    a("v_lshl_add_u32 v10, v3, 7, v10")
    a("v_add_u32 v12, s84, v10")
    a("v_xor_b32 v13, 64, v12")
    def rs_rd(g):
        a("v_add_u32 v10, %d, v12" % ((g % R) * SLOT))
        a("v_add_u32 v11, %d, v13" % ((g % R) * SLOT))
        for h in range(2):
            for n in range(2):
                a("ds_read_b128 %s, v%d offset:%d" % (vr(XB + 8 * h + 4 * n), 10 + h, 2048 * n))
    def rs_do():
        for h in range(2):
            for n in range(2):
                x = XB + 8 * h + 4 * n
                a("v_mfma_f32_16x16x32_bf16 %s, %s, %s, %s" % (vr(RA + 4 * n), vr(ONE), vr(x), vr(RA + 4 * n)))
                a("v_mfma_f32_16x16x32_bf16 %s, %s, %s, %s" % (vr(RA + 8 + 4 * n), vr(x), vr(x), vr(RA + 8 + 4 * n)))
    def interleave(dma, comp, vmx=None):
        groups = []; cur = []
        for l in dma:
            cur.append(l)
            if "buffer_load" in l and not any("exec, 0xffffffff" in x for x in cur[-2:]):
                groups.append(cur); cur = []
            elif "exec, -1" in l:
                groups.append(cur); cur = []
        if cur: groups.append(cur)
        ns = max(1, len(groups))
        per = (len(comp) + ns - 1) // ns
        for g in groups:
            a.lines.extend(g)
            a.lines.extend(comp[:per]); comp = comp[per:]
        a.lines.extend(comp)
    vm.wait(["S0"])
    a("s_barrier")
    stamp(a, 1)
    rs_rd(0)
    vm.wait(["S1"])
    a("s_barrier")
    for k in range(9):
        a("s_waitcnt lgkmcnt(0)")
        dma = capture(lambda: (issueT(k + 3), issueF(k + 3))) if k >= 1 else []
        interleave(dma, capture(rs_do))
        if k >= 1: vm.issue("S%d" % (k + 3), 9)
        if k < 8:
            rs_rd(k + 1)
        else:
            a("s_nop 7")
            a("v_lshrrev_b32 v10, 4, v2")
            a("v_lshrrev_b32 v11, 2, v3")
            a("v_and_b32 v12, 3, v3")
            for n in range(2):
                G_ = RA + 8 + 4 * n
                for r in range(1, 4):
                    a("v_cmp_eq_u32 vcc, %d, v12" % r)
                    a("s_nop 1")
                    a("v_cndmask_b32 v%d, v%d, v%d, vcc" % (G_, G_, G_ + r))
            ML = 112
            for n in range(2):
                emit_ln_finish(a, RA + 4 * n, RA + 8 + 4 * n, 576, ML + 2 * n, ML + 2 * n + 1, 120)
                a("v_mov_b32 v%d, v%d" % (117 + 2 * n, ML + 2 * n + 1))
                a("v_sub_f32 v%d, 0, v%d" % (116 + 2 * n, ML + 2 * n))
            a("s_lshl_b32 s35, s3, 8")
            a("v_lshlrev_b32 v13, 3, v3")
            a("v_add_u32 v12, s35, v13")
            a("v_cmp_eq_u32 vcc, v10, v11")
            a("s_and_saveexec_b64 s[36:37], vcc")
            for n in range(2):
                a("ds_write_b64 v12, %s offset:%d" % (vr(116 + 2 * n, 2), RST + 128 * n))
            a("s_mov_b64 exec, s[36:37]")
            a("s_cmp_lg_u32 s23, 0")
            a("s_cbranch_scc1 %s_nost1" % name)
            a("s_lshl_b32 s35, s22, 7")
            a("s_lshl_b32 s36, s3, 5")
            a("s_add_u32 s35, s35, s36")
            a("s_lshl_b32 s35, s35, 3")
            a("s_add_u32 s35, s35, 0x%x" % STATS1)
            a("v_mov_b32 v11, 0x7ffffff0")
            a("v_cndmask_b32 v13, v11, v13, vcc")
            for n in range(2):
                a("buffer_store_dwordx2 %s, v13, s[12:15], s35 offen offset:%d sc1" % (vr(ML + 2 * n, 2), 128 * n))
            a.label("%s_nost1" % name)
            mma_addr(9 % R)
            a("s_mov_b32 s33, 0")
            a("s_setprio 0")
        vm.wait(["S%d" % (k + 2)], "lgkmcnt(0)" if k == 8 else "")
        if k < 8: a("s_barrier")
    a("s_branch %s_mma" % name)
    a.label("%s_A0" % name)
    emit_code_prefetch(a, name)
    a("s_load_dwordx4 s[64:67], s[0:1], 8")
    a("s_load_dwordx2 s[76:77], s[0:1], 24")
    a("s_load_dwordx2 s[78:79], s[0:1], 64")
    mma_setup()
    loader_setup(); loader_setup2()
    a("s_waitcnt lgkmcnt(0)")
    srds_main()
    srd(a, 68, 66, 2048 * 576 * 2)
    a("s_mov_b32 s88, s64"); a("s_mov_b32 s89, s65")
    srd(a, 64, 88, 2048 * 576 * 2)
    srd(a, 72, 76, 576 * 8)
    stamp_setup(a, 1); stamp(a, 0)
    def gran_addr():
        a("v_lshrrev_b32 v10, 4, v2")
        a("s_lshl_b32 s36, s25, 1")
        a("v_add_u32 v11, s36, v10")
        a("v_and_b32 v11, 3, v11")
        a("v_lshl_add_u32 v11, v11, 4, v3")
        a("v_lshlrev_b32 v94, 8, v11")
        a("s_lshl_b32 s59, s22, 7")
        a("s_lshl_b32 s36, s24, 6")
        a("s_add_u32 s59, s59, s36")
        a("s_lshl_b32 s59, s59, 8")
        a("s_add_u32 s59, s59, 0x%x" % STATS2)
        a("s_lshl_b32 s36, s23, 1")
        a("s_add_u32 s36, s36, s25")
        a("s_lshl_b32 s36, s36, 3")
        a("s_add_u32 s58, s36, s59")
    gran_addr()
    a("v_mov_b32 v12, 0"); a("v_mov_b32 v13, 0x80000000")
    a("buffer_store_dwordx2 v[12:13], v94, s[12:15], s58 offen sc1")
    a("s_lshl_b32 s36, s22, 4")
    a("s_add_u32 s36, s36, s23")
    a("s_lshl_b32 s36, s36, 8")
    a("s_add_u32 s97, s36, 0x%x" % ZFLG)
    a("v_mov_b32 v10, %d" % LC)
    a("v_mov_b32 v12, 0"); a("v_mov_b32 v13, 0")
    a("s_mov_b64 exec, 1")
    a("buffer_store_dword v12, v12, s[12:15], s97 offen sc1")
    a("buffer_store_dword v12, v12, s[12:15], s97 offen offset:%d sc1" % PFL)
    a("s_mov_b64 exec, -1")
    a("ds_write_b64 v10, v[12:13]")
    a("ds_write_b64 v10, v[12:13] offset:8")
    a("ds_write_b64 v10, v[12:13] offset:16")
    a("ds_write_b64 v10, v[12:13] offset:24")
    mma_addr(0)
    a("s_mov_b32 s33, 0")
    a("s_waitcnt lgkmcnt(0)")
    a("s_barrier")
    stamp(a, 1)
    a.label("%s_mma" % name)
    core.prime(0, core.reads(0, 0))
    trk.drain()
    nocs = [False]
    def mfmas(buf):
        L = []
        for ft in range(5):
            A = core.F(buf, ft)
            for tt in range(4 if ft < 4 else 2):
                c = core.accr(ft, tt); B = core.T(buf, tt)
                L.append(("v_mfma_f32_16x16x32_bf16 %s, %s, %s, %s" % (vr(c), vr(A), vr(B), vr(c)), list(range(A, A + 4)) + list(range(B, B + 4))))
            if not nocs[0]: L.append(("v_mfma_f32_16x16x32_bf16 %s, %s, %s, %s" % (vr(CS + 4 * ft), vr(A), vr(ONE), vr(CS + 4 * ft)), list(range(A, A + 4))))
        return L
    def phase(buf, pend):
        for (m, regs) in mfmas(buf):
            trk.need(regs)
            a(m)
            while pend:
                k, t = pend.pop(0)
                if k == "x":
                    a(t)
                    if t.startswith("s_"): continue
                else:
                    a(t[0]); trk.issue(t[1])
                break
        for k, t in pend:
            if k == "x": a(t)
            else: a(t[0]); trk.issue(t[1])
    def iteration(vw=True):
        if vw: a("s_waitcnt vmcnt(0)")
        a("s_barrier")
        rd = [("r", t) for t in core.reads(1, 1)]
        upd = ["s_add_u32 s27, s27, %d" % SLOT, "s_cmp_eq_u32 s27, %d" % (R * SLOT), "s_cselect_b32 s27, 0, s27"]
        tail = ["v_add_u32 v%d, s27, v%d" % (d, s_) for d, s_ in ((vTa[0], bTa[0]), (vF, bF), (vTb[0], bTb[0]), (vFh, bFh))]
        phase(0, rd[:1] + [("x", u) for u in upd] + rd[1:] + [("x", u) for u in tail])
        rd = [("r", t) for t in core.reads(0, 0)]
        tail = ["v_add_u32 v%d, s27, v%d" % (d, s_) for d, s_ in ((vTa[1], bTa[1]), (vTb[1], bTb[1]))] + ["s_add_u32 s33, s33, 1"]
        phase(1, rd + [("x", u) for u in tail])
    a.label("%s_cloop" % name)
    lb = len(a.lines); iteration(); st = copy.deepcopy(trk.out); del a.lines[lb:]; trk.out = copy.deepcopy(st)
    iteration()
    assert [sorted(x) for x in trk.out] == [sorted(x) for x in st]
    a("s_cmp_lt_u32 s33, 9")
    a("s_cbranch_scc1 %s_cloop" % name)
    trk.drain()
    stamp(a, 2)
    MR = 100; T = 72; ZP = 16
    def epi_in():
        gelu_consts(a)
        a("s_lshl_b32 s36, s24, 9")
        a("s_lshl_b32 s37, s25, 8")
        a("s_add_u32 s38, s36, s37")
        a("s_xor_b32 s37, s37, 256")
        a("s_add_u32 s39, s36, s37")
        a("v_lshlrev_b32 v10, 3, v3")
        a("v_add_u32 v11, s38, v10")
        a("ds_read_b64 %s, v11 offset:%d" % (vr(MR, 2), RST))
        a("ds_read_b64 %s, v11 offset:%d" % (vr(MR + 2, 2), RST + 128))
        a("v_add_u32 v11, s39, v10")
        a("ds_read_b64 %s, v11 offset:%d" % (vr(MR + 4, 2), RST))
        a("ds_read_b64 %s, v11 offset:%d" % (vr(MR + 6, 2), RST + 128))
        a("s_waitcnt lgkmcnt(0)")
    S = [108, 110, 52, 54]; Q = [109, 111, 53, 55]
    def gelu_ft(ft, stats):
        tts = range(4 if ft < 4 else 2)
        a("s_call_b64 s[34:35], %s_gsub%d" % (name, ft))
        if stats:
            for d in range(2):
                for tt in tts:
                    p = ZP + 2 * tidx(ft, tt) + d
                    a("v_dot2_f32_bf16 v%d, v%d, v%d, v%d" % (S[tt], p, ONE, S[tt]))
                    a("v_dot2_f32_bf16 v%d, v%d, v%d, v%d" % (Q[tt], p, p, Q[tt]))
    a("s_cmp_eq_u32 s98, 0")
    a("s_cbranch_scc1 %s_A1" % name)
    a("s_barrier")
    a("s_load_dwordx4 s[64:67], s[0:1], 8")
    a("s_load_dwordx2 s[76:77], s[0:1], 24")
    a("s_load_dwordx2 s[94:95], s[0:1], 80")
    a("s_load_dwordx2 s[92:93], s[0:1], 72")
    epi_in()
    srd(a, 68, 66, 2048 * 576 * 2)
    a("s_mov_b32 s88, s64"); a("s_mov_b32 s89, s65")
    srd(a, 64, 88, 2048 * 576 * 2)
    srd(a, 72, 76, 576 * 8)
    srd(a, 76, 94, 2304 * 576 * 2)
    srd(a, 28, 92, 2048 * 2)
    a("v_and_b32 v0, 255, v0")
    a("s_mov_b32 s41, s2")
    KDB = 240
    emit_kv_loads(a, 112, 240, 248, 252, 253)
    a("s_cmp_ge_u32 s2, 32")
    a("s_cbranch_scc1 %s_kvp" % name)
    a("s_add_u32 s41, s2, 256")
    emit_kv_loads(a, 52, 63, 124, 71, 123)
    a.label("%s_kvp" % name)
    for ft in range(5): gelu_ft(ft, False)
    Z1R = 200; BI = 236
    for r_ in range(36): a("v_mov_b32 v%d, v%d" % (Z1R + r_, ZP + r_))
    stamp(a, 3)
    a("s_waitcnt vmcnt(0)")
    for n in range(11): a("v_mov_b32 v%d, v%d" % (16 + n, 112 + n))
    for n in range(8): a("v_mov_b32 v%d, v%d" % (32 + n, 240 + n))
    for n in range(4): a("v_mov_b32 v%d, v%d" % (44 + n, 248 + n))
    for r_ in range(6): a("v_mov_b32 v%d, v%d" % (240 + r_, 88 + r_))
    for r_ in range(20): a("v_mov_b32 v%d, v%d" % (128 + r_, 52 + r_))
    for r_ in range(5): a("v_mov_b32 v%d, v%d" % (148 + r_, 123 + r_))
    a("v_mov_b32 v56, v252"); a("v_mov_b32 v57, v253")
    a.label("%s_kvb" % name)
    emit_kv_compute(a, wait=False, store=False)
    a("s_mov_b32 s39, 0x%x" % KVT)
    a("buffer_store_dwordx4 v[120:123], v12, s[12:15], s39 offen sc1")
    a("buffer_store_dwordx4 v[124:127], v13, s[12:15], s39 offen sc1")
    a("s_cmp_lt_u32 s41, 256")
    a("s_cbranch_scc1 %s_kvbd" % name)
    a("s_mov_b32 s41, 0")
    for n in range(11): a("v_mov_b32 v%d, v%d" % (16 + n, 128 + n))
    for n in range(8): a("v_mov_b32 v%d, v%d" % (32 + n, 139 + n))
    for n in range(4): a("v_mov_b32 v%d, v%d" % (44 + n, 149 + n))
    a("v_mov_b32 v56, v147"); a("v_mov_b32 v57, v148")
    a("s_branch %s_kvb" % name)
    a.label("%s_kvbd" % name)
    for r_ in range(6): a("v_mov_b32 v%d, v%d" % (88 + r_, 240 + r_))
    a("s_mov_b32 s42, s2")
    emit_wot_loads(a, 100, 112, 720, 3)
    a("s_lshl_b32 s36, s22, 7")
    a("s_lshl_b32 s37, s24, 6")
    a("s_add_u32 s36, s36, s37")
    a("v_lshlrev_b32 v11, 1, v3")
    a("s_lshl_b32 s37, s25, 6")
    a("s_lshl_b32 s38, s36, 1")
    a("s_add_u32 s39, s38, s37")
    a("s_xor_b32 s37, s37, 64")
    a("s_add_u32 s36, s38, s37")
    a("buffer_load_ushort v96, v11, s[28:31], s39 offen")
    a("buffer_load_ushort v97, v11, s[28:31], s39 offen offset:32")
    a("buffer_load_ushort v98, v11, s[28:31], s36 offen")
    a("buffer_load_ushort v99, v11, s[28:31], s36 offen offset:32")
    for r in range(ACC, ACC + 72): a("v_mov_b32 v%d, 0" % r)
    a("v_lshrrev_b32 v10, 2, v2")
    a("v_lshlrev_b32 v10, 5, v10")
    a("v_and_b32 v11, 3, v2")
    a("v_lshl_add_u32 v10, v11, 3, v10")
    a("v_add_u32 v10, %d, v10" % (RB + TREG))
    a("s_mul_i32 s26, s25, 10240")
    a("v_add_u32 v%d, s26, v10" % bF)
    a("v_add_u32 v%d, 8192, v10" % bFh)
    core.FS = 32; core.FT = 2048
    mma_addr(0)
    a("s_mov_b32 s33, 0")
    stamp(a, 4)
    a("s_barrier")
    stamp(a, 5)
    core.prime(0, core.reads(0, 0))
    trk.drain()
    nocs[0] = True
    a.label("%s_gloop" % name)
    lb = len(a.lines); iteration(False); st = copy.deepcopy(trk.out); del a.lines[lb:]; trk.out = copy.deepcopy(st)
    iteration(False)
    assert [sorted(x) for x in trk.out] == [sorted(x) for x in st]
    a("s_cmp_lg_u32 s33, 3")
    a("s_cbranch_scc1 %s_ghk0" % name)
    a("s_waitcnt vmcnt(0)")
    for n in range(3):
        a("buffer_store_dwordx4 %s, v%d, s[12:15], s40 offen sc1" % (vr(100 + 4 * n), 112 + n))
    for tt in range(4): a("v_lshlrev_b32 v%d, 16, v%d" % (BI + 2 * tt, 96 + tt))
    a.label("%s_ghk0" % name)
    a("s_cmp_lg_u32 s33, 6")
    a("s_cbranch_scc1 %s_ghk" % name)
    a("s_waitcnt vmcnt(0)")
    a("v_mov_b32 v10, %d" % (LC + 8))
    a("v_mov_b32 v11, 1")
    a("s_mov_b64 exec, 1")
    a("ds_add_rtn_u32 v12, v10, v11")
    a("s_waitcnt lgkmcnt(0)")
    a("v_readfirstlane_b32 s36, v12")
    a("s_cmp_lg_u32 s36, 3")
    a("s_cbranch_scc1 %s_nokvs" % name)
    a("s_and_b32 s36, s2, 15")
    a("s_lshl_b32 s36, s36, 2")
    a("s_add_u32 s36, s36, 128")
    a("v_mov_b32 v10, s36")
    a("buffer_atomic_add v11, v10, s[60:63], 0 offen sc1")
    a.label("%s_nokvs" % name)
    a("s_mov_b64 exec, -1")
    a.label("%s_ghk" % name)
    a("s_cmp_lg_u32 s33, 24")
    a("s_cbranch_scc1 %s_ghk2" % name)
    a("v_lshlrev_b32 v10, 2, v3")
    a("buffer_load_dword v254, v10, s[60:63], 0 offen offset:128 sc1")
    a.label("%s_ghk2" % name)
    a("s_cmp_lt_u32 s33, 32")
    a("s_cbranch_scc1 %s_gloop" % name)
    trk.drain()
    stamp(a, 6)
    G3.emit_k2_epilogue2(a, core, Z1R, BI, " sc1")
    stamp(a, 7)
    a("s_setprio 3")
    a("s_lshl_b32 s36, s22, 4")
    a("s_add_u32 s36, s36, s23")
    a("s_lshl_b32 s36, s36, 8")
    a("s_add_u32 s97, s36, 0x%x" % (ZFLG + PFL))
    c_common()
    a("v_lshlrev_b32 v14, 4, v2")
    a("s_mul_i32 s26, s22, %d" % (36 * 8192))
    a("s_lshl_b32 s24, s3, 12")
    a("s_add_u32 s26, s26, s24")
    a("s_add_u32 s26, s26, 0x%x" % PIMG)
    a("s_mul_i32 s27, s23, %d" % (18 * 20480))
    a("s_mul_i32 s25, s3, 5120")
    a("s_add_u32 s27, s27, s25")
    a("s_add_u32 s27, s27, 0x%x" % WOT)
    a("s_add_u32 s25, s25, %d" % CTREG)
    a("v_and_b32 v28, 15, v2")
    a("v_lshlrev_b32 v30, 2, v28")
    a("v_mov_b32 v26, %d" % LC)
    a("v_mov_b32 v27, 1")
    a("s_waitcnt vmcnt(0)")
    a("v_mov_b32 v31, v254")
    a("s_mov_b64 exec, 1")
    a("ds_add_rtn_u32 v29, v26, v27 offset:16")
    a("s_waitcnt lgkmcnt(0)")
    a("v_readfirstlane_b32 s36, v29")
    a("s_cmp_lg_u32 s36, 3")
    a("s_cbranch_scc1 %s_nops" % name)
    a("v_mov_b32 v29, 0")
    a("buffer_store_dword v27, v29, s[12:15], s97 offen sc1")
    a.label("%s_nops" % name)
    a("s_mov_b64 exec, -1")
    a("s_mov_b32 s34, 0")
    a.label("%s_cw" % name)
    a("ds_read_b32 v29, v26 offset:16")
    a("s_add_u32 s34, s34, 1")
    a("s_waitcnt lgkmcnt(0)")
    a("v_readfirstlane_b32 s36, v29")
    a("s_cmp_gt_u32 s34, %d" % (SPIN_MAX * 20))
    a("s_cbranch_scc1 %s_cwx" % name)
    a("s_cmp_ge_u32 s36, 4")
    a("s_cbranch_scc1 %s_cwx" % name)
    a("s_sleep 1")
    a("s_branch %s_cw" % name)
    a.label("%s_cwx" % name)
    a("s_mov_b32 s34, 0")
    a.label("%s_cp" % name)
    a("v_cmp_gt_u32 vcc, 16, v31")
    a("s_add_u32 s34, s34, 1")
    a("s_cmp_gt_u32 s34, %d" % SPIN_MAX)
    a("s_cbranch_scc1 %s_cpx" % name)
    a("s_cbranch_vccz %s_cpx" % name)
    a("s_sleep 32")
    a("buffer_load_dword v31, v30, s[60:63], 0 offen offset:128 sc1")
    a("s_waitcnt vmcnt(0)")
    a("s_branch %s_cp" % name)
    a.label("%s_cpx" % name)
    def cF(off, soff):
        a("s_add_u32 s36, s25, %s" % off)
        a("s_mov_b32 m0, s36")
        a("s_add_u32 s37, %s, 4096" % soff)
        for n in range(4):
            a("buffer_load_dwordx4 v14, s[12:15], %s offen offset:%d sc1 lds" % (soff, n * 1024))
        a("s_add_u32 s36, s36, 4096")
        a("s_mov_b32 m0, s36")
        a("s_nop 0")
        a("buffer_load_dwordx4 v14, s[12:15], s37 offen sc1 lds")
    def cT(off, soff):
        a("s_add_u32 s35, s24, %s" % off)
        a("s_mov_b32 m0, s35")
        a("s_nop 0")
        for n in range(4):
            a("buffer_load_dwordx4 v14, s[12:15], %s offen offset:%d sc1 lds" % (soff, n * 1024))
    a("s_add_u32 s38, s27, 20480")
    cF(str(C0), "s27"); cF(str(C0 + CSL), "s38")
    a("s_mov_b32 s34, 0")
    a("s_cmp_lg_u32 s3, 0")
    a("s_cbranch_scc1 %s_cpl" % name)
    a("v_lshlrev_b32 v28, 8, v28")
    a("s_lshr_b32 s39, s22, 1")
    a("s_lshl_b32 s39, s39, 12")
    a("s_add_u32 s39, s39, 0x%x" % (ZFLG + PFL))
    a.label("%s_cpz" % name)
    a("buffer_load_dword v29, v28, s[12:15], s39 offen sc1")
    a("s_add_u32 s34, s34, 1")
    a("s_waitcnt vmcnt(0)")
    a("v_cmp_ne_u32 vcc, 1, v29")
    a("s_cmp_gt_u32 s34, %d" % SPIN_MAX)
    a("s_cbranch_scc1 %s_cpzx" % name)
    a("s_cbranch_vccz %s_cpzx" % name)
    a("s_sleep 8")
    a("s_branch %s_cpz" % name)
    a.label("%s_cpzx" % name)
    a("ds_write_b32 v26, v27 offset:24")
    a("s_branch %s_cgo" % name)
    a.label("%s_cpl" % name)
    a("ds_read_b32 v29, v26 offset:24")
    a("s_add_u32 s34, s34, 1")
    a("s_waitcnt lgkmcnt(0)")
    a("v_readfirstlane_b32 s36, v29")
    a("s_cmp_gt_u32 s34, %d" % (SPIN_MAX * 20))
    a("s_cbranch_scc1 %s_cgo" % name)
    a("s_cmp_lg_u32 s36, 0")
    a("s_cbranch_scc1 %s_cgo" % name)
    a("s_sleep 2")
    a("s_branch %s_cpl" % name)
    a.label("%s_cgo" % name)
    stamp(a, 8)
    a("s_add_u32 s38, s26, 16384")
    cT(str(C0), "s26"); cT(str(C0 + CSL), "s38")
    a("s_add_u32 s26, s26, 32768")
    a("s_add_u32 s27, s27, 40960")
    a("s_mov_b32 s33, %d" % RB)
    def cissue():
        cT("s33", "s26"); cF("s33", "s27")
        a("s_add_u32 s26, s26, 16384")
        a("s_add_u32 s27, s27, 20480")
        a("s_add_u32 s33, s33, %d" % CSL)
        a("s_cmp_eq_u32 s33, %d" % CW)
        a("s_cselect_b32 s33, %d, s33" % RB)
    a("s_waitcnt vmcnt(4)")
    a("s_barrier")
    cissue(); cissue()
    a("s_waitcnt vmcnt(18)")
    a("s_barrier")
    a("s_mov_b32 s34, 0")
    a.label("%s_clloop" % name)
    cissue()
    a("s_cmp_lg_u32 s34, 11")
    a("s_cbranch_scc1 %s_cl1" % name)
    a("buffer_load_dword v31, v30, s[60:63], 0 offen offset:192 sc1")
    a("s_waitcnt vmcnt(19)")
    a("s_branch %s_cl2" % name)
    a.label("%s_cl1" % name)
    a("s_waitcnt vmcnt(18)")
    a.label("%s_cl2" % name)
    a("s_barrier")
    a("s_add_u32 s34, s34, 1")
    a("s_cmp_lt_u32 s34, 14")
    a("s_cbranch_scc1 %s_clloop" % name)
    a("s_mov_b32 s34, 0")
    a.label("%s_cy" % name)
    a("v_cmp_gt_u32 vcc, 16, v31")
    a("s_add_u32 s34, s34, 1")
    a("s_cmp_gt_u32 s34, %d" % SPIN_MAX)
    a("s_cbranch_scc1 %s_cyx" % name)
    a("s_cbranch_vccz %s_cyx" % name)
    a("s_sleep 32")
    a("buffer_load_dword v31, v30, s[60:63], 0 offen offset:192 sc1")
    a("s_waitcnt vmcnt(0)")
    a("s_branch %s_cy" % name)
    a.label("%s_cyx" % name)
    a("v_lshrrev_b32 v3, 3, v2")
    a("v_and_b32 v4, 7, v2")
    a("v_lshlrev_b32 v4, 4, v4")
    a("s_mul_i32 s33, s52, 144")
    a("s_mul_i32 s34, s53, 80")
    a("s_lshl_b32 s35, s22, 7")
    a("s_add_u32 s35, s35, 0x%x" % YT)
    for n in range(3):
        a("s_add_u32 s36, s3, %d" % (4 * n))
        if n == 2: a("s_min_u32 s36, s36, 9")
        a("s_lshl_b32 s37, s36, 3")
        a("s_add_u32 s38, s37, s33")
        if n < 2: a("s_add_u32 s38, s38, s34")
        a("v_add_u32 v5, s38, v3")
        a("v_lshl_add_u32 v5, v5, 12, v4")
        a("s_lshl_b32 s36, s36, 10")
        a("s_add_u32 s36, s36, %d" % YOFF)
        a("s_mov_b32 m0, s36")
        a("s_nop 0")
        a("buffer_load_dwordx4 v5, s[12:15], s35 offen sc1 lds")
    fin_loads()
    a("s_waitcnt vmcnt(%d)" % (9 + 7))
    a("s_barrier")
    a("s_waitcnt vmcnt(7)")
    a("s_barrier")
    a("s_barrier")
    a("s_setprio 0")
    a("s_waitcnt vmcnt(0)")
    a("s_branch %s_cfin" % name)
    a.label("%s_A1" % name)
    a("s_setprio 2")
    vmA = VmTracker(a)
    PB = 132
    def aux_head():
        epi_in()
        for tt in range(4):
            a("v_mov_b32 v%d, 0" % S[tt]); a("v_mov_b32 v%d, 0" % Q[tt])
    def aux_pub():
        a("s_nop 2")
        emit_xg_reduce(a, S + Q, 72)
        a("v_lshrrev_b32 v10, 4, v2")
        for g in range(1, 4):
            a("v_cmp_eq_u32 vcc, %d, v10" % g)
            a("s_nop 1")
            a("v_cndmask_b32 v%d, v%d, v%d, vcc" % (S[0], S[0], S[g]))
            a("v_cndmask_b32 v%d, v%d, v%d, vcc" % (Q[0], Q[0], Q[g]))
        a("v_and_b32 v%d, 0x7fffffff, v%d" % (Q[0], Q[0]))
        a("buffer_store_dwordx2 v[%d:%d], v94, s[12:15], s58 offen sc1" % (S[0], Q[0]))
    chunks = [capture(aux_head) + capture(gelu_ft, 0, True), capture(gelu_ft, 1, True), capture(gelu_ft, 2, True),
              capture(gelu_ft, 3, True), capture(gelu_ft, 4, True) + capture(aux_pub)]
    KD = 172
    for k in range(9, 18):
        a("s_barrier")
        if k == 9:
            a("s_cmp_lg_u32 s3, 0")
            a("s_cbranch_scc1 %s_nosig" % name)
            a("v_mov_b32 v10, 1")
            a("s_lshl_b32 s36, s22, 2")
            a("v_mov_b32 v11, s36")
            a("s_mov_b64 exec, 1")
            a("buffer_atomic_add v10, v11, s[60:63], 0 offen sc1")
            a("s_mov_b64 exec, -1")
            a.label("%s_nosig" % name)
        g = k + 3
        dma = capture(lambda: (issueT(g), issueF(g))) if g < 18 else []
        comp = chunks[k - 9] if k - 9 < len(chunks) else []
        a.lines.extend(dma); a.lines.extend(comp)
        if k == 13: vmA.issue("pub", 1)
        if g < 18: vmA.issue("S%d" % g, 9)
        if k == 14:
            srd(a, 92, 78, 2048 * 2048 * 2)
            a("v_lshrrev_b32 v10, 4, v2")
            a("v_lshlrev_b32 v10, 12, v10")
            a("v_lshl_add_u32 v10, v3, 4, v10")
            a("s_lshl_b32 s40, s22, 7")
            a("s_lshl_b32 s36, s3, 5")
            a("s_add_u32 s40, s40, s36")
            a("s_lshl_b32 s40, s40, 12")
            a("s_lshl_b32 s36, s23, 8")
            a("s_add_u32 s40, s40, s36")
            for n in range(8):
                a("buffer_load_dwordx4 v[200:203], v10, s[92:95], s40 offen")
                if n < 7: a("s_add_u32 s40, s40, 16384")
            vmA.issue("wp", 8)
            a("s_lshl_b32 s36, s22, 2")
            a("v_mov_b32 v199, s36")
            a("buffer_load_dword v198, v199, s[60:63], 0 offen sc1"); vmA.issue("cnt", 1)
        if k + 2 < 18 and k + 2 >= 12:
            vmA.wait(["S%d" % (k + 2)])
    a("s_barrier")
    stamp(a, 3)
    a("s_load_dwordx4 s[88:91], s[0:1], 32")
    a("v_lshrrev_b32 v10, 4, v2")
    a("v_lshlrev_b32 v95, 8, v3")
    a("v_lshl_add_u32 v95, v10, 6, v95")
    a("s_lshl_b32 s33, s25, 13")
    a("s_add_u32 s52, s59, s33")
    a("s_xor_b32 s33, s33, 8192")
    a("s_add_u32 s53, s59, s33")
    a("s_add_u32 s42, s52, 4096")
    a("s_add_u32 s43, s53, 4096")
    Z2 = ZP
    a("s_waitcnt vmcnt(0)")
    GB = [128, 144, 160, 176]
    a("v_mov_b32 v4, v95")
    def gather():
        for tt in range(4):
            for q in range(4):
                a("buffer_load_dwordx4 %s, v4, s[12:15], s%d offen offset:%d sc1" % (vr(GB[tt] + 4 * q), (52, 42, 53, 43)[tt], 16 * q))
    gather()
    a("s_mov_b32 s40, 0")
    a("s_waitcnt vmcnt(0)")
    a.label("%s_chk" % name)
    a("v_subrev_u32 v11, 16, v198")
    for tt in range(4):
        for r in range(GB[tt] + 1, GB[tt] + 16, 4):
            a("v_or3_b32 v11, v11, v%d, v%d" % (r, r + 2))
    a("v_cmp_gt_i32 vcc, 0, v11")
    a("s_add_u32 s40, s40, 1")
    a("s_cmp_gt_u32 s40, %d" % SPIN_MAX)
    a("s_cbranch_scc1 %s_ok" % name)
    a("s_cbranch_vccz %s_ok" % name)
    a("s_sleep 32")
    a("buffer_load_dword v198, v199, s[60:63], 0 offen sc1")
    a("s_waitcnt vmcnt(0)")
    gather()
    a("s_waitcnt vmcnt(0)")
    a("s_branch %s_chk" % name)
    a.label("%s_ok" % name)
    stamp(a, 5)
    for tt in range(4):
        b = GB[tt]
        for st_ in (8, 4, 2):
            for q in range(0, st_, 2):
                a("v_pk_add_f32 %s, %s, %s" % (vr(b + q, 2), vr(b + q, 2), vr(b + q + st_, 2)))
    emit_xg_reduce(a, [GB[tt] + e for tt in range(4) for e in range(2)], 72)
    for tt in range(4):
        b = GB[tt]
        emit_ln_finish(a, b, b + 1, 2304, b + 2, MR + 2 * tt, b + 4)
        a("v_mul_f32 v%d, -v%d, v%d" % (MR + 2 * tt + 1, b + 2, MR + 2 * tt))
    a("v_lshrrev_b32 v10, 4, v2")
    a("v_lshrrev_b32 v11, 2, v2"); a("v_and_b32 v11, 1, v11"); a("v_lshlrev_b32 v11, 4, v11")
    a("v_lshrrev_b32 v5, 3, v2"); a("v_and_b32 v5, 1, v5"); a("v_lshl_add_u32 v11, v5, 2, v11")
    a("v_and_b32 v5, 3, v2"); a("v_add_u32 v11, v11, v5")
    a("v_and_b32 v5, 1, v10")
    a("v_lshl_add_u32 v11, v5, 3, v11")
    a("v_lshlrev_b32 v11, 5, v11")
    a("v_lshrrev_b32 v5, 1, v10")
    a("v_lshl_add_u32 v6, v5, 4, v11")
    a("s_lshl_b32 s33, s23, 5")
    a("s_lshl_b32 s36, s22, 1")
    a("s_add_u32 s33, s33, s36")
    a("s_add_u32 s33, s33, s24")
    a("s_mul_i32 s33, s33, 18432")
    if ZIMG: a("s_add_u32 s33, s33, 0x%x" % ZIMG)
    a("s_lshl_b32 s36, s25, 10")
    a("s_add_u32 s39, s33, s36")
    a("s_add_u32 s39, s39, 8192")
    a("s_mul_i32 s38, s25, 10240")
    a("s_add_u32 s33, s33, s38")
    a("s_add_u32 s37, s33, s36")
    a("s_xor_b32 s36, s36, 1024")
    a("s_add_u32 s38, s33, s36")
    a("s_add_u32 s33, s37, 4096")
    a("s_add_u32 s36, s38, 4096")
    def norm_pair(nA, ttA, nB, ttB, O):
        for q, (n, tt) in enumerate(((nA, ttA), (nB, ttB))):
            for d in range(2):
                z = Z2 + 2 * n + d; t = T + 4 * q + 2 * d
                a("v_lshlrev_b32 v%d, 16, v%d" % (t, z))
                a("v_and_b32 v%d, 0xffff0000, v%d" % (t + 1, z))
        for q, (n, tt) in enumerate(((nA, ttA), (nB, ttB))):
            for d in range(2):
                t = T + 4 * q + 2 * d
                a("v_pk_fma_f32 %s, %s, %s, %s op_sel:[0,0,1] op_sel_hi:[1,0,1]" % (vr(t, 2), vr(t, 2), vr(MR + 2 * tt, 2), vr(MR + 2 * tt, 2)))
        for q in range(2):
            for d in range(2):
                t = T + 4 * q + 2 * d
                a("v_cvt_pk_bf16_f32 v%d, v%d, v%d" % (O + 2 * q + d, t, t + 1))
        a("s_nop 1")
        a("v_permlane16_swap_b32 v%d, v%d" % (O, O + 2))
        a("v_permlane16_swap_b32 v%d, v%d" % (O + 1, O + 3))
    cnt = 0
    for ft in range(4):
        for pp in range(2):
            O = 200 + 4 * cnt; cnt += 1
            norm_pair(tidx(ft, 2 * pp), 2 * pp, tidx(ft, 2 * pp + 1), 2 * pp + 1, O)
            a("s_nop 0")
            a("buffer_store_dwordx4 %s, v6, s[12:15], s%d offen offset:%d sc1" % (vr(O), ((37, 38), (33, 36))[ft >> 1][pp], (ft & 1) * 2048))
    O = 200 + 4 * cnt
    norm_pair(16, 0, 17, 1, O)
    a("s_nop 0")
    a("buffer_store_dwordx4 %s, v6, s[12:15], s39 offen sc1" % vr(O))
    stamp(a, 6)
    a("s_setprio 3")
    srd(a, 8, 78, 2048 * 2048 * 2)
    a("v_lshrrev_b32 v3, 3, v2")
    a("s_lshl_b32 s24, s3, 5")
    a("v_add_u32 v3, s24, v3")
    a("v_and_b32 v4, 7, v2")
    a("v_lshrrev_b32 v6, 4, v2")
    a("v_xor_b32 v6, v6, v4")
    a("v_lshlrev_b32 v6, 4, v6")
    a("v_lshl_add_u32 v10, v3, 12, v6")
    a("v_xor_b32 v11, 64, v10")
    a("v_add_u32 v11, %d, v11" % (32768 - 1024))
    a("v_add_u32 v12, %d, v10" % (2 * (32768 - 1024)))
    a("v_add_u32 v13, %d, v11" % (2 * (32768 - 1024)))
    a("v_lshlrev_b32 v14, 4, v2")
    a("s_lshl_b32 s26, s22, 19")
    a("s_mul_i32 s27, s23, %d" % (32 * 18432))
    a("s_lshl_b32 s24, s3, 12")
    a("s_add_u32 s27, s27, s24")
    if ZIMG: a("s_add_u32 s27, s27, 0x%x" % ZIMG)
    a("s_lshl_b32 s25, s3, 9")
    a("s_sub_u32 s32, s25, s24")
    a("s_add_u32 s32, s32, 16384")
    a("s_add_u32 s24, s24, %d" % RB)
    a("s_waitcnt vmcnt(0) lgkmcnt(0)")
    a("v_mov_b32 v26, %d" % LC)
    a("v_mov_b32 v27, 1")
    a("s_mov_b64 exec, 1")
    a("ds_add_rtn_u32 v28, v26, v27")
    a("s_waitcnt lgkmcnt(0)")
    a("v_readfirstlane_b32 s36, v28")
    a("s_cmp_lg_u32 s36, 3")
    a("s_cbranch_scc1 %s_nozs" % name)
    a("v_mov_b32 v28, 0")
    a("buffer_store_dword v27, v28, s[12:15], s97 offen sc1")
    a.label("%s_nozs" % name)
    a("s_mov_b64 exec, -1")
    stamp(a, 7)
    srd(a, 16, 88, 576 * 2048 * 2)
    srd(a, 84, 90, 576 * 2)
    for g in range(4):
        a("s_add_u32 s35, s24, %d" % (g * SLOT))
        a("s_mov_b32 m0, s35")
        a("s_add_u32 s36, s26, %d" % (128 * g))
        for n in range(4):
            a("buffer_load_dwordx4 v%d, s[8:11], s36 offen offset:%d lds" % (10 + n, n * 1024))
    a("s_mov_b32 s34, 0")
    a("s_cmp_lg_u32 s3, 0")
    a("s_cbranch_scc1 %s_pl" % name)
    a("v_and_b32 v28, 15, v2")
    a("v_lshlrev_b32 v30, 2, v28")
    a("v_lshlrev_b32 v28, 12, v28")
    a("s_lshl_b32 s52, s23, 8")
    a("s_add_u32 s52, s52, 0x%x" % ZFLG)
    a.label("%s_pz0" % name)
    a("buffer_load_dword v31, v30, s[60:63], 0 offen sc1")
    a("s_add_u32 s34, s34, 1")
    a("s_waitcnt vmcnt(0)")
    a("v_cmp_gt_u32 vcc, 16, v31")
    a("s_cmp_gt_u32 s34, %d" % SPIN_MAX)
    a("s_cbranch_scc1 %s_pz" % name)
    a("s_cbranch_vccz %s_pz" % name)
    a("s_sleep 32")
    a("s_branch %s_pz0" % name)
    a.label("%s_pz" % name)
    a("buffer_load_dword v29, v28, s[12:15], s52 offen sc1")
    a("s_add_u32 s34, s34, 1")
    a("s_waitcnt vmcnt(0)")
    a("v_cmp_ne_u32 vcc, 1, v29")
    a("s_cmp_gt_u32 s34, %d" % SPIN_MAX)
    a("s_cbranch_scc1 %s_pzx" % name)
    a("s_cbranch_vccz %s_pzx" % name)
    a("s_sleep 8")
    a("s_branch %s_pz" % name)
    a.label("%s_pzx" % name)
    a("v_mov_b32 v27, 1")
    a("ds_write_b32 v26, v27 offset:4")
    a("s_branch %s_pgo" % name)
    a.label("%s_pl" % name)
    a("ds_read_b32 v27, v26 offset:4")
    a("s_add_u32 s34, s34, 1")
    a("s_waitcnt lgkmcnt(0)")
    a("v_readfirstlane_b32 s36, v27")
    a("s_cmp_gt_u32 s34, %d" % (SPIN_MAX * 20))
    a("s_cbranch_scc1 %s_pgo" % name)
    a("s_cmp_lg_u32 s36, 0")
    a("s_cbranch_scc1 %s_pgo" % name)
    a("s_sleep 2")
    a("s_branch %s_pl" % name)
    a.label("%s_pgo" % name)
    stamp(a, 8)
    for g in range(4):
        a("s_add_u32 s35, s24, %d" % (g * SLOT + TREG))
        a("s_mov_b32 m0, s35")
        a("s_add_u32 s36, s27, %d" % (18432 * g))
        a("s_add_u32 s37, s36, s32")
        for n in range(4):
            a("buffer_load_dwordx4 v14, s[12:15], s36 offen offset:%d sc1 lds" % (n * 1024))
        a("s_add_u32 s35, s35, s32")
        a("s_mov_b32 m0, s35")
        a("s_mov_b64 exec, 0xffffffff")
        a("buffer_load_dwordx4 v14, s[12:15], s37 offen sc1 lds")
        a("s_mov_b64 exec, -1")
    a("s_add_u32 s26, s26, 512")
    a("s_add_u32 s27, s27, %d" % (4 * 18432))
    a("s_mov_b32 s33, 0")
    a("s_lshl_b32 s43, s2, 2")
    a("s_add_u32 s43, s43, s3")
    a("s_and_b32 s53, s43, 1")
    a("s_sub_u32 s36, s43, 448")
    a("s_lshr_b32 s37, s43, 1")
    a("s_cmp_ge_u32 s43, 896")
    a("s_cselect_b32 s43, s36, s37")
    a("s_cselect_b32 s53, 2, s53")
    a("s_waitcnt vmcnt(15)")
    a("s_barrier")
    a("s_waitcnt vmcnt(10)")
    a("s_barrier")
    a("s_waitcnt vmcnt(5)")
    a("s_barrier")
    a("s_mov_b32 s34, 4")
    def issue2():
        a("s_add_u32 s35, s33, s24")
        a("s_mov_b32 m0, s35")
        a("s_add_u32 s36, s35, %d" % TREG)
        for n in range(4):
            a("buffer_load_dwordx4 v%d, s[8:11], s26 offen offset:%d lds" % (10 + n, n * 1024))
        a("s_mov_b32 m0, s36")
        a("s_add_u32 s37, s27, s32")
        for n in range(4):
            a("buffer_load_dwordx4 v14, s[12:15], s27 offen offset:%d sc1 lds" % (n * 1024))
        a("s_add_u32 s36, s36, s32")
        a("s_mov_b32 m0, s36")
        a("s_mov_b64 exec, 0xffffffff")
        a("buffer_load_dwordx4 v14, s[12:15], s37 offen sc1 lds")
        a("s_mov_b64 exec, -1")
        a("s_add_u32 s26, s26, 128")
        a("s_add_u32 s27, s27, 18432")
        a("s_add_u32 s33, s33, %d" % SLOT)
        a("s_cmp_eq_u32 s33, %d" % (R * SLOT))
        a("s_cselect_b32 s33, 0, s33")
    a.label("%s_lloop" % name)
    issue2()
    a("s_cmp_eq_u32 s34, 18")
    a("s_cbranch_scc1 %s_hk1" % name)
    a("s_cmp_eq_u32 s34, 21")
    a("s_cbranch_scc1 %s_hk2" % name)
    a("s_waitcnt vmcnt(9)")
    a.label("%s_lcont" % name)
    a("s_barrier")
    a("s_add_u32 s34, s34, 1")
    a("s_cmp_lt_u32 s34, 32")
    a("s_cbranch_scc1 %s_lloop" % name)
    a("s_branch %s_ldone" % name)
    a.label("%s_hk1" % name)
    a("v_and_b32 v28, 15, v2")
    a("v_lshlrev_b32 v28, 2, v28")
    a("buffer_load_dword v29, v28, s[60:63], 0 offen offset:128 sc1")
    a("s_waitcnt vmcnt(10)")
    a("s_branch %s_lcont" % name)
    a.label("%s_hk2" % name)
    a("s_mov_b32 s52, 0")
    a.label("%s_hk2l" % name)
    a("v_cmp_gt_u32 vcc, 16, v29")
    a("s_add_u32 s52, s52, 1")
    a("s_cmp_gt_u32 s52, %d" % SPIN_MAX)
    a("s_cbranch_scc1 %s_hk2g" % name)
    a("s_cbranch_vccz %s_hk2g" % name)
    a("s_sleep 16")
    a("buffer_load_dword v29, v28, s[60:63], 0 offen offset:128 sc1")
    a("s_waitcnt vmcnt(0)")
    a("s_branch %s_hk2l" % name)
    a.label("%s_hk2g" % name)
    nconv = emit_conv_loads(a, " sc1")
    a("s_waitcnt vmcnt(%d)" % (9 + nconv))
    a("s_branch %s_lcont" % name)
    a.label("%s_ldone" % name)
    a("s_waitcnt vmcnt(0)")
    a("s_barrier")
    a("s_mov_b32 s26, s53")
    a("s_and_b32 s27, s3, 1")
    a("s_mul_i32 s27, s27, %d" % CJ_SIZE)
    a("s_lshr_b32 s36, s3, 1")
    a("s_mul_i32 s36, s36, %d" % SLOT)
    a("s_add_u32 s27, s27, s36")
    a("s_add_u32 s27, s27, %d" % RB)
    def mid():
        a("s_barrier")
        a("s_setprio 0")
    sv = set(DBG); DBG.discard("stamp")
    lb_ = len(a.lines)
    emit_conv_job(a, name, mid)
    for n_ in range(lb_, len(a.lines)):
        if "buffer_store_dwordx2" in a.lines[n_]: a.lines[n_] += " sc1"
    DBG.update(sv)
    stamp(a, 9)
    c_common()
    cTa = [4, 4]; cTb = [6, 6]; cF_ = 8; cFh = 9
    kTa = 88; kTb = 90; kF = 92; kFh = 93
    a("v_and_b32 v3, 15, v2")
    a("v_lshrrev_b32 v10, 5, v2")
    a("v_lshlrev_b32 v10, 11, v10")
    a("v_bfe_u32 v11, v2, 4, 1")
    a("v_lshl_add_u32 v10, v11, 4, v10")
    a("v_lshl_add_u32 v10, v3, 5, v10")
    a("s_lshl_b32 s26, s3, 12")
    a("v_add_u32 v10, s26, v10")
    a("s_lshl_b32 s26, s53, 10")
    a("v_add_u32 v%d, s26, v10" % kTa)
    a("s_xor_b32 s26, s26, 1024")
    a("v_add_u32 v%d, s26, v10" % kTb)
    a("v_lshrrev_b32 v10, 2, v2")
    a("v_mul_u32_u24 v10, %d, v10" % CFS)
    a("v_and_b32 v11, 3, v2")
    a("v_lshl_add_u32 v10, v11, 3, v10")
    a("s_mul_i32 s26, s3, %d" % (32 * CFS))
    a("s_add_u32 s26, s26, %d" % CTREG)
    a("v_add_u32 v%d, s26, v10" % kF)
    a("v_add_u32 v%d, 128, v%d" % (kFh, kF))
    a("v_mov_b32 v26, %d" % LC)
    a("v_mov_b32 v27, 1")
    a("s_waitcnt vmcnt(0)")
    a("s_mov_b64 exec, 1")
    a("ds_add_rtn_u32 v28, v26, v27 offset:20")
    a("s_waitcnt lgkmcnt(0)")
    a("v_readfirstlane_b32 s36, v28")
    a("s_cmp_lg_u32 s36, 3")
    a("s_cbranch_scc1 %s_nocs" % name)
    a("s_and_b32 s36, s2, 15")
    a("s_lshl_b32 s36, s36, 2")
    a("s_add_u32 s36, s36, 192")
    a("v_mov_b32 v28, s36")
    a("buffer_atomic_add v27, v28, s[60:63], 0 offen sc1")
    a.label("%s_nocs" % name)
    a("s_mov_b64 exec, -1")
    fin_loads()
    core3 = G.Core(a, ACC, FB[0], FB[1], CFS, CTREG, cTa, cTb, cF_, cFh, TT=512)
    pairs = ((cTa[0], kTa), (cF_, kF), (cTb[0], kTb), (cFh, kFh))
    a("s_mov_b32 s27, %d" % C0)
    for d, s_ in pairs: a("v_add_u32 v%d, s27, v%d" % (d, s_))
    for r in range(ACC, ACC + 72): a("v_mov_b32 v%d, 0" % r)
    a("s_mov_b32 s33, 0")
    a("s_barrier")
    stamp(a, 10)
    core3.prime(0, core3.reads(0, 0))
    def citer(buf):
        core3.trk.drain()
        a("s_barrier")
        a("s_add_u32 s27, s27, %d" % CSL)
        a("s_cmp_eq_u32 s27, %d" % CW)
        a("s_cselect_b32 s27, %d, s27" % RB)
        pre = ["v_add_u32 v%d, s27, v%d" % (d, s_) for d, s_ in pairs]
        core3.phase(buf, core3.reads(1 - buf, 0), pre=pre)
    a.label("%s_ccloop" % name)
    citer(0); citer(1)
    a("s_add_u32 s33, s33, 1")
    a("s_cmp_lt_u32 s33, 9")
    a("s_cbranch_scc1 %s_ccloop" % name)
    core3.trk.drain()
    stamp(a, 11)
    a("s_mul_i32 s33, s3, %d" % (18 * 1024))
    a("s_add_u32 s33, s33, %d" % C0)
    a("v_lshlrev_b32 v10, 4, v2")
    a("v_add_u32 v11, s33, v10")
    a("s_nop 4")
    for n, (ft, tt) in enumerate(TILES):
        a("ds_write_b128 v11, %s offset:%d" % (vr(core3.accr(ft, tt)), 1024 * tidx(ft, tt)))
        if n in (7, 13): a("s_waitcnt lgkmcnt(4)")
    a("s_waitcnt lgkmcnt(0) vmcnt(0)")
    a.label("%s_cfin" % name)
    a("s_barrier")
    stamp(a, 12)
    a("v_lshlrev_b32 v10, 4, v2")
    a("v_lshrrev_b32 v11, 2, v2")
    a("v_lshlrev_b32 v11, 7, v11")
    a("v_and_b32 v12, 3, v2")
    a("v_lshl_add_u32 v11, v12, 3, v11")
    a("s_mov_b32 s33, 0xbfb8aa3b")
    PT = 16; YR = 64
    for s_ in range(3):
        b = 64 + 4 * s_
        if s_ == 2:
            a("s_cmp_ge_u32 s54, 2")
            a("s_cbranch_scc1 %s_rd" % name)
        a("v_add_u32 v4, s%d, v10" % (b + 2))
        a("v_add_u32 v5, s%d, v11" % (b + 1))
        for q in range(4):
            a("ds_read_b128 %s, v4 offset:%d" % (vr(PT + 16 * s_ + 4 * q), 18432 * q))
        a("ds_read_b64_tr_b16 %s, v5" % vr(YR + 2 * s_, 2))
    a.label("%s_rd" % name)
    T = 104
    for s_ in range(3):
        b = 64 + 4 * s_
        if s_ == 0: a("s_waitcnt lgkmcnt(5)")
        if s_ == 1: a("s_waitcnt lgkmcnt(0)")
        if s_ == 2:
            a("s_cmp_ge_u32 s54, 2")
            a("s_cbranch_scc1 %s_done" % name)
        o = PT + 16 * s_; X = XR + 2 * s_; Y = YR + 2 * s_; S_ = ST + 2 * s_
        for h in (0, 2):
            a("v_pk_add_f32 %s, %s, %s" % (vr(o + h, 2), vr(o + h, 2), vr(o + 4 + h, 2)))
            a("v_pk_add_f32 %s, %s, %s" % (vr(o + 8 + h, 2), vr(o + 8 + h, 2), vr(o + 12 + h, 2)))
        for h in (0, 2):
            a("v_pk_add_f32 %s, %s, %s" % (vr(o + h, 2), vr(o + h, 2), vr(o + 8 + h, 2)))
        rnd_pair(a, T + 20, o, o + 1); rnd_pair(a, T + 21, o + 2, o + 3)
        for r in range(4): a("v_mul_f32 v%d, s33, v%d" % (T + r, o + r))
        for r in range(4): a("v_exp_f32 v%d, v%d" % (T + r, T + r))
        a("v_lshlrev_b32 v%d, 16, v%d" % (T + 4, X)); a("v_and_b32 v%d, 0xffff0000, v%d" % (T + 5, X))
        a("v_lshlrev_b32 v%d, 16, v%d" % (T + 6, X + 1)); a("v_and_b32 v%d, 0xffff0000, v%d" % (T + 7, X + 1))
        for r in range(4): a("v_add_f32 v%d, 1.0, v%d" % (T + r, T + r))
        for r in range(4): a("v_rcp_f32 v%d, v%d" % (T + r, T + r))
        for r in range(4): a("v_sub_f32 v%d, v%d, v%d" % (T + 12 + r, T + 4 + r, S_))
        a("v_lshlrev_b32 v%d, 16, v%d" % (T + 8, Y)); a("v_and_b32 v%d, 0xffff0000, v%d" % (T + 9, Y))
        a("v_lshlrev_b32 v%d, 16, v%d" % (T + 10, Y + 1)); a("v_and_b32 v%d, 0xffff0000, v%d" % (T + 11, Y + 1))
        for r in range(4): a("v_mul_f32 v%d, v%d, v%d" % (o + r, o + r, T + r))
        rnd_pair(a, T + 20, T + 12, T + 13); rnd_pair(a, T + 21, T + 14, T + 15)
        rnd_pair(a, T + 22, o, o + 1); rnd_pair(a, T + 23, o + 2, o + 3)
        for r in range(4): a("v_mul_f32 v%d, v%d, v%d" % (T + 12 + r, T + 12 + r, S_ + 1))
        rnd_pair(a, T + 20, T + 12, T + 13); rnd_pair(a, T + 21, T + 14, T + 15)
        for r in range(4): a("v_mul_f32 v%d, v%d, v%d" % (T + 12 + r, T + 12 + r, T + 8 + r))
        rnd_pair(a, T + 20, T + 12, T + 13); rnd_pair(a, T + 21, T + 14, T + 15)
        for r in range(4): a("v_mul_f32 v%d, v%d, v%d" % (T + 12 + r, T + 12 + r, o + r))
        rnd_pair(a, T + 20, T + 12, T + 13); rnd_pair(a, T + 21, T + 14, T + 15)
        for r in range(4): a("v_add_f32 v%d, v%d, v%d" % (T + 12 + r, T + 12 + r, T + 4 + r))
        a("v_cvt_pk_bf16_f32 v%d, v%d, v%d" % (X, T + 12, T + 13))
        a("v_cvt_pk_bf16_f32 v%d, v%d, v%d" % (X + 1, T + 14, T + 15))
        a("buffer_store_dwordx2 %s, v13, s[28:31], s%d offen" % (vr(X, 2), b))
    a.label("%s_done" % name)
    stamp(a, 13)
    G.stamp_rt(a, 1)
    a.label("%s_end" % name)
    a("s_endpgm")
    for ft in range(5):
        a.label("%s_gsub%d" % (name, ft))
        tts = range(4 if ft < 4 else 2)
        emit_fold_gelu(a, [(128 + 4 * tidx(ft, tt), CS + 4 * ft, MR + 2 * tt, ZP + 2 * tidx(ft, tt)) for tt in tts], 72)
        a("s_setpc_b64 s[34:35]")
    return a.text(), kernel_desc(name, 256, 256), (name, 256, 512, YOFF + 10240)

def gen_kf11(name="k1_kernel", R=4):
    a = Asm()
    RB = 4096; SLOT = 34816; TREG = 16384; FS = 288; RST = 0
    LDSB = RB + R * SLOT
    LC = 2048
    ZFLG = 0x2D00000; PFL = 128
    KVL = 143360
    C0 = 77824; CW = 151552; CSL = 36864; YOFF = 151552; CTREG = 16384; CFS = 160
    from gen3 import emit_conv_loads, emit_conv_job, CJ_SIZE
    def capture(f, *args):
        lb = len(a.lines); f(*args); out = a.lines[lb:]; del a.lines[lb:]; return out

    def c_common():
        a("s_load_dwordx2 s[4:5], s[0:1], 0")
        a("s_load_dwordx2 s[16:17], s[0:1], 88")
        a("s_and_b32 s20, s2, 7")
        a("s_lshr_b32 s21, s2, 3")
        a("s_and_b32 s22, s20, 3")
        a("s_lshl_b32 s22, s22, 3")
        a("s_and_b32 s23, s21, 7")
        a("s_add_u32 s22, s22, s23")
        a("s_lshr_b32 s23, s20, 2")
        a("s_lshl_b32 s23, s23, 2")
        a("s_lshr_b32 s24, s21, 3")
        a("s_add_u32 s23, s23, s24")
        a("s_lshr_b32 s52, s23, 1")
        a("s_and_b32 s53, s23, 1")
        a("s_lshl_b32 s54, s98, 2")
        a("s_add_u32 s54, s54, s3")
        a("s_waitcnt lgkmcnt(0)")
        srd(a, 8, 4, 2048 * 576 * 2)
        srd(a, 28, 16, 2048 * 576 * 2)
    XR = 200; ST = 208
    def fin_loads():
        a("v_and_b32 v3, 15, v2")
        a("v_lshrrev_b32 v10, 4, v2")
        a("v_mul_u32_u24 v13, 1152, v3")
        a("v_lshl_add_u32 v13, v10, 3, v13")
        a("v_lshlrev_b32 v12, 3, v3")
        for s_ in range(3):
            if s_ == 2:
                a("s_cmp_ge_u32 s54, 2")
                a("s_cbranch_scc1 %s_fl%d" % (name, fin_loads.cnt))
            b = 64 + 4 * s_
            if s_ < 2:
                a("s_add_u32 s36, s54, %d" % (8 * s_))
                a("s_lshr_b32 s37, s36, 2")
                a("s_and_b32 s38, s36, 3")
                a("s_mul_i32 s39, s53, 160")
                a("s_lshl_b32 s40, s37, 5")
                a("s_add_u32 s39, s39, s40")
            else:
                a("s_add_u32 s36, s54, 16")
                a("s_mov_b32 s37, 4")
                a("s_mov_b32 s38, s54")
                a("s_mov_b32 s39, 128")
            a("s_lshl_b32 s40, s53, 1")
            a("s_add_u32 s38, s38, s40")
            a("s_and_b32 s38, s38, 3")
            a("s_lshl_b32 s40, s22, 2")
            a("s_add_u32 s40, s40, s38")
            a("s_lshl_b32 s40, s40, 4")
            a("s_mul_i32 s%d, s40, 1152" % b)
            a("s_add_u32 s%d, s%d, s39" % (b, b))
            a("s_mul_i32 s39, s52, 288")
            a("s_add_u32 s%d, s%d, s39" % (b, b))
            a("s_lshl_b32 s%d, s37, 11" % (b + 1))
            a("s_lshl_b32 s39, s38, 5")
            a("s_add_u32 s%d, s%d, s39" % (b + 1, b + 1))
            a("s_add_u32 s%d, s%d, %d" % (b + 1, b + 1, YOFF))
            a("s_lshl_b32 s%d, s36, 10" % (b + 2))
            a("s_add_u32 s%d, s%d, %d" % (b + 2, b + 2, C0))
            a("s_lshl_b32 s40, s40, 3")
            a("s_add_u32 s40, s40, 0x%x" % STATS1)
            a("buffer_load_dwordx2 %s, v13, s[8:11], s%d offen" % (vr(XR + 2 * s_, 2), b))
            a("buffer_load_dwordx2 %s, v12, s[12:15], s40 offen sc1" % vr(ST + 2 * s_, 2))
        a.label("%s_fl%d" % (name, fin_loads.cnt))
        fin_loads.cnt += 1
    fin_loads.cnt = 0
    kernel_begin(a, name)
    a("s_load_dwordx2 s[80:81], s[0:1], 0")
    a("s_load_dwordx2 s[4:5], s[0:1], 56")
    a("s_load_dwordx2 s[6:7], s[0:1], 104")
    a("s_load_dwordx2 s[18:19], s[0:1], 96")
    a("s_cmp_ge_u32 s2, 256")
    a("s_cbranch_scc1 %s_end" % name)
    a("v_lshrrev_b32 v1, 6, v0")
    a("v_and_b32 v2, 63, v0")
    a("v_readfirstlane_b32 s3, v1")
    G2.tile_ij(a)
    a("s_lshr_b32 s98, s3, 2")
    a("s_mov_b32 s54x, 0".replace("s54x", "s99"))
    a("s_and_b32 s3, s3, 3")
    a("s_lshr_b32 s24, s3, 1")
    a("s_and_b32 s25, s3, 1")
    a("v_and_b32 v3, 15, v2")
    VT = 204; VF = 208
    def loader_setup():
        a("v_lshrrev_b32 v5, 3, v2")
        a("v_and_b32 v4, 7, v2")
        a("s_lshl_b32 s36, s3, 5")
        a("v_add_u32 v5, s36, v5")
        a("v_lshrrev_b32 v7, 4, v2")
        a("v_xor_b32 v7, v7, v4")
        a("v_mul_u32_u24 v6, 1152, v5")
        a("v_lshl_add_u32 v%d, v7, 4, v6" % VT)
        a("v_xor_b32 v%d, 64, v%d" % (VT + 1, VT))
        a("v_add_u32 v%d, %d, v%d" % (VT + 1, 9216 - 1024, VT + 1))
        a("v_add_u32 v%d, %d, v%d" % (VT + 2, 2 * (9216 - 1024), VT))
        a("v_add_u32 v%d, %d, v%d" % (VT + 3, 2 * (9216 - 1024), VT + 1))
        a("s_lshl_b32 s84, s3, 12")
        a("s_add_u32 s84, s84, %d" % RB)
        a("s_lshl_b32 s85, s3, 9")
        a("s_add_u32 s85, s85, %d" % (RB + TREG + 16384))
    def loader_setup2():
        for n in range(5):
            if n < 4:
                a("s_lshl_b32 s36, s3, 8")
                a("s_add_u32 s36, s36, %d" % (64 * n))
            else:
                a("s_lshl_b32 s36, s3, 5")
                a("s_add_u32 s36, s36, 1024")
            a("v_add_u32 v6, s36, v2")
            a("v_mul_u32_u24 v7, 3641, v6")
            a("v_lshrrev_b32 v7, 16, v7")
            a("v_mul_u32_u24 v8, 18, v7")
            a("v_sub_u32 v8, v6, v8")
            a("v_and_b32 v9, 35, v7")
            a("v_bfe_u32 v6, v7, 2, 2")
            a("v_lshl_add_u32 v9, v6, 3, v9")
            a("v_bfe_u32 v6, v7, 4, 1")
            a("v_lshl_add_u32 v9, v6, 2, v9")
            a("v_mul_u32_u24 v9, 9216, v9")
            a("v_lshl_add_u32 v%d, v8, 4, v9" % (VF + n))
            if 0 < n < 4: a("v_subrev_u32 v%d, %d, v%d" % (VF + n, 1024 * n, VF + n))
    def issueT(g):
        st = g % 9
        a("s_add_u32 s86, s84, %d" % ((g % R) * SLOT))
        a("s_mov_b32 m0, s86")
        a("s_add_u32 s87, s82, %d" % (128 * st))
        for n in range(4):
            a("buffer_load_dwordx4 v%d, s[28:31], s87 offen offset:%d lds" % (VT + n, 1024 * n))
    def issueF(g):
        st = g % 9
        a("s_add_u32 s86, s84, %d" % ((g % R) * SLOT + TREG))
        a("s_mov_b32 m0, s86")
        a("s_add_u32 s87, s83, %d" % (64 * 9216 * st + (4608 if g < 9 else 0)))
        for n in range(4):
            a("buffer_load_dwordx4 v%d, s[8:11], s87 offen offset:%d lds" % (VF + n, 1024 * n))
        a("s_add_u32 s86, s85, %d" % ((g % R) * SLOT))
        a("s_mov_b32 m0, s86")
        a("s_mov_b64 exec, 0xffffffff")
        a("buffer_load_dwordx4 v%d, s[8:11], s87 offen lds" % (VF + 4))
        a("s_mov_b64 exec, -1")
    def srds_main():
        srd(a, 28, 80, 2048 * 576 * 2)
        srd(a, 8, 4, 576 * 4608 * 2)
        srd(a, 12, 6, WS_BYTES)
        srd(a, 60, 18, 256)
        a("s_mul_i32 s82, s22, %d" % (128 * 1152))
        a("s_mul_i32 s83, s23, 288")
    ACC = 128; FB = [16, 52]; CS = 216; ONE = 236
    vTa = [4, 5]; vTb = [6, 7]; vF = 8; vFh = 9
    bTa = [88, 89]; bTb = [90, 91]; bF = 92; bFh = 93
    def mma_setup():
        a("v_lshrrev_b32 v10, 4, v2")
        a("v_lshrrev_b32 v11, 1, v3")
        a("v_xor_b32 v10, v10, v11")
        a("v_lshlrev_b32 v10, 4, v10")
        a("v_lshl_add_u32 v10, v3, 7, v10")
        a("s_lshl_b32 s26, s24, 13")
        a("s_add_u32 s26, s26, %d" % RB)
        a("v_add_u32 v10, s26, v10")
        a("s_lshl_b32 s26, s25, 12")
        a("v_add_u32 v%d, s26, v10" % bTa[0])
        a("s_xor_b32 s26, s26, 4096")
        a("v_add_u32 v%d, s26, v10" % bTb[0])
        a("v_xor_b32 v%d, 64, v%d" % (bTa[1], bTa[0]))
        a("v_xor_b32 v%d, 64, v%d" % (bTb[1], bTb[0]))
        a("v_lshrrev_b32 v10, 2, v2")
        a("v_mul_u32_u24 v10, %d, v10" % FS)
        a("v_and_b32 v11, 3, v2")
        a("v_lshl_add_u32 v10, v11, 3, v10")
        a("v_add_u32 v10, %d, v10" % (RB + TREG))
        a("s_mul_i32 s26, s25, 160")
        a("v_add_u32 v%d, s26, v10" % bF)
        a("v_add_u32 v%d, 128, v10" % bFh)
        for r in range(ACC, ACC + 72): a("v_mov_b32 v%d, 0" % r)
        for r in range(CS, CS + 20): a("v_mov_b32 v%d, 0" % r)
        for r in range(ONE, ONE + 4): a("v_mov_b32 v%d, 0x3f803f80" % r)
    def mma_addr(slot):
        a("s_mov_b32 s27, %d" % (slot * SLOT))
        for d, s_ in ((vTa[0], bTa[0]), (vTb[0], bTb[0]), (vTa[1], bTa[1]), (vTb[1], bTb[1]), (vF, bF), (vFh, bFh)):
            a("v_add_u32 v%d, s27, v%d" % (d, s_))
    core = G.Core(a, ACC, FB[0], FB[1], FS, TREG, vTa, vTb, vF, vFh)
    trk = core.trk
    a("s_cmp_eq_u32 s98, 0")
    a("s_cbranch_scc1 %s_A0" % name)
    a("s_setprio 3")
    loader_setup()
    a("s_waitcnt lgkmcnt(0)")
    srds_main()
    vm = VmTracker(a)
    def issue(g, vmx):
        issueT(g); issueF(g); vmx.issue("S%d" % g, 9)
    issueT(0)
    loader_setup2()
    issueF(0); vm.issue("S0", 9)
    issue(1, vm); issue(2, vm); issue(3, vm)
    a("s_add_u32 s3, s3, 4"); stamp_setup(a, 1); stamp(a, 0); a("s_sub_u32 s3, s3, 4")
    a("s_load_dwordx4 s[64:67], s[0:1], 8")
    a("s_load_dwordx2 s[76:77], s[0:1], 24")
    mma_setup()
    a("s_waitcnt lgkmcnt(0)")
    srd(a, 68, 66, 2048 * 576 * 2)
    a("s_mov_b32 s88, s64"); a("s_mov_b32 s89, s65")
    srd(a, 64, 88, 2048 * 576 * 2)
    srd(a, 72, 76, 576 * 8)
    def kv_dma():
        a("s_mul_hi_u32 s36, s2, 0x%x" % ((2**32 + 8) // 9))
        a("s_mul_i32 s37, s36, 9")
        a("s_sub_u32 s37, s2, s37")
        a("s_lshl_b32 s36, s36, 6")
        a("s_lshl_b32 s38, s3, 3")
        a("s_add_u32 s36, s36, s38")
        a("v_lshrrev_b32 v240, 3, v2")
        a("v_add_u32 v240, s36, v240")
        a("v_mul_u32_u24 v241, 1152, v240")
        a("v_and_b32 v242, 7, v2")
        a("v_lshl_add_u32 v241, v242, 4, v241")
        a("s_lshl_b32 s37, s37, 7")
        a("v_add_u32 v241, s37, v241")
        a("v_subrev_u32 v242, %d, v241" % (3 * 1152))
        a("s_lshl_b32 s38, s3, 10")
        for q in range(3):
            a("s_add_u32 s39, s38, %d" % (KVL + 4096 * q))
            if q == 2:
                a("s_mov_b32 s39, %d" % (KVL + 8192))
                a("s_mul_i32 s40, s3, %d" % (8 * 1152))
                a("s_sub_u32 s40, %d, s40" % (64 * 1152))
            else:
                a("s_mov_b32 s40, %d" % (32 * 1152 * q))
            a("s_mov_b32 m0, s39")
            a("v_add_u32 v243, s40, v242")
            a("buffer_load_dwordx4 v243, s[64:67], 0 offen lds")
        for q in range(2):
            a("s_add_u32 s39, s38, %d" % (KVL + 9216 + 4096 * q))
            a("s_mov_b32 m0, s39")
            a("s_mov_b32 s40, %d" % (32 * 1152 * q))
            a("buffer_load_dwordx4 v241, s[68:71], s40 offen lds")
    RA = 96; XB = 112
    for r in range(RA, RA + 16): a("v_mov_b32 v%d, 0" % r)
    a("v_lshrrev_b32 v10, 4, v2")
    a("v_lshrrev_b32 v11, 1, v3")
    a("v_xor_b32 v10, v10, v11")
    a("v_lshlrev_b32 v10, 4, v10")
    a("v_lshl_add_u32 v10, v3, 7, v10")
    a("v_add_u32 v12, s84, v10")
    a("v_xor_b32 v13, 64, v12")
    def rs_rd(g):
        a("v_add_u32 v10, %d, v12" % ((g % R) * SLOT))
        a("v_add_u32 v11, %d, v13" % ((g % R) * SLOT))
        for h in range(2):
            for n in range(2):
                a("ds_read_b128 %s, v%d offset:%d" % (vr(XB + 8 * h + 4 * n), 10 + h, 2048 * n))
    def rs_do():
        for h in range(2):
            for n in range(2):
                x = XB + 8 * h + 4 * n
                a("v_mfma_f32_16x16x32_bf16 %s, %s, %s, %s" % (vr(RA + 4 * n), vr(ONE), vr(x), vr(RA + 4 * n)))
                a("v_mfma_f32_16x16x32_bf16 %s, %s, %s, %s" % (vr(RA + 8 + 4 * n), vr(x), vr(x), vr(RA + 8 + 4 * n)))
    def interleave(dma, comp, vmx=None):
        groups = []; cur = []
        for l in dma:
            cur.append(l)
            if "buffer_load" in l and not any("exec, 0xffffffff" in x for x in cur[-2:]):
                groups.append(cur); cur = []
            elif "exec, -1" in l:
                groups.append(cur); cur = []
        if cur: groups.append(cur)
        ns = max(1, len(groups))
        per = (len(comp) + ns - 1) // ns
        for g in groups:
            a.lines.extend(g)
            a.lines.extend(comp[:per]); comp = comp[per:]
        a.lines.extend(comp)
    vm.wait(["S0"])
    a("s_barrier")
    stamp(a, 1)
    rs_rd(0)
    vm.wait(["S1"])
    a("s_barrier")
    for k in range(9):
        a("s_waitcnt lgkmcnt(0)")
        dma = capture(lambda: (issueT(k + 3), issueF(k + 3))) if k >= 1 else []
        interleave(dma, capture(rs_do))
        if k >= 1: vm.issue("S%d" % (k + 3), 9)
        if k == 3:
            kv_dma(); vm.issue("KV", 5)
        if k < 8:
            rs_rd(k + 1)
        else:
            a("s_nop 7")
            a("v_lshrrev_b32 v10, 4, v2")
            a("v_lshrrev_b32 v11, 2, v3")
            a("v_and_b32 v12, 3, v3")
            for n in range(2):
                G_ = RA + 8 + 4 * n
                for r in range(1, 4):
                    a("v_cmp_eq_u32 vcc, %d, v12" % r)
                    a("s_nop 1")
                    a("v_cndmask_b32 v%d, v%d, v%d, vcc" % (G_, G_, G_ + r))
            ML = 112
            for n in range(2):
                emit_ln_finish(a, RA + 4 * n, RA + 8 + 4 * n, 576, ML + 2 * n, ML + 2 * n + 1, 120)
                a("v_mov_b32 v%d, v%d" % (117 + 2 * n, ML + 2 * n + 1))
                a("v_sub_f32 v%d, 0, v%d" % (116 + 2 * n, ML + 2 * n))
            a("s_lshl_b32 s35, s3, 8")
            a("v_lshlrev_b32 v13, 3, v3")
            a("v_add_u32 v12, s35, v13")
            a("v_cmp_eq_u32 vcc, v10, v11")
            a("s_and_saveexec_b64 s[36:37], vcc")
            for n in range(2):
                a("ds_write_b64 v12, %s offset:%d" % (vr(116 + 2 * n, 2), RST + 128 * n))
            a("s_mov_b64 exec, s[36:37]")
            a("s_cmp_lg_u32 s23, 0")
            a("s_cbranch_scc1 %s_nost1" % name)
            a("s_lshl_b32 s35, s22, 7")
            a("s_lshl_b32 s36, s3, 5")
            a("s_add_u32 s35, s35, s36")
            a("s_lshl_b32 s35, s35, 3")
            a("s_add_u32 s35, s35, 0x%x" % STATS1)
            a("v_mov_b32 v11, 0x7ffffff0")
            a("v_cndmask_b32 v13, v11, v13, vcc")
            for n in range(2):
                a("buffer_store_dwordx2 %s, v13, s[12:15], s35 offen offset:%d sc1" % (vr(ML + 2 * n, 2), 128 * n))
            a.label("%s_nost1" % name)
            mma_addr(9 % R)
            a("s_mov_b32 s33, 0")
            a("s_setprio 0")
        vm.wait(["S%d" % (k + 2)], "lgkmcnt(0)" if k == 8 else "")
        if k < 8: a("s_barrier")
    a("s_branch %s_mma" % name)
    a.label("%s_A0" % name)
    emit_code_prefetch(a, name)
    a("s_load_dwordx4 s[64:67], s[0:1], 8")
    a("s_load_dwordx2 s[76:77], s[0:1], 24")
    a("s_load_dwordx2 s[78:79], s[0:1], 64")
    mma_setup()
    loader_setup(); loader_setup2()
    a("s_waitcnt lgkmcnt(0)")
    srds_main()
    srd(a, 68, 66, 2048 * 576 * 2)
    a("s_mov_b32 s88, s64"); a("s_mov_b32 s89, s65")
    srd(a, 64, 88, 2048 * 576 * 2)
    srd(a, 72, 76, 576 * 8)
    stamp_setup(a, 1); stamp(a, 0)
    def gran_addr():
        a("v_lshrrev_b32 v10, 4, v2")
        a("s_lshl_b32 s36, s25, 1")
        a("v_add_u32 v11, s36, v10")
        a("v_and_b32 v11, 3, v11")
        a("v_lshl_add_u32 v11, v11, 4, v3")
        a("v_lshlrev_b32 v94, 8, v11")
        a("s_lshl_b32 s59, s22, 7")
        a("s_lshl_b32 s36, s24, 6")
        a("s_add_u32 s59, s59, s36")
        a("s_lshl_b32 s59, s59, 8")
        a("s_add_u32 s59, s59, 0x%x" % STATS2)
        a("s_lshl_b32 s36, s23, 1")
        a("s_add_u32 s36, s36, s25")
        a("s_lshl_b32 s36, s36, 3")
        a("s_add_u32 s58, s36, s59")
    gran_addr()
    a("v_mov_b32 v12, 0"); a("v_mov_b32 v13, 0x80000000")
    a("buffer_store_dwordx2 v[12:13], v94, s[12:15], s58 offen sc1")
    a("s_lshl_b32 s36, s22, 4")
    a("s_add_u32 s36, s36, s23")
    a("s_lshl_b32 s36, s36, 8")
    a("s_add_u32 s97, s36, 0x%x" % ZFLG)
    a("v_mov_b32 v10, %d" % LC)
    a("v_mov_b32 v12, 0"); a("v_mov_b32 v13, 0")
    a("s_mov_b64 exec, 1")
    a("buffer_store_dword v12, v12, s[12:15], s97 offen sc1")
    a("buffer_store_dword v12, v12, s[12:15], s97 offen offset:%d sc1" % PFL)
    a("s_mov_b64 exec, -1")
    a("ds_write_b64 v10, v[12:13]")
    a("ds_write_b64 v10, v[12:13] offset:8")
    a("ds_write_b64 v10, v[12:13] offset:16")
    a("ds_write_b64 v10, v[12:13] offset:24")
    mma_addr(0)
    a("s_mov_b32 s33, 0")
    a("s_waitcnt lgkmcnt(0)")
    a("s_barrier")
    stamp(a, 1)
    a.label("%s_mma" % name)
    core.prime(0, core.reads(0, 0))
    trk.drain()
    nocs = [False]
    def mfmas(buf):
        L = []
        for ft in range(5):
            A = core.F(buf, ft)
            for tt in range(4 if ft < 4 else 2):
                c = core.accr(ft, tt); B = core.T(buf, tt)
                L.append(("v_mfma_f32_16x16x32_bf16 %s, %s, %s, %s" % (vr(c), vr(A), vr(B), vr(c)), list(range(A, A + 4)) + list(range(B, B + 4))))
            if not nocs[0]: L.append(("v_mfma_f32_16x16x32_bf16 %s, %s, %s, %s" % (vr(CS + 4 * ft), vr(A), vr(ONE), vr(CS + 4 * ft)), list(range(A, A + 4))))
        return L
    def phase(buf, pend):
        for (m, regs) in mfmas(buf):
            trk.need(regs)
            a(m)
            while pend:
                k, t = pend.pop(0)
                if k == "x":
                    a(t)
                    if t.startswith("s_"): continue
                else:
                    a(t[0]); trk.issue(t[1])
                break
        for k, t in pend:
            if k == "x": a(t)
            else: a(t[0]); trk.issue(t[1])
    def iteration(vw=True):
        if vw: a("s_waitcnt vmcnt(0)")
        a("s_barrier")
        rd = [("r", t) for t in core.reads(1, 1)]
        upd = ["s_add_u32 s27, s27, %d" % SLOT, "s_cmp_eq_u32 s27, %d" % (R * SLOT), "s_cselect_b32 s27, 0, s27"]
        tail = ["v_add_u32 v%d, s27, v%d" % (d, s_) for d, s_ in ((vTa[0], bTa[0]), (vF, bF), (vTb[0], bTb[0]), (vFh, bFh))]
        phase(0, rd[:1] + [("x", u) for u in upd] + rd[1:] + [("x", u) for u in tail])
        rd = [("r", t) for t in core.reads(0, 0)]
        tail = ["v_add_u32 v%d, s27, v%d" % (d, s_) for d, s_ in ((vTa[1], bTa[1]), (vTb[1], bTb[1]))] + ["s_add_u32 s33, s33, 1"]
        phase(1, rd + [("x", u) for u in tail])
    a.label("%s_cloop" % name)
    lb = len(a.lines); iteration(); st = copy.deepcopy(trk.out); del a.lines[lb:]; trk.out = copy.deepcopy(st)
    iteration()
    assert [sorted(x) for x in trk.out] == [sorted(x) for x in st]
    a("s_cmp_lt_u32 s33, 9")
    a("s_cbranch_scc1 %s_cloop" % name)
    trk.drain()
    stamp(a, 2)
    MR = 100; T = 72; ZP = 16
    def epi_in():
        gelu_consts(a)
        a("s_lshl_b32 s36, s24, 9")
        a("s_lshl_b32 s37, s25, 8")
        a("s_add_u32 s38, s36, s37")
        a("s_xor_b32 s37, s37, 256")
        a("s_add_u32 s39, s36, s37")
        a("v_lshlrev_b32 v10, 3, v3")
        a("v_add_u32 v11, s38, v10")
        a("ds_read_b64 %s, v11 offset:%d" % (vr(MR, 2), RST))
        a("ds_read_b64 %s, v11 offset:%d" % (vr(MR + 2, 2), RST + 128))
        a("v_add_u32 v11, s39, v10")
        a("ds_read_b64 %s, v11 offset:%d" % (vr(MR + 4, 2), RST))
        a("ds_read_b64 %s, v11 offset:%d" % (vr(MR + 6, 2), RST + 128))
        a("s_waitcnt lgkmcnt(0)")
    S = [108, 110, 52, 54]; Q = [109, 111, 53, 55]
    def gelu_ft(ft, stats):
        tts = range(4 if ft < 4 else 2)
        a("s_call_b64 s[34:35], %s_gsub%d" % (name, ft))
        if stats:
            for d in range(2):
                for tt in tts:
                    p = ZP + 2 * tidx(ft, tt) + d
                    a("v_dot2_f32_bf16 v%d, v%d, v%d, v%d" % (S[tt], p, ONE, S[tt]))
                    a("v_dot2_f32_bf16 v%d, v%d, v%d, v%d" % (Q[tt], p, p, Q[tt]))
    a("s_cmp_eq_u32 s98, 0")
    a("s_cbranch_scc1 %s_A1" % name)
    a("s_barrier")
    a("s_load_dwordx2 s[94:95], s[0:1], 80")
    a("s_load_dwordx2 s[92:93], s[0:1], 72")
    epi_in()
    srd(a, 76, 94, 2304 * 576 * 2)
    srd(a, 28, 92, 2048 * 2)
    a("v_and_b32 v0, 255, v0")
    a("s_mov_b32 s41, s2")
    a("s_mul_hi_u32 s36, s41, 0x%x" % ((2**32 + 8) // 9))
    a("s_mul_i32 s37, s36, 9")
    a("s_sub_u32 s37, s41, s37")
    a("v_lshrrev_b32 v1, 3, v0")
    a("v_and_b32 v10, 7, v0")
    a("s_lshl_b32 s38, s36, 6")
    a("v_lshl_add_u32 v252, v10, 3, s38")
    a("s_lshl_b32 s39, s37, 7")
    a("v_lshl_add_u32 v253, v1, 2, s39")
    a("v_lshlrev_b32 v11, 2, v253")
    a("buffer_load_dwordx4 v[248:251], v11, s[72:75], 0 offen")
    a("v_lshlrev_b32 v254, 10, v10")
    a("v_lshl_add_u32 v254, v1, 2, v254")
    a("v_add_u32 v254, %d, v254" % KVL)
    a("s_cmp_ge_u32 s2, 32")
    a("s_cbranch_scc1 %s_kvp" % name)
    a("s_add_u32 s41, s2, 256")
    emit_kv_loads(a, 52, 63, 124, 71, 123)
    a.label("%s_kvp" % name)
    for ft in range(5): gelu_ft(ft, False)
    Z1R = 200; BI = 236
    for r_ in range(36): a("v_mov_b32 v%d, v%d" % (Z1R + r_, ZP + r_))
    stamp(a, 3)
    a("s_waitcnt vmcnt(0)")
    for n in range(11): a("ds_read_b32 v%d, v254 offset:%d" % (16 + n, 128 * n))
    a("s_waitcnt lgkmcnt(4)")
    for n in range(8): a("ds_read_b32 v%d, v254 offset:%d" % (32 + n, 9216 + 128 * n))
    for n in range(4): a("v_mov_b32 v%d, v%d" % (44 + n, 248 + n))
    for r_ in range(6): a("v_mov_b32 v%d, v%d" % (240 + r_, 88 + r_))
    for r_ in range(20): a("v_mov_b32 v%d, v%d" % (128 + r_, 52 + r_))
    for r_ in range(5): a("v_mov_b32 v%d, v%d" % (148 + r_, 123 + r_))
    a("v_mov_b32 v56, v252"); a("v_mov_b32 v57, v253")
    a("s_waitcnt lgkmcnt(0)")
    a.label("%s_kvb" % name)
    emit_kv_compute(a, wait=False, store=False)
    a("s_mov_b32 s39, 0x%x" % KVT)
    a("buffer_store_dwordx4 v[120:123], v12, s[12:15], s39 offen sc1")
    a("buffer_store_dwordx4 v[124:127], v13, s[12:15], s39 offen sc1")
    a("s_cmp_lt_u32 s41, 256")
    a("s_cbranch_scc1 %s_kvbd" % name)
    a("s_mov_b32 s41, 0")
    for n in range(11): a("v_mov_b32 v%d, v%d" % (16 + n, 128 + n))
    for n in range(8): a("v_mov_b32 v%d, v%d" % (32 + n, 139 + n))
    for n in range(4): a("v_mov_b32 v%d, v%d" % (44 + n, 149 + n))
    a("v_mov_b32 v56, v147"); a("v_mov_b32 v57, v148")
    a("s_branch %s_kvb" % name)
    a.label("%s_kvbd" % name)
    for r_ in range(6): a("v_mov_b32 v%d, v%d" % (88 + r_, 240 + r_))
    a("s_mov_b32 s42, s2")
    emit_wot_loads(a, 100, 112, 720, 3)
    a("s_lshl_b32 s36, s22, 7")
    a("s_lshl_b32 s37, s24, 6")
    a("s_add_u32 s36, s36, s37")
    a("v_lshlrev_b32 v11, 1, v3")
    a("s_lshl_b32 s37, s25, 6")
    a("s_lshl_b32 s38, s36, 1")
    a("s_add_u32 s39, s38, s37")
    a("s_xor_b32 s37, s37, 64")
    a("s_add_u32 s36, s38, s37")
    a("buffer_load_ushort v96, v11, s[28:31], s39 offen")
    a("buffer_load_ushort v97, v11, s[28:31], s39 offen offset:32")
    a("buffer_load_ushort v98, v11, s[28:31], s36 offen")
    a("buffer_load_ushort v99, v11, s[28:31], s36 offen offset:32")
    for r in range(ACC, ACC + 72): a("v_mov_b32 v%d, 0" % r)
    a("v_lshrrev_b32 v10, 2, v2")
    a("v_lshlrev_b32 v10, 5, v10")
    a("v_and_b32 v11, 3, v2")
    a("v_lshl_add_u32 v10, v11, 3, v10")
    a("v_add_u32 v10, %d, v10" % (RB + TREG))
    a("s_mul_i32 s26, s25, 10240")
    a("v_add_u32 v%d, s26, v10" % bF)
    a("v_add_u32 v%d, 8192, v10" % bFh)
    core.FS = 32; core.FT = 2048
    mma_addr(0)
    a("s_mov_b32 s33, 0")
    stamp(a, 4)
    a("s_barrier")
    stamp(a, 5)
    core.prime(0, core.reads(0, 0))
    trk.drain()
    nocs[0] = True
    a.label("%s_gloop" % name)
    lb = len(a.lines); iteration(False); st = copy.deepcopy(trk.out); del a.lines[lb:]; trk.out = copy.deepcopy(st)
    iteration(False)
    assert [sorted(x) for x in trk.out] == [sorted(x) for x in st]
    a("s_cmp_lg_u32 s33, 3")
    a("s_cbranch_scc1 %s_ghk0" % name)
    a("s_waitcnt vmcnt(0)")
    for n in range(3):
        a("buffer_store_dwordx4 %s, v%d, s[12:15], s40 offen sc1" % (vr(100 + 4 * n), 112 + n))
    for tt in range(4): a("v_lshlrev_b32 v%d, 16, v%d" % (BI + 2 * tt, 96 + tt))
    a.label("%s_ghk0" % name)
    a("s_cmp_lg_u32 s33, 6")
    a("s_cbranch_scc1 %s_ghk" % name)
    a("s_waitcnt vmcnt(0)")
    a("v_mov_b32 v10, %d" % (LC + 8))
    a("v_mov_b32 v11, 1")
    a("s_mov_b64 exec, 1")
    a("ds_add_rtn_u32 v12, v10, v11")
    a("s_waitcnt lgkmcnt(0)")
    a("v_readfirstlane_b32 s36, v12")
    a("s_cmp_lg_u32 s36, 3")
    a("s_cbranch_scc1 %s_nokvs" % name)
    a("s_and_b32 s36, s2, 15")
    a("s_lshl_b32 s36, s36, 2")
    a("s_add_u32 s36, s36, 128")
    a("v_mov_b32 v10, s36")
    a("buffer_atomic_add v11, v10, s[60:63], 0 offen sc1")
    a.label("%s_nokvs" % name)
    a("s_mov_b64 exec, -1")
    a.label("%s_ghk" % name)
    a("s_cmp_lg_u32 s33, 24")
    a("s_cbranch_scc1 %s_ghk2" % name)
    a("v_lshlrev_b32 v10, 2, v3")
    a("buffer_load_dword v254, v10, s[60:63], 0 offen offset:128 sc1")
    a.label("%s_ghk2" % name)
    a("s_cmp_lt_u32 s33, 32")
    a("s_cbranch_scc1 %s_gloop" % name)
    trk.drain()
    stamp(a, 6)
    G3.emit_k2_epilogue2(a, core, Z1R, BI, " sc1")
    stamp(a, 7)
    a("s_setprio 3")
    a("s_lshl_b32 s36, s22, 4")
    a("s_add_u32 s36, s36, s23")
    a("s_lshl_b32 s36, s36, 8")
    a("s_add_u32 s97, s36, 0x%x" % (ZFLG + PFL))
    c_common()
    a("v_lshlrev_b32 v14, 4, v2")
    a("s_mul_i32 s26, s22, %d" % (36 * 8192))
    a("s_lshl_b32 s24, s3, 12")
    a("s_add_u32 s26, s26, s24")
    a("s_add_u32 s26, s26, 0x%x" % PIMG)
    a("s_mul_i32 s27, s23, %d" % (18 * 20480))
    a("s_mul_i32 s25, s3, 5120")
    a("s_add_u32 s27, s27, s25")
    a("s_add_u32 s27, s27, 0x%x" % WOT)
    a("s_add_u32 s25, s25, %d" % CTREG)
    a("v_and_b32 v28, 15, v2")
    a("v_lshlrev_b32 v30, 2, v28")
    a("v_mov_b32 v26, %d" % LC)
    a("v_mov_b32 v27, 1")
    a("s_waitcnt vmcnt(0)")
    a("v_mov_b32 v31, v254")
    a("s_mov_b64 exec, 1")
    a("ds_add_rtn_u32 v29, v26, v27 offset:16")
    a("s_waitcnt lgkmcnt(0)")
    a("v_readfirstlane_b32 s36, v29")
    a("s_cmp_lg_u32 s36, 3")
    a("s_cbranch_scc1 %s_nops" % name)
    a("v_mov_b32 v29, 0")
    a("buffer_store_dword v27, v29, s[12:15], s97 offen sc1")
    a.label("%s_nops" % name)
    a("s_mov_b64 exec, -1")
    a("s_mov_b32 s34, 0")
    a.label("%s_cw" % name)
    a("ds_read_b32 v29, v26 offset:16")
    a("s_add_u32 s34, s34, 1")
    a("s_waitcnt lgkmcnt(0)")
    a("v_readfirstlane_b32 s36, v29")
    a("s_cmp_gt_u32 s34, %d" % (SPIN_MAX * 20))
    a("s_cbranch_scc1 %s_cwx" % name)
    a("s_cmp_ge_u32 s36, 4")
    a("s_cbranch_scc1 %s_cwx" % name)
    a("s_sleep 1")
    a("s_branch %s_cw" % name)
    a.label("%s_cwx" % name)
    a("s_mov_b32 s34, 0")
    a.label("%s_cp" % name)
    a("v_cmp_gt_u32 vcc, 16, v31")
    a("s_add_u32 s34, s34, 1")
    a("s_cmp_gt_u32 s34, %d" % SPIN_MAX)
    a("s_cbranch_scc1 %s_cpx" % name)
    a("s_cbranch_vccz %s_cpx" % name)
    a("s_sleep 32")
    a("buffer_load_dword v31, v30, s[60:63], 0 offen offset:128 sc1")
    a("s_waitcnt vmcnt(0)")
    a("s_branch %s_cp" % name)
    a.label("%s_cpx" % name)
    def cF(off, soff):
        a("s_add_u32 s36, s25, %s" % off)
        a("s_mov_b32 m0, s36")
        a("s_add_u32 s37, %s, 4096" % soff)
        for n in range(4):
            a("buffer_load_dwordx4 v14, s[12:15], %s offen offset:%d sc1 lds" % (soff, n * 1024))
        a("s_add_u32 s36, s36, 4096")
        a("s_mov_b32 m0, s36")
        a("s_nop 0")
        a("buffer_load_dwordx4 v14, s[12:15], s37 offen sc1 lds")
    def cT(off, soff):
        a("s_add_u32 s35, s24, %s" % off)
        a("s_mov_b32 m0, s35")
        a("s_nop 0")
        for n in range(4):
            a("buffer_load_dwordx4 v14, s[12:15], %s offen offset:%d sc1 lds" % (soff, n * 1024))
    a("s_add_u32 s38, s27, 20480")
    cF(str(C0), "s27"); cF(str(C0 + CSL), "s38")
    a("s_mov_b32 s34, 0")
    a("s_cmp_lg_u32 s3, 0")
    a("s_cbranch_scc1 %s_cpl" % name)
    a("v_lshlrev_b32 v28, 8, v28")
    a("s_lshr_b32 s39, s22, 1")
    a("s_lshl_b32 s39, s39, 12")
    a("s_add_u32 s39, s39, 0x%x" % (ZFLG + PFL))
    a.label("%s_cpz" % name)
    a("buffer_load_dword v29, v28, s[12:15], s39 offen sc1")
    a("s_add_u32 s34, s34, 1")
    a("s_waitcnt vmcnt(0)")
    a("v_cmp_ne_u32 vcc, 1, v29")
    a("s_cmp_gt_u32 s34, %d" % SPIN_MAX)
    a("s_cbranch_scc1 %s_cpzx" % name)
    a("s_cbranch_vccz %s_cpzx" % name)
    a("s_sleep 8")
    a("s_branch %s_cpz" % name)
    a.label("%s_cpzx" % name)
    a("ds_write_b32 v26, v27 offset:24")
    a("s_branch %s_cgo" % name)
    a.label("%s_cpl" % name)
    a("ds_read_b32 v29, v26 offset:24")
    a("s_add_u32 s34, s34, 1")
    a("s_waitcnt lgkmcnt(0)")
    a("v_readfirstlane_b32 s36, v29")
    a("s_cmp_gt_u32 s34, %d" % (SPIN_MAX * 20))
    a("s_cbranch_scc1 %s_cgo" % name)
    a("s_cmp_lg_u32 s36, 0")
    a("s_cbranch_scc1 %s_cgo" % name)
    a("s_sleep 2")
    a("s_branch %s_cpl" % name)
    a.label("%s_cgo" % name)
    stamp(a, 8)
    a("s_add_u32 s38, s26, 16384")
    cT(str(C0), "s26"); cT(str(C0 + CSL), "s38")
    a("s_add_u32 s26, s26, 32768")
    a("s_add_u32 s27, s27, 40960")
    a("s_mov_b32 s33, %d" % RB)
    def cissue():
        cT("s33", "s26"); cF("s33", "s27")
        a("s_add_u32 s26, s26, 16384")
        a("s_add_u32 s27, s27, 20480")
        a("s_add_u32 s33, s33, %d" % CSL)
        a("s_cmp_eq_u32 s33, %d" % CW)
        a("s_cselect_b32 s33, %d, s33" % RB)
    a("s_waitcnt vmcnt(4)")
    a("s_barrier")
    cissue(); cissue()
    a("s_waitcnt vmcnt(18)")
    a("s_barrier")
    a("s_mov_b32 s34, 0")
    a.label("%s_clloop" % name)
    cissue()
    a("s_cmp_lg_u32 s34, 11")
    a("s_cbranch_scc1 %s_cl1" % name)
    a("buffer_load_dword v31, v30, s[60:63], 0 offen offset:192 sc1")
    a("s_waitcnt vmcnt(19)")
    a("s_branch %s_cl2" % name)
    a.label("%s_cl1" % name)
    a("s_waitcnt vmcnt(18)")
    a.label("%s_cl2" % name)
    a("s_barrier")
    a("s_add_u32 s34, s34, 1")
    a("s_cmp_lt_u32 s34, 14")
    a("s_cbranch_scc1 %s_clloop" % name)
    a("s_mov_b32 s34, 0")
    a.label("%s_cy" % name)
    a("v_cmp_gt_u32 vcc, 16, v31")
    a("s_add_u32 s34, s34, 1")
    a("s_cmp_gt_u32 s34, %d" % SPIN_MAX)
    a("s_cbranch_scc1 %s_cyx" % name)
    a("s_cbranch_vccz %s_cyx" % name)
    a("s_sleep 32")
    a("buffer_load_dword v31, v30, s[60:63], 0 offen offset:192 sc1")
    a("s_waitcnt vmcnt(0)")
    a("s_branch %s_cy" % name)
    a.label("%s_cyx" % name)
    a("v_lshrrev_b32 v3, 3, v2")
    a("v_and_b32 v4, 7, v2")
    a("v_lshlrev_b32 v4, 4, v4")
    a("s_mul_i32 s33, s52, 144")
    a("s_mul_i32 s34, s53, 80")
    a("s_lshl_b32 s35, s22, 7")
    a("s_add_u32 s35, s35, 0x%x" % YT)
    for n in range(3):
        a("s_add_u32 s36, s3, %d" % (4 * n))
        if n == 2: a("s_min_u32 s36, s36, 9")
        a("s_lshl_b32 s37, s36, 3")
        a("s_add_u32 s38, s37, s33")
        if n < 2: a("s_add_u32 s38, s38, s34")
        a("v_add_u32 v5, s38, v3")
        a("v_lshl_add_u32 v5, v5, 12, v4")
        a("s_lshl_b32 s36, s36, 10")
        a("s_add_u32 s36, s36, %d" % YOFF)
        a("s_mov_b32 m0, s36")
        a("s_nop 0")
        a("buffer_load_dwordx4 v5, s[12:15], s35 offen sc1 lds")
    fin_loads()
    a("s_waitcnt vmcnt(%d)" % (9 + 7))
    a("s_barrier")
    a("s_waitcnt vmcnt(7)")
    a("s_barrier")
    a("s_barrier")
    a("s_setprio 0")
    a("s_waitcnt vmcnt(0)")
    a("s_branch %s_cfin" % name)
    a.label("%s_A1" % name)
    a("s_setprio 2")
    vmA = VmTracker(a)
    PB = 132
    def aux_head():
        epi_in()
        for tt in range(4):
            a("v_mov_b32 v%d, 0" % S[tt]); a("v_mov_b32 v%d, 0" % Q[tt])
    def aux_pub():
        a("s_nop 2")
        emit_xg_reduce(a, S + Q, 72)
        a("v_lshrrev_b32 v10, 4, v2")
        for g in range(1, 4):
            a("v_cmp_eq_u32 vcc, %d, v10" % g)
            a("s_nop 1")
            a("v_cndmask_b32 v%d, v%d, v%d, vcc" % (S[0], S[0], S[g]))
            a("v_cndmask_b32 v%d, v%d, v%d, vcc" % (Q[0], Q[0], Q[g]))
        a("v_and_b32 v%d, 0x7fffffff, v%d" % (Q[0], Q[0]))
        a("buffer_store_dwordx2 v[%d:%d], v94, s[12:15], s58 offen sc1" % (S[0], Q[0]))
    chunks = [capture(aux_head) + capture(gelu_ft, 0, True), capture(gelu_ft, 1, True), capture(gelu_ft, 2, True),
              capture(gelu_ft, 3, True), capture(gelu_ft, 4, True) + capture(aux_pub)]
    KD = 172
    for k in range(9, 18):
        a("s_barrier")
        if k == 9:
            a("s_cmp_lg_u32 s3, 0")
            a("s_cbranch_scc1 %s_nosig" % name)
            a("v_mov_b32 v10, 1")
            a("s_lshl_b32 s36, s22, 2")
            a("v_mov_b32 v11, s36")
            a("s_mov_b64 exec, 1")
            a("buffer_atomic_add v10, v11, s[60:63], 0 offen sc1")
            a("s_mov_b64 exec, -1")
            a.label("%s_nosig" % name)
        g = k + 3
        dma = capture(lambda: (issueT(g), issueF(g))) if g < 18 else []
        comp = chunks[k - 9] if k - 9 < len(chunks) else []
        a.lines.extend(dma); a.lines.extend(comp)
        if k == 13: vmA.issue("pub", 1)
        if g < 18: vmA.issue("S%d" % g, 9)
        if k == 14:
            srd(a, 92, 78, 2048 * 2048 * 2)
            a("v_lshrrev_b32 v10, 4, v2")
            a("v_lshlrev_b32 v10, 12, v10")
            a("v_lshl_add_u32 v10, v3, 4, v10")
            a("s_lshl_b32 s40, s22, 7")
            a("s_lshl_b32 s36, s3, 5")
            a("s_add_u32 s40, s40, s36")
            a("s_lshl_b32 s40, s40, 12")
            a("s_lshl_b32 s36, s23, 8")
            a("s_add_u32 s40, s40, s36")
            for n in range(8):
                a("buffer_load_dwordx4 v[200:203], v10, s[92:95], s40 offen")
                if n < 7: a("s_add_u32 s40, s40, 16384")
            vmA.issue("wp", 8)
            a("s_lshl_b32 s36, s22, 2")
            a("v_mov_b32 v199, s36")
            a("buffer_load_dword v198, v199, s[60:63], 0 offen sc1"); vmA.issue("cnt", 1)
        if k + 2 < 18 and k + 2 >= 12:
            vmA.wait(["S%d" % (k + 2)])
    a("s_barrier")
    stamp(a, 3)
    a("s_load_dwordx4 s[88:91], s[0:1], 32")
    a("v_lshrrev_b32 v10, 4, v2")
    a("v_lshlrev_b32 v95, 8, v3")
    a("v_lshl_add_u32 v95, v10, 6, v95")
    a("s_lshl_b32 s33, s25, 13")
    a("s_add_u32 s52, s59, s33")
    a("s_xor_b32 s33, s33, 8192")
    a("s_add_u32 s53, s59, s33")
    a("s_add_u32 s42, s52, 4096")
    a("s_add_u32 s43, s53, 4096")
    Z2 = ZP
    a("s_waitcnt vmcnt(0)")
    GB = [128, 144, 160, 176]
    a("v_mov_b32 v4, v95")
    def gather():
        for tt in range(4):
            for q in range(4):
                a("buffer_load_dwordx4 %s, v4, s[12:15], s%d offen offset:%d sc1" % (vr(GB[tt] + 4 * q), (52, 42, 53, 43)[tt], 16 * q))
    gather()
    a("s_mov_b32 s40, 0")
    a("s_waitcnt vmcnt(0)")
    a.label("%s_chk" % name)
    a("v_subrev_u32 v11, 16, v198")
    for tt in range(4):
        for r in range(GB[tt] + 1, GB[tt] + 16, 4):
            a("v_or3_b32 v11, v11, v%d, v%d" % (r, r + 2))
    a("v_cmp_gt_i32 vcc, 0, v11")
    a("s_add_u32 s40, s40, 1")
    a("s_cmp_gt_u32 s40, %d" % SPIN_MAX)
    a("s_cbranch_scc1 %s_ok" % name)
    a("s_cbranch_vccz %s_ok" % name)
    a("s_sleep 32")
    a("buffer_load_dword v198, v199, s[60:63], 0 offen sc1")
    a("s_waitcnt vmcnt(0)")
    gather()
    a("s_waitcnt vmcnt(0)")
    a("s_branch %s_chk" % name)
    a.label("%s_ok" % name)
    stamp(a, 5)
    for tt in range(4):
        b = GB[tt]
        for st_ in (8, 4, 2):
            for q in range(0, st_, 2):
                a("v_pk_add_f32 %s, %s, %s" % (vr(b + q, 2), vr(b + q, 2), vr(b + q + st_, 2)))
    emit_xg_reduce(a, [GB[tt] + e for tt in range(4) for e in range(2)], 72)
    for tt in range(4):
        b = GB[tt]
        emit_ln_finish(a, b, b + 1, 2304, b + 2, MR + 2 * tt, b + 4)
        a("v_mul_f32 v%d, -v%d, v%d" % (MR + 2 * tt + 1, b + 2, MR + 2 * tt))
    a("v_lshrrev_b32 v10, 4, v2")
    a("v_lshrrev_b32 v11, 2, v2"); a("v_and_b32 v11, 1, v11"); a("v_lshlrev_b32 v11, 4, v11")
    a("v_lshrrev_b32 v5, 3, v2"); a("v_and_b32 v5, 1, v5"); a("v_lshl_add_u32 v11, v5, 2, v11")
    a("v_and_b32 v5, 3, v2"); a("v_add_u32 v11, v11, v5")
    a("v_and_b32 v5, 1, v10")
    a("v_lshl_add_u32 v11, v5, 3, v11")
    a("v_lshlrev_b32 v11, 5, v11")
    a("v_lshrrev_b32 v5, 1, v10")
    a("v_lshl_add_u32 v6, v5, 4, v11")
    a("s_lshl_b32 s33, s23, 5")
    a("s_lshl_b32 s36, s22, 1")
    a("s_add_u32 s33, s33, s36")
    a("s_add_u32 s33, s33, s24")
    a("s_mul_i32 s33, s33, 18432")
    if ZIMG: a("s_add_u32 s33, s33, 0x%x" % ZIMG)
    a("s_lshl_b32 s36, s25, 10")
    a("s_add_u32 s39, s33, s36")
    a("s_add_u32 s39, s39, 8192")
    a("s_mul_i32 s38, s25, 10240")
    a("s_add_u32 s33, s33, s38")
    a("s_add_u32 s37, s33, s36")
    a("s_xor_b32 s36, s36, 1024")
    a("s_add_u32 s38, s33, s36")
    a("s_add_u32 s33, s37, 4096")
    a("s_add_u32 s36, s38, 4096")
    def norm_pair(nA, ttA, nB, ttB, O):
        for q, (n, tt) in enumerate(((nA, ttA), (nB, ttB))):
            for d in range(2):
                z = Z2 + 2 * n + d; t = T + 4 * q + 2 * d
                a("v_lshlrev_b32 v%d, 16, v%d" % (t, z))
                a("v_and_b32 v%d, 0xffff0000, v%d" % (t + 1, z))
        for q, (n, tt) in enumerate(((nA, ttA), (nB, ttB))):
            for d in range(2):
                t = T + 4 * q + 2 * d
                a("v_pk_fma_f32 %s, %s, %s, %s op_sel:[0,0,1] op_sel_hi:[1,0,1]" % (vr(t, 2), vr(t, 2), vr(MR + 2 * tt, 2), vr(MR + 2 * tt, 2)))
        for q in range(2):
            for d in range(2):
                t = T + 4 * q + 2 * d
                a("v_cvt_pk_bf16_f32 v%d, v%d, v%d" % (O + 2 * q + d, t, t + 1))
        a("s_nop 1")
        a("v_permlane16_swap_b32 v%d, v%d" % (O, O + 2))
        a("v_permlane16_swap_b32 v%d, v%d" % (O + 1, O + 3))
    cnt = 0
    for ft in range(4):
        for pp in range(2):
            O = 200 + 4 * cnt; cnt += 1
            norm_pair(tidx(ft, 2 * pp), 2 * pp, tidx(ft, 2 * pp + 1), 2 * pp + 1, O)
            a("s_nop 0")
            a("buffer_store_dwordx4 %s, v6, s[12:15], s%d offen offset:%d sc1" % (vr(O), ((37, 38), (33, 36))[ft >> 1][pp], (ft & 1) * 2048))
    O = 200 + 4 * cnt
    norm_pair(16, 0, 17, 1, O)
    a("s_nop 0")
    a("buffer_store_dwordx4 %s, v6, s[12:15], s39 offen sc1" % vr(O))
    stamp(a, 6)
    a("s_setprio 3")
    srd(a, 8, 78, 2048 * 2048 * 2)
    a("v_lshrrev_b32 v3, 3, v2")
    a("s_lshl_b32 s24, s3, 5")
    a("v_add_u32 v3, s24, v3")
    a("v_and_b32 v4, 7, v2")
    a("v_lshrrev_b32 v6, 4, v2")
    a("v_xor_b32 v6, v6, v4")
    a("v_lshlrev_b32 v6, 4, v6")
    a("v_lshl_add_u32 v10, v3, 12, v6")
    a("v_xor_b32 v11, 64, v10")
    a("v_add_u32 v11, %d, v11" % (32768 - 1024))
    a("v_add_u32 v12, %d, v10" % (2 * (32768 - 1024)))
    a("v_add_u32 v13, %d, v11" % (2 * (32768 - 1024)))
    a("v_lshlrev_b32 v14, 4, v2")
    a("s_lshl_b32 s26, s22, 19")
    a("s_mul_i32 s27, s23, %d" % (32 * 18432))
    a("s_lshl_b32 s24, s3, 12")
    a("s_add_u32 s27, s27, s24")
    if ZIMG: a("s_add_u32 s27, s27, 0x%x" % ZIMG)
    a("s_lshl_b32 s25, s3, 9")
    a("s_sub_u32 s32, s25, s24")
    a("s_add_u32 s32, s32, 16384")
    a("s_add_u32 s24, s24, %d" % RB)
    a("s_waitcnt vmcnt(0) lgkmcnt(0)")
    a("v_mov_b32 v26, %d" % LC)
    a("v_mov_b32 v27, 1")
    a("s_mov_b64 exec, 1")
    a("ds_add_rtn_u32 v28, v26, v27")
    a("s_waitcnt lgkmcnt(0)")
    a("v_readfirstlane_b32 s36, v28")
    a("s_cmp_lg_u32 s36, 3")
    a("s_cbranch_scc1 %s_nozs" % name)
    a("v_mov_b32 v28, 0")
    a("buffer_store_dword v27, v28, s[12:15], s97 offen sc1")
    a.label("%s_nozs" % name)
    a("s_mov_b64 exec, -1")
    stamp(a, 7)
    srd(a, 16, 88, 576 * 2048 * 2)
    srd(a, 84, 90, 576 * 2)
    for g in range(4):
        a("s_add_u32 s35, s24, %d" % (g * SLOT))
        a("s_mov_b32 m0, s35")
        a("s_add_u32 s36, s26, %d" % (128 * g))
        for n in range(4):
            a("buffer_load_dwordx4 v%d, s[8:11], s36 offen offset:%d lds" % (10 + n, n * 1024))
    a("s_mov_b32 s34, 0")
    a("s_cmp_lg_u32 s3, 0")
    a("s_cbranch_scc1 %s_pl" % name)
    a("v_and_b32 v28, 15, v2")
    a("v_lshlrev_b32 v30, 2, v28")
    a("v_lshlrev_b32 v28, 12, v28")
    a("s_lshl_b32 s52, s23, 8")
    a("s_add_u32 s52, s52, 0x%x" % ZFLG)
    a.label("%s_pz0" % name)
    a("buffer_load_dword v31, v30, s[60:63], 0 offen sc1")
    a("s_add_u32 s34, s34, 1")
    a("s_waitcnt vmcnt(0)")
    a("v_cmp_gt_u32 vcc, 16, v31")
    a("s_cmp_gt_u32 s34, %d" % SPIN_MAX)
    a("s_cbranch_scc1 %s_pz" % name)
    a("s_cbranch_vccz %s_pz" % name)
    a("s_sleep 32")
    a("s_branch %s_pz0" % name)
    a.label("%s_pz" % name)
    a("buffer_load_dword v29, v28, s[12:15], s52 offen sc1")
    a("s_add_u32 s34, s34, 1")
    a("s_waitcnt vmcnt(0)")
    a("v_cmp_ne_u32 vcc, 1, v29")
    a("s_cmp_gt_u32 s34, %d" % SPIN_MAX)
    a("s_cbranch_scc1 %s_pzx" % name)
    a("s_cbranch_vccz %s_pzx" % name)
    a("s_sleep 8")
    a("s_branch %s_pz" % name)
    a.label("%s_pzx" % name)
    a("v_mov_b32 v27, 1")
    a("ds_write_b32 v26, v27 offset:4")
    a("s_branch %s_pgo" % name)
    a.label("%s_pl" % name)
    a("ds_read_b32 v27, v26 offset:4")
    a("s_add_u32 s34, s34, 1")
    a("s_waitcnt lgkmcnt(0)")
    a("v_readfirstlane_b32 s36, v27")
    a("s_cmp_gt_u32 s34, %d" % (SPIN_MAX * 20))
    a("s_cbranch_scc1 %s_pgo" % name)
    a("s_cmp_lg_u32 s36, 0")
    a("s_cbranch_scc1 %s_pgo" % name)
    a("s_sleep 2")
    a("s_branch %s_pl" % name)
    a.label("%s_pgo" % name)
    stamp(a, 8)
    for g in range(4):
        a("s_add_u32 s35, s24, %d" % (g * SLOT + TREG))
        a("s_mov_b32 m0, s35")
        a("s_add_u32 s36, s27, %d" % (18432 * g))
        a("s_add_u32 s37, s36, s32")
        for n in range(4):
            a("buffer_load_dwordx4 v14, s[12:15], s36 offen offset:%d sc1 lds" % (n * 1024))
        a("s_add_u32 s35, s35, s32")
        a("s_mov_b32 m0, s35")
        a("s_mov_b64 exec, 0xffffffff")
        a("buffer_load_dwordx4 v14, s[12:15], s37 offen sc1 lds")
        a("s_mov_b64 exec, -1")
    a("s_add_u32 s26, s26, 512")
    a("s_add_u32 s27, s27, %d" % (4 * 18432))
    a("s_mov_b32 s33, 0")
    a("s_lshl_b32 s43, s2, 2")
    a("s_add_u32 s43, s43, s3")
    a("s_and_b32 s53, s43, 1")
    a("s_sub_u32 s36, s43, 448")
    a("s_lshr_b32 s37, s43, 1")
    a("s_cmp_ge_u32 s43, 896")
    a("s_cselect_b32 s43, s36, s37")
    a("s_cselect_b32 s53, 2, s53")
    a("s_waitcnt vmcnt(15)")
    a("s_barrier")
    a("s_waitcnt vmcnt(10)")
    a("s_barrier")
    a("s_waitcnt vmcnt(5)")
    a("s_barrier")
    a("s_mov_b32 s34, 4")
    def issue2():
        a("s_add_u32 s35, s33, s24")
        a("s_mov_b32 m0, s35")
        a("s_add_u32 s36, s35, %d" % TREG)
        for n in range(4):
            a("buffer_load_dwordx4 v%d, s[8:11], s26 offen offset:%d lds" % (10 + n, n * 1024))
        a("s_mov_b32 m0, s36")
        a("s_add_u32 s37, s27, s32")
        for n in range(4):
            a("buffer_load_dwordx4 v14, s[12:15], s27 offen offset:%d sc1 lds" % (n * 1024))
        a("s_add_u32 s36, s36, s32")
        a("s_mov_b32 m0, s36")
        a("s_mov_b64 exec, 0xffffffff")
        a("buffer_load_dwordx4 v14, s[12:15], s37 offen sc1 lds")
        a("s_mov_b64 exec, -1")
        a("s_add_u32 s26, s26, 128")
        a("s_add_u32 s27, s27, 18432")
        a("s_add_u32 s33, s33, %d" % SLOT)
        a("s_cmp_eq_u32 s33, %d" % (R * SLOT))
        a("s_cselect_b32 s33, 0, s33")
    a.label("%s_lloop" % name)
    issue2()
    a("s_cmp_eq_u32 s34, 18")
    a("s_cbranch_scc1 %s_hk1" % name)
    a("s_cmp_eq_u32 s34, 21")
    a("s_cbranch_scc1 %s_hk2" % name)
    a("s_waitcnt vmcnt(9)")
    a.label("%s_lcont" % name)
    a("s_barrier")
    a("s_add_u32 s34, s34, 1")
    a("s_cmp_lt_u32 s34, 32")
    a("s_cbranch_scc1 %s_lloop" % name)
    a("s_branch %s_ldone" % name)
    a.label("%s_hk1" % name)
    a("v_and_b32 v28, 15, v2")
    a("v_lshlrev_b32 v28, 2, v28")
    a("buffer_load_dword v29, v28, s[60:63], 0 offen offset:128 sc1")
    a("s_waitcnt vmcnt(10)")
    a("s_branch %s_lcont" % name)
    a.label("%s_hk2" % name)
    a("s_mov_b32 s52, 0")
    a.label("%s_hk2l" % name)
    a("v_cmp_gt_u32 vcc, 16, v29")
    a("s_add_u32 s52, s52, 1")
    a("s_cmp_gt_u32 s52, %d" % SPIN_MAX)
    a("s_cbranch_scc1 %s_hk2g" % name)
    a("s_cbranch_vccz %s_hk2g" % name)
    a("s_sleep 16")
    a("buffer_load_dword v29, v28, s[60:63], 0 offen offset:128 sc1")
    a("s_waitcnt vmcnt(0)")
    a("s_branch %s_hk2l" % name)
    a.label("%s_hk2g" % name)
    nconv = emit_conv_loads(a, " sc1")
    a("s_waitcnt vmcnt(%d)" % (9 + nconv))
    a("s_branch %s_lcont" % name)
    a.label("%s_ldone" % name)
    a("s_waitcnt vmcnt(0)")
    a("s_barrier")
    a("s_mov_b32 s26, s53")
    a("s_and_b32 s27, s3, 1")
    a("s_mul_i32 s27, s27, %d" % CJ_SIZE)
    a("s_lshr_b32 s36, s3, 1")
    a("s_mul_i32 s36, s36, %d" % SLOT)
    a("s_add_u32 s27, s27, s36")
    a("s_add_u32 s27, s27, %d" % RB)
    def mid():
        a("s_barrier")
        a("s_setprio 0")
    sv = set(DBG); DBG.discard("stamp")
    lb_ = len(a.lines)
    emit_conv_job(a, name, mid)
    for n_ in range(lb_, len(a.lines)):
        if "buffer_store_dwordx2" in a.lines[n_]: a.lines[n_] += " sc1"
    DBG.update(sv)
    stamp(a, 9)
    c_common()
    cTa = [4, 4]; cTb = [6, 6]; cF_ = 8; cFh = 9
    kTa = 88; kTb = 90; kF = 92; kFh = 93
    a("v_and_b32 v3, 15, v2")
    a("v_lshrrev_b32 v10, 5, v2")
    a("v_lshlrev_b32 v10, 11, v10")
    a("v_bfe_u32 v11, v2, 4, 1")
    a("v_lshl_add_u32 v10, v11, 4, v10")
    a("v_lshl_add_u32 v10, v3, 5, v10")
    a("s_lshl_b32 s26, s3, 12")
    a("v_add_u32 v10, s26, v10")
    a("s_lshl_b32 s26, s53, 10")
    a("v_add_u32 v%d, s26, v10" % kTa)
    a("s_xor_b32 s26, s26, 1024")
    a("v_add_u32 v%d, s26, v10" % kTb)
    a("v_lshrrev_b32 v10, 2, v2")
    a("v_mul_u32_u24 v10, %d, v10" % CFS)
    a("v_and_b32 v11, 3, v2")
    a("v_lshl_add_u32 v10, v11, 3, v10")
    a("s_mul_i32 s26, s3, %d" % (32 * CFS))
    a("s_add_u32 s26, s26, %d" % CTREG)
    a("v_add_u32 v%d, s26, v10" % kF)
    a("v_add_u32 v%d, 128, v%d" % (kFh, kF))
    a("v_mov_b32 v26, %d" % LC)
    a("v_mov_b32 v27, 1")
    a("s_waitcnt vmcnt(0)")
    a("s_mov_b64 exec, 1")
    a("ds_add_rtn_u32 v28, v26, v27 offset:20")
    a("s_waitcnt lgkmcnt(0)")
    a("v_readfirstlane_b32 s36, v28")
    a("s_cmp_lg_u32 s36, 3")
    a("s_cbranch_scc1 %s_nocs" % name)
    a("s_and_b32 s36, s2, 15")
    a("s_lshl_b32 s36, s36, 2")
    a("s_add_u32 s36, s36, 192")
    a("v_mov_b32 v28, s36")
    a("buffer_atomic_add v27, v28, s[60:63], 0 offen sc1")
    a.label("%s_nocs" % name)
    a("s_mov_b64 exec, -1")
    fin_loads()
    core3 = G.Core(a, ACC, FB[0], FB[1], CFS, CTREG, cTa, cTb, cF_, cFh, TT=512)
    pairs = ((cTa[0], kTa), (cF_, kF), (cTb[0], kTb), (cFh, kFh))
    a("s_mov_b32 s27, %d" % C0)
    for d, s_ in pairs: a("v_add_u32 v%d, s27, v%d" % (d, s_))
    for r in range(ACC, ACC + 72): a("v_mov_b32 v%d, 0" % r)
    a("s_mov_b32 s33, 0")
    a("s_barrier")
    stamp(a, 10)
    core3.prime(0, core3.reads(0, 0))
    def citer(buf):
        core3.trk.drain()
        a("s_barrier")
        a("s_add_u32 s27, s27, %d" % CSL)
        a("s_cmp_eq_u32 s27, %d" % CW)
        a("s_cselect_b32 s27, %d, s27" % RB)
        pre = ["v_add_u32 v%d, s27, v%d" % (d, s_) for d, s_ in pairs]
        core3.phase(buf, core3.reads(1 - buf, 0), pre=pre)
    a.label("%s_ccloop" % name)
    citer(0); citer(1)
    a("s_add_u32 s33, s33, 1")
    a("s_cmp_lt_u32 s33, 9")
    a("s_cbranch_scc1 %s_ccloop" % name)
    core3.trk.drain()
    stamp(a, 11)
    a("s_mul_i32 s33, s3, %d" % (18 * 1024))
    a("s_add_u32 s33, s33, %d" % C0)
    a("v_lshlrev_b32 v10, 4, v2")
    a("v_add_u32 v11, s33, v10")
    a("s_nop 4")
    for n, (ft, tt) in enumerate(TILES):
        a("ds_write_b128 v11, %s offset:%d" % (vr(core3.accr(ft, tt)), 1024 * tidx(ft, tt)))
        if n in (7, 13): a("s_waitcnt lgkmcnt(4)")
    a("s_waitcnt lgkmcnt(0) vmcnt(0)")
    a.label("%s_cfin" % name)
    a("s_barrier")
    stamp(a, 12)
    a("v_lshlrev_b32 v10, 4, v2")
    a("v_lshrrev_b32 v11, 2, v2")
    a("v_lshlrev_b32 v11, 7, v11")
    a("v_and_b32 v12, 3, v2")
    a("v_lshl_add_u32 v11, v12, 3, v11")
    a("s_mov_b32 s33, 0xbfb8aa3b")
    PT = 16; YR = 64
    for s_ in range(3):
        b = 64 + 4 * s_
        if s_ == 2:
            a("s_cmp_ge_u32 s54, 2")
            a("s_cbranch_scc1 %s_rd" % name)
        a("v_add_u32 v4, s%d, v10" % (b + 2))
        a("v_add_u32 v5, s%d, v11" % (b + 1))
        for q in range(4):
            a("ds_read_b128 %s, v4 offset:%d" % (vr(PT + 16 * s_ + 4 * q), 18432 * q))
        a("ds_read_b64_tr_b16 %s, v5" % vr(YR + 2 * s_, 2))
    a.label("%s_rd" % name)
    T = 104
    for s_ in range(3):
        b = 64 + 4 * s_
        if s_ == 0: a("s_waitcnt lgkmcnt(5)")
        if s_ == 1: a("s_waitcnt lgkmcnt(0)")
        if s_ == 2:
            a("s_cmp_ge_u32 s54, 2")
            a("s_cbranch_scc1 %s_done" % name)
        o = PT + 16 * s_; X = XR + 2 * s_; Y = YR + 2 * s_; S_ = ST + 2 * s_
        for h in (0, 2):
            a("v_pk_add_f32 %s, %s, %s" % (vr(o + h, 2), vr(o + h, 2), vr(o + 4 + h, 2)))
            a("v_pk_add_f32 %s, %s, %s" % (vr(o + 8 + h, 2), vr(o + 8 + h, 2), vr(o + 12 + h, 2)))
        for h in (0, 2):
            a("v_pk_add_f32 %s, %s, %s" % (vr(o + h, 2), vr(o + h, 2), vr(o + 8 + h, 2)))
        rnd_pair(a, T + 20, o, o + 1); rnd_pair(a, T + 21, o + 2, o + 3)
        for r in range(4): a("v_mul_f32 v%d, s33, v%d" % (T + r, o + r))
        for r in range(4): a("v_exp_f32 v%d, v%d" % (T + r, T + r))
        a("v_lshlrev_b32 v%d, 16, v%d" % (T + 4, X)); a("v_and_b32 v%d, 0xffff0000, v%d" % (T + 5, X))
        a("v_lshlrev_b32 v%d, 16, v%d" % (T + 6, X + 1)); a("v_and_b32 v%d, 0xffff0000, v%d" % (T + 7, X + 1))
        for r in range(4): a("v_add_f32 v%d, 1.0, v%d" % (T + r, T + r))
        for r in range(4): a("v_rcp_f32 v%d, v%d" % (T + r, T + r))
        for r in range(4): a("v_sub_f32 v%d, v%d, v%d" % (T + 12 + r, T + 4 + r, S_))
        a("v_lshlrev_b32 v%d, 16, v%d" % (T + 8, Y)); a("v_and_b32 v%d, 0xffff0000, v%d" % (T + 9, Y))
        a("v_lshlrev_b32 v%d, 16, v%d" % (T + 10, Y + 1)); a("v_and_b32 v%d, 0xffff0000, v%d" % (T + 11, Y + 1))
        for r in range(4): a("v_mul_f32 v%d, v%d, v%d" % (o + r, o + r, T + r))
        rnd_pair(a, T + 20, T + 12, T + 13); rnd_pair(a, T + 21, T + 14, T + 15)
        rnd_pair(a, T + 22, o, o + 1); rnd_pair(a, T + 23, o + 2, o + 3)
        for r in range(4): a("v_mul_f32 v%d, v%d, v%d" % (T + 12 + r, T + 12 + r, S_ + 1))
        rnd_pair(a, T + 20, T + 12, T + 13); rnd_pair(a, T + 21, T + 14, T + 15)
        for r in range(4): a("v_mul_f32 v%d, v%d, v%d" % (T + 12 + r, T + 12 + r, T + 8 + r))
        rnd_pair(a, T + 20, T + 12, T + 13); rnd_pair(a, T + 21, T + 14, T + 15)
        for r in range(4): a("v_mul_f32 v%d, v%d, v%d" % (T + 12 + r, T + 12 + r, o + r))
        rnd_pair(a, T + 20, T + 12, T + 13); rnd_pair(a, T + 21, T + 14, T + 15)
        for r in range(4): a("v_add_f32 v%d, v%d, v%d" % (T + 12 + r, T + 12 + r, T + 4 + r))
        a("v_cvt_pk_bf16_f32 v%d, v%d, v%d" % (X, T + 12, T + 13))
        a("v_cvt_pk_bf16_f32 v%d, v%d, v%d" % (X + 1, T + 14, T + 15))
        a("buffer_store_dwordx2 %s, v13, s[28:31], s%d offen" % (vr(X, 2), b))
    a.label("%s_done" % name)
    stamp(a, 13)
    G.stamp_rt(a, 1)
    a.label("%s_end" % name)
    a("s_endpgm")
    for ft in range(5):
        a.label("%s_gsub%d" % (name, ft))
        tts = range(4 if ft < 4 else 2)
        emit_fold_gelu(a, [(128 + 4 * tidx(ft, tt), CS + 4 * ft, MR + 2 * tt, ZP + 2 * tidx(ft, tt)) for tt in tts], 72)
        a("s_setpc_b64 s[34:35]")
    return a.text(), kernel_desc(name, 256, 256), (name, 256, 512, YOFF + 10240)

def gen_kf12(name="k1_kernel", R=4):
    a = Asm()
    RB = 4096; SLOT = 34816; TREG = 16384; FS = 288; RST = 0
    LDSB = RB + R * SLOT
    LC = 2048
    ZFLG = 0x2D00000; PFL = 128
    KVL = 143360
    C0 = 77824; CW = 151552; CSL = 36864; YOFF = 151552; CTREG = 16384; CFS = 160
    from gen3 import emit_conv_loads, emit_conv_job, CJ_SIZE
    def capture(f, *args):
        lb = len(a.lines); f(*args); out = a.lines[lb:]; del a.lines[lb:]; return out

    def c_common():
        a("s_load_dwordx2 s[4:5], s[0:1], 0")
        a("s_load_dwordx2 s[16:17], s[0:1], 88")
        a("s_and_b32 s20, s2, 7")
        a("s_lshr_b32 s21, s2, 3")
        a("s_and_b32 s22, s20, 3")
        a("s_lshl_b32 s22, s22, 3")
        a("s_and_b32 s23, s21, 7")
        a("s_add_u32 s22, s22, s23")
        a("s_lshr_b32 s23, s20, 2")
        a("s_lshl_b32 s23, s23, 2")
        a("s_lshr_b32 s24, s21, 3")
        a("s_add_u32 s23, s23, s24")
        a("s_lshr_b32 s52, s23, 1")
        a("s_and_b32 s53, s23, 1")
        a("s_lshl_b32 s54, s98, 2")
        a("s_add_u32 s54, s54, s3")
        a("s_waitcnt lgkmcnt(0)")
        srd(a, 8, 4, 2048 * 576 * 2)
        srd(a, 28, 16, 2048 * 576 * 2)
    XR = 200; ST = 208
    def fin_loads():
        a("v_and_b32 v3, 15, v2")
        a("v_lshrrev_b32 v10, 4, v2")
        a("v_mul_u32_u24 v13, 1152, v3")
        a("v_lshl_add_u32 v13, v10, 3, v13")
        a("v_lshlrev_b32 v12, 3, v3")
        for s_ in range(3):
            if s_ == 2:
                a("s_cmp_ge_u32 s54, 2")
                a("s_cbranch_scc1 %s_fl%d" % (name, fin_loads.cnt))
            b = 64 + 4 * s_
            if s_ < 2:
                a("s_add_u32 s36, s54, %d" % (8 * s_))
                a("s_lshr_b32 s37, s36, 2")
                a("s_and_b32 s38, s36, 3")
                a("s_mul_i32 s39, s53, 160")
                a("s_lshl_b32 s40, s37, 5")
                a("s_add_u32 s39, s39, s40")
            else:
                a("s_add_u32 s36, s54, 16")
                a("s_mov_b32 s37, 4")
                a("s_mov_b32 s38, s54")
                a("s_mov_b32 s39, 128")
            a("s_lshl_b32 s40, s53, 1")
            a("s_add_u32 s38, s38, s40")
            a("s_and_b32 s38, s38, 3")
            a("s_lshl_b32 s40, s22, 2")
            a("s_add_u32 s40, s40, s38")
            a("s_lshl_b32 s40, s40, 4")
            a("s_mul_i32 s%d, s40, 1152" % b)
            a("s_add_u32 s%d, s%d, s39" % (b, b))
            a("s_mul_i32 s39, s52, 288")
            a("s_add_u32 s%d, s%d, s39" % (b, b))
            a("s_lshl_b32 s%d, s37, 11" % (b + 1))
            a("s_lshl_b32 s39, s38, 5")
            a("s_add_u32 s%d, s%d, s39" % (b + 1, b + 1))
            a("s_add_u32 s%d, s%d, %d" % (b + 1, b + 1, YOFF))
            a("s_lshl_b32 s%d, s36, 10" % (b + 2))
            a("s_add_u32 s%d, s%d, %d" % (b + 2, b + 2, C0))
            a("s_lshl_b32 s40, s40, 3")
            a("s_add_u32 s40, s40, 0x%x" % STATS1)
            a("buffer_load_dwordx2 %s, v13, s[8:11], s%d offen" % (vr(XR + 2 * s_, 2), b))
            a("buffer_load_dwordx2 %s, v12, s[12:15], s40 offen sc1" % vr(ST + 2 * s_, 2))
        a.label("%s_fl%d" % (name, fin_loads.cnt))
        fin_loads.cnt += 1
    fin_loads.cnt = 0
    kernel_begin(a, name)
    a("s_load_dwordx2 s[80:81], s[0:1], 0")
    a("s_load_dwordx2 s[4:5], s[0:1], 56")
    a("s_load_dwordx2 s[6:7], s[0:1], 104")
    a("s_load_dwordx2 s[18:19], s[0:1], 96")
    a("s_cmp_ge_u32 s2, 256")
    a("s_cbranch_scc1 %s_end" % name)
    a("v_lshrrev_b32 v1, 6, v0")
    a("v_and_b32 v2, 63, v0")
    a("v_readfirstlane_b32 s3, v1")
    G2.tile_ij(a)
    a("s_lshr_b32 s98, s3, 2")
    a("s_mov_b32 s54x, 0".replace("s54x", "s99"))
    a("s_and_b32 s3, s3, 3")
    a("s_lshr_b32 s24, s3, 1")
    a("s_and_b32 s25, s3, 1")
    a("v_and_b32 v3, 15, v2")
    VT = 204; VF = 208
    def loader_setup():
        a("v_lshrrev_b32 v5, 3, v2")
        a("v_and_b32 v4, 7, v2")
        a("s_lshl_b32 s36, s3, 5")
        a("v_add_u32 v5, s36, v5")
        a("v_lshrrev_b32 v7, 4, v2")
        a("v_xor_b32 v7, v7, v4")
        a("v_mul_u32_u24 v6, 1152, v5")
        a("v_lshl_add_u32 v%d, v7, 4, v6" % VT)
        a("v_xor_b32 v%d, 64, v%d" % (VT + 1, VT))
        a("v_add_u32 v%d, %d, v%d" % (VT + 1, 9216 - 1024, VT + 1))
        a("v_add_u32 v%d, %d, v%d" % (VT + 2, 2 * (9216 - 1024), VT))
        a("v_add_u32 v%d, %d, v%d" % (VT + 3, 2 * (9216 - 1024), VT + 1))
        a("s_lshl_b32 s84, s3, 12")
        a("s_add_u32 s84, s84, %d" % RB)
        a("s_lshl_b32 s85, s3, 9")
        a("s_add_u32 s85, s85, %d" % (RB + TREG + 16384))
    def loader_setup2():
        for n in range(5):
            if n < 4:
                a("s_lshl_b32 s36, s3, 8")
                a("s_add_u32 s36, s36, %d" % (64 * n))
            else:
                a("s_lshl_b32 s36, s3, 5")
                a("s_add_u32 s36, s36, 1024")
            a("v_add_u32 v6, s36, v2")
            a("v_mul_u32_u24 v7, 3641, v6")
            a("v_lshrrev_b32 v7, 16, v7")
            a("v_mul_u32_u24 v8, 18, v7")
            a("v_sub_u32 v8, v6, v8")
            a("v_and_b32 v9, 35, v7")
            a("v_bfe_u32 v6, v7, 2, 2")
            a("v_lshl_add_u32 v9, v6, 3, v9")
            a("v_bfe_u32 v6, v7, 4, 1")
            a("v_lshl_add_u32 v9, v6, 2, v9")
            a("v_mul_u32_u24 v9, 9216, v9")
            a("v_lshl_add_u32 v%d, v8, 4, v9" % (VF + n))
            if 0 < n < 4: a("v_subrev_u32 v%d, %d, v%d" % (VF + n, 1024 * n, VF + n))
    def issueT(g):
        st = g % 9
        a("s_add_u32 s86, s84, %d" % ((g % R) * SLOT))
        a("s_mov_b32 m0, s86")
        a("s_add_u32 s87, s82, %d" % (128 * st))
        for n in range(4):
            a("buffer_load_dwordx4 v%d, s[28:31], s87 offen offset:%d lds" % (VT + n, 1024 * n))
    def issueF(g):
        st = g % 9
        a("s_add_u32 s86, s84, %d" % ((g % R) * SLOT + TREG))
        a("s_mov_b32 m0, s86")
        a("s_add_u32 s87, s83, %d" % (64 * 9216 * st + (4608 if g < 9 else 0)))
        for n in range(4):
            a("buffer_load_dwordx4 v%d, s[8:11], s87 offen offset:%d lds" % (VF + n, 1024 * n))
        a("s_add_u32 s86, s85, %d" % ((g % R) * SLOT))
        a("s_mov_b32 m0, s86")
        a("s_mov_b64 exec, 0xffffffff")
        a("buffer_load_dwordx4 v%d, s[8:11], s87 offen lds" % (VF + 4))
        a("s_mov_b64 exec, -1")
    def srds_main():
        srd(a, 28, 80, 2048 * 576 * 2)
        srd(a, 8, 4, 576 * 4608 * 2)
        srd(a, 12, 6, WS_BYTES)
        srd(a, 60, 18, 256)
        a("s_mul_i32 s82, s22, %d" % (128 * 1152))
        a("s_mul_i32 s83, s23, 288")
    ACC = 128; FB = [16, 52]; CS = 216; ONE = 236
    vTa = [4, 5]; vTb = [6, 7]; vF = 8; vFh = 9
    bTa = [88, 89]; bTb = [90, 91]; bF = 92; bFh = 93
    def mma_setup():
        a("v_lshrrev_b32 v10, 4, v2")
        a("v_lshrrev_b32 v11, 1, v3")
        a("v_xor_b32 v10, v10, v11")
        a("v_lshlrev_b32 v10, 4, v10")
        a("v_lshl_add_u32 v10, v3, 7, v10")
        a("s_lshl_b32 s26, s24, 13")
        a("s_add_u32 s26, s26, %d" % RB)
        a("v_add_u32 v10, s26, v10")
        a("s_lshl_b32 s26, s25, 12")
        a("v_add_u32 v%d, s26, v10" % bTa[0])
        a("s_xor_b32 s26, s26, 4096")
        a("v_add_u32 v%d, s26, v10" % bTb[0])
        a("v_xor_b32 v%d, 64, v%d" % (bTa[1], bTa[0]))
        a("v_xor_b32 v%d, 64, v%d" % (bTb[1], bTb[0]))
        a("v_lshrrev_b32 v10, 2, v2")
        a("v_mul_u32_u24 v10, %d, v10" % FS)
        a("v_and_b32 v11, 3, v2")
        a("v_lshl_add_u32 v10, v11, 3, v10")
        a("v_add_u32 v10, %d, v10" % (RB + TREG))
        a("s_mul_i32 s26, s25, 160")
        a("v_add_u32 v%d, s26, v10" % bF)
        a("v_add_u32 v%d, 128, v10" % bFh)
        for r in range(ACC, ACC + 72): a("v_mov_b32 v%d, 0" % r)
        for r in range(CS, CS + 20): a("v_mov_b32 v%d, 0" % r)
        for r in range(ONE, ONE + 4): a("v_mov_b32 v%d, 0x3f803f80" % r)
    def mma_addr(slot):
        a("s_mov_b32 s27, %d" % (slot * SLOT))
        for d, s_ in ((vTa[0], bTa[0]), (vTb[0], bTb[0]), (vTa[1], bTa[1]), (vTb[1], bTb[1]), (vF, bF), (vFh, bFh)):
            a("v_add_u32 v%d, s27, v%d" % (d, s_))
    core = G.Core(a, ACC, FB[0], FB[1], FS, TREG, vTa, vTb, vF, vFh)
    trk = core.trk
    a("s_cmp_eq_u32 s98, 0")
    a("s_cbranch_scc1 %s_A0" % name)
    a("s_setprio 3")
    loader_setup()
    a("s_waitcnt lgkmcnt(0)")
    srds_main()
    vm = VmTracker(a)
    def issue(g, vmx):
        issueT(g); issueF(g); vmx.issue("S%d" % g, 9)
    issueT(0)
    loader_setup2()
    issueF(0); vm.issue("S0", 9)
    issue(1, vm); issue(2, vm); issue(3, vm)
    a("s_add_u32 s3, s3, 4"); stamp_setup(a, 1); stamp(a, 0); a("s_sub_u32 s3, s3, 4")
    a("s_load_dwordx4 s[64:67], s[0:1], 8")
    a("s_load_dwordx2 s[76:77], s[0:1], 24")
    mma_setup()
    a("s_waitcnt lgkmcnt(0)")
    srd(a, 68, 66, 2048 * 576 * 2)
    a("s_mov_b32 s88, s64"); a("s_mov_b32 s89, s65")
    srd(a, 64, 88, 2048 * 576 * 2)
    srd(a, 72, 76, 576 * 8)
    def kv_dma():
        a("s_lshr_b32 s36, s2, 3")
        a("s_mul_i32 s36, s36, %d" % (64 * 1152))
        a("s_and_b32 s37, s2, 7")
        a("s_mul_i32 s37, s37, 144")
        a("s_add_u32 s36, s36, s37")
        for q in range(5):
            a("s_add_u32 s38, s3, %d" % (4 * q))
            if q == 4: a("s_min_u32 s38, s38, 18")
            isK = (q < 2); isV = (q > 2)
            a("s_sub_u32 s39, s38, 10")
            a("s_cmp_lt_u32 s38, 10")
            a("s_cselect_b32 s39, s38, s39")
            a("s_cselect_b32 s40, %d, 0" % ((-3 * 1152) & 0xffffffff))
            a("s_lshl_b32 s37, s39, 6")
            a("v_add_u32 v240, s37, v2")
            a("v_mul_u32_u24 v241, 7282, v240")
            a("v_lshrrev_b32 v241, 16, v241")
            a("v_mul_u32_u24 v242, 9, v241")
            a("v_sub_u32 v242, v240, v242")
            a("v_mul_u32_u24 v241, 1152, v241")
            a("v_lshl_add_u32 v241, v242, 4, v241")
            a("s_add_u32 s40, s40, s36")
            a("v_add_u32 v241, s40, v241")
            a("s_lshl_b32 s37, s38, 10")
            a("s_add_u32 s37, s37, %d" % KVL)
            a("s_mov_b32 m0, s37")
            if isK:
                a("s_nop 0")
                a("buffer_load_dwordx4 v241, s[64:67], 0 offen lds")
            elif isV:
                a("s_nop 0")
                a("buffer_load_dwordx4 v241, s[68:71], 0 offen lds")
            else:
                a("s_cmp_lt_u32 s38, 10")
                a("s_cbranch_scc1 %s_kd1" % name)
                a("buffer_load_dwordx4 v241, s[68:71], 0 offen lds")
                a("s_branch %s_kd2" % name)
                a.label("%s_kd1" % name)
                a("buffer_load_dwordx4 v241, s[64:67], 0 offen lds")
                a.label("%s_kd2" % name)
    RA = 96; XB = 112
    for r in range(RA, RA + 16): a("v_mov_b32 v%d, 0" % r)
    a("v_lshrrev_b32 v10, 4, v2")
    a("v_lshrrev_b32 v11, 1, v3")
    a("v_xor_b32 v10, v10, v11")
    a("v_lshlrev_b32 v10, 4, v10")
    a("v_lshl_add_u32 v10, v3, 7, v10")
    a("v_add_u32 v12, s84, v10")
    a("v_xor_b32 v13, 64, v12")
    def rs_rd(g):
        a("v_add_u32 v10, %d, v12" % ((g % R) * SLOT))
        a("v_add_u32 v11, %d, v13" % ((g % R) * SLOT))
        for h in range(2):
            for n in range(2):
                a("ds_read_b128 %s, v%d offset:%d" % (vr(XB + 8 * h + 4 * n), 10 + h, 2048 * n))
    def rs_do():
        for h in range(2):
            for n in range(2):
                x = XB + 8 * h + 4 * n
                a("v_mfma_f32_16x16x32_bf16 %s, %s, %s, %s" % (vr(RA + 4 * n), vr(ONE), vr(x), vr(RA + 4 * n)))
                a("v_mfma_f32_16x16x32_bf16 %s, %s, %s, %s" % (vr(RA + 8 + 4 * n), vr(x), vr(x), vr(RA + 8 + 4 * n)))
    def interleave(dma, comp, vmx=None):
        groups = []; cur = []
        for l in dma:
            cur.append(l)
            if "buffer_load" in l and not any("exec, 0xffffffff" in x for x in cur[-2:]):
                groups.append(cur); cur = []
            elif "exec, -1" in l:
                groups.append(cur); cur = []
        if cur: groups.append(cur)
        ns = max(1, len(groups))
        per = (len(comp) + ns - 1) // ns
        for g in groups:
            a.lines.extend(g)
            a.lines.extend(comp[:per]); comp = comp[per:]
        a.lines.extend(comp)
    vm.wait(["S0"])
    a("s_barrier")
    stamp(a, 1)
    rs_rd(0)
    vm.wait(["S1"])
    a("s_barrier")
    for k in range(9):
        a("s_waitcnt lgkmcnt(0)")
        dma = capture(lambda: (issueT(k + 3), issueF(k + 3))) if k >= 1 else []
        interleave(dma, capture(rs_do))
        if k >= 1: vm.issue("S%d" % (k + 3), 9)
        if k == 3:
            kv_dma(); vm.issue("KV", 5)
        if k < 8:
            rs_rd(k + 1)
        else:
            a("s_nop 7")
            a("v_lshrrev_b32 v10, 4, v2")
            a("v_lshrrev_b32 v11, 2, v3")
            a("v_and_b32 v12, 3, v3")
            for n in range(2):
                G_ = RA + 8 + 4 * n
                for r in range(1, 4):
                    a("v_cmp_eq_u32 vcc, %d, v12" % r)
                    a("s_nop 1")
                    a("v_cndmask_b32 v%d, v%d, v%d, vcc" % (G_, G_, G_ + r))
            ML = 112
            for n in range(2):
                emit_ln_finish(a, RA + 4 * n, RA + 8 + 4 * n, 576, ML + 2 * n, ML + 2 * n + 1, 120)
                a("v_mov_b32 v%d, v%d" % (117 + 2 * n, ML + 2 * n + 1))
                a("v_sub_f32 v%d, 0, v%d" % (116 + 2 * n, ML + 2 * n))
            a("s_lshl_b32 s35, s3, 8")
            a("v_lshlrev_b32 v13, 3, v3")
            a("v_add_u32 v12, s35, v13")
            a("v_cmp_eq_u32 vcc, v10, v11")
            a("s_and_saveexec_b64 s[36:37], vcc")
            for n in range(2):
                a("ds_write_b64 v12, %s offset:%d" % (vr(116 + 2 * n, 2), RST + 128 * n))
            a("s_mov_b64 exec, s[36:37]")
            a("s_cmp_lg_u32 s23, 0")
            a("s_cbranch_scc1 %s_nost1" % name)
            a("s_lshl_b32 s35, s22, 7")
            a("s_lshl_b32 s36, s3, 5")
            a("s_add_u32 s35, s35, s36")
            a("s_lshl_b32 s35, s35, 3")
            a("s_add_u32 s35, s35, 0x%x" % STATS1)
            a("v_mov_b32 v11, 0x7ffffff0")
            a("v_cndmask_b32 v13, v11, v13, vcc")
            for n in range(2):
                a("buffer_store_dwordx2 %s, v13, s[12:15], s35 offen offset:%d sc1" % (vr(ML + 2 * n, 2), 128 * n))
            a.label("%s_nost1" % name)
            mma_addr(9 % R)
            a("s_mov_b32 s33, 0")
            a("s_setprio 0")
        vm.wait(["S%d" % (k + 2)], "lgkmcnt(0)" if k == 8 else "")
        if k < 8: a("s_barrier")
    a("s_branch %s_mma" % name)
    a.label("%s_A0" % name)
    emit_code_prefetch(a, name)
    a("s_load_dwordx4 s[64:67], s[0:1], 8")
    a("s_load_dwordx2 s[76:77], s[0:1], 24")
    a("s_load_dwordx2 s[78:79], s[0:1], 64")
    mma_setup()
    loader_setup(); loader_setup2()
    a("s_waitcnt lgkmcnt(0)")
    srds_main()
    srd(a, 68, 66, 2048 * 576 * 2)
    a("s_mov_b32 s88, s64"); a("s_mov_b32 s89, s65")
    srd(a, 64, 88, 2048 * 576 * 2)
    srd(a, 72, 76, 576 * 8)
    stamp_setup(a, 1); stamp(a, 0)
    def gran_addr():
        a("v_lshrrev_b32 v10, 4, v2")
        a("s_lshl_b32 s36, s25, 1")
        a("v_add_u32 v11, s36, v10")
        a("v_and_b32 v11, 3, v11")
        a("v_lshl_add_u32 v11, v11, 4, v3")
        a("v_lshlrev_b32 v94, 8, v11")
        a("s_lshl_b32 s59, s22, 7")
        a("s_lshl_b32 s36, s24, 6")
        a("s_add_u32 s59, s59, s36")
        a("s_lshl_b32 s59, s59, 8")
        a("s_add_u32 s59, s59, 0x%x" % STATS2)
        a("s_lshl_b32 s36, s23, 1")
        a("s_add_u32 s36, s36, s25")
        a("s_lshl_b32 s36, s36, 3")
        a("s_add_u32 s58, s36, s59")
    gran_addr()
    a("v_mov_b32 v12, 0"); a("v_mov_b32 v13, 0x80000000")
    a("buffer_store_dwordx2 v[12:13], v94, s[12:15], s58 offen sc1")
    a("s_lshl_b32 s36, s22, 4")
    a("s_add_u32 s36, s36, s23")
    a("s_lshl_b32 s36, s36, 8")
    a("s_add_u32 s97, s36, 0x%x" % ZFLG)
    a("v_mov_b32 v10, %d" % LC)
    a("v_mov_b32 v12, 0"); a("v_mov_b32 v13, 0")
    a("s_mov_b64 exec, 1")
    a("buffer_store_dword v12, v12, s[12:15], s97 offen sc1")
    a("buffer_store_dword v12, v12, s[12:15], s97 offen offset:%d sc1" % PFL)
    a("s_mov_b64 exec, -1")
    a("ds_write_b64 v10, v[12:13]")
    a("ds_write_b64 v10, v[12:13] offset:8")
    a("ds_write_b64 v10, v[12:13] offset:16")
    a("ds_write_b64 v10, v[12:13] offset:24")
    mma_addr(0)
    a("s_mov_b32 s33, 0")
    a("s_waitcnt lgkmcnt(0)")
    a("s_barrier")
    stamp(a, 1)
    a.label("%s_mma" % name)
    core.prime(0, core.reads(0, 0))
    trk.drain()
    nocs = [False]
    def mfmas(buf):
        L = []
        for ft in range(5):
            A = core.F(buf, ft)
            for tt in range(4 if ft < 4 else 2):
                c = core.accr(ft, tt); B = core.T(buf, tt)
                L.append(("v_mfma_f32_16x16x32_bf16 %s, %s, %s, %s" % (vr(c), vr(A), vr(B), vr(c)), list(range(A, A + 4)) + list(range(B, B + 4))))
            if not nocs[0]: L.append(("v_mfma_f32_16x16x32_bf16 %s, %s, %s, %s" % (vr(CS + 4 * ft), vr(A), vr(ONE), vr(CS + 4 * ft)), list(range(A, A + 4))))
        return L
    def phase(buf, pend):
        for (m, regs) in mfmas(buf):
            trk.need(regs)
            a(m)
            while pend:
                k, t = pend.pop(0)
                if k == "x":
                    a(t)
                    if t.startswith("s_"): continue
                else:
                    a(t[0]); trk.issue(t[1])
                break
        for k, t in pend:
            if k == "x": a(t)
            else: a(t[0]); trk.issue(t[1])
    def iteration(vw=True):
        if vw: a("s_waitcnt vmcnt(0)")
        a("s_barrier")
        rd = [("r", t) for t in core.reads(1, 1)]
        upd = ["s_add_u32 s27, s27, %d" % SLOT, "s_cmp_eq_u32 s27, %d" % (R * SLOT), "s_cselect_b32 s27, 0, s27"]
        tail = ["v_add_u32 v%d, s27, v%d" % (d, s_) for d, s_ in ((vTa[0], bTa[0]), (vF, bF), (vTb[0], bTb[0]), (vFh, bFh))]
        phase(0, rd[:1] + [("x", u) for u in upd] + rd[1:] + [("x", u) for u in tail])
        rd = [("r", t) for t in core.reads(0, 0)]
        tail = ["v_add_u32 v%d, s27, v%d" % (d, s_) for d, s_ in ((vTa[1], bTa[1]), (vTb[1], bTb[1]))] + ["s_add_u32 s33, s33, 1"]
        phase(1, rd + [("x", u) for u in tail])
    a.label("%s_cloop" % name)
    lb = len(a.lines); iteration(); st = copy.deepcopy(trk.out); del a.lines[lb:]; trk.out = copy.deepcopy(st)
    iteration()
    assert [sorted(x) for x in trk.out] == [sorted(x) for x in st]
    a("s_cmp_lt_u32 s33, 9")
    a("s_cbranch_scc1 %s_cloop" % name)
    trk.drain()
    stamp(a, 2)
    MR = 100; T = 72; ZP = 16
    def epi_in():
        gelu_consts(a)
        a("s_lshl_b32 s36, s24, 9")
        a("s_lshl_b32 s37, s25, 8")
        a("s_add_u32 s38, s36, s37")
        a("s_xor_b32 s37, s37, 256")
        a("s_add_u32 s39, s36, s37")
        a("v_lshlrev_b32 v10, 3, v3")
        a("v_add_u32 v11, s38, v10")
        a("ds_read_b64 %s, v11 offset:%d" % (vr(MR, 2), RST))
        a("ds_read_b64 %s, v11 offset:%d" % (vr(MR + 2, 2), RST + 128))
        a("v_add_u32 v11, s39, v10")
        a("ds_read_b64 %s, v11 offset:%d" % (vr(MR + 4, 2), RST))
        a("ds_read_b64 %s, v11 offset:%d" % (vr(MR + 6, 2), RST + 128))
        a("s_waitcnt lgkmcnt(0)")
    S = [108, 110, 52, 54]; Q = [109, 111, 53, 55]
    def gelu_ft(ft, stats):
        tts = range(4 if ft < 4 else 2)
        a("s_call_b64 s[34:35], %s_gsub%d" % (name, ft))
        if stats:
            for d in range(2):
                for tt in tts:
                    p = ZP + 2 * tidx(ft, tt) + d
                    a("v_dot2_f32_bf16 v%d, v%d, v%d, v%d" % (S[tt], p, ONE, S[tt]))
                    a("v_dot2_f32_bf16 v%d, v%d, v%d, v%d" % (Q[tt], p, p, Q[tt]))
    a("s_cmp_eq_u32 s98, 0")
    a("s_cbranch_scc1 %s_A1" % name)
    a("s_barrier")
    a("s_load_dwordx2 s[94:95], s[0:1], 80")
    a("s_load_dwordx2 s[92:93], s[0:1], 72")
    epi_in()
    srd(a, 76, 94, 2304 * 576 * 2)
    srd(a, 28, 92, 2048 * 2)
    a("v_and_b32 v0, 255, v0")
    a("v_lshrrev_b32 v1, 3, v0")
    a("v_and_b32 v10, 7, v0")
    a("s_lshr_b32 s38, s2, 3")
    a("s_lshl_b32 s38, s38, 6")
    a("v_lshl_add_u32 v252, v10, 3, s38")
    a("s_and_b32 s39, s2, 7")
    a("s_mul_i32 s39, s39, 144")
    a("v_lshl_add_u32 v253, v1, 2, s39")
    a("v_lshlrev_b32 v11, 2, v253")
    a("buffer_load_dwordx4 v[248:251], v11, s[72:75], 0 offen")
    a("buffer_load_dwordx4 v[244:247], v11, s[72:75], 0 offen offset:512")
    a("v_mul_u32_u24 v254, 1152, v10")
    a("v_lshl_add_u32 v254, v1, 2, v254")
    a("v_add_u32 v254, %d, v254" % KVL)
    a("s_mov_b32 s41, 0")
    for ft in range(5): gelu_ft(ft, False)
    Z1R = 200; BI = 236
    for r_ in range(36): a("v_mov_b32 v%d, v%d" % (Z1R + r_, ZP + r_))
    stamp(a, 3)
    a("s_waitcnt vmcnt(0)")
    for r_ in range(6): a("v_mov_b32 v%d, v%d" % (128 + r_, 88 + r_))
    a.label("%s_kvb" % name)
    for n in range(11): a("ds_read_b32 v%d, v254 offset:%d" % (16 + n, 144 * n))
    a("s_waitcnt lgkmcnt(4)")
    for n in range(8): a("ds_read_b32 v%d, v254 offset:%d" % (32 + n, 10240 + 144 * n))
    for n in range(4): a("v_mov_b32 v%d, v%d" % (44 + n, 248 + n))
    a("v_mov_b32 v56, v252"); a("v_mov_b32 v57, v253")
    a("s_waitcnt lgkmcnt(0)")
    emit_kv_compute(a, wait=False, store=False)
    a("s_mov_b32 s39, 0x%x" % KVT)
    a("buffer_store_dwordx4 v[120:123], v12, s[12:15], s39 offen sc1")
    a("buffer_store_dwordx4 v[124:127], v13, s[12:15], s39 offen sc1")
    a("s_cmp_lg_u32 s41, 0")
    a("s_cbranch_scc1 %s_kvbx" % name)
    a("s_cmp_lg_u32 s3, 0")
    a("s_cbranch_scc1 %s_kvbx" % name)
    a("s_mov_b32 s41, 1")
    for n in range(4): a("v_mov_b32 v%d, v%d" % (248 + n, 244 + n))
    a("v_add_u32 v253, 128, v253")
    a("v_add_u32 v254, 128, v254")
    a("s_mov_b64 exec, 0xffffffff")
    a("s_branch %s_kvb" % name)
    a.label("%s_kvbx" % name)
    a("s_mov_b64 exec, -1")
    for r_ in range(6): a("v_mov_b32 v%d, v%d" % (240 + r_, 128 + r_))
    a.label("%s_kvbd" % name)
    for r_ in range(6): a("v_mov_b32 v%d, v%d" % (88 + r_, 240 + r_))
    a("s_mov_b32 s42, s2")
    emit_wot_loads(a, 100, 112, 720, 3)
    a("s_lshl_b32 s36, s22, 7")
    a("s_lshl_b32 s37, s24, 6")
    a("s_add_u32 s36, s36, s37")
    a("v_lshlrev_b32 v11, 1, v3")
    a("s_lshl_b32 s37, s25, 6")
    a("s_lshl_b32 s38, s36, 1")
    a("s_add_u32 s39, s38, s37")
    a("s_xor_b32 s37, s37, 64")
    a("s_add_u32 s36, s38, s37")
    a("buffer_load_ushort v96, v11, s[28:31], s39 offen")
    a("buffer_load_ushort v97, v11, s[28:31], s39 offen offset:32")
    a("buffer_load_ushort v98, v11, s[28:31], s36 offen")
    a("buffer_load_ushort v99, v11, s[28:31], s36 offen offset:32")
    for r in range(ACC, ACC + 72): a("v_mov_b32 v%d, 0" % r)
    a("v_lshrrev_b32 v10, 2, v2")
    a("v_lshlrev_b32 v10, 5, v10")
    a("v_and_b32 v11, 3, v2")
    a("v_lshl_add_u32 v10, v11, 3, v10")
    a("v_add_u32 v10, %d, v10" % (RB + TREG))
    a("s_mul_i32 s26, s25, 10240")
    a("v_add_u32 v%d, s26, v10" % bF)
    a("v_add_u32 v%d, 8192, v10" % bFh)
    core.FS = 32; core.FT = 2048
    mma_addr(0)
    a("s_mov_b32 s33, 0")
    stamp(a, 4)
    a("s_barrier")
    stamp(a, 5)
    core.prime(0, core.reads(0, 0))
    trk.drain()
    nocs[0] = True
    a.label("%s_gloop" % name)
    lb = len(a.lines); iteration(False); st = copy.deepcopy(trk.out); del a.lines[lb:]; trk.out = copy.deepcopy(st)
    iteration(False)
    assert [sorted(x) for x in trk.out] == [sorted(x) for x in st]
    a("s_cmp_lg_u32 s33, 3")
    a("s_cbranch_scc1 %s_ghk0" % name)
    a("s_waitcnt vmcnt(0)")
    for n in range(3):
        a("buffer_store_dwordx4 %s, v%d, s[12:15], s40 offen sc1" % (vr(100 + 4 * n), 112 + n))
    for tt in range(4): a("v_lshlrev_b32 v%d, 16, v%d" % (BI + 2 * tt, 96 + tt))
    a.label("%s_ghk0" % name)
    a("s_cmp_lg_u32 s33, 6")
    a("s_cbranch_scc1 %s_ghk" % name)
    a("s_waitcnt vmcnt(0)")
    a("v_mov_b32 v10, %d" % (LC + 8))
    a("v_mov_b32 v11, 1")
    a("s_mov_b64 exec, 1")
    a("ds_add_rtn_u32 v12, v10, v11")
    a("s_waitcnt lgkmcnt(0)")
    a("v_readfirstlane_b32 s36, v12")
    a("s_cmp_lg_u32 s36, 3")
    a("s_cbranch_scc1 %s_nokvs" % name)
    a("s_and_b32 s36, s2, 15")
    a("s_lshl_b32 s36, s36, 2")
    a("s_add_u32 s36, s36, 128")
    a("v_mov_b32 v10, s36")
    a("buffer_atomic_add v11, v10, s[60:63], 0 offen sc1")
    a.label("%s_nokvs" % name)
    a("s_mov_b64 exec, -1")
    a.label("%s_ghk" % name)
    a("s_cmp_lg_u32 s33, 24")
    a("s_cbranch_scc1 %s_ghk2" % name)
    a("v_lshlrev_b32 v10, 2, v3")
    a("buffer_load_dword v254, v10, s[60:63], 0 offen offset:128 sc1")
    a.label("%s_ghk2" % name)
    a("s_cmp_lt_u32 s33, 32")
    a("s_cbranch_scc1 %s_gloop" % name)
    trk.drain()
    stamp(a, 6)
    G3.emit_k2_epilogue2(a, core, Z1R, BI, " sc1")
    stamp(a, 7)
    a("s_setprio 3")
    a("s_lshl_b32 s36, s22, 4")
    a("s_add_u32 s36, s36, s23")
    a("s_lshl_b32 s36, s36, 8")
    a("s_add_u32 s97, s36, 0x%x" % (ZFLG + PFL))
    c_common()
    a("v_lshlrev_b32 v14, 4, v2")
    a("s_mul_i32 s26, s22, %d" % (36 * 8192))
    a("s_lshl_b32 s24, s3, 12")
    a("s_add_u32 s26, s26, s24")
    a("s_add_u32 s26, s26, 0x%x" % PIMG)
    a("s_mul_i32 s27, s23, %d" % (18 * 20480))
    a("s_mul_i32 s25, s3, 5120")
    a("s_add_u32 s27, s27, s25")
    a("s_add_u32 s27, s27, 0x%x" % WOT)
    a("s_add_u32 s25, s25, %d" % CTREG)
    a("v_and_b32 v28, 15, v2")
    a("v_lshlrev_b32 v30, 2, v28")
    a("v_mov_b32 v26, %d" % LC)
    a("v_mov_b32 v27, 1")
    a("s_waitcnt vmcnt(0)")
    a("v_mov_b32 v31, v254")
    a("s_mov_b64 exec, 1")
    a("ds_add_rtn_u32 v29, v26, v27 offset:16")
    a("s_waitcnt lgkmcnt(0)")
    a("v_readfirstlane_b32 s36, v29")
    a("s_cmp_lg_u32 s36, 3")
    a("s_cbranch_scc1 %s_nops" % name)
    a("v_mov_b32 v29, 0")
    a("buffer_store_dword v27, v29, s[12:15], s97 offen sc1")
    a.label("%s_nops" % name)
    a("s_mov_b64 exec, -1")
    a("s_mov_b32 s34, 0")
    a.label("%s_cw" % name)
    a("ds_read_b32 v29, v26 offset:16")
    a("s_add_u32 s34, s34, 1")
    a("s_waitcnt lgkmcnt(0)")
    a("v_readfirstlane_b32 s36, v29")
    a("s_cmp_gt_u32 s34, %d" % (SPIN_MAX * 20))
    a("s_cbranch_scc1 %s_cwx" % name)
    a("s_cmp_ge_u32 s36, 4")
    a("s_cbranch_scc1 %s_cwx" % name)
    a("s_sleep 1")
    a("s_branch %s_cw" % name)
    a.label("%s_cwx" % name)
    a("s_mov_b32 s34, 0")
    a.label("%s_cp" % name)
    a("v_cmp_gt_u32 vcc, 16, v31")
    a("s_add_u32 s34, s34, 1")
    a("s_cmp_gt_u32 s34, %d" % SPIN_MAX)
    a("s_cbranch_scc1 %s_cpx" % name)
    a("s_cbranch_vccz %s_cpx" % name)
    a("s_sleep 32")
    a("buffer_load_dword v31, v30, s[60:63], 0 offen offset:128 sc1")
    a("s_waitcnt vmcnt(0)")
    a("s_branch %s_cp" % name)
    a.label("%s_cpx" % name)
    def cF(off, soff):
        a("s_add_u32 s36, s25, %s" % off)
        a("s_mov_b32 m0, s36")
        a("s_add_u32 s37, %s, 4096" % soff)
        for n in range(4):
            a("buffer_load_dwordx4 v14, s[12:15], %s offen offset:%d sc1 lds" % (soff, n * 1024))
        a("s_add_u32 s36, s36, 4096")
        a("s_mov_b32 m0, s36")
        a("s_nop 0")
        a("buffer_load_dwordx4 v14, s[12:15], s37 offen sc1 lds")
    def cT(off, soff):
        a("s_add_u32 s35, s24, %s" % off)
        a("s_mov_b32 m0, s35")
        a("s_nop 0")
        for n in range(4):
            a("buffer_load_dwordx4 v14, s[12:15], %s offen offset:%d sc1 lds" % (soff, n * 1024))
    a("s_add_u32 s38, s27, 20480")
    cF(str(C0), "s27"); cF(str(C0 + CSL), "s38")
    a("s_mov_b32 s34, 0")
    a("s_cmp_lg_u32 s3, 0")
    a("s_cbranch_scc1 %s_cpl" % name)
    a("v_lshlrev_b32 v28, 8, v28")
    a("s_lshr_b32 s39, s22, 1")
    a("s_lshl_b32 s39, s39, 12")
    a("s_add_u32 s39, s39, 0x%x" % (ZFLG + PFL))
    a.label("%s_cpz" % name)
    a("buffer_load_dword v29, v28, s[12:15], s39 offen sc1")
    a("s_add_u32 s34, s34, 1")
    a("s_waitcnt vmcnt(0)")
    a("v_cmp_ne_u32 vcc, 1, v29")
    a("s_cmp_gt_u32 s34, %d" % SPIN_MAX)
    a("s_cbranch_scc1 %s_cpzx" % name)
    a("s_cbranch_vccz %s_cpzx" % name)
    a("s_sleep 8")
    a("s_branch %s_cpz" % name)
    a.label("%s_cpzx" % name)
    a("ds_write_b32 v26, v27 offset:24")
    a("s_branch %s_cgo" % name)
    a.label("%s_cpl" % name)
    a("ds_read_b32 v29, v26 offset:24")
    a("s_add_u32 s34, s34, 1")
    a("s_waitcnt lgkmcnt(0)")
    a("v_readfirstlane_b32 s36, v29")
    a("s_cmp_gt_u32 s34, %d" % (SPIN_MAX * 20))
    a("s_cbranch_scc1 %s_cgo" % name)
    a("s_cmp_lg_u32 s36, 0")
    a("s_cbranch_scc1 %s_cgo" % name)
    a("s_sleep 2")
    a("s_branch %s_cpl" % name)
    a.label("%s_cgo" % name)
    stamp(a, 8)
    a("s_add_u32 s38, s26, 16384")
    cT(str(C0), "s26"); cT(str(C0 + CSL), "s38")
    a("s_add_u32 s26, s26, 32768")
    a("s_add_u32 s27, s27, 40960")
    a("s_mov_b32 s33, %d" % RB)
    def cissue():
        cT("s33", "s26"); cF("s33", "s27")
        a("s_add_u32 s26, s26, 16384")
        a("s_add_u32 s27, s27, 20480")
        a("s_add_u32 s33, s33, %d" % CSL)
        a("s_cmp_eq_u32 s33, %d" % CW)
        a("s_cselect_b32 s33, %d, s33" % RB)
    a("s_waitcnt vmcnt(4)")
    a("s_barrier")
    cissue(); cissue()
    a("s_waitcnt vmcnt(18)")
    a("s_barrier")
    a("s_mov_b32 s34, 0")
    a.label("%s_clloop" % name)
    cissue()
    a("s_cmp_lg_u32 s34, 11")
    a("s_cbranch_scc1 %s_cl1" % name)
    a("buffer_load_dword v31, v30, s[60:63], 0 offen offset:192 sc1")
    a("s_waitcnt vmcnt(19)")
    a("s_branch %s_cl2" % name)
    a.label("%s_cl1" % name)
    a("s_waitcnt vmcnt(18)")
    a.label("%s_cl2" % name)
    a("s_barrier")
    a("s_add_u32 s34, s34, 1")
    a("s_cmp_lt_u32 s34, 14")
    a("s_cbranch_scc1 %s_clloop" % name)
    a("s_mov_b32 s34, 0")
    a.label("%s_cy" % name)
    a("v_cmp_gt_u32 vcc, 16, v31")
    a("s_add_u32 s34, s34, 1")
    a("s_cmp_gt_u32 s34, %d" % SPIN_MAX)
    a("s_cbranch_scc1 %s_cyx" % name)
    a("s_cbranch_vccz %s_cyx" % name)
    a("s_sleep 32")
    a("buffer_load_dword v31, v30, s[60:63], 0 offen offset:192 sc1")
    a("s_waitcnt vmcnt(0)")
    a("s_branch %s_cy" % name)
    a.label("%s_cyx" % name)
    a("v_lshrrev_b32 v3, 3, v2")
    a("v_and_b32 v4, 7, v2")
    a("v_lshlrev_b32 v4, 4, v4")
    a("s_mul_i32 s33, s52, 144")
    a("s_mul_i32 s34, s53, 80")
    a("s_lshl_b32 s35, s22, 7")
    a("s_add_u32 s35, s35, 0x%x" % YT)
    for n in range(3):
        a("s_add_u32 s36, s3, %d" % (4 * n))
        if n == 2: a("s_min_u32 s36, s36, 9")
        a("s_lshl_b32 s37, s36, 3")
        a("s_add_u32 s38, s37, s33")
        if n < 2: a("s_add_u32 s38, s38, s34")
        a("v_add_u32 v5, s38, v3")
        a("v_lshl_add_u32 v5, v5, 12, v4")
        a("s_lshl_b32 s36, s36, 10")
        a("s_add_u32 s36, s36, %d" % YOFF)
        a("s_mov_b32 m0, s36")
        a("s_nop 0")
        a("buffer_load_dwordx4 v5, s[12:15], s35 offen sc1 lds")
    fin_loads()
    a("s_waitcnt vmcnt(%d)" % (9 + 7))
    a("s_barrier")
    a("s_waitcnt vmcnt(7)")
    a("s_barrier")
    a("s_barrier")
    a("s_setprio 0")
    a("s_waitcnt vmcnt(0)")
    a("s_branch %s_cfin" % name)
    a.label("%s_A1" % name)
    a("s_setprio 2")
    vmA = VmTracker(a)
    PB = 132
    def aux_head():
        epi_in()
        for tt in range(4):
            a("v_mov_b32 v%d, 0" % S[tt]); a("v_mov_b32 v%d, 0" % Q[tt])
    def aux_pub():
        a("s_nop 2")
        emit_xg_reduce(a, S + Q, 72)
        a("v_lshrrev_b32 v10, 4, v2")
        for g in range(1, 4):
            a("v_cmp_eq_u32 vcc, %d, v10" % g)
            a("s_nop 1")
            a("v_cndmask_b32 v%d, v%d, v%d, vcc" % (S[0], S[0], S[g]))
            a("v_cndmask_b32 v%d, v%d, v%d, vcc" % (Q[0], Q[0], Q[g]))
        a("v_and_b32 v%d, 0x7fffffff, v%d" % (Q[0], Q[0]))
        a("buffer_store_dwordx2 v[%d:%d], v94, s[12:15], s58 offen sc1" % (S[0], Q[0]))
    chunks = [capture(aux_head) + capture(gelu_ft, 0, True), capture(gelu_ft, 1, True), capture(gelu_ft, 2, True),
              capture(gelu_ft, 3, True), capture(gelu_ft, 4, True) + capture(aux_pub)]
    KD = 172
    for k in range(9, 18):
        a("s_barrier")
        if k == 9:
            a("s_cmp_lg_u32 s3, 0")
            a("s_cbranch_scc1 %s_nosig" % name)
            a("v_mov_b32 v10, 1")
            a("s_lshl_b32 s36, s22, 2")
            a("v_mov_b32 v11, s36")
            a("s_mov_b64 exec, 1")
            a("buffer_atomic_add v10, v11, s[60:63], 0 offen sc1")
            a("s_mov_b64 exec, -1")
            a.label("%s_nosig" % name)
        g = k + 3
        dma = capture(lambda: (issueT(g), issueF(g))) if g < 18 else []
        comp = chunks[k - 9] if k - 9 < len(chunks) else []
        a.lines.extend(dma); a.lines.extend(comp)
        if k == 13: vmA.issue("pub", 1)
        if g < 18: vmA.issue("S%d" % g, 9)
        if k == 14:
            srd(a, 92, 78, 2048 * 2048 * 2)
            a("v_lshrrev_b32 v10, 4, v2")
            a("v_lshlrev_b32 v10, 12, v10")
            a("v_lshl_add_u32 v10, v3, 4, v10")
            a("s_lshl_b32 s40, s22, 7")
            a("s_lshl_b32 s36, s3, 5")
            a("s_add_u32 s40, s40, s36")
            a("s_lshl_b32 s40, s40, 12")
            a("s_lshl_b32 s36, s23, 8")
            a("s_add_u32 s40, s40, s36")
            for n in range(8):
                a("buffer_load_dwordx4 v[200:203], v10, s[92:95], s40 offen")
                if n < 7: a("s_add_u32 s40, s40, 16384")
            vmA.issue("wp", 8)
            a("s_lshl_b32 s36, s22, 2")
            a("v_mov_b32 v199, s36")
            a("buffer_load_dword v198, v199, s[60:63], 0 offen sc1"); vmA.issue("cnt", 1)
        if k + 2 < 18 and k + 2 >= 12:
            vmA.wait(["S%d" % (k + 2)])
    a("s_barrier")
    stamp(a, 3)
    a("s_load_dwordx4 s[88:91], s[0:1], 32")
    a("v_lshrrev_b32 v10, 4, v2")
    a("v_lshlrev_b32 v95, 8, v3")
    a("v_lshl_add_u32 v95, v10, 6, v95")
    a("s_lshl_b32 s33, s25, 13")
    a("s_add_u32 s52, s59, s33")
    a("s_xor_b32 s33, s33, 8192")
    a("s_add_u32 s53, s59, s33")
    a("s_add_u32 s42, s52, 4096")
    a("s_add_u32 s43, s53, 4096")
    Z2 = ZP
    a("s_waitcnt vmcnt(0)")
    GB = [128, 144, 160, 176]
    a("v_mov_b32 v4, v95")
    def gather():
        for tt in range(4):
            for q in range(4):
                a("buffer_load_dwordx4 %s, v4, s[12:15], s%d offen offset:%d sc1" % (vr(GB[tt] + 4 * q), (52, 42, 53, 43)[tt], 16 * q))
    gather()
    a("s_mov_b32 s40, 0")
    a("s_waitcnt vmcnt(0)")
    a.label("%s_chk" % name)
    a("v_subrev_u32 v11, 16, v198")
    for tt in range(4):
        for r in range(GB[tt] + 1, GB[tt] + 16, 4):
            a("v_or3_b32 v11, v11, v%d, v%d" % (r, r + 2))
    a("v_cmp_gt_i32 vcc, 0, v11")
    a("s_add_u32 s40, s40, 1")
    a("s_cmp_gt_u32 s40, %d" % SPIN_MAX)
    a("s_cbranch_scc1 %s_ok" % name)
    a("s_cbranch_vccz %s_ok" % name)
    a("s_sleep 32")
    a("buffer_load_dword v198, v199, s[60:63], 0 offen sc1")
    a("s_waitcnt vmcnt(0)")
    gather()
    a("s_waitcnt vmcnt(0)")
    a("s_branch %s_chk" % name)
    a.label("%s_ok" % name)
    stamp(a, 5)
    for tt in range(4):
        b = GB[tt]
        for st_ in (8, 4, 2):
            for q in range(0, st_, 2):
                a("v_pk_add_f32 %s, %s, %s" % (vr(b + q, 2), vr(b + q, 2), vr(b + q + st_, 2)))
    emit_xg_reduce(a, [GB[tt] + e for tt in range(4) for e in range(2)], 72)
    for tt in range(4):
        b = GB[tt]
        emit_ln_finish(a, b, b + 1, 2304, b + 2, MR + 2 * tt, b + 4)
        a("v_mul_f32 v%d, -v%d, v%d" % (MR + 2 * tt + 1, b + 2, MR + 2 * tt))
    a("v_lshrrev_b32 v10, 4, v2")
    a("v_lshrrev_b32 v11, 2, v2"); a("v_and_b32 v11, 1, v11"); a("v_lshlrev_b32 v11, 4, v11")
    a("v_lshrrev_b32 v5, 3, v2"); a("v_and_b32 v5, 1, v5"); a("v_lshl_add_u32 v11, v5, 2, v11")
    a("v_and_b32 v5, 3, v2"); a("v_add_u32 v11, v11, v5")
    a("v_and_b32 v5, 1, v10")
    a("v_lshl_add_u32 v11, v5, 3, v11")
    a("v_lshlrev_b32 v11, 5, v11")
    a("v_lshrrev_b32 v5, 1, v10")
    a("v_lshl_add_u32 v6, v5, 4, v11")
    a("s_lshl_b32 s33, s23, 5")
    a("s_lshl_b32 s36, s22, 1")
    a("s_add_u32 s33, s33, s36")
    a("s_add_u32 s33, s33, s24")
    a("s_mul_i32 s33, s33, 18432")
    if ZIMG: a("s_add_u32 s33, s33, 0x%x" % ZIMG)
    a("s_lshl_b32 s36, s25, 10")
    a("s_add_u32 s39, s33, s36")
    a("s_add_u32 s39, s39, 8192")
    a("s_mul_i32 s38, s25, 10240")
    a("s_add_u32 s33, s33, s38")
    a("s_add_u32 s37, s33, s36")
    a("s_xor_b32 s36, s36, 1024")
    a("s_add_u32 s38, s33, s36")
    a("s_add_u32 s33, s37, 4096")
    a("s_add_u32 s36, s38, 4096")
    def norm_pair(nA, ttA, nB, ttB, O):
        for q, (n, tt) in enumerate(((nA, ttA), (nB, ttB))):
            for d in range(2):
                z = Z2 + 2 * n + d; t = T + 4 * q + 2 * d
                a("v_lshlrev_b32 v%d, 16, v%d" % (t, z))
                a("v_and_b32 v%d, 0xffff0000, v%d" % (t + 1, z))
        for q, (n, tt) in enumerate(((nA, ttA), (nB, ttB))):
            for d in range(2):
                t = T + 4 * q + 2 * d
                a("v_pk_fma_f32 %s, %s, %s, %s op_sel:[0,0,1] op_sel_hi:[1,0,1]" % (vr(t, 2), vr(t, 2), vr(MR + 2 * tt, 2), vr(MR + 2 * tt, 2)))
        for q in range(2):
            for d in range(2):
                t = T + 4 * q + 2 * d
                a("v_cvt_pk_bf16_f32 v%d, v%d, v%d" % (O + 2 * q + d, t, t + 1))
        a("s_nop 1")
        a("v_permlane16_swap_b32 v%d, v%d" % (O, O + 2))
        a("v_permlane16_swap_b32 v%d, v%d" % (O + 1, O + 3))
    cnt = 0
    for ft in range(4):
        for pp in range(2):
            O = 200 + 4 * cnt; cnt += 1
            norm_pair(tidx(ft, 2 * pp), 2 * pp, tidx(ft, 2 * pp + 1), 2 * pp + 1, O)
            a("s_nop 0")
            a("buffer_store_dwordx4 %s, v6, s[12:15], s%d offen offset:%d sc1" % (vr(O), ((37, 38), (33, 36))[ft >> 1][pp], (ft & 1) * 2048))
    O = 200 + 4 * cnt
    norm_pair(16, 0, 17, 1, O)
    a("s_nop 0")
    a("buffer_store_dwordx4 %s, v6, s[12:15], s39 offen sc1" % vr(O))
    stamp(a, 6)
    a("s_setprio 3")
    srd(a, 8, 78, 2048 * 2048 * 2)
    a("v_lshrrev_b32 v3, 3, v2")
    a("s_lshl_b32 s24, s3, 5")
    a("v_add_u32 v3, s24, v3")
    a("v_and_b32 v4, 7, v2")
    a("v_lshrrev_b32 v6, 4, v2")
    a("v_xor_b32 v6, v6, v4")
    a("v_lshlrev_b32 v6, 4, v6")
    a("v_lshl_add_u32 v10, v3, 12, v6")
    a("v_xor_b32 v11, 64, v10")
    a("v_add_u32 v11, %d, v11" % (32768 - 1024))
    a("v_add_u32 v12, %d, v10" % (2 * (32768 - 1024)))
    a("v_add_u32 v13, %d, v11" % (2 * (32768 - 1024)))
    a("v_lshlrev_b32 v14, 4, v2")
    a("s_lshl_b32 s26, s22, 19")
    a("s_mul_i32 s27, s23, %d" % (32 * 18432))
    a("s_lshl_b32 s24, s3, 12")
    a("s_add_u32 s27, s27, s24")
    if ZIMG: a("s_add_u32 s27, s27, 0x%x" % ZIMG)
    a("s_lshl_b32 s25, s3, 9")
    a("s_sub_u32 s32, s25, s24")
    a("s_add_u32 s32, s32, 16384")
    a("s_add_u32 s24, s24, %d" % RB)
    a("s_waitcnt vmcnt(0) lgkmcnt(0)")
    a("v_mov_b32 v26, %d" % LC)
    a("v_mov_b32 v27, 1")
    a("s_mov_b64 exec, 1")
    a("ds_add_rtn_u32 v28, v26, v27")
    a("s_waitcnt lgkmcnt(0)")
    a("v_readfirstlane_b32 s36, v28")
    a("s_cmp_lg_u32 s36, 3")
    a("s_cbranch_scc1 %s_nozs" % name)
    a("v_mov_b32 v28, 0")
    a("buffer_store_dword v27, v28, s[12:15], s97 offen sc1")
    a.label("%s_nozs" % name)
    a("s_mov_b64 exec, -1")
    stamp(a, 7)
    srd(a, 16, 88, 576 * 2048 * 2)
    srd(a, 84, 90, 576 * 2)
    for g in range(4):
        a("s_add_u32 s35, s24, %d" % (g * SLOT))
        a("s_mov_b32 m0, s35")
        a("s_add_u32 s36, s26, %d" % (128 * g))
        for n in range(4):
            a("buffer_load_dwordx4 v%d, s[8:11], s36 offen offset:%d lds" % (10 + n, n * 1024))
    a("s_mov_b32 s34, 0")
    a("s_cmp_lg_u32 s3, 0")
    a("s_cbranch_scc1 %s_pl" % name)
    a("v_and_b32 v28, 15, v2")
    a("v_lshlrev_b32 v30, 2, v28")
    a("v_lshlrev_b32 v28, 12, v28")
    a("s_lshl_b32 s52, s23, 8")
    a("s_add_u32 s52, s52, 0x%x" % ZFLG)
    a.label("%s_pz0" % name)
    a("buffer_load_dword v31, v30, s[60:63], 0 offen sc1")
    a("s_add_u32 s34, s34, 1")
    a("s_waitcnt vmcnt(0)")
    a("v_cmp_gt_u32 vcc, 16, v31")
    a("s_cmp_gt_u32 s34, %d" % SPIN_MAX)
    a("s_cbranch_scc1 %s_pz" % name)
    a("s_cbranch_vccz %s_pz" % name)
    a("s_sleep 32")
    a("s_branch %s_pz0" % name)
    a.label("%s_pz" % name)
    a("buffer_load_dword v29, v28, s[12:15], s52 offen sc1")
    a("s_add_u32 s34, s34, 1")
    a("s_waitcnt vmcnt(0)")
    a("v_cmp_ne_u32 vcc, 1, v29")
    a("s_cmp_gt_u32 s34, %d" % SPIN_MAX)
    a("s_cbranch_scc1 %s_pzx" % name)
    a("s_cbranch_vccz %s_pzx" % name)
    a("s_sleep 8")
    a("s_branch %s_pz" % name)
    a.label("%s_pzx" % name)
    a("v_mov_b32 v27, 1")
    a("ds_write_b32 v26, v27 offset:4")
    a("s_branch %s_pgo" % name)
    a.label("%s_pl" % name)
    a("ds_read_b32 v27, v26 offset:4")
    a("s_add_u32 s34, s34, 1")
    a("s_waitcnt lgkmcnt(0)")
    a("v_readfirstlane_b32 s36, v27")
    a("s_cmp_gt_u32 s34, %d" % (SPIN_MAX * 20))
    a("s_cbranch_scc1 %s_pgo" % name)
    a("s_cmp_lg_u32 s36, 0")
    a("s_cbranch_scc1 %s_pgo" % name)
    a("s_sleep 2")
    a("s_branch %s_pl" % name)
    a.label("%s_pgo" % name)
    stamp(a, 8)
    for g in range(4):
        a("s_add_u32 s35, s24, %d" % (g * SLOT + TREG))
        a("s_mov_b32 m0, s35")
        a("s_add_u32 s36, s27, %d" % (18432 * g))
        a("s_add_u32 s37, s36, s32")
        for n in range(4):
            a("buffer_load_dwordx4 v14, s[12:15], s36 offen offset:%d sc1 lds" % (n * 1024))
        a("s_add_u32 s35, s35, s32")
        a("s_mov_b32 m0, s35")
        a("s_mov_b64 exec, 0xffffffff")
        a("buffer_load_dwordx4 v14, s[12:15], s37 offen sc1 lds")
        a("s_mov_b64 exec, -1")
    a("s_add_u32 s26, s26, 512")
    a("s_add_u32 s27, s27, %d" % (4 * 18432))
    a("s_mov_b32 s33, 0")
    a("s_lshl_b32 s43, s2, 2")
    a("s_add_u32 s43, s43, s3")
    a("s_and_b32 s53, s43, 1")
    a("s_sub_u32 s36, s43, 448")
    a("s_lshr_b32 s37, s43, 1")
    a("s_cmp_ge_u32 s43, 896")
    a("s_cselect_b32 s43, s36, s37")
    a("s_cselect_b32 s53, 2, s53")
    a("s_waitcnt vmcnt(15)")
    a("s_barrier")
    a("s_waitcnt vmcnt(10)")
    a("s_barrier")
    a("s_waitcnt vmcnt(5)")
    a("s_barrier")
    a("s_mov_b32 s34, 4")
    def issue2():
        a("s_add_u32 s35, s33, s24")
        a("s_mov_b32 m0, s35")
        a("s_add_u32 s36, s35, %d" % TREG)
        for n in range(4):
            a("buffer_load_dwordx4 v%d, s[8:11], s26 offen offset:%d lds" % (10 + n, n * 1024))
        a("s_mov_b32 m0, s36")
        a("s_add_u32 s37, s27, s32")
        for n in range(4):
            a("buffer_load_dwordx4 v14, s[12:15], s27 offen offset:%d sc1 lds" % (n * 1024))
        a("s_add_u32 s36, s36, s32")
        a("s_mov_b32 m0, s36")
        a("s_mov_b64 exec, 0xffffffff")
        a("buffer_load_dwordx4 v14, s[12:15], s37 offen sc1 lds")
        a("s_mov_b64 exec, -1")
        a("s_add_u32 s26, s26, 128")
        a("s_add_u32 s27, s27, 18432")
        a("s_add_u32 s33, s33, %d" % SLOT)
        a("s_cmp_eq_u32 s33, %d" % (R * SLOT))
        a("s_cselect_b32 s33, 0, s33")
    a.label("%s_lloop" % name)
    issue2()
    a("s_cmp_eq_u32 s34, 18")
    a("s_cbranch_scc1 %s_hk1" % name)
    a("s_cmp_eq_u32 s34, 21")
    a("s_cbranch_scc1 %s_hk2" % name)
    a("s_waitcnt vmcnt(9)")
    a.label("%s_lcont" % name)
    a("s_barrier")
    a("s_add_u32 s34, s34, 1")
    a("s_cmp_lt_u32 s34, 32")
    a("s_cbranch_scc1 %s_lloop" % name)
    a("s_branch %s_ldone" % name)
    a.label("%s_hk1" % name)
    a("v_and_b32 v28, 15, v2")
    a("v_lshlrev_b32 v28, 2, v28")
    a("buffer_load_dword v29, v28, s[60:63], 0 offen offset:128 sc1")
    a("s_waitcnt vmcnt(10)")
    a("s_branch %s_lcont" % name)
    a.label("%s_hk2" % name)
    a("s_mov_b32 s52, 0")
    a.label("%s_hk2l" % name)
    a("v_cmp_gt_u32 vcc, 16, v29")
    a("s_add_u32 s52, s52, 1")
    a("s_cmp_gt_u32 s52, %d" % SPIN_MAX)
    a("s_cbranch_scc1 %s_hk2g" % name)
    a("s_cbranch_vccz %s_hk2g" % name)
    a("s_sleep 16")
    a("buffer_load_dword v29, v28, s[60:63], 0 offen offset:128 sc1")
    a("s_waitcnt vmcnt(0)")
    a("s_branch %s_hk2l" % name)
    a.label("%s_hk2g" % name)
    nconv = emit_conv_loads(a, " sc1")
    a("s_waitcnt vmcnt(%d)" % (9 + nconv))
    a("s_branch %s_lcont" % name)
    a.label("%s_ldone" % name)
    a("s_waitcnt vmcnt(0)")
    a("s_barrier")
    a("s_mov_b32 s26, s53")
    a("s_and_b32 s27, s3, 1")
    a("s_mul_i32 s27, s27, %d" % CJ_SIZE)
    a("s_lshr_b32 s36, s3, 1")
    a("s_mul_i32 s36, s36, %d" % SLOT)
    a("s_add_u32 s27, s27, s36")
    a("s_add_u32 s27, s27, %d" % RB)
    def mid():
        a("s_barrier")
        a("s_setprio 0")
    sv = set(DBG); DBG.discard("stamp")
    lb_ = len(a.lines)
    emit_conv_job(a, name, mid)
    for n_ in range(lb_, len(a.lines)):
        if "buffer_store_dwordx2" in a.lines[n_]: a.lines[n_] += " sc1"
    DBG.update(sv)
    stamp(a, 9)
    c_common()
    cTa = [4, 4]; cTb = [6, 6]; cF_ = 8; cFh = 9
    kTa = 88; kTb = 90; kF = 92; kFh = 93
    a("v_and_b32 v3, 15, v2")
    a("v_lshrrev_b32 v10, 5, v2")
    a("v_lshlrev_b32 v10, 11, v10")
    a("v_bfe_u32 v11, v2, 4, 1")
    a("v_lshl_add_u32 v10, v11, 4, v10")
    a("v_lshl_add_u32 v10, v3, 5, v10")
    a("s_lshl_b32 s26, s3, 12")
    a("v_add_u32 v10, s26, v10")
    a("s_lshl_b32 s26, s53, 10")
    a("v_add_u32 v%d, s26, v10" % kTa)
    a("s_xor_b32 s26, s26, 1024")
    a("v_add_u32 v%d, s26, v10" % kTb)
    a("v_lshrrev_b32 v10, 2, v2")
    a("v_mul_u32_u24 v10, %d, v10" % CFS)
    a("v_and_b32 v11, 3, v2")
    a("v_lshl_add_u32 v10, v11, 3, v10")
    a("s_mul_i32 s26, s3, %d" % (32 * CFS))
    a("s_add_u32 s26, s26, %d" % CTREG)
    a("v_add_u32 v%d, s26, v10" % kF)
    a("v_add_u32 v%d, 128, v%d" % (kFh, kF))
    a("v_mov_b32 v26, %d" % LC)
    a("v_mov_b32 v27, 1")
    a("s_waitcnt vmcnt(0)")
    a("s_mov_b64 exec, 1")
    a("ds_add_rtn_u32 v28, v26, v27 offset:20")
    a("s_waitcnt lgkmcnt(0)")
    a("v_readfirstlane_b32 s36, v28")
    a("s_cmp_lg_u32 s36, 3")
    a("s_cbranch_scc1 %s_nocs" % name)
    a("s_and_b32 s36, s2, 15")
    a("s_lshl_b32 s36, s36, 2")
    a("s_add_u32 s36, s36, 192")
    a("v_mov_b32 v28, s36")
    a("buffer_atomic_add v27, v28, s[60:63], 0 offen sc1")
    a.label("%s_nocs" % name)
    a("s_mov_b64 exec, -1")
    fin_loads()
    core3 = G.Core(a, ACC, FB[0], FB[1], CFS, CTREG, cTa, cTb, cF_, cFh, TT=512)
    pairs = ((cTa[0], kTa), (cF_, kF), (cTb[0], kTb), (cFh, kFh))
    a("s_mov_b32 s27, %d" % C0)
    for d, s_ in pairs: a("v_add_u32 v%d, s27, v%d" % (d, s_))
    for r in range(ACC, ACC + 72): a("v_mov_b32 v%d, 0" % r)
    a("s_mov_b32 s33, 0")
    a("s_barrier")
    stamp(a, 10)
    core3.prime(0, core3.reads(0, 0))
    def citer(buf):
        core3.trk.drain()
        a("s_barrier")
        a("s_add_u32 s27, s27, %d" % CSL)
        a("s_cmp_eq_u32 s27, %d" % CW)
        a("s_cselect_b32 s27, %d, s27" % RB)
        pre = ["v_add_u32 v%d, s27, v%d" % (d, s_) for d, s_ in pairs]
        core3.phase(buf, core3.reads(1 - buf, 0), pre=pre)
    a.label("%s_ccloop" % name)
    citer(0); citer(1)
    a("s_add_u32 s33, s33, 1")
    a("s_cmp_lt_u32 s33, 9")
    a("s_cbranch_scc1 %s_ccloop" % name)
    core3.trk.drain()
    stamp(a, 11)
    a("s_mul_i32 s33, s3, %d" % (18 * 1024))
    a("s_add_u32 s33, s33, %d" % C0)
    a("v_lshlrev_b32 v10, 4, v2")
    a("v_add_u32 v11, s33, v10")
    a("s_nop 4")
    for n, (ft, tt) in enumerate(TILES):
        a("ds_write_b128 v11, %s offset:%d" % (vr(core3.accr(ft, tt)), 1024 * tidx(ft, tt)))
        if n in (7, 13): a("s_waitcnt lgkmcnt(4)")
    a("s_waitcnt lgkmcnt(0) vmcnt(0)")
    a.label("%s_cfin" % name)
    a("s_barrier")
    stamp(a, 12)
    a("v_lshlrev_b32 v10, 4, v2")
    a("v_lshrrev_b32 v11, 2, v2")
    a("v_lshlrev_b32 v11, 7, v11")
    a("v_and_b32 v12, 3, v2")
    a("v_lshl_add_u32 v11, v12, 3, v11")
    a("s_mov_b32 s33, 0xbfb8aa3b")
    PT = 16; YR = 64
    for s_ in range(3):
        b = 64 + 4 * s_
        if s_ == 2:
            a("s_cmp_ge_u32 s54, 2")
            a("s_cbranch_scc1 %s_rd" % name)
        a("v_add_u32 v4, s%d, v10" % (b + 2))
        a("v_add_u32 v5, s%d, v11" % (b + 1))
        for q in range(4):
            a("ds_read_b128 %s, v4 offset:%d" % (vr(PT + 16 * s_ + 4 * q), 18432 * q))
        a("ds_read_b64_tr_b16 %s, v5" % vr(YR + 2 * s_, 2))
    a.label("%s_rd" % name)
    T = 104
    for s_ in range(3):
        b = 64 + 4 * s_
        if s_ == 0: a("s_waitcnt lgkmcnt(5)")
        if s_ == 1: a("s_waitcnt lgkmcnt(0)")
        if s_ == 2:
            a("s_cmp_ge_u32 s54, 2")
            a("s_cbranch_scc1 %s_done" % name)
        o = PT + 16 * s_; X = XR + 2 * s_; Y = YR + 2 * s_; S_ = ST + 2 * s_
        for h in (0, 2):
            a("v_pk_add_f32 %s, %s, %s" % (vr(o + h, 2), vr(o + h, 2), vr(o + 4 + h, 2)))
            a("v_pk_add_f32 %s, %s, %s" % (vr(o + 8 + h, 2), vr(o + 8 + h, 2), vr(o + 12 + h, 2)))
        for h in (0, 2):
            a("v_pk_add_f32 %s, %s, %s" % (vr(o + h, 2), vr(o + h, 2), vr(o + 8 + h, 2)))
        rnd_pair(a, T + 20, o, o + 1); rnd_pair(a, T + 21, o + 2, o + 3)
        for r in range(4): a("v_mul_f32 v%d, s33, v%d" % (T + r, o + r))
        for r in range(4): a("v_exp_f32 v%d, v%d" % (T + r, T + r))
        a("v_lshlrev_b32 v%d, 16, v%d" % (T + 4, X)); a("v_and_b32 v%d, 0xffff0000, v%d" % (T + 5, X))
        a("v_lshlrev_b32 v%d, 16, v%d" % (T + 6, X + 1)); a("v_and_b32 v%d, 0xffff0000, v%d" % (T + 7, X + 1))
        for r in range(4): a("v_add_f32 v%d, 1.0, v%d" % (T + r, T + r))
        for r in range(4): a("v_rcp_f32 v%d, v%d" % (T + r, T + r))
        for r in range(4): a("v_sub_f32 v%d, v%d, v%d" % (T + 12 + r, T + 4 + r, S_))
        a("v_lshlrev_b32 v%d, 16, v%d" % (T + 8, Y)); a("v_and_b32 v%d, 0xffff0000, v%d" % (T + 9, Y))
        a("v_lshlrev_b32 v%d, 16, v%d" % (T + 10, Y + 1)); a("v_and_b32 v%d, 0xffff0000, v%d" % (T + 11, Y + 1))
        for r in range(4): a("v_mul_f32 v%d, v%d, v%d" % (o + r, o + r, T + r))
        rnd_pair(a, T + 20, T + 12, T + 13); rnd_pair(a, T + 21, T + 14, T + 15)
        rnd_pair(a, T + 22, o, o + 1); rnd_pair(a, T + 23, o + 2, o + 3)
        for r in range(4): a("v_mul_f32 v%d, v%d, v%d" % (T + 12 + r, T + 12 + r, S_ + 1))
        rnd_pair(a, T + 20, T + 12, T + 13); rnd_pair(a, T + 21, T + 14, T + 15)
        for r in range(4): a("v_mul_f32 v%d, v%d, v%d" % (T + 12 + r, T + 12 + r, T + 8 + r))
        rnd_pair(a, T + 20, T + 12, T + 13); rnd_pair(a, T + 21, T + 14, T + 15)
        for r in range(4): a("v_mul_f32 v%d, v%d, v%d" % (T + 12 + r, T + 12 + r, o + r))
        rnd_pair(a, T + 20, T + 12, T + 13); rnd_pair(a, T + 21, T + 14, T + 15)
        for r in range(4): a("v_add_f32 v%d, v%d, v%d" % (T + 12 + r, T + 12 + r, T + 4 + r))
        a("v_cvt_pk_bf16_f32 v%d, v%d, v%d" % (X, T + 12, T + 13))
        a("v_cvt_pk_bf16_f32 v%d, v%d, v%d" % (X + 1, T + 14, T + 15))
        a("buffer_store_dwordx2 %s, v13, s[28:31], s%d offen" % (vr(X, 2), b))
    a.label("%s_done" % name)
    stamp(a, 13)
    G.stamp_rt(a, 1)
    a.label("%s_end" % name)
    a("s_endpgm")
    for ft in range(5):
        a.label("%s_gsub%d" % (name, ft))
        tts = range(4 if ft < 4 else 2)
        emit_fold_gelu(a, [(128 + 4 * tidx(ft, tt), CS + 4 * ft, MR + 2 * tt, ZP + 2 * tidx(ft, tt)) for tt in tts], 72)
        a("s_setpc_b64 s[34:35]")
    return a.text(), kernel_desc(name, 256, 256), (name, 256, 512, 163840)

def gen_kf13(name="k1_kernel", R=4):
    a = Asm()
    RB = 4096; SLOT = 34816; TREG = 16384; FS = 288; RST = 0
    LDSB = RB + R * SLOT
    LC = 2048
    ZFLG = 0x2D00000; PFL = 128
    KVL = 143360
    C0 = 77824; CW = 151552; CSL = 36864; YOFF = 151552; CTREG = 16384; CFS = 160
    from gen3 import emit_conv_loads, emit_conv_job, CJ_SIZE
    def capture(f, *args):
        lb = len(a.lines); f(*args); out = a.lines[lb:]; del a.lines[lb:]; return out

    def c_common():
        a("s_load_dwordx2 s[4:5], s[0:1], 0")
        a("s_load_dwordx2 s[16:17], s[0:1], 88")
        a("s_and_b32 s20, s2, 7")
        a("s_lshr_b32 s21, s2, 3")
        a("s_and_b32 s22, s20, 3")
        a("s_lshl_b32 s22, s22, 3")
        a("s_and_b32 s23, s21, 7")
        a("s_add_u32 s22, s22, s23")
        a("s_lshr_b32 s23, s20, 2")
        a("s_lshl_b32 s23, s23, 2")
        a("s_lshr_b32 s24, s21, 3")
        a("s_add_u32 s23, s23, s24")
        a("s_lshr_b32 s52, s23, 1")
        a("s_and_b32 s53, s23, 1")
        a("s_lshl_b32 s54, s98, 2")
        a("s_add_u32 s54, s54, s3")
        a("s_waitcnt lgkmcnt(0)")
        srd(a, 8, 4, 2048 * 576 * 2)
        srd(a, 28, 16, 2048 * 576 * 2)
    XR = 200; ST = 208
    def fin_loads():
        a("v_and_b32 v3, 15, v2")
        a("v_lshrrev_b32 v10, 4, v2")
        a("v_mul_u32_u24 v13, 1152, v3")
        a("v_lshl_add_u32 v13, v10, 3, v13")
        a("v_lshlrev_b32 v12, 3, v3")
        for s_ in range(3):
            if s_ == 2:
                a("s_cmp_ge_u32 s54, 2")
                a("s_cbranch_scc1 %s_fl%d" % (name, fin_loads.cnt))
            b = 64 + 4 * s_
            if s_ < 2:
                a("s_add_u32 s36, s54, %d" % (8 * s_))
                a("s_lshr_b32 s37, s36, 2")
                a("s_and_b32 s38, s36, 3")
                a("s_mul_i32 s39, s53, 160")
                a("s_lshl_b32 s40, s37, 5")
                a("s_add_u32 s39, s39, s40")
            else:
                a("s_add_u32 s36, s54, 16")
                a("s_mov_b32 s37, 4")
                a("s_mov_b32 s38, s54")
                a("s_mov_b32 s39, 128")
            a("s_lshl_b32 s40, s53, 1")
            a("s_add_u32 s38, s38, s40")
            a("s_and_b32 s38, s38, 3")
            a("s_lshl_b32 s40, s22, 2")
            a("s_add_u32 s40, s40, s38")
            a("s_lshl_b32 s40, s40, 4")
            a("s_mul_i32 s%d, s40, 1152" % b)
            a("s_add_u32 s%d, s%d, s39" % (b, b))
            a("s_mul_i32 s39, s52, 288")
            a("s_add_u32 s%d, s%d, s39" % (b, b))
            a("s_lshl_b32 s%d, s37, 11" % (b + 1))
            a("s_lshl_b32 s39, s38, 5")
            a("s_add_u32 s%d, s%d, s39" % (b + 1, b + 1))
            a("s_add_u32 s%d, s%d, %d" % (b + 1, b + 1, YOFF))
            a("s_lshl_b32 s%d, s36, 10" % (b + 2))
            a("s_add_u32 s%d, s%d, %d" % (b + 2, b + 2, C0))
            a("s_lshl_b32 s40, s40, 3")
            a("s_add_u32 s40, s40, 0x%x" % STATS1)
            a("buffer_load_dwordx2 %s, v13, s[8:11], s%d offen" % (vr(XR + 2 * s_, 2), b))
            a("buffer_load_dwordx2 %s, v12, s[12:15], s40 offen sc1" % vr(ST + 2 * s_, 2))
        a.label("%s_fl%d" % (name, fin_loads.cnt))
        fin_loads.cnt += 1
    fin_loads.cnt = 0
    kernel_begin(a, name)
    a("s_load_dwordx2 s[80:81], s[0:1], 0")
    a("s_load_dwordx2 s[4:5], s[0:1], 56")
    a("s_load_dwordx2 s[6:7], s[0:1], 104")
    a("s_load_dwordx2 s[18:19], s[0:1], 96")
    a("s_cmp_ge_u32 s2, 256")
    a("s_cbranch_scc1 %s_end" % name)
    a("v_lshrrev_b32 v1, 6, v0")
    a("v_and_b32 v2, 63, v0")
    a("v_readfirstlane_b32 s3, v1")
    G2.tile_ij(a)
    a("s_lshr_b32 s98, s3, 2")
    a("s_mov_b32 s54x, 0".replace("s54x", "s99"))
    a("s_and_b32 s3, s3, 3")
    a("s_lshr_b32 s24, s3, 1")
    a("s_and_b32 s25, s3, 1")
    a("v_and_b32 v3, 15, v2")
    VT = 204; VF = 208
    def loader_setup():
        a("v_lshrrev_b32 v5, 3, v2")
        a("v_and_b32 v4, 7, v2")
        a("s_lshl_b32 s36, s3, 5")
        a("v_add_u32 v5, s36, v5")
        a("v_lshrrev_b32 v7, 4, v2")
        a("v_xor_b32 v7, v7, v4")
        a("v_mul_u32_u24 v6, 1152, v5")
        a("v_lshl_add_u32 v%d, v7, 4, v6" % VT)
        a("v_xor_b32 v%d, 64, v%d" % (VT + 1, VT))
        a("v_add_u32 v%d, %d, v%d" % (VT + 1, 9216 - 1024, VT + 1))
        a("v_add_u32 v%d, %d, v%d" % (VT + 2, 2 * (9216 - 1024), VT))
        a("v_add_u32 v%d, %d, v%d" % (VT + 3, 2 * (9216 - 1024), VT + 1))
        a("s_lshl_b32 s84, s3, 12")
        a("s_add_u32 s84, s84, %d" % RB)
        a("s_lshl_b32 s85, s3, 9")
        a("s_add_u32 s85, s85, %d" % (RB + TREG + 16384))
    def loader_setup2():
        for n in range(5):
            if n < 4:
                a("s_lshl_b32 s36, s3, 8")
                a("s_add_u32 s36, s36, %d" % (64 * n))
            else:
                a("s_lshl_b32 s36, s3, 5")
                a("s_add_u32 s36, s36, 1024")
            a("v_add_u32 v6, s36, v2")
            a("v_mul_u32_u24 v7, 3641, v6")
            a("v_lshrrev_b32 v7, 16, v7")
            a("v_mul_u32_u24 v8, 18, v7")
            a("v_sub_u32 v8, v6, v8")
            a("v_and_b32 v9, 35, v7")
            a("v_bfe_u32 v6, v7, 2, 2")
            a("v_lshl_add_u32 v9, v6, 3, v9")
            a("v_bfe_u32 v6, v7, 4, 1")
            a("v_lshl_add_u32 v9, v6, 2, v9")
            a("v_mul_u32_u24 v9, 9216, v9")
            a("v_lshl_add_u32 v%d, v8, 4, v9" % (VF + n))
            if 0 < n < 4: a("v_subrev_u32 v%d, %d, v%d" % (VF + n, 1024 * n, VF + n))
    def issueT(g):
        st = g % 9
        a("s_add_u32 s86, s84, %d" % ((g % R) * SLOT))
        a("s_mov_b32 m0, s86")
        a("s_add_u32 s87, s82, %d" % (128 * st))
        for n in range(4):
            a("buffer_load_dwordx4 v%d, s[28:31], s87 offen offset:%d lds" % (VT + n, 1024 * n))
    def issueF(g):
        st = g % 9
        a("s_add_u32 s86, s84, %d" % ((g % R) * SLOT + TREG))
        a("s_mov_b32 m0, s86")
        a("s_add_u32 s87, s83, %d" % (64 * 9216 * st + (4608 if g < 9 else 0)))
        for n in range(4):
            a("buffer_load_dwordx4 v%d, s[8:11], s87 offen offset:%d lds" % (VF + n, 1024 * n))
        a("s_add_u32 s86, s85, %d" % ((g % R) * SLOT))
        a("s_mov_b32 m0, s86")
        a("s_mov_b64 exec, 0xffffffff")
        a("buffer_load_dwordx4 v%d, s[8:11], s87 offen lds" % (VF + 4))
        a("s_mov_b64 exec, -1")
    def srds_main():
        srd(a, 28, 80, 2048 * 576 * 2)
        srd(a, 8, 4, 576 * 4608 * 2)
        srd(a, 12, 6, WS_BYTES)
        srd(a, 60, 18, 256)
        a("s_mul_i32 s82, s22, %d" % (128 * 1152))
        a("s_mul_i32 s83, s23, 288")
    ACC = 128; FB = [16, 52]; CS = 216; ONE = 236
    vTa = [4, 5]; vTb = [6, 7]; vF = 8; vFh = 9
    bTa = [88, 89]; bTb = [90, 91]; bF = 92; bFh = 93
    def mma_setup():
        a("v_lshrrev_b32 v10, 4, v2")
        a("v_lshrrev_b32 v11, 1, v3")
        a("v_xor_b32 v10, v10, v11")
        a("v_lshlrev_b32 v10, 4, v10")
        a("v_lshl_add_u32 v10, v3, 7, v10")
        a("s_lshl_b32 s26, s24, 13")
        a("s_add_u32 s26, s26, %d" % RB)
        a("v_add_u32 v10, s26, v10")
        a("s_lshl_b32 s26, s25, 12")
        a("v_add_u32 v%d, s26, v10" % bTa[0])
        a("s_xor_b32 s26, s26, 4096")
        a("v_add_u32 v%d, s26, v10" % bTb[0])
        a("v_xor_b32 v%d, 64, v%d" % (bTa[1], bTa[0]))
        a("v_xor_b32 v%d, 64, v%d" % (bTb[1], bTb[0]))
        a("v_lshrrev_b32 v10, 2, v2")
        a("v_mul_u32_u24 v10, %d, v10" % FS)
        a("v_and_b32 v11, 3, v2")
        a("v_lshl_add_u32 v10, v11, 3, v10")
        a("v_add_u32 v10, %d, v10" % (RB + TREG))
        a("s_mul_i32 s26, s25, 160")
        a("v_add_u32 v%d, s26, v10" % bF)
        a("v_add_u32 v%d, 128, v10" % bFh)
        for r in range(ACC, ACC + 72): a("v_mov_b32 v%d, 0" % r)
        for r in range(CS, CS + 20): a("v_mov_b32 v%d, 0" % r)
        for r in range(ONE, ONE + 4): a("v_mov_b32 v%d, 0x3f803f80" % r)
    def mma_addr(slot):
        a("s_mov_b32 s27, %d" % (slot * SLOT))
        for d, s_ in ((vTa[0], bTa[0]), (vTb[0], bTb[0]), (vTa[1], bTa[1]), (vTb[1], bTb[1]), (vF, bF), (vFh, bFh)):
            a("v_add_u32 v%d, s27, v%d" % (d, s_))
    core = G.Core(a, ACC, FB[0], FB[1], FS, TREG, vTa, vTb, vF, vFh)
    trk = core.trk
    a("s_cmp_eq_u32 s98, 0")
    a("s_cbranch_scc1 %s_A0" % name)
    a("s_setprio 3")
    loader_setup()
    a("s_waitcnt lgkmcnt(0)")
    srds_main()
    vm = VmTracker(a)
    def issue(g, vmx):
        issueT(g); issueF(g); vmx.issue("S%d" % g, 9)
    issueT(0)
    loader_setup2()
    issueF(0); vm.issue("S0", 9)
    issue(1, vm); issue(2, vm); issue(3, vm)
    a("s_add_u32 s3, s3, 4"); stamp_setup(a, 1); stamp(a, 0); a("s_sub_u32 s3, s3, 4")
    a("s_load_dwordx4 s[64:67], s[0:1], 8")
    a("s_load_dwordx2 s[76:77], s[0:1], 24")
    mma_setup()
    a("s_waitcnt lgkmcnt(0)")
    srd(a, 68, 66, 2048 * 576 * 2)
    a("s_mov_b32 s88, s64"); a("s_mov_b32 s89, s65")
    srd(a, 64, 88, 2048 * 576 * 2)
    srd(a, 72, 76, 576 * 8)
    def kv_dma():
        a("s_lshr_b32 s36, s2, 3")
        a("s_mul_i32 s36, s36, %d" % (64 * 1152))
        a("s_and_b32 s37, s2, 7")
        a("s_mul_i32 s37, s37, 144")
        a("s_add_u32 s36, s36, s37")
        for q in range(5):
            a("s_add_u32 s38, s3, %d" % (4 * q))
            if q == 4: a("s_min_u32 s38, s38, 18")
            isK = (q < 2); isV = (q > 2)
            a("s_sub_u32 s39, s38, 10")
            a("s_cmp_lt_u32 s38, 10")
            a("s_cselect_b32 s39, s38, s39")
            a("s_cselect_b32 s40, %d, 0" % ((-3 * 1152) & 0xffffffff))
            a("s_lshl_b32 s37, s39, 6")
            a("v_add_u32 v240, s37, v2")
            a("v_mul_u32_u24 v241, 7282, v240")
            a("v_lshrrev_b32 v241, 16, v241")
            a("v_mul_u32_u24 v242, 9, v241")
            a("v_sub_u32 v242, v240, v242")
            a("v_mul_u32_u24 v241, 1152, v241")
            a("v_lshl_add_u32 v241, v242, 4, v241")
            a("s_add_u32 s40, s40, s36")
            a("v_add_u32 v241, s40, v241")
            a("s_lshl_b32 s37, s38, 10")
            a("s_add_u32 s37, s37, %d" % KVL)
            a("s_mov_b32 m0, s37")
            if isK:
                a("s_nop 0")
                a("buffer_load_dwordx4 v241, s[64:67], 0 offen lds")
            elif isV:
                a("s_nop 0")
                a("buffer_load_dwordx4 v241, s[68:71], 0 offen lds")
            else:
                a("s_cmp_lt_u32 s38, 10")
                a("s_cbranch_scc1 %s_kd1" % name)
                a("buffer_load_dwordx4 v241, s[68:71], 0 offen lds")
                a("s_branch %s_kd2" % name)
                a.label("%s_kd1" % name)
                a("buffer_load_dwordx4 v241, s[64:67], 0 offen lds")
                a.label("%s_kd2" % name)
    RA = 96; XB = 112
    for r in range(RA, RA + 16): a("v_mov_b32 v%d, 0" % r)
    a("v_lshrrev_b32 v10, 4, v2")
    a("v_lshrrev_b32 v11, 1, v3")
    a("v_xor_b32 v10, v10, v11")
    a("v_lshlrev_b32 v10, 4, v10")
    a("v_lshl_add_u32 v10, v3, 7, v10")
    a("v_add_u32 v12, s84, v10")
    a("v_xor_b32 v13, 64, v12")
    def rs_rd(g):
        a("v_add_u32 v10, %d, v12" % ((g % R) * SLOT))
        a("v_add_u32 v11, %d, v13" % ((g % R) * SLOT))
        for h in range(2):
            for n in range(2):
                a("ds_read_b128 %s, v%d offset:%d" % (vr(XB + 8 * h + 4 * n), 10 + h, 2048 * n))
    def rs_do():
        for h in range(2):
            for n in range(2):
                x = XB + 8 * h + 4 * n
                a("v_mfma_f32_16x16x32_bf16 %s, %s, %s, %s" % (vr(RA + 4 * n), vr(ONE), vr(x), vr(RA + 4 * n)))
                a("v_mfma_f32_16x16x32_bf16 %s, %s, %s, %s" % (vr(RA + 8 + 4 * n), vr(x), vr(x), vr(RA + 8 + 4 * n)))
    def interleave(dma, comp, vmx=None):
        groups = []; cur = []
        for l in dma:
            cur.append(l)
            if "buffer_load" in l and not any("exec, 0xffffffff" in x for x in cur[-2:]):
                groups.append(cur); cur = []
            elif "exec, -1" in l:
                groups.append(cur); cur = []
        if cur: groups.append(cur)
        ns = max(1, len(groups))
        per = (len(comp) + ns - 1) // ns
        for g in groups:
            a.lines.extend(g)
            a.lines.extend(comp[:per]); comp = comp[per:]
        a.lines.extend(comp)
    vm.wait(["S0"])
    a("s_barrier")
    stamp(a, 1)
    rs_rd(0)
    vm.wait(["S1"])
    a("s_barrier")
    for k in range(9):
        a("s_waitcnt lgkmcnt(0)")
        dma = capture(lambda: (issueT(k + 3), issueF(k + 3))) if k >= 1 else []
        interleave(dma, capture(rs_do))
        if k >= 1: vm.issue("S%d" % (k + 3), 9)
        if k == 3:
            kv_dma(); vm.issue("KV", 5)
        if k < 8:
            rs_rd(k + 1)
        else:
            a("s_nop 7")
            a("v_lshrrev_b32 v10, 4, v2")
            a("v_lshrrev_b32 v11, 2, v3")
            a("v_and_b32 v12, 3, v3")
            for n in range(2):
                G_ = RA + 8 + 4 * n
                for r in range(1, 4):
                    a("v_cmp_eq_u32 vcc, %d, v12" % r)
                    a("s_nop 1")
                    a("v_cndmask_b32 v%d, v%d, v%d, vcc" % (G_, G_, G_ + r))
            ML = 112
            for n in range(2):
                emit_ln_finish(a, RA + 4 * n, RA + 8 + 4 * n, 576, ML + 2 * n, ML + 2 * n + 1, 120)
                a("v_mov_b32 v%d, v%d" % (117 + 2 * n, ML + 2 * n + 1))
                a("v_sub_f32 v%d, 0, v%d" % (116 + 2 * n, ML + 2 * n))
            a("s_lshl_b32 s35, s3, 8")
            a("v_lshlrev_b32 v13, 3, v3")
            a("v_add_u32 v12, s35, v13")
            a("v_cmp_eq_u32 vcc, v10, v11")
            a("s_and_saveexec_b64 s[36:37], vcc")
            for n in range(2):
                a("ds_write_b64 v12, %s offset:%d" % (vr(116 + 2 * n, 2), RST + 128 * n))
            a("s_mov_b64 exec, s[36:37]")
            a("s_cmp_lg_u32 s23, 0")
            a("s_cbranch_scc1 %s_nost1" % name)
            a("s_lshl_b32 s35, s22, 7")
            a("s_lshl_b32 s36, s3, 5")
            a("s_add_u32 s35, s35, s36")
            a("s_lshl_b32 s35, s35, 3")
            a("s_add_u32 s35, s35, 0x%x" % STATS1)
            a("v_mov_b32 v11, 0x7ffffff0")
            a("v_cndmask_b32 v13, v11, v13, vcc")
            for n in range(2):
                a("buffer_store_dwordx2 %s, v13, s[12:15], s35 offen offset:%d sc1" % (vr(ML + 2 * n, 2), 128 * n))
            a.label("%s_nost1" % name)
            a("v_and_b32 v0, 255, v0")
            a("v_lshrrev_b32 v1, 3, v0")
            a("v_and_b32 v10, 7, v0")
            a("s_lshr_b32 s38, s2, 3")
            a("s_lshl_b32 s38, s38, 6")
            a("v_lshl_add_u32 v252, v10, 3, s38")
            a("s_and_b32 s39, s2, 7")
            a("s_mul_i32 s39, s39, 144")
            a("v_lshl_add_u32 v253, v1, 2, s39")
            a("v_lshlrev_b32 v11, 2, v253")
            a("buffer_load_dwordx4 v[248:251], v11, s[72:75], 0 offen")
            a("buffer_load_dwordx4 v[244:247], v11, s[72:75], 0 offen offset:512")
            a("v_mul_u32_u24 v254, 1152, v10")
            a("v_lshl_add_u32 v254, v1, 2, v254")
            a("v_add_u32 v254, %d, v254" % KVL)
            a("s_mov_b32 s41, 0")
            mma_addr(9 % R)
            a("s_mov_b32 s33, 0")
            a("s_setprio 0")
        vm.wait(["S%d" % (k + 2)], "lgkmcnt(0)" if k == 8 else "")
        if k < 8: a("s_barrier")
    a("s_branch %s_mma" % name)
    a.label("%s_A0" % name)
    emit_code_prefetch(a, name)
    a("s_load_dwordx4 s[64:67], s[0:1], 8")
    a("s_load_dwordx2 s[76:77], s[0:1], 24")
    a("s_load_dwordx2 s[78:79], s[0:1], 64")
    mma_setup()
    loader_setup(); loader_setup2()
    a("s_waitcnt lgkmcnt(0)")
    srds_main()
    srd(a, 68, 66, 2048 * 576 * 2)
    a("s_mov_b32 s88, s64"); a("s_mov_b32 s89, s65")
    srd(a, 64, 88, 2048 * 576 * 2)
    srd(a, 72, 76, 576 * 8)
    stamp_setup(a, 1); stamp(a, 0)
    def gran_addr():
        a("v_lshrrev_b32 v10, 4, v2")
        a("s_lshl_b32 s36, s25, 1")
        a("v_add_u32 v11, s36, v10")
        a("v_and_b32 v11, 3, v11")
        a("v_lshl_add_u32 v11, v11, 4, v3")
        a("v_lshlrev_b32 v94, 3, v11")
        a("s_lshl_b32 s59, s22, 15")
        a("s_lshl_b32 s36, s24, 9")
        a("s_add_u32 s59, s59, s36")
        a("s_add_u32 s59, s59, 0x%x" % STATS2)
        a("s_lshl_b32 s36, s23, 1")
        a("s_add_u32 s36, s36, s25")
        a("s_lshl_b32 s36, s36, 10")
        a("s_add_u32 s58, s36, s59")
    gran_addr()
    a("v_mov_b32 v12, 0"); a("v_mov_b32 v13, 0x80000000")
    a("buffer_store_dwordx2 v[12:13], v94, s[12:15], s58 offen sc1")
    a("s_lshl_b32 s36, s22, 4")
    a("s_add_u32 s36, s36, s23")
    a("s_lshl_b32 s36, s36, 8")
    a("s_add_u32 s97, s36, 0x%x" % ZFLG)
    a("v_mov_b32 v10, %d" % LC)
    a("v_mov_b32 v12, 0"); a("v_mov_b32 v13, 0")
    a("s_mov_b64 exec, 1")
    a("buffer_store_dword v12, v12, s[12:15], s97 offen sc1")
    a("buffer_store_dword v12, v12, s[12:15], s97 offen offset:%d sc1" % PFL)
    a("s_mov_b64 exec, -1")
    a("ds_write_b64 v10, v[12:13]")
    a("ds_write_b64 v10, v[12:13] offset:8")
    a("ds_write_b64 v10, v[12:13] offset:16")
    a("ds_write_b64 v10, v[12:13] offset:24")
    mma_addr(0)
    a("s_mov_b32 s33, 0")
    a("s_waitcnt lgkmcnt(0)")
    a("s_barrier")
    stamp(a, 1)
    a.label("%s_mma" % name)
    core.prime(0, core.reads(0, 0))
    trk.drain()
    nocs = [False]
    def mfmas(buf):
        L = []
        for ft in range(5):
            A = core.F(buf, ft)
            for tt in range(4 if ft < 4 else 2):
                c = core.accr(ft, tt); B = core.T(buf, tt)
                L.append(("v_mfma_f32_16x16x32_bf16 %s, %s, %s, %s" % (vr(c), vr(A), vr(B), vr(c)), list(range(A, A + 4)) + list(range(B, B + 4))))
            if not nocs[0]: L.append(("v_mfma_f32_16x16x32_bf16 %s, %s, %s, %s" % (vr(CS + 4 * ft), vr(A), vr(ONE), vr(CS + 4 * ft)), list(range(A, A + 4))))
        return L
    def phase(buf, pend):
        for (m, regs) in mfmas(buf):
            trk.need(regs)
            a(m)
            while pend:
                k, t = pend.pop(0)
                if k == "x":
                    a(t)
                    if t.startswith("s_"): continue
                else:
                    a(t[0]); trk.issue(t[1])
                break
        for k, t in pend:
            if k == "x": a(t)
            else: a(t[0]); trk.issue(t[1])
    def iteration(vw=True):
        if vw: a("s_waitcnt vmcnt(0)")
        a("s_barrier")
        rd = [("r", t) for t in core.reads(1, 1)]
        upd = ["s_add_u32 s27, s27, %d" % SLOT, "s_cmp_eq_u32 s27, %d" % (R * SLOT), "s_cselect_b32 s27, 0, s27"]
        tail = ["v_add_u32 v%d, s27, v%d" % (d, s_) for d, s_ in ((vTa[0], bTa[0]), (vF, bF), (vTb[0], bTb[0]), (vFh, bFh))]
        phase(0, rd[:1] + [("x", u) for u in upd] + rd[1:] + [("x", u) for u in tail])
        rd = [("r", t) for t in core.reads(0, 0)]
        tail = ["v_add_u32 v%d, s27, v%d" % (d, s_) for d, s_ in ((vTa[1], bTa[1]), (vTb[1], bTb[1]))] + ["s_add_u32 s33, s33, 1"]
        phase(1, rd + [("x", u) for u in tail])
    a.label("%s_cloop" % name)
    lb = len(a.lines); iteration(); st = copy.deepcopy(trk.out); del a.lines[lb:]; trk.out = copy.deepcopy(st)
    iteration()
    assert [sorted(x) for x in trk.out] == [sorted(x) for x in st]
    a("s_cmp_lt_u32 s33, 9")
    a("s_cbranch_scc1 %s_cloop" % name)
    trk.drain()
    stamp(a, 2)
    MR = 100; T = 72; ZP = 16
    def epi_in():
        gelu_consts(a)
        a("s_lshl_b32 s36, s24, 9")
        a("s_lshl_b32 s37, s25, 8")
        a("s_add_u32 s38, s36, s37")
        a("s_xor_b32 s37, s37, 256")
        a("s_add_u32 s39, s36, s37")
        a("v_lshlrev_b32 v10, 3, v3")
        a("v_add_u32 v11, s38, v10")
        a("ds_read_b64 %s, v11 offset:%d" % (vr(MR, 2), RST))
        a("ds_read_b64 %s, v11 offset:%d" % (vr(MR + 2, 2), RST + 128))
        a("v_add_u32 v11, s39, v10")
        a("ds_read_b64 %s, v11 offset:%d" % (vr(MR + 4, 2), RST))
        a("ds_read_b64 %s, v11 offset:%d" % (vr(MR + 6, 2), RST + 128))
        a("s_waitcnt lgkmcnt(0)")
    S = [108, 110, 52, 54]; Q = [109, 111, 53, 55]
    def gelu_ft(ft, stats):
        tts = range(4 if ft < 4 else 2)
        a("s_call_b64 s[34:35], %s_gsub%d" % (name, ft))
        if stats:
            for d in range(2):
                for tt in tts:
                    p = ZP + 2 * tidx(ft, tt) + d
                    a("v_dot2_f32_bf16 v%d, v%d, v%d, v%d" % (S[tt], p, ONE, S[tt]))
                    a("v_dot2_f32_bf16 v%d, v%d, v%d, v%d" % (Q[tt], p, p, Q[tt]))
    a("s_cmp_eq_u32 s98, 0")
    a("s_cbranch_scc1 %s_A1" % name)
    a("s_barrier")
    a("s_load_dwordx2 s[94:95], s[0:1], 80")
    a("s_load_dwordx2 s[92:93], s[0:1], 72")
    epi_in()
    srd(a, 76, 94, 2304 * 576 * 2)
    srd(a, 28, 92, 2048 * 2)
    for ft in range(5): gelu_ft(ft, False)
    Z1R = 200; BI = 236
    for r_ in range(36): a("v_mov_b32 v%d, v%d" % (Z1R + r_, ZP + r_))
    stamp(a, 3)
    a("s_waitcnt vmcnt(0)")
    for r_ in range(6): a("v_mov_b32 v%d, v%d" % (128 + r_, 88 + r_))
    a.label("%s_kvb" % name)
    for n in range(11): a("ds_read_b32 v%d, v254 offset:%d" % (16 + n, 144 * n))
    a("s_waitcnt lgkmcnt(4)")
    for n in range(8): a("ds_read_b32 v%d, v254 offset:%d" % (32 + n, 10240 + 144 * n))
    for n in range(4): a("v_mov_b32 v%d, v%d" % (44 + n, 248 + n))
    a("v_mov_b32 v56, v252"); a("v_mov_b32 v57, v253")
    a("s_waitcnt lgkmcnt(0)")
    emit_kv_compute(a, wait=False, store=False)
    a("s_mov_b32 s39, 0x%x" % KVT)
    a("buffer_store_dwordx4 v[120:123], v12, s[12:15], s39 offen sc1")
    a("buffer_store_dwordx4 v[124:127], v13, s[12:15], s39 offen sc1")
    a("s_cmp_lg_u32 s41, 0")
    a("s_cbranch_scc1 %s_kvbx" % name)
    a("s_cmp_lg_u32 s3, 0")
    a("s_cbranch_scc1 %s_kvbx" % name)
    a("s_mov_b32 s41, 1")
    for n in range(4): a("v_mov_b32 v%d, v%d" % (248 + n, 244 + n))
    a("v_add_u32 v253, 128, v253")
    a("v_add_u32 v254, 128, v254")
    a("s_mov_b64 exec, 0xffffffff")
    a("s_branch %s_kvb" % name)
    a.label("%s_kvbx" % name)
    a("s_mov_b64 exec, -1")
    for r_ in range(6): a("v_mov_b32 v%d, v%d" % (240 + r_, 128 + r_))
    a.label("%s_kvbd" % name)
    for r_ in range(6): a("v_mov_b32 v%d, v%d" % (88 + r_, 240 + r_))
    a("s_mov_b32 s42, s2")
    emit_wot_loads(a, 100, 112, 720, 3)
    a("s_lshl_b32 s36, s22, 7")
    a("s_lshl_b32 s37, s24, 6")
    a("s_add_u32 s36, s36, s37")
    a("v_lshlrev_b32 v11, 1, v3")
    a("s_lshl_b32 s37, s25, 6")
    a("s_lshl_b32 s38, s36, 1")
    a("s_add_u32 s39, s38, s37")
    a("s_xor_b32 s37, s37, 64")
    a("s_add_u32 s36, s38, s37")
    a("buffer_load_ushort v96, v11, s[28:31], s39 offen")
    a("buffer_load_ushort v97, v11, s[28:31], s39 offen offset:32")
    a("buffer_load_ushort v98, v11, s[28:31], s36 offen")
    a("buffer_load_ushort v99, v11, s[28:31], s36 offen offset:32")
    for r in range(ACC, ACC + 72): a("v_mov_b32 v%d, 0" % r)
    a("v_lshrrev_b32 v10, 2, v2")
    a("v_lshlrev_b32 v10, 5, v10")
    a("v_and_b32 v11, 3, v2")
    a("v_lshl_add_u32 v10, v11, 3, v10")
    a("v_add_u32 v10, %d, v10" % (RB + TREG))
    a("s_mul_i32 s26, s25, 10240")
    a("v_add_u32 v%d, s26, v10" % bF)
    a("v_add_u32 v%d, 8192, v10" % bFh)
    core.FS = 32; core.FT = 2048
    mma_addr(0)
    a("s_mov_b32 s33, 0")
    stamp(a, 4)
    a("s_barrier")
    stamp(a, 5)
    core.prime(0, core.reads(0, 0))
    trk.drain()
    nocs[0] = True
    a.label("%s_gloop" % name)
    lb = len(a.lines); iteration(False); st = copy.deepcopy(trk.out); del a.lines[lb:]; trk.out = copy.deepcopy(st)
    iteration(False)
    assert [sorted(x) for x in trk.out] == [sorted(x) for x in st]
    a("s_cmp_lg_u32 s33, 3")
    a("s_cbranch_scc1 %s_ghk0" % name)
    a("s_waitcnt vmcnt(0)")
    for n in range(3):
        a("buffer_store_dwordx4 %s, v%d, s[12:15], s40 offen sc1" % (vr(100 + 4 * n), 112 + n))
    for tt in range(4): a("v_lshlrev_b32 v%d, 16, v%d" % (BI + 2 * tt, 96 + tt))
    a.label("%s_ghk0" % name)
    a("s_cmp_lg_u32 s33, 6")
    a("s_cbranch_scc1 %s_ghk" % name)
    a("s_waitcnt vmcnt(0)")
    a("v_mov_b32 v10, %d" % (LC + 8))
    a("v_mov_b32 v11, 1")
    a("s_mov_b64 exec, 1")
    a("ds_add_rtn_u32 v12, v10, v11")
    a("s_waitcnt lgkmcnt(0)")
    a("v_readfirstlane_b32 s36, v12")
    a("s_cmp_lg_u32 s36, 3")
    a("s_cbranch_scc1 %s_nokvs" % name)
    a("s_and_b32 s36, s2, 15")
    a("s_lshl_b32 s36, s36, 2")
    a("s_add_u32 s36, s36, 128")
    a("v_mov_b32 v10, s36")
    a("buffer_atomic_add v11, v10, s[60:63], 0 offen sc1")
    a.label("%s_nokvs" % name)
    a("s_mov_b64 exec, -1")
    a.label("%s_ghk" % name)
    a("s_cmp_lg_u32 s33, 24")
    a("s_cbranch_scc1 %s_ghk2" % name)
    a("v_lshlrev_b32 v10, 2, v3")
    a("buffer_load_dword v254, v10, s[60:63], 0 offen offset:128 sc1")
    a.label("%s_ghk2" % name)
    a("s_cmp_lt_u32 s33, 32")
    a("s_cbranch_scc1 %s_gloop" % name)
    trk.drain()
    stamp(a, 6)
    G3.emit_k2_epilogue2(a, core, Z1R, BI, " sc1")
    stamp(a, 7)
    a("s_setprio 3")
    a("s_lshl_b32 s36, s22, 4")
    a("s_add_u32 s36, s36, s23")
    a("s_lshl_b32 s36, s36, 8")
    a("s_add_u32 s97, s36, 0x%x" % (ZFLG + PFL))
    c_common()
    a("v_lshlrev_b32 v14, 4, v2")
    a("s_mul_i32 s26, s22, %d" % (36 * 8192))
    a("s_lshl_b32 s24, s3, 12")
    a("s_add_u32 s26, s26, s24")
    a("s_add_u32 s26, s26, 0x%x" % PIMG)
    a("s_mul_i32 s27, s23, %d" % (18 * 20480))
    a("s_mul_i32 s25, s3, 5120")
    a("s_add_u32 s27, s27, s25")
    a("s_add_u32 s27, s27, 0x%x" % WOT)
    a("s_add_u32 s25, s25, %d" % CTREG)
    a("v_and_b32 v28, 15, v2")
    a("v_lshlrev_b32 v30, 2, v28")
    a("v_mov_b32 v26, %d" % LC)
    a("v_mov_b32 v27, 1")
    a("s_waitcnt vmcnt(0)")
    a("v_mov_b32 v31, v254")
    a("s_mov_b64 exec, 1")
    a("ds_add_rtn_u32 v29, v26, v27 offset:16")
    a("s_waitcnt lgkmcnt(0)")
    a("v_readfirstlane_b32 s36, v29")
    a("s_cmp_lg_u32 s36, 3")
    a("s_cbranch_scc1 %s_nops" % name)
    a("v_mov_b32 v29, 0")
    a("buffer_store_dword v27, v29, s[12:15], s97 offen sc1")
    a.label("%s_nops" % name)
    a("s_mov_b64 exec, -1")
    a("s_mov_b32 s34, 0")
    a.label("%s_cw" % name)
    a("ds_read_b32 v29, v26 offset:16")
    a("s_add_u32 s34, s34, 1")
    a("s_waitcnt lgkmcnt(0)")
    a("v_readfirstlane_b32 s36, v29")
    a("s_cmp_gt_u32 s34, %d" % (SPIN_MAX * 20))
    a("s_cbranch_scc1 %s_cwx" % name)
    a("s_cmp_ge_u32 s36, 4")
    a("s_cbranch_scc1 %s_cwx" % name)
    a("s_sleep 1")
    a("s_branch %s_cw" % name)
    a.label("%s_cwx" % name)
    a("s_mov_b32 s34, 0")
    a.label("%s_cp" % name)
    a("v_cmp_gt_u32 vcc, 16, v31")
    a("s_add_u32 s34, s34, 1")
    a("s_cmp_gt_u32 s34, %d" % SPIN_MAX)
    a("s_cbranch_scc1 %s_cpx" % name)
    a("s_cbranch_vccz %s_cpx" % name)
    a("s_sleep 32")
    a("buffer_load_dword v31, v30, s[60:63], 0 offen offset:128 sc1")
    a("s_waitcnt vmcnt(0)")
    a("s_branch %s_cp" % name)
    a.label("%s_cpx" % name)
    def cF(off, soff):
        a("s_add_u32 s36, s25, %s" % off)
        a("s_mov_b32 m0, s36")
        a("s_add_u32 s37, %s, 4096" % soff)
        for n in range(4):
            a("buffer_load_dwordx4 v14, s[12:15], %s offen offset:%d sc1 lds" % (soff, n * 1024))
        a("s_add_u32 s36, s36, 4096")
        a("s_mov_b32 m0, s36")
        a("s_nop 0")
        a("buffer_load_dwordx4 v14, s[12:15], s37 offen sc1 lds")
    def cT(off, soff):
        a("s_add_u32 s35, s24, %s" % off)
        a("s_mov_b32 m0, s35")
        a("s_nop 0")
        for n in range(4):
            a("buffer_load_dwordx4 v14, s[12:15], %s offen offset:%d sc1 lds" % (soff, n * 1024))
    a("s_add_u32 s38, s27, 20480")
    cF(str(C0), "s27"); cF(str(C0 + CSL), "s38")
    a("s_mov_b32 s34, 0")
    a("s_cmp_lg_u32 s3, 0")
    a("s_cbranch_scc1 %s_cpl" % name)
    a("v_lshlrev_b32 v28, 8, v28")
    a("s_lshr_b32 s39, s22, 1")
    a("s_lshl_b32 s39, s39, 12")
    a("s_add_u32 s39, s39, 0x%x" % (ZFLG + PFL))
    a.label("%s_cpz" % name)
    a("buffer_load_dword v29, v28, s[12:15], s39 offen sc1")
    a("s_add_u32 s34, s34, 1")
    a("s_waitcnt vmcnt(0)")
    a("v_cmp_ne_u32 vcc, 1, v29")
    a("s_cmp_gt_u32 s34, %d" % SPIN_MAX)
    a("s_cbranch_scc1 %s_cpzx" % name)
    a("s_cbranch_vccz %s_cpzx" % name)
    a("s_sleep 8")
    a("s_branch %s_cpz" % name)
    a.label("%s_cpzx" % name)
    a("ds_write_b32 v26, v27 offset:24")
    a("s_branch %s_cgo" % name)
    a.label("%s_cpl" % name)
    a("ds_read_b32 v29, v26 offset:24")
    a("s_add_u32 s34, s34, 1")
    a("s_waitcnt lgkmcnt(0)")
    a("v_readfirstlane_b32 s36, v29")
    a("s_cmp_gt_u32 s34, %d" % (SPIN_MAX * 20))
    a("s_cbranch_scc1 %s_cgo" % name)
    a("s_cmp_lg_u32 s36, 0")
    a("s_cbranch_scc1 %s_cgo" % name)
    a("s_sleep 2")
    a("s_branch %s_cpl" % name)
    a.label("%s_cgo" % name)
    stamp(a, 8)
    a("s_add_u32 s38, s26, 16384")
    cT(str(C0), "s26"); cT(str(C0 + CSL), "s38")
    a("s_add_u32 s26, s26, 32768")
    a("s_add_u32 s27, s27, 40960")
    a("s_mov_b32 s33, %d" % RB)
    def cissue():
        cT("s33", "s26"); cF("s33", "s27")
        a("s_add_u32 s26, s26, 16384")
        a("s_add_u32 s27, s27, 20480")
        a("s_add_u32 s33, s33, %d" % CSL)
        a("s_cmp_eq_u32 s33, %d" % CW)
        a("s_cselect_b32 s33, %d, s33" % RB)
    a("s_waitcnt vmcnt(4)")
    a("s_barrier")
    cissue(); cissue()
    a("s_waitcnt vmcnt(18)")
    a("s_barrier")
    a("s_mov_b32 s34, 0")
    a.label("%s_clloop" % name)
    cissue()
    a("s_cmp_lg_u32 s34, 11")
    a("s_cbranch_scc1 %s_cl1" % name)
    a("buffer_load_dword v31, v30, s[60:63], 0 offen offset:192 sc1")
    a("s_waitcnt vmcnt(19)")
    a("s_branch %s_cl2" % name)
    a.label("%s_cl1" % name)
    a("s_waitcnt vmcnt(18)")
    a.label("%s_cl2" % name)
    a("s_barrier")
    a("s_add_u32 s34, s34, 1")
    a("s_cmp_lt_u32 s34, 14")
    a("s_cbranch_scc1 %s_clloop" % name)
    a("s_mov_b32 s34, 0")
    a.label("%s_cy" % name)
    a("v_cmp_gt_u32 vcc, 16, v31")
    a("s_add_u32 s34, s34, 1")
    a("s_cmp_gt_u32 s34, %d" % SPIN_MAX)
    a("s_cbranch_scc1 %s_cyx" % name)
    a("s_cbranch_vccz %s_cyx" % name)
    a("s_sleep 32")
    a("buffer_load_dword v31, v30, s[60:63], 0 offen offset:192 sc1")
    a("s_waitcnt vmcnt(0)")
    a("s_branch %s_cy" % name)
    a.label("%s_cyx" % name)
    a("v_lshrrev_b32 v3, 3, v2")
    a("v_and_b32 v4, 7, v2")
    a("v_lshlrev_b32 v4, 4, v4")
    a("s_mul_i32 s33, s52, 144")
    a("s_mul_i32 s34, s53, 80")
    a("s_lshl_b32 s35, s22, 7")
    a("s_add_u32 s35, s35, 0x%x" % YT)
    for n in range(3):
        a("s_add_u32 s36, s3, %d" % (4 * n))
        if n == 2: a("s_min_u32 s36, s36, 9")
        a("s_lshl_b32 s37, s36, 3")
        a("s_add_u32 s38, s37, s33")
        if n < 2: a("s_add_u32 s38, s38, s34")
        a("v_add_u32 v5, s38, v3")
        a("v_lshl_add_u32 v5, v5, 12, v4")
        a("s_lshl_b32 s36, s36, 10")
        a("s_add_u32 s36, s36, %d" % YOFF)
        a("s_mov_b32 m0, s36")
        a("s_nop 0")
        a("buffer_load_dwordx4 v5, s[12:15], s35 offen sc1 lds")
    fin_loads()
    a("s_waitcnt vmcnt(%d)" % (9 + 7))
    a("s_barrier")
    a("s_waitcnt vmcnt(7)")
    a("s_barrier")
    a("s_barrier")
    a("s_setprio 0")
    a("s_waitcnt vmcnt(0)")
    a("s_branch %s_cfin" % name)
    a.label("%s_A1" % name)
    a("s_setprio 2")
    vmA = VmTracker(a)
    PB = 132
    def aux_head():
        epi_in()
        for tt in range(4):
            a("v_mov_b32 v%d, 0" % S[tt]); a("v_mov_b32 v%d, 0" % Q[tt])
    def aux_pub():
        a("s_nop 2")
        emit_xg_reduce(a, S + Q, 72)
        a("v_lshrrev_b32 v10, 4, v2")
        for g in range(1, 4):
            a("v_cmp_eq_u32 vcc, %d, v10" % g)
            a("s_nop 1")
            a("v_cndmask_b32 v%d, v%d, v%d, vcc" % (S[0], S[0], S[g]))
            a("v_cndmask_b32 v%d, v%d, v%d, vcc" % (Q[0], Q[0], Q[g]))
        a("v_and_b32 v%d, 0x7fffffff, v%d" % (Q[0], Q[0]))
        a("buffer_store_dwordx2 v[%d:%d], v94, s[12:15], s58 offen sc1" % (S[0], Q[0]))
    chunks = [capture(aux_head) + capture(gelu_ft, 0, True), capture(gelu_ft, 1, True), capture(gelu_ft, 2, True),
              capture(gelu_ft, 3, True), capture(gelu_ft, 4, True) + capture(aux_pub)]
    KD = 172
    for k in range(9, 18):
        a("s_barrier")
        if k == 9:
            a("s_cmp_lg_u32 s3, 0")
            a("s_cbranch_scc1 %s_nosig" % name)
            a("v_mov_b32 v10, 1")
            a("s_lshl_b32 s36, s22, 2")
            a("v_mov_b32 v11, s36")
            a("s_mov_b64 exec, 1")
            a("buffer_atomic_add v10, v11, s[60:63], 0 offen sc1")
            a("s_mov_b64 exec, -1")
            a.label("%s_nosig" % name)
        g = k + 3
        dma = capture(lambda: (issueT(g), issueF(g))) if g < 18 else []
        comp = chunks[k - 9] if k - 9 < len(chunks) else []
        a.lines.extend(dma); a.lines.extend(comp)
        if k == 13: vmA.issue("pub", 1)
        if g < 18: vmA.issue("S%d" % g, 9)
        if k == 14:
            srd(a, 92, 78, 2048 * 2048 * 2)
            a("v_lshrrev_b32 v10, 4, v2")
            a("v_lshlrev_b32 v10, 12, v10")
            a("v_lshl_add_u32 v10, v3, 4, v10")
            a("s_lshl_b32 s40, s22, 7")
            a("s_lshl_b32 s36, s3, 5")
            a("s_add_u32 s40, s40, s36")
            a("s_lshl_b32 s40, s40, 12")
            a("s_lshl_b32 s36, s23, 8")
            a("s_add_u32 s40, s40, s36")
            for n in range(8):
                a("buffer_load_dwordx4 v[200:203], v10, s[92:95], s40 offen")
                if n < 7: a("s_add_u32 s40, s40, 16384")
            vmA.issue("wp", 8)
            a("s_lshl_b32 s36, s22, 2")
            a("v_mov_b32 v199, s36")
            a("buffer_load_dword v198, v199, s[60:63], 0 offen sc1"); vmA.issue("cnt", 1)
        if k + 2 < 18 and k + 2 >= 12:
            vmA.wait(["S%d" % (k + 2)])
    a("s_barrier")
    stamp(a, 3)
    a("s_load_dwordx4 s[88:91], s[0:1], 32")
    Z2 = ZP
    a("v_and_b32 v4, 31, v2")
    a("v_lshlrev_b32 v4, 4, v4")
    a("v_lshrrev_b32 v10, 5, v2")
    a("v_lshl_add_u32 v4, v10, 10, v4")
    for q in range(8): a("s_add_u32 s%d, s59, %d" % ((52, 53, 42, 43, 40, 41, 38, 39)[q], 4096 * q))
    GB = 128
    def gather():
        for q in range(16):
            a("buffer_load_dwordx4 %s, v4, s[12:15], s%d offen offset:%d sc1" % (vr(GB + 4 * q), (52, 53, 42, 43, 40, 41, 38, 39)[q >> 1], 2048 * (q & 1)))
    a("s_waitcnt vmcnt(0)")
    gather()
    a("s_mov_b32 s33, 0")
    a("s_waitcnt vmcnt(0)")
    a.label("%s_chk" % name)
    a("v_subrev_u32 v11, 16, v198")
    for q in range(16):
        a("v_or3_b32 v11, v11, v%d, v%d" % (GB + 4 * q + 1, GB + 4 * q + 3))
    a("v_cmp_gt_i32 vcc, 0, v11")
    a("s_add_u32 s33, s33, 1")
    a("s_cmp_gt_u32 s33, %d" % SPIN_MAX)
    a("s_cbranch_scc1 %s_ok" % name)
    a("s_cbranch_vccz %s_ok" % name)
    a("s_sleep 32")
    a("buffer_load_dword v198, v199, s[60:63], 0 offen sc1")
    a("s_waitcnt vmcnt(0)")
    gather()
    a("s_waitcnt vmcnt(0)")
    a("s_branch %s_chk" % name)
    a.label("%s_ok" % name)
    stamp(a, 5)
    for st_ in (32, 16, 8, 4):
        for q in range(0, st_, 2):
            a("v_pk_add_f32 %s, %s, %s" % (vr(GB + q, 2), vr(GB + q, 2), vr(GB + q + st_, 2)))
    for e in range(4): a("v_mov_b32 v%d, v%d" % (72 + e, GB + e))
    a("s_nop 1")
    for e in range(4): a("v_permlane32_swap_b32 v%d, v%d" % (GB + e, 72 + e))
    a("s_nop 1")
    for e in range(4): a("v_add_f32 v%d, v%d, v%d" % (GB + e, GB + e, 72 + e))
    for h in range(2):
        emit_ln_finish(a, GB + 2 * h, GB + 2 * h + 1, 2304, GB + 8 + h, GB + 4 + 2 * h, GB + 12)
        a("v_mul_f32 v%d, -v%d, v%d" % (GB + 5 + 2 * h, GB + 8 + h, GB + 4 + 2 * h))
    a("v_and_b32 v10, 31, v2")
    a("s_lshl_b32 s36, s24, 9")
    a("v_lshl_add_u32 v10, v10, 4, s36")
    a("ds_write_b128 v10, %s offset:1024" % vr(GB + 4))
    a("s_lshl_b32 s37, s25, 8")
    a("s_add_u32 s38, s36, s37")
    a("s_xor_b32 s37, s37, 256")
    a("s_add_u32 s39, s36, s37")
    a("v_lshlrev_b32 v10, 3, v3")
    a("v_add_u32 v11, s38, v10")
    a("v_add_u32 v10, s39, v10")
    a("s_waitcnt lgkmcnt(0)")
    a("ds_read_b64 %s, v11 offset:1024" % vr(MR, 2))
    a("ds_read_b64 %s, v11 offset:1152" % vr(MR + 2, 2))
    a("ds_read_b64 %s, v10 offset:1024" % vr(MR + 4, 2))
    a("ds_read_b64 %s, v10 offset:1152" % vr(MR + 6, 2))
    a("v_lshrrev_b32 v10, 4, v2")
    a("v_lshrrev_b32 v11, 2, v2"); a("v_and_b32 v11, 1, v11"); a("v_lshlrev_b32 v11, 4, v11")
    a("v_lshrrev_b32 v5, 3, v2"); a("v_and_b32 v5, 1, v5"); a("v_lshl_add_u32 v11, v5, 2, v11")
    a("v_and_b32 v5, 3, v2"); a("v_add_u32 v11, v11, v5")
    a("v_and_b32 v5, 1, v10")
    a("v_lshl_add_u32 v11, v5, 3, v11")
    a("v_lshlrev_b32 v11, 5, v11")
    a("v_lshrrev_b32 v5, 1, v10")
    a("v_lshl_add_u32 v6, v5, 4, v11")
    a("s_lshl_b32 s33, s23, 5")
    a("s_lshl_b32 s36, s22, 1")
    a("s_add_u32 s33, s33, s36")
    a("s_add_u32 s33, s33, s24")
    a("s_mul_i32 s33, s33, 18432")
    if ZIMG: a("s_add_u32 s33, s33, 0x%x" % ZIMG)
    a("s_lshl_b32 s36, s25, 10")
    a("s_add_u32 s39, s33, s36")
    a("s_add_u32 s39, s39, 8192")
    a("s_mul_i32 s38, s25, 10240")
    a("s_add_u32 s33, s33, s38")
    a("s_add_u32 s37, s33, s36")
    a("s_xor_b32 s36, s36, 1024")
    a("s_add_u32 s38, s33, s36")
    a("s_add_u32 s33, s37, 4096")
    a("s_add_u32 s36, s38, 4096")
    def norm_pair(nA, ttA, nB, ttB, O):
        for q, (n, tt) in enumerate(((nA, ttA), (nB, ttB))):
            for d in range(2):
                z = Z2 + 2 * n + d; t = T + 4 * q + 2 * d
                a("v_lshlrev_b32 v%d, 16, v%d" % (t, z))
                a("v_and_b32 v%d, 0xffff0000, v%d" % (t + 1, z))
        for q, (n, tt) in enumerate(((nA, ttA), (nB, ttB))):
            for d in range(2):
                t = T + 4 * q + 2 * d
                a("v_pk_fma_f32 %s, %s, %s, %s op_sel:[0,0,1] op_sel_hi:[1,0,1]" % (vr(t, 2), vr(t, 2), vr(MR + 2 * tt, 2), vr(MR + 2 * tt, 2)))
        for q in range(2):
            for d in range(2):
                t = T + 4 * q + 2 * d
                a("v_cvt_pk_bf16_f32 v%d, v%d, v%d" % (O + 2 * q + d, t, t + 1))
        a("s_nop 1")
        a("v_permlane16_swap_b32 v%d, v%d" % (O, O + 2))
        a("v_permlane16_swap_b32 v%d, v%d" % (O + 1, O + 3))
    a("s_waitcnt lgkmcnt(0)")
    cnt = 0
    for ft in range(4):
        for pp in range(2):
            O = 200 + 4 * cnt; cnt += 1
            norm_pair(tidx(ft, 2 * pp), 2 * pp, tidx(ft, 2 * pp + 1), 2 * pp + 1, O)
            a("s_nop 0")
            a("buffer_store_dwordx4 %s, v6, s[12:15], s%d offen offset:%d sc1" % (vr(O), ((37, 38), (33, 36))[ft >> 1][pp], (ft & 1) * 2048))
    O = 200 + 4 * cnt
    norm_pair(16, 0, 17, 1, O)
    a("s_nop 0")
    a("buffer_store_dwordx4 %s, v6, s[12:15], s39 offen sc1" % vr(O))
    stamp(a, 6)
    a("s_setprio 3")
    srd(a, 8, 78, 2048 * 2048 * 2)
    a("v_lshrrev_b32 v3, 3, v2")
    a("s_lshl_b32 s24, s3, 5")
    a("v_add_u32 v3, s24, v3")
    a("v_and_b32 v4, 7, v2")
    a("v_lshrrev_b32 v6, 4, v2")
    a("v_xor_b32 v6, v6, v4")
    a("v_lshlrev_b32 v6, 4, v6")
    a("v_lshl_add_u32 v10, v3, 12, v6")
    a("v_xor_b32 v11, 64, v10")
    a("v_add_u32 v11, %d, v11" % (32768 - 1024))
    a("v_add_u32 v12, %d, v10" % (2 * (32768 - 1024)))
    a("v_add_u32 v13, %d, v11" % (2 * (32768 - 1024)))
    a("v_lshlrev_b32 v14, 4, v2")
    a("s_lshl_b32 s26, s22, 19")
    a("s_mul_i32 s27, s23, %d" % (32 * 18432))
    a("s_lshl_b32 s24, s3, 12")
    a("s_add_u32 s27, s27, s24")
    if ZIMG: a("s_add_u32 s27, s27, 0x%x" % ZIMG)
    a("s_lshl_b32 s25, s3, 9")
    a("s_sub_u32 s32, s25, s24")
    a("s_add_u32 s32, s32, 16384")
    a("s_add_u32 s24, s24, %d" % RB)
    a("s_waitcnt vmcnt(0) lgkmcnt(0)")
    a("v_mov_b32 v26, %d" % LC)
    a("v_mov_b32 v27, 1")
    a("s_mov_b64 exec, 1")
    a("ds_add_rtn_u32 v28, v26, v27")
    a("s_waitcnt lgkmcnt(0)")
    a("v_readfirstlane_b32 s36, v28")
    a("s_cmp_lg_u32 s36, 3")
    a("s_cbranch_scc1 %s_nozs" % name)
    a("v_mov_b32 v28, 0")
    a("buffer_store_dword v27, v28, s[12:15], s97 offen sc1")
    a.label("%s_nozs" % name)
    a("s_mov_b64 exec, -1")
    stamp(a, 7)
    srd(a, 16, 88, 576 * 2048 * 2)
    srd(a, 84, 90, 576 * 2)
    for g in range(4):
        a("s_add_u32 s35, s24, %d" % (g * SLOT))
        a("s_mov_b32 m0, s35")
        a("s_add_u32 s36, s26, %d" % (128 * g))
        for n in range(4):
            a("buffer_load_dwordx4 v%d, s[8:11], s36 offen offset:%d lds" % (10 + n, n * 1024))
    a("s_mov_b32 s34, 0")
    a("s_cmp_lg_u32 s3, 0")
    a("s_cbranch_scc1 %s_pl" % name)
    a("v_and_b32 v28, 15, v2")
    a("v_lshlrev_b32 v30, 2, v28")
    a("v_lshlrev_b32 v28, 12, v28")
    a("s_lshl_b32 s52, s23, 8")
    a("s_add_u32 s52, s52, 0x%x" % ZFLG)
    a.label("%s_pz0" % name)
    a("buffer_load_dword v31, v30, s[60:63], 0 offen sc1")
    a("s_add_u32 s34, s34, 1")
    a("s_waitcnt vmcnt(0)")
    a("v_cmp_gt_u32 vcc, 16, v31")
    a("s_cmp_gt_u32 s34, %d" % SPIN_MAX)
    a("s_cbranch_scc1 %s_pz" % name)
    a("s_cbranch_vccz %s_pz" % name)
    a("s_sleep 32")
    a("s_branch %s_pz0" % name)
    a.label("%s_pz" % name)
    a("buffer_load_dword v29, v28, s[12:15], s52 offen sc1")
    a("s_add_u32 s34, s34, 1")
    a("s_waitcnt vmcnt(0)")
    a("v_cmp_ne_u32 vcc, 1, v29")
    a("s_cmp_gt_u32 s34, %d" % SPIN_MAX)
    a("s_cbranch_scc1 %s_pzx" % name)
    a("s_cbranch_vccz %s_pzx" % name)
    a("s_sleep 8")
    a("s_branch %s_pz" % name)
    a.label("%s_pzx" % name)
    a("v_mov_b32 v27, 1")
    a("ds_write_b32 v26, v27 offset:4")
    a("s_branch %s_pgo" % name)
    a.label("%s_pl" % name)
    a("ds_read_b32 v27, v26 offset:4")
    a("s_add_u32 s34, s34, 1")
    a("s_waitcnt lgkmcnt(0)")
    a("v_readfirstlane_b32 s36, v27")
    a("s_cmp_gt_u32 s34, %d" % (SPIN_MAX * 20))
    a("s_cbranch_scc1 %s_pgo" % name)
    a("s_cmp_lg_u32 s36, 0")
    a("s_cbranch_scc1 %s_pgo" % name)
    a("s_sleep 2")
    a("s_branch %s_pl" % name)
    a.label("%s_pgo" % name)
    stamp(a, 8)
    for g in range(4):
        a("s_add_u32 s35, s24, %d" % (g * SLOT + TREG))
        a("s_mov_b32 m0, s35")
        a("s_add_u32 s36, s27, %d" % (18432 * g))
        a("s_add_u32 s37, s36, s32")
        for n in range(4):
            a("buffer_load_dwordx4 v14, s[12:15], s36 offen offset:%d sc1 lds" % (n * 1024))
        a("s_add_u32 s35, s35, s32")
        a("s_mov_b32 m0, s35")
        a("s_mov_b64 exec, 0xffffffff")
        a("buffer_load_dwordx4 v14, s[12:15], s37 offen sc1 lds")
        a("s_mov_b64 exec, -1")
    a("s_add_u32 s26, s26, 512")
    a("s_add_u32 s27, s27, %d" % (4 * 18432))
    a("s_mov_b32 s33, 0")
    a("s_lshl_b32 s43, s2, 2")
    a("s_add_u32 s43, s43, s3")
    a("s_and_b32 s53, s43, 1")
    a("s_sub_u32 s36, s43, 448")
    a("s_lshr_b32 s37, s43, 1")
    a("s_cmp_ge_u32 s43, 896")
    a("s_cselect_b32 s43, s36, s37")
    a("s_cselect_b32 s53, 2, s53")
    a("s_waitcnt vmcnt(15)")
    a("s_barrier")
    a("s_waitcnt vmcnt(10)")
    a("s_barrier")
    a("s_waitcnt vmcnt(5)")
    a("s_barrier")
    a("s_mov_b32 s34, 4")
    def issue2():
        a("s_add_u32 s35, s33, s24")
        a("s_mov_b32 m0, s35")
        a("s_add_u32 s36, s35, %d" % TREG)
        for n in range(4):
            a("buffer_load_dwordx4 v%d, s[8:11], s26 offen offset:%d lds" % (10 + n, n * 1024))
        a("s_mov_b32 m0, s36")
        a("s_add_u32 s37, s27, s32")
        for n in range(4):
            a("buffer_load_dwordx4 v14, s[12:15], s27 offen offset:%d sc1 lds" % (n * 1024))
        a("s_add_u32 s36, s36, s32")
        a("s_mov_b32 m0, s36")
        a("s_mov_b64 exec, 0xffffffff")
        a("buffer_load_dwordx4 v14, s[12:15], s37 offen sc1 lds")
        a("s_mov_b64 exec, -1")
        a("s_add_u32 s26, s26, 128")
        a("s_add_u32 s27, s27, 18432")
        a("s_add_u32 s33, s33, %d" % SLOT)
        a("s_cmp_eq_u32 s33, %d" % (R * SLOT))
        a("s_cselect_b32 s33, 0, s33")
    a.label("%s_lloop" % name)
    issue2()
    a("s_cmp_eq_u32 s34, 18")
    a("s_cbranch_scc1 %s_hk1" % name)
    a("s_cmp_eq_u32 s34, 21")
    a("s_cbranch_scc1 %s_hk2" % name)
    a("s_waitcnt vmcnt(9)")
    a.label("%s_lcont" % name)
    a("s_barrier")
    a("s_add_u32 s34, s34, 1")
    a("s_cmp_lt_u32 s34, 32")
    a("s_cbranch_scc1 %s_lloop" % name)
    a("s_branch %s_ldone" % name)
    a.label("%s_hk1" % name)
    a("v_and_b32 v28, 15, v2")
    a("v_lshlrev_b32 v28, 2, v28")
    a("buffer_load_dword v29, v28, s[60:63], 0 offen offset:128 sc1")
    a("s_waitcnt vmcnt(10)")
    a("s_branch %s_lcont" % name)
    a.label("%s_hk2" % name)
    a("s_mov_b32 s52, 0")
    a.label("%s_hk2l" % name)
    a("v_cmp_gt_u32 vcc, 16, v29")
    a("s_add_u32 s52, s52, 1")
    a("s_cmp_gt_u32 s52, %d" % SPIN_MAX)
    a("s_cbranch_scc1 %s_hk2g" % name)
    a("s_cbranch_vccz %s_hk2g" % name)
    a("s_sleep 16")
    a("buffer_load_dword v29, v28, s[60:63], 0 offen offset:128 sc1")
    a("s_waitcnt vmcnt(0)")
    a("s_branch %s_hk2l" % name)
    a.label("%s_hk2g" % name)
    nconv = emit_conv_loads(a, " sc1")
    a("s_waitcnt vmcnt(%d)" % (9 + nconv))
    a("s_branch %s_lcont" % name)
    a.label("%s_ldone" % name)
    a("s_waitcnt vmcnt(0)")
    a("s_barrier")
    a("s_mov_b32 s26, s53")
    a("s_and_b32 s27, s3, 1")
    a("s_mul_i32 s27, s27, %d" % CJ_SIZE)
    a("s_lshr_b32 s36, s3, 1")
    a("s_mul_i32 s36, s36, %d" % SLOT)
    a("s_add_u32 s27, s27, s36")
    a("s_add_u32 s27, s27, %d" % RB)
    def mid():
        a("s_barrier")
        a("s_setprio 0")
    sv = set(DBG); DBG.discard("stamp")
    lb_ = len(a.lines)
    emit_conv_job(a, name, mid)
    for n_ in range(lb_, len(a.lines)):
        if "buffer_store_dwordx2" in a.lines[n_]: a.lines[n_] += " sc1"
    DBG.update(sv)
    stamp(a, 9)
    c_common()
    cTa = [4, 4]; cTb = [6, 6]; cF_ = 8; cFh = 9
    kTa = 88; kTb = 90; kF = 92; kFh = 93
    a("v_and_b32 v3, 15, v2")
    a("v_lshrrev_b32 v10, 5, v2")
    a("v_lshlrev_b32 v10, 11, v10")
    a("v_bfe_u32 v11, v2, 4, 1")
    a("v_lshl_add_u32 v10, v11, 4, v10")
    a("v_lshl_add_u32 v10, v3, 5, v10")
    a("s_lshl_b32 s26, s3, 12")
    a("v_add_u32 v10, s26, v10")
    a("s_lshl_b32 s26, s53, 10")
    a("v_add_u32 v%d, s26, v10" % kTa)
    a("s_xor_b32 s26, s26, 1024")
    a("v_add_u32 v%d, s26, v10" % kTb)
    a("v_lshrrev_b32 v10, 2, v2")
    a("v_mul_u32_u24 v10, %d, v10" % CFS)
    a("v_and_b32 v11, 3, v2")
    a("v_lshl_add_u32 v10, v11, 3, v10")
    a("s_mul_i32 s26, s3, %d" % (32 * CFS))
    a("s_add_u32 s26, s26, %d" % CTREG)
    a("v_add_u32 v%d, s26, v10" % kF)
    a("v_add_u32 v%d, 128, v%d" % (kFh, kF))
    a("v_mov_b32 v26, %d" % LC)
    a("v_mov_b32 v27, 1")
    a("s_waitcnt vmcnt(0)")
    a("s_mov_b64 exec, 1")
    a("ds_add_rtn_u32 v28, v26, v27 offset:20")
    a("s_waitcnt lgkmcnt(0)")
    a("v_readfirstlane_b32 s36, v28")
    a("s_cmp_lg_u32 s36, 3")
    a("s_cbranch_scc1 %s_nocs" % name)
    a("s_and_b32 s36, s2, 15")
    a("s_lshl_b32 s36, s36, 2")
    a("s_add_u32 s36, s36, 192")
    a("v_mov_b32 v28, s36")
    a("buffer_atomic_add v27, v28, s[60:63], 0 offen sc1")
    a.label("%s_nocs" % name)
    a("s_mov_b64 exec, -1")
    fin_loads()
    core3 = G.Core(a, ACC, FB[0], FB[1], CFS, CTREG, cTa, cTb, cF_, cFh, TT=512)
    pairs = ((cTa[0], kTa), (cF_, kF), (cTb[0], kTb), (cFh, kFh))
    a("s_mov_b32 s27, %d" % C0)
    for d, s_ in pairs: a("v_add_u32 v%d, s27, v%d" % (d, s_))
    for r in range(ACC, ACC + 72): a("v_mov_b32 v%d, 0" % r)
    a("s_mov_b32 s33, 0")
    a("s_barrier")
    stamp(a, 10)
    core3.prime(0, core3.reads(0, 0))
    def citer(buf):
        core3.trk.drain()
        a("s_barrier")
        a("s_add_u32 s27, s27, %d" % CSL)
        a("s_cmp_eq_u32 s27, %d" % CW)
        a("s_cselect_b32 s27, %d, s27" % RB)
        pre = ["v_add_u32 v%d, s27, v%d" % (d, s_) for d, s_ in pairs]
        core3.phase(buf, core3.reads(1 - buf, 0), pre=pre)
    a.label("%s_ccloop" % name)
    citer(0); citer(1)
    a("s_add_u32 s33, s33, 1")
    a("s_cmp_lt_u32 s33, 9")
    a("s_cbranch_scc1 %s_ccloop" % name)
    core3.trk.drain()
    stamp(a, 11)
    a("s_mul_i32 s33, s3, %d" % (18 * 1024))
    a("s_add_u32 s33, s33, %d" % C0)
    a("v_lshlrev_b32 v10, 4, v2")
    a("v_add_u32 v11, s33, v10")
    a("s_nop 4")
    for n, (ft, tt) in enumerate(TILES):
        a("ds_write_b128 v11, %s offset:%d" % (vr(core3.accr(ft, tt)), 1024 * tidx(ft, tt)))
        if n in (7, 13): a("s_waitcnt lgkmcnt(4)")
    a("s_waitcnt lgkmcnt(0) vmcnt(0)")
    a.label("%s_cfin" % name)
    a("s_barrier")
    stamp(a, 12)
    a("v_lshlrev_b32 v10, 4, v2")
    a("v_lshrrev_b32 v11, 2, v2")
    a("v_lshlrev_b32 v11, 7, v11")
    a("v_and_b32 v12, 3, v2")
    a("v_lshl_add_u32 v11, v12, 3, v11")
    a("s_mov_b32 s33, 0xbfb8aa3b")
    PT = 16; YR = 64
    for s_ in range(3):
        b = 64 + 4 * s_
        if s_ == 2:
            a("s_cmp_ge_u32 s54, 2")
            a("s_cbranch_scc1 %s_rd" % name)
        a("v_add_u32 v4, s%d, v10" % (b + 2))
        a("v_add_u32 v5, s%d, v11" % (b + 1))
        for q in range(4):
            a("ds_read_b128 %s, v4 offset:%d" % (vr(PT + 16 * s_ + 4 * q), 18432 * q))
        a("ds_read_b64_tr_b16 %s, v5" % vr(YR + 2 * s_, 2))
    a.label("%s_rd" % name)
    T = 104
    for s_ in range(3):
        b = 64 + 4 * s_
        if s_ == 0: a("s_waitcnt lgkmcnt(5)")
        if s_ == 1: a("s_waitcnt lgkmcnt(0)")
        if s_ == 2:
            a("s_cmp_ge_u32 s54, 2")
            a("s_cbranch_scc1 %s_done" % name)
        o = PT + 16 * s_; X = XR + 2 * s_; Y = YR + 2 * s_; S_ = ST + 2 * s_
        for h in (0, 2):
            a("v_pk_add_f32 %s, %s, %s" % (vr(o + h, 2), vr(o + h, 2), vr(o + 4 + h, 2)))
            a("v_pk_add_f32 %s, %s, %s" % (vr(o + 8 + h, 2), vr(o + 8 + h, 2), vr(o + 12 + h, 2)))
        for h in (0, 2):
            a("v_pk_add_f32 %s, %s, %s" % (vr(o + h, 2), vr(o + h, 2), vr(o + 8 + h, 2)))
        rnd_pair(a, T + 20, o, o + 1); rnd_pair(a, T + 21, o + 2, o + 3)
        for r in range(4): a("v_mul_f32 v%d, s33, v%d" % (T + r, o + r))
        for r in range(4): a("v_exp_f32 v%d, v%d" % (T + r, T + r))
        a("v_lshlrev_b32 v%d, 16, v%d" % (T + 4, X)); a("v_and_b32 v%d, 0xffff0000, v%d" % (T + 5, X))
        a("v_lshlrev_b32 v%d, 16, v%d" % (T + 6, X + 1)); a("v_and_b32 v%d, 0xffff0000, v%d" % (T + 7, X + 1))
        for r in range(4): a("v_add_f32 v%d, 1.0, v%d" % (T + r, T + r))
        for r in range(4): a("v_rcp_f32 v%d, v%d" % (T + r, T + r))
        for r in range(4): a("v_sub_f32 v%d, v%d, v%d" % (T + 12 + r, T + 4 + r, S_))
        a("v_lshlrev_b32 v%d, 16, v%d" % (T + 8, Y)); a("v_and_b32 v%d, 0xffff0000, v%d" % (T + 9, Y))
        a("v_lshlrev_b32 v%d, 16, v%d" % (T + 10, Y + 1)); a("v_and_b32 v%d, 0xffff0000, v%d" % (T + 11, Y + 1))
        for r in range(4): a("v_mul_f32 v%d, v%d, v%d" % (o + r, o + r, T + r))
        rnd_pair(a, T + 20, T + 12, T + 13); rnd_pair(a, T + 21, T + 14, T + 15)
        rnd_pair(a, T + 22, o, o + 1); rnd_pair(a, T + 23, o + 2, o + 3)
        for r in range(4): a("v_mul_f32 v%d, v%d, v%d" % (T + 12 + r, T + 12 + r, S_ + 1))
        rnd_pair(a, T + 20, T + 12, T + 13); rnd_pair(a, T + 21, T + 14, T + 15)
        for r in range(4): a("v_mul_f32 v%d, v%d, v%d" % (T + 12 + r, T + 12 + r, T + 8 + r))
        rnd_pair(a, T + 20, T + 12, T + 13); rnd_pair(a, T + 21, T + 14, T + 15)
        for r in range(4): a("v_mul_f32 v%d, v%d, v%d" % (T + 12 + r, T + 12 + r, o + r))
        rnd_pair(a, T + 20, T + 12, T + 13); rnd_pair(a, T + 21, T + 14, T + 15)
        for r in range(4): a("v_add_f32 v%d, v%d, v%d" % (T + 12 + r, T + 12 + r, T + 4 + r))
        a("v_cvt_pk_bf16_f32 v%d, v%d, v%d" % (X, T + 12, T + 13))
        a("v_cvt_pk_bf16_f32 v%d, v%d, v%d" % (X + 1, T + 14, T + 15))
        a("buffer_store_dwordx2 %s, v13, s[28:31], s%d offen" % (vr(X, 2), b))
    a.label("%s_done" % name)
    stamp(a, 13)
    G.stamp_rt(a, 1)
    a.label("%s_end" % name)
    a("s_endpgm")
    for ft in range(5):
        a.label("%s_gsub%d" % (name, ft))
        tts = range(4 if ft < 4 else 2)
        emit_fold_gelu(a, [(128 + 4 * tidx(ft, tt), CS + 4 * ft, MR + 2 * tt, ZP + 2 * tidx(ft, tt)) for tt in tts], 72)
        a("s_setpc_b64 s[34:35]")
    return a.text(), kernel_desc(name, 256, 256), (name, 256, 512, 163840)

def gen_kf15(name="k1_kernel", R=4):
    a = Asm()
    RB = 4096; SLOT = 34816; TREG = 16384; FS = 288; RST = 0
    LDSB = RB + R * SLOT
    LC = 2048
    ZFLG = 0x2D00000; PFL = 128
    KVL = 143360; XFLG = 0x2D20000; CFLG = 0x2D30000
    C0 = 77824; CW = 151552; CSL = 36864; YOFF = 151552; CTREG = 16384; CFS = 160
    from gen3 import emit_conv_loads, emit_conv_job, CJ_SIZE
    def capture(f, *args):
        lb = len(a.lines); f(*args); out = a.lines[lb:]; del a.lines[lb:]; return out

    def c_common():
        a("s_load_dwordx2 s[4:5], s[0:1], 0")
        a("s_load_dwordx2 s[16:17], s[0:1], 88")
        a("s_and_b32 s20, s2, 7")
        a("s_lshr_b32 s21, s2, 3")
        a("s_and_b32 s22, s20, 3")
        a("s_lshl_b32 s22, s22, 3")
        a("s_and_b32 s23, s21, 7")
        a("s_add_u32 s22, s22, s23")
        a("s_lshr_b32 s23, s20, 2")
        a("s_lshl_b32 s23, s23, 2")
        a("s_lshr_b32 s24, s21, 3")
        a("s_add_u32 s23, s23, s24")
        a("s_lshr_b32 s52, s23, 1")
        a("s_and_b32 s53, s23, 1")
        a("s_lshl_b32 s54, s98, 2")
        a("s_add_u32 s54, s54, s3")
        a("s_waitcnt lgkmcnt(0)")
        srd(a, 8, 4, 2048 * 576 * 2)
        srd(a, 28, 16, 2048 * 576 * 2)
    XR = 200; ST = 208
    def fin_loads():
        a("v_and_b32 v3, 15, v2")
        a("v_lshrrev_b32 v10, 4, v2")
        a("v_mul_u32_u24 v13, 1152, v3")
        a("v_lshl_add_u32 v13, v10, 3, v13")
        a("v_lshlrev_b32 v12, 3, v3")
        for s_ in range(3):
            if s_ == 2:
                a("s_cmp_ge_u32 s54, 2")
                a("s_cbranch_scc1 %s_fl%d" % (name, fin_loads.cnt))
            b = 64 + 4 * s_
            if s_ < 2:
                a("s_add_u32 s36, s54, %d" % (8 * s_))
                a("s_lshr_b32 s37, s36, 2")
                a("s_and_b32 s38, s36, 3")
                a("s_mul_i32 s39, s53, 160")
                a("s_lshl_b32 s40, s37, 5")
                a("s_add_u32 s39, s39, s40")
            else:
                a("s_add_u32 s36, s54, 16")
                a("s_mov_b32 s37, 4")
                a("s_mov_b32 s38, s54")
                a("s_mov_b32 s39, 128")
            a("s_lshl_b32 s40, s53, 1")
            a("s_add_u32 s38, s38, s40")
            a("s_and_b32 s38, s38, 3")
            a("s_lshl_b32 s40, s22, 2")
            a("s_add_u32 s40, s40, s38")
            a("s_lshl_b32 s40, s40, 4")
            a("s_mul_i32 s%d, s40, 1152" % b)
            a("s_add_u32 s%d, s%d, s39" % (b, b))
            a("s_mul_i32 s39, s52, 288")
            a("s_add_u32 s%d, s%d, s39" % (b, b))
            a("s_lshl_b32 s%d, s37, 11" % (b + 1))
            a("s_lshl_b32 s39, s38, 5")
            a("s_add_u32 s%d, s%d, s39" % (b + 1, b + 1))
            a("s_add_u32 s%d, s%d, %d" % (b + 1, b + 1, YOFF))
            a("s_lshl_b32 s%d, s36, 10" % (b + 2))
            a("s_add_u32 s%d, s%d, %d" % (b + 2, b + 2, C0))
            a("s_lshl_b32 s40, s40, 3")
            a("s_add_u32 s40, s40, 0x%x" % STATS1)
            a("buffer_load_dwordx2 %s, v13, s[8:11], s%d offen" % (vr(XR + 2 * s_, 2), b))
            a("buffer_load_dwordx2 %s, v12, s[12:15], s40 offen sc1" % vr(ST + 2 * s_, 2))
        a.label("%s_fl%d" % (name, fin_loads.cnt))
        fin_loads.cnt += 1
    fin_loads.cnt = 0
    kernel_begin(a, name)
    a("s_load_dwordx2 s[80:81], s[0:1], 0")
    a("s_load_dwordx2 s[4:5], s[0:1], 56")
    a("s_load_dwordx2 s[6:7], s[0:1], 104")
    a("s_load_dwordx2 s[18:19], s[0:1], 96")
    a("s_cmp_ge_u32 s2, 256")
    a("s_cbranch_scc1 %s_end" % name)
    a("v_lshrrev_b32 v1, 6, v0")
    a("v_and_b32 v2, 63, v0")
    a("v_readfirstlane_b32 s3, v1")
    G2.tile_ij(a)
    a("s_lshr_b32 s98, s3, 2")
    a("s_mov_b32 s54x, 0".replace("s54x", "s99"))
    a("s_and_b32 s3, s3, 3")
    a("s_lshr_b32 s24, s3, 1")
    a("s_and_b32 s25, s3, 1")
    a("v_and_b32 v3, 15, v2")
    VT = 204; VF = 208
    def loader_setup():
        a("v_lshrrev_b32 v5, 3, v2")
        a("v_and_b32 v4, 7, v2")
        a("s_lshl_b32 s36, s3, 5")
        a("v_add_u32 v5, s36, v5")
        a("v_lshrrev_b32 v7, 4, v2")
        a("v_xor_b32 v7, v7, v4")
        a("v_mul_u32_u24 v6, 1152, v5")
        a("v_lshl_add_u32 v%d, v7, 4, v6" % VT)
        a("v_xor_b32 v%d, 64, v%d" % (VT + 1, VT))
        a("v_add_u32 v%d, %d, v%d" % (VT + 1, 9216 - 1024, VT + 1))
        a("v_add_u32 v%d, %d, v%d" % (VT + 2, 2 * (9216 - 1024), VT))
        a("v_add_u32 v%d, %d, v%d" % (VT + 3, 2 * (9216 - 1024), VT + 1))
        a("s_lshl_b32 s84, s3, 12")
        a("s_add_u32 s84, s84, %d" % RB)
        a("s_lshl_b32 s85, s3, 9")
        a("s_add_u32 s85, s85, %d" % (RB + TREG + 16384))
    def loader_setup2():
        for n in range(5):
            if n < 4:
                a("s_lshl_b32 s36, s3, 8")
                a("s_add_u32 s36, s36, %d" % (64 * n))
            else:
                a("s_lshl_b32 s36, s3, 5")
                a("s_add_u32 s36, s36, 1024")
            a("v_add_u32 v6, s36, v2")
            a("v_mul_u32_u24 v7, 3641, v6")
            a("v_lshrrev_b32 v7, 16, v7")
            a("v_mul_u32_u24 v8, 18, v7")
            a("v_sub_u32 v8, v6, v8")
            a("v_and_b32 v9, 35, v7")
            a("v_bfe_u32 v6, v7, 2, 2")
            a("v_lshl_add_u32 v9, v6, 3, v9")
            a("v_bfe_u32 v6, v7, 4, 1")
            a("v_lshl_add_u32 v9, v6, 2, v9")
            a("v_mul_u32_u24 v9, 9216, v9")
            a("v_lshl_add_u32 v%d, v8, 4, v9" % (VF + n))
            if 0 < n < 4: a("v_subrev_u32 v%d, %d, v%d" % (VF + n, 1024 * n, VF + n))
    def issueT(g):
        st = g % 9
        a("s_add_u32 s86, s84, %d" % ((g % R) * SLOT))
        a("s_mov_b32 m0, s86")
        a("s_add_u32 s87, s82, %d" % (128 * st))
        for n in range(4):
            a("buffer_load_dwordx4 v%d, s[28:31], s87 offen offset:%d lds" % (VT + n, 1024 * n))
    def issueF(g):
        st = g % 9
        a("s_add_u32 s86, s84, %d" % ((g % R) * SLOT + TREG))
        a("s_mov_b32 m0, s86")
        a("s_add_u32 s87, s83, %d" % (64 * 9216 * st + (4608 if g < 9 else 0)))
        for n in range(4):
            a("buffer_load_dwordx4 v%d, s[8:11], s87 offen offset:%d lds" % (VF + n, 1024 * n))
        a("s_add_u32 s86, s85, %d" % ((g % R) * SLOT))
        a("s_mov_b32 m0, s86")
        a("s_mov_b64 exec, 0xffffffff")
        a("buffer_load_dwordx4 v%d, s[8:11], s87 offen lds" % (VF + 4))
        a("s_mov_b64 exec, -1")
    def srds_main():
        srd(a, 28, 80, 2048 * 576 * 2)
        srd(a, 8, 4, 576 * 4608 * 2)
        srd(a, 12, 6, WS_BYTES)
        srd(a, 60, 18, 256)
        a("s_mul_i32 s82, s22, %d" % (128 * 1152))
        a("s_mul_i32 s83, s23, 288")
    ACC = 128; FB = [16, 52]; CS = 216; ONE = 236
    vTa = [4, 5]; vTb = [6, 7]; vF = 8; vFh = 9
    bTa = [88, 89]; bTb = [90, 91]; bF = 92; bFh = 93
    def mma_setup():
        a("v_lshrrev_b32 v10, 4, v2")
        a("v_lshrrev_b32 v11, 1, v3")
        a("v_xor_b32 v10, v10, v11")
        a("v_lshlrev_b32 v10, 4, v10")
        a("v_lshl_add_u32 v10, v3, 7, v10")
        a("s_lshl_b32 s26, s24, 13")
        a("s_add_u32 s26, s26, %d" % RB)
        a("v_add_u32 v10, s26, v10")
        a("s_lshl_b32 s26, s25, 12")
        a("v_add_u32 v%d, s26, v10" % bTa[0])
        a("s_xor_b32 s26, s26, 4096")
        a("v_add_u32 v%d, s26, v10" % bTb[0])
        a("v_xor_b32 v%d, 64, v%d" % (bTa[1], bTa[0]))
        a("v_xor_b32 v%d, 64, v%d" % (bTb[1], bTb[0]))
        a("v_lshrrev_b32 v10, 2, v2")
        a("v_mul_u32_u24 v10, %d, v10" % FS)
        a("v_and_b32 v11, 3, v2")
        a("v_lshl_add_u32 v10, v11, 3, v10")
        a("v_add_u32 v10, %d, v10" % (RB + TREG))
        a("s_mul_i32 s26, s25, 160")
        a("v_add_u32 v%d, s26, v10" % bF)
        a("v_add_u32 v%d, 128, v10" % bFh)
        for r in range(ACC, ACC + 72): a("v_mov_b32 v%d, 0" % r)
        for r in range(CS, CS + 20): a("v_mov_b32 v%d, 0" % r)
        for r in range(ONE, ONE + 4): a("v_mov_b32 v%d, 0x3f803f80" % r)
    def mma_addr(slot):
        a("s_mov_b32 s27, %d" % (slot * SLOT))
        for d, s_ in ((vTa[0], bTa[0]), (vTb[0], bTb[0]), (vTa[1], bTa[1]), (vTb[1], bTb[1]), (vF, bF), (vFh, bFh)):
            a("v_add_u32 v%d, s27, v%d" % (d, s_))
    core = G.Core(a, ACC, FB[0], FB[1], FS, TREG, vTa, vTb, vF, vFh)
    trk = core.trk
    a("s_cmp_eq_u32 s98, 0")
    a("s_cbranch_scc1 %s_A0" % name)
    a("s_setprio 3")
    loader_setup()
    a("s_waitcnt lgkmcnt(0)")
    srds_main()
    vm = VmTracker(a)
    def issue(g, vmx):
        issueT(g); issueF(g); vmx.issue("S%d" % g, 9)
    issueT(0)
    loader_setup2()
    issueF(0); vm.issue("S0", 9)
    issue(1, vm); issue(2, vm); issue(3, vm)
    a("s_add_u32 s3, s3, 4"); stamp_setup(a, 1); stamp(a, 0); a("s_sub_u32 s3, s3, 4")
    a("s_load_dwordx4 s[64:67], s[0:1], 8")
    a("s_load_dwordx2 s[76:77], s[0:1], 24")
    mma_setup()
    a("s_waitcnt lgkmcnt(0)")
    srd(a, 68, 66, 2048 * 576 * 2)
    a("s_mov_b32 s88, s64"); a("s_mov_b32 s89, s65")
    srd(a, 64, 88, 2048 * 576 * 2)
    srd(a, 72, 76, 576 * 8)
    def kv_dma():
        a("s_lshr_b32 s36, s2, 3")
        a("s_mul_i32 s36, s36, %d" % (64 * 1152))
        a("s_and_b32 s37, s2, 7")
        a("s_mul_i32 s37, s37, 144")
        a("s_add_u32 s36, s36, s37")
        for q in range(5):
            a("s_add_u32 s38, s3, %d" % (4 * q))
            if q == 4: a("s_min_u32 s38, s38, 18")
            isK = (q < 2); isV = (q > 2)
            a("s_sub_u32 s39, s38, 10")
            a("s_cmp_lt_u32 s38, 10")
            a("s_cselect_b32 s39, s38, s39")
            a("s_cselect_b32 s40, %d, 0" % ((-3 * 1152) & 0xffffffff))
            a("s_lshl_b32 s37, s39, 6")
            a("v_add_u32 v240, s37, v2")
            a("v_mul_u32_u24 v241, 7282, v240")
            a("v_lshrrev_b32 v241, 16, v241")
            a("v_mul_u32_u24 v242, 9, v241")
            a("v_sub_u32 v242, v240, v242")
            a("v_mul_u32_u24 v241, 1152, v241")
            a("v_lshl_add_u32 v241, v242, 4, v241")
            a("s_add_u32 s40, s40, s36")
            a("v_add_u32 v241, s40, v241")
            a("s_lshl_b32 s37, s38, 10")
            a("s_add_u32 s37, s37, %d" % KVL)
            a("s_mov_b32 m0, s37")
            if isK:
                a("s_nop 0")
                a("buffer_load_dwordx4 v241, s[64:67], 0 offen lds")
            elif isV:
                a("s_nop 0")
                a("buffer_load_dwordx4 v241, s[68:71], 0 offen lds")
            else:
                a("s_cmp_lt_u32 s38, 10")
                a("s_cbranch_scc1 %s_kd1" % name)
                a("buffer_load_dwordx4 v241, s[68:71], 0 offen lds")
                a("s_branch %s_kd2" % name)
                a.label("%s_kd1" % name)
                a("buffer_load_dwordx4 v241, s[64:67], 0 offen lds")
                a.label("%s_kd2" % name)
    RA = 96; XB = 112
    for r in range(RA, RA + 16): a("v_mov_b32 v%d, 0" % r)
    a("v_lshrrev_b32 v10, 4, v2")
    a("v_lshrrev_b32 v11, 1, v3")
    a("v_xor_b32 v10, v10, v11")
    a("v_lshlrev_b32 v10, 4, v10")
    a("v_lshl_add_u32 v10, v3, 7, v10")
    a("v_add_u32 v12, s84, v10")
    a("v_xor_b32 v13, 64, v12")
    def rs_rd(g):
        a("v_add_u32 v10, %d, v12" % ((g % R) * SLOT))
        a("v_add_u32 v11, %d, v13" % ((g % R) * SLOT))
        for h in range(2):
            for n in range(2):
                a("ds_read_b128 %s, v%d offset:%d" % (vr(XB + 8 * h + 4 * n), 10 + h, 2048 * n))
    def rs_do():
        for h in range(2):
            for n in range(2):
                x = XB + 8 * h + 4 * n
                a("v_mfma_f32_16x16x32_bf16 %s, %s, %s, %s" % (vr(RA + 4 * n), vr(ONE), vr(x), vr(RA + 4 * n)))
                a("v_mfma_f32_16x16x32_bf16 %s, %s, %s, %s" % (vr(RA + 8 + 4 * n), vr(x), vr(x), vr(RA + 8 + 4 * n)))
    def interleave(dma, comp, vmx=None):
        groups = []; cur = []
        for l in dma:
            cur.append(l)
            if "buffer_load" in l and not any("exec, 0xffffffff" in x for x in cur[-2:]):
                groups.append(cur); cur = []
            elif "exec, -1" in l:
                groups.append(cur); cur = []
        if cur: groups.append(cur)
        ns = max(1, len(groups))
        per = (len(comp) + ns - 1) // ns
        for g in groups:
            a.lines.extend(g)
            a.lines.extend(comp[:per]); comp = comp[per:]
        a.lines.extend(comp)
    vm.wait(["S0"])
    a("s_barrier")
    stamp(a, 1)
    rs_rd(0)
    vm.wait(["S1"])
    a("s_barrier")
    for k in range(9):
        a("s_waitcnt lgkmcnt(0)")
        dma = capture(lambda: (issueT(k + 3), issueF(k + 3))) if k >= 1 else []
        interleave(dma, capture(rs_do))
        if k >= 1: vm.issue("S%d" % (k + 3), 9)
        if k == 3:
            kv_dma(); vm.issue("KV", 5)
        if k < 8:
            rs_rd(k + 1)
        else:
            a("s_nop 7")
            a("v_lshrrev_b32 v10, 4, v2")
            a("v_lshrrev_b32 v11, 2, v3")
            a("v_and_b32 v12, 3, v3")
            for n in range(2):
                G_ = RA + 8 + 4 * n
                for r in range(1, 4):
                    a("v_cmp_eq_u32 vcc, %d, v12" % r)
                    a("s_nop 1")
                    a("v_cndmask_b32 v%d, v%d, v%d, vcc" % (G_, G_, G_ + r))
            ML = 112
            for n in range(2):
                emit_ln_finish(a, RA + 4 * n, RA + 8 + 4 * n, 576, ML + 2 * n, ML + 2 * n + 1, 120)
                a("v_mov_b32 v%d, v%d" % (117 + 2 * n, ML + 2 * n + 1))
                a("v_sub_f32 v%d, 0, v%d" % (116 + 2 * n, ML + 2 * n))
            a("s_lshl_b32 s35, s3, 8")
            a("v_lshlrev_b32 v13, 3, v3")
            a("v_add_u32 v12, s35, v13")
            a("v_cmp_eq_u32 vcc, v10, v11")
            a("s_and_saveexec_b64 s[36:37], vcc")
            for n in range(2):
                a("ds_write_b64 v12, %s offset:%d" % (vr(116 + 2 * n, 2), RST + 128 * n))
            a("s_mov_b64 exec, s[36:37]")
            a("s_cmp_lg_u32 s23, 0")
            a("s_cbranch_scc1 %s_nost1" % name)
            a("s_lshl_b32 s35, s22, 7")
            a("s_lshl_b32 s36, s3, 5")
            a("s_add_u32 s35, s35, s36")
            a("s_lshl_b32 s35, s35, 3")
            a("s_add_u32 s35, s35, 0x%x" % STATS1)
            a("v_mov_b32 v11, 0x7ffffff0")
            a("v_cndmask_b32 v13, v11, v13, vcc")
            for n in range(2):
                a("buffer_store_dwordx2 %s, v13, s[12:15], s35 offen offset:%d sc1" % (vr(ML + 2 * n, 2), 128 * n))
            a.label("%s_nost1" % name)
            a("v_and_b32 v0, 255, v0")
            a("v_lshrrev_b32 v1, 3, v0")
            a("v_and_b32 v10, 7, v0")
            a("s_lshr_b32 s38, s2, 3")
            a("s_lshl_b32 s38, s38, 6")
            a("v_lshl_add_u32 v252, v10, 3, s38")
            a("s_and_b32 s39, s2, 7")
            a("s_mul_i32 s39, s39, 144")
            a("v_lshl_add_u32 v253, v1, 2, s39")
            a("v_lshlrev_b32 v11, 2, v253")
            a("buffer_load_dwordx4 v[248:251], v11, s[72:75], 0 offen")
            a("buffer_load_dwordx4 v[244:247], v11, s[72:75], 0 offen offset:512")
            a("v_mul_u32_u24 v254, 1152, v10")
            a("v_lshl_add_u32 v254, v1, 2, v254")
            a("v_add_u32 v254, %d, v254" % KVL)
            a("s_mov_b32 s41, 0")
            mma_addr(9 % R)
            a("s_mov_b32 s33, 0")
            a("s_setprio 0")
        vm.wait(["S%d" % (k + 2)], "lgkmcnt(0)" if k == 8 else "")
        if k < 8: a("s_barrier")
    a("s_branch %s_mma" % name)
    a.label("%s_A0" % name)
    emit_code_prefetch(a, name)
    a("s_load_dwordx4 s[64:67], s[0:1], 8")
    a("s_load_dwordx2 s[76:77], s[0:1], 24")
    a("s_load_dwordx2 s[78:79], s[0:1], 64")
    mma_setup()
    loader_setup(); loader_setup2()
    a("s_waitcnt lgkmcnt(0)")
    srds_main()
    srd(a, 68, 66, 2048 * 576 * 2)
    a("s_mov_b32 s88, s64"); a("s_mov_b32 s89, s65")
    srd(a, 64, 88, 2048 * 576 * 2)
    srd(a, 72, 76, 576 * 8)
    stamp_setup(a, 1); stamp(a, 0)
    def gran_addr():
        a("v_lshrrev_b32 v10, 4, v2")
        a("s_lshl_b32 s36, s25, 1")
        a("v_add_u32 v11, s36, v10")
        a("v_and_b32 v11, 3, v11")
        a("v_lshl_add_u32 v11, v11, 4, v3")
        a("v_lshlrev_b32 v94, 3, v11")
        a("s_lshl_b32 s59, s22, 15")
        a("s_lshl_b32 s36, s24, 9")
        a("s_add_u32 s59, s59, s36")
        a("s_add_u32 s59, s59, 0x%x" % STATS2)
        a("s_lshl_b32 s36, s23, 1")
        a("s_add_u32 s36, s36, s25")
        a("s_lshl_b32 s36, s36, 10")
        a("s_add_u32 s58, s36, s59")
    gran_addr()
    a("v_mov_b32 v12, 0"); a("v_mov_b32 v13, 0x80000000")
    a("buffer_store_dwordx2 v[12:13], v94, s[12:15], s58 offen sc1")
    a("s_lshl_b32 s36, s22, 4")
    a("s_add_u32 s36, s36, s23")
    a("s_lshl_b32 s36, s36, 8")
    a("s_add_u32 s97, s36, 0x%x" % ZFLG)
    a("v_mov_b32 v10, %d" % LC)
    a("v_mov_b32 v12, 0"); a("v_mov_b32 v13, 0")
    a("s_mov_b64 exec, 1")
    a("buffer_store_dword v12, v12, s[12:15], s97 offen sc1")
    a("buffer_store_dword v12, v12, s[12:15], s97 offen offset:%d sc1" % PFL)
    a("s_lshl_b32 s36, s2, 7")
    a("s_add_u32 s37, s36, 0x%x" % XFLG)
    a("s_add_u32 s36, s36, 0x%x" % CFLG)
    a("buffer_store_dword v12, v12, s[12:15], s37 offen sc1")
    a("buffer_store_dword v12, v12, s[12:15], s36 offen sc1")
    a("s_mov_b64 exec, -1")
    a("ds_write_b64 v10, v[12:13]")
    a("ds_write_b64 v10, v[12:13] offset:8")
    a("ds_write_b64 v10, v[12:13] offset:16")
    a("ds_write_b64 v10, v[12:13] offset:24")
    mma_addr(0)
    a("s_mov_b32 s33, 0")
    a("s_waitcnt lgkmcnt(0)")
    a("s_barrier")
    stamp(a, 1)
    a.label("%s_mma" % name)
    core.prime(0, core.reads(0, 0))
    trk.drain()
    nocs = [False]
    def mfmas(buf):
        L = []
        for ft in range(5):
            A = core.F(buf, ft)
            for tt in range(4 if ft < 4 else 2):
                c = core.accr(ft, tt); B = core.T(buf, tt)
                L.append(("v_mfma_f32_16x16x32_bf16 %s, %s, %s, %s" % (vr(c), vr(A), vr(B), vr(c)), list(range(A, A + 4)) + list(range(B, B + 4))))
            if not nocs[0]: L.append(("v_mfma_f32_16x16x32_bf16 %s, %s, %s, %s" % (vr(CS + 4 * ft), vr(A), vr(ONE), vr(CS + 4 * ft)), list(range(A, A + 4))))
        return L
    def phase(buf, pend):
        for (m, regs) in mfmas(buf):
            trk.need(regs)
            a(m)
            while pend:
                k, t = pend.pop(0)
                if k == "x":
                    a(t)
                    if t.startswith("s_"): continue
                else:
                    a(t[0]); trk.issue(t[1])
                break
        for k, t in pend:
            if k == "x": a(t)
            else: a(t[0]); trk.issue(t[1])
    def iteration(vw=True):
        if vw: a("s_waitcnt vmcnt(0)")
        a("s_barrier")
        rd = [("r", t) for t in core.reads(1, 1)]
        upd = ["s_add_u32 s27, s27, %d" % SLOT, "s_cmp_eq_u32 s27, %d" % (R * SLOT), "s_cselect_b32 s27, 0, s27"]
        tail = ["v_add_u32 v%d, s27, v%d" % (d, s_) for d, s_ in ((vTa[0], bTa[0]), (vF, bF), (vTb[0], bTb[0]), (vFh, bFh))]
        phase(0, rd[:1] + [("x", u) for u in upd] + rd[1:] + [("x", u) for u in tail])
        rd = [("r", t) for t in core.reads(0, 0)]
        tail = ["v_add_u32 v%d, s27, v%d" % (d, s_) for d, s_ in ((vTa[1], bTa[1]), (vTb[1], bTb[1]))] + ["s_add_u32 s33, s33, 1"]
        phase(1, rd + [("x", u) for u in tail])
    a.label("%s_cloop" % name)
    lb = len(a.lines); iteration(); st = copy.deepcopy(trk.out); del a.lines[lb:]; trk.out = copy.deepcopy(st)
    iteration()
    assert [sorted(x) for x in trk.out] == [sorted(x) for x in st]
    a("s_cmp_lt_u32 s33, 9")
    a("s_cbranch_scc1 %s_cloop" % name)
    trk.drain()
    stamp(a, 2)
    MR = 100; T = 72; ZP = 16
    def epi_in():
        gelu_consts(a)
        a("s_lshl_b32 s36, s24, 9")
        a("s_lshl_b32 s37, s25, 8")
        a("s_add_u32 s38, s36, s37")
        a("s_xor_b32 s37, s37, 256")
        a("s_add_u32 s39, s36, s37")
        a("v_lshlrev_b32 v10, 3, v3")
        a("v_add_u32 v11, s38, v10")
        a("ds_read_b64 %s, v11 offset:%d" % (vr(MR, 2), RST))
        a("ds_read_b64 %s, v11 offset:%d" % (vr(MR + 2, 2), RST + 128))
        a("v_add_u32 v11, s39, v10")
        a("ds_read_b64 %s, v11 offset:%d" % (vr(MR + 4, 2), RST))
        a("ds_read_b64 %s, v11 offset:%d" % (vr(MR + 6, 2), RST + 128))
        a("s_waitcnt lgkmcnt(0)")
    S = [108, 110, 52, 54]; Q = [109, 111, 53, 55]
    def gelu_ft(ft, stats):
        tts = range(4 if ft < 4 else 2)
        a("s_call_b64 s[34:35], %s_gsub%d" % (name, ft))
        if stats:
            for d in range(2):
                for tt in tts:
                    p = ZP + 2 * tidx(ft, tt) + d
                    a("v_dot2_f32_bf16 v%d, v%d, v%d, v%d" % (S[tt], p, ONE, S[tt]))
                    a("v_dot2_f32_bf16 v%d, v%d, v%d, v%d" % (Q[tt], p, p, Q[tt]))
    a("s_cmp_eq_u32 s98, 0")
    a("s_cbranch_scc1 %s_A1" % name)
    a("s_barrier")
    a("s_load_dwordx2 s[94:95], s[0:1], 80")
    a("s_load_dwordx2 s[92:93], s[0:1], 72")
    epi_in()
    srd(a, 76, 94, 2304 * 576 * 2)
    srd(a, 28, 92, 2048 * 2)
    for ft in range(5): gelu_ft(ft, False)
    Z1R = 200; BI = 236
    for r_ in range(36): a("v_mov_b32 v%d, v%d" % (Z1R + r_, ZP + r_))
    stamp(a, 3)
    a("s_waitcnt vmcnt(0)")
    for r_ in range(6): a("v_mov_b32 v%d, v%d" % (128 + r_, 88 + r_))
    a.label("%s_kvb" % name)
    for n in range(11): a("ds_read_b32 v%d, v254 offset:%d" % (16 + n, 144 * n))
    a("s_waitcnt lgkmcnt(4)")
    for n in range(8): a("ds_read_b32 v%d, v254 offset:%d" % (32 + n, 10240 + 144 * n))
    for n in range(4): a("v_mov_b32 v%d, v%d" % (44 + n, 248 + n))
    a("v_mov_b32 v56, v252"); a("v_mov_b32 v57, v253")
    a("s_waitcnt lgkmcnt(0)")
    emit_kv_compute(a, wait=False, store=False)
    a("s_mov_b32 s39, 0x%x" % KVT)
    a("buffer_store_dwordx4 v[120:123], v12, s[12:15], s39 offen sc1")
    a("buffer_store_dwordx4 v[124:127], v13, s[12:15], s39 offen sc1")
    a("s_cmp_lg_u32 s41, 0")
    a("s_cbranch_scc1 %s_kvbx" % name)
    a("s_cmp_lg_u32 s3, 0")
    a("s_cbranch_scc1 %s_kvbx" % name)
    a("s_mov_b32 s41, 1")
    for n in range(4): a("v_mov_b32 v%d, v%d" % (248 + n, 244 + n))
    a("v_add_u32 v253, 128, v253")
    a("v_add_u32 v254, 128, v254")
    a("s_mov_b64 exec, 0xffffffff")
    a("s_branch %s_kvb" % name)
    a.label("%s_kvbx" % name)
    a("s_mov_b64 exec, -1")
    for r_ in range(6): a("v_mov_b32 v%d, v%d" % (240 + r_, 128 + r_))
    a.label("%s_kvbd" % name)
    for r_ in range(6): a("v_mov_b32 v%d, v%d" % (88 + r_, 240 + r_))
    a("s_mov_b32 s42, s2")
    emit_wot_loads(a, 100, 112, 720, 3)
    a("s_lshl_b32 s36, s22, 7")
    a("s_lshl_b32 s37, s24, 6")
    a("s_add_u32 s36, s36, s37")
    a("v_lshlrev_b32 v11, 1, v3")
    a("s_lshl_b32 s37, s25, 6")
    a("s_lshl_b32 s38, s36, 1")
    a("s_add_u32 s39, s38, s37")
    a("s_xor_b32 s37, s37, 64")
    a("s_add_u32 s36, s38, s37")
    a("buffer_load_ushort v96, v11, s[28:31], s39 offen")
    a("buffer_load_ushort v97, v11, s[28:31], s39 offen offset:32")
    a("buffer_load_ushort v98, v11, s[28:31], s36 offen")
    a("buffer_load_ushort v99, v11, s[28:31], s36 offen offset:32")
    for r in range(ACC, ACC + 72): a("v_mov_b32 v%d, 0" % r)
    a("v_lshrrev_b32 v10, 2, v2")
    a("v_lshlrev_b32 v10, 5, v10")
    a("v_and_b32 v11, 3, v2")
    a("v_lshl_add_u32 v10, v11, 3, v10")
    a("v_add_u32 v10, %d, v10" % (RB + TREG))
    a("s_mul_i32 s26, s25, 10240")
    a("v_add_u32 v%d, s26, v10" % bF)
    a("v_add_u32 v%d, 8192, v10" % bFh)
    core.FS = 32; core.FT = 2048
    mma_addr(0)
    a("s_mov_b32 s33, 0")
    stamp(a, 4)
    a("s_barrier")
    stamp(a, 5)
    core.prime(0, core.reads(0, 0))
    trk.drain()
    nocs[0] = True
    a.label("%s_gloop" % name)
    lb = len(a.lines); iteration(False); st = copy.deepcopy(trk.out); del a.lines[lb:]; trk.out = copy.deepcopy(st)
    iteration(False)
    assert [sorted(x) for x in trk.out] == [sorted(x) for x in st]
    a("s_cmp_lg_u32 s33, 3")
    a("s_cbranch_scc1 %s_ghk0" % name)
    a("s_waitcnt vmcnt(0)")
    for n in range(3):
        a("buffer_store_dwordx4 %s, v%d, s[12:15], s40 offen sc1" % (vr(100 + 4 * n), 112 + n))
    for tt in range(4): a("v_lshlrev_b32 v%d, 16, v%d" % (BI + 2 * tt, 96 + tt))
    a.label("%s_ghk0" % name)
    a("s_cmp_lg_u32 s33, 6")
    a("s_cbranch_scc1 %s_ghk" % name)
    a("s_waitcnt vmcnt(0)")
    a("v_mov_b32 v10, %d" % (LC + 8))
    a("v_mov_b32 v11, 1")
    a("s_mov_b64 exec, 1")
    a("ds_add_rtn_u32 v12, v10, v11")
    a("s_waitcnt lgkmcnt(0)")
    a("v_readfirstlane_b32 s36, v12")
    a("s_cmp_lg_u32 s36, 3")
    a("s_cbranch_scc1 %s_nokvs" % name)
    a("s_lshl_b32 s36, s2, 7")
    a("s_add_u32 s36, s36, 0x%x" % XFLG)
    a("v_mov_b32 v10, 0")
    a("buffer_store_dword v11, v10, s[12:15], s36 offen sc1")
    a.label("%s_nokvs" % name)
    a("s_mov_b64 exec, -1")
    a.label("%s_ghk" % name)
    a("s_cmp_lg_u32 s33, 24")
    a("s_cbranch_scc1 %s_ghk2" % name)
    a("v_lshlrev_b32 v10, 7, v2")
    a("s_mov_b32 s36, 0x%x" % (XFLG + 0))
    a("buffer_load_dword v250, v10, s[12:15], s36 offen sc1")
    a("s_mov_b32 s36, 0x%x" % (XFLG + 8192))
    a("buffer_load_dword v251, v10, s[12:15], s36 offen sc1")
    a("s_mov_b32 s36, 0x%x" % (XFLG + 16384))
    a("buffer_load_dword v252, v10, s[12:15], s36 offen sc1")
    a("s_mov_b32 s36, 0x%x" % (XFLG + 24576))
    a("buffer_load_dword v253, v10, s[12:15], s36 offen sc1")

    a.label("%s_ghk2" % name)
    a("s_cmp_lt_u32 s33, 32")
    a("s_cbranch_scc1 %s_gloop" % name)
    trk.drain()
    stamp(a, 6)
    G3.emit_k2_epilogue2(a, core, Z1R, BI, " sc1")
    stamp(a, 7)
    a("s_setprio 3")
    a("s_lshl_b32 s36, s22, 4")
    a("s_add_u32 s36, s36, s23")
    a("s_lshl_b32 s36, s36, 8")
    a("s_add_u32 s97, s36, 0x%x" % (ZFLG + PFL))
    c_common()
    a("v_lshlrev_b32 v14, 4, v2")
    a("s_mul_i32 s26, s22, %d" % (36 * 8192))
    a("s_lshl_b32 s24, s3, 12")
    a("s_add_u32 s26, s26, s24")
    a("s_add_u32 s26, s26, 0x%x" % PIMG)
    a("s_mul_i32 s27, s23, %d" % (18 * 20480))
    a("s_mul_i32 s25, s3, 5120")
    a("s_add_u32 s27, s27, s25")
    a("s_add_u32 s27, s27, 0x%x" % WOT)
    a("s_add_u32 s25, s25, %d" % CTREG)
    a("v_and_b32 v28, 15, v2")
    a("v_lshlrev_b32 v30, 7, v2")
    a("v_mov_b32 v26, %d" % LC)
    a("v_mov_b32 v27, 1")
    a("s_waitcnt vmcnt(0)")
    for q_ in range(4): a("v_mov_b32 v%d, v%d" % (32 + q_, 250 + q_))
    a("s_mov_b64 exec, 1")
    a("ds_add_rtn_u32 v29, v26, v27 offset:16")
    a("s_waitcnt lgkmcnt(0)")
    a("v_readfirstlane_b32 s36, v29")
    a("s_cmp_lg_u32 s36, 3")
    a("s_cbranch_scc1 %s_nops" % name)
    a("v_mov_b32 v29, 0")
    a("buffer_store_dword v27, v29, s[12:15], s97 offen sc1")
    a.label("%s_nops" % name)
    a("s_mov_b64 exec, -1")
    a("s_mov_b32 s34, 0")
    a.label("%s_cw" % name)
    a("ds_read_b32 v29, v26 offset:16")
    a("s_add_u32 s34, s34, 1")
    a("s_waitcnt lgkmcnt(0)")
    a("v_readfirstlane_b32 s36, v29")
    a("s_cmp_gt_u32 s34, %d" % (SPIN_MAX * 20))
    a("s_cbranch_scc1 %s_cwx" % name)
    a("s_cmp_ge_u32 s36, 4")
    a("s_cbranch_scc1 %s_cwx" % name)
    a("s_sleep 1")
    a("s_branch %s_cw" % name)
    a.label("%s_cwx" % name)
    a("s_mov_b32 s34, 0")
    a.label("%s_cp" % name)
    a("v_and_b32 v32, v32, v33")
    a("v_and_b32 v34, v34, v35")
    a("v_and_b32 v32, v32, v34")
    a("v_cmp_eq_u32 vcc, 1, v32")
    a("s_nop 1")
    a("v_cndmask_b32 v32, 0, 16, vcc")
    a("v_cmp_gt_u32 vcc, 16, v32")
    a("s_add_u32 s34, s34, 1")
    a("s_cmp_gt_u32 s34, %d" % SPIN_MAX)
    a("s_cbranch_scc1 %s_cpx" % name)
    a("s_cbranch_vccz %s_cpx" % name)
    a("s_sleep 32")
    a("s_mov_b32 s38, 0x%x" % (XFLG + 0))
    a("buffer_load_dword v32, v30, s[12:15], s38 offen sc1")
    a("s_mov_b32 s38, 0x%x" % (XFLG + 8192))
    a("buffer_load_dword v33, v30, s[12:15], s38 offen sc1")
    a("s_mov_b32 s38, 0x%x" % (XFLG + 16384))
    a("buffer_load_dword v34, v30, s[12:15], s38 offen sc1")
    a("s_mov_b32 s38, 0x%x" % (XFLG + 24576))
    a("buffer_load_dword v35, v30, s[12:15], s38 offen sc1")
    a("s_waitcnt vmcnt(0)")
    a("s_branch %s_cp" % name)
    a.label("%s_cpx" % name)
    def cF(off, soff):
        a("s_add_u32 s36, s25, %s" % off)
        a("s_mov_b32 m0, s36")
        a("s_add_u32 s37, %s, 4096" % soff)
        for n in range(4):
            a("buffer_load_dwordx4 v14, s[12:15], %s offen offset:%d sc1 lds" % (soff, n * 1024))
        a("s_add_u32 s36, s36, 4096")
        a("s_mov_b32 m0, s36")
        a("s_nop 0")
        a("buffer_load_dwordx4 v14, s[12:15], s37 offen sc1 lds")
    def cT(off, soff):
        a("s_add_u32 s35, s24, %s" % off)
        a("s_mov_b32 m0, s35")
        a("s_nop 0")
        for n in range(4):
            a("buffer_load_dwordx4 v14, s[12:15], %s offen offset:%d sc1 lds" % (soff, n * 1024))
    a("s_add_u32 s38, s27, 20480")
    cF(str(C0), "s27"); cF(str(C0 + CSL), "s38")
    a("s_mov_b32 s34, 0")
    a("s_cmp_lg_u32 s3, 0")
    a("s_cbranch_scc1 %s_cpl" % name)
    a("v_lshlrev_b32 v28, 8, v28")
    a("s_lshr_b32 s39, s22, 1")
    a("s_lshl_b32 s39, s39, 12")
    a("s_add_u32 s39, s39, 0x%x" % (ZFLG + PFL))
    a.label("%s_cpz" % name)
    a("buffer_load_dword v29, v28, s[12:15], s39 offen sc1")
    a("s_add_u32 s34, s34, 1")
    a("s_waitcnt vmcnt(0)")
    a("v_cmp_ne_u32 vcc, 1, v29")
    a("s_cmp_gt_u32 s34, %d" % SPIN_MAX)
    a("s_cbranch_scc1 %s_cpzx" % name)
    a("s_cbranch_vccz %s_cpzx" % name)
    a("s_sleep 8")
    a("s_branch %s_cpz" % name)
    a.label("%s_cpzx" % name)
    a("ds_write_b32 v26, v27 offset:24")
    a("s_branch %s_cgo" % name)
    a.label("%s_cpl" % name)
    a("ds_read_b32 v29, v26 offset:24")
    a("s_add_u32 s34, s34, 1")
    a("s_waitcnt lgkmcnt(0)")
    a("v_readfirstlane_b32 s36, v29")
    a("s_cmp_gt_u32 s34, %d" % (SPIN_MAX * 20))
    a("s_cbranch_scc1 %s_cgo" % name)
    a("s_cmp_lg_u32 s36, 0")
    a("s_cbranch_scc1 %s_cgo" % name)
    a("s_sleep 2")
    a("s_branch %s_cpl" % name)
    a.label("%s_cgo" % name)
    stamp(a, 8)
    a("s_add_u32 s38, s26, 16384")
    cT(str(C0), "s26"); cT(str(C0 + CSL), "s38")
    a("s_add_u32 s26, s26, 32768")
    a("s_add_u32 s27, s27, 40960")
    a("s_mov_b32 s33, %d" % RB)
    def cissue():
        cT("s33", "s26"); cF("s33", "s27")
        a("s_add_u32 s26, s26, 16384")
        a("s_add_u32 s27, s27, 20480")
        a("s_add_u32 s33, s33, %d" % CSL)
        a("s_cmp_eq_u32 s33, %d" % CW)
        a("s_cselect_b32 s33, %d, s33" % RB)
    a("s_waitcnt vmcnt(4)")
    a("s_barrier")
    cissue(); cissue()
    a("s_waitcnt vmcnt(18)")
    a("s_barrier")
    a("s_mov_b32 s34, 0")
    a.label("%s_clloop" % name)
    cissue()
    a("s_cmp_lg_u32 s34, 11")
    a("s_cbranch_scc1 %s_cl1" % name)
    a("s_mov_b32 s38, 0x%x" % (CFLG + 0))
    a("buffer_load_dword v32, v30, s[12:15], s38 offen sc1")
    a("s_mov_b32 s38, 0x%x" % (CFLG + 8192))
    a("buffer_load_dword v33, v30, s[12:15], s38 offen sc1")
    a("s_mov_b32 s38, 0x%x" % (CFLG + 16384))
    a("buffer_load_dword v34, v30, s[12:15], s38 offen sc1")
    a("s_mov_b32 s38, 0x%x" % (CFLG + 24576))
    a("buffer_load_dword v35, v30, s[12:15], s38 offen sc1")
    a("s_waitcnt vmcnt(22)")
    a("s_branch %s_cl2" % name)
    a.label("%s_cl1" % name)
    a("s_waitcnt vmcnt(18)")
    a.label("%s_cl2" % name)
    a("s_barrier")
    a("s_add_u32 s34, s34, 1")
    a("s_cmp_lt_u32 s34, 14")
    a("s_cbranch_scc1 %s_clloop" % name)
    a("s_mov_b32 s34, 0")
    a.label("%s_cy" % name)
    a("v_and_b32 v32, v32, v33")
    a("v_and_b32 v34, v34, v35")
    a("v_and_b32 v32, v32, v34")
    a("v_cmp_eq_u32 vcc, 1, v32")
    a("s_nop 1")
    a("v_cndmask_b32 v32, 0, 16, vcc")
    a("v_cmp_gt_u32 vcc, 16, v32")
    a("s_add_u32 s34, s34, 1")
    a("s_cmp_gt_u32 s34, %d" % SPIN_MAX)
    a("s_cbranch_scc1 %s_cyx" % name)
    a("s_cbranch_vccz %s_cyx" % name)
    a("s_sleep 32")
    a("s_mov_b32 s38, 0x%x" % (CFLG + 0))
    a("buffer_load_dword v32, v30, s[12:15], s38 offen sc1")
    a("s_mov_b32 s38, 0x%x" % (CFLG + 8192))
    a("buffer_load_dword v33, v30, s[12:15], s38 offen sc1")
    a("s_mov_b32 s38, 0x%x" % (CFLG + 16384))
    a("buffer_load_dword v34, v30, s[12:15], s38 offen sc1")
    a("s_mov_b32 s38, 0x%x" % (CFLG + 24576))
    a("buffer_load_dword v35, v30, s[12:15], s38 offen sc1")
    a("s_waitcnt vmcnt(0)")
    a("s_branch %s_cy" % name)
    a.label("%s_cyx" % name)
    a("v_lshrrev_b32 v3, 3, v2")
    a("v_and_b32 v4, 7, v2")
    a("v_lshlrev_b32 v4, 4, v4")
    a("s_mul_i32 s33, s52, 144")
    a("s_mul_i32 s34, s53, 80")
    a("s_lshl_b32 s35, s22, 7")
    a("s_add_u32 s35, s35, 0x%x" % YT)
    for n in range(3):
        a("s_add_u32 s36, s3, %d" % (4 * n))
        if n == 2: a("s_min_u32 s36, s36, 9")
        a("s_lshl_b32 s37, s36, 3")
        a("s_add_u32 s38, s37, s33")
        if n < 2: a("s_add_u32 s38, s38, s34")
        a("v_add_u32 v5, s38, v3")
        a("v_lshl_add_u32 v5, v5, 12, v4")
        a("s_lshl_b32 s36, s36, 10")
        a("s_add_u32 s36, s36, %d" % YOFF)
        a("s_mov_b32 m0, s36")
        a("s_nop 0")
        a("buffer_load_dwordx4 v5, s[12:15], s35 offen sc1 lds")
    fin_loads()
    a("s_waitcnt vmcnt(%d)" % (9 + 7))
    a("s_barrier")
    a("s_waitcnt vmcnt(7)")
    a("s_barrier")
    a("s_barrier")
    a("s_setprio 0")
    a("s_waitcnt vmcnt(0)")
    a("s_branch %s_cfin" % name)
    a.label("%s_A1" % name)
    a("s_setprio 2")
    vmA = VmTracker(a)
    PB = 132
    def aux_head():
        epi_in()
        for tt in range(4):
            a("v_mov_b32 v%d, 0" % S[tt]); a("v_mov_b32 v%d, 0" % Q[tt])
    def aux_pub():
        a("s_nop 2")
        emit_xg_reduce(a, S + Q, 72)
        a("v_lshrrev_b32 v10, 4, v2")
        for g in range(1, 4):
            a("v_cmp_eq_u32 vcc, %d, v10" % g)
            a("s_nop 1")
            a("v_cndmask_b32 v%d, v%d, v%d, vcc" % (S[0], S[0], S[g]))
            a("v_cndmask_b32 v%d, v%d, v%d, vcc" % (Q[0], Q[0], Q[g]))
        a("v_and_b32 v%d, 0x7fffffff, v%d" % (Q[0], Q[0]))
        a("buffer_store_dwordx2 v[%d:%d], v94, s[12:15], s58 offen sc1" % (S[0], Q[0]))
    chunks = [capture(aux_head) + capture(gelu_ft, 0, True), capture(gelu_ft, 1, True), capture(gelu_ft, 2, True),
              capture(gelu_ft, 3, True), capture(gelu_ft, 4, True) + capture(aux_pub)]
    KD = 172
    for k in range(9, 18):
        a("s_barrier")
        if k == 9:
            a("s_cmp_lg_u32 s3, 0")
            a("s_cbranch_scc1 %s_nosig" % name)
            a("v_mov_b32 v10, 1")
            a("s_lshl_b32 s36, s22, 2")
            a("v_mov_b32 v11, s36")
            a("s_mov_b64 exec, 1")
            a("buffer_atomic_add v10, v11, s[60:63], 0 offen sc1")
            a("s_mov_b64 exec, -1")
            a.label("%s_nosig" % name)
        g = k + 3
        dma = capture(lambda: (issueT(g), issueF(g))) if g < 18 else []
        comp = chunks[k - 9] if k - 9 < len(chunks) else []
        a.lines.extend(dma); a.lines.extend(comp)
        if k == 13: vmA.issue("pub", 1)
        if g < 18: vmA.issue("S%d" % g, 9)
        if k == 14:
            srd(a, 92, 78, 2048 * 2048 * 2)
            a("v_lshrrev_b32 v10, 4, v2")
            a("v_lshlrev_b32 v10, 12, v10")
            a("v_lshl_add_u32 v10, v3, 4, v10")
            a("s_lshl_b32 s40, s22, 7")
            a("s_lshl_b32 s36, s3, 5")
            a("s_add_u32 s40, s40, s36")
            a("s_lshl_b32 s40, s40, 12")
            a("s_lshl_b32 s36, s23, 8")
            a("s_add_u32 s40, s40, s36")
            for n in range(8):
                a("buffer_load_dwordx4 v[200:203], v10, s[92:95], s40 offen")
                if n < 7: a("s_add_u32 s40, s40, 16384")
            vmA.issue("wp", 8)
            a("s_lshl_b32 s36, s22, 2")
            a("v_mov_b32 v199, s36")
            a("buffer_load_dword v198, v199, s[60:63], 0 offen sc1"); vmA.issue("cnt", 1)
        if k + 2 < 18 and k + 2 >= 12:
            vmA.wait(["S%d" % (k + 2)])
    a("s_barrier")
    stamp(a, 3)
    a("s_load_dwordx4 s[88:91], s[0:1], 32")
    Z2 = ZP
    a("v_and_b32 v4, 31, v2")
    a("v_lshlrev_b32 v4, 4, v4")
    a("v_lshrrev_b32 v10, 5, v2")
    a("v_lshl_add_u32 v4, v10, 10, v4")
    for q in range(8): a("s_add_u32 s%d, s59, %d" % ((52, 53, 42, 43, 40, 41, 38, 39)[q], 4096 * q))
    GB = 128
    def gather():
        for q in range(16):
            a("buffer_load_dwordx4 %s, v4, s[12:15], s%d offen offset:%d sc1" % (vr(GB + 4 * q), (52, 53, 42, 43, 40, 41, 38, 39)[q >> 1], 2048 * (q & 1)))
    a("s_waitcnt vmcnt(0)")
    gather()
    a("s_mov_b32 s33, 0")
    a("s_waitcnt vmcnt(0)")
    a.label("%s_chk" % name)
    a("v_subrev_u32 v11, 16, v198")
    for q in range(16):
        a("v_or3_b32 v11, v11, v%d, v%d" % (GB + 4 * q + 1, GB + 4 * q + 3))
    a("v_cmp_gt_i32 vcc, 0, v11")
    a("s_add_u32 s33, s33, 1")
    a("s_cmp_gt_u32 s33, %d" % SPIN_MAX)
    a("s_cbranch_scc1 %s_ok" % name)
    a("s_cbranch_vccz %s_ok" % name)
    a("s_sleep 32")
    a("buffer_load_dword v198, v199, s[60:63], 0 offen sc1")
    a("s_waitcnt vmcnt(0)")
    gather()
    a("s_waitcnt vmcnt(0)")
    a("s_branch %s_chk" % name)
    a.label("%s_ok" % name)
    stamp(a, 5)
    for st_ in (32, 16, 8, 4):
        for q in range(0, st_, 2):
            a("v_pk_add_f32 %s, %s, %s" % (vr(GB + q, 2), vr(GB + q, 2), vr(GB + q + st_, 2)))
    for e in range(4): a("v_mov_b32 v%d, v%d" % (72 + e, GB + e))
    a("s_nop 1")
    for e in range(4): a("v_permlane32_swap_b32 v%d, v%d" % (GB + e, 72 + e))
    a("s_nop 1")
    for e in range(4): a("v_add_f32 v%d, v%d, v%d" % (GB + e, GB + e, 72 + e))
    for h in range(2):
        emit_ln_finish(a, GB + 2 * h, GB + 2 * h + 1, 2304, GB + 8 + h, GB + 4 + 2 * h, GB + 12)
        a("v_mul_f32 v%d, -v%d, v%d" % (GB + 5 + 2 * h, GB + 8 + h, GB + 4 + 2 * h))
    a("v_and_b32 v10, 31, v2")
    a("s_lshl_b32 s36, s24, 9")
    a("v_lshl_add_u32 v10, v10, 4, s36")
    a("ds_write_b128 v10, %s offset:1024" % vr(GB + 4))
    a("s_lshl_b32 s37, s25, 8")
    a("s_add_u32 s38, s36, s37")
    a("s_xor_b32 s37, s37, 256")
    a("s_add_u32 s39, s36, s37")
    a("v_lshlrev_b32 v10, 3, v3")
    a("v_add_u32 v11, s38, v10")
    a("v_add_u32 v10, s39, v10")
    a("s_waitcnt lgkmcnt(0)")
    a("ds_read_b64 %s, v11 offset:1024" % vr(MR, 2))
    a("ds_read_b64 %s, v11 offset:1152" % vr(MR + 2, 2))
    a("ds_read_b64 %s, v10 offset:1024" % vr(MR + 4, 2))
    a("ds_read_b64 %s, v10 offset:1152" % vr(MR + 6, 2))
    a("v_lshrrev_b32 v10, 4, v2")
    a("v_lshrrev_b32 v11, 2, v2"); a("v_and_b32 v11, 1, v11"); a("v_lshlrev_b32 v11, 4, v11")
    a("v_lshrrev_b32 v5, 3, v2"); a("v_and_b32 v5, 1, v5"); a("v_lshl_add_u32 v11, v5, 2, v11")
    a("v_and_b32 v5, 3, v2"); a("v_add_u32 v11, v11, v5")
    a("v_and_b32 v5, 1, v10")
    a("v_lshl_add_u32 v11, v5, 3, v11")
    a("v_lshlrev_b32 v11, 5, v11")
    a("v_lshrrev_b32 v5, 1, v10")
    a("v_lshl_add_u32 v6, v5, 4, v11")
    a("s_lshl_b32 s33, s23, 5")
    a("s_lshl_b32 s36, s22, 1")
    a("s_add_u32 s33, s33, s36")
    a("s_add_u32 s33, s33, s24")
    a("s_mul_i32 s33, s33, 18432")
    if ZIMG: a("s_add_u32 s33, s33, 0x%x" % ZIMG)
    a("s_lshl_b32 s36, s25, 10")
    a("s_add_u32 s39, s33, s36")
    a("s_add_u32 s39, s39, 8192")
    a("s_mul_i32 s38, s25, 10240")
    a("s_add_u32 s33, s33, s38")
    a("s_add_u32 s37, s33, s36")
    a("s_xor_b32 s36, s36, 1024")
    a("s_add_u32 s38, s33, s36")
    a("s_add_u32 s33, s37, 4096")
    a("s_add_u32 s36, s38, 4096")
    def norm_pair(nA, ttA, nB, ttB, O):
        for q, (n, tt) in enumerate(((nA, ttA), (nB, ttB))):
            for d in range(2):
                z = Z2 + 2 * n + d; t = T + 4 * q + 2 * d
                a("v_lshlrev_b32 v%d, 16, v%d" % (t, z))
                a("v_and_b32 v%d, 0xffff0000, v%d" % (t + 1, z))
        for q, (n, tt) in enumerate(((nA, ttA), (nB, ttB))):
            for d in range(2):
                t = T + 4 * q + 2 * d
                a("v_pk_fma_f32 %s, %s, %s, %s op_sel:[0,0,1] op_sel_hi:[1,0,1]" % (vr(t, 2), vr(t, 2), vr(MR + 2 * tt, 2), vr(MR + 2 * tt, 2)))
        for q in range(2):
            for d in range(2):
                t = T + 4 * q + 2 * d
                a("v_cvt_pk_bf16_f32 v%d, v%d, v%d" % (O + 2 * q + d, t, t + 1))
        a("s_nop 1")
        a("v_permlane16_swap_b32 v%d, v%d" % (O, O + 2))
        a("v_permlane16_swap_b32 v%d, v%d" % (O + 1, O + 3))
    a("s_waitcnt lgkmcnt(0)")
    cnt = 0
    for ft in range(4):
        for pp in range(2):
            O = 200 + 4 * cnt; cnt += 1
            norm_pair(tidx(ft, 2 * pp), 2 * pp, tidx(ft, 2 * pp + 1), 2 * pp + 1, O)
            a("s_nop 0")
            a("buffer_store_dwordx4 %s, v6, s[12:15], s%d offen offset:%d sc1" % (vr(O), ((37, 38), (33, 36))[ft >> 1][pp], (ft & 1) * 2048))
    O = 200 + 4 * cnt
    norm_pair(16, 0, 17, 1, O)
    a("s_nop 0")
    a("buffer_store_dwordx4 %s, v6, s[12:15], s39 offen sc1" % vr(O))
    stamp(a, 6)
    a("s_setprio 3")
    srd(a, 8, 78, 2048 * 2048 * 2)
    a("v_lshrrev_b32 v3, 3, v2")
    a("s_lshl_b32 s24, s3, 5")
    a("v_add_u32 v3, s24, v3")
    a("v_and_b32 v4, 7, v2")
    a("v_lshrrev_b32 v6, 4, v2")
    a("v_xor_b32 v6, v6, v4")
    a("v_lshlrev_b32 v6, 4, v6")
    a("v_lshl_add_u32 v10, v3, 12, v6")
    a("v_xor_b32 v11, 64, v10")
    a("v_add_u32 v11, %d, v11" % (32768 - 1024))
    a("v_add_u32 v12, %d, v10" % (2 * (32768 - 1024)))
    a("v_add_u32 v13, %d, v11" % (2 * (32768 - 1024)))
    a("v_lshlrev_b32 v14, 4, v2")
    a("s_lshl_b32 s26, s22, 19")
    a("s_mul_i32 s27, s23, %d" % (32 * 18432))
    a("s_lshl_b32 s24, s3, 12")
    a("s_add_u32 s27, s27, s24")
    if ZIMG: a("s_add_u32 s27, s27, 0x%x" % ZIMG)
    a("s_lshl_b32 s25, s3, 9")
    a("s_sub_u32 s32, s25, s24")
    a("s_add_u32 s32, s32, 16384")
    a("s_add_u32 s24, s24, %d" % RB)
    a("s_waitcnt vmcnt(0) lgkmcnt(0)")
    a("v_mov_b32 v26, %d" % LC)
    a("v_mov_b32 v27, 1")
    a("s_mov_b64 exec, 1")
    a("ds_add_rtn_u32 v28, v26, v27")
    a("s_waitcnt lgkmcnt(0)")
    a("v_readfirstlane_b32 s36, v28")
    a("s_cmp_lg_u32 s36, 3")
    a("s_cbranch_scc1 %s_nozs" % name)
    a("v_mov_b32 v28, 0")
    a("buffer_store_dword v27, v28, s[12:15], s97 offen sc1")
    a.label("%s_nozs" % name)
    a("s_mov_b64 exec, -1")
    stamp(a, 7)
    srd(a, 16, 88, 576 * 2048 * 2)
    srd(a, 84, 90, 576 * 2)
    for g in range(4):
        a("s_add_u32 s35, s24, %d" % (g * SLOT))
        a("s_mov_b32 m0, s35")
        a("s_add_u32 s36, s26, %d" % (128 * g))
        for n in range(4):
            a("buffer_load_dwordx4 v%d, s[8:11], s36 offen offset:%d lds" % (10 + n, n * 1024))
    a("s_mov_b32 s34, 0")
    a("s_cmp_lg_u32 s3, 0")
    a("s_cbranch_scc1 %s_pl" % name)
    a("v_and_b32 v28, 15, v2")
    a("v_lshlrev_b32 v30, 2, v28")
    a("v_lshlrev_b32 v28, 12, v28")
    a("s_lshl_b32 s52, s23, 8")
    a("s_add_u32 s52, s52, 0x%x" % ZFLG)
    a.label("%s_pz0" % name)
    a("buffer_load_dword v31, v30, s[60:63], 0 offen sc1")
    a("s_add_u32 s34, s34, 1")
    a("s_waitcnt vmcnt(0)")
    a("v_cmp_gt_u32 vcc, 16, v31")
    a("s_cmp_gt_u32 s34, %d" % SPIN_MAX)
    a("s_cbranch_scc1 %s_pz" % name)
    a("s_cbranch_vccz %s_pz" % name)
    a("s_sleep 32")
    a("s_branch %s_pz0" % name)
    a.label("%s_pz" % name)
    a("buffer_load_dword v29, v28, s[12:15], s52 offen sc1")
    a("s_add_u32 s34, s34, 1")
    a("s_waitcnt vmcnt(0)")
    a("v_cmp_ne_u32 vcc, 1, v29")
    a("s_cmp_gt_u32 s34, %d" % SPIN_MAX)
    a("s_cbranch_scc1 %s_pzx" % name)
    a("s_cbranch_vccz %s_pzx" % name)
    a("s_sleep 8")
    a("s_branch %s_pz" % name)
    a.label("%s_pzx" % name)
    a("v_mov_b32 v27, 1")
    a("ds_write_b32 v26, v27 offset:4")
    a("s_branch %s_pgo" % name)
    a.label("%s_pl" % name)
    a("ds_read_b32 v27, v26 offset:4")
    a("s_add_u32 s34, s34, 1")
    a("s_waitcnt lgkmcnt(0)")
    a("v_readfirstlane_b32 s36, v27")
    a("s_cmp_gt_u32 s34, %d" % (SPIN_MAX * 20))
    a("s_cbranch_scc1 %s_pgo" % name)
    a("s_cmp_lg_u32 s36, 0")
    a("s_cbranch_scc1 %s_pgo" % name)
    a("s_sleep 2")
    a("s_branch %s_pl" % name)
    a.label("%s_pgo" % name)
    stamp(a, 8)
    for g in range(4):
        a("s_add_u32 s35, s24, %d" % (g * SLOT + TREG))
        a("s_mov_b32 m0, s35")
        a("s_add_u32 s36, s27, %d" % (18432 * g))
        a("s_add_u32 s37, s36, s32")
        for n in range(4):
            a("buffer_load_dwordx4 v14, s[12:15], s36 offen offset:%d sc1 lds" % (n * 1024))
        a("s_add_u32 s35, s35, s32")
        a("s_mov_b32 m0, s35")
        a("s_mov_b64 exec, 0xffffffff")
        a("buffer_load_dwordx4 v14, s[12:15], s37 offen sc1 lds")
        a("s_mov_b64 exec, -1")
    a("s_add_u32 s26, s26, 512")
    a("s_add_u32 s27, s27, %d" % (4 * 18432))
    a("s_mov_b32 s33, 0")
    a("s_lshl_b32 s43, s2, 2")
    a("s_add_u32 s43, s43, s3")
    a("s_and_b32 s53, s43, 1")
    a("s_sub_u32 s36, s43, 448")
    a("s_lshr_b32 s37, s43, 1")
    a("s_cmp_ge_u32 s43, 896")
    a("s_cselect_b32 s43, s36, s37")
    a("s_cselect_b32 s53, 2, s53")
    a("s_waitcnt vmcnt(15)")
    a("s_barrier")
    a("s_waitcnt vmcnt(10)")
    a("s_barrier")
    a("s_waitcnt vmcnt(5)")
    a("s_barrier")
    a("s_mov_b32 s34, 4")
    def issue2():
        a("s_add_u32 s35, s33, s24")
        a("s_mov_b32 m0, s35")
        a("s_add_u32 s36, s35, %d" % TREG)
        for n in range(4):
            a("buffer_load_dwordx4 v%d, s[8:11], s26 offen offset:%d lds" % (10 + n, n * 1024))
        a("s_mov_b32 m0, s36")
        a("s_add_u32 s37, s27, s32")
        for n in range(4):
            a("buffer_load_dwordx4 v14, s[12:15], s27 offen offset:%d sc1 lds" % (n * 1024))
        a("s_add_u32 s36, s36, s32")
        a("s_mov_b32 m0, s36")
        a("s_mov_b64 exec, 0xffffffff")
        a("buffer_load_dwordx4 v14, s[12:15], s37 offen sc1 lds")
        a("s_mov_b64 exec, -1")
        a("s_add_u32 s26, s26, 128")
        a("s_add_u32 s27, s27, 18432")
        a("s_add_u32 s33, s33, %d" % SLOT)
        a("s_cmp_eq_u32 s33, %d" % (R * SLOT))
        a("s_cselect_b32 s33, 0, s33")
    a.label("%s_lloop" % name)
    issue2()
    a("s_cmp_eq_u32 s34, 18")
    a("s_cbranch_scc1 %s_hk1" % name)
    a("s_cmp_eq_u32 s34, 21")
    a("s_cbranch_scc1 %s_hk2" % name)
    a("s_waitcnt vmcnt(9)")
    a.label("%s_lcont" % name)
    a("s_barrier")
    a("s_add_u32 s34, s34, 1")
    a("s_cmp_lt_u32 s34, 32")
    a("s_cbranch_scc1 %s_lloop" % name)
    a("s_branch %s_ldone" % name)
    a.label("%s_hk1" % name)
    a("v_lshlrev_b32 v28, 7, v2")
    a("s_mov_b32 s52, 0x%x" % (XFLG + 0))
    a("buffer_load_dword v32, v28, s[12:15], s52 offen sc1")
    a("s_mov_b32 s52, 0x%x" % (XFLG + 8192))
    a("buffer_load_dword v33, v28, s[12:15], s52 offen sc1")
    a("s_mov_b32 s52, 0x%x" % (XFLG + 16384))
    a("buffer_load_dword v34, v28, s[12:15], s52 offen sc1")
    a("s_mov_b32 s52, 0x%x" % (XFLG + 24576))
    a("buffer_load_dword v35, v28, s[12:15], s52 offen sc1")
    a("s_waitcnt vmcnt(13)")
    a("s_branch %s_lcont" % name)
    a.label("%s_hk2" % name)
    a("s_mov_b32 s52, 0")
    a.label("%s_hk2l" % name)
    a("v_and_b32 v32, v32, v33")
    a("v_and_b32 v34, v34, v35")
    a("v_and_b32 v32, v32, v34")
    a("v_cmp_eq_u32 vcc, 1, v32")
    a("s_nop 1")
    a("v_cndmask_b32 v32, 0, 16, vcc")
    a("v_cmp_gt_u32 vcc, 16, v32")
    a("s_add_u32 s52, s52, 1")
    a("s_cmp_gt_u32 s52, %d" % SPIN_MAX)
    a("s_cbranch_scc1 %s_hk2g" % name)
    a("s_cbranch_vccz %s_hk2g" % name)
    a("s_sleep 16")
    a("s_mov_b32 s38, 0x%x" % (XFLG + 0))
    a("buffer_load_dword v32, v28, s[12:15], s38 offen sc1")
    a("s_mov_b32 s38, 0x%x" % (XFLG + 8192))
    a("buffer_load_dword v33, v28, s[12:15], s38 offen sc1")
    a("s_mov_b32 s38, 0x%x" % (XFLG + 16384))
    a("buffer_load_dword v34, v28, s[12:15], s38 offen sc1")
    a("s_mov_b32 s38, 0x%x" % (XFLG + 24576))
    a("buffer_load_dword v35, v28, s[12:15], s38 offen sc1")
    a("s_waitcnt vmcnt(0)")
    a("s_branch %s_hk2l" % name)
    a.label("%s_hk2g" % name)
    nconv = emit_conv_loads(a, " sc1")
    a("s_waitcnt vmcnt(%d)" % (9 + nconv))
    a("s_branch %s_lcont" % name)
    a.label("%s_ldone" % name)
    a("s_waitcnt vmcnt(0)")
    a("s_barrier")
    a("s_mov_b32 s26, s53")
    a("s_and_b32 s27, s3, 1")
    a("s_mul_i32 s27, s27, %d" % CJ_SIZE)
    a("s_lshr_b32 s36, s3, 1")
    a("s_mul_i32 s36, s36, %d" % SLOT)
    a("s_add_u32 s27, s27, s36")
    a("s_add_u32 s27, s27, %d" % RB)
    def mid():
        a("s_barrier")
        a("s_setprio 0")
    sv = set(DBG); DBG.discard("stamp")
    lb_ = len(a.lines)
    emit_conv_job(a, name, mid)
    for n_ in range(lb_, len(a.lines)):
        if "buffer_store_dwordx2" in a.lines[n_]: a.lines[n_] += " sc1"
    DBG.update(sv)
    stamp(a, 9)
    c_common()
    cTa = [4, 4]; cTb = [6, 6]; cF_ = 8; cFh = 9
    kTa = 88; kTb = 90; kF = 92; kFh = 93
    a("v_and_b32 v3, 15, v2")
    a("v_lshrrev_b32 v10, 5, v2")
    a("v_lshlrev_b32 v10, 11, v10")
    a("v_bfe_u32 v11, v2, 4, 1")
    a("v_lshl_add_u32 v10, v11, 4, v10")
    a("v_lshl_add_u32 v10, v3, 5, v10")
    a("s_lshl_b32 s26, s3, 12")
    a("v_add_u32 v10, s26, v10")
    a("s_lshl_b32 s26, s53, 10")
    a("v_add_u32 v%d, s26, v10" % kTa)
    a("s_xor_b32 s26, s26, 1024")
    a("v_add_u32 v%d, s26, v10" % kTb)
    a("v_lshrrev_b32 v10, 2, v2")
    a("v_mul_u32_u24 v10, %d, v10" % CFS)
    a("v_and_b32 v11, 3, v2")
    a("v_lshl_add_u32 v10, v11, 3, v10")
    a("s_mul_i32 s26, s3, %d" % (32 * CFS))
    a("s_add_u32 s26, s26, %d" % CTREG)
    a("v_add_u32 v%d, s26, v10" % kF)
    a("v_add_u32 v%d, 128, v%d" % (kFh, kF))
    a("v_mov_b32 v26, %d" % LC)
    a("v_mov_b32 v27, 1")
    a("s_waitcnt vmcnt(0)")
    a("s_mov_b64 exec, 1")
    a("ds_add_rtn_u32 v28, v26, v27 offset:20")
    a("s_waitcnt lgkmcnt(0)")
    a("v_readfirstlane_b32 s36, v28")
    a("s_cmp_lg_u32 s36, 3")
    a("s_cbranch_scc1 %s_nocs" % name)
    a("s_lshl_b32 s36, s2, 7")
    a("s_add_u32 s36, s36, 0x%x" % CFLG)
    a("v_mov_b32 v28, 0")
    a("buffer_store_dword v27, v28, s[12:15], s36 offen sc1")
    a.label("%s_nocs" % name)
    a("s_mov_b64 exec, -1")
    fin_loads()
    core3 = G.Core(a, ACC, FB[0], FB[1], CFS, CTREG, cTa, cTb, cF_, cFh, TT=512)
    pairs = ((cTa[0], kTa), (cF_, kF), (cTb[0], kTb), (cFh, kFh))
    a("s_mov_b32 s27, %d" % C0)
    for d, s_ in pairs: a("v_add_u32 v%d, s27, v%d" % (d, s_))
    for r in range(ACC, ACC + 72): a("v_mov_b32 v%d, 0" % r)
    a("s_mov_b32 s33, 0")
    a("s_barrier")
    stamp(a, 10)
    core3.prime(0, core3.reads(0, 0))
    def citer(buf):
        core3.trk.drain()
        a("s_barrier")
        a("s_add_u32 s27, s27, %d" % CSL)
        a("s_cmp_eq_u32 s27, %d" % CW)
        a("s_cselect_b32 s27, %d, s27" % RB)
        pre = ["v_add_u32 v%d, s27, v%d" % (d, s_) for d, s_ in pairs]
        core3.phase(buf, core3.reads(1 - buf, 0), pre=pre)
    a.label("%s_ccloop" % name)
    citer(0); citer(1)
    a("s_add_u32 s33, s33, 1")
    a("s_cmp_lt_u32 s33, 9")
    a("s_cbranch_scc1 %s_ccloop" % name)
    core3.trk.drain()
    stamp(a, 11)
    a("s_mul_i32 s33, s3, %d" % (18 * 1024))
    a("s_add_u32 s33, s33, %d" % C0)
    a("v_lshlrev_b32 v10, 4, v2")
    a("v_add_u32 v11, s33, v10")
    a("s_nop 4")
    for n, (ft, tt) in enumerate(TILES):
        a("ds_write_b128 v11, %s offset:%d" % (vr(core3.accr(ft, tt)), 1024 * tidx(ft, tt)))
        if n in (7, 13): a("s_waitcnt lgkmcnt(4)")
    a("s_waitcnt lgkmcnt(0) vmcnt(0)")
    a.label("%s_cfin" % name)
    a("s_barrier")
    stamp(a, 12)
    a("v_lshlrev_b32 v10, 4, v2")
    a("v_lshrrev_b32 v11, 2, v2")
    a("v_lshlrev_b32 v11, 7, v11")
    a("v_and_b32 v12, 3, v2")
    a("v_lshl_add_u32 v11, v12, 3, v11")
    a("s_mov_b32 s33, 0xbfb8aa3b")
    PT = 16; YR = 64
    for s_ in range(3):
        b = 64 + 4 * s_
        if s_ == 2:
            a("s_cmp_ge_u32 s54, 2")
            a("s_cbranch_scc1 %s_rd" % name)
        a("v_add_u32 v4, s%d, v10" % (b + 2))
        a("v_add_u32 v5, s%d, v11" % (b + 1))
        for q in range(4):
            a("ds_read_b128 %s, v4 offset:%d" % (vr(PT + 16 * s_ + 4 * q), 18432 * q))
        a("ds_read_b64_tr_b16 %s, v5" % vr(YR + 2 * s_, 2))
    a.label("%s_rd" % name)
    T = 104
    for s_ in range(3):
        b = 64 + 4 * s_
        if s_ == 0: a("s_waitcnt lgkmcnt(5)")
        if s_ == 1: a("s_waitcnt lgkmcnt(0)")
        if s_ == 2:
            a("s_cmp_ge_u32 s54, 2")
            a("s_cbranch_scc1 %s_done" % name)
        o = PT + 16 * s_; X = XR + 2 * s_; Y = YR + 2 * s_; S_ = ST + 2 * s_
        for h in (0, 2):
            a("v_pk_add_f32 %s, %s, %s" % (vr(o + h, 2), vr(o + h, 2), vr(o + 4 + h, 2)))
            a("v_pk_add_f32 %s, %s, %s" % (vr(o + 8 + h, 2), vr(o + 8 + h, 2), vr(o + 12 + h, 2)))
        for h in (0, 2):
            a("v_pk_add_f32 %s, %s, %s" % (vr(o + h, 2), vr(o + h, 2), vr(o + 8 + h, 2)))
        rnd_pair(a, T + 20, o, o + 1); rnd_pair(a, T + 21, o + 2, o + 3)
        for r in range(4): a("v_mul_f32 v%d, s33, v%d" % (T + r, o + r))
        for r in range(4): a("v_exp_f32 v%d, v%d" % (T + r, T + r))
        a("v_lshlrev_b32 v%d, 16, v%d" % (T + 4, X)); a("v_and_b32 v%d, 0xffff0000, v%d" % (T + 5, X))
        a("v_lshlrev_b32 v%d, 16, v%d" % (T + 6, X + 1)); a("v_and_b32 v%d, 0xffff0000, v%d" % (T + 7, X + 1))
        for r in range(4): a("v_add_f32 v%d, 1.0, v%d" % (T + r, T + r))
        for r in range(4): a("v_rcp_f32 v%d, v%d" % (T + r, T + r))
        for r in range(4): a("v_sub_f32 v%d, v%d, v%d" % (T + 12 + r, T + 4 + r, S_))
        a("v_lshlrev_b32 v%d, 16, v%d" % (T + 8, Y)); a("v_and_b32 v%d, 0xffff0000, v%d" % (T + 9, Y))
        a("v_lshlrev_b32 v%d, 16, v%d" % (T + 10, Y + 1)); a("v_and_b32 v%d, 0xffff0000, v%d" % (T + 11, Y + 1))
        for r in range(4): a("v_mul_f32 v%d, v%d, v%d" % (o + r, o + r, T + r))
        rnd_pair(a, T + 20, T + 12, T + 13); rnd_pair(a, T + 21, T + 14, T + 15)
        rnd_pair(a, T + 22, o, o + 1); rnd_pair(a, T + 23, o + 2, o + 3)
        for r in range(4): a("v_mul_f32 v%d, v%d, v%d" % (T + 12 + r, T + 12 + r, S_ + 1))
        rnd_pair(a, T + 20, T + 12, T + 13); rnd_pair(a, T + 21, T + 14, T + 15)
        for r in range(4): a("v_mul_f32 v%d, v%d, v%d" % (T + 12 + r, T + 12 + r, T + 8 + r))
        rnd_pair(a, T + 20, T + 12, T + 13); rnd_pair(a, T + 21, T + 14, T + 15)
        for r in range(4): a("v_mul_f32 v%d, v%d, v%d" % (T + 12 + r, T + 12 + r, o + r))
        rnd_pair(a, T + 20, T + 12, T + 13); rnd_pair(a, T + 21, T + 14, T + 15)
        for r in range(4): a("v_add_f32 v%d, v%d, v%d" % (T + 12 + r, T + 12 + r, T + 4 + r))
        a("v_cvt_pk_bf16_f32 v%d, v%d, v%d" % (X, T + 12, T + 13))
        a("v_cvt_pk_bf16_f32 v%d, v%d, v%d" % (X + 1, T + 14, T + 15))
        a("buffer_store_dwordx2 %s, v13, s[28:31], s%d offen" % (vr(X, 2), b))
    a.label("%s_done" % name)
    stamp(a, 13)
    G.stamp_rt(a, 1)
    a.label("%s_end" % name)
    a("s_endpgm")
    for ft in range(5):
        a.label("%s_gsub%d" % (name, ft))
        tts = range(4 if ft < 4 else 2)
        emit_fold_gelu(a, [(128 + 4 * tidx(ft, tt), CS + 4 * ft, MR + 2 * tt, ZP + 2 * tidx(ft, tt)) for tt in tts], 72)
        a("s_setpc_b64 s[34:35]")
    return a.text(), kernel_desc(name, 256, 256), (name, 256, 512, 163840)

def gen_kf16(name="k1_kernel", R=4):
    a = Asm()
    RB = 4096; SLOT = 34816; TREG = 16384; FS = 288; RST = 0
    LDSB = RB + R * SLOT
    LC = 2048
    ZFLG = 0x2D00000; PFL = 128
    KVL = 143360; XFLG = 0x2D20000; CFLG = 0x2D30000
    C0 = 77824; CW = 151552; CSL = 36864; YOFF = 151552; CTREG = 16384; CFS = 160
    from gen3 import emit_conv_loads, emit_conv_job, CJ_SIZE
    def capture(f, *args):
        lb = len(a.lines); f(*args); out = a.lines[lb:]; del a.lines[lb:]; return out

    def c_common():
        a("s_load_dwordx2 s[4:5], s[0:1], 0")
        a("s_load_dwordx2 s[16:17], s[0:1], 88")
        a("s_and_b32 s20, s2, 7")
        a("s_lshr_b32 s21, s2, 3")
        a("s_and_b32 s22, s20, 3")
        a("s_lshl_b32 s22, s22, 3")
        a("s_and_b32 s23, s21, 7")
        a("s_add_u32 s22, s22, s23")
        a("s_lshr_b32 s23, s20, 2")
        a("s_lshl_b32 s23, s23, 2")
        a("s_lshr_b32 s24, s21, 3")
        a("s_add_u32 s23, s23, s24")
        a("s_lshr_b32 s52, s23, 1")
        a("s_and_b32 s53, s23, 1")
        a("s_lshl_b32 s54, s98, 2")
        a("s_add_u32 s54, s54, s3")
        a("s_waitcnt lgkmcnt(0)")
        srd(a, 8, 4, 2048 * 576 * 2)
        srd(a, 28, 16, 2048 * 576 * 2)
    XR = 200; ST = 208
    def fin_loads():
        a("v_and_b32 v3, 15, v2")
        a("v_lshrrev_b32 v10, 4, v2")
        a("v_mul_u32_u24 v13, 1152, v3")
        a("v_lshl_add_u32 v13, v10, 3, v13")
        a("v_lshlrev_b32 v12, 3, v3")
        for s_ in range(3):
            if s_ == 2:
                a("s_cmp_ge_u32 s54, 2")
                a("s_cbranch_scc1 %s_fl%d" % (name, fin_loads.cnt))
            b = 64 + 4 * s_
            if s_ < 2:
                a("s_add_u32 s36, s54, %d" % (8 * s_))
                a("s_lshr_b32 s37, s36, 2")
                a("s_and_b32 s38, s36, 3")
                a("s_mul_i32 s39, s53, 160")
                a("s_lshl_b32 s40, s37, 5")
                a("s_add_u32 s39, s39, s40")
            else:
                a("s_add_u32 s36, s54, 16")
                a("s_mov_b32 s37, 4")
                a("s_mov_b32 s38, s54")
                a("s_mov_b32 s39, 128")
            a("s_lshl_b32 s40, s53, 1")
            a("s_add_u32 s38, s38, s40")
            a("s_and_b32 s38, s38, 3")
            a("s_lshl_b32 s40, s22, 2")
            a("s_add_u32 s40, s40, s38")
            a("s_lshl_b32 s40, s40, 4")
            a("s_mul_i32 s%d, s40, 1152" % b)
            a("s_add_u32 s%d, s%d, s39" % (b, b))
            a("s_mul_i32 s39, s52, 288")
            a("s_add_u32 s%d, s%d, s39" % (b, b))
            a("s_lshl_b32 s%d, s37, 11" % (b + 1))
            a("s_lshl_b32 s39, s38, 5")
            a("s_add_u32 s%d, s%d, s39" % (b + 1, b + 1))
            a("s_add_u32 s%d, s%d, %d" % (b + 1, b + 1, YOFF))
            a("s_lshl_b32 s%d, s36, 10" % (b + 2))
            a("s_add_u32 s%d, s%d, %d" % (b + 2, b + 2, C0))
            a("s_lshl_b32 s40, s40, 3")
            a("s_add_u32 s40, s40, 0x%x" % STATS1)
            a("buffer_load_dwordx2 %s, v13, s[8:11], s%d offen" % (vr(XR + 2 * s_, 2), b))
            a("buffer_load_dwordx2 %s, v12, s[12:15], s40 offen sc1" % vr(ST + 2 * s_, 2))
        a.label("%s_fl%d" % (name, fin_loads.cnt))
        fin_loads.cnt += 1
    fin_loads.cnt = 0
    kernel_begin(a, name)
    a("s_load_dwordx2 s[80:81], s[0:1], 0")
    a("s_load_dwordx2 s[4:5], s[0:1], 56")
    a("s_load_dwordx2 s[6:7], s[0:1], 104")
    a("s_load_dwordx2 s[18:19], s[0:1], 96")
    a("s_cmp_ge_u32 s2, 256")
    a("s_cbranch_scc1 %s_end" % name)
    a("v_lshrrev_b32 v1, 6, v0")
    a("v_and_b32 v2, 63, v0")
    a("v_readfirstlane_b32 s3, v1")
    G2.tile_ij(a)
    a("s_lshr_b32 s98, s3, 2")
    a("s_mov_b32 s54x, 0".replace("s54x", "s99"))
    a("s_and_b32 s3, s3, 3")
    a("s_lshr_b32 s24, s3, 1")
    a("s_and_b32 s25, s3, 1")
    a("v_and_b32 v3, 15, v2")
    VT = 204; VF = 208
    def loader_setup():
        a("v_lshrrev_b32 v5, 3, v2")
        a("v_and_b32 v4, 7, v2")
        a("s_lshl_b32 s36, s3, 5")
        a("v_add_u32 v5, s36, v5")
        a("v_lshrrev_b32 v7, 4, v2")
        a("v_xor_b32 v7, v7, v4")
        a("v_mul_u32_u24 v6, 1152, v5")
        a("v_lshl_add_u32 v%d, v7, 4, v6" % VT)
        a("v_xor_b32 v%d, 64, v%d" % (VT + 1, VT))
        a("v_add_u32 v%d, %d, v%d" % (VT + 1, 9216 - 1024, VT + 1))
        a("v_add_u32 v%d, %d, v%d" % (VT + 2, 2 * (9216 - 1024), VT))
        a("v_add_u32 v%d, %d, v%d" % (VT + 3, 2 * (9216 - 1024), VT + 1))
        a("s_lshl_b32 s84, s3, 12")
        a("s_add_u32 s84, s84, %d" % RB)
        a("s_lshl_b32 s85, s3, 9")
        a("s_add_u32 s85, s85, %d" % (RB + TREG + 16384))
    def loader_setup2():
        for n in range(5):
            if n < 4:
                a("s_lshl_b32 s36, s3, 8")
                a("s_add_u32 s36, s36, %d" % (64 * n))
            else:
                a("s_lshl_b32 s36, s3, 5")
                a("s_add_u32 s36, s36, 1024")
            a("v_add_u32 v6, s36, v2")
            a("v_mul_u32_u24 v7, 3641, v6")
            a("v_lshrrev_b32 v7, 16, v7")
            a("v_mul_u32_u24 v8, 18, v7")
            a("v_sub_u32 v8, v6, v8")
            a("v_and_b32 v9, 35, v7")
            a("v_bfe_u32 v6, v7, 2, 2")
            a("v_lshl_add_u32 v9, v6, 3, v9")
            a("v_bfe_u32 v6, v7, 4, 1")
            a("v_lshl_add_u32 v9, v6, 2, v9")
            a("v_mul_u32_u24 v9, 9216, v9")
            a("v_lshl_add_u32 v%d, v8, 4, v9" % (VF + n))
            if 0 < n < 4: a("v_subrev_u32 v%d, %d, v%d" % (VF + n, 1024 * n, VF + n))
    def issueT(g):
        st = g % 9
        a("s_add_u32 s86, s84, %d" % ((g % R) * SLOT))
        a("s_mov_b32 m0, s86")
        a("s_add_u32 s87, s82, %d" % (128 * st))
        for n in range(4):
            a("buffer_load_dwordx4 v%d, s[28:31], s87 offen offset:%d lds" % (VT + n, 1024 * n))
    def issueF(g):
        st = g % 9
        a("s_add_u32 s86, s84, %d" % ((g % R) * SLOT + TREG))
        a("s_mov_b32 m0, s86")
        a("s_add_u32 s87, s83, %d" % (64 * 9216 * st + (4608 if g < 9 else 0)))
        for n in range(4):
            a("buffer_load_dwordx4 v%d, s[8:11], s87 offen offset:%d lds" % (VF + n, 1024 * n))
        a("s_add_u32 s86, s85, %d" % ((g % R) * SLOT))
        a("s_mov_b32 m0, s86")
        a("s_mov_b64 exec, 0xffffffff")
        a("buffer_load_dwordx4 v%d, s[8:11], s87 offen lds" % (VF + 4))
        a("s_mov_b64 exec, -1")
    def srds_main():
        srd(a, 28, 80, 2048 * 576 * 2)
        srd(a, 8, 4, 576 * 4608 * 2)
        srd(a, 12, 6, WS_BYTES)
        srd(a, 60, 18, 256)
        a("s_mul_i32 s82, s22, %d" % (128 * 1152))
        a("s_mul_i32 s83, s23, 288")
    ACC = 128; FB = [16, 52]; CS = 216; ONE = 236
    vTa = [4, 5]; vTb = [6, 7]; vF = 8; vFh = 9
    bTa = [88, 89]; bTb = [90, 91]; bF = 92; bFh = 93
    def mma_setup():
        a("v_lshrrev_b32 v10, 4, v2")
        a("v_lshrrev_b32 v11, 1, v3")
        a("v_xor_b32 v10, v10, v11")
        a("v_lshlrev_b32 v10, 4, v10")
        a("v_lshl_add_u32 v10, v3, 7, v10")
        a("s_lshl_b32 s26, s24, 13")
        a("s_add_u32 s26, s26, %d" % RB)
        a("v_add_u32 v10, s26, v10")
        a("s_lshl_b32 s26, s25, 12")
        a("v_add_u32 v%d, s26, v10" % bTa[0])
        a("s_xor_b32 s26, s26, 4096")
        a("v_add_u32 v%d, s26, v10" % bTb[0])
        a("v_xor_b32 v%d, 64, v%d" % (bTa[1], bTa[0]))
        a("v_xor_b32 v%d, 64, v%d" % (bTb[1], bTb[0]))
        a("v_lshrrev_b32 v10, 2, v2")
        a("v_mul_u32_u24 v10, %d, v10" % FS)
        a("v_and_b32 v11, 3, v2")
        a("v_lshl_add_u32 v10, v11, 3, v10")
        a("v_add_u32 v10, %d, v10" % (RB + TREG))
        a("s_mul_i32 s26, s25, 160")
        a("v_add_u32 v%d, s26, v10" % bF)
        a("v_add_u32 v%d, 128, v10" % bFh)
        for r in range(ACC, ACC + 72): a("v_mov_b32 v%d, 0" % r)
        for r in range(CS, CS + 20): a("v_mov_b32 v%d, 0" % r)
        for r in range(ONE, ONE + 4): a("v_mov_b32 v%d, 0x3f803f80" % r)
    def mma_addr(slot):
        a("s_mov_b32 s27, %d" % (slot * SLOT))
        for d, s_ in ((vTa[0], bTa[0]), (vTb[0], bTb[0]), (vTa[1], bTa[1]), (vTb[1], bTb[1]), (vF, bF), (vFh, bFh)):
            a("v_add_u32 v%d, s27, v%d" % (d, s_))
    core = G.Core(a, ACC, FB[0], FB[1], FS, TREG, vTa, vTb, vF, vFh)
    trk = core.trk
    a("s_cmp_eq_u32 s98, 0")
    a("s_cbranch_scc1 %s_A0" % name)
    a("s_setprio 3")
    loader_setup()
    a("s_waitcnt lgkmcnt(0)")
    srds_main()
    vm = VmTracker(a)
    def issue(g, vmx):
        issueT(g); issueF(g); vmx.issue("S%d" % g, 9)
    issueT(0)
    loader_setup2()
    issueF(0); vm.issue("S0", 9)
    issue(1, vm); issue(2, vm); issue(3, vm)
    a("s_add_u32 s3, s3, 4"); stamp_setup(a, 1); stamp(a, 0); a("s_sub_u32 s3, s3, 4")
    a("s_load_dwordx4 s[64:67], s[0:1], 8")
    a("s_load_dwordx2 s[76:77], s[0:1], 24")
    mma_setup()
    a("s_waitcnt lgkmcnt(0)")
    srd(a, 68, 66, 2048 * 576 * 2)
    a("s_mov_b32 s88, s64"); a("s_mov_b32 s89, s65")
    srd(a, 64, 88, 2048 * 576 * 2)
    srd(a, 72, 76, 576 * 8)
    def kv_dma():
        a("s_lshr_b32 s36, s2, 3")
        a("s_mul_i32 s36, s36, %d" % (64 * 1152))
        a("s_and_b32 s37, s2, 7")
        a("s_mul_i32 s37, s37, 144")
        a("s_add_u32 s36, s36, s37")
        for q in range(5):
            a("s_add_u32 s38, s3, %d" % (4 * q))
            if q == 4: a("s_min_u32 s38, s38, 18")
            isK = (q < 2); isV = (q > 2)
            a("s_sub_u32 s39, s38, 10")
            a("s_cmp_lt_u32 s38, 10")
            a("s_cselect_b32 s39, s38, s39")
            a("s_cselect_b32 s40, %d, 0" % ((-3 * 1152) & 0xffffffff))
            a("s_lshl_b32 s37, s39, 6")
            a("v_add_u32 v240, s37, v2")
            a("v_mul_u32_u24 v241, 7282, v240")
            a("v_lshrrev_b32 v241, 16, v241")
            a("v_mul_u32_u24 v242, 9, v241")
            a("v_sub_u32 v242, v240, v242")
            a("v_mul_u32_u24 v241, 1152, v241")
            a("v_lshl_add_u32 v241, v242, 4, v241")
            a("s_add_u32 s40, s40, s36")
            a("v_add_u32 v241, s40, v241")
            a("s_lshl_b32 s37, s38, 10")
            a("s_add_u32 s37, s37, %d" % KVL)
            a("s_mov_b32 m0, s37")
            if isK:
                a("s_nop 0")
                a("buffer_load_dwordx4 v241, s[64:67], 0 offen lds")
            elif isV:
                a("s_nop 0")
                a("buffer_load_dwordx4 v241, s[68:71], 0 offen lds")
            else:
                a("s_cmp_lt_u32 s38, 10")
                a("s_cbranch_scc1 %s_kd1" % name)
                a("buffer_load_dwordx4 v241, s[68:71], 0 offen lds")
                a("s_branch %s_kd2" % name)
                a.label("%s_kd1" % name)
                a("buffer_load_dwordx4 v241, s[64:67], 0 offen lds")
                a.label("%s_kd2" % name)
    RA = 96; XB = 112
    for r in range(RA, RA + 16): a("v_mov_b32 v%d, 0" % r)
    a("v_lshrrev_b32 v10, 4, v2")
    a("v_lshrrev_b32 v11, 1, v3")
    a("v_xor_b32 v10, v10, v11")
    a("v_lshlrev_b32 v10, 4, v10")
    a("v_lshl_add_u32 v10, v3, 7, v10")
    a("v_add_u32 v12, s84, v10")
    a("v_xor_b32 v13, 64, v12")
    def rs_rd(g):
        a("v_add_u32 v10, %d, v12" % ((g % R) * SLOT))
        a("v_add_u32 v11, %d, v13" % ((g % R) * SLOT))
        for h in range(2):
            for n in range(2):
                a("ds_read_b128 %s, v%d offset:%d" % (vr(XB + 8 * h + 4 * n), 10 + h, 2048 * n))
    def rs_do():
        for h in range(2):
            for n in range(2):
                x = XB + 8 * h + 4 * n
                a("v_mfma_f32_16x16x32_bf16 %s, %s, %s, %s" % (vr(RA + 4 * n), vr(ONE), vr(x), vr(RA + 4 * n)))
                a("v_mfma_f32_16x16x32_bf16 %s, %s, %s, %s" % (vr(RA + 8 + 4 * n), vr(x), vr(x), vr(RA + 8 + 4 * n)))
    def interleave(dma, comp, vmx=None):
        groups = []; cur = []
        for l in dma:
            cur.append(l)
            if "buffer_load" in l and not any("exec, 0xffffffff" in x for x in cur[-2:]):
                groups.append(cur); cur = []
            elif "exec, -1" in l:
                groups.append(cur); cur = []
        if cur: groups.append(cur)
        ns = max(1, len(groups))
        per = (len(comp) + ns - 1) // ns
        for g in groups:
            a.lines.extend(g)
            a.lines.extend(comp[:per]); comp = comp[per:]
        a.lines.extend(comp)
    vm.wait(["S0"])
    a("s_barrier")
    stamp(a, 1)
    rs_rd(0)
    vm.wait(["S1"])
    a("s_barrier")
    for k in range(9):
        a("s_waitcnt lgkmcnt(0)")
        dma = capture(lambda: (issueT(k + 3), issueF(k + 3))) if k >= 1 else []
        interleave(dma, capture(rs_do))
        if k >= 1: vm.issue("S%d" % (k + 3), 9)
        if k == 3:
            kv_dma(); vm.issue("KV", 5)
        if k < 8:
            rs_rd(k + 1)
        else:
            a("s_nop 7")
            a("v_lshrrev_b32 v10, 4, v2")
            a("v_lshrrev_b32 v11, 2, v3")
            a("v_and_b32 v12, 3, v3")
            for n in range(2):
                G_ = RA + 8 + 4 * n
                for r in range(1, 4):
                    a("v_cmp_eq_u32 vcc, %d, v12" % r)
                    a("s_nop 1")
                    a("v_cndmask_b32 v%d, v%d, v%d, vcc" % (G_, G_, G_ + r))
            ML = 112
            for n in range(2):
                emit_ln_finish(a, RA + 4 * n, RA + 8 + 4 * n, 576, ML + 2 * n, ML + 2 * n + 1, 120)
                a("v_mov_b32 v%d, v%d" % (117 + 2 * n, ML + 2 * n + 1))
                a("v_sub_f32 v%d, 0, v%d" % (116 + 2 * n, ML + 2 * n))
            a("s_lshl_b32 s35, s3, 8")
            a("v_lshlrev_b32 v13, 3, v3")
            a("v_add_u32 v12, s35, v13")
            a("v_cmp_eq_u32 vcc, v10, v11")
            a("s_and_saveexec_b64 s[36:37], vcc")
            for n in range(2):
                a("ds_write_b64 v12, %s offset:%d" % (vr(116 + 2 * n, 2), RST + 128 * n))
            a("s_mov_b64 exec, s[36:37]")
            a("s_cmp_lg_u32 s23, 0")
            a("s_cbranch_scc1 %s_nost1" % name)
            a("s_lshl_b32 s35, s22, 7")
            a("s_lshl_b32 s36, s3, 5")
            a("s_add_u32 s35, s35, s36")
            a("s_lshl_b32 s35, s35, 3")
            a("s_add_u32 s35, s35, 0x%x" % STATS1)
            a("v_mov_b32 v11, 0x7ffffff0")
            a("v_cndmask_b32 v13, v11, v13, vcc")
            for n in range(2):
                a("buffer_store_dwordx2 %s, v13, s[12:15], s35 offen offset:%d sc1" % (vr(ML + 2 * n, 2), 128 * n))
            a.label("%s_nost1" % name)
            a("v_and_b32 v0, 255, v0")
            a("v_lshrrev_b32 v1, 3, v0")
            a("v_and_b32 v10, 7, v0")
            a("s_lshr_b32 s38, s2, 3")
            a("s_lshl_b32 s38, s38, 6")
            a("v_lshl_add_u32 v252, v10, 3, s38")
            a("s_and_b32 s39, s2, 7")
            a("s_mul_i32 s39, s39, 144")
            a("v_lshl_add_u32 v253, v1, 2, s39")
            a("v_lshlrev_b32 v11, 2, v253")
            a("buffer_load_dwordx4 v[248:251], v11, s[72:75], 0 offen")
            a("buffer_load_dwordx4 v[244:247], v11, s[72:75], 0 offen offset:512")
            a("v_mul_u32_u24 v254, 1152, v10")
            a("v_lshl_add_u32 v254, v1, 2, v254")
            a("v_add_u32 v254, %d, v254" % KVL)
            a("s_mov_b32 s41, 0")
            mma_addr(9 % R)
            a("s_mov_b32 s33, 0")
            a("s_setprio 0")
        vm.wait(["S%d" % (k + 2)], "lgkmcnt(0)" if k == 8 else "")
        if k < 8: a("s_barrier")
    a("s_branch %s_mma" % name)
    a.label("%s_A0" % name)
    emit_code_prefetch(a, name)
    a("s_load_dwordx4 s[64:67], s[0:1], 8")
    a("s_load_dwordx2 s[76:77], s[0:1], 24")
    a("s_load_dwordx2 s[78:79], s[0:1], 64")
    mma_setup()
    loader_setup(); loader_setup2()
    a("s_waitcnt lgkmcnt(0)")
    srds_main()
    srd(a, 68, 66, 2048 * 576 * 2)
    a("s_mov_b32 s88, s64"); a("s_mov_b32 s89, s65")
    srd(a, 64, 88, 2048 * 576 * 2)
    srd(a, 72, 76, 576 * 8)
    stamp_setup(a, 1); stamp(a, 0)
    def gran_addr():
        a("v_lshrrev_b32 v10, 4, v2")
        a("s_lshl_b32 s36, s25, 1")
        a("v_add_u32 v11, s36, v10")
        a("v_and_b32 v11, 3, v11")
        a("v_lshl_add_u32 v11, v11, 4, v3")
        a("v_lshlrev_b32 v94, 3, v11")
        a("s_lshl_b32 s59, s22, 15")
        a("s_lshl_b32 s36, s24, 9")
        a("s_add_u32 s59, s59, s36")
        a("s_add_u32 s59, s59, 0x%x" % STATS2)
        a("s_lshl_b32 s36, s23, 1")
        a("s_add_u32 s36, s36, s25")
        a("s_lshl_b32 s36, s36, 10")
        a("s_add_u32 s58, s36, s59")
    gran_addr()
    a("v_mov_b32 v12, 0"); a("v_mov_b32 v13, 0x80000000")
    a("buffer_store_dwordx2 v[12:13], v94, s[12:15], s58 offen sc1")
    a("s_lshl_b32 s36, s22, 4")
    a("s_add_u32 s36, s36, s23")
    a("s_lshl_b32 s36, s36, 8")
    a("s_add_u32 s97, s36, 0x%x" % ZFLG)
    a("v_mov_b32 v10, %d" % LC)
    a("v_mov_b32 v12, 0"); a("v_mov_b32 v13, 0")
    a("s_mov_b64 exec, 1")
    a("buffer_store_dword v12, v12, s[12:15], s97 offen sc1")
    a("buffer_store_dword v12, v12, s[12:15], s97 offen offset:%d sc1" % PFL)
    a("s_lshl_b32 s36, s2, 7")
    a("s_add_u32 s37, s36, 0x%x" % XFLG)
    a("s_add_u32 s36, s36, 0x%x" % CFLG)
    a("buffer_store_dword v12, v12, s[12:15], s37 offen sc1")
    a("buffer_store_dword v12, v12, s[12:15], s36 offen sc1")
    a("s_mov_b64 exec, -1")
    a("ds_write_b64 v10, v[12:13]")
    a("ds_write_b64 v10, v[12:13] offset:8")
    a("ds_write_b64 v10, v[12:13] offset:16")
    a("ds_write_b64 v10, v[12:13] offset:24")
    mma_addr(0)
    a("s_mov_b32 s33, 0")
    a("s_waitcnt lgkmcnt(0)")
    a("s_barrier")
    stamp(a, 1)
    a.label("%s_mma" % name)
    core.prime(0, core.reads(0, 0))
    trk.drain()
    nocs = [False]
    def mfmas(buf):
        L = []
        for ft in range(5):
            A = core.F(buf, ft)
            for tt in range(4 if ft < 4 else 2):
                c = core.accr(ft, tt); B = core.T(buf, tt)
                L.append(("v_mfma_f32_16x16x32_bf16 %s, %s, %s, %s" % (vr(c), vr(A), vr(B), vr(c)), list(range(A, A + 4)) + list(range(B, B + 4))))
            if not nocs[0]: L.append(("v_mfma_f32_16x16x32_bf16 %s, %s, %s, %s" % (vr(CS + 4 * ft), vr(A), vr(ONE), vr(CS + 4 * ft)), list(range(A, A + 4))))
        return L
    def phase(buf, pend):
        for (m, regs) in mfmas(buf):
            trk.need(regs)
            a(m)
            while pend:
                k, t = pend.pop(0)
                if k == "x":
                    a(t)
                    if t.startswith("s_"): continue
                else:
                    a(t[0]); trk.issue(t[1])
                break
        for k, t in pend:
            if k == "x": a(t)
            else: a(t[0]); trk.issue(t[1])
    def iteration(vw=True):
        if vw: a("s_waitcnt vmcnt(0)")
        a("s_barrier")
        rd = [("r", t) for t in core.reads(1, 1)]
        upd = ["s_add_u32 s27, s27, %d" % SLOT, "s_cmp_eq_u32 s27, %d" % (R * SLOT), "s_cselect_b32 s27, 0, s27"]
        tail = ["v_add_u32 v%d, s27, v%d" % (d, s_) for d, s_ in ((vTa[0], bTa[0]), (vF, bF), (vTb[0], bTb[0]), (vFh, bFh))]
        phase(0, rd[:1] + [("x", u) for u in upd] + rd[1:] + [("x", u) for u in tail])
        rd = [("r", t) for t in core.reads(0, 0)]
        tail = ["v_add_u32 v%d, s27, v%d" % (d, s_) for d, s_ in ((vTa[1], bTa[1]), (vTb[1], bTb[1]))] + ["s_add_u32 s33, s33, 1"]
        phase(1, rd + [("x", u) for u in tail])
    a.label("%s_cloop" % name)
    lb = len(a.lines); iteration(); st = copy.deepcopy(trk.out); del a.lines[lb:]; trk.out = copy.deepcopy(st)
    iteration()
    assert [sorted(x) for x in trk.out] == [sorted(x) for x in st]
    a("s_cmp_lt_u32 s33, 9")
    a("s_cbranch_scc1 %s_cloop" % name)
    trk.drain()
    stamp(a, 2)
    MR = 100; T = 72; ZP = 16
    def epi_in():
        gelu_consts(a)
        a("s_lshl_b32 s36, s24, 9")
        a("s_lshl_b32 s37, s25, 8")
        a("s_add_u32 s38, s36, s37")
        a("s_xor_b32 s37, s37, 256")
        a("s_add_u32 s39, s36, s37")
        a("v_lshlrev_b32 v10, 3, v3")
        a("v_add_u32 v11, s38, v10")
        a("ds_read_b64 %s, v11 offset:%d" % (vr(MR, 2), RST))
        a("ds_read_b64 %s, v11 offset:%d" % (vr(MR + 2, 2), RST + 128))
        a("v_add_u32 v11, s39, v10")
        a("ds_read_b64 %s, v11 offset:%d" % (vr(MR + 4, 2), RST))
        a("ds_read_b64 %s, v11 offset:%d" % (vr(MR + 6, 2), RST + 128))
        a("s_waitcnt lgkmcnt(0)")
    S = [108, 110, 52, 54]; Q = [109, 111, 53, 55]
    def gelu_ft(ft, stats):
        tts = range(4 if ft < 4 else 2)
        a("s_call_b64 s[34:35], %s_gsub%d" % (name, ft))
        if stats:
            for d in range(2):
                for tt in tts:
                    p = ZP + 2 * tidx(ft, tt) + d
                    a("v_dot2_f32_bf16 v%d, v%d, v%d, v%d" % (S[tt], p, ONE, S[tt]))
                    a("v_dot2_f32_bf16 v%d, v%d, v%d, v%d" % (Q[tt], p, p, Q[tt]))
    a("s_cmp_eq_u32 s98, 0")
    a("s_cbranch_scc1 %s_A1" % name)
    a("s_barrier")
    a("s_load_dwordx2 s[94:95], s[0:1], 80")
    a("s_load_dwordx2 s[92:93], s[0:1], 72")
    epi_in()
    srd(a, 76, 94, 2304 * 576 * 2)
    srd(a, 28, 92, 2048 * 2)
    for ft in range(5): gelu_ft(ft, False)
    Z1R = 200; BI = 236
    for r_ in range(36): a("v_mov_b32 v%d, v%d" % (Z1R + r_, ZP + r_))
    stamp(a, 3)
    a("s_waitcnt vmcnt(0)")
    for r_ in range(6): a("v_mov_b32 v%d, v%d" % (128 + r_, 88 + r_))
    a.label("%s_kvb" % name)
    for n in range(11): a("ds_read_b32 v%d, v254 offset:%d" % (16 + n, 144 * n))
    a("s_waitcnt lgkmcnt(4)")
    for n in range(8): a("ds_read_b32 v%d, v254 offset:%d" % (32 + n, 10240 + 144 * n))
    for n in range(4): a("v_mov_b32 v%d, v%d" % (44 + n, 248 + n))
    a("v_mov_b32 v56, v252"); a("v_mov_b32 v57, v253")
    a("s_waitcnt lgkmcnt(0)")
    emit_kv_compute(a, wait=False, store=False)
    a("s_mov_b32 s39, 0x%x" % KVT)
    a("buffer_store_dwordx4 v[120:123], v12, s[12:15], s39 offen sc1")
    a("buffer_store_dwordx4 v[124:127], v13, s[12:15], s39 offen sc1")
    a("s_cmp_lg_u32 s41, 0")
    a("s_cbranch_scc1 %s_kvbx" % name)
    a("s_cmp_lg_u32 s3, 0")
    a("s_cbranch_scc1 %s_kvbx" % name)
    a("s_mov_b32 s41, 1")
    for n in range(4): a("v_mov_b32 v%d, v%d" % (248 + n, 244 + n))
    a("v_add_u32 v253, 128, v253")
    a("v_add_u32 v254, 128, v254")
    a("s_mov_b64 exec, 0xffffffff")
    a("s_branch %s_kvb" % name)
    a.label("%s_kvbx" % name)
    a("s_mov_b64 exec, -1")
    for r_ in range(6): a("v_mov_b32 v%d, v%d" % (240 + r_, 128 + r_))
    a.label("%s_kvbd" % name)
    for r_ in range(6): a("v_mov_b32 v%d, v%d" % (88 + r_, 240 + r_))
    a("s_mov_b32 s42, s2")
    emit_wot_loads(a, 100, 112, 720, 3)
    a("s_lshl_b32 s36, s22, 7")
    a("s_lshl_b32 s37, s24, 6")
    a("s_add_u32 s36, s36, s37")
    a("v_lshlrev_b32 v11, 1, v3")
    a("s_lshl_b32 s37, s25, 6")
    a("s_lshl_b32 s38, s36, 1")
    a("s_add_u32 s39, s38, s37")
    a("s_xor_b32 s37, s37, 64")
    a("s_add_u32 s36, s38, s37")
    a("buffer_load_ushort v96, v11, s[28:31], s39 offen")
    a("buffer_load_ushort v97, v11, s[28:31], s39 offen offset:32")
    a("buffer_load_ushort v98, v11, s[28:31], s36 offen")
    a("buffer_load_ushort v99, v11, s[28:31], s36 offen offset:32")
    for r in range(ACC, ACC + 72): a("v_mov_b32 v%d, 0" % r)
    a("v_lshrrev_b32 v10, 2, v2")
    a("v_lshlrev_b32 v10, 5, v10")
    a("v_and_b32 v11, 3, v2")
    a("v_lshl_add_u32 v10, v11, 3, v10")
    a("v_add_u32 v10, %d, v10" % (RB + TREG))
    a("s_mul_i32 s26, s25, 10240")
    a("v_add_u32 v%d, s26, v10" % bF)
    a("v_add_u32 v%d, 8192, v10" % bFh)
    core.FS = 32; core.FT = 2048
    mma_addr(0)
    a("s_mov_b32 s33, 0")
    stamp(a, 4)
    a("s_barrier")
    stamp(a, 5)
    core.prime(0, core.reads(0, 0))
    trk.drain()
    nocs[0] = True
    a.label("%s_gloop" % name)
    lb = len(a.lines); iteration(False); st = copy.deepcopy(trk.out); del a.lines[lb:]; trk.out = copy.deepcopy(st)
    iteration(False)
    assert [sorted(x) for x in trk.out] == [sorted(x) for x in st]
    a("s_cmp_lg_u32 s33, 3")
    a("s_cbranch_scc1 %s_ghk0" % name)
    a("s_waitcnt vmcnt(0)")
    for n in range(3):
        a("buffer_store_dwordx4 %s, v%d, s[12:15], s40 offen sc1" % (vr(100 + 4 * n), 112 + n))
    for tt in range(4): a("v_lshlrev_b32 v%d, 16, v%d" % (BI + 2 * tt, 96 + tt))
    a.label("%s_ghk0" % name)
    a("s_cmp_lg_u32 s33, 6")
    a("s_cbranch_scc1 %s_ghk" % name)
    a("s_waitcnt vmcnt(0)")
    a("v_mov_b32 v10, %d" % (LC + 8))
    a("v_mov_b32 v11, 1")
    a("s_mov_b64 exec, 1")
    a("ds_add_rtn_u32 v12, v10, v11")
    a("s_waitcnt lgkmcnt(0)")
    a("v_readfirstlane_b32 s36, v12")
    a("s_cmp_lg_u32 s36, 3")
    a("s_cbranch_scc1 %s_nokvs" % name)
    a("s_lshl_b32 s36, s2, 7")
    a("s_add_u32 s36, s36, 0x%x" % XFLG)
    a("v_mov_b32 v10, 0")
    a("buffer_store_dword v11, v10, s[12:15], s36 offen sc1")
    a.label("%s_nokvs" % name)
    a("s_mov_b64 exec, -1")
    a.label("%s_ghk" % name)
    a("s_cmp_lt_u32 s33, 32")
    a("s_cbranch_scc1 %s_gloop" % name)
    trk.drain()
    stamp(a, 6)
    G3.emit_k2_epilogue2(a, core, Z1R, BI, " sc1")
    stamp(a, 7)
    a("s_setprio 3")
    a("s_lshl_b32 s36, s22, 4")
    a("s_add_u32 s36, s36, s23")
    a("s_lshl_b32 s36, s36, 8")
    a("s_add_u32 s97, s36, 0x%x" % (ZFLG + PFL))
    c_common()
    a("v_lshlrev_b32 v14, 4, v2")
    a("s_mul_i32 s26, s22, %d" % (36 * 8192))
    a("s_lshl_b32 s24, s3, 12")
    a("s_add_u32 s26, s26, s24")
    a("s_add_u32 s26, s26, 0x%x" % PIMG)
    a("s_mul_i32 s27, s23, %d" % (18 * 20480))
    a("s_mul_i32 s25, s3, 5120")
    a("s_add_u32 s27, s27, s25")
    a("s_add_u32 s27, s27, 0x%x" % WOT)
    a("s_add_u32 s25, s25, %d" % CTREG)
    a("v_and_b32 v28, 15, v2")
    a("v_lshlrev_b32 v30, 7, v2")
    a("v_mov_b32 v26, %d" % LC)
    a("v_mov_b32 v27, 1")
    a("s_waitcnt vmcnt(0)")
    a("s_mov_b64 exec, 1")
    a("ds_add_rtn_u32 v29, v26, v27 offset:16")
    a("s_waitcnt lgkmcnt(0)")
    a("v_readfirstlane_b32 s36, v29")
    a("s_cmp_lg_u32 s36, 3")
    a("s_cbranch_scc1 %s_nops" % name)
    a("v_mov_b32 v29, 0")
    a("buffer_store_dword v27, v29, s[12:15], s97 offen sc1")
    a.label("%s_nops" % name)
    a("s_mov_b64 exec, -1")
    a("s_mov_b32 s34, 0")
    a.label("%s_cw" % name)
    a("ds_read_b32 v29, v26 offset:16")
    a("s_add_u32 s34, s34, 1")
    a("s_waitcnt lgkmcnt(0)")
    a("v_readfirstlane_b32 s36, v29")
    a("s_cmp_gt_u32 s34, %d" % (SPIN_MAX * 20))
    a("s_cbranch_scc1 %s_cwx" % name)
    a("s_cmp_ge_u32 s36, 4")
    a("s_cbranch_scc1 %s_cwx" % name)
    a("s_sleep 1")
    a("s_branch %s_cw" % name)
    a.label("%s_cwx" % name)
    def cF(off, soff):
        a("s_add_u32 s36, s25, %s" % off)
        a("s_mov_b32 m0, s36")
        a("s_add_u32 s37, %s, 4096" % soff)
        for n in range(4):
            a("buffer_load_dwordx4 v14, s[12:15], %s offen offset:%d sc1 lds" % (soff, n * 1024))
        a("s_add_u32 s36, s36, 4096")
        a("s_mov_b32 m0, s36")
        a("s_nop 0")
        a("buffer_load_dwordx4 v14, s[12:15], s37 offen sc1 lds")
    def cT(off, soff):
        a("s_add_u32 s35, s24, %s" % off)
        a("s_mov_b32 m0, s35")
        a("s_nop 0")
        for n in range(4):
            a("buffer_load_dwordx4 v14, s[12:15], %s offen offset:%d sc1 lds" % (soff, n * 1024))
    a("s_add_u32 s38, s27, 20480")
    cF(str(C0), "s27"); cF(str(C0 + CSL), "s38")
    a("s_mov_b32 s34, 0")
    a("s_cmp_lg_u32 s3, 0")
    a("s_cbranch_scc1 %s_cpl" % name)
    a("v_lshlrev_b32 v28, 8, v28")
    a("s_lshr_b32 s39, s22, 1")
    a("s_lshl_b32 s39, s39, 12")
    a("s_add_u32 s39, s39, 0x%x" % (ZFLG + PFL))
    a.label("%s_cpz" % name)
    a("buffer_load_dword v29, v28, s[12:15], s39 offen sc1")
    a("s_add_u32 s34, s34, 1")
    a("s_waitcnt vmcnt(0)")
    a("v_cmp_ne_u32 vcc, 1, v29")
    a("s_cmp_gt_u32 s34, %d" % SPIN_MAX)
    a("s_cbranch_scc1 %s_cpzx" % name)
    a("s_cbranch_vccz %s_cpzx" % name)
    a("s_sleep 8")
    a("s_branch %s_cpz" % name)
    a.label("%s_cpzx" % name)
    a("ds_write_b32 v26, v27 offset:24")
    a("s_branch %s_cgo" % name)
    a.label("%s_cpl" % name)
    a("ds_read_b32 v29, v26 offset:24")
    a("s_add_u32 s34, s34, 1")
    a("s_waitcnt lgkmcnt(0)")
    a("v_readfirstlane_b32 s36, v29")
    a("s_cmp_gt_u32 s34, %d" % (SPIN_MAX * 20))
    a("s_cbranch_scc1 %s_cgo" % name)
    a("s_cmp_lg_u32 s36, 0")
    a("s_cbranch_scc1 %s_cgo" % name)
    a("s_sleep 2")
    a("s_branch %s_cpl" % name)
    a.label("%s_cgo" % name)
    stamp(a, 8)
    a("s_add_u32 s38, s26, 16384")
    cT(str(C0), "s26"); cT(str(C0 + CSL), "s38")
    a("s_add_u32 s26, s26, 32768")
    a("s_add_u32 s27, s27, 40960")
    a("s_mov_b32 s33, %d" % RB)
    def cissue():
        cT("s33", "s26"); cF("s33", "s27")
        a("s_add_u32 s26, s26, 16384")
        a("s_add_u32 s27, s27, 20480")
        a("s_add_u32 s33, s33, %d" % CSL)
        a("s_cmp_eq_u32 s33, %d" % CW)
        a("s_cselect_b32 s33, %d, s33" % RB)
    a("s_waitcnt vmcnt(4)")
    a("s_barrier")
    cissue(); cissue()
    a("s_waitcnt vmcnt(18)")
    a("s_barrier")
    a("s_mov_b32 s34, 0")
    a.label("%s_clloop" % name)
    cissue()
    a("s_lshl_b32 s38, s3, 8")
    a("s_add_u32 s38, s38, s34")
    a("s_cmp_eq_u32 s38, 13")
    a("s_cbranch_scc1 %s_cyc" % name)
    a("s_cmp_lg_u32 s38, 10")
    a("s_cbranch_scc1 %s_cl1" % name)
    a("s_mov_b32 s38, 0x%x" % (CFLG + 0))
    a("buffer_load_dword v32, v30, s[12:15], s38 offen sc1")
    a("s_mov_b32 s38, 0x%x" % (CFLG + 8192))
    a("buffer_load_dword v33, v30, s[12:15], s38 offen sc1")
    a("s_mov_b32 s38, 0x%x" % (CFLG + 16384))
    a("buffer_load_dword v34, v30, s[12:15], s38 offen sc1")
    a("s_mov_b32 s38, 0x%x" % (CFLG + 24576))
    a("buffer_load_dword v35, v30, s[12:15], s38 offen sc1")
    a("s_waitcnt vmcnt(22)")
    a("s_branch %s_cl2" % name)
    a.label("%s_cl1" % name)
    a("s_waitcnt vmcnt(18)")
    a.label("%s_cl2" % name)
    a("s_barrier")
    a("s_add_u32 s34, s34, 1")
    a("s_cmp_lt_u32 s34, 14")
    a("s_cbranch_scc1 %s_clloop" % name)
    a("s_branch %s_cyx" % name)
    a.label("%s_cyc" % name)
    a("s_mov_b32 s39, 0")
    a.label("%s_cy" % name)
    a("v_and_b32 v32, v32, v33")
    a("v_and_b32 v34, v34, v35")
    a("v_and_b32 v32, v32, v34")
    a("v_cmp_eq_u32 vcc, 1, v32")
    a("s_nop 1")
    a("v_cndmask_b32 v32, 0, 16, vcc")
    a("v_cmp_gt_u32 vcc, 16, v32")
    a("s_add_u32 s39, s39, 1")
    a("s_cmp_gt_u32 s39, %d" % SPIN_MAX)
    a("s_cbranch_scc1 %s_cl1" % name)
    a("s_cbranch_vccz %s_cl1" % name)
    a("s_sleep 32")
    a("s_mov_b32 s38, 0x%x" % (CFLG + 0))
    a("buffer_load_dword v32, v30, s[12:15], s38 offen sc1")
    a("s_mov_b32 s38, 0x%x" % (CFLG + 8192))
    a("buffer_load_dword v33, v30, s[12:15], s38 offen sc1")
    a("s_mov_b32 s38, 0x%x" % (CFLG + 16384))
    a("buffer_load_dword v34, v30, s[12:15], s38 offen sc1")
    a("s_mov_b32 s38, 0x%x" % (CFLG + 24576))
    a("buffer_load_dword v35, v30, s[12:15], s38 offen sc1")
    a("s_waitcnt vmcnt(0)")
    a("s_branch %s_cy" % name)
    a.label("%s_cyx" % name)
    a("v_lshrrev_b32 v3, 3, v2")
    a("v_and_b32 v4, 7, v2")
    a("v_lshlrev_b32 v4, 4, v4")
    a("s_mul_i32 s33, s52, 144")
    a("s_mul_i32 s34, s53, 80")
    a("s_lshl_b32 s35, s22, 7")
    a("s_add_u32 s35, s35, 0x%x" % YT)
    for n in range(3):
        a("s_add_u32 s36, s3, %d" % (4 * n))
        if n == 2: a("s_min_u32 s36, s36, 9")
        a("s_lshl_b32 s37, s36, 3")
        a("s_add_u32 s38, s37, s33")
        if n < 2: a("s_add_u32 s38, s38, s34")
        a("v_add_u32 v5, s38, v3")
        a("v_lshl_add_u32 v5, v5, 12, v4")
        a("s_lshl_b32 s36, s36, 10")
        a("s_add_u32 s36, s36, %d" % YOFF)
        a("s_mov_b32 m0, s36")
        a("s_nop 0")
        a("buffer_load_dwordx4 v5, s[12:15], s35 offen sc1 lds")
    fin_loads()
    a("s_waitcnt vmcnt(%d)" % (9 + 7))
    a("s_barrier")
    a("s_waitcnt vmcnt(7)")
    a("s_barrier")
    a("s_barrier")
    a("s_setprio 0")
    a("s_waitcnt vmcnt(0)")
    a("s_branch %s_cfin" % name)
    a.label("%s_A1" % name)
    a("s_setprio 2")
    vmA = VmTracker(a)
    PB = 132
    def aux_head():
        epi_in()
        for tt in range(4):
            a("v_mov_b32 v%d, 0" % S[tt]); a("v_mov_b32 v%d, 0" % Q[tt])
    def aux_pub():
        a("s_nop 2")
        emit_xg_reduce(a, S + Q, 72)
        a("v_lshrrev_b32 v10, 4, v2")
        for g in range(1, 4):
            a("v_cmp_eq_u32 vcc, %d, v10" % g)
            a("s_nop 1")
            a("v_cndmask_b32 v%d, v%d, v%d, vcc" % (S[0], S[0], S[g]))
            a("v_cndmask_b32 v%d, v%d, v%d, vcc" % (Q[0], Q[0], Q[g]))
        a("v_and_b32 v%d, 0x7fffffff, v%d" % (Q[0], Q[0]))
        a("buffer_store_dwordx2 v[%d:%d], v94, s[12:15], s58 offen sc1" % (S[0], Q[0]))
    chunks = [capture(aux_head) + capture(gelu_ft, 0, True), capture(gelu_ft, 1, True), capture(gelu_ft, 2, True),
              capture(gelu_ft, 3, True), capture(gelu_ft, 4, True) + capture(aux_pub)]
    KD = 172
    for k in range(9, 18):
        a("s_barrier")
        if k == 9:
            a("s_cmp_lg_u32 s3, 0")
            a("s_cbranch_scc1 %s_nosig" % name)
            a("v_mov_b32 v10, 1")
            a("s_lshl_b32 s36, s22, 2")
            a("v_mov_b32 v11, s36")
            a("s_mov_b64 exec, 1")
            a("buffer_atomic_add v10, v11, s[60:63], 0 offen sc1")
            a("s_mov_b64 exec, -1")
            a.label("%s_nosig" % name)
        g = k + 3
        dma = capture(lambda: (issueT(g), issueF(g))) if g < 18 else []
        comp = chunks[k - 9] if k - 9 < len(chunks) else []
        a.lines.extend(dma); a.lines.extend(comp)
        if k == 13: vmA.issue("pub", 1)
        if g < 18: vmA.issue("S%d" % g, 9)
        if k == 14:
            srd(a, 92, 78, 2048 * 2048 * 2)
            a("v_lshrrev_b32 v10, 4, v2")
            a("v_lshlrev_b32 v10, 12, v10")
            a("v_lshl_add_u32 v10, v3, 4, v10")
            a("s_lshl_b32 s40, s22, 7")
            a("s_lshl_b32 s36, s3, 5")
            a("s_add_u32 s40, s40, s36")
            a("s_lshl_b32 s40, s40, 12")
            a("s_lshl_b32 s36, s23, 8")
            a("s_add_u32 s40, s40, s36")
            for n in range(8):
                a("buffer_load_dwordx4 v[200:203], v10, s[92:95], s40 offen")
                if n < 7: a("s_add_u32 s40, s40, 16384")
            vmA.issue("wp", 8)
            a("s_lshl_b32 s36, s22, 2")
            a("v_mov_b32 v199, s36")
            a("buffer_load_dword v198, v199, s[60:63], 0 offen sc1"); vmA.issue("cnt", 1)
        if k + 2 < 18 and k + 2 >= 12:
            vmA.wait(["S%d" % (k + 2)])
    a("s_barrier")
    stamp(a, 3)
    a("s_load_dwordx4 s[88:91], s[0:1], 32")
    Z2 = ZP
    a("v_and_b32 v4, 31, v2")
    a("v_lshlrev_b32 v4, 4, v4")
    a("v_lshrrev_b32 v10, 5, v2")
    a("v_lshl_add_u32 v4, v10, 10, v4")
    for q in range(8): a("s_add_u32 s%d, s59, %d" % ((52, 53, 42, 43, 40, 41, 38, 39)[q], 4096 * q))
    GB = 128
    def gather():
        for q in range(16):
            a("buffer_load_dwordx4 %s, v4, s[12:15], s%d offen offset:%d sc1" % (vr(GB + 4 * q), (52, 53, 42, 43, 40, 41, 38, 39)[q >> 1], 2048 * (q & 1)))
    a("s_waitcnt vmcnt(0)")
    gather()
    a("s_mov_b32 s33, 0")
    a("s_waitcnt vmcnt(0)")
    a.label("%s_chk" % name)
    a("v_subrev_u32 v11, 16, v198")
    for q in range(16):
        a("v_or3_b32 v11, v11, v%d, v%d" % (GB + 4 * q + 1, GB + 4 * q + 3))
    a("v_cmp_gt_i32 vcc, 0, v11")
    a("s_add_u32 s33, s33, 1")
    a("s_cmp_gt_u32 s33, %d" % SPIN_MAX)
    a("s_cbranch_scc1 %s_ok" % name)
    a("s_cbranch_vccz %s_ok" % name)
    a("s_sleep 32")
    a("buffer_load_dword v198, v199, s[60:63], 0 offen sc1")
    a("s_waitcnt vmcnt(0)")
    gather()
    a("s_waitcnt vmcnt(0)")
    a("s_branch %s_chk" % name)
    a.label("%s_ok" % name)
    stamp(a, 5)
    for st_ in (32, 16, 8, 4):
        for q in range(0, st_, 2):
            a("v_pk_add_f32 %s, %s, %s" % (vr(GB + q, 2), vr(GB + q, 2), vr(GB + q + st_, 2)))
    for e in range(4): a("v_mov_b32 v%d, v%d" % (72 + e, GB + e))
    a("s_nop 1")
    for e in range(4): a("v_permlane32_swap_b32 v%d, v%d" % (GB + e, 72 + e))
    a("s_nop 1")
    for e in range(4): a("v_add_f32 v%d, v%d, v%d" % (GB + e, GB + e, 72 + e))
    for h in range(2):
        emit_ln_finish(a, GB + 2 * h, GB + 2 * h + 1, 2304, GB + 8 + h, GB + 4 + 2 * h, GB + 12)
        a("v_mul_f32 v%d, -v%d, v%d" % (GB + 5 + 2 * h, GB + 8 + h, GB + 4 + 2 * h))
    a("v_and_b32 v10, 31, v2")
    a("s_lshl_b32 s36, s24, 9")
    a("v_lshl_add_u32 v10, v10, 4, s36")
    a("ds_write_b128 v10, %s offset:1024" % vr(GB + 4))
    a("s_lshl_b32 s37, s25, 8")
    a("s_add_u32 s38, s36, s37")
    a("s_xor_b32 s37, s37, 256")
    a("s_add_u32 s39, s36, s37")
    a("v_lshlrev_b32 v10, 3, v3")
    a("v_add_u32 v11, s38, v10")
    a("v_add_u32 v10, s39, v10")
    a("s_waitcnt lgkmcnt(0)")
    a("ds_read_b64 %s, v11 offset:1024" % vr(MR, 2))
    a("ds_read_b64 %s, v11 offset:1152" % vr(MR + 2, 2))
    a("ds_read_b64 %s, v10 offset:1024" % vr(MR + 4, 2))
    a("ds_read_b64 %s, v10 offset:1152" % vr(MR + 6, 2))
    a("v_lshrrev_b32 v10, 4, v2")
    a("v_lshrrev_b32 v11, 2, v2"); a("v_and_b32 v11, 1, v11"); a("v_lshlrev_b32 v11, 4, v11")
    a("v_lshrrev_b32 v5, 3, v2"); a("v_and_b32 v5, 1, v5"); a("v_lshl_add_u32 v11, v5, 2, v11")
    a("v_and_b32 v5, 3, v2"); a("v_add_u32 v11, v11, v5")
    a("v_and_b32 v5, 1, v10")
    a("v_lshl_add_u32 v11, v5, 3, v11")
    a("v_lshlrev_b32 v11, 5, v11")
    a("v_lshrrev_b32 v5, 1, v10")
    a("v_lshl_add_u32 v6, v5, 4, v11")
    a("s_lshl_b32 s33, s23, 5")
    a("s_lshl_b32 s36, s22, 1")
    a("s_add_u32 s33, s33, s36")
    a("s_add_u32 s33, s33, s24")
    a("s_mul_i32 s33, s33, 18432")
    if ZIMG: a("s_add_u32 s33, s33, 0x%x" % ZIMG)
    a("s_lshl_b32 s36, s25, 10")
    a("s_add_u32 s39, s33, s36")
    a("s_add_u32 s39, s39, 8192")
    a("s_mul_i32 s38, s25, 10240")
    a("s_add_u32 s33, s33, s38")
    a("s_add_u32 s37, s33, s36")
    a("s_xor_b32 s36, s36, 1024")
    a("s_add_u32 s38, s33, s36")
    a("s_add_u32 s33, s37, 4096")
    a("s_add_u32 s36, s38, 4096")
    def norm_pair(nA, ttA, nB, ttB, O):
        for q, (n, tt) in enumerate(((nA, ttA), (nB, ttB))):
            for d in range(2):
                z = Z2 + 2 * n + d; t = T + 4 * q + 2 * d
                a("v_lshlrev_b32 v%d, 16, v%d" % (t, z))
                a("v_and_b32 v%d, 0xffff0000, v%d" % (t + 1, z))
        for q, (n, tt) in enumerate(((nA, ttA), (nB, ttB))):
            for d in range(2):
                t = T + 4 * q + 2 * d
                a("v_pk_fma_f32 %s, %s, %s, %s op_sel:[0,0,1] op_sel_hi:[1,0,1]" % (vr(t, 2), vr(t, 2), vr(MR + 2 * tt, 2), vr(MR + 2 * tt, 2)))
        for q in range(2):
            for d in range(2):
                t = T + 4 * q + 2 * d
                a("v_cvt_pk_bf16_f32 v%d, v%d, v%d" % (O + 2 * q + d, t, t + 1))
        a("s_nop 1")
        a("v_permlane16_swap_b32 v%d, v%d" % (O, O + 2))
        a("v_permlane16_swap_b32 v%d, v%d" % (O + 1, O + 3))
    a("s_waitcnt lgkmcnt(0)")
    cnt = 0
    for ft in range(4):
        for pp in range(2):
            O = 200 + 4 * cnt; cnt += 1
            norm_pair(tidx(ft, 2 * pp), 2 * pp, tidx(ft, 2 * pp + 1), 2 * pp + 1, O)
            a("s_nop 0")
            a("buffer_store_dwordx4 %s, v6, s[12:15], s%d offen offset:%d sc1" % (vr(O), ((37, 38), (33, 36))[ft >> 1][pp], (ft & 1) * 2048))
    O = 200 + 4 * cnt
    norm_pair(16, 0, 17, 1, O)
    a("s_nop 0")
    a("buffer_store_dwordx4 %s, v6, s[12:15], s39 offen sc1" % vr(O))
    stamp(a, 6)
    a("s_setprio 3")
    srd(a, 8, 78, 2048 * 2048 * 2)
    a("v_lshrrev_b32 v3, 3, v2")
    a("s_lshl_b32 s24, s3, 5")
    a("v_add_u32 v3, s24, v3")
    a("v_and_b32 v4, 7, v2")
    a("v_lshrrev_b32 v6, 4, v2")
    a("v_xor_b32 v6, v6, v4")
    a("v_lshlrev_b32 v6, 4, v6")
    a("v_lshl_add_u32 v10, v3, 12, v6")
    a("v_xor_b32 v11, 64, v10")
    a("v_add_u32 v11, %d, v11" % (32768 - 1024))
    a("v_add_u32 v12, %d, v10" % (2 * (32768 - 1024)))
    a("v_add_u32 v13, %d, v11" % (2 * (32768 - 1024)))
    a("v_lshlrev_b32 v14, 4, v2")
    a("s_lshl_b32 s26, s22, 19")
    a("s_mul_i32 s27, s23, %d" % (32 * 18432))
    a("s_lshl_b32 s24, s3, 12")
    a("s_add_u32 s27, s27, s24")
    if ZIMG: a("s_add_u32 s27, s27, 0x%x" % ZIMG)
    a("s_lshl_b32 s25, s3, 9")
    a("s_sub_u32 s32, s25, s24")
    a("s_add_u32 s32, s32, 16384")
    a("s_add_u32 s24, s24, %d" % RB)
    a("s_waitcnt vmcnt(0) lgkmcnt(0)")
    a("v_mov_b32 v26, %d" % LC)
    a("v_mov_b32 v27, 1")
    a("s_mov_b64 exec, 1")
    a("ds_add_rtn_u32 v28, v26, v27")
    a("s_waitcnt lgkmcnt(0)")
    a("v_readfirstlane_b32 s36, v28")
    a("s_cmp_lg_u32 s36, 3")
    a("s_cbranch_scc1 %s_nozs" % name)
    a("v_mov_b32 v28, 0")
    a("buffer_store_dword v27, v28, s[12:15], s97 offen sc1")
    a.label("%s_nozs" % name)
    a("s_mov_b64 exec, -1")
    stamp(a, 7)
    srd(a, 16, 88, 576 * 2048 * 2)
    srd(a, 84, 90, 576 * 2)
    for g in range(4):
        a("s_add_u32 s35, s24, %d" % (g * SLOT))
        a("s_mov_b32 m0, s35")
        a("s_add_u32 s36, s26, %d" % (128 * g))
        for n in range(4):
            a("buffer_load_dwordx4 v%d, s[8:11], s36 offen offset:%d lds" % (10 + n, n * 1024))
    a("s_mov_b32 s34, 0")
    a("s_cmp_lg_u32 s3, 0")
    a("s_cbranch_scc1 %s_pl" % name)
    a("v_and_b32 v28, 15, v2")
    a("v_lshlrev_b32 v30, 2, v28")
    a("v_lshlrev_b32 v28, 12, v28")
    a("s_lshl_b32 s52, s23, 8")
    a("s_add_u32 s52, s52, 0x%x" % ZFLG)
    a.label("%s_pz0" % name)
    a("buffer_load_dword v31, v30, s[60:63], 0 offen sc1")
    a("s_add_u32 s34, s34, 1")
    a("s_waitcnt vmcnt(0)")
    a("v_cmp_gt_u32 vcc, 16, v31")
    a("s_cmp_gt_u32 s34, %d" % SPIN_MAX)
    a("s_cbranch_scc1 %s_pz" % name)
    a("s_cbranch_vccz %s_pz" % name)
    a("s_sleep 32")
    a("s_branch %s_pz0" % name)
    a.label("%s_pz" % name)
    a("buffer_load_dword v29, v28, s[12:15], s52 offen sc1")
    a("s_add_u32 s34, s34, 1")
    a("s_waitcnt vmcnt(0)")
    a("v_cmp_ne_u32 vcc, 1, v29")
    a("s_cmp_gt_u32 s34, %d" % SPIN_MAX)
    a("s_cbranch_scc1 %s_pzx" % name)
    a("s_cbranch_vccz %s_pzx" % name)
    a("s_sleep 8")
    a("s_branch %s_pz" % name)
    a.label("%s_pzx" % name)
    a("v_mov_b32 v27, 1")
    a("ds_write_b32 v26, v27 offset:4")
    a("s_branch %s_pgo" % name)
    a.label("%s_pl" % name)
    a("ds_read_b32 v27, v26 offset:4")
    a("s_add_u32 s34, s34, 1")
    a("s_waitcnt lgkmcnt(0)")
    a("v_readfirstlane_b32 s36, v27")
    a("s_cmp_gt_u32 s34, %d" % (SPIN_MAX * 20))
    a("s_cbranch_scc1 %s_pgo" % name)
    a("s_cmp_lg_u32 s36, 0")
    a("s_cbranch_scc1 %s_pgo" % name)
    a("s_sleep 2")
    a("s_branch %s_pl" % name)
    a.label("%s_pgo" % name)
    stamp(a, 8)
    for g in range(4):
        a("s_add_u32 s35, s24, %d" % (g * SLOT + TREG))
        a("s_mov_b32 m0, s35")
        a("s_add_u32 s36, s27, %d" % (18432 * g))
        a("s_add_u32 s37, s36, s32")
        for n in range(4):
            a("buffer_load_dwordx4 v14, s[12:15], s36 offen offset:%d sc1 lds" % (n * 1024))
        a("s_add_u32 s35, s35, s32")
        a("s_mov_b32 m0, s35")
        a("s_mov_b64 exec, 0xffffffff")
        a("buffer_load_dwordx4 v14, s[12:15], s37 offen sc1 lds")
        a("s_mov_b64 exec, -1")
    a("s_add_u32 s26, s26, 512")
    a("s_add_u32 s27, s27, %d" % (4 * 18432))
    a("s_mov_b32 s33, 0")
    a("s_lshl_b32 s43, s2, 2")
    a("s_add_u32 s43, s43, s3")
    a("s_and_b32 s53, s43, 1")
    a("s_sub_u32 s36, s43, 448")
    a("s_lshr_b32 s37, s43, 1")
    a("s_cmp_ge_u32 s43, 896")
    a("s_cselect_b32 s43, s36, s37")
    a("s_cselect_b32 s53, 2, s53")
    a("s_waitcnt vmcnt(15)")
    a("s_barrier")
    a("s_waitcnt vmcnt(10)")
    a("s_barrier")
    a("s_waitcnt vmcnt(5)")
    a("s_barrier")
    a("s_mov_b32 s34, 4")
    def issue2():
        a("s_add_u32 s35, s33, s24")
        a("s_mov_b32 m0, s35")
        a("s_add_u32 s36, s35, %d" % TREG)
        for n in range(4):
            a("buffer_load_dwordx4 v%d, s[8:11], s26 offen offset:%d lds" % (10 + n, n * 1024))
        a("s_mov_b32 m0, s36")
        a("s_add_u32 s37, s27, s32")
        for n in range(4):
            a("buffer_load_dwordx4 v14, s[12:15], s27 offen offset:%d sc1 lds" % (n * 1024))
        a("s_add_u32 s36, s36, s32")
        a("s_mov_b32 m0, s36")
        a("s_mov_b64 exec, 0xffffffff")
        a("buffer_load_dwordx4 v14, s[12:15], s37 offen sc1 lds")
        a("s_mov_b64 exec, -1")
        a("s_add_u32 s26, s26, 128")
        a("s_add_u32 s27, s27, 18432")
        a("s_add_u32 s33, s33, %d" % SLOT)
        a("s_cmp_eq_u32 s33, %d" % (R * SLOT))
        a("s_cselect_b32 s33, 0, s33")
    a.label("%s_lloop" % name)
    issue2()
    a("s_cmp_eq_u32 s34, 18")
    a("s_cbranch_scc1 %s_hk1" % name)
    a("s_cmp_eq_u32 s34, 21")
    a("s_cbranch_scc1 %s_hk2" % name)
    a("s_cmp_eq_u32 s34, 22")
    a("s_cbranch_scc1 %s_hk2g" % name)
    a.label("%s_lw9" % name)
    a("s_waitcnt vmcnt(9)")
    a.label("%s_lcont" % name)
    a("s_barrier")
    a("s_add_u32 s34, s34, 1")
    a("s_cmp_lt_u32 s34, 32")
    a("s_cbranch_scc1 %s_lloop" % name)
    a("s_branch %s_ldone" % name)
    a.label("%s_hk1" % name)
    a("s_cmp_lg_u32 s3, 0")
    a("s_cbranch_scc1 %s_lw9" % name)
    a("v_lshlrev_b32 v28, 7, v2")
    a("s_mov_b32 s52, 0x%x" % (XFLG + 0))
    a("buffer_load_dword v32, v28, s[12:15], s52 offen sc1")
    a("s_mov_b32 s52, 0x%x" % (XFLG + 8192))
    a("buffer_load_dword v33, v28, s[12:15], s52 offen sc1")
    a("s_mov_b32 s52, 0x%x" % (XFLG + 16384))
    a("buffer_load_dword v34, v28, s[12:15], s52 offen sc1")
    a("s_mov_b32 s52, 0x%x" % (XFLG + 24576))
    a("buffer_load_dword v35, v28, s[12:15], s52 offen sc1")
    a("s_waitcnt vmcnt(13)")
    a("s_branch %s_lcont" % name)
    a.label("%s_hk2" % name)
    a("s_cmp_lg_u32 s3, 0")
    a("s_cbranch_scc1 %s_lw9" % name)
    a("s_mov_b32 s52, 0")
    a.label("%s_hk2l" % name)
    a("v_and_b32 v32, v32, v33")
    a("v_and_b32 v34, v34, v35")
    a("v_and_b32 v32, v32, v34")
    a("v_cmp_eq_u32 vcc, 1, v32")
    a("s_nop 1")
    a("v_cndmask_b32 v32, 0, 16, vcc")
    a("v_cmp_gt_u32 vcc, 16, v32")
    a("s_add_u32 s52, s52, 1")
    a("s_cmp_gt_u32 s52, %d" % SPIN_MAX)
    a("s_cbranch_scc1 %s_lw9" % name)
    a("s_cbranch_vccz %s_lw9" % name)
    a("s_sleep 16")
    a("s_mov_b32 s38, 0x%x" % (XFLG + 0))
    a("buffer_load_dword v32, v28, s[12:15], s38 offen sc1")
    a("s_mov_b32 s38, 0x%x" % (XFLG + 8192))
    a("buffer_load_dword v33, v28, s[12:15], s38 offen sc1")
    a("s_mov_b32 s38, 0x%x" % (XFLG + 16384))
    a("buffer_load_dword v34, v28, s[12:15], s38 offen sc1")
    a("s_mov_b32 s38, 0x%x" % (XFLG + 24576))
    a("buffer_load_dword v35, v28, s[12:15], s38 offen sc1")
    a("s_waitcnt vmcnt(0)")
    a("s_branch %s_hk2l" % name)
    a.label("%s_hk2g" % name)
    nconv = emit_conv_loads(a, " sc1")
    a("s_waitcnt vmcnt(%d)" % (9 + nconv))
    a("s_branch %s_lcont" % name)
    a.label("%s_ldone" % name)
    a("s_waitcnt vmcnt(0)")
    a("s_barrier")
    a("s_mov_b32 s26, s53")
    a("s_and_b32 s27, s3, 1")
    a("s_mul_i32 s27, s27, %d" % CJ_SIZE)
    a("s_lshr_b32 s36, s3, 1")
    a("s_mul_i32 s36, s36, %d" % SLOT)
    a("s_add_u32 s27, s27, s36")
    a("s_add_u32 s27, s27, %d" % RB)
    def mid():
        a("s_barrier")
        a("s_setprio 0")
    sv = set(DBG); DBG.discard("stamp")
    lb_ = len(a.lines)
    emit_conv_job(a, name, mid)
    for n_ in range(lb_, len(a.lines)):
        if "buffer_store_dwordx2" in a.lines[n_]: a.lines[n_] += " sc1"
    DBG.update(sv)
    stamp(a, 9)
    c_common()
    cTa = [4, 4]; cTb = [6, 6]; cF_ = 8; cFh = 9
    kTa = 88; kTb = 90; kF = 92; kFh = 93
    a("v_and_b32 v3, 15, v2")
    a("v_lshrrev_b32 v10, 5, v2")
    a("v_lshlrev_b32 v10, 11, v10")
    a("v_bfe_u32 v11, v2, 4, 1")
    a("v_lshl_add_u32 v10, v11, 4, v10")
    a("v_lshl_add_u32 v10, v3, 5, v10")
    a("s_lshl_b32 s26, s3, 12")
    a("v_add_u32 v10, s26, v10")
    a("s_lshl_b32 s26, s53, 10")
    a("v_add_u32 v%d, s26, v10" % kTa)
    a("s_xor_b32 s26, s26, 1024")
    a("v_add_u32 v%d, s26, v10" % kTb)
    a("v_lshrrev_b32 v10, 2, v2")
    a("v_mul_u32_u24 v10, %d, v10" % CFS)
    a("v_and_b32 v11, 3, v2")
    a("v_lshl_add_u32 v10, v11, 3, v10")
    a("s_mul_i32 s26, s3, %d" % (32 * CFS))
    a("s_add_u32 s26, s26, %d" % CTREG)
    a("v_add_u32 v%d, s26, v10" % kF)
    a("v_add_u32 v%d, 128, v%d" % (kFh, kF))
    a("v_mov_b32 v26, %d" % LC)
    a("v_mov_b32 v27, 1")
    a("s_waitcnt vmcnt(0)")
    a("s_mov_b64 exec, 1")
    a("ds_add_rtn_u32 v28, v26, v27 offset:20")
    a("s_waitcnt lgkmcnt(0)")
    a("v_readfirstlane_b32 s36, v28")
    a("s_cmp_lg_u32 s36, 3")
    a("s_cbranch_scc1 %s_nocs" % name)
    a("s_lshl_b32 s36, s2, 7")
    a("s_add_u32 s36, s36, 0x%x" % CFLG)
    a("v_mov_b32 v28, 0")
    a("buffer_store_dword v27, v28, s[12:15], s36 offen sc1")
    a.label("%s_nocs" % name)
    a("s_mov_b64 exec, -1")
    fin_loads()
    core3 = G.Core(a, ACC, FB[0], FB[1], CFS, CTREG, cTa, cTb, cF_, cFh, TT=512)
    pairs = ((cTa[0], kTa), (cF_, kF), (cTb[0], kTb), (cFh, kFh))
    a("s_mov_b32 s27, %d" % C0)
    for d, s_ in pairs: a("v_add_u32 v%d, s27, v%d" % (d, s_))
    for r in range(ACC, ACC + 72): a("v_mov_b32 v%d, 0" % r)
    a("s_mov_b32 s33, 0")
    a("s_barrier")
    stamp(a, 10)
    core3.prime(0, core3.reads(0, 0))
    def citer(buf):
        core3.trk.drain()
        a("s_barrier")
        a("s_add_u32 s27, s27, %d" % CSL)
        a("s_cmp_eq_u32 s27, %d" % CW)
        a("s_cselect_b32 s27, %d, s27" % RB)
        pre = ["v_add_u32 v%d, s27, v%d" % (d, s_) for d, s_ in pairs]
        core3.phase(buf, core3.reads(1 - buf, 0), pre=pre)
    a.label("%s_ccloop" % name)
    citer(0); citer(1)
    a("s_add_u32 s33, s33, 1")
    a("s_cmp_lt_u32 s33, 9")
    a("s_cbranch_scc1 %s_ccloop" % name)
    core3.trk.drain()
    stamp(a, 11)
    a("s_mul_i32 s33, s3, %d" % (18 * 1024))
    a("s_add_u32 s33, s33, %d" % C0)
    a("v_lshlrev_b32 v10, 4, v2")
    a("v_add_u32 v11, s33, v10")
    a("s_nop 4")
    for n, (ft, tt) in enumerate(TILES):
        a("ds_write_b128 v11, %s offset:%d" % (vr(core3.accr(ft, tt)), 1024 * tidx(ft, tt)))
        if n in (7, 13): a("s_waitcnt lgkmcnt(4)")
    a("s_waitcnt lgkmcnt(0) vmcnt(0)")
    a.label("%s_cfin" % name)
    a("s_barrier")
    stamp(a, 12)
    a("v_lshlrev_b32 v10, 4, v2")
    a("v_lshrrev_b32 v11, 2, v2")
    a("v_lshlrev_b32 v11, 7, v11")
    a("v_and_b32 v12, 3, v2")
    a("v_lshl_add_u32 v11, v12, 3, v11")
    a("s_mov_b32 s33, 0xbfb8aa3b")
    PT = 16; YR = 64
    for s_ in range(3):
        b = 64 + 4 * s_
        if s_ == 2:
            a("s_cmp_ge_u32 s54, 2")
            a("s_cbranch_scc1 %s_rd" % name)
        a("v_add_u32 v4, s%d, v10" % (b + 2))
        a("v_add_u32 v5, s%d, v11" % (b + 1))
        for q in range(4):
            a("ds_read_b128 %s, v4 offset:%d" % (vr(PT + 16 * s_ + 4 * q), 18432 * q))
        a("ds_read_b64_tr_b16 %s, v5" % vr(YR + 2 * s_, 2))
    a.label("%s_rd" % name)
    T = 104
    for s_ in range(3):
        b = 64 + 4 * s_
        if s_ == 0: a("s_waitcnt lgkmcnt(5)")
        if s_ == 1: a("s_waitcnt lgkmcnt(0)")
        if s_ == 2:
            a("s_cmp_ge_u32 s54, 2")
            a("s_cbranch_scc1 %s_done" % name)
        o = PT + 16 * s_; X = XR + 2 * s_; Y = YR + 2 * s_; S_ = ST + 2 * s_
        for h in (0, 2):
            a("v_pk_add_f32 %s, %s, %s" % (vr(o + h, 2), vr(o + h, 2), vr(o + 4 + h, 2)))
            a("v_pk_add_f32 %s, %s, %s" % (vr(o + 8 + h, 2), vr(o + 8 + h, 2), vr(o + 12 + h, 2)))
        for h in (0, 2):
            a("v_pk_add_f32 %s, %s, %s" % (vr(o + h, 2), vr(o + h, 2), vr(o + 8 + h, 2)))
        rnd_pair(a, T + 20, o, o + 1); rnd_pair(a, T + 21, o + 2, o + 3)
        for r in range(4): a("v_mul_f32 v%d, s33, v%d" % (T + r, o + r))
        for r in range(4): a("v_exp_f32 v%d, v%d" % (T + r, T + r))
        a("v_lshlrev_b32 v%d, 16, v%d" % (T + 4, X)); a("v_and_b32 v%d, 0xffff0000, v%d" % (T + 5, X))
        a("v_lshlrev_b32 v%d, 16, v%d" % (T + 6, X + 1)); a("v_and_b32 v%d, 0xffff0000, v%d" % (T + 7, X + 1))
        for r in range(4): a("v_add_f32 v%d, 1.0, v%d" % (T + r, T + r))
        for r in range(4): a("v_rcp_f32 v%d, v%d" % (T + r, T + r))
        for r in range(4): a("v_sub_f32 v%d, v%d, v%d" % (T + 12 + r, T + 4 + r, S_))
        a("v_lshlrev_b32 v%d, 16, v%d" % (T + 8, Y)); a("v_and_b32 v%d, 0xffff0000, v%d" % (T + 9, Y))
        a("v_lshlrev_b32 v%d, 16, v%d" % (T + 10, Y + 1)); a("v_and_b32 v%d, 0xffff0000, v%d" % (T + 11, Y + 1))
        for r in range(4): a("v_mul_f32 v%d, v%d, v%d" % (o + r, o + r, T + r))
        rnd_pair(a, T + 20, T + 12, T + 13); rnd_pair(a, T + 21, T + 14, T + 15)
        rnd_pair(a, T + 22, o, o + 1); rnd_pair(a, T + 23, o + 2, o + 3)
        for r in range(4): a("v_mul_f32 v%d, v%d, v%d" % (T + 12 + r, T + 12 + r, S_ + 1))
        rnd_pair(a, T + 20, T + 12, T + 13); rnd_pair(a, T + 21, T + 14, T + 15)
        for r in range(4): a("v_mul_f32 v%d, v%d, v%d" % (T + 12 + r, T + 12 + r, T + 8 + r))
        rnd_pair(a, T + 20, T + 12, T + 13); rnd_pair(a, T + 21, T + 14, T + 15)
        for r in range(4): a("v_mul_f32 v%d, v%d, v%d" % (T + 12 + r, T + 12 + r, o + r))
        rnd_pair(a, T + 20, T + 12, T + 13); rnd_pair(a, T + 21, T + 14, T + 15)
        for r in range(4): a("v_add_f32 v%d, v%d, v%d" % (T + 12 + r, T + 12 + r, T + 4 + r))
        a("v_cvt_pk_bf16_f32 v%d, v%d, v%d" % (X, T + 12, T + 13))
        a("v_cvt_pk_bf16_f32 v%d, v%d, v%d" % (X + 1, T + 14, T + 15))
        a("buffer_store_dwordx2 %s, v13, s[28:31], s%d offen" % (vr(X, 2), b))
    a.label("%s_done" % name)
    stamp(a, 13)
    G.stamp_rt(a, 1)
    a.label("%s_end" % name)
    a("s_endpgm")
    for ft in range(5):
        a.label("%s_gsub%d" % (name, ft))
        tts = range(4 if ft < 4 else 2)
        emit_fold_gelu(a, [(128 + 4 * tidx(ft, tt), CS + 4 * ft, MR + 2 * tt, ZP + 2 * tidx(ft, tt)) for tt in tts], 72)
        a("s_setpc_b64 s[34:35]")
    return a.text(), kernel_desc(name, 256, 256), (name, 256, 512, 163840)

def gen_kf17(name="k1_kernel", R=4):
    a = Asm()
    RB = 4096; SLOT = 34816; TREG = 16384; FS = 288; RST = 0
    LDSB = RB + R * SLOT
    LC = 2048
    ZFLG = 0x2D00000; PFL = 128
    KVL = 143360; XFLG = 0x2D20000; CFLG = 0x2D30000
    C0 = 77824; CW = 151552; CSL = 36864; YOFF = 151552; CTREG = 16384; CFS = 160
    from gen3 import emit_conv_loads, emit_conv_job, CJ_SIZE
    def capture(f, *args):
        lb = len(a.lines); f(*args); out = a.lines[lb:]; del a.lines[lb:]; return out

    def c_common():
        a("s_load_dwordx2 s[4:5], s[0:1], 0")
        a("s_load_dwordx2 s[16:17], s[0:1], 88")
        a("s_and_b32 s20, s2, 7")
        a("s_lshr_b32 s21, s2, 3")
        a("s_and_b32 s22, s20, 3")
        a("s_lshl_b32 s22, s22, 3")
        a("s_and_b32 s23, s21, 7")
        a("s_add_u32 s22, s22, s23")
        a("s_lshr_b32 s23, s20, 2")
        a("s_lshl_b32 s23, s23, 2")
        a("s_lshr_b32 s24, s21, 3")
        a("s_add_u32 s23, s23, s24")
        a("s_lshr_b32 s52, s23, 1")
        a("s_and_b32 s53, s23, 1")
        a("s_lshl_b32 s54, s98, 2")
        a("s_add_u32 s54, s54, s3")
        a("s_waitcnt lgkmcnt(0)")
        srd(a, 8, 4, 2048 * 576 * 2)
        srd(a, 28, 16, 2048 * 576 * 2)
    XR = 200; ST = 208
    def fin_loads():
        a("v_and_b32 v3, 15, v2")
        a("v_lshrrev_b32 v10, 4, v2")
        a("v_mul_u32_u24 v13, 1152, v3")
        a("v_lshl_add_u32 v13, v10, 3, v13")
        a("v_lshlrev_b32 v12, 3, v3")
        for s_ in range(3):
            if s_ == 2:
                a("s_cmp_ge_u32 s54, 2")
                a("s_cbranch_scc1 %s_fl%d" % (name, fin_loads.cnt))
            b = 64 + 4 * s_
            if s_ < 2:
                a("s_add_u32 s36, s54, %d" % (8 * s_))
                a("s_lshr_b32 s37, s36, 2")
                a("s_and_b32 s38, s36, 3")
                a("s_mul_i32 s39, s53, 160")
                a("s_lshl_b32 s40, s37, 5")
                a("s_add_u32 s39, s39, s40")
            else:
                a("s_add_u32 s36, s54, 16")
                a("s_mov_b32 s37, 4")
                a("s_mov_b32 s38, s54")
                a("s_mov_b32 s39, 128")
            a("s_lshl_b32 s40, s53, 1")
            a("s_add_u32 s38, s38, s40")
            a("s_and_b32 s38, s38, 3")
            a("s_lshl_b32 s40, s22, 2")
            a("s_add_u32 s40, s40, s38")
            a("s_lshl_b32 s40, s40, 4")
            a("s_mul_i32 s%d, s40, 1152" % b)
            a("s_add_u32 s%d, s%d, s39" % (b, b))
            a("s_mul_i32 s39, s52, 288")
            a("s_add_u32 s%d, s%d, s39" % (b, b))
            a("s_lshl_b32 s%d, s37, 11" % (b + 1))
            a("s_lshl_b32 s39, s38, 5")
            a("s_add_u32 s%d, s%d, s39" % (b + 1, b + 1))
            a("s_add_u32 s%d, s%d, %d" % (b + 1, b + 1, YOFF))
            a("s_lshl_b32 s%d, s36, 10" % (b + 2))
            a("s_add_u32 s%d, s%d, %d" % (b + 2, b + 2, C0))
            a("s_lshl_b32 s40, s40, 3")
            a("s_add_u32 s40, s40, 0x%x" % STATS1)
            a("buffer_load_dwordx2 %s, v13, s[8:11], s%d offen" % (vr(XR + 2 * s_, 2), b))
            a("buffer_load_dwordx2 %s, v12, s[12:15], s40 offen sc1" % vr(ST + 2 * s_, 2))
        a.label("%s_fl%d" % (name, fin_loads.cnt))
        fin_loads.cnt += 1
    fin_loads.cnt = 0
    kernel_begin(a, name)
    a("s_load_dwordx2 s[80:81], s[0:1], 0")
    a("s_load_dwordx2 s[4:5], s[0:1], 56")
    a("s_load_dwordx2 s[6:7], s[0:1], 104")
    a("s_load_dwordx2 s[18:19], s[0:1], 96")
    a("s_cmp_ge_u32 s2, 256")
    a("s_cbranch_scc1 %s_end" % name)
    a("v_lshrrev_b32 v1, 6, v0")
    a("v_and_b32 v2, 63, v0")
    a("v_readfirstlane_b32 s3, v1")
    G2.tile_ij(a)
    a("s_lshr_b32 s98, s3, 2")
    a("s_mov_b32 s54x, 0".replace("s54x", "s99"))
    a("s_and_b32 s3, s3, 3")
    a("s_lshr_b32 s24, s3, 1")
    a("s_and_b32 s25, s3, 1")
    a("v_and_b32 v3, 15, v2")
    VT = 204; VF = 208
    def loader_setup():
        a("v_lshrrev_b32 v5, 3, v2")
        a("v_and_b32 v4, 7, v2")
        a("s_lshl_b32 s36, s3, 5")
        a("v_add_u32 v5, s36, v5")
        a("v_lshrrev_b32 v7, 4, v2")
        a("v_xor_b32 v7, v7, v4")
        a("v_mul_u32_u24 v6, 1152, v5")
        a("v_lshl_add_u32 v%d, v7, 4, v6" % VT)
        a("v_xor_b32 v%d, 64, v%d" % (VT + 1, VT))
        a("v_add_u32 v%d, %d, v%d" % (VT + 1, 9216 - 1024, VT + 1))
        a("v_add_u32 v%d, %d, v%d" % (VT + 2, 2 * (9216 - 1024), VT))
        a("v_add_u32 v%d, %d, v%d" % (VT + 3, 2 * (9216 - 1024), VT + 1))
        a("s_lshl_b32 s84, s3, 12")
        a("s_add_u32 s84, s84, %d" % RB)
        a("s_lshl_b32 s85, s3, 9")
        a("s_add_u32 s85, s85, %d" % (RB + TREG + 16384))
    def loader_setup2():
        for n in range(5):
            if n < 4:
                a("s_lshl_b32 s36, s3, 8")
                a("s_add_u32 s36, s36, %d" % (64 * n))
            else:
                a("s_lshl_b32 s36, s3, 5")
                a("s_add_u32 s36, s36, 1024")
            a("v_add_u32 v6, s36, v2")
            a("v_mul_u32_u24 v7, 3641, v6")
            a("v_lshrrev_b32 v7, 16, v7")
            a("v_mul_u32_u24 v8, 18, v7")
            a("v_sub_u32 v8, v6, v8")
            a("v_and_b32 v9, 35, v7")
            a("v_bfe_u32 v6, v7, 2, 2")
            a("v_lshl_add_u32 v9, v6, 3, v9")
            a("v_bfe_u32 v6, v7, 4, 1")
            a("v_lshl_add_u32 v9, v6, 2, v9")
            a("v_mul_u32_u24 v9, 9216, v9")
            a("v_lshl_add_u32 v%d, v8, 4, v9" % (VF + n))
            if 0 < n < 4: a("v_subrev_u32 v%d, %d, v%d" % (VF + n, 1024 * n, VF + n))
    def issueT(g):
        st = g % 9
        a("s_add_u32 s86, s84, %d" % ((g % R) * SLOT))
        a("s_mov_b32 m0, s86")
        a("s_add_u32 s87, s82, %d" % (128 * st))
        for n in range(4):
            a("buffer_load_dwordx4 v%d, s[28:31], s87 offen offset:%d lds" % (VT + n, 1024 * n))
    def issueF(g):
        st = g % 9
        a("s_add_u32 s86, s84, %d" % ((g % R) * SLOT + TREG))
        a("s_mov_b32 m0, s86")
        a("s_add_u32 s87, s83, %d" % (64 * 9216 * st + (4608 if g < 9 else 0)))
        for n in range(4):
            a("buffer_load_dwordx4 v%d, s[8:11], s87 offen offset:%d lds" % (VF + n, 1024 * n))
        a("s_add_u32 s86, s85, %d" % ((g % R) * SLOT))
        a("s_mov_b32 m0, s86")
        a("s_mov_b64 exec, 0xffffffff")
        a("buffer_load_dwordx4 v%d, s[8:11], s87 offen lds" % (VF + 4))
        a("s_mov_b64 exec, -1")
    def srds_main():
        srd(a, 28, 80, 2048 * 576 * 2)
        srd(a, 8, 4, 576 * 4608 * 2)
        srd(a, 12, 6, WS_BYTES)
        srd(a, 60, 18, 256)
        a("s_mul_i32 s82, s22, %d" % (128 * 1152))
        a("s_mul_i32 s83, s23, 288")
    ACC = 128; FB = [16, 52]; CS = 216; ONE = 236
    vTa = [4, 5]; vTb = [6, 7]; vF = 8; vFh = 9
    bTa = [88, 89]; bTb = [90, 91]; bF = 92; bFh = 93
    def mma_setup():
        a("v_lshrrev_b32 v10, 4, v2")
        a("v_lshrrev_b32 v11, 1, v3")
        a("v_xor_b32 v10, v10, v11")
        a("v_lshlrev_b32 v10, 4, v10")
        a("v_lshl_add_u32 v10, v3, 7, v10")
        a("s_lshl_b32 s26, s24, 13")
        a("s_add_u32 s26, s26, %d" % RB)
        a("v_add_u32 v10, s26, v10")
        a("s_lshl_b32 s26, s25, 12")
        a("v_add_u32 v%d, s26, v10" % bTa[0])
        a("s_xor_b32 s26, s26, 4096")
        a("v_add_u32 v%d, s26, v10" % bTb[0])
        a("v_xor_b32 v%d, 64, v%d" % (bTa[1], bTa[0]))
        a("v_xor_b32 v%d, 64, v%d" % (bTb[1], bTb[0]))
        a("v_lshrrev_b32 v10, 2, v2")
        a("v_mul_u32_u24 v10, %d, v10" % FS)
        a("v_and_b32 v11, 3, v2")
        a("v_lshl_add_u32 v10, v11, 3, v10")
        a("v_add_u32 v10, %d, v10" % (RB + TREG))
        a("s_mul_i32 s26, s25, 160")
        a("v_add_u32 v%d, s26, v10" % bF)
        a("v_add_u32 v%d, 128, v10" % bFh)
        for r in range(ACC, ACC + 72): a("v_mov_b32 v%d, 0" % r)
        for r in range(CS, CS + 20): a("v_mov_b32 v%d, 0" % r)
        for r in range(ONE, ONE + 4): a("v_mov_b32 v%d, 0x3f803f80" % r)
    def mma_addr(slot):
        a("s_mov_b32 s27, %d" % (slot * SLOT))
        for d, s_ in ((vTa[0], bTa[0]), (vTb[0], bTb[0]), (vTa[1], bTa[1]), (vTb[1], bTb[1]), (vF, bF), (vFh, bFh)):
            a("v_add_u32 v%d, s27, v%d" % (d, s_))
    core = G.Core(a, ACC, FB[0], FB[1], FS, TREG, vTa, vTb, vF, vFh)
    trk = core.trk
    a("s_cmp_eq_u32 s98, 0")
    a("s_cbranch_scc1 %s_A0" % name)
    a("s_setprio 3")
    loader_setup()
    a("s_waitcnt lgkmcnt(0)")
    srds_main()
    vm = VmTracker(a)
    def issue(g, vmx):
        issueT(g); issueF(g); vmx.issue("S%d" % g, 9)
    issueT(0)
    loader_setup2()
    issueF(0); vm.issue("S0", 9)
    issue(1, vm); issue(2, vm); issue(3, vm)
    a("s_add_u32 s3, s3, 4"); stamp_setup(a, 1); stamp(a, 0); a("s_sub_u32 s3, s3, 4")
    a("s_load_dwordx4 s[64:67], s[0:1], 8")
    a("s_load_dwordx2 s[76:77], s[0:1], 24")
    mma_setup()
    a("s_waitcnt lgkmcnt(0)")
    srd(a, 68, 66, 2048 * 576 * 2)
    a("s_mov_b32 s88, s64"); a("s_mov_b32 s89, s65")
    srd(a, 64, 88, 2048 * 576 * 2)
    srd(a, 72, 76, 576 * 8)
    def kv_dma():
        a("s_lshr_b32 s36, s2, 3")
        a("s_mul_i32 s36, s36, %d" % (64 * 1152))
        a("s_and_b32 s37, s2, 7")
        a("s_mul_i32 s37, s37, 144")
        a("s_add_u32 s36, s36, s37")
        for q in range(5):
            a("s_add_u32 s38, s3, %d" % (4 * q))
            if q == 4: a("s_min_u32 s38, s38, 18")
            isK = (q < 2); isV = (q > 2)
            a("s_sub_u32 s39, s38, 10")
            a("s_cmp_lt_u32 s38, 10")
            a("s_cselect_b32 s39, s38, s39")
            a("s_cselect_b32 s40, %d, 0" % ((-3 * 1152) & 0xffffffff))
            a("s_lshl_b32 s37, s39, 6")
            a("v_add_u32 v240, s37, v2")
            a("v_mul_u32_u24 v241, 7282, v240")
            a("v_lshrrev_b32 v241, 16, v241")
            a("v_mul_u32_u24 v242, 9, v241")
            a("v_sub_u32 v242, v240, v242")
            a("v_mul_u32_u24 v241, 1152, v241")
            a("v_lshl_add_u32 v241, v242, 4, v241")
            a("s_add_u32 s40, s40, s36")
            a("v_add_u32 v241, s40, v241")
            a("s_lshl_b32 s37, s38, 10")
            a("s_add_u32 s37, s37, %d" % KVL)
            a("s_mov_b32 m0, s37")
            if isK:
                a("s_nop 0")
                a("buffer_load_dwordx4 v241, s[64:67], 0 offen lds")
            elif isV:
                a("s_nop 0")
                a("buffer_load_dwordx4 v241, s[68:71], 0 offen lds")
            else:
                a("s_cmp_lt_u32 s38, 10")
                a("s_cbranch_scc1 %s_kd1" % name)
                a("buffer_load_dwordx4 v241, s[68:71], 0 offen lds")
                a("s_branch %s_kd2" % name)
                a.label("%s_kd1" % name)
                a("buffer_load_dwordx4 v241, s[64:67], 0 offen lds")
                a.label("%s_kd2" % name)
    RA = 96; XB = 112
    for r in range(RA, RA + 16): a("v_mov_b32 v%d, 0" % r)
    a("v_lshrrev_b32 v10, 4, v2")
    a("v_lshrrev_b32 v11, 1, v3")
    a("v_xor_b32 v10, v10, v11")
    a("v_lshlrev_b32 v10, 4, v10")
    a("v_lshl_add_u32 v10, v3, 7, v10")
    a("v_add_u32 v12, s84, v10")
    a("v_xor_b32 v13, 64, v12")
    def rs_rd(g):
        a("v_add_u32 v10, %d, v12" % ((g % R) * SLOT))
        a("v_add_u32 v11, %d, v13" % ((g % R) * SLOT))
        for h in range(2):
            for n in range(2):
                a("ds_read_b128 %s, v%d offset:%d" % (vr(XB + 8 * h + 4 * n), 10 + h, 2048 * n))
    def rs_do():
        for h in range(2):
            for n in range(2):
                x = XB + 8 * h + 4 * n
                a("v_mfma_f32_16x16x32_bf16 %s, %s, %s, %s" % (vr(RA + 4 * n), vr(ONE), vr(x), vr(RA + 4 * n)))
                a("v_mfma_f32_16x16x32_bf16 %s, %s, %s, %s" % (vr(RA + 8 + 4 * n), vr(x), vr(x), vr(RA + 8 + 4 * n)))
    def interleave(dma, comp, vmx=None):
        groups = []; cur = []
        for l in dma:
            cur.append(l)
            if "buffer_load" in l and not any("exec, 0xffffffff" in x for x in cur[-2:]):
                groups.append(cur); cur = []
            elif "exec, -1" in l:
                groups.append(cur); cur = []
        if cur: groups.append(cur)
        ns = max(1, len(groups))
        per = (len(comp) + ns - 1) // ns
        for g in groups:
            a.lines.extend(g)
            a.lines.extend(comp[:per]); comp = comp[per:]
        a.lines.extend(comp)
    vm.wait(["S0"])
    a("s_barrier")
    stamp(a, 1)
    rs_rd(0)
    vm.wait(["S1"])
    a("s_barrier")
    for k in range(9):
        a("s_waitcnt lgkmcnt(0)")
        dma = capture(lambda: (issueT(k + 3), issueF(k + 3))) if k >= 1 else []
        interleave(dma, capture(rs_do))
        if k >= 1: vm.issue("S%d" % (k + 3), 9)
        if k == 3:
            kv_dma(); vm.issue("KV", 5)
        if k < 8:
            rs_rd(k + 1)
        else:
            a("s_nop 7")
            a("v_lshrrev_b32 v10, 4, v2")
            a("v_lshrrev_b32 v11, 2, v3")
            a("v_and_b32 v12, 3, v3")
            for n in range(2):
                G_ = RA + 8 + 4 * n
                for r in range(1, 4):
                    a("v_cmp_eq_u32 vcc, %d, v12" % r)
                    a("s_nop 1")
                    a("v_cndmask_b32 v%d, v%d, v%d, vcc" % (G_, G_, G_ + r))
            ML = 112
            for n in range(2):
                emit_ln_finish(a, RA + 4 * n, RA + 8 + 4 * n, 576, ML + 2 * n, ML + 2 * n + 1, 120)
                a("v_mov_b32 v%d, v%d" % (117 + 2 * n, ML + 2 * n + 1))
                a("v_sub_f32 v%d, 0, v%d" % (116 + 2 * n, ML + 2 * n))
            a("s_lshl_b32 s35, s3, 8")
            a("v_lshlrev_b32 v13, 3, v3")
            a("v_add_u32 v12, s35, v13")
            a("v_cmp_eq_u32 vcc, v10, v11")
            a("s_and_saveexec_b64 s[36:37], vcc")
            for n in range(2):
                a("ds_write_b64 v12, %s offset:%d" % (vr(116 + 2 * n, 2), RST + 128 * n))
            a("s_mov_b64 exec, s[36:37]")
            a("s_cmp_lg_u32 s23, 0")
            a("s_cbranch_scc1 %s_nost1" % name)
            a("s_lshl_b32 s35, s22, 7")
            a("s_lshl_b32 s36, s3, 5")
            a("s_add_u32 s35, s35, s36")
            a("s_lshl_b32 s35, s35, 3")
            a("s_add_u32 s35, s35, 0x%x" % STATS1)
            a("v_mov_b32 v11, 0x7ffffff0")
            a("v_cndmask_b32 v13, v11, v13, vcc")
            for n in range(2):
                a("buffer_store_dwordx2 %s, v13, s[12:15], s35 offen offset:%d sc1" % (vr(ML + 2 * n, 2), 128 * n))
            a.label("%s_nost1" % name)
            a("v_and_b32 v0, 255, v0")
            lb_ = len(a.lines)
            a("s_mov_b32 s42, s2")
            emit_wot_loads(a, 100, 243, 720, 3)
            n_ = 0
            for i_ in range(lb_, len(a.lines)):
                if "buffer_load_dwordx4" in a.lines[i_]:
                    a.lines[i_] = "    v_mov_b32 v%d, v23" % (246 + n_); n_ += 1
            mma_addr(9 % R)
            a("s_mov_b32 s33, 0")
            a("s_setprio 0")
        vm.wait(["S%d" % (k + 2)], "lgkmcnt(0)" if k == 8 else "")
        if k < 8: a("s_barrier")
    a("s_branch %s_mma" % name)
    a.label("%s_A0" % name)
    emit_code_prefetch(a, name)
    a("s_load_dwordx4 s[64:67], s[0:1], 8")
    a("s_load_dwordx2 s[76:77], s[0:1], 24")
    a("s_load_dwordx2 s[78:79], s[0:1], 64")
    mma_setup()
    loader_setup(); loader_setup2()
    a("s_waitcnt lgkmcnt(0)")
    srds_main()
    srd(a, 68, 66, 2048 * 576 * 2)
    a("s_mov_b32 s88, s64"); a("s_mov_b32 s89, s65")
    srd(a, 64, 88, 2048 * 576 * 2)
    srd(a, 72, 76, 576 * 8)
    stamp_setup(a, 1); stamp(a, 0)
    def gran_addr():
        a("v_lshrrev_b32 v10, 4, v2")
        a("s_lshl_b32 s36, s25, 1")
        a("v_add_u32 v11, s36, v10")
        a("v_and_b32 v11, 3, v11")
        a("v_lshl_add_u32 v11, v11, 4, v3")
        a("v_lshlrev_b32 v94, 3, v11")
        a("s_lshl_b32 s59, s22, 15")
        a("s_lshl_b32 s36, s24, 9")
        a("s_add_u32 s59, s59, s36")
        a("s_add_u32 s59, s59, 0x%x" % STATS2)
        a("s_lshl_b32 s36, s23, 1")
        a("s_add_u32 s36, s36, s25")
        a("s_lshl_b32 s36, s36, 10")
        a("s_add_u32 s58, s36, s59")
    gran_addr()
    a("v_mov_b32 v12, 0"); a("v_mov_b32 v13, 0x80000000")
    a("buffer_store_dwordx2 v[12:13], v94, s[12:15], s58 offen sc1")
    a("s_lshl_b32 s36, s22, 4")
    a("s_add_u32 s36, s36, s23")
    a("s_lshl_b32 s36, s36, 8")
    a("s_add_u32 s97, s36, 0x%x" % ZFLG)
    a("v_mov_b32 v10, %d" % LC)
    a("v_mov_b32 v12, 0"); a("v_mov_b32 v13, 0")
    a("s_mov_b64 exec, 1")
    a("buffer_store_dword v12, v12, s[12:15], s97 offen sc1")
    a("buffer_store_dword v12, v12, s[12:15], s97 offen offset:%d sc1" % PFL)
    a("s_lshl_b32 s36, s2, 7")
    a("s_add_u32 s37, s36, 0x%x" % XFLG)
    a("s_add_u32 s36, s36, 0x%x" % CFLG)
    a("buffer_store_dword v12, v12, s[12:15], s37 offen sc1")
    a("buffer_store_dword v12, v12, s[12:15], s36 offen sc1")
    a("s_mov_b64 exec, -1")
    a("ds_write_b64 v10, v[12:13]")
    a("ds_write_b64 v10, v[12:13] offset:8")
    a("ds_write_b64 v10, v[12:13] offset:16")
    a("ds_write_b64 v10, v[12:13] offset:24")
    mma_addr(0)
    a("s_mov_b32 s33, 0")
    a("s_waitcnt lgkmcnt(0)")
    a("s_barrier")
    stamp(a, 1)
    a.label("%s_mma" % name)
    core.prime(0, core.reads(0, 0))
    trk.drain()
    nocs = [False]
    def mfmas(buf):
        L = []
        for ft in range(5):
            A = core.F(buf, ft)
            for tt in range(4 if ft < 4 else 2):
                c = core.accr(ft, tt); B = core.T(buf, tt)
                L.append(("v_mfma_f32_16x16x32_bf16 %s, %s, %s, %s" % (vr(c), vr(A), vr(B), vr(c)), list(range(A, A + 4)) + list(range(B, B + 4))))
            if not nocs[0]: L.append(("v_mfma_f32_16x16x32_bf16 %s, %s, %s, %s" % (vr(CS + 4 * ft), vr(A), vr(ONE), vr(CS + 4 * ft)), list(range(A, A + 4))))
        return L
    def phase(buf, pend):
        for (m, regs) in mfmas(buf):
            trk.need(regs)
            a(m)
            while pend:
                k, t = pend.pop(0)
                if k == "x":
                    a(t)
                    if t.startswith("s_"): continue
                else:
                    a(t[0]); trk.issue(t[1])
                break
        for k, t in pend:
            if k == "x": a(t)
            else: a(t[0]); trk.issue(t[1])
    def iteration(vw=True):
        if vw: a("s_waitcnt vmcnt(0)")
        a("s_barrier")
        rd = [("r", t) for t in core.reads(1, 1)]
        upd = ["s_add_u32 s27, s27, %d" % SLOT, "s_cmp_eq_u32 s27, %d" % (R * SLOT), "s_cselect_b32 s27, 0, s27"]
        tail = ["v_add_u32 v%d, s27, v%d" % (d, s_) for d, s_ in ((vTa[0], bTa[0]), (vF, bF), (vTb[0], bTb[0]), (vFh, bFh))]
        phase(0, rd[:1] + [("x", u) for u in upd] + rd[1:] + [("x", u) for u in tail])
        rd = [("r", t) for t in core.reads(0, 0)]
        tail = ["v_add_u32 v%d, s27, v%d" % (d, s_) for d, s_ in ((vTa[1], bTa[1]), (vTb[1], bTb[1]))] + ["s_add_u32 s33, s33, 1"]
        phase(1, rd + [("x", u) for u in tail])
    a.label("%s_cloop" % name)
    lb = len(a.lines); iteration(); st = copy.deepcopy(trk.out); del a.lines[lb:]; trk.out = copy.deepcopy(st)
    iteration()
    assert [sorted(x) for x in trk.out] == [sorted(x) for x in st]
    a("s_cmp_lt_u32 s33, 9")
    a("s_cbranch_scc1 %s_cloop" % name)
    trk.drain()
    stamp(a, 2)
    MR = 100; T = 72; ZP = 16
    def epi_in():
        gelu_consts(a)
        a("s_lshl_b32 s36, s24, 9")
        a("s_lshl_b32 s37, s25, 8")
        a("s_add_u32 s38, s36, s37")
        a("s_xor_b32 s37, s37, 256")
        a("s_add_u32 s39, s36, s37")
        a("v_lshlrev_b32 v10, 3, v3")
        a("v_add_u32 v11, s38, v10")
        a("ds_read_b64 %s, v11 offset:%d" % (vr(MR, 2), RST))
        a("ds_read_b64 %s, v11 offset:%d" % (vr(MR + 2, 2), RST + 128))
        a("v_add_u32 v11, s39, v10")
        a("ds_read_b64 %s, v11 offset:%d" % (vr(MR + 4, 2), RST))
        a("ds_read_b64 %s, v11 offset:%d" % (vr(MR + 6, 2), RST + 128))
        a("s_waitcnt lgkmcnt(0)")
    S = [108, 110, 52, 54]; Q = [109, 111, 53, 55]
    def gelu_ft(ft, stats):
        tts = range(4 if ft < 4 else 2)
        a("s_call_b64 s[34:35], %s_gsub%d" % (name, ft))
        if stats:
            for d in range(2):
                for tt in tts:
                    p = ZP + 2 * tidx(ft, tt) + d
                    a("v_dot2_f32_bf16 v%d, v%d, v%d, v%d" % (S[tt], p, ONE, S[tt]))
                    a("v_dot2_f32_bf16 v%d, v%d, v%d, v%d" % (Q[tt], p, p, Q[tt]))
    a("s_cmp_eq_u32 s98, 0")
    a("s_cbranch_scc1 %s_A1" % name)
    a("s_barrier")
    a("s_load_dwordx2 s[94:95], s[0:1], 80")
    a("s_load_dwordx2 s[92:93], s[0:1], 72")
    epi_in()
    srd(a, 76, 94, 2304 * 576 * 2)
    srd(a, 28, 92, 2048 * 2)
    for ft in range(5): gelu_ft(ft, False)
    Z1R = 200; BI = 236
    for r_ in range(36): a("v_mov_b32 v%d, v%d" % (Z1R + r_, ZP + r_))
    stamp(a, 3)
    a("s_mov_b32 s40, 0x%x" % WOT)
    for r in range(ACC, ACC + 72): a("v_mov_b32 v%d, 0" % r)
    a("v_lshrrev_b32 v10, 2, v2")
    a("v_lshlrev_b32 v10, 5, v10")
    a("v_and_b32 v11, 3, v2")
    a("v_lshl_add_u32 v10, v11, 3, v10")
    a("v_add_u32 v10, %d, v10" % (RB + TREG))
    a("s_mul_i32 s26, s25, 10240")
    a("v_add_u32 v%d, s26, v10" % bF)
    a("v_add_u32 v%d, 8192, v10" % bFh)
    core.FS = 32; core.FT = 2048
    mma_addr(0)
    a("s_mov_b32 s33, 0")
    stamp(a, 4)
    a("s_barrier")
    stamp(a, 5)
    core.prime(0, core.reads(0, 0))
    trk.drain()
    nocs[0] = True
    a.label("%s_gloop" % name)
    lb = len(a.lines); iteration(False); st = copy.deepcopy(trk.out); del a.lines[lb:]; trk.out = copy.deepcopy(st)
    iteration(False)
    assert [sorted(x) for x in trk.out] == [sorted(x) for x in st]
    a("s_cmp_lg_u32 s33, 2")
    a("s_cbranch_scc1 %s_ghkA" % name)
    for n in range(3):
        a("buffer_load_dwordx4 %s, v%d, s[76:79], 0 offen" % (vr(100 + 4 * n), 246 + n))
    a("s_lshl_b32 s36, s22, 7")
    a("s_lshl_b32 s37, s24, 6")
    a("s_add_u32 s36, s36, s37")
    a("v_lshlrev_b32 v11, 1, v3")
    a("s_lshl_b32 s37, s25, 6")
    a("s_lshl_b32 s38, s36, 1")
    a("s_add_u32 s39, s38, s37")
    a("s_xor_b32 s37, s37, 64")
    a("s_add_u32 s36, s38, s37")
    a("buffer_load_ushort v96, v11, s[28:31], s39 offen")
    a("buffer_load_ushort v97, v11, s[28:31], s39 offen offset:32")
    a("buffer_load_ushort v98, v11, s[28:31], s36 offen")
    a("buffer_load_ushort v99, v11, s[28:31], s36 offen offset:32")
    a.label("%s_ghkA" % name)
    a("s_cmp_lg_u32 s33, 6")
    a("s_cbranch_scc1 %s_ghk0" % name)
    a("s_waitcnt vmcnt(0)")
    for n in range(3):
        a("buffer_store_dwordx4 %s, v%d, s[12:15], s40 offen sc1" % (vr(100 + 4 * n), 243 + n))
    for tt in range(4): a("v_lshlrev_b32 v%d, 16, v%d" % (BI + 2 * tt, 96 + tt))
    a.label("%s_ghk0" % name)
    a("s_cmp_lg_u32 s33, 9")
    a("s_cbranch_scc1 %s_ghk" % name)
    a("s_waitcnt vmcnt(0)")
    a("v_mov_b32 v10, %d" % (LC + 8))
    a("v_mov_b32 v11, 1")
    a("s_mov_b64 exec, 1")
    a("ds_add_rtn_u32 v12, v10, v11")
    a("s_waitcnt lgkmcnt(0)")
    a("v_readfirstlane_b32 s36, v12")
    a("s_cmp_lg_u32 s36, 3")
    a("s_cbranch_scc1 %s_nokvs" % name)
    a("s_lshl_b32 s36, s2, 7")
    a("s_add_u32 s36, s36, 0x%x" % XFLG)
    a("v_mov_b32 v10, 0")
    a("buffer_store_dword v11, v10, s[12:15], s36 offen sc1")
    a.label("%s_nokvs" % name)
    a("s_mov_b64 exec, -1")
    a.label("%s_ghk" % name)
    a("s_cmp_lt_u32 s33, 32")
    a("s_cbranch_scc1 %s_gloop" % name)
    trk.drain()
    stamp(a, 6)
    G3.emit_k2_epilogue2(a, core, Z1R, BI, " sc1")
    stamp(a, 7)
    a("s_setprio 3")
    a("s_lshl_b32 s36, s22, 4")
    a("s_add_u32 s36, s36, s23")
    a("s_lshl_b32 s36, s36, 8")
    a("s_add_u32 s97, s36, 0x%x" % (ZFLG + PFL))
    c_common()
    a("v_lshlrev_b32 v14, 4, v2")
    a("s_mul_i32 s26, s22, %d" % (36 * 8192))
    a("s_lshl_b32 s24, s3, 12")
    a("s_add_u32 s26, s26, s24")
    a("s_add_u32 s26, s26, 0x%x" % PIMG)
    a("s_mul_i32 s27, s23, %d" % (18 * 20480))
    a("s_mul_i32 s25, s3, 5120")
    a("s_add_u32 s27, s27, s25")
    a("s_add_u32 s27, s27, 0x%x" % WOT)
    a("s_add_u32 s25, s25, %d" % CTREG)
    a("v_and_b32 v28, 15, v2")
    a("v_lshlrev_b32 v30, 7, v2")
    a("v_mov_b32 v26, %d" % LC)
    a("v_mov_b32 v27, 1")
    a("s_waitcnt vmcnt(0)")
    a("s_mov_b64 exec, 1")
    a("ds_add_rtn_u32 v29, v26, v27 offset:16")
    a("s_waitcnt lgkmcnt(0)")
    a("v_readfirstlane_b32 s36, v29")
    a("s_cmp_lg_u32 s36, 3")
    a("s_cbranch_scc1 %s_nops" % name)
    a("v_mov_b32 v29, 0")
    a("buffer_store_dword v27, v29, s[12:15], s97 offen sc1")
    a.label("%s_nops" % name)
    a("s_mov_b64 exec, -1")
    a("s_mov_b32 s34, 0")
    a.label("%s_cw" % name)
    a("ds_read_b32 v29, v26 offset:16")
    a("s_add_u32 s34, s34, 1")
    a("s_waitcnt lgkmcnt(0)")
    a("v_readfirstlane_b32 s36, v29")
    a("s_cmp_gt_u32 s34, %d" % (SPIN_MAX * 20))
    a("s_cbranch_scc1 %s_cwx" % name)
    a("s_cmp_ge_u32 s36, 4")
    a("s_cbranch_scc1 %s_cwx" % name)
    a("s_sleep 1")
    a("s_branch %s_cw" % name)
    a.label("%s_cwx" % name)
    def cF(off, soff):
        a("s_add_u32 s36, s25, %s" % off)
        a("s_mov_b32 m0, s36")
        a("s_add_u32 s37, %s, 4096" % soff)
        for n in range(4):
            a("buffer_load_dwordx4 v14, s[12:15], %s offen offset:%d sc1 lds" % (soff, n * 1024))
        a("s_add_u32 s36, s36, 4096")
        a("s_mov_b32 m0, s36")
        a("s_nop 0")
        a("buffer_load_dwordx4 v14, s[12:15], s37 offen sc1 lds")
    def cT(off, soff):
        a("s_add_u32 s35, s24, %s" % off)
        a("s_mov_b32 m0, s35")
        a("s_nop 0")
        for n in range(4):
            a("buffer_load_dwordx4 v14, s[12:15], %s offen offset:%d sc1 lds" % (soff, n * 1024))
    a("s_add_u32 s38, s27, 20480")
    cF(str(C0), "s27"); cF(str(C0 + CSL), "s38")
    a("s_mov_b32 s34, 0")
    a("s_cmp_lg_u32 s3, 0")
    a("s_cbranch_scc1 %s_cpl" % name)
    a("v_lshlrev_b32 v28, 8, v28")
    a("s_lshr_b32 s39, s22, 1")
    a("s_lshl_b32 s39, s39, 12")
    a("s_add_u32 s39, s39, 0x%x" % (ZFLG + PFL))
    a.label("%s_cpz" % name)
    a("buffer_load_dword v29, v28, s[12:15], s39 offen sc1")
    a("s_add_u32 s34, s34, 1")
    a("s_waitcnt vmcnt(0)")
    a("v_cmp_ne_u32 vcc, 1, v29")
    a("s_cmp_gt_u32 s34, %d" % SPIN_MAX)
    a("s_cbranch_scc1 %s_cpzx" % name)
    a("s_cbranch_vccz %s_cpzx" % name)
    a("s_sleep 8")
    a("s_branch %s_cpz" % name)
    a.label("%s_cpzx" % name)
    a("ds_write_b32 v26, v27 offset:24")
    a("s_branch %s_cgo" % name)
    a.label("%s_cpl" % name)
    a("ds_read_b32 v29, v26 offset:24")
    a("s_add_u32 s34, s34, 1")
    a("s_waitcnt lgkmcnt(0)")
    a("v_readfirstlane_b32 s36, v29")
    a("s_cmp_gt_u32 s34, %d" % (SPIN_MAX * 20))
    a("s_cbranch_scc1 %s_cgo" % name)
    a("s_cmp_lg_u32 s36, 0")
    a("s_cbranch_scc1 %s_cgo" % name)
    a("s_sleep 2")
    a("s_branch %s_cpl" % name)
    a.label("%s_cgo" % name)
    stamp(a, 8)
    a("s_add_u32 s38, s26, 16384")
    cT(str(C0), "s26"); cT(str(C0 + CSL), "s38")
    a("s_add_u32 s26, s26, 32768")
    a("s_add_u32 s27, s27, 40960")
    a("s_mov_b32 s33, %d" % RB)
    def cissue():
        cT("s33", "s26"); cF("s33", "s27")
        a("s_add_u32 s26, s26, 16384")
        a("s_add_u32 s27, s27, 20480")
        a("s_add_u32 s33, s33, %d" % CSL)
        a("s_cmp_eq_u32 s33, %d" % CW)
        a("s_cselect_b32 s33, %d, s33" % RB)
    a("s_waitcnt vmcnt(4)")
    a("s_barrier")
    cissue(); cissue()
    a("s_waitcnt vmcnt(18)")
    a("s_barrier")
    a("s_mov_b32 s34, 0")
    a.label("%s_clloop" % name)
    cissue()
    a("s_lshl_b32 s38, s3, 8")
    a("s_add_u32 s38, s38, s34")
    a("s_cmp_eq_u32 s38, 13")
    a("s_cbranch_scc1 %s_cyc" % name)
    a("s_cmp_lg_u32 s38, 10")
    a("s_cbranch_scc1 %s_cl1" % name)
    a("s_mov_b32 s38, 0x%x" % (CFLG + 0))
    a("buffer_load_dword v32, v30, s[12:15], s38 offen sc1")
    a("s_mov_b32 s38, 0x%x" % (CFLG + 8192))
    a("buffer_load_dword v33, v30, s[12:15], s38 offen sc1")
    a("s_mov_b32 s38, 0x%x" % (CFLG + 16384))
    a("buffer_load_dword v34, v30, s[12:15], s38 offen sc1")
    a("s_mov_b32 s38, 0x%x" % (CFLG + 24576))
    a("buffer_load_dword v35, v30, s[12:15], s38 offen sc1")
    a("s_waitcnt vmcnt(22)")
    a("s_branch %s_cl2" % name)
    a.label("%s_cl1" % name)
    a("s_waitcnt vmcnt(18)")
    a.label("%s_cl2" % name)
    a("s_barrier")
    a("s_add_u32 s34, s34, 1")
    a("s_cmp_lt_u32 s34, 14")
    a("s_cbranch_scc1 %s_clloop" % name)
    a("s_branch %s_cyx" % name)
    a.label("%s_cyc" % name)
    a("s_mov_b32 s39, 0")
    a.label("%s_cy" % name)
    a("v_and_b32 v32, v32, v33")
    a("v_and_b32 v34, v34, v35")
    a("v_and_b32 v32, v32, v34")
    a("v_cmp_eq_u32 vcc, 1, v32")
    a("s_nop 1")
    a("v_cndmask_b32 v32, 0, 16, vcc")
    a("v_cmp_gt_u32 vcc, 16, v32")
    a("s_add_u32 s39, s39, 1")
    a("s_cmp_gt_u32 s39, %d" % SPIN_MAX)
    a("s_cbranch_scc1 %s_cl1" % name)
    a("s_cbranch_vccz %s_cl1" % name)
    a("s_sleep 32")
    a("s_mov_b32 s38, 0x%x" % (CFLG + 0))
    a("buffer_load_dword v32, v30, s[12:15], s38 offen sc1")
    a("s_mov_b32 s38, 0x%x" % (CFLG + 8192))
    a("buffer_load_dword v33, v30, s[12:15], s38 offen sc1")
    a("s_mov_b32 s38, 0x%x" % (CFLG + 16384))
    a("buffer_load_dword v34, v30, s[12:15], s38 offen sc1")
    a("s_mov_b32 s38, 0x%x" % (CFLG + 24576))
    a("buffer_load_dword v35, v30, s[12:15], s38 offen sc1")
    a("s_waitcnt vmcnt(0)")
    a("s_branch %s_cy" % name)
    a.label("%s_cyx" % name)
    a("v_lshrrev_b32 v3, 3, v2")
    a("v_and_b32 v4, 7, v2")
    a("v_lshlrev_b32 v4, 4, v4")
    a("s_mul_i32 s33, s52, 144")
    a("s_mul_i32 s34, s53, 80")
    a("s_lshl_b32 s35, s22, 7")
    a("s_add_u32 s35, s35, 0x%x" % YT)
    for n in range(3):
        a("s_add_u32 s36, s3, %d" % (4 * n))
        if n == 2: a("s_min_u32 s36, s36, 9")
        a("s_lshl_b32 s37, s36, 3")
        a("s_add_u32 s38, s37, s33")
        if n < 2: a("s_add_u32 s38, s38, s34")
        a("v_add_u32 v5, s38, v3")
        a("v_lshl_add_u32 v5, v5, 12, v4")
        a("s_lshl_b32 s36, s36, 10")
        a("s_add_u32 s36, s36, %d" % YOFF)
        a("s_mov_b32 m0, s36")
        a("s_nop 0")
        a("buffer_load_dwordx4 v5, s[12:15], s35 offen sc1 lds")
    fin_loads()
    a("s_waitcnt vmcnt(%d)" % (9 + 7))
    a("s_barrier")
    a("s_waitcnt vmcnt(7)")
    a("s_barrier")
    a("s_barrier")
    a("s_setprio 0")
    a("s_waitcnt vmcnt(0)")
    a("s_branch %s_cfin" % name)
    a.label("%s_A1" % name)
    a("s_setprio 2")
    vmA = VmTracker(a)
    PB = 132
    def aux_head():
        epi_in()
        for tt in range(4):
            a("v_mov_b32 v%d, 0" % S[tt]); a("v_mov_b32 v%d, 0" % Q[tt])
    def aux_pub():
        a("s_nop 2")
        emit_xg_reduce(a, S + Q, 72)
        a("v_lshrrev_b32 v10, 4, v2")
        for g in range(1, 4):
            a("v_cmp_eq_u32 vcc, %d, v10" % g)
            a("s_nop 1")
            a("v_cndmask_b32 v%d, v%d, v%d, vcc" % (S[0], S[0], S[g]))
            a("v_cndmask_b32 v%d, v%d, v%d, vcc" % (Q[0], Q[0], Q[g]))
        a("v_and_b32 v%d, 0x7fffffff, v%d" % (Q[0], Q[0]))
        a("buffer_store_dwordx2 v[%d:%d], v94, s[12:15], s58 offen sc1" % (S[0], Q[0]))
    chunks = [capture(aux_head) + capture(gelu_ft, 0, True), capture(gelu_ft, 1, True), capture(gelu_ft, 2, True),
              capture(gelu_ft, 3, True), capture(gelu_ft, 4, True) + capture(aux_pub)]
    def shifted(lines, off):
        out = []
        for l in lines:
            l = re.sub(r"v\[(\d+):(\d+)\]", lambda m: "v[%d:%d]" % (int(m.group(1)) + off, int(m.group(2)) + off), l)
            l = re.sub(r"\bv(\d+)\b", lambda m: "v%d" % (int(m.group(1)) + off), l)
            out.append(l)
        return out
    def kv_pass():
        for n in range(11): a("ds_read_b32 v%d, v254 offset:%d" % (128 + n, 144 * n))
        a("s_waitcnt lgkmcnt(4)")
        for n in range(8): a("ds_read_b32 v%d, v254 offset:%d" % (144 + n, 10240 + 144 * n))
        for n in range(4): a("v_mov_b32 v%d, v%d" % (156 + n, 248 + n))
        a("v_mov_b32 v168, v252"); a("v_mov_b32 v169, v253")
        a("s_waitcnt lgkmcnt(0)")
        a.lines.extend(shifted(capture(lambda: emit_kv_compute(a, wait=False, store=False)), 112))
        a("s_mov_b32 s41, 0x%x" % KVT)
        a("buffer_store_dwordx4 v[232:235], v124, s[12:15], s41 offen sc1")
        a("buffer_store_dwordx4 v[236:239], v125, s[12:15], s41 offen sc1")
    kvl = capture(kv_pass); nk = len(kvl)
    for k in range(9, 18):
        a("s_barrier")
        if k == 9:
            a("s_cmp_lg_u32 s3, 0")
            a("s_cbranch_scc1 %s_nosig" % name)
            a("v_mov_b32 v10, 1")
            a("s_lshl_b32 s36, s22, 2")
            a("v_mov_b32 v11, s36")
            a("s_mov_b64 exec, 1")
            a("buffer_atomic_add v10, v11, s[60:63], 0 offen sc1")
            a("s_mov_b64 exec, -1")
            a.label("%s_nosig" % name)
        g = k + 3
        dma = capture(lambda: (issueT(g), issueF(g))) if g < 18 else []
        comp = chunks[k - 9] if k - 9 < len(chunks) else []
        a.lines.extend(dma); a.lines.extend(comp)
        if k == 13: vmA.issue("pub", 1)
        if g < 18: vmA.issue("S%d" % g, 9)
        if k == 13:
            a("v_lshrrev_b32 v1, 3, v0")
            a("v_and_b32 v10, 7, v0")
            a("s_lshr_b32 s38, s2, 3")
            a("s_lshl_b32 s38, s38, 6")
            a("v_lshl_add_u32 v252, v10, 3, s38")
            a("s_and_b32 s39, s2, 7")
            a("s_mul_i32 s39, s39, 144")
            a("v_lshl_add_u32 v253, v1, 2, s39")
            a("v_lshlrev_b32 v11, 2, v253")
            a("buffer_load_dwordx4 v[248:251], v11, s[72:75], 0 offen")
            a("buffer_load_dwordx4 v[244:247], v11, s[72:75], 0 offen offset:512")
            vmA.issue("sk", 2)
            a("v_mul_u32_u24 v254, 1152, v10")
            a("v_lshl_add_u32 v254, v1, 2, v254")
            a("v_add_u32 v254, %d, v254" % KVL)
        if k == 15:
            vmA.wait(["sk"])
            a.lines.extend(kvl[:nk // 3])
        if k == 16: a.lines.extend(kvl[nk // 3:2 * nk // 3])
        if k == 17: a.lines.extend(kvl[2 * nk // 3:])
        if k == 14:
            srd(a, 92, 78, 2048 * 2048 * 2)
            a("v_lshrrev_b32 v10, 4, v2")
            a("v_lshlrev_b32 v10, 12, v10")
            a("v_lshl_add_u32 v10, v3, 4, v10")
            a("s_lshl_b32 s40, s22, 7")
            a("s_lshl_b32 s36, s3, 5")
            a("s_add_u32 s40, s40, s36")
            a("s_lshl_b32 s40, s40, 12")
            a("s_lshl_b32 s36, s23, 8")
            a("s_add_u32 s40, s40, s36")
            for n in range(8):
                a("buffer_load_dwordx4 v[240:243], v10, s[92:95], s40 offen")
                if n < 7: a("s_add_u32 s40, s40, 16384")
            vmA.issue("wp", 8)
            a("s_lshl_b32 s36, s22, 2")
            a("v_mov_b32 v97, s36")
            a("buffer_load_dword v96, v97, s[60:63], 0 offen sc1"); vmA.issue("cnt", 1)
        if k + 2 < 18 and k + 2 >= 12:
            vmA.wait(["S%d" % (k + 2)])
    a("s_barrier")
    stamp(a, 3)
    a("s_load_dwordx4 s[88:91], s[0:1], 32")
    Z2 = ZP
    a("v_and_b32 v4, 31, v2")
    a("v_lshlrev_b32 v4, 4, v4")
    a("v_lshrrev_b32 v10, 5, v2")
    a("v_lshl_add_u32 v4, v10, 10, v4")
    for q in range(8): a("s_add_u32 s%d, s59, %d" % ((52, 53, 42, 43, 40, 41, 38, 39)[q], 4096 * q))
    GB = 128
    def gather():
        for q in range(16):
            a("buffer_load_dwordx4 %s, v4, s[12:15], s%d offen offset:%d sc1" % (vr(GB + 4 * q), (52, 53, 42, 43, 40, 41, 38, 39)[q >> 1], 2048 * (q & 1)))
    a("s_waitcnt vmcnt(0)")
    gather()
    a("s_mov_b32 s33, 0")
    a("s_waitcnt vmcnt(0)")
    a.label("%s_chk" % name)
    a("v_subrev_u32 v11, 16, v96")
    for q in range(16):
        a("v_or3_b32 v11, v11, v%d, v%d" % (GB + 4 * q + 1, GB + 4 * q + 3))
    a("v_cmp_gt_i32 vcc, 0, v11")
    a("s_add_u32 s33, s33, 1")
    a("s_cmp_gt_u32 s33, %d" % SPIN_MAX)
    a("s_cbranch_scc1 %s_ok" % name)
    a("s_cbranch_vccz %s_ok" % name)
    a("s_sleep 32")
    a("buffer_load_dword v96, v97, s[60:63], 0 offen sc1")
    a("s_waitcnt vmcnt(0)")
    gather()
    a("s_waitcnt vmcnt(0)")
    a("s_branch %s_chk" % name)
    a.label("%s_ok" % name)
    stamp(a, 5)
    for st_ in (32, 16, 8, 4):
        for q in range(0, st_, 2):
            a("v_pk_add_f32 %s, %s, %s" % (vr(GB + q, 2), vr(GB + q, 2), vr(GB + q + st_, 2)))
    for e in range(4): a("v_mov_b32 v%d, v%d" % (72 + e, GB + e))
    a("s_nop 1")
    for e in range(4): a("v_permlane32_swap_b32 v%d, v%d" % (GB + e, 72 + e))
    a("s_nop 1")
    for e in range(4): a("v_add_f32 v%d, v%d, v%d" % (GB + e, GB + e, 72 + e))
    for h in range(2):
        emit_ln_finish(a, GB + 2 * h, GB + 2 * h + 1, 2304, GB + 8 + h, GB + 4 + 2 * h, GB + 12)
        a("v_mul_f32 v%d, -v%d, v%d" % (GB + 5 + 2 * h, GB + 8 + h, GB + 4 + 2 * h))
    a("v_and_b32 v10, 31, v2")
    a("s_lshl_b32 s36, s24, 9")
    a("v_lshl_add_u32 v10, v10, 4, s36")
    a("ds_write_b128 v10, %s offset:1024" % vr(GB + 4))
    a("s_lshl_b32 s37, s25, 8")
    a("s_add_u32 s38, s36, s37")
    a("s_xor_b32 s37, s37, 256")
    a("s_add_u32 s39, s36, s37")
    a("v_lshlrev_b32 v10, 3, v3")
    a("v_add_u32 v11, s38, v10")
    a("v_add_u32 v10, s39, v10")
    a("s_waitcnt lgkmcnt(0)")
    a("ds_read_b64 %s, v11 offset:1024" % vr(MR, 2))
    a("ds_read_b64 %s, v11 offset:1152" % vr(MR + 2, 2))
    a("ds_read_b64 %s, v10 offset:1024" % vr(MR + 4, 2))
    a("ds_read_b64 %s, v10 offset:1152" % vr(MR + 6, 2))
    a("v_lshrrev_b32 v10, 4, v2")
    a("v_lshrrev_b32 v11, 2, v2"); a("v_and_b32 v11, 1, v11"); a("v_lshlrev_b32 v11, 4, v11")
    a("v_lshrrev_b32 v5, 3, v2"); a("v_and_b32 v5, 1, v5"); a("v_lshl_add_u32 v11, v5, 2, v11")
    a("v_and_b32 v5, 3, v2"); a("v_add_u32 v11, v11, v5")
    a("v_and_b32 v5, 1, v10")
    a("v_lshl_add_u32 v11, v5, 3, v11")
    a("v_lshlrev_b32 v11, 5, v11")
    a("v_lshrrev_b32 v5, 1, v10")
    a("v_lshl_add_u32 v6, v5, 4, v11")
    a("s_lshl_b32 s33, s23, 5")
    a("s_lshl_b32 s36, s22, 1")
    a("s_add_u32 s33, s33, s36")
    a("s_add_u32 s33, s33, s24")
    a("s_mul_i32 s33, s33, 18432")
    if ZIMG: a("s_add_u32 s33, s33, 0x%x" % ZIMG)
    a("s_lshl_b32 s36, s25, 10")
    a("s_add_u32 s39, s33, s36")
    a("s_add_u32 s39, s39, 8192")
    a("s_mul_i32 s38, s25, 10240")
    a("s_add_u32 s33, s33, s38")
    a("s_add_u32 s37, s33, s36")
    a("s_xor_b32 s36, s36, 1024")
    a("s_add_u32 s38, s33, s36")
    a("s_add_u32 s33, s37, 4096")
    a("s_add_u32 s36, s38, 4096")
    def norm_pair(nA, ttA, nB, ttB, O):
        for q, (n, tt) in enumerate(((nA, ttA), (nB, ttB))):
            for d in range(2):
                z = Z2 + 2 * n + d; t = T + 4 * q + 2 * d
                a("v_lshlrev_b32 v%d, 16, v%d" % (t, z))
                a("v_and_b32 v%d, 0xffff0000, v%d" % (t + 1, z))
        for q, (n, tt) in enumerate(((nA, ttA), (nB, ttB))):
            for d in range(2):
                t = T + 4 * q + 2 * d
                a("v_pk_fma_f32 %s, %s, %s, %s op_sel:[0,0,1] op_sel_hi:[1,0,1]" % (vr(t, 2), vr(t, 2), vr(MR + 2 * tt, 2), vr(MR + 2 * tt, 2)))
        for q in range(2):
            for d in range(2):
                t = T + 4 * q + 2 * d
                a("v_cvt_pk_bf16_f32 v%d, v%d, v%d" % (O + 2 * q + d, t, t + 1))
        a("s_nop 1")
        a("v_permlane16_swap_b32 v%d, v%d" % (O, O + 2))
        a("v_permlane16_swap_b32 v%d, v%d" % (O + 1, O + 3))
    a("s_waitcnt lgkmcnt(0)")
    cnt = 0
    for ft in range(4):
        for pp in range(2):
            O = 200 + 4 * cnt; cnt += 1
            norm_pair(tidx(ft, 2 * pp), 2 * pp, tidx(ft, 2 * pp + 1), 2 * pp + 1, O)
            a("s_nop 0")
            a("buffer_store_dwordx4 %s, v6, s[12:15], s%d offen offset:%d sc1" % (vr(O), ((37, 38), (33, 36))[ft >> 1][pp], (ft & 1) * 2048))
    O = 200 + 4 * cnt
    norm_pair(16, 0, 17, 1, O)
    a("s_nop 0")
    a("buffer_store_dwordx4 %s, v6, s[12:15], s39 offen sc1" % vr(O))
    stamp(a, 6)
    a("s_setprio 3")
    srd(a, 8, 78, 2048 * 2048 * 2)
    a("v_lshrrev_b32 v3, 3, v2")
    a("s_lshl_b32 s24, s3, 5")
    a("v_add_u32 v3, s24, v3")
    a("v_and_b32 v4, 7, v2")
    a("v_lshrrev_b32 v6, 4, v2")
    a("v_xor_b32 v6, v6, v4")
    a("v_lshlrev_b32 v6, 4, v6")
    a("v_lshl_add_u32 v10, v3, 12, v6")
    a("v_xor_b32 v11, 64, v10")
    a("v_add_u32 v11, %d, v11" % (32768 - 1024))
    a("v_add_u32 v12, %d, v10" % (2 * (32768 - 1024)))
    a("v_add_u32 v13, %d, v11" % (2 * (32768 - 1024)))
    a("v_lshlrev_b32 v14, 4, v2")
    a("s_lshl_b32 s26, s22, 19")
    a("s_mul_i32 s27, s23, %d" % (32 * 18432))
    a("s_lshl_b32 s24, s3, 12")
    a("s_add_u32 s27, s27, s24")
    if ZIMG: a("s_add_u32 s27, s27, 0x%x" % ZIMG)
    a("s_lshl_b32 s25, s3, 9")
    a("s_sub_u32 s32, s25, s24")
    a("s_add_u32 s32, s32, 16384")
    a("s_add_u32 s24, s24, %d" % RB)
    a("s_waitcnt vmcnt(0) lgkmcnt(0)")
    a("v_mov_b32 v26, %d" % LC)
    a("v_mov_b32 v27, 1")
    a("s_mov_b64 exec, 1")
    a("ds_add_rtn_u32 v28, v26, v27")
    a("s_waitcnt lgkmcnt(0)")
    a("v_readfirstlane_b32 s36, v28")
    a("s_cmp_lg_u32 s36, 3")
    a("s_cbranch_scc1 %s_nozs" % name)
    a("v_mov_b32 v28, 0")
    a("buffer_store_dword v27, v28, s[12:15], s97 offen sc1")
    a.label("%s_nozs" % name)
    a("s_mov_b64 exec, -1")
    stamp(a, 7)
    srd(a, 16, 88, 576 * 2048 * 2)
    srd(a, 84, 90, 576 * 2)
    for g in range(4):
        a("s_add_u32 s35, s24, %d" % (g * SLOT))
        a("s_mov_b32 m0, s35")
        a("s_add_u32 s36, s26, %d" % (128 * g))
        for n in range(4):
            a("buffer_load_dwordx4 v%d, s[8:11], s36 offen offset:%d lds" % (10 + n, n * 1024))
    a("s_mov_b32 s34, 0")
    a("s_cmp_lg_u32 s3, 0")
    a("s_cbranch_scc1 %s_pl" % name)
    a("v_and_b32 v28, 15, v2")
    a("v_lshlrev_b32 v30, 2, v28")
    a("v_lshlrev_b32 v28, 12, v28")
    a("s_lshl_b32 s52, s23, 8")
    a("s_add_u32 s52, s52, 0x%x" % ZFLG)
    a.label("%s_pz0" % name)
    a("buffer_load_dword v31, v30, s[60:63], 0 offen sc1")
    a("s_add_u32 s34, s34, 1")
    a("s_waitcnt vmcnt(0)")
    a("v_cmp_gt_u32 vcc, 16, v31")
    a("s_cmp_gt_u32 s34, %d" % SPIN_MAX)
    a("s_cbranch_scc1 %s_pz" % name)
    a("s_cbranch_vccz %s_pz" % name)
    a("s_sleep 32")
    a("s_branch %s_pz0" % name)
    a.label("%s_pz" % name)
    a("buffer_load_dword v29, v28, s[12:15], s52 offen sc1")
    a("s_add_u32 s34, s34, 1")
    a("s_waitcnt vmcnt(0)")
    a("v_cmp_ne_u32 vcc, 1, v29")
    a("s_cmp_gt_u32 s34, %d" % SPIN_MAX)
    a("s_cbranch_scc1 %s_pzx" % name)
    a("s_cbranch_vccz %s_pzx" % name)
    a("s_sleep 8")
    a("s_branch %s_pz" % name)
    a.label("%s_pzx" % name)
    a("v_mov_b32 v27, 1")
    a("ds_write_b32 v26, v27 offset:4")
    a("s_branch %s_pgo" % name)
    a.label("%s_pl" % name)
    a("s_cmp_lg_u32 s3, 1")
    a("s_cbranch_scc1 %s_pl2" % name)
    a("v_subrev_u32 v253, 32, v253")
    a("v_subrev_u32 v254, 32, v254")
    a("v_add_u32 v253, 128, v253")
    a("v_add_u32 v254, 128, v254")
    a("v_lshlrev_b32 v1, 2, v253")
    a("buffer_load_dwordx4 v[248:251], v1, s[72:75], 0 offen")
    a("s_waitcnt vmcnt(0)")
    a("s_mov_b64 exec, 0xffffffff")
    a.lines.extend(kvl)
    a("s_mov_b64 exec, -1")
    a.label("%s_pl2" % name)
    a("ds_read_b32 v27, v26 offset:4")
    a("s_add_u32 s34, s34, 1")
    a("s_waitcnt lgkmcnt(0)")
    a("v_readfirstlane_b32 s36, v27")
    a("s_cmp_gt_u32 s34, %d" % (SPIN_MAX * 20))
    a("s_cbranch_scc1 %s_pgo" % name)
    a("s_cmp_lg_u32 s36, 0")
    a("s_cbranch_scc1 %s_pgo" % name)
    a("s_sleep 2")
    a("s_branch %s_pl2" % name)
    a.label("%s_pgo" % name)
    stamp(a, 8)
    for g in range(4):
        a("s_add_u32 s35, s24, %d" % (g * SLOT + TREG))
        a("s_mov_b32 m0, s35")
        a("s_add_u32 s36, s27, %d" % (18432 * g))
        a("s_add_u32 s37, s36, s32")
        for n in range(4):
            a("buffer_load_dwordx4 v14, s[12:15], s36 offen offset:%d sc1 lds" % (n * 1024))
        a("s_add_u32 s35, s35, s32")
        a("s_mov_b32 m0, s35")
        a("s_mov_b64 exec, 0xffffffff")
        a("buffer_load_dwordx4 v14, s[12:15], s37 offen sc1 lds")
        a("s_mov_b64 exec, -1")
    a("s_add_u32 s26, s26, 512")
    a("s_add_u32 s27, s27, %d" % (4 * 18432))
    a("s_mov_b32 s33, 0")
    a("s_lshl_b32 s43, s2, 2")
    a("s_add_u32 s43, s43, s3")
    a("s_and_b32 s53, s43, 1")
    a("s_sub_u32 s36, s43, 448")
    a("s_lshr_b32 s37, s43, 1")
    a("s_cmp_ge_u32 s43, 896")
    a("s_cselect_b32 s43, s36, s37")
    a("s_cselect_b32 s53, 2, s53")
    a("s_waitcnt vmcnt(15)")
    a("s_barrier")
    a("s_waitcnt vmcnt(10)")
    a("s_barrier")
    a("s_waitcnt vmcnt(5)")
    a("s_barrier")
    a("s_mov_b32 s34, 4")
    def issue2():
        a("s_add_u32 s35, s33, s24")
        a("s_mov_b32 m0, s35")
        a("s_add_u32 s36, s35, %d" % TREG)
        for n in range(4):
            a("buffer_load_dwordx4 v%d, s[8:11], s26 offen offset:%d lds" % (10 + n, n * 1024))
        a("s_mov_b32 m0, s36")
        a("s_add_u32 s37, s27, s32")
        for n in range(4):
            a("buffer_load_dwordx4 v14, s[12:15], s27 offen offset:%d sc1 lds" % (n * 1024))
        a("s_add_u32 s36, s36, s32")
        a("s_mov_b32 m0, s36")
        a("s_mov_b64 exec, 0xffffffff")
        a("buffer_load_dwordx4 v14, s[12:15], s37 offen sc1 lds")
        a("s_mov_b64 exec, -1")
        a("s_add_u32 s26, s26, 128")
        a("s_add_u32 s27, s27, 18432")
        a("s_add_u32 s33, s33, %d" % SLOT)
        a("s_cmp_eq_u32 s33, %d" % (R * SLOT))
        a("s_cselect_b32 s33, 0, s33")
    a.label("%s_lloop" % name)
    issue2()
    a("s_cmp_eq_u32 s34, 18")
    a("s_cbranch_scc1 %s_hk1" % name)
    a("s_cmp_eq_u32 s34, 21")
    a("s_cbranch_scc1 %s_hk2" % name)
    a("s_cmp_eq_u32 s34, 22")
    a("s_cbranch_scc1 %s_hk2g" % name)
    a.label("%s_lw9" % name)
    a("s_waitcnt vmcnt(9)")
    a.label("%s_lcont" % name)
    a("s_barrier")
    a("s_add_u32 s34, s34, 1")
    a("s_cmp_lt_u32 s34, 32")
    a("s_cbranch_scc1 %s_lloop" % name)
    a("s_branch %s_ldone" % name)
    a.label("%s_hk1" % name)
    a("s_cmp_lg_u32 s3, 0")
    a("s_cbranch_scc1 %s_lw9" % name)
    a("v_lshlrev_b32 v28, 7, v2")
    a("s_mov_b32 s52, 0x%x" % (XFLG + 0))
    a("buffer_load_dword v32, v28, s[12:15], s52 offen sc1")
    a("s_mov_b32 s52, 0x%x" % (XFLG + 8192))
    a("buffer_load_dword v33, v28, s[12:15], s52 offen sc1")
    a("s_mov_b32 s52, 0x%x" % (XFLG + 16384))
    a("buffer_load_dword v34, v28, s[12:15], s52 offen sc1")
    a("s_mov_b32 s52, 0x%x" % (XFLG + 24576))
    a("buffer_load_dword v35, v28, s[12:15], s52 offen sc1")
    a("s_waitcnt vmcnt(13)")
    a("s_branch %s_lcont" % name)
    a.label("%s_hk2" % name)
    a("s_cmp_lg_u32 s3, 0")
    a("s_cbranch_scc1 %s_lw9" % name)
    a("s_mov_b32 s52, 0")
    a.label("%s_hk2l" % name)
    a("v_and_b32 v32, v32, v33")
    a("v_and_b32 v34, v34, v35")
    a("v_and_b32 v32, v32, v34")
    a("v_cmp_eq_u32 vcc, 1, v32")
    a("s_nop 1")
    a("v_cndmask_b32 v32, 0, 16, vcc")
    a("v_cmp_gt_u32 vcc, 16, v32")
    a("s_add_u32 s52, s52, 1")
    a("s_cmp_gt_u32 s52, %d" % SPIN_MAX)
    a("s_cbranch_scc1 %s_lw9" % name)
    a("s_cbranch_vccz %s_lw9" % name)
    a("s_sleep 16")
    a("s_mov_b32 s38, 0x%x" % (XFLG + 0))
    a("buffer_load_dword v32, v28, s[12:15], s38 offen sc1")
    a("s_mov_b32 s38, 0x%x" % (XFLG + 8192))
    a("buffer_load_dword v33, v28, s[12:15], s38 offen sc1")
    a("s_mov_b32 s38, 0x%x" % (XFLG + 16384))
    a("buffer_load_dword v34, v28, s[12:15], s38 offen sc1")
    a("s_mov_b32 s38, 0x%x" % (XFLG + 24576))
    a("buffer_load_dword v35, v28, s[12:15], s38 offen sc1")
    a("s_waitcnt vmcnt(0)")
    a("s_branch %s_hk2l" % name)
    a.label("%s_hk2g" % name)
    nconv = emit_conv_loads(a, " sc1")
    a("s_waitcnt vmcnt(%d)" % (9 + nconv))
    a("s_branch %s_lcont" % name)
    a.label("%s_ldone" % name)
    a("s_waitcnt vmcnt(0)")
    a("s_barrier")
    a("s_mov_b32 s26, s53")
    a("s_and_b32 s27, s3, 1")
    a("s_mul_i32 s27, s27, %d" % CJ_SIZE)
    a("s_lshr_b32 s36, s3, 1")
    a("s_mul_i32 s36, s36, %d" % SLOT)
    a("s_add_u32 s27, s27, s36")
    a("s_add_u32 s27, s27, %d" % RB)
    def mid():
        a("s_barrier")
        a("s_setprio 0")
    sv = set(DBG); DBG.discard("stamp")
    lb_ = len(a.lines)
    emit_conv_job(a, name, mid)
    for n_ in range(lb_, len(a.lines)):
        if "buffer_store_dwordx2" in a.lines[n_]: a.lines[n_] += " sc1"
    DBG.update(sv)
    stamp(a, 9)
    c_common()
    cTa = [4, 4]; cTb = [6, 6]; cF_ = 8; cFh = 9
    kTa = 88; kTb = 90; kF = 92; kFh = 93
    a("v_and_b32 v3, 15, v2")
    a("v_lshrrev_b32 v10, 5, v2")
    a("v_lshlrev_b32 v10, 11, v10")
    a("v_bfe_u32 v11, v2, 4, 1")
    a("v_lshl_add_u32 v10, v11, 4, v10")
    a("v_lshl_add_u32 v10, v3, 5, v10")
    a("s_lshl_b32 s26, s3, 12")
    a("v_add_u32 v10, s26, v10")
    a("s_lshl_b32 s26, s53, 10")
    a("v_add_u32 v%d, s26, v10" % kTa)
    a("s_xor_b32 s26, s26, 1024")
    a("v_add_u32 v%d, s26, v10" % kTb)
    a("v_lshrrev_b32 v10, 2, v2")
    a("v_mul_u32_u24 v10, %d, v10" % CFS)
    a("v_and_b32 v11, 3, v2")
    a("v_lshl_add_u32 v10, v11, 3, v10")
    a("s_mul_i32 s26, s3, %d" % (32 * CFS))
    a("s_add_u32 s26, s26, %d" % CTREG)
    a("v_add_u32 v%d, s26, v10" % kF)
    a("v_add_u32 v%d, 128, v%d" % (kFh, kF))
    a("v_mov_b32 v26, %d" % LC)
    a("v_mov_b32 v27, 1")
    a("s_waitcnt vmcnt(0)")
    a("s_mov_b64 exec, 1")
    a("ds_add_rtn_u32 v28, v26, v27 offset:20")
    a("s_waitcnt lgkmcnt(0)")
    a("v_readfirstlane_b32 s36, v28")
    a("s_cmp_lg_u32 s36, 3")
    a("s_cbranch_scc1 %s_nocs" % name)
    a("s_lshl_b32 s36, s2, 7")
    a("s_add_u32 s36, s36, 0x%x" % CFLG)
    a("v_mov_b32 v28, 0")
    a("buffer_store_dword v27, v28, s[12:15], s36 offen sc1")
    a.label("%s_nocs" % name)
    a("s_mov_b64 exec, -1")
    fin_loads()
    core3 = G.Core(a, ACC, FB[0], FB[1], CFS, CTREG, cTa, cTb, cF_, cFh, TT=512)
    pairs = ((cTa[0], kTa), (cF_, kF), (cTb[0], kTb), (cFh, kFh))
    a("s_mov_b32 s27, %d" % C0)
    for d, s_ in pairs: a("v_add_u32 v%d, s27, v%d" % (d, s_))
    for r in range(ACC, ACC + 72): a("v_mov_b32 v%d, 0" % r)
    a("s_mov_b32 s33, 0")
    a("s_barrier")
    stamp(a, 10)
    core3.prime(0, core3.reads(0, 0))
    def citer(buf):
        core3.trk.drain()
        a("s_barrier")
        a("s_add_u32 s27, s27, %d" % CSL)
        a("s_cmp_eq_u32 s27, %d" % CW)
        a("s_cselect_b32 s27, %d, s27" % RB)
        pre = ["v_add_u32 v%d, s27, v%d" % (d, s_) for d, s_ in pairs]
        core3.phase(buf, core3.reads(1 - buf, 0), pre=pre)
    a.label("%s_ccloop" % name)
    citer(0); citer(1)
    a("s_add_u32 s33, s33, 1")
    a("s_cmp_lt_u32 s33, 9")
    a("s_cbranch_scc1 %s_ccloop" % name)
    core3.trk.drain()
    stamp(a, 11)
    a("s_mul_i32 s33, s3, %d" % (18 * 1024))
    a("s_add_u32 s33, s33, %d" % C0)
    a("v_lshlrev_b32 v10, 4, v2")
    a("v_add_u32 v11, s33, v10")
    a("s_nop 4")
    for n, (ft, tt) in enumerate(TILES):
        a("ds_write_b128 v11, %s offset:%d" % (vr(core3.accr(ft, tt)), 1024 * tidx(ft, tt)))
        if n in (7, 13): a("s_waitcnt lgkmcnt(4)")
    a("s_waitcnt lgkmcnt(0) vmcnt(0)")
    a.label("%s_cfin" % name)
    a("s_barrier")
    stamp(a, 12)
    a("v_lshlrev_b32 v10, 4, v2")
    a("v_lshrrev_b32 v11, 2, v2")
    a("v_lshlrev_b32 v11, 7, v11")
    a("v_and_b32 v12, 3, v2")
    a("v_lshl_add_u32 v11, v12, 3, v11")
    a("s_mov_b32 s33, 0xbfb8aa3b")
    PT = 16; YR = 64
    for s_ in range(3):
        b = 64 + 4 * s_
        if s_ == 2:
            a("s_cmp_ge_u32 s54, 2")
            a("s_cbranch_scc1 %s_rd" % name)
        a("v_add_u32 v4, s%d, v10" % (b + 2))
        a("v_add_u32 v5, s%d, v11" % (b + 1))
        for q in range(4):
            a("ds_read_b128 %s, v4 offset:%d" % (vr(PT + 16 * s_ + 4 * q), 18432 * q))
        a("ds_read_b64_tr_b16 %s, v5" % vr(YR + 2 * s_, 2))
    a.label("%s_rd" % name)
    T = 104
    for s_ in range(3):
        b = 64 + 4 * s_
        if s_ == 0: a("s_waitcnt lgkmcnt(5)")
        if s_ == 1: a("s_waitcnt lgkmcnt(0)")
        if s_ == 2:
            a("s_cmp_ge_u32 s54, 2")
            a("s_cbranch_scc1 %s_done" % name)
        o = PT + 16 * s_; X = XR + 2 * s_; Y = YR + 2 * s_; S_ = ST + 2 * s_
        for h in (0, 2):
            a("v_pk_add_f32 %s, %s, %s" % (vr(o + h, 2), vr(o + h, 2), vr(o + 4 + h, 2)))
            a("v_pk_add_f32 %s, %s, %s" % (vr(o + 8 + h, 2), vr(o + 8 + h, 2), vr(o + 12 + h, 2)))
        for h in (0, 2):
            a("v_pk_add_f32 %s, %s, %s" % (vr(o + h, 2), vr(o + h, 2), vr(o + 8 + h, 2)))
        rnd_pair(a, T + 20, o, o + 1); rnd_pair(a, T + 21, o + 2, o + 3)
        for r in range(4): a("v_mul_f32 v%d, s33, v%d" % (T + r, o + r))
        for r in range(4): a("v_exp_f32 v%d, v%d" % (T + r, T + r))
        a("v_lshlrev_b32 v%d, 16, v%d" % (T + 4, X)); a("v_and_b32 v%d, 0xffff0000, v%d" % (T + 5, X))
        a("v_lshlrev_b32 v%d, 16, v%d" % (T + 6, X + 1)); a("v_and_b32 v%d, 0xffff0000, v%d" % (T + 7, X + 1))
        for r in range(4): a("v_add_f32 v%d, 1.0, v%d" % (T + r, T + r))
        for r in range(4): a("v_rcp_f32 v%d, v%d" % (T + r, T + r))
        for r in range(4): a("v_sub_f32 v%d, v%d, v%d" % (T + 12 + r, T + 4 + r, S_))
        a("v_lshlrev_b32 v%d, 16, v%d" % (T + 8, Y)); a("v_and_b32 v%d, 0xffff0000, v%d" % (T + 9, Y))
        a("v_lshlrev_b32 v%d, 16, v%d" % (T + 10, Y + 1)); a("v_and_b32 v%d, 0xffff0000, v%d" % (T + 11, Y + 1))
        for r in range(4): a("v_mul_f32 v%d, v%d, v%d" % (o + r, o + r, T + r))
        rnd_pair(a, T + 20, T + 12, T + 13); rnd_pair(a, T + 21, T + 14, T + 15)
        rnd_pair(a, T + 22, o, o + 1); rnd_pair(a, T + 23, o + 2, o + 3)
        for r in range(4): a("v_mul_f32 v%d, v%d, v%d" % (T + 12 + r, T + 12 + r, S_ + 1))
        rnd_pair(a, T + 20, T + 12, T + 13); rnd_pair(a, T + 21, T + 14, T + 15)
        for r in range(4): a("v_mul_f32 v%d, v%d, v%d" % (T + 12 + r, T + 12 + r, T + 8 + r))
        rnd_pair(a, T + 20, T + 12, T + 13); rnd_pair(a, T + 21, T + 14, T + 15)
        for r in range(4): a("v_mul_f32 v%d, v%d, v%d" % (T + 12 + r, T + 12 + r, o + r))
        rnd_pair(a, T + 20, T + 12, T + 13); rnd_pair(a, T + 21, T + 14, T + 15)
        for r in range(4): a("v_add_f32 v%d, v%d, v%d" % (T + 12 + r, T + 12 + r, T + 4 + r))
        a("v_cvt_pk_bf16_f32 v%d, v%d, v%d" % (X, T + 12, T + 13))
        a("v_cvt_pk_bf16_f32 v%d, v%d, v%d" % (X + 1, T + 14, T + 15))
        a("buffer_store_dwordx2 %s, v13, s[28:31], s%d offen" % (vr(X, 2), b))
    a.label("%s_done" % name)
    stamp(a, 13)
    G.stamp_rt(a, 1)
    a.label("%s_end" % name)
    a("s_endpgm")
    for ft in range(5):
        a.label("%s_gsub%d" % (name, ft))
        tts = range(4 if ft < 4 else 2)
        emit_fold_gelu(a, [(128 + 4 * tidx(ft, tt), CS + 4 * ft, MR + 2 * tt, ZP + 2 * tidx(ft, tt)) for tt in tts], 72)
        a("s_setpc_b64 s[34:35]")
    return a.text(), kernel_desc(name, 256, 256), (name, 256, 512, 163840)

def gen_kf19(name="k1_kernel", R=4):
    a = Asm()
    RB = 4096; SLOT = 34816; TREG = 16384; FS = 288; RST = 0
    LDSB = RB + R * SLOT
    LC = 2048
    ZFLG = 0x2D00000; PFL = 128
    KVL = 143360; XFLG = 0x2D20000; CFLG = 0x2D30000
    C0 = 77824; CW = 151552; CSL = 36864; YOFF = 151552; CTREG = 16384; CFS = 160
    from gen3 import emit_conv_loads, emit_conv_job, CJ_SIZE
    def capture(f, *args):
        lb = len(a.lines); f(*args); out = a.lines[lb:]; del a.lines[lb:]; return out

    def c_common():
        a("s_load_dwordx2 s[4:5], s[0:1], 0")
        a("s_load_dwordx2 s[16:17], s[0:1], 88")
        a("s_and_b32 s20, s2, 7")
        a("s_lshr_b32 s21, s2, 3")
        a("s_and_b32 s22, s20, 3")
        a("s_lshl_b32 s22, s22, 3")
        a("s_and_b32 s23, s21, 7")
        a("s_add_u32 s22, s22, s23")
        a("s_lshr_b32 s23, s20, 2")
        a("s_lshl_b32 s23, s23, 2")
        a("s_lshr_b32 s24, s21, 3")
        a("s_add_u32 s23, s23, s24")
        a("s_lshr_b32 s52, s23, 1")
        a("s_and_b32 s53, s23, 1")
        a("s_lshl_b32 s54, s98, 2")
        a("s_add_u32 s54, s54, s3")
        a("s_waitcnt lgkmcnt(0)")
        srd(a, 8, 4, 2048 * 576 * 2)
        srd(a, 28, 16, 2048 * 576 * 2)
    XR = 200; ST = 208
    def fin_loads():
        a("v_and_b32 v3, 15, v2")
        a("v_lshrrev_b32 v10, 4, v2")
        a("v_mul_u32_u24 v13, 1152, v3")
        a("v_lshl_add_u32 v13, v10, 3, v13")
        a("v_lshlrev_b32 v12, 3, v3")
        for s_ in range(3):
            if s_ == 2:
                a("s_cmp_ge_u32 s54, 2")
                a("s_cbranch_scc1 %s_fl%d" % (name, fin_loads.cnt))
            b = 64 + 4 * s_
            if s_ < 2:
                a("s_add_u32 s36, s54, %d" % (8 * s_))
                a("s_lshr_b32 s37, s36, 2")
                a("s_and_b32 s38, s36, 3")
                a("s_mul_i32 s39, s53, 160")
                a("s_lshl_b32 s40, s37, 5")
                a("s_add_u32 s39, s39, s40")
            else:
                a("s_add_u32 s36, s54, 16")
                a("s_mov_b32 s37, 4")
                a("s_mov_b32 s38, s54")
                a("s_mov_b32 s39, 128")
            a("s_lshl_b32 s40, s53, 1")
            a("s_add_u32 s38, s38, s40")
            a("s_and_b32 s38, s38, 3")
            a("s_lshl_b32 s40, s22, 2")
            a("s_add_u32 s40, s40, s38")
            a("s_lshl_b32 s40, s40, 4")
            a("s_mul_i32 s%d, s40, 1152" % b)
            a("s_add_u32 s%d, s%d, s39" % (b, b))
            a("s_mul_i32 s39, s52, 288")
            a("s_add_u32 s%d, s%d, s39" % (b, b))
            a("s_lshl_b32 s%d, s37, 11" % (b + 1))
            a("s_lshl_b32 s39, s38, 5")
            a("s_add_u32 s%d, s%d, s39" % (b + 1, b + 1))
            a("s_add_u32 s%d, s%d, %d" % (b + 1, b + 1, YOFF))
            a("s_lshl_b32 s%d, s36, 10" % (b + 2))
            a("s_add_u32 s%d, s%d, %d" % (b + 2, b + 2, C0))
            a("s_lshl_b32 s40, s40, 3")
            a("s_add_u32 s40, s40, 0x%x" % STATS1)
            a("buffer_load_dwordx2 %s, v13, s[8:11], s%d offen" % (vr(XR + 2 * s_, 2), b))
            a("buffer_load_dwordx2 %s, v12, s[12:15], s40 offen sc1" % vr(ST + 2 * s_, 2))
        a.label("%s_fl%d" % (name, fin_loads.cnt))
        fin_loads.cnt += 1
    fin_loads.cnt = 0
    kernel_begin(a, name)
    a("s_load_dwordx2 s[80:81], s[0:1], 0")
    a("s_load_dwordx2 s[4:5], s[0:1], 56")
    a("s_load_dwordx2 s[6:7], s[0:1], 104")
    a("s_load_dwordx2 s[18:19], s[0:1], 96")
    a("s_cmp_ge_u32 s2, 256")
    a("s_cbranch_scc1 %s_end" % name)
    a("v_lshrrev_b32 v1, 6, v0")
    a("v_and_b32 v2, 63, v0")
    a("v_readfirstlane_b32 s3, v1")
    G2.tile_ij(a)
    a("s_lshr_b32 s98, s3, 2")
    a("s_mov_b32 s54x, 0".replace("s54x", "s99"))
    a("s_and_b32 s3, s3, 3")
    a("s_lshr_b32 s24, s3, 1")
    a("s_and_b32 s25, s3, 1")
    a("v_and_b32 v3, 15, v2")
    VT = 204; VF = 208
    def loader_setup():
        a("v_lshrrev_b32 v5, 3, v2")
        a("v_and_b32 v4, 7, v2")
        a("s_lshl_b32 s36, s3, 5")
        a("v_add_u32 v5, s36, v5")
        a("v_lshrrev_b32 v7, 4, v2")
        a("v_xor_b32 v7, v7, v4")
        a("v_mul_u32_u24 v6, 1152, v5")
        a("v_lshl_add_u32 v%d, v7, 4, v6" % VT)
        a("v_xor_b32 v%d, 64, v%d" % (VT + 1, VT))
        a("v_add_u32 v%d, %d, v%d" % (VT + 1, 9216 - 1024, VT + 1))
        a("v_add_u32 v%d, %d, v%d" % (VT + 2, 2 * (9216 - 1024), VT))
        a("v_add_u32 v%d, %d, v%d" % (VT + 3, 2 * (9216 - 1024), VT + 1))
        a("s_lshl_b32 s84, s3, 12")
        a("s_add_u32 s84, s84, %d" % RB)
        a("s_lshl_b32 s85, s3, 9")
        a("s_add_u32 s85, s85, %d" % (RB + TREG + 16384))
    def loader_setup2():
        for n in range(5):
            if n < 4:
                a("s_lshl_b32 s36, s3, 8")
                a("s_add_u32 s36, s36, %d" % (64 * n))
            else:
                a("s_lshl_b32 s36, s3, 5")
                a("s_add_u32 s36, s36, 1024")
            a("v_add_u32 v6, s36, v2")
            a("v_mul_u32_u24 v7, 3641, v6")
            a("v_lshrrev_b32 v7, 16, v7")
            a("v_mul_u32_u24 v8, 18, v7")
            a("v_sub_u32 v8, v6, v8")
            a("v_and_b32 v9, 35, v7")
            a("v_bfe_u32 v6, v7, 2, 2")
            a("v_lshl_add_u32 v9, v6, 3, v9")
            a("v_bfe_u32 v6, v7, 4, 1")
            a("v_lshl_add_u32 v9, v6, 2, v9")
            a("v_mul_u32_u24 v9, 9216, v9")
            a("v_lshl_add_u32 v%d, v8, 4, v9" % (VF + n))
            if 0 < n < 4: a("v_subrev_u32 v%d, %d, v%d" % (VF + n, 1024 * n, VF + n))
    def issueT(g):
        st = g % 9
        a("s_add_u32 s86, s84, %d" % ((g % R) * SLOT))
        a("s_mov_b32 m0, s86")
        a("s_add_u32 s87, s82, %d" % (128 * st))
        for n in range(4):
            a("buffer_load_dwordx4 v%d, s[28:31], s87 offen offset:%d lds" % (VT + n, 1024 * n))
    def issueF(g):
        st = g % 9
        a("s_add_u32 s86, s84, %d" % ((g % R) * SLOT + TREG))
        a("s_mov_b32 m0, s86")
        a("s_add_u32 s87, s83, %d" % (64 * 9216 * st + (4608 if g < 9 else 0)))
        for n in range(4):
            a("buffer_load_dwordx4 v%d, s[8:11], s87 offen offset:%d lds" % (VF + n, 1024 * n))
        a("s_add_u32 s86, s85, %d" % ((g % R) * SLOT))
        a("s_mov_b32 m0, s86")
        a("s_mov_b64 exec, 0xffffffff")
        a("buffer_load_dwordx4 v%d, s[8:11], s87 offen lds" % (VF + 4))
        a("s_mov_b64 exec, -1")
    def srds_main():
        srd(a, 28, 80, 2048 * 576 * 2)
        srd(a, 8, 4, 576 * 4608 * 2)
        srd(a, 12, 6, WS_BYTES)
        srd(a, 60, 18, 256)
        a("s_mul_i32 s82, s22, %d" % (128 * 1152))
        a("s_mul_i32 s83, s23, 288")
    ACC = 128; FB = [16, 52]; CS = 216; ONE = 236
    vTa = [4, 5]; vTb = [6, 7]; vF = 8; vFh = 9
    bTa = [88, 89]; bTb = [90, 91]; bF = 92; bFh = 93
    def mma_setup():
        a("v_lshrrev_b32 v10, 4, v2")
        a("v_lshrrev_b32 v11, 1, v3")
        a("v_xor_b32 v10, v10, v11")
        a("v_lshlrev_b32 v10, 4, v10")
        a("v_lshl_add_u32 v10, v3, 7, v10")
        a("s_lshl_b32 s26, s24, 13")
        a("s_add_u32 s26, s26, %d" % RB)
        a("v_add_u32 v10, s26, v10")
        a("s_lshl_b32 s26, s25, 12")
        a("v_add_u32 v%d, s26, v10" % bTa[0])
        a("s_xor_b32 s26, s26, 4096")
        a("v_add_u32 v%d, s26, v10" % bTb[0])
        a("v_xor_b32 v%d, 64, v%d" % (bTa[1], bTa[0]))
        a("v_xor_b32 v%d, 64, v%d" % (bTb[1], bTb[0]))
        a("v_lshrrev_b32 v10, 2, v2")
        a("v_mul_u32_u24 v10, %d, v10" % FS)
        a("v_and_b32 v11, 3, v2")
        a("v_lshl_add_u32 v10, v11, 3, v10")
        a("v_add_u32 v10, %d, v10" % (RB + TREG))
        a("s_mul_i32 s26, s25, 160")
        a("v_add_u32 v%d, s26, v10" % bF)
        a("v_add_u32 v%d, 128, v10" % bFh)
        for r in range(ACC, ACC + 72): a("v_mov_b32 v%d, 0" % r)
        for r in range(CS, CS + 20): a("v_mov_b32 v%d, 0" % r)
        for r in range(ONE, ONE + 4): a("v_mov_b32 v%d, 0x3f803f80" % r)
    def mma_addr(slot):
        a("s_mov_b32 s27, %d" % (slot * SLOT))
        for d, s_ in ((vTa[0], bTa[0]), (vTb[0], bTb[0]), (vTa[1], bTa[1]), (vTb[1], bTb[1]), (vF, bF), (vFh, bFh)):
            a("v_add_u32 v%d, s27, v%d" % (d, s_))
    core = G.Core(a, ACC, FB[0], FB[1], FS, TREG, vTa, vTb, vF, vFh)
    trk = core.trk
    a("s_cmp_eq_u32 s98, 0")
    a("s_cbranch_scc1 %s_A0" % name)
    a("s_setprio 3")
    loader_setup()
    a("s_waitcnt lgkmcnt(0)")
    srds_main()
    vm = VmTracker(a)
    def issue(g, vmx):
        issueT(g); issueF(g); vmx.issue("S%d" % g, 9)
    issueT(0)
    loader_setup2()
    issueF(0); vm.issue("S0", 9)
    issue(1, vm); issue(2, vm); issue(3, vm)
    a("s_add_u32 s3, s3, 4"); stamp_setup(a, 1); stamp(a, 0); a("s_sub_u32 s3, s3, 4")
    a("s_load_dwordx4 s[64:67], s[0:1], 8")
    a("s_load_dwordx2 s[76:77], s[0:1], 24")
    mma_setup()
    a("s_waitcnt lgkmcnt(0)")
    srd(a, 68, 66, 2048 * 576 * 2)
    a("s_mov_b32 s88, s64"); a("s_mov_b32 s89, s65")
    srd(a, 64, 88, 2048 * 576 * 2)
    srd(a, 72, 76, 576 * 8)
    def kv_dma():
        a("s_lshr_b32 s36, s2, 3")
        a("s_mul_i32 s36, s36, %d" % (64 * 1152))
        a("s_and_b32 s37, s2, 7")
        a("s_mul_i32 s37, s37, 144")
        a("s_add_u32 s36, s36, s37")
        for q in range(5):
            a("s_add_u32 s38, s3, %d" % (4 * q))
            if q == 4: a("s_min_u32 s38, s38, 18")
            isK = (q < 2); isV = (q > 2)
            a("s_sub_u32 s39, s38, 10")
            a("s_cmp_lt_u32 s38, 10")
            a("s_cselect_b32 s39, s38, s39")
            a("s_cselect_b32 s40, %d, 0" % ((-3 * 1152) & 0xffffffff))
            a("s_lshl_b32 s37, s39, 6")
            a("v_add_u32 v240, s37, v2")
            a("v_mul_u32_u24 v241, 7282, v240")
            a("v_lshrrev_b32 v241, 16, v241")
            a("v_mul_u32_u24 v242, 9, v241")
            a("v_sub_u32 v242, v240, v242")
            a("v_mul_u32_u24 v241, 1152, v241")
            a("v_lshl_add_u32 v241, v242, 4, v241")
            a("s_add_u32 s40, s40, s36")
            a("v_add_u32 v241, s40, v241")
            a("s_lshl_b32 s37, s38, 10")
            a("s_add_u32 s37, s37, %d" % KVL)
            a("s_mov_b32 m0, s37")
            if isK:
                a("s_nop 0")
                a("buffer_load_dwordx4 v241, s[64:67], 0 offen lds")
            elif isV:
                a("s_nop 0")
                a("buffer_load_dwordx4 v241, s[68:71], 0 offen lds")
            else:
                a("s_cmp_lt_u32 s38, 10")
                a("s_cbranch_scc1 %s_kd1" % name)
                a("buffer_load_dwordx4 v241, s[68:71], 0 offen lds")
                a("s_branch %s_kd2" % name)
                a.label("%s_kd1" % name)
                a("buffer_load_dwordx4 v241, s[64:67], 0 offen lds")
                a.label("%s_kd2" % name)
    RA = 96; XB = 112
    for r in range(RA, RA + 16): a("v_mov_b32 v%d, 0" % r)
    a("v_lshrrev_b32 v10, 4, v2")
    a("v_lshrrev_b32 v11, 1, v3")
    a("v_xor_b32 v10, v10, v11")
    a("v_lshlrev_b32 v10, 4, v10")
    a("v_lshl_add_u32 v10, v3, 7, v10")
    a("v_add_u32 v12, s84, v10")
    a("v_xor_b32 v13, 64, v12")
    def rs_rd(g):
        a("v_add_u32 v10, %d, v12" % ((g % R) * SLOT))
        a("v_add_u32 v11, %d, v13" % ((g % R) * SLOT))
        for h in range(2):
            for n in range(2):
                a("ds_read_b128 %s, v%d offset:%d" % (vr(XB + 8 * h + 4 * n), 10 + h, 2048 * n))
    def rs_do():
        for h in range(2):
            for n in range(2):
                x = XB + 8 * h + 4 * n
                a("v_mfma_f32_16x16x32_bf16 %s, %s, %s, %s" % (vr(RA + 4 * n), vr(ONE), vr(x), vr(RA + 4 * n)))
                a("v_mfma_f32_16x16x32_bf16 %s, %s, %s, %s" % (vr(RA + 8 + 4 * n), vr(x), vr(x), vr(RA + 8 + 4 * n)))
    def interleave(dma, comp, vmx=None):
        groups = []; cur = []
        for l in dma:
            cur.append(l)
            if "buffer_load" in l and not any("exec, 0xffffffff" in x for x in cur[-2:]):
                groups.append(cur); cur = []
            elif "exec, -1" in l:
                groups.append(cur); cur = []
        if cur: groups.append(cur)
        ns = max(1, len(groups))
        per = (len(comp) + ns - 1) // ns
        for g in groups:
            a.lines.extend(g)
            a.lines.extend(comp[:per]); comp = comp[per:]
        a.lines.extend(comp)
    vm.wait(["S0"])
    a("s_barrier")
    stamp(a, 1)
    rs_rd(0)
    vm.wait(["S1"])
    a("s_barrier")
    for k in range(9):
        a("s_waitcnt lgkmcnt(0)")
        dma = capture(lambda: (issueT(k + 3), issueF(k + 3))) if k >= 1 else []
        interleave(dma, capture(rs_do))
        if k >= 1: vm.issue("S%d" % (k + 3), 9)
        if k == 3:
            kv_dma(); vm.issue("KV", 5)
        if k < 8:
            rs_rd(k + 1)
        else:
            a("s_nop 7")
            a("v_lshrrev_b32 v10, 4, v2")
            a("v_lshrrev_b32 v11, 2, v3")
            a("v_and_b32 v12, 3, v3")
            for n in range(2):
                G_ = RA + 8 + 4 * n
                for r in range(1, 4):
                    a("v_cmp_eq_u32 vcc, %d, v12" % r)
                    a("s_nop 1")
                    a("v_cndmask_b32 v%d, v%d, v%d, vcc" % (G_, G_, G_ + r))
            ML = 112
            for n in range(2):
                emit_ln_finish(a, RA + 4 * n, RA + 8 + 4 * n, 576, ML + 2 * n, ML + 2 * n + 1, 120)
                a("v_mov_b32 v%d, v%d" % (117 + 2 * n, ML + 2 * n + 1))
                a("v_sub_f32 v%d, 0, v%d" % (116 + 2 * n, ML + 2 * n))
            a("s_lshl_b32 s35, s3, 8")
            a("v_lshlrev_b32 v13, 3, v3")
            a("v_add_u32 v12, s35, v13")
            a("v_cmp_eq_u32 vcc, v10, v11")
            a("s_and_saveexec_b64 s[36:37], vcc")
            for n in range(2):
                a("ds_write_b64 v12, %s offset:%d" % (vr(116 + 2 * n, 2), RST + 128 * n))
            a("s_mov_b64 exec, s[36:37]")
            a("s_cmp_lg_u32 s23, 0")
            a("s_cbranch_scc1 %s_nost1" % name)
            a("s_lshl_b32 s35, s22, 7")
            a("s_lshl_b32 s36, s3, 5")
            a("s_add_u32 s35, s35, s36")
            a("s_lshl_b32 s35, s35, 3")
            a("s_add_u32 s35, s35, 0x%x" % STATS1)
            a("v_mov_b32 v11, 0x7ffffff0")
            a("v_cndmask_b32 v13, v11, v13, vcc")
            for n in range(2):
                a("buffer_store_dwordx2 %s, v13, s[12:15], s35 offen offset:%d sc1" % (vr(ML + 2 * n, 2), 128 * n))
            a.label("%s_nost1" % name)
            a("v_and_b32 v0, 255, v0")
            a("v_lshrrev_b32 v1, 3, v0")
            a("v_and_b32 v10, 7, v0")
            a("s_lshr_b32 s38, s2, 3")
            a("s_lshl_b32 s38, s38, 6")
            a("v_lshl_add_u32 v252, v10, 3, s38")
            a("s_and_b32 s39, s2, 7")
            a("s_mul_i32 s39, s39, 144")
            a("v_lshl_add_u32 v253, v1, 2, s39")
            a("v_lshlrev_b32 v11, 2, v253")
            a("buffer_load_dwordx4 v[248:251], v11, s[72:75], 0 offen")
            a("v_mul_u32_u24 v254, 1152, v10")
            a("v_lshl_add_u32 v254, v1, 2, v254")
            a("v_add_u32 v254, %d, v254" % KVL)
            lb_ = len(a.lines)
            a("s_mov_b32 s42, s2")
            emit_wot_loads(a, 100, 243, 720, 3)
            n_ = 0
            for i_ in range(lb_, len(a.lines)):
                if "buffer_load_dwordx4" in a.lines[i_]:
                    a.lines[i_] = "    v_mov_b32 v%d, v23" % (246, 247, 255)[n_]; n_ += 1
            mma_addr(9 % R)
            a("s_mov_b32 s33, 0")
            a("s_setprio 0")
        vm.wait(["S%d" % (k + 2)], "lgkmcnt(0)" if k == 8 else "")
        if k < 8: a("s_barrier")
    a("s_branch %s_mma" % name)
    a.label("%s_A0" % name)
    emit_code_prefetch(a, name)
    a("s_load_dwordx4 s[64:67], s[0:1], 8")
    a("s_load_dwordx2 s[76:77], s[0:1], 24")
    a("s_load_dwordx2 s[78:79], s[0:1], 64")
    mma_setup()
    loader_setup(); loader_setup2()
    a("s_waitcnt lgkmcnt(0)")
    srds_main()
    srd(a, 68, 66, 2048 * 576 * 2)
    a("s_mov_b32 s88, s64"); a("s_mov_b32 s89, s65")
    srd(a, 64, 88, 2048 * 576 * 2)
    srd(a, 72, 76, 576 * 8)
    stamp_setup(a, 1); stamp(a, 0)
    def gran_addr():
        a("v_lshrrev_b32 v10, 4, v2")
        a("s_lshl_b32 s36, s25, 1")
        a("v_add_u32 v11, s36, v10")
        a("v_and_b32 v11, 3, v11")
        a("v_lshl_add_u32 v11, v11, 4, v3")
        a("v_lshlrev_b32 v94, 3, v11")
        a("s_lshl_b32 s59, s22, 15")
        a("s_lshl_b32 s36, s24, 9")
        a("s_add_u32 s59, s59, s36")
        a("s_add_u32 s59, s59, 0x%x" % STATS2)
        a("s_lshl_b32 s36, s23, 1")
        a("s_add_u32 s36, s36, s25")
        a("s_lshl_b32 s36, s36, 10")
        a("s_add_u32 s58, s36, s59")
    gran_addr()
    a("v_mov_b32 v12, 0"); a("v_mov_b32 v13, 0x80000000")
    a("buffer_store_dwordx2 v[12:13], v94, s[12:15], s58 offen sc1")
    a("s_lshl_b32 s36, s22, 4")
    a("s_add_u32 s36, s36, s23")
    a("s_lshl_b32 s36, s36, 8")
    a("s_add_u32 s97, s36, 0x%x" % ZFLG)
    a("v_mov_b32 v10, %d" % LC)
    a("v_mov_b32 v12, 0"); a("v_mov_b32 v13, 0")
    a("s_mov_b64 exec, 1")
    a("buffer_store_dword v12, v12, s[12:15], s97 offen sc1")
    a("buffer_store_dword v12, v12, s[12:15], s97 offen offset:%d sc1" % PFL)
    a("s_lshl_b32 s36, s2, 7")
    a("s_add_u32 s37, s36, 0x%x" % XFLG)
    a("s_add_u32 s36, s36, 0x%x" % CFLG)
    a("buffer_store_dword v12, v12, s[12:15], s37 offen sc1")
    a("buffer_store_dword v12, v12, s[12:15], s36 offen sc1")
    a("s_mov_b64 exec, -1")
    a("ds_write_b64 v10, v[12:13]")
    a("ds_write_b64 v10, v[12:13] offset:8")
    a("ds_write_b64 v10, v[12:13] offset:16")
    a("ds_write_b64 v10, v[12:13] offset:24")
    mma_addr(0)
    a("s_mov_b32 s33, 0")
    a("s_waitcnt lgkmcnt(0)")
    a("s_barrier")
    stamp(a, 1)
    a.label("%s_mma" % name)
    core.prime(0, core.reads(0, 0))
    trk.drain()
    nocs = [False]
    def mfmas(buf):
        L = []
        for ft in range(5):
            A = core.F(buf, ft)
            for tt in range(4 if ft < 4 else 2):
                c = core.accr(ft, tt); B = core.T(buf, tt)
                L.append(("v_mfma_f32_16x16x32_bf16 %s, %s, %s, %s" % (vr(c), vr(A), vr(B), vr(c)), list(range(A, A + 4)) + list(range(B, B + 4))))
            if not nocs[0]: L.append(("v_mfma_f32_16x16x32_bf16 %s, %s, %s, %s" % (vr(CS + 4 * ft), vr(A), vr(ONE), vr(CS + 4 * ft)), list(range(A, A + 4))))
        return L
    def phase(buf, pend):
        for (m, regs) in mfmas(buf):
            trk.need(regs)
            a(m)
            while pend:
                k, t = pend.pop(0)
                if k == "x":
                    a(t)
                    if t.startswith("s_"): continue
                else:
                    a(t[0]); trk.issue(t[1])
                break
        for k, t in pend:
            if k == "x": a(t)
            else: a(t[0]); trk.issue(t[1])
    def iteration(vw=True):
        if vw: a("s_waitcnt vmcnt(0)")
        a("s_barrier")
        rd = [("r", t) for t in core.reads(1, 1)]
        upd = ["s_add_u32 s27, s27, %d" % SLOT, "s_cmp_eq_u32 s27, %d" % (R * SLOT), "s_cselect_b32 s27, 0, s27"]
        tail = ["v_add_u32 v%d, s27, v%d" % (d, s_) for d, s_ in ((vTa[0], bTa[0]), (vF, bF), (vTb[0], bTb[0]), (vFh, bFh))]
        phase(0, rd[:1] + [("x", u) for u in upd] + rd[1:] + [("x", u) for u in tail])
        rd = [("r", t) for t in core.reads(0, 0)]
        tail = ["v_add_u32 v%d, s27, v%d" % (d, s_) for d, s_ in ((vTa[1], bTa[1]), (vTb[1], bTb[1]))] + ["s_add_u32 s33, s33, 1"]
        phase(1, rd + [("x", u) for u in tail])
    a.label("%s_cloop" % name)
    lb = len(a.lines); iteration(); st = copy.deepcopy(trk.out); del a.lines[lb:]; trk.out = copy.deepcopy(st)
    iteration()
    assert [sorted(x) for x in trk.out] == [sorted(x) for x in st]
    a("s_cmp_lt_u32 s33, 9")
    a("s_cbranch_scc1 %s_cloop" % name)
    trk.drain()
    stamp(a, 2)
    MR = 100; T = 72; ZP = 16
    def epi_in():
        gelu_consts(a)
        a("s_lshl_b32 s36, s24, 9")
        a("s_lshl_b32 s37, s25, 8")
        a("s_add_u32 s38, s36, s37")
        a("s_xor_b32 s37, s37, 256")
        a("s_add_u32 s39, s36, s37")
        a("v_lshlrev_b32 v10, 3, v3")
        a("v_add_u32 v11, s38, v10")
        a("ds_read_b64 %s, v11 offset:%d" % (vr(MR, 2), RST))
        a("ds_read_b64 %s, v11 offset:%d" % (vr(MR + 2, 2), RST + 128))
        a("v_add_u32 v11, s39, v10")
        a("ds_read_b64 %s, v11 offset:%d" % (vr(MR + 4, 2), RST))
        a("ds_read_b64 %s, v11 offset:%d" % (vr(MR + 6, 2), RST + 128))
        a("s_waitcnt lgkmcnt(0)")
    S = [108, 110, 52, 54]; Q = [109, 111, 53, 55]
    def gelu_ft(ft, stats):
        tts = range(4 if ft < 4 else 2)
        a("s_call_b64 s[34:35], %s_gsub%d" % (name, ft))
        if stats:
            for d in range(2):
                for tt in tts:
                    p = ZP + 2 * tidx(ft, tt) + d
                    a("v_dot2_f32_bf16 v%d, v%d, v%d, v%d" % (S[tt], p, ONE, S[tt]))
                    a("v_dot2_f32_bf16 v%d, v%d, v%d, v%d" % (Q[tt], p, p, Q[tt]))
    a("s_cmp_eq_u32 s98, 0")
    a("s_cbranch_scc1 %s_A1" % name)
    a("s_barrier")
    a("s_load_dwordx2 s[94:95], s[0:1], 80")
    a("s_load_dwordx2 s[92:93], s[0:1], 72")
    epi_in()
    srd(a, 76, 94, 2304 * 576 * 2)
    srd(a, 28, 92, 2048 * 2)
    for ft in range(5): gelu_ft(ft, False)
    Z1R = 200; BI = 236
    a("s_call_b64 s[34:35], %s_kvsub" % name)
    a("s_nop 1")
    for r_ in range(36): a("v_mov_b32 v%d, v%d" % (Z1R + r_, ZP + r_))
    stamp(a, 3)
    a("s_mov_b32 s40, 0x%x" % WOT)
    for r in range(ACC, ACC + 72): a("v_mov_b32 v%d, 0" % r)
    a("v_lshrrev_b32 v10, 2, v2")
    a("v_lshlrev_b32 v10, 5, v10")
    a("v_and_b32 v11, 3, v2")
    a("v_lshl_add_u32 v10, v11, 3, v10")
    a("v_add_u32 v10, %d, v10" % (RB + TREG))
    a("s_mul_i32 s26, s25, 10240")
    a("v_add_u32 v%d, s26, v10" % bF)
    a("v_add_u32 v%d, 8192, v10" % bFh)
    core.FS = 32; core.FT = 2048
    mma_addr(0)
    a("s_mov_b32 s33, 0")
    stamp(a, 4)
    a("s_barrier")
    stamp(a, 5)
    core.prime(0, core.reads(0, 0))
    trk.drain()
    nocs[0] = True
    a.label("%s_gloop" % name)
    lb = len(a.lines); iteration(False); st = copy.deepcopy(trk.out); del a.lines[lb:]; trk.out = copy.deepcopy(st)
    iteration(False)
    assert [sorted(x) for x in trk.out] == [sorted(x) for x in st]
    a("s_cmp_lg_u32 s33, 2")
    a("s_cbranch_scc1 %s_ghkA" % name)
    for n in range(3):
        a("buffer_load_dwordx4 %s, v%d, s[76:79], 0 offen" % (vr(100 + 4 * n), (246, 247, 255)[n]))
    a("s_lshl_b32 s36, s22, 7")
    a("s_lshl_b32 s37, s24, 6")
    a("s_add_u32 s36, s36, s37")
    a("v_lshlrev_b32 v11, 1, v3")
    a("s_lshl_b32 s37, s25, 6")
    a("s_lshl_b32 s38, s36, 1")
    a("s_add_u32 s39, s38, s37")
    a("s_xor_b32 s37, s37, 64")
    a("s_add_u32 s36, s38, s37")
    a("buffer_load_ushort v96, v11, s[28:31], s39 offen")
    a("buffer_load_ushort v97, v11, s[28:31], s39 offen offset:32")
    a("buffer_load_ushort v98, v11, s[28:31], s36 offen")
    a("buffer_load_ushort v99, v11, s[28:31], s36 offen offset:32")
    a.label("%s_ghkA" % name)
    a("s_cmp_lg_u32 s33, 6")
    a("s_cbranch_scc1 %s_ghk0" % name)
    a("s_waitcnt vmcnt(0)")
    for n in range(3):
        a("buffer_store_dwordx4 %s, v%d, s[12:15], s40 offen sc1" % (vr(100 + 4 * n), 243 + n))
    for tt in range(4): a("v_lshlrev_b32 v%d, 16, v%d" % (BI + 2 * tt, 96 + tt))
    a.label("%s_ghk0" % name)
    a("s_cmp_lg_u32 s33, 9")
    a("s_cbranch_scc1 %s_ghk" % name)
    a("s_waitcnt vmcnt(0)")
    a("v_mov_b32 v10, %d" % (LC + 8))
    a("v_mov_b32 v11, 1")
    a("s_mov_b64 exec, 1")
    a("ds_add_rtn_u32 v12, v10, v11")
    a("s_waitcnt lgkmcnt(0)")
    a("v_readfirstlane_b32 s36, v12")
    a("s_cmp_lg_u32 s36, 3")
    a("s_cbranch_scc1 %s_nokvs" % name)
    a("s_lshl_b32 s36, s2, 7")
    a("s_add_u32 s36, s36, 0x%x" % XFLG)
    a("v_mov_b32 v10, 0")
    a("buffer_store_dword v11, v10, s[12:15], s36 offen sc1")
    a.label("%s_nokvs" % name)
    a("s_mov_b64 exec, -1")
    a.label("%s_ghk" % name)
    a("s_cmp_lt_u32 s33, 32")
    a("s_cbranch_scc1 %s_gloop" % name)
    trk.drain()
    stamp(a, 6)
    G3.emit_k2_epilogue2(a, core, Z1R, BI, " sc1")
    stamp(a, 7)
    a("s_setprio 3")
    a("s_lshl_b32 s36, s22, 4")
    a("s_add_u32 s36, s36, s23")
    a("s_lshl_b32 s36, s36, 8")
    a("s_add_u32 s97, s36, 0x%x" % (ZFLG + PFL))
    c_common()
    a("v_lshlrev_b32 v14, 4, v2")
    a("s_mul_i32 s26, s22, %d" % (36 * 8192))
    a("s_lshl_b32 s24, s3, 12")
    a("s_add_u32 s26, s26, s24")
    a("s_add_u32 s26, s26, 0x%x" % PIMG)
    a("s_mul_i32 s27, s23, %d" % (18 * 20480))
    a("s_mul_i32 s25, s3, 5120")
    a("s_add_u32 s27, s27, s25")
    a("s_add_u32 s27, s27, 0x%x" % WOT)
    a("s_add_u32 s25, s25, %d" % CTREG)
    a("v_and_b32 v28, 15, v2")
    a("v_lshlrev_b32 v30, 7, v2")
    a("v_mov_b32 v26, %d" % LC)
    a("v_mov_b32 v27, 1")
    a("s_waitcnt vmcnt(0)")
    a("s_mov_b64 exec, 1")
    a("ds_add_rtn_u32 v29, v26, v27 offset:16")
    a("s_waitcnt lgkmcnt(0)")
    a("v_readfirstlane_b32 s36, v29")
    a("s_cmp_lg_u32 s36, 3")
    a("s_cbranch_scc1 %s_nops" % name)
    a("v_mov_b32 v29, 0")
    a("buffer_store_dword v27, v29, s[12:15], s97 offen sc1")
    a.label("%s_nops" % name)
    a("s_mov_b64 exec, -1")
    a("s_mov_b32 s34, 0")
    a.label("%s_cw" % name)
    a("ds_read_b32 v29, v26 offset:16")
    a("s_add_u32 s34, s34, 1")
    a("s_waitcnt lgkmcnt(0)")
    a("v_readfirstlane_b32 s36, v29")
    a("s_cmp_gt_u32 s34, %d" % (SPIN_MAX * 20))
    a("s_cbranch_scc1 %s_cwx" % name)
    a("s_cmp_ge_u32 s36, 4")
    a("s_cbranch_scc1 %s_cwx" % name)
    a("s_sleep 1")
    a("s_branch %s_cw" % name)
    a.label("%s_cwx" % name)
    def cF(off, soff):
        a("s_add_u32 s36, s25, %s" % off)
        a("s_mov_b32 m0, s36")
        a("s_add_u32 s37, %s, 4096" % soff)
        for n in range(4):
            a("buffer_load_dwordx4 v14, s[12:15], %s offen offset:%d sc1 lds" % (soff, n * 1024))
        a("s_add_u32 s36, s36, 4096")
        a("s_mov_b32 m0, s36")
        a("s_nop 0")
        a("buffer_load_dwordx4 v14, s[12:15], s37 offen sc1 lds")
    def cT(off, soff):
        a("s_add_u32 s35, s24, %s" % off)
        a("s_mov_b32 m0, s35")
        a("s_nop 0")
        for n in range(4):
            a("buffer_load_dwordx4 v14, s[12:15], %s offen offset:%d sc1 lds" % (soff, n * 1024))
    a("s_add_u32 s38, s27, 20480")
    cF(str(C0), "s27"); cF(str(C0 + CSL), "s38")
    a("s_mov_b32 s34, 0")
    a("s_cmp_lg_u32 s3, 0")
    a("s_cbranch_scc1 %s_cpl" % name)
    a("v_lshlrev_b32 v28, 8, v28")
    a("s_lshr_b32 s39, s22, 1")
    a("s_lshl_b32 s39, s39, 12")
    a("s_add_u32 s39, s39, 0x%x" % (ZFLG + PFL))
    a.label("%s_cpz" % name)
    a("buffer_load_dword v29, v28, s[12:15], s39 offen sc1")
    a("s_add_u32 s34, s34, 1")
    a("s_waitcnt vmcnt(0)")
    a("v_cmp_ne_u32 vcc, 1, v29")
    a("s_cmp_gt_u32 s34, %d" % SPIN_MAX)
    a("s_cbranch_scc1 %s_cpzx" % name)
    a("s_cbranch_vccz %s_cpzx" % name)
    a("s_sleep 8")
    a("s_branch %s_cpz" % name)
    a.label("%s_cpzx" % name)
    a("ds_write_b32 v26, v27 offset:24")
    a("s_branch %s_cgo" % name)
    a.label("%s_cpl" % name)
    a("ds_read_b32 v29, v26 offset:24")
    a("s_add_u32 s34, s34, 1")
    a("s_waitcnt lgkmcnt(0)")
    a("v_readfirstlane_b32 s36, v29")
    a("s_cmp_gt_u32 s34, %d" % (SPIN_MAX * 20))
    a("s_cbranch_scc1 %s_cgo" % name)
    a("s_cmp_lg_u32 s36, 0")
    a("s_cbranch_scc1 %s_cgo" % name)
    a("s_sleep 2")
    a("s_branch %s_cpl" % name)
    a.label("%s_cgo" % name)
    stamp(a, 8)
    a("s_add_u32 s38, s26, 16384")
    cT(str(C0), "s26"); cT(str(C0 + CSL), "s38")
    a("s_add_u32 s26, s26, 32768")
    a("s_add_u32 s27, s27, 40960")
    a("s_mov_b32 s33, %d" % RB)
    def cissue():
        cT("s33", "s26"); cF("s33", "s27")
        a("s_add_u32 s26, s26, 16384")
        a("s_add_u32 s27, s27, 20480")
        a("s_add_u32 s33, s33, %d" % CSL)
        a("s_cmp_eq_u32 s33, %d" % CW)
        a("s_cselect_b32 s33, %d, s33" % RB)
    a("s_waitcnt vmcnt(4)")
    a("s_barrier")
    cissue(); cissue()
    a("s_waitcnt vmcnt(18)")
    a("s_barrier")
    a("s_mov_b32 s34, 0")
    a.label("%s_clloop" % name)
    cissue()
    a("s_lshl_b32 s38, s3, 8")
    a("s_add_u32 s38, s38, s34")
    a("s_cmp_eq_u32 s38, 13")
    a("s_cbranch_scc1 %s_cyc" % name)
    a("s_cmp_lg_u32 s38, 10")
    a("s_cbranch_scc1 %s_cl1" % name)
    a("s_mov_b32 s38, 0x%x" % (CFLG + 0))
    a("buffer_load_dword v32, v30, s[12:15], s38 offen sc1")
    a("s_mov_b32 s38, 0x%x" % (CFLG + 8192))
    a("buffer_load_dword v33, v30, s[12:15], s38 offen sc1")
    a("s_mov_b32 s38, 0x%x" % (CFLG + 16384))
    a("buffer_load_dword v34, v30, s[12:15], s38 offen sc1")
    a("s_mov_b32 s38, 0x%x" % (CFLG + 24576))
    a("buffer_load_dword v35, v30, s[12:15], s38 offen sc1")
    a("s_waitcnt vmcnt(22)")
    a("s_branch %s_cl2" % name)
    a.label("%s_cl1" % name)
    a("s_waitcnt vmcnt(18)")
    a.label("%s_cl2" % name)
    a("s_barrier")
    a("s_add_u32 s34, s34, 1")
    a("s_cmp_lt_u32 s34, 14")
    a("s_cbranch_scc1 %s_clloop" % name)
    a("s_branch %s_cyx" % name)
    a.label("%s_cyc" % name)
    a("s_mov_b32 s39, 0")
    a.label("%s_cy" % name)
    a("v_and_b32 v32, v32, v33")
    a("v_and_b32 v34, v34, v35")
    a("v_and_b32 v32, v32, v34")
    a("v_cmp_eq_u32 vcc, 1, v32")
    a("s_nop 1")
    a("v_cndmask_b32 v32, 0, 16, vcc")
    a("v_cmp_gt_u32 vcc, 16, v32")
    a("s_add_u32 s39, s39, 1")
    a("s_cmp_gt_u32 s39, %d" % SPIN_MAX)
    a("s_cbranch_scc1 %s_cl1" % name)
    a("s_cbranch_vccz %s_cl1" % name)
    a("s_sleep 32")
    a("s_mov_b32 s38, 0x%x" % (CFLG + 0))
    a("buffer_load_dword v32, v30, s[12:15], s38 offen sc1")
    a("s_mov_b32 s38, 0x%x" % (CFLG + 8192))
    a("buffer_load_dword v33, v30, s[12:15], s38 offen sc1")
    a("s_mov_b32 s38, 0x%x" % (CFLG + 16384))
    a("buffer_load_dword v34, v30, s[12:15], s38 offen sc1")
    a("s_mov_b32 s38, 0x%x" % (CFLG + 24576))
    a("buffer_load_dword v35, v30, s[12:15], s38 offen sc1")
    a("s_waitcnt vmcnt(0)")
    a("s_branch %s_cy" % name)
    a.label("%s_cyx" % name)
    a("v_lshrrev_b32 v3, 3, v2")
    a("v_and_b32 v4, 7, v2")
    a("v_lshlrev_b32 v4, 4, v4")
    a("s_mul_i32 s33, s52, 144")
    a("s_mul_i32 s34, s53, 80")
    a("s_lshl_b32 s35, s22, 7")
    a("s_add_u32 s35, s35, 0x%x" % YT)
    for n in range(3):
        a("s_add_u32 s36, s3, %d" % (4 * n))
        if n == 2: a("s_min_u32 s36, s36, 9")
        a("s_lshl_b32 s37, s36, 3")
        a("s_add_u32 s38, s37, s33")
        if n < 2: a("s_add_u32 s38, s38, s34")
        a("v_add_u32 v5, s38, v3")
        a("v_lshl_add_u32 v5, v5, 12, v4")
        a("s_lshl_b32 s36, s36, 10")
        a("s_add_u32 s36, s36, %d" % YOFF)
        a("s_mov_b32 m0, s36")
        a("s_nop 0")
        a("buffer_load_dwordx4 v5, s[12:15], s35 offen sc1 lds")
    fin_loads()
    a("s_waitcnt vmcnt(%d)" % (9 + 7))
    a("s_barrier")
    a("s_waitcnt vmcnt(7)")
    a("s_barrier")
    a("s_barrier")
    a("s_setprio 0")
    a("s_waitcnt vmcnt(0)")
    a("s_branch %s_cfin" % name)
    a.label("%s_A1" % name)
    a("s_setprio 2")
    vmA = VmTracker(a)
    PB = 132
    def aux_head():
        epi_in()
        for tt in range(4):
            a("v_mov_b32 v%d, 0" % S[tt]); a("v_mov_b32 v%d, 0" % Q[tt])
    def aux_pub():
        a("s_nop 2")
        emit_xg_reduce(a, S + Q, 72)
        a("v_lshrrev_b32 v10, 4, v2")
        for g in range(1, 4):
            a("v_cmp_eq_u32 vcc, %d, v10" % g)
            a("s_nop 1")
            a("v_cndmask_b32 v%d, v%d, v%d, vcc" % (S[0], S[0], S[g]))
            a("v_cndmask_b32 v%d, v%d, v%d, vcc" % (Q[0], Q[0], Q[g]))
        a("v_and_b32 v%d, 0x7fffffff, v%d" % (Q[0], Q[0]))
        a("buffer_store_dwordx2 v[%d:%d], v94, s[12:15], s58 offen sc1" % (S[0], Q[0]))
    chunks = [capture(aux_head) + capture(gelu_ft, 0, True), capture(gelu_ft, 1, True), capture(gelu_ft, 2, True),
              capture(gelu_ft, 3, True), capture(gelu_ft, 4, True) + capture(aux_pub)]
    def shifted(lines, off):
        out = []
        for l in lines:
            l = re.sub(r"v\[(\d+):(\d+)\]", lambda m: "v[%d:%d]" % (int(m.group(1)) + off, int(m.group(2)) + off), l)
            l = re.sub(r"\bv(\d+)\b", lambda m: "v%d" % (int(m.group(1)) + off), l)
            out.append(l)
        return out
    def kv_pass():
        for n in range(11): a("ds_read_b32 v%d, v254 offset:%d" % (128 + n, 144 * n))
        a("s_waitcnt lgkmcnt(4)")
        for n in range(8): a("ds_read_b32 v%d, v254 offset:%d" % (144 + n, 10240 + 144 * n))
        for n in range(4): a("v_mov_b32 v%d, v%d" % (156 + n, 248 + n))
        a("v_mov_b32 v168, v252"); a("v_mov_b32 v169, v253")
        a("s_waitcnt lgkmcnt(0)")
        a.lines.extend(shifted(capture(lambda: emit_kv_compute(a, wait=False, store=False)), 112))
        a("s_mov_b32 s41, 0x%x" % KVT)
        a("buffer_store_dwordx4 v[232:235], v124, s[12:15], s41 offen sc1")
        a("buffer_store_dwordx4 v[236:239], v125, s[12:15], s41 offen sc1")
    kvl = capture(kv_pass); nk = len(kvl)
    for k in range(9, 18):
        a("s_barrier")
        if k == 9:
            a("s_cmp_lg_u32 s3, 0")
            a("s_cbranch_scc1 %s_nosig" % name)
            a("v_mov_b32 v10, 1")
            a("s_lshl_b32 s36, s22, 2")
            a("v_mov_b32 v11, s36")
            a("s_mov_b64 exec, 1")
            a("buffer_atomic_add v10, v11, s[60:63], 0 offen sc1")
            a("s_mov_b64 exec, -1")
            a.label("%s_nosig" % name)
        g = k + 3
        dma = capture(lambda: (issueT(g), issueF(g))) if g < 18 else []
        comp = chunks[k - 9] if k - 9 < len(chunks) else []
        a.lines.extend(dma); a.lines.extend(comp)
        if k == 13: vmA.issue("pub", 1)
        if g < 18: vmA.issue("S%d" % g, 9)
        if k == 13:
            a("v_lshrrev_b32 v1, 3, v0")
            a("v_and_b32 v10, 7, v0")
            a("s_lshr_b32 s38, s2, 3")
            a("s_lshl_b32 s38, s38, 6")
            a("v_lshl_add_u32 v252, v10, 3, s38")
            a("s_and_b32 s39, s2, 7")
            a("s_mul_i32 s39, s39, 144")
            a("v_lshl_add_u32 v253, v1, 2, s39")
            a("v_lshlrev_b32 v11, 2, v253")
            a("v_mul_u32_u24 v254, 1152, v10")
            a("v_lshl_add_u32 v254, v1, 2, v254")
            a("v_add_u32 v254, %d, v254" % KVL)
        if k == 14:
            srd(a, 92, 78, 2048 * 2048 * 2)
            a("v_lshrrev_b32 v10, 4, v2")
            a("v_lshlrev_b32 v10, 12, v10")
            a("v_lshl_add_u32 v10, v3, 4, v10")
            a("s_lshl_b32 s40, s22, 7")
            a("s_lshl_b32 s36, s3, 5")
            a("s_add_u32 s40, s40, s36")
            a("s_lshl_b32 s40, s40, 12")
            a("s_lshl_b32 s36, s23, 8")
            a("s_add_u32 s40, s40, s36")
            for n in range(8):
                a("buffer_load_dwordx4 v[240:243], v10, s[92:95], s40 offen")
                if n < 7: a("s_add_u32 s40, s40, 16384")
            vmA.issue("wp", 8)
            a("s_lshl_b32 s36, s22, 2")
            a("v_mov_b32 v97, s36")
            a("buffer_load_dword v96, v97, s[60:63], 0 offen sc1"); vmA.issue("cnt", 1)
        if k + 2 < 18 and k + 2 >= 12:
            vmA.wait(["S%d" % (k + 2)])
    a("s_barrier")
    stamp(a, 3)
    a("s_load_dwordx4 s[88:91], s[0:1], 32")
    Z2 = ZP
    a("v_and_b32 v4, 31, v2")
    a("v_lshlrev_b32 v4, 4, v4")
    a("v_lshrrev_b32 v10, 5, v2")
    a("v_lshl_add_u32 v4, v10, 10, v4")
    for q in range(8): a("s_add_u32 s%d, s59, %d" % ((52, 53, 42, 43, 40, 41, 38, 39)[q], 4096 * q))
    GB = 128
    def gather():
        for q in range(16):
            a("buffer_load_dwordx4 %s, v4, s[12:15], s%d offen offset:%d sc1" % (vr(GB + 4 * q), (52, 53, 42, 43, 40, 41, 38, 39)[q >> 1], 2048 * (q & 1)))
    a("s_waitcnt vmcnt(0)")
    gather()
    a("s_mov_b32 s33, 0")
    a("s_waitcnt vmcnt(0)")
    a.label("%s_chk" % name)
    a("v_subrev_u32 v11, 16, v96")
    for q in range(16):
        a("v_or3_b32 v11, v11, v%d, v%d" % (GB + 4 * q + 1, GB + 4 * q + 3))
    a("v_cmp_gt_i32 vcc, 0, v11")
    a("s_add_u32 s33, s33, 1")
    a("s_cmp_gt_u32 s33, %d" % SPIN_MAX)
    a("s_cbranch_scc1 %s_ok" % name)
    a("s_cbranch_vccz %s_ok" % name)
    a("s_sleep 32")
    a("buffer_load_dword v96, v97, s[60:63], 0 offen sc1")
    a("s_waitcnt vmcnt(0)")
    gather()
    a("s_waitcnt vmcnt(0)")
    a("s_branch %s_chk" % name)
    a.label("%s_ok" % name)
    stamp(a, 5)
    for st_ in (32, 16, 8, 4):
        for q in range(0, st_, 2):
            a("v_pk_add_f32 %s, %s, %s" % (vr(GB + q, 2), vr(GB + q, 2), vr(GB + q + st_, 2)))
    for e in range(4): a("v_mov_b32 v%d, v%d" % (72 + e, GB + e))
    a("s_nop 1")
    for e in range(4): a("v_permlane32_swap_b32 v%d, v%d" % (GB + e, 72 + e))
    a("s_nop 1")
    for e in range(4): a("v_add_f32 v%d, v%d, v%d" % (GB + e, GB + e, 72 + e))
    for h in range(2):
        emit_ln_finish(a, GB + 2 * h, GB + 2 * h + 1, 2304, GB + 8 + h, GB + 4 + 2 * h, GB + 12)
        a("v_mul_f32 v%d, -v%d, v%d" % (GB + 5 + 2 * h, GB + 8 + h, GB + 4 + 2 * h))
    a("v_and_b32 v10, 31, v2")
    a("s_lshl_b32 s36, s24, 9")
    a("v_lshl_add_u32 v10, v10, 4, s36")
    a("ds_write_b128 v10, %s offset:1024" % vr(GB + 4))
    a("s_lshl_b32 s37, s25, 8")
    a("s_add_u32 s38, s36, s37")
    a("s_xor_b32 s37, s37, 256")
    a("s_add_u32 s39, s36, s37")
    a("v_lshlrev_b32 v10, 3, v3")
    a("v_add_u32 v11, s38, v10")
    a("v_add_u32 v10, s39, v10")
    a("s_waitcnt lgkmcnt(0)")
    a("ds_read_b64 %s, v11 offset:1024" % vr(MR, 2))
    a("ds_read_b64 %s, v11 offset:1152" % vr(MR + 2, 2))
    a("ds_read_b64 %s, v10 offset:1024" % vr(MR + 4, 2))
    a("ds_read_b64 %s, v10 offset:1152" % vr(MR + 6, 2))
    a("v_lshrrev_b32 v10, 4, v2")
    a("v_lshrrev_b32 v11, 2, v2"); a("v_and_b32 v11, 1, v11"); a("v_lshlrev_b32 v11, 4, v11")
    a("v_lshrrev_b32 v5, 3, v2"); a("v_and_b32 v5, 1, v5"); a("v_lshl_add_u32 v11, v5, 2, v11")
    a("v_and_b32 v5, 3, v2"); a("v_add_u32 v11, v11, v5")
    a("v_and_b32 v5, 1, v10")
    a("v_lshl_add_u32 v11, v5, 3, v11")
    a("v_lshlrev_b32 v11, 5, v11")
    a("v_lshrrev_b32 v5, 1, v10")
    a("v_lshl_add_u32 v6, v5, 4, v11")
    a("s_lshl_b32 s33, s23, 5")
    a("s_lshl_b32 s36, s22, 1")
    a("s_add_u32 s33, s33, s36")
    a("s_add_u32 s33, s33, s24")
    a("s_mul_i32 s33, s33, 18432")
    if ZIMG: a("s_add_u32 s33, s33, 0x%x" % ZIMG)
    a("s_lshl_b32 s36, s25, 10")
    a("s_add_u32 s39, s33, s36")
    a("s_add_u32 s39, s39, 8192")
    a("s_mul_i32 s38, s25, 10240")
    a("s_add_u32 s33, s33, s38")
    a("s_add_u32 s37, s33, s36")
    a("s_xor_b32 s36, s36, 1024")
    a("s_add_u32 s38, s33, s36")
    a("s_add_u32 s33, s37, 4096")
    a("s_add_u32 s36, s38, 4096")
    def norm_pair(nA, ttA, nB, ttB, O):
        for q, (n, tt) in enumerate(((nA, ttA), (nB, ttB))):
            for d in range(2):
                z = Z2 + 2 * n + d; t = T + 4 * q + 2 * d
                a("v_lshlrev_b32 v%d, 16, v%d" % (t, z))
                a("v_and_b32 v%d, 0xffff0000, v%d" % (t + 1, z))
        for q, (n, tt) in enumerate(((nA, ttA), (nB, ttB))):
            for d in range(2):
                t = T + 4 * q + 2 * d
                a("v_pk_fma_f32 %s, %s, %s, %s op_sel:[0,0,1] op_sel_hi:[1,0,1]" % (vr(t, 2), vr(t, 2), vr(MR + 2 * tt, 2), vr(MR + 2 * tt, 2)))
        for q in range(2):
            for d in range(2):
                t = T + 4 * q + 2 * d
                a("v_cvt_pk_bf16_f32 v%d, v%d, v%d" % (O + 2 * q + d, t, t + 1))
        a("s_nop 1")
        a("v_permlane16_swap_b32 v%d, v%d" % (O, O + 2))
        a("v_permlane16_swap_b32 v%d, v%d" % (O + 1, O + 3))
    a("s_waitcnt lgkmcnt(0)")
    cnt = 0
    for ft in range(4):
        for pp in range(2):
            O = 200 + 4 * cnt; cnt += 1
            norm_pair(tidx(ft, 2 * pp), 2 * pp, tidx(ft, 2 * pp + 1), 2 * pp + 1, O)
            a("s_nop 0")
            a("buffer_store_dwordx4 %s, v6, s[12:15], s%d offen offset:%d sc1" % (vr(O), ((37, 38), (33, 36))[ft >> 1][pp], (ft & 1) * 2048))
    O = 200 + 4 * cnt
    norm_pair(16, 0, 17, 1, O)
    a("s_nop 0")
    a("buffer_store_dwordx4 %s, v6, s[12:15], s39 offen sc1" % vr(O))
    stamp(a, 6)
    a("s_setprio 3")
    srd(a, 8, 78, 2048 * 2048 * 2)
    a("v_lshrrev_b32 v3, 3, v2")
    a("s_lshl_b32 s24, s3, 5")
    a("v_add_u32 v3, s24, v3")
    a("v_and_b32 v4, 7, v2")
    a("v_lshrrev_b32 v6, 4, v2")
    a("v_xor_b32 v6, v6, v4")
    a("v_lshlrev_b32 v6, 4, v6")
    a("v_lshl_add_u32 v10, v3, 12, v6")
    a("v_xor_b32 v11, 64, v10")
    a("v_add_u32 v11, %d, v11" % (32768 - 1024))
    a("v_add_u32 v12, %d, v10" % (2 * (32768 - 1024)))
    a("v_add_u32 v13, %d, v11" % (2 * (32768 - 1024)))
    a("v_lshlrev_b32 v14, 4, v2")
    a("s_lshl_b32 s26, s22, 19")
    a("s_mul_i32 s27, s23, %d" % (32 * 18432))
    a("s_lshl_b32 s24, s3, 12")
    a("s_add_u32 s27, s27, s24")
    if ZIMG: a("s_add_u32 s27, s27, 0x%x" % ZIMG)
    a("s_lshl_b32 s25, s3, 9")
    a("s_sub_u32 s32, s25, s24")
    a("s_add_u32 s32, s32, 16384")
    a("s_add_u32 s24, s24, %d" % RB)
    a("s_waitcnt vmcnt(0) lgkmcnt(0)")
    a("v_mov_b32 v26, %d" % LC)
    a("v_mov_b32 v27, 1")
    a("s_mov_b64 exec, 1")
    a("ds_add_rtn_u32 v28, v26, v27")
    a("s_waitcnt lgkmcnt(0)")
    a("v_readfirstlane_b32 s36, v28")
    a("s_cmp_lg_u32 s36, 3")
    a("s_cbranch_scc1 %s_nozs" % name)
    a("v_mov_b32 v28, 0")
    a("buffer_store_dword v27, v28, s[12:15], s97 offen sc1")
    a.label("%s_nozs" % name)
    a("s_mov_b64 exec, -1")
    stamp(a, 7)
    srd(a, 16, 88, 576 * 2048 * 2)
    srd(a, 84, 90, 576 * 2)
    for g in range(4):
        a("s_add_u32 s35, s24, %d" % (g * SLOT))
        a("s_mov_b32 m0, s35")
        a("s_add_u32 s36, s26, %d" % (128 * g))
        for n in range(4):
            a("buffer_load_dwordx4 v%d, s[8:11], s36 offen offset:%d lds" % (10 + n, n * 1024))
    a("s_mov_b32 s34, 0")
    a("s_cmp_lg_u32 s3, 0")
    a("s_cbranch_scc1 %s_pl" % name)
    a("v_and_b32 v28, 15, v2")
    a("v_lshlrev_b32 v30, 2, v28")
    a("v_lshlrev_b32 v28, 12, v28")
    a("s_lshl_b32 s52, s23, 8")
    a("s_add_u32 s52, s52, 0x%x" % ZFLG)
    a.label("%s_pz0" % name)
    a("buffer_load_dword v31, v30, s[60:63], 0 offen sc1")
    a("s_add_u32 s34, s34, 1")
    a("s_waitcnt vmcnt(0)")
    a("v_cmp_gt_u32 vcc, 16, v31")
    a("s_cmp_gt_u32 s34, %d" % SPIN_MAX)
    a("s_cbranch_scc1 %s_pz" % name)
    a("s_cbranch_vccz %s_pz" % name)
    a("s_sleep 32")
    a("s_branch %s_pz0" % name)
    a.label("%s_pz" % name)
    a("buffer_load_dword v29, v28, s[12:15], s52 offen sc1")
    a("s_add_u32 s34, s34, 1")
    a("s_waitcnt vmcnt(0)")
    a("v_cmp_ne_u32 vcc, 1, v29")
    a("s_cmp_gt_u32 s34, %d" % SPIN_MAX)
    a("s_cbranch_scc1 %s_pzx" % name)
    a("s_cbranch_vccz %s_pzx" % name)
    a("s_sleep 8")
    a("s_branch %s_pz" % name)
    a.label("%s_pzx" % name)
    a("v_mov_b32 v27, 1")
    a("ds_write_b32 v26, v27 offset:4")
    a("s_branch %s_pgo" % name)
    a.label("%s_pl" % name)
    a("s_cmp_lg_u32 s3, 1")
    a("s_cbranch_scc1 %s_pl2" % name)
    a("v_subrev_u32 v253, 32, v253")
    a("v_subrev_u32 v254, 32, v254")
    a("v_add_u32 v253, 128, v253")
    a("v_add_u32 v254, 128, v254")
    a("v_lshlrev_b32 v1, 2, v253")
    a("buffer_load_dwordx4 v[248:251], v1, s[72:75], 0 offen")
    a("s_waitcnt vmcnt(0)")
    a("s_mov_b64 exec, 0xffffffff")
    a("s_call_b64 s[38:39], %s_kvsubA" % name)
    a("s_mov_b64 exec, -1")
    a("s_mov_b32 s34, 0")
    a.label("%s_pl2" % name)
    a("ds_read_b32 v27, v26 offset:4")
    a("s_add_u32 s34, s34, 1")
    a("s_waitcnt lgkmcnt(0)")
    a("v_readfirstlane_b32 s36, v27")
    a("s_cmp_gt_u32 s34, %d" % (SPIN_MAX * 20))
    a("s_cbranch_scc1 %s_pgo" % name)
    a("s_cmp_lg_u32 s36, 0")
    a("s_cbranch_scc1 %s_pgo" % name)
    a("s_sleep 2")
    a("s_branch %s_pl2" % name)
    a.label("%s_pgo" % name)
    stamp(a, 8)
    for g in range(4):
        a("s_add_u32 s35, s24, %d" % (g * SLOT + TREG))
        a("s_mov_b32 m0, s35")
        a("s_add_u32 s36, s27, %d" % (18432 * g))
        a("s_add_u32 s37, s36, s32")
        for n in range(4):
            a("buffer_load_dwordx4 v14, s[12:15], s36 offen offset:%d sc1 lds" % (n * 1024))
        a("s_add_u32 s35, s35, s32")
        a("s_mov_b32 m0, s35")
        a("s_mov_b64 exec, 0xffffffff")
        a("buffer_load_dwordx4 v14, s[12:15], s37 offen sc1 lds")
        a("s_mov_b64 exec, -1")
    a("s_add_u32 s26, s26, 512")
    a("s_add_u32 s27, s27, %d" % (4 * 18432))
    a("s_mov_b32 s33, 0")
    a("s_lshl_b32 s43, s2, 2")
    a("s_add_u32 s43, s43, s3")
    a("s_and_b32 s53, s43, 1")
    a("s_sub_u32 s36, s43, 448")
    a("s_lshr_b32 s37, s43, 1")
    a("s_cmp_ge_u32 s43, 896")
    a("s_cselect_b32 s43, s36, s37")
    a("s_cselect_b32 s53, 2, s53")
    a("s_waitcnt vmcnt(15)")
    a("s_barrier")
    a("s_waitcnt vmcnt(10)")
    a("s_barrier")
    a("s_waitcnt vmcnt(5)")
    a("s_barrier")
    a("s_mov_b32 s34, 4")
    def issue2():
        a("s_add_u32 s35, s33, s24")
        a("s_mov_b32 m0, s35")
        a("s_add_u32 s36, s35, %d" % TREG)
        for n in range(4):
            a("buffer_load_dwordx4 v%d, s[8:11], s26 offen offset:%d lds" % (10 + n, n * 1024))
        a("s_mov_b32 m0, s36")
        a("s_add_u32 s37, s27, s32")
        for n in range(4):
            a("buffer_load_dwordx4 v14, s[12:15], s27 offen offset:%d sc1 lds" % (n * 1024))
        a("s_add_u32 s36, s36, s32")
        a("s_mov_b32 m0, s36")
        a("s_mov_b64 exec, 0xffffffff")
        a("buffer_load_dwordx4 v14, s[12:15], s37 offen sc1 lds")
        a("s_mov_b64 exec, -1")
        a("s_add_u32 s26, s26, 128")
        a("s_add_u32 s27, s27, 18432")
        a("s_add_u32 s33, s33, %d" % SLOT)
        a("s_cmp_eq_u32 s33, %d" % (R * SLOT))
        a("s_cselect_b32 s33, 0, s33")
    a.label("%s_lloop" % name)
    issue2()
    a("s_cmp_eq_u32 s34, 18")
    a("s_cbranch_scc1 %s_hk1" % name)
    a("s_cmp_eq_u32 s34, 21")
    a("s_cbranch_scc1 %s_hk2" % name)
    a("s_cmp_eq_u32 s34, 22")
    a("s_cbranch_scc1 %s_hk2g" % name)
    a.label("%s_lw9" % name)
    a("s_waitcnt vmcnt(9)")
    a.label("%s_lcont" % name)
    a("s_barrier")
    a("s_add_u32 s34, s34, 1")
    a("s_cmp_lt_u32 s34, 32")
    a("s_cbranch_scc1 %s_lloop" % name)
    a("s_branch %s_ldone" % name)
    a.label("%s_hk1" % name)
    a("s_cmp_lg_u32 s3, 0")
    a("s_cbranch_scc1 %s_lw9" % name)
    a("v_lshlrev_b32 v28, 7, v2")
    a("s_mov_b32 s52, 0x%x" % (XFLG + 0))
    a("buffer_load_dword v32, v28, s[12:15], s52 offen sc1")
    a("s_mov_b32 s52, 0x%x" % (XFLG + 8192))
    a("buffer_load_dword v33, v28, s[12:15], s52 offen sc1")
    a("s_mov_b32 s52, 0x%x" % (XFLG + 16384))
    a("buffer_load_dword v34, v28, s[12:15], s52 offen sc1")
    a("s_mov_b32 s52, 0x%x" % (XFLG + 24576))
    a("buffer_load_dword v35, v28, s[12:15], s52 offen sc1")
    a("s_waitcnt vmcnt(13)")
    a("s_branch %s_lcont" % name)
    a.label("%s_hk2" % name)
    a("s_cmp_lg_u32 s3, 0")
    a("s_cbranch_scc1 %s_lw9" % name)
    a("s_mov_b32 s52, 0")
    a.label("%s_hk2l" % name)
    a("v_and_b32 v32, v32, v33")
    a("v_and_b32 v34, v34, v35")
    a("v_and_b32 v32, v32, v34")
    a("v_cmp_eq_u32 vcc, 1, v32")
    a("s_nop 1")
    a("v_cndmask_b32 v32, 0, 16, vcc")
    a("v_cmp_gt_u32 vcc, 16, v32")
    a("s_add_u32 s52, s52, 1")
    a("s_cmp_gt_u32 s52, %d" % SPIN_MAX)
    a("s_cbranch_scc1 %s_lw9" % name)
    a("s_cbranch_vccz %s_lw9" % name)
    a("s_sleep 16")
    a("s_mov_b32 s38, 0x%x" % (XFLG + 0))
    a("buffer_load_dword v32, v28, s[12:15], s38 offen sc1")
    a("s_mov_b32 s38, 0x%x" % (XFLG + 8192))
    a("buffer_load_dword v33, v28, s[12:15], s38 offen sc1")
    a("s_mov_b32 s38, 0x%x" % (XFLG + 16384))
    a("buffer_load_dword v34, v28, s[12:15], s38 offen sc1")
    a("s_mov_b32 s38, 0x%x" % (XFLG + 24576))
    a("buffer_load_dword v35, v28, s[12:15], s38 offen sc1")
    a("s_waitcnt vmcnt(0)")
    a("s_branch %s_hk2l" % name)
    a.label("%s_hk2g" % name)
    nconv = emit_conv_loads(a, " sc1")
    a("s_waitcnt vmcnt(%d)" % (9 + nconv))
    a("s_branch %s_lcont" % name)
    a.label("%s_ldone" % name)
    a("s_waitcnt vmcnt(0)")
    a("s_barrier")
    a("s_mov_b32 s26, s53")
    a("s_and_b32 s27, s3, 1")
    a("s_mul_i32 s27, s27, %d" % CJ_SIZE)
    a("s_lshr_b32 s36, s3, 1")
    a("s_mul_i32 s36, s36, %d" % SLOT)
    a("s_add_u32 s27, s27, s36")
    a("s_add_u32 s27, s27, %d" % RB)
    def mid():
        a("s_barrier")
        a("s_setprio 0")
    sv = set(DBG); DBG.discard("stamp")
    lb_ = len(a.lines)
    emit_conv_job(a, name, mid)
    for n_ in range(lb_, len(a.lines)):
        if "buffer_store_dwordx2" in a.lines[n_]: a.lines[n_] += " sc1"
    DBG.update(sv)
    stamp(a, 9)
    c_common()
    cTa = [4, 4]; cTb = [6, 6]; cF_ = 8; cFh = 9
    kTa = 88; kTb = 90; kF = 92; kFh = 93
    a("v_and_b32 v3, 15, v2")
    a("v_lshrrev_b32 v10, 5, v2")
    a("v_lshlrev_b32 v10, 11, v10")
    a("v_bfe_u32 v11, v2, 4, 1")
    a("v_lshl_add_u32 v10, v11, 4, v10")
    a("v_lshl_add_u32 v10, v3, 5, v10")
    a("s_lshl_b32 s26, s3, 12")
    a("v_add_u32 v10, s26, v10")
    a("s_lshl_b32 s26, s53, 10")
    a("v_add_u32 v%d, s26, v10" % kTa)
    a("s_xor_b32 s26, s26, 1024")
    a("v_add_u32 v%d, s26, v10" % kTb)
    a("v_lshrrev_b32 v10, 2, v2")
    a("v_mul_u32_u24 v10, %d, v10" % CFS)
    a("v_and_b32 v11, 3, v2")
    a("v_lshl_add_u32 v10, v11, 3, v10")
    a("s_mul_i32 s26, s3, %d" % (32 * CFS))
    a("s_add_u32 s26, s26, %d" % CTREG)
    a("v_add_u32 v%d, s26, v10" % kF)
    a("v_add_u32 v%d, 128, v%d" % (kFh, kF))
    a("v_mov_b32 v26, %d" % LC)
    a("v_mov_b32 v27, 1")
    a("s_waitcnt vmcnt(0)")
    a("s_mov_b64 exec, 1")
    a("ds_add_rtn_u32 v28, v26, v27 offset:20")
    a("s_waitcnt lgkmcnt(0)")
    a("v_readfirstlane_b32 s36, v28")
    a("s_cmp_lg_u32 s36, 3")
    a("s_cbranch_scc1 %s_nocs" % name)
    a("s_lshl_b32 s36, s2, 7")
    a("s_add_u32 s36, s36, 0x%x" % CFLG)
    a("v_mov_b32 v28, 0")
    a("buffer_store_dword v27, v28, s[12:15], s36 offen sc1")
    a.label("%s_nocs" % name)
    a("s_mov_b64 exec, -1")
    fin_loads()
    core3 = G.Core(a, ACC, FB[0], FB[1], CFS, CTREG, cTa, cTb, cF_, cFh, TT=512)
    pairs = ((cTa[0], kTa), (cF_, kF), (cTb[0], kTb), (cFh, kFh))
    a("s_mov_b32 s27, %d" % C0)
    for d, s_ in pairs: a("v_add_u32 v%d, s27, v%d" % (d, s_))
    for r in range(ACC, ACC + 72): a("v_mov_b32 v%d, 0" % r)
    a("s_mov_b32 s33, 0")
    a("s_barrier")
    stamp(a, 10)
    core3.prime(0, core3.reads(0, 0))
    def citer(buf):
        core3.trk.drain()
        a("s_barrier")
        a("s_add_u32 s27, s27, %d" % CSL)
        a("s_cmp_eq_u32 s27, %d" % CW)
        a("s_cselect_b32 s27, %d, s27" % RB)
        pre = ["v_add_u32 v%d, s27, v%d" % (d, s_) for d, s_ in pairs]
        core3.phase(buf, core3.reads(1 - buf, 0), pre=pre)
    a.label("%s_ccloop" % name)
    citer(0); citer(1)
    a("s_add_u32 s33, s33, 1")
    a("s_cmp_lt_u32 s33, 9")
    a("s_cbranch_scc1 %s_ccloop" % name)
    core3.trk.drain()
    stamp(a, 11)
    a("s_mul_i32 s33, s3, %d" % (18 * 1024))
    a("s_add_u32 s33, s33, %d" % C0)
    a("v_lshlrev_b32 v10, 4, v2")
    a("v_add_u32 v11, s33, v10")
    a("s_nop 4")
    for n, (ft, tt) in enumerate(TILES):
        a("ds_write_b128 v11, %s offset:%d" % (vr(core3.accr(ft, tt)), 1024 * tidx(ft, tt)))
        if n in (7, 13): a("s_waitcnt lgkmcnt(4)")
    a("s_waitcnt lgkmcnt(0) vmcnt(0)")
    a.label("%s_cfin" % name)
    a("s_barrier")
    stamp(a, 12)
    a("v_lshlrev_b32 v10, 4, v2")
    a("v_lshrrev_b32 v11, 2, v2")
    a("v_lshlrev_b32 v11, 7, v11")
    a("v_and_b32 v12, 3, v2")
    a("v_lshl_add_u32 v11, v12, 3, v11")
    a("s_mov_b32 s33, 0xbfb8aa3b")
    PT = 16; YR = 64
    for s_ in range(3):
        b = 64 + 4 * s_
        if s_ == 2:
            a("s_cmp_ge_u32 s54, 2")
            a("s_cbranch_scc1 %s_rd" % name)
        a("v_add_u32 v4, s%d, v10" % (b + 2))
        a("v_add_u32 v5, s%d, v11" % (b + 1))
        for q in range(4):
            a("ds_read_b128 %s, v4 offset:%d" % (vr(PT + 16 * s_ + 4 * q), 18432 * q))
        a("ds_read_b64_tr_b16 %s, v5" % vr(YR + 2 * s_, 2))
    a.label("%s_rd" % name)
    T = 104
    for s_ in range(3):
        b = 64 + 4 * s_
        if s_ == 0: a("s_waitcnt lgkmcnt(5)")
        if s_ == 1: a("s_waitcnt lgkmcnt(0)")
        if s_ == 2:
            a("s_cmp_ge_u32 s54, 2")
            a("s_cbranch_scc1 %s_done" % name)
        o = PT + 16 * s_; X = XR + 2 * s_; Y = YR + 2 * s_; S_ = ST + 2 * s_
        for h in (0, 2):
            a("v_pk_add_f32 %s, %s, %s" % (vr(o + h, 2), vr(o + h, 2), vr(o + 4 + h, 2)))
            a("v_pk_add_f32 %s, %s, %s" % (vr(o + 8 + h, 2), vr(o + 8 + h, 2), vr(o + 12 + h, 2)))
        for h in (0, 2):
            a("v_pk_add_f32 %s, %s, %s" % (vr(o + h, 2), vr(o + h, 2), vr(o + 8 + h, 2)))
        rnd_pair(a, T + 20, o, o + 1); rnd_pair(a, T + 21, o + 2, o + 3)
        for r in range(4): a("v_mul_f32 v%d, s33, v%d" % (T + r, o + r))
        for r in range(4): a("v_exp_f32 v%d, v%d" % (T + r, T + r))
        a("v_lshlrev_b32 v%d, 16, v%d" % (T + 4, X)); a("v_and_b32 v%d, 0xffff0000, v%d" % (T + 5, X))
        a("v_lshlrev_b32 v%d, 16, v%d" % (T + 6, X + 1)); a("v_and_b32 v%d, 0xffff0000, v%d" % (T + 7, X + 1))
        for r in range(4): a("v_add_f32 v%d, 1.0, v%d" % (T + r, T + r))
        for r in range(4): a("v_rcp_f32 v%d, v%d" % (T + r, T + r))
        for r in range(4): a("v_sub_f32 v%d, v%d, v%d" % (T + 12 + r, T + 4 + r, S_))
        a("v_lshlrev_b32 v%d, 16, v%d" % (T + 8, Y)); a("v_and_b32 v%d, 0xffff0000, v%d" % (T + 9, Y))
        a("v_lshlrev_b32 v%d, 16, v%d" % (T + 10, Y + 1)); a("v_and_b32 v%d, 0xffff0000, v%d" % (T + 11, Y + 1))
        for r in range(4): a("v_mul_f32 v%d, v%d, v%d" % (o + r, o + r, T + r))
        rnd_pair(a, T + 20, T + 12, T + 13); rnd_pair(a, T + 21, T + 14, T + 15)
        rnd_pair(a, T + 22, o, o + 1); rnd_pair(a, T + 23, o + 2, o + 3)
        for r in range(4): a("v_mul_f32 v%d, v%d, v%d" % (T + 12 + r, T + 12 + r, S_ + 1))
        rnd_pair(a, T + 20, T + 12, T + 13); rnd_pair(a, T + 21, T + 14, T + 15)
        for r in range(4): a("v_mul_f32 v%d, v%d, v%d" % (T + 12 + r, T + 12 + r, T + 8 + r))
        rnd_pair(a, T + 20, T + 12, T + 13); rnd_pair(a, T + 21, T + 14, T + 15)
        for r in range(4): a("v_mul_f32 v%d, v%d, v%d" % (T + 12 + r, T + 12 + r, o + r))
        rnd_pair(a, T + 20, T + 12, T + 13); rnd_pair(a, T + 21, T + 14, T + 15)
        for r in range(4): a("v_add_f32 v%d, v%d, v%d" % (T + 12 + r, T + 12 + r, T + 4 + r))
        a("v_cvt_pk_bf16_f32 v%d, v%d, v%d" % (X, T + 12, T + 13))
        a("v_cvt_pk_bf16_f32 v%d, v%d, v%d" % (X + 1, T + 14, T + 15))
        a("buffer_store_dwordx2 %s, v13, s[28:31], s%d offen" % (vr(X, 2), b))
    a.label("%s_done" % name)
    stamp(a, 13)
    G.stamp_rt(a, 1)
    a.label("%s_end" % name)
    a("s_endpgm")
    a.label("%s_kvsubA" % name)
    a("s_mov_b64 s[34:35], s[38:39]")
    a.label("%s_kvsub" % name)
    a.lines.extend(kvl)
    a("s_setpc_b64 s[34:35]")
    for ft in range(5):
        a.label("%s_gsub%d" % (name, ft))
        tts = range(4 if ft < 4 else 2)
        emit_fold_gelu(a, [(128 + 4 * tidx(ft, tt), CS + 4 * ft, MR + 2 * tt, ZP + 2 * tidx(ft, tt)) for tt in tts], 72)
        a("s_setpc_b64 s[34:35]")
    return a.text(), kernel_desc(name, 256, 256), (name, 256, 512, 163840)

def gen_kf18(name="k1_kernel", R=4):
    a = Asm()
    RB = 4096; SLOT = 34816; TREG = 16384; FS = 288; RST = 0
    LDSB = RB + R * SLOT
    LC = 2048
    ZFLG = 0x2D00000; PFL = 128
    KVL = 143360; XFLG = 0x2D20000; CFLG = 0x2D30000
    C0 = 77824; CW = 151552; CSL = 36864; YOFF = 151552; CTREG = 16384; CFS = 160
    from gen3 import emit_conv_loads, emit_conv_job, CJ_SIZE
    def capture(f, *args):
        lb = len(a.lines); f(*args); out = a.lines[lb:]; del a.lines[lb:]; return out

    def c_common():
        a("s_load_dwordx2 s[4:5], s[0:1], 0")
        a("s_load_dwordx2 s[16:17], s[0:1], 88")
        a("s_and_b32 s20, s2, 7")
        a("s_lshr_b32 s21, s2, 3")
        a("s_and_b32 s22, s20, 3")
        a("s_lshl_b32 s22, s22, 3")
        a("s_and_b32 s23, s21, 7")
        a("s_add_u32 s22, s22, s23")
        a("s_lshr_b32 s23, s20, 2")
        a("s_lshl_b32 s23, s23, 2")
        a("s_lshr_b32 s24, s21, 3")
        a("s_add_u32 s23, s23, s24")
        a("s_lshr_b32 s52, s23, 1")
        a("s_and_b32 s53, s23, 1")
        a("s_lshl_b32 s54, s98, 2")
        a("s_add_u32 s54, s54, s3")
        a("s_waitcnt lgkmcnt(0)")
        srd(a, 8, 4, 2048 * 576 * 2)
        srd(a, 28, 16, 2048 * 576 * 2)
    XR = 200; ST = 208
    def fin_loads():
        a("v_and_b32 v3, 15, v2")
        a("v_lshrrev_b32 v10, 4, v2")
        a("v_mul_u32_u24 v13, 1152, v3")
        a("v_lshl_add_u32 v13, v10, 3, v13")
        a("v_lshlrev_b32 v12, 3, v3")
        for s_ in range(3):
            if s_ == 2:
                a("s_cmp_ge_u32 s54, 2")
                a("s_cbranch_scc1 %s_fl%d" % (name, fin_loads.cnt))
            b = 64 + 4 * s_
            if s_ < 2:
                a("s_add_u32 s36, s54, %d" % (8 * s_))
                a("s_lshr_b32 s37, s36, 2")
                a("s_and_b32 s38, s36, 3")
                a("s_mul_i32 s39, s53, 160")
                a("s_lshl_b32 s40, s37, 5")
                a("s_add_u32 s39, s39, s40")
            else:
                a("s_add_u32 s36, s54, 16")
                a("s_mov_b32 s37, 4")
                a("s_mov_b32 s38, s54")
                a("s_mov_b32 s39, 128")
            a("s_lshl_b32 s40, s53, 1")
            a("s_add_u32 s38, s38, s40")
            a("s_and_b32 s38, s38, 3")
            a("s_lshl_b32 s40, s22, 2")
            a("s_add_u32 s40, s40, s38")
            a("s_lshl_b32 s40, s40, 4")
            a("s_mul_i32 s%d, s40, 1152" % b)
            a("s_add_u32 s%d, s%d, s39" % (b, b))
            a("s_mul_i32 s39, s52, 288")
            a("s_add_u32 s%d, s%d, s39" % (b, b))
            a("s_lshl_b32 s%d, s37, 11" % (b + 1))
            a("s_lshl_b32 s39, s38, 5")
            a("s_add_u32 s%d, s%d, s39" % (b + 1, b + 1))
            a("s_add_u32 s%d, s%d, %d" % (b + 1, b + 1, YOFF))
            a("s_lshl_b32 s%d, s36, 10" % (b + 2))
            a("s_add_u32 s%d, s%d, %d" % (b + 2, b + 2, C0))
            a("s_lshl_b32 s40, s40, 3")
            a("s_add_u32 s40, s40, 0x%x" % STATS1)
            a("buffer_load_dwordx2 %s, v13, s[8:11], s%d offen" % (vr(XR + 2 * s_, 2), b))
            a("buffer_load_dwordx2 %s, v12, s[12:15], s40 offen sc1" % vr(ST + 2 * s_, 2))
        a.label("%s_fl%d" % (name, fin_loads.cnt))
        fin_loads.cnt += 1
    fin_loads.cnt = 0
    kernel_begin(a, name)
    a("s_load_dwordx2 s[80:81], s[0:1], 0")
    a("s_load_dwordx2 s[4:5], s[0:1], 56")
    a("s_load_dwordx2 s[6:7], s[0:1], 104")
    a("s_load_dwordx2 s[18:19], s[0:1], 96")
    a("s_cmp_ge_u32 s2, 256")
    a("s_cbranch_scc1 %s_end" % name)
    a("v_lshrrev_b32 v1, 6, v0")
    a("v_and_b32 v2, 63, v0")
    a("v_readfirstlane_b32 s3, v1")
    G2.tile_ij(a)
    a("s_lshr_b32 s98, s3, 2")
    a("s_mov_b32 s54x, 0".replace("s54x", "s99"))
    a("s_and_b32 s3, s3, 3")
    a("s_lshr_b32 s24, s3, 1")
    a("s_and_b32 s25, s3, 1")
    a("v_and_b32 v3, 15, v2")
    VT = 204; VF = 208
    def loader_setup():
        a("v_lshrrev_b32 v5, 3, v2")
        a("v_and_b32 v4, 7, v2")
        a("s_lshl_b32 s36, s3, 5")
        a("v_add_u32 v5, s36, v5")
        a("v_lshrrev_b32 v7, 4, v2")
        a("v_xor_b32 v7, v7, v4")
        a("v_mul_u32_u24 v6, 1152, v5")
        a("v_lshl_add_u32 v%d, v7, 4, v6" % VT)
        a("v_xor_b32 v%d, 64, v%d" % (VT + 1, VT))
        a("v_add_u32 v%d, %d, v%d" % (VT + 1, 9216 - 1024, VT + 1))
        a("v_add_u32 v%d, %d, v%d" % (VT + 2, 2 * (9216 - 1024), VT))
        a("v_add_u32 v%d, %d, v%d" % (VT + 3, 2 * (9216 - 1024), VT + 1))
        a("s_lshl_b32 s84, s3, 12")
        a("s_add_u32 s84, s84, %d" % RB)
        a("s_lshl_b32 s85, s3, 9")
        a("s_add_u32 s85, s85, %d" % (RB + TREG + 16384))
    def loader_setup2():
        for n in range(5):
            if n < 4:
                a("s_lshl_b32 s36, s3, 8")
                a("s_add_u32 s36, s36, %d" % (64 * n))
            else:
                a("s_lshl_b32 s36, s3, 5")
                a("s_add_u32 s36, s36, 1024")
            a("v_add_u32 v6, s36, v2")
            a("v_mul_u32_u24 v7, 3641, v6")
            a("v_lshrrev_b32 v7, 16, v7")
            a("v_mul_u32_u24 v8, 18, v7")
            a("v_sub_u32 v8, v6, v8")
            a("v_and_b32 v9, 35, v7")
            a("v_bfe_u32 v6, v7, 2, 2")
            a("v_lshl_add_u32 v9, v6, 3, v9")
            a("v_bfe_u32 v6, v7, 4, 1")
            a("v_lshl_add_u32 v9, v6, 2, v9")
            a("v_mul_u32_u24 v9, 9216, v9")
            a("v_lshl_add_u32 v%d, v8, 4, v9" % (VF + n))
            if 0 < n < 4: a("v_subrev_u32 v%d, %d, v%d" % (VF + n, 1024 * n, VF + n))
    def issueT(g):
        st = g % 9
        a("s_add_u32 s86, s84, %d" % ((g % R) * SLOT))
        a("s_mov_b32 m0, s86")
        a("s_add_u32 s87, s82, %d" % (128 * st))
        for n in range(4):
            a("buffer_load_dwordx4 v%d, s[28:31], s87 offen offset:%d lds" % (VT + n, 1024 * n))
    def issueF(g):
        st = g % 9
        a("s_add_u32 s86, s84, %d" % ((g % R) * SLOT + TREG))
        a("s_mov_b32 m0, s86")
        a("s_add_u32 s87, s83, %d" % (64 * 9216 * st + (4608 if g < 9 else 0)))
        for n in range(4):
            a("buffer_load_dwordx4 v%d, s[8:11], s87 offen offset:%d lds" % (VF + n, 1024 * n))
        a("s_add_u32 s86, s85, %d" % ((g % R) * SLOT))
        a("s_mov_b32 m0, s86")
        a("s_mov_b64 exec, 0xffffffff")
        a("buffer_load_dwordx4 v%d, s[8:11], s87 offen lds" % (VF + 4))
        a("s_mov_b64 exec, -1")
    def srds_main():
        srd(a, 28, 80, 2048 * 576 * 2)
        srd(a, 8, 4, 576 * 4608 * 2)
        srd(a, 12, 6, WS_BYTES)
        srd(a, 60, 18, 256)
        a("s_mul_i32 s82, s22, %d" % (128 * 1152))
        a("s_mul_i32 s83, s23, 288")
    ACC = 128; FB = [16, 52]; CS = 216; ONE = 236
    vTa = [4, 5]; vTb = [6, 7]; vF = 8; vFh = 9
    bTa = [88, 89]; bTb = [90, 91]; bF = 92; bFh = 93
    def mma_setup():
        a("v_lshrrev_b32 v10, 4, v2")
        a("v_lshrrev_b32 v11, 1, v3")
        a("v_xor_b32 v10, v10, v11")
        a("v_lshlrev_b32 v10, 4, v10")
        a("v_lshl_add_u32 v10, v3, 7, v10")
        a("s_lshl_b32 s26, s24, 13")
        a("s_add_u32 s26, s26, %d" % RB)
        a("v_add_u32 v10, s26, v10")
        a("s_lshl_b32 s26, s25, 12")
        a("v_add_u32 v%d, s26, v10" % bTa[0])
        a("s_xor_b32 s26, s26, 4096")
        a("v_add_u32 v%d, s26, v10" % bTb[0])
        a("v_xor_b32 v%d, 64, v%d" % (bTa[1], bTa[0]))
        a("v_xor_b32 v%d, 64, v%d" % (bTb[1], bTb[0]))
        a("v_lshrrev_b32 v10, 2, v2")
        a("v_mul_u32_u24 v10, %d, v10" % FS)
        a("v_and_b32 v11, 3, v2")
        a("v_lshl_add_u32 v10, v11, 3, v10")
        a("v_add_u32 v10, %d, v10" % (RB + TREG))
        a("s_mul_i32 s26, s25, 160")
        a("v_add_u32 v%d, s26, v10" % bF)
        a("v_add_u32 v%d, 128, v10" % bFh)
        for r in range(ACC, ACC + 72): a("v_mov_b32 v%d, 0" % r)
        for r in range(CS, CS + 20): a("v_mov_b32 v%d, 0" % r)
        for r in range(ONE, ONE + 4): a("v_mov_b32 v%d, 0x3f803f80" % r)
    def mma_addr(slot):
        a("s_mov_b32 s27, %d" % (slot * SLOT))
        for d, s_ in ((vTa[0], bTa[0]), (vTb[0], bTb[0]), (vTa[1], bTa[1]), (vTb[1], bTb[1]), (vF, bF), (vFh, bFh)):
            a("v_add_u32 v%d, s27, v%d" % (d, s_))
    core = G.Core(a, ACC, FB[0], FB[1], FS, TREG, vTa, vTb, vF, vFh)
    trk = core.trk
    a("s_cmp_eq_u32 s98, 0")
    a("s_cbranch_scc1 %s_A0" % name)
    a("s_setprio 3")
    loader_setup()
    a("s_waitcnt lgkmcnt(0)")
    srds_main()
    vm = VmTracker(a)
    def issue(g, vmx):
        issueT(g); issueF(g); vmx.issue("S%d" % g, 9)
    issueT(0)
    loader_setup2()
    issueF(0); vm.issue("S0", 9)
    issue(1, vm); issue(2, vm); issue(3, vm)
    a("s_add_u32 s3, s3, 4"); stamp_setup(a, 1); stamp(a, 0); a("s_sub_u32 s3, s3, 4")
    a("s_load_dwordx4 s[64:67], s[0:1], 8")
    a("s_load_dwordx2 s[76:77], s[0:1], 24")
    mma_setup()
    a("s_waitcnt lgkmcnt(0)")
    srd(a, 68, 66, 2048 * 576 * 2)
    a("s_mov_b32 s88, s64"); a("s_mov_b32 s89, s65")
    srd(a, 64, 88, 2048 * 576 * 2)
    srd(a, 72, 76, 576 * 8)
    def kv_dma():
        a("s_lshr_b32 s36, s2, 3")
        a("s_mul_i32 s36, s36, %d" % (64 * 1152))
        a("s_and_b32 s37, s2, 7")
        a("s_mul_i32 s37, s37, 144")
        a("s_add_u32 s36, s36, s37")
        for q in range(5):
            a("s_add_u32 s38, s3, %d" % (4 * q))
            if q == 4: a("s_min_u32 s38, s38, 18")
            isK = (q < 2); isV = (q > 2)
            a("s_sub_u32 s39, s38, 10")
            a("s_cmp_lt_u32 s38, 10")
            a("s_cselect_b32 s39, s38, s39")
            a("s_cselect_b32 s40, %d, 0" % ((-3 * 1152) & 0xffffffff))
            a("s_lshl_b32 s37, s39, 6")
            a("v_add_u32 v240, s37, v2")
            a("v_mul_u32_u24 v241, 7282, v240")
            a("v_lshrrev_b32 v241, 16, v241")
            a("v_mul_u32_u24 v242, 9, v241")
            a("v_sub_u32 v242, v240, v242")
            a("v_mul_u32_u24 v241, 1152, v241")
            a("v_lshl_add_u32 v241, v242, 4, v241")
            a("s_add_u32 s40, s40, s36")
            a("v_add_u32 v241, s40, v241")
            a("s_lshl_b32 s37, s38, 10")
            a("s_add_u32 s37, s37, %d" % KVL)
            a("s_mov_b32 m0, s37")
            if isK:
                a("s_nop 0")
                a("buffer_load_dwordx4 v241, s[64:67], 0 offen lds")
            elif isV:
                a("s_nop 0")
                a("buffer_load_dwordx4 v241, s[68:71], 0 offen lds")
            else:
                a("s_cmp_lt_u32 s38, 10")
                a("s_cbranch_scc1 %s_kd1" % name)
                a("buffer_load_dwordx4 v241, s[68:71], 0 offen lds")
                a("s_branch %s_kd2" % name)
                a.label("%s_kd1" % name)
                a("buffer_load_dwordx4 v241, s[64:67], 0 offen lds")
                a.label("%s_kd2" % name)
    RA = 96; XB = 112
    for r in range(RA, RA + 16): a("v_mov_b32 v%d, 0" % r)
    a("v_lshrrev_b32 v10, 4, v2")
    a("v_lshrrev_b32 v11, 1, v3")
    a("v_xor_b32 v10, v10, v11")
    a("v_lshlrev_b32 v10, 4, v10")
    a("v_lshl_add_u32 v10, v3, 7, v10")
    a("v_add_u32 v12, s84, v10")
    a("v_xor_b32 v13, 64, v12")
    def rs_rd(g):
        a("v_add_u32 v10, %d, v12" % ((g % R) * SLOT))
        a("v_add_u32 v11, %d, v13" % ((g % R) * SLOT))
        for h in range(2):
            for n in range(2):
                a("ds_read_b128 %s, v%d offset:%d" % (vr(XB + 8 * h + 4 * n), 10 + h, 2048 * n))
    def rs_do():
        for h in range(2):
            for n in range(2):
                x = XB + 8 * h + 4 * n
                a("v_mfma_f32_16x16x32_bf16 %s, %s, %s, %s" % (vr(RA + 4 * n), vr(ONE), vr(x), vr(RA + 4 * n)))
                a("v_mfma_f32_16x16x32_bf16 %s, %s, %s, %s" % (vr(RA + 8 + 4 * n), vr(x), vr(x), vr(RA + 8 + 4 * n)))
    def interleave(dma, comp, vmx=None):
        groups = []; cur = []
        for l in dma:
            cur.append(l)
            if "buffer_load" in l and not any("exec, 0xffffffff" in x for x in cur[-2:]):
                groups.append(cur); cur = []
            elif "exec, -1" in l:
                groups.append(cur); cur = []
        if cur: groups.append(cur)
        ns = max(1, len(groups))
        per = (len(comp) + ns - 1) // ns
        for g in groups:
            a.lines.extend(g)
            a.lines.extend(comp[:per]); comp = comp[per:]
        a.lines.extend(comp)
    vm.wait(["S0"])
    a("s_barrier")
    stamp(a, 1)
    rs_rd(0)
    vm.wait(["S1"])
    a("s_barrier")
    for k in range(9):
        a("s_waitcnt lgkmcnt(0)")
        dma = capture(lambda: (issueT(k + 3), issueF(k + 3))) if 1 <= k < 8 else []
        interleave(dma, capture(rs_do))
        if 1 <= k < 8: vm.issue("S%d" % (k + 3), 9)
        if k == 3:
            kv_dma(); vm.issue("KV", 5)
        if k < 8:
            rs_rd(k + 1)
        else:
            a("s_nop 7")
            a("v_lshrrev_b32 v10, 4, v2")
            a("v_lshrrev_b32 v11, 2, v3")
            a("v_and_b32 v12, 3, v3")
            for n in range(2):
                G_ = RA + 8 + 4 * n
                for r in range(1, 4):
                    a("v_cmp_eq_u32 vcc, %d, v12" % r)
                    a("s_nop 1")
                    a("v_cndmask_b32 v%d, v%d, v%d, vcc" % (G_, G_, G_ + r))
            ML = 112
            for n in range(2):
                emit_ln_finish(a, RA + 4 * n, RA + 8 + 4 * n, 576, ML + 2 * n, ML + 2 * n + 1, 120)
                a("v_mov_b32 v%d, v%d" % (117 + 2 * n, ML + 2 * n + 1))
                a("v_sub_f32 v%d, 0, v%d" % (116 + 2 * n, ML + 2 * n))
            a("s_lshl_b32 s35, s3, 8")
            a("v_lshlrev_b32 v13, 3, v3")
            a("v_add_u32 v12, s35, v13")
            a("v_cmp_eq_u32 vcc, v10, v11")
            a("s_and_saveexec_b64 s[36:37], vcc")
            for n in range(2):
                a("ds_write_b64 v12, %s offset:%d" % (vr(116 + 2 * n, 2), RST + 128 * n))
            a("s_mov_b64 exec, s[36:37]")
            a("s_cmp_lg_u32 s23, 0")
            a("s_cbranch_scc1 %s_nost1" % name)
            a("s_lshl_b32 s35, s22, 7")
            a("s_lshl_b32 s36, s3, 5")
            a("s_add_u32 s35, s35, s36")
            a("s_lshl_b32 s35, s35, 3")
            a("s_add_u32 s35, s35, 0x%x" % STATS1)
            a("v_mov_b32 v11, 0x7ffffff0")
            a("v_cndmask_b32 v13, v11, v13, vcc")
            for n in range(2):
                a("buffer_store_dwordx2 %s, v13, s[12:15], s35 offen offset:%d sc1" % (vr(ML + 2 * n, 2), 128 * n))
            a.label("%s_nost1" % name)
            a("v_and_b32 v0, 255, v0")
            lb_ = len(a.lines)
            a("s_mov_b32 s42, s2")
            emit_wot_loads(a, 100, 243, 720, 3)
            n_ = 0
            for i_ in range(lb_, len(a.lines)):
                if "buffer_load_dwordx4" in a.lines[i_]:
                    a.lines[i_] = "    v_mov_b32 v%d, v23" % (246 + n_); n_ += 1
        if k < 8:
            vm.wait(["S%d" % (k + 2)])
            a("s_barrier")
    def ho_addr():
        a("s_lshr_b32 s36, s3, 1")
        a("s_mul_i32 s36, s36, %d" % (3 * SLOT))
        a("s_and_b32 s37, s3, 1")
        a("s_mul_i32 s37, s37, 12288")
        a("s_add_u32 s36, s36, s37")
        a("s_add_u32 s36, s36, %d" % RB)
        a("v_lshlrev_b32 v10, 4, v2")
        a("v_add_u32 v95, s36, v10")
    a("s_waitcnt lgkmcnt(0)")
    a("s_barrier")
    ho_addr()
    a("s_barrier")
    n_ = 0
    for ft in range(4):
        for tt in range(2):
            a("ds_read_b128 %s, v95 offset:%d" % (vr(core.accr(ft, tt)), 1024 * n_)); n_ += 1
    for ft in range(4):
        a("ds_read_b128 %s, v95 offset:%d" % (vr(CS + 4 * ft), 1024 * n_)); n_ += 1
    a("s_branch %s_g2" % name)
    a.label("%s_A0" % name)
    emit_code_prefetch(a, name)
    a("s_load_dwordx4 s[64:67], s[0:1], 8")
    a("s_load_dwordx2 s[76:77], s[0:1], 24")
    a("s_load_dwordx2 s[78:79], s[0:1], 64")
    mma_setup()
    loader_setup(); loader_setup2()
    a("s_waitcnt lgkmcnt(0)")
    srds_main()
    srd(a, 68, 66, 2048 * 576 * 2)
    a("s_mov_b32 s88, s64"); a("s_mov_b32 s89, s65")
    srd(a, 64, 88, 2048 * 576 * 2)
    srd(a, 72, 76, 576 * 8)
    stamp_setup(a, 1); stamp(a, 0)
    def gran_addr():
        a("v_lshrrev_b32 v10, 4, v2")
        a("s_lshl_b32 s36, s25, 1")
        a("v_add_u32 v11, s36, v10")
        a("v_and_b32 v11, 3, v11")
        a("v_lshl_add_u32 v11, v11, 4, v3")
        a("v_lshlrev_b32 v94, 3, v11")
        a("s_lshl_b32 s59, s22, 15")
        a("s_lshl_b32 s36, s24, 9")
        a("s_add_u32 s59, s59, s36")
        a("s_add_u32 s59, s59, 0x%x" % STATS2)
        a("s_lshl_b32 s36, s23, 1")
        a("s_add_u32 s36, s36, s25")
        a("s_lshl_b32 s36, s36, 10")
        a("s_add_u32 s58, s36, s59")
    gran_addr()
    a("v_mov_b32 v12, 0"); a("v_mov_b32 v13, 0x80000000")
    a("buffer_store_dwordx2 v[12:13], v94, s[12:15], s58 offen sc1")
    a("s_lshl_b32 s36, s22, 4")
    a("s_add_u32 s36, s36, s23")
    a("s_lshl_b32 s36, s36, 8")
    a("s_add_u32 s97, s36, 0x%x" % ZFLG)
    a("v_mov_b32 v10, %d" % LC)
    a("v_mov_b32 v12, 0"); a("v_mov_b32 v13, 0")
    a("s_mov_b64 exec, 1")
    a("buffer_store_dword v12, v12, s[12:15], s97 offen sc1")
    a("buffer_store_dword v12, v12, s[12:15], s97 offen offset:%d sc1" % PFL)
    a("s_lshl_b32 s36, s2, 7")
    a("s_add_u32 s37, s36, 0x%x" % XFLG)
    a("s_add_u32 s36, s36, 0x%x" % CFLG)
    a("buffer_store_dword v12, v12, s[12:15], s37 offen sc1")
    a("buffer_store_dword v12, v12, s[12:15], s36 offen sc1")
    a("s_mov_b64 exec, -1")
    a("ds_write_b64 v10, v[12:13]")
    a("ds_write_b64 v10, v[12:13] offset:8")
    a("ds_write_b64 v10, v[12:13] offset:16")
    a("ds_write_b64 v10, v[12:13] offset:24")
    mma_addr(0)
    a("s_mov_b32 s33, 0")
    a("s_waitcnt lgkmcnt(0)")
    a("s_barrier")
    stamp(a, 1)
    a.label("%s_mma" % name)
    core.prime(0, core.reads(0, 0))
    trk.drain()
    nocs = [False]
    def mfmas(buf):
        L = []
        for ft in range(5):
            A = core.F(buf, ft)
            for tt in range(4 if ft < 4 else 2):
                c = core.accr(ft, tt); B = core.T(buf, tt)
                L.append(("v_mfma_f32_16x16x32_bf16 %s, %s, %s, %s" % (vr(c), vr(A), vr(B), vr(c)), list(range(A, A + 4)) + list(range(B, B + 4))))
            if not nocs[0]: L.append(("v_mfma_f32_16x16x32_bf16 %s, %s, %s, %s" % (vr(CS + 4 * ft), vr(A), vr(ONE), vr(CS + 4 * ft)), list(range(A, A + 4))))
        return L
    def phase(buf, pend):
        for (m, regs) in mfmas(buf):
            trk.need(regs)
            a(m)
            while pend:
                k, t = pend.pop(0)
                if k == "x":
                    a(t)
                    if t.startswith("s_"): continue
                else:
                    a(t[0]); trk.issue(t[1])
                break
        for k, t in pend:
            if k == "x": a(t)
            else: a(t[0]); trk.issue(t[1])
    def iteration(vw=True):
        if vw: a("s_waitcnt vmcnt(0)")
        a("s_barrier")
        rd = [("r", t) for t in core.reads(1, 1)]
        upd = ["s_add_u32 s27, s27, %d" % SLOT, "s_cmp_eq_u32 s27, %d" % (R * SLOT), "s_cselect_b32 s27, 0, s27"]
        tail = ["v_add_u32 v%d, s27, v%d" % (d, s_) for d, s_ in ((vTa[0], bTa[0]), (vF, bF), (vTb[0], bTb[0]), (vFh, bFh))]
        phase(0, rd[:1] + [("x", u) for u in upd] + rd[1:] + [("x", u) for u in tail])
        rd = [("r", t) for t in core.reads(0, 0)]
        tail = ["v_add_u32 v%d, s27, v%d" % (d, s_) for d, s_ in ((vTa[1], bTa[1]), (vTb[1], bTb[1]))] + ["s_add_u32 s33, s33, 1"]
        phase(1, rd + [("x", u) for u in tail])
    a.label("%s_cloop" % name)
    lb = len(a.lines); iteration(); st = copy.deepcopy(trk.out); del a.lines[lb:]; trk.out = copy.deepcopy(st)
    iteration()
    assert [sorted(x) for x in trk.out] == [sorted(x) for x in st]
    a("s_cmp_lt_u32 s33, 9")
    a("s_cbranch_scc1 %s_cloop" % name)
    trk.drain()
    stamp(a, 2)
    MR = 100; T = 72; ZP = 16
    ZPo = lambda n: 16 + 2 * n
    a("s_cmp_eq_u32 s98, 1")
    a("s_cbranch_scc1 %s_Btail" % name)
    a("s_waitcnt vmcnt(0)")
    a("s_barrier")
    a("s_cmp_lg_u32 s3, 0")
    a("s_cbranch_scc1 %s_nosig" % name)
    a("v_mov_b32 v10, 1")
    a("s_lshl_b32 s36, s22, 2")
    a("v_mov_b32 v11, s36")
    a("s_mov_b64 exec, 1")
    a("buffer_atomic_add v10, v11, s[60:63], 0 offen sc1")
    a("s_mov_b64 exec, -1")
    a.label("%s_nosig" % name)
    ho_addr()
    n_ = 0
    for ft in range(4):
        for tt in range(2):
            a("ds_write_b128 v95, %s offset:%d" % (vr(core.accr(ft, tt + 2)), 1024 * n_)); n_ += 1
    for ft in range(4):
        a("ds_write_b128 v95, %s offset:%d" % (vr(CS + 4 * ft), 1024 * n_)); n_ += 1
    a("s_waitcnt lgkmcnt(0)")
    a("s_barrier")
    a.label("%s_g2" % name)
    gelu_consts(a)
    a("s_xor_b32 s52, s98, s25")
    a("s_lshl_b32 s36, s24, 9")
    a("s_lshl_b32 s37, s52, 8")
    a("s_add_u32 s38, s36, s37")
    a("v_lshlrev_b32 v10, 3, v3")
    a("v_add_u32 v11, s38, v10")
    a("ds_read_b64 %s, v11 offset:%d" % (vr(MR, 2), RST))
    a("ds_read_b64 %s, v11 offset:%d" % (vr(MR + 2, 2), RST + 128))
    for r_ in range(108, 112): a("v_mov_b32 v%d, 0" % r_)
    a("s_waitcnt lgkmcnt(0)")
    def dots2(lst):
        for d in range(2):
            for (ft, tt) in lst:
                p = ZPo(2 * ft + tt) + d
                a("v_dot2_f32_bf16 v%d, v%d, v%d, v%d" % (108 + 2 * tt, p, ONE, 108 + 2 * tt))
                a("v_dot2_f32_bf16 v%d, v%d, v%d, v%d" % (109 + 2 * tt, p, p, 109 + 2 * tt))
    a("s_cmp_lg_u32 s98, 0")
    a("s_cbranch_scc1 %s_nohalf" % name)
    a("s_call_b64 s[34:35], %s_gs4" % name)
    dots2([(4, 0), (4, 1)])
    a.label("%s_nohalf" % name)
    for f0 in (0, 2):
        a("s_call_b64 s[34:35], %s_gs%d" % (name, f0))
        dots2([(ft, tt) for ft in (f0, f0 + 1) for tt in range(2)])
    a("s_nop 2")
    emit_xg_reduce(a, [108, 110, 109, 111], 72)
    a("s_lshl_b32 s59, s22, 15")
    a("s_lshl_b32 s36, s24, 9")
    a("s_add_u32 s59, s59, s36")
    a("s_add_u32 s59, s59, 0x%x" % STATS2)
    a("s_lshl_b32 s36, s23, 1")
    a("s_add_u32 s36, s36, s25")
    a("s_lshl_b32 s36, s36, 10")
    a("s_add_u32 s40, s59, s36")
    a("s_lshl_b32 s36, s52, 8")
    a("s_add_u32 s40, s40, s36")
    a("v_lshrrev_b32 v10, 4, v2")
    a("v_lshlrev_b32 v11, 3, v2")
    a("v_cmp_gt_u32 vcc, 32, v2")
    a("v_mov_b32 v12, 0x7ffffff0")
    a("v_cmp_eq_u32 s[36:37], 1, v10")
    a("v_cndmask_b32 v11, v12, v11, vcc")
    a("s_nop 0")
    a("v_cndmask_b32 v108, v108, v110, s[36:37]")
    a("v_cndmask_b32 v109, v109, v111, s[36:37]")
    a("v_and_b32 v109, 0x7fffffff, v109")
    a("buffer_store_dwordx2 v[108:109], v11, s[12:15], s40 offen sc1")
    a("s_cmp_eq_u32 s98, 0")
    a("s_cbranch_scc1 %s_A1" % name)
    for q in range(4):
        a("ds_write_b128 v95, %s offset:%d" % (vr(16 + 4 * q), 1024 * q))
    for r in range(ACC, ACC + 72): a("v_mov_b32 v%d, 0" % r)
    for r in range(CS, CS + 20): a("v_mov_b32 v%d, 0" % r)
    mma_addr(9 % R)
    a("s_mov_b32 s33, 0")
    a("s_setprio 0")
    a("s_waitcnt lgkmcnt(0)")
    a("s_barrier")
    a("s_branch %s_mma" % name)
    def epi_in():
        gelu_consts(a)
        a("s_lshl_b32 s36, s24, 9")
        a("s_lshl_b32 s37, s25, 8")
        a("s_add_u32 s38, s36, s37")
        a("s_xor_b32 s37, s37, 256")
        a("s_add_u32 s39, s36, s37")
        a("v_lshlrev_b32 v10, 3, v3")
        a("v_add_u32 v11, s38, v10")
        a("ds_read_b64 %s, v11 offset:%d" % (vr(MR, 2), RST))
        a("ds_read_b64 %s, v11 offset:%d" % (vr(MR + 2, 2), RST + 128))
        a("v_add_u32 v11, s39, v10")
        a("ds_read_b64 %s, v11 offset:%d" % (vr(MR + 4, 2), RST))
        a("ds_read_b64 %s, v11 offset:%d" % (vr(MR + 6, 2), RST + 128))
        a("s_waitcnt lgkmcnt(0)")
    S = [108, 110, 52, 54]; Q = [109, 111, 53, 55]
    def gelu_ft(ft, stats):
        tts = range(4 if ft < 4 else 2)
        a("s_call_b64 s[34:35], %s_gsub%d" % (name, ft))
        if stats:
            for d in range(2):
                for tt in tts:
                    p = ZP + 2 * tidx(ft, tt) + d
                    a("v_dot2_f32_bf16 v%d, v%d, v%d, v%d" % (S[tt], p, ONE, S[tt]))
                    a("v_dot2_f32_bf16 v%d, v%d, v%d, v%d" % (Q[tt], p, p, Q[tt]))
    a.label("%s_Btail" % name)
    a("v_mov_b32 v10, %d" % (LC + 12))
    a("v_mov_b32 v11, 1")
    a("s_mov_b64 exec, 1")
    a("ds_add_u32 v10, v11")
    a("s_mov_b64 exec, -1")
    a("s_load_dwordx2 s[94:95], s[0:1], 80")
    a("s_load_dwordx2 s[92:93], s[0:1], 72")
    epi_in()
    srd(a, 76, 94, 2304 * 576 * 2)
    srd(a, 28, 92, 2048 * 2)
    Z1R = 200; BI = 236
    for f0 in (4, 0, 2): a("s_call_b64 s[34:35], %s_gs%d" % (name, f0))
    for ft in range(5):
        for tt in range(2):
            for d in range(2): a("v_mov_b32 v%d, v%d" % (52 + 2 * (2 * ft + tt) + d, ZPo(2 * ft + tt) + d))
    for ft in range(4):
        for r_ in range(8): a("v_mov_b32 v%d, v%d" % (core.accr(ft, 0) + r_, core.accr(ft, 2) + r_))
    for r_ in range(4): a("v_mov_b32 v%d, v%d" % (MR + r_, MR + 4 + r_))
    for f0 in (0, 2): a("s_call_b64 s[34:35], %s_gs%d" % (name, f0))
    for ft in range(5):
        for tt in range(4 if ft < 4 else 2):
            src = (52 + 2 * (2 * ft + tt)) if tt < 2 else ZPo(2 * ft + tt - 2)
            for d in range(2): a("v_mov_b32 v%d, v%d" % (Z1R + 2 * tidx(ft, tt) + d, src + d))
    stamp(a, 3)
    a("s_mov_b32 s40, 0x%x" % WOT)
    for r in range(ACC, ACC + 72): a("v_mov_b32 v%d, 0" % r)
    a("v_lshrrev_b32 v10, 2, v2")
    a("v_lshlrev_b32 v10, 5, v10")
    a("v_and_b32 v11, 3, v2")
    a("v_lshl_add_u32 v10, v11, 3, v10")
    a("v_add_u32 v10, %d, v10" % (RB + TREG))
    a("s_mul_i32 s26, s25, 10240")
    a("v_add_u32 v%d, s26, v10" % bF)
    a("v_add_u32 v%d, 8192, v10" % bFh)
    core.FS = 32; core.FT = 2048
    mma_addr(0)
    a("s_mov_b32 s33, 0")
    stamp(a, 4)
    a("s_barrier")
    stamp(a, 5)
    core.prime(0, core.reads(0, 0))
    trk.drain()
    nocs[0] = True
    a.label("%s_gloop" % name)
    lb = len(a.lines); iteration(False); st = copy.deepcopy(trk.out); del a.lines[lb:]; trk.out = copy.deepcopy(st)
    iteration(False)
    assert [sorted(x) for x in trk.out] == [sorted(x) for x in st]
    a("s_cmp_lg_u32 s33, 2")
    a("s_cbranch_scc1 %s_ghkA" % name)
    for n in range(3):
        a("buffer_load_dwordx4 %s, v%d, s[76:79], 0 offen" % (vr(100 + 4 * n), 246 + n))
    a("s_lshl_b32 s36, s22, 7")
    a("s_lshl_b32 s37, s24, 6")
    a("s_add_u32 s36, s36, s37")
    a("v_lshlrev_b32 v11, 1, v3")
    a("s_lshl_b32 s37, s25, 6")
    a("s_lshl_b32 s38, s36, 1")
    a("s_add_u32 s39, s38, s37")
    a("s_xor_b32 s37, s37, 64")
    a("s_add_u32 s36, s38, s37")
    a("buffer_load_ushort v96, v11, s[28:31], s39 offen")
    a("buffer_load_ushort v97, v11, s[28:31], s39 offen offset:32")
    a("buffer_load_ushort v98, v11, s[28:31], s36 offen")
    a("buffer_load_ushort v99, v11, s[28:31], s36 offen offset:32")
    a.label("%s_ghkA" % name)
    a("s_cmp_lg_u32 s33, 6")
    a("s_cbranch_scc1 %s_ghk0" % name)
    a("s_waitcnt vmcnt(0)")
    for n in range(3):
        a("buffer_store_dwordx4 %s, v%d, s[12:15], s40 offen sc1" % (vr(100 + 4 * n), 243 + n))
    for tt in range(4): a("v_lshlrev_b32 v%d, 16, v%d" % (BI + 2 * tt, 96 + tt))
    a.label("%s_ghk0" % name)
    a("s_cmp_lg_u32 s33, 9")
    a("s_cbranch_scc1 %s_ghk" % name)
    a("s_waitcnt vmcnt(0)")
    a("v_mov_b32 v10, %d" % (LC + 8))
    a("v_mov_b32 v11, 1")
    a("s_mov_b64 exec, 1")
    a("ds_add_rtn_u32 v12, v10, v11")
    a("s_waitcnt lgkmcnt(0)")
    a("v_readfirstlane_b32 s36, v12")
    a("s_cmp_lg_u32 s36, 3")
    a("s_cbranch_scc1 %s_nokvs" % name)
    a("s_lshl_b32 s36, s2, 7")
    a("s_add_u32 s36, s36, 0x%x" % XFLG)
    a("v_mov_b32 v10, 0")
    a("buffer_store_dword v11, v10, s[12:15], s36 offen sc1")
    a.label("%s_nokvs" % name)
    a("s_mov_b64 exec, -1")
    a.label("%s_ghk" % name)
    a("s_cmp_lt_u32 s33, 32")
    a("s_cbranch_scc1 %s_gloop" % name)
    trk.drain()
    stamp(a, 6)
    G3.emit_k2_epilogue2(a, core, Z1R, BI, " sc1")
    stamp(a, 7)
    a("s_setprio 3")
    a("s_lshl_b32 s36, s22, 4")
    a("s_add_u32 s36, s36, s23")
    a("s_lshl_b32 s36, s36, 8")
    a("s_add_u32 s97, s36, 0x%x" % (ZFLG + PFL))
    c_common()
    a("v_lshlrev_b32 v14, 4, v2")
    a("s_mul_i32 s26, s22, %d" % (36 * 8192))
    a("s_lshl_b32 s24, s3, 12")
    a("s_add_u32 s26, s26, s24")
    a("s_add_u32 s26, s26, 0x%x" % PIMG)
    a("s_mul_i32 s27, s23, %d" % (18 * 20480))
    a("s_mul_i32 s25, s3, 5120")
    a("s_add_u32 s27, s27, s25")
    a("s_add_u32 s27, s27, 0x%x" % WOT)
    a("s_add_u32 s25, s25, %d" % CTREG)
    a("v_and_b32 v28, 15, v2")
    a("v_lshlrev_b32 v30, 7, v2")
    a("v_mov_b32 v26, %d" % LC)
    a("v_mov_b32 v27, 1")
    a("s_waitcnt vmcnt(0)")
    a("s_mov_b64 exec, 1")
    a("ds_add_rtn_u32 v29, v26, v27 offset:16")
    a("s_waitcnt lgkmcnt(0)")
    a("v_readfirstlane_b32 s36, v29")
    a("s_cmp_lg_u32 s36, 3")
    a("s_cbranch_scc1 %s_nops" % name)
    a("v_mov_b32 v29, 0")
    a("buffer_store_dword v27, v29, s[12:15], s97 offen sc1")
    a.label("%s_nops" % name)
    a("s_mov_b64 exec, -1")
    a("s_mov_b32 s34, 0")
    a.label("%s_cw" % name)
    a("ds_read_b32 v29, v26 offset:16")
    a("s_add_u32 s34, s34, 1")
    a("s_waitcnt lgkmcnt(0)")
    a("v_readfirstlane_b32 s36, v29")
    a("s_cmp_gt_u32 s34, %d" % (SPIN_MAX * 20))
    a("s_cbranch_scc1 %s_cwx" % name)
    a("s_cmp_ge_u32 s36, 4")
    a("s_cbranch_scc1 %s_cwx" % name)
    a("s_sleep 1")
    a("s_branch %s_cw" % name)
    a.label("%s_cwx" % name)
    def cF(off, soff):
        a("s_add_u32 s36, s25, %s" % off)
        a("s_mov_b32 m0, s36")
        a("s_add_u32 s37, %s, 4096" % soff)
        for n in range(4):
            a("buffer_load_dwordx4 v14, s[12:15], %s offen offset:%d sc1 lds" % (soff, n * 1024))
        a("s_add_u32 s36, s36, 4096")
        a("s_mov_b32 m0, s36")
        a("s_nop 0")
        a("buffer_load_dwordx4 v14, s[12:15], s37 offen sc1 lds")
    def cT(off, soff):
        a("s_add_u32 s35, s24, %s" % off)
        a("s_mov_b32 m0, s35")
        a("s_nop 0")
        for n in range(4):
            a("buffer_load_dwordx4 v14, s[12:15], %s offen offset:%d sc1 lds" % (soff, n * 1024))
    a("s_add_u32 s38, s27, 20480")
    cF(str(C0), "s27"); cF(str(C0 + CSL), "s38")
    a("s_mov_b32 s34, 0")
    a("s_cmp_lg_u32 s3, 0")
    a("s_cbranch_scc1 %s_cpl" % name)
    a("v_lshlrev_b32 v28, 8, v28")
    a("s_lshr_b32 s39, s22, 1")
    a("s_lshl_b32 s39, s39, 12")
    a("s_add_u32 s39, s39, 0x%x" % (ZFLG + PFL))
    a.label("%s_cpz" % name)
    a("buffer_load_dword v29, v28, s[12:15], s39 offen sc1")
    a("s_add_u32 s34, s34, 1")
    a("s_waitcnt vmcnt(0)")
    a("v_cmp_ne_u32 vcc, 1, v29")
    a("s_cmp_gt_u32 s34, %d" % SPIN_MAX)
    a("s_cbranch_scc1 %s_cpzx" % name)
    a("s_cbranch_vccz %s_cpzx" % name)
    a("s_sleep 8")
    a("s_branch %s_cpz" % name)
    a.label("%s_cpzx" % name)
    a("ds_write_b32 v26, v27 offset:24")
    a("s_branch %s_cgo" % name)
    a.label("%s_cpl" % name)
    a("ds_read_b32 v29, v26 offset:24")
    a("s_add_u32 s34, s34, 1")
    a("s_waitcnt lgkmcnt(0)")
    a("v_readfirstlane_b32 s36, v29")
    a("s_cmp_gt_u32 s34, %d" % (SPIN_MAX * 20))
    a("s_cbranch_scc1 %s_cgo" % name)
    a("s_cmp_lg_u32 s36, 0")
    a("s_cbranch_scc1 %s_cgo" % name)
    a("s_sleep 2")
    a("s_branch %s_cpl" % name)
    a.label("%s_cgo" % name)
    stamp(a, 8)
    a("s_add_u32 s38, s26, 16384")
    cT(str(C0), "s26"); cT(str(C0 + CSL), "s38")
    a("s_add_u32 s26, s26, 32768")
    a("s_add_u32 s27, s27, 40960")
    a("s_mov_b32 s33, %d" % RB)
    def cissue():
        cT("s33", "s26"); cF("s33", "s27")
        a("s_add_u32 s26, s26, 16384")
        a("s_add_u32 s27, s27, 20480")
        a("s_add_u32 s33, s33, %d" % CSL)
        a("s_cmp_eq_u32 s33, %d" % CW)
        a("s_cselect_b32 s33, %d, s33" % RB)
    a("s_waitcnt vmcnt(4)")
    a("s_barrier")
    cissue(); cissue()
    a("s_waitcnt vmcnt(18)")
    a("s_barrier")
    a("s_mov_b32 s34, 0")
    a.label("%s_clloop" % name)
    cissue()
    a("s_lshl_b32 s38, s3, 8")
    a("s_add_u32 s38, s38, s34")
    a("s_cmp_eq_u32 s38, 13")
    a("s_cbranch_scc1 %s_cyc" % name)
    a("s_cmp_lg_u32 s38, 10")
    a("s_cbranch_scc1 %s_cl1" % name)
    a("s_mov_b32 s38, 0x%x" % (CFLG + 0))
    a("buffer_load_dword v32, v30, s[12:15], s38 offen sc1")
    a("s_mov_b32 s38, 0x%x" % (CFLG + 8192))
    a("buffer_load_dword v33, v30, s[12:15], s38 offen sc1")
    a("s_mov_b32 s38, 0x%x" % (CFLG + 16384))
    a("buffer_load_dword v34, v30, s[12:15], s38 offen sc1")
    a("s_mov_b32 s38, 0x%x" % (CFLG + 24576))
    a("buffer_load_dword v35, v30, s[12:15], s38 offen sc1")
    a("s_waitcnt vmcnt(22)")
    a("s_branch %s_cl2" % name)
    a.label("%s_cl1" % name)
    a("s_waitcnt vmcnt(18)")
    a.label("%s_cl2" % name)
    a("s_barrier")
    a("s_add_u32 s34, s34, 1")
    a("s_cmp_lt_u32 s34, 14")
    a("s_cbranch_scc1 %s_clloop" % name)
    a("s_branch %s_cyx" % name)
    a.label("%s_cyc" % name)
    a("s_mov_b32 s39, 0")
    a.label("%s_cy" % name)
    a("v_and_b32 v32, v32, v33")
    a("v_and_b32 v34, v34, v35")
    a("v_and_b32 v32, v32, v34")
    a("v_cmp_eq_u32 vcc, 1, v32")
    a("s_nop 1")
    a("v_cndmask_b32 v32, 0, 16, vcc")
    a("v_cmp_gt_u32 vcc, 16, v32")
    a("s_add_u32 s39, s39, 1")
    a("s_cmp_gt_u32 s39, %d" % SPIN_MAX)
    a("s_cbranch_scc1 %s_cl1" % name)
    a("s_cbranch_vccz %s_cl1" % name)
    a("s_sleep 32")
    a("s_mov_b32 s38, 0x%x" % (CFLG + 0))
    a("buffer_load_dword v32, v30, s[12:15], s38 offen sc1")
    a("s_mov_b32 s38, 0x%x" % (CFLG + 8192))
    a("buffer_load_dword v33, v30, s[12:15], s38 offen sc1")
    a("s_mov_b32 s38, 0x%x" % (CFLG + 16384))
    a("buffer_load_dword v34, v30, s[12:15], s38 offen sc1")
    a("s_mov_b32 s38, 0x%x" % (CFLG + 24576))
    a("buffer_load_dword v35, v30, s[12:15], s38 offen sc1")
    a("s_waitcnt vmcnt(0)")
    a("s_branch %s_cy" % name)
    a.label("%s_cyx" % name)
    a("v_lshrrev_b32 v3, 3, v2")
    a("v_and_b32 v4, 7, v2")
    a("v_lshlrev_b32 v4, 4, v4")
    a("s_mul_i32 s33, s52, 144")
    a("s_mul_i32 s34, s53, 80")
    a("s_lshl_b32 s35, s22, 7")
    a("s_add_u32 s35, s35, 0x%x" % YT)
    for n in range(3):
        a("s_add_u32 s36, s3, %d" % (4 * n))
        if n == 2: a("s_min_u32 s36, s36, 9")
        a("s_lshl_b32 s37, s36, 3")
        a("s_add_u32 s38, s37, s33")
        if n < 2: a("s_add_u32 s38, s38, s34")
        a("v_add_u32 v5, s38, v3")
        a("v_lshl_add_u32 v5, v5, 12, v4")
        a("s_lshl_b32 s36, s36, 10")
        a("s_add_u32 s36, s36, %d" % YOFF)
        a("s_mov_b32 m0, s36")
        a("s_nop 0")
        a("buffer_load_dwordx4 v5, s[12:15], s35 offen sc1 lds")
    fin_loads()
    a("s_waitcnt vmcnt(%d)" % (9 + 7))
    a("s_barrier")
    a("s_waitcnt vmcnt(7)")
    a("s_barrier")
    a("s_barrier")
    a("s_setprio 0")
    a("s_waitcnt vmcnt(0)")
    a("s_branch %s_cfin" % name)
    a.label("%s_A1" % name)
    a("s_setprio 2")
    a("s_load_dwordx4 s[88:91], s[0:1], 32")
    vmA = VmTracker(a)
    a("s_barrier")
    for q in range(4):
        a("ds_read_b128 %s, v95 offset:%d" % (vr(36 + 4 * q), 1024 * q))
    def zreg(ft, tt):
        return (16 + 2 * (2 * ft + tt)) if tt < 2 else (36 + 2 * (2 * ft + tt - 2))
    GB = 128
    GS = (52, 53, 42, 43, 40, 41, 70, 71)
    def gather():
        for q in range(16):
            a("buffer_load_dwordx4 %s, v4, s[12:15], s%d offen offset:%d sc1" % (vr(GB + 4 * q), GS[q >> 1], 2048 * (q & 1)))
    def st_finish():
        for st_ in (32, 16, 8, 4):
            for q in range(0, st_, 2):
                a("v_pk_add_f32 %s, %s, %s" % (vr(GB + q, 2), vr(GB + q, 2), vr(GB + q + st_, 2)))
        for e in range(4): a("v_mov_b32 v%d, v%d" % (72 + e, GB + e))
        a("s_nop 1")
        for e in range(4): a("v_permlane32_swap_b32 v%d, v%d" % (GB + e, 72 + e))
        a("s_nop 1")
        for e in range(4): a("v_add_f32 v%d, v%d, v%d" % (GB + e, GB + e, 72 + e))
        for h in range(2):
            emit_ln_finish(a, GB + 2 * h, GB + 2 * h + 1, 2304, GB + 8 + h, GB + 4 + 2 * h, GB + 12)
            a("v_mul_f32 v%d, -v%d, v%d" % (GB + 5 + 2 * h, GB + 8 + h, GB + 4 + 2 * h))
        a("v_and_b32 v10, 31, v2")
        a("s_lshl_b32 s36, s24, 9")
        a("v_lshl_add_u32 v10, v10, 4, s36")
        a("ds_write_b128 v10, %s offset:1024" % vr(GB + 4))
        a("s_lshl_b32 s37, s25, 8")
        a("s_add_u32 s38, s36, s37")
        a("s_xor_b32 s37, s37, 256")
        a("s_add_u32 s39, s36, s37")
        a("v_lshlrev_b32 v10, 3, v3")
        a("v_add_u32 v11, s38, v10")
        a("v_add_u32 v10, s39, v10")
        a("s_waitcnt lgkmcnt(0)")
        a("ds_read_b64 %s, v11 offset:1024" % vr(MR, 2))
        a("ds_read_b64 %s, v11 offset:1152" % vr(MR + 2, 2))
        a("ds_read_b64 %s, v10 offset:1024" % vr(MR + 4, 2))
        a("ds_read_b64 %s, v10 offset:1152" % vr(MR + 6, 2))
    def z_addr():
        a("v_lshrrev_b32 v10, 4, v2")
        a("v_lshrrev_b32 v11, 2, v2"); a("v_and_b32 v11, 1, v11"); a("v_lshlrev_b32 v11, 4, v11")
        a("v_lshrrev_b32 v5, 3, v2"); a("v_and_b32 v5, 1, v5"); a("v_lshl_add_u32 v11, v5, 2, v11")
        a("v_and_b32 v5, 3, v2"); a("v_add_u32 v11, v11, v5")
        a("v_and_b32 v5, 1, v10")
        a("v_lshl_add_u32 v11, v5, 3, v11")
        a("v_lshlrev_b32 v11, 5, v11")
        a("v_lshrrev_b32 v5, 1, v10")
        a("v_lshl_add_u32 v6, v5, 4, v11")
        a("s_lshl_b32 s64, s23, 5")
        a("s_lshl_b32 s65, s22, 1")
        a("s_add_u32 s64, s64, s65")
        a("s_add_u32 s64, s64, s24")
        a("s_mul_i32 s64, s64, 18432")
        if ZIMG: a("s_add_u32 s64, s64, 0x%x" % ZIMG)
        a("s_lshl_b32 s65, s25, 10")
        a("s_add_u32 s68, s64, s65")
        a("s_add_u32 s68, s68, 8192")
        a("s_mul_i32 s67, s25, 10240")
        a("s_add_u32 s64, s64, s67")
        a("s_add_u32 s66, s64, s65")
        a("s_xor_b32 s65, s65, 1024")
        a("s_add_u32 s67, s64, s65")
        a("s_add_u32 s64, s66, 4096")
        a("s_add_u32 s65, s67, 4096")
    def norm_pair(tA, tB, O):
        for q, (ft, tt) in enumerate((tA, tB)):
            for d in range(2):
                z = zreg(ft, tt) + d; t_ = T + 4 * q + 2 * d
                a("v_lshlrev_b32 v%d, 16, v%d" % (t_, z))
                a("v_and_b32 v%d, 0xffff0000, v%d" % (t_ + 1, z))
        for q, (ft, tt) in enumerate((tA, tB)):
            for d in range(2):
                t_ = T + 4 * q + 2 * d
                a("v_pk_fma_f32 %s, %s, %s, %s op_sel:[0,0,1] op_sel_hi:[1,0,1]" % (vr(t_, 2), vr(t_, 2), vr(MR + 2 * tt, 2), vr(MR + 2 * tt, 2)))
        for q in range(2):
            for d in range(2):
                t_ = T + 4 * q + 2 * d
                a("v_cvt_pk_bf16_f32 v%d, v%d, v%d" % (O + 2 * q + d, t_, t_ + 1))
        a("s_nop 1")
        a("v_permlane16_swap_b32 v%d, v%d" % (O, O + 2))
        a("v_permlane16_swap_b32 v%d, v%d" % (O + 1, O + 3))
        a("s_nop 0")
    def zstore(idx):
        O = 216 + 4 * idx if idx < 6 else 112 + 4 * (idx - 6)
        if idx < 8:
            ft, pp = idx >> 1, idx & 1
            norm_pair((ft, 2 * pp), (ft, 2 * pp + 1), O)
            a("buffer_store_dwordx4 %s, v6, s[12:15], s%d offen offset:%d sc1" % (vr(O), ((66, 67), (64, 65))[ft >> 1][pp], (ft & 1) * 2048))
        else:
            norm_pair((4, 0), (4, 1), O)
            a("buffer_store_dwordx4 %s, v6, s[12:15], s68 offen sc1" % vr(O))
    def shifted(lines, off):
        out = []
        for l in lines:
            l = re.sub(r"v\[(\d+):(\d+)\]", lambda m: "v[%d:%d]" % (int(m.group(1)) + off, int(m.group(2)) + off), l)
            l = re.sub(r"\bv(\d+)\b", lambda m: "v%d" % (int(m.group(1)) + off), l)
            out.append(l)
        return out
    def kv_pass():
        for n in range(11): a("ds_read_b32 v%d, v254 offset:%d" % (128 + n, 144 * n))
        a("s_waitcnt lgkmcnt(4)")
        for n in range(8): a("ds_read_b32 v%d, v254 offset:%d" % (144 + n, 10240 + 144 * n))
        for n in range(4): a("v_mov_b32 v%d, v%d" % (156 + n, 248 + n))
        a("v_mov_b32 v168, v252"); a("v_mov_b32 v169, v253")
        a("s_waitcnt lgkmcnt(0)")
        a.lines.extend(shifted(capture(lambda: emit_kv_compute(a, wait=False, store=False)), 112))
        a("s_mov_b32 s41, 0x%x" % KVT)
        a("buffer_store_dwordx4 v[232:235], v124, s[12:15], s41 offen sc1")
        a("buffer_store_dwordx4 v[236:239], v125, s[12:15], s41 offen sc1")
    kvl = capture(kv_pass); nk = len(kvl)
    def dmas(gs):
        for g in gs:
            issueT(g); issueF(g); vmA.issue("S%d" % g, 9)
    for k in range(9, 18):
        if k == 9: a("s_waitcnt lgkmcnt(0)")
        a("s_barrier")
        gs = [11, 12] if k == 9 else ([k + 3] if k + 3 < 18 else [])
        if k == 9:
            dmas(gs)
            a("s_lshl_b32 s36, s22, 2")
            a("v_mov_b32 v97, s36")
            a("v_and_b32 v4, 31, v2")
            a("v_lshlrev_b32 v4, 4, v4")
            a("v_lshrrev_b32 v10, 5, v2")
            a("v_lshl_add_u32 v4, v10, 10, v4")
            for q in range(8): a("s_add_u32 s%d, s59, %d" % (GS[q], 4096 * q))
        elif k == 10:
            a("buffer_load_dword v96, v97, s[60:63], 0 offen sc1"); vmA.issue("cnt", 1)
            dmas(gs)
            z_addr()
        elif k == 11:
            vmA.wait(["cnt"])
            gather(); vmA.issue("g", 16)
            dmas(gs)
        elif k == 12:
            dmas(gs)
            vmA.wait(["g"])
            a("s_mov_b32 s33, 0")
            a.label("%s_chk" % name)
            a("v_subrev_u32 v11, 16, v96")
            for q in range(16):
                a("v_or3_b32 v11, v11, v%d, v%d" % (GB + 4 * q + 1, GB + 4 * q + 3))
            a("v_cmp_gt_i32 vcc, 0, v11")
            a("s_add_u32 s33, s33, 1")
            a("s_cmp_gt_u32 s33, %d" % SPIN_MAX)
            a("s_cbranch_scc1 %s_ok" % name)
            a("s_cbranch_vccz %s_ok" % name)
            a("s_sleep 16")
            a("buffer_load_dword v96, v97, s[60:63], 0 offen sc1")
            a("s_waitcnt vmcnt(0)")
            gather()
            a("s_waitcnt vmcnt(0)")
            a("s_branch %s_chk" % name)
            a.label("%s_ok" % name)
            stamp(a, 4)
            st_finish()
        elif k == 13:
            dmas(gs)
            a("s_waitcnt lgkmcnt(0)")
            for i_ in range(3): zstore(i_)
            vmA.issue("z", 3)
        elif k == 14:
            dmas(gs)
            for i_ in range(3, 6): zstore(i_)
            vmA.issue("z", 3)
        elif k == 15:
            for i_ in range(6, 9): zstore(i_)
            vmA.issue("z", 3)
            stamp(a, 5)
        elif k == 16:
            a("v_lshrrev_b32 v1, 3, v0")
            a("v_and_b32 v10, 7, v0")
            a("s_lshr_b32 s38, s2, 3")
            a("s_lshl_b32 s38, s38, 6")
            a("v_lshl_add_u32 v252, v10, 3, s38")
            a("s_and_b32 s39, s2, 7")
            a("s_mul_i32 s39, s39, 144")
            a("v_lshl_add_u32 v253, v1, 2, s39")
            a("v_mul_u32_u24 v254, 1152, v10")
            a("v_lshl_add_u32 v254, v1, 2, v254")
            a("v_add_u32 v254, %d, v254" % KVL)
            a("v_lshlrev_b32 v11, 2, v253")
            a("v_mov_b32 v26, %d" % LC)
            a("v_mov_b32 v27, 1")
            a("s_waitcnt vmcnt(0)")
            a("s_mov_b64 exec, 1")
            a("ds_add_rtn_u32 v28, v26, v27")
            a("s_waitcnt lgkmcnt(0)")
            a("v_readfirstlane_b32 s36, v28")
            a("s_cmp_lg_u32 s36, 3")
            a("s_cbranch_scc1 %s_nozs" % name)
            a("v_mov_b32 v28, 0")
            a("buffer_store_dword v27, v28, s[12:15], s97 offen sc1")
            a.label("%s_nozs" % name)
            a("s_mov_b64 exec, -1")
            stamp(a, 6)
            a("buffer_load_dwordx4 v[248:251], v11, s[72:75], 0 offen")
            srd(a, 92, 78, 2048 * 2048 * 2)
            a("v_lshrrev_b32 v10, 4, v2")
            a("v_lshlrev_b32 v10, 12, v10")
            a("v_lshl_add_u32 v10, v3, 4, v10")
            a("s_lshl_b32 s40, s22, 7")
            a("s_lshl_b32 s36, s3, 5")
            a("s_add_u32 s40, s40, s36")
            a("s_lshl_b32 s40, s40, 12")
            a("s_lshl_b32 s36, s23, 8")
            a("s_add_u32 s40, s40, s36")
            for n in range(8):
                a("buffer_load_dwordx4 v[240:243], v10, s[92:95], s40 offen")
                if n < 7: a("s_add_u32 s40, s40, 16384")
        elif k == 17:
            a("s_waitcnt vmcnt(8)")
            a.lines.extend(kvl)
        if 11 <= k + 2 < 18:
            vmA.wait(["S%d" % (k + 2)])
    stamp(a, 3)
    a("s_setprio 3")
    srd(a, 8, 78, 2048 * 2048 * 2)
    a("v_lshrrev_b32 v3, 3, v2")
    a("s_lshl_b32 s24, s3, 5")
    a("v_add_u32 v3, s24, v3")
    a("v_and_b32 v4, 7, v2")
    a("v_lshrrev_b32 v6, 4, v2")
    a("v_xor_b32 v6, v6, v4")
    a("v_lshlrev_b32 v6, 4, v6")
    a("v_lshl_add_u32 v10, v3, 12, v6")
    a("v_xor_b32 v11, 64, v10")
    a("v_add_u32 v11, %d, v11" % (32768 - 1024))
    a("v_add_u32 v12, %d, v10" % (2 * (32768 - 1024)))
    a("v_add_u32 v13, %d, v11" % (2 * (32768 - 1024)))
    a("v_lshlrev_b32 v14, 4, v2")
    a("s_lshl_b32 s26, s22, 19")
    a("s_mul_i32 s27, s23, %d" % (32 * 18432))
    a("s_lshl_b32 s24, s3, 12")
    a("s_add_u32 s27, s27, s24")
    if ZIMG: a("s_add_u32 s27, s27, 0x%x" % ZIMG)
    a("s_lshl_b32 s25, s3, 9")
    a("s_sub_u32 s32, s25, s24")
    a("s_add_u32 s32, s32, 16384")
    a("s_add_u32 s24, s24, %d" % RB)
    a("s_waitcnt lgkmcnt(0)")
    a("v_mov_b32 v26, %d" % LC)
    a("s_mov_b32 s34, 0")
    a.label("%s_wb" % name)
    a("ds_read_b32 v27, v26 offset:12")
    a("s_add_u32 s34, s34, 1")
    a("s_waitcnt lgkmcnt(0)")
    a("v_readfirstlane_b32 s36, v27")
    a("s_cmp_gt_u32 s34, %d" % (SPIN_MAX * 20))
    a("s_cbranch_scc1 %s_wbx" % name)
    a("s_cmp_ge_u32 s36, 4")
    a("s_cbranch_scc1 %s_wbx" % name)
    a("s_sleep 2")
    a("s_branch %s_wb" % name)
    a.label("%s_wbx" % name)
    stamp(a, 7)
    srd(a, 16, 88, 576 * 2048 * 2)
    srd(a, 84, 90, 576 * 2)
    for g in range(4):
        a("s_add_u32 s35, s24, %d" % (g * SLOT))
        a("s_mov_b32 m0, s35")
        a("s_add_u32 s36, s26, %d" % (128 * g))
        for n in range(4):
            a("buffer_load_dwordx4 v%d, s[8:11], s36 offen offset:%d lds" % (10 + n, n * 1024))
    a("s_mov_b32 s34, 0")
    a("s_cmp_lg_u32 s3, 0")
    a("s_cbranch_scc1 %s_pl" % name)
    a("v_and_b32 v28, 15, v2")
    a("v_lshlrev_b32 v30, 2, v28")
    a("v_lshlrev_b32 v28, 12, v28")
    a("s_lshl_b32 s52, s23, 8")
    a("s_add_u32 s52, s52, 0x%x" % ZFLG)
    a.label("%s_pz0" % name)
    a("buffer_load_dword v31, v30, s[60:63], 0 offen sc1")
    a("s_add_u32 s34, s34, 1")
    a("s_waitcnt vmcnt(0)")
    a("v_cmp_gt_u32 vcc, 16, v31")
    a("s_cmp_gt_u32 s34, %d" % SPIN_MAX)
    a("s_cbranch_scc1 %s_pz" % name)
    a("s_cbranch_vccz %s_pz" % name)
    a("s_sleep 32")
    a("s_branch %s_pz0" % name)
    a.label("%s_pz" % name)
    a("buffer_load_dword v29, v28, s[12:15], s52 offen sc1")
    a("s_add_u32 s34, s34, 1")
    a("s_waitcnt vmcnt(0)")
    a("v_cmp_ne_u32 vcc, 1, v29")
    a("s_cmp_gt_u32 s34, %d" % SPIN_MAX)
    a("s_cbranch_scc1 %s_pzx" % name)
    a("s_cbranch_vccz %s_pzx" % name)
    a("s_sleep 8")
    a("s_branch %s_pz" % name)
    a.label("%s_pzx" % name)
    a("v_mov_b32 v27, 1")
    a("ds_write_b32 v26, v27 offset:4")
    a("s_branch %s_pgo" % name)
    a.label("%s_pl" % name)
    a("s_cmp_lg_u32 s3, 1")
    a("s_cbranch_scc1 %s_pl2" % name)
    a("v_subrev_u32 v253, 32, v253")
    a("v_subrev_u32 v254, 32, v254")
    a("v_add_u32 v253, 128, v253")
    a("v_add_u32 v254, 128, v254")
    a("v_lshlrev_b32 v1, 2, v253")
    a("buffer_load_dwordx4 v[248:251], v1, s[72:75], 0 offen")
    a("s_waitcnt vmcnt(0)")
    a("s_mov_b64 exec, 0xffffffff")
    a.lines.extend(kvl)
    a("s_mov_b64 exec, -1")
    a.label("%s_pl2" % name)
    a("ds_read_b32 v27, v26 offset:4")
    a("s_add_u32 s34, s34, 1")
    a("s_waitcnt lgkmcnt(0)")
    a("v_readfirstlane_b32 s36, v27")
    a("s_cmp_gt_u32 s34, %d" % (SPIN_MAX * 20))
    a("s_cbranch_scc1 %s_pgo" % name)
    a("s_cmp_lg_u32 s36, 0")
    a("s_cbranch_scc1 %s_pgo" % name)
    a("s_sleep 2")
    a("s_branch %s_pl2" % name)
    a.label("%s_pgo" % name)
    stamp(a, 8)
    for g in range(4):
        a("s_add_u32 s35, s24, %d" % (g * SLOT + TREG))
        a("s_mov_b32 m0, s35")
        a("s_add_u32 s36, s27, %d" % (18432 * g))
        a("s_add_u32 s37, s36, s32")
        for n in range(4):
            a("buffer_load_dwordx4 v14, s[12:15], s36 offen offset:%d sc1 lds" % (n * 1024))
        a("s_add_u32 s35, s35, s32")
        a("s_mov_b32 m0, s35")
        a("s_mov_b64 exec, 0xffffffff")
        a("buffer_load_dwordx4 v14, s[12:15], s37 offen sc1 lds")
        a("s_mov_b64 exec, -1")
    a("s_add_u32 s26, s26, 512")
    a("s_add_u32 s27, s27, %d" % (4 * 18432))
    a("s_mov_b32 s33, 0")
    a("s_lshl_b32 s43, s2, 2")
    a("s_add_u32 s43, s43, s3")
    a("s_and_b32 s53, s43, 1")
    a("s_sub_u32 s36, s43, 448")
    a("s_lshr_b32 s37, s43, 1")
    a("s_cmp_ge_u32 s43, 896")
    a("s_cselect_b32 s43, s36, s37")
    a("s_cselect_b32 s53, 2, s53")
    a("s_waitcnt vmcnt(15)")
    a("s_barrier")
    a("s_waitcnt vmcnt(10)")
    a("s_barrier")
    a("s_waitcnt vmcnt(5)")
    a("s_barrier")
    a("s_mov_b32 s34, 4")
    def issue2():
        a("s_add_u32 s35, s33, s24")
        a("s_mov_b32 m0, s35")
        a("s_add_u32 s36, s35, %d" % TREG)
        for n in range(4):
            a("buffer_load_dwordx4 v%d, s[8:11], s26 offen offset:%d lds" % (10 + n, n * 1024))
        a("s_mov_b32 m0, s36")
        a("s_add_u32 s37, s27, s32")
        for n in range(4):
            a("buffer_load_dwordx4 v14, s[12:15], s27 offen offset:%d sc1 lds" % (n * 1024))
        a("s_add_u32 s36, s36, s32")
        a("s_mov_b32 m0, s36")
        a("s_mov_b64 exec, 0xffffffff")
        a("buffer_load_dwordx4 v14, s[12:15], s37 offen sc1 lds")
        a("s_mov_b64 exec, -1")
        a("s_add_u32 s26, s26, 128")
        a("s_add_u32 s27, s27, 18432")
        a("s_add_u32 s33, s33, %d" % SLOT)
        a("s_cmp_eq_u32 s33, %d" % (R * SLOT))
        a("s_cselect_b32 s33, 0, s33")
    a.label("%s_lloop" % name)
    issue2()
    a("s_cmp_eq_u32 s34, 18")
    a("s_cbranch_scc1 %s_hk1" % name)
    a("s_cmp_eq_u32 s34, 21")
    a("s_cbranch_scc1 %s_hk2" % name)
    a("s_cmp_eq_u32 s34, 22")
    a("s_cbranch_scc1 %s_hk2g" % name)
    a.label("%s_lw9" % name)
    a("s_waitcnt vmcnt(9)")
    a.label("%s_lcont" % name)
    a("s_barrier")
    a("s_add_u32 s34, s34, 1")
    a("s_cmp_lt_u32 s34, 32")
    a("s_cbranch_scc1 %s_lloop" % name)
    a("s_branch %s_ldone" % name)
    a.label("%s_hk1" % name)
    a("s_cmp_lg_u32 s3, 0")
    a("s_cbranch_scc1 %s_lw9" % name)
    a("v_lshlrev_b32 v28, 7, v2")
    a("s_mov_b32 s52, 0x%x" % (XFLG + 0))
    a("buffer_load_dword v32, v28, s[12:15], s52 offen sc1")
    a("s_mov_b32 s52, 0x%x" % (XFLG + 8192))
    a("buffer_load_dword v33, v28, s[12:15], s52 offen sc1")
    a("s_mov_b32 s52, 0x%x" % (XFLG + 16384))
    a("buffer_load_dword v34, v28, s[12:15], s52 offen sc1")
    a("s_mov_b32 s52, 0x%x" % (XFLG + 24576))
    a("buffer_load_dword v35, v28, s[12:15], s52 offen sc1")
    a("s_waitcnt vmcnt(13)")
    a("s_branch %s_lcont" % name)
    a.label("%s_hk2" % name)
    a("s_cmp_lg_u32 s3, 0")
    a("s_cbranch_scc1 %s_lw9" % name)
    a("s_mov_b32 s52, 0")
    a.label("%s_hk2l" % name)
    a("v_and_b32 v32, v32, v33")
    a("v_and_b32 v34, v34, v35")
    a("v_and_b32 v32, v32, v34")
    a("v_cmp_eq_u32 vcc, 1, v32")
    a("s_nop 1")
    a("v_cndmask_b32 v32, 0, 16, vcc")
    a("v_cmp_gt_u32 vcc, 16, v32")
    a("s_add_u32 s52, s52, 1")
    a("s_cmp_gt_u32 s52, %d" % SPIN_MAX)
    a("s_cbranch_scc1 %s_lw9" % name)
    a("s_cbranch_vccz %s_lw9" % name)
    a("s_sleep 16")
    a("s_mov_b32 s38, 0x%x" % (XFLG + 0))
    a("buffer_load_dword v32, v28, s[12:15], s38 offen sc1")
    a("s_mov_b32 s38, 0x%x" % (XFLG + 8192))
    a("buffer_load_dword v33, v28, s[12:15], s38 offen sc1")
    a("s_mov_b32 s38, 0x%x" % (XFLG + 16384))
    a("buffer_load_dword v34, v28, s[12:15], s38 offen sc1")
    a("s_mov_b32 s38, 0x%x" % (XFLG + 24576))
    a("buffer_load_dword v35, v28, s[12:15], s38 offen sc1")
    a("s_waitcnt vmcnt(0)")
    a("s_branch %s_hk2l" % name)
    a.label("%s_hk2g" % name)
    nconv = emit_conv_loads(a, " sc1")
    a("s_waitcnt vmcnt(%d)" % (9 + nconv))
    a("s_branch %s_lcont" % name)
    a.label("%s_ldone" % name)
    a("s_waitcnt vmcnt(0)")
    a("s_barrier")
    a("s_mov_b32 s26, s53")
    a("s_and_b32 s27, s3, 1")
    a("s_mul_i32 s27, s27, %d" % CJ_SIZE)
    a("s_lshr_b32 s36, s3, 1")
    a("s_mul_i32 s36, s36, %d" % SLOT)
    a("s_add_u32 s27, s27, s36")
    a("s_add_u32 s27, s27, %d" % RB)
    def mid():
        a("s_barrier")
        a("s_setprio 0")
    sv = set(DBG); DBG.discard("stamp")
    lb_ = len(a.lines)
    emit_conv_job(a, name, mid)
    for n_ in range(lb_, len(a.lines)):
        if "buffer_store_dwordx2" in a.lines[n_]: a.lines[n_] += " sc1"
    DBG.update(sv)
    stamp(a, 9)
    c_common()
    cTa = [4, 4]; cTb = [6, 6]; cF_ = 8; cFh = 9
    kTa = 88; kTb = 90; kF = 92; kFh = 93
    a("v_and_b32 v3, 15, v2")
    a("v_lshrrev_b32 v10, 5, v2")
    a("v_lshlrev_b32 v10, 11, v10")
    a("v_bfe_u32 v11, v2, 4, 1")
    a("v_lshl_add_u32 v10, v11, 4, v10")
    a("v_lshl_add_u32 v10, v3, 5, v10")
    a("s_lshl_b32 s26, s3, 12")
    a("v_add_u32 v10, s26, v10")
    a("s_lshl_b32 s26, s53, 10")
    a("v_add_u32 v%d, s26, v10" % kTa)
    a("s_xor_b32 s26, s26, 1024")
    a("v_add_u32 v%d, s26, v10" % kTb)
    a("v_lshrrev_b32 v10, 2, v2")
    a("v_mul_u32_u24 v10, %d, v10" % CFS)
    a("v_and_b32 v11, 3, v2")
    a("v_lshl_add_u32 v10, v11, 3, v10")
    a("s_mul_i32 s26, s3, %d" % (32 * CFS))
    a("s_add_u32 s26, s26, %d" % CTREG)
    a("v_add_u32 v%d, s26, v10" % kF)
    a("v_add_u32 v%d, 128, v%d" % (kFh, kF))
    a("v_mov_b32 v26, %d" % LC)
    a("v_mov_b32 v27, 1")
    a("s_waitcnt vmcnt(0)")
    a("s_mov_b64 exec, 1")
    a("ds_add_rtn_u32 v28, v26, v27 offset:20")
    a("s_waitcnt lgkmcnt(0)")
    a("v_readfirstlane_b32 s36, v28")
    a("s_cmp_lg_u32 s36, 3")
    a("s_cbranch_scc1 %s_nocs" % name)
    a("s_lshl_b32 s36, s2, 7")
    a("s_add_u32 s36, s36, 0x%x" % CFLG)
    a("v_mov_b32 v28, 0")
    a("buffer_store_dword v27, v28, s[12:15], s36 offen sc1")
    a.label("%s_nocs" % name)
    a("s_mov_b64 exec, -1")
    fin_loads()
    core3 = G.Core(a, ACC, FB[0], FB[1], CFS, CTREG, cTa, cTb, cF_, cFh, TT=512)
    pairs = ((cTa[0], kTa), (cF_, kF), (cTb[0], kTb), (cFh, kFh))
    a("s_mov_b32 s27, %d" % C0)
    for d, s_ in pairs: a("v_add_u32 v%d, s27, v%d" % (d, s_))
    for r in range(ACC, ACC + 72): a("v_mov_b32 v%d, 0" % r)
    a("s_mov_b32 s33, 0")
    a("s_barrier")
    stamp(a, 10)
    core3.prime(0, core3.reads(0, 0))
    def citer(buf):
        core3.trk.drain()
        a("s_barrier")
        a("s_add_u32 s27, s27, %d" % CSL)
        a("s_cmp_eq_u32 s27, %d" % CW)
        a("s_cselect_b32 s27, %d, s27" % RB)
        pre = ["v_add_u32 v%d, s27, v%d" % (d, s_) for d, s_ in pairs]
        core3.phase(buf, core3.reads(1 - buf, 0), pre=pre)
    a.label("%s_ccloop" % name)
    citer(0); citer(1)
    a("s_add_u32 s33, s33, 1")
    a("s_cmp_lt_u32 s33, 9")
    a("s_cbranch_scc1 %s_ccloop" % name)
    core3.trk.drain()
    stamp(a, 11)
    a("s_mul_i32 s33, s3, %d" % (18 * 1024))
    a("s_add_u32 s33, s33, %d" % C0)
    a("v_lshlrev_b32 v10, 4, v2")
    a("v_add_u32 v11, s33, v10")
    a("s_nop 4")
    for n, (ft, tt) in enumerate(TILES):
        a("ds_write_b128 v11, %s offset:%d" % (vr(core3.accr(ft, tt)), 1024 * tidx(ft, tt)))
        if n in (7, 13): a("s_waitcnt lgkmcnt(4)")
    a("s_waitcnt lgkmcnt(0) vmcnt(0)")
    a.label("%s_cfin" % name)
    a("s_barrier")
    stamp(a, 12)
    a("v_lshlrev_b32 v10, 4, v2")
    a("v_lshrrev_b32 v11, 2, v2")
    a("v_lshlrev_b32 v11, 7, v11")
    a("v_and_b32 v12, 3, v2")
    a("v_lshl_add_u32 v11, v12, 3, v11")
    a("s_mov_b32 s33, 0xbfb8aa3b")
    PT = 16; YR = 64
    for s_ in range(3):
        b = 64 + 4 * s_
        if s_ == 2:
            a("s_cmp_ge_u32 s54, 2")
            a("s_cbranch_scc1 %s_rd" % name)
        a("v_add_u32 v4, s%d, v10" % (b + 2))
        a("v_add_u32 v5, s%d, v11" % (b + 1))
        for q in range(4):
            a("ds_read_b128 %s, v4 offset:%d" % (vr(PT + 16 * s_ + 4 * q), 18432 * q))
        a("ds_read_b64_tr_b16 %s, v5" % vr(YR + 2 * s_, 2))
    a.label("%s_rd" % name)
    T = 104
    for s_ in range(3):
        b = 64 + 4 * s_
        if s_ == 0: a("s_waitcnt lgkmcnt(5)")
        if s_ == 1: a("s_waitcnt lgkmcnt(0)")
        if s_ == 2:
            a("s_cmp_ge_u32 s54, 2")
            a("s_cbranch_scc1 %s_done" % name)
        o = PT + 16 * s_; X = XR + 2 * s_; Y = YR + 2 * s_; S_ = ST + 2 * s_
        for h in (0, 2):
            a("v_pk_add_f32 %s, %s, %s" % (vr(o + h, 2), vr(o + h, 2), vr(o + 4 + h, 2)))
            a("v_pk_add_f32 %s, %s, %s" % (vr(o + 8 + h, 2), vr(o + 8 + h, 2), vr(o + 12 + h, 2)))
        for h in (0, 2):
            a("v_pk_add_f32 %s, %s, %s" % (vr(o + h, 2), vr(o + h, 2), vr(o + 8 + h, 2)))
        rnd_pair(a, T + 20, o, o + 1); rnd_pair(a, T + 21, o + 2, o + 3)
        for r in range(4): a("v_mul_f32 v%d, s33, v%d" % (T + r, o + r))
        for r in range(4): a("v_exp_f32 v%d, v%d" % (T + r, T + r))
        a("v_lshlrev_b32 v%d, 16, v%d" % (T + 4, X)); a("v_and_b32 v%d, 0xffff0000, v%d" % (T + 5, X))
        a("v_lshlrev_b32 v%d, 16, v%d" % (T + 6, X + 1)); a("v_and_b32 v%d, 0xffff0000, v%d" % (T + 7, X + 1))
        for r in range(4): a("v_add_f32 v%d, 1.0, v%d" % (T + r, T + r))
        for r in range(4): a("v_rcp_f32 v%d, v%d" % (T + r, T + r))
        for r in range(4): a("v_sub_f32 v%d, v%d, v%d" % (T + 12 + r, T + 4 + r, S_))
        a("v_lshlrev_b32 v%d, 16, v%d" % (T + 8, Y)); a("v_and_b32 v%d, 0xffff0000, v%d" % (T + 9, Y))
        a("v_lshlrev_b32 v%d, 16, v%d" % (T + 10, Y + 1)); a("v_and_b32 v%d, 0xffff0000, v%d" % (T + 11, Y + 1))
        for r in range(4): a("v_mul_f32 v%d, v%d, v%d" % (o + r, o + r, T + r))
        rnd_pair(a, T + 20, T + 12, T + 13); rnd_pair(a, T + 21, T + 14, T + 15)
        rnd_pair(a, T + 22, o, o + 1); rnd_pair(a, T + 23, o + 2, o + 3)
        for r in range(4): a("v_mul_f32 v%d, v%d, v%d" % (T + 12 + r, T + 12 + r, S_ + 1))
        rnd_pair(a, T + 20, T + 12, T + 13); rnd_pair(a, T + 21, T + 14, T + 15)
        for r in range(4): a("v_mul_f32 v%d, v%d, v%d" % (T + 12 + r, T + 12 + r, T + 8 + r))
        rnd_pair(a, T + 20, T + 12, T + 13); rnd_pair(a, T + 21, T + 14, T + 15)
        for r in range(4): a("v_mul_f32 v%d, v%d, v%d" % (T + 12 + r, T + 12 + r, o + r))
        rnd_pair(a, T + 20, T + 12, T + 13); rnd_pair(a, T + 21, T + 14, T + 15)
        for r in range(4): a("v_add_f32 v%d, v%d, v%d" % (T + 12 + r, T + 12 + r, T + 4 + r))
        a("v_cvt_pk_bf16_f32 v%d, v%d, v%d" % (X, T + 12, T + 13))
        a("v_cvt_pk_bf16_f32 v%d, v%d, v%d" % (X + 1, T + 14, T + 15))
        a("buffer_store_dwordx2 %s, v13, s[28:31], s%d offen" % (vr(X, 2), b))
    a.label("%s_done" % name)
    stamp(a, 13)
    G.stamp_rt(a, 1)
    a.label("%s_end" % name)
    a("s_endpgm")
    for f0 in (0, 2, 4):
        a.label("%s_gs%d" % (name, f0))
        lst = [(ft, tt) for ft in ((f0, f0 + 1) if f0 < 4 else (4,)) for tt in range(2)]
        emit_fold_gelu(a, [(128 + 4 * tidx(ft, tt), CS + 4 * ft, MR + 2 * tt, 16 + 2 * (2 * ft + tt)) for ft, tt in lst], 72)
        a("s_setpc_b64 s[34:35]")
    return a.text(), kernel_desc(name, 256, 256), (name, 256, 512, 163840)

def gen_kf14(name="k1_kernel", R=4):
    a = Asm()
    RB = 4096; SLOT = 34816; TREG = 16384; FS = 288; RST = 0
    LDSB = RB + R * SLOT
    LC = 2048
    ZFLG = 0x2D00000; PFL = 128
    KVL = 143360
    C0 = 77824; CW = 151552; CSL = 36864; YOFF = 151552; CTREG = 16384; CFS = 160
    from gen3 import emit_conv_loads, emit_conv_job, CJ_SIZE
    def capture(f, *args):
        lb = len(a.lines); f(*args); out = a.lines[lb:]; del a.lines[lb:]; return out

    def c_common():
        a("s_load_dwordx2 s[4:5], s[0:1], 0")
        a("s_load_dwordx2 s[16:17], s[0:1], 88")
        a("s_and_b32 s20, s2, 7")
        a("s_lshr_b32 s21, s2, 3")
        a("s_and_b32 s22, s20, 3")
        a("s_lshl_b32 s22, s22, 3")
        a("s_and_b32 s23, s21, 7")
        a("s_add_u32 s22, s22, s23")
        a("s_lshr_b32 s23, s20, 2")
        a("s_lshl_b32 s23, s23, 2")
        a("s_lshr_b32 s24, s21, 3")
        a("s_add_u32 s23, s23, s24")
        a("s_lshr_b32 s52, s23, 1")
        a("s_and_b32 s53, s23, 1")
        a("s_lshl_b32 s54, s98, 2")
        a("s_add_u32 s54, s54, s3")
        a("s_waitcnt lgkmcnt(0)")
        srd(a, 8, 4, 2048 * 576 * 2)
        srd(a, 28, 16, 2048 * 576 * 2)
    XR = 200; ST = 208
    def fin_loads():
        a("v_and_b32 v3, 15, v2")
        a("v_lshrrev_b32 v10, 4, v2")
        a("v_mul_u32_u24 v13, 1152, v3")
        a("v_lshl_add_u32 v13, v10, 3, v13")
        a("v_lshlrev_b32 v12, 3, v3")
        for s_ in range(3):
            if s_ == 2:
                a("s_cmp_ge_u32 s54, 2")
                a("s_cbranch_scc1 %s_fl%d" % (name, fin_loads.cnt))
            b = 64 + 4 * s_
            if s_ < 2:
                a("s_add_u32 s36, s54, %d" % (8 * s_))
                a("s_lshr_b32 s37, s36, 2")
                a("s_and_b32 s38, s36, 3")
                a("s_mul_i32 s39, s53, 160")
                a("s_lshl_b32 s40, s37, 5")
                a("s_add_u32 s39, s39, s40")
            else:
                a("s_add_u32 s36, s54, 16")
                a("s_mov_b32 s37, 4")
                a("s_mov_b32 s38, s54")
                a("s_mov_b32 s39, 128")
            a("s_lshl_b32 s40, s53, 1")
            a("s_add_u32 s38, s38, s40")
            a("s_and_b32 s38, s38, 3")
            a("s_lshl_b32 s40, s22, 2")
            a("s_add_u32 s40, s40, s38")
            a("s_lshl_b32 s40, s40, 4")
            a("s_mul_i32 s%d, s40, 1152" % b)
            a("s_add_u32 s%d, s%d, s39" % (b, b))
            a("s_mul_i32 s39, s52, 288")
            a("s_add_u32 s%d, s%d, s39" % (b, b))
            a("s_lshl_b32 s%d, s37, 11" % (b + 1))
            a("s_lshl_b32 s39, s38, 5")
            a("s_add_u32 s%d, s%d, s39" % (b + 1, b + 1))
            a("s_add_u32 s%d, s%d, %d" % (b + 1, b + 1, YOFF))
            a("s_lshl_b32 s%d, s36, 10" % (b + 2))
            a("s_add_u32 s%d, s%d, %d" % (b + 2, b + 2, C0))
            a("s_lshl_b32 s40, s40, 3")
            a("s_add_u32 s40, s40, 0x%x" % STATS1)
            a("buffer_load_dwordx2 %s, v13, s[8:11], s%d offen" % (vr(XR + 2 * s_, 2), b))
            a("buffer_load_dwordx2 %s, v12, s[12:15], s40 offen sc1" % vr(ST + 2 * s_, 2))
        a.label("%s_fl%d" % (name, fin_loads.cnt))
        fin_loads.cnt += 1
    fin_loads.cnt = 0
    kernel_begin(a, name)
    a("s_load_dwordx2 s[80:81], s[0:1], 0")
    a("s_load_dwordx2 s[4:5], s[0:1], 56")
    a("s_load_dwordx2 s[6:7], s[0:1], 104")
    a("s_load_dwordx2 s[18:19], s[0:1], 96")
    a("s_cmp_ge_u32 s2, 256")
    a("s_cbranch_scc1 %s_end" % name)
    a("v_lshrrev_b32 v1, 6, v0")
    a("v_and_b32 v2, 63, v0")
    a("v_readfirstlane_b32 s3, v1")
    G2.tile_ij(a)
    a("s_lshr_b32 s98, s3, 2")
    a("s_mov_b32 s54x, 0".replace("s54x", "s99"))
    a("s_and_b32 s3, s3, 3")
    a("s_lshr_b32 s24, s3, 1")
    a("s_and_b32 s25, s3, 1")
    a("v_and_b32 v3, 15, v2")
    VT = 204; VF = 208
    def loader_setup():
        a("v_lshrrev_b32 v5, 3, v2")
        a("v_and_b32 v4, 7, v2")
        a("s_lshl_b32 s36, s3, 5")
        a("v_add_u32 v5, s36, v5")
        a("v_lshrrev_b32 v7, 4, v2")
        a("v_xor_b32 v7, v7, v4")
        a("v_mul_u32_u24 v6, 1152, v5")
        a("v_lshl_add_u32 v%d, v7, 4, v6" % VT)
        a("v_xor_b32 v%d, 64, v%d" % (VT + 1, VT))
        a("v_add_u32 v%d, %d, v%d" % (VT + 1, 9216 - 1024, VT + 1))
        a("v_add_u32 v%d, %d, v%d" % (VT + 2, 2 * (9216 - 1024), VT))
        a("v_add_u32 v%d, %d, v%d" % (VT + 3, 2 * (9216 - 1024), VT + 1))
        a("s_lshl_b32 s84, s3, 12")
        a("s_add_u32 s84, s84, %d" % RB)
        a("s_lshl_b32 s85, s3, 9")
        a("s_add_u32 s85, s85, %d" % (RB + TREG + 16384))
    def loader_setup2():
        for n in range(5):
            if n < 4:
                a("s_lshl_b32 s36, s3, 8")
                a("s_add_u32 s36, s36, %d" % (64 * n))
            else:
                a("s_lshl_b32 s36, s3, 5")
                a("s_add_u32 s36, s36, 1024")
            a("v_add_u32 v6, s36, v2")
            a("v_mul_u32_u24 v7, 3641, v6")
            a("v_lshrrev_b32 v7, 16, v7")
            a("v_mul_u32_u24 v8, 18, v7")
            a("v_sub_u32 v8, v6, v8")
            a("v_and_b32 v9, 35, v7")
            a("v_bfe_u32 v6, v7, 2, 2")
            a("v_lshl_add_u32 v9, v6, 3, v9")
            a("v_bfe_u32 v6, v7, 4, 1")
            a("v_lshl_add_u32 v9, v6, 2, v9")
            a("v_mul_u32_u24 v9, 9216, v9")
            a("v_lshl_add_u32 v%d, v8, 4, v9" % (VF + n))
            if 0 < n < 4: a("v_subrev_u32 v%d, %d, v%d" % (VF + n, 1024 * n, VF + n))
    def issueT(g):
        st = g % 9
        a("s_add_u32 s86, s84, %d" % ((g % R) * SLOT))
        a("s_mov_b32 m0, s86")
        a("s_add_u32 s87, s82, %d" % (128 * st))
        for n in range(4):
            a("buffer_load_dwordx4 v%d, s[28:31], s87 offen offset:%d lds" % (VT + n, 1024 * n))
    def issueF(g):
        st = g % 9
        a("s_add_u32 s86, s84, %d" % ((g % R) * SLOT + TREG))
        a("s_mov_b32 m0, s86")
        a("s_add_u32 s87, s83, %d" % (64 * 9216 * st + (4608 if g < 9 else 0)))
        for n in range(4):
            a("buffer_load_dwordx4 v%d, s[8:11], s87 offen offset:%d lds" % (VF + n, 1024 * n))
        a("s_add_u32 s86, s85, %d" % ((g % R) * SLOT))
        a("s_mov_b32 m0, s86")
        a("s_mov_b64 exec, 0xffffffff")
        a("buffer_load_dwordx4 v%d, s[8:11], s87 offen lds" % (VF + 4))
        a("s_mov_b64 exec, -1")
    def srds_main():
        srd(a, 28, 80, 2048 * 576 * 2)
        srd(a, 8, 4, 576 * 4608 * 2)
        srd(a, 12, 6, WS_BYTES)
        srd(a, 60, 18, 256)
        a("s_mul_i32 s82, s22, %d" % (128 * 1152))
        a("s_mul_i32 s83, s23, 288")
    ACC = 128; FB = [16, 52]; CS = 216; ONE = 236
    vTa = [4, 5]; vTb = [6, 7]; vF = 8; vFh = 9
    bTa = [88, 89]; bTb = [90, 91]; bF = 92; bFh = 93
    def mma_setup():
        a("v_lshrrev_b32 v10, 4, v2")
        a("v_lshrrev_b32 v11, 1, v3")
        a("v_xor_b32 v10, v10, v11")
        a("v_lshlrev_b32 v10, 4, v10")
        a("v_lshl_add_u32 v10, v3, 7, v10")
        a("s_lshl_b32 s26, s24, 13")
        a("s_add_u32 s26, s26, %d" % RB)
        a("v_add_u32 v10, s26, v10")
        a("s_lshl_b32 s26, s25, 12")
        a("v_add_u32 v%d, s26, v10" % bTa[0])
        a("s_xor_b32 s26, s26, 4096")
        a("v_add_u32 v%d, s26, v10" % bTb[0])
        a("v_xor_b32 v%d, 64, v%d" % (bTa[1], bTa[0]))
        a("v_xor_b32 v%d, 64, v%d" % (bTb[1], bTb[0]))
        a("v_lshrrev_b32 v10, 2, v2")
        a("v_mul_u32_u24 v10, %d, v10" % FS)
        a("v_and_b32 v11, 3, v2")
        a("v_lshl_add_u32 v10, v11, 3, v10")
        a("v_add_u32 v10, %d, v10" % (RB + TREG))
        a("s_mul_i32 s26, s25, 160")
        a("v_add_u32 v%d, s26, v10" % bF)
        a("v_add_u32 v%d, 128, v10" % bFh)
        for r in range(ACC, ACC + 72): a("v_mov_b32 v%d, 0" % r)
        for r in range(CS, CS + 20): a("v_mov_b32 v%d, 0" % r)
        for r in range(ONE, ONE + 4): a("v_mov_b32 v%d, 0x3f803f80" % r)
    def mma_addr(slot):
        a("s_mov_b32 s27, %d" % (slot * SLOT))
        for d, s_ in ((vTa[0], bTa[0]), (vTb[0], bTb[0]), (vTa[1], bTa[1]), (vTb[1], bTb[1]), (vF, bF), (vFh, bFh)):
            a("v_add_u32 v%d, s27, v%d" % (d, s_))
    core = G.Core(a, ACC, FB[0], FB[1], FS, TREG, vTa, vTb, vF, vFh)
    trk = core.trk
    a("s_cmp_eq_u32 s98, 0")
    a("s_cbranch_scc1 %s_A0" % name)
    a("s_setprio 3")
    loader_setup()
    a("s_waitcnt lgkmcnt(0)")
    srds_main()
    vm = VmTracker(a)
    def issue(g, vmx):
        issueT(g); issueF(g); vmx.issue("S%d" % g, 9)
    issueT(0)
    loader_setup2()
    issueF(0); vm.issue("S0", 9)
    issue(1, vm); issue(2, vm); issue(3, vm)
    a("s_add_u32 s3, s3, 4"); stamp_setup(a, 1); stamp(a, 0); a("s_sub_u32 s3, s3, 4")
    a("s_load_dwordx4 s[64:67], s[0:1], 8")
    a("s_load_dwordx2 s[76:77], s[0:1], 24")
    mma_setup()
    a("s_waitcnt lgkmcnt(0)")
    srd(a, 68, 66, 2048 * 576 * 2)
    a("s_mov_b32 s88, s64"); a("s_mov_b32 s89, s65")
    srd(a, 64, 88, 2048 * 576 * 2)
    srd(a, 72, 76, 576 * 8)
    def kv_dma():
        a("s_lshr_b32 s36, s2, 3")
        a("s_mul_i32 s36, s36, %d" % (64 * 1152))
        a("s_and_b32 s37, s2, 7")
        a("s_mul_i32 s37, s37, 144")
        a("s_add_u32 s36, s36, s37")
        for q in range(5):
            a("s_add_u32 s38, s3, %d" % (4 * q))
            if q == 4: a("s_min_u32 s38, s38, 18")
            isK = (q < 2); isV = (q > 2)
            a("s_sub_u32 s39, s38, 10")
            a("s_cmp_lt_u32 s38, 10")
            a("s_cselect_b32 s39, s38, s39")
            a("s_cselect_b32 s40, %d, 0" % ((-3 * 1152) & 0xffffffff))
            a("s_lshl_b32 s37, s39, 6")
            a("v_add_u32 v240, s37, v2")
            a("v_mul_u32_u24 v241, 7282, v240")
            a("v_lshrrev_b32 v241, 16, v241")
            a("v_mul_u32_u24 v242, 9, v241")
            a("v_sub_u32 v242, v240, v242")
            a("v_mul_u32_u24 v241, 1152, v241")
            a("v_lshl_add_u32 v241, v242, 4, v241")
            a("s_add_u32 s40, s40, s36")
            a("v_add_u32 v241, s40, v241")
            a("s_lshl_b32 s37, s38, 10")
            a("s_add_u32 s37, s37, %d" % KVL)
            a("s_mov_b32 m0, s37")
            if isK:
                a("s_nop 0")
                a("buffer_load_dwordx4 v241, s[64:67], 0 offen lds")
            elif isV:
                a("s_nop 0")
                a("buffer_load_dwordx4 v241, s[68:71], 0 offen lds")
            else:
                a("s_cmp_lt_u32 s38, 10")
                a("s_cbranch_scc1 %s_kd1" % name)
                a("buffer_load_dwordx4 v241, s[68:71], 0 offen lds")
                a("s_branch %s_kd2" % name)
                a.label("%s_kd1" % name)
                a("buffer_load_dwordx4 v241, s[64:67], 0 offen lds")
                a.label("%s_kd2" % name)
    RA = 96; XB = 112
    for r in range(RA, RA + 16): a("v_mov_b32 v%d, 0" % r)
    a("v_lshrrev_b32 v10, 4, v2")
    a("v_lshrrev_b32 v11, 1, v3")
    a("v_xor_b32 v10, v10, v11")
    a("v_lshlrev_b32 v10, 4, v10")
    a("v_lshl_add_u32 v10, v3, 7, v10")
    a("v_add_u32 v12, s84, v10")
    a("v_xor_b32 v13, 64, v12")
    def rs_rd(g):
        a("v_add_u32 v10, %d, v12" % ((g % R) * SLOT))
        a("v_add_u32 v11, %d, v13" % ((g % R) * SLOT))
        for h in range(2):
            for n in range(2):
                a("ds_read_b128 %s, v%d offset:%d" % (vr(XB + 8 * h + 4 * n), 10 + h, 2048 * n))
    def rs_do():
        for h in range(2):
            for n in range(2):
                x = XB + 8 * h + 4 * n
                a("v_mfma_f32_16x16x32_bf16 %s, %s, %s, %s" % (vr(RA + 4 * n), vr(ONE), vr(x), vr(RA + 4 * n)))
                a("v_mfma_f32_16x16x32_bf16 %s, %s, %s, %s" % (vr(RA + 8 + 4 * n), vr(x), vr(x), vr(RA + 8 + 4 * n)))
    def interleave(dma, comp, vmx=None):
        groups = []; cur = []
        for l in dma:
            cur.append(l)
            if "buffer_load" in l and not any("exec, 0xffffffff" in x for x in cur[-2:]):
                groups.append(cur); cur = []
            elif "exec, -1" in l:
                groups.append(cur); cur = []
        if cur: groups.append(cur)
        ns = max(1, len(groups))
        per = (len(comp) + ns - 1) // ns
        for g in groups:
            a.lines.extend(g)
            a.lines.extend(comp[:per]); comp = comp[per:]
        a.lines.extend(comp)
    vm.wait(["S0"])
    a("s_barrier")
    stamp(a, 1)
    rs_rd(0)
    vm.wait(["S1"])
    a("s_barrier")
    for k in range(9):
        a("s_waitcnt lgkmcnt(0)")
        dma = capture(lambda: (issueT(k + 3), issueF(k + 3))) if k >= 1 else []
        interleave(dma, capture(rs_do))
        if k >= 1: vm.issue("S%d" % (k + 3), 9)
        if k == 3:
            kv_dma(); vm.issue("KV", 5)
        if k < 8:
            rs_rd(k + 1)
        else:
            a("s_nop 7")
            a("v_lshrrev_b32 v10, 4, v2")
            a("v_lshrrev_b32 v11, 2, v3")
            a("v_and_b32 v12, 3, v3")
            for n in range(2):
                G_ = RA + 8 + 4 * n
                for r in range(1, 4):
                    a("v_cmp_eq_u32 vcc, %d, v12" % r)
                    a("s_nop 1")
                    a("v_cndmask_b32 v%d, v%d, v%d, vcc" % (G_, G_, G_ + r))
            ML = 112
            for n in range(2):
                emit_ln_finish(a, RA + 4 * n, RA + 8 + 4 * n, 576, ML + 2 * n, ML + 2 * n + 1, 120)
                a("v_mov_b32 v%d, v%d" % (117 + 2 * n, ML + 2 * n + 1))
                a("v_sub_f32 v%d, 0, v%d" % (116 + 2 * n, ML + 2 * n))
            a("s_lshl_b32 s35, s3, 8")
            a("v_lshlrev_b32 v13, 3, v3")
            a("v_add_u32 v12, s35, v13")
            a("v_cmp_eq_u32 vcc, v10, v11")
            a("s_and_saveexec_b64 s[36:37], vcc")
            for n in range(2):
                a("ds_write_b64 v12, %s offset:%d" % (vr(116 + 2 * n, 2), RST + 128 * n))
            a("s_mov_b64 exec, s[36:37]")
            a("s_cmp_lg_u32 s23, 0")
            a("s_cbranch_scc1 %s_nost1" % name)
            a("s_lshl_b32 s35, s22, 7")
            a("s_lshl_b32 s36, s3, 5")
            a("s_add_u32 s35, s35, s36")
            a("s_lshl_b32 s35, s35, 3")
            a("s_add_u32 s35, s35, 0x%x" % STATS1)
            a("v_mov_b32 v11, 0x7ffffff0")
            a("v_cndmask_b32 v13, v11, v13, vcc")
            for n in range(2):
                a("buffer_store_dwordx2 %s, v13, s[12:15], s35 offen offset:%d sc1" % (vr(ML + 2 * n, 2), 128 * n))
            a.label("%s_nost1" % name)
            a("v_and_b32 v0, 255, v0")
            a("v_lshrrev_b32 v1, 3, v0")
            a("v_and_b32 v10, 7, v0")
            a("s_lshr_b32 s38, s2, 3")
            a("s_lshl_b32 s38, s38, 6")
            a("v_lshl_add_u32 v252, v10, 3, s38")
            a("s_and_b32 s39, s2, 7")
            a("s_mul_i32 s39, s39, 144")
            a("v_lshl_add_u32 v253, v1, 2, s39")
            a("v_lshlrev_b32 v11, 2, v253")
            a("buffer_load_dwordx4 v[248:251], v11, s[72:75], 0 offen")
            a("buffer_load_dwordx4 v[244:247], v11, s[72:75], 0 offen offset:512")
            a("v_mul_u32_u24 v254, 1152, v10")
            a("v_lshl_add_u32 v254, v1, 2, v254")
            a("v_add_u32 v254, %d, v254" % KVL)
            a("s_mov_b32 s41, 0")
            lb_ = len(a.lines)
            a("s_mov_b32 s42, s2")
            emit_wot_loads(a, 100, 200, 720, 3)
            n_ = 0
            for i_ in range(lb_, len(a.lines)):
                if "buffer_load_dwordx4" in a.lines[i_]:
                    a.lines[i_] = "    v_mov_b32 v%d, v23" % (240 + n_); n_ += 1
            mma_addr(9 % R)
            a("s_mov_b32 s33, 0")
            a("s_setprio 0")
        vm.wait(["S%d" % (k + 2)], "lgkmcnt(0)" if k == 8 else "")
        if k < 8: a("s_barrier")
    a("s_branch %s_mma" % name)
    a.label("%s_A0" % name)
    emit_code_prefetch(a, name)
    a("s_load_dwordx4 s[64:67], s[0:1], 8")
    a("s_load_dwordx2 s[76:77], s[0:1], 24")
    a("s_load_dwordx2 s[78:79], s[0:1], 64")
    mma_setup()
    loader_setup(); loader_setup2()
    a("s_waitcnt lgkmcnt(0)")
    srds_main()
    srd(a, 68, 66, 2048 * 576 * 2)
    a("s_mov_b32 s88, s64"); a("s_mov_b32 s89, s65")
    srd(a, 64, 88, 2048 * 576 * 2)
    srd(a, 72, 76, 576 * 8)
    stamp_setup(a, 1); stamp(a, 0)
    def gran_addr():
        a("v_lshrrev_b32 v10, 4, v2")
        a("s_lshl_b32 s36, s25, 1")
        a("v_add_u32 v11, s36, v10")
        a("v_and_b32 v11, 3, v11")
        a("v_lshl_add_u32 v11, v11, 4, v3")
        a("v_lshlrev_b32 v94, 3, v11")
        a("s_lshl_b32 s59, s22, 15")
        a("s_lshl_b32 s36, s24, 9")
        a("s_add_u32 s59, s59, s36")
        a("s_add_u32 s59, s59, 0x%x" % STATS2)
        a("s_lshl_b32 s36, s23, 1")
        a("s_add_u32 s36, s36, s25")
        a("s_lshl_b32 s36, s36, 10")
        a("s_add_u32 s58, s36, s59")
    gran_addr()
    a("v_mov_b32 v12, 0"); a("v_mov_b32 v13, 0x80000000")
    a("buffer_store_dwordx2 v[12:13], v94, s[12:15], s58 offen sc1")
    a("s_lshl_b32 s36, s22, 4")
    a("s_add_u32 s36, s36, s23")
    a("s_lshl_b32 s36, s36, 8")
    a("s_add_u32 s97, s36, 0x%x" % ZFLG)
    a("v_mov_b32 v10, %d" % LC)
    a("v_mov_b32 v12, 0"); a("v_mov_b32 v13, 0")
    a("s_mov_b64 exec, 1")
    a("buffer_store_dword v12, v12, s[12:15], s97 offen sc1")
    a("buffer_store_dword v12, v12, s[12:15], s97 offen offset:%d sc1" % PFL)
    a("s_mov_b64 exec, -1")
    a("ds_write_b64 v10, v[12:13]")
    a("ds_write_b64 v10, v[12:13] offset:8")
    a("ds_write_b64 v10, v[12:13] offset:16")
    a("ds_write_b64 v10, v[12:13] offset:24")
    mma_addr(0)
    a("s_mov_b32 s33, 0")
    a("s_waitcnt lgkmcnt(0)")
    a("s_barrier")
    stamp(a, 1)
    a.label("%s_mma" % name)
    core.prime(0, core.reads(0, 0))
    trk.drain()
    nocs = [False]
    def mfmas(buf):
        L = []
        for ft in range(5):
            A = core.F(buf, ft)
            for tt in range(4 if ft < 4 else 2):
                c = core.accr(ft, tt); B = core.T(buf, tt)
                L.append(("v_mfma_f32_16x16x32_bf16 %s, %s, %s, %s" % (vr(c), vr(A), vr(B), vr(c)), list(range(A, A + 4)) + list(range(B, B + 4))))
            if not nocs[0]: L.append(("v_mfma_f32_16x16x32_bf16 %s, %s, %s, %s" % (vr(CS + 4 * ft), vr(A), vr(ONE), vr(CS + 4 * ft)), list(range(A, A + 4))))
        return L
    def phase(buf, pend):
        for (m, regs) in mfmas(buf):
            trk.need(regs)
            a(m)
            while pend:
                k, t = pend.pop(0)
                if k == "x":
                    a(t)
                    if t.startswith("s_"): continue
                else:
                    a(t[0]); trk.issue(t[1])
                break
        for k, t in pend:
            if k == "x": a(t)
            else: a(t[0]); trk.issue(t[1])
    def iteration(vw=True):
        if vw: a("s_waitcnt vmcnt(0)")
        a("s_barrier")
        rd = [("r", t) for t in core.reads(1, 1)]
        upd = ["s_add_u32 s27, s27, %d" % SLOT, "s_cmp_eq_u32 s27, %d" % (R * SLOT), "s_cselect_b32 s27, 0, s27"]
        tail = ["v_add_u32 v%d, s27, v%d" % (d, s_) for d, s_ in ((vTa[0], bTa[0]), (vF, bF), (vTb[0], bTb[0]), (vFh, bFh))]
        phase(0, rd[:1] + [("x", u) for u in upd] + rd[1:] + [("x", u) for u in tail])
        rd = [("r", t) for t in core.reads(0, 0)]
        tail = ["v_add_u32 v%d, s27, v%d" % (d, s_) for d, s_ in ((vTa[1], bTa[1]), (vTb[1], bTb[1]))] + ["s_add_u32 s33, s33, 1"]
        phase(1, rd + [("x", u) for u in tail])
    a.label("%s_cloop" % name)
    lb = len(a.lines); iteration(); st = copy.deepcopy(trk.out); del a.lines[lb:]; trk.out = copy.deepcopy(st)
    iteration()
    assert [sorted(x) for x in trk.out] == [sorted(x) for x in st]
    a("s_cmp_lt_u32 s33, 9")
    a("s_cbranch_scc1 %s_cloop" % name)
    trk.drain()
    stamp(a, 2)
    MR = 100; T = 72; ZP = 16
    def epi_in():
        gelu_consts(a)
        a("s_lshl_b32 s36, s24, 9")
        a("s_lshl_b32 s37, s25, 8")
        a("s_add_u32 s38, s36, s37")
        a("s_xor_b32 s37, s37, 256")
        a("s_add_u32 s39, s36, s37")
        a("v_lshlrev_b32 v10, 3, v3")
        a("v_add_u32 v11, s38, v10")
        a("ds_read_b64 %s, v11 offset:%d" % (vr(MR, 2), RST))
        a("ds_read_b64 %s, v11 offset:%d" % (vr(MR + 2, 2), RST + 128))
        a("v_add_u32 v11, s39, v10")
        a("ds_read_b64 %s, v11 offset:%d" % (vr(MR + 4, 2), RST))
        a("ds_read_b64 %s, v11 offset:%d" % (vr(MR + 6, 2), RST + 128))
        a("s_waitcnt lgkmcnt(0)")
    S = [108, 110, 52, 54]; Q = [109, 111, 53, 55]
    def gelu_ft(ft, stats):
        tts = range(4 if ft < 4 else 2)
        a("s_call_b64 s[34:35], %s_gsub%d" % (name, ft))
        if stats:
            for d in range(2):
                for tt in tts:
                    p = ZP + 2 * tidx(ft, tt) + d
                    a("v_dot2_f32_bf16 v%d, v%d, v%d, v%d" % (S[tt], p, ONE, S[tt]))
                    a("v_dot2_f32_bf16 v%d, v%d, v%d, v%d" % (Q[tt], p, p, Q[tt]))
    a("s_cmp_eq_u32 s98, 0")
    a("s_cbranch_scc1 %s_A1" % name)
    a("s_barrier")
    a("s_load_dwordx2 s[94:95], s[0:1], 80")
    a("s_load_dwordx2 s[92:93], s[0:1], 72")
    epi_in()
    srd(a, 76, 94, 2304 * 576 * 2)
    srd(a, 28, 92, 2048 * 2)
    for ft in range(5): gelu_ft(ft, False)
    Z1R = 200; BI = 236
    for r_ in range(3):
        a("v_mov_b32 v%d, v%d" % (134 + r_, 200 + r_)); a("v_mov_b32 v%d, v%d" % (137 + r_, 240 + r_))
    for r_ in range(36): a("v_mov_b32 v%d, v%d" % (Z1R + r_, ZP + r_))
    stamp(a, 3)
    a("s_waitcnt vmcnt(0)")
    for r_ in range(6): a("v_mov_b32 v%d, v%d" % (128 + r_, 88 + r_))
    a.label("%s_kvb" % name)
    for n in range(11): a("ds_read_b32 v%d, v254 offset:%d" % (16 + n, 144 * n))
    a("s_waitcnt lgkmcnt(4)")
    for n in range(8): a("ds_read_b32 v%d, v254 offset:%d" % (32 + n, 10240 + 144 * n))
    for n in range(4): a("v_mov_b32 v%d, v%d" % (44 + n, 248 + n))
    a("v_mov_b32 v56, v252"); a("v_mov_b32 v57, v253")
    a("s_waitcnt lgkmcnt(0)")
    emit_kv_compute(a, wait=False, store=False)
    a("s_mov_b32 s39, 0x%x" % KVT)
    a("buffer_store_dwordx4 v[120:123], v12, s[12:15], s39 offen sc1")
    a("buffer_store_dwordx4 v[124:127], v13, s[12:15], s39 offen sc1")
    a("s_cmp_lg_u32 s41, 0")
    a("s_cbranch_scc1 %s_kvbx" % name)
    a("s_cmp_lg_u32 s3, 0")
    a("s_cbranch_scc1 %s_kvbx" % name)
    a("s_mov_b32 s41, 1")
    for n in range(4): a("v_mov_b32 v%d, v%d" % (248 + n, 244 + n))
    a("v_add_u32 v253, 128, v253")
    a("v_add_u32 v254, 128, v254")
    a("s_mov_b64 exec, 0xffffffff")
    a("s_branch %s_kvb" % name)
    a.label("%s_kvbx" % name)
    a("s_mov_b64 exec, -1")
    for r_ in range(6): a("v_mov_b32 v%d, v%d" % (240 + r_, 128 + r_))
    a.label("%s_kvbd" % name)
    for r_ in range(6): a("v_mov_b32 v%d, v%d" % (88 + r_, 240 + r_))
    for r_ in range(6): a("v_mov_b32 v%d, v%d" % (112 + r_, 134 + r_))
    a("s_mov_b32 s40, 0x%x" % WOT)
    for r in range(ACC, ACC + 72): a("v_mov_b32 v%d, 0" % r)
    a("v_lshrrev_b32 v10, 2, v2")
    a("v_lshlrev_b32 v10, 5, v10")
    a("v_and_b32 v11, 3, v2")
    a("v_lshl_add_u32 v10, v11, 3, v10")
    a("v_add_u32 v10, %d, v10" % (RB + TREG))
    a("s_mul_i32 s26, s25, 10240")
    a("v_add_u32 v%d, s26, v10" % bF)
    a("v_add_u32 v%d, 8192, v10" % bFh)
    core.FS = 32; core.FT = 2048
    mma_addr(0)
    a("s_mov_b32 s33, 0")
    stamp(a, 4)
    a("s_barrier")
    stamp(a, 5)
    core.prime(0, core.reads(0, 0))
    trk.drain()
    nocs[0] = True
    a.label("%s_gloop" % name)
    lb = len(a.lines); iteration(False); st = copy.deepcopy(trk.out); del a.lines[lb:]; trk.out = copy.deepcopy(st)
    iteration(False)
    assert [sorted(x) for x in trk.out] == [sorted(x) for x in st]
    a("s_cmp_lg_u32 s33, 2")
    a("s_cbranch_scc1 %s_ghkA" % name)
    for n in range(3):
        a("buffer_load_dwordx4 %s, v%d, s[76:79], 0 offen" % (vr(100 + 4 * n), 115 + n))
    a("s_lshl_b32 s36, s22, 7")
    a("s_lshl_b32 s37, s24, 6")
    a("s_add_u32 s36, s36, s37")
    a("v_lshlrev_b32 v11, 1, v3")
    a("s_lshl_b32 s37, s25, 6")
    a("s_lshl_b32 s38, s36, 1")
    a("s_add_u32 s39, s38, s37")
    a("s_xor_b32 s37, s37, 64")
    a("s_add_u32 s36, s38, s37")
    a("buffer_load_ushort v96, v11, s[28:31], s39 offen")
    a("buffer_load_ushort v97, v11, s[28:31], s39 offen offset:32")
    a("buffer_load_ushort v98, v11, s[28:31], s36 offen")
    a("buffer_load_ushort v99, v11, s[28:31], s36 offen offset:32")
    a.label("%s_ghkA" % name)
    a("s_cmp_lg_u32 s33, 6")
    a("s_cbranch_scc1 %s_ghk0" % name)
    a("s_waitcnt vmcnt(0)")
    for n in range(3):
        a("buffer_store_dwordx4 %s, v%d, s[12:15], s40 offen sc1" % (vr(100 + 4 * n), 112 + n))
    for tt in range(4): a("v_lshlrev_b32 v%d, 16, v%d" % (BI + 2 * tt, 96 + tt))
    a.label("%s_ghk0" % name)
    a("s_cmp_lg_u32 s33, 9")
    a("s_cbranch_scc1 %s_ghk" % name)
    a("s_waitcnt vmcnt(0)")
    a("v_mov_b32 v10, %d" % (LC + 8))
    a("v_mov_b32 v11, 1")
    a("s_mov_b64 exec, 1")
    a("ds_add_rtn_u32 v12, v10, v11")
    a("s_waitcnt lgkmcnt(0)")
    a("v_readfirstlane_b32 s36, v12")
    a("s_cmp_lg_u32 s36, 3")
    a("s_cbranch_scc1 %s_nokvs" % name)
    a("s_and_b32 s36, s2, 15")
    a("s_lshl_b32 s36, s36, 2")
    a("s_add_u32 s36, s36, 128")
    a("v_mov_b32 v10, s36")
    a("buffer_atomic_add v11, v10, s[60:63], 0 offen sc1")
    a.label("%s_nokvs" % name)
    a("s_mov_b64 exec, -1")
    a.label("%s_ghk" % name)
    a("s_cmp_lg_u32 s33, 24")
    a("s_cbranch_scc1 %s_ghk2" % name)
    a("v_lshlrev_b32 v10, 2, v3")
    a("buffer_load_dword v254, v10, s[60:63], 0 offen offset:128 sc1")
    a.label("%s_ghk2" % name)
    a("s_cmp_lt_u32 s33, 32")
    a("s_cbranch_scc1 %s_gloop" % name)
    trk.drain()
    stamp(a, 6)
    G3.emit_k2_epilogue2(a, core, Z1R, BI, " sc1")
    stamp(a, 7)
    a("s_setprio 3")
    a("s_lshl_b32 s36, s22, 4")
    a("s_add_u32 s36, s36, s23")
    a("s_lshl_b32 s36, s36, 8")
    a("s_add_u32 s97, s36, 0x%x" % (ZFLG + PFL))
    c_common()
    a("v_lshlrev_b32 v14, 4, v2")
    a("s_mul_i32 s26, s22, %d" % (36 * 8192))
    a("s_lshl_b32 s24, s3, 12")
    a("s_add_u32 s26, s26, s24")
    a("s_add_u32 s26, s26, 0x%x" % PIMG)
    a("s_mul_i32 s27, s23, %d" % (18 * 20480))
    a("s_mul_i32 s25, s3, 5120")
    a("s_add_u32 s27, s27, s25")
    a("s_add_u32 s27, s27, 0x%x" % WOT)
    a("s_add_u32 s25, s25, %d" % CTREG)
    a("v_and_b32 v28, 15, v2")
    a("v_lshlrev_b32 v30, 2, v28")
    a("v_mov_b32 v26, %d" % LC)
    a("v_mov_b32 v27, 1")
    a("s_waitcnt vmcnt(0)")
    a("v_mov_b32 v31, v254")
    a("s_mov_b64 exec, 1")
    a("ds_add_rtn_u32 v29, v26, v27 offset:16")
    a("s_waitcnt lgkmcnt(0)")
    a("v_readfirstlane_b32 s36, v29")
    a("s_cmp_lg_u32 s36, 3")
    a("s_cbranch_scc1 %s_nops" % name)
    a("v_mov_b32 v29, 0")
    a("buffer_store_dword v27, v29, s[12:15], s97 offen sc1")
    a.label("%s_nops" % name)
    a("s_mov_b64 exec, -1")
    a("s_mov_b32 s34, 0")
    a.label("%s_cw" % name)
    a("ds_read_b32 v29, v26 offset:16")
    a("s_add_u32 s34, s34, 1")
    a("s_waitcnt lgkmcnt(0)")
    a("v_readfirstlane_b32 s36, v29")
    a("s_cmp_gt_u32 s34, %d" % (SPIN_MAX * 20))
    a("s_cbranch_scc1 %s_cwx" % name)
    a("s_cmp_ge_u32 s36, 4")
    a("s_cbranch_scc1 %s_cwx" % name)
    a("s_sleep 1")
    a("s_branch %s_cw" % name)
    a.label("%s_cwx" % name)
    a("s_mov_b32 s34, 0")
    a.label("%s_cp" % name)
    a("v_cmp_gt_u32 vcc, 16, v31")
    a("s_add_u32 s34, s34, 1")
    a("s_cmp_gt_u32 s34, %d" % SPIN_MAX)
    a("s_cbranch_scc1 %s_cpx" % name)
    a("s_cbranch_vccz %s_cpx" % name)
    a("s_sleep 32")
    a("buffer_load_dword v31, v30, s[60:63], 0 offen offset:128 sc1")
    a("s_waitcnt vmcnt(0)")
    a("s_branch %s_cp" % name)
    a.label("%s_cpx" % name)
    def cF(off, soff):
        a("s_add_u32 s36, s25, %s" % off)
        a("s_mov_b32 m0, s36")
        a("s_add_u32 s37, %s, 4096" % soff)
        for n in range(4):
            a("buffer_load_dwordx4 v14, s[12:15], %s offen offset:%d sc1 lds" % (soff, n * 1024))
        a("s_add_u32 s36, s36, 4096")
        a("s_mov_b32 m0, s36")
        a("s_nop 0")
        a("buffer_load_dwordx4 v14, s[12:15], s37 offen sc1 lds")
    def cT(off, soff):
        a("s_add_u32 s35, s24, %s" % off)
        a("s_mov_b32 m0, s35")
        a("s_nop 0")
        for n in range(4):
            a("buffer_load_dwordx4 v14, s[12:15], %s offen offset:%d sc1 lds" % (soff, n * 1024))
    a("s_add_u32 s38, s27, 20480")
    cF(str(C0), "s27"); cF(str(C0 + CSL), "s38")
    a("s_mov_b32 s34, 0")
    a("s_cmp_lg_u32 s3, 0")
    a("s_cbranch_scc1 %s_cpl" % name)
    a("v_lshlrev_b32 v28, 8, v28")
    a("s_lshr_b32 s39, s22, 1")
    a("s_lshl_b32 s39, s39, 12")
    a("s_add_u32 s39, s39, 0x%x" % (ZFLG + PFL))
    a.label("%s_cpz" % name)
    a("buffer_load_dword v29, v28, s[12:15], s39 offen sc1")
    a("s_add_u32 s34, s34, 1")
    a("s_waitcnt vmcnt(0)")
    a("v_cmp_ne_u32 vcc, 1, v29")
    a("s_cmp_gt_u32 s34, %d" % SPIN_MAX)
    a("s_cbranch_scc1 %s_cpzx" % name)
    a("s_cbranch_vccz %s_cpzx" % name)
    a("s_sleep 8")
    a("s_branch %s_cpz" % name)
    a.label("%s_cpzx" % name)
    a("ds_write_b32 v26, v27 offset:24")
    a("s_branch %s_cgo" % name)
    a.label("%s_cpl" % name)
    a("ds_read_b32 v29, v26 offset:24")
    a("s_add_u32 s34, s34, 1")
    a("s_waitcnt lgkmcnt(0)")
    a("v_readfirstlane_b32 s36, v29")
    a("s_cmp_gt_u32 s34, %d" % (SPIN_MAX * 20))
    a("s_cbranch_scc1 %s_cgo" % name)
    a("s_cmp_lg_u32 s36, 0")
    a("s_cbranch_scc1 %s_cgo" % name)
    a("s_sleep 2")
    a("s_branch %s_cpl" % name)
    a.label("%s_cgo" % name)
    stamp(a, 8)
    a("s_add_u32 s38, s26, 16384")
    cT(str(C0), "s26"); cT(str(C0 + CSL), "s38")
    a("s_add_u32 s26, s26, 32768")
    a("s_add_u32 s27, s27, 40960")
    a("s_mov_b32 s33, %d" % RB)
    def cissue():
        cT("s33", "s26"); cF("s33", "s27")
        a("s_add_u32 s26, s26, 16384")
        a("s_add_u32 s27, s27, 20480")
        a("s_add_u32 s33, s33, %d" % CSL)
        a("s_cmp_eq_u32 s33, %d" % CW)
        a("s_cselect_b32 s33, %d, s33" % RB)
    a("s_waitcnt vmcnt(4)")
    a("s_barrier")
    cissue(); cissue()
    a("s_waitcnt vmcnt(18)")
    a("s_barrier")
    a("s_mov_b32 s34, 0")
    a.label("%s_clloop" % name)
    cissue()
    a("s_cmp_lg_u32 s34, 11")
    a("s_cbranch_scc1 %s_cl1" % name)
    a("buffer_load_dword v31, v30, s[60:63], 0 offen offset:192 sc1")
    a("s_waitcnt vmcnt(19)")
    a("s_branch %s_cl2" % name)
    a.label("%s_cl1" % name)
    a("s_waitcnt vmcnt(18)")
    a.label("%s_cl2" % name)
    a("s_barrier")
    a("s_add_u32 s34, s34, 1")
    a("s_cmp_lt_u32 s34, 14")
    a("s_cbranch_scc1 %s_clloop" % name)
    a("s_mov_b32 s34, 0")
    a.label("%s_cy" % name)
    a("v_cmp_gt_u32 vcc, 16, v31")
    a("s_add_u32 s34, s34, 1")
    a("s_cmp_gt_u32 s34, %d" % SPIN_MAX)
    a("s_cbranch_scc1 %s_cyx" % name)
    a("s_cbranch_vccz %s_cyx" % name)
    a("s_sleep 32")
    a("buffer_load_dword v31, v30, s[60:63], 0 offen offset:192 sc1")
    a("s_waitcnt vmcnt(0)")
    a("s_branch %s_cy" % name)
    a.label("%s_cyx" % name)
    a("v_lshrrev_b32 v3, 3, v2")
    a("v_and_b32 v4, 7, v2")
    a("v_lshlrev_b32 v4, 4, v4")
    a("s_mul_i32 s33, s52, 144")
    a("s_mul_i32 s34, s53, 80")
    a("s_lshl_b32 s35, s22, 7")
    a("s_add_u32 s35, s35, 0x%x" % YT)
    for n in range(3):
        a("s_add_u32 s36, s3, %d" % (4 * n))
        if n == 2: a("s_min_u32 s36, s36, 9")
        a("s_lshl_b32 s37, s36, 3")
        a("s_add_u32 s38, s37, s33")
        if n < 2: a("s_add_u32 s38, s38, s34")
        a("v_add_u32 v5, s38, v3")
        a("v_lshl_add_u32 v5, v5, 12, v4")
        a("s_lshl_b32 s36, s36, 10")
        a("s_add_u32 s36, s36, %d" % YOFF)
        a("s_mov_b32 m0, s36")
        a("s_nop 0")
        a("buffer_load_dwordx4 v5, s[12:15], s35 offen sc1 lds")
    fin_loads()
    a("s_waitcnt vmcnt(%d)" % (9 + 7))
    a("s_barrier")
    a("s_waitcnt vmcnt(7)")
    a("s_barrier")
    a("s_barrier")
    a("s_setprio 0")
    a("s_waitcnt vmcnt(0)")
    a("s_branch %s_cfin" % name)
    a.label("%s_A1" % name)
    a("s_setprio 2")
    vmA = VmTracker(a)
    PB = 132
    def aux_head():
        epi_in()
        for tt in range(4):
            a("v_mov_b32 v%d, 0" % S[tt]); a("v_mov_b32 v%d, 0" % Q[tt])
    def aux_pub():
        a("s_nop 2")
        emit_xg_reduce(a, S + Q, 72)
        a("v_lshrrev_b32 v10, 4, v2")
        for g in range(1, 4):
            a("v_cmp_eq_u32 vcc, %d, v10" % g)
            a("s_nop 1")
            a("v_cndmask_b32 v%d, v%d, v%d, vcc" % (S[0], S[0], S[g]))
            a("v_cndmask_b32 v%d, v%d, v%d, vcc" % (Q[0], Q[0], Q[g]))
        a("v_and_b32 v%d, 0x7fffffff, v%d" % (Q[0], Q[0]))
        a("buffer_store_dwordx2 v[%d:%d], v94, s[12:15], s58 offen sc1" % (S[0], Q[0]))
    chunks = [capture(aux_head) + capture(gelu_ft, 0, True), capture(gelu_ft, 1, True), capture(gelu_ft, 2, True),
              capture(gelu_ft, 3, True), capture(gelu_ft, 4, True) + capture(aux_pub)]
    KD = 172
    for k in range(9, 18):
        a("s_barrier")
        if k == 9:
            a("s_cmp_lg_u32 s3, 0")
            a("s_cbranch_scc1 %s_nosig" % name)
            a("v_mov_b32 v10, 1")
            a("s_lshl_b32 s36, s22, 2")
            a("v_mov_b32 v11, s36")
            a("s_mov_b64 exec, 1")
            a("buffer_atomic_add v10, v11, s[60:63], 0 offen sc1")
            a("s_mov_b64 exec, -1")
            a.label("%s_nosig" % name)
        g = k + 3
        dma = capture(lambda: (issueT(g), issueF(g))) if g < 18 else []
        comp = chunks[k - 9] if k - 9 < len(chunks) else []
        a.lines.extend(dma); a.lines.extend(comp)
        if k == 13: vmA.issue("pub", 1)
        if g < 18: vmA.issue("S%d" % g, 9)
        if k == 14:
            srd(a, 92, 78, 2048 * 2048 * 2)
            a("v_lshrrev_b32 v10, 4, v2")
            a("v_lshlrev_b32 v10, 12, v10")
            a("v_lshl_add_u32 v10, v3, 4, v10")
            a("s_lshl_b32 s40, s22, 7")
            a("s_lshl_b32 s36, s3, 5")
            a("s_add_u32 s40, s40, s36")
            a("s_lshl_b32 s40, s40, 12")
            a("s_lshl_b32 s36, s23, 8")
            a("s_add_u32 s40, s40, s36")
            for n in range(8):
                a("buffer_load_dwordx4 v[200:203], v10, s[92:95], s40 offen")
                if n < 7: a("s_add_u32 s40, s40, 16384")
            vmA.issue("wp", 8)
            a("s_lshl_b32 s36, s22, 2")
            a("v_mov_b32 v199, s36")
            a("buffer_load_dword v198, v199, s[60:63], 0 offen sc1"); vmA.issue("cnt", 1)
        if k + 2 < 18 and k + 2 >= 12:
            vmA.wait(["S%d" % (k + 2)])
    a("s_barrier")
    stamp(a, 3)
    a("s_load_dwordx4 s[88:91], s[0:1], 32")
    Z2 = ZP
    a("v_and_b32 v4, 31, v2")
    a("v_lshlrev_b32 v4, 4, v4")
    a("v_lshrrev_b32 v10, 5, v2")
    a("v_lshl_add_u32 v4, v10, 10, v4")
    for q in range(8): a("s_add_u32 s%d, s59, %d" % ((52, 53, 42, 43, 40, 41, 38, 39)[q], 4096 * q))
    GB = 128
    def gather():
        for q in range(16):
            a("buffer_load_dwordx4 %s, v4, s[12:15], s%d offen offset:%d sc1" % (vr(GB + 4 * q), (52, 53, 42, 43, 40, 41, 38, 39)[q >> 1], 2048 * (q & 1)))
    a("s_waitcnt vmcnt(0)")
    gather()
    a("s_mov_b32 s33, 0")
    a("s_waitcnt vmcnt(0)")
    a.label("%s_chk" % name)
    a("v_subrev_u32 v11, 16, v198")
    for q in range(16):
        a("v_or3_b32 v11, v11, v%d, v%d" % (GB + 4 * q + 1, GB + 4 * q + 3))
    a("v_cmp_gt_i32 vcc, 0, v11")
    a("s_add_u32 s33, s33, 1")
    a("s_cmp_gt_u32 s33, %d" % SPIN_MAX)
    a("s_cbranch_scc1 %s_ok" % name)
    a("s_cbranch_vccz %s_ok" % name)
    a("s_sleep 32")
    a("buffer_load_dword v198, v199, s[60:63], 0 offen sc1")
    a("s_waitcnt vmcnt(0)")
    gather()
    a("s_waitcnt vmcnt(0)")
    a("s_branch %s_chk" % name)
    a.label("%s_ok" % name)
    stamp(a, 5)
    for st_ in (32, 16, 8, 4):
        for q in range(0, st_, 2):
            a("v_pk_add_f32 %s, %s, %s" % (vr(GB + q, 2), vr(GB + q, 2), vr(GB + q + st_, 2)))
    for e in range(4): a("v_mov_b32 v%d, v%d" % (72 + e, GB + e))
    a("s_nop 1")
    for e in range(4): a("v_permlane32_swap_b32 v%d, v%d" % (GB + e, 72 + e))
    a("s_nop 1")
    for e in range(4): a("v_add_f32 v%d, v%d, v%d" % (GB + e, GB + e, 72 + e))
    for h in range(2):
        emit_ln_finish(a, GB + 2 * h, GB + 2 * h + 1, 2304, GB + 8 + h, GB + 4 + 2 * h, GB + 12)
        a("v_mul_f32 v%d, -v%d, v%d" % (GB + 5 + 2 * h, GB + 8 + h, GB + 4 + 2 * h))
    a("v_and_b32 v10, 31, v2")
    a("s_lshl_b32 s36, s24, 9")
    a("v_lshl_add_u32 v10, v10, 4, s36")
    a("ds_write_b128 v10, %s offset:1024" % vr(GB + 4))
    a("s_lshl_b32 s37, s25, 8")
    a("s_add_u32 s38, s36, s37")
    a("s_xor_b32 s37, s37, 256")
    a("s_add_u32 s39, s36, s37")
    a("v_lshlrev_b32 v10, 3, v3")
    a("v_add_u32 v11, s38, v10")
    a("v_add_u32 v10, s39, v10")
    a("s_waitcnt lgkmcnt(0)")
    a("ds_read_b64 %s, v11 offset:1024" % vr(MR, 2))
    a("ds_read_b64 %s, v11 offset:1152" % vr(MR + 2, 2))
    a("ds_read_b64 %s, v10 offset:1024" % vr(MR + 4, 2))
    a("ds_read_b64 %s, v10 offset:1152" % vr(MR + 6, 2))
    a("v_lshrrev_b32 v10, 4, v2")
    a("v_lshrrev_b32 v11, 2, v2"); a("v_and_b32 v11, 1, v11"); a("v_lshlrev_b32 v11, 4, v11")
    a("v_lshrrev_b32 v5, 3, v2"); a("v_and_b32 v5, 1, v5"); a("v_lshl_add_u32 v11, v5, 2, v11")
    a("v_and_b32 v5, 3, v2"); a("v_add_u32 v11, v11, v5")
    a("v_and_b32 v5, 1, v10")
    a("v_lshl_add_u32 v11, v5, 3, v11")
    a("v_lshlrev_b32 v11, 5, v11")
    a("v_lshrrev_b32 v5, 1, v10")
    a("v_lshl_add_u32 v6, v5, 4, v11")
    a("s_lshl_b32 s33, s23, 5")
    a("s_lshl_b32 s36, s22, 1")
    a("s_add_u32 s33, s33, s36")
    a("s_add_u32 s33, s33, s24")
    a("s_mul_i32 s33, s33, 18432")
    if ZIMG: a("s_add_u32 s33, s33, 0x%x" % ZIMG)
    a("s_lshl_b32 s36, s25, 10")
    a("s_add_u32 s39, s33, s36")
    a("s_add_u32 s39, s39, 8192")
    a("s_mul_i32 s38, s25, 10240")
    a("s_add_u32 s33, s33, s38")
    a("s_add_u32 s37, s33, s36")
    a("s_xor_b32 s36, s36, 1024")
    a("s_add_u32 s38, s33, s36")
    a("s_add_u32 s33, s37, 4096")
    a("s_add_u32 s36, s38, 4096")
    def norm_pair(nA, ttA, nB, ttB, O):
        for q, (n, tt) in enumerate(((nA, ttA), (nB, ttB))):
            for d in range(2):
                z = Z2 + 2 * n + d; t = T + 4 * q + 2 * d
                a("v_lshlrev_b32 v%d, 16, v%d" % (t, z))
                a("v_and_b32 v%d, 0xffff0000, v%d" % (t + 1, z))
        for q, (n, tt) in enumerate(((nA, ttA), (nB, ttB))):
            for d in range(2):
                t = T + 4 * q + 2 * d
                a("v_pk_fma_f32 %s, %s, %s, %s op_sel:[0,0,1] op_sel_hi:[1,0,1]" % (vr(t, 2), vr(t, 2), vr(MR + 2 * tt, 2), vr(MR + 2 * tt, 2)))
        for q in range(2):
            for d in range(2):
                t = T + 4 * q + 2 * d
                a("v_cvt_pk_bf16_f32 v%d, v%d, v%d" % (O + 2 * q + d, t, t + 1))
        a("s_nop 1")
        a("v_permlane16_swap_b32 v%d, v%d" % (O, O + 2))
        a("v_permlane16_swap_b32 v%d, v%d" % (O + 1, O + 3))
    a("s_waitcnt lgkmcnt(0)")
    cnt = 0
    for ft in range(4):
        for pp in range(2):
            O = 200 + 4 * cnt; cnt += 1
            norm_pair(tidx(ft, 2 * pp), 2 * pp, tidx(ft, 2 * pp + 1), 2 * pp + 1, O)
            a("s_nop 0")
            a("buffer_store_dwordx4 %s, v6, s[12:15], s%d offen offset:%d sc1" % (vr(O), ((37, 38), (33, 36))[ft >> 1][pp], (ft & 1) * 2048))
    O = 200 + 4 * cnt
    norm_pair(16, 0, 17, 1, O)
    a("s_nop 0")
    a("buffer_store_dwordx4 %s, v6, s[12:15], s39 offen sc1" % vr(O))
    stamp(a, 6)
    a("s_setprio 3")
    srd(a, 8, 78, 2048 * 2048 * 2)
    a("v_lshrrev_b32 v3, 3, v2")
    a("s_lshl_b32 s24, s3, 5")
    a("v_add_u32 v3, s24, v3")
    a("v_and_b32 v4, 7, v2")
    a("v_lshrrev_b32 v6, 4, v2")
    a("v_xor_b32 v6, v6, v4")
    a("v_lshlrev_b32 v6, 4, v6")
    a("v_lshl_add_u32 v10, v3, 12, v6")
    a("v_xor_b32 v11, 64, v10")
    a("v_add_u32 v11, %d, v11" % (32768 - 1024))
    a("v_add_u32 v12, %d, v10" % (2 * (32768 - 1024)))
    a("v_add_u32 v13, %d, v11" % (2 * (32768 - 1024)))
    a("v_lshlrev_b32 v14, 4, v2")
    a("s_lshl_b32 s26, s22, 19")
    a("s_mul_i32 s27, s23, %d" % (32 * 18432))
    a("s_lshl_b32 s24, s3, 12")
    a("s_add_u32 s27, s27, s24")
    if ZIMG: a("s_add_u32 s27, s27, 0x%x" % ZIMG)
    a("s_lshl_b32 s25, s3, 9")
    a("s_sub_u32 s32, s25, s24")
    a("s_add_u32 s32, s32, 16384")
    a("s_add_u32 s24, s24, %d" % RB)
    a("s_waitcnt vmcnt(0) lgkmcnt(0)")
    a("v_mov_b32 v26, %d" % LC)
    a("v_mov_b32 v27, 1")
    a("s_mov_b64 exec, 1")
    a("ds_add_rtn_u32 v28, v26, v27")
    a("s_waitcnt lgkmcnt(0)")
    a("v_readfirstlane_b32 s36, v28")
    a("s_cmp_lg_u32 s36, 3")
    a("s_cbranch_scc1 %s_nozs" % name)
    a("v_mov_b32 v28, 0")
    a("buffer_store_dword v27, v28, s[12:15], s97 offen sc1")
    a.label("%s_nozs" % name)
    a("s_mov_b64 exec, -1")
    stamp(a, 7)
    srd(a, 16, 88, 576 * 2048 * 2)
    srd(a, 84, 90, 576 * 2)
    for g in range(4):
        a("s_add_u32 s35, s24, %d" % (g * SLOT))
        a("s_mov_b32 m0, s35")
        a("s_add_u32 s36, s26, %d" % (128 * g))
        for n in range(4):
            a("buffer_load_dwordx4 v%d, s[8:11], s36 offen offset:%d lds" % (10 + n, n * 1024))
    a("s_mov_b32 s34, 0")
    a("s_cmp_lg_u32 s3, 0")
    a("s_cbranch_scc1 %s_pl" % name)
    a("v_and_b32 v28, 15, v2")
    a("v_lshlrev_b32 v30, 2, v28")
    a("v_lshlrev_b32 v28, 12, v28")
    a("s_lshl_b32 s52, s23, 8")
    a("s_add_u32 s52, s52, 0x%x" % ZFLG)
    a.label("%s_pz0" % name)
    a("buffer_load_dword v31, v30, s[60:63], 0 offen sc1")
    a("s_add_u32 s34, s34, 1")
    a("s_waitcnt vmcnt(0)")
    a("v_cmp_gt_u32 vcc, 16, v31")
    a("s_cmp_gt_u32 s34, %d" % SPIN_MAX)
    a("s_cbranch_scc1 %s_pz" % name)
    a("s_cbranch_vccz %s_pz" % name)
    a("s_sleep 32")
    a("s_branch %s_pz0" % name)
    a.label("%s_pz" % name)
    a("buffer_load_dword v29, v28, s[12:15], s52 offen sc1")
    a("s_add_u32 s34, s34, 1")
    a("s_waitcnt vmcnt(0)")
    a("v_cmp_ne_u32 vcc, 1, v29")
    a("s_cmp_gt_u32 s34, %d" % SPIN_MAX)
    a("s_cbranch_scc1 %s_pzx" % name)
    a("s_cbranch_vccz %s_pzx" % name)
    a("s_sleep 8")
    a("s_branch %s_pz" % name)
    a.label("%s_pzx" % name)
    a("v_mov_b32 v27, 1")
    a("ds_write_b32 v26, v27 offset:4")
    a("s_branch %s_pgo" % name)
    a.label("%s_pl" % name)
    a("ds_read_b32 v27, v26 offset:4")
    a("s_add_u32 s34, s34, 1")
    a("s_waitcnt lgkmcnt(0)")
    a("v_readfirstlane_b32 s36, v27")
    a("s_cmp_gt_u32 s34, %d" % (SPIN_MAX * 20))
    a("s_cbranch_scc1 %s_pgo" % name)
    a("s_cmp_lg_u32 s36, 0")
    a("s_cbranch_scc1 %s_pgo" % name)
    a("s_sleep 2")
    a("s_branch %s_pl" % name)
    a.label("%s_pgo" % name)
    stamp(a, 8)
    for g in range(4):
        a("s_add_u32 s35, s24, %d" % (g * SLOT + TREG))
        a("s_mov_b32 m0, s35")
        a("s_add_u32 s36, s27, %d" % (18432 * g))
        a("s_add_u32 s37, s36, s32")
        for n in range(4):
            a("buffer_load_dwordx4 v14, s[12:15], s36 offen offset:%d sc1 lds" % (n * 1024))
        a("s_add_u32 s35, s35, s32")
        a("s_mov_b32 m0, s35")
        a("s_mov_b64 exec, 0xffffffff")
        a("buffer_load_dwordx4 v14, s[12:15], s37 offen sc1 lds")
        a("s_mov_b64 exec, -1")
    a("s_add_u32 s26, s26, 512")
    a("s_add_u32 s27, s27, %d" % (4 * 18432))
    a("s_mov_b32 s33, 0")
    a("s_lshl_b32 s43, s2, 2")
    a("s_add_u32 s43, s43, s3")
    a("s_and_b32 s53, s43, 1")
    a("s_sub_u32 s36, s43, 448")
    a("s_lshr_b32 s37, s43, 1")
    a("s_cmp_ge_u32 s43, 896")
    a("s_cselect_b32 s43, s36, s37")
    a("s_cselect_b32 s53, 2, s53")
    a("s_waitcnt vmcnt(15)")
    a("s_barrier")
    a("s_waitcnt vmcnt(10)")
    a("s_barrier")
    a("s_waitcnt vmcnt(5)")
    a("s_barrier")
    a("s_mov_b32 s34, 4")
    def issue2():
        a("s_add_u32 s35, s33, s24")
        a("s_mov_b32 m0, s35")
        a("s_add_u32 s36, s35, %d" % TREG)
        for n in range(4):
            a("buffer_load_dwordx4 v%d, s[8:11], s26 offen offset:%d lds" % (10 + n, n * 1024))
        a("s_mov_b32 m0, s36")
        a("s_add_u32 s37, s27, s32")
        for n in range(4):
            a("buffer_load_dwordx4 v14, s[12:15], s27 offen offset:%d sc1 lds" % (n * 1024))
        a("s_add_u32 s36, s36, s32")
        a("s_mov_b32 m0, s36")
        a("s_mov_b64 exec, 0xffffffff")
        a("buffer_load_dwordx4 v14, s[12:15], s37 offen sc1 lds")
        a("s_mov_b64 exec, -1")
        a("s_add_u32 s26, s26, 128")
        a("s_add_u32 s27, s27, 18432")
        a("s_add_u32 s33, s33, %d" % SLOT)
        a("s_cmp_eq_u32 s33, %d" % (R * SLOT))
        a("s_cselect_b32 s33, 0, s33")
    a.label("%s_lloop" % name)
    issue2()
    a("s_cmp_eq_u32 s34, 18")
    a("s_cbranch_scc1 %s_hk1" % name)
    a("s_cmp_eq_u32 s34, 21")
    a("s_cbranch_scc1 %s_hk2" % name)
    a("s_waitcnt vmcnt(9)")
    a.label("%s_lcont" % name)
    a("s_barrier")
    a("s_add_u32 s34, s34, 1")
    a("s_cmp_lt_u32 s34, 32")
    a("s_cbranch_scc1 %s_lloop" % name)
    a("s_branch %s_ldone" % name)
    a.label("%s_hk1" % name)
    a("v_and_b32 v28, 15, v2")
    a("v_lshlrev_b32 v28, 2, v28")
    a("buffer_load_dword v29, v28, s[60:63], 0 offen offset:128 sc1")
    a("s_waitcnt vmcnt(10)")
    a("s_branch %s_lcont" % name)
    a.label("%s_hk2" % name)
    a("s_mov_b32 s52, 0")
    a.label("%s_hk2l" % name)
    a("v_cmp_gt_u32 vcc, 16, v29")
    a("s_add_u32 s52, s52, 1")
    a("s_cmp_gt_u32 s52, %d" % SPIN_MAX)
    a("s_cbranch_scc1 %s_hk2g" % name)
    a("s_cbranch_vccz %s_hk2g" % name)
    a("s_sleep 16")
    a("buffer_load_dword v29, v28, s[60:63], 0 offen offset:128 sc1")
    a("s_waitcnt vmcnt(0)")
    a("s_branch %s_hk2l" % name)
    a.label("%s_hk2g" % name)
    nconv = emit_conv_loads(a, " sc1")
    a("s_waitcnt vmcnt(%d)" % (9 + nconv))
    a("s_branch %s_lcont" % name)
    a.label("%s_ldone" % name)
    a("s_waitcnt vmcnt(0)")
    a("s_barrier")
    a("s_mov_b32 s26, s53")
    a("s_and_b32 s27, s3, 1")
    a("s_mul_i32 s27, s27, %d" % CJ_SIZE)
    a("s_lshr_b32 s36, s3, 1")
    a("s_mul_i32 s36, s36, %d" % SLOT)
    a("s_add_u32 s27, s27, s36")
    a("s_add_u32 s27, s27, %d" % RB)
    def mid():
        a("s_barrier")
        a("s_setprio 0")
    sv = set(DBG); DBG.discard("stamp")
    lb_ = len(a.lines)
    emit_conv_job(a, name, mid)
    for n_ in range(lb_, len(a.lines)):
        if "buffer_store_dwordx2" in a.lines[n_]: a.lines[n_] += " sc1"
    DBG.update(sv)
    stamp(a, 9)
    c_common()
    cTa = [4, 4]; cTb = [6, 6]; cF_ = 8; cFh = 9
    kTa = 88; kTb = 90; kF = 92; kFh = 93
    a("v_and_b32 v3, 15, v2")
    a("v_lshrrev_b32 v10, 5, v2")
    a("v_lshlrev_b32 v10, 11, v10")
    a("v_bfe_u32 v11, v2, 4, 1")
    a("v_lshl_add_u32 v10, v11, 4, v10")
    a("v_lshl_add_u32 v10, v3, 5, v10")
    a("s_lshl_b32 s26, s3, 12")
    a("v_add_u32 v10, s26, v10")
    a("s_lshl_b32 s26, s53, 10")
    a("v_add_u32 v%d, s26, v10" % kTa)
    a("s_xor_b32 s26, s26, 1024")
    a("v_add_u32 v%d, s26, v10" % kTb)
    a("v_lshrrev_b32 v10, 2, v2")
    a("v_mul_u32_u24 v10, %d, v10" % CFS)
    a("v_and_b32 v11, 3, v2")
    a("v_lshl_add_u32 v10, v11, 3, v10")
    a("s_mul_i32 s26, s3, %d" % (32 * CFS))
    a("s_add_u32 s26, s26, %d" % CTREG)
    a("v_add_u32 v%d, s26, v10" % kF)
    a("v_add_u32 v%d, 128, v%d" % (kFh, kF))
    a("v_mov_b32 v26, %d" % LC)
    a("v_mov_b32 v27, 1")
    a("s_waitcnt vmcnt(0)")
    a("s_mov_b64 exec, 1")
    a("ds_add_rtn_u32 v28, v26, v27 offset:20")
    a("s_waitcnt lgkmcnt(0)")
    a("v_readfirstlane_b32 s36, v28")
    a("s_cmp_lg_u32 s36, 3")
    a("s_cbranch_scc1 %s_nocs" % name)
    a("s_and_b32 s36, s2, 15")
    a("s_lshl_b32 s36, s36, 2")
    a("s_add_u32 s36, s36, 192")
    a("v_mov_b32 v28, s36")
    a("buffer_atomic_add v27, v28, s[60:63], 0 offen sc1")
    a.label("%s_nocs" % name)
    a("s_mov_b64 exec, -1")
    fin_loads()
    core3 = G.Core(a, ACC, FB[0], FB[1], CFS, CTREG, cTa, cTb, cF_, cFh, TT=512)
    pairs = ((cTa[0], kTa), (cF_, kF), (cTb[0], kTb), (cFh, kFh))
    a("s_mov_b32 s27, %d" % C0)
    for d, s_ in pairs: a("v_add_u32 v%d, s27, v%d" % (d, s_))
    for r in range(ACC, ACC + 72): a("v_mov_b32 v%d, 0" % r)
    a("s_mov_b32 s33, 0")
    a("s_barrier")
    stamp(a, 10)
    core3.prime(0, core3.reads(0, 0))
    def citer(buf):
        core3.trk.drain()
        a("s_barrier")
        a("s_add_u32 s27, s27, %d" % CSL)
        a("s_cmp_eq_u32 s27, %d" % CW)
        a("s_cselect_b32 s27, %d, s27" % RB)
        pre = ["v_add_u32 v%d, s27, v%d" % (d, s_) for d, s_ in pairs]
        core3.phase(buf, core3.reads(1 - buf, 0), pre=pre)
    a.label("%s_ccloop" % name)
    citer(0); citer(1)
    a("s_add_u32 s33, s33, 1")
    a("s_cmp_lt_u32 s33, 9")
    a("s_cbranch_scc1 %s_ccloop" % name)
    core3.trk.drain()
    stamp(a, 11)
    a("s_mul_i32 s33, s3, %d" % (18 * 1024))
    a("s_add_u32 s33, s33, %d" % C0)
    a("v_lshlrev_b32 v10, 4, v2")
    a("v_add_u32 v11, s33, v10")
    a("s_nop 4")
    for n, (ft, tt) in enumerate(TILES):
        a("ds_write_b128 v11, %s offset:%d" % (vr(core3.accr(ft, tt)), 1024 * tidx(ft, tt)))
        if n in (7, 13): a("s_waitcnt lgkmcnt(4)")
    a("s_waitcnt lgkmcnt(0) vmcnt(0)")
    a.label("%s_cfin" % name)
    a("s_barrier")
    stamp(a, 12)
    a("v_lshlrev_b32 v10, 4, v2")
    a("v_lshrrev_b32 v11, 2, v2")
    a("v_lshlrev_b32 v11, 7, v11")
    a("v_and_b32 v12, 3, v2")
    a("v_lshl_add_u32 v11, v12, 3, v11")
    a("s_mov_b32 s33, 0xbfb8aa3b")
    PT = 16; YR = 64
    for s_ in range(3):
        b = 64 + 4 * s_
        if s_ == 2:
            a("s_cmp_ge_u32 s54, 2")
            a("s_cbranch_scc1 %s_rd" % name)
        a("v_add_u32 v4, s%d, v10" % (b + 2))
        a("v_add_u32 v5, s%d, v11" % (b + 1))
        for q in range(4):
            a("ds_read_b128 %s, v4 offset:%d" % (vr(PT + 16 * s_ + 4 * q), 18432 * q))
        a("ds_read_b64_tr_b16 %s, v5" % vr(YR + 2 * s_, 2))
    a.label("%s_rd" % name)
    T = 104
    for s_ in range(3):
        b = 64 + 4 * s_
        if s_ == 0: a("s_waitcnt lgkmcnt(5)")
        if s_ == 1: a("s_waitcnt lgkmcnt(0)")
        if s_ == 2:
            a("s_cmp_ge_u32 s54, 2")
            a("s_cbranch_scc1 %s_done" % name)
        o = PT + 16 * s_; X = XR + 2 * s_; Y = YR + 2 * s_; S_ = ST + 2 * s_
        for h in (0, 2):
            a("v_pk_add_f32 %s, %s, %s" % (vr(o + h, 2), vr(o + h, 2), vr(o + 4 + h, 2)))
            a("v_pk_add_f32 %s, %s, %s" % (vr(o + 8 + h, 2), vr(o + 8 + h, 2), vr(o + 12 + h, 2)))
        for h in (0, 2):
            a("v_pk_add_f32 %s, %s, %s" % (vr(o + h, 2), vr(o + h, 2), vr(o + 8 + h, 2)))
        rnd_pair(a, T + 20, o, o + 1); rnd_pair(a, T + 21, o + 2, o + 3)
        for r in range(4): a("v_mul_f32 v%d, s33, v%d" % (T + r, o + r))
        for r in range(4): a("v_exp_f32 v%d, v%d" % (T + r, T + r))
        a("v_lshlrev_b32 v%d, 16, v%d" % (T + 4, X)); a("v_and_b32 v%d, 0xffff0000, v%d" % (T + 5, X))
        a("v_lshlrev_b32 v%d, 16, v%d" % (T + 6, X + 1)); a("v_and_b32 v%d, 0xffff0000, v%d" % (T + 7, X + 1))
        for r in range(4): a("v_add_f32 v%d, 1.0, v%d" % (T + r, T + r))
        for r in range(4): a("v_rcp_f32 v%d, v%d" % (T + r, T + r))
        for r in range(4): a("v_sub_f32 v%d, v%d, v%d" % (T + 12 + r, T + 4 + r, S_))
        a("v_lshlrev_b32 v%d, 16, v%d" % (T + 8, Y)); a("v_and_b32 v%d, 0xffff0000, v%d" % (T + 9, Y))
        a("v_lshlrev_b32 v%d, 16, v%d" % (T + 10, Y + 1)); a("v_and_b32 v%d, 0xffff0000, v%d" % (T + 11, Y + 1))
        for r in range(4): a("v_mul_f32 v%d, v%d, v%d" % (o + r, o + r, T + r))
        rnd_pair(a, T + 20, T + 12, T + 13); rnd_pair(a, T + 21, T + 14, T + 15)
        rnd_pair(a, T + 22, o, o + 1); rnd_pair(a, T + 23, o + 2, o + 3)
        for r in range(4): a("v_mul_f32 v%d, v%d, v%d" % (T + 12 + r, T + 12 + r, S_ + 1))
        rnd_pair(a, T + 20, T + 12, T + 13); rnd_pair(a, T + 21, T + 14, T + 15)
        for r in range(4): a("v_mul_f32 v%d, v%d, v%d" % (T + 12 + r, T + 12 + r, T + 8 + r))
        rnd_pair(a, T + 20, T + 12, T + 13); rnd_pair(a, T + 21, T + 14, T + 15)
        for r in range(4): a("v_mul_f32 v%d, v%d, v%d" % (T + 12 + r, T + 12 + r, o + r))
        rnd_pair(a, T + 20, T + 12, T + 13); rnd_pair(a, T + 21, T + 14, T + 15)
        for r in range(4): a("v_add_f32 v%d, v%d, v%d" % (T + 12 + r, T + 12 + r, T + 4 + r))
        a("v_cvt_pk_bf16_f32 v%d, v%d, v%d" % (X, T + 12, T + 13))
        a("v_cvt_pk_bf16_f32 v%d, v%d, v%d" % (X + 1, T + 14, T + 15))
        a("buffer_store_dwordx2 %s, v13, s[28:31], s%d offen" % (vr(X, 2), b))
    a.label("%s_done" % name)
    stamp(a, 13)
    G.stamp_rt(a, 1)
    a.label("%s_end" % name)
    a("s_endpgm")
    for ft in range(5):
        a.label("%s_gsub%d" % (name, ft))
        tts = range(4 if ft < 4 else 2)
        emit_fold_gelu(a, [(128 + 4 * tidx(ft, tt), CS + 4 * ft, MR + 2 * tt, ZP + 2 * tidx(ft, tt)) for tt in tts], 72)
        a("s_setpc_b64 s[34:35]")
    return a.text(), kernel_desc(name, 256, 256), (name, 256, 512, 163840)

def gen_kf9(name="k1_kernel", R=4):
    a = Asm()
    RB = 4096; SLOT = 34816; TREG = 16384; FS = 288; RST = 0
    LDSB = RB + R * SLOT
    LC = 2048
    ZFLG = 0x2D00000; PFL = 128
    C0 = 77824; CW = 151552; CSL = 36864; YOFF = 151552; CTREG = 16384; CFS = 160
    from gen3 import emit_conv_loads, emit_conv_job, CJ_SIZE
    def capture(f, *args):
        lb = len(a.lines); f(*args); out = a.lines[lb:]; del a.lines[lb:]; return out

    def c_common():
        a("s_load_dwordx2 s[4:5], s[0:1], 0")
        a("s_load_dwordx2 s[16:17], s[0:1], 88")
        a("s_and_b32 s20, s2, 7")
        a("s_lshr_b32 s21, s2, 3")
        a("s_and_b32 s22, s20, 3")
        a("s_lshl_b32 s22, s22, 3")
        a("s_and_b32 s23, s21, 7")
        a("s_add_u32 s22, s22, s23")
        a("s_lshr_b32 s23, s20, 2")
        a("s_lshl_b32 s23, s23, 2")
        a("s_lshr_b32 s24, s21, 3")
        a("s_add_u32 s23, s23, s24")
        a("s_lshr_b32 s52, s23, 1")
        a("s_and_b32 s53, s23, 1")
        a("s_lshl_b32 s54, s98, 2")
        a("s_add_u32 s54, s54, s3")
        a("s_waitcnt lgkmcnt(0)")
        srd(a, 8, 4, 2048 * 576 * 2)
        srd(a, 28, 16, 2048 * 576 * 2)
    XR = 200; ST = 208
    def fin_loads():
        a("v_and_b32 v3, 15, v2")
        a("v_lshrrev_b32 v10, 4, v2")
        a("v_mul_u32_u24 v13, 1152, v3")
        a("v_lshl_add_u32 v13, v10, 3, v13")
        a("v_lshlrev_b32 v12, 3, v3")
        for s_ in range(3):
            if s_ == 2:
                a("s_cmp_ge_u32 s54, 2")
                a("s_cbranch_scc1 %s_fl%d" % (name, fin_loads.cnt))
            b = 64 + 4 * s_
            if s_ < 2:
                a("s_add_u32 s36, s54, %d" % (8 * s_))
                a("s_lshr_b32 s37, s36, 2")
                a("s_and_b32 s38, s36, 3")
                a("s_mul_i32 s39, s53, 160")
                a("s_lshl_b32 s40, s37, 5")
                a("s_add_u32 s39, s39, s40")
            else:
                a("s_add_u32 s36, s54, 16")
                a("s_mov_b32 s37, 4")
                a("s_mov_b32 s38, s54")
                a("s_mov_b32 s39, 128")
            a("s_lshl_b32 s40, s53, 1")
            a("s_add_u32 s38, s38, s40")
            a("s_and_b32 s38, s38, 3")
            a("s_lshl_b32 s40, s22, 2")
            a("s_add_u32 s40, s40, s38")
            a("s_lshl_b32 s40, s40, 4")
            a("s_mul_i32 s%d, s40, 1152" % b)
            a("s_add_u32 s%d, s%d, s39" % (b, b))
            a("s_mul_i32 s39, s52, 288")
            a("s_add_u32 s%d, s%d, s39" % (b, b))
            a("s_lshl_b32 s%d, s37, 11" % (b + 1))
            a("s_lshl_b32 s39, s38, 5")
            a("s_add_u32 s%d, s%d, s39" % (b + 1, b + 1))
            a("s_add_u32 s%d, s%d, %d" % (b + 1, b + 1, YOFF))
            a("s_lshl_b32 s%d, s36, 10" % (b + 2))
            a("s_add_u32 s%d, s%d, %d" % (b + 2, b + 2, C0))
            a("s_lshl_b32 s40, s40, 3")
            a("s_add_u32 s40, s40, 0x%x" % STATS1)
            a("buffer_load_dwordx2 %s, v13, s[8:11], s%d offen" % (vr(XR + 2 * s_, 2), b))
            a("buffer_load_dwordx2 %s, v12, s[12:15], s40 offen sc1" % vr(ST + 2 * s_, 2))
        a.label("%s_fl%d" % (name, fin_loads.cnt))
        fin_loads.cnt += 1
    fin_loads.cnt = 0
    kernel_begin(a, name)
    a("s_load_dwordx2 s[80:81], s[0:1], 0")
    a("s_load_dwordx2 s[4:5], s[0:1], 56")
    a("s_load_dwordx2 s[6:7], s[0:1], 104")
    a("s_load_dwordx2 s[18:19], s[0:1], 96")
    a("s_cmp_ge_u32 s2, 256")
    a("s_cbranch_scc1 %s_end" % name)
    a("v_lshrrev_b32 v1, 6, v0")
    a("v_and_b32 v2, 63, v0")
    a("v_readfirstlane_b32 s3, v1")
    G2.tile_ij(a)
    a("s_lshr_b32 s98, s3, 2")
    a("s_mov_b32 s54x, 0".replace("s54x", "s99"))
    a("s_and_b32 s3, s3, 3")
    a("s_lshr_b32 s24, s3, 1")
    a("s_and_b32 s25, s3, 1")
    a("v_and_b32 v3, 15, v2")
    VT = 204; VF = 208
    def loader_setup():
        a("v_lshrrev_b32 v5, 3, v2")
        a("v_and_b32 v4, 7, v2")
        a("s_lshl_b32 s36, s3, 5")
        a("v_add_u32 v5, s36, v5")
        a("v_lshrrev_b32 v7, 4, v2")
        a("v_xor_b32 v7, v7, v4")
        a("v_mul_u32_u24 v6, 1152, v5")
        a("v_lshl_add_u32 v%d, v7, 4, v6" % VT)
        a("v_xor_b32 v%d, 64, v%d" % (VT + 1, VT))
        a("v_add_u32 v%d, %d, v%d" % (VT + 1, 9216 - 1024, VT + 1))
        a("v_add_u32 v%d, %d, v%d" % (VT + 2, 2 * (9216 - 1024), VT))
        a("v_add_u32 v%d, %d, v%d" % (VT + 3, 2 * (9216 - 1024), VT + 1))
        a("s_lshl_b32 s84, s3, 12")
        a("s_add_u32 s84, s84, %d" % RB)
        a("s_lshl_b32 s85, s3, 9")
        a("s_add_u32 s85, s85, %d" % (RB + TREG + 16384))
    def loader_setup2():
        for n in range(5):
            if n < 4:
                a("s_lshl_b32 s36, s3, 8")
                a("s_add_u32 s36, s36, %d" % (64 * n))
            else:
                a("s_lshl_b32 s36, s3, 5")
                a("s_add_u32 s36, s36, 1024")
            a("v_add_u32 v6, s36, v2")
            a("v_mul_u32_u24 v7, 3641, v6")
            a("v_lshrrev_b32 v7, 16, v7")
            a("v_mul_u32_u24 v8, 18, v7")
            a("v_sub_u32 v8, v6, v8")
            a("v_and_b32 v9, 35, v7")
            a("v_bfe_u32 v6, v7, 2, 2")
            a("v_lshl_add_u32 v9, v6, 3, v9")
            a("v_bfe_u32 v6, v7, 4, 1")
            a("v_lshl_add_u32 v9, v6, 2, v9")
            a("v_mul_u32_u24 v9, 9216, v9")
            a("v_lshl_add_u32 v%d, v8, 4, v9" % (VF + n))
            if 0 < n < 4: a("v_subrev_u32 v%d, %d, v%d" % (VF + n, 1024 * n, VF + n))
    def issueT(g):
        st = g % 9
        a("s_add_u32 s86, s84, %d" % ((g % R) * SLOT))
        a("s_mov_b32 m0, s86")
        a("s_add_u32 s87, s82, %d" % (128 * st))
        for n in range(4):
            a("buffer_load_dwordx4 v%d, s[28:31], s87 offen offset:%d lds" % (VT + n, 1024 * n))
    def issueF(g):
        st = g % 9
        a("s_add_u32 s86, s84, %d" % ((g % R) * SLOT + TREG))
        a("s_mov_b32 m0, s86")
        a("s_add_u32 s87, s83, %d" % (64 * 9216 * st + (4608 if g < 9 else 0)))
        for n in range(4):
            a("buffer_load_dwordx4 v%d, s[8:11], s87 offen offset:%d lds" % (VF + n, 1024 * n))
        a("s_add_u32 s86, s85, %d" % ((g % R) * SLOT))
        a("s_mov_b32 m0, s86")
        a("s_mov_b64 exec, 0xffffffff")
        a("buffer_load_dwordx4 v%d, s[8:11], s87 offen lds" % (VF + 4))
        a("s_mov_b64 exec, -1")
    def srds_main():
        srd(a, 28, 80, 2048 * 576 * 2)
        srd(a, 8, 4, 576 * 4608 * 2)
        srd(a, 12, 6, WS_BYTES)
        srd(a, 60, 18, 256)
        a("s_mul_i32 s82, s22, %d" % (128 * 1152))
        a("s_mul_i32 s83, s23, 288")
    ACC = 128; FB = [16, 52]; CS = 216; ONE = 236
    vTa = [4, 5]; vTb = [6, 7]; vF = 8; vFh = 9
    bTa = [88, 89]; bTb = [90, 91]; bF = 92; bFh = 93
    def mma_setup():
        a("v_lshrrev_b32 v10, 4, v2")
        a("v_lshrrev_b32 v11, 1, v3")
        a("v_xor_b32 v10, v10, v11")
        a("v_lshlrev_b32 v10, 4, v10")
        a("v_lshl_add_u32 v10, v3, 7, v10")
        a("s_lshl_b32 s26, s24, 13")
        a("s_add_u32 s26, s26, %d" % RB)
        a("v_add_u32 v10, s26, v10")
        a("s_lshl_b32 s26, s25, 12")
        a("v_add_u32 v%d, s26, v10" % bTa[0])
        a("s_xor_b32 s26, s26, 4096")
        a("v_add_u32 v%d, s26, v10" % bTb[0])
        a("v_xor_b32 v%d, 64, v%d" % (bTa[1], bTa[0]))
        a("v_xor_b32 v%d, 64, v%d" % (bTb[1], bTb[0]))
        a("v_lshrrev_b32 v10, 2, v2")
        a("v_mul_u32_u24 v10, %d, v10" % FS)
        a("v_and_b32 v11, 3, v2")
        a("v_lshl_add_u32 v10, v11, 3, v10")
        a("v_add_u32 v10, %d, v10" % (RB + TREG))
        a("s_mul_i32 s26, s25, 160")
        a("v_add_u32 v%d, s26, v10" % bF)
        a("v_add_u32 v%d, 128, v10" % bFh)
        for r in range(ACC, ACC + 72): a("v_mov_b32 v%d, 0" % r)
        for r in range(CS, CS + 20): a("v_mov_b32 v%d, 0" % r)
        for r in range(ONE, ONE + 4): a("v_mov_b32 v%d, 0x3f803f80" % r)
    def mma_addr(slot):
        a("s_mov_b32 s27, %d" % (slot * SLOT))
        for d, s_ in ((vTa[0], bTa[0]), (vTb[0], bTb[0]), (vTa[1], bTa[1]), (vTb[1], bTb[1]), (vF, bF), (vFh, bFh)):
            a("v_add_u32 v%d, s27, v%d" % (d, s_))
    core = G.Core(a, ACC, FB[0], FB[1], FS, TREG, vTa, vTb, vF, vFh)
    trk = core.trk
    a("s_cmp_eq_u32 s98, 0")
    a("s_cbranch_scc1 %s_A0" % name)
    a("s_setprio 3")
    loader_setup()
    a("s_waitcnt lgkmcnt(0)")
    srds_main()
    vm = VmTracker(a)
    def issue(g, vmx):
        issueT(g); issueF(g); vmx.issue("S%d" % g, 9)
    issueT(0)
    loader_setup2()
    issueF(0); vm.issue("S0", 9)
    issue(1, vm); issue(2, vm); issue(3, vm)
    a("s_add_u32 s3, s3, 4"); stamp_setup(a, 1); stamp(a, 0); a("s_sub_u32 s3, s3, 4")
    mma_setup()
    RA = 96; XB = 112
    for r in range(RA, RA + 16): a("v_mov_b32 v%d, 0" % r)
    a("v_lshrrev_b32 v10, 4, v2")
    a("v_lshrrev_b32 v11, 1, v3")
    a("v_xor_b32 v10, v10, v11")
    a("v_lshlrev_b32 v10, 4, v10")
    a("v_lshl_add_u32 v10, v3, 7, v10")
    a("v_add_u32 v12, s84, v10")
    a("v_xor_b32 v13, 64, v12")
    def rs_rd(g):
        a("v_add_u32 v10, %d, v12" % ((g % R) * SLOT))
        a("v_add_u32 v11, %d, v13" % ((g % R) * SLOT))
        for h in range(2):
            for n in range(2):
                a("ds_read_b128 %s, v%d offset:%d" % (vr(XB + 8 * h + 4 * n), 10 + h, 2048 * n))
    def rs_do():
        for h in range(2):
            for n in range(2):
                x = XB + 8 * h + 4 * n
                a("v_mfma_f32_16x16x32_bf16 %s, %s, %s, %s" % (vr(RA + 4 * n), vr(ONE), vr(x), vr(RA + 4 * n)))
                a("v_mfma_f32_16x16x32_bf16 %s, %s, %s, %s" % (vr(RA + 8 + 4 * n), vr(x), vr(x), vr(RA + 8 + 4 * n)))
    def interleave(dma, comp, vmx=None):
        groups = []; cur = []
        for l in dma:
            cur.append(l)
            if "buffer_load" in l and not any("exec, 0xffffffff" in x for x in cur[-2:]):
                groups.append(cur); cur = []
            elif "exec, -1" in l:
                groups.append(cur); cur = []
        if cur: groups.append(cur)
        ns = max(1, len(groups))
        per = (len(comp) + ns - 1) // ns
        for g in groups:
            a.lines.extend(g)
            a.lines.extend(comp[:per]); comp = comp[per:]
        a.lines.extend(comp)
    vm.wait(["S0"])
    a("s_barrier")
    stamp(a, 1)
    rs_rd(0)
    vm.wait(["S1"])
    a("s_barrier")
    for k in range(9):
        a("s_waitcnt lgkmcnt(0)")
        dma = capture(lambda: (issueT(k + 3), issueF(k + 3))) if k >= 1 else []
        interleave(dma, capture(rs_do))
        if k >= 1: vm.issue("S%d" % (k + 3), 9)
        if k < 8:
            rs_rd(k + 1)
        else:
            a("s_nop 7")
            a("v_lshrrev_b32 v10, 4, v2")
            a("v_lshrrev_b32 v11, 2, v3")
            a("v_and_b32 v12, 3, v3")
            for n in range(2):
                G_ = RA + 8 + 4 * n
                for r in range(1, 4):
                    a("v_cmp_eq_u32 vcc, %d, v12" % r)
                    a("s_nop 1")
                    a("v_cndmask_b32 v%d, v%d, v%d, vcc" % (G_, G_, G_ + r))
            ML = 112
            for n in range(2):
                emit_ln_finish(a, RA + 4 * n, RA + 8 + 4 * n, 576, ML + 2 * n, ML + 2 * n + 1, 120)
                a("v_mov_b32 v%d, v%d" % (117 + 2 * n, ML + 2 * n + 1))
                a("v_sub_f32 v%d, 0, v%d" % (116 + 2 * n, ML + 2 * n))
            a("s_lshl_b32 s35, s3, 8")
            a("v_lshlrev_b32 v13, 3, v3")
            a("v_add_u32 v12, s35, v13")
            a("v_cmp_eq_u32 vcc, v10, v11")
            a("s_and_saveexec_b64 s[36:37], vcc")
            for n in range(2):
                a("ds_write_b64 v12, %s offset:%d" % (vr(116 + 2 * n, 2), RST + 128 * n))
            a("s_mov_b64 exec, s[36:37]")
            a("s_cmp_lg_u32 s23, 0")
            a("s_cbranch_scc1 %s_nost1" % name)
            a("s_lshl_b32 s35, s22, 7")
            a("s_lshl_b32 s36, s3, 5")
            a("s_add_u32 s35, s35, s36")
            a("s_lshl_b32 s35, s35, 3")
            a("s_add_u32 s35, s35, 0x%x" % STATS1)
            a("v_mov_b32 v11, 0x7ffffff0")
            a("v_cndmask_b32 v13, v11, v13, vcc")
            for n in range(2):
                a("buffer_store_dwordx2 %s, v13, s[12:15], s35 offen offset:%d sc1" % (vr(ML + 2 * n, 2), 128 * n))
            a.label("%s_nost1" % name)
            mma_addr(9 % R)
            a("s_mov_b32 s33, 0")
            a("s_setprio 0")
        vm.wait(["S%d" % (k + 2)], "lgkmcnt(0)" if k == 8 else "")
        if k < 8: a("s_barrier")
    a("s_branch %s_mma" % name)
    a.label("%s_A0" % name)
    emit_code_prefetch(a, name)
    a("s_load_dwordx4 s[64:67], s[0:1], 8")
    a("s_load_dwordx2 s[76:77], s[0:1], 24")
    a("s_load_dwordx2 s[78:79], s[0:1], 64")
    mma_setup()
    loader_setup(); loader_setup2()
    a("s_waitcnt lgkmcnt(0)")
    srds_main()
    srd(a, 68, 66, 2048 * 576 * 2)
    a("s_mov_b32 s88, s64"); a("s_mov_b32 s89, s65")
    srd(a, 64, 88, 2048 * 576 * 2)
    srd(a, 72, 76, 576 * 8)
    stamp_setup(a, 1); stamp(a, 0)
    def gran_addr():
        a("v_lshrrev_b32 v10, 4, v2")
        a("s_lshl_b32 s36, s25, 1")
        a("v_add_u32 v11, s36, v10")
        a("v_and_b32 v11, 3, v11")
        a("v_lshl_add_u32 v11, v11, 4, v3")
        a("v_lshlrev_b32 v94, 8, v11")
        a("s_lshl_b32 s59, s22, 7")
        a("s_lshl_b32 s36, s24, 6")
        a("s_add_u32 s59, s59, s36")
        a("s_lshl_b32 s59, s59, 8")
        a("s_add_u32 s59, s59, 0x%x" % STATS2)
        a("s_lshl_b32 s36, s23, 1")
        a("s_add_u32 s36, s36, s25")
        a("s_lshl_b32 s36, s36, 3")
        a("s_add_u32 s58, s36, s59")
    gran_addr()
    a("v_mov_b32 v12, 0"); a("v_mov_b32 v13, 0x80000000")
    a("buffer_store_dwordx2 v[12:13], v94, s[12:15], s58 offen sc1")
    a("s_lshl_b32 s36, s22, 4")
    a("s_add_u32 s36, s36, s23")
    a("s_lshl_b32 s36, s36, 8")
    a("s_add_u32 s97, s36, 0x%x" % ZFLG)
    a("v_mov_b32 v10, %d" % LC)
    a("v_mov_b32 v12, 0"); a("v_mov_b32 v13, 0")
    a("s_mov_b64 exec, 1")
    a("buffer_store_dword v12, v12, s[12:15], s97 offen sc1")
    a("buffer_store_dword v12, v12, s[12:15], s97 offen offset:%d sc1" % PFL)
    a("s_mov_b64 exec, -1")
    a("ds_write_b64 v10, v[12:13]")
    a("ds_write_b64 v10, v[12:13] offset:8")
    a("ds_write_b64 v10, v[12:13] offset:16")
    a("ds_write_b64 v10, v[12:13] offset:24")
    mma_addr(0)
    a("s_mov_b32 s33, 0")
    a("s_waitcnt lgkmcnt(0)")
    a("s_barrier")
    stamp(a, 1)
    a.label("%s_mma" % name)
    core.prime(0, core.reads(0, 0))
    trk.drain()
    nocs = [False]
    def mfmas(buf):
        L = []
        for ft in range(5):
            A = core.F(buf, ft)
            for tt in range(4 if ft < 4 else 2):
                c = core.accr(ft, tt); B = core.T(buf, tt)
                L.append(("v_mfma_f32_16x16x32_bf16 %s, %s, %s, %s" % (vr(c), vr(A), vr(B), vr(c)), list(range(A, A + 4)) + list(range(B, B + 4))))
            if not nocs[0]: L.append(("v_mfma_f32_16x16x32_bf16 %s, %s, %s, %s" % (vr(CS + 4 * ft), vr(A), vr(ONE), vr(CS + 4 * ft)), list(range(A, A + 4))))
        return L
    def phase(buf, pend):
        for (m, regs) in mfmas(buf):
            trk.need(regs)
            a(m)
            while pend:
                k, t = pend.pop(0)
                if k == "x":
                    a(t)
                    if t.startswith("s_"): continue
                else:
                    a(t[0]); trk.issue(t[1])
                break
        for k, t in pend:
            if k == "x": a(t)
            else: a(t[0]); trk.issue(t[1])
    def iteration(vw=True):
        if vw: a("s_waitcnt vmcnt(0)")
        a("s_barrier")
        rd = [("r", t) for t in core.reads(1, 1)]
        upd = ["s_add_u32 s27, s27, %d" % SLOT, "s_cmp_eq_u32 s27, %d" % (R * SLOT), "s_cselect_b32 s27, 0, s27"]
        tail = ["v_add_u32 v%d, s27, v%d" % (d, s_) for d, s_ in ((vTa[0], bTa[0]), (vF, bF), (vTb[0], bTb[0]), (vFh, bFh))]
        phase(0, rd[:1] + [("x", u) for u in upd] + rd[1:] + [("x", u) for u in tail])
        rd = [("r", t) for t in core.reads(0, 0)]
        tail = ["v_add_u32 v%d, s27, v%d" % (d, s_) for d, s_ in ((vTa[1], bTa[1]), (vTb[1], bTb[1]))] + ["s_add_u32 s33, s33, 1"]
        phase(1, rd + [("x", u) for u in tail])
    a.label("%s_cloop" % name)
    lb = len(a.lines); iteration(); st = copy.deepcopy(trk.out); del a.lines[lb:]; trk.out = copy.deepcopy(st)
    iteration()
    assert [sorted(x) for x in trk.out] == [sorted(x) for x in st]
    a("s_cmp_lt_u32 s33, 9")
    a("s_cbranch_scc1 %s_cloop" % name)
    trk.drain()
    stamp(a, 2)
    MR = 100; T = 72; ZP = 16
    def epi_in():
        gelu_consts(a)
        a("s_lshl_b32 s36, s24, 9")
        a("s_lshl_b32 s37, s25, 8")
        a("s_add_u32 s38, s36, s37")
        a("s_xor_b32 s37, s37, 256")
        a("s_add_u32 s39, s36, s37")
        a("v_lshlrev_b32 v10, 3, v3")
        a("v_add_u32 v11, s38, v10")
        a("ds_read_b64 %s, v11 offset:%d" % (vr(MR, 2), RST))
        a("ds_read_b64 %s, v11 offset:%d" % (vr(MR + 2, 2), RST + 128))
        a("v_add_u32 v11, s39, v10")
        a("ds_read_b64 %s, v11 offset:%d" % (vr(MR + 4, 2), RST))
        a("ds_read_b64 %s, v11 offset:%d" % (vr(MR + 6, 2), RST + 128))
        a("s_waitcnt lgkmcnt(0)")
    S = [108, 110, 52, 54]; Q = [109, 111, 53, 55]
    def gelu_ft(ft, stats):
        tts = range(4 if ft < 4 else 2)
        if "nosub" in DBG:
            emit_fold_gelu(a, [(core.accr(ft, tt), CS + 4 * ft, MR + 2 * tt, ZP + 2 * tidx(ft, tt)) for tt in tts], T)
        else:
            a("s_call_b64 s[34:35], %s_gsub%d" % (name, ft))
        if stats:
            for d in range(2):
                for tt in tts:
                    p = ZP + 2 * tidx(ft, tt) + d
                    a("v_dot2_f32_bf16 v%d, v%d, v%d, v%d" % (S[tt], p, ONE, S[tt]))
                    a("v_dot2_f32_bf16 v%d, v%d, v%d, v%d" % (Q[tt], p, p, Q[tt]))
    a("s_cmp_eq_u32 s98, 0")
    a("s_cbranch_scc1 %s_A1" % name)
    a("s_barrier")
    a("s_load_dwordx2 s[92:93], s[0:1], 72")
    epi_in()
    srd(a, 28, 92, 2048 * 2)
    for ft in range(5): gelu_ft(ft, False)
    Z1R = 200; BI = 236
    for r_ in range(36): a("v_mov_b32 v%d, v%d" % (Z1R + r_, ZP + r_))
    stamp(a, 3)
    a("s_lshl_b32 s36, s22, 7")
    a("s_lshl_b32 s37, s24, 6")
    a("s_add_u32 s36, s36, s37")
    a("v_lshlrev_b32 v11, 1, v3")
    a("s_lshl_b32 s37, s25, 6")
    a("s_lshl_b32 s38, s36, 1")
    a("s_add_u32 s39, s38, s37")
    a("s_xor_b32 s37, s37, 64")
    a("s_add_u32 s36, s38, s37")
    a("buffer_load_ushort v96, v11, s[28:31], s39 offen")
    a("buffer_load_ushort v97, v11, s[28:31], s39 offen offset:32")
    a("buffer_load_ushort v98, v11, s[28:31], s36 offen")
    a("buffer_load_ushort v99, v11, s[28:31], s36 offen offset:32")
    for r in range(ACC, ACC + 72): a("v_mov_b32 v%d, 0" % r)
    a("v_lshrrev_b32 v10, 2, v2")
    a("v_lshlrev_b32 v10, 5, v10")
    a("v_and_b32 v11, 3, v2")
    a("v_lshl_add_u32 v10, v11, 3, v10")
    a("v_add_u32 v10, %d, v10" % (RB + TREG))
    a("s_mul_i32 s26, s25, 10240")
    a("v_add_u32 v%d, s26, v10" % bF)
    a("v_add_u32 v%d, 8192, v10" % bFh)
    core.FS = 32; core.FT = 2048
    mma_addr(0)
    a("s_mov_b32 s33, 0")
    stamp(a, 4)
    a("s_barrier")
    stamp(a, 5)
    core.prime(0, core.reads(0, 0))
    trk.drain()
    nocs[0] = True
    a.label("%s_gloop" % name)
    lb = len(a.lines); iteration(False); st = copy.deepcopy(trk.out); del a.lines[lb:]; trk.out = copy.deepcopy(st)
    iteration(False)
    assert [sorted(x) for x in trk.out] == [sorted(x) for x in st]
    a("s_cmp_lg_u32 s33, 3")
    a("s_cbranch_scc1 %s_ghk0" % name)
    a("s_waitcnt vmcnt(0)")
    for tt in range(4): a("v_lshlrev_b32 v%d, 16, v%d" % (BI + 2 * tt, 96 + tt))
    a.label("%s_ghk0" % name)
    a.label("%s_ghk" % name)
    a("s_cmp_lg_u32 s33, 26")
    a("s_cbranch_scc1 %s_ghk2" % name)
    a("v_lshlrev_b32 v10, 2, v3")
    a("buffer_load_dword v254, v10, s[60:63], 0 offen offset:128 sc1")
    a.label("%s_ghk2" % name)
    a("s_cmp_lt_u32 s33, 32")
    a("s_cbranch_scc1 %s_gloop" % name)
    trk.drain()
    stamp(a, 6)
    G3.emit_k2_epilogue2(a, core, Z1R, BI, " sc1")
    stamp(a, 7)
    a("s_setprio 3")
    a("s_lshl_b32 s36, s22, 4")
    a("s_add_u32 s36, s36, s23")
    a("s_lshl_b32 s36, s36, 8")
    a("s_add_u32 s97, s36, 0x%x" % (ZFLG + PFL))
    c_common()
    a("v_lshlrev_b32 v14, 4, v2")
    a("s_mul_i32 s26, s22, %d" % (36 * 8192))
    a("s_lshl_b32 s24, s3, 12")
    a("s_add_u32 s26, s26, s24")
    a("s_add_u32 s26, s26, 0x%x" % PIMG)
    a("s_mul_i32 s27, s23, %d" % (18 * 20480))
    a("s_mul_i32 s25, s3, 5120")
    a("s_add_u32 s27, s27, s25")
    a("s_add_u32 s27, s27, 0x%x" % WOT)
    a("s_add_u32 s25, s25, %d" % CTREG)
    a("v_and_b32 v28, 15, v2")
    a("v_lshlrev_b32 v30, 2, v28")
    a("v_mov_b32 v26, %d" % LC)
    a("v_mov_b32 v27, 1")
    a("s_waitcnt vmcnt(0)")
    a("v_mov_b32 v31, v254")
    a("s_mov_b64 exec, 1")
    a("ds_add_rtn_u32 v29, v26, v27 offset:16")
    a("s_waitcnt lgkmcnt(0)")
    a("v_readfirstlane_b32 s36, v29")
    a("s_cmp_lg_u32 s36, 3")
    a("s_cbranch_scc1 %s_nops" % name)
    a("v_mov_b32 v29, 0")
    a("buffer_store_dword v27, v29, s[12:15], s97 offen sc1")
    a.label("%s_nops" % name)
    a("s_mov_b64 exec, -1")
    a("s_mov_b32 s34, 0")
    a.label("%s_cw" % name)
    a("ds_read_b32 v29, v26 offset:16")
    a("s_add_u32 s34, s34, 1")
    a("s_waitcnt lgkmcnt(0)")
    a("v_readfirstlane_b32 s36, v29")
    a("s_cmp_gt_u32 s34, %d" % (SPIN_MAX * 20))
    a("s_cbranch_scc1 %s_cwx" % name)
    a("s_cmp_ge_u32 s36, 4")
    a("s_cbranch_scc1 %s_cwx" % name)
    a("s_sleep 1")
    a("s_branch %s_cw" % name)
    a.label("%s_cwx" % name)
    a("s_mov_b32 s34, 0")
    a.label("%s_cp" % name)
    a("v_cmp_gt_u32 vcc, 16, v31")
    a("s_add_u32 s34, s34, 1")
    a("s_cmp_gt_u32 s34, %d" % SPIN_MAX)
    a("s_cbranch_scc1 %s_cpx" % name)
    a("s_cbranch_vccz %s_cpx" % name)
    a("s_sleep 32")
    a("buffer_load_dword v31, v30, s[60:63], 0 offen offset:128 sc1")
    a("s_waitcnt vmcnt(0)")
    a("s_branch %s_cp" % name)
    a.label("%s_cpx" % name)
    def cF(off, soff):
        a("s_add_u32 s36, s25, %s" % off)
        a("s_mov_b32 m0, s36")
        a("s_add_u32 s37, %s, 4096" % soff)
        for n in range(4):
            a("buffer_load_dwordx4 v14, s[12:15], %s offen offset:%d sc1 lds" % (soff, n * 1024))
        a("s_add_u32 s36, s36, 4096")
        a("s_mov_b32 m0, s36")
        a("s_nop 0")
        a("buffer_load_dwordx4 v14, s[12:15], s37 offen sc1 lds")
    def cT(off, soff):
        a("s_add_u32 s35, s24, %s" % off)
        a("s_mov_b32 m0, s35")
        a("s_nop 0")
        for n in range(4):
            a("buffer_load_dwordx4 v14, s[12:15], %s offen offset:%d sc1 lds" % (soff, n * 1024))
    a("s_add_u32 s38, s27, 20480")
    cF(str(C0), "s27"); cF(str(C0 + CSL), "s38")
    a("s_mov_b32 s34, 0")
    a("s_cmp_lg_u32 s3, 0")
    a("s_cbranch_scc1 %s_cpl" % name)
    a("v_lshlrev_b32 v28, 8, v28")
    a("s_lshr_b32 s39, s22, 1")
    a("s_lshl_b32 s39, s39, 12")
    a("s_add_u32 s39, s39, 0x%x" % (ZFLG + PFL))
    a.label("%s_cpz" % name)
    a("buffer_load_dword v29, v28, s[12:15], s39 offen sc1")
    a("s_add_u32 s34, s34, 1")
    a("s_waitcnt vmcnt(0)")
    a("v_cmp_ne_u32 vcc, 1, v29")
    a("s_cmp_gt_u32 s34, %d" % SPIN_MAX)
    a("s_cbranch_scc1 %s_cpzx" % name)
    a("s_cbranch_vccz %s_cpzx" % name)
    a("s_sleep 8")
    a("s_branch %s_cpz" % name)
    a.label("%s_cpzx" % name)
    a("ds_write_b32 v26, v27 offset:24")
    a("s_branch %s_cgo" % name)
    a.label("%s_cpl" % name)
    a("ds_read_b32 v29, v26 offset:24")
    a("s_add_u32 s34, s34, 1")
    a("s_waitcnt lgkmcnt(0)")
    a("v_readfirstlane_b32 s36, v29")
    a("s_cmp_gt_u32 s34, %d" % (SPIN_MAX * 20))
    a("s_cbranch_scc1 %s_cgo" % name)
    a("s_cmp_lg_u32 s36, 0")
    a("s_cbranch_scc1 %s_cgo" % name)
    a("s_sleep 2")
    a("s_branch %s_cpl" % name)
    a.label("%s_cgo" % name)
    stamp(a, 8)
    a("s_add_u32 s38, s26, 16384")
    cT(str(C0), "s26"); cT(str(C0 + CSL), "s38")
    a("s_add_u32 s26, s26, 32768")
    a("s_add_u32 s27, s27, 40960")
    a("s_mov_b32 s33, %d" % RB)
    def cissue():
        cT("s33", "s26"); cF("s33", "s27")
        a("s_add_u32 s26, s26, 16384")
        a("s_add_u32 s27, s27, 20480")
        a("s_add_u32 s33, s33, %d" % CSL)
        a("s_cmp_eq_u32 s33, %d" % CW)
        a("s_cselect_b32 s33, %d, s33" % RB)
    a("s_waitcnt vmcnt(4)")
    a("s_barrier")
    cissue(); cissue()
    a("s_waitcnt vmcnt(18)")
    a("s_barrier")
    a("s_mov_b32 s34, 0")
    a.label("%s_clloop" % name)
    cissue()
    a("s_cmp_lg_u32 s34, 11")
    a("s_cbranch_scc1 %s_cl1" % name)
    a("buffer_load_dword v31, v30, s[60:63], 0 offen offset:192 sc1")
    a("s_waitcnt vmcnt(19)")
    a("s_branch %s_cl2" % name)
    a.label("%s_cl1" % name)
    a("s_waitcnt vmcnt(18)")
    a.label("%s_cl2" % name)
    a("s_barrier")
    a("s_add_u32 s34, s34, 1")
    a("s_cmp_lt_u32 s34, 14")
    a("s_cbranch_scc1 %s_clloop" % name)
    a("s_mov_b32 s34, 0")
    a.label("%s_cy" % name)
    a("v_cmp_gt_u32 vcc, 16, v31")
    a("s_add_u32 s34, s34, 1")
    a("s_cmp_gt_u32 s34, %d" % SPIN_MAX)
    a("s_cbranch_scc1 %s_cyx" % name)
    a("s_cbranch_vccz %s_cyx" % name)
    a("s_sleep 32")
    a("buffer_load_dword v31, v30, s[60:63], 0 offen offset:192 sc1")
    a("s_waitcnt vmcnt(0)")
    a("s_branch %s_cy" % name)
    a.label("%s_cyx" % name)
    a("v_lshrrev_b32 v3, 3, v2")
    a("v_and_b32 v4, 7, v2")
    a("v_lshlrev_b32 v4, 4, v4")
    a("s_mul_i32 s33, s52, 144")
    a("s_mul_i32 s34, s53, 80")
    a("s_lshl_b32 s35, s22, 7")
    a("s_add_u32 s35, s35, 0x%x" % YT)
    for n in range(3):
        a("s_add_u32 s36, s3, %d" % (4 * n))
        if n == 2: a("s_min_u32 s36, s36, 9")
        a("s_lshl_b32 s37, s36, 3")
        a("s_add_u32 s38, s37, s33")
        if n < 2: a("s_add_u32 s38, s38, s34")
        a("v_add_u32 v5, s38, v3")
        a("v_lshl_add_u32 v5, v5, 12, v4")
        a("s_lshl_b32 s36, s36, 10")
        a("s_add_u32 s36, s36, %d" % YOFF)
        a("s_mov_b32 m0, s36")
        a("s_nop 0")
        a("buffer_load_dwordx4 v5, s[12:15], s35 offen sc1 lds")
    fin_loads()
    a("s_waitcnt vmcnt(%d)" % (9 + 7))
    a("s_barrier")
    a("s_waitcnt vmcnt(7)")
    a("s_barrier")
    a("s_barrier")
    a("s_setprio 0")
    a("s_waitcnt vmcnt(0)")
    a("s_branch %s_cfin" % name)
    a.label("%s_A1" % name)
    a("s_setprio 2")
    vmA = VmTracker(a)
    PB = 132
    def aux_head():
        epi_in()
        for tt in range(4):
            a("v_mov_b32 v%d, 0" % S[tt]); a("v_mov_b32 v%d, 0" % Q[tt])
    def aux_pub():
        a("s_nop 2")
        emit_xg_reduce(a, S + Q, 72)
        a("v_lshrrev_b32 v10, 4, v2")
        for g in range(1, 4):
            a("v_cmp_eq_u32 vcc, %d, v10" % g)
            a("s_nop 1")
            a("v_cndmask_b32 v%d, v%d, v%d, vcc" % (S[0], S[0], S[g]))
            a("v_cndmask_b32 v%d, v%d, v%d, vcc" % (Q[0], Q[0], Q[g]))
        a("v_and_b32 v%d, 0x7fffffff, v%d" % (Q[0], Q[0]))
        a("buffer_store_dwordx2 v[%d:%d], v94, s[12:15], s58 offen sc1" % (S[0], Q[0]))
    chunks = [capture(aux_head) + capture(gelu_ft, 0, True), capture(gelu_ft, 1, True), capture(gelu_ft, 2, True),
              capture(gelu_ft, 3, True), capture(gelu_ft, 4, True) + capture(aux_pub)]
    KD = 172
    for k in range(9, 18):
        a("s_barrier")
        if k == 9:
            a("s_cmp_lg_u32 s3, 0")
            a("s_cbranch_scc1 %s_nosig" % name)
            a("v_mov_b32 v10, 1")
            a("s_lshl_b32 s36, s22, 2")
            a("v_mov_b32 v11, s36")
            a("s_mov_b64 exec, 1")
            a("buffer_atomic_add v10, v11, s[60:63], 0 offen sc1")
            a("s_mov_b64 exec, -1")
            a.label("%s_nosig" % name)
        g = k + 3
        dma = capture(lambda: (issueT(g), issueF(g))) if g < 18 else []
        comp = chunks[k - 9] if k - 9 < len(chunks) else []
        if "nosub" in DBG: interleave(dma, comp)
        else:
            a.lines.extend(dma); a.lines.extend(comp)
        if k == 13: vmA.issue("pub", 1)
        if g < 18: vmA.issue("S%d" % g, 9)
        if k == 14:
            srd(a, 92, 78, 2048 * 2048 * 2)
            a("v_lshrrev_b32 v10, 4, v2")
            a("v_lshlrev_b32 v10, 12, v10")
            a("v_lshl_add_u32 v10, v3, 4, v10")
            a("s_lshl_b32 s40, s22, 7")
            a("s_lshl_b32 s36, s3, 5")
            a("s_add_u32 s40, s40, s36")
            a("s_lshl_b32 s40, s40, 12")
            a("s_lshl_b32 s36, s23, 8")
            a("s_add_u32 s40, s40, s36")
            for n in range(8):
                a("buffer_load_dwordx4 v[200:203], v10, s[92:95], s40 offen")
                if n < 7: a("s_add_u32 s40, s40, 16384")
            vmA.issue("wp", 8)
            a("s_lshl_b32 s36, s22, 2")
            a("v_mov_b32 v199, s36")
            a("buffer_load_dword v198, v199, s[60:63], 0 offen sc1"); vmA.issue("cnt", 1)
        if k + 2 < 18 and k + 2 >= 12:
            vmA.wait(["S%d" % (k + 2)])
    a("s_barrier")
    stamp(a, 3)
    a("s_load_dwordx4 s[88:91], s[0:1], 32")
    a("s_load_dwordx2 s[94:95], s[0:1], 80")
    a("v_lshrrev_b32 v10, 4, v2")
    a("v_lshlrev_b32 v95, 8, v3")
    a("v_lshl_add_u32 v95, v10, 6, v95")
    a("s_lshl_b32 s33, s25, 13")
    a("s_add_u32 s52, s59, s33")
    a("s_xor_b32 s33, s33, 8192")
    a("s_add_u32 s53, s59, s33")
    a("s_add_u32 s42, s52, 4096")
    a("s_add_u32 s43, s53, 4096")
    Z2 = ZP
    a("s_waitcnt vmcnt(0)")
    GB = [128, 144, 160, 176]
    a("v_mov_b32 v4, v95")
    def gather():
        for tt in range(4):
            for q in range(4):
                a("buffer_load_dwordx4 %s, v4, s[12:15], s%d offen offset:%d sc1" % (vr(GB[tt] + 4 * q), (52, 42, 53, 43)[tt], 16 * q))
    gather()
    a("s_mov_b32 s40, 0")
    a("s_waitcnt vmcnt(0)")
    a.label("%s_chk" % name)
    a("v_subrev_u32 v11, 16, v198")
    for tt in range(4):
        for r in range(GB[tt] + 1, GB[tt] + 16, 4):
            a("v_or3_b32 v11, v11, v%d, v%d" % (r, r + 2))
    a("v_cmp_gt_i32 vcc, 0, v11")
    a("s_add_u32 s40, s40, 1")
    a("s_cmp_gt_u32 s40, %d" % SPIN_MAX)
    a("s_cbranch_scc1 %s_ok" % name)
    a("s_cbranch_vccz %s_ok" % name)
    a("s_sleep 32")
    a("buffer_load_dword v198, v199, s[60:63], 0 offen sc1")
    a("s_waitcnt vmcnt(0)")
    gather()
    a("s_waitcnt vmcnt(0)")
    a("s_branch %s_chk" % name)
    a.label("%s_ok" % name)
    stamp(a, 5)
    for tt in range(4):
        b = GB[tt]
        for st_ in (8, 4, 2):
            for q in range(0, st_, 2):
                a("v_pk_add_f32 %s, %s, %s" % (vr(b + q, 2), vr(b + q, 2), vr(b + q + st_, 2)))
    emit_xg_reduce(a, [GB[tt] + e for tt in range(4) for e in range(2)], 72)
    for tt in range(4):
        b = GB[tt]
        emit_ln_finish(a, b, b + 1, 2304, b + 2, MR + 2 * tt, b + 4)
        a("v_mul_f32 v%d, -v%d, v%d" % (MR + 2 * tt + 1, b + 2, MR + 2 * tt))
    a("v_lshrrev_b32 v10, 4, v2")
    a("v_lshrrev_b32 v11, 2, v2"); a("v_and_b32 v11, 1, v11"); a("v_lshlrev_b32 v11, 4, v11")
    a("v_lshrrev_b32 v5, 3, v2"); a("v_and_b32 v5, 1, v5"); a("v_lshl_add_u32 v11, v5, 2, v11")
    a("v_and_b32 v5, 3, v2"); a("v_add_u32 v11, v11, v5")
    a("v_and_b32 v5, 1, v10")
    a("v_lshl_add_u32 v11, v5, 3, v11")
    a("v_lshlrev_b32 v11, 5, v11")
    a("v_lshrrev_b32 v5, 1, v10")
    a("v_lshl_add_u32 v6, v5, 4, v11")
    a("s_lshl_b32 s33, s23, 5")
    a("s_lshl_b32 s36, s22, 1")
    a("s_add_u32 s33, s33, s36")
    a("s_add_u32 s33, s33, s24")
    a("s_mul_i32 s33, s33, 18432")
    if ZIMG: a("s_add_u32 s33, s33, 0x%x" % ZIMG)
    a("s_lshl_b32 s36, s25, 10")
    a("s_add_u32 s39, s33, s36")
    a("s_add_u32 s39, s39, 8192")
    a("s_mul_i32 s38, s25, 10240")
    a("s_add_u32 s33, s33, s38")
    a("s_add_u32 s37, s33, s36")
    a("s_xor_b32 s36, s36, 1024")
    a("s_add_u32 s38, s33, s36")
    a("s_add_u32 s33, s37, 4096")
    a("s_add_u32 s36, s38, 4096")
    def norm_pair(nA, ttA, nB, ttB, O):
        for q, (n, tt) in enumerate(((nA, ttA), (nB, ttB))):
            for d in range(2):
                z = Z2 + 2 * n + d; t = T + 4 * q + 2 * d
                a("v_lshlrev_b32 v%d, 16, v%d" % (t, z))
                a("v_and_b32 v%d, 0xffff0000, v%d" % (t + 1, z))
        for q, (n, tt) in enumerate(((nA, ttA), (nB, ttB))):
            for d in range(2):
                t = T + 4 * q + 2 * d
                a("v_pk_fma_f32 %s, %s, %s, %s op_sel:[0,0,1] op_sel_hi:[1,0,1]" % (vr(t, 2), vr(t, 2), vr(MR + 2 * tt, 2), vr(MR + 2 * tt, 2)))
        for q in range(2):
            for d in range(2):
                t = T + 4 * q + 2 * d
                a("v_cvt_pk_bf16_f32 v%d, v%d, v%d" % (O + 2 * q + d, t, t + 1))
        a("s_nop 1")
        a("v_permlane16_swap_b32 v%d, v%d" % (O, O + 2))
        a("v_permlane16_swap_b32 v%d, v%d" % (O + 1, O + 3))
    cnt = 0
    for ft in range(4):
        for pp in range(2):
            O = 200 + 4 * cnt; cnt += 1
            norm_pair(tidx(ft, 2 * pp), 2 * pp, tidx(ft, 2 * pp + 1), 2 * pp + 1, O)
            a("s_nop 0")
            a("buffer_store_dwordx4 %s, v6, s[12:15], s%d offen offset:%d sc1" % (vr(O), ((37, 38), (33, 36))[ft >> 1][pp], (ft & 1) * 2048))
    O = 200 + 4 * cnt
    norm_pair(16, 0, 17, 1, O)
    a("s_nop 0")
    a("buffer_store_dwordx4 %s, v6, s[12:15], s39 offen sc1" % vr(O))
    stamp(a, 6)
    a("s_setprio 3")
    srd(a, 8, 78, 2048 * 2048 * 2)
    a("v_lshrrev_b32 v3, 3, v2")
    a("s_lshl_b32 s24, s3, 5")
    a("v_add_u32 v3, s24, v3")
    a("v_and_b32 v4, 7, v2")
    a("v_lshrrev_b32 v6, 4, v2")
    a("v_xor_b32 v6, v6, v4")
    a("v_lshlrev_b32 v6, 4, v6")
    a("v_lshl_add_u32 v10, v3, 12, v6")
    a("v_xor_b32 v11, 64, v10")
    a("v_add_u32 v11, %d, v11" % (32768 - 1024))
    a("v_add_u32 v12, %d, v10" % (2 * (32768 - 1024)))
    a("v_add_u32 v13, %d, v11" % (2 * (32768 - 1024)))
    a("v_lshlrev_b32 v14, 4, v2")
    a("s_lshl_b32 s26, s22, 19")
    a("s_mul_i32 s27, s23, %d" % (32 * 18432))
    a("s_lshl_b32 s24, s3, 12")
    a("s_add_u32 s27, s27, s24")
    if ZIMG: a("s_add_u32 s27, s27, 0x%x" % ZIMG)
    a("s_lshl_b32 s25, s3, 9")
    a("s_sub_u32 s32, s25, s24")
    a("s_add_u32 s32, s32, 16384")
    a("s_add_u32 s24, s24, %d" % RB)
    a("s_waitcnt vmcnt(0) lgkmcnt(0)")
    a("v_mov_b32 v26, %d" % LC)
    a("v_mov_b32 v27, 1")
    a("s_mov_b64 exec, 1")
    a("ds_add_rtn_u32 v28, v26, v27")
    a("s_waitcnt lgkmcnt(0)")
    a("v_readfirstlane_b32 s36, v28")
    a("s_cmp_lg_u32 s36, 3")
    a("s_cbranch_scc1 %s_nozs" % name)
    a("v_mov_b32 v28, 0")
    a("buffer_store_dword v27, v28, s[12:15], s97 offen sc1")
    a.label("%s_nozs" % name)
    a("s_mov_b64 exec, -1")
    stamp(a, 7)
    srd(a, 16, 88, 576 * 2048 * 2)
    srd(a, 84, 90, 576 * 2)
    for g in range(4):
        a("s_add_u32 s35, s24, %d" % (g * SLOT))
        a("s_mov_b32 m0, s35")
        a("s_add_u32 s36, s26, %d" % (128 * g))
        for n in range(4):
            a("buffer_load_dwordx4 v%d, s[8:11], s36 offen offset:%d lds" % (10 + n, n * 1024))
    a("s_mov_b32 s34, 0")
    a("s_cmp_lg_u32 s3, 0")
    a("s_cbranch_scc1 %s_pl" % name)
    a("v_and_b32 v28, 15, v2")
    a("v_lshlrev_b32 v30, 2, v28")
    a("v_lshlrev_b32 v28, 12, v28")
    a("s_lshl_b32 s52, s23, 8")
    a("s_add_u32 s52, s52, 0x%x" % ZFLG)
    a.label("%s_pz0" % name)
    a("buffer_load_dword v31, v30, s[60:63], 0 offen sc1")
    a("s_add_u32 s34, s34, 1")
    a("s_waitcnt vmcnt(0)")
    a("v_cmp_gt_u32 vcc, 16, v31")
    a("s_cmp_gt_u32 s34, %d" % SPIN_MAX)
    a("s_cbranch_scc1 %s_pz" % name)
    a("s_cbranch_vccz %s_pz" % name)
    a("s_sleep 32")
    a("s_branch %s_pz0" % name)
    a.label("%s_pz" % name)
    a("buffer_load_dword v29, v28, s[12:15], s52 offen sc1")
    a("s_add_u32 s34, s34, 1")
    a("s_waitcnt vmcnt(0)")
    a("v_cmp_ne_u32 vcc, 1, v29")
    a("s_cmp_gt_u32 s34, %d" % SPIN_MAX)
    a("s_cbranch_scc1 %s_pzx" % name)
    a("s_cbranch_vccz %s_pzx" % name)
    a("s_sleep 8")
    a("s_branch %s_pz" % name)
    a.label("%s_pzx" % name)
    a("v_mov_b32 v27, 1")
    a("ds_write_b32 v26, v27 offset:4")
    a("s_branch %s_pgo" % name)
    a.label("%s_pl" % name)
    a("ds_read_b32 v27, v26 offset:4")
    a("s_add_u32 s34, s34, 1")
    a("s_waitcnt lgkmcnt(0)")
    a("v_readfirstlane_b32 s36, v27")
    a("s_cmp_gt_u32 s34, %d" % (SPIN_MAX * 20))
    a("s_cbranch_scc1 %s_pgo" % name)
    a("s_cmp_lg_u32 s36, 0")
    a("s_cbranch_scc1 %s_pgo" % name)
    a("s_sleep 2")
    a("s_branch %s_pl" % name)
    a.label("%s_pgo" % name)
    stamp(a, 8)
    for g in range(4):
        a("s_add_u32 s35, s24, %d" % (g * SLOT + TREG))
        a("s_mov_b32 m0, s35")
        a("s_add_u32 s36, s27, %d" % (18432 * g))
        a("s_add_u32 s37, s36, s32")
        for n in range(4):
            a("buffer_load_dwordx4 v14, s[12:15], s36 offen offset:%d sc1 lds" % (n * 1024))
        a("s_add_u32 s35, s35, s32")
        a("s_mov_b32 m0, s35")
        a("s_mov_b64 exec, 0xffffffff")
        a("buffer_load_dwordx4 v14, s[12:15], s37 offen sc1 lds")
        a("s_mov_b64 exec, -1")
    a("s_add_u32 s26, s26, 512")
    a("s_add_u32 s27, s27, %d" % (4 * 18432))
    a("s_mov_b32 s33, 0")
    a("s_lshl_b32 s43, s2, 2")
    a("s_add_u32 s43, s43, s3")
    a("s_and_b32 s53, s43, 1")
    a("s_sub_u32 s36, s43, 448")
    a("s_lshr_b32 s37, s43, 1")
    a("s_cmp_ge_u32 s43, 896")
    a("s_cselect_b32 s43, s36, s37")
    a("s_cselect_b32 s53, 2, s53")
    a("s_waitcnt vmcnt(15)")
    a("s_barrier")
    a("s_waitcnt vmcnt(10)")
    a("s_barrier")
    a("s_waitcnt vmcnt(5)")
    a("s_barrier")
    a("s_mov_b32 s34, 4")
    def issue2():
        a("s_add_u32 s35, s33, s24")
        a("s_mov_b32 m0, s35")
        a("s_add_u32 s36, s35, %d" % TREG)
        for n in range(4):
            a("buffer_load_dwordx4 v%d, s[8:11], s26 offen offset:%d lds" % (10 + n, n * 1024))
        a("s_mov_b32 m0, s36")
        a("s_add_u32 s37, s27, s32")
        for n in range(4):
            a("buffer_load_dwordx4 v14, s[12:15], s27 offen offset:%d sc1 lds" % (n * 1024))
        a("s_add_u32 s36, s36, s32")
        a("s_mov_b32 m0, s36")
        a("s_mov_b64 exec, 0xffffffff")
        a("buffer_load_dwordx4 v14, s[12:15], s37 offen sc1 lds")
        a("s_mov_b64 exec, -1")
        a("s_add_u32 s26, s26, 128")
        a("s_add_u32 s27, s27, 18432")
        a("s_add_u32 s33, s33, %d" % SLOT)
        a("s_cmp_eq_u32 s33, %d" % (R * SLOT))
        a("s_cselect_b32 s33, 0, s33")
    def kvc(src):
        for n in range(11): a("v_mov_b32 v%d, v%d" % (16 + n, src + n))
        for n in range(8): a("v_mov_b32 v%d, v%d" % (32 + n, src + 12 + n))
        for n in range(4): a("v_mov_b32 v%d, v%d" % (44 + n, src + 20 + n))
        a("v_mov_b32 v56, v%d" % (src + 24)); a("v_mov_b32 v57, v%d" % (src + 25))
        emit_kv_compute(a, wait=False, store=False)
        a("s_mov_b32 s39, 0x%x" % KVT)
        a("buffer_store_dwordx4 v[120:123], v12, s[12:15], s39 offen sc1")
        a("buffer_store_dwordx4 v[124:127], v13, s[12:15], s39 offen sc1")
        a("s_nop 1")
        a("v_mov_b32 v12, v252"); a("v_mov_b32 v13, v253")
    issue2()
    a("v_mov_b32 v250, v10"); a("v_mov_b32 v251, v11"); a("v_mov_b32 v252, v12"); a("v_mov_b32 v253, v13")
    srd(a, 76, 94, 2304 * 576 * 2)
    a("s_mov_b32 s42, s2")
    emit_wot_loads(a, 128, 140, 720, 3)
    a("s_mov_b32 s41, s2")
    emit_kv_loads(a, 144, 156, 164, 168, 169)
    a("s_cmp_ge_u32 s2, 32")
    a("s_cbranch_scc1 %s_kvp" % name)
    a("s_add_u32 s41, s2, 256")
    emit_kv_loads(a, 172, 184, 192, 196, 197)
    a.label("%s_kvp" % name)
    a("v_mov_b32 v10, v250"); a("v_mov_b32 v11, v251")
    a("s_waitcnt vmcnt(32)")
    a("s_barrier")
    issue2()
    a("s_waitcnt vmcnt(32)")
    a("s_barrier")
    issue2()
    a("s_waitcnt vmcnt(9)")
    a("s_barrier")
    body = capture(kvc, 144)
    nb = len(body); cut = [0, nb // 3, 2 * nb // 3, nb]
    for c_ in range(3):
        issue2()
        if c_ == 0:
            for n in range(3):
                a("buffer_store_dwordx4 %s, v%d, s[12:15], s40 offen sc1" % (vr(128 + 4 * n), 140 + n))
        a.lines.extend(body[cut[c_]:cut[c_ + 1]])
        a("s_waitcnt vmcnt(%d)" % (12, 12, 11)[c_])
        a("s_barrier")
    a("s_cmp_ge_u32 s2, 32")
    a("s_cbranch_scc1 %s_kvq" % name)
    kvc(172)
    a.label("%s_kvq" % name)
    a("v_mov_b32 v26, %d" % LC)
    a("s_mov_b32 s34, 10")
    a.label("%s_lloop" % name)
    issue2()
    a("s_cmp_eq_u32 s34, 13")
    a("s_cbranch_scc1 %s_hk0" % name)
    a("s_cmp_eq_u32 s34, 21")
    a("s_cbranch_scc1 %s_hk1" % name)
    a("s_cmp_eq_u32 s34, 24")
    a("s_cbranch_scc1 %s_hk2" % name)
    a("s_waitcnt vmcnt(9)")
    a.label("%s_lcont" % name)
    a("s_barrier")
    a("s_add_u32 s34, s34, 1")
    a("s_cmp_lt_u32 s34, 32")
    a("s_cbranch_scc1 %s_lloop" % name)
    a("s_branch %s_ldone" % name)
    a.label("%s_hk0" % name)
    a("v_mov_b32 v27, 1")
    a("s_mov_b64 exec, 1")
    a("ds_add_rtn_u32 v28, v26, v27 offset:8")
    a("s_waitcnt lgkmcnt(0)")
    a("v_readfirstlane_b32 s36, v28")
    a("s_cmp_lg_u32 s36, 3")
    a("s_cbranch_scc1 %s_hk0x" % name)
    a("s_and_b32 s36, s2, 15")
    a("s_lshl_b32 s36, s36, 2")
    a("s_add_u32 s36, s36, 128")
    a("v_mov_b32 v28, s36")
    a("buffer_atomic_add v27, v28, s[60:63], 0 offen sc1")
    a.label("%s_hk0x" % name)
    a("s_mov_b64 exec, -1")
    a("s_waitcnt vmcnt(9)")
    a("s_branch %s_lcont" % name)
    a.label("%s_hk1" % name)
    a("v_and_b32 v28, 15, v2")
    a("v_lshlrev_b32 v28, 2, v28")
    a("buffer_load_dword v29, v28, s[60:63], 0 offen offset:128 sc1")
    a("s_waitcnt vmcnt(10)")
    a("s_branch %s_lcont" % name)
    a.label("%s_hk2" % name)
    a("s_mov_b32 s52, 0")
    a.label("%s_hk2l" % name)
    a("v_cmp_gt_u32 vcc, 16, v29")
    a("s_add_u32 s52, s52, 1")
    a("s_cmp_gt_u32 s52, %d" % SPIN_MAX)
    a("s_cbranch_scc1 %s_hk2g" % name)
    a("s_cbranch_vccz %s_hk2g" % name)
    a("s_sleep 16")
    a("buffer_load_dword v29, v28, s[60:63], 0 offen offset:128 sc1")
    a("s_waitcnt vmcnt(0)")
    a("s_branch %s_hk2l" % name)
    a.label("%s_hk2g" % name)
    nconv = emit_conv_loads(a, " sc1")
    a("s_waitcnt vmcnt(%d)" % (9 + nconv))
    a("s_branch %s_lcont" % name)
    a.label("%s_ldone" % name)
    a("s_waitcnt vmcnt(0)")
    a("s_barrier")
    a("s_mov_b32 s26, s53")
    a("s_and_b32 s27, s3, 1")
    a("s_mul_i32 s27, s27, %d" % CJ_SIZE)
    a("s_lshr_b32 s36, s3, 1")
    a("s_mul_i32 s36, s36, %d" % SLOT)
    a("s_add_u32 s27, s27, s36")
    a("s_add_u32 s27, s27, %d" % RB)
    def mid():
        a("s_barrier")
        a("s_setprio 0")
    sv = set(DBG); DBG.discard("stamp")
    lb_ = len(a.lines)
    emit_conv_job(a, name, mid)
    for n_ in range(lb_, len(a.lines)):
        if "buffer_store_dwordx2" in a.lines[n_]: a.lines[n_] += " sc1"
    DBG.update(sv)
    stamp(a, 9)
    c_common()
    cTa = [4, 4]; cTb = [6, 6]; cF_ = 8; cFh = 9
    kTa = 88; kTb = 90; kF = 92; kFh = 93
    a("v_and_b32 v3, 15, v2")
    a("v_lshrrev_b32 v10, 5, v2")
    a("v_lshlrev_b32 v10, 11, v10")
    a("v_bfe_u32 v11, v2, 4, 1")
    a("v_lshl_add_u32 v10, v11, 4, v10")
    a("v_lshl_add_u32 v10, v3, 5, v10")
    a("s_lshl_b32 s26, s3, 12")
    a("v_add_u32 v10, s26, v10")
    a("s_lshl_b32 s26, s53, 10")
    a("v_add_u32 v%d, s26, v10" % kTa)
    a("s_xor_b32 s26, s26, 1024")
    a("v_add_u32 v%d, s26, v10" % kTb)
    a("v_lshrrev_b32 v10, 2, v2")
    a("v_mul_u32_u24 v10, %d, v10" % CFS)
    a("v_and_b32 v11, 3, v2")
    a("v_lshl_add_u32 v10, v11, 3, v10")
    a("s_mul_i32 s26, s3, %d" % (32 * CFS))
    a("s_add_u32 s26, s26, %d" % CTREG)
    a("v_add_u32 v%d, s26, v10" % kF)
    a("v_add_u32 v%d, 128, v%d" % (kFh, kF))
    a("v_mov_b32 v26, %d" % LC)
    a("v_mov_b32 v27, 1")
    a("s_waitcnt vmcnt(0)")
    a("s_mov_b64 exec, 1")
    a("ds_add_rtn_u32 v28, v26, v27 offset:20")
    a("s_waitcnt lgkmcnt(0)")
    a("v_readfirstlane_b32 s36, v28")
    a("s_cmp_lg_u32 s36, 3")
    a("s_cbranch_scc1 %s_nocs" % name)
    a("s_and_b32 s36, s2, 15")
    a("s_lshl_b32 s36, s36, 2")
    a("s_add_u32 s36, s36, 192")
    a("v_mov_b32 v28, s36")
    a("buffer_atomic_add v27, v28, s[60:63], 0 offen sc1")
    a.label("%s_nocs" % name)
    a("s_mov_b64 exec, -1")
    fin_loads()
    core3 = G.Core(a, ACC, FB[0], FB[1], CFS, CTREG, cTa, cTb, cF_, cFh, TT=512)
    pairs = ((cTa[0], kTa), (cF_, kF), (cTb[0], kTb), (cFh, kFh))
    a("s_mov_b32 s27, %d" % C0)
    for d, s_ in pairs: a("v_add_u32 v%d, s27, v%d" % (d, s_))
    for r in range(ACC, ACC + 72): a("v_mov_b32 v%d, 0" % r)
    a("s_mov_b32 s33, 0")
    a("s_barrier")
    stamp(a, 10)
    core3.prime(0, core3.reads(0, 0))
    def citer(buf):
        core3.trk.drain()
        a("s_barrier")
        a("s_add_u32 s27, s27, %d" % CSL)
        a("s_cmp_eq_u32 s27, %d" % CW)
        a("s_cselect_b32 s27, %d, s27" % RB)
        pre = ["v_add_u32 v%d, s27, v%d" % (d, s_) for d, s_ in pairs]
        core3.phase(buf, core3.reads(1 - buf, 0), pre=pre)
    a.label("%s_ccloop" % name)
    citer(0); citer(1)
    a("s_add_u32 s33, s33, 1")
    a("s_cmp_lt_u32 s33, 9")
    a("s_cbranch_scc1 %s_ccloop" % name)
    core3.trk.drain()
    stamp(a, 11)
    a("s_mul_i32 s33, s3, %d" % (18 * 1024))
    a("s_add_u32 s33, s33, %d" % C0)
    a("v_lshlrev_b32 v10, 4, v2")
    a("v_add_u32 v11, s33, v10")
    a("s_nop 4")
    for n, (ft, tt) in enumerate(TILES):
        a("ds_write_b128 v11, %s offset:%d" % (vr(core3.accr(ft, tt)), 1024 * tidx(ft, tt)))
        if n in (7, 13): a("s_waitcnt lgkmcnt(4)")
    a("s_waitcnt lgkmcnt(0) vmcnt(0)")
    a.label("%s_cfin" % name)
    a("s_barrier")
    stamp(a, 12)
    a("v_lshlrev_b32 v10, 4, v2")
    a("v_lshrrev_b32 v11, 2, v2")
    a("v_lshlrev_b32 v11, 7, v11")
    a("v_and_b32 v12, 3, v2")
    a("v_lshl_add_u32 v11, v12, 3, v11")
    a("s_mov_b32 s33, 0xbfb8aa3b")
    PT = 16; YR = 64
    for s_ in range(3):
        b = 64 + 4 * s_
        if s_ == 2:
            a("s_cmp_ge_u32 s54, 2")
            a("s_cbranch_scc1 %s_rd" % name)
        a("v_add_u32 v4, s%d, v10" % (b + 2))
        a("v_add_u32 v5, s%d, v11" % (b + 1))
        for q in range(4):
            a("ds_read_b128 %s, v4 offset:%d" % (vr(PT + 16 * s_ + 4 * q), 18432 * q))
        a("ds_read_b64_tr_b16 %s, v5" % vr(YR + 2 * s_, 2))
    a.label("%s_rd" % name)
    T = 104
    for s_ in range(3):
        b = 64 + 4 * s_
        if s_ == 0: a("s_waitcnt lgkmcnt(5)")
        if s_ == 1: a("s_waitcnt lgkmcnt(0)")
        if s_ == 2:
            a("s_cmp_ge_u32 s54, 2")
            a("s_cbranch_scc1 %s_done" % name)
        o = PT + 16 * s_; X = XR + 2 * s_; Y = YR + 2 * s_; S_ = ST + 2 * s_
        for h in (0, 2):
            a("v_pk_add_f32 %s, %s, %s" % (vr(o + h, 2), vr(o + h, 2), vr(o + 4 + h, 2)))
            a("v_pk_add_f32 %s, %s, %s" % (vr(o + 8 + h, 2), vr(o + 8 + h, 2), vr(o + 12 + h, 2)))
        for h in (0, 2):
            a("v_pk_add_f32 %s, %s, %s" % (vr(o + h, 2), vr(o + h, 2), vr(o + 8 + h, 2)))
        rnd_pair(a, T + 20, o, o + 1); rnd_pair(a, T + 21, o + 2, o + 3)
        for r in range(4): a("v_mul_f32 v%d, s33, v%d" % (T + r, o + r))
        for r in range(4): a("v_exp_f32 v%d, v%d" % (T + r, T + r))
        a("v_lshlrev_b32 v%d, 16, v%d" % (T + 4, X)); a("v_and_b32 v%d, 0xffff0000, v%d" % (T + 5, X))
        a("v_lshlrev_b32 v%d, 16, v%d" % (T + 6, X + 1)); a("v_and_b32 v%d, 0xffff0000, v%d" % (T + 7, X + 1))
        for r in range(4): a("v_add_f32 v%d, 1.0, v%d" % (T + r, T + r))
        for r in range(4): a("v_rcp_f32 v%d, v%d" % (T + r, T + r))
        for r in range(4): a("v_sub_f32 v%d, v%d, v%d" % (T + 12 + r, T + 4 + r, S_))
        a("v_lshlrev_b32 v%d, 16, v%d" % (T + 8, Y)); a("v_and_b32 v%d, 0xffff0000, v%d" % (T + 9, Y))
        a("v_lshlrev_b32 v%d, 16, v%d" % (T + 10, Y + 1)); a("v_and_b32 v%d, 0xffff0000, v%d" % (T + 11, Y + 1))
        for r in range(4): a("v_mul_f32 v%d, v%d, v%d" % (o + r, o + r, T + r))
        rnd_pair(a, T + 20, T + 12, T + 13); rnd_pair(a, T + 21, T + 14, T + 15)
        rnd_pair(a, T + 22, o, o + 1); rnd_pair(a, T + 23, o + 2, o + 3)
        for r in range(4): a("v_mul_f32 v%d, v%d, v%d" % (T + 12 + r, T + 12 + r, S_ + 1))
        rnd_pair(a, T + 20, T + 12, T + 13); rnd_pair(a, T + 21, T + 14, T + 15)
        for r in range(4): a("v_mul_f32 v%d, v%d, v%d" % (T + 12 + r, T + 12 + r, T + 8 + r))
        rnd_pair(a, T + 20, T + 12, T + 13); rnd_pair(a, T + 21, T + 14, T + 15)
        for r in range(4): a("v_mul_f32 v%d, v%d, v%d" % (T + 12 + r, T + 12 + r, o + r))
        rnd_pair(a, T + 20, T + 12, T + 13); rnd_pair(a, T + 21, T + 14, T + 15)
        for r in range(4): a("v_add_f32 v%d, v%d, v%d" % (T + 12 + r, T + 12 + r, T + 4 + r))
        a("v_cvt_pk_bf16_f32 v%d, v%d, v%d" % (X, T + 12, T + 13))
        a("v_cvt_pk_bf16_f32 v%d, v%d, v%d" % (X + 1, T + 14, T + 15))
        a("buffer_store_dwordx2 %s, v13, s[28:31], s%d offen" % (vr(X, 2), b))
    a.label("%s_done" % name)
    stamp(a, 13)
    G.stamp_rt(a, 1)
    a.label("%s_end" % name)
    a("s_endpgm")
    if "nosub" not in DBG:
        for ft in range(5):
            a.label("%s_gsub%d" % (name, ft))
            tts = range(4 if ft < 4 else 2)
            emit_fold_gelu(a, [(128 + 4 * tidx(ft, tt), CS + 4 * ft, MR + 2 * tt, ZP + 2 * tidx(ft, tt)) for tt in tts], 72)
            a("s_setpc_b64 s[34:35]")
    return a.text(), kernel_desc(name, 256, 256), (name, 256, 512, YOFF + 10240)

def gen_kf3(name="k1_kernel", R=4):
    a = Asm()
    RB = 4096; SLOT = 34816; TREG = 16384; FS = 288; RST = 0
    LDSB = RB + R * SLOT
    LC = 2048
    ZFLG = 0x2D00000
    from gen3 import emit_conv_loads, emit_conv_job, CJ_SIZE
    def capture(f, *args):
        lb = len(a.lines); f(*args); out = a.lines[lb:]; del a.lines[lb:]; return out
    kernel_begin(a, name)
    a("s_load_dwordx2 s[80:81], s[0:1], 0")
    a("s_load_dwordx2 s[4:5], s[0:1], 56")
    a("s_load_dwordx2 s[6:7], s[0:1], 104")
    a("s_load_dwordx2 s[18:19], s[0:1], 96")
    a("s_cmp_ge_u32 s2, 256")
    a("s_cbranch_scc1 %s_end" % name)
    a("v_lshrrev_b32 v1, 6, v0")
    a("v_and_b32 v2, 63, v0")
    a("v_readfirstlane_b32 s3, v1")
    G2.tile_ij(a)
    a("s_lshr_b32 s98, s3, 2")
    a("s_mov_b32 s54x, 0".replace("s54x", "s99"))
    a("s_and_b32 s3, s3, 3")
    a("s_lshr_b32 s24, s3, 1")
    a("s_and_b32 s25, s3, 1")
    a("v_and_b32 v3, 15, v2")
    VT = 204; VF = 208
    def loader_setup():
        a("v_lshrrev_b32 v5, 3, v2")
        a("v_and_b32 v4, 7, v2")
        a("s_lshl_b32 s36, s3, 5")
        a("v_add_u32 v5, s36, v5")
        a("v_lshrrev_b32 v7, 4, v2")
        a("v_xor_b32 v7, v7, v4")
        a("v_mul_u32_u24 v6, 1152, v5")
        a("v_lshl_add_u32 v%d, v7, 4, v6" % VT)
        a("v_xor_b32 v%d, 64, v%d" % (VT + 1, VT))
        a("v_add_u32 v%d, %d, v%d" % (VT + 1, 9216 - 1024, VT + 1))
        a("v_add_u32 v%d, %d, v%d" % (VT + 2, 2 * (9216 - 1024), VT))
        a("v_add_u32 v%d, %d, v%d" % (VT + 3, 2 * (9216 - 1024), VT + 1))
        a("s_lshl_b32 s84, s3, 12")
        a("s_add_u32 s84, s84, %d" % RB)
        a("s_lshl_b32 s85, s3, 9")
        a("s_add_u32 s85, s85, %d" % (RB + TREG + 16384))
    def loader_setup2():
        for n in range(5):
            if n < 4:
                a("s_lshl_b32 s36, s3, 8")
                a("s_add_u32 s36, s36, %d" % (64 * n))
            else:
                a("s_lshl_b32 s36, s3, 5")
                a("s_add_u32 s36, s36, 1024")
            a("v_add_u32 v6, s36, v2")
            a("v_mul_u32_u24 v7, 3641, v6")
            a("v_lshrrev_b32 v7, 16, v7")
            a("v_mul_u32_u24 v8, 18, v7")
            a("v_sub_u32 v8, v6, v8")
            a("v_and_b32 v9, 35, v7")
            a("v_bfe_u32 v6, v7, 2, 2")
            a("v_lshl_add_u32 v9, v6, 3, v9")
            a("v_bfe_u32 v6, v7, 4, 1")
            a("v_lshl_add_u32 v9, v6, 2, v9")
            a("v_mul_u32_u24 v9, 9216, v9")
            a("v_lshl_add_u32 v%d, v8, 4, v9" % (VF + n))
            if 0 < n < 4: a("v_subrev_u32 v%d, %d, v%d" % (VF + n, 1024 * n, VF + n))
    def issueT(g):
        st = g % 9
        a("s_add_u32 s86, s84, %d" % ((g % R) * SLOT))
        a("s_mov_b32 m0, s86")
        a("s_add_u32 s87, s82, %d" % (128 * st))
        for n in range(4):
            a("buffer_load_dwordx4 v%d, s[28:31], s87 offen offset:%d lds" % (VT + n, 1024 * n))
    def issueF(g):
        st = g % 9
        a("s_add_u32 s86, s84, %d" % ((g % R) * SLOT + TREG))
        a("s_mov_b32 m0, s86")
        a("s_add_u32 s87, s83, %d" % (64 * 9216 * st + (4608 if g < 9 else 0)))
        for n in range(4):
            a("buffer_load_dwordx4 v%d, s[8:11], s87 offen offset:%d lds" % (VF + n, 1024 * n))
        a("s_add_u32 s86, s85, %d" % ((g % R) * SLOT))
        a("s_mov_b32 m0, s86")
        a("s_mov_b64 exec, 0xffffffff")
        a("buffer_load_dwordx4 v%d, s[8:11], s87 offen lds" % (VF + 4))
        a("s_mov_b64 exec, -1")
    def srds_main():
        srd(a, 28, 80, 2048 * 576 * 2)
        srd(a, 8, 4, 576 * 4608 * 2)
        srd(a, 12, 6, WS_BYTES)
        srd(a, 60, 18, 256)
        a("s_mul_i32 s82, s22, %d" % (128 * 1152))
        a("s_mul_i32 s83, s23, 288")
    ACC = 128; FB = [16, 52]; CS = 216; ONE = 236
    vTa = [4, 5]; vTb = [6, 7]; vF = 8; vFh = 9
    bTa = [88, 89]; bTb = [90, 91]; bF = 92; bFh = 93
    def mma_setup():
        a("v_lshrrev_b32 v10, 4, v2")
        a("v_lshrrev_b32 v11, 1, v3")
        a("v_xor_b32 v10, v10, v11")
        a("v_lshlrev_b32 v10, 4, v10")
        a("v_lshl_add_u32 v10, v3, 7, v10")
        a("s_lshl_b32 s26, s24, 13")
        a("s_add_u32 s26, s26, %d" % RB)
        a("v_add_u32 v10, s26, v10")
        a("s_lshl_b32 s26, s25, 12")
        a("v_add_u32 v%d, s26, v10" % bTa[0])
        a("s_xor_b32 s26, s26, 4096")
        a("v_add_u32 v%d, s26, v10" % bTb[0])
        a("v_xor_b32 v%d, 64, v%d" % (bTa[1], bTa[0]))
        a("v_xor_b32 v%d, 64, v%d" % (bTb[1], bTb[0]))
        a("v_lshrrev_b32 v10, 2, v2")
        a("v_mul_u32_u24 v10, %d, v10" % FS)
        a("v_and_b32 v11, 3, v2")
        a("v_lshl_add_u32 v10, v11, 3, v10")
        a("v_add_u32 v10, %d, v10" % (RB + TREG))
        a("s_mul_i32 s26, s25, 160")
        a("v_add_u32 v%d, s26, v10" % bF)
        a("v_add_u32 v%d, 128, v10" % bFh)
        for r in range(ACC, ACC + 72): a("v_mov_b32 v%d, 0" % r)
        for r in range(CS, CS + 20): a("v_mov_b32 v%d, 0" % r)
        for r in range(ONE, ONE + 4): a("v_mov_b32 v%d, 0x3f803f80" % r)
    def mma_addr(slot):
        a("s_mov_b32 s27, %d" % (slot * SLOT))
        for d, s_ in ((vTa[0], bTa[0]), (vTb[0], bTb[0]), (vTa[1], bTa[1]), (vTb[1], bTb[1]), (vF, bF), (vFh, bFh)):
            a("v_add_u32 v%d, s27, v%d" % (d, s_))
    core = G.Core(a, ACC, FB[0], FB[1], FS, TREG, vTa, vTb, vF, vFh)
    trk = core.trk
    a("s_cmp_eq_u32 s98, 0")
    a("s_cbranch_scc1 %s_A0" % name)
    a("s_setprio 3")
    loader_setup()
    a("s_waitcnt lgkmcnt(0)")
    srds_main()
    vm = VmTracker(a)
    def issue(g, vmx):
        issueT(g); issueF(g); vmx.issue("S%d" % g, 9)
    issueT(0)
    loader_setup2()
    issueF(0); vm.issue("S0", 9)
    issue(1, vm); issue(2, vm); issue(3, vm)
    a("s_add_u32 s3, s3, 4"); stamp_setup(a, 1); stamp(a, 0); a("s_sub_u32 s3, s3, 4")
    mma_setup()
    RA = 96; XB = 112
    for r in range(RA, RA + 16): a("v_mov_b32 v%d, 0" % r)
    a("v_lshrrev_b32 v10, 4, v2")
    a("v_lshrrev_b32 v11, 1, v3")
    a("v_xor_b32 v10, v10, v11")
    a("v_lshlrev_b32 v10, 4, v10")
    a("v_lshl_add_u32 v10, v3, 7, v10")
    a("v_add_u32 v12, s84, v10")
    a("v_xor_b32 v13, 64, v12")
    def rs_rd(g):
        a("v_add_u32 v10, %d, v12" % ((g % R) * SLOT))
        a("v_add_u32 v11, %d, v13" % ((g % R) * SLOT))
        for h in range(2):
            for n in range(2):
                a("ds_read_b128 %s, v%d offset:%d" % (vr(XB + 8 * h + 4 * n), 10 + h, 2048 * n))
    def rs_do():
        for h in range(2):
            for n in range(2):
                x = XB + 8 * h + 4 * n
                a("v_mfma_f32_16x16x32_bf16 %s, %s, %s, %s" % (vr(RA + 4 * n), vr(ONE), vr(x), vr(RA + 4 * n)))
                a("v_mfma_f32_16x16x32_bf16 %s, %s, %s, %s" % (vr(RA + 8 + 4 * n), vr(x), vr(x), vr(RA + 8 + 4 * n)))
    def interleave(dma, comp, vmx=None):
        groups = []; cur = []
        for l in dma:
            cur.append(l)
            if "buffer_load" in l and not any("exec, 0xffffffff" in x for x in cur[-2:]):
                groups.append(cur); cur = []
            elif "exec, -1" in l:
                groups.append(cur); cur = []
        if cur: groups.append(cur)
        ns = max(1, len(groups))
        per = (len(comp) + ns - 1) // ns
        for g in groups:
            a.lines.extend(g)
            a.lines.extend(comp[:per]); comp = comp[per:]
        a.lines.extend(comp)
    vm.wait(["S0"])
    a("s_barrier")
    stamp(a, 1)
    rs_rd(0)
    vm.wait(["S1"])
    a("s_barrier")
    for k in range(9):
        a("s_waitcnt lgkmcnt(0)")
        dma = capture(lambda: (issueT(k + 3), issueF(k + 3))) if k >= 1 else []
        interleave(dma, capture(rs_do))
        if k >= 1: vm.issue("S%d" % (k + 3), 9)
        if k < 8:
            rs_rd(k + 1)
        else:
            a("s_nop 7")
            a("v_lshrrev_b32 v10, 4, v2")
            a("v_lshrrev_b32 v11, 2, v3")
            a("v_and_b32 v12, 3, v3")
            for n in range(2):
                G_ = RA + 8 + 4 * n
                for r in range(1, 4):
                    a("v_cmp_eq_u32 vcc, %d, v12" % r)
                    a("s_nop 1")
                    a("v_cndmask_b32 v%d, v%d, v%d, vcc" % (G_, G_, G_ + r))
            ML = 112
            for n in range(2):
                emit_ln_finish(a, RA + 4 * n, RA + 8 + 4 * n, 576, ML + 2 * n, ML + 2 * n + 1, 120)
                a("v_mov_b32 v%d, v%d" % (117 + 2 * n, ML + 2 * n + 1))
                a("v_sub_f32 v%d, 0, v%d" % (116 + 2 * n, ML + 2 * n))
            a("s_lshl_b32 s35, s3, 8")
            a("v_lshlrev_b32 v13, 3, v3")
            a("v_add_u32 v12, s35, v13")
            a("v_cmp_eq_u32 vcc, v10, v11")
            a("s_and_saveexec_b64 s[36:37], vcc")
            for n in range(2):
                a("ds_write_b64 v12, %s offset:%d" % (vr(116 + 2 * n, 2), RST + 128 * n))
            a("s_mov_b64 exec, s[36:37]")
            a("s_cmp_lg_u32 s23, 0")
            a("s_cbranch_scc1 %s_nost1" % name)
            a("s_lshl_b32 s35, s22, 7")
            a("s_lshl_b32 s36, s3, 5")
            a("s_add_u32 s35, s35, s36")
            a("s_lshl_b32 s35, s35, 3")
            a("s_add_u32 s35, s35, 0x%x" % STATS1)
            a("v_mov_b32 v11, 0x7ffffff0")
            a("v_cndmask_b32 v13, v11, v13, vcc")
            for n in range(2):
                a("buffer_store_dwordx2 %s, v13, s[12:15], s35 offen offset:%d" % (vr(ML + 2 * n, 2), 128 * n))
            a.label("%s_nost1" % name)
            mma_addr(9 % R)
            a("s_mov_b32 s33, 0")
            a("s_setprio 0")
        vm.wait(["S%d" % (k + 2)], "lgkmcnt(0)" if k == 8 else "")
        if k < 8: a("s_barrier")
    a("s_branch %s_mma" % name)
    a.label("%s_A0" % name)
    emit_code_prefetch(a, name)
    a("s_load_dwordx4 s[64:67], s[0:1], 8")
    a("s_load_dwordx2 s[76:77], s[0:1], 24")
    a("s_load_dwordx2 s[78:79], s[0:1], 64")
    mma_setup()
    loader_setup(); loader_setup2()
    a("s_waitcnt lgkmcnt(0)")
    srds_main()
    srd(a, 68, 66, 2048 * 576 * 2)
    a("s_mov_b32 s88, s64"); a("s_mov_b32 s89, s65")
    srd(a, 64, 88, 2048 * 576 * 2)
    srd(a, 72, 76, 576 * 8)
    stamp_setup(a, 1); stamp(a, 0)
    def gran_addr():
        a("v_lshrrev_b32 v10, 4, v2")
        a("s_lshl_b32 s36, s25, 1")
        a("v_add_u32 v11, s36, v10")
        a("v_and_b32 v11, 3, v11")
        a("v_lshl_add_u32 v11, v11, 4, v3")
        a("v_lshlrev_b32 v94, 8, v11")
        a("s_lshl_b32 s59, s22, 7")
        a("s_lshl_b32 s36, s24, 6")
        a("s_add_u32 s59, s59, s36")
        a("s_lshl_b32 s59, s59, 8")
        a("s_add_u32 s59, s59, 0x%x" % STATS2)
        a("s_lshl_b32 s36, s23, 1")
        a("s_add_u32 s36, s36, s25")
        a("s_lshl_b32 s36, s36, 3")
        a("s_add_u32 s58, s36, s59")
    gran_addr()
    a("v_mov_b32 v12, 0"); a("v_mov_b32 v13, 0x80000000")
    a("buffer_store_dwordx2 v[12:13], v94, s[12:15], s58 offen sc1")
    a("s_lshl_b32 s36, s22, 4")
    a("s_add_u32 s36, s36, s23")
    a("s_lshl_b32 s36, s36, 8")
    a("s_add_u32 s97, s36, 0x%x" % ZFLG)
    a("v_mov_b32 v10, %d" % LC)
    a("v_mov_b32 v12, 0"); a("v_mov_b32 v13, 0")
    a("s_mov_b64 exec, 1")
    a("buffer_store_dword v12, v12, s[12:15], s97 offen sc1")
    a("s_mov_b64 exec, -1")
    a("ds_write_b64 v10, v[12:13]")
    a("ds_write_b64 v10, v[12:13] offset:8")
    mma_addr(0)
    a("s_mov_b32 s33, 0")
    a("s_waitcnt lgkmcnt(0)")
    a("s_barrier")
    stamp(a, 1)
    a.label("%s_mma" % name)
    core.prime(0, core.reads(0, 0))
    trk.drain()
    nocs = [False]
    def mfmas(buf):
        L = []
        for ft in range(5):
            A = core.F(buf, ft)
            for tt in range(4 if ft < 4 else 2):
                c = core.accr(ft, tt); B = core.T(buf, tt)
                L.append(("v_mfma_f32_16x16x32_bf16 %s, %s, %s, %s" % (vr(c), vr(A), vr(B), vr(c)), list(range(A, A + 4)) + list(range(B, B + 4))))
            if not nocs[0]: L.append(("v_mfma_f32_16x16x32_bf16 %s, %s, %s, %s" % (vr(CS + 4 * ft), vr(A), vr(ONE), vr(CS + 4 * ft)), list(range(A, A + 4))))
        return L
    def phase(buf, pend):
        for (m, regs) in mfmas(buf):
            trk.need(regs)
            a(m)
            while pend:
                k, t = pend.pop(0)
                if k == "x":
                    a(t)
                    if t.startswith("s_"): continue
                else:
                    a(t[0]); trk.issue(t[1])
                break
        for k, t in pend:
            if k == "x": a(t)
            else: a(t[0]); trk.issue(t[1])
    def iteration(vw=True):
        if vw: a("s_waitcnt vmcnt(0)")
        a("s_barrier")
        rd = [("r", t) for t in core.reads(1, 1)]
        upd = ["s_add_u32 s27, s27, %d" % SLOT, "s_cmp_eq_u32 s27, %d" % (R * SLOT), "s_cselect_b32 s27, 0, s27"]
        tail = ["v_add_u32 v%d, s27, v%d" % (d, s_) for d, s_ in ((vTa[0], bTa[0]), (vF, bF), (vTb[0], bTb[0]), (vFh, bFh))]
        phase(0, rd[:1] + [("x", u) for u in upd] + rd[1:] + [("x", u) for u in tail])
        rd = [("r", t) for t in core.reads(0, 0)]
        tail = ["v_add_u32 v%d, s27, v%d" % (d, s_) for d, s_ in ((vTa[1], bTa[1]), (vTb[1], bTb[1]))] + ["s_add_u32 s33, s33, 1"]
        phase(1, rd + [("x", u) for u in tail])
    a.label("%s_cloop" % name)
    lb = len(a.lines); iteration(); st = copy.deepcopy(trk.out); del a.lines[lb:]; trk.out = copy.deepcopy(st)
    iteration()
    assert [sorted(x) for x in trk.out] == [sorted(x) for x in st]
    a("s_cmp_lt_u32 s33, 9")
    a("s_cbranch_scc1 %s_cloop" % name)
    trk.drain()
    stamp(a, 2)
    MR = 100; T = 72; ZP = 16
    def epi_in():
        gelu_consts(a)
        a("s_lshl_b32 s36, s24, 9")
        a("s_lshl_b32 s37, s25, 8")
        a("s_add_u32 s38, s36, s37")
        a("s_xor_b32 s37, s37, 256")
        a("s_add_u32 s39, s36, s37")
        a("v_lshlrev_b32 v10, 3, v3")
        a("v_add_u32 v11, s38, v10")
        a("ds_read_b64 %s, v11 offset:%d" % (vr(MR, 2), RST))
        a("ds_read_b64 %s, v11 offset:%d" % (vr(MR + 2, 2), RST + 128))
        a("v_add_u32 v11, s39, v10")
        a("ds_read_b64 %s, v11 offset:%d" % (vr(MR + 4, 2), RST))
        a("ds_read_b64 %s, v11 offset:%d" % (vr(MR + 6, 2), RST + 128))
        a("s_waitcnt lgkmcnt(0)")
    S = [108, 110, 52, 54]; Q = [109, 111, 53, 55]
    def gelu_ft(ft, stats):
        tts = range(4 if ft < 4 else 2)
        emit_fold_gelu(a, [(core.accr(ft, tt), CS + 4 * ft, MR + 2 * tt, ZP + 2 * tidx(ft, tt)) for tt in tts], T)
        if stats:
            for d in range(2):
                for tt in tts:
                    p = ZP + 2 * tidx(ft, tt) + d
                    a("v_dot2_f32_bf16 v%d, v%d, v%d, v%d" % (S[tt], p, ONE, S[tt]))
                    a("v_dot2_f32_bf16 v%d, v%d, v%d, v%d" % (Q[tt], p, p, Q[tt]))
    a("s_cmp_eq_u32 s98, 0")
    a("s_cbranch_scc1 %s_A1" % name)
    a("v_mov_b32 v10, %d" % (LC + 12))
    a("v_mov_b32 v11, 1")
    a("s_mov_b64 exec, 1")
    a("ds_add_u32 v10, v11")
    a("s_mov_b64 exec, -1")
    a("s_load_dwordx4 s[64:67], s[0:1], 8")
    a("s_load_dwordx2 s[76:77], s[0:1], 24")
    a("s_load_dwordx2 s[94:95], s[0:1], 80")
    a("s_load_dwordx2 s[92:93], s[0:1], 72")
    epi_in()
    srd(a, 68, 66, 2048 * 576 * 2)
    a("s_mov_b32 s88, s64"); a("s_mov_b32 s89, s65")
    srd(a, 64, 88, 2048 * 576 * 2)
    srd(a, 72, 76, 576 * 8)
    srd(a, 76, 94, 2304 * 576 * 2)
    srd(a, 28, 92, 2048 * 2)
    a("v_and_b32 v0, 255, v0")
    a("s_mov_b32 s41, s2")
    KDB = 240
    emit_kv_loads(a, 112, 240, 248, 252, 253)
    a("s_cmp_ge_u32 s2, 32")
    a("s_cbranch_scc1 %s_kvp" % name)
    a("s_add_u32 s41, s2, 256")
    emit_kv_loads(a, 52, 63, 124, 71, 123)
    a.label("%s_kvp" % name)
    for ft in range(5): gelu_ft(ft, False)
    Z1R = 200; BI = 236
    for r_ in range(36): a("v_mov_b32 v%d, v%d" % (Z1R + r_, ZP + r_))
    stamp(a, 3)
    a("s_waitcnt vmcnt(0)")
    for n in range(11): a("v_mov_b32 v%d, v%d" % (16 + n, 112 + n))
    for n in range(8): a("v_mov_b32 v%d, v%d" % (32 + n, 240 + n))
    for n in range(4): a("v_mov_b32 v%d, v%d" % (44 + n, 248 + n))
    for r_ in range(6): a("v_mov_b32 v%d, v%d" % (240 + r_, 88 + r_))
    for r_ in range(20): a("v_mov_b32 v%d, v%d" % (128 + r_, 52 + r_))
    for r_ in range(5): a("v_mov_b32 v%d, v%d" % (148 + r_, 123 + r_))
    a("v_mov_b32 v56, v252"); a("v_mov_b32 v57, v253")
    a.label("%s_kvb" % name)
    emit_kv_compute(a, wait=False, store=False)
    a("s_mov_b32 s39, 0x%x" % KVT)
    a("buffer_store_dwordx4 v[120:123], v12, s[12:15], s39 offen sc1")
    a("buffer_store_dwordx4 v[124:127], v13, s[12:15], s39 offen sc1")
    a("s_cmp_lt_u32 s41, 256")
    a("s_cbranch_scc1 %s_kvbd" % name)
    a("s_mov_b32 s41, 0")
    for n in range(11): a("v_mov_b32 v%d, v%d" % (16 + n, 128 + n))
    for n in range(8): a("v_mov_b32 v%d, v%d" % (32 + n, 139 + n))
    for n in range(4): a("v_mov_b32 v%d, v%d" % (44 + n, 149 + n))
    a("v_mov_b32 v56, v147"); a("v_mov_b32 v57, v148")
    a("s_branch %s_kvb" % name)
    a.label("%s_kvbd" % name)
    for r_ in range(6): a("v_mov_b32 v%d, v%d" % (88 + r_, 240 + r_))
    a("s_mov_b32 s42, s2")
    emit_wot_loads(a, 100, 112, 720, 3)
    a("s_lshl_b32 s36, s22, 7")
    a("s_lshl_b32 s37, s24, 6")
    a("s_add_u32 s36, s36, s37")
    a("v_lshlrev_b32 v11, 1, v3")
    a("s_lshl_b32 s37, s25, 6")
    a("s_lshl_b32 s38, s36, 1")
    a("s_add_u32 s39, s38, s37")
    a("s_xor_b32 s37, s37, 64")
    a("s_add_u32 s36, s38, s37")
    a("buffer_load_ushort v96, v11, s[28:31], s39 offen")
    a("buffer_load_ushort v97, v11, s[28:31], s39 offen offset:32")
    a("buffer_load_ushort v98, v11, s[28:31], s36 offen")
    a("buffer_load_ushort v99, v11, s[28:31], s36 offen offset:32")
    for r in range(ACC, ACC + 72): a("v_mov_b32 v%d, 0" % r)
    mma_addr(0)
    a("s_mov_b32 s33, 0")
    stamp(a, 4)
    a("s_barrier")
    stamp(a, 5)
    core.prime(0, core.reads(0, 0))
    trk.drain()
    nocs[0] = True
    a.label("%s_gloop" % name)
    lb = len(a.lines); iteration(False); st = copy.deepcopy(trk.out); del a.lines[lb:]; trk.out = copy.deepcopy(st)
    iteration(False)
    assert [sorted(x) for x in trk.out] == [sorted(x) for x in st]
    a("s_cmp_lg_u32 s33, 3")
    a("s_cbranch_scc1 %s_ghk" % name)
    a("s_waitcnt vmcnt(0)")
    for n in range(3):
        a("buffer_store_dwordx4 %s, v%d, s[12:15], s40 offen" % (vr(100 + 4 * n), 112 + n))
    for tt in range(4): a("v_lshlrev_b32 v%d, 16, v%d" % (BI + 2 * tt, 96 + tt))
    a("v_mov_b32 v10, %d" % (LC + 8))
    a("v_mov_b32 v11, 1")
    a("s_mov_b64 exec, 1")
    a("ds_add_rtn_u32 v12, v10, v11")
    a("s_waitcnt lgkmcnt(0)")
    a("v_readfirstlane_b32 s36, v12")
    a("s_cmp_lg_u32 s36, 3")
    a("s_cbranch_scc1 %s_nokvs" % name)
    a("s_and_b32 s36, s2, 15")
    a("s_lshl_b32 s36, s36, 2")
    a("s_add_u32 s36, s36, 128")
    a("v_mov_b32 v10, s36")
    a("buffer_atomic_add v11, v10, s[60:63], 0 offen sc1")
    a.label("%s_nokvs" % name)
    a("s_mov_b64 exec, -1")
    a.label("%s_ghk" % name)
    a("s_cmp_lt_u32 s33, 32")
    a("s_cbranch_scc1 %s_gloop" % name)
    trk.drain()
    stamp(a, 6)
    G3.emit_k2_epilogue(a, core, Z1R, BI)
    stamp(a, 7)
    G.stamp_rt(a, 1)
    a("s_branch %s_end" % name)
    a.label("%s_A1" % name)
    a("s_setprio 2")
    vmA = VmTracker(a)
    PB = 132
    def aux_head():
        epi_in()
        for tt in range(4):
            a("v_mov_b32 v%d, 0" % S[tt]); a("v_mov_b32 v%d, 0" % Q[tt])
    def aux_pub():
        a("s_nop 2")
        emit_xg_reduce(a, S + Q, 72)
        a("v_lshrrev_b32 v10, 4, v2")
        for g in range(1, 4):
            a("v_cmp_eq_u32 vcc, %d, v10" % g)
            a("s_nop 1")
            a("v_cndmask_b32 v%d, v%d, v%d, vcc" % (S[0], S[0], S[g]))
            a("v_cndmask_b32 v%d, v%d, v%d, vcc" % (Q[0], Q[0], Q[g]))
        a("v_and_b32 v%d, 0x7fffffff, v%d" % (Q[0], Q[0]))
        a("buffer_store_dwordx2 v[%d:%d], v94, s[12:15], s58 offen sc1" % (S[0], Q[0]))
    chunks = [capture(aux_head) + capture(gelu_ft, 0, True), capture(gelu_ft, 1, True), capture(gelu_ft, 2, True),
              capture(gelu_ft, 3, True), capture(gelu_ft, 4, True) + capture(aux_pub)]
    GB = [128, 144, 160, 176]
    def gather():
        for tt in range(4):
            for q in range(4):
                a("buffer_load_dwordx4 %s, v4, s[12:15], s%d offen offset:%d sc1" % (vr(GB[tt] + 4 * q), (52, 42, 53, 43)[tt], 16 * q))
    KD = 172
    for k in range(9, 18):
        a("s_barrier")
        if k == 9:
            a("s_cmp_lg_u32 s3, 0")
            a("s_cbranch_scc1 %s_nosig" % name)
            a("v_mov_b32 v10, 1")
            a("s_lshl_b32 s36, s22, 2")
            a("v_mov_b32 v11, s36")
            a("s_mov_b64 exec, 1")
            a("buffer_atomic_add v10, v11, s[60:63], 0 offen sc1")
            a("s_mov_b64 exec, -1")
            a.label("%s_nosig" % name)
        g = k + 3
        dma = capture(lambda: (issueT(g), issueF(g))) if g < 18 else []
        comp = chunks[k - 9] if k - 9 < len(chunks) else []
        interleave(dma, comp)
        if k == 13: vmA.issue("pub", 1)
        if g < 18: vmA.issue("S%d" % g, 9)
        if k == 14:
            srd(a, 92, 78, 2048 * 2048 * 2)
            a("v_lshrrev_b32 v10, 4, v2")
            a("v_lshlrev_b32 v10, 12, v10")
            a("v_lshl_add_u32 v10, v3, 4, v10")
            a("s_lshl_b32 s40, s22, 7")
            a("s_lshl_b32 s36, s3, 5")
            a("s_add_u32 s40, s40, s36")
            a("s_lshl_b32 s40, s40, 12")
            a("s_lshl_b32 s36, s23, 8")
            a("s_add_u32 s40, s40, s36")
            for n in range(8):
                a("buffer_load_dwordx4 v[200:203], v10, s[92:95], s40 offen")
                if n < 7: a("s_add_u32 s40, s40, 16384")
            vmA.issue("wp", 8)
        if k == 13:
            a("s_lshl_b32 s36, s22, 2")
            a("v_mov_b32 v199, s36")
            a("buffer_load_dword v198, v199, s[60:63], 0 offen sc1"); vmA.issue("cnt", 1)
        if k == 15:
            a("v_lshrrev_b32 v10, 4, v2")
            a("v_lshlrev_b32 v95, 8, v3")
            a("v_lshl_add_u32 v95, v10, 6, v95")
            a("s_lshl_b32 s33, s25, 13")
            a("s_add_u32 s52, s59, s33")
            a("s_xor_b32 s33, s33, 8192")
            a("s_add_u32 s53, s59, s33")
            a("s_add_u32 s42, s52, 4096")
            a("s_add_u32 s43, s53, 4096")
            a("v_mov_b32 v4, v95")
            vmA.wait(["S17"])
            gather(); vmA.issue("g", 16)
        if k + 2 < 18 and k + 2 >= 12 and k != 15:
            vmA.wait(["S%d" % (k + 2)])
    stamp(a, 3)
    a("s_load_dwordx4 s[88:91], s[0:1], 32")
    Z2 = ZP
    a("s_mov_b32 s40, 0")
    a("s_waitcnt vmcnt(0)")
    a.label("%s_chk" % name)
    a("v_subrev_u32 v11, 16, v198")
    for tt in range(4):
        for r in range(GB[tt] + 1, GB[tt] + 16, 4):
            a("v_or3_b32 v11, v11, v%d, v%d" % (r, r + 2))
    a("v_cmp_gt_i32 vcc, 0, v11")
    a("s_add_u32 s40, s40, 1")
    a("s_cmp_gt_u32 s40, %d" % SPIN_MAX)
    a("s_cbranch_scc1 %s_ok" % name)
    a("s_cbranch_vccz %s_ok" % name)
    a("s_sleep 32")
    a("buffer_load_dword v198, v199, s[60:63], 0 offen sc1")
    a("s_waitcnt vmcnt(0)")
    gather()
    a("s_waitcnt vmcnt(0)")
    a("s_branch %s_chk" % name)
    a.label("%s_ok" % name)
    stamp(a, 5)
    for tt in range(4):
        b = GB[tt]
        for st_ in (8, 4, 2):
            for q in range(0, st_, 2):
                a("v_pk_add_f32 %s, %s, %s" % (vr(b + q, 2), vr(b + q, 2), vr(b + q + st_, 2)))
    emit_xg_reduce(a, [GB[tt] + e for tt in range(4) for e in range(2)], 72)
    for tt in range(4):
        b = GB[tt]
        emit_ln_finish(a, b, b + 1, 2304, b + 2, MR + 2 * tt, b + 4)
        a("v_mul_f32 v%d, -v%d, v%d" % (MR + 2 * tt + 1, b + 2, MR + 2 * tt))
    a("v_lshrrev_b32 v10, 4, v2")
    a("v_lshrrev_b32 v11, 2, v2"); a("v_and_b32 v11, 1, v11"); a("v_lshlrev_b32 v11, 4, v11")
    a("v_lshrrev_b32 v5, 3, v2"); a("v_and_b32 v5, 1, v5"); a("v_lshl_add_u32 v11, v5, 2, v11")
    a("v_and_b32 v5, 3, v2"); a("v_add_u32 v11, v11, v5")
    a("v_mul_u32_u24 v11, 288, v11")
    a("v_lshrrev_b32 v5, 1, v10"); a("v_lshl_add_u32 v11, v5, 4, v11")
    a("v_and_b32 v5, 1, v10")
    a("v_lshl_add_u32 v6, v5, 5, v11")
    a("v_mul_u32_u24 v5, 2304, v5")
    a("v_add_u32 v9, v11, v5")
    a("s_lshl_b32 s33, s23, 5")
    a("s_lshl_b32 s36, s22, 1")
    a("s_add_u32 s33, s33, s36")
    a("s_add_u32 s33, s33, s24")
    a("s_mul_i32 s33, s33, 18432")
    if ZIMG: a("s_add_u32 s33, s33, 0x%x" % ZIMG)
    a("s_mul_i32 s36, s25, 9216")
    a("s_add_u32 s37, s33, s36")
    a("s_xor_b32 s36, s36, 9216")
    a("s_add_u32 s38, s33, s36")
    a("s_add_u32 s39, s37, 128")
    a("s_mul_i32 s36, s25, 160")
    a("s_add_u32 s37, s37, s36")
    a("s_add_u32 s38, s38, s36")
    def norm_pair(nA, ttA, nB, ttB, O):
        for q, (n, tt) in enumerate(((nA, ttA), (nB, ttB))):
            for d in range(2):
                z = Z2 + 2 * n + d; t = T + 4 * q + 2 * d
                a("v_lshlrev_b32 v%d, 16, v%d" % (t, z))
                a("v_and_b32 v%d, 0xffff0000, v%d" % (t + 1, z))
        for q, (n, tt) in enumerate(((nA, ttA), (nB, ttB))):
            for d in range(2):
                t = T + 4 * q + 2 * d
                a("v_pk_fma_f32 %s, %s, %s, %s op_sel:[0,0,1] op_sel_hi:[1,0,1]" % (vr(t, 2), vr(t, 2), vr(MR + 2 * tt, 2), vr(MR + 2 * tt, 2)))
        for q in range(2):
            for d in range(2):
                t = T + 4 * q + 2 * d
                a("v_cvt_pk_bf16_f32 v%d, v%d, v%d" % (O + 2 * q + d, t, t + 1))
        a("s_nop 1")
        a("v_permlane16_swap_b32 v%d, v%d" % (O, O + 2))
        a("v_permlane16_swap_b32 v%d, v%d" % (O + 1, O + 3))
    cnt = 0
    for pr in range(2):
        for tt in range(4):
            O = 200 + 4 * cnt; cnt += 1
            norm_pair(tidx(2 * pr, tt), tt, tidx(2 * pr + 1, tt), tt, O)
            a("s_nop 0")
            a("buffer_store_dwordx4 %s, v6, s[12:15], s%d offen offset:%d" % (vr(O), 37 if tt < 2 else 38, (tt & 1) * 2304 + 64 * pr) + " sc1")
    O = 200 + 4 * cnt
    norm_pair(16, 0, 17, 1, O)
    a("s_nop 0")
    a("buffer_store_dwordx4 %s, v9, s[12:15], s39 offen sc1" % vr(O))
    stamp(a, 6)
    a("s_setprio 3")
    srd(a, 8, 78, 2048 * 2048 * 2)
    a("v_lshrrev_b32 v3, 3, v2")
    a("s_lshl_b32 s24, s3, 5")
    a("v_add_u32 v3, s24, v3")
    a("v_and_b32 v4, 7, v2")
    a("v_lshrrev_b32 v6, 4, v2")
    a("v_xor_b32 v6, v6, v4")
    a("v_lshlrev_b32 v6, 4, v6")
    a("v_lshl_add_u32 v10, v3, 12, v6")
    a("v_xor_b32 v11, 64, v10")
    a("v_add_u32 v11, %d, v11" % (32768 - 1024))
    a("v_add_u32 v12, %d, v10" % (2 * (32768 - 1024)))
    a("v_add_u32 v13, %d, v11" % (2 * (32768 - 1024)))
    a("v_lshlrev_b32 v14, 4, v2")
    a("s_lshl_b32 s26, s22, 19")
    a("s_mul_i32 s27, s23, %d" % (32 * 18432))
    a("s_lshl_b32 s24, s3, 12")
    a("s_add_u32 s27, s27, s24")
    if ZIMG: a("s_add_u32 s27, s27, 0x%x" % ZIMG)
    a("s_lshl_b32 s25, s3, 9")
    a("s_sub_u32 s32, s25, s24")
    a("s_add_u32 s32, s32, 16384")
    a("s_add_u32 s24, s24, %d" % RB)
    a("s_waitcnt vmcnt(0) lgkmcnt(0)")
    a("v_mov_b32 v26, %d" % LC)
    a("v_mov_b32 v27, 1")
    a("s_mov_b64 exec, 1")
    a("ds_add_rtn_u32 v28, v26, v27")
    a("s_waitcnt lgkmcnt(0)")
    a("v_readfirstlane_b32 s36, v28")
    a("s_cmp_lg_u32 s36, 3")
    a("s_cbranch_scc1 %s_nozs" % name)
    a("v_mov_b32 v28, 0")
    a("buffer_store_dword v27, v28, s[12:15], s97 offen sc1")
    a.label("%s_nozs" % name)
    a("s_mov_b64 exec, -1")
    stamp(a, 7)
    srd(a, 16, 88, 576 * 2048 * 2)
    srd(a, 84, 90, 576 * 2)
    a("s_mov_b32 s34, 0")
    a.label("%s_wb" % name)
    a("ds_read_b32 v27, v26 offset:12")
    a("s_add_u32 s34, s34, 1")
    a("s_waitcnt lgkmcnt(0)")
    a("v_readfirstlane_b32 s36, v27")
    a("s_cmp_gt_u32 s34, %d" % (SPIN_MAX * 20))
    a("s_cbranch_scc1 %s_wbx" % name)
    a("s_cmp_ge_u32 s36, 4")
    a("s_cbranch_scc1 %s_wbx" % name)
    a("s_sleep 2")
    a("s_branch %s_wb" % name)
    a.label("%s_wbx" % name)
    for g in range(4):
        a("s_add_u32 s35, s24, %d" % (g * SLOT))
        a("s_mov_b32 m0, s35")
        a("s_add_u32 s36, s26, %d" % (128 * g))
        for n in range(4):
            a("buffer_load_dwordx4 v%d, s[8:11], s36 offen offset:%d lds" % (10 + n, n * 1024))
    a("s_mov_b32 s34, 0")
    a("s_cmp_lg_u32 s3, 0")
    a("s_cbranch_scc1 %s_pl" % name)
    a("v_and_b32 v28, 15, v2")
    a("v_lshlrev_b32 v30, 2, v28")
    a("v_lshlrev_b32 v28, 12, v28")
    a("s_lshl_b32 s52, s23, 8")
    a("s_add_u32 s52, s52, 0x%x" % ZFLG)
    a.label("%s_pz0" % name)
    a("buffer_load_dword v31, v30, s[60:63], 0 offen sc1")
    a("s_add_u32 s34, s34, 1")
    a("s_waitcnt vmcnt(0)")
    a("v_cmp_gt_u32 vcc, 16, v31")
    a("s_cmp_gt_u32 s34, %d" % SPIN_MAX)
    a("s_cbranch_scc1 %s_pz" % name)
    a("s_cbranch_vccz %s_pz" % name)
    a("s_sleep 32")
    a("s_branch %s_pz0" % name)
    a.label("%s_pz" % name)
    a("buffer_load_dword v29, v28, s[12:15], s52 offen sc1")
    a("s_add_u32 s34, s34, 1")
    a("s_waitcnt vmcnt(0)")
    a("v_cmp_ne_u32 vcc, 1, v29")
    a("s_cmp_gt_u32 s34, %d" % SPIN_MAX)
    a("s_cbranch_scc1 %s_pzx" % name)
    a("s_cbranch_vccz %s_pzx" % name)
    a("s_sleep 8")
    a("s_branch %s_pz" % name)
    a.label("%s_pzx" % name)
    a("v_mov_b32 v27, 1")
    a("ds_write_b32 v26, v27 offset:4")
    a("s_branch %s_pgo" % name)
    a.label("%s_pl" % name)
    a("ds_read_b32 v27, v26 offset:4")
    a("s_add_u32 s34, s34, 1")
    a("s_waitcnt lgkmcnt(0)")
    a("v_readfirstlane_b32 s36, v27")
    a("s_cmp_gt_u32 s34, %d" % (SPIN_MAX * 20))
    a("s_cbranch_scc1 %s_pgo" % name)
    a("s_cmp_lg_u32 s36, 0")
    a("s_cbranch_scc1 %s_pgo" % name)
    a("s_sleep 2")
    a("s_branch %s_pl" % name)
    a.label("%s_pgo" % name)
    stamp(a, 8)
    for g in range(4):
        a("s_add_u32 s35, s24, %d" % (g * SLOT + TREG))
        a("s_mov_b32 m0, s35")
        a("s_add_u32 s36, s27, %d" % (18432 * g))
        a("s_add_u32 s37, s36, s32")
        for n in range(4):
            a("buffer_load_dwordx4 v14, s[12:15], s36 offen offset:%d sc1 lds" % (n * 1024))
        a("s_add_u32 s35, s35, s32")
        a("s_mov_b32 m0, s35")
        a("s_mov_b64 exec, 0xffffffff")
        a("buffer_load_dwordx4 v14, s[12:15], s37 offen sc1 lds")
        a("s_mov_b64 exec, -1")
    a("s_add_u32 s26, s26, 512")
    a("s_add_u32 s27, s27, %d" % (4 * 18432))
    a("s_mov_b32 s33, 0")
    a("s_lshl_b32 s43, s2, 2")
    a("s_add_u32 s43, s43, s3")
    a("s_and_b32 s53, s43, 1")
    a("s_sub_u32 s36, s43, 448")
    a("s_lshr_b32 s37, s43, 1")
    a("s_cmp_ge_u32 s43, 896")
    a("s_cselect_b32 s43, s36, s37")
    a("s_cselect_b32 s53, 2, s53")
    a("s_waitcnt vmcnt(15)")
    a("s_barrier")
    a("s_waitcnt vmcnt(10)")
    a("s_barrier")
    a("s_waitcnt vmcnt(5)")
    a("s_barrier")
    a("s_mov_b32 s34, 4")
    def issue2():
        a("s_add_u32 s35, s33, s24")
        a("s_mov_b32 m0, s35")
        a("s_add_u32 s36, s35, %d" % TREG)
        for n in range(4):
            a("buffer_load_dwordx4 v%d, s[8:11], s26 offen offset:%d lds" % (10 + n, n * 1024))
        a("s_mov_b32 m0, s36")
        a("s_add_u32 s37, s27, s32")
        for n in range(4):
            a("buffer_load_dwordx4 v14, s[12:15], s27 offen offset:%d sc1 lds" % (n * 1024))
        a("s_add_u32 s36, s36, s32")
        a("s_mov_b32 m0, s36")
        a("s_mov_b64 exec, 0xffffffff")
        a("buffer_load_dwordx4 v14, s[12:15], s37 offen sc1 lds")
        a("s_mov_b64 exec, -1")
        a("s_add_u32 s26, s26, 128")
        a("s_add_u32 s27, s27, 18432")
        a("s_add_u32 s33, s33, %d" % SLOT)
        a("s_cmp_eq_u32 s33, %d" % (R * SLOT))
        a("s_cselect_b32 s33, 0, s33")
    a.label("%s_lloop" % name)
    issue2()
    a("s_cmp_eq_u32 s34, 18")
    a("s_cbranch_scc1 %s_hk1" % name)
    a("s_cmp_eq_u32 s34, 21")
    a("s_cbranch_scc1 %s_hk2" % name)
    a("s_waitcnt vmcnt(9)")
    a.label("%s_lcont" % name)
    a("s_barrier")
    a("s_add_u32 s34, s34, 1")
    a("s_cmp_lt_u32 s34, 32")
    a("s_cbranch_scc1 %s_lloop" % name)
    a("s_branch %s_ldone" % name)
    a.label("%s_hk1" % name)
    a("v_and_b32 v28, 15, v2")
    a("v_lshlrev_b32 v28, 2, v28")
    a("buffer_load_dword v29, v28, s[60:63], 0 offen offset:128 sc1")
    a("s_waitcnt vmcnt(10)")
    a("s_branch %s_lcont" % name)
    a.label("%s_hk2" % name)
    a("s_mov_b32 s52, 0")
    a.label("%s_hk2l" % name)
    a("v_cmp_gt_u32 vcc, 16, v29")
    a("s_add_u32 s52, s52, 1")
    a("s_cmp_gt_u32 s52, %d" % SPIN_MAX)
    a("s_cbranch_scc1 %s_hk2g" % name)
    a("s_cbranch_vccz %s_hk2g" % name)
    a("s_sleep 16")
    a("buffer_load_dword v29, v28, s[60:63], 0 offen offset:128 sc1")
    a("s_waitcnt vmcnt(0)")
    a("s_branch %s_hk2l" % name)
    a.label("%s_hk2g" % name)
    nconv = emit_conv_loads(a, " sc1")
    a("s_waitcnt vmcnt(%d)" % (9 + nconv))
    a("s_branch %s_lcont" % name)
    a.label("%s_ldone" % name)
    a("s_waitcnt vmcnt(0)")
    a("s_barrier")
    a("s_mov_b32 s26, s53")
    a("s_and_b32 s27, s3, 1")
    a("s_mul_i32 s27, s27, %d" % CJ_SIZE)
    a("s_lshr_b32 s36, s3, 1")
    a("s_mul_i32 s36, s36, %d" % SLOT)
    a("s_add_u32 s27, s27, s36")
    a("s_add_u32 s27, s27, %d" % RB)
    def mid():
        a("s_barrier")
        a("s_setprio 0")
    sv = set(DBG); DBG.discard("stamp")
    emit_conv_job(a, name, mid)
    DBG.update(sv)
    G.stamp_rt(a, 1)
    a.label("%s_end" % name)
    a("s_endpgm")
    return a.text(), kernel_desc(name, 256, 256), (name, 256, 512, LDSB)

def gen_kf4(name="k1_kernel", R=4):
    a = Asm()
    RB = 4096; SLOT = 34816; TREG = 16384; FS = 288; RST = 0
    LDSB = RB + R * SLOT
    LC = 2048
    ZFLG = 0x2D00000
    from gen3 import emit_conv_loads, emit_conv_job, CJ_SIZE
    def capture(f, *args):
        lb = len(a.lines); f(*args); out = a.lines[lb:]; del a.lines[lb:]; return out
    kernel_begin(a, name)
    a("s_load_dwordx2 s[80:81], s[0:1], 0")
    a("s_load_dwordx2 s[4:5], s[0:1], 56")
    a("s_load_dwordx2 s[6:7], s[0:1], 104")
    a("s_load_dwordx2 s[18:19], s[0:1], 96")
    a("s_cmp_ge_u32 s2, 256")
    a("s_cbranch_scc1 %s_end" % name)
    a("v_lshrrev_b32 v1, 6, v0")
    a("v_and_b32 v2, 63, v0")
    a("v_readfirstlane_b32 s3, v1")
    G2.tile_ij(a)
    a("s_lshr_b32 s98, s3, 2")
    a("s_mov_b32 s54x, 0".replace("s54x", "s99"))
    a("s_and_b32 s3, s3, 3")
    a("s_lshr_b32 s24, s3, 1")
    a("s_and_b32 s25, s3, 1")
    a("v_and_b32 v3, 15, v2")
    VT = 204; VF = 208
    def loader_setup():
        a("v_lshrrev_b32 v5, 3, v2")
        a("v_and_b32 v4, 7, v2")
        a("s_lshl_b32 s36, s3, 5")
        a("v_add_u32 v5, s36, v5")
        a("v_lshrrev_b32 v7, 4, v2")
        a("v_xor_b32 v7, v7, v4")
        a("v_mul_u32_u24 v6, 1152, v5")
        a("v_lshl_add_u32 v%d, v7, 4, v6" % VT)
        a("v_xor_b32 v%d, 64, v%d" % (VT + 1, VT))
        a("v_add_u32 v%d, %d, v%d" % (VT + 1, 9216 - 1024, VT + 1))
        a("v_add_u32 v%d, %d, v%d" % (VT + 2, 2 * (9216 - 1024), VT))
        a("v_add_u32 v%d, %d, v%d" % (VT + 3, 2 * (9216 - 1024), VT + 1))
        a("s_lshl_b32 s84, s3, 12")
        a("s_add_u32 s84, s84, %d" % RB)
        a("s_lshl_b32 s85, s3, 9")
        a("s_add_u32 s85, s85, %d" % (RB + TREG + 16384))
    def loader_setup2():
        for n in range(5):
            if n < 4:
                a("s_lshl_b32 s36, s3, 8")
                a("s_add_u32 s36, s36, %d" % (64 * n))
            else:
                a("s_lshl_b32 s36, s3, 5")
                a("s_add_u32 s36, s36, 1024")
            a("v_add_u32 v6, s36, v2")
            a("v_mul_u32_u24 v7, 3641, v6")
            a("v_lshrrev_b32 v7, 16, v7")
            a("v_mul_u32_u24 v8, 18, v7")
            a("v_sub_u32 v8, v6, v8")
            a("v_and_b32 v9, 35, v7")
            a("v_bfe_u32 v6, v7, 2, 2")
            a("v_lshl_add_u32 v9, v6, 3, v9")
            a("v_bfe_u32 v6, v7, 4, 1")
            a("v_lshl_add_u32 v9, v6, 2, v9")
            a("v_mul_u32_u24 v9, 9216, v9")
            a("v_lshl_add_u32 v%d, v8, 4, v9" % (VF + n))
            if 0 < n < 4: a("v_subrev_u32 v%d, %d, v%d" % (VF + n, 1024 * n, VF + n))
    def issueT(g):
        st = g % 9
        a("s_add_u32 s86, s84, %d" % ((g % R) * SLOT))
        a("s_mov_b32 m0, s86")
        a("s_add_u32 s87, s82, %d" % (128 * st))
        for n in range(4):
            a("buffer_load_dwordx4 v%d, s[28:31], s87 offen offset:%d lds" % (VT + n, 1024 * n))
    def issueF(g):
        st = g % 9
        a("s_add_u32 s86, s84, %d" % ((g % R) * SLOT + TREG))
        a("s_mov_b32 m0, s86")
        a("s_add_u32 s87, s83, %d" % (64 * 9216 * st + (4608 if g < 9 else 0)))
        for n in range(4):
            a("buffer_load_dwordx4 v%d, s[8:11], s87 offen offset:%d lds" % (VF + n, 1024 * n))
        a("s_add_u32 s86, s85, %d" % ((g % R) * SLOT))
        a("s_mov_b32 m0, s86")
        a("s_mov_b64 exec, 0xffffffff")
        a("buffer_load_dwordx4 v%d, s[8:11], s87 offen lds" % (VF + 4))
        a("s_mov_b64 exec, -1")
    def srds_main():
        srd(a, 28, 80, 2048 * 576 * 2)
        srd(a, 8, 4, 576 * 4608 * 2)
        srd(a, 12, 6, WS_BYTES)
        srd(a, 60, 18, 256)
        a("s_mul_i32 s82, s22, %d" % (128 * 1152))
        a("s_mul_i32 s83, s23, 288")
    ACC = 128; FB = [16, 52]; CS = 216; ONE = 236
    vTa = [4, 5]; vTb = [6, 7]; vF = 8; vFh = 9
    bTa = [88, 89]; bTb = [90, 91]; bF = 92; bFh = 93
    def mma_setup():
        a("v_lshrrev_b32 v10, 4, v2")
        a("v_lshrrev_b32 v11, 1, v3")
        a("v_xor_b32 v10, v10, v11")
        a("v_lshlrev_b32 v10, 4, v10")
        a("v_lshl_add_u32 v10, v3, 7, v10")
        a("s_lshl_b32 s26, s24, 13")
        a("s_add_u32 s26, s26, %d" % RB)
        a("v_add_u32 v10, s26, v10")
        a("s_lshl_b32 s26, s25, 12")
        a("v_add_u32 v%d, s26, v10" % bTa[0])
        a("s_xor_b32 s26, s26, 4096")
        a("v_add_u32 v%d, s26, v10" % bTb[0])
        a("v_xor_b32 v%d, 64, v%d" % (bTa[1], bTa[0]))
        a("v_xor_b32 v%d, 64, v%d" % (bTb[1], bTb[0]))
        a("v_lshrrev_b32 v10, 2, v2")
        a("v_mul_u32_u24 v10, %d, v10" % FS)
        a("v_and_b32 v11, 3, v2")
        a("v_lshl_add_u32 v10, v11, 3, v10")
        a("v_add_u32 v10, %d, v10" % (RB + TREG))
        a("s_mul_i32 s26, s25, 160")
        a("v_add_u32 v%d, s26, v10" % bF)
        a("v_add_u32 v%d, 128, v10" % bFh)
        for r in range(ACC, ACC + 72): a("v_mov_b32 v%d, 0" % r)
        for r in range(CS, CS + 20): a("v_mov_b32 v%d, 0" % r)
        for r in range(ONE, ONE + 4): a("v_mov_b32 v%d, 0x3f803f80" % r)
    def mma_addr(slot):
        a("s_mov_b32 s27, %d" % (slot * SLOT))
        for d, s_ in ((vTa[0], bTa[0]), (vTb[0], bTb[0]), (vTa[1], bTa[1]), (vTb[1], bTb[1]), (vF, bF), (vFh, bFh)):
            a("v_add_u32 v%d, s27, v%d" % (d, s_))
    core = G.Core(a, ACC, FB[0], FB[1], FS, TREG, vTa, vTb, vF, vFh)
    trk = core.trk
    a("s_cmp_eq_u32 s98, 0")
    a("s_cbranch_scc1 %s_A0" % name)
    a("s_setprio 3")
    loader_setup()
    a("s_waitcnt lgkmcnt(0)")
    srds_main()
    vm = VmTracker(a)
    def issue(g, vmx):
        issueT(g); issueF(g); vmx.issue("S%d" % g, 9)
    issueT(0)
    loader_setup2()
    issueF(0); vm.issue("S0", 9)
    issue(1, vm); issue(2, vm); issue(3, vm)
    a("s_add_u32 s3, s3, 4"); stamp_setup(a, 1); stamp(a, 0); a("s_sub_u32 s3, s3, 4")
    mma_setup()
    RA = 96; XB = 112
    for r in range(RA, RA + 16): a("v_mov_b32 v%d, 0" % r)
    a("v_lshrrev_b32 v10, 4, v2")
    a("v_lshrrev_b32 v11, 1, v3")
    a("v_xor_b32 v10, v10, v11")
    a("v_lshlrev_b32 v10, 4, v10")
    a("v_lshl_add_u32 v10, v3, 7, v10")
    a("v_add_u32 v12, s84, v10")
    a("v_xor_b32 v13, 64, v12")
    def rs_rd(g):
        a("v_add_u32 v10, %d, v12" % ((g % R) * SLOT))
        a("v_add_u32 v11, %d, v13" % ((g % R) * SLOT))
        for h in range(2):
            for n in range(2):
                a("ds_read_b128 %s, v%d offset:%d" % (vr(XB + 8 * h + 4 * n), 10 + h, 2048 * n))
    def rs_do():
        for h in range(2):
            for n in range(2):
                x = XB + 8 * h + 4 * n
                a("v_mfma_f32_16x16x32_bf16 %s, %s, %s, %s" % (vr(RA + 4 * n), vr(ONE), vr(x), vr(RA + 4 * n)))
                a("v_mfma_f32_16x16x32_bf16 %s, %s, %s, %s" % (vr(RA + 8 + 4 * n), vr(x), vr(x), vr(RA + 8 + 4 * n)))
    def interleave(dma, comp, vmx=None):
        groups = []; cur = []
        for l in dma:
            cur.append(l)
            if "buffer_load" in l and not any("exec, 0xffffffff" in x for x in cur[-2:]):
                groups.append(cur); cur = []
            elif "exec, -1" in l:
                groups.append(cur); cur = []
        if cur: groups.append(cur)
        ns = max(1, len(groups))
        per = (len(comp) + ns - 1) // ns
        for g in groups:
            a.lines.extend(g)
            a.lines.extend(comp[:per]); comp = comp[per:]
        a.lines.extend(comp)
    vm.wait(["S0"])
    a("s_barrier")
    stamp(a, 1)
    rs_rd(0)
    vm.wait(["S1"])
    a("s_barrier")
    for k in range(9):
        a("s_waitcnt lgkmcnt(0)")
        dma = capture(lambda: (issueT(k + 3), issueF(k + 3))) if 1 <= k < 8 else []
        interleave(dma, capture(rs_do))
        if 1 <= k < 8: vm.issue("S%d" % (k + 3), 9)
        if k < 8:
            rs_rd(k + 1)
        else:
            a("s_nop 7")
            a("v_lshrrev_b32 v10, 4, v2")
            a("v_lshrrev_b32 v11, 2, v3")
            a("v_and_b32 v12, 3, v3")
            for n in range(2):
                G_ = RA + 8 + 4 * n
                for r in range(1, 4):
                    a("v_cmp_eq_u32 vcc, %d, v12" % r)
                    a("s_nop 1")
                    a("v_cndmask_b32 v%d, v%d, v%d, vcc" % (G_, G_, G_ + r))
            ML = 112
            for n in range(2):
                emit_ln_finish(a, RA + 4 * n, RA + 8 + 4 * n, 576, ML + 2 * n, ML + 2 * n + 1, 120)
                a("v_mov_b32 v%d, v%d" % (117 + 2 * n, ML + 2 * n + 1))
                a("v_sub_f32 v%d, 0, v%d" % (116 + 2 * n, ML + 2 * n))
            a("s_lshl_b32 s35, s3, 8")
            a("v_lshlrev_b32 v13, 3, v3")
            a("v_add_u32 v12, s35, v13")
            a("v_cmp_eq_u32 vcc, v10, v11")
            a("s_and_saveexec_b64 s[36:37], vcc")
            for n in range(2):
                a("ds_write_b64 v12, %s offset:%d" % (vr(116 + 2 * n, 2), RST + 128 * n))
            a("s_mov_b64 exec, s[36:37]")
            a("s_cmp_lg_u32 s23, 0")
            a("s_cbranch_scc1 %s_nost1" % name)
            a("s_lshl_b32 s35, s22, 7")
            a("s_lshl_b32 s36, s3, 5")
            a("s_add_u32 s35, s35, s36")
            a("s_lshl_b32 s35, s35, 3")
            a("s_add_u32 s35, s35, 0x%x" % STATS1)
            a("v_mov_b32 v11, 0x7ffffff0")
            a("v_cndmask_b32 v13, v11, v13, vcc")
            for n in range(2):
                a("buffer_store_dwordx2 %s, v13, s[12:15], s35 offen offset:%d" % (vr(ML + 2 * n, 2), 128 * n))
            a.label("%s_nost1" % name)
        if k < 8:
            vm.wait(["S%d" % (k + 2)])
            a("s_barrier")
    HO = lambda: None
    def ho_addr():
        a("s_lshr_b32 s36, s3, 1")
        a("s_mul_i32 s36, s36, %d" % (3 * SLOT))
        a("s_and_b32 s37, s3, 1")
        a("s_mul_i32 s37, s37, 12288")
        a("s_add_u32 s36, s36, s37")
        a("s_add_u32 s36, s36, %d" % RB)
        a("v_lshlrev_b32 v10, 4, v2")
        a("v_add_u32 v95, s36, v10")
    a("s_waitcnt lgkmcnt(0)")
    a("s_barrier")
    ho_addr()
    a("s_barrier")
    n_ = 0
    for ft in range(4):
        for tt in range(2):
            a("ds_read_b128 %s, v95 offset:%d" % (vr(core.accr(ft, tt)), 1024 * n_)); n_ += 1
    for ft in range(4):
        a("ds_read_b128 %s, v95 offset:%d" % (vr(CS + 4 * ft), 1024 * n_)); n_ += 1
    a("s_branch %s_g2" % name)
    a.label("%s_A0" % name)
    emit_code_prefetch(a, name)
    a("s_load_dwordx4 s[64:67], s[0:1], 8")
    a("s_load_dwordx2 s[76:77], s[0:1], 24")
    a("s_load_dwordx2 s[78:79], s[0:1], 64")
    mma_setup()
    loader_setup(); loader_setup2()
    a("s_waitcnt lgkmcnt(0)")
    srds_main()
    srd(a, 68, 66, 2048 * 576 * 2)
    a("s_mov_b32 s88, s64"); a("s_mov_b32 s89, s65")
    srd(a, 64, 88, 2048 * 576 * 2)
    srd(a, 72, 76, 576 * 8)
    stamp_setup(a, 1); stamp(a, 0)
    def gran_addr():
        a("v_lshrrev_b32 v10, 4, v2")
        a("s_lshl_b32 s36, s25, 1")
        a("v_add_u32 v11, s36, v10")
        a("v_and_b32 v11, 3, v11")
        a("v_lshl_add_u32 v11, v11, 4, v3")
        a("v_lshlrev_b32 v94, 8, v11")
        a("s_lshl_b32 s59, s22, 7")
        a("s_lshl_b32 s36, s24, 6")
        a("s_add_u32 s59, s59, s36")
        a("s_lshl_b32 s59, s59, 8")
        a("s_add_u32 s59, s59, 0x%x" % STATS2)
        a("s_lshl_b32 s36, s23, 1")
        a("s_add_u32 s36, s36, s25")
        a("s_lshl_b32 s36, s36, 3")
        a("s_add_u32 s58, s36, s59")
    gran_addr()
    a("v_mov_b32 v12, 0"); a("v_mov_b32 v13, 0x80000000")
    a("buffer_store_dwordx2 v[12:13], v94, s[12:15], s58 offen sc1")
    a("s_lshl_b32 s36, s22, 4")
    a("s_add_u32 s36, s36, s23")
    a("s_lshl_b32 s36, s36, 8")
    a("s_add_u32 s97, s36, 0x%x" % ZFLG)
    a("v_mov_b32 v10, %d" % LC)
    a("v_mov_b32 v12, 0"); a("v_mov_b32 v13, 0")
    a("s_mov_b64 exec, 1")
    a("buffer_store_dword v12, v12, s[12:15], s97 offen sc1")
    a("s_mov_b64 exec, -1")
    a("ds_write_b64 v10, v[12:13]")
    a("ds_write_b64 v10, v[12:13] offset:8")
    mma_addr(0)
    a("s_mov_b32 s33, 0")
    a("s_waitcnt lgkmcnt(0)")
    a("s_barrier")
    stamp(a, 1)
    a.label("%s_mma" % name)
    core.prime(0, core.reads(0, 0))
    trk.drain()
    nocs = [False]
    def mfmas(buf):
        L = []
        for ft in range(5):
            A = core.F(buf, ft)
            for tt in range(4 if ft < 4 else 2):
                c = core.accr(ft, tt); B = core.T(buf, tt)
                L.append(("v_mfma_f32_16x16x32_bf16 %s, %s, %s, %s" % (vr(c), vr(A), vr(B), vr(c)), list(range(A, A + 4)) + list(range(B, B + 4))))
            if not nocs[0]: L.append(("v_mfma_f32_16x16x32_bf16 %s, %s, %s, %s" % (vr(CS + 4 * ft), vr(A), vr(ONE), vr(CS + 4 * ft)), list(range(A, A + 4))))
        return L
    def phase(buf, pend):
        for (m, regs) in mfmas(buf):
            trk.need(regs)
            a(m)
            while pend:
                k, t = pend.pop(0)
                if k == "x":
                    a(t)
                    if t.startswith("s_"): continue
                else:
                    a(t[0]); trk.issue(t[1])
                break
        for k, t in pend:
            if k == "x": a(t)
            else: a(t[0]); trk.issue(t[1])
    def iteration(vw=True):
        if vw: a("s_waitcnt vmcnt(0)")
        a("s_barrier")
        rd = [("r", t) for t in core.reads(1, 1)]
        upd = ["s_add_u32 s27, s27, %d" % SLOT, "s_cmp_eq_u32 s27, %d" % (R * SLOT), "s_cselect_b32 s27, 0, s27"]
        tail = ["v_add_u32 v%d, s27, v%d" % (d, s_) for d, s_ in ((vTa[0], bTa[0]), (vF, bF), (vTb[0], bTb[0]), (vFh, bFh))]
        phase(0, rd[:1] + [("x", u) for u in upd] + rd[1:] + [("x", u) for u in tail])
        rd = [("r", t) for t in core.reads(0, 0)]
        tail = ["v_add_u32 v%d, s27, v%d" % (d, s_) for d, s_ in ((vTa[1], bTa[1]), (vTb[1], bTb[1]))] + ["s_add_u32 s33, s33, 1"]
        phase(1, rd + [("x", u) for u in tail])
    a.label("%s_cloop" % name)
    lb = len(a.lines); iteration(); st = copy.deepcopy(trk.out); del a.lines[lb:]; trk.out = copy.deepcopy(st)
    iteration()
    assert [sorted(x) for x in trk.out] == [sorted(x) for x in st]
    a("s_cmp_lt_u32 s33, 9")
    a("s_cbranch_scc1 %s_cloop" % name)
    trk.drain()
    stamp(a, 2)
    MR = 100; T = 72; ZP = 16
    a("s_cmp_eq_u32 s98, 1")
    a("s_cbranch_scc1 %s_Btail" % name)
    a("s_waitcnt vmcnt(0)")
    a("s_barrier")
    a("s_cmp_lg_u32 s3, 0")
    a("s_cbranch_scc1 %s_nosig" % name)
    a("v_mov_b32 v10, 1")
    a("s_lshl_b32 s36, s22, 2")
    a("v_mov_b32 v11, s36")
    a("s_mov_b64 exec, 1")
    a("buffer_atomic_add v10, v11, s[60:63], 0 offen sc1")
    a("s_mov_b64 exec, -1")
    a.label("%s_nosig" % name)
    ho_addr()
    n_ = 0
    for ft in range(4):
        for tt in range(2):
            a("ds_write_b128 v95, %s offset:%d" % (vr(core.accr(ft, tt + 2)), 1024 * n_)); n_ += 1
    for ft in range(4):
        a("ds_write_b128 v95, %s offset:%d" % (vr(CS + 4 * ft), 1024 * n_)); n_ += 1
    a("s_waitcnt lgkmcnt(0)")
    a("s_barrier")
    a.label("%s_g2" % name)
    gelu_consts(a)
    a("s_xor_b32 s52, s98, s25")
    a("s_lshl_b32 s36, s24, 9")
    a("s_lshl_b32 s37, s52, 8")
    a("s_add_u32 s38, s36, s37")
    a("v_lshlrev_b32 v10, 3, v3")
    a("v_add_u32 v11, s38, v10")
    a("ds_read_b64 %s, v11 offset:%d" % (vr(MR, 2), RST))
    a("ds_read_b64 %s, v11 offset:%d" % (vr(MR + 2, 2), RST + 128))
    for r_ in range(108, 112): a("v_mov_b32 v%d, 0" % r_)
    a("s_waitcnt lgkmcnt(0)")
    ZPo = lambda n: 16 + 2 * n
    def dots2(lst):
        for d in range(2):
            for (ft, tt) in lst:
                p = ZPo(2 * ft + tt) + d
                a("v_dot2_f32_bf16 v%d, v%d, v%d, v%d" % (108 + 2 * tt, p, ONE, 108 + 2 * tt))
                a("v_dot2_f32_bf16 v%d, v%d, v%d, v%d" % (109 + 2 * tt, p, p, 109 + 2 * tt))
    a("s_cmp_lg_u32 s98, 0")
    a("s_cbranch_scc1 %s_nohalf" % name)
    lst = [(4, 0), (4, 1)]
    emit_fold_gelu(a, [(core.accr(ft, tt), CS + 4 * ft, MR + 2 * tt, ZPo(2 * ft + tt)) for ft, tt in lst], T)
    dots2(lst)
    a.label("%s_nohalf" % name)
    for f0 in (0, 2):
        lst = [(ft, tt) for ft in (f0, f0 + 1) for tt in range(2)]
        emit_fold_gelu(a, [(core.accr(ft, tt), CS + 4 * ft, MR + 2 * tt, ZPo(2 * ft + tt)) for ft, tt in lst], T)
        dots2(lst)
    a("s_nop 2")
    emit_xg_reduce(a, [108, 110, 109, 111], 72)
    a("s_lshl_b32 s40, s22, 7")
    a("s_lshl_b32 s36, s24, 6")
    a("s_add_u32 s40, s40, s36")
    a("s_lshl_b32 s40, s40, 8")
    a("s_add_u32 s59, s40, 0x%x" % STATS2)
    a("s_lshl_b32 s36, s52, 13")
    a("s_add_u32 s40, s59, s36")
    a("s_lshl_b32 s36, s23, 1")
    a("s_add_u32 s36, s36, s25")
    a("s_lshl_b32 s36, s36, 3")
    a("s_add_u32 s40, s40, s36")
    a("v_lshrrev_b32 v10, 4, v2")
    a("v_lshlrev_b32 v11, 8, v2")
    a("v_cmp_gt_u32 vcc, 32, v2")
    a("v_mov_b32 v12, 0x7ffffff0")
    a("v_cmp_eq_u32 s[36:37], 1, v10")
    a("v_cndmask_b32 v11, v12, v11, vcc")
    a("s_nop 0")
    a("v_cndmask_b32 v108, v108, v110, s[36:37]")
    a("v_cndmask_b32 v109, v109, v111, s[36:37]")
    a("v_and_b32 v109, 0x7fffffff, v109")
    a("buffer_store_dwordx2 v[108:109], v11, s[12:15], s40 offen sc1")
    a("s_cmp_eq_u32 s98, 0")
    a("s_cbranch_scc1 %s_A1" % name)
    for q in range(4):
        a("ds_write_b128 v95, %s offset:%d" % (vr(16 + 4 * q), 1024 * q))
    for r in range(ACC, ACC + 72): a("v_mov_b32 v%d, 0" % r)
    for r in range(CS, CS + 20): a("v_mov_b32 v%d, 0" % r)
    mma_addr(9 % R)
    a("s_mov_b32 s33, 0")
    a("s_setprio 0")
    a("s_waitcnt lgkmcnt(0)")
    stamp(a, 9)
    a("s_barrier")
    a("s_branch %s_mma" % name)
    def epi_in():
        gelu_consts(a)
        a("s_lshl_b32 s36, s24, 9")
        a("s_lshl_b32 s37, s25, 8")
        a("s_add_u32 s38, s36, s37")
        a("s_xor_b32 s37, s37, 256")
        a("s_add_u32 s39, s36, s37")
        a("v_lshlrev_b32 v10, 3, v3")
        a("v_add_u32 v11, s38, v10")
        a("ds_read_b64 %s, v11 offset:%d" % (vr(MR, 2), RST))
        a("ds_read_b64 %s, v11 offset:%d" % (vr(MR + 2, 2), RST + 128))
        a("v_add_u32 v11, s39, v10")
        a("ds_read_b64 %s, v11 offset:%d" % (vr(MR + 4, 2), RST))
        a("ds_read_b64 %s, v11 offset:%d" % (vr(MR + 6, 2), RST + 128))
        a("s_waitcnt lgkmcnt(0)")
    S = [108, 110, 52, 54]; Q = [109, 111, 53, 55]
    def gelu_ft(ft, stats):
        tts = range(4 if ft < 4 else 2)
        emit_fold_gelu(a, [(core.accr(ft, tt), CS + 4 * ft, MR + 2 * tt, ZP + 2 * tidx(ft, tt)) for tt in tts], T)
        if stats:
            for d in range(2):
                for tt in tts:
                    p = ZP + 2 * tidx(ft, tt) + d
                    a("v_dot2_f32_bf16 v%d, v%d, v%d, v%d" % (S[tt], p, ONE, S[tt]))
                    a("v_dot2_f32_bf16 v%d, v%d, v%d, v%d" % (Q[tt], p, p, Q[tt]))
    a.label("%s_Btail" % name)
    a("v_mov_b32 v10, %d" % (LC + 12))
    a("v_mov_b32 v11, 1")
    a("s_mov_b64 exec, 1")
    a("ds_add_u32 v10, v11")
    a("s_mov_b64 exec, -1")
    a("s_load_dwordx2 s[94:95], s[0:1], 80")
    a("s_load_dwordx2 s[92:93], s[0:1], 72")
    epi_in()
    srd(a, 76, 94, 2304 * 576 * 2)
    srd(a, 28, 92, 2048 * 2)
    a("v_and_b32 v0, 255, v0")
    for ft in range(5): gelu_ft(ft, False)
    Z1R = 200; BI = 236
    for r_ in range(36): a("v_mov_b32 v%d, v%d" % (Z1R + r_, ZP + r_))
    stamp(a, 3)
    a("s_mov_b32 s42, s2")
    emit_wot_loads(a, 100, 112, 720, 3)
    a("s_lshl_b32 s36, s22, 7")
    a("s_lshl_b32 s37, s24, 6")
    a("s_add_u32 s36, s36, s37")
    a("v_lshlrev_b32 v11, 1, v3")
    a("s_lshl_b32 s37, s25, 6")
    a("s_lshl_b32 s38, s36, 1")
    a("s_add_u32 s39, s38, s37")
    a("s_xor_b32 s37, s37, 64")
    a("s_add_u32 s36, s38, s37")
    a("buffer_load_ushort v96, v11, s[28:31], s39 offen")
    a("buffer_load_ushort v97, v11, s[28:31], s39 offen offset:32")
    a("buffer_load_ushort v98, v11, s[28:31], s36 offen")
    a("buffer_load_ushort v99, v11, s[28:31], s36 offen offset:32")
    for r in range(ACC, ACC + 72): a("v_mov_b32 v%d, 0" % r)
    mma_addr(0)
    a("s_mov_b32 s33, 0")
    stamp(a, 4)
    a("s_barrier")
    stamp(a, 5)
    core.prime(0, core.reads(0, 0))
    trk.drain()
    nocs[0] = True
    a.label("%s_gloop" % name)
    lb = len(a.lines); iteration(False); st = copy.deepcopy(trk.out); del a.lines[lb:]; trk.out = copy.deepcopy(st)
    iteration(False)
    assert [sorted(x) for x in trk.out] == [sorted(x) for x in st]
    a("s_cmp_lg_u32 s33, 3")
    a("s_cbranch_scc1 %s_ghk" % name)
    a("s_waitcnt vmcnt(0)")
    for n in range(3):
        a("buffer_store_dwordx4 %s, v%d, s[12:15], s40 offen" % (vr(100 + 4 * n), 112 + n))
    for tt in range(4): a("v_lshlrev_b32 v%d, 16, v%d" % (BI + 2 * tt, 96 + tt))
    a.label("%s_ghk" % name)
    a("s_cmp_lt_u32 s33, 32")
    a("s_cbranch_scc1 %s_gloop" % name)
    trk.drain()
    stamp(a, 6)
    G3.emit_k2_epilogue(a, core, Z1R, BI)
    stamp(a, 7)
    G.stamp_rt(a, 1)
    a("s_branch %s_end" % name)
    a.label("%s_A1" % name)
    a("s_setprio 2")
    a("s_load_dwordx4 s[88:91], s[0:1], 32")
    vmA = VmTracker(a)
    stamp(a, 9)
    a("s_barrier")
    for q in range(4):
        a("ds_read_b128 %s, v95 offset:%d" % (vr(36 + 4 * q), 1024 * q))
    def zreg(ft, tt):
        return (16 + 2 * (2 * ft + tt)) if tt < 2 else (36 + 2 * (2 * ft + tt - 2))
    GB = [128, 144, 160, 176]
    def gather():
        for tt in range(4):
            for q in range(4):
                a("buffer_load_dwordx4 %s, v4, s[12:15], s%d offen offset:%d sc1" % (vr(GB[tt] + 4 * q), (52, 42, 53, 43)[tt], 16 * q))
    def st_finish():
        for tt in range(4):
            b = GB[tt]
            for st_ in (8, 4, 2):
                for q in range(0, st_, 2):
                    a("v_pk_add_f32 %s, %s, %s" % (vr(b + q, 2), vr(b + q, 2), vr(b + q + st_, 2)))
        emit_xg_reduce(a, [GB[tt] + e for tt in range(4) for e in range(2)], 72)
        for tt in range(4):
            b = GB[tt]
            emit_ln_finish(a, b, b + 1, 2304, b + 2, MR + 2 * tt, b + 4)
            a("v_mul_f32 v%d, -v%d, v%d" % (MR + 2 * tt + 1, b + 2, MR + 2 * tt))
    def z_addr():
        a("v_lshrrev_b32 v10, 4, v2")
        a("v_lshrrev_b32 v11, 2, v2"); a("v_and_b32 v11, 1, v11"); a("v_lshlrev_b32 v11, 4, v11")
        a("v_lshrrev_b32 v5, 3, v2"); a("v_and_b32 v5, 1, v5"); a("v_lshl_add_u32 v11, v5, 2, v11")
        a("v_and_b32 v5, 3, v2"); a("v_add_u32 v11, v11, v5")
        a("v_mul_u32_u24 v11, 288, v11")
        a("v_lshrrev_b32 v5, 1, v10"); a("v_lshl_add_u32 v11, v5, 4, v11")
        a("v_and_b32 v5, 1, v10")
        a("v_lshl_add_u32 v6, v5, 5, v11")
        a("v_mul_u32_u24 v5, 2304, v5")
        a("v_add_u32 v9, v11, v5")
        a("s_lshl_b32 s33, s23, 5")
        a("s_lshl_b32 s36, s22, 1")
        a("s_add_u32 s33, s33, s36")
        a("s_add_u32 s33, s33, s24")
        a("s_mul_i32 s33, s33, 18432")
        if ZIMG: a("s_add_u32 s33, s33, 0x%x" % ZIMG)
        a("s_mul_i32 s36, s25, 9216")
        a("s_add_u32 s37, s33, s36")
        a("s_xor_b32 s36, s36, 9216")
        a("s_add_u32 s38, s33, s36")
        a("s_add_u32 s39, s37, 128")
        a("s_mul_i32 s36, s25, 160")
        a("s_add_u32 s37, s37, s36")
        a("s_add_u32 s38, s38, s36")
    def norm_pair(tA, tB, O):
        for q, (ft, tt) in enumerate((tA, tB)):
            for d in range(2):
                z = zreg(ft, tt) + d; t_ = T + 4 * q + 2 * d
                a("v_lshlrev_b32 v%d, 16, v%d" % (t_, z))
                a("v_and_b32 v%d, 0xffff0000, v%d" % (t_ + 1, z))
        for q, (ft, tt) in enumerate((tA, tB)):
            for d in range(2):
                t_ = T + 4 * q + 2 * d
                a("v_pk_fma_f32 %s, %s, %s, %s op_sel:[0,0,1] op_sel_hi:[1,0,1]" % (vr(t_, 2), vr(t_, 2), vr(MR + 2 * tt, 2), vr(MR + 2 * tt, 2)))
        for q in range(2):
            for d in range(2):
                t_ = T + 4 * q + 2 * d
                a("v_cvt_pk_bf16_f32 v%d, v%d, v%d" % (O + 2 * q + d, t_, t_ + 1))
        a("s_nop 1")
        a("v_permlane16_swap_b32 v%d, v%d" % (O, O + 2))
        a("v_permlane16_swap_b32 v%d, v%d" % (O + 1, O + 3))
        a("s_nop 0")
    def zstore(idx):
        O = 216 + 4 * idx
        if idx < 8:
            pr, tt = idx >> 2, idx & 3
            norm_pair((2 * pr, tt), (2 * pr + 1, tt), O)
            a("buffer_store_dwordx4 %s, v6, s[12:15], s%d offen offset:%d sc1" % (vr(O), 37 if tt < 2 else 38, (tt & 1) * 2304 + 64 * pr))
        else:
            norm_pair((4, 0), (4, 1), O)
            a("buffer_store_dwordx4 %s, v9, s[12:15], s39 offen sc1" % vr(O))
    def dmas(gs):
        out = []
        for g in gs: out += capture(lambda: (issueT(g), issueF(g)))
        return out
    for k in range(9, 18):
        if k == 9: a("s_waitcnt lgkmcnt(0)")
        a("s_barrier")
        gs = [11, 12] if k == 9 else ([k + 3] if k + 3 < 18 else [])
        if k == 9:
            a.lines.extend(dmas(gs))
            for g in gs: vmA.issue("S%d" % g, 9)
            a("s_lshl_b32 s36, s22, 2")
            a("v_mov_b32 v199, s36")
            a("buffer_load_dword v198, v199, s[60:63], 0 offen sc1"); vmA.issue("cnt", 1)
            a("v_lshrrev_b32 v10, 4, v2")
            a("v_lshlrev_b32 v4, 8, v3")
            a("v_lshl_add_u32 v4, v10, 6, v4")
            a("s_lshl_b32 s33, s25, 13")
            a("s_add_u32 s52, s59, s33")
            a("s_xor_b32 s33, s33, 8192")
            a("s_add_u32 s53, s59, s33")
            a("s_add_u32 s42, s52, 4096")
            a("s_add_u32 s43, s53, 4096")
        elif k == 10:
            a.lines.extend(dmas(gs)); vmA.issue("S13", 9)
            z_addr()
        elif k == 11:
            vmA.wait(["cnt"])
            gather(); vmA.issue("g", 16)
            a.lines.extend(dmas(gs)); vmA.issue("S14", 9)
        elif k == 12:
            a.lines.extend(dmas(gs)); vmA.issue("S15", 9)
        elif k == 13:
            a.lines.extend(dmas(gs)); vmA.issue("S16", 9)
            vmA.wait(["g"])
            a("s_mov_b32 s40, 0")
            a.label("%s_chk" % name)
            a("v_subrev_u32 v11, 16, v198")
            for tt in range(4):
                for r in range(GB[tt] + 1, GB[tt] + 16, 4):
                    a("v_or3_b32 v11, v11, v%d, v%d" % (r, r + 2))
            a("v_cmp_gt_i32 vcc, 0, v11")
            a("s_add_u32 s40, s40, 1")
            a("s_cmp_gt_u32 s40, %d" % SPIN_MAX)
            a("s_cbranch_scc1 %s_ok" % name)
            a("s_cbranch_vccz %s_ok" % name)
            a("s_sleep 16")
            a("buffer_load_dword v198, v199, s[60:63], 0 offen sc1")
            a("s_waitcnt vmcnt(0)")
            gather()
            a("s_waitcnt vmcnt(0)")
            a("s_branch %s_chk" % name)
            a.label("%s_ok" % name)
            stamp(a, 4)
            st_finish()
        elif k == 14:
            for i_ in range(3): zstore(i_)
            vmA.issue("z", 3)
            a.lines.extend(dmas(gs)); vmA.issue("S17", 9)
        elif k == 15:
            for i_ in range(3, 6): zstore(i_)
            vmA.issue("z", 3)
        elif k == 16:
            for i_ in range(6, 9): zstore(i_)
            vmA.issue("z", 3)
            stamp(a, 5)
            a("s_mov_b32 s41, s2")
            emit_kv_loads(a, 128, 140, 148, 152, 153)
            a("s_cmp_ge_u32 s2, 32")
            a("s_cbranch_scc1 %s_kvp" % name)
            a("s_add_u32 s41, s2, 256")
            emit_kv_loads(a, 156, 168, 176, 180, 181)
            a.label("%s_kvp" % name)
        if k == 12:
            srd(a, 92, 78, 2048 * 2048 * 2)
            a("v_lshrrev_b32 v10, 4, v2")
            a("v_lshlrev_b32 v10, 12, v10")
            a("v_lshl_add_u32 v10, v3, 4, v10")
            a("s_lshl_b32 s40, s22, 7")
            a("s_lshl_b32 s36, s3, 5")
            a("s_add_u32 s40, s40, s36")
            a("s_lshl_b32 s40, s40, 12")
            a("s_lshl_b32 s36, s23, 8")
            a("s_add_u32 s40, s40, s36")
            for n in range(8):
                a("buffer_load_dwordx4 v[200:203], v10, s[92:95], s40 offen")
                if n < 7: a("s_add_u32 s40, s40, 16384")
            vmA.issue("wp", 8)
        if 11 <= k + 2 < 18 and k + 2 != 10:
            vmA.wait(["S%d" % (k + 2)])
    stamp(a, 3)
    a("s_setprio 3")
    srd(a, 8, 78, 2048 * 2048 * 2)
    a("v_lshrrev_b32 v3, 3, v2")
    a("s_lshl_b32 s24, s3, 5")
    a("v_add_u32 v3, s24, v3")
    a("v_and_b32 v4, 7, v2")
    a("v_lshrrev_b32 v6, 4, v2")
    a("v_xor_b32 v6, v6, v4")
    a("v_lshlrev_b32 v6, 4, v6")
    a("v_lshl_add_u32 v10, v3, 12, v6")
    a("v_xor_b32 v11, 64, v10")
    a("v_add_u32 v11, %d, v11" % (32768 - 1024))
    a("v_add_u32 v12, %d, v10" % (2 * (32768 - 1024)))
    a("v_add_u32 v13, %d, v11" % (2 * (32768 - 1024)))
    a("v_lshlrev_b32 v14, 4, v2")
    a("s_lshl_b32 s26, s22, 19")
    a("s_mul_i32 s27, s23, %d" % (32 * 18432))
    a("s_lshl_b32 s24, s3, 12")
    a("s_add_u32 s27, s27, s24")
    if ZIMG: a("s_add_u32 s27, s27, 0x%x" % ZIMG)
    a("s_lshl_b32 s25, s3, 9")
    a("s_sub_u32 s32, s25, s24")
    a("s_add_u32 s32, s32, 16384")
    a("s_add_u32 s24, s24, %d" % RB)
    a("s_waitcnt vmcnt(20) lgkmcnt(0)")
    a("v_mov_b32 v26, %d" % LC)
    a("v_mov_b32 v27, 1")
    a("s_mov_b64 exec, 1")
    a("ds_add_rtn_u32 v28, v26, v27")
    a("s_waitcnt lgkmcnt(0)")
    a("v_readfirstlane_b32 s36, v28")
    a("s_cmp_lg_u32 s36, 3")
    a("s_cbranch_scc1 %s_nozs" % name)
    a("v_mov_b32 v28, 0")
    a("buffer_store_dword v27, v28, s[12:15], s97 offen sc1")
    a.label("%s_nozs" % name)
    a("s_mov_b64 exec, -1")
    stamp(a, 7)
    srd(a, 16, 88, 576 * 2048 * 2)
    srd(a, 84, 90, 576 * 2)
    a("s_mov_b32 s34, 0")
    a.label("%s_wb" % name)
    a("ds_read_b32 v27, v26 offset:12")
    a("s_add_u32 s34, s34, 1")
    a("s_waitcnt lgkmcnt(0)")
    a("v_readfirstlane_b32 s36, v27")
    a("s_cmp_gt_u32 s34, %d" % (SPIN_MAX * 20))
    a("s_cbranch_scc1 %s_wbx" % name)
    a("s_cmp_ge_u32 s36, 4")
    a("s_cbranch_scc1 %s_wbx" % name)
    a("s_sleep 2")
    a("s_branch %s_wb" % name)
    a.label("%s_wbx" % name)
    for g in range(4):
        a("s_add_u32 s35, s24, %d" % (g * SLOT))
        a("s_mov_b32 m0, s35")
        a("s_add_u32 s36, s26, %d" % (128 * g))
        for n in range(4):
            a("buffer_load_dwordx4 v%d, s[8:11], s36 offen offset:%d lds" % (10 + n, n * 1024))
    a("v_mov_b32 v250, v12"); a("v_mov_b32 v251, v13"); a("v_mov_b32 v252, v26")
    a("s_mov_b32 s39, 0x%x" % KVT)
    a("s_waitcnt vmcnt(16)")
    for n in range(11): a("v_mov_b32 v%d, v%d" % (16 + n, 128 + n))
    for n in range(8): a("v_mov_b32 v%d, v%d" % (32 + n, 140 + n))
    for n in range(4): a("v_mov_b32 v%d, v%d" % (44 + n, 148 + n))
    a("v_mov_b32 v56, v152"); a("v_mov_b32 v57, v153")
    a.label("%s_kvb" % name)
    emit_kv_compute(a, wait=False, store=False)
    a("buffer_store_dwordx4 v[120:123], v12, s[12:15], s39 offen sc1")
    a("buffer_store_dwordx4 v[124:127], v13, s[12:15], s39 offen sc1")
    a("s_cmp_lt_u32 s41, 256")
    a("s_cbranch_scc1 %s_kvbd" % name)
    a("s_mov_b32 s41, 0")
    for n in range(11): a("v_mov_b32 v%d, v%d" % (16 + n, 156 + n))
    for n in range(8): a("v_mov_b32 v%d, v%d" % (32 + n, 168 + n))
    for n in range(4): a("v_mov_b32 v%d, v%d" % (44 + n, 176 + n))
    a("v_mov_b32 v56, v180"); a("v_mov_b32 v57, v181")
    a("s_branch %s_kvb" % name)
    a.label("%s_kvbd" % name)
    a("s_nop 1")
    a("v_mov_b32 v12, v250"); a("v_mov_b32 v13, v251"); a("v_mov_b32 v26, v252")
    a("s_mov_b32 s34, 0")
    a("s_cmp_lg_u32 s3, 0")
    a("s_cbranch_scc1 %s_pl" % name)
    a("v_and_b32 v28, 15, v2")
    a("v_lshlrev_b32 v30, 2, v28")
    a("v_lshlrev_b32 v28, 12, v28")
    a("s_lshl_b32 s52, s23, 8")
    a("s_add_u32 s52, s52, 0x%x" % ZFLG)
    a.label("%s_pz0" % name)
    a("buffer_load_dword v31, v30, s[60:63], 0 offen sc1")
    a("s_add_u32 s34, s34, 1")
    a("s_waitcnt vmcnt(0)")
    a("v_cmp_gt_u32 vcc, 16, v31")
    a("s_cmp_gt_u32 s34, %d" % SPIN_MAX)
    a("s_cbranch_scc1 %s_pz" % name)
    a("s_cbranch_vccz %s_pz" % name)
    a("s_sleep 32")
    a("s_branch %s_pz0" % name)
    a.label("%s_pz" % name)
    a("buffer_load_dword v29, v28, s[12:15], s52 offen sc1")
    a("s_add_u32 s34, s34, 1")
    a("s_waitcnt vmcnt(0)")
    a("v_cmp_ne_u32 vcc, 1, v29")
    a("s_cmp_gt_u32 s34, %d" % SPIN_MAX)
    a("s_cbranch_scc1 %s_pzx" % name)
    a("s_cbranch_vccz %s_pzx" % name)
    a("s_sleep 8")
    a("s_branch %s_pz" % name)
    a.label("%s_pzx" % name)
    a("v_mov_b32 v27, 1")
    a("ds_write_b32 v26, v27 offset:4")
    a("s_branch %s_pgo" % name)
    a.label("%s_pl" % name)
    a("ds_read_b32 v27, v26 offset:4")
    a("s_add_u32 s34, s34, 1")
    a("s_waitcnt lgkmcnt(0)")
    a("v_readfirstlane_b32 s36, v27")
    a("s_cmp_gt_u32 s34, %d" % (SPIN_MAX * 20))
    a("s_cbranch_scc1 %s_pgo" % name)
    a("s_cmp_lg_u32 s36, 0")
    a("s_cbranch_scc1 %s_pgo" % name)
    a("s_sleep 2")
    a("s_branch %s_pl" % name)
    a.label("%s_pgo" % name)
    stamp(a, 8)
    for g in range(4):
        a("s_add_u32 s35, s24, %d" % (g * SLOT + TREG))
        a("s_mov_b32 m0, s35")
        a("s_add_u32 s36, s27, %d" % (18432 * g))
        a("s_add_u32 s37, s36, s32")
        for n in range(4):
            a("buffer_load_dwordx4 v14, s[12:15], s36 offen offset:%d sc1 lds" % (n * 1024))
        a("s_add_u32 s35, s35, s32")
        a("s_mov_b32 m0, s35")
        a("s_mov_b64 exec, 0xffffffff")
        a("buffer_load_dwordx4 v14, s[12:15], s37 offen sc1 lds")
        a("s_mov_b64 exec, -1")
    a("s_add_u32 s26, s26, 512")
    a("s_add_u32 s27, s27, %d" % (4 * 18432))
    a("s_mov_b32 s33, 0")
    a("s_lshl_b32 s43, s2, 2")
    a("s_add_u32 s43, s43, s3")
    a("s_and_b32 s53, s43, 1")
    a("s_sub_u32 s36, s43, 448")
    a("s_lshr_b32 s37, s43, 1")
    a("s_cmp_ge_u32 s43, 896")
    a("s_cselect_b32 s43, s36, s37")
    a("s_cselect_b32 s53, 2, s53")
    a("s_waitcnt vmcnt(15)")
    a("s_barrier")
    a("s_waitcnt vmcnt(10)")
    a("s_barrier")
    a("s_waitcnt vmcnt(5)")
    a("s_barrier")
    a("s_mov_b32 s34, 4")
    def issue2():
        a("s_add_u32 s35, s33, s24")
        a("s_mov_b32 m0, s35")
        a("s_add_u32 s36, s35, %d" % TREG)
        for n in range(4):
            a("buffer_load_dwordx4 v%d, s[8:11], s26 offen offset:%d lds" % (10 + n, n * 1024))
        a("s_mov_b32 m0, s36")
        a("s_add_u32 s37, s27, s32")
        for n in range(4):
            a("buffer_load_dwordx4 v14, s[12:15], s27 offen offset:%d sc1 lds" % (n * 1024))
        a("s_add_u32 s36, s36, s32")
        a("s_mov_b32 m0, s36")
        a("s_mov_b64 exec, 0xffffffff")
        a("buffer_load_dwordx4 v14, s[12:15], s37 offen sc1 lds")
        a("s_mov_b64 exec, -1")
        a("s_add_u32 s26, s26, 128")
        a("s_add_u32 s27, s27, 18432")
        a("s_add_u32 s33, s33, %d" % SLOT)
        a("s_cmp_eq_u32 s33, %d" % (R * SLOT))
        a("s_cselect_b32 s33, 0, s33")
    a.label("%s_lloop" % name)
    issue2()
    a("s_cmp_eq_u32 s34, 8")
    a("s_cbranch_scc1 %s_hk0" % name)
    a("s_cmp_eq_u32 s34, 18")
    a("s_cbranch_scc1 %s_hk1" % name)
    a("s_cmp_eq_u32 s34, 21")
    a("s_cbranch_scc1 %s_hk2" % name)
    a("s_waitcnt vmcnt(9)")
    a.label("%s_lcont" % name)
    a("s_barrier")
    a("s_add_u32 s34, s34, 1")
    a("s_cmp_lt_u32 s34, 32")
    a("s_cbranch_scc1 %s_lloop" % name)
    a("s_branch %s_ldone" % name)
    a.label("%s_hk0" % name)
    a("v_mov_b32 v27, 1")
    a("s_mov_b64 exec, 1")
    a("ds_add_rtn_u32 v28, v26, v27 offset:8")
    a("s_waitcnt lgkmcnt(0)")
    a("v_readfirstlane_b32 s36, v28")
    a("s_cmp_lg_u32 s36, 3")
    a("s_cbranch_scc1 %s_hk0x" % name)
    a("s_and_b32 s36, s2, 15")
    a("s_lshl_b32 s36, s36, 2")
    a("s_add_u32 s36, s36, 128")
    a("v_mov_b32 v28, s36")
    a("buffer_atomic_add v27, v28, s[60:63], 0 offen sc1")
    a.label("%s_hk0x" % name)
    a("s_mov_b64 exec, -1")
    a("s_waitcnt vmcnt(9)")
    a("s_branch %s_lcont" % name)
    a.label("%s_hk1" % name)
    a("v_and_b32 v28, 15, v2")
    a("v_lshlrev_b32 v28, 2, v28")
    a("buffer_load_dword v29, v28, s[60:63], 0 offen offset:128 sc1")
    a("s_waitcnt vmcnt(10)")
    a("s_branch %s_lcont" % name)
    a.label("%s_hk2" % name)
    a("s_mov_b32 s52, 0")
    a.label("%s_hk2l" % name)
    a("v_cmp_gt_u32 vcc, 16, v29")
    a("s_add_u32 s52, s52, 1")
    a("s_cmp_gt_u32 s52, %d" % SPIN_MAX)
    a("s_cbranch_scc1 %s_hk2g" % name)
    a("s_cbranch_vccz %s_hk2g" % name)
    a("s_sleep 16")
    a("buffer_load_dword v29, v28, s[60:63], 0 offen offset:128 sc1")
    a("s_waitcnt vmcnt(0)")
    a("s_branch %s_hk2l" % name)
    a.label("%s_hk2g" % name)
    nconv = emit_conv_loads(a, " sc1")
    a("s_waitcnt vmcnt(%d)" % (9 + nconv))
    a("s_branch %s_lcont" % name)
    a.label("%s_ldone" % name)
    a("s_waitcnt vmcnt(0)")
    a("s_barrier")
    a("s_mov_b32 s26, s53")
    a("s_and_b32 s27, s3, 1")
    a("s_mul_i32 s27, s27, %d" % CJ_SIZE)
    a("s_lshr_b32 s36, s3, 1")
    a("s_mul_i32 s36, s36, %d" % SLOT)
    a("s_add_u32 s27, s27, s36")
    a("s_add_u32 s27, s27, %d" % RB)
    def mid():
        a("s_barrier")
        a("s_setprio 0")
    sv = set(DBG); DBG.discard("stamp")
    emit_conv_job(a, name, mid)
    DBG.update(sv)
    G.stamp_rt(a, 1)
    a.label("%s_end" % name)
    a("s_endpgm")
    return a.text(), kernel_desc(name, 256, 256), (name, 256, 512, LDSB)

def gen_kf5(name="k1_kernel", R=4):
    a = Asm()
    RB = 4096; SLOT = 34816; TREG = 16384; FS = 288; RST = 0
    LDSB = RB + R * SLOT
    LC = 2048
    ZFLG = 0x2D00000
    from gen3 import emit_conv_loads, emit_conv_job, CJ_SIZE
    def capture(f, *args):
        lb = len(a.lines); f(*args); out = a.lines[lb:]; del a.lines[lb:]; return out
    kernel_begin(a, name)
    a("s_load_dwordx2 s[80:81], s[0:1], 0")
    a("s_load_dwordx2 s[4:5], s[0:1], 56")
    a("s_load_dwordx2 s[6:7], s[0:1], 104")
    a("s_load_dwordx2 s[18:19], s[0:1], 96")
    a("s_cmp_ge_u32 s2, 256")
    a("s_cbranch_scc1 %s_end" % name)
    a("v_lshrrev_b32 v1, 6, v0")
    a("v_and_b32 v2, 63, v0")
    a("v_readfirstlane_b32 s3, v1")
    G2.tile_ij(a)
    a("s_lshr_b32 s98, s3, 2")
    a("s_mov_b32 s54x, 0".replace("s54x", "s99"))
    a("s_and_b32 s3, s3, 3")
    a("s_lshr_b32 s24, s3, 1")
    a("s_and_b32 s25, s3, 1")
    a("v_and_b32 v3, 15, v2")
    VT = 204; VF = 208
    def loader_setup():
        a("v_lshrrev_b32 v5, 3, v2")
        a("v_and_b32 v4, 7, v2")
        a("s_lshl_b32 s36, s3, 5")
        a("v_add_u32 v5, s36, v5")
        a("v_lshrrev_b32 v7, 4, v2")
        a("v_xor_b32 v7, v7, v4")
        a("v_mul_u32_u24 v6, 1152, v5")
        a("v_lshl_add_u32 v%d, v7, 4, v6" % VT)
        a("v_xor_b32 v%d, 64, v%d" % (VT + 1, VT))
        a("v_add_u32 v%d, %d, v%d" % (VT + 1, 9216 - 1024, VT + 1))
        a("v_add_u32 v%d, %d, v%d" % (VT + 2, 2 * (9216 - 1024), VT))
        a("v_add_u32 v%d, %d, v%d" % (VT + 3, 2 * (9216 - 1024), VT + 1))
        a("s_lshl_b32 s84, s3, 12")
        a("s_add_u32 s84, s84, %d" % RB)
        a("s_lshl_b32 s85, s3, 9")
        a("s_add_u32 s85, s85, %d" % (RB + TREG + 16384))
    def loader_setup2():
        for n in range(5):
            if n < 4:
                a("s_lshl_b32 s36, s3, 8")
                a("s_add_u32 s36, s36, %d" % (64 * n))
            else:
                a("s_lshl_b32 s36, s3, 5")
                a("s_add_u32 s36, s36, 1024")
            a("v_add_u32 v6, s36, v2")
            a("v_mul_u32_u24 v7, 3641, v6")
            a("v_lshrrev_b32 v7, 16, v7")
            a("v_mul_u32_u24 v8, 18, v7")
            a("v_sub_u32 v8, v6, v8")
            a("v_and_b32 v9, 35, v7")
            a("v_bfe_u32 v6, v7, 2, 2")
            a("v_lshl_add_u32 v9, v6, 3, v9")
            a("v_bfe_u32 v6, v7, 4, 1")
            a("v_lshl_add_u32 v9, v6, 2, v9")
            a("v_mul_u32_u24 v9, 9216, v9")
            a("v_lshl_add_u32 v%d, v8, 4, v9" % (VF + n))
            if 0 < n < 4: a("v_subrev_u32 v%d, %d, v%d" % (VF + n, 1024 * n, VF + n))
    def issueT(g):
        st = g % 9
        a("s_add_u32 s86, s84, %d" % ((g % R) * SLOT))
        a("s_mov_b32 m0, s86")
        a("s_add_u32 s87, s82, %d" % (128 * st))
        for n in range(4):
            a("buffer_load_dwordx4 v%d, s[28:31], s87 offen offset:%d lds" % (VT + n, 1024 * n))
    def issueF(g):
        st = g % 9
        a("s_add_u32 s86, s84, %d" % ((g % R) * SLOT + TREG))
        a("s_mov_b32 m0, s86")
        a("s_add_u32 s87, s83, %d" % (64 * 9216 * st + (4608 if g < 9 else 0)))
        for n in range(4):
            a("buffer_load_dwordx4 v%d, s[8:11], s87 offen offset:%d lds" % (VF + n, 1024 * n))
        a("s_add_u32 s86, s85, %d" % ((g % R) * SLOT))
        a("s_mov_b32 m0, s86")
        a("s_mov_b64 exec, 0xffffffff")
        a("buffer_load_dwordx4 v%d, s[8:11], s87 offen lds" % (VF + 4))
        a("s_mov_b64 exec, -1")
    def srds_main():
        srd(a, 28, 80, 2048 * 576 * 2)
        srd(a, 8, 4, 576 * 4608 * 2)
        srd(a, 12, 6, WS_BYTES)
        srd(a, 60, 18, 256)
        a("s_mul_i32 s82, s22, %d" % (128 * 1152))
        a("s_mul_i32 s83, s23, 288")
    ACC = 128; FB = [16, 52]; CS = 216; ONE = 236
    vTa = [4, 5]; vTb = [6, 7]; vF = 8; vFh = 9
    bTa = [88, 89]; bTb = [90, 91]; bF = 92; bFh = 93
    def mma_setup():
        a("v_lshrrev_b32 v10, 4, v2")
        a("v_lshrrev_b32 v11, 1, v3")
        a("v_xor_b32 v10, v10, v11")
        a("v_lshlrev_b32 v10, 4, v10")
        a("v_lshl_add_u32 v10, v3, 7, v10")
        a("s_lshl_b32 s26, s24, 13")
        a("s_add_u32 s26, s26, %d" % RB)
        a("v_add_u32 v10, s26, v10")
        a("s_lshl_b32 s26, s25, 12")
        a("v_add_u32 v%d, s26, v10" % bTa[0])
        a("s_xor_b32 s26, s26, 4096")
        a("v_add_u32 v%d, s26, v10" % bTb[0])
        a("v_xor_b32 v%d, 64, v%d" % (bTa[1], bTa[0]))
        a("v_xor_b32 v%d, 64, v%d" % (bTb[1], bTb[0]))
        a("v_lshrrev_b32 v10, 2, v2")
        a("v_mul_u32_u24 v10, %d, v10" % FS)
        a("v_and_b32 v11, 3, v2")
        a("v_lshl_add_u32 v10, v11, 3, v10")
        a("v_add_u32 v10, %d, v10" % (RB + TREG))
        a("s_mul_i32 s26, s25, 160")
        a("v_add_u32 v%d, s26, v10" % bF)
        a("v_add_u32 v%d, 128, v10" % bFh)
        for r in range(ACC, ACC + 72): a("v_mov_b32 v%d, 0" % r)
        for r in range(CS, CS + 20): a("v_mov_b32 v%d, 0" % r)
        for r in range(ONE, ONE + 4): a("v_mov_b32 v%d, 0x3f803f80" % r)
    def mma_addr(slot):
        a("s_mov_b32 s27, %d" % (slot * SLOT))
        for d, s_ in ((vTa[0], bTa[0]), (vTb[0], bTb[0]), (vTa[1], bTa[1]), (vTb[1], bTb[1]), (vF, bF), (vFh, bFh)):
            a("v_add_u32 v%d, s27, v%d" % (d, s_))
    core = G.Core(a, ACC, FB[0], FB[1], FS, TREG, vTa, vTb, vF, vFh)
    trk = core.trk
    a("s_cmp_eq_u32 s98, 0")
    a("s_cbranch_scc1 %s_A0" % name)
    a("s_setprio 3")
    loader_setup()
    a("s_waitcnt lgkmcnt(0)")
    srds_main()
    vm = VmTracker(a)
    def issue(g, vmx):
        issueT(g); issueF(g); vmx.issue("S%d" % g, 9)
    issueT(0)
    loader_setup2()
    issueF(0); vm.issue("S0", 9)
    issue(1, vm); issue(2, vm); issue(3, vm)
    a("s_add_u32 s3, s3, 4"); stamp_setup(a, 1); stamp(a, 0); a("s_sub_u32 s3, s3, 4")
    mma_setup()
    RA = 96; XB = 112
    for r in range(RA, RA + 16): a("v_mov_b32 v%d, 0" % r)
    a("v_lshrrev_b32 v10, 4, v2")
    a("v_lshrrev_b32 v11, 1, v3")
    a("v_xor_b32 v10, v10, v11")
    a("v_lshlrev_b32 v10, 4, v10")
    a("v_lshl_add_u32 v10, v3, 7, v10")
    a("v_add_u32 v12, s84, v10")
    a("v_xor_b32 v13, 64, v12")
    def rs_rd(g):
        a("v_add_u32 v10, %d, v12" % ((g % R) * SLOT))
        a("v_add_u32 v11, %d, v13" % ((g % R) * SLOT))
        for h in range(2):
            for n in range(2):
                a("ds_read_b128 %s, v%d offset:%d" % (vr(XB + 8 * h + 4 * n), 10 + h, 2048 * n))
    def rs_do():
        for h in range(2):
            for n in range(2):
                x = XB + 8 * h + 4 * n
                a("v_mfma_f32_16x16x32_bf16 %s, %s, %s, %s" % (vr(RA + 4 * n), vr(ONE), vr(x), vr(RA + 4 * n)))
                a("v_mfma_f32_16x16x32_bf16 %s, %s, %s, %s" % (vr(RA + 8 + 4 * n), vr(x), vr(x), vr(RA + 8 + 4 * n)))
    def interleave(dma, comp, vmx=None):
        groups = []; cur = []
        for l in dma:
            cur.append(l)
            if "buffer_load" in l and not any("exec, 0xffffffff" in x for x in cur[-2:]):
                groups.append(cur); cur = []
            elif "exec, -1" in l:
                groups.append(cur); cur = []
        if cur: groups.append(cur)
        ns = max(1, len(groups))
        per = (len(comp) + ns - 1) // ns
        for g in groups:
            a.lines.extend(g)
            a.lines.extend(comp[:per]); comp = comp[per:]
        a.lines.extend(comp)
    vm.wait(["S0"])
    a("s_barrier")
    stamp(a, 1)
    rs_rd(0)
    vm.wait(["S1"])
    a("s_barrier")
    for k in range(9):
        a("s_waitcnt lgkmcnt(0)")
        dma = capture(lambda: (issueT(k + 3), issueF(k + 3))) if 1 <= k < 8 else []
        interleave(dma, capture(rs_do))
        if 1 <= k < 8: vm.issue("S%d" % (k + 3), 9)
        if k < 8:
            rs_rd(k + 1)
        else:
            a("s_nop 7")
            a("v_lshrrev_b32 v10, 4, v2")
            a("v_lshrrev_b32 v11, 2, v3")
            a("v_and_b32 v12, 3, v3")
            for n in range(2):
                G_ = RA + 8 + 4 * n
                for r in range(1, 4):
                    a("v_cmp_eq_u32 vcc, %d, v12" % r)
                    a("s_nop 1")
                    a("v_cndmask_b32 v%d, v%d, v%d, vcc" % (G_, G_, G_ + r))
            ML = 112
            for n in range(2):
                emit_ln_finish(a, RA + 4 * n, RA + 8 + 4 * n, 576, ML + 2 * n, ML + 2 * n + 1, 120)
                a("v_mov_b32 v%d, v%d" % (117 + 2 * n, ML + 2 * n + 1))
                a("v_sub_f32 v%d, 0, v%d" % (116 + 2 * n, ML + 2 * n))
            a("s_lshl_b32 s35, s3, 8")
            a("v_lshlrev_b32 v13, 3, v3")
            a("v_add_u32 v12, s35, v13")
            a("v_cmp_eq_u32 vcc, v10, v11")
            a("s_and_saveexec_b64 s[36:37], vcc")
            for n in range(2):
                a("ds_write_b64 v12, %s offset:%d" % (vr(116 + 2 * n, 2), RST + 128 * n))
            a("s_mov_b64 exec, s[36:37]")
            a("s_cmp_lg_u32 s23, 0")
            a("s_cbranch_scc1 %s_nost1" % name)
            a("s_lshl_b32 s35, s22, 7")
            a("s_lshl_b32 s36, s3, 5")
            a("s_add_u32 s35, s35, s36")
            a("s_lshl_b32 s35, s35, 3")
            a("s_add_u32 s35, s35, 0x%x" % STATS1)
            a("v_mov_b32 v11, 0x7ffffff0")
            a("v_cndmask_b32 v13, v11, v13, vcc")
            for n in range(2):
                a("buffer_store_dwordx2 %s, v13, s[12:15], s35 offen offset:%d" % (vr(ML + 2 * n, 2), 128 * n))
            a.label("%s_nost1" % name)
        if k < 8:
            vm.wait(["S%d" % (k + 2)])
            a("s_barrier")
    HO = lambda: None
    def ho_addr():
        a("s_lshr_b32 s36, s3, 1")
        a("s_mul_i32 s36, s36, %d" % (3 * SLOT))
        a("s_and_b32 s37, s3, 1")
        a("s_mul_i32 s37, s37, 12288")
        a("s_add_u32 s36, s36, s37")
        a("s_add_u32 s36, s36, %d" % RB)
        a("v_lshlrev_b32 v10, 4, v2")
        a("v_add_u32 v95, s36, v10")
    a("s_waitcnt lgkmcnt(0)")
    a("s_barrier")
    ho_addr()
    a("s_barrier")
    n_ = 0
    for ft in range(4):
        for tt in range(2):
            a("ds_read_b128 %s, v95 offset:%d" % (vr(core.accr(ft, tt)), 1024 * n_)); n_ += 1
    for ft in range(4):
        a("ds_read_b128 %s, v95 offset:%d" % (vr(CS + 4 * ft), 1024 * n_)); n_ += 1
    a("s_branch %s_g2" % name)
    a.label("%s_A0" % name)
    emit_code_prefetch(a, name)
    a("s_load_dwordx4 s[64:67], s[0:1], 8")
    a("s_load_dwordx2 s[76:77], s[0:1], 24")
    a("s_load_dwordx2 s[78:79], s[0:1], 64")
    mma_setup()
    loader_setup(); loader_setup2()
    a("s_waitcnt lgkmcnt(0)")
    srds_main()
    srd(a, 68, 66, 2048 * 576 * 2)
    a("s_mov_b32 s88, s64"); a("s_mov_b32 s89, s65")
    srd(a, 64, 88, 2048 * 576 * 2)
    srd(a, 72, 76, 576 * 8)
    stamp_setup(a, 1); stamp(a, 0)
    def gran_addr():
        a("v_lshrrev_b32 v10, 4, v2")
        a("s_lshl_b32 s36, s25, 1")
        a("v_add_u32 v11, s36, v10")
        a("v_and_b32 v11, 3, v11")
        a("v_lshl_add_u32 v11, v11, 4, v3")
        a("v_lshlrev_b32 v94, 8, v11")
        a("s_lshl_b32 s59, s22, 7")
        a("s_lshl_b32 s36, s24, 6")
        a("s_add_u32 s59, s59, s36")
        a("s_lshl_b32 s59, s59, 8")
        a("s_add_u32 s59, s59, 0x%x" % STATS2)
        a("s_lshl_b32 s36, s23, 1")
        a("s_add_u32 s36, s36, s25")
        a("s_lshl_b32 s36, s36, 3")
        a("s_add_u32 s58, s36, s59")
    gran_addr()
    a("v_mov_b32 v12, 0"); a("v_mov_b32 v13, 0x80000000")
    a("buffer_store_dwordx2 v[12:13], v94, s[12:15], s58 offen sc1")
    a("s_lshl_b32 s36, s22, 4")
    a("s_add_u32 s36, s36, s23")
    a("s_lshl_b32 s36, s36, 8")
    a("s_add_u32 s97, s36, 0x%x" % ZFLG)
    a("v_mov_b32 v10, %d" % LC)
    a("v_mov_b32 v12, 0"); a("v_mov_b32 v13, 0")
    a("s_mov_b64 exec, 1")
    a("buffer_store_dword v12, v12, s[12:15], s97 offen sc1")
    a("s_mov_b64 exec, -1")
    a("ds_write_b64 v10, v[12:13]")
    a("ds_write_b64 v10, v[12:13] offset:8")
    mma_addr(0)
    a("s_mov_b32 s33, 0")
    a("s_waitcnt lgkmcnt(0)")
    a("s_barrier")
    stamp(a, 1)
    a.label("%s_mma" % name)
    core.prime(0, core.reads(0, 0))
    trk.drain()
    nocs = [False]
    def mfmas(buf):
        L = []
        for ft in range(5):
            A = core.F(buf, ft)
            for tt in range(4 if ft < 4 else 2):
                c = core.accr(ft, tt); B = core.T(buf, tt)
                L.append(("v_mfma_f32_16x16x32_bf16 %s, %s, %s, %s" % (vr(c), vr(A), vr(B), vr(c)), list(range(A, A + 4)) + list(range(B, B + 4))))
            if not nocs[0]: L.append(("v_mfma_f32_16x16x32_bf16 %s, %s, %s, %s" % (vr(CS + 4 * ft), vr(A), vr(ONE), vr(CS + 4 * ft)), list(range(A, A + 4))))
        return L
    def phase(buf, pend):
        for (m, regs) in mfmas(buf):
            trk.need(regs)
            a(m)
            while pend:
                k, t = pend.pop(0)
                if k == "x":
                    a(t)
                    if t.startswith("s_"): continue
                else:
                    a(t[0]); trk.issue(t[1])
                break
        for k, t in pend:
            if k == "x": a(t)
            else: a(t[0]); trk.issue(t[1])
    def iteration(vw=True):
        if vw: a("s_waitcnt vmcnt(0)")
        a("s_barrier")
        rd = [("r", t) for t in core.reads(1, 1)]
        upd = ["s_add_u32 s27, s27, %d" % SLOT, "s_cmp_eq_u32 s27, %d" % (R * SLOT), "s_cselect_b32 s27, 0, s27"]
        tail = ["v_add_u32 v%d, s27, v%d" % (d, s_) for d, s_ in ((vTa[0], bTa[0]), (vF, bF), (vTb[0], bTb[0]), (vFh, bFh))]
        phase(0, rd[:1] + [("x", u) for u in upd] + rd[1:] + [("x", u) for u in tail])
        rd = [("r", t) for t in core.reads(0, 0)]
        tail = ["v_add_u32 v%d, s27, v%d" % (d, s_) for d, s_ in ((vTa[1], bTa[1]), (vTb[1], bTb[1]))] + ["s_add_u32 s33, s33, 1"]
        phase(1, rd + [("x", u) for u in tail])
    a.label("%s_cloop" % name)
    lb = len(a.lines); iteration(); st = copy.deepcopy(trk.out); del a.lines[lb:]; trk.out = copy.deepcopy(st)
    iteration()
    assert [sorted(x) for x in trk.out] == [sorted(x) for x in st]
    a("s_cmp_lt_u32 s33, 9")
    a("s_cbranch_scc1 %s_cloop" % name)
    trk.drain()
    stamp(a, 2)
    MR = 100; T = 72; ZP = 16
    a("s_cmp_eq_u32 s98, 1")
    a("s_cbranch_scc1 %s_Btail" % name)
    a("s_waitcnt vmcnt(0)")
    a("s_barrier")
    a("s_cmp_lg_u32 s3, 0")
    a("s_cbranch_scc1 %s_nosig" % name)
    a("v_mov_b32 v10, 1")
    a("s_lshl_b32 s36, s22, 2")
    a("v_mov_b32 v11, s36")
    a("s_mov_b64 exec, 1")
    a("buffer_atomic_add v10, v11, s[60:63], 0 offen sc1")
    a("s_mov_b64 exec, -1")
    a.label("%s_nosig" % name)
    ho_addr()
    n_ = 0
    for ft in range(4):
        for tt in range(2):
            a("ds_write_b128 v95, %s offset:%d" % (vr(core.accr(ft, tt + 2)), 1024 * n_)); n_ += 1
    for ft in range(4):
        a("ds_write_b128 v95, %s offset:%d" % (vr(CS + 4 * ft), 1024 * n_)); n_ += 1
    a("s_waitcnt lgkmcnt(0)")
    a("s_barrier")
    a.label("%s_g2" % name)
    gelu_consts(a)
    a("s_xor_b32 s52, s98, s25")
    a("s_lshl_b32 s36, s24, 9")
    a("s_lshl_b32 s37, s52, 8")
    a("s_add_u32 s38, s36, s37")
    a("v_lshlrev_b32 v10, 3, v3")
    a("v_add_u32 v11, s38, v10")
    a("ds_read_b64 %s, v11 offset:%d" % (vr(MR, 2), RST))
    a("ds_read_b64 %s, v11 offset:%d" % (vr(MR + 2, 2), RST + 128))
    for r_ in range(108, 112): a("v_mov_b32 v%d, 0" % r_)
    a("s_waitcnt lgkmcnt(0)")
    ZPo = lambda n: 16 + 2 * n
    def dots2(lst):
        for d in range(2):
            for (ft, tt) in lst:
                p = ZPo(2 * ft + tt) + d
                a("v_dot2_f32_bf16 v%d, v%d, v%d, v%d" % (108 + 2 * tt, p, ONE, 108 + 2 * tt))
                a("v_dot2_f32_bf16 v%d, v%d, v%d, v%d" % (109 + 2 * tt, p, p, 109 + 2 * tt))
    a("s_cmp_lg_u32 s98, 0")
    a("s_cbranch_scc1 %s_nohalf" % name)
    lst = [(4, 0), (4, 1)]
    emit_fold_gelu(a, [(core.accr(ft, tt), CS + 4 * ft, MR + 2 * tt, ZPo(2 * ft + tt)) for ft, tt in lst], T)
    dots2(lst)
    a.label("%s_nohalf" % name)
    for f0 in (0, 2):
        lst = [(ft, tt) for ft in (f0, f0 + 1) for tt in range(2)]
        emit_fold_gelu(a, [(core.accr(ft, tt), CS + 4 * ft, MR + 2 * tt, ZPo(2 * ft + tt)) for ft, tt in lst], T)
        dots2(lst)
    a("s_nop 2")
    emit_xg_reduce(a, [108, 110, 109, 111], 72)
    a("s_lshl_b32 s40, s22, 7")
    a("s_lshl_b32 s36, s24, 6")
    a("s_add_u32 s40, s40, s36")
    a("s_lshl_b32 s40, s40, 8")
    a("s_add_u32 s59, s40, 0x%x" % STATS2)
    a("s_lshl_b32 s36, s52, 13")
    a("s_add_u32 s40, s59, s36")
    a("s_lshl_b32 s36, s23, 1")
    a("s_add_u32 s36, s36, s25")
    a("s_lshl_b32 s36, s36, 3")
    a("s_add_u32 s40, s40, s36")
    a("v_lshrrev_b32 v10, 4, v2")
    a("v_lshlrev_b32 v11, 8, v2")
    a("v_cmp_gt_u32 vcc, 32, v2")
    a("v_mov_b32 v12, 0x7ffffff0")
    a("v_cmp_eq_u32 s[36:37], 1, v10")
    a("v_cndmask_b32 v11, v12, v11, vcc")
    a("s_nop 0")
    a("v_cndmask_b32 v108, v108, v110, s[36:37]")
    a("v_cndmask_b32 v109, v109, v111, s[36:37]")
    a("v_and_b32 v109, 0x7fffffff, v109")
    a("buffer_store_dwordx2 v[108:109], v11, s[12:15], s40 offen sc1")
    a("s_cmp_eq_u32 s98, 0")
    a("s_cbranch_scc1 %s_A1" % name)
    for q in range(4):
        a("ds_write_b128 v95, %s offset:%d" % (vr(16 + 4 * q), 1024 * q))
    for r in range(ACC, ACC + 72): a("v_mov_b32 v%d, 0" % r)
    for r in range(CS, CS + 20): a("v_mov_b32 v%d, 0" % r)
    mma_addr(9 % R)
    a("s_mov_b32 s33, 0")
    a("s_setprio 0")
    a("s_waitcnt lgkmcnt(0)")
    stamp(a, 9)
    a("s_barrier")
    a("s_branch %s_mma" % name)
    def epi_in():
        gelu_consts(a)
        a("s_lshl_b32 s36, s24, 9")
        a("s_lshl_b32 s37, s25, 8")
        a("s_add_u32 s38, s36, s37")
        a("s_xor_b32 s37, s37, 256")
        a("s_add_u32 s39, s36, s37")
        a("v_lshlrev_b32 v10, 3, v3")
        a("v_add_u32 v11, s38, v10")
        a("ds_read_b64 %s, v11 offset:%d" % (vr(MR, 2), RST))
        a("ds_read_b64 %s, v11 offset:%d" % (vr(MR + 2, 2), RST + 128))
        a("v_add_u32 v11, s39, v10")
        a("ds_read_b64 %s, v11 offset:%d" % (vr(MR + 4, 2), RST))
        a("ds_read_b64 %s, v11 offset:%d" % (vr(MR + 6, 2), RST + 128))
        a("s_waitcnt lgkmcnt(0)")
    S = [108, 110, 52, 54]; Q = [109, 111, 53, 55]
    def gelu_ft(ft, stats):
        tts = range(4 if ft < 4 else 2)
        emit_fold_gelu(a, [(core.accr(ft, tt), CS + 4 * ft, MR + 2 * tt, ZP + 2 * tidx(ft, tt)) for tt in tts], T)
        if stats:
            for d in range(2):
                for tt in tts:
                    p = ZP + 2 * tidx(ft, tt) + d
                    a("v_dot2_f32_bf16 v%d, v%d, v%d, v%d" % (S[tt], p, ONE, S[tt]))
                    a("v_dot2_f32_bf16 v%d, v%d, v%d, v%d" % (Q[tt], p, p, Q[tt]))
    a.label("%s_Btail" % name)
    a("v_mov_b32 v10, %d" % (LC + 12))
    a("v_mov_b32 v11, 1")
    a("s_mov_b64 exec, 1")
    a("ds_add_u32 v10, v11")
    a("s_mov_b64 exec, -1")
    a("s_load_dwordx2 s[94:95], s[0:1], 80")
    a("s_load_dwordx2 s[92:93], s[0:1], 72")
    a("s_load_dwordx2 s[78:79], s[0:1], 64")
    epi_in()
    srd(a, 84, 78, 2048 * 2048 * 2)
    a("v_lshrrev_b32 v10, 4, v2")
    a("v_lshlrev_b32 v10, 12, v10")
    a("v_lshl_add_u32 v10, v3, 4, v10")
    a("s_lshl_b32 s40, s22, 7")
    a("s_lshl_b32 s36, s3, 5")
    a("s_add_u32 s40, s40, s36")
    a("s_lshl_b32 s40, s40, 12")
    a("s_lshl_b32 s36, s23, 8")
    a("s_add_u32 s40, s40, s36")
    for n in range(8):
        a("buffer_load_dwordx4 v[116:119], v10, s[84:87], s40 offen")
        if n < 7: a("s_add_u32 s40, s40, 16384")
    srd(a, 76, 94, 2304 * 576 * 2)
    srd(a, 28, 92, 2048 * 2)
    a("v_and_b32 v0, 255, v0")
    for ft in range(5): gelu_ft(ft, False)
    Z1R = 200; BI = 236
    for r_ in range(36): a("v_mov_b32 v%d, v%d" % (Z1R + r_, ZP + r_))
    stamp(a, 3)
    a("s_mov_b32 s42, s2")
    emit_wot_loads(a, 100, 112, 720, 3)
    a("s_lshl_b32 s36, s22, 7")
    a("s_lshl_b32 s37, s24, 6")
    a("s_add_u32 s36, s36, s37")
    a("v_lshlrev_b32 v11, 1, v3")
    a("s_lshl_b32 s37, s25, 6")
    a("s_lshl_b32 s38, s36, 1")
    a("s_add_u32 s39, s38, s37")
    a("s_xor_b32 s37, s37, 64")
    a("s_add_u32 s36, s38, s37")
    a("buffer_load_ushort v96, v11, s[28:31], s39 offen")
    a("buffer_load_ushort v97, v11, s[28:31], s39 offen offset:32")
    a("buffer_load_ushort v98, v11, s[28:31], s36 offen")
    a("buffer_load_ushort v99, v11, s[28:31], s36 offen offset:32")
    for r in range(ACC, ACC + 72): a("v_mov_b32 v%d, 0" % r)
    mma_addr(0)
    a("s_mov_b32 s33, 0")
    stamp(a, 4)
    a("s_barrier")
    stamp(a, 5)
    core.prime(0, core.reads(0, 0))
    trk.drain()
    nocs[0] = True
    a.label("%s_gloop" % name)
    lb = len(a.lines); iteration(False); st = copy.deepcopy(trk.out); del a.lines[lb:]; trk.out = copy.deepcopy(st)
    iteration(False)
    assert [sorted(x) for x in trk.out] == [sorted(x) for x in st]
    a("s_cmp_lg_u32 s33, 3")
    a("s_cbranch_scc1 %s_ghk" % name)
    a("s_waitcnt vmcnt(0)")
    for n in range(3):
        a("buffer_store_dwordx4 %s, v%d, s[12:15], s40 offen" % (vr(100 + 4 * n), 112 + n))
    for tt in range(4): a("v_lshlrev_b32 v%d, 16, v%d" % (BI + 2 * tt, 96 + tt))
    a.label("%s_ghk" % name)
    a("s_cmp_lt_u32 s33, 32")
    a("s_cbranch_scc1 %s_gloop" % name)
    trk.drain()
    stamp(a, 6)
    G3.emit_k2_epilogue(a, core, Z1R, BI)
    stamp(a, 7)
    G.stamp_rt(a, 1)
    a("s_branch %s_end" % name)
    a.label("%s_A1" % name)
    a("s_setprio 2")
    a("s_load_dwordx4 s[88:91], s[0:1], 32")
    vmA = VmTracker(a)
    stamp(a, 9)
    a("s_barrier")
    for q in range(4):
        a("ds_read_b128 %s, v95 offset:%d" % (vr(36 + 4 * q), 1024 * q))
    def zreg(ft, tt):
        return (16 + 2 * (2 * ft + tt)) if tt < 2 else (36 + 2 * (2 * ft + tt - 2))
    GB = [128, 144, 160, 176]
    def gather():
        for tt in range(4):
            for q in range(4):
                a("buffer_load_dwordx4 %s, v4, s[12:15], s%d offen offset:%d sc1" % (vr(GB[tt] + 4 * q), (52, 42, 53, 43)[tt], 16 * q))
    def st_finish():
        for tt in range(4):
            b = GB[tt]
            for st_ in (8, 4, 2):
                for q in range(0, st_, 2):
                    a("v_pk_add_f32 %s, %s, %s" % (vr(b + q, 2), vr(b + q, 2), vr(b + q + st_, 2)))
        emit_xg_reduce(a, [GB[tt] + e for tt in range(4) for e in range(2)], 72)
        for tt in range(4):
            b = GB[tt]
            emit_ln_finish(a, b, b + 1, 2304, b + 2, MR + 2 * tt, b + 4)
            a("v_mul_f32 v%d, -v%d, v%d" % (MR + 2 * tt + 1, b + 2, MR + 2 * tt))
    def z_addr():
        a("v_lshrrev_b32 v10, 4, v2")
        a("v_lshrrev_b32 v11, 2, v2"); a("v_and_b32 v11, 1, v11"); a("v_lshlrev_b32 v11, 4, v11")
        a("v_lshrrev_b32 v5, 3, v2"); a("v_and_b32 v5, 1, v5"); a("v_lshl_add_u32 v11, v5, 2, v11")
        a("v_and_b32 v5, 3, v2"); a("v_add_u32 v11, v11, v5")
        a("v_mul_u32_u24 v11, 288, v11")
        a("v_lshrrev_b32 v5, 1, v10"); a("v_lshl_add_u32 v11, v5, 4, v11")
        a("v_and_b32 v5, 1, v10")
        a("v_lshl_add_u32 v6, v5, 5, v11")
        a("v_mul_u32_u24 v5, 2304, v5")
        a("v_add_u32 v9, v11, v5")
        a("s_lshl_b32 s33, s23, 5")
        a("s_lshl_b32 s36, s22, 1")
        a("s_add_u32 s33, s33, s36")
        a("s_add_u32 s33, s33, s24")
        a("s_mul_i32 s33, s33, 18432")
        if ZIMG: a("s_add_u32 s33, s33, 0x%x" % ZIMG)
        a("s_mul_i32 s36, s25, 9216")
        a("s_add_u32 s37, s33, s36")
        a("s_xor_b32 s36, s36, 9216")
        a("s_add_u32 s38, s33, s36")
        a("s_add_u32 s39, s37, 128")
        a("s_mul_i32 s36, s25, 160")
        a("s_add_u32 s37, s37, s36")
        a("s_add_u32 s38, s38, s36")
    def norm_pair(tA, tB, O):
        for q, (ft, tt) in enumerate((tA, tB)):
            for d in range(2):
                z = zreg(ft, tt) + d; t_ = T + 4 * q + 2 * d
                a("v_lshlrev_b32 v%d, 16, v%d" % (t_, z))
                a("v_and_b32 v%d, 0xffff0000, v%d" % (t_ + 1, z))
        for q, (ft, tt) in enumerate((tA, tB)):
            for d in range(2):
                t_ = T + 4 * q + 2 * d
                a("v_pk_fma_f32 %s, %s, %s, %s op_sel:[0,0,1] op_sel_hi:[1,0,1]" % (vr(t_, 2), vr(t_, 2), vr(MR + 2 * tt, 2), vr(MR + 2 * tt, 2)))
        for q in range(2):
            for d in range(2):
                t_ = T + 4 * q + 2 * d
                a("v_cvt_pk_bf16_f32 v%d, v%d, v%d" % (O + 2 * q + d, t_, t_ + 1))
        a("s_nop 1")
        a("v_permlane16_swap_b32 v%d, v%d" % (O, O + 2))
        a("v_permlane16_swap_b32 v%d, v%d" % (O + 1, O + 3))
        a("s_nop 0")
    def zstore(idx):
        O = 216 + 4 * idx
        if idx < 8:
            pr, tt = idx >> 2, idx & 3
            norm_pair((2 * pr, tt), (2 * pr + 1, tt), O)
            a("buffer_store_dwordx4 %s, v6, s[12:15], s%d offen offset:%d sc1" % (vr(O), 37 if tt < 2 else 38, (tt & 1) * 2304 + 64 * pr))
        else:
            norm_pair((4, 0), (4, 1), O)
            a("buffer_store_dwordx4 %s, v9, s[12:15], s39 offen sc1" % vr(O))
    GK = 16
    def dmas(gs):
        out = []
        for g in gs: out += capture(lambda: (issueT(g), issueF(g)))
        return out
    for k in range(9, 18):
        if k == 9: a("s_waitcnt lgkmcnt(0)")
        a("s_barrier")
        gs = [11, 12] if k == 9 else ([k + 3] if k + 3 < 18 else [])
        if k == 9:
            a.lines.extend(dmas(gs))
            for g in gs: vmA.issue("S%d" % g, 9)
            a("s_lshl_b32 s36, s22, 2")
            a("v_mov_b32 v199, s36")
            a("buffer_load_dword v198, v199, s[60:63], 0 offen sc1"); vmA.issue("cnt", 1)
            a("v_lshrrev_b32 v10, 4, v2")
            a("v_lshlrev_b32 v4, 8, v3")
            a("v_lshl_add_u32 v4, v10, 6, v4")
            a("s_lshl_b32 s33, s25, 13")
            a("s_add_u32 s52, s59, s33")
            a("s_xor_b32 s33, s33, 8192")
            a("s_add_u32 s53, s59, s33")
            a("s_add_u32 s42, s52, 4096")
            a("s_add_u32 s43, s53, 4096")
        elif k == 10:
            a.lines.extend(dmas(gs)); vmA.issue("S13", 9)
            z_addr()
        elif k <= 14:
            a.lines.extend(dmas(gs)); vmA.issue("S%d" % gs[0], 9)
        elif k == GK:
            gather(); vmA.issue("g", 16)
        if k == 12:
            pass
        if 11 <= k + 2 < 18 and k + 2 != 10:
            vmA.wait(["S%d" % (k + 2)])
    stamp(a, 3)
    a("s_waitcnt vmcnt(0)")
    a("s_mov_b32 s40, 0")
    a.label("%s_chk" % name)
    a("v_subrev_u32 v11, 16, v198")
    for tt in range(4):
        for r in range(GB[tt] + 1, GB[tt] + 16, 4):
            a("v_or3_b32 v11, v11, v%d, v%d" % (r, r + 2))
    a("v_cmp_gt_i32 vcc, 0, v11")
    a("s_add_u32 s40, s40, 1")
    a("s_cmp_gt_u32 s40, %d" % SPIN_MAX)
    a("s_cbranch_scc1 %s_ok" % name)
    a("s_cbranch_vccz %s_ok" % name)
    a("s_sleep 16")
    a("buffer_load_dword v198, v199, s[60:63], 0 offen sc1")
    a("s_waitcnt vmcnt(0)")
    gather()
    a("s_waitcnt vmcnt(0)")
    a("s_branch %s_chk" % name)
    a.label("%s_ok" % name)
    stamp(a, 4)
    st_finish()
    for i_ in range(9): zstore(i_)
    stamp(a, 5)
    a("s_mov_b32 s41, s2")
    emit_kv_loads(a, 128, 140, 148, 152, 153)
    a("s_cmp_ge_u32 s2, 32")
    a("s_cbranch_scc1 %s_kvp" % name)
    a("s_add_u32 s41, s2, 256")
    emit_kv_loads(a, 156, 168, 176, 180, 181)
    a.label("%s_kvp" % name)
    a("s_setprio 3")
    srd(a, 8, 78, 2048 * 2048 * 2)
    a("v_lshrrev_b32 v3, 3, v2")
    a("s_lshl_b32 s24, s3, 5")
    a("v_add_u32 v3, s24, v3")
    a("v_and_b32 v4, 7, v2")
    a("v_lshrrev_b32 v6, 4, v2")
    a("v_xor_b32 v6, v6, v4")
    a("v_lshlrev_b32 v6, 4, v6")
    a("v_lshl_add_u32 v10, v3, 12, v6")
    a("v_xor_b32 v11, 64, v10")
    a("v_add_u32 v11, %d, v11" % (32768 - 1024))
    a("v_add_u32 v12, %d, v10" % (2 * (32768 - 1024)))
    a("v_add_u32 v13, %d, v11" % (2 * (32768 - 1024)))
    a("v_lshlrev_b32 v14, 4, v2")
    a("s_lshl_b32 s26, s22, 19")
    a("s_mul_i32 s27, s23, %d" % (32 * 18432))
    a("s_lshl_b32 s24, s3, 12")
    a("s_add_u32 s27, s27, s24")
    if ZIMG: a("s_add_u32 s27, s27, 0x%x" % ZIMG)
    a("s_lshl_b32 s25, s3, 9")
    a("s_sub_u32 s32, s25, s24")
    a("s_add_u32 s32, s32, 16384")
    a("s_add_u32 s24, s24, %d" % RB)
    a("s_waitcnt vmcnt(20) lgkmcnt(0)")
    a("v_mov_b32 v26, %d" % LC)
    a("v_mov_b32 v27, 1")
    a("s_mov_b64 exec, 1")
    a("ds_add_rtn_u32 v28, v26, v27")
    a("s_waitcnt lgkmcnt(0)")
    a("v_readfirstlane_b32 s36, v28")
    a("s_cmp_lg_u32 s36, 3")
    a("s_cbranch_scc1 %s_nozs" % name)
    a("v_mov_b32 v28, 0")
    a("buffer_store_dword v27, v28, s[12:15], s97 offen sc1")
    a.label("%s_nozs" % name)
    a("s_mov_b64 exec, -1")
    stamp(a, 7)
    srd(a, 16, 88, 576 * 2048 * 2)
    srd(a, 84, 90, 576 * 2)
    a("s_mov_b32 s34, 0")
    a.label("%s_wb" % name)
    a("ds_read_b32 v27, v26 offset:12")
    a("s_add_u32 s34, s34, 1")
    a("s_waitcnt lgkmcnt(0)")
    a("v_readfirstlane_b32 s36, v27")
    a("s_cmp_gt_u32 s34, %d" % (SPIN_MAX * 20))
    a("s_cbranch_scc1 %s_wbx" % name)
    a("s_cmp_ge_u32 s36, 4")
    a("s_cbranch_scc1 %s_wbx" % name)
    a("s_sleep 2")
    a("s_branch %s_wb" % name)
    a.label("%s_wbx" % name)
    for g in range(4):
        a("s_add_u32 s35, s24, %d" % (g * SLOT))
        a("s_mov_b32 m0, s35")
        a("s_add_u32 s36, s26, %d" % (128 * g))
        for n in range(4):
            a("buffer_load_dwordx4 v%d, s[8:11], s36 offen offset:%d lds" % (10 + n, n * 1024))
    a("v_mov_b32 v250, v12"); a("v_mov_b32 v251, v13"); a("v_mov_b32 v252, v26")
    a("s_mov_b32 s39, 0x%x" % KVT)
    a("s_waitcnt vmcnt(16)")
    for n in range(11): a("v_mov_b32 v%d, v%d" % (16 + n, 128 + n))
    for n in range(8): a("v_mov_b32 v%d, v%d" % (32 + n, 140 + n))
    for n in range(4): a("v_mov_b32 v%d, v%d" % (44 + n, 148 + n))
    a("v_mov_b32 v56, v152"); a("v_mov_b32 v57, v153")
    a.label("%s_kvb" % name)
    emit_kv_compute(a, wait=False, store=False)
    a("buffer_store_dwordx4 v[120:123], v12, s[12:15], s39 offen sc1")
    a("buffer_store_dwordx4 v[124:127], v13, s[12:15], s39 offen sc1")
    a("s_cmp_lt_u32 s41, 256")
    a("s_cbranch_scc1 %s_kvbd" % name)
    a("s_mov_b32 s41, 0")
    for n in range(11): a("v_mov_b32 v%d, v%d" % (16 + n, 156 + n))
    for n in range(8): a("v_mov_b32 v%d, v%d" % (32 + n, 168 + n))
    for n in range(4): a("v_mov_b32 v%d, v%d" % (44 + n, 176 + n))
    a("v_mov_b32 v56, v180"); a("v_mov_b32 v57, v181")
    a("s_branch %s_kvb" % name)
    a.label("%s_kvbd" % name)
    a("s_nop 1")
    a("v_mov_b32 v12, v250"); a("v_mov_b32 v13, v251"); a("v_mov_b32 v26, v252")
    a("s_mov_b32 s34, 0")
    a("s_cmp_lg_u32 s3, 0")
    a("s_cbranch_scc1 %s_pl" % name)
    a("v_and_b32 v28, 15, v2")
    a("v_lshlrev_b32 v30, 2, v28")
    a("v_lshlrev_b32 v28, 12, v28")
    a("s_lshl_b32 s52, s23, 8")
    a("s_add_u32 s52, s52, 0x%x" % ZFLG)
    a.label("%s_pz0" % name)
    a("buffer_load_dword v31, v30, s[60:63], 0 offen sc1")
    a("s_add_u32 s34, s34, 1")
    a("s_waitcnt vmcnt(0)")
    a("v_cmp_gt_u32 vcc, 16, v31")
    a("s_cmp_gt_u32 s34, %d" % SPIN_MAX)
    a("s_cbranch_scc1 %s_pz" % name)
    a("s_cbranch_vccz %s_pz" % name)
    a("s_sleep 32")
    a("s_branch %s_pz0" % name)
    a.label("%s_pz" % name)
    a("buffer_load_dword v29, v28, s[12:15], s52 offen sc1")
    a("s_add_u32 s34, s34, 1")
    a("s_waitcnt vmcnt(0)")
    a("v_cmp_ne_u32 vcc, 1, v29")
    a("s_cmp_gt_u32 s34, %d" % SPIN_MAX)
    a("s_cbranch_scc1 %s_pzx" % name)
    a("s_cbranch_vccz %s_pzx" % name)
    a("s_sleep 8")
    a("s_branch %s_pz" % name)
    a.label("%s_pzx" % name)
    a("v_mov_b32 v27, 1")
    a("ds_write_b32 v26, v27 offset:4")
    a("s_branch %s_pgo" % name)
    a.label("%s_pl" % name)
    a("ds_read_b32 v27, v26 offset:4")
    a("s_add_u32 s34, s34, 1")
    a("s_waitcnt lgkmcnt(0)")
    a("v_readfirstlane_b32 s36, v27")
    a("s_cmp_gt_u32 s34, %d" % (SPIN_MAX * 20))
    a("s_cbranch_scc1 %s_pgo" % name)
    a("s_cmp_lg_u32 s36, 0")
    a("s_cbranch_scc1 %s_pgo" % name)
    a("s_sleep 2")
    a("s_branch %s_pl" % name)
    a.label("%s_pgo" % name)
    stamp(a, 8)
    for g in range(4):
        a("s_add_u32 s35, s24, %d" % (g * SLOT + TREG))
        a("s_mov_b32 m0, s35")
        a("s_add_u32 s36, s27, %d" % (18432 * g))
        a("s_add_u32 s37, s36, s32")
        for n in range(4):
            a("buffer_load_dwordx4 v14, s[12:15], s36 offen offset:%d sc1 lds" % (n * 1024))
        a("s_add_u32 s35, s35, s32")
        a("s_mov_b32 m0, s35")
        a("s_mov_b64 exec, 0xffffffff")
        a("buffer_load_dwordx4 v14, s[12:15], s37 offen sc1 lds")
        a("s_mov_b64 exec, -1")
    a("s_add_u32 s26, s26, 512")
    a("s_add_u32 s27, s27, %d" % (4 * 18432))
    a("s_mov_b32 s33, 0")
    a("s_lshl_b32 s43, s2, 2")
    a("s_add_u32 s43, s43, s3")
    a("s_and_b32 s53, s43, 1")
    a("s_sub_u32 s36, s43, 448")
    a("s_lshr_b32 s37, s43, 1")
    a("s_cmp_ge_u32 s43, 896")
    a("s_cselect_b32 s43, s36, s37")
    a("s_cselect_b32 s53, 2, s53")
    a("s_waitcnt vmcnt(15)")
    a("s_barrier")
    a("s_waitcnt vmcnt(10)")
    a("s_barrier")
    a("s_waitcnt vmcnt(5)")
    a("s_barrier")
    a("s_mov_b32 s34, 4")
    def issue2():
        a("s_add_u32 s35, s33, s24")
        a("s_mov_b32 m0, s35")
        a("s_add_u32 s36, s35, %d" % TREG)
        for n in range(4):
            a("buffer_load_dwordx4 v%d, s[8:11], s26 offen offset:%d lds" % (10 + n, n * 1024))
        a("s_mov_b32 m0, s36")
        a("s_add_u32 s37, s27, s32")
        for n in range(4):
            a("buffer_load_dwordx4 v14, s[12:15], s27 offen offset:%d sc1 lds" % (n * 1024))
        a("s_add_u32 s36, s36, s32")
        a("s_mov_b32 m0, s36")
        a("s_mov_b64 exec, 0xffffffff")
        a("buffer_load_dwordx4 v14, s[12:15], s37 offen sc1 lds")
        a("s_mov_b64 exec, -1")
        a("s_add_u32 s26, s26, 128")
        a("s_add_u32 s27, s27, 18432")
        a("s_add_u32 s33, s33, %d" % SLOT)
        a("s_cmp_eq_u32 s33, %d" % (R * SLOT))
        a("s_cselect_b32 s33, 0, s33")
    a.label("%s_lloop" % name)
    issue2()
    a("s_cmp_eq_u32 s34, 8")
    a("s_cbranch_scc1 %s_hk0" % name)
    a("s_cmp_eq_u32 s34, 18")
    a("s_cbranch_scc1 %s_hk1" % name)
    a("s_cmp_eq_u32 s34, 21")
    a("s_cbranch_scc1 %s_hk2" % name)
    a("s_waitcnt vmcnt(9)")
    a.label("%s_lcont" % name)
    a("s_barrier")
    a("s_add_u32 s34, s34, 1")
    a("s_cmp_lt_u32 s34, 32")
    a("s_cbranch_scc1 %s_lloop" % name)
    a("s_branch %s_ldone" % name)
    a.label("%s_hk0" % name)
    a("v_mov_b32 v27, 1")
    a("s_mov_b64 exec, 1")
    a("ds_add_rtn_u32 v28, v26, v27 offset:8")
    a("s_waitcnt lgkmcnt(0)")
    a("v_readfirstlane_b32 s36, v28")
    a("s_cmp_lg_u32 s36, 3")
    a("s_cbranch_scc1 %s_hk0x" % name)
    a("s_and_b32 s36, s2, 15")
    a("s_lshl_b32 s36, s36, 2")
    a("s_add_u32 s36, s36, 128")
    a("v_mov_b32 v28, s36")
    a("buffer_atomic_add v27, v28, s[60:63], 0 offen sc1")
    a.label("%s_hk0x" % name)
    a("s_mov_b64 exec, -1")
    a("s_waitcnt vmcnt(9)")
    a("s_branch %s_lcont" % name)
    a.label("%s_hk1" % name)
    a("v_and_b32 v28, 15, v2")
    a("v_lshlrev_b32 v28, 2, v28")
    a("buffer_load_dword v29, v28, s[60:63], 0 offen offset:128 sc1")
    a("s_waitcnt vmcnt(10)")
    a("s_branch %s_lcont" % name)
    a.label("%s_hk2" % name)
    a("s_mov_b32 s52, 0")
    a.label("%s_hk2l" % name)
    a("v_cmp_gt_u32 vcc, 16, v29")
    a("s_add_u32 s52, s52, 1")
    a("s_cmp_gt_u32 s52, %d" % SPIN_MAX)
    a("s_cbranch_scc1 %s_hk2g" % name)
    a("s_cbranch_vccz %s_hk2g" % name)
    a("s_sleep 16")
    a("buffer_load_dword v29, v28, s[60:63], 0 offen offset:128 sc1")
    a("s_waitcnt vmcnt(0)")
    a("s_branch %s_hk2l" % name)
    a.label("%s_hk2g" % name)
    nconv = emit_conv_loads(a, " sc1")
    a("s_waitcnt vmcnt(%d)" % (9 + nconv))
    a("s_branch %s_lcont" % name)
    a.label("%s_ldone" % name)
    a("s_waitcnt vmcnt(0)")
    a("s_barrier")
    a("s_mov_b32 s26, s53")
    a("s_and_b32 s27, s3, 1")
    a("s_mul_i32 s27, s27, %d" % CJ_SIZE)
    a("s_lshr_b32 s36, s3, 1")
    a("s_mul_i32 s36, s36, %d" % SLOT)
    a("s_add_u32 s27, s27, s36")
    a("s_add_u32 s27, s27, %d" % RB)
    def mid():
        a("s_barrier")
        a("s_setprio 0")
    sv = set(DBG); DBG.discard("stamp")
    emit_conv_job(a, name, mid)
    DBG.update(sv)
    G.stamp_rt(a, 1)
    a.label("%s_end" % name)
    a("s_endpgm")
    return a.text(), kernel_desc(name, 256, 256), (name, 256, 512, LDSB)

def gen_kf2(name="k1_kernel", R=4):
    a = Asm()
    RB = 4096; SLOT = 34816; TREG = 16384; FS = 288; RST = 0
    LDSB = RB + R * SLOT
    LC = 2048
    ZFLG = 0x2D00000
    from gen3 import emit_conv_loads, emit_conv_job, CJ_SIZE
    def capture(f, *args):
        lb = len(a.lines); f(*args); out = a.lines[lb:]; del a.lines[lb:]; return out
    kernel_begin(a, name)
    a("s_load_dwordx2 s[80:81], s[0:1], 0")
    a("s_load_dwordx2 s[4:5], s[0:1], 56")
    a("s_load_dwordx2 s[6:7], s[0:1], 104")
    a("s_load_dwordx2 s[18:19], s[0:1], 96")
    a("s_cmp_ge_u32 s2, 256")
    a("s_cbranch_scc1 %s_end" % name)
    a("v_lshrrev_b32 v1, 6, v0")
    a("v_and_b32 v2, 63, v0")
    a("v_readfirstlane_b32 s3, v1")
    G2.tile_ij(a)
    a("s_lshr_b32 s98, s3, 2")
    a("s_mov_b32 s54x, 0".replace("s54x", "s99"))
    a("s_and_b32 s3, s3, 3")
    a("s_lshr_b32 s24, s3, 1")
    a("s_and_b32 s25, s3, 1")
    a("v_and_b32 v3, 15, v2")
    VT = 204; VF = 208
    def loader_setup():
        a("v_lshrrev_b32 v5, 3, v2")
        a("v_and_b32 v4, 7, v2")
        a("s_lshl_b32 s36, s3, 5")
        a("v_add_u32 v5, s36, v5")
        a("v_lshrrev_b32 v7, 4, v2")
        a("v_xor_b32 v7, v7, v4")
        a("v_mul_u32_u24 v6, 1152, v5")
        a("v_lshl_add_u32 v%d, v7, 4, v6" % VT)
        a("v_xor_b32 v%d, 64, v%d" % (VT + 1, VT))
        a("v_add_u32 v%d, %d, v%d" % (VT + 1, 9216 - 1024, VT + 1))
        a("v_add_u32 v%d, %d, v%d" % (VT + 2, 2 * (9216 - 1024), VT))
        a("v_add_u32 v%d, %d, v%d" % (VT + 3, 2 * (9216 - 1024), VT + 1))
        a("s_lshl_b32 s84, s3, 12")
        a("s_add_u32 s84, s84, %d" % RB)
        a("s_lshl_b32 s85, s3, 9")
        a("s_add_u32 s85, s85, %d" % (RB + TREG + 16384))
    def loader_setup2():
        for n in range(5):
            if n < 4:
                a("s_lshl_b32 s36, s3, 8")
                a("s_add_u32 s36, s36, %d" % (64 * n))
            else:
                a("s_lshl_b32 s36, s3, 5")
                a("s_add_u32 s36, s36, 1024")
            a("v_add_u32 v6, s36, v2")
            a("v_mul_u32_u24 v7, 3641, v6")
            a("v_lshrrev_b32 v7, 16, v7")
            a("v_mul_u32_u24 v8, 18, v7")
            a("v_sub_u32 v8, v6, v8")
            a("v_and_b32 v9, 35, v7")
            a("v_bfe_u32 v6, v7, 2, 2")
            a("v_lshl_add_u32 v9, v6, 3, v9")
            a("v_bfe_u32 v6, v7, 4, 1")
            a("v_lshl_add_u32 v9, v6, 2, v9")
            a("v_mul_u32_u24 v9, 9216, v9")
            a("v_lshl_add_u32 v%d, v8, 4, v9" % (VF + n))
            if 0 < n < 4: a("v_subrev_u32 v%d, %d, v%d" % (VF + n, 1024 * n, VF + n))
    def issueT(g):
        st = g % 9
        a("s_add_u32 s86, s84, %d" % ((g % R) * SLOT))
        a("s_mov_b32 m0, s86")
        a("s_add_u32 s87, s82, %d" % (128 * st))
        for n in range(4):
            a("buffer_load_dwordx4 v%d, s[28:31], s87 offen offset:%d lds" % (VT + n, 1024 * n))
    def issueF(g):
        st = g % 9
        a("s_add_u32 s86, s84, %d" % ((g % R) * SLOT + TREG))
        a("s_mov_b32 m0, s86")
        a("s_add_u32 s87, s83, %d" % (64 * 9216 * st + (4608 if g < 9 else 0)))
        for n in range(4):
            a("buffer_load_dwordx4 v%d, s[8:11], s87 offen offset:%d lds" % (VF + n, 1024 * n))
        a("s_add_u32 s86, s85, %d" % ((g % R) * SLOT))
        a("s_mov_b32 m0, s86")
        a("s_mov_b64 exec, 0xffffffff")
        a("buffer_load_dwordx4 v%d, s[8:11], s87 offen lds" % (VF + 4))
        a("s_mov_b64 exec, -1")
    def srds_main():
        srd(a, 28, 80, 2048 * 576 * 2)
        srd(a, 8, 4, 576 * 4608 * 2)
        srd(a, 12, 6, WS_BYTES)
        srd(a, 60, 18, 256)
        a("s_mul_i32 s82, s22, %d" % (128 * 1152))
        a("s_mul_i32 s83, s23, 288")
    ACC = 128; FB = [16, 52]; CS = 216; ONE = 236
    vTa = [4, 5]; vTb = [6, 7]; vF = 8; vFh = 9
    bTa = [88, 89]; bTb = [90, 91]; bF = 92; bFh = 93
    def mma_setup():
        a("v_lshrrev_b32 v10, 4, v2")
        a("v_lshrrev_b32 v11, 1, v3")
        a("v_xor_b32 v10, v10, v11")
        a("v_lshlrev_b32 v10, 4, v10")
        a("v_lshl_add_u32 v10, v3, 7, v10")
        a("s_lshl_b32 s26, s24, 13")
        a("s_add_u32 s26, s26, %d" % RB)
        a("v_add_u32 v10, s26, v10")
        a("s_lshl_b32 s26, s25, 12")
        a("v_add_u32 v%d, s26, v10" % bTa[0])
        a("s_xor_b32 s26, s26, 4096")
        a("v_add_u32 v%d, s26, v10" % bTb[0])
        a("v_xor_b32 v%d, 64, v%d" % (bTa[1], bTa[0]))
        a("v_xor_b32 v%d, 64, v%d" % (bTb[1], bTb[0]))
        a("v_lshrrev_b32 v10, 2, v2")
        a("v_mul_u32_u24 v10, %d, v10" % FS)
        a("v_and_b32 v11, 3, v2")
        a("v_lshl_add_u32 v10, v11, 3, v10")
        a("v_add_u32 v10, %d, v10" % (RB + TREG))
        a("s_mul_i32 s26, s25, 160")
        a("v_add_u32 v%d, s26, v10" % bF)
        a("v_add_u32 v%d, 128, v10" % bFh)
        for r in range(ACC, ACC + 72): a("v_mov_b32 v%d, 0" % r)
        for r in range(CS, CS + 20): a("v_mov_b32 v%d, 0" % r)
        for r in range(ONE, ONE + 4): a("v_mov_b32 v%d, 0x3f803f80" % r)
    def mma_addr(slot):
        a("s_mov_b32 s27, %d" % (slot * SLOT))
        for d, s_ in ((vTa[0], bTa[0]), (vTb[0], bTb[0]), (vTa[1], bTa[1]), (vTb[1], bTb[1]), (vF, bF), (vFh, bFh)):
            a("v_add_u32 v%d, s27, v%d" % (d, s_))
    core = G.Core(a, ACC, FB[0], FB[1], FS, TREG, vTa, vTb, vF, vFh)
    trk = core.trk
    a("s_cmp_eq_u32 s98, 0")
    a("s_cbranch_scc1 %s_A0" % name)
    a("s_setprio 3")
    loader_setup()
    a("s_waitcnt lgkmcnt(0)")
    srds_main()
    vm = VmTracker(a)
    def issue(g, vmx):
        issueT(g); issueF(g); vmx.issue("S%d" % g, 9)
    issueT(0)
    loader_setup2()
    issueF(0); vm.issue("S0", 9)
    issue(1, vm); issue(2, vm); issue(3, vm)
    a("s_add_u32 s3, s3, 4"); stamp_setup(a, 1); stamp(a, 0); a("s_sub_u32 s3, s3, 4")
    mma_setup()
    RA = 96; XB = 112
    for r in range(RA, RA + 16): a("v_mov_b32 v%d, 0" % r)
    a("v_lshrrev_b32 v10, 4, v2")
    a("v_lshrrev_b32 v11, 1, v3")
    a("v_xor_b32 v10, v10, v11")
    a("v_lshlrev_b32 v10, 4, v10")
    a("v_lshl_add_u32 v10, v3, 7, v10")
    a("v_add_u32 v12, s84, v10")
    a("v_xor_b32 v13, 64, v12")
    def rs_rd(g):
        a("v_add_u32 v10, %d, v12" % ((g % R) * SLOT))
        a("v_add_u32 v11, %d, v13" % ((g % R) * SLOT))
        for h in range(2):
            for n in range(2):
                a("ds_read_b128 %s, v%d offset:%d" % (vr(XB + 8 * h + 4 * n), 10 + h, 2048 * n))
    def rs_do():
        for h in range(2):
            for n in range(2):
                x = XB + 8 * h + 4 * n
                a("v_mfma_f32_16x16x32_bf16 %s, %s, %s, %s" % (vr(RA + 4 * n), vr(ONE), vr(x), vr(RA + 4 * n)))
                a("v_mfma_f32_16x16x32_bf16 %s, %s, %s, %s" % (vr(RA + 8 + 4 * n), vr(x), vr(x), vr(RA + 8 + 4 * n)))
    def interleave(dma, comp, vmx=None):
        groups = []; cur = []
        for l in dma:
            cur.append(l)
            if "buffer_load" in l and not any("exec, 0xffffffff" in x for x in cur[-2:]):
                groups.append(cur); cur = []
            elif "exec, -1" in l:
                groups.append(cur); cur = []
        if cur: groups.append(cur)
        ns = max(1, len(groups))
        per = (len(comp) + ns - 1) // ns
        for g in groups:
            a.lines.extend(g)
            a.lines.extend(comp[:per]); comp = comp[per:]
        a.lines.extend(comp)
    vm.wait(["S0"])
    a("s_barrier")
    stamp(a, 1)
    rs_rd(0)
    vm.wait(["S1"])
    a("s_barrier")
    for k in range(9):
        a("s_waitcnt lgkmcnt(0)")
        dma = capture(lambda: (issueT(k + 3), issueF(k + 3))) if k >= 1 else []
        interleave(dma, capture(rs_do))
        if k >= 1: vm.issue("S%d" % (k + 3), 9)
        if k < 8:
            rs_rd(k + 1)
        else:
            a("s_nop 7")
            a("v_lshrrev_b32 v10, 4, v2")
            a("v_lshrrev_b32 v11, 2, v3")
            a("v_and_b32 v12, 3, v3")
            for n in range(2):
                G_ = RA + 8 + 4 * n
                for r in range(1, 4):
                    a("v_cmp_eq_u32 vcc, %d, v12" % r)
                    a("s_nop 1")
                    a("v_cndmask_b32 v%d, v%d, v%d, vcc" % (G_, G_, G_ + r))
            ML = 112
            for n in range(2):
                emit_ln_finish(a, RA + 4 * n, RA + 8 + 4 * n, 576, ML + 2 * n, ML + 2 * n + 1, 120)
                a("v_mov_b32 v%d, v%d" % (117 + 2 * n, ML + 2 * n + 1))
                a("v_sub_f32 v%d, 0, v%d" % (116 + 2 * n, ML + 2 * n))
            a("s_lshl_b32 s35, s3, 8")
            a("v_lshlrev_b32 v13, 3, v3")
            a("v_add_u32 v12, s35, v13")
            a("v_cmp_eq_u32 vcc, v10, v11")
            a("s_and_saveexec_b64 s[36:37], vcc")
            for n in range(2):
                a("ds_write_b64 v12, %s offset:%d" % (vr(116 + 2 * n, 2), RST + 128 * n))
            a("s_mov_b64 exec, s[36:37]")
            a("s_cmp_lg_u32 s23, 0")
            a("s_cbranch_scc1 %s_nost1" % name)
            a("s_lshl_b32 s35, s22, 7")
            a("s_lshl_b32 s36, s3, 5")
            a("s_add_u32 s35, s35, s36")
            a("s_lshl_b32 s35, s35, 3")
            a("s_add_u32 s35, s35, 0x%x" % STATS1)
            a("v_mov_b32 v11, 0x7ffffff0")
            a("v_cndmask_b32 v13, v11, v13, vcc")
            for n in range(2):
                a("buffer_store_dwordx2 %s, v13, s[12:15], s35 offen offset:%d" % (vr(ML + 2 * n, 2), 128 * n))
            a.label("%s_nost1" % name)
            mma_addr(9 % R)
            a("s_mov_b32 s33, 0")
            a("s_setprio 0")
        vm.wait(["S%d" % (k + 2)], "lgkmcnt(0)" if k == 8 else "")
        if k < 8: a("s_barrier")
    a("s_branch %s_mma" % name)
    a.label("%s_A0" % name)
    emit_code_prefetch(a, name)
    a("s_load_dwordx4 s[64:67], s[0:1], 8")
    a("s_load_dwordx2 s[76:77], s[0:1], 24")
    a("s_load_dwordx2 s[78:79], s[0:1], 64")
    a("s_waitcnt lgkmcnt(0)")
    srds_main()
    srd(a, 68, 66, 2048 * 576 * 2)
    a("s_mov_b32 s88, s64"); a("s_mov_b32 s89, s65")
    srd(a, 64, 88, 2048 * 576 * 2)
    srd(a, 72, 76, 576 * 8)
    a("s_mov_b32 s41, s2")
    emit_kv_loads(a)
    a("s_cmp_ge_u32 s2, 32")
    a("s_cbranch_scc1 %s_kv1" % name)
    a("s_add_u32 s41, s2, 256")
    emit_kv_loads(a, 128, 140, 148, 152, 153)
    a.label("%s_kv1" % name)
    loader_setup(); loader_setup2()
    a("s_mov_b32 s39, 0x%x" % KVT)
    a("s_waitcnt vmcnt(0)")
    a.label("%s_kv2" % name)
    emit_kv_compute(a, wait=False, store=False)
    a("buffer_store_dwordx4 v[120:123], v12, s[12:15], s39 offen sc1")
    a("buffer_store_dwordx4 v[124:127], v13, s[12:15], s39 offen sc1")
    a("s_cmp_lt_u32 s41, 256")
    a("s_cbranch_scc1 %s_kv3" % name)
    a("s_mov_b32 s41, 0")
    for n in range(11): a("v_mov_b32 v%d, v%d" % (16 + n, 128 + n))
    for n in range(8): a("v_mov_b32 v%d, v%d" % (32 + n, 140 + n))
    for n in range(4): a("v_mov_b32 v%d, v%d" % (44 + n, 148 + n))
    a("v_mov_b32 v56, v152"); a("v_mov_b32 v57, v153")
    a("s_branch %s_kv2" % name)
    a.label("%s_kv3" % name)
    mma_setup()
    stamp_setup(a, 1); stamp(a, 0)
    def gran_addr():
        a("v_lshrrev_b32 v10, 4, v2")
        a("s_lshl_b32 s36, s25, 1")
        a("v_add_u32 v11, s36, v10")
        a("v_and_b32 v11, 3, v11")
        a("v_lshl_add_u32 v11, v11, 4, v3")
        a("v_lshlrev_b32 v94, 8, v11")
        a("s_lshl_b32 s59, s22, 7")
        a("s_lshl_b32 s36, s24, 6")
        a("s_add_u32 s59, s59, s36")
        a("s_lshl_b32 s59, s59, 8")
        a("s_add_u32 s59, s59, 0x%x" % STATS2)
        a("s_lshl_b32 s36, s23, 1")
        a("s_add_u32 s36, s36, s25")
        a("s_lshl_b32 s36, s36, 3")
        a("s_add_u32 s58, s36, s59")
    gran_addr()
    a("v_mov_b32 v12, 0"); a("v_mov_b32 v13, 0x80000000")
    a("buffer_store_dwordx2 v[12:13], v94, s[12:15], s58 offen sc1")
    a("s_lshl_b32 s36, s22, 4")
    a("s_add_u32 s36, s36, s23")
    a("s_lshl_b32 s36, s36, 8")
    a("s_add_u32 s97, s36, 0x%x" % ZFLG)
    a("v_mov_b32 v10, %d" % LC)
    a("v_mov_b32 v12, 0"); a("v_mov_b32 v13, 0")
    a("s_mov_b64 exec, 1")
    a("buffer_store_dword v12, v12, s[12:15], s97 offen sc1")
    a("s_mov_b64 exec, -1")
    a("ds_write_b64 v10, v[12:13]")
    a("ds_write_b64 v10, v[12:13] offset:8")
    mma_addr(0)
    a("s_mov_b32 s33, 0")
    a("s_waitcnt lgkmcnt(0)")
    a("s_barrier")
    stamp(a, 1)
    a.label("%s_mma" % name)
    core.prime(0, core.reads(0, 0))
    trk.drain()
    nocs = [False]
    def mfmas(buf):
        L = []
        for ft in range(5):
            A = core.F(buf, ft)
            for tt in range(4 if ft < 4 else 2):
                c = core.accr(ft, tt); B = core.T(buf, tt)
                L.append(("v_mfma_f32_16x16x32_bf16 %s, %s, %s, %s" % (vr(c), vr(A), vr(B), vr(c)), list(range(A, A + 4)) + list(range(B, B + 4))))
            if not nocs[0]: L.append(("v_mfma_f32_16x16x32_bf16 %s, %s, %s, %s" % (vr(CS + 4 * ft), vr(A), vr(ONE), vr(CS + 4 * ft)), list(range(A, A + 4))))
        return L
    def phase(buf, pend):
        for (m, regs) in mfmas(buf):
            trk.need(regs)
            a(m)
            while pend:
                k, t = pend.pop(0)
                if k == "x":
                    a(t)
                    if t.startswith("s_"): continue
                else:
                    a(t[0]); trk.issue(t[1])
                break
        for k, t in pend:
            if k == "x": a(t)
            else: a(t[0]); trk.issue(t[1])
    def iteration(vw=True):
        if vw: a("s_waitcnt vmcnt(0)")
        a("s_barrier")
        rd = [("r", t) for t in core.reads(1, 1)]
        upd = ["s_add_u32 s27, s27, %d" % SLOT, "s_cmp_eq_u32 s27, %d" % (R * SLOT), "s_cselect_b32 s27, 0, s27"]
        tail = ["v_add_u32 v%d, s27, v%d" % (d, s_) for d, s_ in ((vTa[0], bTa[0]), (vF, bF), (vTb[0], bTb[0]), (vFh, bFh))]
        phase(0, rd[:1] + [("x", u) for u in upd] + rd[1:] + [("x", u) for u in tail])
        rd = [("r", t) for t in core.reads(0, 0)]
        tail = ["v_add_u32 v%d, s27, v%d" % (d, s_) for d, s_ in ((vTa[1], bTa[1]), (vTb[1], bTb[1]))] + ["s_add_u32 s33, s33, 1"]
        phase(1, rd + [("x", u) for u in tail])
    a.label("%s_cloop" % name)
    lb = len(a.lines); iteration(); st = copy.deepcopy(trk.out); del a.lines[lb:]; trk.out = copy.deepcopy(st)
    iteration()
    assert [sorted(x) for x in trk.out] == [sorted(x) for x in st]
    a("s_cmp_lt_u32 s33, 9")
    a("s_cbranch_scc1 %s_cloop" % name)
    trk.drain()
    stamp(a, 2)
    MR = 100; T = 72; ZP = 16
    def epi_in():
        gelu_consts(a)
        a("s_lshl_b32 s36, s24, 9")
        a("s_lshl_b32 s37, s25, 8")
        a("s_add_u32 s38, s36, s37")
        a("s_xor_b32 s37, s37, 256")
        a("s_add_u32 s39, s36, s37")
        a("v_lshlrev_b32 v10, 3, v3")
        a("v_add_u32 v11, s38, v10")
        a("ds_read_b64 %s, v11 offset:%d" % (vr(MR, 2), RST))
        a("ds_read_b64 %s, v11 offset:%d" % (vr(MR + 2, 2), RST + 128))
        a("v_add_u32 v11, s39, v10")
        a("ds_read_b64 %s, v11 offset:%d" % (vr(MR + 4, 2), RST))
        a("ds_read_b64 %s, v11 offset:%d" % (vr(MR + 6, 2), RST + 128))
        a("s_waitcnt lgkmcnt(0)")
    S = [108, 110, 52, 54]; Q = [109, 111, 53, 55]
    def gelu_ft(ft, stats):
        tts = range(4 if ft < 4 else 2)
        emit_fold_gelu(a, [(core.accr(ft, tt), CS + 4 * ft, MR + 2 * tt, ZP + 2 * tidx(ft, tt)) for tt in tts], T)
        if stats:
            for d in range(2):
                for tt in tts:
                    p = ZP + 2 * tidx(ft, tt) + d
                    a("v_dot2_f32_bf16 v%d, v%d, v%d, v%d" % (S[tt], p, ONE, S[tt]))
                    a("v_dot2_f32_bf16 v%d, v%d, v%d, v%d" % (Q[tt], p, p, Q[tt]))
    a("s_cmp_eq_u32 s98, 0")
    a("s_cbranch_scc1 %s_A1" % name)
    a("s_barrier")
    a("s_load_dwordx2 s[94:95], s[0:1], 80")
    a("s_load_dwordx2 s[92:93], s[0:1], 72")
    epi_in()
    srd(a, 76, 94, 2304 * 576 * 2)
    srd(a, 28, 92, 2048 * 2)
    a("v_and_b32 v0, 255, v0")
    for ft in range(5): gelu_ft(ft, False)
    Z1R = 200; BI = 236
    for r_ in range(36): a("v_mov_b32 v%d, v%d" % (Z1R + r_, ZP + r_))
    stamp(a, 3)
    a("s_mov_b32 s42, s2")
    emit_wot_loads(a, 100, 112, 720, 3)
    a("s_lshl_b32 s36, s22, 7")
    a("s_lshl_b32 s37, s24, 6")
    a("s_add_u32 s36, s36, s37")
    a("v_lshlrev_b32 v11, 1, v3")
    a("s_lshl_b32 s37, s25, 6")
    a("s_lshl_b32 s38, s36, 1")
    a("s_add_u32 s39, s38, s37")
    a("s_xor_b32 s37, s37, 64")
    a("s_add_u32 s36, s38, s37")
    a("buffer_load_ushort v96, v11, s[28:31], s39 offen")
    a("buffer_load_ushort v97, v11, s[28:31], s39 offen offset:32")
    a("buffer_load_ushort v98, v11, s[28:31], s36 offen")
    a("buffer_load_ushort v99, v11, s[28:31], s36 offen offset:32")
    for r in range(ACC, ACC + 72): a("v_mov_b32 v%d, 0" % r)
    mma_addr(0)
    a("s_mov_b32 s33, 0")
    stamp(a, 4)
    a("s_barrier")
    stamp(a, 5)
    core.prime(0, core.reads(0, 0))
    trk.drain()
    nocs[0] = True
    a.label("%s_gloop" % name)
    lb = len(a.lines); iteration(False); st = copy.deepcopy(trk.out); del a.lines[lb:]; trk.out = copy.deepcopy(st)
    iteration(False)
    assert [sorted(x) for x in trk.out] == [sorted(x) for x in st]
    a("s_cmp_lg_u32 s33, 3")
    a("s_cbranch_scc1 %s_ghk" % name)
    a("s_waitcnt vmcnt(0)")
    for n in range(3):
        a("buffer_store_dwordx4 %s, v%d, s[12:15], s40 offen" % (vr(100 + 4 * n), 112 + n))
    for tt in range(4): a("v_lshlrev_b32 v%d, 16, v%d" % (BI + 2 * tt, 96 + tt))
    a.label("%s_ghk" % name)
    a("s_cmp_lt_u32 s33, 32")
    a("s_cbranch_scc1 %s_gloop" % name)
    trk.drain()
    stamp(a, 6)
    G3.emit_k2_epilogue(a, core, Z1R, BI)
    stamp(a, 7)
    G.stamp_rt(a, 1)
    a("s_branch %s_end" % name)
    a.label("%s_A1" % name)
    a("s_setprio 2")
    vmA = VmTracker(a)
    PB = 132
    def aux_head():
        epi_in()
        for tt in range(4):
            a("v_mov_b32 v%d, 0" % S[tt]); a("v_mov_b32 v%d, 0" % Q[tt])
    def aux_pub():
        a("s_nop 2")
        emit_xg_reduce(a, S + Q, 72)
        a("v_lshrrev_b32 v10, 4, v2")
        for g in range(1, 4):
            a("v_cmp_eq_u32 vcc, %d, v10" % g)
            a("s_nop 1")
            a("v_cndmask_b32 v%d, v%d, v%d, vcc" % (S[0], S[0], S[g]))
            a("v_cndmask_b32 v%d, v%d, v%d, vcc" % (Q[0], Q[0], Q[g]))
        a("v_and_b32 v%d, 0x7fffffff, v%d" % (Q[0], Q[0]))
        a("buffer_store_dwordx2 v[%d:%d], v94, s[12:15], s58 offen sc1" % (S[0], Q[0]))
    chunks = [capture(aux_head) + capture(gelu_ft, 0, True), capture(gelu_ft, 1, True), capture(gelu_ft, 2, True),
              capture(gelu_ft, 3, True), capture(gelu_ft, 4, True) + capture(aux_pub)]
    KD = 172
    for k in range(9, 18):
        a("s_barrier")
        if k == 9:
            a("s_cmp_lg_u32 s3, 0")
            a("s_cbranch_scc1 %s_nosig" % name)
            a("v_mov_b32 v10, 1")
            a("s_lshl_b32 s36, s22, 2")
            a("v_mov_b32 v11, s36")
            a("s_mov_b64 exec, 1")
            a("buffer_atomic_add v10, v11, s[60:63], 0 offen sc1")
            a("s_mov_b64 exec, -1")
            a.label("%s_nosig" % name)
        g = k + 3
        dma = capture(lambda: (issueT(g), issueF(g))) if g < 18 else []
        comp = chunks[k - 9] if k - 9 < len(chunks) else []
        interleave(dma, comp)
        if k == 13: vmA.issue("pub", 1)
        if g < 18: vmA.issue("S%d" % g, 9)
        if k == 14:
            srd(a, 92, 78, 2048 * 2048 * 2)
            a("v_lshrrev_b32 v10, 4, v2")
            a("v_lshlrev_b32 v10, 12, v10")
            a("v_lshl_add_u32 v10, v3, 4, v10")
            a("s_lshl_b32 s40, s22, 7")
            a("s_lshl_b32 s36, s3, 5")
            a("s_add_u32 s40, s40, s36")
            a("s_lshl_b32 s40, s40, 12")
            a("s_lshl_b32 s36, s23, 8")
            a("s_add_u32 s40, s40, s36")
            for n in range(8):
                a("buffer_load_dwordx4 v[200:203], v10, s[92:95], s40 offen")
                if n < 7: a("s_add_u32 s40, s40, 16384")
            vmA.issue("wp", 8)
            a("s_lshl_b32 s36, s22, 2")
            a("v_mov_b32 v199, s36")
            a("buffer_load_dword v198, v199, s[60:63], 0 offen sc1"); vmA.issue("cnt", 1)
        if k + 2 < 18 and k + 2 >= 12:
            vmA.wait(["S%d" % (k + 2)])
    a("s_barrier")
    stamp(a, 3)
    a("s_load_dwordx4 s[88:91], s[0:1], 32")
    a("v_lshrrev_b32 v10, 4, v2")
    a("v_lshlrev_b32 v95, 8, v3")
    a("v_lshl_add_u32 v95, v10, 6, v95")
    a("s_lshl_b32 s33, s25, 13")
    a("s_add_u32 s52, s59, s33")
    a("s_xor_b32 s33, s33, 8192")
    a("s_add_u32 s53, s59, s33")
    a("s_add_u32 s42, s52, 4096")
    a("s_add_u32 s43, s53, 4096")
    Z2 = ZP
    a("s_waitcnt vmcnt(0)")
    GB = [128, 144, 160, 176]
    a("v_mov_b32 v4, v95")
    def gather():
        for tt in range(4):
            for q in range(4):
                a("buffer_load_dwordx4 %s, v4, s[12:15], s%d offen offset:%d sc1" % (vr(GB[tt] + 4 * q), (52, 42, 53, 43)[tt], 16 * q))
    gather()
    a("s_mov_b32 s40, 0")
    a("s_waitcnt vmcnt(0)")
    a.label("%s_chk" % name)
    a("v_subrev_u32 v11, 16, v198")
    for tt in range(4):
        for r in range(GB[tt] + 1, GB[tt] + 16, 4):
            a("v_or3_b32 v11, v11, v%d, v%d" % (r, r + 2))
    a("v_cmp_gt_i32 vcc, 0, v11")
    a("s_add_u32 s40, s40, 1")
    a("s_cmp_gt_u32 s40, %d" % SPIN_MAX)
    a("s_cbranch_scc1 %s_ok" % name)
    a("s_cbranch_vccz %s_ok" % name)
    a("s_sleep 32")
    a("buffer_load_dword v198, v199, s[60:63], 0 offen sc1")
    a("s_waitcnt vmcnt(0)")
    gather()
    a("s_waitcnt vmcnt(0)")
    a("s_branch %s_chk" % name)
    a.label("%s_ok" % name)
    stamp(a, 5)
    for tt in range(4):
        b = GB[tt]
        for st_ in (8, 4, 2):
            for q in range(0, st_, 2):
                a("v_pk_add_f32 %s, %s, %s" % (vr(b + q, 2), vr(b + q, 2), vr(b + q + st_, 2)))
    emit_xg_reduce(a, [GB[tt] + e for tt in range(4) for e in range(2)], 72)
    for tt in range(4):
        b = GB[tt]
        emit_ln_finish(a, b, b + 1, 2304, b + 2, MR + 2 * tt, b + 4)
        a("v_mul_f32 v%d, -v%d, v%d" % (MR + 2 * tt + 1, b + 2, MR + 2 * tt))
    a("v_lshrrev_b32 v10, 4, v2")
    a("v_lshrrev_b32 v11, 2, v2"); a("v_and_b32 v11, 1, v11"); a("v_lshlrev_b32 v11, 4, v11")
    a("v_lshrrev_b32 v5, 3, v2"); a("v_and_b32 v5, 1, v5"); a("v_lshl_add_u32 v11, v5, 2, v11")
    a("v_and_b32 v5, 3, v2"); a("v_add_u32 v11, v11, v5")
    a("v_mul_u32_u24 v11, 288, v11")
    a("v_lshrrev_b32 v5, 1, v10"); a("v_lshl_add_u32 v11, v5, 4, v11")
    a("v_and_b32 v5, 1, v10")
    a("v_lshl_add_u32 v6, v5, 5, v11")
    a("v_mul_u32_u24 v5, 2304, v5")
    a("v_add_u32 v9, v11, v5")
    a("s_lshl_b32 s33, s23, 5")
    a("s_lshl_b32 s36, s22, 1")
    a("s_add_u32 s33, s33, s36")
    a("s_add_u32 s33, s33, s24")
    a("s_mul_i32 s33, s33, 18432")
    if ZIMG: a("s_add_u32 s33, s33, 0x%x" % ZIMG)
    a("s_mul_i32 s36, s25, 9216")
    a("s_add_u32 s37, s33, s36")
    a("s_xor_b32 s36, s36, 9216")
    a("s_add_u32 s38, s33, s36")
    a("s_add_u32 s39, s37, 128")
    a("s_mul_i32 s36, s25, 160")
    a("s_add_u32 s37, s37, s36")
    a("s_add_u32 s38, s38, s36")
    def norm_pair(nA, ttA, nB, ttB, O):
        for q, (n, tt) in enumerate(((nA, ttA), (nB, ttB))):
            for d in range(2):
                z = Z2 + 2 * n + d; t = T + 4 * q + 2 * d
                a("v_lshlrev_b32 v%d, 16, v%d" % (t, z))
                a("v_and_b32 v%d, 0xffff0000, v%d" % (t + 1, z))
        for q, (n, tt) in enumerate(((nA, ttA), (nB, ttB))):
            for d in range(2):
                t = T + 4 * q + 2 * d
                a("v_pk_fma_f32 %s, %s, %s, %s op_sel:[0,0,1] op_sel_hi:[1,0,1]" % (vr(t, 2), vr(t, 2), vr(MR + 2 * tt, 2), vr(MR + 2 * tt, 2)))
        for q in range(2):
            for d in range(2):
                t = T + 4 * q + 2 * d
                a("v_cvt_pk_bf16_f32 v%d, v%d, v%d" % (O + 2 * q + d, t, t + 1))
        a("s_nop 1")
        a("v_permlane16_swap_b32 v%d, v%d" % (O, O + 2))
        a("v_permlane16_swap_b32 v%d, v%d" % (O + 1, O + 3))
    cnt = 0
    for pr in range(2):
        for tt in range(4):
            O = 200 + 4 * cnt; cnt += 1
            norm_pair(tidx(2 * pr, tt), tt, tidx(2 * pr + 1, tt), tt, O)
            a("s_nop 0")
            a("buffer_store_dwordx4 %s, v6, s[12:15], s%d offen offset:%d" % (vr(O), 37 if tt < 2 else 38, (tt & 1) * 2304 + 64 * pr) + " sc1")
    O = 200 + 4 * cnt
    norm_pair(16, 0, 17, 1, O)
    a("s_nop 0")
    a("buffer_store_dwordx4 %s, v9, s[12:15], s39 offen sc1" % vr(O))
    stamp(a, 6)
    a("s_setprio 3")
    srd(a, 8, 78, 2048 * 2048 * 2)
    a("v_lshrrev_b32 v3, 3, v2")
    a("s_lshl_b32 s24, s3, 5")
    a("v_add_u32 v3, s24, v3")
    a("v_and_b32 v4, 7, v2")
    a("v_lshrrev_b32 v6, 4, v2")
    a("v_xor_b32 v6, v6, v4")
    a("v_lshlrev_b32 v6, 4, v6")
    a("v_lshl_add_u32 v10, v3, 12, v6")
    a("v_xor_b32 v11, 64, v10")
    a("v_add_u32 v11, %d, v11" % (32768 - 1024))
    a("v_add_u32 v12, %d, v10" % (2 * (32768 - 1024)))
    a("v_add_u32 v13, %d, v11" % (2 * (32768 - 1024)))
    a("v_lshlrev_b32 v14, 4, v2")
    a("s_lshl_b32 s26, s22, 19")
    a("s_mul_i32 s27, s23, %d" % (32 * 18432))
    a("s_lshl_b32 s24, s3, 12")
    a("s_add_u32 s27, s27, s24")
    if ZIMG: a("s_add_u32 s27, s27, 0x%x" % ZIMG)
    a("s_lshl_b32 s25, s3, 9")
    a("s_sub_u32 s32, s25, s24")
    a("s_add_u32 s32, s32, 16384")
    a("s_add_u32 s24, s24, %d" % RB)
    a("s_waitcnt vmcnt(0) lgkmcnt(0)")
    a("v_mov_b32 v26, %d" % LC)
    a("v_mov_b32 v27, 1")
    a("s_mov_b64 exec, 1")
    a("ds_add_rtn_u32 v28, v26, v27")
    a("s_waitcnt lgkmcnt(0)")
    a("v_readfirstlane_b32 s36, v28")
    a("s_cmp_lg_u32 s36, 3")
    a("s_cbranch_scc1 %s_nozs" % name)
    a("v_mov_b32 v28, 0")
    a("buffer_store_dword v27, v28, s[12:15], s97 offen sc1")
    a.label("%s_nozs" % name)
    a("s_mov_b64 exec, -1")
    stamp(a, 7)
    srd(a, 16, 88, 576 * 2048 * 2)
    srd(a, 84, 90, 576 * 2)
    for g in range(4):
        a("s_add_u32 s35, s24, %d" % (g * SLOT))
        a("s_mov_b32 m0, s35")
        a("s_add_u32 s36, s26, %d" % (128 * g))
        for n in range(4):
            a("buffer_load_dwordx4 v%d, s[8:11], s36 offen offset:%d lds" % (10 + n, n * 1024))
    a("s_mov_b32 s34, 0")
    a("s_cmp_lg_u32 s3, 0")
    a("s_cbranch_scc1 %s_pl" % name)
    a("v_and_b32 v28, 15, v2")
    a("v_lshlrev_b32 v30, 2, v28")
    a("v_lshlrev_b32 v28, 12, v28")
    a("s_lshl_b32 s52, s23, 8")
    a("s_add_u32 s52, s52, 0x%x" % ZFLG)
    a.label("%s_pz0" % name)
    a("buffer_load_dword v31, v30, s[60:63], 0 offen sc1")
    a("s_add_u32 s34, s34, 1")
    a("s_waitcnt vmcnt(0)")
    a("v_cmp_gt_u32 vcc, 16, v31")
    a("s_cmp_gt_u32 s34, %d" % SPIN_MAX)
    a("s_cbranch_scc1 %s_pz" % name)
    a("s_cbranch_vccz %s_pz" % name)
    a("s_sleep 32")
    a("s_branch %s_pz0" % name)
    a.label("%s_pz" % name)
    a("buffer_load_dword v29, v28, s[12:15], s52 offen sc1")
    a("s_add_u32 s34, s34, 1")
    a("s_waitcnt vmcnt(0)")
    a("v_cmp_ne_u32 vcc, 1, v29")
    a("s_cmp_gt_u32 s34, %d" % SPIN_MAX)
    a("s_cbranch_scc1 %s_pzx" % name)
    a("s_cbranch_vccz %s_pzx" % name)
    a("s_sleep 8")
    a("s_branch %s_pz" % name)
    a.label("%s_pzx" % name)
    a("v_mov_b32 v27, 1")
    a("ds_write_b32 v26, v27 offset:4")
    a("s_branch %s_pgo" % name)
    a.label("%s_pl" % name)
    a("ds_read_b32 v27, v26 offset:4")
    a("s_add_u32 s34, s34, 1")
    a("s_waitcnt lgkmcnt(0)")
    a("v_readfirstlane_b32 s36, v27")
    a("s_cmp_gt_u32 s34, %d" % (SPIN_MAX * 20))
    a("s_cbranch_scc1 %s_pgo" % name)
    a("s_cmp_lg_u32 s36, 0")
    a("s_cbranch_scc1 %s_pgo" % name)
    a("s_sleep 2")
    a("s_branch %s_pl" % name)
    a.label("%s_pgo" % name)
    stamp(a, 8)
    for g in range(4):
        a("s_add_u32 s35, s24, %d" % (g * SLOT + TREG))
        a("s_mov_b32 m0, s35")
        a("s_add_u32 s36, s27, %d" % (18432 * g))
        a("s_add_u32 s37, s36, s32")
        for n in range(4):
            a("buffer_load_dwordx4 v14, s[12:15], s36 offen offset:%d sc1 lds" % (n * 1024))
        a("s_add_u32 s35, s35, s32")
        a("s_mov_b32 m0, s35")
        a("s_mov_b64 exec, 0xffffffff")
        a("buffer_load_dwordx4 v14, s[12:15], s37 offen sc1 lds")
        a("s_mov_b64 exec, -1")
    a("s_add_u32 s26, s26, 512")
    a("s_add_u32 s27, s27, %d" % (4 * 18432))
    a("s_mov_b32 s33, 0")
    a("s_lshl_b32 s43, s2, 2")
    a("s_add_u32 s43, s43, s3")
    a("s_and_b32 s53, s43, 1")
    a("s_sub_u32 s36, s43, 448")
    a("s_lshr_b32 s37, s43, 1")
    a("s_cmp_ge_u32 s43, 896")
    a("s_cselect_b32 s43, s36, s37")
    a("s_cselect_b32 s53, 2, s53")
    a("s_waitcnt vmcnt(15)")
    a("s_barrier")
    a("s_waitcnt vmcnt(10)")
    a("s_barrier")
    a("s_waitcnt vmcnt(5)")
    a("s_barrier")
    a("s_mov_b32 s34, 4")
    def issue2():
        a("s_add_u32 s35, s33, s24")
        a("s_mov_b32 m0, s35")
        a("s_add_u32 s36, s35, %d" % TREG)
        for n in range(4):
            a("buffer_load_dwordx4 v%d, s[8:11], s26 offen offset:%d lds" % (10 + n, n * 1024))
        a("s_mov_b32 m0, s36")
        a("s_add_u32 s37, s27, s32")
        for n in range(4):
            a("buffer_load_dwordx4 v14, s[12:15], s27 offen offset:%d sc1 lds" % (n * 1024))
        a("s_add_u32 s36, s36, s32")
        a("s_mov_b32 m0, s36")
        a("s_mov_b64 exec, 0xffffffff")
        a("buffer_load_dwordx4 v14, s[12:15], s37 offen sc1 lds")
        a("s_mov_b64 exec, -1")
        a("s_add_u32 s26, s26, 128")
        a("s_add_u32 s27, s27, 18432")
        a("s_add_u32 s33, s33, %d" % SLOT)
        a("s_cmp_eq_u32 s33, %d" % (R * SLOT))
        a("s_cselect_b32 s33, 0, s33")
    a.label("%s_lloop" % name)
    issue2()
    a("s_cmp_eq_u32 s34, 18")
    a("s_cbranch_scc1 %s_hk1" % name)
    a("s_cmp_eq_u32 s34, 21")
    a("s_cbranch_scc1 %s_hk2" % name)
    a("s_waitcnt vmcnt(9)")
    a.label("%s_lcont" % name)
    a("s_barrier")
    a("s_add_u32 s34, s34, 1")
    a("s_cmp_lt_u32 s34, 32")
    a("s_cbranch_scc1 %s_lloop" % name)
    a("s_branch %s_ldone" % name)
    a.label("%s_hk1" % name)
    a("v_and_b32 v28, 15, v2")
    a("v_lshlrev_b32 v28, 2, v28")
    a("buffer_load_dword v29, v28, s[60:63], 0 offen sc1")
    a("s_waitcnt vmcnt(10)")
    a("s_branch %s_lcont" % name)
    a.label("%s_hk2" % name)
    a("s_mov_b32 s52, 0")
    a.label("%s_hk2l" % name)
    a("v_cmp_gt_u32 vcc, 16, v29")
    a("s_add_u32 s52, s52, 1")
    a("s_cmp_gt_u32 s52, %d" % SPIN_MAX)
    a("s_cbranch_scc1 %s_hk2g" % name)
    a("s_cbranch_vccz %s_hk2g" % name)
    a("s_sleep 16")
    a("buffer_load_dword v29, v28, s[60:63], 0 offen sc1")
    a("s_waitcnt vmcnt(0)")
    a("s_branch %s_hk2l" % name)
    a.label("%s_hk2g" % name)
    nconv = emit_conv_loads(a, " sc1")
    a("s_waitcnt vmcnt(%d)" % (9 + nconv))
    a("s_branch %s_lcont" % name)
    a.label("%s_ldone" % name)
    a("s_waitcnt vmcnt(0)")
    a("s_barrier")
    a("s_mov_b32 s26, s53")
    a("s_and_b32 s27, s3, 1")
    a("s_mul_i32 s27, s27, %d" % CJ_SIZE)
    a("s_lshr_b32 s36, s3, 1")
    a("s_mul_i32 s36, s36, %d" % SLOT)
    a("s_add_u32 s27, s27, s36")
    a("s_add_u32 s27, s27, %d" % RB)
    def mid():
        a("s_barrier")
        a("s_setprio 0")
    sv = set(DBG); DBG.discard("stamp")
    emit_conv_job(a, name, mid)
    DBG.update(sv)
    G.stamp_rt(a, 1)
    a.label("%s_end" % name)
    a("s_endpgm")
    return a.text(), kernel_desc(name, 256, 256), (name, 256, 512, LDSB)

def gen_k1i(name="k1_kernel", R=4):
    a = Asm()
    RB = 4096; SLOT = 34816; TREG = 16384; FS = 288; RST = 0
    LDSB = RB + R * SLOT
    def capture(f, *args):
        lb = len(a.lines); f(*args); out = a.lines[lb:]; del a.lines[lb:]; return out
    kernel_begin(a, name)
    a("s_load_dwordx2 s[80:81], s[0:1], 0")
    a("s_load_dwordx2 s[4:5], s[0:1], 56")
    a("s_load_dwordx2 s[6:7], s[0:1], 104")
    a("s_load_dwordx2 s[18:19], s[0:1], 96")
    a("s_cmp_ge_u32 s2, 256")
    a("s_cbranch_scc1 %s_end" % name)
    a("v_lshrrev_b32 v1, 6, v0")
    a("v_and_b32 v2, 63, v0")
    a("v_readfirstlane_b32 s3, v1")
    G2.tile_ij(a)
    a("s_lshr_b32 s98, s3, 2")
    a("s_mov_b32 s54x, 0".replace("s54x", "s99"))
    a("s_and_b32 s3, s3, 3")
    a("s_lshr_b32 s24, s3, 1")
    a("s_and_b32 s25, s3, 1")
    a("v_and_b32 v3, 15, v2")
    VT = 204; VF = 208
    def loader_setup():
        a("v_lshrrev_b32 v5, 3, v2")
        a("v_and_b32 v4, 7, v2")
        a("s_lshl_b32 s36, s3, 5")
        a("v_add_u32 v5, s36, v5")
        a("v_lshrrev_b32 v7, 4, v2")
        a("v_xor_b32 v7, v7, v4")
        a("v_mul_u32_u24 v6, 1152, v5")
        a("v_lshl_add_u32 v%d, v7, 4, v6" % VT)
        a("v_xor_b32 v%d, 64, v%d" % (VT + 1, VT))
        a("v_add_u32 v%d, %d, v%d" % (VT + 1, 9216 - 1024, VT + 1))
        a("v_add_u32 v%d, %d, v%d" % (VT + 2, 2 * (9216 - 1024), VT))
        a("v_add_u32 v%d, %d, v%d" % (VT + 3, 2 * (9216 - 1024), VT + 1))
        a("s_lshl_b32 s84, s3, 12")
        a("s_add_u32 s84, s84, %d" % RB)
        a("s_lshl_b32 s85, s3, 9")
        a("s_add_u32 s85, s85, %d" % (RB + TREG + 16384))
    def loader_setup2():
        for n in range(5):
            if n < 4:
                a("s_lshl_b32 s36, s3, 8")
                a("s_add_u32 s36, s36, %d" % (64 * n))
            else:
                a("s_lshl_b32 s36, s3, 5")
                a("s_add_u32 s36, s36, 1024")
            a("v_add_u32 v6, s36, v2")
            a("v_mul_u32_u24 v7, 3641, v6")
            a("v_lshrrev_b32 v7, 16, v7")
            a("v_mul_u32_u24 v8, 18, v7")
            a("v_sub_u32 v8, v6, v8")
            a("v_and_b32 v9, 35, v7")
            a("v_bfe_u32 v6, v7, 2, 2")
            a("v_lshl_add_u32 v9, v6, 3, v9")
            a("v_bfe_u32 v6, v7, 4, 1")
            a("v_lshl_add_u32 v9, v6, 2, v9")
            a("v_mul_u32_u24 v9, 9216, v9")
            a("v_lshl_add_u32 v%d, v8, 4, v9" % (VF + n))
            if 0 < n < 4: a("v_subrev_u32 v%d, %d, v%d" % (VF + n, 1024 * n, VF + n))
    def issueT(g):
        st = g % 9
        a("s_add_u32 s86, s84, %d" % ((g % R) * SLOT))
        a("s_mov_b32 m0, s86")
        a("s_add_u32 s87, s82, %d" % (128 * st))
        for n in range(4):
            a("buffer_load_dwordx4 v%d, s[28:31], s87 offen offset:%d lds" % (VT + n, 1024 * n))
    def issueF(g):
        st = g % 9
        a("s_add_u32 s86, s84, %d" % ((g % R) * SLOT + TREG))
        a("s_mov_b32 m0, s86")
        a("s_add_u32 s87, s83, %d" % (64 * 9216 * st + (4608 if g < 9 else 0)))
        for n in range(4):
            a("buffer_load_dwordx4 v%d, s[8:11], s87 offen offset:%d lds" % (VF + n, 1024 * n))
        a("s_add_u32 s86, s85, %d" % ((g % R) * SLOT))
        a("s_mov_b32 m0, s86")
        a("s_mov_b64 exec, 0xffffffff")
        a("buffer_load_dwordx4 v%d, s[8:11], s87 offen lds" % (VF + 4))
        a("s_mov_b64 exec, -1")
    def srds_main():
        srd(a, 28, 80, 2048 * 576 * 2)
        srd(a, 8, 4, 576 * 4608 * 2)
        srd(a, 12, 6, WS_BYTES)
        srd(a, 60, 18, 256)
        a("s_mul_i32 s82, s22, %d" % (128 * 1152))
        a("s_mul_i32 s83, s23, 288")
    ACC = 128; FB = [16, 52]; CS = 216; ONE = 236
    vTa = [4, 5]; vTb = [6, 7]; vF = 8; vFh = 9
    bTa = [88, 89]; bTb = [90, 91]; bF = 92; bFh = 93
    def mma_setup():
        a("v_lshrrev_b32 v10, 4, v2")
        a("v_lshrrev_b32 v11, 1, v3")
        a("v_xor_b32 v10, v10, v11")
        a("v_lshlrev_b32 v10, 4, v10")
        a("v_lshl_add_u32 v10, v3, 7, v10")
        a("s_lshl_b32 s26, s24, 13")
        a("s_add_u32 s26, s26, %d" % RB)
        a("v_add_u32 v10, s26, v10")
        a("s_lshl_b32 s26, s25, 12")
        a("v_add_u32 v%d, s26, v10" % bTa[0])
        a("s_xor_b32 s26, s26, 4096")
        a("v_add_u32 v%d, s26, v10" % bTb[0])
        a("v_xor_b32 v%d, 64, v%d" % (bTa[1], bTa[0]))
        a("v_xor_b32 v%d, 64, v%d" % (bTb[1], bTb[0]))
        a("v_lshrrev_b32 v10, 2, v2")
        a("v_mul_u32_u24 v10, %d, v10" % FS)
        a("v_and_b32 v11, 3, v2")
        a("v_lshl_add_u32 v10, v11, 3, v10")
        a("v_add_u32 v10, %d, v10" % (RB + TREG))
        a("s_mul_i32 s26, s25, 160")
        a("v_add_u32 v%d, s26, v10" % bF)
        a("v_add_u32 v%d, 128, v10" % bFh)
        for r in range(ACC, ACC + 72): a("v_mov_b32 v%d, 0" % r)
        for r in range(CS, CS + 20): a("v_mov_b32 v%d, 0" % r)
        for r in range(ONE, ONE + 4): a("v_mov_b32 v%d, 0x3f803f80" % r)
    def mma_addr(slot):
        a("s_mov_b32 s27, %d" % (slot * SLOT))
        for d, s_ in ((vTa[0], bTa[0]), (vTb[0], bTb[0]), (vTa[1], bTa[1]), (vTb[1], bTb[1]), (vF, bF), (vFh, bFh)):
            a("v_add_u32 v%d, s27, v%d" % (d, s_))
    core = G.Core(a, ACC, FB[0], FB[1], FS, TREG, vTa, vTb, vF, vFh)
    trk = core.trk
    a("s_cmp_eq_u32 s98, 0")
    a("s_cbranch_scc1 %s_A0" % name)
    a("s_setprio 3")
    loader_setup()
    a("s_waitcnt lgkmcnt(0)")
    srds_main()
    vm = VmTracker(a)
    def issue(g, vmx):
        issueT(g); issueF(g); vmx.issue("S%d" % g, 9)
    issueT(0)
    loader_setup2()
    issueF(0); vm.issue("S0", 9)
    issue(1, vm); issue(2, vm); issue(3, vm)
    a("s_add_u32 s3, s3, 4"); stamp_setup(a, 1); stamp(a, 0); a("s_sub_u32 s3, s3, 4")
    for r in range(ONE, ONE + 4): a("v_mov_b32 v%d, 0x3f803f80" % r)
    RA = 96; XB = 112
    for r in range(RA, RA + 16): a("v_mov_b32 v%d, 0" % r)
    a("v_lshrrev_b32 v10, 4, v2")
    a("v_lshrrev_b32 v11, 1, v3")
    a("v_xor_b32 v10, v10, v11")
    a("v_lshlrev_b32 v10, 4, v10")
    a("v_lshl_add_u32 v10, v3, 7, v10")
    a("v_add_u32 v12, s84, v10")
    a("v_xor_b32 v13, 64, v12")
    def rs_rd(g):
        a("v_add_u32 v10, %d, v12" % ((g % R) * SLOT))
        a("v_add_u32 v11, %d, v13" % ((g % R) * SLOT))
        for h in range(2):
            for n in range(2):
                a("ds_read_b128 %s, v%d offset:%d" % (vr(XB + 8 * h + 4 * n), 10 + h, 2048 * n))
    def rs_do():
        for h in range(2):
            for n in range(2):
                x = XB + 8 * h + 4 * n
                a("v_mfma_f32_16x16x32_bf16 %s, %s, %s, %s" % (vr(RA + 4 * n), vr(ONE), vr(x), vr(RA + 4 * n)))
                a("v_mfma_f32_16x16x32_bf16 %s, %s, %s, %s" % (vr(RA + 8 + 4 * n), vr(x), vr(x), vr(RA + 8 + 4 * n)))
    def interleave(dma, comp, vmx=None):
        groups = []; cur = []
        for l in dma:
            cur.append(l)
            if "buffer_load" in l and not any("exec, 0xffffffff" in x for x in cur[-2:]):
                groups.append(cur); cur = []
            elif "exec, -1" in l:
                groups.append(cur); cur = []
        if cur: groups.append(cur)
        ns = max(1, len(groups))
        per = (len(comp) + ns - 1) // ns
        for g in groups:
            a.lines.extend(g)
            a.lines.extend(comp[:per]); comp = comp[per:]
        a.lines.extend(comp)
    vm.wait(["S0"])
    a("s_barrier")
    stamp(a, 1)
    rs_rd(0)
    vm.wait(["S1"])
    a("s_barrier")
    for k in range(9):
        a("s_waitcnt lgkmcnt(0)")
        dma = capture(lambda: (issueT(k + 3), issueF(k + 3))) if (k >= 1 and k + 3 < 9) else []
        interleave(dma, capture(rs_do))
        if k >= 1 and k + 3 < 9: vm.issue("S%d" % (k + 3), 9)
        if k < 8:
            rs_rd(k + 1)
        else:
            a("s_nop 7")
            a("v_lshrrev_b32 v10, 4, v2")
            a("v_lshrrev_b32 v11, 2, v3")
            a("v_and_b32 v12, 3, v3")
            for n in range(2):
                G_ = RA + 8 + 4 * n
                for r in range(1, 4):
                    a("v_cmp_eq_u32 vcc, %d, v12" % r)
                    a("s_nop 1")
                    a("v_cndmask_b32 v%d, v%d, v%d, vcc" % (G_, G_, G_ + r))
            ML = 112
            for n in range(2):
                emit_ln_finish(a, RA + 4 * n, RA + 8 + 4 * n, 576, ML + 2 * n, ML + 2 * n + 1, 120)
                a("v_mov_b32 v%d, v%d" % (117 + 2 * n, ML + 2 * n + 1))
                a("v_sub_f32 v%d, 0, v%d" % (116 + 2 * n, ML + 2 * n))
            a("s_lshl_b32 s35, s3, 8")
            a("v_lshlrev_b32 v13, 3, v3")
            a("v_add_u32 v12, s35, v13")
            a("v_cmp_eq_u32 vcc, v10, v11")
            a("s_and_saveexec_b64 s[36:37], vcc")
            for n in range(2):
                a("ds_write_b64 v12, %s offset:%d" % (vr(116 + 2 * n, 2), RST + 128 * n))
            a("s_mov_b64 exec, s[36:37]")
            a("s_cmp_lg_u32 s23, 0")
            a("s_cbranch_scc1 %s_nost1" % name)
            a("s_lshl_b32 s35, s22, 7")
            a("s_lshl_b32 s36, s3, 5")
            a("s_add_u32 s35, s35, s36")
            a("s_lshl_b32 s35, s35, 3")
            a("s_add_u32 s35, s35, 0x%x" % STATS1)
            a("v_mov_b32 v11, 0x7ffffff0")
            a("v_cndmask_b32 v13, v11, v13, vcc")
            for n in range(2):
                a("buffer_store_dwordx2 %s, v13, s[12:15], s35 offen offset:%d" % (vr(ML + 2 * n, 2), 128 * n))
            a.label("%s_nost1" % name)
        if k < 8:
            vm.wait(["S%d" % (k + 2)])
            a("s_barrier")
    a("s_waitcnt lgkmcnt(0)")
    a("s_barrier")
    a("s_load_dwordx4 s[64:67], s[0:1], 8")
    a("s_load_dwordx2 s[76:77], s[0:1], 24")
    a("s_load_dwordx2 s[90:91], s[0:1], 64")
    a("s_mul_i32 s36, s3, 13312")
    a("s_add_u32 s36, s36, %d" % RB)
    a("v_lshlrev_b32 v10, 4, v2")
    a("v_add_u32 v11, s36, v10")
    a("s_waitcnt lgkmcnt(0)")
    srd(a, 68, 66, 2048 * 576 * 2)
    a("s_mov_b32 s88, s64"); a("s_mov_b32 s89, s65")
    srd(a, 64, 88, 2048 * 576 * 2)
    srd(a, 72, 76, 576 * 8)
    srd(a, 92, 90, 2048 * 2048 * 2)
    a("s_barrier")
    n_ = 0
    for ft in range(4):
        for tt in range(2):
            a("ds_read_b128 %s, v11 offset:%d" % (vr(core.accr(ft, tt)), 1024 * n_)); n_ += 1
    for ft in range(4):
        a("ds_read_b128 %s, v11 offset:%d" % (vr(CS + 4 * ft), 1024 * n_)); n_ += 1
    a("s_branch %s_epi" % name)
    a.label("%s_A0" % name)
    emit_code_prefetch(a, name)
    a("s_load_dwordx4 s[64:67], s[0:1], 8")
    a("s_load_dwordx2 s[76:77], s[0:1], 24")
    a("s_load_dwordx2 s[90:91], s[0:1], 64")
    mma_setup()
    a("s_waitcnt lgkmcnt(0)")
    srds_main()
    srd(a, 68, 66, 2048 * 576 * 2)
    a("s_mov_b32 s88, s64"); a("s_mov_b32 s89, s65")
    srd(a, 64, 88, 2048 * 576 * 2)
    srd(a, 72, 76, 576 * 8)
    srd(a, 92, 90, 2048 * 2048 * 2)
    stamp_setup(a, 1); stamp(a, 0)
    def gran_addr():
        a("v_lshrrev_b32 v10, 4, v2")
        a("s_lshl_b32 s36, s25, 1")
        a("v_add_u32 v11, s36, v10")
        a("v_and_b32 v11, 3, v11")
        a("v_lshl_add_u32 v11, v11, 4, v3")
        a("v_lshlrev_b32 v94, 8, v11")
        a("s_lshl_b32 s59, s22, 7")
        a("s_lshl_b32 s36, s24, 6")
        a("s_add_u32 s59, s59, s36")
        a("s_lshl_b32 s59, s59, 8")
        a("s_add_u32 s59, s59, 0x%x" % STATS2)
        a("s_lshl_b32 s36, s23, 1")
        a("s_add_u32 s36, s36, s25")
        a("s_lshl_b32 s36, s36, 3")
        a("s_add_u32 s58, s36, s59")
    gran_addr()
    a("v_mov_b32 v12, 0"); a("v_mov_b32 v13, 0x80000000")
    a("buffer_store_dwordx2 v[12:13], v94, s[12:15], s58 offen sc1")
    mma_addr(0)
    a("s_mov_b32 s33, 0")
    a("s_barrier")
    stamp(a, 1)
    a.label("%s_mma" % name)
    core.prime(0, core.reads(0, 0))
    trk.drain()
    def mfmas(buf):
        L = []
        for ft in range(5):
            A = core.F(buf, ft)
            for tt in range(4 if ft < 4 else 2):
                c = core.accr(ft, tt); B = core.T(buf, tt)
                L.append(("v_mfma_f32_16x16x32_bf16 %s, %s, %s, %s" % (vr(c), vr(A), vr(B), vr(c)), list(range(A, A + 4)) + list(range(B, B + 4))))
            L.append(("v_mfma_f32_16x16x32_bf16 %s, %s, %s, %s" % (vr(CS + 4 * ft), vr(A), vr(ONE), vr(CS + 4 * ft)), list(range(A, A + 4))))
        return L
    def phase(buf, pend):
        for (m, regs) in mfmas(buf):
            trk.need(regs)
            a(m)
            while pend:
                k, t = pend.pop(0)
                if k == "x":
                    a(t)
                    if t.startswith("s_"): continue
                else:
                    a(t[0]); trk.issue(t[1])
                break
        for k, t in pend:
            if k == "x": a(t)
            else: a(t[0]); trk.issue(t[1])
    def iteration():
        a("s_waitcnt vmcnt(0)")
        a("s_barrier")
        rd = [("r", t) for t in core.reads(1, 1)]
        upd = ["s_add_u32 s27, s27, %d" % SLOT, "s_cmp_eq_u32 s27, %d" % (R * SLOT), "s_cselect_b32 s27, 0, s27"]
        tail = ["v_add_u32 v%d, s27, v%d" % (d, s_) for d, s_ in ((vTa[0], bTa[0]), (vF, bF), (vTb[0], bTb[0]), (vFh, bFh))]
        phase(0, rd[:1] + [("x", u) for u in upd] + rd[1:] + [("x", u) for u in tail])
        rd = [("r", t) for t in core.reads(0, 0)]
        tail = ["v_add_u32 v%d, s27, v%d" % (d, s_) for d, s_ in ((vTa[1], bTa[1]), (vTb[1], bTb[1]))] + ["s_add_u32 s33, s33, 1"]
        phase(1, rd + [("x", u) for u in tail])
    a.label("%s_cloop" % name)
    lb = len(a.lines); iteration(); st = copy.deepcopy(trk.out); del a.lines[lb:]; trk.out = copy.deepcopy(st)
    iteration()
    assert [sorted(x) for x in trk.out] == [sorted(x) for x in st]
    a("s_cmp_lt_u32 s33, 9")
    a("s_cbranch_scc1 %s_cloop" % name)
    trk.drain()
    stamp(a, 2)
    a("s_waitcnt vmcnt(0)")
    a("s_barrier")
    a("s_cmp_lg_u32 s3, 0")
    a("s_cbranch_scc1 %s_nosig" % name)
    a("v_mov_b32 v10, 1")
    a("s_lshl_b32 s36, s22, 2")
    a("v_mov_b32 v11, s36")
    a("s_mov_b64 exec, 1")
    a("buffer_atomic_add v10, v11, s[60:63], 0 offen sc1")
    a("s_mov_b64 exec, -1")
    a.label("%s_nosig" % name)
    a("s_mul_i32 s36, s3, 13312")
    a("s_add_u32 s36, s36, %d" % RB)
    a("v_lshlrev_b32 v10, 4, v2")
    a("v_add_u32 v11, s36, v10")
    n_ = 0
    for ft in range(4):
        for tt in range(2):
            a("ds_write_b128 v11, %s offset:%d" % (vr(core.accr(ft, tt + 2)), 1024 * n_)); n_ += 1
    for ft in range(4):
        a("ds_write_b128 v11, %s offset:%d" % (vr(CS + 4 * ft), 1024 * n_)); n_ += 1
    a("s_waitcnt lgkmcnt(0)")
    a("s_barrier")
    a.label("%s_epi" % name)
    MR = 100; T = 72; ZP = 200
    gelu_consts(a)
    a("s_xor_b32 s52, s98, s25")
    a("s_lshl_b32 s36, s24, 9")
    a("s_lshl_b32 s37, s52, 8")
    a("s_add_u32 s38, s36, s37")
    a("v_lshlrev_b32 v10, 3, v3")
    a("v_add_u32 v11, s38, v10")
    a("ds_read_b64 %s, v11 offset:%d" % (vr(MR, 2), RST))
    a("ds_read_b64 %s, v11 offset:%d" % (vr(MR + 2, 2), RST + 128))
    a("s_lshl_b32 s41, s2, 1")
    a("s_add_u32 s41, s41, s98")
    a("v_and_b32 v0, 255, v0")
    a("s_cmp_ge_u32 s41, 288")
    a("s_cbranch_scc1 %s_nokv1" % name)
    emit_kv_loads(a)
    a.label("%s_nokv1" % name)
    S = [108, 110]; Q = [109, 111]
    for r_ in range(108, 112): a("v_mov_b32 v%d, 0" % r_)
    a("s_waitcnt lgkmcnt(0)")
    ZPf = lambda n: (240 + 2 * n) if n < 8 else (196 + 2 * (n - 8))
    def dots(lst):
        for d in range(2):
            for (ft, tt) in lst:
                p = ZPf(2 * ft + tt) + d
                a("v_dot2_f32_bf16 v%d, v%d, v%d, v%d" % (S[tt], p, ONE, S[tt]))
                a("v_dot2_f32_bf16 v%d, v%d, v%d, v%d" % (Q[tt], p, p, Q[tt]))
    a("s_cmp_lg_u32 s98, 0")
    a("s_cbranch_scc1 %s_nohalf" % name)
    lst = [(4, 0), (4, 1)]
    emit_fold_gelu(a, [(core.accr(ft, tt), CS + 4 * ft, MR + 2 * tt, ZPf(2 * ft + tt)) for ft, tt in lst], T)
    dots(lst)
    a.label("%s_nohalf" % name)
    for f0 in (0, 2):
        lst = [(ft, tt) for ft in (f0, f0 + 1) for tt in range(2)]
        emit_fold_gelu(a, [(core.accr(ft, tt), CS + 4 * ft, MR + 2 * tt, ZPf(2 * ft + tt)) for ft, tt in lst], T)
        dots(lst)
    a("s_nop 2")
    emit_xg_reduce(a, S + Q, 72)
    a("s_lshl_b32 s59, s22, 7")
    a("s_lshl_b32 s36, s24, 6")
    a("s_add_u32 s59, s59, s36")
    a("s_lshl_b32 s36, s52, 5")
    a("s_add_u32 s59, s59, s36")
    a("s_lshl_b32 s59, s59, 8")
    a("s_add_u32 s59, s59, 0x%x" % STATS2)
    a("s_lshl_b32 s36, s23, 1")
    a("s_add_u32 s36, s36, s25")
    a("s_lshl_b32 s36, s36, 3")
    a("s_add_u32 s58, s36, s59")
    a("v_lshrrev_b32 v10, 4, v2")
    a("v_lshlrev_b32 v11, 8, v2")
    a("v_cmp_gt_u32 vcc, 32, v2")
    a("v_mov_b32 v12, 0x7ffffff0")
    a("v_cmp_eq_u32 s[36:37], 1, v10")
    a("v_cndmask_b32 v11, v12, v11, vcc")
    a("s_nop 0")
    a("v_cndmask_b32 v108, v108, v110, s[36:37]")
    a("v_cndmask_b32 v109, v109, v111, s[36:37]")
    a("v_and_b32 v109, 0x7fffffff, v109")
    a("buffer_store_dwordx2 v[108:109], v11, s[12:15], s58 offen sc1")
    a("s_setprio 0")
    stamp(a, 3)
    a("s_lshl_b32 s33, s22, 2")
    a("v_mov_b32 v165, s33")
    a("buffer_load_dword v164, v165, s[60:63], 0 offen sc1")
    PB = 128
    a("v_lshlrev_b32 v4, 8, v3")
    a("v_lshl_add_u32 v4, v10, 6, v4")
    a("s_add_u32 s53, s59, 4096")
    a("s_cmp_ge_u32 s41, 288")
    a("s_cbranch_scc1 %s_nokv2" % name)
    a("s_waitcnt vmcnt(2)")
    emit_kv_compute(a, wait=False, store=False)
    a.label("%s_nokv2" % name)
    stamp(a, 4)
    a("s_mov_b32 s40, 0")
    a.label("%s_chk" % name)
    a("s_waitcnt vmcnt(0)")
    for tt in range(2):
        for q in range(4):
            a("buffer_load_dwordx4 %s, v4, s[12:15], s%d offen offset:%d sc1" % (vr(PB + 16 * tt + 4 * q), (59, 53)[tt], 16 * q))
    a("v_subrev_u32 v11, 16, v164")
    a("s_waitcnt vmcnt(0)")
    for r in range(PB + 1, PB + 32, 4):
        a("v_or3_b32 v11, v11, v%d, v%d" % (r, r + 2))
    a("v_cmp_gt_i32 vcc, 0, v11")
    a("s_add_u32 s40, s40, 1")
    a("s_cmp_gt_u32 s40, %d" % SPIN_MAX)
    a("s_cbranch_scc1 %s_ok" % name)
    a("s_cbranch_vccz %s_ok" % name)
    a("s_sleep 24")
    a("buffer_load_dword v164, v165, s[60:63], 0 offen sc1")
    a("s_branch %s_chk" % name)
    a.label("%s_ok" % name)
    stamp(a, 5)
    a("v_lshrrev_b32 v10, 4, v2")
    a("v_lshlrev_b32 v5, 12, v10")
    a("v_lshl_add_u32 v5, v3, 4, v5")
    a("s_lshl_b32 s33, s22, 7")
    a("s_lshl_b32 s36, s3, 5")
    a("s_add_u32 s33, s33, s36")
    a("s_lshl_b32 s36, s98, 4")
    a("s_add_u32 s33, s33, s36")
    a("s_lshl_b32 s33, s33, 12")
    a("s_lshl_b32 s36, s23, 8")
    a("s_add_u32 s33, s33, s36")
    for n in range(4):
        a("buffer_load_dwordx4 v[168:171], v5, s[92:95], s33 offen")
        if n < 3: a("s_add_u32 s33, s33, 16384")
    a("s_cmp_ge_u32 s41, 288")
    a("s_cbranch_scc1 %s_nokv3" % name)
    a("s_mov_b32 s39, 0x%x" % KVT)
    a("buffer_store_dwordx4 v[120:123], v12, s[12:15], s39 offen")
    a("buffer_store_dwordx4 v[124:127], v13, s[12:15], s39 offen")
    a.label("%s_nokv3" % name)
    for tt in range(2):
        b = PB + 16 * tt
        for st_ in (8, 4, 2):
            for q in range(0, st_, 2):
                a("v_pk_add_f32 %s, %s, %s" % (vr(b + q, 2), vr(b + q, 2), vr(b + q + st_, 2)))
    emit_xg_reduce(a, [PB + 16 * tt + e for tt in range(2) for e in range(2)], 72)
    for tt in range(2):
        b = PB + 16 * tt
        emit_ln_finish(a, b, b + 1, 2304, b + 2, MR + 2 * tt, b + 4)
        a("v_mul_f32 v%d, -v%d, v%d" % (MR + 2 * tt + 1, b + 2, MR + 2 * tt))
    a("v_lshrrev_b32 v11, 2, v2"); a("v_and_b32 v11, 1, v11"); a("v_lshlrev_b32 v11, 4, v11")
    a("v_lshrrev_b32 v5, 3, v2"); a("v_and_b32 v5, 1, v5"); a("v_lshl_add_u32 v11, v5, 2, v11")
    a("v_and_b32 v5, 3, v2"); a("v_add_u32 v11, v11, v5")
    a("v_mul_u32_u24 v11, 288, v11")
    a("v_lshrrev_b32 v5, 1, v10"); a("v_lshl_add_u32 v11, v5, 4, v11")
    a("v_and_b32 v5, 1, v10")
    a("v_lshl_add_u32 v6, v5, 5, v11")
    a("v_mul_u32_u24 v5, 2304, v5")
    a("v_add_u32 v9, v11, v5")
    a("s_lshl_b32 s33, s23, 5")
    a("s_lshl_b32 s36, s22, 1")
    a("s_add_u32 s33, s33, s36")
    a("s_add_u32 s33, s33, s24")
    a("s_mul_i32 s33, s33, 18432")
    if ZIMG: a("s_add_u32 s33, s33, 0x%x" % ZIMG)
    a("s_mul_i32 s36, s52, 9216")
    a("s_add_u32 s37, s33, s36")
    a("s_add_u32 s39, s37, 128")
    a("s_mul_i32 s36, s25, 160")
    a("s_add_u32 s37, s37, s36")
    def norm_pair(nA, ttA, nB, ttB, O):
        for q, (n, tt) in enumerate(((nA, ttA), (nB, ttB))):
            for d in range(2):
                z = ZPf(n) + d; t = T + 4 * q + 2 * d
                a("v_lshlrev_b32 v%d, 16, v%d" % (t, z))
                a("v_and_b32 v%d, 0xffff0000, v%d" % (t + 1, z))
        for q, (n, tt) in enumerate(((nA, ttA), (nB, ttB))):
            for d in range(2):
                t = T + 4 * q + 2 * d
                a("v_pk_fma_f32 %s, %s, %s, %s op_sel:[0,0,1] op_sel_hi:[1,0,1]" % (vr(t, 2), vr(t, 2), vr(MR + 2 * tt, 2), vr(MR + 2 * tt, 2)))
        for q in range(2):
            for d in range(2):
                t = T + 4 * q + 2 * d
                a("v_cvt_pk_bf16_f32 v%d, v%d, v%d" % (O + 2 * q + d, t, t + 1))
        a("s_nop 1")
        a("v_permlane16_swap_b32 v%d, v%d" % (O, O + 2))
        a("v_permlane16_swap_b32 v%d, v%d" % (O + 1, O + 3))
    cnt = 0
    for pr in range(2):
        for tt in range(2):
            O = 16 + 4 * cnt; cnt += 1
            norm_pair(2 * (2 * pr) + tt, tt, 2 * (2 * pr + 1) + tt, tt, O)
            a("s_nop 0")
            a("buffer_store_dwordx4 %s, v6, s[12:15], s37 offen offset:%d" % (vr(O), tt * 2304 + 64 * pr))
    a("s_cmp_lg_u32 s98, 0")
    a("s_cbranch_scc1 %s_fin" % name)
    O = 16 + 4 * cnt
    norm_pair(8, 0, 9, 1, O)
    a("s_nop 0")
    a("buffer_store_dwordx4 %s, v9, s[12:15], s39 offen" % vr(O))
    a.label("%s_fin" % name)
    stamp(a, 6)
    G.stamp_rt(a, 1)
    a.label("%s_end" % name)
    a("s_endpgm")
    return a.text(), kernel_desc(name, 256, 256), (name, 256, 512, LDSB)

def gen_k1j(name="k1_kernel", R=4):
    a = Asm()
    RB = 4096; SLOT = 34816; TREG = 16384; FS = 288; RST = 0
    LDSB = RB + R * SLOT
    def capture(f, *args):
        lb = len(a.lines); f(*args); out = a.lines[lb:]; del a.lines[lb:]; return out
    kernel_begin(a, name)
    a("s_load_dwordx2 s[80:81], s[0:1], 0")
    a("s_load_dwordx2 s[4:5], s[0:1], 56")
    a("s_load_dwordx2 s[6:7], s[0:1], 104")
    a("s_load_dwordx2 s[18:19], s[0:1], 96")
    a("s_cmp_ge_u32 s2, 256")
    a("s_cbranch_scc1 %s_end" % name)
    a("v_lshrrev_b32 v1, 6, v0")
    a("v_and_b32 v2, 63, v0")
    a("v_readfirstlane_b32 s3, v1")
    G2.tile_ij(a)
    a("s_lshr_b32 s98, s3, 2")
    a("s_mov_b32 s54x, 0".replace("s54x", "s99"))
    a("s_and_b32 s3, s3, 3")
    a("s_lshr_b32 s24, s3, 1")
    a("s_and_b32 s25, s3, 1")
    a("v_and_b32 v3, 15, v2")
    VT = 204; VF = 208
    def loader_setup():
        a("v_lshrrev_b32 v5, 3, v2")
        a("v_and_b32 v4, 7, v2")
        a("s_lshl_b32 s36, s3, 5")
        a("v_add_u32 v5, s36, v5")
        a("v_lshrrev_b32 v7, 4, v2")
        a("v_xor_b32 v7, v7, v4")
        a("v_mul_u32_u24 v6, 1152, v5")
        a("v_lshl_add_u32 v%d, v7, 4, v6" % VT)
        a("v_xor_b32 v%d, 64, v%d" % (VT + 1, VT))
        a("v_add_u32 v%d, %d, v%d" % (VT + 1, 9216 - 1024, VT + 1))
        a("v_add_u32 v%d, %d, v%d" % (VT + 2, 2 * (9216 - 1024), VT))
        a("v_add_u32 v%d, %d, v%d" % (VT + 3, 2 * (9216 - 1024), VT + 1))
        a("s_lshl_b32 s84, s3, 12")
        a("s_add_u32 s84, s84, %d" % RB)
        a("s_lshl_b32 s85, s3, 9")
        a("s_add_u32 s85, s85, %d" % (RB + TREG + 16384))
    def loader_setup2():
        for n in range(5):
            if n < 4:
                a("s_lshl_b32 s36, s3, 8")
                a("s_add_u32 s36, s36, %d" % (64 * n))
            else:
                a("s_lshl_b32 s36, s3, 5")
                a("s_add_u32 s36, s36, 1024")
            a("v_add_u32 v6, s36, v2")
            a("v_mul_u32_u24 v7, 3641, v6")
            a("v_lshrrev_b32 v7, 16, v7")
            a("v_mul_u32_u24 v8, 18, v7")
            a("v_sub_u32 v8, v6, v8")
            a("v_and_b32 v9, 35, v7")
            a("v_bfe_u32 v6, v7, 2, 2")
            a("v_lshl_add_u32 v9, v6, 3, v9")
            a("v_bfe_u32 v6, v7, 4, 1")
            a("v_lshl_add_u32 v9, v6, 2, v9")
            a("v_mul_u32_u24 v9, 9216, v9")
            a("v_lshl_add_u32 v%d, v8, 4, v9" % (VF + n))
            if 0 < n < 4: a("v_subrev_u32 v%d, %d, v%d" % (VF + n, 1024 * n, VF + n))
    def issueT(g):
        st = g % 9
        a("s_add_u32 s86, s84, %d" % ((g % R) * SLOT))
        a("s_mov_b32 m0, s86")
        a("s_add_u32 s87, s82, %d" % (128 * st))
        for n in range(4):
            a("buffer_load_dwordx4 v%d, s[28:31], s87 offen offset:%d lds" % (VT + n, 1024 * n))
    def issueF(g):
        st = g % 9
        a("s_add_u32 s86, s84, %d" % ((g % R) * SLOT + TREG))
        a("s_mov_b32 m0, s86")
        a("s_add_u32 s87, s83, %d" % (64 * 9216 * st + (4608 if g < 9 else 0)))
        for n in range(4):
            a("buffer_load_dwordx4 v%d, s[8:11], s87 offen offset:%d lds" % (VF + n, 1024 * n))
        a("s_add_u32 s86, s85, %d" % ((g % R) * SLOT))
        a("s_mov_b32 m0, s86")
        a("s_mov_b64 exec, 0xffffffff")
        a("buffer_load_dwordx4 v%d, s[8:11], s87 offen lds" % (VF + 4))
        a("s_mov_b64 exec, -1")
    def srds_main():
        srd(a, 28, 80, 2048 * 576 * 2)
        srd(a, 8, 4, 576 * 4608 * 2)
        srd(a, 12, 6, WS_BYTES)
        srd(a, 60, 18, 256)
        a("s_mul_i32 s82, s22, %d" % (128 * 1152))
        a("s_mul_i32 s83, s23, 288")
    ACC = 128; FB = [16, 52]; CS = 216; ONE = 236
    vTa = [4, 5]; vTb = [6, 7]; vF = 8; vFh = 9
    bTa = [88, 89]; bTb = [90, 91]; bF = 92; bFh = 93
    def mma_setup():
        a("v_lshrrev_b32 v10, 4, v2")
        a("v_lshrrev_b32 v11, 1, v3")
        a("v_xor_b32 v10, v10, v11")
        a("v_lshlrev_b32 v10, 4, v10")
        a("v_lshl_add_u32 v10, v3, 7, v10")
        a("s_lshl_b32 s26, s24, 13")
        a("s_add_u32 s26, s26, %d" % RB)
        a("v_add_u32 v10, s26, v10")
        a("s_lshl_b32 s26, s25, 12")
        a("v_add_u32 v%d, s26, v10" % bTa[0])
        a("s_xor_b32 s26, s26, 4096")
        a("v_add_u32 v%d, s26, v10" % bTb[0])
        a("v_xor_b32 v%d, 64, v%d" % (bTa[1], bTa[0]))
        a("v_xor_b32 v%d, 64, v%d" % (bTb[1], bTb[0]))
        a("v_lshrrev_b32 v10, 2, v2")
        a("v_mul_u32_u24 v10, %d, v10" % FS)
        a("v_and_b32 v11, 3, v2")
        a("v_lshl_add_u32 v10, v11, 3, v10")
        a("v_add_u32 v10, %d, v10" % (RB + TREG))
        a("s_mul_i32 s26, s25, 160")
        a("v_add_u32 v%d, s26, v10" % bF)
        a("v_add_u32 v%d, 128, v10" % bFh)
        for r in range(ACC, ACC + 72): a("v_mov_b32 v%d, 0" % r)
        for r in range(CS, CS + 20): a("v_mov_b32 v%d, 0" % r)
        for r in range(ONE, ONE + 4): a("v_mov_b32 v%d, 0x3f803f80" % r)
    def mma_addr(slot):
        a("s_mov_b32 s27, %d" % (slot * SLOT))
        for d, s_ in ((vTa[0], bTa[0]), (vTb[0], bTb[0]), (vTa[1], bTa[1]), (vTb[1], bTb[1]), (vF, bF), (vFh, bFh)):
            a("v_add_u32 v%d, s27, v%d" % (d, s_))
    core = G.Core(a, ACC, FB[0], FB[1], FS, TREG, vTa, vTb, vF, vFh)
    trk = core.trk
    a("s_cmp_eq_u32 s98, 0")
    a("s_cbranch_scc1 %s_A0" % name)
    a("s_setprio 3")
    loader_setup()
    a("s_waitcnt lgkmcnt(0)")
    srds_main()
    vm = VmTracker(a)
    def issue(g, vmx):
        issueT(g); issueF(g); vmx.issue("S%d" % g, 9)
    issueT(0)
    loader_setup2()
    issueF(0); vm.issue("S0", 9)
    issue(1, vm); issue(2, vm); issue(3, vm)
    a("s_add_u32 s3, s3, 4"); stamp_setup(a, 1); stamp(a, 0); a("s_sub_u32 s3, s3, 4")
    for r in range(ONE, ONE + 4): a("v_mov_b32 v%d, 0x3f803f80" % r)
    RA = 96; XB = 112
    for r in range(RA, RA + 16): a("v_mov_b32 v%d, 0" % r)
    a("v_lshrrev_b32 v10, 4, v2")
    a("v_lshrrev_b32 v11, 1, v3")
    a("v_xor_b32 v10, v10, v11")
    a("v_lshlrev_b32 v10, 4, v10")
    a("v_lshl_add_u32 v10, v3, 7, v10")
    a("v_add_u32 v12, s84, v10")
    a("v_xor_b32 v13, 64, v12")
    def rs_rd(g):
        a("v_add_u32 v10, %d, v12" % ((g % R) * SLOT))
        a("v_add_u32 v11, %d, v13" % ((g % R) * SLOT))
        for h in range(2):
            for n in range(2):
                a("ds_read_b128 %s, v%d offset:%d" % (vr(XB + 8 * h + 4 * n), 10 + h, 2048 * n))
    def rs_do():
        for h in range(2):
            for n in range(2):
                x = XB + 8 * h + 4 * n
                a("v_mfma_f32_16x16x32_bf16 %s, %s, %s, %s" % (vr(RA + 4 * n), vr(ONE), vr(x), vr(RA + 4 * n)))
                a("v_mfma_f32_16x16x32_bf16 %s, %s, %s, %s" % (vr(RA + 8 + 4 * n), vr(x), vr(x), vr(RA + 8 + 4 * n)))
    def interleave(dma, comp, vmx=None):
        groups = []; cur = []
        for l in dma:
            cur.append(l)
            if "buffer_load" in l and not any("exec, 0xffffffff" in x for x in cur[-2:]):
                groups.append(cur); cur = []
            elif "exec, -1" in l:
                groups.append(cur); cur = []
        if cur: groups.append(cur)
        ns = max(1, len(groups))
        per = (len(comp) + ns - 1) // ns
        for g in groups:
            a.lines.extend(g)
            a.lines.extend(comp[:per]); comp = comp[per:]
        a.lines.extend(comp)
    vm.wait(["S0"])
    a("s_barrier")
    stamp(a, 1)
    rs_rd(0)
    vm.wait(["S1"])
    a("s_barrier")
    for k in range(9):
        a("s_waitcnt lgkmcnt(0)")
        dma = capture(lambda: (issueT(k + 3), issueF(k + 3))) if (k >= 1 and k + 3 < 9) else []
        interleave(dma, capture(rs_do))
        if k >= 1 and k + 3 < 9: vm.issue("S%d" % (k + 3), 9)
        if k < 8:
            rs_rd(k + 1)
        else:
            a("s_nop 7")
            a("v_lshrrev_b32 v10, 4, v2")
            a("v_lshrrev_b32 v11, 2, v3")
            a("v_and_b32 v12, 3, v3")
            for n in range(2):
                G_ = RA + 8 + 4 * n
                for r in range(1, 4):
                    a("v_cmp_eq_u32 vcc, %d, v12" % r)
                    a("s_nop 1")
                    a("v_cndmask_b32 v%d, v%d, v%d, vcc" % (G_, G_, G_ + r))
            ML = 112
            for n in range(2):
                emit_ln_finish(a, RA + 4 * n, RA + 8 + 4 * n, 576, ML + 2 * n, ML + 2 * n + 1, 120)
                a("v_mov_b32 v%d, v%d" % (117 + 2 * n, ML + 2 * n + 1))
                a("v_sub_f32 v%d, 0, v%d" % (116 + 2 * n, ML + 2 * n))
            a("s_lshl_b32 s35, s3, 8")
            a("v_lshlrev_b32 v13, 3, v3")
            a("v_add_u32 v12, s35, v13")
            a("v_cmp_eq_u32 vcc, v10, v11")
            a("s_and_saveexec_b64 s[36:37], vcc")
            for n in range(2):
                a("ds_write_b64 v12, %s offset:%d" % (vr(116 + 2 * n, 2), RST + 128 * n))
            a("s_mov_b64 exec, s[36:37]")
            a("s_cmp_lg_u32 s23, 0")
            a("s_cbranch_scc1 %s_nost1" % name)
            a("s_lshl_b32 s35, s22, 7")
            a("s_lshl_b32 s36, s3, 5")
            a("s_add_u32 s35, s35, s36")
            a("s_lshl_b32 s35, s35, 3")
            a("s_add_u32 s35, s35, 0x%x" % STATS1)
            a("v_mov_b32 v11, 0x7ffffff0")
            a("v_cndmask_b32 v13, v11, v13, vcc")
            for n in range(2):
                a("buffer_store_dwordx2 %s, v13, s[12:15], s35 offen offset:%d" % (vr(ML + 2 * n, 2), 128 * n))
            a.label("%s_nost1" % name)
        if k < 8:
            vm.wait(["S%d" % (k + 2)])
            a("s_barrier")
    a("s_waitcnt lgkmcnt(0)")
    a("s_barrier")
    a("s_load_dwordx4 s[64:67], s[0:1], 8")
    a("s_load_dwordx2 s[76:77], s[0:1], 24")
    a("s_load_dwordx2 s[90:91], s[0:1], 64")
    a("s_mul_i32 s36, s3, 13312")
    a("s_add_u32 s36, s36, %d" % RB)
    a("v_lshlrev_b32 v10, 4, v2")
    a("v_add_u32 v11, s36, v10")
    a("s_waitcnt lgkmcnt(0)")
    srd(a, 68, 66, 2048 * 576 * 2)
    a("s_mov_b32 s88, s64"); a("s_mov_b32 s89, s65")
    srd(a, 64, 88, 2048 * 576 * 2)
    srd(a, 72, 76, 576 * 8)
    srd(a, 92, 90, 2048 * 2048 * 2)
    a("s_barrier")
    n_ = 0
    for ft in range(4):
        for tt in range(2):
            a("ds_read_b128 %s, v11 offset:%d" % (vr(core.accr(ft, tt)), 1024 * n_)); n_ += 1
    for ft in range(4):
        a("ds_read_b128 %s, v11 offset:%d" % (vr(CS + 4 * ft), 1024 * n_)); n_ += 1
    a("s_branch %s_epi" % name)
    a.label("%s_A0" % name)
    emit_code_prefetch(a, name)
    a("s_load_dwordx4 s[64:67], s[0:1], 8")
    a("s_load_dwordx2 s[76:77], s[0:1], 24")
    a("s_load_dwordx2 s[90:91], s[0:1], 64")
    mma_setup()
    a("s_waitcnt lgkmcnt(0)")
    srds_main()
    srd(a, 68, 66, 2048 * 576 * 2)
    a("s_mov_b32 s88, s64"); a("s_mov_b32 s89, s65")
    srd(a, 64, 88, 2048 * 576 * 2)
    srd(a, 72, 76, 576 * 8)
    srd(a, 92, 90, 2048 * 2048 * 2)
    stamp_setup(a, 1); stamp(a, 0)
    def gran_addr():
        a("v_lshrrev_b32 v10, 4, v2")
        a("s_lshl_b32 s36, s25, 1")
        a("v_add_u32 v11, s36, v10")
        a("v_and_b32 v11, 3, v11")
        a("v_lshl_add_u32 v11, v11, 4, v3")
        a("v_lshlrev_b32 v94, 8, v11")
        a("s_lshl_b32 s59, s22, 7")
        a("s_lshl_b32 s36, s24, 6")
        a("s_add_u32 s59, s59, s36")
        a("s_lshl_b32 s59, s59, 8")
        a("s_add_u32 s59, s59, 0x%x" % STATS2)
        a("s_lshl_b32 s36, s23, 1")
        a("s_add_u32 s36, s36, s25")
        a("s_lshl_b32 s36, s36, 3")
        a("s_add_u32 s58, s36, s59")
    mma_addr(0)
    a("s_mov_b32 s33, 0")
    a("s_barrier")
    stamp(a, 1)
    a.label("%s_mma" % name)
    core.prime(0, core.reads(0, 0))
    trk.drain()
    def mfmas(buf):
        L = []
        for ft in range(5):
            A = core.F(buf, ft)
            for tt in range(4 if ft < 4 else 2):
                c = core.accr(ft, tt); B = core.T(buf, tt)
                L.append(("v_mfma_f32_16x16x32_bf16 %s, %s, %s, %s" % (vr(c), vr(A), vr(B), vr(c)), list(range(A, A + 4)) + list(range(B, B + 4))))
            L.append(("v_mfma_f32_16x16x32_bf16 %s, %s, %s, %s" % (vr(CS + 4 * ft), vr(A), vr(ONE), vr(CS + 4 * ft)), list(range(A, A + 4))))
        return L
    def phase(buf, pend):
        for (m, regs) in mfmas(buf):
            trk.need(regs)
            a(m)
            while pend:
                k, t = pend.pop(0)
                if k == "x":
                    a(t)
                    if t.startswith("s_"): continue
                else:
                    a(t[0]); trk.issue(t[1])
                break
        for k, t in pend:
            if k == "x": a(t)
            else: a(t[0]); trk.issue(t[1])
    def iteration():
        a("s_waitcnt vmcnt(0)")
        a("s_barrier")
        rd = [("r", t) for t in core.reads(1, 1)]
        upd = ["s_add_u32 s27, s27, %d" % SLOT, "s_cmp_eq_u32 s27, %d" % (R * SLOT), "s_cselect_b32 s27, 0, s27"]
        tail = ["v_add_u32 v%d, s27, v%d" % (d, s_) for d, s_ in ((vTa[0], bTa[0]), (vF, bF), (vTb[0], bTb[0]), (vFh, bFh))]
        phase(0, rd[:1] + [("x", u) for u in upd] + rd[1:] + [("x", u) for u in tail])
        rd = [("r", t) for t in core.reads(0, 0)]
        tail = ["v_add_u32 v%d, s27, v%d" % (d, s_) for d, s_ in ((vTa[1], bTa[1]), (vTb[1], bTb[1]))] + ["s_add_u32 s33, s33, 1"]
        phase(1, rd + [("x", u) for u in tail])
    a.label("%s_cloop" % name)
    lb = len(a.lines); iteration(); st = copy.deepcopy(trk.out); del a.lines[lb:]; trk.out = copy.deepcopy(st)
    iteration()
    assert [sorted(x) for x in trk.out] == [sorted(x) for x in st]
    a("s_cmp_lt_u32 s33, 9")
    a("s_cbranch_scc1 %s_cloop" % name)
    trk.drain()
    stamp(a, 2)
    a("s_waitcnt vmcnt(0)")
    a("s_barrier")
    a("s_mul_i32 s36, s3, 13312")
    a("s_add_u32 s36, s36, %d" % RB)
    a("v_lshlrev_b32 v10, 4, v2")
    a("v_add_u32 v11, s36, v10")
    n_ = 0
    for ft in range(4):
        for tt in range(2):
            a("ds_write_b128 v11, %s offset:%d" % (vr(core.accr(ft, tt + 2)), 1024 * n_)); n_ += 1
    for ft in range(4):
        a("ds_write_b128 v11, %s offset:%d" % (vr(CS + 4 * ft), 1024 * n_)); n_ += 1
    a("s_waitcnt lgkmcnt(0)")
    a("s_barrier")
    a.label("%s_epi" % name)
    MR = 100; T = 72; ZP = 200
    gelu_consts(a)
    a("s_xor_b32 s52, s98, s25")
    a("s_lshl_b32 s36, s24, 9")
    a("s_lshl_b32 s37, s52, 8")
    a("s_add_u32 s38, s36, s37")
    a("v_lshlrev_b32 v10, 3, v3")
    a("v_add_u32 v11, s38, v10")
    a("ds_read_b64 %s, v11 offset:%d" % (vr(MR, 2), RST))
    a("ds_read_b64 %s, v11 offset:%d" % (vr(MR + 2, 2), RST + 128))
    a("s_lshl_b32 s41, s2, 1")
    a("s_add_u32 s41, s41, s98")
    a("v_and_b32 v0, 255, v0")
    a("s_cmp_ge_u32 s41, 288")
    a("s_cbranch_scc1 %s_nokv1" % name)
    emit_kv_loads(a)
    a.label("%s_nokv1" % name)
    S = [108, 110]; Q = [109, 111]
    for r_ in range(108, 112): a("v_mov_b32 v%d, 0" % r_)
    a("s_waitcnt lgkmcnt(0)")
    ZPf = lambda n: (240 + 2 * n) if n < 8 else (196 + 2 * (n - 8))
    def dots(lst):
        for d in range(2):
            for (ft, tt) in lst:
                p = ZPf(2 * ft + tt) + d
                a("v_dot2_f32_bf16 v%d, v%d, v%d, v%d" % (S[tt], p, ONE, S[tt]))
                a("v_dot2_f32_bf16 v%d, v%d, v%d, v%d" % (Q[tt], p, p, Q[tt]))
    a("s_cmp_lg_u32 s98, 0")
    a("s_cbranch_scc1 %s_nohalf" % name)
    lst = [(4, 0), (4, 1)]
    emit_fold_gelu(a, [(core.accr(ft, tt), CS + 4 * ft, MR + 2 * tt, ZPf(2 * ft + tt)) for ft, tt in lst], T)
    dots(lst)
    a.label("%s_nohalf" % name)
    for f0 in (0, 2):
        lst = [(ft, tt) for ft in (f0, f0 + 1) for tt in range(2)]
        emit_fold_gelu(a, [(core.accr(ft, tt), CS + 4 * ft, MR + 2 * tt, ZPf(2 * ft + tt)) for ft, tt in lst], T)
        dots(lst)
    a("s_nop 2")
    emit_xg_reduce(a, S + Q, 72)
    a("s_lshl_b32 s59, s22, 7")
    a("s_lshl_b32 s36, s24, 6")
    a("s_add_u32 s59, s59, s36")
    a("s_lshl_b32 s36, s52, 5")
    a("s_add_u32 s59, s59, s36")
    a("s_lshl_b32 s59, s59, 8")
    a("s_add_u32 s59, s59, 0x%x" % STATS2)
    a("s_lshl_b32 s36, s23, 1")
    a("s_add_u32 s36, s36, s25")
    a("s_lshl_b32 s36, s36, 3")
    a("s_add_u32 s58, s36, s59")
    a("v_lshrrev_b32 v10, 4, v2")
    a("v_lshlrev_b32 v11, 8, v2")
    a("v_cmp_gt_u32 vcc, 32, v2")
    a("v_mov_b32 v12, 0x7ffffff0")
    a("v_cmp_eq_u32 s[36:37], 1, v10")
    a("v_cndmask_b32 v11, v12, v11, vcc")
    a("s_nop 0")
    a("v_cndmask_b32 v108, v108, v110, s[36:37]")
    a("v_cndmask_b32 v109, v109, v111, s[36:37]")
    a("buffer_store_dwordx2 v[108:109], v11, s[12:15], s58 offen")
    a("s_setprio 0")
    stamp(a, 3)
    a("v_lshrrev_b32 v10, 4, v2")
    a("v_lshlrev_b32 v5, 12, v10")
    a("v_lshl_add_u32 v5, v3, 4, v5")
    a("s_lshl_b32 s33, s22, 7")
    a("s_lshl_b32 s36, s3, 5")
    a("s_add_u32 s33, s33, s36")
    a("s_lshl_b32 s36, s98, 4")
    a("s_add_u32 s33, s33, s36")
    a("s_lshl_b32 s33, s33, 12")
    a("s_lshl_b32 s36, s23, 8")
    a("s_add_u32 s33, s33, s36")
    for n in range(4):
        a("buffer_load_dwordx4 v[168:171], v5, s[92:95], s33 offen")
        if n < 3: a("s_add_u32 s33, s33, 16384")
    a("v_lshrrev_b32 v11, 2, v2"); a("v_and_b32 v11, 1, v11"); a("v_lshlrev_b32 v11, 4, v11")
    a("v_lshrrev_b32 v5, 3, v2"); a("v_and_b32 v5, 1, v5"); a("v_lshl_add_u32 v11, v5, 2, v11")
    a("v_and_b32 v5, 3, v2"); a("v_add_u32 v11, v11, v5")
    a("v_mul_u32_u24 v11, 288, v11")
    a("v_lshrrev_b32 v5, 1, v10"); a("v_lshl_add_u32 v11, v5, 4, v11")
    a("v_and_b32 v5, 1, v10")
    a("v_lshl_add_u32 v6, v5, 5, v11")
    a("v_mul_u32_u24 v5, 2304, v5")
    a("v_add_u32 v9, v11, v5")
    a("s_lshl_b32 s33, s23, 5")
    a("s_lshl_b32 s36, s22, 1")
    a("s_add_u32 s33, s33, s36")
    a("s_add_u32 s33, s33, s24")
    a("s_mul_i32 s33, s33, 18432")
    if ZIMG: a("s_add_u32 s33, s33, 0x%x" % ZIMG)
    a("s_mul_i32 s36, s52, 9216")
    a("s_add_u32 s37, s33, s36")
    a("s_add_u32 s39, s37, 128")
    a("s_mul_i32 s36, s25, 160")
    a("s_add_u32 s37, s37, s36")
    def norm_pair(nA, ttA, nB, ttB, O):
        for q, n in enumerate((nA, nB)):
            for d in range(2):
                a("v_mov_b32 v%d, v%d" % (O + 2 * q + d, ZPf(n) + d))
        a("s_nop 1")
        a("v_permlane16_swap_b32 v%d, v%d" % (O, O + 2))
        a("v_permlane16_swap_b32 v%d, v%d" % (O + 1, O + 3))
    cnt = 0
    for pr in range(2):
        for tt in range(2):
            O = 128 + 4 * cnt; cnt += 1
            norm_pair(2 * (2 * pr) + tt, tt, 2 * (2 * pr + 1) + tt, tt, O)
            a("s_nop 0")
            a("buffer_store_dwordx4 %s, v6, s[12:15], s37 offen offset:%d" % (vr(O), tt * 2304 + 64 * pr))
    a("s_cmp_lg_u32 s98, 0")
    a("s_cbranch_scc1 %s_fin" % name)
    O = 128 + 4 * cnt
    norm_pair(8, 0, 9, 1, O)
    a("s_nop 0")
    a("buffer_store_dwordx4 %s, v9, s[12:15], s39 offen" % vr(O))
    a.label("%s_fin" % name)
    stamp(a, 4)
    a("s_cmp_ge_u32 s41, 288")
    a("s_cbranch_scc1 %s_fin2" % name)
    a("s_waitcnt vmcnt(9)")
    emit_kv_compute(a, wait=False)
    a.label("%s_fin2" % name)
    stamp(a, 6)
    G.stamp_rt(a, 1)
    a.label("%s_end" % name)
    a("s_endpgm")
    return a.text(), kernel_desc(name, 256, 256), (name, 256, 512, LDSB)

def gen_k1k(name="k1_kernel", R=4):
    a = Asm()
    RB = 4096; SLOT = 34816; TREG = 16384; FS = 288; RST = 0
    LDSB = RB + R * SLOT
    def capture(f, *args):
        lb = len(a.lines); f(*args); out = a.lines[lb:]; del a.lines[lb:]; return out
    kernel_begin(a, name)
    a("s_load_dwordx2 s[80:81], s[0:1], 0")
    a("s_load_dwordx2 s[4:5], s[0:1], 56")
    a("s_load_dwordx2 s[6:7], s[0:1], 104")
    a("s_load_dwordx2 s[18:19], s[0:1], 96")
    a("s_cmp_ge_u32 s2, 256")
    a("s_cbranch_scc1 %s_end" % name)
    a("v_lshrrev_b32 v1, 6, v0")
    a("v_and_b32 v2, 63, v0")
    a("v_readfirstlane_b32 s3, v1")
    G2.tile_ij(a)
    a("s_lshr_b32 s98, s3, 2")
    a("s_mov_b32 s54x, 0".replace("s54x", "s99"))
    a("s_and_b32 s3, s3, 3")
    a("s_lshr_b32 s24, s3, 1")
    a("s_and_b32 s25, s3, 1")
    a("v_and_b32 v3, 15, v2")
    VT = 204; VF = 208
    def loader_setup():
        a("v_lshrrev_b32 v5, 3, v2")
        a("v_and_b32 v4, 7, v2")
        a("s_lshl_b32 s36, s3, 5")
        a("v_add_u32 v5, s36, v5")
        a("v_lshrrev_b32 v7, 4, v2")
        a("v_xor_b32 v7, v7, v4")
        a("v_mul_u32_u24 v6, 1152, v5")
        a("v_lshl_add_u32 v%d, v7, 4, v6" % VT)
        a("v_xor_b32 v%d, 64, v%d" % (VT + 1, VT))
        a("v_add_u32 v%d, %d, v%d" % (VT + 1, 9216 - 1024, VT + 1))
        a("v_add_u32 v%d, %d, v%d" % (VT + 2, 2 * (9216 - 1024), VT))
        a("v_add_u32 v%d, %d, v%d" % (VT + 3, 2 * (9216 - 1024), VT + 1))
        a("s_lshl_b32 s84, s3, 12")
        a("s_add_u32 s84, s84, %d" % RB)
        a("s_lshl_b32 s85, s3, 9")
        a("s_add_u32 s85, s85, %d" % (RB + TREG + 16384))
    def loader_setup2():
        for n in range(5):
            if n < 4:
                a("s_lshl_b32 s36, s3, 8")
                a("s_add_u32 s36, s36, %d" % (64 * n))
            else:
                a("s_lshl_b32 s36, s3, 5")
                a("s_add_u32 s36, s36, 1024")
            a("v_add_u32 v6, s36, v2")
            a("v_mul_u32_u24 v7, 3641, v6")
            a("v_lshrrev_b32 v7, 16, v7")
            a("v_mul_u32_u24 v8, 18, v7")
            a("v_sub_u32 v8, v6, v8")
            a("v_and_b32 v9, 35, v7")
            a("v_bfe_u32 v6, v7, 2, 2")
            a("v_lshl_add_u32 v9, v6, 3, v9")
            a("v_bfe_u32 v6, v7, 4, 1")
            a("v_lshl_add_u32 v9, v6, 2, v9")
            a("v_mul_u32_u24 v9, 9216, v9")
            a("v_lshl_add_u32 v%d, v8, 4, v9" % (VF + n))
            if 0 < n < 4: a("v_subrev_u32 v%d, %d, v%d" % (VF + n, 1024 * n, VF + n))
    def issueT(g):
        st = g % 9
        a("s_add_u32 s86, s84, %d" % ((g % R) * SLOT))
        a("s_mov_b32 m0, s86")
        a("s_add_u32 s87, s82, %d" % (128 * st))
        for n in range(4):
            a("buffer_load_dwordx4 v%d, s[28:31], s87 offen offset:%d lds" % (VT + n, 1024 * n))
    def issueF(g):
        st = g % 9
        a("s_add_u32 s86, s84, %d" % ((g % R) * SLOT + TREG))
        a("s_mov_b32 m0, s86")
        a("s_add_u32 s87, s83, %d" % (64 * 9216 * st + (4608 if g < 9 else 0)))
        for n in range(4):
            a("buffer_load_dwordx4 v%d, s[8:11], s87 offen offset:%d lds" % (VF + n, 1024 * n))
        a("s_add_u32 s86, s85, %d" % ((g % R) * SLOT))
        a("s_mov_b32 m0, s86")
        a("s_mov_b64 exec, 0xffffffff")
        a("buffer_load_dwordx4 v%d, s[8:11], s87 offen lds" % (VF + 4))
        a("s_mov_b64 exec, -1")
    def srds_main():
        srd(a, 28, 80, 2048 * 576 * 2)
        srd(a, 8, 4, 576 * 4608 * 2)
        srd(a, 12, 6, WS_BYTES)
        srd(a, 60, 18, 256)
        a("s_mul_i32 s82, s22, %d" % (128 * 1152))
        a("s_mul_i32 s83, s23, 288")
    ACC = 128; FB = [16, 52]; CS = 216; ONE = 236
    vTa = [4, 5]; vTb = [6, 7]; vF = 8; vFh = 9
    bTa = [88, 89]; bTb = [90, 91]; bF = 92; bFh = 93
    def mma_setup():
        a("v_lshrrev_b32 v10, 4, v2")
        a("v_lshrrev_b32 v11, 1, v3")
        a("v_xor_b32 v10, v10, v11")
        a("v_lshlrev_b32 v10, 4, v10")
        a("v_lshl_add_u32 v10, v3, 7, v10")
        a("s_lshl_b32 s26, s24, 13")
        a("s_add_u32 s26, s26, %d" % RB)
        a("v_add_u32 v10, s26, v10")
        a("s_lshl_b32 s26, s25, 12")
        a("v_add_u32 v%d, s26, v10" % bTa[0])
        a("s_xor_b32 s26, s26, 4096")
        a("v_add_u32 v%d, s26, v10" % bTb[0])
        a("v_xor_b32 v%d, 64, v%d" % (bTa[1], bTa[0]))
        a("v_xor_b32 v%d, 64, v%d" % (bTb[1], bTb[0]))
        a("v_lshrrev_b32 v10, 2, v2")
        a("v_mul_u32_u24 v10, %d, v10" % FS)
        a("v_and_b32 v11, 3, v2")
        a("v_lshl_add_u32 v10, v11, 3, v10")
        a("v_add_u32 v10, %d, v10" % (RB + TREG))
        a("s_mul_i32 s26, s25, 160")
        a("v_add_u32 v%d, s26, v10" % bF)
        a("v_add_u32 v%d, 128, v10" % bFh)
        for r in range(ACC, ACC + 72): a("v_mov_b32 v%d, 0" % r)
        for r in range(CS, CS + 20): a("v_mov_b32 v%d, 0" % r)
        for r in range(ONE, ONE + 4): a("v_mov_b32 v%d, 0x3f803f80" % r)
    def mma_addr(slot):
        a("s_mov_b32 s27, %d" % (slot * SLOT))
        for d, s_ in ((vTa[0], bTa[0]), (vTb[0], bTb[0]), (vTa[1], bTa[1]), (vTb[1], bTb[1]), (vF, bF), (vFh, bFh)):
            a("v_add_u32 v%d, s27, v%d" % (d, s_))
    core = G.Core(a, ACC, FB[0], FB[1], FS, TREG, vTa, vTb, vF, vFh)
    trk = core.trk
    a("s_cmp_eq_u32 s98, 0")
    a("s_cbranch_scc1 %s_A0" % name)
    a("s_setprio 3")
    loader_setup()
    a("s_waitcnt lgkmcnt(0)")
    srds_main()
    vm = VmTracker(a)
    def issue(g, vmx):
        issueT(g); issueF(g); vmx.issue("S%d" % g, 9)
    issueT(0)
    loader_setup2()
    issueF(0); vm.issue("S0", 9)
    issue(1, vm); issue(2, vm); issue(3, vm)
    a("s_add_u32 s3, s3, 4"); stamp_setup(a, 1); stamp(a, 0); a("s_sub_u32 s3, s3, 4")
    for r in range(ONE, ONE + 4): a("v_mov_b32 v%d, 0x3f803f80" % r)
    RA = 96; XB = 112
    for r in range(RA, RA + 16): a("v_mov_b32 v%d, 0" % r)
    a("v_lshrrev_b32 v10, 4, v2")
    a("v_lshrrev_b32 v11, 1, v3")
    a("v_xor_b32 v10, v10, v11")
    a("v_lshlrev_b32 v10, 4, v10")
    a("v_lshl_add_u32 v10, v3, 7, v10")
    a("v_add_u32 v12, s84, v10")
    a("v_xor_b32 v13, 64, v12")
    def rs_rd(g):
        a("v_add_u32 v10, %d, v12" % ((g % R) * SLOT))
        a("v_add_u32 v11, %d, v13" % ((g % R) * SLOT))
        for h in range(2):
            for n in range(2):
                a("ds_read_b128 %s, v%d offset:%d" % (vr(XB + 8 * h + 4 * n), 10 + h, 2048 * n))
    def rs_do():
        for h in range(2):
            for n in range(2):
                x = XB + 8 * h + 4 * n
                a("v_mfma_f32_16x16x32_bf16 %s, %s, %s, %s" % (vr(RA + 4 * n), vr(ONE), vr(x), vr(RA + 4 * n)))
                a("v_mfma_f32_16x16x32_bf16 %s, %s, %s, %s" % (vr(RA + 8 + 4 * n), vr(x), vr(x), vr(RA + 8 + 4 * n)))
    def interleave(dma, comp, vmx=None):
        groups = []; cur = []
        for l in dma:
            cur.append(l)
            if "buffer_load" in l and not any("exec, 0xffffffff" in x for x in cur[-2:]):
                groups.append(cur); cur = []
            elif "exec, -1" in l:
                groups.append(cur); cur = []
        if cur: groups.append(cur)
        ns = max(1, len(groups))
        per = (len(comp) + ns - 1) // ns
        for g in groups:
            a.lines.extend(g)
            a.lines.extend(comp[:per]); comp = comp[per:]
        a.lines.extend(comp)
    vm.wait(["S0"])
    a("s_barrier")
    stamp(a, 1)
    rs_rd(0)
    vm.wait(["S1"])
    a("s_barrier")
    for k in range(9):
        a("s_waitcnt lgkmcnt(0)")
        dma = capture(lambda: (issueT(k + 3), issueF(k + 3))) if (k >= 1 and k + 3 < 9) else []
        interleave(dma, capture(rs_do))
        if k >= 1 and k + 3 < 9: vm.issue("S%d" % (k + 3), 9)
        if k < 8:
            rs_rd(k + 1)
        else:
            a("s_nop 7")
            a("v_lshrrev_b32 v10, 4, v2")
            a("v_lshrrev_b32 v11, 2, v3")
            a("v_and_b32 v12, 3, v3")
            for n in range(2):
                G_ = RA + 8 + 4 * n
                for r in range(1, 4):
                    a("v_cmp_eq_u32 vcc, %d, v12" % r)
                    a("s_nop 1")
                    a("v_cndmask_b32 v%d, v%d, v%d, vcc" % (G_, G_, G_ + r))
            ML = 112
            for n in range(2):
                emit_ln_finish(a, RA + 4 * n, RA + 8 + 4 * n, 576, ML + 2 * n, ML + 2 * n + 1, 120)
                a("v_mov_b32 v%d, v%d" % (117 + 2 * n, ML + 2 * n + 1))
                a("v_sub_f32 v%d, 0, v%d" % (116 + 2 * n, ML + 2 * n))
            a("s_lshl_b32 s35, s3, 8")
            a("v_lshlrev_b32 v13, 3, v3")
            a("v_add_u32 v12, s35, v13")
            a("v_cmp_eq_u32 vcc, v10, v11")
            a("s_and_saveexec_b64 s[36:37], vcc")
            for n in range(2):
                a("ds_write_b64 v12, %s offset:%d" % (vr(116 + 2 * n, 2), RST + 128 * n))
            a("s_mov_b64 exec, s[36:37]")
            a("s_cmp_lg_u32 s23, 0")
            a("s_cbranch_scc1 %s_nost1" % name)
            a("s_lshl_b32 s35, s22, 7")
            a("s_lshl_b32 s36, s3, 5")
            a("s_add_u32 s35, s35, s36")
            a("s_lshl_b32 s35, s35, 3")
            a("s_add_u32 s35, s35, 0x%x" % STATS1)
            a("v_mov_b32 v11, 0x7ffffff0")
            a("v_cndmask_b32 v13, v11, v13, vcc")
            for n in range(2):
                a("buffer_store_dwordx2 %s, v13, s[12:15], s35 offen offset:%d" % (vr(ML + 2 * n, 2), 128 * n))
            a.label("%s_nost1" % name)
        if k < 8:
            vm.wait(["S%d" % (k + 2)])
            a("s_barrier")
    a("s_waitcnt lgkmcnt(0)")
    a("s_barrier")
    a("s_load_dwordx4 s[64:67], s[0:1], 8")
    a("s_load_dwordx2 s[76:77], s[0:1], 24")
    a("s_load_dwordx2 s[90:91], s[0:1], 64")
    a("s_mul_i32 s36, s3, 13312")
    a("s_add_u32 s36, s36, %d" % RB)
    a("v_lshlrev_b32 v10, 4, v2")
    a("v_add_u32 v11, s36, v10")
    a("s_waitcnt lgkmcnt(0)")
    srd(a, 68, 66, 2048 * 576 * 2)
    a("s_mov_b32 s88, s64"); a("s_mov_b32 s89, s65")
    srd(a, 64, 88, 2048 * 576 * 2)
    srd(a, 72, 76, 576 * 8)
    srd(a, 92, 90, 2048 * 2048 * 2)
    a("s_barrier")
    n_ = 0
    for ft in range(4):
        for tt in range(2):
            a("ds_read_b128 %s, v11 offset:%d" % (vr(core.accr(ft, tt)), 1024 * n_)); n_ += 1
    for ft in range(4):
        a("ds_read_b128 %s, v11 offset:%d" % (vr(CS + 4 * ft), 1024 * n_)); n_ += 1
    a("s_branch %s_epi" % name)
    a.label("%s_A0" % name)
    emit_code_prefetch(a, name)
    a("s_load_dwordx4 s[64:67], s[0:1], 8")
    a("s_load_dwordx2 s[76:77], s[0:1], 24")
    a("s_load_dwordx2 s[90:91], s[0:1], 64")
    mma_setup()
    a("s_waitcnt lgkmcnt(0)")
    srds_main()
    srd(a, 68, 66, 2048 * 576 * 2)
    a("s_mov_b32 s88, s64"); a("s_mov_b32 s89, s65")
    srd(a, 64, 88, 2048 * 576 * 2)
    srd(a, 72, 76, 576 * 8)
    srd(a, 92, 90, 2048 * 2048 * 2)
    stamp_setup(a, 1); stamp(a, 0)
    def gran_addr():
        a("v_lshrrev_b32 v10, 4, v2")
        a("s_lshl_b32 s36, s25, 1")
        a("v_add_u32 v11, s36, v10")
        a("v_and_b32 v11, 3, v11")
        a("v_lshl_add_u32 v11, v11, 4, v3")
        a("v_lshlrev_b32 v94, 8, v11")
        a("s_lshl_b32 s59, s22, 7")
        a("s_lshl_b32 s36, s24, 6")
        a("s_add_u32 s59, s59, s36")
        a("s_lshl_b32 s59, s59, 8")
        a("s_add_u32 s59, s59, 0x%x" % STATS2)
        a("s_lshl_b32 s36, s23, 1")
        a("s_add_u32 s36, s36, s25")
        a("s_lshl_b32 s36, s36, 3")
        a("s_add_u32 s58, s36, s59")
    mma_addr(0)
    a("s_mov_b32 s33, 0")
    a("s_barrier")
    stamp(a, 1)
    a.label("%s_mma" % name)
    core.prime(0, core.reads(0, 0))
    trk.drain()
    def mfmas(buf):
        L = []
        for ft in range(5):
            A = core.F(buf, ft)
            for tt in range(4 if ft < 4 else 2):
                c = core.accr(ft, tt); B = core.T(buf, tt)
                L.append(("v_mfma_f32_16x16x32_bf16 %s, %s, %s, %s" % (vr(c), vr(A), vr(B), vr(c)), list(range(A, A + 4)) + list(range(B, B + 4))))
            L.append(("v_mfma_f32_16x16x32_bf16 %s, %s, %s, %s" % (vr(CS + 4 * ft), vr(A), vr(ONE), vr(CS + 4 * ft)), list(range(A, A + 4))))
        return L
    def phase(buf, pend):
        for (m, regs) in mfmas(buf):
            trk.need(regs)
            a(m)
            while pend:
                k, t = pend.pop(0)
                if k == "x":
                    a(t)
                    if t.startswith("s_"): continue
                else:
                    a(t[0]); trk.issue(t[1])
                break
        for k, t in pend:
            if k == "x": a(t)
            else: a(t[0]); trk.issue(t[1])
    def iteration():
        a("s_waitcnt vmcnt(0)")
        a("s_barrier")
        rd = [("r", t) for t in core.reads(1, 1)]
        upd = ["s_add_u32 s27, s27, %d" % SLOT, "s_cmp_eq_u32 s27, %d" % (R * SLOT), "s_cselect_b32 s27, 0, s27"]
        tail = ["v_add_u32 v%d, s27, v%d" % (d, s_) for d, s_ in ((vTa[0], bTa[0]), (vF, bF), (vTb[0], bTb[0]), (vFh, bFh))]
        phase(0, rd[:1] + [("x", u) for u in upd] + rd[1:] + [("x", u) for u in tail])
        rd = [("r", t) for t in core.reads(0, 0)]
        tail = ["v_add_u32 v%d, s27, v%d" % (d, s_) for d, s_ in ((vTa[1], bTa[1]), (vTb[1], bTb[1]))] + ["s_add_u32 s33, s33, 1"]
        phase(1, rd + [("x", u) for u in tail])
    a.label("%s_cloop" % name)
    lb = len(a.lines); iteration(); st = copy.deepcopy(trk.out); del a.lines[lb:]; trk.out = copy.deepcopy(st)
    iteration()
    assert [sorted(x) for x in trk.out] == [sorted(x) for x in st]
    a("s_cmp_lt_u32 s33, 9")
    a("s_cbranch_scc1 %s_cloop" % name)
    trk.drain()
    stamp(a, 2)
    a("s_waitcnt vmcnt(0)")
    a("s_barrier")
    a("s_mul_i32 s36, s3, 13312")
    a("s_add_u32 s36, s36, %d" % RB)
    a("v_lshlrev_b32 v10, 4, v2")
    a("v_add_u32 v11, s36, v10")
    n_ = 0
    for ft in range(4):
        for tt in range(2):
            a("ds_write_b128 v11, %s offset:%d" % (vr(core.accr(ft, tt + 2)), 1024 * n_)); n_ += 1
    for ft in range(4):
        a("ds_write_b128 v11, %s offset:%d" % (vr(CS + 4 * ft), 1024 * n_)); n_ += 1
    a("s_waitcnt lgkmcnt(0)")
    a("s_barrier")
    a.label("%s_epi" % name)
    MR = 100; T = 72; ZP = 200
    gelu_consts(a)
    a("s_xor_b32 s52, s98, s25")
    a("s_lshl_b32 s36, s24, 9")
    a("s_lshl_b32 s37, s52, 8")
    a("s_add_u32 s38, s36, s37")
    a("v_lshlrev_b32 v10, 3, v3")
    a("v_add_u32 v11, s38, v10")
    a("ds_read_b64 %s, v11 offset:%d" % (vr(MR, 2), RST))
    a("ds_read_b64 %s, v11 offset:%d" % (vr(MR + 2, 2), RST + 128))
    a("s_lshl_b32 s41, s2, 1")
    a("s_add_u32 s41, s41, s98")
    a("v_and_b32 v0, 255, v0")
    a("s_cmp_ge_u32 s41, 288")
    a("s_cbranch_scc1 %s_nokv1" % name)
    emit_kv_loads(a)
    a.label("%s_nokv1" % name)
    S = [108, 110]; Q = [109, 111]
    for r_ in range(108, 112): a("v_mov_b32 v%d, 0" % r_)
    a("s_waitcnt lgkmcnt(0)")
    ZPf = lambda n: (240 + 2 * n) if n < 8 else (196 + 2 * (n - 8))
    def dots(lst):
        for d in range(2):
            for (ft, tt) in lst:
                p = ZPf(2 * ft + tt) + d
                a("v_dot2_f32_bf16 v%d, v%d, v%d, v%d" % (S[tt], p, ONE, S[tt]))
                a("v_dot2_f32_bf16 v%d, v%d, v%d, v%d" % (Q[tt], p, p, Q[tt]))
    a("v_lshrrev_b32 v10, 4, v2")
    a("v_lshlrev_b32 v5, 12, v10")
    a("v_lshl_add_u32 v5, v3, 4, v5")
    a("s_lshl_b32 s33, s22, 7")
    a("s_lshl_b32 s36, s3, 5")
    a("s_add_u32 s33, s33, s36")
    a("s_lshl_b32 s36, s98, 4")
    a("s_add_u32 s33, s33, s36")
    a("s_lshl_b32 s33, s33, 12")
    a("s_lshl_b32 s36, s23, 8")
    a("s_add_u32 s33, s33, s36")
    for n in range(4):
        a("buffer_load_dwordx4 v[160:163], v5, s[92:95], s33 offen")
        if n < 3: a("s_add_u32 s33, s33, 16384")
    a("v_lshrrev_b32 v60, 2, v2"); a("v_and_b32 v60, 1, v60"); a("v_lshlrev_b32 v60, 4, v60")
    a("v_lshrrev_b32 v61, 3, v2"); a("v_and_b32 v61, 1, v61"); a("v_lshl_add_u32 v60, v61, 2, v60")
    a("v_and_b32 v61, 3, v2"); a("v_add_u32 v60, v60, v61")
    a("v_mul_u32_u24 v60, 288, v60")
    a("v_lshrrev_b32 v61, 1, v10"); a("v_lshl_add_u32 v60, v61, 4, v60")
    a("v_and_b32 v61, 1, v10")
    a("v_lshl_add_u32 v62, v61, 5, v60")
    a("v_mul_u32_u24 v61, 2304, v61")
    a("v_add_u32 v63, v60, v61")
    a("s_lshl_b32 s84, s23, 5")
    a("s_lshl_b32 s36, s22, 1")
    a("s_add_u32 s84, s84, s36")
    a("s_add_u32 s84, s84, s24")
    a("s_mul_i32 s84, s84, 18432")
    if ZIMG: a("s_add_u32 s84, s84, 0x%x" % ZIMG)
    a("s_mul_i32 s36, s52, 9216")
    a("s_add_u32 s85, s84, s36")
    a("s_add_u32 s86, s85, 128")
    a("s_mul_i32 s36, s25, 160")
    a("s_add_u32 s85, s85, s36")
    def norm_pair(nA, ttA, nB, ttB, O):
        for q, n in enumerate((nA, nB)):
            for d in range(2):
                a("v_mov_b32 v%d, v%d" % (O + 2 * q + d, ZPf(n) + d))
        a("s_nop 1")
        a("v_permlane16_swap_b32 v%d, v%d" % (O, O + 2))
        a("v_permlane16_swap_b32 v%d, v%d" % (O + 1, O + 3))
    a("s_cmp_lg_u32 s98, 0")
    a("s_cbranch_scc1 %s_nohalf" % name)
    lst = [(4, 0), (4, 1)]
    emit_fold_gelu(a, [(core.accr(ft, tt), CS + 4 * ft, MR + 2 * tt, ZPf(2 * ft + tt)) for ft, tt in lst], T)
    dots(lst)
    norm_pair(8, 0, 9, 1, 112)
    a("s_nop 0")
    a("buffer_store_dwordx4 %s, v63, s[12:15], s86 offen" % vr(112))
    a.label("%s_nohalf" % name)
    for pr, f0 in enumerate((0, 2)):
        lst = [(ft, tt) for ft in (f0, f0 + 1) for tt in range(2)]
        emit_fold_gelu(a, [(core.accr(ft, tt), CS + 4 * ft, MR + 2 * tt, ZPf(2 * ft + tt)) for ft, tt in lst], T)
        dots(lst)
        for tt in range(2):
            O = 116 + 8 * pr + 4 * tt - 0
            O = (116, 120, 124, 88)[2 * pr + tt]
            norm_pair(2 * f0 + tt, tt, 2 * (f0 + 1) + tt, tt, O)
            a("s_nop 0")
            a("buffer_store_dwordx4 %s, v62, s[12:15], s85 offen offset:%d" % (vr(O), tt * 2304 + 64 * pr))
    a("s_nop 2")
    emit_xg_reduce(a, S + Q, 72)
    a("s_lshl_b32 s59, s22, 7")
    a("s_lshl_b32 s36, s24, 6")
    a("s_add_u32 s59, s59, s36")
    a("s_lshl_b32 s36, s52, 5")
    a("s_add_u32 s59, s59, s36")
    a("s_lshl_b32 s59, s59, 8")
    a("s_add_u32 s59, s59, 0x%x" % STATS2)
    a("s_lshl_b32 s36, s23, 1")
    a("s_add_u32 s36, s36, s25")
    a("s_lshl_b32 s36, s36, 3")
    a("s_add_u32 s58, s36, s59")
    a("v_lshrrev_b32 v10, 4, v2")
    a("v_lshlrev_b32 v11, 8, v2")
    a("v_cmp_gt_u32 vcc, 32, v2")
    a("v_mov_b32 v12, 0x7ffffff0")
    a("v_cmp_eq_u32 s[36:37], 1, v10")
    a("v_cndmask_b32 v11, v12, v11, vcc")
    a("s_nop 0")
    a("v_cndmask_b32 v108, v108, v110, s[36:37]")
    a("v_cndmask_b32 v109, v109, v111, s[36:37]")
    a("buffer_store_dwordx2 v[108:109], v11, s[12:15], s58 offen")
    a("s_setprio 0")
    stamp(a, 3)
    a.label("%s_fin" % name)
    stamp(a, 4)
    a("s_cmp_ge_u32 s41, 288")
    a("s_cbranch_scc1 %s_fin2" % name)
    a("s_waitcnt vmcnt(9)")
    a("s_nop 4")
    emit_kv_compute(a, wait=False)
    a.label("%s_fin2" % name)
    stamp(a, 6)
    G.stamp_rt(a, 1)
    a.label("%s_end" % name)
    a("s_endpgm")
    return a.text(), kernel_desc(name, 256, 256), (name, 256, 512, LDSB)

gen_k2b = G3.gen_k2b; gen_k2c = G3.gen_k2c; gen_k2d = G3.gen_k2d; gen_k2e = G3.gen_k2e; gen_k2g = G3.gen_k2g; gen_k2f = G3.gen_k2f; gen_k3b = G3.gen_k3b; gen_k3c = G3.gen_k3c; gen_kw = G3.gen_kw; gen_k1g = G3.gen_k1g

if __name__ == "__main__":
    which = sys.argv[1]; out = sys.argv[2]
    if len(sys.argv) > 3: DBG.update(sys.argv[3].split(","))
    ks = [globals()["gen_" + w]() for w in which.split(",")]
    open(out, "w").write(assemble_file([k[2] for k in ks], "".join(k[0] for k in ks) + "code_end_lbl:\n", [k[1] for k in ks]))
```
